```python
import torch

def _softmax(x, axis=-1):
    return torch.softmax(x, dim=axis)
def _gelu(x):
    return torch.nn.functional.gelu(x, approximate="tanh")
def _silu(x):
    return torch.nn.functional.silu(x)
def _sigmoid(x):
    return torch.sigmoid(x)
def _layernorm(x, axis=-1, eps=1e-5):
    m = x.mean(dim=axis, keepdim=True)
    v = x.var(dim=axis, keepdim=True, unbiased=False)
    return (x - m) / torch.sqrt(v + eps)
def _scatter_add(tgt, idx, src, axis=0):
    return tgt.clone().index_add_(axis, idx, src)
def _segment_sum(src, seg, n):
    out = torch.zeros((n,) + src.shape[1:], dtype=src.dtype)
    return out.index_add_(0, seg, src)
def _pad(x, pw):
    flat = tuple(v for pair in reversed(pw) for v in pair)
    return torch.nn.functional.pad(x, flat)

kernel_name = 'interleave_layers__sliding_block_cached__mixer_token_mlp__decode'

def setup_inputs():

    _w = (lambda a: (lambda t: t.to(torch.bfloat16) if t.is_floating_point() else t)(torch.as_tensor(a)))
    def _A_setup():
        B, Sq, D = 4, 1, 512
        Hq, Hkv, Sk, Dh = 32, 8, 4096, 128
        assert Hq % Hkv == 0, (Hq, Hkv)
        return {
            "x": _w((lambda *s: torch.randn(*s, dtype=torch.bfloat16) * 0.05)(B, Sq, D)),
            "k_cache": _w((lambda *s: torch.randn(*s, dtype=torch.bfloat16) * 0.8)(B, Hkv, Sk, Dh)),
            "v_cache": _w((lambda *s: torch.randn(*s, dtype=torch.bfloat16) * 1.6)(B, Hkv, Sk, Dh)),
            "wq": _w((lambda *s: torch.randn(*s, dtype=torch.bfloat16) * 0.8)(D, Hq * Dh) * (D ** -0.5)),
            "wo": _w((lambda *s: torch.randn(*s, dtype=torch.bfloat16) * 1.6)(Hq * Dh, D) * ((Hq * Dh) ** -0.5)),
        }
    _A_in = _A_setup()

    def _B_setup():
        B, S, D, F = 4, 1, 512, 1792
        return {
            "x": _w((lambda *s: torch.randn(*s, dtype=torch.bfloat16) * 0.05)(B, S, D)),
            "w1": _w((lambda *s: torch.randn(*s, dtype=torch.bfloat16) * 1.6)(S, F) * (S ** -0.5)),
            "b1": _w((lambda *s: torch.randn(*s, dtype=torch.bfloat16) * 1.6)(F) * 0.02),
            "w2": _w((lambda *s: torch.randn(*s, dtype=torch.bfloat16) * 0.2)(F, S) * (F ** -0.5)),
            "b2": _w((lambda *s: torch.randn(*s, dtype=torch.bfloat16) * 0.2)(S) * 0.02),
        }
    _B_in = _B_setup()

    return {
        "A_x": _A_in["x"],
        "A_k_cache": _A_in["k_cache"],
        "A_v_cache": _A_in["v_cache"],
        "A_wq": _A_in["wq"],
        "A_wo": _A_in["wo"],
        "B_x": _B_in["x"],
        "B_w1": _B_in["w1"],
        "B_b1": _B_in["b1"],
        "B_w2": _B_in["w2"],
        "B_b2": _B_in["b2"],
    }

def reference(A_x, A_k_cache, A_v_cache, A_wq, A_wo, B_x, B_w1, B_b1, B_w2, B_b2):
    def _A_ref(x, k_cache, v_cache, wq, wo):
        B, Sq, D = x.shape
        Hq, Dh = 32, 128
        Hkv, Sk = k_cache.shape[1], k_cache.shape[2]
        W = min(4096, max(256, Sk // 4))
        rep = Hq // Hkv
        q = (lambda x, *d: x.permute(*d))((x @ wq).reshape(B, Sq, Hq, Dh), 0, 2, 1, 3)
        k = (lambda x, n, axis: torch.repeat_interleave(x, n, dim=axis))(k_cache[:, :, Sk - W:, :], rep, axis=1)
        v = (lambda x, n, axis: torch.repeat_interleave(x, n, dim=axis))(v_cache[:, :, Sk - W:, :], rep, axis=1)
        scores = torch.einsum("bhqd,bhkd->bhqk", q, k) * (Dh ** -0.5)
        p = _softmax(scores, axis=-1)
        o = torch.einsum("bhqk,bhkd->bhqd", p, v)
        return (lambda x, *d: x.permute(*d))(o, 0, 2, 1, 3).reshape(B, Sq, Hq * Dh) @ wo

    def _B_ref(x, w1, b1, w2, b2):
        B, S, D = x.shape
        h = _layernorm(x, axis=-1)
        u = torch.einsum("bsd,sf->bdf", h, w1) + b1
        u = _gelu(u)
        y = torch.einsum("bdf,fs->bds", u, w2) + b2
        return (lambda x, *d: x.permute(*d))(y, 0, 2, 1)

    x = A_x
    x = x + _A_ref(_layernorm(x, axis=-1), A_k_cache, A_v_cache, A_wq, A_wo)
    x = x + _B_ref(_layernorm(x, axis=-1), B_w1, B_b1, B_w2, B_b2)
    x = x + _A_ref(_layernorm(x, axis=-1), A_k_cache, A_v_cache, A_wq, A_wo)
    x = x + _B_ref(_layernorm(x, axis=-1), B_w1, B_b1, B_w2, B_b2)
    return x
```

```python
import sys, struct, math

NAME = "interleave_layers__sliding_block_cached__mixer_token_mlp__decode"
DIAG = int(sys.argv[2]) if len(sys.argv) > 2 else 0
OUTF = sys.argv[1] if len(sys.argv) > 1 else "cdna_kernels/%s.s" % NAME

def f2u(x): return struct.unpack("<I", struct.pack("<f", x))[0]
def hx(x): return "0x%08x" % (x & 0xffffffff)

L = []
def A(s): L.append("    " + s)
def LB(s): L.append(s + ":")
def C(s): L.append("    ; " + s)
def vr(a, n): return "v[%d:%d]" % (a, a + n - 1)
def sr(a, n): return "s[%d:%d]" % (a, a + n - 1)
def NOP(n):
    while n > 0:
        k = min(n, 16); A("s_nop %d" % (k - 1)); n -= k

NOCT = 24
ELO = 108
LO2 = (ELO << 7) * 2
NENT = NOCT * 256
EPW = NENT // 256 // 4 // 2
GRS = 0x20000
Q_OFF = [0x0000, 0x4000]; O_OFF = [0x8000, 0x10000]; LSE_OFF = [0x18000, 0x18200]; X1_OFF = 0x18400
CLR_PER = 3328
PB = 0x100000; P_L = 0x20000
TB = 0x140000
STB = 0x200000
WS_SZ = 0x400000
L_TAB = 0
L_WQ = 24576; L_K = L_WQ + 16384; L_V = L_K + 32768; L_WO = L_V + 32768
L_XN = L_WO + 16384; XS = 1056
L_X2 = L_XN + 4 * XS
L_FLG = L_X2 + 4 * XS
L_RB = L_K; L_ML = L_K + 8448
LDS_SZ = L_FLG + 64
SPIN = 0x40000

S_WG = 2
sK, sV, sWQ, sWO, sWS, sX, sDBG, sOUT, sW1, sB1, sW2 = 44, 48, 52, 56, 60, 64, 68, 72, 76, 80, 84
sB2P = 40
sW = 3
sJ, sA, sC = 4, 5, 6
sGR = 7
sLAY = 8
sFAST = 9
sT0, sT1, sT2, sT3, sT4, sT5 = 10, 11, 12, 13, 14, 15
sCNT = 16
sQL, sQS, sOL, sOS, sLL, sLS, sPS = 17, 18, 19, 20, 21, 22, 23
sSC = 24
sSUM, sSQ = 26, 27
sH = 28
sH2 = 30
sRET = 32
sMSK = 34
sB2 = 36
sY = 37
sXCC = 38
sST = 88

nstamp = [0]
def STAMP(i):
    if DIAG:
        A("s_memrealtime s[42:43]"); A("s_waitcnt lgkmcnt(0)")
        A("v_writelane_b32 v30, s42, %d" % i)

vTID, vLANE = 0, 1
vL16, vQST, vOST, vOLD, vPST, vX1S, vXNW, vXNR, vRBW, vRBR, vMLW, vMLR, vLSE, vZ = range(2, 16)
vT = 16
KF, VF, WQF, WOF, SEL, ONES = 32, 64, 96, 112, 176, 180
W = 184
XR = 248
RES = 252

def srd(s, nbytes):
    A("s_mov_b32 s%d, %s" % (s + 2, hx(nbytes))); A("s_mov_b32 s%d, 0x00020000" % (s + 3))

def wave_sum2(a, b, sa, sb):
    for ctl in ["row_ror:8", "row_ror:4", "row_ror:2", "row_ror:1"]:
        A("v_add_f32_dpp v%d, v%d, v%d %s row_mask:0xf bank_mask:0xf" % (a, a, a, ctl))
        A("v_add_f32_dpp v%d, v%d, v%d %s row_mask:0xf bank_mask:0xf" % (b, b, b, ctl))
        A("s_nop 0")
    for ctl in ["row_bcast:15 row_mask:0xa", "row_bcast:31 row_mask:0xc"]:
        A("v_add_f32_dpp v%d, v%d, v%d %s bank_mask:0xf" % (a, a, a, ctl))
        A("v_add_f32_dpp v%d, v%d, v%d %s bank_mask:0xf" % (b, b, b, ctl))
        A("s_nop 0")
    A("v_readlane_b32 s%d, v%d, 63" % (sa, a))
    A("v_readlane_b32 s%d, v%d, 63" % (sb, b))

def row_stats(x, t, unp):
    A("v_dot2_f32_bf16 v%d, v%d, v%d, 0" % (t, x, ONES))
    A("v_dot2_f32_bf16 v%d, v%d, v%d, 0" % (t + 1, x, x))
    for i in range(1, 4):
        A("v_dot2_f32_bf16 v%d, v%d, v%d, v%d" % (t, x + i, ONES, t))
        A("v_dot2_f32_bf16 v%d, v%d, v%d, v%d" % (t + 1, x + i, x + i, t + 1))
    for i in range(4):
        A("v_lshlrev_b32 v%d, 16, v%d" % (unp + 2 * i, x + i))
        A("v_and_b32 v%d, 0xffff0000, v%d" % (unp + 2 * i + 1, x + i))
    wave_sum2(t, t + 1, sSUM, sSQ)
    A("s_nop 1")
    A("v_mul_f32 v%d, s%d, v%d" % (t, sSUM, vZ))
    A("v_mul_f32 v%d, s%d, v%d" % (t + 1, sSQ, vZ))
    A("v_fma_f32 v%d, -v%d, v%d, v%d" % (t + 1, t, t, t + 1))
    A("v_max_f32 v%d, 0, v%d" % (t + 1, t + 1))

EPS = hx(f2u(1e-5))
ool = []
uid = [0]
def poll(issue, regs, tmp, pre_wait=None):
    uid[0] += 1; u = uid[0]
    A("s_mov_b32 s%d, %s" % (sCNT, hx(SPIN)))
    LB("Lp%d" % u)
    issue()
    if pre_wait: pre_wait()
    A("s_waitcnt vmcnt(0)")
    r = list(regs)
    A("v_max3_u32 v%d, v%d, v%d, v%d" % (tmp, r[0], r[1], r[2])); r = r[3:]
    t2 = tmp + 1
    first2 = True
    flip = 0
    while len(r) >= 2:
        if flip == 0 and first2 and len(r) >= 3:
            A("v_max3_u32 v%d, v%d, v%d, v%d" % (t2, r[0], r[1], r[2])); r = r[3:]; first2 = False
        else:
            d = tmp if (flip or first2) else t2
            A("v_max3_u32 v%d, v%d, v%d, v%d" % (d, d, r[0], r[1])); r = r[2:]
        flip ^= 1
    if len(r) == 1:
        if first2: A("v_max_u32 v%d, v%d, v%d" % (tmp, tmp, r[0]))
        else: A("v_max3_u32 v%d, v%d, v%d, v%d" % (tmp, tmp, t2, r[0]))
    elif not first2:
        A("v_max_u32 v%d, v%d, v%d" % (tmp, tmp, t2))
    A("v_cmp_eq_u32 vcc, -1, v%d" % tmp)
    A("s_cbranch_vccnz Lr%d" % u)
    LB("Ld%d" % u)
    ool.append(["Lr%d:" % u, "    s_sub_u32 s%d, s%d, 1" % (sCNT, sCNT), "    s_cbranch_scc0 Lq%d" % u,
                "    s_branch Ld%d" % u, "Lq%d:" % u, "    s_branch Lp%d" % u])

def lds_spin(off, target, tmp):
    uid[0] += 1; u = uid[0]
    A("s_mov_b32 s%d, %s" % (sCNT, hx(SPIN * 4)))
    LB("Ls%d" % u)
    A("ds_read_b32 v%d, v%d offset:%d" % (tmp, vFL, off))
    A("s_waitcnt lgkmcnt(0)")
    A("v_readfirstlane_b32 s%d, v%d" % (sT0, tmp))
    A("s_cmp_ge_u32 s%d, %d" % (sT0, target))
    A("s_cbranch_scc1 Lt%d" % u)
    A("s_sub_u32 s%d, s%d, 1" % (sCNT, sCNT))
    A("s_cbranch_scc0 Ls%d" % u)
    LB("Lt%d" % u)

vFL = 29

def store_local(op, data, vaddr, soff):
    uid[0] += 1; u = uid[0]
    A("s_cmp_eq_u32 s%d, 0" % sFAST)
    A("s_cbranch_scc1 Lw%d" % u)
    A("%s %s, v%d, %s, s%d offen" % (op, data, vaddr, sr(sWS, 4), soff))
    LB("Lx%d" % u)
    ool.append(["Lw%d:" % u, "    %s %s, v%d, %s, s%d offen sc1" % (op, data, vaddr, sr(sWS, 4), soff), "    s_branch Lx%d" % u])

def mfma(d, a, b, c):
    A("v_mfma_f32_16x16x32_bf16 %s, %s, %s, %s" % (vr(d, 4), vr(a, 4), vr(b, 4), "0" if c is None else vr(c, 4)))

hdr = open("cdna_kernels/%s.s.ref" % NAME).read().split("; Override launch")[0]
L.append(hdr.rstrip("\n"))
L.append("; @launch grid=(256,1,1) block=(512,1,1) lds=%d" % LDS_SZ)
L.append('.amdgcn_target "amdgcn-amd-amdhsa--gfx950"')
L.append(".text\n.globl %s_kernel\n.p2align 8\n.type %s_kernel,@function\n%s_kernel:" % (NAME, NAME, NAME))
A("s_cmp_ge_u32 s2, 256")
A("s_cbranch_scc1 Lend")
if DIAG:
    A("s_memrealtime s[42:43]")
for s, off in [(sK, 8), (sV, 16), (sWQ, 24), (sWS, 96), (sW1, 48), (sB1, 56), (sW2, 64), (sX, 0), (sDBG, 88), (sWO, 32), (sOUT, 80), (sB2P, 72)]:
    A("s_load_dwordx2 %s, s[0:1], %d" % (sr(s, 2), off))
A("v_lshrrev_b32 v16, 6, v0")
A("v_and_b32 v%d, 63, v0" % vLANE)
A("v_mov_b32 v%d, %d" % (vFL, L_FLG))
A("v_readfirstlane_b32 s%d, v16" % sW)
A("v_mov_b32 v17, 0")
A("v_mov_b32 v18, 0")
A("v_mov_b32 v19, 0")
A("v_mov_b32 v20, 0")
A("ds_write_b128 v%d, v[17:20]" % vFL) if False else None
A("ds_write_b64 v%d, v[18:19]" % vFL)
A("ds_write_b64 v%d, v[18:19] offset:8" % vFL)
for s, n in [(sK, 1 << 25), (sV, 1 << 25), (sWQ, 1 << 22), (sWS, WS_SZ), (sW1, 3584), (sB1, 3584), (sW2, 3584), (sX, 4096), (sDBG, 256), (sWO, 1 << 22), (sOUT, 4096)]:
    srd(s, n)
A("s_and_b32 s%d, s2, 7" % sJ)
A("s_lshr_b32 s%d, s2, 6" % sA)
A("s_bfe_u32 s%d, s2, 0x30003" % sC)
A("s_lshl_b32 s%d, s%d, 17" % (sGR, sJ))
A("v_lshlrev_b32 v%d, 4, v%d" % (vL16, vLANE))
if DIAG:
    A("v_mov_b32 v30, 0")
A("s_waitcnt lgkmcnt(0)")
if DIAG:
    A("v_writelane_b32 v30, s42, 0")
A("s_barrier")
A("s_cmp_ge_u32 s%d, 4" % sW)
A("s_cbranch_scc1 Lhelper")

C("---- main waves ----")
A("s_setprio 2")
A("s_lshl_b32 s%d, s%d, 10" % (sT0, sW))
A("buffer_load_dwordx4 %s, v%d, %s, s%d offen" % (vr(XR, 4), vL16, sr(sX, 4), sT0))
A("v_lshrrev_b32 v16, 3, v%d" % vLANE)
A("v_and_b32 v17, 7, v%d" % vLANE)
A("v_bfe_u32 v18, v%d, 4, 1" % vLANE)
A("v_lshlrev_b32 v18, 1, v18")
A("v_xor_b32 v17, v17, v18")
A("v_lshlrev_b32 v17, 4, v17")
A("v_lshl_add_u32 v20, v16, 13, v17")
A("v_xor_b32 v21, 64, v20")
A("v_lshl_add_u32 v22, v16, 10, v17")
A("v_xor_b32 v23, 64, v22")
A("s_lshl_b32 s%d, s%d, 20" % (sT0, sA))
A("s_lshl_b32 s%d, s%d, 18" % (sT1, sW))
A("s_add_u32 s%d, s%d, s%d" % (sT0, sT0, sT1))
A("s_lshl_b32 s%d, s%d, 10" % (sT1, sJ))
A("s_add_u32 s%d, s%d, s%d" % (sT0, sT0, sT1))
A("s_lshl_b32 s%d, s%d, 7" % (sT1, sC))
A("s_add_u32 s%d, s%d, s%d" % (sT0, sT0, sT1))
A("s_lshl_b32 s%d, s%d, 12" % (sT2, sW))
A("s_add_u32 s%d, s%d, %d" % (sT2, sT2, L_WQ))
A("s_cmp_lg_u32 s%d, 0" % sW)
A("s_cbranch_scc1 Lnoclr")
for i in range(4): A("v_mov_b32 v%d, -1" % (24 + i))
A("s_lshr_b32 s%d, s2, 3" % sT3)
A("s_mul_i32 s%d, s%d, %d" % (sT3, sT3, CLR_PER))
A("s_add_u32 s%d, s%d, s%d" % (sT3, sT3, sGR))
for i in range(3):
    A("buffer_store_dwordx4 v[24:27], v%d, %s, s%d offen offset:%d sc1" % (vL16, sr(sWS, 4), sT3, 1024 * i))
A("s_lshl_b32 s%d, s2, 10" % sT4)
A("s_add_u32 s%d, s%d, %s" % (sT4, sT4, hx(PB)))
A("buffer_store_dwordx4 v[24:27], v%d, %s, s%d offen sc1" % (vL16, sr(sWS, 4), sT4))
A("s_mov_b64 exec, 0xffff")
A("buffer_store_dwordx4 v[24:27], v%d, %s, s%d offen offset:3072 sc1" % (vL16, sr(sWS, 4), sT3))
A("s_mul_i32 s%d, s2, %d" % (sT4, NENT * 4 // 256))
A("s_add_u32 s%d, s%d, %s" % (sT4, sT4, hx(TB)))
A("s_mov_b64 exec, %s" % hex((1 << (NENT * 4 // 256 // 16)) - 1))
A("buffer_store_dwordx4 v[24:27], v%d, %s, s%d offen sc1" % (vL16, sr(sWS, 4), sT4))
A("s_mov_b64 exec, -1")
LB("Lnoclr")
for i in range(4):
    A("s_mov_b32 m0, s%d" % sT2)
    A("s_add_u32 s%d, s%d, 1024" % (sT2, sT2))
    A("buffer_load_dwordx4 v%d, %s, s%d offen nt lds" % (20 + (i & 1), sr(sWQ, 4), sT0))
    A("s_add_u32 s%d, s%d, 0x10000" % (sT0, sT0))
A("s_getpc_b64 s[10:11]")
LB("Lpc0")
A("s_and_b32 s10, s10, 0xffffff00")
A("v_lshlrev_b32 v16, 6, v0")
A("global_load_dword v28, v16, s[10:11]")
A("v_lshrrev_b32 v16, 4, v%d" % vLANE)
A("v_and_b32 v17, 15, v%d" % vLANE)
A("v_and_b32 v18, 3, v%d" % vLANE)
A("v_and_b32 v19, 7, v%d" % vLANE)
A("v_lshlrev_b32 v%d, 12, v17" % vQST)
A("v_lshrrev_b32 v24, 1, v16")
A("v_lshl_add_u32 v%d, v24, 8, v%d" % (vQST, vQST))
A("v_and_b32 v24, 1, v16")
A("v_lshl_add_u32 v%d, v24, 3, v%d" % (vQST, vQST))
A("v_lshlrev_b32 v%d, 4, v24" % vLSE)
A("v_lshrrev_b32 v25, 2, v%d" % vLANE)
A("v_lshlrev_b32 v25, 7, v25")
A("v_lshl_add_u32 v%d, v18, 2, v25" % vOST)
A("v_lshlrev_b32 v25, 7, v16")
A("v_lshl_add_u32 v%d, v19, 4, v25" % vOLD)
A("v_lshlrev_b32 v%d, 1, v%d" % (vPST, vLANE))
A("v_lshlrev_b32 v25, 3, v16")
A("v_lshl_add_u32 v%d, v19, 4, v25" % vX1S)
A("s_mul_i32 s%d, s%d, %d" % (sT0, sW, XS))
A("s_add_u32 s%d, s%d, %d" % (sT0, sT0, L_XN))
A("v_add_u32 v%d, s%d, v%d" % (vXNW, sT0, vL16))
A("s_lshl_b32 s%d, s%d, 8" % (sT0, sA))
A("s_add_u32 s%d, s%d, %d" % (sT0, sT0, L_XN))
A("v_mul_u32_u24 v25, %d, v18" % XS)
A("v_lshl_add_u32 v25, v16, 4, v25")
A("v_add_u32 v%d, s%d, v25" % (vXNR, sT0))
A("s_mul_i32 s%d, s%d, 2112" % (sT0, sW))
A("s_add_u32 s%d, s%d, %d" % (sT0, sT0, L_RB))
A("v_mul_u32_u24 v25, 528, v17")
A("v_lshl_add_u32 v25, v16, 4, v25")
A("v_add_u32 v%d, s%d, v25" % (vRBW, sT0))
A("s_mul_i32 s%d, s%d, 528" % (sT0, sW))
A("s_add_u32 s%d, s%d, %d" % (sT0, sT0, L_RB))
A("v_lshlrev_b32 v25, 3, v%d" % vLANE)
A("v_add_u32 v%d, s%d, v25" % (vRBR, sT0))
A("s_lshl_b32 s%d, s%d, 3" % (sT0, sW))
A("s_add_u32 s%d, s%d, %d" % (sT0, sT0, L_ML))
A("v_lshlrev_b32 v25, 5, v17")
A("v_add_u32 v%d, s%d, v25" % (vMLW, sT0))
A("s_lshl_b32 s%d, s%d, 5" % (sT0, sW))
A("s_add_u32 s%d, s%d, %d" % (sT0, sT0, L_ML))
A("v_mov_b32 v%d, s%d" % (vMLR, sT0))
A("v_mov_b32 v%d, %s" % (vZ, hx(f2u(1.0 / 512))))
for r in range(4):
    A("v_mov_b32 v%d, 0x3f803f80" % (ONES + r))
    A("v_cmp_eq_u32 vcc, %d, v17" % (2 * r))
    A("v_mov_b32 v25, 0x3f80")
    A("v_mov_b32 v26, 0x3f800000")
    A("v_cndmask_b32 v%d, 0, v25, vcc" % (SEL + r))
    A("v_cmp_eq_u32 vcc, %d, v17" % (2 * r + 1))
    A("s_nop 1")
    A("v_cndmask_b32 v%d, v%d, v26, vcc" % (SEL + r, SEL + r))
A("s_lshl_b32 s%d, s%d, 12" % (sQL, sA))
A("s_add_u32 s%d, s%d, s%d" % (sQL, sQL, sGR))
A("s_and_b32 s%d, s%d, 1" % (sT0, sC))
A("s_lshl_b32 s%d, s%d, 11" % (sT0, sT0))
A("s_lshl_b32 s%d, s%d, 9" % (sT1, sW))
A("s_add_u32 s%d, s%d, s%d" % (sQS, sT0, sT1))
A("s_lshr_b32 s%d, s%d, 1" % (sT0, sC))
A("s_lshl_b32 s%d, s%d, 2" % (sT1, sA))
A("s_add_u32 s%d, s%d, s%d" % (sT0, sT0, sT1))
A("s_lshl_b32 s%d, s%d, 4" % (sT0, sT0))
A("s_add_u32 s%d, s%d, s%d" % (sQS, sQS, sT0))
A("s_add_u32 s%d, s%d, s%d" % (sQS, sQS, sGR))
A("s_lshl_b32 s%d, s%d, 13" % (sT0, sW))
A("s_lshl_b32 s%d, s%d, 11" % (sT1, sA))
A("s_add_u32 s%d, s%d, s%d" % (sOS, sT0, sT1))
A("s_lshl_b32 s%d, s%d, 4" % (sT0, sC))
A("s_add_u32 s%d, s%d, s%d" % (sOS, sOS, sT0))
A("s_add_u32 s%d, s%d, s%d" % (sOS, sOS, sGR))
A("s_add_u32 s%d, s%d, %d" % (sOS, sOS, O_OFF[0]))
A("s_lshl_b32 s%d, s%d, 13" % (sT0, sA))
A("s_lshl_b32 s%d, s%d, 11" % (sT1, sW))
A("s_add_u32 s%d, s%d, s%d" % (sOL, sT0, sT1))
A("s_add_u32 s%d, s%d, s%d" % (sOL, sOL, sGR))
A("s_add_u32 s%d, s%d, %d" % (sOL, sOL, O_OFF[0]))
A("s_lshl_b32 s%d, s%d, 7" % (sT0, sW))
A("s_lshl_b32 s%d, s%d, 5" % (sT1, sA))
A("s_add_u32 s%d, s%d, s%d" % (sLS, sT0, sT1))
A("s_lshl_b32 s%d, s%d, 2" % (sT0, sC))
A("s_add_u32 s%d, s%d, s%d" % (sLS, sLS, sT0))
A("s_add_u32 s%d, s%d, s%d" % (sLS, sLS, sGR))
A("s_add_u32 s%d, s%d, %d" % (sLS, sLS, LSE_OFF[0]))
A("s_lshl_b32 s%d, s%d, 7" % (sT0, sA))
A("s_lshl_b32 s%d, s%d, 5" % (sT1, sW))
A("s_add_u32 s%d, s%d, s%d" % (sLL, sT0, sT1))
A("s_add_u32 s%d, s%d, s%d" % (sLL, sLL, sGR))
A("s_add_u32 s%d, s%d, %d" % (sLL, sLL, LSE_OFF[0]))
A("s_lshl_b32 s%d, s%d, 15" % (sT0, sW))
A("s_lshl_b32 s%d, s%d, 12" % (sT1, sC))
A("s_add_u32 s%d, s%d, s%d" % (sPS, sT0, sT1))
A("s_lshl_b32 s%d, s%d, 2" % (sT0, sJ))
A("s_add_u32 s%d, s%d, s%d" % (sT0, sT0, sA))
A("s_lshl_b32 s%d, s%d, 7" % (sT0, sT0))
A("s_add_u32 s%d, s%d, s%d" % (sPS, sPS, sT0))
A("s_add_u32 s%d, s%d, %s" % (sPS, sPS, hx(PB)))
A("s_mov_b32 s%d, %s" % (sSC, hx(f2u(128 ** -0.5 * math.log2(math.e)))))
A("s_mov_b32 s%d, 0" % sLAY)
A("s_lshl_b32 s%d, s%d, 10" % (sT0, sA))
A("s_lshl_b32 s%d, s%d, 7" % (sT1, sC))
A("s_add_u32 s%d, s%d, s%d" % (sT0, sT0, sT1))
A("buffer_load_dwordx2 %s, v%d, %s, s%d offen" % (vr(RES + 2, 2), vX1S, sr(sX, 4), sT0))
A("s_cmp_lg_u32 s%d, 0" % sW)
A("s_cbranch_scc1 Lnoarr")
A("s_getreg_b32 s%d, hwreg(HW_REG_XCC_ID, 0, 3)" % sXCC)
A("s_lshl_b32 s%d, s%d, 3" % (sT0, sXCC))
A("s_lshl_b64 %s, 1, s%d" % (sr(sT2, 2), sT0))
A("v_mov_b32 v24, s%d" % sT2)
A("v_mov_b32 v25, s%d" % (sT2 + 1))
A("s_lshl_b32 s%d, s%d, 5" % (sT0, sJ))
A("v_mov_b32 v26, s%d" % sT0)
A("v_mov_b32 v21, 1")
A("s_waitcnt vmcnt(6)")
A("s_mov_b64 exec, 1")
A("buffer_atomic_add_x2 v[24:25], v26, %s, 0 offen sc1" % sr(sDBG, 4))
A("ds_write_b32 v%d, v21 offset:8" % vFL)
A("s_mov_b64 exec, -1")
LB("Lnoarr")
A("v_lshlrev_b32 v27, 5, v19")
A("s_waitcnt vmcnt(%d)" % 0)
for i in range(2):
    A("v_lshlrev_b32 v%d, 16, v%d" % (W + 2 * i, RES + 2 + i))
    A("v_and_b32 v%d, 0xffff0000, v%d" % (W + 2 * i + 1, RES + 2 + i))
for i in range(4): A("v_mov_b32 v%d, v%d" % (RES + i, W + i))
STAMP(1)

LB("Llnq")
C("LayerNorm of the row held in XR, then q partial = xn @ wq tile")
X = W
row_stats(XR, vT, X)
A("v_add_f32 v%d, %s, v%d" % (vT + 1, EPS, vT + 1))
A("v_rsq_f32 v%d, v%d" % (vT + 2, vT + 1))
A("s_nop 0")
A("v_mul_f32 v%d, v%d, v%d" % (vT + 3, vT, vT + 2))
for i in range(4):
    A("v_pk_fma_f32 %s, %s, %s, %s op_sel:[0,0,1] op_sel_hi:[1,0,1] neg_lo:[0,0,1] neg_hi:[0,0,1]" % (vr(X + 2 * i, 2), vr(X + 2 * i, 2), vr(vT + 2, 2), vr(vT + 2, 2)))
for i in range(4):
    A("v_cvt_pk_bf16_f32 v%d, v%d, v%d" % (X + 8 + i, X + 2 * i, X + 2 * i + 1))
A("ds_write_b128 v%d, %s" % (vXNW, vr(X + 8, 4)))
A("s_cmp_eq_u32 s%d, 0" % sLAY)
A("s_cbranch_scc1 Lq_first")
A("s_waitcnt lgkmcnt(0)")
A("s_barrier")
LB("Lq_go")
BF = W + 16
for t in range(4):
    A("ds_read_b128 %s, v%d offset:%d" % (vr(BF + 4 * t, 4), vXNR, 64 * t))
for t in range(4):
    A("s_waitcnt lgkmcnt(%d)" % (3 - t))
    mfma(W, WQF + 4 * t, BF + 4 * t, None if t == 0 else W)
A("s_mov_b64 exec, 0x000f000f000f000f") if False else None
A("s_mov_b32 s%d, 0x000f000f" % sMSK)
A("s_mov_b32 s%d, 0x000f000f" % (sMSK + 1))
NOP(6)
A("v_cvt_pk_bf16_f32 v%d, v%d, v%d" % (W + 4, W, W + 1))
A("v_cvt_pk_bf16_f32 v%d, v%d, v%d" % (W + 5, W + 2, W + 3))
A("s_mov_b64 exec, %s" % sr(sMSK, 2))
store_local("buffer_store_dwordx2", vr(W + 4, 2), vQST, sQS)
A("s_mov_b64 exec, -1")
STAMP(2)
ool_first = []
Lsave = L; L = ool_first
LB("Lq_first")
A("v_mov_b32 v%d, 1" % (vT + 4))
A("s_waitcnt lgkmcnt(0)")
A("s_mov_b64 exec, 1")
A("ds_add_u32 v%d, v%d" % (vFL, vT + 4))
A("s_mov_b64 exec, -1")
A("v_lshrrev_b32 v16, 4, v%d" % vLANE)
A("v_bfe_u32 v17, v%d, 2, 2" % vLANE)
A("v_lshl_add_u32 v18, v16, 3, v17")
A("v_lshlrev_b32 v18, 7, v18")
A("v_bfe_u32 v19, v%d, 3, 2" % vLANE)
A("v_lshlrev_b32 v19, 1, v19")
A("v_bfe_u32 v20, v%d, 1, 1" % vLANE)
A("v_xor_b32 v19, v19, v20")
A("v_lshl_add_u32 v18, v19, 4, v18")
A("v_and_b32 v20, 1, v%d" % vLANE)
A("v_lshl_add_u32 v28, v20, 3, v18")
A("s_lshl_b32 s%d, s%d, 5" % (sT1, sW))
A("v_xor_b32 v18, s%d, v28" % sT1)
A("s_lshl_b32 s%d, s%d, 5" % (sT1, sJ))
A("v_mov_b32 v21, s%d" % sT1)
lds_spin(0, 4, vT + 4)
for t in range(4):
    for hf in range(2):
        A("ds_read_b64_tr_b16 %s, v18 offset:%d" % (vr(WQF + 4 * t + 2 * hf, 2), L_WQ + 4096 * t + 512 * hf))
A("s_mov_b32 s%d, %s" % (sCNT, hx(SPIN)))
LB("Lgp")
A("buffer_load_dwordx2 v[24:25], v21, %s, 0 offen sc1" % sr(sDBG, 4))
A("s_waitcnt vmcnt(0)")
A("v_readfirstlane_b32 s%d, v24" % sT2)
A("v_readfirstlane_b32 s%d, v25" % sT3)
A("s_add_u32 s%d, s%d, s%d" % (sT4, sT2, sT3))
A("s_mul_i32 s%d, s%d, 0x01010101" % (sT4, sT4))
A("s_lshr_b32 s%d, s%d, 24" % (sT4, sT4))
A("s_cmp_eq_u32 s%d, 32" % sT4)
A("s_cbranch_scc1 Lgd")
A("s_sub_u32 s%d, s%d, 1" % (sCNT, sCNT))
A("s_cbranch_scc0 Lgp")
LB("Lgd")
A("s_or_b32 s%d, s%d, s%d" % (sT4, sT2, sT3))
A("s_and_b32 s%d, s%d, 0x20202020" % (sFAST, sT4))
A("s_waitcnt lgkmcnt(0)")
A("s_branch Lq_go")
L = Lsave

C("attention over this workgroup's 128 keys")
QF = W + 16
def iq():
    for t in range(4):
        A("buffer_load_dwordx4 %s, v%d, %s, s%d offen offset:%d sc1" % (vr(QF + 4 * t, 4), vL16, sr(sWS, 4), sQL, 1024 * t))
poll(iq, range(QF, QF + 16), vT)
STAMP(3)
A("s_cmp_eq_u32 s%d, 0" % sLAY)
A("s_cbranch_scc1 Lk_first")
LB("Lk_go")
S = W
for t in range(4):
    for T in range(2):
        mfma(S + 4 * T, KF + 16 * T + 4 * t, QF + 4 * t, None if t == 0 else S + 4 * T)
NOP(8)
for ctl in ["row_ror:4", "row_ror:8"]:
    for i in range(8):
        A("v_add_f32_dpp v%d, v%d, v%d %s row_mask:0xf bank_mask:0xf" % (S + i, S + i, S + i, ctl))
A("v_max3_f32 v%d, v%d, v%d, v%d" % (vT, S, S + 1, S + 2))
A("v_max3_f32 v%d, v%d, v%d, v%d" % (vT + 1, S + 3, S + 4, S + 5))
A("v_max3_f32 v%d, v%d, v%d, v%d" % (vT, vT, S + 6, S + 7))
A("v_max_f32 v%d, v%d, v%d" % (vT, vT, vT + 1))
A("v_mov_b32 v%d, v%d" % (vT + 1, vT))
A("s_nop 1")
A("v_permlane16_swap_b32 v%d, v%d" % (vT, vT + 1))
A("s_nop 0")
A("v_max_f32 v%d, v%d, v%d" % (vT, vT, vT + 1))
A("v_mov_b32 v%d, v%d" % (vT + 1, vT))
A("s_nop 1")
A("v_permlane32_swap_b32 v%d, v%d" % (vT, vT + 1))
A("s_nop 0")
A("v_max_f32 v%d, v%d, v%d" % (vT, vT, vT + 1))
A("v_mul_f32 v%d, s%d, v%d" % (vT + 2, sSC, vT))
for i in range(8):
    A("v_fma_f32 v%d, v%d, s%d, -v%d" % (S + i, S + i, sSC, vT + 2))
for i in range(8):
    A("v_exp_f32 v%d, v%d" % (S + i, S + i))
A("s_nop 0")
PF = W + 8
for i in range(4):
    A("v_cvt_pk_bf16_f32 v%d, v%d, v%d" % (PF + i, S + 2 * i, S + 2 * i + 1))
STAMP(4)
A("s_cmp_eq_u32 s%d, 0" % sLAY)
A("s_cbranch_scc1 Lv_first")
LB("Lv_go")
OA = W + 16
A("s_nop 0")
mfma(W + 12, ONES, PF, None)
for t in range(8):
    mfma(OA + 4 * t, VF + 4 * t, PF, None)
A("s_mov_b64 exec, %s" % sr(sMSK, 2))
A("v_mov_b32 v%d, v%d" % (vT + 3, W + 12))
for t in range(8):
    if t == 0: A("ds_write_b64 v%d, %s" % (vMLW, vr(vT + 2, 2)))
    A("ds_write_b128 v%d, %s offset:%d" % (vRBW, vr(OA + 4 * t, 4), 64 * t))

A("s_mov_b64 exec, -1")
A("s_waitcnt lgkmcnt(0)")
A("s_barrier")
A("ds_read_b128 %s, v%d" % (vr(W, 4), vMLR))
A("ds_read_b128 %s, v%d offset:16" % (vr(W + 4, 4), vMLR))
for w in range(4):
    A("ds_read_b64 %s, v%d offset:%d" % (vr(W + 8 + 2 * w, 2), vRBR, 2112 * w))
A("s_waitcnt lgkmcnt(4)")
A("v_max3_f32 v%d, v%d, v%d, v%d" % (vT, W, W + 2, W + 4))
A("v_max_f32 v%d, v%d, v%d" % (vT, vT, W + 6))
for w in range(4): A("v_sub_f32 v%d, v%d, v%d" % (W + 2 * w, W + 2 * w, vT))
for w in range(4): A("v_exp_f32 v%d, v%d" % (W + 2 * w, W + 2 * w))
A("s_nop 0")
A("v_mul_f32 v%d, v%d, v%d" % (vT + 1, W, W + 1))
for w in range(1, 4): A("v_fmac_f32 v%d, v%d, v%d" % (vT + 1, W + 2 * w, W + 2 * w + 1))
A("s_waitcnt lgkmcnt(0)")
A("v_pk_mul_f32 %s, %s, %s op_sel_hi:[1,0]" % (vr(W + 8, 2), vr(W + 8, 2), vr(W, 2)))
A("v_rcp_f32 v%d, v%d" % (vT + 2, vT + 1))
for w in range(1, 4):
    A("v_pk_fma_f32 %s, %s, %s, %s op_sel_hi:[1,0,1]" % (vr(W + 8, 2), vr(W + 8 + 2 * w, 2), vr(W + 2 * w, 2), vr(W + 8, 2)))
A("v_log_f32 v%d, v%d" % (vT + 5, vT + 1))
A("v_pk_mul_f32 %s, %s, %s op_sel_hi:[1,0]" % (vr(W + 8, 2), vr(W + 8, 2), vr(vT + 2, 2)))
A("v_add_f32 v%d, v%d, v%d" % (vT + 3, vT + 5, vT))
A("v_cvt_pk_bf16_f32 v%d, v%d, v%d" % (W + 8, W + 8, W + 9))
A("v_mov_b32 v%d, 0" % (vT + 4))
store_local("buffer_store_dword", "v%d" % (W + 8), vOST, sOS)
A("s_mov_b64 exec, 1")
store_local("buffer_store_dword", "v%d" % (vT + 3), vT + 4, sLS)
A("s_mov_b64 exec, -1")
STAMP(5)

L = ool_first
LB("Lk_first")
C("issue the wo tile DMA, wait for K, read K fragments")
A("s_lshl_b32 s%d, s%d, 19" % (sT0, sJ))
A("s_lshl_b32 s%d, s%d, 17" % (sT1, sA))
A("s_add_u32 s%d, s%d, s%d" % (sT0, sT0, sT1))
A("s_lshl_b32 s%d, s%d, 15" % (sT1, sW))
A("s_add_u32 s%d, s%d, s%d" % (sT0, sT0, sT1))
A("s_lshl_b32 s%d, s%d, 7" % (sT1, sC))
A("s_add_u32 s%d, s%d, s%d" % (sT0, sT0, sT1))
A("s_lshl_b32 s%d, s%d, 12" % (sT2, sW))
A("s_add_u32 s%d, s%d, %d" % (sT2, sT2, L_WO))
for i in range(4):
    A("s_mov_b32 m0, s%d" % sT2)
    A("s_add_u32 s%d, s%d, 1024" % (sT2, sT2))
    A("buffer_load_dwordx4 v%d, %s, s%d offen nt lds" % (22 + (i & 1), sr(sWO, 4), sT0))
    A("s_add_u32 s%d, s%d, 0x2000" % (sT0, sT0))
A("v_lshrrev_b32 v16, 4, v%d" % vLANE)
A("v_and_b32 v17, 15, v%d" % vLANE)
A("v_xor_b32 v16, v16, v17")
A("v_lshlrev_b32 v16, 4, v16")
A("v_lshl_add_u32 v16, v17, 8, v16")
A("s_lshl_b32 s%d, s%d, 13" % (sT1, sW))
A("s_add_u32 s%d, s%d, %d" % (sT1, sT1, L_K))
for t in range(4):
    A("v_xor_b32 v%d, %d, v16" % (18 + t, 64 * t))
for t in range(4):
    A("v_add_u32 v%d, s%d, v%d" % (18 + t, sT1, 18 + t))
lds_spin(4, 4, vT + 8)
for t in range(4):
    for T in range(2):
        A("ds_read_b128 %s, v%d offset:%d" % (vr(KF + 16 * T + 4 * t, 4), 18 + t, 4096 * T))
A("s_waitcnt lgkmcnt(0)")
A("s_branch Lk_go")

LB("Lv_first")
A("v_lshrrev_b32 v20, 2, v%d" % vLANE)
A("v_and_b32 v21, 7, v20")
A("v_lshlrev_b32 v21, 1, v21")
A("v_bfe_u32 v24, v%d, 1, 1" % vLANE)
A("v_xor_b32 v21, v21, v24")
A("v_lshlrev_b32 v21, 4, v21")
A("v_lshl_add_u32 v21, v20, 8, v21")
A("v_and_b32 v24, 1, v%d" % vLANE)
A("v_lshl_add_u32 v21, v24, 3, v21")
A("s_lshl_b32 s%d, s%d, 13" % (sT1, sW))
A("s_add_u32 s%d, s%d, %d" % (sT1, sT1, L_V))
for t in range(8):
    A("v_xor_b32 v%d, %d, v21" % (W + 16 + t, 32 * t))
for t in range(8):
    A("v_add_u32 v%d, s%d, v%d" % (W + 16 + t, sT1, W + 16 + t))
A("s_barrier")
STAMP(6)
for t in range(8):
    for hf in range(2):
        A("ds_read_b64_tr_b16 %s, v%d offset:%d" % (vr(VF + 4 * t + 2 * hf, 2), W + 16 + t, 4096 * hf))
A("s_waitcnt lgkmcnt(0)")
A("s_branch Lv_go")
L = Lsave

C("wo phase: wave = batch, rows = key splits")
OF = W
LS = W + 16
DA = W + 24
A("s_mov_b32 s%d, 0x00ff00ff" % sT4)
A("s_mov_b32 s%d, 0x00ff00ff" % sT5)
A("v_xor_b32 v%d, 16, v%d" % (vT + 6, vLSE))
def io():
    A("buffer_load_dwordx4 %s, v%d, %s, s%d offen sc1" % (vr(LS, 4), vLSE, sr(sWS, 4), sLL))
    A("buffer_load_dwordx4 %s, v%d, %s, s%d offen sc1" % (vr(LS + 4, 4), vT + 6, sr(sWS, 4), sLL))
    for t in range(4):
        A("buffer_load_dwordx4 %s, v%d, %s, s%d offen offset:%d sc1" % (vr(OF + 4 * t, 4), vOLD, sr(sWS, 4), sOL, 512 * t))
def pre_o():
    A("s_cmp_eq_u32 s%d, 0" % sLAY)
    A("s_cbranch_scc1 Lo_first")
    LB("Lo_go")
poll(io, list(range(LS, LS + 8)) + list(range(OF, OF + 16)), vT, pre_o)
STAMP(7)
for t in range(4):
    for ct in range(4):
        mfma(DA + 4 * ct, OF + 4 * t, WOF + 16 * ct + 4 * t, None if t == 0 else DA + 4 * ct)
    if t == 0:
        A("v_max3_f32 v%d, v%d, v%d, v%d" % (vT, LS, LS + 1, LS + 2))
        A("v_max3_f32 v%d, v%d, v%d, v%d" % (vT + 1, LS + 3, LS + 4, LS + 5))
        A("v_max3_f32 v%d, v%d, v%d, v%d" % (vT, vT, LS + 6, LS + 7))
        A("v_max_f32 v%d, v%d, v%d" % (vT, vT, vT + 1))
    if t == 1:
        for i in range(4): A("v_sub_f32 v%d, v%d, v%d" % (LS + i, LS + i, vT))
        for i in range(4): A("v_exp_f32 v%d, v%d" % (LS + i, LS + i))
    if t == 2:
        A("v_add_f32 v%d, v%d, v%d" % (vT, LS, LS + 1))
        A("v_add_f32 v%d, v%d, v%d" % (vT + 1, LS + 2, LS + 3))
        A("v_add_f32 v%d, v%d, v%d" % (vT, vT, vT + 1))
        A("v_mov_b32 v%d, v%d" % (vT + 1, vT))
A("v_permlane16_swap_b32 v%d, v%d" % (vT, vT + 1))
A("s_nop 0")
A("v_add_f32 v%d, v%d, v%d" % (vT, vT, vT + 1))
A("v_rcp_f32 v%d, v%d" % (vT, vT))
NOP(2)
for ct in range(4):
    A("v_mul_f32 v%d, v%d, v%d" % (DA + 4 * ct, DA + 4 * ct, LS))
for i in range(1, 4):
    for ct in range(4):
        A("v_fmac_f32 v%d, v%d, v%d" % (DA + 4 * ct, DA + 4 * ct + i, LS + i))
A("s_nop 0")
A("v_permlane16_swap_b32 v%d, v%d" % (DA, DA + 4))
A("v_permlane16_swap_b32 v%d, v%d" % (DA + 8, DA + 12))
A("s_nop 0")
A("v_add_f32 v%d, v%d, v%d" % (DA, DA, DA + 4))
A("v_add_f32 v%d, v%d, v%d" % (DA + 8, DA + 8, DA + 12))
A("s_nop 1")
A("v_permlane32_swap_b32 v%d, v%d" % (DA, DA + 8))
A("s_nop 0")
A("v_mul_f32 v%d, v%d, v%d" % (DA, DA, vT))
A("s_mov_b32 s%d, 0x55555555" % sT4)
A("s_mov_b32 s%d, 0x55555555" % sT5)
A("v_mov_b32_dpp v%d, v%d quad_perm:[1,0,3,2] row_mask:0xf bank_mask:0xf" % (DA + 1, DA))
A("s_nop 0")
A("v_cvt_pk_bf16_f32 v%d, v%d, v%d" % (DA, DA, DA + 1))
A("s_mov_b64 exec, %s" % sr(sT4, 2))
A("buffer_store_dword v%d, v%d, %s, s%d offen sc1" % (DA, vPST, sr(sWS, 4), sPS))
A("s_mov_b64 exec, -1")
STAMP(8)
A("s_cmp_lg_u32 s%d, 0" % sLAY)
A("s_cbranch_scc1 Lfinal")

L = ool_first
LB("Lo_first")
C("wo tile landed -> fragments; every workgroup has cleared its mailboxes")
A("s_mov_b32 s%d, 1" % sLAY) if False else None
A("s_cmp_lg_u32 s%d, %s" % (sCNT, hx(SPIN)))
A("s_cbranch_scc1 Lo_go")
A("s_waitcnt vmcnt(8)")
A("s_barrier")
for ct in range(4):
    A("v_xor_b32 v%d, %d, v28" % (W + 40 + ct, 32 * ct))
for ct in range(4):
    A("v_add_u32 v%d, %d, v%d" % (W + 40 + ct, L_WO, W + 40 + ct))
k = 0
for ct in range(4):
    for t in range(4):
        for hf in range(2):
            A("ds_read_b64_tr_b16 %s, v%d offset:%d" % (vr(WOF + 16 * ct + 4 * t + 2 * hf, 2), W + 40 + ct, 4096 * t + 512 * hf))
A("s_mov_b32 s%d, %s" % (sT5, hx(SPIN)))
LB("Lap")
A("buffer_load_dwordx2 v[24:25], v27, %s, 0 offen sc1" % sr(sDBG, 4))
A("s_waitcnt vmcnt(0)")
A("v_add_u32 v24, v24, v25")
A("s_mov_b32 s%d, 0x01010101" % sT0)
A("v_mul_lo_u32 v24, v24, s%d" % sT0)
A("v_lshrrev_b32 v24, 24, v24")
A("v_cmp_ne_u32 vcc, 32, v24")
A("s_cbranch_vccz Lad")
A("s_sub_u32 s%d, s%d, 1" % (sT5, sT5))
A("s_cbranch_scc0 Lap")
LB("Lad")
A("s_waitcnt lgkmcnt(0)")
A("s_branch Lo_go")
L = Lsave

def psum(dst, src0, soff):
    for i in range(4):
        mfma(dst, SEL, src0 + 4 * i, None if i == 0 else dst)

A("s_cmp_lg_u32 s%d, 0" % sW)
A("s_cbranch_scc1 Ltab")
C("stage 1 (wave 0): reduce 32 head partials of 64 outputs, add residual, publish x1 slice")
A("s_lshl_b32 s%d, s%d, 15" % (sT0, sA))
A("s_lshl_b32 s%d, s%d, 12" % (sT1, sC))
A("s_add_u32 s%d, s%d, s%d" % (sT1, sT0, sT1))
A("s_add_u32 s%d, s%d, %s" % (sT1, sT1, hx(PB)))
A("s_lshl_b32 s%d, s%d, 10" % (sT2, sA))
A("s_lshl_b32 s%d, s%d, 7" % (sT3, sC))
A("s_add_u32 s%d, s%d, s%d" % (sT2, sT2, sT3))
A("s_add_u32 s%d, s%d, s%d" % (sT2, sT2, sGR))
A("s_add_u32 s%d, s%d, %d" % (sT2, sT2, X1_OFF))
A("s_waitcnt vmcnt(0)")
def ip():
    for i in range(4):
        A("buffer_load_dwordx4 %s, v%d, %s, s%d offen offset:%d sc1" % (vr(W + 4 * i, 4), vL16, sr(sWS, 4), sT1, 1024 * i))
poll(ip, range(W, W + 16), vT)
STAMP(9)
psum(W + 16, W, None)
A("s_mov_b32 s%d, 0x00ff00ff" % sT4)
A("s_mov_b32 s%d, 0" % sT5)
NOP(6)
for i in range(4):
    A("v_add_f32_dpp v%d, v%d, v%d row_ror:8 row_mask:0xf bank_mask:0xf" % (W + 16 + i, W + 16 + i, W + 16 + i))
A("v_pk_add_f32 %s, %s, %s" % (vr(W + 16, 2), vr(W + 16, 2), vr(RES, 2)))
A("v_pk_add_f32 %s, %s, %s" % (vr(W + 18, 2), vr(W + 18, 2), vr(RES + 2, 2)))
A("v_cvt_pk_bf16_f32 v%d, v%d, v%d" % (W + 16, W + 16, W + 17))
A("v_cvt_pk_bf16_f32 v%d, v%d, v%d" % (W + 17, W + 18, W + 19))
A("s_mov_b64 exec, %s" % sr(sT4, 2))
store_local("buffer_store_dwordx2", vr(W + 16, 2), vX1S, sT2)
A("s_mov_b64 exec, -1")
LB("Ltabdone")
A("s_barrier")
A("s_lshl_b32 s%d, s%d, 10" % (sT1, sW))
A("s_add_u32 s%d, s%d, s%d" % (sT1, sT1, sGR))
A("s_add_u32 s%d, s%d, %d" % (sT1, sT1, X1_OFF))
def ix():
    A("buffer_load_dwordx4 %s, v%d, %s, s%d offen sc1" % (vr(XR, 4), vL16, sr(sWS, 4), sT1))
poll(ix, range(XR, XR + 4), vT)
STAMP(10)

L = ool_first
LB("Ltab")
C("waves 1..3: gather the g(h) table into LDS")
NTL = NENT * 4 // 3 // 1024
A("s_sub_u32 s%d, s%d, 1" % (sT1, sW))
A("s_mul_i32 s%d, s%d, %d" % (sT1, sT1, NTL * 1024))
A("v_add_u32 v%d, s%d, v%d" % (vT + 4, sT1, vL16))
A("s_add_u32 s%d, s%d, %s" % (sT1, sT1, hx(TB)))
A("s_add_u32 s%d, s%d, 4096" % (sT2, sT1))
def it():
    for i in range(NTL):
        A("buffer_load_dwordx4 %s, v%d, %s, s%d offen offset:%d sc1" % (vr(W + 4 * i, 4), vL16, sr(sWS, 4), sT1 if i < 4 else sT2, 1024 * (i & 3)))
poll(it, range(W, W + 4 * NTL), vT)
for i in range(NTL):
    A("ds_write_b128 v%d, %s offset:%d" % (vT + 4, vr(W + 4 * i, 4), L_TAB + 1024 * i))
A("s_waitcnt lgkmcnt(0)")
A("s_branch Ltabdone")
L = Lsave

LB("Lmix")
C("x <- x + g(LN(LN(x))) ; g tabulated for every bf16 input (direct evaluation outside the table)")
X = W; HB = W + 8; RT = W + 12; AD = W + 16; Y = W + 24
row_stats(XR, vT, X)
A("v_add_f32 v%d, %s, v%d" % (vT + 2, EPS, vT + 1))
A("v_rsq_f32 v%d, v%d" % (vT + 2, vT + 2))
A("s_nop 0")
A("v_mul_f32 v%d, v%d, v%d" % (vT + 1, vT + 1, vT + 2))
A("v_fmaak_f32 v%d, v%d, v%d, %s" % (vT + 1, vT + 1, vT + 2, EPS))
A("v_rsq_f32 v%d, v%d" % (vT + 1, vT + 1))
A("s_nop 0")
A("v_mul_f32 v%d, v%d, v%d" % (vT + 2, vT + 2, vT + 1))
A("v_mul_f32 v%d, v%d, v%d" % (vT + 3, vT, vT + 2))
for i in range(4):
    A("v_pk_fma_f32 %s, %s, %s, %s op_sel:[0,0,1] op_sel_hi:[1,0,1] neg_lo:[0,0,1] neg_hi:[0,0,1]" % (vr(AD + 2 * i, 2), vr(X + 2 * i, 2), vr(vT + 2, 2), vr(vT + 2, 2)))
for i in range(4):
    A("v_cvt_pk_bf16_f32 v%d, v%d, v%d" % (HB + i, AD + 2 * i, AD + 2 * i + 1))
A("v_mov_b32 v%d, %s" % (vT + 4, hx(LO2 | (LO2 << 16))))
for i in range(4):
    A("v_pk_lshlrev_b16 v%d, 1, v%d op_sel_hi:[0,1]" % (RT + i, HB + i))
    A("v_pk_lshrrev_b16 v%d, 15, v%d op_sel_hi:[0,1]" % (AD + i, HB + i))
for i in range(4):
    A("v_or_b32 v%d, v%d, v%d" % (RT + i, RT + i, AD + i))
for i in range(4):
    A("v_pk_sub_u16 v%d, v%d, v%d" % (RT + i, RT + i, vT + 4))
for i in range(4):
    A("v_lshlrev_b32_sdwa v%d, 2, v%d dst_sel:DWORD dst_unused:UNUSED_PAD src0_sel:DWORD src1_sel:WORD_0" % (AD + 2 * i, RT + i))
    A("v_lshlrev_b32_sdwa v%d, 2, v%d dst_sel:DWORD dst_unused:UNUSED_PAD src0_sel:DWORD src1_sel:WORD_1" % (AD + 2 * i + 1, RT + i))
for i in range(8):
    A("ds_read_b32 v%d, v%d offset:%d" % (Y + i, AD + i, L_TAB))
A("v_max3_u32 v%d, v%d, v%d, v%d" % (vT, AD, AD + 1, AD + 2))
A("v_max3_u32 v%d, v%d, v%d, v%d" % (vT + 1, AD + 3, AD + 4, AD + 5))
A("v_max3_u32 v%d, v%d, v%d, v%d" % (vT, vT, AD + 6, AD + 7))
A("v_max_u32 v%d, v%d, v%d" % (vT, vT, vT + 1))
A("v_cmp_le_u32 vcc, %d, v%d" % (NENT * 4, vT))
A("s_waitcnt lgkmcnt(0)")
A("s_cbranch_vccnz Lslow")
LB("Lslowdone")
for i in range(4):
    A("v_pk_add_f32 %s, %s, %s" % (vr(X + 2 * i, 2), vr(X + 2 * i, 2), vr(Y + 2 * i, 2)))
for i in range(4):
    A("v_cvt_pk_bf16_f32 v%d, v%d, v%d" % (XR + i, X + 2 * i, X + 2 * i + 1))
STAMP(11)
A("s_cmp_lg_u32 s%d, 0" % sLAY)
A("s_cbranch_scc1 Lout")
A("ds_write_b128 v%d, %s offset:%d" % (vXNW, vr(XR, 4), L_X2 - L_XN))
A("s_mov_b32 s%d, 1" % sLAY)
for s, d in [(sQL, Q_OFF[1] - Q_OFF[0]), (sQS, Q_OFF[1] - Q_OFF[0]), (sOL, O_OFF[1] - O_OFF[0]), (sOS, O_OFF[1] - O_OFF[0]), (sLL, LSE_OFF[1] - LSE_OFF[0]), (sLS, LSE_OFF[1] - LSE_OFF[0]), (sPS, P_L)]:
    A("s_add_u32 s%d, s%d, %d" % (s, s, d))
if DIAG:
    A("v_mov_b32 v%d, v30" % (RES + 0 if False else 28))
A("s_branch Llnq")

LB("Lfinal")
A("s_cmp_ge_u32 s2, 4")
A("s_cbranch_scc1 Lfin_exit")
C("workgroup b: reduce the 32 head partials of row b, add x2, mixer, store")
A("s_lshl_b32 s%d, s2, 15" % sT0)
A("s_lshl_b32 s%d, s%d, 13" % (sT1, sW))
A("s_add_u32 s%d, s%d, s%d" % (sT1, sT0, sT1))
A("s_add_u32 s%d, s%d, %s" % (sT1, sT1, hx(PB + P_L)))
A("s_add_u32 s%d, s%d, 4096" % (sT2, sT1))
A("s_mul_i32 s%d, s2, %d" % (sT0, XS))
A("s_lshl_b32 s%d, s%d, 8" % (sT3, sW))
A("s_add_u32 s%d, s%d, s%d" % (sT0, sT0, sT3))
A("s_add_u32 s%d, s%d, %d" % (sT0, sT0, L_X2))
A("v_add_u32 v%d, s%d, v%d" % (vT + 4, sT0, vX1S))
A("s_add_u32 s%d, s%d, %d" % (sT3, sT3, L_XN))
A("v_add_u32 v%d, s%d, v%d" % (vT + 5, sT3, vX1S))
A("ds_read_b64 %s, v%d" % (vr(W + 40, 2), vT + 4))
A("ds_read_b64 %s, v%d offset:128" % (vr(W + 42, 2), vT + 4))
A("s_waitcnt vmcnt(0) lgkmcnt(0)")
for i in range(4):
    A("v_lshlrev_b32 v%d, 16, v%d" % (W + 44 + 2 * i, W + 40 + i))
    A("v_and_b32 v%d, 0xffff0000, v%d" % (W + 45 + 2 * i, W + 40 + i))
def ifin():
    for i in range(8):
        A("buffer_load_dwordx4 %s, v%d, %s, s%d offen offset:%d sc1" % (vr(W + 4 * i, 4), vL16, sr(sWS, 4), sT1 if i < 4 else sT2, 1024 * (i & 3)))
poll(ifin, range(W, W + 32), vT)
STAMP(9)
for i in range(4):
    mfma(W + 32, SEL, W + 4 * i, None if i == 0 else W + 32)
    mfma(W + 36, SEL, W + 16 + 4 * i, None if i == 0 else W + 36)
A("s_mov_b32 s%d, 0x00ff00ff" % sT4)
A("s_mov_b32 s%d, 0" % sT5)
NOP(6)
for i in range(8):
    A("v_add_f32_dpp v%d, v%d, v%d row_ror:8 row_mask:0xf bank_mask:0xf" % (W + 32 + i, W + 32 + i, W + 32 + i))
for i in range(4):
    A("v_pk_add_f32 %s, %s, %s" % (vr(W + 32 + 2 * i, 2), vr(W + 32 + 2 * i, 2), vr(W + 44 + 2 * i, 2)))
for i in range(4):
    A("v_cvt_pk_bf16_f32 v%d, v%d, v%d" % (W + 32 + i, W + 32 + 2 * i, W + 33 + 2 * i))
A("s_mov_b64 exec, %s" % sr(sT4, 2))
A("ds_write_b64 v%d, %s" % (vT + 5, vr(W + 32, 2)))
A("ds_write_b64 v%d, %s offset:128" % (vT + 5, vr(W + 34, 2)))
A("s_mov_b64 exec, -1")
A("s_waitcnt lgkmcnt(0)")
A("s_barrier")
A("s_cmp_lg_u32 s%d, 0" % sW)
A("s_cbranch_scc1 Lfin_exit")
A("ds_read_b128 %s, v%d" % (vr(XR, 4), vXNW))
A("s_waitcnt lgkmcnt(0)")
STAMP(10)
A("s_branch Lmix")
LB("Lout")
A("s_lshl_b32 s%d, s2, 10" % sT0)
A("buffer_store_dwordx4 %s, v%d, %s, s%d offen" % (vr(XR, 4), vL16, sr(sOUT, 4), sT0))
LB("Lfin_exit")
if DIAG:
    A("s_waitcnt vmcnt(0)")
    STAMP(12)
    A("s_lshl_b32 s%d, s2, 3" % sT0)
    A("s_add_u32 s%d, s%d, s%d" % (sT0, sT0, sW))
    A("s_lshl_b32 s%d, s%d, 7" % (sT0, sT0))
    A("s_add_u32 s%d, s%d, %s" % (sT0, sT0, hx(STB)))
    A("v_lshlrev_b32 v16, 2, v%d" % vLANE)
    A("s_mov_b64 exec, 0xffff")
    A("buffer_store_dword v28, v16, %s, s%d offen" % (sr(sWS, 4), sT0))
    A("buffer_store_dword v30, v16, %s, s%d offen offset:64" % (sr(sWS, 4), sT0))
LB("Lend")
A("s_endpgm")

L += ool_first

K0 = -2.0 * math.sqrt(2.0 / math.pi) * math.log2(math.e)
K1 = K0 * 0.044715
CR = W + 32
LB("Lslow")
C("rare: some h lies outside the table -> evaluate g(h) directly for those lanes")
RW1 = [W + 32 + i for i in range(14)]
RB1 = [W + 46 + i for i in range(14)]
RW2 = [W + 60, W + 61, W + 62, W + 63] + [16, 17, 18, 19, 20, 21, 22, 23] + [24, 25]
def coef_loads(dst4, dst2, s):
    for k in range(3):
        A("buffer_load_dwordx4 %s, v%d, %s, 0 offen offset:%d" % (vr(dst4[k], 4), vL16, sr(s, 4), 1024 * k))
    A("buffer_load_dwordx2 %s, v%d, %s, 0 offen offset:3072" % (vr(dst2, 2), vL8, sr(s, 4)))
vL8 = 26
A("v_lshlrev_b32 v%d, 3, v%d" % (vL8, vLANE))
A("s_load_dword s%d, %s, 0" % (sB2, sr(sB2P, 2)))
coef_loads([W + 32, W + 36, W + 40], W + 44, sW1)
coef_loads([W + 46, W + 50, W + 54], W + 58, sB1)
coef_loads([W + 60, 16, 20], 24, sW2)
A("s_waitcnt vmcnt(0) lgkmcnt(0)")
A("s_lshl_b32 s%d, s%d, 16" % (sB2, sB2))
for e in range(8):
    A("v_cmp_le_u32 %s, s%d, v%d" % (sr(sMSK + 0, 2) if False else "vcc", 0, 0)) if False else None
    A("v_cmp_le_u32 vcc, %d, v%d" % (NENT * 4, AD + e))
    A("s_mov_b64 %s, vcc" % sr(sH2, 2))
    LB("Lse%d" % e)
    A("s_cmp_eq_u64 %s, 0" % sr(sH2, 2))
    A("s_cbranch_scc1 Lsf%d" % e)
    A("s_ff1_i32_b64 s%d, %s" % (sT0, sr(sH2, 2)))
    A("s_bitset0_b64 %s, s%d" % (sr(sH2, 2), sT0))
    A("s_mov_b32 m0, s%d" % sT0)
    A("v_readlane_b32 s%d, v%d, s%d" % (sH, HB + (e >> 1), sT0))
    if e & 1: A("s_and_b32 s%d, s%d, 0xffff0000" % (sH, sH))
    else: A("s_lshl_b32 s%d, s%d, 16" % (sH, sH))
    A("s_call_b64 %s, Lgev" % sr(sRET, 2))
    A("v_writelane_b32 v%d, s%d, m0" % (Y + e, sY))
    A("s_branch Lse%d" % e)
    LB("Lsf%d" % e)
A("s_nop 1")
A("s_branch Lslowdone")
LB("Lgev")
a, u, t1, t2, z = RES, RES + 1, RES + 2, RES + 3, RT
A("v_mov_b32 v%d, 0" % a)
A("v_mov_b32 v%d, %s" % (RT + 1, hx(f2u(K0))))
A("v_mov_b32 v%d, %s" % (RT + 2, hx(f2u(K1))))
for p in range(14):
    for hf in range(2):
        def un(d, s):
            if hf == 0: A("v_lshlrev_b32 v%d, 16, v%d" % (d, s))
            else: A("v_and_b32 v%d, 0xffff0000, v%d" % (d, s))
        un(u, RW1[p]); un(t1, RB1[p]); un(z, RW2[p])
        A("v_fma_f32 v%d, v%d, s%d, v%d" % (u, u, sH, t1))
        A("v_mul_f32 v%d, v%d, v%d" % (t1, u, u))
        A("v_fma_f32 v%d, v%d, v%d, v%d" % (t1, t1, RT + 2, RT + 1))
        A("v_mul_f32 v%d, v%d, v%d" % (t1, t1, u))
        A("v_exp_f32 v%d, v%d" % (t1, t1))
        A("v_mul_f32 v%d, v%d, v%d" % (z, z, u))
        A("v_add_f32 v%d, 1.0, v%d" % (t1, t1))
        A("v_rcp_f32 v%d, v%d" % (t1, t1))
        A("s_nop 0")
        A("v_fmac_f32 v%d, v%d, v%d" % (a, z, t1))
A("v_mov_b32 v%d, v%d" % (u, a))
A("s_nop 1")
wave_sum2(a, u, sY, sT1)
A("s_nop 1")
A("v_mov_b32 v%d, s%d" % (a, sY))
A("v_cvt_pk_bf16_f32 v%d, v%d, v%d" % (a, a, a))
A("v_and_b32 v%d, 0xffff0000, v%d" % (a, a))
A("v_add_f32 v%d, s%d, v%d" % (a, sB2, a))
A("v_cvt_pk_bf16_f32 v%d, v%d, v%d" % (a, a, a))
A("v_and_b32 v%d, 0xffff0000, v%d" % (a, a))
A("s_nop 0")
A("v_readfirstlane_b32 s%d, v%d" % (sY, a))
A("s_nop 3")
A("s_setpc_b64 %s" % sr(sRET, 2))

LB("Lhelper")
C("---- helper waves: K/V streaming into LDS + table of g over bf16 inputs ----")
HW1, HB1, HW2 = 32, 60, 88
HR = 120
A("s_sub_u32 s%d, s%d, 4" % (sW, sW))
A("v_lshlrev_b32 v%d, 3, v%d" % (vL8, vLANE))
A("s_load_dword s%d, %s, 0" % (sB2, sr(sB2P, 2)))
coef_loads([HR, HR + 4, HR + 8], HR + 12, sW1)
coef_loads([HR + 14, HR + 18, HR + 22], HR + 26, sB1)
coef_loads([HR + 28, HR + 32, HR + 36], HR + 40, sW2)
A("v_lshrrev_b32 v16, 4, v%d" % vLANE)
A("v_and_b32 v17, 15, v%d" % vLANE)
A("v_xor_b32 v18, v17, v16")
A("v_lshlrev_b32 v18, 4, v18")
A("v_lshl_add_u32 v20, v16, 8, v18")
for i in range(1, 4): A("v_xor_b32 v%d, %d, v20" % (20 + i, 64 * i))
A("v_lshlrev_b32 v18, 1, v16")
A("v_xor_b32 v18, v17, v18")
A("v_lshlrev_b32 v18, 4, v18")
A("v_lshl_add_u32 v24, v16, 8, v18")
A("v_xor_b32 v25, 128, v24")
A("s_lshl_b32 s%d, s%d, 3" % (sT0, sA))
A("s_add_u32 s%d, s%d, s%d" % (sT0, sT0, sJ))
A("s_lshl_b32 s%d, s%d, 20" % (sT0, sT0))
A("s_lshl_b32 s%d, s%d, 15" % (sT1, sC))
A("s_add_u32 s%d, s%d, s%d" % (sT0, sT0, sT1))
A("s_lshl_b32 s%d, s%d, 13" % (sT1, sW))
A("s_add_u32 s%d, s%d, s%d" % (sT0, sT0, sT1))
A("s_add_u32 s%d, s%d, %d" % (sT0, sT0, 3072 * 256))
A("s_add_u32 s%d, s%d, %d" % (sT2, sT1, L_K))
A("s_mov_b32 s%d, s%d" % (sT3, sT0))
for i in range(8):
    A("s_mov_b32 m0, s%d" % sT2)
    A("s_add_u32 s%d, s%d, 1024" % (sT2, sT2))
    A("buffer_load_dwordx4 v%d, %s, s%d offen nt lds" % (20 + (i & 3), sr(sK, 4), sT0))
    A("s_add_u32 s%d, s%d, 1024" % (sT0, sT0))
A("s_add_u32 s%d, s%d, %d" % (sT2, sT1, L_V))
for i in range(8):
    A("s_mov_b32 m0, s%d" % sT2)
    A("s_add_u32 s%d, s%d, 1024" % (sT2, sT2))
    A("buffer_load_dwordx4 v%d, %s, s%d offen nt lds" % (24 + (i & 1), sr(sV, 4), sT3))
    A("s_add_u32 s%d, s%d, 1024" % (sT3, sT3))
STAMP(1)
hK0, hK1, hONE, hRES = 2, 4, 6, 8
for r, c in [(hK0, K0), (hK1, K1), (hONE, 1.0)]:
    A("v_mov_b32 v%d, %s" % (r, hx(f2u(c)))); A("v_mov_b32 v%d, %s" % (r + 1, hx(f2u(c))))
A("v_mov_b32 v%d, 0" % hRES)
A("s_mul_i32 s%d, s2, %d" % (sT4, 4 * EPW))
A("s_mul_i32 s%d, s%d, %d" % (sT5, sW, EPW))
A("s_add_u32 s%d, s%d, s%d" % (sT4, sT4, sT5))
A("s_lshl_b32 s%d, s%d, 3" % (sT5, sT4))
A("s_add_u32 s%d, s%d, %s" % (sT5, sT5, hx(TB)))
A("s_add_u32 s%d, s%d, %d" % (sT4, sT4, ELO * 128))
A("s_lshl_b32 s%d, s%d, 16" % (sT4, sT4))
A("s_mov_b32 s%d, 0" % sLAY)
A("s_waitcnt vmcnt(16) lgkmcnt(0)")
A("s_lshl_b32 s%d, s%d, 16" % (sB2, sB2))
for a_, d in [(0, HW1), (14, HB1), (28, HW2)]:
    for p in range(14):
        A("v_lshlrev_b32 v%d, 16, v%d" % (d + 2 * p, HR + a_ + p))
        A("v_and_b32 v%d, 0xffff0000, v%d" % (d + 2 * p + 1, HR + a_ + p))
STAMP(2)
LB("Lhl")
A("s_mov_b32 s%d, s%d" % (sH, sT4)); A("s_mov_b32 s%d, s%d" % (sH + 1, sT4))
A("s_xor_b32 s%d, s%d, 0x80000000" % (sH2, sT4)); A("s_mov_b32 s%d, s%d" % (sH2 + 1, sH2))
AC = [10, 12]
U = [120, 122]; T_ = [124, 126]; Z = [128, 130]
for p in range(14):
    for sg in range(2):
        A("v_pk_fma_f32 %s, %s, %s, %s" % (vr(U[sg], 2), vr(HW1 + 2 * p, 2), sr([sH, sH2][sg], 2), vr(HB1 + 2 * p, 2)))
    for sg in range(2): A("v_pk_mul_f32 %s, %s, %s" % (vr(T_[sg], 2), vr(U[sg], 2), vr(U[sg], 2)))
    for sg in range(2): A("v_pk_fma_f32 %s, %s, %s, %s" % (vr(T_[sg], 2), vr(T_[sg], 2), vr(hK1, 2), vr(hK0, 2)))
    for sg in range(2): A("v_pk_mul_f32 %s, %s, %s" % (vr(T_[sg], 2), vr(T_[sg], 2), vr(U[sg], 2)))
    for sg in range(2):
        for h in range(2): A("v_exp_f32 v%d, v%d" % (T_[sg] + h, T_[sg] + h))
    for sg in range(2): A("v_pk_mul_f32 %s, %s, %s" % (vr(Z[sg], 2), vr(U[sg], 2), vr(HW2 + 2 * p, 2)))
    for sg in range(2): A("v_pk_add_f32 %s, %s, %s" % (vr(T_[sg], 2), vr(T_[sg], 2), vr(hONE, 2)))
    for sg in range(2):
        for h in range(2): A("v_rcp_f32 v%d, v%d" % (T_[sg] + h, T_[sg] + h))
    A("s_nop 0") if False else None
    for sg in range(2):
        if p == 0: A("v_pk_mul_f32 %s, %s, %s" % (vr(AC[sg], 2), vr(Z[sg], 2), vr(T_[sg], 2)))
        else: A("v_pk_fma_f32 %s, %s, %s, %s" % (vr(AC[sg], 2), vr(Z[sg], 2), vr(T_[sg], 2), vr(AC[sg], 2)))
A("v_add_f32 v10, v10, v11")
A("v_add_f32 v12, v12, v13")
A("s_nop 1")
wave_sum2(10, 12, sSUM, sSQ)
A("s_lshl_b32 m0, s%d, 1" % sLAY)
A("s_nop 1")
A("v_writelane_b32 v%d, s%d, m0" % (hRES, sSUM))
A("s_add_u32 m0, m0, 1")
A("s_add_u32 s%d, s%d, 0x10000" % (sT4, sT4))
A("v_writelane_b32 v%d, s%d, m0" % (hRES, sSQ))
A("s_add_u32 s%d, s%d, 1" % (sLAY, sLAY))
A("s_cmp_lg_u32 s%d, %d" % (sLAY, EPW - 1))
A("s_cbranch_scc1 Lhk")
STAMP(3)
A("s_waitcnt vmcnt(8)")
A("v_mov_b32 v14, 1")
A("s_mov_b64 exec, 1")
A("ds_add_u32 v%d, v14 offset:4" % vFL)
A("s_mov_b64 exec, -1")
STAMP(4)
LB("Lhk")
A("s_cmp_lg_u32 s%d, %d" % (sLAY, EPW))
A("s_cbranch_scc1 Lhl")
A("v_cvt_pk_bf16_f32 v%d, v%d, v%d" % (hRES, hRES, hRES))
A("v_and_b32 v%d, 0xffff0000, v%d" % (hRES, hRES))
A("v_add_f32 v%d, s%d, v%d" % (hRES, sB2, hRES))
A("v_cvt_pk_bf16_f32 v%d, v%d, v%d" % (hRES, hRES, hRES))
A("v_and_b32 v%d, 0xffff0000, v%d" % (hRES, hRES))
A("v_lshlrev_b32 v14, 2, v%d" % vLANE)
lds_spin(8, 1, vT)
A("s_mov_b64 exec, %s" % hex((1 << (2 * EPW)) - 1))
A("buffer_store_dword v%d, v14, %s, s%d offen sc1" % (hRES, sr(sWS, 4), sT5))
A("s_mov_b64 exec, -1")
STAMP(5)
A("s_waitcnt vmcnt(1)")
STAMP(6)
A("s_barrier")
if DIAG:
    A("s_add_u32 s%d, s%d, 4" % (sW, sW))
    A("v_mov_b32 v28, v30")
    A("s_branch Lfin_exit")
A("s_endpgm")

for b in ool: L += b
A("s_endpgm")
L.append(".fill 1024, 4, 0xBF800000")
L.append('''.section .rodata,"a"
.p2align 6
.amdhsa_kernel %s_kernel
  .amdhsa_next_free_vgpr 256
  .amdhsa_next_free_sgpr 102
  .amdhsa_accum_offset 256
  .amdhsa_group_segment_fixed_size 0
  .amdhsa_kernarg_size 104
  .amdhsa_user_sgpr_count 2
  .amdhsa_user_sgpr_kernarg_segment_ptr 1
  .amdhsa_system_sgpr_workgroup_id_x 1
.end_amdhsa_kernel''' % NAME)
open(OUTF, "w").write("\n".join(x for x in L if x is not None) + "\n")
print("wrote", OUTF, "lines", len(L), "LDS", LDS_SZ)
```

```python
import sys, struct, math

NAME = "interleave_layers__sliding_block_cached__mixer_token_mlp__decode"
OUTF = sys.argv[1] if len(sys.argv) > 1 else "cdna_kernels/%s.s" % NAME
DIAG = int(sys.argv[2]) if len(sys.argv) > 2 else 0
OPT = dict(a.split("=") for a in sys.argv[3:])
DEPTH = int(OPT.get("depth", 7))
D0 = int(OPT.get("d0", 2))
D1 = int(OPT.get("d1", 4))
QV = int(OPT.get("qv", 2))
PRET = int(OPT.get("pret", 1))
NOCT = int(OPT.get("noct", 24))
QPOS = int(OPT.get("qpos", 1))
QPOS2 = int(OPT.get("qpos2", 7))

def f2u(x): return struct.unpack("<I", struct.pack("<f", x))[0]
def hx(x): return "0x%08x" % (x & 0xffffffff)

L = []
def A(s): L.append("    " + s)
def LB(s): L.append(s + ":")
def C(s): L.append("    ; " + s)
def vr(a, n): return "v[%d:%d]" % (a, a + n - 1)
def sr(a, n): return "s[%d:%d]" % (a, a + n - 1)
def NOP(n):
    while n > 0:
        k = min(n, 16); A("s_nop %d" % (k - 1)); n -= k

ELO = 132 - NOCT if NOCT == 24 else 130 - NOCT
LO2 = (ELO << 7) * 2
NENT = NOCT * 256
EPW = NENT // 256 // 4 // 2
GRS = 0x20000
O_OFF = [0x0000, 0xC400]; LSE_OFF = [0x8000, 0x14400]; Q1_OFF = 0x8400; X1_OFF = 0x14600
CLRA_PER = 1040
CLRB_OFF = 0x8400; CLRB_PER = 1680
Q0_OFF = 0x18000
EPO = 0x17f00
PB = 0x100000; P_L = 0x20000
TB = 0x140000; FB = 0x148000
QB_DELTA = 0x180000
STB = 0x300000
WS_SZ = 0x400000
L_TAB = 0
L_WQ = 24576; L_K = L_WQ + 16384; L_V = L_K + 32768; L_WO = L_V + 32768
L_XN = L_WO + 16384; XS = 1056
L_X2 = L_XN + 4 * XS
L_FLG = L_X2 + 4 * XS
L_RB = L_K; RBS = 2048 + 64; L_ML = L_K + 4 * RBS
L_QF = L_X2
LDS_SZ = L_FLG + 64
SPIN = 0x40000
K0 = -2.0 * math.sqrt(2.0 / math.pi) * math.log2(math.e)
K1 = K0 * 0.044715
EPS = hx(f2u(1e-5))

sTG1, sTG2 = 0, 1
sW, sJ, sA, sC, sGR, sLAY, sFAST = 3, 4, 5, 6, 7, 8, 9
sT0, sT1, sT2, sT3, sT4, sT5 = 10, 11, 12, 13, 14, 15
sCNT = 16
sQL, sQS, sOL, sOS, sLL, sLS, sPS = 17, 18, 19, 20, 21, 22, 23
sSC, sIT = 24, 25
sSUM, sSQ = 26, 27
sH, sH2, sRET, sMSK = 28, 30, 32, 34
sB2, sY, sXCC, sE = 36, 37, 38, 39
sB2P = 40
sK, sV, sWQ, sWO, sWS, sX, sOUT, sW1, sB1, sW2 = 44, 48, 52, 56, 60, 64, 68, 72, 76, 80
sKO, sKL, sVO, sVL = 84, 85, 86, 87
sPM = 88
sHC, sHT = 84, 85

def STAMP(i):
    if DIAG:
        A("s_memrealtime s[42:43]"); A("s_waitcnt lgkmcnt(0)")
        A("v_writelane_b32 v30, s42, %d" % i)

vLANE = 1
vL16, vQST, vOST, vOLD, vPST, vX1S, vXNW, vXNR, vRBW, vRBR, vMLW, vMLR, vLSE, vZ = range(2, 16)
vT = 16
vWT, vFL = 28, 29
KF, VF, WQF, WOF, SEL, ONES = 32, 64, 96, 112, 176, 180
W = 184
PM = 232
XR = 248
RES = 252

def srd(s, nbytes):
    A("s_mov_b32 s%d, %s" % (s + 2, hx(nbytes))); A("s_mov_b32 s%d, 0x00020000" % (s + 3))

def soff(dst, terms, const):
    first = True
    for (src, sh) in terms:
        if first: A("s_lshl_b32 s%d, s%d, %d" % (dst, src, sh)); first = False
        else:
            A("s_lshl_b32 s%d, s%d, %d" % (sT0, src, sh)); A("s_add_u32 s%d, s%d, s%d" % (dst, dst, sT0))
    if const: A("s_add_u32 s%d, s%d, %s" % (dst, dst, hx(const)))

def wave_sum2(a, b, sa, sb):
    for ctl in ["row_ror:8", "row_ror:4", "row_ror:2", "row_ror:1"]:
        A("v_add_f32_dpp v%d, v%d, v%d %s row_mask:0xf bank_mask:0xf" % (a, a, a, ctl))
        A("v_add_f32_dpp v%d, v%d, v%d %s row_mask:0xf bank_mask:0xf" % (b, b, b, ctl))
        A("s_nop 0")
    for ctl in ["row_bcast:15 row_mask:0xa", "row_bcast:31 row_mask:0xc"]:
        A("v_add_f32_dpp v%d, v%d, v%d %s bank_mask:0xf" % (a, a, a, ctl))
        A("v_add_f32_dpp v%d, v%d, v%d %s bank_mask:0xf" % (b, b, b, ctl))
        A("s_nop 0")
    A("v_readlane_b32 s%d, v%d, 63" % (sa, a))
    A("v_readlane_b32 s%d, v%d, 63" % (sb, b))

def row_stats(x, t, unp):
    A("v_dot2_f32_bf16 v%d, v%d, v%d, 0" % (t, x, ONES))
    A("v_dot2_f32_bf16 v%d, v%d, v%d, 0" % (t + 1, x, x))
    for i in range(1, 4):
        A("v_dot2_f32_bf16 v%d, v%d, v%d, v%d" % (t, x + i, ONES, t))
        A("v_dot2_f32_bf16 v%d, v%d, v%d, v%d" % (t + 1, x + i, x + i, t + 1))
    un = []
    for i in range(4):
        un.append("v_lshlrev_b32 v%d, 16, v%d" % (unp + 2 * i, x + i))
        un.append("v_and_b32 v%d, 0xffff0000, v%d" % (unp + 2 * i + 1, x + i))
    for k in range(3): A(un.pop(0))
    a, b = t, t + 1
    for ctl in ["row_ror:8 row_mask:0xf", "row_ror:4 row_mask:0xf", "row_ror:2 row_mask:0xf", "row_ror:1 row_mask:0xf", "row_bcast:15 row_mask:0xa", "row_bcast:31 row_mask:0xc"]:
        A("v_add_f32_dpp v%d, v%d, v%d %s bank_mask:0xf" % (a, a, a, ctl))
        A("v_add_f32_dpp v%d, v%d, v%d %s bank_mask:0xf" % (b, b, b, ctl))
        A(un.pop(0) if un else "s_nop 0")
    A("v_readlane_b32 s%d, v%d, 63" % (sSUM, a))
    A("v_readlane_b32 s%d, v%d, 63" % (sSQ, b))
    A("s_nop 0")
    A("v_mul_f32 v%d, s%d, v%d" % (t, sSUM, vZ))
    A("v_mul_f32 v%d, s%d, v%d" % (t + 1, sSQ, vZ))
    A("v_fma_f32 v%d, -v%d, v%d, v%d" % (t + 1, t, t, t + 1))
    A("v_max_f32 v%d, 0, v%d" % (t + 1, t + 1))

ool = []
uid = [0]
def maxtree(regs, tmp):
    r = list(regs); out = []
    out.append("v_max3_u32 v%d, v%d, v%d, v%d" % (tmp, r[0], r[1], r[2])); r = r[3:]
    if len(r) >= 5:
        out.append("v_max3_u32 v%d, v%d, v%d, v%d" % (tmp + 1, r[0], r[1], r[2])); r = r[3:]
        d = 0
        while len(r) >= 2:
            out.append("v_max3_u32 v%d, v%d, v%d, v%d" % (tmp + d, tmp + d, r[0], r[1])); r = r[2:]; d ^= 1
        if r: out.append("v_max3_u32 v%d, v%d, v%d, v%d" % (tmp, tmp, tmp + 1, r[0]))
        else: out.append("v_max_u32 v%d, v%d, v%d" % (tmp, tmp, tmp + 1))
    else:
        while len(r) >= 2:
            out.append("v_max3_u32 v%d, v%d, v%d, v%d" % (tmp, tmp, r[0], r[1])); r = r[2:]
        if r: out.append("v_max_u32 v%d, v%d, v%d" % (tmp, tmp, r[0]))
    return out

def poll(issue, regs, tmp, pre_wait=None, spec=None):
    uid[0] += 1; u = uid[0]
    A("s_mov_b32 s%d, %s" % (sCNT, hx(SPIN)))
    LB("Lp%d" % u)
    issue()
    if pre_wait: pre_wait()
    A("s_waitcnt vmcnt(0)")
    mt = maxtree(regs, tmp) + ["v_cmp_eq_u32 vcc, -1, v%d" % tmp]
    spec = list(spec or [])
    ns = len(spec)
    per = -(-len(mt) // ns) if ns else 0
    for s in spec:
        A(s)
        for k in range(per):
            if mt: A(mt.pop(0))
    for m in mt: A(m)
    A("s_cbranch_vccnz Lr%d" % u)
    LB("Ld%d" % u)
    ool.append(["Lr%d:" % u, "    s_sub_u32 s%d, s%d, 1" % (sCNT, sCNT), "    s_cbranch_scc1 Ld%d" % u, "    s_nop 7", "    s_branch Lp%d" % u])

def lds_spin(off, target, tmp, mask=None, sleep=0):
    uid[0] += 1; u = uid[0]
    A("s_mov_b32 s%d, %s" % (sT2, hx(SPIN * 4)))
    LB("Ls%d" % u)
    A("ds_read_b32 v%d, v%d offset:%d" % (tmp, vFL, off))
    A("s_waitcnt lgkmcnt(0)")
    A("v_readfirstlane_b32 s%d, v%d" % (sT1, tmp))
    if mask: A("s_and_b32 s%d, s%d, %d" % (sT0, sT1, mask))
    A("s_cmp_ge_u32 s%d, %d" % (sT0 if mask else sT1, target))
    A("s_cbranch_scc1 Lt%d" % u)
    if sleep: A("s_sleep %d" % sleep)
    A("s_sub_u32 s%d, s%d, 1" % (sT2, sT2))
    A("s_cbranch_scc0 Ls%d" % u)
    LB("Lt%d" % u)

def lds_arrive(off, tmp, val=1):
    if val is not None: A("v_mov_b32 v%d, %d" % (tmp, val))
    A("s_mov_b64 exec, 1")
    A("ds_add_u32 v%d, v%d offset:%d" % (vFL, tmp, off))
    A("s_mov_b64 exec, -1")

def store_local(op, data, vaddr, so):
    uid[0] += 1; u = uid[0]
    A("s_cbranch_scc1 Lw%d" % u)
    A("%s %s, v%d, %s, s%d offen" % (op, data, vaddr, sr(sWS, 4), so))
    LB("Lx%d" % u)
    ool.append(["Lw%d:" % u, "    %s %s, v%d, %s, s%d offen sc1" % (op, data, vaddr, sr(sWS, 4), so), "    s_branch Lx%d" % u])
def fastcmp(): A("s_cmp_eq_u32 s%d, 0" % sFAST)

def mf(d, a, b, c):
    return "v_mfma_f32_16x16x32_bf16 %s, %s, %s, %s" % (vr(d, 4), vr(a, 4), vr(b, 4), "0" if c is None else vr(c, 4))
def mfma(d, a, b, c): A(mf(d, a, b, c))

def tags():
    A("s_add_u32 s%d, s%d, 1" % (sTG1, sE))
    A("s_mul_i32 s%d, s%d, 0x9E3779B1" % (sTG2, sTG1))
    A("s_and_b32 s%d, s%d, -8" % (sTG2, sTG2))

def common_addr():
    A("v_and_b32 v18, 3, v%d" % vLANE)
    A("v_lshlrev_b32 v%d, 12, v17" % vQST)
    A("v_lshrrev_b32 v24, 1, v16")
    A("v_lshl_add_u32 v%d, v24, 8, v%d" % (vQST, vQST))
    A("v_and_b32 v24, 1, v16")
    A("v_lshl_add_u32 v%d, v24, 3, v%d" % (vQST, vQST))
    A("v_lshlrev_b32 v%d, 4, v24" % vLSE)
    A("s_mul_i32 s%d, s%d, %d" % (sT0, sW, XS))
    A("s_add_u32 s%d, s%d, %d" % (sT0, sT0, L_XN))
    A("v_add_u32 v%d, s%d, v%d" % (vXNW, sT0, vL16))
    A("s_lshl_b32 s%d, s%d, 8" % (sT0, sA))
    A("s_add_u32 s%d, s%d, %d" % (sT0, sT0, L_XN))
    A("v_mul_u32_u24 v25, %d, v18" % XS)
    A("v_lshl_add_u32 v25, v16, 4, v25")
    A("v_add_u32 v%d, s%d, v25" % (vXNR, sT0))
    A("v_mov_b32 v%d, %s" % (vZ, hx(f2u(1.0 / 512))))
    for r in range(4): A("v_mov_b32 v%d, 0x3f803f80" % (ONES + r))
    A("s_and_b32 s%d, s%d, 1" % (sT1, sC))
    A("s_lshr_b32 s%d, s%d, 1" % (sT2, sC))
    soff(sQS, [(sT1, 11), (sW, 9), (sA, 6), (sT2, 4)], 0)
    A("v_bfe_u32 v24, v%d, 2, 2" % vLANE)
    A("v_lshl_add_u32 v24, v16, 3, v24")
    A("v_lshlrev_b32 v24, 7, v24")
    A("v_bfe_u32 v25, v%d, 3, 2" % vLANE)
    A("v_lshlrev_b32 v25, 1, v25")
    A("v_bfe_u32 v26, v%d, 1, 1" % vLANE)
    A("v_xor_b32 v25, v25, v26")
    A("v_lshl_add_u32 v24, v25, 4, v24")
    A("v_and_b32 v26, 1, v%d" % vLANE)
    A("v_lshl_add_u32 v%d, v26, 3, v24" % vWT)
    A("s_mov_b32 s%d, 0x000f000f" % sMSK)
    A("s_mov_b32 s%d, 0x000f000f" % (sMSK + 1))
    A("s_mov_b32 s%d, 0" % sLAY)

def wtile_voff(shift, d):
    A("v_lshrrev_b32 v24, 3, v%d" % vLANE)
    A("v_and_b32 v25, 7, v%d" % vLANE)
    A("v_and_b32 v26, 1, v16")
    A("v_lshlrev_b32 v26, 1, v26")
    A("v_xor_b32 v25, v25, v26")
    A("v_lshlrev_b32 v25, 4, v25")
    A("v_lshl_add_u32 v%d, v24, %d, v25" % (d, shift))
    A("v_xor_b32 v%d, 64, v%d" % (d + 1, d))

def wqf_reads():
    A("s_lshl_b32 s%d, s%d, 5" % (sT1, sW))
    A("v_xor_b32 v26, s%d, v%d" % (sT1, vWT))
    for t in range(4):
        for hf in range(2):
            A("ds_read_b64_tr_b16 %s, v26 offset:%d" % (vr(WQF + 4 * t + 2 * hf, 2), L_WQ + 4096 * t + 512 * hf))

def dma(vaddr, srdn, so, lds_s, step_so, flags="nt"):
    A("s_mov_b32 m0, s%d" % lds_s)
    A("s_add_u32 s%d, s%d, 1024" % (lds_s, lds_s))
    A("buffer_load_dwordx4 v%d, %s, s%d offen %s lds" % (vaddr, sr(srdn, 4), so, flags))
    A("s_add_u32 s%d, s%d, %d" % (so, so, step_so))

hdr = open("cdna_kernels/%s.s.ref" % NAME).read().split("; Override launch")[0]
L.append(hdr.rstrip("\n"))
L.append("; @launch grid=(256,1,1) block=(512,1,1) lds=%d" % LDS_SZ)
L.append('.amdgcn_target "amdgcn-amd-amdhsa--gfx950"')
L.append(".text\n.globl %s_kernel\n.p2align 8\n.type %s_kernel,@function\n%s_kernel:" % (NAME, NAME, NAME))
if DIAG: A("s_memrealtime s[42:43]")
A("s_cmp_ge_u32 s2, 256")
A("s_cbranch_scc1 Lend")
for s, off in [(sW1, 48), (sB1, 56), (sW2, 64), (sWQ, 24), (sK, 8), (sX, 0), (sWS, 96), (sV, 16), (sWO, 32), (sOUT, 80), (sB2P, 72)]:
    A("s_load_dwordx2 %s, s[0:1], %d" % (sr(s, 2), off))
A("v_lshrrev_b32 v18, 6, v0")
A("v_and_b32 v%d, 63, v0" % vLANE)
A("v_mov_b32 v%d, %d" % (vFL, L_FLG))
A("v_readfirstlane_b32 s%d, v18" % sW)
A("v_lshlrev_b32 v%d, 4, v%d" % (vL16, vLANE))
A("v_lshrrev_b32 v16, 4, v%d" % vLANE)
A("v_and_b32 v17, 15, v%d" % vLANE)
A("s_and_b32 s%d, s2, 7" % sJ)
A("s_lshr_b32 s%d, s2, 6" % sA)
A("s_bfe_u32 s%d, s2, 0x30003" % sC)
for i in range(4): A("v_mov_b32 v%d, 0" % (20 + i))
A("ds_write_b128 v%d, v[20:23]" % vFL)
A("ds_write_b128 v%d, v[20:23] offset:16" % vFL)
srd(sWS, WS_SZ)
if DIAG: A("v_mov_b32 v30, 0")
A("s_cmp_ge_u32 s%d, 4" % sW)
A("s_cbranch_scc1 Lhelper")
vKA, vVA = W + 40, W + 44
srd(sK, 1 << 25)
A("v_xor_b32 v18, v17, v16")
A("v_lshlrev_b32 v18, 4, v18")
A("v_lshl_add_u32 v%d, v16, 8, v18" % vKA)
for i in range(1, 4): A("v_xor_b32 v%d, %d, v%d" % (vKA + i, 64 * i, vKA))
soff(sKO, [(sA, 23), (sJ, 20), (sC, 15), (sW, 13)], 3072 * 256)
A("s_add_u32 s%d, s%d, %d" % (sKL, sT0, L_K))
A("s_add_u32 s%d, s%d, %d" % (sVL, sT0, L_V))
A("s_mov_b32 s%d, s%d" % (sVO, sKO))
def kv_issue(i):
    if i < 8: dma(vKA + (i & 3), sK, sKO, sKL, 1024)
    else: dma(vVA + (i & 1), sV, sVO, sVL, 1024)
A("s_waitcnt lgkmcnt(0)")
A("s_barrier")
for i in range(D0): kv_issue(i)
if DIAG: A("v_writelane_b32 v30, s42, 0")
STAMP(10)
A("s_branch Lmain")

LB("Lhelper")
C("---- helper waves: first q projection, then the table of g over bf16 inputs ----")
HW1, HB1, HW2 = 32, 60, 112
hK0, hK1, hONE, hRES = 88, 90, 92, 94
AC = [140, 142]; U = [144, 146]; T_ = [148, 150]; Z = [152, 154]
for s, n in [(sWQ, 1 << 22), (sX, 4096)]: srd(s, n)
A("s_sub_u32 s%d, s%d, 4" % (sW, sW))
wtile_voff(13, 20)
soff(sT4, [(sA, 20), (sW, 18), (sJ, 10), (sC, 7)], 0)
A("s_lshl_b32 s%d, s%d, 12" % (sT2, sW))
A("s_add_u32 s%d, s%d, %d" % (sT2, sT2, L_WQ))
A("s_lshl_b32 s%d, s%d, 10" % (sT3, sW))
A("v_mov_b32 v22, %s" % hx(EPO))
A("v_mov_b32 v23, 0")
A("s_waitcnt lgkmcnt(0)")
A("s_barrier")
A("buffer_load_dwordx4 %s, v%d, %s, s%d offen" % (vr(XR, 4), vL16, sr(sX, 4), sT3))
for i in range(4): dma(20 + (i & 1), sWQ, sT4, sT2, 0x10000)
A("buffer_load_dword v%d, v22, %s, 0 offen" % (RES, sr(sWS, 4)))
A("global_load_ushort v%d, v23, %s" % (RES + 1, sr(sB2P, 2)))
if DIAG: A("v_writelane_b32 v30, s42, 0")
STAMP(9)
A("s_lshl_b32 s%d, s%d, 17" % (sGR, sJ))
A("s_lshl_b32 s%d, s2, 2" % sHC)
A("s_add_u32 s%d, s%d, s%d" % (sHC, sHC, sW))
A("s_mul_i32 s%d, s%d, %d" % (sHC, sHC, EPW))
A("s_lshl_b32 s%d, s%d, 3" % (sHT, sHC))
A("s_add_u32 s%d, s%d, %s" % (sHT, sHT, hx(TB)))
A("s_add_u32 s%d, s%d, %d" % (sHC, sHC, ELO * 128))
A("s_lshl_b32 s%d, s%d, 16" % (sHC, sHC))
A("v_lshlrev_b32 v27, 2, v%d" % vLANE)
common_addr()
A("s_lshl_b32 s%d, s%d, 1" % (sQS, sQS))
A("s_add_u32 s%d, s%d, s%d" % (sQS, sQS, sGR))
A("s_add_u32 s%d, s%d, %s" % (sQS, sQS, hx(Q0_OFF)))
A("v_lshlrev_b32 v%d, 1, v%d" % (vQST, vQST))
A("s_getreg_b32 s%d, hwreg(HW_REG_XCC_ID, 0, 3)" % sXCC)
for r, c in [(hK0, K0), (hK1, K1), (hONE, 1.0)]:
    A("v_mov_b32 v%d, %s" % (r, hx(f2u(c)))); A("v_mov_b32 v%d, %s" % (r + 1, hx(f2u(c))))
A("v_mov_b32 v%d, 0" % hRES)
A("s_mov_b32 s%d, 0" % sIT)
for s, n in [(sW1, 3584), (sB1, 3584), (sW2, 3584)]: srd(s, n)
A("s_mov_b32 m0, s%d" % sT3)
A("s_waitcnt vmcnt(6)")
for i, sd in enumerate([sW1, sB1, sW2]):
    A("buffer_load_dwordx4 v%d, %s, s%d offen lds" % (vL16, sr(sd, 4), sT3))
    if i < 2:
        A("s_add_u32 m0, m0, 4096"); A("s_nop 0")
STAMP(1)
A("s_branch Llnq")
LB("Lq_first")
A("s_waitcnt vmcnt(3) lgkmcnt(0)")
STAMP(2)
lds_arrive(0, vT + 4)
A("v_readfirstlane_b32 s%d, v%d" % (sE, RES))
A("v_readfirstlane_b32 s%d, v%d" % (sB2, RES + 1))
tags()
A("s_or_b32 s%d, s%d, s%d" % (sXCC, sXCC, sTG2))
A("s_lshl_b32 s%d, s%d, 16" % (sB2, sB2))
C("4 helper arrivals (wq tile, xn rows) + 4 main arrivals (coefficients landed, sentinels acknowledged)")
lds_spin(0, 8, vT + 4)
wqf_reads()
A("s_waitcnt lgkmcnt(0)")
A("s_branch Lq_go")
LB("Lh_qst")
A("v_mov_b32 v%d, s%d" % (W + 6, sTG1))
A("v_mov_b32 v%d, s%d" % (W + 7, sXCC))
A("buffer_store_dwordx4 %s, v%d, %s, s%d offen" % (vr(W + 4, 4), vQST, sr(sWS, 4), sQS))
A("s_add_u32 s%d, s%d, %s" % (sQS, sQS, hx(QB_DELTA)))
A("buffer_store_dwordx4 %s, v%d, %s, s%d offen sc1" % (vr(W + 4, 4), vQST, sr(sWS, 4), sQS))
A("s_mov_b64 exec, -1")
HR = W + 8
STAMP(3)
A("v_lshlrev_b32 v26, 3, v%d" % vLANE)
A("s_waitcnt vmcnt(2)")
lds_arrive(24, 24)
lds_spin(24, 4, 24)
for a_ in range(3):
    for k in range(3):
        A("ds_read_b128 %s, v%d offset:%d" % (vr(HR + 14 * a_ + 4 * k, 4), vL16, 4096 * a_ + 1024 * k))
    A("ds_read_b64 %s, v26 offset:%d" % (vr(HR + 14 * a_ + 12, 2), 4096 * a_ + 3072))
for a_, d in [(0, HW1), (14, HB1), (28, HW2)]:
    A("s_waitcnt lgkmcnt(%d)" % (8 - 4 * (a_ // 14)))
    for p in range(14):
        A("v_lshlrev_b32 v%d, 16, v%d" % (d + 2 * p, HR + a_ + p))
        A("v_and_b32 v%d, 0xffff0000, v%d" % (d + 2 * p + 1, HR + a_ + p))
STAMP(4)
LB("Lhl")
A("s_mov_b32 s%d, s%d" % (sH, sHC)); A("s_mov_b32 s%d, s%d" % (sH + 1, sHC))
A("s_xor_b32 s%d, s%d, 0x80000000" % (sH2, sHC)); A("s_mov_b32 s%d, s%d" % (sH2 + 1, sH2))
for p in range(14):
    for sg in range(2):
        A("v_pk_fma_f32 %s, %s, %s, %s" % (vr(U[sg], 2), vr(HW1 + 2 * p, 2), sr([sH, sH2][sg], 2), vr(HB1 + 2 * p, 2)))
    for sg in range(2): A("v_pk_mul_f32 %s, %s, %s" % (vr(T_[sg], 2), vr(U[sg], 2), vr(U[sg], 2)))
    for sg in range(2): A("v_pk_fma_f32 %s, %s, %s, %s" % (vr(T_[sg], 2), vr(T_[sg], 2), vr(hK1, 2), vr(hK0, 2)))
    for sg in range(2): A("v_pk_mul_f32 %s, %s, %s" % (vr(T_[sg], 2), vr(T_[sg], 2), vr(U[sg], 2)))
    for sg in range(2): A("v_pk_mul_f32 %s, %s, %s" % (vr(Z[sg], 2), vr(U[sg], 2), vr(HW2 + 2 * p, 2)))
    for sg in range(2):
        for h in range(2): A("v_exp_f32 v%d, v%d" % (T_[sg] + h, T_[sg] + h))
    for sg in range(2): A("v_pk_add_f32 %s, %s, %s" % (vr(T_[sg], 2), vr(T_[sg], 2), vr(hONE, 2)))
    for sg in range(2):
        for h in range(2): A("v_rcp_f32 v%d, v%d" % (T_[sg] + h, T_[sg] + h))
    for sg in range(2):
        if p == 0: A("v_pk_mul_f32 %s, %s, %s" % (vr(AC[sg], 2), vr(Z[sg], 2), vr(T_[sg], 2)))
        else: A("v_pk_fma_f32 %s, %s, %s, %s" % (vr(AC[sg], 2), vr(Z[sg], 2), vr(T_[sg], 2), vr(AC[sg], 2)))
A("v_add_f32 v%d, v%d, v%d" % (AC[0], AC[0], AC[0] + 1))
A("v_add_f32 v%d, v%d, v%d" % (AC[1], AC[1], AC[1] + 1))
A("s_lshl_b32 m0, s%d, 1" % sIT)
A("s_add_u32 s%d, s%d, 0x10000" % (sHC, sHC))
wave_sum2(AC[0], AC[1], sSUM, sSQ)
A("s_add_u32 s%d, s%d, 1" % (sIT, sIT))
A("s_nop 0")
A("v_writelane_b32 v%d, s%d, m0" % (hRES, sSUM))
A("s_add_u32 m0, m0, 1")
A("s_cmp_lg_u32 s%d, %d" % (sIT, EPW))
A("v_writelane_b32 v%d, s%d, m0" % (hRES, sSQ))
A("s_cbranch_scc1 Lhl")
A("v_cvt_pk_bf16_f32 v%d, v%d, v%d" % (hRES, hRES, hRES))
A("v_and_b32 v%d, 0xffff0000, v%d" % (hRES, hRES))
A("v_add_f32 v%d, s%d, v%d" % (hRES, sB2, hRES))
A("v_cvt_pk_bf16_f32 v%d, v%d, v%d" % (hRES, hRES, hRES))
A("v_and_b32 v%d, 0xffff0000, v%d" % (hRES, hRES))
A("s_bfm_b64 exec, %d, 0" % (2 * EPW))
A("buffer_store_dword v%d, v27, %s, s%d offen sc1" % (hRES, sr(sWS, 4), sHT))
A("s_mov_b64 exec, -1")
STAMP(7)
if DIAG:
    A("s_add_u32 s%d, s%d, 4" % (sW, sW))
    A("v_mov_b32 v28, v30")
    A("s_branch Lfin_exit")
A("s_endpgm")

LB("Lmain")
for i in range(4): A("v_mov_b32 v%d, -1" % (W + i))
A("s_lshl_b32 s%d, s%d, 17" % (sGR, sJ))
A("s_lshr_b32 s%d, s2, 3" % sT1)
A("v_lshlrev_b32 v19, 7, v%d" % vLANE)
A("s_cmp_ge_u32 s%d, 2" % sW)
A("s_cbranch_scc1 Lm_pf")
C("wave 0: 1024 B of early sentinels ; wave 1: the last 16 B and the table slots")
A("s_mul_i32 s%d, s%d, %d" % (sT5, sT1, CLRA_PER))
A("s_add_u32 s%d, s%d, s%d" % (sT5, sT5, sGR))
A("s_lshl_b32 s%d, s%d, 10" % (sT0, sW))
A("s_add_u32 s%d, s%d, s%d" % (sT5, sT5, sT0))
A("s_cmp_eq_u32 s%d, 0" % sW)
A("s_cselect_b64 exec, -1, 1")
A("buffer_store_dwordx4 %s, v%d, %s, s%d offen sc1" % (vr(W, 4), vL16, sr(sWS, 4), sT5))
A("s_mul_i32 s%d, s2, %d" % (sT4, NENT * 4 // 256))
A("s_add_u32 s%d, s%d, %s" % (sT4, sT4, hx(TB)))
A("s_cselect_b64 exec, 0, %d" % ((1 << (NENT * 4 // 256 // 16)) - 1)) if False else None
A("s_cmp_eq_u32 s%d, 0" % sW)
A("s_cbranch_scc1 Lm_go")
A("s_bfm_b64 exec, %d, 0" % (NENT * 4 // 256 // 16))
A("buffer_store_dwordx4 %s, v%d, %s, s%d offen sc1" % (vr(W, 4), vL16, sr(sWS, 4), sT4))
A("s_branch Lm_go")
LB("Lm_pf")
C("waves 2,3: each workgroup pulls a slice of the shared lines into its L2: code / mixer coefficients")
A("s_getpc_b64 s[12:13]")
LB("Lpc0")
A("s_sub_u32 s12, s12, Lpc0-%s_kernel" % NAME)
A("s_subb_u32 s13, s13, 0")
A("s_cmp_eq_u32 s%d, 3" % sW)
A("s_cbranch_scc1 Lm_pc")
A("s_lshl_b32 s%d, s%d, 9" % (sT0, sT1))
A("v_add_u32 v19, s%d, v19" % sT0)
A("s_mov_b64 exec, 15")
A("global_load_dword v%d, v19, s[12:13]" % (W + 8))
A("s_branch Lm_go")
LB("Lm_pc")
A("s_min_u32 s%d, s%d, 27" % (sT0, sT1))
A("s_lshl_b32 s%d, s%d, 7" % (sT0, sT0))
A("v_mov_b32 v19, s%d" % sT0)
A("s_mov_b64 exec, 1")
for k, sd in enumerate([sW1, sB1, sW2]): A("global_load_dword v%d, v19, %s" % (W + 8 + k, sr(sd, 2)))
LB("Lm_go")
A("s_mov_b64 exec, -1")
A("v_mov_b32 v22, %s" % hx(EPO))
A("buffer_load_dword v%d, v22, %s, 0 offen" % (RES, sr(sWS, 4)))
STAMP(11)
for s, n in [(sV, 1 << 25), (sX, 4096), (sWO, 1 << 22), (sOUT, 4096), (sW1, 3584), (sB1, 3584), (sW2, 3584)]: srd(s, n)
A("v_lshlrev_b32 v18, 1, v16")
A("v_xor_b32 v18, v17, v18")
A("v_lshlrev_b32 v18, 4, v18")
A("v_lshl_add_u32 v%d, v16, 8, v18" % vVA)
A("v_xor_b32 v%d, 128, v%d" % (vVA + 1, vVA))
for i in range(D0, D1): kv_issue(i)
common_addr()
A("s_add_u32 s%d, s%d, s%d" % (sQS, sQS, sGR))
A("s_add_u32 s%d, s%d, %d" % (sQS, sQS, Q1_OFF))
wtile_voff(10, 22)
A("v_and_b32 v19, 7, v%d" % vLANE)
A("v_lshrrev_b32 v25, 2, v%d" % vLANE)
A("v_lshlrev_b32 v25, 7, v25")
A("v_lshl_add_u32 v%d, v18, 2, v25" % vOST)
A("v_lshlrev_b32 v25, 7, v16")
A("v_lshl_add_u32 v%d, v19, 4, v25" % vOLD)
A("v_lshlrev_b32 v%d, 1, v%d" % (vPST, vLANE))
A("v_lshlrev_b32 v25, 3, v16")
A("v_lshl_add_u32 v%d, v19, 4, v25" % vX1S)
A("s_mul_i32 s%d, s%d, %d" % (sT0, sW, RBS))
A("s_add_u32 s%d, s%d, %d" % (sT0, sT0, L_RB))
A("v_mul_u32_u24 v25, 528, v18")
A("v_lshl_add_u32 v25, v16, 4, v25")
A("v_lshrrev_b32 v26, 2, v17")
A("v_lshl_add_u32 v25, v26, 7, v25")
A("v_add_u32 v%d, s%d, v25" % (vRBW, sT0))
A("s_mul_i32 s%d, s%d, 528" % (sT0, sW))
A("s_add_u32 s%d, s%d, %d" % (sT0, sT0, L_RB))
A("v_lshlrev_b32 v25, 3, v%d" % vLANE)
A("v_add_u32 v%d, s%d, v25" % (vRBR, sT0))
A("s_lshl_b32 s%d, s%d, 3" % (sT0, sW))
A("s_add_u32 s%d, s%d, %d" % (sT0, sT0, L_ML))
A("v_lshlrev_b32 v25, 5, v18")
A("v_add_u32 v%d, s%d, v25" % (vMLW, sT0))
A("s_lshl_b32 s%d, s%d, 5" % (sT0, sW))
A("s_add_u32 s%d, s%d, %d" % (sT0, sT0, L_ML))
A("v_mov_b32 v%d, s%d" % (vMLR, sT0))
A("v_mov_b32 v25, 0x3f80")
A("v_mov_b32 v26, 0x3f800000")
for r in range(4):
    A("v_cmp_eq_u32 vcc, %d, v17" % (2 * r))
    A("v_cmp_eq_u32 %s, %d, v17" % (sr(sH, 2), 2 * r + 1))
    A("s_nop 0")
    A("v_cndmask_b32 v%d, 0, v25, vcc" % (SEL + r))
    A("v_cndmask_b32 v%d, v%d, v26, %s" % (SEL + r, SEL + r, sr(sH, 2)))
for i in range(16): A("v_mov_b32 v%d, 0" % (PM + i))
for p in range(4):
    A("s_mov_b32 s%d, %s" % (sPM + 2 * p, hx(0x000f000f << (4 * p))))
    A("s_mov_b32 s%d, %s" % (sPM + 2 * p + 1, hx(0x000f000f << (4 * p))))
soff(sOS, [(sW, 13), (sA, 11), (sC, 4), (sJ, 17)], O_OFF[0])
soff(sOL, [(sA, 13), (sW, 11), (sJ, 17)], O_OFF[0])
A("s_add_u32 s%d, s%d, %s" % (sQL, sOL, hx(Q0_OFF - O_OFF[0])))
soff(sLS, [(sW, 7), (sA, 5), (sC, 2), (sJ, 17)], LSE_OFF[0])
soff(sLL, [(sA, 7), (sW, 5), (sJ, 17)], LSE_OFF[0])
soff(sPS, [(sW, 15), (sC, 12), (sJ, 9), (sA, 7)], PB)
A("s_mov_b32 s%d, %s" % (sSC, hx(f2u(128 ** -0.5 * math.log2(math.e)))))
A("s_getreg_b32 s%d, hwreg(HW_REG_XCC_ID, 0, 3)" % sXCC)
A("v_xor_b32 v24, v16, v17")
A("v_lshlrev_b32 v24, 4, v24")
A("v_lshl_add_u32 v24, v17, 8, v24")
A("s_lshl_b32 s%d, s%d, 13" % (sT1, sW))
A("s_add_u32 s%d, s%d, %d" % (sT2, sT1, L_K))
for t in range(4): A("v_xor_b32 v%d, %d, v24" % (18 + t, 64 * t))
for t in range(4): A("v_add_u32 v%d, s%d, v%d" % (18 + t, sT2, 18 + t))
VA = W + 32
A("v_lshrrev_b32 v24, 2, v%d" % vLANE)
A("v_and_b32 v25, 7, v24")
A("v_lshlrev_b32 v25, 1, v25")
A("v_bfe_u32 v26, v%d, 1, 1" % vLANE)
A("v_xor_b32 v25, v25, v26")
A("v_lshlrev_b32 v25, 4, v25")
A("v_lshl_add_u32 v25, v24, 8, v25")
A("v_and_b32 v26, 1, v%d" % vLANE)
A("v_lshl_add_u32 v25, v26, 3, v25")
A("s_add_u32 s%d, s%d, %d" % (sT2, sT1, L_V))
for t in range(8): A("v_xor_b32 v%d, %d, v25" % (VA + t, 32 * t))
for t in range(8): A("v_add_u32 v%d, s%d, v%d" % (VA + t, sT2, VA + t))
soff(sT4, [(sJ, 19), (sA, 17), (sW, 15), (sC, 7)], 0)
A("s_lshl_b32 s%d, s%d, 12" % (sT5, sW))
A("s_add_u32 s%d, s%d, %d" % (sT5, sT5, L_WO))
soff(sT3, [(sA, 10), (sC, 7)], 0)
A("v_lshlrev_b32 v24, 5, v%d" % vLANE)
A("s_lshl_b32 s%d, s%d, 10" % (sT2, sW))
A("s_add_u32 s%d, s%d, %d" % (sT2, sT2, L_QF))
A("v_add_u32 v25, s%d, v%d" % (sT2, vL16))
A("v_add_u32 v26, %d, v%d" % (L_QF, vL16))
STAMP(12)
if DIAG: A("v_mov_b32 v31, v30")
C("early traffic done -> tell the helpers")
A("s_waitcnt vmcnt(%d)" % (D1 - D0))
lds_arrive(0, vT)
A("v_readfirstlane_b32 s%d, v%d" % (sE, RES))
tags()
A("s_or_b32 s%d, s%d, s%d" % (sXCC, sXCC, sTG2))
QP = W
def q0_issue():
    A("buffer_load_dwordx4 %s, v24, %s, s%d offen sc1" % (vr(QP, 4), sr(sWS, 4), sQL))
    A("buffer_load_dwordx4 %s, v24, %s, s%d offen offset:16 sc1" % (vr(QP + 4, 4), sr(sWS, 4), sQL))
C("late sentinels: wave 0,1: group region ; wave 2: P chunk")
A("s_lshr_b32 s%d, s2, 3" % sT1)
A("s_mul_i32 s%d, s%d, %d" % (sT1, sT1, CLRB_PER))
A("s_lshl_b32 s%d, s%d, 10" % (sT0, sW))
A("s_add_u32 s%d, s%d, s%d" % (sT1, sT1, sT0))
A("s_add_u32 s%d, s%d, s%d" % (sT1, sT1, sGR))
A("s_add_u32 s%d, s%d, %d" % (sT1, sT1, CLRB_OFF))
A("s_lshl_b32 s%d, s2, 10" % sT0)
A("s_add_u32 s%d, s%d, %s" % (sT0, sT0, hx(PB)))
A("s_cmp_ge_u32 s%d, 2" % sW)
A("s_cselect_b32 s%d, s%d, s%d" % (sT1, sT0, sT1))
A("s_bfm_b64 %s, %d, 0" % (sr(sH, 2), (CLRB_PER - 1024) // 16))
A("s_cmp_eq_u32 s%d, 1" % sW)
A("s_cselect_b64 %s, %s, -1" % (sr(sH, 2), sr(sH, 2)))
A("s_cmp_eq_u32 s%d, 3" % sW)
A("s_cselect_b64 exec, 1, %s" % sr(sH, 2))
A("buffer_store_dwordx4 %s, v%d, %s, s%d offen sc1" % (vr(W, 4), vL16, sr(sWS, 4), sT1))
A("s_mov_b64 exec, -1")
LATE_DONE = D1 + DEPTH
assert LATE_DONE + 1 < 16 - QV or QV == 0 and LATE_DONE + 1 < 16
for i in range(D1, 16):
    if i == 16 - QV: q0_issue()
    if i >= DEPTH: A("s_waitcnt vmcnt(%d)" % (DEPTH - 1 + (2 if i >= 16 - QV else 0)))
    if i == LATE_DONE: lds_arrive(8, vT)
    if i == LATE_DONE + 1:
        A("s_cmp_lg_u32 s%d, 0" % sW)
        A("s_cbranch_scc1 Lnoflag")
        C("every sentinel store of this workgroup is acknowledged: announce it")
        lds_spin(8, 4, vT)
        A("v_mov_b32 v16, s%d" % sTG1)
        A("v_mov_b32 v17, s%d" % sXCC)
        soff(sT1, [(2, 4)], FB)
        A("v_mov_b32 v27, 0")
        A("s_mov_b64 exec, 1")
        A("buffer_store_dwordx2 v[16:17], v27, %s, s%d offen sc1" % (sr(sWS, 4), sT1))
        A("s_mov_b64 exec, -1")
        LB("Lnoflag")
    kv_issue(i)
if QV == 0: q0_issue()
STAMP(1)
A("s_waitcnt vmcnt(%d)" % 10)
for t in range(4):
    for T in range(2):
        A("ds_read_b128 %s, v%d offset:%d" % (vr(KF + 16 * T + 4 * t, 4), 18 + t, 4096 * T))
A("s_waitcnt vmcnt(%d)" % QV)
STAMP(2)
A("s_setprio 2")
A("s_mov_b32 s%d, %s" % (sCNT, hx(SPIN)))
LB("Lmq")
A("v_and_b32 v16, -8, v%d" % (QP + 3))
A("v_and_b32 v17, -8, v%d" % (QP + 7))
A("v_cmp_ne_u32 vcc, s%d, v%d" % (sTG1, QP + 2))
A("v_cmp_ne_u32 %s, s%d, v%d" % (sr(sRET, 2), sTG1, QP + 6))
A("s_or_b64 vcc, vcc, %s" % sr(sRET, 2))
A("v_cmp_ne_u32 %s, s%d, v16" % (sr(sRET, 2), sTG2))
A("s_or_b64 vcc, vcc, %s" % sr(sRET, 2))
A("v_cmp_ne_u32 %s, s%d, v17" % (sr(sRET, 2), sTG2))
A("s_or_b64 vcc, vcc, %s" % sr(sRET, 2))
A("s_cbranch_vccnz Lmqr")
LB("Lmqd")
Ls = L; L = []
LB("Lmqr")
C("not there yet: poll the plain copy a few times, then the write-through copy")
A("s_cmp_eq_u32 s%d, %s" % (sCNT, hx(SPIN - 8)))
A("s_cselect_b32 s%d, %s, 0" % (sT0, hx(QB_DELTA)))
A("s_add_u32 s%d, s%d, s%d" % (sQL, sQL, sT0))
q0_issue()
A("s_waitcnt vmcnt(0)")
A("s_sub_u32 s%d, s%d, 1" % (sCNT, sCNT))
A("s_cbranch_scc0 Lmq")
A("s_branch Lmqd")
ool.append(L); L = Ls
A("v_cmp_ne_u32 vcc, s%d, v%d" % (sXCC, QP + 3))
A("v_mov_b32 v%d, v%d" % (QP + 2, QP + 4))
A("v_mov_b32 v%d, v%d" % (QP + 3, QP + 5))
A("ds_write_b128 v25, %s" % vr(QP, 4))
A("s_cmp_eq_u64 vcc, 0")
A("s_cselect_b32 s%d, 1, 0x101" % sT0)
A("v_mov_b32 v16, s%d" % sT0)
A("s_waitcnt lgkmcnt(0)")
lds_arrive(4, 16, None)
STAMP(15)
for i in range(4): dma(22 + (i & 1), sWO, sT4, sT5, 0x2000)
A("buffer_load_dwordx2 %s, v%d, %s, s%d offen" % (vr(RES + 2, 2), vX1S, sr(sX, 4), sT3))
FLG = W + 44
soff(sT5, [(sW, 10)], FB)
soff(sQL, [(sA, 12), (sJ, 17)], Q1_OFF)
lds_spin(4, 4, vT, mask=0xff)
A("s_cmp_lt_u32 s%d, 256" % sT1)
A("s_cselect_b32 s%d, 1, 0" % sFAST)
QF = W + 16
for t in range(4):
    A("ds_read_b128 %s, v26 offset:%d" % (vr(QF + 4 * t, 4), 1024 * t))
A("buffer_load_dwordx4 %s, v%d, %s, s%d offen sc1" % (vr(FLG, 4), vL16, sr(sWS, 4), sT5))
if PRET:
    C("bring the (cleared) group mailbox lines into L2")
    A("s_lshr_b32 s%d, s2, 3" % sT5)
    A("s_lshl_b32 s%d, s%d, 2" % (sT5, sT5))
    A("s_add_u32 s%d, s%d, s%d" % (sT5, sT5, sW))
    A("s_mul_i32 s%d, s%d, 768" % (sT5, sT5))
    A("s_add_u32 s%d, s%d, s%d" % (sT5, sT5, sGR))
    A("v_lshlrev_b32 v27, 7, v%d" % vLANE)
    A("s_mov_b64 exec, 63")
    A("buffer_load_dword v%d, v27, %s, s%d offen sc1" % (W + 40, sr(sWS, 4), sT5))
    A("s_mov_b64 exec, -1")
S = W
qk = []
for t in range(4):
    for T in range(2):
        qk.append(mf(S + 4 * T, KF + 16 * T + 4 * t, QF + 4 * t, None if t == 0 else S + 4 * T))
for t in range(4):
    A("s_waitcnt lgkmcnt(%d)" % (3 - t))
    A(qk[2 * t]); A(qk[2 * t + 1])
STAMP(3)
A("s_branch Lk_go")

LB("Llnq")
C("LayerNorm of the row held in XR, then q partial = xn @ wq tile")
X = W
row_stats(XR, vT, X)
A("v_add_f32 v%d, %s, v%d" % (vT + 1, EPS, vT + 1))
A("v_rsq_f32 v%d, v%d" % (vT + 2, vT + 1))
A("s_cmp_eq_u32 s%d, 0" % sLAY)
A("v_mul_f32 v%d, v%d, v%d" % (vT + 3, vT, vT + 2))
for i in range(4):
    A("v_pk_fma_f32 %s, %s, %s, %s op_sel:[0,0,1] op_sel_hi:[1,0,1] neg_lo:[0,0,1] neg_hi:[0,0,1]" % (vr(X + 2 * i, 2), vr(X + 2 * i, 2), vr(vT + 2, 2), vr(vT + 2, 2)))
for i in range(4):
    A("v_cvt_pk_bf16_f32 v%d, v%d, v%d" % (X + 8 + i, X + 2 * i, X + 2 * i + 1))
A("ds_write_b128 v%d, %s" % (vXNW, vr(X + 8, 4)))
A("s_cbranch_scc1 Lq_first")
A("s_waitcnt lgkmcnt(0)")
A("s_barrier")
LB("Lq_go")
BF = W + 16
for t in range(4):
    A("ds_read_b128 %s, v%d offset:%d" % (vr(BF + 4 * t, 4), vXNR, 64 * t))
for t in range(4):
    A("s_waitcnt lgkmcnt(%d)" % (3 - t))
    mfma(W, WQF + 4 * t, BF + 4 * t, None if t == 0 else W)
A("s_cmp_eq_u32 s%d, 0" % sLAY)
A("s_mov_b64 exec, %s" % sr(sMSK, 2))
NOP(6)
A("v_cvt_pk_bf16_f32 v%d, v%d, v%d" % (W + 4, W, W + 1))
A("v_cvt_pk_bf16_f32 v%d, v%d, v%d" % (W + 5, W + 2, W + 3))
A("s_cbranch_scc1 Lh_qst")
fastcmp()
store_local("buffer_store_dwordx2", vr(W + 4, 2), vQST, sQS)
A("s_mov_b64 exec, -1")
STAMP(2)

C("attention over this workgroup's 128 keys")
def iq():
    for t in range(4):
        A("buffer_load_dwordx4 %s, v%d, %s, s%d offen offset:%d sc1" % (vr(QF + 4 * t, 4), vL16, sr(sWS, 4), sQL, 1024 * t))
poll(iq, range(QF, QF + 16), vT, spec=qk)
STAMP(3)
LB("Lk_go")
NOP(7)
for ctl in ["row_ror:4", "row_ror:8"]:
    for i in range(8):
        A("v_add_f32_dpp v%d, v%d, v%d %s row_mask:0xf bank_mask:0xf" % (S + i, S + i, S + i, ctl))
A("v_max3_f32 v%d, v%d, v%d, v%d" % (vT, S, S + 1, S + 2))
A("v_max3_f32 v%d, v%d, v%d, v%d" % (vT + 1, S + 3, S + 4, S + 5))
A("v_max3_f32 v%d, v%d, v%d, v%d" % (vT, vT, S + 6, S + 7))
A("v_max_f32 v%d, v%d, v%d" % (vT, vT, vT + 1))
A("v_mov_b32 v%d, v%d" % (vT + 1, vT))
A("s_nop 1")
A("v_permlane16_swap_b32 v%d, v%d" % (vT, vT + 1))
A("v_max_f32 v%d, v%d, v%d" % (vT, vT, vT + 1))
A("v_mov_b32 v%d, v%d" % (vT + 1, vT))
A("s_nop 1")
A("v_permlane32_swap_b32 v%d, v%d" % (vT, vT + 1))
A("v_max_f32 v%d, v%d, v%d" % (vT, vT, vT + 1))
A("v_mul_f32 v%d, s%d, v%d" % (vT + 2, sSC, vT))
for i in range(8):
    A("v_fma_f32 v%d, v%d, s%d, -v%d" % (S + i, S + i, sSC, vT + 2))
for i in range(8):
    A("v_exp_f32 v%d, v%d" % (S + i, S + i))
for p in range(4):
    A("s_mov_b64 exec, %s" % sr(sPM + 2 * p, 2))
    for i in range(4):
        A("v_cvt_pk_bf16_f32 v%d, v%d, v%d" % (PM + 4 * p + i, S + 2 * i, S + 2 * i + 1))
A("s_mov_b64 exec, -1")
STAMP(4)
A("s_cmp_lg_u32 s%d, 0" % sLAY)
A("s_cbranch_scc1 Lv_go")
A("s_waitcnt vmcnt(%d)" % (6 + PRET))
STAMP(6)
for t in range(8):
    for hf in range(2):
        A("ds_read_b64_tr_b16 %s, v%d offset:%d" % (vr(VF + 4 * t + 2 * hf, 2), VA + t, 4096 * hf))
A("s_waitcnt lgkmcnt(0)")
LB("Lv_go")
OA = W + 8
mfma(W + 16, ONES, PM, None)
for p in range(4):
    for T in range(2):
        mfma(OA + 4 * T, VF + 4 * (2 * p + T), PM + 4 * p, None if p == 0 else OA + 4 * T)
A("s_mov_b64 exec, %s" % sr(sMSK, 2))
A("v_mov_b32 v%d, v%d" % (vT + 3, W + 16))
A("ds_write_b64 v%d, %s" % (vMLW, vr(vT + 2, 2)))
A("s_mov_b64 exec, -1")
NOP(3)
A("ds_write_b128 v%d, %s" % (vRBW, vr(OA, 4)))
A("ds_write_b128 v%d, %s offset:64" % (vRBW, vr(OA + 4, 4)))
A("s_waitcnt lgkmcnt(0)")
A("s_cbranch_scc1 Lrb_bar")
lds_arrive(12, vT + 4)
lds_spin(12, 4, vT + 4)
A("s_branch Lrb_go")
LB("Lrb_bar")
A("s_barrier")
LB("Lrb_go")
A("ds_read_b128 %s, v%d" % (vr(W, 4), vMLR))
A("ds_read_b128 %s, v%d offset:16" % (vr(W + 4, 4), vMLR))
for w in range(4):
    A("ds_read_b64 %s, v%d offset:%d" % (vr(W + 8 + 2 * w, 2), vRBR, RBS * w))
A("v_mov_b32 v%d, 0" % (vT + 4))
A("v_xor_b32 v%d, 16, v%d" % (vT + 6, vLSE))
fastcmp()
A("s_waitcnt lgkmcnt(4)")
A("v_max3_f32 v%d, v%d, v%d, v%d" % (vT, W, W + 2, W + 4))
A("v_max_f32 v%d, v%d, v%d" % (vT, vT, W + 6))
for w in range(4): A("v_sub_f32 v%d, v%d, v%d" % (W + 2 * w, W + 2 * w, vT))
for w in range(4): A("v_exp_f32 v%d, v%d" % (W + 2 * w, W + 2 * w))
A("v_mul_f32 v%d, v%d, v%d" % (vT + 1, W, W + 1))
for w in range(1, 4): A("v_fmac_f32 v%d, v%d, v%d" % (vT + 1, W + 2 * w, W + 2 * w + 1))
A("s_waitcnt lgkmcnt(0)")
A("v_pk_mul_f32 %s, %s, %s op_sel_hi:[1,0]" % (vr(W + 8, 2), vr(W + 8, 2), vr(W, 2)))
A("v_rcp_f32 v%d, v%d" % (vT + 2, vT + 1))
for w in range(1, 4):
    A("v_pk_fma_f32 %s, %s, %s, %s op_sel_hi:[1,0,1]" % (vr(W + 8, 2), vr(W + 8 + 2 * w, 2), vr(W + 2 * w, 2), vr(W + 8, 2)))
A("v_log_f32 v%d, v%d" % (vT + 5, vT + 1))
A("v_pk_mul_f32 %s, %s, %s op_sel_hi:[1,0]" % (vr(W + 8, 2), vr(W + 8, 2), vr(vT + 2, 2)))
A("v_add_f32 v%d, v%d, v%d" % (vT + 3, vT + 5, vT))
A("v_cvt_pk_bf16_f32 v%d, v%d, v%d" % (W + 8, W + 8, W + 9))
store_local("buffer_store_dword", "v%d" % (W + 8), vOST, sOS)
A("s_mov_b64 exec, 1")
store_local("buffer_store_dword", "v%d" % (vT + 3), vT + 4, sLS)
A("s_mov_b64 exec, -1")
STAMP(5)

C("wo phase: wave = batch, rows = key splits")
OF = W; LS = W + 16; DA = W + 24
def io():
    A("buffer_load_dwordx4 %s, v%d, %s, s%d offen sc1" % (vr(LS, 4), vLSE, sr(sWS, 4), sLL))
    A("buffer_load_dwordx4 %s, v%d, %s, s%d offen sc1" % (vr(LS + 4, 4), vT + 6, sr(sWS, 4), sLL))
    for t in range(4):
        A("buffer_load_dwordx4 %s, v%d, %s, s%d offen offset:%d sc1" % (vr(OF + 4 * t, 4), vOLD, sr(sWS, 4), sOL, 512 * t))
def pre_o():
    A("s_cmp_lg_u32 s%d, 0" % sLAY)
    A("s_cbranch_scc1 Lo_go")
    A("s_cmp_lg_u32 s%d, %s" % (sCNT, hx(SPIN)))
    A("s_cbranch_scc1 Lo_go")
    C("first layer: wo tile landed -> fragments; every workgroup has announced its clears")
    A("s_waitcnt vmcnt(8)")
    STAMP(13)
    A("s_mov_b32 s%d, %s" % (sT4, hx(SPIN)))
    LB("Lap")
    A("v_and_b32 v24, -8, v%d" % (FLG + 1))
    A("v_cmp_ne_u32 vcc, s%d, v%d" % (sTG1, FLG))
    A("v_cmp_ne_u32 %s, s%d, v24" % (sr(sH, 2), sTG2))
    A("s_or_b64 vcc, vcc, %s" % sr(sH, 2))
    A("s_cbranch_vccnz Lar")
    LB("Lad")
    lds_arrive(16, 24)
    for i in range(2):
        A("v_lshlrev_b32 v%d, 16, v%d" % (W + 40 + 2 * i, RES + 2 + i))
        A("v_and_b32 v%d, 0xffff0000, v%d" % (W + 41 + 2 * i, RES + 2 + i))
    for i in range(4): A("v_mov_b32 v%d, v%d" % (RES + i, W + 40 + i))
    for ct in range(4): A("v_xor_b32 v%d, %d, v%d" % (W + 40 + ct, 32 * ct, vWT))
    for ct in range(4): A("v_add_u32 v%d, %d, v%d" % (W + 40 + ct, L_WO, W + 40 + ct))
    lds_spin(16, 4, 24)
    STAMP(14)
    for t in range(4):
        for ct in range(4):
            for hf in range(2):
                A("ds_read_b64_tr_b16 %s, v%d offset:%d" % (vr(WOF + 16 * ct + 4 * t + 2 * hf, 2), W + 40 + ct, 4096 * t + 512 * hf))
    A("s_waitcnt lgkmcnt(0)")
    LB("Lo_go")
ool.append(["Lar:", "    s_lshl_b32 s%d, s%d, 10" % (sT5, sW), "    s_add_u32 s%d, s%d, %s" % (sT5, sT5, hx(FB)),
            "    buffer_load_dwordx4 %s, v%d, %s, s%d offen sc1" % (vr(FLG, 4), vL16, sr(sWS, 4), sT5),
            "    s_waitcnt vmcnt(0)", "    s_sub_u32 s%d, s%d, 1" % (sT4, sT4), "    s_cbranch_scc0 Lap", "    s_branch Lad"])
wo1 = [mf(DA + 4 * ct, OF + 4 * t, WOF + 16 * ct + 4 * t, None if t == 0 else DA + 4 * ct) for t in range(2) for ct in range(4)]
poll(io, list(range(LS, LS + 8)) + list(range(OF, OF + 16)), vT, pre_o, spec=wo1)
STAMP(7)
va = ["v_max3_f32 v%d, v%d, v%d, v%d" % (vT, LS, LS + 1, LS + 2), "v_max3_f32 v%d, v%d, v%d, v%d" % (vT + 1, LS + 3, LS + 4, LS + 5),
      "v_max3_f32 v%d, v%d, v%d, v%d" % (vT, vT, LS + 6, LS + 7), "v_max_f32 v%d, v%d, v%d" % (vT, vT, vT + 1)]
va += ["v_sub_f32 v%d, v%d, v%d" % (LS + i, LS + i, vT) for i in range(4)]
va += ["v_exp_f32 v%d, v%d" % (LS + i, LS + i) for i in range(4)]
va += ["v_add_f32 v%d, v%d, v%d" % (vT, LS, LS + 1), "v_add_f32 v%d, v%d, v%d" % (vT + 1, LS + 2, LS + 3),
       "v_add_f32 v%d, v%d, v%d" % (vT, vT, vT + 1), "v_mov_b32 v%d, v%d" % (vT + 1, vT)]
for t in range(2, 4):
    for ct in range(4):
        mfma(DA + 4 * ct, OF + 4 * t, WOF + 16 * ct + 4 * t, DA + 4 * ct)
        for k in range(2): A(va.pop(0))
A("s_mov_b32 s%d, 0x55555555" % sT4)
A("s_mov_b32 s%d, 0x55555555" % sT5)
A("v_permlane16_swap_b32 v%d, v%d" % (vT, vT + 1))
A("v_mul_f32 v%d, v%d, v%d" % (DA, DA, LS))
A("v_add_f32 v%d, v%d, v%d" % (vT, vT, vT + 1))
A("v_mul_f32 v%d, v%d, v%d" % (DA + 4, DA + 4, LS))
A("v_rcp_f32 v%d, v%d" % (vT, vT))
A("v_mul_f32 v%d, v%d, v%d" % (DA + 8, DA + 8, LS))
for i in range(1, 4):
    for ct in range(3):
        A("v_fmac_f32 v%d, v%d, v%d" % (DA + 4 * ct, DA + 4 * ct + i, LS + i))
    if i == 1: A("v_mul_f32 v%d, v%d, v%d" % (DA + 12, DA + 12, LS))
for i in range(1, 4): A("v_fmac_f32 v%d, v%d, v%d" % (DA + 12, DA + 12 + i, LS + i))
A("v_permlane16_swap_b32 v%d, v%d" % (DA, DA + 4))
A("s_nop 0")
A("v_permlane16_swap_b32 v%d, v%d" % (DA + 8, DA + 12))
A("v_add_f32 v%d, v%d, v%d" % (DA, DA, DA + 4))
A("v_add_f32 v%d, v%d, v%d" % (DA + 8, DA + 8, DA + 12))
A("s_nop 1")
A("v_permlane32_swap_b32 v%d, v%d" % (DA, DA + 8))
A("v_mul_f32 v%d, v%d, v%d" % (DA, DA, vT))
A("s_cmp_lg_u32 s%d, 0" % sLAY)
A("s_nop 0")
A("v_mov_b32_dpp v%d, v%d quad_perm:[1,0,3,2] row_mask:0xf bank_mask:0xf" % (DA + 1, DA))
A("s_mov_b64 exec, %s" % sr(sT4, 2))
A("v_cvt_pk_bf16_f32 v%d, v%d, v%d" % (DA, DA, DA + 1))
A("buffer_store_dword v%d, v%d, %s, s%d offen sc1" % (DA, vPST, sr(sWS, 4), sPS))
A("s_mov_b64 exec, -1")
STAMP(8)
A("s_cbranch_scc1 Lfinal")

A("s_cmp_lg_u32 s%d, 0" % sW)
A("s_cbranch_scc1 Ltab")
C("stage 1 (wave 0): reduce 32 head partials of 64 outputs, add residual, publish x1 slice")
soff(sT1, [(sA, 15), (sC, 12)], PB)
soff(sT2, [(sA, 10), (sC, 7), (sJ, 17)], X1_OFF)
A("s_mov_b32 s%d, 0x00ff00ff" % sT4)
A("s_mov_b32 s%d, 0" % sT5)
A("s_waitcnt vmcnt(0)")
def ip():
    for i in range(4):
        A("buffer_load_dwordx4 %s, v%d, %s, s%d offen offset:%d sc1" % (vr(W + 4 * i, 4), vL16, sr(sWS, 4), sT1, 1024 * i))
poll(ip, range(W, W + 16), vT, spec=[mf(W + 16, SEL, W + 4 * i, None if i == 0 else W + 16) for i in range(4)])
STAMP(9)
fastcmp()
NOP(6)
for i in range(4):
    A("v_add_f32_dpp v%d, v%d, v%d row_ror:8 row_mask:0xf bank_mask:0xf" % (W + 16 + i, W + 16 + i, W + 16 + i))
A("s_mov_b64 exec, %s" % sr(sT4, 2))
A("v_pk_add_f32 %s, %s, %s" % (vr(W + 16, 2), vr(W + 16, 2), vr(RES, 2)))
A("v_pk_add_f32 %s, %s, %s" % (vr(W + 18, 2), vr(W + 18, 2), vr(RES + 2, 2)))
A("v_cvt_pk_bf16_f32 v%d, v%d, v%d" % (W + 16, W + 16, W + 17))
A("v_cvt_pk_bf16_f32 v%d, v%d, v%d" % (W + 17, W + 18, W + 19))
store_local("buffer_store_dwordx2", vr(W + 16, 2), vX1S, sT2)
A("s_mov_b64 exec, -1")
LB("Ltabdone")
soff(sT3, [(sW, 10), (sJ, 17)], X1_OFF)
def ix():
    A("buffer_load_dwordx4 %s, v%d, %s, s%d offen sc1" % (vr(XR, 4), vL16, sr(sWS, 4), sT3))
wqf_reads()
def pre_x():
    A("ds_read_b32 v%d, v%d offset:20" % (vT + 2, vFL))
poll(ix, range(XR, XR + 4), vT, pre_x, spec=["s_waitcnt lgkmcnt(0)", "v_readfirstlane_b32 s%d, v%d" % (sT1, vT + 2)])
A("s_cmp_lt_u32 s%d, 3" % sT1)
A("s_cbranch_scc1 Ltw")
LB("Ltwd")
STAMP(10)

LB("Lmix")
C("x <- x + g(LN(LN(x))) ; g is tabulated for every bf16 input in range, evaluated directly otherwise")
X = W; HB = W + 8; RT = W + 12; AD = W + 16; Y = W + 24
row_stats(XR, vT, X)
A("v_add_f32 v%d, %s, v%d" % (vT + 2, EPS, vT + 1))
A("v_rsq_f32 v%d, v%d" % (vT + 2, vT + 2))
A("v_mov_b32 v%d, %s" % (vT + 4, hx(LO2 | (LO2 << 16))))
A("v_mul_f32 v%d, v%d, v%d" % (vT + 1, vT + 1, vT + 2))
A("v_fmaak_f32 v%d, v%d, v%d, %s" % (vT + 1, vT + 1, vT + 2, EPS))
A("v_rsq_f32 v%d, v%d" % (vT + 1, vT + 1))
A("s_nop 0")
A("v_mul_f32 v%d, v%d, v%d" % (vT + 2, vT + 2, vT + 1))
A("v_mul_f32 v%d, v%d, v%d" % (vT + 3, vT, vT + 2))
for i in range(4):
    A("v_pk_fma_f32 %s, %s, %s, %s op_sel:[0,0,1] op_sel_hi:[1,0,1] neg_lo:[0,0,1] neg_hi:[0,0,1]" % (vr(AD + 2 * i, 2), vr(X + 2 * i, 2), vr(vT + 2, 2), vr(vT + 2, 2)))
for i in range(4):
    A("v_cvt_pk_bf16_f32 v%d, v%d, v%d" % (HB + i, AD + 2 * i, AD + 2 * i + 1))
for i in range(4):
    A("v_pk_lshlrev_b16 v%d, 1, v%d op_sel_hi:[0,1]" % (RT + i, HB + i))
    A("v_pk_lshrrev_b16 v%d, 15, v%d op_sel_hi:[0,1]" % (AD + i, HB + i))
for i in range(4):
    A("v_or_b32 v%d, v%d, v%d" % (RT + i, RT + i, AD + i))
for i in range(4):
    A("v_pk_sub_u16 v%d, v%d, v%d" % (RT + i, RT + i, vT + 4))
for i in range(4):
    A("v_lshlrev_b32_sdwa v%d, 2, v%d dst_sel:DWORD dst_unused:UNUSED_PAD src0_sel:DWORD src1_sel:WORD_0" % (AD + 2 * i, RT + i))
    A("v_lshlrev_b32_sdwa v%d, 2, v%d dst_sel:DWORD dst_unused:UNUSED_PAD src0_sel:DWORD src1_sel:WORD_1" % (AD + 2 * i + 1, RT + i))
    A("ds_read_b32 v%d, v%d offset:%d" % (Y + 2 * i, AD + 2 * i, L_TAB))
    A("ds_read_b32 v%d, v%d offset:%d" % (Y + 2 * i + 1, AD + 2 * i + 1, L_TAB))
A("v_max3_u32 v%d, v%d, v%d, v%d" % (vT, AD, AD + 1, AD + 2))
A("v_max3_u32 v%d, v%d, v%d, v%d" % (vT + 1, AD + 3, AD + 4, AD + 5))
A("v_max3_u32 v%d, v%d, v%d, v%d" % (vT, vT, AD + 6, AD + 7))
A("v_max_u32 v%d, v%d, v%d" % (vT, vT, vT + 1))
A("v_cmp_le_u32 vcc, %d, v%d" % (NENT * 4, vT))
A("s_cbranch_vccnz Lslow")
LB("Lslowdone")
A("s_cmp_lg_u32 s%d, 0" % sLAY)
for i in range(4):
    A("s_waitcnt lgkmcnt(%d)" % (6 - 2 * i))
    A("v_pk_add_f32 %s, %s, %s" % (vr(X + 2 * i, 2), vr(X + 2 * i, 2), vr(Y + 2 * i, 2)))
for i in range(4):
    A("v_cvt_pk_bf16_f32 v%d, v%d, v%d" % (XR + i, X + 2 * i, X + 2 * i + 1))
STAMP(11)
A("s_cbranch_scc1 Lout")
A("ds_write_b128 v%d, %s offset:%d" % (vXNW, vr(XR, 4), L_X2 - L_XN))
A("s_mov_b32 s%d, 1" % sLAY)
for s, d in [(sOL, O_OFF[1] - O_OFF[0]), (sOS, O_OFF[1] - O_OFF[0]), (sLL, LSE_OFF[1] - LSE_OFF[0]), (sLS, LSE_OFF[1] - LSE_OFF[0]), (sPS, P_L)]:
    A("s_add_u32 s%d, s%d, %d" % (s, s, d))
if DIAG: A("v_mov_b32 v28, v30")
A("s_branch Llnq")

LB("Lfinal")
A("s_cmp_ge_u32 s2, 4")
A("s_cbranch_scc1 Lfin_exit")
C("workgroup b: reduce the 32 head partials of row b, add x2, mixer, store")
soff(sT1, [(2, 15), (sW, 13)], PB + P_L)
A("s_add_u32 s%d, s%d, 4096" % (sT2, sT1))
A("s_mul_i32 s%d, s2, %d" % (sT0, XS))
A("s_lshl_b32 s%d, s%d, 8" % (sT3, sW))
A("s_add_u32 s%d, s%d, s%d" % (sT0, sT0, sT3))
A("s_add_u32 s%d, s%d, %d" % (sT0, sT0, L_X2))
A("v_add_u32 v%d, s%d, v%d" % (vT + 4, sT0, vX1S))
A("s_add_u32 s%d, s%d, %d" % (sT3, sT3, L_XN))
A("v_add_u32 v%d, s%d, v%d" % (vT + 5, sT3, vX1S))
A("ds_read_b64 %s, v%d" % (vr(PM, 2), vT + 4))
A("ds_read_b64 %s, v%d offset:128" % (vr(PM + 2, 2), vT + 4))
A("s_mov_b32 s%d, 0x00ff00ff" % sT4)
A("s_mov_b32 s%d, 0" % sT5)
A("s_waitcnt vmcnt(0) lgkmcnt(0)")
for i in range(4):
    A("v_lshlrev_b32 v%d, 16, v%d" % (PM + 4 + 2 * i, PM + i))
    A("v_and_b32 v%d, 0xffff0000, v%d" % (PM + 5 + 2 * i, PM + i))
def ifin():
    for i in range(8):
        A("buffer_load_dwordx4 %s, v%d, %s, s%d offen offset:%d sc1" % (vr(W + 4 * i, 4), vL16, sr(sWS, 4), sT1 if i < 4 else sT2, 1024 * (i & 3)))
fs = []
for i in range(4):
    fs.append(mf(W + 32, SEL, W + 4 * i, None if i == 0 else W + 32))
    fs.append(mf(W + 36, SEL, W + 16 + 4 * i, None if i == 0 else W + 36))
poll(ifin, range(W, W + 32), vT, spec=fs)
STAMP(9)
NOP(7)
for i in range(8):
    A("v_add_f32_dpp v%d, v%d, v%d row_ror:8 row_mask:0xf bank_mask:0xf" % (W + 32 + i, W + 32 + i, W + 32 + i))
A("s_mov_b64 exec, %s" % sr(sT4, 2))
for i in range(4):
    A("v_pk_add_f32 %s, %s, %s" % (vr(W + 32 + 2 * i, 2), vr(W + 32 + 2 * i, 2), vr(PM + 4 + 2 * i, 2)))
for i in range(4):
    A("v_cvt_pk_bf16_f32 v%d, v%d, v%d" % (W + 32 + i, W + 32 + 2 * i, W + 33 + 2 * i))
A("ds_write_b64 v%d, %s" % (vT + 5, vr(W + 32, 2)))
A("ds_write_b64 v%d, %s offset:128" % (vT + 5, vr(W + 34, 2)))
A("s_mov_b64 exec, -1")
A("s_cmp_lg_u32 s%d, 0" % sW)
A("s_waitcnt lgkmcnt(0)")
A("s_barrier")
A("s_cbranch_scc1 Lfin_exit")
A("ds_read_b128 %s, v%d" % (vr(XR, 4), vXNW))
A("s_waitcnt lgkmcnt(0)")
STAMP(10)
A("s_branch Lmix")
LB("Lout")
A("s_lshl_b32 s%d, s2, 10" % sT0)
A("buffer_store_dwordx4 %s, v%d, %s, s%d offen" % (vr(XR, 4), vL16, sr(sOUT, 4), sT0))
A("s_cmp_lg_u32 s2, 0")
A("s_cbranch_scc1 Lfin_exit")
A("v_mov_b32 v16, s%d" % sTG1)
A("v_mov_b32 v17, %s" % hx(EPO))
A("s_mov_b64 exec, 1")
A("buffer_store_dword v16, v17, %s, 0 offen sc1" % sr(sWS, 4))
A("s_mov_b64 exec, -1")
LB("Lfin_exit")
if DIAG:
    A("s_waitcnt vmcnt(0)")
    STAMP(12)
    soff(sT1, [(2, 10), (sW, 7)], STB)
    A("v_lshlrev_b32 v16, 2, v%d" % vLANE)
    A("s_mov_b64 exec, 0xffff")
    A("buffer_store_dword v28, v16, %s, s%d offen" % (sr(sWS, 4), sT1))
    A("buffer_store_dword v30, v16, %s, s%d offen offset:64" % (sr(sWS, 4), sT1))
    A("s_add_u32 s%d, s%d, 0x40000" % (sT1, sT1))
    A("buffer_store_dword v31, v16, %s, s%d offen" % (sr(sWS, 4), sT1))
LB("Lend")
A("s_endpgm")

LB("Ltab")
C("waves 1..3: gather the g(h) table into LDS")
NTL = -(-NENT * 4 // 3 // 1024)
A("s_sub_u32 s%d, s%d, 1" % (sT1, sW))
A("s_mul_i32 s%d, s%d, %d" % (sT1, sT1, NTL * 1024))
A("s_min_u32 s%d, s%d, %d" % (sT1, sT1, NENT * 4 - NTL * 1024))
A("v_add_u32 v%d, s%d, v%d" % (vT + 4, sT1, vL16))
A("s_add_u32 s%d, s%d, %s" % (sT1, sT1, hx(TB)))
A("s_add_u32 s%d, s%d, 4096" % (sT2, sT1))
def it():
    for i in range(NTL):
        A("buffer_load_dwordx4 %s, v%d, %s, s%d offen offset:%d sc1" % (vr(W + 4 * i, 4), vL16, sr(sWS, 4), sT1 if i < 4 else sT2, 1024 * (i & 3)))
poll(it, range(W, W + 4 * NTL), vT)
for i in range(NTL):
    A("ds_write_b128 v%d, %s offset:%d" % (vT + 4, vr(W + 4 * i, 4), L_TAB + 1024 * i))
A("s_waitcnt lgkmcnt(0)")
lds_arrive(20, vT + 4)
STAMP(9)
A("s_branch Ltabdone")
LB("Ltw")
lds_spin(20, 3, vT + 2)
A("s_branch Ltwd")

LB("Lslow")
C("rare: some h lies outside the table -> evaluate g(h) directly for those lanes")
RW1 = [W + 32 + i for i in range(14)]
RB1 = [PM + i for i in range(14)]
RW2 = [16 + i for i in range(10)] + [W + 46, W + 47, PM + 14, PM + 15]
A("v_lshlrev_b32 v26, 3, v%d" % vLANE)
A("s_load_dword s%d, %s, 0" % (sB2, sr(sB2P, 2)))
for (d4, d2, s) in [([W + 32, W + 36, W + 40], W + 44, sW1), ([PM, PM + 4, PM + 8], PM + 12, sB1)]:
    for k in range(3):
        A("buffer_load_dwordx4 %s, v%d, %s, 0 offen offset:%d" % (vr(d4[k], 4), vL16, sr(s, 4), 1024 * k))
    A("buffer_load_dwordx2 %s, v26, %s, 0 offen offset:3072" % (vr(d2, 2), sr(s, 4)))
A("buffer_load_dwordx4 v[16:19], v%d, %s, 0 offen" % (vL16, sr(sW2, 4)))
A("buffer_load_dwordx4 v[20:23], v%d, %s, 0 offen offset:1024" % (vL16, sr(sW2, 4)))
A("buffer_load_dwordx2 v[24:25], v%d, %s, 0 offen offset:2048" % (vL16, sr(sW2, 4)))
A("buffer_load_dwordx2 %s, v%d, %s, 0 offen offset:2056" % (vr(W + 46, 2), vL16, sr(sW2, 4)))
A("buffer_load_dwordx2 %s, v26, %s, 0 offen offset:3072" % (vr(PM + 14, 2), sr(sW2, 4)))
A("s_waitcnt vmcnt(0) lgkmcnt(0)")
A("s_lshl_b32 s%d, s%d, 16" % (sB2, sB2))
for e in range(8):
    A("v_cmp_le_u32 vcc, %d, v%d" % (NENT * 4, AD + e))
    A("s_mov_b64 %s, vcc" % sr(sH2, 2))
    LB("Lse%d" % e)
    A("s_cmp_eq_u64 %s, 0" % sr(sH2, 2))
    A("s_cbranch_scc1 Lsf%d" % e)
    A("s_ff1_i32_b64 s%d, %s" % (sT0, sr(sH2, 2)))
    A("s_bitset0_b64 %s, s%d" % (sr(sH2, 2), sT0))
    A("s_mov_b32 m0, s%d" % sT0)
    A("v_readlane_b32 s%d, v%d, s%d" % (sH, HB + (e >> 1), sT0))
    if e & 1: A("s_and_b32 s%d, s%d, 0xffff0000" % (sH, sH))
    else: A("s_lshl_b32 s%d, s%d, 16" % (sH, sH))
    A("s_call_b64 %s, Lgev" % sr(sRET, 2))
    A("v_writelane_b32 v%d, s%d, m0" % (Y + e, sY))
    A("s_branch Lse%d" % e)
    LB("Lsf%d" % e)
for i in range(16): A("v_mov_b32 v%d, 0" % (PM + i))
A("s_branch Lslowdone")
LB("Lgev")
a, u, t1, z = RES, RES + 1, RES + 2, RT
A("v_mov_b32 v%d, 0" % a)
A("v_mov_b32 v%d, %s" % (RT + 1, hx(f2u(K0))))
A("v_mov_b32 v%d, %s" % (RT + 2, hx(f2u(K1))))
for p in range(14):
    for hf in range(2):
        def un(d, s):
            if hf == 0: A("v_lshlrev_b32 v%d, 16, v%d" % (d, s))
            else: A("v_and_b32 v%d, 0xffff0000, v%d" % (d, s))
        un(u, RW1[p]); un(t1, RB1[p]); un(z, RW2[p])
        A("v_fma_f32 v%d, v%d, s%d, v%d" % (u, u, sH, t1))
        A("v_mul_f32 v%d, v%d, v%d" % (t1, u, u))
        A("v_fma_f32 v%d, v%d, v%d, v%d" % (t1, t1, RT + 2, RT + 1))
        A("v_mul_f32 v%d, v%d, v%d" % (t1, t1, u))
        A("v_exp_f32 v%d, v%d" % (t1, t1))
        A("v_mul_f32 v%d, v%d, v%d" % (z, z, u))
        A("v_add_f32 v%d, 1.0, v%d" % (t1, t1))
        A("v_rcp_f32 v%d, v%d" % (t1, t1))
        A("s_nop 0")
        A("v_fmac_f32 v%d, v%d, v%d" % (a, z, t1))
A("v_mov_b32 v%d, v%d" % (u, a))
A("s_nop 1")
wave_sum2(a, u, sY, sT1)
A("s_nop 1")
A("v_mov_b32 v%d, s%d" % (a, sY))
A("v_cvt_pk_bf16_f32 v%d, v%d, v%d" % (a, a, a))
A("v_and_b32 v%d, 0xffff0000, v%d" % (a, a))
A("v_add_f32 v%d, s%d, v%d" % (a, sB2, a))
A("v_cvt_pk_bf16_f32 v%d, v%d, v%d" % (a, a, a))
A("v_and_b32 v%d, 0xffff0000, v%d" % (a, a))
A("s_nop 0")
A("v_readfirstlane_b32 s%d, v%d" % (sY, a))
A("s_nop 3")
A("s_setpc_b64 %s" % sr(sRET, 2))

for b in ool: L += b
A("s_endpgm")
L.append(".p2align 8")
L.append(".fill (16640 - (. - %s_kernel)) / 4, 4, 0xBF800000" % NAME)
L.append('''.section .rodata,"a"
.p2align 6
.amdhsa_kernel %s_kernel
  .amdhsa_next_free_vgpr 256
  .amdhsa_next_free_sgpr 102
  .amdhsa_accum_offset 256
  .amdhsa_group_segment_fixed_size 0
  .amdhsa_kernarg_size 104
  .amdhsa_user_sgpr_count 2
  .amdhsa_user_sgpr_kernarg_segment_ptr 1
  .amdhsa_system_sgpr_workgroup_id_x 1
.end_amdhsa_kernel''' % NAME)
open(OUTF, "w").write("\n".join(x for x in L if x is not None) + "\n")
print("wrote", OUTF, "lines", len(L), "LDS", LDS_SZ)
```

```python
import sys, struct, math

NAME = "interleave_layers__sliding_block_cached__mixer_token_mlp__decode"
OUTF = sys.argv[1] if len(sys.argv) > 1 else "cdna_kernels/%s.s" % NAME
DIAG = int(sys.argv[2]) if len(sys.argv) > 2 else 0
OPT = dict(a.split("=") for a in sys.argv[3:])
DEPTH = int(OPT.get("depth", 7))
D0 = int(OPT.get("d0", 2))
D1 = int(OPT.get("d1", 4))
QV = int(OPT.get("qv", 2))
PRET = int(OPT.get("pret", 1))
NOCT = int(OPT.get("noct", 24))
QPOS = int(OPT.get("qpos", 1))
QPOS2 = int(OPT.get("qpos2", 7))

def f2u(x): return struct.unpack("<I", struct.pack("<f", x))[0]
def hx(x): return "0x%08x" % (x & 0xffffffff)

L = []
def A(s): L.append("    " + s)
def LB(s): L.append(s + ":")
def C(s): L.append("    ; " + s)
def vr(a, n): return "v[%d:%d]" % (a, a + n - 1)
def sr(a, n): return "s[%d:%d]" % (a, a + n - 1)
def NOP(n):
    while n > 0:
        k = min(n, 16); A("s_nop %d" % (k - 1)); n -= k

ELO = 132 - NOCT if NOCT == 24 else 130 - NOCT
LO2 = (ELO << 7) * 2
NENT = NOCT * 256
EPW = NENT // 256 // 4 // 2
GRS = 0x20000
O_OFF = [0x0000, 0xC400]; LSE_OFF = [0x8000, 0x14400]; Q1_OFF = 0x8400; X1_OFF = 0x14600
CLRA_PER = 1040
CLRB_OFF = 0x8400; CLRB_PER = 1680
Q0_OFF = 0x18000
EPO = 0x17f00
PB = 0x100000; P_L = 0x20000
TB = 0x140000; FB = 0x148000
QB_DELTA = 0x180000
STB = 0x300000
WS_SZ = 0x400000
L_TAB = 0
L_WQ = 24576; L_K = L_WQ + 16384; L_V = L_K + 32768; L_WO = L_V + 32768
L_XN = L_WO + 16384; XS = 1056
L_X2 = L_XN + 4 * XS
L_FLG = L_X2 + 4 * XS
L_RB = L_K; RBS = 2048 + 64; L_ML = L_K + 4 * RBS
L_QF = L_X2
LDS_SZ = L_FLG + 64
SPIN = 0x40000
K0 = -2.0 * math.sqrt(2.0 / math.pi) * math.log2(math.e)
K1 = K0 * 0.044715
EPS = hx(f2u(1e-5))

sTG1, sTG2 = 0, 1
sW, sJ, sA, sC, sGR, sLAY, sFAST = 3, 4, 5, 6, 7, 8, 9
sT0, sT1, sT2, sT3, sT4, sT5 = 10, 11, 12, 13, 14, 15
sCNT = 16
sQL, sQS, sOL, sOS, sLL, sLS, sPS = 17, 18, 19, 20, 21, 22, 23
sSC, sIT = 24, 25
sSUM, sSQ = 26, 27
sH, sH2, sRET, sMSK = 28, 30, 32, 34
sB2, sY, sXCC, sE = 36, 37, 38, 39
sB2P = 40
sK, sV, sWQ, sWO, sWS, sX, sOUT, sW1, sB1, sW2 = 44, 48, 52, 56, 60, 64, 68, 72, 76, 80
sKO, sKL, sVO, sVL = 84, 85, 86, 87
sPM = 88
sHC, sHT = 84, 85

def STAMP(i):
    if DIAG:
        A("s_memrealtime s[42:43]"); A("s_waitcnt lgkmcnt(0)")
        A("v_writelane_b32 v30, s42, %d" % i)

vLANE = 1
vL16, vQST, vOST, vOLD, vPST, vX1S, vXNW, vXNR, vRBW, vRBR, vMLW, vMLR, vLSE, vZ = range(2, 16)
vT = 16
vWT, vFL = 28, 29
KF, VF, WQF, WOF, SEL, ONES = 32, 64, 96, 112, 176, 180
W = 184
PM = 232
XR = 248
RES = 252

def srd(s, nbytes):
    A("s_mov_b32 s%d, %s" % (s + 2, hx(nbytes))); A("s_mov_b32 s%d, 0x00020000" % (s + 3))

def soff(dst, terms, const):
    first = True
    for (src, sh) in terms:
        if first: A("s_lshl_b32 s%d, s%d, %d" % (dst, src, sh)); first = False
        else:
            A("s_lshl_b32 s%d, s%d, %d" % (sT0, src, sh)); A("s_add_u32 s%d, s%d, s%d" % (dst, dst, sT0))
    if const: A("s_add_u32 s%d, s%d, %s" % (dst, dst, hx(const)))

def wave_sum2(a, b, sa, sb):
    for ctl in ["row_ror:8", "row_ror:4", "row_ror:2", "row_ror:1"]:
        A("v_add_f32_dpp v%d, v%d, v%d %s row_mask:0xf bank_mask:0xf" % (a, a, a, ctl))
        A("v_add_f32_dpp v%d, v%d, v%d %s row_mask:0xf bank_mask:0xf" % (b, b, b, ctl))
        A("s_nop 0")
    for ctl in ["row_bcast:15 row_mask:0xa", "row_bcast:31 row_mask:0xc"]:
        A("v_add_f32_dpp v%d, v%d, v%d %s bank_mask:0xf" % (a, a, a, ctl))
        A("v_add_f32_dpp v%d, v%d, v%d %s bank_mask:0xf" % (b, b, b, ctl))
        A("s_nop 0")
    A("v_readlane_b32 s%d, v%d, 63" % (sa, a))
    A("v_readlane_b32 s%d, v%d, 63" % (sb, b))

def row_stats(x, t, unp):
    A("v_dot2_f32_bf16 v%d, v%d, v%d, 0" % (t, x, ONES))
    A("v_dot2_f32_bf16 v%d, v%d, v%d, 0" % (t + 1, x, x))
    for i in range(1, 4):
        A("v_dot2_f32_bf16 v%d, v%d, v%d, v%d" % (t, x + i, ONES, t))
        A("v_dot2_f32_bf16 v%d, v%d, v%d, v%d" % (t + 1, x + i, x + i, t + 1))
    un = []
    for i in range(4):
        un.append("v_lshlrev_b32 v%d, 16, v%d" % (unp + 2 * i, x + i))
        un.append("v_and_b32 v%d, 0xffff0000, v%d" % (unp + 2 * i + 1, x + i))
    for k in range(3): A(un.pop(0))
    a, b = t, t + 1
    for ctl in ["row_ror:8 row_mask:0xf", "row_ror:4 row_mask:0xf", "row_ror:2 row_mask:0xf", "row_ror:1 row_mask:0xf", "row_bcast:15 row_mask:0xa", "row_bcast:31 row_mask:0xc"]:
        A("v_add_f32_dpp v%d, v%d, v%d %s bank_mask:0xf" % (a, a, a, ctl))
        A("v_add_f32_dpp v%d, v%d, v%d %s bank_mask:0xf" % (b, b, b, ctl))
        A(un.pop(0) if un else "s_nop 0")
    A("v_readlane_b32 s%d, v%d, 63" % (sSUM, a))
    A("v_readlane_b32 s%d, v%d, 63" % (sSQ, b))
    A("s_nop 0")
    A("v_mul_f32 v%d, s%d, v%d" % (t, sSUM, vZ))
    A("v_mul_f32 v%d, s%d, v%d" % (t + 1, sSQ, vZ))
    A("v_fma_f32 v%d, -v%d, v%d, v%d" % (t + 1, t, t, t + 1))
    A("v_max_f32 v%d, 0, v%d" % (t + 1, t + 1))

ool = []
uid = [0]
def maxtree(regs, tmp):
    r = list(regs); out = []
    out.append("v_max3_u32 v%d, v%d, v%d, v%d" % (tmp, r[0], r[1], r[2])); r = r[3:]
    if len(r) >= 5:
        out.append("v_max3_u32 v%d, v%d, v%d, v%d" % (tmp + 1, r[0], r[1], r[2])); r = r[3:]
        d = 0
        while len(r) >= 2:
            out.append("v_max3_u32 v%d, v%d, v%d, v%d" % (tmp + d, tmp + d, r[0], r[1])); r = r[2:]; d ^= 1
        if r: out.append("v_max3_u32 v%d, v%d, v%d, v%d" % (tmp, tmp, tmp + 1, r[0]))
        else: out.append("v_max_u32 v%d, v%d, v%d" % (tmp, tmp, tmp + 1))
    else:
        while len(r) >= 2:
            out.append("v_max3_u32 v%d, v%d, v%d, v%d" % (tmp, tmp, r[0], r[1])); r = r[2:]
        if r: out.append("v_max_u32 v%d, v%d, v%d" % (tmp, tmp, r[0]))
    return out

def poll(issue, regs, tmp, pre_wait=None, spec=None):
    uid[0] += 1; u = uid[0]
    A("s_mov_b32 s%d, %s" % (sCNT, hx(SPIN)))
    LB("Lp%d" % u)
    issue()
    if pre_wait: pre_wait()
    A("s_waitcnt vmcnt(0)")
    mt = maxtree(regs, tmp) + ["v_cmp_eq_u32 vcc, -1, v%d" % tmp]
    spec = list(spec or [])
    ns = len(spec)
    per = -(-len(mt) // ns) if ns else 0
    for s in spec:
        A(s)
        for k in range(per):
            if mt: A(mt.pop(0))
    for m in mt: A(m)
    A("s_cbranch_vccnz Lr%d" % u)
    LB("Ld%d" % u)
    ool.append(["Lr%d:" % u, "    s_sub_u32 s%d, s%d, 1" % (sCNT, sCNT), "    s_cbranch_scc1 Ld%d" % u, "    s_nop 7", "    s_branch Lp%d" % u])

def lds_spin(off, target, tmp, mask=None, sleep=0):
    uid[0] += 1; u = uid[0]
    A("s_mov_b32 s%d, %s" % (sT2, hx(SPIN * 4)))
    LB("Ls%d" % u)
    A("ds_read_b32 v%d, v%d offset:%d" % (tmp, vFL, off))
    A("s_waitcnt lgkmcnt(0)")
    A("v_readfirstlane_b32 s%d, v%d" % (sT1, tmp))
    if mask: A("s_and_b32 s%d, s%d, %d" % (sT0, sT1, mask))
    A("s_cmp_ge_u32 s%d, %d" % (sT0 if mask else sT1, target))
    A("s_cbranch_scc1 Lt%d" % u)
    if sleep: A("s_sleep %d" % sleep)
    A("s_sub_u32 s%d, s%d, 1" % (sT2, sT2))
    A("s_cbranch_scc0 Ls%d" % u)
    LB("Lt%d" % u)

def lds_arrive(off, tmp, val=1):
    if val is not None: A("v_mov_b32 v%d, %d" % (tmp, val))
    A("s_mov_b64 exec, 1")
    A("ds_add_u32 v%d, v%d offset:%d" % (vFL, tmp, off))
    A("s_mov_b64 exec, -1")

def store_local(op, data, vaddr, so):
    uid[0] += 1; u = uid[0]
    A("s_cbranch_scc1 Lw%d" % u)
    A("%s %s, v%d, %s, s%d offen" % (op, data, vaddr, sr(sWS, 4), so))
    LB("Lx%d" % u)
    ool.append(["Lw%d:" % u, "    %s %s, v%d, %s, s%d offen sc1" % (op, data, vaddr, sr(sWS, 4), so), "    s_branch Lx%d" % u])
def fastcmp(): A("s_cmp_eq_u32 s%d, 0" % sFAST)

def mf(d, a, b, c):
    return "v_mfma_f32_16x16x32_bf16 %s, %s, %s, %s" % (vr(d, 4), vr(a, 4), vr(b, 4), "0" if c is None else vr(c, 4))
def mfma(d, a, b, c): A(mf(d, a, b, c))

def tags():
    A("s_add_u32 s%d, s%d, 1" % (sTG1, sE))
    A("s_mul_i32 s%d, s%d, 0x9E3779B1" % (sTG2, sTG1))
    A("s_and_b32 s%d, s%d, -8" % (sTG2, sTG2))

def common_addr():
    A("v_and_b32 v18, 3, v%d" % vLANE)
    A("v_lshlrev_b32 v%d, 12, v17" % vQST)
    A("v_lshrrev_b32 v24, 1, v16")
    A("v_lshl_add_u32 v%d, v24, 8, v%d" % (vQST, vQST))
    A("v_and_b32 v24, 1, v16")
    A("v_lshl_add_u32 v%d, v24, 3, v%d" % (vQST, vQST))
    A("v_lshlrev_b32 v%d, 4, v24" % vLSE)
    A("s_mul_i32 s%d, s%d, %d" % (sT0, sW, XS))
    A("s_add_u32 s%d, s%d, %d" % (sT0, sT0, L_XN))
    A("v_add_u32 v%d, s%d, v%d" % (vXNW, sT0, vL16))
    A("s_lshl_b32 s%d, s%d, 8" % (sT0, sA))
    A("s_add_u32 s%d, s%d, %d" % (sT0, sT0, L_XN))
    A("v_mul_u32_u24 v25, %d, v18" % XS)
    A("v_lshl_add_u32 v25, v16, 4, v25")
    A("v_add_u32 v%d, s%d, v25" % (vXNR, sT0))
    A("v_mov_b32 v%d, %s" % (vZ, hx(f2u(1.0 / 512))))
    for r in range(4): A("v_mov_b32 v%d, 0x3f803f80" % (ONES + r))
    A("s_and_b32 s%d, s%d, 1" % (sT1, sC))
    A("s_lshr_b32 s%d, s%d, 1" % (sT2, sC))
    soff(sQS, [(sT1, 11), (sW, 9), (sA, 6), (sT2, 4)], 0)
    A("v_bfe_u32 v24, v%d, 2, 2" % vLANE)
    A("v_lshl_add_u32 v24, v16, 3, v24")
    A("v_lshlrev_b32 v24, 7, v24")
    A("v_bfe_u32 v25, v%d, 3, 2" % vLANE)
    A("v_lshlrev_b32 v25, 1, v25")
    A("v_bfe_u32 v26, v%d, 1, 1" % vLANE)
    A("v_xor_b32 v25, v25, v26")
    A("v_lshl_add_u32 v24, v25, 4, v24")
    A("v_and_b32 v26, 1, v%d" % vLANE)
    A("v_lshl_add_u32 v%d, v26, 3, v24" % vWT)
    A("s_mov_b32 s%d, 0x000f000f" % sMSK)
    A("s_mov_b32 s%d, 0x000f000f" % (sMSK + 1))
    A("s_mov_b32 s%d, 0" % sLAY)

def wtile_voff(shift, d):
    A("v_lshrrev_b32 v24, 3, v%d" % vLANE)
    A("v_and_b32 v25, 7, v%d" % vLANE)
    A("v_and_b32 v26, 1, v16")
    A("v_lshlrev_b32 v26, 1, v26")
    A("v_xor_b32 v25, v25, v26")
    A("v_lshlrev_b32 v25, 4, v25")
    A("v_lshl_add_u32 v%d, v24, %d, v25" % (d, shift))
    A("v_xor_b32 v%d, 64, v%d" % (d + 1, d))

def wqf_reads():
    A("s_lshl_b32 s%d, s%d, 5" % (sT1, sW))
    A("v_xor_b32 v26, s%d, v%d" % (sT1, vWT))
    for t in range(4):
        for hf in range(2):
            A("ds_read_b64_tr_b16 %s, v26 offset:%d" % (vr(WQF + 4 * t + 2 * hf, 2), L_WQ + 4096 * t + 512 * hf))

def dma(vaddr, srdn, so, lds_s, step_so, flags="nt"):
    A("s_mov_b32 m0, s%d" % lds_s)
    A("s_add_u32 s%d, s%d, 1024" % (lds_s, lds_s))
    A("buffer_load_dwordx4 v%d, %s, s%d offen %s lds" % (vaddr, sr(srdn, 4), so, flags))
    A("s_add_u32 s%d, s%d, %d" % (so, so, step_so))

hdr = open("cdna_kernels/%s.s.ref" % NAME).read().split("; Override launch")[0]
L.append(hdr.rstrip("\n"))
L.append("; @launch grid=(256,1,1) block=(512,1,1) lds=%d" % LDS_SZ)
L.append('.amdgcn_target "amdgcn-amd-amdhsa--gfx950"')
L.append(".text\n.globl %s_kernel\n.p2align 8\n.type %s_kernel,@function\n%s_kernel:" % (NAME, NAME, NAME))
if DIAG: A("s_memrealtime s[42:43]")
A("s_cmp_ge_u32 s2, 256")
A("s_cbranch_scc1 Lend")
if DIAG == 2: A("s_load_dwordx2 s[96:97], s[0:1], 88")
for s, off in [(sW1, 48), (sB1, 56), (sW2, 64), (sWQ, 24), (sK, 8), (sX, 0), (sWS, 96), (sV, 16), (sWO, 32), (sOUT, 80), (sB2P, 72)]:
    A("s_load_dwordx2 %s, s[0:1], %d" % (sr(s, 2), off))
A("v_lshrrev_b32 v18, 6, v0")
A("v_and_b32 v%d, 63, v0" % vLANE)
A("v_mov_b32 v%d, %d" % (vFL, L_FLG))
A("v_readfirstlane_b32 s%d, v18" % sW)
A("v_lshlrev_b32 v%d, 4, v%d" % (vL16, vLANE))
A("v_lshrrev_b32 v16, 4, v%d" % vLANE)
A("v_and_b32 v17, 15, v%d" % vLANE)
A("s_and_b32 s%d, s2, 7" % sJ)
A("s_lshr_b32 s%d, s2, 6" % sA)
A("s_bfe_u32 s%d, s2, 0x30003" % sC)
for i in range(4): A("v_mov_b32 v%d, 0" % (20 + i))
A("ds_write_b128 v%d, v[20:23]" % vFL)
A("ds_write_b128 v%d, v[20:23] offset:16" % vFL)
srd(sWS, WS_SZ)
if DIAG: A("v_mov_b32 v30, 0")
A("s_cmp_ge_u32 s%d, 4" % sW)
A("s_cbranch_scc1 Lhelper")
vKA, vVA = W + 40, W + 44
srd(sK, 1 << 25)
A("v_xor_b32 v18, v17, v16")
A("v_lshlrev_b32 v18, 4, v18")
A("v_lshl_add_u32 v%d, v16, 8, v18" % vKA)
for i in range(1, 4): A("v_xor_b32 v%d, %d, v%d" % (vKA + i, 64 * i, vKA))
soff(sKO, [(sA, 23), (sJ, 20), (sC, 15), (sW, 13)], 3072 * 256)
A("s_add_u32 s%d, s%d, %d" % (sKL, sT0, L_K))
A("s_add_u32 s%d, s%d, %d" % (sVL, sT0, L_V))
A("s_mov_b32 s%d, s%d" % (sVO, sKO))
def kv_issue(i):
    if i < 8: dma(vKA + (i & 3), sK, sKO, sKL, 1024)
    else: dma(vVA + (i & 1), sV, sVO, sVL, 1024)
A("s_waitcnt lgkmcnt(0)")
A("s_barrier")
for i in range(D0): kv_issue(i)
if DIAG: A("v_writelane_b32 v30, s42, 0")
STAMP(10)
A("s_branch Lmain")

LB("Lhelper")
C("---- helper waves: first q projection, then the table of g over bf16 inputs ----")
HW1, HB1, HW2 = 32, 60, 112
hK0, hK1, hONE, hRES = 88, 90, 92, 94
AC = [140, 142]; U = [144, 146]; T_ = [148, 150]; Z = [152, 154]
for s, n in [(sWQ, 1 << 22), (sX, 4096)]: srd(s, n)
A("s_sub_u32 s%d, s%d, 4" % (sW, sW))
wtile_voff(13, 20)
soff(sT4, [(sA, 20), (sW, 18), (sJ, 10), (sC, 7)], 0)
A("s_lshl_b32 s%d, s%d, 12" % (sT2, sW))
A("s_add_u32 s%d, s%d, %d" % (sT2, sT2, L_WQ))
A("s_lshl_b32 s%d, s%d, 10" % (sT3, sW))
A("v_mov_b32 v22, %s" % hx(EPO))
A("v_mov_b32 v23, 0")
A("s_waitcnt lgkmcnt(0)")
A("s_barrier")
A("buffer_load_dwordx4 %s, v%d, %s, s%d offen" % (vr(XR, 4), vL16, sr(sX, 4), sT3))
for i in range(4): dma(20 + (i & 1), sWQ, sT4, sT2, 0x10000)
A("buffer_load_dword v%d, v22, %s, 0 offen" % (RES, sr(sWS, 4)))
A("global_load_ushort v%d, v23, %s" % (RES + 1, sr(sB2P, 2)))
if DIAG: A("v_writelane_b32 v30, s42, 0")
STAMP(9)
A("s_lshl_b32 s%d, s%d, 17" % (sGR, sJ))
A("s_lshl_b32 s%d, s2, 2" % sHC)
A("s_add_u32 s%d, s%d, s%d" % (sHC, sHC, sW))
A("s_mul_i32 s%d, s%d, %d" % (sHC, sHC, EPW))
A("s_lshl_b32 s%d, s%d, 3" % (sHT, sHC))
A("s_add_u32 s%d, s%d, %s" % (sHT, sHT, hx(TB)))
A("s_add_u32 s%d, s%d, %d" % (sHC, sHC, ELO * 128))
A("s_lshl_b32 s%d, s%d, 16" % (sHC, sHC))
A("v_lshlrev_b32 v27, 2, v%d" % vLANE)
common_addr()
A("s_lshl_b32 s%d, s%d, 1" % (sQS, sQS))
A("s_add_u32 s%d, s%d, s%d" % (sQS, sQS, sGR))
A("s_add_u32 s%d, s%d, %s" % (sQS, sQS, hx(Q0_OFF)))
A("v_lshlrev_b32 v%d, 1, v%d" % (vQST, vQST))
A("s_getreg_b32 s%d, hwreg(HW_REG_XCC_ID, 0, 3)" % sXCC)
for r, c in [(hK0, K0), (hK1, K1), (hONE, 1.0)]:
    A("v_mov_b32 v%d, %s" % (r, hx(f2u(c)))); A("v_mov_b32 v%d, %s" % (r + 1, hx(f2u(c))))
A("v_mov_b32 v%d, 0" % hRES)
A("s_mov_b32 s%d, 0" % sIT)
for s, n in [(sW1, 3584), (sB1, 3584), (sW2, 3584)]: srd(s, n)
A("s_mov_b32 m0, s%d" % sT3)
A("s_waitcnt vmcnt(6)")
for i, sd in enumerate([sW1, sB1, sW2]):
    A("buffer_load_dwordx4 v%d, %s, s%d offen lds" % (vL16, sr(sd, 4), sT3))
    if i < 2:
        A("s_add_u32 m0, m0, 4096"); A("s_nop 0")
STAMP(1)
A("s_branch Llnq")
LB("Lq_first")
A("s_waitcnt vmcnt(3) lgkmcnt(0)")
STAMP(2)
lds_arrive(0, vT + 4)
A("v_readfirstlane_b32 s%d, v%d" % (sE, RES))
A("v_readfirstlane_b32 s%d, v%d" % (sB2, RES + 1))
tags()
A("s_or_b32 s%d, s%d, s%d" % (sXCC, sXCC, sTG2))
A("s_lshl_b32 s%d, s%d, 16" % (sB2, sB2))
C("4 helper arrivals (wq tile, xn rows) + 4 main arrivals (coefficients landed, sentinels acknowledged)")
lds_spin(0, 8, vT + 4)
wqf_reads()
A("s_waitcnt lgkmcnt(0)")
A("s_branch Lq_go")
LB("Lh_qst")
A("v_mov_b32 v%d, s%d" % (W + 6, sTG1))
A("v_mov_b32 v%d, s%d" % (W + 7, sXCC))
A("buffer_store_dwordx4 %s, v%d, %s, s%d offen" % (vr(W + 4, 4), vQST, sr(sWS, 4), sQS))
A("s_add_u32 s%d, s%d, %s" % (sQS, sQS, hx(QB_DELTA)))
A("buffer_store_dwordx4 %s, v%d, %s, s%d offen sc1" % (vr(W + 4, 4), vQST, sr(sWS, 4), sQS))
A("s_mov_b64 exec, -1")
HR = W + 8
STAMP(3)
A("v_lshlrev_b32 v26, 3, v%d" % vLANE)
A("s_waitcnt vmcnt(2)")
lds_arrive(24, 24)
lds_spin(24, 4, 24)
for a_ in range(3):
    for k in range(3):
        A("ds_read_b128 %s, v%d offset:%d" % (vr(HR + 14 * a_ + 4 * k, 4), vL16, 4096 * a_ + 1024 * k))
    A("ds_read_b64 %s, v26 offset:%d" % (vr(HR + 14 * a_ + 12, 2), 4096 * a_ + 3072))
for a_, d in [(0, HW1), (14, HB1), (28, HW2)]:
    A("s_waitcnt lgkmcnt(%d)" % (8 - 4 * (a_ // 14)))
    for p in range(14):
        A("v_lshlrev_b32 v%d, 16, v%d" % (d + 2 * p, HR + a_ + p))
        A("v_and_b32 v%d, 0xffff0000, v%d" % (d + 2 * p + 1, HR + a_ + p))
STAMP(4)
LB("Lhl")
A("s_mov_b32 s%d, s%d" % (sH, sHC)); A("s_mov_b32 s%d, s%d" % (sH + 1, sHC))
A("s_xor_b32 s%d, s%d, 0x80000000" % (sH2, sHC)); A("s_mov_b32 s%d, s%d" % (sH2 + 1, sH2))
for p in range(14):
    for sg in range(2):
        A("v_pk_fma_f32 %s, %s, %s, %s" % (vr(U[sg], 2), vr(HW1 + 2 * p, 2), sr([sH, sH2][sg], 2), vr(HB1 + 2 * p, 2)))
    for sg in range(2): A("v_pk_mul_f32 %s, %s, %s" % (vr(T_[sg], 2), vr(U[sg], 2), vr(U[sg], 2)))
    for sg in range(2): A("v_pk_fma_f32 %s, %s, %s, %s" % (vr(T_[sg], 2), vr(T_[sg], 2), vr(hK1, 2), vr(hK0, 2)))
    for sg in range(2): A("v_pk_mul_f32 %s, %s, %s" % (vr(T_[sg], 2), vr(T_[sg], 2), vr(U[sg], 2)))
    for sg in range(2): A("v_pk_mul_f32 %s, %s, %s" % (vr(Z[sg], 2), vr(U[sg], 2), vr(HW2 + 2 * p, 2)))
    for sg in range(2):
        for h in range(2): A("v_exp_f32 v%d, v%d" % (T_[sg] + h, T_[sg] + h))
    for sg in range(2): A("v_pk_add_f32 %s, %s, %s" % (vr(T_[sg], 2), vr(T_[sg], 2), vr(hONE, 2)))
    for sg in range(2):
        for h in range(2): A("v_rcp_f32 v%d, v%d" % (T_[sg] + h, T_[sg] + h))
    for sg in range(2):
        if p == 0: A("v_pk_mul_f32 %s, %s, %s" % (vr(AC[sg], 2), vr(Z[sg], 2), vr(T_[sg], 2)))
        else: A("v_pk_fma_f32 %s, %s, %s, %s" % (vr(AC[sg], 2), vr(Z[sg], 2), vr(T_[sg], 2), vr(AC[sg], 2)))
A("v_add_f32 v%d, v%d, v%d" % (AC[0], AC[0], AC[0] + 1))
A("v_add_f32 v%d, v%d, v%d" % (AC[1], AC[1], AC[1] + 1))
A("s_lshl_b32 m0, s%d, 1" % sIT)
A("s_add_u32 s%d, s%d, 0x10000" % (sHC, sHC))
wave_sum2(AC[0], AC[1], sSUM, sSQ)
A("s_add_u32 s%d, s%d, 1" % (sIT, sIT))
A("s_nop 0")
A("v_writelane_b32 v%d, s%d, m0" % (hRES, sSUM))
A("s_add_u32 m0, m0, 1")
A("s_cmp_lg_u32 s%d, %d" % (sIT, EPW))
A("v_writelane_b32 v%d, s%d, m0" % (hRES, sSQ))
A("s_cbranch_scc1 Lhl")
A("v_cvt_pk_bf16_f32 v%d, v%d, v%d" % (hRES, hRES, hRES))
A("v_and_b32 v%d, 0xffff0000, v%d" % (hRES, hRES))
A("v_add_f32 v%d, s%d, v%d" % (hRES, sB2, hRES))
A("v_cvt_pk_bf16_f32 v%d, v%d, v%d" % (hRES, hRES, hRES))
A("v_and_b32 v%d, 0xffff0000, v%d" % (hRES, hRES))
A("s_bfm_b64 exec, %d, 0" % (2 * EPW))
A("buffer_store_dword v%d, v27, %s, s%d offen sc1" % (hRES, sr(sWS, 4), sHT))
A("s_mov_b64 exec, -1")
STAMP(7)
if DIAG:
    A("s_add_u32 s%d, s%d, 4" % (sW, sW))
    A("v_mov_b32 v28, v30")
    A("s_branch Lfin_exit")
A("s_endpgm")

LB("Lmain")
for i in range(4): A("v_mov_b32 v%d, -1" % (W + i))
A("s_lshl_b32 s%d, s%d, 17" % (sGR, sJ))
A("s_lshr_b32 s%d, s2, 3" % sT1)
A("v_lshlrev_b32 v19, 7, v%d" % vLANE)
A("s_cmp_ge_u32 s%d, 2" % sW)
A("s_cbranch_scc1 Lm_pf")
C("wave 0: 1024 B of early sentinels ; wave 1: the last 16 B and the table slots")
A("s_mul_i32 s%d, s%d, %d" % (sT5, sT1, CLRA_PER))
A("s_add_u32 s%d, s%d, s%d" % (sT5, sT5, sGR))
A("s_lshl_b32 s%d, s%d, 10" % (sT0, sW))
A("s_add_u32 s%d, s%d, s%d" % (sT5, sT5, sT0))
A("s_cmp_eq_u32 s%d, 0" % sW)
A("s_cselect_b64 exec, -1, 1")
A("buffer_store_dwordx4 %s, v%d, %s, s%d offen sc1" % (vr(W, 4), vL16, sr(sWS, 4), sT5))
A("s_mul_i32 s%d, s2, %d" % (sT4, NENT * 4 // 256))
A("s_add_u32 s%d, s%d, %s" % (sT4, sT4, hx(TB)))
A("s_cselect_b64 exec, 0, %d" % ((1 << (NENT * 4 // 256 // 16)) - 1)) if False else None
A("s_cmp_eq_u32 s%d, 0" % sW)
A("s_cbranch_scc1 Lm_go")
A("s_bfm_b64 exec, %d, 0" % (NENT * 4 // 256 // 16))
A("buffer_store_dwordx4 %s, v%d, %s, s%d offen sc1" % (vr(W, 4), vL16, sr(sWS, 4), sT4))
A("s_branch Lm_go")
LB("Lm_pf")
C("waves 2,3: each workgroup pulls a slice of the shared lines into its L2: code / mixer coefficients")
A("s_getpc_b64 s[12:13]")
LB("Lpc0")
A("s_sub_u32 s12, s12, Lpc0-%s_kernel" % NAME)
A("s_subb_u32 s13, s13, 0")
A("s_cmp_eq_u32 s%d, 3" % sW)
A("s_cbranch_scc1 Lm_pc")
A("s_lshl_b32 s%d, s%d, 9" % (sT0, sT1))
A("v_add_u32 v19, s%d, v19" % sT0)
A("s_mov_b64 exec, 15")
A("global_load_dword v%d, v19, s[12:13]" % (W + 8))
A("s_branch Lm_go")
LB("Lm_pc")
A("s_min_u32 s%d, s%d, 27" % (sT0, sT1))
A("s_lshl_b32 s%d, s%d, 7" % (sT0, sT0))
A("v_mov_b32 v19, s%d" % sT0)
A("s_mov_b64 exec, 1")
for k, sd in enumerate([sW1, sB1, sW2]): A("global_load_dword v%d, v19, %s" % (W + 8 + k, sr(sd, 2)))
LB("Lm_go")
A("s_mov_b64 exec, -1")
A("v_mov_b32 v22, %s" % hx(EPO))
A("buffer_load_dword v%d, v22, %s, 0 offen" % (RES, sr(sWS, 4)))
STAMP(11)
for s, n in [(sV, 1 << 25), (sX, 4096), (sWO, 1 << 22), (sOUT, 4096), (sW1, 3584), (sB1, 3584), (sW2, 3584)]: srd(s, n)
A("v_lshlrev_b32 v18, 1, v16")
A("v_xor_b32 v18, v17, v18")
A("v_lshlrev_b32 v18, 4, v18")
A("v_lshl_add_u32 v%d, v16, 8, v18" % vVA)
A("v_xor_b32 v%d, 128, v%d" % (vVA + 1, vVA))
for i in range(D0, D1): kv_issue(i)
common_addr()
A("s_add_u32 s%d, s%d, s%d" % (sQS, sQS, sGR))
A("s_add_u32 s%d, s%d, %d" % (sQS, sQS, Q1_OFF))
wtile_voff(10, 22)
A("v_and_b32 v19, 7, v%d" % vLANE)
A("v_lshrrev_b32 v25, 2, v%d" % vLANE)
A("v_lshlrev_b32 v25, 7, v25")
A("v_lshl_add_u32 v%d, v18, 2, v25" % vOST)
A("v_lshlrev_b32 v25, 7, v16")
A("v_lshl_add_u32 v%d, v19, 4, v25" % vOLD)
A("v_lshlrev_b32 v%d, 1, v%d" % (vPST, vLANE))
A("v_lshlrev_b32 v25, 3, v16")
A("v_lshl_add_u32 v%d, v19, 4, v25" % vX1S)
A("s_mul_i32 s%d, s%d, %d" % (sT0, sW, RBS))
A("s_add_u32 s%d, s%d, %d" % (sT0, sT0, L_RB))
A("v_mul_u32_u24 v25, 528, v18")
A("v_lshl_add_u32 v25, v16, 4, v25")
A("v_lshrrev_b32 v26, 2, v17")
A("v_lshl_add_u32 v25, v26, 7, v25")
A("v_add_u32 v%d, s%d, v25" % (vRBW, sT0))
A("s_mul_i32 s%d, s%d, 528" % (sT0, sW))
A("s_add_u32 s%d, s%d, %d" % (sT0, sT0, L_RB))
A("v_lshlrev_b32 v25, 3, v%d" % vLANE)
A("v_add_u32 v%d, s%d, v25" % (vRBR, sT0))
A("s_lshl_b32 s%d, s%d, 3" % (sT0, sW))
A("s_add_u32 s%d, s%d, %d" % (sT0, sT0, L_ML))
A("v_lshlrev_b32 v25, 5, v18")
A("v_add_u32 v%d, s%d, v25" % (vMLW, sT0))
A("s_lshl_b32 s%d, s%d, 5" % (sT0, sW))
A("s_add_u32 s%d, s%d, %d" % (sT0, sT0, L_ML))
A("v_mov_b32 v%d, s%d" % (vMLR, sT0))
A("v_mov_b32 v25, 0x3f80")
A("v_mov_b32 v26, 0x3f800000")
for r in range(4):
    A("v_cmp_eq_u32 vcc, %d, v17" % (2 * r))
    A("v_cmp_eq_u32 %s, %d, v17" % (sr(sH, 2), 2 * r + 1))
    A("s_nop 0")
    A("v_cndmask_b32 v%d, 0, v25, vcc" % (SEL + r))
    A("v_cndmask_b32 v%d, v%d, v26, %s" % (SEL + r, SEL + r, sr(sH, 2)))
for i in range(16): A("v_mov_b32 v%d, 0" % (PM + i))
for p in range(4):
    A("s_mov_b32 s%d, %s" % (sPM + 2 * p, hx(0x000f000f << (4 * p))))
    A("s_mov_b32 s%d, %s" % (sPM + 2 * p + 1, hx(0x000f000f << (4 * p))))
soff(sOS, [(sW, 13), (sA, 11), (sC, 4), (sJ, 17)], O_OFF[0])
soff(sOL, [(sA, 13), (sW, 11), (sJ, 17)], O_OFF[0])
A("s_add_u32 s%d, s%d, %s" % (sQL, sOL, hx(Q0_OFF - O_OFF[0])))
soff(sLS, [(sW, 7), (sA, 5), (sC, 2), (sJ, 17)], LSE_OFF[0])
soff(sLL, [(sA, 7), (sW, 5), (sJ, 17)], LSE_OFF[0])
soff(sPS, [(sW, 15), (sC, 12), (sJ, 9), (sA, 7)], PB)
A("s_mov_b32 s%d, %s" % (sSC, hx(f2u(128 ** -0.5 * math.log2(math.e)))))
A("s_getreg_b32 s%d, hwreg(HW_REG_XCC_ID, 0, 3)" % sXCC)
A("v_xor_b32 v24, v16, v17")
A("v_lshlrev_b32 v24, 4, v24")
A("v_lshl_add_u32 v24, v17, 8, v24")
A("s_lshl_b32 s%d, s%d, 13" % (sT1, sW))
A("s_add_u32 s%d, s%d, %d" % (sT2, sT1, L_K))
for t in range(4): A("v_xor_b32 v%d, %d, v24" % (18 + t, 64 * t))
for t in range(4): A("v_add_u32 v%d, s%d, v%d" % (18 + t, sT2, 18 + t))
VA = W + 32
A("v_lshrrev_b32 v24, 2, v%d" % vLANE)
A("v_and_b32 v25, 7, v24")
A("v_lshlrev_b32 v25, 1, v25")
A("v_bfe_u32 v26, v%d, 1, 1" % vLANE)
A("v_xor_b32 v25, v25, v26")
A("v_lshlrev_b32 v25, 4, v25")
A("v_lshl_add_u32 v25, v24, 8, v25")
A("v_and_b32 v26, 1, v%d" % vLANE)
A("v_lshl_add_u32 v25, v26, 3, v25")
A("s_add_u32 s%d, s%d, %d" % (sT2, sT1, L_V))
for t in range(8): A("v_xor_b32 v%d, %d, v25" % (VA + t, 32 * t))
for t in range(8): A("v_add_u32 v%d, s%d, v%d" % (VA + t, sT2, VA + t))
soff(sT4, [(sJ, 19), (sA, 17), (sW, 15), (sC, 7)], 0)
A("s_lshl_b32 s%d, s%d, 12" % (sT5, sW))
A("s_add_u32 s%d, s%d, %d" % (sT5, sT5, L_WO))
soff(sT3, [(sA, 10), (sC, 7)], 0)
A("v_lshlrev_b32 v24, 5, v%d" % vLANE)
A("s_lshl_b32 s%d, s%d, 10" % (sT2, sW))
A("s_add_u32 s%d, s%d, %d" % (sT2, sT2, L_QF))
A("v_add_u32 v25, s%d, v%d" % (sT2, vL16))
A("v_add_u32 v26, %d, v%d" % (L_QF, vL16))
STAMP(12)
if DIAG: A("v_mov_b32 v31, v30")
C("early traffic done -> tell the helpers")
A("s_waitcnt vmcnt(%d)" % (D1 - D0))
lds_arrive(0, vT)
A("v_readfirstlane_b32 s%d, v%d" % (sE, RES))
tags()
A("s_or_b32 s%d, s%d, s%d" % (sXCC, sXCC, sTG2))
QP = W
def q0_issue():
    A("buffer_load_dwordx4 %s, v24, %s, s%d offen sc1" % (vr(QP, 4), sr(sWS, 4), sQL))
    A("buffer_load_dwordx4 %s, v24, %s, s%d offen offset:16 sc1" % (vr(QP + 4, 4), sr(sWS, 4), sQL))
C("late sentinels: wave 0,1: group region ; wave 2: P chunk")
A("s_lshr_b32 s%d, s2, 3" % sT1)
A("s_mul_i32 s%d, s%d, %d" % (sT1, sT1, CLRB_PER))
A("s_lshl_b32 s%d, s%d, 10" % (sT0, sW))
A("s_add_u32 s%d, s%d, s%d" % (sT1, sT1, sT0))
A("s_add_u32 s%d, s%d, s%d" % (sT1, sT1, sGR))
A("s_add_u32 s%d, s%d, %d" % (sT1, sT1, CLRB_OFF))
A("s_lshl_b32 s%d, s2, 10" % sT0)
A("s_add_u32 s%d, s%d, %s" % (sT0, sT0, hx(PB)))
A("s_cmp_ge_u32 s%d, 2" % sW)
A("s_cselect_b32 s%d, s%d, s%d" % (sT1, sT0, sT1))
A("s_bfm_b64 %s, %d, 0" % (sr(sH, 2), (CLRB_PER - 1024) // 16))
A("s_cmp_eq_u32 s%d, 1" % sW)
A("s_cselect_b64 %s, %s, -1" % (sr(sH, 2), sr(sH, 2)))
A("s_cmp_eq_u32 s%d, 3" % sW)
A("s_cselect_b64 exec, 1, %s" % sr(sH, 2))
A("buffer_store_dwordx4 %s, v%d, %s, s%d offen sc1" % (vr(W, 4), vL16, sr(sWS, 4), sT1))
A("s_mov_b64 exec, -1")
LATE_DONE = D1 + DEPTH
assert LATE_DONE + 1 < 16 - QV or QV == 0 and LATE_DONE + 1 < 16
for i in range(D1, 16):
    if i == 16 - QV: q0_issue()
    if i >= DEPTH: A("s_waitcnt vmcnt(%d)" % (DEPTH - 1 + (2 if i >= 16 - QV else 0)))
    if i == LATE_DONE: lds_arrive(8, vT)
    if i == LATE_DONE + 1:
        A("s_cmp_lg_u32 s%d, 0" % sW)
        A("s_cbranch_scc1 Lnoflag")
        C("every sentinel store of this workgroup is acknowledged: announce it")
        lds_spin(8, 4, vT)
        A("v_mov_b32 v16, s%d" % sTG1)
        A("v_mov_b32 v17, s%d" % sXCC)
        soff(sT1, [(2, 4)], FB)
        A("v_mov_b32 v27, 0")
        A("s_mov_b64 exec, 1")
        A("buffer_store_dwordx2 v[16:17], v27, %s, s%d offen sc1" % (sr(sWS, 4), sT1))
        A("s_mov_b64 exec, -1")
        LB("Lnoflag")
    kv_issue(i)
if QV == 0: q0_issue()
STAMP(1)
A("s_waitcnt vmcnt(%d)" % 10)
for t in range(4):
    for T in range(2):
        A("ds_read_b128 %s, v%d offset:%d" % (vr(KF + 16 * T + 4 * t, 4), 18 + t, 4096 * T))
A("s_waitcnt vmcnt(%d)" % QV)
STAMP(2)
A("s_setprio 2")
A("s_mov_b32 s%d, %s" % (sCNT, hx(SPIN)))
LB("Lmq")
A("v_and_b32 v16, -8, v%d" % (QP + 3))
A("v_and_b32 v17, -8, v%d" % (QP + 7))
A("v_cmp_ne_u32 vcc, s%d, v%d" % (sTG1, QP + 2))
A("v_cmp_ne_u32 %s, s%d, v%d" % (sr(sRET, 2), sTG1, QP + 6))
A("s_or_b64 vcc, vcc, %s" % sr(sRET, 2))
A("v_cmp_ne_u32 %s, s%d, v16" % (sr(sRET, 2), sTG2))
A("s_or_b64 vcc, vcc, %s" % sr(sRET, 2))
A("v_cmp_ne_u32 %s, s%d, v17" % (sr(sRET, 2), sTG2))
A("s_or_b64 vcc, vcc, %s" % sr(sRET, 2))
A("s_cbranch_vccnz Lmqr")
LB("Lmqd")
Ls = L; L = []
LB("Lmqr")
C("not there yet: poll the plain copy a few times, then the write-through copy")
A("s_cmp_eq_u32 s%d, %s" % (sCNT, hx(SPIN - 8)))
A("s_cselect_b32 s%d, %s, 0" % (sT0, hx(QB_DELTA)))
A("s_add_u32 s%d, s%d, s%d" % (sQL, sQL, sT0))
q0_issue()
A("s_waitcnt vmcnt(0)")
A("s_sub_u32 s%d, s%d, 1" % (sCNT, sCNT))
A("s_cbranch_scc0 Lmq")
A("s_branch Lmqd")
ool.append(L); L = Ls
A("v_cmp_ne_u32 vcc, s%d, v%d" % (sXCC, QP + 3))
A("v_mov_b32 v%d, v%d" % (QP + 2, QP + 4))
A("v_mov_b32 v%d, v%d" % (QP + 3, QP + 5))
A("ds_write_b128 v25, %s" % vr(QP, 4))
A("s_cmp_eq_u64 vcc, 0")
A("s_cselect_b32 s%d, 1, 0x101" % sT0)
A("v_mov_b32 v16, s%d" % sT0)
A("s_waitcnt lgkmcnt(0)")
lds_arrive(4, 16, None)
STAMP(15)
for i in range(4): dma(22 + (i & 1), sWO, sT4, sT5, 0x2000)
A("buffer_load_dwordx2 %s, v%d, %s, s%d offen" % (vr(RES + 2, 2), vX1S, sr(sX, 4), sT3))
FLG = W + 44
soff(sT5, [(sW, 10)], FB)
soff(sQL, [(sA, 12), (sJ, 17)], Q1_OFF)
lds_spin(4, 4, vT, mask=0xff)
A("s_cmp_lt_u32 s%d, 256" % sT1)
A("s_cselect_b32 s%d, 1, 0" % sFAST)
QF = W + 16
for t in range(4):
    A("ds_read_b128 %s, v26 offset:%d" % (vr(QF + 4 * t, 4), 1024 * t))
A("buffer_load_dwordx4 %s, v%d, %s, s%d offen sc1" % (vr(FLG, 4), vL16, sr(sWS, 4), sT5))
if PRET:
    C("bring the (cleared) group mailbox lines into L2")
    A("s_lshr_b32 s%d, s2, 3" % sT5)
    A("s_lshl_b32 s%d, s%d, 2" % (sT5, sT5))
    A("s_add_u32 s%d, s%d, s%d" % (sT5, sT5, sW))
    A("s_mul_i32 s%d, s%d, 768" % (sT5, sT5))
    A("s_add_u32 s%d, s%d, s%d" % (sT5, sT5, sGR))
    A("v_lshlrev_b32 v27, 7, v%d" % vLANE)
    A("s_mov_b64 exec, 63")
    A("buffer_load_dword v%d, v27, %s, s%d offen sc1" % (W + 40, sr(sWS, 4), sT5))
    A("s_mov_b64 exec, -1")
S = W
qk = []
for t in range(4):
    for T in range(2):
        qk.append(mf(S + 4 * T, KF + 16 * T + 4 * t, QF + 4 * t, None if t == 0 else S + 4 * T))
for t in range(4):
    A("s_waitcnt lgkmcnt(%d)" % (3 - t))
    A(qk[2 * t]); A(qk[2 * t + 1])
STAMP(3)
A("s_branch Lk_go")

LB("Llnq")
C("LayerNorm of the row held in XR, then q partial = xn @ wq tile")
X = W
row_stats(XR, vT, X)
A("v_add_f32 v%d, %s, v%d" % (vT + 1, EPS, vT + 1))
A("v_rsq_f32 v%d, v%d" % (vT + 2, vT + 1))
A("s_cmp_eq_u32 s%d, 0" % sLAY)
A("v_mul_f32 v%d, v%d, v%d" % (vT + 3, vT, vT + 2))
for i in range(4):
    A("v_pk_fma_f32 %s, %s, %s, %s op_sel:[0,0,1] op_sel_hi:[1,0,1] neg_lo:[0,0,1] neg_hi:[0,0,1]" % (vr(X + 2 * i, 2), vr(X + 2 * i, 2), vr(vT + 2, 2), vr(vT + 2, 2)))
for i in range(4):
    A("v_cvt_pk_bf16_f32 v%d, v%d, v%d" % (X + 8 + i, X + 2 * i, X + 2 * i + 1))
A("ds_write_b128 v%d, %s" % (vXNW, vr(X + 8, 4)))
A("s_cbranch_scc1 Lq_first")
A("s_waitcnt lgkmcnt(0)")
A("s_barrier")
LB("Lq_go")
BF = W + 16
for t in range(4):
    A("ds_read_b128 %s, v%d offset:%d" % (vr(BF + 4 * t, 4), vXNR, 64 * t))
for t in range(4):
    A("s_waitcnt lgkmcnt(%d)" % (3 - t))
    mfma(W, WQF + 4 * t, BF + 4 * t, None if t == 0 else W)
A("s_cmp_eq_u32 s%d, 0" % sLAY)
A("s_mov_b64 exec, %s" % sr(sMSK, 2))
NOP(6)
A("v_cvt_pk_bf16_f32 v%d, v%d, v%d" % (W + 4, W, W + 1))
A("v_cvt_pk_bf16_f32 v%d, v%d, v%d" % (W + 5, W + 2, W + 3))
A("s_cbranch_scc1 Lh_qst")
fastcmp()
store_local("buffer_store_dwordx2", vr(W + 4, 2), vQST, sQS)
A("s_mov_b64 exec, -1")
STAMP(2)

C("attention over this workgroup's 128 keys")
def iq():
    for t in range(4):
        A("buffer_load_dwordx4 %s, v%d, %s, s%d offen offset:%d sc1" % (vr(QF + 4 * t, 4), vL16, sr(sWS, 4), sQL, 1024 * t))
poll(iq, range(QF, QF + 16), vT, spec=qk)
STAMP(3)
LB("Lk_go")
NOP(7)
for ctl in ["row_ror:4", "row_ror:8"]:
    for i in range(8):
        A("v_add_f32_dpp v%d, v%d, v%d %s row_mask:0xf bank_mask:0xf" % (S + i, S + i, S + i, ctl))
A("v_max3_f32 v%d, v%d, v%d, v%d" % (vT, S, S + 1, S + 2))
A("v_max3_f32 v%d, v%d, v%d, v%d" % (vT + 1, S + 3, S + 4, S + 5))
A("v_max3_f32 v%d, v%d, v%d, v%d" % (vT, vT, S + 6, S + 7))
A("v_max_f32 v%d, v%d, v%d" % (vT, vT, vT + 1))
A("v_mov_b32 v%d, v%d" % (vT + 1, vT))
A("s_nop 1")
A("v_permlane16_swap_b32 v%d, v%d" % (vT, vT + 1))
A("v_max_f32 v%d, v%d, v%d" % (vT, vT, vT + 1))
A("v_mov_b32 v%d, v%d" % (vT + 1, vT))
A("s_nop 1")
A("v_permlane32_swap_b32 v%d, v%d" % (vT, vT + 1))
A("v_max_f32 v%d, v%d, v%d" % (vT, vT, vT + 1))
A("v_mul_f32 v%d, s%d, v%d" % (vT + 2, sSC, vT))
for i in range(8):
    A("v_fma_f32 v%d, v%d, s%d, -v%d" % (S + i, S + i, sSC, vT + 2))
for i in range(8):
    A("v_exp_f32 v%d, v%d" % (S + i, S + i))
for p in range(4):
    A("s_mov_b64 exec, %s" % sr(sPM + 2 * p, 2))
    for i in range(4):
        A("v_cvt_pk_bf16_f32 v%d, v%d, v%d" % (PM + 4 * p + i, S + 2 * i, S + 2 * i + 1))
A("s_mov_b64 exec, -1")
STAMP(4)
A("s_cmp_lg_u32 s%d, 0" % sLAY)
A("s_cbranch_scc1 Lv_go")
A("s_waitcnt vmcnt(%d)" % (6 + PRET))
STAMP(6)
for t in range(8):
    for hf in range(2):
        A("ds_read_b64_tr_b16 %s, v%d offset:%d" % (vr(VF + 4 * t + 2 * hf, 2), VA + t, 4096 * hf))
A("s_waitcnt lgkmcnt(0)")
LB("Lv_go")
OA = W + 8
mfma(W + 16, ONES, PM, None)
for p in range(4):
    for T in range(2):
        mfma(OA + 4 * T, VF + 4 * (2 * p + T), PM + 4 * p, None if p == 0 else OA + 4 * T)
A("s_mov_b64 exec, %s" % sr(sMSK, 2))
A("v_mov_b32 v%d, v%d" % (vT + 3, W + 16))
A("ds_write_b64 v%d, %s" % (vMLW, vr(vT + 2, 2)))
A("s_mov_b64 exec, -1")
NOP(3)
A("ds_write_b128 v%d, %s" % (vRBW, vr(OA, 4)))
A("ds_write_b128 v%d, %s offset:64" % (vRBW, vr(OA + 4, 4)))
A("s_waitcnt lgkmcnt(0)")
A("s_cbranch_scc1 Lrb_bar")
lds_arrive(12, vT + 4)
lds_spin(12, 4, vT + 4)
A("s_branch Lrb_go")
LB("Lrb_bar")
A("s_barrier")
LB("Lrb_go")
A("ds_read_b128 %s, v%d" % (vr(W, 4), vMLR))
A("ds_read_b128 %s, v%d offset:16" % (vr(W + 4, 4), vMLR))
for w in range(4):
    A("ds_read_b64 %s, v%d offset:%d" % (vr(W + 8 + 2 * w, 2), vRBR, RBS * w))
A("v_mov_b32 v%d, 0" % (vT + 4))
A("v_xor_b32 v%d, 16, v%d" % (vT + 6, vLSE))
fastcmp()
A("s_waitcnt lgkmcnt(4)")
A("v_max3_f32 v%d, v%d, v%d, v%d" % (vT, W, W + 2, W + 4))
A("v_max_f32 v%d, v%d, v%d" % (vT, vT, W + 6))
for w in range(4): A("v_sub_f32 v%d, v%d, v%d" % (W + 2 * w, W + 2 * w, vT))
for w in range(4): A("v_exp_f32 v%d, v%d" % (W + 2 * w, W + 2 * w))
A("v_mul_f32 v%d, v%d, v%d" % (vT + 1, W, W + 1))
for w in range(1, 4): A("v_fmac_f32 v%d, v%d, v%d" % (vT + 1, W + 2 * w, W + 2 * w + 1))
A("s_waitcnt lgkmcnt(0)")
A("v_pk_mul_f32 %s, %s, %s op_sel_hi:[1,0]" % (vr(W + 8, 2), vr(W + 8, 2), vr(W, 2)))
A("v_rcp_f32 v%d, v%d" % (vT + 2, vT + 1))
for w in range(1, 4):
    A("v_pk_fma_f32 %s, %s, %s, %s op_sel_hi:[1,0,1]" % (vr(W + 8, 2), vr(W + 8 + 2 * w, 2), vr(W + 2 * w, 2), vr(W + 8, 2)))
A("v_log_f32 v%d, v%d" % (vT + 5, vT + 1))
A("v_pk_mul_f32 %s, %s, %s op_sel_hi:[1,0]" % (vr(W + 8, 2), vr(W + 8, 2), vr(vT + 2, 2)))
A("v_add_f32 v%d, v%d, v%d" % (vT + 3, vT + 5, vT))
A("v_cvt_pk_bf16_f32 v%d, v%d, v%d" % (W + 8, W + 8, W + 9))
store_local("buffer_store_dword", "v%d" % (W + 8), vOST, sOS)
A("s_mov_b64 exec, 1")
store_local("buffer_store_dword", "v%d" % (vT + 3), vT + 4, sLS)
A("s_mov_b64 exec, -1")
STAMP(5)

C("wo phase: wave = batch, rows = key splits")
OF = W; LS = W + 16; DA = W + 24
def io():
    A("buffer_load_dwordx4 %s, v%d, %s, s%d offen sc1" % (vr(LS, 4), vLSE, sr(sWS, 4), sLL))
    A("buffer_load_dwordx4 %s, v%d, %s, s%d offen sc1" % (vr(LS + 4, 4), vT + 6, sr(sWS, 4), sLL))
    for t in range(4):
        A("buffer_load_dwordx4 %s, v%d, %s, s%d offen offset:%d sc1" % (vr(OF + 4 * t, 4), vOLD, sr(sWS, 4), sOL, 512 * t))
def pre_o():
    A("s_cmp_lg_u32 s%d, 0" % sLAY)
    A("s_cbranch_scc1 Lo_go")
    A("s_cmp_lg_u32 s%d, %s" % (sCNT, hx(SPIN)))
    A("s_cbranch_scc1 Lo_go")
    C("first layer: wo tile landed -> fragments; every workgroup has announced its clears")
    A("s_waitcnt vmcnt(8)")
    STAMP(13)
    A("s_mov_b32 s%d, %s" % (sT4, hx(SPIN)))
    LB("Lap")
    A("v_and_b32 v24, -8, v%d" % (FLG + 1))
    A("v_cmp_ne_u32 vcc, s%d, v%d" % (sTG1, FLG))
    A("v_cmp_ne_u32 %s, s%d, v24" % (sr(sH, 2), sTG2))
    A("s_or_b64 vcc, vcc, %s" % sr(sH, 2))
    A("s_cbranch_vccnz Lar")
    LB("Lad")
    lds_arrive(16, 24)
    for i in range(2):
        A("v_lshlrev_b32 v%d, 16, v%d" % (W + 40 + 2 * i, RES + 2 + i))
        A("v_and_b32 v%d, 0xffff0000, v%d" % (W + 41 + 2 * i, RES + 2 + i))
    for i in range(4): A("v_mov_b32 v%d, v%d" % (RES + i, W + 40 + i))
    for ct in range(4): A("v_xor_b32 v%d, %d, v%d" % (W + 40 + ct, 32 * ct, vWT))
    for ct in range(4): A("v_add_u32 v%d, %d, v%d" % (W + 40 + ct, L_WO, W + 40 + ct))
    lds_spin(16, 4, 24)
    STAMP(14)
    for t in range(4):
        for ct in range(4):
            for hf in range(2):
                A("ds_read_b64_tr_b16 %s, v%d offset:%d" % (vr(WOF + 16 * ct + 4 * t + 2 * hf, 2), W + 40 + ct, 4096 * t + 512 * hf))
    A("s_waitcnt lgkmcnt(0)")
    LB("Lo_go")
ool.append(["Lar:", "    s_lshl_b32 s%d, s%d, 10" % (sT5, sW), "    s_add_u32 s%d, s%d, %s" % (sT5, sT5, hx(FB)),
            "    buffer_load_dwordx4 %s, v%d, %s, s%d offen sc1" % (vr(FLG, 4), vL16, sr(sWS, 4), sT5),
            "    s_waitcnt vmcnt(0)", "    s_sub_u32 s%d, s%d, 1" % (sT4, sT4), "    s_cbranch_scc0 Lap", "    s_branch Lad"])
wo1 = [mf(DA + 4 * ct, OF + 4 * t, WOF + 16 * ct + 4 * t, None if t == 0 else DA + 4 * ct) for t in range(2) for ct in range(4)]
poll(io, list(range(LS, LS + 8)) + list(range(OF, OF + 16)), vT, pre_o, spec=wo1)
STAMP(7)
va = ["v_max3_f32 v%d, v%d, v%d, v%d" % (vT, LS, LS + 1, LS + 2), "v_max3_f32 v%d, v%d, v%d, v%d" % (vT + 1, LS + 3, LS + 4, LS + 5),
      "v_max3_f32 v%d, v%d, v%d, v%d" % (vT, vT, LS + 6, LS + 7), "v_max_f32 v%d, v%d, v%d" % (vT, vT, vT + 1)]
va += ["v_sub_f32 v%d, v%d, v%d" % (LS + i, LS + i, vT) for i in range(4)]
va += ["v_exp_f32 v%d, v%d" % (LS + i, LS + i) for i in range(4)]
va += ["v_add_f32 v%d, v%d, v%d" % (vT, LS, LS + 1), "v_add_f32 v%d, v%d, v%d" % (vT + 1, LS + 2, LS + 3),
       "v_add_f32 v%d, v%d, v%d" % (vT, vT, vT + 1), "v_mov_b32 v%d, v%d" % (vT + 1, vT)]
for t in range(2, 4):
    for ct in range(4):
        mfma(DA + 4 * ct, OF + 4 * t, WOF + 16 * ct + 4 * t, DA + 4 * ct)
        for k in range(2): A(va.pop(0))
A("s_mov_b32 s%d, 0x55555555" % sT4)
A("s_mov_b32 s%d, 0x55555555" % sT5)
A("v_permlane16_swap_b32 v%d, v%d" % (vT, vT + 1))
A("v_mul_f32 v%d, v%d, v%d" % (DA, DA, LS))
A("v_add_f32 v%d, v%d, v%d" % (vT, vT, vT + 1))
A("v_mul_f32 v%d, v%d, v%d" % (DA + 4, DA + 4, LS))
A("v_rcp_f32 v%d, v%d" % (vT, vT))
A("v_mul_f32 v%d, v%d, v%d" % (DA + 8, DA + 8, LS))
for i in range(1, 4):
    for ct in range(3):
        A("v_fmac_f32 v%d, v%d, v%d" % (DA + 4 * ct, DA + 4 * ct + i, LS + i))
    if i == 1: A("v_mul_f32 v%d, v%d, v%d" % (DA + 12, DA + 12, LS))
for i in range(1, 4): A("v_fmac_f32 v%d, v%d, v%d" % (DA + 12, DA + 12 + i, LS + i))
A("v_permlane16_swap_b32 v%d, v%d" % (DA, DA + 4))
A("s_nop 0")
A("v_permlane16_swap_b32 v%d, v%d" % (DA + 8, DA + 12))
A("v_add_f32 v%d, v%d, v%d" % (DA, DA, DA + 4))
A("v_add_f32 v%d, v%d, v%d" % (DA + 8, DA + 8, DA + 12))
A("s_nop 1")
A("v_permlane32_swap_b32 v%d, v%d" % (DA, DA + 8))
A("v_mul_f32 v%d, v%d, v%d" % (DA, DA, vT))
A("s_cmp_lg_u32 s%d, 0" % sLAY)
A("s_nop 0")
A("v_mov_b32_dpp v%d, v%d quad_perm:[1,0,3,2] row_mask:0xf bank_mask:0xf" % (DA + 1, DA))
A("s_mov_b64 exec, %s" % sr(sT4, 2))
A("v_cvt_pk_bf16_f32 v%d, v%d, v%d" % (DA, DA, DA + 1))
A("buffer_store_dword v%d, v%d, %s, s%d offen sc1" % (DA, vPST, sr(sWS, 4), sPS))
A("s_mov_b64 exec, -1")
STAMP(8)
A("s_cbranch_scc1 Lfinal")

A("s_cmp_lg_u32 s%d, 0" % sW)
A("s_cbranch_scc1 Ltab")
C("stage 1 (wave 0): reduce 32 head partials of 64 outputs, add residual, publish x1 slice")
soff(sT1, [(sA, 15), (sC, 12)], PB)
soff(sT2, [(sA, 10), (sC, 7), (sJ, 17)], X1_OFF)
A("s_mov_b32 s%d, 0x00ff00ff" % sT4)
A("s_mov_b32 s%d, 0" % sT5)
A("s_waitcnt vmcnt(0)")
def ip():
    for i in range(4):
        A("buffer_load_dwordx4 %s, v%d, %s, s%d offen offset:%d sc1" % (vr(W + 4 * i, 4), vL16, sr(sWS, 4), sT1, 1024 * i))
poll(ip, range(W, W + 16), vT, spec=[mf(W + 16, SEL, W + 4 * i, None if i == 0 else W + 16) for i in range(4)])
STAMP(9)
fastcmp()
NOP(6)
for i in range(4):
    A("v_add_f32_dpp v%d, v%d, v%d row_ror:8 row_mask:0xf bank_mask:0xf" % (W + 16 + i, W + 16 + i, W + 16 + i))
A("s_mov_b64 exec, %s" % sr(sT4, 2))
A("v_pk_add_f32 %s, %s, %s" % (vr(W + 16, 2), vr(W + 16, 2), vr(RES, 2)))
A("v_pk_add_f32 %s, %s, %s" % (vr(W + 18, 2), vr(W + 18, 2), vr(RES + 2, 2)))
A("v_cvt_pk_bf16_f32 v%d, v%d, v%d" % (W + 16, W + 16, W + 17))
A("v_cvt_pk_bf16_f32 v%d, v%d, v%d" % (W + 17, W + 18, W + 19))
store_local("buffer_store_dwordx2", vr(W + 16, 2), vX1S, sT2)
A("s_mov_b64 exec, -1")
LB("Ltabdone")
soff(sT3, [(sW, 10), (sJ, 17)], X1_OFF)
def ix():
    A("buffer_load_dwordx4 %s, v%d, %s, s%d offen sc1" % (vr(XR, 4), vL16, sr(sWS, 4), sT3))
wqf_reads()
def pre_x():
    A("ds_read_b32 v%d, v%d offset:20" % (vT + 2, vFL))
poll(ix, range(XR, XR + 4), vT, pre_x, spec=["s_waitcnt lgkmcnt(0)", "v_readfirstlane_b32 s%d, v%d" % (sT1, vT + 2)])
A("s_cmp_lt_u32 s%d, 3" % sT1)
A("s_cbranch_scc1 Ltw")
LB("Ltwd")
STAMP(10)

LB("Lmix")
C("x <- x + g(LN(LN(x))) ; g is tabulated for every bf16 input in range, evaluated directly otherwise")
X = W; HB = W + 8; RT = W + 12; AD = W + 16; Y = W + 24
row_stats(XR, vT, X)
A("v_add_f32 v%d, %s, v%d" % (vT + 2, EPS, vT + 1))
A("v_rsq_f32 v%d, v%d" % (vT + 2, vT + 2))
A("v_mov_b32 v%d, %s" % (vT + 4, hx(LO2 | (LO2 << 16))))
A("v_mul_f32 v%d, v%d, v%d" % (vT + 1, vT + 1, vT + 2))
A("v_fmaak_f32 v%d, v%d, v%d, %s" % (vT + 1, vT + 1, vT + 2, EPS))
A("v_rsq_f32 v%d, v%d" % (vT + 1, vT + 1))
A("s_nop 0")
A("v_mul_f32 v%d, v%d, v%d" % (vT + 2, vT + 2, vT + 1))
A("v_mul_f32 v%d, v%d, v%d" % (vT + 3, vT, vT + 2))
for i in range(4):
    A("v_pk_fma_f32 %s, %s, %s, %s op_sel:[0,0,1] op_sel_hi:[1,0,1] neg_lo:[0,0,1] neg_hi:[0,0,1]" % (vr(AD + 2 * i, 2), vr(X + 2 * i, 2), vr(vT + 2, 2), vr(vT + 2, 2)))
for i in range(4):
    A("v_cvt_pk_bf16_f32 v%d, v%d, v%d" % (HB + i, AD + 2 * i, AD + 2 * i + 1))
for i in range(4):
    A("v_pk_lshlrev_b16 v%d, 1, v%d op_sel_hi:[0,1]" % (RT + i, HB + i))
    A("v_pk_lshrrev_b16 v%d, 15, v%d op_sel_hi:[0,1]" % (AD + i, HB + i))
for i in range(4):
    A("v_or_b32 v%d, v%d, v%d" % (RT + i, RT + i, AD + i))
for i in range(4):
    A("v_pk_sub_u16 v%d, v%d, v%d" % (RT + i, RT + i, vT + 4))
for i in range(4):
    A("v_lshlrev_b32_sdwa v%d, 2, v%d dst_sel:DWORD dst_unused:UNUSED_PAD src0_sel:DWORD src1_sel:WORD_0" % (AD + 2 * i, RT + i))
    A("v_lshlrev_b32_sdwa v%d, 2, v%d dst_sel:DWORD dst_unused:UNUSED_PAD src0_sel:DWORD src1_sel:WORD_1" % (AD + 2 * i + 1, RT + i))
    A("ds_read_b32 v%d, v%d offset:%d" % (Y + 2 * i, AD + 2 * i, L_TAB))
    A("ds_read_b32 v%d, v%d offset:%d" % (Y + 2 * i + 1, AD + 2 * i + 1, L_TAB))
A("v_max3_u32 v%d, v%d, v%d, v%d" % (vT, AD, AD + 1, AD + 2))
A("v_max3_u32 v%d, v%d, v%d, v%d" % (vT + 1, AD + 3, AD + 4, AD + 5))
A("v_max3_u32 v%d, v%d, v%d, v%d" % (vT, vT, AD + 6, AD + 7))
A("v_max_u32 v%d, v%d, v%d" % (vT, vT, vT + 1))
A("v_cmp_le_u32 vcc, %d, v%d" % (NENT * 4, vT))
A("s_cbranch_vccnz Lslow")
LB("Lslowdone")
A("s_cmp_lg_u32 s%d, 0" % sLAY)
for i in range(4):
    A("s_waitcnt lgkmcnt(%d)" % (6 - 2 * i))
    A("v_pk_add_f32 %s, %s, %s" % (vr(X + 2 * i, 2), vr(X + 2 * i, 2), vr(Y + 2 * i, 2)))
for i in range(4):
    A("v_cvt_pk_bf16_f32 v%d, v%d, v%d" % (XR + i, X + 2 * i, X + 2 * i + 1))
STAMP(11)
A("s_cbranch_scc1 Lout")
A("ds_write_b128 v%d, %s offset:%d" % (vXNW, vr(XR, 4), L_X2 - L_XN))
A("s_mov_b32 s%d, 1" % sLAY)
for s, d in [(sOL, O_OFF[1] - O_OFF[0]), (sOS, O_OFF[1] - O_OFF[0]), (sLL, LSE_OFF[1] - LSE_OFF[0]), (sLS, LSE_OFF[1] - LSE_OFF[0]), (sPS, P_L)]:
    A("s_add_u32 s%d, s%d, %d" % (s, s, d))
if DIAG: A("v_mov_b32 v28, v30")
A("s_branch Llnq")

LB("Lfinal")
A("s_cmp_ge_u32 s2, 4")
A("s_cbranch_scc1 Lfin_exit")
C("workgroup b: reduce the 32 head partials of row b, add x2, mixer, store")
soff(sT1, [(2, 15), (sW, 13)], PB + P_L)
A("s_add_u32 s%d, s%d, 4096" % (sT2, sT1))
A("s_mul_i32 s%d, s2, %d" % (sT0, XS))
A("s_lshl_b32 s%d, s%d, 8" % (sT3, sW))
A("s_add_u32 s%d, s%d, s%d" % (sT0, sT0, sT3))
A("s_add_u32 s%d, s%d, %d" % (sT0, sT0, L_X2))
A("v_add_u32 v%d, s%d, v%d" % (vT + 4, sT0, vX1S))
A("s_add_u32 s%d, s%d, %d" % (sT3, sT3, L_XN))
A("v_add_u32 v%d, s%d, v%d" % (vT + 5, sT3, vX1S))
A("ds_read_b64 %s, v%d" % (vr(PM, 2), vT + 4))
A("ds_read_b64 %s, v%d offset:128" % (vr(PM + 2, 2), vT + 4))
A("s_mov_b32 s%d, 0x00ff00ff" % sT4)
A("s_mov_b32 s%d, 0" % sT5)
A("s_waitcnt vmcnt(0) lgkmcnt(0)")
for i in range(4):
    A("v_lshlrev_b32 v%d, 16, v%d" % (PM + 4 + 2 * i, PM + i))
    A("v_and_b32 v%d, 0xffff0000, v%d" % (PM + 5 + 2 * i, PM + i))
def ifin():
    for i in range(8):
        A("buffer_load_dwordx4 %s, v%d, %s, s%d offen offset:%d sc1" % (vr(W + 4 * i, 4), vL16, sr(sWS, 4), sT1 if i < 4 else sT2, 1024 * (i & 3)))
fs = []
for i in range(4):
    fs.append(mf(W + 32, SEL, W + 4 * i, None if i == 0 else W + 32))
    fs.append(mf(W + 36, SEL, W + 16 + 4 * i, None if i == 0 else W + 36))
poll(ifin, range(W, W + 32), vT, spec=fs)
STAMP(9)
NOP(7)
for i in range(8):
    A("v_add_f32_dpp v%d, v%d, v%d row_ror:8 row_mask:0xf bank_mask:0xf" % (W + 32 + i, W + 32 + i, W + 32 + i))
A("s_mov_b64 exec, %s" % sr(sT4, 2))
for i in range(4):
    A("v_pk_add_f32 %s, %s, %s" % (vr(W + 32 + 2 * i, 2), vr(W + 32 + 2 * i, 2), vr(PM + 4 + 2 * i, 2)))
for i in range(4):
    A("v_cvt_pk_bf16_f32 v%d, v%d, v%d" % (W + 32 + i, W + 32 + 2 * i, W + 33 + 2 * i))
A("ds_write_b64 v%d, %s" % (vT + 5, vr(W + 32, 2)))
A("ds_write_b64 v%d, %s offset:128" % (vT + 5, vr(W + 34, 2)))
A("s_mov_b64 exec, -1")
A("s_cmp_lg_u32 s%d, 0" % sW)
A("s_waitcnt lgkmcnt(0)")
A("s_barrier")
A("s_cbranch_scc1 Lfin_exit")
A("ds_read_b128 %s, v%d" % (vr(XR, 4), vXNW))
A("s_waitcnt lgkmcnt(0)")
STAMP(10)
A("s_branch Lmix")
LB("Lout")
A("s_lshl_b32 s%d, s2, 10" % sT0)
A("buffer_store_dwordx4 %s, v%d, %s, s%d offen" % (vr(XR, 4), vL16, sr(sOUT, 4), sT0))
A("s_cmp_lg_u32 s2, 0")
A("s_cbranch_scc1 Lfin_exit")
A("v_mov_b32 v16, s%d" % sTG1)
A("v_mov_b32 v17, %s" % hx(EPO))
A("s_mov_b64 exec, 1")
A("buffer_store_dword v16, v17, %s, 0 offen sc1" % sr(sWS, 4))
A("s_mov_b64 exec, -1")
LB("Lfin_exit")
if DIAG:
    A("s_waitcnt vmcnt(0)")
    STAMP(12)
    if DIAG == 2:
        A("s_or_b32 s%d, s2, s%d" % (sT0, sW))
        A("s_cmp_lg_u32 s%d, 0" % sT0)
        A("s_cbranch_scc1 Lend")
        A("v_readlane_b32 s%d, v28, 0" % sT2)
        for k, (r, i) in enumerate([(31, 10), (31, 12), (28, 1), (28, 2), (28, 6), (28, 5), (28, 7), (28, 8), (28, 9), (28, 10), (28, 11), (30, 3), (30, 5), (30, 8), (30, 9), (30, 12)]):
            A("v_readlane_b32 s%d, v%d, %d" % (sT3, r, i))
            A("s_sub_u32 s%d, s%d, s%d" % (sT3, sT3, sT2))
            A("s_nop 0")
            A("v_writelane_b32 v17, s%d, %d" % (sT3, k))
        A("v_lshlrev_b32 v16, 2, v%d" % vLANE)
        A("s_mov_b64 exec, 0xffff")
        A("global_store_dword v16, v17, s[96:97]")
        A("s_endpgm")
    soff(sT1, [(2, 10), (sW, 7)], STB)
    A("v_lshlrev_b32 v16, 2, v%d" % vLANE)
    A("s_mov_b64 exec, 0xffff")
    A("buffer_store_dword v28, v16, %s, s%d offen" % (sr(sWS, 4), sT1))
    A("buffer_store_dword v30, v16, %s, s%d offen offset:64" % (sr(sWS, 4), sT1))
    A("s_add_u32 s%d, s%d, 0x40000" % (sT1, sT1))
    A("buffer_store_dword v31, v16, %s, s%d offen" % (sr(sWS, 4), sT1))
LB("Lend")
A("s_endpgm")

LB("Ltab")
C("waves 1..3: gather the g(h) table into LDS")
NTL = -(-NENT * 4 // 3 // 1024)
A("s_sub_u32 s%d, s%d, 1" % (sT1, sW))
A("s_mul_i32 s%d, s%d, %d" % (sT1, sT1, NTL * 1024))
A("s_min_u32 s%d, s%d, %d" % (sT1, sT1, NENT * 4 - NTL * 1024))
A("v_add_u32 v%d, s%d, v%d" % (vT + 4, sT1, vL16))
A("s_add_u32 s%d, s%d, %s" % (sT1, sT1, hx(TB)))
A("s_add_u32 s%d, s%d, 4096" % (sT2, sT1))
def it():
    for i in range(NTL):
        A("buffer_load_dwordx4 %s, v%d, %s, s%d offen offset:%d sc1" % (vr(W + 4 * i, 4), vL16, sr(sWS, 4), sT1 if i < 4 else sT2, 1024 * (i & 3)))
poll(it, range(W, W + 4 * NTL), vT)
for i in range(NTL):
    A("ds_write_b128 v%d, %s offset:%d" % (vT + 4, vr(W + 4 * i, 4), L_TAB + 1024 * i))
A("s_waitcnt lgkmcnt(0)")
lds_arrive(20, vT + 4)
STAMP(9)
A("s_branch Ltabdone")
LB("Ltw")
lds_spin(20, 3, vT + 2)
A("s_branch Ltwd")

LB("Lslow")
C("rare: some h lies outside the table -> evaluate g(h) directly for those lanes")
RW1 = [W + 32 + i for i in range(14)]
RB1 = [PM + i for i in range(14)]
RW2 = [16 + i for i in range(10)] + [W + 46, W + 47, PM + 14, PM + 15]
A("v_lshlrev_b32 v26, 3, v%d" % vLANE)
A("s_load_dword s%d, %s, 0" % (sB2, sr(sB2P, 2)))
for (d4, d2, s) in [([W + 32, W + 36, W + 40], W + 44, sW1), ([PM, PM + 4, PM + 8], PM + 12, sB1)]:
    for k in range(3):
        A("buffer_load_dwordx4 %s, v%d, %s, 0 offen offset:%d" % (vr(d4[k], 4), vL16, sr(s, 4), 1024 * k))
    A("buffer_load_dwordx2 %s, v26, %s, 0 offen offset:3072" % (vr(d2, 2), sr(s, 4)))
A("buffer_load_dwordx4 v[16:19], v%d, %s, 0 offen" % (vL16, sr(sW2, 4)))
A("buffer_load_dwordx4 v[20:23], v%d, %s, 0 offen offset:1024" % (vL16, sr(sW2, 4)))
A("buffer_load_dwordx2 v[24:25], v%d, %s, 0 offen offset:2048" % (vL16, sr(sW2, 4)))
A("buffer_load_dwordx2 %s, v%d, %s, 0 offen offset:2056" % (vr(W + 46, 2), vL16, sr(sW2, 4)))
A("buffer_load_dwordx2 %s, v26, %s, 0 offen offset:3072" % (vr(PM + 14, 2), sr(sW2, 4)))
A("s_waitcnt vmcnt(0) lgkmcnt(0)")
A("s_lshl_b32 s%d, s%d, 16" % (sB2, sB2))
for e in range(8):
    A("v_cmp_le_u32 vcc, %d, v%d" % (NENT * 4, AD + e))
    A("s_mov_b64 %s, vcc" % sr(sH2, 2))
    LB("Lse%d" % e)
    A("s_cmp_eq_u64 %s, 0" % sr(sH2, 2))
    A("s_cbranch_scc1 Lsf%d" % e)
    A("s_ff1_i32_b64 s%d, %s" % (sT0, sr(sH2, 2)))
    A("s_bitset0_b64 %s, s%d" % (sr(sH2, 2), sT0))
    A("s_mov_b32 m0, s%d" % sT0)
    A("v_readlane_b32 s%d, v%d, s%d" % (sH, HB + (e >> 1), sT0))
    if e & 1: A("s_and_b32 s%d, s%d, 0xffff0000" % (sH, sH))
    else: A("s_lshl_b32 s%d, s%d, 16" % (sH, sH))
    A("s_call_b64 %s, Lgev" % sr(sRET, 2))
    A("v_writelane_b32 v%d, s%d, m0" % (Y + e, sY))
    A("s_branch Lse%d" % e)
    LB("Lsf%d" % e)
for i in range(16): A("v_mov_b32 v%d, 0" % (PM + i))
A("s_branch Lslowdone")
LB("Lgev")
a, u, t1, z = RES, RES + 1, RES + 2, RT
A("v_mov_b32 v%d, 0" % a)
A("v_mov_b32 v%d, %s" % (RT + 1, hx(f2u(K0))))
A("v_mov_b32 v%d, %s" % (RT + 2, hx(f2u(K1))))
for p in range(14):
    for hf in range(2):
        def un(d, s):
            if hf == 0: A("v_lshlrev_b32 v%d, 16, v%d" % (d, s))
            else: A("v_and_b32 v%d, 0xffff0000, v%d" % (d, s))
        un(u, RW1[p]); un(t1, RB1[p]); un(z, RW2[p])
        A("v_fma_f32 v%d, v%d, s%d, v%d" % (u, u, sH, t1))
        A("v_mul_f32 v%d, v%d, v%d" % (t1, u, u))
        A("v_fma_f32 v%d, v%d, v%d, v%d" % (t1, t1, RT + 2, RT + 1))
        A("v_mul_f32 v%d, v%d, v%d" % (t1, t1, u))
        A("v_exp_f32 v%d, v%d" % (t1, t1))
        A("v_mul_f32 v%d, v%d, v%d" % (z, z, u))
        A("v_add_f32 v%d, 1.0, v%d" % (t1, t1))
        A("v_rcp_f32 v%d, v%d" % (t1, t1))
        A("s_nop 0")
        A("v_fmac_f32 v%d, v%d, v%d" % (a, z, t1))
A("v_mov_b32 v%d, v%d" % (u, a))
A("s_nop 1")
wave_sum2(a, u, sY, sT1)
A("s_nop 1")
A("v_mov_b32 v%d, s%d" % (a, sY))
A("v_cvt_pk_bf16_f32 v%d, v%d, v%d" % (a, a, a))
A("v_and_b32 v%d, 0xffff0000, v%d" % (a, a))
A("v_add_f32 v%d, s%d, v%d" % (a, sB2, a))
A("v_cvt_pk_bf16_f32 v%d, v%d, v%d" % (a, a, a))
A("v_and_b32 v%d, 0xffff0000, v%d" % (a, a))
A("s_nop 0")
A("v_readfirstlane_b32 s%d, v%d" % (sY, a))
A("s_nop 3")
A("s_setpc_b64 %s" % sr(sRET, 2))

for b in ool: L += b
A("s_endpgm")
L.append(".p2align 8")
L.append(".fill (16640 - (. - %s_kernel)) / 4, 4, 0xBF800000" % NAME)
L.append('''.section .rodata,"a"
.p2align 6
.amdhsa_kernel %s_kernel
  .amdhsa_next_free_vgpr 256
  .amdhsa_next_free_sgpr 102
  .amdhsa_accum_offset 256
  .amdhsa_group_segment_fixed_size 0
  .amdhsa_kernarg_size 104
  .amdhsa_user_sgpr_count 2
  .amdhsa_user_sgpr_kernarg_segment_ptr 1
  .amdhsa_system_sgpr_workgroup_id_x 1
.end_amdhsa_kernel''' % NAME)
open(OUTF, "w").write("\n".join(x for x in L if x is not None) + "\n")
print("wrote", OUTF, "lines", len(L), "LDS", LDS_SZ)
```

```python
import sys, struct, math

NAME = "interleave_layers__sliding_block_cached__mixer_token_mlp__decode"
OUTF = sys.argv[1] if len(sys.argv) > 1 else "cdna_kernels/%s.s" % NAME
DIAG = int(sys.argv[2]) if len(sys.argv) > 2 else 0
DBL = 0
if DIAG == 3: DIAG = 0; DBL = 1
OPT = dict(a.split("=") for a in sys.argv[3:])
DEPTH = int(OPT.get("depth", 7))
D0 = int(OPT.get("d0", 2))
D1 = int(OPT.get("d1", 4))
QV = int(OPT.get("qv", 2))
PRET = int(OPT.get("pret", 1))
NOCT = int(OPT.get("noct", 24))
QPOS = int(OPT.get("qpos", 1))
QPOS2 = int(OPT.get("qpos2", 7))

def f2u(x): return struct.unpack("<I", struct.pack("<f", x))[0]
def hx(x): return "0x%08x" % (x & 0xffffffff)

L = []
def A(s): L.append("    " + s)
def LB(s): L.append(s + ":")
def C(s): L.append("    ; " + s)
def vr(a, n): return "v[%d:%d]" % (a, a + n - 1)
def sr(a, n): return "s[%d:%d]" % (a, a + n - 1)
def NOP(n):
    while n > 0:
        k = min(n, 16); A("s_nop %d" % (k - 1)); n -= k

ELO = 132 - NOCT if NOCT == 24 else 130 - NOCT
LO2 = (ELO << 7) * 2
NENT = NOCT * 256
EPW = NENT // 256 // 4 // 2
GRS = 0x20000
O_OFF = [0x0000, 0xC400]; LSE_OFF = [0x8000, 0x14400]; Q1_OFF = 0x8400; X1_OFF = 0x14600
CLRA_PER = 1040
CLRB_OFF = 0x8400; CLRB_PER = 1680
Q0_OFF = 0x18000
EPO = 0x17f00
PB = 0x100000; P_L = 0x20000
TB = 0x140000; FB = 0x148000
QB_DELTA = 0x180000
STB = 0x300000
WS_SZ = 0x400000
L_TAB = 0
L_WQ = 24576; L_K = L_WQ + 16384; L_V = L_K + 32768; L_WO = L_V + 32768
L_XN = L_WO + 16384; XS = 1056
L_X2 = L_XN + 4 * XS
L_FLG = L_X2 + 4 * XS
L_RB = L_K; RBS = 2048 + 64; L_ML = L_K + 4 * RBS
L_QF = L_X2
LDS_SZ = L_FLG + 64
SPIN = 0x40000
K0 = -2.0 * math.sqrt(2.0 / math.pi) * math.log2(math.e)
K1 = K0 * 0.044715
EPS = hx(f2u(1e-5))

sTG1, sTG2 = 0, 1
sW, sJ, sA, sC, sGR, sLAY, sFAST = 3, 4, 5, 6, 7, 8, 9
sT0, sT1, sT2, sT3, sT4, sT5 = 10, 11, 12, 13, 14, 15
sCNT = 16
sQL, sQS, sOL, sOS, sLL, sLS, sPS = 17, 18, 19, 20, 21, 22, 23
sSC, sIT = 24, 25
sSUM, sSQ = 26, 27
sH, sH2, sRET, sMSK = 28, 30, 32, 34
sB2, sY, sXCC, sE = 36, 37, 38, 39
sB2P = 40
sK, sV, sWQ, sWO, sWS, sX, sOUT, sW1, sB1, sW2 = 44, 48, 52, 56, 60, 64, 68, 72, 76, 80
sKO, sKL, sVO, sVL = 84, 85, 86, 87
sPM = 88
sHC, sHT = 84, 85

def STAMP(i):
    if DIAG:
        A("s_memrealtime s[42:43]"); A("s_waitcnt lgkmcnt(0)")
        A("v_writelane_b32 v30, s42, %d" % i)

vLANE = 1
vL16, vQST, vOST, vOLD, vPST, vX1S, vXNW, vXNR, vRBW, vRBR, vMLW, vMLR, vLSE, vZ = range(2, 16)
vT = 16
vWT, vFL = 28, 29
KF, VF, WQF, WOF, SEL, ONES = 32, 64, 96, 112, 176, 180
W = 184
PM = 232
XR = 248
RES = 252

def srd(s, nbytes):
    A("s_mov_b32 s%d, %s" % (s + 2, hx(nbytes))); A("s_mov_b32 s%d, 0x00020000" % (s + 3))

def soff(dst, terms, const):
    first = True
    for (src, sh) in terms:
        if first: A("s_lshl_b32 s%d, s%d, %d" % (dst, src, sh)); first = False
        else:
            A("s_lshl_b32 s%d, s%d, %d" % (sT0, src, sh)); A("s_add_u32 s%d, s%d, s%d" % (dst, dst, sT0))
    if const: A("s_add_u32 s%d, s%d, %s" % (dst, dst, hx(const)))

def wave_sum2(a, b, sa, sb):
    for ctl in ["row_ror:8", "row_ror:4", "row_ror:2", "row_ror:1"]:
        A("v_add_f32_dpp v%d, v%d, v%d %s row_mask:0xf bank_mask:0xf" % (a, a, a, ctl))
        A("v_add_f32_dpp v%d, v%d, v%d %s row_mask:0xf bank_mask:0xf" % (b, b, b, ctl))
        A("s_nop 0")
    for ctl in ["row_bcast:15 row_mask:0xa", "row_bcast:31 row_mask:0xc"]:
        A("v_add_f32_dpp v%d, v%d, v%d %s bank_mask:0xf" % (a, a, a, ctl))
        A("v_add_f32_dpp v%d, v%d, v%d %s bank_mask:0xf" % (b, b, b, ctl))
        A("s_nop 0")
    A("v_readlane_b32 s%d, v%d, 63" % (sa, a))
    A("v_readlane_b32 s%d, v%d, 63" % (sb, b))

def row_stats(x, t, unp):
    A("v_dot2_f32_bf16 v%d, v%d, v%d, 0" % (t, x, ONES))
    A("v_dot2_f32_bf16 v%d, v%d, v%d, 0" % (t + 1, x, x))
    for i in range(1, 4):
        A("v_dot2_f32_bf16 v%d, v%d, v%d, v%d" % (t, x + i, ONES, t))
        A("v_dot2_f32_bf16 v%d, v%d, v%d, v%d" % (t + 1, x + i, x + i, t + 1))
    un = []
    for i in range(4):
        un.append("v_lshlrev_b32 v%d, 16, v%d" % (unp + 2 * i, x + i))
        un.append("v_and_b32 v%d, 0xffff0000, v%d" % (unp + 2 * i + 1, x + i))
    for k in range(3): A(un.pop(0))
    a, b = t, t + 1
    for ctl in ["row_ror:8 row_mask:0xf", "row_ror:4 row_mask:0xf", "row_ror:2 row_mask:0xf", "row_ror:1 row_mask:0xf", "row_bcast:15 row_mask:0xa", "row_bcast:31 row_mask:0xc"]:
        A("v_add_f32_dpp v%d, v%d, v%d %s bank_mask:0xf" % (a, a, a, ctl))
        A("v_add_f32_dpp v%d, v%d, v%d %s bank_mask:0xf" % (b, b, b, ctl))
        A(un.pop(0) if un else "s_nop 0")
    A("v_readlane_b32 s%d, v%d, 63" % (sSUM, a))
    A("v_readlane_b32 s%d, v%d, 63" % (sSQ, b))
    A("s_nop 0")
    A("v_mul_f32 v%d, s%d, v%d" % (t, sSUM, vZ))
    A("v_mul_f32 v%d, s%d, v%d" % (t + 1, sSQ, vZ))
    A("v_fma_f32 v%d, -v%d, v%d, v%d" % (t + 1, t, t, t + 1))
    A("v_max_f32 v%d, 0, v%d" % (t + 1, t + 1))

ool = []
uid = [0]
def maxtree(regs, tmp):
    r = list(regs); out = []
    out.append("v_max3_u32 v%d, v%d, v%d, v%d" % (tmp, r[0], r[1], r[2])); r = r[3:]
    if len(r) >= 5:
        out.append("v_max3_u32 v%d, v%d, v%d, v%d" % (tmp + 1, r[0], r[1], r[2])); r = r[3:]
        d = 0
        while len(r) >= 2:
            out.append("v_max3_u32 v%d, v%d, v%d, v%d" % (tmp + d, tmp + d, r[0], r[1])); r = r[2:]; d ^= 1
        if r: out.append("v_max3_u32 v%d, v%d, v%d, v%d" % (tmp, tmp, tmp + 1, r[0]))
        else: out.append("v_max_u32 v%d, v%d, v%d" % (tmp, tmp, tmp + 1))
    else:
        while len(r) >= 2:
            out.append("v_max3_u32 v%d, v%d, v%d, v%d" % (tmp, tmp, r[0], r[1])); r = r[2:]
        if r: out.append("v_max_u32 v%d, v%d, v%d" % (tmp, tmp, r[0]))
    return out

def poll(issue, regs, tmp, pre_wait=None, spec=None):
    uid[0] += 1; u = uid[0]
    A("s_mov_b32 s%d, %s" % (sCNT, hx(SPIN)))
    LB("Lp%d" % u)
    issue()
    if pre_wait: pre_wait()
    A("s_waitcnt vmcnt(0)")
    mt = maxtree(regs, tmp) + ["v_cmp_eq_u32 vcc, -1, v%d" % tmp]
    spec = list(spec or [])
    ns = len(spec)
    per = -(-len(mt) // ns) if ns else 0
    for s in spec:
        A(s)
        for k in range(per):
            if mt: A(mt.pop(0))
    for m in mt: A(m)
    A("s_cbranch_vccnz Lr%d" % u)
    LB("Ld%d" % u)
    ool.append(["Lr%d:" % u, "    s_sub_u32 s%d, s%d, 1" % (sCNT, sCNT), "    s_cbranch_scc1 Ld%d" % u, "    s_nop 7", "    s_branch Lp%d" % u])

def lds_spin(off, target, tmp, mask=None, sleep=0):
    uid[0] += 1; u = uid[0]
    A("s_mov_b32 s%d, %s" % (sT2, hx(SPIN * 4)))
    LB("Ls%d" % u)
    A("ds_read_b32 v%d, v%d offset:%d" % (tmp, vFL, off))
    A("s_waitcnt lgkmcnt(0)")
    A("v_readfirstlane_b32 s%d, v%d" % (sT1, tmp))
    if mask: A("s_and_b32 s%d, s%d, %d" % (sT0, sT1, mask))
    A("s_cmp_ge_u32 s%d, %d" % (sT0 if mask else sT1, target))
    A("s_cbranch_scc1 Lt%d" % u)
    if sleep: A("s_sleep %d" % sleep)
    A("s_sub_u32 s%d, s%d, 1" % (sT2, sT2))
    A("s_cbranch_scc0 Ls%d" % u)
    LB("Lt%d" % u)

def lds_arrive(off, tmp, val=1):
    if val is not None: A("v_mov_b32 v%d, %d" % (tmp, val))
    A("s_mov_b64 exec, 1")
    A("ds_add_u32 v%d, v%d offset:%d" % (vFL, tmp, off))
    A("s_mov_b64 exec, -1")

def store_local(op, data, vaddr, so):
    uid[0] += 1; u = uid[0]
    A("s_cbranch_scc1 Lw%d" % u)
    A("%s %s, v%d, %s, s%d offen" % (op, data, vaddr, sr(sWS, 4), so))
    LB("Lx%d" % u)
    ool.append(["Lw%d:" % u, "    %s %s, v%d, %s, s%d offen sc1" % (op, data, vaddr, sr(sWS, 4), so), "    s_branch Lx%d" % u])
def fastcmp(): A("s_cmp_eq_u32 s%d, 0" % sFAST)

def mf(d, a, b, c):
    return "v_mfma_f32_16x16x32_bf16 %s, %s, %s, %s" % (vr(d, 4), vr(a, 4), vr(b, 4), "0" if c is None else vr(c, 4))
def mfma(d, a, b, c): A(mf(d, a, b, c))

def tags():
    A("s_add_u32 s%d, s%d, 1" % (sTG1, sE))
    A("s_mul_i32 s%d, s%d, 0x9E3779B1" % (sTG2, sTG1))
    A("s_and_b32 s%d, s%d, -8" % (sTG2, sTG2))

def common_addr():
    A("v_and_b32 v18, 3, v%d" % vLANE)
    A("v_lshlrev_b32 v%d, 12, v17" % vQST)
    A("v_lshrrev_b32 v24, 1, v16")
    A("v_lshl_add_u32 v%d, v24, 8, v%d" % (vQST, vQST))
    A("v_and_b32 v24, 1, v16")
    A("v_lshl_add_u32 v%d, v24, 3, v%d" % (vQST, vQST))
    A("v_lshlrev_b32 v%d, 4, v24" % vLSE)
    A("s_mul_i32 s%d, s%d, %d" % (sT0, sW, XS))
    A("s_add_u32 s%d, s%d, %d" % (sT0, sT0, L_XN))
    A("v_add_u32 v%d, s%d, v%d" % (vXNW, sT0, vL16))
    A("s_lshl_b32 s%d, s%d, 8" % (sT0, sA))
    A("s_add_u32 s%d, s%d, %d" % (sT0, sT0, L_XN))
    A("v_mul_u32_u24 v25, %d, v18" % XS)
    A("v_lshl_add_u32 v25, v16, 4, v25")
    A("v_add_u32 v%d, s%d, v25" % (vXNR, sT0))
    A("v_mov_b32 v%d, %s" % (vZ, hx(f2u(1.0 / 512))))
    for r in range(4): A("v_mov_b32 v%d, 0x3f803f80" % (ONES + r))
    A("s_and_b32 s%d, s%d, 1" % (sT1, sC))
    A("s_lshr_b32 s%d, s%d, 1" % (sT2, sC))
    soff(sQS, [(sT1, 11), (sW, 9), (sA, 6), (sT2, 4)], 0)
    A("v_bfe_u32 v24, v%d, 2, 2" % vLANE)
    A("v_lshl_add_u32 v24, v16, 3, v24")
    A("v_lshlrev_b32 v24, 7, v24")
    A("v_bfe_u32 v25, v%d, 3, 2" % vLANE)
    A("v_lshlrev_b32 v25, 1, v25")
    A("v_bfe_u32 v26, v%d, 1, 1" % vLANE)
    A("v_xor_b32 v25, v25, v26")
    A("v_lshl_add_u32 v24, v25, 4, v24")
    A("v_and_b32 v26, 1, v%d" % vLANE)
    A("v_lshl_add_u32 v%d, v26, 3, v24" % vWT)
    A("s_mov_b32 s%d, 0x000f000f" % sMSK)
    A("s_mov_b32 s%d, 0x000f000f" % (sMSK + 1))
    A("s_mov_b32 s%d, 0" % sLAY)

def wtile_voff(shift, d):
    A("v_lshrrev_b32 v24, 3, v%d" % vLANE)
    A("v_and_b32 v25, 7, v%d" % vLANE)
    A("v_and_b32 v26, 1, v16")
    A("v_lshlrev_b32 v26, 1, v26")
    A("v_xor_b32 v25, v25, v26")
    A("v_lshlrev_b32 v25, 4, v25")
    A("v_lshl_add_u32 v%d, v24, %d, v25" % (d, shift))
    A("v_xor_b32 v%d, 64, v%d" % (d + 1, d))

def wqf_reads():
    A("s_lshl_b32 s%d, s%d, 5" % (sT1, sW))
    A("v_xor_b32 v26, s%d, v%d" % (sT1, vWT))
    for t in range(4):
        for hf in range(2):
            A("ds_read_b64_tr_b16 %s, v26 offset:%d" % (vr(WQF + 4 * t + 2 * hf, 2), L_WQ + 4096 * t + 512 * hf))

def dma(vaddr, srdn, so, lds_s, step_so, flags="nt"):
    A("s_mov_b32 m0, s%d" % lds_s)
    A("s_add_u32 s%d, s%d, 1024" % (lds_s, lds_s))
    A("buffer_load_dwordx4 v%d, %s, s%d offen %s lds" % (vaddr, sr(srdn, 4), so, flags))
    A("s_add_u32 s%d, s%d, %d" % (so, so, step_so))

hdr = open("cdna_kernels/%s.s.ref" % NAME).read().split("; Override launch")[0]
L.append(hdr.rstrip("\n"))
L.append("; @launch grid=(256,1,1) block=(512,1,1) lds=%d" % LDS_SZ)
L.append('.amdgcn_target "amdgcn-amd-amdhsa--gfx950"')
L.append(".text\n.globl %s_kernel\n.p2align 8\n.type %s_kernel,@function\n%s_kernel:" % (NAME, NAME, NAME))
if DIAG: A("s_memrealtime s[42:43]")
if DBL: A("s_memrealtime s[98:99]")
A("s_cmp_ge_u32 s2, 256")
A("s_cbranch_scc1 Lend")
if DIAG == 2: A("s_load_dwordx2 s[96:97], s[0:1], 88")
for s, off in [(sW1, 48), (sB1, 56), (sW2, 64), (sWQ, 24), (sK, 8), (sX, 0), (sWS, 96), (sV, 16), (sWO, 32), (sOUT, 80), (sB2P, 72)]:
    A("s_load_dwordx2 %s, s[0:1], %d" % (sr(s, 2), off))
A("v_lshrrev_b32 v18, 6, v0")
A("v_and_b32 v%d, 63, v0" % vLANE)
A("v_mov_b32 v%d, %d" % (vFL, L_FLG))
A("v_readfirstlane_b32 s%d, v18" % sW)
A("v_lshlrev_b32 v%d, 4, v%d" % (vL16, vLANE))
A("v_lshrrev_b32 v16, 4, v%d" % vLANE)
A("v_and_b32 v17, 15, v%d" % vLANE)
A("s_and_b32 s%d, s2, 7" % sJ)
A("s_lshr_b32 s%d, s2, 6" % sA)
A("s_bfe_u32 s%d, s2, 0x30003" % sC)
for i in range(4): A("v_mov_b32 v%d, 0" % (20 + i))
A("ds_write_b128 v%d, v[20:23]" % vFL)
A("ds_write_b128 v%d, v[20:23] offset:16" % vFL)
srd(sWS, WS_SZ)
if DIAG: A("v_mov_b32 v30, 0")
A("s_cmp_ge_u32 s%d, 4" % sW)
A("s_cbranch_scc1 Lhelper")
vKA, vVA = W + 40, W + 44
srd(sK, 1 << 25)
A("v_xor_b32 v18, v17, v16")
A("v_lshlrev_b32 v18, 4, v18")
A("v_lshl_add_u32 v%d, v16, 8, v18" % vKA)
for i in range(1, 4): A("v_xor_b32 v%d, %d, v%d" % (vKA + i, 64 * i, vKA))
soff(sKO, [(sA, 23), (sJ, 20), (sC, 15), (sW, 13)], 3072 * 256)
A("s_add_u32 s%d, s%d, %d" % (sKL, sT0, L_K))
A("s_add_u32 s%d, s%d, %d" % (sVL, sT0, L_V))
A("s_mov_b32 s%d, s%d" % (sVO, sKO))
def kv_issue(i):
    if i < 8: dma(vKA + (i & 3), sK, sKO, sKL, 1024)
    else: dma(vVA + (i & 1), sV, sVO, sVL, 1024)
A("s_waitcnt lgkmcnt(0)")
A("s_barrier")
for i in range(D0): kv_issue(i)
if DIAG: A("v_writelane_b32 v30, s42, 0")
STAMP(10)
A("s_branch Lmain")

LB("Lhelper")
C("---- helper waves: first q projection, then the table of g over bf16 inputs ----")
HW1, HB1, HW2 = 32, 60, 112
hK0, hK1, hONE, hRES = 88, 90, 92, 94
AC = [140, 142]; U = [144, 146]; T_ = [148, 150]; Z = [152, 154]
for s, n in [(sWQ, 1 << 22), (sX, 4096)]: srd(s, n)
A("s_sub_u32 s%d, s%d, 4" % (sW, sW))
wtile_voff(13, 20)
soff(sT4, [(sA, 20), (sW, 18), (sJ, 10), (sC, 7)], 0)
A("s_lshl_b32 s%d, s%d, 12" % (sT2, sW))
A("s_add_u32 s%d, s%d, %d" % (sT2, sT2, L_WQ))
A("s_lshl_b32 s%d, s%d, 10" % (sT3, sW))
A("v_mov_b32 v22, %s" % hx(EPO))
A("v_mov_b32 v23, 0")
A("s_waitcnt lgkmcnt(0)")
A("s_barrier")
A("buffer_load_dwordx4 %s, v%d, %s, s%d offen" % (vr(XR, 4), vL16, sr(sX, 4), sT3))
for i in range(4): dma(20 + (i & 1), sWQ, sT4, sT2, 0x10000)
A("buffer_load_dword v%d, v22, %s, 0 offen" % (RES, sr(sWS, 4)))
A("global_load_ushort v%d, v23, %s" % (RES + 1, sr(sB2P, 2)))
if DIAG: A("v_writelane_b32 v30, s42, 0")
STAMP(9)
A("s_lshl_b32 s%d, s%d, 17" % (sGR, sJ))
A("s_lshl_b32 s%d, s2, 2" % sHC)
A("s_add_u32 s%d, s%d, s%d" % (sHC, sHC, sW))
A("s_mul_i32 s%d, s%d, %d" % (sHC, sHC, EPW))
A("s_lshl_b32 s%d, s%d, 3" % (sHT, sHC))
A("s_add_u32 s%d, s%d, %s" % (sHT, sHT, hx(TB)))
A("s_add_u32 s%d, s%d, %d" % (sHC, sHC, ELO * 128))
A("s_lshl_b32 s%d, s%d, 16" % (sHC, sHC))
A("v_lshlrev_b32 v27, 2, v%d" % vLANE)
common_addr()
A("s_lshl_b32 s%d, s%d, 1" % (sQS, sQS))
A("s_add_u32 s%d, s%d, s%d" % (sQS, sQS, sGR))
A("s_add_u32 s%d, s%d, %s" % (sQS, sQS, hx(Q0_OFF)))
A("v_lshlrev_b32 v%d, 1, v%d" % (vQST, vQST))
A("s_getreg_b32 s%d, hwreg(HW_REG_XCC_ID, 0, 3)" % sXCC)
for r, c in [(hK0, K0), (hK1, K1), (hONE, 1.0)]:
    A("v_mov_b32 v%d, %s" % (r, hx(f2u(c)))); A("v_mov_b32 v%d, %s" % (r + 1, hx(f2u(c))))
A("v_mov_b32 v%d, 0" % hRES)
A("s_mov_b32 s%d, 0" % sIT)
for s, n in [(sW1, 3584), (sB1, 3584), (sW2, 3584)]: srd(s, n)
A("s_mov_b32 m0, s%d" % sT3)
A("s_waitcnt vmcnt(6)")
for i, sd in enumerate([sW1, sB1, sW2]):
    A("buffer_load_dwordx4 v%d, %s, s%d offen lds" % (vL16, sr(sd, 4), sT3))
    if i < 2:
        A("s_add_u32 m0, m0, 4096"); A("s_nop 0")
STAMP(1)
A("s_branch Llnq")
LB("Lq_first")
A("s_waitcnt vmcnt(3) lgkmcnt(0)")
STAMP(2)
lds_arrive(0, vT + 4)
A("v_readfirstlane_b32 s%d, v%d" % (sE, RES))
A("v_readfirstlane_b32 s%d, v%d" % (sB2, RES + 1))
tags()
A("s_or_b32 s%d, s%d, s%d" % (sXCC, sXCC, sTG2))
A("s_lshl_b32 s%d, s%d, 16" % (sB2, sB2))
C("4 helper arrivals (wq tile, xn rows) + 4 main arrivals (coefficients landed, sentinels acknowledged)")
lds_spin(0, 8, vT + 4)
wqf_reads()
A("s_waitcnt lgkmcnt(0)")
A("s_branch Lq_go")
LB("Lh_qst")
A("v_mov_b32 v%d, s%d" % (W + 6, sTG1))
A("v_mov_b32 v%d, s%d" % (W + 7, sXCC))
A("buffer_store_dwordx4 %s, v%d, %s, s%d offen" % (vr(W + 4, 4), vQST, sr(sWS, 4), sQS))
A("s_add_u32 s%d, s%d, %s" % (sQS, sQS, hx(QB_DELTA)))
A("buffer_store_dwordx4 %s, v%d, %s, s%d offen sc1" % (vr(W + 4, 4), vQST, sr(sWS, 4), sQS))
A("s_mov_b64 exec, -1")
HR = W + 8
STAMP(3)
A("v_lshlrev_b32 v26, 3, v%d" % vLANE)
A("s_waitcnt vmcnt(2)")
lds_arrive(24, 24)
lds_spin(24, 4, 24)
for a_ in range(3):
    for k in range(3):
        A("ds_read_b128 %s, v%d offset:%d" % (vr(HR + 14 * a_ + 4 * k, 4), vL16, 4096 * a_ + 1024 * k))
    A("ds_read_b64 %s, v26 offset:%d" % (vr(HR + 14 * a_ + 12, 2), 4096 * a_ + 3072))
for a_, d in [(0, HW1), (14, HB1), (28, HW2)]:
    A("s_waitcnt lgkmcnt(%d)" % (8 - 4 * (a_ // 14)))
    for p in range(14):
        A("v_lshlrev_b32 v%d, 16, v%d" % (d + 2 * p, HR + a_ + p))
        A("v_and_b32 v%d, 0xffff0000, v%d" % (d + 2 * p + 1, HR + a_ + p))
STAMP(4)
LB("Lhl")
A("s_mov_b32 s%d, s%d" % (sH, sHC)); A("s_mov_b32 s%d, s%d" % (sH + 1, sHC))
A("s_xor_b32 s%d, s%d, 0x80000000" % (sH2, sHC)); A("s_mov_b32 s%d, s%d" % (sH2 + 1, sH2))
for p in range(14):
    for sg in range(2):
        A("v_pk_fma_f32 %s, %s, %s, %s" % (vr(U[sg], 2), vr(HW1 + 2 * p, 2), sr([sH, sH2][sg], 2), vr(HB1 + 2 * p, 2)))
    for sg in range(2): A("v_pk_mul_f32 %s, %s, %s" % (vr(T_[sg], 2), vr(U[sg], 2), vr(U[sg], 2)))
    for sg in range(2): A("v_pk_fma_f32 %s, %s, %s, %s" % (vr(T_[sg], 2), vr(T_[sg], 2), vr(hK1, 2), vr(hK0, 2)))
    for sg in range(2): A("v_pk_mul_f32 %s, %s, %s" % (vr(T_[sg], 2), vr(T_[sg], 2), vr(U[sg], 2)))
    for sg in range(2): A("v_pk_mul_f32 %s, %s, %s" % (vr(Z[sg], 2), vr(U[sg], 2), vr(HW2 + 2 * p, 2)))
    for sg in range(2):
        for h in range(2): A("v_exp_f32 v%d, v%d" % (T_[sg] + h, T_[sg] + h))
    for sg in range(2): A("v_pk_add_f32 %s, %s, %s" % (vr(T_[sg], 2), vr(T_[sg], 2), vr(hONE, 2)))
    for sg in range(2):
        for h in range(2): A("v_rcp_f32 v%d, v%d" % (T_[sg] + h, T_[sg] + h))
    for sg in range(2):
        if p == 0: A("v_pk_mul_f32 %s, %s, %s" % (vr(AC[sg], 2), vr(Z[sg], 2), vr(T_[sg], 2)))
        else: A("v_pk_fma_f32 %s, %s, %s, %s" % (vr(AC[sg], 2), vr(Z[sg], 2), vr(T_[sg], 2), vr(AC[sg], 2)))
A("v_add_f32 v%d, v%d, v%d" % (AC[0], AC[0], AC[0] + 1))
A("v_add_f32 v%d, v%d, v%d" % (AC[1], AC[1], AC[1] + 1))
A("s_lshl_b32 m0, s%d, 1" % sIT)
A("s_add_u32 s%d, s%d, 0x10000" % (sHC, sHC))
wave_sum2(AC[0], AC[1], sSUM, sSQ)
A("s_add_u32 s%d, s%d, 1" % (sIT, sIT))
A("s_nop 0")
A("v_writelane_b32 v%d, s%d, m0" % (hRES, sSUM))
A("s_add_u32 m0, m0, 1")
A("s_cmp_lg_u32 s%d, %d" % (sIT, EPW))
A("v_writelane_b32 v%d, s%d, m0" % (hRES, sSQ))
A("s_cbranch_scc1 Lhl")
A("v_cvt_pk_bf16_f32 v%d, v%d, v%d" % (hRES, hRES, hRES))
A("v_and_b32 v%d, 0xffff0000, v%d" % (hRES, hRES))
A("v_add_f32 v%d, s%d, v%d" % (hRES, sB2, hRES))
A("v_cvt_pk_bf16_f32 v%d, v%d, v%d" % (hRES, hRES, hRES))
A("v_and_b32 v%d, 0xffff0000, v%d" % (hRES, hRES))
A("s_bfm_b64 exec, %d, 0" % (2 * EPW))
A("buffer_store_dword v%d, v27, %s, s%d offen sc1" % (hRES, sr(sWS, 4), sHT))
A("s_mov_b64 exec, -1")
STAMP(7)
if DIAG:
    A("s_add_u32 s%d, s%d, 4" % (sW, sW))
    A("v_mov_b32 v28, v30")
    A("s_branch Lfin_exit")
A("s_endpgm")

LB("Lmain")
for i in range(4): A("v_mov_b32 v%d, -1" % (W + i))
A("s_lshl_b32 s%d, s%d, 17" % (sGR, sJ))
A("s_lshr_b32 s%d, s2, 3" % sT1)
A("v_lshlrev_b32 v19, 7, v%d" % vLANE)
A("s_cmp_ge_u32 s%d, 2" % sW)
A("s_cbranch_scc1 Lm_pf")
C("wave 0: 1024 B of early sentinels ; wave 1: the last 16 B and the table slots")
A("s_mul_i32 s%d, s%d, %d" % (sT5, sT1, CLRA_PER))
A("s_add_u32 s%d, s%d, s%d" % (sT5, sT5, sGR))
A("s_lshl_b32 s%d, s%d, 10" % (sT0, sW))
A("s_add_u32 s%d, s%d, s%d" % (sT5, sT5, sT0))
A("s_cmp_eq_u32 s%d, 0" % sW)
A("s_cselect_b64 exec, -1, 1")
A("buffer_store_dwordx4 %s, v%d, %s, s%d offen sc1" % (vr(W, 4), vL16, sr(sWS, 4), sT5))
A("s_mul_i32 s%d, s2, %d" % (sT4, NENT * 4 // 256))
A("s_add_u32 s%d, s%d, %s" % (sT4, sT4, hx(TB)))
A("s_cselect_b64 exec, 0, %d" % ((1 << (NENT * 4 // 256 // 16)) - 1)) if False else None
A("s_cmp_eq_u32 s%d, 0" % sW)
A("s_cbranch_scc1 Lm_go")
A("s_bfm_b64 exec, %d, 0" % (NENT * 4 // 256 // 16))
A("buffer_store_dwordx4 %s, v%d, %s, s%d offen sc1" % (vr(W, 4), vL16, sr(sWS, 4), sT4))
A("s_branch Lm_go")
LB("Lm_pf")
C("waves 2,3: each workgroup pulls a slice of the shared lines into its L2: code / mixer coefficients")
A("s_getpc_b64 s[12:13]")
LB("Lpc0")
A("s_sub_u32 s12, s12, Lpc0-%s_kernel" % NAME)
A("s_subb_u32 s13, s13, 0")
A("s_cmp_eq_u32 s%d, 3" % sW)
A("s_cbranch_scc1 Lm_pc")
A("s_lshl_b32 s%d, s%d, 9" % (sT0, sT1))
A("v_add_u32 v19, s%d, v19" % sT0)
A("s_mov_b64 exec, 15")
A("global_load_dword v%d, v19, s[12:13]" % (W + 8))
A("s_branch Lm_go")
LB("Lm_pc")
A("s_min_u32 s%d, s%d, 27" % (sT0, sT1))
A("s_lshl_b32 s%d, s%d, 7" % (sT0, sT0))
A("v_mov_b32 v19, s%d" % sT0)
A("s_mov_b64 exec, 1")
for k, sd in enumerate([sW1, sB1, sW2]): A("global_load_dword v%d, v19, %s" % (W + 8 + k, sr(sd, 2)))
LB("Lm_go")
A("s_mov_b64 exec, -1")
A("v_mov_b32 v22, %s" % hx(EPO))
A("buffer_load_dword v%d, v22, %s, 0 offen" % (RES, sr(sWS, 4)))
STAMP(11)
for s, n in [(sV, 1 << 25), (sX, 4096), (sWO, 1 << 22), (sOUT, 4096), (sW1, 3584), (sB1, 3584), (sW2, 3584)]: srd(s, n)
A("v_lshlrev_b32 v18, 1, v16")
A("v_xor_b32 v18, v17, v18")
A("v_lshlrev_b32 v18, 4, v18")
A("v_lshl_add_u32 v%d, v16, 8, v18" % vVA)
A("v_xor_b32 v%d, 128, v%d" % (vVA + 1, vVA))
for i in range(D0, D1): kv_issue(i)
common_addr()
A("s_add_u32 s%d, s%d, s%d" % (sQS, sQS, sGR))
A("s_add_u32 s%d, s%d, %d" % (sQS, sQS, Q1_OFF))
wtile_voff(10, 22)
A("v_and_b32 v19, 7, v%d" % vLANE)
A("v_lshrrev_b32 v25, 2, v%d" % vLANE)
A("v_lshlrev_b32 v25, 7, v25")
A("v_lshl_add_u32 v%d, v18, 2, v25" % vOST)
A("v_lshlrev_b32 v25, 7, v16")
A("v_lshl_add_u32 v%d, v19, 4, v25" % vOLD)
A("v_lshlrev_b32 v%d, 1, v%d" % (vPST, vLANE))
A("v_lshlrev_b32 v25, 3, v16")
A("v_lshl_add_u32 v%d, v19, 4, v25" % vX1S)
A("s_mul_i32 s%d, s%d, %d" % (sT0, sW, RBS))
A("s_add_u32 s%d, s%d, %d" % (sT0, sT0, L_RB))
A("v_mul_u32_u24 v25, 528, v18")
A("v_lshl_add_u32 v25, v16, 4, v25")
A("v_lshrrev_b32 v26, 2, v17")
A("v_lshl_add_u32 v25, v26, 7, v25")
A("v_add_u32 v%d, s%d, v25" % (vRBW, sT0))
A("s_mul_i32 s%d, s%d, 528" % (sT0, sW))
A("s_add_u32 s%d, s%d, %d" % (sT0, sT0, L_RB))
A("v_lshlrev_b32 v25, 3, v%d" % vLANE)
A("v_add_u32 v%d, s%d, v25" % (vRBR, sT0))
A("s_lshl_b32 s%d, s%d, 3" % (sT0, sW))
A("s_add_u32 s%d, s%d, %d" % (sT0, sT0, L_ML))
A("v_lshlrev_b32 v25, 5, v18")
A("v_add_u32 v%d, s%d, v25" % (vMLW, sT0))
A("s_lshl_b32 s%d, s%d, 5" % (sT0, sW))
A("s_add_u32 s%d, s%d, %d" % (sT0, sT0, L_ML))
A("v_mov_b32 v%d, s%d" % (vMLR, sT0))
A("v_mov_b32 v25, 0x3f80")
A("v_mov_b32 v26, 0x3f800000")
for r in range(4):
    A("v_cmp_eq_u32 vcc, %d, v17" % (2 * r))
    A("v_cmp_eq_u32 %s, %d, v17" % (sr(sH, 2), 2 * r + 1))
    A("s_nop 0")
    A("v_cndmask_b32 v%d, 0, v25, vcc" % (SEL + r))
    A("v_cndmask_b32 v%d, v%d, v26, %s" % (SEL + r, SEL + r, sr(sH, 2)))
for i in range(16): A("v_mov_b32 v%d, 0" % (PM + i))
for p in range(4):
    A("s_mov_b32 s%d, %s" % (sPM + 2 * p, hx(0x000f000f << (4 * p))))
    A("s_mov_b32 s%d, %s" % (sPM + 2 * p + 1, hx(0x000f000f << (4 * p))))
soff(sOS, [(sW, 13), (sA, 11), (sC, 4), (sJ, 17)], O_OFF[0])
soff(sOL, [(sA, 13), (sW, 11), (sJ, 17)], O_OFF[0])
A("s_add_u32 s%d, s%d, %s" % (sQL, sOL, hx(Q0_OFF - O_OFF[0])))
soff(sLS, [(sW, 7), (sA, 5), (sC, 2), (sJ, 17)], LSE_OFF[0])
soff(sLL, [(sA, 7), (sW, 5), (sJ, 17)], LSE_OFF[0])
soff(sPS, [(sW, 15), (sC, 12), (sJ, 9), (sA, 7)], PB)
A("s_mov_b32 s%d, %s" % (sSC, hx(f2u(128 ** -0.5 * math.log2(math.e)))))
A("s_getreg_b32 s%d, hwreg(HW_REG_XCC_ID, 0, 3)" % sXCC)
A("v_xor_b32 v24, v16, v17")
A("v_lshlrev_b32 v24, 4, v24")
A("v_lshl_add_u32 v24, v17, 8, v24")
A("s_lshl_b32 s%d, s%d, 13" % (sT1, sW))
A("s_add_u32 s%d, s%d, %d" % (sT2, sT1, L_K))
for t in range(4): A("v_xor_b32 v%d, %d, v24" % (18 + t, 64 * t))
for t in range(4): A("v_add_u32 v%d, s%d, v%d" % (18 + t, sT2, 18 + t))
VA = W + 32
A("v_lshrrev_b32 v24, 2, v%d" % vLANE)
A("v_and_b32 v25, 7, v24")
A("v_lshlrev_b32 v25, 1, v25")
A("v_bfe_u32 v26, v%d, 1, 1" % vLANE)
A("v_xor_b32 v25, v25, v26")
A("v_lshlrev_b32 v25, 4, v25")
A("v_lshl_add_u32 v25, v24, 8, v25")
A("v_and_b32 v26, 1, v%d" % vLANE)
A("v_lshl_add_u32 v25, v26, 3, v25")
A("s_add_u32 s%d, s%d, %d" % (sT2, sT1, L_V))
for t in range(8): A("v_xor_b32 v%d, %d, v25" % (VA + t, 32 * t))
for t in range(8): A("v_add_u32 v%d, s%d, v%d" % (VA + t, sT2, VA + t))
soff(sT4, [(sJ, 19), (sA, 17), (sW, 15), (sC, 7)], 0)
A("s_lshl_b32 s%d, s%d, 12" % (sT5, sW))
A("s_add_u32 s%d, s%d, %d" % (sT5, sT5, L_WO))
soff(sT3, [(sA, 10), (sC, 7)], 0)
A("v_lshlrev_b32 v24, 5, v%d" % vLANE)
A("s_lshl_b32 s%d, s%d, 10" % (sT2, sW))
A("s_add_u32 s%d, s%d, %d" % (sT2, sT2, L_QF))
A("v_add_u32 v25, s%d, v%d" % (sT2, vL16))
A("v_add_u32 v26, %d, v%d" % (L_QF, vL16))
STAMP(12)
if DIAG: A("v_mov_b32 v31, v30")
C("early traffic done -> tell the helpers")
A("s_waitcnt vmcnt(%d)" % (D1 - D0))
lds_arrive(0, vT)
A("v_readfirstlane_b32 s%d, v%d" % (sE, RES))
tags()
A("s_or_b32 s%d, s%d, s%d" % (sXCC, sXCC, sTG2))
QP = W
def q0_issue():
    A("buffer_load_dwordx4 %s, v24, %s, s%d offen sc1" % (vr(QP, 4), sr(sWS, 4), sQL))
    A("buffer_load_dwordx4 %s, v24, %s, s%d offen offset:16 sc1" % (vr(QP + 4, 4), sr(sWS, 4), sQL))
C("late sentinels: wave 0,1: group region ; wave 2: P chunk")
A("s_lshr_b32 s%d, s2, 3" % sT1)
A("s_mul_i32 s%d, s%d, %d" % (sT1, sT1, CLRB_PER))
A("s_lshl_b32 s%d, s%d, 10" % (sT0, sW))
A("s_add_u32 s%d, s%d, s%d" % (sT1, sT1, sT0))
A("s_add_u32 s%d, s%d, s%d" % (sT1, sT1, sGR))
A("s_add_u32 s%d, s%d, %d" % (sT1, sT1, CLRB_OFF))
A("s_lshl_b32 s%d, s2, 10" % sT0)
A("s_add_u32 s%d, s%d, %s" % (sT0, sT0, hx(PB)))
A("s_cmp_ge_u32 s%d, 2" % sW)
A("s_cselect_b32 s%d, s%d, s%d" % (sT1, sT0, sT1))
A("s_bfm_b64 %s, %d, 0" % (sr(sH, 2), (CLRB_PER - 1024) // 16))
A("s_cmp_eq_u32 s%d, 1" % sW)
A("s_cselect_b64 %s, %s, -1" % (sr(sH, 2), sr(sH, 2)))
A("s_cmp_eq_u32 s%d, 3" % sW)
A("s_cselect_b64 exec, 1, %s" % sr(sH, 2))
A("buffer_store_dwordx4 %s, v%d, %s, s%d offen sc1" % (vr(W, 4), vL16, sr(sWS, 4), sT1))
A("s_mov_b64 exec, -1")
LATE_DONE = D1 + DEPTH
assert LATE_DONE + 1 < 16 - QV or QV == 0 and LATE_DONE + 1 < 16
for i in range(D1, 16):
    if i == 16 - QV: q0_issue()
    if i >= DEPTH: A("s_waitcnt vmcnt(%d)" % (DEPTH - 1 + (2 if i >= 16 - QV else 0)))
    if i == LATE_DONE: lds_arrive(8, vT)
    if i == LATE_DONE + 1:
        A("s_cmp_lg_u32 s%d, 0" % sW)
        A("s_cbranch_scc1 Lnoflag")
        C("every sentinel store of this workgroup is acknowledged: announce it")
        lds_spin(8, 4, vT)
        A("v_mov_b32 v16, s%d" % sTG1)
        A("v_mov_b32 v17, s%d" % sXCC)
        soff(sT1, [(2, 4)], FB)
        A("v_mov_b32 v27, 0")
        A("s_mov_b64 exec, 1")
        A("buffer_store_dwordx2 v[16:17], v27, %s, s%d offen sc1" % (sr(sWS, 4), sT1))
        A("s_mov_b64 exec, -1")
        LB("Lnoflag")
    kv_issue(i)
if QV == 0: q0_issue()
STAMP(1)
A("s_waitcnt vmcnt(%d)" % 10)
for t in range(4):
    for T in range(2):
        A("ds_read_b128 %s, v%d offset:%d" % (vr(KF + 16 * T + 4 * t, 4), 18 + t, 4096 * T))
A("s_waitcnt vmcnt(%d)" % QV)
STAMP(2)
A("s_setprio 2")
A("s_mov_b32 s%d, %s" % (sCNT, hx(SPIN)))
LB("Lmq")
A("v_and_b32 v16, -8, v%d" % (QP + 3))
A("v_and_b32 v17, -8, v%d" % (QP + 7))
A("v_cmp_ne_u32 vcc, s%d, v%d" % (sTG1, QP + 2))
A("v_cmp_ne_u32 %s, s%d, v%d" % (sr(sRET, 2), sTG1, QP + 6))
A("s_or_b64 vcc, vcc, %s" % sr(sRET, 2))
A("v_cmp_ne_u32 %s, s%d, v16" % (sr(sRET, 2), sTG2))
A("s_or_b64 vcc, vcc, %s" % sr(sRET, 2))
A("v_cmp_ne_u32 %s, s%d, v17" % (sr(sRET, 2), sTG2))
A("s_or_b64 vcc, vcc, %s" % sr(sRET, 2))
A("s_cbranch_vccnz Lmqr")
LB("Lmqd")
Ls = L; L = []
LB("Lmqr")
C("not there yet: poll the plain copy a few times, then the write-through copy")
A("s_cmp_eq_u32 s%d, %s" % (sCNT, hx(SPIN - 8)))
A("s_cselect_b32 s%d, %s, 0" % (sT0, hx(QB_DELTA)))
A("s_add_u32 s%d, s%d, s%d" % (sQL, sQL, sT0))
q0_issue()
A("s_waitcnt vmcnt(0)")
A("s_sub_u32 s%d, s%d, 1" % (sCNT, sCNT))
A("s_cbranch_scc0 Lmq")
A("s_branch Lmqd")
ool.append(L); L = Ls
A("v_cmp_ne_u32 vcc, s%d, v%d" % (sXCC, QP + 3))
A("v_mov_b32 v%d, v%d" % (QP + 2, QP + 4))
A("v_mov_b32 v%d, v%d" % (QP + 3, QP + 5))
A("ds_write_b128 v25, %s" % vr(QP, 4))
A("s_cmp_eq_u64 vcc, 0")
A("s_cselect_b32 s%d, 1, 0x101" % sT0)
A("v_mov_b32 v16, s%d" % sT0)
A("s_waitcnt lgkmcnt(0)")
lds_arrive(4, 16, None)
STAMP(15)
for i in range(4): dma(22 + (i & 1), sWO, sT4, sT5, 0x2000)
A("buffer_load_dwordx2 %s, v%d, %s, s%d offen" % (vr(RES + 2, 2), vX1S, sr(sX, 4), sT3))
FLG = W + 44
soff(sT5, [(sW, 10)], FB)
soff(sQL, [(sA, 12), (sJ, 17)], Q1_OFF)
lds_spin(4, 4, vT, mask=0xff)
A("s_cmp_lt_u32 s%d, 256" % sT1)
A("s_cselect_b32 s%d, 1, 0" % sFAST)
QF = W + 16
for t in range(4):
    A("ds_read_b128 %s, v26 offset:%d" % (vr(QF + 4 * t, 4), 1024 * t))
A("buffer_load_dwordx4 %s, v%d, %s, s%d offen sc1" % (vr(FLG, 4), vL16, sr(sWS, 4), sT5))
if PRET:
    C("bring the (cleared) group mailbox lines into L2")
    A("s_lshr_b32 s%d, s2, 3" % sT5)
    A("s_lshl_b32 s%d, s%d, 2" % (sT5, sT5))
    A("s_add_u32 s%d, s%d, s%d" % (sT5, sT5, sW))
    A("s_mul_i32 s%d, s%d, 768" % (sT5, sT5))
    A("s_add_u32 s%d, s%d, s%d" % (sT5, sT5, sGR))
    A("v_lshlrev_b32 v27, 7, v%d" % vLANE)
    A("s_mov_b64 exec, 63")
    A("buffer_load_dword v%d, v27, %s, s%d offen sc1" % (W + 40, sr(sWS, 4), sT5))
    A("s_mov_b64 exec, -1")
S = W
qk = []
for t in range(4):
    for T in range(2):
        qk.append(mf(S + 4 * T, KF + 16 * T + 4 * t, QF + 4 * t, None if t == 0 else S + 4 * T))
for t in range(4):
    A("s_waitcnt lgkmcnt(%d)" % (3 - t))
    A(qk[2 * t]); A(qk[2 * t + 1])
STAMP(3)
A("s_branch Lk_go")

LB("Llnq")
C("LayerNorm of the row held in XR, then q partial = xn @ wq tile")
X = W
row_stats(XR, vT, X)
A("v_add_f32 v%d, %s, v%d" % (vT + 1, EPS, vT + 1))
A("v_rsq_f32 v%d, v%d" % (vT + 2, vT + 1))
A("s_cmp_eq_u32 s%d, 0" % sLAY)
A("v_mul_f32 v%d, v%d, v%d" % (vT + 3, vT, vT + 2))
for i in range(4):
    A("v_pk_fma_f32 %s, %s, %s, %s op_sel:[0,0,1] op_sel_hi:[1,0,1] neg_lo:[0,0,1] neg_hi:[0,0,1]" % (vr(X + 2 * i, 2), vr(X + 2 * i, 2), vr(vT + 2, 2), vr(vT + 2, 2)))
for i in range(4):
    A("v_cvt_pk_bf16_f32 v%d, v%d, v%d" % (X + 8 + i, X + 2 * i, X + 2 * i + 1))
A("ds_write_b128 v%d, %s" % (vXNW, vr(X + 8, 4)))
A("s_cbranch_scc1 Lq_first")
A("s_waitcnt lgkmcnt(0)")
A("s_barrier")
LB("Lq_go")
BF = W + 16
for t in range(4):
    A("ds_read_b128 %s, v%d offset:%d" % (vr(BF + 4 * t, 4), vXNR, 64 * t))
for t in range(4):
    A("s_waitcnt lgkmcnt(%d)" % (3 - t))
    mfma(W, WQF + 4 * t, BF + 4 * t, None if t == 0 else W)
A("s_cmp_eq_u32 s%d, 0" % sLAY)
A("s_mov_b64 exec, %s" % sr(sMSK, 2))
NOP(6)
A("v_cvt_pk_bf16_f32 v%d, v%d, v%d" % (W + 4, W, W + 1))
A("v_cvt_pk_bf16_f32 v%d, v%d, v%d" % (W + 5, W + 2, W + 3))
A("s_cbranch_scc1 Lh_qst")
fastcmp()
store_local("buffer_store_dwordx2", vr(W + 4, 2), vQST, sQS)
A("s_mov_b64 exec, -1")
STAMP(2)

C("attention over this workgroup's 128 keys")
def iq():
    for t in range(4):
        A("buffer_load_dwordx4 %s, v%d, %s, s%d offen offset:%d sc1" % (vr(QF + 4 * t, 4), vL16, sr(sWS, 4), sQL, 1024 * t))
poll(iq, range(QF, QF + 16), vT, spec=qk)
STAMP(3)
LB("Lk_go")
NOP(7)
for ctl in ["row_ror:4", "row_ror:8"]:
    for i in range(8):
        A("v_add_f32_dpp v%d, v%d, v%d %s row_mask:0xf bank_mask:0xf" % (S + i, S + i, S + i, ctl))
A("v_max3_f32 v%d, v%d, v%d, v%d" % (vT, S, S + 1, S + 2))
A("v_max3_f32 v%d, v%d, v%d, v%d" % (vT + 1, S + 3, S + 4, S + 5))
A("v_max3_f32 v%d, v%d, v%d, v%d" % (vT, vT, S + 6, S + 7))
A("v_max_f32 v%d, v%d, v%d" % (vT, vT, vT + 1))
A("v_mov_b32 v%d, v%d" % (vT + 1, vT))
A("s_nop 1")
A("v_permlane16_swap_b32 v%d, v%d" % (vT, vT + 1))
A("v_max_f32 v%d, v%d, v%d" % (vT, vT, vT + 1))
A("v_mov_b32 v%d, v%d" % (vT + 1, vT))
A("s_nop 1")
A("v_permlane32_swap_b32 v%d, v%d" % (vT, vT + 1))
A("v_max_f32 v%d, v%d, v%d" % (vT, vT, vT + 1))
A("v_mul_f32 v%d, s%d, v%d" % (vT + 2, sSC, vT))
for i in range(8):
    A("v_fma_f32 v%d, v%d, s%d, -v%d" % (S + i, S + i, sSC, vT + 2))
for i in range(8):
    A("v_exp_f32 v%d, v%d" % (S + i, S + i))
for p in range(4):
    A("s_mov_b64 exec, %s" % sr(sPM + 2 * p, 2))
    for i in range(4):
        A("v_cvt_pk_bf16_f32 v%d, v%d, v%d" % (PM + 4 * p + i, S + 2 * i, S + 2 * i + 1))
A("s_mov_b64 exec, -1")
STAMP(4)
A("s_cmp_lg_u32 s%d, 0" % sLAY)
A("s_cbranch_scc1 Lv_go")
A("s_waitcnt vmcnt(%d)" % (6 + PRET))
STAMP(6)
for t in range(8):
    for hf in range(2):
        A("ds_read_b64_tr_b16 %s, v%d offset:%d" % (vr(VF + 4 * t + 2 * hf, 2), VA + t, 4096 * hf))
A("s_waitcnt lgkmcnt(0)")
LB("Lv_go")
OA = W + 8
mfma(W + 16, ONES, PM, None)
for p in range(4):
    for T in range(2):
        mfma(OA + 4 * T, VF + 4 * (2 * p + T), PM + 4 * p, None if p == 0 else OA + 4 * T)
A("s_mov_b64 exec, %s" % sr(sMSK, 2))
A("v_mov_b32 v%d, v%d" % (vT + 3, W + 16))
A("ds_write_b64 v%d, %s" % (vMLW, vr(vT + 2, 2)))
A("s_mov_b64 exec, -1")
NOP(3)
A("ds_write_b128 v%d, %s" % (vRBW, vr(OA, 4)))
A("ds_write_b128 v%d, %s offset:64" % (vRBW, vr(OA + 4, 4)))
A("s_waitcnt lgkmcnt(0)")
A("s_cbranch_scc1 Lrb_bar")
lds_arrive(12, vT + 4)
lds_spin(12, 4, vT + 4)
A("s_branch Lrb_go")
LB("Lrb_bar")
A("s_barrier")
LB("Lrb_go")
A("ds_read_b128 %s, v%d" % (vr(W, 4), vMLR))
A("ds_read_b128 %s, v%d offset:16" % (vr(W + 4, 4), vMLR))
for w in range(4):
    A("ds_read_b64 %s, v%d offset:%d" % (vr(W + 8 + 2 * w, 2), vRBR, RBS * w))
A("v_mov_b32 v%d, 0" % (vT + 4))
A("v_xor_b32 v%d, 16, v%d" % (vT + 6, vLSE))
fastcmp()
A("s_waitcnt lgkmcnt(4)")
A("v_max3_f32 v%d, v%d, v%d, v%d" % (vT, W, W + 2, W + 4))
A("v_max_f32 v%d, v%d, v%d" % (vT, vT, W + 6))
for w in range(4): A("v_sub_f32 v%d, v%d, v%d" % (W + 2 * w, W + 2 * w, vT))
for w in range(4): A("v_exp_f32 v%d, v%d" % (W + 2 * w, W + 2 * w))
A("v_mul_f32 v%d, v%d, v%d" % (vT + 1, W, W + 1))
for w in range(1, 4): A("v_fmac_f32 v%d, v%d, v%d" % (vT + 1, W + 2 * w, W + 2 * w + 1))
A("s_waitcnt lgkmcnt(0)")
A("v_pk_mul_f32 %s, %s, %s op_sel_hi:[1,0]" % (vr(W + 8, 2), vr(W + 8, 2), vr(W, 2)))
A("v_rcp_f32 v%d, v%d" % (vT + 2, vT + 1))
for w in range(1, 4):
    A("v_pk_fma_f32 %s, %s, %s, %s op_sel_hi:[1,0,1]" % (vr(W + 8, 2), vr(W + 8 + 2 * w, 2), vr(W + 2 * w, 2), vr(W + 8, 2)))
A("v_log_f32 v%d, v%d" % (vT + 5, vT + 1))
A("v_pk_mul_f32 %s, %s, %s op_sel_hi:[1,0]" % (vr(W + 8, 2), vr(W + 8, 2), vr(vT + 2, 2)))
A("v_add_f32 v%d, v%d, v%d" % (vT + 3, vT + 5, vT))
A("v_cvt_pk_bf16_f32 v%d, v%d, v%d" % (W + 8, W + 8, W + 9))
store_local("buffer_store_dword", "v%d" % (W + 8), vOST, sOS)
A("s_mov_b64 exec, 1")
store_local("buffer_store_dword", "v%d" % (vT + 3), vT + 4, sLS)
A("s_mov_b64 exec, -1")
STAMP(5)

C("wo phase: wave = batch, rows = key splits")
OF = W; LS = W + 16; DA = W + 24
def io():
    A("buffer_load_dwordx4 %s, v%d, %s, s%d offen sc1" % (vr(LS, 4), vLSE, sr(sWS, 4), sLL))
    A("buffer_load_dwordx4 %s, v%d, %s, s%d offen sc1" % (vr(LS + 4, 4), vT + 6, sr(sWS, 4), sLL))
    for t in range(4):
        A("buffer_load_dwordx4 %s, v%d, %s, s%d offen offset:%d sc1" % (vr(OF + 4 * t, 4), vOLD, sr(sWS, 4), sOL, 512 * t))
def pre_o():
    A("s_cmp_lg_u32 s%d, 0" % sLAY)
    A("s_cbranch_scc1 Lo_go")
    A("s_cmp_lg_u32 s%d, %s" % (sCNT, hx(SPIN)))
    A("s_cbranch_scc1 Lo_go")
    C("first layer: wo tile landed -> fragments; every workgroup has announced its clears")
    A("s_waitcnt vmcnt(8)")
    STAMP(13)
    A("s_mov_b32 s%d, %s" % (sT4, hx(SPIN)))
    LB("Lap")
    A("v_and_b32 v24, -8, v%d" % (FLG + 1))
    A("v_cmp_ne_u32 vcc, s%d, v%d" % (sTG1, FLG))
    A("v_cmp_ne_u32 %s, s%d, v24" % (sr(sH, 2), sTG2))
    A("s_or_b64 vcc, vcc, %s" % sr(sH, 2))
    A("s_cbranch_vccnz Lar")
    LB("Lad")
    lds_arrive(16, 24)
    for i in range(2):
        A("v_lshlrev_b32 v%d, 16, v%d" % (W + 40 + 2 * i, RES + 2 + i))
        A("v_and_b32 v%d, 0xffff0000, v%d" % (W + 41 + 2 * i, RES + 2 + i))
    for i in range(4): A("v_mov_b32 v%d, v%d" % (RES + i, W + 40 + i))
    for ct in range(4): A("v_xor_b32 v%d, %d, v%d" % (W + 40 + ct, 32 * ct, vWT))
    for ct in range(4): A("v_add_u32 v%d, %d, v%d" % (W + 40 + ct, L_WO, W + 40 + ct))
    lds_spin(16, 4, 24)
    STAMP(14)
    for t in range(4):
        for ct in range(4):
            for hf in range(2):
                A("ds_read_b64_tr_b16 %s, v%d offset:%d" % (vr(WOF + 16 * ct + 4 * t + 2 * hf, 2), W + 40 + ct, 4096 * t + 512 * hf))
    A("s_waitcnt lgkmcnt(0)")
    LB("Lo_go")
ool.append(["Lar:", "    s_lshl_b32 s%d, s%d, 10" % (sT5, sW), "    s_add_u32 s%d, s%d, %s" % (sT5, sT5, hx(FB)),
            "    buffer_load_dwordx4 %s, v%d, %s, s%d offen sc1" % (vr(FLG, 4), vL16, sr(sWS, 4), sT5),
            "    s_waitcnt vmcnt(0)", "    s_sub_u32 s%d, s%d, 1" % (sT4, sT4), "    s_cbranch_scc0 Lap", "    s_branch Lad"])
wo1 = [mf(DA + 4 * ct, OF + 4 * t, WOF + 16 * ct + 4 * t, None if t == 0 else DA + 4 * ct) for t in range(2) for ct in range(4)]
poll(io, list(range(LS, LS + 8)) + list(range(OF, OF + 16)), vT, pre_o, spec=wo1)
STAMP(7)
va = ["v_max3_f32 v%d, v%d, v%d, v%d" % (vT, LS, LS + 1, LS + 2), "v_max3_f32 v%d, v%d, v%d, v%d" % (vT + 1, LS + 3, LS + 4, LS + 5),
      "v_max3_f32 v%d, v%d, v%d, v%d" % (vT, vT, LS + 6, LS + 7), "v_max_f32 v%d, v%d, v%d" % (vT, vT, vT + 1)]
va += ["v_sub_f32 v%d, v%d, v%d" % (LS + i, LS + i, vT) for i in range(4)]
va += ["v_exp_f32 v%d, v%d" % (LS + i, LS + i) for i in range(4)]
va += ["v_add_f32 v%d, v%d, v%d" % (vT, LS, LS + 1), "v_add_f32 v%d, v%d, v%d" % (vT + 1, LS + 2, LS + 3),
       "v_add_f32 v%d, v%d, v%d" % (vT, vT, vT + 1), "v_mov_b32 v%d, v%d" % (vT + 1, vT)]
for t in range(2, 4):
    for ct in range(4):
        mfma(DA + 4 * ct, OF + 4 * t, WOF + 16 * ct + 4 * t, DA + 4 * ct)
        for k in range(2): A(va.pop(0))
A("s_mov_b32 s%d, 0x55555555" % sT4)
A("s_mov_b32 s%d, 0x55555555" % sT5)
A("v_permlane16_swap_b32 v%d, v%d" % (vT, vT + 1))
A("v_mul_f32 v%d, v%d, v%d" % (DA, DA, LS))
A("v_add_f32 v%d, v%d, v%d" % (vT, vT, vT + 1))
A("v_mul_f32 v%d, v%d, v%d" % (DA + 4, DA + 4, LS))
A("v_rcp_f32 v%d, v%d" % (vT, vT))
A("v_mul_f32 v%d, v%d, v%d" % (DA + 8, DA + 8, LS))
for i in range(1, 4):
    for ct in range(3):
        A("v_fmac_f32 v%d, v%d, v%d" % (DA + 4 * ct, DA + 4 * ct + i, LS + i))
    if i == 1: A("v_mul_f32 v%d, v%d, v%d" % (DA + 12, DA + 12, LS))
for i in range(1, 4): A("v_fmac_f32 v%d, v%d, v%d" % (DA + 12, DA + 12 + i, LS + i))
A("v_permlane16_swap_b32 v%d, v%d" % (DA, DA + 4))
A("s_nop 0")
A("v_permlane16_swap_b32 v%d, v%d" % (DA + 8, DA + 12))
A("v_add_f32 v%d, v%d, v%d" % (DA, DA, DA + 4))
A("v_add_f32 v%d, v%d, v%d" % (DA + 8, DA + 8, DA + 12))
A("s_nop 1")
A("v_permlane32_swap_b32 v%d, v%d" % (DA, DA + 8))
A("v_mul_f32 v%d, v%d, v%d" % (DA, DA, vT))
A("s_cmp_lg_u32 s%d, 0" % sLAY)
A("s_nop 0")
A("v_mov_b32_dpp v%d, v%d quad_perm:[1,0,3,2] row_mask:0xf bank_mask:0xf" % (DA + 1, DA))
A("s_mov_b64 exec, %s" % sr(sT4, 2))
A("v_cvt_pk_bf16_f32 v%d, v%d, v%d" % (DA, DA, DA + 1))
A("buffer_store_dword v%d, v%d, %s, s%d offen sc1" % (DA, vPST, sr(sWS, 4), sPS))
A("s_mov_b64 exec, -1")
STAMP(8)
A("s_cbranch_scc1 Lfinal")

A("s_cmp_lg_u32 s%d, 0" % sW)
A("s_cbranch_scc1 Ltab")
C("stage 1 (wave 0): reduce 32 head partials of 64 outputs, add residual, publish x1 slice")
soff(sT1, [(sA, 15), (sC, 12)], PB)
soff(sT2, [(sA, 10), (sC, 7), (sJ, 17)], X1_OFF)
A("s_mov_b32 s%d, 0x00ff00ff" % sT4)
A("s_mov_b32 s%d, 0" % sT5)
A("s_waitcnt vmcnt(0)")
def ip():
    for i in range(4):
        A("buffer_load_dwordx4 %s, v%d, %s, s%d offen offset:%d sc1" % (vr(W + 4 * i, 4), vL16, sr(sWS, 4), sT1, 1024 * i))
poll(ip, range(W, W + 16), vT, spec=[mf(W + 16, SEL, W + 4 * i, None if i == 0 else W + 16) for i in range(4)])
STAMP(9)
fastcmp()
NOP(6)
for i in range(4):
    A("v_add_f32_dpp v%d, v%d, v%d row_ror:8 row_mask:0xf bank_mask:0xf" % (W + 16 + i, W + 16 + i, W + 16 + i))
A("s_mov_b64 exec, %s" % sr(sT4, 2))
A("v_pk_add_f32 %s, %s, %s" % (vr(W + 16, 2), vr(W + 16, 2), vr(RES, 2)))
A("v_pk_add_f32 %s, %s, %s" % (vr(W + 18, 2), vr(W + 18, 2), vr(RES + 2, 2)))
A("v_cvt_pk_bf16_f32 v%d, v%d, v%d" % (W + 16, W + 16, W + 17))
A("v_cvt_pk_bf16_f32 v%d, v%d, v%d" % (W + 17, W + 18, W + 19))
store_local("buffer_store_dwordx2", vr(W + 16, 2), vX1S, sT2)
A("s_mov_b64 exec, -1")
LB("Ltabdone")
soff(sT3, [(sW, 10), (sJ, 17)], X1_OFF)
def ix():
    A("buffer_load_dwordx4 %s, v%d, %s, s%d offen sc1" % (vr(XR, 4), vL16, sr(sWS, 4), sT3))
wqf_reads()
def pre_x():
    A("ds_read_b32 v%d, v%d offset:20" % (vT + 2, vFL))
poll(ix, range(XR, XR + 4), vT, pre_x, spec=["s_waitcnt lgkmcnt(0)", "v_readfirstlane_b32 s%d, v%d" % (sT1, vT + 2)])
A("s_cmp_lt_u32 s%d, 3" % sT1)
A("s_cbranch_scc1 Ltw")
LB("Ltwd")
STAMP(10)

LB("Lmix")
C("x <- x + g(LN(LN(x))) ; g is tabulated for every bf16 input in range, evaluated directly otherwise")
X = W; HB = W + 8; RT = W + 12; AD = W + 16; Y = W + 24
row_stats(XR, vT, X)
A("v_add_f32 v%d, %s, v%d" % (vT + 2, EPS, vT + 1))
A("v_rsq_f32 v%d, v%d" % (vT + 2, vT + 2))
A("v_mov_b32 v%d, %s" % (vT + 4, hx(LO2 | (LO2 << 16))))
A("v_mul_f32 v%d, v%d, v%d" % (vT + 1, vT + 1, vT + 2))
A("v_fmaak_f32 v%d, v%d, v%d, %s" % (vT + 1, vT + 1, vT + 2, EPS))
A("v_rsq_f32 v%d, v%d" % (vT + 1, vT + 1))
A("s_nop 0")
A("v_mul_f32 v%d, v%d, v%d" % (vT + 2, vT + 2, vT + 1))
A("v_mul_f32 v%d, v%d, v%d" % (vT + 3, vT, vT + 2))
for i in range(4):
    A("v_pk_fma_f32 %s, %s, %s, %s op_sel:[0,0,1] op_sel_hi:[1,0,1] neg_lo:[0,0,1] neg_hi:[0,0,1]" % (vr(AD + 2 * i, 2), vr(X + 2 * i, 2), vr(vT + 2, 2), vr(vT + 2, 2)))
for i in range(4):
    A("v_cvt_pk_bf16_f32 v%d, v%d, v%d" % (HB + i, AD + 2 * i, AD + 2 * i + 1))
for i in range(4):
    A("v_pk_lshlrev_b16 v%d, 1, v%d op_sel_hi:[0,1]" % (RT + i, HB + i))
    A("v_pk_lshrrev_b16 v%d, 15, v%d op_sel_hi:[0,1]" % (AD + i, HB + i))
for i in range(4):
    A("v_or_b32 v%d, v%d, v%d" % (RT + i, RT + i, AD + i))
for i in range(4):
    A("v_pk_sub_u16 v%d, v%d, v%d" % (RT + i, RT + i, vT + 4))
for i in range(4):
    A("v_lshlrev_b32_sdwa v%d, 2, v%d dst_sel:DWORD dst_unused:UNUSED_PAD src0_sel:DWORD src1_sel:WORD_0" % (AD + 2 * i, RT + i))
    A("v_lshlrev_b32_sdwa v%d, 2, v%d dst_sel:DWORD dst_unused:UNUSED_PAD src0_sel:DWORD src1_sel:WORD_1" % (AD + 2 * i + 1, RT + i))
    A("ds_read_b32 v%d, v%d offset:%d" % (Y + 2 * i, AD + 2 * i, L_TAB))
    A("ds_read_b32 v%d, v%d offset:%d" % (Y + 2 * i + 1, AD + 2 * i + 1, L_TAB))
A("v_max3_u32 v%d, v%d, v%d, v%d" % (vT, AD, AD + 1, AD + 2))
A("v_max3_u32 v%d, v%d, v%d, v%d" % (vT + 1, AD + 3, AD + 4, AD + 5))
A("v_max3_u32 v%d, v%d, v%d, v%d" % (vT, vT, AD + 6, AD + 7))
A("v_max_u32 v%d, v%d, v%d" % (vT, vT, vT + 1))
A("v_cmp_le_u32 vcc, %d, v%d" % (NENT * 4, vT))
A("s_cbranch_vccnz Lslow")
LB("Lslowdone")
A("s_cmp_lg_u32 s%d, 0" % sLAY)
for i in range(4):
    A("s_waitcnt lgkmcnt(%d)" % (6 - 2 * i))
    A("v_pk_add_f32 %s, %s, %s" % (vr(X + 2 * i, 2), vr(X + 2 * i, 2), vr(Y + 2 * i, 2)))
for i in range(4):
    A("v_cvt_pk_bf16_f32 v%d, v%d, v%d" % (XR + i, X + 2 * i, X + 2 * i + 1))
STAMP(11)
A("s_cbranch_scc1 Lout")
A("ds_write_b128 v%d, %s offset:%d" % (vXNW, vr(XR, 4), L_X2 - L_XN))
A("s_mov_b32 s%d, 1" % sLAY)
for s, d in [(sOL, O_OFF[1] - O_OFF[0]), (sOS, O_OFF[1] - O_OFF[0]), (sLL, LSE_OFF[1] - LSE_OFF[0]), (sLS, LSE_OFF[1] - LSE_OFF[0]), (sPS, P_L)]:
    A("s_add_u32 s%d, s%d, %d" % (s, s, d))
if DIAG: A("v_mov_b32 v28, v30")
A("s_branch Llnq")

LB("Lfinal")
A("s_cmp_ge_u32 s2, 4")
A("s_cbranch_scc1 Lfin_exit")
C("workgroup b: reduce the 32 head partials of row b, add x2, mixer, store")
soff(sT1, [(2, 15), (sW, 13)], PB + P_L)
A("s_add_u32 s%d, s%d, 4096" % (sT2, sT1))
A("s_mul_i32 s%d, s2, %d" % (sT0, XS))
A("s_lshl_b32 s%d, s%d, 8" % (sT3, sW))
A("s_add_u32 s%d, s%d, s%d" % (sT0, sT0, sT3))
A("s_add_u32 s%d, s%d, %d" % (sT0, sT0, L_X2))
A("v_add_u32 v%d, s%d, v%d" % (vT + 4, sT0, vX1S))
A("s_add_u32 s%d, s%d, %d" % (sT3, sT3, L_XN))
A("v_add_u32 v%d, s%d, v%d" % (vT + 5, sT3, vX1S))
A("ds_read_b64 %s, v%d" % (vr(PM, 2), vT + 4))
A("ds_read_b64 %s, v%d offset:128" % (vr(PM + 2, 2), vT + 4))
A("s_mov_b32 s%d, 0x00ff00ff" % sT4)
A("s_mov_b32 s%d, 0" % sT5)
A("s_waitcnt vmcnt(0) lgkmcnt(0)")
for i in range(4):
    A("v_lshlrev_b32 v%d, 16, v%d" % (PM + 4 + 2 * i, PM + i))
    A("v_and_b32 v%d, 0xffff0000, v%d" % (PM + 5 + 2 * i, PM + i))
def ifin():
    for i in range(8):
        A("buffer_load_dwordx4 %s, v%d, %s, s%d offen offset:%d sc1" % (vr(W + 4 * i, 4), vL16, sr(sWS, 4), sT1 if i < 4 else sT2, 1024 * (i & 3)))
fs = []
for i in range(4):
    fs.append(mf(W + 32, SEL, W + 4 * i, None if i == 0 else W + 32))
    fs.append(mf(W + 36, SEL, W + 16 + 4 * i, None if i == 0 else W + 36))
poll(ifin, range(W, W + 32), vT, spec=fs)
STAMP(9)
NOP(7)
for i in range(8):
    A("v_add_f32_dpp v%d, v%d, v%d row_ror:8 row_mask:0xf bank_mask:0xf" % (W + 32 + i, W + 32 + i, W + 32 + i))
A("s_mov_b64 exec, %s" % sr(sT4, 2))
for i in range(4):
    A("v_pk_add_f32 %s, %s, %s" % (vr(W + 32 + 2 * i, 2), vr(W + 32 + 2 * i, 2), vr(PM + 4 + 2 * i, 2)))
for i in range(4):
    A("v_cvt_pk_bf16_f32 v%d, v%d, v%d" % (W + 32 + i, W + 32 + 2 * i, W + 33 + 2 * i))
A("ds_write_b64 v%d, %s" % (vT + 5, vr(W + 32, 2)))
A("ds_write_b64 v%d, %s offset:128" % (vT + 5, vr(W + 34, 2)))
A("s_mov_b64 exec, -1")
A("s_cmp_lg_u32 s%d, 0" % sW)
A("s_waitcnt lgkmcnt(0)")
A("s_barrier")
A("s_cbranch_scc1 Lfin_exit")
A("ds_read_b128 %s, v%d" % (vr(XR, 4), vXNW))
A("s_waitcnt lgkmcnt(0)")
STAMP(10)
A("s_branch Lmix")
LB("Lout")
A("s_lshl_b32 s%d, s2, 10" % sT0)
A("buffer_store_dwordx4 %s, v%d, %s, s%d offen" % (vr(XR, 4), vL16, sr(sOUT, 4), sT0))
A("s_cmp_lg_u32 s2, 0")
A("s_cbranch_scc1 Lfin_exit")
A("v_mov_b32 v16, s%d" % sTG1)
A("v_mov_b32 v17, %s" % hx(EPO))
A("s_mov_b64 exec, 1")
A("buffer_store_dword v16, v17, %s, 0 offen sc1" % sr(sWS, 4))
A("s_mov_b64 exec, -1")
if DBL:
    A("s_waitcnt vmcnt(0)")
    A("s_memrealtime s[10:11]")
    A("s_waitcnt lgkmcnt(0)")
    A("s_sub_u32 s12, s10, s98")
    LB("Ldbl")
    A("s_memrealtime s[14:15]")
    A("s_waitcnt lgkmcnt(0)")
    A("s_sub_u32 s13, s14, s10")
    A("s_cmp_lt_u32 s13, s12")
    A("s_cbranch_scc1 Ldbl")
LB("Lfin_exit")
if DIAG:
    A("s_waitcnt vmcnt(0)")
    STAMP(12)
    if DIAG == 2:
        A("s_or_b32 s%d, s2, s%d" % (sT0, sW))
        A("s_cmp_lg_u32 s%d, 0" % sT0)
        A("s_cbranch_scc1 Lend")
        A("v_readlane_b32 s%d, v28, 0" % sT2)
        for k, (r, i) in enumerate([(31, 10), (31, 12), (28, 1), (28, 2), (28, 6), (28, 5), (28, 7), (28, 8), (28, 9), (28, 10), (28, 11), (30, 3), (30, 5), (30, 8), (30, 9), (30, 12)]):
            A("v_readlane_b32 s%d, v%d, %d" % (sT3, r, i))
            A("s_sub_u32 s%d, s%d, s%d" % (sT3, sT3, sT2))
            A("s_nop 0")
            A("v_writelane_b32 v17, s%d, %d" % (sT3, k))
        A("v_lshlrev_b32 v16, 2, v%d" % vLANE)
        A("s_mov_b64 exec, 0xffff")
        A("global_store_dword v16, v17, s[96:97]")
        A("s_endpgm")
    soff(sT1, [(2, 10), (sW, 7)], STB)
    A("v_lshlrev_b32 v16, 2, v%d" % vLANE)
    A("s_mov_b64 exec, 0xffff")
    A("buffer_store_dword v28, v16, %s, s%d offen" % (sr(sWS, 4), sT1))
    A("buffer_store_dword v30, v16, %s, s%d offen offset:64" % (sr(sWS, 4), sT1))
    A("s_add_u32 s%d, s%d, 0x40000" % (sT1, sT1))
    A("buffer_store_dword v31, v16, %s, s%d offen" % (sr(sWS, 4), sT1))
LB("Lend")
A("s_endpgm")

LB("Ltab")
C("waves 1..3: gather the g(h) table into LDS")
NTL = -(-NENT * 4 // 3 // 1024)
A("s_sub_u32 s%d, s%d, 1" % (sT1, sW))
A("s_mul_i32 s%d, s%d, %d" % (sT1, sT1, NTL * 1024))
A("s_min_u32 s%d, s%d, %d" % (sT1, sT1, NENT * 4 - NTL * 1024))
A("v_add_u32 v%d, s%d, v%d" % (vT + 4, sT1, vL16))
A("s_add_u32 s%d, s%d, %s" % (sT1, sT1, hx(TB)))
A("s_add_u32 s%d, s%d, 4096" % (sT2, sT1))
def it():
    for i in range(NTL):
        A("buffer_load_dwordx4 %s, v%d, %s, s%d offen offset:%d sc1" % (vr(W + 4 * i, 4), vL16, sr(sWS, 4), sT1 if i < 4 else sT2, 1024 * (i & 3)))
poll(it, range(W, W + 4 * NTL), vT)
for i in range(NTL):
    A("ds_write_b128 v%d, %s offset:%d" % (vT + 4, vr(W + 4 * i, 4), L_TAB + 1024 * i))
A("s_waitcnt lgkmcnt(0)")
lds_arrive(20, vT + 4)
STAMP(9)
A("s_branch Ltabdone")
LB("Ltw")
lds_spin(20, 3, vT + 2)
A("s_branch Ltwd")

LB("Lslow")
C("rare: some h lies outside the table -> evaluate g(h) directly for those lanes")
RW1 = [W + 32 + i for i in range(14)]
RB1 = [PM + i for i in range(14)]
RW2 = [16 + i for i in range(10)] + [W + 46, W + 47, PM + 14, PM + 15]
A("v_lshlrev_b32 v26, 3, v%d" % vLANE)
A("s_load_dword s%d, %s, 0" % (sB2, sr(sB2P, 2)))
for (d4, d2, s) in [([W + 32, W + 36, W + 40], W + 44, sW1), ([PM, PM + 4, PM + 8], PM + 12, sB1)]:
    for k in range(3):
        A("buffer_load_dwordx4 %s, v%d, %s, 0 offen offset:%d" % (vr(d4[k], 4), vL16, sr(s, 4), 1024 * k))
    A("buffer_load_dwordx2 %s, v26, %s, 0 offen offset:3072" % (vr(d2, 2), sr(s, 4)))
A("buffer_load_dwordx4 v[16:19], v%d, %s, 0 offen" % (vL16, sr(sW2, 4)))
A("buffer_load_dwordx4 v[20:23], v%d, %s, 0 offen offset:1024" % (vL16, sr(sW2, 4)))
A("buffer_load_dwordx2 v[24:25], v%d, %s, 0 offen offset:2048" % (vL16, sr(sW2, 4)))
A("buffer_load_dwordx2 %s, v%d, %s, 0 offen offset:2056" % (vr(W + 46, 2), vL16, sr(sW2, 4)))
A("buffer_load_dwordx2 %s, v26, %s, 0 offen offset:3072" % (vr(PM + 14, 2), sr(sW2, 4)))
A("s_waitcnt vmcnt(0) lgkmcnt(0)")
A("s_lshl_b32 s%d, s%d, 16" % (sB2, sB2))
for e in range(8):
    A("v_cmp_le_u32 vcc, %d, v%d" % (NENT * 4, AD + e))
    A("s_mov_b64 %s, vcc" % sr(sH2, 2))
    LB("Lse%d" % e)
    A("s_cmp_eq_u64 %s, 0" % sr(sH2, 2))
    A("s_cbranch_scc1 Lsf%d" % e)
    A("s_ff1_i32_b64 s%d, %s" % (sT0, sr(sH2, 2)))
    A("s_bitset0_b64 %s, s%d" % (sr(sH2, 2), sT0))
    A("s_mov_b32 m0, s%d" % sT0)
    A("v_readlane_b32 s%d, v%d, s%d" % (sH, HB + (e >> 1), sT0))
    if e & 1: A("s_and_b32 s%d, s%d, 0xffff0000" % (sH, sH))
    else: A("s_lshl_b32 s%d, s%d, 16" % (sH, sH))
    A("s_call_b64 %s, Lgev" % sr(sRET, 2))
    A("v_writelane_b32 v%d, s%d, m0" % (Y + e, sY))
    A("s_branch Lse%d" % e)
    LB("Lsf%d" % e)
for i in range(16): A("v_mov_b32 v%d, 0" % (PM + i))
A("s_branch Lslowdone")
LB("Lgev")
a, u, t1, z = RES, RES + 1, RES + 2, RT
A("v_mov_b32 v%d, 0" % a)
A("v_mov_b32 v%d, %s" % (RT + 1, hx(f2u(K0))))
A("v_mov_b32 v%d, %s" % (RT + 2, hx(f2u(K1))))
for p in range(14):
    for hf in range(2):
        def un(d, s):
            if hf == 0: A("v_lshlrev_b32 v%d, 16, v%d" % (d, s))
            else: A("v_and_b32 v%d, 0xffff0000, v%d" % (d, s))
        un(u, RW1[p]); un(t1, RB1[p]); un(z, RW2[p])
        A("v_fma_f32 v%d, v%d, s%d, v%d" % (u, u, sH, t1))
        A("v_mul_f32 v%d, v%d, v%d" % (t1, u, u))
        A("v_fma_f32 v%d, v%d, v%d, v%d" % (t1, t1, RT + 2, RT + 1))
        A("v_mul_f32 v%d, v%d, v%d" % (t1, t1, u))
        A("v_exp_f32 v%d, v%d" % (t1, t1))
        A("v_mul_f32 v%d, v%d, v%d" % (z, z, u))
        A("v_add_f32 v%d, 1.0, v%d" % (t1, t1))
        A("v_rcp_f32 v%d, v%d" % (t1, t1))
        A("s_nop 0")
        A("v_fmac_f32 v%d, v%d, v%d" % (a, z, t1))
A("v_mov_b32 v%d, v%d" % (u, a))
A("s_nop 1")
wave_sum2(a, u, sY, sT1)
A("s_nop 1")
A("v_mov_b32 v%d, s%d" % (a, sY))
A("v_cvt_pk_bf16_f32 v%d, v%d, v%d" % (a, a, a))
A("v_and_b32 v%d, 0xffff0000, v%d" % (a, a))
A("v_add_f32 v%d, s%d, v%d" % (a, sB2, a))
A("v_cvt_pk_bf16_f32 v%d, v%d, v%d" % (a, a, a))
A("v_and_b32 v%d, 0xffff0000, v%d" % (a, a))
A("s_nop 0")
A("v_readfirstlane_b32 s%d, v%d" % (sY, a))
A("s_nop 3")
A("s_setpc_b64 %s" % sr(sRET, 2))

for b in ool: L += b
A("s_endpgm")
L.append(".p2align 8")
L.append(".fill (16640 - (. - %s_kernel)) / 4, 4, 0xBF800000" % NAME)
L.append('''.section .rodata,"a"
.p2align 6
.amdhsa_kernel %s_kernel
  .amdhsa_next_free_vgpr 256
  .amdhsa_next_free_sgpr 102
  .amdhsa_accum_offset 256
  .amdhsa_group_segment_fixed_size 0
  .amdhsa_kernarg_size 104
  .amdhsa_user_sgpr_count 2
  .amdhsa_user_sgpr_kernarg_segment_ptr 1
  .amdhsa_system_sgpr_workgroup_id_x 1
.end_amdhsa_kernel''' % NAME)
open(OUTF, "w").write("\n".join(x for x in L if x is not None) + "\n")
print("wrote", OUTF, "lines", len(L), "LDS", LDS_SZ)
```

```python
import sys, struct, math

NAME = "interleave_layers__sliding_block_cached__mixer_token_mlp__decode"
OUTF = sys.argv[1] if len(sys.argv) > 1 else "cdna_kernels/%s.s" % NAME
DIAG = int(sys.argv[2]) if len(sys.argv) > 2 else 0
DBL = 0
if DIAG == 3: DIAG = 0; DBL = 1
OPT = dict(a.split("=") for a in sys.argv[3:])
DEPTH = int(OPT.get("depth", 7))
D0 = int(OPT.get("d0", 2))
D1 = int(OPT.get("d1", 4))
QV = int(OPT.get("qv", 2))
PRET = int(OPT.get("pret", 1))
NOCT = int(OPT.get("noct", 24))
QPOS = int(OPT.get("qpos", 1))
QPOS2 = int(OPT.get("qpos2", 7))

def f2u(x): return struct.unpack("<I", struct.pack("<f", x))[0]
def hx(x): return "0x%08x" % (x & 0xffffffff)

L = []
def A(s): L.append("    " + s)
def LB(s): L.append(s + ":")
def C(s): L.append("    ; " + s)
def vr(a, n): return "v[%d:%d]" % (a, a + n - 1)
def sr(a, n): return "s[%d:%d]" % (a, a + n - 1)
def NOP(n):
    while n > 0:
        k = min(n, 16); A("s_nop %d" % (k - 1)); n -= k

ELO = 132 - NOCT if NOCT == 24 else 130 - NOCT
LO2 = (ELO << 7) * 2
NENT = NOCT * 256
EPW = NENT // 256 // 4 // 2
GRS = 0x20000
O_OFF = [0x0000, 0xC400]; LSE_OFF = [0x8000, 0x14400]; Q1_OFF = 0x8400; X1_OFF = 0x14600
CLRA_PER = 1040
CLRB_OFF = 0x8400; CLRB_PER = 1680
Q0_OFF = 0x18000
EPO = 0x17f00
PB = 0x100000; P_L = 0x20000
TB = 0x140000; FB = 0x148000
QB_DELTA = 0x180000
STB = 0x300000
WS_SZ = 0x400000
L_TAB = 0
L_WQ = 24576; L_K = L_WQ + 16384; L_V = L_K + 32768; L_WO = L_V + 32768
L_XN = L_WO + 16384; XS = 1056
L_X2 = L_XN + 4 * XS
L_FLG = L_X2 + 4 * XS
L_RB = L_K; RBS = 2048 + 64; L_ML = L_K + 4 * RBS
L_QF = L_X2
LDS_SZ = int(OPT.get("lds", L_FLG + 64))
SPIN = 0x40000
K0 = -2.0 * math.sqrt(2.0 / math.pi) * math.log2(math.e)
K1 = K0 * 0.044715
EPS = hx(f2u(1e-5))

sTG1, sTG2 = 0, 1
sW, sJ, sA, sC, sGR, sLAY, sFAST = 3, 4, 5, 6, 7, 8, 9
sT0, sT1, sT2, sT3, sT4, sT5 = 10, 11, 12, 13, 14, 15
sCNT = 16
sQL, sQS, sOL, sOS, sLL, sLS, sPS = 17, 18, 19, 20, 21, 22, 23
sSC, sIT = 24, 25
sSUM, sSQ = 26, 27
sH, sH2, sRET, sMSK = 28, 30, 32, 34
sB2, sY, sXCC, sE = 36, 37, 38, 39
sB2P = 40
sK, sV, sWQ, sWO, sWS, sX, sOUT, sW1, sB1, sW2 = 44, 48, 52, 56, 60, 64, 68, 72, 76, 80
sKO, sKL, sVO, sVL = 84, 85, 86, 87
sPM = 88
sHC, sHT = 84, 85

def STAMP(i):
    if DIAG:
        A("s_memrealtime s[42:43]"); A("s_waitcnt lgkmcnt(0)")
        A("v_writelane_b32 v30, s42, %d" % i)

vLANE = 1
vL16, vQST, vOST, vOLD, vPST, vX1S, vXNW, vXNR, vRBW, vRBR, vMLW, vMLR, vLSE, vZ = range(2, 16)
vT = 16
vWT, vFL = 28, 29
KF, VF, WQF, WOF, SEL, ONES = 32, 64, 96, 112, 176, 180
W = 184
PM = 232
XR = 248
RES = 252

def srd(s, nbytes):
    A("s_mov_b32 s%d, %s" % (s + 2, hx(nbytes))); A("s_mov_b32 s%d, 0x00020000" % (s + 3))

def soff(dst, terms, const):
    first = True
    for (src, sh) in terms:
        if first: A("s_lshl_b32 s%d, s%d, %d" % (dst, src, sh)); first = False
        else:
            A("s_lshl_b32 s%d, s%d, %d" % (sT0, src, sh)); A("s_add_u32 s%d, s%d, s%d" % (dst, dst, sT0))
    if const: A("s_add_u32 s%d, s%d, %s" % (dst, dst, hx(const)))

def wave_sum2(a, b, sa, sb):
    for ctl in ["row_ror:8", "row_ror:4", "row_ror:2", "row_ror:1"]:
        A("v_add_f32_dpp v%d, v%d, v%d %s row_mask:0xf bank_mask:0xf" % (a, a, a, ctl))
        A("v_add_f32_dpp v%d, v%d, v%d %s row_mask:0xf bank_mask:0xf" % (b, b, b, ctl))
        A("s_nop 0")
    for ctl in ["row_bcast:15 row_mask:0xa", "row_bcast:31 row_mask:0xc"]:
        A("v_add_f32_dpp v%d, v%d, v%d %s bank_mask:0xf" % (a, a, a, ctl))
        A("v_add_f32_dpp v%d, v%d, v%d %s bank_mask:0xf" % (b, b, b, ctl))
        A("s_nop 0")
    A("v_readlane_b32 s%d, v%d, 63" % (sa, a))
    A("v_readlane_b32 s%d, v%d, 63" % (sb, b))

def row_stats(x, t, unp):
    A("v_dot2_f32_bf16 v%d, v%d, v%d, 0" % (t, x, ONES))
    A("v_dot2_f32_bf16 v%d, v%d, v%d, 0" % (t + 1, x, x))
    for i in range(1, 4):
        A("v_dot2_f32_bf16 v%d, v%d, v%d, v%d" % (t, x + i, ONES, t))
        A("v_dot2_f32_bf16 v%d, v%d, v%d, v%d" % (t + 1, x + i, x + i, t + 1))
    un = []
    for i in range(4):
        un.append("v_lshlrev_b32 v%d, 16, v%d" % (unp + 2 * i, x + i))
        un.append("v_and_b32 v%d, 0xffff0000, v%d" % (unp + 2 * i + 1, x + i))
    for k in range(3): A(un.pop(0))
    a, b = t, t + 1
    for ctl in ["row_ror:8 row_mask:0xf", "row_ror:4 row_mask:0xf", "row_ror:2 row_mask:0xf", "row_ror:1 row_mask:0xf", "row_bcast:15 row_mask:0xa", "row_bcast:31 row_mask:0xc"]:
        A("v_add_f32_dpp v%d, v%d, v%d %s bank_mask:0xf" % (a, a, a, ctl))
        A("v_add_f32_dpp v%d, v%d, v%d %s bank_mask:0xf" % (b, b, b, ctl))
        A(un.pop(0) if un else "s_nop 0")
    A("v_readlane_b32 s%d, v%d, 63" % (sSUM, a))
    A("v_readlane_b32 s%d, v%d, 63" % (sSQ, b))
    A("s_nop 0")
    A("v_mul_f32 v%d, s%d, v%d" % (t, sSUM, vZ))
    A("v_mul_f32 v%d, s%d, v%d" % (t + 1, sSQ, vZ))
    A("v_fma_f32 v%d, -v%d, v%d, v%d" % (t + 1, t, t, t + 1))
    A("v_max_f32 v%d, 0, v%d" % (t + 1, t + 1))

ool = []
uid = [0]
def maxtree(regs, tmp):
    r = list(regs); out = []
    out.append("v_max3_u32 v%d, v%d, v%d, v%d" % (tmp, r[0], r[1], r[2])); r = r[3:]
    if len(r) >= 5:
        out.append("v_max3_u32 v%d, v%d, v%d, v%d" % (tmp + 1, r[0], r[1], r[2])); r = r[3:]
        d = 0
        while len(r) >= 2:
            out.append("v_max3_u32 v%d, v%d, v%d, v%d" % (tmp + d, tmp + d, r[0], r[1])); r = r[2:]; d ^= 1
        if r: out.append("v_max3_u32 v%d, v%d, v%d, v%d" % (tmp, tmp, tmp + 1, r[0]))
        else: out.append("v_max_u32 v%d, v%d, v%d" % (tmp, tmp, tmp + 1))
    else:
        while len(r) >= 2:
            out.append("v_max3_u32 v%d, v%d, v%d, v%d" % (tmp, tmp, r[0], r[1])); r = r[2:]
        if r: out.append("v_max_u32 v%d, v%d, v%d" % (tmp, tmp, r[0]))
    return out

def poll(issue, regs, tmp, pre_wait=None, spec=None):
    uid[0] += 1; u = uid[0]
    A("s_mov_b32 s%d, %s" % (sCNT, hx(SPIN)))
    LB("Lp%d" % u)
    issue()
    if pre_wait: pre_wait()
    A("s_waitcnt vmcnt(0)")
    mt = maxtree(regs, tmp) + ["v_cmp_eq_u32 vcc, -1, v%d" % tmp]
    spec = list(spec or [])
    ns = len(spec)
    per = -(-len(mt) // ns) if ns else 0
    for s in spec:
        A(s)
        for k in range(per):
            if mt: A(mt.pop(0))
    for m in mt: A(m)
    A("s_cbranch_vccnz Lr%d" % u)
    LB("Ld%d" % u)
    ool.append(["Lr%d:" % u, "    s_sub_u32 s%d, s%d, 1" % (sCNT, sCNT), "    s_cbranch_scc1 Ld%d" % u, "    s_nop 7", "    s_branch Lp%d" % u])

def lds_spin(off, target, tmp, mask=None, sleep=0):
    uid[0] += 1; u = uid[0]
    A("s_mov_b32 s%d, %s" % (sT2, hx(SPIN * 4)))
    LB("Ls%d" % u)
    A("ds_read_b32 v%d, v%d offset:%d" % (tmp, vFL, off))
    A("s_waitcnt lgkmcnt(0)")
    A("v_readfirstlane_b32 s%d, v%d" % (sT1, tmp))
    if mask: A("s_and_b32 s%d, s%d, %d" % (sT0, sT1, mask))
    A("s_cmp_ge_u32 s%d, %d" % (sT0 if mask else sT1, target))
    A("s_cbranch_scc1 Lt%d" % u)
    if sleep: A("s_sleep %d" % sleep)
    A("s_sub_u32 s%d, s%d, 1" % (sT2, sT2))
    A("s_cbranch_scc0 Ls%d" % u)
    LB("Lt%d" % u)

def lds_arrive(off, tmp, val=1):
    if val is not None: A("v_mov_b32 v%d, %d" % (tmp, val))
    A("s_mov_b64 exec, 1")
    A("ds_add_u32 v%d, v%d offset:%d" % (vFL, tmp, off))
    A("s_mov_b64 exec, -1")

def store_local(op, data, vaddr, so):
    uid[0] += 1; u = uid[0]
    A("s_cbranch_scc1 Lw%d" % u)
    A("%s %s, v%d, %s, s%d offen" % (op, data, vaddr, sr(sWS, 4), so))
    LB("Lx%d" % u)
    ool.append(["Lw%d:" % u, "    %s %s, v%d, %s, s%d offen sc1" % (op, data, vaddr, sr(sWS, 4), so), "    s_branch Lx%d" % u])
def fastcmp(): A("s_cmp_eq_u32 s%d, 0" % sFAST)

def mf(d, a, b, c):
    return "v_mfma_f32_16x16x32_bf16 %s, %s, %s, %s" % (vr(d, 4), vr(a, 4), vr(b, 4), "0" if c is None else vr(c, 4))
def mfma(d, a, b, c): A(mf(d, a, b, c))

def tags():
    A("s_add_u32 s%d, s%d, 1" % (sTG1, sE))
    A("s_mul_i32 s%d, s%d, 0x9E3779B1" % (sTG2, sTG1))
    A("s_and_b32 s%d, s%d, -8" % (sTG2, sTG2))

def common_addr():
    A("v_and_b32 v18, 3, v%d" % vLANE)
    A("v_lshlrev_b32 v%d, 12, v17" % vQST)
    A("v_lshrrev_b32 v24, 1, v16")
    A("v_lshl_add_u32 v%d, v24, 8, v%d" % (vQST, vQST))
    A("v_and_b32 v24, 1, v16")
    A("v_lshl_add_u32 v%d, v24, 3, v%d" % (vQST, vQST))
    A("v_lshlrev_b32 v%d, 4, v24" % vLSE)
    A("s_mul_i32 s%d, s%d, %d" % (sT0, sW, XS))
    A("s_add_u32 s%d, s%d, %d" % (sT0, sT0, L_XN))
    A("v_add_u32 v%d, s%d, v%d" % (vXNW, sT0, vL16))
    A("s_lshl_b32 s%d, s%d, 8" % (sT0, sA))
    A("s_add_u32 s%d, s%d, %d" % (sT0, sT0, L_XN))
    A("v_mul_u32_u24 v25, %d, v18" % XS)
    A("v_lshl_add_u32 v25, v16, 4, v25")
    A("v_add_u32 v%d, s%d, v25" % (vXNR, sT0))
    A("v_mov_b32 v%d, %s" % (vZ, hx(f2u(1.0 / 512))))
    for r in range(4): A("v_mov_b32 v%d, 0x3f803f80" % (ONES + r))
    A("s_and_b32 s%d, s%d, 1" % (sT1, sC))
    A("s_lshr_b32 s%d, s%d, 1" % (sT2, sC))
    soff(sQS, [(sT1, 11), (sW, 9), (sA, 6), (sT2, 4)], 0)
    A("v_bfe_u32 v24, v%d, 2, 2" % vLANE)
    A("v_lshl_add_u32 v24, v16, 3, v24")
    A("v_lshlrev_b32 v24, 7, v24")
    A("v_bfe_u32 v25, v%d, 3, 2" % vLANE)
    A("v_lshlrev_b32 v25, 1, v25")
    A("v_bfe_u32 v26, v%d, 1, 1" % vLANE)
    A("v_xor_b32 v25, v25, v26")
    A("v_lshl_add_u32 v24, v25, 4, v24")
    A("v_and_b32 v26, 1, v%d" % vLANE)
    A("v_lshl_add_u32 v%d, v26, 3, v24" % vWT)
    A("s_mov_b32 s%d, 0x000f000f" % sMSK)
    A("s_mov_b32 s%d, 0x000f000f" % (sMSK + 1))
    A("s_mov_b32 s%d, 0" % sLAY)

def wtile_voff(shift, d):
    A("v_lshrrev_b32 v24, 3, v%d" % vLANE)
    A("v_and_b32 v25, 7, v%d" % vLANE)
    A("v_and_b32 v26, 1, v16")
    A("v_lshlrev_b32 v26, 1, v26")
    A("v_xor_b32 v25, v25, v26")
    A("v_lshlrev_b32 v25, 4, v25")
    A("v_lshl_add_u32 v%d, v24, %d, v25" % (d, shift))
    A("v_xor_b32 v%d, 64, v%d" % (d + 1, d))

def wqf_reads():
    A("s_lshl_b32 s%d, s%d, 5" % (sT1, sW))
    A("v_xor_b32 v26, s%d, v%d" % (sT1, vWT))
    for t in range(4):
        for hf in range(2):
            A("ds_read_b64_tr_b16 %s, v26 offset:%d" % (vr(WQF + 4 * t + 2 * hf, 2), L_WQ + 4096 * t + 512 * hf))

def dma(vaddr, srdn, so, lds_s, step_so, flags="nt"):
    A("s_mov_b32 m0, s%d" % lds_s)
    A("s_add_u32 s%d, s%d, 1024" % (lds_s, lds_s))
    A("buffer_load_dwordx4 v%d, %s, s%d offen %s lds" % (vaddr, sr(srdn, 4), so, flags))
    A("s_add_u32 s%d, s%d, %d" % (so, so, step_so))

hdr = open("cdna_kernels/%s.s.ref" % NAME).read().split("; Override launch")[0]
L.append(hdr.rstrip("\n"))
L.append("; @launch grid=(256,1,1) block=(512,1,1) lds=%d" % LDS_SZ)
L.append('.amdgcn_target "amdgcn-amd-amdhsa--gfx950"')
L.append(".text\n.globl %s_kernel\n.p2align 8\n.type %s_kernel,@function\n%s_kernel:" % (NAME, NAME, NAME))
if DIAG: A("s_memrealtime s[42:43]")
if DBL: A("s_memrealtime s[98:99]")
A("s_cmp_ge_u32 s2, 256")
A("s_cbranch_scc1 Lend")
if DIAG == 2: A("s_load_dwordx2 s[96:97], s[0:1], 88")
for s, off in [(sW1, 48), (sB1, 56), (sW2, 64), (sWQ, 24), (sK, 8), (sX, 0), (sWS, 96), (sV, 16), (sWO, 32), (sOUT, 80), (sB2P, 72)]:
    A("s_load_dwordx2 %s, s[0:1], %d" % (sr(s, 2), off))
A("v_lshrrev_b32 v18, 6, v0")
A("v_and_b32 v%d, 63, v0" % vLANE)
A("v_mov_b32 v%d, %d" % (vFL, L_FLG))
A("v_readfirstlane_b32 s%d, v18" % sW)
A("v_lshlrev_b32 v%d, 4, v%d" % (vL16, vLANE))
A("v_lshrrev_b32 v16, 4, v%d" % vLANE)
A("v_and_b32 v17, 15, v%d" % vLANE)
A("s_and_b32 s%d, s2, 7" % sJ)
A("s_lshr_b32 s%d, s2, 6" % sA)
A("s_bfe_u32 s%d, s2, 0x30003" % sC)
for i in range(4): A("v_mov_b32 v%d, 0" % (20 + i))
A("ds_write_b128 v%d, v[20:23]" % vFL)
A("ds_write_b128 v%d, v[20:23] offset:16" % vFL)
srd(sWS, WS_SZ)
if DIAG: A("v_mov_b32 v30, 0")
A("s_cmp_ge_u32 s%d, 4" % sW)
A("s_cbranch_scc1 Lhelper")
vKA, vVA = W + 40, W + 44
srd(sK, 1 << 25)
A("v_xor_b32 v18, v17, v16")
A("v_lshlrev_b32 v18, 4, v18")
A("v_lshl_add_u32 v%d, v16, 8, v18" % vKA)
for i in range(1, 4): A("v_xor_b32 v%d, %d, v%d" % (vKA + i, 64 * i, vKA))
soff(sKO, [(sA, 23), (sJ, 20), (sC, 15), (sW, 13)], 3072 * 256)
A("s_add_u32 s%d, s%d, %d" % (sKL, sT0, L_K))
A("s_add_u32 s%d, s%d, %d" % (sVL, sT0, L_V))
A("s_mov_b32 s%d, s%d" % (sVO, sKO))
def kv_issue(i):
    if i < 8: dma(vKA + (i & 3), sK, sKO, sKL, 1024)
    else: dma(vVA + (i & 1), sV, sVO, sVL, 1024)
A("s_waitcnt lgkmcnt(0)")
A("s_barrier")
for i in range(D0): kv_issue(i)
if DIAG: A("v_writelane_b32 v30, s42, 0")
STAMP(10)
A("s_branch Lmain")

LB("Lhelper")
C("---- helper waves: first q projection, then the table of g over bf16 inputs ----")
HW1, HB1, HW2 = 32, 60, 112
hK0, hK1, hONE, hRES = 88, 90, 92, 94
AC = [140, 142]; U = [144, 146]; T_ = [148, 150]; Z = [152, 154]
for s, n in [(sWQ, 1 << 22), (sX, 4096)]: srd(s, n)
A("s_sub_u32 s%d, s%d, 4" % (sW, sW))
wtile_voff(13, 20)
soff(sT4, [(sA, 20), (sW, 18), (sJ, 10), (sC, 7)], 0)
A("s_lshl_b32 s%d, s%d, 12" % (sT2, sW))
A("s_add_u32 s%d, s%d, %d" % (sT2, sT2, L_WQ))
A("s_lshl_b32 s%d, s%d, 10" % (sT3, sW))
A("v_mov_b32 v22, %s" % hx(EPO))
A("v_mov_b32 v23, 0")
A("s_waitcnt lgkmcnt(0)")
A("s_barrier")
A("buffer_load_dwordx4 %s, v%d, %s, s%d offen" % (vr(XR, 4), vL16, sr(sX, 4), sT3))
for i in range(4): dma(20 + (i & 1), sWQ, sT4, sT2, 0x10000)
A("buffer_load_dword v%d, v22, %s, 0 offen" % (RES, sr(sWS, 4)))
A("global_load_ushort v%d, v23, %s" % (RES + 1, sr(sB2P, 2)))
if DIAG: A("v_writelane_b32 v30, s42, 0")
STAMP(9)
A("s_lshl_b32 s%d, s%d, 17" % (sGR, sJ))
A("s_lshl_b32 s%d, s2, 2" % sHC)
A("s_add_u32 s%d, s%d, s%d" % (sHC, sHC, sW))
A("s_mul_i32 s%d, s%d, %d" % (sHC, sHC, EPW))
A("s_lshl_b32 s%d, s%d, 3" % (sHT, sHC))
A("s_add_u32 s%d, s%d, %s" % (sHT, sHT, hx(TB)))
A("s_add_u32 s%d, s%d, %d" % (sHC, sHC, ELO * 128))
A("s_lshl_b32 s%d, s%d, 16" % (sHC, sHC))
A("v_lshlrev_b32 v27, 2, v%d" % vLANE)
common_addr()
A("s_lshl_b32 s%d, s%d, 1" % (sQS, sQS))
A("s_add_u32 s%d, s%d, s%d" % (sQS, sQS, sGR))
A("s_add_u32 s%d, s%d, %s" % (sQS, sQS, hx(Q0_OFF)))
A("v_lshlrev_b32 v%d, 1, v%d" % (vQST, vQST))
A("s_getreg_b32 s%d, hwreg(HW_REG_XCC_ID, 0, 3)" % sXCC)
for r, c in [(hK0, K0), (hK1, K1), (hONE, 1.0)]:
    A("v_mov_b32 v%d, %s" % (r, hx(f2u(c)))); A("v_mov_b32 v%d, %s" % (r + 1, hx(f2u(c))))
A("v_mov_b32 v%d, 0" % hRES)
A("s_mov_b32 s%d, 0" % sIT)
for s, n in [(sW1, 3584), (sB1, 3584), (sW2, 3584)]: srd(s, n)
A("s_mov_b32 m0, s%d" % sT3)
A("s_waitcnt vmcnt(6)")
for i, sd in enumerate([sW1, sB1, sW2]):
    A("buffer_load_dwordx4 v%d, %s, s%d offen lds" % (vL16, sr(sd, 4), sT3))
    if i < 2:
        A("s_add_u32 m0, m0, 4096"); A("s_nop 0")
STAMP(1)
A("s_branch Llnq")
LB("Lq_first")
A("s_waitcnt vmcnt(3) lgkmcnt(0)")
STAMP(2)
lds_arrive(0, vT + 4)
A("v_readfirstlane_b32 s%d, v%d" % (sE, RES))
A("v_readfirstlane_b32 s%d, v%d" % (sB2, RES + 1))
tags()
A("s_or_b32 s%d, s%d, s%d" % (sXCC, sXCC, sTG2))
A("s_lshl_b32 s%d, s%d, 16" % (sB2, sB2))
C("4 helper arrivals (wq tile, xn rows) + 4 main arrivals (coefficients landed, sentinels acknowledged)")
lds_spin(0, 8, vT + 4)
wqf_reads()
A("s_waitcnt lgkmcnt(0)")
A("s_branch Lq_go")
LB("Lh_qst")
A("v_mov_b32 v%d, s%d" % (W + 6, sTG1))
A("v_mov_b32 v%d, s%d" % (W + 7, sXCC))
A("buffer_store_dwordx4 %s, v%d, %s, s%d offen%s" % (vr(W + 4, 4), vQST, sr(sWS, 4), sQS, "" if int(OPT.get("fast", 1)) else " sc1"))
A("s_add_u32 s%d, s%d, %s" % (sQS, sQS, hx(QB_DELTA)))
A("buffer_store_dwordx4 %s, v%d, %s, s%d offen sc1" % (vr(W + 4, 4), vQST, sr(sWS, 4), sQS))
A("s_mov_b64 exec, -1")
HR = W + 8
STAMP(3)
A("v_lshlrev_b32 v26, 3, v%d" % vLANE)
A("s_waitcnt vmcnt(2)")
lds_arrive(24, 24)
lds_spin(24, 4, 24)
for a_ in range(3):
    for k in range(3):
        A("ds_read_b128 %s, v%d offset:%d" % (vr(HR + 14 * a_ + 4 * k, 4), vL16, 4096 * a_ + 1024 * k))
    A("ds_read_b64 %s, v26 offset:%d" % (vr(HR + 14 * a_ + 12, 2), 4096 * a_ + 3072))
for a_, d in [(0, HW1), (14, HB1), (28, HW2)]:
    A("s_waitcnt lgkmcnt(%d)" % (8 - 4 * (a_ // 14)))
    for p in range(14):
        A("v_lshlrev_b32 v%d, 16, v%d" % (d + 2 * p, HR + a_ + p))
        A("v_and_b32 v%d, 0xffff0000, v%d" % (d + 2 * p + 1, HR + a_ + p))
STAMP(4)
LB("Lhl")
A("s_mov_b32 s%d, s%d" % (sH, sHC)); A("s_mov_b32 s%d, s%d" % (sH + 1, sHC))
A("s_xor_b32 s%d, s%d, 0x80000000" % (sH2, sHC)); A("s_mov_b32 s%d, s%d" % (sH2 + 1, sH2))
for p in range(14):
    for sg in range(2):
        A("v_pk_fma_f32 %s, %s, %s, %s" % (vr(U[sg], 2), vr(HW1 + 2 * p, 2), sr([sH, sH2][sg], 2), vr(HB1 + 2 * p, 2)))
    for sg in range(2): A("v_pk_mul_f32 %s, %s, %s" % (vr(T_[sg], 2), vr(U[sg], 2), vr(U[sg], 2)))
    for sg in range(2): A("v_pk_fma_f32 %s, %s, %s, %s" % (vr(T_[sg], 2), vr(T_[sg], 2), vr(hK1, 2), vr(hK0, 2)))
    for sg in range(2): A("v_pk_mul_f32 %s, %s, %s" % (vr(T_[sg], 2), vr(T_[sg], 2), vr(U[sg], 2)))
    for sg in range(2): A("v_pk_mul_f32 %s, %s, %s" % (vr(Z[sg], 2), vr(U[sg], 2), vr(HW2 + 2 * p, 2)))
    for sg in range(2):
        for h in range(2): A("v_exp_f32 v%d, v%d" % (T_[sg] + h, T_[sg] + h))
    for sg in range(2): A("v_pk_add_f32 %s, %s, %s" % (vr(T_[sg], 2), vr(T_[sg], 2), vr(hONE, 2)))
    for sg in range(2):
        for h in range(2): A("v_rcp_f32 v%d, v%d" % (T_[sg] + h, T_[sg] + h))
    for sg in range(2):
        if p == 0: A("v_pk_mul_f32 %s, %s, %s" % (vr(AC[sg], 2), vr(Z[sg], 2), vr(T_[sg], 2)))
        else: A("v_pk_fma_f32 %s, %s, %s, %s" % (vr(AC[sg], 2), vr(Z[sg], 2), vr(T_[sg], 2), vr(AC[sg], 2)))
A("v_add_f32 v%d, v%d, v%d" % (AC[0], AC[0], AC[0] + 1))
A("v_add_f32 v%d, v%d, v%d" % (AC[1], AC[1], AC[1] + 1))
A("s_lshl_b32 m0, s%d, 1" % sIT)
A("s_add_u32 s%d, s%d, 0x10000" % (sHC, sHC))
wave_sum2(AC[0], AC[1], sSUM, sSQ)
A("s_add_u32 s%d, s%d, 1" % (sIT, sIT))
A("s_nop 0")
A("v_writelane_b32 v%d, s%d, m0" % (hRES, sSUM))
A("s_add_u32 m0, m0, 1")
A("s_cmp_lg_u32 s%d, %d" % (sIT, EPW))
A("v_writelane_b32 v%d, s%d, m0" % (hRES, sSQ))
A("s_cbranch_scc1 Lhl")
A("v_cvt_pk_bf16_f32 v%d, v%d, v%d" % (hRES, hRES, hRES))
A("v_and_b32 v%d, 0xffff0000, v%d" % (hRES, hRES))
A("v_add_f32 v%d, s%d, v%d" % (hRES, sB2, hRES))
A("v_cvt_pk_bf16_f32 v%d, v%d, v%d" % (hRES, hRES, hRES))
A("v_and_b32 v%d, 0xffff0000, v%d" % (hRES, hRES))
A("s_bfm_b64 exec, %d, 0" % (2 * EPW))
A("buffer_store_dword v%d, v27, %s, s%d offen sc1" % (hRES, sr(sWS, 4), sHT))
A("s_mov_b64 exec, -1")
STAMP(7)
if DIAG:
    A("s_add_u32 s%d, s%d, 4" % (sW, sW))
    A("v_mov_b32 v28, v30")
    A("s_branch Lfin_exit")
A("s_endpgm")

LB("Lmain")
for i in range(4): A("v_mov_b32 v%d, -1" % (W + i))
A("s_lshl_b32 s%d, s%d, 17" % (sGR, sJ))
A("s_lshr_b32 s%d, s2, 3" % sT1)
A("v_lshlrev_b32 v19, 7, v%d" % vLANE)
A("s_cmp_ge_u32 s%d, 2" % sW)
A("s_cbranch_scc1 Lm_pf")
C("wave 0: 1024 B of early sentinels ; wave 1: the last 16 B and the table slots")
A("s_mul_i32 s%d, s%d, %d" % (sT5, sT1, CLRA_PER))
A("s_add_u32 s%d, s%d, s%d" % (sT5, sT5, sGR))
A("s_lshl_b32 s%d, s%d, 10" % (sT0, sW))
A("s_add_u32 s%d, s%d, s%d" % (sT5, sT5, sT0))
A("s_cmp_eq_u32 s%d, 0" % sW)
A("s_cselect_b64 exec, -1, 1")
A("buffer_store_dwordx4 %s, v%d, %s, s%d offen sc1" % (vr(W, 4), vL16, sr(sWS, 4), sT5))
A("s_mul_i32 s%d, s2, %d" % (sT4, NENT * 4 // 256))
A("s_add_u32 s%d, s%d, %s" % (sT4, sT4, hx(TB)))
A("s_cselect_b64 exec, 0, %d" % ((1 << (NENT * 4 // 256 // 16)) - 1)) if False else None
A("s_cmp_eq_u32 s%d, 0" % sW)
A("s_cbranch_scc1 Lm_go")
A("s_bfm_b64 exec, %d, 0" % (NENT * 4 // 256 // 16))
A("buffer_store_dwordx4 %s, v%d, %s, s%d offen sc1" % (vr(W, 4), vL16, sr(sWS, 4), sT4))
A("s_branch Lm_go")
LB("Lm_pf")
C("waves 2,3: each workgroup pulls a slice of the shared lines into its L2: code / mixer coefficients")
A("s_getpc_b64 s[12:13]")
LB("Lpc0")
A("s_sub_u32 s12, s12, Lpc0-%s_kernel" % NAME)
A("s_subb_u32 s13, s13, 0")
A("s_cmp_eq_u32 s%d, 3" % sW)
A("s_cbranch_scc1 Lm_pc")
A("s_lshl_b32 s%d, s%d, 9" % (sT0, sT1))
A("v_add_u32 v19, s%d, v19" % sT0)
A("s_mov_b64 exec, 15")
A("global_load_dword v%d, v19, s[12:13]" % (W + 8))
A("s_branch Lm_go")
LB("Lm_pc")
A("s_min_u32 s%d, s%d, 27" % (sT0, sT1))
A("s_lshl_b32 s%d, s%d, 7" % (sT0, sT0))
A("v_mov_b32 v19, s%d" % sT0)
A("s_mov_b64 exec, 1")
for k, sd in enumerate([sW1, sB1, sW2]): A("global_load_dword v%d, v19, %s" % (W + 8 + k, sr(sd, 2)))
LB("Lm_go")
A("s_mov_b64 exec, -1")
A("v_mov_b32 v22, %s" % hx(EPO))
A("buffer_load_dword v%d, v22, %s, 0 offen" % (RES, sr(sWS, 4)))
STAMP(11)
for s, n in [(sV, 1 << 25), (sX, 4096), (sWO, 1 << 22), (sOUT, 4096), (sW1, 3584), (sB1, 3584), (sW2, 3584)]: srd(s, n)
A("v_lshlrev_b32 v18, 1, v16")
A("v_xor_b32 v18, v17, v18")
A("v_lshlrev_b32 v18, 4, v18")
A("v_lshl_add_u32 v%d, v16, 8, v18" % vVA)
A("v_xor_b32 v%d, 128, v%d" % (vVA + 1, vVA))
for i in range(D0, D1): kv_issue(i)
common_addr()
A("s_add_u32 s%d, s%d, s%d" % (sQS, sQS, sGR))
A("s_add_u32 s%d, s%d, %d" % (sQS, sQS, Q1_OFF))
wtile_voff(10, 22)
A("v_and_b32 v19, 7, v%d" % vLANE)
A("v_lshrrev_b32 v25, 2, v%d" % vLANE)
A("v_lshlrev_b32 v25, 7, v25")
A("v_lshl_add_u32 v%d, v18, 2, v25" % vOST)
A("v_lshlrev_b32 v25, 7, v16")
A("v_lshl_add_u32 v%d, v19, 4, v25" % vOLD)
A("v_lshlrev_b32 v%d, 1, v%d" % (vPST, vLANE))
A("v_lshlrev_b32 v25, 3, v16")
A("v_lshl_add_u32 v%d, v19, 4, v25" % vX1S)
A("s_mul_i32 s%d, s%d, %d" % (sT0, sW, RBS))
A("s_add_u32 s%d, s%d, %d" % (sT0, sT0, L_RB))
A("v_mul_u32_u24 v25, 528, v18")
A("v_lshl_add_u32 v25, v16, 4, v25")
A("v_lshrrev_b32 v26, 2, v17")
A("v_lshl_add_u32 v25, v26, 7, v25")
A("v_add_u32 v%d, s%d, v25" % (vRBW, sT0))
A("s_mul_i32 s%d, s%d, 528" % (sT0, sW))
A("s_add_u32 s%d, s%d, %d" % (sT0, sT0, L_RB))
A("v_lshlrev_b32 v25, 3, v%d" % vLANE)
A("v_add_u32 v%d, s%d, v25" % (vRBR, sT0))
A("s_lshl_b32 s%d, s%d, 3" % (sT0, sW))
A("s_add_u32 s%d, s%d, %d" % (sT0, sT0, L_ML))
A("v_lshlrev_b32 v25, 5, v18")
A("v_add_u32 v%d, s%d, v25" % (vMLW, sT0))
A("s_lshl_b32 s%d, s%d, 5" % (sT0, sW))
A("s_add_u32 s%d, s%d, %d" % (sT0, sT0, L_ML))
A("v_mov_b32 v%d, s%d" % (vMLR, sT0))
A("v_mov_b32 v25, 0x3f80")
A("v_mov_b32 v26, 0x3f800000")
for r in range(4):
    A("v_cmp_eq_u32 vcc, %d, v17" % (2 * r))
    A("v_cmp_eq_u32 %s, %d, v17" % (sr(sH, 2), 2 * r + 1))
    A("s_nop 0")
    A("v_cndmask_b32 v%d, 0, v25, vcc" % (SEL + r))
    A("v_cndmask_b32 v%d, v%d, v26, %s" % (SEL + r, SEL + r, sr(sH, 2)))
for i in range(16): A("v_mov_b32 v%d, 0" % (PM + i))
for p in range(4):
    A("s_mov_b32 s%d, %s" % (sPM + 2 * p, hx(0x000f000f << (4 * p))))
    A("s_mov_b32 s%d, %s" % (sPM + 2 * p + 1, hx(0x000f000f << (4 * p))))
soff(sOS, [(sW, 13), (sA, 11), (sC, 4), (sJ, 17)], O_OFF[0])
soff(sOL, [(sA, 13), (sW, 11), (sJ, 17)], O_OFF[0])
A("s_add_u32 s%d, s%d, %s" % (sQL, sOL, hx(Q0_OFF - O_OFF[0])))
soff(sLS, [(sW, 7), (sA, 5), (sC, 2), (sJ, 17)], LSE_OFF[0])
soff(sLL, [(sA, 7), (sW, 5), (sJ, 17)], LSE_OFF[0])
soff(sPS, [(sW, 15), (sC, 12), (sJ, 9), (sA, 7)], PB)
A("s_mov_b32 s%d, %s" % (sSC, hx(f2u(128 ** -0.5 * math.log2(math.e)))))
A("s_getreg_b32 s%d, hwreg(HW_REG_XCC_ID, 0, 3)" % sXCC)
A("v_xor_b32 v24, v16, v17")
A("v_lshlrev_b32 v24, 4, v24")
A("v_lshl_add_u32 v24, v17, 8, v24")
A("s_lshl_b32 s%d, s%d, 13" % (sT1, sW))
A("s_add_u32 s%d, s%d, %d" % (sT2, sT1, L_K))
for t in range(4): A("v_xor_b32 v%d, %d, v24" % (18 + t, 64 * t))
for t in range(4): A("v_add_u32 v%d, s%d, v%d" % (18 + t, sT2, 18 + t))
VA = W + 32
A("v_lshrrev_b32 v24, 2, v%d" % vLANE)
A("v_and_b32 v25, 7, v24")
A("v_lshlrev_b32 v25, 1, v25")
A("v_bfe_u32 v26, v%d, 1, 1" % vLANE)
A("v_xor_b32 v25, v25, v26")
A("v_lshlrev_b32 v25, 4, v25")
A("v_lshl_add_u32 v25, v24, 8, v25")
A("v_and_b32 v26, 1, v%d" % vLANE)
A("v_lshl_add_u32 v25, v26, 3, v25")
A("s_add_u32 s%d, s%d, %d" % (sT2, sT1, L_V))
for t in range(8): A("v_xor_b32 v%d, %d, v25" % (VA + t, 32 * t))
for t in range(8): A("v_add_u32 v%d, s%d, v%d" % (VA + t, sT2, VA + t))
soff(sT4, [(sJ, 19), (sA, 17), (sW, 15), (sC, 7)], 0)
A("s_lshl_b32 s%d, s%d, 12" % (sT5, sW))
A("s_add_u32 s%d, s%d, %d" % (sT5, sT5, L_WO))
soff(sT3, [(sA, 10), (sC, 7)], 0)
A("v_lshlrev_b32 v24, 5, v%d" % vLANE)
A("s_lshl_b32 s%d, s%d, 10" % (sT2, sW))
A("s_add_u32 s%d, s%d, %d" % (sT2, sT2, L_QF))
A("v_add_u32 v25, s%d, v%d" % (sT2, vL16))
A("v_add_u32 v26, %d, v%d" % (L_QF, vL16))
STAMP(12)
if DIAG: A("v_mov_b32 v31, v30")
C("early traffic done -> tell the helpers")
A("s_waitcnt vmcnt(%d)" % (D1 - D0))
lds_arrive(0, vT)
A("v_readfirstlane_b32 s%d, v%d" % (sE, RES))
tags()
A("s_or_b32 s%d, s%d, s%d" % (sXCC, sXCC, sTG2))
QP = W
def q0_issue():
    A("buffer_load_dwordx4 %s, v24, %s, s%d offen sc1" % (vr(QP, 4), sr(sWS, 4), sQL))
    A("buffer_load_dwordx4 %s, v24, %s, s%d offen offset:16 sc1" % (vr(QP + 4, 4), sr(sWS, 4), sQL))
C("late sentinels: wave 0,1: group region ; wave 2: P chunk")
A("s_lshr_b32 s%d, s2, 3" % sT1)
A("s_mul_i32 s%d, s%d, %d" % (sT1, sT1, CLRB_PER))
A("s_lshl_b32 s%d, s%d, 10" % (sT0, sW))
A("s_add_u32 s%d, s%d, s%d" % (sT1, sT1, sT0))
A("s_add_u32 s%d, s%d, s%d" % (sT1, sT1, sGR))
A("s_add_u32 s%d, s%d, %d" % (sT1, sT1, CLRB_OFF))
A("s_lshl_b32 s%d, s2, 10" % sT0)
A("s_add_u32 s%d, s%d, %s" % (sT0, sT0, hx(PB)))
A("s_cmp_ge_u32 s%d, 2" % sW)
A("s_cselect_b32 s%d, s%d, s%d" % (sT1, sT0, sT1))
A("s_bfm_b64 %s, %d, 0" % (sr(sH, 2), (CLRB_PER - 1024) // 16))
A("s_cmp_eq_u32 s%d, 1" % sW)
A("s_cselect_b64 %s, %s, -1" % (sr(sH, 2), sr(sH, 2)))
A("s_cmp_eq_u32 s%d, 3" % sW)
A("s_cselect_b64 exec, 1, %s" % sr(sH, 2))
A("buffer_store_dwordx4 %s, v%d, %s, s%d offen sc1" % (vr(W, 4), vL16, sr(sWS, 4), sT1))
A("s_mov_b64 exec, -1")
LATE_DONE = D1 + DEPTH
assert LATE_DONE + 1 < 16 - QV or QV == 0 and LATE_DONE + 1 < 16
for i in range(D1, 16):
    if i == 16 - QV: q0_issue()
    if i >= DEPTH: A("s_waitcnt vmcnt(%d)" % (DEPTH - 1 + (2 if i >= 16 - QV else 0)))
    if i == LATE_DONE: lds_arrive(8, vT)
    if i == LATE_DONE + 1:
        A("s_cmp_lg_u32 s%d, 0" % sW)
        A("s_cbranch_scc1 Lnoflag")
        C("every sentinel store of this workgroup is acknowledged: announce it")
        lds_spin(8, 4, vT)
        A("v_mov_b32 v16, s%d" % sTG1)
        A("v_mov_b32 v17, s%d" % sXCC)
        soff(sT1, [(2, 4)], FB)
        A("v_mov_b32 v27, 0")
        A("s_mov_b64 exec, 1")
        A("buffer_store_dwordx2 v[16:17], v27, %s, s%d offen sc1" % (sr(sWS, 4), sT1))
        A("s_mov_b64 exec, -1")
        LB("Lnoflag")
    kv_issue(i)
if QV == 0: q0_issue()
STAMP(1)
A("s_waitcnt vmcnt(%d)" % 10)
for t in range(4):
    for T in range(2):
        A("ds_read_b128 %s, v%d offset:%d" % (vr(KF + 16 * T + 4 * t, 4), 18 + t, 4096 * T))
A("s_waitcnt vmcnt(%d)" % QV)
STAMP(2)
A("s_setprio 2")
A("s_mov_b32 s%d, %s" % (sCNT, hx(SPIN)))
LB("Lmq")
A("v_and_b32 v16, -8, v%d" % (QP + 3))
A("v_and_b32 v17, -8, v%d" % (QP + 7))
A("v_cmp_ne_u32 vcc, s%d, v%d" % (sTG1, QP + 2))
A("v_cmp_ne_u32 %s, s%d, v%d" % (sr(sRET, 2), sTG1, QP + 6))
A("s_or_b64 vcc, vcc, %s" % sr(sRET, 2))
A("v_cmp_ne_u32 %s, s%d, v16" % (sr(sRET, 2), sTG2))
A("s_or_b64 vcc, vcc, %s" % sr(sRET, 2))
A("v_cmp_ne_u32 %s, s%d, v17" % (sr(sRET, 2), sTG2))
A("s_or_b64 vcc, vcc, %s" % sr(sRET, 2))
A("s_cbranch_vccnz Lmqr")
LB("Lmqd")
Ls = L; L = []
LB("Lmqr")
C("not there yet: poll the plain copy a few times, then the write-through copy")
A("s_cmp_eq_u32 s%d, %s" % (sCNT, hx(SPIN - 8)))
A("s_cselect_b32 s%d, %s, 0" % (sT0, hx(QB_DELTA)))
A("s_add_u32 s%d, s%d, s%d" % (sQL, sQL, sT0))
q0_issue()
A("s_waitcnt vmcnt(0)")
A("s_sub_u32 s%d, s%d, 1" % (sCNT, sCNT))
A("s_cbranch_scc0 Lmq")
A("s_branch Lmqd")
ool.append(L); L = Ls
A("v_cmp_ne_u32 vcc, s%d, v%d" % (sXCC, QP + 3))
A("v_mov_b32 v%d, v%d" % (QP + 2, QP + 4))
A("v_mov_b32 v%d, v%d" % (QP + 3, QP + 5))
A("ds_write_b128 v25, %s" % vr(QP, 4))
A("s_cmp_eq_u64 vcc, 0")
A("s_cselect_b32 s%d, 1, 0x101" % sT0)
A("v_mov_b32 v16, s%d" % sT0)
A("s_waitcnt lgkmcnt(0)")
lds_arrive(4, 16, None)
STAMP(15)
for i in range(4): dma(22 + (i & 1), sWO, sT4, sT5, 0x2000)
A("buffer_load_dwordx2 %s, v%d, %s, s%d offen" % (vr(RES + 2, 2), vX1S, sr(sX, 4), sT3))
FLG = W + 44
soff(sT5, [(sW, 10)], FB)
soff(sQL, [(sA, 12), (sJ, 17)], Q1_OFF)
lds_spin(4, 4, vT, mask=0xff)
A("s_cmp_lt_u32 s%d, 256" % sT1)
A("s_cselect_b32 s%d, %d, 0" % (sFAST, int(OPT.get("fast", 1))))
QF = W + 16
for t in range(4):
    A("ds_read_b128 %s, v26 offset:%d" % (vr(QF + 4 * t, 4), 1024 * t))
A("buffer_load_dwordx4 %s, v%d, %s, s%d offen sc1" % (vr(FLG, 4), vL16, sr(sWS, 4), sT5))
if PRET:
    C("bring the (cleared) group mailbox lines into L2")
    A("s_lshr_b32 s%d, s2, 3" % sT5)
    A("s_lshl_b32 s%d, s%d, 2" % (sT5, sT5))
    A("s_add_u32 s%d, s%d, s%d" % (sT5, sT5, sW))
    A("s_mul_i32 s%d, s%d, 768" % (sT5, sT5))
    A("s_add_u32 s%d, s%d, s%d" % (sT5, sT5, sGR))
    A("v_lshlrev_b32 v27, 7, v%d" % vLANE)
    A("s_mov_b64 exec, 63")
    A("buffer_load_dword v%d, v27, %s, s%d offen sc1" % (W + 40, sr(sWS, 4), sT5))
    A("s_mov_b64 exec, -1")
S = W
qk = []
for t in range(4):
    for T in range(2):
        qk.append(mf(S + 4 * T, KF + 16 * T + 4 * t, QF + 4 * t, None if t == 0 else S + 4 * T))
for t in range(4):
    A("s_waitcnt lgkmcnt(%d)" % (3 - t))
    A(qk[2 * t]); A(qk[2 * t + 1])
STAMP(3)
A("s_branch Lk_go")

LB("Llnq")
C("LayerNorm of the row held in XR, then q partial = xn @ wq tile")
X = W
row_stats(XR, vT, X)
A("v_add_f32 v%d, %s, v%d" % (vT + 1, EPS, vT + 1))
A("v_rsq_f32 v%d, v%d" % (vT + 2, vT + 1))
A("s_cmp_eq_u32 s%d, 0" % sLAY)
A("v_mul_f32 v%d, v%d, v%d" % (vT + 3, vT, vT + 2))
for i in range(4):
    A("v_pk_fma_f32 %s, %s, %s, %s op_sel:[0,0,1] op_sel_hi:[1,0,1] neg_lo:[0,0,1] neg_hi:[0,0,1]" % (vr(X + 2 * i, 2), vr(X + 2 * i, 2), vr(vT + 2, 2), vr(vT + 2, 2)))
for i in range(4):
    A("v_cvt_pk_bf16_f32 v%d, v%d, v%d" % (X + 8 + i, X + 2 * i, X + 2 * i + 1))
A("ds_write_b128 v%d, %s" % (vXNW, vr(X + 8, 4)))
A("s_cbranch_scc1 Lq_first")
A("s_waitcnt lgkmcnt(0)")
A("s_barrier")
LB("Lq_go")
BF = W + 16
for t in range(4):
    A("ds_read_b128 %s, v%d offset:%d" % (vr(BF + 4 * t, 4), vXNR, 64 * t))
for t in range(4):
    A("s_waitcnt lgkmcnt(%d)" % (3 - t))
    mfma(W, WQF + 4 * t, BF + 4 * t, None if t == 0 else W)
A("s_cmp_eq_u32 s%d, 0" % sLAY)
A("s_mov_b64 exec, %s" % sr(sMSK, 2))
NOP(6)
A("v_cvt_pk_bf16_f32 v%d, v%d, v%d" % (W + 4, W, W + 1))
A("v_cvt_pk_bf16_f32 v%d, v%d, v%d" % (W + 5, W + 2, W + 3))
A("s_cbranch_scc1 Lh_qst")
fastcmp()
store_local("buffer_store_dwordx2", vr(W + 4, 2), vQST, sQS)
A("s_mov_b64 exec, -1")
STAMP(2)

C("attention over this workgroup's 128 keys")
def iq():
    for t in range(4):
        A("buffer_load_dwordx4 %s, v%d, %s, s%d offen offset:%d sc1" % (vr(QF + 4 * t, 4), vL16, sr(sWS, 4), sQL, 1024 * t))
poll(iq, range(QF, QF + 16), vT, spec=qk)
STAMP(3)
LB("Lk_go")
NOP(7)
for ctl in ["row_ror:4", "row_ror:8"]:
    for i in range(8):
        A("v_add_f32_dpp v%d, v%d, v%d %s row_mask:0xf bank_mask:0xf" % (S + i, S + i, S + i, ctl))
A("v_max3_f32 v%d, v%d, v%d, v%d" % (vT, S, S + 1, S + 2))
A("v_max3_f32 v%d, v%d, v%d, v%d" % (vT + 1, S + 3, S + 4, S + 5))
A("v_max3_f32 v%d, v%d, v%d, v%d" % (vT, vT, S + 6, S + 7))
A("v_max_f32 v%d, v%d, v%d" % (vT, vT, vT + 1))
A("v_mov_b32 v%d, v%d" % (vT + 1, vT))
A("s_nop 1")
A("v_permlane16_swap_b32 v%d, v%d" % (vT, vT + 1))
A("v_max_f32 v%d, v%d, v%d" % (vT, vT, vT + 1))
A("v_mov_b32 v%d, v%d" % (vT + 1, vT))
A("s_nop 1")
A("v_permlane32_swap_b32 v%d, v%d" % (vT, vT + 1))
A("v_max_f32 v%d, v%d, v%d" % (vT, vT, vT + 1))
A("v_mul_f32 v%d, s%d, v%d" % (vT + 2, sSC, vT))
for i in range(8):
    A("v_fma_f32 v%d, v%d, s%d, -v%d" % (S + i, S + i, sSC, vT + 2))
for i in range(8):
    A("v_exp_f32 v%d, v%d" % (S + i, S + i))
for p in range(4):
    A("s_mov_b64 exec, %s" % sr(sPM + 2 * p, 2))
    for i in range(4):
        A("v_cvt_pk_bf16_f32 v%d, v%d, v%d" % (PM + 4 * p + i, S + 2 * i, S + 2 * i + 1))
A("s_mov_b64 exec, -1")
STAMP(4)
A("s_cmp_lg_u32 s%d, 0" % sLAY)
A("s_cbranch_scc1 Lv_go")
A("s_waitcnt vmcnt(%d)" % (6 + PRET))
STAMP(6)
for t in range(8):
    for hf in range(2):
        A("ds_read_b64_tr_b16 %s, v%d offset:%d" % (vr(VF + 4 * t + 2 * hf, 2), VA + t, 4096 * hf))
A("s_waitcnt lgkmcnt(0)")
LB("Lv_go")
OA = W + 8
mfma(W + 16, ONES, PM, None)
for p in range(4):
    for T in range(2):
        mfma(OA + 4 * T, VF + 4 * (2 * p + T), PM + 4 * p, None if p == 0 else OA + 4 * T)
A("s_mov_b64 exec, %s" % sr(sMSK, 2))
A("v_mov_b32 v%d, v%d" % (vT + 3, W + 16))
A("ds_write_b64 v%d, %s" % (vMLW, vr(vT + 2, 2)))
A("s_mov_b64 exec, -1")
NOP(3)
A("ds_write_b128 v%d, %s" % (vRBW, vr(OA, 4)))
A("ds_write_b128 v%d, %s offset:64" % (vRBW, vr(OA + 4, 4)))
A("s_waitcnt lgkmcnt(0)")
A("s_cbranch_scc1 Lrb_bar")
lds_arrive(12, vT + 4)
lds_spin(12, 4, vT + 4)
A("s_branch Lrb_go")
LB("Lrb_bar")
A("s_barrier")
LB("Lrb_go")
A("ds_read_b128 %s, v%d" % (vr(W, 4), vMLR))
A("ds_read_b128 %s, v%d offset:16" % (vr(W + 4, 4), vMLR))
for w in range(4):
    A("ds_read_b64 %s, v%d offset:%d" % (vr(W + 8 + 2 * w, 2), vRBR, RBS * w))
A("v_mov_b32 v%d, 0" % (vT + 4))
A("v_xor_b32 v%d, 16, v%d" % (vT + 6, vLSE))
fastcmp()
A("s_waitcnt lgkmcnt(4)")
A("v_max3_f32 v%d, v%d, v%d, v%d" % (vT, W, W + 2, W + 4))
A("v_max_f32 v%d, v%d, v%d" % (vT, vT, W + 6))
for w in range(4): A("v_sub_f32 v%d, v%d, v%d" % (W + 2 * w, W + 2 * w, vT))
for w in range(4): A("v_exp_f32 v%d, v%d" % (W + 2 * w, W + 2 * w))
A("v_mul_f32 v%d, v%d, v%d" % (vT + 1, W, W + 1))
for w in range(1, 4): A("v_fmac_f32 v%d, v%d, v%d" % (vT + 1, W + 2 * w, W + 2 * w + 1))
A("s_waitcnt lgkmcnt(0)")
A("v_pk_mul_f32 %s, %s, %s op_sel_hi:[1,0]" % (vr(W + 8, 2), vr(W + 8, 2), vr(W, 2)))
A("v_rcp_f32 v%d, v%d" % (vT + 2, vT + 1))
for w in range(1, 4):
    A("v_pk_fma_f32 %s, %s, %s, %s op_sel_hi:[1,0,1]" % (vr(W + 8, 2), vr(W + 8 + 2 * w, 2), vr(W + 2 * w, 2), vr(W + 8, 2)))
A("v_log_f32 v%d, v%d" % (vT + 5, vT + 1))
A("v_pk_mul_f32 %s, %s, %s op_sel_hi:[1,0]" % (vr(W + 8, 2), vr(W + 8, 2), vr(vT + 2, 2)))
A("v_add_f32 v%d, v%d, v%d" % (vT + 3, vT + 5, vT))
A("v_cvt_pk_bf16_f32 v%d, v%d, v%d" % (W + 8, W + 8, W + 9))
store_local("buffer_store_dword", "v%d" % (W + 8), vOST, sOS)
A("s_mov_b64 exec, 1")
store_local("buffer_store_dword", "v%d" % (vT + 3), vT + 4, sLS)
A("s_mov_b64 exec, -1")
STAMP(5)

C("wo phase: wave = batch, rows = key splits")
OF = W; LS = W + 16; DA = W + 24
def io():
    A("buffer_load_dwordx4 %s, v%d, %s, s%d offen sc1" % (vr(LS, 4), vLSE, sr(sWS, 4), sLL))
    A("buffer_load_dwordx4 %s, v%d, %s, s%d offen sc1" % (vr(LS + 4, 4), vT + 6, sr(sWS, 4), sLL))
    for t in range(4):
        A("buffer_load_dwordx4 %s, v%d, %s, s%d offen offset:%d sc1" % (vr(OF + 4 * t, 4), vOLD, sr(sWS, 4), sOL, 512 * t))
def pre_o():
    A("s_cmp_lg_u32 s%d, 0" % sLAY)
    A("s_cbranch_scc1 Lo_go")
    A("s_cmp_lg_u32 s%d, %s" % (sCNT, hx(SPIN)))
    A("s_cbranch_scc1 Lo_go")
    C("first layer: wo tile landed -> fragments; every workgroup has announced its clears")
    A("s_waitcnt vmcnt(8)")
    STAMP(13)
    A("s_mov_b32 s%d, %s" % (sT4, hx(SPIN)))
    LB("Lap")
    A("v_and_b32 v24, -8, v%d" % (FLG + 1))
    A("v_cmp_ne_u32 vcc, s%d, v%d" % (sTG1, FLG))
    A("v_cmp_ne_u32 %s, s%d, v24" % (sr(sH, 2), sTG2))
    A("s_or_b64 vcc, vcc, %s" % sr(sH, 2))
    A("s_cbranch_vccnz Lar")
    LB("Lad")
    lds_arrive(16, 24)
    for i in range(2):
        A("v_lshlrev_b32 v%d, 16, v%d" % (W + 40 + 2 * i, RES + 2 + i))
        A("v_and_b32 v%d, 0xffff0000, v%d" % (W + 41 + 2 * i, RES + 2 + i))
    for i in range(4): A("v_mov_b32 v%d, v%d" % (RES + i, W + 40 + i))
    for ct in range(4): A("v_xor_b32 v%d, %d, v%d" % (W + 40 + ct, 32 * ct, vWT))
    for ct in range(4): A("v_add_u32 v%d, %d, v%d" % (W + 40 + ct, L_WO, W + 40 + ct))
    lds_spin(16, 4, 24)
    STAMP(14)
    for t in range(4):
        for ct in range(4):
            for hf in range(2):
                A("ds_read_b64_tr_b16 %s, v%d offset:%d" % (vr(WOF + 16 * ct + 4 * t + 2 * hf, 2), W + 40 + ct, 4096 * t + 512 * hf))
    A("s_waitcnt lgkmcnt(0)")
    LB("Lo_go")
ool.append(["Lar:", "    s_lshl_b32 s%d, s%d, 10" % (sT5, sW), "    s_add_u32 s%d, s%d, %s" % (sT5, sT5, hx(FB)),
            "    buffer_load_dwordx4 %s, v%d, %s, s%d offen sc1" % (vr(FLG, 4), vL16, sr(sWS, 4), sT5),
            "    s_waitcnt vmcnt(0)", "    s_sub_u32 s%d, s%d, 1" % (sT4, sT4), "    s_cbranch_scc0 Lap", "    s_branch Lad"])
wo1 = [mf(DA + 4 * ct, OF + 4 * t, WOF + 16 * ct + 4 * t, None if t == 0 else DA + 4 * ct) for t in range(2) for ct in range(4)]
poll(io, list(range(LS, LS + 8)) + list(range(OF, OF + 16)), vT, pre_o, spec=wo1)
STAMP(7)
va = ["v_max3_f32 v%d, v%d, v%d, v%d" % (vT, LS, LS + 1, LS + 2), "v_max3_f32 v%d, v%d, v%d, v%d" % (vT + 1, LS + 3, LS + 4, LS + 5),
      "v_max3_f32 v%d, v%d, v%d, v%d" % (vT, vT, LS + 6, LS + 7), "v_max_f32 v%d, v%d, v%d" % (vT, vT, vT + 1)]
va += ["v_sub_f32 v%d, v%d, v%d" % (LS + i, LS + i, vT) for i in range(4)]
va += ["v_exp_f32 v%d, v%d" % (LS + i, LS + i) for i in range(4)]
va += ["v_add_f32 v%d, v%d, v%d" % (vT, LS, LS + 1), "v_add_f32 v%d, v%d, v%d" % (vT + 1, LS + 2, LS + 3),
       "v_add_f32 v%d, v%d, v%d" % (vT, vT, vT + 1), "v_mov_b32 v%d, v%d" % (vT + 1, vT)]
for t in range(2, 4):
    for ct in range(4):
        mfma(DA + 4 * ct, OF + 4 * t, WOF + 16 * ct + 4 * t, DA + 4 * ct)
        for k in range(2): A(va.pop(0))
A("s_mov_b32 s%d, 0x55555555" % sT4)
A("s_mov_b32 s%d, 0x55555555" % sT5)
A("v_permlane16_swap_b32 v%d, v%d" % (vT, vT + 1))
A("v_mul_f32 v%d, v%d, v%d" % (DA, DA, LS))
A("v_add_f32 v%d, v%d, v%d" % (vT, vT, vT + 1))
A("v_mul_f32 v%d, v%d, v%d" % (DA + 4, DA + 4, LS))
A("v_rcp_f32 v%d, v%d" % (vT, vT))
A("v_mul_f32 v%d, v%d, v%d" % (DA + 8, DA + 8, LS))
for i in range(1, 4):
    for ct in range(3):
        A("v_fmac_f32 v%d, v%d, v%d" % (DA + 4 * ct, DA + 4 * ct + i, LS + i))
    if i == 1: A("v_mul_f32 v%d, v%d, v%d" % (DA + 12, DA + 12, LS))
for i in range(1, 4): A("v_fmac_f32 v%d, v%d, v%d" % (DA + 12, DA + 12 + i, LS + i))
A("v_permlane16_swap_b32 v%d, v%d" % (DA, DA + 4))
A("s_nop 0")
A("v_permlane16_swap_b32 v%d, v%d" % (DA + 8, DA + 12))
A("v_add_f32 v%d, v%d, v%d" % (DA, DA, DA + 4))
A("v_add_f32 v%d, v%d, v%d" % (DA + 8, DA + 8, DA + 12))
A("s_nop 1")
A("v_permlane32_swap_b32 v%d, v%d" % (DA, DA + 8))
A("v_mul_f32 v%d, v%d, v%d" % (DA, DA, vT))
A("s_cmp_lg_u32 s%d, 0" % sLAY)
A("s_nop 0")
A("v_mov_b32_dpp v%d, v%d quad_perm:[1,0,3,2] row_mask:0xf bank_mask:0xf" % (DA + 1, DA))
A("s_mov_b64 exec, %s" % sr(sT4, 2))
A("v_cvt_pk_bf16_f32 v%d, v%d, v%d" % (DA, DA, DA + 1))
A("buffer_store_dword v%d, v%d, %s, s%d offen sc1" % (DA, vPST, sr(sWS, 4), sPS))
A("s_mov_b64 exec, -1")
STAMP(8)
A("s_cbranch_scc1 Lfinal")

A("s_cmp_lg_u32 s%d, 0" % sW)
A("s_cbranch_scc1 Ltab")
C("stage 1 (wave 0): reduce 32 head partials of 64 outputs, add residual, publish x1 slice")
soff(sT1, [(sA, 15), (sC, 12)], PB)
soff(sT2, [(sA, 10), (sC, 7), (sJ, 17)], X1_OFF)
A("s_mov_b32 s%d, 0x00ff00ff" % sT4)
A("s_mov_b32 s%d, 0" % sT5)
A("s_waitcnt vmcnt(0)")
def ip():
    for i in range(4):
        A("buffer_load_dwordx4 %s, v%d, %s, s%d offen offset:%d sc1" % (vr(W + 4 * i, 4), vL16, sr(sWS, 4), sT1, 1024 * i))
poll(ip, range(W, W + 16), vT, spec=[mf(W + 16, SEL, W + 4 * i, None if i == 0 else W + 16) for i in range(4)])
STAMP(9)
fastcmp()
NOP(6)
for i in range(4):
    A("v_add_f32_dpp v%d, v%d, v%d row_ror:8 row_mask:0xf bank_mask:0xf" % (W + 16 + i, W + 16 + i, W + 16 + i))
A("s_mov_b64 exec, %s" % sr(sT4, 2))
A("v_pk_add_f32 %s, %s, %s" % (vr(W + 16, 2), vr(W + 16, 2), vr(RES, 2)))
A("v_pk_add_f32 %s, %s, %s" % (vr(W + 18, 2), vr(W + 18, 2), vr(RES + 2, 2)))
A("v_cvt_pk_bf16_f32 v%d, v%d, v%d" % (W + 16, W + 16, W + 17))
A("v_cvt_pk_bf16_f32 v%d, v%d, v%d" % (W + 17, W + 18, W + 19))
store_local("buffer_store_dwordx2", vr(W + 16, 2), vX1S, sT2)
A("s_mov_b64 exec, -1")
LB("Ltabdone")
soff(sT3, [(sW, 10), (sJ, 17)], X1_OFF)
def ix():
    A("buffer_load_dwordx4 %s, v%d, %s, s%d offen sc1" % (vr(XR, 4), vL16, sr(sWS, 4), sT3))
wqf_reads()
def pre_x():
    A("ds_read_b32 v%d, v%d offset:20" % (vT + 2, vFL))
poll(ix, range(XR, XR + 4), vT, pre_x, spec=["s_waitcnt lgkmcnt(0)", "v_readfirstlane_b32 s%d, v%d" % (sT1, vT + 2)])
A("s_cmp_lt_u32 s%d, 3" % sT1)
A("s_cbranch_scc1 Ltw")
LB("Ltwd")
STAMP(10)

LB("Lmix")
C("x <- x + g(LN(LN(x))) ; g is tabulated for every bf16 input in range, evaluated directly otherwise")
X = W; HB = W + 8; RT = W + 12; AD = W + 16; Y = W + 24
row_stats(XR, vT, X)
A("v_add_f32 v%d, %s, v%d" % (vT + 2, EPS, vT + 1))
A("v_rsq_f32 v%d, v%d" % (vT + 2, vT + 2))
A("v_mov_b32 v%d, %s" % (vT + 4, hx(LO2 | (LO2 << 16))))
A("v_mul_f32 v%d, v%d, v%d" % (vT + 1, vT + 1, vT + 2))
A("v_fmaak_f32 v%d, v%d, v%d, %s" % (vT + 1, vT + 1, vT + 2, EPS))
A("v_rsq_f32 v%d, v%d" % (vT + 1, vT + 1))
A("s_nop 0")
A("v_mul_f32 v%d, v%d, v%d" % (vT + 2, vT + 2, vT + 1))
A("v_mul_f32 v%d, v%d, v%d" % (vT + 3, vT, vT + 2))
for i in range(4):
    A("v_pk_fma_f32 %s, %s, %s, %s op_sel:[0,0,1] op_sel_hi:[1,0,1] neg_lo:[0,0,1] neg_hi:[0,0,1]" % (vr(AD + 2 * i, 2), vr(X + 2 * i, 2), vr(vT + 2, 2), vr(vT + 2, 2)))
for i in range(4):
    A("v_cvt_pk_bf16_f32 v%d, v%d, v%d" % (HB + i, AD + 2 * i, AD + 2 * i + 1))
for i in range(4):
    A("v_pk_lshlrev_b16 v%d, 1, v%d op_sel_hi:[0,1]" % (RT + i, HB + i))
    A("v_pk_lshrrev_b16 v%d, 15, v%d op_sel_hi:[0,1]" % (AD + i, HB + i))
for i in range(4):
    A("v_or_b32 v%d, v%d, v%d" % (RT + i, RT + i, AD + i))
for i in range(4):
    A("v_pk_sub_u16 v%d, v%d, v%d" % (RT + i, RT + i, vT + 4))
for i in range(4):
    A("v_lshlrev_b32_sdwa v%d, 2, v%d dst_sel:DWORD dst_unused:UNUSED_PAD src0_sel:DWORD src1_sel:WORD_0" % (AD + 2 * i, RT + i))
    A("v_lshlrev_b32_sdwa v%d, 2, v%d dst_sel:DWORD dst_unused:UNUSED_PAD src0_sel:DWORD src1_sel:WORD_1" % (AD + 2 * i + 1, RT + i))
    A("ds_read_b32 v%d, v%d offset:%d" % (Y + 2 * i, AD + 2 * i, L_TAB))
    A("ds_read_b32 v%d, v%d offset:%d" % (Y + 2 * i + 1, AD + 2 * i + 1, L_TAB))
A("v_max3_u32 v%d, v%d, v%d, v%d" % (vT, AD, AD + 1, AD + 2))
A("v_max3_u32 v%d, v%d, v%d, v%d" % (vT + 1, AD + 3, AD + 4, AD + 5))
A("v_max3_u32 v%d, v%d, v%d, v%d" % (vT, vT, AD + 6, AD + 7))
A("v_max_u32 v%d, v%d, v%d" % (vT, vT, vT + 1))
A("v_cmp_le_u32 vcc, %d, v%d" % (NENT * 4, vT))
A("s_cbranch_vccnz Lslow")
LB("Lslowdone")
A("s_cmp_lg_u32 s%d, 0" % sLAY)
for i in range(4):
    A("s_waitcnt lgkmcnt(%d)" % (6 - 2 * i))
    A("v_pk_add_f32 %s, %s, %s" % (vr(X + 2 * i, 2), vr(X + 2 * i, 2), vr(Y + 2 * i, 2)))
for i in range(4):
    A("v_cvt_pk_bf16_f32 v%d, v%d, v%d" % (XR + i, X + 2 * i, X + 2 * i + 1))
STAMP(11)
A("s_cbranch_scc1 Lout")
A("ds_write_b128 v%d, %s offset:%d" % (vXNW, vr(XR, 4), L_X2 - L_XN))
A("s_mov_b32 s%d, 1" % sLAY)
for s, d in [(sOL, O_OFF[1] - O_OFF[0]), (sOS, O_OFF[1] - O_OFF[0]), (sLL, LSE_OFF[1] - LSE_OFF[0]), (sLS, LSE_OFF[1] - LSE_OFF[0]), (sPS, P_L)]:
    A("s_add_u32 s%d, s%d, %d" % (s, s, d))
if DIAG: A("v_mov_b32 v28, v30")
A("s_branch Llnq")

LB("Lfinal")
A("s_cmp_ge_u32 s2, 4")
A("s_cbranch_scc1 Lfin_exit")
C("workgroup b: reduce the 32 head partials of row b, add x2, mixer, store")
soff(sT1, [(2, 15), (sW, 13)], PB + P_L)
A("s_add_u32 s%d, s%d, 4096" % (sT2, sT1))
A("s_mul_i32 s%d, s2, %d" % (sT0, XS))
A("s_lshl_b32 s%d, s%d, 8" % (sT3, sW))
A("s_add_u32 s%d, s%d, s%d" % (sT0, sT0, sT3))
A("s_add_u32 s%d, s%d, %d" % (sT0, sT0, L_X2))
A("v_add_u32 v%d, s%d, v%d" % (vT + 4, sT0, vX1S))
A("s_add_u32 s%d, s%d, %d" % (sT3, sT3, L_XN))
A("v_add_u32 v%d, s%d, v%d" % (vT + 5, sT3, vX1S))
A("ds_read_b64 %s, v%d" % (vr(PM, 2), vT + 4))
A("ds_read_b64 %s, v%d offset:128" % (vr(PM + 2, 2), vT + 4))
A("s_mov_b32 s%d, 0x00ff00ff" % sT4)
A("s_mov_b32 s%d, 0" % sT5)
A("s_waitcnt vmcnt(0) lgkmcnt(0)")
for i in range(4):
    A("v_lshlrev_b32 v%d, 16, v%d" % (PM + 4 + 2 * i, PM + i))
    A("v_and_b32 v%d, 0xffff0000, v%d" % (PM + 5 + 2 * i, PM + i))
def ifin():
    for i in range(8):
        A("buffer_load_dwordx4 %s, v%d, %s, s%d offen offset:%d sc1" % (vr(W + 4 * i, 4), vL16, sr(sWS, 4), sT1 if i < 4 else sT2, 1024 * (i & 3)))
fs = []
for i in range(4):
    fs.append(mf(W + 32, SEL, W + 4 * i, None if i == 0 else W + 32))
    fs.append(mf(W + 36, SEL, W + 16 + 4 * i, None if i == 0 else W + 36))
poll(ifin, range(W, W + 32), vT, spec=fs)
STAMP(9)
NOP(7)
for i in range(8):
    A("v_add_f32_dpp v%d, v%d, v%d row_ror:8 row_mask:0xf bank_mask:0xf" % (W + 32 + i, W + 32 + i, W + 32 + i))
A("s_mov_b64 exec, %s" % sr(sT4, 2))
for i in range(4):
    A("v_pk_add_f32 %s, %s, %s" % (vr(W + 32 + 2 * i, 2), vr(W + 32 + 2 * i, 2), vr(PM + 4 + 2 * i, 2)))
for i in range(4):
    A("v_cvt_pk_bf16_f32 v%d, v%d, v%d" % (W + 32 + i, W + 32 + 2 * i, W + 33 + 2 * i))
A("ds_write_b64 v%d, %s" % (vT + 5, vr(W + 32, 2)))
A("ds_write_b64 v%d, %s offset:128" % (vT + 5, vr(W + 34, 2)))
A("s_mov_b64 exec, -1")
A("s_cmp_lg_u32 s%d, 0" % sW)
A("s_waitcnt lgkmcnt(0)")
A("s_barrier")
A("s_cbranch_scc1 Lfin_exit")
A("ds_read_b128 %s, v%d" % (vr(XR, 4), vXNW))
A("s_waitcnt lgkmcnt(0)")
STAMP(10)
A("s_branch Lmix")
LB("Lout")
A("s_lshl_b32 s%d, s2, 10" % sT0)
A("buffer_store_dwordx4 %s, v%d, %s, s%d offen" % (vr(XR, 4), vL16, sr(sOUT, 4), sT0))
A("s_cmp_lg_u32 s2, 0")
A("s_cbranch_scc1 Lfin_exit")
A("v_mov_b32 v16, s%d" % sTG1)
A("v_mov_b32 v17, %s" % hx(EPO))
A("s_mov_b64 exec, 1")
A("buffer_store_dword v16, v17, %s, 0 offen sc1" % sr(sWS, 4))
A("s_mov_b64 exec, -1")
if DBL:
    A("s_waitcnt vmcnt(0)")
    A("s_memrealtime s[10:11]")
    A("s_waitcnt lgkmcnt(0)")
    A("s_sub_u32 s12, s10, s98")
    if "pad" in OPT:
        A("s_mov_b32 s10, s98"); A("s_mov_b32 s12, %d" % (100 * int(OPT["pad"])))
    LB("Ldbl")
    A("s_memrealtime s[14:15]")
    A("s_waitcnt lgkmcnt(0)")
    A("s_sub_u32 s13, s14, s10")
    A("s_cmp_lt_u32 s13, s12")
    A("s_cbranch_scc1 Ldbl")
LB("Lfin_exit")
if DIAG:
    A("s_waitcnt vmcnt(0)")
    STAMP(12)
    if DIAG == 2:
        A("s_or_b32 s%d, s2, s%d" % (sT0, sW))
        A("s_cmp_lg_u32 s%d, 0" % sT0)
        A("s_cbranch_scc1 Lend")
        A("v_readlane_b32 s%d, v28, 0" % sT2)
        for k, (r, i) in enumerate([(31, 10), (31, 12), (28, 1), (28, 2), (28, 6), (28, 5), (28, 7), (28, 8), (28, 9), (28, 10), (28, 11), (30, 3), (30, 5), (30, 8), (30, 9), (30, 12)]):
            A("v_readlane_b32 s%d, v%d, %d" % (sT3, r, i))
            A("s_sub_u32 s%d, s%d, s%d" % (sT3, sT3, sT2))
            A("s_nop 0")
            A("v_writelane_b32 v17, s%d, %d" % (sT3, k))
        A("v_lshlrev_b32 v16, 2, v%d" % vLANE)
        A("s_mov_b64 exec, 0xffff")
        A("global_store_dword v16, v17, s[96:97]")
        A("s_endpgm")
    soff(sT1, [(2, 10), (sW, 7)], STB)
    A("v_lshlrev_b32 v16, 2, v%d" % vLANE)
    A("s_mov_b64 exec, 0xffff")
    A("buffer_store_dword v28, v16, %s, s%d offen" % (sr(sWS, 4), sT1))
    A("buffer_store_dword v30, v16, %s, s%d offen offset:64" % (sr(sWS, 4), sT1))
    A("s_add_u32 s%d, s%d, 0x40000" % (sT1, sT1))
    A("buffer_store_dword v31, v16, %s, s%d offen" % (sr(sWS, 4), sT1))
LB("Lend")
A("s_endpgm")

LB("Ltab")
C("waves 1..3: gather the g(h) table into LDS")
NTL = -(-NENT * 4 // 3 // 1024)
A("s_sub_u32 s%d, s%d, 1" % (sT1, sW))
A("s_mul_i32 s%d, s%d, %d" % (sT1, sT1, NTL * 1024))
A("s_min_u32 s%d, s%d, %d" % (sT1, sT1, NENT * 4 - NTL * 1024))
A("v_add_u32 v%d, s%d, v%d" % (vT + 4, sT1, vL16))
A("s_add_u32 s%d, s%d, %s" % (sT1, sT1, hx(TB)))
A("s_add_u32 s%d, s%d, 4096" % (sT2, sT1))
def it():
    for i in range(NTL):
        A("buffer_load_dwordx4 %s, v%d, %s, s%d offen offset:%d sc1" % (vr(W + 4 * i, 4), vL16, sr(sWS, 4), sT1 if i < 4 else sT2, 1024 * (i & 3)))
poll(it, range(W, W + 4 * NTL), vT)
for i in range(NTL):
    A("ds_write_b128 v%d, %s offset:%d" % (vT + 4, vr(W + 4 * i, 4), L_TAB + 1024 * i))
A("s_waitcnt lgkmcnt(0)")
lds_arrive(20, vT + 4)
STAMP(9)
A("s_branch Ltabdone")
LB("Ltw")
lds_spin(20, 3, vT + 2)
A("s_branch Ltwd")

LB("Lslow")
C("rare: some h lies outside the table -> evaluate g(h) directly for those lanes")
RW1 = [W + 32 + i for i in range(14)]
RB1 = [PM + i for i in range(14)]
RW2 = [16 + i for i in range(10)] + [W + 46, W + 47, PM + 14, PM + 15]
A("v_lshlrev_b32 v26, 3, v%d" % vLANE)
A("s_load_dword s%d, %s, 0" % (sB2, sr(sB2P, 2)))
for (d4, d2, s) in [([W + 32, W + 36, W + 40], W + 44, sW1), ([PM, PM + 4, PM + 8], PM + 12, sB1)]:
    for k in range(3):
        A("buffer_load_dwordx4 %s, v%d, %s, 0 offen offset:%d" % (vr(d4[k], 4), vL16, sr(s, 4), 1024 * k))
    A("buffer_load_dwordx2 %s, v26, %s, 0 offen offset:3072" % (vr(d2, 2), sr(s, 4)))
A("buffer_load_dwordx4 v[16:19], v%d, %s, 0 offen" % (vL16, sr(sW2, 4)))
A("buffer_load_dwordx4 v[20:23], v%d, %s, 0 offen offset:1024" % (vL16, sr(sW2, 4)))
A("buffer_load_dwordx2 v[24:25], v%d, %s, 0 offen offset:2048" % (vL16, sr(sW2, 4)))
A("buffer_load_dwordx2 %s, v%d, %s, 0 offen offset:2056" % (vr(W + 46, 2), vL16, sr(sW2, 4)))
A("buffer_load_dwordx2 %s, v26, %s, 0 offen offset:3072" % (vr(PM + 14, 2), sr(sW2, 4)))
A("s_waitcnt vmcnt(0) lgkmcnt(0)")
A("s_lshl_b32 s%d, s%d, 16" % (sB2, sB2))
for e in range(8):
    A("v_cmp_le_u32 vcc, %d, v%d" % (NENT * 4, AD + e))
    A("s_mov_b64 %s, vcc" % sr(sH2, 2))
    LB("Lse%d" % e)
    A("s_cmp_eq_u64 %s, 0" % sr(sH2, 2))
    A("s_cbranch_scc1 Lsf%d" % e)
    A("s_ff1_i32_b64 s%d, %s" % (sT0, sr(sH2, 2)))
    A("s_bitset0_b64 %s, s%d" % (sr(sH2, 2), sT0))
    A("s_mov_b32 m0, s%d" % sT0)
    A("v_readlane_b32 s%d, v%d, s%d" % (sH, HB + (e >> 1), sT0))
    if e & 1: A("s_and_b32 s%d, s%d, 0xffff0000" % (sH, sH))
    else: A("s_lshl_b32 s%d, s%d, 16" % (sH, sH))
    A("s_call_b64 %s, Lgev" % sr(sRET, 2))
    A("v_writelane_b32 v%d, s%d, m0" % (Y + e, sY))
    A("s_branch Lse%d" % e)
    LB("Lsf%d" % e)
for i in range(16): A("v_mov_b32 v%d, 0" % (PM + i))
A("s_branch Lslowdone")
LB("Lgev")
a, u, t1, z = RES, RES + 1, RES + 2, RT
A("v_mov_b32 v%d, 0" % a)
A("v_mov_b32 v%d, %s" % (RT + 1, hx(f2u(K0))))
A("v_mov_b32 v%d, %s" % (RT + 2, hx(f2u(K1))))
for p in range(14):
    for hf in range(2):
        def un(d, s):
            if hf == 0: A("v_lshlrev_b32 v%d, 16, v%d" % (d, s))
            else: A("v_and_b32 v%d, 0xffff0000, v%d" % (d, s))
        un(u, RW1[p]); un(t1, RB1[p]); un(z, RW2[p])
        A("v_fma_f32 v%d, v%d, s%d, v%d" % (u, u, sH, t1))
        A("v_mul_f32 v%d, v%d, v%d" % (t1, u, u))
        A("v_fma_f32 v%d, v%d, v%d, v%d" % (t1, t1, RT + 2, RT + 1))
        A("v_mul_f32 v%d, v%d, v%d" % (t1, t1, u))
        A("v_exp_f32 v%d, v%d" % (t1, t1))
        A("v_mul_f32 v%d, v%d, v%d" % (z, z, u))
        A("v_add_f32 v%d, 1.0, v%d" % (t1, t1))
        A("v_rcp_f32 v%d, v%d" % (t1, t1))
        A("s_nop 0")
        A("v_fmac_f32 v%d, v%d, v%d" % (a, z, t1))
A("v_mov_b32 v%d, v%d" % (u, a))
A("s_nop 1")
wave_sum2(a, u, sY, sT1)
A("s_nop 1")
A("v_mov_b32 v%d, s%d" % (a, sY))
A("v_cvt_pk_bf16_f32 v%d, v%d, v%d" % (a, a, a))
A("v_and_b32 v%d, 0xffff0000, v%d" % (a, a))
A("v_add_f32 v%d, s%d, v%d" % (a, sB2, a))
A("v_cvt_pk_bf16_f32 v%d, v%d, v%d" % (a, a, a))
A("v_and_b32 v%d, 0xffff0000, v%d" % (a, a))
A("s_nop 0")
A("v_readfirstlane_b32 s%d, v%d" % (sY, a))
A("s_nop 3")
A("s_setpc_b64 %s" % sr(sRET, 2))

for b in ool: L += b
A("s_endpgm")
L.append(".p2align 8")
L.append(".fill (16640 - (. - %s_kernel)) / 4, 4, 0xBF800000" % NAME)
L.append('''.section .rodata,"a"
.p2align 6
.amdhsa_kernel %s_kernel
  .amdhsa_next_free_vgpr 256
  .amdhsa_next_free_sgpr 102
  .amdhsa_accum_offset 256
  .amdhsa_group_segment_fixed_size 0
  .amdhsa_kernarg_size 104
  .amdhsa_user_sgpr_count 2
  .amdhsa_user_sgpr_kernarg_segment_ptr 1
  .amdhsa_system_sgpr_workgroup_id_x 1
.end_amdhsa_kernel''' % NAME)
open(OUTF, "w").write("\n".join(x for x in L if x is not None) + "\n")
print("wrote", OUTF, "lines", len(L), "LDS", LDS_SZ)
```

```python
import sys, struct, math

NAME = "interleave_layers__sliding_block_cached__mixer_token_mlp__decode"
OUTF = sys.argv[1] if len(sys.argv) > 1 else "cdna_kernels/%s.s" % NAME
DIAG = int(sys.argv[2]) if len(sys.argv) > 2 else 0
DBL = 0
if DIAG == 3: DIAG = 0; DBL = 1
TOT = 0
if DIAG == 4: DIAG = 0; TOT = 1
OPT = dict(a.split("=") for a in sys.argv[3:])
DEPTH = int(OPT.get("depth", 7))
D0 = int(OPT.get("d0", 4))
D1 = int(OPT.get("d1", 8))
QV = int(OPT.get("qv", 2))
PRET = int(OPT.get("pret", 1))
NOCT = int(OPT.get("noct", 16))
QPOS = int(OPT.get("qpos", 1))
QPOS2 = int(OPT.get("qpos2", 7))

def f2u(x): return struct.unpack("<I", struct.pack("<f", x))[0]
def hx(x): return "0x%08x" % (x & 0xffffffff)

L = []
def A(s): L.append("    " + s)
def LB(s): L.append(s + ":")
def C(s): L.append("    ; " + s)
def vr(a, n): return "v[%d:%d]" % (a, a + n - 1)
def sr(a, n): return "s[%d:%d]" % (a, a + n - 1)
def NOP(n):
    while n > 0:
        k = min(n, 16); A("s_nop %d" % (k - 1)); n -= k

ELO = 132 - NOCT if NOCT == 24 else 130 - NOCT
LO2 = (ELO << 7) * 2
NENT = NOCT * 256
EPW = NENT // 256 // 4 // 2
GRS = 0x20000
O_OFF = [0x0000, 0xC400]; LSE_OFF = [0x8000, 0x14400]; Q1_OFF = 0x8400; X1_OFF = 0x14600
CLRA_PER = 1040
CLRB_OFF = 0x8400; CLRB_PER = 1680
Q0_OFF = 0x18000
EPO = 0x17f00
PB = 0x100000; P_L = 0x20000
TB = 0x140000; FB = 0x148000
QB_DELTA = 0x180000
STB = 0x300000
WS_SZ = 0x400000
L_TAB = 0
L_WQ = 24576; L_K = L_WQ + 16384; L_V = L_K + 32768; L_WO = L_V + 32768
L_XN = L_WO + 16384; XS = 1056
L_X2 = L_XN + 4 * XS
L_FLG = L_X2 + 4 * XS
L_RB = L_K; RBS = 2048 + 64; L_ML = L_K + 4 * RBS
L_QF = L_X2
LDS_SZ = int(OPT.get("lds", L_FLG + 64))
SPIN = 0x40000
K0 = -2.0 * math.sqrt(2.0 / math.pi) * math.log2(math.e)
K1 = K0 * 0.044715
EPS = hx(f2u(1e-5))

sTG1, sTG2 = 0, 1
sW, sJ, sA, sC, sGR, sLAY, sFAST = 3, 4, 5, 6, 7, 8, 9
sT0, sT1, sT2, sT3, sT4, sT5 = 10, 11, 12, 13, 14, 15
sCNT = 16
sQL, sQS, sOL, sOS, sLL, sLS, sPS = 17, 18, 19, 20, 21, 22, 23
sSC, sIT = 24, 25
sSUM, sSQ = 26, 27
sH, sH2, sRET, sMSK = 28, 30, 32, 34
sB2, sY, sXCC, sE = 36, 37, 38, 39
sB2P = 40
sK, sV, sWQ, sWO, sWS, sX, sOUT, sW1, sB1, sW2 = 44, 48, 52, 56, 60, 64, 68, 72, 76, 80
sKO, sKL, sVO, sVL = 84, 85, 86, 87
sPM = 88
sHC, sHT = 84, 85

def STAMP(i):
    if DIAG:
        A("s_memrealtime s[42:43]"); A("s_waitcnt lgkmcnt(0)")
        A("v_writelane_b32 v30, s42, %d" % i)

vLANE = 1
vL16, vQST, vOST, vOLD, vPST, vX1S, vXNW, vXNR, vRBW, vRBR, vMLW, vMLR, vLSE, vZ = range(2, 16)
vT = 16
vWT, vFL = 28, 29
KF, VF, WQF, WOF, SEL, ONES = 32, 64, 96, 112, 176, 180
W = 184
PM = 232
XR = 248
RES = 252

def srd(s, nbytes):
    A("s_mov_b32 s%d, %s" % (s + 2, hx(nbytes))); A("s_mov_b32 s%d, 0x00020000" % (s + 3))

def soff(dst, terms, const):
    first = True
    for (src, sh) in terms:
        if first: A("s_lshl_b32 s%d, s%d, %d" % (dst, src, sh)); first = False
        else:
            A("s_lshl_b32 s%d, s%d, %d" % (sT0, src, sh)); A("s_add_u32 s%d, s%d, s%d" % (dst, dst, sT0))
    if const: A("s_add_u32 s%d, s%d, %s" % (dst, dst, hx(const)))

def wave_sum2(a, b, sa, sb):
    for ctl in ["row_ror:8", "row_ror:4", "row_ror:2", "row_ror:1"]:
        A("v_add_f32_dpp v%d, v%d, v%d %s row_mask:0xf bank_mask:0xf" % (a, a, a, ctl))
        A("v_add_f32_dpp v%d, v%d, v%d %s row_mask:0xf bank_mask:0xf" % (b, b, b, ctl))
        A("s_nop 0")
    for ctl in ["row_bcast:15 row_mask:0xa", "row_bcast:31 row_mask:0xc"]:
        A("v_add_f32_dpp v%d, v%d, v%d %s bank_mask:0xf" % (a, a, a, ctl))
        A("v_add_f32_dpp v%d, v%d, v%d %s bank_mask:0xf" % (b, b, b, ctl))
        A("s_nop 0")
    A("v_readlane_b32 s%d, v%d, 63" % (sa, a))
    A("v_readlane_b32 s%d, v%d, 63" % (sb, b))

def row_stats(x, t, unp):
    A("v_dot2_f32_bf16 v%d, v%d, v%d, 0" % (t, x, ONES))
    A("v_dot2_f32_bf16 v%d, v%d, v%d, 0" % (t + 1, x, x))
    for i in range(1, 4):
        A("v_dot2_f32_bf16 v%d, v%d, v%d, v%d" % (t, x + i, ONES, t))
        A("v_dot2_f32_bf16 v%d, v%d, v%d, v%d" % (t + 1, x + i, x + i, t + 1))
    un = []
    for i in range(4):
        un.append("v_lshlrev_b32 v%d, 16, v%d" % (unp + 2 * i, x + i))
        un.append("v_and_b32 v%d, 0xffff0000, v%d" % (unp + 2 * i + 1, x + i))
    for k in range(3): A(un.pop(0))
    a, b = t, t + 1
    for ctl in ["row_ror:8 row_mask:0xf", "row_ror:4 row_mask:0xf", "row_ror:2 row_mask:0xf", "row_ror:1 row_mask:0xf", "row_bcast:15 row_mask:0xa", "row_bcast:31 row_mask:0xc"]:
        A("v_add_f32_dpp v%d, v%d, v%d %s bank_mask:0xf" % (a, a, a, ctl))
        A("v_add_f32_dpp v%d, v%d, v%d %s bank_mask:0xf" % (b, b, b, ctl))
        A(un.pop(0) if un else "s_nop 0")
    A("v_readlane_b32 s%d, v%d, 63" % (sSUM, a))
    A("v_readlane_b32 s%d, v%d, 63" % (sSQ, b))
    A("s_nop 0")
    A("v_mul_f32 v%d, s%d, v%d" % (t, sSUM, vZ))
    A("v_mul_f32 v%d, s%d, v%d" % (t + 1, sSQ, vZ))
    A("v_fma_f32 v%d, -v%d, v%d, v%d" % (t + 1, t, t, t + 1))
    A("v_max_f32 v%d, 0, v%d" % (t + 1, t + 1))

ool = []
uid = [0]
def maxtree(regs, tmp):
    r = list(regs); out = []
    out.append("v_max3_u32 v%d, v%d, v%d, v%d" % (tmp, r[0], r[1], r[2])); r = r[3:]
    if len(r) >= 5:
        out.append("v_max3_u32 v%d, v%d, v%d, v%d" % (tmp + 1, r[0], r[1], r[2])); r = r[3:]
        d = 0
        while len(r) >= 2:
            out.append("v_max3_u32 v%d, v%d, v%d, v%d" % (tmp + d, tmp + d, r[0], r[1])); r = r[2:]; d ^= 1
        if r: out.append("v_max3_u32 v%d, v%d, v%d, v%d" % (tmp, tmp, tmp + 1, r[0]))
        else: out.append("v_max_u32 v%d, v%d, v%d" % (tmp, tmp, tmp + 1))
    else:
        while len(r) >= 2:
            out.append("v_max3_u32 v%d, v%d, v%d, v%d" % (tmp, tmp, r[0], r[1])); r = r[2:]
        if r: out.append("v_max_u32 v%d, v%d, v%d" % (tmp, tmp, r[0]))
    return out

def poll(issue, regs, tmp, pre_wait=None, spec=None, back="s_nop 7"):
    uid[0] += 1; u = uid[0]
    A("s_mov_b32 s%d, %s" % (sCNT, hx(SPIN)))
    LB("Lp%d" % u)
    issue()
    if pre_wait: pre_wait()
    A("s_waitcnt vmcnt(0)")
    mt = maxtree(regs, tmp) + ["v_cmp_eq_u32 vcc, -1, v%d" % tmp]
    spec = list(spec or [])
    ns = len(spec)
    per = -(-len(mt) // ns) if ns else 0
    for s in spec:
        A(s)
        for k in range(per):
            if mt: A(mt.pop(0))
    for m in mt: A(m)
    A("s_cbranch_vccnz Lr%d" % u)
    LB("Ld%d" % u)
    ool.append(["Lr%d:" % u, "    s_sub_u32 s%d, s%d, 1" % (sCNT, sCNT), "    s_cbranch_scc1 Ld%d" % u, "    " + back, "    s_branch Lp%d" % u])

def lds_spin(off, target, tmp, mask=None, sleep=0):
    uid[0] += 1; u = uid[0]
    A("s_mov_b32 s%d, %s" % (sT2, hx(SPIN * 4)))
    LB("Ls%d" % u)
    A("ds_read_b32 v%d, v%d offset:%d" % (tmp, vFL, off))
    A("s_waitcnt lgkmcnt(0)")
    A("v_readfirstlane_b32 s%d, v%d" % (sT1, tmp))
    if mask: A("s_and_b32 s%d, s%d, %d" % (sT0, sT1, mask))
    A("s_cmp_ge_u32 s%d, %d" % (sT0 if mask else sT1, target))
    A("s_cbranch_scc1 Lt%d" % u)
    if sleep: A("s_sleep %d" % sleep)
    A("s_sub_u32 s%d, s%d, 1" % (sT2, sT2))
    A("s_cbranch_scc0 Ls%d" % u)
    LB("Lt%d" % u)

def lds_arrive(off, tmp, val=1):
    if val is not None: A("v_mov_b32 v%d, %d" % (tmp, val))
    A("s_mov_b64 exec, 1")
    A("ds_add_u32 v%d, v%d offset:%d" % (vFL, tmp, off))
    A("s_mov_b64 exec, -1")

def store_local(op, data, vaddr, so):
    uid[0] += 1; u = uid[0]
    A("s_cbranch_scc1 Lw%d" % u)
    A("%s %s, v%d, %s, s%d offen" % (op, data, vaddr, sr(sWS, 4), so))
    LB("Lx%d" % u)
    ool.append(["Lw%d:" % u, "    %s %s, v%d, %s, s%d offen sc1" % (op, data, vaddr, sr(sWS, 4), so), "    s_branch Lx%d" % u])
def fastcmp(): A("s_cmp_eq_u32 s%d, 0" % sFAST)

def mf(d, a, b, c):
    return "v_mfma_f32_16x16x32_bf16 %s, %s, %s, %s" % (vr(d, 4), vr(a, 4), vr(b, 4), "0" if c is None else vr(c, 4))
def mfma(d, a, b, c): A(mf(d, a, b, c))

def tags():
    A("s_add_u32 s%d, s%d, 1" % (sTG1, sE))
    A("s_mul_i32 s%d, s%d, 0x9E3779B1" % (sTG2, sTG1))
    A("s_and_b32 s%d, s%d, -8" % (sTG2, sTG2))

def common_addr():
    A("v_and_b32 v18, 3, v%d" % vLANE)
    A("v_lshlrev_b32 v%d, 12, v17" % vQST)
    A("v_lshrrev_b32 v24, 1, v16")
    A("v_lshl_add_u32 v%d, v24, 8, v%d" % (vQST, vQST))
    A("v_and_b32 v24, 1, v16")
    A("v_lshl_add_u32 v%d, v24, 3, v%d" % (vQST, vQST))
    A("v_lshlrev_b32 v%d, 4, v24" % vLSE)
    A("s_mul_i32 s%d, s%d, %d" % (sT0, sW, XS))
    A("s_add_u32 s%d, s%d, %d" % (sT0, sT0, L_XN))
    A("v_add_u32 v%d, s%d, v%d" % (vXNW, sT0, vL16))
    A("s_lshl_b32 s%d, s%d, 8" % (sT0, sA))
    A("s_add_u32 s%d, s%d, %d" % (sT0, sT0, L_XN))
    A("v_mul_u32_u24 v25, %d, v18" % XS)
    A("v_lshl_add_u32 v25, v16, 4, v25")
    A("v_add_u32 v%d, s%d, v25" % (vXNR, sT0))
    A("v_mov_b32 v%d, %s" % (vZ, hx(f2u(1.0 / 512))))
    for r in range(4): A("v_mov_b32 v%d, 0x3f803f80" % (ONES + r))
    A("s_and_b32 s%d, s%d, 1" % (sT1, sC))
    A("s_lshr_b32 s%d, s%d, 1" % (sT2, sC))
    soff(sQS, [(sT1, 11), (sW, 9), (sA, 6), (sT2, 4)], 0)
    A("v_bfe_u32 v24, v%d, 2, 2" % vLANE)
    A("v_lshl_add_u32 v24, v16, 3, v24")
    A("v_lshlrev_b32 v24, 7, v24")
    A("v_bfe_u32 v25, v%d, 3, 2" % vLANE)
    A("v_lshlrev_b32 v25, 1, v25")
    A("v_bfe_u32 v26, v%d, 1, 1" % vLANE)
    A("v_xor_b32 v25, v25, v26")
    A("v_lshl_add_u32 v24, v25, 4, v24")
    A("v_and_b32 v26, 1, v%d" % vLANE)
    A("v_lshl_add_u32 v%d, v26, 3, v24" % vWT)
    A("s_mov_b32 s%d, 0x000f000f" % sMSK)
    A("s_mov_b32 s%d, 0x000f000f" % (sMSK + 1))
    A("s_mov_b32 s%d, 0" % sLAY)

def wtile_voff(shift, d):
    A("v_lshrrev_b32 v24, 3, v%d" % vLANE)
    A("v_and_b32 v25, 7, v%d" % vLANE)
    A("v_and_b32 v26, 1, v16")
    A("v_lshlrev_b32 v26, 1, v26")
    A("v_xor_b32 v25, v25, v26")
    A("v_lshlrev_b32 v25, 4, v25")
    A("v_lshl_add_u32 v%d, v24, %d, v25" % (d, shift))
    A("v_xor_b32 v%d, 64, v%d" % (d + 1, d))

def wqf_reads():
    A("s_lshl_b32 s%d, s%d, 5" % (sT1, sW))
    A("v_xor_b32 v26, s%d, v%d" % (sT1, vWT))
    for t in range(4):
        for hf in range(2):
            A("ds_read_b64_tr_b16 %s, v26 offset:%d" % (vr(WQF + 4 * t + 2 * hf, 2), L_WQ + 4096 * t + 512 * hf))

def dma(vaddr, srdn, so, lds_s, step_so, flags="nt"):
    A("s_mov_b32 m0, s%d" % lds_s)
    A("s_add_u32 s%d, s%d, 1024" % (lds_s, lds_s))
    A("buffer_load_dwordx4 v%d, %s, s%d offen %s lds" % (vaddr, sr(srdn, 4), so, flags))
    A("s_add_u32 s%d, s%d, %d" % (so, so, step_so))

hdr = open("cdna_kernels/%s.s.ref" % NAME).read().split("; Override launch")[0]
L.append(hdr.rstrip("\n"))
L.append("; @launch grid=(256,1,1) block=(512,1,1) lds=%d" % LDS_SZ)
L.append('.amdgcn_target "amdgcn-amd-amdhsa--gfx950"')
L.append(".text\n.globl %s_kernel\n.p2align 8\n.type %s_kernel,@function\n%s_kernel:" % (NAME, NAME, NAME))
if DIAG: A("s_memrealtime s[42:43]")
if DBL or TOT: A("s_memrealtime s[98:99]")
A("s_cmp_ge_u32 s2, 256")
A("s_cbranch_scc1 Lend")
if DIAG == 2: A("s_load_dwordx2 s[96:97], s[0:1], 88")
for s, off in [(sWQ, 24), (sX, 0), (sK, 8), (sWS, 96), (sV, 16), (sB2P, 72)]:
    A("s_load_dwordx2 %s, s[0:1], %d" % (sr(s, 2), off))
C("every wave pulls one line of this kernel's code into L2 (plain read): 32 workgroups x 4 lines")
A("s_getpc_b64 s[10:11]")
LB("Lpc0")
A("v_bfe_u32 v19, v0, 6, 2")
A("s_and_b32 s12, s2, 0xf8")
A("s_lshl_b32 s12, s12, 6")
A("v_lshl_add_u32 v19, v19, 7, s12")
A("global_load_dword v%d, v19, s[10:11]" % (W + 8))
A("v_lshrrev_b32 v18, 6, v0")
A("v_and_b32 v%d, 63, v0" % vLANE)
A("v_mov_b32 v%d, %d" % (vFL, L_FLG))
A("v_readfirstlane_b32 s%d, v18" % sW)
A("v_lshlrev_b32 v%d, 4, v%d" % (vL16, vLANE))
A("v_lshrrev_b32 v16, 4, v%d" % vLANE)
A("v_and_b32 v17, 15, v%d" % vLANE)
A("s_and_b32 s%d, s2, 7" % sJ)
A("s_lshr_b32 s%d, s2, 6" % sA)
A("s_bfe_u32 s%d, s2, 0x30003" % sC)
A("v_mov_b32 v20, 0")
A("v_mov_b32 v21, 0")
A("s_mov_b32 s%d, 0x00020000" % (sWS + 3))
if DIAG: A("v_mov_b32 v30, 0")
A("s_cmp_lt_u32 s%d, 4" % sW)
A("s_cbranch_scc1 Lmain0")
vKA, vVA = W + 40, W + 44
def kv_issue(i):
    if i < 8: dma(vKA + (i & 3), sK, sKO, sKL, 1024)
    else: dma(vVA + (i & 1), sV, sVO, sVL, 1024)
def main_early():
    LB("Lmain0")
    A("ds_write_b64 v%d, v[20:21]" % vFL)
    A("ds_write_b64 v%d, v[20:21] offset:8" % vFL)
    A("ds_write_b64 v%d, v[20:21] offset:16" % vFL)
    A("ds_write_b64 v%d, v[20:21] offset:24" % vFL)
    A("s_mov_b32 s%d, %s" % (sK + 2, hx(1 << 25))); A("s_mov_b32 s%d, s%d" % (sK + 3, sWS + 3))
    A("v_xor_b32 v18, v17, v16")
    A("v_lshlrev_b32 v18, 4, v18")
    A("v_lshl_add_u32 v%d, v16, 8, v18" % vKA)
    for i in range(1, 4): A("v_xor_b32 v%d, %d, v%d" % (vKA + i, 64 * i, vKA))
    soff(sKO, [(sA, 23), (sJ, 20), (sC, 15), (sW, 13)], 3072 * 256)
    A("s_add_u32 s%d, s%d, %d" % (sKL, sT0, L_K))
    A("s_add_u32 s%d, s%d, %d" % (sVL, sT0, L_V))
    A("s_mov_b32 s%d, s%d" % (sVO, sKO))
    A("s_waitcnt lgkmcnt(0)")
    A("s_barrier")
    for i in range(D0): kv_issue(i)
    if DIAG: A("v_writelane_b32 v30, s42, 0")
    STAMP(10)
    A("s_branch Lmain")

C("---- helper waves: first q projection, then the table of g over bf16 inputs ----")
HW1, HB1, HW2 = 32, 60, 112
hK0, hK1, hONE, hRES = 88, 90, 92, 94
AC = [140, 142]; U = [144, 146]; T_ = [148, 150]; Z = [152, 154]
A("s_mov_b32 s%d, %s" % (sWQ + 2, hx(1 << 22))); A("s_mov_b32 s%d, s%d" % (sWQ + 3, sWS + 3))
A("s_movk_i32 s%d, 4096" % (sX + 2)); A("s_mov_b32 s%d, s%d" % (sX + 3, sWS + 3))
A("s_sub_u32 s%d, s%d, 4" % (sW, sW))
wtile_voff(13, 22)
soff(sT4, [(sA, 20), (sW, 18), (sJ, 10), (sC, 7)], 0)
A("s_lshl_b32 s%d, s%d, 12" % (sT2, sW))
A("s_add_u32 s%d, s%d, %d" % (sT2, sT2, L_WQ))
A("s_lshl_b32 s%d, s%d, 10" % (sT3, sW))
A("s_mov_b32 s%d, %s" % (sWS + 2, hx(WS_SZ)))
A("v_mov_b32 v24, %s" % hx(EPO))
A("s_waitcnt lgkmcnt(0)")
A("buffer_load_dwordx4 %s, v%d, %s, s%d offen" % (vr(XR, 4), vL16, sr(sX, 4), sT3))
for i in range(4): dma(22 + (i & 1), sWQ, sT4, sT2, 0x10000)
A("buffer_load_dword v%d, v24, %s, 0 offen" % (RES, sr(sWS, 4)))
A("global_load_ushort v%d, v20, %s" % (RES + 1, sr(sB2P, 2)))
C("early sentinels: hw0 1024 B + hw1 16 B of O0/LSE0 ; hw2,3 the table slots")
for i in range(4): A("v_mov_b32 v%d, -1" % (PM + i))
A("s_lshr_b32 s%d, s2, 3" % sT1)
A("s_mul_i32 s%d, s%d, %d" % (sT5, sT1, CLRA_PER))
A("s_lshl_b32 s%d, s%d, 17" % (sGR, sJ))
A("s_add_u32 s%d, s%d, s%d" % (sT5, sT5, sGR))
A("s_add_u32 s%d, s%d, s%d" % (sT5, sT5, sT3))
A("s_mul_i32 s%d, s2, %d" % (sT4, NENT * 4 // 256))
A("s_add_u32 s%d, s%d, %s" % (sT4, sT4, hx(TB)))
A("s_cmp_ge_u32 s%d, 2" % sW)
A("s_cselect_b32 s%d, s%d, s%d" % (sT5, sT4, sT5))
A("s_cselect_b64 %s, %d, 1" % (sr(sH, 2), (1 << (NENT * 4 // 256 // 16)) - 1))
A("s_cmp_eq_u32 s%d, 0" % sW)
A("s_cselect_b64 exec, -1, %s" % sr(sH, 2))
A("buffer_store_dwordx4 %s, v%d, %s, s%d offen sc1" % (vr(PM, 4), vL16, sr(sWS, 4), sT5))
A("s_mov_b64 exec, -1")
A("s_barrier")
A("s_branch Lhelp2")
main_early()
LB("Lhelp2")
for s, off in [(sW1, 48), (sB1, 56), (sW2, 64)]:
    A("s_load_dwordx2 %s, s[0:1], %d" % (sr(s, 2), off))
if DIAG: A("v_writelane_b32 v30, s42, 0")
STAMP(9)
A("s_lshl_b32 s%d, s2, 2" % sHC)
A("s_add_u32 s%d, s%d, s%d" % (sHC, sHC, sW))
A("s_mul_i32 s%d, s%d, %d" % (sHC, sHC, EPW))
A("s_lshl_b32 s%d, s%d, 3" % (sHT, sHC))
A("s_add_u32 s%d, s%d, %s" % (sHT, sHT, hx(TB)))
A("s_add_u32 s%d, s%d, %d" % (sHC, sHC, ELO * 128))
A("s_lshl_b32 s%d, s%d, 16" % (sHC, sHC))
A("v_lshlrev_b32 v27, 2, v%d" % vLANE)
common_addr()
A("s_lshl_b32 s%d, s%d, 1" % (sQS, sQS))
A("s_add_u32 s%d, s%d, s%d" % (sQS, sQS, sGR))
A("s_add_u32 s%d, s%d, %s" % (sQS, sQS, hx(Q0_OFF)))
A("v_lshlrev_b32 v%d, 1, v%d" % (vQST, vQST))
A("s_getreg_b32 s%d, hwreg(HW_REG_XCC_ID, 0, 3)" % sXCC)
for r, c in [(hK0, K0), (hK1, K1), (hONE, 1.0)]:
    A("v_mov_b32 v%d, %s" % (r, hx(f2u(c)))); A("v_mov_b32 v%d, %s" % (r + 1, hx(f2u(c))))
A("v_mov_b32 v%d, 0" % hRES)
A("s_mov_b32 s%d, 0" % sIT)
for s, n in [(sW1, 3584), (sB1, 3584), (sW2, 3584)]: srd(s, n)
A("s_mov_b32 m0, s%d" % sT3)
A("s_waitcnt vmcnt(7) lgkmcnt(0)")
for i, sd in enumerate([sW1, sB1, sW2]):
    A("buffer_load_dwordx4 v%d, %s, s%d offen lds" % (vL16, sr(sd, 4), sT3))
    if i < 2:
        A("s_add_u32 m0, m0, 4096"); A("s_nop 0")
STAMP(1)
A("s_branch Llnq")
LB("Lq_first")
A("s_waitcnt vmcnt(3) lgkmcnt(0)")
STAMP(2)
lds_arrive(0, vT + 4)
A("v_readfirstlane_b32 s%d, v%d" % (sE, RES))
A("v_readfirstlane_b32 s%d, v%d" % (sB2, RES + 1))
tags()
A("s_or_b32 s%d, s%d, s%d" % (sXCC, sXCC, sTG2))
A("s_lshl_b32 s%d, s%d, 16" % (sB2, sB2))
C("4 helper arrivals (wq tile, xn rows) + 4 main arrivals (coefficients landed, sentinels acknowledged)")
lds_spin(0, 4, vT + 4)
wqf_reads()
A("s_waitcnt lgkmcnt(0)")
A("s_branch Lq_go")
LB("Lh_qst")
A("v_mov_b32 v%d, s%d" % (W + 6, sTG1))
A("v_mov_b32 v%d, s%d" % (W + 7, sXCC))
A("buffer_store_dwordx4 %s, v%d, %s, s%d offen%s" % (vr(W + 4, 4), vQST, sr(sWS, 4), sQS, "" if int(OPT.get("fast", 1)) else " sc1"))
A("s_add_u32 s%d, s%d, %s" % (sQS, sQS, hx(QB_DELTA)))
A("buffer_store_dwordx4 %s, v%d, %s, s%d offen sc1" % (vr(W + 4, 4), vQST, sr(sWS, 4), sQS))
A("s_mov_b64 exec, -1")
HR = W + 8
STAMP(3)
A("v_lshlrev_b32 v26, 3, v%d" % vLANE)
A("s_waitcnt vmcnt(2)")
lds_arrive(24, 24)
lds_spin(24, 4, 24)
for a_ in range(3):
    for k in range(3):
        A("ds_read_b128 %s, v%d offset:%d" % (vr(HR + 14 * a_ + 4 * k, 4), vL16, 4096 * a_ + 1024 * k))
    A("ds_read_b64 %s, v26 offset:%d" % (vr(HR + 14 * a_ + 12, 2), 4096 * a_ + 3072))
for a_, d in [(0, HW1), (14, HB1), (28, HW2)]:
    A("s_waitcnt lgkmcnt(%d)" % (8 - 4 * (a_ // 14)))
    for p in range(14):
        A("v_lshlrev_b32 v%d, 16, v%d" % (d + 2 * p, HR + a_ + p))
        A("v_and_b32 v%d, 0xffff0000, v%d" % (d + 2 * p + 1, HR + a_ + p))
STAMP(4)
if DIAG:
    A("s_memtime s[42:43]"); A("s_waitcnt lgkmcnt(0)"); A("v_writelane_b32 v30, s42, 13")
LB("Lhl")
if DIAG:
    A("s_memrealtime s[42:43]"); A("s_add_u32 m0, s%d, 10" % sIT); A("s_waitcnt lgkmcnt(0)"); A("v_writelane_b32 v30, s42, m0")
A("s_mov_b32 s%d, s%d" % (sH, sHC)); A("s_mov_b32 s%d, s%d" % (sH + 1, sHC))
A("s_xor_b32 s%d, s%d, 0x80000000" % (sH2, sHC)); A("s_mov_b32 s%d, s%d" % (sH2 + 1, sH2))
U4 = [144, 146, 148, 150]; T4 = [152, 154, 156, 158]; Z4 = [160, 162, 164, 166]
for p2 in range(7):
    ch = [(2 * p2 + k // 2, k & 1) for k in range(4)]
    for k, (p, sg) in enumerate(ch):
        A("v_pk_fma_f32 %s, %s, %s, %s" % (vr(U4[k], 2), vr(HW1 + 2 * p, 2), sr([sH, sH2][sg], 2), vr(HB1 + 2 * p, 2)))
    for k in range(4): A("v_pk_mul_f32 %s, %s, %s" % (vr(T4[k], 2), vr(U4[k], 2), vr(U4[k], 2)))
    for k in range(4): A("v_pk_fma_f32 %s, %s, %s, %s" % (vr(T4[k], 2), vr(T4[k], 2), vr(hK1, 2), vr(hK0, 2)))
    for k in range(4): A("v_pk_mul_f32 %s, %s, %s" % (vr(T4[k], 2), vr(T4[k], 2), vr(U4[k], 2)))
    for k in range(4):
        for h in range(2): A("v_exp_f32 v%d, v%d" % (T4[k] + h, T4[k] + h))
    for k, (p, sg) in enumerate(ch): A("v_pk_mul_f32 %s, %s, %s" % (vr(Z4[k], 2), vr(U4[k], 2), vr(HW2 + 2 * p, 2)))
    for k in range(4): A("v_pk_add_f32 %s, %s, %s" % (vr(T4[k], 2), vr(T4[k], 2), vr(hONE, 2)))
    for k in range(4):
        for h in range(2): A("v_rcp_f32 v%d, v%d" % (T4[k] + h, T4[k] + h))
    for k, (p, sg) in enumerate(ch):
        if p == 0: A("v_pk_mul_f32 %s, %s, %s" % (vr(AC[sg], 2), vr(Z4[k], 2), vr(T4[k], 2)))
        else: A("v_pk_fma_f32 %s, %s, %s, %s" % (vr(AC[sg], 2), vr(Z4[k], 2), vr(T4[k], 2), vr(AC[sg], 2)))
A("v_add_f32 v%d, v%d, v%d" % (AC[0], AC[0], AC[0] + 1))
A("v_add_f32 v%d, v%d, v%d" % (AC[1], AC[1], AC[1] + 1))
A("s_lshl_b32 m0, s%d, 1" % sIT)
A("s_add_u32 s%d, s%d, 0x10000" % (sHC, sHC))
wave_sum2(AC[0], AC[1], sSUM, sSQ)
A("s_add_u32 s%d, s%d, 1" % (sIT, sIT))
A("s_nop 0")
A("v_writelane_b32 v%d, s%d, m0" % (hRES, sSUM))
A("s_add_u32 m0, m0, 1")
A("s_cmp_lg_u32 s%d, %d" % (sIT, EPW))
A("v_writelane_b32 v%d, s%d, m0" % (hRES, sSQ))
A("s_cbranch_scc1 Lhl")
if DIAG:
    A("s_memtime s[42:43]"); A("s_waitcnt lgkmcnt(0)"); A("v_writelane_b32 v30, s42, 14")
    STAMP(15)
A("v_cvt_pk_bf16_f32 v%d, v%d, v%d" % (hRES, hRES, hRES))
A("v_and_b32 v%d, 0xffff0000, v%d" % (hRES, hRES))
A("v_add_f32 v%d, s%d, v%d" % (hRES, sB2, hRES))
A("v_cvt_pk_bf16_f32 v%d, v%d, v%d" % (hRES, hRES, hRES))
A("v_and_b32 v%d, 0xffff0000, v%d" % (hRES, hRES))
A("s_bfm_b64 exec, %d, 0" % (2 * EPW))
A("buffer_store_dword v%d, v27, %s, s%d offen sc1" % (hRES, sr(sWS, 4), sHT))
A("s_mov_b64 exec, -1")
STAMP(7)
if DIAG:
    A("s_add_u32 s%d, s%d, 4" % (sW, sW))
    A("v_mov_b32 v28, v30")
    A("s_branch Lfin_exit")
A("s_endpgm")

LB("Lmain")
for s, off in [(sW1, 48), (sB1, 56), (sW2, 64), (sWO, 32), (sOUT, 80)]:
    A("s_load_dwordx2 %s, s[0:1], %d" % (sr(s, 2), off))
A("s_mov_b32 s%d, %s" % (sWS + 2, hx(WS_SZ)))
for i in range(4): A("v_mov_b32 v%d, -1" % (W + i))
A("s_lshl_b32 s%d, s%d, 17" % (sGR, sJ))
A("s_lshr_b32 s%d, s2, 3" % sT1)
C("wave 3: each workgroup pulls a slice of the mixer coefficients into its L2")
A("s_cmp_lg_u32 s%d, 3" % sW)
A("s_cbranch_scc1 Lm_go")
A("s_min_u32 s%d, s%d, 27" % (sT0, sT1))
A("s_lshl_b32 s%d, s%d, 7" % (sT0, sT0))
A("v_mov_b32 v19, s%d" % sT0)
A("s_mov_b64 exec, 1")
A("s_waitcnt lgkmcnt(0)")
for k, sd in enumerate([sW1, sB1, sW2]): A("global_load_dword v%d, v19, %s" % (W + 9 + k, sr(sd, 2)))
LB("Lm_go")
A("s_mov_b64 exec, -1")
A("v_mov_b32 v22, %s" % hx(EPO))
A("buffer_load_dword v%d, v22, %s, 0 offen" % (RES, sr(sWS, 4)))
STAMP(11)
for s, n in [(sV, 1 << 25), (sX, 4096), (sWO, 1 << 22), (sOUT, 4096), (sW1, 3584), (sB1, 3584), (sW2, 3584)]: srd(s, n)
A("v_lshlrev_b32 v18, 1, v16")
A("v_xor_b32 v18, v17, v18")
A("v_lshlrev_b32 v18, 4, v18")
A("v_lshl_add_u32 v%d, v16, 8, v18" % vVA)
A("v_xor_b32 v%d, 128, v%d" % (vVA + 1, vVA))
C("late sentinels: wave 0,1: group region ; wave 2: P chunk")
A("s_lshr_b32 s%d, s2, 3" % sT1)
A("s_mul_i32 s%d, s%d, %d" % (sT1, sT1, CLRB_PER))
A("s_lshl_b32 s%d, s%d, 10" % (sT0, sW))
A("s_add_u32 s%d, s%d, s%d" % (sT1, sT1, sT0))
A("s_add_u32 s%d, s%d, s%d" % (sT1, sT1, sGR))
A("s_add_u32 s%d, s%d, %d" % (sT1, sT1, CLRB_OFF))
A("s_lshl_b32 s%d, s2, 10" % sT0)
A("s_add_u32 s%d, s%d, %s" % (sT0, sT0, hx(PB)))
A("s_cmp_ge_u32 s%d, 2" % sW)
A("s_cselect_b32 s%d, s%d, s%d" % (sT1, sT0, sT1))
A("s_bfm_b64 %s, %d, 0" % (sr(sH, 2), (CLRB_PER - 1024) // 16))
A("s_cmp_eq_u32 s%d, 1" % sW)
A("s_cselect_b64 %s, %s, -1" % (sr(sH, 2), sr(sH, 2)))
A("s_cmp_eq_u32 s%d, 3" % sW)
A("s_cselect_b64 exec, 1, %s" % sr(sH, 2))
A("buffer_store_dwordx4 %s, v%d, %s, s%d offen sc1" % (vr(W, 4), vL16, sr(sWS, 4), sT1))
A("s_mov_b64 exec, -1")

for i in range(D0, D1): kv_issue(i)
common_addr()
A("s_add_u32 s%d, s%d, s%d" % (sQS, sQS, sGR))
A("s_add_u32 s%d, s%d, %d" % (sQS, sQS, Q1_OFF))
wtile_voff(10, 22)
A("v_and_b32 v19, 7, v%d" % vLANE)
A("v_lshrrev_b32 v25, 2, v%d" % vLANE)
A("v_lshlrev_b32 v25, 7, v25")
A("v_lshl_add_u32 v%d, v18, 2, v25" % vOST)
A("v_lshlrev_b32 v25, 7, v16")
A("v_lshl_add_u32 v%d, v19, 4, v25" % vOLD)
A("v_lshlrev_b32 v%d, 1, v%d" % (vPST, vLANE))
A("v_lshlrev_b32 v25, 3, v16")
A("v_lshl_add_u32 v%d, v19, 4, v25" % vX1S)
A("s_mul_i32 s%d, s%d, %d" % (sT0, sW, RBS))
A("s_add_u32 s%d, s%d, %d" % (sT0, sT0, L_RB))
A("v_mul_u32_u24 v25, 528, v18")
A("v_lshl_add_u32 v25, v16, 4, v25")
A("v_lshrrev_b32 v26, 2, v17")
A("v_lshl_add_u32 v25, v26, 7, v25")
A("v_add_u32 v%d, s%d, v25" % (vRBW, sT0))
A("s_mul_i32 s%d, s%d, 528" % (sT0, sW))
A("s_add_u32 s%d, s%d, %d" % (sT0, sT0, L_RB))
A("v_lshlrev_b32 v25, 3, v%d" % vLANE)
A("v_add_u32 v%d, s%d, v25" % (vRBR, sT0))
A("s_lshl_b32 s%d, s%d, 3" % (sT0, sW))
A("s_add_u32 s%d, s%d, %d" % (sT0, sT0, L_ML))
A("v_lshlrev_b32 v25, 5, v18")
A("v_add_u32 v%d, s%d, v25" % (vMLW, sT0))
A("s_lshl_b32 s%d, s%d, 5" % (sT0, sW))
A("s_add_u32 s%d, s%d, %d" % (sT0, sT0, L_ML))
A("v_mov_b32 v%d, s%d" % (vMLR, sT0))
A("v_mov_b32 v25, 0x3f80")
A("v_mov_b32 v26, 0x3f800000")
for r in range(4):
    A("v_cmp_eq_u32 vcc, %d, v17" % (2 * r))
    A("v_cmp_eq_u32 %s, %d, v17" % (sr(sH, 2), 2 * r + 1))
    A("s_nop 0")
    A("v_cndmask_b32 v%d, 0, v25, vcc" % (SEL + r))
    A("v_cndmask_b32 v%d, v%d, v26, %s" % (SEL + r, SEL + r, sr(sH, 2)))
for i in range(16): A("v_mov_b32 v%d, 0" % (PM + i))
for p in range(4):
    A("s_mov_b32 s%d, %s" % (sPM + 2 * p, hx(0x000f000f << (4 * p))))
    A("s_mov_b32 s%d, %s" % (sPM + 2 * p + 1, hx(0x000f000f << (4 * p))))
soff(sOS, [(sW, 13), (sA, 11), (sC, 4), (sJ, 17)], O_OFF[0])
soff(sOL, [(sA, 13), (sW, 11), (sJ, 17)], O_OFF[0])
A("s_add_u32 s%d, s%d, %s" % (sQL, sOL, hx(Q0_OFF - O_OFF[0])))
soff(sLS, [(sW, 7), (sA, 5), (sC, 2), (sJ, 17)], LSE_OFF[0])
soff(sLL, [(sA, 7), (sW, 5), (sJ, 17)], LSE_OFF[0])
soff(sPS, [(sW, 15), (sC, 12), (sJ, 9), (sA, 7)], PB)
A("s_mov_b32 s%d, %s" % (sSC, hx(f2u(128 ** -0.5 * math.log2(math.e)))))
A("s_getreg_b32 s%d, hwreg(HW_REG_XCC_ID, 0, 3)" % sXCC)
A("v_xor_b32 v24, v16, v17")
A("v_lshlrev_b32 v24, 4, v24")
A("v_lshl_add_u32 v24, v17, 8, v24")
A("s_lshl_b32 s%d, s%d, 13" % (sT1, sW))
A("s_add_u32 s%d, s%d, %d" % (sT2, sT1, L_K))
for t in range(4): A("v_xor_b32 v%d, %d, v24" % (18 + t, 64 * t))
for t in range(4): A("v_add_u32 v%d, s%d, v%d" % (18 + t, sT2, 18 + t))
VA = W + 32
A("v_lshrrev_b32 v24, 2, v%d" % vLANE)
A("v_and_b32 v25, 7, v24")
A("v_lshlrev_b32 v25, 1, v25")
A("v_bfe_u32 v26, v%d, 1, 1" % vLANE)
A("v_xor_b32 v25, v25, v26")
A("v_lshlrev_b32 v25, 4, v25")
A("v_lshl_add_u32 v25, v24, 8, v25")
A("v_and_b32 v26, 1, v%d" % vLANE)
A("v_lshl_add_u32 v25, v26, 3, v25")
A("s_add_u32 s%d, s%d, %d" % (sT2, sT1, L_V))
for t in range(8): A("v_xor_b32 v%d, %d, v25" % (VA + t, 32 * t))
for t in range(8): A("v_add_u32 v%d, s%d, v%d" % (VA + t, sT2, VA + t))
soff(sT4, [(sJ, 19), (sA, 17), (sW, 15), (sC, 7)], 0)
A("s_lshl_b32 s%d, s%d, 12" % (sT5, sW))
A("s_add_u32 s%d, s%d, %d" % (sT5, sT5, L_WO))
soff(sT3, [(sA, 10), (sC, 7)], 0)
A("v_lshlrev_b32 v24, 5, v%d" % vLANE)
A("s_lshl_b32 s%d, s%d, 10" % (sT2, sW))
A("s_add_u32 s%d, s%d, %d" % (sT2, sT2, L_QF))
A("v_add_u32 v25, s%d, v%d" % (sT2, vL16))
A("v_add_u32 v26, %d, v%d" % (L_QF, vL16))
STAMP(12)
if DIAG: A("v_mov_b32 v31, v30")
C("early traffic done -> tell the helpers")
A("s_waitcnt vmcnt(%d) lgkmcnt(0)" % (D1 - D0 + 1))
A("v_readfirstlane_b32 s%d, v%d" % (sE, RES))
tags()
A("s_or_b32 s%d, s%d, s%d" % (sXCC, sXCC, sTG2))
QP = W
def q0_issue():
    A("buffer_load_dwordx4 %s, v24, %s, s%d offen sc1" % (vr(QP, 4), sr(sWS, 4), sQL))
    A("buffer_load_dwordx4 %s, v24, %s, s%d offen offset:16 sc1" % (vr(QP + 4, 4), sr(sWS, 4), sQL))
LATE_DONE = D0 + DEPTH - 1
assert D1 <= LATE_DONE and LATE_DONE + 1 < 16 - QV
for i in range(D1, 16):
    if i == 16 - QV: q0_issue()
    if i >= DEPTH: A("s_waitcnt vmcnt(%d)" % (DEPTH - 1 + (2 if i >= 16 - QV else 0)))
    if i == LATE_DONE: lds_arrive(8, vT)
    if i == LATE_DONE + 1:
        A("s_cmp_lg_u32 s%d, 0" % sW)
        A("s_cbranch_scc1 Lnoflag")
        C("every sentinel store of this workgroup is acknowledged: announce it")
        lds_spin(8, 4, vT)
        A("v_mov_b32 v16, s%d" % sTG1)
        A("v_mov_b32 v17, s%d" % sXCC)
        soff(sT1, [(2, 4)], FB)
        A("v_mov_b32 v27, 0")
        A("s_mov_b64 exec, 1")
        A("buffer_store_dwordx2 v[16:17], v27, %s, s%d offen sc1" % (sr(sWS, 4), sT1))
        A("s_mov_b64 exec, -1")
        LB("Lnoflag")
    kv_issue(i)
if QV == 0: q0_issue()
STAMP(1)
A("s_waitcnt vmcnt(%d)" % 10)
for t in range(4):
    for T in range(2):
        A("ds_read_b128 %s, v%d offset:%d" % (vr(KF + 16 * T + 4 * t, 4), 18 + t, 4096 * T))
A("s_waitcnt vmcnt(%d)" % QV)
STAMP(2)
A("s_setprio 2")
A("s_mov_b32 s%d, %s" % (sCNT, hx(SPIN)))
LB("Lmq")
A("v_and_b32 v16, -8, v%d" % (QP + 3))
A("v_and_b32 v17, -8, v%d" % (QP + 7))
A("v_cmp_ne_u32 vcc, s%d, v%d" % (sTG1, QP + 2))
A("v_cmp_ne_u32 %s, s%d, v%d" % (sr(sRET, 2), sTG1, QP + 6))
A("s_or_b64 vcc, vcc, %s" % sr(sRET, 2))
A("v_cmp_ne_u32 %s, s%d, v16" % (sr(sRET, 2), sTG2))
A("s_or_b64 vcc, vcc, %s" % sr(sRET, 2))
A("v_cmp_ne_u32 %s, s%d, v17" % (sr(sRET, 2), sTG2))
A("s_or_b64 vcc, vcc, %s" % sr(sRET, 2))
A("s_cbranch_vccnz Lmqr")
LB("Lmqd")
Ls = L; L = []
LB("Lmqr")
C("not there yet: poll the plain copy a few times, then the write-through copy")
A("s_cmp_eq_u32 s%d, %s" % (sCNT, hx(SPIN - 8)))
A("s_cselect_b32 s%d, %s, 0" % (sT0, hx(QB_DELTA)))
A("s_add_u32 s%d, s%d, s%d" % (sQL, sQL, sT0))
q0_issue()
A("s_waitcnt vmcnt(0)")
A("s_sub_u32 s%d, s%d, 1" % (sCNT, sCNT))
A("s_cbranch_scc0 Lmq")
A("s_branch Lmqd")
ool.append(L); L = Ls
A("v_cmp_ne_u32 vcc, s%d, v%d" % (sXCC, QP + 3))
A("v_mov_b32 v%d, v%d" % (QP + 2, QP + 4))
A("v_mov_b32 v%d, v%d" % (QP + 3, QP + 5))
A("ds_write_b128 v25, %s" % vr(QP, 4))
A("s_cmp_eq_u64 vcc, 0")
A("s_cselect_b32 s%d, 1, 0x101" % sT0)
A("v_mov_b32 v16, s%d" % sT0)
A("s_waitcnt lgkmcnt(0)")
lds_arrive(4, 16, None)
STAMP(15)
for i in range(4): dma(22 + (i & 1), sWO, sT4, sT5, 0x2000)
A("buffer_load_dwordx2 %s, v%d, %s, s%d offen" % (vr(RES + 2, 2), vX1S, sr(sX, 4), sT3))
FLG = W + 44
soff(sT5, [(sW, 10)], FB)
soff(sQL, [(sA, 12), (sJ, 17)], Q1_OFF)
lds_spin(4, 4, vT, mask=0xff)
A("s_cmp_lt_u32 s%d, 256" % sT1)
A("s_cselect_b32 s%d, %d, 0" % (sFAST, int(OPT.get("fast", 1))))
QF = W + 16
for t in range(4):
    A("ds_read_b128 %s, v26 offset:%d" % (vr(QF + 4 * t, 4), 1024 * t))
A("buffer_load_dwordx4 %s, v%d, %s, s%d offen sc1" % (vr(FLG, 4), vL16, sr(sWS, 4), sT5))
if PRET:
    C("bring the (cleared) group mailbox lines into L2")
    A("s_lshr_b32 s%d, s2, 3" % sT5)
    A("s_lshl_b32 s%d, s%d, 2" % (sT5, sT5))
    A("s_add_u32 s%d, s%d, s%d" % (sT5, sT5, sW))
    A("s_mul_i32 s%d, s%d, 768" % (sT5, sT5))
    A("s_add_u32 s%d, s%d, s%d" % (sT5, sT5, sGR))
    A("v_lshlrev_b32 v27, 7, v%d" % vLANE)
    A("s_mov_b64 exec, 63")
    A("buffer_load_dword v%d, v27, %s, s%d offen sc1" % (W + 40, sr(sWS, 4), sT5))
    A("s_mov_b64 exec, -1")
S = W
qk = []
for t in range(4):
    for T in range(2):
        qk.append(mf(S + 4 * T, KF + 16 * T + 4 * t, QF + 4 * t, None if t == 0 else S + 4 * T))
for t in range(4):
    A("s_waitcnt lgkmcnt(%d)" % (3 - t))
    A(qk[2 * t]); A(qk[2 * t + 1])
STAMP(3)
A("s_branch Lk_go")

LB("Llnq")
C("LayerNorm of the row held in XR, then q partial = xn @ wq tile")
X = W
row_stats(XR, vT, X)
A("v_add_f32 v%d, %s, v%d" % (vT + 1, EPS, vT + 1))
A("v_rsq_f32 v%d, v%d" % (vT + 2, vT + 1))
A("s_cmp_eq_u32 s%d, 0" % sLAY)
A("v_mul_f32 v%d, v%d, v%d" % (vT + 3, vT, vT + 2))
for i in range(4):
    A("v_pk_fma_f32 %s, %s, %s, %s op_sel:[0,0,1] op_sel_hi:[1,0,1] neg_lo:[0,0,1] neg_hi:[0,0,1]" % (vr(X + 2 * i, 2), vr(X + 2 * i, 2), vr(vT + 2, 2), vr(vT + 2, 2)))
for i in range(4):
    A("v_cvt_pk_bf16_f32 v%d, v%d, v%d" % (X + 8 + i, X + 2 * i, X + 2 * i + 1))
A("ds_write_b128 v%d, %s" % (vXNW, vr(X + 8, 4)))
A("s_cbranch_scc1 Lq_first")
A("s_waitcnt lgkmcnt(0)")
A("s_barrier")
LB("Lq_go")
BF = W + 16
for t in range(4):
    A("ds_read_b128 %s, v%d offset:%d" % (vr(BF + 4 * t, 4), vXNR, 64 * t))
for t in range(4):
    A("s_waitcnt lgkmcnt(%d)" % (3 - t))
    mfma(W, WQF + 4 * t, BF + 4 * t, None if t == 0 else W)
A("s_cmp_eq_u32 s%d, 0" % sLAY)
A("s_mov_b64 exec, %s" % sr(sMSK, 2))
NOP(6)
A("v_cvt_pk_bf16_f32 v%d, v%d, v%d" % (W + 4, W, W + 1))
A("v_cvt_pk_bf16_f32 v%d, v%d, v%d" % (W + 5, W + 2, W + 3))
A("s_cbranch_scc1 Lh_qst")
fastcmp()
store_local("buffer_store_dwordx2", vr(W + 4, 2), vQST, sQS)
A("s_mov_b64 exec, -1")
STAMP(2)

C("attention over this workgroup's 128 keys")
def iq():
    for t in range(4):
        A("buffer_load_dwordx4 %s, v%d, %s, s%d offen offset:%d sc1" % (vr(QF + 4 * t, 4), vL16, sr(sWS, 4), sQL, 1024 * t))
poll(iq, range(QF, QF + 16), vT, spec=qk)
STAMP(3)
LB("Lk_go")
NOP(7)
for ctl in ["row_ror:4", "row_ror:8"]:
    for i in range(8):
        A("v_add_f32_dpp v%d, v%d, v%d %s row_mask:0xf bank_mask:0xf" % (S + i, S + i, S + i, ctl))
A("v_max3_f32 v%d, v%d, v%d, v%d" % (vT, S, S + 1, S + 2))
A("v_max3_f32 v%d, v%d, v%d, v%d" % (vT + 1, S + 3, S + 4, S + 5))
A("v_max3_f32 v%d, v%d, v%d, v%d" % (vT, vT, S + 6, S + 7))
A("v_max_f32 v%d, v%d, v%d" % (vT, vT, vT + 1))
A("v_mov_b32 v%d, v%d" % (vT + 1, vT))
A("s_nop 1")
A("v_permlane16_swap_b32 v%d, v%d" % (vT, vT + 1))
A("v_max_f32 v%d, v%d, v%d" % (vT, vT, vT + 1))
A("v_mov_b32 v%d, v%d" % (vT + 1, vT))
A("s_nop 1")
A("v_permlane32_swap_b32 v%d, v%d" % (vT, vT + 1))
A("v_max_f32 v%d, v%d, v%d" % (vT, vT, vT + 1))
A("v_mul_f32 v%d, s%d, v%d" % (vT + 2, sSC, vT))
for i in range(8):
    A("v_fma_f32 v%d, v%d, s%d, -v%d" % (S + i, S + i, sSC, vT + 2))
for i in range(8):
    A("v_exp_f32 v%d, v%d" % (S + i, S + i))
for p in range(4):
    A("s_mov_b64 exec, %s" % sr(sPM + 2 * p, 2))
    for i in range(4):
        A("v_cvt_pk_bf16_f32 v%d, v%d, v%d" % (PM + 4 * p + i, S + 2 * i, S + 2 * i + 1))
A("s_mov_b64 exec, -1")
STAMP(4)
A("s_cmp_lg_u32 s%d, 0" % sLAY)
A("s_cbranch_scc1 Lv_go")
A("s_waitcnt vmcnt(%d)" % (6 + PRET))
STAMP(6)
for t in range(8):
    for hf in range(2):
        A("ds_read_b64_tr_b16 %s, v%d offset:%d" % (vr(VF + 4 * t + 2 * hf, 2), VA + t, 4096 * hf))
A("s_waitcnt lgkmcnt(0)")
LB("Lv_go")
OA = W + 8
mfma(W + 16, ONES, PM, None)
for p in range(4):
    for T in range(2):
        mfma(OA + 4 * T, VF + 4 * (2 * p + T), PM + 4 * p, None if p == 0 else OA + 4 * T)
A("s_mov_b64 exec, %s" % sr(sMSK, 2))
A("v_mov_b32 v%d, v%d" % (vT + 3, W + 16))
A("ds_write_b64 v%d, %s" % (vMLW, vr(vT + 2, 2)))
A("s_mov_b64 exec, -1")
NOP(3)
A("ds_write_b128 v%d, %s" % (vRBW, vr(OA, 4)))
A("ds_write_b128 v%d, %s offset:64" % (vRBW, vr(OA + 4, 4)))
A("s_waitcnt lgkmcnt(0)")
A("s_cbranch_scc1 Lrb_bar")
lds_arrive(12, vT + 4)
lds_spin(12, 4, vT + 4)
A("s_branch Lrb_go")
LB("Lrb_bar")
A("s_barrier")
LB("Lrb_go")
A("ds_read_b128 %s, v%d" % (vr(W, 4), vMLR))
A("ds_read_b128 %s, v%d offset:16" % (vr(W + 4, 4), vMLR))
for w in range(4):
    A("ds_read_b64 %s, v%d offset:%d" % (vr(W + 8 + 2 * w, 2), vRBR, RBS * w))
A("v_mov_b32 v%d, 0" % (vT + 4))
A("v_xor_b32 v%d, 16, v%d" % (vT + 6, vLSE))
fastcmp()
A("s_waitcnt lgkmcnt(4)")
A("v_max3_f32 v%d, v%d, v%d, v%d" % (vT, W, W + 2, W + 4))
A("v_max_f32 v%d, v%d, v%d" % (vT, vT, W + 6))
for w in range(4): A("v_sub_f32 v%d, v%d, v%d" % (W + 2 * w, W + 2 * w, vT))
for w in range(4): A("v_exp_f32 v%d, v%d" % (W + 2 * w, W + 2 * w))
A("v_mul_f32 v%d, v%d, v%d" % (vT + 1, W, W + 1))
for w in range(1, 4): A("v_fmac_f32 v%d, v%d, v%d" % (vT + 1, W + 2 * w, W + 2 * w + 1))
A("s_waitcnt lgkmcnt(0)")
A("v_pk_mul_f32 %s, %s, %s op_sel_hi:[1,0]" % (vr(W + 8, 2), vr(W + 8, 2), vr(W, 2)))
A("v_rcp_f32 v%d, v%d" % (vT + 2, vT + 1))
for w in range(1, 4):
    A("v_pk_fma_f32 %s, %s, %s, %s op_sel_hi:[1,0,1]" % (vr(W + 8, 2), vr(W + 8 + 2 * w, 2), vr(W + 2 * w, 2), vr(W + 8, 2)))
A("v_log_f32 v%d, v%d" % (vT + 5, vT + 1))
A("v_pk_mul_f32 %s, %s, %s op_sel_hi:[1,0]" % (vr(W + 8, 2), vr(W + 8, 2), vr(vT + 2, 2)))
A("v_add_f32 v%d, v%d, v%d" % (vT + 3, vT + 5, vT))
A("v_cvt_pk_bf16_f32 v%d, v%d, v%d" % (W + 8, W + 8, W + 9))
store_local("buffer_store_dword", "v%d" % (W + 8), vOST, sOS)
A("s_mov_b64 exec, 1")
store_local("buffer_store_dword", "v%d" % (vT + 3), vT + 4, sLS)
A("s_mov_b64 exec, -1")
STAMP(5)

C("wo phase: wave = batch, rows = key splits")
OF = W; LS = W + 16; DA = W + 24
def io():
    A("buffer_load_dwordx4 %s, v%d, %s, s%d offen sc1" % (vr(LS, 4), vLSE, sr(sWS, 4), sLL))
    A("buffer_load_dwordx4 %s, v%d, %s, s%d offen sc1" % (vr(LS + 4, 4), vT + 6, sr(sWS, 4), sLL))
    for t in range(4):
        A("buffer_load_dwordx4 %s, v%d, %s, s%d offen offset:%d sc1" % (vr(OF + 4 * t, 4), vOLD, sr(sWS, 4), sOL, 512 * t))
A("s_cmp_lg_u32 s%d, 0" % sLAY)
A("s_cbranch_scc1 Lo_go")
C("first layer: wo tile landed -> fragments; every workgroup has announced its clears")
A("s_waitcnt vmcnt(2)")
STAMP(13)
A("s_mov_b32 s%d, %s" % (sT4, hx(SPIN)))
LB("Lap")
A("v_and_b32 v24, -8, v%d" % (FLG + 1))
A("v_cmp_ne_u32 vcc, s%d, v%d" % (sTG1, FLG))
A("v_cmp_ne_u32 %s, s%d, v24" % (sr(sH, 2), sTG2))
A("s_or_b64 vcc, vcc, %s" % sr(sH, 2))
A("s_cbranch_vccnz Lar")
LB("Lad")
lds_arrive(16, 24)
for i in range(2):
    A("v_lshlrev_b32 v%d, 16, v%d" % (W + 40 + 2 * i, RES + 2 + i))
    A("v_and_b32 v%d, 0xffff0000, v%d" % (W + 41 + 2 * i, RES + 2 + i))
for i in range(4): A("v_mov_b32 v%d, v%d" % (RES + i, W + 40 + i))
for ct in range(4): A("v_xor_b32 v%d, %d, v%d" % (W + 40 + ct, 32 * ct, vWT))
for ct in range(4): A("v_add_u32 v%d, %d, v%d" % (W + 40 + ct, L_WO, W + 40 + ct))
lds_spin(16, 4, 24)
STAMP(14)
for t in range(4):
    for ct in range(4):
        for hf in range(2):
            A("ds_read_b64_tr_b16 %s, v%d offset:%d" % (vr(WOF + 16 * ct + 4 * t + 2 * hf, 2), W + 40 + ct, 4096 * t + 512 * hf))
LB("Lo_go")
def pre_o(): A("s_waitcnt lgkmcnt(0)")
ool.append(["Lar:", "    s_lshl_b32 s%d, s%d, 10" % (sT5, sW), "    s_add_u32 s%d, s%d, %s" % (sT5, sT5, hx(FB)),
            "    buffer_load_dwordx4 %s, v%d, %s, s%d offen sc1" % (vr(FLG, 4), vL16, sr(sWS, 4), sT5),
            "    s_waitcnt vmcnt(0)", "    s_sub_u32 s%d, s%d, 1" % (sT4, sT4), "    s_cbranch_scc0 Lap", "    s_branch Lad"])
wo1 = [mf(DA + 4 * ct, OF + 4 * t, WOF + 16 * ct + 4 * t, None if t == 0 else DA + 4 * ct) for t in range(2) for ct in range(4)]
poll(io, list(range(LS, LS + 8)) + list(range(OF, OF + 16)), vT, pre_o, spec=wo1)
STAMP(7)
va = ["v_max3_f32 v%d, v%d, v%d, v%d" % (vT, LS, LS + 1, LS + 2), "v_max3_f32 v%d, v%d, v%d, v%d" % (vT + 1, LS + 3, LS + 4, LS + 5),
      "v_max3_f32 v%d, v%d, v%d, v%d" % (vT, vT, LS + 6, LS + 7), "v_max_f32 v%d, v%d, v%d" % (vT, vT, vT + 1)]
va += ["v_sub_f32 v%d, v%d, v%d" % (LS + i, LS + i, vT) for i in range(4)]
va += ["v_exp_f32 v%d, v%d" % (LS + i, LS + i) for i in range(4)]
va += ["v_add_f32 v%d, v%d, v%d" % (vT, LS, LS + 1), "v_add_f32 v%d, v%d, v%d" % (vT + 1, LS + 2, LS + 3),
       "v_add_f32 v%d, v%d, v%d" % (vT, vT, vT + 1), "v_mov_b32 v%d, v%d" % (vT + 1, vT)]
for t in range(2, 4):
    for ct in range(4):
        mfma(DA + 4 * ct, OF + 4 * t, WOF + 16 * ct + 4 * t, DA + 4 * ct)
        for k in range(2): A(va.pop(0))
A("s_mov_b32 s%d, 0x55555555" % sT4)
A("s_mov_b32 s%d, 0x55555555" % sT5)
A("v_permlane16_swap_b32 v%d, v%d" % (vT, vT + 1))
A("v_mul_f32 v%d, v%d, v%d" % (DA, DA, LS))
A("v_add_f32 v%d, v%d, v%d" % (vT, vT, vT + 1))
A("v_mul_f32 v%d, v%d, v%d" % (DA + 4, DA + 4, LS))
A("v_rcp_f32 v%d, v%d" % (vT, vT))
A("v_mul_f32 v%d, v%d, v%d" % (DA + 8, DA + 8, LS))
for i in range(1, 4):
    for ct in range(3):
        A("v_fmac_f32 v%d, v%d, v%d" % (DA + 4 * ct, DA + 4 * ct + i, LS + i))
    if i == 1: A("v_mul_f32 v%d, v%d, v%d" % (DA + 12, DA + 12, LS))
for i in range(1, 4): A("v_fmac_f32 v%d, v%d, v%d" % (DA + 12, DA + 12 + i, LS + i))
A("v_permlane16_swap_b32 v%d, v%d" % (DA, DA + 4))
A("s_nop 0")
A("v_permlane16_swap_b32 v%d, v%d" % (DA + 8, DA + 12))
A("v_add_f32 v%d, v%d, v%d" % (DA, DA, DA + 4))
A("v_add_f32 v%d, v%d, v%d" % (DA + 8, DA + 8, DA + 12))
A("s_nop 1")
A("v_permlane32_swap_b32 v%d, v%d" % (DA, DA + 8))
A("v_mul_f32 v%d, v%d, v%d" % (DA, DA, vT))
A("s_cmp_lg_u32 s%d, 0" % sLAY)
A("s_nop 0")
A("v_mov_b32_dpp v%d, v%d quad_perm:[1,0,3,2] row_mask:0xf bank_mask:0xf" % (DA + 1, DA))
A("s_mov_b64 exec, %s" % sr(sT4, 2))
A("v_cvt_pk_bf16_f32 v%d, v%d, v%d" % (DA, DA, DA + 1))
A("buffer_store_dword v%d, v%d, %s, s%d offen sc1" % (DA, vPST, sr(sWS, 4), sPS))
A("s_mov_b64 exec, -1")
STAMP(8)
A("s_cbranch_scc1 Lfinal")

A("s_cmp_lg_u32 s%d, 0" % sW)
A("s_cbranch_scc1 Ltab")
C("stage 1 (wave 0): reduce 32 head partials of 64 outputs, add residual, publish x1 slice")
soff(sT1, [(sA, 15), (sC, 12)], PB)
soff(sT2, [(sA, 10), (sC, 7), (sJ, 17)], X1_OFF)
A("s_mov_b32 s%d, 0x00ff00ff" % sT4)
A("s_mov_b32 s%d, 0" % sT5)
A("s_waitcnt vmcnt(0)")
def ip():
    for i in range(4):
        A("buffer_load_dwordx4 %s, v%d, %s, s%d offen offset:%d sc1" % (vr(W + 4 * i, 4), vL16, sr(sWS, 4), sT1, 1024 * i))
poll(ip, range(W, W + 16), vT, spec=[mf(W + 16, SEL, W + 4 * i, None if i == 0 else W + 16) for i in range(4)])
STAMP(9)
fastcmp()
NOP(6)
for i in range(4):
    A("v_add_f32_dpp v%d, v%d, v%d row_ror:8 row_mask:0xf bank_mask:0xf" % (W + 16 + i, W + 16 + i, W + 16 + i))
A("s_mov_b64 exec, %s" % sr(sT4, 2))
A("v_pk_add_f32 %s, %s, %s" % (vr(W + 16, 2), vr(W + 16, 2), vr(RES, 2)))
A("v_pk_add_f32 %s, %s, %s" % (vr(W + 18, 2), vr(W + 18, 2), vr(RES + 2, 2)))
A("v_cvt_pk_bf16_f32 v%d, v%d, v%d" % (W + 16, W + 16, W + 17))
A("v_cvt_pk_bf16_f32 v%d, v%d, v%d" % (W + 17, W + 18, W + 19))
store_local("buffer_store_dwordx2", vr(W + 16, 2), vX1S, sT2)
A("s_mov_b64 exec, -1")
LB("Ltabdone")
soff(sT3, [(sW, 10), (sJ, 17)], X1_OFF)
def ix():
    A("buffer_load_dwordx4 %s, v%d, %s, s%d offen sc1" % (vr(XR, 4), vL16, sr(sWS, 4), sT3))
wqf_reads()
def pre_x():
    A("ds_read_b32 v%d, v%d offset:20" % (vT + 2, vFL))
poll(ix, range(XR, XR + 4), vT, pre_x, spec=["s_waitcnt lgkmcnt(0)", "v_readfirstlane_b32 s%d, v%d" % (sT1, vT + 2)])
A("s_cmp_lt_u32 s%d, 3" % sT1)
A("s_cbranch_scc1 Ltw")
LB("Ltwd")
STAMP(10)

LB("Lmix")
C("x <- x + g(LN(LN(x))) ; g is tabulated for every bf16 input in range, evaluated directly otherwise")
X = W; HB = W + 8; RT = W + 12; AD = W + 16; Y = W + 24
row_stats(XR, vT, X)
A("v_add_f32 v%d, %s, v%d" % (vT + 2, EPS, vT + 1))
A("v_rsq_f32 v%d, v%d" % (vT + 2, vT + 2))
A("v_mov_b32 v%d, %s" % (vT + 4, hx(LO2 | (LO2 << 16))))
A("v_mul_f32 v%d, v%d, v%d" % (vT + 1, vT + 1, vT + 2))
A("v_fmaak_f32 v%d, v%d, v%d, %s" % (vT + 1, vT + 1, vT + 2, EPS))
A("v_rsq_f32 v%d, v%d" % (vT + 1, vT + 1))
A("s_nop 0")
A("v_mul_f32 v%d, v%d, v%d" % (vT + 2, vT + 2, vT + 1))
A("v_mul_f32 v%d, v%d, v%d" % (vT + 3, vT, vT + 2))
for i in range(4):
    A("v_pk_fma_f32 %s, %s, %s, %s op_sel:[0,0,1] op_sel_hi:[1,0,1] neg_lo:[0,0,1] neg_hi:[0,0,1]" % (vr(AD + 2 * i, 2), vr(X + 2 * i, 2), vr(vT + 2, 2), vr(vT + 2, 2)))
for i in range(4):
    A("v_cvt_pk_bf16_f32 v%d, v%d, v%d" % (HB + i, AD + 2 * i, AD + 2 * i + 1))
for i in range(4):
    A("v_pk_lshlrev_b16 v%d, 1, v%d op_sel_hi:[0,1]" % (RT + i, HB + i))
    A("v_pk_lshrrev_b16 v%d, 15, v%d op_sel_hi:[0,1]" % (AD + i, HB + i))
for i in range(4):
    A("v_or_b32 v%d, v%d, v%d" % (RT + i, RT + i, AD + i))
for i in range(4):
    A("v_pk_sub_u16 v%d, v%d, v%d" % (RT + i, RT + i, vT + 4))
for i in range(4):
    A("v_lshlrev_b32_sdwa v%d, 2, v%d dst_sel:DWORD dst_unused:UNUSED_PAD src0_sel:DWORD src1_sel:WORD_0" % (AD + 2 * i, RT + i))
    A("v_lshlrev_b32_sdwa v%d, 2, v%d dst_sel:DWORD dst_unused:UNUSED_PAD src0_sel:DWORD src1_sel:WORD_1" % (AD + 2 * i + 1, RT + i))
    A("ds_read_b32 v%d, v%d offset:%d" % (Y + 2 * i, AD + 2 * i, L_TAB))
    A("ds_read_b32 v%d, v%d offset:%d" % (Y + 2 * i + 1, AD + 2 * i + 1, L_TAB))
A("v_max3_u32 v%d, v%d, v%d, v%d" % (vT, AD, AD + 1, AD + 2))
A("v_max3_u32 v%d, v%d, v%d, v%d" % (vT + 1, AD + 3, AD + 4, AD + 5))
A("v_max3_u32 v%d, v%d, v%d, v%d" % (vT, vT, AD + 6, AD + 7))
A("v_max_u32 v%d, v%d, v%d" % (vT, vT, vT + 1))
A("v_cmp_le_u32 vcc, %d, v%d" % (NENT * 4, vT))
A("s_cbranch_vccnz Lslow")
LB("Lslowdone")
A("s_cmp_lg_u32 s%d, 0" % sLAY)
for i in range(4):
    A("s_waitcnt lgkmcnt(%d)" % (6 - 2 * i))
    A("v_pk_add_f32 %s, %s, %s" % (vr(X + 2 * i, 2), vr(X + 2 * i, 2), vr(Y + 2 * i, 2)))
for i in range(4):
    A("v_cvt_pk_bf16_f32 v%d, v%d, v%d" % (XR + i, X + 2 * i, X + 2 * i + 1))
STAMP(11)
A("s_cbranch_scc1 Lout")
A("ds_write_b128 v%d, %s offset:%d" % (vXNW, vr(XR, 4), L_X2 - L_XN))
A("s_mov_b32 s%d, 1" % sLAY)
for s, d in [(sOL, O_OFF[1] - O_OFF[0]), (sOS, O_OFF[1] - O_OFF[0]), (sLL, LSE_OFF[1] - LSE_OFF[0]), (sLS, LSE_OFF[1] - LSE_OFF[0]), (sPS, P_L)]:
    A("s_add_u32 s%d, s%d, %d" % (s, s, d))
if DIAG: A("v_mov_b32 v28, v30")
A("s_branch Llnq")

LB("Lfinal")
A("s_cmp_ge_u32 s2, 4")
A("s_cbranch_scc1 Lfin_exit")
C("workgroup b: reduce the 32 head partials of row b, add x2, mixer, store")
soff(sT1, [(2, 15), (sW, 13)], PB + P_L)
A("s_add_u32 s%d, s%d, 4096" % (sT2, sT1))
A("s_mul_i32 s%d, s2, %d" % (sT0, XS))
A("s_lshl_b32 s%d, s%d, 8" % (sT3, sW))
A("s_add_u32 s%d, s%d, s%d" % (sT0, sT0, sT3))
A("s_add_u32 s%d, s%d, %d" % (sT0, sT0, L_X2))
A("v_add_u32 v%d, s%d, v%d" % (vT + 4, sT0, vX1S))
A("s_add_u32 s%d, s%d, %d" % (sT3, sT3, L_XN))
A("v_add_u32 v%d, s%d, v%d" % (vT + 5, sT3, vX1S))
A("ds_read_b64 %s, v%d" % (vr(PM, 2), vT + 4))
A("ds_read_b64 %s, v%d offset:128" % (vr(PM + 2, 2), vT + 4))
A("s_mov_b32 s%d, 0x00ff00ff" % sT4)
A("s_mov_b32 s%d, 0" % sT5)
A("s_waitcnt vmcnt(0) lgkmcnt(0)")
for i in range(4):
    A("v_lshlrev_b32 v%d, 16, v%d" % (PM + 4 + 2 * i, PM + i))
    A("v_and_b32 v%d, 0xffff0000, v%d" % (PM + 5 + 2 * i, PM + i))
def ifin():
    for i in range(8):
        A("buffer_load_dwordx4 %s, v%d, %s, s%d offen offset:%d sc1" % (vr(W + 4 * i, 4), vL16, sr(sWS, 4), sT1 if i < 4 else sT2, 1024 * (i & 3)))
fs = []
for i in range(4):
    fs.append(mf(W + 32, SEL, W + 4 * i, None if i == 0 else W + 32))
    fs.append(mf(W + 36, SEL, W + 16 + 4 * i, None if i == 0 else W + 36))
poll(ifin, range(W, W + 32), vT, spec=fs)
STAMP(9)
NOP(7)
for i in range(8):
    A("v_add_f32_dpp v%d, v%d, v%d row_ror:8 row_mask:0xf bank_mask:0xf" % (W + 32 + i, W + 32 + i, W + 32 + i))
A("s_mov_b64 exec, %s" % sr(sT4, 2))
for i in range(4):
    A("v_pk_add_f32 %s, %s, %s" % (vr(W + 32 + 2 * i, 2), vr(W + 32 + 2 * i, 2), vr(PM + 4 + 2 * i, 2)))
for i in range(4):
    A("v_cvt_pk_bf16_f32 v%d, v%d, v%d" % (W + 32 + i, W + 32 + 2 * i, W + 33 + 2 * i))
A("ds_write_b64 v%d, %s" % (vT + 5, vr(W + 32, 2)))
A("ds_write_b64 v%d, %s offset:128" % (vT + 5, vr(W + 34, 2)))
A("s_mov_b64 exec, -1")
A("s_cmp_lg_u32 s%d, 0" % sW)
A("s_waitcnt lgkmcnt(0)")
A("s_barrier")
A("s_cbranch_scc1 Lfin_exit")
A("ds_read_b128 %s, v%d" % (vr(XR, 4), vXNW))
A("s_waitcnt lgkmcnt(0)")
STAMP(10)
A("s_branch Lmix")
LB("Lout")
A("s_lshl_b32 s%d, s2, 10" % sT0)
A("buffer_store_dwordx4 %s, v%d, %s, s%d offen" % (vr(XR, 4), vL16, sr(sOUT, 4), sT0))
A("s_cmp_lg_u32 s2, 0")
A("s_cbranch_scc1 Lfin_exit")
A("v_mov_b32 v16, s%d" % sTG1)
A("v_mov_b32 v17, %s" % hx(EPO))
A("s_mov_b64 exec, 1")
A("buffer_store_dword v16, v17, %s, 0 offen sc1" % sr(sWS, 4))
A("s_mov_b64 exec, -1")
if DBL:
    A("s_waitcnt vmcnt(0)")
    A("s_memrealtime s[10:11]")
    A("s_waitcnt lgkmcnt(0)")
    A("s_sub_u32 s12, s10, s98")
    if "pad" in OPT:
        A("s_mov_b32 s10, s98"); A("s_mov_b32 s12, %d" % (100 * int(OPT["pad"])))
    LB("Ldbl")
    A("s_memrealtime s[14:15]")
    A("s_waitcnt lgkmcnt(0)")
    A("s_sub_u32 s13, s14, s10")
    A("s_cmp_lt_u32 s13, s12")
    A("s_cbranch_scc1 Ldbl")
LB("Lfin_exit")
if TOT:
    A("s_waitcnt vmcnt(0)")
    A("s_memrealtime s[10:11]")
    A("s_waitcnt lgkmcnt(0)")
    A("v_mov_b32 v16, s98")
    A("v_mov_b32 v17, s10")
    soff(sT2, [(2, 5), (sW, 3)], STB)
    A("v_mov_b32 v18, 0")
    A("s_mov_b64 exec, 1")
    A("buffer_store_dwordx2 v[16:17], v18, %s, s%d offen" % (sr(sWS, 4), sT2))
if DIAG:
    A("s_waitcnt vmcnt(0)")
    STAMP(12)
    if DIAG == 2:
        A("s_or_b32 s%d, s2, s%d" % (sT0, sW))
        A("s_cmp_lg_u32 s%d, 0" % sT0)
        A("s_cbranch_scc1 Lend")
        A("v_readlane_b32 s%d, v28, 0" % sT2)
        for k, (r, i) in enumerate([(31, 10), (31, 12), (28, 1), (28, 2), (28, 6), (28, 5), (28, 7), (28, 8), (28, 9), (28, 10), (28, 11), (30, 3), (30, 5), (30, 8), (30, 9), (30, 12)]):
            A("v_readlane_b32 s%d, v%d, %d" % (sT3, r, i))
            A("s_sub_u32 s%d, s%d, s%d" % (sT3, sT3, sT2))
            A("s_nop 0")
            A("v_writelane_b32 v17, s%d, %d" % (sT3, k))
        A("v_lshlrev_b32 v16, 2, v%d" % vLANE)
        A("s_mov_b64 exec, 0xffff")
        A("global_store_dword v16, v17, s[96:97]")
        A("s_endpgm")
    soff(sT1, [(2, 10), (sW, 7)], STB)
    A("v_lshlrev_b32 v16, 2, v%d" % vLANE)
    A("s_mov_b64 exec, 0xffff")
    A("buffer_store_dword v28, v16, %s, s%d offen" % (sr(sWS, 4), sT1))
    A("buffer_store_dword v30, v16, %s, s%d offen offset:64" % (sr(sWS, 4), sT1))
    A("s_add_u32 s%d, s%d, 0x40000" % (sT1, sT1))
    A("buffer_store_dword v31, v16, %s, s%d offen" % (sr(sWS, 4), sT1))
LB("Lend")
A("s_endpgm")

LB("Ltab")
C("waves 1..3: gather the g(h) table into LDS")
NTL = -(-NENT * 4 // 3 // 1024)
A("s_sub_u32 s%d, s%d, 1" % (sT1, sW))
A("s_mul_i32 s%d, s%d, %d" % (sT1, sT1, NTL * 1024))
A("s_min_u32 s%d, s%d, %d" % (sT1, sT1, NENT * 4 - NTL * 1024))
A("v_add_u32 v%d, s%d, v%d" % (vT + 4, sT1, vL16))
A("s_add_u32 s%d, s%d, %s" % (sT1, sT1, hx(TB)))
A("s_add_u32 s%d, s%d, 4096" % (sT2, sT1))
def it():
    for i in range(NTL):
        A("buffer_load_dwordx4 %s, v%d, %s, s%d offen offset:%d sc1" % (vr(W + 4 * i, 4), vL16, sr(sWS, 4), sT1 if i < 4 else sT2, 1024 * (i & 3)))
poll(it, range(W, W + 4 * NTL), vT, back="s_sleep 16")
for i in range(NTL):
    A("ds_write_b128 v%d, %s offset:%d" % (vT + 4, vr(W + 4 * i, 4), L_TAB + 1024 * i))
A("s_waitcnt lgkmcnt(0)")
lds_arrive(20, vT + 4)
STAMP(9)
A("s_branch Ltabdone")
LB("Ltw")
lds_spin(20, 3, vT + 2)
A("s_branch Ltwd")

LB("Lslow")
C("rare: some h lies outside the table -> evaluate g(h) directly for those lanes")
RW1 = [W + 32 + i for i in range(14)]
RB1 = [PM + i for i in range(14)]
RW2 = [16 + i for i in range(10)] + [W + 46, W + 47, PM + 14, PM + 15]
A("v_lshlrev_b32 v26, 3, v%d" % vLANE)
A("s_load_dword s%d, %s, 0" % (sB2, sr(sB2P, 2)))
for (d4, d2, s) in [([W + 32, W + 36, W + 40], W + 44, sW1), ([PM, PM + 4, PM + 8], PM + 12, sB1)]:
    for k in range(3):
        A("buffer_load_dwordx4 %s, v%d, %s, 0 offen offset:%d" % (vr(d4[k], 4), vL16, sr(s, 4), 1024 * k))
    A("buffer_load_dwordx2 %s, v26, %s, 0 offen offset:3072" % (vr(d2, 2), sr(s, 4)))
A("buffer_load_dwordx4 v[16:19], v%d, %s, 0 offen" % (vL16, sr(sW2, 4)))
A("buffer_load_dwordx4 v[20:23], v%d, %s, 0 offen offset:1024" % (vL16, sr(sW2, 4)))
A("buffer_load_dwordx2 v[24:25], v%d, %s, 0 offen offset:2048" % (vL16, sr(sW2, 4)))
A("buffer_load_dwordx2 %s, v%d, %s, 0 offen offset:2056" % (vr(W + 46, 2), vL16, sr(sW2, 4)))
A("buffer_load_dwordx2 %s, v26, %s, 0 offen offset:3072" % (vr(PM + 14, 2), sr(sW2, 4)))
A("s_waitcnt vmcnt(0) lgkmcnt(0)")
A("s_lshl_b32 s%d, s%d, 16" % (sB2, sB2))
for e in range(8):
    A("v_cmp_le_u32 vcc, %d, v%d" % (NENT * 4, AD + e))
    A("s_mov_b64 %s, vcc" % sr(sH2, 2))
    LB("Lse%d" % e)
    A("s_cmp_eq_u64 %s, 0" % sr(sH2, 2))
    A("s_cbranch_scc1 Lsf%d" % e)
    A("s_ff1_i32_b64 s%d, %s" % (sT0, sr(sH2, 2)))
    A("s_bitset0_b64 %s, s%d" % (sr(sH2, 2), sT0))
    A("s_mov_b32 m0, s%d" % sT0)
    A("v_readlane_b32 s%d, v%d, s%d" % (sH, HB + (e >> 1), sT0))
    if e & 1: A("s_and_b32 s%d, s%d, 0xffff0000" % (sH, sH))
    else: A("s_lshl_b32 s%d, s%d, 16" % (sH, sH))
    A("s_call_b64 %s, Lgev" % sr(sRET, 2))
    A("v_writelane_b32 v%d, s%d, m0" % (Y + e, sY))
    A("s_branch Lse%d" % e)
    LB("Lsf%d" % e)
for i in range(16): A("v_mov_b32 v%d, 0" % (PM + i))
A("s_branch Lslowdone")
LB("Lgev")
a, u, t1, z = RES, RES + 1, RES + 2, RT
A("v_mov_b32 v%d, 0" % a)
A("v_mov_b32 v%d, %s" % (RT + 1, hx(f2u(K0))))
A("v_mov_b32 v%d, %s" % (RT + 2, hx(f2u(K1))))
for p in range(14):
    for hf in range(2):
        def un(d, s):
            if hf == 0: A("v_lshlrev_b32 v%d, 16, v%d" % (d, s))
            else: A("v_and_b32 v%d, 0xffff0000, v%d" % (d, s))
        un(u, RW1[p]); un(t1, RB1[p]); un(z, RW2[p])
        A("v_fma_f32 v%d, v%d, s%d, v%d" % (u, u, sH, t1))
        A("v_mul_f32 v%d, v%d, v%d" % (t1, u, u))
        A("v_fma_f32 v%d, v%d, v%d, v%d" % (t1, t1, RT + 2, RT + 1))
        A("v_mul_f32 v%d, v%d, v%d" % (t1, t1, u))
        A("v_exp_f32 v%d, v%d" % (t1, t1))
        A("v_mul_f32 v%d, v%d, v%d" % (z, z, u))
        A("v_add_f32 v%d, 1.0, v%d" % (t1, t1))
        A("v_rcp_f32 v%d, v%d" % (t1, t1))
        A("s_nop 0")
        A("v_fmac_f32 v%d, v%d, v%d" % (a, z, t1))
A("v_mov_b32 v%d, v%d" % (u, a))
A("s_nop 1")
wave_sum2(a, u, sY, sT1)
A("s_nop 1")
A("v_mov_b32 v%d, s%d" % (a, sY))
A("v_cvt_pk_bf16_f32 v%d, v%d, v%d" % (a, a, a))
A("v_and_b32 v%d, 0xffff0000, v%d" % (a, a))
A("v_add_f32 v%d, s%d, v%d" % (a, sB2, a))
A("v_cvt_pk_bf16_f32 v%d, v%d, v%d" % (a, a, a))
A("v_and_b32 v%d, 0xffff0000, v%d" % (a, a))
A("s_nop 0")
A("v_readfirstlane_b32 s%d, v%d" % (sY, a))
A("s_nop 3")
A("s_setpc_b64 %s" % sr(sRET, 2))

for b in ool: L += b
A("s_endpgm")
L.append(".p2align 8")
L.append(".fill (16640 - (. - %s_kernel)) / 4, 4, 0xBF800000" % NAME)
L.append('''.section .rodata,"a"
.p2align 6
.amdhsa_kernel %s_kernel
  .amdhsa_next_free_vgpr 256
  .amdhsa_next_free_sgpr 102
  .amdhsa_accum_offset 256
  .amdhsa_group_segment_fixed_size 0
  .amdhsa_kernarg_size 104
  .amdhsa_user_sgpr_count 2
  .amdhsa_user_sgpr_kernarg_segment_ptr 1
  .amdhsa_system_sgpr_workgroup_id_x 1
.end_amdhsa_kernel''' % NAME)
open(OUTF, "w").write("\n".join(x for x in L if x is not None) + "\n")
print("wrote", OUTF, "lines", len(L), "LDS", LDS_SZ)
```

```python
import sys, struct, math

NAME = "interleave_layers__sliding_block_cached__mixer_token_mlp__decode"
OUTF = sys.argv[1] if len(sys.argv) > 1 else "cdna_kernels/%s.s" % NAME
DIAG = int(sys.argv[2]) if len(sys.argv) > 2 else 0
DBL = 0
if DIAG == 3: DIAG = 0; DBL = 1
TOT = 0
if DIAG == 4: DIAG = 0; TOT = 1
OPT = dict(a.split("=") for a in sys.argv[3:])
DEPTH = int(OPT.get("depth", 7))
D0 = int(OPT.get("d0", 2))
D1 = int(OPT.get("d1", 8))
DC = int(OPT.get("dc", 4))
QV = int(OPT.get("qv", 2))
PRET = int(OPT.get("pret", 1))
NOCT = int(OPT.get("noct", 16))
QPOS = int(OPT.get("qpos", 1))
QPOS2 = int(OPT.get("qpos2", 7))

def f2u(x): return struct.unpack("<I", struct.pack("<f", x))[0]
def hx(x): return "0x%08x" % (x & 0xffffffff)

L = []
def A(s): L.append("    " + s)
def LB(s): L.append(s + ":")
def C(s): L.append("    ; " + s)
def vr(a, n): return "v[%d:%d]" % (a, a + n - 1)
def sr(a, n): return "s[%d:%d]" % (a, a + n - 1)
def NOP(n):
    while n > 0:
        k = min(n, 16); A("s_nop %d" % (k - 1)); n -= k

ELO = 132 - NOCT if NOCT == 24 else 130 - NOCT
LO2 = (ELO << 7) * 2
NENT = NOCT * 256
EPW = NENT // 256 // 4 // 2
GRS = 0x20000
O_OFF = [0x0000, 0xC400]; LSE_OFF = [0x8000, 0x14400]; Q1_OFF = 0x8400; X1_OFF = 0x14600
CLRA_PER = 1040
CLRB_OFF = 0x8400; CLRB_PER = 1680
Q0_OFF = 0x18000
EPO = 0x17f00
PB = 0x100000; P_L = 0x20000
TB = 0x140000; FB = 0x148000
QB_DELTA = 0x180000
STB = 0x300000
WS_SZ = 0x400000
L_TAB = 0
L_WQ = 24576; L_K = L_WQ + 16384; L_V = L_K + 32768; L_WO = L_V + 32768
L_XN = L_WO + 16384; XS = 1056
L_X2 = L_XN + 4 * XS
L_FLG = L_X2 + 4 * XS
L_RB = L_K; RBS = 2048 + 64; L_ML = L_K + 4 * RBS
L_QF = L_X2
LDS_SZ = int(OPT.get("lds", L_FLG + 64))
SPIN = 0x40000
K0 = -2.0 * math.sqrt(2.0 / math.pi) * math.log2(math.e)
K1 = K0 * 0.044715
EPS = hx(f2u(1e-5))

sTG1, sTG2 = 0, 1
sW, sJ, sA, sC, sGR, sLAY, sFAST = 3, 4, 5, 6, 7, 8, 9
sT0, sT1, sT2, sT3, sT4, sT5 = 10, 11, 12, 13, 14, 15
sCNT = 16
sQL, sQS, sOL, sOS, sLL, sLS, sPS = 17, 18, 19, 20, 21, 22, 23
sSC, sIT = 24, 25
sSUM, sSQ = 26, 27
sH, sH2, sRET, sMSK = 28, 30, 32, 34
sB2, sY, sXCC, sE = 36, 37, 38, 39
sB2P = 40
sK, sV, sWQ, sWO, sWS, sX, sOUT, sW1, sB1, sW2 = 44, 48, 52, 56, 60, 64, 68, 72, 76, 80
sKO, sKL, sVO, sVL = 84, 85, 86, 87
sPM = 88
sHC, sHT = 84, 85

def STAMP(i):
    if DIAG:
        A("s_memrealtime s[42:43]"); A("s_waitcnt lgkmcnt(0)")
        A("v_writelane_b32 v30, s42, %d" % i)

vLANE = 1
vL16, vQST, vOST, vOLD, vPST, vX1S, vXNW, vXNR, vRBW, vRBR, vMLW, vMLR, vLSE, vZ = range(2, 16)
vT = 16
vWT, vFL = 28, 29
KF, VF, WQF, WOF, SEL, ONES = 32, 64, 96, 112, 176, 180
W = 184
PM = 232
XR = 248
RES = 252

def srd(s, nbytes):
    A("s_mov_b32 s%d, %s" % (s + 2, hx(nbytes))); A("s_mov_b32 s%d, 0x00020000" % (s + 3))

def soff(dst, terms, const):
    first = True
    for (src, sh) in terms:
        if first: A("s_lshl_b32 s%d, s%d, %d" % (dst, src, sh)); first = False
        else:
            A("s_lshl_b32 s%d, s%d, %d" % (sT0, src, sh)); A("s_add_u32 s%d, s%d, s%d" % (dst, dst, sT0))
    if const: A("s_add_u32 s%d, s%d, %s" % (dst, dst, hx(const)))

def wave_sum2(a, b, sa, sb):
    for ctl in ["row_ror:8", "row_ror:4", "row_ror:2", "row_ror:1"]:
        A("v_add_f32_dpp v%d, v%d, v%d %s row_mask:0xf bank_mask:0xf" % (a, a, a, ctl))
        A("v_add_f32_dpp v%d, v%d, v%d %s row_mask:0xf bank_mask:0xf" % (b, b, b, ctl))
        A("s_nop 0")
    for ctl in ["row_bcast:15 row_mask:0xa", "row_bcast:31 row_mask:0xc"]:
        A("v_add_f32_dpp v%d, v%d, v%d %s bank_mask:0xf" % (a, a, a, ctl))
        A("v_add_f32_dpp v%d, v%d, v%d %s bank_mask:0xf" % (b, b, b, ctl))
        A("s_nop 0")
    A("v_readlane_b32 s%d, v%d, 63" % (sa, a))
    A("v_readlane_b32 s%d, v%d, 63" % (sb, b))

def row_stats(x, t, unp):
    A("v_dot2_f32_bf16 v%d, v%d, v%d, 0" % (t, x, ONES))
    A("v_dot2_f32_bf16 v%d, v%d, v%d, 0" % (t + 1, x, x))
    for i in range(1, 4):
        A("v_dot2_f32_bf16 v%d, v%d, v%d, v%d" % (t, x + i, ONES, t))
        A("v_dot2_f32_bf16 v%d, v%d, v%d, v%d" % (t + 1, x + i, x + i, t + 1))
    un = []
    for i in range(4):
        un.append("v_lshlrev_b32 v%d, 16, v%d" % (unp + 2 * i, x + i))
        un.append("v_and_b32 v%d, 0xffff0000, v%d" % (unp + 2 * i + 1, x + i))
    for k in range(3): A(un.pop(0))
    a, b = t, t + 1
    for ctl in ["row_ror:8 row_mask:0xf", "row_ror:4 row_mask:0xf", "row_ror:2 row_mask:0xf", "row_ror:1 row_mask:0xf", "row_bcast:15 row_mask:0xa", "row_bcast:31 row_mask:0xc"]:
        A("v_add_f32_dpp v%d, v%d, v%d %s bank_mask:0xf" % (a, a, a, ctl))
        A("v_add_f32_dpp v%d, v%d, v%d %s bank_mask:0xf" % (b, b, b, ctl))
        A(un.pop(0) if un else "s_nop 0")
    A("v_readlane_b32 s%d, v%d, 63" % (sSUM, a))
    A("v_readlane_b32 s%d, v%d, 63" % (sSQ, b))
    A("s_nop 0")
    A("v_mul_f32 v%d, s%d, v%d" % (t, sSUM, vZ))
    A("v_mul_f32 v%d, s%d, v%d" % (t + 1, sSQ, vZ))
    A("v_fma_f32 v%d, -v%d, v%d, v%d" % (t + 1, t, t, t + 1))
    A("v_max_f32 v%d, 0, v%d" % (t + 1, t + 1))

ool = []
uid = [0]
def maxtree(regs, tmp):
    r = list(regs); out = []
    out.append("v_max3_u32 v%d, v%d, v%d, v%d" % (tmp, r[0], r[1], r[2])); r = r[3:]
    if len(r) >= 5:
        out.append("v_max3_u32 v%d, v%d, v%d, v%d" % (tmp + 1, r[0], r[1], r[2])); r = r[3:]
        d = 0
        while len(r) >= 2:
            out.append("v_max3_u32 v%d, v%d, v%d, v%d" % (tmp + d, tmp + d, r[0], r[1])); r = r[2:]; d ^= 1
        if r: out.append("v_max3_u32 v%d, v%d, v%d, v%d" % (tmp, tmp, tmp + 1, r[0]))
        else: out.append("v_max_u32 v%d, v%d, v%d" % (tmp, tmp, tmp + 1))
    else:
        while len(r) >= 2:
            out.append("v_max3_u32 v%d, v%d, v%d, v%d" % (tmp, tmp, r[0], r[1])); r = r[2:]
        if r: out.append("v_max_u32 v%d, v%d, v%d" % (tmp, tmp, r[0]))
    return out

def poll(issue, regs, tmp, pre_wait=None, spec=None, back="s_nop 7", tag=None):
    uid[0] += 1; u = uid[0]
    A("s_mov_b32 s%d, %s" % (sCNT, hx(SPIN)))
    LB("Lp%d" % u)
    issue()
    if pre_wait: pre_wait()
    A("s_waitcnt vmcnt(0)")
    mt = maxtree(regs, tmp) + ["v_cmp_eq_u32 vcc, -1, v%d" % tmp]
    spec = list(spec or [])
    ns = len(spec)
    per = -(-len(mt) // ns) if ns else 0
    for s in spec:
        A(s)
        for k in range(per):
            if mt: A(mt.pop(0))
    for m in mt: A(m)
    A("s_cbranch_vccnz Lr%d" % u)
    LB("Ld%d" % u)
    if DIAG and tag is not None:
        A("s_lshl_b32 m0, s%d, 2" % sLAY); A("s_add_u32 m0, m0, %d" % tag); A("s_nop 0")
        A("v_writelane_b32 v31, s%d, m0" % sCNT)
    ool.append(["Lr%d:" % u, "    s_sub_u32 s%d, s%d, 1" % (sCNT, sCNT), "    s_cbranch_scc1 Ld%d" % u, "    " + back, "    s_branch Lp%d" % u])

def lds_spin(off, target, tmp, mask=None, sleep=0):
    uid[0] += 1; u = uid[0]
    A("s_mov_b32 s%d, %s" % (sT2, hx(SPIN * 4)))
    LB("Ls%d" % u)
    A("ds_read_b32 v%d, v%d offset:%d" % (tmp, vFL, off))
    A("s_waitcnt lgkmcnt(0)")
    A("v_readfirstlane_b32 s%d, v%d" % (sT1, tmp))
    if mask: A("s_and_b32 s%d, s%d, %d" % (sT0, sT1, mask))
    A("s_cmp_ge_u32 s%d, %d" % (sT0 if mask else sT1, target))
    A("s_cbranch_scc1 Lt%d" % u)
    if sleep: A("s_sleep %d" % sleep)
    A("s_sub_u32 s%d, s%d, 1" % (sT2, sT2))
    A("s_cbranch_scc0 Ls%d" % u)
    LB("Lt%d" % u)

def lds_arrive(off, tmp, val=1):
    if val is not None: A("v_mov_b32 v%d, %d" % (tmp, val))
    A("s_mov_b64 exec, 1")
    A("ds_add_u32 v%d, v%d offset:%d" % (vFL, tmp, off))
    A("s_mov_b64 exec, -1")

def store_local(op, data, vaddr, so):
    uid[0] += 1; u = uid[0]
    A("s_cbranch_scc1 Lw%d" % u)
    A("%s %s, v%d, %s, s%d offen" % (op, data, vaddr, sr(sWS, 4), so))
    LB("Lx%d" % u)
    ool.append(["Lw%d:" % u, "    %s %s, v%d, %s, s%d offen sc1" % (op, data, vaddr, sr(sWS, 4), so), "    s_branch Lx%d" % u])
def fastcmp(): A("s_cmp_eq_u32 s%d, 0" % sFAST)

def mf(d, a, b, c):
    return "v_mfma_f32_16x16x32_bf16 %s, %s, %s, %s" % (vr(d, 4), vr(a, 4), vr(b, 4), "0" if c is None else vr(c, 4))
def mfma(d, a, b, c): A(mf(d, a, b, c))

def tags():
    A("s_add_u32 s%d, s%d, 1" % (sTG1, sE))
    A("s_mul_i32 s%d, s%d, 0x9E3779B1" % (sTG2, sTG1))
    A("s_and_b32 s%d, s%d, -8" % (sTG2, sTG2))

def common_addr():
    A("v_and_b32 v18, 3, v%d" % vLANE)
    A("v_lshlrev_b32 v%d, 12, v17" % vQST)
    A("v_lshrrev_b32 v24, 1, v16")
    A("v_lshl_add_u32 v%d, v24, 8, v%d" % (vQST, vQST))
    A("v_and_b32 v24, 1, v16")
    A("v_lshl_add_u32 v%d, v24, 3, v%d" % (vQST, vQST))
    A("v_lshlrev_b32 v%d, 4, v24" % vLSE)
    A("s_mul_i32 s%d, s%d, %d" % (sT0, sW, XS))
    A("s_add_u32 s%d, s%d, %d" % (sT0, sT0, L_XN))
    A("v_add_u32 v%d, s%d, v%d" % (vXNW, sT0, vL16))
    A("s_lshl_b32 s%d, s%d, 8" % (sT0, sA))
    A("s_add_u32 s%d, s%d, %d" % (sT0, sT0, L_XN))
    A("v_mul_u32_u24 v25, %d, v18" % XS)
    A("v_lshl_add_u32 v25, v16, 4, v25")
    A("v_add_u32 v%d, s%d, v25" % (vXNR, sT0))
    A("v_mov_b32 v%d, %s" % (vZ, hx(f2u(1.0 / 512))))
    for r in range(4): A("v_mov_b32 v%d, 0x3f803f80" % (ONES + r))
    A("s_and_b32 s%d, s%d, 1" % (sT1, sC))
    A("s_lshr_b32 s%d, s%d, 1" % (sT2, sC))
    soff(sQS, [(sT1, 11), (sW, 9), (sA, 6), (sT2, 4)], 0)
    A("v_bfe_u32 v24, v%d, 2, 2" % vLANE)
    A("v_lshl_add_u32 v24, v16, 3, v24")
    A("v_lshlrev_b32 v24, 7, v24")
    A("v_bfe_u32 v25, v%d, 3, 2" % vLANE)
    A("v_lshlrev_b32 v25, 1, v25")
    A("v_bfe_u32 v26, v%d, 1, 1" % vLANE)
    A("v_xor_b32 v25, v25, v26")
    A("v_lshl_add_u32 v24, v25, 4, v24")
    A("v_and_b32 v26, 1, v%d" % vLANE)
    A("v_lshl_add_u32 v%d, v26, 3, v24" % vWT)
    A("s_mov_b32 s%d, 0x000f000f" % sMSK)
    A("s_mov_b32 s%d, 0x000f000f" % (sMSK + 1))
    A("s_mov_b32 s%d, 0" % sLAY)

def wtile_voff(shift, d):
    A("v_lshrrev_b32 v24, 3, v%d" % vLANE)
    A("v_and_b32 v25, 7, v%d" % vLANE)
    A("v_and_b32 v26, 1, v16")
    A("v_lshlrev_b32 v26, 1, v26")
    A("v_xor_b32 v25, v25, v26")
    A("v_lshlrev_b32 v25, 4, v25")
    A("v_lshl_add_u32 v%d, v24, %d, v25" % (d, shift))
    A("v_xor_b32 v%d, 64, v%d" % (d + 1, d))

def wqf_reads():
    A("s_lshl_b32 s%d, s%d, 5" % (sT1, sW))
    A("v_xor_b32 v26, s%d, v%d" % (sT1, vWT))
    for t in range(4):
        for hf in range(2):
            A("ds_read_b64_tr_b16 %s, v26 offset:%d" % (vr(WQF + 4 * t + 2 * hf, 2), L_WQ + 4096 * t + 512 * hf))

def dma(vaddr, srdn, so, lds_s, step_so, flags="nt"):
    A("s_mov_b32 m0, s%d" % lds_s)
    A("s_add_u32 s%d, s%d, 1024" % (lds_s, lds_s))
    A("buffer_load_dwordx4 v%d, %s, s%d offen %s lds" % (vaddr, sr(srdn, 4), so, flags))
    A("s_add_u32 s%d, s%d, %d" % (so, so, step_so))

hdr = open("cdna_kernels/%s.s.ref" % NAME).read().split("; Override launch")[0]
L.append(hdr.rstrip("\n"))
L.append("; @launch grid=(256,1,1) block=(512,1,1) lds=%d" % LDS_SZ)
L.append('.amdgcn_target "amdgcn-amd-amdhsa--gfx950"')
L.append(".text\n.globl %s_kernel\n.p2align 8\n.type %s_kernel,@function\n%s_kernel:" % (NAME, NAME, NAME))
if DIAG: A("s_memrealtime s[42:43]")
if DBL or TOT: A("s_memrealtime s[98:99]")
sM = 96
A("s_lshr_b32 s%d, s2, 8" % sT0)
A("s_cbranch_scc1 Lend")
A("s_load_dwordx2 %s, s[0:1], 24" % sr(sWQ, 2))
A("s_load_dwordx4 %s, s[0:1], 0" % sr(sT2, 4))
A("v_readfirstlane_b32 s%d, v0" % sW)
C("every wave pulls one line of this kernel's code into L2 (plain read): 32 workgroups x 4 lines")
A("s_getpc_b64 s[10:11]")
LB("Lpc0")
A("s_lshr_b32 s%d, s2, 3" % sM)
A("s_lshl_b32 s%d, s%d, 9" % (sCNT, sM))
A("v_lshrrev_b32 v19, 7, v0")
A("v_lshl_add_u32 v19, v19, 7, s%d" % sCNT)
A("global_load_dword v%d, v19, s[10:11]" % (W + 8))
A("s_and_b32 s%d, s2, 7" % sJ)
A("s_lshr_b32 s%d, s2, 6" % sA)
A("s_and_b32 s%d, s%d, 7" % (sC, sM))
A("s_lshl_b32 s%d, 1, 17" % (sWQ + 3))
A("s_bitcmp1_b32 s%d, 8" % sW)
A("s_cbranch_scc0 Lmain0")
vKA, vVA = W + 40, W + 44
def kv_issue(i):
    if i < 8: dma(vKA + (i & 3), sK, sKO, sKL, 1024)
    else: dma(vVA + (i & 1), sV, sVO, sVL, 1024)
def lane_init():
    A("v_and_b32 v%d, 63, v0" % vLANE)
    A("v_mov_b32 v%d, %d" % (vFL, L_FLG))
    A("v_lshlrev_b32 v%d, 4, v%d" % (vL16, vLANE))
    A("v_lshrrev_b32 v16, 4, v%d" % vLANE)
    A("v_and_b32 v17, 15, v%d" % vLANE)
    A("v_mov_b32 v20, 0")
    if DIAG: A("v_mov_b32 v30, 0")
def main_early():
    LB("Lmain0")
    for s, off in [(sW1, 48), (sB1, 56), (sW2, 64)]:
        A("s_load_dwordx2 %s, s[0:1], %d" % (sr(s, 2), off))
    lane_init()
    A("v_mov_b32 v21, 0")
    for k in range(4): A("ds_write_b64 v%d, v[20:21] offset:%d" % (vFL, 8 * k))
    A("s_lshl_b32 s%d, 1, 25" % (sK + 2)); A("s_mov_b32 s%d, s%d" % (sK + 3, sWQ + 3))
    A("v_xor_b32 v18, v17, v16")
    A("v_lshlrev_b32 v18, 4, v18")
    A("v_lshl_add_u32 v%d, v16, 8, v18" % vKA)
    A("v_xor_b32 v%d, 64, v%d" % (vKA + 1, vKA))
    A("v_xor_b32 v%d, 128, v%d" % (vKA + 2, vKA))
    A("v_xor_b32 v%d, 64, v%d" % (vKA + 3, vKA + 2))
    soff(sKO, [(sA, 23), (sJ, 20), (sC, 15), (sW, 7)], 3072 * 256)
    A("s_add_u32 s%d, s%d, %d" % (sKL, sT0, L_K))
    A("s_mov_b32 s%d, s%d" % (sVO, sKO))
    A("s_waitcnt lgkmcnt(0)")
    A("s_mov_b64 %s, %s" % (sr(sK, 2), sr(sT4, 2)))
    for i in range(D0): kv_issue(i)
    C("lane k<3 of wave 3 pulls a slice of coefficient array k into L2")
    A("s_cmp_lg_u32 s%d, 192" % sW)
    A("s_cbranch_scc1 Lm_nopf")
    A("s_min_u32 s%d, s%d, 27" % (sT1, sM))
    A("s_lshl_b32 s%d, s%d, 7" % (sT1, sT1))
    A("v_mov_b32 v19, s%d" % sT1)
    A("s_mov_b64 exec, 1")
    for k, sd in enumerate([sW1, sB1, sW2]): A("global_load_dword v%d, v19, %s" % (W + 9 + k, sr(sd, 2)))
    A("s_mov_b64 exec, -1")
    LB("Lm_nopf")
    A("s_add_u32 s%d, s%d, %d" % (sVL, sT0, L_V))
    A("s_lshr_b32 s%d, s%d, 6" % (sW, sW))
    if DIAG: A("v_writelane_b32 v30, s42, 0")
    STAMP(10)
    A("s_branch Lmain")

C("---- helper waves: first q projection, then the table of g over bf16 inputs ----")
HW1, HB1, HW2 = 32, 60, 112
hK0, hK1, hONE, hRES = 88, 90, 92, 94
AC = [140, 142]
C("wq tile DMA: instruction i, thread t' = t-256: row 32 i + (t'>>3), 16-byte chunk (t'&7) ^ swizzle")
A("v_bfe_u32 v23, v0, 3, 5")
A("v_and_b32 v22, 7, v0")
A("v_and_b32 v24, 2, v23")
A("v_lshrrev_b32 v25, 1, v23")
A("v_and_or_b32 v24, v25, 4, v24")
A("v_xor_b32 v22, v22, v24")
A("v_lshlrev_b32 v22, 4, v22")
A("v_lshl_add_u32 v22, v23, 13, v22")
soff(sQL, [(sA, 20), (sJ, 10), (sC, 7)], 0)
A("s_lshl_b32 s%d, 1, 22" % (sWQ + 2))
A("s_lshl_b32 s%d, 1, 18" % sT1)
A("s_lshl_b32 s%d, s%d, 4" % (sQS, sW))
A("s_add_u32 m0, s%d, %d" % (sQS, L_WQ - 4096))
A("v_lshlrev_b32 v21, 4, v0")
A("s_waitcnt lgkmcnt(0)")
A("global_load_dwordx4 %s, v21, %s offset:-4096" % (vr(XR, 4), sr(sT2, 2)))
for i in range(4):
    if i:
        A("s_addk_i32 m0, 0x1000")
        A("s_add_u32 s%d, s%d, s%d" % (sQL, sQL, sT1))
    A("buffer_load_dwordx4 v22, %s, s%d offen nt lds" % (sr(sWQ, 4), sQL))
A("s_branch Lhelp2")
main_early()
LB("Lhelp2")
for s, off in [(sWS, 96), (sB2P, 72)]:
    A("s_load_dwordx2 %s, s[0:1], %d" % (sr(s, 2), off))
lane_init()
A("s_bfe_u32 s%d, s%d, 0x20006" % (sW, sW))
A("s_lshl_b32 s%d, s%d, 10" % (sT3, sW))
srd(sWS, WS_SZ)
C("early sentinels (O0, LSE0): hw0 1024 B, the others 16 B")
for i in range(4): A("v_mov_b32 v%d, -1" % (PM + i))
A("s_mul_i32 s%d, s%d, %d" % (sT5, sM, CLRA_PER))
A("s_lshl_b32 s%d, s%d, 17" % (sGR, sJ))
A("s_add_u32 s%d, s%d, s%d" % (sT5, sT5, sGR))
A("s_add_u32 s%d, s%d, 1024" % (sT4, sT5))
A("s_cmp_eq_u32 s%d, 0" % sW)
A("s_cselect_b32 s%d, s%d, s%d" % (sT5, sT5, sT4))
A("s_cselect_b64 exec, -1, 1")
A("s_waitcnt lgkmcnt(0)")
A("buffer_store_dwordx4 %s, v%d, %s, s%d offen sc1" % (vr(PM, 4), vL16, sr(sWS, 4), sT5))
A("s_mov_b64 exec, -1")
A("s_load_dword s%d, %s, %s" % (sE, sr(sWS, 2), hx(EPO)))
A("s_load_dword s%d, %s, 0" % (sB2, sr(sB2P, 2)))
if DIAG: A("v_writelane_b32 v30, s42, 0")
STAMP(9)
A("s_barrier")
A("s_lshl_b32 s%d, s2, 2" % sHC)
A("s_add_u32 s%d, s%d, s%d" % (sHC, sHC, sW))
A("s_mul_i32 s%d, s%d, %d" % (sHC, sHC, EPW))
A("s_lshl_b32 s%d, s%d, 3" % (sHT, sHC))
A("s_add_u32 s%d, s%d, %s" % (sHT, sHT, hx(TB)))
A("s_add_u32 s%d, s%d, %d" % (sHC, sHC, ELO * 128))
A("s_lshl_b32 s%d, s%d, 16" % (sHC, sHC))
A("v_lshlrev_b32 v27, 2, v%d" % vLANE)
common_addr()
A("s_lshl_b32 s%d, s%d, 1" % (sQS, sQS))
A("s_add_u32 s%d, s%d, s%d" % (sQS, sQS, sGR))
A("s_add_u32 s%d, s%d, %s" % (sQS, sQS, hx(Q0_OFF)))
A("v_lshlrev_b32 v%d, 1, v%d" % (vQST, vQST))
A("s_getreg_b32 s%d, hwreg(HW_REG_XCC_ID, 0, 3)" % sXCC)
for r, c in [(hK0, K0), (hK1, K1), (hONE, 1.0)]:
    A("v_mov_b32 v%d, %s" % (r, hx(f2u(c)))); A("v_mov_b32 v%d, %s" % (r + 1, hx(f2u(c))))
A("v_mov_b32 v%d, 0" % hRES)
A("s_mov_b32 s%d, 0" % sIT)
A("s_waitcnt vmcnt(5)")
STAMP(1)
A("s_branch Llnq")
LB("Lq_first")
A("s_waitcnt vmcnt(0) lgkmcnt(0)")
STAMP(2)
lds_arrive(0, vT + 4)
tags()
A("s_or_b32 s%d, s%d, s%d" % (sXCC, sXCC, sTG2))
A("s_lshl_b32 s%d, s%d, 16" % (sB2, sB2))
C("4 helper arrivals (wq tile, xn rows) + 4 main arrivals (coefficients landed, sentinels acknowledged)")
lds_spin(0, 4, vT + 4)
wqf_reads()
A("s_waitcnt lgkmcnt(0)")
A("s_branch Lq_go")
LB("Lh_qst")
A("v_mov_b32 v%d, s%d" % (W + 6, sTG1))
A("v_mov_b32 v%d, s%d" % (W + 7, sXCC))
A("buffer_store_dwordx4 %s, v%d, %s, s%d offen%s" % (vr(W + 4, 4), vQST, sr(sWS, 4), sQS, "" if int(OPT.get("fast", 1)) else " sc1"))
A("s_add_u32 s%d, s%d, %s" % (sQS, sQS, hx(QB_DELTA)))
A("buffer_store_dwordx4 %s, v%d, %s, s%d offen sc1" % (vr(W + 4, 4), vQST, sr(sWS, 4), sQS))
A("s_mov_b64 exec, -1")
HR = W + 8
STAMP(3)
A("v_lshlrev_b32 v26, 3, v%d" % vLANE)
lds_spin(24, 4, 24, sleep=1)
for a_ in range(3):
    for k in range(3):
        A("ds_read_b128 %s, v%d offset:%d" % (vr(HR + 14 * a_ + 4 * k, 4), vL16, 4096 * a_ + 1024 * k))
    A("ds_read_b64 %s, v26 offset:%d" % (vr(HR + 14 * a_ + 12, 2), 4096 * a_ + 3072))
for a_, d in [(0, HW1), (14, HB1), (28, HW2)]:
    A("s_waitcnt lgkmcnt(%d)" % (8 - 4 * (a_ // 14)))
    for p in range(14):
        A("v_lshlrev_b32 v%d, 16, v%d" % (d + 2 * p, HR + a_ + p))
        A("v_and_b32 v%d, 0xffff0000, v%d" % (d + 2 * p + 1, HR + a_ + p))
STAMP(4)
if DIAG:
    A("s_memtime s[42:43]"); A("s_waitcnt lgkmcnt(0)"); A("v_writelane_b32 v30, s42, 13")
LB("Lhl")
if DIAG:
    A("s_memrealtime s[42:43]"); A("s_add_u32 m0, s%d, 10" % sIT); A("s_waitcnt lgkmcnt(0)"); A("v_writelane_b32 v30, s42, m0")
A("s_mov_b32 s%d, s%d" % (sH, sHC)); A("s_mov_b32 s%d, s%d" % (sH + 1, sHC))
A("s_xor_b32 s%d, s%d, 0x80000000" % (sH2, sHC)); A("s_mov_b32 s%d, s%d" % (sH2 + 1, sH2))
U4 = [144, 146, 148, 150]; T4 = [152, 154, 156, 158]; Z4 = [160, 162, 164, 166]
for p2 in range(7):
    ch = [(2 * p2 + k // 2, k & 1) for k in range(4)]
    for k, (p, sg) in enumerate(ch):
        A("v_pk_fma_f32 %s, %s, %s, %s" % (vr(U4[k], 2), vr(HW1 + 2 * p, 2), sr([sH, sH2][sg], 2), vr(HB1 + 2 * p, 2)))
    for k in range(4): A("v_pk_mul_f32 %s, %s, %s" % (vr(T4[k], 2), vr(U4[k], 2), vr(U4[k], 2)))
    for k in range(4): A("v_pk_fma_f32 %s, %s, %s, %s" % (vr(T4[k], 2), vr(T4[k], 2), vr(hK1, 2), vr(hK0, 2)))
    for k in range(4): A("v_pk_mul_f32 %s, %s, %s" % (vr(T4[k], 2), vr(T4[k], 2), vr(U4[k], 2)))
    for k in range(4):
        for h in range(2): A("v_exp_f32 v%d, v%d" % (T4[k] + h, T4[k] + h))
    for k, (p, sg) in enumerate(ch): A("v_pk_mul_f32 %s, %s, %s" % (vr(Z4[k], 2), vr(U4[k], 2), vr(HW2 + 2 * p, 2)))
    for k in range(4): A("v_pk_add_f32 %s, %s, %s" % (vr(T4[k], 2), vr(T4[k], 2), vr(hONE, 2)))
    for k in range(4):
        for h in range(2): A("v_rcp_f32 v%d, v%d" % (T4[k] + h, T4[k] + h))
    for k, (p, sg) in enumerate(ch):
        if p == 0: A("v_pk_mul_f32 %s, %s, %s" % (vr(AC[sg], 2), vr(Z4[k], 2), vr(T4[k], 2)))
        else: A("v_pk_fma_f32 %s, %s, %s, %s" % (vr(AC[sg], 2), vr(Z4[k], 2), vr(T4[k], 2), vr(AC[sg], 2)))
A("v_add_f32 v%d, v%d, v%d" % (AC[0], AC[0], AC[0] + 1))
A("v_add_f32 v%d, v%d, v%d" % (AC[1], AC[1], AC[1] + 1))
A("s_lshl_b32 m0, s%d, 1" % sIT)
A("s_add_u32 s%d, s%d, 0x10000" % (sHC, sHC))
wave_sum2(AC[0], AC[1], sSUM, sSQ)
A("s_add_u32 s%d, s%d, 1" % (sIT, sIT))
A("s_nop 0")
A("v_writelane_b32 v%d, s%d, m0" % (hRES, sSUM))
A("s_add_u32 m0, m0, 1")
A("s_cmp_lg_u32 s%d, %d" % (sIT, EPW))
A("v_writelane_b32 v%d, s%d, m0" % (hRES, sSQ))
A("s_cbranch_scc1 Lhl")
if DIAG:
    A("s_memtime s[42:43]"); A("s_waitcnt lgkmcnt(0)"); A("v_writelane_b32 v30, s42, 14")
    STAMP(15)
A("v_cvt_pk_bf16_f32 v%d, v%d, v%d" % (hRES, hRES, hRES))
A("v_and_b32 v%d, 0xffff0000, v%d" % (hRES, hRES))
A("v_add_f32 v%d, s%d, v%d" % (hRES, sB2, hRES))
A("v_cvt_pk_bf16_f32 v%d, v%d, v%d" % (hRES, hRES, hRES))
A("v_and_b32 v%d, 0xffff0000, v%d" % (hRES, hRES))
lds_spin(8, 4, 24)
A("s_bfm_b64 exec, %d, 0" % (2 * EPW))
A("buffer_store_dword v%d, v27, %s, s%d offen sc1" % (hRES, sr(sWS, 4), sHT))
A("s_mov_b64 exec, -1")
STAMP(7)
if DIAG:
    A("s_add_u32 s%d, s%d, 4" % (sW, sW))
    A("v_mov_b32 v28, v30")
    A("s_branch Lfin_exit")
A("s_endpgm")

LB("Lmain")
for s, off in [(sWS, 96), (sV, 16), (sWO, 32), (sOUT, 80), (sX, 0), (sB2P, 72)]:
    A("s_load_dwordx2 %s, s[0:1], %d" % (sr(s, 2), off))
if DIAG == 2: A("s_load_dwordx2 s[100:101], s[0:1], 88")
srd(sWS, WS_SZ)
for s in [sW1, sB1, sW2]: srd(s, 3584)
A("s_lshl_b32 s%d, s%d, 10" % (sT3, sW))
A("s_barrier")
for i in range(D0, DC): kv_issue(i)
A("s_mov_b32 m0, s%d" % sT3)
for i, sd in enumerate([sW1, sB1, sW2]):
    if i: A("s_addk_i32 m0, 0x1000")
    A("s_nop 0")
    A("buffer_load_dwordx4 v%d, %s, s%d offen lds" % (vL16, sr(sd, 4), sT3))
for i in range(DC, D1): kv_issue(i)
for i in range(4): A("v_mov_b32 v%d, -1" % (W + i))
A("s_lshl_b32 s%d, s%d, 17" % (sGR, sJ))
A("s_mov_b32 s%d, s%d" % (sT1, sM))
A("s_waitcnt lgkmcnt(0)")
A("v_mov_b32 v22, %s" % hx(EPO))
A("buffer_load_dword v%d, v22, %s, 0 offen" % (RES, sr(sWS, 4)))
STAMP(11)
for s, n in [(sV, 1 << 25), (sX, 4096), (sWO, 1 << 22), (sOUT, 4096)]: srd(s, n)
A("v_lshlrev_b32 v18, 1, v16")
A("v_xor_b32 v18, v17, v18")
A("v_lshlrev_b32 v18, 4, v18")
A("v_lshl_add_u32 v%d, v16, 8, v18" % vVA)
A("v_xor_b32 v%d, 128, v%d" % (vVA + 1, vVA))
C("late sentinels: wave 0,1: group region ; wave 2: P chunk")
A("s_lshr_b32 s%d, s2, 3" % sT1)
A("s_mul_i32 s%d, s%d, %d" % (sT1, sT1, CLRB_PER))
A("s_lshl_b32 s%d, s%d, 10" % (sT0, sW))
A("s_add_u32 s%d, s%d, s%d" % (sT1, sT1, sT0))
A("s_add_u32 s%d, s%d, s%d" % (sT1, sT1, sGR))
A("s_add_u32 s%d, s%d, %d" % (sT1, sT1, CLRB_OFF))
A("s_lshl_b32 s%d, s2, 10" % sT0)
A("s_add_u32 s%d, s%d, %s" % (sT0, sT0, hx(PB)))
A("s_cmp_ge_u32 s%d, 2" % sW)
A("s_cselect_b32 s%d, s%d, s%d" % (sT1, sT0, sT1))
A("s_bfm_b64 %s, %d, 0" % (sr(sH, 2), (CLRB_PER - 1024) // 16))
A("s_cmp_eq_u32 s%d, 1" % sW)
A("s_cselect_b64 %s, %s, -1" % (sr(sH, 2), sr(sH, 2)))
A("s_mul_i32 s%d, s2, %d" % (sT0, NENT * 4 // 256))
A("s_add_u32 s%d, s%d, %s" % (sT0, sT0, hx(TB)))
A("s_cmp_eq_u32 s%d, 3" % sW)
A("s_cselect_b32 s%d, s%d, s%d" % (sT1, sT0, sT1))
A("s_cselect_b64 exec, %d, %s" % ((1 << (NENT * 4 // 256 // 16)) - 1, sr(sH, 2)))
A("buffer_store_dwordx4 %s, v%d, %s, s%d offen sc1" % (vr(W, 4), vL16, sr(sWS, 4), sT1))
A("s_mov_b64 exec, -1")

common_addr()
A("s_add_u32 s%d, s%d, s%d" % (sQS, sQS, sGR))
A("s_add_u32 s%d, s%d, %d" % (sQS, sQS, Q1_OFF))
wtile_voff(10, 22)
A("v_and_b32 v19, 7, v%d" % vLANE)
A("v_lshrrev_b32 v25, 2, v%d" % vLANE)
A("v_lshlrev_b32 v25, 7, v25")
A("v_lshl_add_u32 v%d, v18, 2, v25" % vOST)
A("v_lshlrev_b32 v25, 7, v16")
A("v_lshl_add_u32 v%d, v19, 4, v25" % vOLD)
A("v_lshlrev_b32 v%d, 1, v%d" % (vPST, vLANE))
A("v_lshlrev_b32 v25, 3, v16")
A("v_lshl_add_u32 v%d, v19, 4, v25" % vX1S)
A("s_mul_i32 s%d, s%d, %d" % (sT0, sW, RBS))
A("s_add_u32 s%d, s%d, %d" % (sT0, sT0, L_RB))
A("v_mul_u32_u24 v25, 528, v18")
A("v_lshl_add_u32 v25, v16, 4, v25")
A("v_lshrrev_b32 v26, 2, v17")
A("v_lshl_add_u32 v25, v26, 7, v25")
A("v_add_u32 v%d, s%d, v25" % (vRBW, sT0))
A("s_mul_i32 s%d, s%d, 528" % (sT0, sW))
A("s_add_u32 s%d, s%d, %d" % (sT0, sT0, L_RB))
A("v_lshlrev_b32 v25, 3, v%d" % vLANE)
A("v_add_u32 v%d, s%d, v25" % (vRBR, sT0))
A("s_lshl_b32 s%d, s%d, 3" % (sT0, sW))
A("s_add_u32 s%d, s%d, %d" % (sT0, sT0, L_ML))
A("v_lshlrev_b32 v25, 5, v18")
A("v_add_u32 v%d, s%d, v25" % (vMLW, sT0))
A("s_lshl_b32 s%d, s%d, 5" % (sT0, sW))
A("s_add_u32 s%d, s%d, %d" % (sT0, sT0, L_ML))
A("v_mov_b32 v%d, s%d" % (vMLR, sT0))
A("v_mov_b32 v25, 0x3f80")
A("v_mov_b32 v26, 0x3f800000")
for r in range(4):
    A("v_cmp_eq_u32 vcc, %d, v17" % (2 * r))
    A("v_cmp_eq_u32 %s, %d, v17" % (sr(sH, 2), 2 * r + 1))
    A("s_nop 0")
    A("v_cndmask_b32 v%d, 0, v25, vcc" % (SEL + r))
    A("v_cndmask_b32 v%d, v%d, v26, %s" % (SEL + r, SEL + r, sr(sH, 2)))
for i in range(16): A("v_mov_b32 v%d, 0" % (PM + i))
for p in range(4):
    A("s_mov_b32 s%d, %s" % (sPM + 2 * p, hx(0x000f000f << (4 * p))))
    A("s_mov_b32 s%d, %s" % (sPM + 2 * p + 1, hx(0x000f000f << (4 * p))))
soff(sOS, [(sW, 13), (sA, 11), (sC, 4), (sJ, 17)], O_OFF[0])
soff(sOL, [(sA, 13), (sW, 11), (sJ, 17)], O_OFF[0])
A("s_add_u32 s%d, s%d, %s" % (sQL, sOL, hx(Q0_OFF - O_OFF[0])))
soff(sLS, [(sW, 7), (sA, 5), (sC, 2), (sJ, 17)], LSE_OFF[0])
soff(sLL, [(sA, 7), (sW, 5), (sJ, 17)], LSE_OFF[0])
soff(sPS, [(sW, 15), (sC, 12), (sJ, 9), (sA, 7)], PB)
A("s_mov_b32 s%d, %s" % (sSC, hx(f2u(128 ** -0.5 * math.log2(math.e)))))
A("s_getreg_b32 s%d, hwreg(HW_REG_XCC_ID, 0, 3)" % sXCC)
A("v_xor_b32 v24, v16, v17")
A("v_lshlrev_b32 v24, 4, v24")
A("v_lshl_add_u32 v24, v17, 8, v24")
A("s_lshl_b32 s%d, s%d, 13" % (sT1, sW))
A("s_add_u32 s%d, s%d, %d" % (sT2, sT1, L_K))
for t in range(4): A("v_xor_b32 v%d, %d, v24" % (18 + t, 64 * t))
for t in range(4): A("v_add_u32 v%d, s%d, v%d" % (18 + t, sT2, 18 + t))
VA = W + 32
A("v_lshrrev_b32 v24, 2, v%d" % vLANE)
A("v_and_b32 v25, 7, v24")
A("v_lshlrev_b32 v25, 1, v25")
A("v_bfe_u32 v26, v%d, 1, 1" % vLANE)
A("v_xor_b32 v25, v25, v26")
A("v_lshlrev_b32 v25, 4, v25")
A("v_lshl_add_u32 v25, v24, 8, v25")
A("v_and_b32 v26, 1, v%d" % vLANE)
A("v_lshl_add_u32 v25, v26, 3, v25")
A("s_add_u32 s%d, s%d, %d" % (sT2, sT1, L_V))
for t in range(8): A("v_xor_b32 v%d, %d, v25" % (VA + t, 32 * t))
for t in range(8): A("v_add_u32 v%d, s%d, v%d" % (VA + t, sT2, VA + t))
soff(sT4, [(sJ, 19), (sA, 17), (sW, 15), (sC, 7)], 0)
A("s_lshl_b32 s%d, s%d, 12" % (sT5, sW))
A("s_add_u32 s%d, s%d, %d" % (sT5, sT5, L_WO))
soff(sT3, [(sA, 10), (sC, 7)], 0)
A("v_lshlrev_b32 v24, 5, v%d" % vLANE)
A("s_lshl_b32 s%d, s%d, 10" % (sT2, sW))
A("s_add_u32 s%d, s%d, %d" % (sT2, sT2, L_QF))
A("v_add_u32 v25, s%d, v%d" % (sT2, vL16))
A("v_add_u32 v26, %d, v%d" % (L_QF, vL16))
STAMP(12)
if DIAG: A("v_mov_b32 v31, v30")
QP = W
def q0_issue():
    A("buffer_load_dwordx4 %s, v24, %s, s%d offen sc1" % (vr(QP, 4), sr(sWS, 4), sQL))
    A("buffer_load_dwordx4 %s, v24, %s, s%d offen offset:16 sc1" % (vr(QP + 4, 4), sr(sWS, 4), sQL))
def flag_block():
    if True:
        A("s_cmp_lg_u32 s%d, 0" % sW)
        A("s_cbranch_scc1 Lnoflag")
        C("every sentinel store of this workgroup is acknowledged: announce it")
        lds_spin(8, 4, vT)
        A("v_mov_b32 v16, s%d" % sTG1)
        A("v_mov_b32 v17, s%d" % sXCC)
        soff(sT1, [(2, 4)], FB)
        A("v_mov_b32 v27, 0")
        A("s_mov_b64 exec, 1")
        A("buffer_store_dwordx2 v[16:17], v27, %s, s%d offen sc1" % (sr(sWS, 4), sT1))
        A("s_mov_b64 exec, -1")
        LB("Lnoflag")
C("coefficients landed -> tell the helpers")
A("s_waitcnt vmcnt(%d)" % (D1 - DC + 2))
lds_arrive(24, vT)
for i in range(D1, 16):
    if i == 16 - QV: q0_issue()
    nq = 2 if i >= 16 - QV else 0
    nx = 2 if i - D1 < DEPTH - 1 else 0
    if i >= DEPTH: A("s_waitcnt vmcnt(%d)" % (DEPTH - 1 + nq + nx))
    kv_issue(i)
if QV == 0: q0_issue()
C("everything older than the V loads is complete: K, launch tag, late sentinels")
A("s_waitcnt vmcnt(10)")
lds_arrive(8, vT)
A("v_readfirstlane_b32 s%d, v%d" % (sE, RES))
tags()
A("s_or_b32 s%d, s%d, s%d" % (sXCC, sXCC, sTG2))
STAMP(1)
for t in range(4):
    for T in range(2):
        A("ds_read_b128 %s, v%d offset:%d" % (vr(KF + 16 * T + 4 * t, 4), 18 + t, 4096 * T))
flag_block()
def wait_w0(n):
    uid[0] += 1
    A("s_cmp_eq_u32 s%d, 0" % sW)
    A("s_cbranch_scc1 Lww%d" % uid[0])
    A("s_waitcnt vmcnt(%d)" % n)
    LB("Lww%d" % uid[0])
    A("s_waitcnt vmcnt(%d)" % (n + 1))
wait_w0(QV)
STAMP(2)
A("s_setprio 2")
A("s_mov_b32 s%d, %s" % (sCNT, hx(SPIN)))
LB("Lmq")
A("v_and_b32 v16, -8, v%d" % (QP + 3))
A("v_and_b32 v17, -8, v%d" % (QP + 7))
A("v_cmp_ne_u32 vcc, s%d, v%d" % (sTG1, QP + 2))
A("v_cmp_ne_u32 %s, s%d, v%d" % (sr(sRET, 2), sTG1, QP + 6))
A("s_or_b64 vcc, vcc, %s" % sr(sRET, 2))
A("v_cmp_ne_u32 %s, s%d, v16" % (sr(sRET, 2), sTG2))
A("s_or_b64 vcc, vcc, %s" % sr(sRET, 2))
A("v_cmp_ne_u32 %s, s%d, v17" % (sr(sRET, 2), sTG2))
A("s_or_b64 vcc, vcc, %s" % sr(sRET, 2))
A("s_cbranch_vccnz Lmqr")
LB("Lmqd")
if DIAG: A("v_writelane_b32 v31, s%d, 0" % sCNT)
Ls = L; L = []
LB("Lmqr")
C("not there yet: poll the plain copy a few times, then the write-through copy")
A("s_cmp_eq_u32 s%d, %s" % (sCNT, hx(SPIN - 8)))
A("s_cselect_b32 s%d, %s, 0" % (sT0, hx(QB_DELTA)))
A("s_add_u32 s%d, s%d, s%d" % (sQL, sQL, sT0))
q0_issue()
A("s_waitcnt vmcnt(0)")
A("s_sub_u32 s%d, s%d, 1" % (sCNT, sCNT))
A("s_cbranch_scc0 Lmq")
A("s_branch Lmqd")
ool.append(L); L = Ls
A("v_cmp_ne_u32 vcc, s%d, v%d" % (sXCC, QP + 3))
A("v_mov_b32 v%d, v%d" % (QP + 2, QP + 4))
A("v_mov_b32 v%d, v%d" % (QP + 3, QP + 5))
A("ds_write_b128 v25, %s" % vr(QP, 4))
A("s_cmp_eq_u64 vcc, 0")
A("s_cselect_b32 s%d, 1, 0x101" % sT0)
A("v_mov_b32 v16, s%d" % sT0)
A("s_waitcnt lgkmcnt(0)")
lds_arrive(4, 16, None)
STAMP(15)
for i in range(4): dma(22 + (i & 1), sWO, sT4, sT5, 0x2000)
A("buffer_load_dwordx2 %s, v%d, %s, s%d offen" % (vr(RES + 2, 2), vX1S, sr(sX, 4), sT3))
FLG = W + 44
soff(sIT, [(sW, 10)], FB)
soff(sQL, [(sA, 12), (sJ, 17)], Q1_OFF)
lds_spin(4, 4, vT, mask=0xff)
A("s_cmp_lt_u32 s%d, 256" % sT1)
A("s_cselect_b32 s%d, %d, 0" % (sFAST, int(OPT.get("fast", 1))))
QF = W + 16
for t in range(4):
    A("ds_read_b128 %s, v26 offset:%d" % (vr(QF + 4 * t, 4), 1024 * t))
if PRET:
    C("bring the (cleared) group mailbox lines into L2")
    A("s_lshr_b32 s%d, s2, 3" % sT5)
    A("s_lshl_b32 s%d, s%d, 2" % (sT5, sT5))
    A("s_add_u32 s%d, s%d, s%d" % (sT5, sT5, sW))
    A("s_mul_i32 s%d, s%d, 768" % (sT5, sT5))
    A("s_add_u32 s%d, s%d, s%d" % (sT5, sT5, sGR))
    A("v_lshlrev_b32 v27, 7, v%d" % vLANE)
    A("s_mov_b64 exec, 63")
    A("buffer_load_dword v%d, v27, %s, s%d offen sc1" % (W + 40, sr(sWS, 4), sT5))
    A("s_mov_b64 exec, -1")
S = W
qk = []
for t in range(4):
    for T in range(2):
        qk.append(mf(S + 4 * T, KF + 16 * T + 4 * t, QF + 4 * t, None if t == 0 else S + 4 * T))
for t in range(4):
    A("s_waitcnt lgkmcnt(%d)" % (3 - t))
    A(qk[2 * t]); A(qk[2 * t + 1])
STAMP(3)
A("s_branch Lk_go")

LB("Llnq")
C("LayerNorm of the row held in XR, then q partial = xn @ wq tile")
X = W
row_stats(XR, vT, X)
A("v_add_f32 v%d, %s, v%d" % (vT + 1, EPS, vT + 1))
A("v_rsq_f32 v%d, v%d" % (vT + 2, vT + 1))
A("s_cmp_eq_u32 s%d, 0" % sLAY)
A("v_mul_f32 v%d, v%d, v%d" % (vT + 3, vT, vT + 2))
for i in range(4):
    A("v_pk_fma_f32 %s, %s, %s, %s op_sel:[0,0,1] op_sel_hi:[1,0,1] neg_lo:[0,0,1] neg_hi:[0,0,1]" % (vr(X + 2 * i, 2), vr(X + 2 * i, 2), vr(vT + 2, 2), vr(vT + 2, 2)))
for i in range(4):
    A("v_cvt_pk_bf16_f32 v%d, v%d, v%d" % (X + 8 + i, X + 2 * i, X + 2 * i + 1))
A("ds_write_b128 v%d, %s" % (vXNW, vr(X + 8, 4)))
A("s_cbranch_scc1 Lq_first")
A("s_waitcnt lgkmcnt(0)")
A("s_barrier")
LB("Lq_go")
BF = W + 16
for t in range(4):
    A("ds_read_b128 %s, v%d offset:%d" % (vr(BF + 4 * t, 4), vXNR, 64 * t))
for t in range(4):
    A("s_waitcnt lgkmcnt(%d)" % (3 - t))
    mfma(W, WQF + 4 * t, BF + 4 * t, None if t == 0 else W)
A("s_cmp_eq_u32 s%d, 0" % sLAY)
A("s_mov_b64 exec, %s" % sr(sMSK, 2))
NOP(6)
A("v_cvt_pk_bf16_f32 v%d, v%d, v%d" % (W + 4, W, W + 1))
A("v_cvt_pk_bf16_f32 v%d, v%d, v%d" % (W + 5, W + 2, W + 3))
A("s_cbranch_scc1 Lh_qst")
fastcmp()
store_local("buffer_store_dwordx2", vr(W + 4, 2), vQST, sQS)
A("s_mov_b64 exec, -1")
STAMP(2)

C("attention over this workgroup's 128 keys")
def iq():
    for t in range(4):
        A("buffer_load_dwordx4 %s, v%d, %s, s%d offen offset:%d sc1" % (vr(QF + 4 * t, 4), vL16, sr(sWS, 4), sQL, 1024 * t))
poll(iq, range(QF, QF + 16), vT, spec=qk, tag=0)
STAMP(3)
LB("Lk_go")
NOP(7)
for ctl in ["row_ror:4", "row_ror:8"]:
    for i in range(8):
        A("v_add_f32_dpp v%d, v%d, v%d %s row_mask:0xf bank_mask:0xf" % (S + i, S + i, S + i, ctl))
A("v_max3_f32 v%d, v%d, v%d, v%d" % (vT, S, S + 1, S + 2))
A("v_max3_f32 v%d, v%d, v%d, v%d" % (vT + 1, S + 3, S + 4, S + 5))
A("v_max3_f32 v%d, v%d, v%d, v%d" % (vT, vT, S + 6, S + 7))
A("v_max_f32 v%d, v%d, v%d" % (vT, vT, vT + 1))
A("v_mov_b32 v%d, v%d" % (vT + 1, vT))
A("s_nop 1")
A("v_permlane16_swap_b32 v%d, v%d" % (vT, vT + 1))
A("v_max_f32 v%d, v%d, v%d" % (vT, vT, vT + 1))
A("v_mov_b32 v%d, v%d" % (vT + 1, vT))
A("s_nop 1")
A("v_permlane32_swap_b32 v%d, v%d" % (vT, vT + 1))
A("v_max_f32 v%d, v%d, v%d" % (vT, vT, vT + 1))
A("v_mul_f32 v%d, s%d, v%d" % (vT + 2, sSC, vT))
for i in range(8):
    A("v_fma_f32 v%d, v%d, s%d, -v%d" % (S + i, S + i, sSC, vT + 2))
for i in range(8):
    A("v_exp_f32 v%d, v%d" % (S + i, S + i))
for p in range(4):
    A("s_mov_b64 exec, %s" % sr(sPM + 2 * p, 2))
    for i in range(4):
        A("v_cvt_pk_bf16_f32 v%d, v%d, v%d" % (PM + 4 * p + i, S + 2 * i, S + 2 * i + 1))
A("s_mov_b64 exec, -1")
STAMP(4)
A("s_cmp_lg_u32 s%d, 0" % sLAY)
A("s_cbranch_scc1 Lv_go")
wait_w0(5 + PRET)
A("buffer_load_dwordx4 %s, v%d, %s, s%d offen sc1" % (vr(FLG, 4), vL16, sr(sWS, 4), sIT))
A("s_cmp_lg_u32 s%d, 0" % sLAY)
STAMP(6)
for t in range(8):
    for hf in range(2):
        A("ds_read_b64_tr_b16 %s, v%d offset:%d" % (vr(VF + 4 * t + 2 * hf, 2), VA + t, 4096 * hf))
A("s_waitcnt lgkmcnt(0)")
LB("Lv_go")
OA = W + 8
mfma(W + 16, ONES, PM, None)
for p in range(4):
    for T in range(2):
        mfma(OA + 4 * T, VF + 4 * (2 * p + T), PM + 4 * p, None if p == 0 else OA + 4 * T)
A("s_mov_b64 exec, %s" % sr(sMSK, 2))
A("v_mov_b32 v%d, v%d" % (vT + 3, W + 16))
A("ds_write_b64 v%d, %s" % (vMLW, vr(vT + 2, 2)))
A("s_mov_b64 exec, -1")
NOP(3)
A("ds_write_b128 v%d, %s" % (vRBW, vr(OA, 4)))
A("ds_write_b128 v%d, %s offset:64" % (vRBW, vr(OA + 4, 4)))
A("s_waitcnt lgkmcnt(0)")
A("s_cbranch_scc1 Lrb_bar")
lds_arrive(12, vT + 4)
lds_spin(12, 4, vT + 4)
A("s_branch Lrb_go")
LB("Lrb_bar")
A("s_barrier")
LB("Lrb_go")
A("ds_read_b128 %s, v%d" % (vr(W, 4), vMLR))
A("ds_read_b128 %s, v%d offset:16" % (vr(W + 4, 4), vMLR))
for w in range(4):
    A("ds_read_b64 %s, v%d offset:%d" % (vr(W + 8 + 2 * w, 2), vRBR, RBS * w))
A("v_mov_b32 v%d, 0" % (vT + 4))
A("v_xor_b32 v%d, 16, v%d" % (vT + 6, vLSE))
fastcmp()
A("s_waitcnt lgkmcnt(4)")
A("v_max3_f32 v%d, v%d, v%d, v%d" % (vT, W, W + 2, W + 4))
A("v_max_f32 v%d, v%d, v%d" % (vT, vT, W + 6))
for w in range(4): A("v_sub_f32 v%d, v%d, v%d" % (W + 2 * w, W + 2 * w, vT))
for w in range(4): A("v_exp_f32 v%d, v%d" % (W + 2 * w, W + 2 * w))
A("v_mul_f32 v%d, v%d, v%d" % (vT + 1, W, W + 1))
for w in range(1, 4): A("v_fmac_f32 v%d, v%d, v%d" % (vT + 1, W + 2 * w, W + 2 * w + 1))
A("s_waitcnt lgkmcnt(0)")
A("v_pk_mul_f32 %s, %s, %s op_sel_hi:[1,0]" % (vr(W + 8, 2), vr(W + 8, 2), vr(W, 2)))
A("v_rcp_f32 v%d, v%d" % (vT + 2, vT + 1))
for w in range(1, 4):
    A("v_pk_fma_f32 %s, %s, %s, %s op_sel_hi:[1,0,1]" % (vr(W + 8, 2), vr(W + 8 + 2 * w, 2), vr(W + 2 * w, 2), vr(W + 8, 2)))
A("v_log_f32 v%d, v%d" % (vT + 5, vT + 1))
A("v_pk_mul_f32 %s, %s, %s op_sel_hi:[1,0]" % (vr(W + 8, 2), vr(W + 8, 2), vr(vT + 2, 2)))
A("v_add_f32 v%d, v%d, v%d" % (vT + 3, vT + 5, vT))
A("v_cvt_pk_bf16_f32 v%d, v%d, v%d" % (W + 8, W + 8, W + 9))
store_local("buffer_store_dword", "v%d" % (W + 8), vOST, sOS)
A("s_mov_b64 exec, 1")
store_local("buffer_store_dword", "v%d" % (vT + 3), vT + 4, sLS)
A("s_mov_b64 exec, -1")
STAMP(5)

C("wo phase: wave = batch, rows = key splits")
OF = W; LS = W + 16; DA = W + 24
def io():
    A("buffer_load_dwordx4 %s, v%d, %s, s%d offen sc1" % (vr(LS, 4), vLSE, sr(sWS, 4), sLL))
    A("buffer_load_dwordx4 %s, v%d, %s, s%d offen sc1" % (vr(LS + 4, 4), vT + 6, sr(sWS, 4), sLL))
    for t in range(4):
        A("buffer_load_dwordx4 %s, v%d, %s, s%d offen offset:%d sc1" % (vr(OF + 4 * t, 4), vOLD, sr(sWS, 4), sOL, 512 * t))
A("s_cmp_lg_u32 s%d, 0" % sLAY)
A("s_cbranch_scc1 Lo_go")
C("first layer: wo tile landed -> fragments; every workgroup has announced its clears")
A("s_waitcnt vmcnt(2)")
STAMP(13)
A("s_mov_b32 s%d, %s" % (sT4, hx(SPIN)))
LB("Lap")
A("v_and_b32 v24, -8, v%d" % (FLG + 1))
A("v_cmp_ne_u32 vcc, s%d, v%d" % (sTG1, FLG))
A("v_cmp_ne_u32 %s, s%d, v24" % (sr(sH, 2), sTG2))
A("s_or_b64 vcc, vcc, %s" % sr(sH, 2))
A("s_cbranch_vccnz Lar")
LB("Lad")
lds_arrive(16, 24)
for i in range(2):
    A("v_lshlrev_b32 v%d, 16, v%d" % (W + 40 + 2 * i, RES + 2 + i))
    A("v_and_b32 v%d, 0xffff0000, v%d" % (W + 41 + 2 * i, RES + 2 + i))
for i in range(4): A("v_mov_b32 v%d, v%d" % (RES + i, W + 40 + i))
for ct in range(4): A("v_xor_b32 v%d, %d, v%d" % (W + 40 + ct, 32 * ct, vWT))
for ct in range(4): A("v_add_u32 v%d, %d, v%d" % (W + 40 + ct, L_WO, W + 40 + ct))
lds_spin(16, 4, 24)
STAMP(14)
for t in range(4):
    for ct in range(4):
        for hf in range(2):
            A("ds_read_b64_tr_b16 %s, v%d offset:%d" % (vr(WOF + 16 * ct + 4 * t + 2 * hf, 2), W + 40 + ct, 4096 * t + 512 * hf))
LB("Lo_go")
def pre_o(): A("s_waitcnt lgkmcnt(0)")
ool.append(["Lar:", "    s_lshl_b32 s%d, s%d, 10" % (sT5, sW), "    s_add_u32 s%d, s%d, %s" % (sT5, sT5, hx(FB)),
            "    buffer_load_dwordx4 %s, v%d, %s, s%d offen sc1" % (vr(FLG, 4), vL16, sr(sWS, 4), sT5),
            "    s_waitcnt vmcnt(0)", "    s_sub_u32 s%d, s%d, 1" % (sT4, sT4), "    s_cbranch_scc0 Lap", "    s_branch Lad"])
wo1 = [mf(DA + 4 * ct, OF + 4 * t, WOF + 16 * ct + 4 * t, None if t == 0 else DA + 4 * ct) for t in range(2) for ct in range(4)]
poll(io, list(range(LS, LS + 8)) + list(range(OF, OF + 16)), vT, pre_o, spec=wo1, tag=1)
STAMP(7)
va = ["v_max3_f32 v%d, v%d, v%d, v%d" % (vT, LS, LS + 1, LS + 2), "v_max3_f32 v%d, v%d, v%d, v%d" % (vT + 1, LS + 3, LS + 4, LS + 5),
      "v_max3_f32 v%d, v%d, v%d, v%d" % (vT, vT, LS + 6, LS + 7), "v_max_f32 v%d, v%d, v%d" % (vT, vT, vT + 1)]
va += ["v_sub_f32 v%d, v%d, v%d" % (LS + i, LS + i, vT) for i in range(4)]
va += ["v_exp_f32 v%d, v%d" % (LS + i, LS + i) for i in range(4)]
va += ["v_add_f32 v%d, v%d, v%d" % (vT, LS, LS + 1), "v_add_f32 v%d, v%d, v%d" % (vT + 1, LS + 2, LS + 3),
       "v_add_f32 v%d, v%d, v%d" % (vT, vT, vT + 1), "v_mov_b32 v%d, v%d" % (vT + 1, vT)]
for t in range(2, 4):
    for ct in range(4):
        mfma(DA + 4 * ct, OF + 4 * t, WOF + 16 * ct + 4 * t, DA + 4 * ct)
        for k in range(2): A(va.pop(0))
A("s_mov_b32 s%d, 0x55555555" % sT4)
A("s_mov_b32 s%d, 0x55555555" % sT5)
A("v_permlane16_swap_b32 v%d, v%d" % (vT, vT + 1))
A("v_mul_f32 v%d, v%d, v%d" % (DA, DA, LS))
A("v_add_f32 v%d, v%d, v%d" % (vT, vT, vT + 1))
A("v_mul_f32 v%d, v%d, v%d" % (DA + 4, DA + 4, LS))
A("v_rcp_f32 v%d, v%d" % (vT, vT))
A("v_mul_f32 v%d, v%d, v%d" % (DA + 8, DA + 8, LS))
for i in range(1, 4):
    for ct in range(3):
        A("v_fmac_f32 v%d, v%d, v%d" % (DA + 4 * ct, DA + 4 * ct + i, LS + i))
    if i == 1: A("v_mul_f32 v%d, v%d, v%d" % (DA + 12, DA + 12, LS))
for i in range(1, 4): A("v_fmac_f32 v%d, v%d, v%d" % (DA + 12, DA + 12 + i, LS + i))
A("v_permlane16_swap_b32 v%d, v%d" % (DA, DA + 4))
A("s_nop 0")
A("v_permlane16_swap_b32 v%d, v%d" % (DA + 8, DA + 12))
A("v_add_f32 v%d, v%d, v%d" % (DA, DA, DA + 4))
A("v_add_f32 v%d, v%d, v%d" % (DA + 8, DA + 8, DA + 12))
A("s_nop 1")
A("v_permlane32_swap_b32 v%d, v%d" % (DA, DA + 8))
A("v_mul_f32 v%d, v%d, v%d" % (DA, DA, vT))
A("s_cmp_lg_u32 s%d, 0" % sLAY)
A("s_nop 0")
A("v_mov_b32_dpp v%d, v%d quad_perm:[1,0,3,2] row_mask:0xf bank_mask:0xf" % (DA + 1, DA))
A("s_mov_b64 exec, %s" % sr(sT4, 2))
A("v_cvt_pk_bf16_f32 v%d, v%d, v%d" % (DA, DA, DA + 1))
A("buffer_store_dword v%d, v%d, %s, s%d offen sc1" % (DA, vPST, sr(sWS, 4), sPS))
A("s_mov_b64 exec, -1")
STAMP(8)
A("s_cbranch_scc1 Lfinal")

A("s_cmp_lg_u32 s%d, 0" % sW)
A("s_cbranch_scc1 Ltab")
C("stage 1 (wave 0): reduce 32 head partials of 64 outputs, add residual, publish x1 slice")
soff(sT1, [(sA, 15), (sC, 12)], PB)
soff(sT2, [(sA, 10), (sC, 7), (sJ, 17)], X1_OFF)
A("s_mov_b32 s%d, 0x00ff00ff" % sT4)
A("s_mov_b32 s%d, 0" % sT5)
A("s_waitcnt vmcnt(0)")
def ip():
    for i in range(4):
        A("buffer_load_dwordx4 %s, v%d, %s, s%d offen offset:%d sc1" % (vr(W + 4 * i, 4), vL16, sr(sWS, 4), sT1, 1024 * i))
poll(ip, range(W, W + 16), vT, spec=[mf(W + 16, SEL, W + 4 * i, None if i == 0 else W + 16) for i in range(4)], tag=2)
STAMP(9)
fastcmp()
NOP(6)
for i in range(4):
    A("v_add_f32_dpp v%d, v%d, v%d row_ror:8 row_mask:0xf bank_mask:0xf" % (W + 16 + i, W + 16 + i, W + 16 + i))
A("s_mov_b64 exec, %s" % sr(sT4, 2))
A("v_pk_add_f32 %s, %s, %s" % (vr(W + 16, 2), vr(W + 16, 2), vr(RES, 2)))
A("v_pk_add_f32 %s, %s, %s" % (vr(W + 18, 2), vr(W + 18, 2), vr(RES + 2, 2)))
A("v_cvt_pk_bf16_f32 v%d, v%d, v%d" % (W + 16, W + 16, W + 17))
A("v_cvt_pk_bf16_f32 v%d, v%d, v%d" % (W + 17, W + 18, W + 19))
store_local("buffer_store_dwordx2", vr(W + 16, 2), vX1S, sT2)
A("s_mov_b64 exec, -1")
LB("Ltabdone")
soff(sT3, [(sW, 10), (sJ, 17)], X1_OFF)
def ix():
    A("buffer_load_dwordx4 %s, v%d, %s, s%d offen sc1" % (vr(XR, 4), vL16, sr(sWS, 4), sT3))
wqf_reads()
def pre_x():
    A("ds_read_b32 v%d, v%d offset:20" % (vT + 2, vFL))
poll(ix, range(XR, XR + 4), vT, pre_x, spec=["s_waitcnt lgkmcnt(0)", "v_readfirstlane_b32 s%d, v%d" % (sT1, vT + 2)], tag=3)
A("s_cmp_lt_u32 s%d, 3" % sT1)
A("s_cbranch_scc1 Ltw")
LB("Ltwd")
STAMP(10)

LB("Lmix")
C("x <- x + g(LN(LN(x))) ; g is tabulated for every bf16 input in range, evaluated directly otherwise")
X = W; HB = W + 8; RT = W + 12; AD = W + 16; Y = W + 24
row_stats(XR, vT, X)
A("v_add_f32 v%d, %s, v%d" % (vT + 2, EPS, vT + 1))
A("v_rsq_f32 v%d, v%d" % (vT + 2, vT + 2))
A("v_mov_b32 v%d, %s" % (vT + 4, hx(LO2 | (LO2 << 16))))
A("v_mul_f32 v%d, v%d, v%d" % (vT + 1, vT + 1, vT + 2))
A("v_fmaak_f32 v%d, v%d, v%d, %s" % (vT + 1, vT + 1, vT + 2, EPS))
A("v_rsq_f32 v%d, v%d" % (vT + 1, vT + 1))
A("s_nop 0")
A("v_mul_f32 v%d, v%d, v%d" % (vT + 2, vT + 2, vT + 1))
A("v_mul_f32 v%d, v%d, v%d" % (vT + 3, vT, vT + 2))
for i in range(4):
    A("v_pk_fma_f32 %s, %s, %s, %s op_sel:[0,0,1] op_sel_hi:[1,0,1] neg_lo:[0,0,1] neg_hi:[0,0,1]" % (vr(AD + 2 * i, 2), vr(X + 2 * i, 2), vr(vT + 2, 2), vr(vT + 2, 2)))
for i in range(4):
    A("v_cvt_pk_bf16_f32 v%d, v%d, v%d" % (HB + i, AD + 2 * i, AD + 2 * i + 1))
for i in range(4):
    A("v_pk_lshlrev_b16 v%d, 1, v%d op_sel_hi:[0,1]" % (RT + i, HB + i))
    A("v_pk_lshrrev_b16 v%d, 15, v%d op_sel_hi:[0,1]" % (AD + i, HB + i))
for i in range(4):
    A("v_or_b32 v%d, v%d, v%d" % (RT + i, RT + i, AD + i))
for i in range(4):
    A("v_pk_sub_u16 v%d, v%d, v%d" % (RT + i, RT + i, vT + 4))
for i in range(4):
    A("v_lshlrev_b32_sdwa v%d, 2, v%d dst_sel:DWORD dst_unused:UNUSED_PAD src0_sel:DWORD src1_sel:WORD_0" % (AD + 2 * i, RT + i))
    A("v_lshlrev_b32_sdwa v%d, 2, v%d dst_sel:DWORD dst_unused:UNUSED_PAD src0_sel:DWORD src1_sel:WORD_1" % (AD + 2 * i + 1, RT + i))
    A("ds_read_b32 v%d, v%d offset:%d" % (Y + 2 * i, AD + 2 * i, L_TAB))
    A("ds_read_b32 v%d, v%d offset:%d" % (Y + 2 * i + 1, AD + 2 * i + 1, L_TAB))
A("v_max3_u32 v%d, v%d, v%d, v%d" % (vT, AD, AD + 1, AD + 2))
A("v_max3_u32 v%d, v%d, v%d, v%d" % (vT + 1, AD + 3, AD + 4, AD + 5))
A("v_max3_u32 v%d, v%d, v%d, v%d" % (vT, vT, AD + 6, AD + 7))
A("v_max_u32 v%d, v%d, v%d" % (vT, vT, vT + 1))
A("v_cmp_le_u32 vcc, %d, v%d" % (NENT * 4, vT))
A("s_cbranch_vccnz Lslow")
LB("Lslowdone")
A("s_cmp_lg_u32 s%d, 0" % sLAY)
for i in range(4):
    A("s_waitcnt lgkmcnt(%d)" % (6 - 2 * i))
    A("v_pk_add_f32 %s, %s, %s" % (vr(X + 2 * i, 2), vr(X + 2 * i, 2), vr(Y + 2 * i, 2)))
for i in range(4):
    A("v_cvt_pk_bf16_f32 v%d, v%d, v%d" % (XR + i, X + 2 * i, X + 2 * i + 1))
STAMP(11)
A("s_cbranch_scc1 Lout")
A("ds_write_b128 v%d, %s offset:%d" % (vXNW, vr(XR, 4), L_X2 - L_XN))
A("s_mov_b32 s%d, 1" % sLAY)
for s, d in [(sOL, O_OFF[1] - O_OFF[0]), (sOS, O_OFF[1] - O_OFF[0]), (sLL, LSE_OFF[1] - LSE_OFF[0]), (sLS, LSE_OFF[1] - LSE_OFF[0]), (sPS, P_L)]:
    A("s_add_u32 s%d, s%d, %d" % (s, s, d))
if DIAG: A("v_mov_b32 v28, v30")
A("s_branch Llnq")

LB("Lfinal")
A("s_cmp_ge_u32 s2, 4")
A("s_cbranch_scc1 Lfin_exit")
C("workgroup b: reduce the 32 head partials of row b, add x2, mixer, store")
soff(sT1, [(2, 15), (sW, 13)], PB + P_L)
A("s_add_u32 s%d, s%d, 4096" % (sT2, sT1))
A("s_mul_i32 s%d, s2, %d" % (sT0, XS))
A("s_lshl_b32 s%d, s%d, 8" % (sT3, sW))
A("s_add_u32 s%d, s%d, s%d" % (sT0, sT0, sT3))
A("s_add_u32 s%d, s%d, %d" % (sT0, sT0, L_X2))
A("v_add_u32 v%d, s%d, v%d" % (vT + 4, sT0, vX1S))
A("s_add_u32 s%d, s%d, %d" % (sT3, sT3, L_XN))
A("v_add_u32 v%d, s%d, v%d" % (vT + 5, sT3, vX1S))
A("ds_read_b64 %s, v%d" % (vr(PM, 2), vT + 4))
A("ds_read_b64 %s, v%d offset:128" % (vr(PM + 2, 2), vT + 4))
A("s_mov_b32 s%d, 0x00ff00ff" % sT4)
A("s_mov_b32 s%d, 0" % sT5)
A("s_waitcnt vmcnt(0) lgkmcnt(0)")
for i in range(4):
    A("v_lshlrev_b32 v%d, 16, v%d" % (PM + 4 + 2 * i, PM + i))
    A("v_and_b32 v%d, 0xffff0000, v%d" % (PM + 5 + 2 * i, PM + i))
def ifin():
    for i in range(8):
        A("buffer_load_dwordx4 %s, v%d, %s, s%d offen offset:%d sc1" % (vr(W + 4 * i, 4), vL16, sr(sWS, 4), sT1 if i < 4 else sT2, 1024 * (i & 3)))
fs = []
for i in range(4):
    fs.append(mf(W + 32, SEL, W + 4 * i, None if i == 0 else W + 32))
    fs.append(mf(W + 36, SEL, W + 16 + 4 * i, None if i == 0 else W + 36))
poll(ifin, range(W, W + 32), vT, spec=fs, tag=2)
STAMP(9)
NOP(7)
for i in range(8):
    A("v_add_f32_dpp v%d, v%d, v%d row_ror:8 row_mask:0xf bank_mask:0xf" % (W + 32 + i, W + 32 + i, W + 32 + i))
A("s_mov_b64 exec, %s" % sr(sT4, 2))
for i in range(4):
    A("v_pk_add_f32 %s, %s, %s" % (vr(W + 32 + 2 * i, 2), vr(W + 32 + 2 * i, 2), vr(PM + 4 + 2 * i, 2)))
for i in range(4):
    A("v_cvt_pk_bf16_f32 v%d, v%d, v%d" % (W + 32 + i, W + 32 + 2 * i, W + 33 + 2 * i))
A("ds_write_b64 v%d, %s" % (vT + 5, vr(W + 32, 2)))
A("ds_write_b64 v%d, %s offset:128" % (vT + 5, vr(W + 34, 2)))
A("s_mov_b64 exec, -1")
A("s_cmp_lg_u32 s%d, 0" % sW)
A("s_waitcnt lgkmcnt(0)")
A("s_barrier")
A("s_cbranch_scc1 Lfin_exit")
A("ds_read_b128 %s, v%d" % (vr(XR, 4), vXNW))
A("s_waitcnt lgkmcnt(0)")
STAMP(10)
A("s_branch Lmix")
LB("Lout")
A("s_lshl_b32 s%d, s2, 10" % sT0)
A("buffer_store_dwordx4 %s, v%d, %s, s%d offen" % (vr(XR, 4), vL16, sr(sOUT, 4), sT0))
A("s_cmp_lg_u32 s2, 0")
A("s_cbranch_scc1 Lfin_exit")
A("v_mov_b32 v16, s%d" % sTG1)
A("v_mov_b32 v17, %s" % hx(EPO))
A("s_mov_b64 exec, 1")
A("buffer_store_dword v16, v17, %s, 0 offen sc1" % sr(sWS, 4))
A("s_mov_b64 exec, -1")
if DBL:
    A("s_waitcnt vmcnt(0)")
    A("s_memrealtime s[10:11]")
    A("s_waitcnt lgkmcnt(0)")
    A("s_sub_u32 s12, s10, s98")
    if "pad" in OPT:
        A("s_mov_b32 s10, s98"); A("s_mov_b32 s12, %d" % (100 * int(OPT["pad"])))
    LB("Ldbl")
    A("s_memrealtime s[14:15]")
    A("s_waitcnt lgkmcnt(0)")
    A("s_sub_u32 s13, s14, s10")
    A("s_cmp_lt_u32 s13, s12")
    A("s_cbranch_scc1 Ldbl")
LB("Lfin_exit")
if TOT:
    A("s_waitcnt vmcnt(0)")
    A("s_memrealtime s[10:11]")
    A("s_waitcnt lgkmcnt(0)")
    A("v_mov_b32 v16, s98")
    A("v_mov_b32 v17, s10")
    soff(sT2, [(2, 5), (sW, 3)], STB)
    A("v_mov_b32 v18, 0")
    A("s_mov_b64 exec, 1")
    A("buffer_store_dwordx2 v[16:17], v18, %s, s%d offen" % (sr(sWS, 4), sT2))
if DIAG:
    A("s_waitcnt vmcnt(0)")
    STAMP(12)
    if DIAG == 2:
        A("s_or_b32 s%d, s2, s%d" % (sT0, sW))
        A("s_cmp_lg_u32 s%d, 0" % sT0)
        A("s_cbranch_scc1 Lend")
        A("v_readlane_b32 s%d, v28, 0" % sT2)
        for k, (r, i) in enumerate([(31, 10), (31, 12), (28, 1), (28, 2), (28, 6), (28, 5), (28, 7), (28, 8), (28, 9), (28, 10), (28, 11), (30, 3), (30, 5), (30, 8), (30, 9), (30, 12)]):
            A("v_readlane_b32 s%d, v%d, %d" % (sT3, r, i))
            A("s_sub_u32 s%d, s%d, s%d" % (sT3, sT3, sT2))
            A("s_nop 0")
            A("v_writelane_b32 v17, s%d, %d" % (sT3, k))
        A("v_lshlrev_b32 v16, 2, v%d" % vLANE)
        A("s_mov_b64 exec, 0xffff")
        A("global_store_dword v16, v17, s[100:101]")
        A("s_endpgm")
    soff(sT1, [(2, 10), (sW, 7)], STB)
    A("v_lshlrev_b32 v16, 2, v%d" % vLANE)
    A("s_mov_b64 exec, 0xffff")
    A("buffer_store_dword v28, v16, %s, s%d offen" % (sr(sWS, 4), sT1))
    A("buffer_store_dword v30, v16, %s, s%d offen offset:64" % (sr(sWS, 4), sT1))
    A("s_add_u32 s%d, s%d, 0x40000" % (sT1, sT1))
    A("buffer_store_dword v31, v16, %s, s%d offen" % (sr(sWS, 4), sT1))
LB("Lend")
A("s_endpgm")

LB("Ltab")
C("waves 1..3: gather the g(h) table into LDS")
NTL = -(-NENT * 4 // 3 // 1024)
A("s_sub_u32 s%d, s%d, 1" % (sT1, sW))
A("s_mul_i32 s%d, s%d, %d" % (sT1, sT1, NTL * 1024))
A("s_min_u32 s%d, s%d, %d" % (sT1, sT1, NENT * 4 - NTL * 1024))
A("v_add_u32 v%d, s%d, v%d" % (vT + 4, sT1, vL16))
A("s_add_u32 s%d, s%d, %s" % (sT1, sT1, hx(TB)))
A("s_add_u32 s%d, s%d, 4096" % (sT2, sT1))
def it():
    for i in range(NTL):
        A("buffer_load_dwordx4 %s, v%d, %s, s%d offen offset:%d sc1" % (vr(W + 4 * i, 4), vL16, sr(sWS, 4), sT1 if i < 4 else sT2, 1024 * (i & 3)))
poll(it, range(W, W + 4 * NTL), vT, back="s_sleep 16")
for i in range(NTL):
    A("ds_write_b128 v%d, %s offset:%d" % (vT + 4, vr(W + 4 * i, 4), L_TAB + 1024 * i))
A("s_waitcnt lgkmcnt(0)")
lds_arrive(20, vT + 4)
STAMP(9)
A("s_branch Ltabdone")
LB("Ltw")
lds_spin(20, 3, vT + 2)
A("s_branch Ltwd")

LB("Lslow")
C("rare: some h lies outside the table -> evaluate g(h) directly for those lanes")
RW1 = [W + 32 + i for i in range(14)]
RB1 = [PM + i for i in range(14)]
RW2 = [16 + i for i in range(10)] + [W + 46, W + 47, PM + 14, PM + 15]
A("v_lshlrev_b32 v26, 3, v%d" % vLANE)
A("s_load_dword s%d, %s, 0" % (sB2, sr(sB2P, 2)))
for (d4, d2, s) in [([W + 32, W + 36, W + 40], W + 44, sW1), ([PM, PM + 4, PM + 8], PM + 12, sB1)]:
    for k in range(3):
        A("buffer_load_dwordx4 %s, v%d, %s, 0 offen offset:%d" % (vr(d4[k], 4), vL16, sr(s, 4), 1024 * k))
    A("buffer_load_dwordx2 %s, v26, %s, 0 offen offset:3072" % (vr(d2, 2), sr(s, 4)))
A("buffer_load_dwordx4 v[16:19], v%d, %s, 0 offen" % (vL16, sr(sW2, 4)))
A("buffer_load_dwordx4 v[20:23], v%d, %s, 0 offen offset:1024" % (vL16, sr(sW2, 4)))
A("buffer_load_dwordx2 v[24:25], v%d, %s, 0 offen offset:2048" % (vL16, sr(sW2, 4)))
A("buffer_load_dwordx2 %s, v%d, %s, 0 offen offset:2056" % (vr(W + 46, 2), vL16, sr(sW2, 4)))
A("buffer_load_dwordx2 %s, v26, %s, 0 offen offset:3072" % (vr(PM + 14, 2), sr(sW2, 4)))
A("s_waitcnt vmcnt(0) lgkmcnt(0)")
A("s_lshl_b32 s%d, s%d, 16" % (sB2, sB2))
for e in range(8):
    A("v_cmp_le_u32 vcc, %d, v%d" % (NENT * 4, AD + e))
    A("s_mov_b64 %s, vcc" % sr(sH2, 2))
    LB("Lse%d" % e)
    A("s_cmp_eq_u64 %s, 0" % sr(sH2, 2))
    A("s_cbranch_scc1 Lsf%d" % e)
    A("s_ff1_i32_b64 s%d, %s" % (sT0, sr(sH2, 2)))
    A("s_bitset0_b64 %s, s%d" % (sr(sH2, 2), sT0))
    A("s_mov_b32 m0, s%d" % sT0)
    A("v_readlane_b32 s%d, v%d, s%d" % (sH, HB + (e >> 1), sT0))
    if e & 1: A("s_and_b32 s%d, s%d, 0xffff0000" % (sH, sH))
    else: A("s_lshl_b32 s%d, s%d, 16" % (sH, sH))
    A("s_call_b64 %s, Lgev" % sr(sRET, 2))
    A("v_writelane_b32 v%d, s%d, m0" % (Y + e, sY))
    A("s_branch Lse%d" % e)
    LB("Lsf%d" % e)
for i in range(16): A("v_mov_b32 v%d, 0" % (PM + i))
A("s_branch Lslowdone")
LB("Lgev")
a, u, t1, z = RES, RES + 1, RES + 2, RT
A("v_mov_b32 v%d, 0" % a)
A("v_mov_b32 v%d, %s" % (RT + 1, hx(f2u(K0))))
A("v_mov_b32 v%d, %s" % (RT + 2, hx(f2u(K1))))
for p in range(14):
    for hf in range(2):
        def un(d, s):
            if hf == 0: A("v_lshlrev_b32 v%d, 16, v%d" % (d, s))
            else: A("v_and_b32 v%d, 0xffff0000, v%d" % (d, s))
        un(u, RW1[p]); un(t1, RB1[p]); un(z, RW2[p])
        A("v_fma_f32 v%d, v%d, s%d, v%d" % (u, u, sH, t1))
        A("v_mul_f32 v%d, v%d, v%d" % (t1, u, u))
        A("v_fma_f32 v%d, v%d, v%d, v%d" % (t1, t1, RT + 2, RT + 1))
        A("v_mul_f32 v%d, v%d, v%d" % (t1, t1, u))
        A("v_exp_f32 v%d, v%d" % (t1, t1))
        A("v_mul_f32 v%d, v%d, v%d" % (z, z, u))
        A("v_add_f32 v%d, 1.0, v%d" % (t1, t1))
        A("v_rcp_f32 v%d, v%d" % (t1, t1))
        A("s_nop 0")
        A("v_fmac_f32 v%d, v%d, v%d" % (a, z, t1))
A("v_mov_b32 v%d, v%d" % (u, a))
A("s_nop 1")
wave_sum2(a, u, sY, sT1)
A("s_nop 1")
A("v_mov_b32 v%d, s%d" % (a, sY))
A("v_cvt_pk_bf16_f32 v%d, v%d, v%d" % (a, a, a))
A("v_and_b32 v%d, 0xffff0000, v%d" % (a, a))
A("v_add_f32 v%d, s%d, v%d" % (a, sB2, a))
A("v_cvt_pk_bf16_f32 v%d, v%d, v%d" % (a, a, a))
A("v_and_b32 v%d, 0xffff0000, v%d" % (a, a))
A("s_nop 0")
A("v_readfirstlane_b32 s%d, v%d" % (sY, a))
A("s_nop 3")
A("s_setpc_b64 %s" % sr(sRET, 2))

for b in ool: L += b
A("s_endpgm")
L.append(".p2align 8")
L.append(".fill (16640 - (. - %s_kernel)) / 4, 4, 0xBF800000" % NAME)
L.append('''.section .rodata,"a"
.p2align 6
.amdhsa_kernel %s_kernel
  .amdhsa_next_free_vgpr 256
  .amdhsa_next_free_sgpr 102
  .amdhsa_accum_offset 256
  .amdhsa_group_segment_fixed_size 0
  .amdhsa_kernarg_size 104
  .amdhsa_user_sgpr_count 2
  .amdhsa_user_sgpr_kernarg_segment_ptr 1
  .amdhsa_system_sgpr_workgroup_id_x 1
.end_amdhsa_kernel''' % NAME)
open(OUTF, "w").write("\n".join(x for x in L if x is not None) + "\n")
print("wrote", OUTF, "lines", len(L), "LDS", LDS_SZ)
```

```python
import sys, struct, math

NAME = "interleave_layers__sliding_block_cached__mixer_token_mlp__decode"
OUTF = sys.argv[1] if len(sys.argv) > 1 else "cdna_kernels/%s.s" % NAME
DIAG = int(sys.argv[2]) if len(sys.argv) > 2 else 0
DBL = 0
if DIAG == 3: DIAG = 0; DBL = 1
TOT = 0
if DIAG == 4: DIAG = 0; TOT = 1
OPT = dict(a.split("=") for a in sys.argv[3:])
DEPTH = int(OPT.get("depth", 8))
D0 = int(OPT.get("d0", 3))
D1 = int(OPT.get("d1", 4))
DC = int(OPT.get("dc", 4))
TAILI = int(OPT.get("taili", 11))
TAILD = int(OPT.get("taild", 8))
QV = int(OPT.get("qv", 3))
PRET = int(OPT.get("pret", 1))
GW = int(OPT.get("gw", 1))
GPRE = int(OPT.get("gpre", 0))
GGAP = int(OPT.get("ggap", -1))
WARM = int(OPT.get("warm", 1))
QPRE = int(OPT.get("qpre", -1)); QGAP = int(OPT.get("qgap", -1))
OPRE = int(OPT.get("opre", -1)); OGAP = int(OPT.get("ogap", -1))
XPRE = int(OPT.get("xpre", -1)); XGAP = int(OPT.get("xgap", -1))
FINE = OPT.get("fine", "")
QS = int(OPT.get("qs", 0))
QT = int(OPT.get("qt", 0))
DRY = int(OPT.get("dry", 0))
HP = int(OPT.get("hp", 0))
NOCT = int(OPT.get("noct", 16))
QPOS = int(OPT.get("qpos", 1))
QPOS2 = int(OPT.get("qpos2", 7))

def f2u(x): return struct.unpack("<I", struct.pack("<f", x))[0]
def hx(x): return "0x%08x" % (x & 0xffffffff)

L = []
def A(s): L.append("    " + s)
def LB(s): L.append(s + ":")
def C(s): L.append("    ; " + s)
def vr(a, n): return "v[%d:%d]" % (a, a + n - 1)
def sr(a, n): return "s[%d:%d]" % (a, a + n - 1)
def NOP(n):
    while n > 0:
        k = min(n, 16); A("s_nop %d" % (k - 1)); n -= k

ELO = 132 - NOCT if NOCT == 24 else 130 - NOCT
LO2 = (ELO << 7) * 2
NENT = NOCT * 256
EPW = NENT // 256 // 4 // 2
GRS = 0x20000
O_OFF = [0x0000, 0xC400]; LSE_OFF = [0x8000, 0x14400]; Q1_OFF = 0x8400; X1_OFF = 0x14600
CLRA_PER = 1040
CLRB_OFF = 0x8400; CLRB_PER = 1680
Q0_OFF = 0x18000
EPO = 0x17f00
PB = 0x100000; P_L = 0x20000
TB = 0x140000; FB = 0x148000
QB_DELTA = 0x180000
STB = 0x300000
WS_SZ = 0x400000
L_TAB = 0
L_WQ = 24576; L_K = L_WQ + 16384; L_V = L_K + 32768; L_WO = L_V + 32768
L_XN = L_WO + 16384; XS = 1056
L_X2 = L_XN + 4 * XS
L_FLG = L_X2 + 4 * XS
L_RB = L_K; RBS = 2048 + 64; L_ML = L_K + 4 * RBS
L_QF = L_X2
LDS_SZ = int(OPT.get("lds", L_FLG + 64))
SPIN = 0x40000
K0 = -2.0 * math.sqrt(2.0 / math.pi) * math.log2(math.e)
K1 = K0 * 0.044715
EPS = hx(f2u(1e-5))

sTG1, sTG2 = 0, 1
sW, sJ, sA, sC, sGR, sLAY, sFAST = 3, 4, 5, 6, 7, 8, 9
sT0, sT1, sT2, sT3, sT4, sT5 = 10, 11, 12, 13, 14, 15
sCNT = 16
sQL, sQS, sOL, sOS, sLL, sLS, sPS = 17, 18, 19, 20, 21, 22, 23
sSC, sIT = 24, 25
sSUM, sSQ = 26, 27
sH, sH2, sRET, sMSK = 28, 30, 32, 34
sB2, sY, sXCC, sE = 36, 37, 38, 39
sB2P = 40
sK, sV, sWQ, sWO, sWS, sX, sOUT, sW1, sB1, sW2 = 44, 48, 52, 56, 60, 64, 68, 72, 76, 80
sKO, sKL, sVO, sVL = 84, 85, 86, 87
sPM = 88
sHC, sHT = 84, 85

def STAMP(i):
    if DIAG:
        A("s_memrealtime s[42:43]"); A("s_waitcnt lgkmcnt(0)")
        A("v_writelane_b32 v30, s42, %d" % i)

def CST(i):
    if DIAG == 1 and FINE:
        A("s_memtime s[42:43]"); A("s_waitcnt lgkmcnt(0)")
        A("v_writelane_b32 v31, s42, %d" % i)

vLANE = 1
vL16, vQST, vOST, vOLD, vPST, vX1S, vXNW, vXNR, vRBW, vRBR, vMLW, vMLR, vLSE, vZ = range(2, 16)
vT = 16
vWT, vFL = 28, 29
vLS2 = 27
KF, VF, WQF, WOF, SEL, ONES = 32, 64, 96, 112, 176, 180
W = 184
PM = 232
XR = 248
RES = 252

def srd(s, nbytes):
    A("s_mov_b32 s%d, %s" % (s + 2, hx(nbytes))); A("s_mov_b32 s%d, 0x00020000" % (s + 3))

def soff(dst, terms, const):
    first = True
    for (src, sh) in terms:
        if first: A("s_lshl_b32 s%d, s%d, %d" % (dst, src, sh)); first = False
        else:
            A("s_lshl_b32 s%d, s%d, %d" % (sT0, src, sh)); A("s_add_u32 s%d, s%d, s%d" % (dst, dst, sT0))
    if const: A("s_add_u32 s%d, s%d, %s" % (dst, dst, hx(const)))

def wave_sum2(a, b, sa, sb):
    for ctl in ["row_ror:8", "row_ror:4", "row_ror:2", "row_ror:1"]:
        A("v_add_f32_dpp v%d, v%d, v%d %s row_mask:0xf bank_mask:0xf" % (a, a, a, ctl))
        A("v_add_f32_dpp v%d, v%d, v%d %s row_mask:0xf bank_mask:0xf" % (b, b, b, ctl))
        A("s_nop 0")
    for ctl in ["row_bcast:15 row_mask:0xa", "row_bcast:31 row_mask:0xc"]:
        A("v_add_f32_dpp v%d, v%d, v%d %s bank_mask:0xf" % (a, a, a, ctl))
        A("v_add_f32_dpp v%d, v%d, v%d %s bank_mask:0xf" % (b, b, b, ctl))
        A("s_nop 0")
    A("v_readlane_b32 s%d, v%d, 63" % (sa, a))
    A("v_readlane_b32 s%d, v%d, 63" % (sb, b))

def row_stats(x, t, unp):
    A("v_dot2_f32_bf16 v%d, v%d, v%d, 0" % (t, x, ONES))
    A("v_dot2_f32_bf16 v%d, v%d, v%d, 0" % (t + 1, x, x))
    for i in range(1, 4):
        A("v_dot2_f32_bf16 v%d, v%d, v%d, v%d" % (t, x + i, ONES, t))
        A("v_dot2_f32_bf16 v%d, v%d, v%d, v%d" % (t + 1, x + i, x + i, t + 1))
    un = []
    for i in range(4):
        un.append("v_lshlrev_b32 v%d, 16, v%d" % (unp + 2 * i, x + i))
        un.append("v_and_b32 v%d, 0xffff0000, v%d" % (unp + 2 * i + 1, x + i))
    for k in range(3): A(un.pop(0))
    a, b = t, t + 1
    for ctl in ["row_ror:8 row_mask:0xf", "row_ror:4 row_mask:0xf", "row_ror:2 row_mask:0xf", "row_ror:1 row_mask:0xf", "row_bcast:15 row_mask:0xa", "row_bcast:31 row_mask:0xc"]:
        A("v_add_f32_dpp v%d, v%d, v%d %s bank_mask:0xf" % (a, a, a, ctl))
        A("v_add_f32_dpp v%d, v%d, v%d %s bank_mask:0xf" % (b, b, b, ctl))
        A(un.pop(0) if un else "s_nop 0")
    A("v_readlane_b32 s%d, v%d, 63" % (sSUM, a))
    A("v_readlane_b32 s%d, v%d, 63" % (sSQ, b))
    A("s_nop 0")
    A("v_mul_f32 v%d, s%d, v%d" % (t, sSUM, vZ))
    A("v_mul_f32 v%d, s%d, v%d" % (t + 1, sSQ, vZ))
    A("v_fma_f32 v%d, -v%d, v%d, v%d" % (t + 1, t, t, t + 1))
    A("v_max_f32 v%d, 0, v%d" % (t + 1, t + 1))

ool = []
uid = [0]
def maxtree(regs, tmp):
    r = list(regs); out = []
    out.append("v_max3_u32 v%d, v%d, v%d, v%d" % (tmp, r[0], r[1], r[2])); r = r[3:]
    if len(r) >= 5:
        out.append("v_max3_u32 v%d, v%d, v%d, v%d" % (tmp + 1, r[0], r[1], r[2])); r = r[3:]
        d = 0
        while len(r) >= 2:
            out.append("v_max3_u32 v%d, v%d, v%d, v%d" % (tmp + d, tmp + d, r[0], r[1])); r = r[2:]; d ^= 1
        if r: out.append("v_max3_u32 v%d, v%d, v%d, v%d" % (tmp, tmp, tmp + 1, r[0]))
        else: out.append("v_max_u32 v%d, v%d, v%d" % (tmp, tmp, tmp + 1))
    else:
        while len(r) >= 2:
            out.append("v_max3_u32 v%d, v%d, v%d, v%d" % (tmp, tmp, r[0], r[1])); r = r[2:]
        if r: out.append("v_max_u32 v%d, v%d, v%d" % (tmp, tmp, r[0]))
    return out

def poll(issue, regs, tmp, pre_wait=None, spec=None, back="s_nop 7", tag=None, stub=None):
    uid[0] += 1; u = uid[0]
    A("s_mov_b32 s%d, %s" % (sCNT, hx(SPIN)))
    LB("Lp%d" % u)
    issue()
    if pre_wait: pre_wait()
    A("s_waitcnt vmcnt(0)")
    mt = maxtree(regs, tmp) + ["v_cmp_eq_u32 vcc, -1, v%d" % tmp]
    spec = list(spec or [])
    ns = len(spec)
    per = -(-len(mt) // ns) if ns else 0
    for s in spec:
        A(s)
        for k in range(per):
            if mt: A(mt.pop(0))
    for m in mt: A(m)
    A("s_cbranch_vccz Ld%d" % u)
    A("s_sub_u32 s%d, s%d, 1" % (sCNT, sCNT))
    if back != "s_nop 7": A(back)
    A("s_cbranch_scc0 Lp%d" % u)
    if stub: touch_stub(stub)
    LB("Ld%d" % u)
    if DIAG and tag is not None:
        A("s_lshl_b32 m0, s%d, 2" % sLAY); A("s_add_u32 m0, m0, %d" % tag); A("s_nop 0")
        A("v_writelane_b32 v31, s%d, m0" % sCNT)

stubs = []
def touch_stub(name, branch_over=None):
    A("s_branch Lsk_%s" % name)
    L.append(".p2align 6")
    LB("Lst_%s" % name)
    A("s_setpc_b64 %s" % sr(sRET, 2))
    LB("Lsk_%s" % name)
    stubs.append(name)

def delay(cyc):
    if cyc == -1:
        A("s_waitcnt vmcnt(0)"); return
    while cyc >= 64:
        k = min(cyc // 64, 15); A("s_sleep %d" % k); cyc -= 64 * k
    if cyc >= 8: A("s_nop %d" % min(15, cyc // 4 - 1))

def ppoll(issue, regs, n, tmp, spec, pre=0, gap=128, mid=None, tag=None, fix=None, stub=None, lanes=None):
    uid[0] += 1; u = uid[0]
    def look(k):
        out = ["s_waitcnt vmcnt(%d)" % (n if k == 0 else 0)]
        mt = maxtree(regs(k), tmp) + ["v_cmp_eq_u32 vcc, -1, v%d" % tmp]
        sp = list(spec(k)); per = -(-len(mt) // len(sp)) if sp else 0
        for x in sp:
            out.append(x)
            for _ in range(per):
                if mt: out.append(mt.pop(0))
        return out + mt + (["s_and_b64 vcc, vcc, %s" % sr(lanes, 2)] if lanes else [])
    A("s_mov_b32 s%d, %s" % (sCNT, hx(SPIN)))
    delay(pre)
    fine = FINE and tag == int(FINE)
    if fine: CST(8)
    LB("Lp%d" % u)
    issue(0)
    if fine and 0: CST(9)
    if mid: mid()
    if gap >= 0: delay(gap)
    if gap >= 0: issue(1)
    lk = look(0)
    if gap < 0: lk[0] = "s_waitcnt vmcnt(0)"
    for k, x in enumerate(lk):
        A(x)
        if fine and k == 0: CST(13)
    if fine: CST(14)
    A("s_cbranch_vccz Ld%d" % u)
    if gap < 0: issue(1)
    A("s_sub_u32 s%d, s%d, 1" % (sCNT, sCNT))
    for x in look(1): A(x)
    for x in (fix or []): A(x)
    A("s_cbranch_vccz Ld%d" % u)
    A("s_sub_u32 s%d, s%d, 1" % (sCNT, sCNT))
    A("s_cmp_gt_i32 s%d, 0" % sCNT)
    A("s_cbranch_scc1 Lp%d" % u)
    if stub: touch_stub(stub)
    LB("Ld%d" % u)
    if fine: CST(15)
    if DIAG and tag is not None:
        A("s_lshl_b32 m0, s%d, 2" % sLAY); A("s_add_u32 m0, m0, %d" % tag); A("s_nop 0")
        A("v_writelane_b32 v31, s%d, m0" % sCNT)

def lds_spin(off, target, tmp, mask=None, sleep=0):
    uid[0] += 1; u = uid[0]
    A("s_mov_b32 s%d, %s" % (sT2, hx(SPIN * 4)))
    LB("Ls%d" % u)
    A("ds_read_b32 v%d, v%d offset:%d" % (tmp, vFL, off))
    A("s_waitcnt lgkmcnt(0)")
    A("v_readfirstlane_b32 s%d, v%d" % (sT1, tmp))
    if mask: A("s_and_b32 s%d, s%d, %d" % (sT0, sT1, mask))
    A("s_cmp_ge_u32 s%d, %d" % (sT0 if mask else sT1, target))
    A("s_cbranch_scc1 Lt%d" % u)
    if sleep: A("s_sleep %d" % sleep)
    A("s_sub_u32 s%d, s%d, 1" % (sT2, sT2))
    A("s_cbranch_scc0 Ls%d" % u)
    LB("Lt%d" % u)

def lds_arrive(off, tmp, val=1):
    if val is not None: A("v_mov_b32 v%d, %d" % (tmp, val))
    A("s_mov_b64 exec, 1")
    A("ds_add_u32 v%d, v%d offset:%d" % (vFL, tmp, off))
    A("s_mov_b64 exec, -1")

def store_local(op, data, vaddr, so):
    uid[0] += 1; u = uid[0]
    A("s_cbranch_scc1 Lw%d" % u)
    A("%s %s, v%d, %s, s%d offen" % (op, data, vaddr, sr(sWS, 4), so))
    LB("Lx%d" % u)
    ool.append(["Lw%d:" % u, "    %s %s, v%d, %s, s%d offen sc1" % (op, data, vaddr, sr(sWS, 4), so), "    s_branch Lx%d" % u])
def fastcmp(): A("s_cmp_eq_u32 s%d, 0" % sFAST)

def mf(d, a, b, c):
    return "v_mfma_f32_16x16x32_bf16 %s, %s, %s, %s" % (vr(d, 4), vr(a, 4), vr(b, 4), "0" if c is None else vr(c, 4))
def mfma(d, a, b, c): A(mf(d, a, b, c))

def tags():
    A("s_add_u32 s%d, s%d, 1" % (sTG1, sE))
    A("s_mul_i32 s%d, s%d, 0x9E3779B1" % (sTG2, sTG1))
    A("s_and_b32 s%d, s%d, -8" % (sTG2, sTG2))

def common_addr():
    A("v_and_b32 v18, 3, v%d" % vLANE)
    A("v_lshlrev_b32 v%d, 12, v17" % vQST)
    A("v_lshrrev_b32 v24, 1, v16")
    A("v_lshl_add_u32 v%d, v24, 8, v%d" % (vQST, vQST))
    A("v_and_b32 v24, 1, v16")
    A("v_lshl_add_u32 v%d, v24, 3, v%d" % (vQST, vQST))
    A("v_lshlrev_b32 v%d, 4, v24" % vLSE)
    A("s_mul_i32 s%d, s%d, %d" % (sT0, sW, XS))
    A("s_add_u32 s%d, s%d, %d" % (sT0, sT0, L_XN))
    A("v_add_u32 v%d, s%d, v%d" % (vXNW, sT0, vL16))
    A("s_lshl_b32 s%d, s%d, 8" % (sT0, sA))
    A("s_add_u32 s%d, s%d, %d" % (sT0, sT0, L_XN))
    A("v_mul_u32_u24 v25, %d, v18" % XS)
    A("v_lshl_add_u32 v25, v16, 4, v25")
    A("v_add_u32 v%d, s%d, v25" % (vXNR, sT0))
    A("v_mov_b32 v%d, %s" % (vZ, hx(f2u(1.0 / 512))))
    for r in range(4): A("v_mov_b32 v%d, 0x3f803f80" % (ONES + r))
    A("s_and_b32 s%d, s%d, 1" % (sT1, sC))
    A("s_lshr_b32 s%d, s%d, 1" % (sT2, sC))
    soff(sQS, [(sT1, 11), (sW, 9), (sA, 6), (sT2, 4)], 0)
    A("v_bfe_u32 v24, v%d, 2, 2" % vLANE)
    A("v_lshl_add_u32 v24, v16, 3, v24")
    A("v_lshlrev_b32 v24, 7, v24")
    A("v_bfe_u32 v25, v%d, 3, 2" % vLANE)
    A("v_lshlrev_b32 v25, 1, v25")
    A("v_bfe_u32 v26, v%d, 1, 1" % vLANE)
    A("v_xor_b32 v25, v25, v26")
    A("v_lshl_add_u32 v24, v25, 4, v24")
    A("v_and_b32 v26, 1, v%d" % vLANE)
    A("v_lshl_add_u32 v%d, v26, 3, v24" % vWT)
    A("s_mov_b32 s%d, 0x000f000f" % sMSK)
    A("s_mov_b32 s%d, 0x000f000f" % (sMSK + 1))
    A("s_mov_b32 s%d, 0" % sLAY)

def wtile_voff(shift, d):
    A("v_lshrrev_b32 v24, 3, v%d" % vLANE)
    A("v_and_b32 v25, 7, v%d" % vLANE)
    A("v_and_b32 v26, 1, v16")
    A("v_lshlrev_b32 v26, 1, v26")
    A("v_xor_b32 v25, v25, v26")
    A("v_lshlrev_b32 v25, 4, v25")
    A("v_lshl_add_u32 v%d, v24, %d, v25" % (d, shift))
    A("v_xor_b32 v%d, 64, v%d" % (d + 1, d))

def wqf_reads():
    A("s_lshl_b32 s%d, s%d, 5" % (sT1, sW))
    A("v_xor_b32 v26, s%d, v%d" % (sT1, vWT))
    for t in range(4):
        for hf in range(2):
            A("ds_read_b64_tr_b16 %s, v26 offset:%d" % (vr(WQF + 4 * t + 2 * hf, 2), L_WQ + 4096 * t + 512 * hf))

def dma(vaddr, srdn, so, lds_s, step_so, flags="nt"):
    A("s_mov_b32 m0, s%d" % lds_s)
    A("s_add_u32 s%d, s%d, 1024" % (lds_s, lds_s))
    A("buffer_load_dwordx4 v%d, %s, s%d offen %s lds" % (vaddr, sr(srdn, 4), so, flags))
    A("s_add_u32 s%d, s%d, %d" % (so, so, step_so))

hdr = open("cdna_kernels/%s.s.ref" % NAME).read().split("; Override launch")[0]
L.append(hdr.rstrip("\n"))
L.append("; @launch grid=(256,1,1) block=(512,1,1) lds=%d" % LDS_SZ)
L.append('.amdgcn_target "amdgcn-amd-amdhsa--gfx950"')
L.append(".text\n.globl %s_kernel\n.p2align 8\n.type %s_kernel,@function\n%s_kernel:" % (NAME, NAME, NAME))
if DIAG: A("s_memrealtime s[42:43]")
if DBL or TOT: A("s_memrealtime s[98:99]")
sM = 96
A("s_lshr_b32 s%d, s2, 8" % sT0)
A("s_cbranch_scc1 Lend")
A("s_load_dwordx2 %s, s[0:1], 24" % sr(sWQ, 2))
A("s_load_dwordx4 %s, s[0:1], 0" % sr(sT2, 4))
A("v_readfirstlane_b32 s%d, v0" % sW)
C("every wave pulls one line of this kernel's code into L2 (plain read): 32 workgroups x 4 lines")
A("s_getpc_b64 s[10:11]")
LB("Lpc0")
A("s_lshr_b32 s%d, s2, 3" % sM)
A("s_lshl_b32 s%d, s%d, 9" % (sCNT, sM))
A("s_cmp_lg_u32 s%d, 0" % sW)
A("s_cbranch_scc1 Lnopf")
A("v_and_b32 v19, 3, v0")
A("v_lshl_add_u32 v19, v19, 7, s%d" % sCNT)
A("global_load_dword v%d, v19, s[10:11]" % (W + 8))
LB("Lnopf")
A("s_and_b32 s%d, s2, 7" % sJ)
A("s_lshr_b32 s%d, s2, 6" % sA)
A("s_and_b32 s%d, s%d, 7" % (sC, sM))
A("s_lshl_b32 s%d, 1, 17" % (sWQ + 3))
A("s_bitcmp1_b32 s%d, 8" % sW)
A("s_cbranch_scc0 Lmain0")
vKA, vVA = W + 40, W + 44
def kv_issue(i):
    if i < 8: dma(vKA + (i & 3), sK, sKO, sKL, 1024)
    else: dma(vVA + (i & 1), sV, sVO, sVL, 1024)
def lane_init():
    A("v_and_b32 v%d, 63, v0" % vLANE)
    A("v_mov_b32 v%d, %d" % (vFL, L_FLG))
    A("v_lshlrev_b32 v%d, 4, v%d" % (vL16, vLANE))
    A("v_lshrrev_b32 v16, 4, v%d" % vLANE)
    A("v_and_b32 v17, 15, v%d" % vLANE)
    A("v_mov_b32 v20, 0")
    if DIAG: A("v_mov_b32 v30, 0")
def main_early():
    LB("Lmain0")
    for s, off in [(sW1, 48), (sB1, 56), (sW2, 64)]:
        A("s_load_dwordx2 %s, s[0:1], %d" % (sr(s, 2), off))
    lane_init()
    A("v_mov_b32 v21, 0")
    for k in range(4): A("ds_write_b64 v%d, v[20:21] offset:%d" % (vFL, 8 * k))
    A("s_lshl_b32 s%d, 1, 25" % (sK + 2)); A("s_mov_b32 s%d, s%d" % (sK + 3, sWQ + 3))
    A("v_xor_b32 v18, v17, v16")
    A("v_lshlrev_b32 v18, 4, v18")
    A("v_lshl_add_u32 v%d, v16, 8, v18" % vKA)
    A("v_xor_b32 v%d, 64, v%d" % (vKA + 1, vKA))
    A("v_xor_b32 v%d, 128, v%d" % (vKA + 2, vKA))
    A("v_xor_b32 v%d, 64, v%d" % (vKA + 3, vKA + 2))
    soff(sKO, [(sA, 23), (sJ, 20), (sC, 15), (sW, 7)], 3072 * 256)
    A("s_add_u32 s%d, s%d, %d" % (sKL, sT0, L_K))
    A("s_mov_b32 s%d, s%d" % (sVO, sKO))
    A("s_waitcnt lgkmcnt(0)")
    A("s_mov_b64 %s, %s" % (sr(sK, 2), sr(sT4, 2)))
    for i in range(D0): kv_issue(i)
    C("lane k<3 of wave 3 pulls a slice of coefficient array k into L2")
    A("s_cmp_lg_u32 s%d, 192" % sW)
    A("s_cbranch_scc1 Lm_nopf")
    A("s_min_u32 s%d, s%d, 27" % (sT1, sM))
    A("s_lshl_b32 s%d, s%d, 7" % (sT1, sT1))
    A("v_mov_b32 v19, s%d" % sT1)
    A("s_mov_b64 exec, 1")
    for k, sd in enumerate([sW1, sB1, sW2]): A("global_load_dword v%d, v19, %s" % (W + 9 + k, sr(sd, 2)))
    A("s_mov_b64 exec, -1")
    LB("Lm_nopf")
    A("s_add_u32 s%d, s%d, %d" % (sVL, sT0, L_V))
    A("s_lshr_b32 s%d, s%d, 6" % (sW, sW))
    if DIAG: A("v_writelane_b32 v30, s42, 0")
    STAMP(10)
    A("s_branch Lmain")

C("---- helper waves: first q projection, then the table of g over bf16 inputs ----")
HW1, HB1, HW2 = 32, 60, 112
hK0, hK1, hONE, hRES = 88, 90, 92, 94
AC = [140, 142]
A("s_load_dwordx2 %s, s[0:1], 96" % sr(sWS, 2))
C("wq tile DMA: instruction i, thread t' = t-256: row 32 i + (t'>>3), 16-byte chunk (t'&7) ^ swizzle")
A("v_bfe_u32 v23, v0, 3, 5")
A("v_and_b32 v22, 7, v0")
A("v_and_b32 v24, 2, v23")
A("v_lshrrev_b32 v25, 1, v23")
A("v_and_or_b32 v24, v25, 4, v24")
A("v_xor_b32 v22, v22, v24")
A("v_lshlrev_b32 v22, 4, v22")
A("v_lshl_add_u32 v22, v23, 13, v22")
soff(sQL, [(sA, 20), (sJ, 10), (sC, 7)], 0)
A("s_lshl_b32 s%d, 1, 22" % (sWQ + 2))
A("s_lshl_b32 s%d, 1, 18" % sT1)
A("s_lshl_b32 s%d, s%d, 4" % (sQS, sW))
A("s_add_u32 m0, s%d, %d" % (sQS, L_WQ - 4096))
A("v_lshlrev_b32 v21, 4, v0")
A("s_waitcnt lgkmcnt(0)")
A("global_load_dwordx4 %s, v21, %s offset:-4096" % (vr(XR, 4), sr(sT2, 2)))
for i in range(4):
    if i:
        A("s_addk_i32 m0, 0x1000")
        A("s_add_u32 s%d, s%d, s%d" % (sQL, sQL, sT1))
    A("buffer_load_dwordx4 v22, %s, s%d offen nt lds" % (sr(sWQ, 4), sQL))
lane_init()
A("s_bfe_u32 s%d, s%d, 0x20006" % (sW, sW))
A("s_lshl_b32 s%d, s%d, 10" % (sT3, sW))
srd(sWS, WS_SZ)
C("early sentinels (O0, LSE0): hw0 1024 B, the others 16 B")
for i in range(4): A("v_mov_b32 v%d, -1" % (PM + i))
A("s_mul_i32 s%d, s%d, %d" % (sT5, sM, CLRA_PER))
A("s_lshl_b32 s%d, s%d, 17" % (sGR, sJ))
A("s_add_u32 s%d, s%d, s%d" % (sT5, sT5, sGR))
A("s_add_u32 s%d, s%d, 1024" % (sT4, sT5))
A("s_cmp_ge_u32 s%d, 2" % sW)
A("s_cbranch_scc1 Lhc_skip")
A("s_cmp_eq_u32 s%d, 0" % sW)
A("s_cselect_b32 s%d, s%d, s%d" % (sT5, sT5, sT4))
A("s_cselect_b64 exec, -1, 1")
A("buffer_store_dwordx4 %s, v%d, %s, s%d offen sc1" % (vr(PM, 4), vL16, sr(sWS, 4), sT5))
LB("Lhc_skip")
A("s_mov_b64 exec, -1")
A("s_branch Lhelp2")
main_early()
LB("Lhelp2")
if QT:
    C("touch 2 lines of the tagged q mailbox per wave so that they sit in L2 before they are written")
    soff(sT4, [(sM, 10), (sW, 8), (sJ, 17)], Q0_OFF)
    A("v_lshlrev_b32 v24, 7, v%d" % vLANE)
    A("s_mov_b64 exec, 3")
    A("buffer_load_dword v%d, v24, %s, s%d offen" % (RES + 1, sr(sWS, 4), sT4))
A("s_mov_b64 exec, -1")
if HP: A("s_setprio 3")
A("s_load_dword s%d, %s, %s" % (sE, sr(sWS, 2), hx(EPO)))
A("s_load_dwordx2 %s, s[0:1], 72" % sr(sB2P, 2))
if DIAG: A("v_writelane_b32 v30, s42, 0")
STAMP(9)
A("s_barrier")
A("s_lshl_b32 s%d, s2, 2" % sHC)
A("s_add_u32 s%d, s%d, s%d" % (sHC, sHC, sW))
A("s_mul_i32 s%d, s%d, %d" % (sHC, sHC, EPW))
A("s_lshl_b32 s%d, s%d, 3" % (sHT, sHC))
A("s_add_u32 s%d, s%d, %s" % (sHT, sHT, hx(TB)))
A("s_add_u32 s%d, s%d, %d" % (sHC, sHC, ELO * 128))
A("s_lshl_b32 s%d, s%d, 16" % (sHC, sHC))
A("v_lshlrev_b32 v27, 2, v%d" % vLANE)
common_addr()
A("s_lshl_b32 s%d, s%d, 1" % (sQS, sQS))
A("s_add_u32 s%d, s%d, s%d" % (sQS, sQS, sGR))
A("s_add_u32 s%d, s%d, %s" % (sQS, sQS, hx(Q0_OFF)))
A("v_lshlrev_b32 v%d, 1, v%d" % (vQST, vQST))
A("s_getreg_b32 s%d, hwreg(HW_REG_XCC_ID, 0, 3)" % sXCC)
for r, c in [(hK0, K0), (hK1, K1), (hONE, 1.0)]:
    A("v_mov_b32 v%d, %s" % (r, hx(f2u(c)))); A("v_mov_b32 v%d, %s" % (r + 1, hx(f2u(c))))
A("v_mov_b32 v%d, 0" % hRES)
A("s_mov_b32 s%d, 0" % sIT)
if DRY:
    C("dry run of the q-projection code while its inputs are in flight (instruction cache warm-up; no side effects)")
    A("s_mov_b32 s%d, 1" % sIT)
    A("s_branch Llnq")
    LB("Ldry_done")
    A("s_mov_b64 exec, -1")
    A("s_mov_b32 s%d, 0" % sIT)
if WARM:
    C("warm the instruction cache lines at the far jump targets of the main waves")
    for k, nm in enumerate(["k", "fin", "out", "tab"]):
        A("s_cmp_lg_u32 s%d, %d" % (sW, k))
        A("s_cbranch_scc1 Lwm%d" % k)
        A("s_call_b64 %s, Lst_%s" % (sr(sRET, 2), nm))
        LB("Lwm%d" % k)
A("s_cmp_ge_u32 s%d, 2" % sW)
A("s_cbranch_scc0 Lhx5")
A("s_waitcnt vmcnt(%d)" % (4 + QT))
LB("Lhx5")
A("s_waitcnt vmcnt(%d)" % (5 + QT))
STAMP(1)
A("s_branch Llnq")
LB("Lq_first")
if DRY:
    A("s_cmp_lg_u32 s%d, 0" % sIT)
    A("s_cbranch_scc1 Lq_dry")
A("s_waitcnt vmcnt(0) lgkmcnt(0)")
STAMP(2)
lds_arrive(0, vT + 4)
tags()
A("s_or_b32 s%d, s%d, s%d" % (sXCC, sXCC, sTG2))
C("4 helper arrivals (wq tile, xn rows) + 4 main arrivals (coefficients landed, sentinels acknowledged)")
lds_spin(0, 4, vT + 4)
STAMP(6)
LB("Lq_dry")
wqf_reads()
A("s_waitcnt lgkmcnt(0)")
A("s_branch Lq_go")
LB("Lh_qst")
if DRY:
    A("s_cmp_lg_u32 s%d, 0" % sIT)
    A("s_cbranch_scc1 Ldry_done")
STAMP(5)
A("v_mov_b32 v%d, s%d" % (W + 6, sTG1))
A("v_mov_b32 v%d, s%d" % (W + 7, sXCC))
A("buffer_store_dwordx4 %s, v%d, %s, s%d offen%s" % (vr(W + 4, 4), vQST, sr(sWS, 4), sQS, "" if int(OPT.get("fast", 1)) else " sc1"))
A("s_add_u32 s%d, s%d, %s" % (sQS, sQS, hx(QB_DELTA)))
A("buffer_store_dwordx4 %s, v%d, %s, s%d offen sc1" % (vr(W + 4, 4), vQST, sr(sWS, 4), sQS))
A("s_mov_b64 exec, -1")
HR = W + 8
if HP: A("s_setprio 0")
STAMP(3)
A("v_lshlrev_b32 v26, 3, v%d" % vLANE)
lds_spin(24, 4, 24, sleep=1)
for a_ in range(3):
    for k in range(3):
        A("ds_read_b128 %s, v%d offset:%d" % (vr(HR + 14 * a_ + 4 * k, 4), vL16, 4096 * a_ + 1024 * k))
    A("ds_read_b64 %s, v26 offset:%d" % (vr(HR + 14 * a_ + 12, 2), 4096 * a_ + 3072))
for a_, d in [(0, HW1), (14, HB1), (28, HW2)]:
    A("s_waitcnt lgkmcnt(%d)" % (8 - 4 * (a_ // 14)))
    for p in range(14):
        A("v_lshlrev_b32 v%d, 16, v%d" % (d + 2 * p, HR + a_ + p))
        A("v_and_b32 v%d, 0xffff0000, v%d" % (d + 2 * p + 1, HR + a_ + p))
A("s_load_dword s%d, %s, 0" % (sB2, sr(sB2P, 2)))
STAMP(4)
if DIAG:
    A("s_memtime s[42:43]"); A("s_waitcnt lgkmcnt(0)"); A("v_writelane_b32 v30, s42, 13")
LB("Lhl")
if DIAG:
    A("s_memrealtime s[42:43]"); A("s_add_u32 m0, s%d, 10" % sIT); A("s_waitcnt lgkmcnt(0)"); A("v_writelane_b32 v30, s42, m0")
A("s_mov_b32 s%d, s%d" % (sH, sHC)); A("s_mov_b32 s%d, s%d" % (sH + 1, sHC))
A("s_xor_b32 s%d, s%d, 0x80000000" % (sH2, sHC)); A("s_mov_b32 s%d, s%d" % (sH2 + 1, sH2))
U4 = [144, 146, 148, 150]; T4 = [152, 154, 156, 158]; Z4 = [160, 162, 164, 166]
for p2 in range(7):
    ch = [(2 * p2 + k // 2, k & 1) for k in range(4)]
    for k, (p, sg) in enumerate(ch):
        A("v_pk_fma_f32 %s, %s, %s, %s" % (vr(U4[k], 2), vr(HW1 + 2 * p, 2), sr([sH, sH2][sg], 2), vr(HB1 + 2 * p, 2)))
    for k in range(4): A("v_pk_mul_f32 %s, %s, %s" % (vr(T4[k], 2), vr(U4[k], 2), vr(U4[k], 2)))
    for k in range(4): A("v_pk_fma_f32 %s, %s, %s, %s" % (vr(T4[k], 2), vr(T4[k], 2), vr(hK1, 2), vr(hK0, 2)))
    for k in range(4): A("v_pk_mul_f32 %s, %s, %s" % (vr(T4[k], 2), vr(T4[k], 2), vr(U4[k], 2)))
    for k in range(4):
        for h in range(2): A("v_exp_f32 v%d, v%d" % (T4[k] + h, T4[k] + h))
    for k, (p, sg) in enumerate(ch): A("v_pk_mul_f32 %s, %s, %s" % (vr(Z4[k], 2), vr(U4[k], 2), vr(HW2 + 2 * p, 2)))
    for k in range(4): A("v_pk_add_f32 %s, %s, %s" % (vr(T4[k], 2), vr(T4[k], 2), vr(hONE, 2)))
    for k in range(4):
        for h in range(2): A("v_rcp_f32 v%d, v%d" % (T4[k] + h, T4[k] + h))
    for k, (p, sg) in enumerate(ch):
        if p == 0: A("v_pk_mul_f32 %s, %s, %s" % (vr(AC[sg], 2), vr(Z4[k], 2), vr(T4[k], 2)))
        else: A("v_pk_fma_f32 %s, %s, %s, %s" % (vr(AC[sg], 2), vr(Z4[k], 2), vr(T4[k], 2), vr(AC[sg], 2)))
A("v_add_f32 v%d, v%d, v%d" % (AC[0], AC[0], AC[0] + 1))
A("v_add_f32 v%d, v%d, v%d" % (AC[1], AC[1], AC[1] + 1))
A("s_lshl_b32 m0, s%d, 1" % sIT)
A("s_add_u32 s%d, s%d, 0x10000" % (sHC, sHC))
wave_sum2(AC[0], AC[1], sSUM, sSQ)
A("s_add_u32 s%d, s%d, 1" % (sIT, sIT))
A("s_nop 0")
A("v_writelane_b32 v%d, s%d, m0" % (hRES, sSUM))
A("s_add_u32 m0, m0, 1")
A("s_cmp_lg_u32 s%d, %d" % (sIT, EPW))
A("v_writelane_b32 v%d, s%d, m0" % (hRES, sSQ))
A("s_cbranch_scc1 Lhl")
if DIAG:
    A("s_memtime s[42:43]"); A("s_waitcnt lgkmcnt(0)"); A("v_writelane_b32 v30, s42, 14")
    STAMP(15)
A("s_waitcnt lgkmcnt(0)")
A("s_lshl_b32 s%d, s%d, 16" % (sB2, sB2))
A("v_cvt_pk_bf16_f32 v%d, v%d, v%d" % (hRES, hRES, hRES))
A("v_and_b32 v%d, 0xffff0000, v%d" % (hRES, hRES))
A("v_add_f32 v%d, s%d, v%d" % (hRES, sB2, hRES))
A("v_cvt_pk_bf16_f32 v%d, v%d, v%d" % (hRES, hRES, hRES))
A("v_and_b32 v%d, 0xffff0000, v%d" % (hRES, hRES))
lds_spin(8, 4, 24)
A("s_bfm_b64 exec, %d, 0" % (2 * EPW))
A("buffer_store_dword v%d, v27, %s, s%d offen sc1" % (hRES, sr(sWS, 4), sHT))
A("s_mov_b64 exec, -1")
STAMP(7)
if DIAG:
    A("s_add_u32 s%d, s%d, 4" % (sW, sW))
    A("v_mov_b32 v28, v30")
    A("s_branch Lfin_exit")
A("s_endpgm")

LB("Lmain")
for s, off in [(sWS, 96), (sV, 16), (sWO, 32), (sOUT, 80), (sX, 0), (sB2P, 72)]:
    A("s_load_dwordx2 %s, s[0:1], %d" % (sr(s, 2), off))
if DIAG == 2: A("s_load_dwordx2 s[100:101], s[0:1], 88")
srd(sWS, WS_SZ)
for s in [sW1, sB1, sW2]: srd(s, 3584)
A("s_lshl_b32 s%d, s%d, 10" % (sT3, sW))
A("s_barrier")
for i in range(D0, DC): kv_issue(i)
A("s_mov_b32 m0, s%d" % sT3)
for i, sd in enumerate([sW1, sB1, sW2]):
    if i: A("s_addk_i32 m0, 0x1000")
    A("s_nop 0")
    A("buffer_load_dwordx4 v%d, %s, s%d offen lds" % (vL16, sr(sd, 4), sT3))
for i in range(DC, D1): kv_issue(i)
for i in range(4): A("v_mov_b32 v%d, -1" % (W + i))
A("s_lshl_b32 s%d, s%d, 17" % (sGR, sJ))
A("s_mov_b32 s%d, s%d" % (sT1, sM))
A("s_waitcnt lgkmcnt(0)")
A("s_load_dword s%d, %s, %s" % (sE, sr(sWS, 2), hx(EPO)))
STAMP(11)
for s, n in [(sV, 1 << 25), (sX, 4096), (sWO, 1 << 22), (sOUT, 4096)]: srd(s, n)
A("v_lshlrev_b32 v18, 1, v16")
A("v_xor_b32 v18, v17, v18")
A("v_lshlrev_b32 v18, 4, v18")
A("v_lshl_add_u32 v%d, v16, 8, v18" % vVA)
A("v_xor_b32 v%d, 128, v%d" % (vVA + 1, vVA))
C("late sentinels: wave 0,1: group region ; wave 2: P chunk")
A("s_lshr_b32 s%d, s2, 3" % sT1)
A("s_mul_i32 s%d, s%d, %d" % (sT1, sT1, CLRB_PER))
A("s_lshl_b32 s%d, s%d, 10" % (sT0, sW))
A("s_add_u32 s%d, s%d, s%d" % (sT1, sT1, sT0))
A("s_add_u32 s%d, s%d, s%d" % (sT1, sT1, sGR))
A("s_add_u32 s%d, s%d, %d" % (sT1, sT1, CLRB_OFF))
A("s_lshl_b32 s%d, s2, 10" % sT0)
A("s_add_u32 s%d, s%d, %s" % (sT0, sT0, hx(PB)))
A("s_cmp_ge_u32 s%d, 2" % sW)
A("s_cselect_b32 s%d, s%d, s%d" % (sT1, sT0, sT1))
A("s_bfm_b64 %s, %d, 0" % (sr(sH, 2), (CLRB_PER - 1024) // 16))
A("s_cmp_eq_u32 s%d, 1" % sW)
A("s_cselect_b64 %s, %s, -1" % (sr(sH, 2), sr(sH, 2)))
A("s_mul_i32 s%d, s2, %d" % (sT0, NENT * 4 // 256))
A("s_add_u32 s%d, s%d, %s" % (sT0, sT0, hx(TB)))
A("s_cmp_eq_u32 s%d, 3" % sW)
A("s_cselect_b32 s%d, s%d, s%d" % (sT1, sT0, sT1))
A("s_cselect_b64 exec, %d, %s" % ((1 << (NENT * 4 // 256 // 16)) - 1, sr(sH, 2)))
A("buffer_store_dwordx4 %s, v%d, %s, s%d offen sc1" % (vr(W, 4), vL16, sr(sWS, 4), sT1))
A("s_mov_b64 exec, -1")

common_addr()
A("s_add_u32 s%d, s%d, s%d" % (sQS, sQS, sGR))
A("s_add_u32 s%d, s%d, %d" % (sQS, sQS, Q1_OFF))
wtile_voff(10, 22)
A("v_and_b32 v19, 7, v%d" % vLANE)
A("v_lshrrev_b32 v25, 2, v%d" % vLANE)
A("v_lshlrev_b32 v25, 7, v25")
A("v_lshl_add_u32 v%d, v18, 2, v25" % vOST)
A("v_lshlrev_b32 v25, 7, v16")
A("v_lshl_add_u32 v%d, v19, 4, v25" % vOLD)
C("lanes n>=8 of the first two o loads fetch the lse values instead: offset relative to the o block")
A("s_mul_i32 s%d, s%d, %d" % (sT0, sA, 128 - 8192))
A("s_mul_i32 s%d, s%d, %d" % (sT1, sW, 32 - 2048))
A("s_add_u32 s%d, s%d, s%d" % (sT0, sT0, sT1))
A("s_add_u32 s%d, s%d, %d" % (sT0, sT0, LSE_OFF[0] - O_OFF[0]))
A("v_add_u32 v25, s%d, v%d" % (sT0, vLSE))
A("v_xor_b32 v26, 16, v25")
A("v_add_u32 v26, -512, v26")
A("v_cmp_gt_u32 vcc, 8, v17")
A("s_nop 1")
A("v_cndmask_b32 v%d, v25, v%d, vcc" % (vLSE, vOLD))
A("v_cndmask_b32 v%d, v26, v%d, vcc" % (vLS2, vOLD))
A("v_lshlrev_b32 v%d, 1, v%d" % (vPST, vLANE))
A("v_lshlrev_b32 v25, 3, v16")
A("v_lshl_add_u32 v%d, v19, 4, v25" % vX1S)
A("s_mul_i32 s%d, s%d, %d" % (sT0, sW, RBS))
A("s_add_u32 s%d, s%d, %d" % (sT0, sT0, L_RB))
A("v_mul_u32_u24 v25, 528, v18")
A("v_lshl_add_u32 v25, v16, 4, v25")
A("v_lshrrev_b32 v26, 2, v17")
A("v_lshl_add_u32 v25, v26, 7, v25")
A("v_add_u32 v%d, s%d, v25" % (vRBW, sT0))
A("s_mul_i32 s%d, s%d, 528" % (sT0, sW))
A("s_add_u32 s%d, s%d, %d" % (sT0, sT0, L_RB))
A("v_lshlrev_b32 v25, 3, v%d" % vLANE)
A("v_add_u32 v%d, s%d, v25" % (vRBR, sT0))
A("s_lshl_b32 s%d, s%d, 3" % (sT0, sW))
A("s_add_u32 s%d, s%d, %d" % (sT0, sT0, L_ML))
A("v_lshlrev_b32 v25, 5, v18")
A("v_add_u32 v%d, s%d, v25" % (vMLW, sT0))
A("s_lshl_b32 s%d, s%d, 5" % (sT0, sW))
A("s_add_u32 s%d, s%d, %d" % (sT0, sT0, L_ML))
A("v_mov_b32 v%d, s%d" % (vMLR, sT0))
A("v_mov_b32 v25, 0x3f80")
A("v_mov_b32 v26, 0x3f800000")
for r in range(4):
    A("v_cmp_eq_u32 vcc, %d, v17" % (2 * r))
    A("v_cmp_eq_u32 %s, %d, v17" % (sr(sH, 2), 2 * r + 1))
    A("s_nop 0")
    A("v_cndmask_b32 v%d, 0, v25, vcc" % (SEL + r))
    A("v_cndmask_b32 v%d, v%d, v26, %s" % (SEL + r, SEL + r, sr(sH, 2)))
for i in range(16): A("v_mov_b32 v%d, 0" % (PM + i))
for p in range(4):
    A("s_mov_b32 s%d, %s" % (sPM + 2 * p, hx(0x000f000f << (4 * p))))
    A("s_mov_b32 s%d, %s" % (sPM + 2 * p + 1, hx(0x000f000f << (4 * p))))
soff(sOS, [(sW, 13), (sA, 11), (sC, 4), (sJ, 17)], O_OFF[0])
soff(sOL, [(sA, 13), (sW, 11), (sJ, 17)], O_OFF[0])
A("s_add_u32 s%d, s%d, %s" % (sQL, sOL, hx(Q0_OFF - O_OFF[0])))
soff(sLS, [(sW, 7), (sA, 5), (sC, 2), (sJ, 17)], LSE_OFF[0])
soff(sPS, [(sW, 15), (sC, 12), (sJ, 9), (sA, 7)], PB)
A("s_mov_b32 s%d, %s" % (sSC, hx(f2u(128 ** -0.5 * math.log2(math.e)))))
A("s_getreg_b32 s%d, hwreg(HW_REG_XCC_ID, 0, 3)" % sXCC)
A("v_xor_b32 v24, v16, v17")
A("v_lshlrev_b32 v24, 4, v24")
A("v_lshl_add_u32 v24, v17, 8, v24")
A("s_lshl_b32 s%d, s%d, 13" % (sT1, sW))
A("s_add_u32 s%d, s%d, %d" % (sT2, sT1, L_K))
for t in range(4): A("v_xor_b32 v%d, %d, v24" % (18 + t, 64 * t))
for t in range(4): A("v_add_u32 v%d, s%d, v%d" % (18 + t, sT2, 18 + t))
VA = W + 32
A("v_lshrrev_b32 v24, 2, v%d" % vLANE)
A("v_and_b32 v25, 7, v24")
A("v_lshlrev_b32 v25, 1, v25")
A("v_bfe_u32 v26, v%d, 1, 1" % vLANE)
A("v_xor_b32 v25, v25, v26")
A("v_lshlrev_b32 v25, 4, v25")
A("v_lshl_add_u32 v25, v24, 8, v25")
A("v_and_b32 v26, 1, v%d" % vLANE)
A("v_lshl_add_u32 v25, v26, 3, v25")
A("s_add_u32 s%d, s%d, %d" % (sT2, sT1, L_V))
for t in range(8): A("v_xor_b32 v%d, %d, v25" % (VA + t, 32 * t))
for t in range(8): A("v_add_u32 v%d, s%d, v%d" % (VA + t, sT2, VA + t))
soff(sT4, [(sJ, 19), (sA, 17), (sW, 15), (sC, 7)], 0)
A("s_lshl_b32 s%d, s%d, 12" % (sT5, sW))
A("s_add_u32 s%d, s%d, %d" % (sT5, sT5, L_WO))
soff(sT3, [(sA, 10), (sC, 7)], 0)
A("v_lshlrev_b32 v24, 5, v%d" % vLANE)
A("s_lshl_b32 s%d, s%d, 10" % (sT2, sW))
A("s_add_u32 s%d, s%d, %d" % (sT2, sT2, L_QF))
A("v_add_u32 v25, s%d, v%d" % (sT2, vL16))
A("v_add_u32 v26, %d, v%d" % (L_QF, vL16))
STAMP(12)
if DIAG: A("v_mov_b32 v31, v30")
QP = W
def q0_issue(QP=QP):
    A("buffer_load_dwordx4 %s, v24, %s, s%d offen sc1" % (vr(QP, 4), sr(sWS, 4), sQL))
    A("buffer_load_dwordx4 %s, v24, %s, s%d offen offset:16 sc1" % (vr(QP + 4, 4), sr(sWS, 4), sQL))
def flag_block():
    if True:
        A("s_cmp_lg_u32 s%d, 0" % sW)
        A("s_cbranch_scc1 Lnoflag")
        C("every sentinel store of this workgroup is acknowledged: announce it")
        lds_spin(8, 4, vT)
        A("v_mov_b32 v16, s%d" % sTG1)
        A("v_mov_b32 v17, s%d" % sXCC)
        soff(sT1, [(2, 4)], FB)
        A("v_mov_b32 v21, 0")
        A("s_mov_b64 exec, 1")
        A("buffer_store_dwordx2 v[16:17], v21, %s, s%d offen sc1" % (sr(sWS, 4), sT1))
        A("s_mov_b64 exec, -1")
        LB("Lnoflag")
C("coefficients landed -> tell the helpers")
young = D1 - DC + 1
told = False
for i in range(D1, 16):
    dp = DEPTH if i < TAILI else TAILD
    if i == 16 - QV:
        A("s_waitcnt vmcnt(%d)" % (dp - 2)); q0_issue(); young += 2
    A("s_waitcnt vmcnt(%d)" % (dp - 1))
    if not told and young >= dp - 1:
        lds_arrive(24, vT); told = True
    kv_issue(i); young += 1
assert told
q0_issue(QP + 8)
C("everything older than the V loads is complete: K, late sentinels")
A("s_waitcnt vmcnt(12)")
lds_arrive(8, vT)
A("s_waitcnt lgkmcnt(0)")
tags()
A("s_or_b32 s%d, s%d, s%d" % (sXCC, sXCC, sTG2))
STAMP(1)
for t in range(4):
    for T in range(2):
        A("ds_read_b128 %s, v%d offset:%d" % (vr(KF + 16 * T + 4 * t, 4), 18 + t, 4096 * T))
flag_block()
def wait_w0(n):
    uid[0] += 1
    A("s_cmp_eq_u32 s%d, 0" % sW)
    A("s_cbranch_scc1 Lww%d" % uid[0])
    A("s_waitcnt vmcnt(%d)" % n)
    LB("Lww%d" % uid[0])
    A("s_waitcnt vmcnt(%d)" % (n + 1))
wait_w0(QV + 2)
STAMP(2)
A("s_setprio 2")
A("s_mov_b32 s%d, %s" % (sCNT, hx(SPIN)))
A("s_mov_b32 s%d, 0" % sY)
LB("Lmq")
A("v_and_b32 v16, -8, v%d" % (QP + 3))
A("v_and_b32 v17, -8, v%d" % (QP + 7))
A("v_cmp_ne_u32 vcc, s%d, v%d" % (sTG1, QP + 2))
A("v_cmp_ne_u32 %s, s%d, v%d" % (sr(sRET, 2), sTG1, QP + 6))
A("s_or_b64 vcc, vcc, %s" % sr(sRET, 2))
A("v_cmp_ne_u32 %s, s%d, v16" % (sr(sRET, 2), sTG2))
A("s_or_b64 vcc, vcc, %s" % sr(sRET, 2))
A("v_cmp_ne_u32 %s, s%d, v17" % (sr(sRET, 2), sTG2))
A("s_or_b64 vcc, vcc, %s" % sr(sRET, 2))
A("s_cbranch_vccnz Lmqr")
LB("Lmqd")
if DIAG:
    A("s_sub_u32 s%d, s%d, s%d" % (sT0, sCNT, sY)); A("v_writelane_b32 v31, s%d, 0" % sT0)
Ls = L; L = []
LB("Lmqr")
A("s_cmp_lg_u32 s%d, 0" % sY)
A("s_cbranch_scc1 Lmqr2")
C("first look failed: take the second one (V has landed with it: request its fragments now)")
A("s_waitcnt vmcnt(0)")
A("s_mov_b32 s%d, 1" % sY)
for k in range(8): A("v_mov_b32 v%d, v%d" % (QP + k, QP + 8 + k))
for t in range(8):
    for hf in range(2):
        A("ds_read_b64_tr_b16 %s, v%d offset:%d" % (vr(VF + 4 * t + 2 * hf, 2), VA + t, 4096 * hf))
A("s_branch Lmq")
LB("Lmqr2")
C("still not there: poll the plain copy a few times, then the write-through copy")
A("s_cmp_eq_u32 s%d, %s" % (sCNT, hx(SPIN - 8)))
A("s_cselect_b32 s%d, %s, 0" % (sT0, hx(QB_DELTA)))
A("s_add_u32 s%d, s%d, s%d" % (sQL, sQL, sT0))
q0_issue()
A("s_waitcnt vmcnt(0)")
A("s_sub_u32 s%d, s%d, 1" % (sCNT, sCNT))
A("s_cbranch_scc0 Lmq")
A("s_branch Lmqd")
ool.append(L); L = Ls
A("v_cmp_ne_u32 vcc, s%d, v%d" % (sXCC, QP + 3))
A("v_mov_b32 v%d, v%d" % (QP + 2, QP + 4))
A("v_mov_b32 v%d, v%d" % (QP + 3, QP + 5))
A("ds_write_b128 v25, %s" % vr(QP, 4))
A("s_cmp_eq_u64 vcc, 0")
A("s_cselect_b32 s%d, 1, 0x101" % sT0)
A("v_mov_b32 v16, s%d" % sT0)
A("s_waitcnt lgkmcnt(0)")
lds_arrive(4, 16, None)
STAMP(15)
for i in range(4): dma(22 + (i & 1), sWO, sT4, sT5, 0x2000)
A("buffer_load_dwordx2 %s, v%d, %s, s%d offen" % (vr(RES + 2, 2), vX1S, sr(sX, 4), sT3))
FLG = W + 44
soff(sIT, [(sW, 10)], FB)
soff(sQL, [(sA, 12), (sJ, 17)], Q1_OFF)
lds_spin(4, 4, vT, mask=0xff)
A("s_cmp_lt_u32 s%d, 256" % sT1)
A("s_cselect_b32 s%d, %d, 0" % (sFAST, int(OPT.get("fast", 1))))
QF = W + 16
for t in range(4):
    A("ds_read_b128 %s, v26 offset:%d" % (vr(QF + 4 * t, 4), 1024 * t))
if PRET:
    C("bring the (cleared) group mailbox lines into L2")
    A("s_lshr_b32 s%d, s2, 3" % sT5)
    A("s_lshl_b32 s%d, s%d, 2" % (sT5, sT5))
    A("s_add_u32 s%d, s%d, s%d" % (sT5, sT5, sW))
    A("s_mul_i32 s%d, s%d, 768" % (sT5, sT5))
    A("s_add_u32 s%d, s%d, s%d" % (sT5, sT5, sGR))
    A("v_lshlrev_b32 v21, 7, v%d" % vLANE)
    A("s_mov_b64 exec, 63")
    A("buffer_load_dword v%d, v21, %s, s%d offen sc1" % (W + 40, sr(sWS, 4), sT5))
    A("s_mov_b64 exec, -1")
S = W
qk = []
for t in range(4):
    for T in range(2):
        qk.append(mf(S + 4 * T, KF + 16 * T + 4 * t, QF + 4 * t, None if t == 0 else S + 4 * T))
for t in range(4):
    A("s_waitcnt lgkmcnt(%d)" % (3 - t))
    A(qk[2 * t]); A(qk[2 * t + 1])
STAMP(3)
A("s_branch Lk_go")

LB("Llnq")
C("LayerNorm of the row held in XR, then q partial = xn @ wq tile")
X = W
row_stats(XR, vT, X)
A("v_add_f32 v%d, %s, v%d" % (vT + 1, EPS, vT + 1))
A("v_rsq_f32 v%d, v%d" % (vT + 2, vT + 1))
A("s_cmp_eq_u32 s%d, 0" % sLAY)
A("v_mul_f32 v%d, v%d, v%d" % (vT + 3, vT, vT + 2))
for i in range(4):
    A("v_pk_fma_f32 %s, %s, %s, %s op_sel:[0,0,1] op_sel_hi:[1,0,1] neg_lo:[0,0,1] neg_hi:[0,0,1]" % (vr(X + 2 * i, 2), vr(X + 2 * i, 2), vr(vT + 2, 2), vr(vT + 2, 2)))
for i in range(4):
    A("v_cvt_pk_bf16_f32 v%d, v%d, v%d" % (X + 8 + i, X + 2 * i, X + 2 * i + 1))
A("ds_write_b128 v%d, %s" % (vXNW, vr(X + 8, 4)))
A("s_cbranch_scc1 Lq_first")
A("s_waitcnt lgkmcnt(0)")
A("s_barrier")
LB("Lq_go")
BF = W + 16
for t in range(4):
    A("ds_read_b128 %s, v%d offset:%d" % (vr(BF + 4 * t, 4), vXNR, 64 * t))
for t in range(4):
    A("s_waitcnt lgkmcnt(%d)" % (3 - t))
    mfma(W, WQF + 4 * t, BF + 4 * t, None if t == 0 else W)
A("s_cmp_eq_u32 s%d, 0" % sLAY)
A("s_mov_b64 exec, %s" % sr(sMSK, 2))
NOP(6)
A("v_cvt_pk_bf16_f32 v%d, v%d, v%d" % (W + 4, W, W + 1))
A("v_cvt_pk_bf16_f32 v%d, v%d, v%d" % (W + 5, W + 2, W + 3))
A("s_cbranch_scc1 Lh_qst")
fastcmp()
store_local("buffer_store_dwordx2", vr(W + 4, 2), vQST, sQS)
A("s_mov_b64 exec, -1")
STAMP(2)

C("attention over this workgroup's 128 keys")
if QS:
    C("each wave fetches one k-step of q and shares it through LDS")
    A("s_lshl_b32 s%d, s%d, 10" % (sT3, sW))
    A("s_add_u32 s%d, s%d, s%d" % (sT4, sQL, sT3))
    A("s_add_u32 s%d, s%d, %d" % (sT3, sT3, L_RB + 12288))
    A("v_add_u32 v25, s%d, v%d" % (sT3, vL16))
    A("v_add_u32 v26, %d, v%d" % (L_RB + 12288, vL16))
    ppoll(lambda k: A("buffer_load_dwordx4 %s, v%d, %s, s%d offen sc1" % (vr(W + 32 + 4 * k, 4), vL16, sr(sWS, 4), sT4)),
          lambda k: range(W + 32 + 4 * k, W + 36 + 4 * k), 1, vT, lambda k: ["ds_write_b128 v25, %s" % vr(W + 32 + 4 * k, 4)], pre=QPRE, gap=QGAP, tag=0)
    A("s_waitcnt lgkmcnt(0)")
    A("s_barrier")
    for t in range(4):
        A("ds_read_b128 %s, v26 offset:%d" % (vr(QF + 4 * t, 4), 1024 * t))
    for t in range(4):
        A("s_waitcnt lgkmcnt(%d)" % (3 - t))
        A(qk[2 * t]); A(qk[2 * t + 1])
    touch_stub("k")
else:
    def iq(k):
        for t in range(4):
            A("buffer_load_dwordx4 %s, v%d, %s, s%d offen offset:%d sc1" % (vr(QF + 16 * k + 4 * t, 4), vL16, sr(sWS, 4), sQL, 1024 * t))
    def qks(k):
        return [mf(S + 4 * T, KF + 16 * T + 4 * t, QF + 16 * k + 4 * t, None if t == 0 else S + 4 * T) for t in range(4) for T in range(2)]
    ppoll(iq, lambda k: range(QF + 16 * k, QF + 16 * k + 16), 4, vT, qks, pre=QPRE, gap=QGAP, tag=0, stub="k")
STAMP(3)
LB("Lk_go")
NOP(7)
for ctl in ["row_ror:4", "row_ror:8"]:
    for i in range(8):
        A("v_add_f32_dpp v%d, v%d, v%d %s row_mask:0xf bank_mask:0xf" % (S + i, S + i, S + i, ctl))
A("v_max3_f32 v%d, v%d, v%d, v%d" % (vT, S, S + 1, S + 2))
A("v_max3_f32 v%d, v%d, v%d, v%d" % (vT + 1, S + 3, S + 4, S + 5))
A("v_max3_f32 v%d, v%d, v%d, v%d" % (vT, vT, S + 6, S + 7))
A("v_max_f32 v%d, v%d, v%d" % (vT, vT, vT + 1))
A("v_mov_b32 v%d, v%d" % (vT + 1, vT))
A("s_nop 1")
A("v_permlane16_swap_b32 v%d, v%d" % (vT, vT + 1))
A("v_max_f32 v%d, v%d, v%d" % (vT, vT, vT + 1))
A("v_mov_b32 v%d, v%d" % (vT + 1, vT))
A("s_nop 1")
A("v_permlane32_swap_b32 v%d, v%d" % (vT, vT + 1))
A("v_max_f32 v%d, v%d, v%d" % (vT, vT, vT + 1))
A("v_mul_f32 v%d, s%d, v%d" % (vT + 2, sSC, vT))
for i in range(8):
    A("v_fma_f32 v%d, v%d, s%d, -v%d" % (S + i, S + i, sSC, vT + 2))
for i in range(8):
    A("v_exp_f32 v%d, v%d" % (S + i, S + i))
for p in range(4):
    A("s_mov_b64 exec, %s" % sr(sPM + 2 * p, 2))
    for i in range(4):
        A("v_cvt_pk_bf16_f32 v%d, v%d, v%d" % (PM + 4 * p + i, S + 2 * i, S + 2 * i + 1))
A("s_mov_b64 exec, -1")
STAMP(4)
A("s_cmp_lg_u32 s%d, 0" % sLAY)
A("s_cbranch_scc1 Lv_go")
wait_w0(5 + PRET)
A("buffer_load_dwordx4 %s, v%d, %s, s%d offen sc1" % (vr(FLG, 4), vL16, sr(sWS, 4), sIT))
STAMP(6)
A("s_cmp_lg_u32 s%d, 0" % sY)
A("s_cbranch_scc1 Lv_have")
for t in range(8):
    for hf in range(2):
        A("ds_read_b64_tr_b16 %s, v%d offset:%d" % (vr(VF + 4 * t + 2 * hf, 2), VA + t, 4096 * hf))
A("s_waitcnt lgkmcnt(0)")
LB("Lv_have")
if TOT:
    A("s_memrealtime s[42:43]"); A("s_waitcnt lgkmcnt(0)"); A("s_mov_b32 s97, s42")
A("s_cmp_lg_u32 s%d, 0" % sLAY)
LB("Lv_go")
OA = W + 8
mfma(W + 16, ONES, PM, None)
for p in range(4):
    for T in range(2):
        mfma(OA + 4 * T, VF + 4 * (2 * p + T), PM + 4 * p, None if p == 0 else OA + 4 * T)
A("s_mov_b64 exec, %s" % sr(sMSK, 2))
A("v_mov_b32 v%d, v%d" % (vT + 3, W + 16))
A("ds_write_b64 v%d, %s" % (vMLW, vr(vT + 2, 2)))
A("s_mov_b64 exec, -1")
NOP(3)
A("ds_write_b128 v%d, %s" % (vRBW, vr(OA, 4)))
A("ds_write_b128 v%d, %s offset:64" % (vRBW, vr(OA + 4, 4)))
A("s_waitcnt lgkmcnt(0)")
A("s_cbranch_scc1 Lrb_bar")
lds_arrive(12, vT + 4)
lds_spin(12, 4, vT + 4)
A("s_branch Lrb_go")
LB("Lrb_bar")
A("s_barrier")
LB("Lrb_go")
A("ds_read_b128 %s, v%d" % (vr(W, 4), vMLR))
A("ds_read_b128 %s, v%d offset:16" % (vr(W + 4, 4), vMLR))
for w in range(4):
    A("ds_read_b64 %s, v%d offset:%d" % (vr(W + 8 + 2 * w, 2), vRBR, RBS * w))
A("v_mov_b32 v%d, 0" % (vT + 4))
fastcmp()
A("s_waitcnt lgkmcnt(4)")
A("v_max3_f32 v%d, v%d, v%d, v%d" % (vT, W, W + 2, W + 4))
A("v_max_f32 v%d, v%d, v%d" % (vT, vT, W + 6))
for w in range(4): A("v_sub_f32 v%d, v%d, v%d" % (W + 2 * w, W + 2 * w, vT))
for w in range(4): A("v_exp_f32 v%d, v%d" % (W + 2 * w, W + 2 * w))
A("v_mul_f32 v%d, v%d, v%d" % (vT + 1, W, W + 1))
for w in range(1, 4): A("v_fmac_f32 v%d, v%d, v%d" % (vT + 1, W + 2 * w, W + 2 * w + 1))
A("s_waitcnt lgkmcnt(0)")
A("v_pk_mul_f32 %s, %s, %s op_sel_hi:[1,0]" % (vr(W + 8, 2), vr(W + 8, 2), vr(W, 2)))
A("v_rcp_f32 v%d, v%d" % (vT + 2, vT + 1))
A("v_pk_fma_f32 %s, %s, %s, %s op_sel_hi:[1,0,1]" % (vr(W + 8, 2), vr(W + 10, 2), vr(W + 2, 2), vr(W + 8, 2)))
A("v_log_f32 v%d, v%d" % (vT + 5, vT + 1))
for w in range(2, 4):
    A("v_pk_fma_f32 %s, %s, %s, %s op_sel_hi:[1,0,1]" % (vr(W + 8, 2), vr(W + 8 + 2 * w, 2), vr(W + 2 * w, 2), vr(W + 8, 2)))
A("v_pk_mul_f32 %s, %s, %s op_sel_hi:[1,0]" % (vr(W + 8, 2), vr(W + 8, 2), vr(vT + 2, 2)))
A("v_add_f32 v%d, v%d, v%d" % (vT + 5, vT + 5, vT))
A("v_cvt_pk_bf16_f32 v%d, v%d, v%d" % (W + 8, W + 8, W + 9))
store_local("buffer_store_dword", "v%d" % (W + 8), vOST, sOS)
A("s_mov_b64 exec, 1")
store_local("buffer_store_dword", "v%d" % (vT + 5), vT + 4, sLS)
A("s_mov_b64 exec, -1")
STAMP(5)

C("wo phase: wave = batch, rows = key splits")
OF = W; LS = W + 32; DA = WQF
assert LSE_OFF[1] - O_OFF[1] == LSE_OFF[0] - O_OFF[0]
def io(k):
    for t in range(4):
        A("buffer_load_dwordx4 %s, v%d, %s, s%d offen offset:%d sc1" % (vr(OF + 16 * k + 4 * t, 4), [vLSE, vLS2, vOLD, vOLD][t], sr(sWS, 4), sOL, 512 * t))
A("s_cmp_lg_u32 s%d, 0" % sLAY)
A("s_cbranch_scc1 Lo_go")
C("first layer: wo tile landed -> fragments; every workgroup has announced its clears")
A("s_waitcnt vmcnt(2)")
STAMP(13)
A("s_mov_b32 s%d, %s" % (sT4, hx(SPIN)))
LB("Lap")
A("v_and_b32 v24, -8, v%d" % (FLG + 1))
A("v_cmp_ne_u32 vcc, s%d, v%d" % (sTG1, FLG))
A("v_cmp_ne_u32 %s, s%d, v24" % (sr(sH, 2), sTG2))
A("s_or_b64 vcc, vcc, %s" % sr(sH, 2))
A("s_cbranch_vccnz Lar")
LB("Lad")
lds_arrive(16, 24)
for i in range(2):
    A("v_lshlrev_b32 v%d, 16, v%d" % (W + 40 + 2 * i, RES + 2 + i))
    A("v_and_b32 v%d, 0xffff0000, v%d" % (W + 41 + 2 * i, RES + 2 + i))
for i in range(4): A("v_mov_b32 v%d, v%d" % (RES + i, W + 40 + i))
for ct in range(4): A("v_xor_b32 v%d, %d, v%d" % (W + 40 + ct, 32 * ct, vWT))
for ct in range(4): A("v_add_u32 v%d, %d, v%d" % (W + 40 + ct, L_WO, W + 40 + ct))
lds_spin(16, 4, 24)
STAMP(14)
for t in range(4):
    for ct in range(4):
        for hf in range(2):
            A("ds_read_b64_tr_b16 %s, v%d offset:%d" % (vr(WOF + 16 * ct + 4 * t + 2 * hf, 2), W + 40 + ct, 4096 * t + 512 * hf))
LB("Lo_go")
def pre_o(): A("s_waitcnt lgkmcnt(0)")
ool.append(["Lar:", "    s_lshl_b32 s%d, s%d, 10" % (sT5, sW), "    s_add_u32 s%d, s%d, %s" % (sT5, sT5, hx(FB)),
            "    buffer_load_dwordx4 %s, v%d, %s, s%d offen sc1" % (vr(FLG, 4), vL16, sr(sWS, 4), sT5),
            "    s_waitcnt vmcnt(0)", "    s_sub_u32 s%d, s%d, 1" % (sT4, sT4), "    s_cbranch_scc0 Lap", "    s_branch Lad"])
def wo1(k): return [mf(DA + 4 * ct, OF + 16 * k + 4 * t, WOF + 16 * ct + 4 * t, None if t == 0 else DA + 4 * ct) for t in range(2) for ct in range(4)]
ppoll(io, lambda k: range(OF + 16 * k, OF + 16 * k + 16), 4, vT, wo1, pre=OPRE, gap=OGAP, mid=pre_o, tag=1,
      fix=["v_mov_b32 v%d, v%d" % (OF + i, OF + 16 + i) for i in range(16)])
STAMP(7)
C("softmax over the 8 key splits (lanes n>=8 hold own lse in OF[0:3], the other four in OF[4:7])")
va = ["v_max3_f32 v%d, v%d, v%d, v%d" % (vT, OF, OF + 1, OF + 2), "v_max3_f32 v%d, v%d, v%d, v%d" % (vT + 1, OF + 3, OF + 4, OF + 5),
      "v_max3_f32 v%d, v%d, v%d, v%d" % (vT, vT, OF + 6, OF + 7), "v_max_f32 v%d, v%d, v%d" % (vT, vT, vT + 1)]
va += ["v_sub_f32 v%d, v%d, v%d" % (LS + i, OF + i, vT) for i in range(4)]
va += ["v_exp_f32 v%d, v%d" % (LS + i, LS + i) for i in range(4)]
va += ["s_nop 0"]
va += ["v_mov_b32_dpp v%d, v%d row_ror:8 row_mask:0xf bank_mask:0x3" % (LS + i, LS + i) for i in range(4)]
va += ["v_add_f32 v%d, v%d, v%d" % (vT, LS, LS + 1), "v_add_f32 v%d, v%d, v%d" % (vT + 1, LS + 2, LS + 3),
       "v_add_f32 v%d, v%d, v%d" % (vT, vT, vT + 1), "v_mov_b32 v%d, v%d" % (vT + 1, vT)]
for t in range(2, 4):
    for ct in range(4):
        mfma(DA + 4 * ct, OF + 4 * t, WOF + 16 * ct + 4 * t, DA + 4 * ct)
        for k in range(3 if t == 3 or ct < 1 else 2):
            if va: A(va.pop(0))
assert not va
A("s_mov_b32 s%d, 0x55555555" % sT4)
A("s_mov_b32 s%d, 0x55555555" % sT5)
A("v_permlane16_swap_b32 v%d, v%d" % (vT, vT + 1))
A("v_mul_f32 v%d, v%d, v%d" % (DA, DA, LS))
A("v_add_f32 v%d, v%d, v%d" % (vT, vT, vT + 1))
A("v_mul_f32 v%d, v%d, v%d" % (DA + 4, DA + 4, LS))
A("v_rcp_f32 v%d, v%d" % (vT, vT))
A("v_mul_f32 v%d, v%d, v%d" % (DA + 8, DA + 8, LS))
for i in range(1, 4):
    for ct in range(3):
        A("v_fmac_f32 v%d, v%d, v%d" % (DA + 4 * ct, DA + 4 * ct + i, LS + i))
    if i == 1: A("v_mul_f32 v%d, v%d, v%d" % (DA + 12, DA + 12, LS))
for i in range(1, 4): A("v_fmac_f32 v%d, v%d, v%d" % (DA + 12, DA + 12 + i, LS + i))
A("v_permlane16_swap_b32 v%d, v%d" % (DA, DA + 4))
A("s_nop 0")
A("v_permlane16_swap_b32 v%d, v%d" % (DA + 8, DA + 12))
A("v_add_f32 v%d, v%d, v%d" % (DA, DA, DA + 4))
A("v_add_f32 v%d, v%d, v%d" % (DA + 8, DA + 8, DA + 12))
A("s_nop 1")
A("v_permlane32_swap_b32 v%d, v%d" % (DA, DA + 8))
A("v_mul_f32 v%d, v%d, v%d" % (DA, DA, vT))
A("s_cmp_lg_u32 s%d, 0" % sLAY)
A("s_nop 0")
A("v_mov_b32_dpp v%d, v%d quad_perm:[1,0,3,2] row_mask:0xf bank_mask:0xf" % (DA + 1, DA))
A("s_mov_b64 exec, %s" % sr(sT4, 2))
A("v_cvt_pk_bf16_f32 v%d, v%d, v%d" % (DA, DA, DA + 1))
A("buffer_store_dword v%d, v%d, %s, s%d offen sc1" % (DA, vPST, sr(sWS, 4), sPS))
A("s_mov_b64 exec, -1")
STAMP(8)
A("s_cbranch_scc1 Lfinal")

A("s_cmp_lg_u32 s%d, 0" % sW)
A("s_cbranch_scc1 Ltab")
C("stage 1 (wave 0): reduce 32 head partials of 64 outputs, add residual, publish x1 slice")
soff(sT1, [(sA, 15), (sC, 12)], PB)
soff(sT2, [(sA, 10), (sC, 7), (sJ, 17)], X1_OFF)
A("s_mov_b32 s%d, 0x00ff00ff" % sT4)
A("s_mov_b32 s%d, 0" % sT5)
def ip(k):
    for i in range(4):
        A("buffer_load_dwordx4 %s, v%d, %s, s%d offen offset:%d sc1" % (vr(W + 20 * k + 4 * i, 4), vL16, sr(sWS, 4), sT1, 1024 * i))
if GW: A("s_waitcnt vmcnt(0)")
ppoll(ip, lambda k: range(W + 20 * k, W + 20 * k + 16), 4, vT, lambda k: [mf(W + 16, SEL, W + 20 * k + 4 * i, None if i == 0 else W + 16) for i in range(4)], pre=GPRE, gap=GGAP, tag=2)
STAMP(9)
fastcmp()
NOP(6)
for i in range(4):
    A("v_add_f32_dpp v%d, v%d, v%d row_ror:8 row_mask:0xf bank_mask:0xf" % (W + 16 + i, W + 16 + i, W + 16 + i))
A("s_mov_b64 exec, %s" % sr(sT4, 2))
A("v_pk_add_f32 %s, %s, %s" % (vr(W + 16, 2), vr(W + 16, 2), vr(RES, 2)))
A("v_pk_add_f32 %s, %s, %s" % (vr(W + 18, 2), vr(W + 18, 2), vr(RES + 2, 2)))
A("v_cvt_pk_bf16_f32 v%d, v%d, v%d" % (W + 16, W + 16, W + 17))
A("v_cvt_pk_bf16_f32 v%d, v%d, v%d" % (W + 17, W + 18, W + 19))
store_local("buffer_store_dwordx2", vr(W + 16, 2), vX1S, sT2)
A("s_mov_b64 exec, -1")
LB("Ltabdone")
soff(sT3, [(sW, 10), (sJ, 17)], X1_OFF)
def ix(k):
    A("buffer_load_dwordx4 %s, v%d, %s, s%d offen sc1" % (vr([XR, RES][k], 4), vL16, sr(sWS, 4), sT3))
wqf_reads()
ppoll(ix, lambda k: range([XR, RES][k], [XR, RES][k] + 4), 1, vT, lambda k: ["s_waitcnt lgkmcnt(0)", "v_readfirstlane_b32 s%d, v%d" % (sT1, vT + 2)],
      pre=XPRE, gap=XGAP, mid=lambda: A("ds_read_b32 v%d, v%d offset:20" % (vT + 2, vFL)), tag=3,
      fix=["v_mov_b32 v%d, v%d" % (XR + i, RES + i) for i in range(4)])
A("s_cmp_lt_u32 s%d, 3" % sT1)
A("s_cbranch_scc1 Ltw")
LB("Ltwd")
STAMP(10)

LB("Lmix")
C("x <- x + g(LN(LN(x))) ; g is tabulated for every bf16 input in range, evaluated directly otherwise")
X = W; HB = W + 8; RT = W + 12; AD = W + 16; Y = W + 24
row_stats(XR, vT, X)
A("v_add_f32 v%d, %s, v%d" % (vT + 2, EPS, vT + 1))
A("v_rsq_f32 v%d, v%d" % (vT + 2, vT + 2))
A("v_mov_b32 v%d, %s" % (vT + 4, hx(LO2 | (LO2 << 16))))
A("v_mul_f32 v%d, v%d, v%d" % (vT + 1, vT + 1, vT + 2))
A("v_fmaak_f32 v%d, v%d, v%d, %s" % (vT + 1, vT + 1, vT + 2, EPS))
A("v_rsq_f32 v%d, v%d" % (vT + 1, vT + 1))
A("s_nop 0")
A("v_mul_f32 v%d, v%d, v%d" % (vT + 2, vT + 2, vT + 1))
A("v_mul_f32 v%d, v%d, v%d" % (vT + 3, vT, vT + 2))
for i in range(4):
    A("v_pk_fma_f32 %s, %s, %s, %s op_sel:[0,0,1] op_sel_hi:[1,0,1] neg_lo:[0,0,1] neg_hi:[0,0,1]" % (vr(AD + 2 * i, 2), vr(X + 2 * i, 2), vr(vT + 2, 2), vr(vT + 2, 2)))
for i in range(4):
    A("v_cvt_pk_bf16_f32 v%d, v%d, v%d" % (HB + i, AD + 2 * i, AD + 2 * i + 1))
for i in range(4):
    A("v_pk_lshlrev_b16 v%d, 1, v%d op_sel_hi:[0,1]" % (RT + i, HB + i))
    A("v_pk_lshrrev_b16 v%d, 15, v%d op_sel_hi:[0,1]" % (AD + i, HB + i))
for i in range(4):
    A("v_or_b32 v%d, v%d, v%d" % (RT + i, RT + i, AD + i))
for i in range(4):
    A("v_pk_sub_u16 v%d, v%d, v%d" % (RT + i, RT + i, vT + 4))
for i in range(4):
    A("v_lshlrev_b32_sdwa v%d, 2, v%d dst_sel:DWORD dst_unused:UNUSED_PAD src0_sel:DWORD src1_sel:WORD_0" % (AD + 2 * i, RT + i))
    A("v_lshlrev_b32_sdwa v%d, 2, v%d dst_sel:DWORD dst_unused:UNUSED_PAD src0_sel:DWORD src1_sel:WORD_1" % (AD + 2 * i + 1, RT + i))
    A("ds_read_b32 v%d, v%d offset:%d" % (Y + 2 * i, AD + 2 * i, L_TAB))
    A("ds_read_b32 v%d, v%d offset:%d" % (Y + 2 * i + 1, AD + 2 * i + 1, L_TAB))
A("v_max3_u32 v%d, v%d, v%d, v%d" % (vT, AD, AD + 1, AD + 2))
A("v_max3_u32 v%d, v%d, v%d, v%d" % (vT + 1, AD + 3, AD + 4, AD + 5))
A("v_max3_u32 v%d, v%d, v%d, v%d" % (vT, vT, AD + 6, AD + 7))
A("v_max_u32 v%d, v%d, v%d" % (vT, vT, vT + 1))
A("v_cmp_le_u32 vcc, %d, v%d" % (NENT * 4, vT))
A("s_cbranch_vccnz Lslow")
LB("Lslowdone")
A("s_cmp_lg_u32 s%d, 0" % sLAY)
for i in range(4):
    A("s_waitcnt lgkmcnt(%d)" % (6 - 2 * i))
    A("v_pk_add_f32 %s, %s, %s" % (vr(X + 2 * i, 2), vr(X + 2 * i, 2), vr(Y + 2 * i, 2)))
for i in range(4):
    A("v_cvt_pk_bf16_f32 v%d, v%d, v%d" % (XR + i, X + 2 * i, X + 2 * i + 1))
STAMP(11)
A("s_cbranch_scc1 Lout")
A("ds_write_b128 v%d, %s offset:%d" % (vXNW, vr(XR, 4), L_X2 - L_XN))
A("s_mov_b32 s%d, 1" % sLAY)
if TOT: A("s_memrealtime s[100:101]")
for s, d in [(sOL, O_OFF[1] - O_OFF[0]), (sOS, O_OFF[1] - O_OFF[0]), (sLS, LSE_OFF[1] - LSE_OFF[0]), (sPS, P_L)]:
    A("s_add_u32 s%d, s%d, %d" % (s, s, d))
if DIAG: A("v_mov_b32 v28, v30")
A("s_branch Llnq")

L.append(".p2align 6"); LB("Lst_fin"); A("s_setpc_b64 %s" % sr(sRET, 2)); stubs.append("fin")
LB("Lfinal")
A("s_cmp_ge_u32 s2, 4")
A("s_cbranch_scc1 Lepoch")
C("workgroup b: reduce the 32 head partials of row b, add x2, mixer, store")
soff(sT1, [(2, 15), (sW, 13)], PB + P_L)
A("s_add_u32 s%d, s%d, 4096" % (sT2, sT1))
A("s_mul_i32 s%d, s2, %d" % (sT0, XS))
A("s_lshl_b32 s%d, s%d, 8" % (sT3, sW))
A("s_add_u32 s%d, s%d, s%d" % (sT0, sT0, sT3))
A("s_add_u32 s%d, s%d, %d" % (sT0, sT0, L_X2))
A("v_add_u32 v%d, s%d, v%d" % (vT + 4, sT0, vX1S))
A("s_add_u32 s%d, s%d, %d" % (sT3, sT3, L_XN))
A("v_add_u32 v%d, s%d, v%d" % (vT + 5, sT3, vX1S))
A("ds_read_b64 %s, v%d" % (vr(PM, 2), vT + 4))
A("ds_read_b64 %s, v%d offset:128" % (vr(PM + 2, 2), vT + 4))
A("s_mov_b32 s%d, 0x00ff00ff" % sT4)
A("s_mov_b32 s%d, 0" % sT5)
A("s_waitcnt lgkmcnt(0)")
if GW: A("s_waitcnt vmcnt(0)")
for i in range(4):
    A("v_lshlrev_b32 v%d, 16, v%d" % (PM + 4 + 2 * i, PM + i))
    A("v_and_b32 v%d, 0xffff0000, v%d" % (PM + 5 + 2 * i, PM + i))
FS = [KF, VF]
def ifin(k):
    for i in range(8):
        A("buffer_load_dwordx4 %s, v%d, %s, s%d offen offset:%d sc1" % (vr(FS[k] + 4 * i, 4), vL16, sr(sWS, 4), sT1 if i < 4 else sT2, 1024 * (i & 3)))
def fs(k):
    o = []
    for i in range(4):
        o.append(mf(W + 32, SEL, FS[k] + 4 * i, None if i == 0 else W + 32))
        o.append(mf(W + 36, SEL, FS[k] + 16 + 4 * i, None if i == 0 else W + 36))
    return o
ppoll(ifin, lambda k: range(FS[k], FS[k] + 32), 8, vT, fs, pre=GPRE, gap=GGAP, tag=2)
STAMP(9)
NOP(7)
for i in range(8):
    A("v_add_f32_dpp v%d, v%d, v%d row_ror:8 row_mask:0xf bank_mask:0xf" % (W + 32 + i, W + 32 + i, W + 32 + i))
A("s_mov_b64 exec, %s" % sr(sT4, 2))
for i in range(4):
    A("v_pk_add_f32 %s, %s, %s" % (vr(W + 32 + 2 * i, 2), vr(W + 32 + 2 * i, 2), vr(PM + 4 + 2 * i, 2)))
for i in range(4):
    A("v_cvt_pk_bf16_f32 v%d, v%d, v%d" % (W + 32 + i, W + 32 + 2 * i, W + 33 + 2 * i))
A("ds_write_b64 v%d, %s" % (vT + 5, vr(W + 32, 2)))
A("ds_write_b64 v%d, %s offset:128" % (vT + 5, vr(W + 34, 2)))
A("s_mov_b64 exec, -1")
A("s_cmp_lg_u32 s%d, 0" % sW)
A("s_waitcnt lgkmcnt(0)")
A("s_barrier")
A("s_cbranch_scc1 Lfin_exit")
A("ds_read_b128 %s, v%d" % (vr(XR, 4), vXNW))
A("s_waitcnt lgkmcnt(0)")
STAMP(10)
A("s_branch Lmix")
L.append(".p2align 6"); LB("Lst_out"); A("s_setpc_b64 %s" % sr(sRET, 2)); stubs.append("out")
LB("Lout")
A("s_lshl_b32 s%d, s2, 10" % sT0)
A("buffer_store_dwordx4 %s, v%d, %s, s%d offen" % (vr(XR, 4), vL16, sr(sOUT, 4), sT0))
if DBL:
    A("s_cmp_lg_u32 s2, 0")
    A("s_cbranch_scc1 Lfin_exit")
if DBL:
    A("s_waitcnt vmcnt(0)")
    A("s_memrealtime s[10:11]")
    A("s_waitcnt lgkmcnt(0)")
    A("s_sub_u32 s12, s10, s98")
    if "pad" in OPT:
        A("s_mov_b32 s10, s98"); A("s_mov_b32 s12, %d" % (100 * int(OPT["pad"])))
    LB("Ldbl")
    A("s_memrealtime s[14:15]")
    A("s_waitcnt lgkmcnt(0)")
    A("s_sub_u32 s13, s14, s10")
    A("s_cmp_lt_u32 s13, s12")
    A("s_cbranch_scc1 Ldbl")
LB("Lfin_exit")
if TOT:
    A("s_waitcnt vmcnt(0)")
    A("s_memrealtime s[10:11]")
    A("s_waitcnt lgkmcnt(0)")
    A("v_mov_b32 v16, s98")
    A("v_mov_b32 v17, s10")
    A("v_mov_b32 v18, s100")
    A("v_mov_b32 v19, s97")
    soff(sT2, [(2, 6), (sW, 4)], STB)
    A("v_mov_b32 v20, 0")
    A("s_mov_b64 exec, 1")
    A("buffer_store_dwordx4 v[16:19], v20, %s, s%d offen" % (sr(sWS, 4), sT2))
if DIAG:
    A("s_waitcnt vmcnt(0)")
    STAMP(12)
    if DIAG == 2:
        A("s_or_b32 s%d, s2, s%d" % (sT0, sW))
        A("s_cmp_lg_u32 s%d, 0" % sT0)
        A("s_cbranch_scc1 Lend")
        A("v_readlane_b32 s%d, v28, 0" % sT2)
        for k, (r, i) in enumerate([(31, 10), (31, 12), (28, 1), (28, 2), (28, 6), (28, 5), (28, 7), (28, 8), (28, 9), (28, 10), (28, 11), (30, 3), (30, 5), (30, 8), (30, 9), (30, 12)]):
            A("v_readlane_b32 s%d, v%d, %d" % (sT3, r, i))
            A("s_sub_u32 s%d, s%d, s%d" % (sT3, sT3, sT2))
            A("s_nop 0")
            A("v_writelane_b32 v17, s%d, %d" % (sT3, k))
        A("v_lshlrev_b32 v16, 2, v%d" % vLANE)
        A("s_mov_b64 exec, 0xffff")
        A("global_store_dword v16, v17, s[100:101]")
        A("s_endpgm")
    soff(sT1, [(2, 10), (sW, 7)], STB)
    A("v_lshlrev_b32 v16, 2, v%d" % vLANE)
    A("s_mov_b64 exec, 0xffff")
    A("buffer_store_dword v28, v16, %s, s%d offen" % (sr(sWS, 4), sT1))
    A("buffer_store_dword v30, v16, %s, s%d offen offset:64" % (sr(sWS, 4), sT1))
    A("s_add_u32 s%d, s%d, 0x40000" % (sT1, sT1))
    A("buffer_store_dword v31, v16, %s, s%d offen" % (sr(sWS, 4), sT1))
LB("Lend")
A("s_endpgm")
LB("Lepoch")
C("every workgroup has used the old launch tag long ago: workgroup 4 advances it")
A("s_lshl_b32 s%d, s%d, 8" % (sT0, sW))
A("s_add_u32 s%d, s%d, s2" % (sT0, sT0))
A("s_cmp_lg_u32 s%d, 4" % sT0)
A("s_cbranch_scc1 Lfin_exit")
A("v_mov_b32 v16, s%d" % sTG1)
A("v_mov_b32 v17, %s" % hx(EPO))
A("s_mov_b64 exec, 1")
A("buffer_store_dword v16, v17, %s, 0 offen sc1" % sr(sWS, 4))
A("s_mov_b64 exec, -1")
A("s_branch Lfin_exit")

L.append(".p2align 6"); LB("Lst_tab"); A("s_setpc_b64 %s" % sr(sRET, 2)); stubs.append("tab")
LB("Ltab")
C("waves 1..3: gather the g(h) table into LDS")
NTL = -(-NENT * 4 // 3 // 1024)
A("s_sub_u32 s%d, s%d, 1" % (sT1, sW))
A("s_mul_i32 s%d, s%d, %d" % (sT1, sT1, NTL * 1024))
A("s_min_u32 s%d, s%d, %d" % (sT1, sT1, NENT * 4 - NTL * 1024))
A("v_add_u32 v%d, s%d, v%d" % (vT + 4, sT1, vL16))
A("s_add_u32 s%d, s%d, %s" % (sT1, sT1, hx(TB)))
A("s_add_u32 s%d, s%d, 4096" % (sT2, sT1))
def it():
    for i in range(NTL):
        A("buffer_load_dwordx4 %s, v%d, %s, s%d offen offset:%d sc1" % (vr(W + 4 * i, 4), vL16, sr(sWS, 4), sT1 if i < 4 else sT2, 1024 * (i & 3)))
poll(it, range(W, W + 4 * NTL), vT, back="s_sleep 16")
for i in range(NTL):
    A("ds_write_b128 v%d, %s offset:%d" % (vT + 4, vr(W + 4 * i, 4), L_TAB + 1024 * i))
A("s_waitcnt lgkmcnt(0)")
lds_arrive(20, vT + 4)
STAMP(9)
A("s_branch Ltabdone")
LB("Ltw")
lds_spin(20, 3, vT + 2)
A("s_branch Ltwd")

LB("Lslow")
C("rare: some h lies outside the table -> evaluate g(h) directly for those lanes")
RW1 = [W + 32 + i for i in range(14)]
RB1 = [PM + i for i in range(14)]
RW2 = [16 + i for i in range(10)] + [W + 46, W + 47, PM + 14, PM + 15]
A("v_lshlrev_b32 v26, 3, v%d" % vLANE)
A("s_load_dword s%d, %s, 0" % (sB2, sr(sB2P, 2)))
for (d4, d2, s) in [([W + 32, W + 36, W + 40], W + 44, sW1), ([PM, PM + 4, PM + 8], PM + 12, sB1)]:
    for k in range(3):
        A("buffer_load_dwordx4 %s, v%d, %s, 0 offen offset:%d" % (vr(d4[k], 4), vL16, sr(s, 4), 1024 * k))
    A("buffer_load_dwordx2 %s, v26, %s, 0 offen offset:3072" % (vr(d2, 2), sr(s, 4)))
A("buffer_load_dwordx4 v[16:19], v%d, %s, 0 offen" % (vL16, sr(sW2, 4)))
A("buffer_load_dwordx4 v[20:23], v%d, %s, 0 offen offset:1024" % (vL16, sr(sW2, 4)))
A("buffer_load_dwordx2 v[24:25], v%d, %s, 0 offen offset:2048" % (vL16, sr(sW2, 4)))
A("buffer_load_dwordx2 %s, v%d, %s, 0 offen offset:2056" % (vr(W + 46, 2), vL16, sr(sW2, 4)))
A("buffer_load_dwordx2 %s, v26, %s, 0 offen offset:3072" % (vr(PM + 14, 2), sr(sW2, 4)))
A("s_waitcnt vmcnt(0) lgkmcnt(0)")
A("s_lshl_b32 s%d, s%d, 16" % (sB2, sB2))
for e in range(8):
    A("v_cmp_le_u32 vcc, %d, v%d" % (NENT * 4, AD + e))
    A("s_mov_b64 %s, vcc" % sr(sH2, 2))
    LB("Lse%d" % e)
    A("s_cmp_eq_u64 %s, 0" % sr(sH2, 2))
    A("s_cbranch_scc1 Lsf%d" % e)
    A("s_ff1_i32_b64 s%d, %s" % (sT0, sr(sH2, 2)))
    A("s_bitset0_b64 %s, s%d" % (sr(sH2, 2), sT0))
    A("s_mov_b32 m0, s%d" % sT0)
    A("v_readlane_b32 s%d, v%d, s%d" % (sH, HB + (e >> 1), sT0))
    if e & 1: A("s_and_b32 s%d, s%d, 0xffff0000" % (sH, sH))
    else: A("s_lshl_b32 s%d, s%d, 16" % (sH, sH))
    A("s_call_b64 %s, Lgev" % sr(sRET, 2))
    A("v_writelane_b32 v%d, s%d, m0" % (Y + e, sY))
    A("s_branch Lse%d" % e)
    LB("Lsf%d" % e)
for i in range(16): A("v_mov_b32 v%d, 0" % (PM + i))
A("s_branch Lslowdone")
LB("Lgev")
a, u, t1, z = RES, RES + 1, RES + 2, RT
A("v_mov_b32 v%d, 0" % a)
A("v_mov_b32 v%d, %s" % (RT + 1, hx(f2u(K0))))
A("v_mov_b32 v%d, %s" % (RT + 2, hx(f2u(K1))))
for p in range(14):
    for hf in range(2):
        def un(d, s):
            if hf == 0: A("v_lshlrev_b32 v%d, 16, v%d" % (d, s))
            else: A("v_and_b32 v%d, 0xffff0000, v%d" % (d, s))
        un(u, RW1[p]); un(t1, RB1[p]); un(z, RW2[p])
        A("v_fma_f32 v%d, v%d, s%d, v%d" % (u, u, sH, t1))
        A("v_mul_f32 v%d, v%d, v%d" % (t1, u, u))
        A("v_fma_f32 v%d, v%d, v%d, v%d" % (t1, t1, RT + 2, RT + 1))
        A("v_mul_f32 v%d, v%d, v%d" % (t1, t1, u))
        A("v_exp_f32 v%d, v%d" % (t1, t1))
        A("v_mul_f32 v%d, v%d, v%d" % (z, z, u))
        A("v_add_f32 v%d, 1.0, v%d" % (t1, t1))
        A("v_rcp_f32 v%d, v%d" % (t1, t1))
        A("s_nop 0")
        A("v_fmac_f32 v%d, v%d, v%d" % (a, z, t1))
A("v_mov_b32 v%d, v%d" % (u, a))
A("s_nop 1")
wave_sum2(a, u, sY, sT1)
A("s_nop 1")
A("v_mov_b32 v%d, s%d" % (a, sY))
A("v_cvt_pk_bf16_f32 v%d, v%d, v%d" % (a, a, a))
A("v_and_b32 v%d, 0xffff0000, v%d" % (a, a))
A("v_add_f32 v%d, s%d, v%d" % (a, sB2, a))
A("v_cvt_pk_bf16_f32 v%d, v%d, v%d" % (a, a, a))
A("v_and_b32 v%d, 0xffff0000, v%d" % (a, a))
A("s_nop 0")
A("v_readfirstlane_b32 s%d, v%d" % (sY, a))
A("s_nop 3")
A("s_setpc_b64 %s" % sr(sRET, 2))

for b in ool: L += b
A("s_endpgm")
L.append(".p2align 8")
L.append(".fill %d, 4, 0xBF800000" % (64 if DIAG else 512))
L.append('''.section .rodata,"a"
.p2align 6
.amdhsa_kernel %s_kernel
  .amdhsa_next_free_vgpr 256
  .amdhsa_next_free_sgpr 102
  .amdhsa_accum_offset 256
  .amdhsa_group_segment_fixed_size 0
  .amdhsa_kernarg_size 104
  .amdhsa_user_sgpr_count 2
  .amdhsa_user_sgpr_kernarg_segment_ptr 1
  .amdhsa_system_sgpr_workgroup_id_x 1
.end_amdhsa_kernel''' % NAME)
open(OUTF, "w").write("\n".join(x for x in L if x is not None) + "\n")
print("wrote", OUTF, "lines", len(L), "LDS", LDS_SZ)
```

```python
import sys, struct, math

NAME = "interleave_layers__sliding_block_cached__mixer_token_mlp__decode"
OUTF = sys.argv[1] if len(sys.argv) > 1 else "cdna_kernels/%s.s" % NAME
DIAG = int(sys.argv[2]) if len(sys.argv) > 2 else 0
DBL = 0
if DIAG == 3: DIAG = 0; DBL = 1
TOT = 0
if DIAG == 4: DIAG = 0; TOT = 1
OPT = dict(a.split("=") for a in sys.argv[3:])
DEPTH = int(OPT.get("depth", 8))
D0 = int(OPT.get("d0", 3))
D1 = int(OPT.get("d1", 4))
DC = int(OPT.get("dc", 4))
TAILI = int(OPT.get("taili", 11))
TAILD = int(OPT.get("taild", 8))
QV = int(OPT.get("qv", 3))
PRET = int(OPT.get("pret", 1))
GW = int(OPT.get("gw", 1))
GPRE = int(OPT.get("gpre", 0))
GGAP = int(OPT.get("ggap", -1))
WARM = int(OPT.get("warm", 1))
QPRE = int(OPT.get("qpre", -1)); QGAP = int(OPT.get("qgap", -1))
OPRE = int(OPT.get("opre", -1)); OGAP = int(OPT.get("ogap", -1))
XPRE = int(OPT.get("xpre", -1)); XGAP = int(OPT.get("xgap", -1))
FINE = OPT.get("fine", "")
QS = int(OPT.get("qs", 0))
ADP = int(OPT.get("adp", 0))
ROT = int(OPT.get("rot", 1)); VROT = int(OPT.get("vrot", 0))
WROT = int(OPT.get("wrot", 0))
QT = int(OPT.get("qt", 0))
DRY = int(OPT.get("dry", 0))
HP = int(OPT.get("hp", 0))
NOCT = int(OPT.get("noct", 16))
QPOS = int(OPT.get("qpos", 1))
QPOS2 = int(OPT.get("qpos2", 7))

def f2u(x): return struct.unpack("<I", struct.pack("<f", x))[0]
def hx(x): return "0x%08x" % (x & 0xffffffff)

L = []
def A(s): L.append("    " + s)
def LB(s): L.append(s + ":")
def C(s): L.append("    ; " + s)
def vr(a, n): return "v[%d:%d]" % (a, a + n - 1)
def sr(a, n): return "s[%d:%d]" % (a, a + n - 1)
def NOP(n):
    while n > 0:
        k = min(n, 16); A("s_nop %d" % (k - 1)); n -= k

ELO = int(OPT.get('elo', 132 - NOCT if NOCT == 24 else 130 - NOCT))
LO2 = (ELO << 7) * 2
NENT = NOCT * 256
EPW = NENT // 256 // 4 // 2
GRS = 0x20000
O_OFF = [0x0000, 0xC400]; LSE_OFF = [0x8000, 0x14400]; Q1_OFF = 0x8400; X1_OFF = 0x14600
CLRA_PER = 1040
CLRB_OFF = 0x8400; CLRB_PER = 1680
Q0_OFF = 0x18000
EPO = 0x17f00
PB = 0x100000; P_L = 0x20000
TB = 0x140000; FB = 0x148000
QB_DELTA = 0x180000
STB = 0x300000
WS_SZ = 0x400000
L_TAB = 0
L_WQ = 24576; L_K = L_WQ + 16384; L_V = L_K + 32768; L_WO = L_V + 32768
L_XN = L_WO + 16384; XS = 1056
L_X2 = L_XN + 4 * XS
L_FLG = L_X2 + 4 * XS
L_RB = L_K; RBS = 2048 + 64; L_ML = L_K + 4 * RBS
L_QF = L_X2
LDS_SZ = int(OPT.get("lds", L_FLG + 64))
SPIN = 0x40000
K0 = -2.0 * math.sqrt(2.0 / math.pi) * math.log2(math.e)
K1 = K0 * 0.044715
EPS = hx(f2u(1e-5))

sTG1, sTG2 = 0, 1
sW, sJ, sA, sC, sGR, sLAY, sFAST = 3, 4, 5, 6, 7, 8, 9
sT0, sT1, sT2, sT3, sT4, sT5 = 10, 11, 12, 13, 14, 15
sCNT = 16
sQL, sQS, sOL, sOS, sLL, sLS, sPS = 17, 18, 19, 20, 21, 22, 23
sSC, sIT = 24, 25
sSUM, sSQ = 26, 27
sH, sH2, sRET, sMSK = 28, 30, 32, 34
sB2, sY, sXCC, sE = 36, 37, 38, 39
sB2P = 40
sK, sV, sWQ, sWO, sWS, sX, sOUT, sW1, sB1, sW2 = 44, 48, 52, 56, 60, 64, 68, 72, 76, 80
sKO, sKL, sVO, sVL = 84, 85, 86, 87
sPM = 88
sHC, sHT = 84, 85

def STAMP(i):
    if DIAG:
        A("s_memrealtime s[42:43]"); A("s_waitcnt lgkmcnt(0)")
        A("v_writelane_b32 v30, s42, %d" % i)

def CST(i):
    if DIAG == 1 and FINE:
        A("s_memtime s[42:43]"); A("s_waitcnt lgkmcnt(0)")
        A("v_writelane_b32 v31, s42, %d" % i)

vLANE = 1
vL16, vQST, vOST, vOLD, vPST, vX1S, vXNW, vXNR, vRBW, vRBR, vMLW, vMLR, vLSE, vZ = range(2, 16)
vT = 16
vWT, vFL = 28, 29
vLS2 = 27
KF, VF, WQF, WOF, SEL, ONES = 32, 64, 96, 112, 176, 180
W = 184
PM = 232
XR = 248
RES = 252

def srd(s, nbytes):
    A("s_mov_b32 s%d, %s" % (s + 2, hx(nbytes))); A("s_mov_b32 s%d, 0x00020000" % (s + 3))

def soff(dst, terms, const):
    first = True
    for (src, sh) in terms:
        if first: A("s_lshl_b32 s%d, s%d, %d" % (dst, src, sh)); first = False
        else:
            A("s_lshl_b32 s%d, s%d, %d" % (sT0, src, sh)); A("s_add_u32 s%d, s%d, s%d" % (dst, dst, sT0))
    if const: A("s_add_u32 s%d, s%d, %s" % (dst, dst, hx(const)))

def wave_sum2(a, b, sa, sb):
    for ctl in ["row_ror:8", "row_ror:4", "row_ror:2", "row_ror:1"]:
        A("v_add_f32_dpp v%d, v%d, v%d %s row_mask:0xf bank_mask:0xf" % (a, a, a, ctl))
        A("v_add_f32_dpp v%d, v%d, v%d %s row_mask:0xf bank_mask:0xf" % (b, b, b, ctl))
        A("s_nop 0")
    for ctl in ["row_bcast:15 row_mask:0xa", "row_bcast:31 row_mask:0xc"]:
        A("v_add_f32_dpp v%d, v%d, v%d %s bank_mask:0xf" % (a, a, a, ctl))
        A("v_add_f32_dpp v%d, v%d, v%d %s bank_mask:0xf" % (b, b, b, ctl))
        A("s_nop 0")
    A("v_readlane_b32 s%d, v%d, 63" % (sa, a))
    A("v_readlane_b32 s%d, v%d, 63" % (sb, b))

def row_stats(x, t, unp):
    A("v_dot2_f32_bf16 v%d, v%d, v%d, 0" % (t, x, ONES))
    A("v_dot2_f32_bf16 v%d, v%d, v%d, 0" % (t + 1, x, x))
    for i in range(1, 4):
        A("v_dot2_f32_bf16 v%d, v%d, v%d, v%d" % (t, x + i, ONES, t))
        A("v_dot2_f32_bf16 v%d, v%d, v%d, v%d" % (t + 1, x + i, x + i, t + 1))
    un = []
    for i in range(4):
        un.append("v_lshlrev_b32 v%d, 16, v%d" % (unp + 2 * i, x + i))
        un.append("v_and_b32 v%d, 0xffff0000, v%d" % (unp + 2 * i + 1, x + i))
    for k in range(3): A(un.pop(0))
    a, b = t, t + 1
    for ctl in ["row_ror:8 row_mask:0xf", "row_ror:4 row_mask:0xf", "row_ror:2 row_mask:0xf", "row_ror:1 row_mask:0xf", "row_bcast:15 row_mask:0xa", "row_bcast:31 row_mask:0xc"]:
        A("v_add_f32_dpp v%d, v%d, v%d %s bank_mask:0xf" % (a, a, a, ctl))
        A("v_add_f32_dpp v%d, v%d, v%d %s bank_mask:0xf" % (b, b, b, ctl))
        A(un.pop(0) if un else "s_nop 0")
    A("v_readlane_b32 s%d, v%d, 63" % (sSUM, a))
    A("v_readlane_b32 s%d, v%d, 63" % (sSQ, b))
    A("s_nop 0")
    A("v_mul_f32 v%d, s%d, v%d" % (t, sSUM, vZ))
    A("v_mul_f32 v%d, s%d, v%d" % (t + 1, sSQ, vZ))
    A("v_fma_f32 v%d, -v%d, v%d, v%d" % (t + 1, t, t, t + 1))
    A("v_max_f32 v%d, 0, v%d" % (t + 1, t + 1))

ool = []
uid = [0]
def maxtree(regs, tmp):
    r = list(regs); out = []
    out.append("v_max3_u32 v%d, v%d, v%d, v%d" % (tmp, r[0], r[1], r[2])); r = r[3:]
    if len(r) >= 5:
        out.append("v_max3_u32 v%d, v%d, v%d, v%d" % (tmp + 1, r[0], r[1], r[2])); r = r[3:]
        d = 0
        while len(r) >= 2:
            out.append("v_max3_u32 v%d, v%d, v%d, v%d" % (tmp + d, tmp + d, r[0], r[1])); r = r[2:]; d ^= 1
        if r: out.append("v_max3_u32 v%d, v%d, v%d, v%d" % (tmp, tmp, tmp + 1, r[0]))
        else: out.append("v_max_u32 v%d, v%d, v%d" % (tmp, tmp, tmp + 1))
    else:
        while len(r) >= 2:
            out.append("v_max3_u32 v%d, v%d, v%d, v%d" % (tmp, tmp, r[0], r[1])); r = r[2:]
        if r: out.append("v_max_u32 v%d, v%d, v%d" % (tmp, tmp, r[0]))
    return out

def poll(issue, regs, tmp, pre_wait=None, spec=None, back="s_nop 7", tag=None, stub=None):
    uid[0] += 1; u = uid[0]
    A("s_mov_b32 s%d, %s" % (sCNT, hx(SPIN)))
    LB("Lp%d" % u)
    issue()
    if pre_wait: pre_wait()
    A("s_waitcnt vmcnt(0)")
    mt = maxtree(regs, tmp) + ["v_cmp_eq_u32 vcc, -1, v%d" % tmp]
    spec = list(spec or [])
    ns = len(spec)
    per = -(-len(mt) // ns) if ns else 0
    for s in spec:
        A(s)
        for k in range(per):
            if mt: A(mt.pop(0))
    for m in mt: A(m)
    A("s_cbranch_vccz Ld%d" % u)
    A("s_sub_u32 s%d, s%d, 1" % (sCNT, sCNT))
    if back != "s_nop 7": A(back)
    A("s_cbranch_scc0 Lp%d" % u)
    if stub: touch_stub(stub)
    LB("Ld%d" % u)
    if DIAG and tag is not None:
        A("s_lshl_b32 m0, s%d, 2" % sLAY); A("s_add_u32 m0, m0, %d" % tag); A("s_nop 0")
        A("v_writelane_b32 v31, s%d, m0" % sCNT)

stubs = []
def touch_stub(name, branch_over=None):
    A("s_branch Lsk_%s" % name)
    L.append(".p2align 6")
    LB("Lst_%s" % name)
    A("s_setpc_b64 %s" % sr(sRET, 2))
    LB("Lsk_%s" % name)
    stubs.append(name)

def delay(cyc):
    if cyc == -1:
        A("s_waitcnt vmcnt(0)"); return
    while cyc >= 64:
        k = min(cyc // 64, 15); A("s_sleep %d" % k); cyc -= 64 * k
    if cyc >= 8: A("s_nop %d" % min(15, cyc // 4 - 1))

def ppoll(issue, regs, n, tmp, spec, pre=0, gap=128, mid=None, tag=None, fix=None, stub=None, lanes=None):
    uid[0] += 1; u = uid[0]
    def look(k):
        out = ["s_waitcnt vmcnt(%d)" % (n if k == 0 else 0)]
        mt = maxtree(regs(k), tmp) + ["v_cmp_eq_u32 vcc, -1, v%d" % tmp]
        sp = list(spec(k)); per = -(-len(mt) // len(sp)) if sp else 0
        for x in sp:
            out.append(x)
            for _ in range(per):
                if mt: out.append(mt.pop(0))
        return out + mt + (["s_and_b64 vcc, vcc, %s" % sr(lanes, 2)] if lanes else [])
    A("s_mov_b32 s%d, %s" % (sCNT, hx(SPIN)))
    delay(pre)
    fine = FINE and tag == int(FINE)
    if fine: CST(8)
    LB("Lp%d" % u)
    issue(0)
    if fine and 0: CST(9)
    if mid: mid()
    if gap >= 0: delay(gap)
    if gap >= 0: issue(1)
    lk = look(0)
    if gap < 0: lk[0] = "s_waitcnt vmcnt(0)"
    for k, x in enumerate(lk):
        A(x)
        if fine and k == 0: CST(13)
    if fine: CST(14)
    A("s_cbranch_vccz Ld%d" % u)
    if gap < 0: issue(1)
    A("s_sub_u32 s%d, s%d, 1" % (sCNT, sCNT))
    for x in look(1): A(x)
    for x in (fix or []): A(x)
    A("s_cbranch_vccz Ld%d" % u)
    A("s_sub_u32 s%d, s%d, 1" % (sCNT, sCNT))
    A("s_cmp_gt_i32 s%d, 0" % sCNT)
    A("s_cbranch_scc1 Lp%d" % u)
    if stub: touch_stub(stub)
    LB("Ld%d" % u)
    if fine: CST(15)
    if DIAG and tag is not None:
        A("s_lshl_b32 m0, s%d, 2" % sLAY); A("s_add_u32 m0, m0, %d" % tag); A("s_nop 0")
        A("v_writelane_b32 v31, s%d, m0" % sCNT)

def lds_spin(off, target, tmp, mask=None, sleep=0):
    uid[0] += 1; u = uid[0]
    A("s_mov_b32 s%d, %s" % (sT2, hx(SPIN * 4)))
    LB("Ls%d" % u)
    A("ds_read_b32 v%d, v%d offset:%d" % (tmp, vFL, off))
    A("s_waitcnt lgkmcnt(0)")
    A("v_readfirstlane_b32 s%d, v%d" % (sT1, tmp))
    if mask: A("s_and_b32 s%d, s%d, %d" % (sT0, sT1, mask))
    A("s_cmp_ge_u32 s%d, %d" % (sT0 if mask else sT1, target))
    A("s_cbranch_scc1 Lt%d" % u)
    if sleep: A("s_sleep %d" % sleep)
    A("s_sub_u32 s%d, s%d, 1" % (sT2, sT2))
    A("s_cbranch_scc0 Ls%d" % u)
    LB("Lt%d" % u)

def lds_arrive(off, tmp, val=1):
    if val is not None: A("v_mov_b32 v%d, %d" % (tmp, val))
    A("s_mov_b64 exec, 1")
    A("ds_add_u32 v%d, v%d offset:%d" % (vFL, tmp, off))
    A("s_mov_b64 exec, -1")

def store_local(op, data, vaddr, so):
    uid[0] += 1; u = uid[0]
    A("s_cbranch_scc1 Lw%d" % u)
    A("%s %s, v%d, %s, s%d offen" % (op, data, vaddr, sr(sWS, 4), so))
    LB("Lx%d" % u)
    ool.append(["Lw%d:" % u, "    %s %s, v%d, %s, s%d offen sc1" % (op, data, vaddr, sr(sWS, 4), so), "    s_branch Lx%d" % u])
def fastcmp(): A("s_cmp_eq_u32 s%d, 0" % sFAST)

def mf(d, a, b, c):
    return "v_mfma_f32_16x16x32_bf16 %s, %s, %s, %s" % (vr(d, 4), vr(a, 4), vr(b, 4), "0" if c is None else vr(c, 4))
def mfma(d, a, b, c): A(mf(d, a, b, c))

def tags():
    A("s_add_u32 s%d, s%d, 1" % (sTG1, sE))
    A("s_mul_i32 s%d, s%d, 0x9E3779B1" % (sTG2, sTG1))
    A("s_and_b32 s%d, s%d, -8" % (sTG2, sTG2))

def common_addr():
    A("v_and_b32 v18, 3, v%d" % vLANE)
    A("v_lshlrev_b32 v%d, 12, v17" % vQST)
    A("v_lshrrev_b32 v24, 1, v16")
    A("v_lshl_add_u32 v%d, v24, 8, v%d" % (vQST, vQST))
    A("v_and_b32 v24, 1, v16")
    A("v_lshl_add_u32 v%d, v24, 3, v%d" % (vQST, vQST))
    A("v_lshlrev_b32 v%d, 4, v24" % vLSE)
    A("s_mul_i32 s%d, s%d, %d" % (sT0, sW, XS))
    A("s_add_u32 s%d, s%d, %d" % (sT0, sT0, L_XN))
    A("v_add_u32 v%d, s%d, v%d" % (vXNW, sT0, vL16))
    A("s_lshl_b32 s%d, s%d, 8" % (sT0, sA))
    A("s_add_u32 s%d, s%d, %d" % (sT0, sT0, L_XN))
    A("v_mul_u32_u24 v25, %d, v18" % XS)
    A("v_lshl_add_u32 v25, v16, 4, v25")
    A("v_add_u32 v%d, s%d, v25" % (vXNR, sT0))
    A("v_mov_b32 v%d, %s" % (vZ, hx(f2u(1.0 / 512))))
    for r in range(4): A("v_mov_b32 v%d, 0x3f803f80" % (ONES + r))
    A("s_and_b32 s%d, s%d, 1" % (sT1, sC))
    A("s_lshr_b32 s%d, s%d, 1" % (sT2, sC))
    soff(sQS, [(sT1, 11), (sW, 9), (sA, 6), (sT2, 4)], 0)
    A("v_bfe_u32 v24, v%d, 2, 2" % vLANE)
    A("v_lshl_add_u32 v24, v16, 3, v24")
    A("v_lshlrev_b32 v24, 7, v24")
    A("v_bfe_u32 v25, v%d, 3, 2" % vLANE)
    A("v_lshlrev_b32 v25, 1, v25")
    A("v_bfe_u32 v26, v%d, 1, 1" % vLANE)
    A("v_xor_b32 v25, v25, v26")
    A("v_lshl_add_u32 v24, v25, 4, v24")
    A("v_and_b32 v26, 1, v%d" % vLANE)
    A("v_lshl_add_u32 v%d, v26, 3, v24" % vWT)
    A("s_mov_b32 s%d, 0x000f000f" % sMSK)
    A("s_mov_b32 s%d, 0x000f000f" % (sMSK + 1))
    A("s_mov_b32 s%d, 0" % sLAY)

def wtile_voff(shift, d):
    A("v_lshrrev_b32 v24, 3, v%d" % vLANE)
    A("v_and_b32 v25, 7, v%d" % vLANE)
    A("v_and_b32 v26, 1, v16")
    A("v_lshlrev_b32 v26, 1, v26")
    A("v_xor_b32 v25, v25, v26")
    A("v_lshlrev_b32 v25, 4, v25")
    A("v_lshl_add_u32 v%d, v24, %d, v25" % (d, shift))
    A("v_xor_b32 v%d, 64, v%d" % (d + 1, d))

def wqf_reads():
    A("s_lshl_b32 s%d, s%d, 5" % (sT1, sW))
    A("v_xor_b32 v26, s%d, v%d" % (sT1, vWT))
    for t in range(4):
        for hf in range(2):
            A("ds_read_b64_tr_b16 %s, v26 offset:%d" % (vr(WQF + 4 * t + 2 * hf, 2), L_WQ + 4096 * t + 512 * hf))

def dma(vaddr, srdn, so, lds_s, step_so, flags="nt"):
    A("s_mov_b32 m0, s%d" % lds_s)
    A("s_add_u32 s%d, s%d, 1024" % (lds_s, lds_s))
    A("buffer_load_dwordx4 v%d, %s, s%d offen %s lds" % (vaddr, sr(srdn, 4), so, flags))
    A("s_add_u32 s%d, s%d, %d" % (so, so, step_so))

hdr = open("cdna_kernels/%s.s.ref" % NAME).read().split("; Override launch")[0]
L.append(hdr.rstrip("\n"))
L.append("; @launch grid=(256,1,1) block=(512,1,1) lds=%d" % LDS_SZ)
L.append('.amdgcn_target "amdgcn-amd-amdhsa--gfx950"')
L.append(".text\n" + (".p2align 12\n" if int(OPT.get("al", 1)) else "") + ".globl %s_kernel\n.p2align 8\n.type %s_kernel,@function\n%s_kernel:" % (NAME, NAME, NAME))
if DIAG: A("s_memrealtime s[42:43]")
if DBL or TOT: A("s_memrealtime s[98:99]")
sM = 96
A("s_lshr_b32 s%d, s2, 8" % sT0)
A("s_cbranch_scc1 Lend")
A("s_load_dwordx2 %s, s[0:1], 24" % sr(sWQ, 2))
A("s_load_dwordx4 %s, s[0:1], 0" % sr(sT2, 4))
A("v_readfirstlane_b32 s%d, v0" % sW)
C("every wave pulls one line of this kernel's code into L2 (plain read): 32 workgroups x 4 lines")
A("s_getpc_b64 s[10:11]")
LB("Lpc0")
A("s_lshr_b32 s%d, s2, 3" % sM)
A("s_lshl_b32 s%d, s%d, 9" % (sCNT, sM))
A("s_cmp_lg_u32 s%d, 0" % sW)
A("s_cbranch_scc1 Lnopf")
A("v_and_b32 v19, 3, v0")
A("v_lshl_add_u32 v19, v19, 7, s%d" % sCNT)
A("global_load_dword v%d, v19, s[10:11]" % (W + 8))
LB("Lnopf")
A("s_and_b32 s%d, s2, 7" % sJ)
A("s_lshr_b32 s%d, s2, 6" % sA)
A("s_and_b32 s%d, s%d, 7" % (sC, sM))
A("s_lshl_b32 s%d, 1, 17" % (sWQ + 3))
A("s_bitcmp1_b32 s%d, 8" % sW)
A("s_cbranch_scc0 Lmain0")
vKA, vVA = W + 40, W + 44
sRO, sRM = sVO, 97 if not TOT else 94
if TOT: sRM = sOL
def kv_issue(i):
    A("s_add_u32 m0, s%d, s%d" % (sKL if i < 8 else sVL, sRO))
    A("s_add_u32 s%d, s%d, s%d" % (sCNT, sKO, sRO))
    if i < 8: A("buffer_load_dwordx4 v%d, %s, s%d offen nt lds" % (vKA + (i & 3), sr(sK, 4), sCNT))
    else: A("buffer_load_dwordx4 v%d, %s, s%d offen nt lds" % (vVA + (i & 1), sr(sV, 4), sCNT))
    A("s_addk_i32 s%d, %d" % (sRO, 1024 + (VROT * 1024 if i == 7 else 0)))
    A("s_and_b32 s%d, s%d, 0x1fff" % (sRO, sRO))
def lane_init():
    A("v_and_b32 v%d, 63, v0" % vLANE)
    A("v_mov_b32 v%d, %d" % (vFL, L_FLG))
    A("v_lshlrev_b32 v%d, 4, v%d" % (vL16, vLANE))
    A("v_lshrrev_b32 v16, 4, v%d" % vLANE)
    A("v_and_b32 v17, 15, v%d" % vLANE)
    A("v_mov_b32 v20, 0")
    if DIAG: A("v_mov_b32 v30, 0")
def main_early():
    LB("Lmain0")
    for s, off in [(sW1, 48), (sB1, 56), (sW2, 64)]:
        A("s_load_dwordx2 %s, s[0:1], %d" % (sr(s, 2), off))
    lane_init()
    A("v_mov_b32 v21, 0")
    for k in range(4): A("ds_write_b64 v%d, v[20:21] offset:%d" % (vFL, 8 * k))
    A("s_lshl_b32 s%d, 1, 25" % (sK + 2)); A("s_mov_b32 s%d, s%d" % (sK + 3, sWQ + 3))
    A("v_xor_b32 v18, v17, v16")
    A("v_lshlrev_b32 v18, 4, v18")
    A("v_lshl_add_u32 v%d, v16, 8, v18" % vKA)
    A("s_lshl_b32 s%d, s%d, %d" % (sRO, sC, 10 if ROT else 31))
    if not ROT: A("s_mov_b32 s%d, 0" % sRO)
    A("s_bfe_u32 s%d, s%d, 0x2000a" % (sT1, sRO))
    A("s_lshl_b32 s%d, s%d, 6" % (sT1, sT1))
    for k in range(1, 4):
        A("s_add_u32 s%d, s%d, %d" % (sCNT, sT1, 64 * k))
        A("s_and_b32 s%d, s%d, 0xc0" % (sCNT, sCNT))
        A("v_xor_b32 v%d, s%d, v%d" % (vKA + k, sCNT, vKA))
    A("v_xor_b32 v%d, s%d, v%d" % (vKA, sT1, vKA))
    soff(sKO, [(sA, 23), (sJ, 20), (sC, 15), (sW, 7)], 3072 * 256)
    A("s_add_u32 s%d, s%d, %d" % (sKL, sT0, L_K))
    A("s_waitcnt lgkmcnt(0)")
    A("s_mov_b64 %s, %s" % (sr(sK, 2), sr(sT4, 2)))
    for i in range(D0): kv_issue(i)
    C("lane k<3 of wave 3 pulls a slice of coefficient array k into L2")
    A("s_cmp_lg_u32 s%d, 192" % sW)
    A("s_cbranch_scc1 Lm_nopf")
    A("s_min_u32 s%d, s%d, 27" % (sT1, sM))
    A("s_lshl_b32 s%d, s%d, 7" % (sT1, sT1))
    A("v_mov_b32 v19, s%d" % sT1)
    A("s_mov_b64 exec, 1")
    for k, sd in enumerate([sW1, sB1, sW2]): A("global_load_dword v%d, v19, %s" % (W + 9 + k, sr(sd, 2)))
    A("s_mov_b64 exec, -1")
    LB("Lm_nopf")
    A("s_add_u32 s%d, s%d, %d" % (sVL, sT0, L_V))
    A("s_lshr_b32 s%d, s%d, 6" % (sW, sW))
    if DIAG: A("v_writelane_b32 v30, s42, 0")
    STAMP(10)
    A("s_branch Lmain")

C("---- helper waves: first q projection, then the table of g over bf16 inputs ----")
HW1, HB1, HW2 = 32, 60, 112
hK0, hK1, hONE, hRES = 88, 90, 92, 94
AC = [140, 142]
A("s_load_dwordx2 %s, s[0:1], 96" % sr(sWS, 2))
C("wq tile DMA: instruction i, thread t' = t-256: row 32 i + (t'>>3), 16-byte chunk (t'&7) ^ swizzle")
A("v_bfe_u32 v23, v0, 3, 5")
A("v_and_b32 v22, 7, v0")
A("v_and_b32 v24, 2, v23")
A("v_lshrrev_b32 v25, 1, v23")
A("v_and_or_b32 v24, v25, 4, v24")
A("v_xor_b32 v22, v22, v24")
A("v_lshlrev_b32 v22, 4, v22")
A("v_lshl_add_u32 v22, v23, 13, v22")
soff(sQL, [(sA, 20), (sJ, 10), (sC, 7)], 0)
A("s_lshl_b32 s%d, 1, 22" % (sWQ + 2))
A("s_lshl_b32 s%d, 1, 18" % sT1)
A("s_lshl_b32 s%d, s%d, 4" % (sQS, sW))
A("s_add_u32 m0, s%d, %d" % (sQS, L_WQ - 4096))
A("v_lshlrev_b32 v21, 4, v0")
if DIAG: A("s_memrealtime s[88:89]")
A("s_waitcnt lgkmcnt(0)")
if DIAG: A("s_memrealtime s[90:91]")
A("global_load_dwordx4 %s, v21, %s offset:-4096" % (vr(XR, 4), sr(sT2, 2)))
for i in range(4):
    if i:
        A("s_addk_i32 m0, 0x1000")
        A("s_add_u32 s%d, s%d, s%d" % (sQL, sQL, sT1))
    A("buffer_load_dwordx4 v22, %s, s%d offen nt lds" % (sr(sWQ, 4), sQL))
if DIAG: A("s_memrealtime s[92:93]")
lane_init()
A("s_bfe_u32 s%d, s%d, 0x20006" % (sW, sW))
A("s_lshl_b32 s%d, s%d, 10" % (sT3, sW))
srd(sWS, WS_SZ)
C("early sentinels (O0, LSE0): hw0 1024 B, the others 16 B")
for i in range(4): A("v_mov_b32 v%d, -1" % (PM + i))
A("s_mul_i32 s%d, s%d, %d" % (sT5, sM, CLRA_PER))
A("s_lshl_b32 s%d, s%d, 17" % (sGR, sJ))
A("s_add_u32 s%d, s%d, s%d" % (sT5, sT5, sGR))
A("s_add_u32 s%d, s%d, 1024" % (sT4, sT5))
A("s_cmp_ge_u32 s%d, 2" % sW)
A("s_cbranch_scc1 Lhc_skip")
A("s_cmp_eq_u32 s%d, 0" % sW)
A("s_cselect_b32 s%d, s%d, s%d" % (sT5, sT5, sT4))
A("s_cselect_b64 exec, -1, 1")
A("buffer_store_dwordx4 %s, v%d, %s, s%d offen sc1" % (vr(PM, 4), vL16, sr(sWS, 4), sT5))
LB("Lhc_skip")
A("s_mov_b64 exec, -1")
A("s_branch Lhelp2")
main_early()
LB("Lhelp2")
if QT:
    C("touch 2 lines of the tagged q mailbox per wave so that they sit in L2 before they are written")
    soff(sT4, [(sM, 10), (sW, 8), (sJ, 17)], Q0_OFF)
    A("v_lshlrev_b32 v24, 7, v%d" % vLANE)
    A("s_mov_b64 exec, 3")
    A("buffer_load_dword v%d, v24, %s, s%d offen" % (RES + 1, sr(sWS, 4), sT4))
A("s_mov_b64 exec, -1")
if HP: A("s_setprio 3")
A("s_load_dword s%d, %s, %s" % (sE, sr(sWS, 2), hx(EPO)))
A("s_load_dwordx2 %s, s[0:1], 72" % sr(sB2P, 2))
if DIAG:
    A("v_writelane_b32 v30, s42, 0")
    A("s_waitcnt lgkmcnt(0)")
    A("v_mov_b32 v31, 0")
    A("v_writelane_b32 v31, s88, 0"); A("v_writelane_b32 v31, s90, 1"); A("v_writelane_b32 v31, s92, 2")
STAMP(9)
A("s_barrier")
A("s_lshl_b32 s%d, s2, 2" % sHC)
A("s_add_u32 s%d, s%d, s%d" % (sHC, sHC, sW))
A("s_mul_i32 s%d, s%d, %d" % (sHC, sHC, EPW))
A("s_lshl_b32 s%d, s%d, 3" % (sHT, sHC))
A("s_add_u32 s%d, s%d, %s" % (sHT, sHT, hx(TB)))
A("s_add_u32 s%d, s%d, %d" % (sHC, sHC, ELO * 128))
A("s_lshl_b32 s%d, s%d, 16" % (sHC, sHC))
A("v_lshlrev_b32 v27, 2, v%d" % vLANE)
common_addr()
A("s_lshl_b32 s%d, s%d, 1" % (sQS, sQS))
A("s_add_u32 s%d, s%d, s%d" % (sQS, sQS, sGR))
A("s_add_u32 s%d, s%d, %s" % (sQS, sQS, hx(Q0_OFF)))
A("v_lshlrev_b32 v%d, 1, v%d" % (vQST, vQST))
A("s_getreg_b32 s%d, hwreg(HW_REG_XCC_ID, 0, 3)" % sXCC)
for r, c in [(hK0, K0), (hK1, K1), (hONE, 1.0)]:
    A("v_mov_b32 v%d, %s" % (r, hx(f2u(c)))); A("v_mov_b32 v%d, %s" % (r + 1, hx(f2u(c))))
A("v_mov_b32 v%d, 0" % hRES)
A("s_mov_b32 s%d, 0" % sIT)
if DRY:
    C("dry run of the q-projection code while its inputs are in flight (instruction cache warm-up; no side effects)")
    A("s_mov_b32 s%d, 1" % sIT)
    A("s_branch Llnq")
    LB("Ldry_done")
    A("s_mov_b64 exec, -1")
    A("s_mov_b32 s%d, 0" % sIT)
if WARM:
    C("warm the instruction cache lines at the far jump targets of the main waves")
    for k, nm in enumerate(["k", "fin", "out", "tab"]):
        A("s_cmp_lg_u32 s%d, %d" % (sW, k))
        A("s_cbranch_scc1 Lwm%d" % k)
        A("s_call_b64 %s, Lst_%s" % (sr(sRET, 2), nm))
        LB("Lwm%d" % k)
A("s_cmp_ge_u32 s%d, 2" % sW)
A("s_cbranch_scc0 Lhx5")
A("s_waitcnt vmcnt(%d)" % (4 + QT))
LB("Lhx5")
A("s_waitcnt vmcnt(%d)" % (5 + QT))
STAMP(1)
A("s_branch Llnq")
LB("Lq_first")
if DRY:
    A("s_cmp_lg_u32 s%d, 0" % sIT)
    A("s_cbranch_scc1 Lq_dry")
A("s_waitcnt vmcnt(0) lgkmcnt(0)")
STAMP(2)
lds_arrive(0, vT + 4)
tags()
A("s_or_b32 s%d, s%d, s%d" % (sXCC, sXCC, sTG2))
C("4 helper arrivals (wq tile, xn rows) + 4 main arrivals (coefficients landed, sentinels acknowledged)")
lds_spin(0, 4, vT + 4)
STAMP(6)
LB("Lq_dry")
wqf_reads()
A("s_waitcnt lgkmcnt(0)")
A("s_branch Lq_go")
LB("Lh_qst")
if DRY:
    A("s_cmp_lg_u32 s%d, 0" % sIT)
    A("s_cbranch_scc1 Ldry_done")
STAMP(5)
A("v_mov_b32 v%d, s%d" % (W + 6, sTG1))
A("v_mov_b32 v%d, s%d" % (W + 7, sXCC))
A("buffer_store_dwordx4 %s, v%d, %s, s%d offen%s" % (vr(W + 4, 4), vQST, sr(sWS, 4), sQS, "" if int(OPT.get("fast", 1)) else " sc1"))
A("s_add_u32 s%d, s%d, %s" % (sQS, sQS, hx(QB_DELTA)))
A("buffer_store_dwordx4 %s, v%d, %s, s%d offen sc1" % (vr(W + 4, 4), vQST, sr(sWS, 4), sQS))
A("s_mov_b64 exec, -1")
HR = W + 8
if ADP: lds_arrive(28, 24)
if HP: A("s_setprio 0")
STAMP(3)
A("v_lshlrev_b32 v26, 3, v%d" % vLANE)
lds_spin(24, 4, 24, sleep=1)
for a_ in range(3):
    for k in range(3):
        A("ds_read_b128 %s, v%d offset:%d" % (vr(HR + 14 * a_ + 4 * k, 4), vL16, 4096 * a_ + 1024 * k))
    A("ds_read_b64 %s, v26 offset:%d" % (vr(HR + 14 * a_ + 12, 2), 4096 * a_ + 3072))
for a_, d in [(0, HW1), (14, HB1), (28, HW2)]:
    A("s_waitcnt lgkmcnt(%d)" % (8 - 4 * (a_ // 14)))
    for p in range(14):
        A("v_lshlrev_b32 v%d, 16, v%d" % (d + 2 * p, HR + a_ + p))
        A("v_and_b32 v%d, 0xffff0000, v%d" % (d + 2 * p + 1, HR + a_ + p))
A("s_load_dword s%d, %s, 0" % (sB2, sr(sB2P, 2)))
STAMP(4)
if DIAG:
    A("s_memtime s[42:43]"); A("s_waitcnt lgkmcnt(0)"); A("v_writelane_b32 v30, s42, 13")
LB("Lhl")
if DIAG:
    A("s_memrealtime s[42:43]"); A("s_add_u32 m0, s%d, 10" % sIT); A("s_waitcnt lgkmcnt(0)"); A("v_writelane_b32 v30, s42, m0")
A("s_mov_b32 s%d, s%d" % (sH, sHC)); A("s_mov_b32 s%d, s%d" % (sH + 1, sHC))
A("s_xor_b32 s%d, s%d, 0x80000000" % (sH2, sHC)); A("s_mov_b32 s%d, s%d" % (sH2 + 1, sH2))
U4 = [144, 146, 148, 150]; T4 = [152, 154, 156, 158]; Z4 = [160, 162, 164, 166]
for p2 in range(7):
    ch = [(2 * p2 + k // 2, k & 1) for k in range(4)]
    for k, (p, sg) in enumerate(ch):
        A("v_pk_fma_f32 %s, %s, %s, %s" % (vr(U4[k], 2), vr(HW1 + 2 * p, 2), sr([sH, sH2][sg], 2), vr(HB1 + 2 * p, 2)))
    for k in range(4): A("v_pk_mul_f32 %s, %s, %s" % (vr(T4[k], 2), vr(U4[k], 2), vr(U4[k], 2)))
    for k in range(4): A("v_pk_fma_f32 %s, %s, %s, %s" % (vr(T4[k], 2), vr(T4[k], 2), vr(hK1, 2), vr(hK0, 2)))
    for k in range(4): A("v_pk_mul_f32 %s, %s, %s" % (vr(T4[k], 2), vr(T4[k], 2), vr(U4[k], 2)))
    for k in range(4):
        for h in range(2): A("v_exp_f32 v%d, v%d" % (T4[k] + h, T4[k] + h))
    for k, (p, sg) in enumerate(ch): A("v_pk_mul_f32 %s, %s, %s" % (vr(Z4[k], 2), vr(U4[k], 2), vr(HW2 + 2 * p, 2)))
    for k in range(4): A("v_pk_add_f32 %s, %s, %s" % (vr(T4[k], 2), vr(T4[k], 2), vr(hONE, 2)))
    for k in range(4):
        for h in range(2): A("v_rcp_f32 v%d, v%d" % (T4[k] + h, T4[k] + h))
    for k, (p, sg) in enumerate(ch):
        if p == 0: A("v_pk_mul_f32 %s, %s, %s" % (vr(AC[sg], 2), vr(Z4[k], 2), vr(T4[k], 2)))
        else: A("v_pk_fma_f32 %s, %s, %s, %s" % (vr(AC[sg], 2), vr(Z4[k], 2), vr(T4[k], 2), vr(AC[sg], 2)))
A("v_add_f32 v%d, v%d, v%d" % (AC[0], AC[0], AC[0] + 1))
A("v_add_f32 v%d, v%d, v%d" % (AC[1], AC[1], AC[1] + 1))
A("s_lshl_b32 m0, s%d, 1" % sIT)
A("s_add_u32 s%d, s%d, 0x10000" % (sHC, sHC))
wave_sum2(AC[0], AC[1], sSUM, sSQ)
A("s_add_u32 s%d, s%d, 1" % (sIT, sIT))
A("s_nop 0")
A("v_writelane_b32 v%d, s%d, m0" % (hRES, sSUM))
A("s_add_u32 m0, m0, 1")
A("s_cmp_lg_u32 s%d, %d" % (sIT, EPW))
A("v_writelane_b32 v%d, s%d, m0" % (hRES, sSQ))
A("s_cbranch_scc1 Lhl")
if DIAG:
    A("s_memtime s[42:43]"); A("s_waitcnt lgkmcnt(0)"); A("v_writelane_b32 v30, s42, 14")
    STAMP(15)
A("s_waitcnt lgkmcnt(0)")
A("s_lshl_b32 s%d, s%d, 16" % (sB2, sB2))
A("v_cvt_pk_bf16_f32 v%d, v%d, v%d" % (hRES, hRES, hRES))
A("v_and_b32 v%d, 0xffff0000, v%d" % (hRES, hRES))
A("v_add_f32 v%d, s%d, v%d" % (hRES, sB2, hRES))
A("v_cvt_pk_bf16_f32 v%d, v%d, v%d" % (hRES, hRES, hRES))
A("v_and_b32 v%d, 0xffff0000, v%d" % (hRES, hRES))
lds_spin(8, 4, 24)
A("s_bfm_b64 exec, %d, 0" % (2 * EPW))
A("buffer_store_dword v%d, v27, %s, s%d offen sc1" % (hRES, sr(sWS, 4), sHT))
A("s_mov_b64 exec, -1")
STAMP(7)
if DIAG:
    A("s_add_u32 s%d, s%d, 4" % (sW, sW))
    A("v_mov_b32 v28, v30")
    A("s_branch Lfin_exit")
A("s_endpgm")

LB("Lmain")
for s, off in [(sWS, 96), (sV, 16), (sWO, 32), (sOUT, 80), (sX, 0), (sB2P, 72)]:
    A("s_load_dwordx2 %s, s[0:1], %d" % (sr(s, 2), off))
if DIAG == 2: A("s_load_dwordx2 s[100:101], s[0:1], 88")
srd(sWS, WS_SZ)
for s in [sW1, sB1, sW2]: srd(s, 3584)
A("s_lshl_b32 s%d, s%d, 10" % (sT3, sW))
A("s_barrier")
for i in range(D0, DC): kv_issue(i)
A("s_mov_b32 m0, s%d" % sT3)
for i, sd in enumerate([sW1, sB1, sW2]):
    if i: A("s_addk_i32 m0, 0x1000")
    A("s_nop 0")
    A("buffer_load_dwordx4 v%d, %s, s%d offen lds" % (vL16, sr(sd, 4), sT3))
for i in range(DC, D1): kv_issue(i)
for i in range(4): A("v_mov_b32 v%d, -1" % (W + i))
A("s_lshl_b32 s%d, s%d, 17" % (sGR, sJ))
A("s_mov_b32 s%d, s%d" % (sT1, sM))
A("s_waitcnt lgkmcnt(0)")
A("s_load_dword s%d, %s, %s" % (sE, sr(sWS, 2), hx(EPO)))
STAMP(11)
for s, n in [(sV, 1 << 25), (sX, 4096), (sWO, 1 << 22), (sOUT, 4096)]: srd(s, n)
A("v_lshlrev_b32 v18, 1, v16")
A("v_xor_b32 v18, v17, v18")
A("v_lshlrev_b32 v18, 4, v18")
A("v_lshl_add_u32 v%d, v16, 8, v18" % vVA)
if ROT:
    A("s_and_b32 s%d, s%d, 1" % (sT0, sC))
    A("s_lshl_b32 s%d, s%d, 7" % (sT0, sT0))
    A("v_xor_b32 v%d, s%d, v%d" % (vVA, sT0, vVA))
A("v_xor_b32 v%d, 128, v%d" % (vVA + 1, vVA))
C("late sentinels: wave 0,1: group region ; wave 2: P chunk")
A("s_lshr_b32 s%d, s2, 3" % sT1)
A("s_mul_i32 s%d, s%d, %d" % (sT1, sT1, CLRB_PER))
A("s_lshl_b32 s%d, s%d, 10" % (sT0, sW))
A("s_add_u32 s%d, s%d, s%d" % (sT1, sT1, sT0))
A("s_add_u32 s%d, s%d, s%d" % (sT1, sT1, sGR))
A("s_add_u32 s%d, s%d, %d" % (sT1, sT1, CLRB_OFF))
A("s_lshl_b32 s%d, s2, 10" % sT0)
A("s_add_u32 s%d, s%d, %s" % (sT0, sT0, hx(PB)))
A("s_cmp_ge_u32 s%d, 2" % sW)
A("s_cselect_b32 s%d, s%d, s%d" % (sT1, sT0, sT1))
A("s_bfm_b64 %s, %d, 0" % (sr(sH, 2), (CLRB_PER - 1024) // 16))
A("s_cmp_eq_u32 s%d, 1" % sW)
A("s_cselect_b64 %s, %s, -1" % (sr(sH, 2), sr(sH, 2)))
A("s_mul_i32 s%d, s2, %d" % (sT0, NENT * 4 // 256))
A("s_add_u32 s%d, s%d, %s" % (sT0, sT0, hx(TB)))
A("s_cmp_eq_u32 s%d, 3" % sW)
A("s_cselect_b32 s%d, s%d, s%d" % (sT1, sT0, sT1))
A("s_cselect_b64 exec, %d, %s" % ((1 << (NENT * 4 // 256 // 16)) - 1, sr(sH, 2)))
A("buffer_store_dwordx4 %s, v%d, %s, s%d offen sc1" % (vr(W, 4), vL16, sr(sWS, 4), sT1))
A("s_mov_b64 exec, -1")

common_addr()
A("s_add_u32 s%d, s%d, s%d" % (sQS, sQS, sGR))
A("s_add_u32 s%d, s%d, %d" % (sQS, sQS, Q1_OFF))
wtile_voff(10, 22)
A("v_and_b32 v19, 7, v%d" % vLANE)
A("v_lshrrev_b32 v25, 2, v%d" % vLANE)
A("v_lshlrev_b32 v25, 7, v25")
A("v_lshl_add_u32 v%d, v18, 2, v25" % vOST)
A("v_lshlrev_b32 v25, 7, v16")
A("v_lshl_add_u32 v%d, v19, 4, v25" % vOLD)
C("lanes n>=8 of the first two o loads fetch the lse values instead: offset relative to the o block")
A("s_mul_i32 s%d, s%d, %d" % (sT0, sA, 128 - 8192))
A("s_mul_i32 s%d, s%d, %d" % (sT1, sW, 32 - 2048))
A("s_add_u32 s%d, s%d, s%d" % (sT0, sT0, sT1))
A("s_add_u32 s%d, s%d, %d" % (sT0, sT0, LSE_OFF[0] - O_OFF[0]))
A("v_add_u32 v25, s%d, v%d" % (sT0, vLSE))
A("v_xor_b32 v26, 16, v25")
A("v_add_u32 v26, -512, v26")
A("v_cmp_gt_u32 vcc, 8, v17")
A("s_nop 1")
A("v_cndmask_b32 v%d, v25, v%d, vcc" % (vLSE, vOLD))
A("v_cndmask_b32 v%d, v26, v%d, vcc" % (vLS2, vOLD))
A("v_lshlrev_b32 v%d, 1, v%d" % (vPST, vLANE))
A("v_lshlrev_b32 v25, 3, v16")
A("v_lshl_add_u32 v%d, v19, 4, v25" % vX1S)
A("s_mul_i32 s%d, s%d, %d" % (sT0, sW, RBS))
A("s_add_u32 s%d, s%d, %d" % (sT0, sT0, L_RB))
A("v_mul_u32_u24 v25, 528, v18")
A("v_lshl_add_u32 v25, v16, 4, v25")
A("v_lshrrev_b32 v26, 2, v17")
A("v_lshl_add_u32 v25, v26, 7, v25")
A("v_add_u32 v%d, s%d, v25" % (vRBW, sT0))
A("s_mul_i32 s%d, s%d, 528" % (sT0, sW))
A("s_add_u32 s%d, s%d, %d" % (sT0, sT0, L_RB))
A("v_lshlrev_b32 v25, 3, v%d" % vLANE)
A("v_add_u32 v%d, s%d, v25" % (vRBR, sT0))
A("s_lshl_b32 s%d, s%d, 3" % (sT0, sW))
A("s_add_u32 s%d, s%d, %d" % (sT0, sT0, L_ML))
A("v_lshlrev_b32 v25, 5, v18")
A("v_add_u32 v%d, s%d, v25" % (vMLW, sT0))
A("s_lshl_b32 s%d, s%d, 5" % (sT0, sW))
A("s_add_u32 s%d, s%d, %d" % (sT0, sT0, L_ML))
A("v_mov_b32 v%d, s%d" % (vMLR, sT0))
A("v_mov_b32 v25, 0x3f80")
A("v_mov_b32 v26, 0x3f800000")
for r in range(4):
    A("v_cmp_eq_u32 vcc, %d, v17" % (2 * r))
    A("v_cmp_eq_u32 %s, %d, v17" % (sr(sH, 2), 2 * r + 1))
    A("s_nop 0")
    A("v_cndmask_b32 v%d, 0, v25, vcc" % (SEL + r))
    A("v_cndmask_b32 v%d, v%d, v26, %s" % (SEL + r, SEL + r, sr(sH, 2)))
for i in range(16): A("v_mov_b32 v%d, 0" % (PM + i))
for p in range(4):
    A("s_mov_b32 s%d, %s" % (sPM + 2 * p, hx(0x000f000f << (4 * p))))
    A("s_mov_b32 s%d, %s" % (sPM + 2 * p + 1, hx(0x000f000f << (4 * p))))
soff(sOS, [(sW, 13), (sA, 11), (sC, 4), (sJ, 17)], O_OFF[0])
soff(sOL, [(sA, 13), (sW, 11), (sJ, 17)], O_OFF[0])
A("s_add_u32 s%d, s%d, %s" % (sQL, sOL, hx(Q0_OFF - O_OFF[0])))
soff(sLS, [(sW, 7), (sA, 5), (sC, 2), (sJ, 17)], LSE_OFF[0])
soff(sPS, [(sW, 15), (sC, 12), (sJ, 9), (sA, 7)], PB)
A("s_mov_b32 s%d, %s" % (sSC, hx(f2u(128 ** -0.5 * math.log2(math.e)))))
A("s_getreg_b32 s%d, hwreg(HW_REG_XCC_ID, 0, 3)" % sXCC)
A("v_xor_b32 v24, v16, v17")
A("v_lshlrev_b32 v24, 4, v24")
A("v_lshl_add_u32 v24, v17, 8, v24")
A("s_lshl_b32 s%d, s%d, 13" % (sT1, sW))
A("s_add_u32 s%d, s%d, %d" % (sT2, sT1, L_K))
for t in range(4): A("v_xor_b32 v%d, %d, v24" % (18 + t, 64 * t))
for t in range(4): A("v_add_u32 v%d, s%d, v%d" % (18 + t, sT2, 18 + t))
VA = W + 32
A("v_lshrrev_b32 v24, 2, v%d" % vLANE)
A("v_and_b32 v25, 7, v24")
A("v_lshlrev_b32 v25, 1, v25")
A("v_bfe_u32 v26, v%d, 1, 1" % vLANE)
A("v_xor_b32 v25, v25, v26")
A("v_lshlrev_b32 v25, 4, v25")
A("v_lshl_add_u32 v25, v24, 8, v25")
A("v_and_b32 v26, 1, v%d" % vLANE)
A("v_lshl_add_u32 v25, v26, 3, v25")
A("s_add_u32 s%d, s%d, %d" % (sT2, sT1, L_V))
for t in range(8): A("v_xor_b32 v%d, %d, v25" % (VA + t, 32 * t))
for t in range(8): A("v_add_u32 v%d, s%d, v%d" % (VA + t, sT2, VA + t))
soff(sT4, [(sJ, 19), (sA, 17), (sW, 15), (sC, 7)], 0)
A("s_lshl_b32 s%d, s%d, 12" % (sT5, sW))
A("s_add_u32 s%d, s%d, %d" % (sT5, sT5, L_WO))
soff(sT3, [(sA, 10), (sC, 7)], 0)
A("v_lshlrev_b32 v24, 5, v%d" % vLANE)
A("s_lshl_b32 s%d, s%d, 10" % (sT2, sW))
A("s_add_u32 s%d, s%d, %d" % (sT2, sT2, L_QF))
A("v_add_u32 v25, s%d, v%d" % (sT2, vL16))
A("v_add_u32 v26, %d, v%d" % (L_QF, vL16))
STAMP(12)
if DIAG: A("v_mov_b32 v31, v30")
QP = W
def q0_issue(QP=QP):
    A("buffer_load_dwordx4 %s, v24, %s, s%d offen sc1" % (vr(QP, 4), sr(sWS, 4), sQL))
    A("buffer_load_dwordx4 %s, v24, %s, s%d offen offset:16 sc1" % (vr(QP + 4, 4), sr(sWS, 4), sQL))
def flag_block():
    if True:
        A("s_cmp_lg_u32 s%d, 0" % sW)
        A("s_cbranch_scc1 Lnoflag")
        C("every sentinel store of this workgroup is acknowledged: announce it")
        lds_spin(8, 4, vT)
        A("v_mov_b32 v16, s%d" % sTG1)
        A("v_mov_b32 v17, s%d" % sXCC)
        soff(sT1, [(2, 4)], FB)
        A("v_mov_b32 v21, 0")
        A("s_mov_b64 exec, 1")
        A("buffer_store_dwordx2 v[16:17], v21, %s, s%d offen sc1" % (sr(sWS, 4), sT1))
        A("s_mov_b64 exec, -1")
        LB("Lnoflag")
C("coefficients landed -> tell the helpers")
young = D1 - DC + 1
told = False
A("s_mov_b32 s%d, 0" % sY)
for i in range(D1, 16):
    dp = DEPTH if i < TAILI else TAILD
    extra = 1 if i == 16 - QV else 0
    if ADP and told:
        C("stay shallow until the helpers have issued their q stores")
        A("s_cmp_lg_u32 s%d, 0" % sY)
        A("s_cbranch_scc1 Ldp%d" % i)
        A("ds_read_b32 v%d, v%d offset:28" % (vT, vFL))
        A("s_waitcnt lgkmcnt(0)")
        A("v_readfirstlane_b32 s%d, v%d" % (sT1, vT))
        A("s_cmp_ge_u32 s%d, 4" % sT1)
        A("s_cselect_b32 s%d, 1, 0" % sY)
        A("s_cbranch_scc1 Ldp%d" % i)
        A("s_waitcnt vmcnt(%d)" % (dp - 1 - 2 * extra))
        LB("Ldp%d" % i)
        A("s_waitcnt vmcnt(%d)" % (ADP - 1 - 2 * extra))
        if extra: q0_issue(); young += 2
    else:
        if extra:
            A("s_waitcnt vmcnt(%d)" % (dp - 2)); q0_issue(); young += 2
        A("s_waitcnt vmcnt(%d)" % (dp - 1))
    if not told and young >= dp - 1:
        lds_arrive(24, vT); told = True
    kv_issue(i); young += 1
assert told
q0_issue(QP + 8)
C("everything older than the V loads is complete: K, late sentinels")
A("s_waitcnt vmcnt(12)")
lds_arrive(8, vT)
A("s_waitcnt lgkmcnt(0)")
tags()
A("s_or_b32 s%d, s%d, s%d" % (sXCC, sXCC, sTG2))
STAMP(1)
for t in range(4):
    for T in range(2):
        A("ds_read_b128 %s, v%d offset:%d" % (vr(KF + 16 * T + 4 * t, 4), 18 + t, 4096 * T))
flag_block()
def wait_w0(n):
    uid[0] += 1
    A("s_cmp_eq_u32 s%d, 0" % sW)
    A("s_cbranch_scc1 Lww%d" % uid[0])
    A("s_waitcnt vmcnt(%d)" % n)
    LB("Lww%d" % uid[0])
    A("s_waitcnt vmcnt(%d)" % (n + 1))
wait_w0(QV + 2)
STAMP(2)
A("s_setprio 2")
A("s_mov_b32 s%d, %s" % (sCNT, hx(SPIN)))
A("s_mov_b32 s%d, 0" % sY)
LB("Lmq")
A("v_and_b32 v16, -8, v%d" % (QP + 3))
A("v_and_b32 v17, -8, v%d" % (QP + 7))
A("v_cmp_ne_u32 vcc, s%d, v%d" % (sTG1, QP + 2))
A("v_cmp_ne_u32 %s, s%d, v%d" % (sr(sRET, 2), sTG1, QP + 6))
A("s_or_b64 vcc, vcc, %s" % sr(sRET, 2))
A("v_cmp_ne_u32 %s, s%d, v16" % (sr(sRET, 2), sTG2))
A("s_or_b64 vcc, vcc, %s" % sr(sRET, 2))
A("v_cmp_ne_u32 %s, s%d, v17" % (sr(sRET, 2), sTG2))
A("s_or_b64 vcc, vcc, %s" % sr(sRET, 2))
if not int(OPT.get("nochk", 0)): A("s_cbranch_vccnz Lmqr")
LB("Lmqd")
if DIAG:
    A("s_sub_u32 s%d, s%d, s%d" % (sT0, sCNT, sY)); A("v_writelane_b32 v31, s%d, 0" % sT0)
Ls = L; L = []
LB("Lmqr")
A("s_cmp_lg_u32 s%d, 0" % sY)
A("s_cbranch_scc1 Lmqr2")
C("first look failed: take the second one (V has landed with it: request its fragments now)")
A("s_waitcnt vmcnt(0)")
A("s_mov_b32 s%d, 1" % sY)
for k in range(8): A("v_mov_b32 v%d, v%d" % (QP + k, QP + 8 + k))
for t in range(8):
    for hf in range(2):
        A("ds_read_b64_tr_b16 %s, v%d offset:%d" % (vr(VF + 4 * t + 2 * hf, 2), VA + t, 4096 * hf))
A("s_branch Lmq")
LB("Lmqr2")
C("still not there: poll the plain copy a few times, then the write-through copy")
A("s_cmp_eq_u32 s%d, %s" % (sCNT, hx(SPIN - 8)))
A("s_cselect_b32 s%d, %s, 0" % (sT0, hx(QB_DELTA)))
A("s_add_u32 s%d, s%d, s%d" % (sQL, sQL, sT0))
q0_issue()
A("s_waitcnt vmcnt(0)")
A("s_sub_u32 s%d, s%d, 1" % (sCNT, sCNT))
A("s_cbranch_scc0 Lmq")
A("s_branch Lmqd")
ool.append(L); L = Ls
A("v_cmp_ne_u32 vcc, s%d, v%d" % (sXCC, QP + 3))
A("v_mov_b32 v%d, v%d" % (QP + 2, QP + 4))
A("v_mov_b32 v%d, v%d" % (QP + 3, QP + 5))
A("ds_write_b128 v25, %s" % vr(QP, 4))
A("s_cmp_eq_u64 vcc, 0")
A("s_cselect_b32 s%d, 1, 0x101" % sT0)
A("v_mov_b32 v16, s%d" % sT0)
A("s_waitcnt lgkmcnt(0)")
lds_arrive(4, 16, None)
STAMP(15)
if WROT:
    A("s_and_b32 s%d, s%d, 3" % (sRO, sC))
    A("s_and_b32 s%d, s%d, 1" % (sT0, sC))
    A("s_lshl_b32 s%d, s%d, 6" % (sT0, sT0))
    A("v_xor_b32 v22, s%d, v22" % sT0); A("v_xor_b32 v23, s%d, v23" % sT0)
    for i in range(4):
        A("s_lshl_b32 s%d, s%d, 10" % (sT0, sRO))
        A("s_add_u32 m0, s%d, s%d" % (sT5, sT0))
        A("s_lshl_b32 s%d, s%d, 13" % (sT0, sRO))
        A("s_add_u32 s%d, s%d, s%d" % (sT0, sT0, sT4))
        A("buffer_load_dwordx4 v%d, %s, s%d offen nt lds" % (22 + (i & 1), sr(sWO, 4), sT0))
        A("s_add_u32 s%d, s%d, 1" % (sRO, sRO))
        A("s_and_b32 s%d, s%d, 3" % (sRO, sRO))
else:
    for i in range(4): dma(22 + (i & 1), sWO, sT4, sT5, 0x2000)
A("buffer_load_dwordx2 %s, v%d, %s, s%d offen" % (vr(RES + 2, 2), vX1S, sr(sX, 4), sT3))
FLG = W + 44
soff(sIT, [(sW, 10)], FB)
soff(sQL, [(sA, 12), (sJ, 17)], Q1_OFF)
lds_spin(4, 4, vT, mask=0xff)
A("s_cmp_lt_u32 s%d, 256" % sT1)
A("s_cselect_b32 s%d, %d, 0" % (sFAST, int(OPT.get("fast", 1))))
QF = W + 16
for t in range(4):
    A("ds_read_b128 %s, v26 offset:%d" % (vr(QF + 4 * t, 4), 1024 * t))
if PRET:
    C("bring the (cleared) group mailbox lines into L2")
    A("s_lshr_b32 s%d, s2, 3" % sT5)
    A("s_lshl_b32 s%d, s%d, 2" % (sT5, sT5))
    A("s_add_u32 s%d, s%d, s%d" % (sT5, sT5, sW))
    A("s_mul_i32 s%d, s%d, 768" % (sT5, sT5))
    A("s_add_u32 s%d, s%d, s%d" % (sT5, sT5, sGR))
    A("v_lshlrev_b32 v21, 7, v%d" % vLANE)
    A("s_mov_b64 exec, 63")
    A("buffer_load_dword v%d, v21, %s, s%d offen sc1" % (W + 40, sr(sWS, 4), sT5))
    A("s_mov_b64 exec, -1")
S = W
qk = []
for t in range(4):
    for T in range(2):
        qk.append(mf(S + 4 * T, KF + 16 * T + 4 * t, QF + 4 * t, None if t == 0 else S + 4 * T))
for t in range(4):
    A("s_waitcnt lgkmcnt(%d)" % (3 - t))
    A(qk[2 * t]); A(qk[2 * t + 1])
STAMP(3)
A("s_branch Lk_go")

LB("Llnq")
C("LayerNorm of the row held in XR, then q partial = xn @ wq tile")
X = W
row_stats(XR, vT, X)
A("v_add_f32 v%d, %s, v%d" % (vT + 1, EPS, vT + 1))
A("v_rsq_f32 v%d, v%d" % (vT + 2, vT + 1))
A("s_cmp_eq_u32 s%d, 0" % sLAY)
A("v_mul_f32 v%d, v%d, v%d" % (vT + 3, vT, vT + 2))
for i in range(4):
    A("v_pk_fma_f32 %s, %s, %s, %s op_sel:[0,0,1] op_sel_hi:[1,0,1] neg_lo:[0,0,1] neg_hi:[0,0,1]" % (vr(X + 2 * i, 2), vr(X + 2 * i, 2), vr(vT + 2, 2), vr(vT + 2, 2)))
for i in range(4):
    A("v_cvt_pk_bf16_f32 v%d, v%d, v%d" % (X + 8 + i, X + 2 * i, X + 2 * i + 1))
A("ds_write_b128 v%d, %s" % (vXNW, vr(X + 8, 4)))
A("s_cbranch_scc1 Lq_first")
A("s_waitcnt lgkmcnt(0)")
A("s_barrier")
LB("Lq_go")
BF = W + 16
for t in range(4):
    A("ds_read_b128 %s, v%d offset:%d" % (vr(BF + 4 * t, 4), vXNR, 64 * t))
for t in range(4):
    A("s_waitcnt lgkmcnt(%d)" % (3 - t))
    mfma(W, WQF + 4 * t, BF + 4 * t, None if t == 0 else W)
A("s_cmp_eq_u32 s%d, 0" % sLAY)
A("s_mov_b64 exec, %s" % sr(sMSK, 2))
NOP(6)
A("v_cvt_pk_bf16_f32 v%d, v%d, v%d" % (W + 4, W, W + 1))
A("v_cvt_pk_bf16_f32 v%d, v%d, v%d" % (W + 5, W + 2, W + 3))
A("s_cbranch_scc1 Lh_qst")
fastcmp()
store_local("buffer_store_dwordx2", vr(W + 4, 2), vQST, sQS)
A("s_mov_b64 exec, -1")
STAMP(2)

C("attention over this workgroup's 128 keys")
if QS:
    C("each wave fetches one k-step of q and shares it through LDS")
    A("s_lshl_b32 s%d, s%d, 10" % (sT3, sW))
    A("s_add_u32 s%d, s%d, s%d" % (sT4, sQL, sT3))
    A("s_add_u32 s%d, s%d, %d" % (sT3, sT3, L_RB + 12288))
    A("v_add_u32 v25, s%d, v%d" % (sT3, vL16))
    A("v_add_u32 v26, %d, v%d" % (L_RB + 12288, vL16))
    ppoll(lambda k: A("buffer_load_dwordx4 %s, v%d, %s, s%d offen sc1" % (vr(W + 32 + 4 * k, 4), vL16, sr(sWS, 4), sT4)),
          lambda k: range(W + 32 + 4 * k, W + 36 + 4 * k), 1, vT, lambda k: ["ds_write_b128 v25, %s" % vr(W + 32 + 4 * k, 4)], pre=QPRE, gap=QGAP, tag=0)
    A("s_waitcnt lgkmcnt(0)")
    A("s_barrier")
    for t in range(4):
        A("ds_read_b128 %s, v26 offset:%d" % (vr(QF + 4 * t, 4), 1024 * t))
    for t in range(4):
        A("s_waitcnt lgkmcnt(%d)" % (3 - t))
        A(qk[2 * t]); A(qk[2 * t + 1])
    touch_stub("k")
else:
    def iq(k):
        for t in range(4):
            A("buffer_load_dwordx4 %s, v%d, %s, s%d offen offset:%d sc1" % (vr(QF + 16 * k + 4 * t, 4), vL16, sr(sWS, 4), sQL, 1024 * t))
    def qks(k):
        return [mf(S + 4 * T, KF + 16 * T + 4 * t, QF + 16 * k + 4 * t, None if t == 0 else S + 4 * T) for t in range(4) for T in range(2)]
    ppoll(iq, lambda k: range(QF + 16 * k, QF + 16 * k + 16), 4, vT, qks, pre=QPRE, gap=QGAP, tag=0, stub="k")
STAMP(3)
LB("Lk_go")
NOP(7)
for ctl in ["row_ror:4", "row_ror:8"]:
    for i in range(8):
        A("v_add_f32_dpp v%d, v%d, v%d %s row_mask:0xf bank_mask:0xf" % (S + i, S + i, S + i, ctl))
A("v_max3_f32 v%d, v%d, v%d, v%d" % (vT, S, S + 1, S + 2))
A("v_max3_f32 v%d, v%d, v%d, v%d" % (vT + 1, S + 3, S + 4, S + 5))
A("v_max3_f32 v%d, v%d, v%d, v%d" % (vT, vT, S + 6, S + 7))
A("v_max_f32 v%d, v%d, v%d" % (vT, vT, vT + 1))
A("v_mov_b32 v%d, v%d" % (vT + 1, vT))
A("s_nop 1")
A("v_permlane16_swap_b32 v%d, v%d" % (vT, vT + 1))
A("v_max_f32 v%d, v%d, v%d" % (vT, vT, vT + 1))
A("v_mov_b32 v%d, v%d" % (vT + 1, vT))
A("s_nop 1")
A("v_permlane32_swap_b32 v%d, v%d" % (vT, vT + 1))
A("v_max_f32 v%d, v%d, v%d" % (vT, vT, vT + 1))
A("v_mul_f32 v%d, s%d, v%d" % (vT + 2, sSC, vT))
for i in range(8):
    A("v_fma_f32 v%d, v%d, s%d, -v%d" % (S + i, S + i, sSC, vT + 2))
for i in range(8):
    A("v_exp_f32 v%d, v%d" % (S + i, S + i))
for p in range(4):
    A("s_mov_b64 exec, %s" % sr(sPM + 2 * p, 2))
    for i in range(4):
        A("v_cvt_pk_bf16_f32 v%d, v%d, v%d" % (PM + 4 * p + i, S + 2 * i, S + 2 * i + 1))
A("s_mov_b64 exec, -1")
STAMP(4)
A("s_cmp_lg_u32 s%d, 0" % sLAY)
A("s_cbranch_scc1 Lv_go")
wait_w0(5 + PRET)
A("buffer_load_dwordx4 %s, v%d, %s, s%d offen sc1" % (vr(FLG, 4), vL16, sr(sWS, 4), sIT))
STAMP(6)
A("s_cmp_lg_u32 s%d, 0" % sY)
A("s_cbranch_scc1 Lv_have")
for t in range(8):
    for hf in range(2):
        A("ds_read_b64_tr_b16 %s, v%d offset:%d" % (vr(VF + 4 * t + 2 * hf, 2), VA + t, 4096 * hf))
A("s_waitcnt lgkmcnt(0)")
LB("Lv_have")
if TOT:
    A("s_memrealtime s[42:43]"); A("s_waitcnt lgkmcnt(0)"); A("s_mov_b32 s97, s42")
A("s_cmp_lg_u32 s%d, 0" % sLAY)
LB("Lv_go")
OA = W + 8
mfma(W + 16, ONES, PM, None)
for p in range(4):
    for T in range(2):
        mfma(OA + 4 * T, VF + 4 * (2 * p + T), PM + 4 * p, None if p == 0 else OA + 4 * T)
A("s_mov_b64 exec, %s" % sr(sMSK, 2))
A("v_mov_b32 v%d, v%d" % (vT + 3, W + 16))
A("ds_write_b64 v%d, %s" % (vMLW, vr(vT + 2, 2)))
A("s_mov_b64 exec, -1")
NOP(3)
A("ds_write_b128 v%d, %s" % (vRBW, vr(OA, 4)))
A("ds_write_b128 v%d, %s offset:64" % (vRBW, vr(OA + 4, 4)))
A("s_waitcnt lgkmcnt(0)")
A("s_cbranch_scc1 Lrb_bar")
lds_arrive(12, vT + 4)
lds_spin(12, 4, vT + 4)
A("s_branch Lrb_go")
LB("Lrb_bar")
A("s_barrier")
LB("Lrb_go")
A("ds_read_b128 %s, v%d" % (vr(W, 4), vMLR))
A("ds_read_b128 %s, v%d offset:16" % (vr(W + 4, 4), vMLR))
for w in range(4):
    A("ds_read_b64 %s, v%d offset:%d" % (vr(W + 8 + 2 * w, 2), vRBR, RBS * w))
A("v_mov_b32 v%d, 0" % (vT + 4))
fastcmp()
A("s_waitcnt lgkmcnt(4)")
A("v_max3_f32 v%d, v%d, v%d, v%d" % (vT, W, W + 2, W + 4))
A("v_max_f32 v%d, v%d, v%d" % (vT, vT, W + 6))
for w in range(4): A("v_sub_f32 v%d, v%d, v%d" % (W + 2 * w, W + 2 * w, vT))
for w in range(4): A("v_exp_f32 v%d, v%d" % (W + 2 * w, W + 2 * w))
A("v_mul_f32 v%d, v%d, v%d" % (vT + 1, W, W + 1))
for w in range(1, 4): A("v_fmac_f32 v%d, v%d, v%d" % (vT + 1, W + 2 * w, W + 2 * w + 1))
A("s_waitcnt lgkmcnt(0)")
A("v_pk_mul_f32 %s, %s, %s op_sel_hi:[1,0]" % (vr(W + 8, 2), vr(W + 8, 2), vr(W, 2)))
A("v_rcp_f32 v%d, v%d" % (vT + 2, vT + 1))
A("v_pk_fma_f32 %s, %s, %s, %s op_sel_hi:[1,0,1]" % (vr(W + 8, 2), vr(W + 10, 2), vr(W + 2, 2), vr(W + 8, 2)))
A("v_log_f32 v%d, v%d" % (vT + 5, vT + 1))
for w in range(2, 4):
    A("v_pk_fma_f32 %s, %s, %s, %s op_sel_hi:[1,0,1]" % (vr(W + 8, 2), vr(W + 8 + 2 * w, 2), vr(W + 2 * w, 2), vr(W + 8, 2)))
A("v_pk_mul_f32 %s, %s, %s op_sel_hi:[1,0]" % (vr(W + 8, 2), vr(W + 8, 2), vr(vT + 2, 2)))
A("v_add_f32 v%d, v%d, v%d" % (vT + 5, vT + 5, vT))
A("v_cvt_pk_bf16_f32 v%d, v%d, v%d" % (W + 8, W + 8, W + 9))
store_local("buffer_store_dword", "v%d" % (W + 8), vOST, sOS)
A("s_mov_b64 exec, 1")
store_local("buffer_store_dword", "v%d" % (vT + 5), vT + 4, sLS)
A("s_mov_b64 exec, -1")
STAMP(5)

C("wo phase: wave = batch, rows = key splits")
OF = W; LS = W + 32; DA = WQF
assert LSE_OFF[1] - O_OFF[1] == LSE_OFF[0] - O_OFF[0]
def io(k):
    for t in range(4):
        A("buffer_load_dwordx4 %s, v%d, %s, s%d offen offset:%d sc1" % (vr(OF + 16 * k + 4 * t, 4), [vLSE, vLS2, vOLD, vOLD][t], sr(sWS, 4), sOL, 512 * t))
A("s_cmp_lg_u32 s%d, 0" % sLAY)
A("s_cbranch_scc1 Lo_go")
C("first layer: wo tile landed -> fragments; every workgroup has announced its clears")
A("s_waitcnt vmcnt(2)")
STAMP(13)
A("s_mov_b32 s%d, %s" % (sT4, hx(SPIN)))
LB("Lap")
A("v_and_b32 v24, -8, v%d" % (FLG + 1))
A("v_cmp_ne_u32 vcc, s%d, v%d" % (sTG1, FLG))
A("v_cmp_ne_u32 %s, s%d, v24" % (sr(sH, 2), sTG2))
A("s_or_b64 vcc, vcc, %s" % sr(sH, 2))
A("s_cbranch_vccnz Lar")
LB("Lad")
lds_arrive(16, 24)
for i in range(2):
    A("v_lshlrev_b32 v%d, 16, v%d" % (W + 40 + 2 * i, RES + 2 + i))
    A("v_and_b32 v%d, 0xffff0000, v%d" % (W + 41 + 2 * i, RES + 2 + i))
for i in range(4): A("v_mov_b32 v%d, v%d" % (RES + i, W + 40 + i))
for ct in range(4): A("v_xor_b32 v%d, %d, v%d" % (W + 40 + ct, 32 * ct, vWT))
for ct in range(4): A("v_add_u32 v%d, %d, v%d" % (W + 40 + ct, L_WO, W + 40 + ct))
lds_spin(16, 4, 24)
STAMP(14)
A("s_mov_b32 s%d, 1" % sY)
LB("Lo_go")
def pre_o():
    A("s_cmp_eq_u32 s%d, 0" % sY)
    A("s_cbranch_scc1 Lo_nof")
    A("s_mov_b32 s%d, 0" % sY)
    for t in range(4):
        for ct in range(4):
            for hf in range(2):
                A("ds_read_b64_tr_b16 %s, v%d offset:%d" % (vr(WOF + 16 * ct + 4 * t + 2 * hf, 2), W + 40 + ct, 4096 * t + 512 * hf))
    A("s_waitcnt lgkmcnt(0)")
    LB("Lo_nof")
ool.append(["Lar:", "    s_lshl_b32 s%d, s%d, 10" % (sT5, sW), "    s_add_u32 s%d, s%d, %s" % (sT5, sT5, hx(FB)),
            "    buffer_load_dwordx4 %s, v%d, %s, s%d offen sc1" % (vr(FLG, 4), vL16, sr(sWS, 4), sT5),
            "    s_waitcnt vmcnt(0)", "    s_sub_u32 s%d, s%d, 1" % (sT4, sT4), "    s_cbranch_scc0 Lap", "    s_branch Lad"])
def wo1(k): return [mf(DA + 4 * ct, OF + 16 * k + 4 * t, WOF + 16 * ct + 4 * t, None if t == 0 else DA + 4 * ct) for t in range(2) for ct in range(4)]
ppoll(io, lambda k: range(OF + 16 * k, OF + 16 * k + 16), 4, vT, wo1, pre=OPRE, gap=OGAP, mid=pre_o, tag=1,
      fix=["v_mov_b32 v%d, v%d" % (OF + i, OF + 16 + i) for i in range(16)])
STAMP(7)
C("softmax over the 8 key splits (lanes n>=8 hold own lse in OF[0:3], the other four in OF[4:7])")
va = ["v_max3_f32 v%d, v%d, v%d, v%d" % (vT, OF, OF + 1, OF + 2), "v_max3_f32 v%d, v%d, v%d, v%d" % (vT + 1, OF + 3, OF + 4, OF + 5),
      "v_max3_f32 v%d, v%d, v%d, v%d" % (vT, vT, OF + 6, OF + 7), "v_max_f32 v%d, v%d, v%d" % (vT, vT, vT + 1)]
va += ["v_sub_f32 v%d, v%d, v%d" % (LS + i, OF + i, vT) for i in range(4)]
va += ["v_exp_f32 v%d, v%d" % (LS + i, LS + i) for i in range(4)]
va += ["s_nop 0"]
va += ["v_mov_b32_dpp v%d, v%d row_ror:8 row_mask:0xf bank_mask:0x3" % (LS + i, LS + i) for i in range(4)]
va += ["v_add_f32 v%d, v%d, v%d" % (vT, LS, LS + 1), "v_add_f32 v%d, v%d, v%d" % (vT + 1, LS + 2, LS + 3),
       "v_add_f32 v%d, v%d, v%d" % (vT, vT, vT + 1), "v_mov_b32 v%d, v%d" % (vT + 1, vT)]
for t in range(2, 4):
    for ct in range(4):
        mfma(DA + 4 * ct, OF + 4 * t, WOF + 16 * ct + 4 * t, DA + 4 * ct)
        for k in range(3 if t == 3 or ct < 1 else 2):
            if va: A(va.pop(0))
assert not va
A("s_mov_b32 s%d, 0x55555555" % sT4)
A("s_mov_b32 s%d, 0x55555555" % sT5)
A("v_permlane16_swap_b32 v%d, v%d" % (vT, vT + 1))
A("v_mul_f32 v%d, v%d, v%d" % (DA, DA, LS))
A("v_add_f32 v%d, v%d, v%d" % (vT, vT, vT + 1))
A("v_mul_f32 v%d, v%d, v%d" % (DA + 4, DA + 4, LS))
A("v_rcp_f32 v%d, v%d" % (vT, vT))
A("v_mul_f32 v%d, v%d, v%d" % (DA + 8, DA + 8, LS))
for i in range(1, 4):
    for ct in range(3):
        A("v_fmac_f32 v%d, v%d, v%d" % (DA + 4 * ct, DA + 4 * ct + i, LS + i))
    if i == 1: A("v_mul_f32 v%d, v%d, v%d" % (DA + 12, DA + 12, LS))
for i in range(1, 4): A("v_fmac_f32 v%d, v%d, v%d" % (DA + 12, DA + 12 + i, LS + i))
A("v_permlane16_swap_b32 v%d, v%d" % (DA, DA + 4))
A("s_nop 0")
A("v_permlane16_swap_b32 v%d, v%d" % (DA + 8, DA + 12))
A("v_add_f32 v%d, v%d, v%d" % (DA, DA, DA + 4))
A("v_add_f32 v%d, v%d, v%d" % (DA + 8, DA + 8, DA + 12))
A("s_nop 1")
A("v_permlane32_swap_b32 v%d, v%d" % (DA, DA + 8))
A("v_mul_f32 v%d, v%d, v%d" % (DA, DA, vT))
A("s_cmp_lg_u32 s%d, 0" % sLAY)
A("s_nop 0")
A("v_mov_b32_dpp v%d, v%d quad_perm:[1,0,3,2] row_mask:0xf bank_mask:0xf" % (DA + 1, DA))
A("s_mov_b64 exec, %s" % sr(sT4, 2))
A("v_cvt_pk_bf16_f32 v%d, v%d, v%d" % (DA, DA, DA + 1))
A("buffer_store_dword v%d, v%d, %s, s%d offen sc1" % (DA, vPST, sr(sWS, 4), sPS))
A("s_mov_b64 exec, -1")
STAMP(8)
A("s_cbranch_scc1 Lfinal")

A("s_cmp_lg_u32 s%d, 0" % sW)
A("s_cbranch_scc1 Ltab")
C("stage 1 (wave 0): reduce 32 head partials of 64 outputs, add residual, publish x1 slice")
soff(sT1, [(sA, 15), (sC, 12)], PB)
soff(sT2, [(sA, 10), (sC, 7), (sJ, 17)], X1_OFF)
A("s_mov_b32 s%d, 0x00ff00ff" % sT4)
A("s_mov_b32 s%d, 0" % sT5)
def ip(k):
    for i in range(4):
        A("buffer_load_dwordx4 %s, v%d, %s, s%d offen offset:%d sc1" % (vr(W + 20 * k + 4 * i, 4), vL16, sr(sWS, 4), sT1, 1024 * i))
if GW: A("s_waitcnt vmcnt(0)")
ppoll(ip, lambda k: range(W + 20 * k, W + 20 * k + 16), 4, vT, lambda k: [mf(W + 16, SEL, W + 20 * k + 4 * i, None if i == 0 else W + 16) for i in range(4)], pre=GPRE, gap=GGAP, tag=2)
STAMP(9)
fastcmp()
NOP(6)
for i in range(4):
    A("v_add_f32_dpp v%d, v%d, v%d row_ror:8 row_mask:0xf bank_mask:0xf" % (W + 16 + i, W + 16 + i, W + 16 + i))
A("s_mov_b64 exec, %s" % sr(sT4, 2))
A("v_pk_add_f32 %s, %s, %s" % (vr(W + 16, 2), vr(W + 16, 2), vr(RES, 2)))
A("v_pk_add_f32 %s, %s, %s" % (vr(W + 18, 2), vr(W + 18, 2), vr(RES + 2, 2)))
A("v_cvt_pk_bf16_f32 v%d, v%d, v%d" % (W + 16, W + 16, W + 17))
A("v_cvt_pk_bf16_f32 v%d, v%d, v%d" % (W + 17, W + 18, W + 19))
store_local("buffer_store_dwordx2", vr(W + 16, 2), vX1S, sT2)
A("s_mov_b64 exec, -1")
LB("Ltabdone")
soff(sT3, [(sW, 10), (sJ, 17)], X1_OFF)
def ix(k):
    A("buffer_load_dwordx4 %s, v%d, %s, s%d offen sc1" % (vr([XR, RES][k], 4), vL16, sr(sWS, 4), sT3))
wqf_reads()
ppoll(ix, lambda k: range([XR, RES][k], [XR, RES][k] + 4), 1, vT, lambda k: ["s_waitcnt lgkmcnt(0)", "v_readfirstlane_b32 s%d, v%d" % (sT1, vT + 2)],
      pre=XPRE, gap=XGAP, mid=lambda: A("ds_read_b32 v%d, v%d offset:20" % (vT + 2, vFL)), tag=3,
      fix=["v_mov_b32 v%d, v%d" % (XR + i, RES + i) for i in range(4)])
A("s_cmp_lt_u32 s%d, 3" % sT1)
A("s_cbranch_scc1 Ltw")
LB("Ltwd")
STAMP(10)

LB("Lmix")
C("x <- x + g(LN(LN(x))) ; g is tabulated for every bf16 input in range, evaluated directly otherwise")
X = W; HB = W + 8; RT = W + 12; AD = W + 16; Y = W + 24
row_stats(XR, vT, X)
A("v_add_f32 v%d, %s, v%d" % (vT + 2, EPS, vT + 1))
A("v_rsq_f32 v%d, v%d" % (vT + 2, vT + 2))
A("v_mov_b32 v%d, %s" % (vT + 4, hx(LO2 | (LO2 << 16))))
A("v_mul_f32 v%d, v%d, v%d" % (vT + 1, vT + 1, vT + 2))
A("v_fmaak_f32 v%d, v%d, v%d, %s" % (vT + 1, vT + 1, vT + 2, EPS))
A("v_rsq_f32 v%d, v%d" % (vT + 1, vT + 1))
A("s_nop 0")
A("v_mul_f32 v%d, v%d, v%d" % (vT + 2, vT + 2, vT + 1))
A("v_mul_f32 v%d, v%d, v%d" % (vT + 3, vT, vT + 2))
for i in range(4):
    A("v_pk_fma_f32 %s, %s, %s, %s op_sel:[0,0,1] op_sel_hi:[1,0,1] neg_lo:[0,0,1] neg_hi:[0,0,1]" % (vr(AD + 2 * i, 2), vr(X + 2 * i, 2), vr(vT + 2, 2), vr(vT + 2, 2)))
for i in range(4):
    A("v_cvt_pk_bf16_f32 v%d, v%d, v%d" % (HB + i, AD + 2 * i, AD + 2 * i + 1))
for i in range(4):
    A("v_pk_lshlrev_b16 v%d, 1, v%d op_sel_hi:[0,1]" % (RT + i, HB + i))
    A("v_pk_lshrrev_b16 v%d, 15, v%d op_sel_hi:[0,1]" % (AD + i, HB + i))
for i in range(4):
    A("v_or_b32 v%d, v%d, v%d" % (RT + i, RT + i, AD + i))
for i in range(4):
    A("v_pk_sub_u16 v%d, v%d, v%d" % (RT + i, RT + i, vT + 4))
for i in range(4):
    A("v_lshlrev_b32_sdwa v%d, 2, v%d dst_sel:DWORD dst_unused:UNUSED_PAD src0_sel:DWORD src1_sel:WORD_0" % (AD + 2 * i, RT + i))
    A("v_lshlrev_b32_sdwa v%d, 2, v%d dst_sel:DWORD dst_unused:UNUSED_PAD src0_sel:DWORD src1_sel:WORD_1" % (AD + 2 * i + 1, RT + i))
    A("ds_read_b32 v%d, v%d offset:%d" % (Y + 2 * i, AD + 2 * i, L_TAB))
    A("ds_read_b32 v%d, v%d offset:%d" % (Y + 2 * i + 1, AD + 2 * i + 1, L_TAB))
A("v_max3_u32 v%d, v%d, v%d, v%d" % (vT, AD, AD + 1, AD + 2))
A("v_max3_u32 v%d, v%d, v%d, v%d" % (vT + 1, AD + 3, AD + 4, AD + 5))
A("v_max3_u32 v%d, v%d, v%d, v%d" % (vT, vT, AD + 6, AD + 7))
A("v_max_u32 v%d, v%d, v%d" % (vT, vT, vT + 1))
A("v_cmp_le_u32 vcc, %d, v%d" % (NENT * 4, vT))
A("s_cbranch_vccnz Lslow")
LB("Lslowdone")
A("s_cmp_lg_u32 s%d, 0" % sLAY)
for i in range(4):
    A("s_waitcnt lgkmcnt(%d)" % (6 - 2 * i))
    A("v_pk_add_f32 %s, %s, %s" % (vr(X + 2 * i, 2), vr(X + 2 * i, 2), vr(Y + 2 * i, 2)))
for i in range(4):
    A("v_cvt_pk_bf16_f32 v%d, v%d, v%d" % (XR + i, X + 2 * i, X + 2 * i + 1))
STAMP(11)
A("s_cbranch_scc1 Lout")
A("ds_write_b128 v%d, %s offset:%d" % (vXNW, vr(XR, 4), L_X2 - L_XN))
A("s_mov_b32 s%d, 1" % sLAY)
A("s_mov_b32 s%d, 0" % sY)
if TOT: A("s_memrealtime s[100:101]")
for s, d in [(sOL, O_OFF[1] - O_OFF[0]), (sOS, O_OFF[1] - O_OFF[0]), (sLS, LSE_OFF[1] - LSE_OFF[0]), (sPS, P_L)]:
    A("s_add_u32 s%d, s%d, %d" % (s, s, d))
if DIAG: A("v_mov_b32 v28, v30")
A("s_branch Llnq")

L.append(".p2align 6"); LB("Lst_fin"); A("s_setpc_b64 %s" % sr(sRET, 2)); stubs.append("fin")
LB("Lfinal")
A("s_cmp_ge_u32 s2, 4")
A("s_cbranch_scc1 Lepoch")
C("workgroup b: reduce the 32 head partials of row b, add x2, mixer, store")
soff(sT1, [(2, 15), (sW, 13)], PB + P_L)
A("s_add_u32 s%d, s%d, 4096" % (sT2, sT1))
A("s_mul_i32 s%d, s2, %d" % (sT0, XS))
A("s_lshl_b32 s%d, s%d, 8" % (sT3, sW))
A("s_add_u32 s%d, s%d, s%d" % (sT0, sT0, sT3))
A("s_add_u32 s%d, s%d, %d" % (sT0, sT0, L_X2))
A("v_add_u32 v%d, s%d, v%d" % (vT + 4, sT0, vX1S))
A("s_add_u32 s%d, s%d, %d" % (sT3, sT3, L_XN))
A("v_add_u32 v%d, s%d, v%d" % (vT + 5, sT3, vX1S))
A("ds_read_b64 %s, v%d" % (vr(PM, 2), vT + 4))
A("ds_read_b64 %s, v%d offset:128" % (vr(PM + 2, 2), vT + 4))
A("s_mov_b32 s%d, 0x00ff00ff" % sT4)
A("s_mov_b32 s%d, 0" % sT5)
A("s_waitcnt lgkmcnt(0)")
if GW: A("s_waitcnt vmcnt(0)")
for i in range(4):
    A("v_lshlrev_b32 v%d, 16, v%d" % (PM + 4 + 2 * i, PM + i))
    A("v_and_b32 v%d, 0xffff0000, v%d" % (PM + 5 + 2 * i, PM + i))
FS = [KF, VF]
def ifin(k):
    for i in range(8):
        A("buffer_load_dwordx4 %s, v%d, %s, s%d offen offset:%d sc1" % (vr(FS[k] + 4 * i, 4), vL16, sr(sWS, 4), sT1 if i < 4 else sT2, 1024 * (i & 3)))
def fs(k):
    o = []
    for i in range(4):
        o.append(mf(W + 32, SEL, FS[k] + 4 * i, None if i == 0 else W + 32))
        o.append(mf(W + 36, SEL, FS[k] + 16 + 4 * i, None if i == 0 else W + 36))
    return o
ppoll(ifin, lambda k: range(FS[k], FS[k] + 32), 8, vT, fs, pre=GPRE, gap=GGAP, tag=2)
STAMP(9)
NOP(7)
for i in range(8):
    A("v_add_f32_dpp v%d, v%d, v%d row_ror:8 row_mask:0xf bank_mask:0xf" % (W + 32 + i, W + 32 + i, W + 32 + i))
A("s_mov_b64 exec, %s" % sr(sT4, 2))
for i in range(4):
    A("v_pk_add_f32 %s, %s, %s" % (vr(W + 32 + 2 * i, 2), vr(W + 32 + 2 * i, 2), vr(PM + 4 + 2 * i, 2)))
for i in range(4):
    A("v_cvt_pk_bf16_f32 v%d, v%d, v%d" % (W + 32 + i, W + 32 + 2 * i, W + 33 + 2 * i))
A("ds_write_b64 v%d, %s" % (vT + 5, vr(W + 32, 2)))
A("ds_write_b64 v%d, %s offset:128" % (vT + 5, vr(W + 34, 2)))
A("s_mov_b64 exec, -1")
A("s_cmp_lg_u32 s%d, 0" % sW)
A("s_waitcnt lgkmcnt(0)")
A("s_barrier")
A("s_cbranch_scc1 Lfin_exit")
A("ds_read_b128 %s, v%d" % (vr(XR, 4), vXNW))
A("s_waitcnt lgkmcnt(0)")
STAMP(10)
A("s_branch Lmix")
L.append(".p2align 6"); LB("Lst_out"); A("s_setpc_b64 %s" % sr(sRET, 2)); stubs.append("out")
LB("Lout")
A("s_lshl_b32 s%d, s2, 10" % sT0)
A("buffer_store_dwordx4 %s, v%d, %s, s%d offen" % (vr(XR, 4), vL16, sr(sOUT, 4), sT0))
if DBL:
    A("s_cmp_lg_u32 s2, 0")
    A("s_cbranch_scc1 Lfin_exit")
if DBL:
    A("s_waitcnt vmcnt(0)")
    A("s_memrealtime s[10:11]")
    A("s_waitcnt lgkmcnt(0)")
    A("s_sub_u32 s12, s10, s98")
    if "pad" in OPT:
        A("s_mov_b32 s10, s98"); A("s_mov_b32 s12, %d" % (100 * int(OPT["pad"])))
    LB("Ldbl")
    A("s_memrealtime s[14:15]")
    A("s_waitcnt lgkmcnt(0)")
    A("s_sub_u32 s13, s14, s10")
    A("s_cmp_lt_u32 s13, s12")
    A("s_cbranch_scc1 Ldbl")
LB("Lfin_exit")
if TOT:
    A("s_waitcnt vmcnt(0)")
    A("s_memrealtime s[10:11]")
    A("s_waitcnt lgkmcnt(0)")
    A("v_mov_b32 v16, s98")
    A("v_mov_b32 v17, s10")
    A("v_mov_b32 v18, s100")
    A("v_mov_b32 v19, s97")
    soff(sT2, [(2, 6), (sW, 4)], STB)
    A("v_mov_b32 v20, 0")
    A("s_mov_b64 exec, 1")
    A("buffer_store_dwordx4 v[16:19], v20, %s, s%d offen" % (sr(sWS, 4), sT2))
if DIAG:
    A("s_waitcnt vmcnt(0)")
    STAMP(12)
    if DIAG == 2:
        A("s_or_b32 s%d, s2, s%d" % (sT0, sW))
        A("s_cmp_lg_u32 s%d, 0" % sT0)
        A("s_cbranch_scc1 Lend")
        A("v_readlane_b32 s%d, v28, 0" % sT2)
        for k, (r, i) in enumerate([(31, 10), (31, 12), (28, 1), (28, 2), (28, 6), (28, 5), (28, 7), (28, 8), (28, 9), (28, 10), (28, 11), (30, 3), (30, 5), (30, 8), (30, 9), (30, 12)]):
            A("v_readlane_b32 s%d, v%d, %d" % (sT3, r, i))
            A("s_sub_u32 s%d, s%d, s%d" % (sT3, sT3, sT2))
            A("s_nop 0")
            A("v_writelane_b32 v17, s%d, %d" % (sT3, k))
        A("v_lshlrev_b32 v16, 2, v%d" % vLANE)
        A("s_mov_b64 exec, 0xffff")
        A("global_store_dword v16, v17, s[100:101]")
        A("s_endpgm")
    soff(sT1, [(2, 10), (sW, 7)], STB)
    A("v_lshlrev_b32 v16, 2, v%d" % vLANE)
    A("s_mov_b64 exec, 0xffff")
    A("buffer_store_dword v28, v16, %s, s%d offen" % (sr(sWS, 4), sT1))
    A("buffer_store_dword v30, v16, %s, s%d offen offset:64" % (sr(sWS, 4), sT1))
    A("s_add_u32 s%d, s%d, 0x40000" % (sT1, sT1))
    A("buffer_store_dword v31, v16, %s, s%d offen" % (sr(sWS, 4), sT1))
LB("Lend")
A("s_endpgm")
LB("Lepoch")
C("every workgroup has used the old launch tag long ago: workgroup 4 advances it")
A("s_lshl_b32 s%d, s%d, 8" % (sT0, sW))
A("s_add_u32 s%d, s%d, s2" % (sT0, sT0))
A("s_cmp_lg_u32 s%d, 4" % sT0)
A("s_cbranch_scc1 Lfin_exit")
A("v_mov_b32 v16, s%d" % sTG1)
A("v_mov_b32 v17, %s" % hx(EPO))
A("s_mov_b64 exec, 1")
A("buffer_store_dword v16, v17, %s, 0 offen sc1" % sr(sWS, 4))
A("s_mov_b64 exec, -1")
A("s_branch Lfin_exit")

L.append(".p2align 6"); LB("Lst_tab"); A("s_setpc_b64 %s" % sr(sRET, 2)); stubs.append("tab")
LB("Ltab")
C("waves 1..3: gather the g(h) table into LDS")
NTL = -(-NENT * 4 // 3 // 1024)
A("s_sub_u32 s%d, s%d, 1" % (sT1, sW))
A("s_mul_i32 s%d, s%d, %d" % (sT1, sT1, NTL * 1024))
A("s_min_u32 s%d, s%d, %d" % (sT1, sT1, NENT * 4 - NTL * 1024))
A("v_add_u32 v%d, s%d, v%d" % (vT + 4, sT1, vL16))
A("s_add_u32 s%d, s%d, %s" % (sT1, sT1, hx(TB)))
A("s_add_u32 s%d, s%d, 4096" % (sT2, sT1))
def it():
    for i in range(NTL):
        A("buffer_load_dwordx4 %s, v%d, %s, s%d offen offset:%d sc1" % (vr(W + 4 * i, 4), vL16, sr(sWS, 4), sT1 if i < 4 else sT2, 1024 * (i & 3)))
poll(it, range(W, W + 4 * NTL), vT, back="s_sleep 16")
for i in range(NTL):
    A("ds_write_b128 v%d, %s offset:%d" % (vT + 4, vr(W + 4 * i, 4), L_TAB + 1024 * i))
A("s_waitcnt lgkmcnt(0)")
lds_arrive(20, vT + 4)
STAMP(9)
A("s_branch Ltabdone")
LB("Ltw")
lds_spin(20, 3, vT + 2)
A("s_branch Ltwd")

LB("Lslow")
C("rare: some h lies outside the table -> evaluate g(h) directly for those lanes")
RW1 = [W + 32 + i for i in range(14)]
RB1 = [PM + i for i in range(14)]
RW2 = [16 + i for i in range(10)] + [W + 46, W + 47, PM + 14, PM + 15]
A("v_lshlrev_b32 v26, 3, v%d" % vLANE)
A("s_load_dword s%d, %s, 0" % (sB2, sr(sB2P, 2)))
for (d4, d2, s) in [([W + 32, W + 36, W + 40], W + 44, sW1), ([PM, PM + 4, PM + 8], PM + 12, sB1)]:
    for k in range(3):
        A("buffer_load_dwordx4 %s, v%d, %s, 0 offen offset:%d" % (vr(d4[k], 4), vL16, sr(s, 4), 1024 * k))
    A("buffer_load_dwordx2 %s, v26, %s, 0 offen offset:3072" % (vr(d2, 2), sr(s, 4)))
A("buffer_load_dwordx4 v[16:19], v%d, %s, 0 offen" % (vL16, sr(sW2, 4)))
A("buffer_load_dwordx4 v[20:23], v%d, %s, 0 offen offset:1024" % (vL16, sr(sW2, 4)))
A("buffer_load_dwordx2 v[24:25], v%d, %s, 0 offen offset:2048" % (vL16, sr(sW2, 4)))
A("buffer_load_dwordx2 %s, v%d, %s, 0 offen offset:2056" % (vr(W + 46, 2), vL16, sr(sW2, 4)))
A("buffer_load_dwordx2 %s, v26, %s, 0 offen offset:3072" % (vr(PM + 14, 2), sr(sW2, 4)))
A("s_waitcnt vmcnt(0) lgkmcnt(0)")
A("s_lshl_b32 s%d, s%d, 16" % (sB2, sB2))
for e in range(8):
    A("v_cmp_le_u32 vcc, %d, v%d" % (NENT * 4, AD + e))
    A("s_mov_b64 %s, vcc" % sr(sH2, 2))
    LB("Lse%d" % e)
    A("s_cmp_eq_u64 %s, 0" % sr(sH2, 2))
    A("s_cbranch_scc1 Lsf%d" % e)
    A("s_ff1_i32_b64 s%d, %s" % (sT0, sr(sH2, 2)))
    A("s_bitset0_b64 %s, s%d" % (sr(sH2, 2), sT0))
    A("s_mov_b32 m0, s%d" % sT0)
    A("v_readlane_b32 s%d, v%d, s%d" % (sH, HB + (e >> 1), sT0))
    if e & 1: A("s_and_b32 s%d, s%d, 0xffff0000" % (sH, sH))
    else: A("s_lshl_b32 s%d, s%d, 16" % (sH, sH))
    A("s_call_b64 %s, Lgev" % sr(sRET, 2))
    A("v_writelane_b32 v%d, s%d, m0" % (Y + e, sY))
    A("s_branch Lse%d" % e)
    LB("Lsf%d" % e)
for i in range(16): A("v_mov_b32 v%d, 0" % (PM + i))
A("s_branch Lslowdone")
LB("Lgev")
a, u, t1, z = RES, RES + 1, RES + 2, RT
A("v_mov_b32 v%d, 0" % a)
A("v_mov_b32 v%d, %s" % (RT + 1, hx(f2u(K0))))
A("v_mov_b32 v%d, %s" % (RT + 2, hx(f2u(K1))))
for p in range(14):
    for hf in range(2):
        def un(d, s):
            if hf == 0: A("v_lshlrev_b32 v%d, 16, v%d" % (d, s))
            else: A("v_and_b32 v%d, 0xffff0000, v%d" % (d, s))
        un(u, RW1[p]); un(t1, RB1[p]); un(z, RW2[p])
        A("v_fma_f32 v%d, v%d, s%d, v%d" % (u, u, sH, t1))
        A("v_mul_f32 v%d, v%d, v%d" % (t1, u, u))
        A("v_fma_f32 v%d, v%d, v%d, v%d" % (t1, t1, RT + 2, RT + 1))
        A("v_mul_f32 v%d, v%d, v%d" % (t1, t1, u))
        A("v_exp_f32 v%d, v%d" % (t1, t1))
        A("v_mul_f32 v%d, v%d, v%d" % (z, z, u))
        A("v_add_f32 v%d, 1.0, v%d" % (t1, t1))
        A("v_rcp_f32 v%d, v%d" % (t1, t1))
        A("s_nop 0")
        A("v_fmac_f32 v%d, v%d, v%d" % (a, z, t1))
A("v_mov_b32 v%d, v%d" % (u, a))
A("s_nop 1")
wave_sum2(a, u, sY, sT1)
A("s_nop 1")
A("v_mov_b32 v%d, s%d" % (a, sY))
A("v_cvt_pk_bf16_f32 v%d, v%d, v%d" % (a, a, a))
A("v_and_b32 v%d, 0xffff0000, v%d" % (a, a))
A("v_add_f32 v%d, s%d, v%d" % (a, sB2, a))
A("v_cvt_pk_bf16_f32 v%d, v%d, v%d" % (a, a, a))
A("v_and_b32 v%d, 0xffff0000, v%d" % (a, a))
A("s_nop 0")
A("v_readfirstlane_b32 s%d, v%d" % (sY, a))
A("s_nop 3")
A("s_setpc_b64 %s" % sr(sRET, 2))

for b in ool: L += b
A("s_endpgm")
L.append(".p2align 8")
L.append(".fill %d, 4, 0xBF800000" % (64 if DIAG else 512))
L.append('''.section .rodata,"a"
.p2align 6
.amdhsa_kernel %s_kernel
  .amdhsa_next_free_vgpr 256
  .amdhsa_next_free_sgpr 102
  .amdhsa_accum_offset 256
  .amdhsa_group_segment_fixed_size 0
  .amdhsa_kernarg_size 104
  .amdhsa_user_sgpr_count 2
  .amdhsa_user_sgpr_kernarg_segment_ptr 1
  .amdhsa_system_sgpr_workgroup_id_x 1
.end_amdhsa_kernel''' % NAME)
open(OUTF, "w").write("\n".join(x for x in L if x is not None) + "\n")
print("wrote", OUTF, "lines", len(L), "LDS", LDS_SZ)
```

```python
import sys, struct, math

NAME = "interleave_layers__sliding_block_cached__mixer_token_mlp__decode"
OUTF = sys.argv[1] if len(sys.argv) > 1 else "cdna_kernels/%s.s" % NAME
DIAG = int(sys.argv[2]) if len(sys.argv) > 2 else 0
DBL = 0
if DIAG == 3: DIAG = 0; DBL = 1
TOT = 0
if DIAG == 4: DIAG = 0; TOT = 1
OPT = dict(a.split("=") for a in sys.argv[3:])
DEPTH = int(OPT.get("depth", 8))
D0 = int(OPT.get("d0", 2))
D1 = int(OPT.get("d1", 4))
DC = int(OPT.get("dc", 3))
TAILI = int(OPT.get("taili", 11))
TAILD = int(OPT.get("taild", 8))
QV = int(OPT.get("qv", 4))
PRET = int(OPT.get("pret", 1))
GW = int(OPT.get("gw", 1))
GPRE = int(OPT.get("gpre", 0))
GGAP = int(OPT.get("ggap", -1))
WARM = int(OPT.get("warm", 1))
QPRE = int(OPT.get("qpre", -1)); QGAP = int(OPT.get("qgap", -1))
OPRE = int(OPT.get("opre", -1)); OGAP = int(OPT.get("ogap", -1))
XPRE = int(OPT.get("xpre", -1)); XGAP = int(OPT.get("xgap", -1))
FINE = OPT.get("fine", "")
QS = int(OPT.get("qs", 0))
ADP = int(OPT.get("adp", 0))
ROT = int(OPT.get("rot", 1)); VROT = int(OPT.get("vrot", 0))
WROT = int(OPT.get("wrot", 1))
QT = int(OPT.get("qt", 0))
DRY = int(OPT.get("dry", 0))
HP = int(OPT.get("hp", 0))
NOCT = int(OPT.get("noct", 16))
QPOS = int(OPT.get("qpos", 1))
QPOS2 = int(OPT.get("qpos2", 7))

def f2u(x): return struct.unpack("<I", struct.pack("<f", x))[0]
def hx(x): return "0x%08x" % (x & 0xffffffff)

L = []
def A(s): L.append("    " + s)
def LB(s): L.append(s + ":")
def C(s): L.append("    ; " + s)
def vr(a, n): return "v[%d:%d]" % (a, a + n - 1)
def sr(a, n): return "s[%d:%d]" % (a, a + n - 1)
def NOP(n):
    while n > 0:
        k = min(n, 16); A("s_nop %d" % (k - 1)); n -= k

ELO = int(OPT.get('elo', 132 - NOCT if NOCT == 24 else 130 - NOCT))
LO2 = (ELO << 7) * 2
NENT = NOCT * 256
EPW = NENT // 256 // 4 // 2
GRS = 0x20000
O_OFF = [0x0000, 0xC400]; LSE_OFF = [0x8000, 0x14400]; Q1_OFF = 0x8400; X1_OFF = 0x14600
CLRA_PER = 1040
CLRB_OFF = 0x8400; CLRB_PER = 1680
Q0_OFF = 0x18000
EPO = 0x17f00
PB = 0x100000; P_L = 0x20000
TB = 0x140000; FB = 0x148000
QB_DELTA = 0x180000
STB = 0x300000
WS_SZ = 0x400000
L_TAB = 0
L_WQ = 24576; L_K = L_WQ + 16384; L_V = L_K + 32768; L_WO = L_V + 32768
L_XN = L_WO + 16384; XS = 1056
L_X2 = L_XN + 4 * XS
L_FLG = L_X2 + 4 * XS
L_RB = L_K; RBS = 2048 + 64; L_ML = L_K + 4 * RBS
L_QF = L_X2
LDS_SZ = int(OPT.get("lds", L_FLG + 64))
SPIN = 0x40000
K0 = -2.0 * math.sqrt(2.0 / math.pi) * math.log2(math.e)
K1 = K0 * 0.044715
EPS = hx(f2u(1e-5))

sTG1, sTG2 = 0, 1
sW, sJ, sA, sC, sGR, sLAY, sFAST = 3, 4, 5, 6, 7, 8, 9
sT0, sT1, sT2, sT3, sT4, sT5 = 10, 11, 12, 13, 14, 15
sCNT = 16
sQL, sQS, sOL, sOS, sLL, sLS, sPS = 17, 18, 19, 20, 21, 22, 23
sSC, sIT = 24, 25
sSUM, sSQ = 26, 27
sH, sH2, sRET, sMSK = 28, 30, 32, 34
sB2, sY, sXCC, sE = 36, 37, 38, 39
sB2P = 40
sK, sV, sWQ, sWO, sWS, sX, sOUT, sW1, sB1, sW2 = 44, 48, 52, 56, 60, 64, 68, 72, 76, 80
sKO, sKL, sVO, sVL = 84, 85, 86, 87
sPM = 88
sHC, sHT = 84, 85

def STAMP(i):
    if DIAG:
        A("s_memrealtime s[42:43]"); A("s_waitcnt lgkmcnt(0)")
        A("v_writelane_b32 v30, s42, %d" % i)

def CST(i):
    if DIAG == 1 and FINE:
        A("s_memtime s[42:43]"); A("s_waitcnt lgkmcnt(0)")
        A("v_writelane_b32 v31, s42, %d" % i)

vLANE = 1
vL16, vQST, vOST, vOLD, vPST, vX1S, vXNW, vXNR, vRBW, vRBR, vMLW, vMLR, vLSE, vZ = range(2, 16)
vT = 16
vWT, vFL = 28, 29
vLS2 = 27
KF, VF, WQF, WOF, SEL, ONES = 32, 64, 96, 112, 176, 180
W = 184
PM = 232
XR = 248
RES = 252

def srd(s, nbytes):
    A("s_mov_b32 s%d, %s" % (s + 2, hx(nbytes))); A("s_mov_b32 s%d, 0x00020000" % (s + 3))

def soff(dst, terms, const):
    first = True
    for (src, sh) in terms:
        if first: A("s_lshl_b32 s%d, s%d, %d" % (dst, src, sh)); first = False
        else:
            A("s_lshl_b32 s%d, s%d, %d" % (sT0, src, sh)); A("s_add_u32 s%d, s%d, s%d" % (dst, dst, sT0))
    if const: A("s_add_u32 s%d, s%d, %s" % (dst, dst, hx(const)))

def wave_sum2(a, b, sa, sb):
    for ctl in ["row_ror:8", "row_ror:4", "row_ror:2", "row_ror:1"]:
        A("v_add_f32_dpp v%d, v%d, v%d %s row_mask:0xf bank_mask:0xf" % (a, a, a, ctl))
        A("v_add_f32_dpp v%d, v%d, v%d %s row_mask:0xf bank_mask:0xf" % (b, b, b, ctl))
        A("s_nop 0")
    for ctl in ["row_bcast:15 row_mask:0xa", "row_bcast:31 row_mask:0xc"]:
        A("v_add_f32_dpp v%d, v%d, v%d %s bank_mask:0xf" % (a, a, a, ctl))
        A("v_add_f32_dpp v%d, v%d, v%d %s bank_mask:0xf" % (b, b, b, ctl))
        A("s_nop 0")
    A("v_readlane_b32 s%d, v%d, 63" % (sa, a))
    A("v_readlane_b32 s%d, v%d, 63" % (sb, b))

def row_stats(x, t, unp):
    A("v_dot2_f32_bf16 v%d, v%d, v%d, 0" % (t, x, ONES))
    A("v_dot2_f32_bf16 v%d, v%d, v%d, 0" % (t + 1, x, x))
    for i in range(1, 4):
        A("v_dot2_f32_bf16 v%d, v%d, v%d, v%d" % (t, x + i, ONES, t))
        A("v_dot2_f32_bf16 v%d, v%d, v%d, v%d" % (t + 1, x + i, x + i, t + 1))
    un = []
    for i in range(4):
        un.append("v_lshlrev_b32 v%d, 16, v%d" % (unp + 2 * i, x + i))
        un.append("v_and_b32 v%d, 0xffff0000, v%d" % (unp + 2 * i + 1, x + i))
    for k in range(3): A(un.pop(0))
    a, b = t, t + 1
    for ctl in ["row_ror:8 row_mask:0xf", "row_ror:4 row_mask:0xf", "row_ror:2 row_mask:0xf", "row_ror:1 row_mask:0xf", "row_bcast:15 row_mask:0xa", "row_bcast:31 row_mask:0xc"]:
        A("v_add_f32_dpp v%d, v%d, v%d %s bank_mask:0xf" % (a, a, a, ctl))
        A("v_add_f32_dpp v%d, v%d, v%d %s bank_mask:0xf" % (b, b, b, ctl))
        A(un.pop(0) if un else "s_nop 0")
    A("v_readlane_b32 s%d, v%d, 63" % (sSUM, a))
    A("v_readlane_b32 s%d, v%d, 63" % (sSQ, b))
    A("s_nop 0")
    A("v_mul_f32 v%d, s%d, v%d" % (t, sSUM, vZ))
    A("v_mul_f32 v%d, s%d, v%d" % (t + 1, sSQ, vZ))
    A("v_fma_f32 v%d, -v%d, v%d, v%d" % (t + 1, t, t, t + 1))
    A("v_max_f32 v%d, 0, v%d" % (t + 1, t + 1))

ool = []
uid = [0]
def maxtree(regs, tmp):
    r = list(regs); out = []
    out.append("v_max3_u32 v%d, v%d, v%d, v%d" % (tmp, r[0], r[1], r[2])); r = r[3:]
    if len(r) >= 5:
        out.append("v_max3_u32 v%d, v%d, v%d, v%d" % (tmp + 1, r[0], r[1], r[2])); r = r[3:]
        d = 0
        while len(r) >= 2:
            out.append("v_max3_u32 v%d, v%d, v%d, v%d" % (tmp + d, tmp + d, r[0], r[1])); r = r[2:]; d ^= 1
        if r: out.append("v_max3_u32 v%d, v%d, v%d, v%d" % (tmp, tmp, tmp + 1, r[0]))
        else: out.append("v_max_u32 v%d, v%d, v%d" % (tmp, tmp, tmp + 1))
    else:
        while len(r) >= 2:
            out.append("v_max3_u32 v%d, v%d, v%d, v%d" % (tmp, tmp, r[0], r[1])); r = r[2:]
        if r: out.append("v_max_u32 v%d, v%d, v%d" % (tmp, tmp, r[0]))
    return out

def poll(issue, regs, tmp, pre_wait=None, spec=None, back="s_nop 7", tag=None, stub=None):
    uid[0] += 1; u = uid[0]
    A("s_mov_b32 s%d, %s" % (sCNT, hx(SPIN)))
    LB("Lp%d" % u)
    issue()
    if pre_wait: pre_wait()
    A("s_waitcnt vmcnt(0)")
    mt = maxtree(regs, tmp) + ["v_cmp_eq_u32 vcc, -1, v%d" % tmp]
    spec = list(spec or [])
    ns = len(spec)
    per = -(-len(mt) // ns) if ns else 0
    for s in spec:
        A(s)
        for k in range(per):
            if mt: A(mt.pop(0))
    for m in mt: A(m)
    A("s_cbranch_vccz Ld%d" % u)
    A("s_sub_u32 s%d, s%d, 1" % (sCNT, sCNT))
    if back != "s_nop 7": A(back)
    A("s_cbranch_scc0 Lp%d" % u)
    if stub: touch_stub(stub)
    LB("Ld%d" % u)
    if DIAG and tag is not None:
        A("s_lshl_b32 m0, s%d, 2" % sLAY); A("s_add_u32 m0, m0, %d" % tag); A("s_nop 0")
        A("v_writelane_b32 v31, s%d, m0" % sCNT)

stubs = []
def touch_stub(name, branch_over=None):
    A("s_branch Lsk_%s" % name)
    L.append(".p2align 6")
    LB("Lst_%s" % name)
    A("s_setpc_b64 %s" % sr(sRET, 2))
    LB("Lsk_%s" % name)
    stubs.append(name)

def delay(cyc):
    if cyc == -1:
        A("s_waitcnt vmcnt(0)"); return
    while cyc >= 64:
        k = min(cyc // 64, 15); A("s_sleep %d" % k); cyc -= 64 * k
    if cyc >= 8: A("s_nop %d" % min(15, cyc // 4 - 1))

def ppoll(issue, regs, n, tmp, spec, pre=0, gap=128, mid=None, tag=None, fix=None, stub=None, lanes=None):
    uid[0] += 1; u = uid[0]
    def look(k):
        out = ["s_waitcnt vmcnt(%d)" % (n if k == 0 else 0)]
        mt = maxtree(regs(k), tmp) + ["v_cmp_eq_u32 vcc, -1, v%d" % tmp]
        sp = list(spec(k)); per = -(-len(mt) // len(sp)) if sp else 0
        for x in sp:
            out.append(x)
            for _ in range(per):
                if mt: out.append(mt.pop(0))
        return out + mt + (["s_and_b64 vcc, vcc, %s" % sr(lanes, 2)] if lanes else [])
    A("s_mov_b32 s%d, %s" % (sCNT, hx(SPIN)))
    delay(pre)
    fine = FINE and tag == int(FINE)
    if fine: CST(8)
    LB("Lp%d" % u)
    issue(0)
    if fine and 0: CST(9)
    if mid: mid()
    if gap >= 0: delay(gap)
    if gap >= 0: issue(1)
    lk = look(0)
    if gap < 0: lk[0] = "s_waitcnt vmcnt(0)"
    for k, x in enumerate(lk):
        A(x)
        if fine and k == 0: CST(13)
    if fine: CST(14)
    A("s_cbranch_vccz Ld%d" % u)
    if gap < 0: issue(1)
    A("s_sub_u32 s%d, s%d, 1" % (sCNT, sCNT))
    for x in look(1): A(x)
    for x in (fix or []): A(x)
    A("s_cbranch_vccz Ld%d" % u)
    A("s_sub_u32 s%d, s%d, 1" % (sCNT, sCNT))
    A("s_cmp_gt_i32 s%d, 0" % sCNT)
    A("s_cbranch_scc1 Lp%d" % u)
    if stub: touch_stub(stub)
    LB("Ld%d" % u)
    if fine: CST(15)
    if DIAG and tag is not None:
        A("s_lshl_b32 m0, s%d, 2" % sLAY); A("s_add_u32 m0, m0, %d" % tag); A("s_nop 0")
        A("v_writelane_b32 v31, s%d, m0" % sCNT)

def lds_spin(off, target, tmp, mask=None, sleep=0):
    uid[0] += 1; u = uid[0]
    A("s_mov_b32 s%d, %s" % (sT2, hx(SPIN * 4)))
    LB("Ls%d" % u)
    A("ds_read_b32 v%d, v%d offset:%d" % (tmp, vFL, off))
    A("s_waitcnt lgkmcnt(0)")
    A("v_readfirstlane_b32 s%d, v%d" % (sT1, tmp))
    if mask: A("s_and_b32 s%d, s%d, %d" % (sT0, sT1, mask))
    A("s_cmp_ge_u32 s%d, %d" % (sT0 if mask else sT1, target))
    A("s_cbranch_scc1 Lt%d" % u)
    if sleep: A("s_sleep %d" % sleep)
    A("s_sub_u32 s%d, s%d, 1" % (sT2, sT2))
    A("s_cbranch_scc0 Ls%d" % u)
    LB("Lt%d" % u)

def lds_arrive(off, tmp, val=1):
    if val is not None: A("v_mov_b32 v%d, %d" % (tmp, val))
    A("s_mov_b64 exec, 1")
    A("ds_add_u32 v%d, v%d offset:%d" % (vFL, tmp, off))
    A("s_mov_b64 exec, -1")

def store_local(op, data, vaddr, so):
    uid[0] += 1; u = uid[0]
    A("s_cbranch_scc1 Lw%d" % u)
    A("%s %s, v%d, %s, s%d offen" % (op, data, vaddr, sr(sWS, 4), so))
    LB("Lx%d" % u)
    ool.append(["Lw%d:" % u, "    %s %s, v%d, %s, s%d offen sc1" % (op, data, vaddr, sr(sWS, 4), so), "    s_branch Lx%d" % u])
def fastcmp(): A("s_cmp_eq_u32 s%d, 0" % sFAST)

def mf(d, a, b, c):
    return "v_mfma_f32_16x16x32_bf16 %s, %s, %s, %s" % (vr(d, 4), vr(a, 4), vr(b, 4), "0" if c is None else vr(c, 4))
def mfma(d, a, b, c): A(mf(d, a, b, c))

def tags():
    A("s_add_u32 s%d, s%d, 1" % (sTG1, sE))
    A("s_mul_i32 s%d, s%d, 0x9E3779B1" % (sTG2, sTG1))
    A("s_and_b32 s%d, s%d, -8" % (sTG2, sTG2))

def common_addr():
    A("v_and_b32 v18, 3, v%d" % vLANE)
    A("v_lshlrev_b32 v%d, 12, v17" % vQST)
    A("v_lshrrev_b32 v24, 1, v16")
    A("v_lshl_add_u32 v%d, v24, 8, v%d" % (vQST, vQST))
    A("v_and_b32 v24, 1, v16")
    A("v_lshl_add_u32 v%d, v24, 3, v%d" % (vQST, vQST))
    A("v_lshlrev_b32 v%d, 4, v24" % vLSE)
    A("s_mul_i32 s%d, s%d, %d" % (sT0, sW, XS))
    A("s_add_u32 s%d, s%d, %d" % (sT0, sT0, L_XN))
    A("v_add_u32 v%d, s%d, v%d" % (vXNW, sT0, vL16))
    A("s_lshl_b32 s%d, s%d, 8" % (sT0, sA))
    A("s_add_u32 s%d, s%d, %d" % (sT0, sT0, L_XN))
    A("v_mul_u32_u24 v25, %d, v18" % XS)
    A("v_lshl_add_u32 v25, v16, 4, v25")
    A("v_add_u32 v%d, s%d, v25" % (vXNR, sT0))
    A("v_mov_b32 v%d, %s" % (vZ, hx(f2u(1.0 / 512))))
    for r in range(4): A("v_mov_b32 v%d, 0x3f803f80" % (ONES + r))
    A("s_and_b32 s%d, s%d, 1" % (sT1, sC))
    A("s_lshr_b32 s%d, s%d, 1" % (sT2, sC))
    soff(sQS, [(sT1, 11), (sW, 9), (sA, 6), (sT2, 4)], 0)
    A("v_bfe_u32 v24, v%d, 2, 2" % vLANE)
    A("v_lshl_add_u32 v24, v16, 3, v24")
    A("v_lshlrev_b32 v24, 7, v24")
    A("v_bfe_u32 v25, v%d, 3, 2" % vLANE)
    A("v_lshlrev_b32 v25, 1, v25")
    A("v_bfe_u32 v26, v%d, 1, 1" % vLANE)
    A("v_xor_b32 v25, v25, v26")
    A("v_lshl_add_u32 v24, v25, 4, v24")
    A("v_and_b32 v26, 1, v%d" % vLANE)
    A("v_lshl_add_u32 v%d, v26, 3, v24" % vWT)
    A("s_mov_b32 s%d, 0x000f000f" % sMSK)
    A("s_mov_b32 s%d, 0x000f000f" % (sMSK + 1))
    A("s_mov_b32 s%d, 0" % sLAY)

def wtile_voff(shift, d):
    A("v_lshrrev_b32 v24, 3, v%d" % vLANE)
    A("v_and_b32 v25, 7, v%d" % vLANE)
    A("v_and_b32 v26, 1, v16")
    A("v_lshlrev_b32 v26, 1, v26")
    A("v_xor_b32 v25, v25, v26")
    A("v_lshlrev_b32 v25, 4, v25")
    A("v_lshl_add_u32 v%d, v24, %d, v25" % (d, shift))
    A("v_xor_b32 v%d, 64, v%d" % (d + 1, d))

def wqf_reads():
    A("s_lshl_b32 s%d, s%d, 5" % (sT1, sW))
    A("v_xor_b32 v26, s%d, v%d" % (sT1, vWT))
    for t in range(4):
        for hf in range(2):
            A("ds_read_b64_tr_b16 %s, v26 offset:%d" % (vr(WQF + 4 * t + 2 * hf, 2), L_WQ + 4096 * t + 512 * hf))

def dma(vaddr, srdn, so, lds_s, step_so, flags="nt"):
    A("s_mov_b32 m0, s%d" % lds_s)
    A("s_add_u32 s%d, s%d, 1024" % (lds_s, lds_s))
    A("buffer_load_dwordx4 v%d, %s, s%d offen %s lds" % (vaddr, sr(srdn, 4), so, flags))
    A("s_add_u32 s%d, s%d, %d" % (so, so, step_so))

hdr = open("cdna_kernels/%s.s.ref" % NAME).read().split("; Override launch")[0]
L.append(hdr.rstrip("\n"))
L.append("; @launch grid=(256,1,1) block=(512,1,1) lds=%d" % LDS_SZ)
L.append('.amdgcn_target "amdgcn-amd-amdhsa--gfx950"')
L.append(".text\n" + (".p2align 12\n" if int(OPT.get("al", 0)) else "") + ".globl %s_kernel\n.p2align 8\n.type %s_kernel,@function\n%s_kernel:" % (NAME, NAME, NAME))
if DIAG: A("s_memrealtime s[42:43]")
if DBL or TOT: A("s_memrealtime s[98:99]")
sM = 96
A("s_lshr_b32 s%d, s2, 8" % sT0)
A("s_cbranch_scc1 Lend")
A("s_load_dwordx2 %s, s[0:1], 24" % sr(sWQ, 2))
A("s_load_dwordx4 %s, s[0:1], 0" % sr(sT2, 4))
A("v_readfirstlane_b32 s%d, v0" % sW)
C("every wave pulls one line of this kernel's code into L2 (plain read): 32 workgroups x 4 lines")
A("s_getpc_b64 s[10:11]")
LB("Lpc0")
A("s_lshr_b32 s%d, s2, 3" % sM)
A("s_lshl_b32 s%d, s%d, 9" % (sCNT, sM))
A("s_cmp_lg_u32 s%d, 0" % sW)
A("s_cbranch_scc1 Lnopf")
A("v_and_b32 v19, 3, v0")
A("v_lshl_add_u32 v19, v19, 7, s%d" % sCNT)
A("global_load_dword v%d, v19, s[10:11]" % (W + 8))
LB("Lnopf")
A("s_and_b32 s%d, s2, 7" % sJ)
A("s_lshr_b32 s%d, s2, 6" % sA)
A("s_and_b32 s%d, s%d, 7" % (sC, sM))
A("s_lshl_b32 s%d, 1, 17" % (sWQ + 3))
A("s_bitcmp1_b32 s%d, 8" % sW)
A("s_cbranch_scc0 Lmain0")
vKA, vVA = W + 40, W + 44
sRO, sRM = sVO, 97 if not TOT else 94
if TOT: sRM = sOL
def kv_issue(i):
    A("s_add_u32 m0, s%d, s%d" % (sKL if i < 8 else sVL, sRO))
    A("s_add_u32 s%d, s%d, s%d" % (sCNT, sKO, sRO))
    if i < 8: A("buffer_load_dwordx4 v%d, %s, s%d offen nt lds" % (vKA + (i & 3), sr(sK, 4), sCNT))
    else: A("buffer_load_dwordx4 v%d, %s, s%d offen nt lds" % (vVA + (i & 1), sr(sV, 4), sCNT))
    A("s_addk_i32 s%d, %d" % (sRO, 1024 + (VROT * 1024 if i == 7 else 0)))
    A("s_and_b32 s%d, s%d, 0x1fff" % (sRO, sRO))
def lane_init():
    A("v_and_b32 v%d, 63, v0" % vLANE)
    A("v_mov_b32 v%d, %d" % (vFL, L_FLG))
    A("v_lshlrev_b32 v%d, 4, v%d" % (vL16, vLANE))
    A("v_lshrrev_b32 v16, 4, v%d" % vLANE)
    A("v_and_b32 v17, 15, v%d" % vLANE)
    A("v_mov_b32 v20, 0")
    if DIAG: A("v_mov_b32 v30, 0")
def main_early():
    LB("Lmain0")
    for s, off in [(sW1, 48), (sB1, 56), (sW2, 64)]:
        A("s_load_dwordx2 %s, s[0:1], %d" % (sr(s, 2), off))
    lane_init()
    A("v_mov_b32 v21, 0")
    for k in range(4): A("ds_write_b64 v%d, v[20:21] offset:%d" % (vFL, 8 * k))
    A("s_lshl_b32 s%d, 1, 25" % (sK + 2)); A("s_mov_b32 s%d, s%d" % (sK + 3, sWQ + 3))
    A("v_xor_b32 v18, v17, v16")
    A("v_lshlrev_b32 v18, 4, v18")
    A("v_lshl_add_u32 v%d, v16, 8, v18" % vKA)
    A("s_lshl_b32 s%d, s%d, %d" % (sRO, sC, 10 if ROT else 31))
    if not ROT: A("s_mov_b32 s%d, 0" % sRO)
    A("s_bfe_u32 s%d, s%d, 0x2000a" % (sT1, sRO))
    A("s_lshl_b32 s%d, s%d, 6" % (sT1, sT1))
    for k in range(1, 4):
        A("s_add_u32 s%d, s%d, %d" % (sCNT, sT1, 64 * k))
        A("s_and_b32 s%d, s%d, 0xc0" % (sCNT, sCNT))
        A("v_xor_b32 v%d, s%d, v%d" % (vKA + k, sCNT, vKA))
    A("v_xor_b32 v%d, s%d, v%d" % (vKA, sT1, vKA))
    soff(sKO, [(sA, 23), (sJ, 20), (sC, 15), (sW, 7)], 3072 * 256)
    A("s_add_u32 s%d, s%d, %d" % (sKL, sT0, L_K))
    A("s_waitcnt lgkmcnt(0)")
    A("s_mov_b64 %s, %s" % (sr(sK, 2), sr(sT4, 2)))
    for i in range(D0): kv_issue(i)
    C("lane k<3 of wave 3 pulls a slice of coefficient array k into L2")
    A("s_cmp_lg_u32 s%d, 192" % sW)
    A("s_cbranch_scc1 Lm_nopf")
    A("s_min_u32 s%d, s%d, 27" % (sT1, sM))
    A("s_lshl_b32 s%d, s%d, 7" % (sT1, sT1))
    A("v_mov_b32 v19, s%d" % sT1)
    A("s_mov_b64 exec, 1")
    for k, sd in enumerate([sW1, sB1, sW2]): A("global_load_dword v%d, v19, %s" % (W + 9 + k, sr(sd, 2)))
    A("s_mov_b64 exec, -1")
    LB("Lm_nopf")
    A("s_add_u32 s%d, s%d, %d" % (sVL, sT0, L_V))
    A("s_lshr_b32 s%d, s%d, 6" % (sW, sW))
    if DIAG: A("v_writelane_b32 v30, s42, 0")
    STAMP(10)
    A("s_branch Lmain")

C("---- helper waves: first q projection, then the table of g over bf16 inputs ----")
HW1, HB1, HW2 = 32, 60, 112
hK0, hK1, hONE, hRES = 88, 90, 92, 94
AC = [140, 142]
A("s_load_dwordx2 %s, s[0:1], 96" % sr(sWS, 2))
C("wq tile DMA: instruction i, thread t' = t-256: row 32 i + (t'>>3), 16-byte chunk (t'&7) ^ swizzle")
A("v_bfe_u32 v23, v0, 3, 5")
A("v_and_b32 v22, 7, v0")
A("v_and_b32 v24, 2, v23")
A("v_lshrrev_b32 v25, 1, v23")
A("v_and_or_b32 v24, v25, 4, v24")
A("v_xor_b32 v22, v22, v24")
A("v_lshlrev_b32 v22, 4, v22")
A("v_lshl_add_u32 v22, v23, 13, v22")
soff(sQL, [(sA, 20), (sJ, 10), (sC, 7)], 0)
A("s_lshl_b32 s%d, 1, 22" % (sWQ + 2))
A("s_lshl_b32 s%d, 1, 18" % sT1)
A("s_lshl_b32 s%d, s%d, 4" % (sQS, sW))
A("s_add_u32 m0, s%d, %d" % (sQS, L_WQ - 4096))
A("v_lshlrev_b32 v21, 4, v0")
if DIAG: A("s_memrealtime s[88:89]")
A("s_waitcnt lgkmcnt(0)")
if DIAG: A("s_memrealtime s[90:91]")
A("global_load_dwordx4 %s, v21, %s offset:-4096" % (vr(XR, 4), sr(sT2, 2)))
for i in range(4):
    if i:
        A("s_addk_i32 m0, 0x1000")
        A("s_add_u32 s%d, s%d, s%d" % (sQL, sQL, sT1))
    A("buffer_load_dwordx4 v22, %s, s%d offen nt lds" % (sr(sWQ, 4), sQL))
if DIAG: A("s_memrealtime s[92:93]")
lane_init()
A("s_bfe_u32 s%d, s%d, 0x20006" % (sW, sW))
A("s_lshl_b32 s%d, s%d, 10" % (sT3, sW))
srd(sWS, WS_SZ)
C("early sentinels (O0, LSE0): hw0 1024 B, the others 16 B")
for i in range(4): A("v_mov_b32 v%d, -1" % (PM + i))
A("s_mul_i32 s%d, s%d, %d" % (sT5, sM, CLRA_PER))
A("s_lshl_b32 s%d, s%d, 17" % (sGR, sJ))
A("s_add_u32 s%d, s%d, s%d" % (sT5, sT5, sGR))
A("s_add_u32 s%d, s%d, 1024" % (sT4, sT5))
A("s_cmp_ge_u32 s%d, 2" % sW)
A("s_cbranch_scc1 Lhc_skip")
A("s_cmp_eq_u32 s%d, 0" % sW)
A("s_cselect_b32 s%d, s%d, s%d" % (sT5, sT5, sT4))
A("s_cselect_b64 exec, -1, 1")
A("buffer_store_dwordx4 %s, v%d, %s, s%d offen sc1" % (vr(PM, 4), vL16, sr(sWS, 4), sT5))
LB("Lhc_skip")
A("s_mov_b64 exec, -1")
A("s_branch Lhelp2")
main_early()
LB("Lhelp2")
if QT:
    C("touch 2 lines of the tagged q mailbox per wave so that they sit in L2 before they are written")
    soff(sT4, [(sM, 10), (sW, 8), (sJ, 17)], Q0_OFF)
    A("v_lshlrev_b32 v24, 7, v%d" % vLANE)
    A("s_mov_b64 exec, 3")
    A("buffer_load_dword v%d, v24, %s, s%d offen" % (RES + 1, sr(sWS, 4), sT4))
A("s_mov_b64 exec, -1")
if HP: A("s_setprio 3")
A("s_load_dword s%d, %s, %s" % (sE, sr(sWS, 2), hx(EPO)))
A("s_load_dwordx2 %s, s[0:1], 72" % sr(sB2P, 2))
if DIAG:
    A("v_writelane_b32 v30, s42, 0")
    A("s_waitcnt lgkmcnt(0)")
    A("v_mov_b32 v31, 0")
    A("v_writelane_b32 v31, s88, 0"); A("v_writelane_b32 v31, s90, 1"); A("v_writelane_b32 v31, s92, 2")
STAMP(9)
A("s_barrier")
A("s_lshl_b32 s%d, s2, 2" % sHC)
A("s_add_u32 s%d, s%d, s%d" % (sHC, sHC, sW))
A("s_mul_i32 s%d, s%d, %d" % (sHC, sHC, EPW))
A("s_lshl_b32 s%d, s%d, 3" % (sHT, sHC))
A("s_add_u32 s%d, s%d, %s" % (sHT, sHT, hx(TB)))
A("s_add_u32 s%d, s%d, %d" % (sHC, sHC, ELO * 128))
A("s_lshl_b32 s%d, s%d, 16" % (sHC, sHC))
A("v_lshlrev_b32 v27, 2, v%d" % vLANE)
common_addr()
A("s_lshl_b32 s%d, s%d, 1" % (sQS, sQS))
A("s_add_u32 s%d, s%d, s%d" % (sQS, sQS, sGR))
A("s_add_u32 s%d, s%d, %s" % (sQS, sQS, hx(Q0_OFF)))
A("v_lshlrev_b32 v%d, 1, v%d" % (vQST, vQST))
A("s_getreg_b32 s%d, hwreg(HW_REG_XCC_ID, 0, 3)" % sXCC)
for r, c in [(hK0, K0), (hK1, K1), (hONE, 1.0)]:
    A("v_mov_b32 v%d, %s" % (r, hx(f2u(c)))); A("v_mov_b32 v%d, %s" % (r + 1, hx(f2u(c))))
A("v_mov_b32 v%d, 0" % hRES)
A("s_mov_b32 s%d, 0" % sIT)
if DRY:
    C("dry run of the q-projection code while its inputs are in flight (instruction cache warm-up; no side effects)")
    A("s_mov_b32 s%d, 1" % sIT)
    A("s_branch Llnq")
    LB("Ldry_done")
    A("s_mov_b64 exec, -1")
    A("s_mov_b32 s%d, 0" % sIT)
if WARM:
    C("warm the instruction cache lines at the far jump targets of the main waves")
    for k, nm in enumerate(["k", "fin", "out", "tab"]):
        A("s_cmp_lg_u32 s%d, %d" % (sW, k))
        A("s_cbranch_scc1 Lwm%d" % k)
        A("s_call_b64 %s, Lst_%s" % (sr(sRET, 2), nm))
        LB("Lwm%d" % k)
A("s_cmp_ge_u32 s%d, 2" % sW)
A("s_cbranch_scc0 Lhx5")
A("s_waitcnt vmcnt(%d)" % (4 + QT))
LB("Lhx5")
A("s_waitcnt vmcnt(%d)" % (5 + QT))
STAMP(1)
A("s_branch Llnq")
LB("Lq_first")
if DRY:
    A("s_cmp_lg_u32 s%d, 0" % sIT)
    A("s_cbranch_scc1 Lq_dry")
A("s_waitcnt vmcnt(0) lgkmcnt(0)")
STAMP(2)
lds_arrive(0, vT + 4)
tags()
A("s_or_b32 s%d, s%d, s%d" % (sXCC, sXCC, sTG2))
C("4 helper arrivals (wq tile, xn rows) + 4 main arrivals (coefficients landed, sentinels acknowledged)")
lds_spin(0, 4, vT + 4)
STAMP(6)
LB("Lq_dry")
wqf_reads()
A("s_waitcnt lgkmcnt(0)")
A("s_branch Lq_go")
LB("Lh_qst")
if DRY:
    A("s_cmp_lg_u32 s%d, 0" % sIT)
    A("s_cbranch_scc1 Ldry_done")
STAMP(5)
A("v_mov_b32 v%d, s%d" % (W + 6, sTG1))
A("v_mov_b32 v%d, s%d" % (W + 7, sXCC))
A("buffer_store_dwordx4 %s, v%d, %s, s%d offen%s" % (vr(W + 4, 4), vQST, sr(sWS, 4), sQS, "" if int(OPT.get("fast", 1)) else " sc1"))
A("s_add_u32 s%d, s%d, %s" % (sQS, sQS, hx(QB_DELTA)))
A("buffer_store_dwordx4 %s, v%d, %s, s%d offen sc1" % (vr(W + 4, 4), vQST, sr(sWS, 4), sQS))
A("s_mov_b64 exec, -1")
HR = W + 8
if ADP: lds_arrive(28, 24)
if HP: A("s_setprio 0")
STAMP(3)
A("v_lshlrev_b32 v26, 3, v%d" % vLANE)
lds_spin(24, 4, 24, sleep=1)
for a_ in range(3):
    for k in range(3):
        A("ds_read_b128 %s, v%d offset:%d" % (vr(HR + 14 * a_ + 4 * k, 4), vL16, 4096 * a_ + 1024 * k))
    A("ds_read_b64 %s, v26 offset:%d" % (vr(HR + 14 * a_ + 12, 2), 4096 * a_ + 3072))
for a_, d in [(0, HW1), (14, HB1), (28, HW2)]:
    A("s_waitcnt lgkmcnt(%d)" % (8 - 4 * (a_ // 14)))
    for p in range(14):
        A("v_lshlrev_b32 v%d, 16, v%d" % (d + 2 * p, HR + a_ + p))
        A("v_and_b32 v%d, 0xffff0000, v%d" % (d + 2 * p + 1, HR + a_ + p))
A("s_load_dword s%d, %s, 0" % (sB2, sr(sB2P, 2)))
STAMP(4)
if DIAG:
    A("s_memtime s[42:43]"); A("s_waitcnt lgkmcnt(0)"); A("v_writelane_b32 v30, s42, 13")
LB("Lhl")
if DIAG:
    A("s_memrealtime s[42:43]"); A("s_add_u32 m0, s%d, 10" % sIT); A("s_waitcnt lgkmcnt(0)"); A("v_writelane_b32 v30, s42, m0")
A("s_mov_b32 s%d, s%d" % (sH, sHC)); A("s_mov_b32 s%d, s%d" % (sH + 1, sHC))
A("s_xor_b32 s%d, s%d, 0x80000000" % (sH2, sHC)); A("s_mov_b32 s%d, s%d" % (sH2 + 1, sH2))
U4 = [144, 146, 148, 150]; T4 = [152, 154, 156, 158]; Z4 = [160, 162, 164, 166]
for p2 in range(7):
    ch = [(2 * p2 + k // 2, k & 1) for k in range(4)]
    for k, (p, sg) in enumerate(ch):
        A("v_pk_fma_f32 %s, %s, %s, %s" % (vr(U4[k], 2), vr(HW1 + 2 * p, 2), sr([sH, sH2][sg], 2), vr(HB1 + 2 * p, 2)))
    for k in range(4): A("v_pk_mul_f32 %s, %s, %s" % (vr(T4[k], 2), vr(U4[k], 2), vr(U4[k], 2)))
    for k in range(4): A("v_pk_fma_f32 %s, %s, %s, %s" % (vr(T4[k], 2), vr(T4[k], 2), vr(hK1, 2), vr(hK0, 2)))
    for k in range(4): A("v_pk_mul_f32 %s, %s, %s" % (vr(T4[k], 2), vr(T4[k], 2), vr(U4[k], 2)))
    for k in range(4):
        for h in range(2): A("v_exp_f32 v%d, v%d" % (T4[k] + h, T4[k] + h))
    for k, (p, sg) in enumerate(ch): A("v_pk_mul_f32 %s, %s, %s" % (vr(Z4[k], 2), vr(U4[k], 2), vr(HW2 + 2 * p, 2)))
    for k in range(4): A("v_pk_add_f32 %s, %s, %s" % (vr(T4[k], 2), vr(T4[k], 2), vr(hONE, 2)))
    for k in range(4):
        for h in range(2): A("v_rcp_f32 v%d, v%d" % (T4[k] + h, T4[k] + h))
    for k, (p, sg) in enumerate(ch):
        if p == 0: A("v_pk_mul_f32 %s, %s, %s" % (vr(AC[sg], 2), vr(Z4[k], 2), vr(T4[k], 2)))
        else: A("v_pk_fma_f32 %s, %s, %s, %s" % (vr(AC[sg], 2), vr(Z4[k], 2), vr(T4[k], 2), vr(AC[sg], 2)))
A("v_add_f32 v%d, v%d, v%d" % (AC[0], AC[0], AC[0] + 1))
A("v_add_f32 v%d, v%d, v%d" % (AC[1], AC[1], AC[1] + 1))
A("s_lshl_b32 m0, s%d, 1" % sIT)
A("s_add_u32 s%d, s%d, 0x10000" % (sHC, sHC))
wave_sum2(AC[0], AC[1], sSUM, sSQ)
A("s_add_u32 s%d, s%d, 1" % (sIT, sIT))
A("s_nop 0")
A("v_writelane_b32 v%d, s%d, m0" % (hRES, sSUM))
A("s_add_u32 m0, m0, 1")
A("s_cmp_lg_u32 s%d, %d" % (sIT, EPW))
A("v_writelane_b32 v%d, s%d, m0" % (hRES, sSQ))
A("s_cbranch_scc1 Lhl")
if DIAG:
    A("s_memtime s[42:43]"); A("s_waitcnt lgkmcnt(0)"); A("v_writelane_b32 v30, s42, 14")
    STAMP(15)
A("s_waitcnt lgkmcnt(0)")
A("s_lshl_b32 s%d, s%d, 16" % (sB2, sB2))
A("v_cvt_pk_bf16_f32 v%d, v%d, v%d" % (hRES, hRES, hRES))
A("v_and_b32 v%d, 0xffff0000, v%d" % (hRES, hRES))
A("v_add_f32 v%d, s%d, v%d" % (hRES, sB2, hRES))
A("v_cvt_pk_bf16_f32 v%d, v%d, v%d" % (hRES, hRES, hRES))
A("v_and_b32 v%d, 0xffff0000, v%d" % (hRES, hRES))
lds_spin(8, 4, 24)
A("s_bfm_b64 exec, %d, 0" % (2 * EPW))
A("buffer_store_dword v%d, v27, %s, s%d offen sc1" % (hRES, sr(sWS, 4), sHT))
A("s_mov_b64 exec, -1")
STAMP(7)
if DIAG:
    A("s_add_u32 s%d, s%d, 4" % (sW, sW))
    A("v_mov_b32 v28, v30")
    A("s_branch Lfin_exit")
A("s_endpgm")

LB("Lmain")
for s, off in [(sWS, 96), (sV, 16), (sWO, 32), (sOUT, 80), (sX, 0), (sB2P, 72)]:
    A("s_load_dwordx2 %s, s[0:1], %d" % (sr(s, 2), off))
if DIAG == 2: A("s_load_dwordx2 s[100:101], s[0:1], 88")
srd(sWS, WS_SZ)
for s in [sW1, sB1, sW2]: srd(s, 3584)
A("s_lshl_b32 s%d, s%d, 10" % (sT3, sW))
A("s_barrier")
for i in range(D0, DC): kv_issue(i)
A("s_mov_b32 m0, s%d" % sT3)
for i, sd in enumerate([sW1, sB1, sW2]):
    if i: A("s_addk_i32 m0, 0x1000")
    A("s_nop 0")
    A("buffer_load_dwordx4 v%d, %s, s%d offen lds" % (vL16, sr(sd, 4), sT3))
for i in range(DC, D1): kv_issue(i)
for i in range(4): A("v_mov_b32 v%d, -1" % (W + i))
A("s_lshl_b32 s%d, s%d, 17" % (sGR, sJ))
A("s_mov_b32 s%d, s%d" % (sT1, sM))
A("s_waitcnt lgkmcnt(0)")
A("s_load_dword s%d, %s, %s" % (sE, sr(sWS, 2), hx(EPO)))
STAMP(11)
for s, n in [(sV, 1 << 25), (sX, 4096), (sWO, 1 << 22), (sOUT, 4096)]: srd(s, n)
A("v_lshlrev_b32 v18, 1, v16")
A("v_xor_b32 v18, v17, v18")
A("v_lshlrev_b32 v18, 4, v18")
A("v_lshl_add_u32 v%d, v16, 8, v18" % vVA)
if ROT:
    A("s_and_b32 s%d, s%d, 1" % (sT0, sC))
    A("s_lshl_b32 s%d, s%d, 7" % (sT0, sT0))
    A("v_xor_b32 v%d, s%d, v%d" % (vVA, sT0, vVA))
A("v_xor_b32 v%d, 128, v%d" % (vVA + 1, vVA))
C("late sentinels: wave 0,1: group region ; wave 2: P chunk")
A("s_lshr_b32 s%d, s2, 3" % sT1)
A("s_mul_i32 s%d, s%d, %d" % (sT1, sT1, CLRB_PER))
A("s_lshl_b32 s%d, s%d, 10" % (sT0, sW))
A("s_add_u32 s%d, s%d, s%d" % (sT1, sT1, sT0))
A("s_add_u32 s%d, s%d, s%d" % (sT1, sT1, sGR))
A("s_add_u32 s%d, s%d, %d" % (sT1, sT1, CLRB_OFF))
A("s_lshl_b32 s%d, s2, 10" % sT0)
A("s_add_u32 s%d, s%d, %s" % (sT0, sT0, hx(PB)))
A("s_cmp_ge_u32 s%d, 2" % sW)
A("s_cselect_b32 s%d, s%d, s%d" % (sT1, sT0, sT1))
A("s_bfm_b64 %s, %d, 0" % (sr(sH, 2), (CLRB_PER - 1024) // 16))
A("s_cmp_eq_u32 s%d, 1" % sW)
A("s_cselect_b64 %s, %s, -1" % (sr(sH, 2), sr(sH, 2)))
A("s_mul_i32 s%d, s2, %d" % (sT0, NENT * 4 // 256))
A("s_add_u32 s%d, s%d, %s" % (sT0, sT0, hx(TB)))
A("s_cmp_eq_u32 s%d, 3" % sW)
A("s_cselect_b32 s%d, s%d, s%d" % (sT1, sT0, sT1))
A("s_cselect_b64 exec, %d, %s" % ((1 << (NENT * 4 // 256 // 16)) - 1, sr(sH, 2)))
A("buffer_store_dwordx4 %s, v%d, %s, s%d offen sc1" % (vr(W, 4), vL16, sr(sWS, 4), sT1))
A("s_mov_b64 exec, -1")

common_addr()
A("s_add_u32 s%d, s%d, s%d" % (sQS, sQS, sGR))
A("s_add_u32 s%d, s%d, %d" % (sQS, sQS, Q1_OFF))
wtile_voff(10, 22)
A("v_and_b32 v19, 7, v%d" % vLANE)
A("v_lshrrev_b32 v25, 2, v%d" % vLANE)
A("v_lshlrev_b32 v25, 7, v25")
A("v_lshl_add_u32 v%d, v18, 2, v25" % vOST)
A("v_lshlrev_b32 v25, 7, v16")
A("v_lshl_add_u32 v%d, v19, 4, v25" % vOLD)
C("lanes n>=8 of the first two o loads fetch the lse values instead: offset relative to the o block")
A("s_mul_i32 s%d, s%d, %d" % (sT0, sA, 128 - 8192))
A("s_mul_i32 s%d, s%d, %d" % (sT1, sW, 32 - 2048))
A("s_add_u32 s%d, s%d, s%d" % (sT0, sT0, sT1))
A("s_add_u32 s%d, s%d, %d" % (sT0, sT0, LSE_OFF[0] - O_OFF[0]))
A("v_add_u32 v25, s%d, v%d" % (sT0, vLSE))
A("v_xor_b32 v26, 16, v25")
A("v_add_u32 v26, -512, v26")
A("v_cmp_gt_u32 vcc, 8, v17")
A("s_nop 1")
A("v_cndmask_b32 v%d, v25, v%d, vcc" % (vLSE, vOLD))
A("v_cndmask_b32 v%d, v26, v%d, vcc" % (vLS2, vOLD))
A("v_lshlrev_b32 v%d, 1, v%d" % (vPST, vLANE))
A("v_lshlrev_b32 v25, 3, v16")
A("v_lshl_add_u32 v%d, v19, 4, v25" % vX1S)
A("s_mul_i32 s%d, s%d, %d" % (sT0, sW, RBS))
A("s_add_u32 s%d, s%d, %d" % (sT0, sT0, L_RB))
A("v_mul_u32_u24 v25, 528, v18")
A("v_lshl_add_u32 v25, v16, 4, v25")
A("v_lshrrev_b32 v26, 2, v17")
A("v_lshl_add_u32 v25, v26, 7, v25")
A("v_add_u32 v%d, s%d, v25" % (vRBW, sT0))
A("s_mul_i32 s%d, s%d, 528" % (sT0, sW))
A("s_add_u32 s%d, s%d, %d" % (sT0, sT0, L_RB))
A("v_lshlrev_b32 v25, 3, v%d" % vLANE)
A("v_add_u32 v%d, s%d, v25" % (vRBR, sT0))
A("s_lshl_b32 s%d, s%d, 3" % (sT0, sW))
A("s_add_u32 s%d, s%d, %d" % (sT0, sT0, L_ML))
A("v_lshlrev_b32 v25, 5, v18")
A("v_add_u32 v%d, s%d, v25" % (vMLW, sT0))
A("s_lshl_b32 s%d, s%d, 5" % (sT0, sW))
A("s_add_u32 s%d, s%d, %d" % (sT0, sT0, L_ML))
A("v_mov_b32 v%d, s%d" % (vMLR, sT0))
A("v_mov_b32 v25, 0x3f80")
A("v_mov_b32 v26, 0x3f800000")
for r in range(4):
    A("v_cmp_eq_u32 vcc, %d, v17" % (2 * r))
    A("v_cmp_eq_u32 %s, %d, v17" % (sr(sH, 2), 2 * r + 1))
    A("s_nop 0")
    A("v_cndmask_b32 v%d, 0, v25, vcc" % (SEL + r))
    A("v_cndmask_b32 v%d, v%d, v26, %s" % (SEL + r, SEL + r, sr(sH, 2)))
for i in range(16): A("v_mov_b32 v%d, 0" % (PM + i))
for p in range(4):
    A("s_mov_b32 s%d, %s" % (sPM + 2 * p, hx(0x000f000f << (4 * p))))
    A("s_mov_b32 s%d, %s" % (sPM + 2 * p + 1, hx(0x000f000f << (4 * p))))
soff(sOS, [(sW, 13), (sA, 11), (sC, 4), (sJ, 17)], O_OFF[0])
soff(sOL, [(sA, 13), (sW, 11), (sJ, 17)], O_OFF[0])
A("s_add_u32 s%d, s%d, %s" % (sQL, sOL, hx(Q0_OFF - O_OFF[0])))
soff(sLS, [(sW, 7), (sA, 5), (sC, 2), (sJ, 17)], LSE_OFF[0])
soff(sPS, [(sW, 15), (sC, 12), (sJ, 9), (sA, 7)], PB)
A("s_mov_b32 s%d, %s" % (sSC, hx(f2u(128 ** -0.5 * math.log2(math.e)))))
A("s_getreg_b32 s%d, hwreg(HW_REG_XCC_ID, 0, 3)" % sXCC)
A("v_xor_b32 v24, v16, v17")
A("v_lshlrev_b32 v24, 4, v24")
A("v_lshl_add_u32 v24, v17, 8, v24")
A("s_lshl_b32 s%d, s%d, 13" % (sT1, sW))
A("s_add_u32 s%d, s%d, %d" % (sT2, sT1, L_K))
for t in range(4): A("v_xor_b32 v%d, %d, v24" % (18 + t, 64 * t))
for t in range(4): A("v_add_u32 v%d, s%d, v%d" % (18 + t, sT2, 18 + t))
VA = W + 32
A("v_lshrrev_b32 v24, 2, v%d" % vLANE)
A("v_and_b32 v25, 7, v24")
A("v_lshlrev_b32 v25, 1, v25")
A("v_bfe_u32 v26, v%d, 1, 1" % vLANE)
A("v_xor_b32 v25, v25, v26")
A("v_lshlrev_b32 v25, 4, v25")
A("v_lshl_add_u32 v25, v24, 8, v25")
A("v_and_b32 v26, 1, v%d" % vLANE)
A("v_lshl_add_u32 v25, v26, 3, v25")
A("s_add_u32 s%d, s%d, %d" % (sT2, sT1, L_V))
for t in range(8): A("v_xor_b32 v%d, %d, v25" % (VA + t, 32 * t))
for t in range(8): A("v_add_u32 v%d, s%d, v%d" % (VA + t, sT2, VA + t))
soff(sT4, [(sJ, 19), (sA, 17), (sW, 15), (sC, 7)], 0)
A("s_lshl_b32 s%d, s%d, 12" % (sT5, sW))
A("s_add_u32 s%d, s%d, %d" % (sT5, sT5, L_WO))
soff(sT3, [(sA, 10), (sC, 7)], 0)
A("v_lshlrev_b32 v24, 5, v%d" % vLANE)
A("s_lshl_b32 s%d, s%d, 10" % (sT2, sW))
A("s_add_u32 s%d, s%d, %d" % (sT2, sT2, L_QF))
A("v_add_u32 v25, s%d, v%d" % (sT2, vL16))
A("v_add_u32 v26, %d, v%d" % (L_QF, vL16))
STAMP(12)
if DIAG: A("v_mov_b32 v31, v30")
QP = W
def q0_issue(QP=QP):
    A("buffer_load_dwordx4 %s, v24, %s, s%d offen sc1" % (vr(QP, 4), sr(sWS, 4), sQL))
    A("buffer_load_dwordx4 %s, v24, %s, s%d offen offset:16 sc1" % (vr(QP + 4, 4), sr(sWS, 4), sQL))
def flag_block():
    if True:
        A("s_cmp_lg_u32 s%d, 0" % sW)
        A("s_cbranch_scc1 Lnoflag")
        C("every sentinel store of this workgroup is acknowledged: announce it")
        lds_spin(8, 4, vT)
        A("v_mov_b32 v16, s%d" % sTG1)
        A("v_mov_b32 v17, s%d" % sXCC)
        soff(sT1, [(2, 4)], FB)
        A("v_mov_b32 v21, 0")
        A("s_mov_b64 exec, 1")
        A("buffer_store_dwordx2 v[16:17], v21, %s, s%d offen sc1" % (sr(sWS, 4), sT1))
        A("s_mov_b64 exec, -1")
        LB("Lnoflag")
C("coefficients landed -> tell the helpers")
young = D1 - DC + 1
told = False
A("s_mov_b32 s%d, 0" % sY)
for i in range(D1, 16):
    dp = DEPTH if i < TAILI else TAILD
    extra = 1 if i == 16 - QV else 0
    if ADP and told:
        C("stay shallow until the helpers have issued their q stores")
        A("s_cmp_lg_u32 s%d, 0" % sY)
        A("s_cbranch_scc1 Ldp%d" % i)
        A("ds_read_b32 v%d, v%d offset:28" % (vT, vFL))
        A("s_waitcnt lgkmcnt(0)")
        A("v_readfirstlane_b32 s%d, v%d" % (sT1, vT))
        A("s_cmp_ge_u32 s%d, 4" % sT1)
        A("s_cselect_b32 s%d, 1, 0" % sY)
        A("s_cbranch_scc1 Ldp%d" % i)
        A("s_waitcnt vmcnt(%d)" % (dp - 1 - 2 * extra))
        LB("Ldp%d" % i)
        A("s_waitcnt vmcnt(%d)" % (ADP - 1 - 2 * extra))
        if extra: q0_issue(); young += 2
    else:
        if extra:
            A("s_waitcnt vmcnt(%d)" % (dp - 2)); q0_issue(); young += 2
        A("s_waitcnt vmcnt(%d)" % (dp - 1))
    if not told and young >= dp - 1:
        lds_arrive(24, vT); told = True
    kv_issue(i); young += 1
assert told
q0_issue(QP + 8)
C("everything older than the V loads is complete: K, late sentinels")
A("s_waitcnt vmcnt(12)")
lds_arrive(8, vT)
A("s_waitcnt lgkmcnt(0)")
tags()
A("s_or_b32 s%d, s%d, s%d" % (sXCC, sXCC, sTG2))
STAMP(1)
for t in range(4):
    for T in range(2):
        A("ds_read_b128 %s, v%d offset:%d" % (vr(KF + 16 * T + 4 * t, 4), 18 + t, 4096 * T))
flag_block()
def wait_w0(n):
    uid[0] += 1
    A("s_cmp_eq_u32 s%d, 0" % sW)
    A("s_cbranch_scc1 Lww%d" % uid[0])
    A("s_waitcnt vmcnt(%d)" % n)
    LB("Lww%d" % uid[0])
    A("s_waitcnt vmcnt(%d)" % (n + 1))
wait_w0(QV + 2)
STAMP(2)
A("s_setprio 2")
A("s_mov_b32 s%d, %s" % (sCNT, hx(SPIN)))
A("s_mov_b32 s%d, 0" % sY)
LB("Lmq")
A("v_and_b32 v16, -8, v%d" % (QP + 3))
A("v_and_b32 v17, -8, v%d" % (QP + 7))
A("v_cmp_ne_u32 vcc, s%d, v%d" % (sTG1, QP + 2))
A("v_cmp_ne_u32 %s, s%d, v%d" % (sr(sRET, 2), sTG1, QP + 6))
A("s_or_b64 vcc, vcc, %s" % sr(sRET, 2))
A("v_cmp_ne_u32 %s, s%d, v16" % (sr(sRET, 2), sTG2))
A("s_or_b64 vcc, vcc, %s" % sr(sRET, 2))
A("v_cmp_ne_u32 %s, s%d, v17" % (sr(sRET, 2), sTG2))
A("s_or_b64 vcc, vcc, %s" % sr(sRET, 2))
if not int(OPT.get("nochk", 0)): A("s_cbranch_vccnz Lmqr")
LB("Lmqd")
if DIAG:
    A("s_sub_u32 s%d, s%d, s%d" % (sT0, sCNT, sY)); A("v_writelane_b32 v31, s%d, 0" % sT0)
Ls = L; L = []
LB("Lmqr")
A("s_cmp_lg_u32 s%d, 0" % sY)
A("s_cbranch_scc1 Lmqr2")
C("first look failed: take the second one (V has landed with it: request its fragments now)")
A("s_waitcnt vmcnt(0)")
A("s_mov_b32 s%d, 1" % sY)
for k in range(8): A("v_mov_b32 v%d, v%d" % (QP + k, QP + 8 + k))
for t in range(8):
    for hf in range(2):
        A("ds_read_b64_tr_b16 %s, v%d offset:%d" % (vr(VF + 4 * t + 2 * hf, 2), VA + t, 4096 * hf))
A("s_branch Lmq")
LB("Lmqr2")
C("still not there: poll the plain copy a few times, then the write-through copy")
A("s_cmp_eq_u32 s%d, %s" % (sCNT, hx(SPIN - 8)))
A("s_cselect_b32 s%d, %s, 0" % (sT0, hx(QB_DELTA)))
A("s_add_u32 s%d, s%d, s%d" % (sQL, sQL, sT0))
q0_issue()
A("s_waitcnt vmcnt(0)")
A("s_sub_u32 s%d, s%d, 1" % (sCNT, sCNT))
A("s_cbranch_scc0 Lmq")
A("s_branch Lmqd")
ool.append(L); L = Ls
A("v_cmp_ne_u32 vcc, s%d, v%d" % (sXCC, QP + 3))
A("v_mov_b32 v%d, v%d" % (QP + 2, QP + 4))
A("v_mov_b32 v%d, v%d" % (QP + 3, QP + 5))
A("ds_write_b128 v25, %s" % vr(QP, 4))
A("s_cmp_eq_u64 vcc, 0")
A("s_cselect_b32 s%d, 1, 0x101" % sT0)
A("v_mov_b32 v16, s%d" % sT0)
A("s_waitcnt lgkmcnt(0)")
lds_arrive(4, 16, None)
STAMP(15)
if WROT:
    A("s_and_b32 s%d, s%d, 3" % (sRO, sC))
    A("s_and_b32 s%d, s%d, 1" % (sT0, sC))
    A("s_lshl_b32 s%d, s%d, 6" % (sT0, sT0))
    A("v_xor_b32 v22, s%d, v22" % sT0); A("v_xor_b32 v23, s%d, v23" % sT0)
    for i in range(4):
        A("s_lshl_b32 s%d, s%d, 10" % (sT0, sRO))
        A("s_add_u32 m0, s%d, s%d" % (sT5, sT0))
        A("s_lshl_b32 s%d, s%d, 13" % (sT0, sRO))
        A("s_add_u32 s%d, s%d, s%d" % (sT0, sT0, sT4))
        A("buffer_load_dwordx4 v%d, %s, s%d offen nt lds" % (22 + (i & 1), sr(sWO, 4), sT0))
        A("s_add_u32 s%d, s%d, 1" % (sRO, sRO))
        A("s_and_b32 s%d, s%d, 3" % (sRO, sRO))
else:
    for i in range(4): dma(22 + (i & 1), sWO, sT4, sT5, 0x2000)
A("buffer_load_dwordx2 %s, v%d, %s, s%d offen" % (vr(RES + 2, 2), vX1S, sr(sX, 4), sT3))
FLG = W + 44
soff(sIT, [(sW, 10)], FB)
soff(sQL, [(sA, 12), (sJ, 17)], Q1_OFF)
lds_spin(4, 4, vT, mask=0xff)
A("s_cmp_lt_u32 s%d, 256" % sT1)
A("s_cselect_b32 s%d, %d, 0" % (sFAST, int(OPT.get("fast", 1))))
QF = W + 16
for t in range(4):
    A("ds_read_b128 %s, v26 offset:%d" % (vr(QF + 4 * t, 4), 1024 * t))
if PRET:
    C("bring the (cleared) group mailbox lines into L2")
    A("s_lshr_b32 s%d, s2, 3" % sT5)
    A("s_lshl_b32 s%d, s%d, 2" % (sT5, sT5))
    A("s_add_u32 s%d, s%d, s%d" % (sT5, sT5, sW))
    A("s_mul_i32 s%d, s%d, 768" % (sT5, sT5))
    A("s_add_u32 s%d, s%d, s%d" % (sT5, sT5, sGR))
    A("v_lshlrev_b32 v21, 7, v%d" % vLANE)
    A("s_mov_b64 exec, 63")
    A("buffer_load_dword v%d, v21, %s, s%d offen sc1" % (W + 40, sr(sWS, 4), sT5))
    A("s_mov_b64 exec, -1")
S = W
qk = []
for t in range(4):
    for T in range(2):
        qk.append(mf(S + 4 * T, KF + 16 * T + 4 * t, QF + 4 * t, None if t == 0 else S + 4 * T))
for t in range(4):
    A("s_waitcnt lgkmcnt(%d)" % (3 - t))
    A(qk[2 * t]); A(qk[2 * t + 1])
STAMP(3)
A("s_branch Lk_go")

LB("Llnq")
C("LayerNorm of the row held in XR, then q partial = xn @ wq tile")
X = W
row_stats(XR, vT, X)
A("v_add_f32 v%d, %s, v%d" % (vT + 1, EPS, vT + 1))
A("v_rsq_f32 v%d, v%d" % (vT + 2, vT + 1))
A("s_cmp_eq_u32 s%d, 0" % sLAY)
A("v_mul_f32 v%d, v%d, v%d" % (vT + 3, vT, vT + 2))
for i in range(4):
    A("v_pk_fma_f32 %s, %s, %s, %s op_sel:[0,0,1] op_sel_hi:[1,0,1] neg_lo:[0,0,1] neg_hi:[0,0,1]" % (vr(X + 2 * i, 2), vr(X + 2 * i, 2), vr(vT + 2, 2), vr(vT + 2, 2)))
for i in range(4):
    A("v_cvt_pk_bf16_f32 v%d, v%d, v%d" % (X + 8 + i, X + 2 * i, X + 2 * i + 1))
A("ds_write_b128 v%d, %s" % (vXNW, vr(X + 8, 4)))
A("s_cbranch_scc1 Lq_first")
A("s_waitcnt lgkmcnt(0)")
A("s_barrier")
LB("Lq_go")
BF = W + 16
for t in range(4):
    A("ds_read_b128 %s, v%d offset:%d" % (vr(BF + 4 * t, 4), vXNR, 64 * t))
for t in range(4):
    A("s_waitcnt lgkmcnt(%d)" % (3 - t))
    mfma(W, WQF + 4 * t, BF + 4 * t, None if t == 0 else W)
A("s_cmp_eq_u32 s%d, 0" % sLAY)
A("s_mov_b64 exec, %s" % sr(sMSK, 2))
NOP(6)
A("v_cvt_pk_bf16_f32 v%d, v%d, v%d" % (W + 4, W, W + 1))
A("v_cvt_pk_bf16_f32 v%d, v%d, v%d" % (W + 5, W + 2, W + 3))
A("s_cbranch_scc1 Lh_qst")
fastcmp()
store_local("buffer_store_dwordx2", vr(W + 4, 2), vQST, sQS)
A("s_mov_b64 exec, -1")
STAMP(2)

C("attention over this workgroup's 128 keys")
if QS:
    C("each wave fetches one k-step of q and shares it through LDS")
    A("s_lshl_b32 s%d, s%d, 10" % (sT3, sW))
    A("s_add_u32 s%d, s%d, s%d" % (sT4, sQL, sT3))
    A("s_add_u32 s%d, s%d, %d" % (sT3, sT3, L_RB + 12288))
    A("v_add_u32 v25, s%d, v%d" % (sT3, vL16))
    A("v_add_u32 v26, %d, v%d" % (L_RB + 12288, vL16))
    ppoll(lambda k: A("buffer_load_dwordx4 %s, v%d, %s, s%d offen sc1" % (vr(W + 32 + 4 * k, 4), vL16, sr(sWS, 4), sT4)),
          lambda k: range(W + 32 + 4 * k, W + 36 + 4 * k), 1, vT, lambda k: ["ds_write_b128 v25, %s" % vr(W + 32 + 4 * k, 4)], pre=QPRE, gap=QGAP, tag=0)
    A("s_waitcnt lgkmcnt(0)")
    A("s_barrier")
    for t in range(4):
        A("ds_read_b128 %s, v26 offset:%d" % (vr(QF + 4 * t, 4), 1024 * t))
    for t in range(4):
        A("s_waitcnt lgkmcnt(%d)" % (3 - t))
        A(qk[2 * t]); A(qk[2 * t + 1])
    touch_stub("k")
else:
    def iq(k):
        for t in range(4):
            A("buffer_load_dwordx4 %s, v%d, %s, s%d offen offset:%d sc1" % (vr(QF + 16 * k + 4 * t, 4), vL16, sr(sWS, 4), sQL, 1024 * t))
    def qks(k):
        return [mf(S + 4 * T, KF + 16 * T + 4 * t, QF + 16 * k + 4 * t, None if t == 0 else S + 4 * T) for t in range(4) for T in range(2)]
    ppoll(iq, lambda k: range(QF + 16 * k, QF + 16 * k + 16), 4, vT, qks, pre=QPRE, gap=QGAP, tag=0, stub="k")
STAMP(3)
LB("Lk_go")
NOP(7)
for ctl in ["row_ror:4", "row_ror:8"]:
    for i in range(8):
        A("v_add_f32_dpp v%d, v%d, v%d %s row_mask:0xf bank_mask:0xf" % (S + i, S + i, S + i, ctl))
A("v_max3_f32 v%d, v%d, v%d, v%d" % (vT, S, S + 1, S + 2))
A("v_max3_f32 v%d, v%d, v%d, v%d" % (vT + 1, S + 3, S + 4, S + 5))
A("v_max3_f32 v%d, v%d, v%d, v%d" % (vT, vT, S + 6, S + 7))
A("v_max_f32 v%d, v%d, v%d" % (vT, vT, vT + 1))
A("v_mov_b32 v%d, v%d" % (vT + 1, vT))
A("s_nop 1")
A("v_permlane16_swap_b32 v%d, v%d" % (vT, vT + 1))
A("v_max_f32 v%d, v%d, v%d" % (vT, vT, vT + 1))
A("v_mov_b32 v%d, v%d" % (vT + 1, vT))
A("s_nop 1")
A("v_permlane32_swap_b32 v%d, v%d" % (vT, vT + 1))
A("v_max_f32 v%d, v%d, v%d" % (vT, vT, vT + 1))
A("v_mul_f32 v%d, s%d, v%d" % (vT + 2, sSC, vT))
for i in range(8):
    A("v_fma_f32 v%d, v%d, s%d, -v%d" % (S + i, S + i, sSC, vT + 2))
for i in range(8):
    A("v_exp_f32 v%d, v%d" % (S + i, S + i))
for p in range(4):
    A("s_mov_b64 exec, %s" % sr(sPM + 2 * p, 2))
    for i in range(4):
        A("v_cvt_pk_bf16_f32 v%d, v%d, v%d" % (PM + 4 * p + i, S + 2 * i, S + 2 * i + 1))
A("s_mov_b64 exec, -1")
STAMP(4)
A("s_cmp_lg_u32 s%d, 0" % sLAY)
A("s_cbranch_scc1 Lv_go")
wait_w0(5 + PRET)
A("buffer_load_dwordx4 %s, v%d, %s, s%d offen sc1" % (vr(FLG, 4), vL16, sr(sWS, 4), sIT))
STAMP(6)
A("s_cmp_lg_u32 s%d, 0" % sY)
A("s_cbranch_scc1 Lv_have")
for t in range(8):
    for hf in range(2):
        A("ds_read_b64_tr_b16 %s, v%d offset:%d" % (vr(VF + 4 * t + 2 * hf, 2), VA + t, 4096 * hf))
A("s_waitcnt lgkmcnt(0)")
LB("Lv_have")
if TOT:
    A("s_memrealtime s[42:43]"); A("s_waitcnt lgkmcnt(0)"); A("s_mov_b32 s97, s42")
A("s_cmp_lg_u32 s%d, 0" % sLAY)
LB("Lv_go")
OA = W + 8
mfma(W + 16, ONES, PM, None)
for p in range(4):
    for T in range(2):
        mfma(OA + 4 * T, VF + 4 * (2 * p + T), PM + 4 * p, None if p == 0 else OA + 4 * T)
A("s_mov_b64 exec, %s" % sr(sMSK, 2))
A("v_mov_b32 v%d, v%d" % (vT + 3, W + 16))
A("ds_write_b64 v%d, %s" % (vMLW, vr(vT + 2, 2)))
A("s_mov_b64 exec, -1")
NOP(3)
A("ds_write_b128 v%d, %s" % (vRBW, vr(OA, 4)))
A("ds_write_b128 v%d, %s offset:64" % (vRBW, vr(OA + 4, 4)))
A("s_waitcnt lgkmcnt(0)")
A("s_cbranch_scc1 Lrb_bar")
lds_arrive(12, vT + 4)
lds_spin(12, 4, vT + 4)
A("s_branch Lrb_go")
LB("Lrb_bar")
A("s_barrier")
LB("Lrb_go")
A("ds_read_b128 %s, v%d" % (vr(W, 4), vMLR))
A("ds_read_b128 %s, v%d offset:16" % (vr(W + 4, 4), vMLR))
for w in range(4):
    A("ds_read_b64 %s, v%d offset:%d" % (vr(W + 8 + 2 * w, 2), vRBR, RBS * w))
A("v_mov_b32 v%d, 0" % (vT + 4))
fastcmp()
A("s_waitcnt lgkmcnt(4)")
A("v_max3_f32 v%d, v%d, v%d, v%d" % (vT, W, W + 2, W + 4))
A("v_max_f32 v%d, v%d, v%d" % (vT, vT, W + 6))
for w in range(4): A("v_sub_f32 v%d, v%d, v%d" % (W + 2 * w, W + 2 * w, vT))
for w in range(4): A("v_exp_f32 v%d, v%d" % (W + 2 * w, W + 2 * w))
A("v_mul_f32 v%d, v%d, v%d" % (vT + 1, W, W + 1))
for w in range(1, 4): A("v_fmac_f32 v%d, v%d, v%d" % (vT + 1, W + 2 * w, W + 2 * w + 1))
A("s_waitcnt lgkmcnt(0)")
A("v_pk_mul_f32 %s, %s, %s op_sel_hi:[1,0]" % (vr(W + 8, 2), vr(W + 8, 2), vr(W, 2)))
A("v_rcp_f32 v%d, v%d" % (vT + 2, vT + 1))
A("v_pk_fma_f32 %s, %s, %s, %s op_sel_hi:[1,0,1]" % (vr(W + 8, 2), vr(W + 10, 2), vr(W + 2, 2), vr(W + 8, 2)))
A("v_log_f32 v%d, v%d" % (vT + 5, vT + 1))
for w in range(2, 4):
    A("v_pk_fma_f32 %s, %s, %s, %s op_sel_hi:[1,0,1]" % (vr(W + 8, 2), vr(W + 8 + 2 * w, 2), vr(W + 2 * w, 2), vr(W + 8, 2)))
A("v_pk_mul_f32 %s, %s, %s op_sel_hi:[1,0]" % (vr(W + 8, 2), vr(W + 8, 2), vr(vT + 2, 2)))
A("v_add_f32 v%d, v%d, v%d" % (vT + 5, vT + 5, vT))
A("v_cvt_pk_bf16_f32 v%d, v%d, v%d" % (W + 8, W + 8, W + 9))
store_local("buffer_store_dword", "v%d" % (W + 8), vOST, sOS)
A("s_mov_b64 exec, 1")
store_local("buffer_store_dword", "v%d" % (vT + 5), vT + 4, sLS)
A("s_mov_b64 exec, -1")
STAMP(5)

C("wo phase: wave = batch, rows = key splits")
OF = W; LS = W + 32; DA = WQF
assert LSE_OFF[1] - O_OFF[1] == LSE_OFF[0] - O_OFF[0]
def io(k):
    for t in range(4):
        A("buffer_load_dwordx4 %s, v%d, %s, s%d offen offset:%d sc1" % (vr(OF + 16 * k + 4 * t, 4), [vLSE, vLS2, vOLD, vOLD][t], sr(sWS, 4), sOL, 512 * t))
A("s_cmp_lg_u32 s%d, 0" % sLAY)
A("s_cbranch_scc1 Lo_go")
C("first layer: wo tile landed -> fragments; every workgroup has announced its clears")
A("s_waitcnt vmcnt(2)")
STAMP(13)
A("s_mov_b32 s%d, %s" % (sT4, hx(SPIN)))
LB("Lap")
A("v_and_b32 v24, -8, v%d" % (FLG + 1))
A("v_cmp_ne_u32 vcc, s%d, v%d" % (sTG1, FLG))
A("v_cmp_ne_u32 %s, s%d, v24" % (sr(sH, 2), sTG2))
A("s_or_b64 vcc, vcc, %s" % sr(sH, 2))
A("s_cbranch_vccnz Lar")
LB("Lad")
lds_arrive(16, 24)
for i in range(2):
    A("v_lshlrev_b32 v%d, 16, v%d" % (W + 40 + 2 * i, RES + 2 + i))
    A("v_and_b32 v%d, 0xffff0000, v%d" % (W + 41 + 2 * i, RES + 2 + i))
for i in range(4): A("v_mov_b32 v%d, v%d" % (RES + i, W + 40 + i))
for ct in range(4): A("v_xor_b32 v%d, %d, v%d" % (W + 40 + ct, 32 * ct, vWT))
for ct in range(4): A("v_add_u32 v%d, %d, v%d" % (W + 40 + ct, L_WO, W + 40 + ct))
lds_spin(16, 4, 24)
STAMP(14)
A("s_mov_b32 s%d, 1" % sY)
LB("Lo_go")
def pre_o():
    A("s_cmp_eq_u32 s%d, 0" % sY)
    A("s_cbranch_scc1 Lo_nof")
    A("s_mov_b32 s%d, 0" % sY)
    for t in range(4):
        for ct in range(4):
            for hf in range(2):
                A("ds_read_b64_tr_b16 %s, v%d offset:%d" % (vr(WOF + 16 * ct + 4 * t + 2 * hf, 2), W + 40 + ct, 4096 * t + 512 * hf))
    A("s_waitcnt lgkmcnt(0)")
    LB("Lo_nof")
ool.append(["Lar:", "    s_lshl_b32 s%d, s%d, 10" % (sT5, sW), "    s_add_u32 s%d, s%d, %s" % (sT5, sT5, hx(FB)),
            "    buffer_load_dwordx4 %s, v%d, %s, s%d offen sc1" % (vr(FLG, 4), vL16, sr(sWS, 4), sT5),
            "    s_waitcnt vmcnt(0)", "    s_sub_u32 s%d, s%d, 1" % (sT4, sT4), "    s_cbranch_scc0 Lap", "    s_branch Lad"])
def wo1(k): return [mf(DA + 4 * ct, OF + 16 * k + 4 * t, WOF + 16 * ct + 4 * t, None if t == 0 else DA + 4 * ct) for t in range(2) for ct in range(4)]
ppoll(io, lambda k: range(OF + 16 * k, OF + 16 * k + 16), 4, vT, wo1, pre=OPRE, gap=OGAP, mid=pre_o, tag=1,
      fix=["v_mov_b32 v%d, v%d" % (OF + i, OF + 16 + i) for i in range(16)])
STAMP(7)
C("softmax over the 8 key splits (lanes n>=8 hold own lse in OF[0:3], the other four in OF[4:7])")
va = ["v_max3_f32 v%d, v%d, v%d, v%d" % (vT, OF, OF + 1, OF + 2), "v_max3_f32 v%d, v%d, v%d, v%d" % (vT + 1, OF + 3, OF + 4, OF + 5),
      "v_max3_f32 v%d, v%d, v%d, v%d" % (vT, vT, OF + 6, OF + 7), "v_max_f32 v%d, v%d, v%d" % (vT, vT, vT + 1)]
va += ["v_sub_f32 v%d, v%d, v%d" % (LS + i, OF + i, vT) for i in range(4)]
va += ["v_exp_f32 v%d, v%d" % (LS + i, LS + i) for i in range(4)]
va += ["s_nop 0"]
va += ["v_mov_b32_dpp v%d, v%d row_ror:8 row_mask:0xf bank_mask:0x3" % (LS + i, LS + i) for i in range(4)]
va += ["v_add_f32 v%d, v%d, v%d" % (vT, LS, LS + 1), "v_add_f32 v%d, v%d, v%d" % (vT + 1, LS + 2, LS + 3),
       "v_add_f32 v%d, v%d, v%d" % (vT, vT, vT + 1), "v_mov_b32 v%d, v%d" % (vT + 1, vT)]
for t in range(2, 4):
    for ct in range(4):
        mfma(DA + 4 * ct, OF + 4 * t, WOF + 16 * ct + 4 * t, DA + 4 * ct)
        for k in range(3 if t == 3 or ct < 1 else 2):
            if va: A(va.pop(0))
assert not va
A("s_mov_b32 s%d, 0x55555555" % sT4)
A("s_mov_b32 s%d, 0x55555555" % sT5)
A("v_permlane16_swap_b32 v%d, v%d" % (vT, vT + 1))
A("v_mul_f32 v%d, v%d, v%d" % (DA, DA, LS))
A("v_add_f32 v%d, v%d, v%d" % (vT, vT, vT + 1))
A("v_mul_f32 v%d, v%d, v%d" % (DA + 4, DA + 4, LS))
A("v_rcp_f32 v%d, v%d" % (vT, vT))
A("v_mul_f32 v%d, v%d, v%d" % (DA + 8, DA + 8, LS))
for i in range(1, 4):
    for ct in range(3):
        A("v_fmac_f32 v%d, v%d, v%d" % (DA + 4 * ct, DA + 4 * ct + i, LS + i))
    if i == 1: A("v_mul_f32 v%d, v%d, v%d" % (DA + 12, DA + 12, LS))
for i in range(1, 4): A("v_fmac_f32 v%d, v%d, v%d" % (DA + 12, DA + 12 + i, LS + i))
A("v_permlane16_swap_b32 v%d, v%d" % (DA, DA + 4))
A("s_nop 0")
A("v_permlane16_swap_b32 v%d, v%d" % (DA + 8, DA + 12))
A("v_add_f32 v%d, v%d, v%d" % (DA, DA, DA + 4))
A("v_add_f32 v%d, v%d, v%d" % (DA + 8, DA + 8, DA + 12))
A("s_nop 1")
A("v_permlane32_swap_b32 v%d, v%d" % (DA, DA + 8))
A("v_mul_f32 v%d, v%d, v%d" % (DA, DA, vT))
A("s_cmp_lg_u32 s%d, 0" % sLAY)
A("s_nop 0")
A("v_mov_b32_dpp v%d, v%d quad_perm:[1,0,3,2] row_mask:0xf bank_mask:0xf" % (DA + 1, DA))
A("s_mov_b64 exec, %s" % sr(sT4, 2))
A("v_cvt_pk_bf16_f32 v%d, v%d, v%d" % (DA, DA, DA + 1))
A("buffer_store_dword v%d, v%d, %s, s%d offen sc1" % (DA, vPST, sr(sWS, 4), sPS))
A("s_mov_b64 exec, -1")
STAMP(8)
A("s_cbranch_scc1 Lfinal")

A("s_cmp_lg_u32 s%d, 0" % sW)
A("s_cbranch_scc1 Ltab")
C("stage 1 (wave 0): reduce 32 head partials of 64 outputs, add residual, publish x1 slice")
soff(sT1, [(sA, 15), (sC, 12)], PB)
soff(sT2, [(sA, 10), (sC, 7), (sJ, 17)], X1_OFF)
A("s_mov_b32 s%d, 0x00ff00ff" % sT4)
A("s_mov_b32 s%d, 0" % sT5)
def ip(k):
    for i in range(4):
        A("buffer_load_dwordx4 %s, v%d, %s, s%d offen offset:%d sc1" % (vr(W + 20 * k + 4 * i, 4), vL16, sr(sWS, 4), sT1, 1024 * i))
if GW: A("s_waitcnt vmcnt(0)")
ppoll(ip, lambda k: range(W + 20 * k, W + 20 * k + 16), 4, vT, lambda k: [mf(W + 16, SEL, W + 20 * k + 4 * i, None if i == 0 else W + 16) for i in range(4)], pre=GPRE, gap=GGAP, tag=2)
STAMP(9)
fastcmp()
NOP(6)
for i in range(4):
    A("v_add_f32_dpp v%d, v%d, v%d row_ror:8 row_mask:0xf bank_mask:0xf" % (W + 16 + i, W + 16 + i, W + 16 + i))
A("s_mov_b64 exec, %s" % sr(sT4, 2))
A("v_pk_add_f32 %s, %s, %s" % (vr(W + 16, 2), vr(W + 16, 2), vr(RES, 2)))
A("v_pk_add_f32 %s, %s, %s" % (vr(W + 18, 2), vr(W + 18, 2), vr(RES + 2, 2)))
A("v_cvt_pk_bf16_f32 v%d, v%d, v%d" % (W + 16, W + 16, W + 17))
A("v_cvt_pk_bf16_f32 v%d, v%d, v%d" % (W + 17, W + 18, W + 19))
store_local("buffer_store_dwordx2", vr(W + 16, 2), vX1S, sT2)
A("s_mov_b64 exec, -1")
LB("Ltabdone")
soff(sT3, [(sW, 10), (sJ, 17)], X1_OFF)
def ix(k):
    A("buffer_load_dwordx4 %s, v%d, %s, s%d offen sc1" % (vr([XR, RES][k], 4), vL16, sr(sWS, 4), sT3))
wqf_reads()
ppoll(ix, lambda k: range([XR, RES][k], [XR, RES][k] + 4), 1, vT, lambda k: ["s_waitcnt lgkmcnt(0)", "v_readfirstlane_b32 s%d, v%d" % (sT1, vT + 2)],
      pre=XPRE, gap=XGAP, mid=lambda: A("ds_read_b32 v%d, v%d offset:20" % (vT + 2, vFL)), tag=3,
      fix=["v_mov_b32 v%d, v%d" % (XR + i, RES + i) for i in range(4)])
A("s_cmp_lt_u32 s%d, 3" % sT1)
A("s_cbranch_scc1 Ltw")
LB("Ltwd")
STAMP(10)

LB("Lmix")
C("x <- x + g(LN(LN(x))) ; g is tabulated for every bf16 input in range, evaluated directly otherwise")
X = W; HB = W + 8; RT = W + 12; AD = W + 16; Y = W + 24
row_stats(XR, vT, X)
A("v_add_f32 v%d, %s, v%d" % (vT + 2, EPS, vT + 1))
A("v_rsq_f32 v%d, v%d" % (vT + 2, vT + 2))
A("v_mov_b32 v%d, %s" % (vT + 4, hx(LO2 | (LO2 << 16))))
A("v_mul_f32 v%d, v%d, v%d" % (vT + 1, vT + 1, vT + 2))
A("v_fmaak_f32 v%d, v%d, v%d, %s" % (vT + 1, vT + 1, vT + 2, EPS))
A("v_rsq_f32 v%d, v%d" % (vT + 1, vT + 1))
A("s_nop 0")
A("v_mul_f32 v%d, v%d, v%d" % (vT + 2, vT + 2, vT + 1))
A("v_mul_f32 v%d, v%d, v%d" % (vT + 3, vT, vT + 2))
for i in range(4):
    A("v_pk_fma_f32 %s, %s, %s, %s op_sel:[0,0,1] op_sel_hi:[1,0,1] neg_lo:[0,0,1] neg_hi:[0,0,1]" % (vr(AD + 2 * i, 2), vr(X + 2 * i, 2), vr(vT + 2, 2), vr(vT + 2, 2)))
for i in range(4):
    A("v_cvt_pk_bf16_f32 v%d, v%d, v%d" % (HB + i, AD + 2 * i, AD + 2 * i + 1))
for i in range(4):
    A("v_pk_lshlrev_b16 v%d, 1, v%d op_sel_hi:[0,1]" % (RT + i, HB + i))
    A("v_pk_lshrrev_b16 v%d, 15, v%d op_sel_hi:[0,1]" % (AD + i, HB + i))
for i in range(4):
    A("v_or_b32 v%d, v%d, v%d" % (RT + i, RT + i, AD + i))
for i in range(4):
    A("v_pk_sub_u16 v%d, v%d, v%d" % (RT + i, RT + i, vT + 4))
for i in range(4):
    A("v_lshlrev_b32_sdwa v%d, 2, v%d dst_sel:DWORD dst_unused:UNUSED_PAD src0_sel:DWORD src1_sel:WORD_0" % (AD + 2 * i, RT + i))
    A("v_lshlrev_b32_sdwa v%d, 2, v%d dst_sel:DWORD dst_unused:UNUSED_PAD src0_sel:DWORD src1_sel:WORD_1" % (AD + 2 * i + 1, RT + i))
    A("ds_read_b32 v%d, v%d offset:%d" % (Y + 2 * i, AD + 2 * i, L_TAB))
    A("ds_read_b32 v%d, v%d offset:%d" % (Y + 2 * i + 1, AD + 2 * i + 1, L_TAB))
A("v_max3_u32 v%d, v%d, v%d, v%d" % (vT, AD, AD + 1, AD + 2))
A("v_max3_u32 v%d, v%d, v%d, v%d" % (vT + 1, AD + 3, AD + 4, AD + 5))
A("v_max3_u32 v%d, v%d, v%d, v%d" % (vT, vT, AD + 6, AD + 7))
A("v_max_u32 v%d, v%d, v%d" % (vT, vT, vT + 1))
A("v_cmp_le_u32 vcc, %d, v%d" % (NENT * 4, vT))
A("s_cbranch_vccnz Lslow")
LB("Lslowdone")
A("s_cmp_lg_u32 s%d, 0" % sLAY)
for i in range(4):
    A("s_waitcnt lgkmcnt(%d)" % (6 - 2 * i))
    A("v_pk_add_f32 %s, %s, %s" % (vr(X + 2 * i, 2), vr(X + 2 * i, 2), vr(Y + 2 * i, 2)))
for i in range(4):
    A("v_cvt_pk_bf16_f32 v%d, v%d, v%d" % (XR + i, X + 2 * i, X + 2 * i + 1))
STAMP(11)
A("s_cbranch_scc1 Lout")
A("ds_write_b128 v%d, %s offset:%d" % (vXNW, vr(XR, 4), L_X2 - L_XN))
A("s_mov_b32 s%d, 1" % sLAY)
A("s_mov_b32 s%d, 0" % sY)
if TOT: A("s_memrealtime s[100:101]")
for s, d in [(sOL, O_OFF[1] - O_OFF[0]), (sOS, O_OFF[1] - O_OFF[0]), (sLS, LSE_OFF[1] - LSE_OFF[0]), (sPS, P_L)]:
    A("s_add_u32 s%d, s%d, %d" % (s, s, d))
if DIAG: A("v_mov_b32 v28, v30")
A("s_branch Llnq")

L.append(".p2align 6"); LB("Lst_fin"); A("s_setpc_b64 %s" % sr(sRET, 2)); stubs.append("fin")
LB("Lfinal")
A("s_cmp_ge_u32 s2, 4")
A("s_cbranch_scc1 Lepoch")
C("workgroup b: reduce the 32 head partials of row b, add x2, mixer, store")
soff(sT1, [(2, 15), (sW, 13)], PB + P_L)
A("s_add_u32 s%d, s%d, 4096" % (sT2, sT1))
A("s_mul_i32 s%d, s2, %d" % (sT0, XS))
A("s_lshl_b32 s%d, s%d, 8" % (sT3, sW))
A("s_add_u32 s%d, s%d, s%d" % (sT0, sT0, sT3))
A("s_add_u32 s%d, s%d, %d" % (sT0, sT0, L_X2))
A("v_add_u32 v%d, s%d, v%d" % (vT + 4, sT0, vX1S))
A("s_add_u32 s%d, s%d, %d" % (sT3, sT3, L_XN))
A("v_add_u32 v%d, s%d, v%d" % (vT + 5, sT3, vX1S))
A("ds_read_b64 %s, v%d" % (vr(PM, 2), vT + 4))
A("ds_read_b64 %s, v%d offset:128" % (vr(PM + 2, 2), vT + 4))
A("s_mov_b32 s%d, 0x00ff00ff" % sT4)
A("s_mov_b32 s%d, 0" % sT5)
A("s_waitcnt lgkmcnt(0)")
if GW: A("s_waitcnt vmcnt(0)")
for i in range(4):
    A("v_lshlrev_b32 v%d, 16, v%d" % (PM + 4 + 2 * i, PM + i))
    A("v_and_b32 v%d, 0xffff0000, v%d" % (PM + 5 + 2 * i, PM + i))
FS = [KF, VF]
def ifin(k):
    for i in range(8):
        A("buffer_load_dwordx4 %s, v%d, %s, s%d offen offset:%d sc1" % (vr(FS[k] + 4 * i, 4), vL16, sr(sWS, 4), sT1 if i < 4 else sT2, 1024 * (i & 3)))
def fs(k):
    o = []
    for i in range(4):
        o.append(mf(W + 32, SEL, FS[k] + 4 * i, None if i == 0 else W + 32))
        o.append(mf(W + 36, SEL, FS[k] + 16 + 4 * i, None if i == 0 else W + 36))
    return o
ppoll(ifin, lambda k: range(FS[k], FS[k] + 32), 8, vT, fs, pre=GPRE, gap=GGAP, tag=2)
STAMP(9)
NOP(7)
for i in range(8):
    A("v_add_f32_dpp v%d, v%d, v%d row_ror:8 row_mask:0xf bank_mask:0xf" % (W + 32 + i, W + 32 + i, W + 32 + i))
A("s_mov_b64 exec, %s" % sr(sT4, 2))
for i in range(4):
    A("v_pk_add_f32 %s, %s, %s" % (vr(W + 32 + 2 * i, 2), vr(W + 32 + 2 * i, 2), vr(PM + 4 + 2 * i, 2)))
for i in range(4):
    A("v_cvt_pk_bf16_f32 v%d, v%d, v%d" % (W + 32 + i, W + 32 + 2 * i, W + 33 + 2 * i))
A("ds_write_b64 v%d, %s" % (vT + 5, vr(W + 32, 2)))
A("ds_write_b64 v%d, %s offset:128" % (vT + 5, vr(W + 34, 2)))
A("s_mov_b64 exec, -1")
A("s_cmp_lg_u32 s%d, 0" % sW)
A("s_waitcnt lgkmcnt(0)")
A("s_barrier")
A("s_cbranch_scc1 Lfin_exit")
A("ds_read_b128 %s, v%d" % (vr(XR, 4), vXNW))
A("s_waitcnt lgkmcnt(0)")
STAMP(10)
A("s_branch Lmix")
L.append(".p2align 6"); LB("Lst_out"); A("s_setpc_b64 %s" % sr(sRET, 2)); stubs.append("out")
LB("Lout")
A("s_lshl_b32 s%d, s2, 10" % sT0)
A("buffer_store_dwordx4 %s, v%d, %s, s%d offen" % (vr(XR, 4), vL16, sr(sOUT, 4), sT0))
if DBL:
    A("s_cmp_lg_u32 s2, 0")
    A("s_cbranch_scc1 Lfin_exit")
if DBL:
    A("s_waitcnt vmcnt(0)")
    A("s_memrealtime s[10:11]")
    A("s_waitcnt lgkmcnt(0)")
    A("s_sub_u32 s12, s10, s98")
    if "pad" in OPT:
        A("s_mov_b32 s10, s98"); A("s_mov_b32 s12, %d" % (100 * int(OPT["pad"])))
    LB("Ldbl")
    A("s_memrealtime s[14:15]")
    A("s_waitcnt lgkmcnt(0)")
    A("s_sub_u32 s13, s14, s10")
    A("s_cmp_lt_u32 s13, s12")
    A("s_cbranch_scc1 Ldbl")
LB("Lfin_exit")
if TOT:
    A("s_waitcnt vmcnt(0)")
    A("s_memrealtime s[10:11]")
    A("s_waitcnt lgkmcnt(0)")
    A("v_mov_b32 v16, s98")
    A("v_mov_b32 v17, s10")
    A("v_mov_b32 v18, s100")
    A("v_mov_b32 v19, s97")
    soff(sT2, [(2, 6), (sW, 4)], STB)
    A("v_mov_b32 v20, 0")
    A("s_mov_b64 exec, 1")
    A("buffer_store_dwordx4 v[16:19], v20, %s, s%d offen" % (sr(sWS, 4), sT2))
if DIAG:
    A("s_waitcnt vmcnt(0)")
    STAMP(12)
    if DIAG == 2:
        A("s_or_b32 s%d, s2, s%d" % (sT0, sW))
        A("s_cmp_lg_u32 s%d, 0" % sT0)
        A("s_cbranch_scc1 Lend")
        A("v_readlane_b32 s%d, v28, 0" % sT2)
        for k, (r, i) in enumerate([(31, 10), (31, 12), (28, 1), (28, 2), (28, 6), (28, 5), (28, 7), (28, 8), (28, 9), (28, 10), (28, 11), (30, 3), (30, 5), (30, 8), (30, 9), (30, 12)]):
            A("v_readlane_b32 s%d, v%d, %d" % (sT3, r, i))
            A("s_sub_u32 s%d, s%d, s%d" % (sT3, sT3, sT2))
            A("s_nop 0")
            A("v_writelane_b32 v17, s%d, %d" % (sT3, k))
        A("v_lshlrev_b32 v16, 2, v%d" % vLANE)
        A("s_mov_b64 exec, 0xffff")
        A("global_store_dword v16, v17, s[100:101]")
        A("s_endpgm")
    soff(sT1, [(2, 10), (sW, 7)], STB)
    A("v_lshlrev_b32 v16, 2, v%d" % vLANE)
    A("s_mov_b64 exec, 0xffff")
    A("buffer_store_dword v28, v16, %s, s%d offen" % (sr(sWS, 4), sT1))
    A("buffer_store_dword v30, v16, %s, s%d offen offset:64" % (sr(sWS, 4), sT1))
    A("s_add_u32 s%d, s%d, 0x40000" % (sT1, sT1))
    A("buffer_store_dword v31, v16, %s, s%d offen" % (sr(sWS, 4), sT1))
LB("Lend")
A("s_endpgm")
LB("Lepoch")
C("every workgroup has used the old launch tag long ago: workgroup 4 advances it")
A("s_lshl_b32 s%d, s%d, 8" % (sT0, sW))
A("s_add_u32 s%d, s%d, s2" % (sT0, sT0))
A("s_cmp_lg_u32 s%d, 4" % sT0)
A("s_cbranch_scc1 Lfin_exit")
A("v_mov_b32 v16, s%d" % sTG1)
A("v_mov_b32 v17, %s" % hx(EPO))
A("s_mov_b64 exec, 1")
A("buffer_store_dword v16, v17, %s, 0 offen sc1" % sr(sWS, 4))
A("s_mov_b64 exec, -1")
A("s_branch Lfin_exit")

L.append(".p2align 6"); LB("Lst_tab"); A("s_setpc_b64 %s" % sr(sRET, 2)); stubs.append("tab")
LB("Ltab")
C("waves 1..3: gather the g(h) table into LDS")
NTL = -(-NENT * 4 // 3 // 1024)
A("s_sub_u32 s%d, s%d, 1" % (sT1, sW))
A("s_mul_i32 s%d, s%d, %d" % (sT1, sT1, NTL * 1024))
A("s_min_u32 s%d, s%d, %d" % (sT1, sT1, NENT * 4 - NTL * 1024))
A("v_add_u32 v%d, s%d, v%d" % (vT + 4, sT1, vL16))
A("s_add_u32 s%d, s%d, %s" % (sT1, sT1, hx(TB)))
A("s_add_u32 s%d, s%d, 4096" % (sT2, sT1))
def it():
    for i in range(NTL):
        A("buffer_load_dwordx4 %s, v%d, %s, s%d offen offset:%d sc1" % (vr(W + 4 * i, 4), vL16, sr(sWS, 4), sT1 if i < 4 else sT2, 1024 * (i & 3)))
poll(it, range(W, W + 4 * NTL), vT, back="s_sleep 16")
for i in range(NTL):
    A("ds_write_b128 v%d, %s offset:%d" % (vT + 4, vr(W + 4 * i, 4), L_TAB + 1024 * i))
A("s_waitcnt lgkmcnt(0)")
lds_arrive(20, vT + 4)
STAMP(9)
A("s_branch Ltabdone")
LB("Ltw")
lds_spin(20, 3, vT + 2)
A("s_branch Ltwd")

LB("Lslow")
C("rare: some h lies outside the table -> evaluate g(h) directly for those lanes")
RW1 = [W + 32 + i for i in range(14)]
RB1 = [PM + i for i in range(14)]
RW2 = [16 + i for i in range(10)] + [W + 46, W + 47, PM + 14, PM + 15]
A("v_lshlrev_b32 v26, 3, v%d" % vLANE)
A("s_load_dword s%d, %s, 0" % (sB2, sr(sB2P, 2)))
for (d4, d2, s) in [([W + 32, W + 36, W + 40], W + 44, sW1), ([PM, PM + 4, PM + 8], PM + 12, sB1)]:
    for k in range(3):
        A("buffer_load_dwordx4 %s, v%d, %s, 0 offen offset:%d" % (vr(d4[k], 4), vL16, sr(s, 4), 1024 * k))
    A("buffer_load_dwordx2 %s, v26, %s, 0 offen offset:3072" % (vr(d2, 2), sr(s, 4)))
A("buffer_load_dwordx4 v[16:19], v%d, %s, 0 offen" % (vL16, sr(sW2, 4)))
A("buffer_load_dwordx4 v[20:23], v%d, %s, 0 offen offset:1024" % (vL16, sr(sW2, 4)))
A("buffer_load_dwordx2 v[24:25], v%d, %s, 0 offen offset:2048" % (vL16, sr(sW2, 4)))
A("buffer_load_dwordx2 %s, v%d, %s, 0 offen offset:2056" % (vr(W + 46, 2), vL16, sr(sW2, 4)))
A("buffer_load_dwordx2 %s, v26, %s, 0 offen offset:3072" % (vr(PM + 14, 2), sr(sW2, 4)))
A("s_waitcnt vmcnt(0) lgkmcnt(0)")
A("s_lshl_b32 s%d, s%d, 16" % (sB2, sB2))
for e in range(8):
    A("v_cmp_le_u32 vcc, %d, v%d" % (NENT * 4, AD + e))
    A("s_mov_b64 %s, vcc" % sr(sH2, 2))
    LB("Lse%d" % e)
    A("s_cmp_eq_u64 %s, 0" % sr(sH2, 2))
    A("s_cbranch_scc1 Lsf%d" % e)
    A("s_ff1_i32_b64 s%d, %s" % (sT0, sr(sH2, 2)))
    A("s_bitset0_b64 %s, s%d" % (sr(sH2, 2), sT0))
    A("s_mov_b32 m0, s%d" % sT0)
    A("v_readlane_b32 s%d, v%d, s%d" % (sH, HB + (e >> 1), sT0))
    if e & 1: A("s_and_b32 s%d, s%d, 0xffff0000" % (sH, sH))
    else: A("s_lshl_b32 s%d, s%d, 16" % (sH, sH))
    A("s_call_b64 %s, Lgev" % sr(sRET, 2))
    A("v_writelane_b32 v%d, s%d, m0" % (Y + e, sY))
    A("s_branch Lse%d" % e)
    LB("Lsf%d" % e)
for i in range(16): A("v_mov_b32 v%d, 0" % (PM + i))
A("s_branch Lslowdone")
LB("Lgev")
a, u, t1, z = RES, RES + 1, RES + 2, RT
A("v_mov_b32 v%d, 0" % a)
A("v_mov_b32 v%d, %s" % (RT + 1, hx(f2u(K0))))
A("v_mov_b32 v%d, %s" % (RT + 2, hx(f2u(K1))))
for p in range(14):
    for hf in range(2):
        def un(d, s):
            if hf == 0: A("v_lshlrev_b32 v%d, 16, v%d" % (d, s))
            else: A("v_and_b32 v%d, 0xffff0000, v%d" % (d, s))
        un(u, RW1[p]); un(t1, RB1[p]); un(z, RW2[p])
        A("v_fma_f32 v%d, v%d, s%d, v%d" % (u, u, sH, t1))
        A("v_mul_f32 v%d, v%d, v%d" % (t1, u, u))
        A("v_fma_f32 v%d, v%d, v%d, v%d" % (t1, t1, RT + 2, RT + 1))
        A("v_mul_f32 v%d, v%d, v%d" % (t1, t1, u))
        A("v_exp_f32 v%d, v%d" % (t1, t1))
        A("v_mul_f32 v%d, v%d, v%d" % (z, z, u))
        A("v_add_f32 v%d, 1.0, v%d" % (t1, t1))
        A("v_rcp_f32 v%d, v%d" % (t1, t1))
        A("s_nop 0")
        A("v_fmac_f32 v%d, v%d, v%d" % (a, z, t1))
A("v_mov_b32 v%d, v%d" % (u, a))
A("s_nop 1")
wave_sum2(a, u, sY, sT1)
A("s_nop 1")
A("v_mov_b32 v%d, s%d" % (a, sY))
A("v_cvt_pk_bf16_f32 v%d, v%d, v%d" % (a, a, a))
A("v_and_b32 v%d, 0xffff0000, v%d" % (a, a))
A("v_add_f32 v%d, s%d, v%d" % (a, sB2, a))
A("v_cvt_pk_bf16_f32 v%d, v%d, v%d" % (a, a, a))
A("v_and_b32 v%d, 0xffff0000, v%d" % (a, a))
A("s_nop 0")
A("v_readfirstlane_b32 s%d, v%d" % (sY, a))
A("s_nop 3")
A("s_setpc_b64 %s" % sr(sRET, 2))

for b in ool: L += b
A("s_endpgm")
L.append(".p2align 8")
L.append(".fill %d, 4, 0xBF800000" % (64 if DIAG else 512))
L.append('''.section .rodata,"a"
.p2align 6
.amdhsa_kernel %s_kernel
  .amdhsa_next_free_vgpr 256
  .amdhsa_next_free_sgpr 102
  .amdhsa_accum_offset 256
  .amdhsa_group_segment_fixed_size 0
  .amdhsa_kernarg_size 104
  .amdhsa_user_sgpr_count 2
  .amdhsa_user_sgpr_kernarg_segment_ptr 1
  .amdhsa_system_sgpr_workgroup_id_x 1
.end_amdhsa_kernel''' % NAME)
open(OUTF, "w").write("\n".join(x for x in L if x is not None) + "\n")
print("wrote", OUTF, "lines", len(L), "LDS", LDS_SZ)
```

```python
import sys, struct, math

NAME = "interleave_layers__sliding_block_cached__mixer_token_mlp__decode"
OUTF = sys.argv[1] if len(sys.argv) > 1 else "cdna_kernels/%s.s" % NAME
DIAG = int(sys.argv[2]) if len(sys.argv) > 2 else 0
DBL = 0
if DIAG == 3: DIAG = 0; DBL = 1
TOT = 0
if DIAG == 4: DIAG = 0; TOT = 1
OPT = dict(a.split("=") for a in sys.argv[3:])
DEPTH = int(OPT.get("depth", 8))
D0 = int(OPT.get("d0", 2))
D1 = int(OPT.get("d1", 4))
DC = int(OPT.get("dc", 3))
TAILI = int(OPT.get("taili", 11))
TAILD = int(OPT.get("taild", 8))
QV = int(OPT.get("qv", 4))
PRET = int(OPT.get("pret", 1))
GW = int(OPT.get("gw", 1))
GPRE = int(OPT.get("gpre", 0))
GGAP = int(OPT.get("ggap", -1))
WARM = int(OPT.get("warm", 1))
QPRE = int(OPT.get("qpre", -1)); QGAP = int(OPT.get("qgap", -1))
OPRE = int(OPT.get("opre", -1)); OGAP = int(OPT.get("ogap", -1))
XPRE = int(OPT.get("xpre", -1)); XGAP = int(OPT.get("xgap", -1))
FINE = OPT.get("fine", "")
QS = int(OPT.get("qs", 0))
ADP = int(OPT.get("adp", 0))
ROT = int(OPT.get("rot", 1)); VROT = int(OPT.get("vrot", 0))
WROT = int(OPT.get("wrot", 1))
QT = int(OPT.get("qt", 0))
DRY = int(OPT.get("dry", 0))
HP = int(OPT.get("hp", 0))
NOCT = int(OPT.get("noct", 16))
QPOS = int(OPT.get("qpos", 1))
QPOS2 = int(OPT.get("qpos2", 7))

def f2u(x): return struct.unpack("<I", struct.pack("<f", x))[0]
def hx(x): return "0x%08x" % (x & 0xffffffff)

L = []
def A(s): L.append("    " + s)
def LB(s): L.append(s + ":")
def C(s): L.append("    ; " + s)
def vr(a, n): return "v[%d:%d]" % (a, a + n - 1)
def sr(a, n): return "s[%d:%d]" % (a, a + n - 1)
def NOP(n):
    while n > 0:
        k = min(n, 16); A("s_nop %d" % (k - 1)); n -= k

ELO = int(OPT.get('elo', 132 - NOCT if NOCT == 24 else 130 - NOCT))
LO2 = (ELO << 7) * 2
NENT = NOCT * 256
EPW = NENT // 256 // 4 // 2
GRS = 0x20000
O_OFF = [0x0000, 0xC400]; LSE_OFF = [0x8000, 0x14400]; Q1_OFF = 0x8400; X1_OFF = 0x14600
CLRA_PER = 1040
CLRB_OFF = 0x8400; CLRB_PER = 1680
Q0_OFF = 0x18000
EPO = 0x17f00
PB = 0x100000; P_L = 0x20000
TB = 0x140000; FB = 0x148000
QB_DELTA = 0x180000
STB = 0x300000
WS_SZ = 0x400000
L_WQ = 12288; L_K = L_WQ + 16384; L_V = L_K + 32768
L_WO = L_K + 16384
L_TAB = L_V
L_XN = L_V + 32768; XS = 1056
L_X2 = L_XN + 4 * XS
L_FLG = L_X2 + 4 * XS
L_RB = L_K; RBS = 2048 + 64; L_ML = L_K + 4 * RBS
L_QF = L_X2
LDS_SZ = int(OPT.get("lds", L_FLG + 64))
SPIN = 0x40000
K0 = -2.0 * math.sqrt(2.0 / math.pi) * math.log2(math.e)
K1 = K0 * 0.044715
EPS = hx(f2u(1e-5))

sTG1, sTG2 = 0, 1
sW, sJ, sA, sC, sGR, sLAY, sFAST = 3, 4, 5, 6, 7, 8, 9
sT0, sT1, sT2, sT3, sT4, sT5 = 10, 11, 12, 13, 14, 15
sCNT = 16
sQL, sQS, sOL, sOS, sLL, sLS, sPS = 17, 18, 19, 20, 21, 22, 23
sSC, sIT = 24, 25
sSUM, sSQ = 26, 27
sH, sH2, sRET, sMSK = 28, 30, 32, 34
sB2, sY, sXCC, sE = 36, 37, 38, 39
sB2P = 40
sK, sV, sWQ, sWO, sWS, sX, sOUT, sW1, sB1, sW2 = 44, 48, 52, 56, 60, 64, 68, 72, 76, 80
sKO, sKL, sVO, sVL = 84, 85, 86, 87
sPM = 88
sHC, sHT = 84, 85

def STAMP(i):
    if DIAG:
        A("s_memrealtime s[42:43]"); A("s_waitcnt lgkmcnt(0)")
        A("v_writelane_b32 v30, s42, %d" % i)

def CST(i):
    if DIAG == 1 and FINE:
        A("s_memtime s[42:43]"); A("s_waitcnt lgkmcnt(0)")
        A("v_writelane_b32 v31, s42, %d" % i)

vLANE = 1
vL16, vQST, vOST, vOLD, vPST, vX1S, vXNW, vXNR, vRBW, vRBR, vMLW, vMLR, vLSE, vZ = range(2, 16)
vT = 16
vWT, vFL = 28, 29
vLS2 = 27
KF, VF, WQF, WOF, SEL, ONES = 32, 64, 96, 112, 176, 180
W = 184
PM = 232
XR = 248
RES = 252

def srd(s, nbytes):
    A("s_mov_b32 s%d, %s" % (s + 2, hx(nbytes))); A("s_mov_b32 s%d, 0x00020000" % (s + 3))

def soff(dst, terms, const):
    first = True
    for (src, sh) in terms:
        if first: A("s_lshl_b32 s%d, s%d, %d" % (dst, src, sh)); first = False
        else:
            A("s_lshl_b32 s%d, s%d, %d" % (sT0, src, sh)); A("s_add_u32 s%d, s%d, s%d" % (dst, dst, sT0))
    if const: A("s_add_u32 s%d, s%d, %s" % (dst, dst, hx(const)))

def wave_sum2(a, b, sa, sb):
    for ctl in ["row_ror:8", "row_ror:4", "row_ror:2", "row_ror:1"]:
        A("v_add_f32_dpp v%d, v%d, v%d %s row_mask:0xf bank_mask:0xf" % (a, a, a, ctl))
        A("v_add_f32_dpp v%d, v%d, v%d %s row_mask:0xf bank_mask:0xf" % (b, b, b, ctl))
        A("s_nop 0")
    for ctl in ["row_bcast:15 row_mask:0xa", "row_bcast:31 row_mask:0xc"]:
        A("v_add_f32_dpp v%d, v%d, v%d %s bank_mask:0xf" % (a, a, a, ctl))
        A("v_add_f32_dpp v%d, v%d, v%d %s bank_mask:0xf" % (b, b, b, ctl))
        A("s_nop 0")
    A("v_readlane_b32 s%d, v%d, 63" % (sa, a))
    A("v_readlane_b32 s%d, v%d, 63" % (sb, b))

def row_stats(x, t, unp):
    A("v_dot2_f32_bf16 v%d, v%d, v%d, 0" % (t, x, ONES))
    A("v_dot2_f32_bf16 v%d, v%d, v%d, 0" % (t + 1, x, x))
    for i in range(1, 4):
        A("v_dot2_f32_bf16 v%d, v%d, v%d, v%d" % (t, x + i, ONES, t))
        A("v_dot2_f32_bf16 v%d, v%d, v%d, v%d" % (t + 1, x + i, x + i, t + 1))
    un = []
    for i in range(4):
        un.append("v_lshlrev_b32 v%d, 16, v%d" % (unp + 2 * i, x + i))
        un.append("v_and_b32 v%d, 0xffff0000, v%d" % (unp + 2 * i + 1, x + i))
    for k in range(3): A(un.pop(0))
    a, b = t, t + 1
    for ctl in ["row_ror:8 row_mask:0xf", "row_ror:4 row_mask:0xf", "row_ror:2 row_mask:0xf", "row_ror:1 row_mask:0xf", "row_bcast:15 row_mask:0xa", "row_bcast:31 row_mask:0xc"]:
        A("v_add_f32_dpp v%d, v%d, v%d %s bank_mask:0xf" % (a, a, a, ctl))
        A("v_add_f32_dpp v%d, v%d, v%d %s bank_mask:0xf" % (b, b, b, ctl))
        A(un.pop(0) if un else "s_nop 0")
    A("v_readlane_b32 s%d, v%d, 63" % (sSUM, a))
    A("v_readlane_b32 s%d, v%d, 63" % (sSQ, b))
    A("s_nop 0")
    A("v_mul_f32 v%d, s%d, v%d" % (t, sSUM, vZ))
    A("v_mul_f32 v%d, s%d, v%d" % (t + 1, sSQ, vZ))
    A("v_fma_f32 v%d, -v%d, v%d, v%d" % (t + 1, t, t, t + 1))
    A("v_max_f32 v%d, 0, v%d" % (t + 1, t + 1))

ool = []
uid = [0]
def maxtree(regs, tmp):
    r = list(regs); out = []
    out.append("v_max3_u32 v%d, v%d, v%d, v%d" % (tmp, r[0], r[1], r[2])); r = r[3:]
    if len(r) >= 5:
        out.append("v_max3_u32 v%d, v%d, v%d, v%d" % (tmp + 1, r[0], r[1], r[2])); r = r[3:]
        d = 0
        while len(r) >= 2:
            out.append("v_max3_u32 v%d, v%d, v%d, v%d" % (tmp + d, tmp + d, r[0], r[1])); r = r[2:]; d ^= 1
        if r: out.append("v_max3_u32 v%d, v%d, v%d, v%d" % (tmp, tmp, tmp + 1, r[0]))
        else: out.append("v_max_u32 v%d, v%d, v%d" % (tmp, tmp, tmp + 1))
    else:
        while len(r) >= 2:
            out.append("v_max3_u32 v%d, v%d, v%d, v%d" % (tmp, tmp, r[0], r[1])); r = r[2:]
        if r: out.append("v_max_u32 v%d, v%d, v%d" % (tmp, tmp, r[0]))
    return out

def poll(issue, regs, tmp, pre_wait=None, spec=None, back="s_nop 7", tag=None, stub=None):
    uid[0] += 1; u = uid[0]
    A("s_mov_b32 s%d, %s" % (sCNT, hx(SPIN)))
    LB("Lp%d" % u)
    issue()
    if pre_wait: pre_wait()
    A("s_waitcnt vmcnt(0)")
    mt = maxtree(regs, tmp) + ["v_cmp_eq_u32 vcc, -1, v%d" % tmp]
    spec = list(spec or [])
    ns = len(spec)
    per = -(-len(mt) // ns) if ns else 0
    for s in spec:
        A(s)
        for k in range(per):
            if mt: A(mt.pop(0))
    for m in mt: A(m)
    A("s_cbranch_vccz Ld%d" % u)
    A("s_sub_u32 s%d, s%d, 1" % (sCNT, sCNT))
    if back != "s_nop 7": A(back)
    A("s_cbranch_scc0 Lp%d" % u)
    if stub: touch_stub(stub)
    LB("Ld%d" % u)
    if DIAG and tag is not None:
        A("s_lshl_b32 m0, s%d, 2" % sLAY); A("s_add_u32 m0, m0, %d" % tag); A("s_nop 0")
        A("v_writelane_b32 v31, s%d, m0" % sCNT)

stubs = []
def touch_stub(name, branch_over=None):
    A("s_branch Lsk_%s" % name)
    L.append(".p2align 6")
    LB("Lst_%s" % name)
    A("s_setpc_b64 %s" % sr(sRET, 2))
    LB("Lsk_%s" % name)
    stubs.append(name)

def delay(cyc):
    if cyc == -1:
        A("s_waitcnt vmcnt(0)"); return
    while cyc >= 64:
        k = min(cyc // 64, 15); A("s_sleep %d" % k); cyc -= 64 * k
    if cyc >= 8: A("s_nop %d" % min(15, cyc // 4 - 1))

def ppoll(issue, regs, n, tmp, spec, pre=0, gap=128, mid=None, tag=None, fix=None, stub=None, lanes=None):
    uid[0] += 1; u = uid[0]
    def look(k):
        out = ["s_waitcnt vmcnt(%d)" % (n if k == 0 else 0)]
        mt = maxtree(regs(k), tmp) + ["v_cmp_eq_u32 vcc, -1, v%d" % tmp]
        sp = list(spec(k)); per = -(-len(mt) // len(sp)) if sp else 0
        for x in sp:
            out.append(x)
            for _ in range(per):
                if mt: out.append(mt.pop(0))
        return out + mt + (["s_and_b64 vcc, vcc, %s" % sr(lanes, 2)] if lanes else [])
    A("s_mov_b32 s%d, %s" % (sCNT, hx(SPIN)))
    delay(pre)
    fine = FINE and tag == int(FINE)
    if fine: CST(8)
    LB("Lp%d" % u)
    issue(0)
    if fine and 0: CST(9)
    if mid: mid()
    if gap >= 0: delay(gap)
    if gap >= 0: issue(1)
    lk = look(0)
    if gap < 0: lk[0] = "s_waitcnt vmcnt(0)"
    for k, x in enumerate(lk):
        A(x)
        if fine and k == 0: CST(13)
    if fine: CST(14)
    A("s_cbranch_vccz Ld%d" % u)
    if gap < 0: issue(1)
    A("s_sub_u32 s%d, s%d, 1" % (sCNT, sCNT))
    for x in look(1): A(x)
    for x in (fix or []): A(x)
    A("s_cbranch_vccz Ld%d" % u)
    A("s_sub_u32 s%d, s%d, 1" % (sCNT, sCNT))
    A("s_cmp_gt_i32 s%d, 0" % sCNT)
    A("s_cbranch_scc1 Lp%d" % u)
    if stub: touch_stub(stub)
    LB("Ld%d" % u)
    if fine: CST(15)
    if DIAG and tag is not None:
        A("s_lshl_b32 m0, s%d, 2" % sLAY); A("s_add_u32 m0, m0, %d" % tag); A("s_nop 0")
        A("v_writelane_b32 v31, s%d, m0" % sCNT)

def lds_spin(off, target, tmp, mask=None, sleep=0):
    uid[0] += 1; u = uid[0]
    A("s_mov_b32 s%d, %s" % (sT2, hx(SPIN * 4)))
    LB("Ls%d" % u)
    A("ds_read_b32 v%d, v%d offset:%d" % (tmp, vFL, off))
    A("s_waitcnt lgkmcnt(0)")
    A("v_readfirstlane_b32 s%d, v%d" % (sT1, tmp))
    if mask: A("s_and_b32 s%d, s%d, %d" % (sT0, sT1, mask))
    A("s_cmp_ge_u32 s%d, %d" % (sT0 if mask else sT1, target))
    A("s_cbranch_scc1 Lt%d" % u)
    if sleep: A("s_sleep %d" % sleep)
    A("s_sub_u32 s%d, s%d, 1" % (sT2, sT2))
    A("s_cbranch_scc0 Ls%d" % u)
    LB("Lt%d" % u)

def lds_arrive(off, tmp, val=1):
    if val is not None: A("v_mov_b32 v%d, %d" % (tmp, val))
    A("s_mov_b64 exec, 1")
    A("ds_add_u32 v%d, v%d offset:%d" % (vFL, tmp, off))
    A("s_mov_b64 exec, -1")

def store_local(op, data, vaddr, so):
    uid[0] += 1; u = uid[0]
    A("s_cbranch_scc1 Lw%d" % u)
    A("%s %s, v%d, %s, s%d offen" % (op, data, vaddr, sr(sWS, 4), so))
    LB("Lx%d" % u)
    ool.append(["Lw%d:" % u, "    %s %s, v%d, %s, s%d offen sc1" % (op, data, vaddr, sr(sWS, 4), so), "    s_branch Lx%d" % u])
def fastcmp(): A("s_cmp_eq_u32 s%d, 0" % sFAST)

def mf(d, a, b, c):
    return "v_mfma_f32_16x16x32_bf16 %s, %s, %s, %s" % (vr(d, 4), vr(a, 4), vr(b, 4), "0" if c is None else vr(c, 4))
def mfma(d, a, b, c): A(mf(d, a, b, c))

def tags():
    A("s_add_u32 s%d, s%d, 1" % (sTG1, sE))
    A("s_mul_i32 s%d, s%d, 0x9E3779B1" % (sTG2, sTG1))
    A("s_and_b32 s%d, s%d, -8" % (sTG2, sTG2))

def common_addr():
    A("v_and_b32 v18, 3, v%d" % vLANE)
    A("v_lshlrev_b32 v%d, 12, v17" % vQST)
    A("v_lshrrev_b32 v24, 1, v16")
    A("v_lshl_add_u32 v%d, v24, 8, v%d" % (vQST, vQST))
    A("v_and_b32 v24, 1, v16")
    A("v_lshl_add_u32 v%d, v24, 3, v%d" % (vQST, vQST))
    A("v_lshlrev_b32 v%d, 4, v24" % vLSE)
    A("s_mul_i32 s%d, s%d, %d" % (sT0, sW, XS))
    A("s_add_u32 s%d, s%d, %d" % (sT0, sT0, L_XN))
    A("v_add_u32 v%d, s%d, v%d" % (vXNW, sT0, vL16))
    A("s_lshl_b32 s%d, s%d, 8" % (sT0, sA))
    A("s_add_u32 s%d, s%d, %d" % (sT0, sT0, L_XN))
    A("v_mul_u32_u24 v25, %d, v18" % XS)
    A("v_lshl_add_u32 v25, v16, 4, v25")
    A("v_add_u32 v%d, s%d, v25" % (vXNR, sT0))
    A("v_mov_b32 v%d, %s" % (vZ, hx(f2u(1.0 / 512))))
    for r in range(4): A("v_mov_b32 v%d, 0x3f803f80" % (ONES + r))
    A("s_and_b32 s%d, s%d, 1" % (sT1, sC))
    A("s_lshr_b32 s%d, s%d, 1" % (sT2, sC))
    soff(sQS, [(sT1, 11), (sW, 9), (sA, 6), (sT2, 4)], 0)
    A("v_bfe_u32 v24, v%d, 2, 2" % vLANE)
    A("v_lshl_add_u32 v24, v16, 3, v24")
    A("v_lshlrev_b32 v24, 7, v24")
    A("v_bfe_u32 v25, v%d, 3, 2" % vLANE)
    A("v_lshlrev_b32 v25, 1, v25")
    A("v_bfe_u32 v26, v%d, 1, 1" % vLANE)
    A("v_xor_b32 v25, v25, v26")
    A("v_lshl_add_u32 v24, v25, 4, v24")
    A("v_and_b32 v26, 1, v%d" % vLANE)
    A("v_lshl_add_u32 v%d, v26, 3, v24" % vWT)
    A("s_mov_b32 s%d, 0x000f000f" % sMSK)
    A("s_mov_b32 s%d, 0x000f000f" % (sMSK + 1))
    A("s_mov_b32 s%d, 0" % sLAY)

def wtile_voff(shift, d):
    A("v_lshrrev_b32 v24, 3, v%d" % vLANE)
    A("v_and_b32 v25, 7, v%d" % vLANE)
    A("v_and_b32 v26, 1, v16")
    A("v_lshlrev_b32 v26, 1, v26")
    A("v_xor_b32 v25, v25, v26")
    A("v_lshlrev_b32 v25, 4, v25")
    A("v_lshl_add_u32 v%d, v24, %d, v25" % (d, shift))
    A("v_xor_b32 v%d, 64, v%d" % (d + 1, d))

def wqf_reads():
    A("s_lshl_b32 s%d, s%d, 5" % (sT1, sW))
    A("v_xor_b32 v26, s%d, v%d" % (sT1, vWT))
    for t in range(4):
        for hf in range(2):
            A("ds_read_b64_tr_b16 %s, v26 offset:%d" % (vr(WQF + 4 * t + 2 * hf, 2), L_WQ + 4096 * t + 512 * hf))

def dma(vaddr, srdn, so, lds_s, step_so, flags="nt"):
    A("s_mov_b32 m0, s%d" % lds_s)
    A("s_add_u32 s%d, s%d, 1024" % (lds_s, lds_s))
    A("buffer_load_dwordx4 v%d, %s, s%d offen %s lds" % (vaddr, sr(srdn, 4), so, flags))
    A("s_add_u32 s%d, s%d, %d" % (so, so, step_so))

hdr = open("cdna_kernels/%s.s.ref" % NAME).read().split("; Override launch")[0]
L.append(hdr.rstrip("\n"))
L.append("; @launch grid=(256,1,1) block=(512,1,1) lds=%d" % LDS_SZ)
L.append('.amdgcn_target "amdgcn-amd-amdhsa--gfx950"')
L.append(".text\n" + (".p2align 12\n" if int(OPT.get("al", 0)) else "") + ".globl %s_kernel\n.p2align 8\n.type %s_kernel,@function\n%s_kernel:" % (NAME, NAME, NAME))
if DIAG: A("s_memrealtime s[42:43]")
if DBL or TOT: A("s_memrealtime s[98:99]")
sM = 96
A("s_lshr_b32 s%d, s2, 8" % sT0)
A("s_cbranch_scc1 Lend")
A("s_load_dwordx2 %s, s[0:1], 24" % sr(sWQ, 2))
A("s_load_dwordx4 %s, s[0:1], 0" % sr(sT2, 4))
A("v_readfirstlane_b32 s%d, v0" % sW)
C("every wave pulls one line of this kernel's code into L2 (plain read): 32 workgroups x 4 lines")
A("s_getpc_b64 s[10:11]")
LB("Lpc0")
A("s_lshr_b32 s%d, s2, 3" % sM)
A("s_lshl_b32 s%d, s%d, 9" % (sCNT, sM))
A("s_cmp_lg_u32 s%d, 0" % sW)
A("s_cbranch_scc1 Lnopf")
A("v_and_b32 v19, 3, v0")
A("v_lshl_add_u32 v19, v19, 7, s%d" % sCNT)
A("global_load_dword v%d, v19, s[10:11]" % (W + 8))
LB("Lnopf")
A("s_and_b32 s%d, s2, 7" % sJ)
A("s_lshr_b32 s%d, s2, 6" % sA)
A("s_and_b32 s%d, s%d, 7" % (sC, sM))
A("s_lshl_b32 s%d, 1, 17" % (sWQ + 3))
A("s_bitcmp1_b32 s%d, 8" % sW)
A("s_cbranch_scc0 Lmain0")
vKA, vVA = W + 40, W + 44
sRO, sRM = sVO, 97 if not TOT else 94
if TOT: sRM = sOL
def kv_issue(i):
    A("s_add_u32 m0, s%d, s%d" % (sKL if i < 8 else sVL, sRO))
    A("s_add_u32 s%d, s%d, s%d" % (sCNT, sKO, sRO))
    if i < 8: A("buffer_load_dwordx4 v%d, %s, s%d offen nt lds" % (vKA + (i & 3), sr(sK, 4), sCNT))
    else: A("buffer_load_dwordx4 v%d, %s, s%d offen nt lds" % (vVA + (i & 1), sr(sV, 4), sCNT))
    A("s_addk_i32 s%d, %d" % (sRO, 1024 + (VROT * 1024 if i == 7 else 0)))
    A("s_and_b32 s%d, s%d, 0x1fff" % (sRO, sRO))
def lane_init():
    A("v_and_b32 v%d, 63, v0" % vLANE)
    A("v_mov_b32 v%d, %d" % (vFL, L_FLG))
    A("v_lshlrev_b32 v%d, 4, v%d" % (vL16, vLANE))
    A("v_lshrrev_b32 v16, 4, v%d" % vLANE)
    A("v_and_b32 v17, 15, v%d" % vLANE)
    A("v_mov_b32 v20, 0")
    if DIAG: A("v_mov_b32 v30, 0")
def main_early():
    LB("Lmain0")
    for s, off in [(sW1, 48), (sB1, 56), (sW2, 64)]:
        A("s_load_dwordx2 %s, s[0:1], %d" % (sr(s, 2), off))
    lane_init()
    A("v_mov_b32 v21, 0")
    for k in range(4): A("ds_write_b64 v%d, v[20:21] offset:%d" % (vFL, 8 * k))
    A("s_lshl_b32 s%d, 1, 25" % (sK + 2)); A("s_mov_b32 s%d, s%d" % (sK + 3, sWQ + 3))
    A("v_xor_b32 v18, v17, v16")
    A("v_lshlrev_b32 v18, 4, v18")
    A("v_lshl_add_u32 v%d, v16, 8, v18" % vKA)
    A("s_lshl_b32 s%d, s%d, %d" % (sRO, sC, 10 if ROT else 31))
    if not ROT: A("s_mov_b32 s%d, 0" % sRO)
    A("s_bfe_u32 s%d, s%d, 0x2000a" % (sT1, sRO))
    A("s_lshl_b32 s%d, s%d, 6" % (sT1, sT1))
    for k in range(1, 4):
        A("s_add_u32 s%d, s%d, %d" % (sCNT, sT1, 64 * k))
        A("s_and_b32 s%d, s%d, 0xc0" % (sCNT, sCNT))
        A("v_xor_b32 v%d, s%d, v%d" % (vKA + k, sCNT, vKA))
    A("v_xor_b32 v%d, s%d, v%d" % (vKA, sT1, vKA))
    soff(sKO, [(sA, 23), (sJ, 20), (sC, 15), (sW, 7)], 3072 * 256)
    A("s_add_u32 s%d, s%d, %d" % (sKL, sT0, L_K))
    A("s_waitcnt lgkmcnt(0)")
    A("s_mov_b64 %s, %s" % (sr(sK, 2), sr(sT4, 2)))
    for i in range(D0): kv_issue(i)
    C("lane k<3 of wave 3 pulls a slice of coefficient array k into L2")
    A("s_cmp_lg_u32 s%d, 192" % sW)
    A("s_cbranch_scc1 Lm_nopf")
    A("s_min_u32 s%d, s%d, 27" % (sT1, sM))
    A("s_lshl_b32 s%d, s%d, 7" % (sT1, sT1))
    A("v_mov_b32 v19, s%d" % sT1)
    A("s_mov_b64 exec, 1")
    for k, sd in enumerate([sW1, sB1, sW2]): A("global_load_dword v%d, v19, %s" % (W + 9 + k, sr(sd, 2)))
    A("s_mov_b64 exec, -1")
    LB("Lm_nopf")
    A("s_add_u32 s%d, s%d, %d" % (sVL, sT0, L_V))
    A("s_lshr_b32 s%d, s%d, 6" % (sW, sW))
    if DIAG: A("v_writelane_b32 v30, s42, 0")
    STAMP(10)
    A("s_branch Lmain")

C("---- helper waves: first q projection, then the table of g over bf16 inputs ----")
HW1, HB1, HW2 = 32, 60, 112
hK0, hK1, hONE, hRES = 88, 90, 92, 94
AC = [140, 142]
A("s_load_dwordx2 %s, s[0:1], 96" % sr(sWS, 2))
C("wq tile DMA: instruction i, thread t' = t-256: row 32 i + (t'>>3), 16-byte chunk (t'&7) ^ swizzle")
A("v_bfe_u32 v23, v0, 3, 5")
A("v_and_b32 v22, 7, v0")
A("v_and_b32 v24, 2, v23")
A("v_lshrrev_b32 v25, 1, v23")
A("v_and_or_b32 v24, v25, 4, v24")
A("v_xor_b32 v22, v22, v24")
A("v_lshlrev_b32 v22, 4, v22")
A("v_lshl_add_u32 v22, v23, 13, v22")
soff(sQL, [(sA, 20), (sJ, 10), (sC, 7)], 0)
A("s_lshl_b32 s%d, 1, 22" % (sWQ + 2))
A("s_lshl_b32 s%d, 1, 18" % sT1)
A("s_lshl_b32 s%d, s%d, 4" % (sQS, sW))
A("s_add_u32 m0, s%d, %d" % (sQS, L_WQ - 4096))
A("v_lshlrev_b32 v21, 4, v0")
if DIAG: A("s_memrealtime s[88:89]")
A("s_waitcnt lgkmcnt(0)")
if DIAG: A("s_memrealtime s[90:91]")
A("global_load_dwordx4 %s, v21, %s offset:-4096" % (vr(XR, 4), sr(sT2, 2)))
for i in range(4):
    if i:
        A("s_addk_i32 m0, 0x1000")
        A("s_add_u32 s%d, s%d, s%d" % (sQL, sQL, sT1))
    A("buffer_load_dwordx4 v22, %s, s%d offen nt lds" % (sr(sWQ, 4), sQL))
if DIAG: A("s_memrealtime s[92:93]")
lane_init()
A("s_bfe_u32 s%d, s%d, 0x20006" % (sW, sW))
A("s_lshl_b32 s%d, s%d, 10" % (sT3, sW))
srd(sWS, WS_SZ)
C("early sentinels (O0, LSE0): hw0 1024 B, the others 16 B")
for i in range(4): A("v_mov_b32 v%d, -1" % (PM + i))
A("s_mul_i32 s%d, s%d, %d" % (sT5, sM, CLRA_PER))
A("s_lshl_b32 s%d, s%d, 17" % (sGR, sJ))
A("s_add_u32 s%d, s%d, s%d" % (sT5, sT5, sGR))
A("s_add_u32 s%d, s%d, 1024" % (sT4, sT5))
A("s_cmp_ge_u32 s%d, 2" % sW)
A("s_cbranch_scc1 Lhc_skip")
A("s_cmp_eq_u32 s%d, 0" % sW)
A("s_cselect_b32 s%d, s%d, s%d" % (sT5, sT5, sT4))
A("s_cselect_b64 exec, -1, 1")
A("buffer_store_dwordx4 %s, v%d, %s, s%d offen sc1" % (vr(PM, 4), vL16, sr(sWS, 4), sT5))
LB("Lhc_skip")
A("s_mov_b64 exec, -1")
A("s_branch Lhelp2")
main_early()
LB("Lhelp2")
if QT:
    C("touch 2 lines of the tagged q mailbox per wave so that they sit in L2 before they are written")
    soff(sT4, [(sM, 10), (sW, 8), (sJ, 17)], Q0_OFF)
    A("v_lshlrev_b32 v24, 7, v%d" % vLANE)
    A("s_mov_b64 exec, 3")
    A("buffer_load_dword v%d, v24, %s, s%d offen" % (RES + 1, sr(sWS, 4), sT4))
A("s_mov_b64 exec, -1")
if HP: A("s_setprio 3")
A("s_load_dword s%d, %s, %s" % (sE, sr(sWS, 2), hx(EPO)))
A("s_load_dwordx2 %s, s[0:1], 72" % sr(sB2P, 2))
if DIAG:
    A("v_writelane_b32 v30, s42, 0")
    A("s_waitcnt lgkmcnt(0)")
    A("v_mov_b32 v31, 0")
    A("v_writelane_b32 v31, s88, 0"); A("v_writelane_b32 v31, s90, 1"); A("v_writelane_b32 v31, s92, 2")
STAMP(9)
A("s_barrier")
A("s_lshl_b32 s%d, s2, 2" % sHC)
A("s_add_u32 s%d, s%d, s%d" % (sHC, sHC, sW))
A("s_mul_i32 s%d, s%d, %d" % (sHC, sHC, EPW))
A("s_lshl_b32 s%d, s%d, 3" % (sHT, sHC))
A("s_add_u32 s%d, s%d, %s" % (sHT, sHT, hx(TB)))
A("s_add_u32 s%d, s%d, %d" % (sHC, sHC, ELO * 128))
A("s_lshl_b32 s%d, s%d, 16" % (sHC, sHC))
A("v_lshlrev_b32 v27, 2, v%d" % vLANE)
common_addr()
A("s_lshl_b32 s%d, s%d, 1" % (sQS, sQS))
A("s_add_u32 s%d, s%d, s%d" % (sQS, sQS, sGR))
A("s_add_u32 s%d, s%d, %s" % (sQS, sQS, hx(Q0_OFF)))
A("v_lshlrev_b32 v%d, 1, v%d" % (vQST, vQST))
A("s_getreg_b32 s%d, hwreg(HW_REG_XCC_ID, 0, 3)" % sXCC)
for r, c in [(hK0, K0), (hK1, K1), (hONE, 1.0)]:
    A("v_mov_b32 v%d, %s" % (r, hx(f2u(c)))); A("v_mov_b32 v%d, %s" % (r + 1, hx(f2u(c))))
A("v_mov_b32 v%d, 0" % hRES)
A("s_mov_b32 s%d, 0" % sIT)
if DRY:
    C("dry run of the q-projection code while its inputs are in flight (instruction cache warm-up; no side effects)")
    A("s_mov_b32 s%d, 1" % sIT)
    A("s_branch Llnq")
    LB("Ldry_done")
    A("s_mov_b64 exec, -1")
    A("s_mov_b32 s%d, 0" % sIT)
if WARM:
    C("warm the instruction cache lines at the far jump targets of the main waves")
    for k, nm in enumerate(["k", "fin", "out", "tab"]):
        A("s_cmp_lg_u32 s%d, %d" % (sW, k))
        A("s_cbranch_scc1 Lwm%d" % k)
        A("s_call_b64 %s, Lst_%s" % (sr(sRET, 2), nm))
        LB("Lwm%d" % k)
A("s_cmp_ge_u32 s%d, 2" % sW)
A("s_cbranch_scc0 Lhx5")
A("s_waitcnt vmcnt(%d)" % (4 + QT))
LB("Lhx5")
A("s_waitcnt vmcnt(%d)" % (5 + QT))
STAMP(1)
A("s_branch Llnq")
LB("Lq_first")
if DRY:
    A("s_cmp_lg_u32 s%d, 0" % sIT)
    A("s_cbranch_scc1 Lq_dry")
A("s_waitcnt vmcnt(0) lgkmcnt(0)")
STAMP(2)
lds_arrive(0, vT + 4)
tags()
A("s_or_b32 s%d, s%d, s%d" % (sXCC, sXCC, sTG2))
C("4 helper arrivals (wq tile, xn rows) + 4 main arrivals (coefficients landed, sentinels acknowledged)")
lds_spin(0, 4, vT + 4)
STAMP(6)
LB("Lq_dry")
wqf_reads()
A("s_waitcnt lgkmcnt(0)")
A("s_branch Lq_go")
LB("Lh_qst")
if DRY:
    A("s_cmp_lg_u32 s%d, 0" % sIT)
    A("s_cbranch_scc1 Ldry_done")
STAMP(5)
A("v_mov_b32 v%d, s%d" % (W + 6, sTG1))
A("v_mov_b32 v%d, s%d" % (W + 7, sXCC))
A("buffer_store_dwordx4 %s, v%d, %s, s%d offen%s" % (vr(W + 4, 4), vQST, sr(sWS, 4), sQS, "" if int(OPT.get("fast", 1)) else " sc1"))
A("s_add_u32 s%d, s%d, %s" % (sQS, sQS, hx(QB_DELTA)))
A("buffer_store_dwordx4 %s, v%d, %s, s%d offen sc1" % (vr(W + 4, 4), vQST, sr(sWS, 4), sQS))
A("s_mov_b64 exec, -1")
HR = W + 8
if ADP: lds_arrive(28, 24)
if HP: A("s_setprio 0")
STAMP(3)
A("v_lshlrev_b32 v26, 3, v%d" % vLANE)
lds_spin(24, 4, 24, sleep=1)
for a_ in range(3):
    for k in range(3):
        A("ds_read_b128 %s, v%d offset:%d" % (vr(HR + 14 * a_ + 4 * k, 4), vL16, 4096 * a_ + 1024 * k))
    A("ds_read_b64 %s, v26 offset:%d" % (vr(HR + 14 * a_ + 12, 2), 4096 * a_ + 3072))
for a_, d in [(0, HW1), (14, HB1), (28, HW2)]:
    A("s_waitcnt lgkmcnt(%d)" % (8 - 4 * (a_ // 14)))
    for p in range(14):
        A("v_lshlrev_b32 v%d, 16, v%d" % (d + 2 * p, HR + a_ + p))
        A("v_and_b32 v%d, 0xffff0000, v%d" % (d + 2 * p + 1, HR + a_ + p))
A("s_load_dword s%d, %s, 0" % (sB2, sr(sB2P, 2)))
STAMP(4)
if DIAG:
    A("s_memtime s[42:43]"); A("s_waitcnt lgkmcnt(0)"); A("v_writelane_b32 v30, s42, 13")
LB("Lhl")
if DIAG:
    A("s_memrealtime s[42:43]"); A("s_add_u32 m0, s%d, 10" % sIT); A("s_waitcnt lgkmcnt(0)"); A("v_writelane_b32 v30, s42, m0")
A("s_mov_b32 s%d, s%d" % (sH, sHC)); A("s_mov_b32 s%d, s%d" % (sH + 1, sHC))
A("s_xor_b32 s%d, s%d, 0x80000000" % (sH2, sHC)); A("s_mov_b32 s%d, s%d" % (sH2 + 1, sH2))
U4 = [144, 146, 148, 150]; T4 = [152, 154, 156, 158]; Z4 = [160, 162, 164, 166]
for p2 in range(7):
    ch = [(2 * p2 + k // 2, k & 1) for k in range(4)]
    for k, (p, sg) in enumerate(ch):
        A("v_pk_fma_f32 %s, %s, %s, %s" % (vr(U4[k], 2), vr(HW1 + 2 * p, 2), sr([sH, sH2][sg], 2), vr(HB1 + 2 * p, 2)))
    for k in range(4): A("v_pk_mul_f32 %s, %s, %s" % (vr(T4[k], 2), vr(U4[k], 2), vr(U4[k], 2)))
    for k in range(4): A("v_pk_fma_f32 %s, %s, %s, %s" % (vr(T4[k], 2), vr(T4[k], 2), vr(hK1, 2), vr(hK0, 2)))
    for k in range(4): A("v_pk_mul_f32 %s, %s, %s" % (vr(T4[k], 2), vr(T4[k], 2), vr(U4[k], 2)))
    for k in range(4):
        for h in range(2): A("v_exp_f32 v%d, v%d" % (T4[k] + h, T4[k] + h))
    for k, (p, sg) in enumerate(ch): A("v_pk_mul_f32 %s, %s, %s" % (vr(Z4[k], 2), vr(U4[k], 2), vr(HW2 + 2 * p, 2)))
    for k in range(4): A("v_pk_add_f32 %s, %s, %s" % (vr(T4[k], 2), vr(T4[k], 2), vr(hONE, 2)))
    for k in range(4):
        for h in range(2): A("v_rcp_f32 v%d, v%d" % (T4[k] + h, T4[k] + h))
    for k, (p, sg) in enumerate(ch):
        if p == 0: A("v_pk_mul_f32 %s, %s, %s" % (vr(AC[sg], 2), vr(Z4[k], 2), vr(T4[k], 2)))
        else: A("v_pk_fma_f32 %s, %s, %s, %s" % (vr(AC[sg], 2), vr(Z4[k], 2), vr(T4[k], 2), vr(AC[sg], 2)))
A("v_add_f32 v%d, v%d, v%d" % (AC[0], AC[0], AC[0] + 1))
A("v_add_f32 v%d, v%d, v%d" % (AC[1], AC[1], AC[1] + 1))
A("s_lshl_b32 m0, s%d, 1" % sIT)
A("s_add_u32 s%d, s%d, 0x10000" % (sHC, sHC))
wave_sum2(AC[0], AC[1], sSUM, sSQ)
A("s_add_u32 s%d, s%d, 1" % (sIT, sIT))
A("s_nop 0")
A("v_writelane_b32 v%d, s%d, m0" % (hRES, sSUM))
A("s_add_u32 m0, m0, 1")
A("s_cmp_lg_u32 s%d, %d" % (sIT, EPW))
A("v_writelane_b32 v%d, s%d, m0" % (hRES, sSQ))
A("s_cbranch_scc1 Lhl")
if DIAG:
    A("s_memtime s[42:43]"); A("s_waitcnt lgkmcnt(0)"); A("v_writelane_b32 v30, s42, 14")
    STAMP(15)
A("s_waitcnt lgkmcnt(0)")
A("s_lshl_b32 s%d, s%d, 16" % (sB2, sB2))
A("v_cvt_pk_bf16_f32 v%d, v%d, v%d" % (hRES, hRES, hRES))
A("v_and_b32 v%d, 0xffff0000, v%d" % (hRES, hRES))
A("v_add_f32 v%d, s%d, v%d" % (hRES, sB2, hRES))
A("v_cvt_pk_bf16_f32 v%d, v%d, v%d" % (hRES, hRES, hRES))
A("v_and_b32 v%d, 0xffff0000, v%d" % (hRES, hRES))
lds_spin(8, 4, 24)
A("s_bfm_b64 exec, %d, 0" % (2 * EPW))
A("buffer_store_dword v%d, v27, %s, s%d offen sc1" % (hRES, sr(sWS, 4), sHT))
A("s_mov_b64 exec, -1")
STAMP(7)
if DIAG:
    A("s_add_u32 s%d, s%d, 4" % (sW, sW))
    A("v_mov_b32 v28, v30")
    A("s_branch Lfin_exit")
A("s_endpgm")

LB("Lmain")
for s, off in [(sWS, 96), (sV, 16), (sWO, 32), (sOUT, 80), (sX, 0), (sB2P, 72)]:
    A("s_load_dwordx2 %s, s[0:1], %d" % (sr(s, 2), off))
if DIAG == 2: A("s_load_dwordx2 s[100:101], s[0:1], 88")
srd(sWS, WS_SZ)
for s in [sW1, sB1, sW2]: srd(s, 3584)
A("s_lshl_b32 s%d, s%d, 10" % (sT3, sW))
A("s_barrier")
for i in range(D0, DC): kv_issue(i)
A("s_mov_b32 m0, s%d" % sT3)
for i, sd in enumerate([sW1, sB1, sW2]):
    if i: A("s_addk_i32 m0, 0x1000")
    A("s_nop 0")
    A("buffer_load_dwordx4 v%d, %s, s%d offen lds" % (vL16, sr(sd, 4), sT3))
for i in range(DC, D1): kv_issue(i)
for i in range(4): A("v_mov_b32 v%d, -1" % (W + i))
A("s_lshl_b32 s%d, s%d, 17" % (sGR, sJ))
A("s_mov_b32 s%d, s%d" % (sT1, sM))
A("s_waitcnt lgkmcnt(0)")
A("s_load_dword s%d, %s, %s" % (sE, sr(sWS, 2), hx(EPO)))
STAMP(11)
for s, n in [(sV, 1 << 25), (sX, 4096), (sWO, 1 << 22), (sOUT, 4096)]: srd(s, n)
A("v_lshlrev_b32 v18, 1, v16")
A("v_xor_b32 v18, v17, v18")
A("v_lshlrev_b32 v18, 4, v18")
A("v_lshl_add_u32 v%d, v16, 8, v18" % vVA)
if ROT:
    A("s_and_b32 s%d, s%d, 1" % (sT0, sC))
    A("s_lshl_b32 s%d, s%d, 7" % (sT0, sT0))
    A("v_xor_b32 v%d, s%d, v%d" % (vVA, sT0, vVA))
A("v_xor_b32 v%d, 128, v%d" % (vVA + 1, vVA))
C("late sentinels: wave 0,1: group region ; wave 2: P chunk")
A("s_lshr_b32 s%d, s2, 3" % sT1)
A("s_mul_i32 s%d, s%d, %d" % (sT1, sT1, CLRB_PER))
A("s_lshl_b32 s%d, s%d, 10" % (sT0, sW))
A("s_add_u32 s%d, s%d, s%d" % (sT1, sT1, sT0))
A("s_add_u32 s%d, s%d, s%d" % (sT1, sT1, sGR))
A("s_add_u32 s%d, s%d, %d" % (sT1, sT1, CLRB_OFF))
A("s_lshl_b32 s%d, s2, 10" % sT0)
A("s_add_u32 s%d, s%d, %s" % (sT0, sT0, hx(PB)))
A("s_cmp_ge_u32 s%d, 2" % sW)
A("s_cselect_b32 s%d, s%d, s%d" % (sT1, sT0, sT1))
A("s_bfm_b64 %s, %d, 0" % (sr(sH, 2), (CLRB_PER - 1024) // 16))
A("s_cmp_eq_u32 s%d, 1" % sW)
A("s_cselect_b64 %s, %s, -1" % (sr(sH, 2), sr(sH, 2)))
A("s_mul_i32 s%d, s2, %d" % (sT0, NENT * 4 // 256))
A("s_add_u32 s%d, s%d, %s" % (sT0, sT0, hx(TB)))
A("s_cmp_eq_u32 s%d, 3" % sW)
A("s_cselect_b32 s%d, s%d, s%d" % (sT1, sT0, sT1))
A("s_cselect_b64 exec, %d, %s" % ((1 << (NENT * 4 // 256 // 16)) - 1, sr(sH, 2)))
A("buffer_store_dwordx4 %s, v%d, %s, s%d offen sc1" % (vr(W, 4), vL16, sr(sWS, 4), sT1))
A("s_mov_b64 exec, -1")

common_addr()
A("s_add_u32 s%d, s%d, s%d" % (sQS, sQS, sGR))
A("s_add_u32 s%d, s%d, %d" % (sQS, sQS, Q1_OFF))
wtile_voff(10, 22)
A("v_and_b32 v19, 7, v%d" % vLANE)
A("v_lshrrev_b32 v25, 2, v%d" % vLANE)
A("v_lshlrev_b32 v25, 7, v25")
A("v_lshl_add_u32 v%d, v18, 2, v25" % vOST)
A("v_lshlrev_b32 v25, 7, v16")
A("v_lshl_add_u32 v%d, v19, 4, v25" % vOLD)
C("lanes n>=8 of the first two o loads fetch the lse values instead: offset relative to the o block")
A("s_mul_i32 s%d, s%d, %d" % (sT0, sA, 128 - 8192))
A("s_mul_i32 s%d, s%d, %d" % (sT1, sW, 32 - 2048))
A("s_add_u32 s%d, s%d, s%d" % (sT0, sT0, sT1))
A("s_add_u32 s%d, s%d, %d" % (sT0, sT0, LSE_OFF[0] - O_OFF[0]))
A("v_add_u32 v25, s%d, v%d" % (sT0, vLSE))
A("v_xor_b32 v26, 16, v25")
A("v_add_u32 v26, -512, v26")
A("v_cmp_gt_u32 vcc, 8, v17")
A("s_nop 1")
A("v_cndmask_b32 v%d, v25, v%d, vcc" % (vLSE, vOLD))
A("v_cndmask_b32 v%d, v26, v%d, vcc" % (vLS2, vOLD))
A("v_lshlrev_b32 v%d, 1, v%d" % (vPST, vLANE))
A("v_lshlrev_b32 v25, 3, v16")
A("v_lshl_add_u32 v%d, v19, 4, v25" % vX1S)
A("s_mul_i32 s%d, s%d, %d" % (sT0, sW, RBS))
A("s_add_u32 s%d, s%d, %d" % (sT0, sT0, L_RB))
A("v_mul_u32_u24 v25, 528, v18")
A("v_lshl_add_u32 v25, v16, 4, v25")
A("v_lshrrev_b32 v26, 2, v17")
A("v_lshl_add_u32 v25, v26, 7, v25")
A("v_add_u32 v%d, s%d, v25" % (vRBW, sT0))
A("s_mul_i32 s%d, s%d, 528" % (sT0, sW))
A("s_add_u32 s%d, s%d, %d" % (sT0, sT0, L_RB))
A("v_lshlrev_b32 v25, 3, v%d" % vLANE)
A("v_add_u32 v%d, s%d, v25" % (vRBR, sT0))
A("s_lshl_b32 s%d, s%d, 3" % (sT0, sW))
A("s_add_u32 s%d, s%d, %d" % (sT0, sT0, L_ML))
A("v_lshlrev_b32 v25, 5, v18")
A("v_add_u32 v%d, s%d, v25" % (vMLW, sT0))
A("s_lshl_b32 s%d, s%d, 5" % (sT0, sW))
A("s_add_u32 s%d, s%d, %d" % (sT0, sT0, L_ML))
A("v_mov_b32 v%d, s%d" % (vMLR, sT0))
A("v_mov_b32 v25, 0x3f80")
A("v_mov_b32 v26, 0x3f800000")
for r in range(4):
    A("v_cmp_eq_u32 vcc, %d, v17" % (2 * r))
    A("v_cmp_eq_u32 %s, %d, v17" % (sr(sH, 2), 2 * r + 1))
    A("s_nop 0")
    A("v_cndmask_b32 v%d, 0, v25, vcc" % (SEL + r))
    A("v_cndmask_b32 v%d, v%d, v26, %s" % (SEL + r, SEL + r, sr(sH, 2)))
for i in range(16): A("v_mov_b32 v%d, 0" % (PM + i))
for p in range(4):
    A("s_mov_b32 s%d, %s" % (sPM + 2 * p, hx(0x000f000f << (4 * p))))
    A("s_mov_b32 s%d, %s" % (sPM + 2 * p + 1, hx(0x000f000f << (4 * p))))
soff(sOS, [(sW, 13), (sA, 11), (sC, 4), (sJ, 17)], O_OFF[0])
soff(sOL, [(sA, 13), (sW, 11), (sJ, 17)], O_OFF[0])
A("s_add_u32 s%d, s%d, %s" % (sQL, sOL, hx(Q0_OFF - O_OFF[0])))
soff(sLS, [(sW, 7), (sA, 5), (sC, 2), (sJ, 17)], LSE_OFF[0])
soff(sPS, [(sW, 15), (sC, 12), (sJ, 9), (sA, 7)], PB)
A("s_mov_b32 s%d, %s" % (sSC, hx(f2u(128 ** -0.5 * math.log2(math.e)))))
A("s_getreg_b32 s%d, hwreg(HW_REG_XCC_ID, 0, 3)" % sXCC)
A("v_xor_b32 v24, v16, v17")
A("v_lshlrev_b32 v24, 4, v24")
A("v_lshl_add_u32 v24, v17, 8, v24")
A("s_lshl_b32 s%d, s%d, 13" % (sT1, sW))
A("s_add_u32 s%d, s%d, %d" % (sT2, sT1, L_K))
for t in range(4): A("v_xor_b32 v%d, %d, v24" % (18 + t, 64 * t))
for t in range(4): A("v_add_u32 v%d, s%d, v%d" % (18 + t, sT2, 18 + t))
VA = W + 32
A("v_lshrrev_b32 v24, 2, v%d" % vLANE)
A("v_and_b32 v25, 7, v24")
A("v_lshlrev_b32 v25, 1, v25")
A("v_bfe_u32 v26, v%d, 1, 1" % vLANE)
A("v_xor_b32 v25, v25, v26")
A("v_lshlrev_b32 v25, 4, v25")
A("v_lshl_add_u32 v25, v24, 8, v25")
A("v_and_b32 v26, 1, v%d" % vLANE)
A("v_lshl_add_u32 v25, v26, 3, v25")
A("s_add_u32 s%d, s%d, %d" % (sT2, sT1, L_V))
for t in range(8): A("v_xor_b32 v%d, %d, v25" % (VA + t, 32 * t))
for t in range(8): A("v_add_u32 v%d, s%d, v%d" % (VA + t, sT2, VA + t))
soff(sT4, [(sJ, 19), (sA, 17), (sW, 15), (sC, 7)], 0)
A("s_lshl_b32 s%d, s%d, 12" % (sT5, sW))
A("s_add_u32 s%d, s%d, %d" % (sT5, sT5, L_WO))
soff(sT3, [(sA, 10), (sC, 7)], 0)
A("v_lshlrev_b32 v24, 5, v%d" % vLANE)
A("s_lshl_b32 s%d, s%d, 10" % (sT2, sW))
A("s_add_u32 s%d, s%d, %d" % (sT2, sT2, L_QF))
A("v_add_u32 v25, s%d, v%d" % (sT2, vL16))
A("v_add_u32 v26, %d, v%d" % (L_QF, vL16))
STAMP(12)
if DIAG: A("v_mov_b32 v31, v30")
QP = W
def q0_issue(QP=QP):
    A("buffer_load_dwordx4 %s, v24, %s, s%d offen sc1" % (vr(QP, 4), sr(sWS, 4), sQL))
    A("buffer_load_dwordx4 %s, v24, %s, s%d offen offset:16 sc1" % (vr(QP + 4, 4), sr(sWS, 4), sQL))
def flag_block():
    if True:
        A("s_cmp_lg_u32 s%d, 0" % sW)
        A("s_cbranch_scc1 Lnoflag")
        C("every sentinel store of this workgroup is acknowledged: announce it")
        lds_spin(8, 4, vT)
        A("v_mov_b32 v16, s%d" % sTG1)
        A("v_mov_b32 v17, s%d" % sXCC)
        soff(sT1, [(2, 4)], FB)
        A("v_mov_b32 v21, 0")
        A("s_mov_b64 exec, 1")
        A("buffer_store_dwordx2 v[16:17], v21, %s, s%d offen sc1" % (sr(sWS, 4), sT1))
        A("s_mov_b64 exec, -1")
        LB("Lnoflag")
C("coefficients landed -> tell the helpers")
young = D1 - DC + 1
told = False
A("s_mov_b32 s%d, 0" % sY)
for i in range(D1, 16):
    dp = DEPTH if i < TAILI else TAILD
    extra = 1 if i == 16 - QV else 0
    if ADP and told:
        C("stay shallow until the helpers have issued their q stores")
        A("s_cmp_lg_u32 s%d, 0" % sY)
        A("s_cbranch_scc1 Ldp%d" % i)
        A("ds_read_b32 v%d, v%d offset:28" % (vT, vFL))
        A("s_waitcnt lgkmcnt(0)")
        A("v_readfirstlane_b32 s%d, v%d" % (sT1, vT))
        A("s_cmp_ge_u32 s%d, 4" % sT1)
        A("s_cselect_b32 s%d, 1, 0" % sY)
        A("s_cbranch_scc1 Ldp%d" % i)
        A("s_waitcnt vmcnt(%d)" % (dp - 1 - 2 * extra))
        LB("Ldp%d" % i)
        A("s_waitcnt vmcnt(%d)" % (ADP - 1 - 2 * extra))
        if extra: q0_issue(); young += 2
    else:
        if extra:
            A("s_waitcnt vmcnt(%d)" % (dp - 2)); q0_issue(); young += 2
        A("s_waitcnt vmcnt(%d)" % (dp - 1))
    if not told and young >= dp - 1:
        lds_arrive(24, vT); told = True
    kv_issue(i); young += 1
assert told
q0_issue(QP + 8)
C("everything older than the V loads is complete: K, late sentinels")
A("s_waitcnt vmcnt(12)")
lds_arrive(8, vT)
A("s_waitcnt lgkmcnt(0)")
tags()
A("s_or_b32 s%d, s%d, s%d" % (sXCC, sXCC, sTG2))
STAMP(1)
for t in range(4):
    for T in range(2):
        A("ds_read_b128 %s, v%d offset:%d" % (vr(KF + 16 * T + 4 * t, 4), 18 + t, 4096 * T))
flag_block()
def wait_w0(n):
    uid[0] += 1
    A("s_cmp_eq_u32 s%d, 0" % sW)
    A("s_cbranch_scc1 Lww%d" % uid[0])
    A("s_waitcnt vmcnt(%d)" % n)
    LB("Lww%d" % uid[0])
    A("s_waitcnt vmcnt(%d)" % (n + 1))
wait_w0(QV + 2)
STAMP(2)
A("s_setprio 2")
A("s_mov_b32 s%d, %s" % (sCNT, hx(SPIN)))
A("s_mov_b32 s%d, 0" % sY)
LB("Lmq")
A("v_and_b32 v16, -8, v%d" % (QP + 3))
A("v_and_b32 v17, -8, v%d" % (QP + 7))
A("v_cmp_ne_u32 vcc, s%d, v%d" % (sTG1, QP + 2))
A("v_cmp_ne_u32 %s, s%d, v%d" % (sr(sRET, 2), sTG1, QP + 6))
A("s_or_b64 vcc, vcc, %s" % sr(sRET, 2))
A("v_cmp_ne_u32 %s, s%d, v16" % (sr(sRET, 2), sTG2))
A("s_or_b64 vcc, vcc, %s" % sr(sRET, 2))
A("v_cmp_ne_u32 %s, s%d, v17" % (sr(sRET, 2), sTG2))
A("s_or_b64 vcc, vcc, %s" % sr(sRET, 2))
if not int(OPT.get("nochk", 0)): A("s_cbranch_vccnz Lmqr")
LB("Lmqd")
if DIAG:
    A("s_sub_u32 s%d, s%d, s%d" % (sT0, sCNT, sY)); A("v_writelane_b32 v31, s%d, 0" % sT0)
Ls = L; L = []
LB("Lmqr")
A("s_cmp_lg_u32 s%d, 0" % sY)
A("s_cbranch_scc1 Lmqr2")
C("first look failed: take the second one (V has landed with it: request its fragments now)")
A("s_waitcnt vmcnt(0)")
A("s_mov_b32 s%d, 1" % sY)
for k in range(8): A("v_mov_b32 v%d, v%d" % (QP + k, QP + 8 + k))
for t in range(8):
    for hf in range(2):
        A("ds_read_b64_tr_b16 %s, v%d offset:%d" % (vr(VF + 4 * t + 2 * hf, 2), VA + t, 4096 * hf))
A("s_branch Lmq")
LB("Lmqr2")
C("still not there: poll the plain copy a few times, then the write-through copy")
A("s_cmp_eq_u32 s%d, %s" % (sCNT, hx(SPIN - 8)))
A("s_cselect_b32 s%d, %s, 0" % (sT0, hx(QB_DELTA)))
A("s_add_u32 s%d, s%d, s%d" % (sQL, sQL, sT0))
q0_issue()
A("s_waitcnt vmcnt(0)")
A("s_sub_u32 s%d, s%d, 1" % (sCNT, sCNT))
A("s_cbranch_scc0 Lmq")
A("s_branch Lmqd")
ool.append(L); L = Ls
A("v_cmp_ne_u32 vcc, s%d, v%d" % (sXCC, QP + 3))
A("v_mov_b32 v%d, v%d" % (QP + 2, QP + 4))
A("v_mov_b32 v%d, v%d" % (QP + 3, QP + 5))
A("ds_write_b128 v25, %s" % vr(QP, 4))
A("s_cmp_eq_u64 vcc, 0")
A("s_cselect_b32 s%d, 1, 0x101" % sT0)
A("v_mov_b32 v16, s%d" % sT0)
A("s_waitcnt lgkmcnt(0)")
lds_arrive(4, 16, None)
STAMP(15)
A("buffer_load_dwordx2 %s, v%d, %s, s%d offen" % (vr(RES + 2, 2), vX1S, sr(sX, 4), sT3))
FLG = W + 44
soff(sIT, [(sW, 10)], FB)
soff(sQL, [(sA, 12), (sJ, 17)], Q1_OFF)
for k in range(4):
    A("s_add_u32 s%d, s%d, %d" % (sT0, sC, k))
    A("s_and_b32 s%d, s%d, 3" % (sT0, sT0))
    A("s_lshl_b32 s%d, s%d, 10" % (sKO + k, sT0))
A("s_and_b32 s%d, s%d, 1" % (sT0, sC))
A("s_lshl_b32 s%d, s%d, 6" % (sT0, sT0))
A("v_xor_b32 v22, s%d, v22" % sT0); A("v_xor_b32 v23, s%d, v23" % sT0)
A("s_lshl_b32 s%d, s%d, 2" % (sT3, sM))
A("s_add_u32 s%d, s%d, s%d" % (sT3, sT3, sW))
A("s_mul_i32 s%d, s%d, 768" % (sT3, sT3))
A("s_add_u32 s%d, s%d, s%d" % (sT3, sT3, sGR))
A("v_lshlrev_b32 v21, 7, v%d" % vLANE)
lds_spin(4, 4, vT, mask=0xff)
A("s_cmp_lt_u32 s%d, 256" % sT1)
A("s_cselect_b32 s%d, %d, 0" % (sFAST, int(OPT.get("fast", 1))))
QF = W + 16
for t in range(4):
    A("ds_read_b128 %s, v26 offset:%d" % (vr(QF + 4 * t, 4), 1024 * t))
S = W
qk = []
for t in range(4):
    for T in range(2):
        qk.append(mf(S + 4 * T, KF + 16 * T + 4 * t, QF + 4 * t, None if t == 0 else S + 4 * T))
for t in range(4):
    A("s_waitcnt lgkmcnt(%d)" % (3 - t))
    A(qk[2 * t]); A(qk[2 * t + 1])
C("every wave holds its K fragments: the wo tile may land in the K area")
for k in range(4):
    A("s_add_u32 m0, s%d, s%d" % (sT5, sKO + k))
    A("s_lshl3_add_u32 s%d, s%d, s%d" % (sT0, sKO + k, sT4))
    A("buffer_load_dwordx4 v%d, %s, s%d offen nt lds" % (22 + (k & 1), sr(sWO, 4), sT0))
if PRET:
    C("bring the (cleared) group mailbox lines into L2")
    A("s_mov_b64 exec, 63")
    A("buffer_load_dword v%d, v21, %s, s%d offen sc1" % (W + 40, sr(sWS, 4), sT3))
    A("s_mov_b64 exec, -1")
STAMP(3)
A("s_branch Lk_go")

LB("Llnq")
C("LayerNorm of the row held in XR, then q partial = xn @ wq tile")
X = W
row_stats(XR, vT, X)
A("v_add_f32 v%d, %s, v%d" % (vT + 1, EPS, vT + 1))
A("v_rsq_f32 v%d, v%d" % (vT + 2, vT + 1))
A("s_cmp_eq_u32 s%d, 0" % sLAY)
A("v_mul_f32 v%d, v%d, v%d" % (vT + 3, vT, vT + 2))
for i in range(4):
    A("v_pk_fma_f32 %s, %s, %s, %s op_sel:[0,0,1] op_sel_hi:[1,0,1] neg_lo:[0,0,1] neg_hi:[0,0,1]" % (vr(X + 2 * i, 2), vr(X + 2 * i, 2), vr(vT + 2, 2), vr(vT + 2, 2)))
for i in range(4):
    A("v_cvt_pk_bf16_f32 v%d, v%d, v%d" % (X + 8 + i, X + 2 * i, X + 2 * i + 1))
A("ds_write_b128 v%d, %s" % (vXNW, vr(X + 8, 4)))
A("s_cbranch_scc1 Lq_first")
A("s_waitcnt lgkmcnt(0)")
A("s_barrier")
LB("Lq_go")
BF = W + 16
for t in range(4):
    A("ds_read_b128 %s, v%d offset:%d" % (vr(BF + 4 * t, 4), vXNR, 64 * t))
for t in range(4):
    A("s_waitcnt lgkmcnt(%d)" % (3 - t))
    mfma(W, WQF + 4 * t, BF + 4 * t, None if t == 0 else W)
A("s_cmp_eq_u32 s%d, 0" % sLAY)
A("s_mov_b64 exec, %s" % sr(sMSK, 2))
NOP(6)
A("v_cvt_pk_bf16_f32 v%d, v%d, v%d" % (W + 4, W, W + 1))
A("v_cvt_pk_bf16_f32 v%d, v%d, v%d" % (W + 5, W + 2, W + 3))
A("s_cbranch_scc1 Lh_qst")
fastcmp()
store_local("buffer_store_dwordx2", vr(W + 4, 2), vQST, sQS)
A("s_mov_b64 exec, -1")
STAMP(2)

C("attention over this workgroup's 128 keys")
if QS:
    C("each wave fetches one k-step of q and shares it through LDS")
    A("s_lshl_b32 s%d, s%d, 10" % (sT3, sW))
    A("s_add_u32 s%d, s%d, s%d" % (sT4, sQL, sT3))
    A("s_add_u32 s%d, s%d, %d" % (sT3, sT3, L_RB + 12288))
    A("v_add_u32 v25, s%d, v%d" % (sT3, vL16))
    A("v_add_u32 v26, %d, v%d" % (L_RB + 12288, vL16))
    ppoll(lambda k: A("buffer_load_dwordx4 %s, v%d, %s, s%d offen sc1" % (vr(W + 32 + 4 * k, 4), vL16, sr(sWS, 4), sT4)),
          lambda k: range(W + 32 + 4 * k, W + 36 + 4 * k), 1, vT, lambda k: ["ds_write_b128 v25, %s" % vr(W + 32 + 4 * k, 4)], pre=QPRE, gap=QGAP, tag=0)
    A("s_waitcnt lgkmcnt(0)")
    A("s_barrier")
    for t in range(4):
        A("ds_read_b128 %s, v26 offset:%d" % (vr(QF + 4 * t, 4), 1024 * t))
    for t in range(4):
        A("s_waitcnt lgkmcnt(%d)" % (3 - t))
        A(qk[2 * t]); A(qk[2 * t + 1])
    touch_stub("k")
else:
    def iq(k):
        for t in range(4):
            A("buffer_load_dwordx4 %s, v%d, %s, s%d offen offset:%d sc1" % (vr(QF + 16 * k + 4 * t, 4), vL16, sr(sWS, 4), sQL, 1024 * t))
    def qks(k):
        return [mf(S + 4 * T, KF + 16 * T + 4 * t, QF + 16 * k + 4 * t, None if t == 0 else S + 4 * T) for t in range(4) for T in range(2)]
    ppoll(iq, lambda k: range(QF + 16 * k, QF + 16 * k + 16), 4, vT, qks, pre=QPRE, gap=QGAP, tag=0, stub="k")
STAMP(3)
LB("Lk_go")
NOP(7)
for ctl in ["row_ror:4", "row_ror:8"]:
    for i in range(8):
        A("v_add_f32_dpp v%d, v%d, v%d %s row_mask:0xf bank_mask:0xf" % (S + i, S + i, S + i, ctl))
A("v_max3_f32 v%d, v%d, v%d, v%d" % (vT, S, S + 1, S + 2))
A("v_max3_f32 v%d, v%d, v%d, v%d" % (vT + 1, S + 3, S + 4, S + 5))
A("v_max3_f32 v%d, v%d, v%d, v%d" % (vT, vT, S + 6, S + 7))
A("v_max_f32 v%d, v%d, v%d" % (vT, vT, vT + 1))
A("v_mov_b32 v%d, v%d" % (vT + 1, vT))
A("s_nop 1")
A("v_permlane16_swap_b32 v%d, v%d" % (vT, vT + 1))
A("v_max_f32 v%d, v%d, v%d" % (vT, vT, vT + 1))
A("v_mov_b32 v%d, v%d" % (vT + 1, vT))
A("s_nop 1")
A("v_permlane32_swap_b32 v%d, v%d" % (vT, vT + 1))
A("v_max_f32 v%d, v%d, v%d" % (vT, vT, vT + 1))
A("v_mul_f32 v%d, s%d, v%d" % (vT + 2, sSC, vT))
for i in range(8):
    A("v_fma_f32 v%d, v%d, s%d, -v%d" % (S + i, S + i, sSC, vT + 2))
for i in range(8):
    A("v_exp_f32 v%d, v%d" % (S + i, S + i))
for p in range(4):
    A("s_mov_b64 exec, %s" % sr(sPM + 2 * p, 2))
    for i in range(4):
        A("v_cvt_pk_bf16_f32 v%d, v%d, v%d" % (PM + 4 * p + i, S + 2 * i, S + 2 * i + 1))
A("s_mov_b64 exec, -1")
STAMP(4)
A("s_cmp_lg_u32 s%d, 0" % sLAY)
A("s_cbranch_scc1 Lv_go")
wait_w0(5 + PRET)
A("buffer_load_dwordx4 %s, v%d, %s, s%d offen sc1" % (vr(FLG, 4), vL16, sr(sWS, 4), sIT))
STAMP(6)
A("s_cmp_lg_u32 s%d, 0" % sY)
A("s_cbranch_scc1 Lv_have")
for t in range(8):
    for hf in range(2):
        A("ds_read_b64_tr_b16 %s, v%d offset:%d" % (vr(VF + 4 * t + 2 * hf, 2), VA + t, 4096 * hf))
A("s_waitcnt lgkmcnt(0)")
LB("Lv_have")
if TOT:
    A("s_memrealtime s[42:43]"); A("s_waitcnt lgkmcnt(0)"); A("s_mov_b32 s97, s42")
A("s_cmp_lg_u32 s%d, 0" % sLAY)
LB("Lv_go")
OA = W + 8
mfma(W + 16, ONES, PM, None)
for p in range(4):
    for T in range(2):
        mfma(OA + 4 * T, VF + 4 * (2 * p + T), PM + 4 * p, None if p == 0 else OA + 4 * T)
A("s_mov_b64 exec, %s" % sr(sMSK, 2))
A("v_mov_b32 v%d, v%d" % (vT + 3, W + 16))
A("ds_write_b64 v%d, %s" % (vMLW, vr(vT + 2, 2)))
A("s_mov_b64 exec, -1")
NOP(3)
A("ds_write_b128 v%d, %s" % (vRBW, vr(OA, 4)))
A("ds_write_b128 v%d, %s offset:64" % (vRBW, vr(OA + 4, 4)))
A("s_waitcnt lgkmcnt(0)")
A("s_cbranch_scc1 Lrb_bar")
lds_arrive(12, vT + 4)
lds_spin(12, 4, vT + 4)
A("s_branch Lrb_go")
LB("Lrb_bar")
A("s_barrier")
LB("Lrb_go")
A("ds_read_b128 %s, v%d" % (vr(W, 4), vMLR))
A("ds_read_b128 %s, v%d offset:16" % (vr(W + 4, 4), vMLR))
for w in range(4):
    A("ds_read_b64 %s, v%d offset:%d" % (vr(W + 8 + 2 * w, 2), vRBR, RBS * w))
A("v_mov_b32 v%d, 0" % (vT + 4))
fastcmp()
A("s_waitcnt lgkmcnt(4)")
A("v_max3_f32 v%d, v%d, v%d, v%d" % (vT, W, W + 2, W + 4))
A("v_max_f32 v%d, v%d, v%d" % (vT, vT, W + 6))
for w in range(4): A("v_sub_f32 v%d, v%d, v%d" % (W + 2 * w, W + 2 * w, vT))
for w in range(4): A("v_exp_f32 v%d, v%d" % (W + 2 * w, W + 2 * w))
A("v_mul_f32 v%d, v%d, v%d" % (vT + 1, W, W + 1))
for w in range(1, 4): A("v_fmac_f32 v%d, v%d, v%d" % (vT + 1, W + 2 * w, W + 2 * w + 1))
A("s_waitcnt lgkmcnt(0)")
A("v_pk_mul_f32 %s, %s, %s op_sel_hi:[1,0]" % (vr(W + 8, 2), vr(W + 8, 2), vr(W, 2)))
A("v_rcp_f32 v%d, v%d" % (vT + 2, vT + 1))
A("v_pk_fma_f32 %s, %s, %s, %s op_sel_hi:[1,0,1]" % (vr(W + 8, 2), vr(W + 10, 2), vr(W + 2, 2), vr(W + 8, 2)))
A("v_log_f32 v%d, v%d" % (vT + 5, vT + 1))
for w in range(2, 4):
    A("v_pk_fma_f32 %s, %s, %s, %s op_sel_hi:[1,0,1]" % (vr(W + 8, 2), vr(W + 8 + 2 * w, 2), vr(W + 2 * w, 2), vr(W + 8, 2)))
A("v_pk_mul_f32 %s, %s, %s op_sel_hi:[1,0]" % (vr(W + 8, 2), vr(W + 8, 2), vr(vT + 2, 2)))
A("v_add_f32 v%d, v%d, v%d" % (vT + 5, vT + 5, vT))
A("v_cvt_pk_bf16_f32 v%d, v%d, v%d" % (W + 8, W + 8, W + 9))
store_local("buffer_store_dword", "v%d" % (W + 8), vOST, sOS)
A("s_mov_b64 exec, 1")
store_local("buffer_store_dword", "v%d" % (vT + 5), vT + 4, sLS)
A("s_mov_b64 exec, -1")
STAMP(5)

C("wo phase: wave = batch, rows = key splits")
OF = W; LS = W + 32; DA = WQF
assert LSE_OFF[1] - O_OFF[1] == LSE_OFF[0] - O_OFF[0]
def io(k):
    for t in range(4):
        A("buffer_load_dwordx4 %s, v%d, %s, s%d offen offset:%d sc1" % (vr(OF + 16 * k + 4 * t, 4), [vLSE, vLS2, vOLD, vOLD][t], sr(sWS, 4), sOL, 512 * t))
A("s_cmp_lg_u32 s%d, 0" % sLAY)
A("s_cbranch_scc1 Lo_go")
C("first layer: wo tile landed -> fragments; every workgroup has announced its clears")
A("s_waitcnt vmcnt(2)")
STAMP(13)
A("s_mov_b32 s%d, %s" % (sT4, hx(SPIN)))
LB("Lap")
A("v_and_b32 v24, -8, v%d" % (FLG + 1))
A("v_cmp_ne_u32 vcc, s%d, v%d" % (sTG1, FLG))
A("v_cmp_ne_u32 %s, s%d, v24" % (sr(sH, 2), sTG2))
A("s_or_b64 vcc, vcc, %s" % sr(sH, 2))
A("s_cbranch_vccnz Lar")
LB("Lad")
lds_arrive(16, 24)
for i in range(2):
    A("v_lshlrev_b32 v%d, 16, v%d" % (W + 40 + 2 * i, RES + 2 + i))
    A("v_and_b32 v%d, 0xffff0000, v%d" % (W + 41 + 2 * i, RES + 2 + i))
for i in range(4): A("v_mov_b32 v%d, v%d" % (RES + i, W + 40 + i))
for ct in range(4): A("v_xor_b32 v%d, %d, v%d" % (W + 40 + ct, 32 * ct, vWT))
for ct in range(4): A("v_add_u32 v%d, %d, v%d" % (W + 40 + ct, L_WO, W + 40 + ct))
lds_spin(16, 4, 24)
STAMP(14)
A("s_mov_b32 s%d, 1" % sY)
LB("Lo_go")
def pre_o():
    A("s_cmp_eq_u32 s%d, 0" % sY)
    A("s_cbranch_scc1 Lo_nof")
    A("s_mov_b32 s%d, 0" % sY)
    for t in range(4):
        for ct in range(4):
            for hf in range(2):
                A("ds_read_b64_tr_b16 %s, v%d offset:%d" % (vr(WOF + 16 * ct + 4 * t + 2 * hf, 2), W + 40 + ct, 4096 * t + 512 * hf))
    A("s_waitcnt lgkmcnt(0)")
    LB("Lo_nof")
ool.append(["Lar:", "    s_lshl_b32 s%d, s%d, 10" % (sT5, sW), "    s_add_u32 s%d, s%d, %s" % (sT5, sT5, hx(FB)),
            "    buffer_load_dwordx4 %s, v%d, %s, s%d offen sc1" % (vr(FLG, 4), vL16, sr(sWS, 4), sT5),
            "    s_waitcnt vmcnt(0)", "    s_sub_u32 s%d, s%d, 1" % (sT4, sT4), "    s_cbranch_scc0 Lap", "    s_branch Lad"])
def wo1(k): return [mf(DA + 4 * ct, OF + 16 * k + 4 * t, WOF + 16 * ct + 4 * t, None if t == 0 else DA + 4 * ct) for t in range(2) for ct in range(4)]
ppoll(io, lambda k: range(OF + 16 * k, OF + 16 * k + 16), 4, vT, wo1, pre=OPRE, gap=OGAP, mid=pre_o, tag=1,
      fix=["v_mov_b32 v%d, v%d" % (OF + i, OF + 16 + i) for i in range(16)])
STAMP(7)
C("softmax over the 8 key splits (lanes n>=8 hold own lse in OF[0:3], the other four in OF[4:7])")
va = ["v_max3_f32 v%d, v%d, v%d, v%d" % (vT, OF, OF + 1, OF + 2), "v_max3_f32 v%d, v%d, v%d, v%d" % (vT + 1, OF + 3, OF + 4, OF + 5),
      "v_max3_f32 v%d, v%d, v%d, v%d" % (vT, vT, OF + 6, OF + 7), "v_max_f32 v%d, v%d, v%d" % (vT, vT, vT + 1)]
va += ["v_sub_f32 v%d, v%d, v%d" % (LS + i, OF + i, vT) for i in range(4)]
va += ["v_exp_f32 v%d, v%d" % (LS + i, LS + i) for i in range(4)]
va += ["s_nop 0"]
va += ["v_mov_b32_dpp v%d, v%d row_ror:8 row_mask:0xf bank_mask:0x3" % (LS + i, LS + i) for i in range(4)]
va += ["v_add_f32 v%d, v%d, v%d" % (vT, LS, LS + 1), "v_add_f32 v%d, v%d, v%d" % (vT + 1, LS + 2, LS + 3),
       "v_add_f32 v%d, v%d, v%d" % (vT, vT, vT + 1), "v_mov_b32 v%d, v%d" % (vT + 1, vT)]
for t in range(2, 4):
    for ct in range(4):
        mfma(DA + 4 * ct, OF + 4 * t, WOF + 16 * ct + 4 * t, DA + 4 * ct)
        for k in range(3 if t == 3 or ct < 1 else 2):
            if va: A(va.pop(0))
assert not va
A("s_mov_b32 s%d, 0x55555555" % sT4)
A("s_mov_b32 s%d, 0x55555555" % sT5)
A("v_permlane16_swap_b32 v%d, v%d" % (vT, vT + 1))
A("v_mul_f32 v%d, v%d, v%d" % (DA, DA, LS))
A("v_add_f32 v%d, v%d, v%d" % (vT, vT, vT + 1))
A("v_mul_f32 v%d, v%d, v%d" % (DA + 4, DA + 4, LS))
A("v_rcp_f32 v%d, v%d" % (vT, vT))
A("v_mul_f32 v%d, v%d, v%d" % (DA + 8, DA + 8, LS))
for i in range(1, 4):
    for ct in range(3):
        A("v_fmac_f32 v%d, v%d, v%d" % (DA + 4 * ct, DA + 4 * ct + i, LS + i))
    if i == 1: A("v_mul_f32 v%d, v%d, v%d" % (DA + 12, DA + 12, LS))
for i in range(1, 4): A("v_fmac_f32 v%d, v%d, v%d" % (DA + 12, DA + 12 + i, LS + i))
A("v_permlane16_swap_b32 v%d, v%d" % (DA, DA + 4))
A("s_nop 0")
A("v_permlane16_swap_b32 v%d, v%d" % (DA + 8, DA + 12))
A("v_add_f32 v%d, v%d, v%d" % (DA, DA, DA + 4))
A("v_add_f32 v%d, v%d, v%d" % (DA + 8, DA + 8, DA + 12))
A("s_nop 1")
A("v_permlane32_swap_b32 v%d, v%d" % (DA, DA + 8))
A("v_mul_f32 v%d, v%d, v%d" % (DA, DA, vT))
A("s_cmp_lg_u32 s%d, 0" % sLAY)
A("s_nop 0")
A("v_mov_b32_dpp v%d, v%d quad_perm:[1,0,3,2] row_mask:0xf bank_mask:0xf" % (DA + 1, DA))
A("s_mov_b64 exec, %s" % sr(sT4, 2))
A("v_cvt_pk_bf16_f32 v%d, v%d, v%d" % (DA, DA, DA + 1))
A("buffer_store_dword v%d, v%d, %s, s%d offen sc1" % (DA, vPST, sr(sWS, 4), sPS))
A("s_mov_b64 exec, -1")
STAMP(8)
A("s_cbranch_scc1 Lfinal")

A("s_cmp_lg_u32 s%d, 0" % sW)
A("s_cbranch_scc1 Ltab")
C("stage 1 (wave 0): reduce 32 head partials of 64 outputs, add residual, publish x1 slice")
soff(sT1, [(sA, 15), (sC, 12)], PB)
soff(sT2, [(sA, 10), (sC, 7), (sJ, 17)], X1_OFF)
A("s_mov_b32 s%d, 0x00ff00ff" % sT4)
A("s_mov_b32 s%d, 0" % sT5)
def ip(k):
    for i in range(4):
        A("buffer_load_dwordx4 %s, v%d, %s, s%d offen offset:%d sc1" % (vr(W + 20 * k + 4 * i, 4), vL16, sr(sWS, 4), sT1, 1024 * i))
if GW: A("s_waitcnt vmcnt(0)")
ppoll(ip, lambda k: range(W + 20 * k, W + 20 * k + 16), 4, vT, lambda k: [mf(W + 16, SEL, W + 20 * k + 4 * i, None if i == 0 else W + 16) for i in range(4)], pre=GPRE, gap=GGAP, tag=2)
STAMP(9)
fastcmp()
NOP(6)
for i in range(4):
    A("v_add_f32_dpp v%d, v%d, v%d row_ror:8 row_mask:0xf bank_mask:0xf" % (W + 16 + i, W + 16 + i, W + 16 + i))
A("s_mov_b64 exec, %s" % sr(sT4, 2))
A("v_pk_add_f32 %s, %s, %s" % (vr(W + 16, 2), vr(W + 16, 2), vr(RES, 2)))
A("v_pk_add_f32 %s, %s, %s" % (vr(W + 18, 2), vr(W + 18, 2), vr(RES + 2, 2)))
A("v_cvt_pk_bf16_f32 v%d, v%d, v%d" % (W + 16, W + 16, W + 17))
A("v_cvt_pk_bf16_f32 v%d, v%d, v%d" % (W + 17, W + 18, W + 19))
store_local("buffer_store_dwordx2", vr(W + 16, 2), vX1S, sT2)
A("s_mov_b64 exec, -1")
LB("Ltabdone")
soff(sT3, [(sW, 10), (sJ, 17)], X1_OFF)
def ix(k):
    A("buffer_load_dwordx4 %s, v%d, %s, s%d offen sc1" % (vr([XR, RES][k], 4), vL16, sr(sWS, 4), sT3))
wqf_reads()
ppoll(ix, lambda k: range([XR, RES][k], [XR, RES][k] + 4), 1, vT, lambda k: ["s_waitcnt lgkmcnt(0)", "v_readfirstlane_b32 s%d, v%d" % (sT1, vT + 2)],
      pre=XPRE, gap=XGAP, mid=lambda: A("ds_read_b32 v%d, v%d offset:20" % (vT + 2, vFL)), tag=3,
      fix=["v_mov_b32 v%d, v%d" % (XR + i, RES + i) for i in range(4)])
A("s_cmp_lt_u32 s%d, 3" % sT1)
A("s_cbranch_scc1 Ltw")
LB("Ltwd")
STAMP(10)

LB("Lmix")
C("x <- x + g(LN(LN(x))) ; g is tabulated for every bf16 input in range, evaluated directly otherwise")
X = W; HB = W + 8; RT = W + 12; AD = W + 16; Y = W + 24
row_stats(XR, vT, X)
A("v_add_f32 v%d, %s, v%d" % (vT + 2, EPS, vT + 1))
A("v_rsq_f32 v%d, v%d" % (vT + 2, vT + 2))
A("v_mov_b32 v%d, %s" % (vT + 4, hx(LO2 | (LO2 << 16))))
A("v_mul_f32 v%d, v%d, v%d" % (vT + 1, vT + 1, vT + 2))
A("v_fmaak_f32 v%d, v%d, v%d, %s" % (vT + 1, vT + 1, vT + 2, EPS))
A("v_rsq_f32 v%d, v%d" % (vT + 1, vT + 1))
A("s_nop 0")
A("v_mul_f32 v%d, v%d, v%d" % (vT + 2, vT + 2, vT + 1))
A("v_mul_f32 v%d, v%d, v%d" % (vT + 3, vT, vT + 2))
for i in range(4):
    A("v_pk_fma_f32 %s, %s, %s, %s op_sel:[0,0,1] op_sel_hi:[1,0,1] neg_lo:[0,0,1] neg_hi:[0,0,1]" % (vr(AD + 2 * i, 2), vr(X + 2 * i, 2), vr(vT + 2, 2), vr(vT + 2, 2)))
for i in range(4):
    A("v_cvt_pk_bf16_f32 v%d, v%d, v%d" % (HB + i, AD + 2 * i, AD + 2 * i + 1))
for i in range(4):
    A("v_pk_lshlrev_b16 v%d, 1, v%d op_sel_hi:[0,1]" % (RT + i, HB + i))
    A("v_pk_lshrrev_b16 v%d, 15, v%d op_sel_hi:[0,1]" % (AD + i, HB + i))
for i in range(4):
    A("v_or_b32 v%d, v%d, v%d" % (RT + i, RT + i, AD + i))
for i in range(4):
    A("v_pk_sub_u16 v%d, v%d, v%d" % (RT + i, RT + i, vT + 4))
for i in range(4):
    A("v_lshlrev_b32_sdwa v%d, 2, v%d dst_sel:DWORD dst_unused:UNUSED_PAD src0_sel:DWORD src1_sel:WORD_0" % (AD + 2 * i, RT + i))
    A("v_lshlrev_b32_sdwa v%d, 2, v%d dst_sel:DWORD dst_unused:UNUSED_PAD src0_sel:DWORD src1_sel:WORD_1" % (AD + 2 * i + 1, RT + i))
    A("ds_read_b32 v%d, v%d offset:%d" % (Y + 2 * i, AD + 2 * i, L_TAB))
    A("ds_read_b32 v%d, v%d offset:%d" % (Y + 2 * i + 1, AD + 2 * i + 1, L_TAB))
A("v_max3_u32 v%d, v%d, v%d, v%d" % (vT, AD, AD + 1, AD + 2))
A("v_max3_u32 v%d, v%d, v%d, v%d" % (vT + 1, AD + 3, AD + 4, AD + 5))
A("v_max3_u32 v%d, v%d, v%d, v%d" % (vT, vT, AD + 6, AD + 7))
A("v_max_u32 v%d, v%d, v%d" % (vT, vT, vT + 1))
A("v_cmp_le_u32 vcc, %d, v%d" % (NENT * 4, vT))
A("s_cbranch_vccnz Lslow")
LB("Lslowdone")
A("s_cmp_lg_u32 s%d, 0" % sLAY)
for i in range(4):
    A("s_waitcnt lgkmcnt(%d)" % (6 - 2 * i))
    A("v_pk_add_f32 %s, %s, %s" % (vr(X + 2 * i, 2), vr(X + 2 * i, 2), vr(Y + 2 * i, 2)))
for i in range(4):
    A("v_cvt_pk_bf16_f32 v%d, v%d, v%d" % (XR + i, X + 2 * i, X + 2 * i + 1))
STAMP(11)
A("s_cbranch_scc1 Lout")
A("ds_write_b128 v%d, %s offset:%d" % (vXNW, vr(XR, 4), L_X2 - L_XN))
A("s_mov_b32 s%d, 1" % sLAY)
A("s_mov_b32 s%d, 0" % sY)
if TOT: A("s_memrealtime s[100:101]")
for s, d in [(sOL, O_OFF[1] - O_OFF[0]), (sOS, O_OFF[1] - O_OFF[0]), (sLS, LSE_OFF[1] - LSE_OFF[0]), (sPS, P_L)]:
    A("s_add_u32 s%d, s%d, %d" % (s, s, d))
if DIAG: A("v_mov_b32 v28, v30")
A("s_branch Llnq")

L.append(".p2align 6"); LB("Lst_fin"); A("s_setpc_b64 %s" % sr(sRET, 2)); stubs.append("fin")
LB("Lfinal")
A("s_cmp_ge_u32 s2, 4")
A("s_cbranch_scc1 Lepoch")
C("workgroup b: reduce the 32 head partials of row b, add x2, mixer, store")
soff(sT1, [(2, 15), (sW, 13)], PB + P_L)
A("s_add_u32 s%d, s%d, 4096" % (sT2, sT1))
A("s_mul_i32 s%d, s2, %d" % (sT0, XS))
A("s_lshl_b32 s%d, s%d, 8" % (sT3, sW))
A("s_add_u32 s%d, s%d, s%d" % (sT0, sT0, sT3))
A("s_add_u32 s%d, s%d, %d" % (sT0, sT0, L_X2))
A("v_add_u32 v%d, s%d, v%d" % (vT + 4, sT0, vX1S))
A("s_add_u32 s%d, s%d, %d" % (sT3, sT3, L_XN))
A("v_add_u32 v%d, s%d, v%d" % (vT + 5, sT3, vX1S))
A("ds_read_b64 %s, v%d" % (vr(PM, 2), vT + 4))
A("ds_read_b64 %s, v%d offset:128" % (vr(PM + 2, 2), vT + 4))
A("s_mov_b32 s%d, 0x00ff00ff" % sT4)
A("s_mov_b32 s%d, 0" % sT5)
A("s_waitcnt lgkmcnt(0)")
if GW: A("s_waitcnt vmcnt(0)")
for i in range(4):
    A("v_lshlrev_b32 v%d, 16, v%d" % (PM + 4 + 2 * i, PM + i))
    A("v_and_b32 v%d, 0xffff0000, v%d" % (PM + 5 + 2 * i, PM + i))
FS = [KF, VF]
def ifin(k):
    for i in range(8):
        A("buffer_load_dwordx4 %s, v%d, %s, s%d offen offset:%d sc1" % (vr(FS[k] + 4 * i, 4), vL16, sr(sWS, 4), sT1 if i < 4 else sT2, 1024 * (i & 3)))
def fs(k):
    o = []
    for i in range(4):
        o.append(mf(W + 32, SEL, FS[k] + 4 * i, None if i == 0 else W + 32))
        o.append(mf(W + 36, SEL, FS[k] + 16 + 4 * i, None if i == 0 else W + 36))
    return o
ppoll(ifin, lambda k: range(FS[k], FS[k] + 32), 8, vT, fs, pre=GPRE, gap=GGAP, tag=2)
STAMP(9)
NOP(7)
for i in range(8):
    A("v_add_f32_dpp v%d, v%d, v%d row_ror:8 row_mask:0xf bank_mask:0xf" % (W + 32 + i, W + 32 + i, W + 32 + i))
A("s_mov_b64 exec, %s" % sr(sT4, 2))
for i in range(4):
    A("v_pk_add_f32 %s, %s, %s" % (vr(W + 32 + 2 * i, 2), vr(W + 32 + 2 * i, 2), vr(PM + 4 + 2 * i, 2)))
for i in range(4):
    A("v_cvt_pk_bf16_f32 v%d, v%d, v%d" % (W + 32 + i, W + 32 + 2 * i, W + 33 + 2 * i))
A("ds_write_b64 v%d, %s" % (vT + 5, vr(W + 32, 2)))
A("ds_write_b64 v%d, %s offset:128" % (vT + 5, vr(W + 34, 2)))
A("s_mov_b64 exec, -1")
A("s_cmp_lg_u32 s%d, 0" % sW)
A("s_waitcnt lgkmcnt(0)")
A("s_barrier")
A("s_cbranch_scc1 Lfin_exit")
A("ds_read_b128 %s, v%d" % (vr(XR, 4), vXNW))
A("s_waitcnt lgkmcnt(0)")
STAMP(10)
A("s_branch Lmix")
L.append(".p2align 6"); LB("Lst_out"); A("s_setpc_b64 %s" % sr(sRET, 2)); stubs.append("out")
LB("Lout")
A("s_lshl_b32 s%d, s2, 10" % sT0)
A("buffer_store_dwordx4 %s, v%d, %s, s%d offen" % (vr(XR, 4), vL16, sr(sOUT, 4), sT0))
if DBL:
    A("s_cmp_lg_u32 s2, 0")
    A("s_cbranch_scc1 Lfin_exit")
if DBL:
    A("s_waitcnt vmcnt(0)")
    A("s_memrealtime s[10:11]")
    A("s_waitcnt lgkmcnt(0)")
    A("s_sub_u32 s12, s10, s98")
    if "pad" in OPT:
        A("s_mov_b32 s10, s98"); A("s_mov_b32 s12, %d" % (100 * int(OPT["pad"])))
    LB("Ldbl")
    A("s_memrealtime s[14:15]")
    A("s_waitcnt lgkmcnt(0)")
    A("s_sub_u32 s13, s14, s10")
    A("s_cmp_lt_u32 s13, s12")
    A("s_cbranch_scc1 Ldbl")
LB("Lfin_exit")
if TOT:
    A("s_waitcnt vmcnt(0)")
    A("s_memrealtime s[10:11]")
    A("s_waitcnt lgkmcnt(0)")
    A("v_mov_b32 v16, s98")
    A("v_mov_b32 v17, s10")
    A("v_mov_b32 v18, s100")
    A("v_mov_b32 v19, s97")
    soff(sT2, [(2, 6), (sW, 4)], STB)
    A("v_mov_b32 v20, 0")
    A("s_mov_b64 exec, 1")
    A("buffer_store_dwordx4 v[16:19], v20, %s, s%d offen" % (sr(sWS, 4), sT2))
if DIAG:
    A("s_waitcnt vmcnt(0)")
    STAMP(12)
    if DIAG == 2:
        A("s_or_b32 s%d, s2, s%d" % (sT0, sW))
        A("s_cmp_lg_u32 s%d, 0" % sT0)
        A("s_cbranch_scc1 Lend")
        A("v_readlane_b32 s%d, v28, 0" % sT2)
        for k, (r, i) in enumerate([(31, 10), (31, 12), (28, 1), (28, 2), (28, 6), (28, 5), (28, 7), (28, 8), (28, 9), (28, 10), (28, 11), (30, 3), (30, 5), (30, 8), (30, 9), (30, 12)]):
            A("v_readlane_b32 s%d, v%d, %d" % (sT3, r, i))
            A("s_sub_u32 s%d, s%d, s%d" % (sT3, sT3, sT2))
            A("s_nop 0")
            A("v_writelane_b32 v17, s%d, %d" % (sT3, k))
        A("v_lshlrev_b32 v16, 2, v%d" % vLANE)
        A("s_mov_b64 exec, 0xffff")
        A("global_store_dword v16, v17, s[100:101]")
        A("s_endpgm")
    soff(sT1, [(2, 10), (sW, 7)], STB)
    A("v_lshlrev_b32 v16, 2, v%d" % vLANE)
    A("s_mov_b64 exec, 0xffff")
    A("buffer_store_dword v28, v16, %s, s%d offen" % (sr(sWS, 4), sT1))
    A("buffer_store_dword v30, v16, %s, s%d offen offset:64" % (sr(sWS, 4), sT1))
    A("s_add_u32 s%d, s%d, 0x40000" % (sT1, sT1))
    A("buffer_store_dword v31, v16, %s, s%d offen" % (sr(sWS, 4), sT1))
LB("Lend")
A("s_endpgm")
LB("Lepoch")
C("every workgroup has used the old launch tag long ago: workgroup 4 advances it")
A("s_lshl_b32 s%d, s%d, 8" % (sT0, sW))
A("s_add_u32 s%d, s%d, s2" % (sT0, sT0))
A("s_cmp_lg_u32 s%d, 4" % sT0)
A("s_cbranch_scc1 Lfin_exit")
A("v_mov_b32 v16, s%d" % sTG1)
A("v_mov_b32 v17, %s" % hx(EPO))
A("s_mov_b64 exec, 1")
A("buffer_store_dword v16, v17, %s, 0 offen sc1" % sr(sWS, 4))
A("s_mov_b64 exec, -1")
A("s_branch Lfin_exit")

L.append(".p2align 6"); LB("Lst_tab"); A("s_setpc_b64 %s" % sr(sRET, 2)); stubs.append("tab")
LB("Ltab")
C("waves 1..3: gather the g(h) table into LDS")
NTL = -(-NENT * 4 // 3 // 1024)
A("s_sub_u32 s%d, s%d, 1" % (sT1, sW))
A("s_mul_i32 s%d, s%d, %d" % (sT1, sT1, NTL * 1024))
A("s_min_u32 s%d, s%d, %d" % (sT1, sT1, NENT * 4 - NTL * 1024))
A("v_add_u32 v%d, s%d, v%d" % (vT + 4, sT1, vL16))
A("v_add_u32 v%d, %d, v%d" % (vT + 4, L_TAB, vT + 4))
A("s_add_u32 s%d, s%d, %s" % (sT1, sT1, hx(TB)))
A("s_add_u32 s%d, s%d, 4096" % (sT2, sT1))
def it():
    for i in range(NTL):
        A("buffer_load_dwordx4 %s, v%d, %s, s%d offen offset:%d sc1" % (vr(W + 4 * i, 4), vL16, sr(sWS, 4), sT1 if i < 4 else sT2, 1024 * (i & 3)))
poll(it, range(W, W + 4 * NTL), vT, back="s_sleep 16")
for i in range(NTL):
    A("ds_write_b128 v%d, %s offset:%d" % (vT + 4, vr(W + 4 * i, 4), 1024 * i))
A("s_waitcnt lgkmcnt(0)")
lds_arrive(20, vT + 4)
STAMP(9)
A("s_branch Ltabdone")
LB("Ltw")
lds_spin(20, 3, vT + 2)
A("s_branch Ltwd")

LB("Lslow")
C("rare: some h lies outside the table -> evaluate g(h) directly for those lanes")
RW1 = [W + 32 + i for i in range(14)]
RB1 = [PM + i for i in range(14)]
RW2 = [16 + i for i in range(10)] + [W + 46, W + 47, PM + 14, PM + 15]
A("v_lshlrev_b32 v26, 3, v%d" % vLANE)
A("s_load_dword s%d, %s, 0" % (sB2, sr(sB2P, 2)))
for (d4, d2, s) in [([W + 32, W + 36, W + 40], W + 44, sW1), ([PM, PM + 4, PM + 8], PM + 12, sB1)]:
    for k in range(3):
        A("buffer_load_dwordx4 %s, v%d, %s, 0 offen offset:%d" % (vr(d4[k], 4), vL16, sr(s, 4), 1024 * k))
    A("buffer_load_dwordx2 %s, v26, %s, 0 offen offset:3072" % (vr(d2, 2), sr(s, 4)))
A("buffer_load_dwordx4 v[16:19], v%d, %s, 0 offen" % (vL16, sr(sW2, 4)))
A("buffer_load_dwordx4 v[20:23], v%d, %s, 0 offen offset:1024" % (vL16, sr(sW2, 4)))
A("buffer_load_dwordx2 v[24:25], v%d, %s, 0 offen offset:2048" % (vL16, sr(sW2, 4)))
A("buffer_load_dwordx2 %s, v%d, %s, 0 offen offset:2056" % (vr(W + 46, 2), vL16, sr(sW2, 4)))
A("buffer_load_dwordx2 %s, v26, %s, 0 offen offset:3072" % (vr(PM + 14, 2), sr(sW2, 4)))
A("s_waitcnt vmcnt(0) lgkmcnt(0)")
A("s_lshl_b32 s%d, s%d, 16" % (sB2, sB2))
for e in range(8):
    A("v_cmp_le_u32 vcc, %d, v%d" % (NENT * 4, AD + e))
    A("s_mov_b64 %s, vcc" % sr(sH2, 2))
    LB("Lse%d" % e)
    A("s_cmp_eq_u64 %s, 0" % sr(sH2, 2))
    A("s_cbranch_scc1 Lsf%d" % e)
    A("s_ff1_i32_b64 s%d, %s" % (sT0, sr(sH2, 2)))
    A("s_bitset0_b64 %s, s%d" % (sr(sH2, 2), sT0))
    A("s_mov_b32 m0, s%d" % sT0)
    A("v_readlane_b32 s%d, v%d, s%d" % (sH, HB + (e >> 1), sT0))
    if e & 1: A("s_and_b32 s%d, s%d, 0xffff0000" % (sH, sH))
    else: A("s_lshl_b32 s%d, s%d, 16" % (sH, sH))
    A("s_call_b64 %s, Lgev" % sr(sRET, 2))
    A("v_writelane_b32 v%d, s%d, m0" % (Y + e, sY))
    A("s_branch Lse%d" % e)
    LB("Lsf%d" % e)
for i in range(16): A("v_mov_b32 v%d, 0" % (PM + i))
A("s_branch Lslowdone")
LB("Lgev")
a, u, t1, z = RES, RES + 1, RES + 2, RT
A("v_mov_b32 v%d, 0" % a)
A("v_mov_b32 v%d, %s" % (RT + 1, hx(f2u(K0))))
A("v_mov_b32 v%d, %s" % (RT + 2, hx(f2u(K1))))
for p in range(14):
    for hf in range(2):
        def un(d, s):
            if hf == 0: A("v_lshlrev_b32 v%d, 16, v%d" % (d, s))
            else: A("v_and_b32 v%d, 0xffff0000, v%d" % (d, s))
        un(u, RW1[p]); un(t1, RB1[p]); un(z, RW2[p])
        A("v_fma_f32 v%d, v%d, s%d, v%d" % (u, u, sH, t1))
        A("v_mul_f32 v%d, v%d, v%d" % (t1, u, u))
        A("v_fma_f32 v%d, v%d, v%d, v%d" % (t1, t1, RT + 2, RT + 1))
        A("v_mul_f32 v%d, v%d, v%d" % (t1, t1, u))
        A("v_exp_f32 v%d, v%d" % (t1, t1))
        A("v_mul_f32 v%d, v%d, v%d" % (z, z, u))
        A("v_add_f32 v%d, 1.0, v%d" % (t1, t1))
        A("v_rcp_f32 v%d, v%d" % (t1, t1))
        A("s_nop 0")
        A("v_fmac_f32 v%d, v%d, v%d" % (a, z, t1))
A("v_mov_b32 v%d, v%d" % (u, a))
A("s_nop 1")
wave_sum2(a, u, sY, sT1)
A("s_nop 1")
A("v_mov_b32 v%d, s%d" % (a, sY))
A("v_cvt_pk_bf16_f32 v%d, v%d, v%d" % (a, a, a))
A("v_and_b32 v%d, 0xffff0000, v%d" % (a, a))
A("v_add_f32 v%d, s%d, v%d" % (a, sB2, a))
A("v_cvt_pk_bf16_f32 v%d, v%d, v%d" % (a, a, a))
A("v_and_b32 v%d, 0xffff0000, v%d" % (a, a))
A("s_nop 0")
A("v_readfirstlane_b32 s%d, v%d" % (sY, a))
A("s_nop 3")
A("s_setpc_b64 %s" % sr(sRET, 2))

for b in ool: L += b
A("s_endpgm")
L.append(".p2align 8")
L.append(".fill %d, 4, 0xBF800000" % (64 if DIAG else 512))
L.append('''.section .rodata,"a"
.p2align 6
.amdhsa_kernel %s_kernel
  .amdhsa_next_free_vgpr 256
  .amdhsa_next_free_sgpr 102
  .amdhsa_accum_offset 256
  .amdhsa_group_segment_fixed_size 0
  .amdhsa_kernarg_size 104
  .amdhsa_user_sgpr_count 2
  .amdhsa_user_sgpr_kernarg_segment_ptr 1
  .amdhsa_system_sgpr_workgroup_id_x 1
.end_amdhsa_kernel''' % NAME)
open(OUTF, "w").write("\n".join(x for x in L if x is not None) + "\n")
print("wrote", OUTF, "lines", len(L), "LDS", LDS_SZ)
```

```python
import sys, struct, math

NAME = "interleave_layers__sliding_block_cached__mixer_token_mlp__decode"
OUTF = sys.argv[1] if len(sys.argv) > 1 else "cdna_kernels/%s.s" % NAME
DIAG = int(sys.argv[2]) if len(sys.argv) > 2 else 0
DBL = 0
if DIAG == 3: DIAG = 0; DBL = 1
TOT = 0
if DIAG == 4: DIAG = 0; TOT = 1
OPT = dict(a.split("=") for a in sys.argv[3:])
DEPTH = int(OPT.get("depth", 8))
D0 = int(OPT.get("d0", 2))
D1 = int(OPT.get("d1", 4))
DC = int(OPT.get("dc", 3))
TAILI = int(OPT.get("taili", 11))
TAILD = int(OPT.get("taild", 8))
QV = int(OPT.get("qv", 4))
PRET = int(OPT.get("pret", 1))
GW = int(OPT.get("gw", 1))
GPRE = int(OPT.get("gpre", 0))
GGAP = int(OPT.get("ggap", -1))
WARM = int(OPT.get("warm", 1))
QPRE = int(OPT.get("qpre", -1)); QGAP = int(OPT.get("qgap", -1))
OPRE = int(OPT.get("opre", -1)); OGAP = int(OPT.get("ogap", -1))
XPRE = int(OPT.get("xpre", -1)); XGAP = int(OPT.get("xgap", -1))
FINE = OPT.get("fine", "")
QS = int(OPT.get("qs", 0))
ADP = int(OPT.get("adp", 0))
ROT = int(OPT.get("rot", 1)); VROT = int(OPT.get("vrot", 0))
WROT = int(OPT.get("wrot", 1))
WOP = int(OPT.get("wop", 0))
ECO = int(OPT.get("eco", 0))
XDL = int(OPT.get("xdl", 256))
QBD = int(OPT.get("qbd", 0))
QT = int(OPT.get("qt", 0))
DRY = int(OPT.get("dry", 0))
HP = int(OPT.get("hp", 0))
NOCT = int(OPT.get("noct", 16))
QPOS = int(OPT.get("qpos", 1))
QPOS2 = int(OPT.get("qpos2", 7))

def f2u(x): return struct.unpack("<I", struct.pack("<f", x))[0]
def hx(x): return "0x%08x" % (x & 0xffffffff)

L = []
def A(s): L.append("    " + s)
def LB(s): L.append(s + ":")
def C(s): L.append("    ; " + s)
def vr(a, n): return "v[%d:%d]" % (a, a + n - 1)
def sr(a, n): return "s[%d:%d]" % (a, a + n - 1)
def NOP(n):
    while n > 0:
        k = min(n, 16); A("s_nop %d" % (k - 1)); n -= k

XOCT = int(OPT.get('xoct', 4))
ELO = int(OPT.get('elo', 130 - NOCT - XOCT))
LO2 = (ELO << 7) * 2
NENT = (NOCT + XOCT) * 256
XENT = XOCT * 256
assert XENT in (0, 1024)
EPW = NOCT * 256 // 256 // 4 // 2
GRS = 0x20000
O_OFF = [0x0000, 0xC400]; LSE_OFF = [0x8000, 0x14400]; Q1_OFF = 0x8400; X1_OFF = 0x14600
CLRA_PER = 1040
CLRB_OFF = 0x8400; CLRB_PER = 1680
Q0_OFF = 0x18000
EPO = 0x17f00
PB = 0x100000; P_L = 0x20000
TB = 0x140000; FB = 0x148000
QB_DELTA = 0x180000
STB = 0x300000
WS_SZ = 0x400000
L_WQ = 12288; L_K = L_WQ + 16384; L_V = L_K + 32768
L_WO = L_K + 16384
L_TAB = L_V
L_XN = L_V + 32768; XS = 1056
L_X2 = L_XN + 4 * XS
L_FLG = L_X2 + 4 * XS
L_RB = L_K; RBS = 2048 + 64; L_ML = L_K + 4 * RBS
L_QF = L_X2
LDS_SZ = int(OPT.get("lds", L_FLG + 64))
SPIN = 0x40000
K0 = -2.0 * math.sqrt(2.0 / math.pi) * math.log2(math.e)
K1 = K0 * 0.044715
EPS = hx(f2u(1e-5))

sTG1, sTG2 = 0, 1
sW, sJ, sA, sC, sGR, sLAY, sFAST = 3, 4, 5, 6, 7, 8, 9
sT0, sT1, sT2, sT3, sT4, sT5 = 10, 11, 12, 13, 14, 15
sCNT = 16
sQL, sQS, sOL, sOS, sLL, sLS, sPS = 17, 18, 19, 20, 21, 22, 23
sSC, sIT = 24, 25
sSUM, sSQ = 26, 27
sH, sH2, sRET, sMSK = 28, 30, 32, 34
sB2, sY, sXCC, sE = 36, 37, 38, 39
sB2P = 40
sK, sV, sWQ, sWO, sWS, sX, sOUT, sW1, sB1, sW2 = 44, 48, 52, 56, 60, 64, 68, 72, 76, 80
sKO, sKL, sVO, sVL = 84, 85, 86, 87
sPM = 88
sHC, sHT = 84, 85

def STAMP(i):
    if DIAG:
        A("s_memrealtime s[42:43]"); A("s_waitcnt lgkmcnt(0)")
        A("v_writelane_b32 v30, s42, %d" % i)

def CST(i):
    if DIAG == 1 and FINE:
        A("s_memtime s[42:43]"); A("s_waitcnt lgkmcnt(0)")
        A("v_writelane_b32 v31, s42, %d" % i)

vLANE = 1
vL16, vQST, vOST, vOLD, vPST, vX1S, vXNW, vXNR, vRBW, vRBR, vMLW, vMLR, vLSE, vZ = range(2, 16)
vT = 16
vWT, vFL = 28, 29
vLS2 = 27
KF, VF, WQF, WOF, SEL, ONES = 32, 64, 96, 112, 176, 180
W = 184
PM = 232
XR = 248
RES = 252

def srd(s, nbytes):
    A("s_mov_b32 s%d, %s" % (s + 2, hx(nbytes))); A("s_mov_b32 s%d, 0x00020000" % (s + 3))

def soff(dst, terms, const):
    first = True
    for (src, sh) in terms:
        if first: A("s_lshl_b32 s%d, s%d, %d" % (dst, src, sh)); first = False
        else:
            A("s_lshl_b32 s%d, s%d, %d" % (sT0, src, sh)); A("s_add_u32 s%d, s%d, s%d" % (dst, dst, sT0))
    if const: A("s_add_u32 s%d, s%d, %s" % (dst, dst, hx(const)))

def wave_sum2(a, b, sa, sb):
    for ctl in ["row_ror:8", "row_ror:4", "row_ror:2", "row_ror:1"]:
        A("v_add_f32_dpp v%d, v%d, v%d %s row_mask:0xf bank_mask:0xf" % (a, a, a, ctl))
        A("v_add_f32_dpp v%d, v%d, v%d %s row_mask:0xf bank_mask:0xf" % (b, b, b, ctl))
        A("s_nop 0")
    for ctl in ["row_bcast:15 row_mask:0xa", "row_bcast:31 row_mask:0xc"]:
        A("v_add_f32_dpp v%d, v%d, v%d %s bank_mask:0xf" % (a, a, a, ctl))
        A("v_add_f32_dpp v%d, v%d, v%d %s bank_mask:0xf" % (b, b, b, ctl))
        A("s_nop 0")
    A("v_readlane_b32 s%d, v%d, 63" % (sa, a))
    A("v_readlane_b32 s%d, v%d, 63" % (sb, b))

def row_stats(x, t, unp):
    A("v_dot2_f32_bf16 v%d, v%d, v%d, 0" % (t, x, ONES))
    A("v_dot2_f32_bf16 v%d, v%d, v%d, 0" % (t + 1, x, x))
    for i in range(1, 4):
        A("v_dot2_f32_bf16 v%d, v%d, v%d, v%d" % (t, x + i, ONES, t))
        A("v_dot2_f32_bf16 v%d, v%d, v%d, v%d" % (t + 1, x + i, x + i, t + 1))
    un = []
    for i in range(4):
        un.append("v_lshlrev_b32 v%d, 16, v%d" % (unp + 2 * i, x + i))
        un.append("v_and_b32 v%d, 0xffff0000, v%d" % (unp + 2 * i + 1, x + i))
    for k in range(3): A(un.pop(0))
    a, b = t, t + 1
    for ctl in ["row_ror:8 row_mask:0xf", "row_ror:4 row_mask:0xf", "row_ror:2 row_mask:0xf", "row_ror:1 row_mask:0xf", "row_bcast:15 row_mask:0xa", "row_bcast:31 row_mask:0xc"]:
        A("v_add_f32_dpp v%d, v%d, v%d %s bank_mask:0xf" % (a, a, a, ctl))
        A("v_add_f32_dpp v%d, v%d, v%d %s bank_mask:0xf" % (b, b, b, ctl))
        A(un.pop(0) if un else "s_nop 0")
    A("v_readlane_b32 s%d, v%d, 63" % (sSUM, a))
    A("v_readlane_b32 s%d, v%d, 63" % (sSQ, b))
    A("s_nop 0")
    A("v_mul_f32 v%d, s%d, v%d" % (t, sSUM, vZ))
    A("v_mul_f32 v%d, s%d, v%d" % (t + 1, sSQ, vZ))
    A("v_fma_f32 v%d, -v%d, v%d, v%d" % (t + 1, t, t, t + 1))
    A("v_max_f32 v%d, 0, v%d" % (t + 1, t + 1))

ool = []
uid = [0]
def maxtree(regs, tmp):
    r = list(regs); out = []
    out.append("v_max3_u32 v%d, v%d, v%d, v%d" % (tmp, r[0], r[1], r[2])); r = r[3:]
    if len(r) >= 5:
        out.append("v_max3_u32 v%d, v%d, v%d, v%d" % (tmp + 1, r[0], r[1], r[2])); r = r[3:]
        d = 0
        while len(r) >= 2:
            out.append("v_max3_u32 v%d, v%d, v%d, v%d" % (tmp + d, tmp + d, r[0], r[1])); r = r[2:]; d ^= 1
        if r: out.append("v_max3_u32 v%d, v%d, v%d, v%d" % (tmp, tmp, tmp + 1, r[0]))
        else: out.append("v_max_u32 v%d, v%d, v%d" % (tmp, tmp, tmp + 1))
    else:
        while len(r) >= 2:
            out.append("v_max3_u32 v%d, v%d, v%d, v%d" % (tmp, tmp, r[0], r[1])); r = r[2:]
        if r: out.append("v_max_u32 v%d, v%d, v%d" % (tmp, tmp, r[0]))
    return out

def poll(issue, regs, tmp, pre_wait=None, spec=None, back="s_nop 7", tag=None, stub=None):
    uid[0] += 1; u = uid[0]
    A("s_mov_b32 s%d, %s" % (sCNT, hx(SPIN)))
    LB("Lp%d" % u)
    issue()
    if pre_wait: pre_wait()
    A("s_waitcnt vmcnt(0)")
    mt = maxtree(regs, tmp) + ["v_cmp_eq_u32 vcc, -1, v%d" % tmp]
    spec = list(spec or [])
    ns = len(spec)
    per = -(-len(mt) // ns) if ns else 0
    for s in spec:
        A(s)
        for k in range(per):
            if mt: A(mt.pop(0))
    for m in mt: A(m)
    A("s_cbranch_vccz Ld%d" % u)
    A("s_sub_u32 s%d, s%d, 1" % (sCNT, sCNT))
    if back != "s_nop 7": A(back)
    A("s_cbranch_scc0 Lp%d" % u)
    if stub: touch_stub(stub)
    LB("Ld%d" % u)
    if DIAG and tag is not None:
        A("s_lshl_b32 m0, s%d, 2" % sLAY); A("s_add_u32 m0, m0, %d" % tag); A("s_nop 0")
        A("v_writelane_b32 v31, s%d, m0" % sCNT)

stubs = []
def touch_stub(name, branch_over=None):
    A("s_branch Lsk_%s" % name)
    L.append(".p2align 6")
    LB("Lst_%s" % name)
    A("s_setpc_b64 %s" % sr(sRET, 2))
    LB("Lsk_%s" % name)
    stubs.append(name)

def delay(cyc):
    if cyc == -1:
        A("s_waitcnt vmcnt(0)"); return
    while cyc >= 64:
        k = min(cyc // 64, 15); A("s_sleep %d" % k); cyc -= 64 * k
    if cyc >= 8: A("s_nop %d" % min(15, cyc // 4 - 1))

def ppoll(issue, regs, n, tmp, spec, pre=0, gap=128, mid=None, tag=None, fix=None, stub=None, lanes=None):
    uid[0] += 1; u = uid[0]
    def look(k):
        out = ["s_waitcnt vmcnt(%d)" % (n if k == 0 else 0)]
        mt = maxtree(regs(k), tmp) + ["v_cmp_eq_u32 vcc, -1, v%d" % tmp]
        sp = list(spec(k)); per = -(-len(mt) // len(sp)) if sp else 0
        for x in sp:
            out.append(x)
            for _ in range(per):
                if mt: out.append(mt.pop(0))
        return out + mt + (["s_and_b64 vcc, vcc, %s" % sr(lanes, 2)] if lanes else [])
    A("s_mov_b32 s%d, %s" % (sCNT, hx(SPIN)))
    delay(pre)
    fine = FINE and tag == int(FINE)
    if fine: CST(8)
    LB("Lp%d" % u)
    issue(0)
    if fine and 0: CST(9)
    if mid: mid()
    if gap >= 0: delay(gap)
    if gap >= 0: issue(1)
    lk = look(0)
    if gap < 0: lk[0] = "s_waitcnt vmcnt(0)"
    for k, x in enumerate(lk):
        A(x)
        if fine and k == 0: CST(13)
    if fine: CST(14)
    A("s_cbranch_vccz Ld%d" % u)
    if gap < 0: issue(1)
    A("s_sub_u32 s%d, s%d, 1" % (sCNT, sCNT))
    for x in look(1): A(x)
    for x in (fix or []): A(x)
    A("s_cbranch_vccz Ld%d" % u)
    A("s_sub_u32 s%d, s%d, 1" % (sCNT, sCNT))
    A("s_cmp_gt_i32 s%d, 0" % sCNT)
    A("s_cbranch_scc1 Lp%d" % u)
    if stub: touch_stub(stub)
    LB("Ld%d" % u)
    if fine: CST(15)
    if DIAG and tag is not None:
        A("s_lshl_b32 m0, s%d, 2" % sLAY); A("s_add_u32 m0, m0, %d" % tag); A("s_nop 0")
        A("v_writelane_b32 v31, s%d, m0" % sCNT)

def lds_spin(off, target, tmp, mask=None, sleep=0):
    uid[0] += 1; u = uid[0]
    A("s_mov_b32 s%d, %s" % (sT2, hx(SPIN * 4)))
    LB("Ls%d" % u)
    A("ds_read_b32 v%d, v%d offset:%d" % (tmp, vFL, off))
    A("s_waitcnt lgkmcnt(0)")
    A("v_readfirstlane_b32 s%d, v%d" % (sT1, tmp))
    if mask: A("s_and_b32 s%d, s%d, %d" % (sT0, sT1, mask))
    A("s_cmp_ge_u32 s%d, %d" % (sT0 if mask else sT1, target))
    A("s_cbranch_scc1 Lt%d" % u)
    if sleep: A("s_sleep %d" % sleep)
    A("s_sub_u32 s%d, s%d, 1" % (sT2, sT2))
    A("s_cbranch_scc0 Ls%d" % u)
    LB("Lt%d" % u)

def lds_arrive(off, tmp, val=1):
    if val is not None: A("v_mov_b32 v%d, %d" % (tmp, val))
    A("s_mov_b64 exec, 1")
    A("ds_add_u32 v%d, v%d offset:%d" % (vFL, tmp, off))
    A("s_mov_b64 exec, -1")

def store_local(op, data, vaddr, so):
    uid[0] += 1; u = uid[0]
    A("s_cbranch_scc1 Lw%d" % u)
    A("%s %s, v%d, %s, s%d offen" % (op, data, vaddr, sr(sWS, 4), so))
    LB("Lx%d" % u)
    ool.append(["Lw%d:" % u, "    %s %s, v%d, %s, s%d offen sc1" % (op, data, vaddr, sr(sWS, 4), so), "    s_branch Lx%d" % u])
def fastcmp(): A("s_cmp_eq_u32 s%d, 0" % sFAST)

def mf(d, a, b, c):
    return "v_mfma_f32_16x16x32_bf16 %s, %s, %s, %s" % (vr(d, 4), vr(a, 4), vr(b, 4), "0" if c is None else vr(c, 4))
def mfma(d, a, b, c): A(mf(d, a, b, c))

def tags():
    A("s_add_u32 s%d, s%d, 1" % (sTG1, sE))
    A("s_mul_i32 s%d, s%d, 0x9E3779B1" % (sTG2, sTG1))
    A("s_and_b32 s%d, s%d, -8" % (sTG2, sTG2))

def common_addr():
    A("v_and_b32 v18, 3, v%d" % vLANE)
    A("v_lshlrev_b32 v%d, 12, v17" % vQST)
    A("v_lshrrev_b32 v24, 1, v16")
    A("v_lshl_add_u32 v%d, v24, 8, v%d" % (vQST, vQST))
    A("v_and_b32 v24, 1, v16")
    A("v_lshl_add_u32 v%d, v24, 3, v%d" % (vQST, vQST))
    A("v_lshlrev_b32 v%d, 4, v24" % vLSE)
    A("s_mul_i32 s%d, s%d, %d" % (sT0, sW, XS))
    A("s_add_u32 s%d, s%d, %d" % (sT0, sT0, L_XN))
    A("v_add_u32 v%d, s%d, v%d" % (vXNW, sT0, vL16))
    A("s_lshl_b32 s%d, s%d, 8" % (sT0, sA))
    A("s_add_u32 s%d, s%d, %d" % (sT0, sT0, L_XN))
    A("v_mul_u32_u24 v25, %d, v18" % XS)
    A("v_lshl_add_u32 v25, v16, 4, v25")
    A("v_add_u32 v%d, s%d, v25" % (vXNR, sT0))
    A("v_mov_b32 v%d, %s" % (vZ, hx(f2u(1.0 / 512))))
    for r in range(4): A("v_mov_b32 v%d, 0x3f803f80" % (ONES + r))
    A("s_and_b32 s%d, s%d, 1" % (sT1, sC))
    A("s_lshr_b32 s%d, s%d, 1" % (sT2, sC))
    soff(sQS, [(sT1, 11), (sW, 9), (sA, 6), (sT2, 4)], 0)
    A("v_bfe_u32 v24, v%d, 2, 2" % vLANE)
    A("v_lshl_add_u32 v24, v16, 3, v24")
    A("v_lshlrev_b32 v24, 7, v24")
    A("v_bfe_u32 v25, v%d, 3, 2" % vLANE)
    A("v_lshlrev_b32 v25, 1, v25")
    A("v_bfe_u32 v26, v%d, 1, 1" % vLANE)
    A("v_xor_b32 v25, v25, v26")
    A("v_lshl_add_u32 v24, v25, 4, v24")
    A("v_and_b32 v26, 1, v%d" % vLANE)
    A("v_lshl_add_u32 v%d, v26, 3, v24" % vWT)
    A("s_mov_b32 s%d, 0x000f000f" % sMSK)
    A("s_mov_b32 s%d, 0x000f000f" % (sMSK + 1))
    A("s_mov_b32 s%d, 0" % sLAY)

def wtile_voff(shift, d):
    A("v_lshrrev_b32 v24, 3, v%d" % vLANE)
    A("v_and_b32 v25, 7, v%d" % vLANE)
    A("v_and_b32 v26, 1, v16")
    A("v_lshlrev_b32 v26, 1, v26")
    A("v_xor_b32 v25, v25, v26")
    A("v_lshlrev_b32 v25, 4, v25")
    A("v_lshl_add_u32 v%d, v24, %d, v25" % (d, shift))
    A("v_xor_b32 v%d, 64, v%d" % (d + 1, d))

def wqf_reads():
    A("s_lshl_b32 s%d, s%d, 5" % (sT1, sW))
    A("v_xor_b32 v26, s%d, v%d" % (sT1, vWT))
    for t in range(4):
        for hf in range(2):
            A("ds_read_b64_tr_b16 %s, v26 offset:%d" % (vr(WQF + 4 * t + 2 * hf, 2), L_WQ + 4096 * t + 512 * hf))

def dma(vaddr, srdn, so, lds_s, step_so, flags="nt"):
    A("s_mov_b32 m0, s%d" % lds_s)
    A("s_add_u32 s%d, s%d, 1024" % (lds_s, lds_s))
    A("buffer_load_dwordx4 v%d, %s, s%d offen %s lds" % (vaddr, sr(srdn, 4), so, flags))
    A("s_add_u32 s%d, s%d, %d" % (so, so, step_so))

hdr = open("cdna_kernels/%s.s.ref" % NAME).read().split("; Override launch")[0]
L.append(hdr.rstrip("\n"))
L.append("; @launch grid=(256,1,1) block=(512,1,1) lds=%d" % LDS_SZ)
L.append('.amdgcn_target "amdgcn-amd-amdhsa--gfx950"')
L.append(".text\n" + (".p2align 12\n" if int(OPT.get("al", 0)) else "") + ".globl %s_kernel\n.p2align 8\n.type %s_kernel,@function\n%s_kernel:" % (NAME, NAME, NAME))
if DIAG: A("s_memrealtime s[42:43]")
if DBL or TOT: A("s_memrealtime s[98:99]")
sM = 96
A("s_lshr_b32 s%d, s2, 8" % sT0)
A("s_cbranch_scc1 Lend")
A("s_load_dwordx2 %s, s[0:1], 24" % sr(sWQ, 2))
A("s_load_dwordx4 %s, s[0:1], 0" % sr(sT2, 4))
A("v_readfirstlane_b32 s%d, v0" % sW)
C("every wave pulls one line of this kernel's code into L2 (plain read): 32 workgroups x 4 lines")
A("s_getpc_b64 s[10:11]")
LB("Lpc0")
A("s_lshr_b32 s%d, s2, 3" % sM)
A("s_lshl_b32 s%d, s%d, 9" % (sCNT, sM))
A("s_cmp_lg_u32 s%d, 0" % sW)
A("s_cbranch_scc1 Lnopf")
A("v_and_b32 v19, 3, v0")
A("v_lshl_add_u32 v19, v19, 7, s%d" % sCNT)
A("global_load_dword v%d, v19, s[10:11]" % (W + 8))
LB("Lnopf")
A("s_and_b32 s%d, s2, 7" % sJ)
A("s_lshr_b32 s%d, s2, 6" % sA)
A("s_and_b32 s%d, s%d, 7" % (sC, sM))
A("s_lshl_b32 s%d, 1, 17" % (sWQ + 3))
A("s_bitcmp1_b32 s%d, 8" % sW)
A("s_cbranch_scc0 Lmain0")
vKA, vVA = W + 40, W + 44
sRO, sRM = sVO, 97 if not TOT else 94
if TOT: sRM = sOL
def kv_issue(i):
    A("s_add_u32 m0, s%d, s%d" % (sKL if i < 8 else sVL, sRO))
    A("s_add_u32 s%d, s%d, s%d" % (sCNT, sKO, sRO))
    if i < 8: A("buffer_load_dwordx4 v%d, %s, s%d offen nt lds" % (vKA + (i & 3), sr(sK, 4), sCNT))
    else: A("buffer_load_dwordx4 v%d, %s, s%d offen nt lds" % (vVA + (i & 1), sr(sV, 4), sCNT))
    A("s_addk_i32 s%d, %d" % (sRO, 1024 + (VROT * 1024 if i == 7 else 0)))
    A("s_and_b32 s%d, s%d, 0x1fff" % (sRO, sRO))
def lane_init():
    A("v_and_b32 v%d, 63, v0" % vLANE)
    A("v_mov_b32 v%d, %d" % (vFL, L_FLG))
    A("v_lshlrev_b32 v%d, 4, v%d" % (vL16, vLANE))
    A("v_lshrrev_b32 v16, 4, v%d" % vLANE)
    A("v_and_b32 v17, 15, v%d" % vLANE)
    A("v_mov_b32 v20, 0")
    if DIAG: A("v_mov_b32 v30, 0")
def main_early():
    LB("Lmain0")
    for s, off in [(sW1, 48), (sB1, 56), (sW2, 64)]:
        A("s_load_dwordx2 %s, s[0:1], %d" % (sr(s, 2), off))
    lane_init()
    A("v_mov_b32 v21, 0")
    for k in range(4): A("ds_write_b64 v%d, v[20:21] offset:%d" % (vFL, 8 * k))
    A("s_lshl_b32 s%d, 1, 25" % (sK + 2)); A("s_mov_b32 s%d, s%d" % (sK + 3, sWQ + 3))
    A("v_xor_b32 v18, v17, v16")
    A("v_lshlrev_b32 v18, 4, v18")
    A("v_lshl_add_u32 v%d, v16, 8, v18" % vKA)
    A("s_lshl_b32 s%d, s%d, %d" % (sRO, sC, 10 if ROT else 31))
    if not ROT: A("s_mov_b32 s%d, 0" % sRO)
    A("s_bfe_u32 s%d, s%d, 0x2000a" % (sT1, sRO))
    A("s_lshl_b32 s%d, s%d, 6" % (sT1, sT1))
    for k in range(1, 4):
        A("s_add_u32 s%d, s%d, %d" % (sCNT, sT1, 64 * k))
        A("s_and_b32 s%d, s%d, 0xc0" % (sCNT, sCNT))
        A("v_xor_b32 v%d, s%d, v%d" % (vKA + k, sCNT, vKA))
    A("v_xor_b32 v%d, s%d, v%d" % (vKA, sT1, vKA))
    soff(sKO, [(sA, 23), (sJ, 20), (sC, 15), (sW, 7)], 3072 * 256)
    A("s_add_u32 s%d, s%d, %d" % (sKL, sT0, L_K))
    A("s_waitcnt lgkmcnt(0)")
    A("s_mov_b64 %s, %s" % (sr(sK, 2), sr(sT4, 2)))
    for i in range(D0): kv_issue(i)
    C("lane k<3 of wave 3 pulls a slice of coefficient array k into L2")
    A("s_cmp_lg_u32 s%d, 192" % sW)
    A("s_cbranch_scc1 Lm_nopf")
    A("s_min_u32 s%d, s%d, 27" % (sT1, sM))
    A("s_lshl_b32 s%d, s%d, 7" % (sT1, sT1))
    A("v_mov_b32 v19, s%d" % sT1)
    A("s_mov_b64 exec, 1")
    for k, sd in enumerate([sW1, sB1, sW2]): A("global_load_dword v%d, v19, %s" % (W + 9 + k, sr(sd, 2)))
    A("s_mov_b64 exec, -1")
    LB("Lm_nopf")
    A("s_add_u32 s%d, s%d, %d" % (sVL, sT0, L_V))
    A("s_lshr_b32 s%d, s%d, 6" % (sW, sW))
    if DIAG: A("v_writelane_b32 v30, s42, 0")
    STAMP(10)
    A("s_branch Lmain")

C("---- helper waves: first q projection, then the table of g over bf16 inputs ----")
HW1, HB1, HW2 = 32, 60, 112
hK0, hK1, hONE, hRES = 88, 90, 92, 94
AC = [140, 142]
A("s_load_dwordx2 %s, s[0:1], 96" % sr(sWS, 2))
C("wq tile DMA: instruction i, thread t' = t-256: row 32 i + (t'>>3), 16-byte chunk (t'&7) ^ swizzle")
A("v_bfe_u32 v23, v0, 3, 5")
A("v_and_b32 v22, 7, v0")
A("v_and_b32 v24, 2, v23")
A("v_lshrrev_b32 v25, 1, v23")
A("v_and_or_b32 v24, v25, 4, v24")
A("v_xor_b32 v22, v22, v24")
A("v_lshlrev_b32 v22, 4, v22")
A("v_lshl_add_u32 v22, v23, 13, v22")
soff(sQL, [(sA, 20), (sJ, 10), (sC, 7)], 0)
A("s_lshl_b32 s%d, 1, 22" % (sWQ + 2))
A("s_lshl_b32 s%d, 1, 18" % sT1)
A("s_lshl_b32 s%d, s%d, 4" % (sQS, sW))
A("s_add_u32 m0, s%d, %d" % (sQS, L_WQ - 4096))
A("v_lshlrev_b32 v21, 4, v0")
if DIAG: A("s_memrealtime s[88:89]")
A("s_waitcnt lgkmcnt(0)")
if DIAG: A("s_memrealtime s[90:91]")
A("global_load_dwordx4 %s, v21, %s offset:-4096" % (vr(XR, 4), sr(sT2, 2)))
for i in range(4):
    if i:
        A("s_addk_i32 m0, 0x1000")
        A("s_add_u32 s%d, s%d, s%d" % (sQL, sQL, sT1))
    A("buffer_load_dwordx4 v22, %s, s%d offen nt lds" % (sr(sWQ, 4), sQL))
if DIAG: A("s_memrealtime s[92:93]")
lane_init()
A("s_bfe_u32 s%d, s%d, 0x20006" % (sW, sW))
A("s_lshl_b32 s%d, s%d, 10" % (sT3, sW))
srd(sWS, WS_SZ)
C("early sentinels (O0, LSE0): hw0 1024 B, the others 16 B")
for i in range(4): A("v_mov_b32 v%d, -1" % (PM + i))
A("s_mul_i32 s%d, s%d, %d" % (sT5, sM, CLRA_PER))
A("s_lshl_b32 s%d, s%d, 17" % (sGR, sJ))
A("s_add_u32 s%d, s%d, s%d" % (sT5, sT5, sGR))
A("s_add_u32 s%d, s%d, 1024" % (sT4, sT5))
A("s_cmp_ge_u32 s%d, 2" % sW)
A("s_cbranch_scc1 Lhc_skip")
A("s_cmp_eq_u32 s%d, 0" % sW)
A("s_cselect_b32 s%d, s%d, s%d" % (sT5, sT5, sT4))
A("s_cselect_b64 exec, -1, 1")
A("buffer_store_dwordx4 %s, v%d, %s, s%d offen sc1" % (vr(PM, 4), vL16, sr(sWS, 4), sT5))
LB("Lhc_skip")
A("s_mov_b64 exec, -1")
A("s_branch Lhelp2")
main_early()
LB("Lhelp2")
if QT:
    C("touch 2 lines of the tagged q mailbox per wave so that they sit in L2 before they are written")
    soff(sT4, [(sM, 10), (sW, 8), (sJ, 17)], Q0_OFF)
    A("v_lshlrev_b32 v24, 7, v%d" % vLANE)
    A("s_mov_b64 exec, 3")
    A("buffer_load_dword v%d, v24, %s, s%d offen" % (RES + 1, sr(sWS, 4), sT4))
A("s_mov_b64 exec, -1")
if HP: A("s_setprio 3")
A("s_load_dword s%d, %s, %s" % (sE, sr(sWS, 2), hx(EPO)))
A("s_load_dwordx2 %s, s[0:1], 72" % sr(sB2P, 2))
if DIAG:
    A("v_writelane_b32 v30, s42, 0")
    A("s_waitcnt lgkmcnt(0)")
    A("v_mov_b32 v31, 0")
    A("v_writelane_b32 v31, s88, 0"); A("v_writelane_b32 v31, s90, 1"); A("v_writelane_b32 v31, s92, 2")
STAMP(9)
A("s_barrier")
A("s_lshl_b32 s%d, s2, 2" % sHC)
A("s_add_u32 s%d, s%d, s%d" % (sHC, sHC, sW))
sHX = 86
if XENT:
    C("extra entry e = wave index: |h| code ELO*128 + (e>>1), sign e&1")
    A("s_lshr_b32 s%d, s%d, 1" % (sHX, sHC))
    A("s_add_u32 s%d, s%d, %d" % (sHX, sHX, ELO * 128))
    A("s_lshl_b32 s%d, s%d, 16" % (sHX, sHX))
    A("s_lshl_b32 s%d, s%d, 31" % (sT0, sHC))
    A("s_or_b32 s%d, s%d, s%d" % (sHX, sHX, sT0))
A("s_mul_i32 s%d, s%d, %d" % (sHC, sHC, EPW))
A("s_lshl_b32 s%d, s%d, 3" % (sHT, sHC))
A("s_add_u32 s%d, s%d, %d" % (sHT, sHT, XENT * 4))
A("s_add_u32 s%d, s%d, %d" % (sHC, sHC, ELO * 128 + XENT // 2))
A("s_lshl_b32 s%d, s%d, 16" % (sHC, sHC))
A("v_lshlrev_b32 v27, 2, v%d" % vLANE)
A("v_add_u32 v27, s%d, v27" % sHT)
A("s_mov_b32 s%d, %s" % (sHT, hx(TB)))
common_addr()
A("s_lshl_b32 s%d, s%d, 1" % (sQS, sQS))
A("s_add_u32 s%d, s%d, s%d" % (sQS, sQS, sGR))
A("s_add_u32 s%d, s%d, %s" % (sQS, sQS, hx(Q0_OFF)))
A("v_lshlrev_b32 v%d, 1, v%d" % (vQST, vQST))
A("s_getreg_b32 s%d, hwreg(HW_REG_XCC_ID, 0, 3)" % sXCC)
for r, c in [(hK0, K0), (hK1, K1), (hONE, 1.0)]:
    A("v_mov_b32 v%d, %s" % (r, hx(f2u(c)))); A("v_mov_b32 v%d, %s" % (r + 1, hx(f2u(c))))
A("v_mov_b32 v%d, 0" % hRES)
A("s_mov_b32 s%d, 0" % sIT)
if DRY:
    C("dry run of the q-projection code while its inputs are in flight (instruction cache warm-up; no side effects)")
    A("s_mov_b32 s%d, 1" % sIT)
    A("s_branch Llnq")
    LB("Ldry_done")
    A("s_mov_b64 exec, -1")
    A("s_mov_b32 s%d, 0" % sIT)
if WARM:
    C("warm the instruction cache lines at the far jump targets of the main waves")
    for k, nm in enumerate(["k", "fin", "out", "tab"]):
        A("s_cmp_lg_u32 s%d, %d" % (sW, k))
        A("s_cbranch_scc1 Lwm%d" % k)
        A("s_call_b64 %s, Lst_%s" % (sr(sRET, 2), nm))
        if nm == "out": A("s_call_b64 %s, Lst_mq" % sr(sRET, 2))
        LB("Lwm%d" % k)
A("s_cmp_ge_u32 s%d, 2" % sW)
A("s_cbranch_scc0 Lhx5")
A("s_waitcnt vmcnt(%d)" % (4 + QT))
LB("Lhx5")
A("s_waitcnt vmcnt(%d)" % (5 + QT))
STAMP(1)
A("s_branch Llnq")
LB("Lq_first")
if DRY:
    A("s_cmp_lg_u32 s%d, 0" % sIT)
    A("s_cbranch_scc1 Lq_dry")
A("s_waitcnt vmcnt(0) lgkmcnt(0)")
STAMP(2)
lds_arrive(0, vT + 4)
tags()
A("s_or_b32 s%d, s%d, s%d" % (sXCC, sXCC, sTG2))
C("4 helper arrivals (wq tile, xn rows) + 4 main arrivals (coefficients landed, sentinels acknowledged)")
lds_spin(0, 4, vT + 4)
STAMP(6)
LB("Lq_dry")
wqf_reads()
A("s_waitcnt lgkmcnt(0)")
A("s_branch Lq_go")
LB("Lh_qst")
if DRY:
    A("s_cmp_lg_u32 s%d, 0" % sIT)
    A("s_cbranch_scc1 Ldry_done")
STAMP(5)
A("v_mov_b32 v%d, s%d" % (W + 6, sTG1))
A("v_mov_b32 v%d, s%d" % (W + 7, sXCC))
A("buffer_store_dwordx4 %s, v%d, %s, s%d offen%s" % (vr(W + 4, 4), vQST, sr(sWS, 4), sQS, "" if int(OPT.get("fast", 1)) else " sc1"))
A("s_add_u32 s%d, s%d, %s" % (sQS, sQS, hx(QB_DELTA)))
if not QBD: A("buffer_store_dwordx4 %s, v%d, %s, s%d offen sc1" % (vr(W + 4, 4), vQST, sr(sWS, 4), sQS))
A("s_mov_b64 exec, -1")
HR = W + 8
if ADP: lds_arrive(28, 24)
if HP: A("s_setprio 0")
STAMP(3)
A("v_lshlrev_b32 v26, 3, v%d" % vLANE)
lds_spin(24, 4, 24, sleep=1)
for a_ in range(3):
    for k in range(3):
        A("ds_read_b128 %s, v%d offset:%d" % (vr(HR + 14 * a_ + 4 * k, 4), vL16, 4096 * a_ + 1024 * k))
    A("ds_read_b64 %s, v26 offset:%d" % (vr(HR + 14 * a_ + 12, 2), 4096 * a_ + 3072))
for a_, d in [(0, HW1), (14, HB1), (28, HW2)]:
    A("s_waitcnt lgkmcnt(%d)" % (8 - 4 * (a_ // 14)))
    for p in range(14):
        A("v_lshlrev_b32 v%d, 16, v%d" % (d + 2 * p, HR + a_ + p))
        A("v_and_b32 v%d, 0xffff0000, v%d" % (d + 2 * p + 1, HR + a_ + p))
A("s_load_dword s%d, %s, 0" % (sB2, sr(sB2P, 2)))
STAMP(4)
if DIAG:
    A("s_memtime s[42:43]"); A("s_waitcnt lgkmcnt(0)"); A("v_writelane_b32 v30, s42, 13")
LB("Lhl")
if DIAG:
    A("s_memrealtime s[42:43]"); A("s_add_u32 m0, s%d, 10" % sIT); A("s_waitcnt lgkmcnt(0)"); A("v_writelane_b32 v30, s42, m0")
A("s_mov_b32 s%d, s%d" % (sH, sHC)); A("s_mov_b32 s%d, s%d" % (sH + 1, sHC))
A("s_xor_b32 s%d, s%d, 0x80000000" % (sH2, sHC)); A("s_mov_b32 s%d, s%d" % (sH2 + 1, sH2))
U4 = [144, 146, 148, 150]; T4 = [152, 154, 156, 158]; Z4 = [160, 162, 164, 166]
for p2 in range(7):
    ch = [(2 * p2 + k // 2, k & 1) for k in range(4)]
    for k, (p, sg) in enumerate(ch):
        A("v_pk_fma_f32 %s, %s, %s, %s" % (vr(U4[k], 2), vr(HW1 + 2 * p, 2), sr([sH, sH2][sg], 2), vr(HB1 + 2 * p, 2)))
    for k in range(4): A("v_pk_mul_f32 %s, %s, %s" % (vr(T4[k], 2), vr(U4[k], 2), vr(U4[k], 2)))
    for k in range(4): A("v_pk_fma_f32 %s, %s, %s, %s" % (vr(T4[k], 2), vr(T4[k], 2), vr(hK1, 2), vr(hK0, 2)))
    for k in range(4): A("v_pk_mul_f32 %s, %s, %s" % (vr(T4[k], 2), vr(T4[k], 2), vr(U4[k], 2)))
    for k in range(4):
        for h in range(2): A("v_exp_f32 v%d, v%d" % (T4[k] + h, T4[k] + h))
    for k, (p, sg) in enumerate(ch): A("v_pk_mul_f32 %s, %s, %s" % (vr(Z4[k], 2), vr(U4[k], 2), vr(HW2 + 2 * p, 2)))
    for k in range(4): A("v_pk_add_f32 %s, %s, %s" % (vr(T4[k], 2), vr(T4[k], 2), vr(hONE, 2)))
    for k in range(4):
        for h in range(2): A("v_rcp_f32 v%d, v%d" % (T4[k] + h, T4[k] + h))
    for k, (p, sg) in enumerate(ch):
        if p == 0: A("v_pk_mul_f32 %s, %s, %s" % (vr(AC[sg], 2), vr(Z4[k], 2), vr(T4[k], 2)))
        else: A("v_pk_fma_f32 %s, %s, %s, %s" % (vr(AC[sg], 2), vr(Z4[k], 2), vr(T4[k], 2), vr(AC[sg], 2)))
A("v_add_f32 v%d, v%d, v%d" % (AC[0], AC[0], AC[0] + 1))
A("v_add_f32 v%d, v%d, v%d" % (AC[1], AC[1], AC[1] + 1))
A("s_lshl_b32 m0, s%d, 1" % sIT)
A("s_add_u32 s%d, s%d, 0x10000" % (sHC, sHC))
wave_sum2(AC[0], AC[1], sSUM, sSQ)
A("s_add_u32 s%d, s%d, 1" % (sIT, sIT))
A("s_nop 0")
A("v_writelane_b32 v%d, s%d, m0" % (hRES, sSUM))
A("s_add_u32 m0, m0, 1")
A("s_cmp_lg_u32 s%d, %d" % (sIT, EPW))
A("v_writelane_b32 v%d, s%d, m0" % (hRES, sSQ))
A("s_cbranch_scc1 Lhl")
def h_publish(lanes):
    A("v_cvt_pk_bf16_f32 v%d, v%d, v%d" % (hRES, hRES, hRES))
    A("v_and_b32 v%d, 0xffff0000, v%d" % (hRES, hRES))
    A("v_add_f32 v%d, s%d, v%d" % (hRES, sB2, hRES))
    A("v_cvt_pk_bf16_f32 v%d, v%d, v%d" % (hRES, hRES, hRES))
    A("v_and_b32 v%d, 0xffff0000, v%d" % (hRES + 1, hRES))
    A("s_mov_b64 exec, %d" % lanes)
    A("buffer_store_dword v%d, v27, %s, s%d offen sc1" % (hRES + 1, sr(sWS, 4), sHT))
    A("s_mov_b64 exec, -1")
A("s_waitcnt lgkmcnt(0)")
A("s_lshl_b32 s%d, s%d, 16" % (sB2, sB2))
lds_spin(8, 4, 24)
h_publish((1 << (2 * EPW)) - 1)
if QBD:
    C("the write-through copy of q is only needed when the group is not known to sit on one XCD")
    A("ds_read_b32 v24, v%d offset:4" % vFL)
    A("s_waitcnt lgkmcnt(0)")
    A("v_readfirstlane_b32 s%d, v24" % sT0)
    A("s_cmp_eq_u32 s%d, 4" % sT0)
    A("s_cbranch_scc1 Lhqb")
    A("s_mov_b64 exec, %s" % sr(sMSK, 2))
    A("buffer_store_dwordx4 %s, v%d, %s, s%d offen sc1" % (vr(W + 4, 4), vQST, sr(sWS, 4), sQS))
    A("s_mov_b64 exec, -1")
    LB("Lhqb")
STAMP(8)
if XENT:
    A("s_mov_b32 s%d, s%d" % (sH, sHX)); A("s_mov_b32 s%d, s%d" % (sH + 1, sHX))
    for grp in [[0, 1, 2, 3], [4, 5, 6, 7], [8, 9, 10], [11, 12, 13]]:
        n = len(grp)
        for k, p in enumerate(grp): A("v_pk_fma_f32 %s, %s, %s, %s" % (vr(U4[k], 2), vr(HW1 + 2 * p, 2), sr(sH, 2), vr(HB1 + 2 * p, 2)))
        for k in range(n): A("v_pk_mul_f32 %s, %s, %s" % (vr(T4[k], 2), vr(U4[k], 2), vr(U4[k], 2)))
        for k in range(n): A("v_pk_fma_f32 %s, %s, %s, %s" % (vr(T4[k], 2), vr(T4[k], 2), vr(hK1, 2), vr(hK0, 2)))
        for k in range(n): A("v_pk_mul_f32 %s, %s, %s" % (vr(T4[k], 2), vr(T4[k], 2), vr(U4[k], 2)))
        for k in range(n):
            for h in range(2): A("v_exp_f32 v%d, v%d" % (T4[k] + h, T4[k] + h))
        for k, p in enumerate(grp): A("v_pk_mul_f32 %s, %s, %s" % (vr(Z4[k], 2), vr(U4[k], 2), vr(HW2 + 2 * p, 2)))
        for k in range(n): A("v_pk_add_f32 %s, %s, %s" % (vr(T4[k], 2), vr(T4[k], 2), vr(hONE, 2)))
        for k in range(n):
            for h in range(2): A("v_rcp_f32 v%d, v%d" % (T4[k] + h, T4[k] + h))
        for k, p in enumerate(grp):
            if p < 2: A("v_pk_mul_f32 %s, %s, %s" % (vr(AC[p & 1], 2), vr(Z4[k], 2), vr(T4[k], 2)))
            else: A("v_pk_fma_f32 %s, %s, %s, %s" % (vr(AC[p & 1], 2), vr(Z4[k], 2), vr(T4[k], 2), vr(AC[p & 1], 2)))
    A("v_add_f32 v%d, v%d, v%d" % (AC[0], AC[0], AC[0] + 1))
    A("v_add_f32 v%d, v%d, v%d" % (AC[1], AC[1], AC[1] + 1))
    A("v_add_f32 v%d, v%d, v%d" % (AC[0], AC[0], AC[1]))
    A("s_nop 1")
    wave_sum2(AC[0], AC[1], sSUM, sSQ)
    A("s_nop 1")
    A("v_mov_b32 v%d, s%d" % (hRES, sSUM))
    A("v_cvt_pk_bf16_f32 v%d, v%d, v%d" % (hRES, hRES, hRES))
    A("v_and_b32 v%d, 0xffff0000, v%d" % (hRES, hRES))
    A("v_add_f32 v%d, s%d, v%d" % (hRES, sB2, hRES))
    A("v_cvt_pk_bf16_f32 v%d, v%d, v%d" % (hRES, hRES, hRES))
    A("v_and_b32 v%d, 0xffff0000, v%d" % (hRES, hRES))
    C("the last of the four helpers stores the workgroup's four extra entries with one instruction")
    A("s_lshl_b32 s%d, s%d, 2" % (sT0, sW))
    A("v_add_u32 v16, s%d, v%d" % (sT0, vFL))
    A("v_mov_b32 v17, 1")
    A("s_mov_b64 exec, 1")
    A("ds_write_b32 v16, v%d offset:32" % hRES)
    A("s_waitcnt lgkmcnt(0)")
    A("ds_add_rtn_u32 v18, v%d, v17 offset:28" % vFL)
    A("s_waitcnt lgkmcnt(0)")
    A("v_readfirstlane_b32 s%d, v18" % sT0)
    A("s_cmp_lg_u32 s%d, 3" % sT0)
    A("s_cbranch_scc1 Lhx_end")
    A("ds_read_b128 v[20:23], v%d offset:32" % vFL)
    A("s_lshl_b32 s%d, s2, 4" % sT0)
    A("v_mov_b32 v16, s%d" % sT0)
    A("s_waitcnt lgkmcnt(0)")
    A("buffer_store_dwordx4 v[20:23], v16, %s, s%d offen sc1" % (sr(sWS, 4), sHT))
    LB("Lhx_end")
    A("s_mov_b64 exec, -1")
if DIAG:
    A("s_memtime s[42:43]"); A("s_waitcnt lgkmcnt(0)"); A("v_writelane_b32 v30, s42, 14")
    STAMP(15)
STAMP(7)
if DIAG:
    A("s_add_u32 s%d, s%d, 4" % (sW, sW))
    A("v_mov_b32 v28, v30")
    A("s_branch Lfin_exit")
A("s_endpgm")

LB("Lmain")
for s, off in [(sWS, 96), (sV, 16), (sWO, 32), (sOUT, 80), (sX, 0), (sB2P, 72)]:
    A("s_load_dwordx2 %s, s[0:1], %d" % (sr(s, 2), off))
if DIAG == 2: A("s_load_dwordx2 s[100:101], s[0:1], 88")
srd(sWS, WS_SZ)
for s in [sW1, sB1, sW2]: srd(s, 3584)
A("s_lshl_b32 s%d, s%d, 10" % (sT3, sW))
A("s_barrier")
for i in range(D0, DC): kv_issue(i)
A("s_mov_b32 m0, s%d" % sT3)
for i, sd in enumerate([sW1, sB1, sW2]):
    if i: A("s_addk_i32 m0, 0x1000")
    A("s_nop 0")
    A("buffer_load_dwordx4 v%d, %s, s%d offen lds" % (vL16, sr(sd, 4), sT3))
for i in range(DC, D1): kv_issue(i)
for i in range(4): A("v_mov_b32 v%d, -1" % (W + i))
A("s_lshl_b32 s%d, s%d, 17" % (sGR, sJ))
A("s_mov_b32 s%d, s%d" % (sT1, sM))
A("s_waitcnt lgkmcnt(0)")
A("s_load_dword s%d, %s, %s" % (sE, sr(sWS, 2), hx(EPO)))
STAMP(11)
for s, n in [(sV, 1 << 25), (sX, 4096), (sWO, 1 << 22), (sOUT, 4096)]: srd(s, n)
A("v_lshlrev_b32 v18, 1, v16")
A("v_xor_b32 v18, v17, v18")
A("v_lshlrev_b32 v18, 4, v18")
A("v_lshl_add_u32 v%d, v16, 8, v18" % vVA)
if ROT:
    A("s_and_b32 s%d, s%d, 1" % (sT0, sC))
    A("s_lshl_b32 s%d, s%d, 7" % (sT0, sT0))
    A("v_xor_b32 v%d, s%d, v%d" % (vVA, sT0, vVA))
A("v_xor_b32 v%d, 128, v%d" % (vVA + 1, vVA))
C("late sentinels: wave 0,1: group region ; wave 2: P chunk")
A("s_lshr_b32 s%d, s2, 3" % sT1)
A("s_mul_i32 s%d, s%d, %d" % (sT1, sT1, CLRB_PER))
A("s_lshl_b32 s%d, s%d, 10" % (sT0, sW))
A("s_add_u32 s%d, s%d, s%d" % (sT1, sT1, sT0))
A("s_add_u32 s%d, s%d, s%d" % (sT1, sT1, sGR))
A("s_add_u32 s%d, s%d, %d" % (sT1, sT1, CLRB_OFF))
A("s_lshl_b32 s%d, s2, 10" % sT0)
A("s_add_u32 s%d, s%d, %s" % (sT0, sT0, hx(PB)))
A("s_cmp_ge_u32 s%d, 2" % sW)
A("s_cselect_b32 s%d, s%d, s%d" % (sT1, sT0, sT1))
A("s_bfm_b64 %s, %d, 0" % (sr(sH, 2), (CLRB_PER - 1024) // 16))
A("s_cmp_eq_u32 s%d, 1" % sW)
A("s_cselect_b64 %s, %s, -1" % (sr(sH, 2), sr(sH, 2)))
NCL = NOCT * 4 // 16
A("v_mov_b32 v19, v%d" % vL16)
A("s_cmp_lg_u32 s%d, 3" % sW)
A("s_cbranch_scc1 Lm_c3")
C("wave 3: this workgroup's table slots")
A("s_mul_i32 s%d, s2, %d" % (sT0, NOCT * 4))
A("s_add_u32 s%d, s%d, %d" % (sT0, sT0, XENT * 4))
A("v_add_u32 v19, s%d, v19" % sT0)
A("s_lshl_b32 s%d, s2, 4" % sT0)
if XENT: A("v_writelane_b32 v19, s%d, %d" % (sT0, NCL))
A("s_mov_b32 s%d, %s" % (sT1, hx(TB)))
A("s_mov_b64 %s, %d" % (sr(sH, 2), (1 << (NCL + (1 if XENT else 0))) - 1))
LB("Lm_c3")
A("s_mov_b64 exec, %s" % sr(sH, 2))
A("buffer_store_dwordx4 %s, v19, %s, s%d offen sc1" % (vr(W, 4), sr(sWS, 4), sT1))
A("s_mov_b64 exec, -1")

common_addr()
A("s_add_u32 s%d, s%d, s%d" % (sQS, sQS, sGR))
A("s_add_u32 s%d, s%d, %d" % (sQS, sQS, Q1_OFF))
wtile_voff(10, 22)
A("v_and_b32 v19, 7, v%d" % vLANE)
A("v_lshrrev_b32 v25, 2, v%d" % vLANE)
A("v_lshlrev_b32 v25, 7, v25")
A("v_lshl_add_u32 v%d, v18, 2, v25" % vOST)
A("v_lshlrev_b32 v25, 7, v16")
A("v_lshl_add_u32 v%d, v19, 4, v25" % vOLD)
C("lanes n>=8 of the first two o loads fetch the lse values instead: offset relative to the o block")
A("s_mul_i32 s%d, s%d, %d" % (sT0, sA, 128 - 8192))
A("s_mul_i32 s%d, s%d, %d" % (sT1, sW, 32 - 2048))
A("s_add_u32 s%d, s%d, s%d" % (sT0, sT0, sT1))
A("s_add_u32 s%d, s%d, %d" % (sT0, sT0, LSE_OFF[0] - O_OFF[0]))
A("v_add_u32 v25, s%d, v%d" % (sT0, vLSE))
A("v_xor_b32 v26, 16, v25")
A("v_add_u32 v26, -512, v26")
A("v_cmp_gt_u32 vcc, 8, v17")
A("s_nop 1")
A("v_cndmask_b32 v%d, v25, v%d, vcc" % (vLSE, vOLD))
A("v_cndmask_b32 v%d, v26, v%d, vcc" % (vLS2, vOLD))
A("v_lshlrev_b32 v%d, 1, v%d" % (vPST, vLANE))
A("v_lshlrev_b32 v25, 3, v16")
A("v_lshl_add_u32 v%d, v19, 4, v25" % vX1S)
A("s_mul_i32 s%d, s%d, %d" % (sT0, sW, RBS))
A("s_add_u32 s%d, s%d, %d" % (sT0, sT0, L_RB))
A("v_mul_u32_u24 v25, 528, v18")
A("v_lshl_add_u32 v25, v16, 4, v25")
A("v_lshrrev_b32 v26, 2, v17")
A("v_lshl_add_u32 v25, v26, 7, v25")
A("v_add_u32 v%d, s%d, v25" % (vRBW, sT0))
A("s_mul_i32 s%d, s%d, 528" % (sT0, sW))
A("s_add_u32 s%d, s%d, %d" % (sT0, sT0, L_RB))
A("v_lshlrev_b32 v25, 3, v%d" % vLANE)
A("v_add_u32 v%d, s%d, v25" % (vRBR, sT0))
A("s_lshl_b32 s%d, s%d, 3" % (sT0, sW))
A("s_add_u32 s%d, s%d, %d" % (sT0, sT0, L_ML))
A("v_lshlrev_b32 v25, 5, v18")
A("v_add_u32 v%d, s%d, v25" % (vMLW, sT0))
A("s_lshl_b32 s%d, s%d, 5" % (sT0, sW))
A("s_add_u32 s%d, s%d, %d" % (sT0, sT0, L_ML))
A("v_mov_b32 v%d, s%d" % (vMLR, sT0))
A("v_mov_b32 v25, 0x3f80")
A("v_mov_b32 v26, 0x3f800000")
for r in range(4):
    A("v_cmp_eq_u32 vcc, %d, v17" % (2 * r))
    A("v_cmp_eq_u32 %s, %d, v17" % (sr(sH, 2), 2 * r + 1))
    A("s_nop 0")
    A("v_cndmask_b32 v%d, 0, v25, vcc" % (SEL + r))
    A("v_cndmask_b32 v%d, v%d, v26, %s" % (SEL + r, SEL + r, sr(sH, 2)))
for i in range(16): A("v_mov_b32 v%d, 0" % (PM + i))
for p in range(4):
    A("s_mov_b32 s%d, %s" % (sPM + 2 * p, hx(0x000f000f << (4 * p))))
    A("s_mov_b32 s%d, %s" % (sPM + 2 * p + 1, hx(0x000f000f << (4 * p))))
soff(sOS, [(sW, 13), (sA, 11), (sC, 4), (sJ, 17)], O_OFF[0])
soff(sOL, [(sA, 13), (sW, 11), (sJ, 17)], O_OFF[0])
A("s_add_u32 s%d, s%d, %s" % (sQL, sOL, hx(Q0_OFF - O_OFF[0])))
soff(sLS, [(sW, 7), (sA, 5), (sC, 2), (sJ, 17)], LSE_OFF[0])
soff(sPS, [(sW, 15), (sC, 12), (sJ, 9), (sA, 7)], PB)
A("s_mov_b32 s%d, %s" % (sSC, hx(f2u(128 ** -0.5 * math.log2(math.e)))))
A("s_getreg_b32 s%d, hwreg(HW_REG_XCC_ID, 0, 3)" % sXCC)
A("v_xor_b32 v24, v16, v17")
A("v_lshlrev_b32 v24, 4, v24")
A("v_lshl_add_u32 v24, v17, 8, v24")
A("s_lshl_b32 s%d, s%d, 13" % (sT1, sW))
A("s_add_u32 s%d, s%d, %d" % (sT2, sT1, L_K))
for t in range(4): A("v_xor_b32 v%d, %d, v24" % (18 + t, 64 * t))
for t in range(4): A("v_add_u32 v%d, s%d, v%d" % (18 + t, sT2, 18 + t))
VA = W + 32
A("v_lshrrev_b32 v24, 2, v%d" % vLANE)
A("v_and_b32 v25, 7, v24")
A("v_lshlrev_b32 v25, 1, v25")
A("v_bfe_u32 v26, v%d, 1, 1" % vLANE)
A("v_xor_b32 v25, v25, v26")
A("v_lshlrev_b32 v25, 4, v25")
A("v_lshl_add_u32 v25, v24, 8, v25")
A("v_and_b32 v26, 1, v%d" % vLANE)
A("v_lshl_add_u32 v25, v26, 3, v25")
A("s_add_u32 s%d, s%d, %d" % (sT2, sT1, L_V))
for t in range(8): A("v_xor_b32 v%d, %d, v25" % (VA + t, 32 * t))
for t in range(8): A("v_add_u32 v%d, s%d, v%d" % (VA + t, sT2, VA + t))
soff(sT4, [(sJ, 19), (sA, 17), (sW, 15), (sC, 7)], 0)
A("s_lshl_b32 s%d, s%d, 12" % (sT5, sW))
A("s_add_u32 s%d, s%d, %d" % (sT5, sT5, L_WO))
soff(sT3, [(sA, 10), (sC, 7)], 0)
A("v_lshlrev_b32 v24, 5, v%d" % vLANE)
A("s_lshl_b32 s%d, s%d, 10" % (sT2, sW))
A("s_add_u32 s%d, s%d, %d" % (sT2, sT2, L_QF))
A("v_add_u32 v25, s%d, v%d" % (sT2, vL16))
A("v_add_u32 v26, %d, v%d" % (L_QF, vL16))
STAMP(12)
if DIAG: A("v_mov_b32 v31, v30")
QP = W
def q0_issue(QP=QP):
    A("buffer_load_dwordx4 %s, v24, %s, s%d offen sc1" % (vr(QP, 4), sr(sWS, 4), sQL))
    A("buffer_load_dwordx4 %s, v24, %s, s%d offen offset:16 sc1" % (vr(QP + 4, 4), sr(sWS, 4), sQL))
def flag_block():
    if True:
        A("s_cmp_lg_u32 s%d, 0" % sW)
        A("s_cbranch_scc1 Lnoflag")
        C("every sentinel store of this workgroup is acknowledged: announce it")
        lds_spin(8, 4, vT)
        A("v_mov_b32 v16, s%d" % sTG1)
        A("v_mov_b32 v17, s%d" % sXCC)
        soff(sT1, [(2, 4)], FB)
        A("v_mov_b32 v21, 0")
        A("s_mov_b64 exec, 1")
        A("buffer_store_dwordx2 v[16:17], v21, %s, s%d offen sc1" % (sr(sWS, 4), sT1))
        A("s_mov_b64 exec, -1")
        LB("Lnoflag")
C("coefficients landed -> tell the helpers")
young = D1 - DC + 1
told = False
if ECO:
    A("s_waitcnt vmcnt(%d)" % young); lds_arrive(24, vT); told = True
A("s_mov_b32 s%d, 0" % sY)
for i in range(D1, 16):
    dp = DEPTH if i < TAILI else TAILD
    extra = 1 if i == 16 - QV else 0
    if ADP and told:
        C("stay shallow until the helpers have issued their q stores")
        A("s_cmp_lg_u32 s%d, 0" % sY)
        A("s_cbranch_scc1 Ldp%d" % i)
        A("ds_read_b32 v%d, v%d offset:28" % (vT, vFL))
        A("s_waitcnt lgkmcnt(0)")
        A("v_readfirstlane_b32 s%d, v%d" % (sT1, vT))
        A("s_cmp_ge_u32 s%d, 4" % sT1)
        A("s_cselect_b32 s%d, 1, 0" % sY)
        A("s_cbranch_scc1 Ldp%d" % i)
        A("s_waitcnt vmcnt(%d)" % (dp - 1 - 2 * extra))
        LB("Ldp%d" % i)
        A("s_waitcnt vmcnt(%d)" % (ADP - 1 - 2 * extra))
        if extra: q0_issue(); young += 2
    else:
        if extra:
            A("s_waitcnt vmcnt(%d)" % (dp - 2)); q0_issue(); young += 2
        A("s_waitcnt vmcnt(%d)" % (dp - 1))
    if not told and young >= dp - 1:
        lds_arrive(24, vT); told = True
    kv_issue(i); young += 1
assert told
q0_issue(QP + 8)
C("everything older than the V loads is complete: K, late sentinels")
A("s_waitcnt vmcnt(12)")
lds_arrive(8, vT)
A("s_waitcnt lgkmcnt(0)")
tags()
A("s_or_b32 s%d, s%d, s%d" % (sXCC, sXCC, sTG2))
STAMP(1)
for t in range(4):
    for T in range(2):
        A("ds_read_b128 %s, v%d offset:%d" % (vr(KF + 16 * T + 4 * t, 4), 18 + t, 4096 * T))
flag_block()
def wait_w0(n):
    uid[0] += 1
    A("s_cmp_eq_u32 s%d, 0" % sW)
    A("s_cbranch_scc1 Lww%d" % uid[0])
    A("s_waitcnt vmcnt(%d)" % n)
    LB("Lww%d" % uid[0])
    A("s_waitcnt vmcnt(%d)" % (n + 1))
wait_w0(QV + 2)
STAMP(2)
A("s_setprio 2")
A("s_mov_b32 s%d, %s" % (sCNT, hx(SPIN)))
A("s_mov_b32 s%d, 0" % sY)
LB("Lmq")
A("v_and_b32 v16, -8, v%d" % (QP + 3))
A("v_and_b32 v17, -8, v%d" % (QP + 7))
A("v_cmp_ne_u32 vcc, s%d, v%d" % (sTG1, QP + 2))
A("v_cmp_ne_u32 %s, s%d, v%d" % (sr(sRET, 2), sTG1, QP + 6))
A("s_or_b64 vcc, vcc, %s" % sr(sRET, 2))
A("v_cmp_ne_u32 %s, s%d, v16" % (sr(sRET, 2), sTG2))
A("s_or_b64 vcc, vcc, %s" % sr(sRET, 2))
A("v_cmp_ne_u32 %s, s%d, v17" % (sr(sRET, 2), sTG2))
A("s_or_b64 vcc, vcc, %s" % sr(sRET, 2))
if not int(OPT.get("nochk", 0)): A("s_cbranch_vccnz Lmqr")
LB("Lmqd")
if DIAG:
    A("s_sub_u32 s%d, s%d, s%d" % (sT0, sCNT, sY)); A("v_writelane_b32 v31, s%d, 0" % sT0)
Ls = L; L = []
L.append(".p2align 6"); LB("Lst_mq"); A("s_setpc_b64 %s" % sr(sRET, 2))
LB("Lmqr")
A("s_cmp_lg_u32 s%d, 0" % sY)
A("s_cbranch_scc1 Lmqr2")
C("first look failed: take the second one (V has landed with it: request its fragments now)")
A("s_waitcnt vmcnt(0)")
A("s_mov_b32 s%d, 1" % sY)
for k in range(8): A("v_mov_b32 v%d, v%d" % (QP + k, QP + 8 + k))
for t in range(8):
    for hf in range(2):
        A("ds_read_b64_tr_b16 %s, v%d offset:%d" % (vr(VF + 4 * t + 2 * hf, 2), VA + t, 4096 * hf))
A("s_branch Lmq")
LB("Lmqr2")
C("still not there: poll the plain copy a few times, then the write-through copy")
A("s_cmp_eq_u32 s%d, %s" % (sCNT, hx(SPIN - 8)))
A("s_cselect_b32 s%d, %s, 0" % (sT0, hx(QB_DELTA)))
A("s_add_u32 s%d, s%d, s%d" % (sQL, sQL, sT0))
q0_issue()
A("s_waitcnt vmcnt(0)")
A("s_sub_u32 s%d, s%d, 1" % (sCNT, sCNT))
A("s_cbranch_scc0 Lmq")
A("s_branch Lmqd")
ool.append(L); L = Ls
A("v_cmp_ne_u32 vcc, s%d, v%d" % (sXCC, QP + 3))
A("v_mov_b32 v%d, v%d" % (QP + 2, QP + 4))
A("v_mov_b32 v%d, v%d" % (QP + 3, QP + 5))
A("ds_write_b128 v25, %s" % vr(QP, 4))
A("s_cmp_eq_u64 vcc, 0")
A("s_cselect_b32 s%d, 1, 0x101" % sT0)
A("v_mov_b32 v16, s%d" % sT0)
A("s_waitcnt lgkmcnt(0)")
lds_arrive(4, 16, None)
STAMP(15)
A("buffer_load_dwordx2 %s, v%d, %s, s%d offen" % (vr(RES + 2, 2), vX1S, sr(sX, 4), sT3))
FLG = W + 44
soff(sIT, [(sW, 10)], FB)
soff(sQL, [(sA, 12), (sJ, 17)], Q1_OFF)
for k in range(4):
    A("s_add_u32 s%d, s%d, %d" % (sT0, sC, k))
    A("s_and_b32 s%d, s%d, 3" % (sT0, sT0))
    A("s_lshl_b32 s%d, s%d, 10" % (sKO + k, sT0))
A("s_and_b32 s%d, s%d, 1" % (sT0, sC))
A("s_lshl_b32 s%d, s%d, 6" % (sT0, sT0))
A("v_xor_b32 v22, s%d, v22" % sT0); A("v_xor_b32 v23, s%d, v23" % sT0)
A("s_lshl_b32 s%d, s%d, 2" % (sT3, sM))
A("s_add_u32 s%d, s%d, s%d" % (sT3, sT3, sW))
A("s_mul_i32 s%d, s%d, 768" % (sT3, sT3))
A("s_add_u32 s%d, s%d, s%d" % (sT3, sT3, sGR))
A("v_lshlrev_b32 v21, 7, v%d" % vLANE)
lds_spin(4, 4, vT, mask=0xff)
A("s_cmp_lt_u32 s%d, 256" % sT1)
A("s_cselect_b32 s%d, %d, 0" % (sFAST, int(OPT.get("fast", 1))))
QF = W + 16
for t in range(4):
    A("ds_read_b128 %s, v26 offset:%d" % (vr(QF + 4 * t, 4), 1024 * t))
S = W
qk = []
for t in range(4):
    for T in range(2):
        qk.append(mf(S + 4 * T, KF + 16 * T + 4 * t, QF + 4 * t, None if t == 0 else S + 4 * T))
for t in range(4):
    A("s_waitcnt lgkmcnt(%d)" % (3 - t))
    A(qk[2 * t]); A(qk[2 * t + 1])
def wo_issue():
    C("every wave holds its K fragments: the wo tile may land in the K area")
    for k in range(4):
        A("s_add_u32 m0, s%d, s%d" % (sT5, sKO + k))
        A("s_lshl3_add_u32 s%d, s%d, s%d" % (sT0, sKO + k, sT4))
        A("buffer_load_dwordx4 v%d, %s, s%d offen nt lds" % (22 + (k & 1), sr(sWO, 4), sT0))
if WOP == 0: wo_issue()
if PRET:
    C("bring the (cleared) group mailbox lines into L2")
    A("s_mov_b64 exec, 63")
    A("buffer_load_dword v%d, v21, %s, s%d offen sc1" % (W + 40, sr(sWS, 4), sT3))
    A("s_mov_b64 exec, -1")
STAMP(3)
A("s_branch Lk_go")

LB("Llnq")
C("LayerNorm of the row held in XR, then q partial = xn @ wq tile")
X = W
row_stats(XR, vT, X)
A("v_add_f32 v%d, %s, v%d" % (vT + 1, EPS, vT + 1))
A("v_rsq_f32 v%d, v%d" % (vT + 2, vT + 1))
A("s_cmp_eq_u32 s%d, 0" % sLAY)
A("v_mul_f32 v%d, v%d, v%d" % (vT + 3, vT, vT + 2))
for i in range(4):
    A("v_pk_fma_f32 %s, %s, %s, %s op_sel:[0,0,1] op_sel_hi:[1,0,1] neg_lo:[0,0,1] neg_hi:[0,0,1]" % (vr(X + 2 * i, 2), vr(X + 2 * i, 2), vr(vT + 2, 2), vr(vT + 2, 2)))
for i in range(4):
    A("v_cvt_pk_bf16_f32 v%d, v%d, v%d" % (X + 8 + i, X + 2 * i, X + 2 * i + 1))
A("ds_write_b128 v%d, %s" % (vXNW, vr(X + 8, 4)))
A("s_cbranch_scc1 Lq_first")
A("s_waitcnt lgkmcnt(0)")
A("s_barrier")
LB("Lq_go")
BF = W + 16
for t in range(4):
    A("ds_read_b128 %s, v%d offset:%d" % (vr(BF + 4 * t, 4), vXNR, 64 * t))
for t in range(4):
    A("s_waitcnt lgkmcnt(%d)" % (3 - t))
    mfma(W, WQF + 4 * t, BF + 4 * t, None if t == 0 else W)
A("s_cmp_eq_u32 s%d, 0" % sLAY)
A("s_mov_b64 exec, %s" % sr(sMSK, 2))
NOP(6)
A("v_cvt_pk_bf16_f32 v%d, v%d, v%d" % (W + 4, W, W + 1))
A("v_cvt_pk_bf16_f32 v%d, v%d, v%d" % (W + 5, W + 2, W + 3))
A("s_cbranch_scc1 Lh_qst")
fastcmp()
store_local("buffer_store_dwordx2", vr(W + 4, 2), vQST, sQS)
A("s_mov_b64 exec, -1")
STAMP(2)

C("attention over this workgroup's 128 keys")
if QS:
    C("each wave fetches one k-step of q and shares it through LDS")
    A("s_lshl_b32 s%d, s%d, 10" % (sT3, sW))
    A("s_add_u32 s%d, s%d, s%d" % (sT4, sQL, sT3))
    A("s_add_u32 s%d, s%d, %d" % (sT3, sT3, L_RB + 12288))
    A("v_add_u32 v25, s%d, v%d" % (sT3, vL16))
    A("v_add_u32 v26, %d, v%d" % (L_RB + 12288, vL16))
    ppoll(lambda k: A("buffer_load_dwordx4 %s, v%d, %s, s%d offen sc1" % (vr(W + 32 + 4 * k, 4), vL16, sr(sWS, 4), sT4)),
          lambda k: range(W + 32 + 4 * k, W + 36 + 4 * k), 1, vT, lambda k: ["ds_write_b128 v25, %s" % vr(W + 32 + 4 * k, 4)], pre=QPRE, gap=QGAP, tag=0)
    A("s_waitcnt lgkmcnt(0)")
    A("s_barrier")
    for t in range(4):
        A("ds_read_b128 %s, v26 offset:%d" % (vr(QF + 4 * t, 4), 1024 * t))
    for t in range(4):
        A("s_waitcnt lgkmcnt(%d)" % (3 - t))
        A(qk[2 * t]); A(qk[2 * t + 1])
    touch_stub("k")
else:
    def iq(k):
        for t in range(4):
            A("buffer_load_dwordx4 %s, v%d, %s, s%d offen offset:%d sc1" % (vr(QF + 16 * k + 4 * t, 4), vL16, sr(sWS, 4), sQL, 1024 * t))
    def qks(k):
        return [mf(S + 4 * T, KF + 16 * T + 4 * t, QF + 16 * k + 4 * t, None if t == 0 else S + 4 * T) for t in range(4) for T in range(2)]
    ppoll(iq, lambda k: range(QF + 16 * k, QF + 16 * k + 16), 4, vT, qks, pre=QPRE, gap=QGAP, tag=0, stub="k")
STAMP(3)
LB("Lk_go")
NOP(7)
for ctl in ["row_ror:4", "row_ror:8"]:
    for i in range(8):
        A("v_add_f32_dpp v%d, v%d, v%d %s row_mask:0xf bank_mask:0xf" % (S + i, S + i, S + i, ctl))
A("v_max3_f32 v%d, v%d, v%d, v%d" % (vT, S, S + 1, S + 2))
A("v_max3_f32 v%d, v%d, v%d, v%d" % (vT + 1, S + 3, S + 4, S + 5))
A("v_max3_f32 v%d, v%d, v%d, v%d" % (vT, vT, S + 6, S + 7))
A("v_max_f32 v%d, v%d, v%d" % (vT, vT, vT + 1))
A("v_mov_b32 v%d, v%d" % (vT + 1, vT))
A("s_nop 1")
A("v_permlane16_swap_b32 v%d, v%d" % (vT, vT + 1))
A("v_max_f32 v%d, v%d, v%d" % (vT, vT, vT + 1))
A("v_mov_b32 v%d, v%d" % (vT + 1, vT))
A("s_nop 1")
A("v_permlane32_swap_b32 v%d, v%d" % (vT, vT + 1))
A("v_max_f32 v%d, v%d, v%d" % (vT, vT, vT + 1))
A("v_mul_f32 v%d, s%d, v%d" % (vT + 2, sSC, vT))
for i in range(8):
    A("v_fma_f32 v%d, v%d, s%d, -v%d" % (S + i, S + i, sSC, vT + 2))
for i in range(8):
    A("v_exp_f32 v%d, v%d" % (S + i, S + i))
for p in range(4):
    A("s_mov_b64 exec, %s" % sr(sPM + 2 * p, 2))
    for i in range(4):
        A("v_cvt_pk_bf16_f32 v%d, v%d, v%d" % (PM + 4 * p + i, S + 2 * i, S + 2 * i + 1))
A("s_mov_b64 exec, -1")
STAMP(4)
A("s_cmp_lg_u32 s%d, 0" % sLAY)
A("s_cbranch_scc1 Lv_go")
wait_w0((5 if WOP == 0 else 1) + PRET)
if WOP == 1: wo_issue()
A("buffer_load_dwordx4 %s, v%d, %s, s%d offen sc1" % (vr(FLG, 4), vL16, sr(sWS, 4), sIT))
STAMP(6)
A("s_cmp_lg_u32 s%d, 0" % sY)
A("s_cbranch_scc1 Lv_have")
for t in range(8):
    for hf in range(2):
        A("ds_read_b64_tr_b16 %s, v%d offset:%d" % (vr(VF + 4 * t + 2 * hf, 2), VA + t, 4096 * hf))
A("s_waitcnt lgkmcnt(0)")
LB("Lv_have")
if TOT:
    A("s_memrealtime s[42:43]"); A("s_waitcnt lgkmcnt(0)"); A("s_mov_b32 s97, s42")
A("s_cmp_lg_u32 s%d, 0" % sLAY)
LB("Lv_go")
OA = W + 8
mfma(W + 16, ONES, PM, None)
for p in range(4):
    for T in range(2):
        mfma(OA + 4 * T, VF + 4 * (2 * p + T), PM + 4 * p, None if p == 0 else OA + 4 * T)
A("s_mov_b64 exec, %s" % sr(sMSK, 2))
A("v_mov_b32 v%d, v%d" % (vT + 3, W + 16))
A("ds_write_b64 v%d, %s" % (vMLW, vr(vT + 2, 2)))
A("s_mov_b64 exec, -1")
NOP(3)
A("ds_write_b128 v%d, %s" % (vRBW, vr(OA, 4)))
A("ds_write_b128 v%d, %s offset:64" % (vRBW, vr(OA + 4, 4)))
A("s_waitcnt lgkmcnt(0)")
A("s_cbranch_scc1 Lrb_bar")
lds_arrive(12, vT + 4)
if WOP == 2: wo_issue()
lds_spin(12, 4, vT + 4)
A("s_branch Lrb_go")
LB("Lrb_bar")
A("s_barrier")
LB("Lrb_go")
A("ds_read_b128 %s, v%d" % (vr(W, 4), vMLR))
A("ds_read_b128 %s, v%d offset:16" % (vr(W + 4, 4), vMLR))
for w in range(4):
    A("ds_read_b64 %s, v%d offset:%d" % (vr(W + 8 + 2 * w, 2), vRBR, RBS * w))
A("v_mov_b32 v%d, 0" % (vT + 4))
fastcmp()
A("s_waitcnt lgkmcnt(4)")
A("v_max3_f32 v%d, v%d, v%d, v%d" % (vT, W, W + 2, W + 4))
A("v_max_f32 v%d, v%d, v%d" % (vT, vT, W + 6))
for w in range(4): A("v_sub_f32 v%d, v%d, v%d" % (W + 2 * w, W + 2 * w, vT))
for w in range(4): A("v_exp_f32 v%d, v%d" % (W + 2 * w, W + 2 * w))
A("v_mul_f32 v%d, v%d, v%d" % (vT + 1, W, W + 1))
for w in range(1, 4): A("v_fmac_f32 v%d, v%d, v%d" % (vT + 1, W + 2 * w, W + 2 * w + 1))
A("s_waitcnt lgkmcnt(0)")
A("v_pk_mul_f32 %s, %s, %s op_sel_hi:[1,0]" % (vr(W + 8, 2), vr(W + 8, 2), vr(W, 2)))
A("v_rcp_f32 v%d, v%d" % (vT + 2, vT + 1))
A("v_pk_fma_f32 %s, %s, %s, %s op_sel_hi:[1,0,1]" % (vr(W + 8, 2), vr(W + 10, 2), vr(W + 2, 2), vr(W + 8, 2)))
A("v_log_f32 v%d, v%d" % (vT + 5, vT + 1))
for w in range(2, 4):
    A("v_pk_fma_f32 %s, %s, %s, %s op_sel_hi:[1,0,1]" % (vr(W + 8, 2), vr(W + 8 + 2 * w, 2), vr(W + 2 * w, 2), vr(W + 8, 2)))
A("v_pk_mul_f32 %s, %s, %s op_sel_hi:[1,0]" % (vr(W + 8, 2), vr(W + 8, 2), vr(vT + 2, 2)))
A("v_add_f32 v%d, v%d, v%d" % (vT + 5, vT + 5, vT))
A("v_cvt_pk_bf16_f32 v%d, v%d, v%d" % (W + 8, W + 8, W + 9))
store_local("buffer_store_dword", "v%d" % (W + 8), vOST, sOS)
A("s_mov_b64 exec, 1")
store_local("buffer_store_dword", "v%d" % (vT + 5), vT + 4, sLS)
A("s_mov_b64 exec, -1")
STAMP(5)

C("wo phase: wave = batch, rows = key splits")
OF = W; LS = W + 32; DA = WQF
assert LSE_OFF[1] - O_OFF[1] == LSE_OFF[0] - O_OFF[0]
def io(k):
    for t in range(4):
        A("buffer_load_dwordx4 %s, v%d, %s, s%d offen offset:%d sc1" % (vr(OF + 16 * k + 4 * t, 4), [vLSE, vLS2, vOLD, vOLD][t], sr(sWS, 4), sOL, 512 * t))
A("s_cmp_lg_u32 s%d, 0" % sLAY)
A("s_cbranch_scc1 Lo_go")
C("first layer: wo tile landed -> fragments; every workgroup has announced its clears")
if WOP == 3: wo_issue()
A("s_waitcnt vmcnt(%d)" % (2 if WOP < 3 else 0))
STAMP(13)
A("s_mov_b32 s%d, %s" % (sT4, hx(SPIN)))
LB("Lap")
A("v_and_b32 v24, -8, v%d" % (FLG + 1))
A("v_cmp_ne_u32 vcc, s%d, v%d" % (sTG1, FLG))
A("v_cmp_ne_u32 %s, s%d, v24" % (sr(sH, 2), sTG2))
A("s_or_b64 vcc, vcc, %s" % sr(sH, 2))
A("s_cbranch_vccnz Lar")
LB("Lad")
lds_arrive(16, 24)
for i in range(2):
    A("v_lshlrev_b32 v%d, 16, v%d" % (W + 40 + 2 * i, RES + 2 + i))
    A("v_and_b32 v%d, 0xffff0000, v%d" % (W + 41 + 2 * i, RES + 2 + i))
for i in range(4): A("v_mov_b32 v%d, v%d" % (RES + i, W + 40 + i))
for ct in range(4): A("v_xor_b32 v%d, %d, v%d" % (W + 40 + ct, 32 * ct, vWT))
for ct in range(4): A("v_add_u32 v%d, %d, v%d" % (W + 40 + ct, L_WO, W + 40 + ct))
lds_spin(16, 4, 24)
STAMP(14)
A("s_mov_b32 s%d, 1" % sY)
LB("Lo_go")
def pre_o():
    A("s_cmp_eq_u32 s%d, 0" % sY)
    A("s_cbranch_scc1 Lo_nof")
    A("s_mov_b32 s%d, 0" % sY)
    for t in range(4):
        for ct in range(4):
            for hf in range(2):
                A("ds_read_b64_tr_b16 %s, v%d offset:%d" % (vr(WOF + 16 * ct + 4 * t + 2 * hf, 2), W + 40 + ct, 4096 * t + 512 * hf))
    A("s_waitcnt lgkmcnt(0)")
    LB("Lo_nof")
ool.append(["Lar:", "    s_lshl_b32 s%d, s%d, 10" % (sT5, sW), "    s_add_u32 s%d, s%d, %s" % (sT5, sT5, hx(FB)),
            "    buffer_load_dwordx4 %s, v%d, %s, s%d offen sc1" % (vr(FLG, 4), vL16, sr(sWS, 4), sT5),
            "    s_waitcnt vmcnt(0)", "    s_sub_u32 s%d, s%d, 1" % (sT4, sT4), "    s_cbranch_scc0 Lap", "    s_branch Lad"])
def wo1(k): return [mf(DA + 4 * ct, OF + 16 * k + 4 * t, WOF + 16 * ct + 4 * t, None if t == 0 else DA + 4 * ct) for t in range(2) for ct in range(4)]
ppoll(io, lambda k: range(OF + 16 * k, OF + 16 * k + 16), 4, vT, wo1, pre=OPRE, gap=OGAP, mid=pre_o, tag=1,
      fix=["v_mov_b32 v%d, v%d" % (OF + i, OF + 16 + i) for i in range(16)])
STAMP(7)
C("softmax over the 8 key splits (lanes n>=8 hold own lse in OF[0:3], the other four in OF[4:7])")
va = ["v_max3_f32 v%d, v%d, v%d, v%d" % (vT, OF, OF + 1, OF + 2), "v_max3_f32 v%d, v%d, v%d, v%d" % (vT + 1, OF + 3, OF + 4, OF + 5),
      "v_max3_f32 v%d, v%d, v%d, v%d" % (vT, vT, OF + 6, OF + 7), "v_max_f32 v%d, v%d, v%d" % (vT, vT, vT + 1)]
va += ["v_sub_f32 v%d, v%d, v%d" % (LS + i, OF + i, vT) for i in range(4)]
va += ["v_exp_f32 v%d, v%d" % (LS + i, LS + i) for i in range(4)]
va += ["s_nop 0"]
va += ["v_mov_b32_dpp v%d, v%d row_ror:8 row_mask:0xf bank_mask:0x3" % (LS + i, LS + i) for i in range(4)]
va += ["v_add_f32 v%d, v%d, v%d" % (vT, LS, LS + 1), "v_add_f32 v%d, v%d, v%d" % (vT + 1, LS + 2, LS + 3),
       "v_add_f32 v%d, v%d, v%d" % (vT, vT, vT + 1), "v_mov_b32 v%d, v%d" % (vT + 1, vT)]
for t in range(2, 4):
    for ct in range(4):
        mfma(DA + 4 * ct, OF + 4 * t, WOF + 16 * ct + 4 * t, DA + 4 * ct)
        for k in range(3 if t == 3 or ct < 1 else 2):
            if va: A(va.pop(0))
assert not va
A("s_mov_b32 s%d, 0x55555555" % sT4)
A("s_mov_b32 s%d, 0x55555555" % sT5)
A("v_permlane16_swap_b32 v%d, v%d" % (vT, vT + 1))
A("v_mul_f32 v%d, v%d, v%d" % (DA, DA, LS))
A("v_add_f32 v%d, v%d, v%d" % (vT, vT, vT + 1))
A("v_mul_f32 v%d, v%d, v%d" % (DA + 4, DA + 4, LS))
A("v_rcp_f32 v%d, v%d" % (vT, vT))
A("v_mul_f32 v%d, v%d, v%d" % (DA + 8, DA + 8, LS))
for i in range(1, 4):
    for ct in range(3):
        A("v_fmac_f32 v%d, v%d, v%d" % (DA + 4 * ct, DA + 4 * ct + i, LS + i))
    if i == 1: A("v_mul_f32 v%d, v%d, v%d" % (DA + 12, DA + 12, LS))
for i in range(1, 4): A("v_fmac_f32 v%d, v%d, v%d" % (DA + 12, DA + 12 + i, LS + i))
A("v_permlane16_swap_b32 v%d, v%d" % (DA, DA + 4))
A("s_nop 0")
A("v_permlane16_swap_b32 v%d, v%d" % (DA + 8, DA + 12))
A("v_add_f32 v%d, v%d, v%d" % (DA, DA, DA + 4))
A("v_add_f32 v%d, v%d, v%d" % (DA + 8, DA + 8, DA + 12))
A("s_nop 1")
A("v_permlane32_swap_b32 v%d, v%d" % (DA, DA + 8))
A("v_mul_f32 v%d, v%d, v%d" % (DA, DA, vT))
A("s_cmp_lg_u32 s%d, 0" % sLAY)
A("s_nop 0")
A("v_mov_b32_dpp v%d, v%d quad_perm:[1,0,3,2] row_mask:0xf bank_mask:0xf" % (DA + 1, DA))
A("s_mov_b64 exec, %s" % sr(sT4, 2))
A("v_cvt_pk_bf16_f32 v%d, v%d, v%d" % (DA, DA, DA + 1))
A("buffer_store_dword v%d, v%d, %s, s%d offen sc1" % (DA, vPST, sr(sWS, 4), sPS))
A("s_mov_b64 exec, -1")
STAMP(8)
A("s_cbranch_scc1 Lfinal")

A("s_cmp_lg_u32 s%d, 0" % sW)
A("s_cbranch_scc1 Ltab")
C("stage 1 (wave 0): reduce 32 head partials of 64 outputs, add residual, publish x1 slice")
soff(sT1, [(sA, 15), (sC, 12)], PB)
soff(sT2, [(sA, 10), (sC, 7), (sJ, 17)], X1_OFF)
A("s_mov_b32 s%d, 0x00ff00ff" % sT4)
A("s_mov_b32 s%d, 0" % sT5)
def ip(k):
    for i in range(4):
        A("buffer_load_dwordx4 %s, v%d, %s, s%d offen offset:%d sc1" % (vr(W + 20 * k + 4 * i, 4), vL16, sr(sWS, 4), sT1, 1024 * i))
if GW: A("s_waitcnt vmcnt(0)")
ppoll(ip, lambda k: range(W + 20 * k, W + 20 * k + 16), 4, vT, lambda k: [mf(W + 16, SEL, W + 20 * k + 4 * i, None if i == 0 else W + 16) for i in range(4)], pre=GPRE, gap=GGAP, tag=2)
STAMP(9)
fastcmp()
NOP(6)
for i in range(4):
    A("v_add_f32_dpp v%d, v%d, v%d row_ror:8 row_mask:0xf bank_mask:0xf" % (W + 16 + i, W + 16 + i, W + 16 + i))
A("s_mov_b64 exec, %s" % sr(sT4, 2))
A("v_pk_add_f32 %s, %s, %s" % (vr(W + 16, 2), vr(W + 16, 2), vr(RES, 2)))
A("v_pk_add_f32 %s, %s, %s" % (vr(W + 18, 2), vr(W + 18, 2), vr(RES + 2, 2)))
A("v_cvt_pk_bf16_f32 v%d, v%d, v%d" % (W + 16, W + 16, W + 17))
A("v_cvt_pk_bf16_f32 v%d, v%d, v%d" % (W + 17, W + 18, W + 19))
store_local("buffer_store_dwordx2", vr(W + 16, 2), vX1S, sT2)
A("s_mov_b64 exec, -1")
LB("Ltabdone")
soff(sT3, [(sW, 10), (sJ, 17)], X1_OFF)
def ix(k):
    A("buffer_load_dwordx4 %s, v%d, %s, s%d offen sc1" % (vr([XR, RES][k], 4), vL16, sr(sWS, 4), sT3))
wqf_reads()
ppoll(ix, lambda k: range([XR, RES][k], [XR, RES][k] + 4), 1, vT, lambda k: ["s_waitcnt lgkmcnt(0)", "v_readfirstlane_b32 s%d, v%d" % (sT1, vT + 2)],
      pre=XPRE, gap=XGAP, mid=lambda: A("ds_read_b32 v%d, v%d offset:20" % (vT + 2, vFL)), tag=3,
      fix=["v_mov_b32 v%d, v%d" % (XR + i, RES + i) for i in range(4)])
A("s_cmp_lt_u32 s%d, 3" % sT1)
A("s_cbranch_scc1 Ltw")
LB("Ltwd")
STAMP(10)

LB("Lmix")
C("x <- x + g(LN(LN(x))) ; g is tabulated for every bf16 input in range, evaluated directly otherwise")
X = W; HB = W + 8; RT = W + 12; AD = W + 16; Y = W + 24
row_stats(XR, vT, X)
A("v_add_f32 v%d, %s, v%d" % (vT + 2, EPS, vT + 1))
A("v_rsq_f32 v%d, v%d" % (vT + 2, vT + 2))
A("v_mov_b32 v%d, %s" % (vT + 4, hx(LO2 | (LO2 << 16))))
A("s_movk_i32 s%d, %d" % (sT5, NENT * 4))
A("v_mul_f32 v%d, v%d, v%d" % (vT + 1, vT + 1, vT + 2))
A("v_fmaak_f32 v%d, v%d, v%d, %s" % (vT + 1, vT + 1, vT + 2, EPS))
A("v_rsq_f32 v%d, v%d" % (vT + 1, vT + 1))
A("s_nop 0")
A("v_mul_f32 v%d, v%d, v%d" % (vT + 2, vT + 2, vT + 1))
A("v_mul_f32 v%d, v%d, v%d" % (vT + 3, vT, vT + 2))
for i in range(4):
    A("v_pk_fma_f32 %s, %s, %s, %s op_sel:[0,0,1] op_sel_hi:[1,0,1] neg_lo:[0,0,1] neg_hi:[0,0,1]" % (vr(AD + 2 * i, 2), vr(X + 2 * i, 2), vr(vT + 2, 2), vr(vT + 2, 2)))
for i in range(4):
    A("v_cvt_pk_bf16_f32 v%d, v%d, v%d" % (HB + i, AD + 2 * i, AD + 2 * i + 1))
for i in range(4):
    A("v_pk_lshlrev_b16 v%d, 1, v%d op_sel_hi:[0,1]" % (RT + i, HB + i))
    A("v_pk_lshrrev_b16 v%d, 15, v%d op_sel_hi:[0,1]" % (AD + i, HB + i))
for i in range(4):
    A("v_or_b32 v%d, v%d, v%d" % (RT + i, RT + i, AD + i))
for i in range(4):
    A("v_pk_sub_u16 v%d, v%d, v%d" % (RT + i, RT + i, vT + 4))
for i in range(4):
    A("v_lshlrev_b32_sdwa v%d, 2, v%d dst_sel:DWORD dst_unused:UNUSED_PAD src0_sel:DWORD src1_sel:WORD_0" % (AD + 2 * i, RT + i))
    A("v_lshlrev_b32_sdwa v%d, 2, v%d dst_sel:DWORD dst_unused:UNUSED_PAD src0_sel:DWORD src1_sel:WORD_1" % (AD + 2 * i + 1, RT + i))
    A("ds_read_b32 v%d, v%d offset:%d" % (Y + 2 * i, AD + 2 * i, L_TAB))
    A("ds_read_b32 v%d, v%d offset:%d" % (Y + 2 * i + 1, AD + 2 * i + 1, L_TAB))
A("v_max3_u32 v%d, v%d, v%d, v%d" % (vT, AD, AD + 1, AD + 2))
A("v_max3_u32 v%d, v%d, v%d, v%d" % (vT + 1, AD + 3, AD + 4, AD + 5))
A("v_max3_u32 v%d, v%d, v%d, v%d" % (vT, vT, AD + 6, AD + 7))
A("v_max_u32 v%d, v%d, v%d" % (vT, vT, vT + 1))
A("v_cmp_le_u32 %s, s%d, v%d" % (sr(sH, 2), sT5, vT))
A("s_waitcnt lgkmcnt(5)")
A("v_max3_u32 v%d, v%d, v%d, v%d" % (vT, Y, Y + 1, Y + 2))
A("s_waitcnt lgkmcnt(2)")
A("v_max3_u32 v%d, v%d, v%d, v%d" % (vT + 1, Y + 3, Y + 4, Y + 5))
A("s_waitcnt lgkmcnt(0)")
A("v_max3_u32 v%d, v%d, v%d, v%d" % (vT, vT, Y + 6, Y + 7))
A("v_max_u32 v%d, v%d, v%d" % (vT, vT, vT + 1))
A("v_cmp_eq_u32 vcc, -1, v%d" % vT)
LB("Lslowdone")
for i in range(4):
    A("v_pk_add_f32 %s, %s, %s" % (vr(vT + 2 + 2 * i, 2), vr(X + 2 * i, 2), vr(Y + 2 * i, 2)))
A("s_or_b64 vcc, vcc, %s" % sr(sH, 2))
A("s_cbranch_vccnz Lslow")
A("s_cmp_lg_u32 s%d, 0" % sLAY)
for i in range(4):
    A("v_cvt_pk_bf16_f32 v%d, v%d, v%d" % (XR + i, vT + 2 + 2 * i, vT + 3 + 2 * i))
STAMP(11)
A("s_cbranch_scc1 Lout")
A("ds_write_b128 v%d, %s offset:%d" % (vXNW, vr(XR, 4), L_X2 - L_XN))
A("s_mov_b32 s%d, 1" % sLAY)
A("s_mov_b32 s%d, 0" % sY)
if TOT: A("s_memrealtime s[100:101]")
for s, d in [(sOL, O_OFF[1] - O_OFF[0]), (sOS, O_OFF[1] - O_OFF[0]), (sLS, LSE_OFF[1] - LSE_OFF[0]), (sPS, P_L)]:
    A("s_add_u32 s%d, s%d, %d" % (s, s, d))
if DIAG: A("v_mov_b32 v28, v30")
A("s_branch Llnq")

L.append(".p2align 6"); LB("Lst_fin"); A("s_setpc_b64 %s" % sr(sRET, 2)); stubs.append("fin")
LB("Lfinal")
A("s_cmp_ge_u32 s2, 4")
A("s_cbranch_scc1 Lepoch")
C("workgroup b: reduce the 32 head partials of row b, add x2, mixer, store")
soff(sT1, [(2, 15), (sW, 13)], PB + P_L)
A("s_add_u32 s%d, s%d, 4096" % (sT2, sT1))
A("s_mul_i32 s%d, s2, %d" % (sT0, XS))
A("s_lshl_b32 s%d, s%d, 8" % (sT3, sW))
A("s_add_u32 s%d, s%d, s%d" % (sT0, sT0, sT3))
A("s_add_u32 s%d, s%d, %d" % (sT0, sT0, L_X2))
A("v_add_u32 v%d, s%d, v%d" % (vT + 4, sT0, vX1S))
A("s_add_u32 s%d, s%d, %d" % (sT3, sT3, L_XN))
A("v_add_u32 v%d, s%d, v%d" % (vT + 5, sT3, vX1S))
A("ds_read_b64 %s, v%d" % (vr(PM, 2), vT + 4))
A("ds_read_b64 %s, v%d offset:128" % (vr(PM + 2, 2), vT + 4))
A("s_mov_b32 s%d, 0x00ff00ff" % sT4)
A("s_mov_b32 s%d, 0" % sT5)
if XENT:
    A("s_cmp_lg_u32 s%d, 3" % sW)
    A("s_cbranch_scc1 Lfn3")
    A("s_mov_b32 s%d, %s" % (sT0, hx(TB)))
    for i in range(XENT * 4 // 1024):
        A("buffer_load_dwordx4 %s, v%d, %s, s%d offen offset:%d sc1" % (vr(W + 4 * i, 4), vL16, sr(sWS, 4), sT0, 1024 * i))
    A("v_add_u32 v%d, %d, v%d" % (vT + 6, L_TAB, vL16))
    A("s_waitcnt vmcnt(0)")
    for i in range(XENT * 4 // 1024):
        A("ds_write_b128 v%d, %s offset:%d" % (vT + 6, vr(W + 4 * i, 4), 1024 * i))
    LB("Lfn3")
A("s_waitcnt lgkmcnt(0)")
if GW: A("s_waitcnt vmcnt(0)")
for i in range(4):
    A("v_lshlrev_b32 v%d, 16, v%d" % (PM + 4 + 2 * i, PM + i))
    A("v_and_b32 v%d, 0xffff0000, v%d" % (PM + 5 + 2 * i, PM + i))
FS = [KF, VF]
def ifin(k):
    for i in range(8):
        A("buffer_load_dwordx4 %s, v%d, %s, s%d offen offset:%d sc1" % (vr(FS[k] + 4 * i, 4), vL16, sr(sWS, 4), sT1 if i < 4 else sT2, 1024 * (i & 3)))
def fs(k):
    o = []
    for i in range(4):
        o.append(mf(W + 32, SEL, FS[k] + 4 * i, None if i == 0 else W + 32))
        o.append(mf(W + 36, SEL, FS[k] + 16 + 4 * i, None if i == 0 else W + 36))
    return o
ppoll(ifin, lambda k: range(FS[k], FS[k] + 32), 8, vT, fs, pre=GPRE, gap=GGAP, tag=2)
STAMP(9)
NOP(7)
for i in range(8):
    A("v_add_f32_dpp v%d, v%d, v%d row_ror:8 row_mask:0xf bank_mask:0xf" % (W + 32 + i, W + 32 + i, W + 32 + i))
A("s_mov_b64 exec, %s" % sr(sT4, 2))
for i in range(4):
    A("v_pk_add_f32 %s, %s, %s" % (vr(W + 32 + 2 * i, 2), vr(W + 32 + 2 * i, 2), vr(PM + 4 + 2 * i, 2)))
for i in range(4):
    A("v_cvt_pk_bf16_f32 v%d, v%d, v%d" % (W + 32 + i, W + 32 + 2 * i, W + 33 + 2 * i))
A("ds_write_b64 v%d, %s" % (vT + 5, vr(W + 32, 2)))
A("ds_write_b64 v%d, %s offset:128" % (vT + 5, vr(W + 34, 2)))
A("s_mov_b64 exec, -1")
A("s_cmp_lg_u32 s%d, 0" % sW)
A("s_waitcnt lgkmcnt(0)")
A("s_barrier")
A("s_cbranch_scc1 Lfin_exit")
A("ds_read_b128 %s, v%d" % (vr(XR, 4), vXNW))
A("s_waitcnt lgkmcnt(0)")
STAMP(10)
A("s_branch Lmix")
L.append(".p2align 6"); LB("Lst_out"); A("s_setpc_b64 %s" % sr(sRET, 2)); stubs.append("out")
LB("Lout")
A("s_lshl_b32 s%d, s2, 10" % sT0)
A("buffer_store_dwordx4 %s, v%d, %s, s%d offen" % (vr(XR, 4), vL16, sr(sOUT, 4), sT0))
if DBL:
    A("s_cmp_lg_u32 s2, 0")
    A("s_cbranch_scc1 Lfin_exit")
if DBL:
    A("s_waitcnt vmcnt(0)")
    A("s_memrealtime s[10:11]")
    A("s_waitcnt lgkmcnt(0)")
    A("s_sub_u32 s12, s10, s98")
    if "pad" in OPT:
        A("s_mov_b32 s10, s98"); A("s_mov_b32 s12, %d" % (100 * int(OPT["pad"])))
    LB("Ldbl")
    A("s_memrealtime s[14:15]")
    A("s_waitcnt lgkmcnt(0)")
    A("s_sub_u32 s13, s14, s10")
    A("s_cmp_lt_u32 s13, s12")
    A("s_cbranch_scc1 Ldbl")
LB("Lfin_exit")
if TOT:
    A("s_waitcnt vmcnt(0)")
    A("s_memrealtime s[10:11]")
    A("s_waitcnt lgkmcnt(0)")
    A("v_mov_b32 v16, s98")
    A("v_mov_b32 v17, s10")
    A("v_mov_b32 v18, s100")
    A("v_mov_b32 v19, s97")
    soff(sT2, [(2, 6), (sW, 4)], STB)
    A("v_mov_b32 v20, 0")
    A("s_mov_b64 exec, 1")
    A("buffer_store_dwordx4 v[16:19], v20, %s, s%d offen" % (sr(sWS, 4), sT2))
if DIAG:
    A("s_waitcnt vmcnt(0)")
    STAMP(12)
    if DIAG == 2:
        A("s_or_b32 s%d, s2, s%d" % (sT0, sW))
        A("s_cmp_lg_u32 s%d, 0" % sT0)
        A("s_cbranch_scc1 Lend")
        A("v_readlane_b32 s%d, v28, 0" % sT2)
        for k, (r, i) in enumerate([(31, 10), (31, 12), (28, 1), (28, 2), (28, 6), (28, 5), (28, 7), (28, 8), (28, 9), (28, 10), (28, 11), (30, 3), (30, 5), (30, 8), (30, 9), (30, 12)]):
            A("v_readlane_b32 s%d, v%d, %d" % (sT3, r, i))
            A("s_sub_u32 s%d, s%d, s%d" % (sT3, sT3, sT2))
            A("s_nop 0")
            A("v_writelane_b32 v17, s%d, %d" % (sT3, k))
        A("v_lshlrev_b32 v16, 2, v%d" % vLANE)
        A("s_mov_b64 exec, 0xffff")
        A("global_store_dword v16, v17, s[100:101]")
        A("s_endpgm")
    soff(sT1, [(2, 10), (sW, 7)], STB)
    A("v_lshlrev_b32 v16, 2, v%d" % vLANE)
    A("s_mov_b64 exec, 0xffff")
    A("buffer_store_dword v28, v16, %s, s%d offen" % (sr(sWS, 4), sT1))
    A("buffer_store_dword v30, v16, %s, s%d offen offset:64" % (sr(sWS, 4), sT1))
    A("s_add_u32 s%d, s%d, 0x40000" % (sT1, sT1))
    A("buffer_store_dword v31, v16, %s, s%d offen" % (sr(sWS, 4), sT1))
LB("Lend")
A("s_endpgm")
LB("Lepoch")
C("every workgroup has used the old launch tag long ago: workgroup 4 advances it")
A("s_lshl_b32 s%d, s%d, 8" % (sT0, sW))
A("s_add_u32 s%d, s%d, s2" % (sT0, sT0))
A("s_cmp_lg_u32 s%d, 4" % sT0)
A("s_cbranch_scc1 Lfin_exit")
A("v_mov_b32 v16, s%d" % sTG1)
A("v_mov_b32 v17, %s" % hx(EPO))
A("s_mov_b64 exec, 1")
A("buffer_store_dword v16, v17, %s, 0 offen sc1" % sr(sWS, 4))
A("s_mov_b64 exec, -1")
A("s_branch Lfin_exit")

L.append(".p2align 6"); LB("Lst_tab"); A("s_setpc_b64 %s" % sr(sRET, 2)); stubs.append("tab")
LB("Ltab")
C("waves 2,3: gather the main part of the g(h) table into LDS ; wave 1: the lowest octaves, best effort")
NTL = NOCT * 1024 // 2 // 1024
A("s_cmp_eq_u32 s%d, 1" % sW)
A("s_cbranch_scc1 Lext")
A("s_sub_u32 s%d, s%d, 2" % (sT1, sW))
A("s_mul_i32 s%d, s%d, %d" % (sT1, sT1, NTL * 1024))
A("s_add_u32 s%d, s%d, %d" % (sT1, sT1, XENT * 4))
A("v_add_u32 v%d, s%d, v%d" % (vT + 4, sT1, vL16))
A("v_add_u32 v%d, %d, v%d" % (vT + 4, L_TAB, vT + 4))
A("s_add_u32 s%d, s%d, %s" % (sT1, sT1, hx(TB)))
A("s_add_u32 s%d, s%d, 4096" % (sT2, sT1))
def it():
    for i in range(NTL):
        A("buffer_load_dwordx4 %s, v%d, %s, s%d offen offset:%d sc1" % (vr(W + 4 * i, 4), vL16, sr(sWS, 4), sT1 if i < 4 else sT2, 1024 * (i & 3)))
poll(it, range(W, W + 4 * NTL), vT, back="s_sleep %d" % int(OPT.get("tsl", 16)))
for i in range(NTL):
    A("ds_write_b128 v%d, %s offset:%d" % (vT + 4, vr(W + 4 * i, 4), 1024 * i))
A("s_waitcnt lgkmcnt(0)")
lds_arrive(20, vT + 4)
STAMP(9)
A("s_branch Ltabdone")
def ext_load(d):
    for i in range(XENT * 4 // 1024):
        A("buffer_load_dwordx4 %s, v%d, %s, s%d offen offset:%d sc1" % (vr(d + 4 * i, 4), vL16, sr(sWS, 4), sT4, 1024 * i))
def ext_write(d):
    for i in range(XENT * 4 // 1024):
        A("ds_write_b128 v%d, %s offset:%d" % (vT + 4, vr(d + 4 * i, 4), 1024 * i))
LB("Lext")
if XENT:
    A("s_mov_b32 s%d, %s" % (sT4, hx(TB)))
    A("v_add_u32 v%d, %d, v%d" % (vT + 4, L_TAB, vL16))
    for i in range(4): A("v_mov_b32 v%d, -1" % (W + i))
    for i in range(XENT * 4 // 1024):
        A("ds_write_b128 v%d, %s offset:%d" % (vT + 4, vr(W, 4), 1024 * i))
    A("s_waitcnt lgkmcnt(0)")
lds_arrive(20, vT + 5)
if XENT:
    C("one look at the lowest octaves, skipped when x1 is already there")
    soff(sT3, [(sW, 10), (sJ, 17)], X1_OFF)
    A("s_waitcnt vmcnt(0)")
    delay(XDL)
    A("buffer_load_dwordx4 %s, v%d, %s, s%d offen sc1" % (vr(XR, 4), vL16, sr(sWS, 4), sT3))
    if "l" in OPT.get("xs", ""): A("s_branch Ltabdone")
    ext_load(W + 32)
    A("s_waitcnt vmcnt(4)")
    for x in maxtree(range(XR, XR + 4), vT): A(x)
    A("v_cmp_eq_u32 vcc, -1, v%d" % vT)
    A("s_cbranch_vccz Lexx")
    A("s_waitcnt vmcnt(0)")
    ext_write(W + 32)
    A("s_branch Ltabdone")
    LB("Lexx")
    wqf_reads()
    A("s_branch Ltw")
else:
    A("s_branch Ltabdone")
LB("Ltw")
lds_spin(20, 3, vT + 2)
A("s_branch Ltwd")

for b in ool: L += b
ool = []
LB("Lslow")
C("rare: some h lies outside the table -> evaluate g(h) directly for those lanes")
RW1 = [W + 32 + i for i in range(14)]
RB1 = [PM + i for i in range(14)]
RW2 = [16 + i for i in range(10)] + [W + 46, W + 47, PM + 14, PM + 15]
A("v_lshlrev_b32 v26, 3, v%d" % vLANE)
A("s_load_dword s%d, %s, 0" % (sB2, sr(sB2P, 2)))
for (d4, d2, s) in [([W + 32, W + 36, W + 40], W + 44, sW1), ([PM, PM + 4, PM + 8], PM + 12, sB1)]:
    for k in range(3):
        A("buffer_load_dwordx4 %s, v%d, %s, 0 offen offset:%d" % (vr(d4[k], 4), vL16, sr(s, 4), 1024 * k))
    A("buffer_load_dwordx2 %s, v26, %s, 0 offen offset:3072" % (vr(d2, 2), sr(s, 4)))
A("buffer_load_dwordx4 v[16:19], v%d, %s, 0 offen" % (vL16, sr(sW2, 4)))
A("buffer_load_dwordx4 v[20:23], v%d, %s, 0 offen offset:1024" % (vL16, sr(sW2, 4)))
A("buffer_load_dwordx2 v[24:25], v%d, %s, 0 offen offset:2048" % (vL16, sr(sW2, 4)))
A("buffer_load_dwordx2 %s, v%d, %s, 0 offen offset:2056" % (vr(W + 46, 2), vL16, sr(sW2, 4)))
A("buffer_load_dwordx2 %s, v26, %s, 0 offen offset:3072" % (vr(PM + 14, 2), sr(sW2, 4)))
A("s_waitcnt vmcnt(0) lgkmcnt(0)")
A("s_lshl_b32 s%d, s%d, 16" % (sB2, sB2))
for e in range(8):
    A("v_cmp_le_u32 vcc, %d, v%d" % (NENT * 4, AD + e))
    A("v_cmp_eq_u32 %s, -1, v%d" % (sr(sH2, 2), Y + e))
    A("s_or_b64 %s, %s, vcc" % (sr(sH2, 2), sr(sH2, 2)))
    LB("Lse%d" % e)
    A("s_cmp_eq_u64 %s, 0" % sr(sH2, 2))
    A("s_cbranch_scc1 Lsf%d" % e)
    A("s_ff1_i32_b64 s%d, %s" % (sT0, sr(sH2, 2)))
    A("s_bitset0_b64 %s, s%d" % (sr(sH2, 2), sT0))
    A("s_mov_b32 m0, s%d" % sT0)
    A("v_readlane_b32 s%d, v%d, s%d" % (sH, HB + (e >> 1), sT0))
    if e & 1: A("s_and_b32 s%d, s%d, 0xffff0000" % (sH, sH))
    else: A("s_lshl_b32 s%d, s%d, 16" % (sH, sH))
    A("s_call_b64 %s, Lgev" % sr(sRET, 2))
    A("v_writelane_b32 v%d, s%d, m0" % (Y + e, sY))
    A("s_branch Lse%d" % e)
    LB("Lsf%d" % e)
for i in range(16): A("v_mov_b32 v%d, 0" % (PM + i))
A("s_mov_b64 vcc, 0")
A("s_mov_b64 %s, 0" % sr(sH, 2))
A("s_branch Lslowdone")
LB("Lgev")
a, u, t1, z = RES, RES + 1, RES + 2, RT
A("v_mov_b32 v%d, 0" % a)
A("v_mov_b32 v%d, %s" % (RT + 1, hx(f2u(K0))))
A("v_mov_b32 v%d, %s" % (RT + 2, hx(f2u(K1))))
for p in range(14):
    for hf in range(2):
        def un(d, s):
            if hf == 0: A("v_lshlrev_b32 v%d, 16, v%d" % (d, s))
            else: A("v_and_b32 v%d, 0xffff0000, v%d" % (d, s))
        un(u, RW1[p]); un(t1, RB1[p]); un(z, RW2[p])
        A("v_fma_f32 v%d, v%d, s%d, v%d" % (u, u, sH, t1))
        A("v_mul_f32 v%d, v%d, v%d" % (t1, u, u))
        A("v_fma_f32 v%d, v%d, v%d, v%d" % (t1, t1, RT + 2, RT + 1))
        A("v_mul_f32 v%d, v%d, v%d" % (t1, t1, u))
        A("v_exp_f32 v%d, v%d" % (t1, t1))
        A("v_mul_f32 v%d, v%d, v%d" % (z, z, u))
        A("v_add_f32 v%d, 1.0, v%d" % (t1, t1))
        A("v_rcp_f32 v%d, v%d" % (t1, t1))
        A("s_nop 0")
        A("v_fmac_f32 v%d, v%d, v%d" % (a, z, t1))
A("v_mov_b32 v%d, v%d" % (u, a))
A("s_nop 1")
wave_sum2(a, u, sY, sT1)
A("s_nop 1")
A("v_mov_b32 v%d, s%d" % (a, sY))
A("v_cvt_pk_bf16_f32 v%d, v%d, v%d" % (a, a, a))
A("v_and_b32 v%d, 0xffff0000, v%d" % (a, a))
A("v_add_f32 v%d, s%d, v%d" % (a, sB2, a))
A("v_cvt_pk_bf16_f32 v%d, v%d, v%d" % (a, a, a))
A("v_and_b32 v%d, 0xffff0000, v%d" % (a, a))
A("s_nop 0")
A("v_readfirstlane_b32 s%d, v%d" % (sY, a))
A("s_nop 3")
A("s_setpc_b64 %s" % sr(sRET, 2))

for b in ool: L += b
A("s_endpgm")
L.append(".p2align 8")
L.append(".fill %d, 4, 0xBF800000" % (64 if DIAG else 512))
L.append('''.section .rodata,"a"
.p2align 6
.amdhsa_kernel %s_kernel
  .amdhsa_next_free_vgpr 256
  .amdhsa_next_free_sgpr 102
  .amdhsa_accum_offset 256
  .amdhsa_group_segment_fixed_size 0
  .amdhsa_kernarg_size 104
  .amdhsa_user_sgpr_count 2
  .amdhsa_user_sgpr_kernarg_segment_ptr 1
  .amdhsa_system_sgpr_workgroup_id_x 1
.end_amdhsa_kernel''' % NAME)
open(OUTF, "w").write("\n".join(x for x in L if x is not None) + "\n")
print("wrote", OUTF, "lines", len(L), "LDS", LDS_SZ)
```

```python
import sys, struct, math

NAME = "interleave_layers__sliding_block_cached__mixer_token_mlp__decode"
OUTF = sys.argv[1] if len(sys.argv) > 1 else "cdna_kernels/%s.s" % NAME
DIAG = int(sys.argv[2]) if len(sys.argv) > 2 else 0
DBL = 0
if DIAG == 3: DIAG = 0; DBL = 1
TOT = 0
if DIAG == 4: DIAG = 0; TOT = 1
OPT = dict(a.split("=") for a in sys.argv[3:])
DEPTH = int(OPT.get("depth", 8))
D0 = int(OPT.get("d0", 2))
D1 = int(OPT.get("d1", 4))
DC = int(OPT.get("dc", 3))
TAILI = int(OPT.get("taili", 11))
TAILD = int(OPT.get("taild", 8))
QV = int(OPT.get("qv", 4))
PRET = int(OPT.get("pret", 1))
GW = int(OPT.get("gw", 1))
GPRE = int(OPT.get("gpre", 0))
GGAP = int(OPT.get("ggap", -1))
WARM = int(OPT.get("warm", 1))
QPRE = int(OPT.get("qpre", -1)); QGAP = int(OPT.get("qgap", -1))
OPRE = int(OPT.get("opre", -1)); OGAP = int(OPT.get("ogap", -1))
XPRE = int(OPT.get("xpre", -1)); XGAP = int(OPT.get("xgap", -1))
FINE = OPT.get("fine", "")
QS = int(OPT.get("qs", 0))
ADP = int(OPT.get("adp", 0))
ROT = int(OPT.get("rot", 1)); VROT = int(OPT.get("vrot", 0))
WROT = int(OPT.get("wrot", 1))
WOP = int(OPT.get("wop", 0))
ECO = int(OPT.get("eco", 0))
XDL = int(OPT.get("xdl", 256))
QBD = int(OPT.get("qbd", 1))
QT = int(OPT.get("qt", 0))
DRY = int(OPT.get("dry", 0))
HP = int(OPT.get("hp", 0))
NOCT = int(OPT.get("noct", 16))
QPOS = int(OPT.get("qpos", 1))
QPOS2 = int(OPT.get("qpos2", 7))

def f2u(x): return struct.unpack("<I", struct.pack("<f", x))[0]
def hx(x): return "0x%08x" % (x & 0xffffffff)

L = []
def A(s): L.append("    " + s)
def LB(s): L.append(s + ":")
def C(s): L.append("    ; " + s)
def vr(a, n): return "v[%d:%d]" % (a, a + n - 1)
def sr(a, n): return "s[%d:%d]" % (a, a + n - 1)
def NOP(n):
    while n > 0:
        k = min(n, 16); A("s_nop %d" % (k - 1)); n -= k

XOCT = int(OPT.get('xoct', 4))
ELO = int(OPT.get('elo', 130 - NOCT - XOCT))
LO2 = (ELO << 7) * 2
NENT = (NOCT + XOCT) * 256
XENT = XOCT * 256
assert XENT in (0, 1024)
EPW = NOCT * 256 // 256 // 4 // 2
GRS = 0x20000
O_OFF = [0x0000, 0xC400]; LSE_OFF = [0x8000, 0x14400]; Q1_OFF = 0x8400; X1_OFF = 0x14600
CLRA_PER = 1040
CLRB_OFF = 0x8400; CLRB_PER = 1680
Q0_OFF = 0x18000
EPO = 0x17f00
PB = 0x100000; P_L = 0x20000
TB = 0x140000; FB = 0x148000
QB_DELTA = 0x180000
STB = 0x300000
WS_SZ = 0x400000
L_WQ = 12288; L_K = L_WQ + 16384; L_V = L_K + 32768
L_WO = L_K + 16384
L_TAB = L_V
L_XN = L_V + 32768; XS = 1056
L_X2 = L_XN + 4 * XS
L_FLG = L_X2 + 4 * XS
L_RB = L_K; RBS = 2048 + 64; L_ML = L_K + 4 * RBS
L_QF = L_X2
LDS_SZ = int(OPT.get("lds", L_FLG + 64))
SPIN = 0x40000
K0 = -2.0 * math.sqrt(2.0 / math.pi) * math.log2(math.e)
K1 = K0 * 0.044715
EPS = hx(f2u(1e-5))

sTG1, sTG2 = 0, 1
sW, sJ, sA, sC, sGR, sLAY, sFAST = 3, 4, 5, 6, 7, 8, 9
sT0, sT1, sT2, sT3, sT4, sT5 = 10, 11, 12, 13, 14, 15
sCNT = 16
sQL, sQS, sOL, sOS, sLL, sLS, sPS = 17, 18, 19, 20, 21, 22, 23
sSC, sIT = 24, 25
sSUM, sSQ = 26, 27
sH, sH2, sRET, sMSK = 28, 30, 32, 34
sB2, sY, sXCC, sE = 36, 37, 38, 39
sB2P = 40
sK, sV, sWQ, sWO, sWS, sX, sOUT, sW1, sB1, sW2 = 44, 48, 52, 56, 60, 64, 68, 72, 76, 80
sKO, sKL, sVO, sVL = 84, 85, 86, 87
sPM = 88
sHC, sHT = 84, 85

def STAMP(i):
    if DIAG:
        A("s_memrealtime s[42:43]"); A("s_waitcnt lgkmcnt(0)")
        A("v_writelane_b32 v30, s42, %d" % i)

def CST(i):
    if DIAG == 1 and FINE:
        A("s_memtime s[42:43]"); A("s_waitcnt lgkmcnt(0)")
        A("v_writelane_b32 v31, s42, %d" % i)

vLANE = 1
vL16, vQST, vOST, vOLD, vPST, vX1S, vXNW, vXNR, vRBW, vRBR, vMLW, vMLR, vLSE, vZ = range(2, 16)
vT = 16
vWT, vFL = 28, 29
vLS2 = 27
KF, VF, WQF, WOF, SEL, ONES = 32, 64, 96, 112, 176, 180
W = 184
PM = 232
XR = 248
RES = 252

def srd(s, nbytes):
    A("s_mov_b32 s%d, %s" % (s + 2, hx(nbytes))); A("s_mov_b32 s%d, 0x00020000" % (s + 3))

def soff(dst, terms, const):
    first = True
    for (src, sh) in terms:
        if first: A("s_lshl_b32 s%d, s%d, %d" % (dst, src, sh)); first = False
        else:
            A("s_lshl_b32 s%d, s%d, %d" % (sT0, src, sh)); A("s_add_u32 s%d, s%d, s%d" % (dst, dst, sT0))
    if const: A("s_add_u32 s%d, s%d, %s" % (dst, dst, hx(const)))

def wave_sum2(a, b, sa, sb):
    for ctl in ["row_ror:8", "row_ror:4", "row_ror:2", "row_ror:1"]:
        A("v_add_f32_dpp v%d, v%d, v%d %s row_mask:0xf bank_mask:0xf" % (a, a, a, ctl))
        A("v_add_f32_dpp v%d, v%d, v%d %s row_mask:0xf bank_mask:0xf" % (b, b, b, ctl))
        A("s_nop 0")
    for ctl in ["row_bcast:15 row_mask:0xa", "row_bcast:31 row_mask:0xc"]:
        A("v_add_f32_dpp v%d, v%d, v%d %s bank_mask:0xf" % (a, a, a, ctl))
        A("v_add_f32_dpp v%d, v%d, v%d %s bank_mask:0xf" % (b, b, b, ctl))
        A("s_nop 0")
    A("v_readlane_b32 s%d, v%d, 63" % (sa, a))
    A("v_readlane_b32 s%d, v%d, 63" % (sb, b))

def row_stats(x, t, unp):
    A("v_dot2_f32_bf16 v%d, v%d, v%d, 0" % (t, x, ONES))
    A("v_dot2_f32_bf16 v%d, v%d, v%d, 0" % (t + 1, x, x))
    for i in range(1, 4):
        A("v_dot2_f32_bf16 v%d, v%d, v%d, v%d" % (t, x + i, ONES, t))
        A("v_dot2_f32_bf16 v%d, v%d, v%d, v%d" % (t + 1, x + i, x + i, t + 1))
    un = []
    for i in range(4):
        un.append("v_lshlrev_b32 v%d, 16, v%d" % (unp + 2 * i, x + i))
        un.append("v_and_b32 v%d, 0xffff0000, v%d" % (unp + 2 * i + 1, x + i))
    for k in range(3): A(un.pop(0))
    a, b = t, t + 1
    for ctl in ["row_ror:8 row_mask:0xf", "row_ror:4 row_mask:0xf", "row_ror:2 row_mask:0xf", "row_ror:1 row_mask:0xf", "row_bcast:15 row_mask:0xa", "row_bcast:31 row_mask:0xc"]:
        A("v_add_f32_dpp v%d, v%d, v%d %s bank_mask:0xf" % (a, a, a, ctl))
        A("v_add_f32_dpp v%d, v%d, v%d %s bank_mask:0xf" % (b, b, b, ctl))
        A(un.pop(0) if un else "s_nop 0")
    A("v_readlane_b32 s%d, v%d, 63" % (sSUM, a))
    A("v_readlane_b32 s%d, v%d, 63" % (sSQ, b))
    A("s_nop 0")
    A("v_mul_f32 v%d, s%d, v%d" % (t, sSUM, vZ))
    A("v_mul_f32 v%d, s%d, v%d" % (t + 1, sSQ, vZ))
    A("v_fma_f32 v%d, -v%d, v%d, v%d" % (t + 1, t, t, t + 1))
    A("v_max_f32 v%d, 0, v%d" % (t + 1, t + 1))

ool = []
uid = [0]
def maxtree(regs, tmp):
    r = list(regs); out = []
    out.append("v_max3_u32 v%d, v%d, v%d, v%d" % (tmp, r[0], r[1], r[2])); r = r[3:]
    if len(r) >= 5:
        out.append("v_max3_u32 v%d, v%d, v%d, v%d" % (tmp + 1, r[0], r[1], r[2])); r = r[3:]
        d = 0
        while len(r) >= 2:
            out.append("v_max3_u32 v%d, v%d, v%d, v%d" % (tmp + d, tmp + d, r[0], r[1])); r = r[2:]; d ^= 1
        if r: out.append("v_max3_u32 v%d, v%d, v%d, v%d" % (tmp, tmp, tmp + 1, r[0]))
        else: out.append("v_max_u32 v%d, v%d, v%d" % (tmp, tmp, tmp + 1))
    else:
        while len(r) >= 2:
            out.append("v_max3_u32 v%d, v%d, v%d, v%d" % (tmp, tmp, r[0], r[1])); r = r[2:]
        if r: out.append("v_max_u32 v%d, v%d, v%d" % (tmp, tmp, r[0]))
    return out

def poll(issue, regs, tmp, pre_wait=None, spec=None, back="s_nop 7", tag=None, stub=None):
    uid[0] += 1; u = uid[0]
    A("s_mov_b32 s%d, %s" % (sCNT, hx(SPIN)))
    LB("Lp%d" % u)
    issue()
    if pre_wait: pre_wait()
    A("s_waitcnt vmcnt(0)")
    mt = maxtree(regs, tmp) + ["v_cmp_eq_u32 vcc, -1, v%d" % tmp]
    spec = list(spec or [])
    ns = len(spec)
    per = -(-len(mt) // ns) if ns else 0
    for s in spec:
        A(s)
        for k in range(per):
            if mt: A(mt.pop(0))
    for m in mt: A(m)
    A("s_cbranch_vccz Ld%d" % u)
    A("s_sub_u32 s%d, s%d, 1" % (sCNT, sCNT))
    if back != "s_nop 7": A(back)
    A("s_cbranch_scc0 Lp%d" % u)
    if stub: touch_stub(stub)
    LB("Ld%d" % u)
    if DIAG and tag is not None:
        A("s_lshl_b32 m0, s%d, 2" % sLAY); A("s_add_u32 m0, m0, %d" % tag); A("s_nop 0")
        A("v_writelane_b32 v31, s%d, m0" % sCNT)

stubs = []
def touch_stub(name, branch_over=None):
    A("s_branch Lsk_%s" % name)
    L.append(".p2align 6")
    LB("Lst_%s" % name)
    A("s_setpc_b64 %s" % sr(sRET, 2))
    LB("Lsk_%s" % name)
    stubs.append(name)

def delay(cyc):
    if cyc == -1:
        A("s_waitcnt vmcnt(0)"); return
    while cyc >= 64:
        k = min(cyc // 64, 15); A("s_sleep %d" % k); cyc -= 64 * k
    if cyc >= 8: A("s_nop %d" % min(15, cyc // 4 - 1))

def ppoll(issue, regs, n, tmp, spec, pre=0, gap=128, mid=None, tag=None, fix=None, stub=None, lanes=None):
    uid[0] += 1; u = uid[0]
    def look(k):
        out = ["s_waitcnt vmcnt(%d)" % (n if k == 0 else 0)]
        mt = maxtree(regs(k), tmp) + ["v_cmp_eq_u32 vcc, -1, v%d" % tmp]
        sp = list(spec(k)); per = -(-len(mt) // len(sp)) if sp else 0
        for x in sp:
            out.append(x)
            for _ in range(per):
                if mt: out.append(mt.pop(0))
        return out + mt + (["s_and_b64 vcc, vcc, %s" % sr(lanes, 2)] if lanes else [])
    A("s_mov_b32 s%d, %s" % (sCNT, hx(SPIN)))
    delay(pre)
    fine = FINE and tag == int(FINE)
    if fine: CST(8)
    LB("Lp%d" % u)
    issue(0)
    if fine and 0: CST(9)
    if mid: mid()
    if gap >= 0: delay(gap)
    if gap >= 0: issue(1)
    lk = look(0)
    if gap < 0: lk[0] = "s_waitcnt vmcnt(0)"
    for k, x in enumerate(lk):
        A(x)
        if fine and k == 0: CST(13)
    if fine: CST(14)
    A("s_cbranch_vccz Ld%d" % u)
    if gap < 0: issue(1)
    A("s_sub_u32 s%d, s%d, 1" % (sCNT, sCNT))
    for x in look(1): A(x)
    for x in (fix or []): A(x)
    A("s_cbranch_vccz Ld%d" % u)
    A("s_sub_u32 s%d, s%d, 1" % (sCNT, sCNT))
    A("s_cmp_gt_i32 s%d, 0" % sCNT)
    A("s_cbranch_scc1 Lp%d" % u)
    if stub: touch_stub(stub)
    LB("Ld%d" % u)
    if fine: CST(15)
    if DIAG and tag is not None:
        A("s_lshl_b32 m0, s%d, 2" % sLAY); A("s_add_u32 m0, m0, %d" % tag); A("s_nop 0")
        A("v_writelane_b32 v31, s%d, m0" % sCNT)

def lds_spin(off, target, tmp, mask=None, sleep=0):
    uid[0] += 1; u = uid[0]
    A("s_mov_b32 s%d, %s" % (sT2, hx(SPIN * 4)))
    LB("Ls%d" % u)
    A("ds_read_b32 v%d, v%d offset:%d" % (tmp, vFL, off))
    A("s_waitcnt lgkmcnt(0)")
    A("v_readfirstlane_b32 s%d, v%d" % (sT1, tmp))
    if mask: A("s_and_b32 s%d, s%d, %d" % (sT0, sT1, mask))
    A("s_cmp_ge_u32 s%d, %d" % (sT0 if mask else sT1, target))
    A("s_cbranch_scc1 Lt%d" % u)
    if sleep: A("s_sleep %d" % sleep)
    A("s_sub_u32 s%d, s%d, 1" % (sT2, sT2))
    A("s_cbranch_scc0 Ls%d" % u)
    LB("Lt%d" % u)

def lds_arrive(off, tmp, val=1):
    if val is not None: A("v_mov_b32 v%d, %d" % (tmp, val))
    A("s_mov_b64 exec, 1")
    A("ds_add_u32 v%d, v%d offset:%d" % (vFL, tmp, off))
    A("s_mov_b64 exec, -1")

def store_local(op, data, vaddr, so):
    uid[0] += 1; u = uid[0]
    A("s_cbranch_scc1 Lw%d" % u)
    A("%s %s, v%d, %s, s%d offen" % (op, data, vaddr, sr(sWS, 4), so))
    LB("Lx%d" % u)
    ool.append(["Lw%d:" % u, "    %s %s, v%d, %s, s%d offen sc1" % (op, data, vaddr, sr(sWS, 4), so), "    s_branch Lx%d" % u])
def fastcmp(): A("s_cmp_eq_u32 s%d, 0" % sFAST)

def mf(d, a, b, c):
    return "v_mfma_f32_16x16x32_bf16 %s, %s, %s, %s" % (vr(d, 4), vr(a, 4), vr(b, 4), "0" if c is None else vr(c, 4))
def mfma(d, a, b, c): A(mf(d, a, b, c))

def tags():
    A("s_add_u32 s%d, s%d, 1" % (sTG1, sE))
    A("s_mul_i32 s%d, s%d, 0x9E3779B1" % (sTG2, sTG1))
    A("s_and_b32 s%d, s%d, -8" % (sTG2, sTG2))

def common_addr():
    A("v_and_b32 v18, 3, v%d" % vLANE)
    A("v_lshlrev_b32 v%d, 12, v17" % vQST)
    A("v_lshrrev_b32 v24, 1, v16")
    A("v_lshl_add_u32 v%d, v24, 8, v%d" % (vQST, vQST))
    A("v_and_b32 v24, 1, v16")
    A("v_lshl_add_u32 v%d, v24, 3, v%d" % (vQST, vQST))
    A("v_lshlrev_b32 v%d, 4, v24" % vLSE)
    A("s_mul_i32 s%d, s%d, %d" % (sT0, sW, XS))
    A("s_add_u32 s%d, s%d, %d" % (sT0, sT0, L_XN))
    A("v_add_u32 v%d, s%d, v%d" % (vXNW, sT0, vL16))
    A("s_lshl_b32 s%d, s%d, 8" % (sT0, sA))
    A("s_add_u32 s%d, s%d, %d" % (sT0, sT0, L_XN))
    A("v_mul_u32_u24 v25, %d, v18" % XS)
    A("v_lshl_add_u32 v25, v16, 4, v25")
    A("v_add_u32 v%d, s%d, v25" % (vXNR, sT0))
    A("v_mov_b32 v%d, %s" % (vZ, hx(f2u(1.0 / 512))))
    for r in range(4): A("v_mov_b32 v%d, 0x3f803f80" % (ONES + r))
    A("s_and_b32 s%d, s%d, 1" % (sT1, sC))
    A("s_lshr_b32 s%d, s%d, 1" % (sT2, sC))
    soff(sQS, [(sT1, 11), (sW, 9), (sA, 6), (sT2, 4)], 0)
    A("v_bfe_u32 v24, v%d, 2, 2" % vLANE)
    A("v_lshl_add_u32 v24, v16, 3, v24")
    A("v_lshlrev_b32 v24, 7, v24")
    A("v_bfe_u32 v25, v%d, 3, 2" % vLANE)
    A("v_lshlrev_b32 v25, 1, v25")
    A("v_bfe_u32 v26, v%d, 1, 1" % vLANE)
    A("v_xor_b32 v25, v25, v26")
    A("v_lshl_add_u32 v24, v25, 4, v24")
    A("v_and_b32 v26, 1, v%d" % vLANE)
    A("v_lshl_add_u32 v%d, v26, 3, v24" % vWT)
    A("s_mov_b32 s%d, 0x000f000f" % sMSK)
    A("s_mov_b32 s%d, 0x000f000f" % (sMSK + 1))
    A("s_mov_b32 s%d, 0" % sLAY)

def wtile_voff(shift, d):
    A("v_lshrrev_b32 v24, 3, v%d" % vLANE)
    A("v_and_b32 v25, 7, v%d" % vLANE)
    A("v_and_b32 v26, 1, v16")
    A("v_lshlrev_b32 v26, 1, v26")
    A("v_xor_b32 v25, v25, v26")
    A("v_lshlrev_b32 v25, 4, v25")
    A("v_lshl_add_u32 v%d, v24, %d, v25" % (d, shift))
    A("v_xor_b32 v%d, 64, v%d" % (d + 1, d))

def wqf_reads():
    A("s_lshl_b32 s%d, s%d, 5" % (sT1, sW))
    A("v_xor_b32 v26, s%d, v%d" % (sT1, vWT))
    for t in range(4):
        for hf in range(2):
            A("ds_read_b64_tr_b16 %s, v26 offset:%d" % (vr(WQF + 4 * t + 2 * hf, 2), L_WQ + 4096 * t + 512 * hf))

def dma(vaddr, srdn, so, lds_s, step_so, flags="nt"):
    A("s_mov_b32 m0, s%d" % lds_s)
    A("s_add_u32 s%d, s%d, 1024" % (lds_s, lds_s))
    A("buffer_load_dwordx4 v%d, %s, s%d offen %s lds" % (vaddr, sr(srdn, 4), so, flags))
    A("s_add_u32 s%d, s%d, %d" % (so, so, step_so))

hdr = open("cdna_kernels/%s.s.ref" % NAME).read().split("; Override launch")[0]
L.append(hdr.rstrip("\n"))
L.append("; @launch grid=(256,1,1) block=(512,1,1) lds=%d" % LDS_SZ)
L.append('.amdgcn_target "amdgcn-amd-amdhsa--gfx950"')
L.append(".text\n" + (".p2align 12\n" if int(OPT.get("al", 0)) else "") + ".globl %s_kernel\n.p2align 8\n.type %s_kernel,@function\n%s_kernel:" % (NAME, NAME, NAME))
if DIAG: A("s_memrealtime s[42:43]")
if DBL or TOT: A("s_memrealtime s[98:99]")
sM = 96
A("s_lshr_b32 s%d, s2, 8" % sT0)
A("s_cbranch_scc1 Lend")
A("s_load_dwordx2 %s, s[0:1], 24" % sr(sWQ, 2))
A("s_load_dwordx4 %s, s[0:1], 0" % sr(sT2, 4))
A("v_readfirstlane_b32 s%d, v0" % sW)
C("every wave pulls one line of this kernel's code into L2 (plain read): 32 workgroups x 4 lines")
A("s_getpc_b64 s[10:11]")
LB("Lpc0")
A("s_lshr_b32 s%d, s2, 3" % sM)
A("s_lshl_b32 s%d, s%d, 9" % (sCNT, sM))
A("s_cmp_lg_u32 s%d, 0" % sW)
A("s_cbranch_scc1 Lnopf")
A("v_and_b32 v19, 3, v0")
A("v_lshl_add_u32 v19, v19, 7, s%d" % sCNT)
A("global_load_dword v%d, v19, s[10:11]" % (W + 8))
LB("Lnopf")
A("s_and_b32 s%d, s2, 7" % sJ)
A("s_lshr_b32 s%d, s2, 6" % sA)
A("s_and_b32 s%d, s%d, 7" % (sC, sM))
A("s_lshl_b32 s%d, 1, 17" % (sWQ + 3))
A("s_bitcmp1_b32 s%d, 8" % sW)
A("s_cbranch_scc0 Lmain0")
vKA, vVA = W + 40, W + 44
sRO, sRM = sVO, 97 if not TOT else 94
if TOT: sRM = sOL
def kv_issue(i):
    A("s_add_u32 m0, s%d, s%d" % (sKL if i < 8 else sVL, sRO))
    A("s_add_u32 s%d, s%d, s%d" % (sCNT, sKO, sRO))
    if i < 8: A("buffer_load_dwordx4 v%d, %s, s%d offen nt lds" % (vKA + (i & 3), sr(sK, 4), sCNT))
    else: A("buffer_load_dwordx4 v%d, %s, s%d offen nt lds" % (vVA + (i & 1), sr(sV, 4), sCNT))
    A("s_addk_i32 s%d, %d" % (sRO, 1024 + (VROT * 1024 if i == 7 else 0)))
    A("s_and_b32 s%d, s%d, 0x1fff" % (sRO, sRO))
def lane_init():
    A("v_and_b32 v%d, 63, v0" % vLANE)
    A("v_mov_b32 v%d, %d" % (vFL, L_FLG))
    A("v_lshlrev_b32 v%d, 4, v%d" % (vL16, vLANE))
    A("v_lshrrev_b32 v16, 4, v%d" % vLANE)
    A("v_and_b32 v17, 15, v%d" % vLANE)
    A("v_mov_b32 v20, 0")
    if DIAG: A("v_mov_b32 v30, 0")
def main_early():
    LB("Lmain0")
    for s, off in [(sW1, 48), (sB1, 56), (sW2, 64)]:
        A("s_load_dwordx2 %s, s[0:1], %d" % (sr(s, 2), off))
    lane_init()
    A("v_mov_b32 v21, 0")
    for k in range(4): A("ds_write_b64 v%d, v[20:21] offset:%d" % (vFL, 8 * k))
    A("s_lshl_b32 s%d, 1, 25" % (sK + 2)); A("s_mov_b32 s%d, s%d" % (sK + 3, sWQ + 3))
    A("v_xor_b32 v18, v17, v16")
    A("v_lshlrev_b32 v18, 4, v18")
    A("v_lshl_add_u32 v%d, v16, 8, v18" % vKA)
    A("s_lshl_b32 s%d, s%d, %d" % (sRO, sC, 10 if ROT else 31))
    if not ROT: A("s_mov_b32 s%d, 0" % sRO)
    A("s_bfe_u32 s%d, s%d, 0x2000a" % (sT1, sRO))
    A("s_lshl_b32 s%d, s%d, 6" % (sT1, sT1))
    for k in range(1, 4):
        A("s_add_u32 s%d, s%d, %d" % (sCNT, sT1, 64 * k))
        A("s_and_b32 s%d, s%d, 0xc0" % (sCNT, sCNT))
        A("v_xor_b32 v%d, s%d, v%d" % (vKA + k, sCNT, vKA))
    A("v_xor_b32 v%d, s%d, v%d" % (vKA, sT1, vKA))
    soff(sKO, [(sA, 23), (sJ, 20), (sC, 15), (sW, 7)], 3072 * 256)
    A("s_add_u32 s%d, s%d, %d" % (sKL, sT0, L_K))
    A("s_waitcnt lgkmcnt(0)")
    A("s_mov_b64 %s, %s" % (sr(sK, 2), sr(sT4, 2)))
    for i in range(D0): kv_issue(i)
    C("lane k<3 of wave 3 pulls a slice of coefficient array k into L2")
    A("s_cmp_lg_u32 s%d, 192" % sW)
    A("s_cbranch_scc1 Lm_nopf")
    A("s_min_u32 s%d, s%d, 27" % (sT1, sM))
    A("s_lshl_b32 s%d, s%d, 7" % (sT1, sT1))
    A("v_mov_b32 v19, s%d" % sT1)
    A("s_mov_b64 exec, 1")
    for k, sd in enumerate([sW1, sB1, sW2]): A("global_load_dword v%d, v19, %s" % (W + 9 + k, sr(sd, 2)))
    A("s_mov_b64 exec, -1")
    LB("Lm_nopf")
    A("s_add_u32 s%d, s%d, %d" % (sVL, sT0, L_V))
    A("s_lshr_b32 s%d, s%d, 6" % (sW, sW))
    if DIAG: A("v_writelane_b32 v30, s42, 0")
    STAMP(10)
    A("s_branch Lmain")

C("---- helper waves: first q projection, then the table of g over bf16 inputs ----")
HW1, HB1, HW2 = 32, 60, 112
hK0, hK1, hONE, hRES = 88, 90, 92, 94
AC = [140, 142]
A("s_load_dwordx2 %s, s[0:1], 96" % sr(sWS, 2))
C("wq tile DMA: instruction i, thread t' = t-256: row 32 i + (t'>>3), 16-byte chunk (t'&7) ^ swizzle")
A("v_bfe_u32 v23, v0, 3, 5")
A("v_and_b32 v22, 7, v0")
A("v_and_b32 v24, 2, v23")
A("v_lshrrev_b32 v25, 1, v23")
A("v_and_or_b32 v24, v25, 4, v24")
A("v_xor_b32 v22, v22, v24")
A("v_lshlrev_b32 v22, 4, v22")
A("v_lshl_add_u32 v22, v23, 13, v22")
soff(sQL, [(sA, 20), (sJ, 10), (sC, 7)], 0)
A("s_lshl_b32 s%d, 1, 22" % (sWQ + 2))
A("s_lshl_b32 s%d, 1, 18" % sT1)
A("s_lshl_b32 s%d, s%d, 4" % (sQS, sW))
A("s_add_u32 m0, s%d, %d" % (sQS, L_WQ - 4096))
A("v_lshlrev_b32 v21, 4, v0")
if DIAG: A("s_memrealtime s[88:89]")
A("s_waitcnt lgkmcnt(0)")
if DIAG: A("s_memrealtime s[90:91]")
A("global_load_dwordx4 %s, v21, %s offset:-4096" % (vr(XR, 4), sr(sT2, 2)))
for i in range(4):
    if i:
        A("s_addk_i32 m0, 0x1000")
        A("s_add_u32 s%d, s%d, s%d" % (sQL, sQL, sT1))
    A("buffer_load_dwordx4 v22, %s, s%d offen nt lds" % (sr(sWQ, 4), sQL))
if DIAG: A("s_memrealtime s[92:93]")
lane_init()
A("s_bfe_u32 s%d, s%d, 0x20006" % (sW, sW))
A("s_lshl_b32 s%d, s%d, 10" % (sT3, sW))
srd(sWS, WS_SZ)
C("early sentinels (O0, LSE0): hw0 1024 B, the others 16 B")
for i in range(4): A("v_mov_b32 v%d, -1" % (PM + i))
A("s_mul_i32 s%d, s%d, %d" % (sT5, sM, CLRA_PER))
A("s_lshl_b32 s%d, s%d, 17" % (sGR, sJ))
A("s_add_u32 s%d, s%d, s%d" % (sT5, sT5, sGR))
A("s_add_u32 s%d, s%d, 1024" % (sT4, sT5))
A("s_cmp_ge_u32 s%d, 2" % sW)
A("s_cbranch_scc1 Lhc_skip")
A("s_cmp_eq_u32 s%d, 0" % sW)
A("s_cselect_b32 s%d, s%d, s%d" % (sT5, sT5, sT4))
A("s_cselect_b64 exec, -1, 1")
A("buffer_store_dwordx4 %s, v%d, %s, s%d offen sc1" % (vr(PM, 4), vL16, sr(sWS, 4), sT5))
LB("Lhc_skip")
A("s_mov_b64 exec, -1")
A("s_branch Lhelp2")
main_early()
LB("Lhelp2")
if QT:
    C("touch 2 lines of the tagged q mailbox per wave so that they sit in L2 before they are written")
    soff(sT4, [(sM, 10), (sW, 8), (sJ, 17)], Q0_OFF)
    A("v_lshlrev_b32 v24, 7, v%d" % vLANE)
    A("s_mov_b64 exec, 3")
    A("buffer_load_dword v%d, v24, %s, s%d offen" % (RES + 1, sr(sWS, 4), sT4))
A("s_mov_b64 exec, -1")
if HP: A("s_setprio 3")
A("s_load_dword s%d, %s, %s" % (sE, sr(sWS, 2), hx(EPO)))
A("s_load_dwordx2 %s, s[0:1], 72" % sr(sB2P, 2))
if DIAG:
    A("v_writelane_b32 v30, s42, 0")
    A("s_waitcnt lgkmcnt(0)")
    A("v_mov_b32 v31, 0")
    A("v_writelane_b32 v31, s88, 0"); A("v_writelane_b32 v31, s90, 1"); A("v_writelane_b32 v31, s92, 2")
STAMP(9)
A("s_barrier")
A("s_lshl_b32 s%d, s2, 2" % sHC)
A("s_add_u32 s%d, s%d, s%d" % (sHC, sHC, sW))
sHX = 86
if XENT:
    C("extra entry e = wave index: |h| code ELO*128 + (e>>1), sign e&1")
    A("s_lshr_b32 s%d, s%d, 1" % (sHX, sHC))
    A("s_add_u32 s%d, s%d, %d" % (sHX, sHX, ELO * 128))
    A("s_lshl_b32 s%d, s%d, 16" % (sHX, sHX))
    A("s_lshl_b32 s%d, s%d, 31" % (sT0, sHC))
    A("s_or_b32 s%d, s%d, s%d" % (sHX, sHX, sT0))
A("s_mul_i32 s%d, s%d, %d" % (sHC, sHC, EPW))
A("s_lshl_b32 s%d, s%d, 3" % (sHT, sHC))
A("s_add_u32 s%d, s%d, %d" % (sHT, sHT, XENT * 4))
A("s_add_u32 s%d, s%d, %d" % (sHC, sHC, ELO * 128 + XENT // 2))
A("s_lshl_b32 s%d, s%d, 16" % (sHC, sHC))
A("v_lshlrev_b32 v27, 2, v%d" % vLANE)
A("v_add_u32 v27, s%d, v27" % sHT)
A("s_mov_b32 s%d, %s" % (sHT, hx(TB)))
common_addr()
A("s_lshl_b32 s%d, s%d, 1" % (sQS, sQS))
A("s_add_u32 s%d, s%d, s%d" % (sQS, sQS, sGR))
A("s_add_u32 s%d, s%d, %s" % (sQS, sQS, hx(Q0_OFF)))
A("v_lshlrev_b32 v%d, 1, v%d" % (vQST, vQST))
A("s_getreg_b32 s%d, hwreg(HW_REG_XCC_ID, 0, 3)" % sXCC)
for r, c in [(hK0, K0), (hK1, K1), (hONE, 1.0)]:
    A("v_mov_b32 v%d, %s" % (r, hx(f2u(c)))); A("v_mov_b32 v%d, %s" % (r + 1, hx(f2u(c))))
A("v_mov_b32 v%d, 0" % hRES)
A("s_mov_b32 s%d, 0" % sIT)
if DRY:
    C("dry run of the q-projection code while its inputs are in flight (instruction cache warm-up; no side effects)")
    A("s_mov_b32 s%d, 1" % sIT)
    A("s_branch Llnq")
    LB("Ldry_done")
    A("s_mov_b64 exec, -1")
    A("s_mov_b32 s%d, 0" % sIT)
if WARM:
    C("warm the instruction cache lines at the far jump targets of the main waves")
    for k, nm in enumerate(["k", "fin", "out", "tab"]):
        A("s_cmp_lg_u32 s%d, %d" % (sW, k))
        A("s_cbranch_scc1 Lwm%d" % k)
        A("s_call_b64 %s, Lst_%s" % (sr(sRET, 2), nm))
        if nm == "out": A("s_call_b64 %s, Lst_mq" % sr(sRET, 2))
        LB("Lwm%d" % k)
A("s_cmp_ge_u32 s%d, 2" % sW)
A("s_cbranch_scc0 Lhx5")
A("s_waitcnt vmcnt(%d)" % (4 + QT))
LB("Lhx5")
A("s_waitcnt vmcnt(%d)" % (5 + QT))
STAMP(1)
A("s_branch Llnq")
LB("Lq_first")
if DRY:
    A("s_cmp_lg_u32 s%d, 0" % sIT)
    A("s_cbranch_scc1 Lq_dry")
A("s_waitcnt vmcnt(0) lgkmcnt(0)")
STAMP(2)
lds_arrive(0, vT + 4)
tags()
A("s_or_b32 s%d, s%d, s%d" % (sXCC, sXCC, sTG2))
C("4 helper arrivals (wq tile, xn rows) + 4 main arrivals (coefficients landed, sentinels acknowledged)")
lds_spin(0, 4, vT + 4)
STAMP(6)
LB("Lq_dry")
wqf_reads()
A("s_waitcnt lgkmcnt(0)")
A("s_branch Lq_go")
LB("Lh_qst")
if DRY:
    A("s_cmp_lg_u32 s%d, 0" % sIT)
    A("s_cbranch_scc1 Ldry_done")
STAMP(5)
A("v_mov_b32 v%d, s%d" % (W + 6, sTG1))
A("v_mov_b32 v%d, s%d" % (W + 7, sXCC))
A("buffer_store_dwordx4 %s, v%d, %s, s%d offen%s" % (vr(W + 4, 4), vQST, sr(sWS, 4), sQS, "" if int(OPT.get("fast", 1)) else " sc1"))
A("s_add_u32 s%d, s%d, %s" % (sQS, sQS, hx(QB_DELTA)))
if not QBD: A("buffer_store_dwordx4 %s, v%d, %s, s%d offen sc1" % (vr(W + 4, 4), vQST, sr(sWS, 4), sQS))
A("s_mov_b64 exec, -1")
HR = W + 8
if ADP: lds_arrive(28, 24)
if HP: A("s_setprio 0")
STAMP(3)
A("v_lshlrev_b32 v26, 3, v%d" % vLANE)
lds_spin(24, 4, 24, sleep=1)
for a_ in range(3):
    for k in range(3):
        A("ds_read_b128 %s, v%d offset:%d" % (vr(HR + 14 * a_ + 4 * k, 4), vL16, 4096 * a_ + 1024 * k))
    A("ds_read_b64 %s, v26 offset:%d" % (vr(HR + 14 * a_ + 12, 2), 4096 * a_ + 3072))
for a_, d in [(0, HW1), (14, HB1), (28, HW2)]:
    A("s_waitcnt lgkmcnt(%d)" % (8 - 4 * (a_ // 14)))
    for p in range(14):
        A("v_lshlrev_b32 v%d, 16, v%d" % (d + 2 * p, HR + a_ + p))
        A("v_and_b32 v%d, 0xffff0000, v%d" % (d + 2 * p + 1, HR + a_ + p))
A("s_load_dword s%d, %s, 0" % (sB2, sr(sB2P, 2)))
STAMP(4)
if DIAG:
    A("s_memtime s[42:43]"); A("s_waitcnt lgkmcnt(0)"); A("v_writelane_b32 v30, s42, 13")
LB("Lhl")
if DIAG:
    A("s_memrealtime s[42:43]"); A("s_add_u32 m0, s%d, 10" % sIT); A("s_waitcnt lgkmcnt(0)"); A("v_writelane_b32 v30, s42, m0")
A("s_mov_b32 s%d, s%d" % (sH, sHC)); A("s_mov_b32 s%d, s%d" % (sH + 1, sHC))
A("s_xor_b32 s%d, s%d, 0x80000000" % (sH2, sHC)); A("s_mov_b32 s%d, s%d" % (sH2 + 1, sH2))
U4 = [144, 146, 148, 150]; T4 = [152, 154, 156, 158]; Z4 = [160, 162, 164, 166]
for p2 in range(7):
    ch = [(2 * p2 + k // 2, k & 1) for k in range(4)]
    for k, (p, sg) in enumerate(ch):
        A("v_pk_fma_f32 %s, %s, %s, %s" % (vr(U4[k], 2), vr(HW1 + 2 * p, 2), sr([sH, sH2][sg], 2), vr(HB1 + 2 * p, 2)))
    for k in range(4): A("v_pk_mul_f32 %s, %s, %s" % (vr(T4[k], 2), vr(U4[k], 2), vr(U4[k], 2)))
    for k in range(4): A("v_pk_fma_f32 %s, %s, %s, %s" % (vr(T4[k], 2), vr(T4[k], 2), vr(hK1, 2), vr(hK0, 2)))
    for k in range(4): A("v_pk_mul_f32 %s, %s, %s" % (vr(T4[k], 2), vr(T4[k], 2), vr(U4[k], 2)))
    for k in range(4):
        for h in range(2): A("v_exp_f32 v%d, v%d" % (T4[k] + h, T4[k] + h))
    for k, (p, sg) in enumerate(ch): A("v_pk_mul_f32 %s, %s, %s" % (vr(Z4[k], 2), vr(U4[k], 2), vr(HW2 + 2 * p, 2)))
    for k in range(4): A("v_pk_add_f32 %s, %s, %s" % (vr(T4[k], 2), vr(T4[k], 2), vr(hONE, 2)))
    for k in range(4):
        for h in range(2): A("v_rcp_f32 v%d, v%d" % (T4[k] + h, T4[k] + h))
    for k, (p, sg) in enumerate(ch):
        if p == 0: A("v_pk_mul_f32 %s, %s, %s" % (vr(AC[sg], 2), vr(Z4[k], 2), vr(T4[k], 2)))
        else: A("v_pk_fma_f32 %s, %s, %s, %s" % (vr(AC[sg], 2), vr(Z4[k], 2), vr(T4[k], 2), vr(AC[sg], 2)))
A("v_add_f32 v%d, v%d, v%d" % (AC[0], AC[0], AC[0] + 1))
A("v_add_f32 v%d, v%d, v%d" % (AC[1], AC[1], AC[1] + 1))
A("s_lshl_b32 m0, s%d, 1" % sIT)
A("s_add_u32 s%d, s%d, 0x10000" % (sHC, sHC))
wave_sum2(AC[0], AC[1], sSUM, sSQ)
A("s_add_u32 s%d, s%d, 1" % (sIT, sIT))
A("s_nop 0")
A("v_writelane_b32 v%d, s%d, m0" % (hRES, sSUM))
A("s_add_u32 m0, m0, 1")
A("s_cmp_lg_u32 s%d, %d" % (sIT, EPW))
A("v_writelane_b32 v%d, s%d, m0" % (hRES, sSQ))
A("s_cbranch_scc1 Lhl")
def h_publish(lanes):
    A("v_cvt_pk_bf16_f32 v%d, v%d, v%d" % (hRES, hRES, hRES))
    A("v_and_b32 v%d, 0xffff0000, v%d" % (hRES, hRES))
    A("v_add_f32 v%d, s%d, v%d" % (hRES, sB2, hRES))
    A("v_cvt_pk_bf16_f32 v%d, v%d, v%d" % (hRES, hRES, hRES))
    A("v_and_b32 v%d, 0xffff0000, v%d" % (hRES + 1, hRES))
    A("s_mov_b64 exec, %d" % lanes)
    A("buffer_store_dword v%d, v27, %s, s%d offen sc1" % (hRES + 1, sr(sWS, 4), sHT))
    A("s_mov_b64 exec, -1")
A("s_waitcnt lgkmcnt(0)")
A("s_lshl_b32 s%d, s%d, 16" % (sB2, sB2))
lds_spin(8, 4, 24)
h_publish((1 << (2 * EPW)) - 1)
if QBD:
    C("the write-through copy of q is only needed when the group is not known to sit on one XCD")
    A("ds_read_b32 v24, v%d offset:4" % vFL)
    A("s_waitcnt lgkmcnt(0)")
    A("v_readfirstlane_b32 s%d, v24" % sT0)
    A("s_cmp_eq_u32 s%d, 4" % sT0)
    A("s_cbranch_scc1 Lhqb")
    A("s_mov_b64 exec, %s" % sr(sMSK, 2))
    A("buffer_store_dwordx4 %s, v%d, %s, s%d offen sc1" % (vr(W + 4, 4), vQST, sr(sWS, 4), sQS))
    A("s_mov_b64 exec, -1")
    LB("Lhqb")
STAMP(8)
if XENT:
    A("s_mov_b32 s%d, s%d" % (sH, sHX)); A("s_mov_b32 s%d, s%d" % (sH + 1, sHX))
    for grp in [[0, 1, 2, 3], [4, 5, 6, 7], [8, 9, 10], [11, 12, 13]]:
        n = len(grp)
        for k, p in enumerate(grp): A("v_pk_fma_f32 %s, %s, %s, %s" % (vr(U4[k], 2), vr(HW1 + 2 * p, 2), sr(sH, 2), vr(HB1 + 2 * p, 2)))
        for k in range(n): A("v_pk_mul_f32 %s, %s, %s" % (vr(T4[k], 2), vr(U4[k], 2), vr(U4[k], 2)))
        for k in range(n): A("v_pk_fma_f32 %s, %s, %s, %s" % (vr(T4[k], 2), vr(T4[k], 2), vr(hK1, 2), vr(hK0, 2)))
        for k in range(n): A("v_pk_mul_f32 %s, %s, %s" % (vr(T4[k], 2), vr(T4[k], 2), vr(U4[k], 2)))
        for k in range(n):
            for h in range(2): A("v_exp_f32 v%d, v%d" % (T4[k] + h, T4[k] + h))
        for k, p in enumerate(grp): A("v_pk_mul_f32 %s, %s, %s" % (vr(Z4[k], 2), vr(U4[k], 2), vr(HW2 + 2 * p, 2)))
        for k in range(n): A("v_pk_add_f32 %s, %s, %s" % (vr(T4[k], 2), vr(T4[k], 2), vr(hONE, 2)))
        for k in range(n):
            for h in range(2): A("v_rcp_f32 v%d, v%d" % (T4[k] + h, T4[k] + h))
        for k, p in enumerate(grp):
            if p < 2: A("v_pk_mul_f32 %s, %s, %s" % (vr(AC[p & 1], 2), vr(Z4[k], 2), vr(T4[k], 2)))
            else: A("v_pk_fma_f32 %s, %s, %s, %s" % (vr(AC[p & 1], 2), vr(Z4[k], 2), vr(T4[k], 2), vr(AC[p & 1], 2)))
    A("v_add_f32 v%d, v%d, v%d" % (AC[0], AC[0], AC[0] + 1))
    A("v_add_f32 v%d, v%d, v%d" % (AC[1], AC[1], AC[1] + 1))
    A("v_add_f32 v%d, v%d, v%d" % (AC[0], AC[0], AC[1]))
    A("s_nop 1")
    wave_sum2(AC[0], AC[1], sSUM, sSQ)
    A("s_nop 1")
    A("v_mov_b32 v%d, s%d" % (hRES, sSUM))
    A("v_cvt_pk_bf16_f32 v%d, v%d, v%d" % (hRES, hRES, hRES))
    A("v_and_b32 v%d, 0xffff0000, v%d" % (hRES, hRES))
    A("v_add_f32 v%d, s%d, v%d" % (hRES, sB2, hRES))
    A("v_cvt_pk_bf16_f32 v%d, v%d, v%d" % (hRES, hRES, hRES))
    A("v_and_b32 v%d, 0xffff0000, v%d" % (hRES, hRES))
    C("the last of the four helpers stores the workgroup's four extra entries with one instruction")
    A("s_lshl_b32 s%d, s%d, 2" % (sT0, sW))
    A("v_add_u32 v16, s%d, v%d" % (sT0, vFL))
    A("v_mov_b32 v17, 1")
    A("s_mov_b64 exec, 1")
    A("ds_write_b32 v16, v%d offset:32" % hRES)
    A("s_waitcnt lgkmcnt(0)")
    A("ds_add_rtn_u32 v18, v%d, v17 offset:28" % vFL)
    A("s_waitcnt lgkmcnt(0)")
    A("v_readfirstlane_b32 s%d, v18" % sT0)
    A("s_cmp_lg_u32 s%d, 3" % sT0)
    A("s_cbranch_scc1 Lhx_end")
    A("ds_read_b128 v[20:23], v%d offset:32" % vFL)
    A("s_lshl_b32 s%d, s2, 4" % sT0)
    A("v_mov_b32 v16, s%d" % sT0)
    A("s_waitcnt lgkmcnt(0)")
    A("buffer_store_dwordx4 v[20:23], v16, %s, s%d offen sc1" % (sr(sWS, 4), sHT))
    LB("Lhx_end")
    A("s_mov_b64 exec, -1")
if DIAG:
    A("s_memtime s[42:43]"); A("s_waitcnt lgkmcnt(0)"); A("v_writelane_b32 v30, s42, 14")
    STAMP(15)
STAMP(7)
C("stand in at the two barriers of the second layer, so that they do not wait for this wave's store acknowledgements")
A("s_barrier")
A("s_barrier")
if DIAG:
    A("s_add_u32 s%d, s%d, 4" % (sW, sW))
    A("v_mov_b32 v28, v30")
    A("s_branch Lfin_exit")
A("s_endpgm")

LB("Lmain")
for s, off in [(sWS, 96), (sV, 16), (sWO, 32), (sOUT, 80), (sX, 0), (sB2P, 72)]:
    A("s_load_dwordx2 %s, s[0:1], %d" % (sr(s, 2), off))
if DIAG == 2: A("s_load_dwordx2 s[100:101], s[0:1], 88")
srd(sWS, WS_SZ)
for s in [sW1, sB1, sW2]: srd(s, 3584)
A("s_lshl_b32 s%d, s%d, 10" % (sT3, sW))
A("s_barrier")
for i in range(D0, DC): kv_issue(i)
A("s_mov_b32 m0, s%d" % sT3)
for i, sd in enumerate([sW1, sB1, sW2]):
    if i: A("s_addk_i32 m0, 0x1000")
    A("s_nop 0")
    A("buffer_load_dwordx4 v%d, %s, s%d offen lds" % (vL16, sr(sd, 4), sT3))
for i in range(DC, D1): kv_issue(i)
for i in range(4): A("v_mov_b32 v%d, -1" % (W + i))
A("s_lshl_b32 s%d, s%d, 17" % (sGR, sJ))
A("s_mov_b32 s%d, s%d" % (sT1, sM))
A("s_waitcnt lgkmcnt(0)")
A("s_load_dword s%d, %s, %s" % (sE, sr(sWS, 2), hx(EPO)))
STAMP(11)
for s, n in [(sV, 1 << 25), (sX, 4096), (sWO, 1 << 22), (sOUT, 4096)]: srd(s, n)
A("v_lshlrev_b32 v18, 1, v16")
A("v_xor_b32 v18, v17, v18")
A("v_lshlrev_b32 v18, 4, v18")
A("v_lshl_add_u32 v%d, v16, 8, v18" % vVA)
if ROT:
    A("s_and_b32 s%d, s%d, 1" % (sT0, sC))
    A("s_lshl_b32 s%d, s%d, 7" % (sT0, sT0))
    A("v_xor_b32 v%d, s%d, v%d" % (vVA, sT0, vVA))
A("v_xor_b32 v%d, 128, v%d" % (vVA + 1, vVA))
C("late sentinels: wave 0,1: group region ; wave 2: P chunk")
A("s_lshr_b32 s%d, s2, 3" % sT1)
A("s_mul_i32 s%d, s%d, %d" % (sT1, sT1, CLRB_PER))
A("s_lshl_b32 s%d, s%d, 10" % (sT0, sW))
A("s_add_u32 s%d, s%d, s%d" % (sT1, sT1, sT0))
A("s_add_u32 s%d, s%d, s%d" % (sT1, sT1, sGR))
A("s_add_u32 s%d, s%d, %d" % (sT1, sT1, CLRB_OFF))
A("s_lshl_b32 s%d, s2, 10" % sT0)
A("s_add_u32 s%d, s%d, %s" % (sT0, sT0, hx(PB)))
A("s_cmp_ge_u32 s%d, 2" % sW)
A("s_cselect_b32 s%d, s%d, s%d" % (sT1, sT0, sT1))
A("s_bfm_b64 %s, %d, 0" % (sr(sH, 2), (CLRB_PER - 1024) // 16))
A("s_cmp_eq_u32 s%d, 1" % sW)
A("s_cselect_b64 %s, %s, -1" % (sr(sH, 2), sr(sH, 2)))
NCL = NOCT * 4 // 16
A("v_mov_b32 v19, v%d" % vL16)
A("s_cmp_lg_u32 s%d, 3" % sW)
A("s_cbranch_scc1 Lm_c3")
C("wave 3: this workgroup's table slots")
A("s_mul_i32 s%d, s2, %d" % (sT0, NOCT * 4))
A("s_add_u32 s%d, s%d, %d" % (sT0, sT0, XENT * 4))
A("v_add_u32 v19, s%d, v19" % sT0)
A("s_lshl_b32 s%d, s2, 4" % sT0)
if XENT: A("v_writelane_b32 v19, s%d, %d" % (sT0, NCL))
A("s_mov_b32 s%d, %s" % (sT1, hx(TB)))
A("s_mov_b64 %s, %d" % (sr(sH, 2), (1 << (NCL + (1 if XENT else 0))) - 1))
LB("Lm_c3")
A("s_mov_b64 exec, %s" % sr(sH, 2))
A("buffer_store_dwordx4 %s, v19, %s, s%d offen sc1" % (vr(W, 4), sr(sWS, 4), sT1))
A("s_mov_b64 exec, -1")

common_addr()
A("s_add_u32 s%d, s%d, s%d" % (sQS, sQS, sGR))
A("s_add_u32 s%d, s%d, %d" % (sQS, sQS, Q1_OFF))
wtile_voff(10, 22)
A("v_and_b32 v19, 7, v%d" % vLANE)
A("v_lshrrev_b32 v25, 2, v%d" % vLANE)
A("v_lshlrev_b32 v25, 7, v25")
A("v_lshl_add_u32 v%d, v18, 2, v25" % vOST)
A("v_lshlrev_b32 v25, 7, v16")
A("v_lshl_add_u32 v%d, v19, 4, v25" % vOLD)
C("lanes n>=8 of the first two o loads fetch the lse values instead: offset relative to the o block")
A("s_mul_i32 s%d, s%d, %d" % (sT0, sA, 128 - 8192))
A("s_mul_i32 s%d, s%d, %d" % (sT1, sW, 32 - 2048))
A("s_add_u32 s%d, s%d, s%d" % (sT0, sT0, sT1))
A("s_add_u32 s%d, s%d, %d" % (sT0, sT0, LSE_OFF[0] - O_OFF[0]))
A("v_add_u32 v25, s%d, v%d" % (sT0, vLSE))
A("v_xor_b32 v26, 16, v25")
A("v_add_u32 v26, -512, v26")
A("v_cmp_gt_u32 vcc, 8, v17")
A("s_nop 1")
A("v_cndmask_b32 v%d, v25, v%d, vcc" % (vLSE, vOLD))
A("v_cndmask_b32 v%d, v26, v%d, vcc" % (vLS2, vOLD))
A("v_lshlrev_b32 v%d, 1, v%d" % (vPST, vLANE))
A("v_lshlrev_b32 v25, 3, v16")
A("v_lshl_add_u32 v%d, v19, 4, v25" % vX1S)
A("s_mul_i32 s%d, s%d, %d" % (sT0, sW, RBS))
A("s_add_u32 s%d, s%d, %d" % (sT0, sT0, L_RB))
A("v_mul_u32_u24 v25, 528, v18")
A("v_lshl_add_u32 v25, v16, 4, v25")
A("v_lshrrev_b32 v26, 2, v17")
A("v_lshl_add_u32 v25, v26, 7, v25")
A("v_add_u32 v%d, s%d, v25" % (vRBW, sT0))
A("s_mul_i32 s%d, s%d, 528" % (sT0, sW))
A("s_add_u32 s%d, s%d, %d" % (sT0, sT0, L_RB))
A("v_lshlrev_b32 v25, 3, v%d" % vLANE)
A("v_add_u32 v%d, s%d, v25" % (vRBR, sT0))
A("s_lshl_b32 s%d, s%d, 3" % (sT0, sW))
A("s_add_u32 s%d, s%d, %d" % (sT0, sT0, L_ML))
A("v_lshlrev_b32 v25, 5, v18")
A("v_add_u32 v%d, s%d, v25" % (vMLW, sT0))
A("s_lshl_b32 s%d, s%d, 5" % (sT0, sW))
A("s_add_u32 s%d, s%d, %d" % (sT0, sT0, L_ML))
A("v_mov_b32 v%d, s%d" % (vMLR, sT0))
A("v_mov_b32 v25, 0x3f80")
A("v_mov_b32 v26, 0x3f800000")
for r in range(4):
    A("v_cmp_eq_u32 vcc, %d, v17" % (2 * r))
    A("v_cmp_eq_u32 %s, %d, v17" % (sr(sH, 2), 2 * r + 1))
    A("s_nop 0")
    A("v_cndmask_b32 v%d, 0, v25, vcc" % (SEL + r))
    A("v_cndmask_b32 v%d, v%d, v26, %s" % (SEL + r, SEL + r, sr(sH, 2)))
for i in range(16): A("v_mov_b32 v%d, 0" % (PM + i))
for p in range(4):
    A("s_mov_b32 s%d, %s" % (sPM + 2 * p, hx(0x000f000f << (4 * p))))
    A("s_mov_b32 s%d, %s" % (sPM + 2 * p + 1, hx(0x000f000f << (4 * p))))
soff(sOS, [(sW, 13), (sA, 11), (sC, 4), (sJ, 17)], O_OFF[0])
soff(sOL, [(sA, 13), (sW, 11), (sJ, 17)], O_OFF[0])
A("s_add_u32 s%d, s%d, %s" % (sQL, sOL, hx(Q0_OFF - O_OFF[0])))
soff(sLS, [(sW, 7), (sA, 5), (sC, 2), (sJ, 17)], LSE_OFF[0])
soff(sPS, [(sW, 15), (sC, 12), (sJ, 9), (sA, 7)], PB)
A("s_mov_b32 s%d, %s" % (sSC, hx(f2u(128 ** -0.5 * math.log2(math.e)))))
A("s_getreg_b32 s%d, hwreg(HW_REG_XCC_ID, 0, 3)" % sXCC)
A("v_xor_b32 v24, v16, v17")
A("v_lshlrev_b32 v24, 4, v24")
A("v_lshl_add_u32 v24, v17, 8, v24")
A("s_lshl_b32 s%d, s%d, 13" % (sT1, sW))
A("s_add_u32 s%d, s%d, %d" % (sT2, sT1, L_K))
for t in range(4): A("v_xor_b32 v%d, %d, v24" % (18 + t, 64 * t))
for t in range(4): A("v_add_u32 v%d, s%d, v%d" % (18 + t, sT2, 18 + t))
VA = W + 32
A("v_lshrrev_b32 v24, 2, v%d" % vLANE)
A("v_and_b32 v25, 7, v24")
A("v_lshlrev_b32 v25, 1, v25")
A("v_bfe_u32 v26, v%d, 1, 1" % vLANE)
A("v_xor_b32 v25, v25, v26")
A("v_lshlrev_b32 v25, 4, v25")
A("v_lshl_add_u32 v25, v24, 8, v25")
A("v_and_b32 v26, 1, v%d" % vLANE)
A("v_lshl_add_u32 v25, v26, 3, v25")
A("s_add_u32 s%d, s%d, %d" % (sT2, sT1, L_V))
for t in range(8): A("v_xor_b32 v%d, %d, v25" % (VA + t, 32 * t))
for t in range(8): A("v_add_u32 v%d, s%d, v%d" % (VA + t, sT2, VA + t))
soff(sT4, [(sJ, 19), (sA, 17), (sW, 15), (sC, 7)], 0)
A("s_lshl_b32 s%d, s%d, 12" % (sT5, sW))
A("s_add_u32 s%d, s%d, %d" % (sT5, sT5, L_WO))
soff(sT3, [(sA, 10), (sC, 7)], 0)
A("v_lshlrev_b32 v24, 5, v%d" % vLANE)
A("s_lshl_b32 s%d, s%d, 10" % (sT2, sW))
A("s_add_u32 s%d, s%d, %d" % (sT2, sT2, L_QF))
A("v_add_u32 v25, s%d, v%d" % (sT2, vL16))
A("v_add_u32 v26, %d, v%d" % (L_QF, vL16))
STAMP(12)
if DIAG: A("v_mov_b32 v31, v30")
QP = W
def q0_issue(QP=QP):
    A("buffer_load_dwordx4 %s, v24, %s, s%d offen sc1" % (vr(QP, 4), sr(sWS, 4), sQL))
    A("buffer_load_dwordx4 %s, v24, %s, s%d offen offset:16 sc1" % (vr(QP + 4, 4), sr(sWS, 4), sQL))
def flag_block():
    if True:
        A("s_cmp_lg_u32 s%d, 0" % sW)
        A("s_cbranch_scc1 Lnoflag")
        C("every sentinel store of this workgroup is acknowledged: announce it")
        lds_spin(8, 4, vT)
        A("v_mov_b32 v16, s%d" % sTG1)
        A("v_mov_b32 v17, s%d" % sXCC)
        soff(sT1, [(2, 4)], FB)
        A("v_mov_b32 v21, 0")
        A("s_mov_b64 exec, 1")
        A("buffer_store_dwordx2 v[16:17], v21, %s, s%d offen sc1" % (sr(sWS, 4), sT1))
        A("s_mov_b64 exec, -1")
        LB("Lnoflag")
C("coefficients landed -> tell the helpers")
young = D1 - DC + 1
told = False
if ECO:
    A("s_waitcnt vmcnt(%d)" % young); lds_arrive(24, vT); told = True
A("s_mov_b32 s%d, 0" % sY)
for i in range(D1, 16):
    dp = DEPTH if i < TAILI else TAILD
    extra = 1 if i == 16 - QV else 0
    if ADP and told:
        C("stay shallow until the helpers have issued their q stores")
        A("s_cmp_lg_u32 s%d, 0" % sY)
        A("s_cbranch_scc1 Ldp%d" % i)
        A("ds_read_b32 v%d, v%d offset:28" % (vT, vFL))
        A("s_waitcnt lgkmcnt(0)")
        A("v_readfirstlane_b32 s%d, v%d" % (sT1, vT))
        A("s_cmp_ge_u32 s%d, 4" % sT1)
        A("s_cselect_b32 s%d, 1, 0" % sY)
        A("s_cbranch_scc1 Ldp%d" % i)
        A("s_waitcnt vmcnt(%d)" % (dp - 1 - 2 * extra))
        LB("Ldp%d" % i)
        A("s_waitcnt vmcnt(%d)" % (ADP - 1 - 2 * extra))
        if extra: q0_issue(); young += 2
    else:
        if extra:
            A("s_waitcnt vmcnt(%d)" % (dp - 2)); q0_issue(); young += 2
        A("s_waitcnt vmcnt(%d)" % (dp - 1))
    if not told and young >= dp - 1:
        lds_arrive(24, vT); told = True
    kv_issue(i); young += 1
assert told
q0_issue(QP + 8)
C("everything older than the V loads is complete: K, late sentinels")
A("s_waitcnt vmcnt(12)")
lds_arrive(8, vT)
A("s_waitcnt lgkmcnt(0)")
tags()
A("s_or_b32 s%d, s%d, s%d" % (sXCC, sXCC, sTG2))
STAMP(1)
for t in range(4):
    for T in range(2):
        A("ds_read_b128 %s, v%d offset:%d" % (vr(KF + 16 * T + 4 * t, 4), 18 + t, 4096 * T))
flag_block()
def wait_w0(n):
    uid[0] += 1
    A("s_cmp_eq_u32 s%d, 0" % sW)
    A("s_cbranch_scc1 Lww%d" % uid[0])
    A("s_waitcnt vmcnt(%d)" % n)
    LB("Lww%d" % uid[0])
    A("s_waitcnt vmcnt(%d)" % (n + 1))
wait_w0(QV + 2)
STAMP(2)
A("s_setprio 2")
A("s_mov_b32 s%d, %s" % (sCNT, hx(SPIN)))
A("s_mov_b32 s%d, 0" % sY)
LB("Lmq")
A("v_and_b32 v16, -8, v%d" % (QP + 3))
A("v_and_b32 v17, -8, v%d" % (QP + 7))
A("v_cmp_ne_u32 vcc, s%d, v%d" % (sTG1, QP + 2))
A("v_cmp_ne_u32 %s, s%d, v%d" % (sr(sRET, 2), sTG1, QP + 6))
A("s_or_b64 vcc, vcc, %s" % sr(sRET, 2))
A("v_cmp_ne_u32 %s, s%d, v16" % (sr(sRET, 2), sTG2))
A("s_or_b64 vcc, vcc, %s" % sr(sRET, 2))
A("v_cmp_ne_u32 %s, s%d, v17" % (sr(sRET, 2), sTG2))
A("s_or_b64 vcc, vcc, %s" % sr(sRET, 2))
if not int(OPT.get("nochk", 0)): A("s_cbranch_vccnz Lmqr")
LB("Lmqd")
if DIAG:
    A("s_sub_u32 s%d, s%d, s%d" % (sT0, sCNT, sY)); A("v_writelane_b32 v31, s%d, 0" % sT0)
Ls = L; L = []
L.append(".p2align 6"); LB("Lst_mq"); A("s_setpc_b64 %s" % sr(sRET, 2))
LB("Lmqr")
A("s_cmp_lg_u32 s%d, 0" % sY)
A("s_cbranch_scc1 Lmqr2")
C("first look failed: take the second one (V has landed with it: request its fragments now)")
A("s_waitcnt vmcnt(0)")
A("s_mov_b32 s%d, 1" % sY)
for k in range(8): A("v_mov_b32 v%d, v%d" % (QP + k, QP + 8 + k))
for t in range(8):
    for hf in range(2):
        A("ds_read_b64_tr_b16 %s, v%d offset:%d" % (vr(VF + 4 * t + 2 * hf, 2), VA + t, 4096 * hf))
A("s_branch Lmq")
LB("Lmqr2")
C("still not there: poll the plain copy a few times, then the write-through copy")
A("s_cmp_eq_u32 s%d, %s" % (sCNT, hx(SPIN - 8)))
A("s_cselect_b32 s%d, %s, 0" % (sT0, hx(QB_DELTA)))
A("s_add_u32 s%d, s%d, s%d" % (sQL, sQL, sT0))
q0_issue()
A("s_waitcnt vmcnt(0)")
A("s_sub_u32 s%d, s%d, 1" % (sCNT, sCNT))
A("s_cbranch_scc0 Lmq")
A("s_branch Lmqd")
ool.append(L); L = Ls
A("v_cmp_ne_u32 vcc, s%d, v%d" % (sXCC, QP + 3))
A("v_mov_b32 v%d, v%d" % (QP + 2, QP + 4))
A("v_mov_b32 v%d, v%d" % (QP + 3, QP + 5))
A("ds_write_b128 v25, %s" % vr(QP, 4))
A("s_cmp_eq_u64 vcc, 0")
A("s_cselect_b32 s%d, 1, 0x101" % sT0)
A("v_mov_b32 v16, s%d" % sT0)
A("s_waitcnt lgkmcnt(0)")
lds_arrive(4, 16, None)
STAMP(15)
A("buffer_load_dwordx2 %s, v%d, %s, s%d offen" % (vr(RES + 2, 2), vX1S, sr(sX, 4), sT3))
FLG = W + 44
soff(sIT, [(sW, 10)], FB)
soff(sQL, [(sA, 12), (sJ, 17)], Q1_OFF)
for k in range(4):
    A("s_add_u32 s%d, s%d, %d" % (sT0, sC, k))
    A("s_and_b32 s%d, s%d, 3" % (sT0, sT0))
    A("s_lshl_b32 s%d, s%d, 10" % (sKO + k, sT0))
A("s_and_b32 s%d, s%d, 1" % (sT0, sC))
A("s_lshl_b32 s%d, s%d, 6" % (sT0, sT0))
A("v_xor_b32 v22, s%d, v22" % sT0); A("v_xor_b32 v23, s%d, v23" % sT0)
A("s_lshl_b32 s%d, s%d, 2" % (sT3, sM))
A("s_add_u32 s%d, s%d, s%d" % (sT3, sT3, sW))
A("s_mul_i32 s%d, s%d, 768" % (sT3, sT3))
A("s_add_u32 s%d, s%d, s%d" % (sT3, sT3, sGR))
A("v_lshlrev_b32 v21, 7, v%d" % vLANE)
lds_spin(4, 4, vT, mask=0xff)
A("s_cmp_lt_u32 s%d, 256" % sT1)
A("s_cselect_b32 s%d, %d, 0" % (sFAST, int(OPT.get("fast", 1))))
QF = W + 16
for t in range(4):
    A("ds_read_b128 %s, v26 offset:%d" % (vr(QF + 4 * t, 4), 1024 * t))
S = W
qk = []
for t in range(4):
    for T in range(2):
        qk.append(mf(S + 4 * T, KF + 16 * T + 4 * t, QF + 4 * t, None if t == 0 else S + 4 * T))
for t in range(4):
    A("s_waitcnt lgkmcnt(%d)" % (3 - t))
    A(qk[2 * t]); A(qk[2 * t + 1])
def wo_issue():
    C("every wave holds its K fragments: the wo tile may land in the K area")
    for k in range(4):
        A("s_add_u32 m0, s%d, s%d" % (sT5, sKO + k))
        A("s_lshl3_add_u32 s%d, s%d, s%d" % (sT0, sKO + k, sT4))
        A("buffer_load_dwordx4 v%d, %s, s%d offen nt lds" % (22 + (k & 1), sr(sWO, 4), sT0))
if WOP == 0: wo_issue()
if PRET:
    C("bring the (cleared) group mailbox lines into L2")
    A("s_mov_b64 exec, 63")
    A("buffer_load_dword v%d, v21, %s, s%d offen sc1" % (W + 40, sr(sWS, 4), sT3))
    A("s_mov_b64 exec, -1")
STAMP(3)
A("s_branch Lk_go")

LB("Llnq")
C("LayerNorm of the row held in XR, then q partial = xn @ wq tile")
X = W
row_stats(XR, vT, X)
A("v_add_f32 v%d, %s, v%d" % (vT + 1, EPS, vT + 1))
A("v_rsq_f32 v%d, v%d" % (vT + 2, vT + 1))
A("s_cmp_eq_u32 s%d, 0" % sLAY)
A("v_mul_f32 v%d, v%d, v%d" % (vT + 3, vT, vT + 2))
for i in range(4):
    A("v_pk_fma_f32 %s, %s, %s, %s op_sel:[0,0,1] op_sel_hi:[1,0,1] neg_lo:[0,0,1] neg_hi:[0,0,1]" % (vr(X + 2 * i, 2), vr(X + 2 * i, 2), vr(vT + 2, 2), vr(vT + 2, 2)))
for i in range(4):
    A("v_cvt_pk_bf16_f32 v%d, v%d, v%d" % (X + 8 + i, X + 2 * i, X + 2 * i + 1))
A("ds_write_b128 v%d, %s" % (vXNW, vr(X + 8, 4)))
A("s_cbranch_scc1 Lq_first")
A("s_waitcnt lgkmcnt(0)")
A("s_barrier")
LB("Lq_go")
BF = W + 16
for t in range(4):
    A("ds_read_b128 %s, v%d offset:%d" % (vr(BF + 4 * t, 4), vXNR, 64 * t))
for t in range(4):
    A("s_waitcnt lgkmcnt(%d)" % (3 - t))
    mfma(W, WQF + 4 * t, BF + 4 * t, None if t == 0 else W)
A("s_cmp_eq_u32 s%d, 0" % sLAY)
A("s_mov_b64 exec, %s" % sr(sMSK, 2))
NOP(6)
A("v_cvt_pk_bf16_f32 v%d, v%d, v%d" % (W + 4, W, W + 1))
A("v_cvt_pk_bf16_f32 v%d, v%d, v%d" % (W + 5, W + 2, W + 3))
A("s_cbranch_scc1 Lh_qst")
fastcmp()
store_local("buffer_store_dwordx2", vr(W + 4, 2), vQST, sQS)
A("s_mov_b64 exec, -1")
STAMP(2)

C("attention over this workgroup's 128 keys")
if QS:
    C("each wave fetches one k-step of q and shares it through LDS")
    A("s_lshl_b32 s%d, s%d, 10" % (sT3, sW))
    A("s_add_u32 s%d, s%d, s%d" % (sT4, sQL, sT3))
    A("s_add_u32 s%d, s%d, %d" % (sT3, sT3, L_RB + 12288))
    A("v_add_u32 v25, s%d, v%d" % (sT3, vL16))
    A("v_add_u32 v26, %d, v%d" % (L_RB + 12288, vL16))
    ppoll(lambda k: A("buffer_load_dwordx4 %s, v%d, %s, s%d offen sc1" % (vr(W + 32 + 4 * k, 4), vL16, sr(sWS, 4), sT4)),
          lambda k: range(W + 32 + 4 * k, W + 36 + 4 * k), 1, vT, lambda k: ["ds_write_b128 v25, %s" % vr(W + 32 + 4 * k, 4)], pre=QPRE, gap=QGAP, tag=0)
    A("s_waitcnt lgkmcnt(0)")
    A("s_barrier")
    for t in range(4):
        A("ds_read_b128 %s, v26 offset:%d" % (vr(QF + 4 * t, 4), 1024 * t))
    for t in range(4):
        A("s_waitcnt lgkmcnt(%d)" % (3 - t))
        A(qk[2 * t]); A(qk[2 * t + 1])
    touch_stub("k")
else:
    def iq(k):
        for t in range(4):
            A("buffer_load_dwordx4 %s, v%d, %s, s%d offen offset:%d sc1" % (vr(QF + 16 * k + 4 * t, 4), vL16, sr(sWS, 4), sQL, 1024 * t))
    def qks(k):
        return [mf(S + 4 * T, KF + 16 * T + 4 * t, QF + 16 * k + 4 * t, None if t == 0 else S + 4 * T) for t in range(4) for T in range(2)]
    ppoll(iq, lambda k: range(QF + 16 * k, QF + 16 * k + 16), 4, vT, qks, pre=QPRE, gap=QGAP, tag=0, stub="k")
STAMP(3)
LB("Lk_go")
NOP(7)
for ctl in ["row_ror:4", "row_ror:8"]:
    for i in range(8):
        A("v_add_f32_dpp v%d, v%d, v%d %s row_mask:0xf bank_mask:0xf" % (S + i, S + i, S + i, ctl))
A("v_max3_f32 v%d, v%d, v%d, v%d" % (vT, S, S + 1, S + 2))
A("v_max3_f32 v%d, v%d, v%d, v%d" % (vT + 1, S + 3, S + 4, S + 5))
A("v_max3_f32 v%d, v%d, v%d, v%d" % (vT, vT, S + 6, S + 7))
A("v_max_f32 v%d, v%d, v%d" % (vT, vT, vT + 1))
A("v_mov_b32 v%d, v%d" % (vT + 1, vT))
A("s_nop 1")
A("v_permlane16_swap_b32 v%d, v%d" % (vT, vT + 1))
A("v_max_f32 v%d, v%d, v%d" % (vT, vT, vT + 1))
A("v_mov_b32 v%d, v%d" % (vT + 1, vT))
A("s_nop 1")
A("v_permlane32_swap_b32 v%d, v%d" % (vT, vT + 1))
A("v_max_f32 v%d, v%d, v%d" % (vT, vT, vT + 1))
A("v_mul_f32 v%d, s%d, v%d" % (vT + 2, sSC, vT))
for i in range(8):
    A("v_fma_f32 v%d, v%d, s%d, -v%d" % (S + i, S + i, sSC, vT + 2))
for i in range(8):
    A("v_exp_f32 v%d, v%d" % (S + i, S + i))
for p in range(4):
    A("s_mov_b64 exec, %s" % sr(sPM + 2 * p, 2))
    for i in range(4):
        A("v_cvt_pk_bf16_f32 v%d, v%d, v%d" % (PM + 4 * p + i, S + 2 * i, S + 2 * i + 1))
A("s_mov_b64 exec, -1")
STAMP(4)
A("s_cmp_lg_u32 s%d, 0" % sLAY)
A("s_cbranch_scc1 Lv_go")
wait_w0((5 if WOP == 0 else 1) + PRET)
if WOP == 1: wo_issue()
A("buffer_load_dwordx4 %s, v%d, %s, s%d offen sc1" % (vr(FLG, 4), vL16, sr(sWS, 4), sIT))
STAMP(6)
A("s_cmp_lg_u32 s%d, 0" % sY)
A("s_cbranch_scc1 Lv_have")
for t in range(8):
    for hf in range(2):
        A("ds_read_b64_tr_b16 %s, v%d offset:%d" % (vr(VF + 4 * t + 2 * hf, 2), VA + t, 4096 * hf))
A("s_waitcnt lgkmcnt(0)")
LB("Lv_have")
if TOT:
    A("s_memrealtime s[42:43]"); A("s_waitcnt lgkmcnt(0)"); A("s_mov_b32 s97, s42")
A("s_cmp_lg_u32 s%d, 0" % sLAY)
LB("Lv_go")
OA = W + 8
mfma(W + 16, ONES, PM, None)
for p in range(4):
    for T in range(2):
        mfma(OA + 4 * T, VF + 4 * (2 * p + T), PM + 4 * p, None if p == 0 else OA + 4 * T)
A("s_mov_b64 exec, %s" % sr(sMSK, 2))
A("v_mov_b32 v%d, v%d" % (vT + 3, W + 16))
A("ds_write_b64 v%d, %s" % (vMLW, vr(vT + 2, 2)))
A("s_mov_b64 exec, -1")
NOP(3)
A("ds_write_b128 v%d, %s" % (vRBW, vr(OA, 4)))
A("ds_write_b128 v%d, %s offset:64" % (vRBW, vr(OA + 4, 4)))
A("s_waitcnt lgkmcnt(0)")
A("s_cbranch_scc1 Lrb_bar")
lds_arrive(12, vT + 4)
if WOP == 2: wo_issue()
lds_spin(12, 4, vT + 4)
A("s_branch Lrb_go")
LB("Lrb_bar")
A("s_barrier")
LB("Lrb_go")
A("ds_read_b128 %s, v%d" % (vr(W, 4), vMLR))
A("ds_read_b128 %s, v%d offset:16" % (vr(W + 4, 4), vMLR))
for w in range(4):
    A("ds_read_b64 %s, v%d offset:%d" % (vr(W + 8 + 2 * w, 2), vRBR, RBS * w))
A("v_mov_b32 v%d, 0" % (vT + 4))
fastcmp()
A("s_waitcnt lgkmcnt(4)")
A("v_max3_f32 v%d, v%d, v%d, v%d" % (vT, W, W + 2, W + 4))
A("v_max_f32 v%d, v%d, v%d" % (vT, vT, W + 6))
for w in range(4): A("v_sub_f32 v%d, v%d, v%d" % (W + 2 * w, W + 2 * w, vT))
for w in range(4): A("v_exp_f32 v%d, v%d" % (W + 2 * w, W + 2 * w))
A("v_mul_f32 v%d, v%d, v%d" % (vT + 1, W, W + 1))
for w in range(1, 4): A("v_fmac_f32 v%d, v%d, v%d" % (vT + 1, W + 2 * w, W + 2 * w + 1))
A("s_waitcnt lgkmcnt(0)")
A("v_pk_mul_f32 %s, %s, %s op_sel_hi:[1,0]" % (vr(W + 8, 2), vr(W + 8, 2), vr(W, 2)))
A("v_rcp_f32 v%d, v%d" % (vT + 2, vT + 1))
A("v_pk_fma_f32 %s, %s, %s, %s op_sel_hi:[1,0,1]" % (vr(W + 8, 2), vr(W + 10, 2), vr(W + 2, 2), vr(W + 8, 2)))
A("v_log_f32 v%d, v%d" % (vT + 5, vT + 1))
for w in range(2, 4):
    A("v_pk_fma_f32 %s, %s, %s, %s op_sel_hi:[1,0,1]" % (vr(W + 8, 2), vr(W + 8 + 2 * w, 2), vr(W + 2 * w, 2), vr(W + 8, 2)))
A("v_pk_mul_f32 %s, %s, %s op_sel_hi:[1,0]" % (vr(W + 8, 2), vr(W + 8, 2), vr(vT + 2, 2)))
A("v_add_f32 v%d, v%d, v%d" % (vT + 5, vT + 5, vT))
A("v_cvt_pk_bf16_f32 v%d, v%d, v%d" % (W + 8, W + 8, W + 9))
store_local("buffer_store_dword", "v%d" % (W + 8), vOST, sOS)
A("s_mov_b64 exec, 1")
store_local("buffer_store_dword", "v%d" % (vT + 5), vT + 4, sLS)
A("s_mov_b64 exec, -1")
STAMP(5)

C("wo phase: wave = batch, rows = key splits")
OF = W; LS = W + 32; DA = WQF
assert LSE_OFF[1] - O_OFF[1] == LSE_OFF[0] - O_OFF[0]
def io(k):
    for t in range(4):
        A("buffer_load_dwordx4 %s, v%d, %s, s%d offen offset:%d sc1" % (vr(OF + 16 * k + 4 * t, 4), [vLSE, vLS2, vOLD, vOLD][t], sr(sWS, 4), sOL, 512 * t))
A("s_cmp_lg_u32 s%d, 0" % sLAY)
A("s_cbranch_scc1 Lo_go")
C("first layer: wo tile landed -> fragments; every workgroup has announced its clears")
if WOP == 3: wo_issue()
A("s_waitcnt vmcnt(%d)" % (2 if WOP < 3 else 0))
STAMP(13)
A("s_mov_b32 s%d, %s" % (sT4, hx(SPIN)))
LB("Lap")
A("v_and_b32 v24, -8, v%d" % (FLG + 1))
A("v_cmp_ne_u32 vcc, s%d, v%d" % (sTG1, FLG))
A("v_cmp_ne_u32 %s, s%d, v24" % (sr(sH, 2), sTG2))
A("s_or_b64 vcc, vcc, %s" % sr(sH, 2))
A("s_cbranch_vccnz Lar")
LB("Lad")
lds_arrive(16, 24)
for i in range(2):
    A("v_lshlrev_b32 v%d, 16, v%d" % (W + 40 + 2 * i, RES + 2 + i))
    A("v_and_b32 v%d, 0xffff0000, v%d" % (W + 41 + 2 * i, RES + 2 + i))
for i in range(4): A("v_mov_b32 v%d, v%d" % (RES + i, W + 40 + i))
for ct in range(4): A("v_xor_b32 v%d, %d, v%d" % (W + 40 + ct, 32 * ct, vWT))
for ct in range(4): A("v_add_u32 v%d, %d, v%d" % (W + 40 + ct, L_WO, W + 40 + ct))
lds_spin(16, 4, 24)
STAMP(14)
A("s_mov_b32 s%d, 1" % sY)
LB("Lo_go")
def pre_o():
    A("s_cmp_eq_u32 s%d, 0" % sY)
    A("s_cbranch_scc1 Lo_nof")
    A("s_mov_b32 s%d, 0" % sY)
    for t in range(4):
        for ct in range(4):
            for hf in range(2):
                A("ds_read_b64_tr_b16 %s, v%d offset:%d" % (vr(WOF + 16 * ct + 4 * t + 2 * hf, 2), W + 40 + ct, 4096 * t + 512 * hf))
    A("s_waitcnt lgkmcnt(0)")
    LB("Lo_nof")
ool.append(["Lar:", "    s_lshl_b32 s%d, s%d, 10" % (sT5, sW), "    s_add_u32 s%d, s%d, %s" % (sT5, sT5, hx(FB)),
            "    buffer_load_dwordx4 %s, v%d, %s, s%d offen sc1" % (vr(FLG, 4), vL16, sr(sWS, 4), sT5),
            "    s_waitcnt vmcnt(0)", "    s_sub_u32 s%d, s%d, 1" % (sT4, sT4), "    s_cbranch_scc0 Lap", "    s_branch Lad"])
def wo1(k): return [mf(DA + 4 * ct, OF + 16 * k + 4 * t, WOF + 16 * ct + 4 * t, None if t == 0 else DA + 4 * ct) for t in range(2) for ct in range(4)]
ppoll(io, lambda k: range(OF + 16 * k, OF + 16 * k + 16), 4, vT, wo1, pre=OPRE, gap=OGAP, mid=pre_o, tag=1,
      fix=["v_mov_b32 v%d, v%d" % (OF + i, OF + 16 + i) for i in range(16)])
STAMP(7)
C("softmax over the 8 key splits (lanes n>=8 hold own lse in OF[0:3], the other four in OF[4:7])")
va = ["v_max3_f32 v%d, v%d, v%d, v%d" % (vT, OF, OF + 1, OF + 2), "v_max3_f32 v%d, v%d, v%d, v%d" % (vT + 1, OF + 3, OF + 4, OF + 5),
      "v_max3_f32 v%d, v%d, v%d, v%d" % (vT, vT, OF + 6, OF + 7), "v_max_f32 v%d, v%d, v%d" % (vT, vT, vT + 1)]
va += ["v_sub_f32 v%d, v%d, v%d" % (LS + i, OF + i, vT) for i in range(4)]
va += ["v_exp_f32 v%d, v%d" % (LS + i, LS + i) for i in range(4)]
va += ["s_nop 0"]
va += ["v_mov_b32_dpp v%d, v%d row_ror:8 row_mask:0xf bank_mask:0x3" % (LS + i, LS + i) for i in range(4)]
va += ["v_add_f32 v%d, v%d, v%d" % (vT, LS, LS + 1), "v_add_f32 v%d, v%d, v%d" % (vT + 1, LS + 2, LS + 3),
       "v_add_f32 v%d, v%d, v%d" % (vT, vT, vT + 1), "v_mov_b32 v%d, v%d" % (vT + 1, vT)]
for t in range(2, 4):
    for ct in range(4):
        mfma(DA + 4 * ct, OF + 4 * t, WOF + 16 * ct + 4 * t, DA + 4 * ct)
        for k in range(3 if t == 3 or ct < 1 else 2):
            if va: A(va.pop(0))
assert not va
A("s_mov_b32 s%d, 0x55555555" % sT4)
A("s_mov_b32 s%d, 0x55555555" % sT5)
A("v_permlane16_swap_b32 v%d, v%d" % (vT, vT + 1))
A("v_mul_f32 v%d, v%d, v%d" % (DA, DA, LS))
A("v_add_f32 v%d, v%d, v%d" % (vT, vT, vT + 1))
A("v_mul_f32 v%d, v%d, v%d" % (DA + 4, DA + 4, LS))
A("v_rcp_f32 v%d, v%d" % (vT, vT))
A("v_mul_f32 v%d, v%d, v%d" % (DA + 8, DA + 8, LS))
for i in range(1, 4):
    for ct in range(3):
        A("v_fmac_f32 v%d, v%d, v%d" % (DA + 4 * ct, DA + 4 * ct + i, LS + i))
    if i == 1: A("v_mul_f32 v%d, v%d, v%d" % (DA + 12, DA + 12, LS))
for i in range(1, 4): A("v_fmac_f32 v%d, v%d, v%d" % (DA + 12, DA + 12 + i, LS + i))
A("v_permlane16_swap_b32 v%d, v%d" % (DA, DA + 4))
A("s_nop 0")
A("v_permlane16_swap_b32 v%d, v%d" % (DA + 8, DA + 12))
A("v_add_f32 v%d, v%d, v%d" % (DA, DA, DA + 4))
A("v_add_f32 v%d, v%d, v%d" % (DA + 8, DA + 8, DA + 12))
A("s_nop 1")
A("v_permlane32_swap_b32 v%d, v%d" % (DA, DA + 8))
A("v_mul_f32 v%d, v%d, v%d" % (DA, DA, vT))
A("s_cmp_lg_u32 s%d, 0" % sLAY)
A("s_nop 0")
A("v_mov_b32_dpp v%d, v%d quad_perm:[1,0,3,2] row_mask:0xf bank_mask:0xf" % (DA + 1, DA))
A("s_mov_b64 exec, %s" % sr(sT4, 2))
A("v_cvt_pk_bf16_f32 v%d, v%d, v%d" % (DA, DA, DA + 1))
A("buffer_store_dword v%d, v%d, %s, s%d offen sc1" % (DA, vPST, sr(sWS, 4), sPS))
A("s_mov_b64 exec, -1")
STAMP(8)
A("s_cbranch_scc1 Lfinal")

A("s_cmp_lg_u32 s%d, 0" % sW)
A("s_cbranch_scc1 Ltab")
C("stage 1 (wave 0): reduce 32 head partials of 64 outputs, add residual, publish x1 slice")
soff(sT1, [(sA, 15), (sC, 12)], PB)
soff(sT2, [(sA, 10), (sC, 7), (sJ, 17)], X1_OFF)
A("s_mov_b32 s%d, 0x00ff00ff" % sT4)
A("s_mov_b32 s%d, 0" % sT5)
def ip(k):
    for i in range(4):
        A("buffer_load_dwordx4 %s, v%d, %s, s%d offen offset:%d sc1" % (vr(W + 20 * k + 4 * i, 4), vL16, sr(sWS, 4), sT1, 1024 * i))
if GW: A("s_waitcnt vmcnt(0)")
ppoll(ip, lambda k: range(W + 20 * k, W + 20 * k + 16), 4, vT, lambda k: [mf(W + 16, SEL, W + 20 * k + 4 * i, None if i == 0 else W + 16) for i in range(4)], pre=GPRE, gap=GGAP, tag=2)
STAMP(9)
fastcmp()
NOP(6)
for i in range(4):
    A("v_add_f32_dpp v%d, v%d, v%d row_ror:8 row_mask:0xf bank_mask:0xf" % (W + 16 + i, W + 16 + i, W + 16 + i))
A("s_mov_b64 exec, %s" % sr(sT4, 2))
A("v_pk_add_f32 %s, %s, %s" % (vr(W + 16, 2), vr(W + 16, 2), vr(RES, 2)))
A("v_pk_add_f32 %s, %s, %s" % (vr(W + 18, 2), vr(W + 18, 2), vr(RES + 2, 2)))
A("v_cvt_pk_bf16_f32 v%d, v%d, v%d" % (W + 16, W + 16, W + 17))
A("v_cvt_pk_bf16_f32 v%d, v%d, v%d" % (W + 17, W + 18, W + 19))
store_local("buffer_store_dwordx2", vr(W + 16, 2), vX1S, sT2)
A("s_mov_b64 exec, -1")
LB("Ltabdone")
soff(sT3, [(sW, 10), (sJ, 17)], X1_OFF)
def ix(k):
    A("buffer_load_dwordx4 %s, v%d, %s, s%d offen sc1" % (vr([XR, RES][k], 4), vL16, sr(sWS, 4), sT3))
wqf_reads()
ppoll(ix, lambda k: range([XR, RES][k], [XR, RES][k] + 4), 1, vT, lambda k: ["s_waitcnt lgkmcnt(0)", "v_readfirstlane_b32 s%d, v%d" % (sT1, vT + 2)],
      pre=XPRE, gap=XGAP, mid=lambda: A("ds_read_b32 v%d, v%d offset:20" % (vT + 2, vFL)), tag=3,
      fix=["v_mov_b32 v%d, v%d" % (XR + i, RES + i) for i in range(4)])
A("s_cmp_lt_u32 s%d, 3" % sT1)
A("s_cbranch_scc1 Ltw")
LB("Ltwd")
STAMP(10)

LB("Lmix")
C("x <- x + g(LN(LN(x))) ; g is tabulated for every bf16 input in range, evaluated directly otherwise")
X = W; HB = W + 8; RT = W + 12; AD = W + 16; Y = W + 24
row_stats(XR, vT, X)
A("v_add_f32 v%d, %s, v%d" % (vT + 2, EPS, vT + 1))
A("v_rsq_f32 v%d, v%d" % (vT + 2, vT + 2))
A("v_mov_b32 v%d, %s" % (vT + 4, hx(LO2 | (LO2 << 16))))
A("s_movk_i32 s%d, %d" % (sT5, NENT * 4))
A("v_mul_f32 v%d, v%d, v%d" % (vT + 1, vT + 1, vT + 2))
A("v_fmaak_f32 v%d, v%d, v%d, %s" % (vT + 1, vT + 1, vT + 2, EPS))
A("v_rsq_f32 v%d, v%d" % (vT + 1, vT + 1))
A("s_nop 0")
A("v_mul_f32 v%d, v%d, v%d" % (vT + 2, vT + 2, vT + 1))
A("v_mul_f32 v%d, v%d, v%d" % (vT + 3, vT, vT + 2))
for i in range(4):
    A("v_pk_fma_f32 %s, %s, %s, %s op_sel:[0,0,1] op_sel_hi:[1,0,1] neg_lo:[0,0,1] neg_hi:[0,0,1]" % (vr(AD + 2 * i, 2), vr(X + 2 * i, 2), vr(vT + 2, 2), vr(vT + 2, 2)))
for i in range(4):
    A("v_cvt_pk_bf16_f32 v%d, v%d, v%d" % (HB + i, AD + 2 * i, AD + 2 * i + 1))
for i in range(4):
    A("v_pk_lshlrev_b16 v%d, 1, v%d op_sel_hi:[0,1]" % (RT + i, HB + i))
    A("v_pk_lshrrev_b16 v%d, 15, v%d op_sel_hi:[0,1]" % (AD + i, HB + i))
for i in range(4):
    A("v_or_b32 v%d, v%d, v%d" % (RT + i, RT + i, AD + i))
for i in range(4):
    A("v_pk_sub_u16 v%d, v%d, v%d" % (RT + i, RT + i, vT + 4))
for i in range(4):
    A("v_lshlrev_b32_sdwa v%d, 2, v%d dst_sel:DWORD dst_unused:UNUSED_PAD src0_sel:DWORD src1_sel:WORD_0" % (AD + 2 * i, RT + i))
    A("v_lshlrev_b32_sdwa v%d, 2, v%d dst_sel:DWORD dst_unused:UNUSED_PAD src0_sel:DWORD src1_sel:WORD_1" % (AD + 2 * i + 1, RT + i))
    A("ds_read_b32 v%d, v%d offset:%d" % (Y + 2 * i, AD + 2 * i, L_TAB))
    A("ds_read_b32 v%d, v%d offset:%d" % (Y + 2 * i + 1, AD + 2 * i + 1, L_TAB))
A("v_max3_u32 v%d, v%d, v%d, v%d" % (vT, AD, AD + 1, AD + 2))
A("v_max3_u32 v%d, v%d, v%d, v%d" % (vT + 1, AD + 3, AD + 4, AD + 5))
A("v_max3_u32 v%d, v%d, v%d, v%d" % (vT, vT, AD + 6, AD + 7))
A("v_max_u32 v%d, v%d, v%d" % (vT, vT, vT + 1))
A("v_cmp_le_u32 %s, s%d, v%d" % (sr(sH, 2), sT5, vT))
A("s_waitcnt lgkmcnt(5)")
A("v_max3_u32 v%d, v%d, v%d, v%d" % (vT, Y, Y + 1, Y + 2))
A("s_waitcnt lgkmcnt(2)")
A("v_max3_u32 v%d, v%d, v%d, v%d" % (vT + 1, Y + 3, Y + 4, Y + 5))
A("s_waitcnt lgkmcnt(0)")
A("v_max3_u32 v%d, v%d, v%d, v%d" % (vT, vT, Y + 6, Y + 7))
A("v_max_u32 v%d, v%d, v%d" % (vT, vT, vT + 1))
A("v_cmp_eq_u32 vcc, -1, v%d" % vT)
LB("Lslowdone")
for i in range(4):
    A("v_pk_add_f32 %s, %s, %s" % (vr(vT + 2 + 2 * i, 2), vr(X + 2 * i, 2), vr(Y + 2 * i, 2)))
A("s_or_b64 vcc, vcc, %s" % sr(sH, 2))
A("s_cbranch_vccnz Lslow")
A("s_cmp_lg_u32 s%d, 0" % sLAY)
for i in range(4):
    A("v_cvt_pk_bf16_f32 v%d, v%d, v%d" % (XR + i, vT + 2 + 2 * i, vT + 3 + 2 * i))
STAMP(11)
A("s_cbranch_scc1 Lout")
A("ds_write_b128 v%d, %s offset:%d" % (vXNW, vr(XR, 4), L_X2 - L_XN))
A("s_mov_b32 s%d, 1" % sLAY)
A("s_mov_b32 s%d, 0" % sY)
if TOT: A("s_memrealtime s[100:101]")
for s, d in [(sOL, O_OFF[1] - O_OFF[0]), (sOS, O_OFF[1] - O_OFF[0]), (sLS, LSE_OFF[1] - LSE_OFF[0]), (sPS, P_L)]:
    A("s_add_u32 s%d, s%d, %d" % (s, s, d))
if DIAG: A("v_mov_b32 v28, v30")
A("s_branch Llnq")

L.append(".p2align 6"); LB("Lst_fin"); A("s_setpc_b64 %s" % sr(sRET, 2)); stubs.append("fin")
LB("Lfinal")
A("s_cmp_ge_u32 s2, 4")
A("s_cbranch_scc1 Lepoch")
C("workgroup b: reduce the 32 head partials of row b, add x2, mixer, store")
soff(sT1, [(2, 15), (sW, 13)], PB + P_L)
A("s_add_u32 s%d, s%d, 4096" % (sT2, sT1))
A("s_mul_i32 s%d, s2, %d" % (sT0, XS))
A("s_lshl_b32 s%d, s%d, 8" % (sT3, sW))
A("s_add_u32 s%d, s%d, s%d" % (sT0, sT0, sT3))
A("s_add_u32 s%d, s%d, %d" % (sT0, sT0, L_X2))
A("v_add_u32 v%d, s%d, v%d" % (vT + 4, sT0, vX1S))
A("s_add_u32 s%d, s%d, %d" % (sT3, sT3, L_XN))
A("v_add_u32 v%d, s%d, v%d" % (vT + 5, sT3, vX1S))
A("ds_read_b64 %s, v%d" % (vr(PM, 2), vT + 4))
A("ds_read_b64 %s, v%d offset:128" % (vr(PM + 2, 2), vT + 4))
A("s_mov_b32 s%d, 0x00ff00ff" % sT4)
A("s_mov_b32 s%d, 0" % sT5)
if XENT:
    A("s_cmp_lg_u32 s%d, 3" % sW)
    A("s_cbranch_scc1 Lfn3")
    A("s_mov_b32 s%d, %s" % (sT0, hx(TB)))
    for i in range(XENT * 4 // 1024):
        A("buffer_load_dwordx4 %s, v%d, %s, s%d offen offset:%d sc1" % (vr(W + 4 * i, 4), vL16, sr(sWS, 4), sT0, 1024 * i))
    A("v_add_u32 v%d, %d, v%d" % (vT + 6, L_TAB, vL16))
    A("s_waitcnt vmcnt(0)")
    for i in range(XENT * 4 // 1024):
        A("ds_write_b128 v%d, %s offset:%d" % (vT + 6, vr(W + 4 * i, 4), 1024 * i))
    LB("Lfn3")
A("s_waitcnt lgkmcnt(0)")
if GW: A("s_waitcnt vmcnt(0)")
for i in range(4):
    A("v_lshlrev_b32 v%d, 16, v%d" % (PM + 4 + 2 * i, PM + i))
    A("v_and_b32 v%d, 0xffff0000, v%d" % (PM + 5 + 2 * i, PM + i))
FS = [KF, VF]
def ifin(k):
    for i in range(8):
        A("buffer_load_dwordx4 %s, v%d, %s, s%d offen offset:%d sc1" % (vr(FS[k] + 4 * i, 4), vL16, sr(sWS, 4), sT1 if i < 4 else sT2, 1024 * (i & 3)))
def fs(k):
    o = []
    for i in range(4):
        o.append(mf(W + 32, SEL, FS[k] + 4 * i, None if i == 0 else W + 32))
        o.append(mf(W + 36, SEL, FS[k] + 16 + 4 * i, None if i == 0 else W + 36))
    return o
ppoll(ifin, lambda k: range(FS[k], FS[k] + 32), 8, vT, fs, pre=GPRE, gap=GGAP, tag=2)
STAMP(9)
NOP(7)
for i in range(8):
    A("v_add_f32_dpp v%d, v%d, v%d row_ror:8 row_mask:0xf bank_mask:0xf" % (W + 32 + i, W + 32 + i, W + 32 + i))
A("s_mov_b64 exec, %s" % sr(sT4, 2))
for i in range(4):
    A("v_pk_add_f32 %s, %s, %s" % (vr(W + 32 + 2 * i, 2), vr(W + 32 + 2 * i, 2), vr(PM + 4 + 2 * i, 2)))
for i in range(4):
    A("v_cvt_pk_bf16_f32 v%d, v%d, v%d" % (W + 32 + i, W + 32 + 2 * i, W + 33 + 2 * i))
A("ds_write_b64 v%d, %s" % (vT + 5, vr(W + 32, 2)))
A("ds_write_b64 v%d, %s offset:128" % (vT + 5, vr(W + 34, 2)))
A("s_mov_b64 exec, -1")
A("s_cmp_lg_u32 s%d, 0" % sW)
A("s_waitcnt lgkmcnt(0)")
A("s_barrier")
A("s_cbranch_scc1 Lfin_exit")
A("ds_read_b128 %s, v%d" % (vr(XR, 4), vXNW))
A("s_waitcnt lgkmcnt(0)")
STAMP(10)
A("s_branch Lmix")
L.append(".p2align 6"); LB("Lst_out"); A("s_setpc_b64 %s" % sr(sRET, 2)); stubs.append("out")
LB("Lout")
A("s_lshl_b32 s%d, s2, 10" % sT0)
A("buffer_store_dwordx4 %s, v%d, %s, s%d offen" % (vr(XR, 4), vL16, sr(sOUT, 4), sT0))
if DBL:
    A("s_cmp_lg_u32 s2, 0")
    A("s_cbranch_scc1 Lfin_exit")
if DBL:
    A("s_waitcnt vmcnt(0)")
    A("s_memrealtime s[10:11]")
    A("s_waitcnt lgkmcnt(0)")
    A("s_sub_u32 s12, s10, s98")
    if "pad" in OPT:
        A("s_mov_b32 s10, s98"); A("s_mov_b32 s12, %d" % (100 * int(OPT["pad"])))
    LB("Ldbl")
    A("s_memrealtime s[14:15]")
    A("s_waitcnt lgkmcnt(0)")
    A("s_sub_u32 s13, s14, s10")
    A("s_cmp_lt_u32 s13, s12")
    A("s_cbranch_scc1 Ldbl")
LB("Lfin_exit")
if TOT:
    A("s_waitcnt vmcnt(0)")
    A("s_memrealtime s[10:11]")
    A("s_waitcnt lgkmcnt(0)")
    A("v_mov_b32 v16, s98")
    A("v_mov_b32 v17, s10")
    A("v_mov_b32 v18, s100")
    A("v_mov_b32 v19, s97")
    soff(sT2, [(2, 6), (sW, 4)], STB)
    A("v_mov_b32 v20, 0")
    A("s_mov_b64 exec, 1")
    A("buffer_store_dwordx4 v[16:19], v20, %s, s%d offen" % (sr(sWS, 4), sT2))
if DIAG:
    A("s_waitcnt vmcnt(0)")
    STAMP(12)
    if DIAG == 2:
        A("s_or_b32 s%d, s2, s%d" % (sT0, sW))
        A("s_cmp_lg_u32 s%d, 0" % sT0)
        A("s_cbranch_scc1 Lend")
        A("v_readlane_b32 s%d, v28, 0" % sT2)
        for k, (r, i) in enumerate([(31, 10), (31, 12), (28, 1), (28, 2), (28, 6), (28, 5), (28, 7), (28, 8), (28, 9), (28, 10), (28, 11), (30, 3), (30, 5), (30, 8), (30, 9), (30, 12)]):
            A("v_readlane_b32 s%d, v%d, %d" % (sT3, r, i))
            A("s_sub_u32 s%d, s%d, s%d" % (sT3, sT3, sT2))
            A("s_nop 0")
            A("v_writelane_b32 v17, s%d, %d" % (sT3, k))
        A("v_lshlrev_b32 v16, 2, v%d" % vLANE)
        A("s_mov_b64 exec, 0xffff")
        A("global_store_dword v16, v17, s[100:101]")
        A("s_endpgm")
    soff(sT1, [(2, 10), (sW, 7)], STB)
    A("v_lshlrev_b32 v16, 2, v%d" % vLANE)
    A("s_mov_b64 exec, 0xffff")
    A("buffer_store_dword v28, v16, %s, s%d offen" % (sr(sWS, 4), sT1))
    A("buffer_store_dword v30, v16, %s, s%d offen offset:64" % (sr(sWS, 4), sT1))
    A("s_add_u32 s%d, s%d, 0x40000" % (sT1, sT1))
    A("buffer_store_dword v31, v16, %s, s%d offen" % (sr(sWS, 4), sT1))
LB("Lend")
A("s_endpgm")
LB("Lepoch")
C("every workgroup has used the old launch tag long ago: workgroup 4 advances it")
A("s_lshl_b32 s%d, s%d, 8" % (sT0, sW))
A("s_add_u32 s%d, s%d, s2" % (sT0, sT0))
A("s_cmp_lg_u32 s%d, 4" % sT0)
A("s_cbranch_scc1 Lfin_exit")
A("v_mov_b32 v16, s%d" % sTG1)
A("v_mov_b32 v17, %s" % hx(EPO))
A("s_mov_b64 exec, 1")
A("buffer_store_dword v16, v17, %s, 0 offen sc1" % sr(sWS, 4))
A("s_mov_b64 exec, -1")
A("s_branch Lfin_exit")

L.append(".p2align 6"); LB("Lst_tab"); A("s_setpc_b64 %s" % sr(sRET, 2)); stubs.append("tab")
LB("Ltab")
C("waves 2,3: gather the main part of the g(h) table into LDS ; wave 1: the lowest octaves, best effort")
NTL = NOCT * 1024 // 2 // 1024
A("s_cmp_eq_u32 s%d, 1" % sW)
A("s_cbranch_scc1 Lext")
A("s_sub_u32 s%d, s%d, 2" % (sT1, sW))
A("s_mul_i32 s%d, s%d, %d" % (sT1, sT1, NTL * 1024))
A("s_add_u32 s%d, s%d, %d" % (sT1, sT1, XENT * 4))
A("v_add_u32 v%d, s%d, v%d" % (vT + 4, sT1, vL16))
A("v_add_u32 v%d, %d, v%d" % (vT + 4, L_TAB, vT + 4))
A("s_add_u32 s%d, s%d, %s" % (sT1, sT1, hx(TB)))
A("s_add_u32 s%d, s%d, 4096" % (sT2, sT1))
def it():
    for i in range(NTL):
        A("buffer_load_dwordx4 %s, v%d, %s, s%d offen offset:%d sc1" % (vr(W + 4 * i, 4), vL16, sr(sWS, 4), sT1 if i < 4 else sT2, 1024 * (i & 3)))
poll(it, range(W, W + 4 * NTL), vT, back="s_sleep %d" % int(OPT.get("tsl", 16)))
for i in range(NTL):
    A("ds_write_b128 v%d, %s offset:%d" % (vT + 4, vr(W + 4 * i, 4), 1024 * i))
A("s_waitcnt lgkmcnt(0)")
lds_arrive(20, vT + 4)
STAMP(9)
A("s_branch Ltabdone")
def ext_load(d):
    for i in range(XENT * 4 // 1024):
        A("buffer_load_dwordx4 %s, v%d, %s, s%d offen offset:%d sc1" % (vr(d + 4 * i, 4), vL16, sr(sWS, 4), sT4, 1024 * i))
def ext_write(d):
    for i in range(XENT * 4 // 1024):
        A("ds_write_b128 v%d, %s offset:%d" % (vT + 4, vr(d + 4 * i, 4), 1024 * i))
LB("Lext")
if XENT:
    A("s_mov_b32 s%d, %s" % (sT4, hx(TB)))
    A("v_add_u32 v%d, %d, v%d" % (vT + 4, L_TAB, vL16))
    for i in range(4): A("v_mov_b32 v%d, -1" % (W + i))
    for i in range(XENT * 4 // 1024):
        A("ds_write_b128 v%d, %s offset:%d" % (vT + 4, vr(W, 4), 1024 * i))
    A("s_waitcnt lgkmcnt(0)")
lds_arrive(20, vT + 5)
if XENT:
    C("one look at the lowest octaves, skipped when x1 is already there")
    soff(sT3, [(sW, 10), (sJ, 17)], X1_OFF)
    A("s_waitcnt vmcnt(0)")
    delay(XDL)
    A("buffer_load_dwordx4 %s, v%d, %s, s%d offen sc1" % (vr(XR, 4), vL16, sr(sWS, 4), sT3))
    if "l" in OPT.get("xs", ""): A("s_branch Ltabdone")
    ext_load(W + 32)
    A("s_waitcnt vmcnt(4)")
    for x in maxtree(range(XR, XR + 4), vT): A(x)
    A("v_cmp_eq_u32 vcc, -1, v%d" % vT)
    A("s_cbranch_vccz Lexx")
    A("s_waitcnt vmcnt(0)")
    ext_write(W + 32)
    A("s_branch Ltabdone")
    LB("Lexx")
    wqf_reads()
    A("s_branch Ltw")
else:
    A("s_branch Ltabdone")
LB("Ltw")
lds_spin(20, 3, vT + 2)
A("s_branch Ltwd")

for b in ool: L += b
ool = []
LB("Lslow")
C("rare: some h lies outside the table -> evaluate g(h) directly for those lanes")
RW1 = [W + 32 + i for i in range(14)]
RB1 = [PM + i for i in range(14)]
RW2 = [16 + i for i in range(10)] + [W + 46, W + 47, PM + 14, PM + 15]
A("v_lshlrev_b32 v26, 3, v%d" % vLANE)
A("s_load_dword s%d, %s, 0" % (sB2, sr(sB2P, 2)))
for (d4, d2, s) in [([W + 32, W + 36, W + 40], W + 44, sW1), ([PM, PM + 4, PM + 8], PM + 12, sB1)]:
    for k in range(3):
        A("buffer_load_dwordx4 %s, v%d, %s, 0 offen offset:%d" % (vr(d4[k], 4), vL16, sr(s, 4), 1024 * k))
    A("buffer_load_dwordx2 %s, v26, %s, 0 offen offset:3072" % (vr(d2, 2), sr(s, 4)))
A("buffer_load_dwordx4 v[16:19], v%d, %s, 0 offen" % (vL16, sr(sW2, 4)))
A("buffer_load_dwordx4 v[20:23], v%d, %s, 0 offen offset:1024" % (vL16, sr(sW2, 4)))
A("buffer_load_dwordx2 v[24:25], v%d, %s, 0 offen offset:2048" % (vL16, sr(sW2, 4)))
A("buffer_load_dwordx2 %s, v%d, %s, 0 offen offset:2056" % (vr(W + 46, 2), vL16, sr(sW2, 4)))
A("buffer_load_dwordx2 %s, v26, %s, 0 offen offset:3072" % (vr(PM + 14, 2), sr(sW2, 4)))
A("s_waitcnt vmcnt(0) lgkmcnt(0)")
A("s_lshl_b32 s%d, s%d, 16" % (sB2, sB2))
for e in range(8):
    A("v_cmp_le_u32 vcc, %d, v%d" % (NENT * 4, AD + e))
    A("v_cmp_eq_u32 %s, -1, v%d" % (sr(sH2, 2), Y + e))
    A("s_or_b64 %s, %s, vcc" % (sr(sH2, 2), sr(sH2, 2)))
    LB("Lse%d" % e)
    A("s_cmp_eq_u64 %s, 0" % sr(sH2, 2))
    A("s_cbranch_scc1 Lsf%d" % e)
    A("s_ff1_i32_b64 s%d, %s" % (sT0, sr(sH2, 2)))
    A("s_bitset0_b64 %s, s%d" % (sr(sH2, 2), sT0))
    A("s_mov_b32 m0, s%d" % sT0)
    A("v_readlane_b32 s%d, v%d, s%d" % (sH, HB + (e >> 1), sT0))
    if e & 1: A("s_and_b32 s%d, s%d, 0xffff0000" % (sH, sH))
    else: A("s_lshl_b32 s%d, s%d, 16" % (sH, sH))
    A("s_call_b64 %s, Lgev" % sr(sRET, 2))
    A("v_writelane_b32 v%d, s%d, m0" % (Y + e, sY))
    A("s_branch Lse%d" % e)
    LB("Lsf%d" % e)
for i in range(16): A("v_mov_b32 v%d, 0" % (PM + i))
A("s_mov_b64 vcc, 0")
A("s_mov_b64 %s, 0" % sr(sH, 2))
A("s_branch Lslowdone")
LB("Lgev")
a, u, t1, z = RES, RES + 1, RES + 2, RT
A("v_mov_b32 v%d, 0" % a)
A("v_mov_b32 v%d, %s" % (RT + 1, hx(f2u(K0))))
A("v_mov_b32 v%d, %s" % (RT + 2, hx(f2u(K1))))
for p in range(14):
    for hf in range(2):
        def un(d, s):
            if hf == 0: A("v_lshlrev_b32 v%d, 16, v%d" % (d, s))
            else: A("v_and_b32 v%d, 0xffff0000, v%d" % (d, s))
        un(u, RW1[p]); un(t1, RB1[p]); un(z, RW2[p])
        A("v_fma_f32 v%d, v%d, s%d, v%d" % (u, u, sH, t1))
        A("v_mul_f32 v%d, v%d, v%d" % (t1, u, u))
        A("v_fma_f32 v%d, v%d, v%d, v%d" % (t1, t1, RT + 2, RT + 1))
        A("v_mul_f32 v%d, v%d, v%d" % (t1, t1, u))
        A("v_exp_f32 v%d, v%d" % (t1, t1))
        A("v_mul_f32 v%d, v%d, v%d" % (z, z, u))
        A("v_add_f32 v%d, 1.0, v%d" % (t1, t1))
        A("v_rcp_f32 v%d, v%d" % (t1, t1))
        A("s_nop 0")
        A("v_fmac_f32 v%d, v%d, v%d" % (a, z, t1))
A("v_mov_b32 v%d, v%d" % (u, a))
A("s_nop 1")
wave_sum2(a, u, sY, sT1)
A("s_nop 1")
A("v_mov_b32 v%d, s%d" % (a, sY))
A("v_cvt_pk_bf16_f32 v%d, v%d, v%d" % (a, a, a))
A("v_and_b32 v%d, 0xffff0000, v%d" % (a, a))
A("v_add_f32 v%d, s%d, v%d" % (a, sB2, a))
A("v_cvt_pk_bf16_f32 v%d, v%d, v%d" % (a, a, a))
A("v_and_b32 v%d, 0xffff0000, v%d" % (a, a))
A("s_nop 0")
A("v_readfirstlane_b32 s%d, v%d" % (sY, a))
A("s_nop 3")
A("s_setpc_b64 %s" % sr(sRET, 2))

for b in ool: L += b
A("s_endpgm")
L.append(".p2align 8")
L.append(".fill %d, 4, 0xBF800000" % (64 if DIAG else 512))
L.append('''.section .rodata,"a"
.p2align 6
.amdhsa_kernel %s_kernel
  .amdhsa_next_free_vgpr 256
  .amdhsa_next_free_sgpr 102
  .amdhsa_accum_offset 256
  .amdhsa_group_segment_fixed_size 0
  .amdhsa_kernarg_size 104
  .amdhsa_user_sgpr_count 2
  .amdhsa_user_sgpr_kernarg_segment_ptr 1
  .amdhsa_system_sgpr_workgroup_id_x 1
.end_amdhsa_kernel''' % NAME)
open(OUTF, "w").write("\n".join(x for x in L if x is not None) + "\n")
print("wrote", OUTF, "lines", len(L), "LDS", LDS_SZ)
```

```python
import sys, struct, math

NAME = "interleave_layers__sliding_block_cached__mixer_token_mlp__decode"
OUTF = sys.argv[1] if len(sys.argv) > 1 else "cdna_kernels/%s.s" % NAME
DIAG = int(sys.argv[2]) if len(sys.argv) > 2 else 0
DBL = 0
if DIAG == 3: DIAG = 0; DBL = 1
TOT = 0
if DIAG == 4: DIAG = 0; TOT = 1
OPT = dict(a.split("=") for a in sys.argv[3:])
DEPTH = int(OPT.get("depth", 8))
D0 = int(OPT.get("d0", 2))
D1 = int(OPT.get("d1", 4))
DC = int(OPT.get("dc", 3))
TAILI = int(OPT.get("taili", 11))
TAILD = int(OPT.get("taild", 8))
QV = int(OPT.get("qv", 4))
PRET = int(OPT.get("pret", 1))
GW = int(OPT.get("gw", 1))
GPRE = int(OPT.get("gpre", 0))
GGAP = int(OPT.get("ggap", -1))
WARM = int(OPT.get("warm", 1))
QPRE = int(OPT.get("qpre", -1)); QGAP = int(OPT.get("qgap", -1))
OPRE = int(OPT.get("opre", -1)); OGAP = int(OPT.get("ogap", -1))
XPRE = int(OPT.get("xpre", -1)); XGAP = int(OPT.get("xgap", -1))
FINE = OPT.get("fine", "")
QS = int(OPT.get("qs", 0))
ADP = int(OPT.get("adp", 0))
ROT = int(OPT.get("rot", 1)); VROT = int(OPT.get("vrot", 0))
WROT = int(OPT.get("wrot", 1))
WOP = int(OPT.get("wop", 0))
ECO = int(OPT.get("eco", 0))
XDL = int(OPT.get("xdl", 256))
QBD = int(OPT.get("qbd", 0))
QT = int(OPT.get("qt", 0))
DRY = int(OPT.get("dry", 0))
HP = int(OPT.get("hp", 0))
NOCT = int(OPT.get("noct", 16))
QPOS = int(OPT.get("qpos", 1))
QPOS2 = int(OPT.get("qpos2", 7))

def f2u(x): return struct.unpack("<I", struct.pack("<f", x))[0]
def hx(x): return "0x%08x" % (x & 0xffffffff)

L = []
def A(s): L.append("    " + s)
def LB(s): L.append(s + ":")
def C(s): L.append("    ; " + s)
def vr(a, n): return "v[%d:%d]" % (a, a + n - 1)
def sr(a, n): return "s[%d:%d]" % (a, a + n - 1)
def NOP(n):
    while n > 0:
        k = min(n, 16); A("s_nop %d" % (k - 1)); n -= k

XOCT = int(OPT.get('xoct', 4))
ELO = int(OPT.get('elo', 130 - NOCT - XOCT))
LO2 = (ELO << 7) * 2
NENT = (NOCT + XOCT) * 256
XENT = XOCT * 256
assert XENT in (0, 1024)
EPW = NOCT * 256 // 256 // 4 // 2
GRS = 0x20000
O_OFF = [0x0000, 0xC400]; LSE_OFF = [0x8000, 0x14400]; Q1_OFF = 0x8400; X1_OFF = 0x14600
CLRA_PER = 1040
CLRB_OFF = 0x8400; CLRB_PER = 1680
Q0_OFF = 0x18000
EPO = 0x17f00
PB = 0x100000; P_L = 0x20000
TB = 0x140000; FB = 0x148000
QB_DELTA = 0x200000
STB = 0x300000
WS_SZ = 0x400000
L_WQ = 12288; L_K = L_WQ + 16384; L_V = L_K + 32768
L_WO = L_K + 16384
L_TAB = L_V
L_XN = L_V + 32768; XS = 1056
L_X2 = L_XN + 4 * XS
L_FLG = L_X2 + 4 * XS
L_RB = L_K; RBS = 2048 + 64; L_ML = L_K + 4 * RBS
L_QF = L_X2
LDS_SZ = int(OPT.get("lds", L_FLG + 64))
SPIN = 0x40000
K0 = -2.0 * math.sqrt(2.0 / math.pi) * math.log2(math.e)
K1 = K0 * 0.044715
EPS = hx(f2u(1e-5))

sTG1, sTG2 = 0, 1
sW, sJ, sA, sC, sGR, sLAY, sFAST = 3, 4, 5, 6, 7, 8, 9
sT0, sT1, sT2, sT3, sT4, sT5 = 10, 11, 12, 13, 14, 15
sCNT = 16
sQL, sQS, sOL, sOS, sLL, sLS, sPS = 17, 18, 19, 20, 21, 22, 23
sSC, sIT = 24, 25
sSUM, sSQ = 26, 27
sH, sH2, sRET, sMSK = 28, 30, 32, 34
sB2, sY, sXCC, sE = 36, 37, 38, 39
sB2P = 40
sK, sV, sWQ, sWO, sWS, sX, sOUT, sW1, sB1, sW2 = 44, 48, 52, 56, 60, 64, 68, 72, 76, 80
sKO, sKL, sVO, sVL = 84, 85, 86, 87
sPM = 88
sHC, sHT = 84, 85

def STAMP(i):
    if DIAG:
        A("s_memrealtime s[42:43]"); A("s_waitcnt lgkmcnt(0)")
        A("v_writelane_b32 v30, s42, %d" % i)

def CST(i):
    if DIAG == 1 and FINE:
        A("s_memtime s[42:43]"); A("s_waitcnt lgkmcnt(0)")
        A("v_writelane_b32 v31, s42, %d" % i)

vLANE = 1
vL16, vQST, vOST, vOLD, vPST, vX1S, vXNW, vXNR, vRBW, vRBR, vMLW, vMLR, vLSE, vZ = range(2, 16)
vT = 16
vWT, vFL = 28, 29
vLS2 = 27
KF, VF, WQF, WOF, SEL, ONES = 32, 64, 96, 112, 176, 180
W = 184
PM = 232
XR = 248
RES = 252

def srd(s, nbytes):
    A("s_mov_b32 s%d, %s" % (s + 2, hx(nbytes))); A("s_mov_b32 s%d, 0x00020000" % (s + 3))

def soff(dst, terms, const):
    first = True
    for (src, sh) in terms:
        if first: A("s_lshl_b32 s%d, s%d, %d" % (dst, src, sh)); first = False
        else:
            A("s_lshl_b32 s%d, s%d, %d" % (sT0, src, sh)); A("s_add_u32 s%d, s%d, s%d" % (dst, dst, sT0))
    if const: A("s_add_u32 s%d, s%d, %s" % (dst, dst, hx(const)))

def wave_sum2(a, b, sa, sb):
    for ctl in ["row_ror:8", "row_ror:4", "row_ror:2", "row_ror:1"]:
        A("v_add_f32_dpp v%d, v%d, v%d %s row_mask:0xf bank_mask:0xf" % (a, a, a, ctl))
        A("v_add_f32_dpp v%d, v%d, v%d %s row_mask:0xf bank_mask:0xf" % (b, b, b, ctl))
        A("s_nop 0")
    for ctl in ["row_bcast:15 row_mask:0xa", "row_bcast:31 row_mask:0xc"]:
        A("v_add_f32_dpp v%d, v%d, v%d %s bank_mask:0xf" % (a, a, a, ctl))
        A("v_add_f32_dpp v%d, v%d, v%d %s bank_mask:0xf" % (b, b, b, ctl))
        A("s_nop 0")
    A("v_readlane_b32 s%d, v%d, 63" % (sa, a))
    A("v_readlane_b32 s%d, v%d, 63" % (sb, b))

def row_stats(x, t, unp):
    A("v_dot2_f32_bf16 v%d, v%d, v%d, 0" % (t, x, ONES))
    A("v_dot2_f32_bf16 v%d, v%d, v%d, 0" % (t + 1, x, x))
    for i in range(1, 4):
        A("v_dot2_f32_bf16 v%d, v%d, v%d, v%d" % (t, x + i, ONES, t))
        A("v_dot2_f32_bf16 v%d, v%d, v%d, v%d" % (t + 1, x + i, x + i, t + 1))
    un = []
    for i in range(4):
        un.append("v_lshlrev_b32 v%d, 16, v%d" % (unp + 2 * i, x + i))
        un.append("v_and_b32 v%d, 0xffff0000, v%d" % (unp + 2 * i + 1, x + i))
    for k in range(3): A(un.pop(0))
    a, b = t, t + 1
    for ctl in ["row_ror:8 row_mask:0xf", "row_ror:4 row_mask:0xf", "row_ror:2 row_mask:0xf", "row_ror:1 row_mask:0xf", "row_bcast:15 row_mask:0xa", "row_bcast:31 row_mask:0xc"]:
        A("v_add_f32_dpp v%d, v%d, v%d %s bank_mask:0xf" % (a, a, a, ctl))
        A("v_add_f32_dpp v%d, v%d, v%d %s bank_mask:0xf" % (b, b, b, ctl))
        A(un.pop(0) if un else "s_nop 0")
    A("v_readlane_b32 s%d, v%d, 63" % (sSUM, a))
    A("v_readlane_b32 s%d, v%d, 63" % (sSQ, b))
    A("s_nop 0")
    A("v_mul_f32 v%d, s%d, v%d" % (t, sSUM, vZ))
    A("v_mul_f32 v%d, s%d, v%d" % (t + 1, sSQ, vZ))
    A("v_fma_f32 v%d, -v%d, v%d, v%d" % (t + 1, t, t, t + 1))
    A("v_max_f32 v%d, 0, v%d" % (t + 1, t + 1))

ool = []
uid = [0]
def maxtree(regs, tmp):
    r = list(regs); out = []
    out.append("v_max3_u32 v%d, v%d, v%d, v%d" % (tmp, r[0], r[1], r[2])); r = r[3:]
    if len(r) >= 5:
        out.append("v_max3_u32 v%d, v%d, v%d, v%d" % (tmp + 1, r[0], r[1], r[2])); r = r[3:]
        d = 0
        while len(r) >= 2:
            out.append("v_max3_u32 v%d, v%d, v%d, v%d" % (tmp + d, tmp + d, r[0], r[1])); r = r[2:]; d ^= 1
        if r: out.append("v_max3_u32 v%d, v%d, v%d, v%d" % (tmp, tmp, tmp + 1, r[0]))
        else: out.append("v_max_u32 v%d, v%d, v%d" % (tmp, tmp, tmp + 1))
    else:
        while len(r) >= 2:
            out.append("v_max3_u32 v%d, v%d, v%d, v%d" % (tmp, tmp, r[0], r[1])); r = r[2:]
        if r: out.append("v_max_u32 v%d, v%d, v%d" % (tmp, tmp, r[0]))
    return out

def poll(issue, regs, tmp, pre_wait=None, spec=None, back="s_nop 7", tag=None, stub=None):
    uid[0] += 1; u = uid[0]
    A("s_mov_b32 s%d, %s" % (sCNT, hx(SPIN)))
    LB("Lp%d" % u)
    issue()
    if pre_wait: pre_wait()
    A("s_waitcnt vmcnt(0)")
    mt = maxtree(regs, tmp) + ["v_cmp_eq_u32 vcc, -1, v%d" % tmp]
    spec = list(spec or [])
    ns = len(spec)
    per = -(-len(mt) // ns) if ns else 0
    for s in spec:
        A(s)
        for k in range(per):
            if mt: A(mt.pop(0))
    for m in mt: A(m)
    A("s_cbranch_vccz Ld%d" % u)
    A("s_sub_u32 s%d, s%d, 1" % (sCNT, sCNT))
    if back != "s_nop 7": A(back)
    A("s_cbranch_scc0 Lp%d" % u)
    if stub: touch_stub(stub)
    LB("Ld%d" % u)
    if DIAG and tag is not None:
        A("s_lshl_b32 m0, s%d, 2" % sLAY); A("s_add_u32 m0, m0, %d" % tag); A("s_nop 0")
        A("v_writelane_b32 v31, s%d, m0" % sCNT)

stubs = []
def touch_stub(name, branch_over=None):
    A("s_branch Lsk_%s" % name)
    L.append(".p2align 6")
    LB("Lst_%s" % name)
    A("s_setpc_b64 %s" % sr(sRET, 2))
    LB("Lsk_%s" % name)
    stubs.append(name)

def delay(cyc):
    if cyc == -1:
        A("s_waitcnt vmcnt(0)"); return
    while cyc >= 64:
        k = min(cyc // 64, 15); A("s_sleep %d" % k); cyc -= 64 * k
    if cyc >= 8: A("s_nop %d" % min(15, cyc // 4 - 1))

def ppoll(issue, regs, n, tmp, spec, pre=0, gap=128, mid=None, tag=None, fix=None, stub=None, lanes=None):
    uid[0] += 1; u = uid[0]
    def look(k):
        out = ["s_waitcnt vmcnt(%d)" % (n if k == 0 else 0)]
        mt = maxtree(regs(k), tmp) + ["v_cmp_eq_u32 vcc, -1, v%d" % tmp]
        sp = list(spec(k)); per = -(-len(mt) // len(sp)) if sp else 0
        for x in sp:
            out.append(x)
            for _ in range(per):
                if mt: out.append(mt.pop(0))
        return out + mt + (["s_and_b64 vcc, vcc, %s" % sr(lanes, 2)] if lanes else [])
    A("s_mov_b32 s%d, %s" % (sCNT, hx(SPIN)))
    delay(pre)
    fine = FINE and tag == int(FINE)
    if fine: CST(8)
    LB("Lp%d" % u)
    issue(0)
    if fine and 0: CST(9)
    if mid: mid()
    if gap >= 0: delay(gap)
    if gap >= 0: issue(1)
    lk = look(0)
    if gap < 0: lk[0] = "s_waitcnt vmcnt(0)"
    for k, x in enumerate(lk):
        A(x)
        if fine and k == 0: CST(13)
    if fine: CST(14)
    A("s_cbranch_vccz Ld%d" % u)
    if gap < 0: issue(1)
    A("s_sub_u32 s%d, s%d, 1" % (sCNT, sCNT))
    for x in look(1): A(x)
    for x in (fix or []): A(x)
    A("s_cbranch_vccz Ld%d" % u)
    A("s_sub_u32 s%d, s%d, 1" % (sCNT, sCNT))
    A("s_cmp_gt_i32 s%d, 0" % sCNT)
    A("s_cbranch_scc1 Lp%d" % u)
    if stub: touch_stub(stub)
    LB("Ld%d" % u)
    if fine: CST(15)
    if DIAG and tag is not None:
        A("s_lshl_b32 m0, s%d, 2" % sLAY); A("s_add_u32 m0, m0, %d" % tag); A("s_nop 0")
        A("v_writelane_b32 v31, s%d, m0" % sCNT)

def lds_spin(off, target, tmp, mask=None, sleep=0):
    uid[0] += 1; u = uid[0]
    A("s_mov_b32 s%d, %s" % (sT2, hx(SPIN * 4)))
    LB("Ls%d" % u)
    A("ds_read_b32 v%d, v%d offset:%d" % (tmp, vFL, off))
    A("s_waitcnt lgkmcnt(0)")
    A("v_readfirstlane_b32 s%d, v%d" % (sT1, tmp))
    if mask: A("s_and_b32 s%d, s%d, %d" % (sT0, sT1, mask))
    A("s_cmp_ge_u32 s%d, %d" % (sT0 if mask else sT1, target))
    A("s_cbranch_scc1 Lt%d" % u)
    if sleep: A("s_sleep %d" % sleep)
    A("s_sub_u32 s%d, s%d, 1" % (sT2, sT2))
    A("s_cbranch_scc0 Ls%d" % u)
    LB("Lt%d" % u)

def lds_arrive(off, tmp, val=1):
    if val is not None: A("v_mov_b32 v%d, %d" % (tmp, val))
    A("s_mov_b64 exec, 1")
    A("ds_add_u32 v%d, v%d offset:%d" % (vFL, tmp, off))
    A("s_mov_b64 exec, -1")

def store_local(op, data, vaddr, so):
    uid[0] += 1; u = uid[0]
    A("s_cbranch_scc1 Lw%d" % u)
    A("%s %s, v%d, %s, s%d offen" % (op, data, vaddr, sr(sWS, 4), so))
    LB("Lx%d" % u)
    ool.append(["Lw%d:" % u, "    %s %s, v%d, %s, s%d offen sc1" % (op, data, vaddr, sr(sWS, 4), so), "    s_branch Lx%d" % u])
def fastcmp(): A("s_cmp_eq_u32 s%d, 0" % sFAST)

def mf(d, a, b, c):
    return "v_mfma_f32_16x16x32_bf16 %s, %s, %s, %s" % (vr(d, 4), vr(a, 4), vr(b, 4), "0" if c is None else vr(c, 4))
def mfma(d, a, b, c): A(mf(d, a, b, c))

def tags():
    A("s_add_u32 s%d, s%d, 1" % (sTG1, sE))
    A("s_mul_i32 s%d, s%d, 0x9E3779B1" % (sTG2, sTG1))
    A("s_and_b32 s%d, s%d, -8" % (sTG2, sTG2))

def common_addr():
    A("v_and_b32 v18, 3, v%d" % vLANE)
    A("v_lshlrev_b32 v%d, 12, v17" % vQST)
    A("v_lshrrev_b32 v24, 1, v16")
    A("v_lshl_add_u32 v%d, v24, 8, v%d" % (vQST, vQST))
    A("v_and_b32 v24, 1, v16")
    A("v_lshl_add_u32 v%d, v24, 3, v%d" % (vQST, vQST))
    A("v_lshlrev_b32 v%d, 4, v24" % vLSE)
    A("s_mul_i32 s%d, s%d, %d" % (sT0, sW, XS))
    A("s_add_u32 s%d, s%d, %d" % (sT0, sT0, L_XN))
    A("v_add_u32 v%d, s%d, v%d" % (vXNW, sT0, vL16))
    A("s_lshl_b32 s%d, s%d, 8" % (sT0, sA))
    A("s_add_u32 s%d, s%d, %d" % (sT0, sT0, L_XN))
    A("v_mul_u32_u24 v25, %d, v18" % XS)
    A("v_lshl_add_u32 v25, v16, 4, v25")
    A("v_add_u32 v%d, s%d, v25" % (vXNR, sT0))
    A("v_mov_b32 v%d, %s" % (vZ, hx(f2u(1.0 / 512))))
    for r in range(4): A("v_mov_b32 v%d, 0x3f803f80" % (ONES + r))
    A("s_and_b32 s%d, s%d, 1" % (sT1, sC))
    A("s_lshr_b32 s%d, s%d, 1" % (sT2, sC))
    soff(sQS, [(sT1, 11), (sW, 9), (sA, 6), (sT2, 4)], 0)
    A("v_bfe_u32 v24, v%d, 2, 2" % vLANE)
    A("v_lshl_add_u32 v24, v16, 3, v24")
    A("v_lshlrev_b32 v24, 7, v24")
    A("v_bfe_u32 v25, v%d, 3, 2" % vLANE)
    A("v_lshlrev_b32 v25, 1, v25")
    A("v_bfe_u32 v26, v%d, 1, 1" % vLANE)
    A("v_xor_b32 v25, v25, v26")
    A("v_lshl_add_u32 v24, v25, 4, v24")
    A("v_and_b32 v26, 1, v%d" % vLANE)
    A("v_lshl_add_u32 v%d, v26, 3, v24" % vWT)
    A("s_mov_b32 s%d, 0x000f000f" % sMSK)
    A("s_mov_b32 s%d, 0x000f000f" % (sMSK + 1))
    A("s_mov_b32 s%d, 0" % sLAY)

def wtile_voff(shift, d):
    A("v_lshrrev_b32 v24, 3, v%d" % vLANE)
    A("v_and_b32 v25, 7, v%d" % vLANE)
    A("v_and_b32 v26, 1, v16")
    A("v_lshlrev_b32 v26, 1, v26")
    A("v_xor_b32 v25, v25, v26")
    A("v_lshlrev_b32 v25, 4, v25")
    A("v_lshl_add_u32 v%d, v24, %d, v25" % (d, shift))
    A("v_xor_b32 v%d, 64, v%d" % (d + 1, d))

def wqf_reads():
    A("s_lshl_b32 s%d, s%d, 5" % (sT1, sW))
    A("v_xor_b32 v26, s%d, v%d" % (sT1, vWT))
    for t in range(4):
        for hf in range(2):
            A("ds_read_b64_tr_b16 %s, v26 offset:%d" % (vr(WQF + 4 * t + 2 * hf, 2), L_WQ + 4096 * t + 512 * hf))

def dma(vaddr, srdn, so, lds_s, step_so, flags="nt"):
    A("s_mov_b32 m0, s%d" % lds_s)
    A("s_add_u32 s%d, s%d, 1024" % (lds_s, lds_s))
    A("buffer_load_dwordx4 v%d, %s, s%d offen %s lds" % (vaddr, sr(srdn, 4), so, flags))
    A("s_add_u32 s%d, s%d, %d" % (so, so, step_so))

hdr = open("cdna_kernels/%s.s.ref" % NAME).read().split("; Override launch")[0]
L.append(hdr.rstrip("\n"))
L.append("; @launch grid=(256,1,1) block=(512,1,1) lds=%d" % LDS_SZ)
L.append('.amdgcn_target "amdgcn-amd-amdhsa--gfx950"')
L.append(".text\n" + (".p2align 12\n" if int(OPT.get("al", 0)) else "") + ".globl %s_kernel\n.p2align 8\n.type %s_kernel,@function\n%s_kernel:" % (NAME, NAME, NAME))
if DIAG: A("s_memrealtime s[42:43]")
if DBL or TOT: A("s_memrealtime s[98:99]")
sM = 96
A("s_lshr_b32 s%d, s2, 8" % sT0)
A("s_cbranch_scc1 Lend")
A("s_load_dwordx2 %s, s[0:1], 24" % sr(sWQ, 2))
A("s_load_dwordx4 %s, s[0:1], 0" % sr(sT2, 4))
A("v_readfirstlane_b32 s%d, v0" % sW)
C("every wave pulls one line of this kernel's code into L2 (plain read): 32 workgroups x 4 lines")
A("s_getpc_b64 s[10:11]")
LB("Lpc0")
A("s_lshr_b32 s%d, s2, 3" % sM)
A("s_lshl_b32 s%d, s%d, 9" % (sCNT, sM))
A("s_cmp_lg_u32 s%d, 0" % sW)
A("s_cbranch_scc1 Lnopf")
A("v_and_b32 v19, 3, v0")
A("v_lshl_add_u32 v19, v19, 7, s%d" % sCNT)
A("global_load_dword v%d, v19, s[10:11]" % (W + 8))
LB("Lnopf")
A("s_and_b32 s%d, s2, 7" % sJ)
A("s_lshr_b32 s%d, s2, 6" % sA)
A("s_and_b32 s%d, s%d, 7" % (sC, sM))
A("s_lshl_b32 s%d, 1, 17" % (sWQ + 3))
A("s_bitcmp1_b32 s%d, 8" % sW)
A("s_cbranch_scc0 Lmain0")
vKA, vVA = W + 40, W + 44
sRO, sRM = sVO, 97 if not TOT else 94
if TOT: sRM = sOL
def kv_issue(i):
    A("s_add_u32 m0, s%d, s%d" % (sKL if i < 8 else sVL, sRO))
    A("s_add_u32 s%d, s%d, s%d" % (sCNT, sKO, sRO))
    if i < 8: A("buffer_load_dwordx4 v%d, %s, s%d offen nt lds" % (vKA + (i & 3), sr(sK, 4), sCNT))
    else: A("buffer_load_dwordx4 v%d, %s, s%d offen nt lds" % (vVA + (i & 1), sr(sV, 4), sCNT))
    A("s_addk_i32 s%d, %d" % (sRO, 1024 + (VROT * 1024 if i == 7 else 0)))
    A("s_and_b32 s%d, s%d, 0x1fff" % (sRO, sRO))
def lane_init():
    A("v_and_b32 v%d, 63, v0" % vLANE)
    A("v_mov_b32 v%d, %d" % (vFL, L_FLG))
    A("v_lshlrev_b32 v%d, 4, v%d" % (vL16, vLANE))
    A("v_lshrrev_b32 v16, 4, v%d" % vLANE)
    A("v_and_b32 v17, 15, v%d" % vLANE)
    A("v_mov_b32 v20, 0")
    if DIAG: A("v_mov_b32 v30, 0")
def main_early():
    LB("Lmain0")
    for s, off in [(sW1, 48), (sB1, 56), (sW2, 64)]:
        A("s_load_dwordx2 %s, s[0:1], %d" % (sr(s, 2), off))
    lane_init()
    A("v_mov_b32 v21, 0")
    for k in range(4): A("ds_write_b64 v%d, v[20:21] offset:%d" % (vFL, 8 * k))
    A("s_lshl_b32 s%d, 1, 25" % (sK + 2)); A("s_mov_b32 s%d, s%d" % (sK + 3, sWQ + 3))
    A("v_xor_b32 v18, v17, v16")
    A("v_lshlrev_b32 v18, 4, v18")
    A("v_lshl_add_u32 v%d, v16, 8, v18" % vKA)
    A("s_lshl_b32 s%d, s%d, %d" % (sRO, sC, 10 if ROT else 31))
    if not ROT: A("s_mov_b32 s%d, 0" % sRO)
    A("s_bfe_u32 s%d, s%d, 0x2000a" % (sT1, sRO))
    A("s_lshl_b32 s%d, s%d, 6" % (sT1, sT1))
    for k in range(1, 4):
        A("s_add_u32 s%d, s%d, %d" % (sCNT, sT1, 64 * k))
        A("s_and_b32 s%d, s%d, 0xc0" % (sCNT, sCNT))
        A("v_xor_b32 v%d, s%d, v%d" % (vKA + k, sCNT, vKA))
    A("v_xor_b32 v%d, s%d, v%d" % (vKA, sT1, vKA))
    soff(sKO, [(sA, 23), (sJ, 20), (sC, 15), (sW, 7)], 3072 * 256)
    A("s_add_u32 s%d, s%d, %d" % (sKL, sT0, L_K))
    A("s_waitcnt lgkmcnt(0)")
    A("s_mov_b64 %s, %s" % (sr(sK, 2), sr(sT4, 2)))
    for i in range(D0): kv_issue(i)
    C("lane k<3 of wave 3 pulls a slice of coefficient array k into L2")
    A("s_cmp_lg_u32 s%d, 192" % sW)
    A("s_cbranch_scc1 Lm_nopf")
    A("s_min_u32 s%d, s%d, 27" % (sT1, sM))
    A("s_lshl_b32 s%d, s%d, 7" % (sT1, sT1))
    A("v_mov_b32 v19, s%d" % sT1)
    A("s_mov_b64 exec, 1")
    for k, sd in enumerate([sW1, sB1, sW2]): A("global_load_dword v%d, v19, %s" % (W + 9 + k, sr(sd, 2)))
    A("s_mov_b64 exec, -1")
    LB("Lm_nopf")
    A("s_add_u32 s%d, s%d, %d" % (sVL, sT0, L_V))
    A("s_lshr_b32 s%d, s%d, 6" % (sW, sW))
    if DIAG: A("v_writelane_b32 v30, s42, 0")
    STAMP(10)
    A("s_branch Lmain")

C("---- helper waves: first q projection, then the table of g over bf16 inputs ----")
HW1, HB1, HW2 = 32, 60, 112
hK0, hK1, hONE, hRES = 88, 90, 92, 94
AC = [140, 142]
A("s_load_dwordx2 %s, s[0:1], 96" % sr(sWS, 2))
C("wq tile DMA: instruction i, thread t' = t-256: row 32 i + (t'>>3), 16-byte chunk (t'&7) ^ swizzle")
A("v_bfe_u32 v23, v0, 3, 5")
A("v_and_b32 v22, 7, v0")
A("v_and_b32 v24, 2, v23")
A("v_lshrrev_b32 v25, 1, v23")
A("v_and_or_b32 v24, v25, 4, v24")
A("v_xor_b32 v22, v22, v24")
A("v_lshlrev_b32 v22, 4, v22")
A("v_lshl_add_u32 v22, v23, 13, v22")
soff(sQL, [(sA, 20), (sJ, 10), (sC, 7)], 0)
A("s_lshl_b32 s%d, 1, 22" % (sWQ + 2))
A("s_lshl_b32 s%d, 1, 18" % sT1)
A("s_lshl_b32 s%d, s%d, 4" % (sQS, sW))
A("s_add_u32 m0, s%d, %d" % (sQS, L_WQ - 4096))
A("v_lshlrev_b32 v21, 4, v0")
if DIAG: A("s_memrealtime s[88:89]")
A("s_waitcnt lgkmcnt(0)")
if DIAG: A("s_memrealtime s[90:91]")
A("global_load_dwordx4 %s, v21, %s offset:-4096" % (vr(XR, 4), sr(sT2, 2)))
for i in range(4):
    if i:
        A("s_addk_i32 m0, 0x1000")
        A("s_add_u32 s%d, s%d, s%d" % (sQL, sQL, sT1))
    A("buffer_load_dwordx4 v22, %s, s%d offen nt lds" % (sr(sWQ, 4), sQL))
if DIAG: A("s_memrealtime s[92:93]")
lane_init()
A("s_bfe_u32 s%d, s%d, 0x20006" % (sW, sW))
A("s_lshl_b32 s%d, s%d, 10" % (sT3, sW))
srd(sWS, WS_SZ)
C("early sentinels (O0, LSE0): hw0 1024 B, the others 16 B")
for i in range(4): A("v_mov_b32 v%d, -1" % (PM + i))
A("s_mul_i32 s%d, s%d, %d" % (sT5, sM, CLRA_PER))
A("s_lshl_b32 s%d, s%d, 17" % (sGR, sJ))
A("s_add_u32 s%d, s%d, s%d" % (sT5, sT5, sGR))
A("s_add_u32 s%d, s%d, 1024" % (sT4, sT5))
A("s_cmp_ge_u32 s%d, 2" % sW)
A("s_cbranch_scc1 Lhc_skip")
A("s_cmp_eq_u32 s%d, 0" % sW)
A("s_cselect_b32 s%d, s%d, s%d" % (sT5, sT5, sT4))
A("s_cselect_b64 exec, -1, 1")
A("buffer_store_dwordx4 %s, v%d, %s, s%d offen sc1" % (vr(PM, 4), vL16, sr(sWS, 4), sT5))
LB("Lhc_skip")
A("s_mov_b64 exec, -1")
A("s_branch Lhelp2")
main_early()
LB("Lhelp2")
if QT:
    C("touch 2 lines of the tagged q mailbox per wave so that they sit in L2 before they are written")
    soff(sT4, [(sM, 10), (sW, 8), (sJ, 17)], Q0_OFF)
    A("v_lshlrev_b32 v24, 7, v%d" % vLANE)
    A("s_mov_b64 exec, 3")
    A("buffer_load_dword v%d, v24, %s, s%d offen" % (RES + 1, sr(sWS, 4), sT4))
A("s_mov_b64 exec, -1")
if HP: A("s_setprio 3")
A("s_load_dword s%d, %s, %s" % (sE, sr(sWS, 2), hx(EPO)))
A("s_load_dwordx2 %s, s[0:1], 72" % sr(sB2P, 2))
if DIAG:
    A("v_writelane_b32 v30, s42, 0")
    A("s_waitcnt lgkmcnt(0)")
    A("v_mov_b32 v31, 0")
    A("v_writelane_b32 v31, s88, 0"); A("v_writelane_b32 v31, s90, 1"); A("v_writelane_b32 v31, s92, 2")
STAMP(9)
A("s_barrier")
A("s_lshl_b32 s%d, s2, 2" % sHC)
A("s_add_u32 s%d, s%d, s%d" % (sHC, sHC, sW))
sHX = 86
if XENT:
    C("extra entry e = wave index: |h| code ELO*128 + (e>>1), sign e&1")
    A("s_lshr_b32 s%d, s%d, 1" % (sHX, sHC))
    A("s_add_u32 s%d, s%d, %d" % (sHX, sHX, ELO * 128))
    A("s_lshl_b32 s%d, s%d, 16" % (sHX, sHX))
    A("s_lshl_b32 s%d, s%d, 31" % (sT0, sHC))
    A("s_or_b32 s%d, s%d, s%d" % (sHX, sHX, sT0))
A("s_mul_i32 s%d, s%d, %d" % (sHC, sHC, EPW))
A("s_lshl_b32 s%d, s%d, 3" % (sHT, sHC))
A("s_add_u32 s%d, s%d, %d" % (sHT, sHT, XENT * 4))
A("s_add_u32 s%d, s%d, %d" % (sHC, sHC, ELO * 128 + XENT // 2))
A("s_lshl_b32 s%d, s%d, 16" % (sHC, sHC))
A("v_lshlrev_b32 v27, 2, v%d" % vLANE)
A("v_add_u32 v27, s%d, v27" % sHT)
A("s_mov_b32 s%d, %s" % (sHT, hx(TB)))
common_addr()
A("s_lshl_b32 s%d, s%d, 1" % (sQS, sQS))
A("s_add_u32 s%d, s%d, s%d" % (sQS, sQS, sGR))
A("s_add_u32 s%d, s%d, %s" % (sQS, sQS, hx(Q0_OFF)))
A("v_lshlrev_b32 v%d, 1, v%d" % (vQST, vQST))
A("s_getreg_b32 s%d, hwreg(HW_REG_XCC_ID, 0, 3)" % sXCC)
for r, c in [(hK0, K0), (hK1, K1), (hONE, 1.0)]:
    A("v_mov_b32 v%d, %s" % (r, hx(f2u(c)))); A("v_mov_b32 v%d, %s" % (r + 1, hx(f2u(c))))
A("v_mov_b32 v%d, 0" % hRES)
A("s_mov_b32 s%d, 0" % sIT)
if DRY:
    C("dry run of the q-projection code while its inputs are in flight (instruction cache warm-up; no side effects)")
    A("s_mov_b32 s%d, 1" % sIT)
    A("s_branch Llnq")
    LB("Ldry_done")
    A("s_mov_b64 exec, -1")
    A("s_mov_b32 s%d, 0" % sIT)
if WARM:
    C("warm the instruction cache lines at the far jump targets of the main waves")
    for k, nm in enumerate(["k", "fin", "out", "tab"]):
        A("s_cmp_lg_u32 s%d, %d" % (sW, k))
        A("s_cbranch_scc1 Lwm%d" % k)
        A("s_call_b64 %s, Lst_%s" % (sr(sRET, 2), nm))
        if nm == "out": A("s_call_b64 %s, Lst_mq" % sr(sRET, 2))
        LB("Lwm%d" % k)
A("s_cmp_ge_u32 s%d, 2" % sW)
A("s_cbranch_scc0 Lhx5")
A("s_waitcnt vmcnt(%d)" % (4 + QT))
LB("Lhx5")
A("s_waitcnt vmcnt(%d)" % (5 + QT))
STAMP(1)
A("s_branch Llnq")
LB("Lq_first")
if DRY:
    A("s_cmp_lg_u32 s%d, 0" % sIT)
    A("s_cbranch_scc1 Lq_dry")
A("s_waitcnt vmcnt(0) lgkmcnt(0)")
STAMP(2)
lds_arrive(0, vT + 4)
tags()
A("s_or_b32 s%d, s%d, s%d" % (sXCC, sXCC, sTG2))
C("4 helper arrivals (wq tile, xn rows) + 4 main arrivals (coefficients landed, sentinels acknowledged)")
lds_spin(0, 4, vT + 4)
STAMP(6)
LB("Lq_dry")
wqf_reads()
A("s_waitcnt lgkmcnt(0)")
A("s_branch Lq_go")
LB("Lh_qst")
if DRY:
    A("s_cmp_lg_u32 s%d, 0" % sIT)
    A("s_cbranch_scc1 Ldry_done")
STAMP(5)
A("v_mov_b32 v%d, s%d" % (W + 6, sTG1))
A("v_mov_b32 v%d, s%d" % (W + 7, sXCC))
A("buffer_store_dwordx4 %s, v%d, %s, s%d offen%s" % (vr(W + 4, 4), vQST, sr(sWS, 4), sQS, "" if int(OPT.get("fast", 1)) else " sc1"))
A("s_add_u32 s%d, s%d, %s" % (sQS, sQS, hx(QB_DELTA)))
if not QBD: A("buffer_store_dwordx4 %s, v%d, %s, s%d offen sc1" % (vr(W + 4, 4), vQST, sr(sWS, 4), sQS))
A("s_mov_b64 exec, -1")
HR = W + 8
if ADP: lds_arrive(28, 24)
if HP: A("s_setprio 0")
STAMP(3)
A("v_lshlrev_b32 v26, 3, v%d" % vLANE)
lds_spin(24, 4, 24, sleep=1)
for a_ in range(3):
    for k in range(3):
        A("ds_read_b128 %s, v%d offset:%d" % (vr(HR + 14 * a_ + 4 * k, 4), vL16, 4096 * a_ + 1024 * k))
    A("ds_read_b64 %s, v26 offset:%d" % (vr(HR + 14 * a_ + 12, 2), 4096 * a_ + 3072))
for a_, d in [(0, HW1), (14, HB1), (28, HW2)]:
    A("s_waitcnt lgkmcnt(%d)" % (8 - 4 * (a_ // 14)))
    for p in range(14):
        A("v_lshlrev_b32 v%d, 16, v%d" % (d + 2 * p, HR + a_ + p))
        A("v_and_b32 v%d, 0xffff0000, v%d" % (d + 2 * p + 1, HR + a_ + p))
A("s_load_dword s%d, %s, 0" % (sB2, sr(sB2P, 2)))
STAMP(4)
if DIAG:
    A("s_memtime s[42:43]"); A("s_waitcnt lgkmcnt(0)"); A("v_writelane_b32 v30, s42, 13")
LB("Lhl")
if DIAG:
    A("s_memrealtime s[42:43]"); A("s_add_u32 m0, s%d, 10" % sIT); A("s_waitcnt lgkmcnt(0)"); A("v_writelane_b32 v30, s42, m0")
A("s_mov_b32 s%d, s%d" % (sH, sHC)); A("s_mov_b32 s%d, s%d" % (sH + 1, sHC))
A("s_xor_b32 s%d, s%d, 0x80000000" % (sH2, sHC)); A("s_mov_b32 s%d, s%d" % (sH2 + 1, sH2))
U4 = [144, 146, 148, 150]; T4 = [152, 154, 156, 158]; Z4 = [160, 162, 164, 166]
for p2 in range(7):
    ch = [(2 * p2 + k // 2, k & 1) for k in range(4)]
    for k, (p, sg) in enumerate(ch):
        A("v_pk_fma_f32 %s, %s, %s, %s" % (vr(U4[k], 2), vr(HW1 + 2 * p, 2), sr([sH, sH2][sg], 2), vr(HB1 + 2 * p, 2)))
    for k in range(4): A("v_pk_mul_f32 %s, %s, %s" % (vr(T4[k], 2), vr(U4[k], 2), vr(U4[k], 2)))
    for k in range(4): A("v_pk_fma_f32 %s, %s, %s, %s" % (vr(T4[k], 2), vr(T4[k], 2), vr(hK1, 2), vr(hK0, 2)))
    for k in range(4): A("v_pk_mul_f32 %s, %s, %s" % (vr(T4[k], 2), vr(T4[k], 2), vr(U4[k], 2)))
    for k in range(4):
        for h in range(2): A("v_exp_f32 v%d, v%d" % (T4[k] + h, T4[k] + h))
    for k, (p, sg) in enumerate(ch): A("v_pk_mul_f32 %s, %s, %s" % (vr(Z4[k], 2), vr(U4[k], 2), vr(HW2 + 2 * p, 2)))
    for k in range(4): A("v_pk_add_f32 %s, %s, %s" % (vr(T4[k], 2), vr(T4[k], 2), vr(hONE, 2)))
    for k in range(4):
        for h in range(2): A("v_rcp_f32 v%d, v%d" % (T4[k] + h, T4[k] + h))
    for k, (p, sg) in enumerate(ch):
        if p == 0: A("v_pk_mul_f32 %s, %s, %s" % (vr(AC[sg], 2), vr(Z4[k], 2), vr(T4[k], 2)))
        else: A("v_pk_fma_f32 %s, %s, %s, %s" % (vr(AC[sg], 2), vr(Z4[k], 2), vr(T4[k], 2), vr(AC[sg], 2)))
A("v_add_f32 v%d, v%d, v%d" % (AC[0], AC[0], AC[0] + 1))
A("v_add_f32 v%d, v%d, v%d" % (AC[1], AC[1], AC[1] + 1))
A("s_lshl_b32 m0, s%d, 1" % sIT)
A("s_add_u32 s%d, s%d, 0x10000" % (sHC, sHC))
wave_sum2(AC[0], AC[1], sSUM, sSQ)
A("s_add_u32 s%d, s%d, 1" % (sIT, sIT))
A("s_nop 0")
A("v_writelane_b32 v%d, s%d, m0" % (hRES, sSUM))
A("s_add_u32 m0, m0, 1")
A("s_cmp_lg_u32 s%d, %d" % (sIT, EPW))
A("v_writelane_b32 v%d, s%d, m0" % (hRES, sSQ))
A("s_cbranch_scc1 Lhl")
def h_publish(lanes):
    A("v_cvt_pk_bf16_f32 v%d, v%d, v%d" % (hRES, hRES, hRES))
    A("v_and_b32 v%d, 0xffff0000, v%d" % (hRES, hRES))
    A("v_add_f32 v%d, s%d, v%d" % (hRES, sB2, hRES))
    A("v_cvt_pk_bf16_f32 v%d, v%d, v%d" % (hRES, hRES, hRES))
    A("v_and_b32 v%d, 0xffff0000, v%d" % (hRES + 1, hRES))
    A("s_mov_b64 exec, %d" % lanes)
    A("buffer_store_dword v%d, v27, %s, s%d offen sc1" % (hRES + 1, sr(sWS, 4), sHT))
    A("s_mov_b64 exec, -1")
A("s_waitcnt lgkmcnt(0)")
A("s_lshl_b32 s%d, s%d, 16" % (sB2, sB2))
lds_spin(8, 4, 24)
h_publish((1 << (2 * EPW)) - 1)
if QBD:
    C("the write-through copy of q is only needed when the group is not known to sit on one XCD")
    A("ds_read_b32 v24, v%d offset:4" % vFL)
    A("s_waitcnt lgkmcnt(0)")
    A("v_readfirstlane_b32 s%d, v24" % sT0)
    A("s_cmp_eq_u32 s%d, 4" % sT0)
    A("s_cbranch_scc1 Lhqb")
    A("s_mov_b64 exec, %s" % sr(sMSK, 2))
    A("buffer_store_dwordx4 %s, v%d, %s, s%d offen sc1" % (vr(W + 4, 4), vQST, sr(sWS, 4), sQS))
    A("s_mov_b64 exec, -1")
    LB("Lhqb")
STAMP(8)
if XENT:
    A("s_mov_b32 s%d, s%d" % (sH, sHX)); A("s_mov_b32 s%d, s%d" % (sH + 1, sHX))
    for grp in [[0, 1, 2, 3], [4, 5, 6, 7], [8, 9, 10], [11, 12, 13]]:
        n = len(grp)
        for k, p in enumerate(grp): A("v_pk_fma_f32 %s, %s, %s, %s" % (vr(U4[k], 2), vr(HW1 + 2 * p, 2), sr(sH, 2), vr(HB1 + 2 * p, 2)))
        for k in range(n): A("v_pk_mul_f32 %s, %s, %s" % (vr(T4[k], 2), vr(U4[k], 2), vr(U4[k], 2)))
        for k in range(n): A("v_pk_fma_f32 %s, %s, %s, %s" % (vr(T4[k], 2), vr(T4[k], 2), vr(hK1, 2), vr(hK0, 2)))
        for k in range(n): A("v_pk_mul_f32 %s, %s, %s" % (vr(T4[k], 2), vr(T4[k], 2), vr(U4[k], 2)))
        for k in range(n):
            for h in range(2): A("v_exp_f32 v%d, v%d" % (T4[k] + h, T4[k] + h))
        for k, p in enumerate(grp): A("v_pk_mul_f32 %s, %s, %s" % (vr(Z4[k], 2), vr(U4[k], 2), vr(HW2 + 2 * p, 2)))
        for k in range(n): A("v_pk_add_f32 %s, %s, %s" % (vr(T4[k], 2), vr(T4[k], 2), vr(hONE, 2)))
        for k in range(n):
            for h in range(2): A("v_rcp_f32 v%d, v%d" % (T4[k] + h, T4[k] + h))
        for k, p in enumerate(grp):
            if p < 2: A("v_pk_mul_f32 %s, %s, %s" % (vr(AC[p & 1], 2), vr(Z4[k], 2), vr(T4[k], 2)))
            else: A("v_pk_fma_f32 %s, %s, %s, %s" % (vr(AC[p & 1], 2), vr(Z4[k], 2), vr(T4[k], 2), vr(AC[p & 1], 2)))
    A("v_add_f32 v%d, v%d, v%d" % (AC[0], AC[0], AC[0] + 1))
    A("v_add_f32 v%d, v%d, v%d" % (AC[1], AC[1], AC[1] + 1))
    A("v_add_f32 v%d, v%d, v%d" % (AC[0], AC[0], AC[1]))
    A("s_nop 1")
    wave_sum2(AC[0], AC[1], sSUM, sSQ)
    A("s_nop 1")
    A("v_mov_b32 v%d, s%d" % (hRES, sSUM))
    A("v_cvt_pk_bf16_f32 v%d, v%d, v%d" % (hRES, hRES, hRES))
    A("v_and_b32 v%d, 0xffff0000, v%d" % (hRES, hRES))
    A("v_add_f32 v%d, s%d, v%d" % (hRES, sB2, hRES))
    A("v_cvt_pk_bf16_f32 v%d, v%d, v%d" % (hRES, hRES, hRES))
    A("v_and_b32 v%d, 0xffff0000, v%d" % (hRES, hRES))
    C("the last of the four helpers stores the workgroup's four extra entries with one instruction")
    A("s_lshl_b32 s%d, s%d, 2" % (sT0, sW))
    A("v_add_u32 v16, s%d, v%d" % (sT0, vFL))
    A("v_mov_b32 v17, 1")
    A("s_mov_b64 exec, 1")
    A("ds_write_b32 v16, v%d offset:32" % hRES)
    A("s_waitcnt lgkmcnt(0)")
    A("ds_add_rtn_u32 v18, v%d, v17 offset:28" % vFL)
    A("s_waitcnt lgkmcnt(0)")
    A("v_readfirstlane_b32 s%d, v18" % sT0)
    A("s_cmp_lg_u32 s%d, 3" % sT0)
    A("s_cbranch_scc1 Lhx_end")
    A("ds_read_b128 v[20:23], v%d offset:32" % vFL)
    A("s_lshl_b32 s%d, s2, 4" % sT0)
    A("v_mov_b32 v16, s%d" % sT0)
    A("s_waitcnt lgkmcnt(0)")
    A("buffer_store_dwordx4 v[20:23], v16, %s, s%d offen sc1" % (sr(sWS, 4), sHT))
    LB("Lhx_end")
    A("s_mov_b64 exec, -1")
if DIAG:
    A("s_memtime s[42:43]"); A("s_waitcnt lgkmcnt(0)"); A("v_writelane_b32 v30, s42, 14")
    STAMP(15)
STAMP(7)
C("stand in at the two barriers of the second layer, so that they do not wait for this wave's store acknowledgements")
A("s_barrier")
A("s_barrier")
if DIAG:
    A("s_add_u32 s%d, s%d, 4" % (sW, sW))
    A("v_mov_b32 v28, v30")
    A("s_branch Lfin_exit")
A("s_endpgm")

LB("Lmain")
for s, off in [(sWS, 96), (sV, 16), (sWO, 32), (sOUT, 80), (sX, 0), (sB2P, 72)]:
    A("s_load_dwordx2 %s, s[0:1], %d" % (sr(s, 2), off))
if DIAG == 2: A("s_load_dwordx2 s[100:101], s[0:1], 88")
srd(sWS, WS_SZ)
for s in [sW1, sB1, sW2]: srd(s, 3584)
A("s_lshl_b32 s%d, s%d, 10" % (sT3, sW))
A("s_barrier")
for i in range(D0, DC): kv_issue(i)
A("s_mov_b32 m0, s%d" % sT3)
for i, sd in enumerate([sW1, sB1, sW2]):
    if i: A("s_addk_i32 m0, 0x1000")
    A("s_nop 0")
    A("buffer_load_dwordx4 v%d, %s, s%d offen lds" % (vL16, sr(sd, 4), sT3))
for i in range(DC, D1): kv_issue(i)
for i in range(4): A("v_mov_b32 v%d, -1" % (W + i))
A("s_lshl_b32 s%d, s%d, 17" % (sGR, sJ))
A("s_mov_b32 s%d, s%d" % (sT1, sM))
A("s_waitcnt lgkmcnt(0)")
A("s_load_dword s%d, %s, %s" % (sE, sr(sWS, 2), hx(EPO)))
STAMP(11)
for s, n in [(sV, 1 << 25), (sX, 4096), (sWO, 1 << 22), (sOUT, 4096)]: srd(s, n)
A("v_lshlrev_b32 v18, 1, v16")
A("v_xor_b32 v18, v17, v18")
A("v_lshlrev_b32 v18, 4, v18")
A("v_lshl_add_u32 v%d, v16, 8, v18" % vVA)
if ROT:
    A("s_and_b32 s%d, s%d, 1" % (sT0, sC))
    A("s_lshl_b32 s%d, s%d, 7" % (sT0, sT0))
    A("v_xor_b32 v%d, s%d, v%d" % (vVA, sT0, vVA))
A("v_xor_b32 v%d, 128, v%d" % (vVA + 1, vVA))
C("late sentinels: wave 0,1: group region ; wave 2: P chunk")
A("s_lshr_b32 s%d, s2, 3" % sT1)
A("s_mul_i32 s%d, s%d, %d" % (sT1, sT1, CLRB_PER))
A("s_lshl_b32 s%d, s%d, 10" % (sT0, sW))
A("s_add_u32 s%d, s%d, s%d" % (sT1, sT1, sT0))
A("s_add_u32 s%d, s%d, s%d" % (sT1, sT1, sGR))
A("s_add_u32 s%d, s%d, %d" % (sT1, sT1, CLRB_OFF))
A("s_lshl_b32 s%d, s2, 10" % sT0)
A("s_add_u32 s%d, s%d, %s" % (sT0, sT0, hx(PB)))
A("s_cmp_ge_u32 s%d, 2" % sW)
A("s_cselect_b32 s%d, s%d, s%d" % (sT1, sT0, sT1))
A("s_bfm_b64 %s, %d, 0" % (sr(sH, 2), (CLRB_PER - 1024) // 16))
A("s_cmp_eq_u32 s%d, 1" % sW)
A("s_cselect_b64 %s, %s, -1" % (sr(sH, 2), sr(sH, 2)))
NCL = NOCT * 4 // 16
A("v_mov_b32 v19, v%d" % vL16)
A("s_cmp_lg_u32 s%d, 3" % sW)
A("s_cbranch_scc1 Lm_c3")
C("wave 3: this workgroup's table slots")
A("s_mul_i32 s%d, s2, %d" % (sT0, NOCT * 4))
A("s_add_u32 s%d, s%d, %d" % (sT0, sT0, XENT * 4))
A("v_add_u32 v19, s%d, v19" % sT0)
A("s_lshl_b32 s%d, s2, 4" % sT0)
if XENT: A("v_writelane_b32 v19, s%d, %d" % (sT0, NCL))
A("s_mov_b32 s%d, %s" % (sT1, hx(TB)))
A("s_mov_b64 %s, %d" % (sr(sH, 2), (1 << (NCL + (1 if XENT else 0))) - 1))
LB("Lm_c3")
A("s_mov_b64 exec, %s" % sr(sH, 2))
A("buffer_store_dwordx4 %s, v19, %s, s%d offen sc1" % (vr(W, 4), sr(sWS, 4), sT1))
A("s_mov_b64 exec, -1")

common_addr()
A("s_add_u32 s%d, s%d, s%d" % (sQS, sQS, sGR))
A("s_add_u32 s%d, s%d, %d" % (sQS, sQS, Q1_OFF))
wtile_voff(10, 22)
A("v_and_b32 v19, 7, v%d" % vLANE)
A("v_lshrrev_b32 v25, 2, v%d" % vLANE)
A("v_lshlrev_b32 v25, 7, v25")
A("v_lshl_add_u32 v%d, v18, 2, v25" % vOST)
A("v_lshlrev_b32 v25, 7, v16")
A("v_lshl_add_u32 v%d, v19, 4, v25" % vOLD)
C("lanes n>=8 of the first two o loads fetch the lse values instead: offset relative to the o block")
A("s_mul_i32 s%d, s%d, %d" % (sT0, sA, 128 - 8192))
A("s_mul_i32 s%d, s%d, %d" % (sT1, sW, 32 - 2048))
A("s_add_u32 s%d, s%d, s%d" % (sT0, sT0, sT1))
A("s_add_u32 s%d, s%d, %d" % (sT0, sT0, LSE_OFF[0] - O_OFF[0]))
A("v_add_u32 v25, s%d, v%d" % (sT0, vLSE))
A("v_xor_b32 v26, 16, v25")
A("v_add_u32 v26, -512, v26")
A("v_cmp_gt_u32 vcc, 8, v17")
A("s_nop 1")
A("v_cndmask_b32 v%d, v25, v%d, vcc" % (vLSE, vOLD))
A("v_cndmask_b32 v%d, v26, v%d, vcc" % (vLS2, vOLD))
A("v_lshlrev_b32 v%d, 1, v%d" % (vPST, vLANE))
A("v_lshlrev_b32 v25, 3, v16")
A("v_lshl_add_u32 v%d, v19, 4, v25" % vX1S)
A("s_mul_i32 s%d, s%d, %d" % (sT0, sW, RBS))
A("s_add_u32 s%d, s%d, %d" % (sT0, sT0, L_RB))
A("v_mul_u32_u24 v25, 528, v18")
A("v_lshl_add_u32 v25, v16, 4, v25")
A("v_lshrrev_b32 v26, 2, v17")
A("v_lshl_add_u32 v25, v26, 7, v25")
A("v_add_u32 v%d, s%d, v25" % (vRBW, sT0))
A("s_mul_i32 s%d, s%d, 528" % (sT0, sW))
A("s_add_u32 s%d, s%d, %d" % (sT0, sT0, L_RB))
A("v_lshlrev_b32 v25, 3, v%d" % vLANE)
A("v_add_u32 v%d, s%d, v25" % (vRBR, sT0))
A("s_lshl_b32 s%d, s%d, 3" % (sT0, sW))
A("s_add_u32 s%d, s%d, %d" % (sT0, sT0, L_ML))
A("v_lshlrev_b32 v25, 5, v18")
A("v_add_u32 v%d, s%d, v25" % (vMLW, sT0))
A("s_lshl_b32 s%d, s%d, 5" % (sT0, sW))
A("s_add_u32 s%d, s%d, %d" % (sT0, sT0, L_ML))
A("v_mov_b32 v%d, s%d" % (vMLR, sT0))
A("v_mov_b32 v25, 0x3f80")
A("v_mov_b32 v26, 0x3f800000")
for r in range(4):
    A("v_cmp_eq_u32 vcc, %d, v17" % (2 * r))
    A("v_cmp_eq_u32 %s, %d, v17" % (sr(sH, 2), 2 * r + 1))
    A("s_nop 0")
    A("v_cndmask_b32 v%d, 0, v25, vcc" % (SEL + r))
    A("v_cndmask_b32 v%d, v%d, v26, %s" % (SEL + r, SEL + r, sr(sH, 2)))
for i in range(16): A("v_mov_b32 v%d, 0" % (PM + i))
for p in range(4):
    A("s_mov_b32 s%d, %s" % (sPM + 2 * p, hx(0x000f000f << (4 * p))))
    A("s_mov_b32 s%d, %s" % (sPM + 2 * p + 1, hx(0x000f000f << (4 * p))))
soff(sOS, [(sW, 13), (sA, 11), (sC, 4), (sJ, 17)], O_OFF[0])
soff(sOL, [(sA, 13), (sW, 11), (sJ, 17)], O_OFF[0])
A("s_add_u32 s%d, s%d, %s" % (sQL, sOL, hx(Q0_OFF - O_OFF[0])))
soff(sLS, [(sW, 7), (sA, 5), (sC, 2), (sJ, 17)], LSE_OFF[0])
soff(sPS, [(sW, 15), (sC, 12), (sJ, 9), (sA, 7)], PB)
A("s_mov_b32 s%d, %s" % (sSC, hx(f2u(128 ** -0.5 * math.log2(math.e)))))
A("s_getreg_b32 s%d, hwreg(HW_REG_XCC_ID, 0, 3)" % sXCC)
A("v_xor_b32 v24, v16, v17")
A("v_lshlrev_b32 v24, 4, v24")
A("v_lshl_add_u32 v24, v17, 8, v24")
A("s_lshl_b32 s%d, s%d, 13" % (sT1, sW))
A("s_add_u32 s%d, s%d, %d" % (sT2, sT1, L_K))
for t in range(4): A("v_xor_b32 v%d, %d, v24" % (18 + t, 64 * t))
for t in range(4): A("v_add_u32 v%d, s%d, v%d" % (18 + t, sT2, 18 + t))
VA = W + 32
A("v_lshrrev_b32 v24, 2, v%d" % vLANE)
A("v_and_b32 v25, 7, v24")
A("v_lshlrev_b32 v25, 1, v25")
A("v_bfe_u32 v26, v%d, 1, 1" % vLANE)
A("v_xor_b32 v25, v25, v26")
A("v_lshlrev_b32 v25, 4, v25")
A("v_lshl_add_u32 v25, v24, 8, v25")
A("v_and_b32 v26, 1, v%d" % vLANE)
A("v_lshl_add_u32 v25, v26, 3, v25")
A("s_add_u32 s%d, s%d, %d" % (sT2, sT1, L_V))
for t in range(8): A("v_xor_b32 v%d, %d, v25" % (VA + t, 32 * t))
for t in range(8): A("v_add_u32 v%d, s%d, v%d" % (VA + t, sT2, VA + t))
soff(sT4, [(sJ, 19), (sA, 17), (sW, 15), (sC, 7)], 0)
A("s_lshl_b32 s%d, s%d, 12" % (sT5, sW))
A("s_add_u32 s%d, s%d, %d" % (sT5, sT5, L_WO))
soff(sT3, [(sA, 10), (sC, 7)], 0)
A("v_lshlrev_b32 v24, 5, v%d" % vLANE)
A("s_lshl_b32 s%d, s%d, 10" % (sT2, sW))
A("s_add_u32 s%d, s%d, %d" % (sT2, sT2, L_QF))
A("v_add_u32 v25, s%d, v%d" % (sT2, vL16))
A("v_add_u32 v26, %d, v%d" % (L_QF, vL16))
STAMP(12)
if DIAG: A("v_mov_b32 v31, v30")
QP = W
def q0_issue(QP=QP):
    A("buffer_load_dwordx4 %s, v24, %s, s%d offen sc1" % (vr(QP, 4), sr(sWS, 4), sQL))
    A("buffer_load_dwordx4 %s, v24, %s, s%d offen offset:16 sc1" % (vr(QP + 4, 4), sr(sWS, 4), sQL))
def flag_block():
    if True:
        A("s_cmp_lg_u32 s%d, 0" % sW)
        A("s_cbranch_scc1 Lnoflag")
        C("every sentinel store of this workgroup is acknowledged: announce it")
        lds_spin(8, 4, vT)
        A("v_mov_b32 v16, s%d" % sTG1)
        A("v_mov_b32 v17, s%d" % sXCC)
        soff(sT1, [(2, 4)], FB)
        A("v_mov_b32 v21, 0")
        A("s_mov_b64 exec, 1")
        A("buffer_store_dwordx2 v[16:17], v21, %s, s%d offen sc1" % (sr(sWS, 4), sT1))
        A("s_mov_b64 exec, -1")
        LB("Lnoflag")
C("coefficients landed -> tell the helpers")
young = D1 - DC + 1
told = False
if ECO:
    A("s_waitcnt vmcnt(%d)" % young); lds_arrive(24, vT); told = True
A("s_mov_b32 s%d, 0" % sY)
for i in range(D1, 16):
    dp = DEPTH if i < TAILI else TAILD
    extra = 1 if i == 16 - QV else 0
    if ADP and told:
        C("stay shallow until the helpers have issued their q stores")
        A("s_cmp_lg_u32 s%d, 0" % sY)
        A("s_cbranch_scc1 Ldp%d" % i)
        A("ds_read_b32 v%d, v%d offset:28" % (vT, vFL))
        A("s_waitcnt lgkmcnt(0)")
        A("v_readfirstlane_b32 s%d, v%d" % (sT1, vT))
        A("s_cmp_ge_u32 s%d, 4" % sT1)
        A("s_cselect_b32 s%d, 1, 0" % sY)
        A("s_cbranch_scc1 Ldp%d" % i)
        A("s_waitcnt vmcnt(%d)" % (dp - 1 - 2 * extra))
        LB("Ldp%d" % i)
        A("s_waitcnt vmcnt(%d)" % (ADP - 1 - 2 * extra))
        if extra: q0_issue(); young += 2
    else:
        if extra:
            A("s_waitcnt vmcnt(%d)" % (dp - 2)); q0_issue(); young += 2
        A("s_waitcnt vmcnt(%d)" % (dp - 1))
    if not told and young >= dp - 1:
        lds_arrive(24, vT); told = True
    kv_issue(i); young += 1
assert told
q0_issue(QP + 8)
C("everything older than the V loads is complete: K, late sentinels")
A("s_waitcnt vmcnt(12)")
lds_arrive(8, vT)
A("s_waitcnt lgkmcnt(0)")
tags()
A("s_or_b32 s%d, s%d, s%d" % (sXCC, sXCC, sTG2))
STAMP(1)
for t in range(4):
    for T in range(2):
        A("ds_read_b128 %s, v%d offset:%d" % (vr(KF + 16 * T + 4 * t, 4), 18 + t, 4096 * T))
flag_block()
def wait_w0(n):
    uid[0] += 1
    A("s_cmp_eq_u32 s%d, 0" % sW)
    A("s_cbranch_scc1 Lww%d" % uid[0])
    A("s_waitcnt vmcnt(%d)" % n)
    LB("Lww%d" % uid[0])
    A("s_waitcnt vmcnt(%d)" % (n + 1))
wait_w0(QV + 2)
STAMP(2)
A("s_setprio 2")
A("s_mov_b32 s%d, %s" % (sCNT, hx(SPIN)))
A("s_mov_b32 s%d, 0" % sY)
LB("Lmq")
A("v_and_b32 v16, -8, v%d" % (QP + 3))
A("v_and_b32 v17, -8, v%d" % (QP + 7))
A("v_cmp_ne_u32 vcc, s%d, v%d" % (sTG1, QP + 2))
A("v_cmp_ne_u32 %s, s%d, v%d" % (sr(sRET, 2), sTG1, QP + 6))
A("s_or_b64 vcc, vcc, %s" % sr(sRET, 2))
A("v_cmp_ne_u32 %s, s%d, v16" % (sr(sRET, 2), sTG2))
A("s_or_b64 vcc, vcc, %s" % sr(sRET, 2))
A("v_cmp_ne_u32 %s, s%d, v17" % (sr(sRET, 2), sTG2))
A("s_or_b64 vcc, vcc, %s" % sr(sRET, 2))
if not int(OPT.get("nochk", 0)): A("s_cbranch_vccnz Lmqr")
LB("Lmqd")
if DIAG:
    A("s_sub_u32 s%d, s%d, s%d" % (sT0, sCNT, sY)); A("v_writelane_b32 v31, s%d, 0" % sT0)
Ls = L; L = []
L.append(".p2align 6"); LB("Lst_mq"); A("s_setpc_b64 %s" % sr(sRET, 2))
LB("Lmqr")
A("s_cmp_lg_u32 s%d, 0" % sY)
A("s_cbranch_scc1 Lmqr2")
C("first look failed: take the second one (V has landed with it: request its fragments now)")
A("s_waitcnt vmcnt(0)")
A("s_mov_b32 s%d, 1" % sY)
for k in range(8): A("v_mov_b32 v%d, v%d" % (QP + k, QP + 8 + k))
for t in range(8):
    for hf in range(2):
        A("ds_read_b64_tr_b16 %s, v%d offset:%d" % (vr(VF + 4 * t + 2 * hf, 2), VA + t, 4096 * hf))
A("s_branch Lmq")
LB("Lmqr2")
C("still not there: poll the plain copy a few times, then both copies in turn")
A("s_cmp_le_u32 s%d, %s" % (sCNT, hx(SPIN - 6)))
A("s_cselect_b32 s%d, %s, 0" % (sT0, hx(QB_DELTA)))
A("s_xor_b32 s%d, s%d, s%d" % (sQL, sQL, sT0))
q0_issue()
A("s_waitcnt vmcnt(0)")
A("s_sub_u32 s%d, s%d, 1" % (sCNT, sCNT))
A("s_cbranch_scc0 Lmq")
A("s_branch Lmqd")
ool.append(L); L = Ls
A("v_cmp_ne_u32 vcc, s%d, v%d" % (sXCC, QP + 3))
A("v_mov_b32 v%d, v%d" % (QP + 2, QP + 4))
A("v_mov_b32 v%d, v%d" % (QP + 3, QP + 5))
A("ds_write_b128 v25, %s" % vr(QP, 4))
A("s_cmp_eq_u64 vcc, 0")
A("s_cselect_b32 s%d, 1, 0x101" % sT0)
A("v_mov_b32 v16, s%d" % sT0)
A("s_waitcnt lgkmcnt(0)")
lds_arrive(4, 16, None)
STAMP(15)
A("buffer_load_dwordx2 %s, v%d, %s, s%d offen" % (vr(RES + 2, 2), vX1S, sr(sX, 4), sT3))
FLG = W + 44
soff(sIT, [(sW, 10)], FB)
soff(sQL, [(sA, 12), (sJ, 17)], Q1_OFF)
for k in range(4):
    A("s_add_u32 s%d, s%d, %d" % (sT0, sC, k))
    A("s_and_b32 s%d, s%d, 3" % (sT0, sT0))
    A("s_lshl_b32 s%d, s%d, 10" % (sKO + k, sT0))
A("s_and_b32 s%d, s%d, 1" % (sT0, sC))
A("s_lshl_b32 s%d, s%d, 6" % (sT0, sT0))
A("v_xor_b32 v22, s%d, v22" % sT0); A("v_xor_b32 v23, s%d, v23" % sT0)
A("s_lshl_b32 s%d, s%d, 2" % (sT3, sM))
A("s_add_u32 s%d, s%d, s%d" % (sT3, sT3, sW))
A("s_mul_i32 s%d, s%d, 768" % (sT3, sT3))
A("s_add_u32 s%d, s%d, s%d" % (sT3, sT3, sGR))
A("v_lshlrev_b32 v21, 7, v%d" % vLANE)
lds_spin(4, 4, vT, mask=0xff)
A("s_cmp_lt_u32 s%d, 256" % sT1)
A("s_cselect_b32 s%d, %d, 0" % (sFAST, int(OPT.get("fast", 1))))
QF = W + 16
for t in range(4):
    A("ds_read_b128 %s, v26 offset:%d" % (vr(QF + 4 * t, 4), 1024 * t))
S = W
qk = []
for t in range(4):
    for T in range(2):
        qk.append(mf(S + 4 * T, KF + 16 * T + 4 * t, QF + 4 * t, None if t == 0 else S + 4 * T))
for t in range(4):
    A("s_waitcnt lgkmcnt(%d)" % (3 - t))
    A(qk[2 * t]); A(qk[2 * t + 1])
def wo_issue():
    C("every wave holds its K fragments: the wo tile may land in the K area")
    for k in range(4):
        A("s_add_u32 m0, s%d, s%d" % (sT5, sKO + k))
        A("s_lshl3_add_u32 s%d, s%d, s%d" % (sT0, sKO + k, sT4))
        A("buffer_load_dwordx4 v%d, %s, s%d offen nt lds" % (22 + (k & 1), sr(sWO, 4), sT0))
if WOP == 0: wo_issue()
if PRET:
    C("bring the (cleared) group mailbox lines into L2")
    A("s_mov_b64 exec, 63")
    A("buffer_load_dword v%d, v21, %s, s%d offen sc1" % (W + 40, sr(sWS, 4), sT3))
    A("s_mov_b64 exec, -1")
STAMP(3)
A("s_branch Lk_go")

LB("Llnq")
C("LayerNorm of the row held in XR, then q partial = xn @ wq tile")
X = W
row_stats(XR, vT, X)
A("v_add_f32 v%d, %s, v%d" % (vT + 1, EPS, vT + 1))
A("v_rsq_f32 v%d, v%d" % (vT + 2, vT + 1))
A("s_cmp_eq_u32 s%d, 0" % sLAY)
A("v_mul_f32 v%d, v%d, v%d" % (vT + 3, vT, vT + 2))
for i in range(4):
    A("v_pk_fma_f32 %s, %s, %s, %s op_sel:[0,0,1] op_sel_hi:[1,0,1] neg_lo:[0,0,1] neg_hi:[0,0,1]" % (vr(X + 2 * i, 2), vr(X + 2 * i, 2), vr(vT + 2, 2), vr(vT + 2, 2)))
for i in range(4):
    A("v_cvt_pk_bf16_f32 v%d, v%d, v%d" % (X + 8 + i, X + 2 * i, X + 2 * i + 1))
A("ds_write_b128 v%d, %s" % (vXNW, vr(X + 8, 4)))
A("s_cbranch_scc1 Lq_first")
A("s_waitcnt lgkmcnt(0)")
A("s_barrier")
LB("Lq_go")
BF = W + 16
for t in range(4):
    A("ds_read_b128 %s, v%d offset:%d" % (vr(BF + 4 * t, 4), vXNR, 64 * t))
for t in range(4):
    A("s_waitcnt lgkmcnt(%d)" % (3 - t))
    mfma(W, WQF + 4 * t, BF + 4 * t, None if t == 0 else W)
A("s_cmp_eq_u32 s%d, 0" % sLAY)
A("s_mov_b64 exec, %s" % sr(sMSK, 2))
NOP(6)
A("v_cvt_pk_bf16_f32 v%d, v%d, v%d" % (W + 4, W, W + 1))
A("v_cvt_pk_bf16_f32 v%d, v%d, v%d" % (W + 5, W + 2, W + 3))
A("s_cbranch_scc1 Lh_qst")
fastcmp()
store_local("buffer_store_dwordx2", vr(W + 4, 2), vQST, sQS)
A("s_mov_b64 exec, -1")
STAMP(2)

C("attention over this workgroup's 128 keys")
if QS:
    C("each wave fetches one k-step of q and shares it through LDS")
    A("s_lshl_b32 s%d, s%d, 10" % (sT3, sW))
    A("s_add_u32 s%d, s%d, s%d" % (sT4, sQL, sT3))
    A("s_add_u32 s%d, s%d, %d" % (sT3, sT3, L_RB + 12288))
    A("v_add_u32 v25, s%d, v%d" % (sT3, vL16))
    A("v_add_u32 v26, %d, v%d" % (L_RB + 12288, vL16))
    ppoll(lambda k: A("buffer_load_dwordx4 %s, v%d, %s, s%d offen sc1" % (vr(W + 32 + 4 * k, 4), vL16, sr(sWS, 4), sT4)),
          lambda k: range(W + 32 + 4 * k, W + 36 + 4 * k), 1, vT, lambda k: ["ds_write_b128 v25, %s" % vr(W + 32 + 4 * k, 4)], pre=QPRE, gap=QGAP, tag=0)
    A("s_waitcnt lgkmcnt(0)")
    A("s_barrier")
    for t in range(4):
        A("ds_read_b128 %s, v26 offset:%d" % (vr(QF + 4 * t, 4), 1024 * t))
    for t in range(4):
        A("s_waitcnt lgkmcnt(%d)" % (3 - t))
        A(qk[2 * t]); A(qk[2 * t + 1])
    touch_stub("k")
else:
    def iq(k):
        for t in range(4):
            A("buffer_load_dwordx4 %s, v%d, %s, s%d offen offset:%d sc1" % (vr(QF + 16 * k + 4 * t, 4), vL16, sr(sWS, 4), sQL, 1024 * t))
    def qks(k):
        return [mf(S + 4 * T, KF + 16 * T + 4 * t, QF + 16 * k + 4 * t, None if t == 0 else S + 4 * T) for t in range(4) for T in range(2)]
    ppoll(iq, lambda k: range(QF + 16 * k, QF + 16 * k + 16), 4, vT, qks, pre=QPRE, gap=QGAP, tag=0, stub="k")
STAMP(3)
LB("Lk_go")
NOP(7)
for ctl in ["row_ror:4", "row_ror:8"]:
    for i in range(8):
        A("v_add_f32_dpp v%d, v%d, v%d %s row_mask:0xf bank_mask:0xf" % (S + i, S + i, S + i, ctl))
A("v_max3_f32 v%d, v%d, v%d, v%d" % (vT, S, S + 1, S + 2))
A("v_max3_f32 v%d, v%d, v%d, v%d" % (vT + 1, S + 3, S + 4, S + 5))
A("v_max3_f32 v%d, v%d, v%d, v%d" % (vT, vT, S + 6, S + 7))
A("v_max_f32 v%d, v%d, v%d" % (vT, vT, vT + 1))
A("v_mov_b32 v%d, v%d" % (vT + 1, vT))
A("s_nop 1")
A("v_permlane16_swap_b32 v%d, v%d" % (vT, vT + 1))
A("v_max_f32 v%d, v%d, v%d" % (vT, vT, vT + 1))
A("v_mov_b32 v%d, v%d" % (vT + 1, vT))
A("s_nop 1")
A("v_permlane32_swap_b32 v%d, v%d" % (vT, vT + 1))
A("v_max_f32 v%d, v%d, v%d" % (vT, vT, vT + 1))
A("v_mul_f32 v%d, s%d, v%d" % (vT + 2, sSC, vT))
for i in range(8):
    A("v_fma_f32 v%d, v%d, s%d, -v%d" % (S + i, S + i, sSC, vT + 2))
for i in range(8):
    A("v_exp_f32 v%d, v%d" % (S + i, S + i))
for p in range(4):
    A("s_mov_b64 exec, %s" % sr(sPM + 2 * p, 2))
    for i in range(4):
        A("v_cvt_pk_bf16_f32 v%d, v%d, v%d" % (PM + 4 * p + i, S + 2 * i, S + 2 * i + 1))
A("s_mov_b64 exec, -1")
STAMP(4)
A("s_cmp_lg_u32 s%d, 0" % sLAY)
A("s_cbranch_scc1 Lv_go")
wait_w0((5 if WOP == 0 else 1) + PRET)
if WOP == 1: wo_issue()
A("buffer_load_dwordx4 %s, v%d, %s, s%d offen sc1" % (vr(FLG, 4), vL16, sr(sWS, 4), sIT))
STAMP(6)
A("s_cmp_lg_u32 s%d, 0" % sY)
A("s_cbranch_scc1 Lv_have")
for t in range(8):
    for hf in range(2):
        A("ds_read_b64_tr_b16 %s, v%d offset:%d" % (vr(VF + 4 * t + 2 * hf, 2), VA + t, 4096 * hf))
A("s_waitcnt lgkmcnt(0)")
LB("Lv_have")
if TOT:
    A("s_memrealtime s[42:43]"); A("s_waitcnt lgkmcnt(0)"); A("s_mov_b32 s97, s42")
A("s_cmp_lg_u32 s%d, 0" % sLAY)
LB("Lv_go")
OA = W + 8
mfma(W + 16, ONES, PM, None)
for p in range(4):
    for T in range(2):
        mfma(OA + 4 * T, VF + 4 * (2 * p + T), PM + 4 * p, None if p == 0 else OA + 4 * T)
A("s_mov_b64 exec, %s" % sr(sMSK, 2))
A("v_mov_b32 v%d, v%d" % (vT + 3, W + 16))
A("ds_write_b64 v%d, %s" % (vMLW, vr(vT + 2, 2)))
A("s_mov_b64 exec, -1")
NOP(3)
A("ds_write_b128 v%d, %s" % (vRBW, vr(OA, 4)))
A("ds_write_b128 v%d, %s offset:64" % (vRBW, vr(OA + 4, 4)))
A("s_waitcnt lgkmcnt(0)")
A("s_cbranch_scc1 Lrb_bar")
lds_arrive(12, vT + 4)
if WOP == 2: wo_issue()
lds_spin(12, 4, vT + 4)
A("s_branch Lrb_go")
LB("Lrb_bar")
A("s_barrier")
LB("Lrb_go")
A("ds_read_b128 %s, v%d" % (vr(W, 4), vMLR))
A("ds_read_b128 %s, v%d offset:16" % (vr(W + 4, 4), vMLR))
for w in range(4):
    A("ds_read_b64 %s, v%d offset:%d" % (vr(W + 8 + 2 * w, 2), vRBR, RBS * w))
A("v_mov_b32 v%d, 0" % (vT + 4))
fastcmp()
A("s_waitcnt lgkmcnt(4)")
A("v_max3_f32 v%d, v%d, v%d, v%d" % (vT, W, W + 2, W + 4))
A("v_max_f32 v%d, v%d, v%d" % (vT, vT, W + 6))
for w in range(4): A("v_sub_f32 v%d, v%d, v%d" % (W + 2 * w, W + 2 * w, vT))
for w in range(4): A("v_exp_f32 v%d, v%d" % (W + 2 * w, W + 2 * w))
A("v_mul_f32 v%d, v%d, v%d" % (vT + 1, W, W + 1))
for w in range(1, 4): A("v_fmac_f32 v%d, v%d, v%d" % (vT + 1, W + 2 * w, W + 2 * w + 1))
A("s_waitcnt lgkmcnt(0)")
A("v_pk_mul_f32 %s, %s, %s op_sel_hi:[1,0]" % (vr(W + 8, 2), vr(W + 8, 2), vr(W, 2)))
A("v_rcp_f32 v%d, v%d" % (vT + 2, vT + 1))
A("v_pk_fma_f32 %s, %s, %s, %s op_sel_hi:[1,0,1]" % (vr(W + 8, 2), vr(W + 10, 2), vr(W + 2, 2), vr(W + 8, 2)))
A("v_log_f32 v%d, v%d" % (vT + 5, vT + 1))
for w in range(2, 4):
    A("v_pk_fma_f32 %s, %s, %s, %s op_sel_hi:[1,0,1]" % (vr(W + 8, 2), vr(W + 8 + 2 * w, 2), vr(W + 2 * w, 2), vr(W + 8, 2)))
A("v_pk_mul_f32 %s, %s, %s op_sel_hi:[1,0]" % (vr(W + 8, 2), vr(W + 8, 2), vr(vT + 2, 2)))
A("v_add_f32 v%d, v%d, v%d" % (vT + 5, vT + 5, vT))
A("v_cvt_pk_bf16_f32 v%d, v%d, v%d" % (W + 8, W + 8, W + 9))
store_local("buffer_store_dword", "v%d" % (W + 8), vOST, sOS)
A("s_mov_b64 exec, 1")
store_local("buffer_store_dword", "v%d" % (vT + 5), vT + 4, sLS)
A("s_mov_b64 exec, -1")
STAMP(5)

C("wo phase: wave = batch, rows = key splits")
OF = W; LS = W + 32; DA = WQF
assert LSE_OFF[1] - O_OFF[1] == LSE_OFF[0] - O_OFF[0]
def io(k):
    for t in range(4):
        A("buffer_load_dwordx4 %s, v%d, %s, s%d offen offset:%d sc1" % (vr(OF + 16 * k + 4 * t, 4), [vLSE, vLS2, vOLD, vOLD][t], sr(sWS, 4), sOL, 512 * t))
A("s_cmp_lg_u32 s%d, 0" % sLAY)
A("s_cbranch_scc1 Lo_go")
C("first layer: wo tile landed -> fragments; every workgroup has announced its clears")
if WOP == 3: wo_issue()
A("s_waitcnt vmcnt(%d)" % (2 if WOP < 3 else 0))
STAMP(13)
A("s_mov_b32 s%d, %s" % (sT4, hx(SPIN)))
LB("Lap")
A("v_and_b32 v24, -8, v%d" % (FLG + 1))
A("v_cmp_ne_u32 vcc, s%d, v%d" % (sTG1, FLG))
A("v_cmp_ne_u32 %s, s%d, v24" % (sr(sH, 2), sTG2))
A("s_or_b64 vcc, vcc, %s" % sr(sH, 2))
A("s_cbranch_vccnz Lar")
LB("Lad")
lds_arrive(16, 24)
for i in range(2):
    A("v_lshlrev_b32 v%d, 16, v%d" % (W + 40 + 2 * i, RES + 2 + i))
    A("v_and_b32 v%d, 0xffff0000, v%d" % (W + 41 + 2 * i, RES + 2 + i))
for i in range(4): A("v_mov_b32 v%d, v%d" % (RES + i, W + 40 + i))
for ct in range(4): A("v_xor_b32 v%d, %d, v%d" % (W + 40 + ct, 32 * ct, vWT))
for ct in range(4): A("v_add_u32 v%d, %d, v%d" % (W + 40 + ct, L_WO, W + 40 + ct))
lds_spin(16, 4, 24)
STAMP(14)
A("s_mov_b32 s%d, 1" % sY)
LB("Lo_go")
def pre_o():
    A("s_cmp_eq_u32 s%d, 0" % sY)
    A("s_cbranch_scc1 Lo_nof")
    A("s_mov_b32 s%d, 0" % sY)
    for t in range(4):
        for ct in range(4):
            for hf in range(2):
                A("ds_read_b64_tr_b16 %s, v%d offset:%d" % (vr(WOF + 16 * ct + 4 * t + 2 * hf, 2), W + 40 + ct, 4096 * t + 512 * hf))
    A("s_waitcnt lgkmcnt(0)")
    LB("Lo_nof")
ool.append(["Lar:", "    s_lshl_b32 s%d, s%d, 10" % (sT5, sW), "    s_add_u32 s%d, s%d, %s" % (sT5, sT5, hx(FB)),
            "    buffer_load_dwordx4 %s, v%d, %s, s%d offen sc1" % (vr(FLG, 4), vL16, sr(sWS, 4), sT5),
            "    s_waitcnt vmcnt(0)", "    s_sub_u32 s%d, s%d, 1" % (sT4, sT4), "    s_cbranch_scc0 Lap", "    s_branch Lad"])
def wo1(k): return [mf(DA + 4 * ct, OF + 16 * k + 4 * t, WOF + 16 * ct + 4 * t, None if t == 0 else DA + 4 * ct) for t in range(2) for ct in range(4)]
ppoll(io, lambda k: range(OF + 16 * k, OF + 16 * k + 16), 4, vT, wo1, pre=OPRE, gap=OGAP, mid=pre_o, tag=1,
      fix=["v_mov_b32 v%d, v%d" % (OF + i, OF + 16 + i) for i in range(16)])
STAMP(7)
C("softmax over the 8 key splits (lanes n>=8 hold own lse in OF[0:3], the other four in OF[4:7])")
va = ["v_max3_f32 v%d, v%d, v%d, v%d" % (vT, OF, OF + 1, OF + 2), "v_max3_f32 v%d, v%d, v%d, v%d" % (vT + 1, OF + 3, OF + 4, OF + 5),
      "v_max3_f32 v%d, v%d, v%d, v%d" % (vT, vT, OF + 6, OF + 7), "v_max_f32 v%d, v%d, v%d" % (vT, vT, vT + 1)]
va += ["v_sub_f32 v%d, v%d, v%d" % (LS + i, OF + i, vT) for i in range(4)]
va += ["v_exp_f32 v%d, v%d" % (LS + i, LS + i) for i in range(4)]
va += ["s_nop 0"]
va += ["v_mov_b32_dpp v%d, v%d row_ror:8 row_mask:0xf bank_mask:0x3" % (LS + i, LS + i) for i in range(4)]
va += ["v_add_f32 v%d, v%d, v%d" % (vT, LS, LS + 1), "v_add_f32 v%d, v%d, v%d" % (vT + 1, LS + 2, LS + 3),
       "v_add_f32 v%d, v%d, v%d" % (vT, vT, vT + 1), "v_mov_b32 v%d, v%d" % (vT + 1, vT)]
for t in range(2, 4):
    for ct in range(4):
        mfma(DA + 4 * ct, OF + 4 * t, WOF + 16 * ct + 4 * t, DA + 4 * ct)
        for k in range(3 if t == 3 or ct < 1 else 2):
            if va: A(va.pop(0))
assert not va
A("s_mov_b32 s%d, 0x55555555" % sT4)
A("s_mov_b32 s%d, 0x55555555" % sT5)
A("v_permlane16_swap_b32 v%d, v%d" % (vT, vT + 1))
A("v_mul_f32 v%d, v%d, v%d" % (DA, DA, LS))
A("v_add_f32 v%d, v%d, v%d" % (vT, vT, vT + 1))
A("v_mul_f32 v%d, v%d, v%d" % (DA + 4, DA + 4, LS))
A("v_rcp_f32 v%d, v%d" % (vT, vT))
A("v_mul_f32 v%d, v%d, v%d" % (DA + 8, DA + 8, LS))
for i in range(1, 4):
    for ct in range(3):
        A("v_fmac_f32 v%d, v%d, v%d" % (DA + 4 * ct, DA + 4 * ct + i, LS + i))
    if i == 1: A("v_mul_f32 v%d, v%d, v%d" % (DA + 12, DA + 12, LS))
for i in range(1, 4): A("v_fmac_f32 v%d, v%d, v%d" % (DA + 12, DA + 12 + i, LS + i))
A("v_permlane16_swap_b32 v%d, v%d" % (DA, DA + 4))
A("s_nop 0")
A("v_permlane16_swap_b32 v%d, v%d" % (DA + 8, DA + 12))
A("v_add_f32 v%d, v%d, v%d" % (DA, DA, DA + 4))
A("v_add_f32 v%d, v%d, v%d" % (DA + 8, DA + 8, DA + 12))
A("s_nop 1")
A("v_permlane32_swap_b32 v%d, v%d" % (DA, DA + 8))
A("v_mul_f32 v%d, v%d, v%d" % (DA, DA, vT))
A("s_cmp_lg_u32 s%d, 0" % sLAY)
A("s_nop 0")
A("v_mov_b32_dpp v%d, v%d quad_perm:[1,0,3,2] row_mask:0xf bank_mask:0xf" % (DA + 1, DA))
A("s_mov_b64 exec, %s" % sr(sT4, 2))
A("v_cvt_pk_bf16_f32 v%d, v%d, v%d" % (DA, DA, DA + 1))
A("buffer_store_dword v%d, v%d, %s, s%d offen sc1" % (DA, vPST, sr(sWS, 4), sPS))
A("s_mov_b64 exec, -1")
STAMP(8)
A("s_cbranch_scc1 Lfinal")

A("s_cmp_lg_u32 s%d, 0" % sW)
A("s_cbranch_scc1 Ltab")
C("stage 1 (wave 0): reduce 32 head partials of 64 outputs, add residual, publish x1 slice")
soff(sT1, [(sA, 15), (sC, 12)], PB)
soff(sT2, [(sA, 10), (sC, 7), (sJ, 17)], X1_OFF)
A("s_mov_b32 s%d, 0x00ff00ff" % sT4)
A("s_mov_b32 s%d, 0" % sT5)
def ip(k):
    for i in range(4):
        A("buffer_load_dwordx4 %s, v%d, %s, s%d offen offset:%d sc1" % (vr(W + 20 * k + 4 * i, 4), vL16, sr(sWS, 4), sT1, 1024 * i))
if GW: A("s_waitcnt vmcnt(0)")
ppoll(ip, lambda k: range(W + 20 * k, W + 20 * k + 16), 4, vT, lambda k: [mf(W + 16, SEL, W + 20 * k + 4 * i, None if i == 0 else W + 16) for i in range(4)], pre=GPRE, gap=GGAP, tag=2)
STAMP(9)
fastcmp()
NOP(6)
for i in range(4):
    A("v_add_f32_dpp v%d, v%d, v%d row_ror:8 row_mask:0xf bank_mask:0xf" % (W + 16 + i, W + 16 + i, W + 16 + i))
A("s_mov_b64 exec, %s" % sr(sT4, 2))
A("v_pk_add_f32 %s, %s, %s" % (vr(W + 16, 2), vr(W + 16, 2), vr(RES, 2)))
A("v_pk_add_f32 %s, %s, %s" % (vr(W + 18, 2), vr(W + 18, 2), vr(RES + 2, 2)))
A("v_cvt_pk_bf16_f32 v%d, v%d, v%d" % (W + 16, W + 16, W + 17))
A("v_cvt_pk_bf16_f32 v%d, v%d, v%d" % (W + 17, W + 18, W + 19))
store_local("buffer_store_dwordx2", vr(W + 16, 2), vX1S, sT2)
A("s_mov_b64 exec, -1")
LB("Ltabdone")
soff(sT3, [(sW, 10), (sJ, 17)], X1_OFF)
def ix(k):
    A("buffer_load_dwordx4 %s, v%d, %s, s%d offen sc1" % (vr([XR, RES][k], 4), vL16, sr(sWS, 4), sT3))
wqf_reads()
ppoll(ix, lambda k: range([XR, RES][k], [XR, RES][k] + 4), 1, vT, lambda k: ["s_waitcnt lgkmcnt(0)", "v_readfirstlane_b32 s%d, v%d" % (sT1, vT + 2)],
      pre=XPRE, gap=XGAP, mid=lambda: A("ds_read_b32 v%d, v%d offset:20" % (vT + 2, vFL)), tag=3,
      fix=["v_mov_b32 v%d, v%d" % (XR + i, RES + i) for i in range(4)])
A("s_cmp_lt_u32 s%d, 3" % sT1)
A("s_cbranch_scc1 Ltw")
LB("Ltwd")
STAMP(10)

LB("Lmix")
C("x <- x + g(LN(LN(x))) ; g is tabulated for every bf16 input in range, evaluated directly otherwise")
X = W; HB = W + 8; RT = W + 12; AD = W + 16; Y = W + 24
row_stats(XR, vT, X)
A("v_add_f32 v%d, %s, v%d" % (vT + 2, EPS, vT + 1))
A("v_rsq_f32 v%d, v%d" % (vT + 2, vT + 2))
A("v_mov_b32 v%d, %s" % (vT + 4, hx(LO2 | (LO2 << 16))))
A("s_movk_i32 s%d, %d" % (sT5, NENT * 4))
A("v_mul_f32 v%d, v%d, v%d" % (vT + 1, vT + 1, vT + 2))
A("v_fmaak_f32 v%d, v%d, v%d, %s" % (vT + 1, vT + 1, vT + 2, EPS))
A("v_rsq_f32 v%d, v%d" % (vT + 1, vT + 1))
A("s_nop 0")
A("v_mul_f32 v%d, v%d, v%d" % (vT + 2, vT + 2, vT + 1))
A("v_mul_f32 v%d, v%d, v%d" % (vT + 3, vT, vT + 2))
for i in range(4):
    A("v_pk_fma_f32 %s, %s, %s, %s op_sel:[0,0,1] op_sel_hi:[1,0,1] neg_lo:[0,0,1] neg_hi:[0,0,1]" % (vr(AD + 2 * i, 2), vr(X + 2 * i, 2), vr(vT + 2, 2), vr(vT + 2, 2)))
for i in range(4):
    A("v_cvt_pk_bf16_f32 v%d, v%d, v%d" % (HB + i, AD + 2 * i, AD + 2 * i + 1))
for i in range(4):
    A("v_pk_lshlrev_b16 v%d, 1, v%d op_sel_hi:[0,1]" % (RT + i, HB + i))
    A("v_pk_lshrrev_b16 v%d, 15, v%d op_sel_hi:[0,1]" % (AD + i, HB + i))
for i in range(4):
    A("v_or_b32 v%d, v%d, v%d" % (RT + i, RT + i, AD + i))
for i in range(4):
    A("v_pk_sub_u16 v%d, v%d, v%d" % (RT + i, RT + i, vT + 4))
for i in range(4):
    A("v_lshlrev_b32_sdwa v%d, 2, v%d dst_sel:DWORD dst_unused:UNUSED_PAD src0_sel:DWORD src1_sel:WORD_0" % (AD + 2 * i, RT + i))
    A("v_lshlrev_b32_sdwa v%d, 2, v%d dst_sel:DWORD dst_unused:UNUSED_PAD src0_sel:DWORD src1_sel:WORD_1" % (AD + 2 * i + 1, RT + i))
    A("ds_read_b32 v%d, v%d offset:%d" % (Y + 2 * i, AD + 2 * i, L_TAB))
    A("ds_read_b32 v%d, v%d offset:%d" % (Y + 2 * i + 1, AD + 2 * i + 1, L_TAB))
A("v_max3_u32 v%d, v%d, v%d, v%d" % (vT, AD, AD + 1, AD + 2))
A("v_max3_u32 v%d, v%d, v%d, v%d" % (vT + 1, AD + 3, AD + 4, AD + 5))
A("v_max3_u32 v%d, v%d, v%d, v%d" % (vT, vT, AD + 6, AD + 7))
A("v_max_u32 v%d, v%d, v%d" % (vT, vT, vT + 1))
A("v_cmp_le_u32 %s, s%d, v%d" % (sr(sH, 2), sT5, vT))
A("s_waitcnt lgkmcnt(5)")
A("v_max3_u32 v%d, v%d, v%d, v%d" % (vT, Y, Y + 1, Y + 2))
A("s_waitcnt lgkmcnt(2)")
A("v_max3_u32 v%d, v%d, v%d, v%d" % (vT + 1, Y + 3, Y + 4, Y + 5))
A("s_waitcnt lgkmcnt(0)")
A("v_max3_u32 v%d, v%d, v%d, v%d" % (vT, vT, Y + 6, Y + 7))
A("v_max_u32 v%d, v%d, v%d" % (vT, vT, vT + 1))
A("v_cmp_eq_u32 vcc, -1, v%d" % vT)
LB("Lslowdone")
for i in range(4):
    A("v_pk_add_f32 %s, %s, %s" % (vr(vT + 2 + 2 * i, 2), vr(X + 2 * i, 2), vr(Y + 2 * i, 2)))
A("s_or_b64 vcc, vcc, %s" % sr(sH, 2))
A("s_cbranch_vccnz Lslow")
A("s_cmp_lg_u32 s%d, 0" % sLAY)
for i in range(4):
    A("v_cvt_pk_bf16_f32 v%d, v%d, v%d" % (XR + i, vT + 2 + 2 * i, vT + 3 + 2 * i))
STAMP(11)
A("s_cbranch_scc1 Lout")
A("ds_write_b128 v%d, %s offset:%d" % (vXNW, vr(XR, 4), L_X2 - L_XN))
A("s_mov_b32 s%d, 1" % sLAY)
A("s_mov_b32 s%d, 0" % sY)
if TOT: A("s_memrealtime s[100:101]")
for s, d in [(sOL, O_OFF[1] - O_OFF[0]), (sOS, O_OFF[1] - O_OFF[0]), (sLS, LSE_OFF[1] - LSE_OFF[0]), (sPS, P_L)]:
    A("s_add_u32 s%d, s%d, %d" % (s, s, d))
if DIAG: A("v_mov_b32 v28, v30")
A("s_branch Llnq")

L.append(".p2align 6"); LB("Lst_fin"); A("s_setpc_b64 %s" % sr(sRET, 2)); stubs.append("fin")
LB("Lfinal")
A("s_cmp_ge_u32 s2, 4")
A("s_cbranch_scc1 Lepoch")
C("workgroup b: reduce the 32 head partials of row b, add x2, mixer, store")
soff(sT1, [(2, 15), (sW, 13)], PB + P_L)
A("s_add_u32 s%d, s%d, 4096" % (sT2, sT1))
A("s_mul_i32 s%d, s2, %d" % (sT0, XS))
A("s_lshl_b32 s%d, s%d, 8" % (sT3, sW))
A("s_add_u32 s%d, s%d, s%d" % (sT0, sT0, sT3))
A("s_add_u32 s%d, s%d, %d" % (sT0, sT0, L_X2))
A("v_add_u32 v%d, s%d, v%d" % (vT + 4, sT0, vX1S))
A("s_add_u32 s%d, s%d, %d" % (sT3, sT3, L_XN))
A("v_add_u32 v%d, s%d, v%d" % (vT + 5, sT3, vX1S))
A("ds_read_b64 %s, v%d" % (vr(PM, 2), vT + 4))
A("ds_read_b64 %s, v%d offset:128" % (vr(PM + 2, 2), vT + 4))
A("s_mov_b32 s%d, 0x00ff00ff" % sT4)
A("s_mov_b32 s%d, 0" % sT5)
if XENT:
    A("s_cmp_lg_u32 s%d, 3" % sW)
    A("s_cbranch_scc1 Lfn3")
    A("s_mov_b32 s%d, %s" % (sT0, hx(TB)))
    for i in range(XENT * 4 // 1024):
        A("buffer_load_dwordx4 %s, v%d, %s, s%d offen offset:%d sc1" % (vr(W + 4 * i, 4), vL16, sr(sWS, 4), sT0, 1024 * i))
    A("v_add_u32 v%d, %d, v%d" % (vT + 6, L_TAB, vL16))
    A("s_waitcnt vmcnt(0)")
    for i in range(XENT * 4 // 1024):
        A("ds_write_b128 v%d, %s offset:%d" % (vT + 6, vr(W + 4 * i, 4), 1024 * i))
    LB("Lfn3")
A("s_waitcnt lgkmcnt(0)")
if GW: A("s_waitcnt vmcnt(0)")
for i in range(4):
    A("v_lshlrev_b32 v%d, 16, v%d" % (PM + 4 + 2 * i, PM + i))
    A("v_and_b32 v%d, 0xffff0000, v%d" % (PM + 5 + 2 * i, PM + i))
FS = [KF, VF]
def ifin(k):
    for i in range(8):
        A("buffer_load_dwordx4 %s, v%d, %s, s%d offen offset:%d sc1" % (vr(FS[k] + 4 * i, 4), vL16, sr(sWS, 4), sT1 if i < 4 else sT2, 1024 * (i & 3)))
def fs(k):
    o = []
    for i in range(4):
        o.append(mf(W + 32, SEL, FS[k] + 4 * i, None if i == 0 else W + 32))
        o.append(mf(W + 36, SEL, FS[k] + 16 + 4 * i, None if i == 0 else W + 36))
    return o
ppoll(ifin, lambda k: range(FS[k], FS[k] + 32), 8, vT, fs, pre=GPRE, gap=GGAP, tag=2)
STAMP(9)
NOP(7)
for i in range(8):
    A("v_add_f32_dpp v%d, v%d, v%d row_ror:8 row_mask:0xf bank_mask:0xf" % (W + 32 + i, W + 32 + i, W + 32 + i))
A("s_mov_b64 exec, %s" % sr(sT4, 2))
for i in range(4):
    A("v_pk_add_f32 %s, %s, %s" % (vr(W + 32 + 2 * i, 2), vr(W + 32 + 2 * i, 2), vr(PM + 4 + 2 * i, 2)))
for i in range(4):
    A("v_cvt_pk_bf16_f32 v%d, v%d, v%d" % (W + 32 + i, W + 32 + 2 * i, W + 33 + 2 * i))
A("ds_write_b64 v%d, %s" % (vT + 5, vr(W + 32, 2)))
A("ds_write_b64 v%d, %s offset:128" % (vT + 5, vr(W + 34, 2)))
A("s_mov_b64 exec, -1")
A("s_cmp_lg_u32 s%d, 0" % sW)
A("s_waitcnt lgkmcnt(0)")
A("s_barrier")
A("s_cbranch_scc1 Lfin_exit")
A("ds_read_b128 %s, v%d" % (vr(XR, 4), vXNW))
A("s_waitcnt lgkmcnt(0)")
STAMP(10)
A("s_branch Lmix")
L.append(".p2align 6"); LB("Lst_out"); A("s_setpc_b64 %s" % sr(sRET, 2)); stubs.append("out")
LB("Lout")
A("s_lshl_b32 s%d, s2, 10" % sT0)
A("buffer_store_dwordx4 %s, v%d, %s, s%d offen" % (vr(XR, 4), vL16, sr(sOUT, 4), sT0))
if DBL:
    A("s_cmp_lg_u32 s2, 0")
    A("s_cbranch_scc1 Lfin_exit")
if DBL:
    A("s_waitcnt vmcnt(0)")
    A("s_memrealtime s[10:11]")
    A("s_waitcnt lgkmcnt(0)")
    A("s_sub_u32 s12, s10, s98")
    if "pad" in OPT:
        A("s_mov_b32 s10, s98"); A("s_mov_b32 s12, %d" % (100 * int(OPT["pad"])))
    LB("Ldbl")
    A("s_memrealtime s[14:15]")
    A("s_waitcnt lgkmcnt(0)")
    A("s_sub_u32 s13, s14, s10")
    A("s_cmp_lt_u32 s13, s12")
    A("s_cbranch_scc1 Ldbl")
LB("Lfin_exit")
if TOT:
    A("s_waitcnt vmcnt(0)")
    A("s_memrealtime s[10:11]")
    A("s_waitcnt lgkmcnt(0)")
    A("v_mov_b32 v16, s98")
    A("v_mov_b32 v17, s10")
    A("v_mov_b32 v18, s100")
    A("v_mov_b32 v19, s97")
    soff(sT2, [(2, 6), (sW, 4)], STB)
    A("v_mov_b32 v20, 0")
    A("s_mov_b64 exec, 1")
    A("buffer_store_dwordx4 v[16:19], v20, %s, s%d offen" % (sr(sWS, 4), sT2))
if DIAG:
    A("s_waitcnt vmcnt(0)")
    STAMP(12)
    if DIAG == 2:
        A("s_or_b32 s%d, s2, s%d" % (sT0, sW))
        A("s_cmp_lg_u32 s%d, 0" % sT0)
        A("s_cbranch_scc1 Lend")
        A("v_readlane_b32 s%d, v28, 0" % sT2)
        for k, (r, i) in enumerate([(31, 10), (31, 12), (28, 1), (28, 2), (28, 6), (28, 5), (28, 7), (28, 8), (28, 9), (28, 10), (28, 11), (30, 3), (30, 5), (30, 8), (30, 9), (30, 12)]):
            A("v_readlane_b32 s%d, v%d, %d" % (sT3, r, i))
            A("s_sub_u32 s%d, s%d, s%d" % (sT3, sT3, sT2))
            A("s_nop 0")
            A("v_writelane_b32 v17, s%d, %d" % (sT3, k))
        A("v_lshlrev_b32 v16, 2, v%d" % vLANE)
        A("s_mov_b64 exec, 0xffff")
        A("global_store_dword v16, v17, s[100:101]")
        A("s_endpgm")
    soff(sT1, [(2, 10), (sW, 7)], STB)
    A("v_lshlrev_b32 v16, 2, v%d" % vLANE)
    A("s_mov_b64 exec, 0xffff")
    A("buffer_store_dword v28, v16, %s, s%d offen" % (sr(sWS, 4), sT1))
    A("buffer_store_dword v30, v16, %s, s%d offen offset:64" % (sr(sWS, 4), sT1))
    A("s_add_u32 s%d, s%d, 0x40000" % (sT1, sT1))
    A("buffer_store_dword v31, v16, %s, s%d offen" % (sr(sWS, 4), sT1))
LB("Lend")
A("s_endpgm")
LB("Lepoch")
C("every workgroup has used the old launch tag long ago: workgroup 4 advances it")
A("s_lshl_b32 s%d, s%d, 8" % (sT0, sW))
A("s_add_u32 s%d, s%d, s2" % (sT0, sT0))
A("s_cmp_lg_u32 s%d, 4" % sT0)
A("s_cbranch_scc1 Lfin_exit")
A("v_mov_b32 v16, s%d" % sTG1)
A("v_mov_b32 v17, %s" % hx(EPO))
A("s_mov_b64 exec, 1")
A("buffer_store_dword v16, v17, %s, 0 offen sc1" % sr(sWS, 4))
A("s_mov_b64 exec, -1")
A("s_branch Lfin_exit")

L.append(".p2align 6"); LB("Lst_tab"); A("s_setpc_b64 %s" % sr(sRET, 2)); stubs.append("tab")
LB("Ltab")
C("waves 2,3: gather the main part of the g(h) table into LDS ; wave 1: the lowest octaves, best effort")
NTL = NOCT * 1024 // 2 // 1024
A("s_cmp_eq_u32 s%d, 1" % sW)
A("s_cbranch_scc1 Lext")
A("s_sub_u32 s%d, s%d, 2" % (sT1, sW))
A("s_mul_i32 s%d, s%d, %d" % (sT1, sT1, NTL * 1024))
A("s_add_u32 s%d, s%d, %d" % (sT1, sT1, XENT * 4))
A("v_add_u32 v%d, s%d, v%d" % (vT + 4, sT1, vL16))
A("v_add_u32 v%d, %d, v%d" % (vT + 4, L_TAB, vT + 4))
A("s_add_u32 s%d, s%d, %s" % (sT1, sT1, hx(TB)))
A("s_add_u32 s%d, s%d, 4096" % (sT2, sT1))
def it():
    for i in range(NTL):
        A("buffer_load_dwordx4 %s, v%d, %s, s%d offen offset:%d sc1" % (vr(W + 4 * i, 4), vL16, sr(sWS, 4), sT1 if i < 4 else sT2, 1024 * (i & 3)))
poll(it, range(W, W + 4 * NTL), vT, back="s_sleep %d" % int(OPT.get("tsl", 16)))
for i in range(NTL):
    A("ds_write_b128 v%d, %s offset:%d" % (vT + 4, vr(W + 4 * i, 4), 1024 * i))
A("s_waitcnt lgkmcnt(0)")
lds_arrive(20, vT + 4)
STAMP(9)
A("s_branch Ltabdone")
def ext_load(d):
    for i in range(XENT * 4 // 1024):
        A("buffer_load_dwordx4 %s, v%d, %s, s%d offen offset:%d sc1" % (vr(d + 4 * i, 4), vL16, sr(sWS, 4), sT4, 1024 * i))
def ext_write(d):
    for i in range(XENT * 4 // 1024):
        A("ds_write_b128 v%d, %s offset:%d" % (vT + 4, vr(d + 4 * i, 4), 1024 * i))
LB("Lext")
if XENT:
    A("s_mov_b32 s%d, %s" % (sT4, hx(TB)))
    A("v_add_u32 v%d, %d, v%d" % (vT + 4, L_TAB, vL16))
    for i in range(4): A("v_mov_b32 v%d, -1" % (W + i))
    for i in range(XENT * 4 // 1024):
        A("ds_write_b128 v%d, %s offset:%d" % (vT + 4, vr(W, 4), 1024 * i))
    A("s_waitcnt lgkmcnt(0)")
lds_arrive(20, vT + 5)
if XENT:
    C("one look at the lowest octaves, skipped when x1 is already there")
    soff(sT3, [(sW, 10), (sJ, 17)], X1_OFF)
    A("s_waitcnt vmcnt(0)")
    delay(XDL)
    A("buffer_load_dwordx4 %s, v%d, %s, s%d offen sc1" % (vr(XR, 4), vL16, sr(sWS, 4), sT3))
    if "l" in OPT.get("xs", ""): A("s_branch Ltabdone")
    ext_load(W + 32)
    A("s_waitcnt vmcnt(4)")
    for x in maxtree(range(XR, XR + 4), vT): A(x)
    A("v_cmp_eq_u32 vcc, -1, v%d" % vT)
    A("s_cbranch_vccz Lexx")
    A("s_waitcnt vmcnt(0)")
    ext_write(W + 32)
    A("s_branch Ltabdone")
    LB("Lexx")
    wqf_reads()
    A("s_branch Ltw")
else:
    A("s_branch Ltabdone")
LB("Ltw")
lds_spin(20, 3, vT + 2)
A("s_branch Ltwd")

for b in ool: L += b
ool = []
LB("Lslow")
C("rare: some h lies outside the table -> evaluate g(h) directly for those lanes")
RW1 = [W + 32 + i for i in range(14)]
RB1 = [PM + i for i in range(14)]
RW2 = [16 + i for i in range(10)] + [W + 46, W + 47, PM + 14, PM + 15]
A("v_lshlrev_b32 v26, 3, v%d" % vLANE)
A("s_load_dword s%d, %s, 0" % (sB2, sr(sB2P, 2)))
for (d4, d2, s) in [([W + 32, W + 36, W + 40], W + 44, sW1), ([PM, PM + 4, PM + 8], PM + 12, sB1)]:
    for k in range(3):
        A("buffer_load_dwordx4 %s, v%d, %s, 0 offen offset:%d" % (vr(d4[k], 4), vL16, sr(s, 4), 1024 * k))
    A("buffer_load_dwordx2 %s, v26, %s, 0 offen offset:3072" % (vr(d2, 2), sr(s, 4)))
A("buffer_load_dwordx4 v[16:19], v%d, %s, 0 offen" % (vL16, sr(sW2, 4)))
A("buffer_load_dwordx4 v[20:23], v%d, %s, 0 offen offset:1024" % (vL16, sr(sW2, 4)))
A("buffer_load_dwordx2 v[24:25], v%d, %s, 0 offen offset:2048" % (vL16, sr(sW2, 4)))
A("buffer_load_dwordx2 %s, v%d, %s, 0 offen offset:2056" % (vr(W + 46, 2), vL16, sr(sW2, 4)))
A("buffer_load_dwordx2 %s, v26, %s, 0 offen offset:3072" % (vr(PM + 14, 2), sr(sW2, 4)))
A("s_waitcnt vmcnt(0) lgkmcnt(0)")
A("s_lshl_b32 s%d, s%d, 16" % (sB2, sB2))
for e in range(8):
    A("v_cmp_le_u32 vcc, %d, v%d" % (NENT * 4, AD + e))
    A("v_cmp_eq_u32 %s, -1, v%d" % (sr(sH2, 2), Y + e))
    A("s_or_b64 %s, %s, vcc" % (sr(sH2, 2), sr(sH2, 2)))
    LB("Lse%d" % e)
    A("s_cmp_eq_u64 %s, 0" % sr(sH2, 2))
    A("s_cbranch_scc1 Lsf%d" % e)
    A("s_ff1_i32_b64 s%d, %s" % (sT0, sr(sH2, 2)))
    A("s_bitset0_b64 %s, s%d" % (sr(sH2, 2), sT0))
    A("s_mov_b32 m0, s%d" % sT0)
    A("v_readlane_b32 s%d, v%d, s%d" % (sH, HB + (e >> 1), sT0))
    if e & 1: A("s_and_b32 s%d, s%d, 0xffff0000" % (sH, sH))
    else: A("s_lshl_b32 s%d, s%d, 16" % (sH, sH))
    A("s_call_b64 %s, Lgev" % sr(sRET, 2))
    A("v_writelane_b32 v%d, s%d, m0" % (Y + e, sY))
    A("s_branch Lse%d" % e)
    LB("Lsf%d" % e)
for i in range(16): A("v_mov_b32 v%d, 0" % (PM + i))
A("s_mov_b64 vcc, 0")
A("s_mov_b64 %s, 0" % sr(sH, 2))
A("s_branch Lslowdone")
LB("Lgev")
a, u, t1, z = RES, RES + 1, RES + 2, RT
A("v_mov_b32 v%d, 0" % a)
A("v_mov_b32 v%d, %s" % (RT + 1, hx(f2u(K0))))
A("v_mov_b32 v%d, %s" % (RT + 2, hx(f2u(K1))))
for p in range(14):
    for hf in range(2):
        def un(d, s):
            if hf == 0: A("v_lshlrev_b32 v%d, 16, v%d" % (d, s))
            else: A("v_and_b32 v%d, 0xffff0000, v%d" % (d, s))
        un(u, RW1[p]); un(t1, RB1[p]); un(z, RW2[p])
        A("v_fma_f32 v%d, v%d, s%d, v%d" % (u, u, sH, t1))
        A("v_mul_f32 v%d, v%d, v%d" % (t1, u, u))
        A("v_fma_f32 v%d, v%d, v%d, v%d" % (t1, t1, RT + 2, RT + 1))
        A("v_mul_f32 v%d, v%d, v%d" % (t1, t1, u))
        A("v_exp_f32 v%d, v%d" % (t1, t1))
        A("v_mul_f32 v%d, v%d, v%d" % (z, z, u))
        A("v_add_f32 v%d, 1.0, v%d" % (t1, t1))
        A("v_rcp_f32 v%d, v%d" % (t1, t1))
        A("s_nop 0")
        A("v_fmac_f32 v%d, v%d, v%d" % (a, z, t1))
A("v_mov_b32 v%d, v%d" % (u, a))
A("s_nop 1")
wave_sum2(a, u, sY, sT1)
A("s_nop 1")
A("v_mov_b32 v%d, s%d" % (a, sY))
A("v_cvt_pk_bf16_f32 v%d, v%d, v%d" % (a, a, a))
A("v_and_b32 v%d, 0xffff0000, v%d" % (a, a))
A("v_add_f32 v%d, s%d, v%d" % (a, sB2, a))
A("v_cvt_pk_bf16_f32 v%d, v%d, v%d" % (a, a, a))
A("v_and_b32 v%d, 0xffff0000, v%d" % (a, a))
A("s_nop 0")
A("v_readfirstlane_b32 s%d, v%d" % (sY, a))
A("s_nop 3")
A("s_setpc_b64 %s" % sr(sRET, 2))

for b in ool: L += b
A("s_endpgm")
L.append(".p2align 8")
L.append(".fill %d, 4, 0xBF800000" % (64 if DIAG else 512))
L.append('''.section .rodata,"a"
.p2align 6
.amdhsa_kernel %s_kernel
  .amdhsa_next_free_vgpr 256
  .amdhsa_next_free_sgpr 102
  .amdhsa_accum_offset 256
  .amdhsa_group_segment_fixed_size 0
  .amdhsa_kernarg_size 104
  .amdhsa_user_sgpr_count 2
  .amdhsa_user_sgpr_kernarg_segment_ptr 1
  .amdhsa_system_sgpr_workgroup_id_x 1
.end_amdhsa_kernel''' % NAME)
open(OUTF, "w").write("\n".join(x for x in L if x is not None) + "\n")
print("wrote", OUTF, "lines", len(L), "LDS", LDS_SZ)
```

```python
import sys, struct, math

NAME = "interleave_layers__sliding_block_cached__mixer_token_mlp__decode"
OUTF = sys.argv[1] if len(sys.argv) > 1 else "cdna_kernels/%s.s" % NAME
DIAG = int(sys.argv[2]) if len(sys.argv) > 2 else 0
DBL = 0
if DIAG == 3: DIAG = 0; DBL = 1
TOT = 0
if DIAG == 4: DIAG = 0; TOT = 1
OPT = dict(a.split("=") for a in sys.argv[3:])
DEPTH = int(OPT.get("depth", 8))
D0 = int(OPT.get("d0", 2))
D1 = int(OPT.get("d1", 4))
DC = int(OPT.get("dc", 3))
TAILI = int(OPT.get("taili", 11))
TAILD = int(OPT.get("taild", 8))
QV = int(OPT.get("qv", 4))
PRET = int(OPT.get("pret", 1))
GW = int(OPT.get("gw", 1))
GPRE = int(OPT.get("gpre", 0))
GGAP = int(OPT.get("ggap", -1))
WARM = int(OPT.get("warm", 1))
QPRE = int(OPT.get("qpre", -1)); QGAP = int(OPT.get("qgap", -1))
OPRE = int(OPT.get("opre", -1)); OGAP = int(OPT.get("ogap", -1))
XPRE = int(OPT.get("xpre", -1)); XGAP = int(OPT.get("xgap", -1))
FINE = OPT.get("fine", "")
QS = int(OPT.get("qs", 0))
ADP = int(OPT.get("adp", 0))
ROT = int(OPT.get("rot", 1)); VROT = int(OPT.get("vrot", 0))
WROT = int(OPT.get("wrot", 1))
WOP = int(OPT.get("wop", 0))
ECO = int(OPT.get("eco", 0))
XDL = int(OPT.get("xdl", 256))
QBD = int(OPT.get("qbd", 0))
QT = int(OPT.get("qt", 0))
DRY = int(OPT.get("dry", 0))
HP = int(OPT.get("hp", 0))
NOCT = int(OPT.get("noct", 16))
QPOS = int(OPT.get("qpos", 1))
QPOS2 = int(OPT.get("qpos2", 7))

def f2u(x): return struct.unpack("<I", struct.pack("<f", x))[0]
def hx(x): return "0x%08x" % (x & 0xffffffff)

L = []
def A(s): L.append("    " + s)
def LB(s): L.append(s + ":")
def C(s): L.append("    ; " + s)
def vr(a, n): return "v[%d:%d]" % (a, a + n - 1)
def sr(a, n): return "s[%d:%d]" % (a, a + n - 1)
def NOP(n):
    while n > 0:
        k = min(n, 16); A("s_nop %d" % (k - 1)); n -= k

XOCT = int(OPT.get('xoct', 4))
ELO = int(OPT.get('elo', 130 - NOCT - XOCT))
LO2 = (ELO << 7) * 2
NENT = (NOCT + XOCT) * 256
XENT = XOCT * 256
assert XENT in (0, 1024)
EPW = NOCT * 256 // 256 // 4 // 2
GRS = 0x20000
O_OFF = [0x0000, 0xC400]; LSE_OFF = [0x8000, 0x14400]; Q1_OFF = 0x8400; X1_OFF = 0x14600
CLRA_PER = 1040
CLRB_OFF = 0x8400; CLRB_PER = 1680
Q0_OFF = 0x18000
EPO = 0x17f00
PB = 0x100000; P_L = 0x20000
TB = 0x140000; FB = 0x148000
QB_DELTA = 0x200000
STB = 0x300000
WS_SZ = 0x400000
L_WQ = 12288; L_K = L_WQ + 16384; L_V = L_K + 32768
L_WO = L_K + 16384
L_TAB = L_V
L_XN = L_V + 32768; XS = 1056
L_X2 = L_XN + 4 * XS
L_FLG = L_X2 + 4 * XS
L_RB = L_K; RBS = 2048 + 64; L_ML = L_K + 4 * RBS
L_QF = L_X2
LDS_SZ = int(OPT.get("lds", L_FLG + 64))
SPIN = 0x40000
K0 = -2.0 * math.sqrt(2.0 / math.pi) * math.log2(math.e)
K1 = K0 * 0.044715
EPS = hx(f2u(1e-5))

sTG1, sTG2 = 0, 1
sW, sJ, sA, sC, sGR, sLAY, sFAST = 3, 4, 5, 6, 7, 8, 9
sT0, sT1, sT2, sT3, sT4, sT5 = 10, 11, 12, 13, 14, 15
sCNT = 16
sQL, sQS, sOL, sOS, sLL, sLS, sPS = 17, 18, 19, 20, 21, 22, 23
sSC, sIT = 24, 25
sSUM, sSQ = 26, 27
sH, sH2, sRET, sMSK = 28, 30, 32, 34
sB2, sY, sXCC, sE = 36, 37, 38, 39
sB2P = 40
sK, sV, sWQ, sWO, sWS, sX, sOUT, sW1, sB1, sW2 = 44, 48, 52, 56, 60, 64, 68, 72, 76, 80
sKO, sKL, sVO, sVL = 84, 85, 86, 87
sPM = 88
sHC, sHT = 84, 85

def STAMP(i):
    if DIAG:
        A("s_memrealtime s[42:43]"); A("s_waitcnt lgkmcnt(0)")
        A("v_writelane_b32 v30, s42, %d" % i)

def CST(i):
    if DIAG == 1 and FINE:
        A("s_memtime s[42:43]"); A("s_waitcnt lgkmcnt(0)")
        A("v_writelane_b32 v31, s42, %d" % i)

vLANE = 1
vL16, vQST, vOST, vOLD, vPST, vX1S, vXNW, vXNR, vRBW, vRBR, vMLW, vMLR, vLSE, vZ = range(2, 16)
vT = 16
vWT, vFL = 28, 29
vLS2 = 27
KF, VF, WQF, WOF, SEL, ONES = 32, 64, 96, 112, 176, 180
W = 184
PM = 232
XR = 248
RES = 252

def srd(s, nbytes):
    A("s_mov_b32 s%d, %s" % (s + 2, hx(nbytes))); A("s_mov_b32 s%d, 0x00020000" % (s + 3))

def soff(dst, terms, const):
    first = True
    for (src, sh) in terms:
        if first: A("s_lshl_b32 s%d, s%d, %d" % (dst, src, sh)); first = False
        else:
            A("s_lshl_b32 s%d, s%d, %d" % (sT0, src, sh)); A("s_add_u32 s%d, s%d, s%d" % (dst, dst, sT0))
    if const: A("s_add_u32 s%d, s%d, %s" % (dst, dst, hx(const)))

def wave_sum2(a, b, sa, sb):
    for ctl in ["row_ror:8", "row_ror:4", "row_ror:2", "row_ror:1"]:
        A("v_add_f32_dpp v%d, v%d, v%d %s row_mask:0xf bank_mask:0xf" % (a, a, a, ctl))
        A("v_add_f32_dpp v%d, v%d, v%d %s row_mask:0xf bank_mask:0xf" % (b, b, b, ctl))
        A("s_nop 0")
    for ctl in ["row_bcast:15 row_mask:0xa", "row_bcast:31 row_mask:0xc"]:
        A("v_add_f32_dpp v%d, v%d, v%d %s bank_mask:0xf" % (a, a, a, ctl))
        A("v_add_f32_dpp v%d, v%d, v%d %s bank_mask:0xf" % (b, b, b, ctl))
        A("s_nop 0")
    A("v_readlane_b32 s%d, v%d, 63" % (sa, a))
    A("v_readlane_b32 s%d, v%d, 63" % (sb, b))

def row_stats(x, t, unp):
    A("v_dot2_f32_bf16 v%d, v%d, v%d, 0" % (t, x, ONES))
    A("v_dot2_f32_bf16 v%d, v%d, v%d, 0" % (t + 1, x, x))
    for i in range(1, 4):
        A("v_dot2_f32_bf16 v%d, v%d, v%d, v%d" % (t, x + i, ONES, t))
        A("v_dot2_f32_bf16 v%d, v%d, v%d, v%d" % (t + 1, x + i, x + i, t + 1))
    un = []
    for i in range(4):
        un.append("v_lshlrev_b32 v%d, 16, v%d" % (unp + 2 * i, x + i))
        un.append("v_and_b32 v%d, 0xffff0000, v%d" % (unp + 2 * i + 1, x + i))
    for k in range(3): A(un.pop(0))
    a, b = t, t + 1
    for ctl in ["row_ror:8 row_mask:0xf", "row_ror:4 row_mask:0xf", "row_ror:2 row_mask:0xf", "row_ror:1 row_mask:0xf", "row_bcast:15 row_mask:0xa", "row_bcast:31 row_mask:0xc"]:
        A("v_add_f32_dpp v%d, v%d, v%d %s bank_mask:0xf" % (a, a, a, ctl))
        A("v_add_f32_dpp v%d, v%d, v%d %s bank_mask:0xf" % (b, b, b, ctl))
        A(un.pop(0) if un else "s_nop 0")
    A("v_readlane_b32 s%d, v%d, 63" % (sSUM, a))
    A("v_readlane_b32 s%d, v%d, 63" % (sSQ, b))
    A("s_nop 0")
    A("v_mul_f32 v%d, s%d, v%d" % (t, sSUM, vZ))
    A("v_mul_f32 v%d, s%d, v%d" % (t + 1, sSQ, vZ))
    A("v_fma_f32 v%d, -v%d, v%d, v%d" % (t + 1, t, t, t + 1))
    A("v_max_f32 v%d, 0, v%d" % (t + 1, t + 1))

ool = []
uid = [0]
def maxtree(regs, tmp):
    r = list(regs); out = []
    out.append("v_max3_u32 v%d, v%d, v%d, v%d" % (tmp, r[0], r[1], r[2])); r = r[3:]
    if len(r) >= 5:
        out.append("v_max3_u32 v%d, v%d, v%d, v%d" % (tmp + 1, r[0], r[1], r[2])); r = r[3:]
        d = 0
        while len(r) >= 2:
            out.append("v_max3_u32 v%d, v%d, v%d, v%d" % (tmp + d, tmp + d, r[0], r[1])); r = r[2:]; d ^= 1
        if r: out.append("v_max3_u32 v%d, v%d, v%d, v%d" % (tmp, tmp, tmp + 1, r[0]))
        else: out.append("v_max_u32 v%d, v%d, v%d" % (tmp, tmp, tmp + 1))
    else:
        while len(r) >= 2:
            out.append("v_max3_u32 v%d, v%d, v%d, v%d" % (tmp, tmp, r[0], r[1])); r = r[2:]
        if r: out.append("v_max_u32 v%d, v%d, v%d" % (tmp, tmp, r[0]))
    return out

def poll(issue, regs, tmp, pre_wait=None, spec=None, back="s_nop 7", tag=None, stub=None):
    uid[0] += 1; u = uid[0]
    A("s_mov_b32 s%d, %s" % (sCNT, hx(SPIN)))
    LB("Lp%d" % u)
    issue()
    if pre_wait: pre_wait()
    A("s_waitcnt vmcnt(0)")
    mt = maxtree(regs, tmp) + ["v_cmp_eq_u32 vcc, -1, v%d" % tmp]
    spec = list(spec or [])
    ns = len(spec)
    per = -(-len(mt) // ns) if ns else 0
    for s in spec:
        A(s)
        for k in range(per):
            if mt: A(mt.pop(0))
    for m in mt: A(m)
    A("s_cbranch_vccz Ld%d" % u)
    A("s_sub_u32 s%d, s%d, 1" % (sCNT, sCNT))
    if back != "s_nop 7": A(back)
    A("s_cbranch_scc0 Lp%d" % u)
    if stub: touch_stub(stub)
    LB("Ld%d" % u)
    if DIAG and tag is not None:
        A("s_lshl_b32 m0, s%d, 2" % sLAY); A("s_add_u32 m0, m0, %d" % tag); A("s_nop 0")
        A("v_writelane_b32 v31, s%d, m0" % sCNT)

stubs = []
def touch_stub(name, branch_over=None):
    A("s_branch Lsk_%s" % name)
    L.append(".p2align 6")
    LB("Lst_%s" % name)
    A("s_setpc_b64 %s" % sr(sRET, 2))
    LB("Lsk_%s" % name)
    stubs.append(name)

def delay(cyc):
    if cyc == -1:
        A("s_waitcnt vmcnt(0)"); return
    while cyc >= 64:
        k = min(cyc // 64, 15); A("s_sleep %d" % k); cyc -= 64 * k
    if cyc >= 8: A("s_nop %d" % min(15, cyc // 4 - 1))

def ppoll(issue, regs, n, tmp, spec, pre=0, gap=128, mid=None, tag=None, fix=None, stub=None, lanes=None):
    uid[0] += 1; u = uid[0]
    def look(k):
        out = ["s_waitcnt vmcnt(%d)" % (n if k == 0 else 0)]
        mt = maxtree(regs(k), tmp) + ["v_cmp_eq_u32 vcc, -1, v%d" % tmp]
        sp = list(spec(k)); per = -(-len(mt) // len(sp)) if sp else 0
        for x in sp:
            out.append(x)
            for _ in range(per):
                if mt: out.append(mt.pop(0))
        return out + mt + (["s_and_b64 vcc, vcc, %s" % sr(lanes, 2)] if lanes else [])
    A("s_mov_b32 s%d, %s" % (sCNT, hx(SPIN)))
    delay(pre)
    fine = FINE and tag == int(FINE)
    if fine: CST(8)
    LB("Lp%d" % u)
    issue(0)
    if fine and 0: CST(9)
    if mid: mid()
    if gap >= 0: delay(gap)
    if gap >= 0: issue(1)
    lk = look(0)
    if gap < 0: lk[0] = "s_waitcnt vmcnt(0)"
    for k, x in enumerate(lk):
        A(x)
        if fine and k == 0: CST(13)
    if fine: CST(14)
    A("s_cbranch_vccz Ld%d" % u)
    if gap < 0: issue(1)
    A("s_sub_u32 s%d, s%d, 1" % (sCNT, sCNT))
    for x in look(1): A(x)
    for x in (fix or []): A(x)
    A("s_cbranch_vccz Ld%d" % u)
    A("s_sub_u32 s%d, s%d, 1" % (sCNT, sCNT))
    A("s_cmp_gt_i32 s%d, 0" % sCNT)
    A("s_cbranch_scc1 Lp%d" % u)
    if stub: touch_stub(stub)
    LB("Ld%d" % u)
    if fine: CST(15)
    if DIAG and tag is not None:
        A("s_lshl_b32 m0, s%d, 2" % sLAY); A("s_add_u32 m0, m0, %d" % tag); A("s_nop 0")
        A("v_writelane_b32 v31, s%d, m0" % sCNT)

def lds_spin(off, target, tmp, mask=None, sleep=0):
    uid[0] += 1; u = uid[0]
    A("s_mov_b32 s%d, %s" % (sT2, hx(SPIN * 4)))
    LB("Ls%d" % u)
    A("ds_read_b32 v%d, v%d offset:%d" % (tmp, vFL, off))
    A("s_waitcnt lgkmcnt(0)")
    A("v_readfirstlane_b32 s%d, v%d" % (sT1, tmp))
    if mask: A("s_and_b32 s%d, s%d, %d" % (sT0, sT1, mask))
    A("s_cmp_ge_u32 s%d, %d" % (sT0 if mask else sT1, target))
    A("s_cbranch_scc1 Lt%d" % u)
    if sleep: A("s_sleep %d" % sleep)
    A("s_sub_u32 s%d, s%d, 1" % (sT2, sT2))
    A("s_cbranch_scc0 Ls%d" % u)
    LB("Lt%d" % u)

def lds_arrive(off, tmp, val=1):
    if val is not None: A("v_mov_b32 v%d, %d" % (tmp, val))
    A("s_mov_b64 exec, 1")
    A("ds_add_u32 v%d, v%d offset:%d" % (vFL, tmp, off))
    A("s_mov_b64 exec, -1")

def store_local(op, data, vaddr, so):
    uid[0] += 1; u = uid[0]
    A("s_cbranch_scc1 Lw%d" % u)
    A("%s %s, v%d, %s, s%d offen" % (op, data, vaddr, sr(sWS, 4), so))
    LB("Lx%d" % u)
    ool.append(["Lw%d:" % u, "    %s %s, v%d, %s, s%d offen sc1" % (op, data, vaddr, sr(sWS, 4), so), "    s_branch Lx%d" % u])
def fastcmp(): A("s_cmp_eq_u32 s%d, 0" % sFAST)

def mf(d, a, b, c):
    return "v_mfma_f32_16x16x32_bf16 %s, %s, %s, %s" % (vr(d, 4), vr(a, 4), vr(b, 4), "0" if c is None else vr(c, 4))
def mfma(d, a, b, c): A(mf(d, a, b, c))

def tags():
    A("s_add_u32 s%d, s%d, 1" % (sTG1, sE))
    A("s_mul_i32 s%d, s%d, 0x9E3779B1" % (sTG2, sTG1))
    A("s_and_b32 s%d, s%d, -8" % (sTG2, sTG2))

def common_addr():
    A("v_and_b32 v18, 3, v%d" % vLANE)
    A("v_lshlrev_b32 v%d, 12, v17" % vQST)
    A("v_lshrrev_b32 v24, 1, v16")
    A("v_lshl_add_u32 v%d, v24, 8, v%d" % (vQST, vQST))
    A("v_and_b32 v24, 1, v16")
    A("v_lshl_add_u32 v%d, v24, 3, v%d" % (vQST, vQST))
    A("v_lshlrev_b32 v%d, 4, v24" % vLSE)
    A("s_mul_i32 s%d, s%d, %d" % (sT0, sW, XS))
    A("s_add_u32 s%d, s%d, %d" % (sT0, sT0, L_XN))
    A("v_add_u32 v%d, s%d, v%d" % (vXNW, sT0, vL16))
    A("s_lshl_b32 s%d, s%d, 8" % (sT0, sA))
    A("s_add_u32 s%d, s%d, %d" % (sT0, sT0, L_XN))
    A("v_mul_u32_u24 v25, %d, v18" % XS)
    A("v_lshl_add_u32 v25, v16, 4, v25")
    A("v_add_u32 v%d, s%d, v25" % (vXNR, sT0))
    A("v_mov_b32 v%d, %s" % (vZ, hx(f2u(1.0 / 512))))
    for r in range(4): A("v_mov_b32 v%d, 0x3f803f80" % (ONES + r))
    A("s_and_b32 s%d, s%d, 1" % (sT1, sC))
    A("s_lshr_b32 s%d, s%d, 1" % (sT2, sC))
    soff(sQS, [(sT1, 11), (sW, 9), (sA, 6), (sT2, 4)], 0)
    A("v_bfe_u32 v24, v%d, 2, 2" % vLANE)
    A("v_lshl_add_u32 v24, v16, 3, v24")
    A("v_lshlrev_b32 v24, 7, v24")
    A("v_bfe_u32 v25, v%d, 3, 2" % vLANE)
    A("v_lshlrev_b32 v25, 1, v25")
    A("v_bfe_u32 v26, v%d, 1, 1" % vLANE)
    A("v_xor_b32 v25, v25, v26")
    A("v_lshl_add_u32 v24, v25, 4, v24")
    A("v_and_b32 v26, 1, v%d" % vLANE)
    A("v_lshl_add_u32 v%d, v26, 3, v24" % vWT)
    A("s_mov_b32 s%d, 0x000f000f" % sMSK)
    A("s_mov_b32 s%d, 0x000f000f" % (sMSK + 1))
    A("s_mov_b32 s%d, 0" % sLAY)

def wtile_voff(shift, d):
    A("v_lshrrev_b32 v24, 3, v%d" % vLANE)
    A("v_and_b32 v25, 7, v%d" % vLANE)
    A("v_and_b32 v26, 1, v16")
    A("v_lshlrev_b32 v26, 1, v26")
    A("v_xor_b32 v25, v25, v26")
    A("v_lshlrev_b32 v25, 4, v25")
    A("v_lshl_add_u32 v%d, v24, %d, v25" % (d, shift))
    A("v_xor_b32 v%d, 64, v%d" % (d + 1, d))

def wqf_reads():
    A("s_lshl_b32 s%d, s%d, 5" % (sT1, sW))
    A("v_xor_b32 v26, s%d, v%d" % (sT1, vWT))
    for t in range(4):
        for hf in range(2):
            A("ds_read_b64_tr_b16 %s, v26 offset:%d" % (vr(WQF + 4 * t + 2 * hf, 2), L_WQ + 4096 * t + 512 * hf))

def dma(vaddr, srdn, so, lds_s, step_so, flags="nt"):
    A("s_mov_b32 m0, s%d" % lds_s)
    A("s_add_u32 s%d, s%d, 1024" % (lds_s, lds_s))
    A("buffer_load_dwordx4 v%d, %s, s%d offen %s lds" % (vaddr, sr(srdn, 4), so, flags))
    A("s_add_u32 s%d, s%d, %d" % (so, so, step_so))

hdr = open("cdna_kernels/%s.s.ref" % NAME).read().split("; Override launch")[0]
L.append(hdr.rstrip("\n"))
L.append("; @launch grid=(256,1,1) block=(512,1,1) lds=%d" % LDS_SZ)
L.append('.amdgcn_target "amdgcn-amd-amdhsa--gfx950"')
L.append(".text\n" + (".p2align 12\n" if int(OPT.get("al", 0)) else "") + ".globl %s_kernel\n.p2align 8\n.type %s_kernel,@function\n%s_kernel:" % (NAME, NAME, NAME))
if DIAG: A("s_memrealtime s[42:43]")
if DBL or TOT: A("s_memrealtime s[98:99]")
sM = 96
A("s_lshr_b32 s%d, s2, 8" % sT0)
A("s_cbranch_scc1 Lend")
A("s_load_dwordx2 %s, s[0:1], 24" % sr(sWQ, 2))
A("s_load_dwordx4 %s, s[0:1], 0" % sr(sT2, 4))
A("v_readfirstlane_b32 s%d, v0" % sW)
C("every wave pulls one line of this kernel's code into L2 (plain read): 32 workgroups x 4 lines")
A("s_getpc_b64 s[10:11]")
LB("Lpc0")
A("s_lshr_b32 s%d, s2, 3" % sM)
A("s_lshl_b32 s%d, s%d, 9" % (sCNT, sM))
A("s_cmp_lg_u32 s%d, 0" % sW)
A("s_cbranch_scc1 Lnopf")
A("v_and_b32 v19, 3, v0")
A("v_lshl_add_u32 v19, v19, 7, s%d" % sCNT)
A("global_load_dword v%d, v19, s[10:11]" % (W + 8))
LB("Lnopf")
A("s_and_b32 s%d, s2, 7" % sJ)
A("s_lshr_b32 s%d, s2, 6" % sA)
A("s_and_b32 s%d, s%d, 7" % (sC, sM))
A("s_lshl_b32 s%d, 1, 17" % (sWQ + 3))
A("s_bitcmp1_b32 s%d, 8" % sW)
A("s_cbranch_scc0 Lmain0")
vKA, vVA = W + 40, W + 44
sRO, sRM = sVO, 97 if not TOT else 94
if TOT: sRM = sOL
def kv_issue(i):
    A("s_add_u32 m0, s%d, s%d" % (sKL if i < 8 else sVL, sRO))
    A("s_add_u32 s%d, s%d, s%d" % (sCNT, sKO, sRO))
    if i < 8: A("buffer_load_dwordx4 v%d, %s, s%d offen nt lds" % (vKA + (i & 3), sr(sK, 4), sCNT))
    else: A("buffer_load_dwordx4 v%d, %s, s%d offen nt lds" % (vVA + (i & 1), sr(sV, 4), sCNT))
    A("s_addk_i32 s%d, %d" % (sRO, 1024 + (VROT * 1024 if i == 7 else 0)))
    A("s_and_b32 s%d, s%d, 0x1fff" % (sRO, sRO))
def lane_init():
    A("v_and_b32 v%d, 63, v0" % vLANE)
    A("v_mov_b32 v%d, %d" % (vFL, L_FLG))
    A("v_lshlrev_b32 v%d, 4, v%d" % (vL16, vLANE))
    A("v_lshrrev_b32 v16, 4, v%d" % vLANE)
    A("v_and_b32 v17, 15, v%d" % vLANE)
    A("v_mov_b32 v20, 0")
    if DIAG: A("v_mov_b32 v30, 0")
def main_early():
    LB("Lmain0")
    for s, off in [(sW1, 48), (sB1, 56), (sW2, 64)]:
        A("s_load_dwordx2 %s, s[0:1], %d" % (sr(s, 2), off))
    lane_init()
    A("v_mov_b32 v21, 0")
    for k in range(4): A("ds_write_b64 v%d, v[20:21] offset:%d" % (vFL, 8 * k))
    A("s_lshl_b32 s%d, 1, 25" % (sK + 2)); A("s_mov_b32 s%d, s%d" % (sK + 3, sWQ + 3))
    A("v_xor_b32 v18, v17, v16")
    A("v_lshlrev_b32 v18, 4, v18")
    A("v_lshl_add_u32 v%d, v16, 8, v18" % vKA)
    A("s_lshl_b32 s%d, s%d, %d" % (sRO, sC, 10 if ROT else 31))
    if not ROT: A("s_mov_b32 s%d, 0" % sRO)
    A("s_bfe_u32 s%d, s%d, 0x2000a" % (sT1, sRO))
    A("s_lshl_b32 s%d, s%d, 6" % (sT1, sT1))
    for k in range(1, 4):
        A("s_add_u32 s%d, s%d, %d" % (sCNT, sT1, 64 * k))
        A("s_and_b32 s%d, s%d, 0xc0" % (sCNT, sCNT))
        A("v_xor_b32 v%d, s%d, v%d" % (vKA + k, sCNT, vKA))
    A("v_xor_b32 v%d, s%d, v%d" % (vKA, sT1, vKA))
    soff(sKO, [(sA, 23), (sJ, 20), (sC, 15), (sW, 7)], 3072 * 256)
    A("s_add_u32 s%d, s%d, %d" % (sKL, sT0, L_K))
    A("s_waitcnt lgkmcnt(0)")
    A("s_mov_b64 %s, %s" % (sr(sK, 2), sr(sT4, 2)))
    for i in range(D0): kv_issue(i)
    C("lane k<3 of wave 3 pulls a slice of coefficient array k into L2")
    A("s_cmp_lg_u32 s%d, 192" % sW)
    A("s_cbranch_scc1 Lm_nopf")
    A("s_min_u32 s%d, s%d, 27" % (sT1, sM))
    A("s_lshl_b32 s%d, s%d, 7" % (sT1, sT1))
    A("v_mov_b32 v19, s%d" % sT1)
    A("s_mov_b64 exec, 1")
    for k, sd in enumerate([sW1, sB1, sW2]): A("global_load_dword v%d, v19, %s" % (W + 9 + k, sr(sd, 2)))
    A("s_mov_b64 exec, -1")
    LB("Lm_nopf")
    A("s_add_u32 s%d, s%d, %d" % (sVL, sT0, L_V))
    A("s_lshr_b32 s%d, s%d, 6" % (sW, sW))
    if DIAG: A("v_writelane_b32 v30, s42, 0")
    STAMP(10)
    A("s_branch Lmain")

C("---- helper waves: first q projection, then the table of g over bf16 inputs ----")
HW1, HB1, HW2 = 32, 60, 112
hK0, hK1, hONE, hRES = 88, 90, 92, 94
AC = [140, 142]
A("s_load_dwordx2 %s, s[0:1], 96" % sr(sWS, 2))
C("wq tile DMA: instruction i, thread t' = t-256: row 32 i + (t'>>3), 16-byte chunk (t'&7) ^ swizzle")
A("v_bfe_u32 v23, v0, 3, 5")
A("v_and_b32 v22, 7, v0")
A("v_and_b32 v24, 2, v23")
A("v_lshrrev_b32 v25, 1, v23")
A("v_and_or_b32 v24, v25, 4, v24")
A("v_xor_b32 v22, v22, v24")
A("v_lshlrev_b32 v22, 4, v22")
A("v_lshl_add_u32 v22, v23, 13, v22")
soff(sQL, [(sA, 20), (sJ, 10), (sC, 7)], 0)
A("s_lshl_b32 s%d, 1, 22" % (sWQ + 2))
A("s_lshl_b32 s%d, 1, 18" % sT1)
A("s_lshl_b32 s%d, s%d, 4" % (sQS, sW))
A("s_add_u32 m0, s%d, %d" % (sQS, L_WQ - 4096))
A("v_lshlrev_b32 v21, 4, v0")
if DIAG: A("s_memrealtime s[88:89]")
A("s_waitcnt lgkmcnt(0)")
if DIAG: A("s_memrealtime s[90:91]")
A("global_load_dwordx4 %s, v21, %s offset:-4096" % (vr(XR, 4), sr(sT2, 2)))
for i in range(4):
    if i:
        A("s_addk_i32 m0, 0x1000")
        A("s_add_u32 s%d, s%d, s%d" % (sQL, sQL, sT1))
    A("buffer_load_dwordx4 v22, %s, s%d offen nt lds" % (sr(sWQ, 4), sQL))
if DIAG: A("s_memrealtime s[92:93]")
lane_init()
A("s_bfe_u32 s%d, s%d, 0x20006" % (sW, sW))
A("s_lshl_b32 s%d, s%d, 10" % (sT3, sW))
srd(sWS, WS_SZ)
C("early sentinels (O0, LSE0): hw0 1024 B, the others 16 B")
for i in range(4): A("v_mov_b32 v%d, -1" % (PM + i))
A("s_mul_i32 s%d, s%d, %d" % (sT5, sM, CLRA_PER))
A("s_lshl_b32 s%d, s%d, 17" % (sGR, sJ))
A("s_add_u32 s%d, s%d, s%d" % (sT5, sT5, sGR))
A("s_add_u32 s%d, s%d, 1024" % (sT4, sT5))
A("s_cmp_ge_u32 s%d, 2" % sW)
A("s_cbranch_scc1 Lhc_skip")
A("s_cmp_eq_u32 s%d, 0" % sW)
A("s_cselect_b32 s%d, s%d, s%d" % (sT5, sT5, sT4))
A("s_cselect_b64 exec, -1, 1")
A("buffer_store_dwordx4 %s, v%d, %s, s%d offen sc1" % (vr(PM, 4), vL16, sr(sWS, 4), sT5))
LB("Lhc_skip")
A("s_mov_b64 exec, -1")
A("s_branch Lhelp2")
main_early()
LB("Lhelp2")
if QT:
    C("touch 2 lines of the tagged q mailbox per wave so that they sit in L2 before they are written")
    soff(sT4, [(sM, 10), (sW, 8), (sJ, 17)], Q0_OFF)
    A("v_lshlrev_b32 v24, 7, v%d" % vLANE)
    A("s_mov_b64 exec, 3")
    A("buffer_load_dword v%d, v24, %s, s%d offen" % (RES + 1, sr(sWS, 4), sT4))
A("s_mov_b64 exec, -1")
if HP: A("s_setprio 3")
A("s_load_dword s%d, %s, %s" % (sE, sr(sWS, 2), hx(EPO)))
A("s_load_dwordx2 %s, s[0:1], 72" % sr(sB2P, 2))
if DIAG:
    A("v_writelane_b32 v30, s42, 0")
    A("s_waitcnt lgkmcnt(0)")
    A("v_mov_b32 v31, 0")
    A("v_writelane_b32 v31, s88, 0"); A("v_writelane_b32 v31, s90, 1"); A("v_writelane_b32 v31, s92, 2")
STAMP(9)
A("s_barrier")
A("s_lshl_b32 s%d, s2, 2" % sHC)
A("s_add_u32 s%d, s%d, s%d" % (sHC, sHC, sW))
sHX = 86
if XENT:
    C("extra entry e = wave index: |h| code ELO*128 + (e>>1), sign e&1")
    A("s_lshr_b32 s%d, s%d, 1" % (sHX, sHC))
    A("s_add_u32 s%d, s%d, %d" % (sHX, sHX, ELO * 128))
    A("s_lshl_b32 s%d, s%d, 16" % (sHX, sHX))
    A("s_lshl_b32 s%d, s%d, 31" % (sT0, sHC))
    A("s_or_b32 s%d, s%d, s%d" % (sHX, sHX, sT0))
A("s_mul_i32 s%d, s%d, %d" % (sHC, sHC, EPW))
A("s_lshl_b32 s%d, s%d, 3" % (sHT, sHC))
A("s_add_u32 s%d, s%d, %d" % (sHT, sHT, XENT * 4))
A("s_add_u32 s%d, s%d, %d" % (sHC, sHC, ELO * 128 + XENT // 2))
A("s_lshl_b32 s%d, s%d, 16" % (sHC, sHC))
A("v_lshlrev_b32 v27, 2, v%d" % vLANE)
A("v_add_u32 v27, s%d, v27" % sHT)
A("s_mov_b32 s%d, %s" % (sHT, hx(TB)))
common_addr()
A("s_lshl_b32 s%d, s%d, 1" % (sQS, sQS))
A("s_add_u32 s%d, s%d, s%d" % (sQS, sQS, sGR))
A("s_add_u32 s%d, s%d, %s" % (sQS, sQS, hx(Q0_OFF)))
A("v_lshlrev_b32 v%d, 1, v%d" % (vQST, vQST))
A("s_getreg_b32 s%d, hwreg(HW_REG_XCC_ID, 0, 3)" % sXCC)
for r, c in [(hK0, K0), (hK1, K1), (hONE, 1.0)]:
    A("v_mov_b32 v%d, %s" % (r, hx(f2u(c)))); A("v_mov_b32 v%d, %s" % (r + 1, hx(f2u(c))))
A("v_mov_b32 v%d, 0" % hRES)
A("s_mov_b32 s%d, 0" % sIT)
if DRY:
    C("dry run of the q-projection code while its inputs are in flight (instruction cache warm-up; no side effects)")
    A("s_mov_b32 s%d, 1" % sIT)
    A("s_branch Llnq")
    LB("Ldry_done")
    A("s_mov_b64 exec, -1")
    A("s_mov_b32 s%d, 0" % sIT)
if WARM:
    C("warm the instruction cache lines at the far jump targets of the main waves")
    for k, nm in enumerate(["k", "fin", "out", "tab"]):
        A("s_cmp_lg_u32 s%d, %d" % (sW, k))
        A("s_cbranch_scc1 Lwm%d" % k)
        A("s_call_b64 %s, Lst_%s" % (sr(sRET, 2), nm))
        if nm == "out": A("s_call_b64 %s, Lst_mq" % sr(sRET, 2))
        LB("Lwm%d" % k)
A("s_cmp_ge_u32 s%d, 2" % sW)
A("s_cbranch_scc0 Lhx5")
A("s_waitcnt vmcnt(%d)" % (4 + QT))
LB("Lhx5")
A("s_waitcnt vmcnt(%d)" % (5 + QT))
STAMP(1)
A("s_branch Llnq")
LB("Lq_first")
if DRY:
    A("s_cmp_lg_u32 s%d, 0" % sIT)
    A("s_cbranch_scc1 Lq_dry")
A("s_waitcnt vmcnt(0) lgkmcnt(0)")
STAMP(2)
lds_arrive(0, vT + 4)
tags()
A("s_or_b32 s%d, s%d, s%d" % (sXCC, sXCC, sTG2))
C("4 helper arrivals (wq tile, xn rows) + 4 main arrivals (coefficients landed, sentinels acknowledged)")
lds_spin(0, 4, vT + 4)
STAMP(6)
LB("Lq_dry")
wqf_reads()
A("s_waitcnt lgkmcnt(0)")
A("s_branch Lq_go")
LB("Lh_qst")
if DRY:
    A("s_cmp_lg_u32 s%d, 0" % sIT)
    A("s_cbranch_scc1 Ldry_done")
STAMP(5)
A("v_mov_b32 v%d, s%d" % (W + 6, sTG1))
A("v_mov_b32 v%d, s%d" % (W + 7, sXCC))
A("buffer_store_dwordx4 %s, v%d, %s, s%d offen%s" % (vr(W + 4, 4), vQST, sr(sWS, 4), sQS, "" if int(OPT.get("fast", 1)) else " sc1"))
A("s_add_u32 s%d, s%d, %s" % (sQS, sQS, hx(QB_DELTA)))
if not QBD: A("buffer_store_dwordx4 %s, v%d, %s, s%d offen sc1" % (vr(W + 4, 4), vQST, sr(sWS, 4), sQS))
A("s_mov_b64 exec, -1")
HR = W + 8
if ADP: lds_arrive(28, 24)
if HP: A("s_setprio 0")
STAMP(3)
A("v_lshlrev_b32 v26, 3, v%d" % vLANE)
lds_spin(24, 4, 24, sleep=1)
for a_ in range(3):
    for k in range(3):
        A("ds_read_b128 %s, v%d offset:%d" % (vr(HR + 14 * a_ + 4 * k, 4), vL16, 4096 * a_ + 1024 * k))
    A("ds_read_b64 %s, v26 offset:%d" % (vr(HR + 14 * a_ + 12, 2), 4096 * a_ + 3072))
for a_, d in [(0, HW1), (14, HB1), (28, HW2)]:
    A("s_waitcnt lgkmcnt(%d)" % (8 - 4 * (a_ // 14)))
    for p in range(14):
        A("v_lshlrev_b32 v%d, 16, v%d" % (d + 2 * p, HR + a_ + p))
        A("v_and_b32 v%d, 0xffff0000, v%d" % (d + 2 * p + 1, HR + a_ + p))
A("s_load_dword s%d, %s, 0" % (sB2, sr(sB2P, 2)))
STAMP(4)
if DIAG:
    A("s_memtime s[42:43]"); A("s_waitcnt lgkmcnt(0)"); A("v_writelane_b32 v30, s42, 13")
LB("Lhl")
if DIAG:
    A("s_memrealtime s[42:43]"); A("s_add_u32 m0, s%d, 10" % sIT); A("s_waitcnt lgkmcnt(0)"); A("v_writelane_b32 v30, s42, m0")
A("s_mov_b32 s%d, s%d" % (sH, sHC)); A("s_mov_b32 s%d, s%d" % (sH + 1, sHC))
A("s_xor_b32 s%d, s%d, 0x80000000" % (sH2, sHC)); A("s_mov_b32 s%d, s%d" % (sH2 + 1, sH2))
U4 = [144, 146, 148, 150]; T4 = [152, 154, 156, 158]; Z4 = [160, 162, 164, 166]
for p2 in range(7):
    ch = [(2 * p2 + k // 2, k & 1) for k in range(4)]
    for k, (p, sg) in enumerate(ch):
        A("v_pk_fma_f32 %s, %s, %s, %s" % (vr(U4[k], 2), vr(HW1 + 2 * p, 2), sr([sH, sH2][sg], 2), vr(HB1 + 2 * p, 2)))
    for k in range(4): A("v_pk_mul_f32 %s, %s, %s" % (vr(T4[k], 2), vr(U4[k], 2), vr(U4[k], 2)))
    for k in range(4): A("v_pk_fma_f32 %s, %s, %s, %s" % (vr(T4[k], 2), vr(T4[k], 2), vr(hK1, 2), vr(hK0, 2)))
    for k in range(4): A("v_pk_mul_f32 %s, %s, %s" % (vr(T4[k], 2), vr(T4[k], 2), vr(U4[k], 2)))
    for k in range(4):
        for h in range(2): A("v_exp_f32 v%d, v%d" % (T4[k] + h, T4[k] + h))
    for k, (p, sg) in enumerate(ch): A("v_pk_mul_f32 %s, %s, %s" % (vr(Z4[k], 2), vr(U4[k], 2), vr(HW2 + 2 * p, 2)))
    for k in range(4): A("v_pk_add_f32 %s, %s, %s" % (vr(T4[k], 2), vr(T4[k], 2), vr(hONE, 2)))
    for k in range(4):
        for h in range(2): A("v_rcp_f32 v%d, v%d" % (T4[k] + h, T4[k] + h))
    for k, (p, sg) in enumerate(ch):
        if p == 0: A("v_pk_mul_f32 %s, %s, %s" % (vr(AC[sg], 2), vr(Z4[k], 2), vr(T4[k], 2)))
        else: A("v_pk_fma_f32 %s, %s, %s, %s" % (vr(AC[sg], 2), vr(Z4[k], 2), vr(T4[k], 2), vr(AC[sg], 2)))
A("v_add_f32 v%d, v%d, v%d" % (AC[0], AC[0], AC[0] + 1))
A("v_add_f32 v%d, v%d, v%d" % (AC[1], AC[1], AC[1] + 1))
A("s_lshl_b32 m0, s%d, 1" % sIT)
A("s_add_u32 s%d, s%d, 0x10000" % (sHC, sHC))
wave_sum2(AC[0], AC[1], sSUM, sSQ)
A("s_add_u32 s%d, s%d, 1" % (sIT, sIT))
A("s_nop 0")
A("v_writelane_b32 v%d, s%d, m0" % (hRES, sSUM))
A("s_add_u32 m0, m0, 1")
A("s_cmp_lg_u32 s%d, %d" % (sIT, EPW))
A("v_writelane_b32 v%d, s%d, m0" % (hRES, sSQ))
A("s_cbranch_scc1 Lhl")
def h_publish(lanes):
    A("v_cvt_pk_bf16_f32 v%d, v%d, v%d" % (hRES, hRES, hRES))
    A("v_and_b32 v%d, 0xffff0000, v%d" % (hRES, hRES))
    A("v_add_f32 v%d, s%d, v%d" % (hRES, sB2, hRES))
    A("v_cvt_pk_bf16_f32 v%d, v%d, v%d" % (hRES, hRES, hRES))
    A("v_and_b32 v%d, 0xffff0000, v%d" % (hRES + 1, hRES))
    A("s_mov_b64 exec, %d" % lanes)
    A("buffer_store_dword v%d, v27, %s, s%d offen sc1" % (hRES + 1, sr(sWS, 4), sHT))
    A("s_mov_b64 exec, -1")
A("s_waitcnt lgkmcnt(0)")
A("s_lshl_b32 s%d, s%d, 16" % (sB2, sB2))
lds_spin(8, 4, 24)
h_publish((1 << (2 * EPW)) - 1)
if QBD:
    C("the write-through copy of q is only needed when the group is not known to sit on one XCD")
    A("ds_read_b32 v24, v%d offset:4" % vFL)
    A("s_waitcnt lgkmcnt(0)")
    A("v_readfirstlane_b32 s%d, v24" % sT0)
    A("s_cmp_eq_u32 s%d, 4" % sT0)
    A("s_cbranch_scc1 Lhqb")
    A("s_mov_b64 exec, %s" % sr(sMSK, 2))
    A("buffer_store_dwordx4 %s, v%d, %s, s%d offen sc1" % (vr(W + 4, 4), vQST, sr(sWS, 4), sQS))
    A("s_mov_b64 exec, -1")
    LB("Lhqb")
STAMP(8)
if XENT:
    A("s_mov_b32 s%d, s%d" % (sH, sHX)); A("s_mov_b32 s%d, s%d" % (sH + 1, sHX))
    for grp in [[0, 1, 2, 3], [4, 5, 6, 7], [8, 9, 10], [11, 12, 13]]:
        n = len(grp)
        for k, p in enumerate(grp): A("v_pk_fma_f32 %s, %s, %s, %s" % (vr(U4[k], 2), vr(HW1 + 2 * p, 2), sr(sH, 2), vr(HB1 + 2 * p, 2)))
        for k in range(n): A("v_pk_mul_f32 %s, %s, %s" % (vr(T4[k], 2), vr(U4[k], 2), vr(U4[k], 2)))
        for k in range(n): A("v_pk_fma_f32 %s, %s, %s, %s" % (vr(T4[k], 2), vr(T4[k], 2), vr(hK1, 2), vr(hK0, 2)))
        for k in range(n): A("v_pk_mul_f32 %s, %s, %s" % (vr(T4[k], 2), vr(T4[k], 2), vr(U4[k], 2)))
        for k in range(n):
            for h in range(2): A("v_exp_f32 v%d, v%d" % (T4[k] + h, T4[k] + h))
        for k, p in enumerate(grp): A("v_pk_mul_f32 %s, %s, %s" % (vr(Z4[k], 2), vr(U4[k], 2), vr(HW2 + 2 * p, 2)))
        for k in range(n): A("v_pk_add_f32 %s, %s, %s" % (vr(T4[k], 2), vr(T4[k], 2), vr(hONE, 2)))
        for k in range(n):
            for h in range(2): A("v_rcp_f32 v%d, v%d" % (T4[k] + h, T4[k] + h))
        for k, p in enumerate(grp):
            if p < 2: A("v_pk_mul_f32 %s, %s, %s" % (vr(AC[p & 1], 2), vr(Z4[k], 2), vr(T4[k], 2)))
            else: A("v_pk_fma_f32 %s, %s, %s, %s" % (vr(AC[p & 1], 2), vr(Z4[k], 2), vr(T4[k], 2), vr(AC[p & 1], 2)))
    A("v_add_f32 v%d, v%d, v%d" % (AC[0], AC[0], AC[0] + 1))
    A("v_add_f32 v%d, v%d, v%d" % (AC[1], AC[1], AC[1] + 1))
    A("v_add_f32 v%d, v%d, v%d" % (AC[0], AC[0], AC[1]))
    A("s_nop 1")
    wave_sum2(AC[0], AC[1], sSUM, sSQ)
    A("s_nop 1")
    A("v_mov_b32 v%d, s%d" % (hRES, sSUM))
    A("v_cvt_pk_bf16_f32 v%d, v%d, v%d" % (hRES, hRES, hRES))
    A("v_and_b32 v%d, 0xffff0000, v%d" % (hRES, hRES))
    A("v_add_f32 v%d, s%d, v%d" % (hRES, sB2, hRES))
    A("v_cvt_pk_bf16_f32 v%d, v%d, v%d" % (hRES, hRES, hRES))
    A("v_and_b32 v%d, 0xffff0000, v%d" % (hRES, hRES))
    C("the last of the four helpers stores the workgroup's four extra entries with one instruction")
    A("s_lshl_b32 s%d, s%d, 2" % (sT0, sW))
    A("v_add_u32 v16, s%d, v%d" % (sT0, vFL))
    A("v_mov_b32 v17, 1")
    A("s_mov_b64 exec, 1")
    A("ds_write_b32 v16, v%d offset:32" % hRES)
    A("s_waitcnt lgkmcnt(0)")
    A("ds_add_rtn_u32 v18, v%d, v17 offset:28" % vFL)
    A("s_waitcnt lgkmcnt(0)")
    A("v_readfirstlane_b32 s%d, v18" % sT0)
    A("s_cmp_lg_u32 s%d, 3" % sT0)
    A("s_cbranch_scc1 Lhx_end")
    A("ds_read_b128 v[20:23], v%d offset:32" % vFL)
    A("s_lshl_b32 s%d, s2, 4" % sT0)
    A("v_mov_b32 v16, s%d" % sT0)
    A("s_waitcnt lgkmcnt(0)")
    A("buffer_store_dwordx4 v[20:23], v16, %s, s%d offen sc1" % (sr(sWS, 4), sHT))
    LB("Lhx_end")
    A("s_mov_b64 exec, -1")
if DIAG:
    A("s_memtime s[42:43]"); A("s_waitcnt lgkmcnt(0)"); A("v_writelane_b32 v30, s42, 14")
    STAMP(15)
STAMP(7)
C("stand in at the two barriers of the second layer, so that they do not wait for this wave's store acknowledgements")
A("s_barrier")
A("s_barrier")
if DIAG:
    A("s_add_u32 s%d, s%d, 4" % (sW, sW))
    A("v_mov_b32 v28, v30")
    A("s_branch Lfin_exit")
A("s_endpgm")

LB("Lmain")
for s, off in [(sWS, 96), (sV, 16), (sWO, 32), (sOUT, 80), (sX, 0), (sB2P, 72)]:
    A("s_load_dwordx2 %s, s[0:1], %d" % (sr(s, 2), off))
if DIAG == 2: A("s_load_dwordx2 s[100:101], s[0:1], 88")
srd(sWS, WS_SZ)
for s in [sW1, sB1, sW2]: srd(s, 3584)
A("s_lshl_b32 s%d, s%d, 10" % (sT3, sW))
A("s_barrier")
for i in range(D0, DC): kv_issue(i)
A("s_mov_b32 m0, s%d" % sT3)
for i, sd in enumerate([sW1, sB1, sW2]):
    if i: A("s_addk_i32 m0, 0x1000")
    A("s_nop 0")
    A("buffer_load_dwordx4 v%d, %s, s%d offen lds" % (vL16, sr(sd, 4), sT3))
for i in range(DC, D1): kv_issue(i)
for i in range(4): A("v_mov_b32 v%d, -1" % (W + i))
A("s_lshl_b32 s%d, s%d, 17" % (sGR, sJ))
A("s_mov_b32 s%d, s%d" % (sT1, sM))
A("s_waitcnt lgkmcnt(0)")
A("s_load_dword s%d, %s, %s" % (sE, sr(sWS, 2), hx(EPO)))
STAMP(11)
for s, n in [(sV, 1 << 25), (sX, 4096), (sWO, 1 << 22), (sOUT, 4096)]: srd(s, n)
A("v_lshlrev_b32 v18, 1, v16")
A("v_xor_b32 v18, v17, v18")
A("v_lshlrev_b32 v18, 4, v18")
A("v_lshl_add_u32 v%d, v16, 8, v18" % vVA)
if ROT:
    A("s_and_b32 s%d, s%d, 1" % (sT0, sC))
    A("s_lshl_b32 s%d, s%d, 7" % (sT0, sT0))
    A("v_xor_b32 v%d, s%d, v%d" % (vVA, sT0, vVA))
A("v_xor_b32 v%d, 128, v%d" % (vVA + 1, vVA))
C("late sentinels: wave 0,1: group region ; wave 2: P chunk")
A("s_lshr_b32 s%d, s2, 3" % sT1)
A("s_mul_i32 s%d, s%d, %d" % (sT1, sT1, CLRB_PER))
A("s_lshl_b32 s%d, s%d, 10" % (sT0, sW))
A("s_add_u32 s%d, s%d, s%d" % (sT1, sT1, sT0))
A("s_add_u32 s%d, s%d, s%d" % (sT1, sT1, sGR))
A("s_add_u32 s%d, s%d, %d" % (sT1, sT1, CLRB_OFF))
A("s_lshl_b32 s%d, s2, 10" % sT0)
A("s_add_u32 s%d, s%d, %s" % (sT0, sT0, hx(PB)))
A("s_cmp_ge_u32 s%d, 2" % sW)
A("s_cselect_b32 s%d, s%d, s%d" % (sT1, sT0, sT1))
A("s_bfm_b64 %s, %d, 0" % (sr(sH, 2), (CLRB_PER - 1024) // 16))
A("s_cmp_eq_u32 s%d, 1" % sW)
A("s_cselect_b64 %s, %s, -1" % (sr(sH, 2), sr(sH, 2)))
NCL = NOCT * 4 // 16
A("v_mov_b32 v19, v%d" % vL16)
A("s_cmp_lg_u32 s%d, 3" % sW)
A("s_cbranch_scc1 Lm_c3")
C("wave 3: this workgroup's table slots")
A("s_mul_i32 s%d, s2, %d" % (sT0, NOCT * 4))
A("s_add_u32 s%d, s%d, %d" % (sT0, sT0, XENT * 4))
A("v_add_u32 v19, s%d, v19" % sT0)
A("s_lshl_b32 s%d, s2, 4" % sT0)
if XENT: A("v_writelane_b32 v19, s%d, %d" % (sT0, NCL))
A("s_mov_b32 s%d, %s" % (sT1, hx(TB)))
A("s_mov_b64 %s, %d" % (sr(sH, 2), (1 << (NCL + (1 if XENT else 0))) - 1))
LB("Lm_c3")
A("s_mov_b64 exec, %s" % sr(sH, 2))
A("buffer_store_dwordx4 %s, v19, %s, s%d offen sc1" % (vr(W, 4), sr(sWS, 4), sT1))
A("s_mov_b64 exec, -1")

common_addr()
A("s_add_u32 s%d, s%d, s%d" % (sQS, sQS, sGR))
A("s_add_u32 s%d, s%d, %d" % (sQS, sQS, Q1_OFF))
wtile_voff(10, 22)
A("v_and_b32 v19, 7, v%d" % vLANE)
A("v_lshrrev_b32 v25, 2, v%d" % vLANE)
A("v_lshlrev_b32 v25, 7, v25")
A("v_lshl_add_u32 v%d, v18, 2, v25" % vOST)
A("v_lshlrev_b32 v25, 7, v16")
A("v_lshl_add_u32 v%d, v19, 4, v25" % vOLD)
C("lanes n>=8 of the first two o loads fetch the lse values instead: offset relative to the o block")
A("s_mul_i32 s%d, s%d, %d" % (sT0, sA, 128 - 8192))
A("s_mul_i32 s%d, s%d, %d" % (sT1, sW, 32 - 2048))
A("s_add_u32 s%d, s%d, s%d" % (sT0, sT0, sT1))
A("s_add_u32 s%d, s%d, %d" % (sT0, sT0, LSE_OFF[0] - O_OFF[0]))
A("v_add_u32 v25, s%d, v%d" % (sT0, vLSE))
A("v_xor_b32 v26, 16, v25")
A("v_add_u32 v26, -512, v26")
A("v_cmp_gt_u32 vcc, 8, v17")
A("s_nop 1")
A("v_cndmask_b32 v%d, v25, v%d, vcc" % (vLSE, vOLD))
A("v_cndmask_b32 v%d, v26, v%d, vcc" % (vLS2, vOLD))
A("v_lshlrev_b32 v%d, 1, v%d" % (vPST, vLANE))
A("v_lshlrev_b32 v25, 3, v16")
A("v_lshl_add_u32 v%d, v19, 4, v25" % vX1S)
A("s_mul_i32 s%d, s%d, %d" % (sT0, sW, RBS))
A("s_add_u32 s%d, s%d, %d" % (sT0, sT0, L_RB))
A("v_mul_u32_u24 v25, 528, v18")
A("v_lshl_add_u32 v25, v16, 4, v25")
A("v_lshrrev_b32 v26, 2, v17")
A("v_lshl_add_u32 v25, v26, 7, v25")
A("v_add_u32 v%d, s%d, v25" % (vRBW, sT0))
A("s_mul_i32 s%d, s%d, 528" % (sT0, sW))
A("s_add_u32 s%d, s%d, %d" % (sT0, sT0, L_RB))
A("v_lshlrev_b32 v25, 3, v%d" % vLANE)
A("v_add_u32 v%d, s%d, v25" % (vRBR, sT0))
A("s_lshl_b32 s%d, s%d, 3" % (sT0, sW))
A("s_add_u32 s%d, s%d, %d" % (sT0, sT0, L_ML))
A("v_lshlrev_b32 v25, 5, v18")
A("v_add_u32 v%d, s%d, v25" % (vMLW, sT0))
A("s_lshl_b32 s%d, s%d, 5" % (sT0, sW))
A("s_add_u32 s%d, s%d, %d" % (sT0, sT0, L_ML))
A("v_mov_b32 v%d, s%d" % (vMLR, sT0))
A("v_mov_b32 v25, 0x3f80")
A("v_mov_b32 v26, 0x3f800000")
for r in range(4):
    A("v_cmp_eq_u32 vcc, %d, v17" % (2 * r))
    A("v_cmp_eq_u32 %s, %d, v17" % (sr(sH, 2), 2 * r + 1))
    A("s_nop 0")
    A("v_cndmask_b32 v%d, 0, v25, vcc" % (SEL + r))
    A("v_cndmask_b32 v%d, v%d, v26, %s" % (SEL + r, SEL + r, sr(sH, 2)))
for i in range(16): A("v_mov_b32 v%d, 0" % (PM + i))
for p in range(4):
    A("s_mov_b32 s%d, %s" % (sPM + 2 * p, hx(0x000f000f << (4 * p))))
    A("s_mov_b32 s%d, %s" % (sPM + 2 * p + 1, hx(0x000f000f << (4 * p))))
soff(sOS, [(sW, 13), (sA, 11), (sC, 4), (sJ, 17)], O_OFF[0])
soff(sOL, [(sA, 13), (sW, 11), (sJ, 17)], O_OFF[0])
A("s_add_u32 s%d, s%d, %s" % (sQL, sOL, hx(Q0_OFF - O_OFF[0])))
soff(sLS, [(sW, 7), (sA, 5), (sC, 2), (sJ, 17)], LSE_OFF[0])
soff(sPS, [(sW, 15), (sC, 12), (sJ, 9), (sA, 7)], PB)
A("s_mov_b32 s%d, %s" % (sSC, hx(f2u(128 ** -0.5 * math.log2(math.e)))))
A("s_getreg_b32 s%d, hwreg(HW_REG_XCC_ID, 0, 3)" % sXCC)
A("v_xor_b32 v24, v16, v17")
A("v_lshlrev_b32 v24, 4, v24")
A("v_lshl_add_u32 v24, v17, 8, v24")
A("s_lshl_b32 s%d, s%d, 13" % (sT1, sW))
A("s_add_u32 s%d, s%d, %d" % (sT2, sT1, L_K))
for t in range(4): A("v_xor_b32 v%d, %d, v24" % (18 + t, 64 * t))
for t in range(4): A("v_add_u32 v%d, s%d, v%d" % (18 + t, sT2, 18 + t))
VA = W + 32
A("v_lshrrev_b32 v24, 2, v%d" % vLANE)
A("v_and_b32 v25, 7, v24")
A("v_lshlrev_b32 v25, 1, v25")
A("v_bfe_u32 v26, v%d, 1, 1" % vLANE)
A("v_xor_b32 v25, v25, v26")
A("v_lshlrev_b32 v25, 4, v25")
A("v_lshl_add_u32 v25, v24, 8, v25")
A("v_and_b32 v26, 1, v%d" % vLANE)
A("v_lshl_add_u32 v25, v26, 3, v25")
A("s_add_u32 s%d, s%d, %d" % (sT2, sT1, L_V))
for t in range(8): A("v_xor_b32 v%d, %d, v25" % (VA + t, 32 * t))
for t in range(8): A("v_add_u32 v%d, s%d, v%d" % (VA + t, sT2, VA + t))
soff(sT4, [(sJ, 19), (sA, 17), (sW, 15), (sC, 7)], 0)
A("s_lshl_b32 s%d, s%d, 12" % (sT5, sW))
A("s_add_u32 s%d, s%d, %d" % (sT5, sT5, L_WO))
soff(sT3, [(sA, 10), (sC, 7)], 0)
A("v_lshlrev_b32 v24, 5, v%d" % vLANE)
A("s_lshl_b32 s%d, s%d, 10" % (sT2, sW))
A("s_add_u32 s%d, s%d, %d" % (sT2, sT2, L_QF))
A("v_add_u32 v25, s%d, v%d" % (sT2, vL16))
A("v_add_u32 v26, %d, v%d" % (L_QF, vL16))
STAMP(12)
if DIAG: A("v_mov_b32 v31, v30")
QP = W
def q0_issue(QP=QP):
    A("buffer_load_dwordx4 %s, v24, %s, s%d offen sc1" % (vr(QP, 4), sr(sWS, 4), sQL))
    A("buffer_load_dwordx4 %s, v24, %s, s%d offen offset:16 sc1" % (vr(QP + 4, 4), sr(sWS, 4), sQL))
def flag_block():
    if True:
        A("s_cmp_lg_u32 s%d, 0" % sW)
        A("s_cbranch_scc1 Lnoflag")
        C("every sentinel store of this workgroup is acknowledged: announce it")
        lds_spin(8, 4, vT)
        A("v_mov_b32 v16, s%d" % sTG1)
        A("v_mov_b32 v17, s%d" % sXCC)
        soff(sT1, [(2, 4)], FB)
        A("v_mov_b32 v21, 0")
        A("s_mov_b64 exec, 1")
        A("buffer_store_dwordx2 v[16:17], v21, %s, s%d offen sc1" % (sr(sWS, 4), sT1))
        A("s_mov_b64 exec, -1")
        LB("Lnoflag")
C("coefficients landed -> tell the helpers")
young = D1 - DC + 1
told = False
if ECO:
    A("s_waitcnt vmcnt(%d)" % young); lds_arrive(24, vT); told = True
A("s_mov_b32 s%d, 0" % sY)
for i in range(D1, 16):
    dp = DEPTH if i < TAILI else TAILD
    extra = 1 if i == 16 - QV else 0
    if ADP and told:
        C("stay shallow until the helpers have issued their q stores")
        A("s_cmp_lg_u32 s%d, 0" % sY)
        A("s_cbranch_scc1 Ldp%d" % i)
        A("ds_read_b32 v%d, v%d offset:28" % (vT, vFL))
        A("s_waitcnt lgkmcnt(0)")
        A("v_readfirstlane_b32 s%d, v%d" % (sT1, vT))
        A("s_cmp_ge_u32 s%d, 4" % sT1)
        A("s_cselect_b32 s%d, 1, 0" % sY)
        A("s_cbranch_scc1 Ldp%d" % i)
        A("s_waitcnt vmcnt(%d)" % (dp - 1 - 2 * extra))
        LB("Ldp%d" % i)
        A("s_waitcnt vmcnt(%d)" % (ADP - 1 - 2 * extra))
        if extra: q0_issue(); young += 2
    else:
        if extra:
            A("s_waitcnt vmcnt(%d)" % (dp - 2)); q0_issue(); young += 2
        A("s_waitcnt vmcnt(%d)" % (dp - 1))
    if not told and young >= dp - 1:
        lds_arrive(24, vT); told = True
    kv_issue(i); young += 1
assert told
q0_issue(QP + 8)
C("everything older than the V loads is complete: K, late sentinels")
A("s_waitcnt vmcnt(12)")
lds_arrive(8, vT)
A("s_waitcnt lgkmcnt(0)")
tags()
A("s_or_b32 s%d, s%d, s%d" % (sXCC, sXCC, sTG2))
STAMP(1)
for t in range(4):
    for T in range(2):
        A("ds_read_b128 %s, v%d offset:%d" % (vr(KF + 16 * T + 4 * t, 4), 18 + t, 4096 * T))
flag_block()
def wait_w0(n):
    uid[0] += 1
    A("s_cmp_eq_u32 s%d, 0" % sW)
    A("s_cbranch_scc1 Lww%d" % uid[0])
    A("s_waitcnt vmcnt(%d)" % n)
    LB("Lww%d" % uid[0])
    A("s_waitcnt vmcnt(%d)" % (n + 1))
wait_w0(QV + 2)
STAMP(2)
A("s_setprio 2")
A("s_mov_b32 s%d, %s" % (sCNT, hx(SPIN)))
A("s_mov_b32 s%d, 0" % sY)
LB("Lmq")
A("v_and_b32 v16, -8, v%d" % (QP + 3))
A("v_and_b32 v17, -8, v%d" % (QP + 7))
A("v_cmp_ne_u32 vcc, s%d, v%d" % (sTG1, QP + 2))
A("v_cmp_ne_u32 %s, s%d, v%d" % (sr(sRET, 2), sTG1, QP + 6))
A("s_or_b64 vcc, vcc, %s" % sr(sRET, 2))
A("v_cmp_ne_u32 %s, s%d, v16" % (sr(sRET, 2), sTG2))
A("s_or_b64 vcc, vcc, %s" % sr(sRET, 2))
A("v_cmp_ne_u32 %s, s%d, v17" % (sr(sRET, 2), sTG2))
A("s_or_b64 vcc, vcc, %s" % sr(sRET, 2))
if not int(OPT.get("nochk", 0)): A("s_cbranch_vccnz Lmqr")
LB("Lmqd")
if DIAG:
    A("s_sub_u32 s%d, s%d, s%d" % (sT0, sCNT, sY)); A("v_writelane_b32 v31, s%d, 0" % sT0)
Ls = L; L = []
L.append(".p2align 6"); LB("Lst_mq"); A("s_setpc_b64 %s" % sr(sRET, 2))
LB("Lmqr")
A("s_cmp_lg_u32 s%d, 0" % sY)
A("s_cbranch_scc1 Lmqr2")
C("first look failed: take the second one (V has landed with it: request its fragments now)")
A("s_waitcnt vmcnt(0)")
A("s_mov_b32 s%d, 1" % sY)
for k in range(8): A("v_mov_b32 v%d, v%d" % (QP + k, QP + 8 + k))
for t in range(8):
    for hf in range(2):
        A("ds_read_b64_tr_b16 %s, v%d offset:%d" % (vr(VF + 4 * t + 2 * hf, 2), VA + t, 4096 * hf))
A("s_branch Lmq")
LB("Lmqr2")
C("still not there: poll the plain copy a few times, then both copies in turn")
A("s_cmp_le_u32 s%d, %s" % (sCNT, hx(SPIN - 6)))
A("s_cselect_b32 s%d, %s, 0" % (sT0, hx(QB_DELTA)))
A("s_xor_b32 s%d, s%d, s%d" % (sQL, sQL, sT0))
q0_issue()
A("s_waitcnt vmcnt(0)")
A("s_sub_u32 s%d, s%d, 1" % (sCNT, sCNT))
A("s_cbranch_scc0 Lmq")
A("s_branch Lmqd")
ool.append(L); L = Ls
A("v_cmp_ne_u32 vcc, s%d, v%d" % (sXCC, QP + 3))
A("v_mov_b32 v%d, v%d" % (QP + 2, QP + 4))
A("v_mov_b32 v%d, v%d" % (QP + 3, QP + 5))
A("ds_write_b128 v25, %s" % vr(QP, 4))
A("s_cmp_eq_u64 vcc, 0")
A("s_cselect_b32 s%d, 1, 0x101" % sT0)
A("v_mov_b32 v16, s%d" % sT0)
A("s_waitcnt lgkmcnt(0)")
lds_arrive(4, 16, None)
STAMP(15)
A("buffer_load_dwordx2 %s, v%d, %s, s%d offen" % (vr(RES + 2, 2), vX1S, sr(sX, 4), sT3))
FLG = W + 44
soff(sIT, [(sW, 10)], FB)
soff(sQL, [(sA, 12), (sJ, 17)], Q1_OFF)
for k in range(4):
    A("s_add_u32 s%d, s%d, %d" % (sT0, sC, k))
    A("s_and_b32 s%d, s%d, 3" % (sT0, sT0))
    A("s_lshl_b32 s%d, s%d, 10" % (sKO + k, sT0))
A("s_and_b32 s%d, s%d, 1" % (sT0, sC))
A("s_lshl_b32 s%d, s%d, 6" % (sT0, sT0))
A("v_xor_b32 v22, s%d, v22" % sT0); A("v_xor_b32 v23, s%d, v23" % sT0)
A("s_lshl_b32 s%d, s%d, 2" % (sT3, sM))
A("s_add_u32 s%d, s%d, s%d" % (sT3, sT3, sW))
A("s_mul_i32 s%d, s%d, 768" % (sT3, sT3))
A("s_add_u32 s%d, s%d, s%d" % (sT3, sT3, sGR))
A("v_lshlrev_b32 v21, 7, v%d" % vLANE)
lds_spin(4, 4, vT, mask=0xff)
A("s_cmp_lt_u32 s%d, 256" % sT1)
A("s_cselect_b32 s%d, %d, 0" % (sFAST, int(OPT.get("fast", 1))))
QF = W + 16
for t in range(4):
    A("ds_read_b128 %s, v26 offset:%d" % (vr(QF + 4 * t, 4), 1024 * t))
S = W
qk = []
for t in range(4):
    for T in range(2):
        qk.append(mf(S + 4 * T, KF + 16 * T + 4 * t, QF + 4 * t, None if t == 0 else S + 4 * T))
for t in range(4):
    A("s_waitcnt lgkmcnt(%d)" % (3 - t))
    A(qk[2 * t]); A(qk[2 * t + 1])
def wo_issue():
    C("every wave holds its K fragments: the wo tile may land in the K area")
    for k in range(4):
        A("s_add_u32 m0, s%d, s%d" % (sT5, sKO + k))
        A("s_lshl3_add_u32 s%d, s%d, s%d" % (sT0, sKO + k, sT4))
        A("buffer_load_dwordx4 v%d, %s, s%d offen nt lds" % (22 + (k & 1), sr(sWO, 4), sT0))
if WOP == 0: wo_issue()
if PRET:
    C("bring the (cleared) group mailbox lines into L2")
    A("s_mov_b64 exec, 63")
    A("buffer_load_dword v%d, v21, %s, s%d offen sc1" % (W + 40, sr(sWS, 4), sT3))
    A("s_mov_b64 exec, -1")
STAMP(3)
A("s_branch Lk_go")

LB("Llnq")
C("LayerNorm of the row held in XR, then q partial = xn @ wq tile")
X = W
row_stats(XR, vT, X)
A("v_add_f32 v%d, %s, v%d" % (vT + 1, EPS, vT + 1))
A("v_rsq_f32 v%d, v%d" % (vT + 2, vT + 1))
A("s_cmp_eq_u32 s%d, 0" % sLAY)
A("v_mul_f32 v%d, v%d, v%d" % (vT + 3, vT, vT + 2))
for i in range(4):
    A("v_pk_fma_f32 %s, %s, %s, %s op_sel:[0,0,1] op_sel_hi:[1,0,1] neg_lo:[0,0,1] neg_hi:[0,0,1]" % (vr(X + 2 * i, 2), vr(X + 2 * i, 2), vr(vT + 2, 2), vr(vT + 2, 2)))
for i in range(4):
    A("v_cvt_pk_bf16_f32 v%d, v%d, v%d" % (X + 8 + i, X + 2 * i, X + 2 * i + 1))
A("ds_write_b128 v%d, %s" % (vXNW, vr(X + 8, 4)))
A("s_cbranch_scc1 Lq_first")
A("s_waitcnt lgkmcnt(0)")
A("s_barrier")
LB("Lq_go")
BF = W + 16
for t in range(4):
    A("ds_read_b128 %s, v%d offset:%d" % (vr(BF + 4 * t, 4), vXNR, 64 * t))
for t in range(4):
    A("s_waitcnt lgkmcnt(%d)" % (3 - t))
    mfma(W, WQF + 4 * t, BF + 4 * t, None if t == 0 else W)
A("s_cmp_eq_u32 s%d, 0" % sLAY)
A("s_mov_b64 exec, %s" % sr(sMSK, 2))
NOP(6)
A("v_cvt_pk_bf16_f32 v%d, v%d, v%d" % (W + 4, W, W + 1))
A("v_cvt_pk_bf16_f32 v%d, v%d, v%d" % (W + 5, W + 2, W + 3))
A("s_cbranch_scc1 Lh_qst")
fastcmp()
store_local("buffer_store_dwordx2", vr(W + 4, 2), vQST, sQS)
A("s_mov_b64 exec, -1")
STAMP(2)

C("attention over this workgroup's 128 keys")
if QS:
    C("each wave fetches one k-step of q and shares it through LDS")
    A("s_lshl_b32 s%d, s%d, 10" % (sT3, sW))
    A("s_add_u32 s%d, s%d, s%d" % (sT4, sQL, sT3))
    A("s_add_u32 s%d, s%d, %d" % (sT3, sT3, L_RB + 12288))
    A("v_add_u32 v25, s%d, v%d" % (sT3, vL16))
    A("v_add_u32 v26, %d, v%d" % (L_RB + 12288, vL16))
    ppoll(lambda k: A("buffer_load_dwordx4 %s, v%d, %s, s%d offen sc1" % (vr(W + 32 + 4 * k, 4), vL16, sr(sWS, 4), sT4)),
          lambda k: range(W + 32 + 4 * k, W + 36 + 4 * k), 1, vT, lambda k: ["ds_write_b128 v25, %s" % vr(W + 32 + 4 * k, 4)], pre=QPRE, gap=QGAP, tag=0)
    A("s_waitcnt lgkmcnt(0)")
    A("s_barrier")
    for t in range(4):
        A("ds_read_b128 %s, v26 offset:%d" % (vr(QF + 4 * t, 4), 1024 * t))
    for t in range(4):
        A("s_waitcnt lgkmcnt(%d)" % (3 - t))
        A(qk[2 * t]); A(qk[2 * t + 1])
    touch_stub("k")
else:
    def iq(k):
        for t in range(4):
            A("buffer_load_dwordx4 %s, v%d, %s, s%d offen offset:%d sc1" % (vr(QF + 16 * k + 4 * t, 4), vL16, sr(sWS, 4), sQL, 1024 * t))
    def qks(k):
        return [mf(S + 4 * T, KF + 16 * T + 4 * t, QF + 16 * k + 4 * t, None if t == 0 else S + 4 * T) for t in range(4) for T in range(2)]
    ppoll(iq, lambda k: range(QF + 16 * k, QF + 16 * k + 16), 4, vT, qks, pre=QPRE, gap=QGAP, tag=0, stub="k")
STAMP(3)
LB("Lk_go")
NOP(7)
for ctl in ["row_ror:4", "row_ror:8"]:
    for i in range(8):
        A("v_add_f32_dpp v%d, v%d, v%d %s row_mask:0xf bank_mask:0xf" % (S + i, S + i, S + i, ctl))
A("v_max3_f32 v%d, v%d, v%d, v%d" % (vT, S, S + 1, S + 2))
A("v_max3_f32 v%d, v%d, v%d, v%d" % (vT + 1, S + 3, S + 4, S + 5))
A("v_max3_f32 v%d, v%d, v%d, v%d" % (vT, vT, S + 6, S + 7))
A("v_max_f32 v%d, v%d, v%d" % (vT, vT, vT + 1))
A("v_mov_b32 v%d, v%d" % (vT + 1, vT))
A("s_nop 1")
A("v_permlane16_swap_b32 v%d, v%d" % (vT, vT + 1))
A("v_max_f32 v%d, v%d, v%d" % (vT, vT, vT + 1))
A("v_mov_b32 v%d, v%d" % (vT + 1, vT))
A("s_nop 1")
A("v_permlane32_swap_b32 v%d, v%d" % (vT, vT + 1))
A("v_max_f32 v%d, v%d, v%d" % (vT, vT, vT + 1))
A("v_mul_f32 v%d, s%d, v%d" % (vT + 2, sSC, vT))
for i in range(8):
    A("v_fma_f32 v%d, v%d, s%d, -v%d" % (S + i, S + i, sSC, vT + 2))
for i in range(8):
    A("v_exp_f32 v%d, v%d" % (S + i, S + i))
for p in range(4):
    A("s_mov_b64 exec, %s" % sr(sPM + 2 * p, 2))
    for i in range(4):
        A("v_cvt_pk_bf16_f32 v%d, v%d, v%d" % (PM + 4 * p + i, S + 2 * i, S + 2 * i + 1))
A("s_mov_b64 exec, -1")
STAMP(4)
A("s_cmp_lg_u32 s%d, 0" % sLAY)
A("s_cbranch_scc1 Lv_go")
wait_w0((5 if WOP == 0 else 1) + PRET)
if WOP == 1: wo_issue()
A("buffer_load_dwordx4 %s, v%d, %s, s%d offen sc1" % (vr(FLG, 4), vL16, sr(sWS, 4), sIT))
STAMP(6)
A("s_cmp_lg_u32 s%d, 0" % sY)
A("s_cbranch_scc1 Lv_have")
for t in range(8):
    for hf in range(2):
        A("ds_read_b64_tr_b16 %s, v%d offset:%d" % (vr(VF + 4 * t + 2 * hf, 2), VA + t, 4096 * hf))
A("s_waitcnt lgkmcnt(0)")
LB("Lv_have")
if TOT:
    A("s_memrealtime s[42:43]"); A("s_waitcnt lgkmcnt(0)"); A("s_mov_b32 s97, s42")
A("s_cmp_lg_u32 s%d, 0" % sLAY)
LB("Lv_go")
OA = W + 8
mfma(W + 16, ONES, PM, None)
for p in range(4):
    for T in range(2):
        mfma(OA + 4 * T, VF + 4 * (2 * p + T), PM + 4 * p, None if p == 0 else OA + 4 * T)
A("s_mov_b64 exec, %s" % sr(sMSK, 2))
A("v_mov_b32 v%d, v%d" % (vT + 3, W + 16))
A("ds_write_b64 v%d, %s" % (vMLW, vr(vT + 2, 2)))
A("s_mov_b64 exec, -1")
NOP(3)
A("ds_write_b128 v%d, %s" % (vRBW, vr(OA, 4)))
A("ds_write_b128 v%d, %s offset:64" % (vRBW, vr(OA + 4, 4)))
A("s_waitcnt lgkmcnt(0)")
A("s_cbranch_scc1 Lrb_bar")
lds_arrive(12, vT + 4)
if WOP == 2: wo_issue()
lds_spin(12, 4, vT + 4)
A("s_branch Lrb_go")
LB("Lrb_bar")
A("s_barrier")
LB("Lrb_go")
A("ds_read_b128 %s, v%d" % (vr(W, 4), vMLR))
A("ds_read_b128 %s, v%d offset:16" % (vr(W + 4, 4), vMLR))
for w in range(4):
    A("ds_read_b64 %s, v%d offset:%d" % (vr(W + 8 + 2 * w, 2), vRBR, RBS * w))
A("v_mov_b32 v%d, 0" % (vT + 4))
fastcmp()
A("s_waitcnt lgkmcnt(4)")
A("v_max3_f32 v%d, v%d, v%d, v%d" % (vT, W, W + 2, W + 4))
A("v_max_f32 v%d, v%d, v%d" % (vT, vT, W + 6))
for w in range(4): A("v_sub_f32 v%d, v%d, v%d" % (W + 2 * w, W + 2 * w, vT))
for w in range(4): A("v_exp_f32 v%d, v%d" % (W + 2 * w, W + 2 * w))
A("v_mul_f32 v%d, v%d, v%d" % (vT + 1, W, W + 1))
for w in range(1, 4): A("v_fmac_f32 v%d, v%d, v%d" % (vT + 1, W + 2 * w, W + 2 * w + 1))
A("s_waitcnt lgkmcnt(0)")
A("v_pk_mul_f32 %s, %s, %s op_sel_hi:[1,0]" % (vr(W + 8, 2), vr(W + 8, 2), vr(W, 2)))
A("v_rcp_f32 v%d, v%d" % (vT + 2, vT + 1))
A("v_pk_fma_f32 %s, %s, %s, %s op_sel_hi:[1,0,1]" % (vr(W + 8, 2), vr(W + 10, 2), vr(W + 2, 2), vr(W + 8, 2)))
A("v_log_f32 v%d, v%d" % (vT + 5, vT + 1))
for w in range(2, 4):
    A("v_pk_fma_f32 %s, %s, %s, %s op_sel_hi:[1,0,1]" % (vr(W + 8, 2), vr(W + 8 + 2 * w, 2), vr(W + 2 * w, 2), vr(W + 8, 2)))
A("v_pk_mul_f32 %s, %s, %s op_sel_hi:[1,0]" % (vr(W + 8, 2), vr(W + 8, 2), vr(vT + 2, 2)))
A("v_add_f32 v%d, v%d, v%d" % (vT + 5, vT + 5, vT))
A("v_cvt_pk_bf16_f32 v%d, v%d, v%d" % (W + 8, W + 8, W + 9))
store_local("buffer_store_dword", "v%d" % (W + 8), vOST, sOS)
A("s_mov_b64 exec, 1")
store_local("buffer_store_dword", "v%d" % (vT + 5), vT + 4, sLS)
A("s_mov_b64 exec, -1")
STAMP(5)

C("wo phase: wave = batch, rows = key splits")
OF = W; LS = W + 32; DA = WQF
assert LSE_OFF[1] - O_OFF[1] == LSE_OFF[0] - O_OFF[0]
def io(k):
    for t in range(4):
        A("buffer_load_dwordx4 %s, v%d, %s, s%d offen offset:%d sc1" % (vr(OF + 16 * k + 4 * t, 4), [vLSE, vLS2, vOLD, vOLD][t], sr(sWS, 4), sOL, 512 * t))
A("s_cmp_lg_u32 s%d, 0" % sLAY)
A("s_cbranch_scc1 Lo_go")
C("first layer: wo tile landed -> fragments; every workgroup has announced its clears")
if WOP == 3: wo_issue()
A("s_waitcnt vmcnt(%d)" % (2 if WOP < 3 else 0))
STAMP(13)
A("s_mov_b32 s%d, %s" % (sT4, hx(SPIN)))
LB("Lap")
A("v_and_b32 v24, -8, v%d" % (FLG + 1))
A("v_cmp_ne_u32 vcc, s%d, v%d" % (sTG1, FLG))
A("v_cmp_ne_u32 %s, s%d, v24" % (sr(sH, 2), sTG2))
A("s_or_b64 vcc, vcc, %s" % sr(sH, 2))
A("s_cbranch_vccnz Lar")
LB("Lad")
lds_arrive(16, 24)
for i in range(2):
    A("v_lshlrev_b32 v%d, 16, v%d" % (W + 40 + 2 * i, RES + 2 + i))
    A("v_and_b32 v%d, 0xffff0000, v%d" % (W + 41 + 2 * i, RES + 2 + i))
for i in range(4): A("v_mov_b32 v%d, v%d" % (RES + i, W + 40 + i))
for ct in range(4): A("v_xor_b32 v%d, %d, v%d" % (W + 40 + ct, 32 * ct, vWT))
for ct in range(4): A("v_add_u32 v%d, %d, v%d" % (W + 40 + ct, L_WO, W + 40 + ct))
lds_spin(16, 4, 24)
STAMP(14)
A("s_mov_b32 s%d, 1" % sY)
LB("Lo_go")
def pre_o():
    A("s_cmp_eq_u32 s%d, 0" % sY)
    A("s_cbranch_scc1 Lo_nof")
    A("s_mov_b32 s%d, 0" % sY)
    for t in range(4):
        for ct in range(4):
            for hf in range(2):
                A("ds_read_b64_tr_b16 %s, v%d offset:%d" % (vr(WOF + 16 * ct + 4 * t + 2 * hf, 2), W + 40 + ct, 4096 * t + 512 * hf))
    A("s_waitcnt lgkmcnt(0)")
    LB("Lo_nof")
ool.append(["Lar:", "    s_lshl_b32 s%d, s%d, 10" % (sT5, sW), "    s_add_u32 s%d, s%d, %s" % (sT5, sT5, hx(FB)),
            "    buffer_load_dwordx4 %s, v%d, %s, s%d offen sc1" % (vr(FLG, 4), vL16, sr(sWS, 4), sT5),
            "    s_waitcnt vmcnt(0)", "    s_sub_u32 s%d, s%d, 1" % (sT4, sT4), "    s_cbranch_scc0 Lap", "    s_branch Lad"])
def wo1(k): return [mf(DA + 4 * ct, OF + 16 * k + 4 * t, WOF + 16 * ct + 4 * t, None if t == 0 else DA + 4 * ct) for t in range(2) for ct in range(4)]
ppoll(io, lambda k: range(OF + 16 * k, OF + 16 * k + 16), 4, vT, wo1, pre=OPRE, gap=OGAP, mid=pre_o, tag=1,
      fix=["v_mov_b32 v%d, v%d" % (OF + i, OF + 16 + i) for i in range(16)])
STAMP(7)
C("softmax over the 8 key splits (lanes n>=8 hold own lse in OF[0:3], the other four in OF[4:7])")
va = ["v_max3_f32 v%d, v%d, v%d, v%d" % (vT, OF, OF + 1, OF + 2), "v_max3_f32 v%d, v%d, v%d, v%d" % (vT + 1, OF + 3, OF + 4, OF + 5),
      "v_max3_f32 v%d, v%d, v%d, v%d" % (vT, vT, OF + 6, OF + 7), "v_max_f32 v%d, v%d, v%d" % (vT, vT, vT + 1)]
va += ["v_sub_f32 v%d, v%d, v%d" % (LS + i, OF + i, vT) for i in range(4)]
va += ["v_exp_f32 v%d, v%d" % (LS + i, LS + i) for i in range(4)]
va += ["s_nop 0"]
va += ["v_mov_b32_dpp v%d, v%d row_ror:8 row_mask:0xf bank_mask:0x3" % (LS + i, LS + i) for i in range(4)]
va += ["v_add_f32 v%d, v%d, v%d" % (vT, LS, LS + 1), "v_add_f32 v%d, v%d, v%d" % (vT + 1, LS + 2, LS + 3),
       "v_add_f32 v%d, v%d, v%d" % (vT, vT, vT + 1), "v_mov_b32 v%d, v%d" % (vT + 1, vT)]
for t in range(2, 4):
    for ct in range(4):
        mfma(DA + 4 * ct, OF + 4 * t, WOF + 16 * ct + 4 * t, DA + 4 * ct)
        for k in range(3 if t == 3 or ct < 1 else 2):
            if va: A(va.pop(0))
assert not va
A("s_mov_b32 s%d, 0x55555555" % sT4)
A("s_mov_b32 s%d, 0x55555555" % sT5)
A("v_permlane16_swap_b32 v%d, v%d" % (vT, vT + 1))
A("v_mul_f32 v%d, v%d, v%d" % (DA, DA, LS))
A("v_add_f32 v%d, v%d, v%d" % (vT, vT, vT + 1))
A("v_mul_f32 v%d, v%d, v%d" % (DA + 4, DA + 4, LS))
A("v_rcp_f32 v%d, v%d" % (vT, vT))
A("v_mul_f32 v%d, v%d, v%d" % (DA + 8, DA + 8, LS))
for i in range(1, 4):
    for ct in range(3):
        A("v_fmac_f32 v%d, v%d, v%d" % (DA + 4 * ct, DA + 4 * ct + i, LS + i))
    if i == 1: A("v_mul_f32 v%d, v%d, v%d" % (DA + 12, DA + 12, LS))
for i in range(1, 4): A("v_fmac_f32 v%d, v%d, v%d" % (DA + 12, DA + 12 + i, LS + i))
A("v_permlane16_swap_b32 v%d, v%d" % (DA, DA + 4))
A("s_nop 0")
A("v_permlane16_swap_b32 v%d, v%d" % (DA + 8, DA + 12))
A("v_add_f32 v%d, v%d, v%d" % (DA, DA, DA + 4))
A("v_add_f32 v%d, v%d, v%d" % (DA + 8, DA + 8, DA + 12))
A("s_nop 1")
A("v_permlane32_swap_b32 v%d, v%d" % (DA, DA + 8))
A("v_mul_f32 v%d, v%d, v%d" % (DA, DA, vT))
A("s_cmp_lg_u32 s%d, 0" % sLAY)
A("s_nop 0")
A("v_mov_b32_dpp v%d, v%d quad_perm:[1,0,3,2] row_mask:0xf bank_mask:0xf" % (DA + 1, DA))
A("s_mov_b64 exec, %s" % sr(sT4, 2))
A("v_cvt_pk_bf16_f32 v%d, v%d, v%d" % (DA, DA, DA + 1))
A("buffer_store_dword v%d, v%d, %s, s%d offen sc1" % (DA, vPST, sr(sWS, 4), sPS))
A("s_mov_b64 exec, -1")
STAMP(8)
A("s_cbranch_scc1 Lfinal")

A("s_cmp_lg_u32 s%d, 0" % sW)
A("s_cbranch_scc1 Ltab")
C("stage 1 (wave 0): reduce 32 head partials of 64 outputs, add residual, publish x1 slice")
soff(sT1, [(sA, 15), (sC, 12)], PB)
soff(sT2, [(sA, 10), (sC, 7), (sJ, 17)], X1_OFF)
A("s_mov_b32 s%d, 0x00ff00ff" % sT4)
A("s_mov_b32 s%d, 0" % sT5)
def ip(k):
    for i in range(4):
        A("buffer_load_dwordx4 %s, v%d, %s, s%d offen offset:%d sc1" % (vr(W + 20 * k + 4 * i, 4), vL16, sr(sWS, 4), sT1, 1024 * i))
if GW: A("s_waitcnt vmcnt(0)")
ppoll(ip, lambda k: range(W + 20 * k, W + 20 * k + 16), 4, vT, lambda k: [mf(W + 16, SEL, W + 20 * k + 4 * i, None if i == 0 else W + 16) for i in range(4)], pre=GPRE, gap=GGAP, tag=2)
STAMP(9)
fastcmp()
NOP(6)
for i in range(4):
    A("v_add_f32_dpp v%d, v%d, v%d row_ror:8 row_mask:0xf bank_mask:0xf" % (W + 16 + i, W + 16 + i, W + 16 + i))
A("s_mov_b64 exec, %s" % sr(sT4, 2))
A("v_pk_add_f32 %s, %s, %s" % (vr(W + 16, 2), vr(W + 16, 2), vr(RES, 2)))
A("v_pk_add_f32 %s, %s, %s" % (vr(W + 18, 2), vr(W + 18, 2), vr(RES + 2, 2)))
A("v_cvt_pk_bf16_f32 v%d, v%d, v%d" % (W + 16, W + 16, W + 17))
A("v_cvt_pk_bf16_f32 v%d, v%d, v%d" % (W + 17, W + 18, W + 19))
store_local("buffer_store_dwordx2", vr(W + 16, 2), vX1S, sT2)
A("s_mov_b64 exec, -1")
LB("Ltabdone")
soff(sT3, [(sW, 10), (sJ, 17)], X1_OFF)
def ix(k):
    A("buffer_load_dwordx4 %s, v%d, %s, s%d offen sc1" % (vr([XR, RES][k], 4), vL16, sr(sWS, 4), sT3))
wqf_reads()
ppoll(ix, lambda k: range([XR, RES][k], [XR, RES][k] + 4), 1, vT, lambda k: ["s_waitcnt lgkmcnt(0)", "v_readfirstlane_b32 s%d, v%d" % (sT1, vT + 2)],
      pre=XPRE, gap=XGAP, mid=lambda: A("ds_read_b32 v%d, v%d offset:20" % (vT + 2, vFL)), tag=3,
      fix=["v_mov_b32 v%d, v%d" % (XR + i, RES + i) for i in range(4)])
A("s_cmp_lt_u32 s%d, 3" % sT1)
A("s_cbranch_scc1 Ltw")
LB("Ltwd")
STAMP(10)

LB("Lmix")
C("x <- x + g(LN(LN(x))) ; g is tabulated for every bf16 input in range, evaluated directly otherwise")
X = W; HB = W + 8; RT = W + 12; AD = W + 16; Y = W + 24
row_stats(XR, vT, X)
A("v_add_f32 v%d, %s, v%d" % (vT + 2, EPS, vT + 1))
A("v_rsq_f32 v%d, v%d" % (vT + 2, vT + 2))
A("v_mov_b32 v%d, %s" % (vT + 4, hx(LO2 | (LO2 << 16))))
A("s_movk_i32 s%d, %d" % (sT5, NENT * 4))
A("v_mul_f32 v%d, v%d, v%d" % (vT + 1, vT + 1, vT + 2))
A("v_fmaak_f32 v%d, v%d, v%d, %s" % (vT + 1, vT + 1, vT + 2, EPS))
A("v_rsq_f32 v%d, v%d" % (vT + 1, vT + 1))
A("s_nop 0")
A("v_mul_f32 v%d, v%d, v%d" % (vT + 2, vT + 2, vT + 1))
A("v_mul_f32 v%d, v%d, v%d" % (vT + 3, vT, vT + 2))
for i in range(4):
    A("v_pk_fma_f32 %s, %s, %s, %s op_sel:[0,0,1] op_sel_hi:[1,0,1] neg_lo:[0,0,1] neg_hi:[0,0,1]" % (vr(AD + 2 * i, 2), vr(X + 2 * i, 2), vr(vT + 2, 2), vr(vT + 2, 2)))
for i in range(4):
    A("v_cvt_pk_bf16_f32 v%d, v%d, v%d" % (HB + i, AD + 2 * i, AD + 2 * i + 1))
for i in range(4):
    A("v_pk_lshlrev_b16 v%d, 1, v%d op_sel_hi:[0,1]" % (RT + i, HB + i))
    A("v_pk_lshrrev_b16 v%d, 15, v%d op_sel_hi:[0,1]" % (AD + i, HB + i))
for i in range(4):
    A("v_or_b32 v%d, v%d, v%d" % (RT + i, RT + i, AD + i))
for i in range(4):
    A("v_pk_sub_u16 v%d, v%d, v%d" % (RT + i, RT + i, vT + 4))
for i in range(4):
    A("v_lshlrev_b32_sdwa v%d, 2, v%d dst_sel:DWORD dst_unused:UNUSED_PAD src0_sel:DWORD src1_sel:WORD_0" % (AD + 2 * i, RT + i))
    A("v_lshlrev_b32_sdwa v%d, 2, v%d dst_sel:DWORD dst_unused:UNUSED_PAD src0_sel:DWORD src1_sel:WORD_1" % (AD + 2 * i + 1, RT + i))
    A("ds_read_b32 v%d, v%d offset:%d" % (Y + 2 * i, AD + 2 * i, L_TAB))
    A("ds_read_b32 v%d, v%d offset:%d" % (Y + 2 * i + 1, AD + 2 * i + 1, L_TAB))
A("v_max3_u32 v%d, v%d, v%d, v%d" % (vT, AD, AD + 1, AD + 2))
A("v_max3_u32 v%d, v%d, v%d, v%d" % (vT + 1, AD + 3, AD + 4, AD + 5))
A("v_max3_u32 v%d, v%d, v%d, v%d" % (vT, vT, AD + 6, AD + 7))
A("v_max_u32 v%d, v%d, v%d" % (vT, vT, vT + 1))
A("v_cmp_le_u32 %s, s%d, v%d" % (sr(sH, 2), sT5, vT))
A("s_waitcnt lgkmcnt(5)")
A("v_max3_u32 v%d, v%d, v%d, v%d" % (vT, Y, Y + 1, Y + 2))
A("s_waitcnt lgkmcnt(2)")
A("v_max3_u32 v%d, v%d, v%d, v%d" % (vT + 1, Y + 3, Y + 4, Y + 5))
A("s_waitcnt lgkmcnt(0)")
A("v_max3_u32 v%d, v%d, v%d, v%d" % (vT, vT, Y + 6, Y + 7))
A("v_max_u32 v%d, v%d, v%d" % (vT, vT, vT + 1))
A("v_cmp_eq_u32 vcc, -1, v%d" % vT)
LB("Lslowdone")
for i in range(4):
    A("v_pk_add_f32 %s, %s, %s" % (vr(vT + 2 + 2 * i, 2), vr(X + 2 * i, 2), vr(Y + 2 * i, 2)))
A("s_or_b64 vcc, vcc, %s" % sr(sH, 2))
A("s_cbranch_vccnz Lslow")
A("s_cmp_lg_u32 s%d, 0" % sLAY)
for i in range(4):
    A("v_cvt_pk_bf16_f32 v%d, v%d, v%d" % (XR + i, vT + 2 + 2 * i, vT + 3 + 2 * i))
STAMP(11)
A("s_cbranch_scc1 Lout")
A("ds_write_b128 v%d, %s offset:%d" % (vXNW, vr(XR, 4), L_X2 - L_XN))
A("s_mov_b32 s%d, 1" % sLAY)
A("s_mov_b32 s%d, 0" % sY)
if TOT: A("s_memrealtime s[100:101]")
for s, d in [(sOL, O_OFF[1] - O_OFF[0]), (sOS, O_OFF[1] - O_OFF[0]), (sLS, LSE_OFF[1] - LSE_OFF[0]), (sPS, P_L)]:
    A("s_add_u32 s%d, s%d, %d" % (s, s, d))
if DIAG: A("v_mov_b32 v28, v30")
A("s_branch Llnq")

L.append(".p2align 6"); LB("Lst_fin"); A("s_setpc_b64 %s" % sr(sRET, 2)); stubs.append("fin")
LB("Lfinal")
A("s_cmp_ge_u32 s2, 4")
A("s_cbranch_scc1 Lepoch")
C("workgroup b: reduce the 32 head partials of row b, add x2, mixer, store")
soff(sT1, [(2, 15), (sW, 13)], PB + P_L)
A("s_add_u32 s%d, s%d, 4096" % (sT2, sT1))
A("s_mul_i32 s%d, s2, %d" % (sT0, XS))
A("s_lshl_b32 s%d, s%d, 8" % (sT3, sW))
A("s_add_u32 s%d, s%d, s%d" % (sT0, sT0, sT3))
A("s_add_u32 s%d, s%d, %d" % (sT0, sT0, L_X2))
A("v_add_u32 v%d, s%d, v%d" % (vT + 4, sT0, vX1S))
A("s_add_u32 s%d, s%d, %d" % (sT3, sT3, L_XN))
A("v_add_u32 v%d, s%d, v%d" % (vT + 5, sT3, vX1S))
A("ds_read_b64 %s, v%d" % (vr(PM, 2), vT + 4))
A("ds_read_b64 %s, v%d offset:128" % (vr(PM + 2, 2), vT + 4))
A("s_mov_b32 s%d, 0x00ff00ff" % sT4)
A("s_mov_b32 s%d, 0" % sT5)
if XENT:
    A("s_cmp_lg_u32 s%d, 3" % sW)
    A("s_cbranch_scc1 Lfn3")
    A("s_mov_b32 s%d, %s" % (sT0, hx(TB)))
    for i in range(XENT * 4 // 1024):
        A("buffer_load_dwordx4 %s, v%d, %s, s%d offen offset:%d sc1" % (vr(W + 4 * i, 4), vL16, sr(sWS, 4), sT0, 1024 * i))
    A("v_add_u32 v%d, %d, v%d" % (vT + 6, L_TAB, vL16))
    A("s_waitcnt vmcnt(0)")
    for i in range(XENT * 4 // 1024):
        A("ds_write_b128 v%d, %s offset:%d" % (vT + 6, vr(W + 4 * i, 4), 1024 * i))
    LB("Lfn3")
A("s_waitcnt lgkmcnt(0)")
if GW: A("s_waitcnt vmcnt(0)")
for i in range(4):
    A("v_lshlrev_b32 v%d, 16, v%d" % (PM + 4 + 2 * i, PM + i))
    A("v_and_b32 v%d, 0xffff0000, v%d" % (PM + 5 + 2 * i, PM + i))
if "bias" in OPT:
    for i in range(8): A("v_add_f32 v%d, %s, v%d" % (PM + 4 + i, hx(f2u(float(OPT["bias"]))), PM + 4 + i))
FS = [KF, VF]
def ifin(k):
    for i in range(8):
        A("buffer_load_dwordx4 %s, v%d, %s, s%d offen offset:%d sc1" % (vr(FS[k] + 4 * i, 4), vL16, sr(sWS, 4), sT1 if i < 4 else sT2, 1024 * (i & 3)))
def fs(k):
    o = []
    for i in range(4):
        o.append(mf(W + 32, SEL, FS[k] + 4 * i, None if i == 0 else W + 32))
        o.append(mf(W + 36, SEL, FS[k] + 16 + 4 * i, None if i == 0 else W + 36))
    return o
ppoll(ifin, lambda k: range(FS[k], FS[k] + 32), 8, vT, fs, pre=GPRE, gap=GGAP, tag=2)
STAMP(9)
NOP(7)
for i in range(8):
    A("v_add_f32_dpp v%d, v%d, v%d row_ror:8 row_mask:0xf bank_mask:0xf" % (W + 32 + i, W + 32 + i, W + 32 + i))
A("s_mov_b64 exec, %s" % sr(sT4, 2))
for i in range(4):
    A("v_pk_add_f32 %s, %s, %s" % (vr(W + 32 + 2 * i, 2), vr(W + 32 + 2 * i, 2), vr(PM + 4 + 2 * i, 2)))
for i in range(4):
    A("v_cvt_pk_bf16_f32 v%d, v%d, v%d" % (W + 32 + i, W + 32 + 2 * i, W + 33 + 2 * i))
A("ds_write_b64 v%d, %s" % (vT + 5, vr(W + 32, 2)))
A("ds_write_b64 v%d, %s offset:128" % (vT + 5, vr(W + 34, 2)))
A("s_mov_b64 exec, -1")
A("s_cmp_lg_u32 s%d, 0" % sW)
A("s_waitcnt lgkmcnt(0)")
A("s_barrier")
A("s_cbranch_scc1 Lfin_exit")
A("ds_read_b128 %s, v%d" % (vr(XR, 4), vXNW))
A("s_waitcnt lgkmcnt(0)")
STAMP(10)
A("s_branch Lmix")
L.append(".p2align 6"); LB("Lst_out"); A("s_setpc_b64 %s" % sr(sRET, 2)); stubs.append("out")
LB("Lout")
A("s_lshl_b32 s%d, s2, 10" % sT0)
A("buffer_store_dwordx4 %s, v%d, %s, s%d offen" % (vr(XR, 4), vL16, sr(sOUT, 4), sT0))
if DBL:
    A("s_cmp_lg_u32 s2, 0")
    A("s_cbranch_scc1 Lfin_exit")
if DBL:
    A("s_waitcnt vmcnt(0)")
    A("s_memrealtime s[10:11]")
    A("s_waitcnt lgkmcnt(0)")
    A("s_sub_u32 s12, s10, s98")
    if "pad" in OPT:
        A("s_mov_b32 s10, s98"); A("s_mov_b32 s12, %d" % (100 * int(OPT["pad"])))
    LB("Ldbl")
    A("s_memrealtime s[14:15]")
    A("s_waitcnt lgkmcnt(0)")
    A("s_sub_u32 s13, s14, s10")
    A("s_cmp_lt_u32 s13, s12")
    A("s_cbranch_scc1 Ldbl")
LB("Lfin_exit")
if TOT:
    A("s_waitcnt vmcnt(0)")
    A("s_memrealtime s[10:11]")
    A("s_waitcnt lgkmcnt(0)")
    A("v_mov_b32 v16, s98")
    A("v_mov_b32 v17, s10")
    A("v_mov_b32 v18, s100")
    A("v_mov_b32 v19, s97")
    soff(sT2, [(2, 6), (sW, 4)], STB)
    A("v_mov_b32 v20, 0")
    A("s_mov_b64 exec, 1")
    A("buffer_store_dwordx4 v[16:19], v20, %s, s%d offen" % (sr(sWS, 4), sT2))
if DIAG:
    A("s_waitcnt vmcnt(0)")
    STAMP(12)
    if DIAG == 2:
        A("s_or_b32 s%d, s2, s%d" % (sT0, sW))
        A("s_cmp_lg_u32 s%d, 0" % sT0)
        A("s_cbranch_scc1 Lend")
        A("v_readlane_b32 s%d, v28, 0" % sT2)
        for k, (r, i) in enumerate([(31, 10), (31, 12), (28, 1), (28, 2), (28, 6), (28, 5), (28, 7), (28, 8), (28, 9), (28, 10), (28, 11), (30, 3), (30, 5), (30, 8), (30, 9), (30, 12)]):
            A("v_readlane_b32 s%d, v%d, %d" % (sT3, r, i))
            A("s_sub_u32 s%d, s%d, s%d" % (sT3, sT3, sT2))
            A("s_nop 0")
            A("v_writelane_b32 v17, s%d, %d" % (sT3, k))
        A("v_lshlrev_b32 v16, 2, v%d" % vLANE)
        A("s_mov_b64 exec, 0xffff")
        A("global_store_dword v16, v17, s[100:101]")
        A("s_endpgm")
    soff(sT1, [(2, 10), (sW, 7)], STB)
    A("v_lshlrev_b32 v16, 2, v%d" % vLANE)
    A("s_mov_b64 exec, 0xffff")
    A("buffer_store_dword v28, v16, %s, s%d offen" % (sr(sWS, 4), sT1))
    A("buffer_store_dword v30, v16, %s, s%d offen offset:64" % (sr(sWS, 4), sT1))
    A("s_add_u32 s%d, s%d, 0x40000" % (sT1, sT1))
    A("buffer_store_dword v31, v16, %s, s%d offen" % (sr(sWS, 4), sT1))
LB("Lend")
A("s_endpgm")
LB("Lepoch")
C("every workgroup has used the old launch tag long ago: workgroup 4 advances it")
A("s_lshl_b32 s%d, s%d, 8" % (sT0, sW))
A("s_add_u32 s%d, s%d, s2" % (sT0, sT0))
A("s_cmp_lg_u32 s%d, 4" % sT0)
A("s_cbranch_scc1 Lfin_exit")
A("v_mov_b32 v16, s%d" % sTG1)
A("v_mov_b32 v17, %s" % hx(EPO))
A("s_mov_b64 exec, 1")
A("buffer_store_dword v16, v17, %s, 0 offen sc1" % sr(sWS, 4))
A("s_mov_b64 exec, -1")
A("s_branch Lfin_exit")

L.append(".p2align 6"); LB("Lst_tab"); A("s_setpc_b64 %s" % sr(sRET, 2)); stubs.append("tab")
LB("Ltab")
C("waves 2,3: gather the main part of the g(h) table into LDS ; wave 1: the lowest octaves, best effort")
NTL = NOCT * 1024 // 2 // 1024
A("s_cmp_eq_u32 s%d, 1" % sW)
A("s_cbranch_scc1 Lext")
A("s_sub_u32 s%d, s%d, 2" % (sT1, sW))
A("s_mul_i32 s%d, s%d, %d" % (sT1, sT1, NTL * 1024))
A("s_add_u32 s%d, s%d, %d" % (sT1, sT1, XENT * 4))
A("v_add_u32 v%d, s%d, v%d" % (vT + 4, sT1, vL16))
A("v_add_u32 v%d, %d, v%d" % (vT + 4, L_TAB, vT + 4))
A("s_add_u32 s%d, s%d, %s" % (sT1, sT1, hx(TB)))
A("s_add_u32 s%d, s%d, 4096" % (sT2, sT1))
def it():
    for i in range(NTL):
        A("buffer_load_dwordx4 %s, v%d, %s, s%d offen offset:%d sc1" % (vr(W + 4 * i, 4), vL16, sr(sWS, 4), sT1 if i < 4 else sT2, 1024 * (i & 3)))
poll(it, range(W, W + 4 * NTL), vT, back="s_sleep %d" % int(OPT.get("tsl", 16)))
for i in range(NTL):
    A("ds_write_b128 v%d, %s offset:%d" % (vT + 4, vr(W + 4 * i, 4), 1024 * i))
A("s_waitcnt lgkmcnt(0)")
lds_arrive(20, vT + 4)
STAMP(9)
A("s_branch Ltabdone")
def ext_load(d):
    for i in range(XENT * 4 // 1024):
        A("buffer_load_dwordx4 %s, v%d, %s, s%d offen offset:%d sc1" % (vr(d + 4 * i, 4), vL16, sr(sWS, 4), sT4, 1024 * i))
def ext_write(d):
    for i in range(XENT * 4 // 1024):
        A("ds_write_b128 v%d, %s offset:%d" % (vT + 4, vr(d + 4 * i, 4), 1024 * i))
LB("Lext")
if XENT:
    A("s_mov_b32 s%d, %s" % (sT4, hx(TB)))
    A("v_add_u32 v%d, %d, v%d" % (vT + 4, L_TAB, vL16))
    for i in range(4): A("v_mov_b32 v%d, -1" % (W + i))
    for i in range(XENT * 4 // 1024):
        A("ds_write_b128 v%d, %s offset:%d" % (vT + 4, vr(W, 4), 1024 * i))
    A("s_waitcnt lgkmcnt(0)")
lds_arrive(20, vT + 5)
if XENT:
    C("one look at the lowest octaves, skipped when x1 is already there")
    soff(sT3, [(sW, 10), (sJ, 17)], X1_OFF)
    A("s_waitcnt vmcnt(0)")
    A("buffer_load_dwordx4 %s, v%d, %s, s%d offen sc1" % (vr(XR, 4), vL16, sr(sWS, 4), sT3))
    A("s_waitcnt vmcnt(0)")
    for x in maxtree(range(XR, XR + 4), vT): A(x)
    A("v_cmp_eq_u32 vcc, -1, v%d" % vT)
    A("s_cbranch_vccz Lexx")
    A("buffer_load_dwordx4 %s, v%d, %s, s%d offen sc1" % (vr(XR, 4), vL16, sr(sWS, 4), sT3))
    if "l" in OPT.get("xs", ""): A("s_branch Ltabdone")
    ext_load(W + 32)
    A("s_waitcnt vmcnt(4)")
    for x in maxtree(range(XR, XR + 4), vT): A(x)
    A("v_cmp_eq_u32 vcc, -1, v%d" % vT)
    A("s_cbranch_vccz Lexx")
    A("s_waitcnt vmcnt(0)")
    ext_write(W + 32)
    A("s_branch Ltabdone")
    LB("Lexx")
    wqf_reads()
    A("s_branch Ltw")
else:
    A("s_branch Ltabdone")
LB("Ltw")
lds_spin(20, 3, vT + 2)
A("s_branch Ltwd")

for b in ool: L += b
ool = []
LB("Lslow")
C("rare: some h lies outside the table -> evaluate g(h) directly for those lanes")
RW1 = [W + 32 + i for i in range(14)]
RB1 = [PM + i for i in range(14)]
RW2 = [16 + i for i in range(10)] + [W + 46, W + 47, PM + 14, PM + 15]
A("v_lshlrev_b32 v26, 3, v%d" % vLANE)
A("s_load_dword s%d, %s, 0" % (sB2, sr(sB2P, 2)))
for (d4, d2, s) in [([W + 32, W + 36, W + 40], W + 44, sW1), ([PM, PM + 4, PM + 8], PM + 12, sB1)]:
    for k in range(3):
        A("buffer_load_dwordx4 %s, v%d, %s, 0 offen offset:%d" % (vr(d4[k], 4), vL16, sr(s, 4), 1024 * k))
    A("buffer_load_dwordx2 %s, v26, %s, 0 offen offset:3072" % (vr(d2, 2), sr(s, 4)))
A("buffer_load_dwordx4 v[16:19], v%d, %s, 0 offen" % (vL16, sr(sW2, 4)))
A("buffer_load_dwordx4 v[20:23], v%d, %s, 0 offen offset:1024" % (vL16, sr(sW2, 4)))
A("buffer_load_dwordx2 v[24:25], v%d, %s, 0 offen offset:2048" % (vL16, sr(sW2, 4)))
A("buffer_load_dwordx2 %s, v%d, %s, 0 offen offset:2056" % (vr(W + 46, 2), vL16, sr(sW2, 4)))
A("buffer_load_dwordx2 %s, v26, %s, 0 offen offset:3072" % (vr(PM + 14, 2), sr(sW2, 4)))
A("s_waitcnt vmcnt(0) lgkmcnt(0)")
A("s_lshl_b32 s%d, s%d, 16" % (sB2, sB2))
A("s_mov_b32 s%d, 1" % sT4)
for e in range(8):
    A("v_cmp_le_u32 vcc, %d, v%d" % (NENT * 4, AD + e))
    A("v_cmp_eq_u32 %s, -1, v%d" % (sr(sH2, 2), Y + e))
    A("s_or_b64 %s, %s, vcc" % (sr(sH2, 2), sr(sH2, 2)))
    if e & 1: A("v_and_b32 v%d, 0xffff0000, v%d" % (RT + 3, HB + (e >> 1)))
    else: A("v_lshlrev_b32 v%d, 16, v%d" % (RT + 3, HB + (e >> 1)))
    LB("Lse%d" % e)
    A("s_cmp_eq_u64 %s, 0" % sr(sH2, 2))
    A("s_cbranch_scc1 Lsf%d" % e)
    A("s_ff1_i32_b64 s%d, %s" % (sT0, sr(sH2, 2)))
    A("s_nop 0")
    A("v_readlane_b32 s%d, v%d, s%d" % (sH, RT + 3, sT0))
    A("s_cmp_eq_u32 s%d, s%d" % (sH, sT4))
    A("s_cbranch_scc1 Lsg%d" % e)
    A("s_mov_b32 s%d, s%d" % (sT4, sH))
    A("s_call_b64 %s, Lgev" % sr(sRET, 2))
    LB("Lsg%d" % e)
    A("s_nop 1")
    A("v_cmp_eq_u32 vcc, s%d, v%d" % (sH, RT + 3))
    A("v_mov_b32 v%d, s%d" % (RES + 3, sY))
    A("s_andn2_b64 %s, %s, vcc" % (sr(sH2, 2), sr(sH2, 2)))
    A("v_cndmask_b32 v%d, v%d, v%d, vcc" % (Y + e, Y + e, RES + 3))
    A("s_branch Lse%d" % e)
    LB("Lsf%d" % e)
for i in range(16): A("v_mov_b32 v%d, 0" % (PM + i))
A("s_mov_b64 vcc, 0")
A("s_mov_b64 %s, 0" % sr(sH, 2))
A("s_branch Lslowdone")
LB("Lgev")
a, u, t1, z = RES, RES + 1, RES + 2, RT
A("v_mov_b32 v%d, 0" % a)
A("v_mov_b32 v%d, %s" % (RT + 1, hx(f2u(K0))))
A("v_mov_b32 v%d, %s" % (RT + 2, hx(f2u(K1))))
for p in range(14):
    for hf in range(2):
        def un(d, s):
            if hf == 0: A("v_lshlrev_b32 v%d, 16, v%d" % (d, s))
            else: A("v_and_b32 v%d, 0xffff0000, v%d" % (d, s))
        un(u, RW1[p]); un(t1, RB1[p]); un(z, RW2[p])
        A("v_fma_f32 v%d, v%d, s%d, v%d" % (u, u, sH, t1))
        A("v_mul_f32 v%d, v%d, v%d" % (t1, u, u))
        A("v_fma_f32 v%d, v%d, v%d, v%d" % (t1, t1, RT + 2, RT + 1))
        A("v_mul_f32 v%d, v%d, v%d" % (t1, t1, u))
        A("v_exp_f32 v%d, v%d" % (t1, t1))
        A("v_mul_f32 v%d, v%d, v%d" % (z, z, u))
        A("v_add_f32 v%d, 1.0, v%d" % (t1, t1))
        A("v_rcp_f32 v%d, v%d" % (t1, t1))
        A("s_nop 0")
        A("v_fmac_f32 v%d, v%d, v%d" % (a, z, t1))
A("v_mov_b32 v%d, v%d" % (u, a))
A("s_nop 1")
wave_sum2(a, u, sY, sT1)
A("s_nop 1")
A("v_mov_b32 v%d, s%d" % (a, sY))
A("v_cvt_pk_bf16_f32 v%d, v%d, v%d" % (a, a, a))
A("v_and_b32 v%d, 0xffff0000, v%d" % (a, a))
A("v_add_f32 v%d, s%d, v%d" % (a, sB2, a))
A("v_cvt_pk_bf16_f32 v%d, v%d, v%d" % (a, a, a))
A("v_and_b32 v%d, 0xffff0000, v%d" % (a, a))
A("s_nop 0")
A("v_readfirstlane_b32 s%d, v%d" % (sY, a))
A("s_nop 3")
A("s_setpc_b64 %s" % sr(sRET, 2))

for b in ool: L += b
A("s_endpgm")
L.append(".p2align 8")
L.append(".fill %d, 4, 0xBF800000" % (64 if DIAG else 512))
L.append('''.section .rodata,"a"
.p2align 6
.amdhsa_kernel %s_kernel
  .amdhsa_next_free_vgpr 256
  .amdhsa_next_free_sgpr 102
  .amdhsa_accum_offset 256
  .amdhsa_group_segment_fixed_size 0
  .amdhsa_kernarg_size 104
  .amdhsa_user_sgpr_count 2
  .amdhsa_user_sgpr_kernarg_segment_ptr 1
  .amdhsa_system_sgpr_workgroup_id_x 1
.end_amdhsa_kernel''' % NAME)
open(OUTF, "w").write("\n".join(x for x in L if x is not None) + "\n")
print("wrote", OUTF, "lines", len(L), "LDS", LDS_SZ)
```

```python
import sys, struct, math

NAME = "interleave_layers__sliding_block_cached__mixer_token_mlp__decode"
OUTF = sys.argv[1] if len(sys.argv) > 1 else "cdna_kernels/%s.s" % NAME
DIAG = int(sys.argv[2]) if len(sys.argv) > 2 else 0
DBL = 0
if DIAG == 3: DIAG = 0; DBL = 1
TOT = 0
if DIAG == 4: DIAG = 0; TOT = 1
OPT = dict(a.split("=") for a in sys.argv[3:])
DEPTH = int(OPT.get("depth", 8))
D0 = int(OPT.get("d0", 2))
D1 = int(OPT.get("d1", 4))
DC = int(OPT.get("dc", 3))
TAILI = int(OPT.get("taili", 11))
TAILD = int(OPT.get("taild", 8))
QV = int(OPT.get("qv", 3))
PRET = int(OPT.get("pret", 1))
GW = int(OPT.get("gw", 1))
GPRE = int(OPT.get("gpre", 0))
GGAP = int(OPT.get("ggap", -1))
WARM = int(OPT.get("warm", 1))
QPRE = int(OPT.get("qpre", -1)); QGAP = int(OPT.get("qgap", -1))
OPRE = int(OPT.get("opre", -1)); OGAP = int(OPT.get("ogap", -1))
XPRE = int(OPT.get("xpre", -1)); XGAP = int(OPT.get("xgap", -1))
FINE = OPT.get("fine", "")
QS = int(OPT.get("qs", 0))
ADP = int(OPT.get("adp", 0))
ROT = int(OPT.get("rot", 1)); VROT = int(OPT.get("vrot", 0))
WROT = int(OPT.get("wrot", 1))
WOP = int(OPT.get("wop", 0))
ECO = int(OPT.get("eco", 0))
XDL = int(OPT.get("xdl", 256))
QBD = int(OPT.get("qbd", 0))
VLATE = int(OPT.get("vlate", 1))
QV2 = int(OPT.get("qv2", 0))
PROG = int(OPT.get("prog", 1))
QT = int(OPT.get("qt", 0))
DRY = int(OPT.get("dry", 0))
HP = int(OPT.get("hp", 0))
NOCT = int(OPT.get("noct", 16))
QPOS = int(OPT.get("qpos", 1))
QPOS2 = int(OPT.get("qpos2", 7))

def f2u(x): return struct.unpack("<I", struct.pack("<f", x))[0]
def hx(x): return "0x%08x" % (x & 0xffffffff)

L = []
def A(s): L.append("    " + s)
def LB(s): L.append(s + ":")
def C(s): L.append("    ; " + s)
def vr(a, n): return "v[%d:%d]" % (a, a + n - 1)
def sr(a, n): return "s[%d:%d]" % (a, a + n - 1)
def NOP(n):
    while n > 0:
        k = min(n, 16); A("s_nop %d" % (k - 1)); n -= k

XOCT = int(OPT.get('xoct', 4))
ELO = int(OPT.get('elo', 130 - NOCT - XOCT))
LO2 = (ELO << 7) * 2
NENT = (NOCT + XOCT) * 256
XENT = XOCT * 256
assert XENT in (0, 1024)
EPW = NOCT * 256 // 256 // 4 // 2
GRS = 0x20000
O_OFF = [0x0000, 0xC400]; LSE_OFF = [0x8000, 0x14400]; Q1_OFF = 0x8400; X1_OFF = 0x14600
CLRA_PER = 1040
CLRB_OFF = 0x8400; CLRB_PER = 1680
Q0_OFF = 0x18000
EPO = 0x17f00
PB = 0x100000; P_L = 0x20000
TB = 0x140000; FB = 0x148000
QB_DELTA = 0x200000
STB = 0x300000
WS_SZ = 0x400000
L_WQ = 12288; L_K = L_WQ + 16384; L_V = L_K + 32768
L_WO = L_K + 16384
L_TAB = L_V
L_XN = L_V + 32768; XS = 1056
L_X2 = L_XN + 4 * XS
L_FLG = L_X2 + 4 * XS
L_RB = L_K; RBS = 2048 + 64; L_ML = L_K + 4 * RBS
L_QF = L_X2
LDS_SZ = int(OPT.get("lds", L_FLG + 64))
SPIN = 0x40000
K0 = -2.0 * math.sqrt(2.0 / math.pi) * math.log2(math.e)
K1 = K0 * 0.044715
EPS = hx(f2u(1e-5))

sTG1, sTG2 = 0, 1
sW, sJ, sA, sC, sGR, sLAY, sFAST = 3, 4, 5, 6, 7, 8, 9
sT0, sT1, sT2, sT3, sT4, sT5 = 10, 11, 12, 13, 14, 15
sCNT = 16
sQL, sQS, sOL, sOS, sLL, sLS, sPS = 17, 18, 19, 20, 21, 22, 23
sSC, sIT = 24, 25
sSUM, sSQ = 26, 27
sH, sH2, sRET, sMSK = 28, 30, 32, 34
sB2, sY, sXCC, sE = 36, 37, 38, 39
sB2P = 40
sK, sV, sWQ, sWO, sWS, sX, sOUT, sW1, sB1, sW2 = 44, 48, 52, 56, 60, 64, 68, 72, 76, 80
sKO, sKL, sVO, sVL = 84, 85, 86, 87
sPM = 88
sHC, sHT = 84, 85

def STAMP(i):
    if DIAG:
        A("s_memrealtime s[42:43]"); A("s_waitcnt lgkmcnt(0)")
        A("v_writelane_b32 v30, s42, %d" % i)

def CST(i):
    if DIAG == 1 and FINE:
        A("s_memtime s[42:43]"); A("s_waitcnt lgkmcnt(0)")
        A("v_writelane_b32 v31, s42, %d" % i)

vLANE = 1
vL16, vQST, vOST, vOLD, vPST, vX1S, vXNW, vXNR, vRBW, vRBR, vMLW, vMLR, vLSE, vZ = range(2, 16)
vT = 16
vWT, vFL = 28, 29
vLS2 = 27
KF, VF, WQF, WOF, SEL, ONES = 32, 64, 96, 112, 176, 180
W = 184
PM = 232
XR = 248
RES = 252

def srd(s, nbytes):
    A("s_mov_b32 s%d, %s" % (s + 2, hx(nbytes))); A("s_mov_b32 s%d, 0x00020000" % (s + 3))

def soff(dst, terms, const):
    first = True
    for (src, sh) in terms:
        if first: A("s_lshl_b32 s%d, s%d, %d" % (dst, src, sh)); first = False
        else:
            A("s_lshl_b32 s%d, s%d, %d" % (sT0, src, sh)); A("s_add_u32 s%d, s%d, s%d" % (dst, dst, sT0))
    if const: A("s_add_u32 s%d, s%d, %s" % (dst, dst, hx(const)))

def wave_sum2(a, b, sa, sb):
    for ctl in ["row_ror:8", "row_ror:4", "row_ror:2", "row_ror:1"]:
        A("v_add_f32_dpp v%d, v%d, v%d %s row_mask:0xf bank_mask:0xf" % (a, a, a, ctl))
        A("v_add_f32_dpp v%d, v%d, v%d %s row_mask:0xf bank_mask:0xf" % (b, b, b, ctl))
        A("s_nop 0")
    for ctl in ["row_bcast:15 row_mask:0xa", "row_bcast:31 row_mask:0xc"]:
        A("v_add_f32_dpp v%d, v%d, v%d %s bank_mask:0xf" % (a, a, a, ctl))
        A("v_add_f32_dpp v%d, v%d, v%d %s bank_mask:0xf" % (b, b, b, ctl))
        A("s_nop 0")
    A("v_readlane_b32 s%d, v%d, 63" % (sa, a))
    A("v_readlane_b32 s%d, v%d, 63" % (sb, b))

def row_stats(x, t, unp):
    A("v_dot2_f32_bf16 v%d, v%d, v%d, 0" % (t, x, ONES))
    A("v_dot2_f32_bf16 v%d, v%d, v%d, 0" % (t + 1, x, x))
    for i in range(1, 4):
        A("v_dot2_f32_bf16 v%d, v%d, v%d, v%d" % (t, x + i, ONES, t))
        A("v_dot2_f32_bf16 v%d, v%d, v%d, v%d" % (t + 1, x + i, x + i, t + 1))
    un = []
    for i in range(4):
        un.append("v_lshlrev_b32 v%d, 16, v%d" % (unp + 2 * i, x + i))
        un.append("v_and_b32 v%d, 0xffff0000, v%d" % (unp + 2 * i + 1, x + i))
    for k in range(3): A(un.pop(0))
    a, b = t, t + 1
    for ctl in ["row_ror:8 row_mask:0xf", "row_ror:4 row_mask:0xf", "row_ror:2 row_mask:0xf", "row_ror:1 row_mask:0xf", "row_bcast:15 row_mask:0xa", "row_bcast:31 row_mask:0xc"]:
        A("v_add_f32_dpp v%d, v%d, v%d %s bank_mask:0xf" % (a, a, a, ctl))
        A("v_add_f32_dpp v%d, v%d, v%d %s bank_mask:0xf" % (b, b, b, ctl))
        A(un.pop(0) if un else "s_nop 0")
    A("v_readlane_b32 s%d, v%d, 63" % (sSUM, a))
    A("v_readlane_b32 s%d, v%d, 63" % (sSQ, b))
    A("s_nop 0")
    A("v_mul_f32 v%d, s%d, v%d" % (t, sSUM, vZ))
    A("v_mul_f32 v%d, s%d, v%d" % (t + 1, sSQ, vZ))
    A("v_fma_f32 v%d, -v%d, v%d, v%d" % (t + 1, t, t, t + 1))
    A("v_max_f32 v%d, 0, v%d" % (t + 1, t + 1))

ool = []
uid = [0]
def maxtree(regs, tmp):
    r = list(regs); out = []
    out.append("v_max3_u32 v%d, v%d, v%d, v%d" % (tmp, r[0], r[1], r[2])); r = r[3:]
    if len(r) >= 5:
        out.append("v_max3_u32 v%d, v%d, v%d, v%d" % (tmp + 1, r[0], r[1], r[2])); r = r[3:]
        d = 0
        while len(r) >= 2:
            out.append("v_max3_u32 v%d, v%d, v%d, v%d" % (tmp + d, tmp + d, r[0], r[1])); r = r[2:]; d ^= 1
        if r: out.append("v_max3_u32 v%d, v%d, v%d, v%d" % (tmp, tmp, tmp + 1, r[0]))
        else: out.append("v_max_u32 v%d, v%d, v%d" % (tmp, tmp, tmp + 1))
    else:
        while len(r) >= 2:
            out.append("v_max3_u32 v%d, v%d, v%d, v%d" % (tmp, tmp, r[0], r[1])); r = r[2:]
        if r: out.append("v_max_u32 v%d, v%d, v%d" % (tmp, tmp, r[0]))
    return out

def poll(issue, regs, tmp, pre_wait=None, spec=None, back="s_nop 7", tag=None, stub=None):
    uid[0] += 1; u = uid[0]
    A("s_mov_b32 s%d, %s" % (sCNT, hx(SPIN)))
    LB("Lp%d" % u)
    issue()
    if pre_wait: pre_wait()
    A("s_waitcnt vmcnt(0)")
    mt = maxtree(regs, tmp) + ["v_cmp_eq_u32 vcc, -1, v%d" % tmp]
    spec = list(spec or [])
    ns = len(spec)
    per = -(-len(mt) // ns) if ns else 0
    for s in spec:
        A(s)
        for k in range(per):
            if mt: A(mt.pop(0))
    for m in mt: A(m)
    A("s_cbranch_vccz Ld%d" % u)
    A("s_sub_u32 s%d, s%d, 1" % (sCNT, sCNT))
    if back != "s_nop 7": A(back)
    A("s_cbranch_scc0 Lp%d" % u)
    if stub: touch_stub(stub)
    LB("Ld%d" % u)
    if DIAG and tag is not None:
        A("s_lshl_b32 m0, s%d, 2" % sLAY); A("s_add_u32 m0, m0, %d" % tag); A("s_nop 0")
        A("v_writelane_b32 v31, s%d, m0" % sCNT)

stubs = []
def touch_stub(name, branch_over=None):
    A("s_branch Lsk_%s" % name)
    L.append(".p2align 6")
    LB("Lst_%s" % name)
    A("s_setpc_b64 %s" % sr(sRET, 2))
    LB("Lsk_%s" % name)
    stubs.append(name)

def delay(cyc):
    if cyc == -1:
        A("s_waitcnt vmcnt(0)"); return
    while cyc >= 64:
        k = min(cyc // 64, 15); A("s_sleep %d" % k); cyc -= 64 * k
    if cyc >= 8: A("s_nop %d" % min(15, cyc // 4 - 1))

def ppoll(issue, regs, n, tmp, spec, pre=0, gap=128, mid=None, tag=None, fix=None, stub=None, lanes=None, per_load=None):
    uid[0] += 1; u = uid[0]
    def look(k):
        if per_load and PROG and gap < 0:
            r = list(regs(k)); out = []
            for i in range(n):
                out.append("s_waitcnt vmcnt(%d)" % (n - 1 - i))
                sp = list(per_load(k, i))
                ck = ["v_max3_u32 v%d, v%d, v%d, v%d" % (tmp + 1, r[4 * i], r[4 * i + 1], r[4 * i + 2]),
                      ("v_max_u32 v%d, v%d, v%d" % (tmp, tmp + 1, r[4 * i + 3])) if i == 0 else ("v_max3_u32 v%d, v%d, v%d, v%d" % (tmp, tmp, tmp + 1, r[4 * i + 3]))]
                while sp or ck:
                    if sp: out.append(sp.pop(0))
                    if ck: out.append(ck.pop(0))
            return out + ["v_cmp_eq_u32 vcc, -1, v%d" % tmp]
        out = ["s_waitcnt vmcnt(%d)" % (n if k == 0 else 0)]
        mt = maxtree(regs(k), tmp) + ["v_cmp_eq_u32 vcc, -1, v%d" % tmp]
        sp = list(spec(k)); per = -(-len(mt) // len(sp)) if sp else 0
        for x in sp:
            out.append(x)
            for _ in range(per):
                if mt: out.append(mt.pop(0))
        return out + mt + (["s_and_b64 vcc, vcc, %s" % sr(lanes, 2)] if lanes else [])
    A("s_mov_b32 s%d, %s" % (sCNT, hx(SPIN)))
    delay(pre)
    fine = FINE and tag == int(FINE)
    if fine: CST(8)
    LB("Lp%d" % u)
    issue(0)
    if fine and 0: CST(9)
    if mid: mid()
    if gap >= 0: delay(gap)
    if gap >= 0: issue(1)
    lk = look(0)
    if gap < 0 and not (per_load and PROG): lk[0] = "s_waitcnt vmcnt(0)"
    for k, x in enumerate(lk):
        A(x)
        if fine and k == 0: CST(13)
    if fine: CST(14)
    A("s_cbranch_vccz Ld%d" % u)
    if gap < 0: issue(1)
    A("s_sub_u32 s%d, s%d, 1" % (sCNT, sCNT))
    for x in look(1): A(x)
    for x in (fix or []): A(x)
    A("s_cbranch_vccz Ld%d" % u)
    A("s_sub_u32 s%d, s%d, 1" % (sCNT, sCNT))
    A("s_cmp_gt_i32 s%d, 0" % sCNT)
    A("s_cbranch_scc1 Lp%d" % u)
    if stub: touch_stub(stub)
    LB("Ld%d" % u)
    if fine: CST(15)
    if DIAG and tag is not None:
        A("s_lshl_b32 m0, s%d, 2" % sLAY); A("s_add_u32 m0, m0, %d" % tag); A("s_nop 0")
        A("v_writelane_b32 v31, s%d, m0" % sCNT)

def lds_spin(off, target, tmp, mask=None, sleep=0):
    uid[0] += 1; u = uid[0]
    A("s_mov_b32 s%d, %s" % (sT2, hx(SPIN * 4)))
    LB("Ls%d" % u)
    A("ds_read_b32 v%d, v%d offset:%d" % (tmp, vFL, off))
    A("s_waitcnt lgkmcnt(0)")
    A("v_readfirstlane_b32 s%d, v%d" % (sT1, tmp))
    if mask: A("s_and_b32 s%d, s%d, %d" % (sT0, sT1, mask))
    A("s_cmp_ge_u32 s%d, %d" % (sT0 if mask else sT1, target))
    A("s_cbranch_scc1 Lt%d" % u)
    if sleep: A("s_sleep %d" % sleep)
    A("s_sub_u32 s%d, s%d, 1" % (sT2, sT2))
    A("s_cbranch_scc0 Ls%d" % u)
    LB("Lt%d" % u)

def lds_arrive(off, tmp, val=1):
    if val is not None: A("v_mov_b32 v%d, %d" % (tmp, val))
    A("s_mov_b64 exec, 1")
    A("ds_add_u32 v%d, v%d offset:%d" % (vFL, tmp, off))
    A("s_mov_b64 exec, -1")

def store_local(op, data, vaddr, so):
    uid[0] += 1; u = uid[0]
    A("s_cbranch_scc1 Lw%d" % u)
    A("%s %s, v%d, %s, s%d offen" % (op, data, vaddr, sr(sWS, 4), so))
    LB("Lx%d" % u)
    ool.append(["Lw%d:" % u, "    %s %s, v%d, %s, s%d offen sc1" % (op, data, vaddr, sr(sWS, 4), so), "    s_branch Lx%d" % u])
def fastcmp(): A("s_cmp_eq_u32 s%d, 0" % sFAST)

def mf(d, a, b, c):
    return "v_mfma_f32_16x16x32_bf16 %s, %s, %s, %s" % (vr(d, 4), vr(a, 4), vr(b, 4), "0" if c is None else vr(c, 4))
def mfma(d, a, b, c): A(mf(d, a, b, c))

def tags():
    A("s_add_u32 s%d, s%d, 1" % (sTG1, sE))
    A("s_mul_i32 s%d, s%d, 0x9E3779B1" % (sTG2, sTG1))
    A("s_and_b32 s%d, s%d, -8" % (sTG2, sTG2))

def common_addr():
    A("v_and_b32 v18, 3, v%d" % vLANE)
    A("v_lshlrev_b32 v%d, 12, v17" % vQST)
    A("v_lshrrev_b32 v24, 1, v16")
    A("v_lshl_add_u32 v%d, v24, 8, v%d" % (vQST, vQST))
    A("v_and_b32 v24, 1, v16")
    A("v_lshl_add_u32 v%d, v24, 3, v%d" % (vQST, vQST))
    A("v_lshlrev_b32 v%d, 4, v24" % vLSE)
    A("s_mul_i32 s%d, s%d, %d" % (sT0, sW, XS))
    A("s_add_u32 s%d, s%d, %d" % (sT0, sT0, L_XN))
    A("v_add_u32 v%d, s%d, v%d" % (vXNW, sT0, vL16))
    A("s_lshl_b32 s%d, s%d, 8" % (sT0, sA))
    A("s_add_u32 s%d, s%d, %d" % (sT0, sT0, L_XN))
    A("v_mul_u32_u24 v25, %d, v18" % XS)
    A("v_lshl_add_u32 v25, v16, 4, v25")
    A("v_add_u32 v%d, s%d, v25" % (vXNR, sT0))
    A("v_mov_b32 v%d, %s" % (vZ, hx(f2u(1.0 / 512))))
    for r in range(4): A("v_mov_b32 v%d, 0x3f803f80" % (ONES + r))
    A("s_and_b32 s%d, s%d, 1" % (sT1, sC))
    A("s_lshr_b32 s%d, s%d, 1" % (sT2, sC))
    soff(sQS, [(sT1, 11), (sW, 9), (sA, 6), (sT2, 4)], 0)
    A("v_bfe_u32 v24, v%d, 2, 2" % vLANE)
    A("v_lshl_add_u32 v24, v16, 3, v24")
    A("v_lshlrev_b32 v24, 7, v24")
    A("v_bfe_u32 v25, v%d, 3, 2" % vLANE)
    A("v_lshlrev_b32 v25, 1, v25")
    A("v_bfe_u32 v26, v%d, 1, 1" % vLANE)
    A("v_xor_b32 v25, v25, v26")
    A("v_lshl_add_u32 v24, v25, 4, v24")
    A("v_and_b32 v26, 1, v%d" % vLANE)
    A("v_lshl_add_u32 v%d, v26, 3, v24" % vWT)
    A("s_mov_b32 s%d, 0x000f000f" % sMSK)
    A("s_mov_b32 s%d, 0x000f000f" % (sMSK + 1))
    A("s_mov_b32 s%d, 0" % sLAY)

def wtile_voff(shift, d):
    A("v_lshrrev_b32 v24, 3, v%d" % vLANE)
    A("v_and_b32 v25, 7, v%d" % vLANE)
    A("v_and_b32 v26, 1, v16")
    A("v_lshlrev_b32 v26, 1, v26")
    A("v_xor_b32 v25, v25, v26")
    A("v_lshlrev_b32 v25, 4, v25")
    A("v_lshl_add_u32 v%d, v24, %d, v25" % (d, shift))
    A("v_xor_b32 v%d, 64, v%d" % (d + 1, d))

def wqf_reads():
    A("s_lshl_b32 s%d, s%d, 5" % (sT1, sW))
    A("v_xor_b32 v26, s%d, v%d" % (sT1, vWT))
    for t in range(4):
        for hf in range(2):
            A("ds_read_b64_tr_b16 %s, v26 offset:%d" % (vr(WQF + 4 * t + 2 * hf, 2), L_WQ + 4096 * t + 512 * hf))

def dma(vaddr, srdn, so, lds_s, step_so, flags="nt"):
    A("s_mov_b32 m0, s%d" % lds_s)
    A("s_add_u32 s%d, s%d, 1024" % (lds_s, lds_s))
    A("buffer_load_dwordx4 v%d, %s, s%d offen %s lds" % (vaddr, sr(srdn, 4), so, flags))
    A("s_add_u32 s%d, s%d, %d" % (so, so, step_so))

hdr = open("cdna_kernels/%s.s.ref" % NAME).read().split("; Override launch")[0]
L.append(hdr.rstrip("\n") + """
;
; One persistent launch, 256 workgroups (one per CU) x 8 waves.  wg = A(2b):C(3b):j(3b); j = kv head.
; K, V, wq and wo are read from HBM exactly once (LDS-DMA) and stay in registers for both attention layers.
;   roles of a workgroup:  attention (batch A, keys 128C..), q projection (wq rows 128A.., 64 columns C),
;                          output projection (head A of group j, 64 columns C), row reduction (batch A, columns 64C..)
;   waves 0-3: stream K/V, attention, output projection, LayerNorm + mixer + next q projection
;   waves 4-7: first q projection, then the token-mixer MLP g(h) = sum_f gelu(h w1 + b1) w2 + b2 evaluated
;              exactly (all 1792 hidden units) for every bf16 value h with 2^-17 <= |h| < 8; h is a bf16 tensor in the
;              reference, so the mixer is a lookup of these values; any other h is evaluated directly (Lslow).
; Hand-offs between workgroups go through d_ws.  Slots are filled with a sentinel at the start of the launch and a
; consumer polls until no sentinel is left; the first hand-off (q) and the "sentinels are in place" announcements
; carry a tag derived from a word that every launch advances.  Stores inside a kv-head group are plain when the
; whole group reports the same XCC id, write-through otherwise; every poll is bounded.
""".rstrip("\n"))
L.append("; @launch grid=(256,1,1) block=(512,1,1) lds=%d" % LDS_SZ)
L.append('.amdgcn_target "amdgcn-amd-amdhsa--gfx950"')
L.append(".text\n" + (".p2align 12\n" if int(OPT.get("al", 0)) else "") + ".globl %s_kernel\n.p2align 8\n.type %s_kernel,@function\n%s_kernel:" % (NAME, NAME, NAME))
if DIAG: A("s_memrealtime s[42:43]")
if DBL or TOT: A("s_memrealtime s[98:99]")
sM = 96
A("s_lshr_b32 s%d, s2, 8" % sT0)
A("s_cbranch_scc1 Lend")
A("s_load_dwordx2 %s, s[0:1], 24" % sr(sWQ, 2))
A("s_load_dwordx4 %s, s[0:1], 0" % sr(sT2, 4))
A("v_readfirstlane_b32 s%d, v0" % sW)
C("every wave pulls one line of this kernel's code into L2 (plain read): 32 workgroups x 4 lines")
A("s_getpc_b64 s[10:11]")
LB("Lpc0")
A("s_lshr_b32 s%d, s2, 3" % sM)
A("s_lshl_b32 s%d, s%d, 9" % (sCNT, sM))
A("s_cmp_lg_u32 s%d, 0" % sW)
A("s_cbranch_scc1 Lnopf")
A("v_and_b32 v19, 3, v0")
A("v_lshl_add_u32 v19, v19, 7, s%d" % sCNT)
A("global_load_dword v%d, v19, s[10:11]" % (W + 8))
LB("Lnopf")
A("s_and_b32 s%d, s2, 7" % sJ)
A("s_lshr_b32 s%d, s2, 6" % sA)
A("s_and_b32 s%d, s%d, 7" % (sC, sM))
A("s_lshl_b32 s%d, 1, 17" % (sWQ + 3))
A("s_bitcmp1_b32 s%d, 8" % sW)
A("s_cbranch_scc0 Lmain0")
vKA, vVA = W + 40, W + 44
sRO, sRM = sVO, 97 if not TOT else 94
if TOT: sRM = sOL
def kv_issue(i):
    A("s_add_u32 m0, s%d, s%d" % (sKL if i < 8 else sVL, sRO))
    A("s_add_u32 s%d, s%d, s%d" % (sCNT, sKO, sRO))
    if i < 8: A("buffer_load_dwordx4 v%d, %s, s%d offen nt lds" % (vKA + (i & 3), sr(sK, 4), sCNT))
    else: A("buffer_load_dwordx4 v%d, %s, s%d offen nt lds" % (vVA + (i & 1), sr(sV, 4), sCNT))
    A("s_addk_i32 s%d, %d" % (sRO, 1024 + (VROT * 1024 if i == 7 else 0)))
    A("s_and_b32 s%d, s%d, 0x1fff" % (sRO, sRO))
def lane_init():
    A("v_and_b32 v%d, 63, v0" % vLANE)
    A("v_mov_b32 v%d, %d" % (vFL, L_FLG))
    A("v_lshlrev_b32 v%d, 4, v%d" % (vL16, vLANE))
    A("v_lshrrev_b32 v16, 4, v%d" % vLANE)
    A("v_and_b32 v17, 15, v%d" % vLANE)
    A("v_mov_b32 v20, 0")
    if DIAG: A("v_mov_b32 v30, 0")
def main_early():
    LB("Lmain0")
    for s, off in [(sW1, 48), (sB1, 56), (sW2, 64)]:
        A("s_load_dwordx2 %s, s[0:1], %d" % (sr(s, 2), off))
    lane_init()
    A("v_mov_b32 v21, 0")
    for k in range(4): A("ds_write_b64 v%d, v[20:21] offset:%d" % (vFL, 8 * k))
    A("s_lshl_b32 s%d, 1, 25" % (sK + 2)); A("s_mov_b32 s%d, s%d" % (sK + 3, sWQ + 3))
    A("v_xor_b32 v18, v17, v16")
    A("v_lshlrev_b32 v18, 4, v18")
    A("v_lshl_add_u32 v%d, v16, 8, v18" % vKA)
    A("s_lshl_b32 s%d, s%d, %d" % (sRO, sC, 10 if ROT else 31))
    if not ROT: A("s_mov_b32 s%d, 0" % sRO)
    A("s_bfe_u32 s%d, s%d, 0x2000a" % (sT1, sRO))
    A("s_lshl_b32 s%d, s%d, 6" % (sT1, sT1))
    for k in range(1, 4):
        A("s_add_u32 s%d, s%d, %d" % (sCNT, sT1, 64 * k))
        A("s_and_b32 s%d, s%d, 0xc0" % (sCNT, sCNT))
        A("v_xor_b32 v%d, s%d, v%d" % (vKA + k, sCNT, vKA))
    A("v_xor_b32 v%d, s%d, v%d" % (vKA, sT1, vKA))
    soff(sKO, [(sA, 23), (sJ, 20), (sC, 15), (sW, 7)], 3072 * 256)
    A("s_add_u32 s%d, s%d, %d" % (sKL, sT0, L_K))
    A("s_waitcnt lgkmcnt(0)")
    A("s_mov_b64 %s, %s" % (sr(sK, 2), sr(sT4, 2)))
    for i in range(D0): kv_issue(i)
    C("lane k<3 of wave 3 pulls a slice of coefficient array k into L2")
    A("s_cmp_lg_u32 s%d, 192" % sW)
    A("s_cbranch_scc1 Lm_nopf")
    A("s_min_u32 s%d, s%d, 27" % (sT1, sM))
    A("s_lshl_b32 s%d, s%d, 7" % (sT1, sT1))
    A("v_mov_b32 v19, s%d" % sT1)
    A("s_mov_b64 exec, 1")
    for k, sd in enumerate([sW1, sB1, sW2]): A("global_load_dword v%d, v19, %s" % (W + 9 + k, sr(sd, 2)))
    A("s_mov_b64 exec, -1")
    LB("Lm_nopf")
    A("s_add_u32 s%d, s%d, %d" % (sVL, sT0, L_V))
    A("s_lshr_b32 s%d, s%d, 6" % (sW, sW))
    if DIAG: A("v_writelane_b32 v30, s42, 0")
    STAMP(10)
    A("s_branch Lmain")

C("---- helper waves: first q projection, then the table of g over bf16 inputs ----")
HW1, HB1, HW2 = 32, 60, 112
hK0, hK1, hONE, hRES = 88, 90, 92, 94
AC = [140, 142]
A("s_load_dwordx2 %s, s[0:1], 96" % sr(sWS, 2))
C("wq tile DMA: instruction i, thread t' = t-256: row 32 i + (t'>>3), 16-byte chunk (t'&7) ^ swizzle")
A("v_bfe_u32 v23, v0, 3, 5")
A("v_and_b32 v22, 7, v0")
A("v_and_b32 v24, 2, v23")
A("v_lshrrev_b32 v25, 1, v23")
A("v_and_or_b32 v24, v25, 4, v24")
A("v_xor_b32 v22, v22, v24")
A("v_lshlrev_b32 v22, 4, v22")
A("v_lshl_add_u32 v22, v23, 13, v22")
soff(sQL, [(sA, 20), (sJ, 10), (sC, 7)], 0)
A("s_lshl_b32 s%d, 1, 22" % (sWQ + 2))
A("s_lshl_b32 s%d, 1, 18" % sT1)
A("s_lshl_b32 s%d, s%d, 4" % (sQS, sW))
A("s_add_u32 m0, s%d, %d" % (sQS, L_WQ - 4096))
A("v_lshlrev_b32 v21, 4, v0")
if DIAG: A("s_memrealtime s[88:89]")
A("s_waitcnt lgkmcnt(0)")
if DIAG: A("s_memrealtime s[90:91]")
A("global_load_dwordx4 %s, v21, %s offset:-4096" % (vr(XR, 4), sr(sT2, 2)))
for i in range(4):
    if i:
        A("s_addk_i32 m0, 0x1000")
        A("s_add_u32 s%d, s%d, s%d" % (sQL, sQL, sT1))
    A("buffer_load_dwordx4 v22, %s, s%d offen nt lds" % (sr(sWQ, 4), sQL))
if DIAG: A("s_memrealtime s[92:93]")
lane_init()
A("s_bfe_u32 s%d, s%d, 0x20006" % (sW, sW))
A("s_lshl_b32 s%d, s%d, 10" % (sT3, sW))
srd(sWS, WS_SZ)
C("early sentinels (O0, LSE0): hw0 1024 B, the others 16 B")
for i in range(4): A("v_mov_b32 v%d, -1" % (PM + i))
A("s_mul_i32 s%d, s%d, %d" % (sT5, sM, CLRA_PER))
A("s_lshl_b32 s%d, s%d, 17" % (sGR, sJ))
A("s_add_u32 s%d, s%d, s%d" % (sT5, sT5, sGR))
A("s_add_u32 s%d, s%d, 1024" % (sT4, sT5))
A("s_cmp_ge_u32 s%d, 2" % sW)
A("s_cbranch_scc1 Lhc_skip")
A("s_cmp_eq_u32 s%d, 0" % sW)
A("s_cselect_b32 s%d, s%d, s%d" % (sT5, sT5, sT4))
A("s_cselect_b64 exec, -1, 1")
A("buffer_store_dwordx4 %s, v%d, %s, s%d offen sc1" % (vr(PM, 4), vL16, sr(sWS, 4), sT5))
LB("Lhc_skip")
A("s_mov_b64 exec, -1")
A("s_branch Lhelp2")
main_early()
LB("Lhelp2")
if QT:
    C("touch 2 lines of the tagged q mailbox per wave so that they sit in L2 before they are written")
    soff(sT4, [(sM, 10), (sW, 8), (sJ, 17)], Q0_OFF)
    A("v_lshlrev_b32 v24, 7, v%d" % vLANE)
    A("s_mov_b64 exec, 3")
    A("buffer_load_dword v%d, v24, %s, s%d offen" % (RES + 1, sr(sWS, 4), sT4))
A("s_mov_b64 exec, -1")
if HP: A("s_setprio 3")
A("s_load_dword s%d, %s, %s" % (sE, sr(sWS, 2), hx(EPO)))
A("s_load_dwordx2 %s, s[0:1], 72" % sr(sB2P, 2))
if DIAG:
    A("v_writelane_b32 v30, s42, 0")
    A("s_waitcnt lgkmcnt(0)")
    A("v_mov_b32 v31, 0")
    A("v_writelane_b32 v31, s88, 0"); A("v_writelane_b32 v31, s90, 1"); A("v_writelane_b32 v31, s92, 2")
STAMP(9)
A("s_barrier")
A("s_lshl_b32 s%d, s2, 2" % sHC)
A("s_add_u32 s%d, s%d, s%d" % (sHC, sHC, sW))
sHX = 86
if XENT:
    C("extra entry e = wave index: |h| code ELO*128 + (e>>1), sign e&1")
    A("s_lshr_b32 s%d, s%d, 1" % (sHX, sHC))
    A("s_add_u32 s%d, s%d, %d" % (sHX, sHX, ELO * 128))
    A("s_lshl_b32 s%d, s%d, 16" % (sHX, sHX))
    A("s_lshl_b32 s%d, s%d, 31" % (sT0, sHC))
    A("s_or_b32 s%d, s%d, s%d" % (sHX, sHX, sT0))
A("s_mul_i32 s%d, s%d, %d" % (sHC, sHC, EPW))
A("s_lshl_b32 s%d, s%d, 3" % (sHT, sHC))
A("s_add_u32 s%d, s%d, %d" % (sHT, sHT, XENT * 4))
A("s_add_u32 s%d, s%d, %d" % (sHC, sHC, ELO * 128 + XENT // 2))
A("s_lshl_b32 s%d, s%d, 16" % (sHC, sHC))
A("v_lshlrev_b32 v27, 2, v%d" % vLANE)
A("v_add_u32 v27, s%d, v27" % sHT)
A("s_mov_b32 s%d, %s" % (sHT, hx(TB)))
common_addr()
A("s_lshl_b32 s%d, s%d, 1" % (sQS, sQS))
A("s_add_u32 s%d, s%d, s%d" % (sQS, sQS, sGR))
A("s_add_u32 s%d, s%d, %s" % (sQS, sQS, hx(Q0_OFF)))
A("v_lshlrev_b32 v%d, 1, v%d" % (vQST, vQST))
A("s_getreg_b32 s%d, hwreg(HW_REG_XCC_ID, 0, 3)" % sXCC)
for r, c in [(hK0, K0), (hK1, K1), (hONE, 1.0)]:
    A("v_mov_b32 v%d, %s" % (r, hx(f2u(c)))); A("v_mov_b32 v%d, %s" % (r + 1, hx(f2u(c))))
A("v_mov_b32 v%d, 0" % hRES)
A("s_mov_b32 s%d, 0" % sIT)
if DRY:
    C("dry run of the q-projection code while its inputs are in flight (instruction cache warm-up; no side effects)")
    A("s_mov_b32 s%d, 1" % sIT)
    A("s_branch Llnq")
    LB("Ldry_done")
    A("s_mov_b64 exec, -1")
    A("s_mov_b32 s%d, 0" % sIT)
if WARM:
    C("warm the instruction cache lines at the far jump targets of the main waves")
    for k, nm in enumerate(["k", "fin", "out", "tab"]):
        A("s_cmp_lg_u32 s%d, %d" % (sW, k))
        A("s_cbranch_scc1 Lwm%d" % k)
        A("s_call_b64 %s, Lst_%s" % (sr(sRET, 2), nm))
        if nm == "out": A("s_call_b64 %s, Lst_mq" % sr(sRET, 2))
        LB("Lwm%d" % k)
A("s_cmp_ge_u32 s%d, 2" % sW)
A("s_cbranch_scc0 Lhx5")
A("s_waitcnt vmcnt(%d)" % (4 + QT))
LB("Lhx5")
A("s_waitcnt vmcnt(%d)" % (5 + QT))
STAMP(1)
A("s_branch Llnq")
LB("Lq_first")
if DRY:
    A("s_cmp_lg_u32 s%d, 0" % sIT)
    A("s_cbranch_scc1 Lq_dry")
A("s_waitcnt vmcnt(0) lgkmcnt(0)")
STAMP(2)
lds_arrive(0, vT + 4)
tags()
A("s_or_b32 s%d, s%d, s%d" % (sXCC, sXCC, sTG2))
C("4 helper arrivals (wq tile, xn rows) + 4 main arrivals (coefficients landed, sentinels acknowledged)")
lds_spin(0, 4, vT + 4)
STAMP(6)
LB("Lq_dry")
wqf_reads()
A("s_waitcnt lgkmcnt(0)")
A("s_branch Lq_go")
LB("Lh_qst")
if DRY:
    A("s_cmp_lg_u32 s%d, 0" % sIT)
    A("s_cbranch_scc1 Ldry_done")
STAMP(5)
A("v_mov_b32 v%d, s%d" % (W + 6, sTG1))
A("v_mov_b32 v%d, s%d" % (W + 7, sXCC))
A("buffer_store_dwordx4 %s, v%d, %s, s%d offen%s" % (vr(W + 4, 4), vQST, sr(sWS, 4), sQS, "" if int(OPT.get("fast", 1)) else " sc1"))
A("s_add_u32 s%d, s%d, %s" % (sQS, sQS, hx(QB_DELTA)))
if not QBD: A("buffer_store_dwordx4 %s, v%d, %s, s%d offen sc1" % (vr(W + 4, 4), vQST, sr(sWS, 4), sQS))
A("s_mov_b64 exec, -1")
HR = W + 8
if ADP: lds_arrive(28, 24)
if HP: A("s_setprio 0")
STAMP(3)
A("v_lshlrev_b32 v26, 3, v%d" % vLANE)
lds_spin(24, 4, 24, sleep=1)
for a_ in range(3):
    for k in range(3):
        A("ds_read_b128 %s, v%d offset:%d" % (vr(HR + 14 * a_ + 4 * k, 4), vL16, 4096 * a_ + 1024 * k))
    A("ds_read_b64 %s, v26 offset:%d" % (vr(HR + 14 * a_ + 12, 2), 4096 * a_ + 3072))
for a_, d in [(0, HW1), (14, HB1), (28, HW2)]:
    A("s_waitcnt lgkmcnt(%d)" % (8 - 4 * (a_ // 14)))
    for p in range(14):
        A("v_lshlrev_b32 v%d, 16, v%d" % (d + 2 * p, HR + a_ + p))
        A("v_and_b32 v%d, 0xffff0000, v%d" % (d + 2 * p + 1, HR + a_ + p))
A("s_load_dword s%d, %s, 0" % (sB2, sr(sB2P, 2)))
STAMP(4)
if DIAG:
    A("s_memtime s[42:43]"); A("s_waitcnt lgkmcnt(0)"); A("v_writelane_b32 v30, s42, 13")
LB("Lhl")
if DIAG:
    A("s_memrealtime s[42:43]"); A("s_add_u32 m0, s%d, 10" % sIT); A("s_waitcnt lgkmcnt(0)"); A("v_writelane_b32 v30, s42, m0")
A("s_mov_b32 s%d, s%d" % (sH, sHC)); A("s_mov_b32 s%d, s%d" % (sH + 1, sHC))
A("s_xor_b32 s%d, s%d, 0x80000000" % (sH2, sHC)); A("s_mov_b32 s%d, s%d" % (sH2 + 1, sH2))
U4 = [144, 146, 148, 150]; T4 = [152, 154, 156, 158]; Z4 = [160, 162, 164, 166]
for p2 in range(7):
    ch = [(2 * p2 + k // 2, k & 1) for k in range(4)]
    for k, (p, sg) in enumerate(ch):
        A("v_pk_fma_f32 %s, %s, %s, %s" % (vr(U4[k], 2), vr(HW1 + 2 * p, 2), sr([sH, sH2][sg], 2), vr(HB1 + 2 * p, 2)))
    for k in range(4): A("v_pk_mul_f32 %s, %s, %s" % (vr(T4[k], 2), vr(U4[k], 2), vr(U4[k], 2)))
    for k in range(4): A("v_pk_fma_f32 %s, %s, %s, %s" % (vr(T4[k], 2), vr(T4[k], 2), vr(hK1, 2), vr(hK0, 2)))
    for k in range(4): A("v_pk_mul_f32 %s, %s, %s" % (vr(T4[k], 2), vr(T4[k], 2), vr(U4[k], 2)))
    for k in range(4):
        for h in range(2): A("v_exp_f32 v%d, v%d" % (T4[k] + h, T4[k] + h))
    for k, (p, sg) in enumerate(ch): A("v_pk_mul_f32 %s, %s, %s" % (vr(Z4[k], 2), vr(U4[k], 2), vr(HW2 + 2 * p, 2)))
    for k in range(4): A("v_pk_add_f32 %s, %s, %s" % (vr(T4[k], 2), vr(T4[k], 2), vr(hONE, 2)))
    for k in range(4):
        for h in range(2): A("v_rcp_f32 v%d, v%d" % (T4[k] + h, T4[k] + h))
    for k, (p, sg) in enumerate(ch):
        if p == 0: A("v_pk_mul_f32 %s, %s, %s" % (vr(AC[sg], 2), vr(Z4[k], 2), vr(T4[k], 2)))
        else: A("v_pk_fma_f32 %s, %s, %s, %s" % (vr(AC[sg], 2), vr(Z4[k], 2), vr(T4[k], 2), vr(AC[sg], 2)))
A("v_add_f32 v%d, v%d, v%d" % (AC[0], AC[0], AC[0] + 1))
A("v_add_f32 v%d, v%d, v%d" % (AC[1], AC[1], AC[1] + 1))
A("s_lshl_b32 m0, s%d, 1" % sIT)
A("s_add_u32 s%d, s%d, 0x10000" % (sHC, sHC))
wave_sum2(AC[0], AC[1], sSUM, sSQ)
A("s_add_u32 s%d, s%d, 1" % (sIT, sIT))
A("s_nop 0")
A("v_writelane_b32 v%d, s%d, m0" % (hRES, sSUM))
A("s_add_u32 m0, m0, 1")
A("s_cmp_lg_u32 s%d, %d" % (sIT, EPW))
A("v_writelane_b32 v%d, s%d, m0" % (hRES, sSQ))
A("s_cbranch_scc1 Lhl")
def h_publish(lanes):
    A("v_cvt_pk_bf16_f32 v%d, v%d, v%d" % (hRES, hRES, hRES))
    A("v_and_b32 v%d, 0xffff0000, v%d" % (hRES, hRES))
    A("v_add_f32 v%d, s%d, v%d" % (hRES, sB2, hRES))
    A("v_cvt_pk_bf16_f32 v%d, v%d, v%d" % (hRES, hRES, hRES))
    A("v_and_b32 v%d, 0xffff0000, v%d" % (hRES + 1, hRES))
    A("s_mov_b64 exec, %d" % lanes)
    A("buffer_store_dword v%d, v27, %s, s%d offen sc1" % (hRES + 1, sr(sWS, 4), sHT))
    A("s_mov_b64 exec, -1")
A("s_waitcnt lgkmcnt(0)")
A("s_lshl_b32 s%d, s%d, 16" % (sB2, sB2))
lds_spin(8, 4, 24)
h_publish((1 << (2 * EPW)) - 1)
if QBD:
    C("the write-through copy of q is only needed when the group is not known to sit on one XCD")
    A("ds_read_b32 v24, v%d offset:4" % vFL)
    A("s_waitcnt lgkmcnt(0)")
    A("v_readfirstlane_b32 s%d, v24" % sT0)
    A("s_cmp_eq_u32 s%d, 4" % sT0)
    A("s_cbranch_scc1 Lhqb")
    A("s_mov_b64 exec, %s" % sr(sMSK, 2))
    A("buffer_store_dwordx4 %s, v%d, %s, s%d offen sc1" % (vr(W + 4, 4), vQST, sr(sWS, 4), sQS))
    A("s_mov_b64 exec, -1")
    LB("Lhqb")
STAMP(8)
if XENT:
    A("s_mov_b32 s%d, s%d" % (sH, sHX)); A("s_mov_b32 s%d, s%d" % (sH + 1, sHX))
    for grp in [[0, 1, 2, 3], [4, 5, 6, 7], [8, 9, 10], [11, 12, 13]]:
        n = len(grp)
        for k, p in enumerate(grp): A("v_pk_fma_f32 %s, %s, %s, %s" % (vr(U4[k], 2), vr(HW1 + 2 * p, 2), sr(sH, 2), vr(HB1 + 2 * p, 2)))
        for k in range(n): A("v_pk_mul_f32 %s, %s, %s" % (vr(T4[k], 2), vr(U4[k], 2), vr(U4[k], 2)))
        for k in range(n): A("v_pk_fma_f32 %s, %s, %s, %s" % (vr(T4[k], 2), vr(T4[k], 2), vr(hK1, 2), vr(hK0, 2)))
        for k in range(n): A("v_pk_mul_f32 %s, %s, %s" % (vr(T4[k], 2), vr(T4[k], 2), vr(U4[k], 2)))
        for k in range(n):
            for h in range(2): A("v_exp_f32 v%d, v%d" % (T4[k] + h, T4[k] + h))
        for k, p in enumerate(grp): A("v_pk_mul_f32 %s, %s, %s" % (vr(Z4[k], 2), vr(U4[k], 2), vr(HW2 + 2 * p, 2)))
        for k in range(n): A("v_pk_add_f32 %s, %s, %s" % (vr(T4[k], 2), vr(T4[k], 2), vr(hONE, 2)))
        for k in range(n):
            for h in range(2): A("v_rcp_f32 v%d, v%d" % (T4[k] + h, T4[k] + h))
        for k, p in enumerate(grp):
            if p < 2: A("v_pk_mul_f32 %s, %s, %s" % (vr(AC[p & 1], 2), vr(Z4[k], 2), vr(T4[k], 2)))
            else: A("v_pk_fma_f32 %s, %s, %s, %s" % (vr(AC[p & 1], 2), vr(Z4[k], 2), vr(T4[k], 2), vr(AC[p & 1], 2)))
    A("v_add_f32 v%d, v%d, v%d" % (AC[0], AC[0], AC[0] + 1))
    A("v_add_f32 v%d, v%d, v%d" % (AC[1], AC[1], AC[1] + 1))
    A("v_add_f32 v%d, v%d, v%d" % (AC[0], AC[0], AC[1]))
    A("s_nop 1")
    wave_sum2(AC[0], AC[1], sSUM, sSQ)
    A("s_nop 1")
    A("v_mov_b32 v%d, s%d" % (hRES, sSUM))
    A("v_cvt_pk_bf16_f32 v%d, v%d, v%d" % (hRES, hRES, hRES))
    A("v_and_b32 v%d, 0xffff0000, v%d" % (hRES, hRES))
    A("v_add_f32 v%d, s%d, v%d" % (hRES, sB2, hRES))
    A("v_cvt_pk_bf16_f32 v%d, v%d, v%d" % (hRES, hRES, hRES))
    A("v_and_b32 v%d, 0xffff0000, v%d" % (hRES, hRES))
    C("the last of the four helpers stores the workgroup's four extra entries with one instruction")
    A("s_lshl_b32 s%d, s%d, 2" % (sT0, sW))
    A("v_add_u32 v16, s%d, v%d" % (sT0, vFL))
    A("v_mov_b32 v17, 1")
    A("s_mov_b64 exec, 1")
    A("ds_write_b32 v16, v%d offset:32" % hRES)
    A("s_waitcnt lgkmcnt(0)")
    A("ds_add_rtn_u32 v18, v%d, v17 offset:28" % vFL)
    A("s_waitcnt lgkmcnt(0)")
    A("v_readfirstlane_b32 s%d, v18" % sT0)
    A("s_cmp_lg_u32 s%d, 3" % sT0)
    A("s_cbranch_scc1 Lhx_end")
    A("ds_read_b128 v[20:23], v%d offset:32" % vFL)
    A("s_lshl_b32 s%d, s2, 4" % sT0)
    A("v_mov_b32 v16, s%d" % sT0)
    A("s_waitcnt lgkmcnt(0)")
    A("buffer_store_dwordx4 v[20:23], v16, %s, s%d offen sc1" % (sr(sWS, 4), sHT))
    LB("Lhx_end")
    A("s_mov_b64 exec, -1")
if DIAG:
    A("s_memtime s[42:43]"); A("s_waitcnt lgkmcnt(0)"); A("v_writelane_b32 v30, s42, 14")
    STAMP(15)
STAMP(7)
C("stand in at the two barriers of the second layer, so that they do not wait for this wave's store acknowledgements")
A("s_barrier")
A("s_barrier")
if DIAG:
    A("s_add_u32 s%d, s%d, 4" % (sW, sW))
    A("v_mov_b32 v28, v30")
    A("s_branch Lfin_exit")
A("s_endpgm")

LB("Lmain")
for s, off in [(sWS, 96), (sV, 16), (sWO, 32), (sOUT, 80), (sX, 0), (sB2P, 72)]:
    A("s_load_dwordx2 %s, s[0:1], %d" % (sr(s, 2), off))
if DIAG == 2: A("s_load_dwordx2 s[100:101], s[0:1], 88")
srd(sWS, WS_SZ)
for s in [sW1, sB1, sW2]: srd(s, 3584)
A("s_lshl_b32 s%d, s%d, 10" % (sT3, sW))
A("s_barrier")
for i in range(D0, DC): kv_issue(i)
A("s_mov_b32 m0, s%d" % sT3)
for i, sd in enumerate([sW1, sB1, sW2]):
    if i: A("s_addk_i32 m0, 0x1000")
    A("s_nop 0")
    A("buffer_load_dwordx4 v%d, %s, s%d offen lds" % (vL16, sr(sd, 4), sT3))
for i in range(DC, D1): kv_issue(i)
for i in range(4): A("v_mov_b32 v%d, -1" % (W + i))
A("s_lshl_b32 s%d, s%d, 17" % (sGR, sJ))
A("s_mov_b32 s%d, s%d" % (sT1, sM))
A("s_waitcnt lgkmcnt(0)")
A("s_load_dword s%d, %s, %s" % (sE, sr(sWS, 2), hx(EPO)))
STAMP(11)
for s, n in [(sV, 1 << 25), (sX, 4096), (sWO, 1 << 22), (sOUT, 4096)]: srd(s, n)
A("v_lshlrev_b32 v18, 1, v16")
A("v_xor_b32 v18, v17, v18")
A("v_lshlrev_b32 v18, 4, v18")
A("v_lshl_add_u32 v%d, v16, 8, v18" % vVA)
if ROT:
    A("s_and_b32 s%d, s%d, 1" % (sT0, sC))
    A("s_lshl_b32 s%d, s%d, 7" % (sT0, sT0))
    A("v_xor_b32 v%d, s%d, v%d" % (vVA, sT0, vVA))
A("v_xor_b32 v%d, 128, v%d" % (vVA + 1, vVA))
C("late sentinels: wave 0,1: group region ; wave 2: P chunk")
A("s_lshr_b32 s%d, s2, 3" % sT1)
A("s_mul_i32 s%d, s%d, %d" % (sT1, sT1, CLRB_PER))
A("s_lshl_b32 s%d, s%d, 10" % (sT0, sW))
A("s_add_u32 s%d, s%d, s%d" % (sT1, sT1, sT0))
A("s_add_u32 s%d, s%d, s%d" % (sT1, sT1, sGR))
A("s_add_u32 s%d, s%d, %d" % (sT1, sT1, CLRB_OFF))
A("s_lshl_b32 s%d, s2, 10" % sT0)
A("s_add_u32 s%d, s%d, %s" % (sT0, sT0, hx(PB)))
A("s_cmp_ge_u32 s%d, 2" % sW)
A("s_cselect_b32 s%d, s%d, s%d" % (sT1, sT0, sT1))
A("s_bfm_b64 %s, %d, 0" % (sr(sH, 2), (CLRB_PER - 1024) // 16))
A("s_cmp_eq_u32 s%d, 1" % sW)
A("s_cselect_b64 %s, %s, -1" % (sr(sH, 2), sr(sH, 2)))
NCL = NOCT * 4 // 16
A("v_mov_b32 v19, v%d" % vL16)
A("s_cmp_lg_u32 s%d, 3" % sW)
A("s_cbranch_scc1 Lm_c3")
C("wave 3: this workgroup's table slots")
A("s_mul_i32 s%d, s2, %d" % (sT0, NOCT * 4))
A("s_add_u32 s%d, s%d, %d" % (sT0, sT0, XENT * 4))
A("v_add_u32 v19, s%d, v19" % sT0)
A("s_lshl_b32 s%d, s2, 4" % sT0)
if XENT: A("v_writelane_b32 v19, s%d, %d" % (sT0, NCL))
A("s_mov_b32 s%d, %s" % (sT1, hx(TB)))
A("s_mov_b64 %s, %d" % (sr(sH, 2), (1 << (NCL + (1 if XENT else 0))) - 1))
LB("Lm_c3")
A("s_mov_b64 exec, %s" % sr(sH, 2))
A("buffer_store_dwordx4 %s, v19, %s, s%d offen sc1" % (vr(W, 4), sr(sWS, 4), sT1))
A("s_mov_b64 exec, -1")

common_addr()
A("s_add_u32 s%d, s%d, s%d" % (sQS, sQS, sGR))
A("s_add_u32 s%d, s%d, %d" % (sQS, sQS, Q1_OFF))
wtile_voff(10, 22)
A("v_and_b32 v19, 7, v%d" % vLANE)
A("v_lshrrev_b32 v25, 2, v%d" % vLANE)
A("v_lshlrev_b32 v25, 7, v25")
A("v_lshl_add_u32 v%d, v18, 2, v25" % vOST)
A("v_lshlrev_b32 v25, 7, v16")
A("v_lshl_add_u32 v%d, v19, 4, v25" % vOLD)
C("lanes n>=8 of the first two o loads fetch the lse values instead: offset relative to the o block")
A("s_mul_i32 s%d, s%d, %d" % (sT0, sA, 128 - 8192))
A("s_mul_i32 s%d, s%d, %d" % (sT1, sW, 32 - 2048))
A("s_add_u32 s%d, s%d, s%d" % (sT0, sT0, sT1))
A("s_add_u32 s%d, s%d, %d" % (sT0, sT0, LSE_OFF[0] - O_OFF[0]))
A("v_add_u32 v25, s%d, v%d" % (sT0, vLSE))
A("v_xor_b32 v26, 16, v25")
A("v_add_u32 v26, -512, v26")
A("v_cmp_gt_u32 vcc, 8, v17")
A("s_nop 1")
A("v_cndmask_b32 v%d, v25, v%d, vcc" % (vLSE, vOLD))
A("v_cndmask_b32 v%d, v26, v%d, vcc" % (vLS2, vOLD))
A("v_lshlrev_b32 v%d, 1, v%d" % (vPST, vLANE))
A("v_lshlrev_b32 v25, 3, v16")
A("v_lshl_add_u32 v%d, v19, 4, v25" % vX1S)
A("s_mul_i32 s%d, s%d, %d" % (sT0, sW, RBS))
A("s_add_u32 s%d, s%d, %d" % (sT0, sT0, L_RB))
A("v_mul_u32_u24 v25, 528, v18")
A("v_lshl_add_u32 v25, v16, 4, v25")
A("v_lshrrev_b32 v26, 2, v17")
A("v_lshl_add_u32 v25, v26, 7, v25")
A("v_add_u32 v%d, s%d, v25" % (vRBW, sT0))
A("s_mul_i32 s%d, s%d, 528" % (sT0, sW))
A("s_add_u32 s%d, s%d, %d" % (sT0, sT0, L_RB))
A("v_lshlrev_b32 v25, 3, v%d" % vLANE)
A("v_add_u32 v%d, s%d, v25" % (vRBR, sT0))
A("s_lshl_b32 s%d, s%d, 3" % (sT0, sW))
A("s_add_u32 s%d, s%d, %d" % (sT0, sT0, L_ML))
A("v_lshlrev_b32 v25, 5, v18")
A("v_add_u32 v%d, s%d, v25" % (vMLW, sT0))
A("s_lshl_b32 s%d, s%d, 5" % (sT0, sW))
A("s_add_u32 s%d, s%d, %d" % (sT0, sT0, L_ML))
A("v_mov_b32 v%d, s%d" % (vMLR, sT0))
A("v_mov_b32 v25, 0x3f80")
A("v_mov_b32 v26, 0x3f800000")
for r in range(4):
    A("v_cmp_eq_u32 vcc, %d, v17" % (2 * r))
    A("v_cmp_eq_u32 %s, %d, v17" % (sr(sH, 2), 2 * r + 1))
    A("s_nop 0")
    A("v_cndmask_b32 v%d, 0, v25, vcc" % (SEL + r))
    A("v_cndmask_b32 v%d, v%d, v26, %s" % (SEL + r, SEL + r, sr(sH, 2)))
for i in range(16): A("v_mov_b32 v%d, 0" % (PM + i))
for p in range(4):
    A("s_mov_b32 s%d, %s" % (sPM + 2 * p, hx(0x000f000f << (4 * p))))
    A("s_mov_b32 s%d, %s" % (sPM + 2 * p + 1, hx(0x000f000f << (4 * p))))
soff(sOS, [(sW, 13), (sA, 11), (sC, 4), (sJ, 17)], O_OFF[0])
soff(sOL, [(sA, 13), (sW, 11), (sJ, 17)], O_OFF[0])
A("s_add_u32 s%d, s%d, %s" % (sQL, sOL, hx(Q0_OFF - O_OFF[0])))
soff(sLS, [(sW, 7), (sA, 5), (sC, 2), (sJ, 17)], LSE_OFF[0])
soff(sPS, [(sW, 15), (sC, 12), (sJ, 9), (sA, 7)], PB)
A("s_mov_b32 s%d, %s" % (sSC, hx(f2u(128 ** -0.5 * math.log2(math.e)))))
A("s_getreg_b32 s%d, hwreg(HW_REG_XCC_ID, 0, 3)" % sXCC)
A("v_xor_b32 v24, v16, v17")
A("v_lshlrev_b32 v24, 4, v24")
A("v_lshl_add_u32 v24, v17, 8, v24")
A("s_lshl_b32 s%d, s%d, 13" % (sT1, sW))
A("s_add_u32 s%d, s%d, %d" % (sT2, sT1, L_K))
for t in range(4): A("v_xor_b32 v%d, %d, v24" % (18 + t, 64 * t))
for t in range(4): A("v_add_u32 v%d, s%d, v%d" % (18 + t, sT2, 18 + t))
VA = W + 32
A("v_lshrrev_b32 v24, 2, v%d" % vLANE)
A("v_and_b32 v25, 7, v24")
A("v_lshlrev_b32 v25, 1, v25")
A("v_bfe_u32 v26, v%d, 1, 1" % vLANE)
A("v_xor_b32 v25, v25, v26")
A("v_lshlrev_b32 v25, 4, v25")
A("v_lshl_add_u32 v25, v24, 8, v25")
A("v_and_b32 v26, 1, v%d" % vLANE)
A("v_lshl_add_u32 v25, v26, 3, v25")
A("s_add_u32 s%d, s%d, %d" % (sT2, sT1, L_V))
for t in range(8): A("v_xor_b32 v%d, %d, v25" % (VA + t, 32 * t))
for t in range(8): A("v_add_u32 v%d, s%d, v%d" % (VA + t, sT2, VA + t))
soff(sT4, [(sJ, 19), (sA, 17), (sW, 15), (sC, 7)], 0)
A("s_lshl_b32 s%d, s%d, 12" % (sT5, sW))
A("s_add_u32 s%d, s%d, %d" % (sT5, sT5, L_WO))
soff(sT3, [(sA, 10), (sC, 7)], 0)
A("v_lshlrev_b32 v24, 5, v%d" % vLANE)
A("s_lshl_b32 s%d, s%d, 10" % (sT2, sW))
A("s_add_u32 s%d, s%d, %d" % (sT2, sT2, L_QF))
A("v_add_u32 v25, s%d, v%d" % (sT2, vL16))
A("v_add_u32 v26, %d, v%d" % (L_QF, vL16))
STAMP(12)
if DIAG: A("v_mov_b32 v31, v30")
QP = W
def q0_issue(QP=QP):
    A("buffer_load_dwordx4 %s, v24, %s, s%d offen sc1" % (vr(QP, 4), sr(sWS, 4), sQL))
    A("buffer_load_dwordx4 %s, v24, %s, s%d offen offset:16 sc1" % (vr(QP + 4, 4), sr(sWS, 4), sQL))
def flag_block():
    if True:
        A("s_cmp_lg_u32 s%d, 0" % sW)
        A("s_cbranch_scc1 Lnoflag")
        C("every sentinel store of this workgroup is acknowledged: announce it")
        lds_spin(8, 4, vT)
        A("v_mov_b32 v16, s%d" % sTG1)
        A("v_mov_b32 v17, s%d" % sXCC)
        soff(sT1, [(2, 4)], FB)
        A("v_mov_b32 v21, 0")
        A("s_mov_b64 exec, 1")
        A("buffer_store_dwordx2 v[16:17], v21, %s, s%d offen sc1" % (sr(sWS, 4), sT1))
        A("s_mov_b64 exec, -1")
        LB("Lnoflag")
C("coefficients landed -> tell the helpers")
young = D1 - DC + 1
told = False
if ECO:
    A("s_waitcnt vmcnt(%d)" % young); lds_arrive(24, vT); told = True
A("s_mov_b32 s%d, 0" % sY)
for i in range(D1, 16):
    dp = DEPTH if i < TAILI else TAILD
    extra = 1 if i == 16 - QV else 0
    if ADP and told:
        C("stay shallow until the helpers have issued their q stores")
        A("s_cmp_lg_u32 s%d, 0" % sY)
        A("s_cbranch_scc1 Ldp%d" % i)
        A("ds_read_b32 v%d, v%d offset:28" % (vT, vFL))
        A("s_waitcnt lgkmcnt(0)")
        A("v_readfirstlane_b32 s%d, v%d" % (sT1, vT))
        A("s_cmp_ge_u32 s%d, 4" % sT1)
        A("s_cselect_b32 s%d, 1, 0" % sY)
        A("s_cbranch_scc1 Ldp%d" % i)
        A("s_waitcnt vmcnt(%d)" % (dp - 1 - 2 * extra))
        LB("Ldp%d" % i)
        A("s_waitcnt vmcnt(%d)" % (ADP - 1 - 2 * extra))
        if extra: q0_issue(); young += 2
    else:
        if extra:
            A("s_waitcnt vmcnt(%d)" % (dp - 2)); q0_issue(); young += 2
            if DIAG:
                A("s_memrealtime s[42:43]"); A("s_waitcnt lgkmcnt(0)"); A("v_writelane_b32 v31, s42, 9")
        if QV2 and i == 16 - QV2:
            A("s_waitcnt vmcnt(%d)" % (dp - 2)); q0_issue(XR); young += 2
        A("s_waitcnt vmcnt(%d)" % (dp - 1))
    if not told and young >= dp - 1:
        lds_arrive(24, vT); told = True
    kv_issue(i); young += 1
assert told
q0_issue(QP + 8)
C("everything older than the V loads is complete: K, late sentinels")
A("s_waitcnt vmcnt(%d)" % (14 if QV2 else 12))
lds_arrive(8, vT)
A("s_waitcnt lgkmcnt(0)")
tags()
A("s_or_b32 s%d, s%d, s%d" % (sXCC, sXCC, sTG2))
STAMP(1)
for t in range(4):
    for T in range(2):
        A("ds_read_b128 %s, v%d offset:%d" % (vr(KF + 16 * T + 4 * t, 4), 18 + t, 4096 * T))
flag_block()
def wait_w0(n):
    uid[0] += 1
    A("s_cmp_eq_u32 s%d, 0" % sW)
    A("s_cbranch_scc1 Lww%d" % uid[0])
    A("s_waitcnt vmcnt(%d)" % n)
    LB("Lww%d" % uid[0])
    A("s_waitcnt vmcnt(%d)" % (n + 1))
wait_w0(QV + 2 + (2 if QV2 else 0))
STAMP(2)
A("s_setprio 2")
A("s_mov_b32 s%d, %s" % (sCNT, hx(SPIN)))
A("s_mov_b32 s%d, 0" % sY)
A("s_mov_b32 s%d, 0" % sIT)
LB("Lmq")
A("v_and_b32 v16, -8, v%d" % (QP + 3))
A("v_and_b32 v17, -8, v%d" % (QP + 7))
A("v_cmp_ne_u32 vcc, s%d, v%d" % (sTG1, QP + 2))
A("v_cmp_ne_u32 %s, s%d, v%d" % (sr(sRET, 2), sTG1, QP + 6))
A("s_or_b64 vcc, vcc, %s" % sr(sRET, 2))
A("v_cmp_ne_u32 %s, s%d, v16" % (sr(sRET, 2), sTG2))
A("s_or_b64 vcc, vcc, %s" % sr(sRET, 2))
A("v_cmp_ne_u32 %s, s%d, v17" % (sr(sRET, 2), sTG2))
A("s_or_b64 vcc, vcc, %s" % sr(sRET, 2))
if not int(OPT.get("nochk", 0)): A("s_cbranch_vccnz Lmqr")
LB("Lmqd")
if DIAG:
    A("s_sub_u32 s%d, s%d, s%d" % (sT0, sCNT, sY)); A("v_writelane_b32 v31, s%d, 0" % sT0)
Ls = L; L = []
L.append(".p2align 6"); LB("Lst_mq"); A("s_setpc_b64 %s" % sr(sRET, 2))
LB("Lmqr")
A("s_cmp_lg_u32 s%d, 0" % sY)
A("s_cbranch_scc1 Lmqr2")
if QV2:
    A("s_cmp_lg_u32 s%d, 0" % sIT)
    A("s_cbranch_scc1 Lmqr1")
    A("s_mov_b32 s%d, 1" % sIT)
    wait_w0(QV2 + 2)
    for k in range(8): A("v_mov_b32 v%d, v%d" % (QP + k, XR + k))
    A("s_branch Lmq")
    LB("Lmqr1")
C("first look failed: take the second one (V has landed with it: request its fragments now)")
A("s_waitcnt vmcnt(0)")
A("s_mov_b32 s%d, 1" % sY)
for k in range(8): A("v_mov_b32 v%d, v%d" % (QP + k, QP + 8 + k))
if not VLATE:
    for t in range(8):
        for hf in range(2):
            A("ds_read_b64_tr_b16 %s, v%d offset:%d" % (vr(VF + 4 * t + 2 * hf, 2), VA + t, 4096 * hf))
A("s_branch Lmq")
LB("Lmqr2")
C("still not there: poll the plain copy a few times, then both copies in turn")
A("s_cmp_le_u32 s%d, %s" % (sCNT, hx(SPIN - 6)))
A("s_cselect_b32 s%d, %s, 0" % (sT0, hx(QB_DELTA)))
A("s_xor_b32 s%d, s%d, s%d" % (sQL, sQL, sT0))
q0_issue()
A("s_waitcnt vmcnt(0)")
A("s_sub_u32 s%d, s%d, 1" % (sCNT, sCNT))
A("s_cbranch_scc0 Lmq")
A("s_branch Lmqd")
ool.append(L); L = Ls
A("v_cmp_ne_u32 vcc, s%d, v%d" % (sXCC, QP + 3))
A("v_mov_b32 v%d, v%d" % (QP + 2, QP + 4))
A("v_mov_b32 v%d, v%d" % (QP + 3, QP + 5))
A("ds_write_b128 v25, %s" % vr(QP, 4))
A("s_cmp_eq_u64 vcc, 0")
A("s_cselect_b32 s%d, 1, 0x101" % sT0)
A("v_mov_b32 v16, s%d" % sT0)
A("s_waitcnt lgkmcnt(0)")
lds_arrive(4, 16, None)
if VLATE:
    A("s_cmp_eq_u32 s%d, 0" % sY)
    A("s_cbranch_scc1 Lnvf")
    for t in range(8):
        for hf in range(2):
            A("ds_read_b64_tr_b16 %s, v%d offset:%d" % (vr(VF + 4 * t + 2 * hf, 2), VA + t, 4096 * hf))
    LB("Lnvf")
STAMP(15)
A("buffer_load_dwordx2 %s, v%d, %s, s%d offen" % (vr(RES + 2, 2), vX1S, sr(sX, 4), sT3))
FLG = W + 44
soff(sIT, [(sW, 10)], FB)
soff(sQL, [(sA, 12), (sJ, 17)], Q1_OFF)
for k in range(4):
    A("s_add_u32 s%d, s%d, %d" % (sT0, sC, k))
    A("s_and_b32 s%d, s%d, 3" % (sT0, sT0))
    A("s_lshl_b32 s%d, s%d, 10" % (sKO + k, sT0))
A("s_and_b32 s%d, s%d, 1" % (sT0, sC))
A("s_lshl_b32 s%d, s%d, 6" % (sT0, sT0))
A("v_xor_b32 v22, s%d, v22" % sT0); A("v_xor_b32 v23, s%d, v23" % sT0)
A("s_lshl_b32 s%d, s%d, 2" % (sT3, sM))
A("s_add_u32 s%d, s%d, s%d" % (sT3, sT3, sW))
A("s_mul_i32 s%d, s%d, 768" % (sT3, sT3))
A("s_add_u32 s%d, s%d, s%d" % (sT3, sT3, sGR))
A("v_lshlrev_b32 v21, 7, v%d" % vLANE)
lds_spin(4, 4, vT, mask=0xff)
A("s_cmp_lt_u32 s%d, 256" % sT1)
A("s_cselect_b32 s%d, %d, 0" % (sFAST, int(OPT.get("fast", 1))))
QF = W + 16
for t in range(4):
    A("ds_read_b128 %s, v26 offset:%d" % (vr(QF + 4 * t, 4), 1024 * t))
S = W
qk = []
for t in range(4):
    for T in range(2):
        qk.append(mf(S + 4 * T, KF + 16 * T + 4 * t, QF + 4 * t, None if t == 0 else S + 4 * T))
for t in range(4):
    A("s_waitcnt lgkmcnt(%d)" % (3 - t))
    A(qk[2 * t]); A(qk[2 * t + 1])
def wo_issue():
    C("every wave holds its K fragments: the wo tile may land in the K area")
    for k in range(4):
        A("s_add_u32 m0, s%d, s%d" % (sT5, sKO + k))
        A("s_lshl3_add_u32 s%d, s%d, s%d" % (sT0, sKO + k, sT4))
        A("buffer_load_dwordx4 v%d, %s, s%d offen nt lds" % (22 + (k & 1), sr(sWO, 4), sT0))
if WOP == 0: wo_issue()
if PRET:
    C("bring the (cleared) group mailbox lines into L2")
    A("s_mov_b64 exec, 63")
    A("buffer_load_dword v%d, v21, %s, s%d offen sc1" % (W + 40, sr(sWS, 4), sT3))
    A("s_mov_b64 exec, -1")
STAMP(3)
A("s_branch Lk_go")

LB("Llnq")
C("LayerNorm of the row held in XR, then q partial = xn @ wq tile")
X = W
row_stats(XR, vT, X)
A("v_add_f32 v%d, %s, v%d" % (vT + 1, EPS, vT + 1))
A("v_rsq_f32 v%d, v%d" % (vT + 2, vT + 1))
A("s_cmp_eq_u32 s%d, 0" % sLAY)
A("v_mul_f32 v%d, v%d, v%d" % (vT + 3, vT, vT + 2))
for i in range(4):
    A("v_pk_fma_f32 %s, %s, %s, %s op_sel:[0,0,1] op_sel_hi:[1,0,1] neg_lo:[0,0,1] neg_hi:[0,0,1]" % (vr(X + 2 * i, 2), vr(X + 2 * i, 2), vr(vT + 2, 2), vr(vT + 2, 2)))
for i in range(4):
    A("v_cvt_pk_bf16_f32 v%d, v%d, v%d" % (X + 8 + i, X + 2 * i, X + 2 * i + 1))
A("ds_write_b128 v%d, %s" % (vXNW, vr(X + 8, 4)))
A("s_cbranch_scc1 Lq_first")
A("s_waitcnt lgkmcnt(0)")
A("s_barrier")
LB("Lq_go")
BF = W + 16
for t in range(4):
    A("ds_read_b128 %s, v%d offset:%d" % (vr(BF + 4 * t, 4), vXNR, 64 * t))
for t in range(4):
    A("s_waitcnt lgkmcnt(%d)" % (3 - t))
    mfma(W, WQF + 4 * t, BF + 4 * t, None if t == 0 else W)
A("s_cmp_eq_u32 s%d, 0" % sLAY)
A("s_mov_b64 exec, %s" % sr(sMSK, 2))
NOP(6)
A("v_cvt_pk_bf16_f32 v%d, v%d, v%d" % (W + 4, W, W + 1))
A("v_cvt_pk_bf16_f32 v%d, v%d, v%d" % (W + 5, W + 2, W + 3))
A("s_cbranch_scc1 Lh_qst")
fastcmp()
store_local("buffer_store_dwordx2", vr(W + 4, 2), vQST, sQS)
A("s_mov_b64 exec, -1")
A("ds_write_b128 v%d, %s offset:%d" % (vXNW, vr(XR, 4), L_X2 - L_XN))
A("s_mov_b32 s%d, 0" % sY)
for s, d in [(sOL, O_OFF[1] - O_OFF[0]), (sOS, O_OFF[1] - O_OFF[0]), (sLS, LSE_OFF[1] - LSE_OFF[0]), (sPS, P_L)]:
    A("s_add_u32 s%d, s%d, %d" % (s, s, d))
STAMP(2)

C("attention over this workgroup's 128 keys")
if QS:
    C("each wave fetches one k-step of q and shares it through LDS")
    A("s_lshl_b32 s%d, s%d, 10" % (sT3, sW))
    A("s_add_u32 s%d, s%d, s%d" % (sT4, sQL, sT3))
    A("s_add_u32 s%d, s%d, %d" % (sT3, sT3, L_RB + 12288))
    A("v_add_u32 v25, s%d, v%d" % (sT3, vL16))
    A("v_add_u32 v26, %d, v%d" % (L_RB + 12288, vL16))
    ppoll(lambda k: A("buffer_load_dwordx4 %s, v%d, %s, s%d offen sc1" % (vr(W + 32 + 4 * k, 4), vL16, sr(sWS, 4), sT4)),
          lambda k: range(W + 32 + 4 * k, W + 36 + 4 * k), 1, vT, lambda k: ["ds_write_b128 v25, %s" % vr(W + 32 + 4 * k, 4)], pre=QPRE, gap=QGAP, tag=0)
    A("s_waitcnt lgkmcnt(0)")
    A("s_barrier")
    for t in range(4):
        A("ds_read_b128 %s, v26 offset:%d" % (vr(QF + 4 * t, 4), 1024 * t))
    for t in range(4):
        A("s_waitcnt lgkmcnt(%d)" % (3 - t))
        A(qk[2 * t]); A(qk[2 * t + 1])
    touch_stub("k")
else:
    def iq(k):
        for t in range(4):
            A("buffer_load_dwordx4 %s, v%d, %s, s%d offen offset:%d sc1" % (vr(QF + 16 * k + 4 * t, 4), vL16, sr(sWS, 4), sQL, 1024 * t))
    def qks(k):
        return [mf(S + 4 * T, KF + 16 * T + 4 * t, QF + 16 * k + 4 * t, None if t == 0 else S + 4 * T) for t in range(4) for T in range(2)]
    ppoll(iq, lambda k: range(QF + 16 * k, QF + 16 * k + 16), 4, vT, qks, pre=QPRE, gap=QGAP, tag=0, stub="k", per_load=lambda k, i: qks(k)[2 * i:2 * i + 2])
STAMP(3)
LB("Lk_go")
NOP(5)
for ctl in ["row_ror:4", "row_ror:8"]:
    for i in range(8):
        A("v_add_f32_dpp v%d, v%d, v%d %s row_mask:0xf bank_mask:0xf" % (S + i, S + i, S + i, ctl))
A("v_max3_f32 v%d, v%d, v%d, v%d" % (vT, S, S + 1, S + 2))
A("v_max3_f32 v%d, v%d, v%d, v%d" % (vT + 1, S + 3, S + 4, S + 5))
A("v_max3_f32 v%d, v%d, v%d, v%d" % (vT, vT, S + 6, S + 7))
A("v_max_f32 v%d, v%d, v%d" % (vT, vT, vT + 1))
A("v_mov_b32 v%d, v%d" % (vT + 1, vT))
A("s_nop 1")
A("v_permlane16_swap_b32 v%d, v%d" % (vT, vT + 1))
A("v_max_f32 v%d, v%d, v%d" % (vT, vT, vT + 1))
A("v_mov_b32 v%d, v%d" % (vT + 1, vT))
A("s_nop 1")
A("v_permlane32_swap_b32 v%d, v%d" % (vT, vT + 1))
A("v_max_f32 v%d, v%d, v%d" % (vT, vT, vT + 1))
A("v_mul_f32 v%d, s%d, v%d" % (vT + 2, sSC, vT))
for i in range(8):
    A("v_fma_f32 v%d, v%d, s%d, -v%d" % (S + i, S + i, sSC, vT + 2))
for i in range(8):
    A("v_exp_f32 v%d, v%d" % (S + i, S + i))
for p in range(4):
    A("s_mov_b64 exec, %s" % sr(sPM + 2 * p, 2))
    for i in range(4):
        A("v_cvt_pk_bf16_f32 v%d, v%d, v%d" % (PM + 4 * p + i, S + 2 * i, S + 2 * i + 1))
A("s_mov_b64 exec, -1")
STAMP(4)
A("s_cmp_lg_u32 s%d, 0" % sLAY)
A("s_cbranch_scc1 Lv_go")
wait_w0((5 if WOP == 0 else 1) + PRET)
if WOP == 1: wo_issue()
A("buffer_load_dwordx4 %s, v%d, %s, s%d offen sc1" % (vr(FLG, 4), vL16, sr(sWS, 4), sIT))
STAMP(6)
A("s_cmp_lg_u32 s%d, 0" % sY)
A("s_cbranch_scc1 Lv_have")
for t in range(8):
    for hf in range(2):
        A("ds_read_b64_tr_b16 %s, v%d offset:%d" % (vr(VF + 4 * t + 2 * hf, 2), VA + t, 4096 * hf))
A("s_waitcnt lgkmcnt(0)")
LB("Lv_have")
if TOT:
    A("s_memrealtime s[42:43]"); A("s_waitcnt lgkmcnt(0)"); A("s_mov_b32 s97, s42")
A("s_cmp_lg_u32 s%d, 0" % sLAY)
LB("Lv_go")
OA = W + 8
mfma(W + 16, ONES, PM, None)
for p in range(4):
    for T in range(2):
        mfma(OA + 4 * T, VF + 4 * (2 * p + T), PM + 4 * p, None if p == 0 else OA + 4 * T)
A("s_mov_b64 exec, %s" % sr(sMSK, 2))
A("v_mov_b32 v%d, v%d" % (vT + 3, W + 16))
A("ds_write_b64 v%d, %s" % (vMLW, vr(vT + 2, 2)))
A("s_mov_b64 exec, -1")
NOP(3)
A("ds_write_b128 v%d, %s" % (vRBW, vr(OA, 4)))
A("ds_write_b128 v%d, %s offset:64" % (vRBW, vr(OA + 4, 4)))
A("s_waitcnt lgkmcnt(0)")
A("s_cbranch_scc1 Lrb_bar")
lds_arrive(12, vT + 4)
if WOP == 2: wo_issue()
lds_spin(12, 4, vT + 4)
A("s_branch Lrb_go")
LB("Lrb_bar")
A("s_barrier")
LB("Lrb_go")
A("ds_read_b128 %s, v%d" % (vr(W, 4), vMLR))
A("ds_read_b128 %s, v%d offset:16" % (vr(W + 4, 4), vMLR))
for w in range(4):
    A("ds_read_b64 %s, v%d offset:%d" % (vr(W + 8 + 2 * w, 2), vRBR, RBS * w))
A("v_mov_b32 v%d, 0" % (vT + 4))
fastcmp()
A("s_waitcnt lgkmcnt(4)")
A("v_max3_f32 v%d, v%d, v%d, v%d" % (vT, W, W + 2, W + 4))
A("v_max_f32 v%d, v%d, v%d" % (vT, vT, W + 6))
for w in range(4): A("v_sub_f32 v%d, v%d, v%d" % (W + 2 * w, W + 2 * w, vT))
for w in range(4): A("v_exp_f32 v%d, v%d" % (W + 2 * w, W + 2 * w))
A("v_mul_f32 v%d, v%d, v%d" % (vT + 1, W, W + 1))
for w in range(1, 4): A("v_fmac_f32 v%d, v%d, v%d" % (vT + 1, W + 2 * w, W + 2 * w + 1))
A("s_waitcnt lgkmcnt(0)")
A("v_pk_mul_f32 %s, %s, %s op_sel_hi:[1,0]" % (vr(W + 8, 2), vr(W + 8, 2), vr(W, 2)))
A("v_rcp_f32 v%d, v%d" % (vT + 2, vT + 1))
A("v_pk_fma_f32 %s, %s, %s, %s op_sel_hi:[1,0,1]" % (vr(W + 8, 2), vr(W + 10, 2), vr(W + 2, 2), vr(W + 8, 2)))
A("v_log_f32 v%d, v%d" % (vT + 5, vT + 1))
for w in range(2, 4):
    A("v_pk_fma_f32 %s, %s, %s, %s op_sel_hi:[1,0,1]" % (vr(W + 8, 2), vr(W + 8 + 2 * w, 2), vr(W + 2 * w, 2), vr(W + 8, 2)))
A("v_pk_mul_f32 %s, %s, %s op_sel_hi:[1,0]" % (vr(W + 8, 2), vr(W + 8, 2), vr(vT + 2, 2)))
A("v_add_f32 v%d, v%d, v%d" % (vT + 5, vT + 5, vT))
A("v_cvt_pk_bf16_f32 v%d, v%d, v%d" % (W + 8, W + 8, W + 9))
store_local("buffer_store_dword", "v%d" % (W + 8), vOST, sOS)
A("s_mov_b64 exec, 1")
store_local("buffer_store_dword", "v%d" % (vT + 5), vT + 4, sLS)
A("s_mov_b64 exec, -1")
STAMP(5)

C("wo phase: wave = batch, rows = key splits")
OF = W; LS = W + 32; DA = WQF
assert LSE_OFF[1] - O_OFF[1] == LSE_OFF[0] - O_OFF[0]
def io(k):
    for t in range(4):
        A("buffer_load_dwordx4 %s, v%d, %s, s%d offen offset:%d sc1" % (vr(OF + 16 * k + 4 * t, 4), [vLSE, vLS2, vOLD, vOLD][t], sr(sWS, 4), sOL, 512 * t))
A("s_cmp_lg_u32 s%d, 0" % sLAY)
A("s_cbranch_scc1 Lo_go")
C("first layer: wo tile landed -> fragments; every workgroup has announced its clears")
if WOP == 3: wo_issue()
A("s_waitcnt vmcnt(%d)" % (2 if WOP < 3 else 0))
STAMP(13)
A("s_mov_b32 s%d, %s" % (sT4, hx(SPIN)))
LB("Lap")
A("v_and_b32 v24, -8, v%d" % (FLG + 1))
A("v_cmp_ne_u32 vcc, s%d, v%d" % (sTG1, FLG))
A("v_cmp_ne_u32 %s, s%d, v24" % (sr(sH, 2), sTG2))
A("s_or_b64 vcc, vcc, %s" % sr(sH, 2))
A("s_cbranch_vccnz Lar")
LB("Lad")
lds_arrive(16, 24)
for i in range(2):
    A("v_lshlrev_b32 v%d, 16, v%d" % (W + 40 + 2 * i, RES + 2 + i))
    A("v_and_b32 v%d, 0xffff0000, v%d" % (W + 41 + 2 * i, RES + 2 + i))
for i in range(4): A("v_mov_b32 v%d, v%d" % (RES + i, W + 40 + i))
for ct in range(4): A("v_xor_b32 v%d, %d, v%d" % (W + 40 + ct, 32 * ct, vWT))
for ct in range(4): A("v_add_u32 v%d, %d, v%d" % (W + 40 + ct, L_WO, W + 40 + ct))
lds_spin(16, 4, 24)
STAMP(14)
A("s_mov_b32 s%d, 1" % sY)
LB("Lo_go")
A("s_mov_b32 s%d, 0x55555555" % sT4)
A("s_mov_b32 s%d, 0x55555555" % sT5)
def pre_o():
    A("s_cmp_eq_u32 s%d, 0" % sY)
    A("s_cbranch_scc1 Lo_nof")
    A("s_mov_b32 s%d, 0" % sY)
    for t in range(4):
        for ct in range(4):
            for hf in range(2):
                A("ds_read_b64_tr_b16 %s, v%d offset:%d" % (vr(WOF + 16 * ct + 4 * t + 2 * hf, 2), W + 40 + ct, 4096 * t + 512 * hf))
    A("s_waitcnt lgkmcnt(0)")
    LB("Lo_nof")
ool.append(["Lar:", "    s_lshl_b32 s%d, s%d, 10" % (sT5, sW), "    s_add_u32 s%d, s%d, %s" % (sT5, sT5, hx(FB)),
            "    buffer_load_dwordx4 %s, v%d, %s, s%d offen sc1" % (vr(FLG, 4), vL16, sr(sWS, 4), sT5),
            "    s_waitcnt vmcnt(0)", "    s_sub_u32 s%d, s%d, 1" % (sT4, sT4), "    s_cbranch_scc0 Lap", "    s_branch Lad"])
C("softmax over the 8 key splits: lanes n>=8 hold own lse in OF[0:3], the other four in OF[4:7]")
vU = vT + 2
def wo_all(k, t):
    o = OF + 16 * k
    m = [mf(DA + 4 * ct, o + 4 * t, WOF + 16 * ct + 4 * t, None if t == 0 else DA + 4 * ct) for ct in range(4)]
    va = ["v_max3_f32 v%d, v%d, v%d, v%d" % (vU, o, o + 1, o + 2), "v_max3_f32 v%d, v%d, v%d, v%d" % (vU + 1, o + 3, o + 4, o + 5),
          "v_max3_f32 v%d, v%d, v%d, v%d" % (vU, vU, o + 6, o + 7), "v_max_f32 v%d, v%d, v%d" % (vU, vU, vU + 1)]
    va += ["v_sub_f32 v%d, v%d, v%d" % (LS + i, o + i, vU) for i in range(4)]
    va += ["v_exp_f32 v%d, v%d" % (LS + i, LS + i) for i in range(4)]
    vb = ["v_mov_b32_dpp v%d, v%d row_ror:8 row_mask:0xf bank_mask:0x3" % (LS + i, LS + i) for i in range(4)]
    vb += ["v_add_f32 v%d, v%d, v%d" % (vU, LS, LS + 1), "v_add_f32 v%d, v%d, v%d" % (vU + 1, LS + 2, LS + 3),
           "v_add_f32 v%d, v%d, v%d" % (vU, vU, vU + 1), "v_mov_b32 v%d, v%d" % (vU + 1, vU)]
    f = {0: [], 1: va[:4], 2: va[4:], 3: vb}[t]
    out = []
    for x in m:
        out.append(x)
        for _ in range(2):
            if f: out.append(f.pop(0))
    return out
assert PROG and OGAP < 0
ppoll(io, lambda k: range(OF + 16 * k, OF + 16 * k + 16), 4, vT, None, pre=OPRE, gap=OGAP, mid=pre_o, tag=1, per_load=wo_all)
STAMP(7)
A("v_permlane16_swap_b32 v%d, v%d" % (vU, vU + 1))
A("v_mul_f32 v%d, v%d, v%d" % (DA, DA, LS))
A("v_add_f32 v%d, v%d, v%d" % (vT, vU, vU + 1))
A("v_mul_f32 v%d, v%d, v%d" % (DA + 4, DA + 4, LS))
A("v_rcp_f32 v%d, v%d" % (vT, vT))
A("v_mul_f32 v%d, v%d, v%d" % (DA + 8, DA + 8, LS))
for i in range(1, 4):
    for ct in range(3):
        A("v_fmac_f32 v%d, v%d, v%d" % (DA + 4 * ct, DA + 4 * ct + i, LS + i))
    if i == 1: A("v_mul_f32 v%d, v%d, v%d" % (DA + 12, DA + 12, LS))
for i in range(1, 4): A("v_fmac_f32 v%d, v%d, v%d" % (DA + 12, DA + 12 + i, LS + i))
A("v_permlane16_swap_b32 v%d, v%d" % (DA, DA + 4))
A("s_nop 0")
A("v_permlane16_swap_b32 v%d, v%d" % (DA + 8, DA + 12))
A("v_add_f32 v%d, v%d, v%d" % (DA, DA, DA + 4))
A("v_add_f32 v%d, v%d, v%d" % (DA + 8, DA + 8, DA + 12))
A("s_nop 1")
A("v_permlane32_swap_b32 v%d, v%d" % (DA, DA + 8))
A("v_mul_f32 v%d, v%d, v%d" % (DA, DA, vT))
A("s_cmp_lg_u32 s%d, 0" % sLAY)
A("s_nop 0")
A("v_mov_b32_dpp v%d, v%d quad_perm:[1,0,3,2] row_mask:0xf bank_mask:0xf" % (DA + 1, DA))
A("s_mov_b64 exec, %s" % sr(sT4, 2))
A("v_cvt_pk_bf16_f32 v%d, v%d, v%d" % (DA, DA, DA + 1))
A("buffer_store_dword v%d, v%d, %s, s%d offen sc1" % (DA, vPST, sr(sWS, 4), sPS))
A("s_mov_b64 exec, -1")
STAMP(8)
A("s_cbranch_scc1 Lfinal")

A("s_cmp_lg_u32 s%d, 0" % sW)
A("s_cbranch_scc1 Ltab")
C("stage 1 (wave 0): reduce 32 head partials of 64 outputs, add residual, publish x1 slice")
soff(sT1, [(sA, 15), (sC, 12)], PB)
soff(sT2, [(sA, 10), (sC, 7), (sJ, 17)], X1_OFF)
A("s_mov_b32 s%d, 0x00ff00ff" % sT4)
A("s_mov_b32 s%d, 0" % sT5)
def ip(k):
    for i in range(4):
        A("buffer_load_dwordx4 %s, v%d, %s, s%d offen offset:%d sc1" % (vr(W + 20 * k + 4 * i, 4), vL16, sr(sWS, 4), sT1, 1024 * i))
if GW: A("s_waitcnt vmcnt(0)")
ppoll(ip, lambda k: range(W + 20 * k, W + 20 * k + 16), 4, vT, lambda k: [mf(W + 16, SEL, W + 20 * k + 4 * i, None if i == 0 else W + 16) for i in range(4)], pre=GPRE, gap=GGAP, tag=2,
      per_load=lambda k, i: [mf(W + 16, SEL, W + 20 * k + 4 * i, None if i == 0 else W + 16)])
STAMP(9)
fastcmp()
NOP(3)
for i in range(4):
    A("v_add_f32_dpp v%d, v%d, v%d row_ror:8 row_mask:0xf bank_mask:0xf" % (W + 16 + i, W + 16 + i, W + 16 + i))
A("s_mov_b64 exec, %s" % sr(sT4, 2))
A("v_pk_add_f32 %s, %s, %s" % (vr(W + 16, 2), vr(W + 16, 2), vr(RES, 2)))
A("v_pk_add_f32 %s, %s, %s" % (vr(W + 18, 2), vr(W + 18, 2), vr(RES + 2, 2)))
A("v_cvt_pk_bf16_f32 v%d, v%d, v%d" % (W + 16, W + 16, W + 17))
A("v_cvt_pk_bf16_f32 v%d, v%d, v%d" % (W + 17, W + 18, W + 19))
store_local("buffer_store_dwordx2", vr(W + 16, 2), vX1S, sT2)
A("s_mov_b64 exec, -1")
LB("Ltabdone")
soff(sT3, [(sW, 10), (sJ, 17)], X1_OFF)
def ix(k):
    A("buffer_load_dwordx4 %s, v%d, %s, s%d offen sc1" % (vr([XR, RES][k], 4), vL16, sr(sWS, 4), sT3))
wqf_reads()
ppoll(ix, lambda k: range([XR, RES][k], [XR, RES][k] + 4), 1, vT, lambda k: ["s_waitcnt lgkmcnt(0)", "v_readfirstlane_b32 s%d, v%d" % (sT1, vT + 2)],
      pre=XPRE, gap=XGAP, mid=lambda: A("ds_read_b32 v%d, v%d offset:20" % (vT + 2, vFL)), tag=3,
      fix=["v_mov_b32 v%d, v%d" % (XR + i, RES + i) for i in range(4)])
A("s_cmp_lt_u32 s%d, 3" % sT1)
A("s_cbranch_scc1 Ltw")
LB("Ltwd")
STAMP(10)

LB("Lmix")
C("x <- x + g(LN(LN(x))) ; g is tabulated for every bf16 input in range, evaluated directly otherwise")
X = W; HB = W + 8; RT = W + 12; AD = W + 16; Y = W + 24
row_stats(XR, vT, X)
A("v_add_f32 v%d, %s, v%d" % (vT + 2, EPS, vT + 1))
A("v_rsq_f32 v%d, v%d" % (vT + 2, vT + 2))
A("v_mov_b32 v%d, %s" % (vT + 4, hx(LO2 | (LO2 << 16))))
A("s_movk_i32 s%d, %d" % (sT5, NENT * 4))
A("v_mul_f32 v%d, v%d, v%d" % (vT + 1, vT + 1, vT + 2))
A("v_fmaak_f32 v%d, v%d, v%d, %s" % (vT + 1, vT + 1, vT + 2, EPS))
A("v_rsq_f32 v%d, v%d" % (vT + 1, vT + 1))
A("s_nop 0")
A("v_mul_f32 v%d, v%d, v%d" % (vT + 2, vT + 2, vT + 1))
A("v_mul_f32 v%d, v%d, v%d" % (vT + 3, vT, vT + 2))
for i in range(4):
    A("v_pk_fma_f32 %s, %s, %s, %s op_sel:[0,0,1] op_sel_hi:[1,0,1] neg_lo:[0,0,1] neg_hi:[0,0,1]" % (vr(AD + 2 * i, 2), vr(X + 2 * i, 2), vr(vT + 2, 2), vr(vT + 2, 2)))
for i in range(4):
    A("v_cvt_pk_bf16_f32 v%d, v%d, v%d" % (HB + i, AD + 2 * i, AD + 2 * i + 1))
for i in range(4):
    A("v_pk_lshlrev_b16 v%d, 1, v%d op_sel_hi:[0,1]" % (RT + i, HB + i))
    A("v_pk_lshrrev_b16 v%d, 15, v%d op_sel_hi:[0,1]" % (AD + i, HB + i))
for i in range(4):
    A("v_or_b32 v%d, v%d, v%d" % (RT + i, RT + i, AD + i))
for i in range(4):
    A("v_pk_sub_u16 v%d, v%d, v%d" % (RT + i, RT + i, vT + 4))
for i in range(4):
    A("v_lshlrev_b32_sdwa v%d, 2, v%d dst_sel:DWORD dst_unused:UNUSED_PAD src0_sel:DWORD src1_sel:WORD_0" % (AD + 2 * i, RT + i))
    A("v_lshlrev_b32_sdwa v%d, 2, v%d dst_sel:DWORD dst_unused:UNUSED_PAD src0_sel:DWORD src1_sel:WORD_1" % (AD + 2 * i + 1, RT + i))
    A("ds_read_b32 v%d, v%d offset:%d" % (Y + 2 * i, AD + 2 * i, L_TAB))
    A("ds_read_b32 v%d, v%d offset:%d" % (Y + 2 * i + 1, AD + 2 * i + 1, L_TAB))
A("v_max3_u32 v%d, v%d, v%d, v%d" % (vT, AD, AD + 1, AD + 2))
A("v_max3_u32 v%d, v%d, v%d, v%d" % (vT + 1, AD + 3, AD + 4, AD + 5))
A("v_max3_u32 v%d, v%d, v%d, v%d" % (vT, vT, AD + 6, AD + 7))
A("v_max_u32 v%d, v%d, v%d" % (vT, vT, vT + 1))
A("v_cmp_le_u32 %s, s%d, v%d" % (sr(sH, 2), sT5, vT))
A("s_waitcnt lgkmcnt(5)")
A("v_max3_u32 v%d, v%d, v%d, v%d" % (vT, Y, Y + 1, Y + 2))
A("s_waitcnt lgkmcnt(2)")
A("v_max3_u32 v%d, v%d, v%d, v%d" % (vT + 1, Y + 3, Y + 4, Y + 5))
A("s_waitcnt lgkmcnt(0)")
A("v_max3_u32 v%d, v%d, v%d, v%d" % (vT, vT, Y + 6, Y + 7))
A("v_max_u32 v%d, v%d, v%d" % (vT, vT, vT + 1))
A("v_cmp_eq_u32 vcc, -1, v%d" % vT)
LB("Lslowdone")
for i in range(4):
    A("v_pk_add_f32 %s, %s, %s" % (vr(vT + 2 + 2 * i, 2), vr(X + 2 * i, 2), vr(Y + 2 * i, 2)))
A("s_or_b64 vcc, vcc, %s" % sr(sH, 2))
A("s_cbranch_vccnz Lslow")
A("s_cmp_lg_u32 s%d, 0" % sLAY)
for i in range(4):
    A("v_cvt_pk_bf16_f32 v%d, v%d, v%d" % (XR + i, vT + 2 + 2 * i, vT + 3 + 2 * i))
STAMP(11)
A("s_cbranch_scc1 Lout")
A("s_mov_b32 s%d, 1" % sLAY)
if TOT: A("s_memrealtime s[100:101]")
if DIAG: A("v_mov_b32 v28, v30")
A("s_branch Llnq")

L.append(".p2align 6"); LB("Lst_fin"); A("s_setpc_b64 %s" % sr(sRET, 2)); stubs.append("fin")
LB("Lfinal")
A("s_cmp_ge_u32 s2, 4")
A("s_cbranch_scc1 Lepoch")
C("workgroup b: reduce the 32 head partials of row b, add x2, mixer, store")
soff(sT1, [(2, 15), (sW, 13)], PB + P_L)
A("s_add_u32 s%d, s%d, 4096" % (sT2, sT1))
A("s_mul_i32 s%d, s2, %d" % (sT0, XS))
A("s_lshl_b32 s%d, s%d, 8" % (sT3, sW))
A("s_add_u32 s%d, s%d, s%d" % (sT0, sT0, sT3))
A("s_add_u32 s%d, s%d, %d" % (sT0, sT0, L_X2))
A("v_add_u32 v%d, s%d, v%d" % (vT + 4, sT0, vX1S))
A("s_add_u32 s%d, s%d, %d" % (sT3, sT3, L_XN))
A("v_add_u32 v%d, s%d, v%d" % (vT + 5, sT3, vX1S))
A("ds_read_b64 %s, v%d" % (vr(PM, 2), vT + 4))
A("ds_read_b64 %s, v%d offset:128" % (vr(PM + 2, 2), vT + 4))
A("s_mov_b32 s%d, 0x00ff00ff" % sT4)
A("s_mov_b32 s%d, 0" % sT5)
if XENT:
    A("s_cmp_lg_u32 s%d, 3" % sW)
    A("s_cbranch_scc1 Lfn3")
    A("ds_read_b32 v%d, v%d offset:48" % (vT, vFL))
    A("s_waitcnt lgkmcnt(0)")
    A("v_readfirstlane_b32 s%d, v%d" % (sT0, vT))
    A("s_cmp_eq_u32 s%d, 0" % sT0)
    A("s_cbranch_scc1 Lfn3")
    A("s_mov_b32 s%d, %s" % (sT0, hx(TB)))
    for i in range(XENT * 4 // 1024):
        A("buffer_load_dwordx4 %s, v%d, %s, s%d offen offset:%d sc1" % (vr(W + 4 * i, 4), vL16, sr(sWS, 4), sT0, 1024 * i))
    A("v_add_u32 v%d, %d, v%d" % (vT + 6, L_TAB, vL16))
    A("s_waitcnt vmcnt(0)")
    for i in range(XENT * 4 // 1024):
        A("ds_write_b128 v%d, %s offset:%d" % (vT + 6, vr(W + 4 * i, 4), 1024 * i))
    LB("Lfn3")
A("s_waitcnt lgkmcnt(0)")
if GW: A("s_waitcnt vmcnt(0)")
for i in range(4):
    A("v_lshlrev_b32 v%d, 16, v%d" % (PM + 4 + 2 * i, PM + i))
    A("v_and_b32 v%d, 0xffff0000, v%d" % (PM + 5 + 2 * i, PM + i))
if "bias" in OPT:
    for i in range(8): A("v_add_f32 v%d, %s, v%d" % (PM + 4 + i, hx(f2u(float(OPT["bias"]))), PM + 4 + i))
FS = [KF, VF]
def ifin(k):
    for i in range(8):
        A("buffer_load_dwordx4 %s, v%d, %s, s%d offen offset:%d sc1" % (vr(FS[k] + 4 * i, 4), vL16, sr(sWS, 4), sT1 if i < 4 else sT2, 1024 * (i & 3)))
def fs(k):
    o = []
    for i in range(4):
        o.append(mf(W + 32, SEL, FS[k] + 4 * i, None if i == 0 else W + 32))
        o.append(mf(W + 36, SEL, FS[k] + 16 + 4 * i, None if i == 0 else W + 36))
    return o
ppoll(ifin, lambda k: range(FS[k], FS[k] + 32), 8, vT, fs, pre=GPRE, gap=GGAP, tag=2,
      per_load=lambda k, i: [mf(W + 32 + 4 * (i >> 2), SEL, FS[k] + 4 * i, None if (i & 3) == 0 else W + 32 + 4 * (i >> 2))])
STAMP(9)
NOP(2)
for i in range(8):
    A("v_add_f32_dpp v%d, v%d, v%d row_ror:8 row_mask:0xf bank_mask:0xf" % (W + 32 + i, W + 32 + i, W + 32 + i))
A("s_mov_b64 exec, %s" % sr(sT4, 2))
for i in range(4):
    A("v_pk_add_f32 %s, %s, %s" % (vr(W + 32 + 2 * i, 2), vr(W + 32 + 2 * i, 2), vr(PM + 4 + 2 * i, 2)))
for i in range(4):
    A("v_cvt_pk_bf16_f32 v%d, v%d, v%d" % (W + 32 + i, W + 32 + 2 * i, W + 33 + 2 * i))
A("ds_write_b64 v%d, %s" % (vT + 5, vr(W + 32, 2)))
A("ds_write_b64 v%d, %s offset:128" % (vT + 5, vr(W + 34, 2)))
A("s_mov_b64 exec, -1")
A("s_cmp_lg_u32 s%d, 0" % sW)
A("s_waitcnt lgkmcnt(0)")
A("s_barrier")
A("s_cbranch_scc1 Lfin_exit")
A("ds_read_b128 %s, v%d" % (vr(XR, 4), vXNW))
A("s_waitcnt lgkmcnt(0)")
STAMP(10)
A("s_branch Lmix")
L.append(".p2align 6"); LB("Lst_out"); A("s_setpc_b64 %s" % sr(sRET, 2)); stubs.append("out")
LB("Lout")
A("s_lshl_b32 s%d, s2, 10" % sT0)
A("buffer_store_dwordx4 %s, v%d, %s, s%d offen" % (vr(XR, 4), vL16, sr(sOUT, 4), sT0))
if DBL:
    A("s_cmp_lg_u32 s2, 0")
    A("s_cbranch_scc1 Lfin_exit")
if DBL:
    A("s_waitcnt vmcnt(0)")
    A("s_memrealtime s[10:11]")
    A("s_waitcnt lgkmcnt(0)")
    A("s_sub_u32 s12, s10, s98")
    if "pad" in OPT:
        A("s_mov_b32 s10, s98"); A("s_mov_b32 s12, %d" % (100 * int(OPT["pad"])))
    LB("Ldbl")
    A("s_memrealtime s[14:15]")
    A("s_waitcnt lgkmcnt(0)")
    A("s_sub_u32 s13, s14, s10")
    A("s_cmp_lt_u32 s13, s12")
    A("s_cbranch_scc1 Ldbl")
LB("Lfin_exit")
if TOT:
    A("s_waitcnt vmcnt(0)")
    A("s_memrealtime s[10:11]")
    A("s_waitcnt lgkmcnt(0)")
    A("v_mov_b32 v16, s98")
    A("v_mov_b32 v17, s10")
    A("v_mov_b32 v18, s100")
    A("v_mov_b32 v19, s97")
    soff(sT2, [(2, 6), (sW, 4)], STB)
    A("v_mov_b32 v20, 0")
    A("s_mov_b64 exec, 1")
    A("buffer_store_dwordx4 v[16:19], v20, %s, s%d offen" % (sr(sWS, 4), sT2))
if DIAG:
    A("s_waitcnt vmcnt(0)")
    STAMP(12)
    if DIAG == 2:
        A("s_or_b32 s%d, s2, s%d" % (sT0, sW))
        A("s_cmp_lg_u32 s%d, 0" % sT0)
        A("s_cbranch_scc1 Lend")
        A("v_readlane_b32 s%d, v28, 0" % sT2)
        for k, (r, i) in enumerate([(31, 10), (31, 12), (28, 1), (28, 2), (28, 6), (28, 5), (28, 7), (28, 8), (28, 9), (28, 10), (28, 11), (30, 3), (30, 5), (30, 8), (30, 9), (30, 12)]):
            A("v_readlane_b32 s%d, v%d, %d" % (sT3, r, i))
            A("s_sub_u32 s%d, s%d, s%d" % (sT3, sT3, sT2))
            A("s_nop 0")
            A("v_writelane_b32 v17, s%d, %d" % (sT3, k))
        A("v_lshlrev_b32 v16, 2, v%d" % vLANE)
        A("s_mov_b64 exec, 0xffff")
        A("global_store_dword v16, v17, s[100:101]")
        A("s_endpgm")
    soff(sT1, [(2, 10), (sW, 7)], STB)
    A("v_lshlrev_b32 v16, 2, v%d" % vLANE)
    A("s_mov_b64 exec, 0xffff")
    A("buffer_store_dword v28, v16, %s, s%d offen" % (sr(sWS, 4), sT1))
    A("buffer_store_dword v30, v16, %s, s%d offen offset:64" % (sr(sWS, 4), sT1))
    A("s_add_u32 s%d, s%d, 0x40000" % (sT1, sT1))
    A("buffer_store_dword v31, v16, %s, s%d offen" % (sr(sWS, 4), sT1))
LB("Lend")
A("s_endpgm")
LB("Lepoch")
if int(OPT.get("wb", 0)):
    A("s_cmp_lg_u32 s%d, 0" % sW)
    A("s_cbranch_scc1 Lnowb")
    A("s_waitcnt vmcnt(0)")
    A("buffer_wbl2 sc1")
    LB("Lnowb")
C("every workgroup has used the old launch tag long ago: workgroup 4 advances it")
A("s_lshl_b32 s%d, s%d, 8" % (sT0, sW))
A("s_add_u32 s%d, s%d, s2" % (sT0, sT0))
A("s_cmp_lg_u32 s%d, 4" % sT0)
A("s_cbranch_scc1 Lfin_exit")
A("v_mov_b32 v16, s%d" % sTG1)
A("v_mov_b32 v17, %s" % hx(EPO))
A("s_mov_b64 exec, 1")
A("buffer_store_dword v16, v17, %s, 0 offen sc1" % sr(sWS, 4))
A("s_mov_b64 exec, -1")
A("s_branch Lfin_exit")

L.append(".p2align 6"); LB("Lst_tab"); A("s_setpc_b64 %s" % sr(sRET, 2)); stubs.append("tab")
LB("Ltab")
C("waves 2,3: gather the main part of the g(h) table into LDS ; wave 1: the lowest octaves, best effort")
NTL = NOCT * 1024 // 2 // 1024
A("s_cmp_eq_u32 s%d, 1" % sW)
A("s_cbranch_scc1 Lext")
A("s_sub_u32 s%d, s%d, 2" % (sT1, sW))
A("s_mul_i32 s%d, s%d, %d" % (sT1, sT1, NTL * 1024))
A("s_add_u32 s%d, s%d, %d" % (sT1, sT1, XENT * 4))
A("v_add_u32 v%d, s%d, v%d" % (vT + 4, sT1, vL16))
A("v_add_u32 v%d, %d, v%d" % (vT + 4, L_TAB, vT + 4))
A("s_add_u32 s%d, s%d, %s" % (sT1, sT1, hx(TB)))
A("s_add_u32 s%d, s%d, 4096" % (sT2, sT1))
def it():
    for i in range(NTL):
        A("buffer_load_dwordx4 %s, v%d, %s, s%d offen offset:%d sc1" % (vr(W + 4 * i, 4), vL16, sr(sWS, 4), sT1 if i < 4 else sT2, 1024 * (i & 3)))
poll(it, range(W, W + 4 * NTL), vT, back="s_sleep %d" % int(OPT.get("tsl", 16)))
for i in range(NTL):
    A("ds_write_b128 v%d, %s offset:%d" % (vT + 4, vr(W + 4 * i, 4), 1024 * i))
A("s_waitcnt lgkmcnt(0)")
lds_arrive(20, vT + 4)
STAMP(9)
A("s_branch Ltabdone")
def ext_load(d):
    for i in range(XENT * 4 // 1024):
        A("buffer_load_dwordx4 %s, v%d, %s, s%d offen offset:%d sc1" % (vr(d + 4 * i, 4), vL16, sr(sWS, 4), sT4, 1024 * i))
def ext_write(d):
    for i in range(XENT * 4 // 1024):
        A("ds_write_b128 v%d, %s offset:%d" % (vT + 4, vr(d + 4 * i, 4), 1024 * i))
LB("Lext")
if XENT:
    A("s_mov_b32 s%d, %s" % (sT4, hx(TB)))
    A("v_add_u32 v%d, %d, v%d" % (vT + 4, L_TAB, vL16))
    for i in range(4): A("v_mov_b32 v%d, -1" % (W + i))
    for i in range(XENT * 4 // 1024):
        A("ds_write_b128 v%d, %s offset:%d" % (vT + 4, vr(W, 4), 1024 * i))
    A("ds_write_b32 v%d, v%d offset:48" % (vFL, W))
    A("s_waitcnt lgkmcnt(0)")
lds_arrive(20, vT + 5)
if XENT:
    C("one look at the lowest octaves, skipped when x1 is already there")
    soff(sT3, [(sW, 10), (sJ, 17)], X1_OFF)
    A("s_waitcnt vmcnt(0)")
    A("buffer_load_dwordx4 %s, v%d, %s, s%d offen sc1" % (vr(XR, 4), vL16, sr(sWS, 4), sT3))
    A("s_waitcnt vmcnt(0)")
    for x in maxtree(range(XR, XR + 4), vT): A(x)
    A("v_cmp_eq_u32 vcc, -1, v%d" % vT)
    A("s_cbranch_vccz Lexx")
    A("s_mov_b32 s%d, %d" % (sCNT, int(OPT.get("xlk", 2)) - 1))
    LB("Lexl")
    A("buffer_load_dwordx4 %s, v%d, %s, s%d offen sc1" % (vr(XR, 4), vL16, sr(sWS, 4), sT3))
    if "l" in OPT.get("xs", ""): A("s_branch Ltabdone")
    ext_load(W + 32)
    A("s_waitcnt vmcnt(4)")
    for x in maxtree(range(XR, XR + 4), vT): A(x)
    A("v_cmp_eq_u32 vcc, -1, v%d" % vT)
    A("s_cbranch_vccz Lexx")
    A("s_waitcnt vmcnt(0)")
    ext_write(W + 32)
    for x in maxtree(range(W + 32, W + 48), vT): A(x)
    A("v_cmp_eq_u32 vcc, -1, v%d" % vT)
    A("s_cbranch_vccz Lexc")
    A("s_sub_u32 s%d, s%d, 1" % (sCNT, sCNT))
    A("s_cbranch_scc0 Lexl")
    A("s_branch Ltabdone")
    LB("Lexc")
    A("v_mov_b32 v%d, 0" % vT)
    A("ds_write_b32 v%d, v%d offset:48" % (vFL, vT))
    A("s_branch Ltabdone")
    LB("Lexx")
    wqf_reads()
    A("s_branch Ltw")
else:
    A("s_branch Ltabdone")
LB("Ltw")
lds_spin(20, 3, vT + 2)
A("s_branch Ltwd")

for b in ool: L += b
ool = []
LB("Lslow")
C("rare: some h lies outside the table -> evaluate g(h) directly for those lanes")
RW1 = [W + 32 + i for i in range(14)]
RB1 = [PM + i for i in range(14)]
RW2 = [16 + i for i in range(10)] + [W + 46, W + 47, PM + 14, PM + 15]
A("v_lshlrev_b32 v26, 3, v%d" % vLANE)
A("s_load_dword s%d, %s, 0" % (sB2, sr(sB2P, 2)))
for (d4, d2, s) in [([W + 32, W + 36, W + 40], W + 44, sW1), ([PM, PM + 4, PM + 8], PM + 12, sB1)]:
    for k in range(3):
        A("buffer_load_dwordx4 %s, v%d, %s, 0 offen offset:%d" % (vr(d4[k], 4), vL16, sr(s, 4), 1024 * k))
    A("buffer_load_dwordx2 %s, v26, %s, 0 offen offset:3072" % (vr(d2, 2), sr(s, 4)))
A("buffer_load_dwordx4 v[16:19], v%d, %s, 0 offen" % (vL16, sr(sW2, 4)))
A("buffer_load_dwordx4 v[20:23], v%d, %s, 0 offen offset:1024" % (vL16, sr(sW2, 4)))
A("buffer_load_dwordx2 v[24:25], v%d, %s, 0 offen offset:2048" % (vL16, sr(sW2, 4)))
A("buffer_load_dwordx2 %s, v%d, %s, 0 offen offset:2056" % (vr(W + 46, 2), vL16, sr(sW2, 4)))
A("buffer_load_dwordx2 %s, v26, %s, 0 offen offset:3072" % (vr(PM + 14, 2), sr(sW2, 4)))
A("s_waitcnt vmcnt(0) lgkmcnt(0)")
A("s_lshl_b32 s%d, s%d, 16" % (sB2, sB2))
A("s_mov_b32 s%d, 1" % sT4)
for e in range(8):
    A("v_cmp_le_u32 vcc, %d, v%d" % (NENT * 4, AD + e))
    A("v_cmp_eq_u32 %s, -1, v%d" % (sr(sH2, 2), Y + e))
    A("s_or_b64 %s, %s, vcc" % (sr(sH2, 2), sr(sH2, 2)))
    if e & 1: A("v_and_b32 v%d, 0xffff0000, v%d" % (RT + 3, HB + (e >> 1)))
    else: A("v_lshlrev_b32 v%d, 16, v%d" % (RT + 3, HB + (e >> 1)))
    LB("Lse%d" % e)
    A("s_cmp_eq_u64 %s, 0" % sr(sH2, 2))
    A("s_cbranch_scc1 Lsf%d" % e)
    A("s_ff1_i32_b64 s%d, %s" % (sT0, sr(sH2, 2)))
    A("s_nop 0")
    A("v_readlane_b32 s%d, v%d, s%d" % (sH, RT + 3, sT0))
    A("s_cmp_eq_u32 s%d, s%d" % (sH, sT4))
    A("s_cbranch_scc1 Lsg%d" % e)
    A("s_mov_b32 s%d, s%d" % (sT4, sH))
    A("s_call_b64 %s, Lgev" % sr(sRET, 2))
    LB("Lsg%d" % e)
    A("s_nop 1")
    A("v_cmp_eq_u32 vcc, s%d, v%d" % (sH, RT + 3))
    A("v_mov_b32 v%d, s%d" % (RES + 3, sY))
    A("s_andn2_b64 %s, %s, vcc" % (sr(sH2, 2), sr(sH2, 2)))
    A("v_cndmask_b32 v%d, v%d, v%d, vcc" % (Y + e, Y + e, RES + 3))
    A("s_branch Lse%d" % e)
    LB("Lsf%d" % e)
for i in range(16): A("v_mov_b32 v%d, 0" % (PM + i))
A("s_mov_b64 vcc, 0")
A("s_mov_b64 %s, 0" % sr(sH, 2))
A("s_branch Lslowdone")
LB("Lgev")
a, u, t1, z = RES, RES + 1, RES + 2, RT
A("v_mov_b32 v%d, 0" % a)
A("v_mov_b32 v%d, %s" % (RT + 1, hx(f2u(K0))))
A("v_mov_b32 v%d, %s" % (RT + 2, hx(f2u(K1))))
for p in range(14):
    for hf in range(2):
        def un(d, s):
            if hf == 0: A("v_lshlrev_b32 v%d, 16, v%d" % (d, s))
            else: A("v_and_b32 v%d, 0xffff0000, v%d" % (d, s))
        un(u, RW1[p]); un(t1, RB1[p]); un(z, RW2[p])
        A("v_fma_f32 v%d, v%d, s%d, v%d" % (u, u, sH, t1))
        A("v_mul_f32 v%d, v%d, v%d" % (t1, u, u))
        A("v_fma_f32 v%d, v%d, v%d, v%d" % (t1, t1, RT + 2, RT + 1))
        A("v_mul_f32 v%d, v%d, v%d" % (t1, t1, u))
        A("v_exp_f32 v%d, v%d" % (t1, t1))
        A("v_mul_f32 v%d, v%d, v%d" % (z, z, u))
        A("v_add_f32 v%d, 1.0, v%d" % (t1, t1))
        A("v_rcp_f32 v%d, v%d" % (t1, t1))
        A("s_nop 0")
        A("v_fmac_f32 v%d, v%d, v%d" % (a, z, t1))
A("v_mov_b32 v%d, v%d" % (u, a))
A("s_nop 1")
wave_sum2(a, u, sY, sT1)
A("s_nop 1")
A("v_mov_b32 v%d, s%d" % (a, sY))
A("v_cvt_pk_bf16_f32 v%d, v%d, v%d" % (a, a, a))
A("v_and_b32 v%d, 0xffff0000, v%d" % (a, a))
A("v_add_f32 v%d, s%d, v%d" % (a, sB2, a))
A("v_cvt_pk_bf16_f32 v%d, v%d, v%d" % (a, a, a))
A("v_and_b32 v%d, 0xffff0000, v%d" % (a, a))
A("s_nop 0")
A("v_readfirstlane_b32 s%d, v%d" % (sY, a))
A("s_nop 3")
A("s_setpc_b64 %s" % sr(sRET, 2))

for b in ool: L += b
A("s_endpgm")
L.append(".p2align 8")
L.append(".fill %d, 4, 0xBF800000" % (64 if DIAG else 512))
L.append('''.section .rodata,"a"
.p2align 6
.amdhsa_kernel %s_kernel
  .amdhsa_next_free_vgpr 256
  .amdhsa_next_free_sgpr 102
  .amdhsa_accum_offset 256
  .amdhsa_group_segment_fixed_size 0
  .amdhsa_kernarg_size 104
  .amdhsa_user_sgpr_count 2
  .amdhsa_user_sgpr_kernarg_segment_ptr 1
  .amdhsa_system_sgpr_workgroup_id_x 1
.end_amdhsa_kernel''' % NAME)
open(OUTF, "w").write("\n".join(x for x in L if x is not None) + "\n")
print("wrote", OUTF, "lines", len(L), "LDS", LDS_SZ)
```

```python
import sys, struct, math

NAME = "interleave_layers__sliding_block_cached__mixer_token_mlp__decode"
OUTF = sys.argv[1] if len(sys.argv) > 1 else "cdna_kernels/%s.s" % NAME
DIAG = int(sys.argv[2]) if len(sys.argv) > 2 else 0
DBL = 0
if DIAG == 3: DIAG = 0; DBL = 1
TOT = 0
if DIAG == 4: DIAG = 0; TOT = 1
OPT = dict(a.split("=") for a in sys.argv[3:])
DEPTH = int(OPT.get("depth", 8))
D0 = int(OPT.get("d0", 2))
D1 = int(OPT.get("d1", 4))
DC = int(OPT.get("dc", 3))
TAILI = int(OPT.get("taili", 11))
TAILD = int(OPT.get("taild", 8))
QV = int(OPT.get("qv", 3))
PRET = int(OPT.get("pret", 1))
GW = int(OPT.get("gw", 1))
GPRE = int(OPT.get("gpre", 0))
GGAP = int(OPT.get("ggap", -1))
WARM = int(OPT.get("warm", 1))
QPRE = int(OPT.get("qpre", -1)); QGAP = int(OPT.get("qgap", -1))
OPRE = int(OPT.get("opre", -1)); OGAP = int(OPT.get("ogap", -1))
XPRE = int(OPT.get("xpre", -1)); XGAP = int(OPT.get("xgap", -1))
FINE = OPT.get("fine", "")
QS = int(OPT.get("qs", 0))
ADP = int(OPT.get("adp", 0))
ROT = int(OPT.get("rot", 1)); VROT = int(OPT.get("vrot", 0))
WROT = int(OPT.get("wrot", 1))
WOP = int(OPT.get("wop", 0))
ECO = int(OPT.get("eco", 0))
XDL = int(OPT.get("xdl", 256))
QBD = int(OPT.get("qbd", 0))
VLATE = int(OPT.get("vlate", 1))
QV2 = int(OPT.get("qv2", 0))
PROG = int(OPT.get("prog", 1))
QT = int(OPT.get("qt", 0))
DRY = int(OPT.get("dry", 0))
HP = int(OPT.get("hp", 0))
NOCT = int(OPT.get("noct", 16))
QPOS = int(OPT.get("qpos", 1))
QPOS2 = int(OPT.get("qpos2", 7))

def f2u(x): return struct.unpack("<I", struct.pack("<f", x))[0]
def hx(x): return "0x%08x" % (x & 0xffffffff)

L = []
def A(s): L.append("    " + s)
def LB(s): L.append(s + ":")
def C(s): L.append("    ; " + s)
def vr(a, n): return "v[%d:%d]" % (a, a + n - 1)
def sr(a, n): return "s[%d:%d]" % (a, a + n - 1)
def NOP(n):
    while n > 0:
        k = min(n, 16); A("s_nop %d" % (k - 1)); n -= k

XOCT = int(OPT.get('xoct', 4))
ELO = int(OPT.get('elo', 130 - NOCT - XOCT))
LO2 = (ELO << 7) * 2
NENT = (NOCT + XOCT) * 256
XENT = XOCT * 256
assert XENT in (0, 1024)
EPW = NOCT * 256 // 256 // 4 // 2
GRS = 0x20000
O_OFF = [0x0000, 0xC400]; LSE_OFF = [0x8000, 0x14400]; Q1_OFF = 0x8400; X1_OFF = 0x14600
CLRA_PER = 1040
CLRB_OFF = 0x8400; CLRB_PER = 1680
Q0_OFF = 0x18000
EPO = 0x17f00
PB = 0x100000; P_L = 0x20000
TB = 0x140000; FB = 0x148000
QB_DELTA = 0x200000
STB = 0x300000
WS_SZ = 0x400000
L_WQ = 12288; L_K = L_WQ + 16384; L_V = L_K + 32768
L_WO = L_K + 16384
L_TAB = L_V
L_XN = L_V + 32768; XS = 1056
L_X2 = L_XN + 4 * XS
L_FLG = L_X2 + 4 * XS
L_RB = L_K; RBS = 2048 + 64; L_ML = L_K + 4 * RBS
L_QF = L_X2
LDS_SZ = int(OPT.get("lds", L_FLG + 64))
SPIN = 0x40000
K0 = -2.0 * math.sqrt(2.0 / math.pi) * math.log2(math.e)
K1 = K0 * 0.044715
EPS = hx(f2u(1e-5))

sTG1, sTG2 = 0, 1
sW, sJ, sA, sC, sGR, sLAY, sFAST = 3, 4, 5, 6, 7, 8, 9
sT0, sT1, sT2, sT3, sT4, sT5 = 10, 11, 12, 13, 14, 15
sCNT = 16
sQL, sQS, sOL, sOS, sLL, sLS, sPS = 17, 18, 19, 20, 21, 22, 23
sSC, sIT = 24, 25
sSUM, sSQ = 26, 27
sH, sH2, sRET, sMSK = 28, 30, 32, 34
sB2, sY, sXCC, sE = 36, 37, 38, 39
sB2P = 40
sK, sV, sWQ, sWO, sWS, sX, sOUT, sW1, sB1, sW2 = 44, 48, 52, 56, 60, 64, 68, 72, 76, 80
sKO, sKL, sVO, sVL = 84, 85, 86, 87
sPM = 88
sHC, sHT = 84, 85

def STAMP(i):
    if DIAG:
        A("s_memrealtime s[42:43]"); A("s_waitcnt lgkmcnt(0)")
        A("v_writelane_b32 v30, s42, %d" % i)

def CST(i):
    if DIAG == 1 and FINE:
        A("s_memtime s[42:43]"); A("s_waitcnt lgkmcnt(0)")
        A("v_writelane_b32 v31, s42, %d" % i)

vLANE = 1
vL16, vQST, vOST, vOLD, vPST, vX1S, vXNW, vXNR, vRBW, vRBR, vMLW, vMLR, vLSE, vZ = range(2, 16)
vT = 16
vWT, vFL = 28, 29
vLS2 = 27
KF, VF, WQF, WOF, SEL, ONES = 32, 64, 96, 112, 176, 180
W = 184
PM = 232
XR = 248
RES = 252

def srd(s, nbytes):
    A("s_mov_b32 s%d, %s" % (s + 2, hx(nbytes))); A("s_mov_b32 s%d, 0x00020000" % (s + 3))

def soff(dst, terms, const):
    first = True
    for (src, sh) in terms:
        if first: A("s_lshl_b32 s%d, s%d, %d" % (dst, src, sh)); first = False
        else:
            A("s_lshl_b32 s%d, s%d, %d" % (sT0, src, sh)); A("s_add_u32 s%d, s%d, s%d" % (dst, dst, sT0))
    if const: A("s_add_u32 s%d, s%d, %s" % (dst, dst, hx(const)))

def wave_sum2(a, b, sa, sb):
    for ctl in ["row_ror:8", "row_ror:4", "row_ror:2", "row_ror:1"]:
        A("v_add_f32_dpp v%d, v%d, v%d %s row_mask:0xf bank_mask:0xf" % (a, a, a, ctl))
        A("v_add_f32_dpp v%d, v%d, v%d %s row_mask:0xf bank_mask:0xf" % (b, b, b, ctl))
        A("s_nop 0")
    for ctl in ["row_bcast:15 row_mask:0xa", "row_bcast:31 row_mask:0xc"]:
        A("v_add_f32_dpp v%d, v%d, v%d %s bank_mask:0xf" % (a, a, a, ctl))
        A("v_add_f32_dpp v%d, v%d, v%d %s bank_mask:0xf" % (b, b, b, ctl))
        A("s_nop 0")
    A("v_readlane_b32 s%d, v%d, 63" % (sa, a))
    A("v_readlane_b32 s%d, v%d, 63" % (sb, b))

def row_stats(x, t, unp):
    A("v_dot2_f32_bf16 v%d, v%d, v%d, 0" % (t, x, ONES))
    A("v_dot2_f32_bf16 v%d, v%d, v%d, 0" % (t + 1, x, x))
    for i in range(1, 4):
        A("v_dot2_f32_bf16 v%d, v%d, v%d, v%d" % (t, x + i, ONES, t))
        A("v_dot2_f32_bf16 v%d, v%d, v%d, v%d" % (t + 1, x + i, x + i, t + 1))
    un = []
    for i in range(4):
        un.append("v_lshlrev_b32 v%d, 16, v%d" % (unp + 2 * i, x + i))
        un.append("v_and_b32 v%d, 0xffff0000, v%d" % (unp + 2 * i + 1, x + i))
    for k in range(3): A(un.pop(0))
    a, b = t, t + 1
    for ctl in ["row_ror:8 row_mask:0xf", "row_ror:4 row_mask:0xf", "row_ror:2 row_mask:0xf", "row_ror:1 row_mask:0xf", "row_bcast:15 row_mask:0xa", "row_bcast:31 row_mask:0xc"]:
        A("v_add_f32_dpp v%d, v%d, v%d %s bank_mask:0xf" % (a, a, a, ctl))
        A("v_add_f32_dpp v%d, v%d, v%d %s bank_mask:0xf" % (b, b, b, ctl))
        A(un.pop(0) if un else "s_nop 0")
    A("v_readlane_b32 s%d, v%d, 63" % (sSUM, a))
    A("v_readlane_b32 s%d, v%d, 63" % (sSQ, b))
    A("s_nop 0")
    A("v_mul_f32 v%d, s%d, v%d" % (t, sSUM, vZ))
    A("v_mul_f32 v%d, s%d, v%d" % (t + 1, sSQ, vZ))
    A("v_fma_f32 v%d, -v%d, v%d, v%d" % (t + 1, t, t, t + 1))
    A("v_max_f32 v%d, 0, v%d" % (t + 1, t + 1))

ool = []
uid = [0]
def maxtree(regs, tmp):
    r = list(regs); out = []
    out.append("v_max3_u32 v%d, v%d, v%d, v%d" % (tmp, r[0], r[1], r[2])); r = r[3:]
    if len(r) >= 5:
        out.append("v_max3_u32 v%d, v%d, v%d, v%d" % (tmp + 1, r[0], r[1], r[2])); r = r[3:]
        d = 0
        while len(r) >= 2:
            out.append("v_max3_u32 v%d, v%d, v%d, v%d" % (tmp + d, tmp + d, r[0], r[1])); r = r[2:]; d ^= 1
        if r: out.append("v_max3_u32 v%d, v%d, v%d, v%d" % (tmp, tmp, tmp + 1, r[0]))
        else: out.append("v_max_u32 v%d, v%d, v%d" % (tmp, tmp, tmp + 1))
    else:
        while len(r) >= 2:
            out.append("v_max3_u32 v%d, v%d, v%d, v%d" % (tmp, tmp, r[0], r[1])); r = r[2:]
        if r: out.append("v_max_u32 v%d, v%d, v%d" % (tmp, tmp, r[0]))
    return out

def poll(issue, regs, tmp, pre_wait=None, spec=None, back="s_nop 7", tag=None, stub=None):
    uid[0] += 1; u = uid[0]
    A("s_mov_b32 s%d, %s" % (sCNT, hx(SPIN)))
    LB("Lp%d" % u)
    issue()
    if pre_wait: pre_wait()
    A("s_waitcnt vmcnt(0)")
    mt = maxtree(regs, tmp) + ["v_cmp_eq_u32 vcc, -1, v%d" % tmp]
    spec = list(spec or [])
    ns = len(spec)
    per = -(-len(mt) // ns) if ns else 0
    for s in spec:
        A(s)
        for k in range(per):
            if mt: A(mt.pop(0))
    for m in mt: A(m)
    A("s_cbranch_vccz Ld%d" % u)
    A("s_sub_u32 s%d, s%d, 1" % (sCNT, sCNT))
    if back != "s_nop 7": A(back)
    A("s_cbranch_scc0 Lp%d" % u)
    if stub: touch_stub(stub)
    LB("Ld%d" % u)
    if DIAG and tag is not None:
        A("s_lshl_b32 m0, s%d, 2" % sLAY); A("s_add_u32 m0, m0, %d" % tag); A("s_nop 0")
        A("v_writelane_b32 v31, s%d, m0" % sCNT)

stubs = []
def touch_stub(name, branch_over=None):
    A("s_branch Lsk_%s" % name)
    L.append(".p2align 6")
    LB("Lst_%s" % name)
    A("s_setpc_b64 %s" % sr(sRET, 2))
    LB("Lsk_%s" % name)
    stubs.append(name)

def delay(cyc):
    if cyc == -1:
        A("s_waitcnt vmcnt(0)"); return
    while cyc >= 64:
        k = min(cyc // 64, 15); A("s_sleep %d" % k); cyc -= 64 * k
    if cyc >= 8: A("s_nop %d" % min(15, cyc // 4 - 1))

def ppoll(issue, regs, n, tmp, spec, pre=0, gap=128, mid=None, tag=None, fix=None, stub=None, lanes=None, per_load=None):
    uid[0] += 1; u = uid[0]
    def look(k):
        if per_load and PROG and gap < 0:
            r = list(regs(k)); out = []
            for i in range(n):
                out.append("s_waitcnt vmcnt(%d)" % (n - 1 - i))
                sp = list(per_load(k, i))
                ck = ["v_max3_u32 v%d, v%d, v%d, v%d" % (tmp + 1, r[4 * i], r[4 * i + 1], r[4 * i + 2]),
                      ("v_max_u32 v%d, v%d, v%d" % (tmp, tmp + 1, r[4 * i + 3])) if i == 0 else ("v_max3_u32 v%d, v%d, v%d, v%d" % (tmp, tmp, tmp + 1, r[4 * i + 3]))]
                while sp or ck:
                    if sp: out.append(sp.pop(0))
                    if ck: out.append(ck.pop(0))
            return out + ["v_cmp_eq_u32 vcc, -1, v%d" % tmp]
        out = ["s_waitcnt vmcnt(%d)" % (n if k == 0 else 0)]
        mt = maxtree(regs(k), tmp) + ["v_cmp_eq_u32 vcc, -1, v%d" % tmp]
        sp = list(spec(k)); per = -(-len(mt) // len(sp)) if sp else 0
        for x in sp:
            out.append(x)
            for _ in range(per):
                if mt: out.append(mt.pop(0))
        return out + mt + (["s_and_b64 vcc, vcc, %s" % sr(lanes, 2)] if lanes else [])
    A("s_mov_b32 s%d, %s" % (sCNT, hx(SPIN)))
    delay(pre)
    fine = FINE and tag == int(FINE)
    if fine: CST(8)
    LB("Lp%d" % u)
    issue(0)
    if fine and 0: CST(9)
    if mid: mid()
    if gap >= 0: delay(gap)
    if gap >= 0: issue(1)
    lk = look(0)
    if gap < 0 and not (per_load and PROG): lk[0] = "s_waitcnt vmcnt(0)"
    for k, x in enumerate(lk):
        A(x)
        if fine and k == 0: CST(13)
    if fine: CST(14)
    A("s_cbranch_vccz Ld%d" % u)
    if gap < 0: issue(1)
    A("s_sub_u32 s%d, s%d, 1" % (sCNT, sCNT))
    for x in look(1): A(x)
    for x in (fix or []): A(x)
    A("s_cbranch_vccz Ld%d" % u)
    A("s_sub_u32 s%d, s%d, 1" % (sCNT, sCNT))
    A("s_cmp_gt_i32 s%d, 0" % sCNT)
    A("s_cbranch_scc1 Lp%d" % u)
    if stub: touch_stub(stub)
    LB("Ld%d" % u)
    if fine: CST(15)
    if DIAG and tag is not None:
        A("s_lshl_b32 m0, s%d, 2" % sLAY); A("s_add_u32 m0, m0, %d" % tag); A("s_nop 0")
        A("v_writelane_b32 v31, s%d, m0" % sCNT)

def lds_spin(off, target, tmp, mask=None, sleep=0):
    uid[0] += 1; u = uid[0]
    A("s_mov_b32 s%d, %s" % (sT2, hx(SPIN * 4)))
    LB("Ls%d" % u)
    A("ds_read_b32 v%d, v%d offset:%d" % (tmp, vFL, off))
    A("s_waitcnt lgkmcnt(0)")
    A("v_readfirstlane_b32 s%d, v%d" % (sT1, tmp))
    if mask: A("s_and_b32 s%d, s%d, %d" % (sT0, sT1, mask))
    A("s_cmp_ge_u32 s%d, %d" % (sT0 if mask else sT1, target))
    A("s_cbranch_scc1 Lt%d" % u)
    if sleep: A("s_sleep %d" % sleep)
    A("s_sub_u32 s%d, s%d, 1" % (sT2, sT2))
    A("s_cbranch_scc0 Ls%d" % u)
    LB("Lt%d" % u)

def lds_arrive(off, tmp, val=1):
    if val is not None: A("v_mov_b32 v%d, %d" % (tmp, val))
    A("s_mov_b64 exec, 1")
    A("ds_add_u32 v%d, v%d offset:%d" % (vFL, tmp, off))
    A("s_mov_b64 exec, -1")

def store_local(op, data, vaddr, so):
    uid[0] += 1; u = uid[0]
    A("s_cbranch_scc1 Lw%d" % u)
    A("%s %s, v%d, %s, s%d offen" % (op, data, vaddr, sr(sWS, 4), so))
    LB("Lx%d" % u)
    ool.append(["Lw%d:" % u, "    %s %s, v%d, %s, s%d offen sc1" % (op, data, vaddr, sr(sWS, 4), so), "    s_branch Lx%d" % u])
def fastcmp(): A("s_cmp_eq_u32 s%d, 0" % sFAST)

def mf(d, a, b, c):
    return "v_mfma_f32_16x16x32_bf16 %s, %s, %s, %s" % (vr(d, 4), vr(a, 4), vr(b, 4), "0" if c is None else vr(c, 4))
def mfma(d, a, b, c): A(mf(d, a, b, c))

def tags():
    A("s_add_u32 s%d, s%d, 1" % (sTG1, sE))
    A("s_mul_i32 s%d, s%d, 0x9E3779B1" % (sTG2, sTG1))
    A("s_and_b32 s%d, s%d, -8" % (sTG2, sTG2))

def common_addr():
    A("v_and_b32 v18, 3, v%d" % vLANE)
    A("v_lshlrev_b32 v%d, 12, v17" % vQST)
    A("v_lshrrev_b32 v24, 1, v16")
    A("v_lshl_add_u32 v%d, v24, 8, v%d" % (vQST, vQST))
    A("v_and_b32 v24, 1, v16")
    A("v_lshl_add_u32 v%d, v24, 3, v%d" % (vQST, vQST))
    A("v_lshlrev_b32 v%d, 4, v24" % vLSE)
    A("s_mul_i32 s%d, s%d, %d" % (sT0, sW, XS))
    A("s_add_u32 s%d, s%d, %d" % (sT0, sT0, L_XN))
    A("v_add_u32 v%d, s%d, v%d" % (vXNW, sT0, vL16))
    A("s_lshl_b32 s%d, s%d, 8" % (sT0, sA))
    A("s_add_u32 s%d, s%d, %d" % (sT0, sT0, L_XN))
    A("v_mul_u32_u24 v25, %d, v18" % XS)
    A("v_lshl_add_u32 v25, v16, 4, v25")
    A("v_add_u32 v%d, s%d, v25" % (vXNR, sT0))
    A("v_mov_b32 v%d, %s" % (vZ, hx(f2u(1.0 / 512))))
    for r in range(4): A("v_mov_b32 v%d, 0x3f803f80" % (ONES + r))
    A("s_and_b32 s%d, s%d, 1" % (sT1, sC))
    A("s_lshr_b32 s%d, s%d, 1" % (sT2, sC))
    soff(sQS, [(sT1, 11), (sW, 9), (sA, 6), (sT2, 4)], 0)
    A("v_bfe_u32 v24, v%d, 2, 2" % vLANE)
    A("v_lshl_add_u32 v24, v16, 3, v24")
    A("v_lshlrev_b32 v24, 7, v24")
    A("v_bfe_u32 v25, v%d, 3, 2" % vLANE)
    A("v_lshlrev_b32 v25, 1, v25")
    A("v_bfe_u32 v26, v%d, 1, 1" % vLANE)
    A("v_xor_b32 v25, v25, v26")
    A("v_lshl_add_u32 v24, v25, 4, v24")
    A("v_and_b32 v26, 1, v%d" % vLANE)
    A("v_lshl_add_u32 v%d, v26, 3, v24" % vWT)
    A("s_mov_b32 s%d, 0x000f000f" % sMSK)
    A("s_mov_b32 s%d, 0x000f000f" % (sMSK + 1))
    A("s_mov_b32 s%d, 0" % sLAY)

def wtile_voff(shift, d):
    A("v_lshrrev_b32 v24, 3, v%d" % vLANE)
    A("v_and_b32 v25, 7, v%d" % vLANE)
    A("v_and_b32 v26, 1, v16")
    A("v_lshlrev_b32 v26, 1, v26")
    A("v_xor_b32 v25, v25, v26")
    A("v_lshlrev_b32 v25, 4, v25")
    A("v_lshl_add_u32 v%d, v24, %d, v25" % (d, shift))
    A("v_xor_b32 v%d, 64, v%d" % (d + 1, d))

def wqf_reads():
    A("s_lshl_b32 s%d, s%d, 5" % (sT1, sW))
    A("v_xor_b32 v26, s%d, v%d" % (sT1, vWT))
    for t in range(4):
        for hf in range(2):
            A("ds_read_b64_tr_b16 %s, v26 offset:%d" % (vr(WQF + 4 * t + 2 * hf, 2), L_WQ + 4096 * t + 512 * hf))

def dma(vaddr, srdn, so, lds_s, step_so, flags="nt"):
    A("s_mov_b32 m0, s%d" % lds_s)
    A("s_add_u32 s%d, s%d, 1024" % (lds_s, lds_s))
    A("buffer_load_dwordx4 v%d, %s, s%d offen %s lds" % (vaddr, sr(srdn, 4), so, flags))
    A("s_add_u32 s%d, s%d, %d" % (so, so, step_so))

hdr = open("cdna_kernels/%s.s.ref" % NAME).read().split("; Override launch")[0]
L.append(hdr.rstrip("\n") + """
;
; One persistent launch, 256 workgroups (one per CU) x 8 waves.  wg = A(2b):C(3b):j(3b); j = kv head.
; K, V, wq and wo are read from HBM exactly once (LDS-DMA) and stay in registers for both attention layers.
;   roles of a workgroup:  attention (batch A, keys 128C..), q projection (wq rows 128A.., 64 columns C),
;                          output projection (head A of group j, 64 columns C), row reduction (batch A, columns 64C..)
;   waves 0-3: stream K/V, attention, output projection, LayerNorm + mixer + next q projection
;   waves 4-7: first q projection, then the token-mixer MLP g(h) = sum_f gelu(h w1 + b1) w2 + b2 evaluated
;              exactly (all 1792 hidden units) for every bf16 value h with 2^-17 <= |h| < 8; h is a bf16 tensor in the
;              reference, so the mixer is a lookup of these values; any other h is evaluated directly (Lslow).
; Hand-offs between workgroups go through d_ws.  Slots are filled with a sentinel at the start of the launch and a
; consumer polls until no sentinel is left; the first hand-off (q) and the "sentinels are in place" announcements
; carry a tag derived from a word that every launch advances.  Stores inside a kv-head group are plain when the
; whole group reports the same XCC id, write-through otherwise; every poll is bounded.
""".rstrip("\n"))
L.append("; @launch grid=(256,1,1) block=(512,1,1) lds=%d" % LDS_SZ)
L.append('.amdgcn_target "amdgcn-amd-amdhsa--gfx950"')
L.append(".text\n" + (".p2align 12\n" if int(OPT.get("al", 0)) else "") + ".globl %s_kernel\n.p2align 8\n.type %s_kernel,@function\n%s_kernel:" % (NAME, NAME, NAME))
if DIAG: A("s_memrealtime s[42:43]")
if DBL or TOT: A("s_memrealtime s[98:99]")
sM = 96
A("s_lshr_b32 s%d, s2, 8" % sT0)
A("s_cbranch_scc1 Lend")
A("s_load_dwordx2 %s, s[0:1], 24" % sr(sWQ, 2))
A("s_load_dwordx4 %s, s[0:1], 0" % sr(sT2, 4))
A("v_readfirstlane_b32 s%d, v0" % sW)
C("every wave pulls one line of this kernel's code into L2 (plain read): 32 workgroups x 4 lines")
A("s_getpc_b64 s[10:11]")
LB("Lpc0")
A("s_lshr_b32 s%d, s2, 3" % sM)
A("s_lshl_b32 s%d, s%d, 9" % (sCNT, sM))
A("s_cmp_lg_u32 s%d, 0" % sW)
A("s_cbranch_scc1 Lnopf")
A("v_and_b32 v19, 3, v0")
A("v_lshl_add_u32 v19, v19, 7, s%d" % sCNT)
A("global_load_dword v%d, v19, s[10:11]" % (W + 8))
LB("Lnopf")
A("s_and_b32 s%d, s2, 7" % sJ)
A("s_lshr_b32 s%d, s2, 6" % sA)
A("s_and_b32 s%d, s%d, 7" % (sC, sM))
A("s_lshl_b32 s%d, 1, 17" % (sWQ + 3))
A("s_bitcmp1_b32 s%d, 8" % sW)
A("s_cbranch_scc0 Lmain0")
vKA, vVA = W + 40, W + 44
sRO, sRM = sVO, 97 if not TOT else 94
if TOT: sRM = sOL
def kv_issue(i):
    A("s_add_u32 m0, s%d, s%d" % (sKL if i < 8 else sVL, sRO))
    A("s_add_u32 s%d, s%d, s%d" % (sCNT, sKO, sRO))
    if i < 8: A("buffer_load_dwordx4 v%d, %s, s%d offen nt lds" % (vKA + (i & 3), sr(sK, 4), sCNT))
    else: A("buffer_load_dwordx4 v%d, %s, s%d offen nt lds" % (vVA + (i & 1), sr(sV, 4), sCNT))
    A("s_addk_i32 s%d, %d" % (sRO, 1024 + (VROT * 1024 if i == 7 else 0)))
    A("s_and_b32 s%d, s%d, 0x1fff" % (sRO, sRO))
def lane_init():
    A("v_and_b32 v%d, 63, v0" % vLANE)
    A("v_mov_b32 v%d, %d" % (vFL, L_FLG))
    A("v_lshlrev_b32 v%d, 4, v%d" % (vL16, vLANE))
    A("v_lshrrev_b32 v16, 4, v%d" % vLANE)
    A("v_and_b32 v17, 15, v%d" % vLANE)
    A("v_mov_b32 v20, 0")
    if DIAG: A("v_mov_b32 v30, 0")
def main_early():
    LB("Lmain0")
    for s, off in [(sW1, 48), (sB1, 56), (sW2, 64)]:
        A("s_load_dwordx2 %s, s[0:1], %d" % (sr(s, 2), off))
    lane_init()
    A("v_mov_b32 v21, 0")
    for k in range(4): A("ds_write_b64 v%d, v[20:21] offset:%d" % (vFL, 8 * k))
    A("s_lshl_b32 s%d, 1, 25" % (sK + 2)); A("s_mov_b32 s%d, s%d" % (sK + 3, sWQ + 3))
    A("v_xor_b32 v18, v17, v16")
    A("v_lshlrev_b32 v18, 4, v18")
    A("v_lshl_add_u32 v%d, v16, 8, v18" % vKA)
    A("s_lshl_b32 s%d, s%d, %d" % (sRO, sC, 10 if ROT else 31))
    if not ROT: A("s_mov_b32 s%d, 0" % sRO)
    A("s_bfe_u32 s%d, s%d, 0x2000a" % (sT1, sRO))
    A("s_lshl_b32 s%d, s%d, 6" % (sT1, sT1))
    for k in range(1, 4):
        A("s_add_u32 s%d, s%d, %d" % (sCNT, sT1, 64 * k))
        A("s_and_b32 s%d, s%d, 0xc0" % (sCNT, sCNT))
        A("v_xor_b32 v%d, s%d, v%d" % (vKA + k, sCNT, vKA))
    A("v_xor_b32 v%d, s%d, v%d" % (vKA, sT1, vKA))
    soff(sKO, [(sA, 23), (sJ, 20), (sC, 15), (sW, 7)], 3072 * 256)
    A("s_add_u32 s%d, s%d, %d" % (sKL, sT0, L_K))
    A("s_waitcnt lgkmcnt(0)")
    A("s_mov_b64 %s, %s" % (sr(sK, 2), sr(sT4, 2)))
    for i in range(D0): kv_issue(i)
    C("lane k<3 of wave 3 pulls a slice of coefficient array k into L2")
    A("s_cmp_lg_u32 s%d, 192" % sW)
    A("s_cbranch_scc1 Lm_nopf")
    A("s_min_u32 s%d, s%d, 27" % (sT1, sM))
    A("s_lshl_b32 s%d, s%d, 7" % (sT1, sT1))
    A("v_mov_b32 v19, s%d" % sT1)
    A("s_mov_b64 exec, 1")
    for k, sd in enumerate([sW1, sB1, sW2]): A("global_load_dword v%d, v19, %s" % (W + 9 + k, sr(sd, 2)))
    A("s_mov_b64 exec, -1")
    LB("Lm_nopf")
    A("s_add_u32 s%d, s%d, %d" % (sVL, sT0, L_V))
    A("s_lshr_b32 s%d, s%d, 6" % (sW, sW))
    if DIAG: A("v_writelane_b32 v30, s42, 0")
    STAMP(10)
    A("s_branch Lmain")

C("---- helper waves: first q projection, then the table of g over bf16 inputs ----")
HW1, HB1, HW2 = 32, 60, 112
hK0, hK1, hONE, hRES = 88, 90, 92, 94
AC = [140, 142]
A("s_load_dwordx2 %s, s[0:1], 96" % sr(sWS, 2))
C("wq tile DMA: instruction i, thread t' = t-256: row 32 i + (t'>>3), 16-byte chunk (t'&7) ^ swizzle")
A("v_bfe_u32 v23, v0, 3, 5")
A("v_and_b32 v22, 7, v0")
A("v_and_b32 v24, 2, v23")
A("v_lshrrev_b32 v25, 1, v23")
A("v_and_or_b32 v24, v25, 4, v24")
A("v_xor_b32 v22, v22, v24")
A("v_lshlrev_b32 v22, 4, v22")
A("v_lshl_add_u32 v22, v23, 13, v22")
soff(sQL, [(sA, 20), (sJ, 10), (sC, 7)], 0)
A("s_lshl_b32 s%d, 1, 22" % (sWQ + 2))
A("s_lshl_b32 s%d, 1, 18" % sT1)
A("s_lshl_b32 s%d, s%d, 4" % (sQS, sW))
A("s_add_u32 m0, s%d, %d" % (sQS, L_WQ - 4096))
A("v_lshlrev_b32 v21, 4, v0")
if DIAG: A("s_memrealtime s[88:89]")
A("s_waitcnt lgkmcnt(0)")
if DIAG: A("s_memrealtime s[90:91]")
A("global_load_dwordx4 %s, v21, %s offset:-4096" % (vr(XR, 4), sr(sT2, 2)))
for i in range(4):
    if i:
        A("s_addk_i32 m0, 0x1000")
        A("s_add_u32 s%d, s%d, s%d" % (sQL, sQL, sT1))
    A("buffer_load_dwordx4 v22, %s, s%d offen nt lds" % (sr(sWQ, 4), sQL))
if DIAG: A("s_memrealtime s[92:93]")
lane_init()
A("s_bfe_u32 s%d, s%d, 0x20006" % (sW, sW))
A("s_lshl_b32 s%d, s%d, 10" % (sT3, sW))
srd(sWS, WS_SZ)
C("early sentinels (O0, LSE0): hw0 1024 B, the others 16 B")
for i in range(4): A("v_mov_b32 v%d, -1" % (PM + i))
A("s_mul_i32 s%d, s%d, %d" % (sT5, sM, CLRA_PER))
A("s_lshl_b32 s%d, s%d, 17" % (sGR, sJ))
A("s_add_u32 s%d, s%d, s%d" % (sT5, sT5, sGR))
A("s_add_u32 s%d, s%d, 1024" % (sT4, sT5))
A("s_cmp_ge_u32 s%d, 2" % sW)
A("s_cbranch_scc1 Lhc_skip")
A("s_cmp_eq_u32 s%d, 0" % sW)
A("s_cselect_b32 s%d, s%d, s%d" % (sT5, sT5, sT4))
A("s_cselect_b64 exec, -1, 1")
A("buffer_store_dwordx4 %s, v%d, %s, s%d offen sc1" % (vr(PM, 4), vL16, sr(sWS, 4), sT5))
LB("Lhc_skip")
A("s_mov_b64 exec, -1")
A("s_branch Lhelp2")
main_early()
LB("Lhelp2")
if QT:
    C("touch 2 lines of the tagged q mailbox per wave so that they sit in L2 before they are written")
    soff(sT4, [(sM, 10), (sW, 8), (sJ, 17)], Q0_OFF)
    A("v_lshlrev_b32 v24, 7, v%d" % vLANE)
    A("s_mov_b64 exec, 3")
    A("buffer_load_dword v%d, v24, %s, s%d offen" % (RES + 1, sr(sWS, 4), sT4))
A("s_mov_b64 exec, -1")
if HP: A("s_setprio 3")
A("s_load_dword s%d, %s, %s" % (sE, sr(sWS, 2), hx(EPO)))
A("s_load_dwordx2 %s, s[0:1], 72" % sr(sB2P, 2))
if DIAG:
    A("v_writelane_b32 v30, s42, 0")
    A("s_waitcnt lgkmcnt(0)")
    A("v_mov_b32 v31, 0")
    A("v_writelane_b32 v31, s88, 0"); A("v_writelane_b32 v31, s90, 1"); A("v_writelane_b32 v31, s92, 2")
STAMP(9)
A("s_barrier")
A("s_lshl_b32 s%d, s2, 2" % sHC)
A("s_add_u32 s%d, s%d, s%d" % (sHC, sHC, sW))
sHX = 86
if XENT:
    C("extra entry e = wave index: |h| code ELO*128 + (e>>1), sign e&1")
    A("s_lshr_b32 s%d, s%d, 1" % (sHX, sHC))
    A("s_add_u32 s%d, s%d, %d" % (sHX, sHX, ELO * 128))
    A("s_lshl_b32 s%d, s%d, 16" % (sHX, sHX))
    A("s_lshl_b32 s%d, s%d, 31" % (sT0, sHC))
    A("s_or_b32 s%d, s%d, s%d" % (sHX, sHX, sT0))
A("s_mul_i32 s%d, s%d, %d" % (sHC, sHC, EPW))
A("s_lshl_b32 s%d, s%d, 3" % (sHT, sHC))
A("s_add_u32 s%d, s%d, %d" % (sHT, sHT, XENT * 4))
A("s_add_u32 s%d, s%d, %d" % (sHC, sHC, ELO * 128 + XENT // 2))
A("s_lshl_b32 s%d, s%d, 16" % (sHC, sHC))
A("v_lshlrev_b32 v27, 2, v%d" % vLANE)
A("v_add_u32 v27, s%d, v27" % sHT)
A("s_mov_b32 s%d, %s" % (sHT, hx(TB)))
common_addr()
A("s_lshl_b32 s%d, s%d, 1" % (sQS, sQS))
A("s_add_u32 s%d, s%d, s%d" % (sQS, sQS, sGR))
A("s_add_u32 s%d, s%d, %s" % (sQS, sQS, hx(Q0_OFF)))
A("v_lshlrev_b32 v%d, 1, v%d" % (vQST, vQST))
A("s_getreg_b32 s%d, hwreg(HW_REG_XCC_ID, 0, 3)" % sXCC)
for r, c in [(hK0, K0), (hK1, K1), (hONE, 1.0)]:
    A("v_mov_b32 v%d, %s" % (r, hx(f2u(c)))); A("v_mov_b32 v%d, %s" % (r + 1, hx(f2u(c))))
A("v_mov_b32 v%d, 0" % hRES)
A("s_mov_b32 s%d, 0" % sIT)
if DRY:
    C("dry run of the q-projection code while its inputs are in flight (instruction cache warm-up; no side effects)")
    A("s_mov_b32 s%d, 1" % sIT)
    A("s_branch Llnq")
    LB("Ldry_done")
    A("s_mov_b64 exec, -1")
    A("s_mov_b32 s%d, 0" % sIT)
if WARM:
    C("warm the instruction cache lines at the far jump targets of the main waves")
    for k, nm in enumerate(["k", "fin", "out", "tab"]):
        A("s_cmp_lg_u32 s%d, %d" % (sW, k))
        A("s_cbranch_scc1 Lwm%d" % k)
        A("s_call_b64 %s, Lst_%s" % (sr(sRET, 2), nm))
        if nm == "out": A("s_call_b64 %s, Lst_mq" % sr(sRET, 2))
        LB("Lwm%d" % k)
A("s_cmp_ge_u32 s%d, 2" % sW)
A("s_cbranch_scc0 Lhx5")
A("s_waitcnt vmcnt(%d)" % (4 + QT))
LB("Lhx5")
A("s_waitcnt vmcnt(%d)" % (5 + QT))
STAMP(1)
A("s_branch Llnq")
LB("Lq_first")
if DRY:
    A("s_cmp_lg_u32 s%d, 0" % sIT)
    A("s_cbranch_scc1 Lq_dry")
A("s_waitcnt vmcnt(0) lgkmcnt(0)")
STAMP(2)
lds_arrive(0, vT + 4)
tags()
A("s_or_b32 s%d, s%d, s%d" % (sXCC, sXCC, sTG2))
C("4 helper arrivals (wq tile, xn rows) + 4 main arrivals (coefficients landed, sentinels acknowledged)")
lds_spin(0, 4, vT + 4)
STAMP(6)
LB("Lq_dry")
wqf_reads()
A("s_waitcnt lgkmcnt(0)")
A("s_branch Lq_go")
LB("Lh_qst")
if DRY:
    A("s_cmp_lg_u32 s%d, 0" % sIT)
    A("s_cbranch_scc1 Ldry_done")
STAMP(5)
A("v_mov_b32 v%d, s%d" % (W + 6, sTG1))
A("v_mov_b32 v%d, s%d" % (W + 7, sXCC))
A("buffer_store_dwordx4 %s, v%d, %s, s%d offen%s" % (vr(W + 4, 4), vQST, sr(sWS, 4), sQS, "" if int(OPT.get("fast", 1)) else " sc1"))
A("s_add_u32 s%d, s%d, %s" % (sQS, sQS, hx(QB_DELTA)))
if not QBD: A("buffer_store_dwordx4 %s, v%d, %s, s%d offen sc1" % (vr(W + 4, 4), vQST, sr(sWS, 4), sQS))
A("s_mov_b64 exec, -1")
HR = W + 8
if ADP: lds_arrive(28, 24)
if HP: A("s_setprio 0")
STAMP(3)
A("v_lshlrev_b32 v26, 3, v%d" % vLANE)
lds_spin(24, 4, 24, sleep=1)
for a_ in range(3):
    for k in range(3):
        A("ds_read_b128 %s, v%d offset:%d" % (vr(HR + 14 * a_ + 4 * k, 4), vL16, 4096 * a_ + 1024 * k))
    A("ds_read_b64 %s, v26 offset:%d" % (vr(HR + 14 * a_ + 12, 2), 4096 * a_ + 3072))
for a_, d in [(0, HW1), (14, HB1), (28, HW2)]:
    A("s_waitcnt lgkmcnt(%d)" % (8 - 4 * (a_ // 14)))
    for p in range(14):
        A("v_lshlrev_b32 v%d, 16, v%d" % (d + 2 * p, HR + a_ + p))
        A("v_and_b32 v%d, 0xffff0000, v%d" % (d + 2 * p + 1, HR + a_ + p))
A("s_load_dword s%d, %s, 0" % (sB2, sr(sB2P, 2)))
STAMP(4)
if DIAG:
    A("s_memtime s[42:43]"); A("s_waitcnt lgkmcnt(0)"); A("v_writelane_b32 v30, s42, 13")
LB("Lhl")
if DIAG:
    A("s_memrealtime s[42:43]"); A("s_add_u32 m0, s%d, 10" % sIT); A("s_waitcnt lgkmcnt(0)"); A("v_writelane_b32 v30, s42, m0")
A("s_mov_b32 s%d, s%d" % (sH, sHC)); A("s_mov_b32 s%d, s%d" % (sH + 1, sHC))
A("s_xor_b32 s%d, s%d, 0x80000000" % (sH2, sHC)); A("s_mov_b32 s%d, s%d" % (sH2 + 1, sH2))
U4 = [144, 146, 148, 150]; T4 = [152, 154, 156, 158]; Z4 = [160, 162, 164, 166]
for p2 in range(7):
    ch = [(2 * p2 + k // 2, k & 1) for k in range(4)]
    for k, (p, sg) in enumerate(ch):
        A("v_pk_fma_f32 %s, %s, %s, %s" % (vr(U4[k], 2), vr(HW1 + 2 * p, 2), sr([sH, sH2][sg], 2), vr(HB1 + 2 * p, 2)))
    for k in range(4): A("v_pk_mul_f32 %s, %s, %s" % (vr(T4[k], 2), vr(U4[k], 2), vr(U4[k], 2)))
    for k in range(4): A("v_pk_fma_f32 %s, %s, %s, %s" % (vr(T4[k], 2), vr(T4[k], 2), vr(hK1, 2), vr(hK0, 2)))
    for k in range(4): A("v_pk_mul_f32 %s, %s, %s" % (vr(T4[k], 2), vr(T4[k], 2), vr(U4[k], 2)))
    for k in range(4):
        for h in range(2): A("v_exp_f32 v%d, v%d" % (T4[k] + h, T4[k] + h))
    for k, (p, sg) in enumerate(ch): A("v_pk_mul_f32 %s, %s, %s" % (vr(Z4[k], 2), vr(U4[k], 2), vr(HW2 + 2 * p, 2)))
    for k in range(4): A("v_pk_add_f32 %s, %s, %s" % (vr(T4[k], 2), vr(T4[k], 2), vr(hONE, 2)))
    for k in range(4):
        for h in range(2): A("v_rcp_f32 v%d, v%d" % (T4[k] + h, T4[k] + h))
    for k, (p, sg) in enumerate(ch):
        if p == 0: A("v_pk_mul_f32 %s, %s, %s" % (vr(AC[sg], 2), vr(Z4[k], 2), vr(T4[k], 2)))
        else: A("v_pk_fma_f32 %s, %s, %s, %s" % (vr(AC[sg], 2), vr(Z4[k], 2), vr(T4[k], 2), vr(AC[sg], 2)))
A("v_add_f32 v%d, v%d, v%d" % (AC[0], AC[0], AC[0] + 1))
A("v_add_f32 v%d, v%d, v%d" % (AC[1], AC[1], AC[1] + 1))
A("s_lshl_b32 m0, s%d, 1" % sIT)
A("s_add_u32 s%d, s%d, 0x10000" % (sHC, sHC))
wave_sum2(AC[0], AC[1], sSUM, sSQ)
A("s_add_u32 s%d, s%d, 1" % (sIT, sIT))
A("s_nop 0")
A("v_writelane_b32 v%d, s%d, m0" % (hRES, sSUM))
A("s_add_u32 m0, m0, 1")
A("s_cmp_lg_u32 s%d, %d" % (sIT, EPW))
A("v_writelane_b32 v%d, s%d, m0" % (hRES, sSQ))
A("s_cbranch_scc1 Lhl")
def h_publish(lanes):
    A("v_cvt_pk_bf16_f32 v%d, v%d, v%d" % (hRES, hRES, hRES))
    A("v_and_b32 v%d, 0xffff0000, v%d" % (hRES, hRES))
    A("v_add_f32 v%d, s%d, v%d" % (hRES, sB2, hRES))
    A("v_cvt_pk_bf16_f32 v%d, v%d, v%d" % (hRES, hRES, hRES))
    A("v_and_b32 v%d, 0xffff0000, v%d" % (hRES + 1, hRES))
    A("s_mov_b64 exec, %d" % lanes)
    A("buffer_store_dword v%d, v27, %s, s%d offen sc1" % (hRES + 1, sr(sWS, 4), sHT))
    A("s_mov_b64 exec, -1")
A("s_waitcnt lgkmcnt(0)")
A("s_lshl_b32 s%d, s%d, 16" % (sB2, sB2))
lds_spin(8, 4, 24)
h_publish((1 << (2 * EPW)) - 1)
if QBD:
    C("the write-through copy of q is only needed when the group is not known to sit on one XCD")
    A("ds_read_b32 v24, v%d offset:4" % vFL)
    A("s_waitcnt lgkmcnt(0)")
    A("v_readfirstlane_b32 s%d, v24" % sT0)
    A("s_cmp_eq_u32 s%d, 4" % sT0)
    A("s_cbranch_scc1 Lhqb")
    A("s_mov_b64 exec, %s" % sr(sMSK, 2))
    A("buffer_store_dwordx4 %s, v%d, %s, s%d offen sc1" % (vr(W + 4, 4), vQST, sr(sWS, 4), sQS))
    A("s_mov_b64 exec, -1")
    LB("Lhqb")
STAMP(8)
if XENT:
    A("s_mov_b32 s%d, s%d" % (sH, sHX)); A("s_mov_b32 s%d, s%d" % (sH + 1, sHX))
    for grp in [[0, 1, 2, 3], [4, 5, 6, 7], [8, 9, 10], [11, 12, 13]]:
        n = len(grp)
        for k, p in enumerate(grp): A("v_pk_fma_f32 %s, %s, %s, %s" % (vr(U4[k], 2), vr(HW1 + 2 * p, 2), sr(sH, 2), vr(HB1 + 2 * p, 2)))
        for k in range(n): A("v_pk_mul_f32 %s, %s, %s" % (vr(T4[k], 2), vr(U4[k], 2), vr(U4[k], 2)))
        for k in range(n): A("v_pk_fma_f32 %s, %s, %s, %s" % (vr(T4[k], 2), vr(T4[k], 2), vr(hK1, 2), vr(hK0, 2)))
        for k in range(n): A("v_pk_mul_f32 %s, %s, %s" % (vr(T4[k], 2), vr(T4[k], 2), vr(U4[k], 2)))
        for k in range(n):
            for h in range(2): A("v_exp_f32 v%d, v%d" % (T4[k] + h, T4[k] + h))
        for k, p in enumerate(grp): A("v_pk_mul_f32 %s, %s, %s" % (vr(Z4[k], 2), vr(U4[k], 2), vr(HW2 + 2 * p, 2)))
        for k in range(n): A("v_pk_add_f32 %s, %s, %s" % (vr(T4[k], 2), vr(T4[k], 2), vr(hONE, 2)))
        for k in range(n):
            for h in range(2): A("v_rcp_f32 v%d, v%d" % (T4[k] + h, T4[k] + h))
        for k, p in enumerate(grp):
            if p < 2: A("v_pk_mul_f32 %s, %s, %s" % (vr(AC[p & 1], 2), vr(Z4[k], 2), vr(T4[k], 2)))
            else: A("v_pk_fma_f32 %s, %s, %s, %s" % (vr(AC[p & 1], 2), vr(Z4[k], 2), vr(T4[k], 2), vr(AC[p & 1], 2)))
    A("v_add_f32 v%d, v%d, v%d" % (AC[0], AC[0], AC[0] + 1))
    A("v_add_f32 v%d, v%d, v%d" % (AC[1], AC[1], AC[1] + 1))
    A("v_add_f32 v%d, v%d, v%d" % (AC[0], AC[0], AC[1]))
    A("s_nop 1")
    wave_sum2(AC[0], AC[1], sSUM, sSQ)
    A("s_nop 1")
    A("v_mov_b32 v%d, s%d" % (hRES, sSUM))
    A("v_cvt_pk_bf16_f32 v%d, v%d, v%d" % (hRES, hRES, hRES))
    A("v_and_b32 v%d, 0xffff0000, v%d" % (hRES, hRES))
    A("v_add_f32 v%d, s%d, v%d" % (hRES, sB2, hRES))
    A("v_cvt_pk_bf16_f32 v%d, v%d, v%d" % (hRES, hRES, hRES))
    A("v_and_b32 v%d, 0xffff0000, v%d" % (hRES, hRES))
    C("the last of the four helpers stores the workgroup's four extra entries with one instruction")
    A("s_lshl_b32 s%d, s%d, 2" % (sT0, sW))
    A("v_add_u32 v16, s%d, v%d" % (sT0, vFL))
    A("v_mov_b32 v17, 1")
    A("s_mov_b64 exec, 1")
    A("ds_write_b32 v16, v%d offset:32" % hRES)
    A("s_waitcnt lgkmcnt(0)")
    A("ds_add_rtn_u32 v18, v%d, v17 offset:28" % vFL)
    A("s_waitcnt lgkmcnt(0)")
    A("v_readfirstlane_b32 s%d, v18" % sT0)
    A("s_cmp_lg_u32 s%d, 3" % sT0)
    A("s_cbranch_scc1 Lhx_end")
    A("ds_read_b128 v[20:23], v%d offset:32" % vFL)
    A("s_lshl_b32 s%d, s2, 4" % sT0)
    A("v_mov_b32 v16, s%d" % sT0)
    A("s_waitcnt lgkmcnt(0)")
    A("buffer_store_dwordx4 v[20:23], v16, %s, s%d offen sc1" % (sr(sWS, 4), sHT))
    LB("Lhx_end")
    A("s_mov_b64 exec, -1")
if DIAG:
    A("s_memtime s[42:43]"); A("s_waitcnt lgkmcnt(0)"); A("v_writelane_b32 v30, s42, 14")
    STAMP(15)
STAMP(7)
C("stand in at the two barriers of the second layer, so that they do not wait for this wave's store acknowledgements")
A("s_barrier")
A("s_barrier")
if DIAG:
    A("s_add_u32 s%d, s%d, 4" % (sW, sW))
    A("v_mov_b32 v28, v30")
    A("s_branch Lfin_exit")
A("s_endpgm")

LB("Lmain")
for s, off in [(sWS, 96), (sV, 16), (sWO, 32), (sOUT, 80), (sX, 0), (sB2P, 72)]:
    A("s_load_dwordx2 %s, s[0:1], %d" % (sr(s, 2), off))
if DIAG == 2: A("s_load_dwordx2 s[100:101], s[0:1], 88")
srd(sWS, WS_SZ)
for s in [sW1, sB1, sW2]: srd(s, 3584)
A("s_lshl_b32 s%d, s%d, 10" % (sT3, sW))
A("s_barrier")
for i in range(D0, DC): kv_issue(i)
A("s_mov_b32 m0, s%d" % sT3)
for i, sd in enumerate([sW1, sB1, sW2]):
    if i: A("s_addk_i32 m0, 0x1000")
    A("s_nop 0")
    A("buffer_load_dwordx4 v%d, %s, s%d offen lds" % (vL16, sr(sd, 4), sT3))
for i in range(DC, D1): kv_issue(i)
for i in range(4): A("v_mov_b32 v%d, -1" % (W + i))
A("s_lshl_b32 s%d, s%d, 17" % (sGR, sJ))
A("s_mov_b32 s%d, s%d" % (sT1, sM))
A("s_waitcnt lgkmcnt(0)")
A("s_load_dword s%d, %s, %s" % (sE, sr(sWS, 2), hx(EPO)))
STAMP(11)
for s, n in [(sV, 1 << 25), (sX, 4096), (sWO, 1 << 22), (sOUT, 4096)]: srd(s, n)
A("v_lshlrev_b32 v18, 1, v16")
A("v_xor_b32 v18, v17, v18")
A("v_lshlrev_b32 v18, 4, v18")
A("v_lshl_add_u32 v%d, v16, 8, v18" % vVA)
if ROT:
    A("s_and_b32 s%d, s%d, 1" % (sT0, sC))
    A("s_lshl_b32 s%d, s%d, 7" % (sT0, sT0))
    A("v_xor_b32 v%d, s%d, v%d" % (vVA, sT0, vVA))
A("v_xor_b32 v%d, 128, v%d" % (vVA + 1, vVA))
C("late sentinels: wave 0,1: group region ; wave 2: P chunk")
A("s_lshr_b32 s%d, s2, 3" % sT1)
A("s_mul_i32 s%d, s%d, %d" % (sT1, sT1, CLRB_PER))
A("s_lshl_b32 s%d, s%d, 10" % (sT0, sW))
A("s_add_u32 s%d, s%d, s%d" % (sT1, sT1, sT0))
A("s_add_u32 s%d, s%d, s%d" % (sT1, sT1, sGR))
A("s_add_u32 s%d, s%d, %d" % (sT1, sT1, CLRB_OFF))
A("s_lshl_b32 s%d, s2, 10" % sT0)
A("s_add_u32 s%d, s%d, %s" % (sT0, sT0, hx(PB)))
A("s_cmp_ge_u32 s%d, 2" % sW)
A("s_cselect_b32 s%d, s%d, s%d" % (sT1, sT0, sT1))
A("s_bfm_b64 %s, %d, 0" % (sr(sH, 2), (CLRB_PER - 1024) // 16))
A("s_cmp_eq_u32 s%d, 1" % sW)
A("s_cselect_b64 %s, %s, -1" % (sr(sH, 2), sr(sH, 2)))
NCL = NOCT * 4 // 16
A("v_mov_b32 v19, v%d" % vL16)
A("s_cmp_lg_u32 s%d, 3" % sW)
A("s_cbranch_scc1 Lm_c3")
C("wave 3: this workgroup's table slots")
A("s_mul_i32 s%d, s2, %d" % (sT0, NOCT * 4))
A("s_add_u32 s%d, s%d, %d" % (sT0, sT0, XENT * 4))
A("v_add_u32 v19, s%d, v19" % sT0)
A("s_lshl_b32 s%d, s2, 4" % sT0)
if XENT: A("v_writelane_b32 v19, s%d, %d" % (sT0, NCL))
A("s_mov_b32 s%d, %s" % (sT1, hx(TB)))
A("s_mov_b64 %s, %d" % (sr(sH, 2), (1 << (NCL + (1 if XENT else 0))) - 1))
LB("Lm_c3")
A("s_mov_b64 exec, %s" % sr(sH, 2))
A("buffer_store_dwordx4 %s, v19, %s, s%d offen sc1" % (vr(W, 4), sr(sWS, 4), sT1))
A("s_mov_b64 exec, -1")

common_addr()
A("s_add_u32 s%d, s%d, s%d" % (sQS, sQS, sGR))
A("s_add_u32 s%d, s%d, %d" % (sQS, sQS, Q1_OFF))
wtile_voff(10, 22)
A("v_and_b32 v19, 7, v%d" % vLANE)
A("v_lshrrev_b32 v25, 2, v%d" % vLANE)
A("v_lshlrev_b32 v25, 7, v25")
A("v_lshl_add_u32 v%d, v18, 2, v25" % vOST)
A("v_lshlrev_b32 v25, 7, v16")
A("v_lshl_add_u32 v%d, v19, 4, v25" % vOLD)
C("lanes n>=8 of the first two o loads fetch the lse values instead: offset relative to the o block")
A("s_mul_i32 s%d, s%d, %d" % (sT0, sA, 128 - 8192))
A("s_mul_i32 s%d, s%d, %d" % (sT1, sW, 32 - 2048))
A("s_add_u32 s%d, s%d, s%d" % (sT0, sT0, sT1))
A("s_add_u32 s%d, s%d, %d" % (sT0, sT0, LSE_OFF[0] - O_OFF[0]))
A("v_add_u32 v25, s%d, v%d" % (sT0, vLSE))
A("v_xor_b32 v26, 16, v25")
A("v_add_u32 v26, -512, v26")
A("v_cmp_gt_u32 vcc, 8, v17")
A("s_nop 1")
A("v_cndmask_b32 v%d, v25, v%d, vcc" % (vLSE, vOLD))
A("v_cndmask_b32 v%d, v26, v%d, vcc" % (vLS2, vOLD))
A("v_lshlrev_b32 v%d, 1, v%d" % (vPST, vLANE))
A("v_lshlrev_b32 v25, 3, v16")
A("v_lshl_add_u32 v%d, v19, 4, v25" % vX1S)
A("s_mul_i32 s%d, s%d, %d" % (sT0, sW, RBS))
A("s_add_u32 s%d, s%d, %d" % (sT0, sT0, L_RB))
A("v_mul_u32_u24 v25, 528, v18")
A("v_lshl_add_u32 v25, v16, 4, v25")
A("v_lshrrev_b32 v26, 2, v17")
A("v_lshl_add_u32 v25, v26, 7, v25")
A("v_add_u32 v%d, s%d, v25" % (vRBW, sT0))
A("s_mul_i32 s%d, s%d, 528" % (sT0, sW))
A("s_add_u32 s%d, s%d, %d" % (sT0, sT0, L_RB))
A("v_lshlrev_b32 v25, 3, v%d" % vLANE)
A("v_add_u32 v%d, s%d, v25" % (vRBR, sT0))
A("s_lshl_b32 s%d, s%d, 3" % (sT0, sW))
A("s_add_u32 s%d, s%d, %d" % (sT0, sT0, L_ML))
A("v_lshlrev_b32 v25, 5, v18")
A("v_add_u32 v%d, s%d, v25" % (vMLW, sT0))
A("s_lshl_b32 s%d, s%d, 5" % (sT0, sW))
A("s_add_u32 s%d, s%d, %d" % (sT0, sT0, L_ML))
A("v_mov_b32 v%d, s%d" % (vMLR, sT0))
A("v_mov_b32 v25, 0x3f80")
A("v_mov_b32 v26, 0x3f800000")
for r in range(4):
    A("v_cmp_eq_u32 vcc, %d, v17" % (2 * r))
    A("v_cmp_eq_u32 %s, %d, v17" % (sr(sH, 2), 2 * r + 1))
    A("s_nop 0")
    A("v_cndmask_b32 v%d, 0, v25, vcc" % (SEL + r))
    A("v_cndmask_b32 v%d, v%d, v26, %s" % (SEL + r, SEL + r, sr(sH, 2)))
for i in range(16): A("v_mov_b32 v%d, 0" % (PM + i))
for p in range(4):
    A("s_mov_b32 s%d, %s" % (sPM + 2 * p, hx(0x000f000f << (4 * p))))
    A("s_mov_b32 s%d, %s" % (sPM + 2 * p + 1, hx(0x000f000f << (4 * p))))
soff(sOS, [(sW, 13), (sA, 11), (sC, 4), (sJ, 17)], O_OFF[0])
soff(sOL, [(sA, 13), (sW, 11), (sJ, 17)], O_OFF[0])
A("s_add_u32 s%d, s%d, %s" % (sQL, sOL, hx(Q0_OFF - O_OFF[0])))
soff(sLS, [(sW, 7), (sA, 5), (sC, 2), (sJ, 17)], LSE_OFF[0])
soff(sPS, [(sW, 15), (sC, 12), (sJ, 9), (sA, 7)], PB)
A("s_mov_b32 s%d, %s" % (sSC, hx(f2u(128 ** -0.5 * math.log2(math.e)))))
A("s_getreg_b32 s%d, hwreg(HW_REG_XCC_ID, 0, 3)" % sXCC)
A("v_xor_b32 v24, v16, v17")
A("v_lshlrev_b32 v24, 4, v24")
A("v_lshl_add_u32 v24, v17, 8, v24")
A("s_lshl_b32 s%d, s%d, 13" % (sT1, sW))
A("s_add_u32 s%d, s%d, %d" % (sT2, sT1, L_K))
for t in range(4): A("v_xor_b32 v%d, %d, v24" % (18 + t, 64 * t))
for t in range(4): A("v_add_u32 v%d, s%d, v%d" % (18 + t, sT2, 18 + t))
VA = W + 32
A("v_lshrrev_b32 v24, 2, v%d" % vLANE)
A("v_and_b32 v25, 7, v24")
A("v_lshlrev_b32 v25, 1, v25")
A("v_bfe_u32 v26, v%d, 1, 1" % vLANE)
A("v_xor_b32 v25, v25, v26")
A("v_lshlrev_b32 v25, 4, v25")
A("v_lshl_add_u32 v25, v24, 8, v25")
A("v_and_b32 v26, 1, v%d" % vLANE)
A("v_lshl_add_u32 v25, v26, 3, v25")
A("s_add_u32 s%d, s%d, %d" % (sT2, sT1, L_V))
for t in range(8): A("v_xor_b32 v%d, %d, v25" % (VA + t, 32 * t))
for t in range(8): A("v_add_u32 v%d, s%d, v%d" % (VA + t, sT2, VA + t))
soff(sT4, [(sJ, 19), (sA, 17), (sW, 15), (sC, 7)], 0)
A("s_lshl_b32 s%d, s%d, 12" % (sT5, sW))
A("s_add_u32 s%d, s%d, %d" % (sT5, sT5, L_WO))
soff(sT3, [(sA, 10), (sC, 7)], 0)
A("v_lshlrev_b32 v24, 5, v%d" % vLANE)
A("s_lshl_b32 s%d, s%d, 10" % (sT2, sW))
A("s_add_u32 s%d, s%d, %d" % (sT2, sT2, L_QF))
A("v_add_u32 v25, s%d, v%d" % (sT2, vL16))
A("v_add_u32 v26, %d, v%d" % (L_QF, vL16))
STAMP(12)
if DIAG: A("v_mov_b32 v31, v30")
QP = W
def q0_issue(QP=QP):
    A("buffer_load_dwordx4 %s, v24, %s, s%d offen sc1" % (vr(QP, 4), sr(sWS, 4), sQL))
    A("buffer_load_dwordx4 %s, v24, %s, s%d offen offset:16 sc1" % (vr(QP + 4, 4), sr(sWS, 4), sQL))
def flag_block():
    if True:
        A("s_cmp_lg_u32 s%d, 0" % sW)
        A("s_cbranch_scc1 Lnoflag")
        C("every sentinel store of this workgroup is acknowledged: announce it")
        lds_spin(8, 4, vT)
        A("v_mov_b32 v16, s%d" % sTG1)
        A("v_mov_b32 v17, s%d" % sXCC)
        soff(sT1, [(2, 4)], FB)
        A("v_mov_b32 v21, 0")
        A("s_mov_b64 exec, 1")
        A("buffer_store_dwordx2 v[16:17], v21, %s, s%d offen sc1" % (sr(sWS, 4), sT1))
        A("s_mov_b64 exec, -1")
        LB("Lnoflag")
C("coefficients landed -> tell the helpers")
young = D1 - DC + 1
told = False
if ECO:
    A("s_waitcnt vmcnt(%d)" % young); lds_arrive(24, vT); told = True
A("s_mov_b32 s%d, 0" % sY)
for i in range(D1, 16):
    dp = DEPTH if i < TAILI else TAILD
    extra = 1 if i == 16 - QV else 0
    if ADP and told:
        C("stay shallow until the helpers have issued their q stores")
        A("s_cmp_lg_u32 s%d, 0" % sY)
        A("s_cbranch_scc1 Ldp%d" % i)
        A("ds_read_b32 v%d, v%d offset:28" % (vT, vFL))
        A("s_waitcnt lgkmcnt(0)")
        A("v_readfirstlane_b32 s%d, v%d" % (sT1, vT))
        A("s_cmp_ge_u32 s%d, 4" % sT1)
        A("s_cselect_b32 s%d, 1, 0" % sY)
        A("s_cbranch_scc1 Ldp%d" % i)
        A("s_waitcnt vmcnt(%d)" % (dp - 1 - 2 * extra))
        LB("Ldp%d" % i)
        A("s_waitcnt vmcnt(%d)" % (ADP - 1 - 2 * extra))
        if extra: q0_issue(); young += 2
    else:
        if extra:
            A("s_waitcnt vmcnt(%d)" % (dp - 2)); q0_issue(); young += 2
            if DIAG:
                A("s_memrealtime s[42:43]"); A("s_waitcnt lgkmcnt(0)"); A("v_writelane_b32 v31, s42, 9")
        if QV2 and i == 16 - QV2:
            A("s_waitcnt vmcnt(%d)" % (dp - 2)); q0_issue(XR); young += 2
        A("s_waitcnt vmcnt(%d)" % (dp - 1))
    if not told and young >= dp - 1:
        lds_arrive(24, vT); told = True
    kv_issue(i); young += 1
assert told
q0_issue(QP + 8)
C("everything older than the V loads is complete: K, late sentinels")
A("s_waitcnt vmcnt(%d)" % (14 if QV2 else 12))
lds_arrive(8, vT)
A("s_waitcnt lgkmcnt(0)")
tags()
A("s_or_b32 s%d, s%d, s%d" % (sXCC, sXCC, sTG2))
STAMP(1)
for t in range(4):
    for T in range(2):
        A("ds_read_b128 %s, v%d offset:%d" % (vr(KF + 16 * T + 4 * t, 4), 18 + t, 4096 * T))
flag_block()
def wait_w0(n):
    uid[0] += 1
    A("s_cmp_eq_u32 s%d, 0" % sW)
    A("s_cbranch_scc1 Lww%d" % uid[0])
    A("s_waitcnt vmcnt(%d)" % n)
    LB("Lww%d" % uid[0])
    A("s_waitcnt vmcnt(%d)" % (n + 1))
wait_w0(QV + 2 + (2 if QV2 else 0))
STAMP(2)
A("s_setprio 2")
A("s_mov_b32 s%d, %s" % (sCNT, hx(SPIN)))
A("s_mov_b32 s%d, 0" % sY)
A("s_mov_b32 s%d, 0" % sIT)
LB("Lmq")
A("v_and_b32 v16, -8, v%d" % (QP + 3))
A("v_and_b32 v17, -8, v%d" % (QP + 7))
A("v_cmp_ne_u32 vcc, s%d, v%d" % (sTG1, QP + 2))
A("v_cmp_ne_u32 %s, s%d, v%d" % (sr(sRET, 2), sTG1, QP + 6))
A("s_or_b64 vcc, vcc, %s" % sr(sRET, 2))
A("v_cmp_ne_u32 %s, s%d, v16" % (sr(sRET, 2), sTG2))
A("s_or_b64 vcc, vcc, %s" % sr(sRET, 2))
A("v_cmp_ne_u32 %s, s%d, v17" % (sr(sRET, 2), sTG2))
A("s_or_b64 vcc, vcc, %s" % sr(sRET, 2))
if not int(OPT.get("nochk", 0)): A("s_cbranch_vccnz Lmqr")
LB("Lmqd")
if DIAG:
    A("s_sub_u32 s%d, s%d, s%d" % (sT0, sCNT, sY)); A("v_writelane_b32 v31, s%d, 0" % sT0)
Ls = L; L = []
L.append(".p2align 6"); LB("Lst_mq"); A("s_setpc_b64 %s" % sr(sRET, 2))
LB("Lmqr")
A("s_cmp_lg_u32 s%d, 0" % sY)
A("s_cbranch_scc1 Lmqr2")
if QV2:
    A("s_cmp_lg_u32 s%d, 0" % sIT)
    A("s_cbranch_scc1 Lmqr1")
    A("s_mov_b32 s%d, 1" % sIT)
    wait_w0(QV2 + 2)
    for k in range(8): A("v_mov_b32 v%d, v%d" % (QP + k, XR + k))
    A("s_branch Lmq")
    LB("Lmqr1")
C("first look failed: take the second one (V has landed with it: request its fragments now)")
A("s_waitcnt vmcnt(0)")
A("s_mov_b32 s%d, 1" % sY)
for k in range(8): A("v_mov_b32 v%d, v%d" % (QP + k, QP + 8 + k))
if not VLATE:
    for t in range(8):
        for hf in range(2):
            A("ds_read_b64_tr_b16 %s, v%d offset:%d" % (vr(VF + 4 * t + 2 * hf, 2), VA + t, 4096 * hf))
A("s_branch Lmq")
LB("Lmqr2")
C("still not there: poll the plain copy a few times, then both copies in turn")
A("s_cmp_le_u32 s%d, %s" % (sCNT, hx(SPIN - 6)))
A("s_cselect_b32 s%d, %s, 0" % (sT0, hx(QB_DELTA)))
A("s_xor_b32 s%d, s%d, s%d" % (sQL, sQL, sT0))
q0_issue()
A("s_waitcnt vmcnt(0)")
A("s_sub_u32 s%d, s%d, 1" % (sCNT, sCNT))
A("s_cbranch_scc0 Lmq")
A("s_branch Lmqd")
ool.append(L); L = Ls
A("v_cmp_ne_u32 vcc, s%d, v%d" % (sXCC, QP + 3))
A("v_mov_b32 v%d, v%d" % (QP + 2, QP + 4))
A("v_mov_b32 v%d, v%d" % (QP + 3, QP + 5))
A("ds_write_b128 v25, %s" % vr(QP, 4))
A("s_cmp_eq_u64 vcc, 0")
A("s_cselect_b32 s%d, 1, 0x101" % sT0)
A("v_mov_b32 v16, s%d" % sT0)
A("s_waitcnt lgkmcnt(0)")
lds_arrive(4, 16, None)
if VLATE:
    A("s_cmp_eq_u32 s%d, 0" % sY)
    A("s_cbranch_scc1 Lnvf")
    for t in range(8):
        for hf in range(2):
            A("ds_read_b64_tr_b16 %s, v%d offset:%d" % (vr(VF + 4 * t + 2 * hf, 2), VA + t, 4096 * hf))
    LB("Lnvf")
STAMP(15)
A("buffer_load_dwordx2 %s, v%d, %s, s%d offen" % (vr(RES + 2, 2), vX1S, sr(sX, 4), sT3))
FLG = W + 44
soff(sIT, [(sW, 10)], FB)
soff(sQL, [(sA, 12), (sJ, 17)], Q1_OFF)
for k in range(4):
    A("s_add_u32 s%d, s%d, %d" % (sT0, sC, k))
    A("s_and_b32 s%d, s%d, 3" % (sT0, sT0))
    A("s_lshl_b32 s%d, s%d, 10" % (sKO + k, sT0))
A("s_and_b32 s%d, s%d, 1" % (sT0, sC))
A("s_lshl_b32 s%d, s%d, 6" % (sT0, sT0))
A("v_xor_b32 v22, s%d, v22" % sT0); A("v_xor_b32 v23, s%d, v23" % sT0)
A("s_lshl_b32 s%d, s%d, 2" % (sT3, sM))
A("s_add_u32 s%d, s%d, s%d" % (sT3, sT3, sW))
A("s_mul_i32 s%d, s%d, 768" % (sT3, sT3))
A("s_add_u32 s%d, s%d, s%d" % (sT3, sT3, sGR))
A("v_lshlrev_b32 v21, 7, v%d" % vLANE)
lds_spin(4, 4, vT, mask=0xff)
A("s_cmp_lt_u32 s%d, 256" % sT1)
A("s_cselect_b32 s%d, %d, 0" % (sFAST, int(OPT.get("fast", 1))))
QF = W + 16
for t in range(4):
    A("ds_read_b128 %s, v26 offset:%d" % (vr(QF + 4 * t, 4), 1024 * t))
S = W
qk = []
for t in range(4):
    for T in range(2):
        qk.append(mf(S + 4 * T, KF + 16 * T + 4 * t, QF + 4 * t, None if t == 0 else S + 4 * T))
for t in range(4):
    A("s_waitcnt lgkmcnt(%d)" % (3 - t))
    A(qk[2 * t]); A(qk[2 * t + 1])
def wo_issue():
    C("every wave holds its K fragments: the wo tile may land in the K area")
    for k in range(4):
        A("s_add_u32 m0, s%d, s%d" % (sT5, sKO + k))
        A("s_lshl3_add_u32 s%d, s%d, s%d" % (sT0, sKO + k, sT4))
        A("buffer_load_dwordx4 v%d, %s, s%d offen nt lds" % (22 + (k & 1), sr(sWO, 4), sT0))
if WOP == 0: wo_issue()
if PRET:
    C("bring the (cleared) group mailbox lines into L2")
    A("s_mov_b64 exec, 63")
    A("buffer_load_dword v%d, v21, %s, s%d offen sc1" % (W + 40, sr(sWS, 4), sT3))
    A("s_mov_b64 exec, -1")
STAMP(3)
A("s_branch Lk_go")

LB("Llnq")
C("LayerNorm of the row held in XR, then q partial = xn @ wq tile")
X = W
row_stats(XR, vT, X)
A("v_add_f32 v%d, %s, v%d" % (vT + 1, EPS, vT + 1))
A("v_rsq_f32 v%d, v%d" % (vT + 2, vT + 1))
A("s_cmp_eq_u32 s%d, 0" % sLAY)
A("v_mul_f32 v%d, v%d, v%d" % (vT + 3, vT, vT + 2))
for i in range(4):
    A("v_pk_fma_f32 %s, %s, %s, %s op_sel:[0,0,1] op_sel_hi:[1,0,1] neg_lo:[0,0,1] neg_hi:[0,0,1]" % (vr(X + 2 * i, 2), vr(X + 2 * i, 2), vr(vT + 2, 2), vr(vT + 2, 2)))
for i in range(4):
    A("v_cvt_pk_bf16_f32 v%d, v%d, v%d" % (X + 8 + i, X + 2 * i, X + 2 * i + 1))
A("ds_write_b128 v%d, %s" % (vXNW, vr(X + 8, 4)))
A("s_cbranch_scc1 Lq_first")
A("s_waitcnt lgkmcnt(0)")
A("s_barrier")
LB("Lq_go")
BF = W + 16
for t in range(4):
    A("ds_read_b128 %s, v%d offset:%d" % (vr(BF + 4 * t, 4), vXNR, 64 * t))
for t in range(4):
    A("s_waitcnt lgkmcnt(%d)" % (3 - t))
    mfma(W, WQF + 4 * t, BF + 4 * t, None if t == 0 else W)
A("s_cmp_eq_u32 s%d, 0" % sLAY)
A("s_mov_b64 exec, %s" % sr(sMSK, 2))
NOP(6)
A("v_cvt_pk_bf16_f32 v%d, v%d, v%d" % (W + 4, W, W + 1))
A("v_cvt_pk_bf16_f32 v%d, v%d, v%d" % (W + 5, W + 2, W + 3))
A("s_cbranch_scc1 Lh_qst")
fastcmp()
store_local("buffer_store_dwordx2", vr(W + 4, 2), vQST, sQS)
A("s_mov_b64 exec, -1")
A("ds_write_b128 v%d, %s offset:%d" % (vXNW, vr(XR, 4), L_X2 - L_XN))
A("s_mov_b32 s%d, 0" % sY)
for s, d in [(sOL, O_OFF[1] - O_OFF[0]), (sOS, O_OFF[1] - O_OFF[0]), (sLS, LSE_OFF[1] - LSE_OFF[0]), (sPS, P_L)]:
    A("s_add_u32 s%d, s%d, %d" % (s, s, d))
STAMP(2)

C("attention over this workgroup's 128 keys")
if QS:
    C("each wave fetches one k-step of q and shares it through LDS")
    A("s_lshl_b32 s%d, s%d, 10" % (sT3, sW))
    A("s_add_u32 s%d, s%d, s%d" % (sT4, sQL, sT3))
    A("s_add_u32 s%d, s%d, %d" % (sT3, sT3, L_RB + 12288))
    A("v_add_u32 v25, s%d, v%d" % (sT3, vL16))
    A("v_add_u32 v26, %d, v%d" % (L_RB + 12288, vL16))
    ppoll(lambda k: A("buffer_load_dwordx4 %s, v%d, %s, s%d offen sc1" % (vr(W + 32 + 4 * k, 4), vL16, sr(sWS, 4), sT4)),
          lambda k: range(W + 32 + 4 * k, W + 36 + 4 * k), 1, vT, lambda k: ["ds_write_b128 v25, %s" % vr(W + 32 + 4 * k, 4)], pre=QPRE, gap=QGAP, tag=0)
    A("s_waitcnt lgkmcnt(0)")
    A("s_barrier")
    for t in range(4):
        A("ds_read_b128 %s, v26 offset:%d" % (vr(QF + 4 * t, 4), 1024 * t))
    for t in range(4):
        A("s_waitcnt lgkmcnt(%d)" % (3 - t))
        A(qk[2 * t]); A(qk[2 * t + 1])
    touch_stub("k")
else:
    def iq(k):
        for t in range(4):
            A("buffer_load_dwordx4 %s, v%d, %s, s%d offen offset:%d sc1" % (vr(QF + 16 * k + 4 * t, 4), vL16, sr(sWS, 4), sQL, 1024 * t))
    def qks(k):
        return [mf(S + 4 * T, KF + 16 * T + 4 * t, QF + 16 * k + 4 * t, None if t == 0 else S + 4 * T) for t in range(4) for T in range(2)]
    ppoll(iq, lambda k: range(QF + 16 * k, QF + 16 * k + 16), 4, vT, qks, pre=QPRE, gap=QGAP, tag=0, stub="k", per_load=lambda k, i: qks(k)[2 * i:2 * i + 2])
STAMP(3)
LB("Lk_go")
NOP(5)
for ctl in ["row_ror:4", "row_ror:8"]:
    for i in range(8):
        A("v_add_f32_dpp v%d, v%d, v%d %s row_mask:0xf bank_mask:0xf" % (S + i, S + i, S + i, ctl))
A("v_max3_f32 v%d, v%d, v%d, v%d" % (vT, S, S + 1, S + 2))
A("v_max3_f32 v%d, v%d, v%d, v%d" % (vT + 1, S + 3, S + 4, S + 5))
A("v_max3_f32 v%d, v%d, v%d, v%d" % (vT, vT, S + 6, S + 7))
A("v_max_f32 v%d, v%d, v%d" % (vT, vT, vT + 1))
A("v_mov_b32 v%d, v%d" % (vT + 1, vT))
A("s_nop 1")
A("v_permlane16_swap_b32 v%d, v%d" % (vT, vT + 1))
A("v_max_f32 v%d, v%d, v%d" % (vT, vT, vT + 1))
A("v_mov_b32 v%d, v%d" % (vT + 1, vT))
A("s_nop 1")
A("v_permlane32_swap_b32 v%d, v%d" % (vT, vT + 1))
A("v_max_f32 v%d, v%d, v%d" % (vT, vT, vT + 1))
A("v_mul_f32 v%d, s%d, v%d" % (vT + 2, sSC, vT))
for i in range(8):
    A("v_fma_f32 v%d, v%d, s%d, -v%d" % (S + i, S + i, sSC, vT + 2))
for i in range(8):
    A("v_exp_f32 v%d, v%d" % (S + i, S + i))
for p in range(4):
    A("s_mov_b64 exec, %s" % sr(sPM + 2 * p, 2))
    for i in range(4):
        A("v_cvt_pk_bf16_f32 v%d, v%d, v%d" % (PM + 4 * p + i, S + 2 * i, S + 2 * i + 1))
A("s_mov_b64 exec, -1")
STAMP(4)
A("s_cmp_lg_u32 s%d, 0" % sLAY)
A("s_cbranch_scc1 Lv_go")
wait_w0((5 if WOP == 0 else 1) + PRET)
if WOP == 1: wo_issue()
A("buffer_load_dwordx4 %s, v%d, %s, s%d offen sc1" % (vr(FLG, 4), vL16, sr(sWS, 4), sIT))
STAMP(6)
A("s_cmp_lg_u32 s%d, 0" % sY)
A("s_cbranch_scc1 Lv_have")
for t in range(8):
    for hf in range(2):
        A("ds_read_b64_tr_b16 %s, v%d offset:%d" % (vr(VF + 4 * t + 2 * hf, 2), VA + t, 4096 * hf))
A("s_waitcnt lgkmcnt(0)")
LB("Lv_have")
if TOT:
    A("s_memrealtime s[42:43]"); A("s_waitcnt lgkmcnt(0)"); A("s_mov_b32 s97, s42")
A("s_cmp_lg_u32 s%d, 0" % sLAY)
LB("Lv_go")
OA = W + 8
mfma(W + 16, ONES, PM, None)
for p in range(4):
    for T in range(2):
        mfma(OA + 4 * T, VF + 4 * (2 * p + T), PM + 4 * p, None if p == 0 else OA + 4 * T)
A("s_mov_b64 exec, %s" % sr(sMSK, 2))
A("v_mov_b32 v%d, v%d" % (vT + 3, W + 16))
A("ds_write_b64 v%d, %s" % (vMLW, vr(vT + 2, 2)))
A("s_mov_b64 exec, -1")
NOP(3)
A("ds_write_b128 v%d, %s" % (vRBW, vr(OA, 4)))
A("ds_write_b128 v%d, %s offset:64" % (vRBW, vr(OA + 4, 4)))
A("s_waitcnt lgkmcnt(0)")
A("s_cbranch_scc1 Lrb_bar")
lds_arrive(12, vT + 4)
if WOP == 2: wo_issue()
lds_spin(12, 4, vT + 4)
A("s_branch Lrb_go")
LB("Lrb_bar")
A("s_barrier")
LB("Lrb_go")
A("ds_read_b128 %s, v%d" % (vr(W, 4), vMLR))
A("ds_read_b128 %s, v%d offset:16" % (vr(W + 4, 4), vMLR))
for w in range(4):
    A("ds_read_b64 %s, v%d offset:%d" % (vr(W + 8 + 2 * w, 2), vRBR, RBS * w))
A("v_mov_b32 v%d, 0" % (vT + 4))
fastcmp()
A("s_waitcnt lgkmcnt(4)")
A("v_max3_f32 v%d, v%d, v%d, v%d" % (vT, W, W + 2, W + 4))
A("v_max_f32 v%d, v%d, v%d" % (vT, vT, W + 6))
for w in range(4): A("v_sub_f32 v%d, v%d, v%d" % (W + 2 * w, W + 2 * w, vT))
for w in range(4): A("v_exp_f32 v%d, v%d" % (W + 2 * w, W + 2 * w))
A("v_mul_f32 v%d, v%d, v%d" % (vT + 1, W, W + 1))
for w in range(1, 4): A("v_fmac_f32 v%d, v%d, v%d" % (vT + 1, W + 2 * w, W + 2 * w + 1))
A("s_waitcnt lgkmcnt(0)")
A("v_pk_mul_f32 %s, %s, %s op_sel_hi:[1,0]" % (vr(W + 8, 2), vr(W + 8, 2), vr(W, 2)))
A("v_rcp_f32 v%d, v%d" % (vT + 2, vT + 1))
A("v_pk_fma_f32 %s, %s, %s, %s op_sel_hi:[1,0,1]" % (vr(W + 8, 2), vr(W + 10, 2), vr(W + 2, 2), vr(W + 8, 2)))
A("v_log_f32 v%d, v%d" % (vT + 5, vT + 1))
for w in range(2, 4):
    A("v_pk_fma_f32 %s, %s, %s, %s op_sel_hi:[1,0,1]" % (vr(W + 8, 2), vr(W + 8 + 2 * w, 2), vr(W + 2 * w, 2), vr(W + 8, 2)))
A("v_pk_mul_f32 %s, %s, %s op_sel_hi:[1,0]" % (vr(W + 8, 2), vr(W + 8, 2), vr(vT + 2, 2)))
A("v_add_f32 v%d, v%d, v%d" % (vT + 5, vT + 5, vT))
A("v_cvt_pk_bf16_f32 v%d, v%d, v%d" % (W + 8, W + 8, W + 9))
store_local("buffer_store_dword", "v%d" % (W + 8), vOST, sOS)
A("s_mov_b64 exec, 1")
store_local("buffer_store_dword", "v%d" % (vT + 5), vT + 4, sLS)
A("s_mov_b64 exec, -1")
STAMP(5)

C("wo phase: wave = batch, rows = key splits")
OF = W; LS = W + 32; DA = WQF
assert LSE_OFF[1] - O_OFF[1] == LSE_OFF[0] - O_OFF[0]
def io(k):
    for t in range(4):
        A("buffer_load_dwordx4 %s, v%d, %s, s%d offen offset:%d sc1" % (vr(OF + 16 * k + 4 * t, 4), [vLSE, vLS2, vOLD, vOLD][t], sr(sWS, 4), sOL, 512 * t))
A("s_cmp_lg_u32 s%d, 0" % sLAY)
A("s_cbranch_scc1 Lo_go")
C("first layer: wo tile landed -> fragments; every workgroup has announced its clears")
if WOP == 3: wo_issue()
A("s_waitcnt vmcnt(%d)" % (2 if WOP < 3 else 0))
STAMP(13)
A("s_mov_b32 s%d, %s" % (sT4, hx(SPIN)))
LB("Lap")
A("v_and_b32 v24, -8, v%d" % (FLG + 1))
A("v_cmp_ne_u32 vcc, s%d, v%d" % (sTG1, FLG))
A("v_cmp_ne_u32 %s, s%d, v24" % (sr(sH, 2), sTG2))
A("s_or_b64 vcc, vcc, %s" % sr(sH, 2))
A("s_cbranch_vccnz Lar")
LB("Lad")
lds_arrive(16, 24)
for i in range(2):
    A("v_lshlrev_b32 v%d, 16, v%d" % (W + 40 + 2 * i, RES + 2 + i))
    A("v_and_b32 v%d, 0xffff0000, v%d" % (W + 41 + 2 * i, RES + 2 + i))
for i in range(4): A("v_mov_b32 v%d, v%d" % (RES + i, W + 40 + i))
for ct in range(4): A("v_xor_b32 v%d, %d, v%d" % (W + 40 + ct, 32 * ct, vWT))
for ct in range(4): A("v_add_u32 v%d, %d, v%d" % (W + 40 + ct, L_WO, W + 40 + ct))
lds_spin(16, 4, 24)
STAMP(14)
A("s_mov_b32 s%d, 1" % sY)
LB("Lo_go")
A("s_mov_b32 s%d, 0x55555555" % sT4)
A("s_mov_b32 s%d, 0x55555555" % sT5)
def pre_o():
    A("s_cmp_eq_u32 s%d, 0" % sY)
    A("s_cbranch_scc1 Lo_nof")
    A("s_mov_b32 s%d, 0" % sY)
    for t in range(4):
        for ct in range(4):
            for hf in range(2):
                A("ds_read_b64_tr_b16 %s, v%d offset:%d" % (vr(WOF + 16 * ct + 4 * t + 2 * hf, 2), W + 40 + ct, 4096 * t + 512 * hf))
    LB("Lo_nof")
ool.append(["Lar:", "    s_lshl_b32 s%d, s%d, 10" % (sT5, sW), "    s_add_u32 s%d, s%d, %s" % (sT5, sT5, hx(FB)),
            "    buffer_load_dwordx4 %s, v%d, %s, s%d offen sc1" % (vr(FLG, 4), vL16, sr(sWS, 4), sT5),
            "    s_waitcnt vmcnt(0)", "    s_sub_u32 s%d, s%d, 1" % (sT4, sT4), "    s_cbranch_scc0 Lap", "    s_branch Lad"])
C("softmax over the 8 key splits: lanes n>=8 hold own lse in OF[0:3], the other four in OF[4:7]")
vU = vT + 2
def wo_all(k, t):
    o = OF + 16 * k
    m = [mf(DA + 4 * ct, o + 4 * t, WOF + 16 * ct + 4 * t, None if t == 0 else DA + 4 * ct) for ct in range(4)]
    va = ["v_max3_f32 v%d, v%d, v%d, v%d" % (vU, o, o + 1, o + 2), "v_max3_f32 v%d, v%d, v%d, v%d" % (vU + 1, o + 3, o + 4, o + 5),
          "v_max3_f32 v%d, v%d, v%d, v%d" % (vU, vU, o + 6, o + 7), "v_max_f32 v%d, v%d, v%d" % (vU, vU, vU + 1)]
    va += ["v_sub_f32 v%d, v%d, v%d" % (LS + i, o + i, vU) for i in range(4)]
    va += ["v_exp_f32 v%d, v%d" % (LS + i, LS + i) for i in range(4)]
    vb = ["v_mov_b32_dpp v%d, v%d row_ror:8 row_mask:0xf bank_mask:0x3" % (LS + i, LS + i) for i in range(4)]
    vb += ["v_add_f32 v%d, v%d, v%d" % (vU, LS, LS + 1), "v_add_f32 v%d, v%d, v%d" % (vU + 1, LS + 2, LS + 3),
           "v_add_f32 v%d, v%d, v%d" % (vU, vU, vU + 1), "v_mov_b32 v%d, v%d" % (vU + 1, vU)]
    f = {0: [], 1: va[:4], 2: va[4:], 3: vb}[t]
    out = ["s_waitcnt lgkmcnt(%d)" % [15, 15, 8, 0][t]] if t != 1 else []
    for x in m:
        out.append(x)
        for _ in range(2):
            if f: out.append(f.pop(0))
    return out
assert PROG and OGAP < 0
ppoll(io, lambda k: range(OF + 16 * k, OF + 16 * k + 16), 4, vT, None, pre=OPRE, gap=OGAP, mid=pre_o, tag=1, per_load=wo_all)
STAMP(7)
A("v_permlane16_swap_b32 v%d, v%d" % (vU, vU + 1))
A("v_mul_f32 v%d, v%d, v%d" % (DA, DA, LS))
A("v_add_f32 v%d, v%d, v%d" % (vT, vU, vU + 1))
A("v_mul_f32 v%d, v%d, v%d" % (DA + 4, DA + 4, LS))
A("v_rcp_f32 v%d, v%d" % (vT, vT))
A("v_mul_f32 v%d, v%d, v%d" % (DA + 8, DA + 8, LS))
for i in range(1, 4):
    for ct in range(3):
        A("v_fmac_f32 v%d, v%d, v%d" % (DA + 4 * ct, DA + 4 * ct + i, LS + i))
    if i == 1: A("v_mul_f32 v%d, v%d, v%d" % (DA + 12, DA + 12, LS))
for i in range(1, 4): A("v_fmac_f32 v%d, v%d, v%d" % (DA + 12, DA + 12 + i, LS + i))
A("v_permlane16_swap_b32 v%d, v%d" % (DA, DA + 4))
A("s_nop 0")
A("v_permlane16_swap_b32 v%d, v%d" % (DA + 8, DA + 12))
A("v_add_f32 v%d, v%d, v%d" % (DA, DA, DA + 4))
A("v_add_f32 v%d, v%d, v%d" % (DA + 8, DA + 8, DA + 12))
A("s_nop 1")
A("v_permlane32_swap_b32 v%d, v%d" % (DA, DA + 8))
A("v_mul_f32 v%d, v%d, v%d" % (DA, DA, vT))
A("s_cmp_lg_u32 s%d, 0" % sLAY)
A("s_nop 0")
A("v_mov_b32_dpp v%d, v%d quad_perm:[1,0,3,2] row_mask:0xf bank_mask:0xf" % (DA + 1, DA))
A("s_mov_b64 exec, %s" % sr(sT4, 2))
A("v_cvt_pk_bf16_f32 v%d, v%d, v%d" % (DA, DA, DA + 1))
A("buffer_store_dword v%d, v%d, %s, s%d offen sc1" % (DA, vPST, sr(sWS, 4), sPS))
A("s_mov_b64 exec, -1")
STAMP(8)
A("s_cbranch_scc1 Lfinal")

A("s_cmp_lg_u32 s%d, 0" % sW)
A("s_cbranch_scc1 Ltab")
C("stage 1 (wave 0): reduce 32 head partials of 64 outputs, add residual, publish x1 slice")
soff(sT1, [(sA, 15), (sC, 12)], PB)
soff(sT2, [(sA, 10), (sC, 7), (sJ, 17)], X1_OFF)
A("s_mov_b32 s%d, 0x00ff00ff" % sT4)
A("s_mov_b32 s%d, 0" % sT5)
def ip(k):
    for i in range(4):
        A("buffer_load_dwordx4 %s, v%d, %s, s%d offen offset:%d sc1" % (vr(W + 20 * k + 4 * i, 4), vL16, sr(sWS, 4), sT1, 1024 * i))
if GW: A("s_waitcnt vmcnt(0)")
ppoll(ip, lambda k: range(W + 20 * k, W + 20 * k + 16), 4, vT, lambda k: [mf(W + 16, SEL, W + 20 * k + 4 * i, None if i == 0 else W + 16) for i in range(4)], pre=GPRE, gap=GGAP, tag=2,
      per_load=lambda k, i: [mf(W + 16, SEL, W + 20 * k + 4 * i, None if i == 0 else W + 16)])
STAMP(9)
fastcmp()
NOP(3)
for i in range(4):
    A("v_add_f32_dpp v%d, v%d, v%d row_ror:8 row_mask:0xf bank_mask:0xf" % (W + 16 + i, W + 16 + i, W + 16 + i))
A("s_mov_b64 exec, %s" % sr(sT4, 2))
A("v_pk_add_f32 %s, %s, %s" % (vr(W + 16, 2), vr(W + 16, 2), vr(RES, 2)))
A("v_pk_add_f32 %s, %s, %s" % (vr(W + 18, 2), vr(W + 18, 2), vr(RES + 2, 2)))
A("v_cvt_pk_bf16_f32 v%d, v%d, v%d" % (W + 16, W + 16, W + 17))
A("v_cvt_pk_bf16_f32 v%d, v%d, v%d" % (W + 17, W + 18, W + 19))
store_local("buffer_store_dwordx2", vr(W + 16, 2), vX1S, sT2)
A("s_mov_b64 exec, -1")
LB("Ltabdone")
soff(sT3, [(sW, 10), (sJ, 17)], X1_OFF)
def ix(k):
    A("buffer_load_dwordx4 %s, v%d, %s, s%d offen sc1" % (vr([XR, RES][k], 4), vL16, sr(sWS, 4), sT3))
wqf_reads()
ppoll(ix, lambda k: range([XR, RES][k], [XR, RES][k] + 4), 1, vT, lambda k: ["s_waitcnt lgkmcnt(0)", "v_readfirstlane_b32 s%d, v%d" % (sT1, vT + 2)],
      pre=XPRE, gap=XGAP, mid=lambda: A("ds_read_b32 v%d, v%d offset:20" % (vT + 2, vFL)), tag=3,
      fix=["v_mov_b32 v%d, v%d" % (XR + i, RES + i) for i in range(4)])
A("s_cmp_lt_u32 s%d, 3" % sT1)
A("s_cbranch_scc1 Ltw")
LB("Ltwd")
STAMP(10)

LB("Lmix")
C("x <- x + g(LN(LN(x))) ; g is tabulated for every bf16 input in range, evaluated directly otherwise")
X = W; HB = W + 8; RT = W + 12; AD = W + 16; Y = W + 24
row_stats(XR, vT, X)
A("v_add_f32 v%d, %s, v%d" % (vT + 2, EPS, vT + 1))
A("v_rsq_f32 v%d, v%d" % (vT + 2, vT + 2))
A("v_mov_b32 v%d, %s" % (vT + 4, hx(LO2 | (LO2 << 16))))
A("s_movk_i32 s%d, %d" % (sT5, NENT * 4))
A("v_mul_f32 v%d, v%d, v%d" % (vT + 1, vT + 1, vT + 2))
A("v_fmaak_f32 v%d, v%d, v%d, %s" % (vT + 1, vT + 1, vT + 2, EPS))
A("v_rsq_f32 v%d, v%d" % (vT + 1, vT + 1))
A("s_nop 0")
A("v_mul_f32 v%d, v%d, v%d" % (vT + 2, vT + 2, vT + 1))
A("v_mul_f32 v%d, v%d, v%d" % (vT + 3, vT, vT + 2))
for i in range(4):
    A("v_pk_fma_f32 %s, %s, %s, %s op_sel:[0,0,1] op_sel_hi:[1,0,1] neg_lo:[0,0,1] neg_hi:[0,0,1]" % (vr(AD + 2 * i, 2), vr(X + 2 * i, 2), vr(vT + 2, 2), vr(vT + 2, 2)))
for i in range(4):
    A("v_cvt_pk_bf16_f32 v%d, v%d, v%d" % (HB + i, AD + 2 * i, AD + 2 * i + 1))
for i in range(4):
    A("v_pk_lshlrev_b16 v%d, 1, v%d op_sel_hi:[0,1]" % (RT + i, HB + i))
    A("v_pk_lshrrev_b16 v%d, 15, v%d op_sel_hi:[0,1]" % (AD + i, HB + i))
for i in range(4):
    A("v_or_b32 v%d, v%d, v%d" % (RT + i, RT + i, AD + i))
for i in range(4):
    A("v_pk_sub_u16 v%d, v%d, v%d" % (RT + i, RT + i, vT + 4))
for i in range(4):
    A("v_lshlrev_b32_sdwa v%d, 2, v%d dst_sel:DWORD dst_unused:UNUSED_PAD src0_sel:DWORD src1_sel:WORD_0" % (AD + 2 * i, RT + i))
    A("v_lshlrev_b32_sdwa v%d, 2, v%d dst_sel:DWORD dst_unused:UNUSED_PAD src0_sel:DWORD src1_sel:WORD_1" % (AD + 2 * i + 1, RT + i))
    A("ds_read_b32 v%d, v%d offset:%d" % (Y + 2 * i, AD + 2 * i, L_TAB))
    A("ds_read_b32 v%d, v%d offset:%d" % (Y + 2 * i + 1, AD + 2 * i + 1, L_TAB))
A("v_max3_u32 v%d, v%d, v%d, v%d" % (vT, AD, AD + 1, AD + 2))
A("v_max3_u32 v%d, v%d, v%d, v%d" % (vT + 1, AD + 3, AD + 4, AD + 5))
A("v_max3_u32 v%d, v%d, v%d, v%d" % (vT, vT, AD + 6, AD + 7))
A("v_max_u32 v%d, v%d, v%d" % (vT, vT, vT + 1))
A("v_cmp_le_u32 %s, s%d, v%d" % (sr(sH, 2), sT5, vT))
A("s_waitcnt lgkmcnt(5)")
A("v_max3_u32 v%d, v%d, v%d, v%d" % (vT, Y, Y + 1, Y + 2))
A("s_waitcnt lgkmcnt(2)")
A("v_max3_u32 v%d, v%d, v%d, v%d" % (vT + 1, Y + 3, Y + 4, Y + 5))
A("s_waitcnt lgkmcnt(0)")
A("v_max3_u32 v%d, v%d, v%d, v%d" % (vT, vT, Y + 6, Y + 7))
A("v_max_u32 v%d, v%d, v%d" % (vT, vT, vT + 1))
A("v_cmp_eq_u32 vcc, -1, v%d" % vT)
LB("Lslowdone")
for i in range(4):
    A("v_pk_add_f32 %s, %s, %s" % (vr(vT + 2 + 2 * i, 2), vr(X + 2 * i, 2), vr(Y + 2 * i, 2)))
A("s_or_b64 vcc, vcc, %s" % sr(sH, 2))
A("s_cbranch_vccnz Lslow")
A("s_cmp_lg_u32 s%d, 0" % sLAY)
for i in range(4):
    A("v_cvt_pk_bf16_f32 v%d, v%d, v%d" % (XR + i, vT + 2 + 2 * i, vT + 3 + 2 * i))
STAMP(11)
A("s_cbranch_scc1 Lout")
A("s_mov_b32 s%d, 1" % sLAY)
if TOT: A("s_memrealtime s[100:101]")
if DIAG: A("v_mov_b32 v28, v30")
A("s_branch Llnq")

L.append(".p2align 6"); LB("Lst_fin"); A("s_setpc_b64 %s" % sr(sRET, 2)); stubs.append("fin")
LB("Lfinal")
A("s_cmp_ge_u32 s2, 4")
A("s_cbranch_scc1 Lepoch")
C("workgroup b: reduce the 32 head partials of row b, add x2, mixer, store")
soff(sT1, [(2, 15), (sW, 13)], PB + P_L)
A("s_add_u32 s%d, s%d, 4096" % (sT2, sT1))
A("s_mul_i32 s%d, s2, %d" % (sT0, XS))
A("s_lshl_b32 s%d, s%d, 8" % (sT3, sW))
A("s_add_u32 s%d, s%d, s%d" % (sT0, sT0, sT3))
A("s_add_u32 s%d, s%d, %d" % (sT0, sT0, L_X2))
A("v_add_u32 v%d, s%d, v%d" % (vT + 4, sT0, vX1S))
A("s_add_u32 s%d, s%d, %d" % (sT3, sT3, L_XN))
A("v_add_u32 v%d, s%d, v%d" % (vT + 5, sT3, vX1S))
A("ds_read_b64 %s, v%d" % (vr(PM, 2), vT + 4))
A("ds_read_b64 %s, v%d offset:128" % (vr(PM + 2, 2), vT + 4))
A("s_mov_b32 s%d, 0x00ff00ff" % sT4)
A("s_mov_b32 s%d, 0" % sT5)
if XENT:
    A("s_cmp_lg_u32 s%d, 3" % sW)
    A("s_cbranch_scc1 Lfn3")
    A("ds_read_b32 v%d, v%d offset:48" % (vT, vFL))
    A("s_waitcnt lgkmcnt(0)")
    A("v_readfirstlane_b32 s%d, v%d" % (sT0, vT))
    A("s_cmp_eq_u32 s%d, 0" % sT0)
    A("s_cbranch_scc1 Lfn3")
    A("s_mov_b32 s%d, %s" % (sCNT, hx(TB)))
    for i in range(XENT * 4 // 1024):
        A("buffer_load_dwordx4 %s, v%d, %s, s%d offen offset:%d sc1" % (vr(W + 4 * i, 4), vL16, sr(sWS, 4), sCNT, 1024 * i))
    A("v_add_u32 v%d, %d, v%d" % (vT + 6, L_TAB, vL16))
    A("s_waitcnt vmcnt(0)")
    for i in range(XENT * 4 // 1024):
        A("ds_write_b128 v%d, %s offset:%d" % (vT + 6, vr(W + 4 * i, 4), 1024 * i))
    LB("Lfn3")
A("s_waitcnt lgkmcnt(0)")
if GW: A("s_waitcnt vmcnt(0)")
for i in range(4):
    A("v_lshlrev_b32 v%d, 16, v%d" % (PM + 4 + 2 * i, PM + i))
    A("v_and_b32 v%d, 0xffff0000, v%d" % (PM + 5 + 2 * i, PM + i))
if "bias" in OPT:
    for i in range(8): A("v_add_f32 v%d, %s, v%d" % (PM + 4 + i, hx(f2u(float(OPT["bias"]))), PM + 4 + i))
FS = [KF, VF]
def ifin(k):
    for i in range(8):
        A("buffer_load_dwordx4 %s, v%d, %s, s%d offen offset:%d sc1" % (vr(FS[k] + 4 * i, 4), vL16, sr(sWS, 4), sT1 if i < 4 else sT2, 1024 * (i & 3)))
def fs(k):
    o = []
    for i in range(4):
        o.append(mf(W + 32, SEL, FS[k] + 4 * i, None if i == 0 else W + 32))
        o.append(mf(W + 36, SEL, FS[k] + 16 + 4 * i, None if i == 0 else W + 36))
    return o
ppoll(ifin, lambda k: range(FS[k], FS[k] + 32), 8, vT, fs, pre=GPRE, gap=GGAP, tag=2,
      per_load=lambda k, i: [mf(W + 32 + 4 * (i >> 2), SEL, FS[k] + 4 * i, None if (i & 3) == 0 else W + 32 + 4 * (i >> 2))])
STAMP(9)
NOP(2)
for i in range(8):
    A("v_add_f32_dpp v%d, v%d, v%d row_ror:8 row_mask:0xf bank_mask:0xf" % (W + 32 + i, W + 32 + i, W + 32 + i))
A("s_mov_b64 exec, %s" % sr(sT4, 2))
for i in range(4):
    A("v_pk_add_f32 %s, %s, %s" % (vr(W + 32 + 2 * i, 2), vr(W + 32 + 2 * i, 2), vr(PM + 4 + 2 * i, 2)))
for i in range(4):
    A("v_cvt_pk_bf16_f32 v%d, v%d, v%d" % (W + 32 + i, W + 32 + 2 * i, W + 33 + 2 * i))
A("ds_write_b64 v%d, %s" % (vT + 5, vr(W + 32, 2)))
A("ds_write_b64 v%d, %s offset:128" % (vT + 5, vr(W + 34, 2)))
A("s_mov_b64 exec, -1")
A("s_cmp_lg_u32 s%d, 0" % sW)
A("s_waitcnt lgkmcnt(0)")
A("s_barrier")
A("s_cbranch_scc1 Lfin_exit")
A("ds_read_b128 %s, v%d" % (vr(XR, 4), vXNW))
A("s_waitcnt lgkmcnt(0)")
STAMP(10)
A("s_branch Lmix")
L.append(".p2align 6"); LB("Lst_out"); A("s_setpc_b64 %s" % sr(sRET, 2)); stubs.append("out")
LB("Lout")
A("s_lshl_b32 s%d, s2, 10" % sT0)
A("buffer_store_dwordx4 %s, v%d, %s, s%d offen" % (vr(XR, 4), vL16, sr(sOUT, 4), sT0))
if DBL:
    A("s_cmp_lg_u32 s2, 0")
    A("s_cbranch_scc1 Lfin_exit")
if DBL:
    A("s_waitcnt vmcnt(0)")
    A("s_memrealtime s[10:11]")
    A("s_waitcnt lgkmcnt(0)")
    A("s_sub_u32 s12, s10, s98")
    if "pad" in OPT:
        A("s_mov_b32 s10, s98"); A("s_mov_b32 s12, %d" % (100 * int(OPT["pad"])))
    LB("Ldbl")
    A("s_memrealtime s[14:15]")
    A("s_waitcnt lgkmcnt(0)")
    A("s_sub_u32 s13, s14, s10")
    A("s_cmp_lt_u32 s13, s12")
    A("s_cbranch_scc1 Ldbl")
LB("Lfin_exit")
if TOT:
    A("s_waitcnt vmcnt(0)")
    A("s_memrealtime s[10:11]")
    A("s_waitcnt lgkmcnt(0)")
    A("v_mov_b32 v16, s98")
    A("v_mov_b32 v17, s10")
    A("v_mov_b32 v18, s100")
    A("v_mov_b32 v19, s97")
    soff(sT2, [(2, 6), (sW, 4)], STB)
    A("v_mov_b32 v20, 0")
    A("s_mov_b64 exec, 1")
    A("buffer_store_dwordx4 v[16:19], v20, %s, s%d offen" % (sr(sWS, 4), sT2))
if DIAG:
    A("s_waitcnt vmcnt(0)")
    STAMP(12)
    if DIAG == 2:
        A("s_or_b32 s%d, s2, s%d" % (sT0, sW))
        A("s_cmp_lg_u32 s%d, 0" % sT0)
        A("s_cbranch_scc1 Lend")
        A("v_readlane_b32 s%d, v28, 0" % sT2)
        for k, (r, i) in enumerate([(31, 10), (31, 12), (28, 1), (28, 2), (28, 6), (28, 5), (28, 7), (28, 8), (28, 9), (28, 10), (28, 11), (30, 3), (30, 5), (30, 8), (30, 9), (30, 12)]):
            A("v_readlane_b32 s%d, v%d, %d" % (sT3, r, i))
            A("s_sub_u32 s%d, s%d, s%d" % (sT3, sT3, sT2))
            A("s_nop 0")
            A("v_writelane_b32 v17, s%d, %d" % (sT3, k))
        A("v_lshlrev_b32 v16, 2, v%d" % vLANE)
        A("s_mov_b64 exec, 0xffff")
        A("global_store_dword v16, v17, s[100:101]")
        A("s_endpgm")
    soff(sT1, [(2, 10), (sW, 7)], STB)
    A("v_lshlrev_b32 v16, 2, v%d" % vLANE)
    A("s_mov_b64 exec, 0xffff")
    A("buffer_store_dword v28, v16, %s, s%d offen" % (sr(sWS, 4), sT1))
    A("buffer_store_dword v30, v16, %s, s%d offen offset:64" % (sr(sWS, 4), sT1))
    A("s_add_u32 s%d, s%d, 0x40000" % (sT1, sT1))
    A("buffer_store_dword v31, v16, %s, s%d offen" % (sr(sWS, 4), sT1))
LB("Lend")
A("s_endpgm")
LB("Lepoch")
if int(OPT.get("wb", 0)):
    A("s_cmp_lg_u32 s%d, 0" % sW)
    A("s_cbranch_scc1 Lnowb")
    A("s_waitcnt vmcnt(0)")
    A("buffer_wbl2 sc1")
    LB("Lnowb")
C("every workgroup has used the old launch tag long ago: workgroup 4 advances it")
A("s_lshl_b32 s%d, s%d, 8" % (sT0, sW))
A("s_add_u32 s%d, s%d, s2" % (sT0, sT0))
A("s_cmp_lg_u32 s%d, 4" % sT0)
A("s_cbranch_scc1 Lfin_exit")
A("v_mov_b32 v16, s%d" % sTG1)
A("v_mov_b32 v17, %s" % hx(EPO))
A("s_mov_b64 exec, 1")
A("buffer_store_dword v16, v17, %s, 0 offen sc1" % sr(sWS, 4))
A("s_mov_b64 exec, -1")
A("s_branch Lfin_exit")

L.append(".p2align 6"); LB("Lst_tab"); A("s_setpc_b64 %s" % sr(sRET, 2)); stubs.append("tab")
LB("Ltab")
C("waves 2,3: gather the main part of the g(h) table into LDS ; wave 1: the lowest octaves, best effort")
NTL = NOCT * 1024 // 2 // 1024
A("s_cmp_eq_u32 s%d, 1" % sW)
A("s_cbranch_scc1 Lext")
A("s_sub_u32 s%d, s%d, 2" % (sT1, sW))
A("s_mul_i32 s%d, s%d, %d" % (sT1, sT1, NTL * 1024))
A("s_add_u32 s%d, s%d, %d" % (sT1, sT1, XENT * 4))
A("v_add_u32 v%d, s%d, v%d" % (vT + 4, sT1, vL16))
A("v_add_u32 v%d, %d, v%d" % (vT + 4, L_TAB, vT + 4))
A("s_add_u32 s%d, s%d, %s" % (sT1, sT1, hx(TB)))
A("s_add_u32 s%d, s%d, 4096" % (sT2, sT1))
def it():
    for i in range(NTL):
        A("buffer_load_dwordx4 %s, v%d, %s, s%d offen offset:%d sc1" % (vr(W + 4 * i, 4), vL16, sr(sWS, 4), sT1 if i < 4 else sT2, 1024 * (i & 3)))
poll(it, range(W, W + 4 * NTL), vT, back="s_sleep %d" % int(OPT.get("tsl", 16)))
for i in range(NTL):
    A("ds_write_b128 v%d, %s offset:%d" % (vT + 4, vr(W + 4 * i, 4), 1024 * i))
A("s_waitcnt lgkmcnt(0)")
lds_arrive(20, vT + 4)
STAMP(9)
A("s_branch Ltabdone")
def ext_load(d):
    for i in range(XENT * 4 // 1024):
        A("buffer_load_dwordx4 %s, v%d, %s, s%d offen offset:%d sc1" % (vr(d + 4 * i, 4), vL16, sr(sWS, 4), sT4, 1024 * i))
def ext_write(d):
    for i in range(XENT * 4 // 1024):
        A("ds_write_b128 v%d, %s offset:%d" % (vT + 4, vr(d + 4 * i, 4), 1024 * i))
LB("Lext")
if XENT:
    A("s_mov_b32 s%d, %s" % (sT4, hx(TB)))
    A("v_add_u32 v%d, %d, v%d" % (vT + 4, L_TAB, vL16))
    for i in range(4): A("v_mov_b32 v%d, -1" % (W + i))
    for i in range(XENT * 4 // 1024):
        A("ds_write_b128 v%d, %s offset:%d" % (vT + 4, vr(W, 4), 1024 * i))
    A("ds_write_b32 v%d, v%d offset:48" % (vFL, W))
    A("s_waitcnt lgkmcnt(0)")
lds_arrive(20, vT + 5)
if XENT:
    C("one look at the lowest octaves, skipped when x1 is already there")
    soff(sT3, [(sW, 10), (sJ, 17)], X1_OFF)
    A("s_waitcnt vmcnt(0)")
    A("buffer_load_dwordx4 %s, v%d, %s, s%d offen sc1" % (vr(XR, 4), vL16, sr(sWS, 4), sT3))
    A("s_waitcnt vmcnt(0)")
    for x in maxtree(range(XR, XR + 4), vT): A(x)
    A("v_cmp_eq_u32 vcc, -1, v%d" % vT)
    A("s_cbranch_vccz Lexx")
    A("s_mov_b32 s%d, %d" % (sCNT, int(OPT.get("xlk", 2)) - 1))
    LB("Lexl")
    A("buffer_load_dwordx4 %s, v%d, %s, s%d offen sc1" % (vr(XR, 4), vL16, sr(sWS, 4), sT3))
    if "l" in OPT.get("xs", ""): A("s_branch Ltabdone")
    ext_load(W + 32)
    A("s_waitcnt vmcnt(4)")
    for x in maxtree(range(XR, XR + 4), vT): A(x)
    A("v_cmp_eq_u32 vcc, -1, v%d" % vT)
    A("s_cbranch_vccz Lexx")
    A("s_waitcnt vmcnt(0)")
    ext_write(W + 32)
    for x in maxtree(range(W + 32, W + 48), vT): A(x)
    A("v_cmp_eq_u32 vcc, -1, v%d" % vT)
    A("s_cbranch_vccz Lexc")
    A("s_sub_u32 s%d, s%d, 1" % (sCNT, sCNT))
    A("s_cbranch_scc0 Lexl")
    A("s_branch Ltabdone")
    LB("Lexc")
    A("v_mov_b32 v%d, 0" % vT)
    A("ds_write_b32 v%d, v%d offset:48" % (vFL, vT))
    A("s_branch Ltabdone")
    LB("Lexx")
    wqf_reads()
    A("s_branch Ltw")
else:
    A("s_branch Ltabdone")
LB("Ltw")
lds_spin(20, 3, vT + 2)
A("s_branch Ltwd")

for b in ool: L += b
ool = []
LB("Lslow")
C("rare: some h lies outside the table -> evaluate g(h) directly for those lanes")
RW1 = [W + 32 + i for i in range(14)]
RB1 = [PM + i for i in range(14)]
RW2 = [16 + i for i in range(10)] + [W + 46, W + 47, PM + 14, PM + 15]
A("v_lshlrev_b32 v26, 3, v%d" % vLANE)
A("s_load_dword s%d, %s, 0" % (sB2, sr(sB2P, 2)))
for (d4, d2, s) in [([W + 32, W + 36, W + 40], W + 44, sW1), ([PM, PM + 4, PM + 8], PM + 12, sB1)]:
    for k in range(3):
        A("buffer_load_dwordx4 %s, v%d, %s, 0 offen offset:%d" % (vr(d4[k], 4), vL16, sr(s, 4), 1024 * k))
    A("buffer_load_dwordx2 %s, v26, %s, 0 offen offset:3072" % (vr(d2, 2), sr(s, 4)))
A("buffer_load_dwordx4 v[16:19], v%d, %s, 0 offen" % (vL16, sr(sW2, 4)))
A("buffer_load_dwordx4 v[20:23], v%d, %s, 0 offen offset:1024" % (vL16, sr(sW2, 4)))
A("buffer_load_dwordx2 v[24:25], v%d, %s, 0 offen offset:2048" % (vL16, sr(sW2, 4)))
A("buffer_load_dwordx2 %s, v%d, %s, 0 offen offset:2056" % (vr(W + 46, 2), vL16, sr(sW2, 4)))
A("buffer_load_dwordx2 %s, v26, %s, 0 offen offset:3072" % (vr(PM + 14, 2), sr(sW2, 4)))
A("s_waitcnt vmcnt(0) lgkmcnt(0)")
A("s_lshl_b32 s%d, s%d, 16" % (sB2, sB2))
A("s_mov_b32 s%d, 1" % sT4)
for e in range(8):
    A("v_cmp_le_u32 vcc, %d, v%d" % (NENT * 4, AD + e))
    A("v_cmp_eq_u32 %s, -1, v%d" % (sr(sH2, 2), Y + e))
    A("s_or_b64 %s, %s, vcc" % (sr(sH2, 2), sr(sH2, 2)))
    if e & 1: A("v_and_b32 v%d, 0xffff0000, v%d" % (RT + 3, HB + (e >> 1)))
    else: A("v_lshlrev_b32 v%d, 16, v%d" % (RT + 3, HB + (e >> 1)))
    LB("Lse%d" % e)
    A("s_cmp_eq_u64 %s, 0" % sr(sH2, 2))
    A("s_cbranch_scc1 Lsf%d" % e)
    A("s_ff1_i32_b64 s%d, %s" % (sT0, sr(sH2, 2)))
    A("s_nop 0")
    A("v_readlane_b32 s%d, v%d, s%d" % (sH, RT + 3, sT0))
    A("s_cmp_eq_u32 s%d, s%d" % (sH, sT4))
    A("s_cbranch_scc1 Lsg%d" % e)
    A("s_mov_b32 s%d, s%d" % (sT4, sH))
    A("s_call_b64 %s, Lgev" % sr(sRET, 2))
    LB("Lsg%d" % e)
    A("s_nop 1")
    A("v_cmp_eq_u32 vcc, s%d, v%d" % (sH, RT + 3))
    A("v_mov_b32 v%d, s%d" % (RES + 3, sY))
    A("s_andn2_b64 %s, %s, vcc" % (sr(sH2, 2), sr(sH2, 2)))
    A("v_cndmask_b32 v%d, v%d, v%d, vcc" % (Y + e, Y + e, RES + 3))
    A("s_branch Lse%d" % e)
    LB("Lsf%d" % e)
for i in range(16): A("v_mov_b32 v%d, 0" % (PM + i))
A("s_mov_b64 vcc, 0")
A("s_mov_b64 %s, 0" % sr(sH, 2))
A("s_branch Lslowdone")
LB("Lgev")
a, u, t1, z = RES, RES + 1, RES + 2, RT
A("v_mov_b32 v%d, 0" % a)
A("v_mov_b32 v%d, %s" % (RT + 1, hx(f2u(K0))))
A("v_mov_b32 v%d, %s" % (RT + 2, hx(f2u(K1))))
for p in range(14):
    for hf in range(2):
        def un(d, s):
            if hf == 0: A("v_lshlrev_b32 v%d, 16, v%d" % (d, s))
            else: A("v_and_b32 v%d, 0xffff0000, v%d" % (d, s))
        un(u, RW1[p]); un(t1, RB1[p]); un(z, RW2[p])
        A("v_fma_f32 v%d, v%d, s%d, v%d" % (u, u, sH, t1))
        A("v_mul_f32 v%d, v%d, v%d" % (t1, u, u))
        A("v_fma_f32 v%d, v%d, v%d, v%d" % (t1, t1, RT + 2, RT + 1))
        A("v_mul_f32 v%d, v%d, v%d" % (t1, t1, u))
        A("v_exp_f32 v%d, v%d" % (t1, t1))
        A("v_mul_f32 v%d, v%d, v%d" % (z, z, u))
        A("v_add_f32 v%d, 1.0, v%d" % (t1, t1))
        A("v_rcp_f32 v%d, v%d" % (t1, t1))
        A("s_nop 0")
        A("v_fmac_f32 v%d, v%d, v%d" % (a, z, t1))
A("v_mov_b32 v%d, v%d" % (u, a))
A("s_nop 1")
wave_sum2(a, u, sY, sT1)
A("s_nop 1")
A("v_mov_b32 v%d, s%d" % (a, sY))
A("v_cvt_pk_bf16_f32 v%d, v%d, v%d" % (a, a, a))
A("v_and_b32 v%d, 0xffff0000, v%d" % (a, a))
A("v_add_f32 v%d, s%d, v%d" % (a, sB2, a))
A("v_cvt_pk_bf16_f32 v%d, v%d, v%d" % (a, a, a))
A("v_and_b32 v%d, 0xffff0000, v%d" % (a, a))
A("s_nop 0")
A("v_readfirstlane_b32 s%d, v%d" % (sY, a))
A("s_nop 3")
A("s_setpc_b64 %s" % sr(sRET, 2))

for b in ool: L += b
A("s_endpgm")
L.append(".p2align 8")
L.append(".fill %d, 4, 0xBF800000" % (64 if DIAG else 512))
L.append('''.section .rodata,"a"
.p2align 6
.amdhsa_kernel %s_kernel
  .amdhsa_next_free_vgpr 256
  .amdhsa_next_free_sgpr 102
  .amdhsa_accum_offset 256
  .amdhsa_group_segment_fixed_size 0
  .amdhsa_kernarg_size 104
  .amdhsa_user_sgpr_count 2
  .amdhsa_user_sgpr_kernarg_segment_ptr 1
  .amdhsa_system_sgpr_workgroup_id_x 1
.end_amdhsa_kernel''' % NAME)
open(OUTF, "w").write("\n".join(x for x in L if x is not None) + "\n")
print("wrote", OUTF, "lines", len(L), "LDS", LDS_SZ)
```

```python
import sys, struct, math

NAME = "interleave_layers__sliding_block_cached__mixer_token_mlp__decode"
OUTF = sys.argv[1] if len(sys.argv) > 1 else "cdna_kernels/%s.s" % NAME
DIAG = int(sys.argv[2]) if len(sys.argv) > 2 else 0
DBL = 0
if DIAG == 3: DIAG = 0; DBL = 1
TOT = 0
if DIAG == 4: DIAG = 0; TOT = 1
OPT = dict(a.split("=") for a in sys.argv[3:])
DEPTH = int(OPT.get("depth", 8))
D0 = int(OPT.get("d0", 2))
D1 = int(OPT.get("d1", 4))
DC = int(OPT.get("dc", 3))
TAILI = int(OPT.get("taili", 11))
TAILD = int(OPT.get("taild", 8))
QV = int(OPT.get("qv", 3))
PRET = int(OPT.get("pret", 1))
GW = int(OPT.get("gw", 1))
GPRE = int(OPT.get("gpre", 0))
GGAP = int(OPT.get("ggap", -1))
WARM = int(OPT.get("warm", 1))
QPRE = int(OPT.get("qpre", -1)); QGAP = int(OPT.get("qgap", -1))
OPRE = int(OPT.get("opre", -1)); OGAP = int(OPT.get("ogap", -1))
XPRE = int(OPT.get("xpre", -1)); XGAP = int(OPT.get("xgap", -1))
FINE = OPT.get("fine", "")
QS = int(OPT.get("qs", 0))
ADP = int(OPT.get("adp", 0))
ROT = int(OPT.get("rot", 1)); VROT = int(OPT.get("vrot", 0))
WROT = int(OPT.get("wrot", 1))
WOP = int(OPT.get("wop", 0))
ECO = int(OPT.get("eco", 0))
XDL = int(OPT.get("xdl", 256))
QBD = int(OPT.get("qbd", 0))
VLATE = int(OPT.get("vlate", 1))
QV2 = int(OPT.get("qv2", 0))
PROG = int(OPT.get("prog", 1))
QT = int(OPT.get("qt", 0))
DRY = int(OPT.get("dry", 0))
HP = int(OPT.get("hp", 0))
NOCT = int(OPT.get("noct", 16))
QPOS = int(OPT.get("qpos", 1))
QPOS2 = int(OPT.get("qpos2", 7))

def f2u(x): return struct.unpack("<I", struct.pack("<f", x))[0]
def hx(x): return "0x%08x" % (x & 0xffffffff)

L = []
def A(s): L.append("    " + s)
def LB(s): L.append(s + ":")
def C(s): L.append("    ; " + s)
def vr(a, n): return "v[%d:%d]" % (a, a + n - 1)
def sr(a, n): return "s[%d:%d]" % (a, a + n - 1)
def NOP(n):
    while n > 0:
        k = min(n, 16); A("s_nop %d" % (k - 1)); n -= k

XOCT = int(OPT.get('xoct', 4))
ELO = int(OPT.get('elo', 130 - NOCT - XOCT))
LO2 = (ELO << 7) * 2
NENT = (NOCT + XOCT) * 256
XENT = XOCT * 256
assert XENT in (0, 1024)
EPW = NOCT * 256 // 256 // 4 // 2
GRS = 0x20000
O_OFF = [0x0000, 0xC400]; LSE_OFF = [0x8000, 0x14400]; Q1_OFF = 0x8400; X1_OFF = 0x14600
CLRA_PER = 1040
CLRB_OFF = 0x8400; CLRB_PER = 1680
Q0_OFF = 0x18000
EPO = 0x17f00
PB = 0x100000; P_L = 0x20000
TB = 0x140000; FB = 0x148000
QB_DELTA = 0x200000
STB = 0x300000
WS_SZ = 0x400000
L_WQ = 12288; L_K = L_WQ + 16384; L_V = L_K + 32768
L_WO = L_K + 16384
L_TAB = L_V
L_XN = L_V + 32768; XS = 1056
L_X2 = L_XN + 4 * XS
L_FLG = L_X2 + 4 * XS
L_RB = L_K; RBS = 2048 + 64; L_ML = L_K + 4 * RBS
L_QF = L_X2
LDS_SZ = int(OPT.get("lds", L_FLG + 64))
SPIN = 0x40000
K0 = -2.0 * math.sqrt(2.0 / math.pi) * math.log2(math.e)
K1 = K0 * 0.044715
EPS = hx(f2u(1e-5))

sTG1, sTG2 = 0, 1
sW, sJ, sA, sC, sGR, sLAY, sFAST = 3, 4, 5, 6, 7, 8, 9
sT0, sT1, sT2, sT3, sT4, sT5 = 10, 11, 12, 13, 14, 15
sCNT = 16
sQL, sQS, sOL, sOS, sLL, sLS, sPS = 17, 18, 19, 20, 21, 22, 23
sSC, sIT = 24, 25
sSUM, sSQ = 26, 27
sH, sH2, sRET, sMSK = 28, 30, 32, 34
sB2, sY, sXCC, sE = 36, 37, 38, 39
sB2P = 40
sK, sV, sWQ, sWO, sWS, sX, sOUT, sW1, sB1, sW2 = 44, 48, 52, 56, 60, 64, 68, 72, 76, 80
sKO, sKL, sVO, sVL = 84, 85, 86, 87
sPM = 88
sHC, sHT = 84, 85

def STAMP(i):
    if DIAG:
        A("s_memrealtime s[42:43]"); A("s_waitcnt lgkmcnt(0)")
        A("v_writelane_b32 v30, s42, %d" % i)

def CST(i):
    if DIAG == 1 and FINE:
        A("s_memtime s[42:43]"); A("s_waitcnt lgkmcnt(0)")
        A("v_writelane_b32 v31, s42, %d" % i)

vLANE = 1
vL16, vQST, vOST, vOLD, vPST, vX1S, vXNW, vXNR, vRBW, vRBR, vMLW, vMLR, vLSE, vZ = range(2, 16)
vT = 16
vWT, vFL = 28, 29
vLS2 = 27
KF, VF, WQF, WOF, SEL, ONES = 32, 64, 96, 112, 176, 180
W = 184
PM = 232
XR = 248
RES = 252

def srd(s, nbytes):
    A("s_mov_b32 s%d, %s" % (s + 2, hx(nbytes))); A("s_mov_b32 s%d, 0x00020000" % (s + 3))

def soff(dst, terms, const):
    first = True
    for (src, sh) in terms:
        if first: A("s_lshl_b32 s%d, s%d, %d" % (dst, src, sh)); first = False
        else:
            A("s_lshl_b32 s%d, s%d, %d" % (sT0, src, sh)); A("s_add_u32 s%d, s%d, s%d" % (dst, dst, sT0))
    if const: A("s_add_u32 s%d, s%d, %s" % (dst, dst, hx(const)))

def wave_sum2(a, b, sa, sb):
    for ctl in ["row_ror:8", "row_ror:4", "row_ror:2", "row_ror:1"]:
        A("v_add_f32_dpp v%d, v%d, v%d %s row_mask:0xf bank_mask:0xf" % (a, a, a, ctl))
        A("v_add_f32_dpp v%d, v%d, v%d %s row_mask:0xf bank_mask:0xf" % (b, b, b, ctl))
        A("s_nop 0")
    for ctl in ["row_bcast:15 row_mask:0xa", "row_bcast:31 row_mask:0xc"]:
        A("v_add_f32_dpp v%d, v%d, v%d %s bank_mask:0xf" % (a, a, a, ctl))
        A("v_add_f32_dpp v%d, v%d, v%d %s bank_mask:0xf" % (b, b, b, ctl))
        A("s_nop 0")
    A("v_readlane_b32 s%d, v%d, 63" % (sa, a))
    A("v_readlane_b32 s%d, v%d, 63" % (sb, b))

def row_stats(x, t, unp):
    A("v_dot2_f32_bf16 v%d, v%d, v%d, 0" % (t, x, ONES))
    A("v_dot2_f32_bf16 v%d, v%d, v%d, 0" % (t + 1, x, x))
    for i in range(1, 4):
        A("v_dot2_f32_bf16 v%d, v%d, v%d, v%d" % (t, x + i, ONES, t))
        A("v_dot2_f32_bf16 v%d, v%d, v%d, v%d" % (t + 1, x + i, x + i, t + 1))
    un = []
    for i in range(4):
        un.append("v_lshlrev_b32 v%d, 16, v%d" % (unp + 2 * i, x + i))
        un.append("v_and_b32 v%d, 0xffff0000, v%d" % (unp + 2 * i + 1, x + i))
    for k in range(3): A(un.pop(0))
    a, b = t, t + 1
    for ctl in ["row_ror:8 row_mask:0xf", "row_ror:4 row_mask:0xf", "row_ror:2 row_mask:0xf", "row_ror:1 row_mask:0xf", "row_bcast:15 row_mask:0xa", "row_bcast:31 row_mask:0xc"]:
        A("v_add_f32_dpp v%d, v%d, v%d %s bank_mask:0xf" % (a, a, a, ctl))
        A("v_add_f32_dpp v%d, v%d, v%d %s bank_mask:0xf" % (b, b, b, ctl))
        A(un.pop(0) if un else "s_nop 0")
    A("v_readlane_b32 s%d, v%d, 63" % (sSUM, a))
    A("v_readlane_b32 s%d, v%d, 63" % (sSQ, b))
    A("s_nop 0")
    A("v_mul_f32 v%d, s%d, v%d" % (t, sSUM, vZ))
    A("v_mul_f32 v%d, s%d, v%d" % (t + 1, sSQ, vZ))
    A("v_fma_f32 v%d, -v%d, v%d, v%d" % (t + 1, t, t, t + 1))
    A("v_max_f32 v%d, 0, v%d" % (t + 1, t + 1))

ool = []
uid = [0]
def maxtree(regs, tmp):
    r = list(regs); out = []
    out.append("v_max3_u32 v%d, v%d, v%d, v%d" % (tmp, r[0], r[1], r[2])); r = r[3:]
    if len(r) >= 5:
        out.append("v_max3_u32 v%d, v%d, v%d, v%d" % (tmp + 1, r[0], r[1], r[2])); r = r[3:]
        d = 0
        while len(r) >= 2:
            out.append("v_max3_u32 v%d, v%d, v%d, v%d" % (tmp + d, tmp + d, r[0], r[1])); r = r[2:]; d ^= 1
        if r: out.append("v_max3_u32 v%d, v%d, v%d, v%d" % (tmp, tmp, tmp + 1, r[0]))
        else: out.append("v_max_u32 v%d, v%d, v%d" % (tmp, tmp, tmp + 1))
    else:
        while len(r) >= 2:
            out.append("v_max3_u32 v%d, v%d, v%d, v%d" % (tmp, tmp, r[0], r[1])); r = r[2:]
        if r: out.append("v_max_u32 v%d, v%d, v%d" % (tmp, tmp, r[0]))
    return out

def poll(issue, regs, tmp, pre_wait=None, spec=None, back="s_nop 7", tag=None, stub=None):
    uid[0] += 1; u = uid[0]
    A("s_mov_b32 s%d, %s" % (sCNT, hx(SPIN)))
    LB("Lp%d" % u)
    issue()
    if pre_wait: pre_wait()
    A("s_waitcnt vmcnt(0)")
    mt = maxtree(regs, tmp) + ["v_cmp_eq_u32 vcc, -1, v%d" % tmp]
    spec = list(spec or [])
    ns = len(spec)
    per = -(-len(mt) // ns) if ns else 0
    for s in spec:
        A(s)
        for k in range(per):
            if mt: A(mt.pop(0))
    for m in mt: A(m)
    A("s_cbranch_vccz Ld%d" % u)
    A("s_sub_u32 s%d, s%d, 1" % (sCNT, sCNT))
    if back != "s_nop 7": A(back)
    A("s_cbranch_scc0 Lp%d" % u)
    if stub: touch_stub(stub)
    LB("Ld%d" % u)
    if DIAG and tag is not None:
        A("s_lshl_b32 m0, s%d, 2" % sLAY); A("s_add_u32 m0, m0, %d" % tag); A("s_nop 0")
        A("v_writelane_b32 v31, s%d, m0" % sCNT)

stubs = []
def touch_stub(name, branch_over=None):
    A("s_branch Lsk_%s" % name)
    L.append(".p2align 6")
    LB("Lst_%s" % name)
    A("s_setpc_b64 %s" % sr(sRET, 2))
    LB("Lsk_%s" % name)
    stubs.append(name)

def delay(cyc):
    if cyc == -1:
        A("s_waitcnt vmcnt(0)"); return
    while cyc >= 64:
        k = min(cyc // 64, 15); A("s_sleep %d" % k); cyc -= 64 * k
    if cyc >= 8: A("s_nop %d" % min(15, cyc // 4 - 1))

def ppoll(issue, regs, n, tmp, spec, pre=0, gap=128, mid=None, tag=None, fix=None, stub=None, lanes=None, per_load=None):
    uid[0] += 1; u = uid[0]
    def look(k):
        if per_load and PROG and gap < 0:
            r = list(regs(k)); out = []
            for i in range(n):
                out.append("s_waitcnt vmcnt(%d)" % (n - 1 - i))
                sp = list(per_load(k, i))
                ck = ["v_max3_u32 v%d, v%d, v%d, v%d" % (tmp + 1, r[4 * i], r[4 * i + 1], r[4 * i + 2]),
                      ("v_max_u32 v%d, v%d, v%d" % (tmp, tmp + 1, r[4 * i + 3])) if i == 0 else ("v_max3_u32 v%d, v%d, v%d, v%d" % (tmp, tmp, tmp + 1, r[4 * i + 3]))]
                while sp or ck:
                    if sp: out.append(sp.pop(0))
                    if ck: out.append(ck.pop(0))
            return out + ["v_cmp_eq_u32 vcc, -1, v%d" % tmp]
        out = ["s_waitcnt vmcnt(%d)" % (n if k == 0 else 0)]
        mt = maxtree(regs(k), tmp) + ["v_cmp_eq_u32 vcc, -1, v%d" % tmp]
        sp = list(spec(k)); per = -(-len(mt) // len(sp)) if sp else 0
        for x in sp:
            out.append(x)
            for _ in range(per):
                if mt: out.append(mt.pop(0))
        return out + mt + (["s_and_b64 vcc, vcc, %s" % sr(lanes, 2)] if lanes else [])
    A("s_mov_b32 s%d, %s" % (sCNT, hx(SPIN)))
    delay(pre)
    fine = FINE and tag == int(FINE)
    if fine: CST(8)
    LB("Lp%d" % u)
    issue(0)
    if fine and 0: CST(9)
    if mid: mid()
    if gap >= 0: delay(gap)
    if gap >= 0: issue(1)
    lk = look(0)
    if gap < 0 and not (per_load and PROG): lk[0] = "s_waitcnt vmcnt(0)"
    for k, x in enumerate(lk):
        A(x)
        if fine and k == 0: CST(13)
    if fine: CST(14)
    A("s_cbranch_vccz Ld%d" % u)
    if gap < 0: issue(1)
    A("s_sub_u32 s%d, s%d, 1" % (sCNT, sCNT))
    for x in look(1): A(x)
    for x in (fix or []): A(x)
    A("s_cbranch_vccz Ld%d" % u)
    A("s_sub_u32 s%d, s%d, 1" % (sCNT, sCNT))
    A("s_cmp_gt_i32 s%d, 0" % sCNT)
    A("s_cbranch_scc1 Lp%d" % u)
    if stub: touch_stub(stub)
    LB("Ld%d" % u)
    if fine: CST(15)
    if DIAG and tag is not None:
        A("s_lshl_b32 m0, s%d, 2" % sLAY); A("s_add_u32 m0, m0, %d" % tag); A("s_nop 0")
        A("v_writelane_b32 v31, s%d, m0" % sCNT)

def lds_spin(off, target, tmp, mask=None, sleep=0):
    uid[0] += 1; u = uid[0]
    A("s_mov_b32 s%d, %s" % (sT2, hx(SPIN * 4)))
    LB("Ls%d" % u)
    A("ds_read_b32 v%d, v%d offset:%d" % (tmp, vFL, off))
    A("s_waitcnt lgkmcnt(0)")
    A("v_readfirstlane_b32 s%d, v%d" % (sT1, tmp))
    if mask: A("s_and_b32 s%d, s%d, %d" % (sT0, sT1, mask))
    A("s_cmp_ge_u32 s%d, %d" % (sT0 if mask else sT1, target))
    A("s_cbranch_scc1 Lt%d" % u)
    if sleep: A("s_sleep %d" % sleep)
    A("s_sub_u32 s%d, s%d, 1" % (sT2, sT2))
    A("s_cbranch_scc0 Ls%d" % u)
    LB("Lt%d" % u)

def lds_arrive(off, tmp, val=1):
    if val is not None: A("v_mov_b32 v%d, %d" % (tmp, val))
    A("s_mov_b64 exec, 1")
    A("ds_add_u32 v%d, v%d offset:%d" % (vFL, tmp, off))
    A("s_mov_b64 exec, -1")

def store_local(op, data, vaddr, so):
    uid[0] += 1; u = uid[0]
    A("s_cbranch_scc1 Lw%d" % u)
    A("%s %s, v%d, %s, s%d offen" % (op, data, vaddr, sr(sWS, 4), so))
    LB("Lx%d" % u)
    ool.append(["Lw%d:" % u, "    %s %s, v%d, %s, s%d offen sc1" % (op, data, vaddr, sr(sWS, 4), so), "    s_branch Lx%d" % u])
def fastcmp(): A("s_cmp_eq_u32 s%d, 0" % sFAST)

def mf(d, a, b, c):
    return "v_mfma_f32_16x16x32_bf16 %s, %s, %s, %s" % (vr(d, 4), vr(a, 4), vr(b, 4), "0" if c is None else vr(c, 4))
def mfma(d, a, b, c): A(mf(d, a, b, c))

def tags():
    A("s_add_u32 s%d, s%d, 1" % (sTG1, sE))
    A("s_mul_i32 s%d, s%d, 0x9E3779B1" % (sTG2, sTG1))
    A("s_and_b32 s%d, s%d, -8" % (sTG2, sTG2))

def common_addr():
    A("v_and_b32 v18, 3, v%d" % vLANE)
    A("v_lshlrev_b32 v%d, 12, v17" % vQST)
    A("v_lshrrev_b32 v24, 1, v16")
    A("v_lshl_add_u32 v%d, v24, 8, v%d" % (vQST, vQST))
    A("v_and_b32 v24, 1, v16")
    A("v_lshl_add_u32 v%d, v24, 3, v%d" % (vQST, vQST))
    A("v_lshlrev_b32 v%d, 4, v24" % vLSE)
    A("s_mul_i32 s%d, s%d, %d" % (sT0, sW, XS))
    A("s_add_u32 s%d, s%d, %d" % (sT0, sT0, L_XN))
    A("v_add_u32 v%d, s%d, v%d" % (vXNW, sT0, vL16))
    A("s_lshl_b32 s%d, s%d, 8" % (sT0, sA))
    A("s_add_u32 s%d, s%d, %d" % (sT0, sT0, L_XN))
    A("v_mul_u32_u24 v25, %d, v18" % XS)
    A("v_lshl_add_u32 v25, v16, 4, v25")
    A("v_add_u32 v%d, s%d, v25" % (vXNR, sT0))
    A("v_mov_b32 v%d, %s" % (vZ, hx(f2u(1.0 / 512))))
    for r in range(4): A("v_mov_b32 v%d, 0x3f803f80" % (ONES + r))
    A("s_and_b32 s%d, s%d, 1" % (sT1, sC))
    A("s_lshr_b32 s%d, s%d, 1" % (sT2, sC))
    soff(sQS, [(sT1, 11), (sW, 9), (sA, 6), (sT2, 4)], 0)
    A("v_bfe_u32 v24, v%d, 2, 2" % vLANE)
    A("v_lshl_add_u32 v24, v16, 3, v24")
    A("v_lshlrev_b32 v24, 7, v24")
    A("v_bfe_u32 v25, v%d, 3, 2" % vLANE)
    A("v_lshlrev_b32 v25, 1, v25")
    A("v_bfe_u32 v26, v%d, 1, 1" % vLANE)
    A("v_xor_b32 v25, v25, v26")
    A("v_lshl_add_u32 v24, v25, 4, v24")
    A("v_and_b32 v26, 1, v%d" % vLANE)
    A("v_lshl_add_u32 v%d, v26, 3, v24" % vWT)
    A("s_mov_b32 s%d, 0x000f000f" % sMSK)
    A("s_mov_b32 s%d, 0x000f000f" % (sMSK + 1))
    A("s_mov_b32 s%d, 0" % sLAY)

def wtile_voff(shift, d):
    A("v_lshrrev_b32 v24, 3, v%d" % vLANE)
    A("v_and_b32 v25, 7, v%d" % vLANE)
    A("v_and_b32 v26, 1, v16")
    A("v_lshlrev_b32 v26, 1, v26")
    A("v_xor_b32 v25, v25, v26")
    A("v_lshlrev_b32 v25, 4, v25")
    A("v_lshl_add_u32 v%d, v24, %d, v25" % (d, shift))
    A("v_xor_b32 v%d, 64, v%d" % (d + 1, d))

def wqf_reads():
    A("s_lshl_b32 s%d, s%d, 5" % (sT1, sW))
    A("v_xor_b32 v26, s%d, v%d" % (sT1, vWT))
    for t in range(4):
        for hf in range(2):
            A("ds_read_b64_tr_b16 %s, v26 offset:%d" % (vr(WQF + 4 * t + 2 * hf, 2), L_WQ + 4096 * t + 512 * hf))

def dma(vaddr, srdn, so, lds_s, step_so, flags="nt"):
    A("s_mov_b32 m0, s%d" % lds_s)
    A("s_add_u32 s%d, s%d, 1024" % (lds_s, lds_s))
    A("buffer_load_dwordx4 v%d, %s, s%d offen %s lds" % (vaddr, sr(srdn, 4), so, flags))
    A("s_add_u32 s%d, s%d, %d" % (so, so, step_so))

hdr = open("cdna_kernels/%s.s.ref" % NAME).read().split("; Override launch")[0]
L.append(hdr.rstrip("\n") + """
;
; One persistent launch, 256 workgroups (one per CU) x 8 waves.  wg = A(2b):C(3b):j(3b); j = kv head.
; K, V, wq and wo are read from HBM exactly once (LDS-DMA) and stay in registers for both attention layers.
;   roles of a workgroup:  attention (batch A, keys 128C..), q projection (wq rows 128A.., 64 columns C),
;                          output projection (head A of group j, 64 columns C), row reduction (batch A, columns 64C..)
;   waves 0-3: stream K/V, attention, output projection, LayerNorm + mixer + next q projection
;   waves 4-7: first q projection, then the token-mixer MLP g(h) = sum_f gelu(h w1 + b1) w2 + b2 evaluated
;              exactly (all 1792 hidden units) for every bf16 value h with 2^-17 <= |h| < 8; h is a bf16 tensor in the
;              reference, so the mixer is a lookup of these values; any other h is evaluated directly (Lslow).
; Hand-offs between workgroups go through d_ws.  Slots are filled with a sentinel at the start of the launch and a
; consumer polls until no sentinel is left; the first hand-off (q) and the "sentinels are in place" announcements
; carry a tag derived from a word that every launch advances.  Stores inside a kv-head group are plain when the
; whole group reports the same XCC id, write-through otherwise; every poll is bounded.
""".rstrip("\n"))
L.append("; @launch grid=(256,1,1) block=(512,1,1) lds=%d" % LDS_SZ)
L.append('.amdgcn_target "amdgcn-amd-amdhsa--gfx950"')
L.append(".text\n" + (".p2align 12\n" if int(OPT.get("al", 0)) else "") + ".globl %s_kernel\n.p2align 8\n.type %s_kernel,@function\n%s_kernel:" % (NAME, NAME, NAME))
if DIAG: A("s_memrealtime s[42:43]")
if DBL or TOT: A("s_memrealtime s[98:99]")
sM = 96
A("s_lshr_b32 s%d, s2, 8" % sT0)
A("s_cbranch_scc1 Lend")
A("s_load_dwordx2 %s, s[0:1], 24" % sr(sWQ, 2))
A("s_load_dwordx4 %s, s[0:1], 0" % sr(sT2, 4))
A("v_readfirstlane_b32 s%d, v0" % sW)
C("every wave pulls one line of this kernel's code into L2 (plain read): 32 workgroups x 4 lines")
A("s_getpc_b64 s[10:11]")
LB("Lpc0")
A("s_lshr_b32 s%d, s2, 3" % sM)
A("s_lshl_b32 s%d, s%d, 9" % (sCNT, sM))
A("s_cmp_lg_u32 s%d, 0" % sW)
A("s_cbranch_scc1 Lnopf")
A("v_and_b32 v19, 3, v0")
A("v_lshl_add_u32 v19, v19, 7, s%d" % sCNT)
A("global_load_dword v%d, v19, s[10:11]" % (W + 8))
LB("Lnopf")
A("s_and_b32 s%d, s2, 7" % sJ)
A("s_lshr_b32 s%d, s2, 6" % sA)
A("s_and_b32 s%d, s%d, 7" % (sC, sM))
A("s_lshl_b32 s%d, 1, 17" % (sWQ + 3))
A("s_bitcmp1_b32 s%d, 8" % sW)
A("s_cbranch_scc0 Lmain0")
vKA, vVA = W + 40, W + 44
sRO, sRM = sVO, 97 if not TOT else 94
if TOT: sRM = sOL
def kv_issue(i):
    A("s_add_u32 m0, s%d, s%d" % (sKL if i < 8 else sVL, sRO))
    A("s_add_u32 s%d, s%d, s%d" % (sCNT, sKO, sRO))
    if i < 8: A("buffer_load_dwordx4 v%d, %s, s%d offen nt lds" % (vKA + (i & 3), sr(sK, 4), sCNT))
    else: A("buffer_load_dwordx4 v%d, %s, s%d offen nt lds" % (vVA + (i & 1), sr(sV, 4), sCNT))
    A("s_addk_i32 s%d, %d" % (sRO, 1024 + (VROT * 1024 if i == 7 else 0)))
    A("s_and_b32 s%d, s%d, 0x1fff" % (sRO, sRO))
def lane_init():
    A("v_and_b32 v%d, 63, v0" % vLANE)
    A("v_mov_b32 v%d, %d" % (vFL, L_FLG))
    A("v_lshlrev_b32 v%d, 4, v%d" % (vL16, vLANE))
    A("v_lshrrev_b32 v16, 4, v%d" % vLANE)
    A("v_and_b32 v17, 15, v%d" % vLANE)
    A("v_mov_b32 v20, 0")
    if DIAG: A("v_mov_b32 v30, 0")
def main_early():
    LB("Lmain0")
    for s, off in [(sW1, 48), (sB1, 56), (sW2, 64)]:
        A("s_load_dwordx2 %s, s[0:1], %d" % (sr(s, 2), off))
    lane_init()
    A("v_mov_b32 v21, 0")
    for k in range(4): A("ds_write_b64 v%d, v[20:21] offset:%d" % (vFL, 8 * k))
    if ADP: A("ds_write_b32 v%d, v20 offset:52" % vFL)
    A("s_lshl_b32 s%d, 1, 25" % (sK + 2)); A("s_mov_b32 s%d, s%d" % (sK + 3, sWQ + 3))
    A("v_xor_b32 v18, v17, v16")
    A("v_lshlrev_b32 v18, 4, v18")
    A("v_lshl_add_u32 v%d, v16, 8, v18" % vKA)
    A("s_lshl_b32 s%d, s%d, %d" % (sRO, sC, 10 if ROT else 31))
    if not ROT: A("s_mov_b32 s%d, 0" % sRO)
    A("s_bfe_u32 s%d, s%d, 0x2000a" % (sT1, sRO))
    A("s_lshl_b32 s%d, s%d, 6" % (sT1, sT1))
    for k in range(1, 4):
        A("s_add_u32 s%d, s%d, %d" % (sCNT, sT1, 64 * k))
        A("s_and_b32 s%d, s%d, 0xc0" % (sCNT, sCNT))
        A("v_xor_b32 v%d, s%d, v%d" % (vKA + k, sCNT, vKA))
    A("v_xor_b32 v%d, s%d, v%d" % (vKA, sT1, vKA))
    soff(sKO, [(sA, 23), (sJ, 20), (sC, 15), (sW, 7)], 3072 * 256)
    A("s_add_u32 s%d, s%d, %d" % (sKL, sT0, L_K))
    A("s_waitcnt lgkmcnt(0)")
    A("s_mov_b64 %s, %s" % (sr(sK, 2), sr(sT4, 2)))
    for i in range(D0): kv_issue(i)
    C("lane k<3 of wave 3 pulls a slice of coefficient array k into L2")
    A("s_cmp_lg_u32 s%d, 192" % sW)
    A("s_cbranch_scc1 Lm_nopf")
    A("s_min_u32 s%d, s%d, 27" % (sT1, sM))
    A("s_lshl_b32 s%d, s%d, 7" % (sT1, sT1))
    A("v_mov_b32 v19, s%d" % sT1)
    A("s_mov_b64 exec, 1")
    for k, sd in enumerate([sW1, sB1, sW2]): A("global_load_dword v%d, v19, %s" % (W + 9 + k, sr(sd, 2)))
    A("s_mov_b64 exec, -1")
    LB("Lm_nopf")
    A("s_add_u32 s%d, s%d, %d" % (sVL, sT0, L_V))
    A("s_lshr_b32 s%d, s%d, 6" % (sW, sW))
    if DIAG: A("v_writelane_b32 v30, s42, 0")
    STAMP(10)
    A("s_branch Lmain")

C("---- helper waves: first q projection, then the table of g over bf16 inputs ----")
HW1, HB1, HW2 = 32, 60, 112
hK0, hK1, hONE, hRES = 88, 90, 92, 94
AC = [140, 142]
A("s_load_dwordx2 %s, s[0:1], 96" % sr(sWS, 2))
C("wq tile DMA: instruction i, thread t' = t-256: row 32 i + (t'>>3), 16-byte chunk (t'&7) ^ swizzle")
A("v_bfe_u32 v23, v0, 3, 5")
A("v_and_b32 v22, 7, v0")
A("v_and_b32 v24, 2, v23")
A("v_lshrrev_b32 v25, 1, v23")
A("v_and_or_b32 v24, v25, 4, v24")
A("v_xor_b32 v22, v22, v24")
A("v_lshlrev_b32 v22, 4, v22")
A("v_lshl_add_u32 v22, v23, 13, v22")
soff(sQL, [(sA, 20), (sJ, 10), (sC, 7)], 0)
A("s_lshl_b32 s%d, 1, 22" % (sWQ + 2))
A("s_lshl_b32 s%d, 1, 18" % sT1)
A("s_lshl_b32 s%d, s%d, 4" % (sQS, sW))
A("s_add_u32 m0, s%d, %d" % (sQS, L_WQ - 4096))
A("v_lshlrev_b32 v21, 4, v0")
if DIAG: A("s_memrealtime s[88:89]")
A("s_waitcnt lgkmcnt(0)")
if DIAG: A("s_memrealtime s[90:91]")
A("global_load_dwordx4 %s, v21, %s offset:-4096" % (vr(XR, 4), sr(sT2, 2)))
for i in range(4):
    if i:
        A("s_addk_i32 m0, 0x1000")
        A("s_add_u32 s%d, s%d, s%d" % (sQL, sQL, sT1))
    A("buffer_load_dwordx4 v22, %s, s%d offen nt lds" % (sr(sWQ, 4), sQL))
if DIAG: A("s_memrealtime s[92:93]")
lane_init()
A("s_bfe_u32 s%d, s%d, 0x20006" % (sW, sW))
A("s_lshl_b32 s%d, s%d, 10" % (sT3, sW))
srd(sWS, WS_SZ)
C("early sentinels (O0, LSE0): hw0 1024 B, the others 16 B")
for i in range(4): A("v_mov_b32 v%d, -1" % (PM + i))
A("s_mul_i32 s%d, s%d, %d" % (sT5, sM, CLRA_PER))
A("s_lshl_b32 s%d, s%d, 17" % (sGR, sJ))
A("s_add_u32 s%d, s%d, s%d" % (sT5, sT5, sGR))
A("s_add_u32 s%d, s%d, 1024" % (sT4, sT5))
A("s_cmp_ge_u32 s%d, 2" % sW)
A("s_cbranch_scc1 Lhc_skip")
A("s_cmp_eq_u32 s%d, 0" % sW)
A("s_cselect_b32 s%d, s%d, s%d" % (sT5, sT5, sT4))
A("s_cselect_b64 exec, -1, 1")
A("buffer_store_dwordx4 %s, v%d, %s, s%d offen sc1" % (vr(PM, 4), vL16, sr(sWS, 4), sT5))
LB("Lhc_skip")
A("s_mov_b64 exec, -1")
A("s_branch Lhelp2")
main_early()
LB("Lhelp2")
if QT:
    C("touch 2 lines of the tagged q mailbox per wave so that they sit in L2 before they are written")
    soff(sT4, [(sM, 10), (sW, 8), (sJ, 17)], Q0_OFF)
    A("v_lshlrev_b32 v24, 7, v%d" % vLANE)
    A("s_mov_b64 exec, 3")
    A("buffer_load_dword v%d, v24, %s, s%d offen" % (RES + 1, sr(sWS, 4), sT4))
A("s_mov_b64 exec, -1")
if HP: A("s_setprio 3")
A("s_load_dword s%d, %s, %s" % (sE, sr(sWS, 2), hx(EPO)))
A("s_load_dwordx2 %s, s[0:1], 72" % sr(sB2P, 2))
if DIAG:
    A("v_writelane_b32 v30, s42, 0")
    A("s_waitcnt lgkmcnt(0)")
    A("v_mov_b32 v31, 0")
    A("v_writelane_b32 v31, s88, 0"); A("v_writelane_b32 v31, s90, 1"); A("v_writelane_b32 v31, s92, 2")
STAMP(9)
A("s_barrier")
A("s_lshl_b32 s%d, s2, 2" % sHC)
A("s_add_u32 s%d, s%d, s%d" % (sHC, sHC, sW))
sHX = 86
if XENT:
    C("extra entry e = wave index: |h| code ELO*128 + (e>>1), sign e&1")
    A("s_lshr_b32 s%d, s%d, 1" % (sHX, sHC))
    A("s_add_u32 s%d, s%d, %d" % (sHX, sHX, ELO * 128))
    A("s_lshl_b32 s%d, s%d, 16" % (sHX, sHX))
    A("s_lshl_b32 s%d, s%d, 31" % (sT0, sHC))
    A("s_or_b32 s%d, s%d, s%d" % (sHX, sHX, sT0))
A("s_mul_i32 s%d, s%d, %d" % (sHC, sHC, EPW))
A("s_lshl_b32 s%d, s%d, 3" % (sHT, sHC))
A("s_add_u32 s%d, s%d, %d" % (sHT, sHT, XENT * 4))
A("s_add_u32 s%d, s%d, %d" % (sHC, sHC, ELO * 128 + XENT // 2))
A("s_lshl_b32 s%d, s%d, 16" % (sHC, sHC))
A("v_lshlrev_b32 v27, 2, v%d" % vLANE)
A("v_add_u32 v27, s%d, v27" % sHT)
A("s_mov_b32 s%d, %s" % (sHT, hx(TB)))
common_addr()
A("s_lshl_b32 s%d, s%d, 1" % (sQS, sQS))
A("s_add_u32 s%d, s%d, s%d" % (sQS, sQS, sGR))
A("s_add_u32 s%d, s%d, %s" % (sQS, sQS, hx(Q0_OFF)))
A("v_lshlrev_b32 v%d, 1, v%d" % (vQST, vQST))
A("s_getreg_b32 s%d, hwreg(HW_REG_XCC_ID, 0, 3)" % sXCC)
for r, c in [(hK0, K0), (hK1, K1), (hONE, 1.0)]:
    A("v_mov_b32 v%d, %s" % (r, hx(f2u(c)))); A("v_mov_b32 v%d, %s" % (r + 1, hx(f2u(c))))
A("v_mov_b32 v%d, 0" % hRES)
A("s_mov_b32 s%d, 0" % sIT)
if DRY:
    C("dry run of the q-projection code while its inputs are in flight (instruction cache warm-up; no side effects)")
    A("s_mov_b32 s%d, 1" % sIT)
    A("s_branch Llnq")
    LB("Ldry_done")
    A("s_mov_b64 exec, -1")
    A("s_mov_b32 s%d, 0" % sIT)
if WARM:
    C("warm the instruction cache lines at the far jump targets of the main waves")
    for k, nm in enumerate(["k", "fin", "out", "tab"]):
        A("s_cmp_lg_u32 s%d, %d" % (sW, k))
        A("s_cbranch_scc1 Lwm%d" % k)
        A("s_call_b64 %s, Lst_%s" % (sr(sRET, 2), nm))
        if nm == "out": A("s_call_b64 %s, Lst_mq" % sr(sRET, 2))
        LB("Lwm%d" % k)
A("s_cmp_ge_u32 s%d, 2" % sW)
A("s_cbranch_scc0 Lhx5")
A("s_waitcnt vmcnt(%d)" % (4 + QT))
LB("Lhx5")
A("s_waitcnt vmcnt(%d)" % (5 + QT))
STAMP(1)
A("s_branch Llnq")
LB("Lq_first")
if DRY:
    A("s_cmp_lg_u32 s%d, 0" % sIT)
    A("s_cbranch_scc1 Lq_dry")
A("s_waitcnt vmcnt(0) lgkmcnt(0)")
STAMP(2)
lds_arrive(0, vT + 4)
tags()
A("s_or_b32 s%d, s%d, s%d" % (sXCC, sXCC, sTG2))
C("4 helper arrivals (wq tile, xn rows) + 4 main arrivals (coefficients landed, sentinels acknowledged)")
lds_spin(0, 4, vT + 4)
STAMP(6)
LB("Lq_dry")
wqf_reads()
A("s_waitcnt lgkmcnt(0)")
A("s_branch Lq_go")
LB("Lh_qst")
if DRY:
    A("s_cmp_lg_u32 s%d, 0" % sIT)
    A("s_cbranch_scc1 Ldry_done")
STAMP(5)
A("v_mov_b32 v%d, s%d" % (W + 6, sTG1))
A("v_mov_b32 v%d, s%d" % (W + 7, sXCC))
A("buffer_store_dwordx4 %s, v%d, %s, s%d offen%s" % (vr(W + 4, 4), vQST, sr(sWS, 4), sQS, "" if int(OPT.get("fast", 1)) else " sc1"))
A("s_add_u32 s%d, s%d, %s" % (sQS, sQS, hx(QB_DELTA)))
if not QBD: A("buffer_store_dwordx4 %s, v%d, %s, s%d offen sc1" % (vr(W + 4, 4), vQST, sr(sWS, 4), sQS))
A("s_mov_b64 exec, -1")
HR = W + 8
if ADP: lds_arrive(52, 24)
if HP: A("s_setprio 0")
STAMP(3)
A("v_lshlrev_b32 v26, 3, v%d" % vLANE)
lds_spin(24, 4, 24, sleep=1)
for a_ in range(3):
    for k in range(3):
        A("ds_read_b128 %s, v%d offset:%d" % (vr(HR + 14 * a_ + 4 * k, 4), vL16, 4096 * a_ + 1024 * k))
    A("ds_read_b64 %s, v26 offset:%d" % (vr(HR + 14 * a_ + 12, 2), 4096 * a_ + 3072))
for a_, d in [(0, HW1), (14, HB1), (28, HW2)]:
    A("s_waitcnt lgkmcnt(%d)" % (8 - 4 * (a_ // 14)))
    for p in range(14):
        A("v_lshlrev_b32 v%d, 16, v%d" % (d + 2 * p, HR + a_ + p))
        A("v_and_b32 v%d, 0xffff0000, v%d" % (d + 2 * p + 1, HR + a_ + p))
A("s_load_dword s%d, %s, 0" % (sB2, sr(sB2P, 2)))
STAMP(4)
if DIAG:
    A("s_memtime s[42:43]"); A("s_waitcnt lgkmcnt(0)"); A("v_writelane_b32 v30, s42, 13")
LB("Lhl")
if DIAG:
    A("s_memrealtime s[42:43]"); A("s_add_u32 m0, s%d, 10" % sIT); A("s_waitcnt lgkmcnt(0)"); A("v_writelane_b32 v30, s42, m0")
A("s_mov_b32 s%d, s%d" % (sH, sHC)); A("s_mov_b32 s%d, s%d" % (sH + 1, sHC))
A("s_xor_b32 s%d, s%d, 0x80000000" % (sH2, sHC)); A("s_mov_b32 s%d, s%d" % (sH2 + 1, sH2))
U4 = [144, 146, 148, 150]; T4 = [152, 154, 156, 158]; Z4 = [160, 162, 164, 166]
for p2 in range(7):
    ch = [(2 * p2 + k // 2, k & 1) for k in range(4)]
    for k, (p, sg) in enumerate(ch):
        A("v_pk_fma_f32 %s, %s, %s, %s" % (vr(U4[k], 2), vr(HW1 + 2 * p, 2), sr([sH, sH2][sg], 2), vr(HB1 + 2 * p, 2)))
    for k in range(4): A("v_pk_mul_f32 %s, %s, %s" % (vr(T4[k], 2), vr(U4[k], 2), vr(U4[k], 2)))
    for k in range(4): A("v_pk_fma_f32 %s, %s, %s, %s" % (vr(T4[k], 2), vr(T4[k], 2), vr(hK1, 2), vr(hK0, 2)))
    for k in range(4): A("v_pk_mul_f32 %s, %s, %s" % (vr(T4[k], 2), vr(T4[k], 2), vr(U4[k], 2)))
    for k in range(4):
        for h in range(2): A("v_exp_f32 v%d, v%d" % (T4[k] + h, T4[k] + h))
    for k, (p, sg) in enumerate(ch): A("v_pk_mul_f32 %s, %s, %s" % (vr(Z4[k], 2), vr(U4[k], 2), vr(HW2 + 2 * p, 2)))
    for k in range(4): A("v_pk_add_f32 %s, %s, %s" % (vr(T4[k], 2), vr(T4[k], 2), vr(hONE, 2)))
    for k in range(4):
        for h in range(2): A("v_rcp_f32 v%d, v%d" % (T4[k] + h, T4[k] + h))
    for k, (p, sg) in enumerate(ch):
        if p == 0: A("v_pk_mul_f32 %s, %s, %s" % (vr(AC[sg], 2), vr(Z4[k], 2), vr(T4[k], 2)))
        else: A("v_pk_fma_f32 %s, %s, %s, %s" % (vr(AC[sg], 2), vr(Z4[k], 2), vr(T4[k], 2), vr(AC[sg], 2)))
A("v_add_f32 v%d, v%d, v%d" % (AC[0], AC[0], AC[0] + 1))
A("v_add_f32 v%d, v%d, v%d" % (AC[1], AC[1], AC[1] + 1))
A("s_lshl_b32 m0, s%d, 1" % sIT)
A("s_add_u32 s%d, s%d, 0x10000" % (sHC, sHC))
wave_sum2(AC[0], AC[1], sSUM, sSQ)
A("s_add_u32 s%d, s%d, 1" % (sIT, sIT))
A("s_nop 0")
A("v_writelane_b32 v%d, s%d, m0" % (hRES, sSUM))
A("s_add_u32 m0, m0, 1")
A("s_cmp_lg_u32 s%d, %d" % (sIT, EPW))
A("v_writelane_b32 v%d, s%d, m0" % (hRES, sSQ))
A("s_cbranch_scc1 Lhl")
def h_publish(lanes):
    A("v_cvt_pk_bf16_f32 v%d, v%d, v%d" % (hRES, hRES, hRES))
    A("v_and_b32 v%d, 0xffff0000, v%d" % (hRES, hRES))
    A("v_add_f32 v%d, s%d, v%d" % (hRES, sB2, hRES))
    A("v_cvt_pk_bf16_f32 v%d, v%d, v%d" % (hRES, hRES, hRES))
    A("v_and_b32 v%d, 0xffff0000, v%d" % (hRES + 1, hRES))
    A("s_mov_b64 exec, %d" % lanes)
    A("buffer_store_dword v%d, v27, %s, s%d offen sc1" % (hRES + 1, sr(sWS, 4), sHT))
    A("s_mov_b64 exec, -1")
A("s_waitcnt lgkmcnt(0)")
A("s_lshl_b32 s%d, s%d, 16" % (sB2, sB2))
lds_spin(8, 4, 24)
h_publish((1 << (2 * EPW)) - 1)
if QBD:
    C("the write-through copy of q is only needed when the group is not known to sit on one XCD")
    A("ds_read_b32 v24, v%d offset:4" % vFL)
    A("s_waitcnt lgkmcnt(0)")
    A("v_readfirstlane_b32 s%d, v24" % sT0)
    A("s_cmp_eq_u32 s%d, 4" % sT0)
    A("s_cbranch_scc1 Lhqb")
    A("s_mov_b64 exec, %s" % sr(sMSK, 2))
    A("buffer_store_dwordx4 %s, v%d, %s, s%d offen sc1" % (vr(W + 4, 4), vQST, sr(sWS, 4), sQS))
    A("s_mov_b64 exec, -1")
    LB("Lhqb")
STAMP(8)
if XENT:
    A("s_mov_b32 s%d, s%d" % (sH, sHX)); A("s_mov_b32 s%d, s%d" % (sH + 1, sHX))
    for grp in [[0, 1, 2, 3], [4, 5, 6, 7], [8, 9, 10], [11, 12, 13]]:
        n = len(grp)
        for k, p in enumerate(grp): A("v_pk_fma_f32 %s, %s, %s, %s" % (vr(U4[k], 2), vr(HW1 + 2 * p, 2), sr(sH, 2), vr(HB1 + 2 * p, 2)))
        for k in range(n): A("v_pk_mul_f32 %s, %s, %s" % (vr(T4[k], 2), vr(U4[k], 2), vr(U4[k], 2)))
        for k in range(n): A("v_pk_fma_f32 %s, %s, %s, %s" % (vr(T4[k], 2), vr(T4[k], 2), vr(hK1, 2), vr(hK0, 2)))
        for k in range(n): A("v_pk_mul_f32 %s, %s, %s" % (vr(T4[k], 2), vr(T4[k], 2), vr(U4[k], 2)))
        for k in range(n):
            for h in range(2): A("v_exp_f32 v%d, v%d" % (T4[k] + h, T4[k] + h))
        for k, p in enumerate(grp): A("v_pk_mul_f32 %s, %s, %s" % (vr(Z4[k], 2), vr(U4[k], 2), vr(HW2 + 2 * p, 2)))
        for k in range(n): A("v_pk_add_f32 %s, %s, %s" % (vr(T4[k], 2), vr(T4[k], 2), vr(hONE, 2)))
        for k in range(n):
            for h in range(2): A("v_rcp_f32 v%d, v%d" % (T4[k] + h, T4[k] + h))
        for k, p in enumerate(grp):
            if p < 2: A("v_pk_mul_f32 %s, %s, %s" % (vr(AC[p & 1], 2), vr(Z4[k], 2), vr(T4[k], 2)))
            else: A("v_pk_fma_f32 %s, %s, %s, %s" % (vr(AC[p & 1], 2), vr(Z4[k], 2), vr(T4[k], 2), vr(AC[p & 1], 2)))
    A("v_add_f32 v%d, v%d, v%d" % (AC[0], AC[0], AC[0] + 1))
    A("v_add_f32 v%d, v%d, v%d" % (AC[1], AC[1], AC[1] + 1))
    A("v_add_f32 v%d, v%d, v%d" % (AC[0], AC[0], AC[1]))
    A("s_nop 1")
    wave_sum2(AC[0], AC[1], sSUM, sSQ)
    A("s_nop 1")
    A("v_mov_b32 v%d, s%d" % (hRES, sSUM))
    A("v_cvt_pk_bf16_f32 v%d, v%d, v%d" % (hRES, hRES, hRES))
    A("v_and_b32 v%d, 0xffff0000, v%d" % (hRES, hRES))
    A("v_add_f32 v%d, s%d, v%d" % (hRES, sB2, hRES))
    A("v_cvt_pk_bf16_f32 v%d, v%d, v%d" % (hRES, hRES, hRES))
    A("v_and_b32 v%d, 0xffff0000, v%d" % (hRES, hRES))
    C("the last of the four helpers stores the workgroup's four extra entries with one instruction")
    A("s_lshl_b32 s%d, s%d, 2" % (sT0, sW))
    A("v_add_u32 v16, s%d, v%d" % (sT0, vFL))
    A("v_mov_b32 v17, 1")
    A("s_mov_b64 exec, 1")
    A("ds_write_b32 v16, v%d offset:32" % hRES)
    A("s_waitcnt lgkmcnt(0)")
    A("ds_add_rtn_u32 v18, v%d, v17 offset:28" % vFL)
    A("s_waitcnt lgkmcnt(0)")
    A("v_readfirstlane_b32 s%d, v18" % sT0)
    A("s_cmp_lg_u32 s%d, 3" % sT0)
    A("s_cbranch_scc1 Lhx_end")
    A("ds_read_b128 v[20:23], v%d offset:32" % vFL)
    A("s_lshl_b32 s%d, s2, 4" % sT0)
    A("v_mov_b32 v16, s%d" % sT0)
    A("s_waitcnt lgkmcnt(0)")
    A("buffer_store_dwordx4 v[20:23], v16, %s, s%d offen sc1" % (sr(sWS, 4), sHT))
    LB("Lhx_end")
    A("s_mov_b64 exec, -1")
if DIAG:
    A("s_memtime s[42:43]"); A("s_waitcnt lgkmcnt(0)"); A("v_writelane_b32 v30, s42, 14")
    STAMP(15)
STAMP(7)
C("stand in at the two barriers of the second layer, so that they do not wait for this wave's store acknowledgements")
A("s_barrier")
A("s_barrier")
if DIAG:
    A("s_add_u32 s%d, s%d, 4" % (sW, sW))
    A("v_mov_b32 v28, v30")
    A("s_branch Lfin_exit")
A("s_endpgm")

LB("Lmain")
for s, off in [(sWS, 96), (sV, 16), (sWO, 32), (sOUT, 80), (sX, 0), (sB2P, 72)]:
    A("s_load_dwordx2 %s, s[0:1], %d" % (sr(s, 2), off))
if DIAG == 2: A("s_load_dwordx2 s[100:101], s[0:1], 88")
srd(sWS, WS_SZ)
for s in [sW1, sB1, sW2]: srd(s, 3584)
A("s_lshl_b32 s%d, s%d, 10" % (sT3, sW))
A("s_barrier")
for i in range(D0, DC): kv_issue(i)
A("s_mov_b32 m0, s%d" % sT3)
for i, sd in enumerate([sW1, sB1, sW2]):
    if i: A("s_addk_i32 m0, 0x1000")
    A("s_nop 0")
    A("buffer_load_dwordx4 v%d, %s, s%d offen lds" % (vL16, sr(sd, 4), sT3))
for i in range(DC, D1): kv_issue(i)
for i in range(4): A("v_mov_b32 v%d, -1" % (W + i))
A("s_lshl_b32 s%d, s%d, 17" % (sGR, sJ))
A("s_mov_b32 s%d, s%d" % (sT1, sM))
A("s_waitcnt lgkmcnt(0)")
A("s_load_dword s%d, %s, %s" % (sE, sr(sWS, 2), hx(EPO)))
STAMP(11)
for s, n in [(sV, 1 << 25), (sX, 4096), (sWO, 1 << 22), (sOUT, 4096)]: srd(s, n)
A("v_lshlrev_b32 v18, 1, v16")
A("v_xor_b32 v18, v17, v18")
A("v_lshlrev_b32 v18, 4, v18")
A("v_lshl_add_u32 v%d, v16, 8, v18" % vVA)
if ROT:
    A("s_and_b32 s%d, s%d, 1" % (sT0, sC))
    A("s_lshl_b32 s%d, s%d, 7" % (sT0, sT0))
    A("v_xor_b32 v%d, s%d, v%d" % (vVA, sT0, vVA))
A("v_xor_b32 v%d, 128, v%d" % (vVA + 1, vVA))
C("late sentinels: wave 0,1: group region ; wave 2: P chunk")
A("s_lshr_b32 s%d, s2, 3" % sT1)
A("s_mul_i32 s%d, s%d, %d" % (sT1, sT1, CLRB_PER))
A("s_lshl_b32 s%d, s%d, 10" % (sT0, sW))
A("s_add_u32 s%d, s%d, s%d" % (sT1, sT1, sT0))
A("s_add_u32 s%d, s%d, s%d" % (sT1, sT1, sGR))
A("s_add_u32 s%d, s%d, %d" % (sT1, sT1, CLRB_OFF))
A("s_lshl_b32 s%d, s2, 10" % sT0)
A("s_add_u32 s%d, s%d, %s" % (sT0, sT0, hx(PB)))
A("s_cmp_ge_u32 s%d, 2" % sW)
A("s_cselect_b32 s%d, s%d, s%d" % (sT1, sT0, sT1))
A("s_bfm_b64 %s, %d, 0" % (sr(sH, 2), (CLRB_PER - 1024) // 16))
A("s_cmp_eq_u32 s%d, 1" % sW)
A("s_cselect_b64 %s, %s, -1" % (sr(sH, 2), sr(sH, 2)))
NCL = NOCT * 4 // 16
A("v_mov_b32 v19, v%d" % vL16)
A("s_cmp_lg_u32 s%d, 3" % sW)
A("s_cbranch_scc1 Lm_c3")
C("wave 3: this workgroup's table slots")
A("s_mul_i32 s%d, s2, %d" % (sT0, NOCT * 4))
A("s_add_u32 s%d, s%d, %d" % (sT0, sT0, XENT * 4))
A("v_add_u32 v19, s%d, v19" % sT0)
A("s_lshl_b32 s%d, s2, 4" % sT0)
if XENT: A("v_writelane_b32 v19, s%d, %d" % (sT0, NCL))
A("s_mov_b32 s%d, %s" % (sT1, hx(TB)))
A("s_mov_b64 %s, %d" % (sr(sH, 2), (1 << (NCL + (1 if XENT else 0))) - 1))
LB("Lm_c3")
A("s_mov_b64 exec, %s" % sr(sH, 2))
A("buffer_store_dwordx4 %s, v19, %s, s%d offen sc1" % (vr(W, 4), sr(sWS, 4), sT1))
A("s_mov_b64 exec, -1")

common_addr()
A("s_add_u32 s%d, s%d, s%d" % (sQS, sQS, sGR))
A("s_add_u32 s%d, s%d, %d" % (sQS, sQS, Q1_OFF))
wtile_voff(10, 22)
A("v_and_b32 v19, 7, v%d" % vLANE)
A("v_lshrrev_b32 v25, 2, v%d" % vLANE)
A("v_lshlrev_b32 v25, 7, v25")
A("v_lshl_add_u32 v%d, v18, 2, v25" % vOST)
A("v_lshlrev_b32 v25, 7, v16")
A("v_lshl_add_u32 v%d, v19, 4, v25" % vOLD)
C("lanes n>=8 of the first two o loads fetch the lse values instead: offset relative to the o block")
A("s_mul_i32 s%d, s%d, %d" % (sT0, sA, 128 - 8192))
A("s_mul_i32 s%d, s%d, %d" % (sT1, sW, 32 - 2048))
A("s_add_u32 s%d, s%d, s%d" % (sT0, sT0, sT1))
A("s_add_u32 s%d, s%d, %d" % (sT0, sT0, LSE_OFF[0] - O_OFF[0]))
A("v_add_u32 v25, s%d, v%d" % (sT0, vLSE))
A("v_xor_b32 v26, 16, v25")
A("v_add_u32 v26, -512, v26")
A("v_cmp_gt_u32 vcc, 8, v17")
A("s_nop 1")
A("v_cndmask_b32 v%d, v25, v%d, vcc" % (vLSE, vOLD))
A("v_cndmask_b32 v%d, v26, v%d, vcc" % (vLS2, vOLD))
A("v_lshlrev_b32 v%d, 1, v%d" % (vPST, vLANE))
A("v_lshlrev_b32 v25, 3, v16")
A("v_lshl_add_u32 v%d, v19, 4, v25" % vX1S)
A("s_mul_i32 s%d, s%d, %d" % (sT0, sW, RBS))
A("s_add_u32 s%d, s%d, %d" % (sT0, sT0, L_RB))
A("v_mul_u32_u24 v25, 528, v18")
A("v_lshl_add_u32 v25, v16, 4, v25")
A("v_lshrrev_b32 v26, 2, v17")
A("v_lshl_add_u32 v25, v26, 7, v25")
A("v_add_u32 v%d, s%d, v25" % (vRBW, sT0))
A("s_mul_i32 s%d, s%d, 528" % (sT0, sW))
A("s_add_u32 s%d, s%d, %d" % (sT0, sT0, L_RB))
A("v_lshlrev_b32 v25, 3, v%d" % vLANE)
A("v_add_u32 v%d, s%d, v25" % (vRBR, sT0))
A("s_lshl_b32 s%d, s%d, 3" % (sT0, sW))
A("s_add_u32 s%d, s%d, %d" % (sT0, sT0, L_ML))
A("v_lshlrev_b32 v25, 5, v18")
A("v_add_u32 v%d, s%d, v25" % (vMLW, sT0))
A("s_lshl_b32 s%d, s%d, 5" % (sT0, sW))
A("s_add_u32 s%d, s%d, %d" % (sT0, sT0, L_ML))
A("v_mov_b32 v%d, s%d" % (vMLR, sT0))
A("v_mov_b32 v25, 0x3f80")
A("v_mov_b32 v26, 0x3f800000")
for r in range(4):
    A("v_cmp_eq_u32 vcc, %d, v17" % (2 * r))
    A("v_cmp_eq_u32 %s, %d, v17" % (sr(sH, 2), 2 * r + 1))
    A("s_nop 0")
    A("v_cndmask_b32 v%d, 0, v25, vcc" % (SEL + r))
    A("v_cndmask_b32 v%d, v%d, v26, %s" % (SEL + r, SEL + r, sr(sH, 2)))
for i in range(16): A("v_mov_b32 v%d, 0" % (PM + i))
for p in range(4):
    A("s_mov_b32 s%d, %s" % (sPM + 2 * p, hx(0x000f000f << (4 * p))))
    A("s_mov_b32 s%d, %s" % (sPM + 2 * p + 1, hx(0x000f000f << (4 * p))))
soff(sOS, [(sW, 13), (sA, 11), (sC, 4), (sJ, 17)], O_OFF[0])
soff(sOL, [(sA, 13), (sW, 11), (sJ, 17)], O_OFF[0])
A("s_add_u32 s%d, s%d, %s" % (sQL, sOL, hx(Q0_OFF - O_OFF[0])))
soff(sLS, [(sW, 7), (sA, 5), (sC, 2), (sJ, 17)], LSE_OFF[0])
soff(sPS, [(sW, 15), (sC, 12), (sJ, 9), (sA, 7)], PB)
A("s_mov_b32 s%d, %s" % (sSC, hx(f2u(128 ** -0.5 * math.log2(math.e)))))
A("s_getreg_b32 s%d, hwreg(HW_REG_XCC_ID, 0, 3)" % sXCC)
A("v_xor_b32 v24, v16, v17")
A("v_lshlrev_b32 v24, 4, v24")
A("v_lshl_add_u32 v24, v17, 8, v24")
A("s_lshl_b32 s%d, s%d, 13" % (sT1, sW))
A("s_add_u32 s%d, s%d, %d" % (sT2, sT1, L_K))
for t in range(4): A("v_xor_b32 v%d, %d, v24" % (18 + t, 64 * t))
for t in range(4): A("v_add_u32 v%d, s%d, v%d" % (18 + t, sT2, 18 + t))
VA = W + 32
A("v_lshrrev_b32 v24, 2, v%d" % vLANE)
A("v_and_b32 v25, 7, v24")
A("v_lshlrev_b32 v25, 1, v25")
A("v_bfe_u32 v26, v%d, 1, 1" % vLANE)
A("v_xor_b32 v25, v25, v26")
A("v_lshlrev_b32 v25, 4, v25")
A("v_lshl_add_u32 v25, v24, 8, v25")
A("v_and_b32 v26, 1, v%d" % vLANE)
A("v_lshl_add_u32 v25, v26, 3, v25")
A("s_add_u32 s%d, s%d, %d" % (sT2, sT1, L_V))
for t in range(8): A("v_xor_b32 v%d, %d, v25" % (VA + t, 32 * t))
for t in range(8): A("v_add_u32 v%d, s%d, v%d" % (VA + t, sT2, VA + t))
soff(sT4, [(sJ, 19), (sA, 17), (sW, 15), (sC, 7)], 0)
A("s_lshl_b32 s%d, s%d, 12" % (sT5, sW))
A("s_add_u32 s%d, s%d, %d" % (sT5, sT5, L_WO))
soff(sT3, [(sA, 10), (sC, 7)], 0)
A("v_lshlrev_b32 v24, 5, v%d" % vLANE)
A("s_lshl_b32 s%d, s%d, 10" % (sT2, sW))
A("s_add_u32 s%d, s%d, %d" % (sT2, sT2, L_QF))
A("v_add_u32 v25, s%d, v%d" % (sT2, vL16))
A("v_add_u32 v26, %d, v%d" % (L_QF, vL16))
STAMP(12)
if DIAG: A("v_mov_b32 v31, v30")
QP = W
def q0_issue(QP=QP):
    A("buffer_load_dwordx4 %s, v24, %s, s%d offen sc1" % (vr(QP, 4), sr(sWS, 4), sQL))
    A("buffer_load_dwordx4 %s, v24, %s, s%d offen offset:16 sc1" % (vr(QP + 4, 4), sr(sWS, 4), sQL))
def flag_block():
    if True:
        A("s_cmp_lg_u32 s%d, 0" % sW)
        A("s_cbranch_scc1 Lnoflag")
        C("every sentinel store of this workgroup is acknowledged: announce it")
        lds_spin(8, 4, vT)
        A("v_mov_b32 v16, s%d" % sTG1)
        A("v_mov_b32 v17, s%d" % sXCC)
        soff(sT1, [(2, 4)], FB)
        A("v_mov_b32 v21, 0")
        A("s_mov_b64 exec, 1")
        A("buffer_store_dwordx2 v[16:17], v21, %s, s%d offen sc1" % (sr(sWS, 4), sT1))
        A("s_mov_b64 exec, -1")
        LB("Lnoflag")
C("coefficients landed -> tell the helpers")
young = D1 - DC + 1
told = False
if ECO:
    A("s_waitcnt vmcnt(%d)" % young); lds_arrive(24, vT); told = True
A("s_mov_b32 s%d, 0" % sY)
for i in range(D1, 16):
    dp = DEPTH if i < TAILI else TAILD
    extra = 1 if i == 16 - QV else 0
    if ADP and told:
        C("stay shallow until the helpers have issued their q stores")
        A("s_cmp_lg_u32 s%d, 0" % sY)
        A("s_cbranch_scc1 Ldp%d" % i)
        A("ds_read_b32 v%d, v%d offset:52" % (vT, vFL))
        A("s_waitcnt lgkmcnt(0)")
        A("v_readfirstlane_b32 s%d, v%d" % (sT1, vT))
        A("s_cmp_ge_u32 s%d, 4" % sT1)
        A("s_cselect_b32 s%d, 1, 0" % sY)
        A("s_cbranch_scc1 Ldp%d" % i)
        A("s_waitcnt vmcnt(%d)" % (dp - 1 - 2 * extra))
        LB("Ldp%d" % i)
        A("s_waitcnt vmcnt(%d)" % (ADP - 1 - 2 * extra))
        if extra: q0_issue(); young += 2
    else:
        if extra:
            A("s_waitcnt vmcnt(%d)" % (dp - 2)); q0_issue(); young += 2
            if DIAG:
                A("s_memrealtime s[42:43]"); A("s_waitcnt lgkmcnt(0)"); A("v_writelane_b32 v31, s42, 9")
        if QV2 and i == 16 - QV2:
            A("s_waitcnt vmcnt(%d)" % (dp - 2)); q0_issue(XR); young += 2
        A("s_waitcnt vmcnt(%d)" % (dp - 1))
    if not told and young >= dp - 1:
        lds_arrive(24, vT); told = True
    kv_issue(i); young += 1
assert told
q0_issue(QP + 8)
C("everything older than the V loads is complete: K, late sentinels")
A("s_waitcnt vmcnt(%d)" % (14 if QV2 else 12))
lds_arrive(8, vT)
A("s_waitcnt lgkmcnt(0)")
tags()
A("s_or_b32 s%d, s%d, s%d" % (sXCC, sXCC, sTG2))
STAMP(1)
for t in range(4):
    for T in range(2):
        A("ds_read_b128 %s, v%d offset:%d" % (vr(KF + 16 * T + 4 * t, 4), 18 + t, 4096 * T))
flag_block()
def wait_w0(n):
    uid[0] += 1
    A("s_cmp_eq_u32 s%d, 0" % sW)
    A("s_cbranch_scc1 Lww%d" % uid[0])
    A("s_waitcnt vmcnt(%d)" % n)
    LB("Lww%d" % uid[0])
    A("s_waitcnt vmcnt(%d)" % (n + 1))
wait_w0(QV + 2 + (2 if QV2 else 0))
STAMP(2)
A("s_setprio 2")
A("s_mov_b32 s%d, %s" % (sCNT, hx(SPIN)))
A("s_mov_b32 s%d, 0" % sY)
A("s_mov_b32 s%d, 0" % sIT)
LB("Lmq")
A("v_and_b32 v16, -8, v%d" % (QP + 3))
A("v_and_b32 v17, -8, v%d" % (QP + 7))
A("v_cmp_ne_u32 vcc, s%d, v%d" % (sTG1, QP + 2))
A("v_cmp_ne_u32 %s, s%d, v%d" % (sr(sRET, 2), sTG1, QP + 6))
A("s_or_b64 vcc, vcc, %s" % sr(sRET, 2))
A("v_cmp_ne_u32 %s, s%d, v16" % (sr(sRET, 2), sTG2))
A("s_or_b64 vcc, vcc, %s" % sr(sRET, 2))
A("v_cmp_ne_u32 %s, s%d, v17" % (sr(sRET, 2), sTG2))
A("s_or_b64 vcc, vcc, %s" % sr(sRET, 2))
if not int(OPT.get("nochk", 0)): A("s_cbranch_vccnz Lmqr")
LB("Lmqd")
if DIAG:
    A("s_sub_u32 s%d, s%d, s%d" % (sT0, sCNT, sY)); A("v_writelane_b32 v31, s%d, 0" % sT0)
Ls = L; L = []
L.append(".p2align 6"); LB("Lst_mq"); A("s_setpc_b64 %s" % sr(sRET, 2))
LB("Lmqr")
A("s_cmp_lg_u32 s%d, 0" % sY)
A("s_cbranch_scc1 Lmqr2")
if QV2:
    A("s_cmp_lg_u32 s%d, 0" % sIT)
    A("s_cbranch_scc1 Lmqr1")
    A("s_mov_b32 s%d, 1" % sIT)
    wait_w0(QV2 + 2)
    for k in range(8): A("v_mov_b32 v%d, v%d" % (QP + k, XR + k))
    A("s_branch Lmq")
    LB("Lmqr1")
C("first look failed: take the second one (V has landed with it: request its fragments now)")
A("s_waitcnt vmcnt(0)")
A("s_mov_b32 s%d, 1" % sY)
for k in range(8): A("v_mov_b32 v%d, v%d" % (QP + k, QP + 8 + k))
if not VLATE:
    for t in range(8):
        for hf in range(2):
            A("ds_read_b64_tr_b16 %s, v%d offset:%d" % (vr(VF + 4 * t + 2 * hf, 2), VA + t, 4096 * hf))
A("s_branch Lmq")
LB("Lmqr2")
C("still not there: poll the plain copy a few times, then both copies in turn")
A("s_cmp_le_u32 s%d, %s" % (sCNT, hx(SPIN - 6)))
A("s_cselect_b32 s%d, %s, 0" % (sT0, hx(QB_DELTA)))
A("s_xor_b32 s%d, s%d, s%d" % (sQL, sQL, sT0))
q0_issue()
A("s_waitcnt vmcnt(0)")
A("s_sub_u32 s%d, s%d, 1" % (sCNT, sCNT))
A("s_cbranch_scc0 Lmq")
A("s_branch Lmqd")
ool.append(L); L = Ls
A("v_cmp_ne_u32 vcc, s%d, v%d" % (sXCC, QP + 3))
A("v_mov_b32 v%d, v%d" % (QP + 2, QP + 4))
A("v_mov_b32 v%d, v%d" % (QP + 3, QP + 5))
A("ds_write_b128 v25, %s" % vr(QP, 4))
A("s_cmp_eq_u64 vcc, 0")
A("s_cselect_b32 s%d, 1, 0x101" % sT0)
A("v_mov_b32 v16, s%d" % sT0)
A("s_waitcnt lgkmcnt(0)")
lds_arrive(4, 16, None)
if VLATE:
    A("s_cmp_eq_u32 s%d, 0" % sY)
    A("s_cbranch_scc1 Lnvf")
    for t in range(8):
        for hf in range(2):
            A("ds_read_b64_tr_b16 %s, v%d offset:%d" % (vr(VF + 4 * t + 2 * hf, 2), VA + t, 4096 * hf))
    LB("Lnvf")
STAMP(15)
A("buffer_load_dwordx2 %s, v%d, %s, s%d offen" % (vr(RES + 2, 2), vX1S, sr(sX, 4), sT3))
FLG = W + 44
soff(sIT, [(sW, 10)], FB)
soff(sQL, [(sA, 12), (sJ, 17)], Q1_OFF)
for k in range(4):
    A("s_add_u32 s%d, s%d, %d" % (sT0, sC, k))
    A("s_and_b32 s%d, s%d, 3" % (sT0, sT0))
    A("s_lshl_b32 s%d, s%d, 10" % (sKO + k, sT0))
A("s_and_b32 s%d, s%d, 1" % (sT0, sC))
A("s_lshl_b32 s%d, s%d, 6" % (sT0, sT0))
A("v_xor_b32 v22, s%d, v22" % sT0); A("v_xor_b32 v23, s%d, v23" % sT0)
A("s_lshl_b32 s%d, s%d, 2" % (sT3, sM))
A("s_add_u32 s%d, s%d, s%d" % (sT3, sT3, sW))
A("s_lshl_b32 s%d, s%d, 8" % (sT3, sT3))
A("v_lshlrev_b32 v21, 7, v%d" % vLANE)
A("v_add_u32 v21, s%d, v21" % sT3)
A("s_lshl_b32 s%d, s%d, 7" % (sT0, sW))
A("s_add_u32 s%d, s%d, %d" % (sT0, sT0, LSE_OFF[0]))
A("v_writelane_b32 v21, s%d, 2" % sT0)
lds_spin(4, 4, vT, mask=0xff)
A("s_cmp_lt_u32 s%d, 256" % sT1)
A("s_cselect_b32 s%d, %d, 0" % (sFAST, int(OPT.get("fast", 1))))
QF = W + 16
for t in range(4):
    A("ds_read_b128 %s, v26 offset:%d" % (vr(QF + 4 * t, 4), 1024 * t))
S = W
qk = []
for t in range(4):
    for T in range(2):
        qk.append(mf(S + 4 * T, KF + 16 * T + 4 * t, QF + 4 * t, None if t == 0 else S + 4 * T))
for t in range(4):
    A("s_waitcnt lgkmcnt(%d)" % (3 - t))
    A(qk[2 * t]); A(qk[2 * t + 1])
def wo_issue():
    C("every wave holds its K fragments: the wo tile may land in the K area")
    for k in range(4):
        A("s_add_u32 m0, s%d, s%d" % (sT5, sKO + k))
        A("s_lshl3_add_u32 s%d, s%d, s%d" % (sT0, sKO + k, sT4))
        A("buffer_load_dwordx4 v%d, %s, s%d offen nt lds" % (22 + (k & 1), sr(sWO, 4), sT0))
if WOP == 0: wo_issue()
if PRET:
    C("bring the first layer's o / lse lines (their sentinels are in place) into L2")
    A("s_mov_b64 exec, 7")
    A("buffer_load_dword v%d, v21, %s, s%d offen sc1" % (W + 40, sr(sWS, 4), sGR))
    A("s_mov_b64 exec, -1")
STAMP(3)
A("s_branch Lk_go")

LB("Llnq")
C("LayerNorm of the row held in XR, then q partial = xn @ wq tile")
X = W
row_stats(XR, vT, X)
A("v_add_f32 v%d, %s, v%d" % (vT + 1, EPS, vT + 1))
A("v_rsq_f32 v%d, v%d" % (vT + 2, vT + 1))
A("s_cmp_eq_u32 s%d, 0" % sLAY)
A("v_mul_f32 v%d, v%d, v%d" % (vT + 3, vT, vT + 2))
for i in range(4):
    A("v_pk_fma_f32 %s, %s, %s, %s op_sel:[0,0,1] op_sel_hi:[1,0,1] neg_lo:[0,0,1] neg_hi:[0,0,1]" % (vr(X + 2 * i, 2), vr(X + 2 * i, 2), vr(vT + 2, 2), vr(vT + 2, 2)))
for i in range(4):
    A("v_cvt_pk_bf16_f32 v%d, v%d, v%d" % (X + 8 + i, X + 2 * i, X + 2 * i + 1))
A("ds_write_b128 v%d, %s" % (vXNW, vr(X + 8, 4)))
A("s_cbranch_scc1 Lq_first")
A("s_waitcnt lgkmcnt(0)")
A("s_barrier")
LB("Lq_go")
BF = W + 16
for t in range(4):
    A("ds_read_b128 %s, v%d offset:%d" % (vr(BF + 4 * t, 4), vXNR, 64 * t))
for t in range(4):
    A("s_waitcnt lgkmcnt(%d)" % (3 - t))
    mfma(W, WQF + 4 * t, BF + 4 * t, None if t == 0 else W)
A("s_cmp_eq_u32 s%d, 0" % sLAY)
A("s_mov_b64 exec, %s" % sr(sMSK, 2))
NOP(6)
A("v_cvt_pk_bf16_f32 v%d, v%d, v%d" % (W + 4, W, W + 1))
A("v_cvt_pk_bf16_f32 v%d, v%d, v%d" % (W + 5, W + 2, W + 3))
A("s_cbranch_scc1 Lh_qst")
fastcmp()
store_local("buffer_store_dwordx2", vr(W + 4, 2), vQST, sQS)
A("s_mov_b64 exec, -1")
A("ds_write_b128 v%d, %s offset:%d" % (vXNW, vr(XR, 4), L_X2 - L_XN))
A("s_mov_b32 s%d, 0" % sY)
for s, d in [(sOL, O_OFF[1] - O_OFF[0]), (sOS, O_OFF[1] - O_OFF[0]), (sLS, LSE_OFF[1] - LSE_OFF[0]), (sPS, P_L)]:
    A("s_add_u32 s%d, s%d, %d" % (s, s, d))
STAMP(2)

C("attention over this workgroup's 128 keys")
if QS:
    C("each wave fetches one k-step of q and shares it through LDS")
    A("s_lshl_b32 s%d, s%d, 10" % (sT3, sW))
    A("s_add_u32 s%d, s%d, s%d" % (sT4, sQL, sT3))
    A("s_add_u32 s%d, s%d, %d" % (sT3, sT3, L_RB + 12288))
    A("v_add_u32 v25, s%d, v%d" % (sT3, vL16))
    A("v_add_u32 v26, %d, v%d" % (L_RB + 12288, vL16))
    ppoll(lambda k: A("buffer_load_dwordx4 %s, v%d, %s, s%d offen sc1" % (vr(W + 32 + 4 * k, 4), vL16, sr(sWS, 4), sT4)),
          lambda k: range(W + 32 + 4 * k, W + 36 + 4 * k), 1, vT, lambda k: ["ds_write_b128 v25, %s" % vr(W + 32 + 4 * k, 4)], pre=QPRE, gap=QGAP, tag=0)
    A("s_waitcnt lgkmcnt(0)")
    A("s_barrier")
    for t in range(4):
        A("ds_read_b128 %s, v26 offset:%d" % (vr(QF + 4 * t, 4), 1024 * t))
    for t in range(4):
        A("s_waitcnt lgkmcnt(%d)" % (3 - t))
        A(qk[2 * t]); A(qk[2 * t + 1])
    touch_stub("k")
else:
    def iq(k):
        for t in range(4):
            A("buffer_load_dwordx4 %s, v%d, %s, s%d offen offset:%d sc1" % (vr(QF + 16 * k + 4 * t, 4), vL16, sr(sWS, 4), sQL, 1024 * t))
    def qks(k):
        return [mf(S + 4 * T, KF + 16 * T + 4 * t, QF + 16 * k + 4 * t, None if t == 0 else S + 4 * T) for t in range(4) for T in range(2)]
    ppoll(iq, lambda k: range(QF + 16 * k, QF + 16 * k + 16), 4, vT, qks, pre=QPRE, gap=QGAP, tag=0, stub="k", per_load=lambda k, i: qks(k)[2 * i:2 * i + 2])
STAMP(3)
LB("Lk_go")
NOP(5)
for ctl in ["row_ror:4", "row_ror:8"]:
    for i in range(8):
        A("v_add_f32_dpp v%d, v%d, v%d %s row_mask:0xf bank_mask:0xf" % (S + i, S + i, S + i, ctl))
A("v_max3_f32 v%d, v%d, v%d, v%d" % (vT, S, S + 1, S + 2))
A("v_max3_f32 v%d, v%d, v%d, v%d" % (vT + 1, S + 3, S + 4, S + 5))
A("v_max3_f32 v%d, v%d, v%d, v%d" % (vT, vT, S + 6, S + 7))
A("v_max_f32 v%d, v%d, v%d" % (vT, vT, vT + 1))
A("v_mov_b32 v%d, v%d" % (vT + 1, vT))
A("s_nop 1")
A("v_permlane16_swap_b32 v%d, v%d" % (vT, vT + 1))
A("v_max_f32 v%d, v%d, v%d" % (vT, vT, vT + 1))
A("v_mov_b32 v%d, v%d" % (vT + 1, vT))
A("s_nop 1")
A("v_permlane32_swap_b32 v%d, v%d" % (vT, vT + 1))
A("v_max_f32 v%d, v%d, v%d" % (vT, vT, vT + 1))
A("v_mul_f32 v%d, s%d, v%d" % (vT + 2, sSC, vT))
for i in range(8):
    A("v_fma_f32 v%d, v%d, s%d, -v%d" % (S + i, S + i, sSC, vT + 2))
for i in range(8):
    A("v_exp_f32 v%d, v%d" % (S + i, S + i))
for p in range(4):
    A("s_mov_b64 exec, %s" % sr(sPM + 2 * p, 2))
    for i in range(4):
        A("v_cvt_pk_bf16_f32 v%d, v%d, v%d" % (PM + 4 * p + i, S + 2 * i, S + 2 * i + 1))
A("s_mov_b64 exec, -1")
STAMP(4)
A("s_cmp_lg_u32 s%d, 0" % sLAY)
A("s_cbranch_scc1 Lv_go")
wait_w0((5 if WOP == 0 else 1) + PRET)
if WOP == 1: wo_issue()
A("buffer_load_dwordx4 %s, v%d, %s, s%d offen sc1" % (vr(FLG, 4), vL16, sr(sWS, 4), sIT))
STAMP(6)
A("s_cmp_lg_u32 s%d, 0" % sY)
A("s_cbranch_scc1 Lv_have")
for t in range(8):
    for hf in range(2):
        A("ds_read_b64_tr_b16 %s, v%d offset:%d" % (vr(VF + 4 * t + 2 * hf, 2), VA + t, 4096 * hf))
A("s_waitcnt lgkmcnt(0)")
LB("Lv_have")
if TOT:
    A("s_memrealtime s[42:43]"); A("s_waitcnt lgkmcnt(0)"); A("s_mov_b32 s97, s42")
A("s_cmp_lg_u32 s%d, 0" % sLAY)
LB("Lv_go")
OA = W + 8
mfma(W + 16, ONES, PM, None)
for p in range(4):
    for T in range(2):
        mfma(OA + 4 * T, VF + 4 * (2 * p + T), PM + 4 * p, None if p == 0 else OA + 4 * T)
A("s_mov_b64 exec, %s" % sr(sMSK, 2))
A("v_mov_b32 v%d, v%d" % (vT + 3, W + 16))
A("ds_write_b64 v%d, %s" % (vMLW, vr(vT + 2, 2)))
A("s_mov_b64 exec, -1")
NOP(3)
A("ds_write_b128 v%d, %s" % (vRBW, vr(OA, 4)))
A("ds_write_b128 v%d, %s offset:64" % (vRBW, vr(OA + 4, 4)))
A("s_waitcnt lgkmcnt(0)")
A("s_cbranch_scc1 Lrb_bar")
lds_arrive(12, vT + 4)
if WOP == 2: wo_issue()
lds_spin(12, 4, vT + 4)
A("s_branch Lrb_go")
LB("Lrb_bar")
A("s_barrier")
LB("Lrb_go")
A("ds_read_b128 %s, v%d" % (vr(W, 4), vMLR))
A("ds_read_b128 %s, v%d offset:16" % (vr(W + 4, 4), vMLR))
for w in range(4):
    A("ds_read_b64 %s, v%d offset:%d" % (vr(W + 8 + 2 * w, 2), vRBR, RBS * w))
A("v_mov_b32 v%d, 0" % (vT + 4))
fastcmp()
A("s_waitcnt lgkmcnt(4)")
A("v_max3_f32 v%d, v%d, v%d, v%d" % (vT, W, W + 2, W + 4))
A("v_max_f32 v%d, v%d, v%d" % (vT, vT, W + 6))
for w in range(4): A("v_sub_f32 v%d, v%d, v%d" % (W + 2 * w, W + 2 * w, vT))
for w in range(4): A("v_exp_f32 v%d, v%d" % (W + 2 * w, W + 2 * w))
A("v_mul_f32 v%d, v%d, v%d" % (vT + 1, W, W + 1))
for w in range(1, 4): A("v_fmac_f32 v%d, v%d, v%d" % (vT + 1, W + 2 * w, W + 2 * w + 1))
A("s_waitcnt lgkmcnt(0)")
A("v_pk_mul_f32 %s, %s, %s op_sel_hi:[1,0]" % (vr(W + 8, 2), vr(W + 8, 2), vr(W, 2)))
A("v_rcp_f32 v%d, v%d" % (vT + 2, vT + 1))
A("v_pk_fma_f32 %s, %s, %s, %s op_sel_hi:[1,0,1]" % (vr(W + 8, 2), vr(W + 10, 2), vr(W + 2, 2), vr(W + 8, 2)))
A("v_log_f32 v%d, v%d" % (vT + 5, vT + 1))
for w in range(2, 4):
    A("v_pk_fma_f32 %s, %s, %s, %s op_sel_hi:[1,0,1]" % (vr(W + 8, 2), vr(W + 8 + 2 * w, 2), vr(W + 2 * w, 2), vr(W + 8, 2)))
A("v_pk_mul_f32 %s, %s, %s op_sel_hi:[1,0]" % (vr(W + 8, 2), vr(W + 8, 2), vr(vT + 2, 2)))
A("v_add_f32 v%d, v%d, v%d" % (vT + 5, vT + 5, vT))
A("v_cvt_pk_bf16_f32 v%d, v%d, v%d" % (W + 8, W + 8, W + 9))
store_local("buffer_store_dword", "v%d" % (W + 8), vOST, sOS)
A("s_mov_b64 exec, 1")
store_local("buffer_store_dword", "v%d" % (vT + 5), vT + 4, sLS)
A("s_mov_b64 exec, -1")
STAMP(5)

C("wo phase: wave = batch, rows = key splits")
OF = W; LS = W + 32; DA = WQF
assert LSE_OFF[1] - O_OFF[1] == LSE_OFF[0] - O_OFF[0]
def io(k):
    for t in range(4):
        A("buffer_load_dwordx4 %s, v%d, %s, s%d offen offset:%d sc1" % (vr(OF + 16 * k + 4 * t, 4), [vLSE, vLS2, vOLD, vOLD][t], sr(sWS, 4), sOL, 512 * t))
A("s_cmp_lg_u32 s%d, 0" % sLAY)
A("s_cbranch_scc1 Lo_go")
C("first layer: wo tile landed -> fragments; every workgroup has announced its clears")
if WOP == 3: wo_issue()
A("s_waitcnt vmcnt(%d)" % (2 if WOP < 3 else 0))
STAMP(13)
A("s_mov_b32 s%d, %s" % (sT4, hx(SPIN)))
LB("Lap")
A("v_and_b32 v24, -8, v%d" % (FLG + 1))
A("v_cmp_ne_u32 vcc, s%d, v%d" % (sTG1, FLG))
A("v_cmp_ne_u32 %s, s%d, v24" % (sr(sH, 2), sTG2))
A("s_or_b64 vcc, vcc, %s" % sr(sH, 2))
A("s_cbranch_vccnz Lar")
LB("Lad")
lds_arrive(16, 24)
for i in range(2):
    A("v_lshlrev_b32 v%d, 16, v%d" % (W + 40 + 2 * i, RES + 2 + i))
    A("v_and_b32 v%d, 0xffff0000, v%d" % (W + 41 + 2 * i, RES + 2 + i))
for i in range(4): A("v_mov_b32 v%d, v%d" % (RES + i, W + 40 + i))
for ct in range(4): A("v_xor_b32 v%d, %d, v%d" % (W + 40 + ct, 32 * ct, vWT))
for ct in range(4): A("v_add_u32 v%d, %d, v%d" % (W + 40 + ct, L_WO, W + 40 + ct))
lds_spin(16, 4, 24)
STAMP(14)
A("s_mov_b32 s%d, 1" % sY)
LB("Lo_go")
A("s_mov_b32 s%d, 0x55555555" % sT4)
A("s_mov_b32 s%d, 0x55555555" % sT5)
def pre_o():
    A("s_cmp_eq_u32 s%d, 0" % sY)
    A("s_cbranch_scc1 Lo_nof")
    A("s_mov_b32 s%d, 0" % sY)
    for t in range(4):
        for ct in range(4):
            for hf in range(2):
                A("ds_read_b64_tr_b16 %s, v%d offset:%d" % (vr(WOF + 16 * ct + 4 * t + 2 * hf, 2), W + 40 + ct, 4096 * t + 512 * hf))
    LB("Lo_nof")
ool.append(["Lar:", "    s_lshl_b32 s%d, s%d, 10" % (sT5, sW), "    s_add_u32 s%d, s%d, %s" % (sT5, sT5, hx(FB)),
            "    buffer_load_dwordx4 %s, v%d, %s, s%d offen sc1" % (vr(FLG, 4), vL16, sr(sWS, 4), sT5),
            "    s_waitcnt vmcnt(0)", "    s_sub_u32 s%d, s%d, 1" % (sT4, sT4), "    s_cbranch_scc0 Lap", "    s_branch Lad"])
C("softmax over the 8 key splits: lanes n>=8 hold own lse in OF[0:3], the other four in OF[4:7]")
vU = vT + 2
def wo_all(k, t):
    o = OF + 16 * k
    m = [mf(DA + 4 * ct, o + 4 * t, WOF + 16 * ct + 4 * t, None if t == 0 else DA + 4 * ct) for ct in range(4)]
    va = ["v_max3_f32 v%d, v%d, v%d, v%d" % (vU, o, o + 1, o + 2), "v_max3_f32 v%d, v%d, v%d, v%d" % (vU + 1, o + 3, o + 4, o + 5),
          "v_max3_f32 v%d, v%d, v%d, v%d" % (vU, vU, o + 6, o + 7), "v_max_f32 v%d, v%d, v%d" % (vU, vU, vU + 1)]
    va += ["v_sub_f32 v%d, v%d, v%d" % (LS + i, o + i, vU) for i in range(4)]
    va += ["v_exp_f32 v%d, v%d" % (LS + i, LS + i) for i in range(4)]
    vb = ["v_mov_b32_dpp v%d, v%d row_ror:8 row_mask:0xf bank_mask:0x3" % (LS + i, LS + i) for i in range(4)]
    vb += ["v_add_f32 v%d, v%d, v%d" % (vU, LS, LS + 1), "v_add_f32 v%d, v%d, v%d" % (vU + 1, LS + 2, LS + 3),
           "v_add_f32 v%d, v%d, v%d" % (vU, vU, vU + 1), "v_mov_b32 v%d, v%d" % (vU + 1, vU)]
    f = {0: [], 1: va[:4], 2: va[4:], 3: vb}[t]
    out = ["s_waitcnt lgkmcnt(%d)" % [15, 15, 8, 0][t]] if t != 1 else []
    for x in m:
        out.append(x)
        for _ in range(2):
            if f: out.append(f.pop(0))
    return out
assert PROG and OGAP < 0
ppoll(io, lambda k: range(OF + 16 * k, OF + 16 * k + 16), 4, vT, None, pre=OPRE, gap=OGAP, mid=pre_o, tag=1, per_load=wo_all)
STAMP(7)
A("v_permlane16_swap_b32 v%d, v%d" % (vU, vU + 1))
A("v_mul_f32 v%d, v%d, v%d" % (DA, DA, LS))
A("v_add_f32 v%d, v%d, v%d" % (vT, vU, vU + 1))
A("v_mul_f32 v%d, v%d, v%d" % (DA + 4, DA + 4, LS))
A("v_rcp_f32 v%d, v%d" % (vT, vT))
A("v_mul_f32 v%d, v%d, v%d" % (DA + 8, DA + 8, LS))
for i in range(1, 4):
    for ct in range(3):
        A("v_fmac_f32 v%d, v%d, v%d" % (DA + 4 * ct, DA + 4 * ct + i, LS + i))
    if i == 1: A("v_mul_f32 v%d, v%d, v%d" % (DA + 12, DA + 12, LS))
for i in range(1, 4): A("v_fmac_f32 v%d, v%d, v%d" % (DA + 12, DA + 12 + i, LS + i))
A("v_permlane16_swap_b32 v%d, v%d" % (DA, DA + 4))
A("s_nop 0")
A("v_permlane16_swap_b32 v%d, v%d" % (DA + 8, DA + 12))
A("v_add_f32 v%d, v%d, v%d" % (DA, DA, DA + 4))
A("v_add_f32 v%d, v%d, v%d" % (DA + 8, DA + 8, DA + 12))
A("s_nop 1")
A("v_permlane32_swap_b32 v%d, v%d" % (DA, DA + 8))
A("v_mul_f32 v%d, v%d, v%d" % (DA, DA, vT))
A("s_cmp_lg_u32 s%d, 0" % sLAY)
A("s_nop 0")
A("v_mov_b32_dpp v%d, v%d quad_perm:[1,0,3,2] row_mask:0xf bank_mask:0xf" % (DA + 1, DA))
A("s_mov_b64 exec, %s" % sr(sT4, 2))
A("v_cvt_pk_bf16_f32 v%d, v%d, v%d" % (DA, DA, DA + 1))
A("buffer_store_dword v%d, v%d, %s, s%d offen sc1" % (DA, vPST, sr(sWS, 4), sPS))
A("s_mov_b64 exec, -1")
STAMP(8)
A("s_cbranch_scc1 Lfinal")

if PRET:
    C("same for the remaining lines of the group's mailboxes")
    soff(sT1, [(sM, 11), (sW, 9), (sJ, 17)], CLRB_OFF)
    A("v_lshlrev_b32 v21, 7, v%d" % vLANE)
    A("s_mov_b64 exec, 15")
    A("buffer_load_dword v%d, v21, %s, s%d offen sc1" % (W + 47, sr(sWS, 4), sT1))
    A("s_mov_b64 exec, -1")
A("s_cmp_lg_u32 s%d, 0" % sW)
A("s_cbranch_scc1 Ltab")
C("stage 1 (wave 0): reduce 32 head partials of 64 outputs, add residual, publish x1 slice")
soff(sT1, [(sA, 15), (sC, 12)], PB)
soff(sT2, [(sA, 10), (sC, 7), (sJ, 17)], X1_OFF)
A("s_mov_b32 s%d, 0x00ff00ff" % sT4)
A("s_mov_b32 s%d, 0" % sT5)
def ip(k):
    for i in range(4):
        A("buffer_load_dwordx4 %s, v%d, %s, s%d offen offset:%d sc1" % (vr(W + 20 * k + 4 * i, 4), vL16, sr(sWS, 4), sT1, 1024 * i))
if GW: A("s_waitcnt vmcnt(0)")
ppoll(ip, lambda k: range(W + 20 * k, W + 20 * k + 16), 4, vT, lambda k: [mf(W + 16, SEL, W + 20 * k + 4 * i, None if i == 0 else W + 16) for i in range(4)], pre=GPRE, gap=GGAP, tag=2,
      per_load=lambda k, i: [mf(W + 16, SEL, W + 20 * k + 4 * i, None if i == 0 else W + 16)])
STAMP(9)
fastcmp()
NOP(3)
for i in range(4):
    A("v_add_f32_dpp v%d, v%d, v%d row_ror:8 row_mask:0xf bank_mask:0xf" % (W + 16 + i, W + 16 + i, W + 16 + i))
A("s_mov_b64 exec, %s" % sr(sT4, 2))
A("v_pk_add_f32 %s, %s, %s" % (vr(W + 16, 2), vr(W + 16, 2), vr(RES, 2)))
A("v_pk_add_f32 %s, %s, %s" % (vr(W + 18, 2), vr(W + 18, 2), vr(RES + 2, 2)))
A("v_cvt_pk_bf16_f32 v%d, v%d, v%d" % (W + 16, W + 16, W + 17))
A("v_cvt_pk_bf16_f32 v%d, v%d, v%d" % (W + 17, W + 18, W + 19))
store_local("buffer_store_dwordx2", vr(W + 16, 2), vX1S, sT2)
A("s_mov_b64 exec, -1")
LB("Ltabdone")
soff(sT3, [(sW, 10), (sJ, 17)], X1_OFF)
def ix(k):
    A("buffer_load_dwordx4 %s, v%d, %s, s%d offen sc1" % (vr([XR, RES][k], 4), vL16, sr(sWS, 4), sT3))
wqf_reads()
ppoll(ix, lambda k: range([XR, RES][k], [XR, RES][k] + 4), 1, vT, lambda k: ["s_waitcnt lgkmcnt(0)", "v_readfirstlane_b32 s%d, v%d" % (sT1, vT + 2)],
      pre=XPRE, gap=XGAP, mid=lambda: A("ds_read_b32 v%d, v%d offset:20" % (vT + 2, vFL)), tag=3,
      fix=["v_mov_b32 v%d, v%d" % (XR + i, RES + i) for i in range(4)])
A("s_cmp_lt_u32 s%d, 3" % sT1)
A("s_cbranch_scc1 Ltw")
LB("Ltwd")
STAMP(10)

LB("Lmix")
C("x <- x + g(LN(LN(x))) ; g is tabulated for every bf16 input in range, evaluated directly otherwise")
X = W; HB = W + 8; RT = W + 12; AD = W + 16; Y = W + 24
row_stats(XR, vT, X)
A("v_add_f32 v%d, %s, v%d" % (vT + 2, EPS, vT + 1))
A("v_rsq_f32 v%d, v%d" % (vT + 2, vT + 2))
A("v_mov_b32 v%d, %s" % (vT + 4, hx(LO2 | (LO2 << 16))))
A("s_movk_i32 s%d, %d" % (sT5, NENT * 4))
A("v_mul_f32 v%d, v%d, v%d" % (vT + 1, vT + 1, vT + 2))
A("v_fmaak_f32 v%d, v%d, v%d, %s" % (vT + 1, vT + 1, vT + 2, EPS))
A("v_rsq_f32 v%d, v%d" % (vT + 1, vT + 1))
A("s_nop 0")
A("v_mul_f32 v%d, v%d, v%d" % (vT + 2, vT + 2, vT + 1))
A("v_mul_f32 v%d, v%d, v%d" % (vT + 3, vT, vT + 2))
for i in range(4):
    A("v_pk_fma_f32 %s, %s, %s, %s op_sel:[0,0,1] op_sel_hi:[1,0,1] neg_lo:[0,0,1] neg_hi:[0,0,1]" % (vr(AD + 2 * i, 2), vr(X + 2 * i, 2), vr(vT + 2, 2), vr(vT + 2, 2)))
for i in range(4):
    A("v_cvt_pk_bf16_f32 v%d, v%d, v%d" % (HB + i, AD + 2 * i, AD + 2 * i + 1))
for i in range(4):
    A("v_pk_lshlrev_b16 v%d, 1, v%d op_sel_hi:[0,1]" % (RT + i, HB + i))
    A("v_pk_lshrrev_b16 v%d, 15, v%d op_sel_hi:[0,1]" % (AD + i, HB + i))
for i in range(4):
    A("v_or_b32 v%d, v%d, v%d" % (RT + i, RT + i, AD + i))
for i in range(4):
    A("v_pk_sub_u16 v%d, v%d, v%d" % (RT + i, RT + i, vT + 4))
for i in range(4):
    A("v_lshlrev_b32_sdwa v%d, 2, v%d dst_sel:DWORD dst_unused:UNUSED_PAD src0_sel:DWORD src1_sel:WORD_0" % (AD + 2 * i, RT + i))
    A("v_lshlrev_b32_sdwa v%d, 2, v%d dst_sel:DWORD dst_unused:UNUSED_PAD src0_sel:DWORD src1_sel:WORD_1" % (AD + 2 * i + 1, RT + i))
    A("ds_read_b32 v%d, v%d offset:%d" % (Y + 2 * i, AD + 2 * i, L_TAB))
    A("ds_read_b32 v%d, v%d offset:%d" % (Y + 2 * i + 1, AD + 2 * i + 1, L_TAB))
A("v_max3_u32 v%d, v%d, v%d, v%d" % (vT, AD, AD + 1, AD + 2))
A("v_max3_u32 v%d, v%d, v%d, v%d" % (vT + 1, AD + 3, AD + 4, AD + 5))
A("v_max3_u32 v%d, v%d, v%d, v%d" % (vT, vT, AD + 6, AD + 7))
A("v_max_u32 v%d, v%d, v%d" % (vT, vT, vT + 1))
A("v_cmp_le_u32 %s, s%d, v%d" % (sr(sH, 2), sT5, vT))
A("s_waitcnt lgkmcnt(5)")
A("v_max3_u32 v%d, v%d, v%d, v%d" % (vT, Y, Y + 1, Y + 2))
A("s_waitcnt lgkmcnt(2)")
A("v_max3_u32 v%d, v%d, v%d, v%d" % (vT + 1, Y + 3, Y + 4, Y + 5))
A("s_waitcnt lgkmcnt(0)")
A("v_max3_u32 v%d, v%d, v%d, v%d" % (vT, vT, Y + 6, Y + 7))
A("v_max_u32 v%d, v%d, v%d" % (vT, vT, vT + 1))
A("v_cmp_eq_u32 vcc, -1, v%d" % vT)
LB("Lslowdone")
for i in range(4):
    A("v_pk_add_f32 %s, %s, %s" % (vr(vT + 2 + 2 * i, 2), vr(X + 2 * i, 2), vr(Y + 2 * i, 2)))
A("s_or_b64 vcc, vcc, %s" % sr(sH, 2))
A("s_cbranch_vccnz Lslow")
A("s_cmp_lg_u32 s%d, 0" % sLAY)
for i in range(4):
    A("v_cvt_pk_bf16_f32 v%d, v%d, v%d" % (XR + i, vT + 2 + 2 * i, vT + 3 + 2 * i))
STAMP(11)
A("s_cbranch_scc1 Lout")
A("s_mov_b32 s%d, 1" % sLAY)
if TOT: A("s_memrealtime s[100:101]")
if DIAG: A("v_mov_b32 v28, v30")
A("s_branch Llnq")

L.append(".p2align 6"); LB("Lst_fin"); A("s_setpc_b64 %s" % sr(sRET, 2)); stubs.append("fin")
LB("Lfinal")
A("s_cmp_ge_u32 s2, 4")
A("s_cbranch_scc1 Lepoch")
C("workgroup b: reduce the 32 head partials of row b, add x2, mixer, store")
soff(sT1, [(2, 15), (sW, 13)], PB + P_L)
A("s_add_u32 s%d, s%d, 4096" % (sT2, sT1))
A("s_mul_i32 s%d, s2, %d" % (sT0, XS))
A("s_lshl_b32 s%d, s%d, 8" % (sT3, sW))
A("s_add_u32 s%d, s%d, s%d" % (sT0, sT0, sT3))
A("s_add_u32 s%d, s%d, %d" % (sT0, sT0, L_X2))
A("v_add_u32 v%d, s%d, v%d" % (vT + 4, sT0, vX1S))
A("s_add_u32 s%d, s%d, %d" % (sT3, sT3, L_XN))
A("v_add_u32 v%d, s%d, v%d" % (vT + 5, sT3, vX1S))
A("ds_read_b64 %s, v%d" % (vr(PM, 2), vT + 4))
A("ds_read_b64 %s, v%d offset:128" % (vr(PM + 2, 2), vT + 4))
A("s_mov_b32 s%d, 0x00ff00ff" % sT4)
A("s_mov_b32 s%d, 0" % sT5)
if XENT:
    A("s_cmp_lg_u32 s%d, 3" % sW)
    A("s_cbranch_scc1 Lfn3")
    A("ds_read_b32 v%d, v%d offset:48" % (vT, vFL))
    A("s_waitcnt lgkmcnt(0)")
    A("v_readfirstlane_b32 s%d, v%d" % (sT0, vT))
    A("s_cmp_eq_u32 s%d, 0" % sT0)
    A("s_cbranch_scc1 Lfn3")
    A("s_mov_b32 s%d, %s" % (sCNT, hx(TB)))
    for i in range(XENT * 4 // 1024):
        A("buffer_load_dwordx4 %s, v%d, %s, s%d offen offset:%d sc1" % (vr(W + 4 * i, 4), vL16, sr(sWS, 4), sCNT, 1024 * i))
    A("v_add_u32 v%d, %d, v%d" % (vT + 6, L_TAB, vL16))
    A("s_waitcnt vmcnt(0)")
    for i in range(XENT * 4 // 1024):
        A("ds_write_b128 v%d, %s offset:%d" % (vT + 6, vr(W + 4 * i, 4), 1024 * i))
    LB("Lfn3")
A("s_waitcnt lgkmcnt(0)")
if GW: A("s_waitcnt vmcnt(0)")
for i in range(4):
    A("v_lshlrev_b32 v%d, 16, v%d" % (PM + 4 + 2 * i, PM + i))
    A("v_and_b32 v%d, 0xffff0000, v%d" % (PM + 5 + 2 * i, PM + i))
if "bias" in OPT:
    for i in range(8): A("v_add_f32 v%d, %s, v%d" % (PM + 4 + i, hx(f2u(float(OPT["bias"]))), PM + 4 + i))
FS = [KF, VF]
def ifin(k):
    for i in range(8):
        A("buffer_load_dwordx4 %s, v%d, %s, s%d offen offset:%d sc1" % (vr(FS[k] + 4 * i, 4), vL16, sr(sWS, 4), sT1 if i < 4 else sT2, 1024 * (i & 3)))
def fs(k):
    o = []
    for i in range(4):
        o.append(mf(W + 32, SEL, FS[k] + 4 * i, None if i == 0 else W + 32))
        o.append(mf(W + 36, SEL, FS[k] + 16 + 4 * i, None if i == 0 else W + 36))
    return o
ppoll(ifin, lambda k: range(FS[k], FS[k] + 32), 8, vT, fs, pre=GPRE, gap=GGAP, tag=2,
      per_load=lambda k, i: [mf(W + 32 + 4 * (i >> 2), SEL, FS[k] + 4 * i, None if (i & 3) == 0 else W + 32 + 4 * (i >> 2))])
STAMP(9)
NOP(2)
for i in range(8):
    A("v_add_f32_dpp v%d, v%d, v%d row_ror:8 row_mask:0xf bank_mask:0xf" % (W + 32 + i, W + 32 + i, W + 32 + i))
A("s_mov_b64 exec, %s" % sr(sT4, 2))
for i in range(4):
    A("v_pk_add_f32 %s, %s, %s" % (vr(W + 32 + 2 * i, 2), vr(W + 32 + 2 * i, 2), vr(PM + 4 + 2 * i, 2)))
for i in range(4):
    A("v_cvt_pk_bf16_f32 v%d, v%d, v%d" % (W + 32 + i, W + 32 + 2 * i, W + 33 + 2 * i))
A("ds_write_b64 v%d, %s" % (vT + 5, vr(W + 32, 2)))
A("ds_write_b64 v%d, %s offset:128" % (vT + 5, vr(W + 34, 2)))
A("s_mov_b64 exec, -1")
A("s_cmp_lg_u32 s%d, 0" % sW)
A("s_waitcnt lgkmcnt(0)")
A("s_barrier")
A("s_cbranch_scc1 Lfin_exit")
A("ds_read_b128 %s, v%d" % (vr(XR, 4), vXNW))
A("s_waitcnt lgkmcnt(0)")
STAMP(10)
A("s_branch Lmix")
L.append(".p2align 6"); LB("Lst_out"); A("s_setpc_b64 %s" % sr(sRET, 2)); stubs.append("out")
LB("Lout")
A("s_lshl_b32 s%d, s2, 10" % sT0)
A("buffer_store_dwordx4 %s, v%d, %s, s%d offen" % (vr(XR, 4), vL16, sr(sOUT, 4), sT0))
if DBL:
    A("s_cmp_lg_u32 s2, 0")
    A("s_cbranch_scc1 Lfin_exit")
if DBL:
    A("s_waitcnt vmcnt(0)")
    A("s_memrealtime s[10:11]")
    A("s_waitcnt lgkmcnt(0)")
    A("s_sub_u32 s12, s10, s98")
    if "pad" in OPT:
        A("s_mov_b32 s10, s98"); A("s_mov_b32 s12, %d" % (100 * int(OPT["pad"])))
    LB("Ldbl")
    A("s_memrealtime s[14:15]")
    A("s_waitcnt lgkmcnt(0)")
    A("s_sub_u32 s13, s14, s10")
    A("s_cmp_lt_u32 s13, s12")
    A("s_cbranch_scc1 Ldbl")
LB("Lfin_exit")
if TOT:
    A("s_waitcnt vmcnt(0)")
    A("s_memrealtime s[10:11]")
    A("s_waitcnt lgkmcnt(0)")
    A("v_mov_b32 v16, s98")
    A("v_mov_b32 v17, s10")
    A("v_mov_b32 v18, s100")
    A("v_mov_b32 v19, s97")
    soff(sT2, [(2, 6), (sW, 4)], STB)
    A("v_mov_b32 v20, 0")
    A("s_mov_b64 exec, 1")
    A("buffer_store_dwordx4 v[16:19], v20, %s, s%d offen" % (sr(sWS, 4), sT2))
if DIAG:
    A("s_waitcnt vmcnt(0)")
    STAMP(12)
    if DIAG == 2:
        A("s_or_b32 s%d, s2, s%d" % (sT0, sW))
        A("s_cmp_lg_u32 s%d, 0" % sT0)
        A("s_cbranch_scc1 Lend")
        A("v_readlane_b32 s%d, v28, 0" % sT2)
        for k, (r, i) in enumerate([(31, 10), (31, 12), (28, 1), (28, 2), (28, 6), (28, 5), (28, 7), (28, 8), (28, 9), (28, 10), (28, 11), (30, 3), (30, 5), (30, 8), (30, 9), (30, 12)]):
            A("v_readlane_b32 s%d, v%d, %d" % (sT3, r, i))
            A("s_sub_u32 s%d, s%d, s%d" % (sT3, sT3, sT2))
            A("s_nop 0")
            A("v_writelane_b32 v17, s%d, %d" % (sT3, k))
        A("v_lshlrev_b32 v16, 2, v%d" % vLANE)
        A("s_mov_b64 exec, 0xffff")
        A("global_store_dword v16, v17, s[100:101]")
        A("s_endpgm")
    soff(sT1, [(2, 10), (sW, 7)], STB)
    A("v_lshlrev_b32 v16, 2, v%d" % vLANE)
    A("s_mov_b64 exec, 0xffff")
    A("buffer_store_dword v28, v16, %s, s%d offen" % (sr(sWS, 4), sT1))
    A("buffer_store_dword v30, v16, %s, s%d offen offset:64" % (sr(sWS, 4), sT1))
    A("s_add_u32 s%d, s%d, 0x40000" % (sT1, sT1))
    A("buffer_store_dword v31, v16, %s, s%d offen" % (sr(sWS, 4), sT1))
LB("Lend")
A("s_endpgm")
LB("Lepoch")
if int(OPT.get("wb", 0)):
    A("s_cmp_lg_u32 s%d, 0" % sW)
    A("s_cbranch_scc1 Lnowb")
    A("s_waitcnt vmcnt(0)")
    A("buffer_wbl2 sc1")
    LB("Lnowb")
C("every workgroup has used the old launch tag long ago: workgroup 4 advances it")
A("s_lshl_b32 s%d, s%d, 8" % (sT0, sW))
A("s_add_u32 s%d, s%d, s2" % (sT0, sT0))
A("s_cmp_lg_u32 s%d, 4" % sT0)
A("s_cbranch_scc1 Lfin_exit")
A("v_mov_b32 v16, s%d" % sTG1)
A("v_mov_b32 v17, %s" % hx(EPO))
A("s_mov_b64 exec, 1")
A("buffer_store_dword v16, v17, %s, 0 offen sc1" % sr(sWS, 4))
A("s_mov_b64 exec, -1")
A("s_branch Lfin_exit")

L.append(".p2align 6"); LB("Lst_tab"); A("s_setpc_b64 %s" % sr(sRET, 2)); stubs.append("tab")
LB("Ltab")
C("waves 2,3: gather the main part of the g(h) table into LDS ; wave 1: the lowest octaves, best effort")
NTL = NOCT * 1024 // 2 // 1024
A("s_cmp_eq_u32 s%d, 1" % sW)
A("s_cbranch_scc1 Lext")
A("s_sub_u32 s%d, s%d, 2" % (sT1, sW))
A("s_mul_i32 s%d, s%d, %d" % (sT1, sT1, NTL * 1024))
A("s_add_u32 s%d, s%d, %d" % (sT1, sT1, XENT * 4))
A("v_add_u32 v%d, s%d, v%d" % (vT + 4, sT1, vL16))
A("v_add_u32 v%d, %d, v%d" % (vT + 4, L_TAB, vT + 4))
A("s_add_u32 s%d, s%d, %s" % (sT1, sT1, hx(TB)))
A("s_add_u32 s%d, s%d, 4096" % (sT2, sT1))
def it():
    for i in range(NTL):
        A("buffer_load_dwordx4 %s, v%d, %s, s%d offen offset:%d sc1" % (vr(W + 4 * i, 4), vL16, sr(sWS, 4), sT1 if i < 4 else sT2, 1024 * (i & 3)))
poll(it, range(W, W + 4 * NTL), vT, back="s_sleep %d" % int(OPT.get("tsl", 16)))
for i in range(NTL):
    A("ds_write_b128 v%d, %s offset:%d" % (vT + 4, vr(W + 4 * i, 4), 1024 * i))
A("s_waitcnt lgkmcnt(0)")
lds_arrive(20, vT + 4)
STAMP(9)
A("s_branch Ltabdone")
def ext_load(d):
    for i in range(XENT * 4 // 1024):
        A("buffer_load_dwordx4 %s, v%d, %s, s%d offen offset:%d sc1" % (vr(d + 4 * i, 4), vL16, sr(sWS, 4), sT4, 1024 * i))
def ext_write(d):
    for i in range(XENT * 4 // 1024):
        A("ds_write_b128 v%d, %s offset:%d" % (vT + 4, vr(d + 4 * i, 4), 1024 * i))
LB("Lext")
if XENT:
    A("s_mov_b32 s%d, %s" % (sT4, hx(TB)))
    A("v_add_u32 v%d, %d, v%d" % (vT + 4, L_TAB, vL16))
    for i in range(4): A("v_mov_b32 v%d, -1" % (W + i))
    for i in range(XENT * 4 // 1024):
        A("ds_write_b128 v%d, %s offset:%d" % (vT + 4, vr(W, 4), 1024 * i))
    A("ds_write_b32 v%d, v%d offset:48" % (vFL, W))
    A("s_waitcnt lgkmcnt(0)")
lds_arrive(20, vT + 5)
if XENT:
    C("one look at the lowest octaves, skipped when x1 is already there")
    soff(sT3, [(sW, 10), (sJ, 17)], X1_OFF)
    A("s_waitcnt vmcnt(0)")
    A("buffer_load_dwordx4 %s, v%d, %s, s%d offen sc1" % (vr(XR, 4), vL16, sr(sWS, 4), sT3))
    A("s_waitcnt vmcnt(0)")
    for x in maxtree(range(XR, XR + 4), vT): A(x)
    A("v_cmp_eq_u32 vcc, -1, v%d" % vT)
    A("s_cbranch_vccz Lexx")
    A("s_mov_b32 s%d, %d" % (sCNT, int(OPT.get("xlk", 2)) - 1))
    LB("Lexl")
    A("buffer_load_dwordx4 %s, v%d, %s, s%d offen sc1" % (vr(XR, 4), vL16, sr(sWS, 4), sT3))
    if "l" in OPT.get("xs", ""): A("s_branch Ltabdone")
    ext_load(W + 32)
    A("s_waitcnt vmcnt(4)")
    for x in maxtree(range(XR, XR + 4), vT): A(x)
    A("v_cmp_eq_u32 vcc, -1, v%d" % vT)
    A("s_cbranch_vccz Lexx")
    A("s_waitcnt vmcnt(0)")
    ext_write(W + 32)
    for x in maxtree(range(W + 32, W + 48), vT): A(x)
    A("v_cmp_eq_u32 vcc, -1, v%d" % vT)
    A("s_cbranch_vccz Lexc")
    A("s_sub_u32 s%d, s%d, 1" % (sCNT, sCNT))
    A("s_cbranch_scc0 Lexl")
    A("s_branch Ltabdone")
    LB("Lexc")
    A("v_mov_b32 v%d, 0" % vT)
    A("ds_write_b32 v%d, v%d offset:48" % (vFL, vT))
    A("s_branch Ltabdone")
    LB("Lexx")
    wqf_reads()
    A("s_branch Ltw")
else:
    A("s_branch Ltabdone")
LB("Ltw")
lds_spin(20, 3, vT + 2)
A("s_branch Ltwd")

for b in ool: L += b
ool = []
LB("Lslow")
C("rare: some h lies outside the table -> evaluate g(h) directly for those lanes")
RW1 = [W + 32 + i for i in range(14)]
RB1 = [PM + i for i in range(14)]
RW2 = [16 + i for i in range(10)] + [W + 46, W + 47, PM + 14, PM + 15]
A("v_lshlrev_b32 v26, 3, v%d" % vLANE)
A("s_load_dword s%d, %s, 0" % (sB2, sr(sB2P, 2)))
for (d4, d2, s) in [([W + 32, W + 36, W + 40], W + 44, sW1), ([PM, PM + 4, PM + 8], PM + 12, sB1)]:
    for k in range(3):
        A("buffer_load_dwordx4 %s, v%d, %s, 0 offen offset:%d" % (vr(d4[k], 4), vL16, sr(s, 4), 1024 * k))
    A("buffer_load_dwordx2 %s, v26, %s, 0 offen offset:3072" % (vr(d2, 2), sr(s, 4)))
A("buffer_load_dwordx4 v[16:19], v%d, %s, 0 offen" % (vL16, sr(sW2, 4)))
A("buffer_load_dwordx4 v[20:23], v%d, %s, 0 offen offset:1024" % (vL16, sr(sW2, 4)))
A("buffer_load_dwordx2 v[24:25], v%d, %s, 0 offen offset:2048" % (vL16, sr(sW2, 4)))
A("buffer_load_dwordx2 %s, v%d, %s, 0 offen offset:2056" % (vr(W + 46, 2), vL16, sr(sW2, 4)))
A("buffer_load_dwordx2 %s, v26, %s, 0 offen offset:3072" % (vr(PM + 14, 2), sr(sW2, 4)))
A("s_waitcnt vmcnt(0) lgkmcnt(0)")
A("s_lshl_b32 s%d, s%d, 16" % (sB2, sB2))
A("s_mov_b32 s%d, 1" % sT4)
for e in range(8):
    A("v_cmp_le_u32 vcc, %d, v%d" % (NENT * 4, AD + e))
    A("v_cmp_eq_u32 %s, -1, v%d" % (sr(sH2, 2), Y + e))
    A("s_or_b64 %s, %s, vcc" % (sr(sH2, 2), sr(sH2, 2)))
    if e & 1: A("v_and_b32 v%d, 0xffff0000, v%d" % (RT + 3, HB + (e >> 1)))
    else: A("v_lshlrev_b32 v%d, 16, v%d" % (RT + 3, HB + (e >> 1)))
    LB("Lse%d" % e)
    A("s_cmp_eq_u64 %s, 0" % sr(sH2, 2))
    A("s_cbranch_scc1 Lsf%d" % e)
    A("s_ff1_i32_b64 s%d, %s" % (sT0, sr(sH2, 2)))
    A("s_nop 0")
    A("v_readlane_b32 s%d, v%d, s%d" % (sH, RT + 3, sT0))
    A("s_cmp_eq_u32 s%d, s%d" % (sH, sT4))
    A("s_cbranch_scc1 Lsg%d" % e)
    A("s_mov_b32 s%d, s%d" % (sT4, sH))
    A("s_call_b64 %s, Lgev" % sr(sRET, 2))
    LB("Lsg%d" % e)
    A("s_nop 1")
    A("v_cmp_eq_u32 vcc, s%d, v%d" % (sH, RT + 3))
    A("v_mov_b32 v%d, s%d" % (RES + 3, sY))
    A("s_andn2_b64 %s, %s, vcc" % (sr(sH2, 2), sr(sH2, 2)))
    A("v_cndmask_b32 v%d, v%d, v%d, vcc" % (Y + e, Y + e, RES + 3))
    A("s_branch Lse%d" % e)
    LB("Lsf%d" % e)
for i in range(16): A("v_mov_b32 v%d, 0" % (PM + i))
A("s_mov_b64 vcc, 0")
A("s_mov_b64 %s, 0" % sr(sH, 2))
A("s_branch Lslowdone")
LB("Lgev")
a, u, t1, z = RES, RES + 1, RES + 2, RT
A("v_mov_b32 v%d, 0" % a)
A("v_mov_b32 v%d, %s" % (RT + 1, hx(f2u(K0))))
A("v_mov_b32 v%d, %s" % (RT + 2, hx(f2u(K1))))
for p in range(14):
    for hf in range(2):
        def un(d, s):
            if hf == 0: A("v_lshlrev_b32 v%d, 16, v%d" % (d, s))
            else: A("v_and_b32 v%d, 0xffff0000, v%d" % (d, s))
        un(u, RW1[p]); un(t1, RB1[p]); un(z, RW2[p])
        A("v_fma_f32 v%d, v%d, s%d, v%d" % (u, u, sH, t1))
        A("v_mul_f32 v%d, v%d, v%d" % (t1, u, u))
        A("v_fma_f32 v%d, v%d, v%d, v%d" % (t1, t1, RT + 2, RT + 1))
        A("v_mul_f32 v%d, v%d, v%d" % (t1, t1, u))
        A("v_exp_f32 v%d, v%d" % (t1, t1))
        A("v_mul_f32 v%d, v%d, v%d" % (z, z, u))
        A("v_add_f32 v%d, 1.0, v%d" % (t1, t1))
        A("v_rcp_f32 v%d, v%d" % (t1, t1))
        A("s_nop 0")
        A("v_fmac_f32 v%d, v%d, v%d" % (a, z, t1))
A("v_mov_b32 v%d, v%d" % (u, a))
A("s_nop 1")
wave_sum2(a, u, sY, sT1)
A("s_nop 1")
A("v_mov_b32 v%d, s%d" % (a, sY))
A("v_cvt_pk_bf16_f32 v%d, v%d, v%d" % (a, a, a))
A("v_and_b32 v%d, 0xffff0000, v%d" % (a, a))
A("v_add_f32 v%d, s%d, v%d" % (a, sB2, a))
A("v_cvt_pk_bf16_f32 v%d, v%d, v%d" % (a, a, a))
A("v_and_b32 v%d, 0xffff0000, v%d" % (a, a))
A("s_nop 0")
A("v_readfirstlane_b32 s%d, v%d" % (sY, a))
A("s_nop 3")
A("s_setpc_b64 %s" % sr(sRET, 2))

for b in ool: L += b
A("s_endpgm")
L.append(".p2align 8")
L.append(".fill %d, 4, 0xBF800000" % (64 if DIAG else 512))
L.append('''.section .rodata,"a"
.p2align 6
.amdhsa_kernel %s_kernel
  .amdhsa_next_free_vgpr 256
  .amdhsa_next_free_sgpr 102
  .amdhsa_accum_offset 256
  .amdhsa_group_segment_fixed_size 0
  .amdhsa_kernarg_size 104
  .amdhsa_user_sgpr_count 2
  .amdhsa_user_sgpr_kernarg_segment_ptr 1
  .amdhsa_system_sgpr_workgroup_id_x 1
.end_amdhsa_kernel''' % NAME)
open(OUTF, "w").write("\n".join(x for x in L if x is not None) + "\n")
print("wrote", OUTF, "lines", len(L), "LDS", LDS_SZ)
```

```python
import sys, struct, math

NAME = "interleave_layers__sliding_block_cached__mixer_token_mlp__decode"
OUTF = sys.argv[1] if len(sys.argv) > 1 else "cdna_kernels/%s.s" % NAME
DIAG = int(sys.argv[2]) if len(sys.argv) > 2 else 0
DBL = 0
if DIAG == 3: DIAG = 0; DBL = 1
MEAS = 0
if DIAG == 5: DIAG = 0; MEAS = 1
TOT = 0
if DIAG == 4: DIAG = 0; TOT = 1
OPT = dict(a.split("=") for a in sys.argv[3:])
DEPTH = int(OPT.get("depth", 8))
D0 = int(OPT.get("d0", 2))
D1 = int(OPT.get("d1", 4))
DC = int(OPT.get("dc", 3))
TAILI = int(OPT.get("taili", 11))
TAILD = int(OPT.get("taild", 8))
QV = int(OPT.get("qv", 3))
PRET = int(OPT.get("pret", 1))
GW = int(OPT.get("gw", 1))
GPRE = int(OPT.get("gpre", 0))
GGAP = int(OPT.get("ggap", -1))
WARM = int(OPT.get("warm", 1))
QPRE = int(OPT.get("qpre", -1)); QGAP = int(OPT.get("qgap", -1))
OPRE = int(OPT.get("opre", -1)); OGAP = int(OPT.get("ogap", -1))
XPRE = int(OPT.get("xpre", -1)); XGAP = int(OPT.get("xgap", -1))
FINE = OPT.get("fine", "")
QS = int(OPT.get("qs", 0))
ADP = int(OPT.get("adp", 0))
ROT = int(OPT.get("rot", 1)); VROT = int(OPT.get("vrot", 0))
WROT = int(OPT.get("wrot", 1))
WOP = int(OPT.get("wop", 0))
ECO = int(OPT.get("eco", 0))
XDL = int(OPT.get("xdl", 256))
QBD = int(OPT.get("qbd", 0))
VLATE = int(OPT.get("vlate", 1))
QV2 = int(OPT.get("qv2", 0))
PROG = int(OPT.get("prog", 1))
QT = int(OPT.get("qt", 0))
DRY = int(OPT.get("dry", 0))
HP = int(OPT.get("hp", 0))
NOCT = int(OPT.get("noct", 16))
QPOS = int(OPT.get("qpos", 1))
QPOS2 = int(OPT.get("qpos2", 7))

def f2u(x): return struct.unpack("<I", struct.pack("<f", x))[0]
def hx(x): return "0x%08x" % (x & 0xffffffff)

L = []
def A(s): L.append("    " + s)
def LB(s): L.append(s + ":")
def C(s): L.append("    ; " + s)
def vr(a, n): return "v[%d:%d]" % (a, a + n - 1)
def sr(a, n): return "s[%d:%d]" % (a, a + n - 1)
def NOP(n):
    while n > 0:
        k = min(n, 16); A("s_nop %d" % (k - 1)); n -= k

XOCT = int(OPT.get('xoct', 4))
ELO = int(OPT.get('elo', 130 - NOCT - XOCT))
LO2 = (ELO << 7) * 2
NENT = (NOCT + XOCT) * 256
XENT = XOCT * 256
assert XENT in (0, 1024)
EPW = NOCT * 256 // 256 // 4 // 2
GRS = 0x20000
O_OFF = [0x0000, 0xC400]; LSE_OFF = [0x8000, 0x14400]; Q1_OFF = 0x8400; X1_OFF = 0x14600
CLRA_PER = 1040
CLRB_OFF = 0x8400; CLRB_PER = 1680
Q0_OFF = 0x18000
EPO = 0x17f00
PB = 0x100000; P_L = 0x20000
TB = 0x140000; FB = 0x148000
QB_DELTA = 0x200000
STB = 0x300000
WS_SZ = 0x400000
L_WQ = 12288; L_K = L_WQ + 16384; L_V = L_K + 32768
L_WO = L_K + 16384
L_TAB = L_V
L_XN = L_V + 32768; XS = 1056
L_X2 = L_XN + 4 * XS
L_FLG = L_X2 + 4 * XS
L_RB = L_K; RBS = 2048 + 64; L_ML = L_K + 4 * RBS
L_QF = L_X2
LDS_SZ = int(OPT.get("lds", L_FLG + 64))
SPIN = 0x40000
K0 = -2.0 * math.sqrt(2.0 / math.pi) * math.log2(math.e)
K1 = K0 * 0.044715
EPS = hx(f2u(1e-5))

sTG1, sTG2 = 0, 1
sW, sJ, sA, sC, sGR, sLAY, sFAST = 3, 4, 5, 6, 7, 8, 9
sT0, sT1, sT2, sT3, sT4, sT5 = 10, 11, 12, 13, 14, 15
sCNT = 16
sQL, sQS, sOL, sOS, sLL, sLS, sPS = 17, 18, 19, 20, 21, 22, 23
sSC, sIT = 24, 25
sSUM, sSQ = 26, 27
sH, sH2, sRET, sMSK = 28, 30, 32, 34
sB2, sY, sXCC, sE = 36, 37, 38, 39
sB2P = 40
sK, sV, sWQ, sWO, sWS, sX, sOUT, sW1, sB1, sW2 = 44, 48, 52, 56, 60, 64, 68, 72, 76, 80
sKO, sKL, sVO, sVL = 84, 85, 86, 87
sPM = 88
sHC, sHT = 84, 85

def STAMP(i):
    if DIAG:
        A("s_memrealtime s[42:43]"); A("s_waitcnt lgkmcnt(0)")
        A("v_writelane_b32 v30, s42, %d" % i)

def CST(i):
    if DIAG == 1 and FINE:
        A("s_memtime s[42:43]"); A("s_waitcnt lgkmcnt(0)")
        A("v_writelane_b32 v31, s42, %d" % i)

vLANE = 1
vL16, vQST, vOST, vOLD, vPST, vX1S, vXNW, vXNR, vRBW, vRBR, vMLW, vMLR, vLSE, vZ = range(2, 16)
vT = 16
vWT, vFL = 28, 29
vLS2 = 27
KF, VF, WQF, WOF, SEL, ONES = 32, 64, 96, 112, 176, 180
W = 184
PM = 232
XR = 248
RES = 252

def srd(s, nbytes):
    A("s_mov_b32 s%d, %s" % (s + 2, hx(nbytes))); A("s_mov_b32 s%d, 0x00020000" % (s + 3))

def soff(dst, terms, const):
    first = True
    for (src, sh) in terms:
        if first: A("s_lshl_b32 s%d, s%d, %d" % (dst, src, sh)); first = False
        else:
            A("s_lshl_b32 s%d, s%d, %d" % (sT0, src, sh)); A("s_add_u32 s%d, s%d, s%d" % (dst, dst, sT0))
    if const: A("s_add_u32 s%d, s%d, %s" % (dst, dst, hx(const)))

def wave_sum2(a, b, sa, sb):
    for ctl in ["row_ror:8", "row_ror:4", "row_ror:2", "row_ror:1"]:
        A("v_add_f32_dpp v%d, v%d, v%d %s row_mask:0xf bank_mask:0xf" % (a, a, a, ctl))
        A("v_add_f32_dpp v%d, v%d, v%d %s row_mask:0xf bank_mask:0xf" % (b, b, b, ctl))
        A("s_nop 0")
    for ctl in ["row_bcast:15 row_mask:0xa", "row_bcast:31 row_mask:0xc"]:
        A("v_add_f32_dpp v%d, v%d, v%d %s bank_mask:0xf" % (a, a, a, ctl))
        A("v_add_f32_dpp v%d, v%d, v%d %s bank_mask:0xf" % (b, b, b, ctl))
        A("s_nop 0")
    A("v_readlane_b32 s%d, v%d, 63" % (sa, a))
    A("v_readlane_b32 s%d, v%d, 63" % (sb, b))

def row_stats(x, t, unp):
    A("v_dot2_f32_bf16 v%d, v%d, v%d, 0" % (t, x, ONES))
    A("v_dot2_f32_bf16 v%d, v%d, v%d, 0" % (t + 1, x, x))
    for i in range(1, 4):
        A("v_dot2_f32_bf16 v%d, v%d, v%d, v%d" % (t, x + i, ONES, t))
        A("v_dot2_f32_bf16 v%d, v%d, v%d, v%d" % (t + 1, x + i, x + i, t + 1))
    un = []
    for i in range(4):
        un.append("v_lshlrev_b32 v%d, 16, v%d" % (unp + 2 * i, x + i))
        un.append("v_and_b32 v%d, 0xffff0000, v%d" % (unp + 2 * i + 1, x + i))
    for k in range(3): A(un.pop(0))
    a, b = t, t + 1
    for ctl in ["row_ror:8 row_mask:0xf", "row_ror:4 row_mask:0xf", "row_ror:2 row_mask:0xf", "row_ror:1 row_mask:0xf", "row_bcast:15 row_mask:0xa", "row_bcast:31 row_mask:0xc"]:
        A("v_add_f32_dpp v%d, v%d, v%d %s bank_mask:0xf" % (a, a, a, ctl))
        A("v_add_f32_dpp v%d, v%d, v%d %s bank_mask:0xf" % (b, b, b, ctl))
        A(un.pop(0) if un else "s_nop 0")
    A("v_readlane_b32 s%d, v%d, 63" % (sSUM, a))
    A("v_readlane_b32 s%d, v%d, 63" % (sSQ, b))
    A("s_nop 0")
    A("v_mul_f32 v%d, s%d, v%d" % (t, sSUM, vZ))
    A("v_mul_f32 v%d, s%d, v%d" % (t + 1, sSQ, vZ))
    A("v_fma_f32 v%d, -v%d, v%d, v%d" % (t + 1, t, t, t + 1))
    A("v_max_f32 v%d, 0, v%d" % (t + 1, t + 1))

ool = []
uid = [0]
def maxtree(regs, tmp):
    r = list(regs); out = []
    out.append("v_max3_u32 v%d, v%d, v%d, v%d" % (tmp, r[0], r[1], r[2])); r = r[3:]
    if len(r) >= 5:
        out.append("v_max3_u32 v%d, v%d, v%d, v%d" % (tmp + 1, r[0], r[1], r[2])); r = r[3:]
        d = 0
        while len(r) >= 2:
            out.append("v_max3_u32 v%d, v%d, v%d, v%d" % (tmp + d, tmp + d, r[0], r[1])); r = r[2:]; d ^= 1
        if r: out.append("v_max3_u32 v%d, v%d, v%d, v%d" % (tmp, tmp, tmp + 1, r[0]))
        else: out.append("v_max_u32 v%d, v%d, v%d" % (tmp, tmp, tmp + 1))
    else:
        while len(r) >= 2:
            out.append("v_max3_u32 v%d, v%d, v%d, v%d" % (tmp, tmp, r[0], r[1])); r = r[2:]
        if r: out.append("v_max_u32 v%d, v%d, v%d" % (tmp, tmp, r[0]))
    return out

def poll(issue, regs, tmp, pre_wait=None, spec=None, back="s_nop 7", tag=None, stub=None):
    uid[0] += 1; u = uid[0]
    A("s_mov_b32 s%d, %s" % (sCNT, hx(SPIN)))
    LB("Lp%d" % u)
    issue()
    if pre_wait: pre_wait()
    A("s_waitcnt vmcnt(0)")
    mt = maxtree(regs, tmp) + ["v_cmp_eq_u32 vcc, -1, v%d" % tmp]
    spec = list(spec or [])
    ns = len(spec)
    per = -(-len(mt) // ns) if ns else 0
    for s in spec:
        A(s)
        for k in range(per):
            if mt: A(mt.pop(0))
    for m in mt: A(m)
    A("s_cbranch_vccz Ld%d" % u)
    A("s_sub_u32 s%d, s%d, 1" % (sCNT, sCNT))
    if back != "s_nop 7": A(back)
    A("s_cbranch_scc0 Lp%d" % u)
    if stub: touch_stub(stub)
    LB("Ld%d" % u)
    if DIAG and tag is not None:
        A("s_lshl_b32 m0, s%d, 2" % sLAY); A("s_add_u32 m0, m0, %d" % tag); A("s_nop 0")
        A("v_writelane_b32 v31, s%d, m0" % sCNT)

stubs = []
def touch_stub(name, branch_over=None):
    A("s_branch Lsk_%s" % name)
    L.append(".p2align 6")
    LB("Lst_%s" % name)
    A("s_setpc_b64 %s" % sr(sRET, 2))
    LB("Lsk_%s" % name)
    stubs.append(name)

def delay(cyc):
    if cyc == -1:
        A("s_waitcnt vmcnt(0)"); return
    while cyc >= 64:
        k = min(cyc // 64, 15); A("s_sleep %d" % k); cyc -= 64 * k
    if cyc >= 8: A("s_nop %d" % min(15, cyc // 4 - 1))

def ppoll(issue, regs, n, tmp, spec, pre=0, gap=128, mid=None, tag=None, fix=None, stub=None, lanes=None, per_load=None):
    uid[0] += 1; u = uid[0]
    def look(k):
        if per_load and PROG and gap < 0:
            r = list(regs(k)); out = []
            for i in range(n):
                out.append("s_waitcnt vmcnt(%d)" % (n - 1 - i))
                sp = list(per_load(k, i))
                ck = ["v_max3_u32 v%d, v%d, v%d, v%d" % (tmp + 1, r[4 * i], r[4 * i + 1], r[4 * i + 2]),
                      ("v_max_u32 v%d, v%d, v%d" % (tmp, tmp + 1, r[4 * i + 3])) if i == 0 else ("v_max3_u32 v%d, v%d, v%d, v%d" % (tmp, tmp, tmp + 1, r[4 * i + 3]))]
                while sp or ck:
                    if sp: out.append(sp.pop(0))
                    if ck: out.append(ck.pop(0))
            return out + ["v_cmp_eq_u32 vcc, -1, v%d" % tmp]
        out = ["s_waitcnt vmcnt(%d)" % (n if k == 0 else 0)]
        mt = maxtree(regs(k), tmp) + ["v_cmp_eq_u32 vcc, -1, v%d" % tmp]
        sp = list(spec(k)); per = -(-len(mt) // len(sp)) if sp else 0
        for x in sp:
            out.append(x)
            for _ in range(per):
                if mt: out.append(mt.pop(0))
        return out + mt + (["s_and_b64 vcc, vcc, %s" % sr(lanes, 2)] if lanes else [])
    A("s_mov_b32 s%d, %s" % (sCNT, hx(SPIN)))
    delay(pre)
    fine = FINE and tag == int(FINE)
    if fine: CST(8)
    LB("Lp%d" % u)
    issue(0)
    if fine and 0: CST(9)
    if mid: mid()
    if gap >= 0: delay(gap)
    if gap >= 0: issue(1)
    lk = look(0)
    if gap < 0 and not (per_load and PROG): lk[0] = "s_waitcnt vmcnt(0)"
    for k, x in enumerate(lk):
        A(x)
        if fine and k == 0: CST(13)
    if fine: CST(14)
    A("s_cbranch_vccz Ld%d" % u)
    if gap < 0: issue(1)
    A("s_sub_u32 s%d, s%d, 1" % (sCNT, sCNT))
    for x in look(1): A(x)
    for x in (fix or []): A(x)
    A("s_cbranch_vccz Ld%d" % u)
    A("s_sub_u32 s%d, s%d, 1" % (sCNT, sCNT))
    A("s_cmp_gt_i32 s%d, 0" % sCNT)
    A("s_cbranch_scc1 Lp%d" % u)
    if stub: touch_stub(stub)
    LB("Ld%d" % u)
    if fine: CST(15)
    if DIAG and tag is not None:
        A("s_lshl_b32 m0, s%d, 2" % sLAY); A("s_add_u32 m0, m0, %d" % tag); A("s_nop 0")
        A("v_writelane_b32 v31, s%d, m0" % sCNT)

def lds_spin(off, target, tmp, mask=None, sleep=0):
    uid[0] += 1; u = uid[0]
    A("s_mov_b32 s%d, %s" % (sT2, hx(SPIN * 4)))
    LB("Ls%d" % u)
    A("ds_read_b32 v%d, v%d offset:%d" % (tmp, vFL, off))
    A("s_waitcnt lgkmcnt(0)")
    A("v_readfirstlane_b32 s%d, v%d" % (sT1, tmp))
    if mask: A("s_and_b32 s%d, s%d, %d" % (sT0, sT1, mask))
    A("s_cmp_ge_u32 s%d, %d" % (sT0 if mask else sT1, target))
    A("s_cbranch_scc1 Lt%d" % u)
    if sleep: A("s_sleep %d" % sleep)
    A("s_sub_u32 s%d, s%d, 1" % (sT2, sT2))
    A("s_cbranch_scc0 Ls%d" % u)
    LB("Lt%d" % u)

def lds_arrive(off, tmp, val=1):
    if val is not None: A("v_mov_b32 v%d, %d" % (tmp, val))
    A("s_mov_b64 exec, 1")
    A("ds_add_u32 v%d, v%d offset:%d" % (vFL, tmp, off))
    A("s_mov_b64 exec, -1")

def store_local(op, data, vaddr, so):
    uid[0] += 1; u = uid[0]
    A("s_cbranch_scc1 Lw%d" % u)
    A("%s %s, v%d, %s, s%d offen" % (op, data, vaddr, sr(sWS, 4), so))
    LB("Lx%d" % u)
    ool.append(["Lw%d:" % u, "    %s %s, v%d, %s, s%d offen sc1" % (op, data, vaddr, sr(sWS, 4), so), "    s_branch Lx%d" % u])
def fastcmp(): A("s_cmp_eq_u32 s%d, 0" % sFAST)

def mf(d, a, b, c):
    return "v_mfma_f32_16x16x32_bf16 %s, %s, %s, %s" % (vr(d, 4), vr(a, 4), vr(b, 4), "0" if c is None else vr(c, 4))
def mfma(d, a, b, c): A(mf(d, a, b, c))

def tags():
    A("s_add_u32 s%d, s%d, 1" % (sTG1, sE))
    A("s_mul_i32 s%d, s%d, 0x9E3779B1" % (sTG2, sTG1))
    A("s_and_b32 s%d, s%d, -8" % (sTG2, sTG2))

def common_addr():
    A("v_and_b32 v18, 3, v%d" % vLANE)
    A("v_lshlrev_b32 v%d, 12, v17" % vQST)
    A("v_lshrrev_b32 v24, 1, v16")
    A("v_lshl_add_u32 v%d, v24, 8, v%d" % (vQST, vQST))
    A("v_and_b32 v24, 1, v16")
    A("v_lshl_add_u32 v%d, v24, 3, v%d" % (vQST, vQST))
    A("v_lshlrev_b32 v%d, 4, v24" % vLSE)
    A("s_mul_i32 s%d, s%d, %d" % (sT0, sW, XS))
    A("s_add_u32 s%d, s%d, %d" % (sT0, sT0, L_XN))
    A("v_add_u32 v%d, s%d, v%d" % (vXNW, sT0, vL16))
    A("s_lshl_b32 s%d, s%d, 8" % (sT0, sA))
    A("s_add_u32 s%d, s%d, %d" % (sT0, sT0, L_XN))
    A("v_mul_u32_u24 v25, %d, v18" % XS)
    A("v_lshl_add_u32 v25, v16, 4, v25")
    A("v_add_u32 v%d, s%d, v25" % (vXNR, sT0))
    A("v_mov_b32 v%d, %s" % (vZ, hx(f2u(1.0 / 512))))
    for r in range(4): A("v_mov_b32 v%d, 0x3f803f80" % (ONES + r))
    A("s_and_b32 s%d, s%d, 1" % (sT1, sC))
    A("s_lshr_b32 s%d, s%d, 1" % (sT2, sC))
    soff(sQS, [(sT1, 11), (sW, 9), (sA, 6), (sT2, 4)], 0)
    A("v_bfe_u32 v24, v%d, 2, 2" % vLANE)
    A("v_lshl_add_u32 v24, v16, 3, v24")
    A("v_lshlrev_b32 v24, 7, v24")
    A("v_bfe_u32 v25, v%d, 3, 2" % vLANE)
    A("v_lshlrev_b32 v25, 1, v25")
    A("v_bfe_u32 v26, v%d, 1, 1" % vLANE)
    A("v_xor_b32 v25, v25, v26")
    A("v_lshl_add_u32 v24, v25, 4, v24")
    A("v_and_b32 v26, 1, v%d" % vLANE)
    A("v_lshl_add_u32 v%d, v26, 3, v24" % vWT)
    A("s_mov_b32 s%d, 0x000f000f" % sMSK)
    A("s_mov_b32 s%d, 0x000f000f" % (sMSK + 1))
    A("s_mov_b32 s%d, 0" % sLAY)

def wtile_voff(shift, d):
    A("v_lshrrev_b32 v24, 3, v%d" % vLANE)
    A("v_and_b32 v25, 7, v%d" % vLANE)
    A("v_and_b32 v26, 1, v16")
    A("v_lshlrev_b32 v26, 1, v26")
    A("v_xor_b32 v25, v25, v26")
    A("v_lshlrev_b32 v25, 4, v25")
    A("v_lshl_add_u32 v%d, v24, %d, v25" % (d, shift))
    A("v_xor_b32 v%d, 64, v%d" % (d + 1, d))

def wqf_reads():
    A("s_lshl_b32 s%d, s%d, 5" % (sT1, sW))
    A("v_xor_b32 v26, s%d, v%d" % (sT1, vWT))
    for t in range(4):
        for hf in range(2):
            A("ds_read_b64_tr_b16 %s, v26 offset:%d" % (vr(WQF + 4 * t + 2 * hf, 2), L_WQ + 4096 * t + 512 * hf))

def dma(vaddr, srdn, so, lds_s, step_so, flags="nt"):
    A("s_mov_b32 m0, s%d" % lds_s)
    A("s_add_u32 s%d, s%d, 1024" % (lds_s, lds_s))
    A("buffer_load_dwordx4 v%d, %s, s%d offen %s lds" % (vaddr, sr(srdn, 4), so, flags))
    A("s_add_u32 s%d, s%d, %d" % (so, so, step_so))

hdr = open("cdna_kernels/%s.s.ref" % NAME).read().split("; Override launch")[0]
L.append(hdr.rstrip("\n") + """
;
; One persistent launch, 256 workgroups (one per CU) x 8 waves.  wg = A(2b):C(3b):j(3b); j = kv head.
; K, V, wq and wo are read from HBM exactly once (LDS-DMA) and stay in registers for both attention layers.
;   roles of a workgroup:  attention (batch A, keys 128C..), q projection (wq rows 128A.., 64 columns C),
;                          output projection (head A of group j, 64 columns C), row reduction (batch A, columns 64C..)
;   waves 0-3: stream K/V, attention, output projection, LayerNorm + mixer + next q projection
;   waves 4-7: first q projection, then the token-mixer MLP g(h) = sum_f gelu(h w1 + b1) w2 + b2 evaluated
;              exactly (all 1792 hidden units) for every bf16 value h with 2^-17 <= |h| < 8; h is a bf16 tensor in the
;              reference, so the mixer is a lookup of these values; any other h is evaluated directly (Lslow).
; Hand-offs between workgroups go through d_ws.  Slots are filled with a sentinel at the start of the launch and a
; consumer polls until no sentinel is left; the first hand-off (q) and the "sentinels are in place" announcements
; carry a tag derived from a word that every launch advances.  Stores inside a kv-head group are plain when the
; whole group reports the same XCC id, write-through otherwise; every poll is bounded.
""".rstrip("\n"))
L.append("; @launch grid=(256,1,1) block=(512,1,1) lds=%d" % LDS_SZ)
L.append('.amdgcn_target "amdgcn-amd-amdhsa--gfx950"')
L.append(".text\n" + (".p2align 12\n" if int(OPT.get("al", 0)) else "") + ".globl %s_kernel\n.p2align 8\n.type %s_kernel,@function\n%s_kernel:" % (NAME, NAME, NAME))
if DIAG: A("s_memrealtime s[42:43]")
if DBL or TOT or MEAS: A("s_memrealtime s[98:99]")
sM = 96
A("s_lshr_b32 s%d, s2, 8" % sT0)
A("s_cbranch_scc1 Lend")
A("s_load_dwordx2 %s, s[0:1], 24" % sr(sWQ, 2))
A("s_load_dwordx4 %s, s[0:1], 0" % sr(sT2, 4))
A("v_readfirstlane_b32 s%d, v0" % sW)
C("every wave pulls one line of this kernel's code into L2 (plain read): 32 workgroups x 4 lines")
A("s_getpc_b64 s[10:11]")
LB("Lpc0")
A("s_lshr_b32 s%d, s2, 3" % sM)
A("s_lshl_b32 s%d, s%d, 9" % (sCNT, sM))
A("s_cmp_lg_u32 s%d, 0" % sW)
A("s_cbranch_scc1 Lnopf")
A("v_and_b32 v19, 3, v0")
A("v_lshl_add_u32 v19, v19, 7, s%d" % sCNT)
A("global_load_dword v%d, v19, s[10:11]" % (W + 8))
LB("Lnopf")
A("s_and_b32 s%d, s2, 7" % sJ)
A("s_lshr_b32 s%d, s2, 6" % sA)
A("s_and_b32 s%d, s%d, 7" % (sC, sM))
A("s_lshl_b32 s%d, 1, 17" % (sWQ + 3))
A("s_bitcmp1_b32 s%d, 8" % sW)
A("s_cbranch_scc0 Lmain0")
vKA, vVA = W + 40, W + 44
sRO, sRM = sVO, 97 if not TOT else 94
if TOT: sRM = sOL
def kv_issue(i):
    A("s_add_u32 m0, s%d, s%d" % (sKL if i < 8 else sVL, sRO))
    A("s_add_u32 s%d, s%d, s%d" % (sCNT, sKO, sRO))
    if i < 8: A("buffer_load_dwordx4 v%d, %s, s%d offen nt lds" % (vKA + (i & 3), sr(sK, 4), sCNT))
    else: A("buffer_load_dwordx4 v%d, %s, s%d offen nt lds" % (vVA + (i & 1), sr(sV, 4), sCNT))
    A("s_addk_i32 s%d, %d" % (sRO, 1024 + (VROT * 1024 if i == 7 else 0)))
    A("s_and_b32 s%d, s%d, 0x1fff" % (sRO, sRO))
def lane_init():
    A("v_and_b32 v%d, 63, v0" % vLANE)
    A("v_mov_b32 v%d, %d" % (vFL, L_FLG))
    A("v_lshlrev_b32 v%d, 4, v%d" % (vL16, vLANE))
    A("v_lshrrev_b32 v16, 4, v%d" % vLANE)
    A("v_and_b32 v17, 15, v%d" % vLANE)
    A("v_mov_b32 v20, 0")
    if DIAG: A("v_mov_b32 v30, 0")
def main_early():
    LB("Lmain0")
    for s, off in [(sW1, 48), (sB1, 56), (sW2, 64)]:
        A("s_load_dwordx2 %s, s[0:1], %d" % (sr(s, 2), off))
    lane_init()
    A("v_mov_b32 v21, 0")
    for k in range(4): A("ds_write_b64 v%d, v[20:21] offset:%d" % (vFL, 8 * k))
    if ADP: A("ds_write_b32 v%d, v20 offset:52" % vFL)
    A("s_lshl_b32 s%d, 1, 25" % (sK + 2)); A("s_mov_b32 s%d, s%d" % (sK + 3, sWQ + 3))
    A("v_xor_b32 v18, v17, v16")
    A("v_lshlrev_b32 v18, 4, v18")
    A("v_lshl_add_u32 v%d, v16, 8, v18" % vKA)
    A("s_lshl_b32 s%d, s%d, %d" % (sRO, sC, 10 if ROT else 31))
    if not ROT: A("s_mov_b32 s%d, 0" % sRO)
    A("s_bfe_u32 s%d, s%d, 0x2000a" % (sT1, sRO))
    A("s_lshl_b32 s%d, s%d, 6" % (sT1, sT1))
    for k in range(1, 4):
        A("s_add_u32 s%d, s%d, %d" % (sCNT, sT1, 64 * k))
        A("s_and_b32 s%d, s%d, 0xc0" % (sCNT, sCNT))
        A("v_xor_b32 v%d, s%d, v%d" % (vKA + k, sCNT, vKA))
    A("v_xor_b32 v%d, s%d, v%d" % (vKA, sT1, vKA))
    soff(sKO, [(sA, 23), (sJ, 20), (sC, 15), (sW, 7)], 3072 * 256)
    A("s_add_u32 s%d, s%d, %d" % (sKL, sT0, L_K))
    A("s_waitcnt lgkmcnt(0)")
    A("s_mov_b64 %s, %s" % (sr(sK, 2), sr(sT4, 2)))
    for i in range(D0): kv_issue(i)
    C("lane k<3 of wave 3 pulls a slice of coefficient array k into L2")
    A("s_cmp_lg_u32 s%d, 192" % sW)
    A("s_cbranch_scc1 Lm_nopf")
    A("s_min_u32 s%d, s%d, 27" % (sT1, sM))
    A("s_lshl_b32 s%d, s%d, 7" % (sT1, sT1))
    A("v_mov_b32 v19, s%d" % sT1)
    A("s_mov_b64 exec, 1")
    for k, sd in enumerate([sW1, sB1, sW2]): A("global_load_dword v%d, v19, %s" % (W + 9 + k, sr(sd, 2)))
    A("s_mov_b64 exec, -1")
    LB("Lm_nopf")
    A("s_add_u32 s%d, s%d, %d" % (sVL, sT0, L_V))
    A("s_lshr_b32 s%d, s%d, 6" % (sW, sW))
    if DIAG: A("v_writelane_b32 v30, s42, 0")
    STAMP(10)
    A("s_branch Lmain")

C("---- helper waves: first q projection, then the table of g over bf16 inputs ----")
HW1, HB1, HW2 = 32, 60, 112
hK0, hK1, hONE, hRES = 88, 90, 92, 94
AC = [140, 142]
A("s_load_dwordx2 %s, s[0:1], 96" % sr(sWS, 2))
C("wq tile DMA: instruction i, thread t' = t-256: row 32 i + (t'>>3), 16-byte chunk (t'&7) ^ swizzle")
A("v_bfe_u32 v23, v0, 3, 5")
A("v_and_b32 v22, 7, v0")
A("v_and_b32 v24, 2, v23")
A("v_lshrrev_b32 v25, 1, v23")
A("v_and_or_b32 v24, v25, 4, v24")
A("v_xor_b32 v22, v22, v24")
A("v_lshlrev_b32 v22, 4, v22")
A("v_lshl_add_u32 v22, v23, 13, v22")
soff(sQL, [(sA, 20), (sJ, 10), (sC, 7)], 0)
A("s_lshl_b32 s%d, 1, 22" % (sWQ + 2))
A("s_lshl_b32 s%d, 1, 18" % sT1)
A("s_lshl_b32 s%d, s%d, 4" % (sQS, sW))
A("s_add_u32 m0, s%d, %d" % (sQS, L_WQ - 4096))
A("v_lshlrev_b32 v21, 4, v0")
if DIAG: A("s_memrealtime s[88:89]")
A("s_waitcnt lgkmcnt(0)")
if DIAG: A("s_memrealtime s[90:91]")
A("global_load_dwordx4 %s, v21, %s offset:-4096" % (vr(XR, 4), sr(sT2, 2)))
for i in range(4):
    if i:
        A("s_addk_i32 m0, 0x1000")
        A("s_add_u32 s%d, s%d, s%d" % (sQL, sQL, sT1))
    A("buffer_load_dwordx4 v22, %s, s%d offen nt lds" % (sr(sWQ, 4), sQL))
if DIAG: A("s_memrealtime s[92:93]")
lane_init()
A("s_bfe_u32 s%d, s%d, 0x20006" % (sW, sW))
A("s_lshl_b32 s%d, s%d, 10" % (sT3, sW))
srd(sWS, WS_SZ)
C("early sentinels (O0, LSE0): hw0 1024 B, the others 16 B")
for i in range(4): A("v_mov_b32 v%d, -1" % (PM + i))
A("s_mul_i32 s%d, s%d, %d" % (sT5, sM, CLRA_PER))
A("s_lshl_b32 s%d, s%d, 17" % (sGR, sJ))
A("s_add_u32 s%d, s%d, s%d" % (sT5, sT5, sGR))
A("s_add_u32 s%d, s%d, 1024" % (sT4, sT5))
A("s_cmp_ge_u32 s%d, 2" % sW)
A("s_cbranch_scc1 Lhc_skip")
A("s_cmp_eq_u32 s%d, 0" % sW)
A("s_cselect_b32 s%d, s%d, s%d" % (sT5, sT5, sT4))
A("s_cselect_b64 exec, -1, 1")
A("buffer_store_dwordx4 %s, v%d, %s, s%d offen sc1" % (vr(PM, 4), vL16, sr(sWS, 4), sT5))
LB("Lhc_skip")
A("s_mov_b64 exec, -1")
A("s_branch Lhelp2")
main_early()
LB("Lhelp2")
if QT:
    C("touch 2 lines of the tagged q mailbox per wave so that they sit in L2 before they are written")
    soff(sT4, [(sM, 10), (sW, 8), (sJ, 17)], Q0_OFF)
    A("v_lshlrev_b32 v24, 7, v%d" % vLANE)
    A("s_mov_b64 exec, 3")
    A("buffer_load_dword v%d, v24, %s, s%d offen" % (RES + 1, sr(sWS, 4), sT4))
A("s_mov_b64 exec, -1")
if HP: A("s_setprio 3")
A("s_load_dword s%d, %s, %s" % (sE, sr(sWS, 2), hx(EPO)))
A("s_load_dwordx2 %s, s[0:1], 72" % sr(sB2P, 2))
if DIAG:
    A("v_writelane_b32 v30, s42, 0")
    A("s_waitcnt lgkmcnt(0)")
    A("v_mov_b32 v31, 0")
    A("v_writelane_b32 v31, s88, 0"); A("v_writelane_b32 v31, s90, 1"); A("v_writelane_b32 v31, s92, 2")
STAMP(9)
A("s_barrier")
A("s_lshl_b32 s%d, s2, 2" % sHC)
A("s_add_u32 s%d, s%d, s%d" % (sHC, sHC, sW))
sHX = 86
if XENT:
    C("extra entry e = wave index: |h| code ELO*128 + (e>>1), sign e&1")
    A("s_lshr_b32 s%d, s%d, 1" % (sHX, sHC))
    A("s_add_u32 s%d, s%d, %d" % (sHX, sHX, ELO * 128))
    A("s_lshl_b32 s%d, s%d, 16" % (sHX, sHX))
    A("s_lshl_b32 s%d, s%d, 31" % (sT0, sHC))
    A("s_or_b32 s%d, s%d, s%d" % (sHX, sHX, sT0))
A("s_mul_i32 s%d, s%d, %d" % (sHC, sHC, EPW))
A("s_lshl_b32 s%d, s%d, 3" % (sHT, sHC))
A("s_add_u32 s%d, s%d, %d" % (sHT, sHT, XENT * 4))
A("s_add_u32 s%d, s%d, %d" % (sHC, sHC, ELO * 128 + XENT // 2))
A("s_lshl_b32 s%d, s%d, 16" % (sHC, sHC))
A("v_lshlrev_b32 v27, 2, v%d" % vLANE)
A("v_add_u32 v27, s%d, v27" % sHT)
A("s_mov_b32 s%d, %s" % (sHT, hx(TB)))
common_addr()
A("s_lshl_b32 s%d, s%d, 1" % (sQS, sQS))
A("s_add_u32 s%d, s%d, s%d" % (sQS, sQS, sGR))
A("s_add_u32 s%d, s%d, %s" % (sQS, sQS, hx(Q0_OFF)))
A("v_lshlrev_b32 v%d, 1, v%d" % (vQST, vQST))
A("s_getreg_b32 s%d, hwreg(HW_REG_XCC_ID, 0, 3)" % sXCC)
for r, c in [(hK0, K0), (hK1, K1), (hONE, 1.0)]:
    A("v_mov_b32 v%d, %s" % (r, hx(f2u(c)))); A("v_mov_b32 v%d, %s" % (r + 1, hx(f2u(c))))
A("v_mov_b32 v%d, 0" % hRES)
A("s_mov_b32 s%d, 0" % sIT)
if DRY:
    C("dry run of the q-projection code while its inputs are in flight (instruction cache warm-up; no side effects)")
    A("s_mov_b32 s%d, 1" % sIT)
    A("s_branch Llnq")
    LB("Ldry_done")
    A("s_mov_b64 exec, -1")
    A("s_mov_b32 s%d, 0" % sIT)
if WARM:
    C("warm the instruction cache lines at the far jump targets of the main waves")
    for k, nm in enumerate(["k", "fin", "out", "tab"]):
        A("s_cmp_lg_u32 s%d, %d" % (sW, k))
        A("s_cbranch_scc1 Lwm%d" % k)
        A("s_call_b64 %s, Lst_%s" % (sr(sRET, 2), nm))
        if nm == "out": A("s_call_b64 %s, Lst_mq" % sr(sRET, 2))
        LB("Lwm%d" % k)
A("s_cmp_ge_u32 s%d, 2" % sW)
A("s_cbranch_scc0 Lhx5")
A("s_waitcnt vmcnt(%d)" % (4 + QT))
LB("Lhx5")
A("s_waitcnt vmcnt(%d)" % (5 + QT))
STAMP(1)
A("s_branch Llnq")
LB("Lq_first")
if DRY:
    A("s_cmp_lg_u32 s%d, 0" % sIT)
    A("s_cbranch_scc1 Lq_dry")
A("s_waitcnt vmcnt(0) lgkmcnt(0)")
STAMP(2)
lds_arrive(0, vT + 4)
tags()
A("s_or_b32 s%d, s%d, s%d" % (sXCC, sXCC, sTG2))
C("4 helper arrivals (wq tile, xn rows) + 4 main arrivals (coefficients landed, sentinels acknowledged)")
lds_spin(0, 4, vT + 4)
STAMP(6)
LB("Lq_dry")
wqf_reads()
A("s_waitcnt lgkmcnt(0)")
A("s_branch Lq_go")
LB("Lh_qst")
if DRY:
    A("s_cmp_lg_u32 s%d, 0" % sIT)
    A("s_cbranch_scc1 Ldry_done")
STAMP(5)
A("v_mov_b32 v%d, s%d" % (W + 6, sTG1))
A("v_mov_b32 v%d, s%d" % (W + 7, sXCC))
A("buffer_store_dwordx4 %s, v%d, %s, s%d offen%s" % (vr(W + 4, 4), vQST, sr(sWS, 4), sQS, "" if int(OPT.get("fast", 1)) else " sc1"))
A("s_add_u32 s%d, s%d, %s" % (sQS, sQS, hx(QB_DELTA)))
if not QBD: A("buffer_store_dwordx4 %s, v%d, %s, s%d offen sc1" % (vr(W + 4, 4), vQST, sr(sWS, 4), sQS))
A("s_mov_b64 exec, -1")
HR = W + 8
if ADP: lds_arrive(52, 24)
if HP: A("s_setprio 0")
STAMP(3)
A("v_lshlrev_b32 v26, 3, v%d" % vLANE)
lds_spin(24, 4, 24, sleep=1)
for a_ in range(3):
    for k in range(3):
        A("ds_read_b128 %s, v%d offset:%d" % (vr(HR + 14 * a_ + 4 * k, 4), vL16, 4096 * a_ + 1024 * k))
    A("ds_read_b64 %s, v26 offset:%d" % (vr(HR + 14 * a_ + 12, 2), 4096 * a_ + 3072))
for a_, d in [(0, HW1), (14, HB1), (28, HW2)]:
    A("s_waitcnt lgkmcnt(%d)" % (8 - 4 * (a_ // 14)))
    for p in range(14):
        A("v_lshlrev_b32 v%d, 16, v%d" % (d + 2 * p, HR + a_ + p))
        A("v_and_b32 v%d, 0xffff0000, v%d" % (d + 2 * p + 1, HR + a_ + p))
A("s_load_dword s%d, %s, 0" % (sB2, sr(sB2P, 2)))
STAMP(4)
if DIAG:
    A("s_memtime s[42:43]"); A("s_waitcnt lgkmcnt(0)"); A("v_writelane_b32 v30, s42, 13")
LB("Lhl")
if DIAG:
    A("s_memrealtime s[42:43]"); A("s_add_u32 m0, s%d, 10" % sIT); A("s_waitcnt lgkmcnt(0)"); A("v_writelane_b32 v30, s42, m0")
A("s_mov_b32 s%d, s%d" % (sH, sHC)); A("s_mov_b32 s%d, s%d" % (sH + 1, sHC))
A("s_xor_b32 s%d, s%d, 0x80000000" % (sH2, sHC)); A("s_mov_b32 s%d, s%d" % (sH2 + 1, sH2))
U4 = [144, 146, 148, 150]; T4 = [152, 154, 156, 158]; Z4 = [160, 162, 164, 166]
for p2 in range(7):
    ch = [(2 * p2 + k // 2, k & 1) for k in range(4)]
    for k, (p, sg) in enumerate(ch):
        A("v_pk_fma_f32 %s, %s, %s, %s" % (vr(U4[k], 2), vr(HW1 + 2 * p, 2), sr([sH, sH2][sg], 2), vr(HB1 + 2 * p, 2)))
    for k in range(4): A("v_pk_mul_f32 %s, %s, %s" % (vr(T4[k], 2), vr(U4[k], 2), vr(U4[k], 2)))
    for k in range(4): A("v_pk_fma_f32 %s, %s, %s, %s" % (vr(T4[k], 2), vr(T4[k], 2), vr(hK1, 2), vr(hK0, 2)))
    for k in range(4): A("v_pk_mul_f32 %s, %s, %s" % (vr(T4[k], 2), vr(T4[k], 2), vr(U4[k], 2)))
    for k in range(4):
        for h in range(2): A("v_exp_f32 v%d, v%d" % (T4[k] + h, T4[k] + h))
    for k, (p, sg) in enumerate(ch): A("v_pk_mul_f32 %s, %s, %s" % (vr(Z4[k], 2), vr(U4[k], 2), vr(HW2 + 2 * p, 2)))
    for k in range(4): A("v_pk_add_f32 %s, %s, %s" % (vr(T4[k], 2), vr(T4[k], 2), vr(hONE, 2)))
    for k in range(4):
        for h in range(2): A("v_rcp_f32 v%d, v%d" % (T4[k] + h, T4[k] + h))
    for k, (p, sg) in enumerate(ch):
        if p == 0: A("v_pk_mul_f32 %s, %s, %s" % (vr(AC[sg], 2), vr(Z4[k], 2), vr(T4[k], 2)))
        else: A("v_pk_fma_f32 %s, %s, %s, %s" % (vr(AC[sg], 2), vr(Z4[k], 2), vr(T4[k], 2), vr(AC[sg], 2)))
A("v_add_f32 v%d, v%d, v%d" % (AC[0], AC[0], AC[0] + 1))
A("v_add_f32 v%d, v%d, v%d" % (AC[1], AC[1], AC[1] + 1))
A("s_lshl_b32 m0, s%d, 1" % sIT)
A("s_add_u32 s%d, s%d, 0x10000" % (sHC, sHC))
wave_sum2(AC[0], AC[1], sSUM, sSQ)
A("s_add_u32 s%d, s%d, 1" % (sIT, sIT))
A("s_nop 0")
A("v_writelane_b32 v%d, s%d, m0" % (hRES, sSUM))
A("s_add_u32 m0, m0, 1")
A("s_cmp_lg_u32 s%d, %d" % (sIT, EPW))
A("v_writelane_b32 v%d, s%d, m0" % (hRES, sSQ))
A("s_cbranch_scc1 Lhl")
def h_publish(lanes):
    A("v_cvt_pk_bf16_f32 v%d, v%d, v%d" % (hRES, hRES, hRES))
    A("v_and_b32 v%d, 0xffff0000, v%d" % (hRES, hRES))
    A("v_add_f32 v%d, s%d, v%d" % (hRES, sB2, hRES))
    A("v_cvt_pk_bf16_f32 v%d, v%d, v%d" % (hRES, hRES, hRES))
    A("v_and_b32 v%d, 0xffff0000, v%d" % (hRES + 1, hRES))
    A("s_mov_b64 exec, %d" % lanes)
    A("buffer_store_dword v%d, v27, %s, s%d offen sc1" % (hRES + 1, sr(sWS, 4), sHT))
    A("s_mov_b64 exec, -1")
A("s_waitcnt lgkmcnt(0)")
A("s_lshl_b32 s%d, s%d, 16" % (sB2, sB2))
lds_spin(8, 4, 24)
h_publish((1 << (2 * EPW)) - 1)
if QBD:
    C("the write-through copy of q is only needed when the group is not known to sit on one XCD")
    A("ds_read_b32 v24, v%d offset:4" % vFL)
    A("s_waitcnt lgkmcnt(0)")
    A("v_readfirstlane_b32 s%d, v24" % sT0)
    A("s_cmp_eq_u32 s%d, 4" % sT0)
    A("s_cbranch_scc1 Lhqb")
    A("s_mov_b64 exec, %s" % sr(sMSK, 2))
    A("buffer_store_dwordx4 %s, v%d, %s, s%d offen sc1" % (vr(W + 4, 4), vQST, sr(sWS, 4), sQS))
    A("s_mov_b64 exec, -1")
    LB("Lhqb")
STAMP(8)
if XENT:
    A("s_mov_b32 s%d, s%d" % (sH, sHX)); A("s_mov_b32 s%d, s%d" % (sH + 1, sHX))
    for grp in [[0, 1, 2, 3], [4, 5, 6, 7], [8, 9, 10], [11, 12, 13]]:
        n = len(grp)
        for k, p in enumerate(grp): A("v_pk_fma_f32 %s, %s, %s, %s" % (vr(U4[k], 2), vr(HW1 + 2 * p, 2), sr(sH, 2), vr(HB1 + 2 * p, 2)))
        for k in range(n): A("v_pk_mul_f32 %s, %s, %s" % (vr(T4[k], 2), vr(U4[k], 2), vr(U4[k], 2)))
        for k in range(n): A("v_pk_fma_f32 %s, %s, %s, %s" % (vr(T4[k], 2), vr(T4[k], 2), vr(hK1, 2), vr(hK0, 2)))
        for k in range(n): A("v_pk_mul_f32 %s, %s, %s" % (vr(T4[k], 2), vr(T4[k], 2), vr(U4[k], 2)))
        for k in range(n):
            for h in range(2): A("v_exp_f32 v%d, v%d" % (T4[k] + h, T4[k] + h))
        for k, p in enumerate(grp): A("v_pk_mul_f32 %s, %s, %s" % (vr(Z4[k], 2), vr(U4[k], 2), vr(HW2 + 2 * p, 2)))
        for k in range(n): A("v_pk_add_f32 %s, %s, %s" % (vr(T4[k], 2), vr(T4[k], 2), vr(hONE, 2)))
        for k in range(n):
            for h in range(2): A("v_rcp_f32 v%d, v%d" % (T4[k] + h, T4[k] + h))
        for k, p in enumerate(grp):
            if p < 2: A("v_pk_mul_f32 %s, %s, %s" % (vr(AC[p & 1], 2), vr(Z4[k], 2), vr(T4[k], 2)))
            else: A("v_pk_fma_f32 %s, %s, %s, %s" % (vr(AC[p & 1], 2), vr(Z4[k], 2), vr(T4[k], 2), vr(AC[p & 1], 2)))
    A("v_add_f32 v%d, v%d, v%d" % (AC[0], AC[0], AC[0] + 1))
    A("v_add_f32 v%d, v%d, v%d" % (AC[1], AC[1], AC[1] + 1))
    A("v_add_f32 v%d, v%d, v%d" % (AC[0], AC[0], AC[1]))
    A("s_nop 1")
    wave_sum2(AC[0], AC[1], sSUM, sSQ)
    A("s_nop 1")
    A("v_mov_b32 v%d, s%d" % (hRES, sSUM))
    A("v_cvt_pk_bf16_f32 v%d, v%d, v%d" % (hRES, hRES, hRES))
    A("v_and_b32 v%d, 0xffff0000, v%d" % (hRES, hRES))
    A("v_add_f32 v%d, s%d, v%d" % (hRES, sB2, hRES))
    A("v_cvt_pk_bf16_f32 v%d, v%d, v%d" % (hRES, hRES, hRES))
    A("v_and_b32 v%d, 0xffff0000, v%d" % (hRES, hRES))
    C("the last of the four helpers stores the workgroup's four extra entries with one instruction")
    A("s_lshl_b32 s%d, s%d, 2" % (sT0, sW))
    A("v_add_u32 v16, s%d, v%d" % (sT0, vFL))
    A("v_mov_b32 v17, 1")
    A("s_mov_b64 exec, 1")
    A("ds_write_b32 v16, v%d offset:32" % hRES)
    A("s_waitcnt lgkmcnt(0)")
    A("ds_add_rtn_u32 v18, v%d, v17 offset:28" % vFL)
    A("s_waitcnt lgkmcnt(0)")
    A("v_readfirstlane_b32 s%d, v18" % sT0)
    A("s_cmp_lg_u32 s%d, 3" % sT0)
    A("s_cbranch_scc1 Lhx_end")
    A("ds_read_b128 v[20:23], v%d offset:32" % vFL)
    A("s_lshl_b32 s%d, s2, 4" % sT0)
    A("v_mov_b32 v16, s%d" % sT0)
    A("s_waitcnt lgkmcnt(0)")
    A("buffer_store_dwordx4 v[20:23], v16, %s, s%d offen sc1" % (sr(sWS, 4), sHT))
    LB("Lhx_end")
    A("s_mov_b64 exec, -1")
if DIAG:
    A("s_memtime s[42:43]"); A("s_waitcnt lgkmcnt(0)"); A("v_writelane_b32 v30, s42, 14")
    STAMP(15)
STAMP(7)
C("stand in at the two barriers of the second layer, so that they do not wait for this wave's store acknowledgements")
A("s_barrier")
A("s_barrier")
if DIAG:
    A("s_add_u32 s%d, s%d, 4" % (sW, sW))
    A("v_mov_b32 v28, v30")
    A("s_branch Lfin_exit")
A("s_endpgm")

LB("Lmain")
for s, off in [(sWS, 96), (sV, 16), (sWO, 32), (sOUT, 80), (sX, 0), (sB2P, 72)]:
    A("s_load_dwordx2 %s, s[0:1], %d" % (sr(s, 2), off))
if MEAS: A("s_load_dwordx2 s[42:43], s[0:1], 88"); A("s_waitcnt lgkmcnt(0)"); A("s_mov_b32 s25, s42"); A("s_mov_b32 s99, s43") if False else None; A("v_mov_b32 v30, s42"); A("v_mov_b32 v31, s43")
srd(sWS, WS_SZ)
for s in [sW1, sB1, sW2]: srd(s, 3584)
A("s_lshl_b32 s%d, s%d, 10" % (sT3, sW))
A("s_barrier")
for i in range(D0, DC): kv_issue(i)
A("s_mov_b32 m0, s%d" % sT3)
for i, sd in enumerate([sW1, sB1, sW2]):
    if i: A("s_addk_i32 m0, 0x1000")
    A("s_nop 0")
    A("buffer_load_dwordx4 v%d, %s, s%d offen lds" % (vL16, sr(sd, 4), sT3))
for i in range(DC, D1): kv_issue(i)
for i in range(4): A("v_mov_b32 v%d, -1" % (W + i))
A("s_lshl_b32 s%d, s%d, 17" % (sGR, sJ))
A("s_mov_b32 s%d, s%d" % (sT1, sM))
A("s_waitcnt lgkmcnt(0)")
A("s_load_dword s%d, %s, %s" % (sE, sr(sWS, 2), hx(EPO)))
STAMP(11)
for s, n in [(sV, 1 << 25), (sX, 4096), (sWO, 1 << 22), (sOUT, 4096)]: srd(s, n)
A("v_lshlrev_b32 v18, 1, v16")
A("v_xor_b32 v18, v17, v18")
A("v_lshlrev_b32 v18, 4, v18")
A("v_lshl_add_u32 v%d, v16, 8, v18" % vVA)
if ROT:
    A("s_and_b32 s%d, s%d, 1" % (sT0, sC))
    A("s_lshl_b32 s%d, s%d, 7" % (sT0, sT0))
    A("v_xor_b32 v%d, s%d, v%d" % (vVA, sT0, vVA))
A("v_xor_b32 v%d, 128, v%d" % (vVA + 1, vVA))
C("late sentinels: wave 0,1: group region ; wave 2: P chunk")
A("s_lshr_b32 s%d, s2, 3" % sT1)
A("s_mul_i32 s%d, s%d, %d" % (sT1, sT1, CLRB_PER))
A("s_lshl_b32 s%d, s%d, 10" % (sT0, sW))
A("s_add_u32 s%d, s%d, s%d" % (sT1, sT1, sT0))
A("s_add_u32 s%d, s%d, s%d" % (sT1, sT1, sGR))
A("s_add_u32 s%d, s%d, %d" % (sT1, sT1, CLRB_OFF))
A("s_lshl_b32 s%d, s2, 10" % sT0)
A("s_add_u32 s%d, s%d, %s" % (sT0, sT0, hx(PB)))
A("s_cmp_ge_u32 s%d, 2" % sW)
A("s_cselect_b32 s%d, s%d, s%d" % (sT1, sT0, sT1))
A("s_bfm_b64 %s, %d, 0" % (sr(sH, 2), (CLRB_PER - 1024) // 16))
A("s_cmp_eq_u32 s%d, 1" % sW)
A("s_cselect_b64 %s, %s, -1" % (sr(sH, 2), sr(sH, 2)))
NCL = NOCT * 4 // 16
A("v_mov_b32 v19, v%d" % vL16)
A("s_cmp_lg_u32 s%d, 3" % sW)
A("s_cbranch_scc1 Lm_c3")
C("wave 3: this workgroup's table slots")
A("s_mul_i32 s%d, s2, %d" % (sT0, NOCT * 4))
A("s_add_u32 s%d, s%d, %d" % (sT0, sT0, XENT * 4))
A("v_add_u32 v19, s%d, v19" % sT0)
A("s_lshl_b32 s%d, s2, 4" % sT0)
if XENT: A("v_writelane_b32 v19, s%d, %d" % (sT0, NCL))
A("s_mov_b32 s%d, %s" % (sT1, hx(TB)))
A("s_mov_b64 %s, %d" % (sr(sH, 2), (1 << (NCL + (1 if XENT else 0))) - 1))
LB("Lm_c3")
A("s_mov_b64 exec, %s" % sr(sH, 2))
A("buffer_store_dwordx4 %s, v19, %s, s%d offen sc1" % (vr(W, 4), sr(sWS, 4), sT1))
A("s_mov_b64 exec, -1")

common_addr()
A("s_add_u32 s%d, s%d, s%d" % (sQS, sQS, sGR))
A("s_add_u32 s%d, s%d, %d" % (sQS, sQS, Q1_OFF))
wtile_voff(10, 22)
A("v_and_b32 v19, 7, v%d" % vLANE)
A("v_lshrrev_b32 v25, 2, v%d" % vLANE)
A("v_lshlrev_b32 v25, 7, v25")
A("v_lshl_add_u32 v%d, v18, 2, v25" % vOST)
A("v_lshlrev_b32 v25, 7, v16")
A("v_lshl_add_u32 v%d, v19, 4, v25" % vOLD)
C("lanes n>=8 of the first two o loads fetch the lse values instead: offset relative to the o block")
A("s_mul_i32 s%d, s%d, %d" % (sT0, sA, 128 - 8192))
A("s_mul_i32 s%d, s%d, %d" % (sT1, sW, 32 - 2048))
A("s_add_u32 s%d, s%d, s%d" % (sT0, sT0, sT1))
A("s_add_u32 s%d, s%d, %d" % (sT0, sT0, LSE_OFF[0] - O_OFF[0]))
A("v_add_u32 v25, s%d, v%d" % (sT0, vLSE))
A("v_xor_b32 v26, 16, v25")
A("v_add_u32 v26, -512, v26")
A("v_cmp_gt_u32 vcc, 8, v17")
A("s_nop 1")
A("v_cndmask_b32 v%d, v25, v%d, vcc" % (vLSE, vOLD))
A("v_cndmask_b32 v%d, v26, v%d, vcc" % (vLS2, vOLD))
A("v_lshlrev_b32 v%d, 1, v%d" % (vPST, vLANE))
A("v_lshlrev_b32 v25, 3, v16")
A("v_lshl_add_u32 v%d, v19, 4, v25" % vX1S)
A("s_mul_i32 s%d, s%d, %d" % (sT0, sW, RBS))
A("s_add_u32 s%d, s%d, %d" % (sT0, sT0, L_RB))
A("v_mul_u32_u24 v25, 528, v18")
A("v_lshl_add_u32 v25, v16, 4, v25")
A("v_lshrrev_b32 v26, 2, v17")
A("v_lshl_add_u32 v25, v26, 7, v25")
A("v_add_u32 v%d, s%d, v25" % (vRBW, sT0))
A("s_mul_i32 s%d, s%d, 528" % (sT0, sW))
A("s_add_u32 s%d, s%d, %d" % (sT0, sT0, L_RB))
A("v_lshlrev_b32 v25, 3, v%d" % vLANE)
A("v_add_u32 v%d, s%d, v25" % (vRBR, sT0))
A("s_lshl_b32 s%d, s%d, 3" % (sT0, sW))
A("s_add_u32 s%d, s%d, %d" % (sT0, sT0, L_ML))
A("v_lshlrev_b32 v25, 5, v18")
A("v_add_u32 v%d, s%d, v25" % (vMLW, sT0))
A("s_lshl_b32 s%d, s%d, 5" % (sT0, sW))
A("s_add_u32 s%d, s%d, %d" % (sT0, sT0, L_ML))
A("v_mov_b32 v%d, s%d" % (vMLR, sT0))
A("v_mov_b32 v25, 0x3f80")
A("v_mov_b32 v26, 0x3f800000")
for r in range(4):
    A("v_cmp_eq_u32 vcc, %d, v17" % (2 * r))
    A("v_cmp_eq_u32 %s, %d, v17" % (sr(sH, 2), 2 * r + 1))
    A("s_nop 0")
    A("v_cndmask_b32 v%d, 0, v25, vcc" % (SEL + r))
    A("v_cndmask_b32 v%d, v%d, v26, %s" % (SEL + r, SEL + r, sr(sH, 2)))
for i in range(16): A("v_mov_b32 v%d, 0" % (PM + i))
for p in range(4):
    A("s_mov_b32 s%d, %s" % (sPM + 2 * p, hx(0x000f000f << (4 * p))))
    A("s_mov_b32 s%d, %s" % (sPM + 2 * p + 1, hx(0x000f000f << (4 * p))))
soff(sOS, [(sW, 13), (sA, 11), (sC, 4), (sJ, 17)], O_OFF[0])
soff(sOL, [(sA, 13), (sW, 11), (sJ, 17)], O_OFF[0])
A("s_add_u32 s%d, s%d, %s" % (sQL, sOL, hx(Q0_OFF - O_OFF[0])))
soff(sLS, [(sW, 7), (sA, 5), (sC, 2), (sJ, 17)], LSE_OFF[0])
soff(sPS, [(sW, 15), (sC, 12), (sJ, 9), (sA, 7)], PB)
A("s_mov_b32 s%d, %s" % (sSC, hx(f2u(128 ** -0.5 * math.log2(math.e)))))
A("s_getreg_b32 s%d, hwreg(HW_REG_XCC_ID, 0, 3)" % sXCC)
A("v_xor_b32 v24, v16, v17")
A("v_lshlrev_b32 v24, 4, v24")
A("v_lshl_add_u32 v24, v17, 8, v24")
A("s_lshl_b32 s%d, s%d, 13" % (sT1, sW))
A("s_add_u32 s%d, s%d, %d" % (sT2, sT1, L_K))
for t in range(4): A("v_xor_b32 v%d, %d, v24" % (18 + t, 64 * t))
for t in range(4): A("v_add_u32 v%d, s%d, v%d" % (18 + t, sT2, 18 + t))
VA = W + 32
A("v_lshrrev_b32 v24, 2, v%d" % vLANE)
A("v_and_b32 v25, 7, v24")
A("v_lshlrev_b32 v25, 1, v25")
A("v_bfe_u32 v26, v%d, 1, 1" % vLANE)
A("v_xor_b32 v25, v25, v26")
A("v_lshlrev_b32 v25, 4, v25")
A("v_lshl_add_u32 v25, v24, 8, v25")
A("v_and_b32 v26, 1, v%d" % vLANE)
A("v_lshl_add_u32 v25, v26, 3, v25")
A("s_add_u32 s%d, s%d, %d" % (sT2, sT1, L_V))
for t in range(8): A("v_xor_b32 v%d, %d, v25" % (VA + t, 32 * t))
for t in range(8): A("v_add_u32 v%d, s%d, v%d" % (VA + t, sT2, VA + t))
soff(sT4, [(sJ, 19), (sA, 17), (sW, 15), (sC, 7)], 0)
A("s_lshl_b32 s%d, s%d, 12" % (sT5, sW))
A("s_add_u32 s%d, s%d, %d" % (sT5, sT5, L_WO))
soff(sT3, [(sA, 10), (sC, 7)], 0)
A("v_lshlrev_b32 v24, 5, v%d" % vLANE)
A("s_lshl_b32 s%d, s%d, 10" % (sT2, sW))
A("s_add_u32 s%d, s%d, %d" % (sT2, sT2, L_QF))
A("v_add_u32 v25, s%d, v%d" % (sT2, vL16))
A("v_add_u32 v26, %d, v%d" % (L_QF, vL16))
STAMP(12)
if DIAG: A("v_mov_b32 v31, v30")
QP = W
def q0_issue(QP=QP):
    A("buffer_load_dwordx4 %s, v24, %s, s%d offen sc1" % (vr(QP, 4), sr(sWS, 4), sQL))
    A("buffer_load_dwordx4 %s, v24, %s, s%d offen offset:16 sc1" % (vr(QP + 4, 4), sr(sWS, 4), sQL))
def flag_block():
    if True:
        A("s_cmp_lg_u32 s%d, 0" % sW)
        A("s_cbranch_scc1 Lnoflag")
        C("every sentinel store of this workgroup is acknowledged: announce it")
        lds_spin(8, 4, vT)
        A("v_mov_b32 v16, s%d" % sTG1)
        A("v_mov_b32 v17, s%d" % sXCC)
        soff(sT1, [(2, 4)], FB)
        A("v_mov_b32 v21, 0")
        A("s_mov_b64 exec, 1")
        A("buffer_store_dwordx2 v[16:17], v21, %s, s%d offen sc1" % (sr(sWS, 4), sT1))
        A("s_mov_b64 exec, -1")
        LB("Lnoflag")
C("coefficients landed -> tell the helpers")
young = D1 - DC + 1
told = False
if ECO:
    A("s_waitcnt vmcnt(%d)" % young); lds_arrive(24, vT); told = True
A("s_mov_b32 s%d, 0" % sY)
for i in range(D1, 16):
    dp = DEPTH if i < TAILI else TAILD
    extra = 1 if i == 16 - QV else 0
    if ADP and told:
        C("stay shallow until the helpers have issued their q stores")
        A("s_cmp_lg_u32 s%d, 0" % sY)
        A("s_cbranch_scc1 Ldp%d" % i)
        A("ds_read_b32 v%d, v%d offset:52" % (vT, vFL))
        A("s_waitcnt lgkmcnt(0)")
        A("v_readfirstlane_b32 s%d, v%d" % (sT1, vT))
        A("s_cmp_ge_u32 s%d, 4" % sT1)
        A("s_cselect_b32 s%d, 1, 0" % sY)
        A("s_cbranch_scc1 Ldp%d" % i)
        A("s_waitcnt vmcnt(%d)" % (dp - 1 - 2 * extra))
        LB("Ldp%d" % i)
        A("s_waitcnt vmcnt(%d)" % (ADP - 1 - 2 * extra))
        if extra: q0_issue(); young += 2
    else:
        if extra:
            A("s_waitcnt vmcnt(%d)" % (dp - 2)); q0_issue(); young += 2
            if DIAG:
                A("s_memrealtime s[42:43]"); A("s_waitcnt lgkmcnt(0)"); A("v_writelane_b32 v31, s42, 9")
        if QV2 and i == 16 - QV2:
            A("s_waitcnt vmcnt(%d)" % (dp - 2)); q0_issue(XR); young += 2
        A("s_waitcnt vmcnt(%d)" % (dp - 1))
    if not told and young >= dp - 1:
        lds_arrive(24, vT); told = True
    kv_issue(i); young += 1
assert told
q0_issue(QP + 8)
C("everything older than the V loads is complete: K, late sentinels")
A("s_waitcnt vmcnt(%d)" % (14 if QV2 else 12))
lds_arrive(8, vT)
A("s_waitcnt lgkmcnt(0)")
tags()
A("s_or_b32 s%d, s%d, s%d" % (sXCC, sXCC, sTG2))
STAMP(1)
for t in range(4):
    for T in range(2):
        A("ds_read_b128 %s, v%d offset:%d" % (vr(KF + 16 * T + 4 * t, 4), 18 + t, 4096 * T))
flag_block()
def wait_w0(n):
    uid[0] += 1
    A("s_cmp_eq_u32 s%d, 0" % sW)
    A("s_cbranch_scc1 Lww%d" % uid[0])
    A("s_waitcnt vmcnt(%d)" % n)
    LB("Lww%d" % uid[0])
    A("s_waitcnt vmcnt(%d)" % (n + 1))
wait_w0(QV + 2 + (2 if QV2 else 0))
STAMP(2)
A("s_setprio 2")
A("s_mov_b32 s%d, %s" % (sCNT, hx(SPIN)))
A("s_mov_b32 s%d, 0" % sY)
A("s_mov_b32 s%d, 0" % sIT)
LB("Lmq")
A("v_and_b32 v16, -8, v%d" % (QP + 3))
A("v_and_b32 v17, -8, v%d" % (QP + 7))
A("v_cmp_ne_u32 vcc, s%d, v%d" % (sTG1, QP + 2))
A("v_cmp_ne_u32 %s, s%d, v%d" % (sr(sRET, 2), sTG1, QP + 6))
A("s_or_b64 vcc, vcc, %s" % sr(sRET, 2))
A("v_cmp_ne_u32 %s, s%d, v16" % (sr(sRET, 2), sTG2))
A("s_or_b64 vcc, vcc, %s" % sr(sRET, 2))
A("v_cmp_ne_u32 %s, s%d, v17" % (sr(sRET, 2), sTG2))
A("s_or_b64 vcc, vcc, %s" % sr(sRET, 2))
if not int(OPT.get("nochk", 0)): A("s_cbranch_vccnz Lmqr")
LB("Lmqd")
if DIAG:
    A("s_sub_u32 s%d, s%d, s%d" % (sT0, sCNT, sY)); A("v_writelane_b32 v31, s%d, 0" % sT0)
Ls = L; L = []
L.append(".p2align 6"); LB("Lst_mq"); A("s_setpc_b64 %s" % sr(sRET, 2))
LB("Lmqr")
A("s_cmp_lg_u32 s%d, 0" % sY)
A("s_cbranch_scc1 Lmqr2")
if QV2:
    A("s_cmp_lg_u32 s%d, 0" % sIT)
    A("s_cbranch_scc1 Lmqr1")
    A("s_mov_b32 s%d, 1" % sIT)
    wait_w0(QV2 + 2)
    for k in range(8): A("v_mov_b32 v%d, v%d" % (QP + k, XR + k))
    A("s_branch Lmq")
    LB("Lmqr1")
C("first look failed: take the second one (V has landed with it: request its fragments now)")
A("s_waitcnt vmcnt(0)")
A("s_mov_b32 s%d, 1" % sY)
for k in range(8): A("v_mov_b32 v%d, v%d" % (QP + k, QP + 8 + k))
if not VLATE:
    for t in range(8):
        for hf in range(2):
            A("ds_read_b64_tr_b16 %s, v%d offset:%d" % (vr(VF + 4 * t + 2 * hf, 2), VA + t, 4096 * hf))
A("s_branch Lmq")
LB("Lmqr2")
C("still not there: poll the plain copy a few times, then both copies in turn")
A("s_cmp_le_u32 s%d, %s" % (sCNT, hx(SPIN - 6)))
A("s_cselect_b32 s%d, %s, 0" % (sT0, hx(QB_DELTA)))
A("s_xor_b32 s%d, s%d, s%d" % (sQL, sQL, sT0))
q0_issue()
A("s_waitcnt vmcnt(0)")
A("s_sub_u32 s%d, s%d, 1" % (sCNT, sCNT))
A("s_cbranch_scc0 Lmq")
A("s_branch Lmqd")
ool.append(L); L = Ls
A("v_cmp_ne_u32 vcc, s%d, v%d" % (sXCC, QP + 3))
A("v_mov_b32 v%d, v%d" % (QP + 2, QP + 4))
A("v_mov_b32 v%d, v%d" % (QP + 3, QP + 5))
A("ds_write_b128 v25, %s" % vr(QP, 4))
A("s_cmp_eq_u64 vcc, 0")
A("s_cselect_b32 s%d, 1, 0x101" % sT0)
A("v_mov_b32 v16, s%d" % sT0)
A("s_waitcnt lgkmcnt(0)")
lds_arrive(4, 16, None)
if VLATE:
    A("s_cmp_eq_u32 s%d, 0" % sY)
    A("s_cbranch_scc1 Lnvf")
    for t in range(8):
        for hf in range(2):
            A("ds_read_b64_tr_b16 %s, v%d offset:%d" % (vr(VF + 4 * t + 2 * hf, 2), VA + t, 4096 * hf))
    LB("Lnvf")
STAMP(15)
A("buffer_load_dwordx2 %s, v%d, %s, s%d offen" % (vr(RES + 2, 2), vX1S, sr(sX, 4), sT3))
FLG = W + 44
soff(sIT, [(sW, 10)], FB)
soff(sQL, [(sA, 12), (sJ, 17)], Q1_OFF)
for k in range(4):
    A("s_add_u32 s%d, s%d, %d" % (sT0, sC, k))
    A("s_and_b32 s%d, s%d, 3" % (sT0, sT0))
    A("s_lshl_b32 s%d, s%d, 10" % (sKO + k, sT0))
A("s_and_b32 s%d, s%d, 1" % (sT0, sC))
A("s_lshl_b32 s%d, s%d, 6" % (sT0, sT0))
A("v_xor_b32 v22, s%d, v22" % sT0); A("v_xor_b32 v23, s%d, v23" % sT0)
A("s_lshl_b32 s%d, s%d, 2" % (sT3, sM))
A("s_add_u32 s%d, s%d, s%d" % (sT3, sT3, sW))
A("s_lshl_b32 s%d, s%d, 8" % (sT3, sT3))
A("v_lshlrev_b32 v21, 7, v%d" % vLANE)
A("v_add_u32 v21, s%d, v21" % sT3)
A("s_lshl_b32 s%d, s%d, 7" % (sT0, sW))
A("s_add_u32 s%d, s%d, %d" % (sT0, sT0, LSE_OFF[0]))
A("v_writelane_b32 v21, s%d, 2" % sT0)
lds_spin(4, 4, vT, mask=0xff)
A("s_cmp_lt_u32 s%d, 256" % sT1)
A("s_cselect_b32 s%d, %d, 0" % (sFAST, int(OPT.get("fast", 1))))
QF = W + 16
for t in range(4):
    A("ds_read_b128 %s, v26 offset:%d" % (vr(QF + 4 * t, 4), 1024 * t))
S = W
qk = []
for t in range(4):
    for T in range(2):
        qk.append(mf(S + 4 * T, KF + 16 * T + 4 * t, QF + 4 * t, None if t == 0 else S + 4 * T))
for t in range(4):
    A("s_waitcnt lgkmcnt(%d)" % (3 - t))
    A(qk[2 * t]); A(qk[2 * t + 1])
def wo_issue():
    C("every wave holds its K fragments: the wo tile may land in the K area")
    for k in range(4):
        A("s_add_u32 m0, s%d, s%d" % (sT5, sKO + k))
        A("s_lshl3_add_u32 s%d, s%d, s%d" % (sT0, sKO + k, sT4))
        A("buffer_load_dwordx4 v%d, %s, s%d offen nt lds" % (22 + (k & 1), sr(sWO, 4), sT0))
if WOP == 0: wo_issue()
if PRET:
    C("bring the first layer's o / lse lines (their sentinels are in place) into L2")
    A("s_mov_b64 exec, 7")
    A("buffer_load_dword v%d, v21, %s, s%d offen sc1" % (W + 40, sr(sWS, 4), sGR))
    A("s_mov_b64 exec, -1")
STAMP(3)
A("s_branch Lk_go")

LB("Llnq")
C("LayerNorm of the row held in XR, then q partial = xn @ wq tile")
X = W
row_stats(XR, vT, X)
A("v_add_f32 v%d, %s, v%d" % (vT + 1, EPS, vT + 1))
A("v_rsq_f32 v%d, v%d" % (vT + 2, vT + 1))
A("s_cmp_eq_u32 s%d, 0" % sLAY)
A("v_mul_f32 v%d, v%d, v%d" % (vT + 3, vT, vT + 2))
for i in range(4):
    A("v_pk_fma_f32 %s, %s, %s, %s op_sel:[0,0,1] op_sel_hi:[1,0,1] neg_lo:[0,0,1] neg_hi:[0,0,1]" % (vr(X + 2 * i, 2), vr(X + 2 * i, 2), vr(vT + 2, 2), vr(vT + 2, 2)))
for i in range(4):
    A("v_cvt_pk_bf16_f32 v%d, v%d, v%d" % (X + 8 + i, X + 2 * i, X + 2 * i + 1))
A("ds_write_b128 v%d, %s" % (vXNW, vr(X + 8, 4)))
A("s_cbranch_scc1 Lq_first")
A("s_waitcnt lgkmcnt(0)")
A("s_barrier")
LB("Lq_go")
BF = W + 16
for t in range(4):
    A("ds_read_b128 %s, v%d offset:%d" % (vr(BF + 4 * t, 4), vXNR, 64 * t))
for t in range(4):
    A("s_waitcnt lgkmcnt(%d)" % (3 - t))
    mfma(W, WQF + 4 * t, BF + 4 * t, None if t == 0 else W)
A("s_cmp_eq_u32 s%d, 0" % sLAY)
A("s_mov_b64 exec, %s" % sr(sMSK, 2))
NOP(6)
A("v_cvt_pk_bf16_f32 v%d, v%d, v%d" % (W + 4, W, W + 1))
A("v_cvt_pk_bf16_f32 v%d, v%d, v%d" % (W + 5, W + 2, W + 3))
A("s_cbranch_scc1 Lh_qst")
fastcmp()
store_local("buffer_store_dwordx2", vr(W + 4, 2), vQST, sQS)
A("s_mov_b64 exec, -1")
A("ds_write_b128 v%d, %s offset:%d" % (vXNW, vr(XR, 4), L_X2 - L_XN))
A("s_mov_b32 s%d, 0" % sY)
for s, d in [(sOL, O_OFF[1] - O_OFF[0]), (sOS, O_OFF[1] - O_OFF[0]), (sLS, LSE_OFF[1] - LSE_OFF[0]), (sPS, P_L)]:
    A("s_add_u32 s%d, s%d, %d" % (s, s, d))
STAMP(2)

C("attention over this workgroup's 128 keys")
if QS:
    C("each wave fetches one k-step of q and shares it through LDS")
    A("s_lshl_b32 s%d, s%d, 10" % (sT3, sW))
    A("s_add_u32 s%d, s%d, s%d" % (sT4, sQL, sT3))
    A("s_add_u32 s%d, s%d, %d" % (sT3, sT3, L_RB + 12288))
    A("v_add_u32 v25, s%d, v%d" % (sT3, vL16))
    A("v_add_u32 v26, %d, v%d" % (L_RB + 12288, vL16))
    ppoll(lambda k: A("buffer_load_dwordx4 %s, v%d, %s, s%d offen sc1" % (vr(W + 32 + 4 * k, 4), vL16, sr(sWS, 4), sT4)),
          lambda k: range(W + 32 + 4 * k, W + 36 + 4 * k), 1, vT, lambda k: ["ds_write_b128 v25, %s" % vr(W + 32 + 4 * k, 4)], pre=QPRE, gap=QGAP, tag=0)
    A("s_waitcnt lgkmcnt(0)")
    A("s_barrier")
    for t in range(4):
        A("ds_read_b128 %s, v26 offset:%d" % (vr(QF + 4 * t, 4), 1024 * t))
    for t in range(4):
        A("s_waitcnt lgkmcnt(%d)" % (3 - t))
        A(qk[2 * t]); A(qk[2 * t + 1])
    touch_stub("k")
else:
    def iq(k):
        for t in range(4):
            A("buffer_load_dwordx4 %s, v%d, %s, s%d offen offset:%d sc1" % (vr(QF + 16 * k + 4 * t, 4), vL16, sr(sWS, 4), sQL, 1024 * t))
    def qks(k):
        return [mf(S + 4 * T, KF + 16 * T + 4 * t, QF + 16 * k + 4 * t, None if t == 0 else S + 4 * T) for t in range(4) for T in range(2)]
    ppoll(iq, lambda k: range(QF + 16 * k, QF + 16 * k + 16), 4, vT, qks, pre=QPRE, gap=QGAP, tag=0, stub="k", per_load=lambda k, i: qks(k)[2 * i:2 * i + 2])
STAMP(3)
LB("Lk_go")
NOP(5)
for ctl in ["row_ror:4", "row_ror:8"]:
    for i in range(8):
        A("v_add_f32_dpp v%d, v%d, v%d %s row_mask:0xf bank_mask:0xf" % (S + i, S + i, S + i, ctl))
A("v_max3_f32 v%d, v%d, v%d, v%d" % (vT, S, S + 1, S + 2))
A("v_max3_f32 v%d, v%d, v%d, v%d" % (vT + 1, S + 3, S + 4, S + 5))
A("v_max3_f32 v%d, v%d, v%d, v%d" % (vT, vT, S + 6, S + 7))
A("v_max_f32 v%d, v%d, v%d" % (vT, vT, vT + 1))
A("v_mov_b32 v%d, v%d" % (vT + 1, vT))
A("s_nop 1")
A("v_permlane16_swap_b32 v%d, v%d" % (vT, vT + 1))
A("v_max_f32 v%d, v%d, v%d" % (vT, vT, vT + 1))
A("v_mov_b32 v%d, v%d" % (vT + 1, vT))
A("s_nop 1")
A("v_permlane32_swap_b32 v%d, v%d" % (vT, vT + 1))
A("v_max_f32 v%d, v%d, v%d" % (vT, vT, vT + 1))
A("v_mul_f32 v%d, s%d, v%d" % (vT + 2, sSC, vT))
for i in range(8):
    A("v_fma_f32 v%d, v%d, s%d, -v%d" % (S + i, S + i, sSC, vT + 2))
for i in range(8):
    A("v_exp_f32 v%d, v%d" % (S + i, S + i))
for p in range(4):
    A("s_mov_b64 exec, %s" % sr(sPM + 2 * p, 2))
    for i in range(4):
        A("v_cvt_pk_bf16_f32 v%d, v%d, v%d" % (PM + 4 * p + i, S + 2 * i, S + 2 * i + 1))
A("s_mov_b64 exec, -1")
STAMP(4)
A("s_cmp_lg_u32 s%d, 0" % sLAY)
A("s_cbranch_scc1 Lv_go")
wait_w0((5 if WOP == 0 else 1) + PRET)
if WOP == 1: wo_issue()
A("buffer_load_dwordx4 %s, v%d, %s, s%d offen sc1" % (vr(FLG, 4), vL16, sr(sWS, 4), sIT))
STAMP(6)
A("s_cmp_lg_u32 s%d, 0" % sY)
A("s_cbranch_scc1 Lv_have")
for t in range(8):
    for hf in range(2):
        A("ds_read_b64_tr_b16 %s, v%d offset:%d" % (vr(VF + 4 * t + 2 * hf, 2), VA + t, 4096 * hf))
A("s_waitcnt lgkmcnt(0)")
LB("Lv_have")
if TOT or MEAS:
    A("s_memrealtime s[42:43]"); A("s_waitcnt lgkmcnt(0)"); A("s_mov_b32 s97, s42")
A("s_cmp_lg_u32 s%d, 0" % sLAY)
LB("Lv_go")
OA = W + 8
mfma(W + 16, ONES, PM, None)
for p in range(4):
    for T in range(2):
        mfma(OA + 4 * T, VF + 4 * (2 * p + T), PM + 4 * p, None if p == 0 else OA + 4 * T)
A("s_mov_b64 exec, %s" % sr(sMSK, 2))
A("v_mov_b32 v%d, v%d" % (vT + 3, W + 16))
A("ds_write_b64 v%d, %s" % (vMLW, vr(vT + 2, 2)))
A("s_mov_b64 exec, -1")
NOP(3)
A("ds_write_b128 v%d, %s" % (vRBW, vr(OA, 4)))
A("ds_write_b128 v%d, %s offset:64" % (vRBW, vr(OA + 4, 4)))
A("s_waitcnt lgkmcnt(0)")
A("s_cbranch_scc1 Lrb_bar")
lds_arrive(12, vT + 4)
if WOP == 2: wo_issue()
lds_spin(12, 4, vT + 4)
A("s_branch Lrb_go")
LB("Lrb_bar")
A("s_barrier")
LB("Lrb_go")
A("ds_read_b128 %s, v%d" % (vr(W, 4), vMLR))
A("ds_read_b128 %s, v%d offset:16" % (vr(W + 4, 4), vMLR))
for w in range(4):
    A("ds_read_b64 %s, v%d offset:%d" % (vr(W + 8 + 2 * w, 2), vRBR, RBS * w))
A("v_mov_b32 v%d, 0" % (vT + 4))
fastcmp()
A("s_waitcnt lgkmcnt(4)")
A("v_max3_f32 v%d, v%d, v%d, v%d" % (vT, W, W + 2, W + 4))
A("v_max_f32 v%d, v%d, v%d" % (vT, vT, W + 6))
for w in range(4): A("v_sub_f32 v%d, v%d, v%d" % (W + 2 * w, W + 2 * w, vT))
for w in range(4): A("v_exp_f32 v%d, v%d" % (W + 2 * w, W + 2 * w))
A("v_mul_f32 v%d, v%d, v%d" % (vT + 1, W, W + 1))
for w in range(1, 4): A("v_fmac_f32 v%d, v%d, v%d" % (vT + 1, W + 2 * w, W + 2 * w + 1))
A("s_waitcnt lgkmcnt(0)")
A("v_pk_mul_f32 %s, %s, %s op_sel_hi:[1,0]" % (vr(W + 8, 2), vr(W + 8, 2), vr(W, 2)))
A("v_rcp_f32 v%d, v%d" % (vT + 2, vT + 1))
A("v_pk_fma_f32 %s, %s, %s, %s op_sel_hi:[1,0,1]" % (vr(W + 8, 2), vr(W + 10, 2), vr(W + 2, 2), vr(W + 8, 2)))
A("v_log_f32 v%d, v%d" % (vT + 5, vT + 1))
for w in range(2, 4):
    A("v_pk_fma_f32 %s, %s, %s, %s op_sel_hi:[1,0,1]" % (vr(W + 8, 2), vr(W + 8 + 2 * w, 2), vr(W + 2 * w, 2), vr(W + 8, 2)))
A("v_pk_mul_f32 %s, %s, %s op_sel_hi:[1,0]" % (vr(W + 8, 2), vr(W + 8, 2), vr(vT + 2, 2)))
A("v_add_f32 v%d, v%d, v%d" % (vT + 5, vT + 5, vT))
A("v_cvt_pk_bf16_f32 v%d, v%d, v%d" % (W + 8, W + 8, W + 9))
store_local("buffer_store_dword", "v%d" % (W + 8), vOST, sOS)
A("s_mov_b64 exec, 1")
store_local("buffer_store_dword", "v%d" % (vT + 5), vT + 4, sLS)
A("s_mov_b64 exec, -1")
STAMP(5)

C("wo phase: wave = batch, rows = key splits")
OF = W; LS = W + 32; DA = WQF
assert LSE_OFF[1] - O_OFF[1] == LSE_OFF[0] - O_OFF[0]
def io(k):
    for t in range(4):
        A("buffer_load_dwordx4 %s, v%d, %s, s%d offen offset:%d sc1" % (vr(OF + 16 * k + 4 * t, 4), [vLSE, vLS2, vOLD, vOLD][t], sr(sWS, 4), sOL, 512 * t))
A("s_cmp_lg_u32 s%d, 0" % sLAY)
A("s_cbranch_scc1 Lo_go")
C("first layer: wo tile landed -> fragments; every workgroup has announced its clears")
if WOP == 3: wo_issue()
A("s_waitcnt vmcnt(%d)" % (2 if WOP < 3 else 0))
STAMP(13)
A("s_mov_b32 s%d, %s" % (sT4, hx(SPIN)))
LB("Lap")
A("v_and_b32 v24, -8, v%d" % (FLG + 1))
A("v_cmp_ne_u32 vcc, s%d, v%d" % (sTG1, FLG))
A("v_cmp_ne_u32 %s, s%d, v24" % (sr(sH, 2), sTG2))
A("s_or_b64 vcc, vcc, %s" % sr(sH, 2))
A("s_cbranch_vccnz Lar")
LB("Lad")
lds_arrive(16, 24)
for i in range(2):
    A("v_lshlrev_b32 v%d, 16, v%d" % (W + 40 + 2 * i, RES + 2 + i))
    A("v_and_b32 v%d, 0xffff0000, v%d" % (W + 41 + 2 * i, RES + 2 + i))
for i in range(4): A("v_mov_b32 v%d, v%d" % (RES + i, W + 40 + i))
for ct in range(4): A("v_xor_b32 v%d, %d, v%d" % (W + 40 + ct, 32 * ct, vWT))
for ct in range(4): A("v_add_u32 v%d, %d, v%d" % (W + 40 + ct, L_WO, W + 40 + ct))
lds_spin(16, 4, 24)
STAMP(14)
A("s_mov_b32 s%d, 1" % sY)
LB("Lo_go")
A("s_mov_b32 s%d, 0x55555555" % sT4)
A("s_mov_b32 s%d, 0x55555555" % sT5)
def pre_o():
    A("s_cmp_eq_u32 s%d, 0" % sY)
    A("s_cbranch_scc1 Lo_nof")
    A("s_mov_b32 s%d, 0" % sY)
    for t in range(4):
        for ct in range(4):
            for hf in range(2):
                A("ds_read_b64_tr_b16 %s, v%d offset:%d" % (vr(WOF + 16 * ct + 4 * t + 2 * hf, 2), W + 40 + ct, 4096 * t + 512 * hf))
    LB("Lo_nof")
ool.append(["Lar:", "    s_lshl_b32 s%d, s%d, 10" % (sT5, sW), "    s_add_u32 s%d, s%d, %s" % (sT5, sT5, hx(FB)),
            "    buffer_load_dwordx4 %s, v%d, %s, s%d offen sc1" % (vr(FLG, 4), vL16, sr(sWS, 4), sT5),
            "    s_waitcnt vmcnt(0)", "    s_sub_u32 s%d, s%d, 1" % (sT4, sT4), "    s_cbranch_scc0 Lap", "    s_branch Lad"])
C("softmax over the 8 key splits: lanes n>=8 hold own lse in OF[0:3], the other four in OF[4:7]")
vU = vT + 2
def wo_all(k, t):
    o = OF + 16 * k
    m = [mf(DA + 4 * ct, o + 4 * t, WOF + 16 * ct + 4 * t, None if t == 0 else DA + 4 * ct) for ct in range(4)]
    va = ["v_max3_f32 v%d, v%d, v%d, v%d" % (vU, o, o + 1, o + 2), "v_max3_f32 v%d, v%d, v%d, v%d" % (vU + 1, o + 3, o + 4, o + 5),
          "v_max3_f32 v%d, v%d, v%d, v%d" % (vU, vU, o + 6, o + 7), "v_max_f32 v%d, v%d, v%d" % (vU, vU, vU + 1)]
    va += ["v_sub_f32 v%d, v%d, v%d" % (LS + i, o + i, vU) for i in range(4)]
    va += ["v_exp_f32 v%d, v%d" % (LS + i, LS + i) for i in range(4)]
    vb = ["v_mov_b32_dpp v%d, v%d row_ror:8 row_mask:0xf bank_mask:0x3" % (LS + i, LS + i) for i in range(4)]
    vb += ["v_add_f32 v%d, v%d, v%d" % (vU, LS, LS + 1), "v_add_f32 v%d, v%d, v%d" % (vU + 1, LS + 2, LS + 3),
           "v_add_f32 v%d, v%d, v%d" % (vU, vU, vU + 1), "v_mov_b32 v%d, v%d" % (vU + 1, vU)]
    f = {0: [], 1: va[:4], 2: va[4:], 3: vb}[t]
    out = ["s_waitcnt lgkmcnt(%d)" % [15, 15, 8, 0][t]] if t != 1 else []
    for x in m:
        out.append(x)
        for _ in range(2):
            if f: out.append(f.pop(0))
    return out
assert PROG and OGAP < 0
ppoll(io, lambda k: range(OF + 16 * k, OF + 16 * k + 16), 4, vT, None, pre=OPRE, gap=OGAP, mid=pre_o, tag=1, per_load=wo_all)
STAMP(7)
A("v_permlane16_swap_b32 v%d, v%d" % (vU, vU + 1))
A("v_mul_f32 v%d, v%d, v%d" % (DA, DA, LS))
A("v_add_f32 v%d, v%d, v%d" % (vT, vU, vU + 1))
A("v_mul_f32 v%d, v%d, v%d" % (DA + 4, DA + 4, LS))
A("v_rcp_f32 v%d, v%d" % (vT, vT))
A("v_mul_f32 v%d, v%d, v%d" % (DA + 8, DA + 8, LS))
for i in range(1, 4):
    for ct in range(3):
        A("v_fmac_f32 v%d, v%d, v%d" % (DA + 4 * ct, DA + 4 * ct + i, LS + i))
    if i == 1: A("v_mul_f32 v%d, v%d, v%d" % (DA + 12, DA + 12, LS))
for i in range(1, 4): A("v_fmac_f32 v%d, v%d, v%d" % (DA + 12, DA + 12 + i, LS + i))
A("v_permlane16_swap_b32 v%d, v%d" % (DA, DA + 4))
A("s_nop 0")
A("v_permlane16_swap_b32 v%d, v%d" % (DA + 8, DA + 12))
A("v_add_f32 v%d, v%d, v%d" % (DA, DA, DA + 4))
A("v_add_f32 v%d, v%d, v%d" % (DA + 8, DA + 8, DA + 12))
A("s_nop 1")
A("v_permlane32_swap_b32 v%d, v%d" % (DA, DA + 8))
A("v_mul_f32 v%d, v%d, v%d" % (DA, DA, vT))
A("s_cmp_lg_u32 s%d, 0" % sLAY)
A("s_nop 0")
A("v_mov_b32_dpp v%d, v%d quad_perm:[1,0,3,2] row_mask:0xf bank_mask:0xf" % (DA + 1, DA))
A("s_mov_b64 exec, %s" % sr(sT4, 2))
A("v_cvt_pk_bf16_f32 v%d, v%d, v%d" % (DA, DA, DA + 1))
A("buffer_store_dword v%d, v%d, %s, s%d offen sc1" % (DA, vPST, sr(sWS, 4), sPS))
A("s_mov_b64 exec, -1")
STAMP(8)
A("s_cbranch_scc1 Lfinal")

if PRET:
    C("same for the remaining lines of the group's mailboxes")
    soff(sT1, [(sM, 11), (sW, 9), (sJ, 17)], CLRB_OFF)
    A("v_lshlrev_b32 v21, 7, v%d" % vLANE)
    A("s_mov_b64 exec, 15")
    A("buffer_load_dword v%d, v21, %s, s%d offen sc1" % (W + 47, sr(sWS, 4), sT1))
    A("s_mov_b64 exec, -1")
A("s_cmp_lg_u32 s%d, 0" % sW)
A("s_cbranch_scc1 Ltab")
C("stage 1 (wave 0): reduce 32 head partials of 64 outputs, add residual, publish x1 slice")
soff(sT1, [(sA, 15), (sC, 12)], PB)
soff(sT2, [(sA, 10), (sC, 7), (sJ, 17)], X1_OFF)
A("s_mov_b32 s%d, 0x00ff00ff" % sT4)
A("s_mov_b32 s%d, 0" % sT5)
def ip(k):
    for i in range(4):
        A("buffer_load_dwordx4 %s, v%d, %s, s%d offen offset:%d sc1" % (vr(W + 20 * k + 4 * i, 4), vL16, sr(sWS, 4), sT1, 1024 * i))
if GW: A("s_waitcnt vmcnt(0)")
ppoll(ip, lambda k: range(W + 20 * k, W + 20 * k + 16), 4, vT, lambda k: [mf(W + 16, SEL, W + 20 * k + 4 * i, None if i == 0 else W + 16) for i in range(4)], pre=GPRE, gap=GGAP, tag=2,
      per_load=lambda k, i: [mf(W + 16, SEL, W + 20 * k + 4 * i, None if i == 0 else W + 16)])
STAMP(9)
fastcmp()
NOP(3)
for i in range(4):
    A("v_add_f32_dpp v%d, v%d, v%d row_ror:8 row_mask:0xf bank_mask:0xf" % (W + 16 + i, W + 16 + i, W + 16 + i))
A("s_mov_b64 exec, %s" % sr(sT4, 2))
A("v_pk_add_f32 %s, %s, %s" % (vr(W + 16, 2), vr(W + 16, 2), vr(RES, 2)))
A("v_pk_add_f32 %s, %s, %s" % (vr(W + 18, 2), vr(W + 18, 2), vr(RES + 2, 2)))
A("v_cvt_pk_bf16_f32 v%d, v%d, v%d" % (W + 16, W + 16, W + 17))
A("v_cvt_pk_bf16_f32 v%d, v%d, v%d" % (W + 17, W + 18, W + 19))
store_local("buffer_store_dwordx2", vr(W + 16, 2), vX1S, sT2)
A("s_mov_b64 exec, -1")
LB("Ltabdone")
soff(sT3, [(sW, 10), (sJ, 17)], X1_OFF)
def ix(k):
    A("buffer_load_dwordx4 %s, v%d, %s, s%d offen sc1" % (vr([XR, RES][k], 4), vL16, sr(sWS, 4), sT3))
wqf_reads()
ppoll(ix, lambda k: range([XR, RES][k], [XR, RES][k] + 4), 1, vT, lambda k: ["s_waitcnt lgkmcnt(0)", "v_readfirstlane_b32 s%d, v%d" % (sT1, vT + 2)],
      pre=XPRE, gap=XGAP, mid=lambda: A("ds_read_b32 v%d, v%d offset:20" % (vT + 2, vFL)), tag=3,
      fix=["v_mov_b32 v%d, v%d" % (XR + i, RES + i) for i in range(4)])
A("s_cmp_lt_u32 s%d, 3" % sT1)
A("s_cbranch_scc1 Ltw")
LB("Ltwd")
STAMP(10)

LB("Lmix")
C("x <- x + g(LN(LN(x))) ; g is tabulated for every bf16 input in range, evaluated directly otherwise")
X = W; HB = W + 8; RT = W + 12; AD = W + 16; Y = W + 24
row_stats(XR, vT, X)
A("v_add_f32 v%d, %s, v%d" % (vT + 2, EPS, vT + 1))
A("v_rsq_f32 v%d, v%d" % (vT + 2, vT + 2))
A("v_mov_b32 v%d, %s" % (vT + 4, hx(LO2 | (LO2 << 16))))
A("s_movk_i32 s%d, %d" % (sT5, NENT * 4))
A("v_mul_f32 v%d, v%d, v%d" % (vT + 1, vT + 1, vT + 2))
A("v_fmaak_f32 v%d, v%d, v%d, %s" % (vT + 1, vT + 1, vT + 2, EPS))
A("v_rsq_f32 v%d, v%d" % (vT + 1, vT + 1))
A("s_nop 0")
A("v_mul_f32 v%d, v%d, v%d" % (vT + 2, vT + 2, vT + 1))
A("v_mul_f32 v%d, v%d, v%d" % (vT + 3, vT, vT + 2))
for i in range(4):
    A("v_pk_fma_f32 %s, %s, %s, %s op_sel:[0,0,1] op_sel_hi:[1,0,1] neg_lo:[0,0,1] neg_hi:[0,0,1]" % (vr(AD + 2 * i, 2), vr(X + 2 * i, 2), vr(vT + 2, 2), vr(vT + 2, 2)))
for i in range(4):
    A("v_cvt_pk_bf16_f32 v%d, v%d, v%d" % (HB + i, AD + 2 * i, AD + 2 * i + 1))
for i in range(4):
    A("v_pk_lshlrev_b16 v%d, 1, v%d op_sel_hi:[0,1]" % (RT + i, HB + i))
    A("v_pk_lshrrev_b16 v%d, 15, v%d op_sel_hi:[0,1]" % (AD + i, HB + i))
for i in range(4):
    A("v_or_b32 v%d, v%d, v%d" % (RT + i, RT + i, AD + i))
for i in range(4):
    A("v_pk_sub_u16 v%d, v%d, v%d" % (RT + i, RT + i, vT + 4))
for i in range(4):
    A("v_lshlrev_b32_sdwa v%d, 2, v%d dst_sel:DWORD dst_unused:UNUSED_PAD src0_sel:DWORD src1_sel:WORD_0" % (AD + 2 * i, RT + i))
    A("v_lshlrev_b32_sdwa v%d, 2, v%d dst_sel:DWORD dst_unused:UNUSED_PAD src0_sel:DWORD src1_sel:WORD_1" % (AD + 2 * i + 1, RT + i))
    A("ds_read_b32 v%d, v%d offset:%d" % (Y + 2 * i, AD + 2 * i, L_TAB))
    A("ds_read_b32 v%d, v%d offset:%d" % (Y + 2 * i + 1, AD + 2 * i + 1, L_TAB))
A("v_max3_u32 v%d, v%d, v%d, v%d" % (vT, AD, AD + 1, AD + 2))
A("v_max3_u32 v%d, v%d, v%d, v%d" % (vT + 1, AD + 3, AD + 4, AD + 5))
A("v_max3_u32 v%d, v%d, v%d, v%d" % (vT, vT, AD + 6, AD + 7))
A("v_max_u32 v%d, v%d, v%d" % (vT, vT, vT + 1))
A("v_cmp_le_u32 %s, s%d, v%d" % (sr(sH, 2), sT5, vT))
A("s_waitcnt lgkmcnt(5)")
A("v_max3_u32 v%d, v%d, v%d, v%d" % (vT, Y, Y + 1, Y + 2))
A("s_waitcnt lgkmcnt(2)")
A("v_max3_u32 v%d, v%d, v%d, v%d" % (vT + 1, Y + 3, Y + 4, Y + 5))
A("s_waitcnt lgkmcnt(0)")
A("v_max3_u32 v%d, v%d, v%d, v%d" % (vT, vT, Y + 6, Y + 7))
A("v_max_u32 v%d, v%d, v%d" % (vT, vT, vT + 1))
A("v_cmp_eq_u32 vcc, -1, v%d" % vT)
LB("Lslowdone")
for i in range(4):
    A("v_pk_add_f32 %s, %s, %s" % (vr(vT + 2 + 2 * i, 2), vr(X + 2 * i, 2), vr(Y + 2 * i, 2)))
A("s_or_b64 vcc, vcc, %s" % sr(sH, 2))
A("s_cbranch_vccnz Lslow")
A("s_cmp_lg_u32 s%d, 0" % sLAY)
for i in range(4):
    A("v_cvt_pk_bf16_f32 v%d, v%d, v%d" % (XR + i, vT + 2 + 2 * i, vT + 3 + 2 * i))
STAMP(11)
A("s_cbranch_scc1 Lout")
A("s_mov_b32 s%d, 1" % sLAY)
if TOT or MEAS: A("s_memrealtime s[100:101]")
if DIAG: A("v_mov_b32 v28, v30")
A("s_branch Llnq")

L.append(".p2align 6"); LB("Lst_fin"); A("s_setpc_b64 %s" % sr(sRET, 2)); stubs.append("fin")
LB("Lfinal")
A("s_cmp_ge_u32 s2, 4")
A("s_cbranch_scc1 Lepoch")
C("workgroup b: reduce the 32 head partials of row b, add x2, mixer, store")
soff(sT1, [(2, 15), (sW, 13)], PB + P_L)
A("s_add_u32 s%d, s%d, 4096" % (sT2, sT1))
A("s_mul_i32 s%d, s2, %d" % (sT0, XS))
A("s_lshl_b32 s%d, s%d, 8" % (sT3, sW))
A("s_add_u32 s%d, s%d, s%d" % (sT0, sT0, sT3))
A("s_add_u32 s%d, s%d, %d" % (sT0, sT0, L_X2))
A("v_add_u32 v%d, s%d, v%d" % (vT + 4, sT0, vX1S))
A("s_add_u32 s%d, s%d, %d" % (sT3, sT3, L_XN))
A("v_add_u32 v%d, s%d, v%d" % (vT + 5, sT3, vX1S))
A("ds_read_b64 %s, v%d" % (vr(PM, 2), vT + 4))
A("ds_read_b64 %s, v%d offset:128" % (vr(PM + 2, 2), vT + 4))
A("s_mov_b32 s%d, 0x00ff00ff" % sT4)
A("s_mov_b32 s%d, 0" % sT5)
if XENT:
    A("s_cmp_lg_u32 s%d, 3" % sW)
    A("s_cbranch_scc1 Lfn3")
    A("ds_read_b32 v%d, v%d offset:48" % (vT, vFL))
    A("s_waitcnt lgkmcnt(0)")
    A("v_readfirstlane_b32 s%d, v%d" % (sT0, vT))
    A("s_cmp_eq_u32 s%d, 0" % sT0)
    A("s_cbranch_scc1 Lfn3")
    A("s_mov_b32 s%d, %s" % (sCNT, hx(TB)))
    for i in range(XENT * 4 // 1024):
        A("buffer_load_dwordx4 %s, v%d, %s, s%d offen offset:%d sc1" % (vr(W + 4 * i, 4), vL16, sr(sWS, 4), sCNT, 1024 * i))
    A("v_add_u32 v%d, %d, v%d" % (vT + 6, L_TAB, vL16))
    A("s_waitcnt vmcnt(0)")
    for i in range(XENT * 4 // 1024):
        A("ds_write_b128 v%d, %s offset:%d" % (vT + 6, vr(W + 4 * i, 4), 1024 * i))
    LB("Lfn3")
A("s_waitcnt lgkmcnt(0)")
if GW: A("s_waitcnt vmcnt(0)")
for i in range(4):
    A("v_lshlrev_b32 v%d, 16, v%d" % (PM + 4 + 2 * i, PM + i))
    A("v_and_b32 v%d, 0xffff0000, v%d" % (PM + 5 + 2 * i, PM + i))
if "bias" in OPT:
    for i in range(8): A("v_add_f32 v%d, %s, v%d" % (PM + 4 + i, hx(f2u(float(OPT["bias"]))), PM + 4 + i))
FS = [KF, VF]
def ifin(k):
    for i in range(8):
        A("buffer_load_dwordx4 %s, v%d, %s, s%d offen offset:%d sc1" % (vr(FS[k] + 4 * i, 4), vL16, sr(sWS, 4), sT1 if i < 4 else sT2, 1024 * (i & 3)))
def fs(k):
    o = []
    for i in range(4):
        o.append(mf(W + 32, SEL, FS[k] + 4 * i, None if i == 0 else W + 32))
        o.append(mf(W + 36, SEL, FS[k] + 16 + 4 * i, None if i == 0 else W + 36))
    return o
ppoll(ifin, lambda k: range(FS[k], FS[k] + 32), 8, vT, fs, pre=GPRE, gap=GGAP, tag=2,
      per_load=lambda k, i: [mf(W + 32 + 4 * (i >> 2), SEL, FS[k] + 4 * i, None if (i & 3) == 0 else W + 32 + 4 * (i >> 2))])
STAMP(9)
NOP(2)
for i in range(8):
    A("v_add_f32_dpp v%d, v%d, v%d row_ror:8 row_mask:0xf bank_mask:0xf" % (W + 32 + i, W + 32 + i, W + 32 + i))
A("s_mov_b64 exec, %s" % sr(sT4, 2))
for i in range(4):
    A("v_pk_add_f32 %s, %s, %s" % (vr(W + 32 + 2 * i, 2), vr(W + 32 + 2 * i, 2), vr(PM + 4 + 2 * i, 2)))
for i in range(4):
    A("v_cvt_pk_bf16_f32 v%d, v%d, v%d" % (W + 32 + i, W + 32 + 2 * i, W + 33 + 2 * i))
A("ds_write_b64 v%d, %s" % (vT + 5, vr(W + 32, 2)))
A("ds_write_b64 v%d, %s offset:128" % (vT + 5, vr(W + 34, 2)))
A("s_mov_b64 exec, -1")
A("s_cmp_lg_u32 s%d, 0" % sW)
A("s_waitcnt lgkmcnt(0)")
A("s_barrier")
A("s_cbranch_scc1 Lfin_exit")
A("ds_read_b128 %s, v%d" % (vr(XR, 4), vXNW))
A("s_waitcnt lgkmcnt(0)")
STAMP(10)
A("s_branch Lmix")
L.append(".p2align 6"); LB("Lst_out"); A("s_setpc_b64 %s" % sr(sRET, 2)); stubs.append("out")
LB("Lout")
A("s_lshl_b32 s%d, s2, 10" % sT0)
A("buffer_store_dwordx4 %s, v%d, %s, s%d offen" % (vr(XR, 4), vL16, sr(sOUT, 4), sT0))
if DBL:
    A("s_cmp_lg_u32 s2, 0")
    A("s_cbranch_scc1 Lfin_exit")
if DBL:
    A("s_waitcnt vmcnt(0)")
    A("s_memrealtime s[10:11]")
    A("s_waitcnt lgkmcnt(0)")
    A("s_sub_u32 s12, s10, s98")
    if "pad" in OPT:
        A("s_mov_b32 s10, s98"); A("s_mov_b32 s12, %d" % (100 * int(OPT["pad"])))
    LB("Ldbl")
    A("s_memrealtime s[14:15]")
    A("s_waitcnt lgkmcnt(0)")
    A("s_sub_u32 s13, s14, s10")
    A("s_cmp_lt_u32 s13, s12")
    A("s_cbranch_scc1 Ldbl")
LB("Lfin_exit")
if MEAS:
    src = {"pv": "s97", "mix": "s100", "entry": "s98"}[OPT["q"]]
    A("s_waitcnt vmcnt(0) lgkmcnt(0)")
    A("s_mov_b64 exec, 1")
    A("v_mov_b32 v16, %s" % src)
    A("s_not_b32 s10, s98")
    A("v_mov_b32 v17, s10")
    A("global_atomic_umax v[30:31], v16, off sc1")
    A("global_atomic_umax v[30:31], v17, off offset:128 sc1")
    A("s_or_b32 s10, s2, s%d" % sW)
    A("s_cmp_lg_u32 s10, 0")
    A("s_cbranch_scc1 Lend")
    LB("Lms1")
    A("s_memrealtime s[14:15]"); A("s_waitcnt lgkmcnt(0)"); A("s_sub_u32 s13, s14, s98"); A("s_cmp_lt_u32 s13, 4000"); A("s_cbranch_scc1 Lms1")
    A("global_load_dword v16, v[30:31], off sc1")
    A("global_load_dword v17, v[30:31], off offset:128 sc1")
    A("s_waitcnt vmcnt(0)")
    A("v_readfirstlane_b32 s10, v16"); A("v_readfirstlane_b32 s11, v17")
    A("s_not_b32 s11, s11"); A("s_sub_u32 s10, s10, s11"); A("s_lshl_b32 s10, s10, 2"); A("s_add_u32 s12, s10, 4200")
    A("s_min_u32 s12, s12, 20000")
    LB("Lms2")
    A("s_memrealtime s[14:15]"); A("s_waitcnt lgkmcnt(0)"); A("s_sub_u32 s13, s14, s98"); A("s_cmp_lt_u32 s13, s12"); A("s_cbranch_scc1 Lms2")
if TOT:
    A("s_waitcnt vmcnt(0)")
    A("s_memrealtime s[10:11]")
    A("s_waitcnt lgkmcnt(0)")
    A("v_mov_b32 v16, s98")
    A("v_mov_b32 v17, s10")
    A("v_mov_b32 v18, s100")
    A("v_mov_b32 v19, s97")
    soff(sT2, [(2, 6), (sW, 4)], STB)
    A("v_mov_b32 v20, 0")
    A("s_mov_b64 exec, 1")
    A("buffer_store_dwordx4 v[16:19], v20, %s, s%d offen" % (sr(sWS, 4), sT2))
if DIAG:
    A("s_waitcnt vmcnt(0)")
    STAMP(12)
    if DIAG == 2:
        A("s_or_b32 s%d, s2, s%d" % (sT0, sW))
        A("s_cmp_lg_u32 s%d, 0" % sT0)
        A("s_cbranch_scc1 Lend")
        A("v_readlane_b32 s%d, v28, 0" % sT2)
        for k, (r, i) in enumerate([(31, 10), (31, 12), (28, 1), (28, 2), (28, 6), (28, 5), (28, 7), (28, 8), (28, 9), (28, 10), (28, 11), (30, 3), (30, 5), (30, 8), (30, 9), (30, 12)]):
            A("v_readlane_b32 s%d, v%d, %d" % (sT3, r, i))
            A("s_sub_u32 s%d, s%d, s%d" % (sT3, sT3, sT2))
            A("s_nop 0")
            A("v_writelane_b32 v17, s%d, %d" % (sT3, k))
        A("v_lshlrev_b32 v16, 2, v%d" % vLANE)
        A("s_mov_b64 exec, 0xffff")
        A("global_store_dword v16, v17, s[100:101]")
        A("s_endpgm")
    soff(sT1, [(2, 10), (sW, 7)], STB)
    A("v_lshlrev_b32 v16, 2, v%d" % vLANE)
    A("s_mov_b64 exec, 0xffff")
    A("buffer_store_dword v28, v16, %s, s%d offen" % (sr(sWS, 4), sT1))
    A("buffer_store_dword v30, v16, %s, s%d offen offset:64" % (sr(sWS, 4), sT1))
    A("s_add_u32 s%d, s%d, 0x40000" % (sT1, sT1))
    A("buffer_store_dword v31, v16, %s, s%d offen" % (sr(sWS, 4), sT1))
LB("Lend")
A("s_endpgm")
LB("Lepoch")
if int(OPT.get("wb", 0)):
    A("s_cmp_lg_u32 s%d, 0" % sW)
    A("s_cbranch_scc1 Lnowb")
    A("s_waitcnt vmcnt(0)")
    A("buffer_wbl2 sc1")
    LB("Lnowb")
C("every workgroup has used the old launch tag long ago: workgroup 4 advances it")
A("s_lshl_b32 s%d, s%d, 8" % (sT0, sW))
A("s_add_u32 s%d, s%d, s2" % (sT0, sT0))
A("s_cmp_lg_u32 s%d, 4" % sT0)
A("s_cbranch_scc1 Lfin_exit")
A("v_mov_b32 v16, s%d" % sTG1)
A("v_mov_b32 v17, %s" % hx(EPO))
A("s_mov_b64 exec, 1")
A("buffer_store_dword v16, v17, %s, 0 offen sc1" % sr(sWS, 4))
A("s_mov_b64 exec, -1")
A("s_branch Lfin_exit")

L.append(".p2align 6"); LB("Lst_tab"); A("s_setpc_b64 %s" % sr(sRET, 2)); stubs.append("tab")
LB("Ltab")
C("waves 2,3: gather the main part of the g(h) table into LDS ; wave 1: the lowest octaves, best effort")
NTL = NOCT * 1024 // 2 // 1024
A("s_cmp_eq_u32 s%d, 1" % sW)
A("s_cbranch_scc1 Lext")
A("s_sub_u32 s%d, s%d, 2" % (sT1, sW))
A("s_mul_i32 s%d, s%d, %d" % (sT1, sT1, NTL * 1024))
A("s_add_u32 s%d, s%d, %d" % (sT1, sT1, XENT * 4))
A("v_add_u32 v%d, s%d, v%d" % (vT + 4, sT1, vL16))
A("v_add_u32 v%d, %d, v%d" % (vT + 4, L_TAB, vT + 4))
A("s_add_u32 s%d, s%d, %s" % (sT1, sT1, hx(TB)))
A("s_add_u32 s%d, s%d, 4096" % (sT2, sT1))
def it():
    for i in range(NTL):
        A("buffer_load_dwordx4 %s, v%d, %s, s%d offen offset:%d sc1" % (vr(W + 4 * i, 4), vL16, sr(sWS, 4), sT1 if i < 4 else sT2, 1024 * (i & 3)))
poll(it, range(W, W + 4 * NTL), vT, back="s_sleep %d" % int(OPT.get("tsl", 16)))
for i in range(NTL):
    A("ds_write_b128 v%d, %s offset:%d" % (vT + 4, vr(W + 4 * i, 4), 1024 * i))
A("s_waitcnt lgkmcnt(0)")
lds_arrive(20, vT + 4)
STAMP(9)
A("s_branch Ltabdone")
def ext_load(d):
    for i in range(XENT * 4 // 1024):
        A("buffer_load_dwordx4 %s, v%d, %s, s%d offen offset:%d sc1" % (vr(d + 4 * i, 4), vL16, sr(sWS, 4), sT4, 1024 * i))
def ext_write(d):
    for i in range(XENT * 4 // 1024):
        A("ds_write_b128 v%d, %s offset:%d" % (vT + 4, vr(d + 4 * i, 4), 1024 * i))
LB("Lext")
if XENT:
    A("s_mov_b32 s%d, %s" % (sT4, hx(TB)))
    A("v_add_u32 v%d, %d, v%d" % (vT + 4, L_TAB, vL16))
    for i in range(4): A("v_mov_b32 v%d, -1" % (W + i))
    for i in range(XENT * 4 // 1024):
        A("ds_write_b128 v%d, %s offset:%d" % (vT + 4, vr(W, 4), 1024 * i))
    A("ds_write_b32 v%d, v%d offset:48" % (vFL, W))
    A("s_waitcnt lgkmcnt(0)")
lds_arrive(20, vT + 5)
if XENT:
    C("one look at the lowest octaves, skipped when x1 is already there")
    soff(sT3, [(sW, 10), (sJ, 17)], X1_OFF)
    A("s_waitcnt vmcnt(0)")
    A("buffer_load_dwordx4 %s, v%d, %s, s%d offen sc1" % (vr(XR, 4), vL16, sr(sWS, 4), sT3))
    A("s_waitcnt vmcnt(0)")
    for x in maxtree(range(XR, XR + 4), vT): A(x)
    A("v_cmp_eq_u32 vcc, -1, v%d" % vT)
    A("s_cbranch_vccz Lexx")
    A("s_mov_b32 s%d, %d" % (sCNT, int(OPT.get("xlk", 2)) - 1))
    LB("Lexl")
    A("buffer_load_dwordx4 %s, v%d, %s, s%d offen sc1" % (vr(XR, 4), vL16, sr(sWS, 4), sT3))
    if "l" in OPT.get("xs", ""): A("s_branch Ltabdone")
    ext_load(W + 32)
    A("s_waitcnt vmcnt(4)")
    for x in maxtree(range(XR, XR + 4), vT): A(x)
    A("v_cmp_eq_u32 vcc, -1, v%d" % vT)
    A("s_cbranch_vccz Lexx")
    A("s_waitcnt vmcnt(0)")
    ext_write(W + 32)
    for x in maxtree(range(W + 32, W + 48), vT): A(x)
    A("v_cmp_eq_u32 vcc, -1, v%d" % vT)
    A("s_cbranch_vccz Lexc")
    A("s_sub_u32 s%d, s%d, 1" % (sCNT, sCNT))
    A("s_cbranch_scc0 Lexl")
    A("s_branch Ltabdone")
    LB("Lexc")
    A("v_mov_b32 v%d, 0" % vT)
    A("ds_write_b32 v%d, v%d offset:48" % (vFL, vT))
    A("s_branch Ltabdone")
    LB("Lexx")
    wqf_reads()
    A("s_branch Ltw")
else:
    A("s_branch Ltabdone")
LB("Ltw")
lds_spin(20, 3, vT + 2)
A("s_branch Ltwd")

for b in ool: L += b
ool = []
LB("Lslow")
C("rare: some h lies outside the table -> evaluate g(h) directly for those lanes")
RW1 = [W + 32 + i for i in range(14)]
RB1 = [PM + i for i in range(14)]
RW2 = [16 + i for i in range(10)] + [W + 46, W + 47, PM + 14, PM + 15]
A("v_lshlrev_b32 v26, 3, v%d" % vLANE)
A("s_load_dword s%d, %s, 0" % (sB2, sr(sB2P, 2)))
for (d4, d2, s) in [([W + 32, W + 36, W + 40], W + 44, sW1), ([PM, PM + 4, PM + 8], PM + 12, sB1)]:
    for k in range(3):
        A("buffer_load_dwordx4 %s, v%d, %s, 0 offen offset:%d" % (vr(d4[k], 4), vL16, sr(s, 4), 1024 * k))
    A("buffer_load_dwordx2 %s, v26, %s, 0 offen offset:3072" % (vr(d2, 2), sr(s, 4)))
A("buffer_load_dwordx4 v[16:19], v%d, %s, 0 offen" % (vL16, sr(sW2, 4)))
A("buffer_load_dwordx4 v[20:23], v%d, %s, 0 offen offset:1024" % (vL16, sr(sW2, 4)))
A("buffer_load_dwordx2 v[24:25], v%d, %s, 0 offen offset:2048" % (vL16, sr(sW2, 4)))
A("buffer_load_dwordx2 %s, v%d, %s, 0 offen offset:2056" % (vr(W + 46, 2), vL16, sr(sW2, 4)))
A("buffer_load_dwordx2 %s, v26, %s, 0 offen offset:3072" % (vr(PM + 14, 2), sr(sW2, 4)))
A("s_waitcnt vmcnt(0) lgkmcnt(0)")
A("s_lshl_b32 s%d, s%d, 16" % (sB2, sB2))
A("s_mov_b32 s%d, 1" % sT4)
for e in range(8):
    A("v_cmp_le_u32 vcc, %d, v%d" % (NENT * 4, AD + e))
    A("v_cmp_eq_u32 %s, -1, v%d" % (sr(sH2, 2), Y + e))
    A("s_or_b64 %s, %s, vcc" % (sr(sH2, 2), sr(sH2, 2)))
    if e & 1: A("v_and_b32 v%d, 0xffff0000, v%d" % (RT + 3, HB + (e >> 1)))
    else: A("v_lshlrev_b32 v%d, 16, v%d" % (RT + 3, HB + (e >> 1)))
    LB("Lse%d" % e)
    A("s_cmp_eq_u64 %s, 0" % sr(sH2, 2))
    A("s_cbranch_scc1 Lsf%d" % e)
    A("s_ff1_i32_b64 s%d, %s" % (sT0, sr(sH2, 2)))
    A("s_nop 0")
    A("v_readlane_b32 s%d, v%d, s%d" % (sH, RT + 3, sT0))
    A("s_cmp_eq_u32 s%d, s%d" % (sH, sT4))
    A("s_cbranch_scc1 Lsg%d" % e)
    A("s_mov_b32 s%d, s%d" % (sT4, sH))
    A("s_call_b64 %s, Lgev" % sr(sRET, 2))
    LB("Lsg%d" % e)
    A("s_nop 1")
    A("v_cmp_eq_u32 vcc, s%d, v%d" % (sH, RT + 3))
    A("v_mov_b32 v%d, s%d" % (RES + 3, sY))
    A("s_andn2_b64 %s, %s, vcc" % (sr(sH2, 2), sr(sH2, 2)))
    A("v_cndmask_b32 v%d, v%d, v%d, vcc" % (Y + e, Y + e, RES + 3))
    A("s_branch Lse%d" % e)
    LB("Lsf%d" % e)
for i in range(16): A("v_mov_b32 v%d, 0" % (PM + i))
A("s_mov_b64 vcc, 0")
A("s_mov_b64 %s, 0" % sr(sH, 2))
A("s_branch Lslowdone")
LB("Lgev")
a, u, t1, z = RES, RES + 1, RES + 2, RT
A("v_mov_b32 v%d, 0" % a)
A("v_mov_b32 v%d, %s" % (RT + 1, hx(f2u(K0))))
A("v_mov_b32 v%d, %s" % (RT + 2, hx(f2u(K1))))
for p in range(14):
    for hf in range(2):
        def un(d, s):
            if hf == 0: A("v_lshlrev_b32 v%d, 16, v%d" % (d, s))
            else: A("v_and_b32 v%d, 0xffff0000, v%d" % (d, s))
        un(u, RW1[p]); un(t1, RB1[p]); un(z, RW2[p])
        A("v_fma_f32 v%d, v%d, s%d, v%d" % (u, u, sH, t1))
        A("v_mul_f32 v%d, v%d, v%d" % (t1, u, u))
        A("v_fma_f32 v%d, v%d, v%d, v%d" % (t1, t1, RT + 2, RT + 1))
        A("v_mul_f32 v%d, v%d, v%d" % (t1, t1, u))
        A("v_exp_f32 v%d, v%d" % (t1, t1))
        A("v_mul_f32 v%d, v%d, v%d" % (z, z, u))
        A("v_add_f32 v%d, 1.0, v%d" % (t1, t1))
        A("v_rcp_f32 v%d, v%d" % (t1, t1))
        A("s_nop 0")
        A("v_fmac_f32 v%d, v%d, v%d" % (a, z, t1))
A("v_mov_b32 v%d, v%d" % (u, a))
A("s_nop 1")
wave_sum2(a, u, sY, sT1)
A("s_nop 1")
A("v_mov_b32 v%d, s%d" % (a, sY))
A("v_cvt_pk_bf16_f32 v%d, v%d, v%d" % (a, a, a))
A("v_and_b32 v%d, 0xffff0000, v%d" % (a, a))
A("v_add_f32 v%d, s%d, v%d" % (a, sB2, a))
A("v_cvt_pk_bf16_f32 v%d, v%d, v%d" % (a, a, a))
A("v_and_b32 v%d, 0xffff0000, v%d" % (a, a))
A("s_nop 0")
A("v_readfirstlane_b32 s%d, v%d" % (sY, a))
A("s_nop 3")
A("s_setpc_b64 %s" % sr(sRET, 2))

for b in ool: L += b
A("s_endpgm")
L.append(".p2align 8")
L.append(".fill %d, 4, 0xBF800000" % (64 if DIAG else 512))
L.append('''.section .rodata,"a"
.p2align 6
.amdhsa_kernel %s_kernel
  .amdhsa_next_free_vgpr 256
  .amdhsa_next_free_sgpr 102
  .amdhsa_accum_offset 256
  .amdhsa_group_segment_fixed_size 0
  .amdhsa_kernarg_size 104
  .amdhsa_user_sgpr_count 2
  .amdhsa_user_sgpr_kernarg_segment_ptr 1
  .amdhsa_system_sgpr_workgroup_id_x 1
.end_amdhsa_kernel''' % NAME)
open(OUTF, "w").write("\n".join(x for x in L if x is not None) + "\n")
print("wrote", OUTF, "lines", len(L), "LDS", LDS_SZ)
```

```python
import sys, struct, math

NAME = "interleave_layers__sliding_block_cached__mixer_token_mlp__decode"
OUTF = sys.argv[1] if len(sys.argv) > 1 else "cdna_kernels/%s.s" % NAME
DIAG = int(sys.argv[2]) if len(sys.argv) > 2 else 0
DBL = 0
if DIAG == 3: DIAG = 0; DBL = 1
MEAS = 0
if DIAG == 5: DIAG = 0; MEAS = 1
TOT = 0
if DIAG == 4: DIAG = 0; TOT = 1
OPT = dict(a.split("=") for a in sys.argv[3:])
DEPTH = int(OPT.get("depth", 8))
D0 = int(OPT.get("d0", 2))
D1 = int(OPT.get("d1", 4))
DC = int(OPT.get("dc", 3))
TAILI = int(OPT.get("taili", 11))
TAILD = int(OPT.get("taild", 8))
QV = int(OPT.get("qv", 3))
PRET = int(OPT.get("pret", 1))
GW = int(OPT.get("gw", 1))
GPRE = int(OPT.get("gpre", 0))
GGAP = int(OPT.get("ggap", -1))
WARM = int(OPT.get("warm", 1))
QPRE = int(OPT.get("qpre", -1)); QGAP = int(OPT.get("qgap", -1))
OPRE = int(OPT.get("opre", -1)); OGAP = int(OPT.get("ogap", -1))
XPRE = int(OPT.get("xpre", -1)); XGAP = int(OPT.get("xgap", -1))
FINE = OPT.get("fine", "")
QS = int(OPT.get("qs", 0))
ADP = int(OPT.get("adp", 0))
ROT = int(OPT.get("rot", 1)); VROT = int(OPT.get("vrot", 0))
WROT = int(OPT.get("wrot", 1))
WOP = int(OPT.get("wop", 0))
ECO = int(OPT.get("eco", 0))
XDL = int(OPT.get("xdl", 256))
QBD = int(OPT.get("qbd", 0))
VLATE = int(OPT.get("vlate", 1))
QV2 = int(OPT.get("qv2", 0))
PROG = int(OPT.get("prog", 1))
QT = int(OPT.get("qt", 0))
DRY = int(OPT.get("dry", 0))
HP = int(OPT.get("hp", 0))
NOCT = int(OPT.get("noct", 16))
QPOS = int(OPT.get("qpos", 1))
QPOS2 = int(OPT.get("qpos2", 7))

def f2u(x): return struct.unpack("<I", struct.pack("<f", x))[0]
def hx(x): return "0x%08x" % (x & 0xffffffff)

L = []
def A(s): L.append("    " + s)
def LB(s): L.append(s + ":")
def C(s): L.append("    ; " + s)
def vr(a, n): return "v[%d:%d]" % (a, a + n - 1)
def sr(a, n): return "s[%d:%d]" % (a, a + n - 1)
def NOP(n):
    while n > 0:
        k = min(n, 16); A("s_nop %d" % (k - 1)); n -= k

XOCT = int(OPT.get('xoct', 4))
ELO = int(OPT.get('elo', 130 - NOCT - XOCT))
LO2 = (ELO << 7) * 2
NENT = (NOCT + XOCT) * 256
XENT = XOCT * 256
assert XENT in (0, 1024)
EPW = NOCT * 256 // 256 // 4 // 2
GRS = 0x20000
O_OFF = [0x0000, 0xC400]; LSE_OFF = [0x8000, 0x14400]; Q1_OFF = 0x8400; X1_OFF = 0x14600
CLRA_PER = 1040
CLRB_OFF = 0x8400; CLRB_PER = 1680
Q0_OFF = 0x18000
EPO = 0x17f00
PB = 0x100000; P_L = 0x20000
TB = 0x140000; FB = 0x148000
QB_DELTA = 0x200000
STB = 0x300000
WS_SZ = 0x400000
L_WQ = 12288; L_K = L_WQ + 16384; L_V = L_K + 32768
L_WO = L_K + 16384
L_TAB = L_V
L_XN = L_V + 32768; XS = 1056
L_X2 = L_XN + 4 * XS
L_FLG = L_X2 + 4 * XS
L_RB = L_K; RBS = 2048 + 64; L_ML = L_K + 4 * RBS
L_QF = L_X2
LDS_SZ = int(OPT.get("lds", L_FLG + 64))
SPIN = 0x40000
K0 = -2.0 * math.sqrt(2.0 / math.pi) * math.log2(math.e)
K1 = K0 * 0.044715
EPS = hx(f2u(1e-5))

sTG1, sTG2 = 0, 1
sW, sJ, sA, sC, sGR, sLAY, sFAST = 3, 4, 5, 6, 7, 8, 9
sT0, sT1, sT2, sT3, sT4, sT5 = 10, 11, 12, 13, 14, 15
sCNT = 16
sQL, sQS, sOL, sOS, sLL, sLS, sPS = 17, 18, 19, 20, 21, 22, 23
sSC, sIT = 24, 25
sSUM, sSQ = 26, 27
sH, sH2, sRET, sMSK = 28, 30, 32, 34
sB2, sY, sXCC, sE = 36, 37, 38, 39
sB2P = 40
sK, sV, sWQ, sWO, sWS, sX, sOUT, sW1, sB1, sW2 = 44, 48, 52, 56, 60, 64, 68, 72, 76, 80
sKO, sKL, sVO, sVL = 84, 85, 86, 87
sPM = 88
sHC, sHT = 84, 85

def STAMP(i):
    if DIAG:
        A("s_memrealtime s[42:43]"); A("s_waitcnt lgkmcnt(0)")
        A("v_writelane_b32 v30, s42, %d" % i)

def MP(name):
    if MEAS and OPT["q"] == name:
        A("s_memrealtime s[42:43]"); A("s_waitcnt lgkmcnt(0)"); A("s_mov_b32 s97, s42")

def CST(i):
    if DIAG == 1 and FINE:
        A("s_memtime s[42:43]"); A("s_waitcnt lgkmcnt(0)")
        A("v_writelane_b32 v31, s42, %d" % i)

vLANE = 1
vL16, vQST, vOST, vOLD, vPST, vX1S, vXNW, vXNR, vRBW, vRBR, vMLW, vMLR, vLSE, vZ = range(2, 16)
vT = 16
vWT, vFL = 28, 29
vLS2 = 27
KF, VF, WQF, WOF, SEL, ONES = 32, 64, 96, 112, 176, 180
W = 184
PM = 232
XR = 248
RES = 252

def srd(s, nbytes):
    A("s_mov_b32 s%d, %s" % (s + 2, hx(nbytes))); A("s_mov_b32 s%d, 0x00020000" % (s + 3))

def soff(dst, terms, const):
    first = True
    for (src, sh) in terms:
        if first: A("s_lshl_b32 s%d, s%d, %d" % (dst, src, sh)); first = False
        else:
            A("s_lshl_b32 s%d, s%d, %d" % (sT0, src, sh)); A("s_add_u32 s%d, s%d, s%d" % (dst, dst, sT0))
    if const: A("s_add_u32 s%d, s%d, %s" % (dst, dst, hx(const)))

def wave_sum2(a, b, sa, sb):
    for ctl in ["row_ror:8", "row_ror:4", "row_ror:2", "row_ror:1"]:
        A("v_add_f32_dpp v%d, v%d, v%d %s row_mask:0xf bank_mask:0xf" % (a, a, a, ctl))
        A("v_add_f32_dpp v%d, v%d, v%d %s row_mask:0xf bank_mask:0xf" % (b, b, b, ctl))
        A("s_nop 0")
    for ctl in ["row_bcast:15 row_mask:0xa", "row_bcast:31 row_mask:0xc"]:
        A("v_add_f32_dpp v%d, v%d, v%d %s bank_mask:0xf" % (a, a, a, ctl))
        A("v_add_f32_dpp v%d, v%d, v%d %s bank_mask:0xf" % (b, b, b, ctl))
        A("s_nop 0")
    A("v_readlane_b32 s%d, v%d, 63" % (sa, a))
    A("v_readlane_b32 s%d, v%d, 63" % (sb, b))

def row_stats(x, t, unp):
    A("v_dot2_f32_bf16 v%d, v%d, v%d, 0" % (t, x, ONES))
    A("v_dot2_f32_bf16 v%d, v%d, v%d, 0" % (t + 1, x, x))
    for i in range(1, 4):
        A("v_dot2_f32_bf16 v%d, v%d, v%d, v%d" % (t, x + i, ONES, t))
        A("v_dot2_f32_bf16 v%d, v%d, v%d, v%d" % (t + 1, x + i, x + i, t + 1))
    un = []
    for i in range(4):
        un.append("v_lshlrev_b32 v%d, 16, v%d" % (unp + 2 * i, x + i))
        un.append("v_and_b32 v%d, 0xffff0000, v%d" % (unp + 2 * i + 1, x + i))
    for k in range(3): A(un.pop(0))
    a, b = t, t + 1
    for ctl in ["row_ror:8 row_mask:0xf", "row_ror:4 row_mask:0xf", "row_ror:2 row_mask:0xf", "row_ror:1 row_mask:0xf", "row_bcast:15 row_mask:0xa", "row_bcast:31 row_mask:0xc"]:
        A("v_add_f32_dpp v%d, v%d, v%d %s bank_mask:0xf" % (a, a, a, ctl))
        A("v_add_f32_dpp v%d, v%d, v%d %s bank_mask:0xf" % (b, b, b, ctl))
        A(un.pop(0) if un else "s_nop 0")
    A("v_readlane_b32 s%d, v%d, 63" % (sSUM, a))
    A("v_readlane_b32 s%d, v%d, 63" % (sSQ, b))
    A("s_nop 0")
    A("v_mul_f32 v%d, s%d, v%d" % (t, sSUM, vZ))
    A("v_mul_f32 v%d, s%d, v%d" % (t + 1, sSQ, vZ))
    A("v_fma_f32 v%d, -v%d, v%d, v%d" % (t + 1, t, t, t + 1))
    A("v_max_f32 v%d, 0, v%d" % (t + 1, t + 1))

ool = []
uid = [0]
def maxtree(regs, tmp):
    r = list(regs); out = []
    out.append("v_max3_u32 v%d, v%d, v%d, v%d" % (tmp, r[0], r[1], r[2])); r = r[3:]
    if len(r) >= 5:
        out.append("v_max3_u32 v%d, v%d, v%d, v%d" % (tmp + 1, r[0], r[1], r[2])); r = r[3:]
        d = 0
        while len(r) >= 2:
            out.append("v_max3_u32 v%d, v%d, v%d, v%d" % (tmp + d, tmp + d, r[0], r[1])); r = r[2:]; d ^= 1
        if r: out.append("v_max3_u32 v%d, v%d, v%d, v%d" % (tmp, tmp, tmp + 1, r[0]))
        else: out.append("v_max_u32 v%d, v%d, v%d" % (tmp, tmp, tmp + 1))
    else:
        while len(r) >= 2:
            out.append("v_max3_u32 v%d, v%d, v%d, v%d" % (tmp, tmp, r[0], r[1])); r = r[2:]
        if r: out.append("v_max_u32 v%d, v%d, v%d" % (tmp, tmp, r[0]))
    return out

def poll(issue, regs, tmp, pre_wait=None, spec=None, back="s_nop 7", tag=None, stub=None):
    uid[0] += 1; u = uid[0]
    A("s_mov_b32 s%d, %s" % (sCNT, hx(SPIN)))
    LB("Lp%d" % u)
    issue()
    if pre_wait: pre_wait()
    A("s_waitcnt vmcnt(0)")
    mt = maxtree(regs, tmp) + ["v_cmp_eq_u32 vcc, -1, v%d" % tmp]
    spec = list(spec or [])
    ns = len(spec)
    per = -(-len(mt) // ns) if ns else 0
    for s in spec:
        A(s)
        for k in range(per):
            if mt: A(mt.pop(0))
    for m in mt: A(m)
    A("s_cbranch_vccz Ld%d" % u)
    A("s_sub_u32 s%d, s%d, 1" % (sCNT, sCNT))
    if back != "s_nop 7": A(back)
    A("s_cbranch_scc0 Lp%d" % u)
    if stub: touch_stub(stub)
    LB("Ld%d" % u)
    if DIAG and tag is not None:
        A("s_lshl_b32 m0, s%d, 2" % sLAY); A("s_add_u32 m0, m0, %d" % tag); A("s_nop 0")
        A("v_writelane_b32 v31, s%d, m0" % sCNT)

stubs = []
def touch_stub(name, branch_over=None):
    A("s_branch Lsk_%s" % name)
    L.append(".p2align 6")
    LB("Lst_%s" % name)
    A("s_setpc_b64 %s" % sr(sRET, 2))
    LB("Lsk_%s" % name)
    stubs.append(name)

def delay(cyc):
    if cyc == -1:
        A("s_waitcnt vmcnt(0)"); return
    while cyc >= 64:
        k = min(cyc // 64, 15); A("s_sleep %d" % k); cyc -= 64 * k
    if cyc >= 8: A("s_nop %d" % min(15, cyc // 4 - 1))

def ppoll(issue, regs, n, tmp, spec, pre=0, gap=128, mid=None, tag=None, fix=None, stub=None, lanes=None, per_load=None):
    uid[0] += 1; u = uid[0]
    def look(k):
        if per_load and PROG and gap < 0:
            r = list(regs(k)); out = []
            for i in range(n):
                out.append("s_waitcnt vmcnt(%d)" % (n - 1 - i))
                sp = list(per_load(k, i))
                ck = ["v_max3_u32 v%d, v%d, v%d, v%d" % (tmp + 1, r[4 * i], r[4 * i + 1], r[4 * i + 2]),
                      ("v_max_u32 v%d, v%d, v%d" % (tmp, tmp + 1, r[4 * i + 3])) if i == 0 else ("v_max3_u32 v%d, v%d, v%d, v%d" % (tmp, tmp, tmp + 1, r[4 * i + 3]))]
                while sp or ck:
                    if sp: out.append(sp.pop(0))
                    if ck: out.append(ck.pop(0))
            return out + ["v_cmp_eq_u32 vcc, -1, v%d" % tmp]
        out = ["s_waitcnt vmcnt(%d)" % (n if k == 0 else 0)]
        mt = maxtree(regs(k), tmp) + ["v_cmp_eq_u32 vcc, -1, v%d" % tmp]
        sp = list(spec(k)); per = -(-len(mt) // len(sp)) if sp else 0
        for x in sp:
            out.append(x)
            for _ in range(per):
                if mt: out.append(mt.pop(0))
        return out + mt + (["s_and_b64 vcc, vcc, %s" % sr(lanes, 2)] if lanes else [])
    A("s_mov_b32 s%d, %s" % (sCNT, hx(SPIN)))
    delay(pre)
    fine = FINE and tag == int(FINE)
    if fine: CST(8)
    LB("Lp%d" % u)
    issue(0)
    if fine and 0: CST(9)
    if mid: mid()
    if gap >= 0: delay(gap)
    if gap >= 0: issue(1)
    lk = look(0)
    if gap < 0 and not (per_load and PROG): lk[0] = "s_waitcnt vmcnt(0)"
    for k, x in enumerate(lk):
        A(x)
        if fine and k == 0: CST(13)
    if fine: CST(14)
    A("s_cbranch_vccz Ld%d" % u)
    if gap < 0: issue(1)
    A("s_sub_u32 s%d, s%d, 1" % (sCNT, sCNT))
    for x in look(1): A(x)
    for x in (fix or []): A(x)
    A("s_cbranch_vccz Ld%d" % u)
    A("s_sub_u32 s%d, s%d, 1" % (sCNT, sCNT))
    A("s_cmp_gt_i32 s%d, 0" % sCNT)
    A("s_cbranch_scc1 Lp%d" % u)
    if stub: touch_stub(stub)
    LB("Ld%d" % u)
    if fine: CST(15)
    if DIAG and tag is not None:
        A("s_lshl_b32 m0, s%d, 2" % sLAY); A("s_add_u32 m0, m0, %d" % tag); A("s_nop 0")
        A("v_writelane_b32 v31, s%d, m0" % sCNT)

def lds_spin(off, target, tmp, mask=None, sleep=0):
    uid[0] += 1; u = uid[0]
    A("s_mov_b32 s%d, %s" % (sT2, hx(SPIN * 4)))
    LB("Ls%d" % u)
    A("ds_read_b32 v%d, v%d offset:%d" % (tmp, vFL, off))
    A("s_waitcnt lgkmcnt(0)")
    A("v_readfirstlane_b32 s%d, v%d" % (sT1, tmp))
    if mask: A("s_and_b32 s%d, s%d, %d" % (sT0, sT1, mask))
    A("s_cmp_ge_u32 s%d, %d" % (sT0 if mask else sT1, target))
    A("s_cbranch_scc1 Lt%d" % u)
    if sleep: A("s_sleep %d" % sleep)
    A("s_sub_u32 s%d, s%d, 1" % (sT2, sT2))
    A("s_cbranch_scc0 Ls%d" % u)
    LB("Lt%d" % u)

def lds_arrive(off, tmp, val=1):
    if val is not None: A("v_mov_b32 v%d, %d" % (tmp, val))
    A("s_mov_b64 exec, 1")
    A("ds_add_u32 v%d, v%d offset:%d" % (vFL, tmp, off))
    A("s_mov_b64 exec, -1")

def store_local(op, data, vaddr, so):
    uid[0] += 1; u = uid[0]
    A("s_cbranch_scc1 Lw%d" % u)
    A("%s %s, v%d, %s, s%d offen" % (op, data, vaddr, sr(sWS, 4), so))
    LB("Lx%d" % u)
    ool.append(["Lw%d:" % u, "    %s %s, v%d, %s, s%d offen sc1" % (op, data, vaddr, sr(sWS, 4), so), "    s_branch Lx%d" % u])
def fastcmp(): A("s_cmp_eq_u32 s%d, 0" % sFAST)

def mf(d, a, b, c):
    return "v_mfma_f32_16x16x32_bf16 %s, %s, %s, %s" % (vr(d, 4), vr(a, 4), vr(b, 4), "0" if c is None else vr(c, 4))
def mfma(d, a, b, c): A(mf(d, a, b, c))

def tags():
    A("s_add_u32 s%d, s%d, 1" % (sTG1, sE))
    A("s_mul_i32 s%d, s%d, 0x9E3779B1" % (sTG2, sTG1))
    A("s_and_b32 s%d, s%d, -8" % (sTG2, sTG2))

def common_addr():
    A("v_and_b32 v18, 3, v%d" % vLANE)
    A("v_lshlrev_b32 v%d, 12, v17" % vQST)
    A("v_lshrrev_b32 v24, 1, v16")
    A("v_lshl_add_u32 v%d, v24, 8, v%d" % (vQST, vQST))
    A("v_and_b32 v24, 1, v16")
    A("v_lshl_add_u32 v%d, v24, 3, v%d" % (vQST, vQST))
    A("v_lshlrev_b32 v%d, 4, v24" % vLSE)
    A("s_mul_i32 s%d, s%d, %d" % (sT0, sW, XS))
    A("s_add_u32 s%d, s%d, %d" % (sT0, sT0, L_XN))
    A("v_add_u32 v%d, s%d, v%d" % (vXNW, sT0, vL16))
    A("s_lshl_b32 s%d, s%d, 8" % (sT0, sA))
    A("s_add_u32 s%d, s%d, %d" % (sT0, sT0, L_XN))
    A("v_mul_u32_u24 v25, %d, v18" % XS)
    A("v_lshl_add_u32 v25, v16, 4, v25")
    A("v_add_u32 v%d, s%d, v25" % (vXNR, sT0))
    A("v_mov_b32 v%d, %s" % (vZ, hx(f2u(1.0 / 512))))
    for r in range(4): A("v_mov_b32 v%d, 0x3f803f80" % (ONES + r))
    A("s_and_b32 s%d, s%d, 1" % (sT1, sC))
    A("s_lshr_b32 s%d, s%d, 1" % (sT2, sC))
    soff(sQS, [(sT1, 11), (sW, 9), (sA, 6), (sT2, 4)], 0)
    A("v_bfe_u32 v24, v%d, 2, 2" % vLANE)
    A("v_lshl_add_u32 v24, v16, 3, v24")
    A("v_lshlrev_b32 v24, 7, v24")
    A("v_bfe_u32 v25, v%d, 3, 2" % vLANE)
    A("v_lshlrev_b32 v25, 1, v25")
    A("v_bfe_u32 v26, v%d, 1, 1" % vLANE)
    A("v_xor_b32 v25, v25, v26")
    A("v_lshl_add_u32 v24, v25, 4, v24")
    A("v_and_b32 v26, 1, v%d" % vLANE)
    A("v_lshl_add_u32 v%d, v26, 3, v24" % vWT)
    A("s_mov_b32 s%d, 0x000f000f" % sMSK)
    A("s_mov_b32 s%d, 0x000f000f" % (sMSK + 1))
    A("s_mov_b32 s%d, 0" % sLAY)

def wtile_voff(shift, d):
    A("v_lshrrev_b32 v24, 3, v%d" % vLANE)
    A("v_and_b32 v25, 7, v%d" % vLANE)
    A("v_and_b32 v26, 1, v16")
    A("v_lshlrev_b32 v26, 1, v26")
    A("v_xor_b32 v25, v25, v26")
    A("v_lshlrev_b32 v25, 4, v25")
    A("v_lshl_add_u32 v%d, v24, %d, v25" % (d, shift))
    A("v_xor_b32 v%d, 64, v%d" % (d + 1, d))

def wqf_reads():
    A("s_lshl_b32 s%d, s%d, 5" % (sT1, sW))
    A("v_xor_b32 v26, s%d, v%d" % (sT1, vWT))
    for t in range(4):
        for hf in range(2):
            A("ds_read_b64_tr_b16 %s, v26 offset:%d" % (vr(WQF + 4 * t + 2 * hf, 2), L_WQ + 4096 * t + 512 * hf))

def dma(vaddr, srdn, so, lds_s, step_so, flags="nt"):
    A("s_mov_b32 m0, s%d" % lds_s)
    A("s_add_u32 s%d, s%d, 1024" % (lds_s, lds_s))
    A("buffer_load_dwordx4 v%d, %s, s%d offen %s lds" % (vaddr, sr(srdn, 4), so, flags))
    A("s_add_u32 s%d, s%d, %d" % (so, so, step_so))

hdr = open("cdna_kernels/%s.s.ref" % NAME).read().split("; Override launch")[0]
L.append(hdr.rstrip("\n") + """
;
; One persistent launch, 256 workgroups (one per CU) x 8 waves.  wg = A(2b):C(3b):j(3b); j = kv head.
; K, V, wq and wo are read from HBM exactly once (LDS-DMA) and stay in registers for both attention layers.
;   roles of a workgroup:  attention (batch A, keys 128C..), q projection (wq rows 128A.., 64 columns C),
;                          output projection (head A of group j, 64 columns C), row reduction (batch A, columns 64C..)
;   waves 0-3: stream K/V, attention, output projection, LayerNorm + mixer + next q projection
;   waves 4-7: first q projection, then the token-mixer MLP g(h) = sum_f gelu(h w1 + b1) w2 + b2 evaluated
;              exactly (all 1792 hidden units) for every bf16 value h with 2^-17 <= |h| < 8; h is a bf16 tensor in the
;              reference, so the mixer is a lookup of these values; any other h is evaluated directly (Lslow).
; Hand-offs between workgroups go through d_ws.  Slots are filled with a sentinel at the start of the launch and a
; consumer polls until no sentinel is left; the first hand-off (q) and the "sentinels are in place" announcements
; carry a tag derived from a word that every launch advances.  Stores inside a kv-head group are plain when the
; whole group reports the same XCC id, write-through otherwise; every poll is bounded.
""".rstrip("\n"))
L.append("; @launch grid=(256,1,1) block=(512,1,1) lds=%d" % LDS_SZ)
L.append('.amdgcn_target "amdgcn-amd-amdhsa--gfx950"')
L.append(".text\n" + (".p2align 12\n" if int(OPT.get("al", 0)) else "") + ".globl %s_kernel\n.p2align 8\n.type %s_kernel,@function\n%s_kernel:" % (NAME, NAME, NAME))
if DIAG: A("s_memrealtime s[42:43]")
if DBL or TOT or MEAS: A("s_memrealtime s[98:99]")
sM = 96
A("s_lshr_b32 s%d, s2, 8" % sT0)
A("s_cbranch_scc1 Lend")
A("s_load_dwordx2 %s, s[0:1], 24" % sr(sWQ, 2))
A("s_load_dwordx4 %s, s[0:1], 0" % sr(sT2, 4))
A("v_readfirstlane_b32 s%d, v0" % sW)
C("every wave pulls one line of this kernel's code into L2 (plain read): 32 workgroups x 4 lines")
A("s_getpc_b64 s[10:11]")
LB("Lpc0")
A("s_lshr_b32 s%d, s2, 3" % sM)
A("s_lshl_b32 s%d, s%d, 9" % (sCNT, sM))
A("s_cmp_lg_u32 s%d, 0" % sW)
A("s_cbranch_scc1 Lnopf")
A("v_and_b32 v19, 3, v0")
A("v_lshl_add_u32 v19, v19, 7, s%d" % sCNT)
A("global_load_dword v%d, v19, s[10:11]" % (W + 8))
LB("Lnopf")
A("s_and_b32 s%d, s2, 7" % sJ)
A("s_lshr_b32 s%d, s2, 6" % sA)
A("s_and_b32 s%d, s%d, 7" % (sC, sM))
A("s_lshl_b32 s%d, 1, 17" % (sWQ + 3))
A("s_bitcmp1_b32 s%d, 8" % sW)
A("s_cbranch_scc0 Lmain0")
vKA, vVA = W + 40, W + 44
sRO, sRM = sVO, 97 if not TOT else 94
if TOT: sRM = sOL
def kv_issue(i):
    A("s_add_u32 m0, s%d, s%d" % (sKL if i < 8 else sVL, sRO))
    A("s_add_u32 s%d, s%d, s%d" % (sCNT, sKO, sRO))
    if i < 8: A("buffer_load_dwordx4 v%d, %s, s%d offen nt lds" % (vKA + (i & 3), sr(sK, 4), sCNT))
    else: A("buffer_load_dwordx4 v%d, %s, s%d offen nt lds" % (vVA + (i & 1), sr(sV, 4), sCNT))
    A("s_addk_i32 s%d, %d" % (sRO, 1024 + (VROT * 1024 if i == 7 else 0)))
    A("s_and_b32 s%d, s%d, 0x1fff" % (sRO, sRO))
def lane_init():
    A("v_and_b32 v%d, 63, v0" % vLANE)
    A("v_mov_b32 v%d, %d" % (vFL, L_FLG))
    A("v_lshlrev_b32 v%d, 4, v%d" % (vL16, vLANE))
    A("v_lshrrev_b32 v16, 4, v%d" % vLANE)
    A("v_and_b32 v17, 15, v%d" % vLANE)
    A("v_mov_b32 v20, 0")
    if DIAG: A("v_mov_b32 v30, 0")
def main_early():
    LB("Lmain0")
    for s, off in [(sW1, 48), (sB1, 56), (sW2, 64)]:
        A("s_load_dwordx2 %s, s[0:1], %d" % (sr(s, 2), off))
    lane_init()
    A("v_mov_b32 v21, 0")
    for k in range(4): A("ds_write_b64 v%d, v[20:21] offset:%d" % (vFL, 8 * k))
    if ADP: A("ds_write_b32 v%d, v20 offset:52" % vFL)
    A("s_lshl_b32 s%d, 1, 25" % (sK + 2)); A("s_mov_b32 s%d, s%d" % (sK + 3, sWQ + 3))
    A("v_xor_b32 v18, v17, v16")
    A("v_lshlrev_b32 v18, 4, v18")
    A("v_lshl_add_u32 v%d, v16, 8, v18" % vKA)
    A("s_lshl_b32 s%d, s%d, %d" % (sRO, sC, 10 if ROT else 31))
    if not ROT: A("s_mov_b32 s%d, 0" % sRO)
    A("s_bfe_u32 s%d, s%d, 0x2000a" % (sT1, sRO))
    A("s_lshl_b32 s%d, s%d, 6" % (sT1, sT1))
    for k in range(1, 4):
        A("s_add_u32 s%d, s%d, %d" % (sCNT, sT1, 64 * k))
        A("s_and_b32 s%d, s%d, 0xc0" % (sCNT, sCNT))
        A("v_xor_b32 v%d, s%d, v%d" % (vKA + k, sCNT, vKA))
    A("v_xor_b32 v%d, s%d, v%d" % (vKA, sT1, vKA))
    soff(sKO, [(sA, 23), (sJ, 20), (sC, 15), (sW, 7)], 3072 * 256)
    A("s_add_u32 s%d, s%d, %d" % (sKL, sT0, L_K))
    A("s_waitcnt lgkmcnt(0)")
    A("s_mov_b64 %s, %s" % (sr(sK, 2), sr(sT4, 2)))
    for i in range(D0): kv_issue(i)
    C("lane k<3 of wave 3 pulls a slice of coefficient array k into L2")
    A("s_cmp_lg_u32 s%d, 192" % sW)
    A("s_cbranch_scc1 Lm_nopf")
    A("s_min_u32 s%d, s%d, 27" % (sT1, sM))
    A("s_lshl_b32 s%d, s%d, 7" % (sT1, sT1))
    A("v_mov_b32 v19, s%d" % sT1)
    A("s_mov_b64 exec, 1")
    for k, sd in enumerate([sW1, sB1, sW2]): A("global_load_dword v%d, v19, %s" % (W + 9 + k, sr(sd, 2)))
    A("s_mov_b64 exec, -1")
    LB("Lm_nopf")
    A("s_add_u32 s%d, s%d, %d" % (sVL, sT0, L_V))
    A("s_lshr_b32 s%d, s%d, 6" % (sW, sW))
    if DIAG: A("v_writelane_b32 v30, s42, 0")
    STAMP(10)
    MP("k0")
    A("s_branch Lmain")

C("---- helper waves: first q projection, then the table of g over bf16 inputs ----")
HW1, HB1, HW2 = 32, 60, 112
hK0, hK1, hONE, hRES = 88, 90, 92, 94
AC = [140, 142]
A("s_load_dwordx2 %s, s[0:1], 96" % sr(sWS, 2))
C("wq tile DMA: instruction i, thread t' = t-256: row 32 i + (t'>>3), 16-byte chunk (t'&7) ^ swizzle")
A("v_bfe_u32 v23, v0, 3, 5")
A("v_and_b32 v22, 7, v0")
A("v_and_b32 v24, 2, v23")
A("v_lshrrev_b32 v25, 1, v23")
A("v_and_or_b32 v24, v25, 4, v24")
A("v_xor_b32 v22, v22, v24")
A("v_lshlrev_b32 v22, 4, v22")
A("v_lshl_add_u32 v22, v23, 13, v22")
soff(sQL, [(sA, 20), (sJ, 10), (sC, 7)], 0)
A("s_lshl_b32 s%d, 1, 22" % (sWQ + 2))
A("s_lshl_b32 s%d, 1, 18" % sT1)
A("s_lshl_b32 s%d, s%d, 4" % (sQS, sW))
A("s_add_u32 m0, s%d, %d" % (sQS, L_WQ - 4096))
A("v_lshlrev_b32 v21, 4, v0")
if DIAG: A("s_memrealtime s[88:89]")
A("s_waitcnt lgkmcnt(0)")
if DIAG: A("s_memrealtime s[90:91]")
A("global_load_dwordx4 %s, v21, %s offset:-4096" % (vr(XR, 4), sr(sT2, 2)))
for i in range(4):
    if i:
        A("s_addk_i32 m0, 0x1000")
        A("s_add_u32 s%d, s%d, s%d" % (sQL, sQL, sT1))
    A("buffer_load_dwordx4 v22, %s, s%d offen nt lds" % (sr(sWQ, 4), sQL))
if DIAG: A("s_memrealtime s[92:93]")
lane_init()
A("s_bfe_u32 s%d, s%d, 0x20006" % (sW, sW))
A("s_lshl_b32 s%d, s%d, 10" % (sT3, sW))
srd(sWS, WS_SZ)
C("early sentinels (O0, LSE0): hw0 1024 B, the others 16 B")
for i in range(4): A("v_mov_b32 v%d, -1" % (PM + i))
A("s_mul_i32 s%d, s%d, %d" % (sT5, sM, CLRA_PER))
A("s_lshl_b32 s%d, s%d, 17" % (sGR, sJ))
A("s_add_u32 s%d, s%d, s%d" % (sT5, sT5, sGR))
A("s_add_u32 s%d, s%d, 1024" % (sT4, sT5))
A("s_cmp_ge_u32 s%d, 2" % sW)
A("s_cbranch_scc1 Lhc_skip")
A("s_cmp_eq_u32 s%d, 0" % sW)
A("s_cselect_b32 s%d, s%d, s%d" % (sT5, sT5, sT4))
A("s_cselect_b64 exec, -1, 1")
A("buffer_store_dwordx4 %s, v%d, %s, s%d offen sc1" % (vr(PM, 4), vL16, sr(sWS, 4), sT5))
LB("Lhc_skip")
A("s_mov_b64 exec, -1")
A("s_branch Lhelp2")
main_early()
LB("Lhelp2")
if QT:
    C("touch 2 lines of the tagged q mailbox per wave so that they sit in L2 before they are written")
    soff(sT4, [(sM, 10), (sW, 8), (sJ, 17)], Q0_OFF)
    A("v_lshlrev_b32 v24, 7, v%d" % vLANE)
    A("s_mov_b64 exec, 3")
    A("buffer_load_dword v%d, v24, %s, s%d offen" % (RES + 1, sr(sWS, 4), sT4))
A("s_mov_b64 exec, -1")
if HP: A("s_setprio 3")
A("s_load_dword s%d, %s, %s" % (sE, sr(sWS, 2), hx(EPO)))
A("s_load_dwordx2 %s, s[0:1], 72" % sr(sB2P, 2))
if MEAS:
    A("s_load_dwordx2 s[42:43], s[0:1], 88"); A("s_waitcnt lgkmcnt(0)"); A("v_mov_b32 v30, s42"); A("v_mov_b32 v31, s43")
if DIAG:
    A("v_writelane_b32 v30, s42, 0")
    A("s_waitcnt lgkmcnt(0)")
    A("v_mov_b32 v31, 0")
    A("v_writelane_b32 v31, s88, 0"); A("v_writelane_b32 v31, s90, 1"); A("v_writelane_b32 v31, s92, 2")
STAMP(9)
A("s_barrier")
A("s_lshl_b32 s%d, s2, 2" % sHC)
A("s_add_u32 s%d, s%d, s%d" % (sHC, sHC, sW))
sHX = 86
if XENT:
    C("extra entry e = wave index: |h| code ELO*128 + (e>>1), sign e&1")
    A("s_lshr_b32 s%d, s%d, 1" % (sHX, sHC))
    A("s_add_u32 s%d, s%d, %d" % (sHX, sHX, ELO * 128))
    A("s_lshl_b32 s%d, s%d, 16" % (sHX, sHX))
    A("s_lshl_b32 s%d, s%d, 31" % (sT0, sHC))
    A("s_or_b32 s%d, s%d, s%d" % (sHX, sHX, sT0))
A("s_mul_i32 s%d, s%d, %d" % (sHC, sHC, EPW))
A("s_lshl_b32 s%d, s%d, 3" % (sHT, sHC))
A("s_add_u32 s%d, s%d, %d" % (sHT, sHT, XENT * 4))
A("s_add_u32 s%d, s%d, %d" % (sHC, sHC, ELO * 128 + XENT // 2))
A("s_lshl_b32 s%d, s%d, 16" % (sHC, sHC))
A("v_lshlrev_b32 v27, 2, v%d" % vLANE)
A("v_add_u32 v27, s%d, v27" % sHT)
A("s_mov_b32 s%d, %s" % (sHT, hx(TB)))
common_addr()
A("s_lshl_b32 s%d, s%d, 1" % (sQS, sQS))
A("s_add_u32 s%d, s%d, s%d" % (sQS, sQS, sGR))
A("s_add_u32 s%d, s%d, %s" % (sQS, sQS, hx(Q0_OFF)))
A("v_lshlrev_b32 v%d, 1, v%d" % (vQST, vQST))
A("s_getreg_b32 s%d, hwreg(HW_REG_XCC_ID, 0, 3)" % sXCC)
for r, c in [(hK0, K0), (hK1, K1), (hONE, 1.0)]:
    A("v_mov_b32 v%d, %s" % (r, hx(f2u(c)))); A("v_mov_b32 v%d, %s" % (r + 1, hx(f2u(c))))
A("v_mov_b32 v%d, 0" % hRES)
A("s_mov_b32 s%d, 0" % sIT)
if DRY:
    C("dry run of the q-projection code while its inputs are in flight (instruction cache warm-up; no side effects)")
    A("s_mov_b32 s%d, 1" % sIT)
    A("s_branch Llnq")
    LB("Ldry_done")
    A("s_mov_b64 exec, -1")
    A("s_mov_b32 s%d, 0" % sIT)
if WARM:
    C("warm the instruction cache lines at the far jump targets of the main waves")
    for k, nm in enumerate(["k", "fin", "out", "tab"]):
        A("s_cmp_lg_u32 s%d, %d" % (sW, k))
        A("s_cbranch_scc1 Lwm%d" % k)
        A("s_call_b64 %s, Lst_%s" % (sr(sRET, 2), nm))
        if nm == "out": A("s_call_b64 %s, Lst_mq" % sr(sRET, 2))
        LB("Lwm%d" % k)
A("s_cmp_ge_u32 s%d, 2" % sW)
A("s_cbranch_scc0 Lhx5")
A("s_waitcnt vmcnt(%d)" % (4 + QT))
LB("Lhx5")
A("s_waitcnt vmcnt(%d)" % (5 + QT))
STAMP(1)
A("s_branch Llnq")
LB("Lq_first")
if DRY:
    A("s_cmp_lg_u32 s%d, 0" % sIT)
    A("s_cbranch_scc1 Lq_dry")
A("s_waitcnt vmcnt(0) lgkmcnt(0)")
STAMP(2)
MP("hwq")
lds_arrive(0, vT + 4)
tags()
A("s_or_b32 s%d, s%d, s%d" % (sXCC, sXCC, sTG2))
C("4 helper arrivals (wq tile, xn rows) + 4 main arrivals (coefficients landed, sentinels acknowledged)")
lds_spin(0, 4, vT + 4)
STAMP(6)
LB("Lq_dry")
wqf_reads()
A("s_waitcnt lgkmcnt(0)")
A("s_branch Lq_go")
LB("Lh_qst")
if DRY:
    A("s_cmp_lg_u32 s%d, 0" % sIT)
    A("s_cbranch_scc1 Ldry_done")
STAMP(5)
A("v_mov_b32 v%d, s%d" % (W + 6, sTG1))
A("v_mov_b32 v%d, s%d" % (W + 7, sXCC))
A("buffer_store_dwordx4 %s, v%d, %s, s%d offen%s" % (vr(W + 4, 4), vQST, sr(sWS, 4), sQS, "" if int(OPT.get("fast", 1)) else " sc1"))
A("s_add_u32 s%d, s%d, %s" % (sQS, sQS, hx(QB_DELTA)))
if not QBD: A("buffer_store_dwordx4 %s, v%d, %s, s%d offen sc1" % (vr(W + 4, 4), vQST, sr(sWS, 4), sQS))
A("s_mov_b64 exec, -1")
HR = W + 8
if ADP: lds_arrive(52, 24)
if HP: A("s_setprio 0")
STAMP(3)
MP("hq")
A("v_lshlrev_b32 v26, 3, v%d" % vLANE)
lds_spin(24, 4, 24, sleep=1)
for a_ in range(3):
    for k in range(3):
        A("ds_read_b128 %s, v%d offset:%d" % (vr(HR + 14 * a_ + 4 * k, 4), vL16, 4096 * a_ + 1024 * k))
    A("ds_read_b64 %s, v26 offset:%d" % (vr(HR + 14 * a_ + 12, 2), 4096 * a_ + 3072))
for a_, d in [(0, HW1), (14, HB1), (28, HW2)]:
    A("s_waitcnt lgkmcnt(%d)" % (8 - 4 * (a_ // 14)))
    for p in range(14):
        A("v_lshlrev_b32 v%d, 16, v%d" % (d + 2 * p, HR + a_ + p))
        A("v_and_b32 v%d, 0xffff0000, v%d" % (d + 2 * p + 1, HR + a_ + p))
A("s_load_dword s%d, %s, 0" % (sB2, sr(sB2P, 2)))
STAMP(4)
if DIAG:
    A("s_memtime s[42:43]"); A("s_waitcnt lgkmcnt(0)"); A("v_writelane_b32 v30, s42, 13")
LB("Lhl")
if DIAG:
    A("s_memrealtime s[42:43]"); A("s_add_u32 m0, s%d, 10" % sIT); A("s_waitcnt lgkmcnt(0)"); A("v_writelane_b32 v30, s42, m0")
A("s_mov_b32 s%d, s%d" % (sH, sHC)); A("s_mov_b32 s%d, s%d" % (sH + 1, sHC))
A("s_xor_b32 s%d, s%d, 0x80000000" % (sH2, sHC)); A("s_mov_b32 s%d, s%d" % (sH2 + 1, sH2))
U4 = [144, 146, 148, 150]; T4 = [152, 154, 156, 158]; Z4 = [160, 162, 164, 166]
for p2 in range(7):
    ch = [(2 * p2 + k // 2, k & 1) for k in range(4)]
    for k, (p, sg) in enumerate(ch):
        A("v_pk_fma_f32 %s, %s, %s, %s" % (vr(U4[k], 2), vr(HW1 + 2 * p, 2), sr([sH, sH2][sg], 2), vr(HB1 + 2 * p, 2)))
    for k in range(4): A("v_pk_mul_f32 %s, %s, %s" % (vr(T4[k], 2), vr(U4[k], 2), vr(U4[k], 2)))
    for k in range(4): A("v_pk_fma_f32 %s, %s, %s, %s" % (vr(T4[k], 2), vr(T4[k], 2), vr(hK1, 2), vr(hK0, 2)))
    for k in range(4): A("v_pk_mul_f32 %s, %s, %s" % (vr(T4[k], 2), vr(T4[k], 2), vr(U4[k], 2)))
    for k in range(4):
        for h in range(2): A("v_exp_f32 v%d, v%d" % (T4[k] + h, T4[k] + h))
    for k, (p, sg) in enumerate(ch): A("v_pk_mul_f32 %s, %s, %s" % (vr(Z4[k], 2), vr(U4[k], 2), vr(HW2 + 2 * p, 2)))
    for k in range(4): A("v_pk_add_f32 %s, %s, %s" % (vr(T4[k], 2), vr(T4[k], 2), vr(hONE, 2)))
    for k in range(4):
        for h in range(2): A("v_rcp_f32 v%d, v%d" % (T4[k] + h, T4[k] + h))
    for k, (p, sg) in enumerate(ch):
        if p == 0: A("v_pk_mul_f32 %s, %s, %s" % (vr(AC[sg], 2), vr(Z4[k], 2), vr(T4[k], 2)))
        else: A("v_pk_fma_f32 %s, %s, %s, %s" % (vr(AC[sg], 2), vr(Z4[k], 2), vr(T4[k], 2), vr(AC[sg], 2)))
A("v_add_f32 v%d, v%d, v%d" % (AC[0], AC[0], AC[0] + 1))
A("v_add_f32 v%d, v%d, v%d" % (AC[1], AC[1], AC[1] + 1))
A("s_lshl_b32 m0, s%d, 1" % sIT)
A("s_add_u32 s%d, s%d, 0x10000" % (sHC, sHC))
wave_sum2(AC[0], AC[1], sSUM, sSQ)
A("s_add_u32 s%d, s%d, 1" % (sIT, sIT))
A("s_nop 0")
A("v_writelane_b32 v%d, s%d, m0" % (hRES, sSUM))
A("s_add_u32 m0, m0, 1")
A("s_cmp_lg_u32 s%d, %d" % (sIT, EPW))
A("v_writelane_b32 v%d, s%d, m0" % (hRES, sSQ))
A("s_cbranch_scc1 Lhl")
def h_publish(lanes):
    A("v_cvt_pk_bf16_f32 v%d, v%d, v%d" % (hRES, hRES, hRES))
    A("v_and_b32 v%d, 0xffff0000, v%d" % (hRES, hRES))
    A("v_add_f32 v%d, s%d, v%d" % (hRES, sB2, hRES))
    A("v_cvt_pk_bf16_f32 v%d, v%d, v%d" % (hRES, hRES, hRES))
    A("v_and_b32 v%d, 0xffff0000, v%d" % (hRES + 1, hRES))
    A("s_mov_b64 exec, %d" % lanes)
    A("buffer_store_dword v%d, v27, %s, s%d offen sc1" % (hRES + 1, sr(sWS, 4), sHT))
    A("s_mov_b64 exec, -1")
A("s_waitcnt lgkmcnt(0)")
A("s_lshl_b32 s%d, s%d, 16" % (sB2, sB2))
lds_spin(8, 4, 24)
h_publish((1 << (2 * EPW)) - 1)
if QBD:
    C("the write-through copy of q is only needed when the group is not known to sit on one XCD")
    A("ds_read_b32 v24, v%d offset:4" % vFL)
    A("s_waitcnt lgkmcnt(0)")
    A("v_readfirstlane_b32 s%d, v24" % sT0)
    A("s_cmp_eq_u32 s%d, 4" % sT0)
    A("s_cbranch_scc1 Lhqb")
    A("s_mov_b64 exec, %s" % sr(sMSK, 2))
    A("buffer_store_dwordx4 %s, v%d, %s, s%d offen sc1" % (vr(W + 4, 4), vQST, sr(sWS, 4), sQS))
    A("s_mov_b64 exec, -1")
    LB("Lhqb")
STAMP(8)
MP("htab")
if XENT:
    A("s_mov_b32 s%d, s%d" % (sH, sHX)); A("s_mov_b32 s%d, s%d" % (sH + 1, sHX))
    for grp in [[0, 1, 2, 3], [4, 5, 6, 7], [8, 9, 10], [11, 12, 13]]:
        n = len(grp)
        for k, p in enumerate(grp): A("v_pk_fma_f32 %s, %s, %s, %s" % (vr(U4[k], 2), vr(HW1 + 2 * p, 2), sr(sH, 2), vr(HB1 + 2 * p, 2)))
        for k in range(n): A("v_pk_mul_f32 %s, %s, %s" % (vr(T4[k], 2), vr(U4[k], 2), vr(U4[k], 2)))
        for k in range(n): A("v_pk_fma_f32 %s, %s, %s, %s" % (vr(T4[k], 2), vr(T4[k], 2), vr(hK1, 2), vr(hK0, 2)))
        for k in range(n): A("v_pk_mul_f32 %s, %s, %s" % (vr(T4[k], 2), vr(T4[k], 2), vr(U4[k], 2)))
        for k in range(n):
            for h in range(2): A("v_exp_f32 v%d, v%d" % (T4[k] + h, T4[k] + h))
        for k, p in enumerate(grp): A("v_pk_mul_f32 %s, %s, %s" % (vr(Z4[k], 2), vr(U4[k], 2), vr(HW2 + 2 * p, 2)))
        for k in range(n): A("v_pk_add_f32 %s, %s, %s" % (vr(T4[k], 2), vr(T4[k], 2), vr(hONE, 2)))
        for k in range(n):
            for h in range(2): A("v_rcp_f32 v%d, v%d" % (T4[k] + h, T4[k] + h))
        for k, p in enumerate(grp):
            if p < 2: A("v_pk_mul_f32 %s, %s, %s" % (vr(AC[p & 1], 2), vr(Z4[k], 2), vr(T4[k], 2)))
            else: A("v_pk_fma_f32 %s, %s, %s, %s" % (vr(AC[p & 1], 2), vr(Z4[k], 2), vr(T4[k], 2), vr(AC[p & 1], 2)))
    A("v_add_f32 v%d, v%d, v%d" % (AC[0], AC[0], AC[0] + 1))
    A("v_add_f32 v%d, v%d, v%d" % (AC[1], AC[1], AC[1] + 1))
    A("v_add_f32 v%d, v%d, v%d" % (AC[0], AC[0], AC[1]))
    A("s_nop 1")
    wave_sum2(AC[0], AC[1], sSUM, sSQ)
    A("s_nop 1")
    A("v_mov_b32 v%d, s%d" % (hRES, sSUM))
    A("v_cvt_pk_bf16_f32 v%d, v%d, v%d" % (hRES, hRES, hRES))
    A("v_and_b32 v%d, 0xffff0000, v%d" % (hRES, hRES))
    A("v_add_f32 v%d, s%d, v%d" % (hRES, sB2, hRES))
    A("v_cvt_pk_bf16_f32 v%d, v%d, v%d" % (hRES, hRES, hRES))
    A("v_and_b32 v%d, 0xffff0000, v%d" % (hRES, hRES))
    C("the last of the four helpers stores the workgroup's four extra entries with one instruction")
    A("s_lshl_b32 s%d, s%d, 2" % (sT0, sW))
    A("v_add_u32 v16, s%d, v%d" % (sT0, vFL))
    A("v_mov_b32 v17, 1")
    A("s_mov_b64 exec, 1")
    A("ds_write_b32 v16, v%d offset:32" % hRES)
    A("s_waitcnt lgkmcnt(0)")
    A("ds_add_rtn_u32 v18, v%d, v17 offset:28" % vFL)
    A("s_waitcnt lgkmcnt(0)")
    A("v_readfirstlane_b32 s%d, v18" % sT0)
    A("s_cmp_lg_u32 s%d, 3" % sT0)
    A("s_cbranch_scc1 Lhx_end")
    A("ds_read_b128 v[20:23], v%d offset:32" % vFL)
    A("s_lshl_b32 s%d, s2, 4" % sT0)
    A("v_mov_b32 v16, s%d" % sT0)
    A("s_waitcnt lgkmcnt(0)")
    A("buffer_store_dwordx4 v[20:23], v16, %s, s%d offen sc1" % (sr(sWS, 4), sHT))
    LB("Lhx_end")
    A("s_mov_b64 exec, -1")
if DIAG:
    A("s_memtime s[42:43]"); A("s_waitcnt lgkmcnt(0)"); A("v_writelane_b32 v30, s42, 14")
    STAMP(15)
MP("qv")
STAMP(7)
C("stand in at the two barriers of the second layer, so that they do not wait for this wave's store acknowledgements")
A("s_barrier")
A("s_barrier")
if MEAS and OPT["q"][0] == "h":
    A("s_mov_b64 exec, 1"); A("v_mov_b32 v16, s97"); A("global_atomic_umax v[30:31], v16, off sc1")
if DIAG:
    A("s_add_u32 s%d, s%d, 4" % (sW, sW))
    A("v_mov_b32 v28, v30")
    A("s_branch Lfin_exit")
A("s_endpgm")

LB("Lmain")
for s, off in [(sWS, 96), (sV, 16), (sWO, 32), (sOUT, 80), (sX, 0), (sB2P, 72)]:
    A("s_load_dwordx2 %s, s[0:1], %d" % (sr(s, 2), off))
if MEAS: A("s_load_dwordx2 s[42:43], s[0:1], 88"); A("s_waitcnt lgkmcnt(0)"); A("s_mov_b32 s25, s42"); A("s_mov_b32 s99, s43") if False else None; A("v_mov_b32 v30, s42"); A("v_mov_b32 v31, s43")
srd(sWS, WS_SZ)
for s in [sW1, sB1, sW2]: srd(s, 3584)
A("s_lshl_b32 s%d, s%d, 10" % (sT3, sW))
A("s_barrier")
for i in range(D0, DC): kv_issue(i)
A("s_mov_b32 m0, s%d" % sT3)
for i, sd in enumerate([sW1, sB1, sW2]):
    if i: A("s_addk_i32 m0, 0x1000")
    A("s_nop 0")
    A("buffer_load_dwordx4 v%d, %s, s%d offen lds" % (vL16, sr(sd, 4), sT3))
for i in range(DC, D1): kv_issue(i)
for i in range(4): A("v_mov_b32 v%d, -1" % (W + i))
A("s_lshl_b32 s%d, s%d, 17" % (sGR, sJ))
A("s_mov_b32 s%d, s%d" % (sT1, sM))
A("s_waitcnt lgkmcnt(0)")
A("s_load_dword s%d, %s, %s" % (sE, sr(sWS, 2), hx(EPO)))
STAMP(11)
MP("k3")
for s, n in [(sV, 1 << 25), (sX, 4096), (sWO, 1 << 22), (sOUT, 4096)]: srd(s, n)
A("v_lshlrev_b32 v18, 1, v16")
A("v_xor_b32 v18, v17, v18")
A("v_lshlrev_b32 v18, 4, v18")
A("v_lshl_add_u32 v%d, v16, 8, v18" % vVA)
if ROT:
    A("s_and_b32 s%d, s%d, 1" % (sT0, sC))
    A("s_lshl_b32 s%d, s%d, 7" % (sT0, sT0))
    A("v_xor_b32 v%d, s%d, v%d" % (vVA, sT0, vVA))
A("v_xor_b32 v%d, 128, v%d" % (vVA + 1, vVA))
C("late sentinels: wave 0,1: group region ; wave 2: P chunk")
A("s_lshr_b32 s%d, s2, 3" % sT1)
A("s_mul_i32 s%d, s%d, %d" % (sT1, sT1, CLRB_PER))
A("s_lshl_b32 s%d, s%d, 10" % (sT0, sW))
A("s_add_u32 s%d, s%d, s%d" % (sT1, sT1, sT0))
A("s_add_u32 s%d, s%d, s%d" % (sT1, sT1, sGR))
A("s_add_u32 s%d, s%d, %d" % (sT1, sT1, CLRB_OFF))
A("s_lshl_b32 s%d, s2, 10" % sT0)
A("s_add_u32 s%d, s%d, %s" % (sT0, sT0, hx(PB)))
A("s_cmp_ge_u32 s%d, 2" % sW)
A("s_cselect_b32 s%d, s%d, s%d" % (sT1, sT0, sT1))
A("s_bfm_b64 %s, %d, 0" % (sr(sH, 2), (CLRB_PER - 1024) // 16))
A("s_cmp_eq_u32 s%d, 1" % sW)
A("s_cselect_b64 %s, %s, -1" % (sr(sH, 2), sr(sH, 2)))
NCL = NOCT * 4 // 16
A("v_mov_b32 v19, v%d" % vL16)
A("s_cmp_lg_u32 s%d, 3" % sW)
A("s_cbranch_scc1 Lm_c3")
C("wave 3: this workgroup's table slots")
A("s_mul_i32 s%d, s2, %d" % (sT0, NOCT * 4))
A("s_add_u32 s%d, s%d, %d" % (sT0, sT0, XENT * 4))
A("v_add_u32 v19, s%d, v19" % sT0)
A("s_lshl_b32 s%d, s2, 4" % sT0)
if XENT: A("v_writelane_b32 v19, s%d, %d" % (sT0, NCL))
A("s_mov_b32 s%d, %s" % (sT1, hx(TB)))
A("s_mov_b64 %s, %d" % (sr(sH, 2), (1 << (NCL + (1 if XENT else 0))) - 1))
LB("Lm_c3")
A("s_mov_b64 exec, %s" % sr(sH, 2))
A("buffer_store_dwordx4 %s, v19, %s, s%d offen sc1" % (vr(W, 4), sr(sWS, 4), sT1))
A("s_mov_b64 exec, -1")

common_addr()
A("s_add_u32 s%d, s%d, s%d" % (sQS, sQS, sGR))
A("s_add_u32 s%d, s%d, %d" % (sQS, sQS, Q1_OFF))
wtile_voff(10, 22)
A("v_and_b32 v19, 7, v%d" % vLANE)
A("v_lshrrev_b32 v25, 2, v%d" % vLANE)
A("v_lshlrev_b32 v25, 7, v25")
A("v_lshl_add_u32 v%d, v18, 2, v25" % vOST)
A("v_lshlrev_b32 v25, 7, v16")
A("v_lshl_add_u32 v%d, v19, 4, v25" % vOLD)
C("lanes n>=8 of the first two o loads fetch the lse values instead: offset relative to the o block")
A("s_mul_i32 s%d, s%d, %d" % (sT0, sA, 128 - 8192))
A("s_mul_i32 s%d, s%d, %d" % (sT1, sW, 32 - 2048))
A("s_add_u32 s%d, s%d, s%d" % (sT0, sT0, sT1))
A("s_add_u32 s%d, s%d, %d" % (sT0, sT0, LSE_OFF[0] - O_OFF[0]))
A("v_add_u32 v25, s%d, v%d" % (sT0, vLSE))
A("v_xor_b32 v26, 16, v25")
A("v_add_u32 v26, -512, v26")
A("v_cmp_gt_u32 vcc, 8, v17")
A("s_nop 1")
A("v_cndmask_b32 v%d, v25, v%d, vcc" % (vLSE, vOLD))
A("v_cndmask_b32 v%d, v26, v%d, vcc" % (vLS2, vOLD))
A("v_lshlrev_b32 v%d, 1, v%d" % (vPST, vLANE))
A("v_lshlrev_b32 v25, 3, v16")
A("v_lshl_add_u32 v%d, v19, 4, v25" % vX1S)
A("s_mul_i32 s%d, s%d, %d" % (sT0, sW, RBS))
A("s_add_u32 s%d, s%d, %d" % (sT0, sT0, L_RB))
A("v_mul_u32_u24 v25, 528, v18")
A("v_lshl_add_u32 v25, v16, 4, v25")
A("v_lshrrev_b32 v26, 2, v17")
A("v_lshl_add_u32 v25, v26, 7, v25")
A("v_add_u32 v%d, s%d, v25" % (vRBW, sT0))
A("s_mul_i32 s%d, s%d, 528" % (sT0, sW))
A("s_add_u32 s%d, s%d, %d" % (sT0, sT0, L_RB))
A("v_lshlrev_b32 v25, 3, v%d" % vLANE)
A("v_add_u32 v%d, s%d, v25" % (vRBR, sT0))
A("s_lshl_b32 s%d, s%d, 3" % (sT0, sW))
A("s_add_u32 s%d, s%d, %d" % (sT0, sT0, L_ML))
A("v_lshlrev_b32 v25, 5, v18")
A("v_add_u32 v%d, s%d, v25" % (vMLW, sT0))
A("s_lshl_b32 s%d, s%d, 5" % (sT0, sW))
A("s_add_u32 s%d, s%d, %d" % (sT0, sT0, L_ML))
A("v_mov_b32 v%d, s%d" % (vMLR, sT0))
A("v_mov_b32 v25, 0x3f80")
A("v_mov_b32 v26, 0x3f800000")
for r in range(4):
    A("v_cmp_eq_u32 vcc, %d, v17" % (2 * r))
    A("v_cmp_eq_u32 %s, %d, v17" % (sr(sH, 2), 2 * r + 1))
    A("s_nop 0")
    A("v_cndmask_b32 v%d, 0, v25, vcc" % (SEL + r))
    A("v_cndmask_b32 v%d, v%d, v26, %s" % (SEL + r, SEL + r, sr(sH, 2)))
for i in range(16): A("v_mov_b32 v%d, 0" % (PM + i))
for p in range(4):
    A("s_mov_b32 s%d, %s" % (sPM + 2 * p, hx(0x000f000f << (4 * p))))
    A("s_mov_b32 s%d, %s" % (sPM + 2 * p + 1, hx(0x000f000f << (4 * p))))
soff(sOS, [(sW, 13), (sA, 11), (sC, 4), (sJ, 17)], O_OFF[0])
soff(sOL, [(sA, 13), (sW, 11), (sJ, 17)], O_OFF[0])
A("s_add_u32 s%d, s%d, %s" % (sQL, sOL, hx(Q0_OFF - O_OFF[0])))
soff(sLS, [(sW, 7), (sA, 5), (sC, 2), (sJ, 17)], LSE_OFF[0])
soff(sPS, [(sW, 15), (sC, 12), (sJ, 9), (sA, 7)], PB)
A("s_mov_b32 s%d, %s" % (sSC, hx(f2u(128 ** -0.5 * math.log2(math.e)))))
A("s_getreg_b32 s%d, hwreg(HW_REG_XCC_ID, 0, 3)" % sXCC)
A("v_xor_b32 v24, v16, v17")
A("v_lshlrev_b32 v24, 4, v24")
A("v_lshl_add_u32 v24, v17, 8, v24")
A("s_lshl_b32 s%d, s%d, 13" % (sT1, sW))
A("s_add_u32 s%d, s%d, %d" % (sT2, sT1, L_K))
for t in range(4): A("v_xor_b32 v%d, %d, v24" % (18 + t, 64 * t))
for t in range(4): A("v_add_u32 v%d, s%d, v%d" % (18 + t, sT2, 18 + t))
VA = W + 32
A("v_lshrrev_b32 v24, 2, v%d" % vLANE)
A("v_and_b32 v25, 7, v24")
A("v_lshlrev_b32 v25, 1, v25")
A("v_bfe_u32 v26, v%d, 1, 1" % vLANE)
A("v_xor_b32 v25, v25, v26")
A("v_lshlrev_b32 v25, 4, v25")
A("v_lshl_add_u32 v25, v24, 8, v25")
A("v_and_b32 v26, 1, v%d" % vLANE)
A("v_lshl_add_u32 v25, v26, 3, v25")
A("s_add_u32 s%d, s%d, %d" % (sT2, sT1, L_V))
for t in range(8): A("v_xor_b32 v%d, %d, v25" % (VA + t, 32 * t))
for t in range(8): A("v_add_u32 v%d, s%d, v%d" % (VA + t, sT2, VA + t))
soff(sT4, [(sJ, 19), (sA, 17), (sW, 15), (sC, 7)], 0)
A("s_lshl_b32 s%d, s%d, 12" % (sT5, sW))
A("s_add_u32 s%d, s%d, %d" % (sT5, sT5, L_WO))
soff(sT3, [(sA, 10), (sC, 7)], 0)
A("v_lshlrev_b32 v24, 5, v%d" % vLANE)
A("s_lshl_b32 s%d, s%d, 10" % (sT2, sW))
A("s_add_u32 s%d, s%d, %d" % (sT2, sT2, L_QF))
A("v_add_u32 v25, s%d, v%d" % (sT2, vL16))
A("v_add_u32 v26, %d, v%d" % (L_QF, vL16))
STAMP(12)
if DIAG: A("v_mov_b32 v31, v30")
QP = W
def q0_issue(QP=QP):
    A("buffer_load_dwordx4 %s, v24, %s, s%d offen sc1" % (vr(QP, 4), sr(sWS, 4), sQL))
    A("buffer_load_dwordx4 %s, v24, %s, s%d offen offset:16 sc1" % (vr(QP + 4, 4), sr(sWS, 4), sQL))
def flag_block():
    if True:
        A("s_cmp_lg_u32 s%d, 0" % sW)
        A("s_cbranch_scc1 Lnoflag")
        C("every sentinel store of this workgroup is acknowledged: announce it")
        lds_spin(8, 4, vT)
        A("v_mov_b32 v16, s%d" % sTG1)
        A("v_mov_b32 v17, s%d" % sXCC)
        soff(sT1, [(2, 4)], FB)
        A("v_mov_b32 v21, 0")
        A("s_mov_b64 exec, 1")
        A("buffer_store_dwordx2 v[16:17], v21, %s, s%d offen sc1" % (sr(sWS, 4), sT1))
        A("s_mov_b64 exec, -1")
        LB("Lnoflag")
C("coefficients landed -> tell the helpers")
young = D1 - DC + 1
told = False
if ECO:
    A("s_waitcnt vmcnt(%d)" % young); lds_arrive(24, vT); told = True
A("s_mov_b32 s%d, 0" % sY)
for i in range(D1, 16):
    dp = DEPTH if i < TAILI else TAILD
    extra = 1 if i == 16 - QV else 0
    if ADP and told:
        C("stay shallow until the helpers have issued their q stores")
        A("s_cmp_lg_u32 s%d, 0" % sY)
        A("s_cbranch_scc1 Ldp%d" % i)
        A("ds_read_b32 v%d, v%d offset:52" % (vT, vFL))
        A("s_waitcnt lgkmcnt(0)")
        A("v_readfirstlane_b32 s%d, v%d" % (sT1, vT))
        A("s_cmp_ge_u32 s%d, 4" % sT1)
        A("s_cselect_b32 s%d, 1, 0" % sY)
        A("s_cbranch_scc1 Ldp%d" % i)
        A("s_waitcnt vmcnt(%d)" % (dp - 1 - 2 * extra))
        LB("Ldp%d" % i)
        A("s_waitcnt vmcnt(%d)" % (ADP - 1 - 2 * extra))
        if extra: q0_issue(); young += 2
    else:
        if extra:
            A("s_waitcnt vmcnt(%d)" % (dp - 2)); q0_issue(); young += 2
            if DIAG:
                A("s_memrealtime s[42:43]"); A("s_waitcnt lgkmcnt(0)"); A("v_writelane_b32 v31, s42, 9")
        if QV2 and i == 16 - QV2:
            A("s_waitcnt vmcnt(%d)" % (dp - 2)); q0_issue(XR); young += 2
        A("s_waitcnt vmcnt(%d)" % (dp - 1))
    if not told and young >= dp - 1:
        lds_arrive(24, vT); told = True
    kv_issue(i); young += 1
assert told
q0_issue(QP + 8)
C("everything older than the V loads is complete: K, late sentinels")
A("s_waitcnt vmcnt(%d)" % (14 if QV2 else 12))
lds_arrive(8, vT)
A("s_waitcnt lgkmcnt(0)")
tags()
A("s_or_b32 s%d, s%d, s%d" % (sXCC, sXCC, sTG2))
STAMP(1)
MP("kl")
for t in range(4):
    for T in range(2):
        A("ds_read_b128 %s, v%d offset:%d" % (vr(KF + 16 * T + 4 * t, 4), 18 + t, 4096 * T))
flag_block()
def wait_w0(n):
    uid[0] += 1
    A("s_cmp_eq_u32 s%d, 0" % sW)
    A("s_cbranch_scc1 Lww%d" % uid[0])
    A("s_waitcnt vmcnt(%d)" % n)
    LB("Lww%d" % uid[0])
    A("s_waitcnt vmcnt(%d)" % (n + 1))
wait_w0(QV + 2 + (2 if QV2 else 0))
STAMP(2)
A("s_setprio 2")
A("s_mov_b32 s%d, %s" % (sCNT, hx(SPIN)))
A("s_mov_b32 s%d, 0" % sY)
A("s_mov_b32 s%d, 0" % sIT)
LB("Lmq")
A("v_and_b32 v16, -8, v%d" % (QP + 3))
A("v_and_b32 v17, -8, v%d" % (QP + 7))
A("v_cmp_ne_u32 vcc, s%d, v%d" % (sTG1, QP + 2))
A("v_cmp_ne_u32 %s, s%d, v%d" % (sr(sRET, 2), sTG1, QP + 6))
A("s_or_b64 vcc, vcc, %s" % sr(sRET, 2))
A("v_cmp_ne_u32 %s, s%d, v16" % (sr(sRET, 2), sTG2))
A("s_or_b64 vcc, vcc, %s" % sr(sRET, 2))
A("v_cmp_ne_u32 %s, s%d, v17" % (sr(sRET, 2), sTG2))
A("s_or_b64 vcc, vcc, %s" % sr(sRET, 2))
if not int(OPT.get("nochk", 0)): A("s_cbranch_vccnz Lmqr")
LB("Lmqd")
if DIAG:
    A("s_sub_u32 s%d, s%d, s%d" % (sT0, sCNT, sY)); A("v_writelane_b32 v31, s%d, 0" % sT0)
Ls = L; L = []
L.append(".p2align 6"); LB("Lst_mq"); A("s_setpc_b64 %s" % sr(sRET, 2))
LB("Lmqr")
A("s_cmp_lg_u32 s%d, 0" % sY)
A("s_cbranch_scc1 Lmqr2")
if QV2:
    A("s_cmp_lg_u32 s%d, 0" % sIT)
    A("s_cbranch_scc1 Lmqr1")
    A("s_mov_b32 s%d, 1" % sIT)
    wait_w0(QV2 + 2)
    for k in range(8): A("v_mov_b32 v%d, v%d" % (QP + k, XR + k))
    A("s_branch Lmq")
    LB("Lmqr1")
C("first look failed: take the second one (V has landed with it: request its fragments now)")
A("s_waitcnt vmcnt(0)")
A("s_mov_b32 s%d, 1" % sY)
for k in range(8): A("v_mov_b32 v%d, v%d" % (QP + k, QP + 8 + k))
if not VLATE:
    for t in range(8):
        for hf in range(2):
            A("ds_read_b64_tr_b16 %s, v%d offset:%d" % (vr(VF + 4 * t + 2 * hf, 2), VA + t, 4096 * hf))
A("s_branch Lmq")
LB("Lmqr2")
C("still not there: poll the plain copy a few times, then both copies in turn")
A("s_cmp_le_u32 s%d, %s" % (sCNT, hx(SPIN - 6)))
A("s_cselect_b32 s%d, %s, 0" % (sT0, hx(QB_DELTA)))
A("s_xor_b32 s%d, s%d, s%d" % (sQL, sQL, sT0))
q0_issue()
A("s_waitcnt vmcnt(0)")
A("s_sub_u32 s%d, s%d, 1" % (sCNT, sCNT))
A("s_cbranch_scc0 Lmq")
A("s_branch Lmqd")
ool.append(L); L = Ls
A("v_cmp_ne_u32 vcc, s%d, v%d" % (sXCC, QP + 3))
A("v_mov_b32 v%d, v%d" % (QP + 2, QP + 4))
A("v_mov_b32 v%d, v%d" % (QP + 3, QP + 5))
A("ds_write_b128 v25, %s" % vr(QP, 4))
A("s_cmp_eq_u64 vcc, 0")
A("s_cselect_b32 s%d, 1, 0x101" % sT0)
A("v_mov_b32 v16, s%d" % sT0)
A("s_waitcnt lgkmcnt(0)")
lds_arrive(4, 16, None)
if VLATE:
    A("s_cmp_eq_u32 s%d, 0" % sY)
    A("s_cbranch_scc1 Lnvf")
    for t in range(8):
        for hf in range(2):
            A("ds_read_b64_tr_b16 %s, v%d offset:%d" % (vr(VF + 4 * t + 2 * hf, 2), VA + t, 4096 * hf))
    LB("Lnvf")
STAMP(15)
MP("qv")
A("buffer_load_dwordx2 %s, v%d, %s, s%d offen" % (vr(RES + 2, 2), vX1S, sr(sX, 4), sT3))
FLG = W + 44
soff(sIT, [(sW, 10)], FB)
soff(sQL, [(sA, 12), (sJ, 17)], Q1_OFF)
for k in range(4):
    A("s_add_u32 s%d, s%d, %d" % (sT0, sC, k))
    A("s_and_b32 s%d, s%d, 3" % (sT0, sT0))
    A("s_lshl_b32 s%d, s%d, 10" % (sKO + k, sT0))
A("s_and_b32 s%d, s%d, 1" % (sT0, sC))
A("s_lshl_b32 s%d, s%d, 6" % (sT0, sT0))
A("v_xor_b32 v22, s%d, v22" % sT0); A("v_xor_b32 v23, s%d, v23" % sT0)
A("s_lshl_b32 s%d, s%d, 2" % (sT3, sM))
A("s_add_u32 s%d, s%d, s%d" % (sT3, sT3, sW))
A("s_lshl_b32 s%d, s%d, 8" % (sT3, sT3))
A("v_lshlrev_b32 v21, 7, v%d" % vLANE)
A("v_add_u32 v21, s%d, v21" % sT3)
A("s_lshl_b32 s%d, s%d, 7" % (sT0, sW))
A("s_add_u32 s%d, s%d, %d" % (sT0, sT0, LSE_OFF[0]))
A("v_writelane_b32 v21, s%d, 2" % sT0)
lds_spin(4, 4, vT, mask=0xff)
A("s_cmp_lt_u32 s%d, 256" % sT1)
A("s_cselect_b32 s%d, %d, 0" % (sFAST, int(OPT.get("fast", 1))))
QF = W + 16
for t in range(4):
    A("ds_read_b128 %s, v26 offset:%d" % (vr(QF + 4 * t, 4), 1024 * t))
S = W
qk = []
for t in range(4):
    for T in range(2):
        qk.append(mf(S + 4 * T, KF + 16 * T + 4 * t, QF + 4 * t, None if t == 0 else S + 4 * T))
for t in range(4):
    A("s_waitcnt lgkmcnt(%d)" % (3 - t))
    A(qk[2 * t]); A(qk[2 * t + 1])
def wo_issue():
    C("every wave holds its K fragments: the wo tile may land in the K area")
    for k in range(4):
        A("s_add_u32 m0, s%d, s%d" % (sT5, sKO + k))
        A("s_lshl3_add_u32 s%d, s%d, s%d" % (sT0, sKO + k, sT4))
        A("buffer_load_dwordx4 v%d, %s, s%d offen nt lds" % (22 + (k & 1), sr(sWO, 4), sT0))
if WOP == 0: wo_issue()
if PRET:
    C("bring the first layer's o / lse lines (their sentinels are in place) into L2")
    A("s_mov_b64 exec, 7")
    A("buffer_load_dword v%d, v21, %s, s%d offen sc1" % (W + 40, sr(sWS, 4), sGR))
    A("s_mov_b64 exec, -1")
STAMP(3)
A("s_branch Lk_go")

LB("Llnq")
C("LayerNorm of the row held in XR, then q partial = xn @ wq tile")
X = W
row_stats(XR, vT, X)
A("v_add_f32 v%d, %s, v%d" % (vT + 1, EPS, vT + 1))
A("v_rsq_f32 v%d, v%d" % (vT + 2, vT + 1))
A("s_cmp_eq_u32 s%d, 0" % sLAY)
A("v_mul_f32 v%d, v%d, v%d" % (vT + 3, vT, vT + 2))
for i in range(4):
    A("v_pk_fma_f32 %s, %s, %s, %s op_sel:[0,0,1] op_sel_hi:[1,0,1] neg_lo:[0,0,1] neg_hi:[0,0,1]" % (vr(X + 2 * i, 2), vr(X + 2 * i, 2), vr(vT + 2, 2), vr(vT + 2, 2)))
for i in range(4):
    A("v_cvt_pk_bf16_f32 v%d, v%d, v%d" % (X + 8 + i, X + 2 * i, X + 2 * i + 1))
A("ds_write_b128 v%d, %s" % (vXNW, vr(X + 8, 4)))
A("s_cbranch_scc1 Lq_first")
A("s_waitcnt lgkmcnt(0)")
A("s_barrier")
LB("Lq_go")
BF = W + 16
for t in range(4):
    A("ds_read_b128 %s, v%d offset:%d" % (vr(BF + 4 * t, 4), vXNR, 64 * t))
for t in range(4):
    A("s_waitcnt lgkmcnt(%d)" % (3 - t))
    mfma(W, WQF + 4 * t, BF + 4 * t, None if t == 0 else W)
A("s_cmp_eq_u32 s%d, 0" % sLAY)
A("s_mov_b64 exec, %s" % sr(sMSK, 2))
NOP(6)
A("v_cvt_pk_bf16_f32 v%d, v%d, v%d" % (W + 4, W, W + 1))
A("v_cvt_pk_bf16_f32 v%d, v%d, v%d" % (W + 5, W + 2, W + 3))
A("s_cbranch_scc1 Lh_qst")
fastcmp()
store_local("buffer_store_dwordx2", vr(W + 4, 2), vQST, sQS)
A("s_mov_b64 exec, -1")
A("ds_write_b128 v%d, %s offset:%d" % (vXNW, vr(XR, 4), L_X2 - L_XN))
A("s_mov_b32 s%d, 0" % sY)
for s, d in [(sOL, O_OFF[1] - O_OFF[0]), (sOS, O_OFF[1] - O_OFF[0]), (sLS, LSE_OFF[1] - LSE_OFF[0]), (sPS, P_L)]:
    A("s_add_u32 s%d, s%d, %d" % (s, s, d))
STAMP(2)

C("attention over this workgroup's 128 keys")
if QS:
    C("each wave fetches one k-step of q and shares it through LDS")
    A("s_lshl_b32 s%d, s%d, 10" % (sT3, sW))
    A("s_add_u32 s%d, s%d, s%d" % (sT4, sQL, sT3))
    A("s_add_u32 s%d, s%d, %d" % (sT3, sT3, L_RB + 12288))
    A("v_add_u32 v25, s%d, v%d" % (sT3, vL16))
    A("v_add_u32 v26, %d, v%d" % (L_RB + 12288, vL16))
    ppoll(lambda k: A("buffer_load_dwordx4 %s, v%d, %s, s%d offen sc1" % (vr(W + 32 + 4 * k, 4), vL16, sr(sWS, 4), sT4)),
          lambda k: range(W + 32 + 4 * k, W + 36 + 4 * k), 1, vT, lambda k: ["ds_write_b128 v25, %s" % vr(W + 32 + 4 * k, 4)], pre=QPRE, gap=QGAP, tag=0)
    A("s_waitcnt lgkmcnt(0)")
    A("s_barrier")
    for t in range(4):
        A("ds_read_b128 %s, v26 offset:%d" % (vr(QF + 4 * t, 4), 1024 * t))
    for t in range(4):
        A("s_waitcnt lgkmcnt(%d)" % (3 - t))
        A(qk[2 * t]); A(qk[2 * t + 1])
    touch_stub("k")
else:
    def iq(k):
        for t in range(4):
            A("buffer_load_dwordx4 %s, v%d, %s, s%d offen offset:%d sc1" % (vr(QF + 16 * k + 4 * t, 4), vL16, sr(sWS, 4), sQL, 1024 * t))
    def qks(k):
        return [mf(S + 4 * T, KF + 16 * T + 4 * t, QF + 16 * k + 4 * t, None if t == 0 else S + 4 * T) for t in range(4) for T in range(2)]
    ppoll(iq, lambda k: range(QF + 16 * k, QF + 16 * k + 16), 4, vT, qks, pre=QPRE, gap=QGAP, tag=0, stub="k", per_load=lambda k, i: qks(k)[2 * i:2 * i + 2])
STAMP(3)
LB("Lk_go")
NOP(5)
for ctl in ["row_ror:4", "row_ror:8"]:
    for i in range(8):
        A("v_add_f32_dpp v%d, v%d, v%d %s row_mask:0xf bank_mask:0xf" % (S + i, S + i, S + i, ctl))
A("v_max3_f32 v%d, v%d, v%d, v%d" % (vT, S, S + 1, S + 2))
A("v_max3_f32 v%d, v%d, v%d, v%d" % (vT + 1, S + 3, S + 4, S + 5))
A("v_max3_f32 v%d, v%d, v%d, v%d" % (vT, vT, S + 6, S + 7))
A("v_max_f32 v%d, v%d, v%d" % (vT, vT, vT + 1))
A("v_mov_b32 v%d, v%d" % (vT + 1, vT))
A("s_nop 1")
A("v_permlane16_swap_b32 v%d, v%d" % (vT, vT + 1))
A("v_max_f32 v%d, v%d, v%d" % (vT, vT, vT + 1))
A("v_mov_b32 v%d, v%d" % (vT + 1, vT))
A("s_nop 1")
A("v_permlane32_swap_b32 v%d, v%d" % (vT, vT + 1))
A("v_max_f32 v%d, v%d, v%d" % (vT, vT, vT + 1))
A("v_mul_f32 v%d, s%d, v%d" % (vT + 2, sSC, vT))
for i in range(8):
    A("v_fma_f32 v%d, v%d, s%d, -v%d" % (S + i, S + i, sSC, vT + 2))
for i in range(8):
    A("v_exp_f32 v%d, v%d" % (S + i, S + i))
for p in range(4):
    A("s_mov_b64 exec, %s" % sr(sPM + 2 * p, 2))
    for i in range(4):
        A("v_cvt_pk_bf16_f32 v%d, v%d, v%d" % (PM + 4 * p + i, S + 2 * i, S + 2 * i + 1))
A("s_mov_b64 exec, -1")
STAMP(4)
A("s_cmp_lg_u32 s%d, 0" % sLAY)
A("s_cbranch_scc1 Lv_go")
wait_w0((5 if WOP == 0 else 1) + PRET)
if WOP == 1: wo_issue()
A("buffer_load_dwordx4 %s, v%d, %s, s%d offen sc1" % (vr(FLG, 4), vL16, sr(sWS, 4), sIT))
STAMP(6)
A("s_cmp_lg_u32 s%d, 0" % sY)
A("s_cbranch_scc1 Lv_have")
for t in range(8):
    for hf in range(2):
        A("ds_read_b64_tr_b16 %s, v%d offset:%d" % (vr(VF + 4 * t + 2 * hf, 2), VA + t, 4096 * hf))
A("s_waitcnt lgkmcnt(0)")
LB("Lv_have")
if TOT:
    A("s_memrealtime s[42:43]"); A("s_waitcnt lgkmcnt(0)"); A("s_mov_b32 s97, s42")
MP("pv")
if MEAS and OPT["q"] in ("tg", "s1"): A("s_mov_b32 s97, s98")
A("s_cmp_lg_u32 s%d, 0" % sLAY)
LB("Lv_go")
OA = W + 8
mfma(W + 16, ONES, PM, None)
for p in range(4):
    for T in range(2):
        mfma(OA + 4 * T, VF + 4 * (2 * p + T), PM + 4 * p, None if p == 0 else OA + 4 * T)
A("s_mov_b64 exec, %s" % sr(sMSK, 2))
A("v_mov_b32 v%d, v%d" % (vT + 3, W + 16))
A("ds_write_b64 v%d, %s" % (vMLW, vr(vT + 2, 2)))
A("s_mov_b64 exec, -1")
NOP(3)
A("ds_write_b128 v%d, %s" % (vRBW, vr(OA, 4)))
A("ds_write_b128 v%d, %s offset:64" % (vRBW, vr(OA + 4, 4)))
A("s_waitcnt lgkmcnt(0)")
A("s_cbranch_scc1 Lrb_bar")
lds_arrive(12, vT + 4)
if WOP == 2: wo_issue()
lds_spin(12, 4, vT + 4)
A("s_branch Lrb_go")
LB("Lrb_bar")
A("s_barrier")
LB("Lrb_go")
A("ds_read_b128 %s, v%d" % (vr(W, 4), vMLR))
A("ds_read_b128 %s, v%d offset:16" % (vr(W + 4, 4), vMLR))
for w in range(4):
    A("ds_read_b64 %s, v%d offset:%d" % (vr(W + 8 + 2 * w, 2), vRBR, RBS * w))
A("v_mov_b32 v%d, 0" % (vT + 4))
fastcmp()
A("s_waitcnt lgkmcnt(4)")
A("v_max3_f32 v%d, v%d, v%d, v%d" % (vT, W, W + 2, W + 4))
A("v_max_f32 v%d, v%d, v%d" % (vT, vT, W + 6))
for w in range(4): A("v_sub_f32 v%d, v%d, v%d" % (W + 2 * w, W + 2 * w, vT))
for w in range(4): A("v_exp_f32 v%d, v%d" % (W + 2 * w, W + 2 * w))
A("v_mul_f32 v%d, v%d, v%d" % (vT + 1, W, W + 1))
for w in range(1, 4): A("v_fmac_f32 v%d, v%d, v%d" % (vT + 1, W + 2 * w, W + 2 * w + 1))
A("s_waitcnt lgkmcnt(0)")
A("v_pk_mul_f32 %s, %s, %s op_sel_hi:[1,0]" % (vr(W + 8, 2), vr(W + 8, 2), vr(W, 2)))
A("v_rcp_f32 v%d, v%d" % (vT + 2, vT + 1))
A("v_pk_fma_f32 %s, %s, %s, %s op_sel_hi:[1,0,1]" % (vr(W + 8, 2), vr(W + 10, 2), vr(W + 2, 2), vr(W + 8, 2)))
A("v_log_f32 v%d, v%d" % (vT + 5, vT + 1))
for w in range(2, 4):
    A("v_pk_fma_f32 %s, %s, %s, %s op_sel_hi:[1,0,1]" % (vr(W + 8, 2), vr(W + 8 + 2 * w, 2), vr(W + 2 * w, 2), vr(W + 8, 2)))
A("v_pk_mul_f32 %s, %s, %s op_sel_hi:[1,0]" % (vr(W + 8, 2), vr(W + 8, 2), vr(vT + 2, 2)))
A("v_add_f32 v%d, v%d, v%d" % (vT + 5, vT + 5, vT))
A("v_cvt_pk_bf16_f32 v%d, v%d, v%d" % (W + 8, W + 8, W + 9))
store_local("buffer_store_dword", "v%d" % (W + 8), vOST, sOS)
A("s_mov_b64 exec, 1")
store_local("buffer_store_dword", "v%d" % (vT + 5), vT + 4, sLS)
A("s_mov_b64 exec, -1")
STAMP(5)

C("wo phase: wave = batch, rows = key splits")
OF = W; LS = W + 32; DA = WQF
assert LSE_OFF[1] - O_OFF[1] == LSE_OFF[0] - O_OFF[0]
def io(k):
    for t in range(4):
        A("buffer_load_dwordx4 %s, v%d, %s, s%d offen offset:%d sc1" % (vr(OF + 16 * k + 4 * t, 4), [vLSE, vLS2, vOLD, vOLD][t], sr(sWS, 4), sOL, 512 * t))
A("s_cmp_lg_u32 s%d, 0" % sLAY)
A("s_cbranch_scc1 Lo_go")
C("first layer: wo tile landed -> fragments; every workgroup has announced its clears")
if WOP == 3: wo_issue()
A("s_waitcnt vmcnt(%d)" % (2 if WOP < 3 else 0))
STAMP(13)
A("s_mov_b32 s%d, %s" % (sT4, hx(SPIN)))
LB("Lap")
A("v_and_b32 v24, -8, v%d" % (FLG + 1))
A("v_cmp_ne_u32 vcc, s%d, v%d" % (sTG1, FLG))
A("v_cmp_ne_u32 %s, s%d, v24" % (sr(sH, 2), sTG2))
A("s_or_b64 vcc, vcc, %s" % sr(sH, 2))
A("s_cbranch_vccnz Lar")
LB("Lad")
lds_arrive(16, 24)
for i in range(2):
    A("v_lshlrev_b32 v%d, 16, v%d" % (W + 40 + 2 * i, RES + 2 + i))
    A("v_and_b32 v%d, 0xffff0000, v%d" % (W + 41 + 2 * i, RES + 2 + i))
for i in range(4): A("v_mov_b32 v%d, v%d" % (RES + i, W + 40 + i))
for ct in range(4): A("v_xor_b32 v%d, %d, v%d" % (W + 40 + ct, 32 * ct, vWT))
for ct in range(4): A("v_add_u32 v%d, %d, v%d" % (W + 40 + ct, L_WO, W + 40 + ct))
lds_spin(16, 4, 24)
STAMP(14)
A("s_mov_b32 s%d, 1" % sY)
LB("Lo_go")
A("s_mov_b32 s%d, 0x55555555" % sT4)
A("s_mov_b32 s%d, 0x55555555" % sT5)
def pre_o():
    A("s_cmp_eq_u32 s%d, 0" % sY)
    A("s_cbranch_scc1 Lo_nof")
    A("s_mov_b32 s%d, 0" % sY)
    for t in range(4):
        for ct in range(4):
            for hf in range(2):
                A("ds_read_b64_tr_b16 %s, v%d offset:%d" % (vr(WOF + 16 * ct + 4 * t + 2 * hf, 2), W + 40 + ct, 4096 * t + 512 * hf))
    LB("Lo_nof")
ool.append(["Lar:", "    s_lshl_b32 s%d, s%d, 10" % (sT5, sW), "    s_add_u32 s%d, s%d, %s" % (sT5, sT5, hx(FB)),
            "    buffer_load_dwordx4 %s, v%d, %s, s%d offen sc1" % (vr(FLG, 4), vL16, sr(sWS, 4), sT5),
            "    s_waitcnt vmcnt(0)", "    s_sub_u32 s%d, s%d, 1" % (sT4, sT4), "    s_cbranch_scc0 Lap", "    s_branch Lad"])
C("softmax over the 8 key splits: lanes n>=8 hold own lse in OF[0:3], the other four in OF[4:7]")
vU = vT + 2
def wo_all(k, t):
    o = OF + 16 * k
    m = [mf(DA + 4 * ct, o + 4 * t, WOF + 16 * ct + 4 * t, None if t == 0 else DA + 4 * ct) for ct in range(4)]
    va = ["v_max3_f32 v%d, v%d, v%d, v%d" % (vU, o, o + 1, o + 2), "v_max3_f32 v%d, v%d, v%d, v%d" % (vU + 1, o + 3, o + 4, o + 5),
          "v_max3_f32 v%d, v%d, v%d, v%d" % (vU, vU, o + 6, o + 7), "v_max_f32 v%d, v%d, v%d" % (vU, vU, vU + 1)]
    va += ["v_sub_f32 v%d, v%d, v%d" % (LS + i, o + i, vU) for i in range(4)]
    va += ["v_exp_f32 v%d, v%d" % (LS + i, LS + i) for i in range(4)]
    vb = ["v_mov_b32_dpp v%d, v%d row_ror:8 row_mask:0xf bank_mask:0x3" % (LS + i, LS + i) for i in range(4)]
    vb += ["v_add_f32 v%d, v%d, v%d" % (vU, LS, LS + 1), "v_add_f32 v%d, v%d, v%d" % (vU + 1, LS + 2, LS + 3),
           "v_add_f32 v%d, v%d, v%d" % (vU, vU, vU + 1), "v_mov_b32 v%d, v%d" % (vU + 1, vU)]
    f = {0: [], 1: va[:4], 2: va[4:], 3: vb}[t]
    out = ["s_waitcnt lgkmcnt(%d)" % [15, 15, 8, 0][t]] if t != 1 else []
    for x in m:
        out.append(x)
        for _ in range(2):
            if f: out.append(f.pop(0))
    return out
assert PROG and OGAP < 0
ppoll(io, lambda k: range(OF + 16 * k, OF + 16 * k + 16), 4, vT, None, pre=OPRE, gap=OGAP, mid=pre_o, tag=1, per_load=wo_all)
STAMP(7)
A("v_permlane16_swap_b32 v%d, v%d" % (vU, vU + 1))
A("v_mul_f32 v%d, v%d, v%d" % (DA, DA, LS))
A("v_add_f32 v%d, v%d, v%d" % (vT, vU, vU + 1))
A("v_mul_f32 v%d, v%d, v%d" % (DA + 4, DA + 4, LS))
A("v_rcp_f32 v%d, v%d" % (vT, vT))
A("v_mul_f32 v%d, v%d, v%d" % (DA + 8, DA + 8, LS))
for i in range(1, 4):
    for ct in range(3):
        A("v_fmac_f32 v%d, v%d, v%d" % (DA + 4 * ct, DA + 4 * ct + i, LS + i))
    if i == 1: A("v_mul_f32 v%d, v%d, v%d" % (DA + 12, DA + 12, LS))
for i in range(1, 4): A("v_fmac_f32 v%d, v%d, v%d" % (DA + 12, DA + 12 + i, LS + i))
A("v_permlane16_swap_b32 v%d, v%d" % (DA, DA + 4))
A("s_nop 0")
A("v_permlane16_swap_b32 v%d, v%d" % (DA + 8, DA + 12))
A("v_add_f32 v%d, v%d, v%d" % (DA, DA, DA + 4))
A("v_add_f32 v%d, v%d, v%d" % (DA + 8, DA + 8, DA + 12))
A("s_nop 1")
A("v_permlane32_swap_b32 v%d, v%d" % (DA, DA + 8))
A("v_mul_f32 v%d, v%d, v%d" % (DA, DA, vT))
A("s_cmp_lg_u32 s%d, 0" % sLAY)
A("s_nop 0")
A("v_mov_b32_dpp v%d, v%d quad_perm:[1,0,3,2] row_mask:0xf bank_mask:0xf" % (DA + 1, DA))
A("s_mov_b64 exec, %s" % sr(sT4, 2))
A("v_cvt_pk_bf16_f32 v%d, v%d, v%d" % (DA, DA, DA + 1))
A("buffer_store_dword v%d, v%d, %s, s%d offen sc1" % (DA, vPST, sr(sWS, 4), sPS))
A("s_mov_b64 exec, -1")
STAMP(8)
A("s_cbranch_scc1 Lfinal")
MP("p0")

if PRET:
    C("same for the remaining lines of the group's mailboxes")
    soff(sT1, [(sM, 11), (sW, 9), (sJ, 17)], CLRB_OFF)
    A("v_lshlrev_b32 v21, 7, v%d" % vLANE)
    A("s_mov_b64 exec, 15")
    A("buffer_load_dword v%d, v21, %s, s%d offen sc1" % (W + 47, sr(sWS, 4), sT1))
    A("s_mov_b64 exec, -1")
A("s_cmp_lg_u32 s%d, 0" % sW)
A("s_cbranch_scc1 Ltab")
C("stage 1 (wave 0): reduce 32 head partials of 64 outputs, add residual, publish x1 slice")
soff(sT1, [(sA, 15), (sC, 12)], PB)
soff(sT2, [(sA, 10), (sC, 7), (sJ, 17)], X1_OFF)
A("s_mov_b32 s%d, 0x00ff00ff" % sT4)
A("s_mov_b32 s%d, 0" % sT5)
def ip(k):
    for i in range(4):
        A("buffer_load_dwordx4 %s, v%d, %s, s%d offen offset:%d sc1" % (vr(W + 20 * k + 4 * i, 4), vL16, sr(sWS, 4), sT1, 1024 * i))
if GW: A("s_waitcnt vmcnt(0)")
ppoll(ip, lambda k: range(W + 20 * k, W + 20 * k + 16), 4, vT, lambda k: [mf(W + 16, SEL, W + 20 * k + 4 * i, None if i == 0 else W + 16) for i in range(4)], pre=GPRE, gap=GGAP, tag=2,
      per_load=lambda k, i: [mf(W + 16, SEL, W + 20 * k + 4 * i, None if i == 0 else W + 16)])
STAMP(9)
MP("s1")
fastcmp()
NOP(3)
for i in range(4):
    A("v_add_f32_dpp v%d, v%d, v%d row_ror:8 row_mask:0xf bank_mask:0xf" % (W + 16 + i, W + 16 + i, W + 16 + i))
A("s_mov_b64 exec, %s" % sr(sT4, 2))
A("v_pk_add_f32 %s, %s, %s" % (vr(W + 16, 2), vr(W + 16, 2), vr(RES, 2)))
A("v_pk_add_f32 %s, %s, %s" % (vr(W + 18, 2), vr(W + 18, 2), vr(RES + 2, 2)))
A("v_cvt_pk_bf16_f32 v%d, v%d, v%d" % (W + 16, W + 16, W + 17))
A("v_cvt_pk_bf16_f32 v%d, v%d, v%d" % (W + 17, W + 18, W + 19))
store_local("buffer_store_dwordx2", vr(W + 16, 2), vX1S, sT2)
A("s_mov_b64 exec, -1")
LB("Ltabdone")
soff(sT3, [(sW, 10), (sJ, 17)], X1_OFF)
def ix(k):
    A("buffer_load_dwordx4 %s, v%d, %s, s%d offen sc1" % (vr([XR, RES][k], 4), vL16, sr(sWS, 4), sT3))
wqf_reads()
ppoll(ix, lambda k: range([XR, RES][k], [XR, RES][k] + 4), 1, vT, lambda k: ["s_waitcnt lgkmcnt(0)", "v_readfirstlane_b32 s%d, v%d" % (sT1, vT + 2)],
      pre=XPRE, gap=XGAP, mid=lambda: A("ds_read_b32 v%d, v%d offset:20" % (vT + 2, vFL)), tag=3,
      fix=["v_mov_b32 v%d, v%d" % (XR + i, RES + i) for i in range(4)])
A("s_cmp_lt_u32 s%d, 3" % sT1)
A("s_cbranch_scc1 Ltw")
LB("Ltwd")
STAMP(10)

LB("Lmix")
C("x <- x + g(LN(LN(x))) ; g is tabulated for every bf16 input in range, evaluated directly otherwise")
X = W; HB = W + 8; RT = W + 12; AD = W + 16; Y = W + 24
row_stats(XR, vT, X)
A("v_add_f32 v%d, %s, v%d" % (vT + 2, EPS, vT + 1))
A("v_rsq_f32 v%d, v%d" % (vT + 2, vT + 2))
A("v_mov_b32 v%d, %s" % (vT + 4, hx(LO2 | (LO2 << 16))))
A("s_movk_i32 s%d, %d" % (sT5, NENT * 4))
A("v_mul_f32 v%d, v%d, v%d" % (vT + 1, vT + 1, vT + 2))
A("v_fmaak_f32 v%d, v%d, v%d, %s" % (vT + 1, vT + 1, vT + 2, EPS))
A("v_rsq_f32 v%d, v%d" % (vT + 1, vT + 1))
A("s_nop 0")
A("v_mul_f32 v%d, v%d, v%d" % (vT + 2, vT + 2, vT + 1))
A("v_mul_f32 v%d, v%d, v%d" % (vT + 3, vT, vT + 2))
for i in range(4):
    A("v_pk_fma_f32 %s, %s, %s, %s op_sel:[0,0,1] op_sel_hi:[1,0,1] neg_lo:[0,0,1] neg_hi:[0,0,1]" % (vr(AD + 2 * i, 2), vr(X + 2 * i, 2), vr(vT + 2, 2), vr(vT + 2, 2)))
for i in range(4):
    A("v_cvt_pk_bf16_f32 v%d, v%d, v%d" % (HB + i, AD + 2 * i, AD + 2 * i + 1))
for i in range(4):
    A("v_pk_lshlrev_b16 v%d, 1, v%d op_sel_hi:[0,1]" % (RT + i, HB + i))
    A("v_pk_lshrrev_b16 v%d, 15, v%d op_sel_hi:[0,1]" % (AD + i, HB + i))
for i in range(4):
    A("v_or_b32 v%d, v%d, v%d" % (RT + i, RT + i, AD + i))
for i in range(4):
    A("v_pk_sub_u16 v%d, v%d, v%d" % (RT + i, RT + i, vT + 4))
for i in range(4):
    A("v_lshlrev_b32_sdwa v%d, 2, v%d dst_sel:DWORD dst_unused:UNUSED_PAD src0_sel:DWORD src1_sel:WORD_0" % (AD + 2 * i, RT + i))
    A("v_lshlrev_b32_sdwa v%d, 2, v%d dst_sel:DWORD dst_unused:UNUSED_PAD src0_sel:DWORD src1_sel:WORD_1" % (AD + 2 * i + 1, RT + i))
    A("ds_read_b32 v%d, v%d offset:%d" % (Y + 2 * i, AD + 2 * i, L_TAB))
    A("ds_read_b32 v%d, v%d offset:%d" % (Y + 2 * i + 1, AD + 2 * i + 1, L_TAB))
A("v_max3_u32 v%d, v%d, v%d, v%d" % (vT, AD, AD + 1, AD + 2))
A("v_max3_u32 v%d, v%d, v%d, v%d" % (vT + 1, AD + 3, AD + 4, AD + 5))
A("v_max3_u32 v%d, v%d, v%d, v%d" % (vT, vT, AD + 6, AD + 7))
A("v_max_u32 v%d, v%d, v%d" % (vT, vT, vT + 1))
A("v_cmp_le_u32 %s, s%d, v%d" % (sr(sH, 2), sT5, vT))
A("s_waitcnt lgkmcnt(5)")
A("v_max3_u32 v%d, v%d, v%d, v%d" % (vT, Y, Y + 1, Y + 2))
A("s_waitcnt lgkmcnt(2)")
A("v_max3_u32 v%d, v%d, v%d, v%d" % (vT + 1, Y + 3, Y + 4, Y + 5))
A("s_waitcnt lgkmcnt(0)")
A("v_max3_u32 v%d, v%d, v%d, v%d" % (vT, vT, Y + 6, Y + 7))
A("v_max_u32 v%d, v%d, v%d" % (vT, vT, vT + 1))
A("v_cmp_eq_u32 vcc, -1, v%d" % vT)
LB("Lslowdone")
for i in range(4):
    A("v_pk_add_f32 %s, %s, %s" % (vr(vT + 2 + 2 * i, 2), vr(X + 2 * i, 2), vr(Y + 2 * i, 2)))
A("s_or_b64 vcc, vcc, %s" % sr(sH, 2))
A("s_cbranch_vccnz Lslow")
A("s_cmp_lg_u32 s%d, 0" % sLAY)
for i in range(4):
    A("v_cvt_pk_bf16_f32 v%d, v%d, v%d" % (XR + i, vT + 2 + 2 * i, vT + 3 + 2 * i))
STAMP(11)
A("s_cbranch_scc1 Lout")
A("s_mov_b32 s%d, 1" % sLAY)
if TOT or MEAS: A("s_memrealtime s[100:101]")
if DIAG: A("v_mov_b32 v28, v30")
A("s_branch Llnq")

L.append(".p2align 6"); LB("Lst_fin"); A("s_setpc_b64 %s" % sr(sRET, 2)); stubs.append("fin")
LB("Lfinal")
A("s_cmp_ge_u32 s2, 4")
A("s_cbranch_scc1 Lepoch")
C("workgroup b: reduce the 32 head partials of row b, add x2, mixer, store")
soff(sT1, [(2, 15), (sW, 13)], PB + P_L)
A("s_add_u32 s%d, s%d, 4096" % (sT2, sT1))
A("s_mul_i32 s%d, s2, %d" % (sT0, XS))
A("s_lshl_b32 s%d, s%d, 8" % (sT3, sW))
A("s_add_u32 s%d, s%d, s%d" % (sT0, sT0, sT3))
A("s_add_u32 s%d, s%d, %d" % (sT0, sT0, L_X2))
A("v_add_u32 v%d, s%d, v%d" % (vT + 4, sT0, vX1S))
A("s_add_u32 s%d, s%d, %d" % (sT3, sT3, L_XN))
A("v_add_u32 v%d, s%d, v%d" % (vT + 5, sT3, vX1S))
A("ds_read_b64 %s, v%d" % (vr(PM, 2), vT + 4))
A("ds_read_b64 %s, v%d offset:128" % (vr(PM + 2, 2), vT + 4))
A("s_mov_b32 s%d, 0x00ff00ff" % sT4)
A("s_mov_b32 s%d, 0" % sT5)
if XENT:
    A("s_cmp_lg_u32 s%d, 3" % sW)
    A("s_cbranch_scc1 Lfn3")
    A("ds_read_b32 v%d, v%d offset:48" % (vT, vFL))
    A("s_waitcnt lgkmcnt(0)")
    A("v_readfirstlane_b32 s%d, v%d" % (sT0, vT))
    A("s_cmp_eq_u32 s%d, 0" % sT0)
    A("s_cbranch_scc1 Lfn3")
    A("s_mov_b32 s%d, %s" % (sCNT, hx(TB)))
    for i in range(XENT * 4 // 1024):
        A("buffer_load_dwordx4 %s, v%d, %s, s%d offen offset:%d sc1" % (vr(W + 4 * i, 4), vL16, sr(sWS, 4), sCNT, 1024 * i))
    A("v_add_u32 v%d, %d, v%d" % (vT + 6, L_TAB, vL16))
    A("s_waitcnt vmcnt(0)")
    for i in range(XENT * 4 // 1024):
        A("ds_write_b128 v%d, %s offset:%d" % (vT + 6, vr(W + 4 * i, 4), 1024 * i))
    LB("Lfn3")
A("s_waitcnt lgkmcnt(0)")
if GW: A("s_waitcnt vmcnt(0)")
for i in range(4):
    A("v_lshlrev_b32 v%d, 16, v%d" % (PM + 4 + 2 * i, PM + i))
    A("v_and_b32 v%d, 0xffff0000, v%d" % (PM + 5 + 2 * i, PM + i))
if "bias" in OPT:
    for i in range(8): A("v_add_f32 v%d, %s, v%d" % (PM + 4 + i, hx(f2u(float(OPT["bias"]))), PM + 4 + i))
FS = [KF, VF]
def ifin(k):
    for i in range(8):
        A("buffer_load_dwordx4 %s, v%d, %s, s%d offen offset:%d sc1" % (vr(FS[k] + 4 * i, 4), vL16, sr(sWS, 4), sT1 if i < 4 else sT2, 1024 * (i & 3)))
def fs(k):
    o = []
    for i in range(4):
        o.append(mf(W + 32, SEL, FS[k] + 4 * i, None if i == 0 else W + 32))
        o.append(mf(W + 36, SEL, FS[k] + 16 + 4 * i, None if i == 0 else W + 36))
    return o
ppoll(ifin, lambda k: range(FS[k], FS[k] + 32), 8, vT, fs, pre=GPRE, gap=GGAP, tag=2,
      per_load=lambda k, i: [mf(W + 32 + 4 * (i >> 2), SEL, FS[k] + 4 * i, None if (i & 3) == 0 else W + 32 + 4 * (i >> 2))])
STAMP(9)
NOP(2)
for i in range(8):
    A("v_add_f32_dpp v%d, v%d, v%d row_ror:8 row_mask:0xf bank_mask:0xf" % (W + 32 + i, W + 32 + i, W + 32 + i))
A("s_mov_b64 exec, %s" % sr(sT4, 2))
for i in range(4):
    A("v_pk_add_f32 %s, %s, %s" % (vr(W + 32 + 2 * i, 2), vr(W + 32 + 2 * i, 2), vr(PM + 4 + 2 * i, 2)))
for i in range(4):
    A("v_cvt_pk_bf16_f32 v%d, v%d, v%d" % (W + 32 + i, W + 32 + 2 * i, W + 33 + 2 * i))
A("ds_write_b64 v%d, %s" % (vT + 5, vr(W + 32, 2)))
A("ds_write_b64 v%d, %s offset:128" % (vT + 5, vr(W + 34, 2)))
A("s_mov_b64 exec, -1")
A("s_cmp_lg_u32 s%d, 0" % sW)
A("s_waitcnt lgkmcnt(0)")
A("s_barrier")
A("s_cbranch_scc1 Lfin_exit")
A("ds_read_b128 %s, v%d" % (vr(XR, 4), vXNW))
A("s_waitcnt lgkmcnt(0)")
STAMP(10)
A("s_branch Lmix")
L.append(".p2align 6"); LB("Lst_out"); A("s_setpc_b64 %s" % sr(sRET, 2)); stubs.append("out")
LB("Lout")
A("s_lshl_b32 s%d, s2, 10" % sT0)
A("buffer_store_dwordx4 %s, v%d, %s, s%d offen" % (vr(XR, 4), vL16, sr(sOUT, 4), sT0))
if DBL:
    A("s_cmp_lg_u32 s2, 0")
    A("s_cbranch_scc1 Lfin_exit")
if DBL:
    A("s_waitcnt vmcnt(0)")
    A("s_memrealtime s[10:11]")
    A("s_waitcnt lgkmcnt(0)")
    A("s_sub_u32 s12, s10, s98")
    if "pad" in OPT:
        A("s_mov_b32 s10, s98"); A("s_mov_b32 s12, %d" % (100 * int(OPT["pad"])))
    LB("Ldbl")
    A("s_memrealtime s[14:15]")
    A("s_waitcnt lgkmcnt(0)")
    A("s_sub_u32 s13, s14, s10")
    A("s_cmp_lt_u32 s13, s12")
    A("s_cbranch_scc1 Ldbl")
LB("Lfin_exit")
if MEAS:
    src = {"mix": "s100", "entry": "s98"}.get(OPT["q"], "s98" if OPT["q"][0] == "h" else "s97")
    A("s_waitcnt vmcnt(0) lgkmcnt(0)")
    A("s_mov_b64 exec, 1")
    A("v_mov_b32 v16, %s" % src)
    A("s_not_b32 s10, s98")
    A("v_mov_b32 v17, s10")
    A("global_atomic_umax v[30:31], v16, off sc1")
    A("global_atomic_umax v[30:31], v17, off offset:128 sc1")
    A("s_or_b32 s10, s2, s%d" % sW)
    A("s_cmp_lg_u32 s10, 0")
    A("s_cbranch_scc1 Lend")
    LB("Lms1")
    A("s_memrealtime s[14:15]"); A("s_waitcnt lgkmcnt(0)"); A("s_sub_u32 s13, s14, s98"); A("s_cmp_lt_u32 s13, 4000"); A("s_cbranch_scc1 Lms1")
    A("global_load_dword v16, v[30:31], off sc1")
    A("global_load_dword v17, v[30:31], off offset:128 sc1")
    A("s_waitcnt vmcnt(0)")
    A("v_readfirstlane_b32 s10, v16"); A("v_readfirstlane_b32 s11, v17")
    A("s_not_b32 s11, s11"); A("s_sub_u32 s10, s10, s11"); A("s_lshl_b32 s10, s10, 2"); A("s_add_u32 s12, s10, 4200")
    A("s_min_u32 s12, s12, 20000")
    LB("Lms2")
    A("s_memrealtime s[14:15]"); A("s_waitcnt lgkmcnt(0)"); A("s_sub_u32 s13, s14, s98"); A("s_cmp_lt_u32 s13, s12"); A("s_cbranch_scc1 Lms2")
if TOT:
    A("s_waitcnt vmcnt(0)")
    A("s_memrealtime s[10:11]")
    A("s_waitcnt lgkmcnt(0)")
    A("v_mov_b32 v16, s98")
    A("v_mov_b32 v17, s10")
    A("v_mov_b32 v18, s100")
    A("v_mov_b32 v19, s97")
    soff(sT2, [(2, 6), (sW, 4)], STB)
    A("v_mov_b32 v20, 0")
    A("s_mov_b64 exec, 1")
    A("buffer_store_dwordx4 v[16:19], v20, %s, s%d offen" % (sr(sWS, 4), sT2))
if DIAG:
    A("s_waitcnt vmcnt(0)")
    STAMP(12)
    if DIAG == 2:
        A("s_or_b32 s%d, s2, s%d" % (sT0, sW))
        A("s_cmp_lg_u32 s%d, 0" % sT0)
        A("s_cbranch_scc1 Lend")
        A("v_readlane_b32 s%d, v28, 0" % sT2)
        for k, (r, i) in enumerate([(31, 10), (31, 12), (28, 1), (28, 2), (28, 6), (28, 5), (28, 7), (28, 8), (28, 9), (28, 10), (28, 11), (30, 3), (30, 5), (30, 8), (30, 9), (30, 12)]):
            A("v_readlane_b32 s%d, v%d, %d" % (sT3, r, i))
            A("s_sub_u32 s%d, s%d, s%d" % (sT3, sT3, sT2))
            A("s_nop 0")
            A("v_writelane_b32 v17, s%d, %d" % (sT3, k))
        A("v_lshlrev_b32 v16, 2, v%d" % vLANE)
        A("s_mov_b64 exec, 0xffff")
        A("global_store_dword v16, v17, s[100:101]")
        A("s_endpgm")
    soff(sT1, [(2, 10), (sW, 7)], STB)
    A("v_lshlrev_b32 v16, 2, v%d" % vLANE)
    A("s_mov_b64 exec, 0xffff")
    A("buffer_store_dword v28, v16, %s, s%d offen" % (sr(sWS, 4), sT1))
    A("buffer_store_dword v30, v16, %s, s%d offen offset:64" % (sr(sWS, 4), sT1))
    A("s_add_u32 s%d, s%d, 0x40000" % (sT1, sT1))
    A("buffer_store_dword v31, v16, %s, s%d offen" % (sr(sWS, 4), sT1))
LB("Lend")
A("s_endpgm")
LB("Lepoch")
if int(OPT.get("wb", 0)):
    A("s_cmp_lg_u32 s%d, 0" % sW)
    A("s_cbranch_scc1 Lnowb")
    A("s_waitcnt vmcnt(0)")
    A("buffer_wbl2 sc1")
    LB("Lnowb")
C("every workgroup has used the old launch tag long ago: workgroup 4 advances it")
A("s_lshl_b32 s%d, s%d, 8" % (sT0, sW))
A("s_add_u32 s%d, s%d, s2" % (sT0, sT0))
A("s_cmp_lg_u32 s%d, 4" % sT0)
A("s_cbranch_scc1 Lfin_exit")
A("v_mov_b32 v16, s%d" % sTG1)
A("v_mov_b32 v17, %s" % hx(EPO))
A("s_mov_b64 exec, 1")
A("buffer_store_dword v16, v17, %s, 0 offen sc1" % sr(sWS, 4))
A("s_mov_b64 exec, -1")
A("s_branch Lfin_exit")

L.append(".p2align 6"); LB("Lst_tab"); A("s_setpc_b64 %s" % sr(sRET, 2)); stubs.append("tab")
LB("Ltab")
C("waves 2,3: gather the main part of the g(h) table into LDS ; wave 1: the lowest octaves, best effort")
NTL = NOCT * 1024 // 2 // 1024
A("s_cmp_eq_u32 s%d, 1" % sW)
A("s_cbranch_scc1 Lext")
A("s_sub_u32 s%d, s%d, 2" % (sT1, sW))
A("s_mul_i32 s%d, s%d, %d" % (sT1, sT1, NTL * 1024))
A("s_add_u32 s%d, s%d, %d" % (sT1, sT1, XENT * 4))
A("v_add_u32 v%d, s%d, v%d" % (vT + 4, sT1, vL16))
A("v_add_u32 v%d, %d, v%d" % (vT + 4, L_TAB, vT + 4))
A("s_add_u32 s%d, s%d, %s" % (sT1, sT1, hx(TB)))
A("s_add_u32 s%d, s%d, 4096" % (sT2, sT1))
def it():
    for i in range(NTL):
        A("buffer_load_dwordx4 %s, v%d, %s, s%d offen offset:%d sc1" % (vr(W + 4 * i, 4), vL16, sr(sWS, 4), sT1 if i < 4 else sT2, 1024 * (i & 3)))
poll(it, range(W, W + 4 * NTL), vT, back="s_sleep %d" % int(OPT.get("tsl", 16)))
for i in range(NTL):
    A("ds_write_b128 v%d, %s offset:%d" % (vT + 4, vr(W + 4 * i, 4), 1024 * i))
A("s_waitcnt lgkmcnt(0)")
lds_arrive(20, vT + 4)
STAMP(9)
MP("tg")
A("s_branch Ltabdone")
def ext_load(d):
    for i in range(XENT * 4 // 1024):
        A("buffer_load_dwordx4 %s, v%d, %s, s%d offen offset:%d sc1" % (vr(d + 4 * i, 4), vL16, sr(sWS, 4), sT4, 1024 * i))
def ext_write(d):
    for i in range(XENT * 4 // 1024):
        A("ds_write_b128 v%d, %s offset:%d" % (vT + 4, vr(d + 4 * i, 4), 1024 * i))
LB("Lext")
if XENT:
    A("s_mov_b32 s%d, %s" % (sT4, hx(TB)))
    A("v_add_u32 v%d, %d, v%d" % (vT + 4, L_TAB, vL16))
    for i in range(4): A("v_mov_b32 v%d, -1" % (W + i))
    for i in range(XENT * 4 // 1024):
        A("ds_write_b128 v%d, %s offset:%d" % (vT + 4, vr(W, 4), 1024 * i))
    A("ds_write_b32 v%d, v%d offset:48" % (vFL, W))
    A("s_waitcnt lgkmcnt(0)")
lds_arrive(20, vT + 5)
if XENT:
    C("one look at the lowest octaves, skipped when x1 is already there")
    soff(sT3, [(sW, 10), (sJ, 17)], X1_OFF)
    A("s_waitcnt vmcnt(0)")
    A("buffer_load_dwordx4 %s, v%d, %s, s%d offen sc1" % (vr(XR, 4), vL16, sr(sWS, 4), sT3))
    A("s_waitcnt vmcnt(0)")
    for x in maxtree(range(XR, XR + 4), vT): A(x)
    A("v_cmp_eq_u32 vcc, -1, v%d" % vT)
    A("s_cbranch_vccz Lexx")
    A("s_mov_b32 s%d, %d" % (sCNT, int(OPT.get("xlk", 2)) - 1))
    LB("Lexl")
    A("buffer_load_dwordx4 %s, v%d, %s, s%d offen sc1" % (vr(XR, 4), vL16, sr(sWS, 4), sT3))
    if "l" in OPT.get("xs", ""): A("s_branch Ltabdone")
    ext_load(W + 32)
    A("s_waitcnt vmcnt(4)")
    for x in maxtree(range(XR, XR + 4), vT): A(x)
    A("v_cmp_eq_u32 vcc, -1, v%d" % vT)
    A("s_cbranch_vccz Lexx")
    A("s_waitcnt vmcnt(0)")
    ext_write(W + 32)
    for x in maxtree(range(W + 32, W + 48), vT): A(x)
    A("v_cmp_eq_u32 vcc, -1, v%d" % vT)
    A("s_cbranch_vccz Lexc")
    A("s_sub_u32 s%d, s%d, 1" % (sCNT, sCNT))
    A("s_cbranch_scc0 Lexl")
    A("s_branch Ltabdone")
    LB("Lexc")
    A("v_mov_b32 v%d, 0" % vT)
    A("ds_write_b32 v%d, v%d offset:48" % (vFL, vT))
    A("s_branch Ltabdone")
    LB("Lexx")
    wqf_reads()
    A("s_branch Ltw")
else:
    A("s_branch Ltabdone")
LB("Ltw")
lds_spin(20, 3, vT + 2)
A("s_branch Ltwd")

for b in ool: L += b
ool = []
LB("Lslow")
C("rare: some h lies outside the table -> evaluate g(h) directly for those lanes")
RW1 = [W + 32 + i for i in range(14)]
RB1 = [PM + i for i in range(14)]
RW2 = [16 + i for i in range(10)] + [W + 46, W + 47, PM + 14, PM + 15]
A("v_lshlrev_b32 v26, 3, v%d" % vLANE)
A("s_load_dword s%d, %s, 0" % (sB2, sr(sB2P, 2)))
for (d4, d2, s) in [([W + 32, W + 36, W + 40], W + 44, sW1), ([PM, PM + 4, PM + 8], PM + 12, sB1)]:
    for k in range(3):
        A("buffer_load_dwordx4 %s, v%d, %s, 0 offen offset:%d" % (vr(d4[k], 4), vL16, sr(s, 4), 1024 * k))
    A("buffer_load_dwordx2 %s, v26, %s, 0 offen offset:3072" % (vr(d2, 2), sr(s, 4)))
A("buffer_load_dwordx4 v[16:19], v%d, %s, 0 offen" % (vL16, sr(sW2, 4)))
A("buffer_load_dwordx4 v[20:23], v%d, %s, 0 offen offset:1024" % (vL16, sr(sW2, 4)))
A("buffer_load_dwordx2 v[24:25], v%d, %s, 0 offen offset:2048" % (vL16, sr(sW2, 4)))
A("buffer_load_dwordx2 %s, v%d, %s, 0 offen offset:2056" % (vr(W + 46, 2), vL16, sr(sW2, 4)))
A("buffer_load_dwordx2 %s, v26, %s, 0 offen offset:3072" % (vr(PM + 14, 2), sr(sW2, 4)))
A("s_waitcnt vmcnt(0) lgkmcnt(0)")
A("s_lshl_b32 s%d, s%d, 16" % (sB2, sB2))
A("s_mov_b32 s%d, 1" % sT4)
for e in range(8):
    A("v_cmp_le_u32 vcc, %d, v%d" % (NENT * 4, AD + e))
    A("v_cmp_eq_u32 %s, -1, v%d" % (sr(sH2, 2), Y + e))
    A("s_or_b64 %s, %s, vcc" % (sr(sH2, 2), sr(sH2, 2)))
    if e & 1: A("v_and_b32 v%d, 0xffff0000, v%d" % (RT + 3, HB + (e >> 1)))
    else: A("v_lshlrev_b32 v%d, 16, v%d" % (RT + 3, HB + (e >> 1)))
    LB("Lse%d" % e)
    A("s_cmp_eq_u64 %s, 0" % sr(sH2, 2))
    A("s_cbranch_scc1 Lsf%d" % e)
    A("s_ff1_i32_b64 s%d, %s" % (sT0, sr(sH2, 2)))
    A("s_nop 0")
    A("v_readlane_b32 s%d, v%d, s%d" % (sH, RT + 3, sT0))
    A("s_cmp_eq_u32 s%d, s%d" % (sH, sT4))
    A("s_cbranch_scc1 Lsg%d" % e)
    A("s_mov_b32 s%d, s%d" % (sT4, sH))
    A("s_call_b64 %s, Lgev" % sr(sRET, 2))
    LB("Lsg%d" % e)
    A("s_nop 1")
    A("v_cmp_eq_u32 vcc, s%d, v%d" % (sH, RT + 3))
    A("v_mov_b32 v%d, s%d" % (RES + 3, sY))
    A("s_andn2_b64 %s, %s, vcc" % (sr(sH2, 2), sr(sH2, 2)))
    A("v_cndmask_b32 v%d, v%d, v%d, vcc" % (Y + e, Y + e, RES + 3))
    A("s_branch Lse%d" % e)
    LB("Lsf%d" % e)
for i in range(16): A("v_mov_b32 v%d, 0" % (PM + i))
A("s_mov_b64 vcc, 0")
A("s_mov_b64 %s, 0" % sr(sH, 2))
A("s_branch Lslowdone")
LB("Lgev")
a, u, t1, z = RES, RES + 1, RES + 2, RT
A("v_mov_b32 v%d, 0" % a)
A("v_mov_b32 v%d, %s" % (RT + 1, hx(f2u(K0))))
A("v_mov_b32 v%d, %s" % (RT + 2, hx(f2u(K1))))
for p in range(14):
    for hf in range(2):
        def un(d, s):
            if hf == 0: A("v_lshlrev_b32 v%d, 16, v%d" % (d, s))
            else: A("v_and_b32 v%d, 0xffff0000, v%d" % (d, s))
        un(u, RW1[p]); un(t1, RB1[p]); un(z, RW2[p])
        A("v_fma_f32 v%d, v%d, s%d, v%d" % (u, u, sH, t1))
        A("v_mul_f32 v%d, v%d, v%d" % (t1, u, u))
        A("v_fma_f32 v%d, v%d, v%d, v%d" % (t1, t1, RT + 2, RT + 1))
        A("v_mul_f32 v%d, v%d, v%d" % (t1, t1, u))
        A("v_exp_f32 v%d, v%d" % (t1, t1))
        A("v_mul_f32 v%d, v%d, v%d" % (z, z, u))
        A("v_add_f32 v%d, 1.0, v%d" % (t1, t1))
        A("v_rcp_f32 v%d, v%d" % (t1, t1))
        A("s_nop 0")
        A("v_fmac_f32 v%d, v%d, v%d" % (a, z, t1))
A("v_mov_b32 v%d, v%d" % (u, a))
A("s_nop 1")
wave_sum2(a, u, sY, sT1)
A("s_nop 1")
A("v_mov_b32 v%d, s%d" % (a, sY))
A("v_cvt_pk_bf16_f32 v%d, v%d, v%d" % (a, a, a))
A("v_and_b32 v%d, 0xffff0000, v%d" % (a, a))
A("v_add_f32 v%d, s%d, v%d" % (a, sB2, a))
A("v_cvt_pk_bf16_f32 v%d, v%d, v%d" % (a, a, a))
A("v_and_b32 v%d, 0xffff0000, v%d" % (a, a))
A("s_nop 0")
A("v_readfirstlane_b32 s%d, v%d" % (sY, a))
A("s_nop 3")
A("s_setpc_b64 %s" % sr(sRET, 2))

for b in ool: L += b
A("s_endpgm")
L.append(".p2align 8")
L.append(".fill %d, 4, 0xBF800000" % (64 if DIAG else 512))
L.append('''.section .rodata,"a"
.p2align 6
.amdhsa_kernel %s_kernel
  .amdhsa_next_free_vgpr 256
  .amdhsa_next_free_sgpr 102
  .amdhsa_accum_offset 256
  .amdhsa_group_segment_fixed_size 0
  .amdhsa_kernarg_size 104
  .amdhsa_user_sgpr_count 2
  .amdhsa_user_sgpr_kernarg_segment_ptr 1
  .amdhsa_system_sgpr_workgroup_id_x 1
.end_amdhsa_kernel''' % NAME)
open(OUTF, "w").write("\n".join(x for x in L if x is not None) + "\n")
print("wrote", OUTF, "lines", len(L), "LDS", LDS_SZ)
```

```python
import sys, struct, math

NAME = "interleave_layers__sliding_block_cached__mixer_token_mlp__decode"
OUTF = sys.argv[1] if len(sys.argv) > 1 else "cdna_kernels/%s.s" % NAME
DIAG = int(sys.argv[2]) if len(sys.argv) > 2 else 0
DBL = 0
if DIAG == 3: DIAG = 0; DBL = 1
MEAS = 0
if DIAG == 5: DIAG = 0; MEAS = 1
TOT = 0
if DIAG == 4: DIAG = 0; TOT = 1
OPT = dict(a.split("=") for a in sys.argv[3:])
DEPTH = int(OPT.get("depth", 8))
D0 = int(OPT.get("d0", 2))
D1 = int(OPT.get("d1", 4))
DC = int(OPT.get("dc", 3))
TAILI = int(OPT.get("taili", 11))
TAILD = int(OPT.get("taild", 8))
QV = int(OPT.get("qv", 3))
PRET = int(OPT.get("pret", 1))
GW = int(OPT.get("gw", 1))
GPRE = int(OPT.get("gpre", 0))
GGAP = int(OPT.get("ggap", -1))
WARM = int(OPT.get("warm", 1))
QPRE = int(OPT.get("qpre", -1)); QGAP = int(OPT.get("qgap", -1))
OPRE = int(OPT.get("opre", -1)); OGAP = int(OPT.get("ogap", -1))
XPRE = int(OPT.get("xpre", -1)); XGAP = int(OPT.get("xgap", -1))
FINE = OPT.get("fine", "")
QS = int(OPT.get("qs", 0))
ADP = int(OPT.get("adp", 0))
ROT = int(OPT.get("rot", 1)); VROT = int(OPT.get("vrot", 0))
WROT = int(OPT.get("wrot", 1))
WOP = int(OPT.get("wop", 0))
ECO = int(OPT.get("eco", 0))
XDL = int(OPT.get("xdl", 256))
QBD = int(OPT.get("qbd", 0))
VLATE = int(OPT.get("vlate", 1))
QV2 = int(OPT.get("qv2", 0))
PROG = int(OPT.get("prog", 1))
CMB = int(OPT.get("cmb", 0)); TGW = int(OPT.get("tgw", 0)); HPT = int(OPT.get("hpt", 0))
QT = int(OPT.get("qt", 0))
DRY = int(OPT.get("dry", 0))
HP = int(OPT.get("hp", 0))
NOCT = int(OPT.get("noct", 16))
QPOS = int(OPT.get("qpos", 1))
QPOS2 = int(OPT.get("qpos2", 7))

def f2u(x): return struct.unpack("<I", struct.pack("<f", x))[0]
def hx(x): return "0x%08x" % (x & 0xffffffff)

L = []
def A(s): L.append("    " + s)
def LB(s): L.append(s + ":")
def C(s): L.append("    ; " + s)
def vr(a, n): return "v[%d:%d]" % (a, a + n - 1)
def sr(a, n): return "s[%d:%d]" % (a, a + n - 1)
def NOP(n):
    while n > 0:
        k = min(n, 16); A("s_nop %d" % (k - 1)); n -= k

XOCT = int(OPT.get('xoct', 4))
ELO = int(OPT.get('elo', 130 - NOCT - XOCT))
LO2 = (ELO << 7) * 2
NENT = (NOCT + XOCT) * 256
XENT = XOCT * 256
assert XENT in (0, 1024)
EPW = NOCT * 256 // 256 // 4 // 2
GRS = 0x20000
O_OFF = [0x0000, 0xC400]; LSE_OFF = [0x8000, 0x14400]; Q1_OFF = 0x8400; X1_OFF = 0x14600
CLRA_PER = 1040
CLRB_OFF = 0x8400; CLRB_PER = 1680
Q0_OFF = 0x18000
EPO = 0x17f00
PB = 0x100000; P_L = 0x20000
TB = 0x140000; FB = 0x148000
QB_DELTA = 0x200000
STB = 0x300000
WS_SZ = 0x400000
L_WQ = 12288; L_K = L_WQ + 16384; L_V = L_K + 32768
L_WO = L_K + 16384
L_TAB = L_V
L_XN = L_V + 32768; XS = 1056
L_X2 = L_XN + 4 * XS
L_FLG = L_X2 + 4 * XS
L_RB = L_K; RBS = 2048 + 64; L_ML = L_K + 4 * RBS
L_QF = L_X2
LDS_SZ = int(OPT.get("lds", L_FLG + 128))
SPIN = 0x40000
K0 = -2.0 * math.sqrt(2.0 / math.pi) * math.log2(math.e)
K1 = K0 * 0.044715
EPS = hx(f2u(1e-5))

sTG1, sTG2 = 0, 1
sW, sJ, sA, sC, sGR, sLAY, sFAST = 3, 4, 5, 6, 7, 8, 9
sT0, sT1, sT2, sT3, sT4, sT5 = 10, 11, 12, 13, 14, 15
sCNT = 16
sQL, sQS, sOL, sOS, sLL, sLS, sPS = 17, 18, 19, 20, 21, 22, 23
sSC, sIT = 24, 25
sSUM, sSQ = 26, 27
sH, sH2, sRET, sMSK = 28, 30, 32, 34
sB2, sY, sXCC, sE = 36, 37, 38, 39
sB2P = 40
sK, sV, sWQ, sWO, sWS, sX, sOUT, sW1, sB1, sW2 = 44, 48, 52, 56, 60, 64, 68, 72, 76, 80
sKO, sKL, sVO, sVL = 84, 85, 86, 87
sPM = 88
sHC, sHT = 84, 85

def STAMP(i):
    if DIAG:
        A("s_memrealtime s[42:43]"); A("s_waitcnt lgkmcnt(0)")
        A("v_writelane_b32 v30, s42, %d" % i)

def MP(name):
    if MEAS and OPT["q"] == name:
        A("s_memrealtime s[42:43]"); A("s_waitcnt lgkmcnt(0)"); A("s_mov_b32 s97, s42")

def CST(i):
    if DIAG == 1 and FINE:
        A("s_memtime s[42:43]"); A("s_waitcnt lgkmcnt(0)")
        A("v_writelane_b32 v31, s42, %d" % i)

vLANE = 1
vL16, vQST, vOST, vOLD, vPST, vX1S, vXNW, vXNR, vRBW, vRBR, vMLW, vMLR, vLSE, vZ = range(2, 16)
vT = 16
vWT, vFL = 28, 29
vLS2 = 27
KF, VF, WQF, WOF, SEL, ONES = 32, 64, 96, 112, 176, 180
W = 184
PM = 232
XR = 248
RES = 252

def srd(s, nbytes):
    A("s_mov_b32 s%d, %s" % (s + 2, hx(nbytes))); A("s_mov_b32 s%d, 0x00020000" % (s + 3))

def soff(dst, terms, const):
    first = True
    for (src, sh) in terms:
        if first: A("s_lshl_b32 s%d, s%d, %d" % (dst, src, sh)); first = False
        else:
            A("s_lshl_b32 s%d, s%d, %d" % (sT0, src, sh)); A("s_add_u32 s%d, s%d, s%d" % (dst, dst, sT0))
    if const: A("s_add_u32 s%d, s%d, %s" % (dst, dst, hx(const)))

def wave_sum2(a, b, sa, sb):
    for ctl in ["row_ror:8", "row_ror:4", "row_ror:2", "row_ror:1"]:
        A("v_add_f32_dpp v%d, v%d, v%d %s row_mask:0xf bank_mask:0xf" % (a, a, a, ctl))
        A("v_add_f32_dpp v%d, v%d, v%d %s row_mask:0xf bank_mask:0xf" % (b, b, b, ctl))
        A("s_nop 0")
    for ctl in ["row_bcast:15 row_mask:0xa", "row_bcast:31 row_mask:0xc"]:
        A("v_add_f32_dpp v%d, v%d, v%d %s bank_mask:0xf" % (a, a, a, ctl))
        A("v_add_f32_dpp v%d, v%d, v%d %s bank_mask:0xf" % (b, b, b, ctl))
        A("s_nop 0")
    A("v_readlane_b32 s%d, v%d, 63" % (sa, a))
    A("v_readlane_b32 s%d, v%d, 63" % (sb, b))

def row_stats(x, t, unp):
    A("v_dot2_f32_bf16 v%d, v%d, v%d, 0" % (t, x, ONES))
    A("v_dot2_f32_bf16 v%d, v%d, v%d, 0" % (t + 1, x, x))
    for i in range(1, 4):
        A("v_dot2_f32_bf16 v%d, v%d, v%d, v%d" % (t, x + i, ONES, t))
        A("v_dot2_f32_bf16 v%d, v%d, v%d, v%d" % (t + 1, x + i, x + i, t + 1))
    un = []
    for i in range(4):
        un.append("v_lshlrev_b32 v%d, 16, v%d" % (unp + 2 * i, x + i))
        un.append("v_and_b32 v%d, 0xffff0000, v%d" % (unp + 2 * i + 1, x + i))
    for k in range(3): A(un.pop(0))
    a, b = t, t + 1
    for ctl in ["row_ror:8 row_mask:0xf", "row_ror:4 row_mask:0xf", "row_ror:2 row_mask:0xf", "row_ror:1 row_mask:0xf", "row_bcast:15 row_mask:0xa", "row_bcast:31 row_mask:0xc"]:
        A("v_add_f32_dpp v%d, v%d, v%d %s bank_mask:0xf" % (a, a, a, ctl))
        A("v_add_f32_dpp v%d, v%d, v%d %s bank_mask:0xf" % (b, b, b, ctl))
        A(un.pop(0) if un else "s_nop 0")
    A("v_readlane_b32 s%d, v%d, 63" % (sSUM, a))
    A("v_readlane_b32 s%d, v%d, 63" % (sSQ, b))
    A("s_nop 0")
    A("v_mul_f32 v%d, s%d, v%d" % (t, sSUM, vZ))
    A("v_mul_f32 v%d, s%d, v%d" % (t + 1, sSQ, vZ))
    A("v_fma_f32 v%d, -v%d, v%d, v%d" % (t + 1, t, t, t + 1))
    A("v_max_f32 v%d, 0, v%d" % (t + 1, t + 1))

ool = []
uid = [0]
def maxtree(regs, tmp):
    r = list(regs); out = []
    out.append("v_max3_u32 v%d, v%d, v%d, v%d" % (tmp, r[0], r[1], r[2])); r = r[3:]
    if len(r) >= 5:
        out.append("v_max3_u32 v%d, v%d, v%d, v%d" % (tmp + 1, r[0], r[1], r[2])); r = r[3:]
        d = 0
        while len(r) >= 2:
            out.append("v_max3_u32 v%d, v%d, v%d, v%d" % (tmp + d, tmp + d, r[0], r[1])); r = r[2:]; d ^= 1
        if r: out.append("v_max3_u32 v%d, v%d, v%d, v%d" % (tmp, tmp, tmp + 1, r[0]))
        else: out.append("v_max_u32 v%d, v%d, v%d" % (tmp, tmp, tmp + 1))
    else:
        while len(r) >= 2:
            out.append("v_max3_u32 v%d, v%d, v%d, v%d" % (tmp, tmp, r[0], r[1])); r = r[2:]
        if r: out.append("v_max_u32 v%d, v%d, v%d" % (tmp, tmp, r[0]))
    return out

def poll(issue, regs, tmp, pre_wait=None, spec=None, back="s_nop 7", tag=None, stub=None):
    uid[0] += 1; u = uid[0]
    A("s_mov_b32 s%d, %s" % (sCNT, hx(SPIN)))
    LB("Lp%d" % u)
    issue()
    if pre_wait: pre_wait()
    A("s_waitcnt vmcnt(0)")
    mt = maxtree(regs, tmp) + ["v_cmp_eq_u32 vcc, -1, v%d" % tmp]
    spec = list(spec or [])
    ns = len(spec)
    per = -(-len(mt) // ns) if ns else 0
    for s in spec:
        A(s)
        for k in range(per):
            if mt: A(mt.pop(0))
    for m in mt: A(m)
    A("s_cbranch_vccz Ld%d" % u)
    A("s_sub_u32 s%d, s%d, 1" % (sCNT, sCNT))
    if back != "s_nop 7": A(back)
    A("s_cbranch_scc0 Lp%d" % u)
    if stub: touch_stub(stub)
    LB("Ld%d" % u)
    if DIAG and tag is not None:
        A("s_lshl_b32 m0, s%d, 2" % sLAY); A("s_add_u32 m0, m0, %d" % tag); A("s_nop 0")
        A("v_writelane_b32 v31, s%d, m0" % sCNT)

stubs = []
def touch_stub(name, branch_over=None):
    A("s_branch Lsk_%s" % name)
    L.append(".p2align 6")
    LB("Lst_%s" % name)
    A("s_setpc_b64 %s" % sr(sRET, 2))
    LB("Lsk_%s" % name)
    stubs.append(name)

def delay(cyc):
    if cyc == -1:
        A("s_waitcnt vmcnt(0)"); return
    while cyc >= 64:
        k = min(cyc // 64, 15); A("s_sleep %d" % k); cyc -= 64 * k
    if cyc >= 8: A("s_nop %d" % min(15, cyc // 4 - 1))

def ppoll(issue, regs, n, tmp, spec, pre=0, gap=128, mid=None, tag=None, fix=None, stub=None, lanes=None, per_load=None):
    uid[0] += 1; u = uid[0]
    def look(k):
        if per_load and PROG and gap < 0:
            r = list(regs(k)); out = []
            for i in range(n):
                out.append("s_waitcnt vmcnt(%d)" % (n - 1 - i))
                sp = list(per_load(k, i))
                ck = ["v_max3_u32 v%d, v%d, v%d, v%d" % (tmp + 1, r[4 * i], r[4 * i + 1], r[4 * i + 2]),
                      ("v_max_u32 v%d, v%d, v%d" % (tmp, tmp + 1, r[4 * i + 3])) if i == 0 else ("v_max3_u32 v%d, v%d, v%d, v%d" % (tmp, tmp, tmp + 1, r[4 * i + 3]))]
                while sp or ck:
                    if sp: out.append(sp.pop(0))
                    if ck: out.append(ck.pop(0))
            return out + ["v_cmp_eq_u32 vcc, -1, v%d" % tmp]
        out = ["s_waitcnt vmcnt(%d)" % (n if k == 0 else 0)]
        mt = maxtree(regs(k), tmp) + ["v_cmp_eq_u32 vcc, -1, v%d" % tmp]
        sp = list(spec(k)); per = -(-len(mt) // len(sp)) if sp else 0
        for x in sp:
            out.append(x)
            for _ in range(per):
                if mt: out.append(mt.pop(0))
        return out + mt + (["s_and_b64 vcc, vcc, %s" % sr(lanes, 2)] if lanes else [])
    A("s_mov_b32 s%d, %s" % (sCNT, hx(SPIN)))
    delay(pre)
    fine = FINE and tag == int(FINE)
    if fine: CST(8)
    LB("Lp%d" % u)
    issue(0)
    if fine and 0: CST(9)
    if mid: mid()
    if gap >= 0: delay(gap)
    if gap >= 0: issue(1)
    lk = look(0)
    if gap < 0 and not (per_load and PROG): lk[0] = "s_waitcnt vmcnt(0)"
    for k, x in enumerate(lk):
        A(x)
        if fine and k == 0: CST(13)
    if fine: CST(14)
    A("s_cbranch_vccz Ld%d" % u)
    if gap < 0: issue(1)
    A("s_sub_u32 s%d, s%d, 1" % (sCNT, sCNT))
    for x in look(1): A(x)
    for x in (fix or []): A(x)
    A("s_cbranch_vccz Ld%d" % u)
    A("s_sub_u32 s%d, s%d, 1" % (sCNT, sCNT))
    A("s_cmp_gt_i32 s%d, 0" % sCNT)
    A("s_cbranch_scc1 Lp%d" % u)
    if stub: touch_stub(stub)
    LB("Ld%d" % u)
    if fine: CST(15)
    if DIAG and tag is not None:
        A("s_lshl_b32 m0, s%d, 2" % sLAY); A("s_add_u32 m0, m0, %d" % tag); A("s_nop 0")
        A("v_writelane_b32 v31, s%d, m0" % sCNT)

def lds_spin(off, target, tmp, mask=None, sleep=0):
    uid[0] += 1; u = uid[0]
    A("s_mov_b32 s%d, %s" % (sT2, hx(SPIN * 4)))
    LB("Ls%d" % u)
    A("ds_read_b32 v%d, v%d offset:%d" % (tmp, vFL, off))
    A("s_waitcnt lgkmcnt(0)")
    A("v_readfirstlane_b32 s%d, v%d" % (sT1, tmp))
    if mask: A("s_and_b32 s%d, s%d, %d" % (sT0, sT1, mask))
    A("s_cmp_ge_u32 s%d, %d" % (sT0 if mask else sT1, target))
    A("s_cbranch_scc1 Lt%d" % u)
    if sleep: A("s_sleep %d" % sleep)
    A("s_sub_u32 s%d, s%d, 1" % (sT2, sT2))
    A("s_cbranch_scc0 Ls%d" % u)
    LB("Lt%d" % u)

def lds_arrive(off, tmp, val=1):
    if val is not None: A("v_mov_b32 v%d, %d" % (tmp, val))
    A("s_mov_b64 exec, 1")
    A("ds_add_u32 v%d, v%d offset:%d" % (vFL, tmp, off))
    A("s_mov_b64 exec, -1")

def store_local(op, data, vaddr, so):
    uid[0] += 1; u = uid[0]
    A("s_cbranch_scc1 Lw%d" % u)
    A("%s %s, v%d, %s, s%d offen" % (op, data, vaddr, sr(sWS, 4), so))
    LB("Lx%d" % u)
    ool.append(["Lw%d:" % u, "    %s %s, v%d, %s, s%d offen sc1" % (op, data, vaddr, sr(sWS, 4), so), "    s_branch Lx%d" % u])
def fastcmp(): A("s_cmp_eq_u32 s%d, 0" % sFAST)

def mf(d, a, b, c):
    return "v_mfma_f32_16x16x32_bf16 %s, %s, %s, %s" % (vr(d, 4), vr(a, 4), vr(b, 4), "0" if c is None else vr(c, 4))
def mfma(d, a, b, c): A(mf(d, a, b, c))

def tags():
    A("s_add_u32 s%d, s%d, 1" % (sTG1, sE))
    A("s_mul_i32 s%d, s%d, 0x9E3779B1" % (sTG2, sTG1))
    A("s_and_b32 s%d, s%d, -8" % (sTG2, sTG2))

def common_addr():
    A("v_and_b32 v18, 3, v%d" % vLANE)
    A("v_lshlrev_b32 v%d, 12, v17" % vQST)
    A("v_lshrrev_b32 v24, 1, v16")
    A("v_lshl_add_u32 v%d, v24, 8, v%d" % (vQST, vQST))
    A("v_and_b32 v24, 1, v16")
    A("v_lshl_add_u32 v%d, v24, 3, v%d" % (vQST, vQST))
    A("v_lshlrev_b32 v%d, 4, v24" % vLSE)
    A("s_mul_i32 s%d, s%d, %d" % (sT0, sW, XS))
    A("s_add_u32 s%d, s%d, %d" % (sT0, sT0, L_XN))
    A("v_add_u32 v%d, s%d, v%d" % (vXNW, sT0, vL16))
    A("s_lshl_b32 s%d, s%d, 8" % (sT0, sA))
    A("s_add_u32 s%d, s%d, %d" % (sT0, sT0, L_XN))
    A("v_mul_u32_u24 v25, %d, v18" % XS)
    A("v_lshl_add_u32 v25, v16, 4, v25")
    A("v_add_u32 v%d, s%d, v25" % (vXNR, sT0))
    A("v_mov_b32 v%d, %s" % (vZ, hx(f2u(1.0 / 512))))
    for r in range(4): A("v_mov_b32 v%d, 0x3f803f80" % (ONES + r))
    A("s_and_b32 s%d, s%d, 1" % (sT1, sC))
    A("s_lshr_b32 s%d, s%d, 1" % (sT2, sC))
    soff(sQS, [(sT1, 11), (sW, 9), (sA, 6), (sT2, 4)], 0)
    A("v_bfe_u32 v24, v%d, 2, 2" % vLANE)
    A("v_lshl_add_u32 v24, v16, 3, v24")
    A("v_lshlrev_b32 v24, 7, v24")
    A("v_bfe_u32 v25, v%d, 3, 2" % vLANE)
    A("v_lshlrev_b32 v25, 1, v25")
    A("v_bfe_u32 v26, v%d, 1, 1" % vLANE)
    A("v_xor_b32 v25, v25, v26")
    A("v_lshl_add_u32 v24, v25, 4, v24")
    A("v_and_b32 v26, 1, v%d" % vLANE)
    A("v_lshl_add_u32 v%d, v26, 3, v24" % vWT)
    A("s_mov_b32 s%d, 0x000f000f" % sMSK)
    A("s_mov_b32 s%d, 0x000f000f" % (sMSK + 1))
    A("s_mov_b32 s%d, 0" % sLAY)

def wtile_voff(shift, d):
    A("v_lshrrev_b32 v24, 3, v%d" % vLANE)
    A("v_and_b32 v25, 7, v%d" % vLANE)
    A("v_and_b32 v26, 1, v16")
    A("v_lshlrev_b32 v26, 1, v26")
    A("v_xor_b32 v25, v25, v26")
    A("v_lshlrev_b32 v25, 4, v25")
    A("v_lshl_add_u32 v%d, v24, %d, v25" % (d, shift))
    A("v_xor_b32 v%d, 64, v%d" % (d + 1, d))

def wqf_reads():
    A("s_lshl_b32 s%d, s%d, 5" % (sT1, sW))
    A("v_xor_b32 v26, s%d, v%d" % (sT1, vWT))
    for t in range(4):
        for hf in range(2):
            A("ds_read_b64_tr_b16 %s, v26 offset:%d" % (vr(WQF + 4 * t + 2 * hf, 2), L_WQ + 4096 * t + 512 * hf))

def dma(vaddr, srdn, so, lds_s, step_so, flags="nt"):
    A("s_mov_b32 m0, s%d" % lds_s)
    A("s_add_u32 s%d, s%d, 1024" % (lds_s, lds_s))
    A("buffer_load_dwordx4 v%d, %s, s%d offen %s lds" % (vaddr, sr(srdn, 4), so, flags))
    A("s_add_u32 s%d, s%d, %d" % (so, so, step_so))

hdr = open("cdna_kernels/%s.s.ref" % NAME).read().split("; Override launch")[0]
L.append(hdr.rstrip("\n") + """
;
; One persistent launch, 256 workgroups (one per CU) x 8 waves.  wg = A(2b):C(3b):j(3b); j = kv head.
; K, V, wq and wo are read from HBM exactly once (LDS-DMA) and stay in registers for both attention layers.
;   roles of a workgroup:  attention (batch A, keys 128C..), q projection (wq rows 128A.., 64 columns C),
;                          output projection (head A of group j, 64 columns C), row reduction (batch A, columns 64C..)
;   waves 0-3: stream K/V, attention, output projection, LayerNorm + mixer + next q projection
;   waves 4-7: first q projection, then the token-mixer MLP g(h) = sum_f gelu(h w1 + b1) w2 + b2 evaluated
;              exactly (all 1792 hidden units) for every bf16 value h with 2^-17 <= |h| < 8; h is a bf16 tensor in the
;              reference, so the mixer is a lookup of these values; any other h is evaluated directly (Lslow).
; Hand-offs between workgroups go through d_ws.  Slots are filled with a sentinel at the start of the launch and a
; consumer polls until no sentinel is left; the first hand-off (q) and the "sentinels are in place" announcements
; carry a tag derived from a word that every launch advances.  Stores inside a kv-head group are plain when the
; whole group reports the same XCC id, write-through otherwise; every poll is bounded.
""".rstrip("\n"))
L.append("; @launch grid=(256,1,1) block=(512,1,1) lds=%d" % LDS_SZ)
L.append('.amdgcn_target "amdgcn-amd-amdhsa--gfx950"')
L.append(".text\n" + (".p2align 12\n" if int(OPT.get("al", 0)) else "") + ".globl %s_kernel\n.p2align 8\n.type %s_kernel,@function\n%s_kernel:" % (NAME, NAME, NAME))
if DIAG: A("s_memrealtime s[42:43]")
if DBL or TOT or MEAS: A("s_memrealtime s[98:99]")
sM = 96
A("s_lshr_b32 s%d, s2, 8" % sT0)
A("s_cbranch_scc1 Lend")
A("s_load_dwordx2 %s, s[0:1], 24" % sr(sWQ, 2))
A("s_load_dwordx4 %s, s[0:1], 0" % sr(sT2, 4))
A("v_readfirstlane_b32 s%d, v0" % sW)
C("every wave pulls one line of this kernel's code into L2 (plain read): 32 workgroups x 4 lines")
A("s_getpc_b64 s[10:11]")
LB("Lpc0")
A("s_lshr_b32 s%d, s2, 3" % sM)
A("s_lshl_b32 s%d, s%d, 9" % (sCNT, sM))
A("s_cmp_lg_u32 s%d, 0" % sW)
A("s_cbranch_scc1 Lnopf")
A("v_and_b32 v19, 3, v0")
A("v_lshl_add_u32 v19, v19, 7, s%d" % sCNT)
A("global_load_dword v%d, v19, s[10:11]" % (W + 8))
LB("Lnopf")
A("s_and_b32 s%d, s2, 7" % sJ)
A("s_lshr_b32 s%d, s2, 6" % sA)
A("s_and_b32 s%d, s%d, 7" % (sC, sM))
A("s_lshl_b32 s%d, 1, 17" % (sWQ + 3))
A("s_bitcmp1_b32 s%d, 8" % sW)
A("s_cbranch_scc0 Lmain0")
vKA, vVA = W + 40, W + 44
sRO, sRM = sVO, 97 if not TOT else 94
if TOT: sRM = sOL
def kv_issue(i):
    A("s_add_u32 m0, s%d, s%d" % (sKL if i < 8 else sVL, sRO))
    A("s_add_u32 s%d, s%d, s%d" % (sCNT, sKO, sRO))
    if i < 8: A("buffer_load_dwordx4 v%d, %s, s%d offen nt lds" % (vKA + (i & 3), sr(sK, 4), sCNT))
    else: A("buffer_load_dwordx4 v%d, %s, s%d offen nt lds" % (vVA + (i & 1), sr(sV, 4), sCNT))
    A("s_addk_i32 s%d, %d" % (sRO, 1024 + (VROT * 1024 if i == 7 else 0)))
    A("s_and_b32 s%d, s%d, 0x1fff" % (sRO, sRO))
def lane_init():
    A("v_and_b32 v%d, 63, v0" % vLANE)
    A("v_mov_b32 v%d, %d" % (vFL, L_FLG))
    A("v_lshlrev_b32 v%d, 4, v%d" % (vL16, vLANE))
    A("v_lshrrev_b32 v16, 4, v%d" % vLANE)
    A("v_and_b32 v17, 15, v%d" % vLANE)
    A("v_mov_b32 v20, 0")
    if DIAG: A("v_mov_b32 v30, 0")
def main_early():
    LB("Lmain0")
    for s, off in [(sW1, 48), (sB1, 56), (sW2, 64)]:
        A("s_load_dwordx2 %s, s[0:1], %d" % (sr(s, 2), off))
    lane_init()
    A("v_mov_b32 v21, 0")
    for k in range(4): A("ds_write_b64 v%d, v[20:21] offset:%d" % (vFL, 8 * k))
    A("ds_write_b64 v%d, v[20:21] offset:52" % vFL) if False else None
    A("ds_write_b32 v%d, v20 offset:56" % vFL)
    if ADP: A("ds_write_b32 v%d, v20 offset:52" % vFL)
    A("s_lshl_b32 s%d, 1, 25" % (sK + 2)); A("s_mov_b32 s%d, s%d" % (sK + 3, sWQ + 3))
    A("v_xor_b32 v18, v17, v16")
    A("v_lshlrev_b32 v18, 4, v18")
    A("v_lshl_add_u32 v%d, v16, 8, v18" % vKA)
    A("s_lshl_b32 s%d, s%d, %d" % (sRO, sC, 10 if ROT else 31))
    if not ROT: A("s_mov_b32 s%d, 0" % sRO)
    A("s_bfe_u32 s%d, s%d, 0x2000a" % (sT1, sRO))
    A("s_lshl_b32 s%d, s%d, 6" % (sT1, sT1))
    for k in range(1, 4):
        A("s_add_u32 s%d, s%d, %d" % (sCNT, sT1, 64 * k))
        A("s_and_b32 s%d, s%d, 0xc0" % (sCNT, sCNT))
        A("v_xor_b32 v%d, s%d, v%d" % (vKA + k, sCNT, vKA))
    A("v_xor_b32 v%d, s%d, v%d" % (vKA, sT1, vKA))
    soff(sKO, [(sA, 23), (sJ, 20), (sC, 15), (sW, 7)], 3072 * 256)
    A("s_add_u32 s%d, s%d, %d" % (sKL, sT0, L_K))
    A("s_waitcnt lgkmcnt(0)")
    A("s_mov_b64 %s, %s" % (sr(sK, 2), sr(sT4, 2)))
    for i in range(D0): kv_issue(i)
    C("lane k<3 of wave 3 pulls a slice of coefficient array k into L2")
    A("s_cmp_lg_u32 s%d, 192" % sW)
    A("s_cbranch_scc1 Lm_nopf")
    A("s_min_u32 s%d, s%d, 27" % (sT1, sM))
    A("s_lshl_b32 s%d, s%d, 7" % (sT1, sT1))
    A("v_mov_b32 v19, s%d" % sT1)
    A("s_mov_b64 exec, 1")
    for k, sd in enumerate([sW1, sB1, sW2]): A("global_load_dword v%d, v19, %s" % (W + 9 + k, sr(sd, 2)))
    A("s_mov_b64 exec, -1")
    LB("Lm_nopf")
    A("s_add_u32 s%d, s%d, %d" % (sVL, sT0, L_V))
    A("s_lshr_b32 s%d, s%d, 6" % (sW, sW))
    if DIAG: A("v_writelane_b32 v30, s42, 0")
    STAMP(10)
    MP("k0")
    A("s_branch Lmain")

C("---- helper waves: first q projection, then the table of g over bf16 inputs ----")
HW1, HB1, HW2 = 32, 60, 112
hK0, hK1, hONE, hRES = 88, 90, 92, 94
AC = [140, 142]
A("s_load_dwordx2 %s, s[0:1], 96" % sr(sWS, 2))
C("wq tile DMA: instruction i, thread t' = t-256: row 32 i + (t'>>3), 16-byte chunk (t'&7) ^ swizzle")
A("v_bfe_u32 v23, v0, 3, 5")
A("v_and_b32 v22, 7, v0")
A("v_and_b32 v24, 2, v23")
A("v_lshrrev_b32 v25, 1, v23")
A("v_and_or_b32 v24, v25, 4, v24")
A("v_xor_b32 v22, v22, v24")
A("v_lshlrev_b32 v22, 4, v22")
A("v_lshl_add_u32 v22, v23, 13, v22")
soff(sQL, [(sA, 20), (sJ, 10), (sC, 7)], 0)
A("s_lshl_b32 s%d, 1, 22" % (sWQ + 2))
A("s_lshl_b32 s%d, 1, 18" % sT1)
A("s_lshl_b32 s%d, s%d, 4" % (sQS, sW))
A("s_add_u32 m0, s%d, %d" % (sQS, L_WQ - 4096))
A("v_lshlrev_b32 v21, 4, v0")
if DIAG: A("s_memrealtime s[88:89]")
A("s_waitcnt lgkmcnt(0)")
if DIAG: A("s_memrealtime s[90:91]")
A("global_load_dwordx4 %s, v21, %s offset:-4096" % (vr(XR, 4), sr(sT2, 2)))
for i in range(4):
    if i:
        A("s_addk_i32 m0, 0x1000")
        A("s_add_u32 s%d, s%d, s%d" % (sQL, sQL, sT1))
    A("buffer_load_dwordx4 v22, %s, s%d offen nt lds" % (sr(sWQ, 4), sQL))
if DIAG: A("s_memrealtime s[92:93]")
lane_init()
A("s_bfe_u32 s%d, s%d, 0x20006" % (sW, sW))
A("s_lshl_b32 s%d, s%d, 10" % (sT3, sW))
srd(sWS, WS_SZ)
C("early sentinels (O0, LSE0): hw0 1024 B, the others 16 B")
for i in range(4): A("v_mov_b32 v%d, -1" % (PM + i))
A("s_mul_i32 s%d, s%d, %d" % (sT5, sM, CLRA_PER))
A("s_lshl_b32 s%d, s%d, 17" % (sGR, sJ))
A("s_add_u32 s%d, s%d, s%d" % (sT5, sT5, sGR))
A("s_add_u32 s%d, s%d, 1024" % (sT4, sT5))
A("s_cmp_ge_u32 s%d, 2" % sW)
A("s_cbranch_scc1 Lhc_skip")
A("s_cmp_eq_u32 s%d, 0" % sW)
A("s_cselect_b32 s%d, s%d, s%d" % (sT5, sT5, sT4))
A("s_cselect_b64 exec, -1, 1")
A("buffer_store_dwordx4 %s, v%d, %s, s%d offen sc1" % (vr(PM, 4), vL16, sr(sWS, 4), sT5))
LB("Lhc_skip")
A("s_mov_b64 exec, -1")
A("s_branch Lhelp2")
main_early()
LB("Lhelp2")
if QT:
    C("touch 2 lines of the tagged q mailbox per wave so that they sit in L2 before they are written")
    soff(sT4, [(sM, 10), (sW, 8), (sJ, 17)], Q0_OFF)
    A("v_lshlrev_b32 v24, 7, v%d" % vLANE)
    A("s_mov_b64 exec, 3")
    A("buffer_load_dword v%d, v24, %s, s%d offen" % (RES + 1, sr(sWS, 4), sT4))
A("s_mov_b64 exec, -1")
if HP: A("s_setprio 3")
A("s_load_dword s%d, %s, %s" % (sE, sr(sWS, 2), hx(EPO)))
A("s_load_dwordx2 %s, s[0:1], 72" % sr(sB2P, 2))
if MEAS:
    A("s_load_dwordx2 s[42:43], s[0:1], 88"); A("s_waitcnt lgkmcnt(0)"); A("v_mov_b32 v30, s42"); A("v_mov_b32 v31, s43")
if DIAG:
    A("v_writelane_b32 v30, s42, 0")
    A("s_waitcnt lgkmcnt(0)")
    A("v_mov_b32 v31, 0")
    A("v_writelane_b32 v31, s88, 0"); A("v_writelane_b32 v31, s90, 1"); A("v_writelane_b32 v31, s92, 2")
STAMP(9)
A("s_barrier")
A("s_lshl_b32 s%d, s2, 2" % sHC)
A("s_add_u32 s%d, s%d, s%d" % (sHC, sHC, sW))
sHX = 86
if XENT:
    C("extra entry e = wave index: |h| code ELO*128 + (e>>1), sign e&1")
    A("s_lshr_b32 s%d, s%d, 1" % (sHX, sHC))
    A("s_add_u32 s%d, s%d, %d" % (sHX, sHX, ELO * 128))
    A("s_lshl_b32 s%d, s%d, 16" % (sHX, sHX))
    A("s_lshl_b32 s%d, s%d, 31" % (sT0, sHC))
    A("s_or_b32 s%d, s%d, s%d" % (sHX, sHX, sT0))
A("s_mul_i32 s%d, s%d, %d" % (sHC, sHC, EPW))
A("s_lshl_b32 s%d, s%d, 3" % (sHT, sHC))
A("s_add_u32 s%d, s%d, %d" % (sHT, sHT, XENT * 4))
A("s_add_u32 s%d, s%d, %d" % (sHC, sHC, ELO * 128 + XENT // 2))
A("s_lshl_b32 s%d, s%d, 16" % (sHC, sHC))
A("v_lshlrev_b32 v27, 2, v%d" % vLANE)
A("v_add_u32 v27, s%d, v27" % sHT)
A("s_mov_b32 s%d, %s" % (sHT, hx(TB)))
common_addr()
A("s_lshl_b32 s%d, s%d, 1" % (sQS, sQS))
A("s_add_u32 s%d, s%d, s%d" % (sQS, sQS, sGR))
A("s_add_u32 s%d, s%d, %s" % (sQS, sQS, hx(Q0_OFF)))
A("v_lshlrev_b32 v%d, 1, v%d" % (vQST, vQST))
A("s_getreg_b32 s%d, hwreg(HW_REG_XCC_ID, 0, 3)" % sXCC)
for r, c in [(hK0, K0), (hK1, K1), (hONE, 1.0)]:
    A("v_mov_b32 v%d, %s" % (r, hx(f2u(c)))); A("v_mov_b32 v%d, %s" % (r + 1, hx(f2u(c))))
A("v_mov_b32 v%d, 0" % hRES)
A("s_mov_b32 s%d, 0" % sIT)
if DRY:
    C("dry run of the q-projection code while its inputs are in flight (instruction cache warm-up; no side effects)")
    A("s_mov_b32 s%d, 1" % sIT)
    A("s_branch Llnq")
    LB("Ldry_done")
    A("s_mov_b64 exec, -1")
    A("s_mov_b32 s%d, 0" % sIT)
if WARM:
    C("warm the instruction cache lines at the far jump targets of the main waves")
    for k, nm in enumerate(["k", "fin", "out", "tab"]):
        A("s_cmp_lg_u32 s%d, %d" % (sW, k))
        A("s_cbranch_scc1 Lwm%d" % k)
        A("s_call_b64 %s, Lst_%s" % (sr(sRET, 2), nm))
        if nm == "out": A("s_call_b64 %s, Lst_mq" % sr(sRET, 2))
        LB("Lwm%d" % k)
A("s_cmp_ge_u32 s%d, 2" % sW)
A("s_cbranch_scc0 Lhx5")
A("s_waitcnt vmcnt(%d)" % (4 + QT))
LB("Lhx5")
A("s_waitcnt vmcnt(%d)" % (5 + QT))
STAMP(1)
A("s_branch Llnq")
LB("Lq_first")
if DRY:
    A("s_cmp_lg_u32 s%d, 0" % sIT)
    A("s_cbranch_scc1 Lq_dry")
A("s_waitcnt vmcnt(0) lgkmcnt(0)")
STAMP(2)
MP("hwq")
lds_arrive(0, vT + 4)
tags()
A("s_or_b32 s%d, s%d, s%d" % (sXCC, sXCC, sTG2))
C("4 helper arrivals (wq tile, xn rows) + 4 main arrivals (coefficients landed, sentinels acknowledged)")
lds_spin(0, 4, vT + 4)
STAMP(6)
LB("Lq_dry")
wqf_reads()
A("s_waitcnt lgkmcnt(0)")
A("s_branch Lq_go")
LB("Lh_qst")
if DRY:
    A("s_cmp_lg_u32 s%d, 0" % sIT)
    A("s_cbranch_scc1 Ldry_done")
STAMP(5)
A("v_mov_b32 v%d, s%d" % (W + 6, sTG1))
A("v_mov_b32 v%d, s%d" % (W + 7, sXCC))
A("buffer_store_dwordx4 %s, v%d, %s, s%d offen%s" % (vr(W + 4, 4), vQST, sr(sWS, 4), sQS, "" if int(OPT.get("fast", 1)) else " sc1"))
A("s_add_u32 s%d, s%d, %s" % (sQS, sQS, hx(QB_DELTA)))
if not QBD: A("buffer_store_dwordx4 %s, v%d, %s, s%d offen sc1" % (vr(W + 4, 4), vQST, sr(sWS, 4), sQS))
A("s_mov_b64 exec, -1")
HR = W + 8
if ADP: lds_arrive(52, 24)
if HP: A("s_setprio 0")
STAMP(3)
MP("hq")
A("v_lshlrev_b32 v26, 3, v%d" % vLANE)
lds_spin(24, 4, 24, sleep=1)
for a_ in range(3):
    for k in range(3):
        A("ds_read_b128 %s, v%d offset:%d" % (vr(HR + 14 * a_ + 4 * k, 4), vL16, 4096 * a_ + 1024 * k))
    A("ds_read_b64 %s, v26 offset:%d" % (vr(HR + 14 * a_ + 12, 2), 4096 * a_ + 3072))
for a_, d in [(0, HW1), (14, HB1), (28, HW2)]:
    A("s_waitcnt lgkmcnt(%d)" % (8 - 4 * (a_ // 14)))
    for p in range(14):
        A("v_lshlrev_b32 v%d, 16, v%d" % (d + 2 * p, HR + a_ + p))
        A("v_and_b32 v%d, 0xffff0000, v%d" % (d + 2 * p + 1, HR + a_ + p))
A("s_load_dword s%d, %s, 0" % (sB2, sr(sB2P, 2)))
STAMP(4)
if DIAG:
    A("s_memtime s[42:43]"); A("s_waitcnt lgkmcnt(0)"); A("v_writelane_b32 v30, s42, 13")
if HPT: A("s_setprio %d" % HPT)
LB("Lhl")
if DIAG:
    A("s_memrealtime s[42:43]"); A("s_add_u32 m0, s%d, 10" % sIT); A("s_waitcnt lgkmcnt(0)"); A("v_writelane_b32 v30, s42, m0")
A("s_mov_b32 s%d, s%d" % (sH, sHC)); A("s_mov_b32 s%d, s%d" % (sH + 1, sHC))
A("s_xor_b32 s%d, s%d, 0x80000000" % (sH2, sHC)); A("s_mov_b32 s%d, s%d" % (sH2 + 1, sH2))
U4 = [144, 146, 148, 150]; T4 = [152, 154, 156, 158]; Z4 = [160, 162, 164, 166]
for p2 in range(7):
    ch = [(2 * p2 + k // 2, k & 1) for k in range(4)]
    for k, (p, sg) in enumerate(ch):
        A("v_pk_fma_f32 %s, %s, %s, %s" % (vr(U4[k], 2), vr(HW1 + 2 * p, 2), sr([sH, sH2][sg], 2), vr(HB1 + 2 * p, 2)))
    for k in range(4): A("v_pk_mul_f32 %s, %s, %s" % (vr(T4[k], 2), vr(U4[k], 2), vr(U4[k], 2)))
    for k in range(4): A("v_pk_fma_f32 %s, %s, %s, %s" % (vr(T4[k], 2), vr(T4[k], 2), vr(hK1, 2), vr(hK0, 2)))
    for k in range(4): A("v_pk_mul_f32 %s, %s, %s" % (vr(T4[k], 2), vr(T4[k], 2), vr(U4[k], 2)))
    for k in range(4):
        for h in range(2): A("v_exp_f32 v%d, v%d" % (T4[k] + h, T4[k] + h))
    for k, (p, sg) in enumerate(ch): A("v_pk_mul_f32 %s, %s, %s" % (vr(Z4[k], 2), vr(U4[k], 2), vr(HW2 + 2 * p, 2)))
    for k in range(4): A("v_pk_add_f32 %s, %s, %s" % (vr(T4[k], 2), vr(T4[k], 2), vr(hONE, 2)))
    for k in range(4):
        for h in range(2): A("v_rcp_f32 v%d, v%d" % (T4[k] + h, T4[k] + h))
    for k, (p, sg) in enumerate(ch):
        if p == 0: A("v_pk_mul_f32 %s, %s, %s" % (vr(AC[sg], 2), vr(Z4[k], 2), vr(T4[k], 2)))
        else: A("v_pk_fma_f32 %s, %s, %s, %s" % (vr(AC[sg], 2), vr(Z4[k], 2), vr(T4[k], 2), vr(AC[sg], 2)))
A("v_add_f32 v%d, v%d, v%d" % (AC[0], AC[0], AC[0] + 1))
A("v_add_f32 v%d, v%d, v%d" % (AC[1], AC[1], AC[1] + 1))
A("s_lshl_b32 m0, s%d, 1" % sIT)
A("s_add_u32 s%d, s%d, 0x10000" % (sHC, sHC))
wave_sum2(AC[0], AC[1], sSUM, sSQ)
A("s_add_u32 s%d, s%d, 1" % (sIT, sIT))
A("s_nop 0")
A("v_writelane_b32 v%d, s%d, m0" % (hRES, sSUM))
A("s_add_u32 m0, m0, 1")
A("s_cmp_lg_u32 s%d, %d" % (sIT, EPW))
A("v_writelane_b32 v%d, s%d, m0" % (hRES, sSQ))
A("s_cbranch_scc1 Lhl")
def h_publish(lanes):
    A("v_cvt_pk_bf16_f32 v%d, v%d, v%d" % (hRES, hRES, hRES))
    A("v_and_b32 v%d, 0xffff0000, v%d" % (hRES, hRES))
    A("v_add_f32 v%d, s%d, v%d" % (hRES, sB2, hRES))
    A("v_cvt_pk_bf16_f32 v%d, v%d, v%d" % (hRES, hRES, hRES))
    A("v_and_b32 v%d, 0xffff0000, v%d" % (hRES + 1, hRES))
    A("s_mov_b64 exec, %d" % lanes)
    A("buffer_store_dword v%d, v27, %s, s%d offen sc1" % (hRES + 1, sr(sWS, 4), sHT))
    A("s_mov_b64 exec, -1")
A("s_waitcnt lgkmcnt(0)")
A("s_lshl_b32 s%d, s%d, 16" % (sB2, sB2))
lds_spin(8, 4, 24)
if not CMB: h_publish((1 << (2 * EPW)) - 1)
else:
    A("v_cvt_pk_bf16_f32 v%d, v%d, v%d" % (hRES, hRES, hRES))
    A("v_and_b32 v%d, 0xffff0000, v%d" % (hRES, hRES))
    A("v_add_f32 v%d, s%d, v%d" % (hRES, sB2, hRES))
    A("v_cvt_pk_bf16_f32 v%d, v%d, v%d" % (hRES, hRES, hRES))
    A("v_and_b32 v%d, 0xffff0000, v%d" % (hRES, hRES))
    C("the last of the four helpers stores the workgroup's 16 entries with one instruction")
    A("s_lshl_b32 s%d, s%d, 4" % (sT0, sW))
    A("v_lshl_add_u32 v16, v%d, 2, s%d" % (vLANE, sT0))
    A("v_add_u32 v16, %d, v16" % (L_FLG + 64))
    A("v_mov_b32 v17, 1")
    A("s_mov_b64 exec, 15")
    A("ds_write_b32 v16, v%d" % hRES)
    A("s_mov_b64 exec, 1")
    A("s_waitcnt lgkmcnt(0)")
    A("ds_add_rtn_u32 v18, v%d, v17 offset:56" % vFL)
    A("s_waitcnt lgkmcnt(0)")
    A("v_readfirstlane_b32 s%d, v18" % sT0)
    A("s_mov_b64 exec, 15")
    A("s_cmp_lg_u32 s%d, 3" % sT0)
    A("s_cbranch_scc1 Lhc_end")
    A("v_add_u32 v16, %d, v%d" % (L_FLG + 64, vL16))
    A("ds_read_b128 v[20:23], v16")
    A("s_lshl_b32 s%d, s2, 6" % sT1)
    A("s_add_u32 s%d, s%d, %s" % (sT1, sT1, hx(TB + XENT * 4)))
    A("s_waitcnt lgkmcnt(0)")
    A("buffer_store_dwordx4 v[20:23], v%d, %s, s%d offen sc1" % (vL16, sr(sWS, 4), sT1))
    LB("Lhc_end")
    A("s_mov_b64 exec, -1")
if QBD:
    C("the write-through copy of q is only needed when the group is not known to sit on one XCD")
    A("ds_read_b32 v24, v%d offset:4" % vFL)
    A("s_waitcnt lgkmcnt(0)")
    A("v_readfirstlane_b32 s%d, v24" % sT0)
    A("s_cmp_eq_u32 s%d, 4" % sT0)
    A("s_cbranch_scc1 Lhqb")
    A("s_mov_b64 exec, %s" % sr(sMSK, 2))
    A("buffer_store_dwordx4 %s, v%d, %s, s%d offen sc1" % (vr(W + 4, 4), vQST, sr(sWS, 4), sQS))
    A("s_mov_b64 exec, -1")
    LB("Lhqb")
if HPT: A("s_setprio 0")
STAMP(8)
MP("htab")
if XENT:
    A("s_mov_b32 s%d, s%d" % (sH, sHX)); A("s_mov_b32 s%d, s%d" % (sH + 1, sHX))
    for grp in [[0, 1, 2, 3], [4, 5, 6, 7], [8, 9, 10], [11, 12, 13]]:
        n = len(grp)
        for k, p in enumerate(grp): A("v_pk_fma_f32 %s, %s, %s, %s" % (vr(U4[k], 2), vr(HW1 + 2 * p, 2), sr(sH, 2), vr(HB1 + 2 * p, 2)))
        for k in range(n): A("v_pk_mul_f32 %s, %s, %s" % (vr(T4[k], 2), vr(U4[k], 2), vr(U4[k], 2)))
        for k in range(n): A("v_pk_fma_f32 %s, %s, %s, %s" % (vr(T4[k], 2), vr(T4[k], 2), vr(hK1, 2), vr(hK0, 2)))
        for k in range(n): A("v_pk_mul_f32 %s, %s, %s" % (vr(T4[k], 2), vr(T4[k], 2), vr(U4[k], 2)))
        for k in range(n):
            for h in range(2): A("v_exp_f32 v%d, v%d" % (T4[k] + h, T4[k] + h))
        for k, p in enumerate(grp): A("v_pk_mul_f32 %s, %s, %s" % (vr(Z4[k], 2), vr(U4[k], 2), vr(HW2 + 2 * p, 2)))
        for k in range(n): A("v_pk_add_f32 %s, %s, %s" % (vr(T4[k], 2), vr(T4[k], 2), vr(hONE, 2)))
        for k in range(n):
            for h in range(2): A("v_rcp_f32 v%d, v%d" % (T4[k] + h, T4[k] + h))
        for k, p in enumerate(grp):
            if p < 2: A("v_pk_mul_f32 %s, %s, %s" % (vr(AC[p & 1], 2), vr(Z4[k], 2), vr(T4[k], 2)))
            else: A("v_pk_fma_f32 %s, %s, %s, %s" % (vr(AC[p & 1], 2), vr(Z4[k], 2), vr(T4[k], 2), vr(AC[p & 1], 2)))
    A("v_add_f32 v%d, v%d, v%d" % (AC[0], AC[0], AC[0] + 1))
    A("v_add_f32 v%d, v%d, v%d" % (AC[1], AC[1], AC[1] + 1))
    A("v_add_f32 v%d, v%d, v%d" % (AC[0], AC[0], AC[1]))
    A("s_nop 1")
    wave_sum2(AC[0], AC[1], sSUM, sSQ)
    A("s_nop 1")
    A("v_mov_b32 v%d, s%d" % (hRES, sSUM))
    A("v_cvt_pk_bf16_f32 v%d, v%d, v%d" % (hRES, hRES, hRES))
    A("v_and_b32 v%d, 0xffff0000, v%d" % (hRES, hRES))
    A("v_add_f32 v%d, s%d, v%d" % (hRES, sB2, hRES))
    A("v_cvt_pk_bf16_f32 v%d, v%d, v%d" % (hRES, hRES, hRES))
    A("v_and_b32 v%d, 0xffff0000, v%d" % (hRES, hRES))
    C("the last of the four helpers stores the workgroup's four extra entries with one instruction")
    A("s_lshl_b32 s%d, s%d, 2" % (sT0, sW))
    A("v_add_u32 v16, s%d, v%d" % (sT0, vFL))
    A("v_mov_b32 v17, 1")
    A("s_mov_b64 exec, 1")
    A("ds_write_b32 v16, v%d offset:32" % hRES)
    A("s_waitcnt lgkmcnt(0)")
    A("ds_add_rtn_u32 v18, v%d, v17 offset:28" % vFL)
    A("s_waitcnt lgkmcnt(0)")
    A("v_readfirstlane_b32 s%d, v18" % sT0)
    A("s_cmp_lg_u32 s%d, 3" % sT0)
    A("s_cbranch_scc1 Lhx_end")
    A("ds_read_b128 v[20:23], v%d offset:32" % vFL)
    A("s_lshl_b32 s%d, s2, 4" % sT0)
    A("v_mov_b32 v16, s%d" % sT0)
    A("s_waitcnt lgkmcnt(0)")
    A("buffer_store_dwordx4 v[20:23], v16, %s, s%d offen sc1" % (sr(sWS, 4), sHT))
    LB("Lhx_end")
    A("s_mov_b64 exec, -1")
if DIAG:
    A("s_memtime s[42:43]"); A("s_waitcnt lgkmcnt(0)"); A("v_writelane_b32 v30, s42, 14")
    STAMP(15)
MP("qv")
STAMP(7)
C("stand in at the two barriers of the second layer, so that they do not wait for this wave's store acknowledgements")
A("s_barrier")
A("s_barrier")
if MEAS and OPT["q"][0] == "h":
    A("s_mov_b64 exec, 1"); A("v_mov_b32 v16, s97"); A("global_atomic_umax v[30:31], v16, off sc1")
if DIAG:
    A("s_add_u32 s%d, s%d, 4" % (sW, sW))
    A("v_mov_b32 v28, v30")
    A("s_branch Lfin_exit")
A("s_endpgm")

LB("Lmain")
for s, off in [(sWS, 96), (sV, 16), (sWO, 32), (sOUT, 80), (sX, 0), (sB2P, 72)]:
    A("s_load_dwordx2 %s, s[0:1], %d" % (sr(s, 2), off))
if MEAS: A("s_load_dwordx2 s[42:43], s[0:1], 88"); A("s_waitcnt lgkmcnt(0)"); A("s_mov_b32 s25, s42"); A("s_mov_b32 s99, s43") if False else None; A("v_mov_b32 v30, s42"); A("v_mov_b32 v31, s43")
srd(sWS, WS_SZ)
for s in [sW1, sB1, sW2]: srd(s, 3584)
A("s_lshl_b32 s%d, s%d, 10" % (sT3, sW))
A("s_barrier")
for i in range(D0, DC): kv_issue(i)
A("s_mov_b32 m0, s%d" % sT3)
for i, sd in enumerate([sW1, sB1, sW2]):
    if i: A("s_addk_i32 m0, 0x1000")
    A("s_nop 0")
    A("buffer_load_dwordx4 v%d, %s, s%d offen lds" % (vL16, sr(sd, 4), sT3))
for i in range(DC, D1): kv_issue(i)
for i in range(4): A("v_mov_b32 v%d, -1" % (W + i))
A("s_lshl_b32 s%d, s%d, 17" % (sGR, sJ))
A("s_mov_b32 s%d, s%d" % (sT1, sM))
A("s_waitcnt lgkmcnt(0)")
A("s_load_dword s%d, %s, %s" % (sE, sr(sWS, 2), hx(EPO)))
STAMP(11)
MP("k3")
for s, n in [(sV, 1 << 25), (sX, 4096), (sWO, 1 << 22), (sOUT, 4096)]: srd(s, n)
A("v_lshlrev_b32 v18, 1, v16")
A("v_xor_b32 v18, v17, v18")
A("v_lshlrev_b32 v18, 4, v18")
A("v_lshl_add_u32 v%d, v16, 8, v18" % vVA)
if ROT:
    A("s_and_b32 s%d, s%d, 1" % (sT0, sC))
    A("s_lshl_b32 s%d, s%d, 7" % (sT0, sT0))
    A("v_xor_b32 v%d, s%d, v%d" % (vVA, sT0, vVA))
A("v_xor_b32 v%d, 128, v%d" % (vVA + 1, vVA))
C("late sentinels: wave 0,1: group region ; wave 2: P chunk")
A("s_lshr_b32 s%d, s2, 3" % sT1)
A("s_mul_i32 s%d, s%d, %d" % (sT1, sT1, CLRB_PER))
A("s_lshl_b32 s%d, s%d, 10" % (sT0, sW))
A("s_add_u32 s%d, s%d, s%d" % (sT1, sT1, sT0))
A("s_add_u32 s%d, s%d, s%d" % (sT1, sT1, sGR))
A("s_add_u32 s%d, s%d, %d" % (sT1, sT1, CLRB_OFF))
A("s_lshl_b32 s%d, s2, 10" % sT0)
A("s_add_u32 s%d, s%d, %s" % (sT0, sT0, hx(PB)))
A("s_cmp_ge_u32 s%d, 2" % sW)
A("s_cselect_b32 s%d, s%d, s%d" % (sT1, sT0, sT1))
A("s_bfm_b64 %s, %d, 0" % (sr(sH, 2), (CLRB_PER - 1024) // 16))
A("s_cmp_eq_u32 s%d, 1" % sW)
A("s_cselect_b64 %s, %s, -1" % (sr(sH, 2), sr(sH, 2)))
NCL = NOCT * 4 // 16
A("v_mov_b32 v19, v%d" % vL16)
A("s_cmp_lg_u32 s%d, 3" % sW)
A("s_cbranch_scc1 Lm_c3")
C("wave 3: this workgroup's table slots")
A("s_mul_i32 s%d, s2, %d" % (sT0, NOCT * 4))
A("s_add_u32 s%d, s%d, %d" % (sT0, sT0, XENT * 4))
A("v_add_u32 v19, s%d, v19" % sT0)
A("s_lshl_b32 s%d, s2, 4" % sT0)
if XENT: A("v_writelane_b32 v19, s%d, %d" % (sT0, NCL))
A("s_mov_b32 s%d, %s" % (sT1, hx(TB)))
A("s_mov_b64 %s, %d" % (sr(sH, 2), (1 << (NCL + (1 if XENT else 0))) - 1))
LB("Lm_c3")
A("s_mov_b64 exec, %s" % sr(sH, 2))
A("buffer_store_dwordx4 %s, v19, %s, s%d offen sc1" % (vr(W, 4), sr(sWS, 4), sT1))
A("s_mov_b64 exec, -1")

common_addr()
A("s_add_u32 s%d, s%d, s%d" % (sQS, sQS, sGR))
A("s_add_u32 s%d, s%d, %d" % (sQS, sQS, Q1_OFF))
wtile_voff(10, 22)
A("v_and_b32 v19, 7, v%d" % vLANE)
A("v_lshrrev_b32 v25, 2, v%d" % vLANE)
A("v_lshlrev_b32 v25, 7, v25")
A("v_lshl_add_u32 v%d, v18, 2, v25" % vOST)
A("v_lshlrev_b32 v25, 7, v16")
A("v_lshl_add_u32 v%d, v19, 4, v25" % vOLD)
C("lanes n>=8 of the first two o loads fetch the lse values instead: offset relative to the o block")
A("s_mul_i32 s%d, s%d, %d" % (sT0, sA, 128 - 8192))
A("s_mul_i32 s%d, s%d, %d" % (sT1, sW, 32 - 2048))
A("s_add_u32 s%d, s%d, s%d" % (sT0, sT0, sT1))
A("s_add_u32 s%d, s%d, %d" % (sT0, sT0, LSE_OFF[0] - O_OFF[0]))
A("v_add_u32 v25, s%d, v%d" % (sT0, vLSE))
A("v_xor_b32 v26, 16, v25")
A("v_add_u32 v26, -512, v26")
A("v_cmp_gt_u32 vcc, 8, v17")
A("s_nop 1")
A("v_cndmask_b32 v%d, v25, v%d, vcc" % (vLSE, vOLD))
A("v_cndmask_b32 v%d, v26, v%d, vcc" % (vLS2, vOLD))
A("v_lshlrev_b32 v%d, 1, v%d" % (vPST, vLANE))
A("v_lshlrev_b32 v25, 3, v16")
A("v_lshl_add_u32 v%d, v19, 4, v25" % vX1S)
A("s_mul_i32 s%d, s%d, %d" % (sT0, sW, RBS))
A("s_add_u32 s%d, s%d, %d" % (sT0, sT0, L_RB))
A("v_mul_u32_u24 v25, 528, v18")
A("v_lshl_add_u32 v25, v16, 4, v25")
A("v_lshrrev_b32 v26, 2, v17")
A("v_lshl_add_u32 v25, v26, 7, v25")
A("v_add_u32 v%d, s%d, v25" % (vRBW, sT0))
A("s_mul_i32 s%d, s%d, 528" % (sT0, sW))
A("s_add_u32 s%d, s%d, %d" % (sT0, sT0, L_RB))
A("v_lshlrev_b32 v25, 3, v%d" % vLANE)
A("v_add_u32 v%d, s%d, v25" % (vRBR, sT0))
A("s_lshl_b32 s%d, s%d, 3" % (sT0, sW))
A("s_add_u32 s%d, s%d, %d" % (sT0, sT0, L_ML))
A("v_lshlrev_b32 v25, 5, v18")
A("v_add_u32 v%d, s%d, v25" % (vMLW, sT0))
A("s_lshl_b32 s%d, s%d, 5" % (sT0, sW))
A("s_add_u32 s%d, s%d, %d" % (sT0, sT0, L_ML))
A("v_mov_b32 v%d, s%d" % (vMLR, sT0))
A("v_mov_b32 v25, 0x3f80")
A("v_mov_b32 v26, 0x3f800000")
for r in range(4):
    A("v_cmp_eq_u32 vcc, %d, v17" % (2 * r))
    A("v_cmp_eq_u32 %s, %d, v17" % (sr(sH, 2), 2 * r + 1))
    A("s_nop 0")
    A("v_cndmask_b32 v%d, 0, v25, vcc" % (SEL + r))
    A("v_cndmask_b32 v%d, v%d, v26, %s" % (SEL + r, SEL + r, sr(sH, 2)))
for i in range(16): A("v_mov_b32 v%d, 0" % (PM + i))
for p in range(4):
    A("s_mov_b32 s%d, %s" % (sPM + 2 * p, hx(0x000f000f << (4 * p))))
    A("s_mov_b32 s%d, %s" % (sPM + 2 * p + 1, hx(0x000f000f << (4 * p))))
soff(sOS, [(sW, 13), (sA, 11), (sC, 4), (sJ, 17)], O_OFF[0])
soff(sOL, [(sA, 13), (sW, 11), (sJ, 17)], O_OFF[0])
A("s_add_u32 s%d, s%d, %s" % (sQL, sOL, hx(Q0_OFF - O_OFF[0])))
soff(sLS, [(sW, 7), (sA, 5), (sC, 2), (sJ, 17)], LSE_OFF[0])
soff(sPS, [(sW, 15), (sC, 12), (sJ, 9), (sA, 7)], PB)
A("s_mov_b32 s%d, %s" % (sSC, hx(f2u(128 ** -0.5 * math.log2(math.e)))))
A("s_getreg_b32 s%d, hwreg(HW_REG_XCC_ID, 0, 3)" % sXCC)
A("v_xor_b32 v24, v16, v17")
A("v_lshlrev_b32 v24, 4, v24")
A("v_lshl_add_u32 v24, v17, 8, v24")
A("s_lshl_b32 s%d, s%d, 13" % (sT1, sW))
A("s_add_u32 s%d, s%d, %d" % (sT2, sT1, L_K))
for t in range(4): A("v_xor_b32 v%d, %d, v24" % (18 + t, 64 * t))
for t in range(4): A("v_add_u32 v%d, s%d, v%d" % (18 + t, sT2, 18 + t))
VA = W + 32
A("v_lshrrev_b32 v24, 2, v%d" % vLANE)
A("v_and_b32 v25, 7, v24")
A("v_lshlrev_b32 v25, 1, v25")
A("v_bfe_u32 v26, v%d, 1, 1" % vLANE)
A("v_xor_b32 v25, v25, v26")
A("v_lshlrev_b32 v25, 4, v25")
A("v_lshl_add_u32 v25, v24, 8, v25")
A("v_and_b32 v26, 1, v%d" % vLANE)
A("v_lshl_add_u32 v25, v26, 3, v25")
A("s_add_u32 s%d, s%d, %d" % (sT2, sT1, L_V))
for t in range(8): A("v_xor_b32 v%d, %d, v25" % (VA + t, 32 * t))
for t in range(8): A("v_add_u32 v%d, s%d, v%d" % (VA + t, sT2, VA + t))
soff(sT4, [(sJ, 19), (sA, 17), (sW, 15), (sC, 7)], 0)
A("s_lshl_b32 s%d, s%d, 12" % (sT5, sW))
A("s_add_u32 s%d, s%d, %d" % (sT5, sT5, L_WO))
soff(sT3, [(sA, 10), (sC, 7)], 0)
A("v_lshlrev_b32 v24, 5, v%d" % vLANE)
A("s_lshl_b32 s%d, s%d, 10" % (sT2, sW))
A("s_add_u32 s%d, s%d, %d" % (sT2, sT2, L_QF))
A("v_add_u32 v25, s%d, v%d" % (sT2, vL16))
A("v_add_u32 v26, %d, v%d" % (L_QF, vL16))
STAMP(12)
if DIAG: A("v_mov_b32 v31, v30")
QP = W
def q0_issue(QP=QP):
    A("buffer_load_dwordx4 %s, v24, %s, s%d offen sc1" % (vr(QP, 4), sr(sWS, 4), sQL))
    A("buffer_load_dwordx4 %s, v24, %s, s%d offen offset:16 sc1" % (vr(QP + 4, 4), sr(sWS, 4), sQL))
def flag_block():
    if True:
        A("s_cmp_lg_u32 s%d, 0" % sW)
        A("s_cbranch_scc1 Lnoflag")
        C("every sentinel store of this workgroup is acknowledged: announce it")
        lds_spin(8, 4, vT)
        A("v_mov_b32 v16, s%d" % sTG1)
        A("v_mov_b32 v17, s%d" % sXCC)
        soff(sT1, [(2, 4)], FB)
        A("v_mov_b32 v21, 0")
        A("s_mov_b64 exec, 1")
        A("buffer_store_dwordx2 v[16:17], v21, %s, s%d offen sc1" % (sr(sWS, 4), sT1))
        A("s_mov_b64 exec, -1")
        LB("Lnoflag")
C("coefficients landed -> tell the helpers")
young = D1 - DC + 1
told = False
if ECO:
    A("s_waitcnt vmcnt(%d)" % young); lds_arrive(24, vT); told = True
A("s_mov_b32 s%d, 0" % sY)
for i in range(D1, 16):
    dp = DEPTH if i < TAILI else TAILD
    extra = 1 if i == 16 - QV else 0
    if ADP and told:
        C("stay shallow until the helpers have issued their q stores")
        A("s_cmp_lg_u32 s%d, 0" % sY)
        A("s_cbranch_scc1 Ldp%d" % i)
        A("ds_read_b32 v%d, v%d offset:52" % (vT, vFL))
        A("s_waitcnt lgkmcnt(0)")
        A("v_readfirstlane_b32 s%d, v%d" % (sT1, vT))
        A("s_cmp_ge_u32 s%d, 4" % sT1)
        A("s_cselect_b32 s%d, 1, 0" % sY)
        A("s_cbranch_scc1 Ldp%d" % i)
        A("s_waitcnt vmcnt(%d)" % (dp - 1 - 2 * extra))
        LB("Ldp%d" % i)
        A("s_waitcnt vmcnt(%d)" % (ADP - 1 - 2 * extra))
        if extra: q0_issue(); young += 2
    else:
        if extra:
            A("s_waitcnt vmcnt(%d)" % (dp - 2)); q0_issue(); young += 2
            if DIAG:
                A("s_memrealtime s[42:43]"); A("s_waitcnt lgkmcnt(0)"); A("v_writelane_b32 v31, s42, 9")
        if QV2 and i == 16 - QV2:
            A("s_waitcnt vmcnt(%d)" % (dp - 2)); q0_issue(XR); young += 2
        A("s_waitcnt vmcnt(%d)" % (dp - 1))
    if not told and young >= dp - 1:
        lds_arrive(24, vT); told = True
    kv_issue(i); young += 1
assert told
q0_issue(QP + 8)
C("everything older than the V loads is complete: K, late sentinels")
A("s_waitcnt vmcnt(%d)" % (14 if QV2 else 12))
lds_arrive(8, vT)
A("s_waitcnt lgkmcnt(0)")
tags()
A("s_or_b32 s%d, s%d, s%d" % (sXCC, sXCC, sTG2))
STAMP(1)
MP("kl")
for t in range(4):
    for T in range(2):
        A("ds_read_b128 %s, v%d offset:%d" % (vr(KF + 16 * T + 4 * t, 4), 18 + t, 4096 * T))
flag_block()
def wait_w0(n):
    uid[0] += 1
    A("s_cmp_eq_u32 s%d, 0" % sW)
    A("s_cbranch_scc1 Lww%d" % uid[0])
    A("s_waitcnt vmcnt(%d)" % n)
    LB("Lww%d" % uid[0])
    A("s_waitcnt vmcnt(%d)" % (n + 1))
wait_w0(QV + 2 + (2 if QV2 else 0))
STAMP(2)
A("s_setprio 2")
A("s_mov_b32 s%d, %s" % (sCNT, hx(SPIN)))
A("s_mov_b32 s%d, 0" % sY)
A("s_mov_b32 s%d, 0" % sIT)
LB("Lmq")
A("v_and_b32 v16, -8, v%d" % (QP + 3))
A("v_and_b32 v17, -8, v%d" % (QP + 7))
A("v_cmp_ne_u32 vcc, s%d, v%d" % (sTG1, QP + 2))
A("v_cmp_ne_u32 %s, s%d, v%d" % (sr(sRET, 2), sTG1, QP + 6))
A("s_or_b64 vcc, vcc, %s" % sr(sRET, 2))
A("v_cmp_ne_u32 %s, s%d, v16" % (sr(sRET, 2), sTG2))
A("s_or_b64 vcc, vcc, %s" % sr(sRET, 2))
A("v_cmp_ne_u32 %s, s%d, v17" % (sr(sRET, 2), sTG2))
A("s_or_b64 vcc, vcc, %s" % sr(sRET, 2))
if not int(OPT.get("nochk", 0)): A("s_cbranch_vccnz Lmqr")
LB("Lmqd")
if DIAG:
    A("s_sub_u32 s%d, s%d, s%d" % (sT0, sCNT, sY)); A("v_writelane_b32 v31, s%d, 0" % sT0)
Ls = L; L = []
L.append(".p2align 6"); LB("Lst_mq"); A("s_setpc_b64 %s" % sr(sRET, 2))
LB("Lmqr")
A("s_cmp_lg_u32 s%d, 0" % sY)
A("s_cbranch_scc1 Lmqr2")
if QV2:
    A("s_cmp_lg_u32 s%d, 0" % sIT)
    A("s_cbranch_scc1 Lmqr1")
    A("s_mov_b32 s%d, 1" % sIT)
    wait_w0(QV2 + 2)
    for k in range(8): A("v_mov_b32 v%d, v%d" % (QP + k, XR + k))
    A("s_branch Lmq")
    LB("Lmqr1")
C("first look failed: take the second one (V has landed with it: request its fragments now)")
A("s_waitcnt vmcnt(0)")
A("s_mov_b32 s%d, 1" % sY)
for k in range(8): A("v_mov_b32 v%d, v%d" % (QP + k, QP + 8 + k))
if not VLATE:
    for t in range(8):
        for hf in range(2):
            A("ds_read_b64_tr_b16 %s, v%d offset:%d" % (vr(VF + 4 * t + 2 * hf, 2), VA + t, 4096 * hf))
A("s_branch Lmq")
LB("Lmqr2")
C("still not there: poll the plain copy a few times, then both copies in turn")
A("s_cmp_le_u32 s%d, %s" % (sCNT, hx(SPIN - 6)))
A("s_cselect_b32 s%d, %s, 0" % (sT0, hx(QB_DELTA)))
A("s_xor_b32 s%d, s%d, s%d" % (sQL, sQL, sT0))
q0_issue()
A("s_waitcnt vmcnt(0)")
A("s_sub_u32 s%d, s%d, 1" % (sCNT, sCNT))
A("s_cbranch_scc0 Lmq")
A("s_branch Lmqd")
ool.append(L); L = Ls
A("v_cmp_ne_u32 vcc, s%d, v%d" % (sXCC, QP + 3))
A("v_mov_b32 v%d, v%d" % (QP + 2, QP + 4))
A("v_mov_b32 v%d, v%d" % (QP + 3, QP + 5))
A("ds_write_b128 v25, %s" % vr(QP, 4))
A("s_cmp_eq_u64 vcc, 0")
A("s_cselect_b32 s%d, 1, 0x101" % sT0)
A("v_mov_b32 v16, s%d" % sT0)
A("s_waitcnt lgkmcnt(0)")
lds_arrive(4, 16, None)
if VLATE:
    A("s_cmp_eq_u32 s%d, 0" % sY)
    A("s_cbranch_scc1 Lnvf")
    for t in range(8):
        for hf in range(2):
            A("ds_read_b64_tr_b16 %s, v%d offset:%d" % (vr(VF + 4 * t + 2 * hf, 2), VA + t, 4096 * hf))
    LB("Lnvf")
STAMP(15)
MP("qv")
A("buffer_load_dwordx2 %s, v%d, %s, s%d offen" % (vr(RES + 2, 2), vX1S, sr(sX, 4), sT3))
FLG = W + 44
soff(sIT, [(sW, 10)], FB)
soff(sQL, [(sA, 12), (sJ, 17)], Q1_OFF)
for k in range(4):
    A("s_add_u32 s%d, s%d, %d" % (sT0, sC, k))
    A("s_and_b32 s%d, s%d, 3" % (sT0, sT0))
    A("s_lshl_b32 s%d, s%d, 10" % (sKO + k, sT0))
A("s_and_b32 s%d, s%d, 1" % (sT0, sC))
A("s_lshl_b32 s%d, s%d, 6" % (sT0, sT0))
A("v_xor_b32 v22, s%d, v22" % sT0); A("v_xor_b32 v23, s%d, v23" % sT0)
A("s_lshl_b32 s%d, s%d, 2" % (sT3, sM))
A("s_add_u32 s%d, s%d, s%d" % (sT3, sT3, sW))
A("s_lshl_b32 s%d, s%d, 8" % (sT3, sT3))
A("v_lshlrev_b32 v21, 7, v%d" % vLANE)
A("v_add_u32 v21, s%d, v21" % sT3)
A("s_lshl_b32 s%d, s%d, 7" % (sT0, sW))
A("s_add_u32 s%d, s%d, %d" % (sT0, sT0, LSE_OFF[0]))
A("v_writelane_b32 v21, s%d, 2" % sT0)
lds_spin(4, 4, vT, mask=0xff)
A("s_cmp_lt_u32 s%d, 256" % sT1)
A("s_cselect_b32 s%d, %d, 0" % (sFAST, int(OPT.get("fast", 1))))
QF = W + 16
for t in range(4):
    A("ds_read_b128 %s, v26 offset:%d" % (vr(QF + 4 * t, 4), 1024 * t))
S = W
qk = []
for t in range(4):
    for T in range(2):
        qk.append(mf(S + 4 * T, KF + 16 * T + 4 * t, QF + 4 * t, None if t == 0 else S + 4 * T))
for t in range(4):
    A("s_waitcnt lgkmcnt(%d)" % (3 - t))
    A(qk[2 * t]); A(qk[2 * t + 1])
def wo_issue():
    C("every wave holds its K fragments: the wo tile may land in the K area")
    for k in range(4):
        A("s_add_u32 m0, s%d, s%d" % (sT5, sKO + k))
        A("s_lshl3_add_u32 s%d, s%d, s%d" % (sT0, sKO + k, sT4))
        A("buffer_load_dwordx4 v%d, %s, s%d offen nt lds" % (22 + (k & 1), sr(sWO, 4), sT0))
if WOP == 0: wo_issue()
if PRET:
    C("bring the first layer's o / lse lines (their sentinels are in place) into L2")
    A("s_mov_b64 exec, 7")
    A("buffer_load_dword v%d, v21, %s, s%d offen sc1" % (W + 40, sr(sWS, 4), sGR))
    A("s_mov_b64 exec, -1")
STAMP(3)
A("s_branch Lk_go")

LB("Llnq")
C("LayerNorm of the row held in XR, then q partial = xn @ wq tile")
X = W
row_stats(XR, vT, X)
A("v_add_f32 v%d, %s, v%d" % (vT + 1, EPS, vT + 1))
A("v_rsq_f32 v%d, v%d" % (vT + 2, vT + 1))
A("s_cmp_eq_u32 s%d, 0" % sLAY)
A("v_mul_f32 v%d, v%d, v%d" % (vT + 3, vT, vT + 2))
for i in range(4):
    A("v_pk_fma_f32 %s, %s, %s, %s op_sel:[0,0,1] op_sel_hi:[1,0,1] neg_lo:[0,0,1] neg_hi:[0,0,1]" % (vr(X + 2 * i, 2), vr(X + 2 * i, 2), vr(vT + 2, 2), vr(vT + 2, 2)))
for i in range(4):
    A("v_cvt_pk_bf16_f32 v%d, v%d, v%d" % (X + 8 + i, X + 2 * i, X + 2 * i + 1))
A("ds_write_b128 v%d, %s" % (vXNW, vr(X + 8, 4)))
A("s_cbranch_scc1 Lq_first")
A("s_waitcnt lgkmcnt(0)")
A("s_barrier")
LB("Lq_go")
BF = W + 16
for t in range(4):
    A("ds_read_b128 %s, v%d offset:%d" % (vr(BF + 4 * t, 4), vXNR, 64 * t))
for t in range(4):
    A("s_waitcnt lgkmcnt(%d)" % (3 - t))
    mfma(W, WQF + 4 * t, BF + 4 * t, None if t == 0 else W)
A("s_cmp_eq_u32 s%d, 0" % sLAY)
A("s_mov_b64 exec, %s" % sr(sMSK, 2))
NOP(6)
A("v_cvt_pk_bf16_f32 v%d, v%d, v%d" % (W + 4, W, W + 1))
A("v_cvt_pk_bf16_f32 v%d, v%d, v%d" % (W + 5, W + 2, W + 3))
A("s_cbranch_scc1 Lh_qst")
fastcmp()
store_local("buffer_store_dwordx2", vr(W + 4, 2), vQST, sQS)
A("s_mov_b64 exec, -1")
A("ds_write_b128 v%d, %s offset:%d" % (vXNW, vr(XR, 4), L_X2 - L_XN))
A("s_mov_b32 s%d, 0" % sY)
for s, d in [(sOL, O_OFF[1] - O_OFF[0]), (sOS, O_OFF[1] - O_OFF[0]), (sLS, LSE_OFF[1] - LSE_OFF[0]), (sPS, P_L)]:
    A("s_add_u32 s%d, s%d, %d" % (s, s, d))
STAMP(2)

C("attention over this workgroup's 128 keys")
if QS:
    C("each wave fetches one k-step of q and shares it through LDS")
    A("s_lshl_b32 s%d, s%d, 10" % (sT3, sW))
    A("s_add_u32 s%d, s%d, s%d" % (sT4, sQL, sT3))
    A("s_add_u32 s%d, s%d, %d" % (sT3, sT3, L_RB + 12288))
    A("v_add_u32 v25, s%d, v%d" % (sT3, vL16))
    A("v_add_u32 v26, %d, v%d" % (L_RB + 12288, vL16))
    ppoll(lambda k: A("buffer_load_dwordx4 %s, v%d, %s, s%d offen sc1" % (vr(W + 32 + 4 * k, 4), vL16, sr(sWS, 4), sT4)),
          lambda k: range(W + 32 + 4 * k, W + 36 + 4 * k), 1, vT, lambda k: ["ds_write_b128 v25, %s" % vr(W + 32 + 4 * k, 4)], pre=QPRE, gap=QGAP, tag=0)
    A("s_waitcnt lgkmcnt(0)")
    A("s_barrier")
    for t in range(4):
        A("ds_read_b128 %s, v26 offset:%d" % (vr(QF + 4 * t, 4), 1024 * t))
    for t in range(4):
        A("s_waitcnt lgkmcnt(%d)" % (3 - t))
        A(qk[2 * t]); A(qk[2 * t + 1])
    touch_stub("k")
else:
    def iq(k):
        for t in range(4):
            A("buffer_load_dwordx4 %s, v%d, %s, s%d offen offset:%d sc1" % (vr(QF + 16 * k + 4 * t, 4), vL16, sr(sWS, 4), sQL, 1024 * t))
    def qks(k):
        return [mf(S + 4 * T, KF + 16 * T + 4 * t, QF + 16 * k + 4 * t, None if t == 0 else S + 4 * T) for t in range(4) for T in range(2)]
    ppoll(iq, lambda k: range(QF + 16 * k, QF + 16 * k + 16), 4, vT, qks, pre=QPRE, gap=QGAP, tag=0, stub="k", per_load=lambda k, i: qks(k)[2 * i:2 * i + 2])
STAMP(3)
LB("Lk_go")
NOP(5)
for ctl in ["row_ror:4", "row_ror:8"]:
    for i in range(8):
        A("v_add_f32_dpp v%d, v%d, v%d %s row_mask:0xf bank_mask:0xf" % (S + i, S + i, S + i, ctl))
A("v_max3_f32 v%d, v%d, v%d, v%d" % (vT, S, S + 1, S + 2))
A("v_max3_f32 v%d, v%d, v%d, v%d" % (vT + 1, S + 3, S + 4, S + 5))
A("v_max3_f32 v%d, v%d, v%d, v%d" % (vT, vT, S + 6, S + 7))
A("v_max_f32 v%d, v%d, v%d" % (vT, vT, vT + 1))
A("v_mov_b32 v%d, v%d" % (vT + 1, vT))
A("s_nop 1")
A("v_permlane16_swap_b32 v%d, v%d" % (vT, vT + 1))
A("v_max_f32 v%d, v%d, v%d" % (vT, vT, vT + 1))
A("v_mov_b32 v%d, v%d" % (vT + 1, vT))
A("s_nop 1")
A("v_permlane32_swap_b32 v%d, v%d" % (vT, vT + 1))
A("v_max_f32 v%d, v%d, v%d" % (vT, vT, vT + 1))
A("v_mul_f32 v%d, s%d, v%d" % (vT + 2, sSC, vT))
for i in range(8):
    A("v_fma_f32 v%d, v%d, s%d, -v%d" % (S + i, S + i, sSC, vT + 2))
for i in range(8):
    A("v_exp_f32 v%d, v%d" % (S + i, S + i))
for p in range(4):
    A("s_mov_b64 exec, %s" % sr(sPM + 2 * p, 2))
    for i in range(4):
        A("v_cvt_pk_bf16_f32 v%d, v%d, v%d" % (PM + 4 * p + i, S + 2 * i, S + 2 * i + 1))
A("s_mov_b64 exec, -1")
STAMP(4)
A("s_cmp_lg_u32 s%d, 0" % sLAY)
A("s_cbranch_scc1 Lv_go")
wait_w0((5 if WOP == 0 else 1) + PRET)
if WOP == 1: wo_issue()
A("buffer_load_dwordx4 %s, v%d, %s, s%d offen sc1" % (vr(FLG, 4), vL16, sr(sWS, 4), sIT))
STAMP(6)
A("s_cmp_lg_u32 s%d, 0" % sY)
A("s_cbranch_scc1 Lv_have")
for t in range(8):
    for hf in range(2):
        A("ds_read_b64_tr_b16 %s, v%d offset:%d" % (vr(VF + 4 * t + 2 * hf, 2), VA + t, 4096 * hf))
A("s_waitcnt lgkmcnt(0)")
LB("Lv_have")
if TOT:
    A("s_memrealtime s[42:43]"); A("s_waitcnt lgkmcnt(0)"); A("s_mov_b32 s97, s42")
MP("pv")
if MEAS and OPT["q"] in ("tg", "s1"): A("s_mov_b32 s97, s98")
A("s_cmp_lg_u32 s%d, 0" % sLAY)
LB("Lv_go")
OA = W + 8
mfma(W + 16, ONES, PM, None)
for p in range(4):
    for T in range(2):
        mfma(OA + 4 * T, VF + 4 * (2 * p + T), PM + 4 * p, None if p == 0 else OA + 4 * T)
A("s_mov_b64 exec, %s" % sr(sMSK, 2))
A("v_mov_b32 v%d, v%d" % (vT + 3, W + 16))
A("ds_write_b64 v%d, %s" % (vMLW, vr(vT + 2, 2)))
A("s_mov_b64 exec, -1")
NOP(3)
A("ds_write_b128 v%d, %s" % (vRBW, vr(OA, 4)))
A("ds_write_b128 v%d, %s offset:64" % (vRBW, vr(OA + 4, 4)))
A("s_waitcnt lgkmcnt(0)")
A("s_cbranch_scc1 Lrb_bar")
lds_arrive(12, vT + 4)
if WOP == 2: wo_issue()
lds_spin(12, 4, vT + 4)
A("s_branch Lrb_go")
LB("Lrb_bar")
A("s_barrier")
LB("Lrb_go")
A("ds_read_b128 %s, v%d" % (vr(W, 4), vMLR))
A("ds_read_b128 %s, v%d offset:16" % (vr(W + 4, 4), vMLR))
for w in range(4):
    A("ds_read_b64 %s, v%d offset:%d" % (vr(W + 8 + 2 * w, 2), vRBR, RBS * w))
A("v_mov_b32 v%d, 0" % (vT + 4))
fastcmp()
A("s_waitcnt lgkmcnt(4)")
A("v_max3_f32 v%d, v%d, v%d, v%d" % (vT, W, W + 2, W + 4))
A("v_max_f32 v%d, v%d, v%d" % (vT, vT, W + 6))
for w in range(4): A("v_sub_f32 v%d, v%d, v%d" % (W + 2 * w, W + 2 * w, vT))
for w in range(4): A("v_exp_f32 v%d, v%d" % (W + 2 * w, W + 2 * w))
A("v_mul_f32 v%d, v%d, v%d" % (vT + 1, W, W + 1))
for w in range(1, 4): A("v_fmac_f32 v%d, v%d, v%d" % (vT + 1, W + 2 * w, W + 2 * w + 1))
A("s_waitcnt lgkmcnt(0)")
A("v_pk_mul_f32 %s, %s, %s op_sel_hi:[1,0]" % (vr(W + 8, 2), vr(W + 8, 2), vr(W, 2)))
A("v_rcp_f32 v%d, v%d" % (vT + 2, vT + 1))
A("v_pk_fma_f32 %s, %s, %s, %s op_sel_hi:[1,0,1]" % (vr(W + 8, 2), vr(W + 10, 2), vr(W + 2, 2), vr(W + 8, 2)))
A("v_log_f32 v%d, v%d" % (vT + 5, vT + 1))
for w in range(2, 4):
    A("v_pk_fma_f32 %s, %s, %s, %s op_sel_hi:[1,0,1]" % (vr(W + 8, 2), vr(W + 8 + 2 * w, 2), vr(W + 2 * w, 2), vr(W + 8, 2)))
A("v_pk_mul_f32 %s, %s, %s op_sel_hi:[1,0]" % (vr(W + 8, 2), vr(W + 8, 2), vr(vT + 2, 2)))
A("v_add_f32 v%d, v%d, v%d" % (vT + 5, vT + 5, vT))
A("v_cvt_pk_bf16_f32 v%d, v%d, v%d" % (W + 8, W + 8, W + 9))
store_local("buffer_store_dword", "v%d" % (W + 8), vOST, sOS)
A("s_mov_b64 exec, 1")
store_local("buffer_store_dword", "v%d" % (vT + 5), vT + 4, sLS)
A("s_mov_b64 exec, -1")
STAMP(5)

C("wo phase: wave = batch, rows = key splits")
OF = W; LS = W + 32; DA = WQF
assert LSE_OFF[1] - O_OFF[1] == LSE_OFF[0] - O_OFF[0]
def io(k):
    for t in range(4):
        A("buffer_load_dwordx4 %s, v%d, %s, s%d offen offset:%d sc1" % (vr(OF + 16 * k + 4 * t, 4), [vLSE, vLS2, vOLD, vOLD][t], sr(sWS, 4), sOL, 512 * t))
A("s_cmp_lg_u32 s%d, 0" % sLAY)
A("s_cbranch_scc1 Lo_go")
C("first layer: wo tile landed -> fragments; every workgroup has announced its clears")
if WOP == 3: wo_issue()
A("s_waitcnt vmcnt(%d)" % (2 if WOP < 3 else 0))
STAMP(13)
A("s_mov_b32 s%d, %s" % (sT4, hx(SPIN)))
LB("Lap")
A("v_and_b32 v24, -8, v%d" % (FLG + 1))
A("v_cmp_ne_u32 vcc, s%d, v%d" % (sTG1, FLG))
A("v_cmp_ne_u32 %s, s%d, v24" % (sr(sH, 2), sTG2))
A("s_or_b64 vcc, vcc, %s" % sr(sH, 2))
A("s_cbranch_vccnz Lar")
LB("Lad")
lds_arrive(16, 24)
for i in range(2):
    A("v_lshlrev_b32 v%d, 16, v%d" % (W + 40 + 2 * i, RES + 2 + i))
    A("v_and_b32 v%d, 0xffff0000, v%d" % (W + 41 + 2 * i, RES + 2 + i))
for i in range(4): A("v_mov_b32 v%d, v%d" % (RES + i, W + 40 + i))
for ct in range(4): A("v_xor_b32 v%d, %d, v%d" % (W + 40 + ct, 32 * ct, vWT))
for ct in range(4): A("v_add_u32 v%d, %d, v%d" % (W + 40 + ct, L_WO, W + 40 + ct))
lds_spin(16, 4, 24)
STAMP(14)
A("s_mov_b32 s%d, 1" % sY)
LB("Lo_go")
A("s_mov_b32 s%d, 0x55555555" % sT4)
A("s_mov_b32 s%d, 0x55555555" % sT5)
def pre_o():
    A("s_cmp_eq_u32 s%d, 0" % sY)
    A("s_cbranch_scc1 Lo_nof")
    A("s_mov_b32 s%d, 0" % sY)
    for t in range(4):
        for ct in range(4):
            for hf in range(2):
                A("ds_read_b64_tr_b16 %s, v%d offset:%d" % (vr(WOF + 16 * ct + 4 * t + 2 * hf, 2), W + 40 + ct, 4096 * t + 512 * hf))
    LB("Lo_nof")
ool.append(["Lar:", "    s_lshl_b32 s%d, s%d, 10" % (sT5, sW), "    s_add_u32 s%d, s%d, %s" % (sT5, sT5, hx(FB)),
            "    buffer_load_dwordx4 %s, v%d, %s, s%d offen sc1" % (vr(FLG, 4), vL16, sr(sWS, 4), sT5),
            "    s_waitcnt vmcnt(0)", "    s_sub_u32 s%d, s%d, 1" % (sT4, sT4), "    s_cbranch_scc0 Lap", "    s_branch Lad"])
C("softmax over the 8 key splits: lanes n>=8 hold own lse in OF[0:3], the other four in OF[4:7]")
vU = vT + 2
def wo_all(k, t):
    o = OF + 16 * k
    m = [mf(DA + 4 * ct, o + 4 * t, WOF + 16 * ct + 4 * t, None if t == 0 else DA + 4 * ct) for ct in range(4)]
    va = ["v_max3_f32 v%d, v%d, v%d, v%d" % (vU, o, o + 1, o + 2), "v_max3_f32 v%d, v%d, v%d, v%d" % (vU + 1, o + 3, o + 4, o + 5),
          "v_max3_f32 v%d, v%d, v%d, v%d" % (vU, vU, o + 6, o + 7), "v_max_f32 v%d, v%d, v%d" % (vU, vU, vU + 1)]
    va += ["v_sub_f32 v%d, v%d, v%d" % (LS + i, o + i, vU) for i in range(4)]
    va += ["v_exp_f32 v%d, v%d" % (LS + i, LS + i) for i in range(4)]
    vb = ["v_mov_b32_dpp v%d, v%d row_ror:8 row_mask:0xf bank_mask:0x3" % (LS + i, LS + i) for i in range(4)]
    vb += ["v_add_f32 v%d, v%d, v%d" % (vU, LS, LS + 1), "v_add_f32 v%d, v%d, v%d" % (vU + 1, LS + 2, LS + 3),
           "v_add_f32 v%d, v%d, v%d" % (vU, vU, vU + 1), "v_mov_b32 v%d, v%d" % (vU + 1, vU)]
    f = {0: [], 1: va[:4], 2: va[4:], 3: vb}[t]
    out = ["s_waitcnt lgkmcnt(%d)" % [15, 15, 8, 0][t]] if t != 1 else []
    for x in m:
        out.append(x)
        for _ in range(2):
            if f: out.append(f.pop(0))
    return out
assert PROG and OGAP < 0
ppoll(io, lambda k: range(OF + 16 * k, OF + 16 * k + 16), 4, vT, None, pre=OPRE, gap=OGAP, mid=pre_o, tag=1, per_load=wo_all)
STAMP(7)
A("v_permlane16_swap_b32 v%d, v%d" % (vU, vU + 1))
A("v_mul_f32 v%d, v%d, v%d" % (DA, DA, LS))
A("v_add_f32 v%d, v%d, v%d" % (vT, vU, vU + 1))
A("v_mul_f32 v%d, v%d, v%d" % (DA + 4, DA + 4, LS))
A("v_rcp_f32 v%d, v%d" % (vT, vT))
A("v_mul_f32 v%d, v%d, v%d" % (DA + 8, DA + 8, LS))
for i in range(1, 4):
    for ct in range(3):
        A("v_fmac_f32 v%d, v%d, v%d" % (DA + 4 * ct, DA + 4 * ct + i, LS + i))
    if i == 1: A("v_mul_f32 v%d, v%d, v%d" % (DA + 12, DA + 12, LS))
for i in range(1, 4): A("v_fmac_f32 v%d, v%d, v%d" % (DA + 12, DA + 12 + i, LS + i))
A("v_permlane16_swap_b32 v%d, v%d" % (DA, DA + 4))
A("s_nop 0")
A("v_permlane16_swap_b32 v%d, v%d" % (DA + 8, DA + 12))
A("v_add_f32 v%d, v%d, v%d" % (DA, DA, DA + 4))
A("v_add_f32 v%d, v%d, v%d" % (DA + 8, DA + 8, DA + 12))
A("s_nop 1")
A("v_permlane32_swap_b32 v%d, v%d" % (DA, DA + 8))
A("v_mul_f32 v%d, v%d, v%d" % (DA, DA, vT))
A("s_cmp_lg_u32 s%d, 0" % sLAY)
A("s_nop 0")
A("v_mov_b32_dpp v%d, v%d quad_perm:[1,0,3,2] row_mask:0xf bank_mask:0xf" % (DA + 1, DA))
A("s_mov_b64 exec, %s" % sr(sT4, 2))
A("v_cvt_pk_bf16_f32 v%d, v%d, v%d" % (DA, DA, DA + 1))
A("buffer_store_dword v%d, v%d, %s, s%d offen sc1" % (DA, vPST, sr(sWS, 4), sPS))
A("s_mov_b64 exec, -1")
STAMP(8)
A("s_cbranch_scc1 Lfinal")
MP("p0")

if PRET:
    C("same for the remaining lines of the group's mailboxes")
    soff(sT1, [(sM, 11), (sW, 9), (sJ, 17)], CLRB_OFF)
    A("v_lshlrev_b32 v21, 7, v%d" % vLANE)
    A("s_mov_b64 exec, 15")
    A("buffer_load_dword v%d, v21, %s, s%d offen sc1" % (W + 47, sr(sWS, 4), sT1))
    A("s_mov_b64 exec, -1")
A("s_cmp_lg_u32 s%d, 0" % sW)
A("s_cbranch_scc1 Ltab")
C("stage 1 (wave 0): reduce 32 head partials of 64 outputs, add residual, publish x1 slice")
soff(sT1, [(sA, 15), (sC, 12)], PB)
soff(sT2, [(sA, 10), (sC, 7), (sJ, 17)], X1_OFF)
A("s_mov_b32 s%d, 0x00ff00ff" % sT4)
A("s_mov_b32 s%d, 0" % sT5)
def ip(k):
    for i in range(4):
        A("buffer_load_dwordx4 %s, v%d, %s, s%d offen offset:%d sc1" % (vr(W + 20 * k + 4 * i, 4), vL16, sr(sWS, 4), sT1, 1024 * i))
if GW: A("s_waitcnt vmcnt(0)")
ppoll(ip, lambda k: range(W + 20 * k, W + 20 * k + 16), 4, vT, lambda k: [mf(W + 16, SEL, W + 20 * k + 4 * i, None if i == 0 else W + 16) for i in range(4)], pre=GPRE, gap=GGAP, tag=2,
      per_load=lambda k, i: [mf(W + 16, SEL, W + 20 * k + 4 * i, None if i == 0 else W + 16)])
STAMP(9)
MP("s1")
fastcmp()
NOP(3)
for i in range(4):
    A("v_add_f32_dpp v%d, v%d, v%d row_ror:8 row_mask:0xf bank_mask:0xf" % (W + 16 + i, W + 16 + i, W + 16 + i))
A("s_mov_b64 exec, %s" % sr(sT4, 2))
A("v_pk_add_f32 %s, %s, %s" % (vr(W + 16, 2), vr(W + 16, 2), vr(RES, 2)))
A("v_pk_add_f32 %s, %s, %s" % (vr(W + 18, 2), vr(W + 18, 2), vr(RES + 2, 2)))
A("v_cvt_pk_bf16_f32 v%d, v%d, v%d" % (W + 16, W + 16, W + 17))
A("v_cvt_pk_bf16_f32 v%d, v%d, v%d" % (W + 17, W + 18, W + 19))
store_local("buffer_store_dwordx2", vr(W + 16, 2), vX1S, sT2)
A("s_mov_b64 exec, -1")
LB("Ltabdone")
soff(sT3, [(sW, 10), (sJ, 17)], X1_OFF)
def ix(k):
    A("buffer_load_dwordx4 %s, v%d, %s, s%d offen sc1" % (vr([XR, RES][k], 4), vL16, sr(sWS, 4), sT3))
wqf_reads()
ppoll(ix, lambda k: range([XR, RES][k], [XR, RES][k] + 4), 1, vT, lambda k: ["s_waitcnt lgkmcnt(0)", "v_readfirstlane_b32 s%d, v%d" % (sT1, vT + 2)],
      pre=XPRE, gap=XGAP, mid=lambda: A("ds_read_b32 v%d, v%d offset:20" % (vT + 2, vFL)), tag=3,
      fix=["v_mov_b32 v%d, v%d" % (XR + i, RES + i) for i in range(4)])
A("s_cmp_lt_u32 s%d, 3" % sT1)
A("s_cbranch_scc1 Ltw")
LB("Ltwd")
STAMP(10)

LB("Lmix")
C("x <- x + g(LN(LN(x))) ; g is tabulated for every bf16 input in range, evaluated directly otherwise")
X = W; HB = W + 8; RT = W + 12; AD = W + 16; Y = W + 24
row_stats(XR, vT, X)
A("v_add_f32 v%d, %s, v%d" % (vT + 2, EPS, vT + 1))
A("v_rsq_f32 v%d, v%d" % (vT + 2, vT + 2))
A("v_mov_b32 v%d, %s" % (vT + 4, hx(LO2 | (LO2 << 16))))
A("s_movk_i32 s%d, %d" % (sT5, NENT * 4))
A("v_mul_f32 v%d, v%d, v%d" % (vT + 1, vT + 1, vT + 2))
A("v_fmaak_f32 v%d, v%d, v%d, %s" % (vT + 1, vT + 1, vT + 2, EPS))
A("v_rsq_f32 v%d, v%d" % (vT + 1, vT + 1))
A("s_nop 0")
A("v_mul_f32 v%d, v%d, v%d" % (vT + 2, vT + 2, vT + 1))
A("v_mul_f32 v%d, v%d, v%d" % (vT + 3, vT, vT + 2))
for i in range(4):
    A("v_pk_fma_f32 %s, %s, %s, %s op_sel:[0,0,1] op_sel_hi:[1,0,1] neg_lo:[0,0,1] neg_hi:[0,0,1]" % (vr(AD + 2 * i, 2), vr(X + 2 * i, 2), vr(vT + 2, 2), vr(vT + 2, 2)))
for i in range(4):
    A("v_cvt_pk_bf16_f32 v%d, v%d, v%d" % (HB + i, AD + 2 * i, AD + 2 * i + 1))
for i in range(4):
    A("v_pk_lshlrev_b16 v%d, 1, v%d op_sel_hi:[0,1]" % (RT + i, HB + i))
    A("v_pk_lshrrev_b16 v%d, 15, v%d op_sel_hi:[0,1]" % (AD + i, HB + i))
for i in range(4):
    A("v_or_b32 v%d, v%d, v%d" % (RT + i, RT + i, AD + i))
for i in range(4):
    A("v_pk_sub_u16 v%d, v%d, v%d" % (RT + i, RT + i, vT + 4))
for i in range(4):
    A("v_lshlrev_b32_sdwa v%d, 2, v%d dst_sel:DWORD dst_unused:UNUSED_PAD src0_sel:DWORD src1_sel:WORD_0" % (AD + 2 * i, RT + i))
    A("v_lshlrev_b32_sdwa v%d, 2, v%d dst_sel:DWORD dst_unused:UNUSED_PAD src0_sel:DWORD src1_sel:WORD_1" % (AD + 2 * i + 1, RT + i))
    A("ds_read_b32 v%d, v%d offset:%d" % (Y + 2 * i, AD + 2 * i, L_TAB))
    A("ds_read_b32 v%d, v%d offset:%d" % (Y + 2 * i + 1, AD + 2 * i + 1, L_TAB))
A("v_max3_u32 v%d, v%d, v%d, v%d" % (vT, AD, AD + 1, AD + 2))
A("v_max3_u32 v%d, v%d, v%d, v%d" % (vT + 1, AD + 3, AD + 4, AD + 5))
A("v_max3_u32 v%d, v%d, v%d, v%d" % (vT, vT, AD + 6, AD + 7))
A("v_max_u32 v%d, v%d, v%d" % (vT, vT, vT + 1))
A("v_cmp_le_u32 %s, s%d, v%d" % (sr(sH, 2), sT5, vT))
A("s_waitcnt lgkmcnt(5)")
A("v_max3_u32 v%d, v%d, v%d, v%d" % (vT, Y, Y + 1, Y + 2))
A("s_waitcnt lgkmcnt(2)")
A("v_max3_u32 v%d, v%d, v%d, v%d" % (vT + 1, Y + 3, Y + 4, Y + 5))
A("s_waitcnt lgkmcnt(0)")
A("v_max3_u32 v%d, v%d, v%d, v%d" % (vT, vT, Y + 6, Y + 7))
A("v_max_u32 v%d, v%d, v%d" % (vT, vT, vT + 1))
A("v_cmp_eq_u32 vcc, -1, v%d" % vT)
LB("Lslowdone")
for i in range(4):
    A("v_pk_add_f32 %s, %s, %s" % (vr(vT + 2 + 2 * i, 2), vr(X + 2 * i, 2), vr(Y + 2 * i, 2)))
A("s_or_b64 vcc, vcc, %s" % sr(sH, 2))
A("s_cbranch_vccnz Lslow")
A("s_cmp_lg_u32 s%d, 0" % sLAY)
for i in range(4):
    A("v_cvt_pk_bf16_f32 v%d, v%d, v%d" % (XR + i, vT + 2 + 2 * i, vT + 3 + 2 * i))
STAMP(11)
A("s_cbranch_scc1 Lout")
A("s_mov_b32 s%d, 1" % sLAY)
if TOT or MEAS: A("s_memrealtime s[100:101]")
if DIAG: A("v_mov_b32 v28, v30")
A("s_branch Llnq")

L.append(".p2align 6"); LB("Lst_fin"); A("s_setpc_b64 %s" % sr(sRET, 2)); stubs.append("fin")
LB("Lfinal")
A("s_cmp_ge_u32 s2, 4")
A("s_cbranch_scc1 Lepoch")
C("workgroup b: reduce the 32 head partials of row b, add x2, mixer, store")
soff(sT1, [(2, 15), (sW, 13)], PB + P_L)
A("s_add_u32 s%d, s%d, 4096" % (sT2, sT1))
A("s_mul_i32 s%d, s2, %d" % (sT0, XS))
A("s_lshl_b32 s%d, s%d, 8" % (sT3, sW))
A("s_add_u32 s%d, s%d, s%d" % (sT0, sT0, sT3))
A("s_add_u32 s%d, s%d, %d" % (sT0, sT0, L_X2))
A("v_add_u32 v%d, s%d, v%d" % (vT + 4, sT0, vX1S))
A("s_add_u32 s%d, s%d, %d" % (sT3, sT3, L_XN))
A("v_add_u32 v%d, s%d, v%d" % (vT + 5, sT3, vX1S))
A("ds_read_b64 %s, v%d" % (vr(PM, 2), vT + 4))
A("ds_read_b64 %s, v%d offset:128" % (vr(PM + 2, 2), vT + 4))
A("s_mov_b32 s%d, 0x00ff00ff" % sT4)
A("s_mov_b32 s%d, 0" % sT5)
if XENT:
    A("s_cmp_lg_u32 s%d, 3" % sW)
    A("s_cbranch_scc1 Lfn3")
    A("ds_read_b32 v%d, v%d offset:48" % (vT, vFL))
    A("s_waitcnt lgkmcnt(0)")
    A("v_readfirstlane_b32 s%d, v%d" % (sT0, vT))
    A("s_cmp_eq_u32 s%d, 0" % sT0)
    A("s_cbranch_scc1 Lfn3")
    A("s_mov_b32 s%d, %s" % (sCNT, hx(TB)))
    for i in range(XENT * 4 // 1024):
        A("buffer_load_dwordx4 %s, v%d, %s, s%d offen offset:%d sc1" % (vr(W + 4 * i, 4), vL16, sr(sWS, 4), sCNT, 1024 * i))
    A("v_add_u32 v%d, %d, v%d" % (vT + 6, L_TAB, vL16))
    A("s_waitcnt vmcnt(0)")
    for i in range(XENT * 4 // 1024):
        A("ds_write_b128 v%d, %s offset:%d" % (vT + 6, vr(W + 4 * i, 4), 1024 * i))
    LB("Lfn3")
A("s_waitcnt lgkmcnt(0)")
if GW: A("s_waitcnt vmcnt(0)")
for i in range(4):
    A("v_lshlrev_b32 v%d, 16, v%d" % (PM + 4 + 2 * i, PM + i))
    A("v_and_b32 v%d, 0xffff0000, v%d" % (PM + 5 + 2 * i, PM + i))
if "bias" in OPT:
    for i in range(8): A("v_add_f32 v%d, %s, v%d" % (PM + 4 + i, hx(f2u(float(OPT["bias"]))), PM + 4 + i))
FS = [KF, VF]
def ifin(k):
    for i in range(8):
        A("buffer_load_dwordx4 %s, v%d, %s, s%d offen offset:%d sc1" % (vr(FS[k] + 4 * i, 4), vL16, sr(sWS, 4), sT1 if i < 4 else sT2, 1024 * (i & 3)))
def fs(k):
    o = []
    for i in range(4):
        o.append(mf(W + 32, SEL, FS[k] + 4 * i, None if i == 0 else W + 32))
        o.append(mf(W + 36, SEL, FS[k] + 16 + 4 * i, None if i == 0 else W + 36))
    return o
ppoll(ifin, lambda k: range(FS[k], FS[k] + 32), 8, vT, fs, pre=GPRE, gap=GGAP, tag=2,
      per_load=lambda k, i: [mf(W + 32 + 4 * (i >> 2), SEL, FS[k] + 4 * i, None if (i & 3) == 0 else W + 32 + 4 * (i >> 2))])
STAMP(9)
NOP(2)
for i in range(8):
    A("v_add_f32_dpp v%d, v%d, v%d row_ror:8 row_mask:0xf bank_mask:0xf" % (W + 32 + i, W + 32 + i, W + 32 + i))
A("s_mov_b64 exec, %s" % sr(sT4, 2))
for i in range(4):
    A("v_pk_add_f32 %s, %s, %s" % (vr(W + 32 + 2 * i, 2), vr(W + 32 + 2 * i, 2), vr(PM + 4 + 2 * i, 2)))
for i in range(4):
    A("v_cvt_pk_bf16_f32 v%d, v%d, v%d" % (W + 32 + i, W + 32 + 2 * i, W + 33 + 2 * i))
A("ds_write_b64 v%d, %s" % (vT + 5, vr(W + 32, 2)))
A("ds_write_b64 v%d, %s offset:128" % (vT + 5, vr(W + 34, 2)))
A("s_mov_b64 exec, -1")
A("s_cmp_lg_u32 s%d, 0" % sW)
A("s_waitcnt lgkmcnt(0)")
A("s_barrier")
A("s_cbranch_scc1 Lfin_exit")
A("ds_read_b128 %s, v%d" % (vr(XR, 4), vXNW))
A("s_waitcnt lgkmcnt(0)")
STAMP(10)
A("s_branch Lmix")
L.append(".p2align 6"); LB("Lst_out"); A("s_setpc_b64 %s" % sr(sRET, 2)); stubs.append("out")
LB("Lout")
A("s_lshl_b32 s%d, s2, 10" % sT0)
A("buffer_store_dwordx4 %s, v%d, %s, s%d offen" % (vr(XR, 4), vL16, sr(sOUT, 4), sT0))
if DBL:
    A("s_cmp_lg_u32 s2, 0")
    A("s_cbranch_scc1 Lfin_exit")
if DBL:
    A("s_waitcnt vmcnt(0)")
    A("s_memrealtime s[10:11]")
    A("s_waitcnt lgkmcnt(0)")
    A("s_sub_u32 s12, s10, s98")
    if "pad" in OPT:
        A("s_mov_b32 s10, s98"); A("s_mov_b32 s12, %d" % (100 * int(OPT["pad"])))
    LB("Ldbl")
    A("s_memrealtime s[14:15]")
    A("s_waitcnt lgkmcnt(0)")
    A("s_sub_u32 s13, s14, s10")
    A("s_cmp_lt_u32 s13, s12")
    A("s_cbranch_scc1 Ldbl")
LB("Lfin_exit")
if MEAS:
    src = {"mix": "s100", "entry": "s98"}.get(OPT["q"], "s98" if OPT["q"][0] == "h" else "s97")
    A("s_waitcnt vmcnt(0) lgkmcnt(0)")
    A("s_mov_b64 exec, 1")
    A("v_mov_b32 v16, %s" % src)
    A("s_not_b32 s10, s98")
    A("v_mov_b32 v17, s10")
    A("global_atomic_umax v[30:31], v16, off sc1")
    A("global_atomic_umax v[30:31], v17, off offset:128 sc1")
    A("s_or_b32 s10, s2, s%d" % sW)
    A("s_cmp_lg_u32 s10, 0")
    A("s_cbranch_scc1 Lend")
    LB("Lms1")
    A("s_memrealtime s[14:15]"); A("s_waitcnt lgkmcnt(0)"); A("s_sub_u32 s13, s14, s98"); A("s_cmp_lt_u32 s13, 4000"); A("s_cbranch_scc1 Lms1")
    A("global_load_dword v16, v[30:31], off sc1")
    A("global_load_dword v17, v[30:31], off offset:128 sc1")
    A("s_waitcnt vmcnt(0)")
    A("v_readfirstlane_b32 s10, v16"); A("v_readfirstlane_b32 s11, v17")
    A("s_not_b32 s11, s11"); A("s_sub_u32 s10, s10, s11"); A("s_lshl_b32 s10, s10, 2"); A("s_add_u32 s12, s10, 4200")
    A("s_min_u32 s12, s12, 20000")
    LB("Lms2")
    A("s_memrealtime s[14:15]"); A("s_waitcnt lgkmcnt(0)"); A("s_sub_u32 s13, s14, s98"); A("s_cmp_lt_u32 s13, s12"); A("s_cbranch_scc1 Lms2")
if TOT:
    A("s_waitcnt vmcnt(0)")
    A("s_memrealtime s[10:11]")
    A("s_waitcnt lgkmcnt(0)")
    A("v_mov_b32 v16, s98")
    A("v_mov_b32 v17, s10")
    A("v_mov_b32 v18, s100")
    A("v_mov_b32 v19, s97")
    soff(sT2, [(2, 6), (sW, 4)], STB)
    A("v_mov_b32 v20, 0")
    A("s_mov_b64 exec, 1")
    A("buffer_store_dwordx4 v[16:19], v20, %s, s%d offen" % (sr(sWS, 4), sT2))
if DIAG:
    A("s_waitcnt vmcnt(0)")
    STAMP(12)
    if DIAG == 2:
        A("s_or_b32 s%d, s2, s%d" % (sT0, sW))
        A("s_cmp_lg_u32 s%d, 0" % sT0)
        A("s_cbranch_scc1 Lend")
        A("v_readlane_b32 s%d, v28, 0" % sT2)
        for k, (r, i) in enumerate([(31, 10), (31, 12), (28, 1), (28, 2), (28, 6), (28, 5), (28, 7), (28, 8), (28, 9), (28, 10), (28, 11), (30, 3), (30, 5), (30, 8), (30, 9), (30, 12)]):
            A("v_readlane_b32 s%d, v%d, %d" % (sT3, r, i))
            A("s_sub_u32 s%d, s%d, s%d" % (sT3, sT3, sT2))
            A("s_nop 0")
            A("v_writelane_b32 v17, s%d, %d" % (sT3, k))
        A("v_lshlrev_b32 v16, 2, v%d" % vLANE)
        A("s_mov_b64 exec, 0xffff")
        A("global_store_dword v16, v17, s[100:101]")
        A("s_endpgm")
    soff(sT1, [(2, 10), (sW, 7)], STB)
    A("v_lshlrev_b32 v16, 2, v%d" % vLANE)
    A("s_mov_b64 exec, 0xffff")
    A("buffer_store_dword v28, v16, %s, s%d offen" % (sr(sWS, 4), sT1))
    A("buffer_store_dword v30, v16, %s, s%d offen offset:64" % (sr(sWS, 4), sT1))
    A("s_add_u32 s%d, s%d, 0x40000" % (sT1, sT1))
    A("buffer_store_dword v31, v16, %s, s%d offen" % (sr(sWS, 4), sT1))
LB("Lend")
A("s_endpgm")
LB("Lepoch")
if int(OPT.get("wb", 0)):
    A("s_cmp_lg_u32 s%d, 0" % sW)
    A("s_cbranch_scc1 Lnowb")
    A("s_waitcnt vmcnt(0)")
    A("buffer_wbl2 sc1")
    LB("Lnowb")
C("every workgroup has used the old launch tag long ago: workgroup 4 advances it")
A("s_lshl_b32 s%d, s%d, 8" % (sT0, sW))
A("s_add_u32 s%d, s%d, s2" % (sT0, sT0))
A("s_cmp_lg_u32 s%d, 4" % sT0)
A("s_cbranch_scc1 Lfin_exit")
A("v_mov_b32 v16, s%d" % sTG1)
A("v_mov_b32 v17, %s" % hx(EPO))
A("s_mov_b64 exec, 1")
A("buffer_store_dword v16, v17, %s, 0 offen sc1" % sr(sWS, 4))
A("s_mov_b64 exec, -1")
A("s_branch Lfin_exit")

L.append(".p2align 6"); LB("Lst_tab"); A("s_setpc_b64 %s" % sr(sRET, 2)); stubs.append("tab")
LB("Ltab")
C("waves 2,3: gather the main part of the g(h) table into LDS ; wave 1: the lowest octaves, best effort")
NTL = NOCT * 1024 // 2 // 1024
A("s_cmp_eq_u32 s%d, 1" % sW)
A("s_cbranch_scc1 Lext")
A("s_sub_u32 s%d, s%d, 2" % (sT1, sW))
A("s_mul_i32 s%d, s%d, %d" % (sT1, sT1, NTL * 1024))
A("s_add_u32 s%d, s%d, %d" % (sT1, sT1, XENT * 4))
A("v_add_u32 v%d, s%d, v%d" % (vT + 4, sT1, vL16))
A("v_add_u32 v%d, %d, v%d" % (vT + 4, L_TAB, vT + 4))
A("s_add_u32 s%d, s%d, %s" % (sT1, sT1, hx(TB)))
A("s_add_u32 s%d, s%d, 4096" % (sT2, sT1))
if TGW: A("s_waitcnt vmcnt(0)")
def it():
    for i in range(NTL):
        A("buffer_load_dwordx4 %s, v%d, %s, s%d offen offset:%d sc1" % (vr(W + 4 * i, 4), vL16, sr(sWS, 4), sT1 if i < 4 else sT2, 1024 * (i & 3)))
poll(it, range(W, W + 4 * NTL), vT, back="s_sleep %d" % int(OPT.get("tsl", 16)))
for i in range(NTL):
    A("ds_write_b128 v%d, %s offset:%d" % (vT + 4, vr(W + 4 * i, 4), 1024 * i))
A("s_waitcnt lgkmcnt(0)")
lds_arrive(20, vT + 4)
STAMP(9)
MP("tg")
A("s_branch Ltabdone")
def ext_load(d):
    for i in range(XENT * 4 // 1024):
        A("buffer_load_dwordx4 %s, v%d, %s, s%d offen offset:%d sc1" % (vr(d + 4 * i, 4), vL16, sr(sWS, 4), sT4, 1024 * i))
def ext_write(d):
    for i in range(XENT * 4 // 1024):
        A("ds_write_b128 v%d, %s offset:%d" % (vT + 4, vr(d + 4 * i, 4), 1024 * i))
LB("Lext")
if XENT:
    A("s_mov_b32 s%d, %s" % (sT4, hx(TB)))
    A("v_add_u32 v%d, %d, v%d" % (vT + 4, L_TAB, vL16))
    for i in range(4): A("v_mov_b32 v%d, -1" % (W + i))
    for i in range(XENT * 4 // 1024):
        A("ds_write_b128 v%d, %s offset:%d" % (vT + 4, vr(W, 4), 1024 * i))
    A("ds_write_b32 v%d, v%d offset:48" % (vFL, W))
    A("s_waitcnt lgkmcnt(0)")
lds_arrive(20, vT + 5)
if XENT:
    C("one look at the lowest octaves, skipped when x1 is already there")
    soff(sT3, [(sW, 10), (sJ, 17)], X1_OFF)
    A("s_waitcnt vmcnt(0)")
    A("buffer_load_dwordx4 %s, v%d, %s, s%d offen sc1" % (vr(XR, 4), vL16, sr(sWS, 4), sT3))
    A("s_waitcnt vmcnt(0)")
    for x in maxtree(range(XR, XR + 4), vT): A(x)
    A("v_cmp_eq_u32 vcc, -1, v%d" % vT)
    A("s_cbranch_vccz Lexx")
    A("s_mov_b32 s%d, %d" % (sCNT, int(OPT.get("xlk", 2)) - 1))
    LB("Lexl")
    A("buffer_load_dwordx4 %s, v%d, %s, s%d offen sc1" % (vr(XR, 4), vL16, sr(sWS, 4), sT3))
    if "l" in OPT.get("xs", ""): A("s_branch Ltabdone")
    ext_load(W + 32)
    A("s_waitcnt vmcnt(4)")
    for x in maxtree(range(XR, XR + 4), vT): A(x)
    A("v_cmp_eq_u32 vcc, -1, v%d" % vT)
    A("s_cbranch_vccz Lexx")
    A("s_waitcnt vmcnt(0)")
    ext_write(W + 32)
    for x in maxtree(range(W + 32, W + 48), vT): A(x)
    A("v_cmp_eq_u32 vcc, -1, v%d" % vT)
    A("s_cbranch_vccz Lexc")
    A("s_sub_u32 s%d, s%d, 1" % (sCNT, sCNT))
    A("s_cbranch_scc0 Lexl")
    A("s_branch Ltabdone")
    LB("Lexc")
    A("v_mov_b32 v%d, 0" % vT)
    A("ds_write_b32 v%d, v%d offset:48" % (vFL, vT))
    A("s_branch Ltabdone")
    LB("Lexx")
    wqf_reads()
    A("s_branch Ltw")
else:
    A("s_branch Ltabdone")
LB("Ltw")
lds_spin(20, 3, vT + 2)
A("s_branch Ltwd")

for b in ool: L += b
ool = []
LB("Lslow")
C("rare: some h lies outside the table -> evaluate g(h) directly for those lanes")
RW1 = [W + 32 + i for i in range(14)]
RB1 = [PM + i for i in range(14)]
RW2 = [16 + i for i in range(10)] + [W + 46, W + 47, PM + 14, PM + 15]
A("v_lshlrev_b32 v26, 3, v%d" % vLANE)
A("s_load_dword s%d, %s, 0" % (sB2, sr(sB2P, 2)))
for (d4, d2, s) in [([W + 32, W + 36, W + 40], W + 44, sW1), ([PM, PM + 4, PM + 8], PM + 12, sB1)]:
    for k in range(3):
        A("buffer_load_dwordx4 %s, v%d, %s, 0 offen offset:%d" % (vr(d4[k], 4), vL16, sr(s, 4), 1024 * k))
    A("buffer_load_dwordx2 %s, v26, %s, 0 offen offset:3072" % (vr(d2, 2), sr(s, 4)))
A("buffer_load_dwordx4 v[16:19], v%d, %s, 0 offen" % (vL16, sr(sW2, 4)))
A("buffer_load_dwordx4 v[20:23], v%d, %s, 0 offen offset:1024" % (vL16, sr(sW2, 4)))
A("buffer_load_dwordx2 v[24:25], v%d, %s, 0 offen offset:2048" % (vL16, sr(sW2, 4)))
A("buffer_load_dwordx2 %s, v%d, %s, 0 offen offset:2056" % (vr(W + 46, 2), vL16, sr(sW2, 4)))
A("buffer_load_dwordx2 %s, v26, %s, 0 offen offset:3072" % (vr(PM + 14, 2), sr(sW2, 4)))
A("s_waitcnt vmcnt(0) lgkmcnt(0)")
A("s_lshl_b32 s%d, s%d, 16" % (sB2, sB2))
A("s_mov_b32 s%d, 1" % sT4)
for e in range(8):
    A("v_cmp_le_u32 vcc, %d, v%d" % (NENT * 4, AD + e))
    A("v_cmp_eq_u32 %s, -1, v%d" % (sr(sH2, 2), Y + e))
    A("s_or_b64 %s, %s, vcc" % (sr(sH2, 2), sr(sH2, 2)))
    if e & 1: A("v_and_b32 v%d, 0xffff0000, v%d" % (RT + 3, HB + (e >> 1)))
    else: A("v_lshlrev_b32 v%d, 16, v%d" % (RT + 3, HB + (e >> 1)))
    LB("Lse%d" % e)
    A("s_cmp_eq_u64 %s, 0" % sr(sH2, 2))
    A("s_cbranch_scc1 Lsf%d" % e)
    A("s_ff1_i32_b64 s%d, %s" % (sT0, sr(sH2, 2)))
    A("s_nop 0")
    A("v_readlane_b32 s%d, v%d, s%d" % (sH, RT + 3, sT0))
    A("s_cmp_eq_u32 s%d, s%d" % (sH, sT4))
    A("s_cbranch_scc1 Lsg%d" % e)
    A("s_mov_b32 s%d, s%d" % (sT4, sH))
    A("s_call_b64 %s, Lgev" % sr(sRET, 2))
    LB("Lsg%d" % e)
    A("s_nop 1")
    A("v_cmp_eq_u32 vcc, s%d, v%d" % (sH, RT + 3))
    A("v_mov_b32 v%d, s%d" % (RES + 3, sY))
    A("s_andn2_b64 %s, %s, vcc" % (sr(sH2, 2), sr(sH2, 2)))
    A("v_cndmask_b32 v%d, v%d, v%d, vcc" % (Y + e, Y + e, RES + 3))
    A("s_branch Lse%d" % e)
    LB("Lsf%d" % e)
for i in range(16): A("v_mov_b32 v%d, 0" % (PM + i))
A("s_mov_b64 vcc, 0")
A("s_mov_b64 %s, 0" % sr(sH, 2))
A("s_branch Lslowdone")
LB("Lgev")
a, u, t1, z = RES, RES + 1, RES + 2, RT
A("v_mov_b32 v%d, 0" % a)
A("v_mov_b32 v%d, %s" % (RT + 1, hx(f2u(K0))))
A("v_mov_b32 v%d, %s" % (RT + 2, hx(f2u(K1))))
for p in range(14):
    for hf in range(2):
        def un(d, s):
            if hf == 0: A("v_lshlrev_b32 v%d, 16, v%d" % (d, s))
            else: A("v_and_b32 v%d, 0xffff0000, v%d" % (d, s))
        un(u, RW1[p]); un(t1, RB1[p]); un(z, RW2[p])
        A("v_fma_f32 v%d, v%d, s%d, v%d" % (u, u, sH, t1))
        A("v_mul_f32 v%d, v%d, v%d" % (t1, u, u))
        A("v_fma_f32 v%d, v%d, v%d, v%d" % (t1, t1, RT + 2, RT + 1))
        A("v_mul_f32 v%d, v%d, v%d" % (t1, t1, u))
        A("v_exp_f32 v%d, v%d" % (t1, t1))
        A("v_mul_f32 v%d, v%d, v%d" % (z, z, u))
        A("v_add_f32 v%d, 1.0, v%d" % (t1, t1))
        A("v_rcp_f32 v%d, v%d" % (t1, t1))
        A("s_nop 0")
        A("v_fmac_f32 v%d, v%d, v%d" % (a, z, t1))
A("v_mov_b32 v%d, v%d" % (u, a))
A("s_nop 1")
wave_sum2(a, u, sY, sT1)
A("s_nop 1")
A("v_mov_b32 v%d, s%d" % (a, sY))
A("v_cvt_pk_bf16_f32 v%d, v%d, v%d" % (a, a, a))
A("v_and_b32 v%d, 0xffff0000, v%d" % (a, a))
A("v_add_f32 v%d, s%d, v%d" % (a, sB2, a))
A("v_cvt_pk_bf16_f32 v%d, v%d, v%d" % (a, a, a))
A("v_and_b32 v%d, 0xffff0000, v%d" % (a, a))
A("s_nop 0")
A("v_readfirstlane_b32 s%d, v%d" % (sY, a))
A("s_nop 3")
A("s_setpc_b64 %s" % sr(sRET, 2))

for b in ool: L += b
A("s_endpgm")
L.append(".p2align 8")
L.append(".fill %d, 4, 0xBF800000" % (64 if DIAG else 512))
L.append('''.section .rodata,"a"
.p2align 6
.amdhsa_kernel %s_kernel
  .amdhsa_next_free_vgpr 256
  .amdhsa_next_free_sgpr 102
  .amdhsa_accum_offset 256
  .amdhsa_group_segment_fixed_size 0
  .amdhsa_kernarg_size 104
  .amdhsa_user_sgpr_count 2
  .amdhsa_user_sgpr_kernarg_segment_ptr 1
  .amdhsa_system_sgpr_workgroup_id_x 1
.end_amdhsa_kernel''' % NAME)
open(OUTF, "w").write("\n".join(x for x in L if x is not None) + "\n")
print("wrote", OUTF, "lines", len(L), "LDS", LDS_SZ)
```

```python
import sys, struct, math

NAME = "interleave_layers__sliding_block_cached__mixer_token_mlp__decode"
OUTF = sys.argv[1] if len(sys.argv) > 1 else "cdna_kernels/%s.s" % NAME
DIAG = int(sys.argv[2]) if len(sys.argv) > 2 else 0
DBL = 0
if DIAG == 3: DIAG = 0; DBL = 1
MEAS = 0
if DIAG == 5: DIAG = 0; MEAS = 1
TOT = 0
if DIAG == 4: DIAG = 0; TOT = 1
OPT = dict(a.split("=") for a in sys.argv[3:])
DEPTH = int(OPT.get("depth", 8))
D0 = int(OPT.get("d0", 2))
D1 = int(OPT.get("d1", 4))
DC = int(OPT.get("dc", 3))
TAILI = int(OPT.get("taili", 11))
TAILD = int(OPT.get("taild", 8))
QV = int(OPT.get("qv", 3))
PRET = int(OPT.get("pret", 1))
GW = int(OPT.get("gw", 1))
GPRE = int(OPT.get("gpre", 0))
GGAP = int(OPT.get("ggap", -1))
WARM = int(OPT.get("warm", 1))
QPRE = int(OPT.get("qpre", -1)); QGAP = int(OPT.get("qgap", -1))
OPRE = int(OPT.get("opre", -1)); OGAP = int(OPT.get("ogap", -1))
XPRE = int(OPT.get("xpre", -1)); XGAP = int(OPT.get("xgap", -1))
FINE = OPT.get("fine", "")
QS = int(OPT.get("qs", 0))
ADP = int(OPT.get("adp", 0))
ROT = int(OPT.get("rot", 1)); VROT = int(OPT.get("vrot", 0))
WROT = int(OPT.get("wrot", 1))
WOP = int(OPT.get("wop", 0))
ECO = int(OPT.get("eco", 0))
XDL = int(OPT.get("xdl", 256))
QBD = int(OPT.get("qbd", 0))
VLATE = int(OPT.get("vlate", 1))
QV2 = int(OPT.get("qv2", 0))
PROG = int(OPT.get("prog", 1))
CMB = int(OPT.get("cmb", 0)); TGW = int(OPT.get("tgw", 0)); HPT = int(OPT.get("hpt", 0))
EFL = int(OPT.get("efl", 1))
QT = int(OPT.get("qt", 0))
DRY = int(OPT.get("dry", 0))
HP = int(OPT.get("hp", 0))
NOCT = int(OPT.get("noct", 16))
QPOS = int(OPT.get("qpos", 1))
QPOS2 = int(OPT.get("qpos2", 7))

def f2u(x): return struct.unpack("<I", struct.pack("<f", x))[0]
def hx(x): return "0x%08x" % (x & 0xffffffff)

L = []
def A(s): L.append("    " + s)
def LB(s): L.append(s + ":")
def C(s): L.append("    ; " + s)
def vr(a, n): return "v[%d:%d]" % (a, a + n - 1)
def sr(a, n): return "s[%d:%d]" % (a, a + n - 1)
def NOP(n):
    while n > 0:
        k = min(n, 16); A("s_nop %d" % (k - 1)); n -= k

XOCT = int(OPT.get('xoct', 4))
ELO = int(OPT.get('elo', 130 - NOCT - XOCT))
LO2 = (ELO << 7) * 2
NENT = (NOCT + XOCT) * 256
XENT = XOCT * 256
assert XENT in (0, 1024)
EPW = NOCT * 256 // 256 // 4 // 2
GRS = 0x20000
O_OFF = [0x0000, 0xC400]; LSE_OFF = [0x8000, 0x14400]; Q1_OFF = 0x8400; X1_OFF = 0x14600
CLRA_PER = 1040
CLRB_OFF = 0x8400; CLRB_PER = 1680
Q0_OFF = 0x18000
EPO = 0x17f00
PB = 0x100000; P_L = 0x20000
TB = 0x140000; FB = 0x148000
QB_DELTA = 0x200000
STB = 0x300000
WS_SZ = 0x400000
L_WQ = 12288; L_K = L_WQ + 16384; L_V = L_K + 32768
L_WO = L_K + 16384
L_TAB = L_V
L_XN = L_V + 32768; XS = 1056
L_X2 = L_XN + 4 * XS
L_FLG = L_X2 + 4 * XS
L_RB = L_K; RBS = 2048 + 64; L_ML = L_K + 4 * RBS
L_QF = L_X2
LDS_SZ = int(OPT.get("lds", L_FLG + 128))
SPIN = 0x40000
K0 = -2.0 * math.sqrt(2.0 / math.pi) * math.log2(math.e)
K1 = K0 * 0.044715
EPS = hx(f2u(1e-5))

sTG1, sTG2 = 0, 1
sW, sJ, sA, sC, sGR, sLAY, sFAST = 3, 4, 5, 6, 7, 8, 9
sT0, sT1, sT2, sT3, sT4, sT5 = 10, 11, 12, 13, 14, 15
sCNT = 16
sQL, sQS, sOL, sOS, sLL, sLS, sPS = 17, 18, 19, 20, 21, 22, 23
sSC, sIT = 24, 25
sSUM, sSQ = 26, 27
sH, sH2, sRET, sMSK = 28, 30, 32, 34
sB2, sY, sXCC, sE = 36, 37, 38, 39
sB2P = 40
sK, sV, sWQ, sWO, sWS, sX, sOUT, sW1, sB1, sW2 = 44, 48, 52, 56, 60, 64, 68, 72, 76, 80
sKO, sKL, sVO, sVL = 84, 85, 86, 87
sPM = 88
sHC, sHT = 84, 85

def STAMP(i):
    if DIAG:
        A("s_memrealtime s[42:43]"); A("s_waitcnt lgkmcnt(0)")
        A("v_writelane_b32 v30, s42, %d" % i)

def MP(name):
    if MEAS and OPT["q"] == name:
        A("s_memrealtime s[42:43]"); A("s_waitcnt lgkmcnt(0)"); A("s_mov_b32 s97, s42")

def CST(i):
    if DIAG == 1 and FINE:
        A("s_memtime s[42:43]"); A("s_waitcnt lgkmcnt(0)")
        A("v_writelane_b32 v31, s42, %d" % i)

vLANE = 1
vL16, vQST, vOST, vOLD, vPST, vX1S, vXNW, vXNR, vRBW, vRBR, vMLW, vMLR, vLSE, vZ = range(2, 16)
vT = 16
vWT, vFL = 28, 29
vLS2 = 27
KF, VF, WQF, WOF, SEL, ONES = 32, 64, 96, 112, 176, 180
W = 184
PM = 232
XR = 248
RES = 252

def srd(s, nbytes):
    A("s_mov_b32 s%d, %s" % (s + 2, hx(nbytes))); A("s_mov_b32 s%d, 0x00020000" % (s + 3))

def soff(dst, terms, const):
    first = True
    for (src, sh) in terms:
        if first: A("s_lshl_b32 s%d, s%d, %d" % (dst, src, sh)); first = False
        else:
            A("s_lshl_b32 s%d, s%d, %d" % (sT0, src, sh)); A("s_add_u32 s%d, s%d, s%d" % (dst, dst, sT0))
    if const: A("s_add_u32 s%d, s%d, %s" % (dst, dst, hx(const)))

def wave_sum2(a, b, sa, sb):
    for ctl in ["row_ror:8", "row_ror:4", "row_ror:2", "row_ror:1"]:
        A("v_add_f32_dpp v%d, v%d, v%d %s row_mask:0xf bank_mask:0xf" % (a, a, a, ctl))
        A("v_add_f32_dpp v%d, v%d, v%d %s row_mask:0xf bank_mask:0xf" % (b, b, b, ctl))
        A("s_nop 0")
    for ctl in ["row_bcast:15 row_mask:0xa", "row_bcast:31 row_mask:0xc"]:
        A("v_add_f32_dpp v%d, v%d, v%d %s bank_mask:0xf" % (a, a, a, ctl))
        A("v_add_f32_dpp v%d, v%d, v%d %s bank_mask:0xf" % (b, b, b, ctl))
        A("s_nop 0")
    A("v_readlane_b32 s%d, v%d, 63" % (sa, a))
    A("v_readlane_b32 s%d, v%d, 63" % (sb, b))

def row_stats(x, t, unp):
    A("v_dot2_f32_bf16 v%d, v%d, v%d, 0" % (t, x, ONES))
    A("v_dot2_f32_bf16 v%d, v%d, v%d, 0" % (t + 1, x, x))
    for i in range(1, 4):
        A("v_dot2_f32_bf16 v%d, v%d, v%d, v%d" % (t, x + i, ONES, t))
        A("v_dot2_f32_bf16 v%d, v%d, v%d, v%d" % (t + 1, x + i, x + i, t + 1))
    un = []
    for i in range(4):
        un.append("v_lshlrev_b32 v%d, 16, v%d" % (unp + 2 * i, x + i))
        un.append("v_and_b32 v%d, 0xffff0000, v%d" % (unp + 2 * i + 1, x + i))
    for k in range(3): A(un.pop(0))
    a, b = t, t + 1
    for ctl in ["row_ror:8 row_mask:0xf", "row_ror:4 row_mask:0xf", "row_ror:2 row_mask:0xf", "row_ror:1 row_mask:0xf", "row_bcast:15 row_mask:0xa", "row_bcast:31 row_mask:0xc"]:
        A("v_add_f32_dpp v%d, v%d, v%d %s bank_mask:0xf" % (a, a, a, ctl))
        A("v_add_f32_dpp v%d, v%d, v%d %s bank_mask:0xf" % (b, b, b, ctl))
        A(un.pop(0) if un else "s_nop 0")
    A("v_readlane_b32 s%d, v%d, 63" % (sSUM, a))
    A("v_readlane_b32 s%d, v%d, 63" % (sSQ, b))
    A("s_nop 0")
    A("v_mul_f32 v%d, s%d, v%d" % (t, sSUM, vZ))
    A("v_mul_f32 v%d, s%d, v%d" % (t + 1, sSQ, vZ))
    A("v_fma_f32 v%d, -v%d, v%d, v%d" % (t + 1, t, t, t + 1))
    A("v_max_f32 v%d, 0, v%d" % (t + 1, t + 1))

ool = []
uid = [0]
def maxtree(regs, tmp):
    r = list(regs); out = []
    out.append("v_max3_u32 v%d, v%d, v%d, v%d" % (tmp, r[0], r[1], r[2])); r = r[3:]
    if len(r) >= 5:
        out.append("v_max3_u32 v%d, v%d, v%d, v%d" % (tmp + 1, r[0], r[1], r[2])); r = r[3:]
        d = 0
        while len(r) >= 2:
            out.append("v_max3_u32 v%d, v%d, v%d, v%d" % (tmp + d, tmp + d, r[0], r[1])); r = r[2:]; d ^= 1
        if r: out.append("v_max3_u32 v%d, v%d, v%d, v%d" % (tmp, tmp, tmp + 1, r[0]))
        else: out.append("v_max_u32 v%d, v%d, v%d" % (tmp, tmp, tmp + 1))
    else:
        while len(r) >= 2:
            out.append("v_max3_u32 v%d, v%d, v%d, v%d" % (tmp, tmp, r[0], r[1])); r = r[2:]
        if r: out.append("v_max_u32 v%d, v%d, v%d" % (tmp, tmp, r[0]))
    return out

def poll(issue, regs, tmp, pre_wait=None, spec=None, back="s_nop 7", tag=None, stub=None):
    uid[0] += 1; u = uid[0]
    A("s_mov_b32 s%d, %s" % (sCNT, hx(SPIN)))
    LB("Lp%d" % u)
    issue()
    if pre_wait: pre_wait()
    A("s_waitcnt vmcnt(0)")
    mt = maxtree(regs, tmp) + ["v_cmp_eq_u32 vcc, -1, v%d" % tmp]
    spec = list(spec or [])
    ns = len(spec)
    per = -(-len(mt) // ns) if ns else 0
    for s in spec:
        A(s)
        for k in range(per):
            if mt: A(mt.pop(0))
    for m in mt: A(m)
    A("s_cbranch_vccz Ld%d" % u)
    A("s_sub_u32 s%d, s%d, 1" % (sCNT, sCNT))
    if back != "s_nop 7": A(back)
    A("s_cbranch_scc0 Lp%d" % u)
    if stub: touch_stub(stub)
    LB("Ld%d" % u)
    if DIAG and tag is not None:
        A("s_lshl_b32 m0, s%d, 2" % sLAY); A("s_add_u32 m0, m0, %d" % tag); A("s_nop 0")
        A("v_writelane_b32 v31, s%d, m0" % sCNT)

stubs = []
def touch_stub(name, branch_over=None):
    A("s_branch Lsk_%s" % name)
    L.append(".p2align 6")
    LB("Lst_%s" % name)
    A("s_setpc_b64 %s" % sr(sRET, 2))
    LB("Lsk_%s" % name)
    stubs.append(name)

def delay(cyc):
    if cyc == -1:
        A("s_waitcnt vmcnt(0)"); return
    while cyc >= 64:
        k = min(cyc // 64, 15); A("s_sleep %d" % k); cyc -= 64 * k
    if cyc >= 8: A("s_nop %d" % min(15, cyc // 4 - 1))

def ppoll(issue, regs, n, tmp, spec, pre=0, gap=128, mid=None, tag=None, fix=None, stub=None, lanes=None, per_load=None):
    uid[0] += 1; u = uid[0]
    def look(k):
        if per_load and PROG and gap < 0:
            r = list(regs(k)); out = []
            for i in range(n):
                out.append("s_waitcnt vmcnt(%d)" % (n - 1 - i))
                sp = list(per_load(k, i))
                ck = ["v_max3_u32 v%d, v%d, v%d, v%d" % (tmp + 1, r[4 * i], r[4 * i + 1], r[4 * i + 2]),
                      ("v_max_u32 v%d, v%d, v%d" % (tmp, tmp + 1, r[4 * i + 3])) if i == 0 else ("v_max3_u32 v%d, v%d, v%d, v%d" % (tmp, tmp, tmp + 1, r[4 * i + 3]))]
                while sp or ck:
                    if sp: out.append(sp.pop(0))
                    if ck: out.append(ck.pop(0))
            return out + ["v_cmp_eq_u32 vcc, -1, v%d" % tmp]
        out = ["s_waitcnt vmcnt(%d)" % (n if k == 0 else 0)]
        mt = maxtree(regs(k), tmp) + ["v_cmp_eq_u32 vcc, -1, v%d" % tmp]
        sp = list(spec(k)); per = -(-len(mt) // len(sp)) if sp else 0
        for x in sp:
            out.append(x)
            for _ in range(per):
                if mt: out.append(mt.pop(0))
        return out + mt + (["s_and_b64 vcc, vcc, %s" % sr(lanes, 2)] if lanes else [])
    A("s_mov_b32 s%d, %s" % (sCNT, hx(SPIN)))
    delay(pre)
    fine = FINE and tag == int(FINE)
    if fine: CST(8)
    LB("Lp%d" % u)
    issue(0)
    if fine and 0: CST(9)
    if mid: mid()
    if gap >= 0: delay(gap)
    if gap >= 0: issue(1)
    lk = look(0)
    if gap < 0 and not (per_load and PROG): lk[0] = "s_waitcnt vmcnt(0)"
    for k, x in enumerate(lk):
        A(x)
        if fine and k == 0: CST(13)
    if fine: CST(14)
    A("s_cbranch_vccz Ld%d" % u)
    if gap < 0: issue(1)
    A("s_sub_u32 s%d, s%d, 1" % (sCNT, sCNT))
    for x in look(1): A(x)
    for x in (fix or []): A(x)
    A("s_cbranch_vccz Ld%d" % u)
    A("s_sub_u32 s%d, s%d, 1" % (sCNT, sCNT))
    A("s_cmp_gt_i32 s%d, 0" % sCNT)
    A("s_cbranch_scc1 Lp%d" % u)
    if stub: touch_stub(stub)
    LB("Ld%d" % u)
    if fine: CST(15)
    if DIAG and tag is not None:
        A("s_lshl_b32 m0, s%d, 2" % sLAY); A("s_add_u32 m0, m0, %d" % tag); A("s_nop 0")
        A("v_writelane_b32 v31, s%d, m0" % sCNT)

def lds_spin(off, target, tmp, mask=None, sleep=0):
    uid[0] += 1; u = uid[0]
    A("s_mov_b32 s%d, %s" % (sT2, hx(SPIN * 4)))
    LB("Ls%d" % u)
    A("ds_read_b32 v%d, v%d offset:%d" % (tmp, vFL, off))
    A("s_waitcnt lgkmcnt(0)")
    A("v_readfirstlane_b32 s%d, v%d" % (sT1, tmp))
    if mask: A("s_and_b32 s%d, s%d, %d" % (sT0, sT1, mask))
    A("s_cmp_ge_u32 s%d, %d" % (sT0 if mask else sT1, target))
    A("s_cbranch_scc1 Lt%d" % u)
    if sleep: A("s_sleep %d" % sleep)
    A("s_sub_u32 s%d, s%d, 1" % (sT2, sT2))
    A("s_cbranch_scc0 Ls%d" % u)
    LB("Lt%d" % u)

def lds_arrive(off, tmp, val=1):
    if val is not None: A("v_mov_b32 v%d, %d" % (tmp, val))
    A("s_mov_b64 exec, 1")
    A("ds_add_u32 v%d, v%d offset:%d" % (vFL, tmp, off))
    A("s_mov_b64 exec, -1")

def store_local(op, data, vaddr, so):
    uid[0] += 1; u = uid[0]
    A("s_cbranch_scc1 Lw%d" % u)
    A("%s %s, v%d, %s, s%d offen" % (op, data, vaddr, sr(sWS, 4), so))
    LB("Lx%d" % u)
    ool.append(["Lw%d:" % u, "    %s %s, v%d, %s, s%d offen sc1" % (op, data, vaddr, sr(sWS, 4), so), "    s_branch Lx%d" % u])
def fastcmp(): A("s_cmp_eq_u32 s%d, 0" % sFAST)

def mf(d, a, b, c):
    return "v_mfma_f32_16x16x32_bf16 %s, %s, %s, %s" % (vr(d, 4), vr(a, 4), vr(b, 4), "0" if c is None else vr(c, 4))
def mfma(d, a, b, c): A(mf(d, a, b, c))

def tags():
    A("s_add_u32 s%d, s%d, 1" % (sTG1, sE))
    A("s_mul_i32 s%d, s%d, 0x9E3779B1" % (sTG2, sTG1))
    A("s_and_b32 s%d, s%d, -8" % (sTG2, sTG2))

def common_addr():
    A("v_and_b32 v18, 3, v%d" % vLANE)
    A("v_lshlrev_b32 v%d, 12, v17" % vQST)
    A("v_lshrrev_b32 v24, 1, v16")
    A("v_lshl_add_u32 v%d, v24, 8, v%d" % (vQST, vQST))
    A("v_and_b32 v24, 1, v16")
    A("v_lshl_add_u32 v%d, v24, 3, v%d" % (vQST, vQST))
    A("v_lshlrev_b32 v%d, 4, v24" % vLSE)
    A("s_mul_i32 s%d, s%d, %d" % (sT0, sW, XS))
    A("s_add_u32 s%d, s%d, %d" % (sT0, sT0, L_XN))
    A("v_add_u32 v%d, s%d, v%d" % (vXNW, sT0, vL16))
    A("s_lshl_b32 s%d, s%d, 8" % (sT0, sA))
    A("s_add_u32 s%d, s%d, %d" % (sT0, sT0, L_XN))
    A("v_mul_u32_u24 v25, %d, v18" % XS)
    A("v_lshl_add_u32 v25, v16, 4, v25")
    A("v_add_u32 v%d, s%d, v25" % (vXNR, sT0))
    A("v_mov_b32 v%d, %s" % (vZ, hx(f2u(1.0 / 512))))
    for r in range(4): A("v_mov_b32 v%d, 0x3f803f80" % (ONES + r))
    A("s_and_b32 s%d, s%d, 1" % (sT1, sC))
    A("s_lshr_b32 s%d, s%d, 1" % (sT2, sC))
    soff(sQS, [(sT1, 11), (sW, 9), (sA, 6), (sT2, 4)], 0)
    A("v_bfe_u32 v24, v%d, 2, 2" % vLANE)
    A("v_lshl_add_u32 v24, v16, 3, v24")
    A("v_lshlrev_b32 v24, 7, v24")
    A("v_bfe_u32 v25, v%d, 3, 2" % vLANE)
    A("v_lshlrev_b32 v25, 1, v25")
    A("v_bfe_u32 v26, v%d, 1, 1" % vLANE)
    A("v_xor_b32 v25, v25, v26")
    A("v_lshl_add_u32 v24, v25, 4, v24")
    A("v_and_b32 v26, 1, v%d" % vLANE)
    A("v_lshl_add_u32 v%d, v26, 3, v24" % vWT)
    A("s_mov_b32 s%d, 0x000f000f" % sMSK)
    A("s_mov_b32 s%d, 0x000f000f" % (sMSK + 1))
    A("s_mov_b32 s%d, 0" % sLAY)

def wtile_voff(shift, d):
    A("v_lshrrev_b32 v24, 3, v%d" % vLANE)
    A("v_and_b32 v25, 7, v%d" % vLANE)
    A("v_and_b32 v26, 1, v16")
    A("v_lshlrev_b32 v26, 1, v26")
    A("v_xor_b32 v25, v25, v26")
    A("v_lshlrev_b32 v25, 4, v25")
    A("v_lshl_add_u32 v%d, v24, %d, v25" % (d, shift))
    A("v_xor_b32 v%d, 64, v%d" % (d + 1, d))

def wqf_reads():
    A("s_lshl_b32 s%d, s%d, 5" % (sT1, sW))
    A("v_xor_b32 v26, s%d, v%d" % (sT1, vWT))
    for t in range(4):
        for hf in range(2):
            A("ds_read_b64_tr_b16 %s, v26 offset:%d" % (vr(WQF + 4 * t + 2 * hf, 2), L_WQ + 4096 * t + 512 * hf))

def dma(vaddr, srdn, so, lds_s, step_so, flags="nt"):
    A("s_mov_b32 m0, s%d" % lds_s)
    A("s_add_u32 s%d, s%d, 1024" % (lds_s, lds_s))
    A("buffer_load_dwordx4 v%d, %s, s%d offen %s lds" % (vaddr, sr(srdn, 4), so, flags))
    A("s_add_u32 s%d, s%d, %d" % (so, so, step_so))

hdr = open("cdna_kernels/%s.s.ref" % NAME).read().split("; Override launch")[0]
L.append(hdr.rstrip("\n") + """
;
; One persistent launch, 256 workgroups (one per CU) x 8 waves.  wg = A(2b):C(3b):j(3b); j = kv head.
; K, V, wq and wo are read from HBM exactly once (LDS-DMA) and stay in registers for both attention layers.
;   roles of a workgroup:  attention (batch A, keys 128C..), q projection (wq rows 128A.., 64 columns C),
;                          output projection (head A of group j, 64 columns C), row reduction (batch A, columns 64C..)
;   waves 0-3: stream K/V, attention, output projection, LayerNorm + mixer + next q projection
;   waves 4-7: first q projection, then the token-mixer MLP g(h) = sum_f gelu(h w1 + b1) w2 + b2 evaluated
;              exactly (all 1792 hidden units) for every bf16 value h with 2^-17 <= |h| < 8; h is a bf16 tensor in the
;              reference, so the mixer is a lookup of these values; any other h is evaluated directly (Lslow).
; Hand-offs between workgroups go through d_ws.  Slots are filled with a sentinel at the start of the launch and a
; consumer polls until no sentinel is left; the first hand-off (q) and the "sentinels are in place" announcements
; carry a tag derived from a word that every launch advances.  Stores inside a kv-head group are plain when the
; whole group reports the same XCC id, write-through otherwise; every poll is bounded.
""".rstrip("\n"))
L.append("; @launch grid=(256,1,1) block=(512,1,1) lds=%d" % LDS_SZ)
L.append('.amdgcn_target "amdgcn-amd-amdhsa--gfx950"')
L.append(".text\n" + (".p2align 12\n" if int(OPT.get("al", 0)) else "") + ".globl %s_kernel\n.p2align 8\n.type %s_kernel,@function\n%s_kernel:" % (NAME, NAME, NAME))
if DIAG: A("s_memrealtime s[42:43]")
if DBL or TOT or MEAS: A("s_memrealtime s[98:99]")
sM = 96
A("s_lshr_b32 s%d, s2, 8" % sT0)
A("s_cbranch_scc1 Lend")
A("s_load_dwordx2 %s, s[0:1], 24" % sr(sWQ, 2))
A("s_load_dwordx4 %s, s[0:1], 0" % sr(sT2, 4))
A("v_readfirstlane_b32 s%d, v0" % sW)
C("every wave pulls one line of this kernel's code into L2 (plain read): 32 workgroups x 4 lines")
A("s_getpc_b64 s[10:11]")
LB("Lpc0")
A("s_lshr_b32 s%d, s2, 3" % sM)
A("s_lshl_b32 s%d, s%d, 9" % (sCNT, sM))
A("s_cmp_lg_u32 s%d, 0" % sW)
A("s_cbranch_scc1 Lnopf")
A("v_and_b32 v19, 3, v0")
A("v_lshl_add_u32 v19, v19, 7, s%d" % sCNT)
A("global_load_dword v%d, v19, s[10:11]" % (W + 8))
LB("Lnopf")
A("s_and_b32 s%d, s2, 7" % sJ)
A("s_lshr_b32 s%d, s2, 6" % sA)
A("s_and_b32 s%d, s%d, 7" % (sC, sM))
A("s_lshl_b32 s%d, 1, 17" % (sWQ + 3))
A("s_bitcmp1_b32 s%d, 8" % sW)
A("s_cbranch_scc0 Lmain0")
vKA, vVA = W + 40, W + 44
sRO, sRM = sVO, 97 if not TOT else 94
if TOT: sRM = sOL
def kv_issue(i):
    A("s_add_u32 m0, s%d, s%d" % (sKL if i < 8 else sVL, sRO))
    A("s_add_u32 s%d, s%d, s%d" % (sCNT, sKO, sRO))
    if i < 8: A("buffer_load_dwordx4 v%d, %s, s%d offen nt lds" % (vKA + (i & 3), sr(sK, 4), sCNT))
    else: A("buffer_load_dwordx4 v%d, %s, s%d offen nt lds" % (vVA + (i & 1), sr(sV, 4), sCNT))
    A("s_addk_i32 s%d, %d" % (sRO, 1024 + (VROT * 1024 if i == 7 else 0)))
    A("s_and_b32 s%d, s%d, 0x1fff" % (sRO, sRO))
def lane_init():
    A("v_and_b32 v%d, 63, v0" % vLANE)
    A("v_mov_b32 v%d, %d" % (vFL, L_FLG))
    A("v_lshlrev_b32 v%d, 4, v%d" % (vL16, vLANE))
    A("v_lshrrev_b32 v16, 4, v%d" % vLANE)
    A("v_and_b32 v17, 15, v%d" % vLANE)
    A("v_mov_b32 v20, 0")
    if DIAG: A("v_mov_b32 v30, 0")
def main_early():
    LB("Lmain0")
    for s, off in [(sW1, 48), (sB1, 56), (sW2, 64)]:
        A("s_load_dwordx2 %s, s[0:1], %d" % (sr(s, 2), off))
    lane_init()
    A("v_mov_b32 v21, 0")
    for k in range(4): A("ds_write_b64 v%d, v[20:21] offset:%d" % (vFL, 8 * k))
    A("ds_write_b64 v%d, v[20:21] offset:52" % vFL) if False else None
    A("ds_write_b32 v%d, v20 offset:56" % vFL)
    if ADP: A("ds_write_b32 v%d, v20 offset:52" % vFL)
    A("s_lshl_b32 s%d, 1, 25" % (sK + 2)); A("s_mov_b32 s%d, s%d" % (sK + 3, sWQ + 3))
    A("v_xor_b32 v18, v17, v16")
    A("v_lshlrev_b32 v18, 4, v18")
    A("v_lshl_add_u32 v%d, v16, 8, v18" % vKA)
    A("s_lshl_b32 s%d, s%d, %d" % (sRO, sC, 10 if ROT else 31))
    if not ROT: A("s_mov_b32 s%d, 0" % sRO)
    A("s_bfe_u32 s%d, s%d, 0x2000a" % (sT1, sRO))
    A("s_lshl_b32 s%d, s%d, 6" % (sT1, sT1))
    for k in range(1, 4):
        A("s_add_u32 s%d, s%d, %d" % (sCNT, sT1, 64 * k))
        A("s_and_b32 s%d, s%d, 0xc0" % (sCNT, sCNT))
        A("v_xor_b32 v%d, s%d, v%d" % (vKA + k, sCNT, vKA))
    A("v_xor_b32 v%d, s%d, v%d" % (vKA, sT1, vKA))
    soff(sKO, [(sA, 23), (sJ, 20), (sC, 15), (sW, 7)], 3072 * 256)
    A("s_add_u32 s%d, s%d, %d" % (sKL, sT0, L_K))
    A("s_waitcnt lgkmcnt(0)")
    A("s_mov_b64 %s, %s" % (sr(sK, 2), sr(sT4, 2)))
    for i in range(D0): kv_issue(i)
    C("lane k<3 of wave 3 pulls a slice of coefficient array k into L2")
    A("s_cmp_lg_u32 s%d, 192" % sW)
    A("s_cbranch_scc1 Lm_nopf")
    A("s_min_u32 s%d, s%d, 27" % (sT1, sM))
    A("s_lshl_b32 s%d, s%d, 7" % (sT1, sT1))
    A("v_mov_b32 v19, s%d" % sT1)
    A("s_mov_b64 exec, 1")
    for k, sd in enumerate([sW1, sB1, sW2]): A("global_load_dword v%d, v19, %s" % (W + 9 + k, sr(sd, 2)))
    A("s_mov_b64 exec, -1")
    LB("Lm_nopf")
    A("s_add_u32 s%d, s%d, %d" % (sVL, sT0, L_V))
    A("s_lshr_b32 s%d, s%d, 6" % (sW, sW))
    if DIAG: A("v_writelane_b32 v30, s42, 0")
    STAMP(10)
    MP("k0")
    A("s_branch Lmain")

C("---- helper waves: first q projection, then the table of g over bf16 inputs ----")
HW1, HB1, HW2 = 32, 60, 112
hK0, hK1, hONE, hRES = 88, 90, 92, 94
AC = [140, 142]
A("s_load_dwordx2 %s, s[0:1], 96" % sr(sWS, 2))
C("wq tile DMA: instruction i, thread t' = t-256: row 32 i + (t'>>3), 16-byte chunk (t'&7) ^ swizzle")
A("v_bfe_u32 v23, v0, 3, 5")
A("v_and_b32 v22, 7, v0")
A("v_and_b32 v24, 2, v23")
A("v_lshrrev_b32 v25, 1, v23")
A("v_and_or_b32 v24, v25, 4, v24")
A("v_xor_b32 v22, v22, v24")
A("v_lshlrev_b32 v22, 4, v22")
A("v_lshl_add_u32 v22, v23, 13, v22")
soff(sQL, [(sA, 20), (sJ, 10), (sC, 7)], 0)
A("s_lshl_b32 s%d, 1, 22" % (sWQ + 2))
A("s_lshl_b32 s%d, 1, 18" % sT1)
A("s_lshl_b32 s%d, s%d, 4" % (sQS, sW))
A("s_add_u32 m0, s%d, %d" % (sQS, L_WQ - 4096))
A("v_lshlrev_b32 v21, 4, v0")
if DIAG: A("s_memrealtime s[88:89]")
A("s_waitcnt lgkmcnt(0)")
if DIAG: A("s_memrealtime s[90:91]")
A("global_load_dwordx4 %s, v21, %s offset:-4096" % (vr(XR, 4), sr(sT2, 2)))
for i in range(4):
    if i:
        A("s_addk_i32 m0, 0x1000")
        A("s_add_u32 s%d, s%d, s%d" % (sQL, sQL, sT1))
    A("buffer_load_dwordx4 v22, %s, s%d offen nt lds" % (sr(sWQ, 4), sQL))
if DIAG: A("s_memrealtime s[92:93]")
lane_init()
A("s_bfe_u32 s%d, s%d, 0x20006" % (sW, sW))
A("s_lshl_b32 s%d, s%d, 10" % (sT3, sW))
srd(sWS, WS_SZ)
C("early sentinels (O0, LSE0): hw0 1024 B, the others 16 B")
for i in range(4): A("v_mov_b32 v%d, -1" % (PM + i))
A("s_mul_i32 s%d, s%d, %d" % (sT5, sM, CLRA_PER))
A("s_lshl_b32 s%d, s%d, 17" % (sGR, sJ))
A("s_add_u32 s%d, s%d, s%d" % (sT5, sT5, sGR))
A("s_add_u32 s%d, s%d, 1024" % (sT4, sT5))
A("s_cmp_ge_u32 s%d, 2" % sW)
A("s_cbranch_scc1 Lhc_skip")
A("s_cmp_eq_u32 s%d, 0" % sW)
A("s_cselect_b32 s%d, s%d, s%d" % (sT5, sT5, sT4))
A("s_cselect_b64 exec, -1, 1")
A("buffer_store_dwordx4 %s, v%d, %s, s%d offen sc1" % (vr(PM, 4), vL16, sr(sWS, 4), sT5))
LB("Lhc_skip")
A("s_mov_b64 exec, -1")
A("s_branch Lhelp2")
main_early()
LB("Lhelp2")
if QT:
    C("touch 2 lines of the tagged q mailbox per wave so that they sit in L2 before they are written")
    soff(sT4, [(sM, 10), (sW, 8), (sJ, 17)], Q0_OFF)
    A("v_lshlrev_b32 v24, 7, v%d" % vLANE)
    A("s_mov_b64 exec, 3")
    A("buffer_load_dword v%d, v24, %s, s%d offen" % (RES + 1, sr(sWS, 4), sT4))
A("s_mov_b64 exec, -1")
if HP: A("s_setprio 3")
A("s_load_dword s%d, %s, %s" % (sE, sr(sWS, 2), hx(EPO)))
A("s_load_dwordx2 %s, s[0:1], 72" % sr(sB2P, 2))
if MEAS:
    A("s_load_dwordx2 s[42:43], s[0:1], 88"); A("s_waitcnt lgkmcnt(0)"); A("v_mov_b32 v30, s42"); A("v_mov_b32 v31, s43")
if DIAG:
    A("v_writelane_b32 v30, s42, 0")
    A("s_waitcnt lgkmcnt(0)")
    A("v_mov_b32 v31, 0")
    A("v_writelane_b32 v31, s88, 0"); A("v_writelane_b32 v31, s90, 1"); A("v_writelane_b32 v31, s92, 2")
STAMP(9)
A("s_barrier")
A("s_lshl_b32 s%d, s2, 2" % sHC)
A("s_add_u32 s%d, s%d, s%d" % (sHC, sHC, sW))
sHX = 86
if XENT:
    C("extra entry e = wave index: |h| code ELO*128 + (e>>1), sign e&1")
    A("s_lshr_b32 s%d, s%d, 1" % (sHX, sHC))
    A("s_add_u32 s%d, s%d, %d" % (sHX, sHX, ELO * 128))
    A("s_lshl_b32 s%d, s%d, 16" % (sHX, sHX))
    A("s_lshl_b32 s%d, s%d, 31" % (sT0, sHC))
    A("s_or_b32 s%d, s%d, s%d" % (sHX, sHX, sT0))
A("s_mul_i32 s%d, s%d, %d" % (sHC, sHC, EPW))
A("s_lshl_b32 s%d, s%d, 3" % (sHT, sHC))
A("s_add_u32 s%d, s%d, %d" % (sHT, sHT, XENT * 4))
A("s_add_u32 s%d, s%d, %d" % (sHC, sHC, ELO * 128 + XENT // 2))
A("s_lshl_b32 s%d, s%d, 16" % (sHC, sHC))
A("v_lshlrev_b32 v27, 2, v%d" % vLANE)
A("v_add_u32 v27, s%d, v27" % sHT)
A("s_mov_b32 s%d, %s" % (sHT, hx(TB)))
common_addr()
A("s_lshl_b32 s%d, s%d, 1" % (sQS, sQS))
A("s_add_u32 s%d, s%d, s%d" % (sQS, sQS, sGR))
A("s_add_u32 s%d, s%d, %s" % (sQS, sQS, hx(Q0_OFF)))
A("v_lshlrev_b32 v%d, 1, v%d" % (vQST, vQST))
A("s_getreg_b32 s%d, hwreg(HW_REG_XCC_ID, 0, 3)" % sXCC)
for r, c in [(hK0, K0), (hK1, K1), (hONE, 1.0)]:
    A("v_mov_b32 v%d, %s" % (r, hx(f2u(c)))); A("v_mov_b32 v%d, %s" % (r + 1, hx(f2u(c))))
A("v_mov_b32 v%d, 0" % hRES)
A("s_mov_b32 s%d, 0" % sIT)
if DRY:
    C("dry run of the q-projection code while its inputs are in flight (instruction cache warm-up; no side effects)")
    A("s_mov_b32 s%d, 1" % sIT)
    A("s_branch Llnq")
    LB("Ldry_done")
    A("s_mov_b64 exec, -1")
    A("s_mov_b32 s%d, 0" % sIT)
if WARM:
    C("warm the instruction cache lines at the far jump targets of the main waves")
    for k, nm in enumerate(["k", "fin", "out", "tab"]):
        A("s_cmp_lg_u32 s%d, %d" % (sW, k))
        A("s_cbranch_scc1 Lwm%d" % k)
        A("s_call_b64 %s, Lst_%s" % (sr(sRET, 2), nm))
        if nm == "out": A("s_call_b64 %s, Lst_mq" % sr(sRET, 2))
        LB("Lwm%d" % k)
A("s_cmp_ge_u32 s%d, 2" % sW)
A("s_cbranch_scc0 Lhx5")
A("s_waitcnt vmcnt(%d)" % (4 + QT))
LB("Lhx5")
A("s_waitcnt vmcnt(%d)" % (5 + QT))
STAMP(1)
A("s_branch Llnq")
LB("Lq_first")
if DRY:
    A("s_cmp_lg_u32 s%d, 0" % sIT)
    A("s_cbranch_scc1 Lq_dry")
A("s_waitcnt vmcnt(0) lgkmcnt(0)")
STAMP(2)
MP("hwq")
lds_arrive(0, vT + 4)
tags()
A("s_or_b32 s%d, s%d, s%d" % (sXCC, sXCC, sTG2))
C("4 helper arrivals (wq tile, xn rows) + 4 main arrivals (coefficients landed, sentinels acknowledged)")
lds_spin(0, 4, vT + 4)
STAMP(6)
LB("Lq_dry")
wqf_reads()
A("s_waitcnt lgkmcnt(0)")
A("s_branch Lq_go")
LB("Lh_qst")
if DRY:
    A("s_cmp_lg_u32 s%d, 0" % sIT)
    A("s_cbranch_scc1 Ldry_done")
STAMP(5)
A("v_mov_b32 v%d, s%d" % (W + 6, sTG1))
A("v_mov_b32 v%d, s%d" % (W + 7, sXCC))
A("buffer_store_dwordx4 %s, v%d, %s, s%d offen%s" % (vr(W + 4, 4), vQST, sr(sWS, 4), sQS, "" if int(OPT.get("fast", 1)) else " sc1"))
A("s_add_u32 s%d, s%d, %s" % (sQS, sQS, hx(QB_DELTA)))
if not QBD: A("buffer_store_dwordx4 %s, v%d, %s, s%d offen sc1" % (vr(W + 4, 4), vQST, sr(sWS, 4), sQS))
A("s_mov_b64 exec, -1")
HR = W + 8
if ADP: lds_arrive(52, 24)
if HP: A("s_setprio 0")
STAMP(3)
MP("hq")
A("v_lshlrev_b32 v26, 3, v%d" % vLANE)
lds_spin(24, 4, 24, sleep=1)
for a_ in range(3):
    for k in range(3):
        A("ds_read_b128 %s, v%d offset:%d" % (vr(HR + 14 * a_ + 4 * k, 4), vL16, 4096 * a_ + 1024 * k))
    A("ds_read_b64 %s, v26 offset:%d" % (vr(HR + 14 * a_ + 12, 2), 4096 * a_ + 3072))
for a_, d in [(0, HW1), (14, HB1), (28, HW2)]:
    A("s_waitcnt lgkmcnt(%d)" % (8 - 4 * (a_ // 14)))
    for p in range(14):
        A("v_lshlrev_b32 v%d, 16, v%d" % (d + 2 * p, HR + a_ + p))
        A("v_and_b32 v%d, 0xffff0000, v%d" % (d + 2 * p + 1, HR + a_ + p))
A("s_load_dword s%d, %s, 0" % (sB2, sr(sB2P, 2)))
STAMP(4)
if DIAG:
    A("s_memtime s[42:43]"); A("s_waitcnt lgkmcnt(0)"); A("v_writelane_b32 v30, s42, 13")
if HPT: A("s_setprio %d" % HPT)
LB("Lhl")
if DIAG:
    A("s_memrealtime s[42:43]"); A("s_add_u32 m0, s%d, 10" % sIT); A("s_waitcnt lgkmcnt(0)"); A("v_writelane_b32 v30, s42, m0")
A("s_mov_b32 s%d, s%d" % (sH, sHC)); A("s_mov_b32 s%d, s%d" % (sH + 1, sHC))
A("s_xor_b32 s%d, s%d, 0x80000000" % (sH2, sHC)); A("s_mov_b32 s%d, s%d" % (sH2 + 1, sH2))
U4 = [144, 146, 148, 150]; T4 = [152, 154, 156, 158]; Z4 = [160, 162, 164, 166]
for p2 in range(7):
    ch = [(2 * p2 + k // 2, k & 1) for k in range(4)]
    for k, (p, sg) in enumerate(ch):
        A("v_pk_fma_f32 %s, %s, %s, %s" % (vr(U4[k], 2), vr(HW1 + 2 * p, 2), sr([sH, sH2][sg], 2), vr(HB1 + 2 * p, 2)))
    for k in range(4): A("v_pk_mul_f32 %s, %s, %s" % (vr(T4[k], 2), vr(U4[k], 2), vr(U4[k], 2)))
    for k in range(4): A("v_pk_fma_f32 %s, %s, %s, %s" % (vr(T4[k], 2), vr(T4[k], 2), vr(hK1, 2), vr(hK0, 2)))
    for k in range(4): A("v_pk_mul_f32 %s, %s, %s" % (vr(T4[k], 2), vr(T4[k], 2), vr(U4[k], 2)))
    for k in range(4):
        for h in range(2): A("v_exp_f32 v%d, v%d" % (T4[k] + h, T4[k] + h))
    for k, (p, sg) in enumerate(ch): A("v_pk_mul_f32 %s, %s, %s" % (vr(Z4[k], 2), vr(U4[k], 2), vr(HW2 + 2 * p, 2)))
    for k in range(4): A("v_pk_add_f32 %s, %s, %s" % (vr(T4[k], 2), vr(T4[k], 2), vr(hONE, 2)))
    for k in range(4):
        for h in range(2): A("v_rcp_f32 v%d, v%d" % (T4[k] + h, T4[k] + h))
    for k, (p, sg) in enumerate(ch):
        if p == 0: A("v_pk_mul_f32 %s, %s, %s" % (vr(AC[sg], 2), vr(Z4[k], 2), vr(T4[k], 2)))
        else: A("v_pk_fma_f32 %s, %s, %s, %s" % (vr(AC[sg], 2), vr(Z4[k], 2), vr(T4[k], 2), vr(AC[sg], 2)))
A("v_add_f32 v%d, v%d, v%d" % (AC[0], AC[0], AC[0] + 1))
A("v_add_f32 v%d, v%d, v%d" % (AC[1], AC[1], AC[1] + 1))
A("s_lshl_b32 m0, s%d, 1" % sIT)
A("s_add_u32 s%d, s%d, 0x10000" % (sHC, sHC))
wave_sum2(AC[0], AC[1], sSUM, sSQ)
A("s_add_u32 s%d, s%d, 1" % (sIT, sIT))
A("s_nop 0")
A("v_writelane_b32 v%d, s%d, m0" % (hRES, sSUM))
A("s_add_u32 m0, m0, 1")
A("s_cmp_lg_u32 s%d, %d" % (sIT, EPW))
A("v_writelane_b32 v%d, s%d, m0" % (hRES, sSQ))
A("s_cbranch_scc1 Lhl")
def h_publish(lanes):
    A("v_cvt_pk_bf16_f32 v%d, v%d, v%d" % (hRES, hRES, hRES))
    A("v_and_b32 v%d, 0xffff0000, v%d" % (hRES, hRES))
    A("v_add_f32 v%d, s%d, v%d" % (hRES, sB2, hRES))
    A("v_cvt_pk_bf16_f32 v%d, v%d, v%d" % (hRES, hRES, hRES))
    A("v_and_b32 v%d, 0xffff0000, v%d" % (hRES + 1, hRES))
    A("s_mov_b64 exec, %d" % lanes)
    A("buffer_store_dword v%d, v27, %s, s%d offen sc1" % (hRES + 1, sr(sWS, 4), sHT))
    A("s_mov_b64 exec, -1")
A("s_waitcnt lgkmcnt(0)")
A("s_lshl_b32 s%d, s%d, 16" % (sB2, sB2))
lds_spin(8, 4, 24)
if not CMB: h_publish((1 << (2 * EPW)) - 1)
else:
    A("v_cvt_pk_bf16_f32 v%d, v%d, v%d" % (hRES, hRES, hRES))
    A("v_and_b32 v%d, 0xffff0000, v%d" % (hRES, hRES))
    A("v_add_f32 v%d, s%d, v%d" % (hRES, sB2, hRES))
    A("v_cvt_pk_bf16_f32 v%d, v%d, v%d" % (hRES, hRES, hRES))
    A("v_and_b32 v%d, 0xffff0000, v%d" % (hRES, hRES))
    C("the last of the four helpers stores the workgroup's 16 entries with one instruction")
    A("s_lshl_b32 s%d, s%d, 4" % (sT0, sW))
    A("v_lshl_add_u32 v16, v%d, 2, s%d" % (vLANE, sT0))
    A("v_add_u32 v16, %d, v16" % (L_FLG + 64))
    A("v_mov_b32 v17, 1")
    A("s_mov_b64 exec, 15")
    A("ds_write_b32 v16, v%d" % hRES)
    A("s_mov_b64 exec, 1")
    A("s_waitcnt lgkmcnt(0)")
    A("ds_add_rtn_u32 v18, v%d, v17 offset:56" % vFL)
    A("s_waitcnt lgkmcnt(0)")
    A("v_readfirstlane_b32 s%d, v18" % sT0)
    A("s_mov_b64 exec, 15")
    A("s_cmp_lg_u32 s%d, 3" % sT0)
    A("s_cbranch_scc1 Lhc_end")
    A("v_add_u32 v16, %d, v%d" % (L_FLG + 64, vL16))
    A("ds_read_b128 v[20:23], v16")
    A("s_lshl_b32 s%d, s2, 6" % sT1)
    A("s_add_u32 s%d, s%d, %s" % (sT1, sT1, hx(TB + XENT * 4)))
    A("s_waitcnt lgkmcnt(0)")
    A("buffer_store_dwordx4 v[20:23], v%d, %s, s%d offen sc1" % (vL16, sr(sWS, 4), sT1))
    LB("Lhc_end")
    A("s_mov_b64 exec, -1")
if QBD:
    C("the write-through copy of q is only needed when the group is not known to sit on one XCD")
    A("ds_read_b32 v24, v%d offset:4" % vFL)
    A("s_waitcnt lgkmcnt(0)")
    A("v_readfirstlane_b32 s%d, v24" % sT0)
    A("s_cmp_eq_u32 s%d, 4" % sT0)
    A("s_cbranch_scc1 Lhqb")
    A("s_mov_b64 exec, %s" % sr(sMSK, 2))
    A("buffer_store_dwordx4 %s, v%d, %s, s%d offen sc1" % (vr(W + 4, 4), vQST, sr(sWS, 4), sQS))
    A("s_mov_b64 exec, -1")
    LB("Lhqb")
if HPT: A("s_setprio 0")
STAMP(8)
MP("htab")
if XENT:
    A("s_mov_b32 s%d, s%d" % (sH, sHX)); A("s_mov_b32 s%d, s%d" % (sH + 1, sHX))
    for grp in [[0, 1, 2, 3], [4, 5, 6, 7], [8, 9, 10], [11, 12, 13]]:
        n = len(grp)
        for k, p in enumerate(grp): A("v_pk_fma_f32 %s, %s, %s, %s" % (vr(U4[k], 2), vr(HW1 + 2 * p, 2), sr(sH, 2), vr(HB1 + 2 * p, 2)))
        for k in range(n): A("v_pk_mul_f32 %s, %s, %s" % (vr(T4[k], 2), vr(U4[k], 2), vr(U4[k], 2)))
        for k in range(n): A("v_pk_fma_f32 %s, %s, %s, %s" % (vr(T4[k], 2), vr(T4[k], 2), vr(hK1, 2), vr(hK0, 2)))
        for k in range(n): A("v_pk_mul_f32 %s, %s, %s" % (vr(T4[k], 2), vr(T4[k], 2), vr(U4[k], 2)))
        for k in range(n):
            for h in range(2): A("v_exp_f32 v%d, v%d" % (T4[k] + h, T4[k] + h))
        for k, p in enumerate(grp): A("v_pk_mul_f32 %s, %s, %s" % (vr(Z4[k], 2), vr(U4[k], 2), vr(HW2 + 2 * p, 2)))
        for k in range(n): A("v_pk_add_f32 %s, %s, %s" % (vr(T4[k], 2), vr(T4[k], 2), vr(hONE, 2)))
        for k in range(n):
            for h in range(2): A("v_rcp_f32 v%d, v%d" % (T4[k] + h, T4[k] + h))
        for k, p in enumerate(grp):
            if p < 2: A("v_pk_mul_f32 %s, %s, %s" % (vr(AC[p & 1], 2), vr(Z4[k], 2), vr(T4[k], 2)))
            else: A("v_pk_fma_f32 %s, %s, %s, %s" % (vr(AC[p & 1], 2), vr(Z4[k], 2), vr(T4[k], 2), vr(AC[p & 1], 2)))
    A("v_add_f32 v%d, v%d, v%d" % (AC[0], AC[0], AC[0] + 1))
    A("v_add_f32 v%d, v%d, v%d" % (AC[1], AC[1], AC[1] + 1))
    A("v_add_f32 v%d, v%d, v%d" % (AC[0], AC[0], AC[1]))
    A("s_nop 1")
    wave_sum2(AC[0], AC[1], sSUM, sSQ)
    A("s_nop 1")
    A("v_mov_b32 v%d, s%d" % (hRES, sSUM))
    A("v_cvt_pk_bf16_f32 v%d, v%d, v%d" % (hRES, hRES, hRES))
    A("v_and_b32 v%d, 0xffff0000, v%d" % (hRES, hRES))
    A("v_add_f32 v%d, s%d, v%d" % (hRES, sB2, hRES))
    A("v_cvt_pk_bf16_f32 v%d, v%d, v%d" % (hRES, hRES, hRES))
    A("v_and_b32 v%d, 0xffff0000, v%d" % (hRES, hRES))
    C("the last of the four helpers stores the workgroup's four extra entries with one instruction")
    A("s_lshl_b32 s%d, s%d, 2" % (sT0, sW))
    A("v_add_u32 v16, s%d, v%d" % (sT0, vFL))
    A("v_mov_b32 v17, 1")
    A("s_mov_b64 exec, 1")
    A("ds_write_b32 v16, v%d offset:32" % hRES)
    A("s_waitcnt lgkmcnt(0)")
    A("ds_add_rtn_u32 v18, v%d, v17 offset:28" % vFL)
    A("s_waitcnt lgkmcnt(0)")
    A("v_readfirstlane_b32 s%d, v18" % sT0)
    A("s_cmp_lg_u32 s%d, 3" % sT0)
    A("s_cbranch_scc1 Lhx_end")
    A("ds_read_b128 v[20:23], v%d offset:32" % vFL)
    A("s_lshl_b32 s%d, s2, 4" % sT0)
    A("v_mov_b32 v16, s%d" % sT0)
    A("s_waitcnt lgkmcnt(0)")
    A("buffer_store_dwordx4 v[20:23], v16, %s, s%d offen sc1" % (sr(sWS, 4), sHT))
    LB("Lhx_end")
    A("s_mov_b64 exec, -1")
if DIAG:
    A("s_memtime s[42:43]"); A("s_waitcnt lgkmcnt(0)"); A("v_writelane_b32 v30, s42, 14")
    STAMP(15)
MP("qv")
STAMP(7)
C("stand in at the two barriers of the second layer, so that they do not wait for this wave's store acknowledgements")
A("s_barrier")
A("s_barrier")
if MEAS and OPT["q"][0] == "h":
    A("s_mov_b64 exec, 1"); A("v_mov_b32 v16, s97"); A("global_atomic_umax v[30:31], v16, off sc1")
if DIAG:
    A("s_add_u32 s%d, s%d, 4" % (sW, sW))
    A("v_mov_b32 v28, v30")
    A("s_branch Lfin_exit")
A("s_endpgm")

LB("Lmain")
for s, off in [(sWS, 96), (sV, 16), (sWO, 32), (sOUT, 80), (sX, 0), (sB2P, 72)]:
    A("s_load_dwordx2 %s, s[0:1], %d" % (sr(s, 2), off))
if MEAS: A("s_load_dwordx2 s[42:43], s[0:1], 88"); A("s_waitcnt lgkmcnt(0)"); A("s_mov_b32 s25, s42"); A("s_mov_b32 s99, s43") if False else None; A("v_mov_b32 v30, s42"); A("v_mov_b32 v31, s43")
srd(sWS, WS_SZ)
for s in [sW1, sB1, sW2]: srd(s, 3584)
A("s_lshl_b32 s%d, s%d, 10" % (sT3, sW))
A("s_barrier")
for i in range(D0, DC): kv_issue(i)
A("s_mov_b32 m0, s%d" % sT3)
for i, sd in enumerate([sW1, sB1, sW2]):
    if i: A("s_addk_i32 m0, 0x1000")
    A("s_nop 0")
    A("buffer_load_dwordx4 v%d, %s, s%d offen lds" % (vL16, sr(sd, 4), sT3))
for i in range(DC, D1): kv_issue(i)
for i in range(4): A("v_mov_b32 v%d, -1" % (W + i))
A("s_lshl_b32 s%d, s%d, 17" % (sGR, sJ))
A("s_mov_b32 s%d, s%d" % (sT1, sM))
A("s_waitcnt lgkmcnt(0)")
A("s_load_dword s%d, %s, %s" % (sE, sr(sWS, 2), hx(EPO)))
STAMP(11)
MP("k3")
for s, n in [(sV, 1 << 25), (sX, 4096), (sWO, 1 << 22), (sOUT, 4096)]: srd(s, n)
A("v_lshlrev_b32 v18, 1, v16")
A("v_xor_b32 v18, v17, v18")
A("v_lshlrev_b32 v18, 4, v18")
A("v_lshl_add_u32 v%d, v16, 8, v18" % vVA)
if ROT:
    A("s_and_b32 s%d, s%d, 1" % (sT0, sC))
    A("s_lshl_b32 s%d, s%d, 7" % (sT0, sT0))
    A("v_xor_b32 v%d, s%d, v%d" % (vVA, sT0, vVA))
A("v_xor_b32 v%d, 128, v%d" % (vVA + 1, vVA))
C("late sentinels: wave 0,1: group region ; wave 2: P chunk")
A("s_lshr_b32 s%d, s2, 3" % sT1)
A("s_mul_i32 s%d, s%d, %d" % (sT1, sT1, CLRB_PER))
A("s_lshl_b32 s%d, s%d, 10" % (sT0, sW))
A("s_add_u32 s%d, s%d, s%d" % (sT1, sT1, sT0))
A("s_add_u32 s%d, s%d, s%d" % (sT1, sT1, sGR))
A("s_add_u32 s%d, s%d, %d" % (sT1, sT1, CLRB_OFF))
A("s_lshl_b32 s%d, s2, 10" % sT0)
A("s_add_u32 s%d, s%d, %s" % (sT0, sT0, hx(PB)))
A("s_cmp_ge_u32 s%d, 2" % sW)
A("s_cselect_b32 s%d, s%d, s%d" % (sT1, sT0, sT1))
A("s_bfm_b64 %s, %d, 0" % (sr(sH, 2), (CLRB_PER - 1024) // 16))
A("s_cmp_eq_u32 s%d, 1" % sW)
A("s_cselect_b64 %s, %s, -1" % (sr(sH, 2), sr(sH, 2)))
NCL = NOCT * 4 // 16
A("v_mov_b32 v19, v%d" % vL16)
A("s_cmp_lg_u32 s%d, 3" % sW)
A("s_cbranch_scc1 Lm_c3")
C("wave 3: this workgroup's table slots")
A("s_mul_i32 s%d, s2, %d" % (sT0, NOCT * 4))
A("s_add_u32 s%d, s%d, %d" % (sT0, sT0, XENT * 4))
A("v_add_u32 v19, s%d, v19" % sT0)
A("s_lshl_b32 s%d, s2, 4" % sT0)
if XENT: A("v_writelane_b32 v19, s%d, %d" % (sT0, NCL))
A("s_mov_b32 s%d, %s" % (sT1, hx(TB)))
A("s_mov_b64 %s, %d" % (sr(sH, 2), (1 << (NCL + (1 if XENT else 0))) - 1))
LB("Lm_c3")
A("s_mov_b64 exec, %s" % sr(sH, 2))
A("buffer_store_dwordx4 %s, v19, %s, s%d offen sc1" % (vr(W, 4), sr(sWS, 4), sT1))
A("s_mov_b64 exec, -1")

common_addr()
A("s_add_u32 s%d, s%d, s%d" % (sQS, sQS, sGR))
A("s_add_u32 s%d, s%d, %d" % (sQS, sQS, Q1_OFF))
wtile_voff(10, 22)
A("v_and_b32 v19, 7, v%d" % vLANE)
A("v_lshrrev_b32 v25, 2, v%d" % vLANE)
A("v_lshlrev_b32 v25, 7, v25")
A("v_lshl_add_u32 v%d, v18, 2, v25" % vOST)
A("v_lshlrev_b32 v25, 7, v16")
A("v_lshl_add_u32 v%d, v19, 4, v25" % vOLD)
C("lanes n>=8 of the first two o loads fetch the lse values instead: offset relative to the o block")
A("s_mul_i32 s%d, s%d, %d" % (sT0, sA, 128 - 8192))
A("s_mul_i32 s%d, s%d, %d" % (sT1, sW, 32 - 2048))
A("s_add_u32 s%d, s%d, s%d" % (sT0, sT0, sT1))
A("s_add_u32 s%d, s%d, %d" % (sT0, sT0, LSE_OFF[0] - O_OFF[0]))
A("v_add_u32 v25, s%d, v%d" % (sT0, vLSE))
A("v_xor_b32 v26, 16, v25")
A("v_add_u32 v26, -512, v26")
A("v_cmp_gt_u32 vcc, 8, v17")
A("s_nop 1")
A("v_cndmask_b32 v%d, v25, v%d, vcc" % (vLSE, vOLD))
A("v_cndmask_b32 v%d, v26, v%d, vcc" % (vLS2, vOLD))
A("v_lshlrev_b32 v%d, 1, v%d" % (vPST, vLANE))
A("v_lshlrev_b32 v25, 3, v16")
A("v_lshl_add_u32 v%d, v19, 4, v25" % vX1S)
A("s_mul_i32 s%d, s%d, %d" % (sT0, sW, RBS))
A("s_add_u32 s%d, s%d, %d" % (sT0, sT0, L_RB))
A("v_mul_u32_u24 v25, 528, v18")
A("v_lshl_add_u32 v25, v16, 4, v25")
A("v_lshrrev_b32 v26, 2, v17")
A("v_lshl_add_u32 v25, v26, 7, v25")
A("v_add_u32 v%d, s%d, v25" % (vRBW, sT0))
A("s_mul_i32 s%d, s%d, 528" % (sT0, sW))
A("s_add_u32 s%d, s%d, %d" % (sT0, sT0, L_RB))
A("v_lshlrev_b32 v25, 3, v%d" % vLANE)
A("v_add_u32 v%d, s%d, v25" % (vRBR, sT0))
A("s_lshl_b32 s%d, s%d, 3" % (sT0, sW))
A("s_add_u32 s%d, s%d, %d" % (sT0, sT0, L_ML))
A("v_lshlrev_b32 v25, 5, v18")
A("v_add_u32 v%d, s%d, v25" % (vMLW, sT0))
A("s_lshl_b32 s%d, s%d, 5" % (sT0, sW))
A("s_add_u32 s%d, s%d, %d" % (sT0, sT0, L_ML))
A("v_mov_b32 v%d, s%d" % (vMLR, sT0))
A("v_mov_b32 v25, 0x3f80")
A("v_mov_b32 v26, 0x3f800000")
for r in range(4):
    A("v_cmp_eq_u32 vcc, %d, v17" % (2 * r))
    A("v_cmp_eq_u32 %s, %d, v17" % (sr(sH, 2), 2 * r + 1))
    A("s_nop 0")
    A("v_cndmask_b32 v%d, 0, v25, vcc" % (SEL + r))
    A("v_cndmask_b32 v%d, v%d, v26, %s" % (SEL + r, SEL + r, sr(sH, 2)))
for i in range(16): A("v_mov_b32 v%d, 0" % (PM + i))
for p in range(4):
    A("s_mov_b32 s%d, %s" % (sPM + 2 * p, hx(0x000f000f << (4 * p))))
    A("s_mov_b32 s%d, %s" % (sPM + 2 * p + 1, hx(0x000f000f << (4 * p))))
soff(sOS, [(sW, 13), (sA, 11), (sC, 4), (sJ, 17)], O_OFF[0])
soff(sOL, [(sA, 13), (sW, 11), (sJ, 17)], O_OFF[0])
A("s_add_u32 s%d, s%d, %s" % (sQL, sOL, hx(Q0_OFF - O_OFF[0])))
soff(sLS, [(sW, 7), (sA, 5), (sC, 2), (sJ, 17)], LSE_OFF[0])
soff(sPS, [(sW, 15), (sC, 12), (sJ, 9), (sA, 7)], PB)
A("s_mov_b32 s%d, %s" % (sSC, hx(f2u(128 ** -0.5 * math.log2(math.e)))))
A("s_getreg_b32 s%d, hwreg(HW_REG_XCC_ID, 0, 3)" % sXCC)
A("v_xor_b32 v24, v16, v17")
A("v_lshlrev_b32 v24, 4, v24")
A("v_lshl_add_u32 v24, v17, 8, v24")
A("s_lshl_b32 s%d, s%d, 13" % (sT1, sW))
A("s_add_u32 s%d, s%d, %d" % (sT2, sT1, L_K))
for t in range(4): A("v_xor_b32 v%d, %d, v24" % (18 + t, 64 * t))
for t in range(4): A("v_add_u32 v%d, s%d, v%d" % (18 + t, sT2, 18 + t))
VA = W + 32
A("v_lshrrev_b32 v24, 2, v%d" % vLANE)
A("v_and_b32 v25, 7, v24")
A("v_lshlrev_b32 v25, 1, v25")
A("v_bfe_u32 v26, v%d, 1, 1" % vLANE)
A("v_xor_b32 v25, v25, v26")
A("v_lshlrev_b32 v25, 4, v25")
A("v_lshl_add_u32 v25, v24, 8, v25")
A("v_and_b32 v26, 1, v%d" % vLANE)
A("v_lshl_add_u32 v25, v26, 3, v25")
A("s_add_u32 s%d, s%d, %d" % (sT2, sT1, L_V))
for t in range(8): A("v_xor_b32 v%d, %d, v25" % (VA + t, 32 * t))
for t in range(8): A("v_add_u32 v%d, s%d, v%d" % (VA + t, sT2, VA + t))
soff(sT4, [(sJ, 19), (sA, 17), (sW, 15), (sC, 7)], 0)
A("s_lshl_b32 s%d, s%d, 12" % (sT5, sW))
A("s_add_u32 s%d, s%d, %d" % (sT5, sT5, L_WO))
soff(sT3, [(sA, 10), (sC, 7)], 0)
A("v_lshlrev_b32 v24, 5, v%d" % vLANE)
A("s_lshl_b32 s%d, s%d, 10" % (sT2, sW))
A("s_add_u32 s%d, s%d, %d" % (sT2, sT2, L_QF))
A("v_add_u32 v25, s%d, v%d" % (sT2, vL16))
A("v_add_u32 v26, %d, v%d" % (L_QF, vL16))
STAMP(12)
if DIAG: A("v_mov_b32 v31, v30")
QP = W
def q0_issue(QP=QP):
    A("buffer_load_dwordx4 %s, v24, %s, s%d offen sc1" % (vr(QP, 4), sr(sWS, 4), sQL))
    A("buffer_load_dwordx4 %s, v24, %s, s%d offen offset:16 sc1" % (vr(QP + 4, 4), sr(sWS, 4), sQL))
def flag_block():
    if True:
        A("s_cmp_lg_u32 s%d, 0" % sW)
        A("s_cbranch_scc1 Lnoflag")
        C("every sentinel store of this workgroup is acknowledged: announce it")
        lds_spin(8, 4, vT)
        A("v_mov_b32 v16, s%d" % sTG1)
        A("v_mov_b32 v17, s%d" % sXCC)
        soff(sT1, [(2, 4)], FB)
        A("s_mov_b64 exec, 1")
        A("buffer_store_dwordx2 v[16:17], v%d, %s, s%d offen sc1" % (PM, sr(sWS, 4), sT1))
        A("s_mov_b64 exec, -1")
        LB("Lnoflag")
C("coefficients landed -> tell the helpers")
young = D1 - DC + 1
told = False
st_arr = st_fl = False
if ECO:
    A("s_waitcnt vmcnt(%d)" % young); lds_arrive(24, vT); told = True
A("s_mov_b32 s%d, 0" % sY)
for i in range(D1, 16):
    dp = DEPTH if i < TAILI else TAILD
    extra = 1 if i == 16 - QV else 0
    if ADP and told:
        C("stay shallow until the helpers have issued their q stores")
        A("s_cmp_lg_u32 s%d, 0" % sY)
        A("s_cbranch_scc1 Ldp%d" % i)
        A("ds_read_b32 v%d, v%d offset:52" % (vT, vFL))
        A("s_waitcnt lgkmcnt(0)")
        A("v_readfirstlane_b32 s%d, v%d" % (sT1, vT))
        A("s_cmp_ge_u32 s%d, 4" % sT1)
        A("s_cselect_b32 s%d, 1, 0" % sY)
        A("s_cbranch_scc1 Ldp%d" % i)
        A("s_waitcnt vmcnt(%d)" % (dp - 1 - 2 * extra))
        LB("Ldp%d" % i)
        A("s_waitcnt vmcnt(%d)" % (ADP - 1 - 2 * extra))
        if extra: q0_issue(); young += 2
    else:
        if extra:
            A("s_waitcnt vmcnt(%d)" % (dp - 2)); q0_issue(); young += 2
            if DIAG:
                A("s_memrealtime s[42:43]"); A("s_waitcnt lgkmcnt(0)"); A("v_writelane_b32 v31, s42, 9")
        if QV2 and i == 16 - QV2:
            A("s_waitcnt vmcnt(%d)" % (dp - 2)); q0_issue(XR); young += 2
        A("s_waitcnt vmcnt(%d)" % (dp - 1))
    if not told and young >= dp - 1:
        lds_arrive(24, vT); told = True
    if EFL:
        ycl = young - (D1 - DC + 1)
        if st_arr and not st_fl:
            flag_block(); st_fl = True
        if not st_arr and ycl >= dp - 1:
            lds_arrive(8, vT); A("s_waitcnt lgkmcnt(0)"); tags(); A("s_or_b32 s%d, s%d, s%d" % (sXCC, sXCC, sTG2)); st_arr = True
    kv_issue(i); young += 1
assert told
q0_issue(QP + 8)
C("everything older than the V loads is complete: K, late sentinels")
A("s_waitcnt vmcnt(%d)" % (14 if QV2 else 12))
if EFL: assert st_fl
else:
    lds_arrive(8, vT)
    A("s_waitcnt lgkmcnt(0)")
    tags()
    A("s_or_b32 s%d, s%d, s%d" % (sXCC, sXCC, sTG2))
STAMP(1)
MP("kl")
for t in range(4):
    for T in range(2):
        A("ds_read_b128 %s, v%d offset:%d" % (vr(KF + 16 * T + 4 * t, 4), 18 + t, 4096 * T))
if not EFL: flag_block()
def wait_w0(n):
    if EFL:
        A("s_waitcnt vmcnt(%d)" % n); return
    uid[0] += 1
    A("s_cmp_eq_u32 s%d, 0" % sW)
    A("s_cbranch_scc1 Lww%d" % uid[0])
    A("s_waitcnt vmcnt(%d)" % n)
    LB("Lww%d" % uid[0])
    A("s_waitcnt vmcnt(%d)" % (n + 1))
wait_w0(QV + 2 + (2 if QV2 else 0))
STAMP(2)
A("s_setprio 2")
A("s_mov_b32 s%d, %s" % (sCNT, hx(SPIN)))
A("s_mov_b32 s%d, 0" % sY)
A("s_mov_b32 s%d, 0" % sIT)
LB("Lmq")
A("v_and_b32 v16, -8, v%d" % (QP + 3))
A("v_and_b32 v17, -8, v%d" % (QP + 7))
A("v_cmp_ne_u32 vcc, s%d, v%d" % (sTG1, QP + 2))
A("v_cmp_ne_u32 %s, s%d, v%d" % (sr(sRET, 2), sTG1, QP + 6))
A("s_or_b64 vcc, vcc, %s" % sr(sRET, 2))
A("v_cmp_ne_u32 %s, s%d, v16" % (sr(sRET, 2), sTG2))
A("s_or_b64 vcc, vcc, %s" % sr(sRET, 2))
A("v_cmp_ne_u32 %s, s%d, v17" % (sr(sRET, 2), sTG2))
A("s_or_b64 vcc, vcc, %s" % sr(sRET, 2))
if not int(OPT.get("nochk", 0)): A("s_cbranch_vccnz Lmqr")
LB("Lmqd")
if DIAG:
    A("s_sub_u32 s%d, s%d, s%d" % (sT0, sCNT, sY)); A("v_writelane_b32 v31, s%d, 0" % sT0)
Ls = L; L = []
L.append(".p2align 6"); LB("Lst_mq"); A("s_setpc_b64 %s" % sr(sRET, 2))
LB("Lmqr")
A("s_cmp_lg_u32 s%d, 0" % sY)
A("s_cbranch_scc1 Lmqr2")
if QV2:
    A("s_cmp_lg_u32 s%d, 0" % sIT)
    A("s_cbranch_scc1 Lmqr1")
    A("s_mov_b32 s%d, 1" % sIT)
    wait_w0(QV2 + 2)
    for k in range(8): A("v_mov_b32 v%d, v%d" % (QP + k, XR + k))
    A("s_branch Lmq")
    LB("Lmqr1")
C("first look failed: take the second one (V has landed with it: request its fragments now)")
A("s_waitcnt vmcnt(0)")
A("s_mov_b32 s%d, 1" % sY)
for k in range(8): A("v_mov_b32 v%d, v%d" % (QP + k, QP + 8 + k))
if not VLATE:
    for t in range(8):
        for hf in range(2):
            A("ds_read_b64_tr_b16 %s, v%d offset:%d" % (vr(VF + 4 * t + 2 * hf, 2), VA + t, 4096 * hf))
A("s_branch Lmq")
LB("Lmqr2")
C("still not there: poll the plain copy a few times, then both copies in turn")
A("s_cmp_le_u32 s%d, %s" % (sCNT, hx(SPIN - 6)))
A("s_cselect_b32 s%d, %s, 0" % (sT0, hx(QB_DELTA)))
A("s_xor_b32 s%d, s%d, s%d" % (sQL, sQL, sT0))
q0_issue()
A("s_waitcnt vmcnt(0)")
A("s_sub_u32 s%d, s%d, 1" % (sCNT, sCNT))
A("s_cbranch_scc0 Lmq")
A("s_branch Lmqd")
ool.append(L); L = Ls
A("v_cmp_ne_u32 vcc, s%d, v%d" % (sXCC, QP + 3))
A("v_mov_b32 v%d, v%d" % (QP + 2, QP + 4))
A("v_mov_b32 v%d, v%d" % (QP + 3, QP + 5))
A("ds_write_b128 v25, %s" % vr(QP, 4))
A("s_cmp_eq_u64 vcc, 0")
A("s_cselect_b32 s%d, 1, 0x101" % sT0)
A("v_mov_b32 v16, s%d" % sT0)
A("s_waitcnt lgkmcnt(0)")
lds_arrive(4, 16, None)
if VLATE:
    A("s_cmp_eq_u32 s%d, 0" % sY)
    A("s_cbranch_scc1 Lnvf")
    for t in range(8):
        for hf in range(2):
            A("ds_read_b64_tr_b16 %s, v%d offset:%d" % (vr(VF + 4 * t + 2 * hf, 2), VA + t, 4096 * hf))
    LB("Lnvf")
STAMP(15)
MP("qv")
A("buffer_load_dwordx2 %s, v%d, %s, s%d offen" % (vr(RES + 2, 2), vX1S, sr(sX, 4), sT3))
FLG = W + 44
soff(sIT, [(sW, 10)], FB)
soff(sQL, [(sA, 12), (sJ, 17)], Q1_OFF)
for k in range(4):
    A("s_add_u32 s%d, s%d, %d" % (sT0, sC, k))
    A("s_and_b32 s%d, s%d, 3" % (sT0, sT0))
    A("s_lshl_b32 s%d, s%d, 10" % (sKO + k, sT0))
A("s_and_b32 s%d, s%d, 1" % (sT0, sC))
A("s_lshl_b32 s%d, s%d, 6" % (sT0, sT0))
A("v_xor_b32 v22, s%d, v22" % sT0); A("v_xor_b32 v23, s%d, v23" % sT0)
A("s_lshl_b32 s%d, s%d, 2" % (sT3, sM))
A("s_add_u32 s%d, s%d, s%d" % (sT3, sT3, sW))
A("s_lshl_b32 s%d, s%d, 8" % (sT3, sT3))
A("v_lshlrev_b32 v21, 7, v%d" % vLANE)
A("v_add_u32 v21, s%d, v21" % sT3)
A("s_lshl_b32 s%d, s%d, 7" % (sT0, sW))
A("s_add_u32 s%d, s%d, %d" % (sT0, sT0, LSE_OFF[0]))
A("v_writelane_b32 v21, s%d, 2" % sT0)
lds_spin(4, 4, vT, mask=0xff)
A("s_cmp_lt_u32 s%d, 256" % sT1)
A("s_cselect_b32 s%d, %d, 0" % (sFAST, int(OPT.get("fast", 1))))
QF = W + 16
for t in range(4):
    A("ds_read_b128 %s, v26 offset:%d" % (vr(QF + 4 * t, 4), 1024 * t))
S = W
qk = []
for t in range(4):
    for T in range(2):
        qk.append(mf(S + 4 * T, KF + 16 * T + 4 * t, QF + 4 * t, None if t == 0 else S + 4 * T))
for t in range(4):
    A("s_waitcnt lgkmcnt(%d)" % (3 - t))
    A(qk[2 * t]); A(qk[2 * t + 1])
def wo_issue():
    C("every wave holds its K fragments: the wo tile may land in the K area")
    for k in range(4):
        A("s_add_u32 m0, s%d, s%d" % (sT5, sKO + k))
        A("s_lshl3_add_u32 s%d, s%d, s%d" % (sT0, sKO + k, sT4))
        A("buffer_load_dwordx4 v%d, %s, s%d offen nt lds" % (22 + (k & 1), sr(sWO, 4), sT0))
if WOP == 0: wo_issue()
if PRET:
    C("bring the first layer's o / lse lines (their sentinels are in place) into L2")
    A("s_mov_b64 exec, 7")
    A("buffer_load_dword v%d, v21, %s, s%d offen sc1" % (W + 40, sr(sWS, 4), sGR))
    A("s_mov_b64 exec, -1")
STAMP(3)
A("s_branch Lk_go")

LB("Llnq")
C("LayerNorm of the row held in XR, then q partial = xn @ wq tile")
X = W
row_stats(XR, vT, X)
A("v_add_f32 v%d, %s, v%d" % (vT + 1, EPS, vT + 1))
A("v_rsq_f32 v%d, v%d" % (vT + 2, vT + 1))
A("s_cmp_eq_u32 s%d, 0" % sLAY)
A("v_mul_f32 v%d, v%d, v%d" % (vT + 3, vT, vT + 2))
for i in range(4):
    A("v_pk_fma_f32 %s, %s, %s, %s op_sel:[0,0,1] op_sel_hi:[1,0,1] neg_lo:[0,0,1] neg_hi:[0,0,1]" % (vr(X + 2 * i, 2), vr(X + 2 * i, 2), vr(vT + 2, 2), vr(vT + 2, 2)))
for i in range(4):
    A("v_cvt_pk_bf16_f32 v%d, v%d, v%d" % (X + 8 + i, X + 2 * i, X + 2 * i + 1))
A("ds_write_b128 v%d, %s" % (vXNW, vr(X + 8, 4)))
A("s_cbranch_scc1 Lq_first")
A("s_waitcnt lgkmcnt(0)")
A("s_barrier")
LB("Lq_go")
BF = W + 16
for t in range(4):
    A("ds_read_b128 %s, v%d offset:%d" % (vr(BF + 4 * t, 4), vXNR, 64 * t))
for t in range(4):
    A("s_waitcnt lgkmcnt(%d)" % (3 - t))
    mfma(W, WQF + 4 * t, BF + 4 * t, None if t == 0 else W)
A("s_cmp_eq_u32 s%d, 0" % sLAY)
A("s_mov_b64 exec, %s" % sr(sMSK, 2))
NOP(6)
A("v_cvt_pk_bf16_f32 v%d, v%d, v%d" % (W + 4, W, W + 1))
A("v_cvt_pk_bf16_f32 v%d, v%d, v%d" % (W + 5, W + 2, W + 3))
A("s_cbranch_scc1 Lh_qst")
fastcmp()
store_local("buffer_store_dwordx2", vr(W + 4, 2), vQST, sQS)
A("s_mov_b64 exec, -1")
A("ds_write_b128 v%d, %s offset:%d" % (vXNW, vr(XR, 4), L_X2 - L_XN))
A("s_mov_b32 s%d, 0" % sY)
for s, d in [(sOL, O_OFF[1] - O_OFF[0]), (sOS, O_OFF[1] - O_OFF[0]), (sLS, LSE_OFF[1] - LSE_OFF[0]), (sPS, P_L)]:
    A("s_add_u32 s%d, s%d, %d" % (s, s, d))
STAMP(2)

C("attention over this workgroup's 128 keys")
if QS:
    C("each wave fetches one k-step of q and shares it through LDS")
    A("s_lshl_b32 s%d, s%d, 10" % (sT3, sW))
    A("s_add_u32 s%d, s%d, s%d" % (sT4, sQL, sT3))
    A("s_add_u32 s%d, s%d, %d" % (sT3, sT3, L_RB + 12288))
    A("v_add_u32 v25, s%d, v%d" % (sT3, vL16))
    A("v_add_u32 v26, %d, v%d" % (L_RB + 12288, vL16))
    ppoll(lambda k: A("buffer_load_dwordx4 %s, v%d, %s, s%d offen sc1" % (vr(W + 32 + 4 * k, 4), vL16, sr(sWS, 4), sT4)),
          lambda k: range(W + 32 + 4 * k, W + 36 + 4 * k), 1, vT, lambda k: ["ds_write_b128 v25, %s" % vr(W + 32 + 4 * k, 4)], pre=QPRE, gap=QGAP, tag=0)
    A("s_waitcnt lgkmcnt(0)")
    A("s_barrier")
    for t in range(4):
        A("ds_read_b128 %s, v26 offset:%d" % (vr(QF + 4 * t, 4), 1024 * t))
    for t in range(4):
        A("s_waitcnt lgkmcnt(%d)" % (3 - t))
        A(qk[2 * t]); A(qk[2 * t + 1])
    touch_stub("k")
else:
    def iq(k):
        for t in range(4):
            A("buffer_load_dwordx4 %s, v%d, %s, s%d offen offset:%d sc1" % (vr(QF + 16 * k + 4 * t, 4), vL16, sr(sWS, 4), sQL, 1024 * t))
    def qks(k):
        return [mf(S + 4 * T, KF + 16 * T + 4 * t, QF + 16 * k + 4 * t, None if t == 0 else S + 4 * T) for t in range(4) for T in range(2)]
    ppoll(iq, lambda k: range(QF + 16 * k, QF + 16 * k + 16), 4, vT, qks, pre=QPRE, gap=QGAP, tag=0, stub="k", per_load=lambda k, i: qks(k)[2 * i:2 * i + 2])
STAMP(3)
LB("Lk_go")
NOP(5)
for ctl in ["row_ror:4", "row_ror:8"]:
    for i in range(8):
        A("v_add_f32_dpp v%d, v%d, v%d %s row_mask:0xf bank_mask:0xf" % (S + i, S + i, S + i, ctl))
A("v_max3_f32 v%d, v%d, v%d, v%d" % (vT, S, S + 1, S + 2))
A("v_max3_f32 v%d, v%d, v%d, v%d" % (vT + 1, S + 3, S + 4, S + 5))
A("v_max3_f32 v%d, v%d, v%d, v%d" % (vT, vT, S + 6, S + 7))
A("v_max_f32 v%d, v%d, v%d" % (vT, vT, vT + 1))
A("v_mov_b32 v%d, v%d" % (vT + 1, vT))
A("s_nop 1")
A("v_permlane16_swap_b32 v%d, v%d" % (vT, vT + 1))
A("v_max_f32 v%d, v%d, v%d" % (vT, vT, vT + 1))
A("v_mov_b32 v%d, v%d" % (vT + 1, vT))
A("s_nop 1")
A("v_permlane32_swap_b32 v%d, v%d" % (vT, vT + 1))
A("v_max_f32 v%d, v%d, v%d" % (vT, vT, vT + 1))
A("v_mul_f32 v%d, s%d, v%d" % (vT + 2, sSC, vT))
for i in range(8):
    A("v_fma_f32 v%d, v%d, s%d, -v%d" % (S + i, S + i, sSC, vT + 2))
for i in range(8):
    A("v_exp_f32 v%d, v%d" % (S + i, S + i))
for p in range(4):
    A("s_mov_b64 exec, %s" % sr(sPM + 2 * p, 2))
    for i in range(4):
        A("v_cvt_pk_bf16_f32 v%d, v%d, v%d" % (PM + 4 * p + i, S + 2 * i, S + 2 * i + 1))
A("s_mov_b64 exec, -1")
STAMP(4)
A("s_cmp_lg_u32 s%d, 0" % sLAY)
A("s_cbranch_scc1 Lv_go")
wait_w0((5 if WOP == 0 else 1) + PRET)
if WOP == 1: wo_issue()
A("buffer_load_dwordx4 %s, v%d, %s, s%d offen sc1" % (vr(FLG, 4), vL16, sr(sWS, 4), sIT))
STAMP(6)
A("s_cmp_lg_u32 s%d, 0" % sY)
A("s_cbranch_scc1 Lv_have")
for t in range(8):
    for hf in range(2):
        A("ds_read_b64_tr_b16 %s, v%d offset:%d" % (vr(VF + 4 * t + 2 * hf, 2), VA + t, 4096 * hf))
A("s_waitcnt lgkmcnt(0)")
LB("Lv_have")
if TOT:
    A("s_memrealtime s[42:43]"); A("s_waitcnt lgkmcnt(0)"); A("s_mov_b32 s97, s42")
MP("pv")
if MEAS and OPT["q"] in ("tg", "s1"): A("s_mov_b32 s97, s98")
A("s_cmp_lg_u32 s%d, 0" % sLAY)
LB("Lv_go")
OA = W + 8
mfma(W + 16, ONES, PM, None)
for p in range(4):
    for T in range(2):
        mfma(OA + 4 * T, VF + 4 * (2 * p + T), PM + 4 * p, None if p == 0 else OA + 4 * T)
A("s_mov_b64 exec, %s" % sr(sMSK, 2))
A("v_mov_b32 v%d, v%d" % (vT + 3, W + 16))
A("ds_write_b64 v%d, %s" % (vMLW, vr(vT + 2, 2)))
A("s_mov_b64 exec, -1")
NOP(3)
A("ds_write_b128 v%d, %s" % (vRBW, vr(OA, 4)))
A("ds_write_b128 v%d, %s offset:64" % (vRBW, vr(OA + 4, 4)))
A("s_waitcnt lgkmcnt(0)")
A("s_cbranch_scc1 Lrb_bar")
lds_arrive(12, vT + 4)
if WOP == 2: wo_issue()
lds_spin(12, 4, vT + 4)
A("s_branch Lrb_go")
LB("Lrb_bar")
A("s_barrier")
LB("Lrb_go")
A("ds_read_b128 %s, v%d" % (vr(W, 4), vMLR))
A("ds_read_b128 %s, v%d offset:16" % (vr(W + 4, 4), vMLR))
for w in range(4):
    A("ds_read_b64 %s, v%d offset:%d" % (vr(W + 8 + 2 * w, 2), vRBR, RBS * w))
A("v_mov_b32 v%d, 0" % (vT + 4))
fastcmp()
A("s_waitcnt lgkmcnt(4)")
A("v_max3_f32 v%d, v%d, v%d, v%d" % (vT, W, W + 2, W + 4))
A("v_max_f32 v%d, v%d, v%d" % (vT, vT, W + 6))
for w in range(4): A("v_sub_f32 v%d, v%d, v%d" % (W + 2 * w, W + 2 * w, vT))
for w in range(4): A("v_exp_f32 v%d, v%d" % (W + 2 * w, W + 2 * w))
A("v_mul_f32 v%d, v%d, v%d" % (vT + 1, W, W + 1))
for w in range(1, 4): A("v_fmac_f32 v%d, v%d, v%d" % (vT + 1, W + 2 * w, W + 2 * w + 1))
A("s_waitcnt lgkmcnt(0)")
A("v_pk_mul_f32 %s, %s, %s op_sel_hi:[1,0]" % (vr(W + 8, 2), vr(W + 8, 2), vr(W, 2)))
A("v_rcp_f32 v%d, v%d" % (vT + 2, vT + 1))
A("v_pk_fma_f32 %s, %s, %s, %s op_sel_hi:[1,0,1]" % (vr(W + 8, 2), vr(W + 10, 2), vr(W + 2, 2), vr(W + 8, 2)))
A("v_log_f32 v%d, v%d" % (vT + 5, vT + 1))
for w in range(2, 4):
    A("v_pk_fma_f32 %s, %s, %s, %s op_sel_hi:[1,0,1]" % (vr(W + 8, 2), vr(W + 8 + 2 * w, 2), vr(W + 2 * w, 2), vr(W + 8, 2)))
A("v_pk_mul_f32 %s, %s, %s op_sel_hi:[1,0]" % (vr(W + 8, 2), vr(W + 8, 2), vr(vT + 2, 2)))
A("v_add_f32 v%d, v%d, v%d" % (vT + 5, vT + 5, vT))
A("v_cvt_pk_bf16_f32 v%d, v%d, v%d" % (W + 8, W + 8, W + 9))
store_local("buffer_store_dword", "v%d" % (W + 8), vOST, sOS)
A("s_mov_b64 exec, 1")
store_local("buffer_store_dword", "v%d" % (vT + 5), vT + 4, sLS)
A("s_mov_b64 exec, -1")
STAMP(5)

C("wo phase: wave = batch, rows = key splits")
OF = W; LS = W + 32; DA = WQF
assert LSE_OFF[1] - O_OFF[1] == LSE_OFF[0] - O_OFF[0]
def io(k):
    for t in range(4):
        A("buffer_load_dwordx4 %s, v%d, %s, s%d offen offset:%d sc1" % (vr(OF + 16 * k + 4 * t, 4), [vLSE, vLS2, vOLD, vOLD][t], sr(sWS, 4), sOL, 512 * t))
A("s_cmp_lg_u32 s%d, 0" % sLAY)
A("s_cbranch_scc1 Lo_go")
C("first layer: wo tile landed -> fragments; every workgroup has announced its clears")
if WOP == 3: wo_issue()
A("s_waitcnt vmcnt(%d)" % (2 if WOP < 3 else 0))
STAMP(13)
A("s_mov_b32 s%d, %s" % (sT4, hx(SPIN)))
LB("Lap")
A("v_and_b32 v24, -8, v%d" % (FLG + 1))
A("v_cmp_ne_u32 vcc, s%d, v%d" % (sTG1, FLG))
A("v_cmp_ne_u32 %s, s%d, v24" % (sr(sH, 2), sTG2))
A("s_or_b64 vcc, vcc, %s" % sr(sH, 2))
A("s_cbranch_vccnz Lar")
LB("Lad")
lds_arrive(16, 24)
for i in range(2):
    A("v_lshlrev_b32 v%d, 16, v%d" % (W + 40 + 2 * i, RES + 2 + i))
    A("v_and_b32 v%d, 0xffff0000, v%d" % (W + 41 + 2 * i, RES + 2 + i))
for i in range(4): A("v_mov_b32 v%d, v%d" % (RES + i, W + 40 + i))
for ct in range(4): A("v_xor_b32 v%d, %d, v%d" % (W + 40 + ct, 32 * ct, vWT))
for ct in range(4): A("v_add_u32 v%d, %d, v%d" % (W + 40 + ct, L_WO, W + 40 + ct))
lds_spin(16, 4, 24)
STAMP(14)
A("s_mov_b32 s%d, 1" % sY)
LB("Lo_go")
A("s_mov_b32 s%d, 0x55555555" % sT4)
A("s_mov_b32 s%d, 0x55555555" % sT5)
def pre_o():
    A("s_cmp_eq_u32 s%d, 0" % sY)
    A("s_cbranch_scc1 Lo_nof")
    A("s_mov_b32 s%d, 0" % sY)
    for t in range(4):
        for ct in range(4):
            for hf in range(2):
                A("ds_read_b64_tr_b16 %s, v%d offset:%d" % (vr(WOF + 16 * ct + 4 * t + 2 * hf, 2), W + 40 + ct, 4096 * t + 512 * hf))
    LB("Lo_nof")
ool.append(["Lar:", "    s_lshl_b32 s%d, s%d, 10" % (sT5, sW), "    s_add_u32 s%d, s%d, %s" % (sT5, sT5, hx(FB)),
            "    buffer_load_dwordx4 %s, v%d, %s, s%d offen sc1" % (vr(FLG, 4), vL16, sr(sWS, 4), sT5),
            "    s_waitcnt vmcnt(0)", "    s_sub_u32 s%d, s%d, 1" % (sT4, sT4), "    s_cbranch_scc0 Lap", "    s_branch Lad"])
C("softmax over the 8 key splits: lanes n>=8 hold own lse in OF[0:3], the other four in OF[4:7]")
vU = vT + 2
def wo_all(k, t):
    o = OF + 16 * k
    m = [mf(DA + 4 * ct, o + 4 * t, WOF + 16 * ct + 4 * t, None if t == 0 else DA + 4 * ct) for ct in range(4)]
    va = ["v_max3_f32 v%d, v%d, v%d, v%d" % (vU, o, o + 1, o + 2), "v_max3_f32 v%d, v%d, v%d, v%d" % (vU + 1, o + 3, o + 4, o + 5),
          "v_max3_f32 v%d, v%d, v%d, v%d" % (vU, vU, o + 6, o + 7), "v_max_f32 v%d, v%d, v%d" % (vU, vU, vU + 1)]
    va += ["v_sub_f32 v%d, v%d, v%d" % (LS + i, o + i, vU) for i in range(4)]
    va += ["v_exp_f32 v%d, v%d" % (LS + i, LS + i) for i in range(4)]
    vb = ["v_mov_b32_dpp v%d, v%d row_ror:8 row_mask:0xf bank_mask:0x3" % (LS + i, LS + i) for i in range(4)]
    vb += ["v_add_f32 v%d, v%d, v%d" % (vU, LS, LS + 1), "v_add_f32 v%d, v%d, v%d" % (vU + 1, LS + 2, LS + 3),
           "v_add_f32 v%d, v%d, v%d" % (vU, vU, vU + 1), "v_mov_b32 v%d, v%d" % (vU + 1, vU)]
    f = {0: [], 1: va[:4], 2: va[4:], 3: vb}[t]
    out = ["s_waitcnt lgkmcnt(%d)" % [15, 15, 8, 0][t]] if t != 1 else []
    for x in m:
        out.append(x)
        for _ in range(2):
            if f: out.append(f.pop(0))
    return out
assert PROG and OGAP < 0
ppoll(io, lambda k: range(OF + 16 * k, OF + 16 * k + 16), 4, vT, None, pre=OPRE, gap=OGAP, mid=pre_o, tag=1, per_load=wo_all)
STAMP(7)
A("v_permlane16_swap_b32 v%d, v%d" % (vU, vU + 1))
A("v_mul_f32 v%d, v%d, v%d" % (DA, DA, LS))
A("v_add_f32 v%d, v%d, v%d" % (vT, vU, vU + 1))
A("v_mul_f32 v%d, v%d, v%d" % (DA + 4, DA + 4, LS))
A("v_rcp_f32 v%d, v%d" % (vT, vT))
A("v_mul_f32 v%d, v%d, v%d" % (DA + 8, DA + 8, LS))
for i in range(1, 4):
    for ct in range(3):
        A("v_fmac_f32 v%d, v%d, v%d" % (DA + 4 * ct, DA + 4 * ct + i, LS + i))
    if i == 1: A("v_mul_f32 v%d, v%d, v%d" % (DA + 12, DA + 12, LS))
for i in range(1, 4): A("v_fmac_f32 v%d, v%d, v%d" % (DA + 12, DA + 12 + i, LS + i))
A("v_permlane16_swap_b32 v%d, v%d" % (DA, DA + 4))
A("s_nop 0")
A("v_permlane16_swap_b32 v%d, v%d" % (DA + 8, DA + 12))
A("v_add_f32 v%d, v%d, v%d" % (DA, DA, DA + 4))
A("v_add_f32 v%d, v%d, v%d" % (DA + 8, DA + 8, DA + 12))
A("s_nop 1")
A("v_permlane32_swap_b32 v%d, v%d" % (DA, DA + 8))
A("v_mul_f32 v%d, v%d, v%d" % (DA, DA, vT))
A("s_cmp_lg_u32 s%d, 0" % sLAY)
A("s_nop 0")
A("v_mov_b32_dpp v%d, v%d quad_perm:[1,0,3,2] row_mask:0xf bank_mask:0xf" % (DA + 1, DA))
A("s_mov_b64 exec, %s" % sr(sT4, 2))
A("v_cvt_pk_bf16_f32 v%d, v%d, v%d" % (DA, DA, DA + 1))
A("buffer_store_dword v%d, v%d, %s, s%d offen sc1" % (DA, vPST, sr(sWS, 4), sPS))
A("s_mov_b64 exec, -1")
STAMP(8)
A("s_cbranch_scc1 Lfinal")
MP("p0")

if PRET:
    C("same for the remaining lines of the group's mailboxes")
    soff(sT1, [(sM, 11), (sW, 9), (sJ, 17)], CLRB_OFF)
    A("v_lshlrev_b32 v21, 7, v%d" % vLANE)
    A("s_mov_b64 exec, 15")
    A("buffer_load_dword v%d, v21, %s, s%d offen sc1" % (W + 47, sr(sWS, 4), sT1))
    A("s_mov_b64 exec, -1")
A("s_cmp_lg_u32 s%d, 0" % sW)
A("s_cbranch_scc1 Ltab")
C("stage 1 (wave 0): reduce 32 head partials of 64 outputs, add residual, publish x1 slice")
soff(sT1, [(sA, 15), (sC, 12)], PB)
soff(sT2, [(sA, 10), (sC, 7), (sJ, 17)], X1_OFF)
A("s_mov_b32 s%d, 0x00ff00ff" % sT4)
A("s_mov_b32 s%d, 0" % sT5)
def ip(k):
    for i in range(4):
        A("buffer_load_dwordx4 %s, v%d, %s, s%d offen offset:%d sc1" % (vr(W + 20 * k + 4 * i, 4), vL16, sr(sWS, 4), sT1, 1024 * i))
if GW: A("s_waitcnt vmcnt(0)")
ppoll(ip, lambda k: range(W + 20 * k, W + 20 * k + 16), 4, vT, lambda k: [mf(W + 16, SEL, W + 20 * k + 4 * i, None if i == 0 else W + 16) for i in range(4)], pre=GPRE, gap=GGAP, tag=2,
      per_load=lambda k, i: [mf(W + 16, SEL, W + 20 * k + 4 * i, None if i == 0 else W + 16)])
STAMP(9)
MP("s1")
fastcmp()
NOP(3)
for i in range(4):
    A("v_add_f32_dpp v%d, v%d, v%d row_ror:8 row_mask:0xf bank_mask:0xf" % (W + 16 + i, W + 16 + i, W + 16 + i))
A("s_mov_b64 exec, %s" % sr(sT4, 2))
A("v_pk_add_f32 %s, %s, %s" % (vr(W + 16, 2), vr(W + 16, 2), vr(RES, 2)))
A("v_pk_add_f32 %s, %s, %s" % (vr(W + 18, 2), vr(W + 18, 2), vr(RES + 2, 2)))
A("v_cvt_pk_bf16_f32 v%d, v%d, v%d" % (W + 16, W + 16, W + 17))
A("v_cvt_pk_bf16_f32 v%d, v%d, v%d" % (W + 17, W + 18, W + 19))
store_local("buffer_store_dwordx2", vr(W + 16, 2), vX1S, sT2)
A("s_mov_b64 exec, -1")
LB("Ltabdone")
soff(sT3, [(sW, 10), (sJ, 17)], X1_OFF)
def ix(k):
    A("buffer_load_dwordx4 %s, v%d, %s, s%d offen sc1" % (vr([XR, RES][k], 4), vL16, sr(sWS, 4), sT3))
wqf_reads()
ppoll(ix, lambda k: range([XR, RES][k], [XR, RES][k] + 4), 1, vT, lambda k: ["s_waitcnt lgkmcnt(0)", "v_readfirstlane_b32 s%d, v%d" % (sT1, vT + 2)],
      pre=XPRE, gap=XGAP, mid=lambda: A("ds_read_b32 v%d, v%d offset:20" % (vT + 2, vFL)), tag=3,
      fix=["v_mov_b32 v%d, v%d" % (XR + i, RES + i) for i in range(4)])
A("s_cmp_lt_u32 s%d, 3" % sT1)
A("s_cbranch_scc1 Ltw")
LB("Ltwd")
STAMP(10)

LB("Lmix")
C("x <- x + g(LN(LN(x))) ; g is tabulated for every bf16 input in range, evaluated directly otherwise")
X = W; HB = W + 8; RT = W + 12; AD = W + 16; Y = W + 24
row_stats(XR, vT, X)
A("v_add_f32 v%d, %s, v%d" % (vT + 2, EPS, vT + 1))
A("v_rsq_f32 v%d, v%d" % (vT + 2, vT + 2))
A("v_mov_b32 v%d, %s" % (vT + 4, hx(LO2 | (LO2 << 16))))
A("s_movk_i32 s%d, %d" % (sT5, NENT * 4))
A("v_mul_f32 v%d, v%d, v%d" % (vT + 1, vT + 1, vT + 2))
A("v_fmaak_f32 v%d, v%d, v%d, %s" % (vT + 1, vT + 1, vT + 2, EPS))
A("v_rsq_f32 v%d, v%d" % (vT + 1, vT + 1))
A("s_nop 0")
A("v_mul_f32 v%d, v%d, v%d" % (vT + 2, vT + 2, vT + 1))
A("v_mul_f32 v%d, v%d, v%d" % (vT + 3, vT, vT + 2))
for i in range(4):
    A("v_pk_fma_f32 %s, %s, %s, %s op_sel:[0,0,1] op_sel_hi:[1,0,1] neg_lo:[0,0,1] neg_hi:[0,0,1]" % (vr(AD + 2 * i, 2), vr(X + 2 * i, 2), vr(vT + 2, 2), vr(vT + 2, 2)))
for i in range(4):
    A("v_cvt_pk_bf16_f32 v%d, v%d, v%d" % (HB + i, AD + 2 * i, AD + 2 * i + 1))
for i in range(4):
    A("v_pk_lshlrev_b16 v%d, 1, v%d op_sel_hi:[0,1]" % (RT + i, HB + i))
    A("v_pk_lshrrev_b16 v%d, 15, v%d op_sel_hi:[0,1]" % (AD + i, HB + i))
for i in range(4):
    A("v_or_b32 v%d, v%d, v%d" % (RT + i, RT + i, AD + i))
for i in range(4):
    A("v_pk_sub_u16 v%d, v%d, v%d" % (RT + i, RT + i, vT + 4))
for i in range(4):
    A("v_lshlrev_b32_sdwa v%d, 2, v%d dst_sel:DWORD dst_unused:UNUSED_PAD src0_sel:DWORD src1_sel:WORD_0" % (AD + 2 * i, RT + i))
    A("v_lshlrev_b32_sdwa v%d, 2, v%d dst_sel:DWORD dst_unused:UNUSED_PAD src0_sel:DWORD src1_sel:WORD_1" % (AD + 2 * i + 1, RT + i))
    A("ds_read_b32 v%d, v%d offset:%d" % (Y + 2 * i, AD + 2 * i, L_TAB))
    A("ds_read_b32 v%d, v%d offset:%d" % (Y + 2 * i + 1, AD + 2 * i + 1, L_TAB))
A("v_max3_u32 v%d, v%d, v%d, v%d" % (vT, AD, AD + 1, AD + 2))
A("v_max3_u32 v%d, v%d, v%d, v%d" % (vT + 1, AD + 3, AD + 4, AD + 5))
A("v_max3_u32 v%d, v%d, v%d, v%d" % (vT, vT, AD + 6, AD + 7))
A("v_max_u32 v%d, v%d, v%d" % (vT, vT, vT + 1))
A("v_cmp_le_u32 %s, s%d, v%d" % (sr(sH, 2), sT5, vT))
A("s_waitcnt lgkmcnt(5)")
A("v_max3_u32 v%d, v%d, v%d, v%d" % (vT, Y, Y + 1, Y + 2))
A("s_waitcnt lgkmcnt(2)")
A("v_max3_u32 v%d, v%d, v%d, v%d" % (vT + 1, Y + 3, Y + 4, Y + 5))
A("s_waitcnt lgkmcnt(0)")
A("v_max3_u32 v%d, v%d, v%d, v%d" % (vT, vT, Y + 6, Y + 7))
A("v_max_u32 v%d, v%d, v%d" % (vT, vT, vT + 1))
A("v_cmp_eq_u32 vcc, -1, v%d" % vT)
LB("Lslowdone")
for i in range(4):
    A("v_pk_add_f32 %s, %s, %s" % (vr(vT + 2 + 2 * i, 2), vr(X + 2 * i, 2), vr(Y + 2 * i, 2)))
A("s_or_b64 vcc, vcc, %s" % sr(sH, 2))
A("s_cbranch_vccnz Lslow")
A("s_cmp_lg_u32 s%d, 0" % sLAY)
for i in range(4):
    A("v_cvt_pk_bf16_f32 v%d, v%d, v%d" % (XR + i, vT + 2 + 2 * i, vT + 3 + 2 * i))
STAMP(11)
A("s_cbranch_scc1 Lout")
A("s_mov_b32 s%d, 1" % sLAY)
if TOT or MEAS: A("s_memrealtime s[100:101]")
if DIAG: A("v_mov_b32 v28, v30")
A("s_branch Llnq")

L.append(".p2align 6"); LB("Lst_fin"); A("s_setpc_b64 %s" % sr(sRET, 2)); stubs.append("fin")
LB("Lfinal")
A("s_cmp_ge_u32 s2, 4")
A("s_cbranch_scc1 Lepoch")
C("workgroup b: reduce the 32 head partials of row b, add x2, mixer, store")
soff(sT1, [(2, 15), (sW, 13)], PB + P_L)
A("s_add_u32 s%d, s%d, 4096" % (sT2, sT1))
A("s_mul_i32 s%d, s2, %d" % (sT0, XS))
A("s_lshl_b32 s%d, s%d, 8" % (sT3, sW))
A("s_add_u32 s%d, s%d, s%d" % (sT0, sT0, sT3))
A("s_add_u32 s%d, s%d, %d" % (sT0, sT0, L_X2))
A("v_add_u32 v%d, s%d, v%d" % (vT + 4, sT0, vX1S))
A("s_add_u32 s%d, s%d, %d" % (sT3, sT3, L_XN))
A("v_add_u32 v%d, s%d, v%d" % (vT + 5, sT3, vX1S))
A("ds_read_b64 %s, v%d" % (vr(PM, 2), vT + 4))
A("ds_read_b64 %s, v%d offset:128" % (vr(PM + 2, 2), vT + 4))
A("s_mov_b32 s%d, 0x00ff00ff" % sT4)
A("s_mov_b32 s%d, 0" % sT5)
if XENT:
    A("s_cmp_lg_u32 s%d, 3" % sW)
    A("s_cbranch_scc1 Lfn3")
    A("ds_read_b32 v%d, v%d offset:48" % (vT, vFL))
    A("s_waitcnt lgkmcnt(0)")
    A("v_readfirstlane_b32 s%d, v%d" % (sT0, vT))
    A("s_cmp_eq_u32 s%d, 0" % sT0)
    A("s_cbranch_scc1 Lfn3")
    A("s_mov_b32 s%d, %s" % (sCNT, hx(TB)))
    for i in range(XENT * 4 // 1024):
        A("buffer_load_dwordx4 %s, v%d, %s, s%d offen offset:%d sc1" % (vr(W + 4 * i, 4), vL16, sr(sWS, 4), sCNT, 1024 * i))
    A("v_add_u32 v%d, %d, v%d" % (vT + 6, L_TAB, vL16))
    A("s_waitcnt vmcnt(0)")
    for i in range(XENT * 4 // 1024):
        A("ds_write_b128 v%d, %s offset:%d" % (vT + 6, vr(W + 4 * i, 4), 1024 * i))
    LB("Lfn3")
A("s_waitcnt lgkmcnt(0)")
if GW: A("s_waitcnt vmcnt(0)")
for i in range(4):
    A("v_lshlrev_b32 v%d, 16, v%d" % (PM + 4 + 2 * i, PM + i))
    A("v_and_b32 v%d, 0xffff0000, v%d" % (PM + 5 + 2 * i, PM + i))
if "bias" in OPT:
    for i in range(8): A("v_add_f32 v%d, %s, v%d" % (PM + 4 + i, hx(f2u(float(OPT["bias"]))), PM + 4 + i))
FS = [KF, VF]
def ifin(k):
    for i in range(8):
        A("buffer_load_dwordx4 %s, v%d, %s, s%d offen offset:%d sc1" % (vr(FS[k] + 4 * i, 4), vL16, sr(sWS, 4), sT1 if i < 4 else sT2, 1024 * (i & 3)))
def fs(k):
    o = []
    for i in range(4):
        o.append(mf(W + 32, SEL, FS[k] + 4 * i, None if i == 0 else W + 32))
        o.append(mf(W + 36, SEL, FS[k] + 16 + 4 * i, None if i == 0 else W + 36))
    return o
ppoll(ifin, lambda k: range(FS[k], FS[k] + 32), 8, vT, fs, pre=GPRE, gap=GGAP, tag=2,
      per_load=lambda k, i: [mf(W + 32 + 4 * (i >> 2), SEL, FS[k] + 4 * i, None if (i & 3) == 0 else W + 32 + 4 * (i >> 2))])
STAMP(9)
NOP(2)
for i in range(8):
    A("v_add_f32_dpp v%d, v%d, v%d row_ror:8 row_mask:0xf bank_mask:0xf" % (W + 32 + i, W + 32 + i, W + 32 + i))
A("s_mov_b64 exec, %s" % sr(sT4, 2))
for i in range(4):
    A("v_pk_add_f32 %s, %s, %s" % (vr(W + 32 + 2 * i, 2), vr(W + 32 + 2 * i, 2), vr(PM + 4 + 2 * i, 2)))
for i in range(4):
    A("v_cvt_pk_bf16_f32 v%d, v%d, v%d" % (W + 32 + i, W + 32 + 2 * i, W + 33 + 2 * i))
A("ds_write_b64 v%d, %s" % (vT + 5, vr(W + 32, 2)))
A("ds_write_b64 v%d, %s offset:128" % (vT + 5, vr(W + 34, 2)))
A("s_mov_b64 exec, -1")
A("s_cmp_lg_u32 s%d, 0" % sW)
A("s_waitcnt lgkmcnt(0)")
A("s_barrier")
A("s_cbranch_scc1 Lfin_exit")
A("ds_read_b128 %s, v%d" % (vr(XR, 4), vXNW))
A("s_waitcnt lgkmcnt(0)")
STAMP(10)
A("s_branch Lmix")
L.append(".p2align 6"); LB("Lst_out"); A("s_setpc_b64 %s" % sr(sRET, 2)); stubs.append("out")
LB("Lout")
A("s_lshl_b32 s%d, s2, 10" % sT0)
A("buffer_store_dwordx4 %s, v%d, %s, s%d offen" % (vr(XR, 4), vL16, sr(sOUT, 4), sT0))
if DBL:
    A("s_cmp_lg_u32 s2, 0")
    A("s_cbranch_scc1 Lfin_exit")
if DBL:
    A("s_waitcnt vmcnt(0)")
    A("s_memrealtime s[10:11]")
    A("s_waitcnt lgkmcnt(0)")
    A("s_sub_u32 s12, s10, s98")
    if "pad" in OPT:
        A("s_mov_b32 s10, s98"); A("s_mov_b32 s12, %d" % (100 * int(OPT["pad"])))
    LB("Ldbl")
    A("s_memrealtime s[14:15]")
    A("s_waitcnt lgkmcnt(0)")
    A("s_sub_u32 s13, s14, s10")
    A("s_cmp_lt_u32 s13, s12")
    A("s_cbranch_scc1 Ldbl")
LB("Lfin_exit")
if MEAS:
    src = {"mix": "s100", "entry": "s98"}.get(OPT["q"], "s98" if OPT["q"][0] == "h" else "s97")
    A("s_waitcnt vmcnt(0) lgkmcnt(0)")
    A("s_mov_b64 exec, 1")
    A("v_mov_b32 v16, %s" % src)
    A("s_not_b32 s10, s98")
    A("v_mov_b32 v17, s10")
    A("global_atomic_umax v[30:31], v16, off sc1")
    A("global_atomic_umax v[30:31], v17, off offset:128 sc1")
    A("s_or_b32 s10, s2, s%d" % sW)
    A("s_cmp_lg_u32 s10, 0")
    A("s_cbranch_scc1 Lend")
    LB("Lms1")
    A("s_memrealtime s[14:15]"); A("s_waitcnt lgkmcnt(0)"); A("s_sub_u32 s13, s14, s98"); A("s_cmp_lt_u32 s13, 4000"); A("s_cbranch_scc1 Lms1")
    A("global_load_dword v16, v[30:31], off sc1")
    A("global_load_dword v17, v[30:31], off offset:128 sc1")
    A("s_waitcnt vmcnt(0)")
    A("v_readfirstlane_b32 s10, v16"); A("v_readfirstlane_b32 s11, v17")
    A("s_not_b32 s11, s11"); A("s_sub_u32 s10, s10, s11"); A("s_lshl_b32 s10, s10, 2"); A("s_add_u32 s12, s10, 4200")
    A("s_min_u32 s12, s12, 20000")
    LB("Lms2")
    A("s_memrealtime s[14:15]"); A("s_waitcnt lgkmcnt(0)"); A("s_sub_u32 s13, s14, s98"); A("s_cmp_lt_u32 s13, s12"); A("s_cbranch_scc1 Lms2")
if TOT:
    A("s_waitcnt vmcnt(0)")
    A("s_memrealtime s[10:11]")
    A("s_waitcnt lgkmcnt(0)")
    A("v_mov_b32 v16, s98")
    A("v_mov_b32 v17, s10")
    A("v_mov_b32 v18, s100")
    A("v_mov_b32 v19, s97")
    soff(sT2, [(2, 6), (sW, 4)], STB)
    A("v_mov_b32 v20, 0")
    A("s_mov_b64 exec, 1")
    A("buffer_store_dwordx4 v[16:19], v20, %s, s%d offen" % (sr(sWS, 4), sT2))
if DIAG:
    A("s_waitcnt vmcnt(0)")
    STAMP(12)
    if DIAG == 2:
        A("s_or_b32 s%d, s2, s%d" % (sT0, sW))
        A("s_cmp_lg_u32 s%d, 0" % sT0)
        A("s_cbranch_scc1 Lend")
        A("v_readlane_b32 s%d, v28, 0" % sT2)
        for k, (r, i) in enumerate([(31, 10), (31, 12), (28, 1), (28, 2), (28, 6), (28, 5), (28, 7), (28, 8), (28, 9), (28, 10), (28, 11), (30, 3), (30, 5), (30, 8), (30, 9), (30, 12)]):
            A("v_readlane_b32 s%d, v%d, %d" % (sT3, r, i))
            A("s_sub_u32 s%d, s%d, s%d" % (sT3, sT3, sT2))
            A("s_nop 0")
            A("v_writelane_b32 v17, s%d, %d" % (sT3, k))
        A("v_lshlrev_b32 v16, 2, v%d" % vLANE)
        A("s_mov_b64 exec, 0xffff")
        A("global_store_dword v16, v17, s[100:101]")
        A("s_endpgm")
    soff(sT1, [(2, 10), (sW, 7)], STB)
    A("v_lshlrev_b32 v16, 2, v%d" % vLANE)
    A("s_mov_b64 exec, 0xffff")
    A("buffer_store_dword v28, v16, %s, s%d offen" % (sr(sWS, 4), sT1))
    A("buffer_store_dword v30, v16, %s, s%d offen offset:64" % (sr(sWS, 4), sT1))
    A("s_add_u32 s%d, s%d, 0x40000" % (sT1, sT1))
    A("buffer_store_dword v31, v16, %s, s%d offen" % (sr(sWS, 4), sT1))
LB("Lend")
A("s_endpgm")
LB("Lepoch")
if int(OPT.get("wb", 0)):
    A("s_cmp_lg_u32 s%d, 0" % sW)
    A("s_cbranch_scc1 Lnowb")
    A("s_waitcnt vmcnt(0)")
    A("buffer_wbl2 sc1")
    LB("Lnowb")
C("every workgroup has used the old launch tag long ago: workgroup 4 advances it")
A("s_lshl_b32 s%d, s%d, 8" % (sT0, sW))
A("s_add_u32 s%d, s%d, s2" % (sT0, sT0))
A("s_cmp_lg_u32 s%d, 4" % sT0)
A("s_cbranch_scc1 Lfin_exit")
A("v_mov_b32 v16, s%d" % sTG1)
A("v_mov_b32 v17, %s" % hx(EPO))
A("s_mov_b64 exec, 1")
A("buffer_store_dword v16, v17, %s, 0 offen sc1" % sr(sWS, 4))
A("s_mov_b64 exec, -1")
A("s_branch Lfin_exit")

L.append(".p2align 6"); LB("Lst_tab"); A("s_setpc_b64 %s" % sr(sRET, 2)); stubs.append("tab")
LB("Ltab")
C("waves 2,3: gather the main part of the g(h) table into LDS ; wave 1: the lowest octaves, best effort")
NTL = NOCT * 1024 // 2 // 1024
A("s_cmp_eq_u32 s%d, 1" % sW)
A("s_cbranch_scc1 Lext")
A("s_sub_u32 s%d, s%d, 2" % (sT1, sW))
A("s_mul_i32 s%d, s%d, %d" % (sT1, sT1, NTL * 1024))
A("s_add_u32 s%d, s%d, %d" % (sT1, sT1, XENT * 4))
A("v_add_u32 v%d, s%d, v%d" % (vT + 4, sT1, vL16))
A("v_add_u32 v%d, %d, v%d" % (vT + 4, L_TAB, vT + 4))
A("s_add_u32 s%d, s%d, %s" % (sT1, sT1, hx(TB)))
A("s_add_u32 s%d, s%d, 4096" % (sT2, sT1))
if TGW: A("s_waitcnt vmcnt(0)")
def it():
    for i in range(NTL):
        A("buffer_load_dwordx4 %s, v%d, %s, s%d offen offset:%d sc1" % (vr(W + 4 * i, 4), vL16, sr(sWS, 4), sT1 if i < 4 else sT2, 1024 * (i & 3)))
poll(it, range(W, W + 4 * NTL), vT, back="s_sleep %d" % int(OPT.get("tsl", 16)))
for i in range(NTL):
    A("ds_write_b128 v%d, %s offset:%d" % (vT + 4, vr(W + 4 * i, 4), 1024 * i))
A("s_waitcnt lgkmcnt(0)")
lds_arrive(20, vT + 4)
STAMP(9)
MP("tg")
A("s_branch Ltabdone")
def ext_load(d):
    for i in range(XENT * 4 // 1024):
        A("buffer_load_dwordx4 %s, v%d, %s, s%d offen offset:%d sc1" % (vr(d + 4 * i, 4), vL16, sr(sWS, 4), sT4, 1024 * i))
def ext_write(d):
    for i in range(XENT * 4 // 1024):
        A("ds_write_b128 v%d, %s offset:%d" % (vT + 4, vr(d + 4 * i, 4), 1024 * i))
LB("Lext")
if XENT:
    A("s_mov_b32 s%d, %s" % (sT4, hx(TB)))
    A("v_add_u32 v%d, %d, v%d" % (vT + 4, L_TAB, vL16))
    for i in range(4): A("v_mov_b32 v%d, -1" % (W + i))
    for i in range(XENT * 4 // 1024):
        A("ds_write_b128 v%d, %s offset:%d" % (vT + 4, vr(W, 4), 1024 * i))
    A("ds_write_b32 v%d, v%d offset:48" % (vFL, W))
    A("s_waitcnt lgkmcnt(0)")
lds_arrive(20, vT + 5)
if XENT:
    C("one look at the lowest octaves, skipped when x1 is already there")
    soff(sT3, [(sW, 10), (sJ, 17)], X1_OFF)
    A("s_waitcnt vmcnt(0)")
    A("buffer_load_dwordx4 %s, v%d, %s, s%d offen sc1" % (vr(XR, 4), vL16, sr(sWS, 4), sT3))
    A("s_waitcnt vmcnt(0)")
    for x in maxtree(range(XR, XR + 4), vT): A(x)
    A("v_cmp_eq_u32 vcc, -1, v%d" % vT)
    A("s_cbranch_vccz Lexx")
    A("s_mov_b32 s%d, %d" % (sCNT, int(OPT.get("xlk", 2)) - 1))
    LB("Lexl")
    A("buffer_load_dwordx4 %s, v%d, %s, s%d offen sc1" % (vr(XR, 4), vL16, sr(sWS, 4), sT3))
    if "l" in OPT.get("xs", ""): A("s_branch Ltabdone")
    ext_load(W + 32)
    A("s_waitcnt vmcnt(4)")
    for x in maxtree(range(XR, XR + 4), vT): A(x)
    A("v_cmp_eq_u32 vcc, -1, v%d" % vT)
    A("s_cbranch_vccz Lexx")
    A("s_waitcnt vmcnt(0)")
    ext_write(W + 32)
    for x in maxtree(range(W + 32, W + 48), vT): A(x)
    A("v_cmp_eq_u32 vcc, -1, v%d" % vT)
    A("s_cbranch_vccz Lexc")
    A("s_sub_u32 s%d, s%d, 1" % (sCNT, sCNT))
    A("s_cbranch_scc0 Lexl")
    A("s_branch Ltabdone")
    LB("Lexc")
    A("v_mov_b32 v%d, 0" % vT)
    A("ds_write_b32 v%d, v%d offset:48" % (vFL, vT))
    A("s_branch Ltabdone")
    LB("Lexx")
    wqf_reads()
    A("s_branch Ltw")
else:
    A("s_branch Ltabdone")
LB("Ltw")
lds_spin(20, 3, vT + 2)
A("s_branch Ltwd")

for b in ool: L += b
ool = []
LB("Lslow")
C("rare: some h lies outside the table -> evaluate g(h) directly for those lanes")
RW1 = [W + 32 + i for i in range(14)]
RB1 = [PM + i for i in range(14)]
RW2 = [16 + i for i in range(10)] + [W + 46, W + 47, PM + 14, PM + 15]
A("v_lshlrev_b32 v26, 3, v%d" % vLANE)
A("s_load_dword s%d, %s, 0" % (sB2, sr(sB2P, 2)))
for (d4, d2, s) in [([W + 32, W + 36, W + 40], W + 44, sW1), ([PM, PM + 4, PM + 8], PM + 12, sB1)]:
    for k in range(3):
        A("buffer_load_dwordx4 %s, v%d, %s, 0 offen offset:%d" % (vr(d4[k], 4), vL16, sr(s, 4), 1024 * k))
    A("buffer_load_dwordx2 %s, v26, %s, 0 offen offset:3072" % (vr(d2, 2), sr(s, 4)))
A("buffer_load_dwordx4 v[16:19], v%d, %s, 0 offen" % (vL16, sr(sW2, 4)))
A("buffer_load_dwordx4 v[20:23], v%d, %s, 0 offen offset:1024" % (vL16, sr(sW2, 4)))
A("buffer_load_dwordx2 v[24:25], v%d, %s, 0 offen offset:2048" % (vL16, sr(sW2, 4)))
A("buffer_load_dwordx2 %s, v%d, %s, 0 offen offset:2056" % (vr(W + 46, 2), vL16, sr(sW2, 4)))
A("buffer_load_dwordx2 %s, v26, %s, 0 offen offset:3072" % (vr(PM + 14, 2), sr(sW2, 4)))
A("s_waitcnt vmcnt(0) lgkmcnt(0)")
A("s_lshl_b32 s%d, s%d, 16" % (sB2, sB2))
A("s_mov_b32 s%d, 1" % sT4)
for e in range(8):
    A("v_cmp_le_u32 vcc, %d, v%d" % (NENT * 4, AD + e))
    A("v_cmp_eq_u32 %s, -1, v%d" % (sr(sH2, 2), Y + e))
    A("s_or_b64 %s, %s, vcc" % (sr(sH2, 2), sr(sH2, 2)))
    if e & 1: A("v_and_b32 v%d, 0xffff0000, v%d" % (RT + 3, HB + (e >> 1)))
    else: A("v_lshlrev_b32 v%d, 16, v%d" % (RT + 3, HB + (e >> 1)))
    LB("Lse%d" % e)
    A("s_cmp_eq_u64 %s, 0" % sr(sH2, 2))
    A("s_cbranch_scc1 Lsf%d" % e)
    A("s_ff1_i32_b64 s%d, %s" % (sT0, sr(sH2, 2)))
    A("s_nop 0")
    A("v_readlane_b32 s%d, v%d, s%d" % (sH, RT + 3, sT0))
    A("s_cmp_eq_u32 s%d, s%d" % (sH, sT4))
    A("s_cbranch_scc1 Lsg%d" % e)
    A("s_mov_b32 s%d, s%d" % (sT4, sH))
    A("s_call_b64 %s, Lgev" % sr(sRET, 2))
    LB("Lsg%d" % e)
    A("s_nop 1")
    A("v_cmp_eq_u32 vcc, s%d, v%d" % (sH, RT + 3))
    A("v_mov_b32 v%d, s%d" % (RES + 3, sY))
    A("s_andn2_b64 %s, %s, vcc" % (sr(sH2, 2), sr(sH2, 2)))
    A("v_cndmask_b32 v%d, v%d, v%d, vcc" % (Y + e, Y + e, RES + 3))
    A("s_branch Lse%d" % e)
    LB("Lsf%d" % e)
for i in range(16): A("v_mov_b32 v%d, 0" % (PM + i))
A("s_mov_b64 vcc, 0")
A("s_mov_b64 %s, 0" % sr(sH, 2))
A("s_branch Lslowdone")
LB("Lgev")
a, u, t1, z = RES, RES + 1, RES + 2, RT
A("v_mov_b32 v%d, 0" % a)
A("v_mov_b32 v%d, %s" % (RT + 1, hx(f2u(K0))))
A("v_mov_b32 v%d, %s" % (RT + 2, hx(f2u(K1))))
for p in range(14):
    for hf in range(2):
        def un(d, s):
            if hf == 0: A("v_lshlrev_b32 v%d, 16, v%d" % (d, s))
            else: A("v_and_b32 v%d, 0xffff0000, v%d" % (d, s))
        un(u, RW1[p]); un(t1, RB1[p]); un(z, RW2[p])
        A("v_fma_f32 v%d, v%d, s%d, v%d" % (u, u, sH, t1))
        A("v_mul_f32 v%d, v%d, v%d" % (t1, u, u))
        A("v_fma_f32 v%d, v%d, v%d, v%d" % (t1, t1, RT + 2, RT + 1))
        A("v_mul_f32 v%d, v%d, v%d" % (t1, t1, u))
        A("v_exp_f32 v%d, v%d" % (t1, t1))
        A("v_mul_f32 v%d, v%d, v%d" % (z, z, u))
        A("v_add_f32 v%d, 1.0, v%d" % (t1, t1))
        A("v_rcp_f32 v%d, v%d" % (t1, t1))
        A("s_nop 0")
        A("v_fmac_f32 v%d, v%d, v%d" % (a, z, t1))
A("v_mov_b32 v%d, v%d" % (u, a))
A("s_nop 1")
wave_sum2(a, u, sY, sT1)
A("s_nop 1")
A("v_mov_b32 v%d, s%d" % (a, sY))
A("v_cvt_pk_bf16_f32 v%d, v%d, v%d" % (a, a, a))
A("v_and_b32 v%d, 0xffff0000, v%d" % (a, a))
A("v_add_f32 v%d, s%d, v%d" % (a, sB2, a))
A("v_cvt_pk_bf16_f32 v%d, v%d, v%d" % (a, a, a))
A("v_and_b32 v%d, 0xffff0000, v%d" % (a, a))
A("s_nop 0")
A("v_readfirstlane_b32 s%d, v%d" % (sY, a))
A("s_nop 3")
A("s_setpc_b64 %s" % sr(sRET, 2))

for b in ool: L += b
A("s_endpgm")
L.append(".p2align 8")
L.append(".fill %d, 4, 0xBF800000" % (64 if DIAG else 512))
L.append('''.section .rodata,"a"
.p2align 6
.amdhsa_kernel %s_kernel
  .amdhsa_next_free_vgpr 256
  .amdhsa_next_free_sgpr 102
  .amdhsa_accum_offset 256
  .amdhsa_group_segment_fixed_size 0
  .amdhsa_kernarg_size 104
  .amdhsa_user_sgpr_count 2
  .amdhsa_user_sgpr_kernarg_segment_ptr 1
  .amdhsa_system_sgpr_workgroup_id_x 1
.end_amdhsa_kernel''' % NAME)
open(OUTF, "w").write("\n".join(x for x in L if x is not None) + "\n")
print("wrote", OUTF, "lines", len(L), "LDS", LDS_SZ)
```

```python
import sys, struct, math

NAME = "interleave_layers__sliding_block_cached__mixer_token_mlp__decode"
OUTF = sys.argv[1] if len(sys.argv) > 1 else "cdna_kernels/%s.s" % NAME
DIAG = int(sys.argv[2]) if len(sys.argv) > 2 else 0
DBL = 0
if DIAG == 3: DIAG = 0; DBL = 1
MEAS = 0
if DIAG == 5: DIAG = 0; MEAS = 1
TOT = 0
if DIAG == 4: DIAG = 0; TOT = 1
OPT = dict(a.split("=") for a in sys.argv[3:])
DEPTH = int(OPT.get("depth", 8))
D0 = int(OPT.get("d0", 2))
D1 = int(OPT.get("d1", 4))
DC = int(OPT.get("dc", 3))
TAILI = int(OPT.get("taili", 11))
TAILD = int(OPT.get("taild", 8))
QV = int(OPT.get("qv", 4))
PRET = int(OPT.get("pret", 1))
GW = int(OPT.get("gw", 1))
GPRE = int(OPT.get("gpre", 0))
GGAP = int(OPT.get("ggap", -1))
WARM = int(OPT.get("warm", 1))
QPRE = int(OPT.get("qpre", -1)); QGAP = int(OPT.get("qgap", -1))
OPRE = int(OPT.get("opre", -1)); OGAP = int(OPT.get("ogap", -1))
XPRE = int(OPT.get("xpre", -1)); XGAP = int(OPT.get("xgap", -1))
FINE = OPT.get("fine", "")
QS = int(OPT.get("qs", 0))
ADP = int(OPT.get("adp", 0))
ROT = int(OPT.get("rot", 1)); VROT = int(OPT.get("vrot", 0))
WROT = int(OPT.get("wrot", 1))
WOP = int(OPT.get("wop", 0))
ECO = int(OPT.get("eco", 0))
XDL = int(OPT.get("xdl", 256))
QBD = int(OPT.get("qbd", 0))
VLATE = int(OPT.get("vlate", 1))
QV2 = int(OPT.get("qv2", 0))
PROG = int(OPT.get("prog", 1))
CMB = int(OPT.get("cmb", 0)); TGW = int(OPT.get("tgw", 0)); HPT = int(OPT.get("hpt", 0))
EFL = int(OPT.get("efl", 1))
QT = int(OPT.get("qt", 0))
DRY = int(OPT.get("dry", 0))
HP = int(OPT.get("hp", 0))
NOCT = int(OPT.get("noct", 16))
QPOS = int(OPT.get("qpos", 1))
QPOS2 = int(OPT.get("qpos2", 7))

def f2u(x): return struct.unpack("<I", struct.pack("<f", x))[0]
def hx(x): return "0x%08x" % (x & 0xffffffff)

L = []
def A(s): L.append("    " + s)
def LB(s): L.append(s + ":")
def C(s): L.append("    ; " + s)
def vr(a, n): return "v[%d:%d]" % (a, a + n - 1)
def sr(a, n): return "s[%d:%d]" % (a, a + n - 1)
def NOP(n):
    while n > 0:
        k = min(n, 16); A("s_nop %d" % (k - 1)); n -= k

XOCT = int(OPT.get('xoct', 4))
ELO = int(OPT.get('elo', 130 - NOCT - XOCT))
LO2 = (ELO << 7) * 2
NENT = (NOCT + XOCT) * 256
XENT = XOCT * 256
assert XENT in (0, 1024)
EPW = NOCT * 256 // 256 // 4 // 2
GRS = 0x20000
O_OFF = [0x0000, 0xC400]; LSE_OFF = [0x8000, 0x14400]; Q1_OFF = 0x8400; X1_OFF = 0x14600
CLRA_PER = 1040
CLRB_OFF = 0x8400; CLRB_PER = 1680
Q0_OFF = 0x18000
EPO = 0x17f00
PB = 0x100000; P_L = 0x20000
TB = 0x140000; FB = 0x148000
QB_DELTA = 0x200000
STB = 0x300000
WS_SZ = 0x400000
L_WQ = 12288; L_K = L_WQ + 16384; L_V = L_K + 32768
L_WO = L_K + 16384
L_TAB = L_V
L_XN = L_V + 32768; XS = 1056
L_X2 = L_XN + 4 * XS
L_FLG = L_X2 + 4 * XS
L_RB = L_K; RBS = 2048 + 64; L_ML = L_K + 4 * RBS
L_QF = L_X2
LDS_SZ = int(OPT.get("lds", L_FLG + 128))
SPIN = 0x40000
K0 = -2.0 * math.sqrt(2.0 / math.pi) * math.log2(math.e)
K1 = K0 * 0.044715
EPS = hx(f2u(1e-5))

sTG1, sTG2 = 0, 1
sW, sJ, sA, sC, sGR, sLAY, sFAST = 3, 4, 5, 6, 7, 8, 9
sT0, sT1, sT2, sT3, sT4, sT5 = 10, 11, 12, 13, 14, 15
sCNT = 16
sQL, sQS, sOL, sOS, sLL, sLS, sPS = 17, 18, 19, 20, 21, 22, 23
sSC, sIT = 24, 25
sSUM, sSQ = 26, 27
sH, sH2, sRET, sMSK = 28, 30, 32, 34
sB2, sY, sXCC, sE = 36, 37, 38, 39
sB2P = 40
sK, sV, sWQ, sWO, sWS, sX, sOUT, sW1, sB1, sW2 = 44, 48, 52, 56, 60, 64, 68, 72, 76, 80
sKO, sKL, sVO, sVL = 84, 85, 86, 87
sPM = 88
sHC, sHT = 84, 85

def STAMP(i):
    if DIAG:
        A("s_memrealtime s[42:43]"); A("s_waitcnt lgkmcnt(0)")
        A("v_writelane_b32 v30, s42, %d" % i)

def MP(name):
    if MEAS and OPT["q"] == name:
        A("s_memrealtime s[42:43]"); A("s_waitcnt lgkmcnt(0)"); A("s_mov_b32 s97, s42")

def CST(i):
    if DIAG == 1 and FINE:
        A("s_memtime s[42:43]"); A("s_waitcnt lgkmcnt(0)")
        A("v_writelane_b32 v31, s42, %d" % i)

vLANE = 1
vL16, vQST, vOST, vOLD, vPST, vX1S, vXNW, vXNR, vRBW, vRBR, vMLW, vMLR, vLSE, vZ = range(2, 16)
vT = 16
vWT, vFL = 28, 29
vLS2 = 27
KF, VF, WQF, WOF, SEL, ONES = 32, 64, 96, 112, 176, 180
W = 184
PM = 232
XR = 248
RES = 252

def srd(s, nbytes):
    A("s_mov_b32 s%d, %s" % (s + 2, hx(nbytes))); A("s_mov_b32 s%d, 0x00020000" % (s + 3))

def soff(dst, terms, const):
    first = True
    for (src, sh) in terms:
        if first: A("s_lshl_b32 s%d, s%d, %d" % (dst, src, sh)); first = False
        else:
            A("s_lshl_b32 s%d, s%d, %d" % (sT0, src, sh)); A("s_add_u32 s%d, s%d, s%d" % (dst, dst, sT0))
    if const: A("s_add_u32 s%d, s%d, %s" % (dst, dst, hx(const)))

def wave_sum2(a, b, sa, sb):
    for ctl in ["row_ror:8", "row_ror:4", "row_ror:2", "row_ror:1"]:
        A("v_add_f32_dpp v%d, v%d, v%d %s row_mask:0xf bank_mask:0xf" % (a, a, a, ctl))
        A("v_add_f32_dpp v%d, v%d, v%d %s row_mask:0xf bank_mask:0xf" % (b, b, b, ctl))
        A("s_nop 0")
    for ctl in ["row_bcast:15 row_mask:0xa", "row_bcast:31 row_mask:0xc"]:
        A("v_add_f32_dpp v%d, v%d, v%d %s bank_mask:0xf" % (a, a, a, ctl))
        A("v_add_f32_dpp v%d, v%d, v%d %s bank_mask:0xf" % (b, b, b, ctl))
        A("s_nop 0")
    A("v_readlane_b32 s%d, v%d, 63" % (sa, a))
    A("v_readlane_b32 s%d, v%d, 63" % (sb, b))

def row_stats(x, t, unp):
    A("v_dot2_f32_bf16 v%d, v%d, v%d, 0" % (t, x, ONES))
    A("v_dot2_f32_bf16 v%d, v%d, v%d, 0" % (t + 1, x, x))
    for i in range(1, 4):
        A("v_dot2_f32_bf16 v%d, v%d, v%d, v%d" % (t, x + i, ONES, t))
        A("v_dot2_f32_bf16 v%d, v%d, v%d, v%d" % (t + 1, x + i, x + i, t + 1))
    un = []
    for i in range(4):
        un.append("v_lshlrev_b32 v%d, 16, v%d" % (unp + 2 * i, x + i))
        un.append("v_and_b32 v%d, 0xffff0000, v%d" % (unp + 2 * i + 1, x + i))
    for k in range(3): A(un.pop(0))
    a, b = t, t + 1
    for ctl in ["row_ror:8 row_mask:0xf", "row_ror:4 row_mask:0xf", "row_ror:2 row_mask:0xf", "row_ror:1 row_mask:0xf", "row_bcast:15 row_mask:0xa", "row_bcast:31 row_mask:0xc"]:
        A("v_add_f32_dpp v%d, v%d, v%d %s bank_mask:0xf" % (a, a, a, ctl))
        A("v_add_f32_dpp v%d, v%d, v%d %s bank_mask:0xf" % (b, b, b, ctl))
        A(un.pop(0) if un else "s_nop 0")
    A("v_readlane_b32 s%d, v%d, 63" % (sSUM, a))
    A("v_readlane_b32 s%d, v%d, 63" % (sSQ, b))
    A("s_nop 0")
    A("v_mul_f32 v%d, s%d, v%d" % (t, sSUM, vZ))
    A("v_mul_f32 v%d, s%d, v%d" % (t + 1, sSQ, vZ))
    A("v_fma_f32 v%d, -v%d, v%d, v%d" % (t + 1, t, t, t + 1))
    A("v_max_f32 v%d, 0, v%d" % (t + 1, t + 1))

ool = []
uid = [0]
def maxtree(regs, tmp):
    r = list(regs); out = []
    out.append("v_max3_u32 v%d, v%d, v%d, v%d" % (tmp, r[0], r[1], r[2])); r = r[3:]
    if len(r) >= 5:
        out.append("v_max3_u32 v%d, v%d, v%d, v%d" % (tmp + 1, r[0], r[1], r[2])); r = r[3:]
        d = 0
        while len(r) >= 2:
            out.append("v_max3_u32 v%d, v%d, v%d, v%d" % (tmp + d, tmp + d, r[0], r[1])); r = r[2:]; d ^= 1
        if r: out.append("v_max3_u32 v%d, v%d, v%d, v%d" % (tmp, tmp, tmp + 1, r[0]))
        else: out.append("v_max_u32 v%d, v%d, v%d" % (tmp, tmp, tmp + 1))
    else:
        while len(r) >= 2:
            out.append("v_max3_u32 v%d, v%d, v%d, v%d" % (tmp, tmp, r[0], r[1])); r = r[2:]
        if r: out.append("v_max_u32 v%d, v%d, v%d" % (tmp, tmp, r[0]))
    return out

def poll(issue, regs, tmp, pre_wait=None, spec=None, back="s_nop 7", tag=None, stub=None):
    uid[0] += 1; u = uid[0]
    A("s_mov_b32 s%d, %s" % (sCNT, hx(SPIN)))
    LB("Lp%d" % u)
    issue()
    if pre_wait: pre_wait()
    A("s_waitcnt vmcnt(0)")
    mt = maxtree(regs, tmp) + ["v_cmp_eq_u32 vcc, -1, v%d" % tmp]
    spec = list(spec or [])
    ns = len(spec)
    per = -(-len(mt) // ns) if ns else 0
    for s in spec:
        A(s)
        for k in range(per):
            if mt: A(mt.pop(0))
    for m in mt: A(m)
    A("s_cbranch_vccz Ld%d" % u)
    A("s_sub_u32 s%d, s%d, 1" % (sCNT, sCNT))
    if back != "s_nop 7": A(back)
    A("s_cbranch_scc0 Lp%d" % u)
    if stub: touch_stub(stub)
    LB("Ld%d" % u)
    if DIAG and tag is not None:
        A("s_lshl_b32 m0, s%d, 2" % sLAY); A("s_add_u32 m0, m0, %d" % tag); A("s_nop 0")
        A("v_writelane_b32 v31, s%d, m0" % sCNT)

stubs = []
def touch_stub(name, branch_over=None):
    A("s_branch Lsk_%s" % name)
    L.append(".p2align 6")
    LB("Lst_%s" % name)
    A("s_setpc_b64 %s" % sr(sRET, 2))
    LB("Lsk_%s" % name)
    stubs.append(name)

def delay(cyc):
    if cyc == -1:
        A("s_waitcnt vmcnt(0)"); return
    while cyc >= 64:
        k = min(cyc // 64, 15); A("s_sleep %d" % k); cyc -= 64 * k
    if cyc >= 8: A("s_nop %d" % min(15, cyc // 4 - 1))

def ppoll(issue, regs, n, tmp, spec, pre=0, gap=128, mid=None, tag=None, fix=None, stub=None, lanes=None, per_load=None):
    uid[0] += 1; u = uid[0]
    def look(k):
        if per_load and PROG and gap < 0:
            r = list(regs(k)); out = []
            for i in range(n):
                out.append("s_waitcnt vmcnt(%d)" % (n - 1 - i))
                sp = list(per_load(k, i))
                ck = ["v_max3_u32 v%d, v%d, v%d, v%d" % (tmp + 1, r[4 * i], r[4 * i + 1], r[4 * i + 2]),
                      ("v_max_u32 v%d, v%d, v%d" % (tmp, tmp + 1, r[4 * i + 3])) if i == 0 else ("v_max3_u32 v%d, v%d, v%d, v%d" % (tmp, tmp, tmp + 1, r[4 * i + 3]))]
                while sp or ck:
                    if sp: out.append(sp.pop(0))
                    if ck: out.append(ck.pop(0))
            return out + ["v_cmp_eq_u32 vcc, -1, v%d" % tmp]
        out = ["s_waitcnt vmcnt(%d)" % (n if k == 0 else 0)]
        mt = maxtree(regs(k), tmp) + ["v_cmp_eq_u32 vcc, -1, v%d" % tmp]
        sp = list(spec(k)); per = -(-len(mt) // len(sp)) if sp else 0
        for x in sp:
            out.append(x)
            for _ in range(per):
                if mt: out.append(mt.pop(0))
        return out + mt + (["s_and_b64 vcc, vcc, %s" % sr(lanes, 2)] if lanes else [])
    A("s_mov_b32 s%d, %s" % (sCNT, hx(SPIN)))
    delay(pre)
    fine = FINE and tag == int(FINE)
    if fine: CST(8)
    LB("Lp%d" % u)
    issue(0)
    if fine and 0: CST(9)
    if mid: mid()
    if gap >= 0: delay(gap)
    if gap >= 0: issue(1)
    lk = look(0)
    if gap < 0 and not (per_load and PROG): lk[0] = "s_waitcnt vmcnt(0)"
    for k, x in enumerate(lk):
        A(x)
        if fine and k == 0: CST(13)
    if fine: CST(14)
    A("s_cbranch_vccz Ld%d" % u)
    if gap < 0: issue(1)
    A("s_sub_u32 s%d, s%d, 1" % (sCNT, sCNT))
    for x in look(1): A(x)
    for x in (fix or []): A(x)
    A("s_cbranch_vccz Ld%d" % u)
    A("s_sub_u32 s%d, s%d, 1" % (sCNT, sCNT))
    A("s_cmp_gt_i32 s%d, 0" % sCNT)
    A("s_cbranch_scc1 Lp%d" % u)
    if stub: touch_stub(stub)
    LB("Ld%d" % u)
    if fine: CST(15)
    if DIAG and tag is not None:
        A("s_lshl_b32 m0, s%d, 2" % sLAY); A("s_add_u32 m0, m0, %d" % tag); A("s_nop 0")
        A("v_writelane_b32 v31, s%d, m0" % sCNT)

def lds_spin(off, target, tmp, mask=None, sleep=0):
    uid[0] += 1; u = uid[0]
    A("s_mov_b32 s%d, %s" % (sT2, hx(SPIN * 4)))
    LB("Ls%d" % u)
    A("ds_read_b32 v%d, v%d offset:%d" % (tmp, vFL, off))
    A("s_waitcnt lgkmcnt(0)")
    A("v_readfirstlane_b32 s%d, v%d" % (sT1, tmp))
    if mask: A("s_and_b32 s%d, s%d, %d" % (sT0, sT1, mask))
    A("s_cmp_ge_u32 s%d, %d" % (sT0 if mask else sT1, target))
    A("s_cbranch_scc1 Lt%d" % u)
    if sleep: A("s_sleep %d" % sleep)
    A("s_sub_u32 s%d, s%d, 1" % (sT2, sT2))
    A("s_cbranch_scc0 Ls%d" % u)
    LB("Lt%d" % u)

def lds_arrive(off, tmp, val=1):
    if val is not None: A("v_mov_b32 v%d, %d" % (tmp, val))
    A("s_mov_b64 exec, 1")
    A("ds_add_u32 v%d, v%d offset:%d" % (vFL, tmp, off))
    A("s_mov_b64 exec, -1")

def store_local(op, data, vaddr, so):
    uid[0] += 1; u = uid[0]
    A("s_cbranch_scc1 Lw%d" % u)
    A("%s %s, v%d, %s, s%d offen" % (op, data, vaddr, sr(sWS, 4), so))
    LB("Lx%d" % u)
    ool.append(["Lw%d:" % u, "    %s %s, v%d, %s, s%d offen sc1" % (op, data, vaddr, sr(sWS, 4), so), "    s_branch Lx%d" % u])
def fastcmp(): A("s_cmp_eq_u32 s%d, 0" % sFAST)

def mf(d, a, b, c):
    return "v_mfma_f32_16x16x32_bf16 %s, %s, %s, %s" % (vr(d, 4), vr(a, 4), vr(b, 4), "0" if c is None else vr(c, 4))
def mfma(d, a, b, c): A(mf(d, a, b, c))

def tags():
    A("s_add_u32 s%d, s%d, 1" % (sTG1, sE))
    A("s_mul_i32 s%d, s%d, 0x9E3779B1" % (sTG2, sTG1))
    A("s_and_b32 s%d, s%d, -8" % (sTG2, sTG2))

def common_addr():
    A("v_and_b32 v18, 3, v%d" % vLANE)
    A("v_lshlrev_b32 v%d, 12, v17" % vQST)
    A("v_lshrrev_b32 v24, 1, v16")
    A("v_lshl_add_u32 v%d, v24, 8, v%d" % (vQST, vQST))
    A("v_and_b32 v24, 1, v16")
    A("v_lshl_add_u32 v%d, v24, 3, v%d" % (vQST, vQST))
    A("v_lshlrev_b32 v%d, 4, v24" % vLSE)
    A("s_mul_i32 s%d, s%d, %d" % (sT0, sW, XS))
    A("s_add_u32 s%d, s%d, %d" % (sT0, sT0, L_XN))
    A("v_add_u32 v%d, s%d, v%d" % (vXNW, sT0, vL16))
    A("s_lshl_b32 s%d, s%d, 8" % (sT0, sA))
    A("s_add_u32 s%d, s%d, %d" % (sT0, sT0, L_XN))
    A("v_mul_u32_u24 v25, %d, v18" % XS)
    A("v_lshl_add_u32 v25, v16, 4, v25")
    A("v_add_u32 v%d, s%d, v25" % (vXNR, sT0))
    A("v_mov_b32 v%d, %s" % (vZ, hx(f2u(1.0 / 512))))
    for r in range(4): A("v_mov_b32 v%d, 0x3f803f80" % (ONES + r))
    A("s_and_b32 s%d, s%d, 1" % (sT1, sC))
    A("s_lshr_b32 s%d, s%d, 1" % (sT2, sC))
    soff(sQS, [(sT1, 11), (sW, 9), (sA, 6), (sT2, 4)], 0)
    A("v_bfe_u32 v24, v%d, 2, 2" % vLANE)
    A("v_lshl_add_u32 v24, v16, 3, v24")
    A("v_lshlrev_b32 v24, 7, v24")
    A("v_bfe_u32 v25, v%d, 3, 2" % vLANE)
    A("v_lshlrev_b32 v25, 1, v25")
    A("v_bfe_u32 v26, v%d, 1, 1" % vLANE)
    A("v_xor_b32 v25, v25, v26")
    A("v_lshl_add_u32 v24, v25, 4, v24")
    A("v_and_b32 v26, 1, v%d" % vLANE)
    A("v_lshl_add_u32 v%d, v26, 3, v24" % vWT)
    A("s_mov_b32 s%d, 0x000f000f" % sMSK)
    A("s_mov_b32 s%d, 0x000f000f" % (sMSK + 1))
    A("s_mov_b32 s%d, 0" % sLAY)

def wtile_voff(shift, d):
    A("v_lshrrev_b32 v24, 3, v%d" % vLANE)
    A("v_and_b32 v25, 7, v%d" % vLANE)
    A("v_and_b32 v26, 1, v16")
    A("v_lshlrev_b32 v26, 1, v26")
    A("v_xor_b32 v25, v25, v26")
    A("v_lshlrev_b32 v25, 4, v25")
    A("v_lshl_add_u32 v%d, v24, %d, v25" % (d, shift))
    A("v_xor_b32 v%d, 64, v%d" % (d + 1, d))

def wqf_reads():
    A("s_lshl_b32 s%d, s%d, 5" % (sT1, sW))
    A("v_xor_b32 v26, s%d, v%d" % (sT1, vWT))
    for t in range(4):
        for hf in range(2):
            A("ds_read_b64_tr_b16 %s, v26 offset:%d" % (vr(WQF + 4 * t + 2 * hf, 2), L_WQ + 4096 * t + 512 * hf))

def dma(vaddr, srdn, so, lds_s, step_so, flags="nt"):
    A("s_mov_b32 m0, s%d" % lds_s)
    A("s_add_u32 s%d, s%d, 1024" % (lds_s, lds_s))
    A("buffer_load_dwordx4 v%d, %s, s%d offen %s lds" % (vaddr, sr(srdn, 4), so, flags))
    A("s_add_u32 s%d, s%d, %d" % (so, so, step_so))

hdr = open("cdna_kernels/%s.s.ref" % NAME).read().split("; Override launch")[0]
L.append(hdr.rstrip("\n") + """
;
; One persistent launch, 256 workgroups (one per CU) x 8 waves.  wg = A(2b):C(3b):j(3b); j = kv head.
; K, V, wq and wo are read from HBM exactly once (LDS-DMA) and stay in registers for both attention layers.
;   roles of a workgroup:  attention (batch A, keys 128C..), q projection (wq rows 128A.., 64 columns C),
;                          output projection (head A of group j, 64 columns C), row reduction (batch A, columns 64C..)
;   waves 0-3: stream K/V, attention, output projection, LayerNorm + mixer + next q projection
;   waves 4-7: first q projection, then the token-mixer MLP g(h) = sum_f gelu(h w1 + b1) w2 + b2 evaluated
;              exactly (all 1792 hidden units) for every bf16 value h with 2^-17 <= |h| < 8; h is a bf16 tensor in the
;              reference, so the mixer is a lookup of these values; any other h is evaluated directly (Lslow).
; Hand-offs between workgroups go through d_ws.  Slots are filled with a sentinel at the start of the launch and a
; consumer polls until no sentinel is left; the first hand-off (q) and the "sentinels are in place" announcements
; carry a tag derived from a word that every launch advances.  Stores inside a kv-head group are plain when the
; whole group reports the same XCC id, write-through otherwise; every poll is bounded.
""".rstrip("\n"))
L.append("; @launch grid=(256,1,1) block=(512,1,1) lds=%d" % LDS_SZ)
L.append('.amdgcn_target "amdgcn-amd-amdhsa--gfx950"')
L.append(".text\n" + (".p2align 12\n" if int(OPT.get("al", 0)) else "") + ".globl %s_kernel\n.p2align 8\n.type %s_kernel,@function\n%s_kernel:" % (NAME, NAME, NAME))
if DIAG: A("s_memrealtime s[42:43]")
if DBL or TOT or MEAS: A("s_memrealtime s[98:99]")
sM = 96
A("s_lshr_b32 s%d, s2, 8" % sT0)
A("s_cbranch_scc1 Lend")
A("s_load_dwordx2 %s, s[0:1], 24" % sr(sWQ, 2))
A("s_load_dwordx4 %s, s[0:1], 0" % sr(sT2, 4))
A("v_readfirstlane_b32 s%d, v0" % sW)
C("every wave pulls one line of this kernel's code into L2 (plain read): 32 workgroups x 4 lines")
A("s_getpc_b64 s[10:11]")
LB("Lpc0")
A("s_lshr_b32 s%d, s2, 3" % sM)
A("s_lshl_b32 s%d, s%d, 9" % (sCNT, sM))
A("s_cmp_lg_u32 s%d, 0" % sW)
A("s_cbranch_scc1 Lnopf")
A("v_and_b32 v19, 3, v0")
A("v_lshl_add_u32 v19, v19, 7, s%d" % sCNT)
A("global_load_dword v%d, v19, s[10:11]" % (W + 8))
LB("Lnopf")
A("s_and_b32 s%d, s2, 7" % sJ)
A("s_lshr_b32 s%d, s2, 6" % sA)
A("s_and_b32 s%d, s%d, 7" % (sC, sM))
A("s_lshl_b32 s%d, 1, 17" % (sWQ + 3))
A("s_bitcmp1_b32 s%d, 8" % sW)
A("s_cbranch_scc0 Lmain0")
vKA, vVA = W + 40, W + 44
sRO, sRM = sVO, 97 if not TOT else 94
if TOT: sRM = sOL
def kv_issue(i):
    A("s_add_u32 m0, s%d, s%d" % (sKL if i < 8 else sVL, sRO))
    A("s_add_u32 s%d, s%d, s%d" % (sCNT, sKO, sRO))
    if i < 8: A("buffer_load_dwordx4 v%d, %s, s%d offen nt lds" % (vKA + (i & 3), sr(sK, 4), sCNT))
    else: A("buffer_load_dwordx4 v%d, %s, s%d offen nt lds" % (vVA + (i & 1), sr(sV, 4), sCNT))
    A("s_addk_i32 s%d, %d" % (sRO, 1024 + (VROT * 1024 if i == 7 else 0)))
    A("s_and_b32 s%d, s%d, 0x1fff" % (sRO, sRO))
def lane_init():
    A("v_and_b32 v%d, 63, v0" % vLANE)
    A("v_mov_b32 v%d, %d" % (vFL, L_FLG))
    A("v_lshlrev_b32 v%d, 4, v%d" % (vL16, vLANE))
    A("v_lshrrev_b32 v16, 4, v%d" % vLANE)
    A("v_and_b32 v17, 15, v%d" % vLANE)
    A("v_mov_b32 v20, 0")
    if DIAG: A("v_mov_b32 v30, 0")
def main_early():
    LB("Lmain0")
    for s, off in [(sW1, 48), (sB1, 56), (sW2, 64)]:
        A("s_load_dwordx2 %s, s[0:1], %d" % (sr(s, 2), off))
    lane_init()
    A("v_mov_b32 v21, 0")
    for k in range(4): A("ds_write_b64 v%d, v[20:21] offset:%d" % (vFL, 8 * k))
    A("ds_write_b64 v%d, v[20:21] offset:52" % vFL) if False else None
    A("ds_write_b32 v%d, v20 offset:56" % vFL)
    if ADP: A("ds_write_b32 v%d, v20 offset:52" % vFL)
    A("s_lshl_b32 s%d, 1, 25" % (sK + 2)); A("s_mov_b32 s%d, s%d" % (sK + 3, sWQ + 3))
    A("v_xor_b32 v18, v17, v16")
    A("v_lshlrev_b32 v18, 4, v18")
    A("v_lshl_add_u32 v%d, v16, 8, v18" % vKA)
    A("s_lshl_b32 s%d, s%d, %d" % (sRO, sC, 10 if ROT else 31))
    if not ROT: A("s_mov_b32 s%d, 0" % sRO)
    A("s_bfe_u32 s%d, s%d, 0x2000a" % (sT1, sRO))
    A("s_lshl_b32 s%d, s%d, 6" % (sT1, sT1))
    for k in range(1, 4):
        A("s_add_u32 s%d, s%d, %d" % (sCNT, sT1, 64 * k))
        A("s_and_b32 s%d, s%d, 0xc0" % (sCNT, sCNT))
        A("v_xor_b32 v%d, s%d, v%d" % (vKA + k, sCNT, vKA))
    A("v_xor_b32 v%d, s%d, v%d" % (vKA, sT1, vKA))
    soff(sKO, [(sA, 23), (sJ, 20), (sC, 15), (sW, 7)], 3072 * 256)
    A("s_add_u32 s%d, s%d, %d" % (sKL, sT0, L_K))
    A("s_waitcnt lgkmcnt(0)")
    A("s_mov_b64 %s, %s" % (sr(sK, 2), sr(sT4, 2)))
    for i in range(D0): kv_issue(i)
    C("lane k<3 of wave 3 pulls a slice of coefficient array k into L2")
    A("s_cmp_lg_u32 s%d, 192" % sW)
    A("s_cbranch_scc1 Lm_nopf")
    A("s_min_u32 s%d, s%d, 27" % (sT1, sM))
    A("s_lshl_b32 s%d, s%d, 7" % (sT1, sT1))
    A("v_mov_b32 v19, s%d" % sT1)
    A("s_mov_b64 exec, 1")
    for k, sd in enumerate([sW1, sB1, sW2]): A("global_load_dword v%d, v19, %s" % (W + 9 + k, sr(sd, 2)))
    A("s_mov_b64 exec, -1")
    LB("Lm_nopf")
    A("s_add_u32 s%d, s%d, %d" % (sVL, sT0, L_V))
    A("s_lshr_b32 s%d, s%d, 6" % (sW, sW))
    if DIAG: A("v_writelane_b32 v30, s42, 0")
    STAMP(10)
    MP("k0")
    A("s_branch Lmain")

C("---- helper waves: first q projection, then the table of g over bf16 inputs ----")
HW1, HB1, HW2 = 32, 60, 112
hK0, hK1, hONE, hRES = 88, 90, 92, 94
AC = [140, 142]
A("s_load_dwordx2 %s, s[0:1], 96" % sr(sWS, 2))
C("wq tile DMA: instruction i, thread t' = t-256: row 32 i + (t'>>3), 16-byte chunk (t'&7) ^ swizzle")
A("v_bfe_u32 v23, v0, 3, 5")
A("v_and_b32 v22, 7, v0")
A("v_and_b32 v24, 2, v23")
A("v_lshrrev_b32 v25, 1, v23")
A("v_and_or_b32 v24, v25, 4, v24")
A("v_xor_b32 v22, v22, v24")
A("v_lshlrev_b32 v22, 4, v22")
A("v_lshl_add_u32 v22, v23, 13, v22")
soff(sQL, [(sA, 20), (sJ, 10), (sC, 7)], 0)
A("s_lshl_b32 s%d, 1, 22" % (sWQ + 2))
A("s_lshl_b32 s%d, 1, 18" % sT1)
A("s_lshl_b32 s%d, s%d, 4" % (sQS, sW))
A("s_add_u32 m0, s%d, %d" % (sQS, L_WQ - 4096))
A("v_lshlrev_b32 v21, 4, v0")
if DIAG: A("s_memrealtime s[88:89]")
A("s_waitcnt lgkmcnt(0)")
if DIAG: A("s_memrealtime s[90:91]")
A("global_load_dwordx4 %s, v21, %s offset:-4096" % (vr(XR, 4), sr(sT2, 2)))
for i in range(4):
    if i:
        A("s_addk_i32 m0, 0x1000")
        A("s_add_u32 s%d, s%d, s%d" % (sQL, sQL, sT1))
    A("buffer_load_dwordx4 v22, %s, s%d offen nt lds" % (sr(sWQ, 4), sQL))
if DIAG: A("s_memrealtime s[92:93]")
lane_init()
A("s_bfe_u32 s%d, s%d, 0x20006" % (sW, sW))
A("s_lshl_b32 s%d, s%d, 10" % (sT3, sW))
srd(sWS, WS_SZ)
C("early sentinels (O0, LSE0): hw0 1024 B, the others 16 B")
for i in range(4): A("v_mov_b32 v%d, -1" % (PM + i))
A("s_mul_i32 s%d, s%d, %d" % (sT5, sM, CLRA_PER))
A("s_lshl_b32 s%d, s%d, 17" % (sGR, sJ))
A("s_add_u32 s%d, s%d, s%d" % (sT5, sT5, sGR))
A("s_add_u32 s%d, s%d, 1024" % (sT4, sT5))
A("s_cmp_ge_u32 s%d, 2" % sW)
A("s_cbranch_scc1 Lhc_skip")
A("s_cmp_eq_u32 s%d, 0" % sW)
A("s_cselect_b32 s%d, s%d, s%d" % (sT5, sT5, sT4))
A("s_cselect_b64 exec, -1, 1")
A("buffer_store_dwordx4 %s, v%d, %s, s%d offen sc1" % (vr(PM, 4), vL16, sr(sWS, 4), sT5))
LB("Lhc_skip")
A("s_mov_b64 exec, -1")
A("s_branch Lhelp2")
main_early()
LB("Lhelp2")
if QT:
    C("touch 2 lines of the tagged q mailbox per wave so that they sit in L2 before they are written")
    soff(sT4, [(sM, 10), (sW, 8), (sJ, 17)], Q0_OFF)
    A("v_lshlrev_b32 v24, 7, v%d" % vLANE)
    A("s_mov_b64 exec, 3")
    A("buffer_load_dword v%d, v24, %s, s%d offen" % (RES + 1, sr(sWS, 4), sT4))
A("s_mov_b64 exec, -1")
if HP: A("s_setprio 3")
A("s_load_dword s%d, %s, %s" % (sE, sr(sWS, 2), hx(EPO)))
A("s_load_dwordx2 %s, s[0:1], 72" % sr(sB2P, 2))
if MEAS:
    A("s_load_dwordx2 s[42:43], s[0:1], 88"); A("s_waitcnt lgkmcnt(0)"); A("v_mov_b32 v30, s42"); A("v_mov_b32 v31, s43")
if DIAG:
    A("v_writelane_b32 v30, s42, 0")
    A("s_waitcnt lgkmcnt(0)")
    A("v_mov_b32 v31, 0")
    A("v_writelane_b32 v31, s88, 0"); A("v_writelane_b32 v31, s90, 1"); A("v_writelane_b32 v31, s92, 2")
STAMP(9)
A("s_barrier")
A("s_lshl_b32 s%d, s2, 2" % sHC)
A("s_add_u32 s%d, s%d, s%d" % (sHC, sHC, sW))
sHX = 86
if XENT:
    C("extra entry e = wave index: |h| code ELO*128 + (e>>1), sign e&1")
    A("s_lshr_b32 s%d, s%d, 1" % (sHX, sHC))
    A("s_add_u32 s%d, s%d, %d" % (sHX, sHX, ELO * 128))
    A("s_lshl_b32 s%d, s%d, 16" % (sHX, sHX))
    A("s_lshl_b32 s%d, s%d, 31" % (sT0, sHC))
    A("s_or_b32 s%d, s%d, s%d" % (sHX, sHX, sT0))
A("s_mul_i32 s%d, s%d, %d" % (sHC, sHC, EPW))
A("s_lshl_b32 s%d, s%d, 3" % (sHT, sHC))
A("s_add_u32 s%d, s%d, %d" % (sHT, sHT, XENT * 4))
A("s_add_u32 s%d, s%d, %d" % (sHC, sHC, ELO * 128 + XENT // 2))
A("s_lshl_b32 s%d, s%d, 16" % (sHC, sHC))
A("v_lshlrev_b32 v27, 2, v%d" % vLANE)
A("v_add_u32 v27, s%d, v27" % sHT)
A("s_mov_b32 s%d, %s" % (sHT, hx(TB)))
common_addr()
A("s_lshl_b32 s%d, s%d, 1" % (sQS, sQS))
A("s_add_u32 s%d, s%d, s%d" % (sQS, sQS, sGR))
A("s_add_u32 s%d, s%d, %s" % (sQS, sQS, hx(Q0_OFF)))
A("v_lshlrev_b32 v%d, 1, v%d" % (vQST, vQST))
A("s_getreg_b32 s%d, hwreg(HW_REG_XCC_ID, 0, 3)" % sXCC)
for r, c in [(hK0, K0), (hK1, K1), (hONE, 1.0)]:
    A("v_mov_b32 v%d, %s" % (r, hx(f2u(c)))); A("v_mov_b32 v%d, %s" % (r + 1, hx(f2u(c))))
A("v_mov_b32 v%d, 0" % hRES)
A("s_mov_b32 s%d, 0" % sIT)
if DRY:
    C("dry run of the q-projection code while its inputs are in flight (instruction cache warm-up; no side effects)")
    A("s_mov_b32 s%d, 1" % sIT)
    A("s_branch Llnq")
    LB("Ldry_done")
    A("s_mov_b64 exec, -1")
    A("s_mov_b32 s%d, 0" % sIT)
if WARM:
    C("warm the instruction cache lines at the far jump targets of the main waves")
    for k, nm in enumerate(["k", "fin", "out", "tab"]):
        A("s_cmp_lg_u32 s%d, %d" % (sW, k))
        A("s_cbranch_scc1 Lwm%d" % k)
        A("s_call_b64 %s, Lst_%s" % (sr(sRET, 2), nm))
        if nm == "out": A("s_call_b64 %s, Lst_mq" % sr(sRET, 2))
        LB("Lwm%d" % k)
A("s_cmp_ge_u32 s%d, 2" % sW)
A("s_cbranch_scc0 Lhx5")
A("s_waitcnt vmcnt(%d)" % (4 + QT))
LB("Lhx5")
A("s_waitcnt vmcnt(%d)" % (5 + QT))
STAMP(1)
A("s_branch Llnq")
LB("Lq_first")
if DRY:
    A("s_cmp_lg_u32 s%d, 0" % sIT)
    A("s_cbranch_scc1 Lq_dry")
A("s_waitcnt vmcnt(0) lgkmcnt(0)")
STAMP(2)
MP("hwq")
lds_arrive(0, vT + 4)
tags()
A("s_or_b32 s%d, s%d, s%d" % (sXCC, sXCC, sTG2))
C("4 helper arrivals (wq tile, xn rows) + 4 main arrivals (coefficients landed, sentinels acknowledged)")
lds_spin(0, 4, vT + 4)
STAMP(6)
LB("Lq_dry")
wqf_reads()
A("s_waitcnt lgkmcnt(0)")
A("s_branch Lq_go")
LB("Lh_qst")
if DRY:
    A("s_cmp_lg_u32 s%d, 0" % sIT)
    A("s_cbranch_scc1 Ldry_done")
STAMP(5)
A("v_mov_b32 v%d, s%d" % (W + 6, sTG1))
A("v_mov_b32 v%d, s%d" % (W + 7, sXCC))
A("buffer_store_dwordx4 %s, v%d, %s, s%d offen%s" % (vr(W + 4, 4), vQST, sr(sWS, 4), sQS, "" if int(OPT.get("fast", 1)) else " sc1"))
A("s_add_u32 s%d, s%d, %s" % (sQS, sQS, hx(QB_DELTA)))
if not QBD: A("buffer_store_dwordx4 %s, v%d, %s, s%d offen sc1" % (vr(W + 4, 4), vQST, sr(sWS, 4), sQS))
A("s_mov_b64 exec, -1")
HR = W + 8
if ADP: lds_arrive(52, 24)
if HP: A("s_setprio 0")
STAMP(3)
MP("hq")
A("v_lshlrev_b32 v26, 3, v%d" % vLANE)
lds_spin(24, 4, 24, sleep=1)
for a_ in range(3):
    for k in range(3):
        A("ds_read_b128 %s, v%d offset:%d" % (vr(HR + 14 * a_ + 4 * k, 4), vL16, 4096 * a_ + 1024 * k))
    A("ds_read_b64 %s, v26 offset:%d" % (vr(HR + 14 * a_ + 12, 2), 4096 * a_ + 3072))
for a_, d in [(0, HW1), (14, HB1), (28, HW2)]:
    A("s_waitcnt lgkmcnt(%d)" % (8 - 4 * (a_ // 14)))
    for p in range(14):
        A("v_lshlrev_b32 v%d, 16, v%d" % (d + 2 * p, HR + a_ + p))
        A("v_and_b32 v%d, 0xffff0000, v%d" % (d + 2 * p + 1, HR + a_ + p))
A("s_load_dword s%d, %s, 0" % (sB2, sr(sB2P, 2)))
STAMP(4)
if DIAG:
    A("s_memtime s[42:43]"); A("s_waitcnt lgkmcnt(0)"); A("v_writelane_b32 v30, s42, 13")
if HPT: A("s_setprio %d" % HPT)
LB("Lhl")
if DIAG:
    A("s_memrealtime s[42:43]"); A("s_add_u32 m0, s%d, 10" % sIT); A("s_waitcnt lgkmcnt(0)"); A("v_writelane_b32 v30, s42, m0")
A("s_mov_b32 s%d, s%d" % (sH, sHC)); A("s_mov_b32 s%d, s%d" % (sH + 1, sHC))
A("s_xor_b32 s%d, s%d, 0x80000000" % (sH2, sHC)); A("s_mov_b32 s%d, s%d" % (sH2 + 1, sH2))
U4 = [144, 146, 148, 150]; T4 = [152, 154, 156, 158]; Z4 = [160, 162, 164, 166]
for p2 in range(7):
    ch = [(2 * p2 + k // 2, k & 1) for k in range(4)]
    for k, (p, sg) in enumerate(ch):
        A("v_pk_fma_f32 %s, %s, %s, %s" % (vr(U4[k], 2), vr(HW1 + 2 * p, 2), sr([sH, sH2][sg], 2), vr(HB1 + 2 * p, 2)))
    for k in range(4): A("v_pk_mul_f32 %s, %s, %s" % (vr(T4[k], 2), vr(U4[k], 2), vr(U4[k], 2)))
    for k in range(4): A("v_pk_fma_f32 %s, %s, %s, %s" % (vr(T4[k], 2), vr(T4[k], 2), vr(hK1, 2), vr(hK0, 2)))
    for k in range(4): A("v_pk_mul_f32 %s, %s, %s" % (vr(T4[k], 2), vr(T4[k], 2), vr(U4[k], 2)))
    for k in range(4):
        for h in range(2): A("v_exp_f32 v%d, v%d" % (T4[k] + h, T4[k] + h))
    for k, (p, sg) in enumerate(ch): A("v_pk_mul_f32 %s, %s, %s" % (vr(Z4[k], 2), vr(U4[k], 2), vr(HW2 + 2 * p, 2)))
    for k in range(4): A("v_pk_add_f32 %s, %s, %s" % (vr(T4[k], 2), vr(T4[k], 2), vr(hONE, 2)))
    for k in range(4):
        for h in range(2): A("v_rcp_f32 v%d, v%d" % (T4[k] + h, T4[k] + h))
    for k, (p, sg) in enumerate(ch):
        if p == 0: A("v_pk_mul_f32 %s, %s, %s" % (vr(AC[sg], 2), vr(Z4[k], 2), vr(T4[k], 2)))
        else: A("v_pk_fma_f32 %s, %s, %s, %s" % (vr(AC[sg], 2), vr(Z4[k], 2), vr(T4[k], 2), vr(AC[sg], 2)))
A("v_add_f32 v%d, v%d, v%d" % (AC[0], AC[0], AC[0] + 1))
A("v_add_f32 v%d, v%d, v%d" % (AC[1], AC[1], AC[1] + 1))
A("s_lshl_b32 m0, s%d, 1" % sIT)
A("s_add_u32 s%d, s%d, 0x10000" % (sHC, sHC))
wave_sum2(AC[0], AC[1], sSUM, sSQ)
A("s_add_u32 s%d, s%d, 1" % (sIT, sIT))
A("s_nop 0")
A("v_writelane_b32 v%d, s%d, m0" % (hRES, sSUM))
A("s_add_u32 m0, m0, 1")
A("s_cmp_lg_u32 s%d, %d" % (sIT, EPW))
A("v_writelane_b32 v%d, s%d, m0" % (hRES, sSQ))
A("s_cbranch_scc1 Lhl")
def h_publish(lanes):
    A("v_cvt_pk_bf16_f32 v%d, v%d, v%d" % (hRES, hRES, hRES))
    A("v_and_b32 v%d, 0xffff0000, v%d" % (hRES, hRES))
    A("v_add_f32 v%d, s%d, v%d" % (hRES, sB2, hRES))
    A("v_cvt_pk_bf16_f32 v%d, v%d, v%d" % (hRES, hRES, hRES))
    A("v_and_b32 v%d, 0xffff0000, v%d" % (hRES + 1, hRES))
    A("s_mov_b64 exec, %d" % lanes)
    A("buffer_store_dword v%d, v27, %s, s%d offen sc1" % (hRES + 1, sr(sWS, 4), sHT))
    A("s_mov_b64 exec, -1")
A("s_waitcnt lgkmcnt(0)")
A("s_lshl_b32 s%d, s%d, 16" % (sB2, sB2))
lds_spin(8, 4, 24)
if not CMB: h_publish((1 << (2 * EPW)) - 1)
else:
    A("v_cvt_pk_bf16_f32 v%d, v%d, v%d" % (hRES, hRES, hRES))
    A("v_and_b32 v%d, 0xffff0000, v%d" % (hRES, hRES))
    A("v_add_f32 v%d, s%d, v%d" % (hRES, sB2, hRES))
    A("v_cvt_pk_bf16_f32 v%d, v%d, v%d" % (hRES, hRES, hRES))
    A("v_and_b32 v%d, 0xffff0000, v%d" % (hRES, hRES))
    C("the last of the four helpers stores the workgroup's 16 entries with one instruction")
    A("s_lshl_b32 s%d, s%d, 4" % (sT0, sW))
    A("v_lshl_add_u32 v16, v%d, 2, s%d" % (vLANE, sT0))
    A("v_add_u32 v16, %d, v16" % (L_FLG + 64))
    A("v_mov_b32 v17, 1")
    A("s_mov_b64 exec, 15")
    A("ds_write_b32 v16, v%d" % hRES)
    A("s_mov_b64 exec, 1")
    A("s_waitcnt lgkmcnt(0)")
    A("ds_add_rtn_u32 v18, v%d, v17 offset:56" % vFL)
    A("s_waitcnt lgkmcnt(0)")
    A("v_readfirstlane_b32 s%d, v18" % sT0)
    A("s_mov_b64 exec, 15")
    A("s_cmp_lg_u32 s%d, 3" % sT0)
    A("s_cbranch_scc1 Lhc_end")
    A("v_add_u32 v16, %d, v%d" % (L_FLG + 64, vL16))
    A("ds_read_b128 v[20:23], v16")
    A("s_lshl_b32 s%d, s2, 6" % sT1)
    A("s_add_u32 s%d, s%d, %s" % (sT1, sT1, hx(TB + XENT * 4)))
    A("s_waitcnt lgkmcnt(0)")
    A("buffer_store_dwordx4 v[20:23], v%d, %s, s%d offen sc1" % (vL16, sr(sWS, 4), sT1))
    LB("Lhc_end")
    A("s_mov_b64 exec, -1")
if QBD:
    C("the write-through copy of q is only needed when the group is not known to sit on one XCD")
    A("ds_read_b32 v24, v%d offset:4" % vFL)
    A("s_waitcnt lgkmcnt(0)")
    A("v_readfirstlane_b32 s%d, v24" % sT0)
    A("s_cmp_eq_u32 s%d, 4" % sT0)
    A("s_cbranch_scc1 Lhqb")
    A("s_mov_b64 exec, %s" % sr(sMSK, 2))
    A("buffer_store_dwordx4 %s, v%d, %s, s%d offen sc1" % (vr(W + 4, 4), vQST, sr(sWS, 4), sQS))
    A("s_mov_b64 exec, -1")
    LB("Lhqb")
if HPT: A("s_setprio 0")
STAMP(8)
MP("htab")
if XENT:
    A("s_mov_b32 s%d, s%d" % (sH, sHX)); A("s_mov_b32 s%d, s%d" % (sH + 1, sHX))
    for grp in [[0, 1, 2, 3], [4, 5, 6, 7], [8, 9, 10], [11, 12, 13]]:
        n = len(grp)
        for k, p in enumerate(grp): A("v_pk_fma_f32 %s, %s, %s, %s" % (vr(U4[k], 2), vr(HW1 + 2 * p, 2), sr(sH, 2), vr(HB1 + 2 * p, 2)))
        for k in range(n): A("v_pk_mul_f32 %s, %s, %s" % (vr(T4[k], 2), vr(U4[k], 2), vr(U4[k], 2)))
        for k in range(n): A("v_pk_fma_f32 %s, %s, %s, %s" % (vr(T4[k], 2), vr(T4[k], 2), vr(hK1, 2), vr(hK0, 2)))
        for k in range(n): A("v_pk_mul_f32 %s, %s, %s" % (vr(T4[k], 2), vr(T4[k], 2), vr(U4[k], 2)))
        for k in range(n):
            for h in range(2): A("v_exp_f32 v%d, v%d" % (T4[k] + h, T4[k] + h))
        for k, p in enumerate(grp): A("v_pk_mul_f32 %s, %s, %s" % (vr(Z4[k], 2), vr(U4[k], 2), vr(HW2 + 2 * p, 2)))
        for k in range(n): A("v_pk_add_f32 %s, %s, %s" % (vr(T4[k], 2), vr(T4[k], 2), vr(hONE, 2)))
        for k in range(n):
            for h in range(2): A("v_rcp_f32 v%d, v%d" % (T4[k] + h, T4[k] + h))
        for k, p in enumerate(grp):
            if p < 2: A("v_pk_mul_f32 %s, %s, %s" % (vr(AC[p & 1], 2), vr(Z4[k], 2), vr(T4[k], 2)))
            else: A("v_pk_fma_f32 %s, %s, %s, %s" % (vr(AC[p & 1], 2), vr(Z4[k], 2), vr(T4[k], 2), vr(AC[p & 1], 2)))
    A("v_add_f32 v%d, v%d, v%d" % (AC[0], AC[0], AC[0] + 1))
    A("v_add_f32 v%d, v%d, v%d" % (AC[1], AC[1], AC[1] + 1))
    A("v_add_f32 v%d, v%d, v%d" % (AC[0], AC[0], AC[1]))
    A("s_nop 1")
    wave_sum2(AC[0], AC[1], sSUM, sSQ)
    A("s_nop 1")
    A("v_mov_b32 v%d, s%d" % (hRES, sSUM))
    A("v_cvt_pk_bf16_f32 v%d, v%d, v%d" % (hRES, hRES, hRES))
    A("v_and_b32 v%d, 0xffff0000, v%d" % (hRES, hRES))
    A("v_add_f32 v%d, s%d, v%d" % (hRES, sB2, hRES))
    A("v_cvt_pk_bf16_f32 v%d, v%d, v%d" % (hRES, hRES, hRES))
    A("v_and_b32 v%d, 0xffff0000, v%d" % (hRES, hRES))
    C("the last of the four helpers stores the workgroup's four extra entries with one instruction")
    A("s_lshl_b32 s%d, s%d, 2" % (sT0, sW))
    A("v_add_u32 v16, s%d, v%d" % (sT0, vFL))
    A("v_mov_b32 v17, 1")
    A("s_mov_b64 exec, 1")
    A("ds_write_b32 v16, v%d offset:32" % hRES)
    A("s_waitcnt lgkmcnt(0)")
    A("ds_add_rtn_u32 v18, v%d, v17 offset:28" % vFL)
    A("s_waitcnt lgkmcnt(0)")
    A("v_readfirstlane_b32 s%d, v18" % sT0)
    A("s_cmp_lg_u32 s%d, 3" % sT0)
    A("s_cbranch_scc1 Lhx_end")
    A("ds_read_b128 v[20:23], v%d offset:32" % vFL)
    A("s_lshl_b32 s%d, s2, 4" % sT0)
    A("v_mov_b32 v16, s%d" % sT0)
    A("s_waitcnt lgkmcnt(0)")
    A("buffer_store_dwordx4 v[20:23], v16, %s, s%d offen sc1" % (sr(sWS, 4), sHT))
    LB("Lhx_end")
    A("s_mov_b64 exec, -1")
if DIAG:
    A("s_memtime s[42:43]"); A("s_waitcnt lgkmcnt(0)"); A("v_writelane_b32 v30, s42, 14")
    STAMP(15)
MP("qv")
STAMP(7)
C("stand in at the two barriers of the second layer, so that they do not wait for this wave's store acknowledgements")
A("s_barrier")
A("s_barrier")
if MEAS and OPT["q"][0] == "h":
    A("s_mov_b64 exec, 1"); A("v_mov_b32 v16, s97"); A("global_atomic_umax v[30:31], v16, off sc1")
if DIAG:
    A("s_add_u32 s%d, s%d, 4" % (sW, sW))
    A("v_mov_b32 v28, v30")
    A("s_branch Lfin_exit")
A("s_endpgm")

LB("Lmain")
for s, off in [(sWS, 96), (sV, 16), (sWO, 32), (sOUT, 80), (sX, 0), (sB2P, 72)]:
    A("s_load_dwordx2 %s, s[0:1], %d" % (sr(s, 2), off))
if MEAS: A("s_load_dwordx2 s[42:43], s[0:1], 88"); A("s_waitcnt lgkmcnt(0)"); A("s_mov_b32 s25, s42"); A("s_mov_b32 s99, s43") if False else None; A("v_mov_b32 v30, s42"); A("v_mov_b32 v31, s43")
srd(sWS, WS_SZ)
for s in [sW1, sB1, sW2]: srd(s, 3584)
A("s_lshl_b32 s%d, s%d, 10" % (sT3, sW))
A("s_barrier")
for i in range(D0, DC): kv_issue(i)
A("s_mov_b32 m0, s%d" % sT3)
for i, sd in enumerate([sW1, sB1, sW2]):
    if i: A("s_addk_i32 m0, 0x1000")
    A("s_nop 0")
    A("buffer_load_dwordx4 v%d, %s, s%d offen lds" % (vL16, sr(sd, 4), sT3))
for i in range(DC, D1): kv_issue(i)
for i in range(4): A("v_mov_b32 v%d, -1" % (W + i))
A("s_lshl_b32 s%d, s%d, 17" % (sGR, sJ))
A("s_mov_b32 s%d, s%d" % (sT1, sM))
A("s_waitcnt lgkmcnt(0)")
A("s_load_dword s%d, %s, %s" % (sE, sr(sWS, 2), hx(EPO)))
STAMP(11)
MP("k3")
for s, n in [(sV, 1 << 25), (sX, 4096), (sWO, 1 << 22), (sOUT, 4096)]: srd(s, n)
A("v_lshlrev_b32 v18, 1, v16")
A("v_xor_b32 v18, v17, v18")
A("v_lshlrev_b32 v18, 4, v18")
A("v_lshl_add_u32 v%d, v16, 8, v18" % vVA)
if ROT:
    A("s_and_b32 s%d, s%d, 1" % (sT0, sC))
    A("s_lshl_b32 s%d, s%d, 7" % (sT0, sT0))
    A("v_xor_b32 v%d, s%d, v%d" % (vVA, sT0, vVA))
A("v_xor_b32 v%d, 128, v%d" % (vVA + 1, vVA))
C("late sentinels: wave 0,1: group region ; wave 2: P chunk")
A("s_lshr_b32 s%d, s2, 3" % sT1)
A("s_mul_i32 s%d, s%d, %d" % (sT1, sT1, CLRB_PER))
A("s_lshl_b32 s%d, s%d, 10" % (sT0, sW))
A("s_add_u32 s%d, s%d, s%d" % (sT1, sT1, sT0))
A("s_add_u32 s%d, s%d, s%d" % (sT1, sT1, sGR))
A("s_add_u32 s%d, s%d, %d" % (sT1, sT1, CLRB_OFF))
A("s_lshl_b32 s%d, s2, 10" % sT0)
A("s_add_u32 s%d, s%d, %s" % (sT0, sT0, hx(PB)))
A("s_cmp_ge_u32 s%d, 2" % sW)
A("s_cselect_b32 s%d, s%d, s%d" % (sT1, sT0, sT1))
A("s_bfm_b64 %s, %d, 0" % (sr(sH, 2), (CLRB_PER - 1024) // 16))
A("s_cmp_eq_u32 s%d, 1" % sW)
A("s_cselect_b64 %s, %s, -1" % (sr(sH, 2), sr(sH, 2)))
NCL = NOCT * 4 // 16
A("v_mov_b32 v19, v%d" % vL16)
A("s_cmp_lg_u32 s%d, 3" % sW)
A("s_cbranch_scc1 Lm_c3")
C("wave 3: this workgroup's table slots")
A("s_mul_i32 s%d, s2, %d" % (sT0, NOCT * 4))
A("s_add_u32 s%d, s%d, %d" % (sT0, sT0, XENT * 4))
A("v_add_u32 v19, s%d, v19" % sT0)
A("s_lshl_b32 s%d, s2, 4" % sT0)
if XENT: A("v_writelane_b32 v19, s%d, %d" % (sT0, NCL))
A("s_mov_b32 s%d, %s" % (sT1, hx(TB)))
A("s_mov_b64 %s, %d" % (sr(sH, 2), (1 << (NCL + (1 if XENT else 0))) - 1))
LB("Lm_c3")
A("s_mov_b64 exec, %s" % sr(sH, 2))
A("buffer_store_dwordx4 %s, v19, %s, s%d offen sc1" % (vr(W, 4), sr(sWS, 4), sT1))
A("s_mov_b64 exec, -1")

common_addr()
A("s_add_u32 s%d, s%d, s%d" % (sQS, sQS, sGR))
A("s_add_u32 s%d, s%d, %d" % (sQS, sQS, Q1_OFF))
wtile_voff(10, 22)
A("v_and_b32 v19, 7, v%d" % vLANE)
A("v_lshrrev_b32 v25, 2, v%d" % vLANE)
A("v_lshlrev_b32 v25, 7, v25")
A("v_lshl_add_u32 v%d, v18, 2, v25" % vOST)
A("v_lshlrev_b32 v25, 7, v16")
A("v_lshl_add_u32 v%d, v19, 4, v25" % vOLD)
C("lanes n>=8 of the first two o loads fetch the lse values instead: offset relative to the o block")
A("s_mul_i32 s%d, s%d, %d" % (sT0, sA, 128 - 8192))
A("s_mul_i32 s%d, s%d, %d" % (sT1, sW, 32 - 2048))
A("s_add_u32 s%d, s%d, s%d" % (sT0, sT0, sT1))
A("s_add_u32 s%d, s%d, %d" % (sT0, sT0, LSE_OFF[0] - O_OFF[0]))
A("v_add_u32 v25, s%d, v%d" % (sT0, vLSE))
A("v_xor_b32 v26, 16, v25")
A("v_add_u32 v26, -512, v26")
A("v_cmp_gt_u32 vcc, 8, v17")
A("s_nop 1")
A("v_cndmask_b32 v%d, v25, v%d, vcc" % (vLSE, vOLD))
A("v_cndmask_b32 v%d, v26, v%d, vcc" % (vLS2, vOLD))
A("v_lshlrev_b32 v%d, 1, v%d" % (vPST, vLANE))
A("v_lshlrev_b32 v25, 3, v16")
A("v_lshl_add_u32 v%d, v19, 4, v25" % vX1S)
A("s_mul_i32 s%d, s%d, %d" % (sT0, sW, RBS))
A("s_add_u32 s%d, s%d, %d" % (sT0, sT0, L_RB))
A("v_mul_u32_u24 v25, 528, v18")
A("v_lshl_add_u32 v25, v16, 4, v25")
A("v_lshrrev_b32 v26, 2, v17")
A("v_lshl_add_u32 v25, v26, 7, v25")
A("v_add_u32 v%d, s%d, v25" % (vRBW, sT0))
A("s_mul_i32 s%d, s%d, 528" % (sT0, sW))
A("s_add_u32 s%d, s%d, %d" % (sT0, sT0, L_RB))
A("v_lshlrev_b32 v25, 3, v%d" % vLANE)
A("v_add_u32 v%d, s%d, v25" % (vRBR, sT0))
A("s_lshl_b32 s%d, s%d, 3" % (sT0, sW))
A("s_add_u32 s%d, s%d, %d" % (sT0, sT0, L_ML))
A("v_lshlrev_b32 v25, 5, v18")
A("v_add_u32 v%d, s%d, v25" % (vMLW, sT0))
A("s_lshl_b32 s%d, s%d, 5" % (sT0, sW))
A("s_add_u32 s%d, s%d, %d" % (sT0, sT0, L_ML))
A("v_mov_b32 v%d, s%d" % (vMLR, sT0))
A("v_mov_b32 v25, 0x3f80")
A("v_mov_b32 v26, 0x3f800000")
for r in range(4):
    A("v_cmp_eq_u32 vcc, %d, v17" % (2 * r))
    A("v_cmp_eq_u32 %s, %d, v17" % (sr(sH, 2), 2 * r + 1))
    A("s_nop 0")
    A("v_cndmask_b32 v%d, 0, v25, vcc" % (SEL + r))
    A("v_cndmask_b32 v%d, v%d, v26, %s" % (SEL + r, SEL + r, sr(sH, 2)))
for i in range(16): A("v_mov_b32 v%d, 0" % (PM + i))
for p in range(4):
    A("s_mov_b32 s%d, %s" % (sPM + 2 * p, hx(0x000f000f << (4 * p))))
    A("s_mov_b32 s%d, %s" % (sPM + 2 * p + 1, hx(0x000f000f << (4 * p))))
soff(sOS, [(sW, 13), (sA, 11), (sC, 4), (sJ, 17)], O_OFF[0])
soff(sOL, [(sA, 13), (sW, 11), (sJ, 17)], O_OFF[0])
A("s_add_u32 s%d, s%d, %s" % (sQL, sOL, hx(Q0_OFF - O_OFF[0])))
soff(sLS, [(sW, 7), (sA, 5), (sC, 2), (sJ, 17)], LSE_OFF[0])
soff(sPS, [(sW, 15), (sC, 12), (sJ, 9), (sA, 7)], PB)
A("s_mov_b32 s%d, %s" % (sSC, hx(f2u(128 ** -0.5 * math.log2(math.e)))))
A("s_getreg_b32 s%d, hwreg(HW_REG_XCC_ID, 0, 3)" % sXCC)
A("v_xor_b32 v24, v16, v17")
A("v_lshlrev_b32 v24, 4, v24")
A("v_lshl_add_u32 v24, v17, 8, v24")
A("s_lshl_b32 s%d, s%d, 13" % (sT1, sW))
A("s_add_u32 s%d, s%d, %d" % (sT2, sT1, L_K))
for t in range(4): A("v_xor_b32 v%d, %d, v24" % (18 + t, 64 * t))
for t in range(4): A("v_add_u32 v%d, s%d, v%d" % (18 + t, sT2, 18 + t))
VA = W + 32
A("v_lshrrev_b32 v24, 2, v%d" % vLANE)
A("v_and_b32 v25, 7, v24")
A("v_lshlrev_b32 v25, 1, v25")
A("v_bfe_u32 v26, v%d, 1, 1" % vLANE)
A("v_xor_b32 v25, v25, v26")
A("v_lshlrev_b32 v25, 4, v25")
A("v_lshl_add_u32 v25, v24, 8, v25")
A("v_and_b32 v26, 1, v%d" % vLANE)
A("v_lshl_add_u32 v25, v26, 3, v25")
A("s_add_u32 s%d, s%d, %d" % (sT2, sT1, L_V))
for t in range(8): A("v_xor_b32 v%d, %d, v25" % (VA + t, 32 * t))
for t in range(8): A("v_add_u32 v%d, s%d, v%d" % (VA + t, sT2, VA + t))
soff(sT4, [(sJ, 19), (sA, 17), (sW, 15), (sC, 7)], 0)
A("s_lshl_b32 s%d, s%d, 12" % (sT5, sW))
A("s_add_u32 s%d, s%d, %d" % (sT5, sT5, L_WO))
soff(sT3, [(sA, 10), (sC, 7)], 0)
A("v_lshlrev_b32 v24, 5, v%d" % vLANE)
A("s_lshl_b32 s%d, s%d, 10" % (sT2, sW))
A("s_add_u32 s%d, s%d, %d" % (sT2, sT2, L_QF))
A("v_add_u32 v25, s%d, v%d" % (sT2, vL16))
A("v_add_u32 v26, %d, v%d" % (L_QF, vL16))
STAMP(12)
if DIAG: A("v_mov_b32 v31, v30")
QP = W
def q0_issue(QP=QP):
    A("buffer_load_dwordx4 %s, v24, %s, s%d offen sc1" % (vr(QP, 4), sr(sWS, 4), sQL))
    A("buffer_load_dwordx4 %s, v24, %s, s%d offen offset:16 sc1" % (vr(QP + 4, 4), sr(sWS, 4), sQL))
def flag_block():
    if True:
        A("s_cmp_lg_u32 s%d, 0" % sW)
        A("s_cbranch_scc1 Lnoflag")
        C("every sentinel store of this workgroup is acknowledged: announce it")
        lds_spin(8, 4, vT)
        A("v_mov_b32 v16, s%d" % sTG1)
        A("v_mov_b32 v17, s%d" % sXCC)
        soff(sT1, [(2, 4)], FB)
        A("s_mov_b64 exec, 1")
        A("buffer_store_dwordx2 v[16:17], v%d, %s, s%d offen sc1" % (PM, sr(sWS, 4), sT1))
        A("s_mov_b64 exec, -1")
        LB("Lnoflag")
C("coefficients landed -> tell the helpers")
young = D1 - DC + 1
told = False
st_arr = st_fl = False
if ECO:
    A("s_waitcnt vmcnt(%d)" % young); lds_arrive(24, vT); told = True
A("s_mov_b32 s%d, 0" % sY)
for i in range(D1, 16):
    dp = DEPTH if i < TAILI else TAILD
    extra = 1 if i == 16 - QV else 0
    if ADP and told:
        C("stay shallow until the helpers have issued their q stores")
        A("s_cmp_lg_u32 s%d, 0" % sY)
        A("s_cbranch_scc1 Ldp%d" % i)
        A("ds_read_b32 v%d, v%d offset:52" % (vT, vFL))
        A("s_waitcnt lgkmcnt(0)")
        A("v_readfirstlane_b32 s%d, v%d" % (sT1, vT))
        A("s_cmp_ge_u32 s%d, 4" % sT1)
        A("s_cselect_b32 s%d, 1, 0" % sY)
        A("s_cbranch_scc1 Ldp%d" % i)
        A("s_waitcnt vmcnt(%d)" % (dp - 1 - 2 * extra))
        LB("Ldp%d" % i)
        A("s_waitcnt vmcnt(%d)" % (ADP - 1 - 2 * extra))
        if extra: q0_issue(); young += 2
    else:
        if extra:
            A("s_waitcnt vmcnt(%d)" % (dp - 2)); q0_issue(); young += 2
            if DIAG:
                A("s_memrealtime s[42:43]"); A("s_waitcnt lgkmcnt(0)"); A("v_writelane_b32 v31, s42, 9")
        if QV2 and i == 16 - QV2:
            A("s_waitcnt vmcnt(%d)" % (dp - 2)); q0_issue(XR); young += 2
        A("s_waitcnt vmcnt(%d)" % (dp - 1))
    if not told and young >= dp - 1:
        lds_arrive(24, vT); told = True
    if EFL:
        ycl = young - (D1 - DC + 1)
        if st_arr and not st_fl:
            flag_block(); st_fl = True
        if not st_arr and ycl >= dp - 1:
            lds_arrive(8, vT); A("s_waitcnt lgkmcnt(0)"); tags(); A("s_or_b32 s%d, s%d, s%d" % (sXCC, sXCC, sTG2)); st_arr = True
    kv_issue(i); young += 1
assert told
q0_issue(QP + 8)
C("everything older than the V loads is complete: K, late sentinels")
A("s_waitcnt vmcnt(%d)" % (14 if QV2 else 12))
if EFL: assert st_fl
else:
    lds_arrive(8, vT)
    A("s_waitcnt lgkmcnt(0)")
    tags()
    A("s_or_b32 s%d, s%d, s%d" % (sXCC, sXCC, sTG2))
STAMP(1)
MP("kl")
for t in range(4):
    for T in range(2):
        A("ds_read_b128 %s, v%d offset:%d" % (vr(KF + 16 * T + 4 * t, 4), 18 + t, 4096 * T))
if not EFL: flag_block()
def wait_w0(n):
    if EFL:
        A("s_waitcnt vmcnt(%d)" % n); return
    uid[0] += 1
    A("s_cmp_eq_u32 s%d, 0" % sW)
    A("s_cbranch_scc1 Lww%d" % uid[0])
    A("s_waitcnt vmcnt(%d)" % n)
    LB("Lww%d" % uid[0])
    A("s_waitcnt vmcnt(%d)" % (n + 1))
wait_w0(QV + 2 + (2 if QV2 else 0))
STAMP(2)
A("s_setprio 2")
A("s_mov_b32 s%d, %s" % (sCNT, hx(SPIN)))
A("s_mov_b32 s%d, 0" % sY)
A("s_mov_b32 s%d, 0" % sIT)
LB("Lmq")
A("v_and_b32 v16, -8, v%d" % (QP + 3))
A("v_and_b32 v17, -8, v%d" % (QP + 7))
A("v_cmp_ne_u32 vcc, s%d, v%d" % (sTG1, QP + 2))
A("v_cmp_ne_u32 %s, s%d, v%d" % (sr(sRET, 2), sTG1, QP + 6))
A("s_or_b64 vcc, vcc, %s" % sr(sRET, 2))
A("v_cmp_ne_u32 %s, s%d, v16" % (sr(sRET, 2), sTG2))
A("s_or_b64 vcc, vcc, %s" % sr(sRET, 2))
A("v_cmp_ne_u32 %s, s%d, v17" % (sr(sRET, 2), sTG2))
A("s_or_b64 vcc, vcc, %s" % sr(sRET, 2))
if not int(OPT.get("nochk", 0)): A("s_cbranch_vccnz Lmqr")
LB("Lmqd")
if DIAG:
    A("s_sub_u32 s%d, s%d, s%d" % (sT0, sCNT, sY)); A("v_writelane_b32 v31, s%d, 0" % sT0)
Ls = L; L = []
L.append(".p2align 6"); LB("Lst_mq"); A("s_setpc_b64 %s" % sr(sRET, 2))
LB("Lmqr")
A("s_cmp_lg_u32 s%d, 0" % sY)
A("s_cbranch_scc1 Lmqr2")
if QV2:
    A("s_cmp_lg_u32 s%d, 0" % sIT)
    A("s_cbranch_scc1 Lmqr1")
    A("s_mov_b32 s%d, 1" % sIT)
    wait_w0(QV2 + 2)
    for k in range(8): A("v_mov_b32 v%d, v%d" % (QP + k, XR + k))
    A("s_branch Lmq")
    LB("Lmqr1")
C("first look failed: take the second one (V has landed with it: request its fragments now)")
A("s_waitcnt vmcnt(0)")
A("s_mov_b32 s%d, 1" % sY)
for k in range(8): A("v_mov_b32 v%d, v%d" % (QP + k, QP + 8 + k))
if not VLATE:
    for t in range(8):
        for hf in range(2):
            A("ds_read_b64_tr_b16 %s, v%d offset:%d" % (vr(VF + 4 * t + 2 * hf, 2), VA + t, 4096 * hf))
A("s_branch Lmq")
LB("Lmqr2")
C("still not there: poll the plain copy a few times, then both copies in turn")
A("s_cmp_le_u32 s%d, %s" % (sCNT, hx(SPIN - 6)))
A("s_cselect_b32 s%d, %s, 0" % (sT0, hx(QB_DELTA)))
A("s_xor_b32 s%d, s%d, s%d" % (sQL, sQL, sT0))
q0_issue()
A("s_waitcnt vmcnt(0)")
A("s_sub_u32 s%d, s%d, 1" % (sCNT, sCNT))
A("s_cbranch_scc0 Lmq")
A("s_branch Lmqd")
ool.append(L); L = Ls
A("v_cmp_ne_u32 vcc, s%d, v%d" % (sXCC, QP + 3))
A("v_mov_b32 v%d, v%d" % (QP + 2, QP + 4))
A("v_mov_b32 v%d, v%d" % (QP + 3, QP + 5))
A("ds_write_b128 v25, %s" % vr(QP, 4))
A("s_cmp_eq_u64 vcc, 0")
A("s_cselect_b32 s%d, 1, 0x101" % sT0)
A("v_mov_b32 v16, s%d" % sT0)
A("s_waitcnt lgkmcnt(0)")
lds_arrive(4, 16, None)
if VLATE:
    A("s_cmp_eq_u32 s%d, 0" % sY)
    A("s_cbranch_scc1 Lnvf")
    for t in range(8):
        for hf in range(2):
            A("ds_read_b64_tr_b16 %s, v%d offset:%d" % (vr(VF + 4 * t + 2 * hf, 2), VA + t, 4096 * hf))
    LB("Lnvf")
STAMP(15)
MP("qv")
A("buffer_load_dwordx2 %s, v%d, %s, s%d offen" % (vr(RES + 2, 2), vX1S, sr(sX, 4), sT3))
FLG = W + 44
soff(sIT, [(sW, 10)], FB)
soff(sQL, [(sA, 12), (sJ, 17)], Q1_OFF)
for k in range(4):
    A("s_add_u32 s%d, s%d, %d" % (sT0, sC, k))
    A("s_and_b32 s%d, s%d, 3" % (sT0, sT0))
    A("s_lshl_b32 s%d, s%d, 10" % (sKO + k, sT0))
A("s_and_b32 s%d, s%d, 1" % (sT0, sC))
A("s_lshl_b32 s%d, s%d, 6" % (sT0, sT0))
A("v_xor_b32 v22, s%d, v22" % sT0); A("v_xor_b32 v23, s%d, v23" % sT0)
A("s_lshl_b32 s%d, s%d, 2" % (sT3, sM))
A("s_add_u32 s%d, s%d, s%d" % (sT3, sT3, sW))
A("s_lshl_b32 s%d, s%d, 8" % (sT3, sT3))
A("v_lshlrev_b32 v21, 7, v%d" % vLANE)
A("v_add_u32 v21, s%d, v21" % sT3)
A("s_lshl_b32 s%d, s%d, 7" % (sT0, sW))
A("s_add_u32 s%d, s%d, %d" % (sT0, sT0, LSE_OFF[0]))
A("v_writelane_b32 v21, s%d, 2" % sT0)
lds_spin(4, 4, vT, mask=0xff)
A("s_cmp_lt_u32 s%d, 256" % sT1)
A("s_cselect_b32 s%d, %d, 0" % (sFAST, int(OPT.get("fast", 1))))
QF = W + 16
for t in range(4):
    A("ds_read_b128 %s, v26 offset:%d" % (vr(QF + 4 * t, 4), 1024 * t))
S = W
qk = []
for t in range(4):
    for T in range(2):
        qk.append(mf(S + 4 * T, KF + 16 * T + 4 * t, QF + 4 * t, None if t == 0 else S + 4 * T))
for t in range(4):
    A("s_waitcnt lgkmcnt(%d)" % (3 - t))
    A(qk[2 * t]); A(qk[2 * t + 1])
def wo_issue():
    C("every wave holds its K fragments: the wo tile may land in the K area")
    for k in range(4):
        A("s_add_u32 m0, s%d, s%d" % (sT5, sKO + k))
        A("s_lshl3_add_u32 s%d, s%d, s%d" % (sT0, sKO + k, sT4))
        A("buffer_load_dwordx4 v%d, %s, s%d offen nt lds" % (22 + (k & 1), sr(sWO, 4), sT0))
if WOP == 0: wo_issue()
if PRET:
    C("bring the first layer's o / lse lines (their sentinels are in place) into L2")
    A("s_mov_b64 exec, 7")
    A("buffer_load_dword v%d, v21, %s, s%d offen sc1" % (W + 40, sr(sWS, 4), sGR))
    A("s_mov_b64 exec, -1")
STAMP(3)
A("s_branch Lk_go")

LB("Llnq")
C("LayerNorm of the row held in XR, then q partial = xn @ wq tile")
X = W
row_stats(XR, vT, X)
A("v_add_f32 v%d, %s, v%d" % (vT + 1, EPS, vT + 1))
A("v_rsq_f32 v%d, v%d" % (vT + 2, vT + 1))
A("s_cmp_eq_u32 s%d, 0" % sLAY)
A("v_mul_f32 v%d, v%d, v%d" % (vT + 3, vT, vT + 2))
for i in range(4):
    A("v_pk_fma_f32 %s, %s, %s, %s op_sel:[0,0,1] op_sel_hi:[1,0,1] neg_lo:[0,0,1] neg_hi:[0,0,1]" % (vr(X + 2 * i, 2), vr(X + 2 * i, 2), vr(vT + 2, 2), vr(vT + 2, 2)))
for i in range(4):
    A("v_cvt_pk_bf16_f32 v%d, v%d, v%d" % (X + 8 + i, X + 2 * i, X + 2 * i + 1))
A("ds_write_b128 v%d, %s" % (vXNW, vr(X + 8, 4)))
A("s_cbranch_scc1 Lq_first")
A("s_waitcnt lgkmcnt(0)")
A("s_barrier")
LB("Lq_go")
BF = W + 16
for t in range(4):
    A("ds_read_b128 %s, v%d offset:%d" % (vr(BF + 4 * t, 4), vXNR, 64 * t))
for t in range(4):
    A("s_waitcnt lgkmcnt(%d)" % (3 - t))
    mfma(W, WQF + 4 * t, BF + 4 * t, None if t == 0 else W)
A("s_cmp_eq_u32 s%d, 0" % sLAY)
A("s_mov_b64 exec, %s" % sr(sMSK, 2))
NOP(6)
A("v_cvt_pk_bf16_f32 v%d, v%d, v%d" % (W + 4, W, W + 1))
A("v_cvt_pk_bf16_f32 v%d, v%d, v%d" % (W + 5, W + 2, W + 3))
A("s_cbranch_scc1 Lh_qst")
fastcmp()
store_local("buffer_store_dwordx2", vr(W + 4, 2), vQST, sQS)
A("s_mov_b64 exec, -1")
A("ds_write_b128 v%d, %s offset:%d" % (vXNW, vr(XR, 4), L_X2 - L_XN))
A("s_mov_b32 s%d, 0" % sY)
for s, d in [(sOL, O_OFF[1] - O_OFF[0]), (sOS, O_OFF[1] - O_OFF[0]), (sLS, LSE_OFF[1] - LSE_OFF[0]), (sPS, P_L)]:
    A("s_add_u32 s%d, s%d, %d" % (s, s, d))
STAMP(2)

C("attention over this workgroup's 128 keys")
if QS:
    C("each wave fetches one k-step of q and shares it through LDS")
    A("s_lshl_b32 s%d, s%d, 10" % (sT3, sW))
    A("s_add_u32 s%d, s%d, s%d" % (sT4, sQL, sT3))
    A("s_add_u32 s%d, s%d, %d" % (sT3, sT3, L_RB + 12288))
    A("v_add_u32 v25, s%d, v%d" % (sT3, vL16))
    A("v_add_u32 v26, %d, v%d" % (L_RB + 12288, vL16))
    ppoll(lambda k: A("buffer_load_dwordx4 %s, v%d, %s, s%d offen sc1" % (vr(W + 32 + 4 * k, 4), vL16, sr(sWS, 4), sT4)),
          lambda k: range(W + 32 + 4 * k, W + 36 + 4 * k), 1, vT, lambda k: ["ds_write_b128 v25, %s" % vr(W + 32 + 4 * k, 4)], pre=QPRE, gap=QGAP, tag=0)
    A("s_waitcnt lgkmcnt(0)")
    A("s_barrier")
    for t in range(4):
        A("ds_read_b128 %s, v26 offset:%d" % (vr(QF + 4 * t, 4), 1024 * t))
    for t in range(4):
        A("s_waitcnt lgkmcnt(%d)" % (3 - t))
        A(qk[2 * t]); A(qk[2 * t + 1])
    touch_stub("k")
else:
    def iq(k):
        for t in range(4):
            A("buffer_load_dwordx4 %s, v%d, %s, s%d offen offset:%d sc1" % (vr(QF + 16 * k + 4 * t, 4), vL16, sr(sWS, 4), sQL, 1024 * t))
    def qks(k):
        return [mf(S + 4 * T, KF + 16 * T + 4 * t, QF + 16 * k + 4 * t, None if t == 0 else S + 4 * T) for t in range(4) for T in range(2)]
    ppoll(iq, lambda k: range(QF + 16 * k, QF + 16 * k + 16), 4, vT, qks, pre=QPRE, gap=QGAP, tag=0, stub="k", per_load=lambda k, i: qks(k)[2 * i:2 * i + 2])
STAMP(3)
LB("Lk_go")
NOP(5)
for ctl in ["row_ror:4", "row_ror:8"]:
    for i in range(8):
        A("v_add_f32_dpp v%d, v%d, v%d %s row_mask:0xf bank_mask:0xf" % (S + i, S + i, S + i, ctl))
A("v_max3_f32 v%d, v%d, v%d, v%d" % (vT, S, S + 1, S + 2))
A("v_max3_f32 v%d, v%d, v%d, v%d" % (vT + 1, S + 3, S + 4, S + 5))
A("v_max3_f32 v%d, v%d, v%d, v%d" % (vT, vT, S + 6, S + 7))
A("v_max_f32 v%d, v%d, v%d" % (vT, vT, vT + 1))
A("v_mov_b32 v%d, v%d" % (vT + 1, vT))
A("s_nop 1")
A("v_permlane16_swap_b32 v%d, v%d" % (vT, vT + 1))
A("v_max_f32 v%d, v%d, v%d" % (vT, vT, vT + 1))
A("v_mov_b32 v%d, v%d" % (vT + 1, vT))
A("s_nop 1")
A("v_permlane32_swap_b32 v%d, v%d" % (vT, vT + 1))
A("v_max_f32 v%d, v%d, v%d" % (vT, vT, vT + 1))
A("v_mul_f32 v%d, s%d, v%d" % (vT + 2, sSC, vT))
for i in range(8):
    A("v_fma_f32 v%d, v%d, s%d, -v%d" % (S + i, S + i, sSC, vT + 2))
for i in range(8):
    A("v_exp_f32 v%d, v%d" % (S + i, S + i))
for p in range(4):
    A("s_mov_b64 exec, %s" % sr(sPM + 2 * p, 2))
    for i in range(4):
        A("v_cvt_pk_bf16_f32 v%d, v%d, v%d" % (PM + 4 * p + i, S + 2 * i, S + 2 * i + 1))
A("s_mov_b64 exec, -1")
STAMP(4)
A("s_cmp_lg_u32 s%d, 0" % sLAY)
A("s_cbranch_scc1 Lv_go")
wait_w0((5 if WOP == 0 else 1) + PRET)
if WOP == 1: wo_issue()
A("buffer_load_dwordx4 %s, v%d, %s, s%d offen sc1" % (vr(FLG, 4), vL16, sr(sWS, 4), sIT))
STAMP(6)
A("s_cmp_lg_u32 s%d, 0" % sY)
A("s_cbranch_scc1 Lv_have")
for t in range(8):
    for hf in range(2):
        A("ds_read_b64_tr_b16 %s, v%d offset:%d" % (vr(VF + 4 * t + 2 * hf, 2), VA + t, 4096 * hf))
A("s_waitcnt lgkmcnt(0)")
LB("Lv_have")
if TOT:
    A("s_memrealtime s[42:43]"); A("s_waitcnt lgkmcnt(0)"); A("s_mov_b32 s97, s42")
MP("pv")
if MEAS and OPT["q"] in ("tg", "s1"): A("s_mov_b32 s97, s98")
A("s_cmp_lg_u32 s%d, 0" % sLAY)
LB("Lv_go")
OA = W + 8
mfma(W + 16, ONES, PM, None)
for p in range(4):
    for T in range(2):
        mfma(OA + 4 * T, VF + 4 * (2 * p + T), PM + 4 * p, None if p == 0 else OA + 4 * T)
A("s_mov_b64 exec, %s" % sr(sMSK, 2))
A("v_mov_b32 v%d, v%d" % (vT + 3, W + 16))
A("ds_write_b64 v%d, %s" % (vMLW, vr(vT + 2, 2)))
A("s_mov_b64 exec, -1")
NOP(3)
A("ds_write_b128 v%d, %s" % (vRBW, vr(OA, 4)))
A("ds_write_b128 v%d, %s offset:64" % (vRBW, vr(OA + 4, 4)))
A("s_waitcnt lgkmcnt(0)")
A("s_cbranch_scc1 Lrb_bar")
lds_arrive(12, vT + 4)
if WOP == 2: wo_issue()
lds_spin(12, 4, vT + 4)
A("s_branch Lrb_go")
LB("Lrb_bar")
A("s_barrier")
LB("Lrb_go")
A("ds_read_b128 %s, v%d" % (vr(W, 4), vMLR))
A("ds_read_b128 %s, v%d offset:16" % (vr(W + 4, 4), vMLR))
for w in range(4):
    A("ds_read_b64 %s, v%d offset:%d" % (vr(W + 8 + 2 * w, 2), vRBR, RBS * w))
A("v_mov_b32 v%d, 0" % (vT + 4))
fastcmp()
A("s_waitcnt lgkmcnt(4)")
A("v_max3_f32 v%d, v%d, v%d, v%d" % (vT, W, W + 2, W + 4))
A("v_max_f32 v%d, v%d, v%d" % (vT, vT, W + 6))
for w in range(4): A("v_sub_f32 v%d, v%d, v%d" % (W + 2 * w, W + 2 * w, vT))
for w in range(4): A("v_exp_f32 v%d, v%d" % (W + 2 * w, W + 2 * w))
A("v_mul_f32 v%d, v%d, v%d" % (vT + 1, W, W + 1))
for w in range(1, 4): A("v_fmac_f32 v%d, v%d, v%d" % (vT + 1, W + 2 * w, W + 2 * w + 1))
A("s_waitcnt lgkmcnt(0)")
A("v_pk_mul_f32 %s, %s, %s op_sel_hi:[1,0]" % (vr(W + 8, 2), vr(W + 8, 2), vr(W, 2)))
A("v_rcp_f32 v%d, v%d" % (vT + 2, vT + 1))
A("v_pk_fma_f32 %s, %s, %s, %s op_sel_hi:[1,0,1]" % (vr(W + 8, 2), vr(W + 10, 2), vr(W + 2, 2), vr(W + 8, 2)))
A("v_log_f32 v%d, v%d" % (vT + 5, vT + 1))
for w in range(2, 4):
    A("v_pk_fma_f32 %s, %s, %s, %s op_sel_hi:[1,0,1]" % (vr(W + 8, 2), vr(W + 8 + 2 * w, 2), vr(W + 2 * w, 2), vr(W + 8, 2)))
A("v_pk_mul_f32 %s, %s, %s op_sel_hi:[1,0]" % (vr(W + 8, 2), vr(W + 8, 2), vr(vT + 2, 2)))
A("v_add_f32 v%d, v%d, v%d" % (vT + 5, vT + 5, vT))
A("v_cvt_pk_bf16_f32 v%d, v%d, v%d" % (W + 8, W + 8, W + 9))
store_local("buffer_store_dword", "v%d" % (W + 8), vOST, sOS)
A("s_mov_b64 exec, 1")
store_local("buffer_store_dword", "v%d" % (vT + 5), vT + 4, sLS)
A("s_mov_b64 exec, -1")
STAMP(5)

C("wo phase: wave = batch, rows = key splits")
OF = W; LS = W + 32; DA = WQF
assert LSE_OFF[1] - O_OFF[1] == LSE_OFF[0] - O_OFF[0]
def io(k):
    for t in range(4):
        A("buffer_load_dwordx4 %s, v%d, %s, s%d offen offset:%d sc1" % (vr(OF + 16 * k + 4 * t, 4), [vLSE, vLS2, vOLD, vOLD][t], sr(sWS, 4), sOL, 512 * t))
A("s_cmp_lg_u32 s%d, 0" % sLAY)
A("s_cbranch_scc1 Lo_go")
C("first layer: wo tile landed -> fragments; every workgroup has announced its clears")
if WOP == 3: wo_issue()
A("s_waitcnt vmcnt(%d)" % (2 if WOP < 3 else 0))
STAMP(13)
A("s_mov_b32 s%d, %s" % (sT4, hx(SPIN)))
LB("Lap")
A("v_and_b32 v24, -8, v%d" % (FLG + 1))
A("v_cmp_ne_u32 vcc, s%d, v%d" % (sTG1, FLG))
A("v_cmp_ne_u32 %s, s%d, v24" % (sr(sH, 2), sTG2))
A("s_or_b64 vcc, vcc, %s" % sr(sH, 2))
A("s_cbranch_vccnz Lar")
LB("Lad")
lds_arrive(16, 24)
for i in range(2):
    A("v_lshlrev_b32 v%d, 16, v%d" % (W + 40 + 2 * i, RES + 2 + i))
    A("v_and_b32 v%d, 0xffff0000, v%d" % (W + 41 + 2 * i, RES + 2 + i))
for i in range(4): A("v_mov_b32 v%d, v%d" % (RES + i, W + 40 + i))
for ct in range(4): A("v_xor_b32 v%d, %d, v%d" % (W + 40 + ct, 32 * ct, vWT))
for ct in range(4): A("v_add_u32 v%d, %d, v%d" % (W + 40 + ct, L_WO, W + 40 + ct))
lds_spin(16, 4, 24)
STAMP(14)
A("s_mov_b32 s%d, 1" % sY)
LB("Lo_go")
A("s_mov_b32 s%d, 0x55555555" % sT4)
A("s_mov_b32 s%d, 0x55555555" % sT5)
def pre_o():
    A("s_cmp_eq_u32 s%d, 0" % sY)
    A("s_cbranch_scc1 Lo_nof")
    A("s_mov_b32 s%d, 0" % sY)
    for t in range(4):
        for ct in range(4):
            for hf in range(2):
                A("ds_read_b64_tr_b16 %s, v%d offset:%d" % (vr(WOF + 16 * ct + 4 * t + 2 * hf, 2), W + 40 + ct, 4096 * t + 512 * hf))
    LB("Lo_nof")
ool.append(["Lar:", "    s_lshl_b32 s%d, s%d, 10" % (sT5, sW), "    s_add_u32 s%d, s%d, %s" % (sT5, sT5, hx(FB)),
            "    buffer_load_dwordx4 %s, v%d, %s, s%d offen sc1" % (vr(FLG, 4), vL16, sr(sWS, 4), sT5),
            "    s_waitcnt vmcnt(0)", "    s_sub_u32 s%d, s%d, 1" % (sT4, sT4), "    s_cbranch_scc0 Lap", "    s_branch Lad"])
C("softmax over the 8 key splits: lanes n>=8 hold own lse in OF[0:3], the other four in OF[4:7]")
vU = vT + 2
def wo_all(k, t):
    o = OF + 16 * k
    m = [mf(DA + 4 * ct, o + 4 * t, WOF + 16 * ct + 4 * t, None if t == 0 else DA + 4 * ct) for ct in range(4)]
    va = ["v_max3_f32 v%d, v%d, v%d, v%d" % (vU, o, o + 1, o + 2), "v_max3_f32 v%d, v%d, v%d, v%d" % (vU + 1, o + 3, o + 4, o + 5),
          "v_max3_f32 v%d, v%d, v%d, v%d" % (vU, vU, o + 6, o + 7), "v_max_f32 v%d, v%d, v%d" % (vU, vU, vU + 1)]
    va += ["v_sub_f32 v%d, v%d, v%d" % (LS + i, o + i, vU) for i in range(4)]
    va += ["v_exp_f32 v%d, v%d" % (LS + i, LS + i) for i in range(4)]
    vb = ["v_mov_b32_dpp v%d, v%d row_ror:8 row_mask:0xf bank_mask:0x3" % (LS + i, LS + i) for i in range(4)]
    vb += ["v_add_f32 v%d, v%d, v%d" % (vU, LS, LS + 1), "v_add_f32 v%d, v%d, v%d" % (vU + 1, LS + 2, LS + 3),
           "v_add_f32 v%d, v%d, v%d" % (vU, vU, vU + 1), "v_mov_b32 v%d, v%d" % (vU + 1, vU)]
    f = {0: [], 1: va[:4], 2: va[4:], 3: vb}[t]
    out = ["s_waitcnt lgkmcnt(%d)" % [15, 15, 8, 0][t]] if t != 1 else []
    for x in m:
        out.append(x)
        for _ in range(2):
            if f: out.append(f.pop(0))
    return out
assert PROG and OGAP < 0
ppoll(io, lambda k: range(OF + 16 * k, OF + 16 * k + 16), 4, vT, None, pre=OPRE, gap=OGAP, mid=pre_o, tag=1, per_load=wo_all)
STAMP(7)
A("v_permlane16_swap_b32 v%d, v%d" % (vU, vU + 1))
A("v_mul_f32 v%d, v%d, v%d" % (DA, DA, LS))
A("v_add_f32 v%d, v%d, v%d" % (vT, vU, vU + 1))
A("v_mul_f32 v%d, v%d, v%d" % (DA + 4, DA + 4, LS))
A("v_rcp_f32 v%d, v%d" % (vT, vT))
A("v_mul_f32 v%d, v%d, v%d" % (DA + 8, DA + 8, LS))
for i in range(1, 4):
    for ct in range(3):
        A("v_fmac_f32 v%d, v%d, v%d" % (DA + 4 * ct, DA + 4 * ct + i, LS + i))
    if i == 1: A("v_mul_f32 v%d, v%d, v%d" % (DA + 12, DA + 12, LS))
for i in range(1, 4): A("v_fmac_f32 v%d, v%d, v%d" % (DA + 12, DA + 12 + i, LS + i))
A("v_permlane16_swap_b32 v%d, v%d" % (DA, DA + 4))
A("s_nop 0")
A("v_permlane16_swap_b32 v%d, v%d" % (DA + 8, DA + 12))
A("v_add_f32 v%d, v%d, v%d" % (DA, DA, DA + 4))
A("v_add_f32 v%d, v%d, v%d" % (DA + 8, DA + 8, DA + 12))
A("s_nop 1")
A("v_permlane32_swap_b32 v%d, v%d" % (DA, DA + 8))
A("v_mul_f32 v%d, v%d, v%d" % (DA, DA, vT))
A("s_cmp_lg_u32 s%d, 0" % sLAY)
A("s_nop 0")
A("v_mov_b32_dpp v%d, v%d quad_perm:[1,0,3,2] row_mask:0xf bank_mask:0xf" % (DA + 1, DA))
A("s_mov_b64 exec, %s" % sr(sT4, 2))
A("v_cvt_pk_bf16_f32 v%d, v%d, v%d" % (DA, DA, DA + 1))
A("buffer_store_dword v%d, v%d, %s, s%d offen sc1" % (DA, vPST, sr(sWS, 4), sPS))
A("s_mov_b64 exec, -1")
STAMP(8)
A("s_cbranch_scc1 Lfinal")
MP("p0")

if PRET:
    C("same for the remaining lines of the group's mailboxes")
    soff(sT1, [(sM, 11), (sW, 9), (sJ, 17)], CLRB_OFF)
    A("v_lshlrev_b32 v21, 7, v%d" % vLANE)
    A("s_mov_b64 exec, 15")
    A("buffer_load_dword v%d, v21, %s, s%d offen sc1" % (W + 47, sr(sWS, 4), sT1))
    A("s_mov_b64 exec, -1")
A("s_cmp_lg_u32 s%d, 0" % sW)
A("s_cbranch_scc1 Ltab")
C("stage 1 (wave 0): reduce 32 head partials of 64 outputs, add residual, publish x1 slice")
soff(sT1, [(sA, 15), (sC, 12)], PB)
soff(sT2, [(sA, 10), (sC, 7), (sJ, 17)], X1_OFF)
A("s_mov_b32 s%d, 0x00ff00ff" % sT4)
A("s_mov_b32 s%d, 0" % sT5)
def ip(k):
    for i in range(4):
        A("buffer_load_dwordx4 %s, v%d, %s, s%d offen offset:%d sc1" % (vr(W + 20 * k + 4 * i, 4), vL16, sr(sWS, 4), sT1, 1024 * i))
if GW: A("s_waitcnt vmcnt(0)")
ppoll(ip, lambda k: range(W + 20 * k, W + 20 * k + 16), 4, vT, lambda k: [mf(W + 16, SEL, W + 20 * k + 4 * i, None if i == 0 else W + 16) for i in range(4)], pre=GPRE, gap=GGAP, tag=2,
      per_load=lambda k, i: [mf(W + 16, SEL, W + 20 * k + 4 * i, None if i == 0 else W + 16)])
STAMP(9)
MP("s1")
fastcmp()
NOP(3)
for i in range(4):
    A("v_add_f32_dpp v%d, v%d, v%d row_ror:8 row_mask:0xf bank_mask:0xf" % (W + 16 + i, W + 16 + i, W + 16 + i))
A("s_mov_b64 exec, %s" % sr(sT4, 2))
A("v_pk_add_f32 %s, %s, %s" % (vr(W + 16, 2), vr(W + 16, 2), vr(RES, 2)))
A("v_pk_add_f32 %s, %s, %s" % (vr(W + 18, 2), vr(W + 18, 2), vr(RES + 2, 2)))
A("v_cvt_pk_bf16_f32 v%d, v%d, v%d" % (W + 16, W + 16, W + 17))
A("v_cvt_pk_bf16_f32 v%d, v%d, v%d" % (W + 17, W + 18, W + 19))
store_local("buffer_store_dwordx2", vr(W + 16, 2), vX1S, sT2)
A("s_mov_b64 exec, -1")
LB("Ltabdone")
soff(sT3, [(sW, 10), (sJ, 17)], X1_OFF)
def ix(k):
    A("buffer_load_dwordx4 %s, v%d, %s, s%d offen sc1" % (vr([XR, RES][k], 4), vL16, sr(sWS, 4), sT3))
wqf_reads()
ppoll(ix, lambda k: range([XR, RES][k], [XR, RES][k] + 4), 1, vT, lambda k: ["s_waitcnt lgkmcnt(0)", "v_readfirstlane_b32 s%d, v%d" % (sT1, vT + 2)],
      pre=XPRE, gap=XGAP, mid=lambda: A("ds_read_b32 v%d, v%d offset:20" % (vT + 2, vFL)), tag=3,
      fix=["v_mov_b32 v%d, v%d" % (XR + i, RES + i) for i in range(4)])
A("s_cmp_lt_u32 s%d, 3" % sT1)
A("s_cbranch_scc1 Ltw")
LB("Ltwd")
STAMP(10)

LB("Lmix")
C("x <- x + g(LN(LN(x))) ; g is tabulated for every bf16 input in range, evaluated directly otherwise")
X = W; HB = W + 8; RT = W + 12; AD = W + 16; Y = W + 24
row_stats(XR, vT, X)
A("v_add_f32 v%d, %s, v%d" % (vT + 2, EPS, vT + 1))
A("v_rsq_f32 v%d, v%d" % (vT + 2, vT + 2))
A("v_mov_b32 v%d, %s" % (vT + 4, hx(LO2 | (LO2 << 16))))
A("s_movk_i32 s%d, %d" % (sT5, NENT * 4))
A("v_mul_f32 v%d, v%d, v%d" % (vT + 1, vT + 1, vT + 2))
A("v_fmaak_f32 v%d, v%d, v%d, %s" % (vT + 1, vT + 1, vT + 2, EPS))
A("v_rsq_f32 v%d, v%d" % (vT + 1, vT + 1))
A("s_nop 0")
A("v_mul_f32 v%d, v%d, v%d" % (vT + 2, vT + 2, vT + 1))
A("v_mul_f32 v%d, v%d, v%d" % (vT + 3, vT, vT + 2))
for i in range(4):
    A("v_pk_fma_f32 %s, %s, %s, %s op_sel:[0,0,1] op_sel_hi:[1,0,1] neg_lo:[0,0,1] neg_hi:[0,0,1]" % (vr(AD + 2 * i, 2), vr(X + 2 * i, 2), vr(vT + 2, 2), vr(vT + 2, 2)))
for i in range(4):
    A("v_cvt_pk_bf16_f32 v%d, v%d, v%d" % (HB + i, AD + 2 * i, AD + 2 * i + 1))
for i in range(4):
    A("v_pk_lshlrev_b16 v%d, 1, v%d op_sel_hi:[0,1]" % (RT + i, HB + i))
    A("v_pk_lshrrev_b16 v%d, 15, v%d op_sel_hi:[0,1]" % (AD + i, HB + i))
for i in range(4):
    A("v_or_b32 v%d, v%d, v%d" % (RT + i, RT + i, AD + i))
for i in range(4):
    A("v_pk_sub_u16 v%d, v%d, v%d" % (RT + i, RT + i, vT + 4))
for i in range(4):
    A("v_lshlrev_b32_sdwa v%d, 2, v%d dst_sel:DWORD dst_unused:UNUSED_PAD src0_sel:DWORD src1_sel:WORD_0" % (AD + 2 * i, RT + i))
    A("v_lshlrev_b32_sdwa v%d, 2, v%d dst_sel:DWORD dst_unused:UNUSED_PAD src0_sel:DWORD src1_sel:WORD_1" % (AD + 2 * i + 1, RT + i))
    A("ds_read_b32 v%d, v%d offset:%d" % (Y + 2 * i, AD + 2 * i, L_TAB))
    A("ds_read_b32 v%d, v%d offset:%d" % (Y + 2 * i + 1, AD + 2 * i + 1, L_TAB))
A("v_max3_u32 v%d, v%d, v%d, v%d" % (vT, AD, AD + 1, AD + 2))
A("v_max3_u32 v%d, v%d, v%d, v%d" % (vT + 1, AD + 3, AD + 4, AD + 5))
A("v_max3_u32 v%d, v%d, v%d, v%d" % (vT, vT, AD + 6, AD + 7))
A("v_max_u32 v%d, v%d, v%d" % (vT, vT, vT + 1))
A("v_cmp_le_u32 %s, s%d, v%d" % (sr(sH, 2), sT5, vT))
A("s_waitcnt lgkmcnt(5)")
A("v_max3_u32 v%d, v%d, v%d, v%d" % (vT, Y, Y + 1, Y + 2))
A("s_waitcnt lgkmcnt(2)")
A("v_max3_u32 v%d, v%d, v%d, v%d" % (vT + 1, Y + 3, Y + 4, Y + 5))
A("s_waitcnt lgkmcnt(0)")
A("v_max3_u32 v%d, v%d, v%d, v%d" % (vT, vT, Y + 6, Y + 7))
A("v_max_u32 v%d, v%d, v%d" % (vT, vT, vT + 1))
A("v_cmp_eq_u32 vcc, -1, v%d" % vT)
LB("Lslowdone")
for i in range(4):
    A("v_pk_add_f32 %s, %s, %s" % (vr(vT + 2 + 2 * i, 2), vr(X + 2 * i, 2), vr(Y + 2 * i, 2)))
A("s_or_b64 vcc, vcc, %s" % sr(sH, 2))
A("s_cbranch_vccnz Lslow")
A("s_cmp_lg_u32 s%d, 0" % sLAY)
for i in range(4):
    A("v_cvt_pk_bf16_f32 v%d, v%d, v%d" % (XR + i, vT + 2 + 2 * i, vT + 3 + 2 * i))
STAMP(11)
A("s_cbranch_scc1 Lout")
A("s_mov_b32 s%d, 1" % sLAY)
if TOT or MEAS: A("s_memrealtime s[100:101]")
if DIAG: A("v_mov_b32 v28, v30")
A("s_branch Llnq")

L.append(".p2align 6"); LB("Lst_fin"); A("s_setpc_b64 %s" % sr(sRET, 2)); stubs.append("fin")
LB("Lfinal")
A("s_cmp_ge_u32 s2, 4")
A("s_cbranch_scc1 Lepoch")
C("workgroup b: reduce the 32 head partials of row b, add x2, mixer, store")
soff(sT1, [(2, 15), (sW, 13)], PB + P_L)
A("s_add_u32 s%d, s%d, 4096" % (sT2, sT1))
A("s_mul_i32 s%d, s2, %d" % (sT0, XS))
A("s_lshl_b32 s%d, s%d, 8" % (sT3, sW))
A("s_add_u32 s%d, s%d, s%d" % (sT0, sT0, sT3))
A("s_add_u32 s%d, s%d, %d" % (sT0, sT0, L_X2))
A("v_add_u32 v%d, s%d, v%d" % (vT + 4, sT0, vX1S))
A("s_add_u32 s%d, s%d, %d" % (sT3, sT3, L_XN))
A("v_add_u32 v%d, s%d, v%d" % (vT + 5, sT3, vX1S))
A("ds_read_b64 %s, v%d" % (vr(PM, 2), vT + 4))
A("ds_read_b64 %s, v%d offset:128" % (vr(PM + 2, 2), vT + 4))
A("s_mov_b32 s%d, 0x00ff00ff" % sT4)
A("s_mov_b32 s%d, 0" % sT5)
if XENT:
    A("s_cmp_lg_u32 s%d, 3" % sW)
    A("s_cbranch_scc1 Lfn3")
    A("ds_read_b32 v%d, v%d offset:48" % (vT, vFL))
    A("s_waitcnt lgkmcnt(0)")
    A("v_readfirstlane_b32 s%d, v%d" % (sT0, vT))
    A("s_cmp_eq_u32 s%d, 0" % sT0)
    A("s_cbranch_scc1 Lfn3")
    A("s_mov_b32 s%d, %s" % (sCNT, hx(TB)))
    for i in range(XENT * 4 // 1024):
        A("buffer_load_dwordx4 %s, v%d, %s, s%d offen offset:%d sc1" % (vr(W + 4 * i, 4), vL16, sr(sWS, 4), sCNT, 1024 * i))
    A("v_add_u32 v%d, %d, v%d" % (vT + 6, L_TAB, vL16))
    A("s_waitcnt vmcnt(0)")
    for i in range(XENT * 4 // 1024):
        A("ds_write_b128 v%d, %s offset:%d" % (vT + 6, vr(W + 4 * i, 4), 1024 * i))
    LB("Lfn3")
A("s_waitcnt lgkmcnt(0)")
if GW: A("s_waitcnt vmcnt(0)")
for i in range(4):
    A("v_lshlrev_b32 v%d, 16, v%d" % (PM + 4 + 2 * i, PM + i))
    A("v_and_b32 v%d, 0xffff0000, v%d" % (PM + 5 + 2 * i, PM + i))
if "bias" in OPT:
    for i in range(8): A("v_add_f32 v%d, %s, v%d" % (PM + 4 + i, hx(f2u(float(OPT["bias"]))), PM + 4 + i))
FS = [KF, VF]
def ifin(k):
    for i in range(8):
        A("buffer_load_dwordx4 %s, v%d, %s, s%d offen offset:%d sc1" % (vr(FS[k] + 4 * i, 4), vL16, sr(sWS, 4), sT1 if i < 4 else sT2, 1024 * (i & 3)))
def fs(k):
    o = []
    for i in range(4):
        o.append(mf(W + 32, SEL, FS[k] + 4 * i, None if i == 0 else W + 32))
        o.append(mf(W + 36, SEL, FS[k] + 16 + 4 * i, None if i == 0 else W + 36))
    return o
ppoll(ifin, lambda k: range(FS[k], FS[k] + 32), 8, vT, fs, pre=GPRE, gap=GGAP, tag=2,
      per_load=lambda k, i: [mf(W + 32 + 4 * (i >> 2), SEL, FS[k] + 4 * i, None if (i & 3) == 0 else W + 32 + 4 * (i >> 2))])
STAMP(9)
NOP(2)
for i in range(8):
    A("v_add_f32_dpp v%d, v%d, v%d row_ror:8 row_mask:0xf bank_mask:0xf" % (W + 32 + i, W + 32 + i, W + 32 + i))
A("s_mov_b64 exec, %s" % sr(sT4, 2))
for i in range(4):
    A("v_pk_add_f32 %s, %s, %s" % (vr(W + 32 + 2 * i, 2), vr(W + 32 + 2 * i, 2), vr(PM + 4 + 2 * i, 2)))
for i in range(4):
    A("v_cvt_pk_bf16_f32 v%d, v%d, v%d" % (W + 32 + i, W + 32 + 2 * i, W + 33 + 2 * i))
A("ds_write_b64 v%d, %s" % (vT + 5, vr(W + 32, 2)))
A("ds_write_b64 v%d, %s offset:128" % (vT + 5, vr(W + 34, 2)))
A("s_mov_b64 exec, -1")
A("s_cmp_lg_u32 s%d, 0" % sW)
A("s_waitcnt lgkmcnt(0)")
A("s_barrier")
A("s_cbranch_scc1 Lfin_exit")
A("ds_read_b128 %s, v%d" % (vr(XR, 4), vXNW))
A("s_waitcnt lgkmcnt(0)")
STAMP(10)
A("s_branch Lmix")
L.append(".p2align 6"); LB("Lst_out"); A("s_setpc_b64 %s" % sr(sRET, 2)); stubs.append("out")
LB("Lout")
A("s_lshl_b32 s%d, s2, 10" % sT0)
A("buffer_store_dwordx4 %s, v%d, %s, s%d offen" % (vr(XR, 4), vL16, sr(sOUT, 4), sT0))
if DBL:
    A("s_cmp_lg_u32 s2, 0")
    A("s_cbranch_scc1 Lfin_exit")
if DBL:
    A("s_waitcnt vmcnt(0)")
    A("s_memrealtime s[10:11]")
    A("s_waitcnt lgkmcnt(0)")
    A("s_sub_u32 s12, s10, s98")
    if "pad" in OPT:
        A("s_mov_b32 s10, s98"); A("s_mov_b32 s12, %d" % (100 * int(OPT["pad"])))
    LB("Ldbl")
    A("s_memrealtime s[14:15]")
    A("s_waitcnt lgkmcnt(0)")
    A("s_sub_u32 s13, s14, s10")
    A("s_cmp_lt_u32 s13, s12")
    A("s_cbranch_scc1 Ldbl")
LB("Lfin_exit")
if MEAS:
    src = {"mix": "s100", "entry": "s98"}.get(OPT["q"], "s98" if OPT["q"][0] == "h" else "s97")
    A("s_waitcnt vmcnt(0) lgkmcnt(0)")
    if OPT["q"] == "end":
        A("s_memrealtime s[42:43]"); A("s_waitcnt lgkmcnt(0)"); src = "s42"
    LB("Lms0")
    A("s_memrealtime s[14:15]"); A("s_waitcnt lgkmcnt(0)"); A("s_sub_u32 s13, s14, s98"); A("s_cmp_lt_u32 s13, 1600"); A("s_cbranch_scc1 Lms0")
    A("s_mov_b64 exec, 1")
    A("v_mov_b32 v16, %s" % src)
    A("s_not_b32 s10, s98")
    A("v_mov_b32 v17, s10")
    A("global_atomic_umax v[30:31], v16, off sc1")
    A("global_atomic_umax v[30:31], v17, off offset:128 sc1")
    A("s_or_b32 s10, s2, s%d" % sW)
    A("s_cmp_lg_u32 s10, 0")
    A("s_cbranch_scc1 Lend")
    LB("Lms1")
    A("s_memrealtime s[14:15]"); A("s_waitcnt lgkmcnt(0)"); A("s_sub_u32 s13, s14, s98"); A("s_cmp_lt_u32 s13, 4000"); A("s_cbranch_scc1 Lms1")
    A("global_load_dword v16, v[30:31], off sc1")
    A("global_load_dword v17, v[30:31], off offset:128 sc1")
    A("s_waitcnt vmcnt(0)")
    A("v_readfirstlane_b32 s10, v16"); A("v_readfirstlane_b32 s11, v17")
    A("s_not_b32 s11, s11"); A("s_sub_u32 s10, s10, s11"); A("s_lshl_b32 s10, s10, 2"); A("s_add_u32 s12, s10, 4200")
    A("s_min_u32 s12, s12, 20000")
    LB("Lms2")
    A("s_memrealtime s[14:15]"); A("s_waitcnt lgkmcnt(0)"); A("s_sub_u32 s13, s14, s98"); A("s_cmp_lt_u32 s13, s12"); A("s_cbranch_scc1 Lms2")
if TOT:
    A("s_waitcnt vmcnt(0)")
    A("s_memrealtime s[10:11]")
    A("s_waitcnt lgkmcnt(0)")
    A("v_mov_b32 v16, s98")
    A("v_mov_b32 v17, s10")
    A("v_mov_b32 v18, s100")
    A("v_mov_b32 v19, s97")
    soff(sT2, [(2, 6), (sW, 4)], STB)
    A("v_mov_b32 v20, 0")
    A("s_mov_b64 exec, 1")
    A("buffer_store_dwordx4 v[16:19], v20, %s, s%d offen" % (sr(sWS, 4), sT2))
if DIAG:
    A("s_waitcnt vmcnt(0)")
    STAMP(12)
    if DIAG == 2:
        A("s_or_b32 s%d, s2, s%d" % (sT0, sW))
        A("s_cmp_lg_u32 s%d, 0" % sT0)
        A("s_cbranch_scc1 Lend")
        A("v_readlane_b32 s%d, v28, 0" % sT2)
        for k, (r, i) in enumerate([(31, 10), (31, 12), (28, 1), (28, 2), (28, 6), (28, 5), (28, 7), (28, 8), (28, 9), (28, 10), (28, 11), (30, 3), (30, 5), (30, 8), (30, 9), (30, 12)]):
            A("v_readlane_b32 s%d, v%d, %d" % (sT3, r, i))
            A("s_sub_u32 s%d, s%d, s%d" % (sT3, sT3, sT2))
            A("s_nop 0")
            A("v_writelane_b32 v17, s%d, %d" % (sT3, k))
        A("v_lshlrev_b32 v16, 2, v%d" % vLANE)
        A("s_mov_b64 exec, 0xffff")
        A("global_store_dword v16, v17, s[100:101]")
        A("s_endpgm")
    soff(sT1, [(2, 10), (sW, 7)], STB)
    A("v_lshlrev_b32 v16, 2, v%d" % vLANE)
    A("s_mov_b64 exec, 0xffff")
    A("buffer_store_dword v28, v16, %s, s%d offen" % (sr(sWS, 4), sT1))
    A("buffer_store_dword v30, v16, %s, s%d offen offset:64" % (sr(sWS, 4), sT1))
    A("s_add_u32 s%d, s%d, 0x40000" % (sT1, sT1))
    A("buffer_store_dword v31, v16, %s, s%d offen" % (sr(sWS, 4), sT1))
LB("Lend")
A("s_endpgm")
LB("Lepoch")
if int(OPT.get("wb", 0)):
    A("s_cmp_lg_u32 s%d, 0" % sW)
    A("s_cbranch_scc1 Lnowb")
    A("s_waitcnt vmcnt(0)")
    A("buffer_wbl2 sc1")
    LB("Lnowb")
C("every workgroup has used the old launch tag long ago: workgroup 4 advances it")
A("s_lshl_b32 s%d, s%d, 8" % (sT0, sW))
A("s_add_u32 s%d, s%d, s2" % (sT0, sT0))
A("s_cmp_lg_u32 s%d, 4" % sT0)
A("s_cbranch_scc1 Lfin_exit")
A("v_mov_b32 v16, s%d" % sTG1)
A("v_mov_b32 v17, %s" % hx(EPO))
A("s_mov_b64 exec, 1")
A("buffer_store_dword v16, v17, %s, 0 offen sc1" % sr(sWS, 4))
A("s_mov_b64 exec, -1")
A("s_branch Lfin_exit")

L.append(".p2align 6"); LB("Lst_tab"); A("s_setpc_b64 %s" % sr(sRET, 2)); stubs.append("tab")
LB("Ltab")
C("waves 2,3: gather the main part of the g(h) table into LDS ; wave 1: the lowest octaves, best effort")
NTL = NOCT * 1024 // 2 // 1024
A("s_cmp_eq_u32 s%d, 1" % sW)
A("s_cbranch_scc1 Lext")
A("s_sub_u32 s%d, s%d, 2" % (sT1, sW))
A("s_mul_i32 s%d, s%d, %d" % (sT1, sT1, NTL * 1024))
A("s_add_u32 s%d, s%d, %d" % (sT1, sT1, XENT * 4))
A("v_add_u32 v%d, s%d, v%d" % (vT + 4, sT1, vL16))
A("v_add_u32 v%d, %d, v%d" % (vT + 4, L_TAB, vT + 4))
A("s_add_u32 s%d, s%d, %s" % (sT1, sT1, hx(TB)))
A("s_add_u32 s%d, s%d, 4096" % (sT2, sT1))
if TGW: A("s_waitcnt vmcnt(0)")
def it():
    for i in range(NTL):
        A("buffer_load_dwordx4 %s, v%d, %s, s%d offen offset:%d sc1" % (vr(W + 4 * i, 4), vL16, sr(sWS, 4), sT1 if i < 4 else sT2, 1024 * (i & 3)))
poll(it, range(W, W + 4 * NTL), vT, back="s_sleep %d" % int(OPT.get("tsl", 16)))
for i in range(NTL):
    A("ds_write_b128 v%d, %s offset:%d" % (vT + 4, vr(W + 4 * i, 4), 1024 * i))
A("s_waitcnt lgkmcnt(0)")
lds_arrive(20, vT + 4)
STAMP(9)
MP("tg")
A("s_branch Ltabdone")
def ext_load(d):
    for i in range(XENT * 4 // 1024):
        A("buffer_load_dwordx4 %s, v%d, %s, s%d offen offset:%d sc1" % (vr(d + 4 * i, 4), vL16, sr(sWS, 4), sT4, 1024 * i))
def ext_write(d):
    for i in range(XENT * 4 // 1024):
        A("ds_write_b128 v%d, %s offset:%d" % (vT + 4, vr(d + 4 * i, 4), 1024 * i))
LB("Lext")
if XENT:
    A("s_mov_b32 s%d, %s" % (sT4, hx(TB)))
    A("v_add_u32 v%d, %d, v%d" % (vT + 4, L_TAB, vL16))
    for i in range(4): A("v_mov_b32 v%d, -1" % (W + i))
    for i in range(XENT * 4 // 1024):
        A("ds_write_b128 v%d, %s offset:%d" % (vT + 4, vr(W, 4), 1024 * i))
    A("ds_write_b32 v%d, v%d offset:48" % (vFL, W))
    A("s_waitcnt lgkmcnt(0)")
lds_arrive(20, vT + 5)
if XENT:
    C("one look at the lowest octaves, skipped when x1 is already there")
    soff(sT3, [(sW, 10), (sJ, 17)], X1_OFF)
    A("s_waitcnt vmcnt(0)")
    A("buffer_load_dwordx4 %s, v%d, %s, s%d offen sc1" % (vr(XR, 4), vL16, sr(sWS, 4), sT3))
    A("s_waitcnt vmcnt(0)")
    for x in maxtree(range(XR, XR + 4), vT): A(x)
    A("v_cmp_eq_u32 vcc, -1, v%d" % vT)
    A("s_cbranch_vccz Lexx")
    A("s_mov_b32 s%d, %d" % (sCNT, int(OPT.get("xlk", 2)) - 1))
    LB("Lexl")
    A("buffer_load_dwordx4 %s, v%d, %s, s%d offen sc1" % (vr(XR, 4), vL16, sr(sWS, 4), sT3))
    if "l" in OPT.get("xs", ""): A("s_branch Ltabdone")
    ext_load(W + 32)
    A("s_waitcnt vmcnt(4)")
    for x in maxtree(range(XR, XR + 4), vT): A(x)
    A("v_cmp_eq_u32 vcc, -1, v%d" % vT)
    A("s_cbranch_vccz Lexx")
    A("s_waitcnt vmcnt(0)")
    ext_write(W + 32)
    for x in maxtree(range(W + 32, W + 48), vT): A(x)
    A("v_cmp_eq_u32 vcc, -1, v%d" % vT)
    A("s_cbranch_vccz Lexc")
    A("s_sub_u32 s%d, s%d, 1" % (sCNT, sCNT))
    A("s_cbranch_scc0 Lexl")
    A("s_branch Ltabdone")
    LB("Lexc")
    A("v_mov_b32 v%d, 0" % vT)
    A("ds_write_b32 v%d, v%d offset:48" % (vFL, vT))
    A("s_branch Ltabdone")
    LB("Lexx")
    wqf_reads()
    A("s_branch Ltw")
else:
    A("s_branch Ltabdone")
LB("Ltw")
lds_spin(20, 3, vT + 2)
A("s_branch Ltwd")

for b in ool: L += b
ool = []
LB("Lslow")
C("rare: some h lies outside the table -> evaluate g(h) directly for those lanes")
RW1 = [W + 32 + i for i in range(14)]
RB1 = [PM + i for i in range(14)]
RW2 = [16 + i for i in range(10)] + [W + 46, W + 47, PM + 14, PM + 15]
A("v_lshlrev_b32 v26, 3, v%d" % vLANE)
A("s_load_dword s%d, %s, 0" % (sB2, sr(sB2P, 2)))
for (d4, d2, s) in [([W + 32, W + 36, W + 40], W + 44, sW1), ([PM, PM + 4, PM + 8], PM + 12, sB1)]:
    for k in range(3):
        A("buffer_load_dwordx4 %s, v%d, %s, 0 offen offset:%d" % (vr(d4[k], 4), vL16, sr(s, 4), 1024 * k))
    A("buffer_load_dwordx2 %s, v26, %s, 0 offen offset:3072" % (vr(d2, 2), sr(s, 4)))
A("buffer_load_dwordx4 v[16:19], v%d, %s, 0 offen" % (vL16, sr(sW2, 4)))
A("buffer_load_dwordx4 v[20:23], v%d, %s, 0 offen offset:1024" % (vL16, sr(sW2, 4)))
A("buffer_load_dwordx2 v[24:25], v%d, %s, 0 offen offset:2048" % (vL16, sr(sW2, 4)))
A("buffer_load_dwordx2 %s, v%d, %s, 0 offen offset:2056" % (vr(W + 46, 2), vL16, sr(sW2, 4)))
A("buffer_load_dwordx2 %s, v26, %s, 0 offen offset:3072" % (vr(PM + 14, 2), sr(sW2, 4)))
A("s_waitcnt vmcnt(0) lgkmcnt(0)")
A("s_lshl_b32 s%d, s%d, 16" % (sB2, sB2))
A("s_mov_b32 s%d, 1" % sT4)
for e in range(8):
    A("v_cmp_le_u32 vcc, %d, v%d" % (NENT * 4, AD + e))
    A("v_cmp_eq_u32 %s, -1, v%d" % (sr(sH2, 2), Y + e))
    A("s_or_b64 %s, %s, vcc" % (sr(sH2, 2), sr(sH2, 2)))
    if e & 1: A("v_and_b32 v%d, 0xffff0000, v%d" % (RT + 3, HB + (e >> 1)))
    else: A("v_lshlrev_b32 v%d, 16, v%d" % (RT + 3, HB + (e >> 1)))
    LB("Lse%d" % e)
    A("s_cmp_eq_u64 %s, 0" % sr(sH2, 2))
    A("s_cbranch_scc1 Lsf%d" % e)
    A("s_ff1_i32_b64 s%d, %s" % (sT0, sr(sH2, 2)))
    A("s_nop 0")
    A("v_readlane_b32 s%d, v%d, s%d" % (sH, RT + 3, sT0))
    A("s_cmp_eq_u32 s%d, s%d" % (sH, sT4))
    A("s_cbranch_scc1 Lsg%d" % e)
    A("s_mov_b32 s%d, s%d" % (sT4, sH))
    A("s_call_b64 %s, Lgev" % sr(sRET, 2))
    LB("Lsg%d" % e)
    A("s_nop 1")
    A("v_cmp_eq_u32 vcc, s%d, v%d" % (sH, RT + 3))
    A("v_mov_b32 v%d, s%d" % (RES + 3, sY))
    A("s_andn2_b64 %s, %s, vcc" % (sr(sH2, 2), sr(sH2, 2)))
    A("v_cndmask_b32 v%d, v%d, v%d, vcc" % (Y + e, Y + e, RES + 3))
    A("s_branch Lse%d" % e)
    LB("Lsf%d" % e)
for i in range(16): A("v_mov_b32 v%d, 0" % (PM + i))
A("s_mov_b64 vcc, 0")
A("s_mov_b64 %s, 0" % sr(sH, 2))
A("s_branch Lslowdone")
LB("Lgev")
a, u, t1, z = RES, RES + 1, RES + 2, RT
A("v_mov_b32 v%d, 0" % a)
A("v_mov_b32 v%d, %s" % (RT + 1, hx(f2u(K0))))
A("v_mov_b32 v%d, %s" % (RT + 2, hx(f2u(K1))))
for p in range(14):
    for hf in range(2):
        def un(d, s):
            if hf == 0: A("v_lshlrev_b32 v%d, 16, v%d" % (d, s))
            else: A("v_and_b32 v%d, 0xffff0000, v%d" % (d, s))
        un(u, RW1[p]); un(t1, RB1[p]); un(z, RW2[p])
        A("v_fma_f32 v%d, v%d, s%d, v%d" % (u, u, sH, t1))
        A("v_mul_f32 v%d, v%d, v%d" % (t1, u, u))
        A("v_fma_f32 v%d, v%d, v%d, v%d" % (t1, t1, RT + 2, RT + 1))
        A("v_mul_f32 v%d, v%d, v%d" % (t1, t1, u))
        A("v_exp_f32 v%d, v%d" % (t1, t1))
        A("v_mul_f32 v%d, v%d, v%d" % (z, z, u))
        A("v_add_f32 v%d, 1.0, v%d" % (t1, t1))
        A("v_rcp_f32 v%d, v%d" % (t1, t1))
        A("s_nop 0")
        A("v_fmac_f32 v%d, v%d, v%d" % (a, z, t1))
A("v_mov_b32 v%d, v%d" % (u, a))
A("s_nop 1")
wave_sum2(a, u, sY, sT1)
A("s_nop 1")
A("v_mov_b32 v%d, s%d" % (a, sY))
A("v_cvt_pk_bf16_f32 v%d, v%d, v%d" % (a, a, a))
A("v_and_b32 v%d, 0xffff0000, v%d" % (a, a))
A("v_add_f32 v%d, s%d, v%d" % (a, sB2, a))
A("v_cvt_pk_bf16_f32 v%d, v%d, v%d" % (a, a, a))
A("v_and_b32 v%d, 0xffff0000, v%d" % (a, a))
A("s_nop 0")
A("v_readfirstlane_b32 s%d, v%d" % (sY, a))
A("s_nop 3")
A("s_setpc_b64 %s" % sr(sRET, 2))

for b in ool: L += b
A("s_endpgm")
L.append(".p2align 8")
L.append(".fill %d, 4, 0xBF800000" % (64 if DIAG else 512))
L.append('''.section .rodata,"a"
.p2align 6
.amdhsa_kernel %s_kernel
  .amdhsa_next_free_vgpr 256
  .amdhsa_next_free_sgpr 102
  .amdhsa_accum_offset 256
  .amdhsa_group_segment_fixed_size 0
  .amdhsa_kernarg_size 104
  .amdhsa_user_sgpr_count 2
  .amdhsa_user_sgpr_kernarg_segment_ptr 1
  .amdhsa_system_sgpr_workgroup_id_x 1
.end_amdhsa_kernel''' % NAME)
open(OUTF, "w").write("\n".join(x for x in L if x is not None) + "\n")
print("wrote", OUTF, "lines", len(L), "LDS", LDS_SZ)
```

```python
import sys, struct, math

NAME = "interleave_layers__sliding_block_cached__mixer_token_mlp__decode"
OUTF = sys.argv[1] if len(sys.argv) > 1 else "cdna_kernels/%s.s" % NAME
DIAG = int(sys.argv[2]) if len(sys.argv) > 2 else 0
DBL = 0
if DIAG == 3: DIAG = 0; DBL = 1
MEAS = 0
if DIAG == 5: DIAG = 0; MEAS = 1
TOT = 0
if DIAG == 4: DIAG = 0; TOT = 1
OPT = dict(a.split("=") for a in sys.argv[3:])
DEPTH = int(OPT.get("depth", 8))
D0 = int(OPT.get("d0", 2))
D1 = int(OPT.get("d1", 4))
DC = int(OPT.get("dc", 3))
TAILI = int(OPT.get("taili", 11))
TAILD = int(OPT.get("taild", 8))
QV = int(OPT.get("qv", 4))
PRET = int(OPT.get("pret", 1))
GW = int(OPT.get("gw", 1))
GPRE = int(OPT.get("gpre", 0))
GGAP = int(OPT.get("ggap", -1))
WARM = int(OPT.get("warm", 1))
QPRE = int(OPT.get("qpre", -1)); QGAP = int(OPT.get("qgap", -1))
OPRE = int(OPT.get("opre", -1)); OGAP = int(OPT.get("ogap", -1))
XPRE = int(OPT.get("xpre", -1)); XGAP = int(OPT.get("xgap", -1))
FINE = OPT.get("fine", "")
QS = int(OPT.get("qs", 0))
ADP = int(OPT.get("adp", 0))
ROT = int(OPT.get("rot", 1)); VROT = int(OPT.get("vrot", 0))
WROT = int(OPT.get("wrot", 1))
WOP = int(OPT.get("wop", 0))
ECO = int(OPT.get("eco", 0))
XDL = int(OPT.get("xdl", 256))
QBD = int(OPT.get("qbd", 0))
VLATE = int(OPT.get("vlate", 1))
QV2 = int(OPT.get("qv2", 0))
PROG = int(OPT.get("prog", 1))
CMB = int(OPT.get("cmb", 0)); TGW = int(OPT.get("tgw", 0)); HPT = int(OPT.get("hpt", 0))
EFL = int(OPT.get("efl", 1))
QT = int(OPT.get("qt", 0))
DRY = int(OPT.get("dry", 0))
HP = int(OPT.get("hp", 0))
NOCT = int(OPT.get("noct", 16))
QPOS = int(OPT.get("qpos", 1))
QPOS2 = int(OPT.get("qpos2", 7))

def f2u(x): return struct.unpack("<I", struct.pack("<f", x))[0]
def hx(x): return "0x%08x" % (x & 0xffffffff)

L = []
def A(s): L.append("    " + s)
def LB(s): L.append(s + ":")
def C(s): L.append("    ; " + s)
def vr(a, n): return "v[%d:%d]" % (a, a + n - 1)
def sr(a, n): return "s[%d:%d]" % (a, a + n - 1)
def NOP(n):
    while n > 0:
        k = min(n, 16); A("s_nop %d" % (k - 1)); n -= k

XOCT = int(OPT.get('xoct', 4))
ELO = int(OPT.get('elo', 130 - NOCT - XOCT))
LO2 = (ELO << 7) * 2
NENT = (NOCT + XOCT) * 256
XENT = XOCT * 256
assert XENT in (0, 1024)
EPW = NOCT * 256 // 256 // 4 // 2
GRS = 0x20000
O_OFF = [0x0000, 0xC400]; LSE_OFF = [0x8000, 0x14400]; Q1_OFF = 0x8400; X1_OFF = 0x14600
CLRA_PER = 1040
CLRB_OFF = 0x8400; CLRB_PER = 1680
Q0_OFF = 0x18000
EPO = 0x17f00
PB = 0x100000; P_L = 0x20000
TB = 0x140000; FB = 0x148000
QB_DELTA = 0x200000
STB = 0x300000
WS_SZ = 0x400000
L_WQ = 12288; L_K = L_WQ + 16384; L_V = L_K + 32768
L_WO = L_K + 16384
L_TAB = L_V
L_XN = L_V + 32768; XS = 1056
L_X2 = L_XN + 4 * XS
L_FLG = L_X2 + 4 * XS
L_RB = L_K; RBS = 2048 + 64; L_ML = L_K + 4 * RBS
L_QF = L_X2
LDS_SZ = int(OPT.get("lds", L_FLG + 128))
SPIN = 0x40000
K0 = -2.0 * math.sqrt(2.0 / math.pi) * math.log2(math.e)
K1 = K0 * 0.044715
EPS = hx(f2u(1e-5))

sTG1, sTG2 = 0, 1
sW, sJ, sA, sC, sGR, sLAY, sFAST = 3, 4, 5, 6, 7, 8, 9
sT0, sT1, sT2, sT3, sT4, sT5 = 10, 11, 12, 13, 14, 15
sCNT = 16
sQL, sQS, sOL, sOS, sLL, sLS, sPS = 17, 18, 19, 20, 21, 22, 23
sSC, sIT = 24, 25
sSUM, sSQ = 26, 27
sH, sH2, sRET, sMSK = 28, 30, 32, 34
sB2, sY, sXCC, sE = 36, 37, 38, 39
sB2P = 40
sK, sV, sWQ, sWO, sWS, sX, sOUT, sW1, sB1, sW2 = 44, 48, 52, 56, 60, 64, 68, 72, 76, 80
sKO, sKL, sVO, sVL = 84, 85, 86, 87
sPM = 88
sHC, sHT = 84, 85

def STAMP(i):
    if DIAG:
        A("s_memrealtime s[42:43]"); A("s_waitcnt lgkmcnt(0)")
        A("v_writelane_b32 v30, s42, %d" % i)

def MP(name):
    if MEAS and OPT["q"] == name:
        A("s_memrealtime s[42:43]"); A("s_waitcnt lgkmcnt(0)"); A("s_mov_b32 s97, s42")

def CST(i):
    if DIAG == 1 and FINE:
        A("s_memtime s[42:43]"); A("s_waitcnt lgkmcnt(0)")
        A("v_writelane_b32 v31, s42, %d" % i)

vLANE = 1
vL16, vQST, vOST, vOLD, vPST, vX1S, vXNW, vXNR, vRBW, vRBR, vMLW, vMLR, vLSE, vZ = range(2, 16)
vT = 16
vWT, vFL = 28, 29
vLS2 = 27
KF, VF, WQF, WOF, SEL, ONES = 32, 64, 96, 112, 176, 180
W = 184
PM = 232
XR = 248
RES = 252

def srd(s, nbytes):
    A("s_mov_b32 s%d, %s" % (s + 2, hx(nbytes))); A("s_mov_b32 s%d, 0x00020000" % (s + 3))

def soff(dst, terms, const):
    first = True
    for (src, sh) in terms:
        if first: A("s_lshl_b32 s%d, s%d, %d" % (dst, src, sh)); first = False
        else:
            A("s_lshl_b32 s%d, s%d, %d" % (sT0, src, sh)); A("s_add_u32 s%d, s%d, s%d" % (dst, dst, sT0))
    if const: A("s_add_u32 s%d, s%d, %s" % (dst, dst, hx(const)))

def wave_sum2(a, b, sa, sb):
    for ctl in ["row_ror:8", "row_ror:4", "row_ror:2", "row_ror:1"]:
        A("v_add_f32_dpp v%d, v%d, v%d %s row_mask:0xf bank_mask:0xf" % (a, a, a, ctl))
        A("v_add_f32_dpp v%d, v%d, v%d %s row_mask:0xf bank_mask:0xf" % (b, b, b, ctl))
        A("s_nop 0")
    for ctl in ["row_bcast:15 row_mask:0xa", "row_bcast:31 row_mask:0xc"]:
        A("v_add_f32_dpp v%d, v%d, v%d %s bank_mask:0xf" % (a, a, a, ctl))
        A("v_add_f32_dpp v%d, v%d, v%d %s bank_mask:0xf" % (b, b, b, ctl))
        A("s_nop 0")
    A("v_readlane_b32 s%d, v%d, 63" % (sa, a))
    A("v_readlane_b32 s%d, v%d, 63" % (sb, b))

def row_stats(x, t, unp):
    A("v_dot2_f32_bf16 v%d, v%d, v%d, 0" % (t, x, ONES))
    A("v_dot2_f32_bf16 v%d, v%d, v%d, 0" % (t + 1, x, x))
    for i in range(1, 4):
        A("v_dot2_f32_bf16 v%d, v%d, v%d, v%d" % (t, x + i, ONES, t))
        A("v_dot2_f32_bf16 v%d, v%d, v%d, v%d" % (t + 1, x + i, x + i, t + 1))
    un = []
    for i in range(4):
        un.append("v_lshlrev_b32 v%d, 16, v%d" % (unp + 2 * i, x + i))
        un.append("v_and_b32 v%d, 0xffff0000, v%d" % (unp + 2 * i + 1, x + i))
    for k in range(3): A(un.pop(0))
    a, b = t, t + 1
    for ctl in ["row_ror:8 row_mask:0xf", "row_ror:4 row_mask:0xf", "row_ror:2 row_mask:0xf", "row_ror:1 row_mask:0xf", "row_bcast:15 row_mask:0xa", "row_bcast:31 row_mask:0xc"]:
        A("v_add_f32_dpp v%d, v%d, v%d %s bank_mask:0xf" % (a, a, a, ctl))
        A("v_add_f32_dpp v%d, v%d, v%d %s bank_mask:0xf" % (b, b, b, ctl))
        A(un.pop(0) if un else "s_nop 0")
    A("v_readlane_b32 s%d, v%d, 63" % (sSUM, a))
    A("v_readlane_b32 s%d, v%d, 63" % (sSQ, b))
    A("s_nop 0")
    A("v_mul_f32 v%d, s%d, v%d" % (t, sSUM, vZ))
    A("v_mul_f32 v%d, s%d, v%d" % (t + 1, sSQ, vZ))
    A("v_fma_f32 v%d, -v%d, v%d, v%d" % (t + 1, t, t, t + 1))
    A("v_max_f32 v%d, 0, v%d" % (t + 1, t + 1))

ool = []
uid = [0]
def maxtree(regs, tmp):
    r = list(regs); out = []
    out.append("v_max3_u32 v%d, v%d, v%d, v%d" % (tmp, r[0], r[1], r[2])); r = r[3:]
    if len(r) >= 5:
        out.append("v_max3_u32 v%d, v%d, v%d, v%d" % (tmp + 1, r[0], r[1], r[2])); r = r[3:]
        d = 0
        while len(r) >= 2:
            out.append("v_max3_u32 v%d, v%d, v%d, v%d" % (tmp + d, tmp + d, r[0], r[1])); r = r[2:]; d ^= 1
        if r: out.append("v_max3_u32 v%d, v%d, v%d, v%d" % (tmp, tmp, tmp + 1, r[0]))
        else: out.append("v_max_u32 v%d, v%d, v%d" % (tmp, tmp, tmp + 1))
    else:
        while len(r) >= 2:
            out.append("v_max3_u32 v%d, v%d, v%d, v%d" % (tmp, tmp, r[0], r[1])); r = r[2:]
        if r: out.append("v_max_u32 v%d, v%d, v%d" % (tmp, tmp, r[0]))
    return out

def poll(issue, regs, tmp, pre_wait=None, spec=None, back="s_nop 7", tag=None, stub=None):
    uid[0] += 1; u = uid[0]
    A("s_mov_b32 s%d, %s" % (sCNT, hx(SPIN)))
    LB("Lp%d" % u)
    issue()
    if pre_wait: pre_wait()
    A("s_waitcnt vmcnt(0)")
    mt = maxtree(regs, tmp) + ["v_cmp_eq_u32 vcc, -1, v%d" % tmp]
    spec = list(spec or [])
    ns = len(spec)
    per = -(-len(mt) // ns) if ns else 0
    for s in spec:
        A(s)
        for k in range(per):
            if mt: A(mt.pop(0))
    for m in mt: A(m)
    A("s_cbranch_vccz Ld%d" % u)
    A("s_sub_u32 s%d, s%d, 1" % (sCNT, sCNT))
    if back != "s_nop 7": A(back)
    A("s_cbranch_scc0 Lp%d" % u)
    if stub: touch_stub(stub)
    LB("Ld%d" % u)
    if DIAG and tag is not None:
        A("s_lshl_b32 m0, s%d, 2" % sLAY); A("s_add_u32 m0, m0, %d" % tag); A("s_nop 0")
        A("v_writelane_b32 v31, s%d, m0" % sCNT)

stubs = []
def touch_stub(name, branch_over=None):
    A("s_branch Lsk_%s" % name)
    L.append(".p2align 6")
    LB("Lst_%s" % name)
    A("s_setpc_b64 %s" % sr(sRET, 2))
    LB("Lsk_%s" % name)
    stubs.append(name)

def delay(cyc):
    if cyc == -1:
        A("s_waitcnt vmcnt(0)"); return
    while cyc >= 64:
        k = min(cyc // 64, 15); A("s_sleep %d" % k); cyc -= 64 * k
    if cyc >= 8: A("s_nop %d" % min(15, cyc // 4 - 1))

def ppoll(issue, regs, n, tmp, spec, pre=0, gap=128, mid=None, tag=None, fix=None, stub=None, lanes=None, per_load=None):
    uid[0] += 1; u = uid[0]
    def look(k):
        if per_load and PROG and gap < 0:
            r = list(regs(k)); out = []
            for i in range(n):
                out.append("s_waitcnt vmcnt(%d)" % (n - 1 - i))
                sp = list(per_load(k, i))
                ck = ["v_max3_u32 v%d, v%d, v%d, v%d" % (tmp + 1, r[4 * i], r[4 * i + 1], r[4 * i + 2]),
                      ("v_max_u32 v%d, v%d, v%d" % (tmp, tmp + 1, r[4 * i + 3])) if i == 0 else ("v_max3_u32 v%d, v%d, v%d, v%d" % (tmp, tmp, tmp + 1, r[4 * i + 3]))]
                while sp or ck:
                    if sp: out.append(sp.pop(0))
                    if ck: out.append(ck.pop(0))
            return out + ["v_cmp_eq_u32 vcc, -1, v%d" % tmp]
        out = ["s_waitcnt vmcnt(%d)" % (n if k == 0 else 0)]
        mt = maxtree(regs(k), tmp) + ["v_cmp_eq_u32 vcc, -1, v%d" % tmp]
        sp = list(spec(k)); per = -(-len(mt) // len(sp)) if sp else 0
        for x in sp:
            out.append(x)
            for _ in range(per):
                if mt: out.append(mt.pop(0))
        return out + mt + (["s_and_b64 vcc, vcc, %s" % sr(lanes, 2)] if lanes else [])
    A("s_mov_b32 s%d, %s" % (sCNT, hx(SPIN)))
    delay(pre)
    fine = FINE and tag == int(FINE)
    if fine: CST(8)
    LB("Lp%d" % u)
    issue(0)
    if fine and 0: CST(9)
    if mid: mid()
    if gap >= 0: delay(gap)
    if gap >= 0: issue(1)
    lk = look(0)
    if gap < 0 and not (per_load and PROG): lk[0] = "s_waitcnt vmcnt(0)"
    for k, x in enumerate(lk):
        A(x)
        if fine and k == 0: CST(13)
    if fine: CST(14)
    A("s_cbranch_vccz Ld%d" % u)
    if gap < 0: issue(1)
    A("s_sub_u32 s%d, s%d, 1" % (sCNT, sCNT))
    for x in look(1): A(x)
    for x in (fix or []): A(x)
    A("s_cbranch_vccz Ld%d" % u)
    A("s_sub_u32 s%d, s%d, 1" % (sCNT, sCNT))
    A("s_cmp_gt_i32 s%d, 0" % sCNT)
    A("s_cbranch_scc1 Lp%d" % u)
    if stub: touch_stub(stub)
    LB("Ld%d" % u)
    if fine: CST(15)
    if DIAG and tag is not None:
        A("s_lshl_b32 m0, s%d, 2" % sLAY); A("s_add_u32 m0, m0, %d" % tag); A("s_nop 0")
        A("v_writelane_b32 v31, s%d, m0" % sCNT)

def lds_spin(off, target, tmp, mask=None, sleep=0):
    uid[0] += 1; u = uid[0]
    A("s_mov_b32 s%d, %s" % (sT2, hx(SPIN * 4)))
    LB("Ls%d" % u)
    A("ds_read_b32 v%d, v%d offset:%d" % (tmp, vFL, off))
    A("s_waitcnt lgkmcnt(0)")
    A("v_readfirstlane_b32 s%d, v%d" % (sT1, tmp))
    if mask: A("s_and_b32 s%d, s%d, %d" % (sT0, sT1, mask))
    A("s_cmp_ge_u32 s%d, %d" % (sT0 if mask else sT1, target))
    A("s_cbranch_scc1 Lt%d" % u)
    if sleep: A("s_sleep %d" % sleep)
    A("s_sub_u32 s%d, s%d, 1" % (sT2, sT2))
    A("s_cbranch_scc0 Ls%d" % u)
    LB("Lt%d" % u)

def lds_arrive(off, tmp, val=1):
    if val is not None: A("v_mov_b32 v%d, %d" % (tmp, val))
    A("s_mov_b64 exec, 1")
    A("ds_add_u32 v%d, v%d offset:%d" % (vFL, tmp, off))
    A("s_mov_b64 exec, -1")

def store_local(op, data, vaddr, so):
    uid[0] += 1; u = uid[0]
    A("s_cbranch_scc1 Lw%d" % u)
    A("%s %s, v%d, %s, s%d offen" % (op, data, vaddr, sr(sWS, 4), so))
    LB("Lx%d" % u)
    ool.append(["Lw%d:" % u, "    %s %s, v%d, %s, s%d offen sc1" % (op, data, vaddr, sr(sWS, 4), so), "    s_branch Lx%d" % u])
def fastcmp(): A("s_cmp_eq_u32 s%d, 0" % sFAST)

def mf(d, a, b, c):
    return "v_mfma_f32_16x16x32_bf16 %s, %s, %s, %s" % (vr(d, 4), vr(a, 4), vr(b, 4), "0" if c is None else vr(c, 4))
def mfma(d, a, b, c): A(mf(d, a, b, c))

def tags():
    A("s_add_u32 s%d, s%d, 1" % (sTG1, sE))
    A("s_mul_i32 s%d, s%d, 0x9E3779B1" % (sTG2, sTG1))
    A("s_and_b32 s%d, s%d, -8" % (sTG2, sTG2))

def common_addr():
    A("v_and_b32 v18, 3, v%d" % vLANE)
    A("v_lshlrev_b32 v%d, 12, v17" % vQST)
    A("v_lshrrev_b32 v24, 1, v16")
    A("v_lshl_add_u32 v%d, v24, 8, v%d" % (vQST, vQST))
    A("v_and_b32 v24, 1, v16")
    A("v_lshl_add_u32 v%d, v24, 3, v%d" % (vQST, vQST))
    A("v_lshlrev_b32 v%d, 4, v24" % vLSE)
    A("s_mul_i32 s%d, s%d, %d" % (sT0, sW, XS))
    A("s_add_u32 s%d, s%d, %d" % (sT0, sT0, L_XN))
    A("v_add_u32 v%d, s%d, v%d" % (vXNW, sT0, vL16))
    A("s_lshl_b32 s%d, s%d, 8" % (sT0, sA))
    A("s_add_u32 s%d, s%d, %d" % (sT0, sT0, L_XN))
    A("v_mul_u32_u24 v25, %d, v18" % XS)
    A("v_lshl_add_u32 v25, v16, 4, v25")
    A("v_add_u32 v%d, s%d, v25" % (vXNR, sT0))
    A("v_mov_b32 v%d, %s" % (vZ, hx(f2u(1.0 / 512))))
    for r in range(4): A("v_mov_b32 v%d, 0x3f803f80" % (ONES + r))
    A("s_and_b32 s%d, s%d, 1" % (sT1, sC))
    A("s_lshr_b32 s%d, s%d, 1" % (sT2, sC))
    soff(sQS, [(sT1, 11), (sW, 9), (sA, 6), (sT2, 4)], 0)
    A("v_bfe_u32 v24, v%d, 2, 2" % vLANE)
    A("v_lshl_add_u32 v24, v16, 3, v24")
    A("v_lshlrev_b32 v24, 7, v24")
    A("v_bfe_u32 v25, v%d, 3, 2" % vLANE)
    A("v_lshlrev_b32 v25, 1, v25")
    A("v_bfe_u32 v26, v%d, 1, 1" % vLANE)
    A("v_xor_b32 v25, v25, v26")
    A("v_lshl_add_u32 v24, v25, 4, v24")
    A("v_and_b32 v26, 1, v%d" % vLANE)
    A("v_lshl_add_u32 v%d, v26, 3, v24" % vWT)
    A("s_mov_b32 s%d, 0x000f000f" % sMSK)
    A("s_mov_b32 s%d, 0x000f000f" % (sMSK + 1))
    A("s_mov_b32 s%d, 0" % sLAY)

def wtile_voff(shift, d):
    A("v_lshrrev_b32 v24, 3, v%d" % vLANE)
    A("v_and_b32 v25, 7, v%d" % vLANE)
    A("v_and_b32 v26, 1, v16")
    A("v_lshlrev_b32 v26, 1, v26")
    A("v_xor_b32 v25, v25, v26")
    A("v_lshlrev_b32 v25, 4, v25")
    A("v_lshl_add_u32 v%d, v24, %d, v25" % (d, shift))
    A("v_xor_b32 v%d, 64, v%d" % (d + 1, d))

def wqf_reads():
    A("s_lshl_b32 s%d, s%d, 5" % (sT1, sW))
    A("v_xor_b32 v26, s%d, v%d" % (sT1, vWT))
    for t in range(4):
        for hf in range(2):
            A("ds_read_b64_tr_b16 %s, v26 offset:%d" % (vr(WQF + 4 * t + 2 * hf, 2), L_WQ + 4096 * t + 512 * hf))

def dma(vaddr, srdn, so, lds_s, step_so, flags="nt"):
    A("s_mov_b32 m0, s%d" % lds_s)
    A("s_add_u32 s%d, s%d, 1024" % (lds_s, lds_s))
    A("buffer_load_dwordx4 v%d, %s, s%d offen %s lds" % (vaddr, sr(srdn, 4), so, flags))
    A("s_add_u32 s%d, s%d, %d" % (so, so, step_so))

hdr = open("cdna_kernels/%s.s.ref" % NAME).read().split("; Override launch")[0]
L.append(hdr.rstrip("\n") + """
;
; One persistent launch, 256 workgroups (one per CU) x 8 waves.  wg = A(2b):C(3b):j(3b); j = kv head.
; K, V, wq and wo are read from HBM exactly once (LDS-DMA) and stay in registers for both attention layers.
;   roles of a workgroup:  attention (batch A, keys 128C..), q projection (wq rows 128A.., 64 columns C),
;                          output projection (head A of group j, 64 columns C), row reduction (batch A, columns 64C..)
;   waves 0-3: stream K/V, attention, output projection, LayerNorm + mixer + next q projection
;   waves 4-7: first q projection, then the token-mixer MLP g(h) = sum_f gelu(h w1 + b1) w2 + b2 evaluated
;              exactly (all 1792 hidden units) for every bf16 value h with 2^-17 <= |h| < 8; h is a bf16 tensor in the
;              reference, so the mixer is a lookup of these values; any other h is evaluated directly (Lslow).
; Hand-offs between workgroups go through d_ws.  Slots are filled with a sentinel at the start of the launch and a
; consumer polls until no sentinel is left; the first hand-off (q) and the "sentinels are in place" announcements
; carry a tag derived from a word that every launch advances.  Stores inside a kv-head group are plain when the
; whole group reports the same XCC id, write-through otherwise; every poll is bounded.
""".rstrip("\n"))
L.append("; @launch grid=(256,1,1) block=(512,1,1) lds=%d" % LDS_SZ)
L.append('.amdgcn_target "amdgcn-amd-amdhsa--gfx950"')
L.append(".text\n" + (".p2align 12\n" if int(OPT.get("al", 0)) else "") + ".globl %s_kernel\n.p2align 8\n.type %s_kernel,@function\n%s_kernel:" % (NAME, NAME, NAME))
if DIAG: A("s_memrealtime s[42:43]")
if DBL or TOT or MEAS: A("s_memrealtime s[98:99]")
sM = 96
A("s_lshr_b32 s%d, s2, 8" % sT0)
A("s_cbranch_scc1 Lend")
A("s_load_dwordx2 %s, s[0:1], 24" % sr(sWQ, 2))
A("s_load_dwordx4 %s, s[0:1], 0" % sr(sT2, 4))
A("v_readfirstlane_b32 s%d, v0" % sW)
C("every wave pulls one line of this kernel's code into L2 (plain read): 32 workgroups x 4 lines")
A("s_getpc_b64 s[10:11]")
LB("Lpc0")
A("s_lshr_b32 s%d, s2, 3" % sM)
A("s_lshl_b32 s%d, s%d, 9" % (sCNT, sM))
A("s_cmp_lg_u32 s%d, 0" % sW)
A("s_cbranch_scc1 Lnopf")
A("v_and_b32 v19, 3, v0")
A("v_lshl_add_u32 v19, v19, 7, s%d" % sCNT)
A("global_load_dword v%d, v19, s[10:11]" % (W + 8))
LB("Lnopf")
A("s_and_b32 s%d, s2, 7" % sJ)
A("s_lshr_b32 s%d, s2, 6" % sA)
A("s_and_b32 s%d, s%d, 7" % (sC, sM))
A("s_lshl_b32 s%d, 1, 17" % (sWQ + 3))
A("s_bitcmp1_b32 s%d, 8" % sW)
A("s_cbranch_scc0 Lmain0")
vKA, vVA = W + 40, W + 44
sRO, sRM = sVO, 97 if not TOT else 94
if TOT: sRM = sOL
def kv_issue(i):
    A("s_add_u32 m0, s%d, s%d" % (sKL if i < 8 else sVL, sRO))
    A("s_add_u32 s%d, s%d, s%d" % (sCNT, sKO, sRO))
    if i < 8: A("buffer_load_dwordx4 v%d, %s, s%d offen nt lds" % (vKA + (i & 3), sr(sK, 4), sCNT))
    else: A("buffer_load_dwordx4 v%d, %s, s%d offen nt lds" % (vVA + (i & 1), sr(sV, 4), sCNT))
    A("s_addk_i32 s%d, %d" % (sRO, 1024 + (VROT * 1024 if i == 7 else 0)))
    A("s_and_b32 s%d, s%d, 0x1fff" % (sRO, sRO))
def lane_init():
    A("v_and_b32 v%d, 63, v0" % vLANE)
    A("v_mov_b32 v%d, %d" % (vFL, L_FLG))
    A("v_lshlrev_b32 v%d, 4, v%d" % (vL16, vLANE))
    A("v_lshrrev_b32 v16, 4, v%d" % vLANE)
    A("v_and_b32 v17, 15, v%d" % vLANE)
    A("v_mov_b32 v20, 0")
    if DIAG: A("v_mov_b32 v30, 0")
def main_early():
    LB("Lmain0")
    for s, off in [(sW1, 48), (sB1, 56), (sW2, 64)]:
        A("s_load_dwordx2 %s, s[0:1], %d" % (sr(s, 2), off))
    lane_init()
    A("v_mov_b32 v21, 0")
    for k in range(4): A("ds_write_b64 v%d, v[20:21] offset:%d" % (vFL, 8 * k))
    A("ds_write_b64 v%d, v[20:21] offset:52" % vFL) if False else None
    A("ds_write_b32 v%d, v20 offset:56" % vFL)
    if ADP: A("ds_write_b32 v%d, v20 offset:52" % vFL)
    A("s_lshl_b32 s%d, 1, 25" % (sK + 2)); A("s_mov_b32 s%d, s%d" % (sK + 3, sWQ + 3))
    A("v_xor_b32 v18, v17, v16")
    A("v_lshlrev_b32 v18, 4, v18")
    A("v_lshl_add_u32 v%d, v16, 8, v18" % vKA)
    A("s_lshl_b32 s%d, s%d, %d" % (sRO, sC, 10 if ROT else 31))
    if not ROT: A("s_mov_b32 s%d, 0" % sRO)
    A("s_bfe_u32 s%d, s%d, 0x2000a" % (sT1, sRO))
    A("s_lshl_b32 s%d, s%d, 6" % (sT1, sT1))
    for k in range(1, 4):
        A("s_add_u32 s%d, s%d, %d" % (sCNT, sT1, 64 * k))
        A("s_and_b32 s%d, s%d, 0xc0" % (sCNT, sCNT))
        A("v_xor_b32 v%d, s%d, v%d" % (vKA + k, sCNT, vKA))
    A("v_xor_b32 v%d, s%d, v%d" % (vKA, sT1, vKA))
    soff(sKO, [(sA, 23), (sJ, 20), (sC, 15), (sW, 7)], 3072 * 256)
    A("s_add_u32 s%d, s%d, %d" % (sKL, sT0, L_K))
    A("s_waitcnt lgkmcnt(0)")
    A("s_mov_b64 %s, %s" % (sr(sK, 2), sr(sT4, 2)))
    for i in range(D0): kv_issue(i)
    C("lane k<3 of wave 3 pulls a slice of coefficient array k into L2")
    A("s_cmp_lg_u32 s%d, 192" % sW)
    A("s_cbranch_scc1 Lm_nopf")
    A("s_min_u32 s%d, s%d, 27" % (sT1, sM))
    A("s_lshl_b32 s%d, s%d, 7" % (sT1, sT1))
    A("v_mov_b32 v19, s%d" % sT1)
    A("s_mov_b64 exec, 1")
    for k, sd in enumerate([sW1, sB1, sW2]): A("global_load_dword v%d, v19, %s" % (W + 9 + k, sr(sd, 2)))
    A("s_mov_b64 exec, -1")
    LB("Lm_nopf")
    A("s_add_u32 s%d, s%d, %d" % (sVL, sT0, L_V))
    A("s_lshr_b32 s%d, s%d, 6" % (sW, sW))
    if DIAG: A("v_writelane_b32 v30, s42, 0")
    STAMP(10)
    MP("k0")
    A("s_branch Lmain")

C("---- helper waves: first q projection, then the table of g over bf16 inputs ----")
HW1, HB1, HW2 = 32, 60, 112
hK0, hK1, hONE, hRES = 88, 90, 92, 94
AC = [140, 142]
A("s_load_dwordx2 %s, s[0:1], 96" % sr(sWS, 2))
C("wq tile DMA: instruction i, thread t' = t-256: row 32 i + (t'>>3), 16-byte chunk (t'&7) ^ swizzle")
A("v_bfe_u32 v23, v0, 3, 5")
A("v_and_b32 v22, 7, v0")
A("v_and_b32 v24, 2, v23")
A("v_lshrrev_b32 v25, 1, v23")
A("v_and_or_b32 v24, v25, 4, v24")
A("v_xor_b32 v22, v22, v24")
A("v_lshlrev_b32 v22, 4, v22")
A("v_lshl_add_u32 v22, v23, 13, v22")
soff(sQL, [(sA, 20), (sJ, 10), (sC, 7)], 0)
A("s_lshl_b32 s%d, 1, 22" % (sWQ + 2))
A("s_lshl_b32 s%d, 1, 18" % sT1)
A("s_lshl_b32 s%d, s%d, 4" % (sQS, sW))
A("s_add_u32 m0, s%d, %d" % (sQS, L_WQ - 4096))
A("v_lshlrev_b32 v21, 4, v0")
if DIAG: A("s_memrealtime s[88:89]")
A("s_waitcnt lgkmcnt(0)")
if DIAG: A("s_memrealtime s[90:91]")
A("global_load_dwordx4 %s, v21, %s offset:-4096" % (vr(XR, 4), sr(sT2, 2)))
for i in range(4):
    if i:
        A("s_addk_i32 m0, 0x1000")
        A("s_add_u32 s%d, s%d, s%d" % (sQL, sQL, sT1))
    A("buffer_load_dwordx4 v22, %s, s%d offen nt lds" % (sr(sWQ, 4), sQL))
if DIAG: A("s_memrealtime s[92:93]")
lane_init()
A("s_bfe_u32 s%d, s%d, 0x20006" % (sW, sW))
A("s_lshl_b32 s%d, s%d, 10" % (sT3, sW))
srd(sWS, WS_SZ)
C("early sentinels (O0, LSE0): hw0 1024 B, the others 16 B")
for i in range(4): A("v_mov_b32 v%d, -1" % (PM + i))
A("s_mul_i32 s%d, s%d, %d" % (sT5, sM, CLRA_PER))
A("s_lshl_b32 s%d, s%d, 17" % (sGR, sJ))
A("s_add_u32 s%d, s%d, s%d" % (sT5, sT5, sGR))
A("s_add_u32 s%d, s%d, 1024" % (sT4, sT5))
A("s_cmp_ge_u32 s%d, 2" % sW)
A("s_cbranch_scc1 Lhc_skip")
A("s_cmp_eq_u32 s%d, 0" % sW)
A("s_cselect_b32 s%d, s%d, s%d" % (sT5, sT5, sT4))
A("s_cselect_b64 exec, -1, 1")
A("buffer_store_dwordx4 %s, v%d, %s, s%d offen sc1" % (vr(PM, 4), vL16, sr(sWS, 4), sT5))
LB("Lhc_skip")
A("s_mov_b64 exec, -1")
A("s_branch Lhelp2")
main_early()
LB("Lhelp2")
if QT:
    C("touch 2 lines of the tagged q mailbox per wave so that they sit in L2 before they are written")
    soff(sT4, [(sM, 10), (sW, 8), (sJ, 17)], Q0_OFF)
    A("v_lshlrev_b32 v24, 7, v%d" % vLANE)
    A("s_mov_b64 exec, 3")
    A("buffer_load_dword v%d, v24, %s, s%d offen" % (RES + 1, sr(sWS, 4), sT4))
A("s_mov_b64 exec, -1")
if HP: A("s_setprio 3")
A("s_load_dword s%d, %s, %s" % (sE, sr(sWS, 2), hx(EPO)))
A("s_load_dwordx2 %s, s[0:1], 72" % sr(sB2P, 2))
if MEAS:
    A("s_load_dwordx2 s[42:43], s[0:1], 88"); A("s_waitcnt lgkmcnt(0)"); A("v_mov_b32 v30, s42"); A("v_mov_b32 v31, s43")
if DIAG:
    A("v_writelane_b32 v30, s42, 0")
    A("s_waitcnt lgkmcnt(0)")
    A("v_mov_b32 v31, 0")
    A("v_writelane_b32 v31, s88, 0"); A("v_writelane_b32 v31, s90, 1"); A("v_writelane_b32 v31, s92, 2")
STAMP(9)
A("s_barrier")
A("s_lshl_b32 s%d, s2, 2" % sHC)
A("s_add_u32 s%d, s%d, s%d" % (sHC, sHC, sW))
sHX = 86
if XENT:
    C("extra entry e = wave index: |h| code ELO*128 + (e>>1), sign e&1")
    A("s_lshr_b32 s%d, s%d, 1" % (sHX, sHC))
    A("s_add_u32 s%d, s%d, %d" % (sHX, sHX, ELO * 128))
    A("s_lshl_b32 s%d, s%d, 16" % (sHX, sHX))
    A("s_lshl_b32 s%d, s%d, 31" % (sT0, sHC))
    A("s_or_b32 s%d, s%d, s%d" % (sHX, sHX, sT0))
A("s_mul_i32 s%d, s%d, %d" % (sHC, sHC, EPW))
A("s_lshl_b32 s%d, s%d, 3" % (sHT, sHC))
A("s_add_u32 s%d, s%d, %d" % (sHT, sHT, XENT * 4))
A("s_add_u32 s%d, s%d, %d" % (sHC, sHC, ELO * 128 + XENT // 2))
A("s_lshl_b32 s%d, s%d, 16" % (sHC, sHC))
A("v_lshlrev_b32 v27, 2, v%d" % vLANE)
A("v_add_u32 v27, s%d, v27" % sHT)
A("s_mov_b32 s%d, %s" % (sHT, hx(TB)))
common_addr()
A("s_lshl_b32 s%d, s%d, 1" % (sQS, sQS))
A("s_add_u32 s%d, s%d, s%d" % (sQS, sQS, sGR))
A("s_add_u32 s%d, s%d, %s" % (sQS, sQS, hx(Q0_OFF)))
A("v_lshlrev_b32 v%d, 1, v%d" % (vQST, vQST))
A("s_getreg_b32 s%d, hwreg(HW_REG_XCC_ID, 0, 3)" % sXCC)
for r, c in [(hK0, K0), (hK1, K1), (hONE, 1.0)]:
    A("v_mov_b32 v%d, %s" % (r, hx(f2u(c)))); A("v_mov_b32 v%d, %s" % (r + 1, hx(f2u(c))))
A("v_mov_b32 v%d, 0" % hRES)
A("s_mov_b32 s%d, 0" % sIT)
if DRY:
    C("dry run of the q-projection code while its inputs are in flight (instruction cache warm-up; no side effects)")
    A("s_mov_b32 s%d, 1" % sIT)
    A("s_branch Llnq")
    LB("Ldry_done")
    A("s_mov_b64 exec, -1")
    A("s_mov_b32 s%d, 0" % sIT)
if WARM:
    C("warm the instruction cache lines at the far jump targets of the main waves")
    for k, nm in enumerate(["k", "fin", "out", "tab"]):
        A("s_cmp_lg_u32 s%d, %d" % (sW, k))
        A("s_cbranch_scc1 Lwm%d" % k)
        A("s_call_b64 %s, Lst_%s" % (sr(sRET, 2), nm))
        if nm == "out": A("s_call_b64 %s, Lst_mq" % sr(sRET, 2))
        LB("Lwm%d" % k)
A("s_cmp_ge_u32 s%d, 2" % sW)
A("s_cbranch_scc0 Lhx5")
A("s_waitcnt vmcnt(%d)" % (4 + QT))
LB("Lhx5")
A("s_waitcnt vmcnt(%d)" % (5 + QT))
STAMP(1)
A("s_branch Llnq")
LB("Lq_first")
if DRY:
    A("s_cmp_lg_u32 s%d, 0" % sIT)
    A("s_cbranch_scc1 Lq_dry")
A("s_waitcnt vmcnt(0) lgkmcnt(0)")
STAMP(2)
MP("hwq")
lds_arrive(0, vT + 4)
if PRET == 2:
    C("hw0 pulls the lines it has just filled with sentinels into L2")
    A("s_cmp_lg_u32 s%d, 0" % sW)
    A("s_cbranch_scc1 Lhnt")
    A("v_lshlrev_b32 v24, 7, v%d" % vLANE)
    A("s_mov_b64 exec, 0x3ff")
    A("buffer_load_dword v%d, v24, %s, s%d offen sc1" % (RES, sr(sWS, 4), sT5))
    A("s_mov_b64 exec, -1")
    LB("Lhnt")
tags()
A("s_or_b32 s%d, s%d, s%d" % (sXCC, sXCC, sTG2))
C("4 helper arrivals (wq tile, xn rows) + 4 main arrivals (coefficients landed, sentinels acknowledged)")
lds_spin(0, 4, vT + 4)
STAMP(6)
LB("Lq_dry")
wqf_reads()
A("s_waitcnt lgkmcnt(0)")
A("s_branch Lq_go")
LB("Lh_qst")
if DRY:
    A("s_cmp_lg_u32 s%d, 0" % sIT)
    A("s_cbranch_scc1 Ldry_done")
STAMP(5)
A("v_mov_b32 v%d, s%d" % (W + 6, sTG1))
A("v_mov_b32 v%d, s%d" % (W + 7, sXCC))
A("buffer_store_dwordx4 %s, v%d, %s, s%d offen%s" % (vr(W + 4, 4), vQST, sr(sWS, 4), sQS, "" if int(OPT.get("fast", 1)) else " sc1"))
A("s_add_u32 s%d, s%d, %s" % (sQS, sQS, hx(QB_DELTA)))
if not QBD: A("buffer_store_dwordx4 %s, v%d, %s, s%d offen sc1" % (vr(W + 4, 4), vQST, sr(sWS, 4), sQS))
A("s_mov_b64 exec, -1")
HR = W + 8
if ADP: lds_arrive(52, 24)
if HP: A("s_setprio 0")
STAMP(3)
MP("hq")
A("v_lshlrev_b32 v26, 3, v%d" % vLANE)
lds_spin(24, 4, 24, sleep=1)
for a_ in range(3):
    for k in range(3):
        A("ds_read_b128 %s, v%d offset:%d" % (vr(HR + 14 * a_ + 4 * k, 4), vL16, 4096 * a_ + 1024 * k))
    A("ds_read_b64 %s, v26 offset:%d" % (vr(HR + 14 * a_ + 12, 2), 4096 * a_ + 3072))
for a_, d in [(0, HW1), (14, HB1), (28, HW2)]:
    A("s_waitcnt lgkmcnt(%d)" % (8 - 4 * (a_ // 14)))
    for p in range(14):
        A("v_lshlrev_b32 v%d, 16, v%d" % (d + 2 * p, HR + a_ + p))
        A("v_and_b32 v%d, 0xffff0000, v%d" % (d + 2 * p + 1, HR + a_ + p))
A("s_load_dword s%d, %s, 0" % (sB2, sr(sB2P, 2)))
STAMP(4)
if DIAG:
    A("s_memtime s[42:43]"); A("s_waitcnt lgkmcnt(0)"); A("v_writelane_b32 v30, s42, 13")
if HPT: A("s_setprio %d" % HPT)
LB("Lhl")
if DIAG:
    A("s_memrealtime s[42:43]"); A("s_add_u32 m0, s%d, 10" % sIT); A("s_waitcnt lgkmcnt(0)"); A("v_writelane_b32 v30, s42, m0")
A("s_mov_b32 s%d, s%d" % (sH, sHC)); A("s_mov_b32 s%d, s%d" % (sH + 1, sHC))
A("s_xor_b32 s%d, s%d, 0x80000000" % (sH2, sHC)); A("s_mov_b32 s%d, s%d" % (sH2 + 1, sH2))
U4 = [144, 146, 148, 150]; T4 = [152, 154, 156, 158]; Z4 = [160, 162, 164, 166]
for p2 in range(7):
    ch = [(2 * p2 + k // 2, k & 1) for k in range(4)]
    for k, (p, sg) in enumerate(ch):
        A("v_pk_fma_f32 %s, %s, %s, %s" % (vr(U4[k], 2), vr(HW1 + 2 * p, 2), sr([sH, sH2][sg], 2), vr(HB1 + 2 * p, 2)))
    for k in range(4): A("v_pk_mul_f32 %s, %s, %s" % (vr(T4[k], 2), vr(U4[k], 2), vr(U4[k], 2)))
    for k in range(4): A("v_pk_fma_f32 %s, %s, %s, %s" % (vr(T4[k], 2), vr(T4[k], 2), vr(hK1, 2), vr(hK0, 2)))
    for k in range(4): A("v_pk_mul_f32 %s, %s, %s" % (vr(T4[k], 2), vr(T4[k], 2), vr(U4[k], 2)))
    for k in range(4):
        for h in range(2): A("v_exp_f32 v%d, v%d" % (T4[k] + h, T4[k] + h))
    for k, (p, sg) in enumerate(ch): A("v_pk_mul_f32 %s, %s, %s" % (vr(Z4[k], 2), vr(U4[k], 2), vr(HW2 + 2 * p, 2)))
    for k in range(4): A("v_pk_add_f32 %s, %s, %s" % (vr(T4[k], 2), vr(T4[k], 2), vr(hONE, 2)))
    for k in range(4):
        for h in range(2): A("v_rcp_f32 v%d, v%d" % (T4[k] + h, T4[k] + h))
    for k, (p, sg) in enumerate(ch):
        if p == 0: A("v_pk_mul_f32 %s, %s, %s" % (vr(AC[sg], 2), vr(Z4[k], 2), vr(T4[k], 2)))
        else: A("v_pk_fma_f32 %s, %s, %s, %s" % (vr(AC[sg], 2), vr(Z4[k], 2), vr(T4[k], 2), vr(AC[sg], 2)))
A("v_add_f32 v%d, v%d, v%d" % (AC[0], AC[0], AC[0] + 1))
A("v_add_f32 v%d, v%d, v%d" % (AC[1], AC[1], AC[1] + 1))
A("s_lshl_b32 m0, s%d, 1" % sIT)
A("s_add_u32 s%d, s%d, 0x10000" % (sHC, sHC))
wave_sum2(AC[0], AC[1], sSUM, sSQ)
A("s_add_u32 s%d, s%d, 1" % (sIT, sIT))
A("s_nop 0")
A("v_writelane_b32 v%d, s%d, m0" % (hRES, sSUM))
A("s_add_u32 m0, m0, 1")
A("s_cmp_lg_u32 s%d, %d" % (sIT, EPW))
A("v_writelane_b32 v%d, s%d, m0" % (hRES, sSQ))
A("s_cbranch_scc1 Lhl")
def h_publish(lanes):
    A("v_cvt_pk_bf16_f32 v%d, v%d, v%d" % (hRES, hRES, hRES))
    A("v_and_b32 v%d, 0xffff0000, v%d" % (hRES, hRES))
    A("v_add_f32 v%d, s%d, v%d" % (hRES, sB2, hRES))
    A("v_cvt_pk_bf16_f32 v%d, v%d, v%d" % (hRES, hRES, hRES))
    A("v_and_b32 v%d, 0xffff0000, v%d" % (hRES + 1, hRES))
    A("s_mov_b64 exec, %d" % lanes)
    A("buffer_store_dword v%d, v27, %s, s%d offen sc1" % (hRES + 1, sr(sWS, 4), sHT))
    A("s_mov_b64 exec, -1")
A("s_waitcnt lgkmcnt(0)")
A("s_lshl_b32 s%d, s%d, 16" % (sB2, sB2))
lds_spin(8, 4, 24)
if not CMB: h_publish((1 << (2 * EPW)) - 1)
else:
    A("v_cvt_pk_bf16_f32 v%d, v%d, v%d" % (hRES, hRES, hRES))
    A("v_and_b32 v%d, 0xffff0000, v%d" % (hRES, hRES))
    A("v_add_f32 v%d, s%d, v%d" % (hRES, sB2, hRES))
    A("v_cvt_pk_bf16_f32 v%d, v%d, v%d" % (hRES, hRES, hRES))
    A("v_and_b32 v%d, 0xffff0000, v%d" % (hRES, hRES))
    C("the last of the four helpers stores the workgroup's 16 entries with one instruction")
    A("s_lshl_b32 s%d, s%d, 4" % (sT0, sW))
    A("v_lshl_add_u32 v16, v%d, 2, s%d" % (vLANE, sT0))
    A("v_add_u32 v16, %d, v16" % (L_FLG + 64))
    A("v_mov_b32 v17, 1")
    A("s_mov_b64 exec, 15")
    A("ds_write_b32 v16, v%d" % hRES)
    A("s_mov_b64 exec, 1")
    A("s_waitcnt lgkmcnt(0)")
    A("ds_add_rtn_u32 v18, v%d, v17 offset:56" % vFL)
    A("s_waitcnt lgkmcnt(0)")
    A("v_readfirstlane_b32 s%d, v18" % sT0)
    A("s_mov_b64 exec, 15")
    A("s_cmp_lg_u32 s%d, 3" % sT0)
    A("s_cbranch_scc1 Lhc_end")
    A("v_add_u32 v16, %d, v%d" % (L_FLG + 64, vL16))
    A("ds_read_b128 v[20:23], v16")
    A("s_lshl_b32 s%d, s2, 6" % sT1)
    A("s_add_u32 s%d, s%d, %s" % (sT1, sT1, hx(TB + XENT * 4)))
    A("s_waitcnt lgkmcnt(0)")
    A("buffer_store_dwordx4 v[20:23], v%d, %s, s%d offen sc1" % (vL16, sr(sWS, 4), sT1))
    LB("Lhc_end")
    A("s_mov_b64 exec, -1")
if QBD:
    C("the write-through copy of q is only needed when the group is not known to sit on one XCD")
    A("ds_read_b32 v24, v%d offset:4" % vFL)
    A("s_waitcnt lgkmcnt(0)")
    A("v_readfirstlane_b32 s%d, v24" % sT0)
    A("s_cmp_eq_u32 s%d, 4" % sT0)
    A("s_cbranch_scc1 Lhqb")
    A("s_mov_b64 exec, %s" % sr(sMSK, 2))
    A("buffer_store_dwordx4 %s, v%d, %s, s%d offen sc1" % (vr(W + 4, 4), vQST, sr(sWS, 4), sQS))
    A("s_mov_b64 exec, -1")
    LB("Lhqb")
if HPT: A("s_setprio 0")
STAMP(8)
MP("htab")
if XENT:
    A("s_mov_b32 s%d, s%d" % (sH, sHX)); A("s_mov_b32 s%d, s%d" % (sH + 1, sHX))
    for grp in [[0, 1, 2, 3], [4, 5, 6, 7], [8, 9, 10], [11, 12, 13]]:
        n = len(grp)
        for k, p in enumerate(grp): A("v_pk_fma_f32 %s, %s, %s, %s" % (vr(U4[k], 2), vr(HW1 + 2 * p, 2), sr(sH, 2), vr(HB1 + 2 * p, 2)))
        for k in range(n): A("v_pk_mul_f32 %s, %s, %s" % (vr(T4[k], 2), vr(U4[k], 2), vr(U4[k], 2)))
        for k in range(n): A("v_pk_fma_f32 %s, %s, %s, %s" % (vr(T4[k], 2), vr(T4[k], 2), vr(hK1, 2), vr(hK0, 2)))
        for k in range(n): A("v_pk_mul_f32 %s, %s, %s" % (vr(T4[k], 2), vr(T4[k], 2), vr(U4[k], 2)))
        for k in range(n):
            for h in range(2): A("v_exp_f32 v%d, v%d" % (T4[k] + h, T4[k] + h))
        for k, p in enumerate(grp): A("v_pk_mul_f32 %s, %s, %s" % (vr(Z4[k], 2), vr(U4[k], 2), vr(HW2 + 2 * p, 2)))
        for k in range(n): A("v_pk_add_f32 %s, %s, %s" % (vr(T4[k], 2), vr(T4[k], 2), vr(hONE, 2)))
        for k in range(n):
            for h in range(2): A("v_rcp_f32 v%d, v%d" % (T4[k] + h, T4[k] + h))
        for k, p in enumerate(grp):
            if p < 2: A("v_pk_mul_f32 %s, %s, %s" % (vr(AC[p & 1], 2), vr(Z4[k], 2), vr(T4[k], 2)))
            else: A("v_pk_fma_f32 %s, %s, %s, %s" % (vr(AC[p & 1], 2), vr(Z4[k], 2), vr(T4[k], 2), vr(AC[p & 1], 2)))
    A("v_add_f32 v%d, v%d, v%d" % (AC[0], AC[0], AC[0] + 1))
    A("v_add_f32 v%d, v%d, v%d" % (AC[1], AC[1], AC[1] + 1))
    A("v_add_f32 v%d, v%d, v%d" % (AC[0], AC[0], AC[1]))
    A("s_nop 1")
    wave_sum2(AC[0], AC[1], sSUM, sSQ)
    A("s_nop 1")
    A("v_mov_b32 v%d, s%d" % (hRES, sSUM))
    A("v_cvt_pk_bf16_f32 v%d, v%d, v%d" % (hRES, hRES, hRES))
    A("v_and_b32 v%d, 0xffff0000, v%d" % (hRES, hRES))
    A("v_add_f32 v%d, s%d, v%d" % (hRES, sB2, hRES))
    A("v_cvt_pk_bf16_f32 v%d, v%d, v%d" % (hRES, hRES, hRES))
    A("v_and_b32 v%d, 0xffff0000, v%d" % (hRES, hRES))
    C("the last of the four helpers stores the workgroup's four extra entries with one instruction")
    A("s_lshl_b32 s%d, s%d, 2" % (sT0, sW))
    A("v_add_u32 v16, s%d, v%d" % (sT0, vFL))
    A("v_mov_b32 v17, 1")
    A("s_mov_b64 exec, 1")
    A("ds_write_b32 v16, v%d offset:32" % hRES)
    A("s_waitcnt lgkmcnt(0)")
    A("ds_add_rtn_u32 v18, v%d, v17 offset:28" % vFL)
    A("s_waitcnt lgkmcnt(0)")
    A("v_readfirstlane_b32 s%d, v18" % sT0)
    A("s_cmp_lg_u32 s%d, 3" % sT0)
    A("s_cbranch_scc1 Lhx_end")
    A("ds_read_b128 v[20:23], v%d offset:32" % vFL)
    A("s_lshl_b32 s%d, s2, 4" % sT0)
    A("v_mov_b32 v16, s%d" % sT0)
    A("s_waitcnt lgkmcnt(0)")
    A("buffer_store_dwordx4 v[20:23], v16, %s, s%d offen sc1" % (sr(sWS, 4), sHT))
    LB("Lhx_end")
    A("s_mov_b64 exec, -1")
if DIAG:
    A("s_memtime s[42:43]"); A("s_waitcnt lgkmcnt(0)"); A("v_writelane_b32 v30, s42, 14")
    STAMP(15)
MP("qv")
STAMP(7)
C("stand in at the two barriers of the second layer, so that they do not wait for this wave's store acknowledgements")
A("s_barrier")
A("s_barrier")
if MEAS and OPT["q"][0] == "h":
    A("s_mov_b64 exec, 1"); A("v_mov_b32 v16, s97"); A("global_atomic_umax v[30:31], v16, off sc1")
if DIAG:
    A("s_add_u32 s%d, s%d, 4" % (sW, sW))
    A("v_mov_b32 v28, v30")
    A("s_branch Lfin_exit")
A("s_endpgm")

LB("Lmain")
for s, off in [(sWS, 96), (sV, 16), (sWO, 32), (sOUT, 80), (sX, 0), (sB2P, 72)]:
    A("s_load_dwordx2 %s, s[0:1], %d" % (sr(s, 2), off))
if MEAS: A("s_load_dwordx2 s[42:43], s[0:1], 88"); A("s_waitcnt lgkmcnt(0)"); A("s_mov_b32 s25, s42"); A("s_mov_b32 s99, s43") if False else None; A("v_mov_b32 v30, s42"); A("v_mov_b32 v31, s43")
srd(sWS, WS_SZ)
for s in [sW1, sB1, sW2]: srd(s, 3584)
A("s_lshl_b32 s%d, s%d, 10" % (sT3, sW))
A("s_barrier")
for i in range(D0, DC): kv_issue(i)
A("s_mov_b32 m0, s%d" % sT3)
for i, sd in enumerate([sW1, sB1, sW2]):
    if i: A("s_addk_i32 m0, 0x1000")
    A("s_nop 0")
    A("buffer_load_dwordx4 v%d, %s, s%d offen lds" % (vL16, sr(sd, 4), sT3))
for i in range(DC, D1): kv_issue(i)
for i in range(4): A("v_mov_b32 v%d, -1" % (W + i))
A("s_lshl_b32 s%d, s%d, 17" % (sGR, sJ))
A("s_mov_b32 s%d, s%d" % (sT1, sM))
A("s_waitcnt lgkmcnt(0)")
A("s_load_dword s%d, %s, %s" % (sE, sr(sWS, 2), hx(EPO)))
STAMP(11)
MP("k3")
for s, n in [(sV, 1 << 25), (sX, 4096), (sWO, 1 << 22), (sOUT, 4096)]: srd(s, n)
A("v_lshlrev_b32 v18, 1, v16")
A("v_xor_b32 v18, v17, v18")
A("v_lshlrev_b32 v18, 4, v18")
A("v_lshl_add_u32 v%d, v16, 8, v18" % vVA)
if ROT:
    A("s_and_b32 s%d, s%d, 1" % (sT0, sC))
    A("s_lshl_b32 s%d, s%d, 7" % (sT0, sT0))
    A("v_xor_b32 v%d, s%d, v%d" % (vVA, sT0, vVA))
A("v_xor_b32 v%d, 128, v%d" % (vVA + 1, vVA))
C("late sentinels: wave 0,1: group region ; wave 2: P chunk")
A("s_lshr_b32 s%d, s2, 3" % sT1)
A("s_mul_i32 s%d, s%d, %d" % (sT1, sT1, CLRB_PER))
A("s_lshl_b32 s%d, s%d, 10" % (sT0, sW))
A("s_add_u32 s%d, s%d, s%d" % (sT1, sT1, sT0))
A("s_add_u32 s%d, s%d, s%d" % (sT1, sT1, sGR))
A("s_add_u32 s%d, s%d, %d" % (sT1, sT1, CLRB_OFF))
A("s_lshl_b32 s%d, s2, 10" % sT0)
A("s_add_u32 s%d, s%d, %s" % (sT0, sT0, hx(PB)))
A("s_cmp_ge_u32 s%d, 2" % sW)
A("s_cselect_b32 s%d, s%d, s%d" % (sT1, sT0, sT1))
A("s_bfm_b64 %s, %d, 0" % (sr(sH, 2), (CLRB_PER - 1024) // 16))
A("s_cmp_eq_u32 s%d, 1" % sW)
A("s_cselect_b64 %s, %s, -1" % (sr(sH, 2), sr(sH, 2)))
NCL = NOCT * 4 // 16
A("v_mov_b32 v19, v%d" % vL16)
A("s_cmp_lg_u32 s%d, 3" % sW)
A("s_cbranch_scc1 Lm_c3")
C("wave 3: this workgroup's table slots")
A("s_mul_i32 s%d, s2, %d" % (sT0, NOCT * 4))
A("s_add_u32 s%d, s%d, %d" % (sT0, sT0, XENT * 4))
A("v_add_u32 v19, s%d, v19" % sT0)
A("s_lshl_b32 s%d, s2, 4" % sT0)
if XENT: A("v_writelane_b32 v19, s%d, %d" % (sT0, NCL))
A("s_mov_b32 s%d, %s" % (sT1, hx(TB)))
A("s_mov_b64 %s, %d" % (sr(sH, 2), (1 << (NCL + (1 if XENT else 0))) - 1))
LB("Lm_c3")
A("s_mov_b64 exec, %s" % sr(sH, 2))
A("buffer_store_dwordx4 %s, v19, %s, s%d offen sc1" % (vr(W, 4), sr(sWS, 4), sT1))
A("s_mov_b64 exec, -1")

common_addr()
A("s_add_u32 s%d, s%d, s%d" % (sQS, sQS, sGR))
A("s_add_u32 s%d, s%d, %d" % (sQS, sQS, Q1_OFF))
wtile_voff(10, 22)
A("v_and_b32 v19, 7, v%d" % vLANE)
A("v_lshrrev_b32 v25, 2, v%d" % vLANE)
A("v_lshlrev_b32 v25, 7, v25")
A("v_lshl_add_u32 v%d, v18, 2, v25" % vOST)
A("v_lshlrev_b32 v25, 7, v16")
A("v_lshl_add_u32 v%d, v19, 4, v25" % vOLD)
C("lanes n>=8 of the first two o loads fetch the lse values instead: offset relative to the o block")
A("s_mul_i32 s%d, s%d, %d" % (sT0, sA, 128 - 8192))
A("s_mul_i32 s%d, s%d, %d" % (sT1, sW, 32 - 2048))
A("s_add_u32 s%d, s%d, s%d" % (sT0, sT0, sT1))
A("s_add_u32 s%d, s%d, %d" % (sT0, sT0, LSE_OFF[0] - O_OFF[0]))
A("v_add_u32 v25, s%d, v%d" % (sT0, vLSE))
A("v_xor_b32 v26, 16, v25")
A("v_add_u32 v26, -512, v26")
A("v_cmp_gt_u32 vcc, 8, v17")
A("s_nop 1")
A("v_cndmask_b32 v%d, v25, v%d, vcc" % (vLSE, vOLD))
A("v_cndmask_b32 v%d, v26, v%d, vcc" % (vLS2, vOLD))
A("v_lshlrev_b32 v%d, 1, v%d" % (vPST, vLANE))
A("v_lshlrev_b32 v25, 3, v16")
A("v_lshl_add_u32 v%d, v19, 4, v25" % vX1S)
A("s_mul_i32 s%d, s%d, %d" % (sT0, sW, RBS))
A("s_add_u32 s%d, s%d, %d" % (sT0, sT0, L_RB))
A("v_mul_u32_u24 v25, 528, v18")
A("v_lshl_add_u32 v25, v16, 4, v25")
A("v_lshrrev_b32 v26, 2, v17")
A("v_lshl_add_u32 v25, v26, 7, v25")
A("v_add_u32 v%d, s%d, v25" % (vRBW, sT0))
A("s_mul_i32 s%d, s%d, 528" % (sT0, sW))
A("s_add_u32 s%d, s%d, %d" % (sT0, sT0, L_RB))
A("v_lshlrev_b32 v25, 3, v%d" % vLANE)
A("v_add_u32 v%d, s%d, v25" % (vRBR, sT0))
A("s_lshl_b32 s%d, s%d, 3" % (sT0, sW))
A("s_add_u32 s%d, s%d, %d" % (sT0, sT0, L_ML))
A("v_lshlrev_b32 v25, 5, v18")
A("v_add_u32 v%d, s%d, v25" % (vMLW, sT0))
A("s_lshl_b32 s%d, s%d, 5" % (sT0, sW))
A("s_add_u32 s%d, s%d, %d" % (sT0, sT0, L_ML))
A("v_mov_b32 v%d, s%d" % (vMLR, sT0))
A("v_mov_b32 v25, 0x3f80")
A("v_mov_b32 v26, 0x3f800000")
for r in range(4):
    A("v_cmp_eq_u32 vcc, %d, v17" % (2 * r))
    A("v_cmp_eq_u32 %s, %d, v17" % (sr(sH, 2), 2 * r + 1))
    A("s_nop 0")
    A("v_cndmask_b32 v%d, 0, v25, vcc" % (SEL + r))
    A("v_cndmask_b32 v%d, v%d, v26, %s" % (SEL + r, SEL + r, sr(sH, 2)))
for i in range(16): A("v_mov_b32 v%d, 0" % (PM + i))
for p in range(4):
    A("s_mov_b32 s%d, %s" % (sPM + 2 * p, hx(0x000f000f << (4 * p))))
    A("s_mov_b32 s%d, %s" % (sPM + 2 * p + 1, hx(0x000f000f << (4 * p))))
soff(sOS, [(sW, 13), (sA, 11), (sC, 4), (sJ, 17)], O_OFF[0])
soff(sOL, [(sA, 13), (sW, 11), (sJ, 17)], O_OFF[0])
A("s_add_u32 s%d, s%d, %s" % (sQL, sOL, hx(Q0_OFF - O_OFF[0])))
soff(sLS, [(sW, 7), (sA, 5), (sC, 2), (sJ, 17)], LSE_OFF[0])
soff(sPS, [(sW, 15), (sC, 12), (sJ, 9), (sA, 7)], PB)
A("s_mov_b32 s%d, %s" % (sSC, hx(f2u(128 ** -0.5 * math.log2(math.e)))))
A("s_getreg_b32 s%d, hwreg(HW_REG_XCC_ID, 0, 3)" % sXCC)
A("v_xor_b32 v24, v16, v17")
A("v_lshlrev_b32 v24, 4, v24")
A("v_lshl_add_u32 v24, v17, 8, v24")
A("s_lshl_b32 s%d, s%d, 13" % (sT1, sW))
A("s_add_u32 s%d, s%d, %d" % (sT2, sT1, L_K))
for t in range(4): A("v_xor_b32 v%d, %d, v24" % (18 + t, 64 * t))
for t in range(4): A("v_add_u32 v%d, s%d, v%d" % (18 + t, sT2, 18 + t))
VA = W + 32
A("v_lshrrev_b32 v24, 2, v%d" % vLANE)
A("v_and_b32 v25, 7, v24")
A("v_lshlrev_b32 v25, 1, v25")
A("v_bfe_u32 v26, v%d, 1, 1" % vLANE)
A("v_xor_b32 v25, v25, v26")
A("v_lshlrev_b32 v25, 4, v25")
A("v_lshl_add_u32 v25, v24, 8, v25")
A("v_and_b32 v26, 1, v%d" % vLANE)
A("v_lshl_add_u32 v25, v26, 3, v25")
A("s_add_u32 s%d, s%d, %d" % (sT2, sT1, L_V))
for t in range(8): A("v_xor_b32 v%d, %d, v25" % (VA + t, 32 * t))
for t in range(8): A("v_add_u32 v%d, s%d, v%d" % (VA + t, sT2, VA + t))
soff(sT4, [(sJ, 19), (sA, 17), (sW, 15), (sC, 7)], 0)
A("s_lshl_b32 s%d, s%d, 12" % (sT5, sW))
A("s_add_u32 s%d, s%d, %d" % (sT5, sT5, L_WO))
soff(sT3, [(sA, 10), (sC, 7)], 0)
A("v_lshlrev_b32 v24, 5, v%d" % vLANE)
A("s_lshl_b32 s%d, s%d, 10" % (sT2, sW))
A("s_add_u32 s%d, s%d, %d" % (sT2, sT2, L_QF))
A("v_add_u32 v25, s%d, v%d" % (sT2, vL16))
A("v_add_u32 v26, %d, v%d" % (L_QF, vL16))
STAMP(12)
if DIAG: A("v_mov_b32 v31, v30")
QP = W
def q0_issue(QP=QP):
    A("buffer_load_dwordx4 %s, v24, %s, s%d offen sc1" % (vr(QP, 4), sr(sWS, 4), sQL))
    A("buffer_load_dwordx4 %s, v24, %s, s%d offen offset:16 sc1" % (vr(QP + 4, 4), sr(sWS, 4), sQL))
def flag_block():
    if True:
        A("s_cmp_lg_u32 s%d, 0" % sW)
        A("s_cbranch_scc1 Lnoflag")
        C("every sentinel store of this workgroup is acknowledged: announce it")
        lds_spin(8, 4, vT)
        A("v_mov_b32 v16, s%d" % sTG1)
        A("v_mov_b32 v17, s%d" % sXCC)
        soff(sT1, [(2, 4)], FB)
        A("s_mov_b64 exec, 1")
        A("buffer_store_dwordx2 v[16:17], v%d, %s, s%d offen sc1" % (PM, sr(sWS, 4), sT1))
        A("s_mov_b64 exec, -1")
        LB("Lnoflag")
C("coefficients landed -> tell the helpers")
young = D1 - DC + 1
told = False
st_arr = st_fl = False
if ECO:
    A("s_waitcnt vmcnt(%d)" % young); lds_arrive(24, vT); told = True
A("s_mov_b32 s%d, 0" % sY)
for i in range(D1, 16):
    dp = DEPTH if i < TAILI else TAILD
    extra = 1 if i == 16 - QV else 0
    if ADP and told:
        C("stay shallow until the helpers have issued their q stores")
        A("s_cmp_lg_u32 s%d, 0" % sY)
        A("s_cbranch_scc1 Ldp%d" % i)
        A("ds_read_b32 v%d, v%d offset:52" % (vT, vFL))
        A("s_waitcnt lgkmcnt(0)")
        A("v_readfirstlane_b32 s%d, v%d" % (sT1, vT))
        A("s_cmp_ge_u32 s%d, 4" % sT1)
        A("s_cselect_b32 s%d, 1, 0" % sY)
        A("s_cbranch_scc1 Ldp%d" % i)
        A("s_waitcnt vmcnt(%d)" % (dp - 1 - 2 * extra))
        LB("Ldp%d" % i)
        A("s_waitcnt vmcnt(%d)" % (ADP - 1 - 2 * extra))
        if extra: q0_issue(); young += 2
    else:
        if extra:
            A("s_waitcnt vmcnt(%d)" % (dp - 2)); q0_issue(); young += 2
            if DIAG:
                A("s_memrealtime s[42:43]"); A("s_waitcnt lgkmcnt(0)"); A("v_writelane_b32 v31, s42, 9")
        if QV2 and i == 16 - QV2:
            A("s_waitcnt vmcnt(%d)" % (dp - 2)); q0_issue(XR); young += 2
        A("s_waitcnt vmcnt(%d)" % (dp - 1))
    if not told and young >= dp - 1:
        lds_arrive(24, vT); told = True
    if EFL:
        ycl = young - (D1 - DC + 1)
        if st_arr and not st_fl:
            if PRET == 2:
                C("all four waves' sentinel stores are acknowledged: pull this workgroup's chunk into L2")
                A("s_mov_b32 s%d, s%d" % (sLL, sT1))
                lds_spin(8, 4, vT)
                A("v_lshlrev_b32 v16, 7, v%d" % vLANE)
                A("s_mov_b64 exec, 15")
                A("buffer_load_dword v%d, v16, %s, s%d offen sc1" % (RES, sr(sWS, 4), sLL))
                A("s_mov_b64 exec, -1"); young += 1
            flag_block(); st_fl = True
        if not st_arr and ycl >= dp - 1:
            lds_arrive(8, vT); A("s_waitcnt lgkmcnt(0)"); tags(); A("s_or_b32 s%d, s%d, s%d" % (sXCC, sXCC, sTG2)); st_arr = True
            if PRET == 2:
                A("s_mul_i32 s%d, s%d, %d" % (sT1, sM, CLRB_PER))
                A("s_mul_i32 s%d, s%d, 448" % (sT0, sW))
                A("s_add_u32 s%d, s%d, s%d" % (sT1, sT1, sT0))
                A("s_add_u32 s%d, s%d, s%d" % (sT1, sT1, sGR))
                A("s_add_u32 s%d, s%d, %d" % (sT1, sT1, CLRB_OFF))
                PEND_TOUCH = True
    kv_issue(i); young += 1
assert told
q0_issue(QP + 8)
C("everything older than the V loads is complete: K, late sentinels")
A("s_waitcnt vmcnt(%d)" % (14 if QV2 else 12))
if EFL: assert st_fl
else:
    lds_arrive(8, vT)
    A("s_waitcnt lgkmcnt(0)")
    tags()
    A("s_or_b32 s%d, s%d, s%d" % (sXCC, sXCC, sTG2))
STAMP(1)
MP("kl")
for t in range(4):
    for T in range(2):
        A("ds_read_b128 %s, v%d offset:%d" % (vr(KF + 16 * T + 4 * t, 4), 18 + t, 4096 * T))
if not EFL: flag_block()
def wait_w0(n):
    if EFL:
        A("s_waitcnt vmcnt(%d)" % n); return
    uid[0] += 1
    A("s_cmp_eq_u32 s%d, 0" % sW)
    A("s_cbranch_scc1 Lww%d" % uid[0])
    A("s_waitcnt vmcnt(%d)" % n)
    LB("Lww%d" % uid[0])
    A("s_waitcnt vmcnt(%d)" % (n + 1))
wait_w0(QV + 2 + (2 if QV2 else 0))
STAMP(2)
A("s_setprio 2")
A("s_mov_b32 s%d, %s" % (sCNT, hx(SPIN)))
A("s_mov_b32 s%d, 0" % sY)
A("s_mov_b32 s%d, 0" % sIT)
LB("Lmq")
A("v_and_b32 v16, -8, v%d" % (QP + 3))
A("v_and_b32 v17, -8, v%d" % (QP + 7))
A("v_cmp_ne_u32 vcc, s%d, v%d" % (sTG1, QP + 2))
A("v_cmp_ne_u32 %s, s%d, v%d" % (sr(sRET, 2), sTG1, QP + 6))
A("s_or_b64 vcc, vcc, %s" % sr(sRET, 2))
A("v_cmp_ne_u32 %s, s%d, v16" % (sr(sRET, 2), sTG2))
A("s_or_b64 vcc, vcc, %s" % sr(sRET, 2))
A("v_cmp_ne_u32 %s, s%d, v17" % (sr(sRET, 2), sTG2))
A("s_or_b64 vcc, vcc, %s" % sr(sRET, 2))
if not int(OPT.get("nochk", 0)): A("s_cbranch_vccnz Lmqr")
LB("Lmqd")
if DIAG:
    A("s_sub_u32 s%d, s%d, s%d" % (sT0, sCNT, sY)); A("v_writelane_b32 v31, s%d, 0" % sT0)
Ls = L; L = []
L.append(".p2align 6"); LB("Lst_mq"); A("s_setpc_b64 %s" % sr(sRET, 2))
LB("Lmqr")
A("s_cmp_lg_u32 s%d, 0" % sY)
A("s_cbranch_scc1 Lmqr2")
if QV2:
    A("s_cmp_lg_u32 s%d, 0" % sIT)
    A("s_cbranch_scc1 Lmqr1")
    A("s_mov_b32 s%d, 1" % sIT)
    wait_w0(QV2 + 2)
    for k in range(8): A("v_mov_b32 v%d, v%d" % (QP + k, XR + k))
    A("s_branch Lmq")
    LB("Lmqr1")
C("first look failed: take the second one (V has landed with it: request its fragments now)")
A("s_waitcnt vmcnt(0)")
A("s_mov_b32 s%d, 1" % sY)
for k in range(8): A("v_mov_b32 v%d, v%d" % (QP + k, QP + 8 + k))
if not VLATE:
    for t in range(8):
        for hf in range(2):
            A("ds_read_b64_tr_b16 %s, v%d offset:%d" % (vr(VF + 4 * t + 2 * hf, 2), VA + t, 4096 * hf))
A("s_branch Lmq")
LB("Lmqr2")
C("still not there: poll the plain copy a few times, then both copies in turn")
A("s_cmp_le_u32 s%d, %s" % (sCNT, hx(SPIN - 6)))
A("s_cselect_b32 s%d, %s, 0" % (sT0, hx(QB_DELTA)))
A("s_xor_b32 s%d, s%d, s%d" % (sQL, sQL, sT0))
q0_issue()
A("s_waitcnt vmcnt(0)")
A("s_sub_u32 s%d, s%d, 1" % (sCNT, sCNT))
A("s_cbranch_scc0 Lmq")
A("s_branch Lmqd")
ool.append(L); L = Ls
A("v_cmp_ne_u32 vcc, s%d, v%d" % (sXCC, QP + 3))
A("v_mov_b32 v%d, v%d" % (QP + 2, QP + 4))
A("v_mov_b32 v%d, v%d" % (QP + 3, QP + 5))
A("ds_write_b128 v25, %s" % vr(QP, 4))
A("s_cmp_eq_u64 vcc, 0")
A("s_cselect_b32 s%d, 1, 0x101" % sT0)
A("v_mov_b32 v16, s%d" % sT0)
A("s_waitcnt lgkmcnt(0)")
lds_arrive(4, 16, None)
if VLATE:
    A("s_cmp_eq_u32 s%d, 0" % sY)
    A("s_cbranch_scc1 Lnvf")
    for t in range(8):
        for hf in range(2):
            A("ds_read_b64_tr_b16 %s, v%d offset:%d" % (vr(VF + 4 * t + 2 * hf, 2), VA + t, 4096 * hf))
    LB("Lnvf")
STAMP(15)
MP("qv")
A("buffer_load_dwordx2 %s, v%d, %s, s%d offen" % (vr(RES + 2, 2), vX1S, sr(sX, 4), sT3))
FLG = W + 44
soff(sIT, [(sW, 10)], FB)
soff(sQL, [(sA, 12), (sJ, 17)], Q1_OFF)
for k in range(4):
    A("s_add_u32 s%d, s%d, %d" % (sT0, sC, k))
    A("s_and_b32 s%d, s%d, 3" % (sT0, sT0))
    A("s_lshl_b32 s%d, s%d, 10" % (sKO + k, sT0))
A("s_and_b32 s%d, s%d, 1" % (sT0, sC))
A("s_lshl_b32 s%d, s%d, 6" % (sT0, sT0))
A("v_xor_b32 v22, s%d, v22" % sT0); A("v_xor_b32 v23, s%d, v23" % sT0)
A("s_lshl_b32 s%d, s%d, 2" % (sT3, sM))
A("s_add_u32 s%d, s%d, s%d" % (sT3, sT3, sW))
A("s_lshl_b32 s%d, s%d, 8" % (sT3, sT3))
A("v_lshlrev_b32 v21, 7, v%d" % vLANE)
A("v_add_u32 v21, s%d, v21" % sT3)
A("s_lshl_b32 s%d, s%d, 7" % (sT0, sW))
A("s_add_u32 s%d, s%d, %d" % (sT0, sT0, LSE_OFF[0]))
A("v_writelane_b32 v21, s%d, 2" % sT0)
lds_spin(4, 4, vT, mask=0xff)
A("s_cmp_lt_u32 s%d, 256" % sT1)
A("s_cselect_b32 s%d, %d, 0" % (sFAST, int(OPT.get("fast", 1))))
QF = W + 16
for t in range(4):
    A("ds_read_b128 %s, v26 offset:%d" % (vr(QF + 4 * t, 4), 1024 * t))
S = W
qk = []
for t in range(4):
    for T in range(2):
        qk.append(mf(S + 4 * T, KF + 16 * T + 4 * t, QF + 4 * t, None if t == 0 else S + 4 * T))
for t in range(4):
    A("s_waitcnt lgkmcnt(%d)" % (3 - t))
    A(qk[2 * t]); A(qk[2 * t + 1])
def wo_issue():
    C("every wave holds its K fragments: the wo tile may land in the K area")
    for k in range(4):
        A("s_add_u32 m0, s%d, s%d" % (sT5, sKO + k))
        A("s_lshl3_add_u32 s%d, s%d, s%d" % (sT0, sKO + k, sT4))
        A("buffer_load_dwordx4 v%d, %s, s%d offen nt lds" % (22 + (k & 1), sr(sWO, 4), sT0))
if WOP == 0: wo_issue()
if PRET == 1:
    C("bring the first layer's o / lse lines (their sentinels are in place) into L2")
    A("s_mov_b64 exec, 7")
    A("buffer_load_dword v%d, v21, %s, s%d offen sc1" % (W + 40, sr(sWS, 4), sGR))
    A("s_mov_b64 exec, -1")
STAMP(3)
A("s_branch Lk_go")

LB("Llnq")
C("LayerNorm of the row held in XR, then q partial = xn @ wq tile")
X = W
row_stats(XR, vT, X)
A("v_add_f32 v%d, %s, v%d" % (vT + 1, EPS, vT + 1))
A("v_rsq_f32 v%d, v%d" % (vT + 2, vT + 1))
A("s_cmp_eq_u32 s%d, 0" % sLAY)
A("v_mul_f32 v%d, v%d, v%d" % (vT + 3, vT, vT + 2))
for i in range(4):
    A("v_pk_fma_f32 %s, %s, %s, %s op_sel:[0,0,1] op_sel_hi:[1,0,1] neg_lo:[0,0,1] neg_hi:[0,0,1]" % (vr(X + 2 * i, 2), vr(X + 2 * i, 2), vr(vT + 2, 2), vr(vT + 2, 2)))
for i in range(4):
    A("v_cvt_pk_bf16_f32 v%d, v%d, v%d" % (X + 8 + i, X + 2 * i, X + 2 * i + 1))
A("ds_write_b128 v%d, %s" % (vXNW, vr(X + 8, 4)))
A("s_cbranch_scc1 Lq_first")
A("s_waitcnt lgkmcnt(0)")
A("s_barrier")
LB("Lq_go")
BF = W + 16
for t in range(4):
    A("ds_read_b128 %s, v%d offset:%d" % (vr(BF + 4 * t, 4), vXNR, 64 * t))
for t in range(4):
    A("s_waitcnt lgkmcnt(%d)" % (3 - t))
    mfma(W, WQF + 4 * t, BF + 4 * t, None if t == 0 else W)
A("s_cmp_eq_u32 s%d, 0" % sLAY)
A("s_mov_b64 exec, %s" % sr(sMSK, 2))
NOP(6)
A("v_cvt_pk_bf16_f32 v%d, v%d, v%d" % (W + 4, W, W + 1))
A("v_cvt_pk_bf16_f32 v%d, v%d, v%d" % (W + 5, W + 2, W + 3))
A("s_cbranch_scc1 Lh_qst")
fastcmp()
store_local("buffer_store_dwordx2", vr(W + 4, 2), vQST, sQS)
A("s_mov_b64 exec, -1")
A("ds_write_b128 v%d, %s offset:%d" % (vXNW, vr(XR, 4), L_X2 - L_XN))
A("s_mov_b32 s%d, 0" % sY)
for s, d in [(sOL, O_OFF[1] - O_OFF[0]), (sOS, O_OFF[1] - O_OFF[0]), (sLS, LSE_OFF[1] - LSE_OFF[0]), (sPS, P_L)]:
    A("s_add_u32 s%d, s%d, %d" % (s, s, d))
STAMP(2)

C("attention over this workgroup's 128 keys")
if QS:
    C("each wave fetches one k-step of q and shares it through LDS")
    A("s_lshl_b32 s%d, s%d, 10" % (sT3, sW))
    A("s_add_u32 s%d, s%d, s%d" % (sT4, sQL, sT3))
    A("s_add_u32 s%d, s%d, %d" % (sT3, sT3, L_RB + 12288))
    A("v_add_u32 v25, s%d, v%d" % (sT3, vL16))
    A("v_add_u32 v26, %d, v%d" % (L_RB + 12288, vL16))
    ppoll(lambda k: A("buffer_load_dwordx4 %s, v%d, %s, s%d offen sc1" % (vr(W + 32 + 4 * k, 4), vL16, sr(sWS, 4), sT4)),
          lambda k: range(W + 32 + 4 * k, W + 36 + 4 * k), 1, vT, lambda k: ["ds_write_b128 v25, %s" % vr(W + 32 + 4 * k, 4)], pre=QPRE, gap=QGAP, tag=0)
    A("s_waitcnt lgkmcnt(0)")
    A("s_barrier")
    for t in range(4):
        A("ds_read_b128 %s, v26 offset:%d" % (vr(QF + 4 * t, 4), 1024 * t))
    for t in range(4):
        A("s_waitcnt lgkmcnt(%d)" % (3 - t))
        A(qk[2 * t]); A(qk[2 * t + 1])
    touch_stub("k")
else:
    def iq(k):
        for t in range(4):
            A("buffer_load_dwordx4 %s, v%d, %s, s%d offen offset:%d sc1" % (vr(QF + 16 * k + 4 * t, 4), vL16, sr(sWS, 4), sQL, 1024 * t))
    def qks(k):
        return [mf(S + 4 * T, KF + 16 * T + 4 * t, QF + 16 * k + 4 * t, None if t == 0 else S + 4 * T) for t in range(4) for T in range(2)]
    ppoll(iq, lambda k: range(QF + 16 * k, QF + 16 * k + 16), 4, vT, qks, pre=QPRE, gap=QGAP, tag=0, stub="k", per_load=lambda k, i: qks(k)[2 * i:2 * i + 2])
STAMP(3)
LB("Lk_go")
NOP(5)
for ctl in ["row_ror:4", "row_ror:8"]:
    for i in range(8):
        A("v_add_f32_dpp v%d, v%d, v%d %s row_mask:0xf bank_mask:0xf" % (S + i, S + i, S + i, ctl))
A("v_max3_f32 v%d, v%d, v%d, v%d" % (vT, S, S + 1, S + 2))
A("v_max3_f32 v%d, v%d, v%d, v%d" % (vT + 1, S + 3, S + 4, S + 5))
A("v_max3_f32 v%d, v%d, v%d, v%d" % (vT, vT, S + 6, S + 7))
A("v_max_f32 v%d, v%d, v%d" % (vT, vT, vT + 1))
A("v_mov_b32 v%d, v%d" % (vT + 1, vT))
A("s_nop 1")
A("v_permlane16_swap_b32 v%d, v%d" % (vT, vT + 1))
A("v_max_f32 v%d, v%d, v%d" % (vT, vT, vT + 1))
A("v_mov_b32 v%d, v%d" % (vT + 1, vT))
A("s_nop 1")
A("v_permlane32_swap_b32 v%d, v%d" % (vT, vT + 1))
A("v_max_f32 v%d, v%d, v%d" % (vT, vT, vT + 1))
A("v_mul_f32 v%d, s%d, v%d" % (vT + 2, sSC, vT))
for i in range(8):
    A("v_fma_f32 v%d, v%d, s%d, -v%d" % (S + i, S + i, sSC, vT + 2))
for i in range(8):
    A("v_exp_f32 v%d, v%d" % (S + i, S + i))
for p in range(4):
    A("s_mov_b64 exec, %s" % sr(sPM + 2 * p, 2))
    for i in range(4):
        A("v_cvt_pk_bf16_f32 v%d, v%d, v%d" % (PM + 4 * p + i, S + 2 * i, S + 2 * i + 1))
A("s_mov_b64 exec, -1")
STAMP(4)
A("s_cmp_lg_u32 s%d, 0" % sLAY)
A("s_cbranch_scc1 Lv_go")
wait_w0((5 if WOP == 0 else 1) + (PRET == 1))
if WOP == 1: wo_issue()
A("buffer_load_dwordx4 %s, v%d, %s, s%d offen sc1" % (vr(FLG, 4), vL16, sr(sWS, 4), sIT))
STAMP(6)
A("s_cmp_lg_u32 s%d, 0" % sY)
A("s_cbranch_scc1 Lv_have")
for t in range(8):
    for hf in range(2):
        A("ds_read_b64_tr_b16 %s, v%d offset:%d" % (vr(VF + 4 * t + 2 * hf, 2), VA + t, 4096 * hf))
A("s_waitcnt lgkmcnt(0)")
LB("Lv_have")
if TOT:
    A("s_memrealtime s[42:43]"); A("s_waitcnt lgkmcnt(0)"); A("s_mov_b32 s97, s42")
MP("pv")
if MEAS and OPT["q"] in ("tg", "s1"): A("s_mov_b32 s97, s98")
A("s_cmp_lg_u32 s%d, 0" % sLAY)
LB("Lv_go")
OA = W + 8
mfma(W + 16, ONES, PM, None)
for p in range(4):
    for T in range(2):
        mfma(OA + 4 * T, VF + 4 * (2 * p + T), PM + 4 * p, None if p == 0 else OA + 4 * T)
A("s_mov_b64 exec, %s" % sr(sMSK, 2))
A("v_mov_b32 v%d, v%d" % (vT + 3, W + 16))
A("ds_write_b64 v%d, %s" % (vMLW, vr(vT + 2, 2)))
A("s_mov_b64 exec, -1")
NOP(3)
A("ds_write_b128 v%d, %s" % (vRBW, vr(OA, 4)))
A("ds_write_b128 v%d, %s offset:64" % (vRBW, vr(OA + 4, 4)))
A("s_waitcnt lgkmcnt(0)")
A("s_cbranch_scc1 Lrb_bar")
lds_arrive(12, vT + 4)
if WOP == 2: wo_issue()
lds_spin(12, 4, vT + 4)
A("s_branch Lrb_go")
LB("Lrb_bar")
A("s_barrier")
LB("Lrb_go")
A("ds_read_b128 %s, v%d" % (vr(W, 4), vMLR))
A("ds_read_b128 %s, v%d offset:16" % (vr(W + 4, 4), vMLR))
for w in range(4):
    A("ds_read_b64 %s, v%d offset:%d" % (vr(W + 8 + 2 * w, 2), vRBR, RBS * w))
A("v_mov_b32 v%d, 0" % (vT + 4))
fastcmp()
A("s_waitcnt lgkmcnt(4)")
A("v_max3_f32 v%d, v%d, v%d, v%d" % (vT, W, W + 2, W + 4))
A("v_max_f32 v%d, v%d, v%d" % (vT, vT, W + 6))
for w in range(4): A("v_sub_f32 v%d, v%d, v%d" % (W + 2 * w, W + 2 * w, vT))
for w in range(4): A("v_exp_f32 v%d, v%d" % (W + 2 * w, W + 2 * w))
A("v_mul_f32 v%d, v%d, v%d" % (vT + 1, W, W + 1))
for w in range(1, 4): A("v_fmac_f32 v%d, v%d, v%d" % (vT + 1, W + 2 * w, W + 2 * w + 1))
A("s_waitcnt lgkmcnt(0)")
A("v_pk_mul_f32 %s, %s, %s op_sel_hi:[1,0]" % (vr(W + 8, 2), vr(W + 8, 2), vr(W, 2)))
A("v_rcp_f32 v%d, v%d" % (vT + 2, vT + 1))
A("v_pk_fma_f32 %s, %s, %s, %s op_sel_hi:[1,0,1]" % (vr(W + 8, 2), vr(W + 10, 2), vr(W + 2, 2), vr(W + 8, 2)))
A("v_log_f32 v%d, v%d" % (vT + 5, vT + 1))
for w in range(2, 4):
    A("v_pk_fma_f32 %s, %s, %s, %s op_sel_hi:[1,0,1]" % (vr(W + 8, 2), vr(W + 8 + 2 * w, 2), vr(W + 2 * w, 2), vr(W + 8, 2)))
A("v_pk_mul_f32 %s, %s, %s op_sel_hi:[1,0]" % (vr(W + 8, 2), vr(W + 8, 2), vr(vT + 2, 2)))
A("v_add_f32 v%d, v%d, v%d" % (vT + 5, vT + 5, vT))
A("v_cvt_pk_bf16_f32 v%d, v%d, v%d" % (W + 8, W + 8, W + 9))
store_local("buffer_store_dword", "v%d" % (W + 8), vOST, sOS)
A("s_mov_b64 exec, 1")
store_local("buffer_store_dword", "v%d" % (vT + 5), vT + 4, sLS)
A("s_mov_b64 exec, -1")
STAMP(5)

C("wo phase: wave = batch, rows = key splits")
OF = W; LS = W + 32; DA = WQF
assert LSE_OFF[1] - O_OFF[1] == LSE_OFF[0] - O_OFF[0]
def io(k):
    for t in range(4):
        A("buffer_load_dwordx4 %s, v%d, %s, s%d offen offset:%d sc1" % (vr(OF + 16 * k + 4 * t, 4), [vLSE, vLS2, vOLD, vOLD][t], sr(sWS, 4), sOL, 512 * t))
A("s_cmp_lg_u32 s%d, 0" % sLAY)
A("s_cbranch_scc1 Lo_go")
C("first layer: wo tile landed -> fragments; every workgroup has announced its clears")
if WOP == 3: wo_issue()
A("s_waitcnt vmcnt(%d)" % (2 if WOP < 3 else 0))
STAMP(13)
A("s_mov_b32 s%d, %s" % (sT4, hx(SPIN)))
LB("Lap")
A("v_and_b32 v24, -8, v%d" % (FLG + 1))
A("v_cmp_ne_u32 vcc, s%d, v%d" % (sTG1, FLG))
A("v_cmp_ne_u32 %s, s%d, v24" % (sr(sH, 2), sTG2))
A("s_or_b64 vcc, vcc, %s" % sr(sH, 2))
A("s_cbranch_vccnz Lar")
LB("Lad")
lds_arrive(16, 24)
for i in range(2):
    A("v_lshlrev_b32 v%d, 16, v%d" % (W + 40 + 2 * i, RES + 2 + i))
    A("v_and_b32 v%d, 0xffff0000, v%d" % (W + 41 + 2 * i, RES + 2 + i))
for i in range(4): A("v_mov_b32 v%d, v%d" % (RES + i, W + 40 + i))
for ct in range(4): A("v_xor_b32 v%d, %d, v%d" % (W + 40 + ct, 32 * ct, vWT))
for ct in range(4): A("v_add_u32 v%d, %d, v%d" % (W + 40 + ct, L_WO, W + 40 + ct))
lds_spin(16, 4, 24)
STAMP(14)
A("s_mov_b32 s%d, 1" % sY)
LB("Lo_go")
A("s_mov_b32 s%d, 0x55555555" % sT4)
A("s_mov_b32 s%d, 0x55555555" % sT5)
def pre_o():
    A("s_cmp_eq_u32 s%d, 0" % sY)
    A("s_cbranch_scc1 Lo_nof")
    A("s_mov_b32 s%d, 0" % sY)
    for t in range(4):
        for ct in range(4):
            for hf in range(2):
                A("ds_read_b64_tr_b16 %s, v%d offset:%d" % (vr(WOF + 16 * ct + 4 * t + 2 * hf, 2), W + 40 + ct, 4096 * t + 512 * hf))
    LB("Lo_nof")
ool.append(["Lar:", "    s_lshl_b32 s%d, s%d, 10" % (sT5, sW), "    s_add_u32 s%d, s%d, %s" % (sT5, sT5, hx(FB)),
            "    buffer_load_dwordx4 %s, v%d, %s, s%d offen sc1" % (vr(FLG, 4), vL16, sr(sWS, 4), sT5),
            "    s_waitcnt vmcnt(0)", "    s_sub_u32 s%d, s%d, 1" % (sT4, sT4), "    s_cbranch_scc0 Lap", "    s_branch Lad"])
C("softmax over the 8 key splits: lanes n>=8 hold own lse in OF[0:3], the other four in OF[4:7]")
vU = vT + 2
def wo_all(k, t):
    o = OF + 16 * k
    m = [mf(DA + 4 * ct, o + 4 * t, WOF + 16 * ct + 4 * t, None if t == 0 else DA + 4 * ct) for ct in range(4)]
    va = ["v_max3_f32 v%d, v%d, v%d, v%d" % (vU, o, o + 1, o + 2), "v_max3_f32 v%d, v%d, v%d, v%d" % (vU + 1, o + 3, o + 4, o + 5),
          "v_max3_f32 v%d, v%d, v%d, v%d" % (vU, vU, o + 6, o + 7), "v_max_f32 v%d, v%d, v%d" % (vU, vU, vU + 1)]
    va += ["v_sub_f32 v%d, v%d, v%d" % (LS + i, o + i, vU) for i in range(4)]
    va += ["v_exp_f32 v%d, v%d" % (LS + i, LS + i) for i in range(4)]
    vb = ["v_mov_b32_dpp v%d, v%d row_ror:8 row_mask:0xf bank_mask:0x3" % (LS + i, LS + i) for i in range(4)]
    vb += ["v_add_f32 v%d, v%d, v%d" % (vU, LS, LS + 1), "v_add_f32 v%d, v%d, v%d" % (vU + 1, LS + 2, LS + 3),
           "v_add_f32 v%d, v%d, v%d" % (vU, vU, vU + 1), "v_mov_b32 v%d, v%d" % (vU + 1, vU)]
    f = {0: [], 1: va[:4], 2: va[4:], 3: vb}[t]
    out = ["s_waitcnt lgkmcnt(%d)" % [15, 15, 8, 0][t]] if t != 1 else []
    for x in m:
        out.append(x)
        for _ in range(2):
            if f: out.append(f.pop(0))
    return out
assert PROG and OGAP < 0
ppoll(io, lambda k: range(OF + 16 * k, OF + 16 * k + 16), 4, vT, None, pre=OPRE, gap=OGAP, mid=pre_o, tag=1, per_load=wo_all)
STAMP(7)
A("v_permlane16_swap_b32 v%d, v%d" % (vU, vU + 1))
A("v_mul_f32 v%d, v%d, v%d" % (DA, DA, LS))
A("v_add_f32 v%d, v%d, v%d" % (vT, vU, vU + 1))
A("v_mul_f32 v%d, v%d, v%d" % (DA + 4, DA + 4, LS))
A("v_rcp_f32 v%d, v%d" % (vT, vT))
A("v_mul_f32 v%d, v%d, v%d" % (DA + 8, DA + 8, LS))
for i in range(1, 4):
    for ct in range(3):
        A("v_fmac_f32 v%d, v%d, v%d" % (DA + 4 * ct, DA + 4 * ct + i, LS + i))
    if i == 1: A("v_mul_f32 v%d, v%d, v%d" % (DA + 12, DA + 12, LS))
for i in range(1, 4): A("v_fmac_f32 v%d, v%d, v%d" % (DA + 12, DA + 12 + i, LS + i))
A("v_permlane16_swap_b32 v%d, v%d" % (DA, DA + 4))
A("s_nop 0")
A("v_permlane16_swap_b32 v%d, v%d" % (DA + 8, DA + 12))
A("v_add_f32 v%d, v%d, v%d" % (DA, DA, DA + 4))
A("v_add_f32 v%d, v%d, v%d" % (DA + 8, DA + 8, DA + 12))
A("s_nop 1")
A("v_permlane32_swap_b32 v%d, v%d" % (DA, DA + 8))
A("v_mul_f32 v%d, v%d, v%d" % (DA, DA, vT))
A("s_cmp_lg_u32 s%d, 0" % sLAY)
A("s_nop 0")
A("v_mov_b32_dpp v%d, v%d quad_perm:[1,0,3,2] row_mask:0xf bank_mask:0xf" % (DA + 1, DA))
A("s_mov_b64 exec, %s" % sr(sT4, 2))
A("v_cvt_pk_bf16_f32 v%d, v%d, v%d" % (DA, DA, DA + 1))
A("buffer_store_dword v%d, v%d, %s, s%d offen sc1" % (DA, vPST, sr(sWS, 4), sPS))
A("s_mov_b64 exec, -1")
STAMP(8)
A("s_cbranch_scc1 Lfinal")
MP("p0")

if PRET == 1:
    C("same for the remaining lines of the group's mailboxes")
    soff(sT1, [(sM, 11), (sW, 9), (sJ, 17)], CLRB_OFF)
    A("v_lshlrev_b32 v21, 7, v%d" % vLANE)
    A("s_mov_b64 exec, 15")
    A("buffer_load_dword v%d, v21, %s, s%d offen sc1" % (W + 47, sr(sWS, 4), sT1))
    A("s_mov_b64 exec, -1")
A("s_cmp_lg_u32 s%d, 0" % sW)
A("s_cbranch_scc1 Ltab")
C("stage 1 (wave 0): reduce 32 head partials of 64 outputs, add residual, publish x1 slice")
soff(sT1, [(sA, 15), (sC, 12)], PB)
soff(sT2, [(sA, 10), (sC, 7), (sJ, 17)], X1_OFF)
A("s_mov_b32 s%d, 0x00ff00ff" % sT4)
A("s_mov_b32 s%d, 0" % sT5)
def ip(k):
    for i in range(4):
        A("buffer_load_dwordx4 %s, v%d, %s, s%d offen offset:%d sc1" % (vr(W + 20 * k + 4 * i, 4), vL16, sr(sWS, 4), sT1, 1024 * i))
if GW: A("s_waitcnt vmcnt(0)")
ppoll(ip, lambda k: range(W + 20 * k, W + 20 * k + 16), 4, vT, lambda k: [mf(W + 16, SEL, W + 20 * k + 4 * i, None if i == 0 else W + 16) for i in range(4)], pre=GPRE, gap=GGAP, tag=2,
      per_load=lambda k, i: [mf(W + 16, SEL, W + 20 * k + 4 * i, None if i == 0 else W + 16)])
STAMP(9)
MP("s1")
fastcmp()
NOP(3)
for i in range(4):
    A("v_add_f32_dpp v%d, v%d, v%d row_ror:8 row_mask:0xf bank_mask:0xf" % (W + 16 + i, W + 16 + i, W + 16 + i))
A("s_mov_b64 exec, %s" % sr(sT4, 2))
A("v_pk_add_f32 %s, %s, %s" % (vr(W + 16, 2), vr(W + 16, 2), vr(RES, 2)))
A("v_pk_add_f32 %s, %s, %s" % (vr(W + 18, 2), vr(W + 18, 2), vr(RES + 2, 2)))
A("v_cvt_pk_bf16_f32 v%d, v%d, v%d" % (W + 16, W + 16, W + 17))
A("v_cvt_pk_bf16_f32 v%d, v%d, v%d" % (W + 17, W + 18, W + 19))
store_local("buffer_store_dwordx2", vr(W + 16, 2), vX1S, sT2)
A("s_mov_b64 exec, -1")
LB("Ltabdone")
soff(sT3, [(sW, 10), (sJ, 17)], X1_OFF)
def ix(k):
    A("buffer_load_dwordx4 %s, v%d, %s, s%d offen sc1" % (vr([XR, RES][k], 4), vL16, sr(sWS, 4), sT3))
wqf_reads()
ppoll(ix, lambda k: range([XR, RES][k], [XR, RES][k] + 4), 1, vT, lambda k: ["s_waitcnt lgkmcnt(0)", "v_readfirstlane_b32 s%d, v%d" % (sT1, vT + 2)],
      pre=XPRE, gap=XGAP, mid=lambda: A("ds_read_b32 v%d, v%d offset:20" % (vT + 2, vFL)), tag=3,
      fix=["v_mov_b32 v%d, v%d" % (XR + i, RES + i) for i in range(4)])
A("s_cmp_lt_u32 s%d, 3" % sT1)
A("s_cbranch_scc1 Ltw")
LB("Ltwd")
STAMP(10)

LB("Lmix")
C("x <- x + g(LN(LN(x))) ; g is tabulated for every bf16 input in range, evaluated directly otherwise")
X = W; HB = W + 8; RT = W + 12; AD = W + 16; Y = W + 24
row_stats(XR, vT, X)
A("v_add_f32 v%d, %s, v%d" % (vT + 2, EPS, vT + 1))
A("v_rsq_f32 v%d, v%d" % (vT + 2, vT + 2))
A("v_mov_b32 v%d, %s" % (vT + 4, hx(LO2 | (LO2 << 16))))
A("s_movk_i32 s%d, %d" % (sT5, NENT * 4))
A("v_mul_f32 v%d, v%d, v%d" % (vT + 1, vT + 1, vT + 2))
A("v_fmaak_f32 v%d, v%d, v%d, %s" % (vT + 1, vT + 1, vT + 2, EPS))
A("v_rsq_f32 v%d, v%d" % (vT + 1, vT + 1))
A("s_nop 0")
A("v_mul_f32 v%d, v%d, v%d" % (vT + 2, vT + 2, vT + 1))
A("v_mul_f32 v%d, v%d, v%d" % (vT + 3, vT, vT + 2))
for i in range(4):
    A("v_pk_fma_f32 %s, %s, %s, %s op_sel:[0,0,1] op_sel_hi:[1,0,1] neg_lo:[0,0,1] neg_hi:[0,0,1]" % (vr(AD + 2 * i, 2), vr(X + 2 * i, 2), vr(vT + 2, 2), vr(vT + 2, 2)))
for i in range(4):
    A("v_cvt_pk_bf16_f32 v%d, v%d, v%d" % (HB + i, AD + 2 * i, AD + 2 * i + 1))
for i in range(4):
    A("v_pk_lshlrev_b16 v%d, 1, v%d op_sel_hi:[0,1]" % (RT + i, HB + i))
    A("v_pk_lshrrev_b16 v%d, 15, v%d op_sel_hi:[0,1]" % (AD + i, HB + i))
for i in range(4):
    A("v_or_b32 v%d, v%d, v%d" % (RT + i, RT + i, AD + i))
for i in range(4):
    A("v_pk_sub_u16 v%d, v%d, v%d" % (RT + i, RT + i, vT + 4))
for i in range(4):
    A("v_lshlrev_b32_sdwa v%d, 2, v%d dst_sel:DWORD dst_unused:UNUSED_PAD src0_sel:DWORD src1_sel:WORD_0" % (AD + 2 * i, RT + i))
    A("v_lshlrev_b32_sdwa v%d, 2, v%d dst_sel:DWORD dst_unused:UNUSED_PAD src0_sel:DWORD src1_sel:WORD_1" % (AD + 2 * i + 1, RT + i))
    A("ds_read_b32 v%d, v%d offset:%d" % (Y + 2 * i, AD + 2 * i, L_TAB))
    A("ds_read_b32 v%d, v%d offset:%d" % (Y + 2 * i + 1, AD + 2 * i + 1, L_TAB))
A("v_max3_u32 v%d, v%d, v%d, v%d" % (vT, AD, AD + 1, AD + 2))
A("v_max3_u32 v%d, v%d, v%d, v%d" % (vT + 1, AD + 3, AD + 4, AD + 5))
A("v_max3_u32 v%d, v%d, v%d, v%d" % (vT, vT, AD + 6, AD + 7))
A("v_max_u32 v%d, v%d, v%d" % (vT, vT, vT + 1))
A("v_cmp_le_u32 %s, s%d, v%d" % (sr(sH, 2), sT5, vT))
A("s_waitcnt lgkmcnt(5)")
A("v_max3_u32 v%d, v%d, v%d, v%d" % (vT, Y, Y + 1, Y + 2))
A("s_waitcnt lgkmcnt(2)")
A("v_max3_u32 v%d, v%d, v%d, v%d" % (vT + 1, Y + 3, Y + 4, Y + 5))
A("s_waitcnt lgkmcnt(0)")
A("v_max3_u32 v%d, v%d, v%d, v%d" % (vT, vT, Y + 6, Y + 7))
A("v_max_u32 v%d, v%d, v%d" % (vT, vT, vT + 1))
A("v_cmp_eq_u32 vcc, -1, v%d" % vT)
LB("Lslowdone")
for i in range(4):
    A("v_pk_add_f32 %s, %s, %s" % (vr(vT + 2 + 2 * i, 2), vr(X + 2 * i, 2), vr(Y + 2 * i, 2)))
A("s_or_b64 vcc, vcc, %s" % sr(sH, 2))
A("s_cbranch_vccnz Lslow")
A("s_cmp_lg_u32 s%d, 0" % sLAY)
for i in range(4):
    A("v_cvt_pk_bf16_f32 v%d, v%d, v%d" % (XR + i, vT + 2 + 2 * i, vT + 3 + 2 * i))
STAMP(11)
A("s_cbranch_scc1 Lout")
A("s_mov_b32 s%d, 1" % sLAY)
if TOT or MEAS: A("s_memrealtime s[100:101]")
if DIAG: A("v_mov_b32 v28, v30")
A("s_branch Llnq")

L.append(".p2align 6"); LB("Lst_fin"); A("s_setpc_b64 %s" % sr(sRET, 2)); stubs.append("fin")
LB("Lfinal")
A("s_cmp_ge_u32 s2, 4")
A("s_cbranch_scc1 Lepoch")
C("workgroup b: reduce the 32 head partials of row b, add x2, mixer, store")
soff(sT1, [(2, 15), (sW, 13)], PB + P_L)
A("s_add_u32 s%d, s%d, 4096" % (sT2, sT1))
A("s_mul_i32 s%d, s2, %d" % (sT0, XS))
A("s_lshl_b32 s%d, s%d, 8" % (sT3, sW))
A("s_add_u32 s%d, s%d, s%d" % (sT0, sT0, sT3))
A("s_add_u32 s%d, s%d, %d" % (sT0, sT0, L_X2))
A("v_add_u32 v%d, s%d, v%d" % (vT + 4, sT0, vX1S))
A("s_add_u32 s%d, s%d, %d" % (sT3, sT3, L_XN))
A("v_add_u32 v%d, s%d, v%d" % (vT + 5, sT3, vX1S))
A("ds_read_b64 %s, v%d" % (vr(PM, 2), vT + 4))
A("ds_read_b64 %s, v%d offset:128" % (vr(PM + 2, 2), vT + 4))
A("s_mov_b32 s%d, 0x00ff00ff" % sT4)
A("s_mov_b32 s%d, 0" % sT5)
if XENT:
    A("s_cmp_lg_u32 s%d, 3" % sW)
    A("s_cbranch_scc1 Lfn3")
    A("ds_read_b32 v%d, v%d offset:48" % (vT, vFL))
    A("s_waitcnt lgkmcnt(0)")
    A("v_readfirstlane_b32 s%d, v%d" % (sT0, vT))
    A("s_cmp_eq_u32 s%d, 0" % sT0)
    A("s_cbranch_scc1 Lfn3")
    A("s_mov_b32 s%d, %s" % (sCNT, hx(TB)))
    for i in range(XENT * 4 // 1024):
        A("buffer_load_dwordx4 %s, v%d, %s, s%d offen offset:%d sc1" % (vr(W + 4 * i, 4), vL16, sr(sWS, 4), sCNT, 1024 * i))
    A("v_add_u32 v%d, %d, v%d" % (vT + 6, L_TAB, vL16))
    A("s_waitcnt vmcnt(0)")
    for i in range(XENT * 4 // 1024):
        A("ds_write_b128 v%d, %s offset:%d" % (vT + 6, vr(W + 4 * i, 4), 1024 * i))
    LB("Lfn3")
A("s_waitcnt lgkmcnt(0)")
if GW: A("s_waitcnt vmcnt(0)")
for i in range(4):
    A("v_lshlrev_b32 v%d, 16, v%d" % (PM + 4 + 2 * i, PM + i))
    A("v_and_b32 v%d, 0xffff0000, v%d" % (PM + 5 + 2 * i, PM + i))
if "bias" in OPT:
    for i in range(8): A("v_add_f32 v%d, %s, v%d" % (PM + 4 + i, hx(f2u(float(OPT["bias"]))), PM + 4 + i))
FS = [KF, VF]
def ifin(k):
    for i in range(8):
        A("buffer_load_dwordx4 %s, v%d, %s, s%d offen offset:%d sc1" % (vr(FS[k] + 4 * i, 4), vL16, sr(sWS, 4), sT1 if i < 4 else sT2, 1024 * (i & 3)))
def fs(k):
    o = []
    for i in range(4):
        o.append(mf(W + 32, SEL, FS[k] + 4 * i, None if i == 0 else W + 32))
        o.append(mf(W + 36, SEL, FS[k] + 16 + 4 * i, None if i == 0 else W + 36))
    return o
ppoll(ifin, lambda k: range(FS[k], FS[k] + 32), 8, vT, fs, pre=GPRE, gap=GGAP, tag=2,
      per_load=lambda k, i: [mf(W + 32 + 4 * (i >> 2), SEL, FS[k] + 4 * i, None if (i & 3) == 0 else W + 32 + 4 * (i >> 2))])
STAMP(9)
NOP(2)
for i in range(8):
    A("v_add_f32_dpp v%d, v%d, v%d row_ror:8 row_mask:0xf bank_mask:0xf" % (W + 32 + i, W + 32 + i, W + 32 + i))
A("s_mov_b64 exec, %s" % sr(sT4, 2))
for i in range(4):
    A("v_pk_add_f32 %s, %s, %s" % (vr(W + 32 + 2 * i, 2), vr(W + 32 + 2 * i, 2), vr(PM + 4 + 2 * i, 2)))
for i in range(4):
    A("v_cvt_pk_bf16_f32 v%d, v%d, v%d" % (W + 32 + i, W + 32 + 2 * i, W + 33 + 2 * i))
A("ds_write_b64 v%d, %s" % (vT + 5, vr(W + 32, 2)))
A("ds_write_b64 v%d, %s offset:128" % (vT + 5, vr(W + 34, 2)))
A("s_mov_b64 exec, -1")
A("s_cmp_lg_u32 s%d, 0" % sW)
A("s_waitcnt lgkmcnt(0)")
A("s_barrier")
A("s_cbranch_scc1 Lfin_exit")
A("ds_read_b128 %s, v%d" % (vr(XR, 4), vXNW))
A("s_waitcnt lgkmcnt(0)")
STAMP(10)
A("s_branch Lmix")
L.append(".p2align 6"); LB("Lst_out"); A("s_setpc_b64 %s" % sr(sRET, 2)); stubs.append("out")
LB("Lout")
A("s_lshl_b32 s%d, s2, 10" % sT0)
A("buffer_store_dwordx4 %s, v%d, %s, s%d offen" % (vr(XR, 4), vL16, sr(sOUT, 4), sT0))
if DBL:
    A("s_cmp_lg_u32 s2, 0")
    A("s_cbranch_scc1 Lfin_exit")
if DBL:
    A("s_waitcnt vmcnt(0)")
    A("s_memrealtime s[10:11]")
    A("s_waitcnt lgkmcnt(0)")
    A("s_sub_u32 s12, s10, s98")
    if "pad" in OPT:
        A("s_mov_b32 s10, s98"); A("s_mov_b32 s12, %d" % (100 * int(OPT["pad"])))
    LB("Ldbl")
    A("s_memrealtime s[14:15]")
    A("s_waitcnt lgkmcnt(0)")
    A("s_sub_u32 s13, s14, s10")
    A("s_cmp_lt_u32 s13, s12")
    A("s_cbranch_scc1 Ldbl")
LB("Lfin_exit")
if MEAS:
    src = {"mix": "s100", "entry": "s98"}.get(OPT["q"], "s98" if OPT["q"][0] == "h" else "s97")
    A("s_waitcnt vmcnt(0) lgkmcnt(0)")
    if OPT["q"] == "end":
        A("s_memrealtime s[42:43]"); A("s_waitcnt lgkmcnt(0)"); src = "s42"
    LB("Lms0")
    A("s_memrealtime s[14:15]"); A("s_waitcnt lgkmcnt(0)"); A("s_sub_u32 s13, s14, s98"); A("s_cmp_lt_u32 s13, 1600"); A("s_cbranch_scc1 Lms0")
    A("s_mov_b64 exec, 1")
    A("v_mov_b32 v16, %s" % src)
    A("s_not_b32 s10, s98")
    A("v_mov_b32 v17, s10")
    A("global_atomic_umax v[30:31], v16, off sc1")
    A("global_atomic_umax v[30:31], v17, off offset:128 sc1")
    A("s_or_b32 s10, s2, s%d" % sW)
    A("s_cmp_lg_u32 s10, 0")
    A("s_cbranch_scc1 Lend")
    LB("Lms1")
    A("s_memrealtime s[14:15]"); A("s_waitcnt lgkmcnt(0)"); A("s_sub_u32 s13, s14, s98"); A("s_cmp_lt_u32 s13, 4000"); A("s_cbranch_scc1 Lms1")
    A("global_load_dword v16, v[30:31], off sc1")
    A("global_load_dword v17, v[30:31], off offset:128 sc1")
    A("s_waitcnt vmcnt(0)")
    A("v_readfirstlane_b32 s10, v16"); A("v_readfirstlane_b32 s11, v17")
    A("s_not_b32 s11, s11"); A("s_sub_u32 s10, s10, s11"); A("s_lshl_b32 s10, s10, 2"); A("s_add_u32 s12, s10, 4200")
    A("s_min_u32 s12, s12, 20000")
    LB("Lms2")
    A("s_memrealtime s[14:15]"); A("s_waitcnt lgkmcnt(0)"); A("s_sub_u32 s13, s14, s98"); A("s_cmp_lt_u32 s13, s12"); A("s_cbranch_scc1 Lms2")
if TOT:
    A("s_waitcnt vmcnt(0)")
    A("s_memrealtime s[10:11]")
    A("s_waitcnt lgkmcnt(0)")
    A("v_mov_b32 v16, s98")
    A("v_mov_b32 v17, s10")
    A("v_mov_b32 v18, s100")
    A("v_mov_b32 v19, s97")
    soff(sT2, [(2, 6), (sW, 4)], STB)
    A("v_mov_b32 v20, 0")
    A("s_mov_b64 exec, 1")
    A("buffer_store_dwordx4 v[16:19], v20, %s, s%d offen" % (sr(sWS, 4), sT2))
if DIAG:
    A("s_waitcnt vmcnt(0)")
    STAMP(12)
    if DIAG == 2:
        A("s_or_b32 s%d, s2, s%d" % (sT0, sW))
        A("s_cmp_lg_u32 s%d, 0" % sT0)
        A("s_cbranch_scc1 Lend")
        A("v_readlane_b32 s%d, v28, 0" % sT2)
        for k, (r, i) in enumerate([(31, 10), (31, 12), (28, 1), (28, 2), (28, 6), (28, 5), (28, 7), (28, 8), (28, 9), (28, 10), (28, 11), (30, 3), (30, 5), (30, 8), (30, 9), (30, 12)]):
            A("v_readlane_b32 s%d, v%d, %d" % (sT3, r, i))
            A("s_sub_u32 s%d, s%d, s%d" % (sT3, sT3, sT2))
            A("s_nop 0")
            A("v_writelane_b32 v17, s%d, %d" % (sT3, k))
        A("v_lshlrev_b32 v16, 2, v%d" % vLANE)
        A("s_mov_b64 exec, 0xffff")
        A("global_store_dword v16, v17, s[100:101]")
        A("s_endpgm")
    soff(sT1, [(2, 10), (sW, 7)], STB)
    A("v_lshlrev_b32 v16, 2, v%d" % vLANE)
    A("s_mov_b64 exec, 0xffff")
    A("buffer_store_dword v28, v16, %s, s%d offen" % (sr(sWS, 4), sT1))
    A("buffer_store_dword v30, v16, %s, s%d offen offset:64" % (sr(sWS, 4), sT1))
    A("s_add_u32 s%d, s%d, 0x40000" % (sT1, sT1))
    A("buffer_store_dword v31, v16, %s, s%d offen" % (sr(sWS, 4), sT1))
LB("Lend")
A("s_endpgm")
LB("Lepoch")
if int(OPT.get("wb", 0)):
    A("s_cmp_lg_u32 s%d, 0" % sW)
    A("s_cbranch_scc1 Lnowb")
    A("s_waitcnt vmcnt(0)")
    A("buffer_wbl2 sc1")
    LB("Lnowb")
C("every workgroup has used the old launch tag long ago: workgroup 4 advances it")
A("s_lshl_b32 s%d, s%d, 8" % (sT0, sW))
A("s_add_u32 s%d, s%d, s2" % (sT0, sT0))
A("s_cmp_lg_u32 s%d, 4" % sT0)
A("s_cbranch_scc1 Lfin_exit")
A("v_mov_b32 v16, s%d" % sTG1)
A("v_mov_b32 v17, %s" % hx(EPO))
A("s_mov_b64 exec, 1")
A("buffer_store_dword v16, v17, %s, 0 offen sc1" % sr(sWS, 4))
A("s_mov_b64 exec, -1")
A("s_branch Lfin_exit")

L.append(".p2align 6"); LB("Lst_tab"); A("s_setpc_b64 %s" % sr(sRET, 2)); stubs.append("tab")
LB("Ltab")
C("waves 2,3: gather the main part of the g(h) table into LDS ; wave 1: the lowest octaves, best effort")
NTL = NOCT * 1024 // 2 // 1024
A("s_cmp_eq_u32 s%d, 1" % sW)
A("s_cbranch_scc1 Lext")
A("s_sub_u32 s%d, s%d, 2" % (sT1, sW))
A("s_mul_i32 s%d, s%d, %d" % (sT1, sT1, NTL * 1024))
A("s_add_u32 s%d, s%d, %d" % (sT1, sT1, XENT * 4))
A("v_add_u32 v%d, s%d, v%d" % (vT + 4, sT1, vL16))
A("v_add_u32 v%d, %d, v%d" % (vT + 4, L_TAB, vT + 4))
A("s_add_u32 s%d, s%d, %s" % (sT1, sT1, hx(TB)))
A("s_add_u32 s%d, s%d, 4096" % (sT2, sT1))
if TGW: A("s_waitcnt vmcnt(0)")
def it():
    for i in range(NTL):
        A("buffer_load_dwordx4 %s, v%d, %s, s%d offen offset:%d sc1" % (vr(W + 4 * i, 4), vL16, sr(sWS, 4), sT1 if i < 4 else sT2, 1024 * (i & 3)))
poll(it, range(W, W + 4 * NTL), vT, back="s_sleep %d" % int(OPT.get("tsl", 16)))
for i in range(NTL):
    A("ds_write_b128 v%d, %s offset:%d" % (vT + 4, vr(W + 4 * i, 4), 1024 * i))
A("s_waitcnt lgkmcnt(0)")
lds_arrive(20, vT + 4)
STAMP(9)
MP("tg")
A("s_branch Ltabdone")
def ext_load(d):
    for i in range(XENT * 4 // 1024):
        A("buffer_load_dwordx4 %s, v%d, %s, s%d offen offset:%d sc1" % (vr(d + 4 * i, 4), vL16, sr(sWS, 4), sT4, 1024 * i))
def ext_write(d):
    for i in range(XENT * 4 // 1024):
        A("ds_write_b128 v%d, %s offset:%d" % (vT + 4, vr(d + 4 * i, 4), 1024 * i))
LB("Lext")
if XENT:
    A("s_mov_b32 s%d, %s" % (sT4, hx(TB)))
    A("v_add_u32 v%d, %d, v%d" % (vT + 4, L_TAB, vL16))
    for i in range(4): A("v_mov_b32 v%d, -1" % (W + i))
    for i in range(XENT * 4 // 1024):
        A("ds_write_b128 v%d, %s offset:%d" % (vT + 4, vr(W, 4), 1024 * i))
    A("ds_write_b32 v%d, v%d offset:48" % (vFL, W))
    A("s_waitcnt lgkmcnt(0)")
lds_arrive(20, vT + 5)
if XENT:
    C("one look at the lowest octaves, skipped when x1 is already there")
    soff(sT3, [(sW, 10), (sJ, 17)], X1_OFF)
    A("s_waitcnt vmcnt(0)")
    A("buffer_load_dwordx4 %s, v%d, %s, s%d offen sc1" % (vr(XR, 4), vL16, sr(sWS, 4), sT3))
    A("s_waitcnt vmcnt(0)")
    for x in maxtree(range(XR, XR + 4), vT): A(x)
    A("v_cmp_eq_u32 vcc, -1, v%d" % vT)
    A("s_cbranch_vccz Lexx")
    A("s_mov_b32 s%d, %d" % (sCNT, int(OPT.get("xlk", 2)) - 1))
    LB("Lexl")
    A("buffer_load_dwordx4 %s, v%d, %s, s%d offen sc1" % (vr(XR, 4), vL16, sr(sWS, 4), sT3))
    if "l" in OPT.get("xs", ""): A("s_branch Ltabdone")
    ext_load(W + 32)
    A("s_waitcnt vmcnt(4)")
    for x in maxtree(range(XR, XR + 4), vT): A(x)
    A("v_cmp_eq_u32 vcc, -1, v%d" % vT)
    A("s_cbranch_vccz Lexx")
    A("s_waitcnt vmcnt(0)")
    ext_write(W + 32)
    for x in maxtree(range(W + 32, W + 48), vT): A(x)
    A("v_cmp_eq_u32 vcc, -1, v%d" % vT)
    A("s_cbranch_vccz Lexc")
    A("s_sub_u32 s%d, s%d, 1" % (sCNT, sCNT))
    A("s_cbranch_scc0 Lexl")
    A("s_branch Ltabdone")
    LB("Lexc")
    A("v_mov_b32 v%d, 0" % vT)
    A("ds_write_b32 v%d, v%d offset:48" % (vFL, vT))
    A("s_branch Ltabdone")
    LB("Lexx")
    wqf_reads()
    A("s_branch Ltw")
else:
    A("s_branch Ltabdone")
LB("Ltw")
lds_spin(20, 3, vT + 2)
A("s_branch Ltwd")

for b in ool: L += b
ool = []
LB("Lslow")
C("rare: some h lies outside the table -> evaluate g(h) directly for those lanes")
RW1 = [W + 32 + i for i in range(14)]
RB1 = [PM + i for i in range(14)]
RW2 = [16 + i for i in range(10)] + [W + 46, W + 47, PM + 14, PM + 15]
A("v_lshlrev_b32 v26, 3, v%d" % vLANE)
A("s_load_dword s%d, %s, 0" % (sB2, sr(sB2P, 2)))
for (d4, d2, s) in [([W + 32, W + 36, W + 40], W + 44, sW1), ([PM, PM + 4, PM + 8], PM + 12, sB1)]:
    for k in range(3):
        A("buffer_load_dwordx4 %s, v%d, %s, 0 offen offset:%d" % (vr(d4[k], 4), vL16, sr(s, 4), 1024 * k))
    A("buffer_load_dwordx2 %s, v26, %s, 0 offen offset:3072" % (vr(d2, 2), sr(s, 4)))
A("buffer_load_dwordx4 v[16:19], v%d, %s, 0 offen" % (vL16, sr(sW2, 4)))
A("buffer_load_dwordx4 v[20:23], v%d, %s, 0 offen offset:1024" % (vL16, sr(sW2, 4)))
A("buffer_load_dwordx2 v[24:25], v%d, %s, 0 offen offset:2048" % (vL16, sr(sW2, 4)))
A("buffer_load_dwordx2 %s, v%d, %s, 0 offen offset:2056" % (vr(W + 46, 2), vL16, sr(sW2, 4)))
A("buffer_load_dwordx2 %s, v26, %s, 0 offen offset:3072" % (vr(PM + 14, 2), sr(sW2, 4)))
A("s_waitcnt vmcnt(0) lgkmcnt(0)")
A("s_lshl_b32 s%d, s%d, 16" % (sB2, sB2))
A("s_mov_b32 s%d, 1" % sT4)
for e in range(8):
    A("v_cmp_le_u32 vcc, %d, v%d" % (NENT * 4, AD + e))
    A("v_cmp_eq_u32 %s, -1, v%d" % (sr(sH2, 2), Y + e))
    A("s_or_b64 %s, %s, vcc" % (sr(sH2, 2), sr(sH2, 2)))
    if e & 1: A("v_and_b32 v%d, 0xffff0000, v%d" % (RT + 3, HB + (e >> 1)))
    else: A("v_lshlrev_b32 v%d, 16, v%d" % (RT + 3, HB + (e >> 1)))
    LB("Lse%d" % e)
    A("s_cmp_eq_u64 %s, 0" % sr(sH2, 2))
    A("s_cbranch_scc1 Lsf%d" % e)
    A("s_ff1_i32_b64 s%d, %s" % (sT0, sr(sH2, 2)))
    A("s_nop 0")
    A("v_readlane_b32 s%d, v%d, s%d" % (sH, RT + 3, sT0))
    A("s_cmp_eq_u32 s%d, s%d" % (sH, sT4))
    A("s_cbranch_scc1 Lsg%d" % e)
    A("s_mov_b32 s%d, s%d" % (sT4, sH))
    A("s_call_b64 %s, Lgev" % sr(sRET, 2))
    LB("Lsg%d" % e)
    A("s_nop 1")
    A("v_cmp_eq_u32 vcc, s%d, v%d" % (sH, RT + 3))
    A("v_mov_b32 v%d, s%d" % (RES + 3, sY))
    A("s_andn2_b64 %s, %s, vcc" % (sr(sH2, 2), sr(sH2, 2)))
    A("v_cndmask_b32 v%d, v%d, v%d, vcc" % (Y + e, Y + e, RES + 3))
    A("s_branch Lse%d" % e)
    LB("Lsf%d" % e)
for i in range(16): A("v_mov_b32 v%d, 0" % (PM + i))
A("s_mov_b64 vcc, 0")
A("s_mov_b64 %s, 0" % sr(sH, 2))
A("s_branch Lslowdone")
LB("Lgev")
a, u, t1, z = RES, RES + 1, RES + 2, RT
A("v_mov_b32 v%d, 0" % a)
A("v_mov_b32 v%d, %s" % (RT + 1, hx(f2u(K0))))
A("v_mov_b32 v%d, %s" % (RT + 2, hx(f2u(K1))))
for p in range(14):
    for hf in range(2):
        def un(d, s):
            if hf == 0: A("v_lshlrev_b32 v%d, 16, v%d" % (d, s))
            else: A("v_and_b32 v%d, 0xffff0000, v%d" % (d, s))
        un(u, RW1[p]); un(t1, RB1[p]); un(z, RW2[p])
        A("v_fma_f32 v%d, v%d, s%d, v%d" % (u, u, sH, t1))
        A("v_mul_f32 v%d, v%d, v%d" % (t1, u, u))
        A("v_fma_f32 v%d, v%d, v%d, v%d" % (t1, t1, RT + 2, RT + 1))
        A("v_mul_f32 v%d, v%d, v%d" % (t1, t1, u))
        A("v_exp_f32 v%d, v%d" % (t1, t1))
        A("v_mul_f32 v%d, v%d, v%d" % (z, z, u))
        A("v_add_f32 v%d, 1.0, v%d" % (t1, t1))
        A("v_rcp_f32 v%d, v%d" % (t1, t1))
        A("s_nop 0")
        A("v_fmac_f32 v%d, v%d, v%d" % (a, z, t1))
A("v_mov_b32 v%d, v%d" % (u, a))
A("s_nop 1")
wave_sum2(a, u, sY, sT1)
A("s_nop 1")
A("v_mov_b32 v%d, s%d" % (a, sY))
A("v_cvt_pk_bf16_f32 v%d, v%d, v%d" % (a, a, a))
A("v_and_b32 v%d, 0xffff0000, v%d" % (a, a))
A("v_add_f32 v%d, s%d, v%d" % (a, sB2, a))
A("v_cvt_pk_bf16_f32 v%d, v%d, v%d" % (a, a, a))
A("v_and_b32 v%d, 0xffff0000, v%d" % (a, a))
A("s_nop 0")
A("v_readfirstlane_b32 s%d, v%d" % (sY, a))
A("s_nop 3")
A("s_setpc_b64 %s" % sr(sRET, 2))

for b in ool: L += b
A("s_endpgm")
L.append(".p2align 8")
L.append(".fill %d, 4, 0xBF800000" % (64 if DIAG else 512))
L.append('''.section .rodata,"a"
.p2align 6
.amdhsa_kernel %s_kernel
  .amdhsa_next_free_vgpr 256
  .amdhsa_next_free_sgpr 102
  .amdhsa_accum_offset 256
  .amdhsa_group_segment_fixed_size 0
  .amdhsa_kernarg_size 104
  .amdhsa_user_sgpr_count 2
  .amdhsa_user_sgpr_kernarg_segment_ptr 1
  .amdhsa_system_sgpr_workgroup_id_x 1
.end_amdhsa_kernel''' % NAME)
open(OUTF, "w").write("\n".join(x for x in L if x is not None) + "\n")
print("wrote", OUTF, "lines", len(L), "LDS", LDS_SZ)
```

```python
import sys, struct, math

NAME = "interleave_layers__sliding_block_cached__mixer_token_mlp__decode"
OUTF = sys.argv[1] if len(sys.argv) > 1 else "cdna_kernels/%s.s" % NAME
DIAG = int(sys.argv[2]) if len(sys.argv) > 2 else 0
DBL = 0
if DIAG == 3: DIAG = 0; DBL = 1
MEAS = 0
if DIAG == 5: DIAG = 0; MEAS = 1
TOT = 0
if DIAG == 4: DIAG = 0; TOT = 1
OPT = dict(a.split("=") for a in sys.argv[3:])
DEPTH = int(OPT.get("depth", 8))
D0 = int(OPT.get("d0", 2))
D1 = int(OPT.get("d1", 4))
DC = int(OPT.get("dc", 3))
TAILI = int(OPT.get("taili", 11))
TAILD = int(OPT.get("taild", 8))
QV = int(OPT.get("qv", 3))
PRET = int(OPT.get("pret", 1))
GW = int(OPT.get("gw", 1))
GPRE = int(OPT.get("gpre", 0))
GGAP = int(OPT.get("ggap", -1))
WARM = int(OPT.get("warm", 1))
QPRE = int(OPT.get("qpre", -1)); QGAP = int(OPT.get("qgap", -1))
OPRE = int(OPT.get("opre", -1)); OGAP = int(OPT.get("ogap", -1))
XPRE = int(OPT.get("xpre", -1)); XGAP = int(OPT.get("xgap", -1))
FINE = OPT.get("fine", "")
QS = int(OPT.get("qs", 0))
ADP = int(OPT.get("adp", 0))
ROT = int(OPT.get("rot", 1)); VROT = int(OPT.get("vrot", 0))
WROT = int(OPT.get("wrot", 1))
WOP = int(OPT.get("wop", 0))
ECO = int(OPT.get("eco", 0))
XDL = int(OPT.get("xdl", 256))
QBD = int(OPT.get("qbd", 0))
VLATE = int(OPT.get("vlate", 1))
QV2 = int(OPT.get("qv2", 0))
PROG = int(OPT.get("prog", 1))
SLC = int(OPT.get("slc", 0)); D2 = int(OPT.get("d2", 8))
HFIRST = int(OPT.get("hfirst", 0))
QT = int(OPT.get("qt", 0))
DRY = int(OPT.get("dry", 0))
HP = int(OPT.get("hp", 0))
NOCT = int(OPT.get("noct", 16))
QPOS = int(OPT.get("qpos", 1))
QPOS2 = int(OPT.get("qpos2", 7))

def f2u(x): return struct.unpack("<I", struct.pack("<f", x))[0]
def hx(x): return "0x%08x" % (x & 0xffffffff)

L = []
def A(s): L.append("    " + s)
def LB(s): L.append(s + ":")
def C(s): L.append("    ; " + s)
def vr(a, n): return "v[%d:%d]" % (a, a + n - 1)
def sr(a, n): return "s[%d:%d]" % (a, a + n - 1)
def NOP(n):
    while n > 0:
        k = min(n, 16); A("s_nop %d" % (k - 1)); n -= k

XOCT = int(OPT.get('xoct', 4))
ELO = int(OPT.get('elo', 130 - NOCT - XOCT))
LO2 = (ELO << 7) * 2
NENT = (NOCT + XOCT) * 256
XENT = XOCT * 256
assert XENT in (0, 1024)
EPW = NOCT * 256 // 256 // 4 // 2
GRS = 0x20000
O_OFF = [0x0000, 0xC400]; LSE_OFF = [0x8000, 0x14400]; Q1_OFF = 0x8400; X1_OFF = 0x14600
CLRA_PER = 1040
CLRB_OFF = 0x8400; CLRB_PER = 1680
Q0_OFF = 0x18000
EPO = 0x17f00
PB = 0x100000; P_L = 0x20000
TB = 0x140000; FB = 0x148000
QB_DELTA = 0x200000
STB = 0x300000
WS_SZ = 0x400000 if "dump" not in OPT else 0x2000000
L_WQ = 12288; L_K = L_WQ + 16384; L_V = L_K + 32768
L_WO = L_K + 16384
L_TAB = L_V
L_XN = L_V + 32768; XS = 1056
L_X2 = L_XN + 4 * XS
L_FLG = L_X2 + 4 * XS
L_RB = L_K; RBS = 2048 + 64; L_ML = L_K + 4 * RBS
L_QF = L_X2
LDS_SZ = int(OPT.get("lds", L_FLG + 64))
SPIN = 0x40000
K0 = -2.0 * math.sqrt(2.0 / math.pi) * math.log2(math.e)
K1 = K0 * 0.044715
EPS = hx(f2u(1e-5))

sTG1, sTG2 = 0, 1
sW, sJ, sA, sC, sGR, sLAY, sFAST = 3, 4, 5, 6, 7, 8, 9
sT0, sT1, sT2, sT3, sT4, sT5 = 10, 11, 12, 13, 14, 15
sCNT = 16
sQL, sQS, sOL, sOS, sLL, sLS, sPS = 17, 18, 19, 20, 21, 22, 23
sSC, sIT = 24, 25
sSUM, sSQ = 26, 27
sH, sH2, sRET, sMSK = 28, 30, 32, 34
sB2, sY, sXCC, sE = 36, 37, 38, 39
sB2P = 40
sK, sV, sWQ, sWO, sWS, sX, sOUT, sW1, sB1, sW2 = 44, 48, 52, 56, 60, 64, 68, 72, 76, 80
sKO, sKL, sVO, sVL = 84, 85, 86, 87
sPM = 88
sHC, sHT = 84, 85

def STAMP(i):
    if DIAG:
        A("s_memrealtime s[42:43]"); A("s_waitcnt lgkmcnt(0)")
        A("v_writelane_b32 v30, s42, %d" % i)

def CST(i):
    if DIAG == 1 and FINE:
        A("s_memtime s[42:43]"); A("s_waitcnt lgkmcnt(0)")
        A("v_writelane_b32 v31, s42, %d" % i)

vLANE = 1
vL16, vQST, vOST, vOLD, vPST, vX1S, vXNW, vXNR, vRBW, vRBR, vMLW, vMLR, vLSE, vZ = range(2, 16)
vT = 16
vWT, vFL = 28, 29
vLS2 = 27
KF, VF, WQF, WOF, SEL, ONES = 32, 64, 96, 112, 176, 180
W = 184
PM = 232
XR = 248
RES = 252

def srd(s, nbytes):
    A("s_mov_b32 s%d, %s" % (s + 2, hx(nbytes))); A("s_mov_b32 s%d, 0x00020000" % (s + 3))

def soff(dst, terms, const):
    first = True
    for (src, sh) in terms:
        if first: A("s_lshl_b32 s%d, s%d, %d" % (dst, src, sh)); first = False
        else:
            A("s_lshl_b32 s%d, s%d, %d" % (sT0, src, sh)); A("s_add_u32 s%d, s%d, s%d" % (dst, dst, sT0))
    if const: A("s_add_u32 s%d, s%d, %s" % (dst, dst, hx(const)))

def wave_sum2(a, b, sa, sb):
    for ctl in ["row_ror:8", "row_ror:4", "row_ror:2", "row_ror:1"]:
        A("v_add_f32_dpp v%d, v%d, v%d %s row_mask:0xf bank_mask:0xf" % (a, a, a, ctl))
        A("v_add_f32_dpp v%d, v%d, v%d %s row_mask:0xf bank_mask:0xf" % (b, b, b, ctl))
        A("s_nop 0")
    for ctl in ["row_bcast:15 row_mask:0xa", "row_bcast:31 row_mask:0xc"]:
        A("v_add_f32_dpp v%d, v%d, v%d %s bank_mask:0xf" % (a, a, a, ctl))
        A("v_add_f32_dpp v%d, v%d, v%d %s bank_mask:0xf" % (b, b, b, ctl))
        A("s_nop 0")
    A("v_readlane_b32 s%d, v%d, 63" % (sa, a))
    A("v_readlane_b32 s%d, v%d, 63" % (sb, b))

def row_stats(x, t, unp):
    A("v_dot2_f32_bf16 v%d, v%d, v%d, 0" % (t, x, ONES))
    A("v_dot2_f32_bf16 v%d, v%d, v%d, 0" % (t + 1, x, x))
    for i in range(1, 4):
        A("v_dot2_f32_bf16 v%d, v%d, v%d, v%d" % (t, x + i, ONES, t))
        A("v_dot2_f32_bf16 v%d, v%d, v%d, v%d" % (t + 1, x + i, x + i, t + 1))
    un = []
    for i in range(4):
        un.append("v_lshlrev_b32 v%d, 16, v%d" % (unp + 2 * i, x + i))
        un.append("v_and_b32 v%d, 0xffff0000, v%d" % (unp + 2 * i + 1, x + i))
    for k in range(3): A(un.pop(0))
    a, b = t, t + 1
    for ctl in ["row_ror:8 row_mask:0xf", "row_ror:4 row_mask:0xf", "row_ror:2 row_mask:0xf", "row_ror:1 row_mask:0xf", "row_bcast:15 row_mask:0xa", "row_bcast:31 row_mask:0xc"]:
        A("v_add_f32_dpp v%d, v%d, v%d %s bank_mask:0xf" % (a, a, a, ctl))
        A("v_add_f32_dpp v%d, v%d, v%d %s bank_mask:0xf" % (b, b, b, ctl))
        A(un.pop(0) if un else "s_nop 0")
    A("v_readlane_b32 s%d, v%d, 63" % (sSUM, a))
    A("v_readlane_b32 s%d, v%d, 63" % (sSQ, b))
    A("s_nop 0")
    A("v_mul_f32 v%d, s%d, v%d" % (t, sSUM, vZ))
    A("v_mul_f32 v%d, s%d, v%d" % (t + 1, sSQ, vZ))
    A("v_fma_f32 v%d, -v%d, v%d, v%d" % (t + 1, t, t, t + 1))
    A("v_max_f32 v%d, 0, v%d" % (t + 1, t + 1))

ool = []
uid = [0]
def maxtree(regs, tmp):
    r = list(regs); out = []
    out.append("v_max3_u32 v%d, v%d, v%d, v%d" % (tmp, r[0], r[1], r[2])); r = r[3:]
    if len(r) >= 5:
        out.append("v_max3_u32 v%d, v%d, v%d, v%d" % (tmp + 1, r[0], r[1], r[2])); r = r[3:]
        d = 0
        while len(r) >= 2:
            out.append("v_max3_u32 v%d, v%d, v%d, v%d" % (tmp + d, tmp + d, r[0], r[1])); r = r[2:]; d ^= 1
        if r: out.append("v_max3_u32 v%d, v%d, v%d, v%d" % (tmp, tmp, tmp + 1, r[0]))
        else: out.append("v_max_u32 v%d, v%d, v%d" % (tmp, tmp, tmp + 1))
    else:
        while len(r) >= 2:
            out.append("v_max3_u32 v%d, v%d, v%d, v%d" % (tmp, tmp, r[0], r[1])); r = r[2:]
        if r: out.append("v_max_u32 v%d, v%d, v%d" % (tmp, tmp, r[0]))
    return out

def poll(issue, regs, tmp, pre_wait=None, spec=None, back="s_nop 7", tag=None, stub=None):
    uid[0] += 1; u = uid[0]
    A("s_mov_b32 s%d, %s" % (sCNT, hx(SPIN)))
    LB("Lp%d" % u)
    issue()
    if pre_wait: pre_wait()
    A("s_waitcnt vmcnt(0)")
    mt = maxtree(regs, tmp) + ["v_cmp_eq_u32 vcc, -1, v%d" % tmp]
    spec = list(spec or [])
    ns = len(spec)
    per = -(-len(mt) // ns) if ns else 0
    for s in spec:
        A(s)
        for k in range(per):
            if mt: A(mt.pop(0))
    for m in mt: A(m)
    A("s_cbranch_vccz Ld%d" % u)
    A("s_sub_u32 s%d, s%d, 1" % (sCNT, sCNT))
    if back != "s_nop 7": A(back)
    A("s_cbranch_scc0 Lp%d" % u)
    if stub: touch_stub(stub)
    LB("Ld%d" % u)
    if DIAG and tag is not None:
        A("s_lshl_b32 m0, s%d, 2" % sLAY); A("s_add_u32 m0, m0, %d" % tag); A("s_nop 0")
        A("v_writelane_b32 v31, s%d, m0" % sCNT)

stubs = []
def touch_stub(name, branch_over=None):
    A("s_branch Lsk_%s" % name)
    L.append(".p2align 6")
    LB("Lst_%s" % name)
    A("s_setpc_b64 %s" % sr(sRET, 2))
    LB("Lsk_%s" % name)
    stubs.append(name)

def delay(cyc):
    if cyc == -1:
        A("s_waitcnt vmcnt(0)"); return
    while cyc >= 64:
        k = min(cyc // 64, 15); A("s_sleep %d" % k); cyc -= 64 * k
    if cyc >= 8: A("s_nop %d" % min(15, cyc // 4 - 1))

def ppoll(issue, regs, n, tmp, spec, pre=0, gap=128, mid=None, tag=None, fix=None, stub=None, lanes=None, per_load=None):
    uid[0] += 1; u = uid[0]
    def look(k):
        if per_load and PROG and gap < 0:
            r = list(regs(k)); out = []
            for i in range(n):
                out.append("s_waitcnt vmcnt(%d)" % (n - 1 - i))
                sp = list(per_load(k, i))
                ck = ["v_max3_u32 v%d, v%d, v%d, v%d" % (tmp + 1, r[4 * i], r[4 * i + 1], r[4 * i + 2]),
                      ("v_max_u32 v%d, v%d, v%d" % (tmp, tmp + 1, r[4 * i + 3])) if i == 0 else ("v_max3_u32 v%d, v%d, v%d, v%d" % (tmp, tmp, tmp + 1, r[4 * i + 3]))]
                while sp or ck:
                    if sp: out.append(sp.pop(0))
                    if ck: out.append(ck.pop(0))
            return out + ["v_cmp_eq_u32 vcc, -1, v%d" % tmp]
        out = ["s_waitcnt vmcnt(%d)" % (n if k == 0 else 0)]
        mt = maxtree(regs(k), tmp) + ["v_cmp_eq_u32 vcc, -1, v%d" % tmp]
        sp = list(spec(k)); per = -(-len(mt) // len(sp)) if sp else 0
        for x in sp:
            out.append(x)
            for _ in range(per):
                if mt: out.append(mt.pop(0))
        return out + mt + (["s_and_b64 vcc, vcc, %s" % sr(lanes, 2)] if lanes else [])
    A("s_mov_b32 s%d, %s" % (sCNT, hx(SPIN)))
    delay(pre)
    fine = FINE and tag == int(FINE)
    if fine: CST(8)
    LB("Lp%d" % u)
    issue(0)
    if fine and 0: CST(9)
    if mid: mid()
    if gap >= 0: delay(gap)
    if gap >= 0: issue(1)
    lk = look(0)
    if gap < 0 and not (per_load and PROG): lk[0] = "s_waitcnt vmcnt(0)"
    for k, x in enumerate(lk):
        A(x)
        if fine and k == 0: CST(13)
    if fine: CST(14)
    A("s_cbranch_vccz Ld%d" % u)
    if gap < 0: issue(1)
    A("s_sub_u32 s%d, s%d, 1" % (sCNT, sCNT))
    for x in look(1): A(x)
    for x in (fix or []): A(x)
    A("s_cbranch_vccz Ld%d" % u)
    A("s_sub_u32 s%d, s%d, 1" % (sCNT, sCNT))
    A("s_cmp_gt_i32 s%d, 0" % sCNT)
    A("s_cbranch_scc1 Lp%d" % u)
    if stub: touch_stub(stub)
    LB("Ld%d" % u)
    if fine: CST(15)
    if DIAG and tag is not None:
        A("s_lshl_b32 m0, s%d, 2" % sLAY); A("s_add_u32 m0, m0, %d" % tag); A("s_nop 0")
        A("v_writelane_b32 v31, s%d, m0" % sCNT)

def lds_spin(off, target, tmp, mask=None, sleep=0):
    uid[0] += 1; u = uid[0]
    A("s_mov_b32 s%d, %s" % (sT2, hx(SPIN * 4)))
    LB("Ls%d" % u)
    A("ds_read_b32 v%d, v%d offset:%d" % (tmp, vFL, off))
    A("s_waitcnt lgkmcnt(0)")
    A("v_readfirstlane_b32 s%d, v%d" % (sT1, tmp))
    if mask: A("s_and_b32 s%d, s%d, %d" % (sT0, sT1, mask))
    A("s_cmp_ge_u32 s%d, %d" % (sT0 if mask else sT1, target))
    A("s_cbranch_scc1 Lt%d" % u)
    if sleep: A("s_sleep %d" % sleep)
    A("s_sub_u32 s%d, s%d, 1" % (sT2, sT2))
    A("s_cbranch_scc0 Ls%d" % u)
    LB("Lt%d" % u)

def lds_arrive(off, tmp, val=1):
    if val is not None: A("v_mov_b32 v%d, %d" % (tmp, val))
    A("s_mov_b64 exec, 1")
    A("ds_add_u32 v%d, v%d offset:%d" % (vFL, tmp, off))
    A("s_mov_b64 exec, -1")

def store_local(op, data, vaddr, so):
    uid[0] += 1; u = uid[0]
    A("s_cbranch_scc1 Lw%d" % u)
    A("%s %s, v%d, %s, s%d offen" % (op, data, vaddr, sr(sWS, 4), so))
    LB("Lx%d" % u)
    ool.append(["Lw%d:" % u, "    %s %s, v%d, %s, s%d offen sc1" % (op, data, vaddr, sr(sWS, 4), so), "    s_branch Lx%d" % u])
def fastcmp(): A("s_cmp_eq_u32 s%d, 0" % sFAST)

def mf(d, a, b, c):
    return "v_mfma_f32_16x16x32_bf16 %s, %s, %s, %s" % (vr(d, 4), vr(a, 4), vr(b, 4), "0" if c is None else vr(c, 4))
def mfma(d, a, b, c): A(mf(d, a, b, c))

def tags():
    A("s_add_u32 s%d, s%d, 1" % (sTG1, sE))
    A("s_mul_i32 s%d, s%d, 0x9E3779B1" % (sTG2, sTG1))
    A("s_and_b32 s%d, s%d, -8" % (sTG2, sTG2))

def common_addr():
    A("v_and_b32 v18, 3, v%d" % vLANE)
    A("v_lshlrev_b32 v%d, 12, v17" % vQST)
    A("v_lshrrev_b32 v24, 1, v16")
    A("v_lshl_add_u32 v%d, v24, 8, v%d" % (vQST, vQST))
    A("v_and_b32 v24, 1, v16")
    A("v_lshl_add_u32 v%d, v24, 3, v%d" % (vQST, vQST))
    A("v_lshlrev_b32 v%d, 4, v24" % vLSE)
    A("s_mul_i32 s%d, s%d, %d" % (sT0, sW, XS))
    A("s_add_u32 s%d, s%d, %d" % (sT0, sT0, L_XN))
    A("v_add_u32 v%d, s%d, v%d" % (vXNW, sT0, vL16))
    A("s_lshl_b32 s%d, s%d, 8" % (sT0, sA))
    A("s_add_u32 s%d, s%d, %d" % (sT0, sT0, L_XN))
    A("v_mul_u32_u24 v25, %d, v18" % XS)
    A("v_lshl_add_u32 v25, v16, 4, v25")
    A("v_add_u32 v%d, s%d, v25" % (vXNR, sT0))
    A("v_mov_b32 v%d, %s" % (vZ, hx(f2u(1.0 / 512))))
    for r in range(4): A("v_mov_b32 v%d, 0x3f803f80" % (ONES + r))
    A("s_and_b32 s%d, s%d, 1" % (sT1, sC))
    A("s_lshr_b32 s%d, s%d, 1" % (sT2, sC))
    soff(sQS, [(sT1, 11), (sW, 9), (sA, 6), (sT2, 4)], 0)
    A("v_bfe_u32 v24, v%d, 2, 2" % vLANE)
    A("v_lshl_add_u32 v24, v16, 3, v24")
    A("v_lshlrev_b32 v24, 7, v24")
    A("v_bfe_u32 v25, v%d, 3, 2" % vLANE)
    A("v_lshlrev_b32 v25, 1, v25")
    A("v_bfe_u32 v26, v%d, 1, 1" % vLANE)
    A("v_xor_b32 v25, v25, v26")
    A("v_lshl_add_u32 v24, v25, 4, v24")
    A("v_and_b32 v26, 1, v%d" % vLANE)
    A("v_lshl_add_u32 v%d, v26, 3, v24" % vWT)
    A("s_mov_b32 s%d, 0x000f000f" % sMSK)
    A("s_mov_b32 s%d, 0x000f000f" % (sMSK + 1))
    A("s_mov_b32 s%d, 0" % sLAY)

def wtile_voff(shift, d):
    A("v_lshrrev_b32 v24, 3, v%d" % vLANE)
    A("v_and_b32 v25, 7, v%d" % vLANE)
    A("v_and_b32 v26, 1, v16")
    A("v_lshlrev_b32 v26, 1, v26")
    A("v_xor_b32 v25, v25, v26")
    A("v_lshlrev_b32 v25, 4, v25")
    A("v_lshl_add_u32 v%d, v24, %d, v25" % (d, shift))
    A("v_xor_b32 v%d, 64, v%d" % (d + 1, d))

def wqf_reads():
    A("s_lshl_b32 s%d, s%d, 5" % (sT1, sW))
    A("v_xor_b32 v26, s%d, v%d" % (sT1, vWT))
    for t in range(4):
        for hf in range(2):
            A("ds_read_b64_tr_b16 %s, v26 offset:%d" % (vr(WQF + 4 * t + 2 * hf, 2), L_WQ + 4096 * t + 512 * hf))

def dma(vaddr, srdn, so, lds_s, step_so, flags="nt"):
    A("s_mov_b32 m0, s%d" % lds_s)
    A("s_add_u32 s%d, s%d, 1024" % (lds_s, lds_s))
    A("buffer_load_dwordx4 v%d, %s, s%d offen %s lds" % (vaddr, sr(srdn, 4), so, flags))
    A("s_add_u32 s%d, s%d, %d" % (so, so, step_so))

hdr = open("cdna_kernels/%s.s.ref" % NAME).read().split("; Override launch")[0]
L.append(hdr.rstrip("\n") + """
;
; One persistent launch, 256 workgroups (one per CU) x 8 waves.  wg = A(2b):C(3b):j(3b); j = kv head.
; K, V, wq and wo are read from HBM exactly once (LDS-DMA) and stay in registers for both attention layers.
;   roles of a workgroup:  attention (batch A, keys 128C..), q projection (wq rows 128A.., 64 columns C),
;                          output projection (head A of group j, 64 columns C), row reduction (batch A, columns 64C..)
;   waves 0-3: stream K/V, attention, output projection, LayerNorm + mixer + next q projection
;   waves 4-7: first q projection, then the token-mixer MLP g(h) = sum_f gelu(h w1 + b1) w2 + b2 evaluated
;              exactly (all 1792 hidden units) for every bf16 value h with 2^-17 <= |h| < 8; h is a bf16 tensor in the
;              reference, so the mixer is a lookup of these values; any other h is evaluated directly (Lslow).
; Hand-offs between workgroups go through d_ws.  Slots are filled with a sentinel at the start of the launch and a
; consumer polls until no sentinel is left; the first hand-off (q) and the "sentinels are in place" announcements
; carry a tag derived from a word that every launch advances.  Stores inside a kv-head group are plain when the
; whole group reports the same XCC id, write-through otherwise; every poll is bounded.
""".rstrip("\n"))
L.append("; @launch grid=(256,1,1) block=(512,1,1) lds=%d" % LDS_SZ)
L.append('.amdgcn_target "amdgcn-amd-amdhsa--gfx950"')
L.append(".text\n" + (".p2align 12\n" if int(OPT.get("al", 0)) else "") + ".globl %s_kernel\n.p2align 8\n.type %s_kernel,@function\n%s_kernel:" % (NAME, NAME, NAME))
if DIAG: A("s_memrealtime s[42:43]")
if DBL or TOT or MEAS: A("s_memrealtime s[98:99]")
sM = 96
A("s_lshr_b32 s%d, s2, 8" % sT0)
A("s_cbranch_scc1 Lend")
A("s_load_dwordx2 %s, s[0:1], 24" % sr(sWQ, 2))
A("s_load_dwordx4 %s, s[0:1], 0" % sr(sT2, 4))
A("v_readfirstlane_b32 s%d, v0" % sW)
C("every wave pulls one line of this kernel's code into L2 (plain read): 32 workgroups x 4 lines")
A("s_getpc_b64 s[10:11]")
LB("Lpc0")
A("s_lshr_b32 s%d, s2, 3" % sM)
A("s_lshl_b32 s%d, s%d, 9" % (sCNT, sM))
A("s_cmp_lg_u32 s%d, 0" % sW)
A("s_cbranch_scc1 Lnopf")
A("v_and_b32 v19, 3, v0")
A("v_lshl_add_u32 v19, v19, 7, s%d" % sCNT)
A("global_load_dword v%d, v19, s[10:11]" % (W + 8))
LB("Lnopf")
A("s_and_b32 s%d, s2, 7" % sJ)
A("s_lshr_b32 s%d, s2, 6" % sA)
A("s_and_b32 s%d, s%d, 7" % (sC, sM))
A("s_lshl_b32 s%d, 1, 17" % (sWQ + 3))
A("s_bitcmp1_b32 s%d, 8" % sW)
A("s_cbranch_scc1 Lhelp0")
vKA, vVA = W + 40, W + 44
sRO, sRM = sVO, 97 if not TOT else 94
if TOT: sRM = sOL
def kv_issue(i):
    A("s_add_u32 m0, s%d, s%d" % (sKL if i < 8 else sVL, sRO))
    A("s_add_u32 s%d, s%d, s%d" % (sCNT, sKO, sRO))
    if i < 8: A("buffer_load_dwordx4 v%d, %s, s%d offen nt lds" % (vKA + (i & 3), sr(sK, 4), sCNT))
    else: A("buffer_load_dwordx4 v%d, %s, s%d offen nt lds" % (vVA + (i & 1), sr(sV, 4), sCNT))
    A("s_addk_i32 s%d, %d" % (sRO, 1024 + (VROT * 1024 if i == 7 else 0)))
    A("s_and_b32 s%d, s%d, 0x1fff" % (sRO, sRO))
def lane_init():
    A("v_and_b32 v%d, 63, v0" % vLANE)
    A("v_mov_b32 v%d, %d" % (vFL, L_FLG))
    A("v_lshlrev_b32 v%d, 4, v%d" % (vL16, vLANE))
    A("v_lshrrev_b32 v16, 4, v%d" % vLANE)
    A("v_and_b32 v17, 15, v%d" % vLANE)
    A("v_mov_b32 v20, 0")
    if DIAG: A("v_mov_b32 v30, 0")
C("wq tile DMA: instruction i, thread t: row 32 i + (t>>3), 16-byte chunk (t&7) ^ swizzle")
A("v_lshrrev_b32 v23, 3, v0")
A("v_and_b32 v22, 7, v0")
A("v_and_b32 v24, 2, v23")
A("v_lshrrev_b32 v25, 1, v23")
A("v_and_or_b32 v24, v25, 4, v24")
A("v_xor_b32 v22, v22, v24")
A("v_lshlrev_b32 v22, 4, v22")
A("v_lshl_add_u32 v22, v23, 13, v22")
soff(sQL, [(sA, 20), (sJ, 10), (sC, 7)], 0)
A("s_lshl_b32 s%d, 1, 22" % (sWQ + 2))
A("s_lshl_b32 s%d, 1, 18" % sT1)
A("s_lshl_b32 s%d, s%d, 4" % (sQS, sW))
A("s_add_u32 m0, s%d, %d" % (sQS, L_WQ))
A("v_lshlrev_b32 v21, 4, v0")
A("s_waitcnt lgkmcnt(0)")
A("global_load_dwordx4 %s, v21, %s" % (vr(XR, 4), sr(sT2, 2)))
for i in range(4):
    if i:
        A("s_addk_i32 m0, 0x1000")
        A("s_add_u32 s%d, s%d, s%d" % (sQL, sQL, sT1))
    A("buffer_load_dwordx4 v22, %s, s%d offen nt lds" % (sr(sWQ, 4), sQL))
def main_early2():
    lane_init()
    A("s_lshl_b32 s%d, 1, 25" % (sK + 2)); A("s_mov_b32 s%d, s%d" % (sK + 3, sWQ + 3))
    A("s_mov_b64 %s, %s" % (sr(sK, 2), sr(sT4, 2)))
    A("v_xor_b32 v18, v17, v16")
    A("v_lshlrev_b32 v18, 4, v18")
    A("v_lshl_add_u32 v%d, v16, 8, v18" % vKA)
    A("s_lshl_b32 s%d, s%d, 10" % (sRO, sC))
    A("s_bfe_u32 s%d, s%d, 0x2000a" % (sT1, sRO))
    A("s_lshl_b32 s%d, s%d, 6" % (sT1, sT1))
    for k in range(1, 4):
        A("s_add_u32 s%d, s%d, %d" % (sCNT, sT1, 64 * k))
        A("s_and_b32 s%d, s%d, 0xc0" % (sCNT, sCNT))
        A("v_xor_b32 v%d, s%d, v%d" % (vKA + k, sCNT, vKA))
    A("v_xor_b32 v%d, s%d, v%d" % (vKA, sT1, vKA))
    soff(sKO, [(sA, 23), (sJ, 20), (sC, 15), (sW, 7)], 3072 * 256)
    A("s_add_u32 s%d, s%d, %d" % (sKL, sT0, L_K))
    for i in range(D0): kv_issue(i)
    A("s_add_u32 s%d, s%d, %d" % (sVL, sT0, L_V))
    A("s_lshr_b32 s%d, s%d, 6" % (sW, sW))
    if DIAG: A("v_writelane_b32 v30, s42, 0")
    STAMP(10)
    A("s_branch Lmain")

if HFIRST: A("s_branch Lmain1")
else: main_early2()
LB("Lhelp0")
C("---- helper waves: the table of g over bf16 inputs ----")
HW1, HB1, HW2 = 32, 60, 112
hK0, hK1, hONE, hRES = 88, 90, 92, 94
AC = [140, 142]
for s, off in [(sW1, 48), (sB1, 56), (sW2, 64), (sWS, 96), (sB2P, 72)]:
    A("s_load_dwordx2 %s, s[0:1], %d" % (sr(s, 2), off))
lane_init()
A("v_mov_b32 v21, 0")
for k in range(4): A("ds_write_b64 v%d, v[20:21] offset:%d" % (vFL, 8 * k))
A("ds_write_b32 v%d, v20 offset:44" % vFL)
A("s_bfe_u32 s%d, s%d, 0x20006" % (sW, sW))
srd(sWS, WS_SZ)
for s in [sW1, sB1, sW2]: srd(s, 3584)
for i in range(4): A("v_mov_b32 v%d, -1" % (PM + i))
A("s_waitcnt lgkmcnt(0)")
A("s_lshl_b32 s%d, s%d, 10" % (sT3, sW))
A("s_mul_i32 s%d, s%d, %d" % (sT5, sM, CLRA_PER))
A("s_lshl_b32 s%d, s%d, 17" % (sGR, sJ))
A("s_add_u32 s%d, s%d, s%d" % (sT5, sT5, sGR))
A("s_add_u32 s%d, s%d, 1024" % (sT4, sT5))
A("s_lshl_b32 s%d, s%d, 7" % (sT1, sM))
A("v_mov_b32 v19, s%d" % sT1)
def h_coef():
    A("s_mov_b32 m0, s%d" % sT3)
    for i, sd in enumerate([sW1, sB1, sW2]):
        if i: A("s_addk_i32 m0, 0x1000")
        A("s_nop 0")
        A("buffer_load_dwordx4 v%d, %s, s%d offen lds" % (vL16, sr(sd, 4), sT3))
C("hw0, hw1: early sentinels (O0, LSE0) ; hw3: a slice of each coefficient array into L2")
A("s_cmp_ge_u32 s%d, 2" % sW)
A("s_cbranch_scc1 Lhc_pf")
A("s_cmp_eq_u32 s%d, 0" % sW)
A("s_cselect_b32 s%d, s%d, s%d" % (sT5, sT5, sT4))
A("s_cselect_b64 exec, -1, 1")
A("buffer_store_dwordx4 %s, v%d, %s, s%d offen sc1" % (vr(PM, 4), vL16, sr(sWS, 4), sT5))
A("s_branch Lhc_skip")
LB("Lhc_pf")
if SLC:
    A("s_cmp_eq_u32 s%d, 2" % sW)
    A("s_cbranch_scc1 Lhc_skip")
    A("s_mov_b64 exec, 1")
    for k, sd in enumerate([sW1, sB1, sW2]): A("buffer_load_dword v%d, v19, %s, 0 offen" % (W + k, sr(sd, 4)))
LB("Lhc_skip")
A("s_mov_b64 exec, -1")
if not SLC: h_coef()
A("s_load_dword s%d, %s, 0" % (sB2, sr(sB2P, 2)))
if DIAG: A("v_writelane_b32 v30, s42, 0")
STAMP(9)
A("s_barrier")
if HFIRST:
    A("s_branch Lhelp1")
    LB("Lmain1")
    main_early2()
    LB("Lhelp1")
A("s_lshl_b32 s%d, s2, 2" % sHC)
A("s_add_u32 s%d, s%d, s%d" % (sHC, sHC, sW))
sHX = 86
if XENT:
    C("extra entry e = wave index: |h| code ELO*128 + (e>>1), sign e&1")
    A("s_lshr_b32 s%d, s%d, 1" % (sHX, sHC))
    A("s_add_u32 s%d, s%d, %d" % (sHX, sHX, ELO * 128))
    A("s_lshl_b32 s%d, s%d, 16" % (sHX, sHX))
    A("s_lshl_b32 s%d, s%d, 31" % (sT0, sHC))
    A("s_or_b32 s%d, s%d, s%d" % (sHX, sHX, sT0))
A("s_mul_i32 s%d, s%d, %d" % (sHC, sHC, EPW))
A("s_lshl_b32 s%d, s%d, 3" % (sHT, sHC))
A("s_add_u32 s%d, s%d, %d" % (sHT, sHT, XENT * 4))
A("s_add_u32 s%d, s%d, %d" % (sHC, sHC, ELO * 128 + XENT // 2))
A("s_lshl_b32 s%d, s%d, 16" % (sHC, sHC))
A("v_lshlrev_b32 v27, 2, v%d" % vLANE)
A("v_add_u32 v27, s%d, v27" % sHT)
A("s_mov_b32 s%d, %s" % (sHT, hx(TB)))
for r, c in [(hK0, K0), (hK1, K1), (hONE, 1.0)]:
    A("v_mov_b32 v%d, %s" % (r, hx(f2u(c)))); A("v_mov_b32 v%d, %s" % (r + 1, hx(f2u(c))))
A("v_mov_b32 v%d, 0" % hRES)
A("s_mov_b32 s%d, 0" % sIT)
if WARM:
    C("warm the instruction cache lines at the far jump targets of the main waves")
    for k, nm in enumerate(["k", "fin", "out", "tab"]):
        A("s_cmp_lg_u32 s%d, %d" % (sW, k))
        A("s_cbranch_scc1 Lwm%d" % k)
        A("s_call_b64 %s, Lst_%s" % (sr(sRET, 2), nm))
        if nm == "out": A("s_call_b64 %s, Lst_mq" % sr(sRET, 2))
        LB("Lwm%d" % k)
HR = W + 8
A("v_lshlrev_b32 v26, 3, v%d" % vLANE)
if SLC:
    C("slices are in L2 once hw3's own have returned")
    A("s_waitcnt vmcnt(0)")
    lds_arrive(0, 24)
    A("s_cmp_lg_u32 s%d, 3" % sW)
    A("s_cbranch_scc1 Lhs1")
    lds_arrive(52 - 8, 24)
    LB("Lhs1")
    lds_spin(52 - 8, 1, 24, sleep=1)
    h_coef()
    A("s_waitcnt vmcnt(0)")
else:
    A("s_waitcnt vmcnt(3)")
    lds_arrive(0, 24)
    A("s_waitcnt vmcnt(0)")
STAMP(1)
lds_arrive(24, 24)
lds_spin(24, 4, 24)
for a_ in range(3):
    for k in range(3):
        A("ds_read_b128 %s, v%d offset:%d" % (vr(HR + 14 * a_ + 4 * k, 4), vL16, 4096 * a_ + 1024 * k))
    A("ds_read_b64 %s, v26 offset:%d" % (vr(HR + 14 * a_ + 12, 2), 4096 * a_ + 3072))
for a_, d in [(0, HW1), (14, HB1), (28, HW2)]:
    A("s_waitcnt lgkmcnt(%d)" % (8 - 4 * (a_ // 14)))
    for p in range(14):
        A("v_lshlrev_b32 v%d, 16, v%d" % (d + 2 * p, HR + a_ + p))
        A("v_and_b32 v%d, 0xffff0000, v%d" % (d + 2 * p + 1, HR + a_ + p))
STAMP(4)
if DIAG:
    A("s_memtime s[42:43]"); A("s_waitcnt lgkmcnt(0)"); A("v_writelane_b32 v30, s42, 13")
LB("Lhl")
if DIAG:
    A("s_memrealtime s[42:43]"); A("s_add_u32 m0, s%d, 10" % sIT); A("s_waitcnt lgkmcnt(0)"); A("v_writelane_b32 v30, s42, m0")
A("s_mov_b32 s%d, s%d" % (sH, sHC)); A("s_mov_b32 s%d, s%d" % (sH + 1, sHC))
A("s_xor_b32 s%d, s%d, 0x80000000" % (sH2, sHC)); A("s_mov_b32 s%d, s%d" % (sH2 + 1, sH2))
U4 = [144, 146, 148, 150]; T4 = [152, 154, 156, 158]; Z4 = [160, 162, 164, 166]
for p2 in range(7):
    ch = [(2 * p2 + k // 2, k & 1) for k in range(4)]
    for k, (p, sg) in enumerate(ch):
        A("v_pk_fma_f32 %s, %s, %s, %s" % (vr(U4[k], 2), vr(HW1 + 2 * p, 2), sr([sH, sH2][sg], 2), vr(HB1 + 2 * p, 2)))
    for k in range(4): A("v_pk_mul_f32 %s, %s, %s" % (vr(T4[k], 2), vr(U4[k], 2), vr(U4[k], 2)))
    for k in range(4): A("v_pk_fma_f32 %s, %s, %s, %s" % (vr(T4[k], 2), vr(T4[k], 2), vr(hK1, 2), vr(hK0, 2)))
    for k in range(4): A("v_pk_mul_f32 %s, %s, %s" % (vr(T4[k], 2), vr(T4[k], 2), vr(U4[k], 2)))
    for k in range(4):
        for h in range(2): A("v_exp_f32 v%d, v%d" % (T4[k] + h, T4[k] + h))
    for k, (p, sg) in enumerate(ch): A("v_pk_mul_f32 %s, %s, %s" % (vr(Z4[k], 2), vr(U4[k], 2), vr(HW2 + 2 * p, 2)))
    for k in range(4): A("v_pk_add_f32 %s, %s, %s" % (vr(T4[k], 2), vr(T4[k], 2), vr(hONE, 2)))
    for k in range(4):
        for h in range(2): A("v_rcp_f32 v%d, v%d" % (T4[k] + h, T4[k] + h))
    for k, (p, sg) in enumerate(ch):
        if p == 0: A("v_pk_mul_f32 %s, %s, %s" % (vr(AC[sg], 2), vr(Z4[k], 2), vr(T4[k], 2)))
        else: A("v_pk_fma_f32 %s, %s, %s, %s" % (vr(AC[sg], 2), vr(Z4[k], 2), vr(T4[k], 2), vr(AC[sg], 2)))
A("v_add_f32 v%d, v%d, v%d" % (AC[0], AC[0], AC[0] + 1))
A("v_add_f32 v%d, v%d, v%d" % (AC[1], AC[1], AC[1] + 1))
A("s_lshl_b32 m0, s%d, 1" % sIT)
A("s_add_u32 s%d, s%d, 0x10000" % (sHC, sHC))
wave_sum2(AC[0], AC[1], sSUM, sSQ)
A("s_add_u32 s%d, s%d, 1" % (sIT, sIT))
A("s_nop 0")
A("v_writelane_b32 v%d, s%d, m0" % (hRES, sSUM))
A("s_add_u32 m0, m0, 1")
A("s_cmp_lg_u32 s%d, %d" % (sIT, EPW))
A("v_writelane_b32 v%d, s%d, m0" % (hRES, sSQ))
A("s_cbranch_scc1 Lhl")
def h_publish(lanes):
    A("v_cvt_pk_bf16_f32 v%d, v%d, v%d" % (hRES, hRES, hRES))
    A("v_and_b32 v%d, 0xffff0000, v%d" % (hRES, hRES))
    A("v_add_f32 v%d, s%d, v%d" % (hRES, sB2, hRES))
    A("v_cvt_pk_bf16_f32 v%d, v%d, v%d" % (hRES, hRES, hRES))
    A("v_and_b32 v%d, 0xffff0000, v%d" % (hRES + 1, hRES))
    A("s_mov_b64 exec, %d" % lanes)
    A("buffer_store_dword v%d, v27, %s, s%d offen sc1" % (hRES + 1, sr(sWS, 4), sHT))
    A("s_mov_b64 exec, -1")
A("s_waitcnt lgkmcnt(0)")
A("s_lshl_b32 s%d, s%d, 16" % (sB2, sB2))
lds_spin(8, 4, 24)
h_publish((1 << (2 * EPW)) - 1)
if QBD:
    C("the write-through copy of q is only needed when the group is not known to sit on one XCD")
    A("ds_read_b32 v24, v%d offset:4" % vFL)
    A("s_waitcnt lgkmcnt(0)")
    A("v_readfirstlane_b32 s%d, v24" % sT0)
    A("s_cmp_eq_u32 s%d, 4" % sT0)
    A("s_cbranch_scc1 Lhqb")
    A("s_mov_b64 exec, %s" % sr(sMSK, 2))
    A("buffer_store_dwordx4 %s, v%d, %s, s%d offen sc1" % (vr(W + 4, 4), vQST, sr(sWS, 4), sQS))
    A("s_mov_b64 exec, -1")
    LB("Lhqb")
STAMP(8)
if XENT:
    A("s_mov_b32 s%d, s%d" % (sH, sHX)); A("s_mov_b32 s%d, s%d" % (sH + 1, sHX))
    for grp in [[0, 1, 2, 3], [4, 5, 6, 7], [8, 9, 10], [11, 12, 13]]:
        n = len(grp)
        for k, p in enumerate(grp): A("v_pk_fma_f32 %s, %s, %s, %s" % (vr(U4[k], 2), vr(HW1 + 2 * p, 2), sr(sH, 2), vr(HB1 + 2 * p, 2)))
        for k in range(n): A("v_pk_mul_f32 %s, %s, %s" % (vr(T4[k], 2), vr(U4[k], 2), vr(U4[k], 2)))
        for k in range(n): A("v_pk_fma_f32 %s, %s, %s, %s" % (vr(T4[k], 2), vr(T4[k], 2), vr(hK1, 2), vr(hK0, 2)))
        for k in range(n): A("v_pk_mul_f32 %s, %s, %s" % (vr(T4[k], 2), vr(T4[k], 2), vr(U4[k], 2)))
        for k in range(n):
            for h in range(2): A("v_exp_f32 v%d, v%d" % (T4[k] + h, T4[k] + h))
        for k, p in enumerate(grp): A("v_pk_mul_f32 %s, %s, %s" % (vr(Z4[k], 2), vr(U4[k], 2), vr(HW2 + 2 * p, 2)))
        for k in range(n): A("v_pk_add_f32 %s, %s, %s" % (vr(T4[k], 2), vr(T4[k], 2), vr(hONE, 2)))
        for k in range(n):
            for h in range(2): A("v_rcp_f32 v%d, v%d" % (T4[k] + h, T4[k] + h))
        for k, p in enumerate(grp):
            if p < 2: A("v_pk_mul_f32 %s, %s, %s" % (vr(AC[p & 1], 2), vr(Z4[k], 2), vr(T4[k], 2)))
            else: A("v_pk_fma_f32 %s, %s, %s, %s" % (vr(AC[p & 1], 2), vr(Z4[k], 2), vr(T4[k], 2), vr(AC[p & 1], 2)))
    A("v_add_f32 v%d, v%d, v%d" % (AC[0], AC[0], AC[0] + 1))
    A("v_add_f32 v%d, v%d, v%d" % (AC[1], AC[1], AC[1] + 1))
    A("v_add_f32 v%d, v%d, v%d" % (AC[0], AC[0], AC[1]))
    A("s_nop 1")
    wave_sum2(AC[0], AC[1], sSUM, sSQ)
    A("s_nop 1")
    A("v_mov_b32 v%d, s%d" % (hRES, sSUM))
    A("v_cvt_pk_bf16_f32 v%d, v%d, v%d" % (hRES, hRES, hRES))
    A("v_and_b32 v%d, 0xffff0000, v%d" % (hRES, hRES))
    A("v_add_f32 v%d, s%d, v%d" % (hRES, sB2, hRES))
    A("v_cvt_pk_bf16_f32 v%d, v%d, v%d" % (hRES, hRES, hRES))
    A("v_and_b32 v%d, 0xffff0000, v%d" % (hRES, hRES))
    C("the last of the four helpers stores the workgroup's four extra entries with one instruction")
    A("s_lshl_b32 s%d, s%d, 2" % (sT0, sW))
    A("v_add_u32 v16, s%d, v%d" % (sT0, vFL))
    A("v_mov_b32 v17, 1")
    A("s_mov_b64 exec, 1")
    A("ds_write_b32 v16, v%d offset:32" % hRES)
    A("s_waitcnt lgkmcnt(0)")
    A("ds_add_rtn_u32 v18, v%d, v17 offset:28" % vFL)
    A("s_waitcnt lgkmcnt(0)")
    A("v_readfirstlane_b32 s%d, v18" % sT0)
    A("s_cmp_lg_u32 s%d, 3" % sT0)
    A("s_cbranch_scc1 Lhx_end")
    A("ds_read_b128 v[20:23], v%d offset:32" % vFL)
    A("s_lshl_b32 s%d, s2, 4" % sT0)
    A("v_mov_b32 v16, s%d" % sT0)
    A("s_waitcnt lgkmcnt(0)")
    A("buffer_store_dwordx4 v[20:23], v16, %s, s%d offen sc1" % (sr(sWS, 4), sHT))
    LB("Lhx_end")
    A("s_mov_b64 exec, -1")
if DIAG:
    A("s_memtime s[42:43]"); A("s_waitcnt lgkmcnt(0)"); A("v_writelane_b32 v30, s42, 14")
    STAMP(15)
STAMP(7)
C("stand in at the two barriers of the second layer, so that they do not wait for this wave's store acknowledgements")
A("s_barrier")
A("s_barrier")
if DIAG:
    A("s_add_u32 s%d, s%d, 4" % (sW, sW))
    A("v_mov_b32 v28, v30")
    A("s_branch Lfin_exit")
A("s_endpgm")

LB("Lmain")
for s, off in [(sWS, 96), (sV, 16), (sWO, 32), (sOUT, 80), (sX, 0), (sB2P, 72), (sW1, 48), (sB1, 56), (sW2, 64)]:
    A("s_load_dwordx2 %s, s[0:1], %d" % (sr(s, 2), off))
if MEAS: A("s_load_dwordx2 s[42:43], s[0:1], 88"); A("s_waitcnt lgkmcnt(0)"); A("s_mov_b32 s25, s42"); A("s_mov_b32 s99, s43") if False else None; A("v_mov_b32 v30, s42"); A("v_mov_b32 v31, s43")
srd(sWS, WS_SZ)
for s in [sW1, sB1, sW2]: srd(s, 3584)
A("s_barrier")
for i in range(D0, D1): kv_issue(i)
for i in range(4): A("v_mov_b32 v%d, -1" % (W + i))
A("s_lshl_b32 s%d, s%d, 17" % (sGR, sJ))
A("s_mov_b32 s%d, s%d" % (sT1, sM))
A("s_waitcnt lgkmcnt(0)")
A("s_load_dword s%d, %s, %s" % (sE, sr(sWS, 2), hx(EPO)))
STAMP(11)
for s, n in [(sV, 1 << 25), (sX, 4096), (sWO, 1 << 22), (sOUT, 4096)]: srd(s, n)
A("v_lshlrev_b32 v18, 1, v16")
A("v_xor_b32 v18, v17, v18")
A("v_lshlrev_b32 v18, 4, v18")
A("v_lshl_add_u32 v%d, v16, 8, v18" % vVA)
if ROT:
    A("s_and_b32 s%d, s%d, 1" % (sT0, sC))
    A("s_lshl_b32 s%d, s%d, 7" % (sT0, sT0))
    A("v_xor_b32 v%d, s%d, v%d" % (vVA, sT0, vVA))
A("v_xor_b32 v%d, 128, v%d" % (vVA + 1, vVA))
C("late sentinels: wave 0,1: group region ; wave 2: P chunk")
A("s_lshr_b32 s%d, s2, 3" % sT1)
A("s_mul_i32 s%d, s%d, %d" % (sT1, sT1, CLRB_PER))
A("s_lshl_b32 s%d, s%d, 10" % (sT0, sW))
A("s_add_u32 s%d, s%d, s%d" % (sT1, sT1, sT0))
A("s_add_u32 s%d, s%d, s%d" % (sT1, sT1, sGR))
A("s_add_u32 s%d, s%d, %d" % (sT1, sT1, CLRB_OFF))
A("s_lshl_b32 s%d, s2, 10" % sT0)
A("s_add_u32 s%d, s%d, %s" % (sT0, sT0, hx(PB)))
A("s_cmp_ge_u32 s%d, 2" % sW)
A("s_cselect_b32 s%d, s%d, s%d" % (sT1, sT0, sT1))
A("s_bfm_b64 %s, %d, 0" % (sr(sH, 2), (CLRB_PER - 1024) // 16))
A("s_cmp_eq_u32 s%d, 1" % sW)
A("s_cselect_b64 %s, %s, -1" % (sr(sH, 2), sr(sH, 2)))
NCL = NOCT * 4 // 16
A("v_mov_b32 v19, v%d" % vL16)
A("s_cmp_lg_u32 s%d, 3" % sW)
A("s_cbranch_scc1 Lm_c3")
C("wave 3: this workgroup's table slots")
A("s_mul_i32 s%d, s2, %d" % (sT0, NOCT * 4))
A("s_add_u32 s%d, s%d, %d" % (sT0, sT0, XENT * 4))
A("v_add_u32 v19, s%d, v19" % sT0)
A("s_lshl_b32 s%d, s2, 4" % sT0)
if XENT: A("v_writelane_b32 v19, s%d, %d" % (sT0, NCL))
A("s_mov_b32 s%d, %s" % (sT1, hx(TB)))
A("s_mov_b64 %s, %d" % (sr(sH, 2), (1 << (NCL + (1 if XENT else 0))) - 1))
LB("Lm_c3")
A("s_mov_b64 exec, %s" % sr(sH, 2))
A("buffer_store_dwordx4 %s, v19, %s, s%d offen sc1" % (vr(W, 4), sr(sWS, 4), sT1))
A("s_mov_b64 exec, -1")

common_addr()
A("s_add_u32 s%d, s%d, s%d" % (sQS, sQS, sGR))
A("s_add_u32 s%d, s%d, %d" % (sQS, sQS, Q1_OFF))
wtile_voff(10, 22)
A("v_and_b32 v19, 7, v%d" % vLANE)
A("v_lshrrev_b32 v25, 2, v%d" % vLANE)
A("v_lshlrev_b32 v25, 7, v25")
A("v_lshl_add_u32 v%d, v18, 2, v25" % vOST)
A("v_lshlrev_b32 v25, 7, v16")
A("v_lshl_add_u32 v%d, v19, 4, v25" % vOLD)
C("lanes n>=8 of the first two o loads fetch the lse values instead: offset relative to the o block")
A("s_mul_i32 s%d, s%d, %d" % (sT0, sA, 128 - 8192))
A("s_mul_i32 s%d, s%d, %d" % (sT1, sW, 32 - 2048))
A("s_add_u32 s%d, s%d, s%d" % (sT0, sT0, sT1))
A("s_add_u32 s%d, s%d, %d" % (sT0, sT0, LSE_OFF[0] - O_OFF[0]))
A("v_add_u32 v25, s%d, v%d" % (sT0, vLSE))
A("v_xor_b32 v26, 16, v25")
A("v_add_u32 v26, -512, v26")
A("v_cmp_gt_u32 vcc, 8, v17")
A("s_nop 1")
A("v_cndmask_b32 v%d, v25, v%d, vcc" % (vLSE, vOLD))
A("v_cndmask_b32 v%d, v26, v%d, vcc" % (vLS2, vOLD))
A("v_lshlrev_b32 v%d, 1, v%d" % (vPST, vLANE))
A("v_lshlrev_b32 v25, 3, v16")
A("v_lshl_add_u32 v%d, v19, 4, v25" % vX1S)
A("s_mul_i32 s%d, s%d, %d" % (sT0, sW, RBS))
A("s_add_u32 s%d, s%d, %d" % (sT0, sT0, L_RB))
A("v_mul_u32_u24 v25, 528, v18")
A("v_lshl_add_u32 v25, v16, 4, v25")
A("v_lshrrev_b32 v26, 2, v17")
A("v_lshl_add_u32 v25, v26, 7, v25")
A("v_add_u32 v%d, s%d, v25" % (vRBW, sT0))
A("s_mul_i32 s%d, s%d, 528" % (sT0, sW))
A("s_add_u32 s%d, s%d, %d" % (sT0, sT0, L_RB))
A("v_lshlrev_b32 v25, 3, v%d" % vLANE)
A("v_add_u32 v%d, s%d, v25" % (vRBR, sT0))
A("s_lshl_b32 s%d, s%d, 3" % (sT0, sW))
A("s_add_u32 s%d, s%d, %d" % (sT0, sT0, L_ML))
A("v_lshlrev_b32 v25, 5, v18")
A("v_add_u32 v%d, s%d, v25" % (vMLW, sT0))
A("s_lshl_b32 s%d, s%d, 5" % (sT0, sW))
A("s_add_u32 s%d, s%d, %d" % (sT0, sT0, L_ML))
A("v_mov_b32 v%d, s%d" % (vMLR, sT0))
A("v_mov_b32 v25, 0x3f80")
A("v_mov_b32 v26, 0x3f800000")
for r in range(4):
    A("v_cmp_eq_u32 vcc, %d, v17" % (2 * r))
    A("v_cmp_eq_u32 %s, %d, v17" % (sr(sH, 2), 2 * r + 1))
    A("s_nop 0")
    A("v_cndmask_b32 v%d, 0, v25, vcc" % (SEL + r))
    A("v_cndmask_b32 v%d, v%d, v26, %s" % (SEL + r, SEL + r, sr(sH, 2)))
for i in range(16): A("v_mov_b32 v%d, 0" % (PM + i))
for p in range(4):
    A("s_mov_b32 s%d, %s" % (sPM + 2 * p, hx(0x000f000f << (4 * p))))
    A("s_mov_b32 s%d, %s" % (sPM + 2 * p + 1, hx(0x000f000f << (4 * p))))
soff(sOS, [(sW, 13), (sA, 11), (sC, 4), (sJ, 17)], O_OFF[0])
soff(sOL, [(sA, 13), (sW, 11), (sJ, 17)], O_OFF[0])
A("s_add_u32 s%d, s%d, %s" % (sQL, sOL, hx(Q0_OFF - O_OFF[0])))
soff(sLS, [(sW, 7), (sA, 5), (sC, 2), (sJ, 17)], LSE_OFF[0])
soff(sPS, [(sW, 15), (sC, 12), (sJ, 9), (sA, 7)], PB)
A("s_mov_b32 s%d, %s" % (sSC, hx(f2u(128 ** -0.5 * math.log2(math.e)))))
A("s_getreg_b32 s%d, hwreg(HW_REG_XCC_ID, 0, 3)" % sXCC)
C("first q projection")
A("s_sub_u32 s%d, s%d, s%d" % (sIT, sQS, sGR))
A("s_lshl_b32 s%d, s%d, 1" % (sIT, sIT))
A("s_add_u32 s%d, s%d, s%d" % (sIT, sIT, sGR))
A("s_add_u32 s%d, s%d, %s" % (sIT, sIT, hx(Q0_OFF - 2 * Q1_OFF)))
A("v_lshlrev_b32 v21, 1, v%d" % vQST)
STAMP(12)
if DIAG: A("v_mov_b32 v31, v30")
A("s_waitcnt vmcnt(%d)" % (4 + D1 + 1))
A("s_branch Llnq")
LB("Lq_first")
A("s_waitcnt vmcnt(%d) lgkmcnt(0)" % (D1 + 1))
lds_arrive(0, vT + 4)
for i in range(D1, D2): kv_issue(i)
tags()
A("s_or_b32 s%d, s%d, s%d" % (sXCC, sXCC, sTG2))
lds_spin(0, 8, vT + 4)
wqf_reads()
A("s_waitcnt lgkmcnt(0)")
A("s_branch Lq_go")
LB("Lh_qst")
A("v_mov_b32 v%d, s%d" % (W + 6, sTG1))
A("v_mov_b32 v%d, s%d" % (W + 7, sXCC))
A("buffer_store_dwordx4 %s, v21, %s, s%d offen%s" % (vr(W + 4, 4), sr(sWS, 4), sIT, "" if int(OPT.get("fast", 1)) else " sc1"))
A("s_add_u32 s%d, s%d, %s" % (sIT, sIT, hx(QB_DELTA)))
A("buffer_store_dwordx4 %s, v21, %s, s%d offen sc1" % (vr(W + 4, 4), sr(sWS, 4), sIT))
A("s_mov_b64 exec, -1")
STAMP(14)
A("v_lshrrev_b32 v16, 4, v%d" % vLANE)
A("v_and_b32 v17, 15, v%d" % vLANE)
A("v_xor_b32 v24, v16, v17")
A("v_lshlrev_b32 v24, 4, v24")
A("v_lshl_add_u32 v24, v17, 8, v24")
A("s_lshl_b32 s%d, s%d, 13" % (sT1, sW))
A("s_add_u32 s%d, s%d, %d" % (sT2, sT1, L_K))
for t in range(4): A("v_xor_b32 v%d, %d, v24" % (18 + t, 64 * t))
for t in range(4): A("v_add_u32 v%d, s%d, v%d" % (18 + t, sT2, 18 + t))
VA = W + 32
A("v_lshrrev_b32 v24, 2, v%d" % vLANE)
A("v_and_b32 v25, 7, v24")
A("v_lshlrev_b32 v25, 1, v25")
A("v_bfe_u32 v26, v%d, 1, 1" % vLANE)
A("v_xor_b32 v25, v25, v26")
A("v_lshlrev_b32 v25, 4, v25")
A("v_lshl_add_u32 v25, v24, 8, v25")
A("v_and_b32 v26, 1, v%d" % vLANE)
A("v_lshl_add_u32 v25, v26, 3, v25")
A("s_add_u32 s%d, s%d, %d" % (sT2, sT1, L_V))
for t in range(8): A("v_xor_b32 v%d, %d, v25" % (VA + t, 32 * t))
for t in range(8): A("v_add_u32 v%d, s%d, v%d" % (VA + t, sT2, VA + t))
soff(sT4, [(sJ, 19), (sA, 17), (sW, 15), (sC, 7)], 0)
A("s_lshl_b32 s%d, s%d, 12" % (sT5, sW))
A("s_add_u32 s%d, s%d, %d" % (sT5, sT5, L_WO))
soff(sT3, [(sA, 10), (sC, 7)], 0)
A("v_lshlrev_b32 v24, 5, v%d" % vLANE)
A("s_lshl_b32 s%d, s%d, 10" % (sT2, sW))
A("s_add_u32 s%d, s%d, %d" % (sT2, sT2, L_QF))
A("v_add_u32 v25, s%d, v%d" % (sT2, vL16))
A("v_add_u32 v26, %d, v%d" % (L_QF, vL16))
QP = W
def q0_issue(QP=QP):
    A("buffer_load_dwordx4 %s, v24, %s, s%d offen sc1" % (vr(QP, 4), sr(sWS, 4), sQL))
    A("buffer_load_dwordx4 %s, v24, %s, s%d offen offset:16 sc1" % (vr(QP + 4, 4), sr(sWS, 4), sQL))
def flag_block():
    if True:
        A("s_cmp_lg_u32 s%d, 0" % sW)
        A("s_cbranch_scc1 Lnoflag")
        C("every sentinel store of this workgroup is acknowledged: announce it")
        lds_spin(8, 4, vT)
        A("v_mov_b32 v16, s%d" % sTG1)
        A("v_mov_b32 v17, s%d" % sXCC)
        soff(sT1, [(2, 4)], FB)
        A("v_mov_b32 v21, 0")
        A("s_mov_b64 exec, 1")
        A("buffer_store_dwordx2 v[16:17], v21, %s, s%d offen sc1" % (sr(sWS, 4), sT1))
        A("s_mov_b64 exec, -1")
        LB("Lnoflag")
for i in range(D2, 16):
    dp = DEPTH
    if i == 16 - QV:
        A("s_waitcnt vmcnt(%d)" % (dp - 2)); q0_issue()
    A("s_waitcnt vmcnt(%d)" % (dp - 1))
    kv_issue(i)
q0_issue(QP + 8)
C("everything older than the V loads is complete: K, late sentinels")
assert not QV2
A("s_waitcnt vmcnt(%d)" % int(OPT.get("kw", 14)))
lds_arrive(8, vT)
STAMP(1)
for t in range(4):
    for T in range(2):
        A("ds_read_b128 %s, v%d offset:%d" % (vr(KF + 16 * T + 4 * t, 4), 18 + t, 4096 * T))
if "dump" in OPT:
    A("s_waitcnt lgkmcnt(0)")
    soff(sT1, [(2, 15), (sW, 13)], 0x1000000)
    for k in range(8):
        A("buffer_store_dwordx4 %s, v%d, %s, s%d offen" % (vr(KF + 4 * k, 4), vL16, sr(sWS, 4), sT1))
        A("s_add_u32 s%d, s%d, 1024" % (sT1, sT1))
    A("s_waitcnt vmcnt(0)")
flag_block()
def wait_w0(n):
    uid[0] += 1
    A("s_cmp_eq_u32 s%d, 0" % sW)
    A("s_cbranch_scc1 Lww%d" % uid[0])
    A("s_waitcnt vmcnt(%d)" % n)
    LB("Lww%d" % uid[0])
    A("s_waitcnt vmcnt(%d)" % (n + 1))
wait_w0(QV + 2 + (2 if QV2 else 0))
STAMP(2)
A("s_setprio 2")
A("s_mov_b32 s%d, %s" % (sCNT, hx(SPIN)))
A("s_mov_b32 s%d, 0" % sY)
A("s_mov_b32 s%d, 0" % sIT)
LB("Lmq")
A("v_and_b32 v16, -8, v%d" % (QP + 3))
A("v_and_b32 v17, -8, v%d" % (QP + 7))
A("v_cmp_ne_u32 vcc, s%d, v%d" % (sTG1, QP + 2))
A("v_cmp_ne_u32 %s, s%d, v%d" % (sr(sRET, 2), sTG1, QP + 6))
A("s_or_b64 vcc, vcc, %s" % sr(sRET, 2))
A("v_cmp_ne_u32 %s, s%d, v16" % (sr(sRET, 2), sTG2))
A("s_or_b64 vcc, vcc, %s" % sr(sRET, 2))
A("v_cmp_ne_u32 %s, s%d, v17" % (sr(sRET, 2), sTG2))
A("s_or_b64 vcc, vcc, %s" % sr(sRET, 2))
if not int(OPT.get("nochk", 0)): A("s_cbranch_vccnz Lmqr")
LB("Lmqd")
if DIAG:
    A("s_sub_u32 s%d, s%d, s%d" % (sT0, sCNT, sY)); A("v_writelane_b32 v31, s%d, 0" % sT0)
Ls = L; L = []
L.append(".p2align 6"); LB("Lst_mq"); A("s_setpc_b64 %s" % sr(sRET, 2))
LB("Lmqr")
A("s_cmp_lg_u32 s%d, 0" % sY)
A("s_cbranch_scc1 Lmqr2")
if QV2:
    A("s_cmp_lg_u32 s%d, 0" % sIT)
    A("s_cbranch_scc1 Lmqr1")
    A("s_mov_b32 s%d, 1" % sIT)
    wait_w0(QV2 + 2)
    for k in range(8): A("v_mov_b32 v%d, v%d" % (QP + k, XR + k))
    A("s_branch Lmq")
    LB("Lmqr1")
C("first look failed: take the second one (V has landed with it: request its fragments now)")
A("s_waitcnt vmcnt(0)")
A("s_mov_b32 s%d, 1" % sY)
for k in range(8): A("v_mov_b32 v%d, v%d" % (QP + k, QP + 8 + k))
if not VLATE:
    for t in range(8):
        for hf in range(2):
            A("ds_read_b64_tr_b16 %s, v%d offset:%d" % (vr(VF + 4 * t + 2 * hf, 2), VA + t, 4096 * hf))
A("s_branch Lmq")
LB("Lmqr2")
C("still not there: poll the plain copy a few times, then both copies in turn")
A("s_cmp_le_u32 s%d, %s" % (sCNT, hx(SPIN - 6)))
A("s_cselect_b32 s%d, %s, 0" % (sT0, hx(QB_DELTA)))
A("s_xor_b32 s%d, s%d, s%d" % (sQL, sQL, sT0))
q0_issue()
A("s_waitcnt vmcnt(0)")
A("s_sub_u32 s%d, s%d, 1" % (sCNT, sCNT))
A("s_cbranch_scc0 Lmq")
A("s_branch Lmqd")
ool.append(L); L = Ls
A("v_cmp_ne_u32 vcc, s%d, v%d" % (sXCC, QP + 3))
A("v_mov_b32 v%d, v%d" % (QP + 2, QP + 4))
A("v_mov_b32 v%d, v%d" % (QP + 3, QP + 5))
A("ds_write_b128 v25, %s" % vr(QP, 4))
A("s_cmp_eq_u64 vcc, 0")
A("s_cselect_b32 s%d, 1, 0x101" % sT0)
A("v_mov_b32 v16, s%d" % sT0)
A("s_waitcnt lgkmcnt(0)")
lds_arrive(4, 16, None)
if VLATE:
    A("s_cmp_eq_u32 s%d, 0" % sY)
    A("s_cbranch_scc1 Lnvf")
    for t in range(8):
        for hf in range(2):
            A("ds_read_b64_tr_b16 %s, v%d offset:%d" % (vr(VF + 4 * t + 2 * hf, 2), VA + t, 4096 * hf))
    LB("Lnvf")
STAMP(15)
A("buffer_load_dwordx2 %s, v%d, %s, s%d offen" % (vr(RES + 2, 2), vX1S, sr(sX, 4), sT3))
FLG = W + 44
soff(sIT, [(sW, 10)], FB)
soff(sQL, [(sA, 12), (sJ, 17)], Q1_OFF)
for k in range(4):
    A("s_add_u32 s%d, s%d, %d" % (sT0, sC, k))
    A("s_and_b32 s%d, s%d, 3" % (sT0, sT0))
    A("s_lshl_b32 s%d, s%d, 10" % (sKO + k, sT0))
A("s_and_b32 s%d, s%d, 1" % (sT0, sC))
A("s_lshl_b32 s%d, s%d, 6" % (sT0, sT0))
A("v_xor_b32 v22, s%d, v22" % sT0); A("v_xor_b32 v23, s%d, v23" % sT0)
A("s_lshl_b32 s%d, s%d, 2" % (sT3, sM))
A("s_add_u32 s%d, s%d, s%d" % (sT3, sT3, sW))
A("s_lshl_b32 s%d, s%d, 8" % (sT3, sT3))
A("v_lshlrev_b32 v21, 7, v%d" % vLANE)
A("v_add_u32 v21, s%d, v21" % sT3)
A("s_lshl_b32 s%d, s%d, 7" % (sT0, sW))
A("s_add_u32 s%d, s%d, %d" % (sT0, sT0, LSE_OFF[0]))
A("v_writelane_b32 v21, s%d, 2" % sT0)
lds_spin(4, 4, vT, mask=0xff)
A("s_cmp_lt_u32 s%d, 256" % sT1)
A("s_cselect_b32 s%d, %d, 0" % (sFAST, int(OPT.get("fast", 1))))
QF = W + 16
for t in range(4):
    A("ds_read_b128 %s, v26 offset:%d" % (vr(QF + 4 * t, 4), 1024 * t))
S = W
qk = []
for t in range(4):
    for T in range(2):
        qk.append(mf(S + 4 * T, KF + 16 * T + 4 * t, QF + 4 * t, None if t == 0 else S + 4 * T))
for t in range(4):
    A("s_waitcnt lgkmcnt(%d)" % (3 - t))
    A(qk[2 * t]); A(qk[2 * t + 1])
def wo_issue():
    C("every wave holds its K fragments: the wo tile may land in the K area")
    for k in range(4):
        A("s_add_u32 m0, s%d, s%d" % (sT5, sKO + k))
        A("s_lshl3_add_u32 s%d, s%d, s%d" % (sT0, sKO + k, sT4))
        A("buffer_load_dwordx4 v%d, %s, s%d offen nt lds" % (22 + (k & 1), sr(sWO, 4), sT0))
if WOP == 0: wo_issue()
if PRET:
    C("bring the first layer's o / lse lines (their sentinels are in place) into L2")
    A("s_mov_b64 exec, 7")
    A("buffer_load_dword v%d, v21, %s, s%d offen sc1" % (W + 40, sr(sWS, 4), sGR))
    A("s_mov_b64 exec, -1")
STAMP(3)
A("s_branch Lk_go")

LB("Llnq")
C("LayerNorm of the row held in XR, then q partial = xn @ wq tile")
X = W
row_stats(XR, vT, X)
A("v_add_f32 v%d, %s, v%d" % (vT + 1, EPS, vT + 1))
A("v_rsq_f32 v%d, v%d" % (vT + 2, vT + 1))
A("s_cmp_eq_u32 s%d, 0" % sLAY)
A("v_mul_f32 v%d, v%d, v%d" % (vT + 3, vT, vT + 2))
for i in range(4):
    A("v_pk_fma_f32 %s, %s, %s, %s op_sel:[0,0,1] op_sel_hi:[1,0,1] neg_lo:[0,0,1] neg_hi:[0,0,1]" % (vr(X + 2 * i, 2), vr(X + 2 * i, 2), vr(vT + 2, 2), vr(vT + 2, 2)))
for i in range(4):
    A("v_cvt_pk_bf16_f32 v%d, v%d, v%d" % (X + 8 + i, X + 2 * i, X + 2 * i + 1))
A("ds_write_b128 v%d, %s" % (vXNW, vr(X + 8, 4)))
A("s_cbranch_scc1 Lq_first")
A("s_waitcnt lgkmcnt(0)")
A("s_barrier")
LB("Lq_go")
BF = W + 16
for t in range(4):
    A("ds_read_b128 %s, v%d offset:%d" % (vr(BF + 4 * t, 4), vXNR, 64 * t))
for t in range(4):
    A("s_waitcnt lgkmcnt(%d)" % (3 - t))
    mfma(W, WQF + 4 * t, BF + 4 * t, None if t == 0 else W)
A("s_cmp_eq_u32 s%d, 0" % sLAY)
A("s_mov_b64 exec, %s" % sr(sMSK, 2))
NOP(6)
A("v_cvt_pk_bf16_f32 v%d, v%d, v%d" % (W + 4, W, W + 1))
A("v_cvt_pk_bf16_f32 v%d, v%d, v%d" % (W + 5, W + 2, W + 3))
A("s_cbranch_scc1 Lh_qst")
fastcmp()
store_local("buffer_store_dwordx2", vr(W + 4, 2), vQST, sQS)
A("s_mov_b64 exec, -1")
A("ds_write_b128 v%d, %s offset:%d" % (vXNW, vr(XR, 4), L_X2 - L_XN))
A("s_mov_b32 s%d, 0" % sY)
for s, d in [(sOL, O_OFF[1] - O_OFF[0]), (sOS, O_OFF[1] - O_OFF[0]), (sLS, LSE_OFF[1] - LSE_OFF[0]), (sPS, P_L)]:
    A("s_add_u32 s%d, s%d, %d" % (s, s, d))
STAMP(2)

C("attention over this workgroup's 128 keys")
if QS:
    C("each wave fetches one k-step of q and shares it through LDS")
    A("s_lshl_b32 s%d, s%d, 10" % (sT3, sW))
    A("s_add_u32 s%d, s%d, s%d" % (sT4, sQL, sT3))
    A("s_add_u32 s%d, s%d, %d" % (sT3, sT3, L_RB + 12288))
    A("v_add_u32 v25, s%d, v%d" % (sT3, vL16))
    A("v_add_u32 v26, %d, v%d" % (L_RB + 12288, vL16))
    ppoll(lambda k: A("buffer_load_dwordx4 %s, v%d, %s, s%d offen sc1" % (vr(W + 32 + 4 * k, 4), vL16, sr(sWS, 4), sT4)),
          lambda k: range(W + 32 + 4 * k, W + 36 + 4 * k), 1, vT, lambda k: ["ds_write_b128 v25, %s" % vr(W + 32 + 4 * k, 4)], pre=QPRE, gap=QGAP, tag=0)
    A("s_waitcnt lgkmcnt(0)")
    A("s_barrier")
    for t in range(4):
        A("ds_read_b128 %s, v26 offset:%d" % (vr(QF + 4 * t, 4), 1024 * t))
    for t in range(4):
        A("s_waitcnt lgkmcnt(%d)" % (3 - t))
        A(qk[2 * t]); A(qk[2 * t + 1])
    touch_stub("k")
else:
    def iq(k):
        for t in range(4):
            A("buffer_load_dwordx4 %s, v%d, %s, s%d offen offset:%d sc1" % (vr(QF + 16 * k + 4 * t, 4), vL16, sr(sWS, 4), sQL, 1024 * t))
    def qks(k):
        return [mf(S + 4 * T, KF + 16 * T + 4 * t, QF + 16 * k + 4 * t, None if t == 0 else S + 4 * T) for t in range(4) for T in range(2)]
    ppoll(iq, lambda k: range(QF + 16 * k, QF + 16 * k + 16), 4, vT, qks, pre=QPRE, gap=QGAP, tag=0, stub="k", per_load=lambda k, i: qks(k)[2 * i:2 * i + 2])
STAMP(3)
LB("Lk_go")
NOP(5)
for ctl in ["row_ror:4", "row_ror:8"]:
    for i in range(8):
        A("v_add_f32_dpp v%d, v%d, v%d %s row_mask:0xf bank_mask:0xf" % (S + i, S + i, S + i, ctl))
A("v_max3_f32 v%d, v%d, v%d, v%d" % (vT, S, S + 1, S + 2))
A("v_max3_f32 v%d, v%d, v%d, v%d" % (vT + 1, S + 3, S + 4, S + 5))
A("v_max3_f32 v%d, v%d, v%d, v%d" % (vT, vT, S + 6, S + 7))
A("v_max_f32 v%d, v%d, v%d" % (vT, vT, vT + 1))
A("v_mov_b32 v%d, v%d" % (vT + 1, vT))
A("s_nop 1")
A("v_permlane16_swap_b32 v%d, v%d" % (vT, vT + 1))
A("v_max_f32 v%d, v%d, v%d" % (vT, vT, vT + 1))
A("v_mov_b32 v%d, v%d" % (vT + 1, vT))
A("s_nop 1")
A("v_permlane32_swap_b32 v%d, v%d" % (vT, vT + 1))
A("v_max_f32 v%d, v%d, v%d" % (vT, vT, vT + 1))
A("v_mul_f32 v%d, s%d, v%d" % (vT + 2, sSC, vT))
for i in range(8):
    A("v_fma_f32 v%d, v%d, s%d, -v%d" % (S + i, S + i, sSC, vT + 2))
for i in range(8):
    A("v_exp_f32 v%d, v%d" % (S + i, S + i))
for p in range(4):
    A("s_mov_b64 exec, %s" % sr(sPM + 2 * p, 2))
    for i in range(4):
        A("v_cvt_pk_bf16_f32 v%d, v%d, v%d" % (PM + 4 * p + i, S + 2 * i, S + 2 * i + 1))
A("s_mov_b64 exec, -1")
STAMP(4)
A("s_cmp_lg_u32 s%d, 0" % sLAY)
A("s_cbranch_scc1 Lv_go")
wait_w0(int(OPT.get("vw", 5 + PRET)))
if WOP == 1: wo_issue()
A("buffer_load_dwordx4 %s, v%d, %s, s%d offen sc1" % (vr(FLG, 4), vL16, sr(sWS, 4), sIT))
STAMP(6)
A("s_cmp_lg_u32 s%d, 0" % sY)
A("s_cbranch_scc1 Lv_have")
for t in range(8):
    for hf in range(2):
        A("ds_read_b64_tr_b16 %s, v%d offset:%d" % (vr(VF + 4 * t + 2 * hf, 2), VA + t, 4096 * hf))
A("s_waitcnt lgkmcnt(0)")
LB("Lv_have")
if TOT or MEAS:
    A("s_memrealtime s[42:43]"); A("s_waitcnt lgkmcnt(0)"); A("s_mov_b32 s97, s42")
A("s_cmp_lg_u32 s%d, 0" % sLAY)
LB("Lv_go")
OA = W + 8
mfma(W + 16, ONES, PM, None)
for p in range(4):
    for T in range(2):
        mfma(OA + 4 * T, VF + 4 * (2 * p + T), PM + 4 * p, None if p == 0 else OA + 4 * T)
A("s_mov_b64 exec, %s" % sr(sMSK, 2))
A("v_mov_b32 v%d, v%d" % (vT + 3, W + 16))
A("ds_write_b64 v%d, %s" % (vMLW, vr(vT + 2, 2)))
A("s_mov_b64 exec, -1")
NOP(3)
A("ds_write_b128 v%d, %s" % (vRBW, vr(OA, 4)))
A("ds_write_b128 v%d, %s offset:64" % (vRBW, vr(OA + 4, 4)))
A("s_waitcnt lgkmcnt(0)")
A("s_cbranch_scc1 Lrb_bar")
lds_arrive(12, vT + 4)
if WOP == 2: wo_issue()
lds_spin(12, 4, vT + 4)
A("s_branch Lrb_go")
LB("Lrb_bar")
A("s_barrier")
LB("Lrb_go")
A("ds_read_b128 %s, v%d" % (vr(W, 4), vMLR))
A("ds_read_b128 %s, v%d offset:16" % (vr(W + 4, 4), vMLR))
for w in range(4):
    A("ds_read_b64 %s, v%d offset:%d" % (vr(W + 8 + 2 * w, 2), vRBR, RBS * w))
A("v_mov_b32 v%d, 0" % (vT + 4))
fastcmp()
A("s_waitcnt lgkmcnt(4)")
A("v_max3_f32 v%d, v%d, v%d, v%d" % (vT, W, W + 2, W + 4))
A("v_max_f32 v%d, v%d, v%d" % (vT, vT, W + 6))
for w in range(4): A("v_sub_f32 v%d, v%d, v%d" % (W + 2 * w, W + 2 * w, vT))
for w in range(4): A("v_exp_f32 v%d, v%d" % (W + 2 * w, W + 2 * w))
A("v_mul_f32 v%d, v%d, v%d" % (vT + 1, W, W + 1))
for w in range(1, 4): A("v_fmac_f32 v%d, v%d, v%d" % (vT + 1, W + 2 * w, W + 2 * w + 1))
A("s_waitcnt lgkmcnt(0)")
A("v_pk_mul_f32 %s, %s, %s op_sel_hi:[1,0]" % (vr(W + 8, 2), vr(W + 8, 2), vr(W, 2)))
A("v_rcp_f32 v%d, v%d" % (vT + 2, vT + 1))
A("v_pk_fma_f32 %s, %s, %s, %s op_sel_hi:[1,0,1]" % (vr(W + 8, 2), vr(W + 10, 2), vr(W + 2, 2), vr(W + 8, 2)))
A("v_log_f32 v%d, v%d" % (vT + 5, vT + 1))
for w in range(2, 4):
    A("v_pk_fma_f32 %s, %s, %s, %s op_sel_hi:[1,0,1]" % (vr(W + 8, 2), vr(W + 8 + 2 * w, 2), vr(W + 2 * w, 2), vr(W + 8, 2)))
A("v_pk_mul_f32 %s, %s, %s op_sel_hi:[1,0]" % (vr(W + 8, 2), vr(W + 8, 2), vr(vT + 2, 2)))
A("v_add_f32 v%d, v%d, v%d" % (vT + 5, vT + 5, vT))
A("v_cvt_pk_bf16_f32 v%d, v%d, v%d" % (W + 8, W + 8, W + 9))
store_local("buffer_store_dword", "v%d" % (W + 8), vOST, sOS)
A("s_mov_b64 exec, 1")
store_local("buffer_store_dword", "v%d" % (vT + 5), vT + 4, sLS)
A("s_mov_b64 exec, -1")
STAMP(5)

C("wo phase: wave = batch, rows = key splits")
OF = W; LS = W + 32; DA = WQF
assert LSE_OFF[1] - O_OFF[1] == LSE_OFF[0] - O_OFF[0]
def io(k):
    for t in range(4):
        A("buffer_load_dwordx4 %s, v%d, %s, s%d offen offset:%d sc1" % (vr(OF + 16 * k + 4 * t, 4), [vLSE, vLS2, vOLD, vOLD][t], sr(sWS, 4), sOL, 512 * t))
A("s_cmp_lg_u32 s%d, 0" % sLAY)
A("s_cbranch_scc1 Lo_go")
C("first layer: wo tile landed -> fragments; every workgroup has announced its clears")
if WOP == 3: wo_issue()
A("s_waitcnt vmcnt(%d)" % (2 if WOP < 3 else 0))
STAMP(13)
A("s_mov_b32 s%d, %s" % (sT4, hx(SPIN)))
LB("Lap")
A("v_and_b32 v24, -8, v%d" % (FLG + 1))
A("v_cmp_ne_u32 vcc, s%d, v%d" % (sTG1, FLG))
A("v_cmp_ne_u32 %s, s%d, v24" % (sr(sH, 2), sTG2))
A("s_or_b64 vcc, vcc, %s" % sr(sH, 2))
A("s_cbranch_vccnz Lar")
LB("Lad")
lds_arrive(16, 24)
for i in range(2):
    A("v_lshlrev_b32 v%d, 16, v%d" % (W + 40 + 2 * i, RES + 2 + i))
    A("v_and_b32 v%d, 0xffff0000, v%d" % (W + 41 + 2 * i, RES + 2 + i))
for i in range(4): A("v_mov_b32 v%d, v%d" % (RES + i, W + 40 + i))
for ct in range(4): A("v_xor_b32 v%d, %d, v%d" % (W + 40 + ct, 32 * ct, vWT))
for ct in range(4): A("v_add_u32 v%d, %d, v%d" % (W + 40 + ct, L_WO, W + 40 + ct))
lds_spin(16, 4, 24)
STAMP(14)
A("s_mov_b32 s%d, 1" % sY)
LB("Lo_go")
A("s_mov_b32 s%d, 0x55555555" % sT4)
A("s_mov_b32 s%d, 0x55555555" % sT5)
def pre_o():
    A("s_cmp_eq_u32 s%d, 0" % sY)
    A("s_cbranch_scc1 Lo_nof")
    A("s_mov_b32 s%d, 0" % sY)
    for t in range(4):
        for ct in range(4):
            for hf in range(2):
                A("ds_read_b64_tr_b16 %s, v%d offset:%d" % (vr(WOF + 16 * ct + 4 * t + 2 * hf, 2), W + 40 + ct, 4096 * t + 512 * hf))
    LB("Lo_nof")
ool.append(["Lar:", "    s_lshl_b32 s%d, s%d, 10" % (sT5, sW), "    s_add_u32 s%d, s%d, %s" % (sT5, sT5, hx(FB)),
            "    buffer_load_dwordx4 %s, v%d, %s, s%d offen sc1" % (vr(FLG, 4), vL16, sr(sWS, 4), sT5),
            "    s_waitcnt vmcnt(0)", "    s_sub_u32 s%d, s%d, 1" % (sT4, sT4), "    s_cbranch_scc0 Lap", "    s_branch Lad"])
C("softmax over the 8 key splits: lanes n>=8 hold own lse in OF[0:3], the other four in OF[4:7]")
vU = vT + 2
def wo_all(k, t):
    o = OF + 16 * k
    m = [mf(DA + 4 * ct, o + 4 * t, WOF + 16 * ct + 4 * t, None if t == 0 else DA + 4 * ct) for ct in range(4)]
    va = ["v_max3_f32 v%d, v%d, v%d, v%d" % (vU, o, o + 1, o + 2), "v_max3_f32 v%d, v%d, v%d, v%d" % (vU + 1, o + 3, o + 4, o + 5),
          "v_max3_f32 v%d, v%d, v%d, v%d" % (vU, vU, o + 6, o + 7), "v_max_f32 v%d, v%d, v%d" % (vU, vU, vU + 1)]
    va += ["v_sub_f32 v%d, v%d, v%d" % (LS + i, o + i, vU) for i in range(4)]
    va += ["v_exp_f32 v%d, v%d" % (LS + i, LS + i) for i in range(4)]
    vb = ["v_mov_b32_dpp v%d, v%d row_ror:8 row_mask:0xf bank_mask:0x3" % (LS + i, LS + i) for i in range(4)]
    vb += ["v_add_f32 v%d, v%d, v%d" % (vU, LS, LS + 1), "v_add_f32 v%d, v%d, v%d" % (vU + 1, LS + 2, LS + 3),
           "v_add_f32 v%d, v%d, v%d" % (vU, vU, vU + 1), "v_mov_b32 v%d, v%d" % (vU + 1, vU)]
    f = {0: [], 1: va[:4], 2: va[4:], 3: vb}[t]
    out = ["s_waitcnt lgkmcnt(%d)" % [15, 15, 8, 0][t]] if t != 1 else []
    for x in m:
        out.append(x)
        for _ in range(2):
            if f: out.append(f.pop(0))
    return out
assert PROG and OGAP < 0
ppoll(io, lambda k: range(OF + 16 * k, OF + 16 * k + 16), 4, vT, None, pre=OPRE, gap=OGAP, mid=pre_o, tag=1, per_load=wo_all)
STAMP(7)
A("v_permlane16_swap_b32 v%d, v%d" % (vU, vU + 1))
A("v_mul_f32 v%d, v%d, v%d" % (DA, DA, LS))
A("v_add_f32 v%d, v%d, v%d" % (vT, vU, vU + 1))
A("v_mul_f32 v%d, v%d, v%d" % (DA + 4, DA + 4, LS))
A("v_rcp_f32 v%d, v%d" % (vT, vT))
A("v_mul_f32 v%d, v%d, v%d" % (DA + 8, DA + 8, LS))
for i in range(1, 4):
    for ct in range(3):
        A("v_fmac_f32 v%d, v%d, v%d" % (DA + 4 * ct, DA + 4 * ct + i, LS + i))
    if i == 1: A("v_mul_f32 v%d, v%d, v%d" % (DA + 12, DA + 12, LS))
for i in range(1, 4): A("v_fmac_f32 v%d, v%d, v%d" % (DA + 12, DA + 12 + i, LS + i))
A("v_permlane16_swap_b32 v%d, v%d" % (DA, DA + 4))
A("s_nop 0")
A("v_permlane16_swap_b32 v%d, v%d" % (DA + 8, DA + 12))
A("v_add_f32 v%d, v%d, v%d" % (DA, DA, DA + 4))
A("v_add_f32 v%d, v%d, v%d" % (DA + 8, DA + 8, DA + 12))
A("s_nop 1")
A("v_permlane32_swap_b32 v%d, v%d" % (DA, DA + 8))
A("v_mul_f32 v%d, v%d, v%d" % (DA, DA, vT))
A("s_cmp_lg_u32 s%d, 0" % sLAY)
A("s_nop 0")
A("v_mov_b32_dpp v%d, v%d quad_perm:[1,0,3,2] row_mask:0xf bank_mask:0xf" % (DA + 1, DA))
A("s_mov_b64 exec, %s" % sr(sT4, 2))
A("v_cvt_pk_bf16_f32 v%d, v%d, v%d" % (DA, DA, DA + 1))
A("buffer_store_dword v%d, v%d, %s, s%d offen sc1" % (DA, vPST, sr(sWS, 4), sPS))
A("s_mov_b64 exec, -1")
STAMP(8)
A("s_cbranch_scc1 Lfinal")

if PRET:
    C("same for the remaining lines of the group's mailboxes")
    soff(sT1, [(sM, 11), (sW, 9), (sJ, 17)], CLRB_OFF)
    A("v_lshlrev_b32 v21, 7, v%d" % vLANE)
    A("s_mov_b64 exec, 15")
    A("buffer_load_dword v%d, v21, %s, s%d offen sc1" % (W + 47, sr(sWS, 4), sT1))
    A("s_mov_b64 exec, -1")
A("s_cmp_lg_u32 s%d, 0" % sW)
A("s_cbranch_scc1 Ltab")
C("stage 1 (wave 0): reduce 32 head partials of 64 outputs, add residual, publish x1 slice")
soff(sT1, [(sA, 15), (sC, 12)], PB)
soff(sT2, [(sA, 10), (sC, 7), (sJ, 17)], X1_OFF)
A("s_mov_b32 s%d, 0x00ff00ff" % sT4)
A("s_mov_b32 s%d, 0" % sT5)
def ip(k):
    for i in range(4):
        A("buffer_load_dwordx4 %s, v%d, %s, s%d offen offset:%d sc1" % (vr(W + 20 * k + 4 * i, 4), vL16, sr(sWS, 4), sT1, 1024 * i))
if GW: A("s_waitcnt vmcnt(0)")
ppoll(ip, lambda k: range(W + 20 * k, W + 20 * k + 16), 4, vT, lambda k: [mf(W + 16, SEL, W + 20 * k + 4 * i, None if i == 0 else W + 16) for i in range(4)], pre=GPRE, gap=GGAP, tag=2,
      per_load=lambda k, i: [mf(W + 16, SEL, W + 20 * k + 4 * i, None if i == 0 else W + 16)])
STAMP(9)
fastcmp()
NOP(3)
for i in range(4):
    A("v_add_f32_dpp v%d, v%d, v%d row_ror:8 row_mask:0xf bank_mask:0xf" % (W + 16 + i, W + 16 + i, W + 16 + i))
A("s_mov_b64 exec, %s" % sr(sT4, 2))
A("v_pk_add_f32 %s, %s, %s" % (vr(W + 16, 2), vr(W + 16, 2), vr(RES, 2)))
A("v_pk_add_f32 %s, %s, %s" % (vr(W + 18, 2), vr(W + 18, 2), vr(RES + 2, 2)))
A("v_cvt_pk_bf16_f32 v%d, v%d, v%d" % (W + 16, W + 16, W + 17))
A("v_cvt_pk_bf16_f32 v%d, v%d, v%d" % (W + 17, W + 18, W + 19))
store_local("buffer_store_dwordx2", vr(W + 16, 2), vX1S, sT2)
A("s_mov_b64 exec, -1")
LB("Ltabdone")
soff(sT3, [(sW, 10), (sJ, 17)], X1_OFF)
def ix(k):
    A("buffer_load_dwordx4 %s, v%d, %s, s%d offen sc1" % (vr([XR, RES][k], 4), vL16, sr(sWS, 4), sT3))
wqf_reads()
ppoll(ix, lambda k: range([XR, RES][k], [XR, RES][k] + 4), 1, vT, lambda k: ["s_waitcnt lgkmcnt(0)", "v_readfirstlane_b32 s%d, v%d" % (sT1, vT + 2)],
      pre=XPRE, gap=XGAP, mid=lambda: A("ds_read_b32 v%d, v%d offset:20" % (vT + 2, vFL)), tag=3,
      fix=["v_mov_b32 v%d, v%d" % (XR + i, RES + i) for i in range(4)])
A("s_cmp_lt_u32 s%d, 3" % sT1)
A("s_cbranch_scc1 Ltw")
LB("Ltwd")
STAMP(10)

LB("Lmix")
C("x <- x + g(LN(LN(x))) ; g is tabulated for every bf16 input in range, evaluated directly otherwise")
X = W; HB = W + 8; RT = W + 12; AD = W + 16; Y = W + 24
row_stats(XR, vT, X)
A("v_add_f32 v%d, %s, v%d" % (vT + 2, EPS, vT + 1))
A("v_rsq_f32 v%d, v%d" % (vT + 2, vT + 2))
A("v_mov_b32 v%d, %s" % (vT + 4, hx(LO2 | (LO2 << 16))))
A("s_movk_i32 s%d, %d" % (sT5, NENT * 4))
A("v_mul_f32 v%d, v%d, v%d" % (vT + 1, vT + 1, vT + 2))
A("v_fmaak_f32 v%d, v%d, v%d, %s" % (vT + 1, vT + 1, vT + 2, EPS))
A("v_rsq_f32 v%d, v%d" % (vT + 1, vT + 1))
A("s_nop 0")
A("v_mul_f32 v%d, v%d, v%d" % (vT + 2, vT + 2, vT + 1))
A("v_mul_f32 v%d, v%d, v%d" % (vT + 3, vT, vT + 2))
for i in range(4):
    A("v_pk_fma_f32 %s, %s, %s, %s op_sel:[0,0,1] op_sel_hi:[1,0,1] neg_lo:[0,0,1] neg_hi:[0,0,1]" % (vr(AD + 2 * i, 2), vr(X + 2 * i, 2), vr(vT + 2, 2), vr(vT + 2, 2)))
for i in range(4):
    A("v_cvt_pk_bf16_f32 v%d, v%d, v%d" % (HB + i, AD + 2 * i, AD + 2 * i + 1))
for i in range(4):
    A("v_pk_lshlrev_b16 v%d, 1, v%d op_sel_hi:[0,1]" % (RT + i, HB + i))
    A("v_pk_lshrrev_b16 v%d, 15, v%d op_sel_hi:[0,1]" % (AD + i, HB + i))
for i in range(4):
    A("v_or_b32 v%d, v%d, v%d" % (RT + i, RT + i, AD + i))
for i in range(4):
    A("v_pk_sub_u16 v%d, v%d, v%d" % (RT + i, RT + i, vT + 4))
for i in range(4):
    A("v_lshlrev_b32_sdwa v%d, 2, v%d dst_sel:DWORD dst_unused:UNUSED_PAD src0_sel:DWORD src1_sel:WORD_0" % (AD + 2 * i, RT + i))
    A("v_lshlrev_b32_sdwa v%d, 2, v%d dst_sel:DWORD dst_unused:UNUSED_PAD src0_sel:DWORD src1_sel:WORD_1" % (AD + 2 * i + 1, RT + i))
    A("ds_read_b32 v%d, v%d offset:%d" % (Y + 2 * i, AD + 2 * i, L_TAB))
    A("ds_read_b32 v%d, v%d offset:%d" % (Y + 2 * i + 1, AD + 2 * i + 1, L_TAB))
A("v_max3_u32 v%d, v%d, v%d, v%d" % (vT, AD, AD + 1, AD + 2))
A("v_max3_u32 v%d, v%d, v%d, v%d" % (vT + 1, AD + 3, AD + 4, AD + 5))
A("v_max3_u32 v%d, v%d, v%d, v%d" % (vT, vT, AD + 6, AD + 7))
A("v_max_u32 v%d, v%d, v%d" % (vT, vT, vT + 1))
A("v_cmp_le_u32 %s, s%d, v%d" % (sr(sH, 2), sT5, vT))
A("s_waitcnt lgkmcnt(5)")
A("v_max3_u32 v%d, v%d, v%d, v%d" % (vT, Y, Y + 1, Y + 2))
A("s_waitcnt lgkmcnt(2)")
A("v_max3_u32 v%d, v%d, v%d, v%d" % (vT + 1, Y + 3, Y + 4, Y + 5))
A("s_waitcnt lgkmcnt(0)")
A("v_max3_u32 v%d, v%d, v%d, v%d" % (vT, vT, Y + 6, Y + 7))
A("v_max_u32 v%d, v%d, v%d" % (vT, vT, vT + 1))
A("v_cmp_eq_u32 vcc, -1, v%d" % vT)
LB("Lslowdone")
for i in range(4):
    A("v_pk_add_f32 %s, %s, %s" % (vr(vT + 2 + 2 * i, 2), vr(X + 2 * i, 2), vr(Y + 2 * i, 2)))
A("s_or_b64 vcc, vcc, %s" % sr(sH, 2))
A("s_cbranch_vccnz Lslow")
A("s_cmp_lg_u32 s%d, 0" % sLAY)
for i in range(4):
    A("v_cvt_pk_bf16_f32 v%d, v%d, v%d" % (XR + i, vT + 2 + 2 * i, vT + 3 + 2 * i))
STAMP(11)
A("s_cbranch_scc1 Lout")
A("s_mov_b32 s%d, 1" % sLAY)
if TOT or MEAS: A("s_memrealtime s[100:101]")
if DIAG: A("v_mov_b32 v28, v30")
A("s_branch Llnq")

L.append(".p2align 6"); LB("Lst_fin"); A("s_setpc_b64 %s" % sr(sRET, 2)); stubs.append("fin")
LB("Lfinal")
A("s_cmp_ge_u32 s2, 4")
A("s_cbranch_scc1 Lepoch")
C("workgroup b: reduce the 32 head partials of row b, add x2, mixer, store")
soff(sT1, [(2, 15), (sW, 13)], PB + P_L)
A("s_add_u32 s%d, s%d, 4096" % (sT2, sT1))
A("s_mul_i32 s%d, s2, %d" % (sT0, XS))
A("s_lshl_b32 s%d, s%d, 8" % (sT3, sW))
A("s_add_u32 s%d, s%d, s%d" % (sT0, sT0, sT3))
A("s_add_u32 s%d, s%d, %d" % (sT0, sT0, L_X2))
A("v_add_u32 v%d, s%d, v%d" % (vT + 4, sT0, vX1S))
A("s_add_u32 s%d, s%d, %d" % (sT3, sT3, L_XN))
A("v_add_u32 v%d, s%d, v%d" % (vT + 5, sT3, vX1S))
A("ds_read_b64 %s, v%d" % (vr(PM, 2), vT + 4))
A("ds_read_b64 %s, v%d offset:128" % (vr(PM + 2, 2), vT + 4))
A("s_mov_b32 s%d, 0x00ff00ff" % sT4)
A("s_mov_b32 s%d, 0" % sT5)
if XENT:
    A("s_cmp_lg_u32 s%d, 3" % sW)
    A("s_cbranch_scc1 Lfn3")
    A("ds_read_b32 v%d, v%d offset:48" % (vT, vFL))
    A("s_waitcnt lgkmcnt(0)")
    A("v_readfirstlane_b32 s%d, v%d" % (sT0, vT))
    A("s_cmp_eq_u32 s%d, 0" % sT0)
    A("s_cbranch_scc1 Lfn3")
    A("s_mov_b32 s%d, %s" % (sCNT, hx(TB)))
    for i in range(XENT * 4 // 1024):
        A("buffer_load_dwordx4 %s, v%d, %s, s%d offen offset:%d sc1" % (vr(W + 4 * i, 4), vL16, sr(sWS, 4), sCNT, 1024 * i))
    A("v_add_u32 v%d, %d, v%d" % (vT + 6, L_TAB, vL16))
    A("s_waitcnt vmcnt(0)")
    for i in range(XENT * 4 // 1024):
        A("ds_write_b128 v%d, %s offset:%d" % (vT + 6, vr(W + 4 * i, 4), 1024 * i))
    LB("Lfn3")
A("s_waitcnt lgkmcnt(0)")
if GW: A("s_waitcnt vmcnt(0)")
for i in range(4):
    A("v_lshlrev_b32 v%d, 16, v%d" % (PM + 4 + 2 * i, PM + i))
    A("v_and_b32 v%d, 0xffff0000, v%d" % (PM + 5 + 2 * i, PM + i))
if "bias" in OPT:
    for i in range(8): A("v_add_f32 v%d, %s, v%d" % (PM + 4 + i, hx(f2u(float(OPT["bias"]))), PM + 4 + i))
FS = [KF, VF]
def ifin(k):
    for i in range(8):
        A("buffer_load_dwordx4 %s, v%d, %s, s%d offen offset:%d sc1" % (vr(FS[k] + 4 * i, 4), vL16, sr(sWS, 4), sT1 if i < 4 else sT2, 1024 * (i & 3)))
def fs(k):
    o = []
    for i in range(4):
        o.append(mf(W + 32, SEL, FS[k] + 4 * i, None if i == 0 else W + 32))
        o.append(mf(W + 36, SEL, FS[k] + 16 + 4 * i, None if i == 0 else W + 36))
    return o
ppoll(ifin, lambda k: range(FS[k], FS[k] + 32), 8, vT, fs, pre=GPRE, gap=GGAP, tag=2,
      per_load=lambda k, i: [mf(W + 32 + 4 * (i >> 2), SEL, FS[k] + 4 * i, None if (i & 3) == 0 else W + 32 + 4 * (i >> 2))])
STAMP(9)
NOP(2)
for i in range(8):
    A("v_add_f32_dpp v%d, v%d, v%d row_ror:8 row_mask:0xf bank_mask:0xf" % (W + 32 + i, W + 32 + i, W + 32 + i))
A("s_mov_b64 exec, %s" % sr(sT4, 2))
for i in range(4):
    A("v_pk_add_f32 %s, %s, %s" % (vr(W + 32 + 2 * i, 2), vr(W + 32 + 2 * i, 2), vr(PM + 4 + 2 * i, 2)))
for i in range(4):
    A("v_cvt_pk_bf16_f32 v%d, v%d, v%d" % (W + 32 + i, W + 32 + 2 * i, W + 33 + 2 * i))
A("ds_write_b64 v%d, %s" % (vT + 5, vr(W + 32, 2)))
A("ds_write_b64 v%d, %s offset:128" % (vT + 5, vr(W + 34, 2)))
A("s_mov_b64 exec, -1")
A("s_cmp_lg_u32 s%d, 0" % sW)
A("s_waitcnt lgkmcnt(0)")
A("s_barrier")
A("s_cbranch_scc1 Lfin_exit")
A("ds_read_b128 %s, v%d" % (vr(XR, 4), vXNW))
A("s_waitcnt lgkmcnt(0)")
STAMP(10)
A("s_branch Lmix")
L.append(".p2align 6"); LB("Lst_out"); A("s_setpc_b64 %s" % sr(sRET, 2)); stubs.append("out")
LB("Lout")
A("s_lshl_b32 s%d, s2, 10" % sT0)
A("buffer_store_dwordx4 %s, v%d, %s, s%d offen" % (vr(XR, 4), vL16, sr(sOUT, 4), sT0))
if DBL:
    A("s_cmp_lg_u32 s2, 0")
    A("s_cbranch_scc1 Lfin_exit")
if DBL:
    A("s_waitcnt vmcnt(0)")
    A("s_memrealtime s[10:11]")
    A("s_waitcnt lgkmcnt(0)")
    A("s_sub_u32 s12, s10, s98")
    if "pad" in OPT:
        A("s_mov_b32 s10, s98"); A("s_mov_b32 s12, %d" % (100 * int(OPT["pad"])))
    LB("Ldbl")
    A("s_memrealtime s[14:15]")
    A("s_waitcnt lgkmcnt(0)")
    A("s_sub_u32 s13, s14, s10")
    A("s_cmp_lt_u32 s13, s12")
    A("s_cbranch_scc1 Ldbl")
LB("Lfin_exit")
if MEAS:
    src = {"pv": "s97", "mix": "s100", "entry": "s98"}.get(OPT["q"], "s98")
    A("s_waitcnt vmcnt(0) lgkmcnt(0)")
    if OPT["q"] == "end":
        A("s_memrealtime s[42:43]"); A("s_waitcnt lgkmcnt(0)"); src = "s42"
    LB("Lms0")
    A("s_memrealtime s[14:15]"); A("s_waitcnt lgkmcnt(0)"); A("s_sub_u32 s13, s14, s98"); A("s_cmp_lt_u32 s13, 1600"); A("s_cbranch_scc1 Lms0")
    A("s_mov_b64 exec, 1")
    A("v_mov_b32 v16, %s" % src)
    A("s_not_b32 s10, s98")
    A("v_mov_b32 v17, s10")
    A("global_atomic_umax v[30:31], v16, off sc1")
    A("global_atomic_umax v[30:31], v17, off offset:128 sc1")
    A("s_or_b32 s10, s2, s%d" % sW)
    A("s_cmp_lg_u32 s10, 0")
    A("s_cbranch_scc1 Lend")
    LB("Lms1")
    A("s_memrealtime s[14:15]"); A("s_waitcnt lgkmcnt(0)"); A("s_sub_u32 s13, s14, s98"); A("s_cmp_lt_u32 s13, 4000"); A("s_cbranch_scc1 Lms1")
    A("global_load_dword v16, v[30:31], off sc1")
    A("global_load_dword v17, v[30:31], off offset:128 sc1")
    A("s_waitcnt vmcnt(0)")
    A("v_readfirstlane_b32 s10, v16"); A("v_readfirstlane_b32 s11, v17")
    A("s_not_b32 s11, s11"); A("s_sub_u32 s10, s10, s11"); A("s_lshl_b32 s10, s10, 2"); A("s_add_u32 s12, s10, 4200")
    A("s_min_u32 s12, s12, 20000")
    LB("Lms2")
    A("s_memrealtime s[14:15]"); A("s_waitcnt lgkmcnt(0)"); A("s_sub_u32 s13, s14, s98"); A("s_cmp_lt_u32 s13, s12"); A("s_cbranch_scc1 Lms2")
if TOT:
    A("s_waitcnt vmcnt(0)")
    A("s_memrealtime s[10:11]")
    A("s_waitcnt lgkmcnt(0)")
    A("v_mov_b32 v16, s98")
    A("v_mov_b32 v17, s10")
    A("v_mov_b32 v18, s100")
    A("v_mov_b32 v19, s97")
    soff(sT2, [(2, 6), (sW, 4)], STB)
    A("v_mov_b32 v20, 0")
    A("s_mov_b64 exec, 1")
    A("buffer_store_dwordx4 v[16:19], v20, %s, s%d offen" % (sr(sWS, 4), sT2))
if DIAG:
    A("s_waitcnt vmcnt(0)")
    STAMP(12)
    if DIAG == 2:
        A("s_or_b32 s%d, s2, s%d" % (sT0, sW))
        A("s_cmp_lg_u32 s%d, 0" % sT0)
        A("s_cbranch_scc1 Lend")
        A("v_readlane_b32 s%d, v28, 0" % sT2)
        for k, (r, i) in enumerate([(31, 10), (31, 12), (28, 1), (28, 2), (28, 6), (28, 5), (28, 7), (28, 8), (28, 9), (28, 10), (28, 11), (30, 3), (30, 5), (30, 8), (30, 9), (30, 12)]):
            A("v_readlane_b32 s%d, v%d, %d" % (sT3, r, i))
            A("s_sub_u32 s%d, s%d, s%d" % (sT3, sT3, sT2))
            A("s_nop 0")
            A("v_writelane_b32 v17, s%d, %d" % (sT3, k))
        A("v_lshlrev_b32 v16, 2, v%d" % vLANE)
        A("s_mov_b64 exec, 0xffff")
        A("global_store_dword v16, v17, s[100:101]")
        A("s_endpgm")
    soff(sT1, [(2, 10), (sW, 7)], STB)
    A("v_lshlrev_b32 v16, 2, v%d" % vLANE)
    A("s_mov_b64 exec, 0xffff")
    A("buffer_store_dword v28, v16, %s, s%d offen" % (sr(sWS, 4), sT1))
    A("buffer_store_dword v30, v16, %s, s%d offen offset:64" % (sr(sWS, 4), sT1))
    A("s_add_u32 s%d, s%d, 0x40000" % (sT1, sT1))
    A("buffer_store_dword v31, v16, %s, s%d offen" % (sr(sWS, 4), sT1))
LB("Lend")
A("s_endpgm")
LB("Lepoch")
if int(OPT.get("wb", 0)):
    A("s_cmp_lg_u32 s%d, 0" % sW)
    A("s_cbranch_scc1 Lnowb")
    A("s_waitcnt vmcnt(0)")
    A("buffer_wbl2 sc1")
    LB("Lnowb")
C("every workgroup has used the old launch tag long ago: workgroup 4 advances it")
A("s_lshl_b32 s%d, s%d, 8" % (sT0, sW))
A("s_add_u32 s%d, s%d, s2" % (sT0, sT0))
A("s_cmp_lg_u32 s%d, 4" % sT0)
A("s_cbranch_scc1 Lfin_exit")
A("v_mov_b32 v16, s%d" % sTG1)
A("v_mov_b32 v17, %s" % hx(EPO))
A("s_mov_b64 exec, 1")
A("buffer_store_dword v16, v17, %s, 0 offen sc1" % sr(sWS, 4))
A("s_mov_b64 exec, -1")
A("s_branch Lfin_exit")

L.append(".p2align 6"); LB("Lst_tab"); A("s_setpc_b64 %s" % sr(sRET, 2)); stubs.append("tab")
LB("Ltab")
C("waves 2,3: gather the main part of the g(h) table into LDS ; wave 1: the lowest octaves, best effort")
NTL = NOCT * 1024 // 2 // 1024
A("s_cmp_eq_u32 s%d, 1" % sW)
A("s_cbranch_scc1 Lext")
A("s_sub_u32 s%d, s%d, 2" % (sT1, sW))
A("s_mul_i32 s%d, s%d, %d" % (sT1, sT1, NTL * 1024))
A("s_add_u32 s%d, s%d, %d" % (sT1, sT1, XENT * 4))
A("v_add_u32 v%d, s%d, v%d" % (vT + 4, sT1, vL16))
A("v_add_u32 v%d, %d, v%d" % (vT + 4, L_TAB, vT + 4))
A("s_add_u32 s%d, s%d, %s" % (sT1, sT1, hx(TB)))
A("s_add_u32 s%d, s%d, 4096" % (sT2, sT1))
def it():
    for i in range(NTL):
        A("buffer_load_dwordx4 %s, v%d, %s, s%d offen offset:%d sc1" % (vr(W + 4 * i, 4), vL16, sr(sWS, 4), sT1 if i < 4 else sT2, 1024 * (i & 3)))
poll(it, range(W, W + 4 * NTL), vT, back="s_sleep %d" % int(OPT.get("tsl", 16)))
for i in range(NTL):
    A("ds_write_b128 v%d, %s offset:%d" % (vT + 4, vr(W + 4 * i, 4), 1024 * i))
A("s_waitcnt lgkmcnt(0)")
lds_arrive(20, vT + 4)
STAMP(9)
A("s_branch Ltabdone")
def ext_load(d):
    for i in range(XENT * 4 // 1024):
        A("buffer_load_dwordx4 %s, v%d, %s, s%d offen offset:%d sc1" % (vr(d + 4 * i, 4), vL16, sr(sWS, 4), sT4, 1024 * i))
def ext_write(d):
    for i in range(XENT * 4 // 1024):
        A("ds_write_b128 v%d, %s offset:%d" % (vT + 4, vr(d + 4 * i, 4), 1024 * i))
LB("Lext")
if XENT:
    A("s_mov_b32 s%d, %s" % (sT4, hx(TB)))
    A("v_add_u32 v%d, %d, v%d" % (vT + 4, L_TAB, vL16))
    for i in range(4): A("v_mov_b32 v%d, -1" % (W + i))
    for i in range(XENT * 4 // 1024):
        A("ds_write_b128 v%d, %s offset:%d" % (vT + 4, vr(W, 4), 1024 * i))
    A("ds_write_b32 v%d, v%d offset:48" % (vFL, W))
    A("s_waitcnt lgkmcnt(0)")
lds_arrive(20, vT + 5)
if XENT:
    C("one look at the lowest octaves, skipped when x1 is already there")
    soff(sT3, [(sW, 10), (sJ, 17)], X1_OFF)
    A("s_waitcnt vmcnt(0)")
    A("buffer_load_dwordx4 %s, v%d, %s, s%d offen sc1" % (vr(XR, 4), vL16, sr(sWS, 4), sT3))
    A("s_waitcnt vmcnt(0)")
    for x in maxtree(range(XR, XR + 4), vT): A(x)
    A("v_cmp_eq_u32 vcc, -1, v%d" % vT)
    A("s_cbranch_vccz Lexx")
    A("s_mov_b32 s%d, %d" % (sCNT, int(OPT.get("xlk", 2)) - 1))
    LB("Lexl")
    A("buffer_load_dwordx4 %s, v%d, %s, s%d offen sc1" % (vr(XR, 4), vL16, sr(sWS, 4), sT3))
    if "l" in OPT.get("xs", ""): A("s_branch Ltabdone")
    ext_load(W + 32)
    A("s_waitcnt vmcnt(4)")
    for x in maxtree(range(XR, XR + 4), vT): A(x)
    A("v_cmp_eq_u32 vcc, -1, v%d" % vT)
    A("s_cbranch_vccz Lexx")
    A("s_waitcnt vmcnt(0)")
    ext_write(W + 32)
    for x in maxtree(range(W + 32, W + 48), vT): A(x)
    A("v_cmp_eq_u32 vcc, -1, v%d" % vT)
    A("s_cbranch_vccz Lexc")
    A("s_sub_u32 s%d, s%d, 1" % (sCNT, sCNT))
    A("s_cbranch_scc0 Lexl")
    A("s_branch Ltabdone")
    LB("Lexc")
    A("v_mov_b32 v%d, 0" % vT)
    A("ds_write_b32 v%d, v%d offset:48" % (vFL, vT))
    A("s_branch Ltabdone")
    LB("Lexx")
    wqf_reads()
    A("s_branch Ltw")
else:
    A("s_branch Ltabdone")
LB("Ltw")
lds_spin(20, 3, vT + 2)
A("s_branch Ltwd")

for b in ool: L += b
ool = []
LB("Lslow")
C("rare: some h lies outside the table -> evaluate g(h) directly for those lanes")
RW1 = [W + 32 + i for i in range(14)]
RB1 = [PM + i for i in range(14)]
RW2 = [16 + i for i in range(10)] + [W + 46, W + 47, PM + 14, PM + 15]
A("v_lshlrev_b32 v26, 3, v%d" % vLANE)
A("s_load_dword s%d, %s, 0" % (sB2, sr(sB2P, 2)))
for (d4, d2, s) in [([W + 32, W + 36, W + 40], W + 44, sW1), ([PM, PM + 4, PM + 8], PM + 12, sB1)]:
    for k in range(3):
        A("buffer_load_dwordx4 %s, v%d, %s, 0 offen offset:%d" % (vr(d4[k], 4), vL16, sr(s, 4), 1024 * k))
    A("buffer_load_dwordx2 %s, v26, %s, 0 offen offset:3072" % (vr(d2, 2), sr(s, 4)))
A("buffer_load_dwordx4 v[16:19], v%d, %s, 0 offen" % (vL16, sr(sW2, 4)))
A("buffer_load_dwordx4 v[20:23], v%d, %s, 0 offen offset:1024" % (vL16, sr(sW2, 4)))
A("buffer_load_dwordx2 v[24:25], v%d, %s, 0 offen offset:2048" % (vL16, sr(sW2, 4)))
A("buffer_load_dwordx2 %s, v%d, %s, 0 offen offset:2056" % (vr(W + 46, 2), vL16, sr(sW2, 4)))
A("buffer_load_dwordx2 %s, v26, %s, 0 offen offset:3072" % (vr(PM + 14, 2), sr(sW2, 4)))
A("s_waitcnt vmcnt(0) lgkmcnt(0)")
A("s_lshl_b32 s%d, s%d, 16" % (sB2, sB2))
A("s_mov_b32 s%d, 1" % sT4)
for e in range(8):
    A("v_cmp_le_u32 vcc, %d, v%d" % (NENT * 4, AD + e))
    A("v_cmp_eq_u32 %s, -1, v%d" % (sr(sH2, 2), Y + e))
    A("s_or_b64 %s, %s, vcc" % (sr(sH2, 2), sr(sH2, 2)))
    if e & 1: A("v_and_b32 v%d, 0xffff0000, v%d" % (RT + 3, HB + (e >> 1)))
    else: A("v_lshlrev_b32 v%d, 16, v%d" % (RT + 3, HB + (e >> 1)))
    LB("Lse%d" % e)
    A("s_cmp_eq_u64 %s, 0" % sr(sH2, 2))
    A("s_cbranch_scc1 Lsf%d" % e)
    A("s_ff1_i32_b64 s%d, %s" % (sT0, sr(sH2, 2)))
    A("s_nop 0")
    A("v_readlane_b32 s%d, v%d, s%d" % (sH, RT + 3, sT0))
    A("s_cmp_eq_u32 s%d, s%d" % (sH, sT4))
    A("s_cbranch_scc1 Lsg%d" % e)
    A("s_mov_b32 s%d, s%d" % (sT4, sH))
    A("s_call_b64 %s, Lgev" % sr(sRET, 2))
    LB("Lsg%d" % e)
    A("s_nop 1")
    A("v_cmp_eq_u32 vcc, s%d, v%d" % (sH, RT + 3))
    A("v_mov_b32 v%d, s%d" % (RES + 3, sY))
    A("s_andn2_b64 %s, %s, vcc" % (sr(sH2, 2), sr(sH2, 2)))
    A("v_cndmask_b32 v%d, v%d, v%d, vcc" % (Y + e, Y + e, RES + 3))
    A("s_branch Lse%d" % e)
    LB("Lsf%d" % e)
for i in range(16): A("v_mov_b32 v%d, 0" % (PM + i))
A("s_mov_b64 vcc, 0")
A("s_mov_b64 %s, 0" % sr(sH, 2))
A("s_branch Lslowdone")
LB("Lgev")
a, u, t1, z = RES, RES + 1, RES + 2, RT
A("v_mov_b32 v%d, 0" % a)
A("v_mov_b32 v%d, %s" % (RT + 1, hx(f2u(K0))))
A("v_mov_b32 v%d, %s" % (RT + 2, hx(f2u(K1))))
for p in range(14):
    for hf in range(2):
        def un(d, s):
            if hf == 0: A("v_lshlrev_b32 v%d, 16, v%d" % (d, s))
            else: A("v_and_b32 v%d, 0xffff0000, v%d" % (d, s))
        un(u, RW1[p]); un(t1, RB1[p]); un(z, RW2[p])
        A("v_fma_f32 v%d, v%d, s%d, v%d" % (u, u, sH, t1))
        A("v_mul_f32 v%d, v%d, v%d" % (t1, u, u))
        A("v_fma_f32 v%d, v%d, v%d, v%d" % (t1, t1, RT + 2, RT + 1))
        A("v_mul_f32 v%d, v%d, v%d" % (t1, t1, u))
        A("v_exp_f32 v%d, v%d" % (t1, t1))
        A("v_mul_f32 v%d, v%d, v%d" % (z, z, u))
        A("v_add_f32 v%d, 1.0, v%d" % (t1, t1))
        A("v_rcp_f32 v%d, v%d" % (t1, t1))
        A("s_nop 0")
        A("v_fmac_f32 v%d, v%d, v%d" % (a, z, t1))
A("v_mov_b32 v%d, v%d" % (u, a))
A("s_nop 1")
wave_sum2(a, u, sY, sT1)
A("s_nop 1")
A("v_mov_b32 v%d, s%d" % (a, sY))
A("v_cvt_pk_bf16_f32 v%d, v%d, v%d" % (a, a, a))
A("v_and_b32 v%d, 0xffff0000, v%d" % (a, a))
A("v_add_f32 v%d, s%d, v%d" % (a, sB2, a))
A("v_cvt_pk_bf16_f32 v%d, v%d, v%d" % (a, a, a))
A("v_and_b32 v%d, 0xffff0000, v%d" % (a, a))
A("s_nop 0")
A("v_readfirstlane_b32 s%d, v%d" % (sY, a))
A("s_nop 3")
A("s_setpc_b64 %s" % sr(sRET, 2))

for b in ool: L += b
A("s_endpgm")
L.append(".p2align 8")
L.append(".fill %d, 4, 0xBF800000" % (64 if DIAG else 512))
L.append('''.section .rodata,"a"
.p2align 6
.amdhsa_kernel %s_kernel
  .amdhsa_next_free_vgpr 256
  .amdhsa_next_free_sgpr 102
  .amdhsa_accum_offset 256
  .amdhsa_group_segment_fixed_size 0
  .amdhsa_kernarg_size 104
  .amdhsa_user_sgpr_count 2
  .amdhsa_user_sgpr_kernarg_segment_ptr 1
  .amdhsa_system_sgpr_workgroup_id_x 1
.end_amdhsa_kernel''' % NAME)
open(OUTF, "w").write("\n".join(x for x in L if x is not None) + "\n")
print("wrote", OUTF, "lines", len(L), "LDS", LDS_SZ)
```

```python
import sys, struct, math

NAME = "interleave_layers__sliding_block_cached__mixer_token_mlp__decode"
OUTF = sys.argv[1] if len(sys.argv) > 1 else "cdna_kernels/%s.s" % NAME
DIAG = int(sys.argv[2]) if len(sys.argv) > 2 else 0
DBL = 0
if DIAG == 3: DIAG = 0; DBL = 1
MEAS = 0
if DIAG == 5: DIAG = 0; MEAS = 1
TOT = 0
if DIAG == 4: DIAG = 0; TOT = 1
OPT = dict(a.split("=") for a in sys.argv[3:])
DEPTH = int(OPT.get("depth", 8))
D0 = int(OPT.get("d0", 2))
D1 = int(OPT.get("d1", 4))
DC = int(OPT.get("dc", 3))
TAILI = int(OPT.get("taili", 11))
TAILD = int(OPT.get("taild", 8))
QV = int(OPT.get("qv", 2))
PRET = int(OPT.get("pret", 1))
GW = int(OPT.get("gw", 1))
GPRE = int(OPT.get("gpre", 0))
GGAP = int(OPT.get("ggap", -1))
WARM = int(OPT.get("warm", 1))
QPRE = int(OPT.get("qpre", -1)); QGAP = int(OPT.get("qgap", -1))
OPRE = int(OPT.get("opre", -1)); OGAP = int(OPT.get("ogap", -1))
XPRE = int(OPT.get("xpre", -1)); XGAP = int(OPT.get("xgap", -1))
FINE = OPT.get("fine", "")
QS = int(OPT.get("qs", 0))
ADP = int(OPT.get("adp", 0))
ROT = int(OPT.get("rot", 1)); VROT = int(OPT.get("vrot", 0))
WROT = int(OPT.get("wrot", 1))
WOP = int(OPT.get("wop", 0))
ECO = int(OPT.get("eco", 0))
XDL = int(OPT.get("xdl", 256))
QBD = int(OPT.get("qbd", 0))
VLATE = int(OPT.get("vlate", 1))
QV2 = int(OPT.get("qv2", 0))
PROG = int(OPT.get("prog", 1))
SLC = int(OPT.get("slc", 0)); D2 = int(OPT.get("d2", 8))
HFIRST = int(OPT.get("hfirst", 0))
EFL = int(OPT.get("efl", 1))
QT = int(OPT.get("qt", 0))
DRY = int(OPT.get("dry", 0))
HP = int(OPT.get("hp", 0))
NOCT = int(OPT.get("noct", 16))
QPOS = int(OPT.get("qpos", 1))
QPOS2 = int(OPT.get("qpos2", 7))

def f2u(x): return struct.unpack("<I", struct.pack("<f", x))[0]
def hx(x): return "0x%08x" % (x & 0xffffffff)

L = []
def A(s): L.append("    " + s)
def LB(s): L.append(s + ":")
def C(s): L.append("    ; " + s)
def vr(a, n): return "v[%d:%d]" % (a, a + n - 1)
def sr(a, n): return "s[%d:%d]" % (a, a + n - 1)
def NOP(n):
    while n > 0:
        k = min(n, 16); A("s_nop %d" % (k - 1)); n -= k

XOCT = int(OPT.get('xoct', 4))
ELO = int(OPT.get('elo', 130 - NOCT - XOCT))
LO2 = (ELO << 7) * 2
NENT = (NOCT + XOCT) * 256
XENT = XOCT * 256
assert XENT in (0, 1024)
EPW = NOCT * 256 // 256 // 4 // 2
GRS = 0x20000
O_OFF = [0x0000, 0xC400]; LSE_OFF = [0x8000, 0x14400]; Q1_OFF = 0x8400; X1_OFF = 0x14600
CLRA_PER = 1040
CLRB_OFF = 0x8400; CLRB_PER = 1680
Q0_OFF = 0x18000
EPO = 0x17f00
PB = 0x100000; P_L = 0x20000
TB = 0x140000; FB = 0x148000
QB_DELTA = 0x200000
STB = 0x300000
WS_SZ = 0x400000 if "dump" not in OPT else 0x2000000
L_WQ = 12288; L_K = L_WQ + 16384; L_V = L_K + 32768
L_WO = L_K + 16384
L_TAB = L_V
L_XN = L_V + 32768; XS = 1056
L_X2 = L_XN + 4 * XS
L_FLG = L_X2 + 4 * XS
L_RB = L_K; RBS = 2048 + 64; L_ML = L_K + 4 * RBS
L_QF = L_X2
LDS_SZ = int(OPT.get("lds", L_FLG + 64))
SPIN = 0x40000
K0 = -2.0 * math.sqrt(2.0 / math.pi) * math.log2(math.e)
K1 = K0 * 0.044715
EPS = hx(f2u(1e-5))

sTG1, sTG2 = 0, 1
sW, sJ, sA, sC, sGR, sLAY, sFAST = 3, 4, 5, 6, 7, 8, 9
sT0, sT1, sT2, sT3, sT4, sT5 = 10, 11, 12, 13, 14, 15
sCNT = 16
sQL, sQS, sOL, sOS, sLL, sLS, sPS = 17, 18, 19, 20, 21, 22, 23
sSC, sIT = 24, 25
sSUM, sSQ = 26, 27
sH, sH2, sRET, sMSK = 28, 30, 32, 34
sB2, sY, sXCC, sE = 36, 37, 38, 39
sB2P = 40
sK, sV, sWQ, sWO, sWS, sX, sOUT, sW1, sB1, sW2 = 44, 48, 52, 56, 60, 64, 68, 72, 76, 80
sKO, sKL, sVO, sVL = 84, 85, 86, 87
sPM = 88
sHC, sHT = 84, 85

def STAMP(i):
    if DIAG:
        A("s_memrealtime s[42:43]"); A("s_waitcnt lgkmcnt(0)")
        A("v_writelane_b32 v30, s42, %d" % i)

def CST(i):
    if DIAG == 1 and FINE:
        A("s_memtime s[42:43]"); A("s_waitcnt lgkmcnt(0)")
        A("v_writelane_b32 v31, s42, %d" % i)

vLANE = 1
vL16, vQST, vOST, vOLD, vPST, vX1S, vXNW, vXNR, vRBW, vRBR, vMLW, vMLR, vLSE, vZ = range(2, 16)
vT = 16
vWT, vFL = 28, 29
vLS2 = 27
KF, VF, WQF, WOF, SEL, ONES = 32, 64, 96, 112, 176, 180
W = 184
PM = 232
XR = 248
RES = 252

def srd(s, nbytes):
    A("s_mov_b32 s%d, %s" % (s + 2, hx(nbytes))); A("s_mov_b32 s%d, 0x00020000" % (s + 3))

def soff(dst, terms, const):
    first = True
    for (src, sh) in terms:
        if first: A("s_lshl_b32 s%d, s%d, %d" % (dst, src, sh)); first = False
        else:
            A("s_lshl_b32 s%d, s%d, %d" % (sT0, src, sh)); A("s_add_u32 s%d, s%d, s%d" % (dst, dst, sT0))
    if const: A("s_add_u32 s%d, s%d, %s" % (dst, dst, hx(const)))

def wave_sum2(a, b, sa, sb):
    for ctl in ["row_ror:8", "row_ror:4", "row_ror:2", "row_ror:1"]:
        A("v_add_f32_dpp v%d, v%d, v%d %s row_mask:0xf bank_mask:0xf" % (a, a, a, ctl))
        A("v_add_f32_dpp v%d, v%d, v%d %s row_mask:0xf bank_mask:0xf" % (b, b, b, ctl))
        A("s_nop 0")
    for ctl in ["row_bcast:15 row_mask:0xa", "row_bcast:31 row_mask:0xc"]:
        A("v_add_f32_dpp v%d, v%d, v%d %s bank_mask:0xf" % (a, a, a, ctl))
        A("v_add_f32_dpp v%d, v%d, v%d %s bank_mask:0xf" % (b, b, b, ctl))
        A("s_nop 0")
    A("v_readlane_b32 s%d, v%d, 63" % (sa, a))
    A("v_readlane_b32 s%d, v%d, 63" % (sb, b))

def row_stats(x, t, unp):
    A("v_dot2_f32_bf16 v%d, v%d, v%d, 0" % (t, x, ONES))
    A("v_dot2_f32_bf16 v%d, v%d, v%d, 0" % (t + 1, x, x))
    for i in range(1, 4):
        A("v_dot2_f32_bf16 v%d, v%d, v%d, v%d" % (t, x + i, ONES, t))
        A("v_dot2_f32_bf16 v%d, v%d, v%d, v%d" % (t + 1, x + i, x + i, t + 1))
    un = []
    for i in range(4):
        un.append("v_lshlrev_b32 v%d, 16, v%d" % (unp + 2 * i, x + i))
        un.append("v_and_b32 v%d, 0xffff0000, v%d" % (unp + 2 * i + 1, x + i))
    for k in range(3): A(un.pop(0))
    a, b = t, t + 1
    for ctl in ["row_ror:8 row_mask:0xf", "row_ror:4 row_mask:0xf", "row_ror:2 row_mask:0xf", "row_ror:1 row_mask:0xf", "row_bcast:15 row_mask:0xa", "row_bcast:31 row_mask:0xc"]:
        A("v_add_f32_dpp v%d, v%d, v%d %s bank_mask:0xf" % (a, a, a, ctl))
        A("v_add_f32_dpp v%d, v%d, v%d %s bank_mask:0xf" % (b, b, b, ctl))
        A(un.pop(0) if un else "s_nop 0")
    A("v_readlane_b32 s%d, v%d, 63" % (sSUM, a))
    A("v_readlane_b32 s%d, v%d, 63" % (sSQ, b))
    A("s_nop 0")
    A("v_mul_f32 v%d, s%d, v%d" % (t, sSUM, vZ))
    A("v_mul_f32 v%d, s%d, v%d" % (t + 1, sSQ, vZ))
    A("v_fma_f32 v%d, -v%d, v%d, v%d" % (t + 1, t, t, t + 1))
    A("v_max_f32 v%d, 0, v%d" % (t + 1, t + 1))

ool = []
uid = [0]
def maxtree(regs, tmp):
    r = list(regs); out = []
    out.append("v_max3_u32 v%d, v%d, v%d, v%d" % (tmp, r[0], r[1], r[2])); r = r[3:]
    if len(r) >= 5:
        out.append("v_max3_u32 v%d, v%d, v%d, v%d" % (tmp + 1, r[0], r[1], r[2])); r = r[3:]
        d = 0
        while len(r) >= 2:
            out.append("v_max3_u32 v%d, v%d, v%d, v%d" % (tmp + d, tmp + d, r[0], r[1])); r = r[2:]; d ^= 1
        if r: out.append("v_max3_u32 v%d, v%d, v%d, v%d" % (tmp, tmp, tmp + 1, r[0]))
        else: out.append("v_max_u32 v%d, v%d, v%d" % (tmp, tmp, tmp + 1))
    else:
        while len(r) >= 2:
            out.append("v_max3_u32 v%d, v%d, v%d, v%d" % (tmp, tmp, r[0], r[1])); r = r[2:]
        if r: out.append("v_max_u32 v%d, v%d, v%d" % (tmp, tmp, r[0]))
    return out

def poll(issue, regs, tmp, pre_wait=None, spec=None, back="s_nop 7", tag=None, stub=None):
    uid[0] += 1; u = uid[0]
    A("s_mov_b32 s%d, %s" % (sCNT, hx(SPIN)))
    LB("Lp%d" % u)
    issue()
    if pre_wait: pre_wait()
    A("s_waitcnt vmcnt(0)")
    mt = maxtree(regs, tmp) + ["v_cmp_eq_u32 vcc, -1, v%d" % tmp]
    spec = list(spec or [])
    ns = len(spec)
    per = -(-len(mt) // ns) if ns else 0
    for s in spec:
        A(s)
        for k in range(per):
            if mt: A(mt.pop(0))
    for m in mt: A(m)
    A("s_cbranch_vccz Ld%d" % u)
    A("s_sub_u32 s%d, s%d, 1" % (sCNT, sCNT))
    if back != "s_nop 7": A(back)
    A("s_cbranch_scc0 Lp%d" % u)
    if stub: touch_stub(stub)
    LB("Ld%d" % u)
    if DIAG and tag is not None:
        A("s_lshl_b32 m0, s%d, 2" % sLAY); A("s_add_u32 m0, m0, %d" % tag); A("s_nop 0")
        A("v_writelane_b32 v31, s%d, m0" % sCNT)

stubs = []
def touch_stub(name, branch_over=None):
    A("s_branch Lsk_%s" % name)
    L.append(".p2align 6")
    LB("Lst_%s" % name)
    A("s_setpc_b64 %s" % sr(sRET, 2))
    LB("Lsk_%s" % name)
    stubs.append(name)

def delay(cyc):
    if cyc == -1:
        A("s_waitcnt vmcnt(0)"); return
    while cyc >= 64:
        k = min(cyc // 64, 15); A("s_sleep %d" % k); cyc -= 64 * k
    if cyc >= 8: A("s_nop %d" % min(15, cyc // 4 - 1))

def ppoll(issue, regs, n, tmp, spec, pre=0, gap=128, mid=None, tag=None, fix=None, stub=None, lanes=None, per_load=None):
    uid[0] += 1; u = uid[0]
    def look(k):
        if per_load and PROG and gap < 0:
            r = list(regs(k)); out = []
            for i in range(n):
                out.append("s_waitcnt vmcnt(%d)" % (n - 1 - i))
                sp = list(per_load(k, i))
                ck = ["v_max3_u32 v%d, v%d, v%d, v%d" % (tmp + 1, r[4 * i], r[4 * i + 1], r[4 * i + 2]),
                      ("v_max_u32 v%d, v%d, v%d" % (tmp, tmp + 1, r[4 * i + 3])) if i == 0 else ("v_max3_u32 v%d, v%d, v%d, v%d" % (tmp, tmp, tmp + 1, r[4 * i + 3]))]
                while sp or ck:
                    if sp: out.append(sp.pop(0))
                    if ck: out.append(ck.pop(0))
            return out + ["v_cmp_eq_u32 vcc, -1, v%d" % tmp]
        out = ["s_waitcnt vmcnt(%d)" % (n if k == 0 else 0)]
        mt = maxtree(regs(k), tmp) + ["v_cmp_eq_u32 vcc, -1, v%d" % tmp]
        sp = list(spec(k)); per = -(-len(mt) // len(sp)) if sp else 0
        for x in sp:
            out.append(x)
            for _ in range(per):
                if mt: out.append(mt.pop(0))
        return out + mt + (["s_and_b64 vcc, vcc, %s" % sr(lanes, 2)] if lanes else [])
    A("s_mov_b32 s%d, %s" % (sCNT, hx(SPIN)))
    delay(pre)
    fine = FINE and tag == int(FINE)
    if fine: CST(8)
    LB("Lp%d" % u)
    issue(0)
    if fine and 0: CST(9)
    if mid: mid()
    if gap >= 0: delay(gap)
    if gap >= 0: issue(1)
    lk = look(0)
    if gap < 0 and not (per_load and PROG): lk[0] = "s_waitcnt vmcnt(0)"
    for k, x in enumerate(lk):
        A(x)
        if fine and k == 0: CST(13)
    if fine: CST(14)
    A("s_cbranch_vccz Ld%d" % u)
    if gap < 0: issue(1)
    A("s_sub_u32 s%d, s%d, 1" % (sCNT, sCNT))
    for x in look(1): A(x)
    for x in (fix or []): A(x)
    A("s_cbranch_vccz Ld%d" % u)
    A("s_sub_u32 s%d, s%d, 1" % (sCNT, sCNT))
    A("s_cmp_gt_i32 s%d, 0" % sCNT)
    A("s_cbranch_scc1 Lp%d" % u)
    if stub: touch_stub(stub)
    LB("Ld%d" % u)
    if fine: CST(15)
    if DIAG and tag is not None:
        A("s_lshl_b32 m0, s%d, 2" % sLAY); A("s_add_u32 m0, m0, %d" % tag); A("s_nop 0")
        A("v_writelane_b32 v31, s%d, m0" % sCNT)

def lds_spin(off, target, tmp, mask=None, sleep=0):
    uid[0] += 1; u = uid[0]
    A("s_mov_b32 s%d, %s" % (sT2, hx(SPIN * 4)))
    LB("Ls%d" % u)
    A("ds_read_b32 v%d, v%d offset:%d" % (tmp, vFL, off))
    A("s_waitcnt lgkmcnt(0)")
    A("v_readfirstlane_b32 s%d, v%d" % (sT1, tmp))
    if mask: A("s_and_b32 s%d, s%d, %d" % (sT0, sT1, mask))
    A("s_cmp_ge_u32 s%d, %d" % (sT0 if mask else sT1, target))
    A("s_cbranch_scc1 Lt%d" % u)
    if sleep: A("s_sleep %d" % sleep)
    A("s_sub_u32 s%d, s%d, 1" % (sT2, sT2))
    A("s_cbranch_scc0 Ls%d" % u)
    LB("Lt%d" % u)

def lds_arrive(off, tmp, val=1):
    if val is not None: A("v_mov_b32 v%d, %d" % (tmp, val))
    A("s_mov_b64 exec, 1")
    A("ds_add_u32 v%d, v%d offset:%d" % (vFL, tmp, off))
    A("s_mov_b64 exec, -1")

def store_local(op, data, vaddr, so):
    uid[0] += 1; u = uid[0]
    A("s_cbranch_scc1 Lw%d" % u)
    A("%s %s, v%d, %s, s%d offen" % (op, data, vaddr, sr(sWS, 4), so))
    LB("Lx%d" % u)
    ool.append(["Lw%d:" % u, "    %s %s, v%d, %s, s%d offen sc1" % (op, data, vaddr, sr(sWS, 4), so), "    s_branch Lx%d" % u])
def fastcmp(): A("s_cmp_eq_u32 s%d, 0" % sFAST)

def mf(d, a, b, c):
    return "v_mfma_f32_16x16x32_bf16 %s, %s, %s, %s" % (vr(d, 4), vr(a, 4), vr(b, 4), "0" if c is None else vr(c, 4))
def mfma(d, a, b, c): A(mf(d, a, b, c))

def tags():
    A("s_add_u32 s%d, s%d, 1" % (sTG1, sE))
    A("s_mul_i32 s%d, s%d, 0x9E3779B1" % (sTG2, sTG1))
    A("s_and_b32 s%d, s%d, -8" % (sTG2, sTG2))

def common_addr():
    A("v_and_b32 v18, 3, v%d" % vLANE)
    A("v_lshlrev_b32 v%d, 12, v17" % vQST)
    A("v_lshrrev_b32 v24, 1, v16")
    A("v_lshl_add_u32 v%d, v24, 8, v%d" % (vQST, vQST))
    A("v_and_b32 v24, 1, v16")
    A("v_lshl_add_u32 v%d, v24, 3, v%d" % (vQST, vQST))
    A("v_lshlrev_b32 v%d, 4, v24" % vLSE)
    A("s_mul_i32 s%d, s%d, %d" % (sT0, sW, XS))
    A("s_add_u32 s%d, s%d, %d" % (sT0, sT0, L_XN))
    A("v_add_u32 v%d, s%d, v%d" % (vXNW, sT0, vL16))
    A("s_lshl_b32 s%d, s%d, 8" % (sT0, sA))
    A("s_add_u32 s%d, s%d, %d" % (sT0, sT0, L_XN))
    A("v_mul_u32_u24 v25, %d, v18" % XS)
    A("v_lshl_add_u32 v25, v16, 4, v25")
    A("v_add_u32 v%d, s%d, v25" % (vXNR, sT0))
    A("v_mov_b32 v%d, %s" % (vZ, hx(f2u(1.0 / 512))))
    for r in range(4): A("v_mov_b32 v%d, 0x3f803f80" % (ONES + r))
    A("s_and_b32 s%d, s%d, 1" % (sT1, sC))
    A("s_lshr_b32 s%d, s%d, 1" % (sT2, sC))
    soff(sQS, [(sT1, 11), (sW, 9), (sA, 6), (sT2, 4)], 0)
    A("v_bfe_u32 v24, v%d, 2, 2" % vLANE)
    A("v_lshl_add_u32 v24, v16, 3, v24")
    A("v_lshlrev_b32 v24, 7, v24")
    A("v_bfe_u32 v25, v%d, 3, 2" % vLANE)
    A("v_lshlrev_b32 v25, 1, v25")
    A("v_bfe_u32 v26, v%d, 1, 1" % vLANE)
    A("v_xor_b32 v25, v25, v26")
    A("v_lshl_add_u32 v24, v25, 4, v24")
    A("v_and_b32 v26, 1, v%d" % vLANE)
    A("v_lshl_add_u32 v%d, v26, 3, v24" % vWT)
    A("s_mov_b32 s%d, 0x000f000f" % sMSK)
    A("s_mov_b32 s%d, 0x000f000f" % (sMSK + 1))
    A("s_mov_b32 s%d, 0" % sLAY)

def wtile_voff(shift, d):
    A("v_lshrrev_b32 v24, 3, v%d" % vLANE)
    A("v_and_b32 v25, 7, v%d" % vLANE)
    A("v_and_b32 v26, 1, v16")
    A("v_lshlrev_b32 v26, 1, v26")
    A("v_xor_b32 v25, v25, v26")
    A("v_lshlrev_b32 v25, 4, v25")
    A("v_lshl_add_u32 v%d, v24, %d, v25" % (d, shift))
    A("v_xor_b32 v%d, 64, v%d" % (d + 1, d))

def wqf_reads():
    A("s_lshl_b32 s%d, s%d, 5" % (sT1, sW))
    A("v_xor_b32 v26, s%d, v%d" % (sT1, vWT))
    for t in range(4):
        for hf in range(2):
            A("ds_read_b64_tr_b16 %s, v26 offset:%d" % (vr(WQF + 4 * t + 2 * hf, 2), L_WQ + 4096 * t + 512 * hf))

def dma(vaddr, srdn, so, lds_s, step_so, flags="nt"):
    A("s_mov_b32 m0, s%d" % lds_s)
    A("s_add_u32 s%d, s%d, 1024" % (lds_s, lds_s))
    A("buffer_load_dwordx4 v%d, %s, s%d offen %s lds" % (vaddr, sr(srdn, 4), so, flags))
    A("s_add_u32 s%d, s%d, %d" % (so, so, step_so))

hdr = open("cdna_kernels/%s.s.ref" % NAME).read().split("; Override launch")[0]
L.append(hdr.rstrip("\n") + """
;
; One persistent launch, 256 workgroups (one per CU) x 8 waves.  wg = A(2b):C(3b):j(3b); j = kv head.
; K, V, wq and wo are read from HBM exactly once (LDS-DMA) and stay in registers for both attention layers.
;   roles of a workgroup:  attention (batch A, keys 128C..), q projection (wq rows 128A.., 64 columns C),
;                          output projection (head A of group j, 64 columns C), row reduction (batch A, columns 64C..)
;   waves 0-3: stream K/V, attention, output projection, LayerNorm + mixer + next q projection
;   waves 4-7: first q projection, then the token-mixer MLP g(h) = sum_f gelu(h w1 + b1) w2 + b2 evaluated
;              exactly (all 1792 hidden units) for every bf16 value h with 2^-17 <= |h| < 8; h is a bf16 tensor in the
;              reference, so the mixer is a lookup of these values; any other h is evaluated directly (Lslow).
; Hand-offs between workgroups go through d_ws.  Slots are filled with a sentinel at the start of the launch and a
; consumer polls until no sentinel is left; the first hand-off (q) and the "sentinels are in place" announcements
; carry a tag derived from a word that every launch advances.  Stores inside a kv-head group are plain when the
; whole group reports the same XCC id, write-through otherwise; every poll is bounded.
""".rstrip("\n"))
L.append("; @launch grid=(256,1,1) block=(512,1,1) lds=%d" % LDS_SZ)
L.append('.amdgcn_target "amdgcn-amd-amdhsa--gfx950"')
L.append(".text\n" + (".p2align 12\n" if int(OPT.get("al", 0)) else "") + ".globl %s_kernel\n.p2align 8\n.type %s_kernel,@function\n%s_kernel:" % (NAME, NAME, NAME))
if DIAG: A("s_memrealtime s[42:43]")
if DBL or TOT or MEAS: A("s_memrealtime s[98:99]")
sM = 96
A("s_lshr_b32 s%d, s2, 8" % sT0)
A("s_cbranch_scc1 Lend")
A("s_load_dwordx2 %s, s[0:1], 24" % sr(sWQ, 2))
A("s_load_dwordx4 %s, s[0:1], 0" % sr(sT2, 4))
A("v_readfirstlane_b32 s%d, v0" % sW)
C("every wave pulls one line of this kernel's code into L2 (plain read): 32 workgroups x 4 lines")
A("s_getpc_b64 s[10:11]")
LB("Lpc0")
A("s_lshr_b32 s%d, s2, 3" % sM)
A("s_lshl_b32 s%d, s%d, 9" % (sCNT, sM))
A("s_cmp_lg_u32 s%d, 0" % sW)
A("s_cbranch_scc1 Lnopf")
A("v_and_b32 v19, 3, v0")
A("v_lshl_add_u32 v19, v19, 7, s%d" % sCNT)
A("global_load_dword v%d, v19, s[10:11]" % (W + 8))
LB("Lnopf")
A("s_and_b32 s%d, s2, 7" % sJ)
A("s_lshr_b32 s%d, s2, 6" % sA)
A("s_and_b32 s%d, s%d, 7" % (sC, sM))
A("s_lshl_b32 s%d, 1, 17" % (sWQ + 3))
A("s_bitcmp1_b32 s%d, 8" % sW)
A("s_cbranch_scc1 Lhelp0")
vKA, vVA = W + 40, W + 44
sRO, sRM = sVO, 97 if not TOT else 94
if TOT: sRM = sOL
def kv_issue(i):
    A("s_add_u32 m0, s%d, s%d" % (sKL if i < 8 else sVL, sRO))
    A("s_add_u32 s%d, s%d, s%d" % (sCNT, sKO, sRO))
    if i < 8: A("buffer_load_dwordx4 v%d, %s, s%d offen nt lds" % (vKA + (i & 3), sr(sK, 4), sCNT))
    else: A("buffer_load_dwordx4 v%d, %s, s%d offen nt lds" % (vVA + (i & 1), sr(sV, 4), sCNT))
    A("s_addk_i32 s%d, %d" % (sRO, 1024 + (VROT * 1024 if i == 7 else 0)))
    A("s_and_b32 s%d, s%d, 0x1fff" % (sRO, sRO))
def lane_init():
    A("v_and_b32 v%d, 63, v0" % vLANE)
    A("v_mov_b32 v%d, %d" % (vFL, L_FLG))
    A("v_lshlrev_b32 v%d, 4, v%d" % (vL16, vLANE))
    A("v_lshrrev_b32 v16, 4, v%d" % vLANE)
    A("v_and_b32 v17, 15, v%d" % vLANE)
    A("v_mov_b32 v20, 0")
    if DIAG: A("v_mov_b32 v30, 0")
C("wq tile DMA: instruction i, thread t: row 32 i + (t>>3), 16-byte chunk (t&7) ^ swizzle")
A("v_lshrrev_b32 v23, 3, v0")
A("v_and_b32 v22, 7, v0")
A("v_and_b32 v24, 2, v23")
A("v_lshrrev_b32 v25, 1, v23")
A("v_and_or_b32 v24, v25, 4, v24")
A("v_xor_b32 v22, v22, v24")
A("v_lshlrev_b32 v22, 4, v22")
A("v_lshl_add_u32 v22, v23, 13, v22")
soff(sQL, [(sA, 20), (sJ, 10), (sC, 7)], 0)
A("s_lshl_b32 s%d, 1, 22" % (sWQ + 2))
A("s_lshl_b32 s%d, 1, 18" % sT1)
A("s_lshl_b32 s%d, s%d, 4" % (sQS, sW))
A("s_add_u32 m0, s%d, %d" % (sQS, L_WQ))
A("v_lshlrev_b32 v21, 4, v0")
A("s_waitcnt lgkmcnt(0)")
A("global_load_dwordx4 %s, v21, %s" % (vr(XR, 4), sr(sT2, 2)))
for i in range(4):
    if i:
        A("s_addk_i32 m0, 0x1000")
        A("s_add_u32 s%d, s%d, s%d" % (sQL, sQL, sT1))
    A("buffer_load_dwordx4 v22, %s, s%d offen nt lds" % (sr(sWQ, 4), sQL))
def main_early2():
    lane_init()
    A("s_lshl_b32 s%d, 1, 25" % (sK + 2)); A("s_mov_b32 s%d, s%d" % (sK + 3, sWQ + 3))
    A("s_mov_b64 %s, %s" % (sr(sK, 2), sr(sT4, 2)))
    A("v_xor_b32 v18, v17, v16")
    A("v_lshlrev_b32 v18, 4, v18")
    A("v_lshl_add_u32 v%d, v16, 8, v18" % vKA)
    A("s_lshl_b32 s%d, s%d, 10" % (sRO, sC))
    A("s_bfe_u32 s%d, s%d, 0x2000a" % (sT1, sRO))
    A("s_lshl_b32 s%d, s%d, 6" % (sT1, sT1))
    for k in range(1, 4):
        A("s_add_u32 s%d, s%d, %d" % (sCNT, sT1, 64 * k))
        A("s_and_b32 s%d, s%d, 0xc0" % (sCNT, sCNT))
        A("v_xor_b32 v%d, s%d, v%d" % (vKA + k, sCNT, vKA))
    A("v_xor_b32 v%d, s%d, v%d" % (vKA, sT1, vKA))
    soff(sKO, [(sA, 23), (sJ, 20), (sC, 15), (sW, 7)], 3072 * 256)
    A("s_add_u32 s%d, s%d, %d" % (sKL, sT0, L_K))
    for i in range(D0): kv_issue(i)
    A("s_add_u32 s%d, s%d, %d" % (sVL, sT0, L_V))
    A("s_lshr_b32 s%d, s%d, 6" % (sW, sW))
    if DIAG: A("v_writelane_b32 v30, s42, 0")
    STAMP(10)
    A("s_branch Lmain")

if HFIRST: A("s_branch Lmain1")
else: main_early2()
LB("Lhelp0")
C("---- helper waves: the table of g over bf16 inputs ----")
HW1, HB1, HW2 = 32, 60, 112
hK0, hK1, hONE, hRES = 88, 90, 92, 94
AC = [140, 142]
for s, off in [(sW1, 48), (sB1, 56), (sW2, 64), (sWS, 96), (sB2P, 72)]:
    A("s_load_dwordx2 %s, s[0:1], %d" % (sr(s, 2), off))
lane_init()
A("v_mov_b32 v21, 0")
for k in range(4): A("ds_write_b64 v%d, v[20:21] offset:%d" % (vFL, 8 * k))
A("ds_write_b32 v%d, v20 offset:44" % vFL)
A("s_bfe_u32 s%d, s%d, 0x20006" % (sW, sW))
srd(sWS, WS_SZ)
for s in [sW1, sB1, sW2]: srd(s, 3584)
for i in range(4): A("v_mov_b32 v%d, -1" % (PM + i))
A("s_waitcnt lgkmcnt(0)")
A("s_lshl_b32 s%d, s%d, 10" % (sT3, sW))
A("s_mul_i32 s%d, s%d, %d" % (sT5, sM, CLRA_PER))
A("s_lshl_b32 s%d, s%d, 17" % (sGR, sJ))
A("s_add_u32 s%d, s%d, s%d" % (sT5, sT5, sGR))
A("s_add_u32 s%d, s%d, 1024" % (sT4, sT5))
A("s_lshl_b32 s%d, s%d, 7" % (sT1, sM))
A("v_mov_b32 v19, s%d" % sT1)
def h_coef():
    A("s_mov_b32 m0, s%d" % sT3)
    for i, sd in enumerate([sW1, sB1, sW2]):
        if i: A("s_addk_i32 m0, 0x1000")
        A("s_nop 0")
        A("buffer_load_dwordx4 v%d, %s, s%d offen lds" % (vL16, sr(sd, 4), sT3))
C("hw0, hw1: early sentinels (O0, LSE0) ; hw3: a slice of each coefficient array into L2")
A("s_cmp_ge_u32 s%d, 2" % sW)
A("s_cbranch_scc1 Lhc_pf")
A("s_cmp_eq_u32 s%d, 0" % sW)
A("s_cselect_b32 s%d, s%d, s%d" % (sT5, sT5, sT4))
A("s_cselect_b64 exec, -1, 1")
A("buffer_store_dwordx4 %s, v%d, %s, s%d offen sc1" % (vr(PM, 4), vL16, sr(sWS, 4), sT5))
A("s_branch Lhc_skip")
LB("Lhc_pf")
if SLC:
    A("s_cmp_eq_u32 s%d, 2" % sW)
    A("s_cbranch_scc1 Lhc_skip")
    A("s_mov_b64 exec, 1")
    for k, sd in enumerate([sW1, sB1, sW2]): A("buffer_load_dword v%d, v19, %s, 0 offen" % (W + k, sr(sd, 4)))
LB("Lhc_skip")
A("s_mov_b64 exec, -1")
if not SLC: h_coef()
A("s_load_dword s%d, %s, 0" % (sB2, sr(sB2P, 2)))
if DIAG: A("v_writelane_b32 v30, s42, 0")
STAMP(9)
A("s_barrier")
if HFIRST:
    A("s_branch Lhelp1")
    LB("Lmain1")
    main_early2()
    LB("Lhelp1")
A("s_lshl_b32 s%d, s2, 2" % sHC)
A("s_add_u32 s%d, s%d, s%d" % (sHC, sHC, sW))
sHX = 86
if XENT:
    C("extra entry e = wave index: |h| code ELO*128 + (e>>1), sign e&1")
    A("s_lshr_b32 s%d, s%d, 1" % (sHX, sHC))
    A("s_add_u32 s%d, s%d, %d" % (sHX, sHX, ELO * 128))
    A("s_lshl_b32 s%d, s%d, 16" % (sHX, sHX))
    A("s_lshl_b32 s%d, s%d, 31" % (sT0, sHC))
    A("s_or_b32 s%d, s%d, s%d" % (sHX, sHX, sT0))
A("s_mul_i32 s%d, s%d, %d" % (sHC, sHC, EPW))
A("s_lshl_b32 s%d, s%d, 3" % (sHT, sHC))
A("s_add_u32 s%d, s%d, %d" % (sHT, sHT, XENT * 4))
A("s_add_u32 s%d, s%d, %d" % (sHC, sHC, ELO * 128 + XENT // 2))
A("s_lshl_b32 s%d, s%d, 16" % (sHC, sHC))
A("v_lshlrev_b32 v27, 2, v%d" % vLANE)
A("v_add_u32 v27, s%d, v27" % sHT)
A("s_mov_b32 s%d, %s" % (sHT, hx(TB)))
for r, c in [(hK0, K0), (hK1, K1), (hONE, 1.0)]:
    A("v_mov_b32 v%d, %s" % (r, hx(f2u(c)))); A("v_mov_b32 v%d, %s" % (r + 1, hx(f2u(c))))
A("v_mov_b32 v%d, 0" % hRES)
A("s_mov_b32 s%d, 0" % sIT)
if WARM:
    C("warm the instruction cache lines at the far jump targets of the main waves")
    for k, nm in enumerate(["k", "fin", "out", "tab"]):
        A("s_cmp_lg_u32 s%d, %d" % (sW, k))
        A("s_cbranch_scc1 Lwm%d" % k)
        A("s_call_b64 %s, Lst_%s" % (sr(sRET, 2), nm))
        if nm == "out": A("s_call_b64 %s, Lst_mq" % sr(sRET, 2))
        LB("Lwm%d" % k)
HR = W + 8
A("v_lshlrev_b32 v26, 3, v%d" % vLANE)
if SLC:
    C("slices are in L2 once hw3's own have returned")
    A("s_waitcnt vmcnt(0)")
    lds_arrive(0, 24)
    A("s_cmp_lg_u32 s%d, 3" % sW)
    A("s_cbranch_scc1 Lhs1")
    lds_arrive(52 - 8, 24)
    LB("Lhs1")
    lds_spin(52 - 8, 1, 24, sleep=1)
    h_coef()
    A("s_waitcnt vmcnt(0)")
else:
    A("s_waitcnt vmcnt(3)")
    lds_arrive(0, 24)
    A("s_waitcnt vmcnt(0)")
STAMP(1)
lds_arrive(24, 24)
lds_spin(24, 4, 24)
for a_ in range(3):
    for k in range(3):
        A("ds_read_b128 %s, v%d offset:%d" % (vr(HR + 14 * a_ + 4 * k, 4), vL16, 4096 * a_ + 1024 * k))
    A("ds_read_b64 %s, v26 offset:%d" % (vr(HR + 14 * a_ + 12, 2), 4096 * a_ + 3072))
for a_, d in [(0, HW1), (14, HB1), (28, HW2)]:
    A("s_waitcnt lgkmcnt(%d)" % (8 - 4 * (a_ // 14)))
    for p in range(14):
        A("v_lshlrev_b32 v%d, 16, v%d" % (d + 2 * p, HR + a_ + p))
        A("v_and_b32 v%d, 0xffff0000, v%d" % (d + 2 * p + 1, HR + a_ + p))
STAMP(4)
if DIAG:
    A("s_memtime s[42:43]"); A("s_waitcnt lgkmcnt(0)"); A("v_writelane_b32 v30, s42, 13")
LB("Lhl")
if DIAG:
    A("s_memrealtime s[42:43]"); A("s_add_u32 m0, s%d, 10" % sIT); A("s_waitcnt lgkmcnt(0)"); A("v_writelane_b32 v30, s42, m0")
A("s_mov_b32 s%d, s%d" % (sH, sHC)); A("s_mov_b32 s%d, s%d" % (sH + 1, sHC))
A("s_xor_b32 s%d, s%d, 0x80000000" % (sH2, sHC)); A("s_mov_b32 s%d, s%d" % (sH2 + 1, sH2))
U4 = [144, 146, 148, 150]; T4 = [152, 154, 156, 158]; Z4 = [160, 162, 164, 166]
for p2 in range(7):
    ch = [(2 * p2 + k // 2, k & 1) for k in range(4)]
    for k, (p, sg) in enumerate(ch):
        A("v_pk_fma_f32 %s, %s, %s, %s" % (vr(U4[k], 2), vr(HW1 + 2 * p, 2), sr([sH, sH2][sg], 2), vr(HB1 + 2 * p, 2)))
    for k in range(4): A("v_pk_mul_f32 %s, %s, %s" % (vr(T4[k], 2), vr(U4[k], 2), vr(U4[k], 2)))
    for k in range(4): A("v_pk_fma_f32 %s, %s, %s, %s" % (vr(T4[k], 2), vr(T4[k], 2), vr(hK1, 2), vr(hK0, 2)))
    for k in range(4): A("v_pk_mul_f32 %s, %s, %s" % (vr(T4[k], 2), vr(T4[k], 2), vr(U4[k], 2)))
    for k in range(4):
        for h in range(2): A("v_exp_f32 v%d, v%d" % (T4[k] + h, T4[k] + h))
    for k, (p, sg) in enumerate(ch): A("v_pk_mul_f32 %s, %s, %s" % (vr(Z4[k], 2), vr(U4[k], 2), vr(HW2 + 2 * p, 2)))
    for k in range(4): A("v_pk_add_f32 %s, %s, %s" % (vr(T4[k], 2), vr(T4[k], 2), vr(hONE, 2)))
    for k in range(4):
        for h in range(2): A("v_rcp_f32 v%d, v%d" % (T4[k] + h, T4[k] + h))
    for k, (p, sg) in enumerate(ch):
        if p == 0: A("v_pk_mul_f32 %s, %s, %s" % (vr(AC[sg], 2), vr(Z4[k], 2), vr(T4[k], 2)))
        else: A("v_pk_fma_f32 %s, %s, %s, %s" % (vr(AC[sg], 2), vr(Z4[k], 2), vr(T4[k], 2), vr(AC[sg], 2)))
A("v_add_f32 v%d, v%d, v%d" % (AC[0], AC[0], AC[0] + 1))
A("v_add_f32 v%d, v%d, v%d" % (AC[1], AC[1], AC[1] + 1))
A("s_lshl_b32 m0, s%d, 1" % sIT)
A("s_add_u32 s%d, s%d, 0x10000" % (sHC, sHC))
wave_sum2(AC[0], AC[1], sSUM, sSQ)
A("s_add_u32 s%d, s%d, 1" % (sIT, sIT))
A("s_nop 0")
A("v_writelane_b32 v%d, s%d, m0" % (hRES, sSUM))
A("s_add_u32 m0, m0, 1")
A("s_cmp_lg_u32 s%d, %d" % (sIT, EPW))
A("v_writelane_b32 v%d, s%d, m0" % (hRES, sSQ))
A("s_cbranch_scc1 Lhl")
def h_publish(lanes):
    A("v_cvt_pk_bf16_f32 v%d, v%d, v%d" % (hRES, hRES, hRES))
    A("v_and_b32 v%d, 0xffff0000, v%d" % (hRES, hRES))
    A("v_add_f32 v%d, s%d, v%d" % (hRES, sB2, hRES))
    A("v_cvt_pk_bf16_f32 v%d, v%d, v%d" % (hRES, hRES, hRES))
    A("v_and_b32 v%d, 0xffff0000, v%d" % (hRES + 1, hRES))
    A("s_mov_b64 exec, %d" % lanes)
    A("buffer_store_dword v%d, v27, %s, s%d offen sc1" % (hRES + 1, sr(sWS, 4), sHT))
    A("s_mov_b64 exec, -1")
A("s_waitcnt lgkmcnt(0)")
A("s_lshl_b32 s%d, s%d, 16" % (sB2, sB2))
lds_spin(8, 4, 24)
h_publish((1 << (2 * EPW)) - 1)
if QBD:
    C("the write-through copy of q is only needed when the group is not known to sit on one XCD")
    A("ds_read_b32 v24, v%d offset:4" % vFL)
    A("s_waitcnt lgkmcnt(0)")
    A("v_readfirstlane_b32 s%d, v24" % sT0)
    A("s_cmp_eq_u32 s%d, 4" % sT0)
    A("s_cbranch_scc1 Lhqb")
    A("s_mov_b64 exec, %s" % sr(sMSK, 2))
    A("buffer_store_dwordx4 %s, v%d, %s, s%d offen sc1" % (vr(W + 4, 4), vQST, sr(sWS, 4), sQS))
    A("s_mov_b64 exec, -1")
    LB("Lhqb")
STAMP(8)
if XENT:
    A("s_mov_b32 s%d, s%d" % (sH, sHX)); A("s_mov_b32 s%d, s%d" % (sH + 1, sHX))
    for grp in [[0, 1, 2, 3], [4, 5, 6, 7], [8, 9, 10], [11, 12, 13]]:
        n = len(grp)
        for k, p in enumerate(grp): A("v_pk_fma_f32 %s, %s, %s, %s" % (vr(U4[k], 2), vr(HW1 + 2 * p, 2), sr(sH, 2), vr(HB1 + 2 * p, 2)))
        for k in range(n): A("v_pk_mul_f32 %s, %s, %s" % (vr(T4[k], 2), vr(U4[k], 2), vr(U4[k], 2)))
        for k in range(n): A("v_pk_fma_f32 %s, %s, %s, %s" % (vr(T4[k], 2), vr(T4[k], 2), vr(hK1, 2), vr(hK0, 2)))
        for k in range(n): A("v_pk_mul_f32 %s, %s, %s" % (vr(T4[k], 2), vr(T4[k], 2), vr(U4[k], 2)))
        for k in range(n):
            for h in range(2): A("v_exp_f32 v%d, v%d" % (T4[k] + h, T4[k] + h))
        for k, p in enumerate(grp): A("v_pk_mul_f32 %s, %s, %s" % (vr(Z4[k], 2), vr(U4[k], 2), vr(HW2 + 2 * p, 2)))
        for k in range(n): A("v_pk_add_f32 %s, %s, %s" % (vr(T4[k], 2), vr(T4[k], 2), vr(hONE, 2)))
        for k in range(n):
            for h in range(2): A("v_rcp_f32 v%d, v%d" % (T4[k] + h, T4[k] + h))
        for k, p in enumerate(grp):
            if p < 2: A("v_pk_mul_f32 %s, %s, %s" % (vr(AC[p & 1], 2), vr(Z4[k], 2), vr(T4[k], 2)))
            else: A("v_pk_fma_f32 %s, %s, %s, %s" % (vr(AC[p & 1], 2), vr(Z4[k], 2), vr(T4[k], 2), vr(AC[p & 1], 2)))
    A("v_add_f32 v%d, v%d, v%d" % (AC[0], AC[0], AC[0] + 1))
    A("v_add_f32 v%d, v%d, v%d" % (AC[1], AC[1], AC[1] + 1))
    A("v_add_f32 v%d, v%d, v%d" % (AC[0], AC[0], AC[1]))
    A("s_nop 1")
    wave_sum2(AC[0], AC[1], sSUM, sSQ)
    A("s_nop 1")
    A("v_mov_b32 v%d, s%d" % (hRES, sSUM))
    A("v_cvt_pk_bf16_f32 v%d, v%d, v%d" % (hRES, hRES, hRES))
    A("v_and_b32 v%d, 0xffff0000, v%d" % (hRES, hRES))
    A("v_add_f32 v%d, s%d, v%d" % (hRES, sB2, hRES))
    A("v_cvt_pk_bf16_f32 v%d, v%d, v%d" % (hRES, hRES, hRES))
    A("v_and_b32 v%d, 0xffff0000, v%d" % (hRES, hRES))
    C("the last of the four helpers stores the workgroup's four extra entries with one instruction")
    A("s_lshl_b32 s%d, s%d, 2" % (sT0, sW))
    A("v_add_u32 v16, s%d, v%d" % (sT0, vFL))
    A("v_mov_b32 v17, 1")
    A("s_mov_b64 exec, 1")
    A("ds_write_b32 v16, v%d offset:32" % hRES)
    A("s_waitcnt lgkmcnt(0)")
    A("ds_add_rtn_u32 v18, v%d, v17 offset:28" % vFL)
    A("s_waitcnt lgkmcnt(0)")
    A("v_readfirstlane_b32 s%d, v18" % sT0)
    A("s_cmp_lg_u32 s%d, 3" % sT0)
    A("s_cbranch_scc1 Lhx_end")
    A("ds_read_b128 v[20:23], v%d offset:32" % vFL)
    A("s_lshl_b32 s%d, s2, 4" % sT0)
    A("v_mov_b32 v16, s%d" % sT0)
    A("s_waitcnt lgkmcnt(0)")
    A("buffer_store_dwordx4 v[20:23], v16, %s, s%d offen sc1" % (sr(sWS, 4), sHT))
    LB("Lhx_end")
    A("s_mov_b64 exec, -1")
if DIAG:
    A("s_memtime s[42:43]"); A("s_waitcnt lgkmcnt(0)"); A("v_writelane_b32 v30, s42, 14")
    STAMP(15)
STAMP(7)
C("stand in at the two barriers of the second layer, so that they do not wait for this wave's store acknowledgements")
A("s_barrier")
A("s_barrier")
if DIAG:
    A("s_add_u32 s%d, s%d, 4" % (sW, sW))
    A("v_mov_b32 v28, v30")
    A("s_branch Lfin_exit")
A("s_endpgm")

LB("Lmain")
for s, off in [(sWS, 96), (sV, 16), (sWO, 32), (sOUT, 80), (sX, 0), (sB2P, 72), (sW1, 48), (sB1, 56), (sW2, 64)]:
    A("s_load_dwordx2 %s, s[0:1], %d" % (sr(s, 2), off))
if MEAS: A("s_load_dwordx2 s[42:43], s[0:1], 88"); A("s_waitcnt lgkmcnt(0)"); A("s_mov_b32 s25, s42"); A("s_mov_b32 s99, s43") if False else None; A("v_mov_b32 v30, s42"); A("v_mov_b32 v31, s43")
srd(sWS, WS_SZ)
for s in [sW1, sB1, sW2]: srd(s, 3584)
A("s_barrier")
for i in range(D0, D1): kv_issue(i)
for i in range(4): A("v_mov_b32 v%d, -1" % (W + i))
A("s_lshl_b32 s%d, s%d, 17" % (sGR, sJ))
A("s_mov_b32 s%d, s%d" % (sT1, sM))
A("s_waitcnt lgkmcnt(0)")
A("s_load_dword s%d, %s, %s" % (sE, sr(sWS, 2), hx(EPO)))
STAMP(11)
for s, n in [(sV, 1 << 25), (sX, 4096), (sWO, 1 << 22), (sOUT, 4096)]: srd(s, n)
A("v_lshlrev_b32 v18, 1, v16")
A("v_xor_b32 v18, v17, v18")
A("v_lshlrev_b32 v18, 4, v18")
A("v_lshl_add_u32 v%d, v16, 8, v18" % vVA)
if ROT:
    A("s_and_b32 s%d, s%d, 1" % (sT0, sC))
    A("s_lshl_b32 s%d, s%d, 7" % (sT0, sT0))
    A("v_xor_b32 v%d, s%d, v%d" % (vVA, sT0, vVA))
A("v_xor_b32 v%d, 128, v%d" % (vVA + 1, vVA))
C("late sentinels: wave 0,1: group region ; wave 2: P chunk")
A("s_lshr_b32 s%d, s2, 3" % sT1)
A("s_mul_i32 s%d, s%d, %d" % (sT1, sT1, CLRB_PER))
A("s_lshl_b32 s%d, s%d, 10" % (sT0, sW))
A("s_add_u32 s%d, s%d, s%d" % (sT1, sT1, sT0))
A("s_add_u32 s%d, s%d, s%d" % (sT1, sT1, sGR))
A("s_add_u32 s%d, s%d, %d" % (sT1, sT1, CLRB_OFF))
A("s_lshl_b32 s%d, s2, 10" % sT0)
A("s_add_u32 s%d, s%d, %s" % (sT0, sT0, hx(PB)))
A("s_cmp_ge_u32 s%d, 2" % sW)
A("s_cselect_b32 s%d, s%d, s%d" % (sT1, sT0, sT1))
A("s_bfm_b64 %s, %d, 0" % (sr(sH, 2), (CLRB_PER - 1024) // 16))
A("s_cmp_eq_u32 s%d, 1" % sW)
A("s_cselect_b64 %s, %s, -1" % (sr(sH, 2), sr(sH, 2)))
NCL = NOCT * 4 // 16
A("v_mov_b32 v19, v%d" % vL16)
A("s_cmp_lg_u32 s%d, 3" % sW)
A("s_cbranch_scc1 Lm_c3")
C("wave 3: this workgroup's table slots")
A("s_mul_i32 s%d, s2, %d" % (sT0, NOCT * 4))
A("s_add_u32 s%d, s%d, %d" % (sT0, sT0, XENT * 4))
A("v_add_u32 v19, s%d, v19" % sT0)
A("s_lshl_b32 s%d, s2, 4" % sT0)
if XENT: A("v_writelane_b32 v19, s%d, %d" % (sT0, NCL))
A("s_mov_b32 s%d, %s" % (sT1, hx(TB)))
A("s_mov_b64 %s, %d" % (sr(sH, 2), (1 << (NCL + (1 if XENT else 0))) - 1))
LB("Lm_c3")
A("s_mov_b64 exec, %s" % sr(sH, 2))
A("buffer_store_dwordx4 %s, v19, %s, s%d offen sc1" % (vr(W, 4), sr(sWS, 4), sT1))
A("s_mov_b64 exec, -1")

common_addr()
A("s_add_u32 s%d, s%d, s%d" % (sQS, sQS, sGR))
A("s_add_u32 s%d, s%d, %d" % (sQS, sQS, Q1_OFF))
wtile_voff(10, 22)
A("v_and_b32 v19, 7, v%d" % vLANE)
A("v_lshrrev_b32 v25, 2, v%d" % vLANE)
A("v_lshlrev_b32 v25, 7, v25")
A("v_lshl_add_u32 v%d, v18, 2, v25" % vOST)
A("v_lshlrev_b32 v25, 7, v16")
A("v_lshl_add_u32 v%d, v19, 4, v25" % vOLD)
C("lanes n>=8 of the first two o loads fetch the lse values instead: offset relative to the o block")
A("s_mul_i32 s%d, s%d, %d" % (sT0, sA, 128 - 8192))
A("s_mul_i32 s%d, s%d, %d" % (sT1, sW, 32 - 2048))
A("s_add_u32 s%d, s%d, s%d" % (sT0, sT0, sT1))
A("s_add_u32 s%d, s%d, %d" % (sT0, sT0, LSE_OFF[0] - O_OFF[0]))
A("v_add_u32 v25, s%d, v%d" % (sT0, vLSE))
A("v_xor_b32 v26, 16, v25")
A("v_add_u32 v26, -512, v26")
A("v_cmp_gt_u32 vcc, 8, v17")
A("s_nop 1")
A("v_cndmask_b32 v%d, v25, v%d, vcc" % (vLSE, vOLD))
A("v_cndmask_b32 v%d, v26, v%d, vcc" % (vLS2, vOLD))
A("v_lshlrev_b32 v%d, 1, v%d" % (vPST, vLANE))
A("v_lshlrev_b32 v25, 3, v16")
A("v_lshl_add_u32 v%d, v19, 4, v25" % vX1S)
A("s_mul_i32 s%d, s%d, %d" % (sT0, sW, RBS))
A("s_add_u32 s%d, s%d, %d" % (sT0, sT0, L_RB))
A("v_mul_u32_u24 v25, 528, v18")
A("v_lshl_add_u32 v25, v16, 4, v25")
A("v_lshrrev_b32 v26, 2, v17")
A("v_lshl_add_u32 v25, v26, 7, v25")
A("v_add_u32 v%d, s%d, v25" % (vRBW, sT0))
A("s_mul_i32 s%d, s%d, 528" % (sT0, sW))
A("s_add_u32 s%d, s%d, %d" % (sT0, sT0, L_RB))
A("v_lshlrev_b32 v25, 3, v%d" % vLANE)
A("v_add_u32 v%d, s%d, v25" % (vRBR, sT0))
A("s_lshl_b32 s%d, s%d, 3" % (sT0, sW))
A("s_add_u32 s%d, s%d, %d" % (sT0, sT0, L_ML))
A("v_lshlrev_b32 v25, 5, v18")
A("v_add_u32 v%d, s%d, v25" % (vMLW, sT0))
A("s_lshl_b32 s%d, s%d, 5" % (sT0, sW))
A("s_add_u32 s%d, s%d, %d" % (sT0, sT0, L_ML))
A("v_mov_b32 v%d, s%d" % (vMLR, sT0))
A("v_mov_b32 v25, 0x3f80")
A("v_mov_b32 v26, 0x3f800000")
for r in range(4):
    A("v_cmp_eq_u32 vcc, %d, v17" % (2 * r))
    A("v_cmp_eq_u32 %s, %d, v17" % (sr(sH, 2), 2 * r + 1))
    A("s_nop 0")
    A("v_cndmask_b32 v%d, 0, v25, vcc" % (SEL + r))
    A("v_cndmask_b32 v%d, v%d, v26, %s" % (SEL + r, SEL + r, sr(sH, 2)))
for i in range(16): A("v_mov_b32 v%d, 0" % (PM + i))
for p in range(4):
    A("s_mov_b32 s%d, %s" % (sPM + 2 * p, hx(0x000f000f << (4 * p))))
    A("s_mov_b32 s%d, %s" % (sPM + 2 * p + 1, hx(0x000f000f << (4 * p))))
soff(sOS, [(sW, 13), (sA, 11), (sC, 4), (sJ, 17)], O_OFF[0])
soff(sOL, [(sA, 13), (sW, 11), (sJ, 17)], O_OFF[0])
A("s_add_u32 s%d, s%d, %s" % (sQL, sOL, hx(Q0_OFF - O_OFF[0])))
soff(sLS, [(sW, 7), (sA, 5), (sC, 2), (sJ, 17)], LSE_OFF[0])
soff(sPS, [(sW, 15), (sC, 12), (sJ, 9), (sA, 7)], PB)
A("s_mov_b32 s%d, %s" % (sSC, hx(f2u(128 ** -0.5 * math.log2(math.e)))))
A("s_getreg_b32 s%d, hwreg(HW_REG_XCC_ID, 0, 3)" % sXCC)
C("first q projection")
A("s_sub_u32 s%d, s%d, s%d" % (sIT, sQS, sGR))
A("s_lshl_b32 s%d, s%d, 1" % (sIT, sIT))
A("s_add_u32 s%d, s%d, s%d" % (sIT, sIT, sGR))
A("s_add_u32 s%d, s%d, %s" % (sIT, sIT, hx(Q0_OFF - 2 * Q1_OFF)))
A("v_lshlrev_b32 v21, 1, v%d" % vQST)
STAMP(12)
if DIAG: A("v_mov_b32 v31, v30")
A("s_waitcnt vmcnt(%d)" % (4 + D1 + 1))
A("s_branch Llnq")
LB("Lq_first")
A("s_waitcnt vmcnt(%d) lgkmcnt(0)" % (D1 + 1))
lds_arrive(0, vT + 4)
for i in range(D1, D2): kv_issue(i)
tags()
A("s_or_b32 s%d, s%d, s%d" % (sXCC, sXCC, sTG2))
lds_spin(0, 8, vT + 4)
wqf_reads()
A("s_waitcnt lgkmcnt(0)")
A("s_branch Lq_go")
LB("Lh_qst")
A("v_mov_b32 v%d, s%d" % (W + 6, sTG1))
A("v_mov_b32 v%d, s%d" % (W + 7, sXCC))
A("buffer_store_dwordx4 %s, v21, %s, s%d offen%s" % (vr(W + 4, 4), sr(sWS, 4), sIT, "" if int(OPT.get("fast", 1)) else " sc1"))
A("s_add_u32 s%d, s%d, %s" % (sIT, sIT, hx(QB_DELTA)))
A("buffer_store_dwordx4 %s, v21, %s, s%d offen sc1" % (vr(W + 4, 4), sr(sWS, 4), sIT))
A("s_mov_b64 exec, -1")
STAMP(14)
A("v_lshrrev_b32 v16, 4, v%d" % vLANE)
A("v_and_b32 v17, 15, v%d" % vLANE)
A("v_xor_b32 v24, v16, v17")
A("v_lshlrev_b32 v24, 4, v24")
A("v_lshl_add_u32 v24, v17, 8, v24")
A("s_lshl_b32 s%d, s%d, 13" % (sT1, sW))
A("s_add_u32 s%d, s%d, %d" % (sT2, sT1, L_K))
for t in range(4): A("v_xor_b32 v%d, %d, v24" % (18 + t, 64 * t))
for t in range(4): A("v_add_u32 v%d, s%d, v%d" % (18 + t, sT2, 18 + t))
VA = W + 32
A("v_lshrrev_b32 v24, 2, v%d" % vLANE)
A("v_and_b32 v25, 7, v24")
A("v_lshlrev_b32 v25, 1, v25")
A("v_bfe_u32 v26, v%d, 1, 1" % vLANE)
A("v_xor_b32 v25, v25, v26")
A("v_lshlrev_b32 v25, 4, v25")
A("v_lshl_add_u32 v25, v24, 8, v25")
A("v_and_b32 v26, 1, v%d" % vLANE)
A("v_lshl_add_u32 v25, v26, 3, v25")
A("s_add_u32 s%d, s%d, %d" % (sT2, sT1, L_V))
for t in range(8): A("v_xor_b32 v%d, %d, v25" % (VA + t, 32 * t))
for t in range(8): A("v_add_u32 v%d, s%d, v%d" % (VA + t, sT2, VA + t))
soff(sT4, [(sJ, 19), (sA, 17), (sW, 15), (sC, 7)], 0)
A("s_lshl_b32 s%d, s%d, 12" % (sT5, sW))
A("s_add_u32 s%d, s%d, %d" % (sT5, sT5, L_WO))
soff(sT3, [(sA, 10), (sC, 7)], 0)
A("v_lshlrev_b32 v24, 5, v%d" % vLANE)
A("s_lshl_b32 s%d, s%d, 10" % (sT2, sW))
A("s_add_u32 s%d, s%d, %d" % (sT2, sT2, L_QF))
A("v_add_u32 v25, s%d, v%d" % (sT2, vL16))
A("v_add_u32 v26, %d, v%d" % (L_QF, vL16))
QP = W
def q0_issue(QP=QP):
    A("buffer_load_dwordx4 %s, v24, %s, s%d offen sc1" % (vr(QP, 4), sr(sWS, 4), sQL))
    A("buffer_load_dwordx4 %s, v24, %s, s%d offen offset:16 sc1" % (vr(QP + 4, 4), sr(sWS, 4), sQL))
def flag_block():
    if True:
        A("s_cmp_lg_u32 s%d, 0" % sW)
        A("s_cbranch_scc1 Lnoflag")
        C("every sentinel store of this workgroup is acknowledged: announce it")
        lds_spin(8, 4, vT)
        A("v_mov_b32 v16, s%d" % sTG1)
        A("v_mov_b32 v17, s%d" % sXCC)
        soff(sT1, [(2, 4)], FB)
        A("s_mov_b64 exec, 1")
        A("buffer_store_dwordx2 v[16:17], v%d, %s, s%d offen sc1" % (PM, sr(sWS, 4), sT1))
        A("s_mov_b64 exec, -1")
        LB("Lnoflag")
ycl = D2 - D1 + 2; st_arr = st_fl = False
for i in range(D2, 16):
    dp = DEPTH
    if i == 16 - QV:
        A("s_waitcnt vmcnt(%d)" % (dp - 2)); q0_issue(); ycl += 2
    A("s_waitcnt vmcnt(%d)" % (dp - 1))
    if EFL:
        if st_arr and not st_fl:
            flag_block(); st_fl = True
        if not st_arr and ycl >= dp - 1:
            lds_arrive(8, vT); st_arr = True
    kv_issue(i); ycl += 1
q0_issue(QP + 8)
C("everything older than the V loads is complete: K, late sentinels")
assert not QV2
A("s_waitcnt vmcnt(%d)" % int(OPT.get("kw", 14)))
if EFL: assert st_fl
else: lds_arrive(8, vT)
STAMP(1)
for t in range(4):
    for T in range(2):
        A("ds_read_b128 %s, v%d offset:%d" % (vr(KF + 16 * T + 4 * t, 4), 18 + t, 4096 * T))
if "dump" in OPT:
    A("s_waitcnt lgkmcnt(0)")
    soff(sT1, [(2, 15), (sW, 13)], 0x1000000)
    for k in range(8):
        A("buffer_store_dwordx4 %s, v%d, %s, s%d offen" % (vr(KF + 4 * k, 4), vL16, sr(sWS, 4), sT1))
        A("s_add_u32 s%d, s%d, 1024" % (sT1, sT1))
    A("s_waitcnt vmcnt(0)")
if not EFL: flag_block()
def wait_w0(n):
    if EFL:
        A("s_waitcnt vmcnt(%d)" % n); return
    uid[0] += 1
    A("s_cmp_eq_u32 s%d, 0" % sW)
    A("s_cbranch_scc1 Lww%d" % uid[0])
    A("s_waitcnt vmcnt(%d)" % n)
    LB("Lww%d" % uid[0])
    A("s_waitcnt vmcnt(%d)" % (n + 1))
wait_w0(QV + 2 + (2 if QV2 else 0))
STAMP(2)
A("s_setprio 2")
A("s_mov_b32 s%d, %s" % (sCNT, hx(SPIN)))
A("s_mov_b32 s%d, 0" % sY)
A("s_mov_b32 s%d, 0" % sIT)
LB("Lmq")
A("v_and_b32 v16, -8, v%d" % (QP + 3))
A("v_and_b32 v17, -8, v%d" % (QP + 7))
A("v_cmp_ne_u32 vcc, s%d, v%d" % (sTG1, QP + 2))
A("v_cmp_ne_u32 %s, s%d, v%d" % (sr(sRET, 2), sTG1, QP + 6))
A("s_or_b64 vcc, vcc, %s" % sr(sRET, 2))
A("v_cmp_ne_u32 %s, s%d, v16" % (sr(sRET, 2), sTG2))
A("s_or_b64 vcc, vcc, %s" % sr(sRET, 2))
A("v_cmp_ne_u32 %s, s%d, v17" % (sr(sRET, 2), sTG2))
A("s_or_b64 vcc, vcc, %s" % sr(sRET, 2))
if not int(OPT.get("nochk", 0)): A("s_cbranch_vccnz Lmqr")
LB("Lmqd")
if DIAG:
    A("s_sub_u32 s%d, s%d, s%d" % (sT0, sCNT, sY)); A("v_writelane_b32 v31, s%d, 0" % sT0)
Ls = L; L = []
L.append(".p2align 6"); LB("Lst_mq"); A("s_setpc_b64 %s" % sr(sRET, 2))
LB("Lmqr")
A("s_cmp_lg_u32 s%d, 0" % sY)
A("s_cbranch_scc1 Lmqr2")
if QV2:
    A("s_cmp_lg_u32 s%d, 0" % sIT)
    A("s_cbranch_scc1 Lmqr1")
    A("s_mov_b32 s%d, 1" % sIT)
    wait_w0(QV2 + 2)
    for k in range(8): A("v_mov_b32 v%d, v%d" % (QP + k, XR + k))
    A("s_branch Lmq")
    LB("Lmqr1")
C("first look failed: take the second one (V has landed with it: request its fragments now)")
A("s_waitcnt vmcnt(0)")
A("s_mov_b32 s%d, 1" % sY)
for k in range(8): A("v_mov_b32 v%d, v%d" % (QP + k, QP + 8 + k))
if not VLATE:
    for t in range(8):
        for hf in range(2):
            A("ds_read_b64_tr_b16 %s, v%d offset:%d" % (vr(VF + 4 * t + 2 * hf, 2), VA + t, 4096 * hf))
A("s_branch Lmq")
LB("Lmqr2")
C("still not there: poll the plain copy a few times, then both copies in turn")
A("s_cmp_le_u32 s%d, %s" % (sCNT, hx(SPIN - 6)))
A("s_cselect_b32 s%d, %s, 0" % (sT0, hx(QB_DELTA)))
A("s_xor_b32 s%d, s%d, s%d" % (sQL, sQL, sT0))
q0_issue()
A("s_waitcnt vmcnt(0)")
A("s_sub_u32 s%d, s%d, 1" % (sCNT, sCNT))
A("s_cbranch_scc0 Lmq")
A("s_branch Lmqd")
ool.append(L); L = Ls
A("v_cmp_ne_u32 vcc, s%d, v%d" % (sXCC, QP + 3))
A("v_mov_b32 v%d, v%d" % (QP + 2, QP + 4))
A("v_mov_b32 v%d, v%d" % (QP + 3, QP + 5))
A("ds_write_b128 v25, %s" % vr(QP, 4))
A("s_cmp_eq_u64 vcc, 0")
A("s_cselect_b32 s%d, 1, 0x101" % sT0)
A("v_mov_b32 v16, s%d" % sT0)
A("s_waitcnt lgkmcnt(0)")
lds_arrive(4, 16, None)
if VLATE:
    A("s_cmp_eq_u32 s%d, 0" % sY)
    A("s_cbranch_scc1 Lnvf")
    for t in range(8):
        for hf in range(2):
            A("ds_read_b64_tr_b16 %s, v%d offset:%d" % (vr(VF + 4 * t + 2 * hf, 2), VA + t, 4096 * hf))
    LB("Lnvf")
STAMP(15)
A("buffer_load_dwordx2 %s, v%d, %s, s%d offen" % (vr(RES + 2, 2), vX1S, sr(sX, 4), sT3))
FLG = W + 44
soff(sIT, [(sW, 10)], FB)
soff(sQL, [(sA, 12), (sJ, 17)], Q1_OFF)
for k in range(4):
    A("s_add_u32 s%d, s%d, %d" % (sT0, sC, k))
    A("s_and_b32 s%d, s%d, 3" % (sT0, sT0))
    A("s_lshl_b32 s%d, s%d, 10" % (sKO + k, sT0))
A("s_and_b32 s%d, s%d, 1" % (sT0, sC))
A("s_lshl_b32 s%d, s%d, 6" % (sT0, sT0))
A("v_xor_b32 v22, s%d, v22" % sT0); A("v_xor_b32 v23, s%d, v23" % sT0)
A("s_lshl_b32 s%d, s%d, 2" % (sT3, sM))
A("s_add_u32 s%d, s%d, s%d" % (sT3, sT3, sW))
A("s_lshl_b32 s%d, s%d, 8" % (sT3, sT3))
A("v_lshlrev_b32 v21, 7, v%d" % vLANE)
A("v_add_u32 v21, s%d, v21" % sT3)
A("s_lshl_b32 s%d, s%d, 7" % (sT0, sW))
A("s_add_u32 s%d, s%d, %d" % (sT0, sT0, LSE_OFF[0]))
A("v_writelane_b32 v21, s%d, 2" % sT0)
lds_spin(4, 4, vT, mask=0xff)
A("s_cmp_lt_u32 s%d, 256" % sT1)
A("s_cselect_b32 s%d, %d, 0" % (sFAST, int(OPT.get("fast", 1))))
QF = W + 16
for t in range(4):
    A("ds_read_b128 %s, v26 offset:%d" % (vr(QF + 4 * t, 4), 1024 * t))
S = W
qk = []
for t in range(4):
    for T in range(2):
        qk.append(mf(S + 4 * T, KF + 16 * T + 4 * t, QF + 4 * t, None if t == 0 else S + 4 * T))
for t in range(4):
    A("s_waitcnt lgkmcnt(%d)" % (3 - t))
    A(qk[2 * t]); A(qk[2 * t + 1])
def wo_issue():
    C("every wave holds its K fragments: the wo tile may land in the K area")
    for k in range(4):
        A("s_add_u32 m0, s%d, s%d" % (sT5, sKO + k))
        A("s_lshl3_add_u32 s%d, s%d, s%d" % (sT0, sKO + k, sT4))
        A("buffer_load_dwordx4 v%d, %s, s%d offen nt lds" % (22 + (k & 1), sr(sWO, 4), sT0))
if WOP == 0: wo_issue()
if PRET:
    C("bring the first layer's o / lse lines (their sentinels are in place) into L2")
    A("s_mov_b64 exec, 7")
    A("buffer_load_dword v%d, v21, %s, s%d offen sc1" % (W + 40, sr(sWS, 4), sGR))
    A("s_mov_b64 exec, -1")
STAMP(3)
A("s_branch Lk_go")

LB("Llnq")
C("LayerNorm of the row held in XR, then q partial = xn @ wq tile")
X = W
row_stats(XR, vT, X)
A("v_add_f32 v%d, %s, v%d" % (vT + 1, EPS, vT + 1))
A("v_rsq_f32 v%d, v%d" % (vT + 2, vT + 1))
A("s_cmp_eq_u32 s%d, 0" % sLAY)
A("v_mul_f32 v%d, v%d, v%d" % (vT + 3, vT, vT + 2))
for i in range(4):
    A("v_pk_fma_f32 %s, %s, %s, %s op_sel:[0,0,1] op_sel_hi:[1,0,1] neg_lo:[0,0,1] neg_hi:[0,0,1]" % (vr(X + 2 * i, 2), vr(X + 2 * i, 2), vr(vT + 2, 2), vr(vT + 2, 2)))
for i in range(4):
    A("v_cvt_pk_bf16_f32 v%d, v%d, v%d" % (X + 8 + i, X + 2 * i, X + 2 * i + 1))
A("ds_write_b128 v%d, %s" % (vXNW, vr(X + 8, 4)))
A("s_cbranch_scc1 Lq_first")
A("s_waitcnt lgkmcnt(0)")
A("s_barrier")
LB("Lq_go")
BF = W + 16
for t in range(4):
    A("ds_read_b128 %s, v%d offset:%d" % (vr(BF + 4 * t, 4), vXNR, 64 * t))
for t in range(4):
    A("s_waitcnt lgkmcnt(%d)" % (3 - t))
    mfma(W, WQF + 4 * t, BF + 4 * t, None if t == 0 else W)
A("s_cmp_eq_u32 s%d, 0" % sLAY)
A("s_mov_b64 exec, %s" % sr(sMSK, 2))
NOP(6)
A("v_cvt_pk_bf16_f32 v%d, v%d, v%d" % (W + 4, W, W + 1))
A("v_cvt_pk_bf16_f32 v%d, v%d, v%d" % (W + 5, W + 2, W + 3))
A("s_cbranch_scc1 Lh_qst")
fastcmp()
store_local("buffer_store_dwordx2", vr(W + 4, 2), vQST, sQS)
A("s_mov_b64 exec, -1")
A("ds_write_b128 v%d, %s offset:%d" % (vXNW, vr(XR, 4), L_X2 - L_XN))
A("s_mov_b32 s%d, 0" % sY)
for s, d in [(sOL, O_OFF[1] - O_OFF[0]), (sOS, O_OFF[1] - O_OFF[0]), (sLS, LSE_OFF[1] - LSE_OFF[0]), (sPS, P_L)]:
    A("s_add_u32 s%d, s%d, %d" % (s, s, d))
STAMP(2)

C("attention over this workgroup's 128 keys")
if QS:
    C("each wave fetches one k-step of q and shares it through LDS")
    A("s_lshl_b32 s%d, s%d, 10" % (sT3, sW))
    A("s_add_u32 s%d, s%d, s%d" % (sT4, sQL, sT3))
    A("s_add_u32 s%d, s%d, %d" % (sT3, sT3, L_RB + 12288))
    A("v_add_u32 v25, s%d, v%d" % (sT3, vL16))
    A("v_add_u32 v26, %d, v%d" % (L_RB + 12288, vL16))
    ppoll(lambda k: A("buffer_load_dwordx4 %s, v%d, %s, s%d offen sc1" % (vr(W + 32 + 4 * k, 4), vL16, sr(sWS, 4), sT4)),
          lambda k: range(W + 32 + 4 * k, W + 36 + 4 * k), 1, vT, lambda k: ["ds_write_b128 v25, %s" % vr(W + 32 + 4 * k, 4)], pre=QPRE, gap=QGAP, tag=0)
    A("s_waitcnt lgkmcnt(0)")
    A("s_barrier")
    for t in range(4):
        A("ds_read_b128 %s, v26 offset:%d" % (vr(QF + 4 * t, 4), 1024 * t))
    for t in range(4):
        A("s_waitcnt lgkmcnt(%d)" % (3 - t))
        A(qk[2 * t]); A(qk[2 * t + 1])
    touch_stub("k")
else:
    def iq(k):
        for t in range(4):
            A("buffer_load_dwordx4 %s, v%d, %s, s%d offen offset:%d sc1" % (vr(QF + 16 * k + 4 * t, 4), vL16, sr(sWS, 4), sQL, 1024 * t))
    def qks(k):
        return [mf(S + 4 * T, KF + 16 * T + 4 * t, QF + 16 * k + 4 * t, None if t == 0 else S + 4 * T) for t in range(4) for T in range(2)]
    ppoll(iq, lambda k: range(QF + 16 * k, QF + 16 * k + 16), 4, vT, qks, pre=QPRE, gap=QGAP, tag=0, stub="k", per_load=lambda k, i: qks(k)[2 * i:2 * i + 2])
STAMP(3)
LB("Lk_go")
NOP(5)
for ctl in ["row_ror:4", "row_ror:8"]:
    for i in range(8):
        A("v_add_f32_dpp v%d, v%d, v%d %s row_mask:0xf bank_mask:0xf" % (S + i, S + i, S + i, ctl))
A("v_max3_f32 v%d, v%d, v%d, v%d" % (vT, S, S + 1, S + 2))
A("v_max3_f32 v%d, v%d, v%d, v%d" % (vT + 1, S + 3, S + 4, S + 5))
A("v_max3_f32 v%d, v%d, v%d, v%d" % (vT, vT, S + 6, S + 7))
A("v_max_f32 v%d, v%d, v%d" % (vT, vT, vT + 1))
A("v_mov_b32 v%d, v%d" % (vT + 1, vT))
A("s_nop 1")
A("v_permlane16_swap_b32 v%d, v%d" % (vT, vT + 1))
A("v_max_f32 v%d, v%d, v%d" % (vT, vT, vT + 1))
A("v_mov_b32 v%d, v%d" % (vT + 1, vT))
A("s_nop 1")
A("v_permlane32_swap_b32 v%d, v%d" % (vT, vT + 1))
A("v_max_f32 v%d, v%d, v%d" % (vT, vT, vT + 1))
A("v_mul_f32 v%d, s%d, v%d" % (vT + 2, sSC, vT))
for i in range(8):
    A("v_fma_f32 v%d, v%d, s%d, -v%d" % (S + i, S + i, sSC, vT + 2))
for i in range(8):
    A("v_exp_f32 v%d, v%d" % (S + i, S + i))
for p in range(4):
    A("s_mov_b64 exec, %s" % sr(sPM + 2 * p, 2))
    for i in range(4):
        A("v_cvt_pk_bf16_f32 v%d, v%d, v%d" % (PM + 4 * p + i, S + 2 * i, S + 2 * i + 1))
A("s_mov_b64 exec, -1")
STAMP(4)
A("s_cmp_lg_u32 s%d, 0" % sLAY)
A("s_cbranch_scc1 Lv_go")
wait_w0((5 if WOP == 0 else 1) + PRET)
if WOP == 1: wo_issue()
A("buffer_load_dwordx4 %s, v%d, %s, s%d offen sc1" % (vr(FLG, 4), vL16, sr(sWS, 4), sIT))
STAMP(6)
A("s_cmp_lg_u32 s%d, 0" % sY)
A("s_cbranch_scc1 Lv_have")
for t in range(8):
    for hf in range(2):
        A("ds_read_b64_tr_b16 %s, v%d offset:%d" % (vr(VF + 4 * t + 2 * hf, 2), VA + t, 4096 * hf))
A("s_waitcnt lgkmcnt(0)")
LB("Lv_have")
if TOT or MEAS:
    A("s_memrealtime s[42:43]"); A("s_waitcnt lgkmcnt(0)"); A("s_mov_b32 s97, s42")
A("s_cmp_lg_u32 s%d, 0" % sLAY)
LB("Lv_go")
OA = W + 8
mfma(W + 16, ONES, PM, None)
for p in range(4):
    for T in range(2):
        mfma(OA + 4 * T, VF + 4 * (2 * p + T), PM + 4 * p, None if p == 0 else OA + 4 * T)
A("s_mov_b64 exec, %s" % sr(sMSK, 2))
A("v_mov_b32 v%d, v%d" % (vT + 3, W + 16))
A("ds_write_b64 v%d, %s" % (vMLW, vr(vT + 2, 2)))
A("s_mov_b64 exec, -1")
NOP(3)
A("ds_write_b128 v%d, %s" % (vRBW, vr(OA, 4)))
A("ds_write_b128 v%d, %s offset:64" % (vRBW, vr(OA + 4, 4)))
A("s_waitcnt lgkmcnt(0)")
A("s_cbranch_scc1 Lrb_bar")
lds_arrive(12, vT + 4)
if WOP == 2: wo_issue()
lds_spin(12, 4, vT + 4)
A("s_branch Lrb_go")
LB("Lrb_bar")
A("s_barrier")
LB("Lrb_go")
A("ds_read_b128 %s, v%d" % (vr(W, 4), vMLR))
A("ds_read_b128 %s, v%d offset:16" % (vr(W + 4, 4), vMLR))
for w in range(4):
    A("ds_read_b64 %s, v%d offset:%d" % (vr(W + 8 + 2 * w, 2), vRBR, RBS * w))
A("v_mov_b32 v%d, 0" % (vT + 4))
fastcmp()
A("s_waitcnt lgkmcnt(4)")
A("v_max3_f32 v%d, v%d, v%d, v%d" % (vT, W, W + 2, W + 4))
A("v_max_f32 v%d, v%d, v%d" % (vT, vT, W + 6))
for w in range(4): A("v_sub_f32 v%d, v%d, v%d" % (W + 2 * w, W + 2 * w, vT))
for w in range(4): A("v_exp_f32 v%d, v%d" % (W + 2 * w, W + 2 * w))
A("v_mul_f32 v%d, v%d, v%d" % (vT + 1, W, W + 1))
for w in range(1, 4): A("v_fmac_f32 v%d, v%d, v%d" % (vT + 1, W + 2 * w, W + 2 * w + 1))
A("s_waitcnt lgkmcnt(0)")
A("v_pk_mul_f32 %s, %s, %s op_sel_hi:[1,0]" % (vr(W + 8, 2), vr(W + 8, 2), vr(W, 2)))
A("v_rcp_f32 v%d, v%d" % (vT + 2, vT + 1))
A("v_pk_fma_f32 %s, %s, %s, %s op_sel_hi:[1,0,1]" % (vr(W + 8, 2), vr(W + 10, 2), vr(W + 2, 2), vr(W + 8, 2)))
A("v_log_f32 v%d, v%d" % (vT + 5, vT + 1))
for w in range(2, 4):
    A("v_pk_fma_f32 %s, %s, %s, %s op_sel_hi:[1,0,1]" % (vr(W + 8, 2), vr(W + 8 + 2 * w, 2), vr(W + 2 * w, 2), vr(W + 8, 2)))
A("v_pk_mul_f32 %s, %s, %s op_sel_hi:[1,0]" % (vr(W + 8, 2), vr(W + 8, 2), vr(vT + 2, 2)))
A("v_add_f32 v%d, v%d, v%d" % (vT + 5, vT + 5, vT))
A("v_cvt_pk_bf16_f32 v%d, v%d, v%d" % (W + 8, W + 8, W + 9))
store_local("buffer_store_dword", "v%d" % (W + 8), vOST, sOS)
A("s_mov_b64 exec, 1")
store_local("buffer_store_dword", "v%d" % (vT + 5), vT + 4, sLS)
A("s_mov_b64 exec, -1")
STAMP(5)

C("wo phase: wave = batch, rows = key splits")
OF = W; LS = W + 32; DA = WQF
assert LSE_OFF[1] - O_OFF[1] == LSE_OFF[0] - O_OFF[0]
def io(k):
    for t in range(4):
        A("buffer_load_dwordx4 %s, v%d, %s, s%d offen offset:%d sc1" % (vr(OF + 16 * k + 4 * t, 4), [vLSE, vLS2, vOLD, vOLD][t], sr(sWS, 4), sOL, 512 * t))
A("s_cmp_lg_u32 s%d, 0" % sLAY)
A("s_cbranch_scc1 Lo_go")
C("first layer: wo tile landed -> fragments; every workgroup has announced its clears")
if WOP == 3: wo_issue()
A("s_waitcnt vmcnt(%d)" % (2 if WOP < 3 else 0))
STAMP(13)
A("s_mov_b32 s%d, %s" % (sT4, hx(SPIN)))
LB("Lap")
A("v_and_b32 v24, -8, v%d" % (FLG + 1))
A("v_cmp_ne_u32 vcc, s%d, v%d" % (sTG1, FLG))
A("v_cmp_ne_u32 %s, s%d, v24" % (sr(sH, 2), sTG2))
A("s_or_b64 vcc, vcc, %s" % sr(sH, 2))
A("s_cbranch_vccnz Lar")
LB("Lad")
lds_arrive(16, 24)
for i in range(2):
    A("v_lshlrev_b32 v%d, 16, v%d" % (W + 40 + 2 * i, RES + 2 + i))
    A("v_and_b32 v%d, 0xffff0000, v%d" % (W + 41 + 2 * i, RES + 2 + i))
for i in range(4): A("v_mov_b32 v%d, v%d" % (RES + i, W + 40 + i))
for ct in range(4): A("v_xor_b32 v%d, %d, v%d" % (W + 40 + ct, 32 * ct, vWT))
for ct in range(4): A("v_add_u32 v%d, %d, v%d" % (W + 40 + ct, L_WO, W + 40 + ct))
lds_spin(16, 4, 24)
STAMP(14)
A("s_mov_b32 s%d, 1" % sY)
LB("Lo_go")
A("s_mov_b32 s%d, 0x55555555" % sT4)
A("s_mov_b32 s%d, 0x55555555" % sT5)
def pre_o():
    A("s_cmp_eq_u32 s%d, 0" % sY)
    A("s_cbranch_scc1 Lo_nof")
    A("s_mov_b32 s%d, 0" % sY)
    for t in range(4):
        for ct in range(4):
            for hf in range(2):
                A("ds_read_b64_tr_b16 %s, v%d offset:%d" % (vr(WOF + 16 * ct + 4 * t + 2 * hf, 2), W + 40 + ct, 4096 * t + 512 * hf))
    LB("Lo_nof")
ool.append(["Lar:", "    s_sleep 4", "    s_lshl_b32 s%d, s%d, 10" % (sT5, sW), "    s_add_u32 s%d, s%d, %s" % (sT5, sT5, hx(FB)),
            "    buffer_load_dwordx4 %s, v%d, %s, s%d offen sc1" % (vr(FLG, 4), vL16, sr(sWS, 4), sT5),
            "    s_waitcnt vmcnt(0)", "    s_sub_u32 s%d, s%d, 1" % (sT4, sT4), "    s_cbranch_scc0 Lap", "    s_branch Lad"])
C("softmax over the 8 key splits: lanes n>=8 hold own lse in OF[0:3], the other four in OF[4:7]")
vU = vT + 2
def wo_all(k, t):
    o = OF + 16 * k
    m = [mf(DA + 4 * ct, o + 4 * t, WOF + 16 * ct + 4 * t, None if t == 0 else DA + 4 * ct) for ct in range(4)]
    va = ["v_max3_f32 v%d, v%d, v%d, v%d" % (vU, o, o + 1, o + 2), "v_max3_f32 v%d, v%d, v%d, v%d" % (vU + 1, o + 3, o + 4, o + 5),
          "v_max3_f32 v%d, v%d, v%d, v%d" % (vU, vU, o + 6, o + 7), "v_max_f32 v%d, v%d, v%d" % (vU, vU, vU + 1)]
    va += ["v_sub_f32 v%d, v%d, v%d" % (LS + i, o + i, vU) for i in range(4)]
    va += ["v_exp_f32 v%d, v%d" % (LS + i, LS + i) for i in range(4)]
    vb = ["v_mov_b32_dpp v%d, v%d row_ror:8 row_mask:0xf bank_mask:0x3" % (LS + i, LS + i) for i in range(4)]
    vb += ["v_add_f32 v%d, v%d, v%d" % (vU, LS, LS + 1), "v_add_f32 v%d, v%d, v%d" % (vU + 1, LS + 2, LS + 3),
           "v_add_f32 v%d, v%d, v%d" % (vU, vU, vU + 1), "v_mov_b32 v%d, v%d" % (vU + 1, vU)]
    f = {0: [], 1: va[:4], 2: va[4:], 3: vb}[t]
    out = ["s_waitcnt lgkmcnt(%d)" % [15, 15, 8, 0][t]] if t != 1 else []
    for x in m:
        out.append(x)
        for _ in range(2):
            if f: out.append(f.pop(0))
    return out
assert PROG and OGAP < 0
ppoll(io, lambda k: range(OF + 16 * k, OF + 16 * k + 16), 4, vT, None, pre=OPRE, gap=OGAP, mid=pre_o, tag=1, per_load=wo_all)
STAMP(7)
A("v_permlane16_swap_b32 v%d, v%d" % (vU, vU + 1))
A("v_mul_f32 v%d, v%d, v%d" % (DA, DA, LS))
A("v_add_f32 v%d, v%d, v%d" % (vT, vU, vU + 1))
A("v_mul_f32 v%d, v%d, v%d" % (DA + 4, DA + 4, LS))
A("v_rcp_f32 v%d, v%d" % (vT, vT))
A("v_mul_f32 v%d, v%d, v%d" % (DA + 8, DA + 8, LS))
for i in range(1, 4):
    for ct in range(3):
        A("v_fmac_f32 v%d, v%d, v%d" % (DA + 4 * ct, DA + 4 * ct + i, LS + i))
    if i == 1: A("v_mul_f32 v%d, v%d, v%d" % (DA + 12, DA + 12, LS))
for i in range(1, 4): A("v_fmac_f32 v%d, v%d, v%d" % (DA + 12, DA + 12 + i, LS + i))
A("v_permlane16_swap_b32 v%d, v%d" % (DA, DA + 4))
A("s_nop 0")
A("v_permlane16_swap_b32 v%d, v%d" % (DA + 8, DA + 12))
A("v_add_f32 v%d, v%d, v%d" % (DA, DA, DA + 4))
A("v_add_f32 v%d, v%d, v%d" % (DA + 8, DA + 8, DA + 12))
A("s_nop 1")
A("v_permlane32_swap_b32 v%d, v%d" % (DA, DA + 8))
A("v_mul_f32 v%d, v%d, v%d" % (DA, DA, vT))
A("s_cmp_lg_u32 s%d, 0" % sLAY)
A("s_nop 0")
A("v_mov_b32_dpp v%d, v%d quad_perm:[1,0,3,2] row_mask:0xf bank_mask:0xf" % (DA + 1, DA))
A("s_mov_b64 exec, %s" % sr(sT4, 2))
A("v_cvt_pk_bf16_f32 v%d, v%d, v%d" % (DA, DA, DA + 1))
A("buffer_store_dword v%d, v%d, %s, s%d offen sc1" % (DA, vPST, sr(sWS, 4), sPS))
A("s_mov_b64 exec, -1")
STAMP(8)
A("s_cbranch_scc1 Lfinal")

if PRET:
    C("same for the remaining lines of the group's mailboxes")
    soff(sT1, [(sM, 11), (sW, 9), (sJ, 17)], CLRB_OFF)
    A("v_lshlrev_b32 v21, 7, v%d" % vLANE)
    A("s_mov_b64 exec, 15")
    A("buffer_load_dword v%d, v21, %s, s%d offen sc1" % (W + 47, sr(sWS, 4), sT1))
    A("s_mov_b64 exec, -1")
A("s_cmp_lg_u32 s%d, 0" % sW)
A("s_cbranch_scc1 Ltab")
C("stage 1 (wave 0): reduce 32 head partials of 64 outputs, add residual, publish x1 slice")
soff(sT1, [(sA, 15), (sC, 12)], PB)
soff(sT2, [(sA, 10), (sC, 7), (sJ, 17)], X1_OFF)
A("s_mov_b32 s%d, 0x00ff00ff" % sT4)
A("s_mov_b32 s%d, 0" % sT5)
def ip(k):
    for i in range(4):
        A("buffer_load_dwordx4 %s, v%d, %s, s%d offen offset:%d sc1" % (vr(W + 20 * k + 4 * i, 4), vL16, sr(sWS, 4), sT1, 1024 * i))
if GW: A("s_waitcnt vmcnt(0)")
ppoll(ip, lambda k: range(W + 20 * k, W + 20 * k + 16), 4, vT, lambda k: [mf(W + 16, SEL, W + 20 * k + 4 * i, None if i == 0 else W + 16) for i in range(4)], pre=GPRE, gap=GGAP, tag=2,
      per_load=lambda k, i: [mf(W + 16, SEL, W + 20 * k + 4 * i, None if i == 0 else W + 16)])
STAMP(9)
fastcmp()
NOP(3)
for i in range(4):
    A("v_add_f32_dpp v%d, v%d, v%d row_ror:8 row_mask:0xf bank_mask:0xf" % (W + 16 + i, W + 16 + i, W + 16 + i))
A("s_mov_b64 exec, %s" % sr(sT4, 2))
A("v_pk_add_f32 %s, %s, %s" % (vr(W + 16, 2), vr(W + 16, 2), vr(RES, 2)))
A("v_pk_add_f32 %s, %s, %s" % (vr(W + 18, 2), vr(W + 18, 2), vr(RES + 2, 2)))
A("v_cvt_pk_bf16_f32 v%d, v%d, v%d" % (W + 16, W + 16, W + 17))
A("v_cvt_pk_bf16_f32 v%d, v%d, v%d" % (W + 17, W + 18, W + 19))
store_local("buffer_store_dwordx2", vr(W + 16, 2), vX1S, sT2)
A("s_mov_b64 exec, -1")
LB("Ltabdone")
soff(sT3, [(sW, 10), (sJ, 17)], X1_OFF)
def ix(k):
    A("buffer_load_dwordx4 %s, v%d, %s, s%d offen sc1" % (vr([XR, RES][k], 4), vL16, sr(sWS, 4), sT3))
wqf_reads()
ppoll(ix, lambda k: range([XR, RES][k], [XR, RES][k] + 4), 1, vT, lambda k: ["s_waitcnt lgkmcnt(0)", "v_readfirstlane_b32 s%d, v%d" % (sT1, vT + 2)],
      pre=XPRE, gap=XGAP, mid=lambda: A("ds_read_b32 v%d, v%d offset:20" % (vT + 2, vFL)), tag=3,
      fix=["v_mov_b32 v%d, v%d" % (XR + i, RES + i) for i in range(4)])
A("s_cmp_lt_u32 s%d, 3" % sT1)
A("s_cbranch_scc1 Ltw")
LB("Ltwd")
STAMP(10)

LB("Lmix")
C("x <- x + g(LN(LN(x))) ; g is tabulated for every bf16 input in range, evaluated directly otherwise")
X = W; HB = W + 8; RT = W + 12; AD = W + 16; Y = W + 24
row_stats(XR, vT, X)
A("v_add_f32 v%d, %s, v%d" % (vT + 2, EPS, vT + 1))
A("v_rsq_f32 v%d, v%d" % (vT + 2, vT + 2))
A("v_mov_b32 v%d, %s" % (vT + 4, hx(LO2 | (LO2 << 16))))
A("s_movk_i32 s%d, %d" % (sT5, NENT * 4))
A("v_mul_f32 v%d, v%d, v%d" % (vT + 1, vT + 1, vT + 2))
A("v_fmaak_f32 v%d, v%d, v%d, %s" % (vT + 1, vT + 1, vT + 2, EPS))
A("v_rsq_f32 v%d, v%d" % (vT + 1, vT + 1))
A("s_nop 0")
A("v_mul_f32 v%d, v%d, v%d" % (vT + 2, vT + 2, vT + 1))
A("v_mul_f32 v%d, v%d, v%d" % (vT + 3, vT, vT + 2))
for i in range(4):
    A("v_pk_fma_f32 %s, %s, %s, %s op_sel:[0,0,1] op_sel_hi:[1,0,1] neg_lo:[0,0,1] neg_hi:[0,0,1]" % (vr(AD + 2 * i, 2), vr(X + 2 * i, 2), vr(vT + 2, 2), vr(vT + 2, 2)))
for i in range(4):
    A("v_cvt_pk_bf16_f32 v%d, v%d, v%d" % (HB + i, AD + 2 * i, AD + 2 * i + 1))
for i in range(4):
    A("v_pk_lshlrev_b16 v%d, 1, v%d op_sel_hi:[0,1]" % (RT + i, HB + i))
    A("v_pk_lshrrev_b16 v%d, 15, v%d op_sel_hi:[0,1]" % (AD + i, HB + i))
for i in range(4):
    A("v_or_b32 v%d, v%d, v%d" % (RT + i, RT + i, AD + i))
for i in range(4):
    A("v_pk_sub_u16 v%d, v%d, v%d" % (RT + i, RT + i, vT + 4))
for i in range(4):
    A("v_lshlrev_b32_sdwa v%d, 2, v%d dst_sel:DWORD dst_unused:UNUSED_PAD src0_sel:DWORD src1_sel:WORD_0" % (AD + 2 * i, RT + i))
    A("v_lshlrev_b32_sdwa v%d, 2, v%d dst_sel:DWORD dst_unused:UNUSED_PAD src0_sel:DWORD src1_sel:WORD_1" % (AD + 2 * i + 1, RT + i))
    A("ds_read_b32 v%d, v%d offset:%d" % (Y + 2 * i, AD + 2 * i, L_TAB))
    A("ds_read_b32 v%d, v%d offset:%d" % (Y + 2 * i + 1, AD + 2 * i + 1, L_TAB))
A("v_max3_u32 v%d, v%d, v%d, v%d" % (vT, AD, AD + 1, AD + 2))
A("v_max3_u32 v%d, v%d, v%d, v%d" % (vT + 1, AD + 3, AD + 4, AD + 5))
A("v_max3_u32 v%d, v%d, v%d, v%d" % (vT, vT, AD + 6, AD + 7))
A("v_max_u32 v%d, v%d, v%d" % (vT, vT, vT + 1))
A("v_cmp_le_u32 %s, s%d, v%d" % (sr(sH, 2), sT5, vT))
A("s_waitcnt lgkmcnt(5)")
A("v_max3_u32 v%d, v%d, v%d, v%d" % (vT, Y, Y + 1, Y + 2))
A("s_waitcnt lgkmcnt(2)")
A("v_max3_u32 v%d, v%d, v%d, v%d" % (vT + 1, Y + 3, Y + 4, Y + 5))
A("s_waitcnt lgkmcnt(0)")
A("v_max3_u32 v%d, v%d, v%d, v%d" % (vT, vT, Y + 6, Y + 7))
A("v_max_u32 v%d, v%d, v%d" % (vT, vT, vT + 1))
A("v_cmp_eq_u32 vcc, -1, v%d" % vT)
LB("Lslowdone")
for i in range(4):
    A("v_pk_add_f32 %s, %s, %s" % (vr(vT + 2 + 2 * i, 2), vr(X + 2 * i, 2), vr(Y + 2 * i, 2)))
A("s_or_b64 vcc, vcc, %s" % sr(sH, 2))
A("s_cbranch_vccnz Lslow")
A("s_cmp_lg_u32 s%d, 0" % sLAY)
for i in range(4):
    A("v_cvt_pk_bf16_f32 v%d, v%d, v%d" % (XR + i, vT + 2 + 2 * i, vT + 3 + 2 * i))
STAMP(11)
A("s_cbranch_scc1 Lout")
A("s_mov_b32 s%d, 1" % sLAY)
if TOT or MEAS: A("s_memrealtime s[100:101]")
if DIAG: A("v_mov_b32 v28, v30")
A("s_branch Llnq")

L.append(".p2align 6"); LB("Lst_fin"); A("s_setpc_b64 %s" % sr(sRET, 2)); stubs.append("fin")
LB("Lfinal")
A("s_cmp_ge_u32 s2, 4")
A("s_cbranch_scc1 Lepoch")
C("workgroup b: reduce the 32 head partials of row b, add x2, mixer, store")
soff(sT1, [(2, 15), (sW, 13)], PB + P_L)
A("s_add_u32 s%d, s%d, 4096" % (sT2, sT1))
A("s_mul_i32 s%d, s2, %d" % (sT0, XS))
A("s_lshl_b32 s%d, s%d, 8" % (sT3, sW))
A("s_add_u32 s%d, s%d, s%d" % (sT0, sT0, sT3))
A("s_add_u32 s%d, s%d, %d" % (sT0, sT0, L_X2))
A("v_add_u32 v%d, s%d, v%d" % (vT + 4, sT0, vX1S))
A("s_add_u32 s%d, s%d, %d" % (sT3, sT3, L_XN))
A("v_add_u32 v%d, s%d, v%d" % (vT + 5, sT3, vX1S))
A("ds_read_b64 %s, v%d" % (vr(PM, 2), vT + 4))
A("ds_read_b64 %s, v%d offset:128" % (vr(PM + 2, 2), vT + 4))
A("s_mov_b32 s%d, 0x00ff00ff" % sT4)
A("s_mov_b32 s%d, 0" % sT5)
if XENT:
    A("s_cmp_lg_u32 s%d, 3" % sW)
    A("s_cbranch_scc1 Lfn3")
    A("ds_read_b32 v%d, v%d offset:48" % (vT, vFL))
    A("s_waitcnt lgkmcnt(0)")
    A("v_readfirstlane_b32 s%d, v%d" % (sT0, vT))
    A("s_cmp_eq_u32 s%d, 0" % sT0)
    A("s_cbranch_scc1 Lfn3")
    A("s_mov_b32 s%d, %s" % (sCNT, hx(TB)))
    for i in range(XENT * 4 // 1024):
        A("buffer_load_dwordx4 %s, v%d, %s, s%d offen offset:%d sc1" % (vr(W + 4 * i, 4), vL16, sr(sWS, 4), sCNT, 1024 * i))
    A("v_add_u32 v%d, %d, v%d" % (vT + 6, L_TAB, vL16))
    A("s_waitcnt vmcnt(0)")
    for i in range(XENT * 4 // 1024):
        A("ds_write_b128 v%d, %s offset:%d" % (vT + 6, vr(W + 4 * i, 4), 1024 * i))
    LB("Lfn3")
A("s_waitcnt lgkmcnt(0)")
if GW: A("s_waitcnt vmcnt(0)")
for i in range(4):
    A("v_lshlrev_b32 v%d, 16, v%d" % (PM + 4 + 2 * i, PM + i))
    A("v_and_b32 v%d, 0xffff0000, v%d" % (PM + 5 + 2 * i, PM + i))
if "bias" in OPT:
    for i in range(8): A("v_add_f32 v%d, %s, v%d" % (PM + 4 + i, hx(f2u(float(OPT["bias"]))), PM + 4 + i))
FS = [KF, VF]
def ifin(k):
    for i in range(8):
        A("buffer_load_dwordx4 %s, v%d, %s, s%d offen offset:%d sc1" % (vr(FS[k] + 4 * i, 4), vL16, sr(sWS, 4), sT1 if i < 4 else sT2, 1024 * (i & 3)))
def fs(k):
    o = []
    for i in range(4):
        o.append(mf(W + 32, SEL, FS[k] + 4 * i, None if i == 0 else W + 32))
        o.append(mf(W + 36, SEL, FS[k] + 16 + 4 * i, None if i == 0 else W + 36))
    return o
ppoll(ifin, lambda k: range(FS[k], FS[k] + 32), 8, vT, fs, pre=GPRE, gap=GGAP, tag=2,
      per_load=lambda k, i: [mf(W + 32 + 4 * (i >> 2), SEL, FS[k] + 4 * i, None if (i & 3) == 0 else W + 32 + 4 * (i >> 2))])
STAMP(9)
NOP(2)
for i in range(8):
    A("v_add_f32_dpp v%d, v%d, v%d row_ror:8 row_mask:0xf bank_mask:0xf" % (W + 32 + i, W + 32 + i, W + 32 + i))
A("s_mov_b64 exec, %s" % sr(sT4, 2))
for i in range(4):
    A("v_pk_add_f32 %s, %s, %s" % (vr(W + 32 + 2 * i, 2), vr(W + 32 + 2 * i, 2), vr(PM + 4 + 2 * i, 2)))
for i in range(4):
    A("v_cvt_pk_bf16_f32 v%d, v%d, v%d" % (W + 32 + i, W + 32 + 2 * i, W + 33 + 2 * i))
A("ds_write_b64 v%d, %s" % (vT + 5, vr(W + 32, 2)))
A("ds_write_b64 v%d, %s offset:128" % (vT + 5, vr(W + 34, 2)))
A("s_mov_b64 exec, -1")
A("s_cmp_lg_u32 s%d, 0" % sW)
A("s_waitcnt lgkmcnt(0)")
A("s_barrier")
A("s_cbranch_scc1 Lfin_exit")
A("ds_read_b128 %s, v%d" % (vr(XR, 4), vXNW))
A("s_waitcnt lgkmcnt(0)")
STAMP(10)
A("s_branch Lmix")
L.append(".p2align 6"); LB("Lst_out"); A("s_setpc_b64 %s" % sr(sRET, 2)); stubs.append("out")
LB("Lout")
A("s_lshl_b32 s%d, s2, 10" % sT0)
A("buffer_store_dwordx4 %s, v%d, %s, s%d offen" % (vr(XR, 4), vL16, sr(sOUT, 4), sT0))
if DBL:
    A("s_cmp_lg_u32 s2, 0")
    A("s_cbranch_scc1 Lfin_exit")
if DBL:
    A("s_waitcnt vmcnt(0)")
    A("s_memrealtime s[10:11]")
    A("s_waitcnt lgkmcnt(0)")
    A("s_sub_u32 s12, s10, s98")
    if "pad" in OPT:
        A("s_mov_b32 s10, s98"); A("s_mov_b32 s12, %d" % (100 * int(OPT["pad"])))
    LB("Ldbl")
    A("s_memrealtime s[14:15]")
    A("s_waitcnt lgkmcnt(0)")
    A("s_sub_u32 s13, s14, s10")
    A("s_cmp_lt_u32 s13, s12")
    A("s_cbranch_scc1 Ldbl")
LB("Lfin_exit")
if MEAS:
    src = {"pv": "s97", "mix": "s100", "entry": "s98"}.get(OPT["q"], "s98")
    A("s_waitcnt vmcnt(0) lgkmcnt(0)")
    if OPT["q"] == "end":
        A("s_memrealtime s[42:43]"); A("s_waitcnt lgkmcnt(0)"); src = "s42"
    LB("Lms0")
    A("s_memrealtime s[14:15]"); A("s_waitcnt lgkmcnt(0)"); A("s_sub_u32 s13, s14, s98"); A("s_cmp_lt_u32 s13, 1600"); A("s_cbranch_scc1 Lms0")
    A("s_mov_b64 exec, 1")
    A("v_mov_b32 v16, %s" % src)
    A("s_not_b32 s10, s98")
    A("v_mov_b32 v17, s10")
    A("global_atomic_umax v[30:31], v16, off sc1")
    A("global_atomic_umax v[30:31], v17, off offset:128 sc1")
    A("s_or_b32 s10, s2, s%d" % sW)
    A("s_cmp_lg_u32 s10, 0")
    A("s_cbranch_scc1 Lend")
    LB("Lms1")
    A("s_memrealtime s[14:15]"); A("s_waitcnt lgkmcnt(0)"); A("s_sub_u32 s13, s14, s98"); A("s_cmp_lt_u32 s13, 4000"); A("s_cbranch_scc1 Lms1")
    A("global_load_dword v16, v[30:31], off sc1")
    A("global_load_dword v17, v[30:31], off offset:128 sc1")
    A("s_waitcnt vmcnt(0)")
    A("v_readfirstlane_b32 s10, v16"); A("v_readfirstlane_b32 s11, v17")
    A("s_not_b32 s11, s11"); A("s_sub_u32 s10, s10, s11"); A("s_lshl_b32 s10, s10, 2"); A("s_add_u32 s12, s10, 4200")
    A("s_min_u32 s12, s12, 20000")
    LB("Lms2")
    A("s_memrealtime s[14:15]"); A("s_waitcnt lgkmcnt(0)"); A("s_sub_u32 s13, s14, s98"); A("s_cmp_lt_u32 s13, s12"); A("s_cbranch_scc1 Lms2")
if TOT:
    A("s_waitcnt vmcnt(0)")
    A("s_memrealtime s[10:11]")
    A("s_waitcnt lgkmcnt(0)")
    A("v_mov_b32 v16, s98")
    A("v_mov_b32 v17, s10")
    A("v_mov_b32 v18, s100")
    A("v_mov_b32 v19, s97")
    soff(sT2, [(2, 6), (sW, 4)], STB)
    A("v_mov_b32 v20, 0")
    A("s_mov_b64 exec, 1")
    A("buffer_store_dwordx4 v[16:19], v20, %s, s%d offen" % (sr(sWS, 4), sT2))
if DIAG:
    A("s_waitcnt vmcnt(0)")
    STAMP(12)
    if DIAG == 2:
        A("s_or_b32 s%d, s2, s%d" % (sT0, sW))
        A("s_cmp_lg_u32 s%d, 0" % sT0)
        A("s_cbranch_scc1 Lend")
        A("v_readlane_b32 s%d, v28, 0" % sT2)
        for k, (r, i) in enumerate([(31, 10), (31, 12), (28, 1), (28, 2), (28, 6), (28, 5), (28, 7), (28, 8), (28, 9), (28, 10), (28, 11), (30, 3), (30, 5), (30, 8), (30, 9), (30, 12)]):
            A("v_readlane_b32 s%d, v%d, %d" % (sT3, r, i))
            A("s_sub_u32 s%d, s%d, s%d" % (sT3, sT3, sT2))
            A("s_nop 0")
            A("v_writelane_b32 v17, s%d, %d" % (sT3, k))
        A("v_lshlrev_b32 v16, 2, v%d" % vLANE)
        A("s_mov_b64 exec, 0xffff")
        A("global_store_dword v16, v17, s[100:101]")
        A("s_endpgm")
    soff(sT1, [(2, 10), (sW, 7)], STB)
    A("v_lshlrev_b32 v16, 2, v%d" % vLANE)
    A("s_mov_b64 exec, 0xffff")
    A("buffer_store_dword v28, v16, %s, s%d offen" % (sr(sWS, 4), sT1))
    A("buffer_store_dword v30, v16, %s, s%d offen offset:64" % (sr(sWS, 4), sT1))
    A("s_add_u32 s%d, s%d, 0x40000" % (sT1, sT1))
    A("buffer_store_dword v31, v16, %s, s%d offen" % (sr(sWS, 4), sT1))
LB("Lend")
A("s_endpgm")
LB("Lepoch")
if int(OPT.get("wb", 0)):
    A("s_cmp_lg_u32 s%d, 0" % sW)
    A("s_cbranch_scc1 Lnowb")
    A("s_waitcnt vmcnt(0)")
    A("buffer_wbl2 sc1")
    LB("Lnowb")
C("every workgroup has used the old launch tag long ago: workgroup 4 advances it")
A("s_lshl_b32 s%d, s%d, 8" % (sT0, sW))
A("s_add_u32 s%d, s%d, s2" % (sT0, sT0))
A("s_cmp_lg_u32 s%d, 4" % sT0)
A("s_cbranch_scc1 Lfin_exit")
A("v_mov_b32 v16, s%d" % sTG1)
A("v_mov_b32 v17, %s" % hx(EPO))
A("s_mov_b64 exec, 1")
A("buffer_store_dword v16, v17, %s, 0 offen sc1" % sr(sWS, 4))
A("s_mov_b64 exec, -1")
A("s_branch Lfin_exit")

L.append(".p2align 6"); LB("Lst_tab"); A("s_setpc_b64 %s" % sr(sRET, 2)); stubs.append("tab")
LB("Ltab")
C("waves 2,3: gather the main part of the g(h) table into LDS ; wave 1: the lowest octaves, best effort")
NTL = NOCT * 1024 // 2 // 1024
A("s_cmp_eq_u32 s%d, 1" % sW)
A("s_cbranch_scc1 Lext")
A("s_sub_u32 s%d, s%d, 2" % (sT1, sW))
A("s_mul_i32 s%d, s%d, %d" % (sT1, sT1, NTL * 1024))
A("s_add_u32 s%d, s%d, %d" % (sT1, sT1, XENT * 4))
A("v_add_u32 v%d, s%d, v%d" % (vT + 4, sT1, vL16))
A("v_add_u32 v%d, %d, v%d" % (vT + 4, L_TAB, vT + 4))
A("s_add_u32 s%d, s%d, %s" % (sT1, sT1, hx(TB)))
A("s_add_u32 s%d, s%d, 4096" % (sT2, sT1))
def it():
    for i in range(NTL):
        A("buffer_load_dwordx4 %s, v%d, %s, s%d offen offset:%d sc1" % (vr(W + 4 * i, 4), vL16, sr(sWS, 4), sT1 if i < 4 else sT2, 1024 * (i & 3)))
poll(it, range(W, W + 4 * NTL), vT, back="s_sleep %d" % int(OPT.get("tsl", 16)))
for i in range(NTL):
    A("ds_write_b128 v%d, %s offset:%d" % (vT + 4, vr(W + 4 * i, 4), 1024 * i))
A("s_waitcnt lgkmcnt(0)")
lds_arrive(20, vT + 4)
STAMP(9)
A("s_branch Ltabdone")
def ext_load(d):
    for i in range(XENT * 4 // 1024):
        A("buffer_load_dwordx4 %s, v%d, %s, s%d offen offset:%d sc1" % (vr(d + 4 * i, 4), vL16, sr(sWS, 4), sT4, 1024 * i))
def ext_write(d):
    for i in range(XENT * 4 // 1024):
        A("ds_write_b128 v%d, %s offset:%d" % (vT + 4, vr(d + 4 * i, 4), 1024 * i))
LB("Lext")
if XENT:
    A("s_mov_b32 s%d, %s" % (sT4, hx(TB)))
    A("v_add_u32 v%d, %d, v%d" % (vT + 4, L_TAB, vL16))
    for i in range(4): A("v_mov_b32 v%d, -1" % (W + i))
    for i in range(XENT * 4 // 1024):
        A("ds_write_b128 v%d, %s offset:%d" % (vT + 4, vr(W, 4), 1024 * i))
    A("ds_write_b32 v%d, v%d offset:48" % (vFL, W))
    A("s_waitcnt lgkmcnt(0)")
lds_arrive(20, vT + 5)
if XENT:
    C("one look at the lowest octaves, skipped when x1 is already there")
    soff(sT3, [(sW, 10), (sJ, 17)], X1_OFF)
    A("s_waitcnt vmcnt(0)")
    A("buffer_load_dwordx4 %s, v%d, %s, s%d offen sc1" % (vr(XR, 4), vL16, sr(sWS, 4), sT3))
    A("s_waitcnt vmcnt(0)")
    for x in maxtree(range(XR, XR + 4), vT): A(x)
    A("v_cmp_eq_u32 vcc, -1, v%d" % vT)
    A("s_cbranch_vccz Lexx")
    A("s_mov_b32 s%d, %d" % (sCNT, int(OPT.get("xlk", 2)) - 1))
    LB("Lexl")
    A("buffer_load_dwordx4 %s, v%d, %s, s%d offen sc1" % (vr(XR, 4), vL16, sr(sWS, 4), sT3))
    if "l" in OPT.get("xs", ""): A("s_branch Ltabdone")
    ext_load(W + 32)
    A("s_waitcnt vmcnt(4)")
    for x in maxtree(range(XR, XR + 4), vT): A(x)
    A("v_cmp_eq_u32 vcc, -1, v%d" % vT)
    A("s_cbranch_vccz Lexx")
    A("s_waitcnt vmcnt(0)")
    ext_write(W + 32)
    for x in maxtree(range(W + 32, W + 48), vT): A(x)
    A("v_cmp_eq_u32 vcc, -1, v%d" % vT)
    A("s_cbranch_vccz Lexc")
    A("s_sub_u32 s%d, s%d, 1" % (sCNT, sCNT))
    A("s_cbranch_scc0 Lexl")
    A("s_branch Ltabdone")
    LB("Lexc")
    A("v_mov_b32 v%d, 0" % vT)
    A("ds_write_b32 v%d, v%d offset:48" % (vFL, vT))
    A("s_branch Ltabdone")
    LB("Lexx")
    wqf_reads()
    A("s_branch Ltw")
else:
    A("s_branch Ltabdone")
LB("Ltw")
lds_spin(20, 3, vT + 2)
A("s_branch Ltwd")

for b in ool: L += b
ool = []
LB("Lslow")
C("rare: some h lies outside the table -> evaluate g(h) directly for those lanes")
RW1 = [W + 32 + i for i in range(14)]
RB1 = [PM + i for i in range(14)]
RW2 = [16 + i for i in range(10)] + [W + 46, W + 47, PM + 14, PM + 15]
A("v_lshlrev_b32 v26, 3, v%d" % vLANE)
A("s_load_dword s%d, %s, 0" % (sB2, sr(sB2P, 2)))
for (d4, d2, s) in [([W + 32, W + 36, W + 40], W + 44, sW1), ([PM, PM + 4, PM + 8], PM + 12, sB1)]:
    for k in range(3):
        A("buffer_load_dwordx4 %s, v%d, %s, 0 offen offset:%d" % (vr(d4[k], 4), vL16, sr(s, 4), 1024 * k))
    A("buffer_load_dwordx2 %s, v26, %s, 0 offen offset:3072" % (vr(d2, 2), sr(s, 4)))
A("buffer_load_dwordx4 v[16:19], v%d, %s, 0 offen" % (vL16, sr(sW2, 4)))
A("buffer_load_dwordx4 v[20:23], v%d, %s, 0 offen offset:1024" % (vL16, sr(sW2, 4)))
A("buffer_load_dwordx2 v[24:25], v%d, %s, 0 offen offset:2048" % (vL16, sr(sW2, 4)))
A("buffer_load_dwordx2 %s, v%d, %s, 0 offen offset:2056" % (vr(W + 46, 2), vL16, sr(sW2, 4)))
A("buffer_load_dwordx2 %s, v26, %s, 0 offen offset:3072" % (vr(PM + 14, 2), sr(sW2, 4)))
A("s_waitcnt vmcnt(0) lgkmcnt(0)")
A("s_lshl_b32 s%d, s%d, 16" % (sB2, sB2))
A("s_mov_b32 s%d, 1" % sT4)
for e in range(8):
    A("v_cmp_le_u32 vcc, %d, v%d" % (NENT * 4, AD + e))
    A("v_cmp_eq_u32 %s, -1, v%d" % (sr(sH2, 2), Y + e))
    A("s_or_b64 %s, %s, vcc" % (sr(sH2, 2), sr(sH2, 2)))
    if e & 1: A("v_and_b32 v%d, 0xffff0000, v%d" % (RT + 3, HB + (e >> 1)))
    else: A("v_lshlrev_b32 v%d, 16, v%d" % (RT + 3, HB + (e >> 1)))
    LB("Lse%d" % e)
    A("s_cmp_eq_u64 %s, 0" % sr(sH2, 2))
    A("s_cbranch_scc1 Lsf%d" % e)
    A("s_ff1_i32_b64 s%d, %s" % (sT0, sr(sH2, 2)))
    A("s_nop 0")
    A("v_readlane_b32 s%d, v%d, s%d" % (sH, RT + 3, sT0))
    A("s_cmp_eq_u32 s%d, s%d" % (sH, sT4))
    A("s_cbranch_scc1 Lsg%d" % e)
    A("s_mov_b32 s%d, s%d" % (sT4, sH))
    A("s_call_b64 %s, Lgev" % sr(sRET, 2))
    LB("Lsg%d" % e)
    A("s_nop 1")
    A("v_cmp_eq_u32 vcc, s%d, v%d" % (sH, RT + 3))
    A("v_mov_b32 v%d, s%d" % (RES + 3, sY))
    A("s_andn2_b64 %s, %s, vcc" % (sr(sH2, 2), sr(sH2, 2)))
    A("v_cndmask_b32 v%d, v%d, v%d, vcc" % (Y + e, Y + e, RES + 3))
    A("s_branch Lse%d" % e)
    LB("Lsf%d" % e)
for i in range(16): A("v_mov_b32 v%d, 0" % (PM + i))
A("s_mov_b64 vcc, 0")
A("s_mov_b64 %s, 0" % sr(sH, 2))
A("s_branch Lslowdone")
LB("Lgev")
a, u, t1, z = RES, RES + 1, RES + 2, RT
A("v_mov_b32 v%d, 0" % a)
A("v_mov_b32 v%d, %s" % (RT + 1, hx(f2u(K0))))
A("v_mov_b32 v%d, %s" % (RT + 2, hx(f2u(K1))))
for p in range(14):
    for hf in range(2):
        def un(d, s):
            if hf == 0: A("v_lshlrev_b32 v%d, 16, v%d" % (d, s))
            else: A("v_and_b32 v%d, 0xffff0000, v%d" % (d, s))
        un(u, RW1[p]); un(t1, RB1[p]); un(z, RW2[p])
        A("v_fma_f32 v%d, v%d, s%d, v%d" % (u, u, sH, t1))
        A("v_mul_f32 v%d, v%d, v%d" % (t1, u, u))
        A("v_fma_f32 v%d, v%d, v%d, v%d" % (t1, t1, RT + 2, RT + 1))
        A("v_mul_f32 v%d, v%d, v%d" % (t1, t1, u))
        A("v_exp_f32 v%d, v%d" % (t1, t1))
        A("v_mul_f32 v%d, v%d, v%d" % (z, z, u))
        A("v_add_f32 v%d, 1.0, v%d" % (t1, t1))
        A("v_rcp_f32 v%d, v%d" % (t1, t1))
        A("s_nop 0")
        A("v_fmac_f32 v%d, v%d, v%d" % (a, z, t1))
A("v_mov_b32 v%d, v%d" % (u, a))
A("s_nop 1")
wave_sum2(a, u, sY, sT1)
A("s_nop 1")
A("v_mov_b32 v%d, s%d" % (a, sY))
A("v_cvt_pk_bf16_f32 v%d, v%d, v%d" % (a, a, a))
A("v_and_b32 v%d, 0xffff0000, v%d" % (a, a))
A("v_add_f32 v%d, s%d, v%d" % (a, sB2, a))
A("v_cvt_pk_bf16_f32 v%d, v%d, v%d" % (a, a, a))
A("v_and_b32 v%d, 0xffff0000, v%d" % (a, a))
A("s_nop 0")
A("v_readfirstlane_b32 s%d, v%d" % (sY, a))
A("s_nop 3")
A("s_setpc_b64 %s" % sr(sRET, 2))

for b in ool: L += b
A("s_endpgm")
L.append(".p2align 8")
L.append(".fill %d, 4, 0xBF800000" % (64 if DIAG else 512))
L.append('''.section .rodata,"a"
.p2align 6
.amdhsa_kernel %s_kernel
  .amdhsa_next_free_vgpr 256
  .amdhsa_next_free_sgpr 102
  .amdhsa_accum_offset 256
  .amdhsa_group_segment_fixed_size 0
  .amdhsa_kernarg_size 104
  .amdhsa_user_sgpr_count 2
  .amdhsa_user_sgpr_kernarg_segment_ptr 1
  .amdhsa_system_sgpr_workgroup_id_x 1
.end_amdhsa_kernel''' % NAME)
open(OUTF, "w").write("\n".join(x for x in L if x is not None) + "\n")
print("wrote", OUTF, "lines", len(L), "LDS", LDS_SZ)
```

```python
import sys, struct, math

NAME = "interleave_layers__sliding_block_cached__mixer_token_mlp__decode"
OUTF = sys.argv[1] if len(sys.argv) > 1 else "cdna_kernels/%s.s" % NAME
DIAG = int(sys.argv[2]) if len(sys.argv) > 2 else 0
DBL = 0
if DIAG == 3: DIAG = 0; DBL = 1
MEAS = 0
if DIAG == 5: DIAG = 0; MEAS = 1
TOT = 0
if DIAG == 4: DIAG = 0; TOT = 1
OPT = dict(a.split("=") for a in sys.argv[3:])
DEPTH = int(OPT.get("depth", 8))
D0 = int(OPT.get("d0", 2))
D1 = int(OPT.get("d1", 4))
DC = int(OPT.get("dc", 3))
TAILI = int(OPT.get("taili", 11))
TAILD = int(OPT.get("taild", 8))
QV = int(OPT.get("qv", 3))
PRET = int(OPT.get("pret", 1))
GW = int(OPT.get("gw", 1))
GPRE = int(OPT.get("gpre", 0))
GGAP = int(OPT.get("ggap", -1))
WARM = int(OPT.get("warm", 1))
QPRE = int(OPT.get("qpre", -1)); QGAP = int(OPT.get("qgap", -1))
OPRE = int(OPT.get("opre", -1)); OGAP = int(OPT.get("ogap", -1))
XPRE = int(OPT.get("xpre", -1)); XGAP = int(OPT.get("xgap", -1))
FINE = OPT.get("fine", "")
QS = int(OPT.get("qs", 0))
ADP = int(OPT.get("adp", 0))
ROT = int(OPT.get("rot", 1)); VROT = int(OPT.get("vrot", 0))
WROT = int(OPT.get("wrot", 1))
WOP = int(OPT.get("wop", 0))
ECO = int(OPT.get("eco", 0))
XDL = int(OPT.get("xdl", 256))
QBD = int(OPT.get("qbd", 0))
VLATE = int(OPT.get("vlate", 1))
QV2 = int(OPT.get("qv2", 0))
PROG = int(OPT.get("prog", 1))
SLC = int(OPT.get("slc", 0)); D2 = int(OPT.get("d2", 8))
HFIRST = int(OPT.get("hfirst", 0))
EFL = int(OPT.get("efl", 1))
QT = int(OPT.get("qt", 0))
DRY = int(OPT.get("dry", 0))
HP = int(OPT.get("hp", 0))
NOCT = int(OPT.get("noct", 16))
QPOS = int(OPT.get("qpos", 1))
QPOS2 = int(OPT.get("qpos2", 7))

def f2u(x): return struct.unpack("<I", struct.pack("<f", x))[0]
def hx(x): return "0x%08x" % (x & 0xffffffff)

L = []
def A(s): L.append("    " + s)
def LB(s): L.append(s + ":")
def C(s): L.append("    ; " + s)
def vr(a, n): return "v[%d:%d]" % (a, a + n - 1)
def sr(a, n): return "s[%d:%d]" % (a, a + n - 1)
def NOP(n):
    while n > 0:
        k = min(n, 16); A("s_nop %d" % (k - 1)); n -= k

XOCT = int(OPT.get('xoct', 4))
ELO = int(OPT.get('elo', 130 - NOCT - XOCT))
LO2 = (ELO << 7) * 2
NENT = (NOCT + XOCT) * 256
XENT = XOCT * 256
assert XENT in (0, 1024)
EPW = NOCT * 256 // 256 // 4 // 2
GRS = 0x20000
O_OFF = [0x0000, 0xC400]; LSE_OFF = [0x8000, 0x14400]; Q1_OFF = 0x8400; X1_OFF = 0x14600
CLRA_PER = 1040
CLRB_OFF = 0x8400; CLRB_PER = 1680
Q0_OFF = 0x18000
EPO = 0x17f00
PB = 0x100000; P_L = 0x20000
TB = 0x140000; FB = 0x148000
QB_DELTA = 0x200000
STB = 0x300000
WS_SZ = 0x400000 if "dump" not in OPT else 0x2000000
L_WQ = 12288; L_K = L_WQ + 16384; L_V = L_K + 32768
L_WO = L_K + 16384
L_TAB = L_V
L_XN = L_V + 32768; XS = 1056
L_X2 = L_XN + 4 * XS
L_FLG = L_X2 + 4 * XS
L_RB = L_K; RBS = 2048 + 64; L_ML = L_K + 4 * RBS
L_QF = L_X2
LDS_SZ = int(OPT.get("lds", L_FLG + 64))
SPIN = 0x40000
K0 = -2.0 * math.sqrt(2.0 / math.pi) * math.log2(math.e)
K1 = K0 * 0.044715
EPS = hx(f2u(1e-5))

sTG1, sTG2 = 0, 1
sW, sJ, sA, sC, sGR, sLAY, sFAST = 3, 4, 5, 6, 7, 8, 9
sT0, sT1, sT2, sT3, sT4, sT5 = 10, 11, 12, 13, 14, 15
sCNT = 16
sQL, sQS, sOL, sOS, sLL, sLS, sPS = 17, 18, 19, 20, 21, 22, 23
sSC, sIT = 24, 25
sSUM, sSQ = 26, 27
sH, sH2, sRET, sMSK = 28, 30, 32, 34
sB2, sY, sXCC, sE = 36, 37, 38, 39
sB2P = 40
sK, sV, sWQ, sWO, sWS, sX, sOUT, sW1, sB1, sW2 = 44, 48, 52, 56, 60, 64, 68, 72, 76, 80
sKO, sKL, sVO, sVL = 84, 85, 86, 87
sPM = 88
sHC, sHT = 84, 85

def STAMP(i):
    if DIAG:
        A("s_memrealtime s[42:43]"); A("s_waitcnt lgkmcnt(0)")
        A("v_writelane_b32 v30, s42, %d" % i)

def MP(name):
    if MEAS and OPT["q"] == name:
        A("s_memrealtime s[42:43]"); A("s_waitcnt lgkmcnt(0)"); A("s_mov_b32 s97, s42")

def CST(i):
    if DIAG == 1 and FINE:
        A("s_memtime s[42:43]"); A("s_waitcnt lgkmcnt(0)")
        A("v_writelane_b32 v31, s42, %d" % i)

vLANE = 1
vL16, vQST, vOST, vOLD, vPST, vX1S, vXNW, vXNR, vRBW, vRBR, vMLW, vMLR, vLSE, vZ = range(2, 16)
vT = 16
vWT, vFL = 28, 29
vLS2 = 27
KF, VF, WQF, WOF, SEL, ONES = 32, 64, 96, 112, 176, 180
W = 184
PM = 232
XR = 248
RES = 252

def srd(s, nbytes):
    A("s_mov_b32 s%d, %s" % (s + 2, hx(nbytes))); A("s_mov_b32 s%d, 0x00020000" % (s + 3))

def soff(dst, terms, const):
    first = True
    for (src, sh) in terms:
        if first: A("s_lshl_b32 s%d, s%d, %d" % (dst, src, sh)); first = False
        else:
            A("s_lshl_b32 s%d, s%d, %d" % (sT0, src, sh)); A("s_add_u32 s%d, s%d, s%d" % (dst, dst, sT0))
    if const: A("s_add_u32 s%d, s%d, %s" % (dst, dst, hx(const)))

def wave_sum2(a, b, sa, sb):
    for ctl in ["row_ror:8", "row_ror:4", "row_ror:2", "row_ror:1"]:
        A("v_add_f32_dpp v%d, v%d, v%d %s row_mask:0xf bank_mask:0xf" % (a, a, a, ctl))
        A("v_add_f32_dpp v%d, v%d, v%d %s row_mask:0xf bank_mask:0xf" % (b, b, b, ctl))
        A("s_nop 0")
    for ctl in ["row_bcast:15 row_mask:0xa", "row_bcast:31 row_mask:0xc"]:
        A("v_add_f32_dpp v%d, v%d, v%d %s bank_mask:0xf" % (a, a, a, ctl))
        A("v_add_f32_dpp v%d, v%d, v%d %s bank_mask:0xf" % (b, b, b, ctl))
        A("s_nop 0")
    A("v_readlane_b32 s%d, v%d, 63" % (sa, a))
    A("v_readlane_b32 s%d, v%d, 63" % (sb, b))

def row_stats(x, t, unp):
    A("v_dot2_f32_bf16 v%d, v%d, v%d, 0" % (t, x, ONES))
    A("v_dot2_f32_bf16 v%d, v%d, v%d, 0" % (t + 1, x, x))
    for i in range(1, 4):
        A("v_dot2_f32_bf16 v%d, v%d, v%d, v%d" % (t, x + i, ONES, t))
        A("v_dot2_f32_bf16 v%d, v%d, v%d, v%d" % (t + 1, x + i, x + i, t + 1))
    un = []
    for i in range(4):
        un.append("v_lshlrev_b32 v%d, 16, v%d" % (unp + 2 * i, x + i))
        un.append("v_and_b32 v%d, 0xffff0000, v%d" % (unp + 2 * i + 1, x + i))
    for k in range(3): A(un.pop(0))
    a, b = t, t + 1
    for ctl in ["row_ror:8 row_mask:0xf", "row_ror:4 row_mask:0xf", "row_ror:2 row_mask:0xf", "row_ror:1 row_mask:0xf", "row_bcast:15 row_mask:0xa", "row_bcast:31 row_mask:0xc"]:
        A("v_add_f32_dpp v%d, v%d, v%d %s bank_mask:0xf" % (a, a, a, ctl))
        A("v_add_f32_dpp v%d, v%d, v%d %s bank_mask:0xf" % (b, b, b, ctl))
        A(un.pop(0) if un else "s_nop 0")
    A("v_readlane_b32 s%d, v%d, 63" % (sSUM, a))
    A("v_readlane_b32 s%d, v%d, 63" % (sSQ, b))
    A("s_nop 0")
    A("v_mul_f32 v%d, s%d, v%d" % (t, sSUM, vZ))
    A("v_mul_f32 v%d, s%d, v%d" % (t + 1, sSQ, vZ))
    A("v_fma_f32 v%d, -v%d, v%d, v%d" % (t + 1, t, t, t + 1))
    A("v_max_f32 v%d, 0, v%d" % (t + 1, t + 1))

ool = []
uid = [0]
def maxtree(regs, tmp):
    r = list(regs); out = []
    out.append("v_max3_u32 v%d, v%d, v%d, v%d" % (tmp, r[0], r[1], r[2])); r = r[3:]
    if len(r) >= 5:
        out.append("v_max3_u32 v%d, v%d, v%d, v%d" % (tmp + 1, r[0], r[1], r[2])); r = r[3:]
        d = 0
        while len(r) >= 2:
            out.append("v_max3_u32 v%d, v%d, v%d, v%d" % (tmp + d, tmp + d, r[0], r[1])); r = r[2:]; d ^= 1
        if r: out.append("v_max3_u32 v%d, v%d, v%d, v%d" % (tmp, tmp, tmp + 1, r[0]))
        else: out.append("v_max_u32 v%d, v%d, v%d" % (tmp, tmp, tmp + 1))
    else:
        while len(r) >= 2:
            out.append("v_max3_u32 v%d, v%d, v%d, v%d" % (tmp, tmp, r[0], r[1])); r = r[2:]
        if r: out.append("v_max_u32 v%d, v%d, v%d" % (tmp, tmp, r[0]))
    return out

def poll(issue, regs, tmp, pre_wait=None, spec=None, back="s_nop 7", tag=None, stub=None):
    uid[0] += 1; u = uid[0]
    A("s_mov_b32 s%d, %s" % (sCNT, hx(SPIN)))
    LB("Lp%d" % u)
    issue()
    if pre_wait: pre_wait()
    A("s_waitcnt vmcnt(0)")
    mt = maxtree(regs, tmp) + ["v_cmp_eq_u32 vcc, -1, v%d" % tmp]
    spec = list(spec or [])
    ns = len(spec)
    per = -(-len(mt) // ns) if ns else 0
    for s in spec:
        A(s)
        for k in range(per):
            if mt: A(mt.pop(0))
    for m in mt: A(m)
    A("s_cbranch_vccz Ld%d" % u)
    A("s_sub_u32 s%d, s%d, 1" % (sCNT, sCNT))
    if back != "s_nop 7": A(back)
    A("s_cbranch_scc0 Lp%d" % u)
    if stub: touch_stub(stub)
    LB("Ld%d" % u)
    if DIAG and tag is not None:
        A("s_lshl_b32 m0, s%d, 2" % sLAY); A("s_add_u32 m0, m0, %d" % tag); A("s_nop 0")
        A("v_writelane_b32 v31, s%d, m0" % sCNT)

stubs = []
def touch_stub(name, branch_over=None):
    A("s_branch Lsk_%s" % name)
    L.append(".p2align 6")
    LB("Lst_%s" % name)
    A("s_setpc_b64 %s" % sr(sRET, 2))
    LB("Lsk_%s" % name)
    stubs.append(name)

def delay(cyc):
    if cyc == -1:
        A("s_waitcnt vmcnt(0)"); return
    while cyc >= 64:
        k = min(cyc // 64, 15); A("s_sleep %d" % k); cyc -= 64 * k
    if cyc >= 8: A("s_nop %d" % min(15, cyc // 4 - 1))

def ppoll(issue, regs, n, tmp, spec, pre=0, gap=128, mid=None, tag=None, fix=None, stub=None, lanes=None, per_load=None):
    uid[0] += 1; u = uid[0]
    def look(k):
        if per_load and PROG and gap < 0:
            r = list(regs(k)); out = []
            for i in range(n):
                out.append("s_waitcnt vmcnt(%d)" % (n - 1 - i))
                sp = list(per_load(k, i))
                ck = ["v_max3_u32 v%d, v%d, v%d, v%d" % (tmp + 1, r[4 * i], r[4 * i + 1], r[4 * i + 2]),
                      ("v_max_u32 v%d, v%d, v%d" % (tmp, tmp + 1, r[4 * i + 3])) if i == 0 else ("v_max3_u32 v%d, v%d, v%d, v%d" % (tmp, tmp, tmp + 1, r[4 * i + 3]))]
                while sp or ck:
                    if sp: out.append(sp.pop(0))
                    if ck: out.append(ck.pop(0))
            return out + ["v_cmp_eq_u32 vcc, -1, v%d" % tmp]
        out = ["s_waitcnt vmcnt(%d)" % (n if k == 0 else 0)]
        mt = maxtree(regs(k), tmp) + ["v_cmp_eq_u32 vcc, -1, v%d" % tmp]
        sp = list(spec(k)); per = -(-len(mt) // len(sp)) if sp else 0
        for x in sp:
            out.append(x)
            for _ in range(per):
                if mt: out.append(mt.pop(0))
        return out + mt + (["s_and_b64 vcc, vcc, %s" % sr(lanes, 2)] if lanes else [])
    A("s_mov_b32 s%d, %s" % (sCNT, hx(SPIN)))
    delay(pre)
    fine = FINE and tag == int(FINE)
    if fine: CST(8)
    LB("Lp%d" % u)
    issue(0)
    if fine and 0: CST(9)
    if mid: mid()
    if gap >= 0: delay(gap)
    if gap >= 0: issue(1)
    lk = look(0)
    if gap < 0 and not (per_load and PROG): lk[0] = "s_waitcnt vmcnt(0)"
    for k, x in enumerate(lk):
        A(x)
        if fine and k == 0: CST(13)
    if fine: CST(14)
    A("s_cbranch_vccz Ld%d" % u)
    if gap < 0: issue(1)
    A("s_sub_u32 s%d, s%d, 1" % (sCNT, sCNT))
    for x in look(1): A(x)
    for x in (fix or []): A(x)
    A("s_cbranch_vccz Ld%d" % u)
    A("s_sub_u32 s%d, s%d, 1" % (sCNT, sCNT))
    A("s_cmp_gt_i32 s%d, 0" % sCNT)
    A("s_cbranch_scc1 Lp%d" % u)
    if stub: touch_stub(stub)
    LB("Ld%d" % u)
    if fine: CST(15)
    if DIAG and tag is not None:
        A("s_lshl_b32 m0, s%d, 2" % sLAY); A("s_add_u32 m0, m0, %d" % tag); A("s_nop 0")
        A("v_writelane_b32 v31, s%d, m0" % sCNT)

def lds_spin(off, target, tmp, mask=None, sleep=0):
    uid[0] += 1; u = uid[0]
    A("s_mov_b32 s%d, %s" % (sT2, hx(SPIN * 4)))
    LB("Ls%d" % u)
    A("ds_read_b32 v%d, v%d offset:%d" % (tmp, vFL, off))
    A("s_waitcnt lgkmcnt(0)")
    A("v_readfirstlane_b32 s%d, v%d" % (sT1, tmp))
    if mask: A("s_and_b32 s%d, s%d, %d" % (sT0, sT1, mask))
    A("s_cmp_ge_u32 s%d, %d" % (sT0 if mask else sT1, target))
    A("s_cbranch_scc1 Lt%d" % u)
    if sleep: A("s_sleep %d" % sleep)
    A("s_sub_u32 s%d, s%d, 1" % (sT2, sT2))
    A("s_cbranch_scc0 Ls%d" % u)
    LB("Lt%d" % u)

def lds_arrive(off, tmp, val=1):
    if val is not None: A("v_mov_b32 v%d, %d" % (tmp, val))
    A("s_mov_b64 exec, 1")
    A("ds_add_u32 v%d, v%d offset:%d" % (vFL, tmp, off))
    A("s_mov_b64 exec, -1")

def store_local(op, data, vaddr, so):
    uid[0] += 1; u = uid[0]
    A("s_cbranch_scc1 Lw%d" % u)
    A("%s %s, v%d, %s, s%d offen" % (op, data, vaddr, sr(sWS, 4), so))
    LB("Lx%d" % u)
    ool.append(["Lw%d:" % u, "    %s %s, v%d, %s, s%d offen sc1" % (op, data, vaddr, sr(sWS, 4), so), "    s_branch Lx%d" % u])
def fastcmp(): A("s_cmp_eq_u32 s%d, 0" % sFAST)

def mf(d, a, b, c):
    return "v_mfma_f32_16x16x32_bf16 %s, %s, %s, %s" % (vr(d, 4), vr(a, 4), vr(b, 4), "0" if c is None else vr(c, 4))
def mfma(d, a, b, c): A(mf(d, a, b, c))

def tags():
    A("s_add_u32 s%d, s%d, 1" % (sTG1, sE))
    A("s_mul_i32 s%d, s%d, 0x9E3779B1" % (sTG2, sTG1))
    A("s_and_b32 s%d, s%d, -8" % (sTG2, sTG2))

def common_addr():
    A("v_and_b32 v18, 3, v%d" % vLANE)
    A("v_lshlrev_b32 v%d, 12, v17" % vQST)
    A("v_lshrrev_b32 v24, 1, v16")
    A("v_lshl_add_u32 v%d, v24, 8, v%d" % (vQST, vQST))
    A("v_and_b32 v24, 1, v16")
    A("v_lshl_add_u32 v%d, v24, 3, v%d" % (vQST, vQST))
    A("v_lshlrev_b32 v%d, 4, v24" % vLSE)
    A("s_mul_i32 s%d, s%d, %d" % (sT0, sW, XS))
    A("s_add_u32 s%d, s%d, %d" % (sT0, sT0, L_XN))
    A("v_add_u32 v%d, s%d, v%d" % (vXNW, sT0, vL16))
    A("s_lshl_b32 s%d, s%d, 8" % (sT0, sA))
    A("s_add_u32 s%d, s%d, %d" % (sT0, sT0, L_XN))
    A("v_mul_u32_u24 v25, %d, v18" % XS)
    A("v_lshl_add_u32 v25, v16, 4, v25")
    A("v_add_u32 v%d, s%d, v25" % (vXNR, sT0))
    A("v_mov_b32 v%d, %s" % (vZ, hx(f2u(1.0 / 512))))
    for r in range(4): A("v_mov_b32 v%d, 0x3f803f80" % (ONES + r))
    A("s_and_b32 s%d, s%d, 1" % (sT1, sC))
    A("s_lshr_b32 s%d, s%d, 1" % (sT2, sC))
    soff(sQS, [(sT1, 11), (sW, 9), (sA, 6), (sT2, 4)], 0)
    A("v_bfe_u32 v24, v%d, 2, 2" % vLANE)
    A("v_lshl_add_u32 v24, v16, 3, v24")
    A("v_lshlrev_b32 v24, 7, v24")
    A("v_bfe_u32 v25, v%d, 3, 2" % vLANE)
    A("v_lshlrev_b32 v25, 1, v25")
    A("v_bfe_u32 v26, v%d, 1, 1" % vLANE)
    A("v_xor_b32 v25, v25, v26")
    A("v_lshl_add_u32 v24, v25, 4, v24")
    A("v_and_b32 v26, 1, v%d" % vLANE)
    A("v_lshl_add_u32 v%d, v26, 3, v24" % vWT)
    A("s_mov_b32 s%d, 0x000f000f" % sMSK)
    A("s_mov_b32 s%d, 0x000f000f" % (sMSK + 1))
    A("s_mov_b32 s%d, 0" % sLAY)

def wtile_voff(shift, d):
    A("v_lshrrev_b32 v24, 3, v%d" % vLANE)
    A("v_and_b32 v25, 7, v%d" % vLANE)
    A("v_and_b32 v26, 1, v16")
    A("v_lshlrev_b32 v26, 1, v26")
    A("v_xor_b32 v25, v25, v26")
    A("v_lshlrev_b32 v25, 4, v25")
    A("v_lshl_add_u32 v%d, v24, %d, v25" % (d, shift))
    A("v_xor_b32 v%d, 64, v%d" % (d + 1, d))

def wqf_reads():
    A("s_lshl_b32 s%d, s%d, 5" % (sT1, sW))
    A("v_xor_b32 v26, s%d, v%d" % (sT1, vWT))
    for t in range(4):
        for hf in range(2):
            A("ds_read_b64_tr_b16 %s, v26 offset:%d" % (vr(WQF + 4 * t + 2 * hf, 2), L_WQ + 4096 * t + 512 * hf))

def dma(vaddr, srdn, so, lds_s, step_so, flags="nt"):
    A("s_mov_b32 m0, s%d" % lds_s)
    A("s_add_u32 s%d, s%d, 1024" % (lds_s, lds_s))
    A("buffer_load_dwordx4 v%d, %s, s%d offen %s lds" % (vaddr, sr(srdn, 4), so, flags))
    A("s_add_u32 s%d, s%d, %d" % (so, so, step_so))

hdr = open("cdna_kernels/%s.s.ref" % NAME).read().split("; Override launch")[0]
L.append(hdr.rstrip("\n") + """
;
; One persistent launch, 256 workgroups (one per CU) x 8 waves.  wg = A(2b):C(3b):j(3b); j = kv head.
; K, V, wq and wo are read from HBM exactly once (LDS-DMA) and stay in registers for both attention layers.
;   roles of a workgroup:  attention (batch A, keys 128C..), q projection (wq rows 128A.., 64 columns C),
;                          output projection (head A of group j, 64 columns C), row reduction (batch A, columns 64C..)
;   waves 0-3: stream K/V, attention, output projection, LayerNorm + mixer + next q projection
;   waves 4-7: first q projection, then the token-mixer MLP g(h) = sum_f gelu(h w1 + b1) w2 + b2 evaluated
;              exactly (all 1792 hidden units) for every bf16 value h with 2^-17 <= |h| < 8; h is a bf16 tensor in the
;              reference, so the mixer is a lookup of these values; any other h is evaluated directly (Lslow).
; Hand-offs between workgroups go through d_ws.  Slots are filled with a sentinel at the start of the launch and a
; consumer polls until no sentinel is left; the first hand-off (q) and the "sentinels are in place" announcements
; carry a tag derived from a word that every launch advances.  Stores inside a kv-head group are plain when the
; whole group reports the same XCC id, write-through otherwise; every poll is bounded.
""".rstrip("\n"))
L.append("; @launch grid=(256,1,1) block=(512,1,1) lds=%d" % LDS_SZ)
L.append('.amdgcn_target "amdgcn-amd-amdhsa--gfx950"')
L.append(".text\n" + (".p2align 12\n" if int(OPT.get("al", 0)) else "") + ".globl %s_kernel\n.p2align 8\n.type %s_kernel,@function\n%s_kernel:" % (NAME, NAME, NAME))
if DIAG: A("s_memrealtime s[42:43]")
if DBL or TOT or MEAS: A("s_memrealtime s[98:99]")
sM = 96
A("s_lshr_b32 s%d, s2, 8" % sT0)
A("s_cbranch_scc1 Lend")
A("s_load_dwordx2 %s, s[0:1], 24" % sr(sWQ, 2))
A("s_load_dwordx4 %s, s[0:1], 0" % sr(sT2, 4))
A("v_readfirstlane_b32 s%d, v0" % sW)
C("every wave pulls one line of this kernel's code into L2 (plain read): 32 workgroups x 4 lines")
A("s_getpc_b64 s[10:11]")
LB("Lpc0")
A("s_lshr_b32 s%d, s2, 3" % sM)
A("s_lshl_b32 s%d, s%d, 9" % (sCNT, sM))
A("s_cmp_lg_u32 s%d, 0" % sW)
A("s_cbranch_scc1 Lnopf")
A("v_and_b32 v19, 3, v0")
A("v_lshl_add_u32 v19, v19, 7, s%d" % sCNT)
A("global_load_dword v%d, v19, s[10:11]" % (W + 8))
LB("Lnopf")
A("s_and_b32 s%d, s2, 7" % sJ)
A("s_lshr_b32 s%d, s2, 6" % sA)
A("s_and_b32 s%d, s%d, 7" % (sC, sM))
A("s_lshl_b32 s%d, 1, 17" % (sWQ + 3))
A("s_bitcmp1_b32 s%d, 8" % sW)
A("s_cbranch_scc1 Lhelp0")
vKA, vVA = W + 40, W + 44
sRO, sRM = sVO, 97 if not TOT else 94
if TOT: sRM = sOL
def kv_issue(i):
    A("s_add_u32 m0, s%d, s%d" % (sKL if i < 8 else sVL, sRO))
    A("s_add_u32 s%d, s%d, s%d" % (sCNT, sKO, sRO))
    if i < 8: A("buffer_load_dwordx4 v%d, %s, s%d offen nt lds" % (vKA + (i & 3), sr(sK, 4), sCNT))
    else: A("buffer_load_dwordx4 v%d, %s, s%d offen nt lds" % (vVA + (i & 1), sr(sV, 4), sCNT))
    A("s_addk_i32 s%d, %d" % (sRO, 1024 + (VROT * 1024 if i == 7 else 0)))
    A("s_and_b32 s%d, s%d, 0x1fff" % (sRO, sRO))
def lane_init():
    A("v_and_b32 v%d, 63, v0" % vLANE)
    A("v_mov_b32 v%d, %d" % (vFL, L_FLG))
    A("v_lshlrev_b32 v%d, 4, v%d" % (vL16, vLANE))
    A("v_lshrrev_b32 v16, 4, v%d" % vLANE)
    A("v_and_b32 v17, 15, v%d" % vLANE)
    A("v_mov_b32 v20, 0")
    if DIAG: A("v_mov_b32 v30, 0")
C("wq tile DMA: instruction i, thread t: row 32 i + (t>>3), 16-byte chunk (t&7) ^ swizzle")
A("v_lshrrev_b32 v23, 3, v0")
A("v_and_b32 v22, 7, v0")
A("v_and_b32 v24, 2, v23")
A("v_lshrrev_b32 v25, 1, v23")
A("v_and_or_b32 v24, v25, 4, v24")
A("v_xor_b32 v22, v22, v24")
A("v_lshlrev_b32 v22, 4, v22")
A("v_lshl_add_u32 v22, v23, 13, v22")
soff(sQL, [(sA, 20), (sJ, 10), (sC, 7)], 0)
A("s_lshl_b32 s%d, 1, 22" % (sWQ + 2))
A("s_lshl_b32 s%d, 1, 18" % sT1)
A("s_lshl_b32 s%d, s%d, 4" % (sQS, sW))
A("s_add_u32 m0, s%d, %d" % (sQS, L_WQ))
A("v_lshlrev_b32 v21, 4, v0")
A("s_waitcnt lgkmcnt(0)")
A("global_load_dwordx4 %s, v21, %s" % (vr(XR, 4), sr(sT2, 2)))
for i in range(4):
    if i:
        A("s_addk_i32 m0, 0x1000")
        A("s_add_u32 s%d, s%d, s%d" % (sQL, sQL, sT1))
    A("buffer_load_dwordx4 v22, %s, s%d offen nt lds" % (sr(sWQ, 4), sQL))
def main_early2():
    lane_init()
    A("s_lshl_b32 s%d, 1, 25" % (sK + 2)); A("s_mov_b32 s%d, s%d" % (sK + 3, sWQ + 3))
    A("s_mov_b64 %s, %s" % (sr(sK, 2), sr(sT4, 2)))
    A("v_xor_b32 v18, v17, v16")
    A("v_lshlrev_b32 v18, 4, v18")
    A("v_lshl_add_u32 v%d, v16, 8, v18" % vKA)
    A("s_lshl_b32 s%d, s%d, 10" % (sRO, sC))
    A("s_bfe_u32 s%d, s%d, 0x2000a" % (sT1, sRO))
    A("s_lshl_b32 s%d, s%d, 6" % (sT1, sT1))
    for k in range(1, 4):
        A("s_add_u32 s%d, s%d, %d" % (sCNT, sT1, 64 * k))
        A("s_and_b32 s%d, s%d, 0xc0" % (sCNT, sCNT))
        A("v_xor_b32 v%d, s%d, v%d" % (vKA + k, sCNT, vKA))
    A("v_xor_b32 v%d, s%d, v%d" % (vKA, sT1, vKA))
    soff(sKO, [(sA, 23), (sJ, 20), (sC, 15), (sW, 7)], 3072 * 256)
    A("s_add_u32 s%d, s%d, %d" % (sKL, sT0, L_K))
    for i in range(D0): kv_issue(i)
    A("s_add_u32 s%d, s%d, %d" % (sVL, sT0, L_V))
    A("s_lshr_b32 s%d, s%d, 6" % (sW, sW))
    if DIAG: A("v_writelane_b32 v30, s42, 0")
    STAMP(10)
    A("s_branch Lmain")

if HFIRST: A("s_branch Lmain1")
else: main_early2()
LB("Lhelp0")
C("---- helper waves: the table of g over bf16 inputs ----")
HW1, HB1, HW2 = 32, 60, 112
hK0, hK1, hONE, hRES = 88, 90, 92, 94
AC = [140, 142]
for s, off in [(sW1, 48), (sB1, 56), (sW2, 64), (sWS, 96), (sB2P, 72)]:
    A("s_load_dwordx2 %s, s[0:1], %d" % (sr(s, 2), off))
lane_init()
A("v_mov_b32 v21, 0")
for k in range(4): A("ds_write_b64 v%d, v[20:21] offset:%d" % (vFL, 8 * k))
A("ds_write_b32 v%d, v20 offset:44" % vFL)
A("s_bfe_u32 s%d, s%d, 0x20006" % (sW, sW))
srd(sWS, WS_SZ)
for s in [sW1, sB1, sW2]: srd(s, 3584)
for i in range(4): A("v_mov_b32 v%d, -1" % (PM + i))
A("s_waitcnt lgkmcnt(0)")
A("s_lshl_b32 s%d, s%d, 10" % (sT3, sW))
A("s_mul_i32 s%d, s%d, %d" % (sT5, sM, CLRA_PER))
A("s_lshl_b32 s%d, s%d, 17" % (sGR, sJ))
A("s_add_u32 s%d, s%d, s%d" % (sT5, sT5, sGR))
A("s_add_u32 s%d, s%d, 1024" % (sT4, sT5))
A("s_lshl_b32 s%d, s%d, 7" % (sT1, sM))
A("v_mov_b32 v19, s%d" % sT1)
def h_coef():
    A("s_mov_b32 m0, s%d" % sT3)
    for i, sd in enumerate([sW1, sB1, sW2]):
        if i: A("s_addk_i32 m0, 0x1000")
        A("s_nop 0")
        A("buffer_load_dwordx4 v%d, %s, s%d offen lds" % (vL16, sr(sd, 4), sT3))
C("hw0, hw1: early sentinels (O0, LSE0) ; hw3: a slice of each coefficient array into L2")
A("s_cmp_ge_u32 s%d, 2" % sW)
A("s_cbranch_scc1 Lhc_pf")
A("s_cmp_eq_u32 s%d, 0" % sW)
A("s_cselect_b32 s%d, s%d, s%d" % (sT5, sT5, sT4))
A("s_cselect_b64 exec, -1, 1")
A("buffer_store_dwordx4 %s, v%d, %s, s%d offen sc1" % (vr(PM, 4), vL16, sr(sWS, 4), sT5))
A("s_branch Lhc_skip")
LB("Lhc_pf")
if SLC:
    A("s_cmp_eq_u32 s%d, 2" % sW)
    A("s_cbranch_scc1 Lhc_skip")
    A("s_mov_b64 exec, 1")
    for k, sd in enumerate([sW1, sB1, sW2]): A("buffer_load_dword v%d, v19, %s, 0 offen" % (W + k, sr(sd, 4)))
LB("Lhc_skip")
A("s_mov_b64 exec, -1")
if not SLC: h_coef()
A("s_load_dword s%d, %s, 0" % (sB2, sr(sB2P, 2)))
if MEAS:
    A("s_load_dwordx2 s[42:43], s[0:1], 88"); A("s_waitcnt lgkmcnt(0)"); A("v_mov_b32 v30, s42"); A("v_mov_b32 v31, s43")
if DIAG: A("v_writelane_b32 v30, s42, 0")
STAMP(9)
A("s_barrier")
if HFIRST:
    A("s_branch Lhelp1")
    LB("Lmain1")
    main_early2()
    LB("Lhelp1")
A("s_lshl_b32 s%d, s2, 2" % sHC)
A("s_add_u32 s%d, s%d, s%d" % (sHC, sHC, sW))
sHX = 86
if XENT:
    C("extra entry e = wave index: |h| code ELO*128 + (e>>1), sign e&1")
    A("s_lshr_b32 s%d, s%d, 1" % (sHX, sHC))
    A("s_add_u32 s%d, s%d, %d" % (sHX, sHX, ELO * 128))
    A("s_lshl_b32 s%d, s%d, 16" % (sHX, sHX))
    A("s_lshl_b32 s%d, s%d, 31" % (sT0, sHC))
    A("s_or_b32 s%d, s%d, s%d" % (sHX, sHX, sT0))
A("s_mul_i32 s%d, s%d, %d" % (sHC, sHC, EPW))
A("s_lshl_b32 s%d, s%d, 3" % (sHT, sHC))
A("s_add_u32 s%d, s%d, %d" % (sHT, sHT, XENT * 4))
A("s_add_u32 s%d, s%d, %d" % (sHC, sHC, ELO * 128 + XENT // 2))
A("s_lshl_b32 s%d, s%d, 16" % (sHC, sHC))
A("v_lshlrev_b32 v27, 2, v%d" % vLANE)
A("v_add_u32 v27, s%d, v27" % sHT)
A("s_mov_b32 s%d, %s" % (sHT, hx(TB)))
for r, c in [(hK0, K0), (hK1, K1), (hONE, 1.0)]:
    A("v_mov_b32 v%d, %s" % (r, hx(f2u(c)))); A("v_mov_b32 v%d, %s" % (r + 1, hx(f2u(c))))
A("v_mov_b32 v%d, 0" % hRES)
A("s_mov_b32 s%d, 0" % sIT)
if WARM:
    C("warm the instruction cache lines at the far jump targets of the main waves")
    for k, nm in enumerate(["k", "fin", "out", "tab"]):
        A("s_cmp_lg_u32 s%d, %d" % (sW, k))
        A("s_cbranch_scc1 Lwm%d" % k)
        A("s_call_b64 %s, Lst_%s" % (sr(sRET, 2), nm))
        if nm == "out": A("s_call_b64 %s, Lst_mq" % sr(sRET, 2))
        LB("Lwm%d" % k)
HR = W + 8
A("v_lshlrev_b32 v26, 3, v%d" % vLANE)
if SLC:
    C("slices are in L2 once hw3's own have returned")
    A("s_waitcnt vmcnt(0)")
    lds_arrive(0, 24)
    A("s_cmp_lg_u32 s%d, 3" % sW)
    A("s_cbranch_scc1 Lhs1")
    lds_arrive(52 - 8, 24)
    LB("Lhs1")
    lds_spin(52 - 8, 1, 24, sleep=1)
    h_coef()
    A("s_waitcnt vmcnt(0)")
else:
    A("s_waitcnt vmcnt(3)")
    lds_arrive(0, 24)
    A("s_waitcnt vmcnt(0)")
STAMP(1)
lds_arrive(24, 24)
lds_spin(24, 4, 24)
for a_ in range(3):
    for k in range(3):
        A("ds_read_b128 %s, v%d offset:%d" % (vr(HR + 14 * a_ + 4 * k, 4), vL16, 4096 * a_ + 1024 * k))
    A("ds_read_b64 %s, v26 offset:%d" % (vr(HR + 14 * a_ + 12, 2), 4096 * a_ + 3072))
for a_, d in [(0, HW1), (14, HB1), (28, HW2)]:
    A("s_waitcnt lgkmcnt(%d)" % (8 - 4 * (a_ // 14)))
    for p in range(14):
        A("v_lshlrev_b32 v%d, 16, v%d" % (d + 2 * p, HR + a_ + p))
        A("v_and_b32 v%d, 0xffff0000, v%d" % (d + 2 * p + 1, HR + a_ + p))
STAMP(4)
MP("hst")
if DIAG:
    A("s_memtime s[42:43]"); A("s_waitcnt lgkmcnt(0)"); A("v_writelane_b32 v30, s42, 13")
LB("Lhl")
if DIAG:
    A("s_memrealtime s[42:43]"); A("s_add_u32 m0, s%d, 10" % sIT); A("s_waitcnt lgkmcnt(0)"); A("v_writelane_b32 v30, s42, m0")
A("s_mov_b32 s%d, s%d" % (sH, sHC)); A("s_mov_b32 s%d, s%d" % (sH + 1, sHC))
A("s_xor_b32 s%d, s%d, 0x80000000" % (sH2, sHC)); A("s_mov_b32 s%d, s%d" % (sH2 + 1, sH2))
U4 = [144, 146, 148, 150]; T4 = [152, 154, 156, 158]; Z4 = [160, 162, 164, 166]
for p2 in range(7):
    ch = [(2 * p2 + k // 2, k & 1) for k in range(4)]
    for k, (p, sg) in enumerate(ch):
        A("v_pk_fma_f32 %s, %s, %s, %s" % (vr(U4[k], 2), vr(HW1 + 2 * p, 2), sr([sH, sH2][sg], 2), vr(HB1 + 2 * p, 2)))
    for k in range(4): A("v_pk_mul_f32 %s, %s, %s" % (vr(T4[k], 2), vr(U4[k], 2), vr(U4[k], 2)))
    for k in range(4): A("v_pk_fma_f32 %s, %s, %s, %s" % (vr(T4[k], 2), vr(T4[k], 2), vr(hK1, 2), vr(hK0, 2)))
    for k in range(4): A("v_pk_mul_f32 %s, %s, %s" % (vr(T4[k], 2), vr(T4[k], 2), vr(U4[k], 2)))
    for k in range(4):
        for h in range(2): A("v_exp_f32 v%d, v%d" % (T4[k] + h, T4[k] + h))
    for k, (p, sg) in enumerate(ch): A("v_pk_mul_f32 %s, %s, %s" % (vr(Z4[k], 2), vr(U4[k], 2), vr(HW2 + 2 * p, 2)))
    for k in range(4): A("v_pk_add_f32 %s, %s, %s" % (vr(T4[k], 2), vr(T4[k], 2), vr(hONE, 2)))
    for k in range(4):
        for h in range(2): A("v_rcp_f32 v%d, v%d" % (T4[k] + h, T4[k] + h))
    for k, (p, sg) in enumerate(ch):
        if p == 0: A("v_pk_mul_f32 %s, %s, %s" % (vr(AC[sg], 2), vr(Z4[k], 2), vr(T4[k], 2)))
        else: A("v_pk_fma_f32 %s, %s, %s, %s" % (vr(AC[sg], 2), vr(Z4[k], 2), vr(T4[k], 2), vr(AC[sg], 2)))
A("v_add_f32 v%d, v%d, v%d" % (AC[0], AC[0], AC[0] + 1))
A("v_add_f32 v%d, v%d, v%d" % (AC[1], AC[1], AC[1] + 1))
A("s_lshl_b32 m0, s%d, 1" % sIT)
A("s_add_u32 s%d, s%d, 0x10000" % (sHC, sHC))
wave_sum2(AC[0], AC[1], sSUM, sSQ)
A("s_add_u32 s%d, s%d, 1" % (sIT, sIT))
A("s_nop 0")
A("v_writelane_b32 v%d, s%d, m0" % (hRES, sSUM))
A("s_add_u32 m0, m0, 1")
A("s_cmp_lg_u32 s%d, %d" % (sIT, EPW))
A("v_writelane_b32 v%d, s%d, m0" % (hRES, sSQ))
A("s_cbranch_scc1 Lhl")
def h_publish(lanes):
    A("v_cvt_pk_bf16_f32 v%d, v%d, v%d" % (hRES, hRES, hRES))
    A("v_and_b32 v%d, 0xffff0000, v%d" % (hRES, hRES))
    A("v_add_f32 v%d, s%d, v%d" % (hRES, sB2, hRES))
    A("v_cvt_pk_bf16_f32 v%d, v%d, v%d" % (hRES, hRES, hRES))
    A("v_and_b32 v%d, 0xffff0000, v%d" % (hRES + 1, hRES))
    A("s_mov_b64 exec, %d" % lanes)
    A("buffer_store_dword v%d, v27, %s, s%d offen sc1" % (hRES + 1, sr(sWS, 4), sHT))
    A("s_mov_b64 exec, -1")
A("s_waitcnt lgkmcnt(0)")
A("s_lshl_b32 s%d, s%d, 16" % (sB2, sB2))
lds_spin(8, 4, 24)
h_publish((1 << (2 * EPW)) - 1)
if QBD:
    C("the write-through copy of q is only needed when the group is not known to sit on one XCD")
    A("ds_read_b32 v24, v%d offset:4" % vFL)
    A("s_waitcnt lgkmcnt(0)")
    A("v_readfirstlane_b32 s%d, v24" % sT0)
    A("s_cmp_eq_u32 s%d, 4" % sT0)
    A("s_cbranch_scc1 Lhqb")
    A("s_mov_b64 exec, %s" % sr(sMSK, 2))
    A("buffer_store_dwordx4 %s, v%d, %s, s%d offen sc1" % (vr(W + 4, 4), vQST, sr(sWS, 4), sQS))
    A("s_mov_b64 exec, -1")
    LB("Lhqb")
STAMP(8)
MP("htab")
if XENT:
    A("s_mov_b32 s%d, s%d" % (sH, sHX)); A("s_mov_b32 s%d, s%d" % (sH + 1, sHX))
    for grp in [[0, 1, 2, 3], [4, 5, 6, 7], [8, 9, 10], [11, 12, 13]]:
        n = len(grp)
        for k, p in enumerate(grp): A("v_pk_fma_f32 %s, %s, %s, %s" % (vr(U4[k], 2), vr(HW1 + 2 * p, 2), sr(sH, 2), vr(HB1 + 2 * p, 2)))
        for k in range(n): A("v_pk_mul_f32 %s, %s, %s" % (vr(T4[k], 2), vr(U4[k], 2), vr(U4[k], 2)))
        for k in range(n): A("v_pk_fma_f32 %s, %s, %s, %s" % (vr(T4[k], 2), vr(T4[k], 2), vr(hK1, 2), vr(hK0, 2)))
        for k in range(n): A("v_pk_mul_f32 %s, %s, %s" % (vr(T4[k], 2), vr(T4[k], 2), vr(U4[k], 2)))
        for k in range(n):
            for h in range(2): A("v_exp_f32 v%d, v%d" % (T4[k] + h, T4[k] + h))
        for k, p in enumerate(grp): A("v_pk_mul_f32 %s, %s, %s" % (vr(Z4[k], 2), vr(U4[k], 2), vr(HW2 + 2 * p, 2)))
        for k in range(n): A("v_pk_add_f32 %s, %s, %s" % (vr(T4[k], 2), vr(T4[k], 2), vr(hONE, 2)))
        for k in range(n):
            for h in range(2): A("v_rcp_f32 v%d, v%d" % (T4[k] + h, T4[k] + h))
        for k, p in enumerate(grp):
            if p < 2: A("v_pk_mul_f32 %s, %s, %s" % (vr(AC[p & 1], 2), vr(Z4[k], 2), vr(T4[k], 2)))
            else: A("v_pk_fma_f32 %s, %s, %s, %s" % (vr(AC[p & 1], 2), vr(Z4[k], 2), vr(T4[k], 2), vr(AC[p & 1], 2)))
    A("v_add_f32 v%d, v%d, v%d" % (AC[0], AC[0], AC[0] + 1))
    A("v_add_f32 v%d, v%d, v%d" % (AC[1], AC[1], AC[1] + 1))
    A("v_add_f32 v%d, v%d, v%d" % (AC[0], AC[0], AC[1]))
    A("s_nop 1")
    wave_sum2(AC[0], AC[1], sSUM, sSQ)
    A("s_nop 1")
    A("v_mov_b32 v%d, s%d" % (hRES, sSUM))
    A("v_cvt_pk_bf16_f32 v%d, v%d, v%d" % (hRES, hRES, hRES))
    A("v_and_b32 v%d, 0xffff0000, v%d" % (hRES, hRES))
    A("v_add_f32 v%d, s%d, v%d" % (hRES, sB2, hRES))
    A("v_cvt_pk_bf16_f32 v%d, v%d, v%d" % (hRES, hRES, hRES))
    A("v_and_b32 v%d, 0xffff0000, v%d" % (hRES, hRES))
    C("the last of the four helpers stores the workgroup's four extra entries with one instruction")
    A("s_lshl_b32 s%d, s%d, 2" % (sT0, sW))
    A("v_add_u32 v16, s%d, v%d" % (sT0, vFL))
    A("v_mov_b32 v17, 1")
    A("s_mov_b64 exec, 1")
    A("ds_write_b32 v16, v%d offset:32" % hRES)
    A("s_waitcnt lgkmcnt(0)")
    A("ds_add_rtn_u32 v18, v%d, v17 offset:28" % vFL)
    A("s_waitcnt lgkmcnt(0)")
    A("v_readfirstlane_b32 s%d, v18" % sT0)
    A("s_cmp_lg_u32 s%d, 3" % sT0)
    A("s_cbranch_scc1 Lhx_end")
    A("ds_read_b128 v[20:23], v%d offset:32" % vFL)
    A("s_lshl_b32 s%d, s2, 4" % sT0)
    A("v_mov_b32 v16, s%d" % sT0)
    A("s_waitcnt lgkmcnt(0)")
    A("buffer_store_dwordx4 v[20:23], v16, %s, s%d offen sc1" % (sr(sWS, 4), sHT))
    LB("Lhx_end")
    A("s_mov_b64 exec, -1")
if DIAG:
    A("s_memtime s[42:43]"); A("s_waitcnt lgkmcnt(0)"); A("v_writelane_b32 v30, s42, 14")
    STAMP(15)
STAMP(7)
C("stand in at the two barriers of the second layer, so that they do not wait for this wave's store acknowledgements")
A("s_barrier")
A("s_barrier")
if MEAS and OPT["q"][0] == "h":
    A("s_mov_b64 exec, 1"); A("v_mov_b32 v16, s97"); A("global_atomic_umax v[30:31], v16, off sc1")
if DIAG:
    A("s_add_u32 s%d, s%d, 4" % (sW, sW))
    A("v_mov_b32 v28, v30")
    A("s_branch Lfin_exit")
A("s_endpgm")

LB("Lmain")
for s, off in [(sWS, 96), (sV, 16), (sWO, 32), (sOUT, 80), (sX, 0), (sB2P, 72), (sW1, 48), (sB1, 56), (sW2, 64)]:
    A("s_load_dwordx2 %s, s[0:1], %d" % (sr(s, 2), off))
if MEAS: A("s_load_dwordx2 s[42:43], s[0:1], 88"); A("s_waitcnt lgkmcnt(0)"); A("s_mov_b32 s25, s42"); A("s_mov_b32 s99, s43") if False else None; A("v_mov_b32 v30, s42"); A("v_mov_b32 v31, s43")
srd(sWS, WS_SZ)
for s in [sW1, sB1, sW2]: srd(s, 3584)
A("s_barrier")
for i in range(D0, D1): kv_issue(i)
for i in range(4): A("v_mov_b32 v%d, -1" % (W + i))
A("s_lshl_b32 s%d, s%d, 17" % (sGR, sJ))
A("s_mov_b32 s%d, s%d" % (sT1, sM))
A("s_waitcnt lgkmcnt(0)")
A("s_load_dword s%d, %s, %s" % (sE, sr(sWS, 2), hx(EPO)))
STAMP(11)
for s, n in [(sV, 1 << 25), (sX, 4096), (sWO, 1 << 22), (sOUT, 4096)]: srd(s, n)
A("v_lshlrev_b32 v18, 1, v16")
A("v_xor_b32 v18, v17, v18")
A("v_lshlrev_b32 v18, 4, v18")
A("v_lshl_add_u32 v%d, v16, 8, v18" % vVA)
if ROT:
    A("s_and_b32 s%d, s%d, 1" % (sT0, sC))
    A("s_lshl_b32 s%d, s%d, 7" % (sT0, sT0))
    A("v_xor_b32 v%d, s%d, v%d" % (vVA, sT0, vVA))
A("v_xor_b32 v%d, 128, v%d" % (vVA + 1, vVA))
C("late sentinels: wave 0,1: group region ; wave 2: P chunk")
A("s_lshr_b32 s%d, s2, 3" % sT1)
A("s_mul_i32 s%d, s%d, %d" % (sT1, sT1, CLRB_PER))
A("s_lshl_b32 s%d, s%d, 10" % (sT0, sW))
A("s_add_u32 s%d, s%d, s%d" % (sT1, sT1, sT0))
A("s_add_u32 s%d, s%d, s%d" % (sT1, sT1, sGR))
A("s_add_u32 s%d, s%d, %d" % (sT1, sT1, CLRB_OFF))
A("s_lshl_b32 s%d, s2, 10" % sT0)
A("s_add_u32 s%d, s%d, %s" % (sT0, sT0, hx(PB)))
A("s_cmp_ge_u32 s%d, 2" % sW)
A("s_cselect_b32 s%d, s%d, s%d" % (sT1, sT0, sT1))
A("s_bfm_b64 %s, %d, 0" % (sr(sH, 2), (CLRB_PER - 1024) // 16))
A("s_cmp_eq_u32 s%d, 1" % sW)
A("s_cselect_b64 %s, %s, -1" % (sr(sH, 2), sr(sH, 2)))
NCL = NOCT * 4 // 16
A("v_mov_b32 v19, v%d" % vL16)
A("s_cmp_lg_u32 s%d, 3" % sW)
A("s_cbranch_scc1 Lm_c3")
C("wave 3: this workgroup's table slots")
A("s_mul_i32 s%d, s2, %d" % (sT0, NOCT * 4))
A("s_add_u32 s%d, s%d, %d" % (sT0, sT0, XENT * 4))
A("v_add_u32 v19, s%d, v19" % sT0)
A("s_lshl_b32 s%d, s2, 4" % sT0)
if XENT: A("v_writelane_b32 v19, s%d, %d" % (sT0, NCL))
A("s_mov_b32 s%d, %s" % (sT1, hx(TB)))
A("s_mov_b64 %s, %d" % (sr(sH, 2), (1 << (NCL + (1 if XENT else 0))) - 1))
LB("Lm_c3")
A("s_mov_b64 exec, %s" % sr(sH, 2))
A("buffer_store_dwordx4 %s, v19, %s, s%d offen sc1" % (vr(W, 4), sr(sWS, 4), sT1))
A("s_mov_b64 exec, -1")

common_addr()
A("s_add_u32 s%d, s%d, s%d" % (sQS, sQS, sGR))
A("s_add_u32 s%d, s%d, %d" % (sQS, sQS, Q1_OFF))
wtile_voff(10, 22)
A("v_and_b32 v19, 7, v%d" % vLANE)
A("v_lshrrev_b32 v25, 2, v%d" % vLANE)
A("v_lshlrev_b32 v25, 7, v25")
A("v_lshl_add_u32 v%d, v18, 2, v25" % vOST)
A("v_lshlrev_b32 v25, 7, v16")
A("v_lshl_add_u32 v%d, v19, 4, v25" % vOLD)
C("lanes n>=8 of the first two o loads fetch the lse values instead: offset relative to the o block")
A("s_mul_i32 s%d, s%d, %d" % (sT0, sA, 128 - 8192))
A("s_mul_i32 s%d, s%d, %d" % (sT1, sW, 32 - 2048))
A("s_add_u32 s%d, s%d, s%d" % (sT0, sT0, sT1))
A("s_add_u32 s%d, s%d, %d" % (sT0, sT0, LSE_OFF[0] - O_OFF[0]))
A("v_add_u32 v25, s%d, v%d" % (sT0, vLSE))
A("v_xor_b32 v26, 16, v25")
A("v_add_u32 v26, -512, v26")
A("v_cmp_gt_u32 vcc, 8, v17")
A("s_nop 1")
A("v_cndmask_b32 v%d, v25, v%d, vcc" % (vLSE, vOLD))
A("v_cndmask_b32 v%d, v26, v%d, vcc" % (vLS2, vOLD))
A("v_lshlrev_b32 v%d, 1, v%d" % (vPST, vLANE))
A("v_lshlrev_b32 v25, 3, v16")
A("v_lshl_add_u32 v%d, v19, 4, v25" % vX1S)
A("s_mul_i32 s%d, s%d, %d" % (sT0, sW, RBS))
A("s_add_u32 s%d, s%d, %d" % (sT0, sT0, L_RB))
A("v_mul_u32_u24 v25, 528, v18")
A("v_lshl_add_u32 v25, v16, 4, v25")
A("v_lshrrev_b32 v26, 2, v17")
A("v_lshl_add_u32 v25, v26, 7, v25")
A("v_add_u32 v%d, s%d, v25" % (vRBW, sT0))
A("s_mul_i32 s%d, s%d, 528" % (sT0, sW))
A("s_add_u32 s%d, s%d, %d" % (sT0, sT0, L_RB))
A("v_lshlrev_b32 v25, 3, v%d" % vLANE)
A("v_add_u32 v%d, s%d, v25" % (vRBR, sT0))
A("s_lshl_b32 s%d, s%d, 3" % (sT0, sW))
A("s_add_u32 s%d, s%d, %d" % (sT0, sT0, L_ML))
A("v_lshlrev_b32 v25, 5, v18")
A("v_add_u32 v%d, s%d, v25" % (vMLW, sT0))
A("s_lshl_b32 s%d, s%d, 5" % (sT0, sW))
A("s_add_u32 s%d, s%d, %d" % (sT0, sT0, L_ML))
A("v_mov_b32 v%d, s%d" % (vMLR, sT0))
A("v_mov_b32 v25, 0x3f80")
A("v_mov_b32 v26, 0x3f800000")
for r in range(4):
    A("v_cmp_eq_u32 vcc, %d, v17" % (2 * r))
    A("v_cmp_eq_u32 %s, %d, v17" % (sr(sH, 2), 2 * r + 1))
    A("s_nop 0")
    A("v_cndmask_b32 v%d, 0, v25, vcc" % (SEL + r))
    A("v_cndmask_b32 v%d, v%d, v26, %s" % (SEL + r, SEL + r, sr(sH, 2)))
for i in range(16): A("v_mov_b32 v%d, 0" % (PM + i))
for p in range(4):
    A("s_mov_b32 s%d, %s" % (sPM + 2 * p, hx(0x000f000f << (4 * p))))
    A("s_mov_b32 s%d, %s" % (sPM + 2 * p + 1, hx(0x000f000f << (4 * p))))
soff(sOS, [(sW, 13), (sA, 11), (sC, 4), (sJ, 17)], O_OFF[0])
soff(sOL, [(sA, 13), (sW, 11), (sJ, 17)], O_OFF[0])
A("s_add_u32 s%d, s%d, %s" % (sQL, sOL, hx(Q0_OFF - O_OFF[0])))
soff(sLS, [(sW, 7), (sA, 5), (sC, 2), (sJ, 17)], LSE_OFF[0])
soff(sPS, [(sW, 15), (sC, 12), (sJ, 9), (sA, 7)], PB)
A("s_mov_b32 s%d, %s" % (sSC, hx(f2u(128 ** -0.5 * math.log2(math.e)))))
A("s_getreg_b32 s%d, hwreg(HW_REG_XCC_ID, 0, 3)" % sXCC)
C("first q projection")
A("s_sub_u32 s%d, s%d, s%d" % (sIT, sQS, sGR))
A("s_lshl_b32 s%d, s%d, 1" % (sIT, sIT))
A("s_add_u32 s%d, s%d, s%d" % (sIT, sIT, sGR))
A("s_add_u32 s%d, s%d, %s" % (sIT, sIT, hx(Q0_OFF - 2 * Q1_OFF)))
A("v_lshlrev_b32 v21, 1, v%d" % vQST)
STAMP(12)
if DIAG: A("v_mov_b32 v31, v30")
A("s_waitcnt vmcnt(%d)" % (4 + D1 + 1))
A("s_branch Llnq")
LB("Lq_first")
A("s_waitcnt vmcnt(%d) lgkmcnt(0)" % (D1 + 1))
lds_arrive(0, vT + 4)
for i in range(D1, D2): kv_issue(i)
tags()
A("s_or_b32 s%d, s%d, s%d" % (sXCC, sXCC, sTG2))
lds_spin(0, 8, vT + 4)
wqf_reads()
A("s_waitcnt lgkmcnt(0)")
A("s_branch Lq_go")
LB("Lh_qst")
A("v_mov_b32 v%d, s%d" % (W + 6, sTG1))
A("v_mov_b32 v%d, s%d" % (W + 7, sXCC))
A("buffer_store_dwordx4 %s, v21, %s, s%d offen%s" % (vr(W + 4, 4), sr(sWS, 4), sIT, "" if int(OPT.get("fast", 1)) else " sc1"))
A("s_add_u32 s%d, s%d, %s" % (sIT, sIT, hx(QB_DELTA)))
A("buffer_store_dwordx4 %s, v21, %s, s%d offen sc1" % (vr(W + 4, 4), sr(sWS, 4), sIT))
A("s_mov_b64 exec, -1")
STAMP(14)
MP("mq")
A("v_lshrrev_b32 v16, 4, v%d" % vLANE)
A("v_and_b32 v17, 15, v%d" % vLANE)
A("v_xor_b32 v24, v16, v17")
A("v_lshlrev_b32 v24, 4, v24")
A("v_lshl_add_u32 v24, v17, 8, v24")
A("s_lshl_b32 s%d, s%d, 13" % (sT1, sW))
A("s_add_u32 s%d, s%d, %d" % (sT2, sT1, L_K))
for t in range(4): A("v_xor_b32 v%d, %d, v24" % (18 + t, 64 * t))
for t in range(4): A("v_add_u32 v%d, s%d, v%d" % (18 + t, sT2, 18 + t))
VA = W + 32
A("v_lshrrev_b32 v24, 2, v%d" % vLANE)
A("v_and_b32 v25, 7, v24")
A("v_lshlrev_b32 v25, 1, v25")
A("v_bfe_u32 v26, v%d, 1, 1" % vLANE)
A("v_xor_b32 v25, v25, v26")
A("v_lshlrev_b32 v25, 4, v25")
A("v_lshl_add_u32 v25, v24, 8, v25")
A("v_and_b32 v26, 1, v%d" % vLANE)
A("v_lshl_add_u32 v25, v26, 3, v25")
A("s_add_u32 s%d, s%d, %d" % (sT2, sT1, L_V))
for t in range(8): A("v_xor_b32 v%d, %d, v25" % (VA + t, 32 * t))
for t in range(8): A("v_add_u32 v%d, s%d, v%d" % (VA + t, sT2, VA + t))
soff(sT4, [(sJ, 19), (sA, 17), (sW, 15), (sC, 7)], 0)
A("s_lshl_b32 s%d, s%d, 12" % (sT5, sW))
A("s_add_u32 s%d, s%d, %d" % (sT5, sT5, L_WO))
soff(sT3, [(sA, 10), (sC, 7)], 0)
A("v_lshlrev_b32 v24, 5, v%d" % vLANE)
A("s_lshl_b32 s%d, s%d, 10" % (sT2, sW))
A("s_add_u32 s%d, s%d, %d" % (sT2, sT2, L_QF))
A("v_add_u32 v25, s%d, v%d" % (sT2, vL16))
A("v_add_u32 v26, %d, v%d" % (L_QF, vL16))
QP = W
def q0_issue(QP=QP):
    A("buffer_load_dwordx4 %s, v24, %s, s%d offen sc1" % (vr(QP, 4), sr(sWS, 4), sQL))
    A("buffer_load_dwordx4 %s, v24, %s, s%d offen offset:16 sc1" % (vr(QP + 4, 4), sr(sWS, 4), sQL))
def flag_block():
    if True:
        A("s_cmp_lg_u32 s%d, 0" % sW)
        A("s_cbranch_scc1 Lnoflag")
        C("every sentinel store of this workgroup is acknowledged: announce it")
        lds_spin(8, 4, vT)
        A("v_mov_b32 v16, s%d" % sTG1)
        A("v_mov_b32 v17, s%d" % sXCC)
        soff(sT1, [(2, 4)], FB)
        A("s_mov_b64 exec, 1")
        A("buffer_store_dwordx2 v[16:17], v%d, %s, s%d offen sc1" % (PM, sr(sWS, 4), sT1))
        A("s_mov_b64 exec, -1")
        LB("Lnoflag")
ycl = D2 - D1 + 2; st_arr = st_fl = False
for i in range(D2, 16):
    dp = DEPTH
    if i == 16 - QV:
        A("s_waitcnt vmcnt(%d)" % (dp - 2)); q0_issue(); ycl += 2
    A("s_waitcnt vmcnt(%d)" % (dp - 1))
    if EFL:
        if st_arr and not st_fl:
            flag_block(); st_fl = True
        if not st_arr and ycl >= dp - 1:
            lds_arrive(8, vT); st_arr = True
    kv_issue(i); ycl += 1
q0_issue(QP + 8)
C("everything older than the V loads is complete: K, late sentinels")
assert not QV2
A("s_waitcnt vmcnt(%d)" % int(OPT.get("kw", 14)))
if EFL: assert st_fl
else: lds_arrive(8, vT)
STAMP(1)
for t in range(4):
    for T in range(2):
        A("ds_read_b128 %s, v%d offset:%d" % (vr(KF + 16 * T + 4 * t, 4), 18 + t, 4096 * T))
if "dump" in OPT:
    A("s_waitcnt lgkmcnt(0)")
    soff(sT1, [(2, 15), (sW, 13)], 0x1000000)
    for k in range(8):
        A("buffer_store_dwordx4 %s, v%d, %s, s%d offen" % (vr(KF + 4 * k, 4), vL16, sr(sWS, 4), sT1))
        A("s_add_u32 s%d, s%d, 1024" % (sT1, sT1))
    A("s_waitcnt vmcnt(0)")
if not EFL: flag_block()
def wait_w0(n):
    if EFL:
        A("s_waitcnt vmcnt(%d)" % n); return
    uid[0] += 1
    A("s_cmp_eq_u32 s%d, 0" % sW)
    A("s_cbranch_scc1 Lww%d" % uid[0])
    A("s_waitcnt vmcnt(%d)" % n)
    LB("Lww%d" % uid[0])
    A("s_waitcnt vmcnt(%d)" % (n + 1))
wait_w0(QV + 2 + (2 if QV2 else 0))
STAMP(2)
A("s_setprio 2")
A("s_mov_b32 s%d, %s" % (sCNT, hx(SPIN)))
A("s_mov_b32 s%d, 0" % sY)
A("s_mov_b32 s%d, 0" % sIT)
LB("Lmq")
A("v_and_b32 v16, -8, v%d" % (QP + 3))
A("v_and_b32 v17, -8, v%d" % (QP + 7))
A("v_cmp_ne_u32 vcc, s%d, v%d" % (sTG1, QP + 2))
A("v_cmp_ne_u32 %s, s%d, v%d" % (sr(sRET, 2), sTG1, QP + 6))
A("s_or_b64 vcc, vcc, %s" % sr(sRET, 2))
A("v_cmp_ne_u32 %s, s%d, v16" % (sr(sRET, 2), sTG2))
A("s_or_b64 vcc, vcc, %s" % sr(sRET, 2))
A("v_cmp_ne_u32 %s, s%d, v17" % (sr(sRET, 2), sTG2))
A("s_or_b64 vcc, vcc, %s" % sr(sRET, 2))
if not int(OPT.get("nochk", 0)): A("s_cbranch_vccnz Lmqr")
LB("Lmqd")
if DIAG:
    A("s_sub_u32 s%d, s%d, s%d" % (sT0, sCNT, sY)); A("v_writelane_b32 v31, s%d, 0" % sT0)
Ls = L; L = []
L.append(".p2align 6"); LB("Lst_mq"); A("s_setpc_b64 %s" % sr(sRET, 2))
LB("Lmqr")
A("s_cmp_lg_u32 s%d, 0" % sY)
A("s_cbranch_scc1 Lmqr2")
if QV2:
    A("s_cmp_lg_u32 s%d, 0" % sIT)
    A("s_cbranch_scc1 Lmqr1")
    A("s_mov_b32 s%d, 1" % sIT)
    wait_w0(QV2 + 2)
    for k in range(8): A("v_mov_b32 v%d, v%d" % (QP + k, XR + k))
    A("s_branch Lmq")
    LB("Lmqr1")
C("first look failed: take the second one (V has landed with it: request its fragments now)")
A("s_waitcnt vmcnt(0)")
A("s_mov_b32 s%d, 1" % sY)
for k in range(8): A("v_mov_b32 v%d, v%d" % (QP + k, QP + 8 + k))
if not VLATE:
    for t in range(8):
        for hf in range(2):
            A("ds_read_b64_tr_b16 %s, v%d offset:%d" % (vr(VF + 4 * t + 2 * hf, 2), VA + t, 4096 * hf))
A("s_branch Lmq")
LB("Lmqr2")
C("still not there: poll the plain copy a few times, then both copies in turn")
A("s_cmp_le_u32 s%d, %s" % (sCNT, hx(SPIN - 6)))
A("s_cselect_b32 s%d, %s, 0" % (sT0, hx(QB_DELTA)))
A("s_xor_b32 s%d, s%d, s%d" % (sQL, sQL, sT0))
q0_issue()
A("s_waitcnt vmcnt(0)")
A("s_sub_u32 s%d, s%d, 1" % (sCNT, sCNT))
A("s_cbranch_scc0 Lmq")
A("s_branch Lmqd")
ool.append(L); L = Ls
A("v_cmp_ne_u32 vcc, s%d, v%d" % (sXCC, QP + 3))
A("v_mov_b32 v%d, v%d" % (QP + 2, QP + 4))
A("v_mov_b32 v%d, v%d" % (QP + 3, QP + 5))
A("ds_write_b128 v25, %s" % vr(QP, 4))
A("s_cmp_eq_u64 vcc, 0")
A("s_cselect_b32 s%d, 1, 0x101" % sT0)
A("v_mov_b32 v16, s%d" % sT0)
A("s_waitcnt lgkmcnt(0)")
lds_arrive(4, 16, None)
if VLATE:
    A("s_cmp_eq_u32 s%d, 0" % sY)
    A("s_cbranch_scc1 Lnvf")
    for t in range(8):
        for hf in range(2):
            A("ds_read_b64_tr_b16 %s, v%d offset:%d" % (vr(VF + 4 * t + 2 * hf, 2), VA + t, 4096 * hf))
    LB("Lnvf")
STAMP(15)
A("buffer_load_dwordx2 %s, v%d, %s, s%d offen" % (vr(RES + 2, 2), vX1S, sr(sX, 4), sT3))
FLG = W + 44
soff(sIT, [(sW, 10)], FB)
soff(sQL, [(sA, 12), (sJ, 17)], Q1_OFF)
for k in range(4):
    A("s_add_u32 s%d, s%d, %d" % (sT0, sC, k))
    A("s_and_b32 s%d, s%d, 3" % (sT0, sT0))
    A("s_lshl_b32 s%d, s%d, 10" % (sKO + k, sT0))
A("s_and_b32 s%d, s%d, 1" % (sT0, sC))
A("s_lshl_b32 s%d, s%d, 6" % (sT0, sT0))
A("v_xor_b32 v22, s%d, v22" % sT0); A("v_xor_b32 v23, s%d, v23" % sT0)
A("s_lshl_b32 s%d, s%d, 2" % (sT3, sM))
A("s_add_u32 s%d, s%d, s%d" % (sT3, sT3, sW))
A("s_lshl_b32 s%d, s%d, 8" % (sT3, sT3))
A("v_lshlrev_b32 v21, 7, v%d" % vLANE)
A("v_add_u32 v21, s%d, v21" % sT3)
A("s_lshl_b32 s%d, s%d, 7" % (sT0, sW))
A("s_add_u32 s%d, s%d, %d" % (sT0, sT0, LSE_OFF[0]))
A("v_writelane_b32 v21, s%d, 2" % sT0)
lds_spin(4, 4, vT, mask=0xff)
A("s_cmp_lt_u32 s%d, 256" % sT1)
A("s_cselect_b32 s%d, %d, 0" % (sFAST, int(OPT.get("fast", 1))))
QF = W + 16
for t in range(4):
    A("ds_read_b128 %s, v26 offset:%d" % (vr(QF + 4 * t, 4), 1024 * t))
S = W
qk = []
for t in range(4):
    for T in range(2):
        qk.append(mf(S + 4 * T, KF + 16 * T + 4 * t, QF + 4 * t, None if t == 0 else S + 4 * T))
for t in range(4):
    A("s_waitcnt lgkmcnt(%d)" % (3 - t))
    A(qk[2 * t]); A(qk[2 * t + 1])
def wo_issue():
    C("every wave holds its K fragments: the wo tile may land in the K area")
    for k in range(4):
        A("s_add_u32 m0, s%d, s%d" % (sT5, sKO + k))
        A("s_lshl3_add_u32 s%d, s%d, s%d" % (sT0, sKO + k, sT4))
        A("buffer_load_dwordx4 v%d, %s, s%d offen nt lds" % (22 + (k & 1), sr(sWO, 4), sT0))
if WOP == 0: wo_issue()
if PRET:
    C("bring the first layer's o / lse lines (their sentinels are in place) into L2")
    A("s_mov_b64 exec, 7")
    A("buffer_load_dword v%d, v21, %s, s%d offen sc1" % (W + 40, sr(sWS, 4), sGR))
    A("s_mov_b64 exec, -1")
STAMP(3)
A("s_branch Lk_go")

LB("Llnq")
C("LayerNorm of the row held in XR, then q partial = xn @ wq tile")
X = W
row_stats(XR, vT, X)
A("v_add_f32 v%d, %s, v%d" % (vT + 1, EPS, vT + 1))
A("v_rsq_f32 v%d, v%d" % (vT + 2, vT + 1))
A("s_cmp_eq_u32 s%d, 0" % sLAY)
A("v_mul_f32 v%d, v%d, v%d" % (vT + 3, vT, vT + 2))
for i in range(4):
    A("v_pk_fma_f32 %s, %s, %s, %s op_sel:[0,0,1] op_sel_hi:[1,0,1] neg_lo:[0,0,1] neg_hi:[0,0,1]" % (vr(X + 2 * i, 2), vr(X + 2 * i, 2), vr(vT + 2, 2), vr(vT + 2, 2)))
for i in range(4):
    A("v_cvt_pk_bf16_f32 v%d, v%d, v%d" % (X + 8 + i, X + 2 * i, X + 2 * i + 1))
A("ds_write_b128 v%d, %s" % (vXNW, vr(X + 8, 4)))
A("s_cbranch_scc1 Lq_first")
A("s_waitcnt lgkmcnt(0)")
A("s_barrier")
LB("Lq_go")
BF = W + 16
for t in range(4):
    A("ds_read_b128 %s, v%d offset:%d" % (vr(BF + 4 * t, 4), vXNR, 64 * t))
for t in range(4):
    A("s_waitcnt lgkmcnt(%d)" % (3 - t))
    mfma(W, WQF + 4 * t, BF + 4 * t, None if t == 0 else W)
A("s_cmp_eq_u32 s%d, 0" % sLAY)
A("s_mov_b64 exec, %s" % sr(sMSK, 2))
NOP(6)
A("v_cvt_pk_bf16_f32 v%d, v%d, v%d" % (W + 4, W, W + 1))
A("v_cvt_pk_bf16_f32 v%d, v%d, v%d" % (W + 5, W + 2, W + 3))
A("s_cbranch_scc1 Lh_qst")
fastcmp()
store_local("buffer_store_dwordx2", vr(W + 4, 2), vQST, sQS)
A("s_mov_b64 exec, -1")
A("ds_write_b128 v%d, %s offset:%d" % (vXNW, vr(XR, 4), L_X2 - L_XN))
A("s_mov_b32 s%d, 0" % sY)
for s, d in [(sOL, O_OFF[1] - O_OFF[0]), (sOS, O_OFF[1] - O_OFF[0]), (sLS, LSE_OFF[1] - LSE_OFF[0]), (sPS, P_L)]:
    A("s_add_u32 s%d, s%d, %d" % (s, s, d))
STAMP(2)

C("attention over this workgroup's 128 keys")
if QS:
    C("each wave fetches one k-step of q and shares it through LDS")
    A("s_lshl_b32 s%d, s%d, 10" % (sT3, sW))
    A("s_add_u32 s%d, s%d, s%d" % (sT4, sQL, sT3))
    A("s_add_u32 s%d, s%d, %d" % (sT3, sT3, L_RB + 12288))
    A("v_add_u32 v25, s%d, v%d" % (sT3, vL16))
    A("v_add_u32 v26, %d, v%d" % (L_RB + 12288, vL16))
    ppoll(lambda k: A("buffer_load_dwordx4 %s, v%d, %s, s%d offen sc1" % (vr(W + 32 + 4 * k, 4), vL16, sr(sWS, 4), sT4)),
          lambda k: range(W + 32 + 4 * k, W + 36 + 4 * k), 1, vT, lambda k: ["ds_write_b128 v25, %s" % vr(W + 32 + 4 * k, 4)], pre=QPRE, gap=QGAP, tag=0)
    A("s_waitcnt lgkmcnt(0)")
    A("s_barrier")
    for t in range(4):
        A("ds_read_b128 %s, v26 offset:%d" % (vr(QF + 4 * t, 4), 1024 * t))
    for t in range(4):
        A("s_waitcnt lgkmcnt(%d)" % (3 - t))
        A(qk[2 * t]); A(qk[2 * t + 1])
    touch_stub("k")
else:
    def iq(k):
        for t in range(4):
            A("buffer_load_dwordx4 %s, v%d, %s, s%d offen offset:%d sc1" % (vr(QF + 16 * k + 4 * t, 4), vL16, sr(sWS, 4), sQL, 1024 * t))
    def qks(k):
        return [mf(S + 4 * T, KF + 16 * T + 4 * t, QF + 16 * k + 4 * t, None if t == 0 else S + 4 * T) for t in range(4) for T in range(2)]
    ppoll(iq, lambda k: range(QF + 16 * k, QF + 16 * k + 16), 4, vT, qks, pre=QPRE, gap=QGAP, tag=0, stub="k", per_load=lambda k, i: qks(k)[2 * i:2 * i + 2])
STAMP(3)
LB("Lk_go")
NOP(5)
for ctl in ["row_ror:4", "row_ror:8"]:
    for i in range(8):
        A("v_add_f32_dpp v%d, v%d, v%d %s row_mask:0xf bank_mask:0xf" % (S + i, S + i, S + i, ctl))
A("v_max3_f32 v%d, v%d, v%d, v%d" % (vT, S, S + 1, S + 2))
A("v_max3_f32 v%d, v%d, v%d, v%d" % (vT + 1, S + 3, S + 4, S + 5))
A("v_max3_f32 v%d, v%d, v%d, v%d" % (vT, vT, S + 6, S + 7))
A("v_max_f32 v%d, v%d, v%d" % (vT, vT, vT + 1))
A("v_mov_b32 v%d, v%d" % (vT + 1, vT))
A("s_nop 1")
A("v_permlane16_swap_b32 v%d, v%d" % (vT, vT + 1))
A("v_max_f32 v%d, v%d, v%d" % (vT, vT, vT + 1))
A("v_mov_b32 v%d, v%d" % (vT + 1, vT))
A("s_nop 1")
A("v_permlane32_swap_b32 v%d, v%d" % (vT, vT + 1))
A("v_max_f32 v%d, v%d, v%d" % (vT, vT, vT + 1))
A("v_mul_f32 v%d, s%d, v%d" % (vT + 2, sSC, vT))
for i in range(8):
    A("v_fma_f32 v%d, v%d, s%d, -v%d" % (S + i, S + i, sSC, vT + 2))
for i in range(8):
    A("v_exp_f32 v%d, v%d" % (S + i, S + i))
for p in range(4):
    A("s_mov_b64 exec, %s" % sr(sPM + 2 * p, 2))
    for i in range(4):
        A("v_cvt_pk_bf16_f32 v%d, v%d, v%d" % (PM + 4 * p + i, S + 2 * i, S + 2 * i + 1))
A("s_mov_b64 exec, -1")
STAMP(4)
A("s_cmp_lg_u32 s%d, 0" % sLAY)
A("s_cbranch_scc1 Lv_go")
wait_w0((5 if WOP == 0 else 1) + PRET)
if WOP == 1: wo_issue()
A("buffer_load_dwordx4 %s, v%d, %s, s%d offen sc1" % (vr(FLG, 4), vL16, sr(sWS, 4), sIT))
STAMP(6)
A("s_cmp_lg_u32 s%d, 0" % sY)
A("s_cbranch_scc1 Lv_have")
for t in range(8):
    for hf in range(2):
        A("ds_read_b64_tr_b16 %s, v%d offset:%d" % (vr(VF + 4 * t + 2 * hf, 2), VA + t, 4096 * hf))
A("s_waitcnt lgkmcnt(0)")
LB("Lv_have")
if TOT:
    A("s_memrealtime s[42:43]"); A("s_waitcnt lgkmcnt(0)"); A("s_mov_b32 s97, s42")
MP("pv")
if MEAS and OPT["q"] in ("tg", "s1"): A("s_mov_b32 s97, s98")
A("s_cmp_lg_u32 s%d, 0" % sLAY)
LB("Lv_go")
OA = W + 8
mfma(W + 16, ONES, PM, None)
for p in range(4):
    for T in range(2):
        mfma(OA + 4 * T, VF + 4 * (2 * p + T), PM + 4 * p, None if p == 0 else OA + 4 * T)
A("s_mov_b64 exec, %s" % sr(sMSK, 2))
A("v_mov_b32 v%d, v%d" % (vT + 3, W + 16))
A("ds_write_b64 v%d, %s" % (vMLW, vr(vT + 2, 2)))
A("s_mov_b64 exec, -1")
NOP(3)
A("ds_write_b128 v%d, %s" % (vRBW, vr(OA, 4)))
A("ds_write_b128 v%d, %s offset:64" % (vRBW, vr(OA + 4, 4)))
A("s_waitcnt lgkmcnt(0)")
A("s_cbranch_scc1 Lrb_bar")
lds_arrive(12, vT + 4)
if WOP == 2: wo_issue()
lds_spin(12, 4, vT + 4)
A("s_branch Lrb_go")
LB("Lrb_bar")
A("s_barrier")
LB("Lrb_go")
A("ds_read_b128 %s, v%d" % (vr(W, 4), vMLR))
A("ds_read_b128 %s, v%d offset:16" % (vr(W + 4, 4), vMLR))
for w in range(4):
    A("ds_read_b64 %s, v%d offset:%d" % (vr(W + 8 + 2 * w, 2), vRBR, RBS * w))
A("v_mov_b32 v%d, 0" % (vT + 4))
fastcmp()
A("s_waitcnt lgkmcnt(4)")
A("v_max3_f32 v%d, v%d, v%d, v%d" % (vT, W, W + 2, W + 4))
A("v_max_f32 v%d, v%d, v%d" % (vT, vT, W + 6))
for w in range(4): A("v_sub_f32 v%d, v%d, v%d" % (W + 2 * w, W + 2 * w, vT))
for w in range(4): A("v_exp_f32 v%d, v%d" % (W + 2 * w, W + 2 * w))
A("v_mul_f32 v%d, v%d, v%d" % (vT + 1, W, W + 1))
for w in range(1, 4): A("v_fmac_f32 v%d, v%d, v%d" % (vT + 1, W + 2 * w, W + 2 * w + 1))
A("s_waitcnt lgkmcnt(0)")
A("v_pk_mul_f32 %s, %s, %s op_sel_hi:[1,0]" % (vr(W + 8, 2), vr(W + 8, 2), vr(W, 2)))
A("v_rcp_f32 v%d, v%d" % (vT + 2, vT + 1))
A("v_pk_fma_f32 %s, %s, %s, %s op_sel_hi:[1,0,1]" % (vr(W + 8, 2), vr(W + 10, 2), vr(W + 2, 2), vr(W + 8, 2)))
A("v_log_f32 v%d, v%d" % (vT + 5, vT + 1))
for w in range(2, 4):
    A("v_pk_fma_f32 %s, %s, %s, %s op_sel_hi:[1,0,1]" % (vr(W + 8, 2), vr(W + 8 + 2 * w, 2), vr(W + 2 * w, 2), vr(W + 8, 2)))
A("v_pk_mul_f32 %s, %s, %s op_sel_hi:[1,0]" % (vr(W + 8, 2), vr(W + 8, 2), vr(vT + 2, 2)))
A("v_add_f32 v%d, v%d, v%d" % (vT + 5, vT + 5, vT))
A("v_cvt_pk_bf16_f32 v%d, v%d, v%d" % (W + 8, W + 8, W + 9))
store_local("buffer_store_dword", "v%d" % (W + 8), vOST, sOS)
A("s_mov_b64 exec, 1")
store_local("buffer_store_dword", "v%d" % (vT + 5), vT + 4, sLS)
A("s_mov_b64 exec, -1")
STAMP(5)

C("wo phase: wave = batch, rows = key splits")
OF = W; LS = W + 32; DA = WQF
assert LSE_OFF[1] - O_OFF[1] == LSE_OFF[0] - O_OFF[0]
def io(k):
    for t in range(4):
        A("buffer_load_dwordx4 %s, v%d, %s, s%d offen offset:%d sc1" % (vr(OF + 16 * k + 4 * t, 4), [vLSE, vLS2, vOLD, vOLD][t], sr(sWS, 4), sOL, 512 * t))
A("s_cmp_lg_u32 s%d, 0" % sLAY)
A("s_cbranch_scc1 Lo_go")
C("first layer: wo tile landed -> fragments; every workgroup has announced its clears")
if WOP == 3: wo_issue()
A("s_waitcnt vmcnt(%d)" % (2 if WOP < 3 else 0))
STAMP(13)
A("s_mov_b32 s%d, %s" % (sT4, hx(SPIN)))
LB("Lap")
A("v_and_b32 v24, -8, v%d" % (FLG + 1))
A("v_cmp_ne_u32 vcc, s%d, v%d" % (sTG1, FLG))
A("v_cmp_ne_u32 %s, s%d, v24" % (sr(sH, 2), sTG2))
A("s_or_b64 vcc, vcc, %s" % sr(sH, 2))
A("s_cbranch_vccnz Lar")
LB("Lad")
lds_arrive(16, 24)
for i in range(2):
    A("v_lshlrev_b32 v%d, 16, v%d" % (W + 40 + 2 * i, RES + 2 + i))
    A("v_and_b32 v%d, 0xffff0000, v%d" % (W + 41 + 2 * i, RES + 2 + i))
for i in range(4): A("v_mov_b32 v%d, v%d" % (RES + i, W + 40 + i))
for ct in range(4): A("v_xor_b32 v%d, %d, v%d" % (W + 40 + ct, 32 * ct, vWT))
for ct in range(4): A("v_add_u32 v%d, %d, v%d" % (W + 40 + ct, L_WO, W + 40 + ct))
lds_spin(16, 4, 24)
STAMP(14)
A("s_mov_b32 s%d, 1" % sY)
LB("Lo_go")
A("s_mov_b32 s%d, 0x55555555" % sT4)
A("s_mov_b32 s%d, 0x55555555" % sT5)
def pre_o():
    A("s_cmp_eq_u32 s%d, 0" % sY)
    A("s_cbranch_scc1 Lo_nof")
    A("s_mov_b32 s%d, 0" % sY)
    for t in range(4):
        for ct in range(4):
            for hf in range(2):
                A("ds_read_b64_tr_b16 %s, v%d offset:%d" % (vr(WOF + 16 * ct + 4 * t + 2 * hf, 2), W + 40 + ct, 4096 * t + 512 * hf))
    LB("Lo_nof")
ool.append(["Lar:", "    s_sleep 4", "    s_lshl_b32 s%d, s%d, 10" % (sT5, sW), "    s_add_u32 s%d, s%d, %s" % (sT5, sT5, hx(FB)),
            "    buffer_load_dwordx4 %s, v%d, %s, s%d offen sc1" % (vr(FLG, 4), vL16, sr(sWS, 4), sT5),
            "    s_waitcnt vmcnt(0)", "    s_sub_u32 s%d, s%d, 1" % (sT4, sT4), "    s_cbranch_scc0 Lap", "    s_branch Lad"])
C("softmax over the 8 key splits: lanes n>=8 hold own lse in OF[0:3], the other four in OF[4:7]")
vU = vT + 2
def wo_all(k, t):
    o = OF + 16 * k
    m = [mf(DA + 4 * ct, o + 4 * t, WOF + 16 * ct + 4 * t, None if t == 0 else DA + 4 * ct) for ct in range(4)]
    va = ["v_max3_f32 v%d, v%d, v%d, v%d" % (vU, o, o + 1, o + 2), "v_max3_f32 v%d, v%d, v%d, v%d" % (vU + 1, o + 3, o + 4, o + 5),
          "v_max3_f32 v%d, v%d, v%d, v%d" % (vU, vU, o + 6, o + 7), "v_max_f32 v%d, v%d, v%d" % (vU, vU, vU + 1)]
    va += ["v_sub_f32 v%d, v%d, v%d" % (LS + i, o + i, vU) for i in range(4)]
    va += ["v_exp_f32 v%d, v%d" % (LS + i, LS + i) for i in range(4)]
    vb = ["v_mov_b32_dpp v%d, v%d row_ror:8 row_mask:0xf bank_mask:0x3" % (LS + i, LS + i) for i in range(4)]
    vb += ["v_add_f32 v%d, v%d, v%d" % (vU, LS, LS + 1), "v_add_f32 v%d, v%d, v%d" % (vU + 1, LS + 2, LS + 3),
           "v_add_f32 v%d, v%d, v%d" % (vU, vU, vU + 1), "v_mov_b32 v%d, v%d" % (vU + 1, vU)]
    f = {0: [], 1: va[:4], 2: va[4:], 3: vb}[t]
    out = ["s_waitcnt lgkmcnt(%d)" % [15, 15, 8, 0][t]] if t != 1 else []
    for x in m:
        out.append(x)
        for _ in range(2):
            if f: out.append(f.pop(0))
    return out
assert PROG and OGAP < 0
ppoll(io, lambda k: range(OF + 16 * k, OF + 16 * k + 16), 4, vT, None, pre=OPRE, gap=OGAP, mid=pre_o, tag=1, per_load=wo_all)
STAMP(7)
A("v_permlane16_swap_b32 v%d, v%d" % (vU, vU + 1))
A("v_mul_f32 v%d, v%d, v%d" % (DA, DA, LS))
A("v_add_f32 v%d, v%d, v%d" % (vT, vU, vU + 1))
A("v_mul_f32 v%d, v%d, v%d" % (DA + 4, DA + 4, LS))
A("v_rcp_f32 v%d, v%d" % (vT, vT))
A("v_mul_f32 v%d, v%d, v%d" % (DA + 8, DA + 8, LS))
for i in range(1, 4):
    for ct in range(3):
        A("v_fmac_f32 v%d, v%d, v%d" % (DA + 4 * ct, DA + 4 * ct + i, LS + i))
    if i == 1: A("v_mul_f32 v%d, v%d, v%d" % (DA + 12, DA + 12, LS))
for i in range(1, 4): A("v_fmac_f32 v%d, v%d, v%d" % (DA + 12, DA + 12 + i, LS + i))
A("v_permlane16_swap_b32 v%d, v%d" % (DA, DA + 4))
A("s_nop 0")
A("v_permlane16_swap_b32 v%d, v%d" % (DA + 8, DA + 12))
A("v_add_f32 v%d, v%d, v%d" % (DA, DA, DA + 4))
A("v_add_f32 v%d, v%d, v%d" % (DA + 8, DA + 8, DA + 12))
A("s_nop 1")
A("v_permlane32_swap_b32 v%d, v%d" % (DA, DA + 8))
A("v_mul_f32 v%d, v%d, v%d" % (DA, DA, vT))
A("s_cmp_lg_u32 s%d, 0" % sLAY)
A("s_nop 0")
A("v_mov_b32_dpp v%d, v%d quad_perm:[1,0,3,2] row_mask:0xf bank_mask:0xf" % (DA + 1, DA))
A("s_mov_b64 exec, %s" % sr(sT4, 2))
A("v_cvt_pk_bf16_f32 v%d, v%d, v%d" % (DA, DA, DA + 1))
A("buffer_store_dword v%d, v%d, %s, s%d offen sc1" % (DA, vPST, sr(sWS, 4), sPS))
A("s_mov_b64 exec, -1")
STAMP(8)
A("s_cbranch_scc1 Lfinal")
MP("p0")

if PRET:
    C("same for the remaining lines of the group's mailboxes")
    soff(sT1, [(sM, 11), (sW, 9), (sJ, 17)], CLRB_OFF)
    A("v_lshlrev_b32 v21, 7, v%d" % vLANE)
    A("s_mov_b64 exec, 15")
    A("buffer_load_dword v%d, v21, %s, s%d offen sc1" % (W + 47, sr(sWS, 4), sT1))
    A("s_mov_b64 exec, -1")
A("s_cmp_lg_u32 s%d, 0" % sW)
A("s_cbranch_scc1 Ltab")
C("stage 1 (wave 0): reduce 32 head partials of 64 outputs, add residual, publish x1 slice")
soff(sT1, [(sA, 15), (sC, 12)], PB)
soff(sT2, [(sA, 10), (sC, 7), (sJ, 17)], X1_OFF)
A("s_mov_b32 s%d, 0x00ff00ff" % sT4)
A("s_mov_b32 s%d, 0" % sT5)
def ip(k):
    for i in range(4):
        A("buffer_load_dwordx4 %s, v%d, %s, s%d offen offset:%d sc1" % (vr(W + 20 * k + 4 * i, 4), vL16, sr(sWS, 4), sT1, 1024 * i))
if GW: A("s_waitcnt vmcnt(0)")
ppoll(ip, lambda k: range(W + 20 * k, W + 20 * k + 16), 4, vT, lambda k: [mf(W + 16, SEL, W + 20 * k + 4 * i, None if i == 0 else W + 16) for i in range(4)], pre=GPRE, gap=GGAP, tag=2,
      per_load=lambda k, i: [mf(W + 16, SEL, W + 20 * k + 4 * i, None if i == 0 else W + 16)])
STAMP(9)
MP("s1")
fastcmp()
NOP(3)
for i in range(4):
    A("v_add_f32_dpp v%d, v%d, v%d row_ror:8 row_mask:0xf bank_mask:0xf" % (W + 16 + i, W + 16 + i, W + 16 + i))
A("s_mov_b64 exec, %s" % sr(sT4, 2))
A("v_pk_add_f32 %s, %s, %s" % (vr(W + 16, 2), vr(W + 16, 2), vr(RES, 2)))
A("v_pk_add_f32 %s, %s, %s" % (vr(W + 18, 2), vr(W + 18, 2), vr(RES + 2, 2)))
A("v_cvt_pk_bf16_f32 v%d, v%d, v%d" % (W + 16, W + 16, W + 17))
A("v_cvt_pk_bf16_f32 v%d, v%d, v%d" % (W + 17, W + 18, W + 19))
store_local("buffer_store_dwordx2", vr(W + 16, 2), vX1S, sT2)
A("s_mov_b64 exec, -1")
LB("Ltabdone")
soff(sT3, [(sW, 10), (sJ, 17)], X1_OFF)
def ix(k):
    A("buffer_load_dwordx4 %s, v%d, %s, s%d offen sc1" % (vr([XR, RES][k], 4), vL16, sr(sWS, 4), sT3))
wqf_reads()
ppoll(ix, lambda k: range([XR, RES][k], [XR, RES][k] + 4), 1, vT, lambda k: ["s_waitcnt lgkmcnt(0)", "v_readfirstlane_b32 s%d, v%d" % (sT1, vT + 2)],
      pre=XPRE, gap=XGAP, mid=lambda: A("ds_read_b32 v%d, v%d offset:20" % (vT + 2, vFL)), tag=3,
      fix=["v_mov_b32 v%d, v%d" % (XR + i, RES + i) for i in range(4)])
A("s_cmp_lt_u32 s%d, 3" % sT1)
A("s_cbranch_scc1 Ltw")
LB("Ltwd")
STAMP(10)

LB("Lmix")
C("x <- x + g(LN(LN(x))) ; g is tabulated for every bf16 input in range, evaluated directly otherwise")
X = W; HB = W + 8; RT = W + 12; AD = W + 16; Y = W + 24
row_stats(XR, vT, X)
A("v_add_f32 v%d, %s, v%d" % (vT + 2, EPS, vT + 1))
A("v_rsq_f32 v%d, v%d" % (vT + 2, vT + 2))
A("v_mov_b32 v%d, %s" % (vT + 4, hx(LO2 | (LO2 << 16))))
A("s_movk_i32 s%d, %d" % (sT5, NENT * 4))
A("v_mul_f32 v%d, v%d, v%d" % (vT + 1, vT + 1, vT + 2))
A("v_fmaak_f32 v%d, v%d, v%d, %s" % (vT + 1, vT + 1, vT + 2, EPS))
A("v_rsq_f32 v%d, v%d" % (vT + 1, vT + 1))
A("s_nop 0")
A("v_mul_f32 v%d, v%d, v%d" % (vT + 2, vT + 2, vT + 1))
A("v_mul_f32 v%d, v%d, v%d" % (vT + 3, vT, vT + 2))
for i in range(4):
    A("v_pk_fma_f32 %s, %s, %s, %s op_sel:[0,0,1] op_sel_hi:[1,0,1] neg_lo:[0,0,1] neg_hi:[0,0,1]" % (vr(AD + 2 * i, 2), vr(X + 2 * i, 2), vr(vT + 2, 2), vr(vT + 2, 2)))
for i in range(4):
    A("v_cvt_pk_bf16_f32 v%d, v%d, v%d" % (HB + i, AD + 2 * i, AD + 2 * i + 1))
for i in range(4):
    A("v_pk_lshlrev_b16 v%d, 1, v%d op_sel_hi:[0,1]" % (RT + i, HB + i))
    A("v_pk_lshrrev_b16 v%d, 15, v%d op_sel_hi:[0,1]" % (AD + i, HB + i))
for i in range(4):
    A("v_or_b32 v%d, v%d, v%d" % (RT + i, RT + i, AD + i))
for i in range(4):
    A("v_pk_sub_u16 v%d, v%d, v%d" % (RT + i, RT + i, vT + 4))
for i in range(4):
    A("v_lshlrev_b32_sdwa v%d, 2, v%d dst_sel:DWORD dst_unused:UNUSED_PAD src0_sel:DWORD src1_sel:WORD_0" % (AD + 2 * i, RT + i))
    A("v_lshlrev_b32_sdwa v%d, 2, v%d dst_sel:DWORD dst_unused:UNUSED_PAD src0_sel:DWORD src1_sel:WORD_1" % (AD + 2 * i + 1, RT + i))
    A("ds_read_b32 v%d, v%d offset:%d" % (Y + 2 * i, AD + 2 * i, L_TAB))
    A("ds_read_b32 v%d, v%d offset:%d" % (Y + 2 * i + 1, AD + 2 * i + 1, L_TAB))
A("v_max3_u32 v%d, v%d, v%d, v%d" % (vT, AD, AD + 1, AD + 2))
A("v_max3_u32 v%d, v%d, v%d, v%d" % (vT + 1, AD + 3, AD + 4, AD + 5))
A("v_max3_u32 v%d, v%d, v%d, v%d" % (vT, vT, AD + 6, AD + 7))
A("v_max_u32 v%d, v%d, v%d" % (vT, vT, vT + 1))
A("v_cmp_le_u32 %s, s%d, v%d" % (sr(sH, 2), sT5, vT))
A("s_waitcnt lgkmcnt(5)")
A("v_max3_u32 v%d, v%d, v%d, v%d" % (vT, Y, Y + 1, Y + 2))
A("s_waitcnt lgkmcnt(2)")
A("v_max3_u32 v%d, v%d, v%d, v%d" % (vT + 1, Y + 3, Y + 4, Y + 5))
A("s_waitcnt lgkmcnt(0)")
A("v_max3_u32 v%d, v%d, v%d, v%d" % (vT, vT, Y + 6, Y + 7))
A("v_max_u32 v%d, v%d, v%d" % (vT, vT, vT + 1))
A("v_cmp_eq_u32 vcc, -1, v%d" % vT)
LB("Lslowdone")
for i in range(4):
    A("v_pk_add_f32 %s, %s, %s" % (vr(vT + 2 + 2 * i, 2), vr(X + 2 * i, 2), vr(Y + 2 * i, 2)))
A("s_or_b64 vcc, vcc, %s" % sr(sH, 2))
A("s_cbranch_vccnz Lslow")
A("s_cmp_lg_u32 s%d, 0" % sLAY)
for i in range(4):
    A("v_cvt_pk_bf16_f32 v%d, v%d, v%d" % (XR + i, vT + 2 + 2 * i, vT + 3 + 2 * i))
STAMP(11)
A("s_cbranch_scc1 Lout")
A("s_mov_b32 s%d, 1" % sLAY)
if TOT or MEAS: A("s_memrealtime s[100:101]")
if DIAG: A("v_mov_b32 v28, v30")
A("s_branch Llnq")

L.append(".p2align 6"); LB("Lst_fin"); A("s_setpc_b64 %s" % sr(sRET, 2)); stubs.append("fin")
LB("Lfinal")
A("s_cmp_ge_u32 s2, 4")
A("s_cbranch_scc1 Lepoch")
C("workgroup b: reduce the 32 head partials of row b, add x2, mixer, store")
soff(sT1, [(2, 15), (sW, 13)], PB + P_L)
A("s_add_u32 s%d, s%d, 4096" % (sT2, sT1))
A("s_mul_i32 s%d, s2, %d" % (sT0, XS))
A("s_lshl_b32 s%d, s%d, 8" % (sT3, sW))
A("s_add_u32 s%d, s%d, s%d" % (sT0, sT0, sT3))
A("s_add_u32 s%d, s%d, %d" % (sT0, sT0, L_X2))
A("v_add_u32 v%d, s%d, v%d" % (vT + 4, sT0, vX1S))
A("s_add_u32 s%d, s%d, %d" % (sT3, sT3, L_XN))
A("v_add_u32 v%d, s%d, v%d" % (vT + 5, sT3, vX1S))
A("ds_read_b64 %s, v%d" % (vr(PM, 2), vT + 4))
A("ds_read_b64 %s, v%d offset:128" % (vr(PM + 2, 2), vT + 4))
A("s_mov_b32 s%d, 0x00ff00ff" % sT4)
A("s_mov_b32 s%d, 0" % sT5)
if XENT:
    A("s_cmp_lg_u32 s%d, 3" % sW)
    A("s_cbranch_scc1 Lfn3")
    A("ds_read_b32 v%d, v%d offset:48" % (vT, vFL))
    A("s_waitcnt lgkmcnt(0)")
    A("v_readfirstlane_b32 s%d, v%d" % (sT0, vT))
    A("s_cmp_eq_u32 s%d, 0" % sT0)
    A("s_cbranch_scc1 Lfn3")
    A("s_mov_b32 s%d, %s" % (sCNT, hx(TB)))
    for i in range(XENT * 4 // 1024):
        A("buffer_load_dwordx4 %s, v%d, %s, s%d offen offset:%d sc1" % (vr(W + 4 * i, 4), vL16, sr(sWS, 4), sCNT, 1024 * i))
    A("v_add_u32 v%d, %d, v%d" % (vT + 6, L_TAB, vL16))
    A("s_waitcnt vmcnt(0)")
    for i in range(XENT * 4 // 1024):
        A("ds_write_b128 v%d, %s offset:%d" % (vT + 6, vr(W + 4 * i, 4), 1024 * i))
    LB("Lfn3")
A("s_waitcnt lgkmcnt(0)")
if GW: A("s_waitcnt vmcnt(0)")
for i in range(4):
    A("v_lshlrev_b32 v%d, 16, v%d" % (PM + 4 + 2 * i, PM + i))
    A("v_and_b32 v%d, 0xffff0000, v%d" % (PM + 5 + 2 * i, PM + i))
if "bias" in OPT:
    for i in range(8): A("v_add_f32 v%d, %s, v%d" % (PM + 4 + i, hx(f2u(float(OPT["bias"]))), PM + 4 + i))
FS = [KF, VF]
def ifin(k):
    for i in range(8):
        A("buffer_load_dwordx4 %s, v%d, %s, s%d offen offset:%d sc1" % (vr(FS[k] + 4 * i, 4), vL16, sr(sWS, 4), sT1 if i < 4 else sT2, 1024 * (i & 3)))
def fs(k):
    o = []
    for i in range(4):
        o.append(mf(W + 32, SEL, FS[k] + 4 * i, None if i == 0 else W + 32))
        o.append(mf(W + 36, SEL, FS[k] + 16 + 4 * i, None if i == 0 else W + 36))
    return o
ppoll(ifin, lambda k: range(FS[k], FS[k] + 32), 8, vT, fs, pre=GPRE, gap=GGAP, tag=2,
      per_load=lambda k, i: [mf(W + 32 + 4 * (i >> 2), SEL, FS[k] + 4 * i, None if (i & 3) == 0 else W + 32 + 4 * (i >> 2))])
STAMP(9)
NOP(2)
for i in range(8):
    A("v_add_f32_dpp v%d, v%d, v%d row_ror:8 row_mask:0xf bank_mask:0xf" % (W + 32 + i, W + 32 + i, W + 32 + i))
A("s_mov_b64 exec, %s" % sr(sT4, 2))
for i in range(4):
    A("v_pk_add_f32 %s, %s, %s" % (vr(W + 32 + 2 * i, 2), vr(W + 32 + 2 * i, 2), vr(PM + 4 + 2 * i, 2)))
for i in range(4):
    A("v_cvt_pk_bf16_f32 v%d, v%d, v%d" % (W + 32 + i, W + 32 + 2 * i, W + 33 + 2 * i))
A("ds_write_b64 v%d, %s" % (vT + 5, vr(W + 32, 2)))
A("ds_write_b64 v%d, %s offset:128" % (vT + 5, vr(W + 34, 2)))
A("s_mov_b64 exec, -1")
A("s_cmp_lg_u32 s%d, 0" % sW)
A("s_waitcnt lgkmcnt(0)")
A("s_barrier")
A("s_cbranch_scc1 Lfin_exit")
A("ds_read_b128 %s, v%d" % (vr(XR, 4), vXNW))
A("s_waitcnt lgkmcnt(0)")
STAMP(10)
A("s_branch Lmix")
L.append(".p2align 6"); LB("Lst_out"); A("s_setpc_b64 %s" % sr(sRET, 2)); stubs.append("out")
LB("Lout")
A("s_lshl_b32 s%d, s2, 10" % sT0)
A("buffer_store_dwordx4 %s, v%d, %s, s%d offen" % (vr(XR, 4), vL16, sr(sOUT, 4), sT0))
if DBL:
    A("s_cmp_lg_u32 s2, 0")
    A("s_cbranch_scc1 Lfin_exit")
if DBL:
    A("s_waitcnt vmcnt(0)")
    A("s_memrealtime s[10:11]")
    A("s_waitcnt lgkmcnt(0)")
    A("s_sub_u32 s12, s10, s98")
    if "pad" in OPT:
        A("s_mov_b32 s10, s98"); A("s_mov_b32 s12, %d" % (100 * int(OPT["pad"])))
    LB("Ldbl")
    A("s_memrealtime s[14:15]")
    A("s_waitcnt lgkmcnt(0)")
    A("s_sub_u32 s13, s14, s10")
    A("s_cmp_lt_u32 s13, s12")
    A("s_cbranch_scc1 Ldbl")
LB("Lfin_exit")
if MEAS:
    src = {"mix": "s100", "entry": "s98"}.get(OPT["q"], "s98" if OPT["q"][0] == "h" else "s97")
    A("s_waitcnt vmcnt(0) lgkmcnt(0)")
    if OPT["q"] == "end":
        A("s_memrealtime s[42:43]"); A("s_waitcnt lgkmcnt(0)"); src = "s42"
    LB("Lms0")
    A("s_memrealtime s[14:15]"); A("s_waitcnt lgkmcnt(0)"); A("s_sub_u32 s13, s14, s98"); A("s_cmp_lt_u32 s13, 1600"); A("s_cbranch_scc1 Lms0")
    A("s_mov_b64 exec, 1")
    A("v_mov_b32 v16, %s" % src)
    A("s_not_b32 s10, s98")
    A("v_mov_b32 v17, s10")
    A("global_atomic_umax v[30:31], v16, off sc1")
    A("global_atomic_umax v[30:31], v17, off offset:128 sc1")
    A("s_or_b32 s10, s2, s%d" % sW)
    A("s_cmp_lg_u32 s10, 0")
    A("s_cbranch_scc1 Lend")
    LB("Lms1")
    A("s_memrealtime s[14:15]"); A("s_waitcnt lgkmcnt(0)"); A("s_sub_u32 s13, s14, s98"); A("s_cmp_lt_u32 s13, 4000"); A("s_cbranch_scc1 Lms1")
    A("global_load_dword v16, v[30:31], off sc1")
    A("global_load_dword v17, v[30:31], off offset:128 sc1")
    A("s_waitcnt vmcnt(0)")
    A("v_readfirstlane_b32 s10, v16"); A("v_readfirstlane_b32 s11, v17")
    A("s_not_b32 s11, s11"); A("s_sub_u32 s10, s10, s11"); A("s_lshl_b32 s10, s10, 2"); A("s_add_u32 s12, s10, 4200")
    A("s_min_u32 s12, s12, 20000")
    LB("Lms2")
    A("s_memrealtime s[14:15]"); A("s_waitcnt lgkmcnt(0)"); A("s_sub_u32 s13, s14, s98"); A("s_cmp_lt_u32 s13, s12"); A("s_cbranch_scc1 Lms2")
if TOT:
    A("s_waitcnt vmcnt(0)")
    A("s_memrealtime s[10:11]")
    A("s_waitcnt lgkmcnt(0)")
    A("v_mov_b32 v16, s98")
    A("v_mov_b32 v17, s10")
    A("v_mov_b32 v18, s100")
    A("v_mov_b32 v19, s97")
    soff(sT2, [(2, 6), (sW, 4)], STB)
    A("v_mov_b32 v20, 0")
    A("s_mov_b64 exec, 1")
    A("buffer_store_dwordx4 v[16:19], v20, %s, s%d offen" % (sr(sWS, 4), sT2))
if DIAG:
    A("s_waitcnt vmcnt(0)")
    STAMP(12)
    if DIAG == 2:
        A("s_or_b32 s%d, s2, s%d" % (sT0, sW))
        A("s_cmp_lg_u32 s%d, 0" % sT0)
        A("s_cbranch_scc1 Lend")
        A("v_readlane_b32 s%d, v28, 0" % sT2)
        for k, (r, i) in enumerate([(31, 10), (31, 12), (28, 1), (28, 2), (28, 6), (28, 5), (28, 7), (28, 8), (28, 9), (28, 10), (28, 11), (30, 3), (30, 5), (30, 8), (30, 9), (30, 12)]):
            A("v_readlane_b32 s%d, v%d, %d" % (sT3, r, i))
            A("s_sub_u32 s%d, s%d, s%d" % (sT3, sT3, sT2))
            A("s_nop 0")
            A("v_writelane_b32 v17, s%d, %d" % (sT3, k))
        A("v_lshlrev_b32 v16, 2, v%d" % vLANE)
        A("s_mov_b64 exec, 0xffff")
        A("global_store_dword v16, v17, s[100:101]")
        A("s_endpgm")
    soff(sT1, [(2, 10), (sW, 7)], STB)
    A("v_lshlrev_b32 v16, 2, v%d" % vLANE)
    A("s_mov_b64 exec, 0xffff")
    A("buffer_store_dword v28, v16, %s, s%d offen" % (sr(sWS, 4), sT1))
    A("buffer_store_dword v30, v16, %s, s%d offen offset:64" % (sr(sWS, 4), sT1))
    A("s_add_u32 s%d, s%d, 0x40000" % (sT1, sT1))
    A("buffer_store_dword v31, v16, %s, s%d offen" % (sr(sWS, 4), sT1))
LB("Lend")
A("s_endpgm")
LB("Lepoch")
if int(OPT.get("wb", 0)):
    A("s_cmp_lg_u32 s%d, 0" % sW)
    A("s_cbranch_scc1 Lnowb")
    A("s_waitcnt vmcnt(0)")
    A("buffer_wbl2 sc1")
    LB("Lnowb")
C("every workgroup has used the old launch tag long ago: workgroup 4 advances it")
A("s_lshl_b32 s%d, s%d, 8" % (sT0, sW))
A("s_add_u32 s%d, s%d, s2" % (sT0, sT0))
A("s_cmp_lg_u32 s%d, 4" % sT0)
A("s_cbranch_scc1 Lfin_exit")
A("v_mov_b32 v16, s%d" % sTG1)
A("v_mov_b32 v17, %s" % hx(EPO))
A("s_mov_b64 exec, 1")
A("buffer_store_dword v16, v17, %s, 0 offen sc1" % sr(sWS, 4))
A("s_mov_b64 exec, -1")
A("s_branch Lfin_exit")

L.append(".p2align 6"); LB("Lst_tab"); A("s_setpc_b64 %s" % sr(sRET, 2)); stubs.append("tab")
LB("Ltab")
C("waves 2,3: gather the main part of the g(h) table into LDS ; wave 1: the lowest octaves, best effort")
NTL = NOCT * 1024 // 2 // 1024
A("s_cmp_eq_u32 s%d, 1" % sW)
A("s_cbranch_scc1 Lext")
A("s_sub_u32 s%d, s%d, 2" % (sT1, sW))
A("s_mul_i32 s%d, s%d, %d" % (sT1, sT1, NTL * 1024))
A("s_add_u32 s%d, s%d, %d" % (sT1, sT1, XENT * 4))
A("v_add_u32 v%d, s%d, v%d" % (vT + 4, sT1, vL16))
A("v_add_u32 v%d, %d, v%d" % (vT + 4, L_TAB, vT + 4))
A("s_add_u32 s%d, s%d, %s" % (sT1, sT1, hx(TB)))
A("s_add_u32 s%d, s%d, 4096" % (sT2, sT1))
def it():
    for i in range(NTL):
        A("buffer_load_dwordx4 %s, v%d, %s, s%d offen offset:%d sc1" % (vr(W + 4 * i, 4), vL16, sr(sWS, 4), sT1 if i < 4 else sT2, 1024 * (i & 3)))
poll(it, range(W, W + 4 * NTL), vT, back="s_sleep %d" % int(OPT.get("tsl", 16)))
for i in range(NTL):
    A("ds_write_b128 v%d, %s offset:%d" % (vT + 4, vr(W + 4 * i, 4), 1024 * i))
A("s_waitcnt lgkmcnt(0)")
lds_arrive(20, vT + 4)
STAMP(9)
MP("tg")
A("s_branch Ltabdone")
def ext_load(d):
    for i in range(XENT * 4 // 1024):
        A("buffer_load_dwordx4 %s, v%d, %s, s%d offen offset:%d sc1" % (vr(d + 4 * i, 4), vL16, sr(sWS, 4), sT4, 1024 * i))
def ext_write(d):
    for i in range(XENT * 4 // 1024):
        A("ds_write_b128 v%d, %s offset:%d" % (vT + 4, vr(d + 4 * i, 4), 1024 * i))
LB("Lext")
if XENT:
    A("s_mov_b32 s%d, %s" % (sT4, hx(TB)))
    A("v_add_u32 v%d, %d, v%d" % (vT + 4, L_TAB, vL16))
    for i in range(4): A("v_mov_b32 v%d, -1" % (W + i))
    for i in range(XENT * 4 // 1024):
        A("ds_write_b128 v%d, %s offset:%d" % (vT + 4, vr(W, 4), 1024 * i))
    A("ds_write_b32 v%d, v%d offset:48" % (vFL, W))
    A("s_waitcnt lgkmcnt(0)")
lds_arrive(20, vT + 5)
if XENT:
    C("one look at the lowest octaves, skipped when x1 is already there")
    soff(sT3, [(sW, 10), (sJ, 17)], X1_OFF)
    A("s_waitcnt vmcnt(0)")
    A("buffer_load_dwordx4 %s, v%d, %s, s%d offen sc1" % (vr(XR, 4), vL16, sr(sWS, 4), sT3))
    A("s_waitcnt vmcnt(0)")
    for x in maxtree(range(XR, XR + 4), vT): A(x)
    A("v_cmp_eq_u32 vcc, -1, v%d" % vT)
    A("s_cbranch_vccz Lexx")
    A("s_mov_b32 s%d, %d" % (sCNT, int(OPT.get("xlk", 2)) - 1))
    LB("Lexl")
    A("buffer_load_dwordx4 %s, v%d, %s, s%d offen sc1" % (vr(XR, 4), vL16, sr(sWS, 4), sT3))
    if "l" in OPT.get("xs", ""): A("s_branch Ltabdone")
    ext_load(W + 32)
    A("s_waitcnt vmcnt(4)")
    for x in maxtree(range(XR, XR + 4), vT): A(x)
    A("v_cmp_eq_u32 vcc, -1, v%d" % vT)
    A("s_cbranch_vccz Lexx")
    A("s_waitcnt vmcnt(0)")
    ext_write(W + 32)
    for x in maxtree(range(W + 32, W + 48), vT): A(x)
    A("v_cmp_eq_u32 vcc, -1, v%d" % vT)
    A("s_cbranch_vccz Lexc")
    A("s_sub_u32 s%d, s%d, 1" % (sCNT, sCNT))
    A("s_cbranch_scc0 Lexl")
    A("s_branch Ltabdone")
    LB("Lexc")
    A("v_mov_b32 v%d, 0" % vT)
    A("ds_write_b32 v%d, v%d offset:48" % (vFL, vT))
    A("s_branch Ltabdone")
    LB("Lexx")
    wqf_reads()
    A("s_branch Ltw")
else:
    A("s_branch Ltabdone")
LB("Ltw")
lds_spin(20, 3, vT + 2)
A("s_branch Ltwd")

for b in ool: L += b
ool = []
LB("Lslow")
C("rare: some h lies outside the table -> evaluate g(h) directly for those lanes")
RW1 = [W + 32 + i for i in range(14)]
RB1 = [PM + i for i in range(14)]
RW2 = [16 + i for i in range(10)] + [W + 46, W + 47, PM + 14, PM + 15]
A("v_lshlrev_b32 v26, 3, v%d" % vLANE)
A("s_load_dword s%d, %s, 0" % (sB2, sr(sB2P, 2)))
for (d4, d2, s) in [([W + 32, W + 36, W + 40], W + 44, sW1), ([PM, PM + 4, PM + 8], PM + 12, sB1)]:
    for k in range(3):
        A("buffer_load_dwordx4 %s, v%d, %s, 0 offen offset:%d" % (vr(d4[k], 4), vL16, sr(s, 4), 1024 * k))
    A("buffer_load_dwordx2 %s, v26, %s, 0 offen offset:3072" % (vr(d2, 2), sr(s, 4)))
A("buffer_load_dwordx4 v[16:19], v%d, %s, 0 offen" % (vL16, sr(sW2, 4)))
A("buffer_load_dwordx4 v[20:23], v%d, %s, 0 offen offset:1024" % (vL16, sr(sW2, 4)))
A("buffer_load_dwordx2 v[24:25], v%d, %s, 0 offen offset:2048" % (vL16, sr(sW2, 4)))
A("buffer_load_dwordx2 %s, v%d, %s, 0 offen offset:2056" % (vr(W + 46, 2), vL16, sr(sW2, 4)))
A("buffer_load_dwordx2 %s, v26, %s, 0 offen offset:3072" % (vr(PM + 14, 2), sr(sW2, 4)))
A("s_waitcnt vmcnt(0) lgkmcnt(0)")
A("s_lshl_b32 s%d, s%d, 16" % (sB2, sB2))
A("s_mov_b32 s%d, 1" % sT4)
for e in range(8):
    A("v_cmp_le_u32 vcc, %d, v%d" % (NENT * 4, AD + e))
    A("v_cmp_eq_u32 %s, -1, v%d" % (sr(sH2, 2), Y + e))
    A("s_or_b64 %s, %s, vcc" % (sr(sH2, 2), sr(sH2, 2)))
    if e & 1: A("v_and_b32 v%d, 0xffff0000, v%d" % (RT + 3, HB + (e >> 1)))
    else: A("v_lshlrev_b32 v%d, 16, v%d" % (RT + 3, HB + (e >> 1)))
    LB("Lse%d" % e)
    A("s_cmp_eq_u64 %s, 0" % sr(sH2, 2))
    A("s_cbranch_scc1 Lsf%d" % e)
    A("s_ff1_i32_b64 s%d, %s" % (sT0, sr(sH2, 2)))
    A("s_nop 0")
    A("v_readlane_b32 s%d, v%d, s%d" % (sH, RT + 3, sT0))
    A("s_cmp_eq_u32 s%d, s%d" % (sH, sT4))
    A("s_cbranch_scc1 Lsg%d" % e)
    A("s_mov_b32 s%d, s%d" % (sT4, sH))
    A("s_call_b64 %s, Lgev" % sr(sRET, 2))
    LB("Lsg%d" % e)
    A("s_nop 1")
    A("v_cmp_eq_u32 vcc, s%d, v%d" % (sH, RT + 3))
    A("v_mov_b32 v%d, s%d" % (RES + 3, sY))
    A("s_andn2_b64 %s, %s, vcc" % (sr(sH2, 2), sr(sH2, 2)))
    A("v_cndmask_b32 v%d, v%d, v%d, vcc" % (Y + e, Y + e, RES + 3))
    A("s_branch Lse%d" % e)
    LB("Lsf%d" % e)
for i in range(16): A("v_mov_b32 v%d, 0" % (PM + i))
A("s_mov_b64 vcc, 0")
A("s_mov_b64 %s, 0" % sr(sH, 2))
A("s_branch Lslowdone")
LB("Lgev")
a, u, t1, z = RES, RES + 1, RES + 2, RT
A("v_mov_b32 v%d, 0" % a)
A("v_mov_b32 v%d, %s" % (RT + 1, hx(f2u(K0))))
A("v_mov_b32 v%d, %s" % (RT + 2, hx(f2u(K1))))
for p in range(14):
    for hf in range(2):
        def un(d, s):
            if hf == 0: A("v_lshlrev_b32 v%d, 16, v%d" % (d, s))
            else: A("v_and_b32 v%d, 0xffff0000, v%d" % (d, s))
        un(u, RW1[p]); un(t1, RB1[p]); un(z, RW2[p])
        A("v_fma_f32 v%d, v%d, s%d, v%d" % (u, u, sH, t1))
        A("v_mul_f32 v%d, v%d, v%d" % (t1, u, u))
        A("v_fma_f32 v%d, v%d, v%d, v%d" % (t1, t1, RT + 2, RT + 1))
        A("v_mul_f32 v%d, v%d, v%d" % (t1, t1, u))
        A("v_exp_f32 v%d, v%d" % (t1, t1))
        A("v_mul_f32 v%d, v%d, v%d" % (z, z, u))
        A("v_add_f32 v%d, 1.0, v%d" % (t1, t1))
        A("v_rcp_f32 v%d, v%d" % (t1, t1))
        A("s_nop 0")
        A("v_fmac_f32 v%d, v%d, v%d" % (a, z, t1))
A("v_mov_b32 v%d, v%d" % (u, a))
A("s_nop 1")
wave_sum2(a, u, sY, sT1)
A("s_nop 1")
A("v_mov_b32 v%d, s%d" % (a, sY))
A("v_cvt_pk_bf16_f32 v%d, v%d, v%d" % (a, a, a))
A("v_and_b32 v%d, 0xffff0000, v%d" % (a, a))
A("v_add_f32 v%d, s%d, v%d" % (a, sB2, a))
A("v_cvt_pk_bf16_f32 v%d, v%d, v%d" % (a, a, a))
A("v_and_b32 v%d, 0xffff0000, v%d" % (a, a))
A("s_nop 0")
A("v_readfirstlane_b32 s%d, v%d" % (sY, a))
A("s_nop 3")
A("s_setpc_b64 %s" % sr(sRET, 2))

for b in ool: L += b
A("s_endpgm")
L.append(".p2align 8")
L.append(".fill %d, 4, 0xBF800000" % (64 if DIAG else 512))
L.append('''.section .rodata,"a"
.p2align 6
.amdhsa_kernel %s_kernel
  .amdhsa_next_free_vgpr 256
  .amdhsa_next_free_sgpr 102
  .amdhsa_accum_offset 256
  .amdhsa_group_segment_fixed_size 0
  .amdhsa_kernarg_size 104
  .amdhsa_user_sgpr_count 2
  .amdhsa_user_sgpr_kernarg_segment_ptr 1
  .amdhsa_system_sgpr_workgroup_id_x 1
.end_amdhsa_kernel''' % NAME)
open(OUTF, "w").write("\n".join(x for x in L if x is not None) + "\n")
print("wrote", OUTF, "lines", len(L), "LDS", LDS_SZ)
```

```python
import sys, struct, math

NAME = "interleave_layers__sliding_block_cached__mixer_token_mlp__decode"
OUTF = sys.argv[1] if len(sys.argv) > 1 else "cdna_kernels/%s.s" % NAME
DIAG = int(sys.argv[2]) if len(sys.argv) > 2 else 0
DBL = 0
if DIAG == 3: DIAG = 0; DBL = 1
MEAS = 0
if DIAG == 5: DIAG = 0; MEAS = 1
TOT = 0
if DIAG == 4: DIAG = 0; TOT = 1
OPT = dict(a.split("=") for a in sys.argv[3:])
DEPTH = int(OPT.get("depth", 8))
D0 = int(OPT.get("d0", 2))
D1 = int(OPT.get("d1", 4))
DC = int(OPT.get("dc", 3))
TAILI = int(OPT.get("taili", 11))
TAILD = int(OPT.get("taild", 8))
QV = int(OPT.get("qv", 3))
PRET = int(OPT.get("pret", 1))
GW = int(OPT.get("gw", 1))
GPRE = int(OPT.get("gpre", 0))
GGAP = int(OPT.get("ggap", -1))
WARM = int(OPT.get("warm", 1))
QPRE = int(OPT.get("qpre", -1)); QGAP = int(OPT.get("qgap", -1))
OPRE = int(OPT.get("opre", -1)); OGAP = int(OPT.get("ogap", -1))
XPRE = int(OPT.get("xpre", -1)); XGAP = int(OPT.get("xgap", -1))
FINE = OPT.get("fine", "")
QS = int(OPT.get("qs", 0))
ADP = int(OPT.get("adp", 0))
ROT = int(OPT.get("rot", 1)); VROT = int(OPT.get("vrot", 0))
WROT = int(OPT.get("wrot", 1))
WOP = int(OPT.get("wop", 0))
ECO = int(OPT.get("eco", 0))
XDL = int(OPT.get("xdl", 256))
QBD = int(OPT.get("qbd", 0))
VLATE = int(OPT.get("vlate", 1))
QV2 = int(OPT.get("qv2", 0))
PROG = int(OPT.get("prog", 1))
SLC = int(OPT.get("slc", 0)); D2 = int(OPT.get("d2", 8))
HFIRST = int(OPT.get("hfirst", 0))
EFL = int(OPT.get("efl", 1))
TPF = int(OPT.get("tpf", 0)); TPF_OFF = {1: 16, 2: 12, 3: 60}.get(TPF, 16)
TGW = int(OPT.get("tgw", 0))
QT = int(OPT.get("qt", 0))
DRY = int(OPT.get("dry", 0))
HP = int(OPT.get("hp", 0))
NOCT = int(OPT.get("noct", 16))
QPOS = int(OPT.get("qpos", 1))
QPOS2 = int(OPT.get("qpos2", 7))

def f2u(x): return struct.unpack("<I", struct.pack("<f", x))[0]
def hx(x): return "0x%08x" % (x & 0xffffffff)

L = []
def A(s): L.append("    " + s)
def LB(s): L.append(s + ":")
def C(s): L.append("    ; " + s)
def vr(a, n): return "v[%d:%d]" % (a, a + n - 1)
def sr(a, n): return "s[%d:%d]" % (a, a + n - 1)
def NOP(n):
    while n > 0:
        k = min(n, 16); A("s_nop %d" % (k - 1)); n -= k

XOCT = int(OPT.get('xoct', 4))
ELO = int(OPT.get('elo', 130 - NOCT - XOCT))
LO2 = (ELO << 7) * 2
NENT = (NOCT + XOCT) * 256
XENT = XOCT * 256
assert XENT in (0, 1024)
EPW = NOCT * 256 // 256 // 4 // 2
GRS = 0x20000
O_OFF = [0x0000, 0xC400]; LSE_OFF = [0x8000, 0x14400]; Q1_OFF = 0x8400; X1_OFF = 0x14600
CLRA_PER = 1040
CLRB_OFF = 0x8400; CLRB_PER = 1680
Q0_OFF = 0x18000
EPO = 0x17f00
PB = 0x100000; P_L = 0x20000
TB = 0x140000; FB = 0x148000
QB_DELTA = 0x200000
STB = 0x300000
WS_SZ = 0x400000 if "dump" not in OPT else 0x2000000
L_WQ = 12288; L_K = L_WQ + 16384; L_V = L_K + 32768
L_WO = L_K + 16384
L_TAB = L_V
L_XN = L_V + 32768; XS = 1056
L_X2 = L_XN + 4 * XS
L_FLG = L_X2 + 4 * XS
L_RB = L_K; RBS = 2048 + 64; L_ML = L_K + 4 * RBS
L_QF = L_X2
LDS_SZ = int(OPT.get("lds", L_FLG + 64))
SPIN = 0x40000
K0 = -2.0 * math.sqrt(2.0 / math.pi) * math.log2(math.e)
K1 = K0 * 0.044715
EPS = hx(f2u(1e-5))

sTG1, sTG2 = 0, 1
sW, sJ, sA, sC, sGR, sLAY, sFAST = 3, 4, 5, 6, 7, 8, 9
sT0, sT1, sT2, sT3, sT4, sT5 = 10, 11, 12, 13, 14, 15
sCNT = 16
sQL, sQS, sOL, sOS, sLL, sLS, sPS = 17, 18, 19, 20, 21, 22, 23
sSC, sIT = 24, 25
sSUM, sSQ = 26, 27
sH, sH2, sRET, sMSK = 28, 30, 32, 34
sB2, sY, sXCC, sE = 36, 37, 38, 39
sB2P = 40
sK, sV, sWQ, sWO, sWS, sX, sOUT, sW1, sB1, sW2 = 44, 48, 52, 56, 60, 64, 68, 72, 76, 80
sKO, sKL, sVO, sVL = 84, 85, 86, 87
sPM = 88
sHC, sHT = 84, 85

def STAMP(i):
    if DIAG:
        A("s_memrealtime s[42:43]"); A("s_waitcnt lgkmcnt(0)")
        A("v_writelane_b32 v30, s42, %d" % i)

def MP(name):
    if MEAS and OPT["q"] == name:
        A("s_memrealtime s[42:43]"); A("s_waitcnt lgkmcnt(0)"); A("s_mov_b32 s97, s42")

def CST(i):
    if DIAG == 1 and FINE:
        A("s_memtime s[42:43]"); A("s_waitcnt lgkmcnt(0)")
        A("v_writelane_b32 v31, s42, %d" % i)

vLANE = 1
vL16, vQST, vOST, vOLD, vPST, vX1S, vXNW, vXNR, vRBW, vRBR, vMLW, vMLR, vLSE, vZ = range(2, 16)
vT = 16
vWT, vFL = 28, 29
vLS2 = 27
KF, VF, WQF, WOF, SEL, ONES = 32, 64, 96, 112, 176, 180
W = 184
PM = 232
XR = 248
RES = 252

def srd(s, nbytes):
    A("s_mov_b32 s%d, %s" % (s + 2, hx(nbytes))); A("s_mov_b32 s%d, 0x00020000" % (s + 3))

def soff(dst, terms, const):
    first = True
    for (src, sh) in terms:
        if first: A("s_lshl_b32 s%d, s%d, %d" % (dst, src, sh)); first = False
        else:
            A("s_lshl_b32 s%d, s%d, %d" % (sT0, src, sh)); A("s_add_u32 s%d, s%d, s%d" % (dst, dst, sT0))
    if const: A("s_add_u32 s%d, s%d, %s" % (dst, dst, hx(const)))

def wave_sum2(a, b, sa, sb):
    for ctl in ["row_ror:8", "row_ror:4", "row_ror:2", "row_ror:1"]:
        A("v_add_f32_dpp v%d, v%d, v%d %s row_mask:0xf bank_mask:0xf" % (a, a, a, ctl))
        A("v_add_f32_dpp v%d, v%d, v%d %s row_mask:0xf bank_mask:0xf" % (b, b, b, ctl))
        A("s_nop 0")
    for ctl in ["row_bcast:15 row_mask:0xa", "row_bcast:31 row_mask:0xc"]:
        A("v_add_f32_dpp v%d, v%d, v%d %s bank_mask:0xf" % (a, a, a, ctl))
        A("v_add_f32_dpp v%d, v%d, v%d %s bank_mask:0xf" % (b, b, b, ctl))
        A("s_nop 0")
    A("v_readlane_b32 s%d, v%d, 63" % (sa, a))
    A("v_readlane_b32 s%d, v%d, 63" % (sb, b))

def row_stats(x, t, unp):
    A("v_dot2_f32_bf16 v%d, v%d, v%d, 0" % (t, x, ONES))
    A("v_dot2_f32_bf16 v%d, v%d, v%d, 0" % (t + 1, x, x))
    for i in range(1, 4):
        A("v_dot2_f32_bf16 v%d, v%d, v%d, v%d" % (t, x + i, ONES, t))
        A("v_dot2_f32_bf16 v%d, v%d, v%d, v%d" % (t + 1, x + i, x + i, t + 1))
    un = []
    for i in range(4):
        un.append("v_lshlrev_b32 v%d, 16, v%d" % (unp + 2 * i, x + i))
        un.append("v_and_b32 v%d, 0xffff0000, v%d" % (unp + 2 * i + 1, x + i))
    for k in range(3): A(un.pop(0))
    a, b = t, t + 1
    for ctl in ["row_ror:8 row_mask:0xf", "row_ror:4 row_mask:0xf", "row_ror:2 row_mask:0xf", "row_ror:1 row_mask:0xf", "row_bcast:15 row_mask:0xa", "row_bcast:31 row_mask:0xc"]:
        A("v_add_f32_dpp v%d, v%d, v%d %s bank_mask:0xf" % (a, a, a, ctl))
        A("v_add_f32_dpp v%d, v%d, v%d %s bank_mask:0xf" % (b, b, b, ctl))
        A(un.pop(0) if un else "s_nop 0")
    A("v_readlane_b32 s%d, v%d, 63" % (sSUM, a))
    A("v_readlane_b32 s%d, v%d, 63" % (sSQ, b))
    A("s_nop 0")
    A("v_mul_f32 v%d, s%d, v%d" % (t, sSUM, vZ))
    A("v_mul_f32 v%d, s%d, v%d" % (t + 1, sSQ, vZ))
    A("v_fma_f32 v%d, -v%d, v%d, v%d" % (t + 1, t, t, t + 1))
    A("v_max_f32 v%d, 0, v%d" % (t + 1, t + 1))

ool = []
uid = [0]
def maxtree(regs, tmp):
    r = list(regs); out = []
    out.append("v_max3_u32 v%d, v%d, v%d, v%d" % (tmp, r[0], r[1], r[2])); r = r[3:]
    if len(r) >= 5:
        out.append("v_max3_u32 v%d, v%d, v%d, v%d" % (tmp + 1, r[0], r[1], r[2])); r = r[3:]
        d = 0
        while len(r) >= 2:
            out.append("v_max3_u32 v%d, v%d, v%d, v%d" % (tmp + d, tmp + d, r[0], r[1])); r = r[2:]; d ^= 1
        if r: out.append("v_max3_u32 v%d, v%d, v%d, v%d" % (tmp, tmp, tmp + 1, r[0]))
        else: out.append("v_max_u32 v%d, v%d, v%d" % (tmp, tmp, tmp + 1))
    else:
        while len(r) >= 2:
            out.append("v_max3_u32 v%d, v%d, v%d, v%d" % (tmp, tmp, r[0], r[1])); r = r[2:]
        if r: out.append("v_max_u32 v%d, v%d, v%d" % (tmp, tmp, r[0]))
    return out

def poll(issue, regs, tmp, pre_wait=None, spec=None, back="s_nop 7", tag=None, stub=None):
    uid[0] += 1; u = uid[0]
    A("s_mov_b32 s%d, %s" % (sCNT, hx(SPIN)))
    LB("Lp%d" % u)
    issue()
    if pre_wait: pre_wait()
    A("s_waitcnt vmcnt(0)")
    mt = maxtree(regs, tmp) + ["v_cmp_eq_u32 vcc, -1, v%d" % tmp]
    spec = list(spec or [])
    ns = len(spec)
    per = -(-len(mt) // ns) if ns else 0
    for s in spec:
        A(s)
        for k in range(per):
            if mt: A(mt.pop(0))
    for m in mt: A(m)
    A("s_cbranch_vccz Ld%d" % u)
    A("s_sub_u32 s%d, s%d, 1" % (sCNT, sCNT))
    if back != "s_nop 7": A(back)
    A("s_cbranch_scc0 Lp%d" % u)
    if stub: touch_stub(stub)
    LB("Ld%d" % u)
    if DIAG and tag is not None:
        A("s_lshl_b32 m0, s%d, 2" % sLAY); A("s_add_u32 m0, m0, %d" % tag); A("s_nop 0")
        A("v_writelane_b32 v31, s%d, m0" % sCNT)

stubs = []
def touch_stub(name, branch_over=None):
    A("s_branch Lsk_%s" % name)
    L.append(".p2align 6")
    LB("Lst_%s" % name)
    A("s_setpc_b64 %s" % sr(sRET, 2))
    LB("Lsk_%s" % name)
    stubs.append(name)

def delay(cyc):
    if cyc == -1:
        A("s_waitcnt vmcnt(0)"); return
    while cyc >= 64:
        k = min(cyc // 64, 15); A("s_sleep %d" % k); cyc -= 64 * k
    if cyc >= 8: A("s_nop %d" % min(15, cyc // 4 - 1))

def ppoll(issue, regs, n, tmp, spec, pre=0, gap=128, mid=None, tag=None, fix=None, stub=None, lanes=None, per_load=None):
    uid[0] += 1; u = uid[0]
    def look(k):
        if per_load and PROG and gap < 0:
            r = list(regs(k)); out = []
            for i in range(n):
                out.append("s_waitcnt vmcnt(%d)" % (n - 1 - i))
                sp = list(per_load(k, i))
                ck = ["v_max3_u32 v%d, v%d, v%d, v%d" % (tmp + 1, r[4 * i], r[4 * i + 1], r[4 * i + 2]),
                      ("v_max_u32 v%d, v%d, v%d" % (tmp, tmp + 1, r[4 * i + 3])) if i == 0 else ("v_max3_u32 v%d, v%d, v%d, v%d" % (tmp, tmp, tmp + 1, r[4 * i + 3]))]
                while sp or ck:
                    if sp: out.append(sp.pop(0))
                    if ck: out.append(ck.pop(0))
            return out + ["v_cmp_eq_u32 vcc, -1, v%d" % tmp]
        out = ["s_waitcnt vmcnt(%d)" % (n if k == 0 else 0)]
        mt = maxtree(regs(k), tmp) + ["v_cmp_eq_u32 vcc, -1, v%d" % tmp]
        sp = list(spec(k)); per = -(-len(mt) // len(sp)) if sp else 0
        for x in sp:
            out.append(x)
            for _ in range(per):
                if mt: out.append(mt.pop(0))
        return out + mt + (["s_and_b64 vcc, vcc, %s" % sr(lanes, 2)] if lanes else [])
    A("s_mov_b32 s%d, %s" % (sCNT, hx(SPIN)))
    delay(pre)
    fine = FINE and tag == int(FINE)
    if fine: CST(8)
    LB("Lp%d" % u)
    issue(0)
    if fine and 0: CST(9)
    if mid: mid()
    if gap >= 0: delay(gap)
    if gap >= 0: issue(1)
    lk = look(0)
    if gap < 0 and not (per_load and PROG): lk[0] = "s_waitcnt vmcnt(0)"
    for k, x in enumerate(lk):
        A(x)
        if fine and k == 0: CST(13)
    if fine: CST(14)
    A("s_cbranch_vccz Ld%d" % u)
    if gap < 0: issue(1)
    A("s_sub_u32 s%d, s%d, 1" % (sCNT, sCNT))
    for x in look(1): A(x)
    for x in (fix or []): A(x)
    A("s_cbranch_vccz Ld%d" % u)
    A("s_sub_u32 s%d, s%d, 1" % (sCNT, sCNT))
    A("s_cmp_gt_i32 s%d, 0" % sCNT)
    A("s_cbranch_scc1 Lp%d" % u)
    if stub: touch_stub(stub)
    LB("Ld%d" % u)
    if fine: CST(15)
    if DIAG and tag is not None:
        A("s_lshl_b32 m0, s%d, 2" % sLAY); A("s_add_u32 m0, m0, %d" % tag); A("s_nop 0")
        A("v_writelane_b32 v31, s%d, m0" % sCNT)

def lds_spin(off, target, tmp, mask=None, sleep=0):
    uid[0] += 1; u = uid[0]
    A("s_mov_b32 s%d, %s" % (sT2, hx(SPIN * 4)))
    LB("Ls%d" % u)
    A("ds_read_b32 v%d, v%d offset:%d" % (tmp, vFL, off))
    A("s_waitcnt lgkmcnt(0)")
    A("v_readfirstlane_b32 s%d, v%d" % (sT1, tmp))
    if mask: A("s_and_b32 s%d, s%d, %d" % (sT0, sT1, mask))
    A("s_cmp_ge_u32 s%d, %d" % (sT0 if mask else sT1, target))
    A("s_cbranch_scc1 Lt%d" % u)
    if sleep: A("s_sleep %d" % sleep)
    A("s_sub_u32 s%d, s%d, 1" % (sT2, sT2))
    A("s_cbranch_scc0 Ls%d" % u)
    LB("Lt%d" % u)

def lds_arrive(off, tmp, val=1):
    if val is not None: A("v_mov_b32 v%d, %d" % (tmp, val))
    A("s_mov_b64 exec, 1")
    A("ds_add_u32 v%d, v%d offset:%d" % (vFL, tmp, off))
    A("s_mov_b64 exec, -1")

def store_local(op, data, vaddr, so):
    uid[0] += 1; u = uid[0]
    A("s_cbranch_scc1 Lw%d" % u)
    A("%s %s, v%d, %s, s%d offen" % (op, data, vaddr, sr(sWS, 4), so))
    LB("Lx%d" % u)
    ool.append(["Lw%d:" % u, "    %s %s, v%d, %s, s%d offen sc1" % (op, data, vaddr, sr(sWS, 4), so), "    s_branch Lx%d" % u])
def fastcmp(): A("s_cmp_eq_u32 s%d, 0" % sFAST)

def mf(d, a, b, c):
    return "v_mfma_f32_16x16x32_bf16 %s, %s, %s, %s" % (vr(d, 4), vr(a, 4), vr(b, 4), "0" if c is None else vr(c, 4))
def mfma(d, a, b, c): A(mf(d, a, b, c))

def tags():
    A("s_add_u32 s%d, s%d, 1" % (sTG1, sE))
    A("s_mul_i32 s%d, s%d, 0x9E3779B1" % (sTG2, sTG1))
    A("s_and_b32 s%d, s%d, -8" % (sTG2, sTG2))

def common_addr():
    A("v_and_b32 v18, 3, v%d" % vLANE)
    A("v_lshlrev_b32 v%d, 12, v17" % vQST)
    A("v_lshrrev_b32 v24, 1, v16")
    A("v_lshl_add_u32 v%d, v24, 8, v%d" % (vQST, vQST))
    A("v_and_b32 v24, 1, v16")
    A("v_lshl_add_u32 v%d, v24, 3, v%d" % (vQST, vQST))
    A("v_lshlrev_b32 v%d, 4, v24" % vLSE)
    A("s_mul_i32 s%d, s%d, %d" % (sT0, sW, XS))
    A("s_add_u32 s%d, s%d, %d" % (sT0, sT0, L_XN))
    A("v_add_u32 v%d, s%d, v%d" % (vXNW, sT0, vL16))
    A("s_lshl_b32 s%d, s%d, 8" % (sT0, sA))
    A("s_add_u32 s%d, s%d, %d" % (sT0, sT0, L_XN))
    A("v_mul_u32_u24 v25, %d, v18" % XS)
    A("v_lshl_add_u32 v25, v16, 4, v25")
    A("v_add_u32 v%d, s%d, v25" % (vXNR, sT0))
    A("v_mov_b32 v%d, %s" % (vZ, hx(f2u(1.0 / 512))))
    for r in range(4): A("v_mov_b32 v%d, 0x3f803f80" % (ONES + r))
    A("s_and_b32 s%d, s%d, 1" % (sT1, sC))
    A("s_lshr_b32 s%d, s%d, 1" % (sT2, sC))
    soff(sQS, [(sT1, 11), (sW, 9), (sA, 6), (sT2, 4)], 0)
    A("v_bfe_u32 v24, v%d, 2, 2" % vLANE)
    A("v_lshl_add_u32 v24, v16, 3, v24")
    A("v_lshlrev_b32 v24, 7, v24")
    A("v_bfe_u32 v25, v%d, 3, 2" % vLANE)
    A("v_lshlrev_b32 v25, 1, v25")
    A("v_bfe_u32 v26, v%d, 1, 1" % vLANE)
    A("v_xor_b32 v25, v25, v26")
    A("v_lshl_add_u32 v24, v25, 4, v24")
    A("v_and_b32 v26, 1, v%d" % vLANE)
    A("v_lshl_add_u32 v%d, v26, 3, v24" % vWT)
    A("s_mov_b32 s%d, 0x000f000f" % sMSK)
    A("s_mov_b32 s%d, 0x000f000f" % (sMSK + 1))
    A("s_mov_b32 s%d, 0" % sLAY)

def wtile_voff(shift, d):
    A("v_lshrrev_b32 v24, 3, v%d" % vLANE)
    A("v_and_b32 v25, 7, v%d" % vLANE)
    A("v_and_b32 v26, 1, v16")
    A("v_lshlrev_b32 v26, 1, v26")
    A("v_xor_b32 v25, v25, v26")
    A("v_lshlrev_b32 v25, 4, v25")
    A("v_lshl_add_u32 v%d, v24, %d, v25" % (d, shift))
    A("v_xor_b32 v%d, 64, v%d" % (d + 1, d))

def wqf_reads():
    A("s_lshl_b32 s%d, s%d, 5" % (sT1, sW))
    A("v_xor_b32 v26, s%d, v%d" % (sT1, vWT))
    for t in range(4):
        for hf in range(2):
            A("ds_read_b64_tr_b16 %s, v26 offset:%d" % (vr(WQF + 4 * t + 2 * hf, 2), L_WQ + 4096 * t + 512 * hf))

def dma(vaddr, srdn, so, lds_s, step_so, flags="nt"):
    A("s_mov_b32 m0, s%d" % lds_s)
    A("s_add_u32 s%d, s%d, 1024" % (lds_s, lds_s))
    A("buffer_load_dwordx4 v%d, %s, s%d offen %s lds" % (vaddr, sr(srdn, 4), so, flags))
    A("s_add_u32 s%d, s%d, %d" % (so, so, step_so))

hdr = open("cdna_kernels/%s.s.ref" % NAME).read().split("; Override launch")[0]
L.append(hdr.rstrip("\n") + """
;
; One persistent launch, 256 workgroups (one per CU) x 8 waves.  wg = A(2b):C(3b):j(3b); j = kv head.
; K, V, wq and wo are read from HBM exactly once (LDS-DMA) and stay in registers for both attention layers.
;   roles of a workgroup:  attention (batch A, keys 128C..), q projection (wq rows 128A.., 64 columns C),
;                          output projection (head A of group j, 64 columns C), row reduction (batch A, columns 64C..)
;   waves 0-3: stream K/V, attention, output projection, LayerNorm + mixer + next q projection
;   waves 4-7: first q projection, then the token-mixer MLP g(h) = sum_f gelu(h w1 + b1) w2 + b2 evaluated
;              exactly (all 1792 hidden units) for every bf16 value h with 2^-17 <= |h| < 8; h is a bf16 tensor in the
;              reference, so the mixer is a lookup of these values; any other h is evaluated directly (Lslow).
; Hand-offs between workgroups go through d_ws.  Slots are filled with a sentinel at the start of the launch and a
; consumer polls until no sentinel is left; the first hand-off (q) and the "sentinels are in place" announcements
; carry a tag derived from a word that every launch advances.  Stores inside a kv-head group are plain when the
; whole group reports the same XCC id, write-through otherwise; every poll is bounded.
""".rstrip("\n"))
L.append("; @launch grid=(256,1,1) block=(512,1,1) lds=%d" % LDS_SZ)
L.append('.amdgcn_target "amdgcn-amd-amdhsa--gfx950"')
L.append(".text\n" + (".p2align 12\n" if int(OPT.get("al", 0)) else "") + ".globl %s_kernel\n.p2align 8\n.type %s_kernel,@function\n%s_kernel:" % (NAME, NAME, NAME))
if DIAG: A("s_memrealtime s[42:43]")
if DBL or TOT or MEAS: A("s_memrealtime s[98:99]")
sM = 96
A("s_lshr_b32 s%d, s2, 8" % sT0)
A("s_cbranch_scc1 Lend")
A("s_load_dwordx2 %s, s[0:1], 24" % sr(sWQ, 2))
A("s_load_dwordx4 %s, s[0:1], 0" % sr(sT2, 4))
A("v_readfirstlane_b32 s%d, v0" % sW)
C("every wave pulls one line of this kernel's code into L2 (plain read): 32 workgroups x 4 lines")
A("s_getpc_b64 s[10:11]")
LB("Lpc0")
A("s_lshr_b32 s%d, s2, 3" % sM)
A("s_lshl_b32 s%d, s%d, 9" % (sCNT, sM))
A("s_cmp_lg_u32 s%d, 0" % sW)
A("s_cbranch_scc1 Lnopf")
A("v_and_b32 v19, 3, v0")
A("v_lshl_add_u32 v19, v19, 7, s%d" % sCNT)
A("global_load_dword v%d, v19, s[10:11]" % (W + 8))
LB("Lnopf")
A("s_and_b32 s%d, s2, 7" % sJ)
A("s_lshr_b32 s%d, s2, 6" % sA)
A("s_and_b32 s%d, s%d, 7" % (sC, sM))
A("s_lshl_b32 s%d, 1, 17" % (sWQ + 3))
A("s_bitcmp1_b32 s%d, 8" % sW)
A("s_cbranch_scc1 Lhelp0")
vKA, vVA = W + 40, W + 44
sRO, sRM = sVO, 97 if not TOT else 94
if TOT: sRM = sOL
def kv_issue(i):
    A("s_add_u32 m0, s%d, s%d" % (sKL if i < 8 else sVL, sRO))
    A("s_add_u32 s%d, s%d, s%d" % (sCNT, sKO, sRO))
    if i < 8: A("buffer_load_dwordx4 v%d, %s, s%d offen nt lds" % (vKA + (i & 3), sr(sK, 4), sCNT))
    else: A("buffer_load_dwordx4 v%d, %s, s%d offen nt lds" % (vVA + (i & 1), sr(sV, 4), sCNT))
    A("s_addk_i32 s%d, %d" % (sRO, 1024 + (VROT * 1024 if i == 7 else 0)))
    A("s_and_b32 s%d, s%d, 0x1fff" % (sRO, sRO))
def lane_init():
    A("v_and_b32 v%d, 63, v0" % vLANE)
    A("v_mov_b32 v%d, %d" % (vFL, L_FLG))
    A("v_lshlrev_b32 v%d, 4, v%d" % (vL16, vLANE))
    A("v_lshrrev_b32 v16, 4, v%d" % vLANE)
    A("v_and_b32 v17, 15, v%d" % vLANE)
    A("v_mov_b32 v20, 0")
    if DIAG: A("v_mov_b32 v30, 0")
C("wq tile DMA: instruction i, thread t: row 32 i + (t>>3), 16-byte chunk (t&7) ^ swizzle")
A("v_lshrrev_b32 v23, 3, v0")
A("v_and_b32 v22, 7, v0")
A("v_and_b32 v24, 2, v23")
A("v_lshrrev_b32 v25, 1, v23")
A("v_and_or_b32 v24, v25, 4, v24")
A("v_xor_b32 v22, v22, v24")
A("v_lshlrev_b32 v22, 4, v22")
A("v_lshl_add_u32 v22, v23, 13, v22")
soff(sQL, [(sA, 20), (sJ, 10), (sC, 7)], 0)
A("s_lshl_b32 s%d, 1, 22" % (sWQ + 2))
A("s_lshl_b32 s%d, 1, 18" % sT1)
A("s_lshl_b32 s%d, s%d, 4" % (sQS, sW))
A("s_add_u32 m0, s%d, %d" % (sQS, L_WQ))
A("v_lshlrev_b32 v21, 4, v0")
A("s_waitcnt lgkmcnt(0)")
A("global_load_dwordx4 %s, v21, %s" % (vr(XR, 4), sr(sT2, 2)))
for i in range(4):
    if i:
        A("s_addk_i32 m0, 0x1000")
        A("s_add_u32 s%d, s%d, s%d" % (sQL, sQL, sT1))
    A("buffer_load_dwordx4 v22, %s, s%d offen nt lds" % (sr(sWQ, 4), sQL))
def main_early2():
    lane_init()
    A("s_lshl_b32 s%d, 1, 25" % (sK + 2)); A("s_mov_b32 s%d, s%d" % (sK + 3, sWQ + 3))
    A("s_mov_b64 %s, %s" % (sr(sK, 2), sr(sT4, 2)))
    A("v_xor_b32 v18, v17, v16")
    A("v_lshlrev_b32 v18, 4, v18")
    A("v_lshl_add_u32 v%d, v16, 8, v18" % vKA)
    A("s_lshl_b32 s%d, s%d, 10" % (sRO, sC))
    A("s_bfe_u32 s%d, s%d, 0x2000a" % (sT1, sRO))
    A("s_lshl_b32 s%d, s%d, 6" % (sT1, sT1))
    for k in range(1, 4):
        A("s_add_u32 s%d, s%d, %d" % (sCNT, sT1, 64 * k))
        A("s_and_b32 s%d, s%d, 0xc0" % (sCNT, sCNT))
        A("v_xor_b32 v%d, s%d, v%d" % (vKA + k, sCNT, vKA))
    A("v_xor_b32 v%d, s%d, v%d" % (vKA, sT1, vKA))
    soff(sKO, [(sA, 23), (sJ, 20), (sC, 15), (sW, 7)], 3072 * 256)
    A("s_add_u32 s%d, s%d, %d" % (sKL, sT0, L_K))
    for i in range(D0): kv_issue(i)
    A("s_add_u32 s%d, s%d, %d" % (sVL, sT0, L_V))
    A("s_lshr_b32 s%d, s%d, 6" % (sW, sW))
    if DIAG: A("v_writelane_b32 v30, s42, 0")
    STAMP(10)
    A("s_branch Lmain")

if HFIRST: A("s_branch Lmain1")
else: main_early2()
LB("Lhelp0")
C("---- helper waves: the table of g over bf16 inputs ----")
HW1, HB1, HW2 = 32, 60, 112
hK0, hK1, hONE, hRES = 88, 90, 92, 94
AC = [140, 142]
for s, off in [(sW1, 48), (sB1, 56), (sW2, 64), (sWS, 96), (sB2P, 72)]:
    A("s_load_dwordx2 %s, s[0:1], %d" % (sr(s, 2), off))
lane_init()
A("v_mov_b32 v21, 0")
for k in range(4): A("ds_write_b64 v%d, v[20:21] offset:%d" % (vFL, 8 * k))
A("ds_write_b32 v%d, v20 offset:44" % vFL)
A("ds_write_b32 v%d, v20 offset:60" % vFL)
A("s_bfe_u32 s%d, s%d, 0x20006" % (sW, sW))
srd(sWS, WS_SZ)
for s in [sW1, sB1, sW2]: srd(s, 3584)
for i in range(4): A("v_mov_b32 v%d, -1" % (PM + i))
A("s_waitcnt lgkmcnt(0)")
A("s_lshl_b32 s%d, s%d, 10" % (sT3, sW))
A("s_mul_i32 s%d, s%d, %d" % (sT5, sM, CLRA_PER))
A("s_lshl_b32 s%d, s%d, 17" % (sGR, sJ))
A("s_add_u32 s%d, s%d, s%d" % (sT5, sT5, sGR))
A("s_add_u32 s%d, s%d, 1024" % (sT4, sT5))
A("s_lshl_b32 s%d, s%d, 7" % (sT1, sM))
A("v_mov_b32 v19, s%d" % sT1)
def h_coef():
    A("s_mov_b32 m0, s%d" % sT3)
    for i, sd in enumerate([sW1, sB1, sW2]):
        if i: A("s_addk_i32 m0, 0x1000")
        A("s_nop 0")
        A("buffer_load_dwordx4 v%d, %s, s%d offen lds" % (vL16, sr(sd, 4), sT3))
C("hw0, hw1: early sentinels (O0, LSE0) ; hw3: a slice of each coefficient array into L2")
A("s_cmp_ge_u32 s%d, 2" % sW)
A("s_cbranch_scc1 Lhc_pf")
A("s_cmp_eq_u32 s%d, 0" % sW)
A("s_cselect_b32 s%d, s%d, s%d" % (sT5, sT5, sT4))
A("s_cselect_b64 exec, -1, 1")
A("buffer_store_dwordx4 %s, v%d, %s, s%d offen sc1" % (vr(PM, 4), vL16, sr(sWS, 4), sT5))
A("s_branch Lhc_skip")
LB("Lhc_pf")
if SLC:
    A("s_cmp_eq_u32 s%d, 2" % sW)
    A("s_cbranch_scc1 Lhc_skip")
    A("s_mov_b64 exec, 1")
    for k, sd in enumerate([sW1, sB1, sW2]): A("buffer_load_dword v%d, v19, %s, 0 offen" % (W + k, sr(sd, 4)))
LB("Lhc_skip")
A("s_mov_b64 exec, -1")
if not SLC: h_coef()
A("s_load_dword s%d, %s, 0" % (sB2, sr(sB2P, 2)))
if MEAS:
    A("s_load_dwordx2 s[42:43], s[0:1], 88"); A("s_waitcnt lgkmcnt(0)"); A("v_mov_b32 v30, s42"); A("v_mov_b32 v31, s43")
if DIAG: A("v_writelane_b32 v30, s42, 0")
STAMP(9)
A("s_barrier")
if HFIRST:
    A("s_branch Lhelp1")
    LB("Lmain1")
    main_early2()
    LB("Lhelp1")
A("s_lshl_b32 s%d, s2, 2" % sHC)
A("s_add_u32 s%d, s%d, s%d" % (sHC, sHC, sW))
sHX = 86
if XENT:
    C("extra entry e = wave index: |h| code ELO*128 + (e>>1), sign e&1")
    A("s_lshr_b32 s%d, s%d, 1" % (sHX, sHC))
    A("s_add_u32 s%d, s%d, %d" % (sHX, sHX, ELO * 128))
    A("s_lshl_b32 s%d, s%d, 16" % (sHX, sHX))
    A("s_lshl_b32 s%d, s%d, 31" % (sT0, sHC))
    A("s_or_b32 s%d, s%d, s%d" % (sHX, sHX, sT0))
A("s_mul_i32 s%d, s%d, %d" % (sHC, sHC, EPW))
A("s_lshl_b32 s%d, s%d, 3" % (sHT, sHC))
A("s_add_u32 s%d, s%d, %d" % (sHT, sHT, XENT * 4))
A("s_add_u32 s%d, s%d, %d" % (sHC, sHC, ELO * 128 + XENT // 2))
A("s_lshl_b32 s%d, s%d, 16" % (sHC, sHC))
A("v_lshlrev_b32 v27, 2, v%d" % vLANE)
A("v_add_u32 v27, s%d, v27" % sHT)
A("s_mov_b32 s%d, %s" % (sHT, hx(TB)))
for r, c in [(hK0, K0), (hK1, K1), (hONE, 1.0)]:
    A("v_mov_b32 v%d, %s" % (r, hx(f2u(c)))); A("v_mov_b32 v%d, %s" % (r + 1, hx(f2u(c))))
A("v_mov_b32 v%d, 0" % hRES)
A("s_mov_b32 s%d, 0" % sIT)
if WARM:
    C("warm the instruction cache lines at the far jump targets of the main waves")
    for k, nm in enumerate(["k", "fin", "out", "tab"]):
        A("s_cmp_lg_u32 s%d, %d" % (sW, k))
        A("s_cbranch_scc1 Lwm%d" % k)
        A("s_call_b64 %s, Lst_%s" % (sr(sRET, 2), nm))
        if nm == "out": A("s_call_b64 %s, Lst_mq" % sr(sRET, 2))
        LB("Lwm%d" % k)
HR = W + 8
A("v_lshlrev_b32 v26, 3, v%d" % vLANE)
if SLC:
    C("slices are in L2 once hw3's own have returned")
    A("s_waitcnt vmcnt(0)")
    lds_arrive(0, 24)
    A("s_cmp_lg_u32 s%d, 3" % sW)
    A("s_cbranch_scc1 Lhs1")
    lds_arrive(52 - 8, 24)
    LB("Lhs1")
    lds_spin(52 - 8, 1, 24, sleep=1)
    h_coef()
    A("s_waitcnt vmcnt(0)")
else:
    A("s_waitcnt vmcnt(3)")
    lds_arrive(0, 24)
    A("s_waitcnt vmcnt(0)")
STAMP(1)
lds_arrive(24, 24)
lds_spin(24, 4, 24)
for a_ in range(3):
    for k in range(3):
        A("ds_read_b128 %s, v%d offset:%d" % (vr(HR + 14 * a_ + 4 * k, 4), vL16, 4096 * a_ + 1024 * k))
    A("ds_read_b64 %s, v26 offset:%d" % (vr(HR + 14 * a_ + 12, 2), 4096 * a_ + 3072))
for a_, d in [(0, HW1), (14, HB1), (28, HW2)]:
    A("s_waitcnt lgkmcnt(%d)" % (8 - 4 * (a_ // 14)))
    for p in range(14):
        A("v_lshlrev_b32 v%d, 16, v%d" % (d + 2 * p, HR + a_ + p))
        A("v_and_b32 v%d, 0xffff0000, v%d" % (d + 2 * p + 1, HR + a_ + p))
STAMP(4)
MP("hst")
if DIAG:
    A("s_memtime s[42:43]"); A("s_waitcnt lgkmcnt(0)"); A("v_writelane_b32 v30, s42, 13")
LB("Lhl")
if DIAG:
    A("s_memrealtime s[42:43]"); A("s_add_u32 m0, s%d, 10" % sIT); A("s_waitcnt lgkmcnt(0)"); A("v_writelane_b32 v30, s42, m0")
A("s_mov_b32 s%d, s%d" % (sH, sHC)); A("s_mov_b32 s%d, s%d" % (sH + 1, sHC))
A("s_xor_b32 s%d, s%d, 0x80000000" % (sH2, sHC)); A("s_mov_b32 s%d, s%d" % (sH2 + 1, sH2))
U4 = [144, 146, 148, 150]; T4 = [152, 154, 156, 158]; Z4 = [160, 162, 164, 166]
for p2 in range(7):
    ch = [(2 * p2 + k // 2, k & 1) for k in range(4)]
    for k, (p, sg) in enumerate(ch):
        A("v_pk_fma_f32 %s, %s, %s, %s" % (vr(U4[k], 2), vr(HW1 + 2 * p, 2), sr([sH, sH2][sg], 2), vr(HB1 + 2 * p, 2)))
    for k in range(4): A("v_pk_mul_f32 %s, %s, %s" % (vr(T4[k], 2), vr(U4[k], 2), vr(U4[k], 2)))
    for k in range(4): A("v_pk_fma_f32 %s, %s, %s, %s" % (vr(T4[k], 2), vr(T4[k], 2), vr(hK1, 2), vr(hK0, 2)))
    for k in range(4): A("v_pk_mul_f32 %s, %s, %s" % (vr(T4[k], 2), vr(T4[k], 2), vr(U4[k], 2)))
    for k in range(4):
        for h in range(2): A("v_exp_f32 v%d, v%d" % (T4[k] + h, T4[k] + h))
    for k, (p, sg) in enumerate(ch): A("v_pk_mul_f32 %s, %s, %s" % (vr(Z4[k], 2), vr(U4[k], 2), vr(HW2 + 2 * p, 2)))
    for k in range(4): A("v_pk_add_f32 %s, %s, %s" % (vr(T4[k], 2), vr(T4[k], 2), vr(hONE, 2)))
    for k in range(4):
        for h in range(2): A("v_rcp_f32 v%d, v%d" % (T4[k] + h, T4[k] + h))
    for k, (p, sg) in enumerate(ch):
        if p == 0: A("v_pk_mul_f32 %s, %s, %s" % (vr(AC[sg], 2), vr(Z4[k], 2), vr(T4[k], 2)))
        else: A("v_pk_fma_f32 %s, %s, %s, %s" % (vr(AC[sg], 2), vr(Z4[k], 2), vr(T4[k], 2), vr(AC[sg], 2)))
A("v_add_f32 v%d, v%d, v%d" % (AC[0], AC[0], AC[0] + 1))
A("v_add_f32 v%d, v%d, v%d" % (AC[1], AC[1], AC[1] + 1))
A("s_lshl_b32 m0, s%d, 1" % sIT)
A("s_add_u32 s%d, s%d, 0x10000" % (sHC, sHC))
wave_sum2(AC[0], AC[1], sSUM, sSQ)
A("s_add_u32 s%d, s%d, 1" % (sIT, sIT))
A("s_nop 0")
A("v_writelane_b32 v%d, s%d, m0" % (hRES, sSUM))
A("s_add_u32 m0, m0, 1")
A("s_cmp_lg_u32 s%d, %d" % (sIT, EPW))
A("v_writelane_b32 v%d, s%d, m0" % (hRES, sSQ))
A("s_cbranch_scc1 Lhl")
def h_publish(lanes):
    A("v_cvt_pk_bf16_f32 v%d, v%d, v%d" % (hRES, hRES, hRES))
    A("v_and_b32 v%d, 0xffff0000, v%d" % (hRES, hRES))
    A("v_add_f32 v%d, s%d, v%d" % (hRES, sB2, hRES))
    A("v_cvt_pk_bf16_f32 v%d, v%d, v%d" % (hRES, hRES, hRES))
    A("v_and_b32 v%d, 0xffff0000, v%d" % (hRES + 1, hRES))
    A("s_mov_b64 exec, %d" % lanes)
    A("buffer_store_dword v%d, v27, %s, s%d offen sc1" % (hRES + 1, sr(sWS, 4), sHT))
    A("s_mov_b64 exec, -1")
A("s_waitcnt lgkmcnt(0)")
A("s_lshl_b32 s%d, s%d, 16" % (sB2, sB2))
lds_spin(8, 4, 24)
h_publish((1 << (2 * EPW)) - 1)
if QBD:
    C("the write-through copy of q is only needed when the group is not known to sit on one XCD")
    A("ds_read_b32 v24, v%d offset:4" % vFL)
    A("s_waitcnt lgkmcnt(0)")
    A("v_readfirstlane_b32 s%d, v24" % sT0)
    A("s_cmp_eq_u32 s%d, 4" % sT0)
    A("s_cbranch_scc1 Lhqb")
    A("s_mov_b64 exec, %s" % sr(sMSK, 2))
    A("buffer_store_dwordx4 %s, v%d, %s, s%d offen sc1" % (vr(W + 4, 4), vQST, sr(sWS, 4), sQS))
    A("s_mov_b64 exec, -1")
    LB("Lhqb")
STAMP(8)
MP("htab")
if XENT:
    A("s_mov_b32 s%d, s%d" % (sH, sHX)); A("s_mov_b32 s%d, s%d" % (sH + 1, sHX))
    for grp in [[0, 1, 2, 3], [4, 5, 6, 7], [8, 9, 10], [11, 12, 13]]:
        n = len(grp)
        for k, p in enumerate(grp): A("v_pk_fma_f32 %s, %s, %s, %s" % (vr(U4[k], 2), vr(HW1 + 2 * p, 2), sr(sH, 2), vr(HB1 + 2 * p, 2)))
        for k in range(n): A("v_pk_mul_f32 %s, %s, %s" % (vr(T4[k], 2), vr(U4[k], 2), vr(U4[k], 2)))
        for k in range(n): A("v_pk_fma_f32 %s, %s, %s, %s" % (vr(T4[k], 2), vr(T4[k], 2), vr(hK1, 2), vr(hK0, 2)))
        for k in range(n): A("v_pk_mul_f32 %s, %s, %s" % (vr(T4[k], 2), vr(T4[k], 2), vr(U4[k], 2)))
        for k in range(n):
            for h in range(2): A("v_exp_f32 v%d, v%d" % (T4[k] + h, T4[k] + h))
        for k, p in enumerate(grp): A("v_pk_mul_f32 %s, %s, %s" % (vr(Z4[k], 2), vr(U4[k], 2), vr(HW2 + 2 * p, 2)))
        for k in range(n): A("v_pk_add_f32 %s, %s, %s" % (vr(T4[k], 2), vr(T4[k], 2), vr(hONE, 2)))
        for k in range(n):
            for h in range(2): A("v_rcp_f32 v%d, v%d" % (T4[k] + h, T4[k] + h))
        for k, p in enumerate(grp):
            if p < 2: A("v_pk_mul_f32 %s, %s, %s" % (vr(AC[p & 1], 2), vr(Z4[k], 2), vr(T4[k], 2)))
            else: A("v_pk_fma_f32 %s, %s, %s, %s" % (vr(AC[p & 1], 2), vr(Z4[k], 2), vr(T4[k], 2), vr(AC[p & 1], 2)))
    A("v_add_f32 v%d, v%d, v%d" % (AC[0], AC[0], AC[0] + 1))
    A("v_add_f32 v%d, v%d, v%d" % (AC[1], AC[1], AC[1] + 1))
    A("v_add_f32 v%d, v%d, v%d" % (AC[0], AC[0], AC[1]))
    A("s_nop 1")
    wave_sum2(AC[0], AC[1], sSUM, sSQ)
    A("s_nop 1")
    A("v_mov_b32 v%d, s%d" % (hRES, sSUM))
    A("v_cvt_pk_bf16_f32 v%d, v%d, v%d" % (hRES, hRES, hRES))
    A("v_and_b32 v%d, 0xffff0000, v%d" % (hRES, hRES))
    A("v_add_f32 v%d, s%d, v%d" % (hRES, sB2, hRES))
    A("v_cvt_pk_bf16_f32 v%d, v%d, v%d" % (hRES, hRES, hRES))
    A("v_and_b32 v%d, 0xffff0000, v%d" % (hRES, hRES))
    C("the last of the four helpers stores the workgroup's four extra entries with one instruction")
    A("s_lshl_b32 s%d, s%d, 2" % (sT0, sW))
    A("v_add_u32 v16, s%d, v%d" % (sT0, vFL))
    A("v_mov_b32 v17, 1")
    A("s_mov_b64 exec, 1")
    A("ds_write_b32 v16, v%d offset:32" % hRES)
    A("s_waitcnt lgkmcnt(0)")
    A("ds_add_rtn_u32 v18, v%d, v17 offset:28" % vFL)
    A("s_waitcnt lgkmcnt(0)")
    A("v_readfirstlane_b32 s%d, v18" % sT0)
    A("s_cmp_lg_u32 s%d, 3" % sT0)
    A("s_cbranch_scc1 Lhx_end")
    A("ds_read_b128 v[20:23], v%d offset:32" % vFL)
    A("s_lshl_b32 s%d, s2, 4" % sT0)
    A("v_mov_b32 v16, s%d" % sT0)
    A("s_waitcnt lgkmcnt(0)")
    A("buffer_store_dwordx4 v[20:23], v16, %s, s%d offen sc1" % (sr(sWS, 4), sHT))
    LB("Lhx_end")
    A("s_mov_b64 exec, -1")
if DIAG:
    A("s_memtime s[42:43]"); A("s_waitcnt lgkmcnt(0)"); A("v_writelane_b32 v30, s42, 14")
    STAMP(15)
STAMP(7)
if TPF:
    C("pull a slice of the finished table into this XCD's L2 ahead of the gather")
    lds_spin(TPF_OFF, 4, 24, sleep=1)
    A("s_cmp_ge_u32 s%d, 20" % sM)
    A("s_cbranch_scc1 Lhtp")
    soff(sT1, [(sM, 10), (sW, 8)], TB)
    A("v_lshlrev_b32 v16, 7, v%d" % vLANE)
    A("s_mov_b64 exec, 3")
    A("buffer_load_dword v17, v16, %s, s%d offen sc1" % (sr(sWS, 4), sT1))
    A("s_mov_b64 exec, -1")
    LB("Lhtp")
C("stand in at the two barriers of the second layer, so that they do not wait for this wave's store acknowledgements")
A("s_barrier")
A("s_barrier")
if MEAS and OPT["q"][0] == "h":
    A("s_mov_b64 exec, 1"); A("v_mov_b32 v16, s97"); A("global_atomic_umax v[30:31], v16, off sc1")
if DIAG:
    A("s_add_u32 s%d, s%d, 4" % (sW, sW))
    A("v_mov_b32 v28, v30")
    A("s_branch Lfin_exit")
A("s_endpgm")

LB("Lmain")
for s, off in [(sWS, 96), (sV, 16), (sWO, 32), (sOUT, 80), (sX, 0), (sB2P, 72), (sW1, 48), (sB1, 56), (sW2, 64)]:
    A("s_load_dwordx2 %s, s[0:1], %d" % (sr(s, 2), off))
if MEAS: A("s_load_dwordx2 s[42:43], s[0:1], 88"); A("s_waitcnt lgkmcnt(0)"); A("s_mov_b32 s25, s42"); A("s_mov_b32 s99, s43") if False else None; A("v_mov_b32 v30, s42"); A("v_mov_b32 v31, s43")
srd(sWS, WS_SZ)
for s in [sW1, sB1, sW2]: srd(s, 3584)
A("s_barrier")
for i in range(D0, D1): kv_issue(i)
for i in range(4): A("v_mov_b32 v%d, -1" % (W + i))
A("s_lshl_b32 s%d, s%d, 17" % (sGR, sJ))
A("s_mov_b32 s%d, s%d" % (sT1, sM))
A("s_waitcnt lgkmcnt(0)")
A("s_load_dword s%d, %s, %s" % (sE, sr(sWS, 2), hx(EPO)))
STAMP(11)
for s, n in [(sV, 1 << 25), (sX, 4096), (sWO, 1 << 22), (sOUT, 4096)]: srd(s, n)
A("v_lshlrev_b32 v18, 1, v16")
A("v_xor_b32 v18, v17, v18")
A("v_lshlrev_b32 v18, 4, v18")
A("v_lshl_add_u32 v%d, v16, 8, v18" % vVA)
if ROT:
    A("s_and_b32 s%d, s%d, 1" % (sT0, sC))
    A("s_lshl_b32 s%d, s%d, 7" % (sT0, sT0))
    A("v_xor_b32 v%d, s%d, v%d" % (vVA, sT0, vVA))
A("v_xor_b32 v%d, 128, v%d" % (vVA + 1, vVA))
C("late sentinels: wave 0,1: group region ; wave 2: P chunk")
A("s_lshr_b32 s%d, s2, 3" % sT1)
A("s_mul_i32 s%d, s%d, %d" % (sT1, sT1, CLRB_PER))
A("s_lshl_b32 s%d, s%d, 10" % (sT0, sW))
A("s_add_u32 s%d, s%d, s%d" % (sT1, sT1, sT0))
A("s_add_u32 s%d, s%d, s%d" % (sT1, sT1, sGR))
A("s_add_u32 s%d, s%d, %d" % (sT1, sT1, CLRB_OFF))
A("s_lshl_b32 s%d, s2, 10" % sT0)
A("s_add_u32 s%d, s%d, %s" % (sT0, sT0, hx(PB)))
A("s_cmp_ge_u32 s%d, 2" % sW)
A("s_cselect_b32 s%d, s%d, s%d" % (sT1, sT0, sT1))
A("s_bfm_b64 %s, %d, 0" % (sr(sH, 2), (CLRB_PER - 1024) // 16))
A("s_cmp_eq_u32 s%d, 1" % sW)
A("s_cselect_b64 %s, %s, -1" % (sr(sH, 2), sr(sH, 2)))
NCL = NOCT * 4 // 16
A("v_mov_b32 v19, v%d" % vL16)
A("s_cmp_lg_u32 s%d, 3" % sW)
A("s_cbranch_scc1 Lm_c3")
C("wave 3: this workgroup's table slots")
A("s_mul_i32 s%d, s2, %d" % (sT0, NOCT * 4))
A("s_add_u32 s%d, s%d, %d" % (sT0, sT0, XENT * 4))
A("v_add_u32 v19, s%d, v19" % sT0)
A("s_lshl_b32 s%d, s2, 4" % sT0)
if XENT: A("v_writelane_b32 v19, s%d, %d" % (sT0, NCL))
A("s_mov_b32 s%d, %s" % (sT1, hx(TB)))
A("s_mov_b64 %s, %d" % (sr(sH, 2), (1 << (NCL + (1 if XENT else 0))) - 1))
LB("Lm_c3")
A("s_mov_b64 exec, %s" % sr(sH, 2))
A("buffer_store_dwordx4 %s, v19, %s, s%d offen sc1" % (vr(W, 4), sr(sWS, 4), sT1))
A("s_mov_b64 exec, -1")

common_addr()
A("s_add_u32 s%d, s%d, s%d" % (sQS, sQS, sGR))
A("s_add_u32 s%d, s%d, %d" % (sQS, sQS, Q1_OFF))
wtile_voff(10, 22)
A("v_and_b32 v19, 7, v%d" % vLANE)
A("v_lshrrev_b32 v25, 2, v%d" % vLANE)
A("v_lshlrev_b32 v25, 7, v25")
A("v_lshl_add_u32 v%d, v18, 2, v25" % vOST)
A("v_lshlrev_b32 v25, 7, v16")
A("v_lshl_add_u32 v%d, v19, 4, v25" % vOLD)
C("lanes n>=8 of the first two o loads fetch the lse values instead: offset relative to the o block")
A("s_mul_i32 s%d, s%d, %d" % (sT0, sA, 128 - 8192))
A("s_mul_i32 s%d, s%d, %d" % (sT1, sW, 32 - 2048))
A("s_add_u32 s%d, s%d, s%d" % (sT0, sT0, sT1))
A("s_add_u32 s%d, s%d, %d" % (sT0, sT0, LSE_OFF[0] - O_OFF[0]))
A("v_add_u32 v25, s%d, v%d" % (sT0, vLSE))
A("v_xor_b32 v26, 16, v25")
A("v_add_u32 v26, -512, v26")
A("v_cmp_gt_u32 vcc, 8, v17")
A("s_nop 1")
A("v_cndmask_b32 v%d, v25, v%d, vcc" % (vLSE, vOLD))
A("v_cndmask_b32 v%d, v26, v%d, vcc" % (vLS2, vOLD))
A("v_lshlrev_b32 v%d, 1, v%d" % (vPST, vLANE))
A("v_lshlrev_b32 v25, 3, v16")
A("v_lshl_add_u32 v%d, v19, 4, v25" % vX1S)
A("s_mul_i32 s%d, s%d, %d" % (sT0, sW, RBS))
A("s_add_u32 s%d, s%d, %d" % (sT0, sT0, L_RB))
A("v_mul_u32_u24 v25, 528, v18")
A("v_lshl_add_u32 v25, v16, 4, v25")
A("v_lshrrev_b32 v26, 2, v17")
A("v_lshl_add_u32 v25, v26, 7, v25")
A("v_add_u32 v%d, s%d, v25" % (vRBW, sT0))
A("s_mul_i32 s%d, s%d, 528" % (sT0, sW))
A("s_add_u32 s%d, s%d, %d" % (sT0, sT0, L_RB))
A("v_lshlrev_b32 v25, 3, v%d" % vLANE)
A("v_add_u32 v%d, s%d, v25" % (vRBR, sT0))
A("s_lshl_b32 s%d, s%d, 3" % (sT0, sW))
A("s_add_u32 s%d, s%d, %d" % (sT0, sT0, L_ML))
A("v_lshlrev_b32 v25, 5, v18")
A("v_add_u32 v%d, s%d, v25" % (vMLW, sT0))
A("s_lshl_b32 s%d, s%d, 5" % (sT0, sW))
A("s_add_u32 s%d, s%d, %d" % (sT0, sT0, L_ML))
A("v_mov_b32 v%d, s%d" % (vMLR, sT0))
A("v_mov_b32 v25, 0x3f80")
A("v_mov_b32 v26, 0x3f800000")
for r in range(4):
    A("v_cmp_eq_u32 vcc, %d, v17" % (2 * r))
    A("v_cmp_eq_u32 %s, %d, v17" % (sr(sH, 2), 2 * r + 1))
    A("s_nop 0")
    A("v_cndmask_b32 v%d, 0, v25, vcc" % (SEL + r))
    A("v_cndmask_b32 v%d, v%d, v26, %s" % (SEL + r, SEL + r, sr(sH, 2)))
for i in range(16): A("v_mov_b32 v%d, 0" % (PM + i))
for p in range(4):
    A("s_mov_b32 s%d, %s" % (sPM + 2 * p, hx(0x000f000f << (4 * p))))
    A("s_mov_b32 s%d, %s" % (sPM + 2 * p + 1, hx(0x000f000f << (4 * p))))
soff(sOS, [(sW, 13), (sA, 11), (sC, 4), (sJ, 17)], O_OFF[0])
soff(sOL, [(sA, 13), (sW, 11), (sJ, 17)], O_OFF[0])
A("s_add_u32 s%d, s%d, %s" % (sQL, sOL, hx(Q0_OFF - O_OFF[0])))
soff(sLS, [(sW, 7), (sA, 5), (sC, 2), (sJ, 17)], LSE_OFF[0])
soff(sPS, [(sW, 15), (sC, 12), (sJ, 9), (sA, 7)], PB)
A("s_mov_b32 s%d, %s" % (sSC, hx(f2u(128 ** -0.5 * math.log2(math.e)))))
A("s_getreg_b32 s%d, hwreg(HW_REG_XCC_ID, 0, 3)" % sXCC)
C("first q projection")
A("s_sub_u32 s%d, s%d, s%d" % (sIT, sQS, sGR))
A("s_lshl_b32 s%d, s%d, 1" % (sIT, sIT))
A("s_add_u32 s%d, s%d, s%d" % (sIT, sIT, sGR))
A("s_add_u32 s%d, s%d, %s" % (sIT, sIT, hx(Q0_OFF - 2 * Q1_OFF)))
A("v_lshlrev_b32 v21, 1, v%d" % vQST)
STAMP(12)
if DIAG: A("v_mov_b32 v31, v30")
A("s_waitcnt vmcnt(%d)" % (4 + D1 + 1))
A("s_branch Llnq")
LB("Lq_first")
A("s_waitcnt vmcnt(%d) lgkmcnt(0)" % (D1 + 1))
lds_arrive(0, vT + 4)
for i in range(D1, D2): kv_issue(i)
tags()
A("s_or_b32 s%d, s%d, s%d" % (sXCC, sXCC, sTG2))
lds_spin(0, 8, vT + 4)
wqf_reads()
A("s_waitcnt lgkmcnt(0)")
A("s_branch Lq_go")
LB("Lh_qst")
A("v_mov_b32 v%d, s%d" % (W + 6, sTG1))
A("v_mov_b32 v%d, s%d" % (W + 7, sXCC))
A("buffer_store_dwordx4 %s, v21, %s, s%d offen%s" % (vr(W + 4, 4), sr(sWS, 4), sIT, "" if int(OPT.get("fast", 1)) else " sc1"))
A("s_add_u32 s%d, s%d, %s" % (sIT, sIT, hx(QB_DELTA)))
A("buffer_store_dwordx4 %s, v21, %s, s%d offen sc1" % (vr(W + 4, 4), sr(sWS, 4), sIT))
A("s_mov_b64 exec, -1")
STAMP(14)
MP("mq")
A("v_lshrrev_b32 v16, 4, v%d" % vLANE)
A("v_and_b32 v17, 15, v%d" % vLANE)
A("v_xor_b32 v24, v16, v17")
A("v_lshlrev_b32 v24, 4, v24")
A("v_lshl_add_u32 v24, v17, 8, v24")
A("s_lshl_b32 s%d, s%d, 13" % (sT1, sW))
A("s_add_u32 s%d, s%d, %d" % (sT2, sT1, L_K))
for t in range(4): A("v_xor_b32 v%d, %d, v24" % (18 + t, 64 * t))
for t in range(4): A("v_add_u32 v%d, s%d, v%d" % (18 + t, sT2, 18 + t))
VA = W + 32
A("v_lshrrev_b32 v24, 2, v%d" % vLANE)
A("v_and_b32 v25, 7, v24")
A("v_lshlrev_b32 v25, 1, v25")
A("v_bfe_u32 v26, v%d, 1, 1" % vLANE)
A("v_xor_b32 v25, v25, v26")
A("v_lshlrev_b32 v25, 4, v25")
A("v_lshl_add_u32 v25, v24, 8, v25")
A("v_and_b32 v26, 1, v%d" % vLANE)
A("v_lshl_add_u32 v25, v26, 3, v25")
A("s_add_u32 s%d, s%d, %d" % (sT2, sT1, L_V))
for t in range(8): A("v_xor_b32 v%d, %d, v25" % (VA + t, 32 * t))
for t in range(8): A("v_add_u32 v%d, s%d, v%d" % (VA + t, sT2, VA + t))
soff(sT4, [(sJ, 19), (sA, 17), (sW, 15), (sC, 7)], 0)
A("s_lshl_b32 s%d, s%d, 12" % (sT5, sW))
A("s_add_u32 s%d, s%d, %d" % (sT5, sT5, L_WO))
soff(sT3, [(sA, 10), (sC, 7)], 0)
A("v_lshlrev_b32 v24, 5, v%d" % vLANE)
A("s_lshl_b32 s%d, s%d, 10" % (sT2, sW))
A("s_add_u32 s%d, s%d, %d" % (sT2, sT2, L_QF))
A("v_add_u32 v25, s%d, v%d" % (sT2, vL16))
A("v_add_u32 v26, %d, v%d" % (L_QF, vL16))
QP = W
def q0_issue(QP=QP):
    A("buffer_load_dwordx4 %s, v24, %s, s%d offen sc1" % (vr(QP, 4), sr(sWS, 4), sQL))
    A("buffer_load_dwordx4 %s, v24, %s, s%d offen offset:16 sc1" % (vr(QP + 4, 4), sr(sWS, 4), sQL))
def flag_block():
    if True:
        A("s_cmp_lg_u32 s%d, 0" % sW)
        A("s_cbranch_scc1 Lnoflag")
        C("every sentinel store of this workgroup is acknowledged: announce it")
        lds_spin(8, 4, vT)
        A("v_mov_b32 v16, s%d" % sTG1)
        A("v_mov_b32 v17, s%d" % sXCC)
        soff(sT1, [(2, 4)], FB)
        A("s_mov_b64 exec, 1")
        A("buffer_store_dwordx2 v[16:17], v%d, %s, s%d offen sc1" % (PM, sr(sWS, 4), sT1))
        A("s_mov_b64 exec, -1")
        LB("Lnoflag")
ycl = D2 - D1 + 2; st_arr = st_fl = False
for i in range(D2, 16):
    dp = DEPTH
    if i == 16 - QV:
        A("s_waitcnt vmcnt(%d)" % (dp - 2)); q0_issue(); ycl += 2
    A("s_waitcnt vmcnt(%d)" % (dp - 1))
    if EFL:
        if st_arr and not st_fl:
            flag_block(); st_fl = True
        if not st_arr and ycl >= dp - 1:
            lds_arrive(8, vT); st_arr = True
    kv_issue(i); ycl += 1
q0_issue(QP + 8)
C("everything older than the V loads is complete: K, late sentinels")
assert not QV2
A("s_waitcnt vmcnt(%d)" % int(OPT.get("kw", 14)))
if EFL: assert st_fl
else: lds_arrive(8, vT)
STAMP(1)
for t in range(4):
    for T in range(2):
        A("ds_read_b128 %s, v%d offset:%d" % (vr(KF + 16 * T + 4 * t, 4), 18 + t, 4096 * T))
if "dump" in OPT:
    A("s_waitcnt lgkmcnt(0)")
    soff(sT1, [(2, 15), (sW, 13)], 0x1000000)
    for k in range(8):
        A("buffer_store_dwordx4 %s, v%d, %s, s%d offen" % (vr(KF + 4 * k, 4), vL16, sr(sWS, 4), sT1))
        A("s_add_u32 s%d, s%d, 1024" % (sT1, sT1))
    A("s_waitcnt vmcnt(0)")
if not EFL: flag_block()
def wait_w0(n):
    if EFL:
        A("s_waitcnt vmcnt(%d)" % n); return
    uid[0] += 1
    A("s_cmp_eq_u32 s%d, 0" % sW)
    A("s_cbranch_scc1 Lww%d" % uid[0])
    A("s_waitcnt vmcnt(%d)" % n)
    LB("Lww%d" % uid[0])
    A("s_waitcnt vmcnt(%d)" % (n + 1))
wait_w0(QV + 2 + (2 if QV2 else 0))
STAMP(2)
A("s_setprio 2")
A("s_mov_b32 s%d, %s" % (sCNT, hx(SPIN)))
A("s_mov_b32 s%d, 0" % sY)
A("s_mov_b32 s%d, 0" % sIT)
LB("Lmq")
A("v_and_b32 v16, -8, v%d" % (QP + 3))
A("v_and_b32 v17, -8, v%d" % (QP + 7))
A("v_cmp_ne_u32 vcc, s%d, v%d" % (sTG1, QP + 2))
A("v_cmp_ne_u32 %s, s%d, v%d" % (sr(sRET, 2), sTG1, QP + 6))
A("s_or_b64 vcc, vcc, %s" % sr(sRET, 2))
A("v_cmp_ne_u32 %s, s%d, v16" % (sr(sRET, 2), sTG2))
A("s_or_b64 vcc, vcc, %s" % sr(sRET, 2))
A("v_cmp_ne_u32 %s, s%d, v17" % (sr(sRET, 2), sTG2))
A("s_or_b64 vcc, vcc, %s" % sr(sRET, 2))
if not int(OPT.get("nochk", 0)): A("s_cbranch_vccnz Lmqr")
LB("Lmqd")
if DIAG:
    A("s_sub_u32 s%d, s%d, s%d" % (sT0, sCNT, sY)); A("v_writelane_b32 v31, s%d, 0" % sT0)
Ls = L; L = []
L.append(".p2align 6"); LB("Lst_mq"); A("s_setpc_b64 %s" % sr(sRET, 2))
LB("Lmqr")
A("s_cmp_lg_u32 s%d, 0" % sY)
A("s_cbranch_scc1 Lmqr2")
if QV2:
    A("s_cmp_lg_u32 s%d, 0" % sIT)
    A("s_cbranch_scc1 Lmqr1")
    A("s_mov_b32 s%d, 1" % sIT)
    wait_w0(QV2 + 2)
    for k in range(8): A("v_mov_b32 v%d, v%d" % (QP + k, XR + k))
    A("s_branch Lmq")
    LB("Lmqr1")
C("first look failed: take the second one (V has landed with it: request its fragments now)")
A("s_waitcnt vmcnt(0)")
A("s_mov_b32 s%d, 1" % sY)
for k in range(8): A("v_mov_b32 v%d, v%d" % (QP + k, QP + 8 + k))
if not VLATE:
    for t in range(8):
        for hf in range(2):
            A("ds_read_b64_tr_b16 %s, v%d offset:%d" % (vr(VF + 4 * t + 2 * hf, 2), VA + t, 4096 * hf))
A("s_branch Lmq")
LB("Lmqr2")
C("still not there: poll the plain copy a few times, then both copies in turn")
A("s_cmp_le_u32 s%d, %s" % (sCNT, hx(SPIN - 6)))
A("s_cselect_b32 s%d, %s, 0" % (sT0, hx(QB_DELTA)))
A("s_xor_b32 s%d, s%d, s%d" % (sQL, sQL, sT0))
q0_issue()
A("s_waitcnt vmcnt(0)")
A("s_sub_u32 s%d, s%d, 1" % (sCNT, sCNT))
A("s_cbranch_scc0 Lmq")
A("s_branch Lmqd")
ool.append(L); L = Ls
A("v_cmp_ne_u32 vcc, s%d, v%d" % (sXCC, QP + 3))
A("v_mov_b32 v%d, v%d" % (QP + 2, QP + 4))
A("v_mov_b32 v%d, v%d" % (QP + 3, QP + 5))
A("ds_write_b128 v25, %s" % vr(QP, 4))
A("s_cmp_eq_u64 vcc, 0")
A("s_cselect_b32 s%d, 1, 0x101" % sT0)
A("v_mov_b32 v16, s%d" % sT0)
A("s_waitcnt lgkmcnt(0)")
lds_arrive(4, 16, None)
if VLATE:
    A("s_cmp_eq_u32 s%d, 0" % sY)
    A("s_cbranch_scc1 Lnvf")
    for t in range(8):
        for hf in range(2):
            A("ds_read_b64_tr_b16 %s, v%d offset:%d" % (vr(VF + 4 * t + 2 * hf, 2), VA + t, 4096 * hf))
    LB("Lnvf")
STAMP(15)
A("buffer_load_dwordx2 %s, v%d, %s, s%d offen" % (vr(RES + 2, 2), vX1S, sr(sX, 4), sT3))
FLG = W + 44
soff(sIT, [(sW, 10)], FB)
soff(sQL, [(sA, 12), (sJ, 17)], Q1_OFF)
for k in range(4):
    A("s_add_u32 s%d, s%d, %d" % (sT0, sC, k))
    A("s_and_b32 s%d, s%d, 3" % (sT0, sT0))
    A("s_lshl_b32 s%d, s%d, 10" % (sKO + k, sT0))
A("s_and_b32 s%d, s%d, 1" % (sT0, sC))
A("s_lshl_b32 s%d, s%d, 6" % (sT0, sT0))
A("v_xor_b32 v22, s%d, v22" % sT0); A("v_xor_b32 v23, s%d, v23" % sT0)
A("s_lshl_b32 s%d, s%d, 2" % (sT3, sM))
A("s_add_u32 s%d, s%d, s%d" % (sT3, sT3, sW))
A("s_lshl_b32 s%d, s%d, 8" % (sT3, sT3))
A("v_lshlrev_b32 v21, 7, v%d" % vLANE)
A("v_add_u32 v21, s%d, v21" % sT3)
A("s_lshl_b32 s%d, s%d, 7" % (sT0, sW))
A("s_add_u32 s%d, s%d, %d" % (sT0, sT0, LSE_OFF[0]))
A("v_writelane_b32 v21, s%d, 2" % sT0)
lds_spin(4, 4, vT, mask=0xff)
A("s_cmp_lt_u32 s%d, 256" % sT1)
A("s_cselect_b32 s%d, %d, 0" % (sFAST, int(OPT.get("fast", 1))))
QF = W + 16
for t in range(4):
    A("ds_read_b128 %s, v26 offset:%d" % (vr(QF + 4 * t, 4), 1024 * t))
S = W
qk = []
for t in range(4):
    for T in range(2):
        qk.append(mf(S + 4 * T, KF + 16 * T + 4 * t, QF + 4 * t, None if t == 0 else S + 4 * T))
for t in range(4):
    A("s_waitcnt lgkmcnt(%d)" % (3 - t))
    A(qk[2 * t]); A(qk[2 * t + 1])
def wo_issue():
    C("every wave holds its K fragments: the wo tile may land in the K area")
    for k in range(4):
        A("s_add_u32 m0, s%d, s%d" % (sT5, sKO + k))
        A("s_lshl3_add_u32 s%d, s%d, s%d" % (sT0, sKO + k, sT4))
        A("buffer_load_dwordx4 v%d, %s, s%d offen nt lds" % (22 + (k & 1), sr(sWO, 4), sT0))
if WOP == 0: wo_issue()
if PRET:
    C("bring the first layer's o / lse lines (their sentinels are in place) into L2")
    A("s_mov_b64 exec, 7")
    A("buffer_load_dword v%d, v21, %s, s%d offen sc1" % (W + 40, sr(sWS, 4), sGR))
    A("s_mov_b64 exec, -1")
STAMP(3)
A("s_branch Lk_go")

LB("Llnq")
C("LayerNorm of the row held in XR, then q partial = xn @ wq tile")
X = W
row_stats(XR, vT, X)
A("v_add_f32 v%d, %s, v%d" % (vT + 1, EPS, vT + 1))
A("v_rsq_f32 v%d, v%d" % (vT + 2, vT + 1))
A("s_cmp_eq_u32 s%d, 0" % sLAY)
A("v_mul_f32 v%d, v%d, v%d" % (vT + 3, vT, vT + 2))
for i in range(4):
    A("v_pk_fma_f32 %s, %s, %s, %s op_sel:[0,0,1] op_sel_hi:[1,0,1] neg_lo:[0,0,1] neg_hi:[0,0,1]" % (vr(X + 2 * i, 2), vr(X + 2 * i, 2), vr(vT + 2, 2), vr(vT + 2, 2)))
for i in range(4):
    A("v_cvt_pk_bf16_f32 v%d, v%d, v%d" % (X + 8 + i, X + 2 * i, X + 2 * i + 1))
A("ds_write_b128 v%d, %s" % (vXNW, vr(X + 8, 4)))
A("s_cbranch_scc1 Lq_first")
A("s_waitcnt lgkmcnt(0)")
A("s_barrier")
LB("Lq_go")
BF = W + 16
for t in range(4):
    A("ds_read_b128 %s, v%d offset:%d" % (vr(BF + 4 * t, 4), vXNR, 64 * t))
for t in range(4):
    A("s_waitcnt lgkmcnt(%d)" % (3 - t))
    mfma(W, WQF + 4 * t, BF + 4 * t, None if t == 0 else W)
A("s_cmp_eq_u32 s%d, 0" % sLAY)
A("s_mov_b64 exec, %s" % sr(sMSK, 2))
NOP(6)
A("v_cvt_pk_bf16_f32 v%d, v%d, v%d" % (W + 4, W, W + 1))
A("v_cvt_pk_bf16_f32 v%d, v%d, v%d" % (W + 5, W + 2, W + 3))
A("s_cbranch_scc1 Lh_qst")
fastcmp()
store_local("buffer_store_dwordx2", vr(W + 4, 2), vQST, sQS)
A("s_mov_b64 exec, -1")
A("ds_write_b128 v%d, %s offset:%d" % (vXNW, vr(XR, 4), L_X2 - L_XN))
A("s_mov_b32 s%d, 0" % sY)
for s, d in [(sOL, O_OFF[1] - O_OFF[0]), (sOS, O_OFF[1] - O_OFF[0]), (sLS, LSE_OFF[1] - LSE_OFF[0]), (sPS, P_L)]:
    A("s_add_u32 s%d, s%d, %d" % (s, s, d))
STAMP(2)

C("attention over this workgroup's 128 keys")
if QS:
    C("each wave fetches one k-step of q and shares it through LDS")
    A("s_lshl_b32 s%d, s%d, 10" % (sT3, sW))
    A("s_add_u32 s%d, s%d, s%d" % (sT4, sQL, sT3))
    A("s_add_u32 s%d, s%d, %d" % (sT3, sT3, L_RB + 12288))
    A("v_add_u32 v25, s%d, v%d" % (sT3, vL16))
    A("v_add_u32 v26, %d, v%d" % (L_RB + 12288, vL16))
    ppoll(lambda k: A("buffer_load_dwordx4 %s, v%d, %s, s%d offen sc1" % (vr(W + 32 + 4 * k, 4), vL16, sr(sWS, 4), sT4)),
          lambda k: range(W + 32 + 4 * k, W + 36 + 4 * k), 1, vT, lambda k: ["ds_write_b128 v25, %s" % vr(W + 32 + 4 * k, 4)], pre=QPRE, gap=QGAP, tag=0)
    A("s_waitcnt lgkmcnt(0)")
    A("s_barrier")
    for t in range(4):
        A("ds_read_b128 %s, v26 offset:%d" % (vr(QF + 4 * t, 4), 1024 * t))
    for t in range(4):
        A("s_waitcnt lgkmcnt(%d)" % (3 - t))
        A(qk[2 * t]); A(qk[2 * t + 1])
    touch_stub("k")
else:
    def iq(k):
        for t in range(4):
            A("buffer_load_dwordx4 %s, v%d, %s, s%d offen offset:%d sc1" % (vr(QF + 16 * k + 4 * t, 4), vL16, sr(sWS, 4), sQL, 1024 * t))
    def qks(k):
        return [mf(S + 4 * T, KF + 16 * T + 4 * t, QF + 16 * k + 4 * t, None if t == 0 else S + 4 * T) for t in range(4) for T in range(2)]
    ppoll(iq, lambda k: range(QF + 16 * k, QF + 16 * k + 16), 4, vT, qks, pre=QPRE, gap=QGAP, tag=0, stub="k", per_load=lambda k, i: qks(k)[2 * i:2 * i + 2])
STAMP(3)
LB("Lk_go")
NOP(5)
for ctl in ["row_ror:4", "row_ror:8"]:
    for i in range(8):
        A("v_add_f32_dpp v%d, v%d, v%d %s row_mask:0xf bank_mask:0xf" % (S + i, S + i, S + i, ctl))
A("v_max3_f32 v%d, v%d, v%d, v%d" % (vT, S, S + 1, S + 2))
A("v_max3_f32 v%d, v%d, v%d, v%d" % (vT + 1, S + 3, S + 4, S + 5))
A("v_max3_f32 v%d, v%d, v%d, v%d" % (vT, vT, S + 6, S + 7))
A("v_max_f32 v%d, v%d, v%d" % (vT, vT, vT + 1))
A("v_mov_b32 v%d, v%d" % (vT + 1, vT))
A("s_nop 1")
A("v_permlane16_swap_b32 v%d, v%d" % (vT, vT + 1))
A("v_max_f32 v%d, v%d, v%d" % (vT, vT, vT + 1))
A("v_mov_b32 v%d, v%d" % (vT + 1, vT))
A("s_nop 1")
A("v_permlane32_swap_b32 v%d, v%d" % (vT, vT + 1))
A("v_max_f32 v%d, v%d, v%d" % (vT, vT, vT + 1))
A("v_mul_f32 v%d, s%d, v%d" % (vT + 2, sSC, vT))
for i in range(8):
    A("v_fma_f32 v%d, v%d, s%d, -v%d" % (S + i, S + i, sSC, vT + 2))
for i in range(8):
    A("v_exp_f32 v%d, v%d" % (S + i, S + i))
for p in range(4):
    A("s_mov_b64 exec, %s" % sr(sPM + 2 * p, 2))
    for i in range(4):
        A("v_cvt_pk_bf16_f32 v%d, v%d, v%d" % (PM + 4 * p + i, S + 2 * i, S + 2 * i + 1))
A("s_mov_b64 exec, -1")
STAMP(4)
A("s_cmp_lg_u32 s%d, 0" % sLAY)
A("s_cbranch_scc1 Lv_go")
wait_w0((5 if WOP == 0 else 1) + PRET)
if WOP == 1: wo_issue()
A("buffer_load_dwordx4 %s, v%d, %s, s%d offen sc1" % (vr(FLG, 4), vL16, sr(sWS, 4), sIT))
STAMP(6)
A("s_cmp_lg_u32 s%d, 0" % sY)
A("s_cbranch_scc1 Lv_have")
for t in range(8):
    for hf in range(2):
        A("ds_read_b64_tr_b16 %s, v%d offset:%d" % (vr(VF + 4 * t + 2 * hf, 2), VA + t, 4096 * hf))
A("s_waitcnt lgkmcnt(0)")
LB("Lv_have")
if TOT:
    A("s_memrealtime s[42:43]"); A("s_waitcnt lgkmcnt(0)"); A("s_mov_b32 s97, s42")
MP("pv")
if MEAS and OPT["q"] in ("tg", "s1"): A("s_mov_b32 s97, s98")
A("s_cmp_lg_u32 s%d, 0" % sLAY)
LB("Lv_go")
OA = W + 8
mfma(W + 16, ONES, PM, None)
for p in range(4):
    for T in range(2):
        mfma(OA + 4 * T, VF + 4 * (2 * p + T), PM + 4 * p, None if p == 0 else OA + 4 * T)
A("s_mov_b64 exec, %s" % sr(sMSK, 2))
A("v_mov_b32 v%d, v%d" % (vT + 3, W + 16))
A("ds_write_b64 v%d, %s" % (vMLW, vr(vT + 2, 2)))
A("s_mov_b64 exec, -1")
NOP(3)
A("ds_write_b128 v%d, %s" % (vRBW, vr(OA, 4)))
A("ds_write_b128 v%d, %s offset:64" % (vRBW, vr(OA + 4, 4)))
A("s_waitcnt lgkmcnt(0)")
A("s_cbranch_scc1 Lrb_bar")
lds_arrive(12, vT + 4)
if WOP == 2: wo_issue()
lds_spin(12, 4, vT + 4)
A("s_branch Lrb_go")
LB("Lrb_bar")
A("s_barrier")
LB("Lrb_go")
A("ds_read_b128 %s, v%d" % (vr(W, 4), vMLR))
A("ds_read_b128 %s, v%d offset:16" % (vr(W + 4, 4), vMLR))
for w in range(4):
    A("ds_read_b64 %s, v%d offset:%d" % (vr(W + 8 + 2 * w, 2), vRBR, RBS * w))
A("v_mov_b32 v%d, 0" % (vT + 4))
fastcmp()
A("s_waitcnt lgkmcnt(4)")
A("v_max3_f32 v%d, v%d, v%d, v%d" % (vT, W, W + 2, W + 4))
A("v_max_f32 v%d, v%d, v%d" % (vT, vT, W + 6))
for w in range(4): A("v_sub_f32 v%d, v%d, v%d" % (W + 2 * w, W + 2 * w, vT))
for w in range(4): A("v_exp_f32 v%d, v%d" % (W + 2 * w, W + 2 * w))
A("v_mul_f32 v%d, v%d, v%d" % (vT + 1, W, W + 1))
for w in range(1, 4): A("v_fmac_f32 v%d, v%d, v%d" % (vT + 1, W + 2 * w, W + 2 * w + 1))
A("s_waitcnt lgkmcnt(0)")
A("v_pk_mul_f32 %s, %s, %s op_sel_hi:[1,0]" % (vr(W + 8, 2), vr(W + 8, 2), vr(W, 2)))
A("v_rcp_f32 v%d, v%d" % (vT + 2, vT + 1))
A("v_pk_fma_f32 %s, %s, %s, %s op_sel_hi:[1,0,1]" % (vr(W + 8, 2), vr(W + 10, 2), vr(W + 2, 2), vr(W + 8, 2)))
A("v_log_f32 v%d, v%d" % (vT + 5, vT + 1))
for w in range(2, 4):
    A("v_pk_fma_f32 %s, %s, %s, %s op_sel_hi:[1,0,1]" % (vr(W + 8, 2), vr(W + 8 + 2 * w, 2), vr(W + 2 * w, 2), vr(W + 8, 2)))
A("v_pk_mul_f32 %s, %s, %s op_sel_hi:[1,0]" % (vr(W + 8, 2), vr(W + 8, 2), vr(vT + 2, 2)))
A("v_add_f32 v%d, v%d, v%d" % (vT + 5, vT + 5, vT))
A("v_cvt_pk_bf16_f32 v%d, v%d, v%d" % (W + 8, W + 8, W + 9))
store_local("buffer_store_dword", "v%d" % (W + 8), vOST, sOS)
A("s_mov_b64 exec, 1")
store_local("buffer_store_dword", "v%d" % (vT + 5), vT + 4, sLS)
A("s_mov_b64 exec, -1")
STAMP(5)

C("wo phase: wave = batch, rows = key splits")
OF = W; LS = W + 32; DA = WQF
assert LSE_OFF[1] - O_OFF[1] == LSE_OFF[0] - O_OFF[0]
def io(k):
    for t in range(4):
        A("buffer_load_dwordx4 %s, v%d, %s, s%d offen offset:%d sc1" % (vr(OF + 16 * k + 4 * t, 4), [vLSE, vLS2, vOLD, vOLD][t], sr(sWS, 4), sOL, 512 * t))
A("s_cmp_lg_u32 s%d, 0" % sLAY)
A("s_cbranch_scc1 Lo_go")
C("first layer: wo tile landed -> fragments; every workgroup has announced its clears")
if WOP == 3: wo_issue()
A("s_waitcnt vmcnt(%d)" % (2 if WOP < 3 else 0))
STAMP(13)
A("s_mov_b32 s%d, %s" % (sT4, hx(SPIN)))
LB("Lap")
A("v_and_b32 v24, -8, v%d" % (FLG + 1))
A("v_cmp_ne_u32 vcc, s%d, v%d" % (sTG1, FLG))
A("v_cmp_ne_u32 %s, s%d, v24" % (sr(sH, 2), sTG2))
A("s_or_b64 vcc, vcc, %s" % sr(sH, 2))
A("s_cbranch_vccnz Lar")
LB("Lad")
lds_arrive(16, 24)
for i in range(2):
    A("v_lshlrev_b32 v%d, 16, v%d" % (W + 40 + 2 * i, RES + 2 + i))
    A("v_and_b32 v%d, 0xffff0000, v%d" % (W + 41 + 2 * i, RES + 2 + i))
for i in range(4): A("v_mov_b32 v%d, v%d" % (RES + i, W + 40 + i))
for ct in range(4): A("v_xor_b32 v%d, %d, v%d" % (W + 40 + ct, 32 * ct, vWT))
for ct in range(4): A("v_add_u32 v%d, %d, v%d" % (W + 40 + ct, L_WO, W + 40 + ct))
lds_spin(16, 4, 24)
STAMP(14)
A("s_mov_b32 s%d, 1" % sY)
LB("Lo_go")
A("s_mov_b32 s%d, 0x55555555" % sT4)
A("s_mov_b32 s%d, 0x55555555" % sT5)
def pre_o():
    A("s_cmp_eq_u32 s%d, 0" % sY)
    A("s_cbranch_scc1 Lo_nof")
    A("s_mov_b32 s%d, 0" % sY)
    for t in range(4):
        for ct in range(4):
            for hf in range(2):
                A("ds_read_b64_tr_b16 %s, v%d offset:%d" % (vr(WOF + 16 * ct + 4 * t + 2 * hf, 2), W + 40 + ct, 4096 * t + 512 * hf))
    LB("Lo_nof")
ool.append(["Lar:", "    s_sleep 4", "    s_lshl_b32 s%d, s%d, 10" % (sT5, sW), "    s_add_u32 s%d, s%d, %s" % (sT5, sT5, hx(FB)),
            "    buffer_load_dwordx4 %s, v%d, %s, s%d offen sc1" % (vr(FLG, 4), vL16, sr(sWS, 4), sT5),
            "    s_waitcnt vmcnt(0)", "    s_sub_u32 s%d, s%d, 1" % (sT4, sT4), "    s_cbranch_scc0 Lap", "    s_branch Lad"])
C("softmax over the 8 key splits: lanes n>=8 hold own lse in OF[0:3], the other four in OF[4:7]")
vU = vT + 2
def wo_all(k, t):
    o = OF + 16 * k
    m = [mf(DA + 4 * ct, o + 4 * t, WOF + 16 * ct + 4 * t, None if t == 0 else DA + 4 * ct) for ct in range(4)]
    va = ["v_max3_f32 v%d, v%d, v%d, v%d" % (vU, o, o + 1, o + 2), "v_max3_f32 v%d, v%d, v%d, v%d" % (vU + 1, o + 3, o + 4, o + 5),
          "v_max3_f32 v%d, v%d, v%d, v%d" % (vU, vU, o + 6, o + 7), "v_max_f32 v%d, v%d, v%d" % (vU, vU, vU + 1)]
    va += ["v_sub_f32 v%d, v%d, v%d" % (LS + i, o + i, vU) for i in range(4)]
    va += ["v_exp_f32 v%d, v%d" % (LS + i, LS + i) for i in range(4)]
    vb = ["v_mov_b32_dpp v%d, v%d row_ror:8 row_mask:0xf bank_mask:0x3" % (LS + i, LS + i) for i in range(4)]
    vb += ["v_add_f32 v%d, v%d, v%d" % (vU, LS, LS + 1), "v_add_f32 v%d, v%d, v%d" % (vU + 1, LS + 2, LS + 3),
           "v_add_f32 v%d, v%d, v%d" % (vU, vU, vU + 1), "v_mov_b32 v%d, v%d" % (vU + 1, vU)]
    f = {0: [], 1: va[:4], 2: va[4:], 3: vb}[t]
    out = ["s_waitcnt lgkmcnt(%d)" % [15, 15, 8, 0][t]] if t != 1 else []
    for x in m:
        out.append(x)
        for _ in range(2):
            if f: out.append(f.pop(0))
    return out
assert PROG and OGAP < 0
ppoll(io, lambda k: range(OF + 16 * k, OF + 16 * k + 16), 4, vT, None, pre=OPRE, gap=OGAP, mid=pre_o, tag=1, per_load=wo_all)
if TPF == 3: lds_arrive(60, vT + 4)
STAMP(7)
A("v_permlane16_swap_b32 v%d, v%d" % (vU, vU + 1))
A("v_mul_f32 v%d, v%d, v%d" % (DA, DA, LS))
A("v_add_f32 v%d, v%d, v%d" % (vT, vU, vU + 1))
A("v_mul_f32 v%d, v%d, v%d" % (DA + 4, DA + 4, LS))
A("v_rcp_f32 v%d, v%d" % (vT, vT))
A("v_mul_f32 v%d, v%d, v%d" % (DA + 8, DA + 8, LS))
for i in range(1, 4):
    for ct in range(3):
        A("v_fmac_f32 v%d, v%d, v%d" % (DA + 4 * ct, DA + 4 * ct + i, LS + i))
    if i == 1: A("v_mul_f32 v%d, v%d, v%d" % (DA + 12, DA + 12, LS))
for i in range(1, 4): A("v_fmac_f32 v%d, v%d, v%d" % (DA + 12, DA + 12 + i, LS + i))
A("v_permlane16_swap_b32 v%d, v%d" % (DA, DA + 4))
A("s_nop 0")
A("v_permlane16_swap_b32 v%d, v%d" % (DA + 8, DA + 12))
A("v_add_f32 v%d, v%d, v%d" % (DA, DA, DA + 4))
A("v_add_f32 v%d, v%d, v%d" % (DA + 8, DA + 8, DA + 12))
A("s_nop 1")
A("v_permlane32_swap_b32 v%d, v%d" % (DA, DA + 8))
A("v_mul_f32 v%d, v%d, v%d" % (DA, DA, vT))
A("s_cmp_lg_u32 s%d, 0" % sLAY)
A("s_nop 0")
A("v_mov_b32_dpp v%d, v%d quad_perm:[1,0,3,2] row_mask:0xf bank_mask:0xf" % (DA + 1, DA))
A("s_mov_b64 exec, %s" % sr(sT4, 2))
A("v_cvt_pk_bf16_f32 v%d, v%d, v%d" % (DA, DA, DA + 1))
A("buffer_store_dword v%d, v%d, %s, s%d offen sc1" % (DA, vPST, sr(sWS, 4), sPS))
A("s_mov_b64 exec, -1")
STAMP(8)
A("s_cbranch_scc1 Lfinal")
MP("p0")

if PRET:
    C("same for the remaining lines of the group's mailboxes")
    soff(sT1, [(sM, 11), (sW, 9), (sJ, 17)], CLRB_OFF)
    A("v_lshlrev_b32 v21, 7, v%d" % vLANE)
    A("s_mov_b64 exec, 15")
    A("buffer_load_dword v%d, v21, %s, s%d offen sc1" % (W + 47, sr(sWS, 4), sT1))
    A("s_mov_b64 exec, -1")
A("s_cmp_lg_u32 s%d, 0" % sW)
A("s_cbranch_scc1 Ltab")
C("stage 1 (wave 0): reduce 32 head partials of 64 outputs, add residual, publish x1 slice")
soff(sT1, [(sA, 15), (sC, 12)], PB)
soff(sT2, [(sA, 10), (sC, 7), (sJ, 17)], X1_OFF)
A("s_mov_b32 s%d, 0x00ff00ff" % sT4)
A("s_mov_b32 s%d, 0" % sT5)
def ip(k):
    for i in range(4):
        A("buffer_load_dwordx4 %s, v%d, %s, s%d offen offset:%d sc1" % (vr(W + 20 * k + 4 * i, 4), vL16, sr(sWS, 4), sT1, 1024 * i))
if GW: A("s_waitcnt vmcnt(0)")
ppoll(ip, lambda k: range(W + 20 * k, W + 20 * k + 16), 4, vT, lambda k: [mf(W + 16, SEL, W + 20 * k + 4 * i, None if i == 0 else W + 16) for i in range(4)], pre=GPRE, gap=GGAP, tag=2,
      per_load=lambda k, i: [mf(W + 16, SEL, W + 20 * k + 4 * i, None if i == 0 else W + 16)])
STAMP(9)
MP("s1")
fastcmp()
NOP(3)
for i in range(4):
    A("v_add_f32_dpp v%d, v%d, v%d row_ror:8 row_mask:0xf bank_mask:0xf" % (W + 16 + i, W + 16 + i, W + 16 + i))
A("s_mov_b64 exec, %s" % sr(sT4, 2))
A("v_pk_add_f32 %s, %s, %s" % (vr(W + 16, 2), vr(W + 16, 2), vr(RES, 2)))
A("v_pk_add_f32 %s, %s, %s" % (vr(W + 18, 2), vr(W + 18, 2), vr(RES + 2, 2)))
A("v_cvt_pk_bf16_f32 v%d, v%d, v%d" % (W + 16, W + 16, W + 17))
A("v_cvt_pk_bf16_f32 v%d, v%d, v%d" % (W + 17, W + 18, W + 19))
store_local("buffer_store_dwordx2", vr(W + 16, 2), vX1S, sT2)
A("s_mov_b64 exec, -1")
LB("Ltabdone")
soff(sT3, [(sW, 10), (sJ, 17)], X1_OFF)
def ix(k):
    A("buffer_load_dwordx4 %s, v%d, %s, s%d offen sc1" % (vr([XR, RES][k], 4), vL16, sr(sWS, 4), sT3))
wqf_reads()
ppoll(ix, lambda k: range([XR, RES][k], [XR, RES][k] + 4), 1, vT, lambda k: ["s_waitcnt lgkmcnt(0)", "v_readfirstlane_b32 s%d, v%d" % (sT1, vT + 2)],
      pre=XPRE, gap=XGAP, mid=lambda: A("ds_read_b32 v%d, v%d offset:20" % (vT + 2, vFL)), tag=3,
      fix=["v_mov_b32 v%d, v%d" % (XR + i, RES + i) for i in range(4)])
A("s_cmp_lt_u32 s%d, 3" % sT1)
A("s_cbranch_scc1 Ltw")
LB("Ltwd")
STAMP(10)

LB("Lmix")
C("x <- x + g(LN(LN(x))) ; g is tabulated for every bf16 input in range, evaluated directly otherwise")
X = W; HB = W + 8; RT = W + 12; AD = W + 16; Y = W + 24
row_stats(XR, vT, X)
A("v_add_f32 v%d, %s, v%d" % (vT + 2, EPS, vT + 1))
A("v_rsq_f32 v%d, v%d" % (vT + 2, vT + 2))
A("v_mov_b32 v%d, %s" % (vT + 4, hx(LO2 | (LO2 << 16))))
A("s_movk_i32 s%d, %d" % (sT5, NENT * 4))
A("v_mul_f32 v%d, v%d, v%d" % (vT + 1, vT + 1, vT + 2))
A("v_fmaak_f32 v%d, v%d, v%d, %s" % (vT + 1, vT + 1, vT + 2, EPS))
A("v_rsq_f32 v%d, v%d" % (vT + 1, vT + 1))
A("s_nop 0")
A("v_mul_f32 v%d, v%d, v%d" % (vT + 2, vT + 2, vT + 1))
A("v_mul_f32 v%d, v%d, v%d" % (vT + 3, vT, vT + 2))
for i in range(4):
    A("v_pk_fma_f32 %s, %s, %s, %s op_sel:[0,0,1] op_sel_hi:[1,0,1] neg_lo:[0,0,1] neg_hi:[0,0,1]" % (vr(AD + 2 * i, 2), vr(X + 2 * i, 2), vr(vT + 2, 2), vr(vT + 2, 2)))
for i in range(4):
    A("v_cvt_pk_bf16_f32 v%d, v%d, v%d" % (HB + i, AD + 2 * i, AD + 2 * i + 1))
for i in range(4):
    A("v_pk_lshlrev_b16 v%d, 1, v%d op_sel_hi:[0,1]" % (RT + i, HB + i))
    A("v_pk_lshrrev_b16 v%d, 15, v%d op_sel_hi:[0,1]" % (AD + i, HB + i))
for i in range(4):
    A("v_or_b32 v%d, v%d, v%d" % (RT + i, RT + i, AD + i))
for i in range(4):
    A("v_pk_sub_u16 v%d, v%d, v%d" % (RT + i, RT + i, vT + 4))
for i in range(4):
    A("v_lshlrev_b32_sdwa v%d, 2, v%d dst_sel:DWORD dst_unused:UNUSED_PAD src0_sel:DWORD src1_sel:WORD_0" % (AD + 2 * i, RT + i))
    A("v_lshlrev_b32_sdwa v%d, 2, v%d dst_sel:DWORD dst_unused:UNUSED_PAD src0_sel:DWORD src1_sel:WORD_1" % (AD + 2 * i + 1, RT + i))
    A("ds_read_b32 v%d, v%d offset:%d" % (Y + 2 * i, AD + 2 * i, L_TAB))
    A("ds_read_b32 v%d, v%d offset:%d" % (Y + 2 * i + 1, AD + 2 * i + 1, L_TAB))
A("v_max3_u32 v%d, v%d, v%d, v%d" % (vT, AD, AD + 1, AD + 2))
A("v_max3_u32 v%d, v%d, v%d, v%d" % (vT + 1, AD + 3, AD + 4, AD + 5))
A("v_max3_u32 v%d, v%d, v%d, v%d" % (vT, vT, AD + 6, AD + 7))
A("v_max_u32 v%d, v%d, v%d" % (vT, vT, vT + 1))
A("v_cmp_le_u32 %s, s%d, v%d" % (sr(sH, 2), sT5, vT))
A("s_waitcnt lgkmcnt(5)")
A("v_max3_u32 v%d, v%d, v%d, v%d" % (vT, Y, Y + 1, Y + 2))
A("s_waitcnt lgkmcnt(2)")
A("v_max3_u32 v%d, v%d, v%d, v%d" % (vT + 1, Y + 3, Y + 4, Y + 5))
A("s_waitcnt lgkmcnt(0)")
A("v_max3_u32 v%d, v%d, v%d, v%d" % (vT, vT, Y + 6, Y + 7))
A("v_max_u32 v%d, v%d, v%d" % (vT, vT, vT + 1))
A("v_cmp_eq_u32 vcc, -1, v%d" % vT)
LB("Lslowdone")
for i in range(4):
    A("v_pk_add_f32 %s, %s, %s" % (vr(vT + 2 + 2 * i, 2), vr(X + 2 * i, 2), vr(Y + 2 * i, 2)))
A("s_or_b64 vcc, vcc, %s" % sr(sH, 2))
A("s_cbranch_vccnz Lslow")
A("s_cmp_lg_u32 s%d, 0" % sLAY)
for i in range(4):
    A("v_cvt_pk_bf16_f32 v%d, v%d, v%d" % (XR + i, vT + 2 + 2 * i, vT + 3 + 2 * i))
STAMP(11)
A("s_cbranch_scc1 Lout")
A("s_mov_b32 s%d, 1" % sLAY)
if TOT or MEAS: A("s_memrealtime s[100:101]")
if DIAG: A("v_mov_b32 v28, v30")
A("s_branch Llnq")

L.append(".p2align 6"); LB("Lst_fin"); A("s_setpc_b64 %s" % sr(sRET, 2)); stubs.append("fin")
LB("Lfinal")
A("s_cmp_ge_u32 s2, 4")
A("s_cbranch_scc1 Lepoch")
C("workgroup b: reduce the 32 head partials of row b, add x2, mixer, store")
soff(sT1, [(2, 15), (sW, 13)], PB + P_L)
A("s_add_u32 s%d, s%d, 4096" % (sT2, sT1))
A("s_mul_i32 s%d, s2, %d" % (sT0, XS))
A("s_lshl_b32 s%d, s%d, 8" % (sT3, sW))
A("s_add_u32 s%d, s%d, s%d" % (sT0, sT0, sT3))
A("s_add_u32 s%d, s%d, %d" % (sT0, sT0, L_X2))
A("v_add_u32 v%d, s%d, v%d" % (vT + 4, sT0, vX1S))
A("s_add_u32 s%d, s%d, %d" % (sT3, sT3, L_XN))
A("v_add_u32 v%d, s%d, v%d" % (vT + 5, sT3, vX1S))
A("ds_read_b64 %s, v%d" % (vr(PM, 2), vT + 4))
A("ds_read_b64 %s, v%d offset:128" % (vr(PM + 2, 2), vT + 4))
A("s_mov_b32 s%d, 0x00ff00ff" % sT4)
A("s_mov_b32 s%d, 0" % sT5)
if XENT:
    A("s_cmp_lg_u32 s%d, 3" % sW)
    A("s_cbranch_scc1 Lfn3")
    A("ds_read_b32 v%d, v%d offset:48" % (vT, vFL))
    A("s_waitcnt lgkmcnt(0)")
    A("v_readfirstlane_b32 s%d, v%d" % (sT0, vT))
    A("s_cmp_eq_u32 s%d, 0" % sT0)
    A("s_cbranch_scc1 Lfn3")
    A("s_mov_b32 s%d, %s" % (sCNT, hx(TB)))
    for i in range(XENT * 4 // 1024):
        A("buffer_load_dwordx4 %s, v%d, %s, s%d offen offset:%d sc1" % (vr(W + 4 * i, 4), vL16, sr(sWS, 4), sCNT, 1024 * i))
    A("v_add_u32 v%d, %d, v%d" % (vT + 6, L_TAB, vL16))
    A("s_waitcnt vmcnt(0)")
    for i in range(XENT * 4 // 1024):
        A("ds_write_b128 v%d, %s offset:%d" % (vT + 6, vr(W + 4 * i, 4), 1024 * i))
    LB("Lfn3")
A("s_waitcnt lgkmcnt(0)")
if GW: A("s_waitcnt vmcnt(0)")
for i in range(4):
    A("v_lshlrev_b32 v%d, 16, v%d" % (PM + 4 + 2 * i, PM + i))
    A("v_and_b32 v%d, 0xffff0000, v%d" % (PM + 5 + 2 * i, PM + i))
if "bias" in OPT:
    for i in range(8): A("v_add_f32 v%d, %s, v%d" % (PM + 4 + i, hx(f2u(float(OPT["bias"]))), PM + 4 + i))
FS = [KF, VF]
def ifin(k):
    for i in range(8):
        A("buffer_load_dwordx4 %s, v%d, %s, s%d offen offset:%d sc1" % (vr(FS[k] + 4 * i, 4), vL16, sr(sWS, 4), sT1 if i < 4 else sT2, 1024 * (i & 3)))
def fs(k):
    o = []
    for i in range(4):
        o.append(mf(W + 32, SEL, FS[k] + 4 * i, None if i == 0 else W + 32))
        o.append(mf(W + 36, SEL, FS[k] + 16 + 4 * i, None if i == 0 else W + 36))
    return o
ppoll(ifin, lambda k: range(FS[k], FS[k] + 32), 8, vT, fs, pre=GPRE, gap=GGAP, tag=2,
      per_load=lambda k, i: [mf(W + 32 + 4 * (i >> 2), SEL, FS[k] + 4 * i, None if (i & 3) == 0 else W + 32 + 4 * (i >> 2))])
STAMP(9)
NOP(2)
for i in range(8):
    A("v_add_f32_dpp v%d, v%d, v%d row_ror:8 row_mask:0xf bank_mask:0xf" % (W + 32 + i, W + 32 + i, W + 32 + i))
A("s_mov_b64 exec, %s" % sr(sT4, 2))
for i in range(4):
    A("v_pk_add_f32 %s, %s, %s" % (vr(W + 32 + 2 * i, 2), vr(W + 32 + 2 * i, 2), vr(PM + 4 + 2 * i, 2)))
for i in range(4):
    A("v_cvt_pk_bf16_f32 v%d, v%d, v%d" % (W + 32 + i, W + 32 + 2 * i, W + 33 + 2 * i))
A("ds_write_b64 v%d, %s" % (vT + 5, vr(W + 32, 2)))
A("ds_write_b64 v%d, %s offset:128" % (vT + 5, vr(W + 34, 2)))
A("s_mov_b64 exec, -1")
A("s_cmp_lg_u32 s%d, 0" % sW)
A("s_waitcnt lgkmcnt(0)")
A("s_barrier")
A("s_cbranch_scc1 Lfin_exit")
A("ds_read_b128 %s, v%d" % (vr(XR, 4), vXNW))
A("s_waitcnt lgkmcnt(0)")
STAMP(10)
A("s_branch Lmix")
L.append(".p2align 6"); LB("Lst_out"); A("s_setpc_b64 %s" % sr(sRET, 2)); stubs.append("out")
LB("Lout")
A("s_lshl_b32 s%d, s2, 10" % sT0)
A("buffer_store_dwordx4 %s, v%d, %s, s%d offen" % (vr(XR, 4), vL16, sr(sOUT, 4), sT0))
if DBL:
    A("s_cmp_lg_u32 s2, 0")
    A("s_cbranch_scc1 Lfin_exit")
if DBL:
    A("s_waitcnt vmcnt(0)")
    A("s_memrealtime s[10:11]")
    A("s_waitcnt lgkmcnt(0)")
    A("s_sub_u32 s12, s10, s98")
    if "pad" in OPT:
        A("s_mov_b32 s10, s98"); A("s_mov_b32 s12, %d" % (100 * int(OPT["pad"])))
    LB("Ldbl")
    A("s_memrealtime s[14:15]")
    A("s_waitcnt lgkmcnt(0)")
    A("s_sub_u32 s13, s14, s10")
    A("s_cmp_lt_u32 s13, s12")
    A("s_cbranch_scc1 Ldbl")
LB("Lfin_exit")
if MEAS:
    src = {"mix": "s100", "entry": "s98"}.get(OPT["q"], "s98" if OPT["q"][0] == "h" else "s97")
    A("s_waitcnt vmcnt(0) lgkmcnt(0)")
    if OPT["q"] == "end":
        A("s_memrealtime s[42:43]"); A("s_waitcnt lgkmcnt(0)"); src = "s42"
    LB("Lms0")
    A("s_memrealtime s[14:15]"); A("s_waitcnt lgkmcnt(0)"); A("s_sub_u32 s13, s14, s98"); A("s_cmp_lt_u32 s13, 1600"); A("s_cbranch_scc1 Lms0")
    A("s_mov_b64 exec, 1")
    A("v_mov_b32 v16, %s" % src)
    A("s_not_b32 s10, s98")
    A("v_mov_b32 v17, s10")
    A("global_atomic_umax v[30:31], v16, off sc1")
    A("global_atomic_umax v[30:31], v17, off offset:128 sc1")
    A("s_or_b32 s10, s2, s%d" % sW)
    A("s_cmp_lg_u32 s10, 0")
    A("s_cbranch_scc1 Lend")
    LB("Lms1")
    A("s_memrealtime s[14:15]"); A("s_waitcnt lgkmcnt(0)"); A("s_sub_u32 s13, s14, s98"); A("s_cmp_lt_u32 s13, 4000"); A("s_cbranch_scc1 Lms1")
    A("global_load_dword v16, v[30:31], off sc1")
    A("global_load_dword v17, v[30:31], off offset:128 sc1")
    A("s_waitcnt vmcnt(0)")
    A("v_readfirstlane_b32 s10, v16"); A("v_readfirstlane_b32 s11, v17")
    A("s_not_b32 s11, s11"); A("s_sub_u32 s10, s10, s11"); A("s_lshl_b32 s10, s10, 2"); A("s_add_u32 s12, s10, 4200")
    A("s_min_u32 s12, s12, 20000")
    LB("Lms2")
    A("s_memrealtime s[14:15]"); A("s_waitcnt lgkmcnt(0)"); A("s_sub_u32 s13, s14, s98"); A("s_cmp_lt_u32 s13, s12"); A("s_cbranch_scc1 Lms2")
if TOT:
    A("s_waitcnt vmcnt(0)")
    A("s_memrealtime s[10:11]")
    A("s_waitcnt lgkmcnt(0)")
    A("v_mov_b32 v16, s98")
    A("v_mov_b32 v17, s10")
    A("v_mov_b32 v18, s100")
    A("v_mov_b32 v19, s97")
    soff(sT2, [(2, 6), (sW, 4)], STB)
    A("v_mov_b32 v20, 0")
    A("s_mov_b64 exec, 1")
    A("buffer_store_dwordx4 v[16:19], v20, %s, s%d offen" % (sr(sWS, 4), sT2))
if DIAG:
    A("s_waitcnt vmcnt(0)")
    STAMP(12)
    if DIAG == 2:
        A("s_or_b32 s%d, s2, s%d" % (sT0, sW))
        A("s_cmp_lg_u32 s%d, 0" % sT0)
        A("s_cbranch_scc1 Lend")
        A("v_readlane_b32 s%d, v28, 0" % sT2)
        for k, (r, i) in enumerate([(31, 10), (31, 12), (28, 1), (28, 2), (28, 6), (28, 5), (28, 7), (28, 8), (28, 9), (28, 10), (28, 11), (30, 3), (30, 5), (30, 8), (30, 9), (30, 12)]):
            A("v_readlane_b32 s%d, v%d, %d" % (sT3, r, i))
            A("s_sub_u32 s%d, s%d, s%d" % (sT3, sT3, sT2))
            A("s_nop 0")
            A("v_writelane_b32 v17, s%d, %d" % (sT3, k))
        A("v_lshlrev_b32 v16, 2, v%d" % vLANE)
        A("s_mov_b64 exec, 0xffff")
        A("global_store_dword v16, v17, s[100:101]")
        A("s_endpgm")
    soff(sT1, [(2, 10), (sW, 7)], STB)
    A("v_lshlrev_b32 v16, 2, v%d" % vLANE)
    A("s_mov_b64 exec, 0xffff")
    A("buffer_store_dword v28, v16, %s, s%d offen" % (sr(sWS, 4), sT1))
    A("buffer_store_dword v30, v16, %s, s%d offen offset:64" % (sr(sWS, 4), sT1))
    A("s_add_u32 s%d, s%d, 0x40000" % (sT1, sT1))
    A("buffer_store_dword v31, v16, %s, s%d offen" % (sr(sWS, 4), sT1))
LB("Lend")
A("s_endpgm")
LB("Lepoch")
if int(OPT.get("wb", 0)):
    A("s_cmp_lg_u32 s%d, 0" % sW)
    A("s_cbranch_scc1 Lnowb")
    A("s_waitcnt vmcnt(0)")
    A("buffer_wbl2 sc1")
    LB("Lnowb")
C("every workgroup has used the old launch tag long ago: workgroup 4 advances it")
A("s_lshl_b32 s%d, s%d, 8" % (sT0, sW))
A("s_add_u32 s%d, s%d, s2" % (sT0, sT0))
A("s_cmp_lg_u32 s%d, 4" % sT0)
A("s_cbranch_scc1 Lfin_exit")
A("v_mov_b32 v16, s%d" % sTG1)
A("v_mov_b32 v17, %s" % hx(EPO))
A("s_mov_b64 exec, 1")
A("buffer_store_dword v16, v17, %s, 0 offen sc1" % sr(sWS, 4))
A("s_mov_b64 exec, -1")
A("s_branch Lfin_exit")

L.append(".p2align 6"); LB("Lst_tab"); A("s_setpc_b64 %s" % sr(sRET, 2)); stubs.append("tab")
LB("Ltab")
C("waves 2,3: gather the main part of the g(h) table into LDS ; wave 1: the lowest octaves, best effort")
NTL = NOCT * 1024 // 2 // 1024
A("s_cmp_eq_u32 s%d, 1" % sW)
A("s_cbranch_scc1 Lext")
A("s_sub_u32 s%d, s%d, 2" % (sT1, sW))
A("s_mul_i32 s%d, s%d, %d" % (sT1, sT1, NTL * 1024))
A("s_add_u32 s%d, s%d, %d" % (sT1, sT1, XENT * 4))
A("v_add_u32 v%d, s%d, v%d" % (vT + 4, sT1, vL16))
A("v_add_u32 v%d, %d, v%d" % (vT + 4, L_TAB, vT + 4))
A("s_add_u32 s%d, s%d, %s" % (sT1, sT1, hx(TB)))
A("s_add_u32 s%d, s%d, 4096" % (sT2, sT1))
if TGW: A("s_waitcnt vmcnt(0)"); A("s_nop 15")
def it():
    for i in range(NTL):
        A("buffer_load_dwordx4 %s, v%d, %s, s%d offen offset:%d sc1" % (vr(W + 4 * i, 4), vL16, sr(sWS, 4), sT1 if i < 4 else sT2, 1024 * (i & 3)))
poll(it, range(W, W + 4 * NTL), vT, back="s_sleep %d" % int(OPT.get("tsl", 16)))
for i in range(NTL):
    A("ds_write_b128 v%d, %s offset:%d" % (vT + 4, vr(W + 4 * i, 4), 1024 * i))
A("s_waitcnt lgkmcnt(0)")
lds_arrive(20, vT + 4)
STAMP(9)
MP("tg")
A("s_branch Ltabdone")
def ext_load(d):
    for i in range(XENT * 4 // 1024):
        A("buffer_load_dwordx4 %s, v%d, %s, s%d offen offset:%d sc1" % (vr(d + 4 * i, 4), vL16, sr(sWS, 4), sT4, 1024 * i))
def ext_write(d):
    for i in range(XENT * 4 // 1024):
        A("ds_write_b128 v%d, %s offset:%d" % (vT + 4, vr(d + 4 * i, 4), 1024 * i))
LB("Lext")
if XENT:
    A("s_mov_b32 s%d, %s" % (sT4, hx(TB)))
    A("v_add_u32 v%d, %d, v%d" % (vT + 4, L_TAB, vL16))
    for i in range(4): A("v_mov_b32 v%d, -1" % (W + i))
    for i in range(XENT * 4 // 1024):
        A("ds_write_b128 v%d, %s offset:%d" % (vT + 4, vr(W, 4), 1024 * i))
    A("ds_write_b32 v%d, v%d offset:48" % (vFL, W))
    A("s_waitcnt lgkmcnt(0)")
lds_arrive(20, vT + 5)
if XENT:
    C("one look at the lowest octaves, skipped when x1 is already there")
    soff(sT3, [(sW, 10), (sJ, 17)], X1_OFF)
    A("s_waitcnt vmcnt(0)")
    A("buffer_load_dwordx4 %s, v%d, %s, s%d offen sc1" % (vr(XR, 4), vL16, sr(sWS, 4), sT3))
    A("s_waitcnt vmcnt(0)")
    for x in maxtree(range(XR, XR + 4), vT): A(x)
    A("v_cmp_eq_u32 vcc, -1, v%d" % vT)
    A("s_cbranch_vccz Lexx")
    A("s_mov_b32 s%d, %d" % (sCNT, int(OPT.get("xlk", 2)) - 1))
    LB("Lexl")
    A("buffer_load_dwordx4 %s, v%d, %s, s%d offen sc1" % (vr(XR, 4), vL16, sr(sWS, 4), sT3))
    if "l" in OPT.get("xs", ""): A("s_branch Ltabdone")
    ext_load(W + 32)
    A("s_waitcnt vmcnt(4)")
    for x in maxtree(range(XR, XR + 4), vT): A(x)
    A("v_cmp_eq_u32 vcc, -1, v%d" % vT)
    A("s_cbranch_vccz Lexx")
    A("s_waitcnt vmcnt(0)")
    ext_write(W + 32)
    for x in maxtree(range(W + 32, W + 48), vT): A(x)
    A("v_cmp_eq_u32 vcc, -1, v%d" % vT)
    A("s_cbranch_vccz Lexc")
    A("s_sub_u32 s%d, s%d, 1" % (sCNT, sCNT))
    A("s_cbranch_scc0 Lexl")
    A("s_branch Ltabdone")
    LB("Lexc")
    A("v_mov_b32 v%d, 0" % vT)
    A("ds_write_b32 v%d, v%d offset:48" % (vFL, vT))
    A("s_branch Ltabdone")
    LB("Lexx")
    wqf_reads()
    A("s_branch Ltw")
else:
    A("s_branch Ltabdone")
LB("Ltw")
lds_spin(20, 3, vT + 2)
A("s_branch Ltwd")

for b in ool: L += b
ool = []
LB("Lslow")
C("rare: some h lies outside the table -> evaluate g(h) directly for those lanes")
RW1 = [W + 32 + i for i in range(14)]
RB1 = [PM + i for i in range(14)]
RW2 = [16 + i for i in range(10)] + [W + 46, W + 47, PM + 14, PM + 15]
A("v_lshlrev_b32 v26, 3, v%d" % vLANE)
A("s_load_dword s%d, %s, 0" % (sB2, sr(sB2P, 2)))
for (d4, d2, s) in [([W + 32, W + 36, W + 40], W + 44, sW1), ([PM, PM + 4, PM + 8], PM + 12, sB1)]:
    for k in range(3):
        A("buffer_load_dwordx4 %s, v%d, %s, 0 offen offset:%d" % (vr(d4[k], 4), vL16, sr(s, 4), 1024 * k))
    A("buffer_load_dwordx2 %s, v26, %s, 0 offen offset:3072" % (vr(d2, 2), sr(s, 4)))
A("buffer_load_dwordx4 v[16:19], v%d, %s, 0 offen" % (vL16, sr(sW2, 4)))
A("buffer_load_dwordx4 v[20:23], v%d, %s, 0 offen offset:1024" % (vL16, sr(sW2, 4)))
A("buffer_load_dwordx2 v[24:25], v%d, %s, 0 offen offset:2048" % (vL16, sr(sW2, 4)))
A("buffer_load_dwordx2 %s, v%d, %s, 0 offen offset:2056" % (vr(W + 46, 2), vL16, sr(sW2, 4)))
A("buffer_load_dwordx2 %s, v26, %s, 0 offen offset:3072" % (vr(PM + 14, 2), sr(sW2, 4)))
A("s_waitcnt vmcnt(0) lgkmcnt(0)")
A("s_lshl_b32 s%d, s%d, 16" % (sB2, sB2))
A("s_mov_b32 s%d, 1" % sT4)
for e in range(8):
    A("v_cmp_le_u32 vcc, %d, v%d" % (NENT * 4, AD + e))
    A("v_cmp_eq_u32 %s, -1, v%d" % (sr(sH2, 2), Y + e))
    A("s_or_b64 %s, %s, vcc" % (sr(sH2, 2), sr(sH2, 2)))
    if e & 1: A("v_and_b32 v%d, 0xffff0000, v%d" % (RT + 3, HB + (e >> 1)))
    else: A("v_lshlrev_b32 v%d, 16, v%d" % (RT + 3, HB + (e >> 1)))
    LB("Lse%d" % e)
    A("s_cmp_eq_u64 %s, 0" % sr(sH2, 2))
    A("s_cbranch_scc1 Lsf%d" % e)
    A("s_ff1_i32_b64 s%d, %s" % (sT0, sr(sH2, 2)))
    A("s_nop 0")
    A("v_readlane_b32 s%d, v%d, s%d" % (sH, RT + 3, sT0))
    A("s_cmp_eq_u32 s%d, s%d" % (sH, sT4))
    A("s_cbranch_scc1 Lsg%d" % e)
    A("s_mov_b32 s%d, s%d" % (sT4, sH))
    A("s_call_b64 %s, Lgev" % sr(sRET, 2))
    LB("Lsg%d" % e)
    A("s_nop 1")
    A("v_cmp_eq_u32 vcc, s%d, v%d" % (sH, RT + 3))
    A("v_mov_b32 v%d, s%d" % (RES + 3, sY))
    A("s_andn2_b64 %s, %s, vcc" % (sr(sH2, 2), sr(sH2, 2)))
    A("v_cndmask_b32 v%d, v%d, v%d, vcc" % (Y + e, Y + e, RES + 3))
    A("s_branch Lse%d" % e)
    LB("Lsf%d" % e)
for i in range(16): A("v_mov_b32 v%d, 0" % (PM + i))
A("s_mov_b64 vcc, 0")
A("s_mov_b64 %s, 0" % sr(sH, 2))
A("s_branch Lslowdone")
LB("Lgev")
a, u, t1, z = RES, RES + 1, RES + 2, RT
A("v_mov_b32 v%d, 0" % a)
A("v_mov_b32 v%d, %s" % (RT + 1, hx(f2u(K0))))
A("v_mov_b32 v%d, %s" % (RT + 2, hx(f2u(K1))))
for p in range(14):
    for hf in range(2):
        def un(d, s):
            if hf == 0: A("v_lshlrev_b32 v%d, 16, v%d" % (d, s))
            else: A("v_and_b32 v%d, 0xffff0000, v%d" % (d, s))
        un(u, RW1[p]); un(t1, RB1[p]); un(z, RW2[p])
        A("v_fma_f32 v%d, v%d, s%d, v%d" % (u, u, sH, t1))
        A("v_mul_f32 v%d, v%d, v%d" % (t1, u, u))
        A("v_fma_f32 v%d, v%d, v%d, v%d" % (t1, t1, RT + 2, RT + 1))
        A("v_mul_f32 v%d, v%d, v%d" % (t1, t1, u))
        A("v_exp_f32 v%d, v%d" % (t1, t1))
        A("v_mul_f32 v%d, v%d, v%d" % (z, z, u))
        A("v_add_f32 v%d, 1.0, v%d" % (t1, t1))
        A("v_rcp_f32 v%d, v%d" % (t1, t1))
        A("s_nop 0")
        A("v_fmac_f32 v%d, v%d, v%d" % (a, z, t1))
A("v_mov_b32 v%d, v%d" % (u, a))
A("s_nop 1")
wave_sum2(a, u, sY, sT1)
A("s_nop 1")
A("v_mov_b32 v%d, s%d" % (a, sY))
A("v_cvt_pk_bf16_f32 v%d, v%d, v%d" % (a, a, a))
A("v_and_b32 v%d, 0xffff0000, v%d" % (a, a))
A("v_add_f32 v%d, s%d, v%d" % (a, sB2, a))
A("v_cvt_pk_bf16_f32 v%d, v%d, v%d" % (a, a, a))
A("v_and_b32 v%d, 0xffff0000, v%d" % (a, a))
A("s_nop 0")
A("v_readfirstlane_b32 s%d, v%d" % (sY, a))
A("s_nop 3")
A("s_setpc_b64 %s" % sr(sRET, 2))

for b in ool: L += b
A("s_endpgm")
L.append(".p2align 8")
L.append(".fill %d, 4, 0xBF800000" % (64 if DIAG else 512))
L.append('''.section .rodata,"a"
.p2align 6
.amdhsa_kernel %s_kernel
  .amdhsa_next_free_vgpr 256
  .amdhsa_next_free_sgpr 102
  .amdhsa_accum_offset 256
  .amdhsa_group_segment_fixed_size 0
  .amdhsa_kernarg_size 104
  .amdhsa_user_sgpr_count 2
  .amdhsa_user_sgpr_kernarg_segment_ptr 1
  .amdhsa_system_sgpr_workgroup_id_x 1
.end_amdhsa_kernel''' % NAME)
open(OUTF, "w").write("\n".join(x for x in L if x is not None) + "\n")
print("wrote", OUTF, "lines", len(L), "LDS", LDS_SZ)
```

```python
import sys, struct, math

NAME = "interleave_layers__sliding_block_cached__mixer_token_mlp__decode"
OUTF = sys.argv[1] if len(sys.argv) > 1 else "cdna_kernels/%s.s" % NAME
DIAG = int(sys.argv[2]) if len(sys.argv) > 2 else 0
DBL = 0
if DIAG == 3: DIAG = 0; DBL = 1
MEAS = 0
if DIAG == 5: DIAG = 0; MEAS = 1
TOT = 0
if DIAG == 4: DIAG = 0; TOT = 1
OPT = dict(a.split("=") for a in sys.argv[3:])
DEPTH = int(OPT.get("depth", 8))
D0 = int(OPT.get("d0", 3))
D1 = int(OPT.get("d1", 4))
DC = int(OPT.get("dc", 3))
TAILI = int(OPT.get("taili", 11))
TAILD = int(OPT.get("taild", 8))
QV = int(OPT.get("qv", 3))
PRET = int(OPT.get("pret", 1))
GW = int(OPT.get("gw", 1))
GPRE = int(OPT.get("gpre", 0))
GGAP = int(OPT.get("ggap", -1))
WARM = int(OPT.get("warm", 1))
QPRE = int(OPT.get("qpre", -1)); QGAP = int(OPT.get("qgap", -1))
OPRE = int(OPT.get("opre", -1)); OGAP = int(OPT.get("ogap", -1))
XPRE = int(OPT.get("xpre", -1)); XGAP = int(OPT.get("xgap", -1))
FINE = OPT.get("fine", "")
QS = int(OPT.get("qs", 0))
ADP = int(OPT.get("adp", 0))
ROT = int(OPT.get("rot", 1)); VROT = int(OPT.get("vrot", 0))
WROT = int(OPT.get("wrot", 1))
WOP = int(OPT.get("wop", 0))
ECO = int(OPT.get("eco", 0))
XDL = int(OPT.get("xdl", 256))
QBD = int(OPT.get("qbd", 0))
VLATE = int(OPT.get("vlate", 1))
QV2 = int(OPT.get("qv2", 0))
PROG = int(OPT.get("prog", 1))
SLC = int(OPT.get("slc", 0)); D2 = int(OPT.get("d2", 8))
HFIRST = int(OPT.get("hfirst", 0))
EFL = int(OPT.get("efl", 1))
TPF = int(OPT.get("tpf", 0)); TPF_OFF = {1: 16, 2: 12, 3: 60}.get(TPF, 16)
TGW = int(OPT.get("tgw", 0))
HG = int(OPT.get("hg", 0)); HG_OFF = {1: 60, 2: 16}.get(HG, 60)
QT = int(OPT.get("qt", 0))
DRY = int(OPT.get("dry", 0))
HP = int(OPT.get("hp", 0))
NOCT = int(OPT.get("noct", 16))
QPOS = int(OPT.get("qpos", 1))
QPOS2 = int(OPT.get("qpos2", 7))

def f2u(x): return struct.unpack("<I", struct.pack("<f", x))[0]
def hx(x): return "0x%08x" % (x & 0xffffffff)

L = []
def A(s): L.append("    " + s)
def LB(s): L.append(s + ":")
def C(s): L.append("    ; " + s)
def vr(a, n): return "v[%d:%d]" % (a, a + n - 1)
def sr(a, n): return "s[%d:%d]" % (a, a + n - 1)
def NOP(n):
    while n > 0:
        k = min(n, 16); A("s_nop %d" % (k - 1)); n -= k

XOCT = int(OPT.get('xoct', 4))
ELO = int(OPT.get('elo', 130 - NOCT - XOCT))
LO2 = (ELO << 7) * 2
NENT = (NOCT + XOCT) * 256
XENT = XOCT * 256
assert XENT in (0, 1024)
EPW = NOCT * 256 // 256 // 4 // 2
GRS = 0x20000
O_OFF = [0x0000, 0xC400]; LSE_OFF = [0x8000, 0x14400]; Q1_OFF = 0x8400; X1_OFF = 0x14600
CLRA_PER = 1040
CLRB_OFF = 0x8400; CLRB_PER = 1680
Q0_OFF = 0x18000
EPO = 0x17f00
PB = 0x100000; P_L = 0x20000
TB = 0x140000; FB = 0x148000
QB_DELTA = 0x200000
STB = 0x300000
WS_SZ = 0x400000 if "dump" not in OPT else 0x2000000
L_WQ = 12288; L_K = L_WQ + 16384; L_V = L_K + 32768
L_WO = L_K + 16384
L_TAB = L_V
L_XN = L_V + 32768; XS = 1056
L_X2 = L_XN + 4 * XS
L_FLG = L_X2 + 4 * XS
L_RB = L_K; RBS = 2048 + 64; L_ML = L_K + 4 * RBS
L_QF = L_X2
LDS_SZ = int(OPT.get("lds", L_FLG + 64))
SPIN = 0x40000
K0 = -2.0 * math.sqrt(2.0 / math.pi) * math.log2(math.e)
K1 = K0 * 0.044715
EPS = hx(f2u(1e-5))

sTG1, sTG2 = 0, 1
sW, sJ, sA, sC, sGR, sLAY, sFAST = 3, 4, 5, 6, 7, 8, 9
sT0, sT1, sT2, sT3, sT4, sT5 = 10, 11, 12, 13, 14, 15
sCNT = 16
sQL, sQS, sOL, sOS, sLL, sLS, sPS = 17, 18, 19, 20, 21, 22, 23
sSC, sIT = 24, 25
sSUM, sSQ = 26, 27
sH, sH2, sRET, sMSK = 28, 30, 32, 34
sB2, sY, sXCC, sE = 36, 37, 38, 39
sB2P = 40
sK, sV, sWQ, sWO, sWS, sX, sOUT, sW1, sB1, sW2 = 44, 48, 52, 56, 60, 64, 68, 72, 76, 80
sKO, sKL, sVO, sVL = 84, 85, 86, 87
sPM = 88
sHC, sHT = 84, 85

def STAMP(i):
    if DIAG:
        A("s_memrealtime s[42:43]"); A("s_waitcnt lgkmcnt(0)")
        A("v_writelane_b32 v30, s42, %d" % i)

def MP(name):
    if MEAS and OPT["q"] == name:
        A("s_memrealtime s[42:43]"); A("s_waitcnt lgkmcnt(0)"); A("s_mov_b32 s97, s42")

def CST(i):
    if DIAG == 1 and FINE:
        A("s_memtime s[42:43]"); A("s_waitcnt lgkmcnt(0)")
        A("v_writelane_b32 v31, s42, %d" % i)

vLANE = 1
vL16, vQST, vOST, vOLD, vPST, vX1S, vXNW, vXNR, vRBW, vRBR, vMLW, vMLR, vLSE, vZ = range(2, 16)
vT = 16
vWT, vFL = 28, 29
vLS2 = 27
KF, VF, WQF, WOF, SEL, ONES = 32, 64, 96, 112, 176, 180
W = 184
PM = 232
XR = 248
RES = 252

def srd(s, nbytes):
    A("s_mov_b32 s%d, %s" % (s + 2, hx(nbytes))); A("s_mov_b32 s%d, 0x00020000" % (s + 3))

def soff(dst, terms, const):
    first = True
    for (src, sh) in terms:
        if first: A("s_lshl_b32 s%d, s%d, %d" % (dst, src, sh)); first = False
        else:
            A("s_lshl_b32 s%d, s%d, %d" % (sT0, src, sh)); A("s_add_u32 s%d, s%d, s%d" % (dst, dst, sT0))
    if const: A("s_add_u32 s%d, s%d, %s" % (dst, dst, hx(const)))

def wave_sum2(a, b, sa, sb):
    for ctl in ["row_ror:8", "row_ror:4", "row_ror:2", "row_ror:1"]:
        A("v_add_f32_dpp v%d, v%d, v%d %s row_mask:0xf bank_mask:0xf" % (a, a, a, ctl))
        A("v_add_f32_dpp v%d, v%d, v%d %s row_mask:0xf bank_mask:0xf" % (b, b, b, ctl))
        A("s_nop 0")
    for ctl in ["row_bcast:15 row_mask:0xa", "row_bcast:31 row_mask:0xc"]:
        A("v_add_f32_dpp v%d, v%d, v%d %s bank_mask:0xf" % (a, a, a, ctl))
        A("v_add_f32_dpp v%d, v%d, v%d %s bank_mask:0xf" % (b, b, b, ctl))
        A("s_nop 0")
    A("v_readlane_b32 s%d, v%d, 63" % (sa, a))
    A("v_readlane_b32 s%d, v%d, 63" % (sb, b))

def row_stats(x, t, unp):
    A("v_dot2_f32_bf16 v%d, v%d, v%d, 0" % (t, x, ONES))
    A("v_dot2_f32_bf16 v%d, v%d, v%d, 0" % (t + 1, x, x))
    for i in range(1, 4):
        A("v_dot2_f32_bf16 v%d, v%d, v%d, v%d" % (t, x + i, ONES, t))
        A("v_dot2_f32_bf16 v%d, v%d, v%d, v%d" % (t + 1, x + i, x + i, t + 1))
    un = []
    for i in range(4):
        un.append("v_lshlrev_b32 v%d, 16, v%d" % (unp + 2 * i, x + i))
        un.append("v_and_b32 v%d, 0xffff0000, v%d" % (unp + 2 * i + 1, x + i))
    for k in range(3): A(un.pop(0))
    a, b = t, t + 1
    for ctl in ["row_ror:8 row_mask:0xf", "row_ror:4 row_mask:0xf", "row_ror:2 row_mask:0xf", "row_ror:1 row_mask:0xf", "row_bcast:15 row_mask:0xa", "row_bcast:31 row_mask:0xc"]:
        A("v_add_f32_dpp v%d, v%d, v%d %s bank_mask:0xf" % (a, a, a, ctl))
        A("v_add_f32_dpp v%d, v%d, v%d %s bank_mask:0xf" % (b, b, b, ctl))
        A(un.pop(0) if un else "s_nop 0")
    A("v_readlane_b32 s%d, v%d, 63" % (sSUM, a))
    A("v_readlane_b32 s%d, v%d, 63" % (sSQ, b))
    A("s_nop 0")
    A("v_mul_f32 v%d, s%d, v%d" % (t, sSUM, vZ))
    A("v_mul_f32 v%d, s%d, v%d" % (t + 1, sSQ, vZ))
    A("v_fma_f32 v%d, -v%d, v%d, v%d" % (t + 1, t, t, t + 1))
    A("v_max_f32 v%d, 0, v%d" % (t + 1, t + 1))

ool = []
uid = [0]
def maxtree(regs, tmp):
    r = list(regs); out = []
    out.append("v_max3_u32 v%d, v%d, v%d, v%d" % (tmp, r[0], r[1], r[2])); r = r[3:]
    if len(r) >= 5:
        out.append("v_max3_u32 v%d, v%d, v%d, v%d" % (tmp + 1, r[0], r[1], r[2])); r = r[3:]
        d = 0
        while len(r) >= 2:
            out.append("v_max3_u32 v%d, v%d, v%d, v%d" % (tmp + d, tmp + d, r[0], r[1])); r = r[2:]; d ^= 1
        if r: out.append("v_max3_u32 v%d, v%d, v%d, v%d" % (tmp, tmp, tmp + 1, r[0]))
        else: out.append("v_max_u32 v%d, v%d, v%d" % (tmp, tmp, tmp + 1))
    else:
        while len(r) >= 2:
            out.append("v_max3_u32 v%d, v%d, v%d, v%d" % (tmp, tmp, r[0], r[1])); r = r[2:]
        if r: out.append("v_max_u32 v%d, v%d, v%d" % (tmp, tmp, r[0]))
    return out

def poll(issue, regs, tmp, pre_wait=None, spec=None, back="s_nop 7", tag=None, stub=None):
    uid[0] += 1; u = uid[0]
    A("s_mov_b32 s%d, %s" % (sCNT, hx(SPIN)))
    LB("Lp%d" % u)
    issue()
    if pre_wait: pre_wait()
    A("s_waitcnt vmcnt(0)")
    mt = maxtree(regs, tmp) + ["v_cmp_eq_u32 vcc, -1, v%d" % tmp]
    spec = list(spec or [])
    ns = len(spec)
    per = -(-len(mt) // ns) if ns else 0
    for s in spec:
        A(s)
        for k in range(per):
            if mt: A(mt.pop(0))
    for m in mt: A(m)
    A("s_cbranch_vccz Ld%d" % u)
    A("s_sub_u32 s%d, s%d, 1" % (sCNT, sCNT))
    if back != "s_nop 7": A(back)
    A("s_cbranch_scc0 Lp%d" % u)
    if stub: touch_stub(stub)
    LB("Ld%d" % u)
    if DIAG and tag is not None:
        A("s_lshl_b32 m0, s%d, 2" % sLAY); A("s_add_u32 m0, m0, %d" % tag); A("s_nop 0")
        A("v_writelane_b32 v31, s%d, m0" % sCNT)

stubs = []
def touch_stub(name, branch_over=None):
    A("s_branch Lsk_%s" % name)
    L.append(".p2align 6")
    LB("Lst_%s" % name)
    A("s_setpc_b64 %s" % sr(sRET, 2))
    LB("Lsk_%s" % name)
    stubs.append(name)

def delay(cyc):
    if cyc == -1:
        A("s_waitcnt vmcnt(0)"); return
    while cyc >= 64:
        k = min(cyc // 64, 15); A("s_sleep %d" % k); cyc -= 64 * k
    if cyc >= 8: A("s_nop %d" % min(15, cyc // 4 - 1))

def ppoll(issue, regs, n, tmp, spec, pre=0, gap=128, mid=None, tag=None, fix=None, stub=None, lanes=None, per_load=None):
    uid[0] += 1; u = uid[0]
    def look(k):
        if per_load and PROG and gap < 0:
            r = list(regs(k)); out = []
            for i in range(n):
                out.append("s_waitcnt vmcnt(%d)" % (n - 1 - i))
                sp = list(per_load(k, i))
                ck = ["v_max3_u32 v%d, v%d, v%d, v%d" % (tmp + 1, r[4 * i], r[4 * i + 1], r[4 * i + 2]),
                      ("v_max_u32 v%d, v%d, v%d" % (tmp, tmp + 1, r[4 * i + 3])) if i == 0 else ("v_max3_u32 v%d, v%d, v%d, v%d" % (tmp, tmp, tmp + 1, r[4 * i + 3]))]
                while sp or ck:
                    if sp: out.append(sp.pop(0))
                    if ck: out.append(ck.pop(0))
            return out + ["v_cmp_eq_u32 vcc, -1, v%d" % tmp]
        out = ["s_waitcnt vmcnt(%d)" % (n if k == 0 else 0)]
        mt = maxtree(regs(k), tmp) + ["v_cmp_eq_u32 vcc, -1, v%d" % tmp]
        sp = list(spec(k)); per = -(-len(mt) // len(sp)) if sp else 0
        for x in sp:
            out.append(x)
            for _ in range(per):
                if mt: out.append(mt.pop(0))
        return out + mt + (["s_and_b64 vcc, vcc, %s" % sr(lanes, 2)] if lanes else [])
    A("s_mov_b32 s%d, %s" % (sCNT, hx(SPIN)))
    delay(pre)
    fine = FINE and tag == int(FINE)
    if fine: CST(8)
    LB("Lp%d" % u)
    issue(0)
    if fine and 0: CST(9)
    if mid: mid()
    if gap >= 0: delay(gap)
    if gap >= 0: issue(1)
    lk = look(0)
    if gap < 0 and not (per_load and PROG): lk[0] = "s_waitcnt vmcnt(0)"
    for k, x in enumerate(lk):
        A(x)
        if fine and k == 0: CST(13)
    if fine: CST(14)
    A("s_cbranch_vccz Ld%d" % u)
    if gap < 0: issue(1)
    A("s_sub_u32 s%d, s%d, 1" % (sCNT, sCNT))
    for x in look(1): A(x)
    for x in (fix or []): A(x)
    A("s_cbranch_vccz Ld%d" % u)
    A("s_sub_u32 s%d, s%d, 1" % (sCNT, sCNT))
    A("s_cmp_gt_i32 s%d, 0" % sCNT)
    A("s_cbranch_scc1 Lp%d" % u)
    if stub: touch_stub(stub)
    LB("Ld%d" % u)
    if fine: CST(15)
    if DIAG and tag is not None:
        A("s_lshl_b32 m0, s%d, 2" % sLAY); A("s_add_u32 m0, m0, %d" % tag); A("s_nop 0")
        A("v_writelane_b32 v31, s%d, m0" % sCNT)

def lds_spin(off, target, tmp, mask=None, sleep=0):
    uid[0] += 1; u = uid[0]
    A("s_mov_b32 s%d, %s" % (sT2, hx(SPIN * 4)))
    LB("Ls%d" % u)
    A("ds_read_b32 v%d, v%d offset:%d" % (tmp, vFL, off))
    A("s_waitcnt lgkmcnt(0)")
    A("v_readfirstlane_b32 s%d, v%d" % (sT1, tmp))
    if mask: A("s_and_b32 s%d, s%d, %d" % (sT0, sT1, mask))
    A("s_cmp_ge_u32 s%d, %d" % (sT0 if mask else sT1, target))
    A("s_cbranch_scc1 Lt%d" % u)
    if sleep: A("s_sleep %d" % sleep)
    A("s_sub_u32 s%d, s%d, 1" % (sT2, sT2))
    A("s_cbranch_scc0 Ls%d" % u)
    LB("Lt%d" % u)

def lds_arrive(off, tmp, val=1):
    if val is not None: A("v_mov_b32 v%d, %d" % (tmp, val))
    A("s_mov_b64 exec, 1")
    A("ds_add_u32 v%d, v%d offset:%d" % (vFL, tmp, off))
    A("s_mov_b64 exec, -1")

def store_local(op, data, vaddr, so):
    uid[0] += 1; u = uid[0]
    A("s_cbranch_scc1 Lw%d" % u)
    A("%s %s, v%d, %s, s%d offen" % (op, data, vaddr, sr(sWS, 4), so))
    LB("Lx%d" % u)
    ool.append(["Lw%d:" % u, "    %s %s, v%d, %s, s%d offen sc1" % (op, data, vaddr, sr(sWS, 4), so), "    s_branch Lx%d" % u])
def fastcmp(): A("s_cmp_eq_u32 s%d, 0" % sFAST)

def mf(d, a, b, c):
    return "v_mfma_f32_16x16x32_bf16 %s, %s, %s, %s" % (vr(d, 4), vr(a, 4), vr(b, 4), "0" if c is None else vr(c, 4))
def mfma(d, a, b, c): A(mf(d, a, b, c))

def tags():
    A("s_add_u32 s%d, s%d, 1" % (sTG1, sE))
    A("s_mul_i32 s%d, s%d, 0x9E3779B1" % (sTG2, sTG1))
    A("s_and_b32 s%d, s%d, -8" % (sTG2, sTG2))

def common_addr():
    A("v_and_b32 v18, 3, v%d" % vLANE)
    A("v_lshlrev_b32 v%d, 12, v17" % vQST)
    A("v_lshrrev_b32 v24, 1, v16")
    A("v_lshl_add_u32 v%d, v24, 8, v%d" % (vQST, vQST))
    A("v_and_b32 v24, 1, v16")
    A("v_lshl_add_u32 v%d, v24, 3, v%d" % (vQST, vQST))
    A("v_lshlrev_b32 v%d, 4, v24" % vLSE)
    A("s_mul_i32 s%d, s%d, %d" % (sT0, sW, XS))
    A("s_add_u32 s%d, s%d, %d" % (sT0, sT0, L_XN))
    A("v_add_u32 v%d, s%d, v%d" % (vXNW, sT0, vL16))
    A("s_lshl_b32 s%d, s%d, 8" % (sT0, sA))
    A("s_add_u32 s%d, s%d, %d" % (sT0, sT0, L_XN))
    A("v_mul_u32_u24 v25, %d, v18" % XS)
    A("v_lshl_add_u32 v25, v16, 4, v25")
    A("v_add_u32 v%d, s%d, v25" % (vXNR, sT0))
    A("v_mov_b32 v%d, %s" % (vZ, hx(f2u(1.0 / 512))))
    for r in range(4): A("v_mov_b32 v%d, 0x3f803f80" % (ONES + r))
    A("s_and_b32 s%d, s%d, 1" % (sT1, sC))
    A("s_lshr_b32 s%d, s%d, 1" % (sT2, sC))
    soff(sQS, [(sT1, 11), (sW, 9), (sA, 6), (sT2, 4)], 0)
    A("v_bfe_u32 v24, v%d, 2, 2" % vLANE)
    A("v_lshl_add_u32 v24, v16, 3, v24")
    A("v_lshlrev_b32 v24, 7, v24")
    A("v_bfe_u32 v25, v%d, 3, 2" % vLANE)
    A("v_lshlrev_b32 v25, 1, v25")
    A("v_bfe_u32 v26, v%d, 1, 1" % vLANE)
    A("v_xor_b32 v25, v25, v26")
    A("v_lshl_add_u32 v24, v25, 4, v24")
    A("v_and_b32 v26, 1, v%d" % vLANE)
    A("v_lshl_add_u32 v%d, v26, 3, v24" % vWT)
    A("s_mov_b32 s%d, 0x000f000f" % sMSK)
    A("s_mov_b32 s%d, 0x000f000f" % (sMSK + 1))
    A("s_mov_b32 s%d, 0" % sLAY)

def wtile_voff(shift, d):
    A("v_lshrrev_b32 v24, 3, v%d" % vLANE)
    A("v_and_b32 v25, 7, v%d" % vLANE)
    A("v_and_b32 v26, 1, v16")
    A("v_lshlrev_b32 v26, 1, v26")
    A("v_xor_b32 v25, v25, v26")
    A("v_lshlrev_b32 v25, 4, v25")
    A("v_lshl_add_u32 v%d, v24, %d, v25" % (d, shift))
    A("v_xor_b32 v%d, 64, v%d" % (d + 1, d))

def wqf_reads():
    A("s_lshl_b32 s%d, s%d, 5" % (sT1, sW))
    A("v_xor_b32 v26, s%d, v%d" % (sT1, vWT))
    for t in range(4):
        for hf in range(2):
            A("ds_read_b64_tr_b16 %s, v26 offset:%d" % (vr(WQF + 4 * t + 2 * hf, 2), L_WQ + 4096 * t + 512 * hf))

def dma(vaddr, srdn, so, lds_s, step_so, flags="nt"):
    A("s_mov_b32 m0, s%d" % lds_s)
    A("s_add_u32 s%d, s%d, 1024" % (lds_s, lds_s))
    A("buffer_load_dwordx4 v%d, %s, s%d offen %s lds" % (vaddr, sr(srdn, 4), so, flags))
    A("s_add_u32 s%d, s%d, %d" % (so, so, step_so))

hdr = open("cdna_kernels/%s.s.ref" % NAME).read().split("; Override launch")[0]
L.append(hdr.rstrip("\n") + """
;
; One persistent launch, 256 workgroups (one per CU) x 8 waves.  wg = A(2b):C(3b):j(3b); j = kv head.
; K, V, wq and wo are read from HBM exactly once (LDS-DMA) and stay in registers for both attention layers.
;   roles of a workgroup:  attention (batch A, keys 128C..), q projection (wq rows 128A.., 64 columns C),
;                          output projection (head A of group j, 64 columns C), row reduction (batch A, columns 64C..)
;   waves 0-3: stream wq/K/V/wo, q projections, attention, output projection, LayerNorm + mixer
;   waves 4-7: the token-mixer MLP g(h) = sum_f gelu(h w1 + b1) w2 + b2 evaluated
;              exactly (all 1792 hidden units) for every bf16 value h with 2^-17 <= |h| < 8; h is a bf16 tensor in the
;              reference, so the mixer is a lookup of these values; any other h is evaluated directly (Lslow).
; Hand-offs between workgroups go through d_ws.  Slots are filled with a sentinel at the start of the launch and a
; consumer polls until no sentinel is left; the first hand-off (q) and the "sentinels are in place" announcements
; carry a tag derived from a word that every launch advances.  Stores inside a kv-head group are plain when the
; whole group reports the same XCC id, write-through otherwise; every poll is bounded.
""".rstrip("\n"))
L.append("; @launch grid=(256,1,1) block=(512,1,1) lds=%d" % LDS_SZ)
L.append('.amdgcn_target "amdgcn-amd-amdhsa--gfx950"')
L.append(".text\n" + (".p2align 12\n" if int(OPT.get("al", 0)) else "") + ".globl %s_kernel\n.p2align 8\n.type %s_kernel,@function\n%s_kernel:" % (NAME, NAME, NAME))
if DIAG: A("s_memrealtime s[42:43]")
if DBL or TOT or MEAS: A("s_memrealtime s[98:99]")
sM = 96
A("s_lshr_b32 s%d, s2, 8" % sT0)
A("s_cbranch_scc1 Lend")
A("s_load_dwordx2 %s, s[0:1], 24" % sr(sWQ, 2))
A("s_load_dwordx4 %s, s[0:1], 0" % sr(sT2, 4))
A("v_readfirstlane_b32 s%d, v0" % sW)
C("every wave pulls one line of this kernel's code into L2 (plain read): 32 workgroups x 4 lines")
A("s_getpc_b64 s[10:11]")
LB("Lpc0")
A("s_lshr_b32 s%d, s2, 3" % sM)
A("s_lshl_b32 s%d, s%d, 9" % (sCNT, sM))
A("s_cmp_lg_u32 s%d, 0" % sW)
A("s_cbranch_scc1 Lnopf")
A("v_and_b32 v19, 3, v0")
A("v_lshl_add_u32 v19, v19, 7, s%d" % sCNT)
A("global_load_dword v%d, v19, s[10:11]" % (W + 8))
LB("Lnopf")
A("s_and_b32 s%d, s2, 7" % sJ)
A("s_lshr_b32 s%d, s2, 6" % sA)
A("s_and_b32 s%d, s%d, 7" % (sC, sM))
A("s_lshl_b32 s%d, 1, 17" % (sWQ + 3))
A("s_bitcmp1_b32 s%d, 8" % sW)
A("s_cbranch_scc1 Lhelp0")
vKA, vVA = W + 40, W + 44
sRO, sRM = sVO, 97 if not TOT else 94
if TOT: sRM = sOL
def kv_issue(i):
    A("s_add_u32 m0, s%d, s%d" % (sKL if i < 8 else sVL, sRO))
    A("s_add_u32 s%d, s%d, s%d" % (sCNT, sKO, sRO))
    if i < 8: A("buffer_load_dwordx4 v%d, %s, s%d offen nt lds" % (vKA + (i & 3), sr(sK, 4), sCNT))
    else: A("buffer_load_dwordx4 v%d, %s, s%d offen nt lds" % (vVA + (i & 1), sr(sV, 4), sCNT))
    A("s_addk_i32 s%d, %d" % (sRO, 1024 + (VROT * 1024 if i == 7 else 0)))
    A("s_and_b32 s%d, s%d, 0x1fff" % (sRO, sRO))
def lane_init():
    A("v_and_b32 v%d, 63, v0" % vLANE)
    A("v_mov_b32 v%d, %d" % (vFL, L_FLG))
    A("v_lshlrev_b32 v%d, 4, v%d" % (vL16, vLANE))
    A("v_lshrrev_b32 v16, 4, v%d" % vLANE)
    A("v_and_b32 v17, 15, v%d" % vLANE)
    A("v_mov_b32 v20, 0")
    if DIAG: A("v_mov_b32 v30, 0")
C("wq tile DMA: instruction i, thread t: row 32 i + (t>>3), 16-byte chunk (t&7) ^ swizzle")
A("v_lshrrev_b32 v23, 3, v0")
A("v_and_b32 v22, 7, v0")
A("v_and_b32 v24, 2, v23")
A("v_lshrrev_b32 v25, 1, v23")
A("v_and_or_b32 v24, v25, 4, v24")
A("v_xor_b32 v22, v22, v24")
A("v_lshlrev_b32 v22, 4, v22")
A("v_lshl_add_u32 v22, v23, 13, v22")
soff(sQL, [(sA, 20), (sJ, 10), (sC, 7)], 0)
A("s_lshl_b32 s%d, 1, 22" % (sWQ + 2))
A("s_lshl_b32 s%d, 1, 18" % sT1)
A("s_lshl_b32 s%d, s%d, 4" % (sQS, sW))
A("s_add_u32 m0, s%d, %d" % (sQS, L_WQ))
A("v_lshlrev_b32 v21, 4, v0")
A("s_waitcnt lgkmcnt(0)")
A("global_load_dwordx4 %s, v21, %s" % (vr(XR, 4), sr(sT2, 2)))
for i in range(4):
    if i:
        A("s_addk_i32 m0, 0x1000")
        A("s_add_u32 s%d, s%d, s%d" % (sQL, sQL, sT1))
    A("buffer_load_dwordx4 v22, %s, s%d offen nt lds" % (sr(sWQ, 4), sQL))
def main_early2():
    lane_init()
    A("s_lshl_b32 s%d, 1, 25" % (sK + 2)); A("s_mov_b32 s%d, s%d" % (sK + 3, sWQ + 3))
    A("s_mov_b64 %s, %s" % (sr(sK, 2), sr(sT4, 2)))
    A("v_xor_b32 v18, v17, v16")
    A("v_lshlrev_b32 v18, 4, v18")
    A("v_lshl_add_u32 v%d, v16, 8, v18" % vKA)
    A("s_lshl_b32 s%d, s%d, 10" % (sRO, sC))
    A("s_bfe_u32 s%d, s%d, 0x2000a" % (sT1, sRO))
    A("s_lshl_b32 s%d, s%d, 6" % (sT1, sT1))
    for k in range(1, 4):
        A("s_add_u32 s%d, s%d, %d" % (sCNT, sT1, 64 * k))
        A("s_and_b32 s%d, s%d, 0xc0" % (sCNT, sCNT))
        A("v_xor_b32 v%d, s%d, v%d" % (vKA + k, sCNT, vKA))
    A("v_xor_b32 v%d, s%d, v%d" % (vKA, sT1, vKA))
    soff(sKO, [(sA, 23), (sJ, 20), (sC, 15), (sW, 7)], 3072 * 256)
    A("s_add_u32 s%d, s%d, %d" % (sKL, sT0, L_K))
    for i in range(D0): kv_issue(i)
    A("s_add_u32 s%d, s%d, %d" % (sVL, sT0, L_V))
    A("s_lshr_b32 s%d, s%d, 6" % (sW, sW))
    if DIAG: A("v_writelane_b32 v30, s42, 0")
    STAMP(10)
    A("s_branch Lmain")

if HFIRST: A("s_branch Lmain1")
else: main_early2()
LB("Lhelp0")
C("---- helper waves: the table of g over bf16 inputs ----")
HW1, HB1, HW2 = 32, 60, 112
hK0, hK1, hONE, hRES = 88, 90, 92, 94
AC = [140, 142]
for s, off in [(sW1, 48), (sB1, 56), (sW2, 64), (sWS, 96), (sB2P, 72)]:
    A("s_load_dwordx2 %s, s[0:1], %d" % (sr(s, 2), off))
lane_init()
A("v_mov_b32 v21, 0")
for k in range(4): A("ds_write_b64 v%d, v[20:21] offset:%d" % (vFL, 8 * k))
A("ds_write_b32 v%d, v20 offset:44" % vFL)
A("ds_write_b32 v%d, v20 offset:60" % vFL)
A("ds_write_b32 v%d, v20 offset:48" % vFL)
A("s_bfe_u32 s%d, s%d, 0x20006" % (sW, sW))
srd(sWS, WS_SZ)
for s in [sW1, sB1, sW2]: srd(s, 3584)
for i in range(4): A("v_mov_b32 v%d, -1" % (PM + i))
A("s_waitcnt lgkmcnt(0)")
A("s_lshl_b32 s%d, s%d, 10" % (sT3, sW))
A("s_mul_i32 s%d, s%d, %d" % (sT5, sM, CLRA_PER))
A("s_lshl_b32 s%d, s%d, 17" % (sGR, sJ))
A("s_add_u32 s%d, s%d, s%d" % (sT5, sT5, sGR))
A("s_add_u32 s%d, s%d, 1024" % (sT4, sT5))
A("s_lshl_b32 s%d, s%d, 7" % (sT1, sM))
A("v_mov_b32 v19, s%d" % sT1)
def h_coef():
    A("s_mov_b32 m0, s%d" % sT3)
    for i, sd in enumerate([sW1, sB1, sW2]):
        if i: A("s_addk_i32 m0, 0x1000")
        A("s_nop 0")
        A("buffer_load_dwordx4 v%d, %s, s%d offen lds" % (vL16, sr(sd, 4), sT3))
C("hw0, hw1: early sentinels (O0, LSE0) ; hw3: a slice of each coefficient array into L2")
A("s_cmp_ge_u32 s%d, 2" % sW)
A("s_cbranch_scc1 Lhc_pf")
A("s_cmp_eq_u32 s%d, 0" % sW)
A("s_cselect_b32 s%d, s%d, s%d" % (sT5, sT5, sT4))
A("s_cselect_b64 exec, -1, 1")
A("buffer_store_dwordx4 %s, v%d, %s, s%d offen sc1" % (vr(PM, 4), vL16, sr(sWS, 4), sT5))
A("s_branch Lhc_skip")
LB("Lhc_pf")
if SLC:
    A("s_cmp_eq_u32 s%d, 2" % sW)
    A("s_cbranch_scc1 Lhc_skip")
    A("s_mov_b64 exec, 1")
    for k, sd in enumerate([sW1, sB1, sW2]): A("buffer_load_dword v%d, v19, %s, 0 offen" % (W + k, sr(sd, 4)))
LB("Lhc_skip")
A("s_mov_b64 exec, -1")
if not SLC: h_coef()
A("s_load_dword s%d, %s, 0" % (sB2, sr(sB2P, 2)))
if MEAS:
    A("s_load_dwordx2 s[42:43], s[0:1], 88"); A("s_waitcnt lgkmcnt(0)"); A("v_mov_b32 v30, s42"); A("v_mov_b32 v31, s43")
if DIAG: A("v_writelane_b32 v30, s42, 0")
STAMP(9)
A("s_barrier")
if HFIRST:
    A("s_branch Lhelp1")
    LB("Lmain1")
    main_early2()
    LB("Lhelp1")
A("s_lshl_b32 s%d, s2, 2" % sHC)
A("s_add_u32 s%d, s%d, s%d" % (sHC, sHC, sW))
sHX = 86
if XENT:
    C("extra entry e = wave index: |h| code ELO*128 + (e>>1), sign e&1")
    A("s_lshr_b32 s%d, s%d, 1" % (sHX, sHC))
    A("s_add_u32 s%d, s%d, %d" % (sHX, sHX, ELO * 128))
    A("s_lshl_b32 s%d, s%d, 16" % (sHX, sHX))
    A("s_lshl_b32 s%d, s%d, 31" % (sT0, sHC))
    A("s_or_b32 s%d, s%d, s%d" % (sHX, sHX, sT0))
A("s_mul_i32 s%d, s%d, %d" % (sHC, sHC, EPW))
A("s_lshl_b32 s%d, s%d, 3" % (sHT, sHC))
A("s_add_u32 s%d, s%d, %d" % (sHT, sHT, XENT * 4))
A("s_add_u32 s%d, s%d, %d" % (sHC, sHC, ELO * 128 + XENT // 2))
A("s_lshl_b32 s%d, s%d, 16" % (sHC, sHC))
A("v_lshlrev_b32 v27, 2, v%d" % vLANE)
A("v_add_u32 v27, s%d, v27" % sHT)
A("s_mov_b32 s%d, %s" % (sHT, hx(TB)))
for r, c in [(hK0, K0), (hK1, K1), (hONE, 1.0)]:
    A("v_mov_b32 v%d, %s" % (r, hx(f2u(c)))); A("v_mov_b32 v%d, %s" % (r + 1, hx(f2u(c))))
A("v_mov_b32 v%d, 0" % hRES)
A("s_mov_b32 s%d, 0" % sIT)
if WARM:
    C("warm the instruction cache lines at the far jump targets of the main waves")
    for k, nm in enumerate(["k", "fin", "out", "tab"]):
        A("s_cmp_lg_u32 s%d, %d" % (sW, k))
        A("s_cbranch_scc1 Lwm%d" % k)
        A("s_call_b64 %s, Lst_%s" % (sr(sRET, 2), nm))
        if nm == "out": A("s_call_b64 %s, Lst_mq" % sr(sRET, 2))
        LB("Lwm%d" % k)
HR = W + 8
A("v_lshlrev_b32 v26, 3, v%d" % vLANE)
if SLC:
    C("slices are in L2 once hw3's own have returned")
    A("s_waitcnt vmcnt(0)")
    lds_arrive(0, 24)
    A("s_cmp_lg_u32 s%d, 3" % sW)
    A("s_cbranch_scc1 Lhs1")
    lds_arrive(52 - 8, 24)
    LB("Lhs1")
    lds_spin(52 - 8, 1, 24, sleep=1)
    h_coef()
    A("s_waitcnt vmcnt(0)")
else:
    A("s_waitcnt vmcnt(3)")
    lds_arrive(0, 24)
    A("s_waitcnt vmcnt(0)")
STAMP(1)
lds_arrive(24, 24)
lds_spin(24, 4, 24)
for a_ in range(3):
    for k in range(3):
        A("ds_read_b128 %s, v%d offset:%d" % (vr(HR + 14 * a_ + 4 * k, 4), vL16, 4096 * a_ + 1024 * k))
    A("ds_read_b64 %s, v26 offset:%d" % (vr(HR + 14 * a_ + 12, 2), 4096 * a_ + 3072))
for a_, d in [(0, HW1), (14, HB1), (28, HW2)]:
    A("s_waitcnt lgkmcnt(%d)" % (8 - 4 * (a_ // 14)))
    for p in range(14):
        A("v_lshlrev_b32 v%d, 16, v%d" % (d + 2 * p, HR + a_ + p))
        A("v_and_b32 v%d, 0xffff0000, v%d" % (d + 2 * p + 1, HR + a_ + p))
STAMP(4)
MP("hst")
if DIAG:
    A("s_memtime s[42:43]"); A("s_waitcnt lgkmcnt(0)"); A("v_writelane_b32 v30, s42, 13")
LB("Lhl")
if DIAG:
    A("s_memrealtime s[42:43]"); A("s_add_u32 m0, s%d, 10" % sIT); A("s_waitcnt lgkmcnt(0)"); A("v_writelane_b32 v30, s42, m0")
A("s_mov_b32 s%d, s%d" % (sH, sHC)); A("s_mov_b32 s%d, s%d" % (sH + 1, sHC))
A("s_xor_b32 s%d, s%d, 0x80000000" % (sH2, sHC)); A("s_mov_b32 s%d, s%d" % (sH2 + 1, sH2))
U4 = [144, 146, 148, 150]; T4 = [152, 154, 156, 158]; Z4 = [160, 162, 164, 166]
for p2 in range(7):
    ch = [(2 * p2 + k // 2, k & 1) for k in range(4)]
    for k, (p, sg) in enumerate(ch):
        A("v_pk_fma_f32 %s, %s, %s, %s" % (vr(U4[k], 2), vr(HW1 + 2 * p, 2), sr([sH, sH2][sg], 2), vr(HB1 + 2 * p, 2)))
    for k in range(4): A("v_pk_mul_f32 %s, %s, %s" % (vr(T4[k], 2), vr(U4[k], 2), vr(U4[k], 2)))
    for k in range(4): A("v_pk_fma_f32 %s, %s, %s, %s" % (vr(T4[k], 2), vr(T4[k], 2), vr(hK1, 2), vr(hK0, 2)))
    for k in range(4): A("v_pk_mul_f32 %s, %s, %s" % (vr(T4[k], 2), vr(T4[k], 2), vr(U4[k], 2)))
    for k in range(4):
        for h in range(2): A("v_exp_f32 v%d, v%d" % (T4[k] + h, T4[k] + h))
    for k, (p, sg) in enumerate(ch): A("v_pk_mul_f32 %s, %s, %s" % (vr(Z4[k], 2), vr(U4[k], 2), vr(HW2 + 2 * p, 2)))
    for k in range(4): A("v_pk_add_f32 %s, %s, %s" % (vr(T4[k], 2), vr(T4[k], 2), vr(hONE, 2)))
    for k in range(4):
        for h in range(2): A("v_rcp_f32 v%d, v%d" % (T4[k] + h, T4[k] + h))
    for k, (p, sg) in enumerate(ch):
        if p == 0: A("v_pk_mul_f32 %s, %s, %s" % (vr(AC[sg], 2), vr(Z4[k], 2), vr(T4[k], 2)))
        else: A("v_pk_fma_f32 %s, %s, %s, %s" % (vr(AC[sg], 2), vr(Z4[k], 2), vr(T4[k], 2), vr(AC[sg], 2)))
A("v_add_f32 v%d, v%d, v%d" % (AC[0], AC[0], AC[0] + 1))
A("v_add_f32 v%d, v%d, v%d" % (AC[1], AC[1], AC[1] + 1))
A("s_lshl_b32 m0, s%d, 1" % sIT)
A("s_add_u32 s%d, s%d, 0x10000" % (sHC, sHC))
wave_sum2(AC[0], AC[1], sSUM, sSQ)
A("s_add_u32 s%d, s%d, 1" % (sIT, sIT))
A("s_nop 0")
A("v_writelane_b32 v%d, s%d, m0" % (hRES, sSUM))
A("s_add_u32 m0, m0, 1")
A("s_cmp_lg_u32 s%d, %d" % (sIT, EPW))
A("v_writelane_b32 v%d, s%d, m0" % (hRES, sSQ))
A("s_cbranch_scc1 Lhl")
def h_publish(lanes):
    A("v_cvt_pk_bf16_f32 v%d, v%d, v%d" % (hRES, hRES, hRES))
    A("v_and_b32 v%d, 0xffff0000, v%d" % (hRES, hRES))
    A("v_add_f32 v%d, s%d, v%d" % (hRES, sB2, hRES))
    A("v_cvt_pk_bf16_f32 v%d, v%d, v%d" % (hRES, hRES, hRES))
    A("v_and_b32 v%d, 0xffff0000, v%d" % (hRES + 1, hRES))
    A("s_mov_b64 exec, %d" % lanes)
    A("buffer_store_dword v%d, v27, %s, s%d offen sc1" % (hRES + 1, sr(sWS, 4), sHT))
    A("s_mov_b64 exec, -1")
A("s_waitcnt lgkmcnt(0)")
A("s_lshl_b32 s%d, s%d, 16" % (sB2, sB2))
lds_spin(8, 4, 24)
h_publish((1 << (2 * EPW)) - 1)
if QBD:
    C("the write-through copy of q is only needed when the group is not known to sit on one XCD")
    A("ds_read_b32 v24, v%d offset:4" % vFL)
    A("s_waitcnt lgkmcnt(0)")
    A("v_readfirstlane_b32 s%d, v24" % sT0)
    A("s_cmp_eq_u32 s%d, 4" % sT0)
    A("s_cbranch_scc1 Lhqb")
    A("s_mov_b64 exec, %s" % sr(sMSK, 2))
    A("buffer_store_dwordx4 %s, v%d, %s, s%d offen sc1" % (vr(W + 4, 4), vQST, sr(sWS, 4), sQS))
    A("s_mov_b64 exec, -1")
    LB("Lhqb")
STAMP(8)
MP("htab")
if XENT:
    A("s_mov_b32 s%d, s%d" % (sH, sHX)); A("s_mov_b32 s%d, s%d" % (sH + 1, sHX))
    for grp in [[0, 1, 2, 3], [4, 5, 6, 7], [8, 9, 10], [11, 12, 13]]:
        n = len(grp)
        for k, p in enumerate(grp): A("v_pk_fma_f32 %s, %s, %s, %s" % (vr(U4[k], 2), vr(HW1 + 2 * p, 2), sr(sH, 2), vr(HB1 + 2 * p, 2)))
        for k in range(n): A("v_pk_mul_f32 %s, %s, %s" % (vr(T4[k], 2), vr(U4[k], 2), vr(U4[k], 2)))
        for k in range(n): A("v_pk_fma_f32 %s, %s, %s, %s" % (vr(T4[k], 2), vr(T4[k], 2), vr(hK1, 2), vr(hK0, 2)))
        for k in range(n): A("v_pk_mul_f32 %s, %s, %s" % (vr(T4[k], 2), vr(T4[k], 2), vr(U4[k], 2)))
        for k in range(n):
            for h in range(2): A("v_exp_f32 v%d, v%d" % (T4[k] + h, T4[k] + h))
        for k, p in enumerate(grp): A("v_pk_mul_f32 %s, %s, %s" % (vr(Z4[k], 2), vr(U4[k], 2), vr(HW2 + 2 * p, 2)))
        for k in range(n): A("v_pk_add_f32 %s, %s, %s" % (vr(T4[k], 2), vr(T4[k], 2), vr(hONE, 2)))
        for k in range(n):
            for h in range(2): A("v_rcp_f32 v%d, v%d" % (T4[k] + h, T4[k] + h))
        for k, p in enumerate(grp):
            if p < 2: A("v_pk_mul_f32 %s, %s, %s" % (vr(AC[p & 1], 2), vr(Z4[k], 2), vr(T4[k], 2)))
            else: A("v_pk_fma_f32 %s, %s, %s, %s" % (vr(AC[p & 1], 2), vr(Z4[k], 2), vr(T4[k], 2), vr(AC[p & 1], 2)))
    A("v_add_f32 v%d, v%d, v%d" % (AC[0], AC[0], AC[0] + 1))
    A("v_add_f32 v%d, v%d, v%d" % (AC[1], AC[1], AC[1] + 1))
    A("v_add_f32 v%d, v%d, v%d" % (AC[0], AC[0], AC[1]))
    A("s_nop 1")
    wave_sum2(AC[0], AC[1], sSUM, sSQ)
    A("s_nop 1")
    A("v_mov_b32 v%d, s%d" % (hRES, sSUM))
    A("v_cvt_pk_bf16_f32 v%d, v%d, v%d" % (hRES, hRES, hRES))
    A("v_and_b32 v%d, 0xffff0000, v%d" % (hRES, hRES))
    A("v_add_f32 v%d, s%d, v%d" % (hRES, sB2, hRES))
    A("v_cvt_pk_bf16_f32 v%d, v%d, v%d" % (hRES, hRES, hRES))
    A("v_and_b32 v%d, 0xffff0000, v%d" % (hRES, hRES))
    C("the last of the four helpers stores the workgroup's four extra entries with one instruction")
    A("s_lshl_b32 s%d, s%d, 2" % (sT0, sW))
    A("v_add_u32 v16, s%d, v%d" % (sT0, vFL))
    A("v_mov_b32 v17, 1")
    A("s_mov_b64 exec, 1")
    A("ds_write_b32 v16, v%d offset:32" % hRES)
    A("s_waitcnt lgkmcnt(0)")
    A("ds_add_rtn_u32 v18, v%d, v17 offset:28" % vFL)
    A("s_waitcnt lgkmcnt(0)")
    A("v_readfirstlane_b32 s%d, v18" % sT0)
    A("s_cmp_lg_u32 s%d, 3" % sT0)
    A("s_cbranch_scc1 Lhx_end")
    A("ds_read_b128 v[20:23], v%d offset:32" % vFL)
    A("s_lshl_b32 s%d, s2, 4" % sT0)
    A("v_mov_b32 v16, s%d" % sT0)
    A("s_waitcnt lgkmcnt(0)")
    A("buffer_store_dwordx4 v[20:23], v16, %s, s%d offen sc1" % (sr(sWS, 4), sHT))
    LB("Lhx_end")
    A("s_mov_b64 exec, -1")
if DIAG:
    A("s_memtime s[42:43]"); A("s_waitcnt lgkmcnt(0)"); A("v_writelane_b32 v30, s42, 14")
    STAMP(15)
STAMP(7)
if TPF:
    C("pull a slice of the finished table into this XCD's L2 ahead of the gather")
    lds_spin(TPF_OFF, 4, 24, sleep=1)
    A("s_cmp_ge_u32 s%d, 20" % sM)
    A("s_cbranch_scc1 Lhtp")
    soff(sT1, [(sM, 10), (sW, 8)], TB)
    A("v_lshlrev_b32 v16, 7, v%d" % vLANE)
    A("s_mov_b64 exec, 3")
    A("buffer_load_dword v17, v16, %s, s%d offen sc1" % (sr(sWS, 4), sT1))
    A("s_mov_b64 exec, -1")
    LB("Lhtp")
if HG:
    C("gather the table into LDS (V fragments are in registers, every workgroup's sentinels were in place)")
    lds_spin(HG_OFF, 4, 24, sleep=1)
    A("s_lshl_b32 s%d, s%d, 12" % (sT3, sW))
    A("s_add_u32 s%d, s%d, %d" % (sT3, sT3, XENT * 4))
    A("v_add_u32 v20, s%d, v%d" % (sT3, vL16))
    A("v_add_u32 v20, %d, v20" % L_TAB)
    A("s_add_u32 s%d, s%d, %s" % (sT3, sT3, hx(TB)))
    A("s_lshl_b32 s%d, s%d, 10" % (sT4, sW))
    A("v_add_u32 v21, s%d, v%d" % (sT4, vL16))
    A("v_add_u32 v21, %d, v21" % L_TAB)
    A("s_add_u32 s%d, s%d, %s" % (sT4, sT4, hx(TB)))
    def hgi():
        for i in range(4):
            A("buffer_load_dwordx4 %s, v%d, %s, s%d offen offset:%d sc1" % (vr(32 + 4 * i, 4), vL16, sr(sWS, 4), sT3, 1024 * i))
        A("buffer_load_dwordx4 v[48:51], v%d, %s, s%d offen sc1" % (vL16, sr(sWS, 4), sT4))
    poll(hgi, range(32, 48), vT, back="s_sleep 6")
    for i in range(4): A("ds_write_b128 v20, %s offset:%d" % (vr(32 + 4 * i, 4), 1024 * i))
    A("ds_write_b128 v21, v[48:51]")
    A("s_waitcnt lgkmcnt(0)")
    lds_arrive(20, 24)
    MP("htg")
    A("s_mov_b32 s%d, 3" % sCNT)
    LB("Lhge")
    for x in maxtree(range(48, 52), vT): A(x)
    A("v_cmp_eq_u32 vcc, -1, v%d" % vT)
    A("s_cbranch_vccz Lhgc")
    A("s_sleep 6")
    A("buffer_load_dwordx4 v[48:51], v%d, %s, s%d offen sc1" % (vL16, sr(sWS, 4), sT4))
    A("s_waitcnt vmcnt(0)")
    A("ds_write_b128 v21, v[48:51]")
    A("s_sub_u32 s%d, s%d, 1" % (sCNT, sCNT))
    A("s_cbranch_scc0 Lhge")
    A("s_branch Lhgd")
    LB("Lhgc")
    A("s_waitcnt lgkmcnt(0)")
    lds_arrive(48, 24)
    LB("Lhgd")
    A("s_waitcnt lgkmcnt(0)")
C("stand in at the two barriers of the second layer, so that they do not wait for this wave's store acknowledgements")
A("s_barrier")
A("s_barrier")
if MEAS and OPT["q"][0] == "h":
    A("s_mov_b64 exec, 1"); A("v_mov_b32 v16, s97"); A("global_atomic_umax v[30:31], v16, off sc1")
if DIAG:
    A("s_add_u32 s%d, s%d, 4" % (sW, sW))
    A("v_mov_b32 v28, v30")
    A("s_branch Lfin_exit")
A("s_endpgm")

LB("Lmain")
for s, off in [(sWS, 96), (sV, 16), (sWO, 32), (sOUT, 80), (sX, 0), (sB2P, 72), (sW1, 48), (sB1, 56), (sW2, 64)]:
    A("s_load_dwordx2 %s, s[0:1], %d" % (sr(s, 2), off))
if MEAS: A("s_load_dwordx2 s[42:43], s[0:1], 88"); A("s_waitcnt lgkmcnt(0)"); A("s_mov_b32 s25, s42"); A("s_mov_b32 s99, s43") if False else None; A("v_mov_b32 v30, s42"); A("v_mov_b32 v31, s43")
srd(sWS, WS_SZ)
for s in [sW1, sB1, sW2]: srd(s, 3584)
A("s_barrier")
for i in range(D0, D1): kv_issue(i)
for i in range(4): A("v_mov_b32 v%d, -1" % (W + i))
A("s_lshl_b32 s%d, s%d, 17" % (sGR, sJ))
A("s_mov_b32 s%d, s%d" % (sT1, sM))
A("s_waitcnt lgkmcnt(0)")
A("s_load_dword s%d, %s, %s" % (sE, sr(sWS, 2), hx(EPO)))
STAMP(11)
for s, n in [(sV, 1 << 25), (sX, 4096), (sWO, 1 << 22), (sOUT, 4096)]: srd(s, n)
A("v_lshlrev_b32 v18, 1, v16")
A("v_xor_b32 v18, v17, v18")
A("v_lshlrev_b32 v18, 4, v18")
A("v_lshl_add_u32 v%d, v16, 8, v18" % vVA)
if ROT:
    A("s_and_b32 s%d, s%d, 1" % (sT0, sC))
    A("s_lshl_b32 s%d, s%d, 7" % (sT0, sT0))
    A("v_xor_b32 v%d, s%d, v%d" % (vVA, sT0, vVA))
A("v_xor_b32 v%d, 128, v%d" % (vVA + 1, vVA))
C("late sentinels: wave 0,1: group region ; wave 2: P chunk")
A("s_lshr_b32 s%d, s2, 3" % sT1)
A("s_mul_i32 s%d, s%d, %d" % (sT1, sT1, CLRB_PER))
A("s_lshl_b32 s%d, s%d, 10" % (sT0, sW))
A("s_add_u32 s%d, s%d, s%d" % (sT1, sT1, sT0))
A("s_add_u32 s%d, s%d, s%d" % (sT1, sT1, sGR))
A("s_add_u32 s%d, s%d, %d" % (sT1, sT1, CLRB_OFF))
A("s_lshl_b32 s%d, s2, 10" % sT0)
A("s_add_u32 s%d, s%d, %s" % (sT0, sT0, hx(PB)))
A("s_cmp_ge_u32 s%d, 2" % sW)
A("s_cselect_b32 s%d, s%d, s%d" % (sT1, sT0, sT1))
A("s_bfm_b64 %s, %d, 0" % (sr(sH, 2), (CLRB_PER - 1024) // 16))
A("s_cmp_eq_u32 s%d, 1" % sW)
A("s_cselect_b64 %s, %s, -1" % (sr(sH, 2), sr(sH, 2)))
NCL = NOCT * 4 // 16
A("v_mov_b32 v19, v%d" % vL16)
A("s_cmp_lg_u32 s%d, 3" % sW)
A("s_cbranch_scc1 Lm_c3")
C("wave 3: this workgroup's table slots")
A("s_mul_i32 s%d, s2, %d" % (sT0, NOCT * 4))
A("s_add_u32 s%d, s%d, %d" % (sT0, sT0, XENT * 4))
A("v_add_u32 v19, s%d, v19" % sT0)
A("s_lshl_b32 s%d, s2, 4" % sT0)
if XENT: A("v_writelane_b32 v19, s%d, %d" % (sT0, NCL))
A("s_mov_b32 s%d, %s" % (sT1, hx(TB)))
A("s_mov_b64 %s, %d" % (sr(sH, 2), (1 << (NCL + (1 if XENT else 0))) - 1))
LB("Lm_c3")
A("s_mov_b64 exec, %s" % sr(sH, 2))
A("buffer_store_dwordx4 %s, v19, %s, s%d offen sc1" % (vr(W, 4), sr(sWS, 4), sT1))
A("s_mov_b64 exec, -1")

common_addr()
A("s_add_u32 s%d, s%d, s%d" % (sQS, sQS, sGR))
A("s_add_u32 s%d, s%d, %d" % (sQS, sQS, Q1_OFF))
wtile_voff(10, 22)
A("v_and_b32 v19, 7, v%d" % vLANE)
A("v_lshrrev_b32 v25, 2, v%d" % vLANE)
A("v_lshlrev_b32 v25, 7, v25")
A("v_lshl_add_u32 v%d, v18, 2, v25" % vOST)
A("v_lshlrev_b32 v25, 7, v16")
A("v_lshl_add_u32 v%d, v19, 4, v25" % vOLD)
C("lanes n>=8 of the first two o loads fetch the lse values instead: offset relative to the o block")
A("s_mul_i32 s%d, s%d, %d" % (sT0, sA, 128 - 8192))
A("s_mul_i32 s%d, s%d, %d" % (sT1, sW, 32 - 2048))
A("s_add_u32 s%d, s%d, s%d" % (sT0, sT0, sT1))
A("s_add_u32 s%d, s%d, %d" % (sT0, sT0, LSE_OFF[0] - O_OFF[0]))
A("v_add_u32 v25, s%d, v%d" % (sT0, vLSE))
A("v_xor_b32 v26, 16, v25")
A("v_add_u32 v26, -512, v26")
A("v_cmp_gt_u32 vcc, 8, v17")
A("s_nop 1")
A("v_cndmask_b32 v%d, v25, v%d, vcc" % (vLSE, vOLD))
A("v_cndmask_b32 v%d, v26, v%d, vcc" % (vLS2, vOLD))
A("v_lshlrev_b32 v%d, 1, v%d" % (vPST, vLANE))
A("v_lshlrev_b32 v25, 3, v16")
A("v_lshl_add_u32 v%d, v19, 4, v25" % vX1S)
A("s_mul_i32 s%d, s%d, %d" % (sT0, sW, RBS))
A("s_add_u32 s%d, s%d, %d" % (sT0, sT0, L_RB))
A("v_mul_u32_u24 v25, 528, v18")
A("v_lshl_add_u32 v25, v16, 4, v25")
A("v_lshrrev_b32 v26, 2, v17")
A("v_lshl_add_u32 v25, v26, 7, v25")
A("v_add_u32 v%d, s%d, v25" % (vRBW, sT0))
A("s_mul_i32 s%d, s%d, 528" % (sT0, sW))
A("s_add_u32 s%d, s%d, %d" % (sT0, sT0, L_RB))
A("v_lshlrev_b32 v25, 3, v%d" % vLANE)
A("v_add_u32 v%d, s%d, v25" % (vRBR, sT0))
A("s_lshl_b32 s%d, s%d, 3" % (sT0, sW))
A("s_add_u32 s%d, s%d, %d" % (sT0, sT0, L_ML))
A("v_lshlrev_b32 v25, 5, v18")
A("v_add_u32 v%d, s%d, v25" % (vMLW, sT0))
A("s_lshl_b32 s%d, s%d, 5" % (sT0, sW))
A("s_add_u32 s%d, s%d, %d" % (sT0, sT0, L_ML))
A("v_mov_b32 v%d, s%d" % (vMLR, sT0))
A("v_mov_b32 v25, 0x3f80")
A("v_mov_b32 v26, 0x3f800000")
for r in range(4):
    A("v_cmp_eq_u32 vcc, %d, v17" % (2 * r))
    A("v_cmp_eq_u32 %s, %d, v17" % (sr(sH, 2), 2 * r + 1))
    A("s_nop 0")
    A("v_cndmask_b32 v%d, 0, v25, vcc" % (SEL + r))
    A("v_cndmask_b32 v%d, v%d, v26, %s" % (SEL + r, SEL + r, sr(sH, 2)))
for i in range(16): A("v_mov_b32 v%d, 0" % (PM + i))
for p in range(4):
    A("s_mov_b32 s%d, %s" % (sPM + 2 * p, hx(0x000f000f << (4 * p))))
    A("s_mov_b32 s%d, %s" % (sPM + 2 * p + 1, hx(0x000f000f << (4 * p))))
soff(sOS, [(sW, 13), (sA, 11), (sC, 4), (sJ, 17)], O_OFF[0])
soff(sOL, [(sA, 13), (sW, 11), (sJ, 17)], O_OFF[0])
A("s_add_u32 s%d, s%d, %s" % (sQL, sOL, hx(Q0_OFF - O_OFF[0])))
soff(sLS, [(sW, 7), (sA, 5), (sC, 2), (sJ, 17)], LSE_OFF[0])
soff(sPS, [(sW, 15), (sC, 12), (sJ, 9), (sA, 7)], PB)
A("s_mov_b32 s%d, %s" % (sSC, hx(f2u(128 ** -0.5 * math.log2(math.e)))))
A("s_getreg_b32 s%d, hwreg(HW_REG_XCC_ID, 0, 3)" % sXCC)
C("first q projection")
A("s_sub_u32 s%d, s%d, s%d" % (sIT, sQS, sGR))
A("s_lshl_b32 s%d, s%d, 1" % (sIT, sIT))
A("s_add_u32 s%d, s%d, s%d" % (sIT, sIT, sGR))
A("s_add_u32 s%d, s%d, %s" % (sIT, sIT, hx(Q0_OFF - 2 * Q1_OFF)))
A("v_lshlrev_b32 v21, 1, v%d" % vQST)
STAMP(12)
if DIAG: A("v_mov_b32 v31, v30")
A("s_waitcnt vmcnt(%d)" % (4 + D1 + 1))
A("s_branch Llnq")
LB("Lq_first")
A("s_waitcnt vmcnt(%d) lgkmcnt(0)" % (D1 + 1))
lds_arrive(0, vT + 4)
for i in range(D1, D2): kv_issue(i)
tags()
A("s_or_b32 s%d, s%d, s%d" % (sXCC, sXCC, sTG2))
lds_spin(0, 8, vT + 4)
wqf_reads()
A("s_waitcnt lgkmcnt(0)")
A("s_branch Lq_go")
LB("Lh_qst")
A("v_mov_b32 v%d, s%d" % (W + 6, sTG1))
A("v_mov_b32 v%d, s%d" % (W + 7, sXCC))
A("buffer_store_dwordx4 %s, v21, %s, s%d offen%s" % (vr(W + 4, 4), sr(sWS, 4), sIT, "" if int(OPT.get("fast", 1)) else " sc1"))
A("s_add_u32 s%d, s%d, %s" % (sIT, sIT, hx(QB_DELTA)))
A("buffer_store_dwordx4 %s, v21, %s, s%d offen sc1" % (vr(W + 4, 4), sr(sWS, 4), sIT))
A("s_mov_b64 exec, -1")
STAMP(14)
MP("mq")
A("v_lshrrev_b32 v16, 4, v%d" % vLANE)
A("v_and_b32 v17, 15, v%d" % vLANE)
A("v_xor_b32 v24, v16, v17")
A("v_lshlrev_b32 v24, 4, v24")
A("v_lshl_add_u32 v24, v17, 8, v24")
A("s_lshl_b32 s%d, s%d, 13" % (sT1, sW))
A("s_add_u32 s%d, s%d, %d" % (sT2, sT1, L_K))
for t in range(4): A("v_xor_b32 v%d, %d, v24" % (18 + t, 64 * t))
for t in range(4): A("v_add_u32 v%d, s%d, v%d" % (18 + t, sT2, 18 + t))
VA = W + 32
A("v_lshrrev_b32 v24, 2, v%d" % vLANE)
A("v_and_b32 v25, 7, v24")
A("v_lshlrev_b32 v25, 1, v25")
A("v_bfe_u32 v26, v%d, 1, 1" % vLANE)
A("v_xor_b32 v25, v25, v26")
A("v_lshlrev_b32 v25, 4, v25")
A("v_lshl_add_u32 v25, v24, 8, v25")
A("v_and_b32 v26, 1, v%d" % vLANE)
A("v_lshl_add_u32 v25, v26, 3, v25")
A("s_add_u32 s%d, s%d, %d" % (sT2, sT1, L_V))
for t in range(8): A("v_xor_b32 v%d, %d, v25" % (VA + t, 32 * t))
for t in range(8): A("v_add_u32 v%d, s%d, v%d" % (VA + t, sT2, VA + t))
soff(sT4, [(sJ, 19), (sA, 17), (sW, 15), (sC, 7)], 0)
A("s_lshl_b32 s%d, s%d, 12" % (sT5, sW))
A("s_add_u32 s%d, s%d, %d" % (sT5, sT5, L_WO))
soff(sT3, [(sA, 10), (sC, 7)], 0)
A("v_lshlrev_b32 v24, 5, v%d" % vLANE)
A("s_lshl_b32 s%d, s%d, 10" % (sT2, sW))
A("s_add_u32 s%d, s%d, %d" % (sT2, sT2, L_QF))
A("v_add_u32 v25, s%d, v%d" % (sT2, vL16))
A("v_add_u32 v26, %d, v%d" % (L_QF, vL16))
QP = W
def q0_issue(QP=QP):
    A("buffer_load_dwordx4 %s, v24, %s, s%d offen sc1" % (vr(QP, 4), sr(sWS, 4), sQL))
    A("buffer_load_dwordx4 %s, v24, %s, s%d offen offset:16 sc1" % (vr(QP + 4, 4), sr(sWS, 4), sQL))
def flag_block():
    if True:
        A("s_cmp_lg_u32 s%d, 0" % sW)
        A("s_cbranch_scc1 Lnoflag")
        C("every sentinel store of this workgroup is acknowledged: announce it")
        lds_spin(8, 4, vT)
        A("v_mov_b32 v16, s%d" % sTG1)
        A("v_mov_b32 v17, s%d" % sXCC)
        soff(sT1, [(2, 4)], FB)
        A("s_mov_b64 exec, 1")
        A("buffer_store_dwordx2 v[16:17], v%d, %s, s%d offen sc1" % (PM, sr(sWS, 4), sT1))
        A("s_mov_b64 exec, -1")
        LB("Lnoflag")
ycl = D2 - D1 + 2; st_arr = st_fl = False
for i in range(D2, 16):
    dp = DEPTH
    if i == 16 - QV:
        A("s_waitcnt vmcnt(%d)" % (dp - 2)); q0_issue(); ycl += 2
    A("s_waitcnt vmcnt(%d)" % (dp - 1))
    if EFL:
        if st_arr and not st_fl:
            flag_block(); st_fl = True
        if not st_arr and ycl >= dp - 1:
            lds_arrive(8, vT); st_arr = True
    kv_issue(i); ycl += 1
q0_issue(QP + 8)
C("everything older than the V loads is complete: K, late sentinels")
assert not QV2
A("s_waitcnt vmcnt(%d)" % int(OPT.get("kw", 14)))
if EFL: assert st_fl
else: lds_arrive(8, vT)
STAMP(1)
for t in range(4):
    for T in range(2):
        A("ds_read_b128 %s, v%d offset:%d" % (vr(KF + 16 * T + 4 * t, 4), 18 + t, 4096 * T))
if "dump" in OPT:
    A("s_waitcnt lgkmcnt(0)")
    soff(sT1, [(2, 15), (sW, 13)], 0x1000000)
    for k in range(8):
        A("buffer_store_dwordx4 %s, v%d, %s, s%d offen" % (vr(KF + 4 * k, 4), vL16, sr(sWS, 4), sT1))
        A("s_add_u32 s%d, s%d, 1024" % (sT1, sT1))
    A("s_waitcnt vmcnt(0)")
if not EFL: flag_block()
def wait_w0(n):
    if EFL:
        A("s_waitcnt vmcnt(%d)" % n); return
    uid[0] += 1
    A("s_cmp_eq_u32 s%d, 0" % sW)
    A("s_cbranch_scc1 Lww%d" % uid[0])
    A("s_waitcnt vmcnt(%d)" % n)
    LB("Lww%d" % uid[0])
    A("s_waitcnt vmcnt(%d)" % (n + 1))
wait_w0(QV + 2 + (2 if QV2 else 0))
STAMP(2)
A("s_setprio 2")
A("s_mov_b32 s%d, %s" % (sCNT, hx(SPIN)))
A("s_mov_b32 s%d, 0" % sY)
A("s_mov_b32 s%d, 0" % sIT)
LB("Lmq")
A("v_and_b32 v16, -8, v%d" % (QP + 3))
A("v_and_b32 v17, -8, v%d" % (QP + 7))
A("v_cmp_ne_u32 vcc, s%d, v%d" % (sTG1, QP + 2))
A("v_cmp_ne_u32 %s, s%d, v%d" % (sr(sRET, 2), sTG1, QP + 6))
A("s_or_b64 vcc, vcc, %s" % sr(sRET, 2))
A("v_cmp_ne_u32 %s, s%d, v16" % (sr(sRET, 2), sTG2))
A("s_or_b64 vcc, vcc, %s" % sr(sRET, 2))
A("v_cmp_ne_u32 %s, s%d, v17" % (sr(sRET, 2), sTG2))
A("s_or_b64 vcc, vcc, %s" % sr(sRET, 2))
if not int(OPT.get("nochk", 0)): A("s_cbranch_vccnz Lmqr")
LB("Lmqd")
if DIAG:
    A("s_sub_u32 s%d, s%d, s%d" % (sT0, sCNT, sY)); A("v_writelane_b32 v31, s%d, 0" % sT0)
Ls = L; L = []
L.append(".p2align 6"); LB("Lst_mq"); A("s_setpc_b64 %s" % sr(sRET, 2))
LB("Lmqr")
A("s_cmp_lg_u32 s%d, 0" % sY)
A("s_cbranch_scc1 Lmqr2")
if QV2:
    A("s_cmp_lg_u32 s%d, 0" % sIT)
    A("s_cbranch_scc1 Lmqr1")
    A("s_mov_b32 s%d, 1" % sIT)
    wait_w0(QV2 + 2)
    for k in range(8): A("v_mov_b32 v%d, v%d" % (QP + k, XR + k))
    A("s_branch Lmq")
    LB("Lmqr1")
C("first look failed: take the second one (V has landed with it: request its fragments now)")
A("s_waitcnt vmcnt(0)")
A("s_mov_b32 s%d, 1" % sY)
for k in range(8): A("v_mov_b32 v%d, v%d" % (QP + k, QP + 8 + k))
if not VLATE:
    for t in range(8):
        for hf in range(2):
            A("ds_read_b64_tr_b16 %s, v%d offset:%d" % (vr(VF + 4 * t + 2 * hf, 2), VA + t, 4096 * hf))
A("s_branch Lmq")
LB("Lmqr2")
C("still not there: poll the plain copy a few times, then both copies in turn")
A("s_cmp_le_u32 s%d, %s" % (sCNT, hx(SPIN - 6)))
A("s_cselect_b32 s%d, %s, 0" % (sT0, hx(QB_DELTA)))
A("s_xor_b32 s%d, s%d, s%d" % (sQL, sQL, sT0))
q0_issue()
A("s_waitcnt vmcnt(0)")
A("s_sub_u32 s%d, s%d, 1" % (sCNT, sCNT))
A("s_cbranch_scc0 Lmq")
A("s_branch Lmqd")
ool.append(L); L = Ls
A("v_cmp_ne_u32 vcc, s%d, v%d" % (sXCC, QP + 3))
A("v_mov_b32 v%d, v%d" % (QP + 2, QP + 4))
A("v_mov_b32 v%d, v%d" % (QP + 3, QP + 5))
A("ds_write_b128 v25, %s" % vr(QP, 4))
A("s_cmp_eq_u64 vcc, 0")
A("s_cselect_b32 s%d, 1, 0x101" % sT0)
A("v_mov_b32 v16, s%d" % sT0)
A("s_waitcnt lgkmcnt(0)")
lds_arrive(4, 16, None)
if VLATE:
    A("s_cmp_eq_u32 s%d, 0" % sY)
    A("s_cbranch_scc1 Lnvf")
    for t in range(8):
        for hf in range(2):
            A("ds_read_b64_tr_b16 %s, v%d offset:%d" % (vr(VF + 4 * t + 2 * hf, 2), VA + t, 4096 * hf))
    LB("Lnvf")
STAMP(15)
A("buffer_load_dwordx2 %s, v%d, %s, s%d offen" % (vr(RES + 2, 2), vX1S, sr(sX, 4), sT3))
FLG = W + 44
soff(sIT, [(sW, 10)], FB)
soff(sQL, [(sA, 12), (sJ, 17)], Q1_OFF)
for k in range(4):
    A("s_add_u32 s%d, s%d, %d" % (sT0, sC, k))
    A("s_and_b32 s%d, s%d, 3" % (sT0, sT0))
    A("s_lshl_b32 s%d, s%d, 10" % (sKO + k, sT0))
A("s_and_b32 s%d, s%d, 1" % (sT0, sC))
A("s_lshl_b32 s%d, s%d, 6" % (sT0, sT0))
A("v_xor_b32 v22, s%d, v22" % sT0); A("v_xor_b32 v23, s%d, v23" % sT0)
A("s_lshl_b32 s%d, s%d, 2" % (sT3, sM))
A("s_add_u32 s%d, s%d, s%d" % (sT3, sT3, sW))
A("s_lshl_b32 s%d, s%d, 8" % (sT3, sT3))
A("v_lshlrev_b32 v21, 7, v%d" % vLANE)
A("v_add_u32 v21, s%d, v21" % sT3)
A("s_lshl_b32 s%d, s%d, 7" % (sT0, sW))
A("s_add_u32 s%d, s%d, %d" % (sT0, sT0, LSE_OFF[0]))
A("v_writelane_b32 v21, s%d, 2" % sT0)
lds_spin(4, 4, vT, mask=0xff)
A("s_cmp_lt_u32 s%d, 256" % sT1)
A("s_cselect_b32 s%d, %d, 0" % (sFAST, int(OPT.get("fast", 1))))
QF = W + 16
for t in range(4):
    A("ds_read_b128 %s, v26 offset:%d" % (vr(QF + 4 * t, 4), 1024 * t))
S = W
qk = []
for t in range(4):
    for T in range(2):
        qk.append(mf(S + 4 * T, KF + 16 * T + 4 * t, QF + 4 * t, None if t == 0 else S + 4 * T))
for t in range(4):
    A("s_waitcnt lgkmcnt(%d)" % (3 - t))
    A(qk[2 * t]); A(qk[2 * t + 1])
def wo_issue():
    C("every wave holds its K fragments: the wo tile may land in the K area")
    for k in range(4):
        A("s_add_u32 m0, s%d, s%d" % (sT5, sKO + k))
        A("s_lshl3_add_u32 s%d, s%d, s%d" % (sT0, sKO + k, sT4))
        A("buffer_load_dwordx4 v%d, %s, s%d offen nt lds" % (22 + (k & 1), sr(sWO, 4), sT0))
if WOP == 0: wo_issue()
if PRET:
    C("bring the first layer's o / lse lines (their sentinels are in place) into L2")
    A("s_mov_b64 exec, 7")
    A("buffer_load_dword v%d, v21, %s, s%d offen sc1" % (W + 40, sr(sWS, 4), sGR))
    A("s_mov_b64 exec, -1")
STAMP(3)
A("s_branch Lk_go")

LB("Llnq")
C("LayerNorm of the row held in XR, then q partial = xn @ wq tile")
X = W
row_stats(XR, vT, X)
A("v_add_f32 v%d, %s, v%d" % (vT + 1, EPS, vT + 1))
A("v_rsq_f32 v%d, v%d" % (vT + 2, vT + 1))
A("s_cmp_eq_u32 s%d, 0" % sLAY)
A("v_mul_f32 v%d, v%d, v%d" % (vT + 3, vT, vT + 2))
for i in range(4):
    A("v_pk_fma_f32 %s, %s, %s, %s op_sel:[0,0,1] op_sel_hi:[1,0,1] neg_lo:[0,0,1] neg_hi:[0,0,1]" % (vr(X + 2 * i, 2), vr(X + 2 * i, 2), vr(vT + 2, 2), vr(vT + 2, 2)))
for i in range(4):
    A("v_cvt_pk_bf16_f32 v%d, v%d, v%d" % (X + 8 + i, X + 2 * i, X + 2 * i + 1))
A("ds_write_b128 v%d, %s" % (vXNW, vr(X + 8, 4)))
A("s_cbranch_scc1 Lq_first")
A("s_waitcnt lgkmcnt(0)")
A("s_barrier")
LB("Lq_go")
BF = W + 16
for t in range(4):
    A("ds_read_b128 %s, v%d offset:%d" % (vr(BF + 4 * t, 4), vXNR, 64 * t))
for t in range(4):
    A("s_waitcnt lgkmcnt(%d)" % (3 - t))
    mfma(W, WQF + 4 * t, BF + 4 * t, None if t == 0 else W)
A("s_cmp_eq_u32 s%d, 0" % sLAY)
A("s_mov_b64 exec, %s" % sr(sMSK, 2))
NOP(6)
A("v_cvt_pk_bf16_f32 v%d, v%d, v%d" % (W + 4, W, W + 1))
A("v_cvt_pk_bf16_f32 v%d, v%d, v%d" % (W + 5, W + 2, W + 3))
A("s_cbranch_scc1 Lh_qst")
fastcmp()
store_local("buffer_store_dwordx2", vr(W + 4, 2), vQST, sQS)
A("s_mov_b64 exec, -1")
A("ds_write_b128 v%d, %s offset:%d" % (vXNW, vr(XR, 4), L_X2 - L_XN))
A("s_mov_b32 s%d, 0" % sY)
for s, d in [(sOL, O_OFF[1] - O_OFF[0]), (sOS, O_OFF[1] - O_OFF[0]), (sLS, LSE_OFF[1] - LSE_OFF[0]), (sPS, P_L)]:
    A("s_add_u32 s%d, s%d, %d" % (s, s, d))
STAMP(2)

C("attention over this workgroup's 128 keys")
if QS:
    C("each wave fetches one k-step of q and shares it through LDS")
    A("s_lshl_b32 s%d, s%d, 10" % (sT3, sW))
    A("s_add_u32 s%d, s%d, s%d" % (sT4, sQL, sT3))
    A("s_add_u32 s%d, s%d, %d" % (sT3, sT3, L_RB + 12288))
    A("v_add_u32 v25, s%d, v%d" % (sT3, vL16))
    A("v_add_u32 v26, %d, v%d" % (L_RB + 12288, vL16))
    ppoll(lambda k: A("buffer_load_dwordx4 %s, v%d, %s, s%d offen sc1" % (vr(W + 32 + 4 * k, 4), vL16, sr(sWS, 4), sT4)),
          lambda k: range(W + 32 + 4 * k, W + 36 + 4 * k), 1, vT, lambda k: ["ds_write_b128 v25, %s" % vr(W + 32 + 4 * k, 4)], pre=QPRE, gap=QGAP, tag=0)
    A("s_waitcnt lgkmcnt(0)")
    A("s_barrier")
    for t in range(4):
        A("ds_read_b128 %s, v26 offset:%d" % (vr(QF + 4 * t, 4), 1024 * t))
    for t in range(4):
        A("s_waitcnt lgkmcnt(%d)" % (3 - t))
        A(qk[2 * t]); A(qk[2 * t + 1])
    touch_stub("k")
else:
    def iq(k):
        for t in range(4):
            A("buffer_load_dwordx4 %s, v%d, %s, s%d offen offset:%d sc1" % (vr(QF + 16 * k + 4 * t, 4), vL16, sr(sWS, 4), sQL, 1024 * t))
    def qks(k):
        return [mf(S + 4 * T, KF + 16 * T + 4 * t, QF + 16 * k + 4 * t, None if t == 0 else S + 4 * T) for t in range(4) for T in range(2)]
    ppoll(iq, lambda k: range(QF + 16 * k, QF + 16 * k + 16), 4, vT, qks, pre=QPRE, gap=QGAP, tag=0, stub="k", per_load=lambda k, i: qks(k)[2 * i:2 * i + 2])
STAMP(3)
LB("Lk_go")
NOP(5)
for ctl in ["row_ror:4", "row_ror:8"]:
    for i in range(8):
        A("v_add_f32_dpp v%d, v%d, v%d %s row_mask:0xf bank_mask:0xf" % (S + i, S + i, S + i, ctl))
A("v_max3_f32 v%d, v%d, v%d, v%d" % (vT, S, S + 1, S + 2))
A("v_max3_f32 v%d, v%d, v%d, v%d" % (vT + 1, S + 3, S + 4, S + 5))
A("v_max3_f32 v%d, v%d, v%d, v%d" % (vT, vT, S + 6, S + 7))
A("v_max_f32 v%d, v%d, v%d" % (vT, vT, vT + 1))
A("v_mov_b32 v%d, v%d" % (vT + 1, vT))
A("s_nop 1")
A("v_permlane16_swap_b32 v%d, v%d" % (vT, vT + 1))
A("v_max_f32 v%d, v%d, v%d" % (vT, vT, vT + 1))
A("v_mov_b32 v%d, v%d" % (vT + 1, vT))
A("s_nop 1")
A("v_permlane32_swap_b32 v%d, v%d" % (vT, vT + 1))
A("v_max_f32 v%d, v%d, v%d" % (vT, vT, vT + 1))
A("v_mul_f32 v%d, s%d, v%d" % (vT + 2, sSC, vT))
for i in range(8):
    A("v_fma_f32 v%d, v%d, s%d, -v%d" % (S + i, S + i, sSC, vT + 2))
for i in range(8):
    A("v_exp_f32 v%d, v%d" % (S + i, S + i))
for p in range(4):
    A("s_mov_b64 exec, %s" % sr(sPM + 2 * p, 2))
    for i in range(4):
        A("v_cvt_pk_bf16_f32 v%d, v%d, v%d" % (PM + 4 * p + i, S + 2 * i, S + 2 * i + 1))
A("s_mov_b64 exec, -1")
STAMP(4)
A("s_cmp_lg_u32 s%d, 0" % sLAY)
A("s_cbranch_scc1 Lv_go")
wait_w0((5 if WOP == 0 else 1) + PRET)
if WOP == 1: wo_issue()
A("buffer_load_dwordx4 %s, v%d, %s, s%d offen sc1" % (vr(FLG, 4), vL16, sr(sWS, 4), sIT))
STAMP(6)
A("s_cmp_lg_u32 s%d, 0" % sY)
A("s_cbranch_scc1 Lv_have")
for t in range(8):
    for hf in range(2):
        A("ds_read_b64_tr_b16 %s, v%d offset:%d" % (vr(VF + 4 * t + 2 * hf, 2), VA + t, 4096 * hf))
A("s_waitcnt lgkmcnt(0)")
LB("Lv_have")
if TOT:
    A("s_memrealtime s[42:43]"); A("s_waitcnt lgkmcnt(0)"); A("s_mov_b32 s97, s42")
MP("pv")
if MEAS and OPT["q"] in ("tg", "s1"): A("s_mov_b32 s97, s98")
A("s_cmp_lg_u32 s%d, 0" % sLAY)
LB("Lv_go")
OA = W + 8
mfma(W + 16, ONES, PM, None)
for p in range(4):
    for T in range(2):
        mfma(OA + 4 * T, VF + 4 * (2 * p + T), PM + 4 * p, None if p == 0 else OA + 4 * T)
A("s_mov_b64 exec, %s" % sr(sMSK, 2))
A("v_mov_b32 v%d, v%d" % (vT + 3, W + 16))
A("ds_write_b64 v%d, %s" % (vMLW, vr(vT + 2, 2)))
A("s_mov_b64 exec, -1")
NOP(3)
A("ds_write_b128 v%d, %s" % (vRBW, vr(OA, 4)))
A("ds_write_b128 v%d, %s offset:64" % (vRBW, vr(OA + 4, 4)))
A("s_waitcnt lgkmcnt(0)")
A("s_cbranch_scc1 Lrb_bar")
lds_arrive(12, vT + 4)
if WOP == 2: wo_issue()
lds_spin(12, 4, vT + 4)
A("s_branch Lrb_go")
LB("Lrb_bar")
A("s_barrier")
LB("Lrb_go")
A("ds_read_b128 %s, v%d" % (vr(W, 4), vMLR))
A("ds_read_b128 %s, v%d offset:16" % (vr(W + 4, 4), vMLR))
for w in range(4):
    A("ds_read_b64 %s, v%d offset:%d" % (vr(W + 8 + 2 * w, 2), vRBR, RBS * w))
A("v_mov_b32 v%d, 0" % (vT + 4))
fastcmp()
A("s_waitcnt lgkmcnt(4)")
A("v_max3_f32 v%d, v%d, v%d, v%d" % (vT, W, W + 2, W + 4))
A("v_max_f32 v%d, v%d, v%d" % (vT, vT, W + 6))
for w in range(4): A("v_sub_f32 v%d, v%d, v%d" % (W + 2 * w, W + 2 * w, vT))
for w in range(4): A("v_exp_f32 v%d, v%d" % (W + 2 * w, W + 2 * w))
A("v_mul_f32 v%d, v%d, v%d" % (vT + 1, W, W + 1))
for w in range(1, 4): A("v_fmac_f32 v%d, v%d, v%d" % (vT + 1, W + 2 * w, W + 2 * w + 1))
A("s_waitcnt lgkmcnt(0)")
A("v_pk_mul_f32 %s, %s, %s op_sel_hi:[1,0]" % (vr(W + 8, 2), vr(W + 8, 2), vr(W, 2)))
A("v_rcp_f32 v%d, v%d" % (vT + 2, vT + 1))
A("v_pk_fma_f32 %s, %s, %s, %s op_sel_hi:[1,0,1]" % (vr(W + 8, 2), vr(W + 10, 2), vr(W + 2, 2), vr(W + 8, 2)))
A("v_log_f32 v%d, v%d" % (vT + 5, vT + 1))
for w in range(2, 4):
    A("v_pk_fma_f32 %s, %s, %s, %s op_sel_hi:[1,0,1]" % (vr(W + 8, 2), vr(W + 8 + 2 * w, 2), vr(W + 2 * w, 2), vr(W + 8, 2)))
A("v_pk_mul_f32 %s, %s, %s op_sel_hi:[1,0]" % (vr(W + 8, 2), vr(W + 8, 2), vr(vT + 2, 2)))
A("v_add_f32 v%d, v%d, v%d" % (vT + 5, vT + 5, vT))
A("v_cvt_pk_bf16_f32 v%d, v%d, v%d" % (W + 8, W + 8, W + 9))
store_local("buffer_store_dword", "v%d" % (W + 8), vOST, sOS)
A("s_mov_b64 exec, 1")
store_local("buffer_store_dword", "v%d" % (vT + 5), vT + 4, sLS)
A("s_mov_b64 exec, -1")
STAMP(5)

C("wo phase: wave = batch, rows = key splits")
OF = W; LS = W + 32; DA = WQF
assert LSE_OFF[1] - O_OFF[1] == LSE_OFF[0] - O_OFF[0]
def io(k):
    for t in range(4):
        A("buffer_load_dwordx4 %s, v%d, %s, s%d offen offset:%d sc1" % (vr(OF + 16 * k + 4 * t, 4), [vLSE, vLS2, vOLD, vOLD][t], sr(sWS, 4), sOL, 512 * t))
A("s_cmp_lg_u32 s%d, 0" % sLAY)
A("s_cbranch_scc1 Lo_go")
C("first layer: wo tile landed -> fragments; every workgroup has announced its clears")
if WOP == 3: wo_issue()
A("s_waitcnt vmcnt(%d)" % (2 if WOP < 3 else 0))
STAMP(13)
A("s_mov_b32 s%d, %s" % (sT4, hx(SPIN)))
LB("Lap")
A("v_and_b32 v24, -8, v%d" % (FLG + 1))
A("v_cmp_ne_u32 vcc, s%d, v%d" % (sTG1, FLG))
A("v_cmp_ne_u32 %s, s%d, v24" % (sr(sH, 2), sTG2))
A("s_or_b64 vcc, vcc, %s" % sr(sH, 2))
A("s_cbranch_vccnz Lar")
LB("Lad")
lds_arrive(16, 24)
for i in range(2):
    A("v_lshlrev_b32 v%d, 16, v%d" % (W + 40 + 2 * i, RES + 2 + i))
    A("v_and_b32 v%d, 0xffff0000, v%d" % (W + 41 + 2 * i, RES + 2 + i))
for i in range(4): A("v_mov_b32 v%d, v%d" % (RES + i, W + 40 + i))
for ct in range(4): A("v_xor_b32 v%d, %d, v%d" % (W + 40 + ct, 32 * ct, vWT))
for ct in range(4): A("v_add_u32 v%d, %d, v%d" % (W + 40 + ct, L_WO, W + 40 + ct))
lds_spin(16, 4, 24)
STAMP(14)
A("s_mov_b32 s%d, 1" % sY)
LB("Lo_go")
A("s_mov_b32 s%d, 0x55555555" % sT4)
A("s_mov_b32 s%d, 0x55555555" % sT5)
def pre_o():
    A("s_cmp_eq_u32 s%d, 0" % sY)
    A("s_cbranch_scc1 Lo_nof")
    A("s_mov_b32 s%d, 0" % sY)
    for t in range(4):
        for ct in range(4):
            for hf in range(2):
                A("ds_read_b64_tr_b16 %s, v%d offset:%d" % (vr(WOF + 16 * ct + 4 * t + 2 * hf, 2), W + 40 + ct, 4096 * t + 512 * hf))
    LB("Lo_nof")
ool.append(["Lar:", "    s_sleep 4", "    s_lshl_b32 s%d, s%d, 10" % (sT5, sW), "    s_add_u32 s%d, s%d, %s" % (sT5, sT5, hx(FB)),
            "    buffer_load_dwordx4 %s, v%d, %s, s%d offen sc1" % (vr(FLG, 4), vL16, sr(sWS, 4), sT5),
            "    s_waitcnt vmcnt(0)", "    s_sub_u32 s%d, s%d, 1" % (sT4, sT4), "    s_cbranch_scc0 Lap", "    s_branch Lad"])
C("softmax over the 8 key splits: lanes n>=8 hold own lse in OF[0:3], the other four in OF[4:7]")
vU = vT + 2
def wo_all(k, t):
    o = OF + 16 * k
    m = [mf(DA + 4 * ct, o + 4 * t, WOF + 16 * ct + 4 * t, None if t == 0 else DA + 4 * ct) for ct in range(4)]
    va = ["v_max3_f32 v%d, v%d, v%d, v%d" % (vU, o, o + 1, o + 2), "v_max3_f32 v%d, v%d, v%d, v%d" % (vU + 1, o + 3, o + 4, o + 5),
          "v_max3_f32 v%d, v%d, v%d, v%d" % (vU, vU, o + 6, o + 7), "v_max_f32 v%d, v%d, v%d" % (vU, vU, vU + 1)]
    va += ["v_sub_f32 v%d, v%d, v%d" % (LS + i, o + i, vU) for i in range(4)]
    va += ["v_exp_f32 v%d, v%d" % (LS + i, LS + i) for i in range(4)]
    vb = ["v_mov_b32_dpp v%d, v%d row_ror:8 row_mask:0xf bank_mask:0x3" % (LS + i, LS + i) for i in range(4)]
    vb += ["v_add_f32 v%d, v%d, v%d" % (vU, LS, LS + 1), "v_add_f32 v%d, v%d, v%d" % (vU + 1, LS + 2, LS + 3),
           "v_add_f32 v%d, v%d, v%d" % (vU, vU, vU + 1), "v_mov_b32 v%d, v%d" % (vU + 1, vU)]
    f = {0: [], 1: va[:4], 2: va[4:], 3: vb}[t]
    out = ["s_waitcnt lgkmcnt(%d)" % [15, 15, 8, 0][t]] if t != 1 else []
    for x in m:
        out.append(x)
        for _ in range(2):
            if f: out.append(f.pop(0))
    return out
assert PROG and OGAP < 0
ppoll(io, lambda k: range(OF + 16 * k, OF + 16 * k + 16), 4, vT, None, pre=OPRE, gap=OGAP, mid=pre_o, tag=1, per_load=wo_all)
if TPF == 3 or HG == 1: lds_arrive(60, vT + 4)
STAMP(7)
A("v_permlane16_swap_b32 v%d, v%d" % (vU, vU + 1))
A("v_mul_f32 v%d, v%d, v%d" % (DA, DA, LS))
A("v_add_f32 v%d, v%d, v%d" % (vT, vU, vU + 1))
A("v_mul_f32 v%d, v%d, v%d" % (DA + 4, DA + 4, LS))
A("v_rcp_f32 v%d, v%d" % (vT, vT))
A("v_mul_f32 v%d, v%d, v%d" % (DA + 8, DA + 8, LS))
for i in range(1, 4):
    for ct in range(3):
        A("v_fmac_f32 v%d, v%d, v%d" % (DA + 4 * ct, DA + 4 * ct + i, LS + i))
    if i == 1: A("v_mul_f32 v%d, v%d, v%d" % (DA + 12, DA + 12, LS))
for i in range(1, 4): A("v_fmac_f32 v%d, v%d, v%d" % (DA + 12, DA + 12 + i, LS + i))
A("v_permlane16_swap_b32 v%d, v%d" % (DA, DA + 4))
A("s_nop 0")
A("v_permlane16_swap_b32 v%d, v%d" % (DA + 8, DA + 12))
A("v_add_f32 v%d, v%d, v%d" % (DA, DA, DA + 4))
A("v_add_f32 v%d, v%d, v%d" % (DA + 8, DA + 8, DA + 12))
A("s_nop 1")
A("v_permlane32_swap_b32 v%d, v%d" % (DA, DA + 8))
A("v_mul_f32 v%d, v%d, v%d" % (DA, DA, vT))
A("s_cmp_lg_u32 s%d, 0" % sLAY)
A("s_nop 0")
A("v_mov_b32_dpp v%d, v%d quad_perm:[1,0,3,2] row_mask:0xf bank_mask:0xf" % (DA + 1, DA))
A("s_mov_b64 exec, %s" % sr(sT4, 2))
A("v_cvt_pk_bf16_f32 v%d, v%d, v%d" % (DA, DA, DA + 1))
A("buffer_store_dword v%d, v%d, %s, s%d offen sc1" % (DA, vPST, sr(sWS, 4), sPS))
A("s_mov_b64 exec, -1")
STAMP(8)
A("s_cbranch_scc1 Lfinal")
MP("p0")

if PRET:
    C("same for the remaining lines of the group's mailboxes")
    soff(sT1, [(sM, 11), (sW, 9), (sJ, 17)], CLRB_OFF)
    A("v_lshlrev_b32 v21, 7, v%d" % vLANE)
    A("s_mov_b64 exec, 15")
    A("buffer_load_dword v%d, v21, %s, s%d offen sc1" % (W + 47, sr(sWS, 4), sT1))
    A("s_mov_b64 exec, -1")
A("s_cmp_lg_u32 s%d, 0" % sW)
A("s_cbranch_scc1 %s" % ("Ltabdone" if HG else "Ltab"))
C("stage 1 (wave 0): reduce 32 head partials of 64 outputs, add residual, publish x1 slice")
soff(sT1, [(sA, 15), (sC, 12)], PB)
soff(sT2, [(sA, 10), (sC, 7), (sJ, 17)], X1_OFF)
A("s_mov_b32 s%d, 0x00ff00ff" % sT4)
A("s_mov_b32 s%d, 0" % sT5)
def ip(k):
    for i in range(4):
        A("buffer_load_dwordx4 %s, v%d, %s, s%d offen offset:%d sc1" % (vr(W + 20 * k + 4 * i, 4), vL16, sr(sWS, 4), sT1, 1024 * i))
if GW: A("s_waitcnt vmcnt(0)")
ppoll(ip, lambda k: range(W + 20 * k, W + 20 * k + 16), 4, vT, lambda k: [mf(W + 16, SEL, W + 20 * k + 4 * i, None if i == 0 else W + 16) for i in range(4)], pre=GPRE, gap=GGAP, tag=2,
      per_load=lambda k, i: [mf(W + 16, SEL, W + 20 * k + 4 * i, None if i == 0 else W + 16)])
STAMP(9)
MP("s1")
fastcmp()
NOP(3)
for i in range(4):
    A("v_add_f32_dpp v%d, v%d, v%d row_ror:8 row_mask:0xf bank_mask:0xf" % (W + 16 + i, W + 16 + i, W + 16 + i))
A("s_mov_b64 exec, %s" % sr(sT4, 2))
A("v_pk_add_f32 %s, %s, %s" % (vr(W + 16, 2), vr(W + 16, 2), vr(RES, 2)))
A("v_pk_add_f32 %s, %s, %s" % (vr(W + 18, 2), vr(W + 18, 2), vr(RES + 2, 2)))
A("v_cvt_pk_bf16_f32 v%d, v%d, v%d" % (W + 16, W + 16, W + 17))
A("v_cvt_pk_bf16_f32 v%d, v%d, v%d" % (W + 17, W + 18, W + 19))
store_local("buffer_store_dwordx2", vr(W + 16, 2), vX1S, sT2)
A("s_mov_b64 exec, -1")
LB("Ltabdone")
soff(sT3, [(sW, 10), (sJ, 17)], X1_OFF)
def ix(k):
    A("buffer_load_dwordx4 %s, v%d, %s, s%d offen sc1" % (vr([XR, RES][k], 4), vL16, sr(sWS, 4), sT3))
wqf_reads()
ppoll(ix, lambda k: range([XR, RES][k], [XR, RES][k] + 4), 1, vT, lambda k: ["s_waitcnt lgkmcnt(0)", "v_readfirstlane_b32 s%d, v%d" % (sT1, vT + 2)],
      pre=XPRE, gap=XGAP, mid=lambda: A("ds_read_b32 v%d, v%d offset:20" % (vT + 2, vFL)), tag=3,
      fix=["v_mov_b32 v%d, v%d" % (XR + i, RES + i) for i in range(4)])
A("s_cmp_lt_u32 s%d, %d" % (sT1, 4 if HG else 3))
A("s_cbranch_scc1 Ltw")
LB("Ltwd")
STAMP(10)

LB("Lmix")
C("x <- x + g(LN(LN(x))) ; g is tabulated for every bf16 input in range, evaluated directly otherwise")
X = W; HB = W + 8; RT = W + 12; AD = W + 16; Y = W + 24
row_stats(XR, vT, X)
A("v_add_f32 v%d, %s, v%d" % (vT + 2, EPS, vT + 1))
A("v_rsq_f32 v%d, v%d" % (vT + 2, vT + 2))
A("v_mov_b32 v%d, %s" % (vT + 4, hx(LO2 | (LO2 << 16))))
A("s_movk_i32 s%d, %d" % (sT5, NENT * 4))
A("v_mul_f32 v%d, v%d, v%d" % (vT + 1, vT + 1, vT + 2))
A("v_fmaak_f32 v%d, v%d, v%d, %s" % (vT + 1, vT + 1, vT + 2, EPS))
A("v_rsq_f32 v%d, v%d" % (vT + 1, vT + 1))
A("s_nop 0")
A("v_mul_f32 v%d, v%d, v%d" % (vT + 2, vT + 2, vT + 1))
A("v_mul_f32 v%d, v%d, v%d" % (vT + 3, vT, vT + 2))
for i in range(4):
    A("v_pk_fma_f32 %s, %s, %s, %s op_sel:[0,0,1] op_sel_hi:[1,0,1] neg_lo:[0,0,1] neg_hi:[0,0,1]" % (vr(AD + 2 * i, 2), vr(X + 2 * i, 2), vr(vT + 2, 2), vr(vT + 2, 2)))
for i in range(4):
    A("v_cvt_pk_bf16_f32 v%d, v%d, v%d" % (HB + i, AD + 2 * i, AD + 2 * i + 1))
for i in range(4):
    A("v_pk_lshlrev_b16 v%d, 1, v%d op_sel_hi:[0,1]" % (RT + i, HB + i))
    A("v_pk_lshrrev_b16 v%d, 15, v%d op_sel_hi:[0,1]" % (AD + i, HB + i))
for i in range(4):
    A("v_or_b32 v%d, v%d, v%d" % (RT + i, RT + i, AD + i))
for i in range(4):
    A("v_pk_sub_u16 v%d, v%d, v%d" % (RT + i, RT + i, vT + 4))
for i in range(4):
    A("v_lshlrev_b32_sdwa v%d, 2, v%d dst_sel:DWORD dst_unused:UNUSED_PAD src0_sel:DWORD src1_sel:WORD_0" % (AD + 2 * i, RT + i))
    A("v_lshlrev_b32_sdwa v%d, 2, v%d dst_sel:DWORD dst_unused:UNUSED_PAD src0_sel:DWORD src1_sel:WORD_1" % (AD + 2 * i + 1, RT + i))
    A("ds_read_b32 v%d, v%d offset:%d" % (Y + 2 * i, AD + 2 * i, L_TAB))
    A("ds_read_b32 v%d, v%d offset:%d" % (Y + 2 * i + 1, AD + 2 * i + 1, L_TAB))
A("v_max3_u32 v%d, v%d, v%d, v%d" % (vT, AD, AD + 1, AD + 2))
A("v_max3_u32 v%d, v%d, v%d, v%d" % (vT + 1, AD + 3, AD + 4, AD + 5))
A("v_max3_u32 v%d, v%d, v%d, v%d" % (vT, vT, AD + 6, AD + 7))
A("v_max_u32 v%d, v%d, v%d" % (vT, vT, vT + 1))
A("v_cmp_le_u32 %s, s%d, v%d" % (sr(sH, 2), sT5, vT))
A("s_waitcnt lgkmcnt(5)")
A("v_max3_u32 v%d, v%d, v%d, v%d" % (vT, Y, Y + 1, Y + 2))
A("s_waitcnt lgkmcnt(2)")
A("v_max3_u32 v%d, v%d, v%d, v%d" % (vT + 1, Y + 3, Y + 4, Y + 5))
A("s_waitcnt lgkmcnt(0)")
A("v_max3_u32 v%d, v%d, v%d, v%d" % (vT, vT, Y + 6, Y + 7))
A("v_max_u32 v%d, v%d, v%d" % (vT, vT, vT + 1))
A("v_cmp_eq_u32 vcc, -1, v%d" % vT)
LB("Lslowdone")
for i in range(4):
    A("v_pk_add_f32 %s, %s, %s" % (vr(vT + 2 + 2 * i, 2), vr(X + 2 * i, 2), vr(Y + 2 * i, 2)))
A("s_or_b64 vcc, vcc, %s" % sr(sH, 2))
A("s_cbranch_vccnz Lslow")
A("s_cmp_lg_u32 s%d, 0" % sLAY)
for i in range(4):
    A("v_cvt_pk_bf16_f32 v%d, v%d, v%d" % (XR + i, vT + 2 + 2 * i, vT + 3 + 2 * i))
STAMP(11)
A("s_cbranch_scc1 Lout")
A("s_mov_b32 s%d, 1" % sLAY)
if TOT or MEAS: A("s_memrealtime s[100:101]")
if DIAG: A("v_mov_b32 v28, v30")
A("s_branch Llnq")

L.append(".p2align 6"); LB("Lst_fin"); A("s_setpc_b64 %s" % sr(sRET, 2)); stubs.append("fin")
LB("Lfinal")
A("s_cmp_ge_u32 s2, 4")
A("s_cbranch_scc1 Lepoch")
C("workgroup b: reduce the 32 head partials of row b, add x2, mixer, store")
soff(sT1, [(2, 15), (sW, 13)], PB + P_L)
A("s_add_u32 s%d, s%d, 4096" % (sT2, sT1))
A("s_mul_i32 s%d, s2, %d" % (sT0, XS))
A("s_lshl_b32 s%d, s%d, 8" % (sT3, sW))
A("s_add_u32 s%d, s%d, s%d" % (sT0, sT0, sT3))
A("s_add_u32 s%d, s%d, %d" % (sT0, sT0, L_X2))
A("v_add_u32 v%d, s%d, v%d" % (vT + 4, sT0, vX1S))
A("s_add_u32 s%d, s%d, %d" % (sT3, sT3, L_XN))
A("v_add_u32 v%d, s%d, v%d" % (vT + 5, sT3, vX1S))
A("ds_read_b64 %s, v%d" % (vr(PM, 2), vT + 4))
A("ds_read_b64 %s, v%d offset:128" % (vr(PM + 2, 2), vT + 4))
A("s_mov_b32 s%d, 0x00ff00ff" % sT4)
A("s_mov_b32 s%d, 0" % sT5)
if XENT:
    A("s_cmp_lg_u32 s%d, 3" % sW)
    A("s_cbranch_scc1 Lfn3")
    A("ds_read_b32 v%d, v%d offset:48" % (vT, vFL))
    A("s_waitcnt lgkmcnt(0)")
    A("v_readfirstlane_b32 s%d, v%d" % (sT0, vT))
    A("s_cmp_eq_u32 s%d, %d" % (sT0, 4 if HG else 0))
    A("s_cbranch_scc1 Lfn3")
    A("s_mov_b32 s%d, %s" % (sCNT, hx(TB)))
    for i in range(XENT * 4 // 1024):
        A("buffer_load_dwordx4 %s, v%d, %s, s%d offen offset:%d sc1" % (vr(W + 4 * i, 4), vL16, sr(sWS, 4), sCNT, 1024 * i))
    A("v_add_u32 v%d, %d, v%d" % (vT + 6, L_TAB, vL16))
    A("s_waitcnt vmcnt(0)")
    for i in range(XENT * 4 // 1024):
        A("ds_write_b128 v%d, %s offset:%d" % (vT + 6, vr(W + 4 * i, 4), 1024 * i))
    LB("Lfn3")
A("s_waitcnt lgkmcnt(0)")
if GW: A("s_waitcnt vmcnt(0)")
for i in range(4):
    A("v_lshlrev_b32 v%d, 16, v%d" % (PM + 4 + 2 * i, PM + i))
    A("v_and_b32 v%d, 0xffff0000, v%d" % (PM + 5 + 2 * i, PM + i))
if "bias" in OPT:
    for i in range(8): A("v_add_f32 v%d, %s, v%d" % (PM + 4 + i, hx(f2u(float(OPT["bias"]))), PM + 4 + i))
FS = [KF, VF]
def ifin(k):
    for i in range(8):
        A("buffer_load_dwordx4 %s, v%d, %s, s%d offen offset:%d sc1" % (vr(FS[k] + 4 * i, 4), vL16, sr(sWS, 4), sT1 if i < 4 else sT2, 1024 * (i & 3)))
def fs(k):
    o = []
    for i in range(4):
        o.append(mf(W + 32, SEL, FS[k] + 4 * i, None if i == 0 else W + 32))
        o.append(mf(W + 36, SEL, FS[k] + 16 + 4 * i, None if i == 0 else W + 36))
    return o
ppoll(ifin, lambda k: range(FS[k], FS[k] + 32), 8, vT, fs, pre=GPRE, gap=GGAP, tag=2,
      per_load=lambda k, i: [mf(W + 32 + 4 * (i >> 2), SEL, FS[k] + 4 * i, None if (i & 3) == 0 else W + 32 + 4 * (i >> 2))])
STAMP(9)
NOP(2)
for i in range(8):
    A("v_add_f32_dpp v%d, v%d, v%d row_ror:8 row_mask:0xf bank_mask:0xf" % (W + 32 + i, W + 32 + i, W + 32 + i))
A("s_mov_b64 exec, %s" % sr(sT4, 2))
for i in range(4):
    A("v_pk_add_f32 %s, %s, %s" % (vr(W + 32 + 2 * i, 2), vr(W + 32 + 2 * i, 2), vr(PM + 4 + 2 * i, 2)))
for i in range(4):
    A("v_cvt_pk_bf16_f32 v%d, v%d, v%d" % (W + 32 + i, W + 32 + 2 * i, W + 33 + 2 * i))
A("ds_write_b64 v%d, %s" % (vT + 5, vr(W + 32, 2)))
A("ds_write_b64 v%d, %s offset:128" % (vT + 5, vr(W + 34, 2)))
A("s_mov_b64 exec, -1")
A("s_cmp_lg_u32 s%d, 0" % sW)
A("s_waitcnt lgkmcnt(0)")
A("s_barrier")
A("s_cbranch_scc1 Lfin_exit")
A("ds_read_b128 %s, v%d" % (vr(XR, 4), vXNW))
A("s_waitcnt lgkmcnt(0)")
STAMP(10)
A("s_branch Lmix")
L.append(".p2align 6"); LB("Lst_out"); A("s_setpc_b64 %s" % sr(sRET, 2)); stubs.append("out")
LB("Lout")
A("s_lshl_b32 s%d, s2, 10" % sT0)
A("buffer_store_dwordx4 %s, v%d, %s, s%d offen" % (vr(XR, 4), vL16, sr(sOUT, 4), sT0))
if DBL:
    A("s_cmp_lg_u32 s2, 0")
    A("s_cbranch_scc1 Lfin_exit")
if DBL:
    A("s_waitcnt vmcnt(0)")
    A("s_memrealtime s[10:11]")
    A("s_waitcnt lgkmcnt(0)")
    A("s_sub_u32 s12, s10, s98")
    if "pad" in OPT:
        A("s_mov_b32 s10, s98"); A("s_mov_b32 s12, %d" % (100 * int(OPT["pad"])))
    LB("Ldbl")
    A("s_memrealtime s[14:15]")
    A("s_waitcnt lgkmcnt(0)")
    A("s_sub_u32 s13, s14, s10")
    A("s_cmp_lt_u32 s13, s12")
    A("s_cbranch_scc1 Ldbl")
LB("Lfin_exit")
if MEAS:
    src = {"mix": "s100", "entry": "s98"}.get(OPT["q"], "s98" if OPT["q"][0] == "h" else "s97")
    A("s_waitcnt vmcnt(0) lgkmcnt(0)")
    if OPT["q"] == "end":
        A("s_memrealtime s[42:43]"); A("s_waitcnt lgkmcnt(0)"); src = "s42"
    LB("Lms0")
    A("s_memrealtime s[14:15]"); A("s_waitcnt lgkmcnt(0)"); A("s_sub_u32 s13, s14, s98"); A("s_cmp_lt_u32 s13, 1600"); A("s_cbranch_scc1 Lms0")
    A("s_mov_b64 exec, 1")
    A("v_mov_b32 v16, %s" % src)
    A("s_not_b32 s10, s98")
    A("v_mov_b32 v17, s10")
    A("global_atomic_umax v[30:31], v16, off sc1")
    A("global_atomic_umax v[30:31], v17, off offset:128 sc1")
    A("s_or_b32 s10, s2, s%d" % sW)
    A("s_cmp_lg_u32 s10, 0")
    A("s_cbranch_scc1 Lend")
    LB("Lms1")
    A("s_memrealtime s[14:15]"); A("s_waitcnt lgkmcnt(0)"); A("s_sub_u32 s13, s14, s98"); A("s_cmp_lt_u32 s13, 4000"); A("s_cbranch_scc1 Lms1")
    A("global_load_dword v16, v[30:31], off sc1")
    A("global_load_dword v17, v[30:31], off offset:128 sc1")
    A("s_waitcnt vmcnt(0)")
    A("v_readfirstlane_b32 s10, v16"); A("v_readfirstlane_b32 s11, v17")
    A("s_not_b32 s11, s11"); A("s_sub_u32 s10, s10, s11"); A("s_lshl_b32 s10, s10, 2"); A("s_add_u32 s12, s10, 4200")
    A("s_min_u32 s12, s12, 20000")
    LB("Lms2")
    A("s_memrealtime s[14:15]"); A("s_waitcnt lgkmcnt(0)"); A("s_sub_u32 s13, s14, s98"); A("s_cmp_lt_u32 s13, s12"); A("s_cbranch_scc1 Lms2")
if TOT:
    A("s_waitcnt vmcnt(0)")
    A("s_memrealtime s[10:11]")
    A("s_waitcnt lgkmcnt(0)")
    A("v_mov_b32 v16, s98")
    A("v_mov_b32 v17, s10")
    A("v_mov_b32 v18, s100")
    A("v_mov_b32 v19, s97")
    soff(sT2, [(2, 6), (sW, 4)], STB)
    A("v_mov_b32 v20, 0")
    A("s_mov_b64 exec, 1")
    A("buffer_store_dwordx4 v[16:19], v20, %s, s%d offen" % (sr(sWS, 4), sT2))
if DIAG:
    A("s_waitcnt vmcnt(0)")
    STAMP(12)
    if DIAG == 2:
        A("s_or_b32 s%d, s2, s%d" % (sT0, sW))
        A("s_cmp_lg_u32 s%d, 0" % sT0)
        A("s_cbranch_scc1 Lend")
        A("v_readlane_b32 s%d, v28, 0" % sT2)
        for k, (r, i) in enumerate([(31, 10), (31, 12), (28, 1), (28, 2), (28, 6), (28, 5), (28, 7), (28, 8), (28, 9), (28, 10), (28, 11), (30, 3), (30, 5), (30, 8), (30, 9), (30, 12)]):
            A("v_readlane_b32 s%d, v%d, %d" % (sT3, r, i))
            A("s_sub_u32 s%d, s%d, s%d" % (sT3, sT3, sT2))
            A("s_nop 0")
            A("v_writelane_b32 v17, s%d, %d" % (sT3, k))
        A("v_lshlrev_b32 v16, 2, v%d" % vLANE)
        A("s_mov_b64 exec, 0xffff")
        A("global_store_dword v16, v17, s[100:101]")
        A("s_endpgm")
    soff(sT1, [(2, 10), (sW, 7)], STB)
    A("v_lshlrev_b32 v16, 2, v%d" % vLANE)
    A("s_mov_b64 exec, 0xffff")
    A("buffer_store_dword v28, v16, %s, s%d offen" % (sr(sWS, 4), sT1))
    A("buffer_store_dword v30, v16, %s, s%d offen offset:64" % (sr(sWS, 4), sT1))
    A("s_add_u32 s%d, s%d, 0x40000" % (sT1, sT1))
    A("buffer_store_dword v31, v16, %s, s%d offen" % (sr(sWS, 4), sT1))
LB("Lend")
A("s_endpgm")
LB("Lepoch")
if int(OPT.get("wb", 0)):
    A("s_cmp_lg_u32 s%d, 0" % sW)
    A("s_cbranch_scc1 Lnowb")
    A("s_waitcnt vmcnt(0)")
    A("buffer_wbl2 sc1")
    LB("Lnowb")
C("every workgroup has used the old launch tag long ago: workgroup 4 advances it")
A("s_lshl_b32 s%d, s%d, 8" % (sT0, sW))
A("s_add_u32 s%d, s%d, s2" % (sT0, sT0))
A("s_cmp_lg_u32 s%d, 4" % sT0)
A("s_cbranch_scc1 Lfin_exit")
A("v_mov_b32 v16, s%d" % sTG1)
A("v_mov_b32 v17, %s" % hx(EPO))
A("s_mov_b64 exec, 1")
A("buffer_store_dword v16, v17, %s, 0 offen sc1" % sr(sWS, 4))
A("s_mov_b64 exec, -1")
A("s_branch Lfin_exit")

L.append(".p2align 6"); LB("Lst_tab"); A("s_setpc_b64 %s" % sr(sRET, 2)); stubs.append("tab")
LB("Ltab")
C("waves 2,3: gather the main part of the g(h) table into LDS ; wave 1: the lowest octaves, best effort")
NTL = NOCT * 1024 // 2 // 1024
A("s_cmp_eq_u32 s%d, 1" % sW)
A("s_cbranch_scc1 Lext")
A("s_sub_u32 s%d, s%d, 2" % (sT1, sW))
A("s_mul_i32 s%d, s%d, %d" % (sT1, sT1, NTL * 1024))
A("s_add_u32 s%d, s%d, %d" % (sT1, sT1, XENT * 4))
A("v_add_u32 v%d, s%d, v%d" % (vT + 4, sT1, vL16))
A("v_add_u32 v%d, %d, v%d" % (vT + 4, L_TAB, vT + 4))
A("s_add_u32 s%d, s%d, %s" % (sT1, sT1, hx(TB)))
A("s_add_u32 s%d, s%d, 4096" % (sT2, sT1))
if TGW: A("s_waitcnt vmcnt(0)"); A("s_nop 15")
def it():
    for i in range(NTL):
        A("buffer_load_dwordx4 %s, v%d, %s, s%d offen offset:%d sc1" % (vr(W + 4 * i, 4), vL16, sr(sWS, 4), sT1 if i < 4 else sT2, 1024 * (i & 3)))
poll(it, range(W, W + 4 * NTL), vT, back="s_sleep %d" % int(OPT.get("tsl", 16)))
for i in range(NTL):
    A("ds_write_b128 v%d, %s offset:%d" % (vT + 4, vr(W + 4 * i, 4), 1024 * i))
A("s_waitcnt lgkmcnt(0)")
lds_arrive(20, vT + 4)
STAMP(9)
MP("tg")
A("s_branch Ltabdone")
def ext_load(d):
    for i in range(XENT * 4 // 1024):
        A("buffer_load_dwordx4 %s, v%d, %s, s%d offen offset:%d sc1" % (vr(d + 4 * i, 4), vL16, sr(sWS, 4), sT4, 1024 * i))
def ext_write(d):
    for i in range(XENT * 4 // 1024):
        A("ds_write_b128 v%d, %s offset:%d" % (vT + 4, vr(d + 4 * i, 4), 1024 * i))
LB("Lext")
if XENT:
    A("s_mov_b32 s%d, %s" % (sT4, hx(TB)))
    A("v_add_u32 v%d, %d, v%d" % (vT + 4, L_TAB, vL16))
    for i in range(4): A("v_mov_b32 v%d, -1" % (W + i))
    for i in range(XENT * 4 // 1024):
        A("ds_write_b128 v%d, %s offset:%d" % (vT + 4, vr(W, 4), 1024 * i))
    A("ds_write_b32 v%d, v%d offset:48" % (vFL, W))
    A("s_waitcnt lgkmcnt(0)")
lds_arrive(20, vT + 5)
if XENT:
    C("one look at the lowest octaves, skipped when x1 is already there")
    soff(sT3, [(sW, 10), (sJ, 17)], X1_OFF)
    A("s_waitcnt vmcnt(0)")
    A("buffer_load_dwordx4 %s, v%d, %s, s%d offen sc1" % (vr(XR, 4), vL16, sr(sWS, 4), sT3))
    A("s_waitcnt vmcnt(0)")
    for x in maxtree(range(XR, XR + 4), vT): A(x)
    A("v_cmp_eq_u32 vcc, -1, v%d" % vT)
    A("s_cbranch_vccz Lexx")
    A("s_mov_b32 s%d, %d" % (sCNT, int(OPT.get("xlk", 2)) - 1))
    LB("Lexl")
    A("buffer_load_dwordx4 %s, v%d, %s, s%d offen sc1" % (vr(XR, 4), vL16, sr(sWS, 4), sT3))
    if "l" in OPT.get("xs", ""): A("s_branch Ltabdone")
    ext_load(W + 32)
    A("s_waitcnt vmcnt(4)")
    for x in maxtree(range(XR, XR + 4), vT): A(x)
    A("v_cmp_eq_u32 vcc, -1, v%d" % vT)
    A("s_cbranch_vccz Lexx")
    A("s_waitcnt vmcnt(0)")
    ext_write(W + 32)
    for x in maxtree(range(W + 32, W + 48), vT): A(x)
    A("v_cmp_eq_u32 vcc, -1, v%d" % vT)
    A("s_cbranch_vccz Lexc")
    A("s_sub_u32 s%d, s%d, 1" % (sCNT, sCNT))
    A("s_cbranch_scc0 Lexl")
    A("s_branch Ltabdone")
    LB("Lexc")
    A("v_mov_b32 v%d, 0" % vT)
    A("ds_write_b32 v%d, v%d offset:48" % (vFL, vT))
    A("s_branch Ltabdone")
    LB("Lexx")
    wqf_reads()
    A("s_branch Ltw")
else:
    A("s_branch Ltabdone")
LB("Ltw")
lds_spin(20, 4 if HG else 3, vT + 2)
A("s_branch Ltwd")

for b in ool: L += b
ool = []
LB("Lslow")
C("rare: some h lies outside the table -> evaluate g(h) directly for those lanes")
RW1 = [W + 32 + i for i in range(14)]
RB1 = [PM + i for i in range(14)]
RW2 = [16 + i for i in range(10)] + [W + 46, W + 47, PM + 14, PM + 15]
A("v_lshlrev_b32 v26, 3, v%d" % vLANE)
A("s_load_dword s%d, %s, 0" % (sB2, sr(sB2P, 2)))
for (d4, d2, s) in [([W + 32, W + 36, W + 40], W + 44, sW1), ([PM, PM + 4, PM + 8], PM + 12, sB1)]:
    for k in range(3):
        A("buffer_load_dwordx4 %s, v%d, %s, 0 offen offset:%d" % (vr(d4[k], 4), vL16, sr(s, 4), 1024 * k))
    A("buffer_load_dwordx2 %s, v26, %s, 0 offen offset:3072" % (vr(d2, 2), sr(s, 4)))
A("buffer_load_dwordx4 v[16:19], v%d, %s, 0 offen" % (vL16, sr(sW2, 4)))
A("buffer_load_dwordx4 v[20:23], v%d, %s, 0 offen offset:1024" % (vL16, sr(sW2, 4)))
A("buffer_load_dwordx2 v[24:25], v%d, %s, 0 offen offset:2048" % (vL16, sr(sW2, 4)))
A("buffer_load_dwordx2 %s, v%d, %s, 0 offen offset:2056" % (vr(W + 46, 2), vL16, sr(sW2, 4)))
A("buffer_load_dwordx2 %s, v26, %s, 0 offen offset:3072" % (vr(PM + 14, 2), sr(sW2, 4)))
A("s_waitcnt vmcnt(0) lgkmcnt(0)")
A("s_lshl_b32 s%d, s%d, 16" % (sB2, sB2))
A("s_mov_b32 s%d, 1" % sT4)
for e in range(8):
    A("v_cmp_le_u32 vcc, %d, v%d" % (NENT * 4, AD + e))
    A("v_cmp_eq_u32 %s, -1, v%d" % (sr(sH2, 2), Y + e))
    A("s_or_b64 %s, %s, vcc" % (sr(sH2, 2), sr(sH2, 2)))
    if e & 1: A("v_and_b32 v%d, 0xffff0000, v%d" % (RT + 3, HB + (e >> 1)))
    else: A("v_lshlrev_b32 v%d, 16, v%d" % (RT + 3, HB + (e >> 1)))
    LB("Lse%d" % e)
    A("s_cmp_eq_u64 %s, 0" % sr(sH2, 2))
    A("s_cbranch_scc1 Lsf%d" % e)
    A("s_ff1_i32_b64 s%d, %s" % (sT0, sr(sH2, 2)))
    A("s_nop 0")
    A("v_readlane_b32 s%d, v%d, s%d" % (sH, RT + 3, sT0))
    A("s_cmp_eq_u32 s%d, s%d" % (sH, sT4))
    A("s_cbranch_scc1 Lsg%d" % e)
    A("s_mov_b32 s%d, s%d" % (sT4, sH))
    A("s_call_b64 %s, Lgev" % sr(sRET, 2))
    LB("Lsg%d" % e)
    A("s_nop 1")
    A("v_cmp_eq_u32 vcc, s%d, v%d" % (sH, RT + 3))
    A("v_mov_b32 v%d, s%d" % (RES + 3, sY))
    A("s_andn2_b64 %s, %s, vcc" % (sr(sH2, 2), sr(sH2, 2)))
    A("v_cndmask_b32 v%d, v%d, v%d, vcc" % (Y + e, Y + e, RES + 3))
    A("s_branch Lse%d" % e)
    LB("Lsf%d" % e)
for i in range(16): A("v_mov_b32 v%d, 0" % (PM + i))
A("s_mov_b64 vcc, 0")
A("s_mov_b64 %s, 0" % sr(sH, 2))
A("s_branch Lslowdone")
LB("Lgev")
a, u, t1, z = RES, RES + 1, RES + 2, RT
A("v_mov_b32 v%d, 0" % a)
A("v_mov_b32 v%d, %s" % (RT + 1, hx(f2u(K0))))
A("v_mov_b32 v%d, %s" % (RT + 2, hx(f2u(K1))))
for p in range(14):
    for hf in range(2):
        def un(d, s):
            if hf == 0: A("v_lshlrev_b32 v%d, 16, v%d" % (d, s))
            else: A("v_and_b32 v%d, 0xffff0000, v%d" % (d, s))
        un(u, RW1[p]); un(t1, RB1[p]); un(z, RW2[p])
        A("v_fma_f32 v%d, v%d, s%d, v%d" % (u, u, sH, t1))
        A("v_mul_f32 v%d, v%d, v%d" % (t1, u, u))
        A("v_fma_f32 v%d, v%d, v%d, v%d" % (t1, t1, RT + 2, RT + 1))
        A("v_mul_f32 v%d, v%d, v%d" % (t1, t1, u))
        A("v_exp_f32 v%d, v%d" % (t1, t1))
        A("v_mul_f32 v%d, v%d, v%d" % (z, z, u))
        A("v_add_f32 v%d, 1.0, v%d" % (t1, t1))
        A("v_rcp_f32 v%d, v%d" % (t1, t1))
        A("s_nop 0")
        A("v_fmac_f32 v%d, v%d, v%d" % (a, z, t1))
A("v_mov_b32 v%d, v%d" % (u, a))
A("s_nop 1")
wave_sum2(a, u, sY, sT1)
A("s_nop 1")
A("v_mov_b32 v%d, s%d" % (a, sY))
A("v_cvt_pk_bf16_f32 v%d, v%d, v%d" % (a, a, a))
A("v_and_b32 v%d, 0xffff0000, v%d" % (a, a))
A("v_add_f32 v%d, s%d, v%d" % (a, sB2, a))
A("v_cvt_pk_bf16_f32 v%d, v%d, v%d" % (a, a, a))
A("v_and_b32 v%d, 0xffff0000, v%d" % (a, a))
A("s_nop 0")
A("v_readfirstlane_b32 s%d, v%d" % (sY, a))
A("s_nop 3")
A("s_setpc_b64 %s" % sr(sRET, 2))

for b in ool: L += b
A("s_endpgm")
L.append(".p2align 8")
L.append(".fill %d, 4, 0xBF800000" % (64 if DIAG else 512))
L.append('''.section .rodata,"a"
.p2align 6
.amdhsa_kernel %s_kernel
  .amdhsa_next_free_vgpr 256
  .amdhsa_next_free_sgpr 102
  .amdhsa_accum_offset 256
  .amdhsa_group_segment_fixed_size 0
  .amdhsa_kernarg_size 104
  .amdhsa_user_sgpr_count 2
  .amdhsa_user_sgpr_kernarg_segment_ptr 1
  .amdhsa_system_sgpr_workgroup_id_x 1
.end_amdhsa_kernel''' % NAME)
open(OUTF, "w").write("\n".join(x for x in L if x is not None) + "\n")
print("wrote", OUTF, "lines", len(L), "LDS", LDS_SZ)
```

```python
import sys, struct, math

NAME = "interleave_layers__sliding_block_cached__mixer_token_mlp__decode"
OUTF = sys.argv[1] if len(sys.argv) > 1 else "cdna_kernels/%s.s" % NAME
DIAG = int(sys.argv[2]) if len(sys.argv) > 2 else 0
DBL = 0
if DIAG == 3: DIAG = 0; DBL = 1
MEAS = 0
if DIAG == 5: DIAG = 0; MEAS = 1
TOT = 0
if DIAG == 4: DIAG = 0; TOT = 1
OPT = dict(a.split("=") for a in sys.argv[3:])
DEPTH = int(OPT.get("depth", 8))
D0 = int(OPT.get("d0", 3))
D1 = int(OPT.get("d1", 4))
DC = int(OPT.get("dc", 3))
TAILI = int(OPT.get("taili", 11))
TAILD = int(OPT.get("taild", 8))
QV = int(OPT.get("qv", 3))
PRET = int(OPT.get("pret", 1))
GW = int(OPT.get("gw", 1))
GPRE = int(OPT.get("gpre", 0))
GGAP = int(OPT.get("ggap", -1))
WARM = int(OPT.get("warm", 1))
QPRE = int(OPT.get("qpre", -1)); QGAP = int(OPT.get("qgap", -1))
OPRE = int(OPT.get("opre", -1)); OGAP = int(OPT.get("ogap", -1))
XPRE = int(OPT.get("xpre", -1)); XGAP = int(OPT.get("xgap", -1))
FINE = OPT.get("fine", "")
QS = int(OPT.get("qs", 0))
ADP = int(OPT.get("adp", 0))
ROT = int(OPT.get("rot", 1)); VROT = int(OPT.get("vrot", 0))
WROT = int(OPT.get("wrot", 1))
WOP = int(OPT.get("wop", 0))
ECO = int(OPT.get("eco", 0))
XDL = int(OPT.get("xdl", 256))
QBD = int(OPT.get("qbd", 0))
VLATE = int(OPT.get("vlate", 1))
QV2 = int(OPT.get("qv2", 0))
PROG = int(OPT.get("prog", 1))
SLC = int(OPT.get("slc", 0)); D2 = int(OPT.get("d2", 8))
HFIRST = int(OPT.get("hfirst", 0))
EFL = int(OPT.get("efl", 1))
TPF = int(OPT.get("tpf", 0)); TPF_OFF = {1: 16, 2: 12, 3: 60}.get(TPF, 16)
TGW = int(OPT.get("tgw", 0))
TB2 = int(OPT.get("tb2", 0)); HG = int(OPT.get("hg", 1)); HG_OFF = {1: 60, 2: 16}.get(HG, 60)
QT = int(OPT.get("qt", 0))
DRY = int(OPT.get("dry", 0))
HP = int(OPT.get("hp", 0))
NOCT = int(OPT.get("noct", 16))
QPOS = int(OPT.get("qpos", 1))
QPOS2 = int(OPT.get("qpos2", 7))

def f2u(x): return struct.unpack("<I", struct.pack("<f", x))[0]
def hx(x): return "0x%08x" % (x & 0xffffffff)

L = []
def A(s): L.append("    " + s)
def LB(s): L.append(s + ":")
def C(s): L.append("    ; " + s)
def vr(a, n): return "v[%d:%d]" % (a, a + n - 1)
def sr(a, n): return "s[%d:%d]" % (a, a + n - 1)
def NOP(n):
    while n > 0:
        k = min(n, 16); A("s_nop %d" % (k - 1)); n -= k

XOCT = int(OPT.get('xoct', 4))
ELO = int(OPT.get('elo', 130 - NOCT - XOCT))
LO2 = (ELO << 7) * 2
NENT = (NOCT + XOCT) * 256
XENT = XOCT * 256
assert XENT in (0, 1024)
EPW = NOCT * 256 // 256 // 4 // 2
GRS = 0x20000
O_OFF = [0x0000, 0xC400]; LSE_OFF = [0x8000, 0x14400]; Q1_OFF = 0x8400; X1_OFF = 0x14600
CLRA_PER = 1040
CLRB_OFF = 0x8400; CLRB_PER = 1680
Q0_OFF = 0x18000
EPO = 0x17f00
PB = 0x100000; P_L = 0x20000
TB = 0x140000; FB = 0x148000
QB_DELTA = 0x200000
STB = 0x300000
WS_SZ = 0x400000 if "dump" not in OPT else 0x2000000
L_WQ = 12288; L_K = L_WQ + 16384; L_V = L_K + 32768
L_WO = L_K + 16384
L_TAB = L_V
L_XN = L_V + 32768; XS = 1056
L_X2 = L_XN + 4 * XS
L_FLG = L_X2 + 4 * XS
L_RB = L_K; RBS = 2048 + 64; L_ML = L_K + 4 * RBS
L_QF = L_X2
LDS_SZ = int(OPT.get("lds", L_FLG + 64))
SPIN = 0x40000
K0 = -2.0 * math.sqrt(2.0 / math.pi) * math.log2(math.e)
K1 = K0 * 0.044715
EPS = hx(f2u(1e-5))

sTG1, sTG2 = 0, 1
sW, sJ, sA, sC, sGR, sLAY, sFAST = 3, 4, 5, 6, 7, 8, 9
sT0, sT1, sT2, sT3, sT4, sT5 = 10, 11, 12, 13, 14, 15
sCNT = 16
sQL, sQS, sOL, sOS, sLL, sLS, sPS = 17, 18, 19, 20, 21, 22, 23
sSC, sIT = 24, 25
sSUM, sSQ = 26, 27
sH, sH2, sRET, sMSK = 28, 30, 32, 34
sB2, sY, sXCC, sE = 36, 37, 38, 39
sB2P = 40
sK, sV, sWQ, sWO, sWS, sX, sOUT, sW1, sB1, sW2 = 44, 48, 52, 56, 60, 64, 68, 72, 76, 80
sKO, sKL, sVO, sVL = 84, 85, 86, 87
sPM = 88
sHC, sHT = 84, 85

def STAMP(i):
    if DIAG:
        A("s_memrealtime s[42:43]"); A("s_waitcnt lgkmcnt(0)")
        A("v_writelane_b32 v30, s42, %d" % i)

def MP(name):
    if MEAS and OPT["q"] == name:
        A("s_memrealtime s[42:43]"); A("s_waitcnt lgkmcnt(0)"); A("s_mov_b32 s97, s42")

def CST(i):
    if DIAG == 1 and FINE:
        A("s_memtime s[42:43]"); A("s_waitcnt lgkmcnt(0)")
        A("v_writelane_b32 v31, s42, %d" % i)

vLANE = 1
vL16, vQST, vOST, vOLD, vPST, vX1S, vXNW, vXNR, vRBW, vRBR, vMLW, vMLR, vLSE, vZ = range(2, 16)
vT = 16
vWT, vFL = 28, 29
vLS2 = 27
KF, VF, WQF, WOF, SEL, ONES = 32, 64, 96, 112, 176, 180
W = 184
PM = 232
XR = 248
RES = 252

def srd(s, nbytes):
    A("s_mov_b32 s%d, %s" % (s + 2, hx(nbytes))); A("s_mov_b32 s%d, 0x00020000" % (s + 3))

def soff(dst, terms, const):
    first = True
    for (src, sh) in terms:
        if first: A("s_lshl_b32 s%d, s%d, %d" % (dst, src, sh)); first = False
        else:
            A("s_lshl_b32 s%d, s%d, %d" % (sT0, src, sh)); A("s_add_u32 s%d, s%d, s%d" % (dst, dst, sT0))
    if const: A("s_add_u32 s%d, s%d, %s" % (dst, dst, hx(const)))

def wave_sum2(a, b, sa, sb):
    for ctl in ["row_ror:8", "row_ror:4", "row_ror:2", "row_ror:1"]:
        A("v_add_f32_dpp v%d, v%d, v%d %s row_mask:0xf bank_mask:0xf" % (a, a, a, ctl))
        A("v_add_f32_dpp v%d, v%d, v%d %s row_mask:0xf bank_mask:0xf" % (b, b, b, ctl))
        A("s_nop 0")
    for ctl in ["row_bcast:15 row_mask:0xa", "row_bcast:31 row_mask:0xc"]:
        A("v_add_f32_dpp v%d, v%d, v%d %s bank_mask:0xf" % (a, a, a, ctl))
        A("v_add_f32_dpp v%d, v%d, v%d %s bank_mask:0xf" % (b, b, b, ctl))
        A("s_nop 0")
    A("v_readlane_b32 s%d, v%d, 63" % (sa, a))
    A("v_readlane_b32 s%d, v%d, 63" % (sb, b))

def row_stats(x, t, unp):
    A("v_dot2_f32_bf16 v%d, v%d, v%d, 0" % (t, x, ONES))
    A("v_dot2_f32_bf16 v%d, v%d, v%d, 0" % (t + 1, x, x))
    for i in range(1, 4):
        A("v_dot2_f32_bf16 v%d, v%d, v%d, v%d" % (t, x + i, ONES, t))
        A("v_dot2_f32_bf16 v%d, v%d, v%d, v%d" % (t + 1, x + i, x + i, t + 1))
    un = []
    for i in range(4):
        un.append("v_lshlrev_b32 v%d, 16, v%d" % (unp + 2 * i, x + i))
        un.append("v_and_b32 v%d, 0xffff0000, v%d" % (unp + 2 * i + 1, x + i))
    for k in range(3): A(un.pop(0))
    a, b = t, t + 1
    for ctl in ["row_ror:8 row_mask:0xf", "row_ror:4 row_mask:0xf", "row_ror:2 row_mask:0xf", "row_ror:1 row_mask:0xf", "row_bcast:15 row_mask:0xa", "row_bcast:31 row_mask:0xc"]:
        A("v_add_f32_dpp v%d, v%d, v%d %s bank_mask:0xf" % (a, a, a, ctl))
        A("v_add_f32_dpp v%d, v%d, v%d %s bank_mask:0xf" % (b, b, b, ctl))
        A(un.pop(0) if un else "s_nop 0")
    A("v_readlane_b32 s%d, v%d, 63" % (sSUM, a))
    A("v_readlane_b32 s%d, v%d, 63" % (sSQ, b))
    A("s_nop 0")
    A("v_mul_f32 v%d, s%d, v%d" % (t, sSUM, vZ))
    A("v_mul_f32 v%d, s%d, v%d" % (t + 1, sSQ, vZ))
    A("v_fma_f32 v%d, -v%d, v%d, v%d" % (t + 1, t, t, t + 1))
    A("v_max_f32 v%d, 0, v%d" % (t + 1, t + 1))

ool = []
uid = [0]
def maxtree(regs, tmp):
    r = list(regs); out = []
    out.append("v_max3_u32 v%d, v%d, v%d, v%d" % (tmp, r[0], r[1], r[2])); r = r[3:]
    if len(r) >= 5:
        out.append("v_max3_u32 v%d, v%d, v%d, v%d" % (tmp + 1, r[0], r[1], r[2])); r = r[3:]
        d = 0
        while len(r) >= 2:
            out.append("v_max3_u32 v%d, v%d, v%d, v%d" % (tmp + d, tmp + d, r[0], r[1])); r = r[2:]; d ^= 1
        if r: out.append("v_max3_u32 v%d, v%d, v%d, v%d" % (tmp, tmp, tmp + 1, r[0]))
        else: out.append("v_max_u32 v%d, v%d, v%d" % (tmp, tmp, tmp + 1))
    else:
        while len(r) >= 2:
            out.append("v_max3_u32 v%d, v%d, v%d, v%d" % (tmp, tmp, r[0], r[1])); r = r[2:]
        if r: out.append("v_max_u32 v%d, v%d, v%d" % (tmp, tmp, r[0]))
    return out

def poll(issue, regs, tmp, pre_wait=None, spec=None, back="s_nop 7", tag=None, stub=None):
    uid[0] += 1; u = uid[0]
    A("s_mov_b32 s%d, %s" % (sCNT, hx(SPIN)))
    LB("Lp%d" % u)
    issue()
    if pre_wait: pre_wait()
    A("s_waitcnt vmcnt(0)")
    mt = maxtree(regs, tmp) + ["v_cmp_eq_u32 vcc, -1, v%d" % tmp]
    spec = list(spec or [])
    ns = len(spec)
    per = -(-len(mt) // ns) if ns else 0
    for s in spec:
        A(s)
        for k in range(per):
            if mt: A(mt.pop(0))
    for m in mt: A(m)
    A("s_cbranch_vccz Ld%d" % u)
    A("s_sub_u32 s%d, s%d, 1" % (sCNT, sCNT))
    if back != "s_nop 7": A(back)
    A("s_cbranch_scc0 Lp%d" % u)
    if stub: touch_stub(stub)
    LB("Ld%d" % u)
    if DIAG and tag is not None:
        A("s_lshl_b32 m0, s%d, 2" % sLAY); A("s_add_u32 m0, m0, %d" % tag); A("s_nop 0")
        A("v_writelane_b32 v31, s%d, m0" % sCNT)

stubs = []
def touch_stub(name, branch_over=None):
    A("s_branch Lsk_%s" % name)
    L.append(".p2align 6")
    LB("Lst_%s" % name)
    A("s_setpc_b64 %s" % sr(sRET, 2))
    LB("Lsk_%s" % name)
    stubs.append(name)

def delay(cyc):
    if cyc == -1:
        A("s_waitcnt vmcnt(0)"); return
    while cyc >= 64:
        k = min(cyc // 64, 15); A("s_sleep %d" % k); cyc -= 64 * k
    if cyc >= 8: A("s_nop %d" % min(15, cyc // 4 - 1))

def ppoll(issue, regs, n, tmp, spec, pre=0, gap=128, mid=None, tag=None, fix=None, stub=None, lanes=None, per_load=None):
    uid[0] += 1; u = uid[0]
    def look(k):
        if per_load and PROG and gap < 0:
            r = list(regs(k)); out = []
            for i in range(n):
                out.append("s_waitcnt vmcnt(%d)" % (n - 1 - i))
                sp = list(per_load(k, i))
                ck = ["v_max3_u32 v%d, v%d, v%d, v%d" % (tmp + 1, r[4 * i], r[4 * i + 1], r[4 * i + 2]),
                      ("v_max_u32 v%d, v%d, v%d" % (tmp, tmp + 1, r[4 * i + 3])) if i == 0 else ("v_max3_u32 v%d, v%d, v%d, v%d" % (tmp, tmp, tmp + 1, r[4 * i + 3]))]
                while sp or ck:
                    if sp: out.append(sp.pop(0))
                    if ck: out.append(ck.pop(0))
            return out + ["v_cmp_eq_u32 vcc, -1, v%d" % tmp]
        out = ["s_waitcnt vmcnt(%d)" % (n if k == 0 else 0)]
        mt = maxtree(regs(k), tmp) + ["v_cmp_eq_u32 vcc, -1, v%d" % tmp]
        sp = list(spec(k)); per = -(-len(mt) // len(sp)) if sp else 0
        for x in sp:
            out.append(x)
            for _ in range(per):
                if mt: out.append(mt.pop(0))
        return out + mt + (["s_and_b64 vcc, vcc, %s" % sr(lanes, 2)] if lanes else [])
    A("s_mov_b32 s%d, %s" % (sCNT, hx(SPIN)))
    delay(pre)
    fine = FINE and tag == int(FINE)
    if fine: CST(8)
    LB("Lp%d" % u)
    issue(0)
    if fine and 0: CST(9)
    if mid: mid()
    if gap >= 0: delay(gap)
    if gap >= 0: issue(1)
    lk = look(0)
    if gap < 0 and not (per_load and PROG): lk[0] = "s_waitcnt vmcnt(0)"
    for k, x in enumerate(lk):
        A(x)
        if fine and k == 0: CST(13)
    if fine: CST(14)
    A("s_cbranch_vccz Ld%d" % u)
    if gap < 0: issue(1)
    A("s_sub_u32 s%d, s%d, 1" % (sCNT, sCNT))
    for x in look(1): A(x)
    for x in (fix or []): A(x)
    A("s_cbranch_vccz Ld%d" % u)
    A("s_sub_u32 s%d, s%d, 1" % (sCNT, sCNT))
    A("s_cmp_gt_i32 s%d, 0" % sCNT)
    A("s_cbranch_scc1 Lp%d" % u)
    if stub: touch_stub(stub)
    LB("Ld%d" % u)
    if fine: CST(15)
    if DIAG and tag is not None:
        A("s_lshl_b32 m0, s%d, 2" % sLAY); A("s_add_u32 m0, m0, %d" % tag); A("s_nop 0")
        A("v_writelane_b32 v31, s%d, m0" % sCNT)

def lds_spin(off, target, tmp, mask=None, sleep=0):
    uid[0] += 1; u = uid[0]
    A("s_mov_b32 s%d, %s" % (sT2, hx(SPIN * 4)))
    LB("Ls%d" % u)
    A("ds_read_b32 v%d, v%d offset:%d" % (tmp, vFL, off))
    A("s_waitcnt lgkmcnt(0)")
    A("v_readfirstlane_b32 s%d, v%d" % (sT1, tmp))
    if mask: A("s_and_b32 s%d, s%d, %d" % (sT0, sT1, mask))
    A("s_cmp_ge_u32 s%d, %d" % (sT0 if mask else sT1, target))
    A("s_cbranch_scc1 Lt%d" % u)
    if sleep: A("s_sleep %d" % sleep)
    A("s_sub_u32 s%d, s%d, 1" % (sT2, sT2))
    A("s_cbranch_scc0 Ls%d" % u)
    LB("Lt%d" % u)

def lds_arrive(off, tmp, val=1):
    if val is not None: A("v_mov_b32 v%d, %d" % (tmp, val))
    A("s_mov_b64 exec, 1")
    A("ds_add_u32 v%d, v%d offset:%d" % (vFL, tmp, off))
    A("s_mov_b64 exec, -1")

def store_local(op, data, vaddr, so):
    uid[0] += 1; u = uid[0]
    A("s_cbranch_scc1 Lw%d" % u)
    A("%s %s, v%d, %s, s%d offen" % (op, data, vaddr, sr(sWS, 4), so))
    LB("Lx%d" % u)
    ool.append(["Lw%d:" % u, "    %s %s, v%d, %s, s%d offen sc1" % (op, data, vaddr, sr(sWS, 4), so), "    s_branch Lx%d" % u])
def fastcmp(): A("s_cmp_eq_u32 s%d, 0" % sFAST)

def mf(d, a, b, c):
    return "v_mfma_f32_16x16x32_bf16 %s, %s, %s, %s" % (vr(d, 4), vr(a, 4), vr(b, 4), "0" if c is None else vr(c, 4))
def mfma(d, a, b, c): A(mf(d, a, b, c))

def tags():
    A("s_add_u32 s%d, s%d, 1" % (sTG1, sE))
    A("s_mul_i32 s%d, s%d, 0x9E3779B1" % (sTG2, sTG1))
    A("s_and_b32 s%d, s%d, -8" % (sTG2, sTG2))

def common_addr():
    A("v_and_b32 v18, 3, v%d" % vLANE)
    A("v_lshlrev_b32 v%d, 12, v17" % vQST)
    A("v_lshrrev_b32 v24, 1, v16")
    A("v_lshl_add_u32 v%d, v24, 8, v%d" % (vQST, vQST))
    A("v_and_b32 v24, 1, v16")
    A("v_lshl_add_u32 v%d, v24, 3, v%d" % (vQST, vQST))
    A("v_lshlrev_b32 v%d, 4, v24" % vLSE)
    A("s_mul_i32 s%d, s%d, %d" % (sT0, sW, XS))
    A("s_add_u32 s%d, s%d, %d" % (sT0, sT0, L_XN))
    A("v_add_u32 v%d, s%d, v%d" % (vXNW, sT0, vL16))
    A("s_lshl_b32 s%d, s%d, 8" % (sT0, sA))
    A("s_add_u32 s%d, s%d, %d" % (sT0, sT0, L_XN))
    A("v_mul_u32_u24 v25, %d, v18" % XS)
    A("v_lshl_add_u32 v25, v16, 4, v25")
    A("v_add_u32 v%d, s%d, v25" % (vXNR, sT0))
    A("v_mov_b32 v%d, %s" % (vZ, hx(f2u(1.0 / 512))))
    for r in range(4): A("v_mov_b32 v%d, 0x3f803f80" % (ONES + r))
    A("s_and_b32 s%d, s%d, 1" % (sT1, sC))
    A("s_lshr_b32 s%d, s%d, 1" % (sT2, sC))
    soff(sQS, [(sT1, 11), (sW, 9), (sA, 6), (sT2, 4)], 0)
    A("v_bfe_u32 v24, v%d, 2, 2" % vLANE)
    A("v_lshl_add_u32 v24, v16, 3, v24")
    A("v_lshlrev_b32 v24, 7, v24")
    A("v_bfe_u32 v25, v%d, 3, 2" % vLANE)
    A("v_lshlrev_b32 v25, 1, v25")
    A("v_bfe_u32 v26, v%d, 1, 1" % vLANE)
    A("v_xor_b32 v25, v25, v26")
    A("v_lshl_add_u32 v24, v25, 4, v24")
    A("v_and_b32 v26, 1, v%d" % vLANE)
    A("v_lshl_add_u32 v%d, v26, 3, v24" % vWT)
    A("s_mov_b32 s%d, 0x000f000f" % sMSK)
    A("s_mov_b32 s%d, 0x000f000f" % (sMSK + 1))
    A("s_mov_b32 s%d, 0" % sLAY)

def wtile_voff(shift, d):
    A("v_lshrrev_b32 v24, 3, v%d" % vLANE)
    A("v_and_b32 v25, 7, v%d" % vLANE)
    A("v_and_b32 v26, 1, v16")
    A("v_lshlrev_b32 v26, 1, v26")
    A("v_xor_b32 v25, v25, v26")
    A("v_lshlrev_b32 v25, 4, v25")
    A("v_lshl_add_u32 v%d, v24, %d, v25" % (d, shift))
    A("v_xor_b32 v%d, 64, v%d" % (d + 1, d))

def wqf_reads():
    A("s_lshl_b32 s%d, s%d, 5" % (sT1, sW))
    A("v_xor_b32 v26, s%d, v%d" % (sT1, vWT))
    for t in range(4):
        for hf in range(2):
            A("ds_read_b64_tr_b16 %s, v26 offset:%d" % (vr(WQF + 4 * t + 2 * hf, 2), L_WQ + 4096 * t + 512 * hf))

def dma(vaddr, srdn, so, lds_s, step_so, flags="nt"):
    A("s_mov_b32 m0, s%d" % lds_s)
    A("s_add_u32 s%d, s%d, 1024" % (lds_s, lds_s))
    A("buffer_load_dwordx4 v%d, %s, s%d offen %s lds" % (vaddr, sr(srdn, 4), so, flags))
    A("s_add_u32 s%d, s%d, %d" % (so, so, step_so))

hdr = open("cdna_kernels/%s.s.ref" % NAME).read().split("; Override launch")[0]
L.append(hdr.rstrip("\n") + """
;
; One persistent launch, 256 workgroups (one per CU) x 8 waves.  wg = A(2b):C(3b):j(3b); j = kv head.
; K, V, wq and wo are read from HBM exactly once (LDS-DMA) and stay in registers for both attention layers.
;   roles of a workgroup:  attention (batch A, keys 128C..), q projection (wq rows 128A.., 64 columns C),
;                          output projection (head A of group j, 64 columns C), row reduction (batch A, columns 64C..)
;   waves 0-3: stream wq/K/V/wo, q projections, attention, output projection, LayerNorm + mixer
;   waves 4-7: the token-mixer MLP g(h) = sum_f gelu(h w1 + b1) w2 + b2 evaluated
;              exactly (all 1792 hidden units) for every bf16 value h with 2^-17 <= |h| < 8; h is a bf16 tensor in the
;              reference, so the mixer is a lookup of these values; any other h is evaluated directly (Lslow).
; Hand-offs between workgroups go through d_ws.  Slots are filled with a sentinel at the start of the launch and a
; consumer polls until no sentinel is left; the first hand-off (q) and the "sentinels are in place" announcements
; carry a tag derived from a word that every launch advances.  Stores inside a kv-head group are plain when the
; whole group reports the same XCC id, write-through otherwise; every poll is bounded.
""".rstrip("\n"))
L.append("; @launch grid=(256,1,1) block=(512,1,1) lds=%d" % LDS_SZ)
L.append('.amdgcn_target "amdgcn-amd-amdhsa--gfx950"')
L.append(".text\n" + (".p2align 12\n" if int(OPT.get("al", 0)) else "") + ".globl %s_kernel\n.p2align 8\n.type %s_kernel,@function\n%s_kernel:" % (NAME, NAME, NAME))
if DIAG: A("s_memrealtime s[42:43]")
if DBL or TOT or MEAS: A("s_memrealtime s[98:99]")
sM = 96
A("s_lshr_b32 s%d, s2, 8" % sT0)
A("s_cbranch_scc1 Lend")
A("s_load_dwordx2 %s, s[0:1], 24" % sr(sWQ, 2))
A("s_load_dwordx4 %s, s[0:1], 0" % sr(sT2, 4))
A("v_readfirstlane_b32 s%d, v0" % sW)
C("every wave pulls one line of this kernel's code into L2 (plain read): 32 workgroups x 4 lines")
A("s_getpc_b64 s[10:11]")
LB("Lpc0")
A("s_lshr_b32 s%d, s2, 3" % sM)
A("s_lshl_b32 s%d, s%d, 9" % (sCNT, sM))
A("s_cmp_lg_u32 s%d, 0" % sW)
A("s_cbranch_scc1 Lnopf")
A("v_and_b32 v19, 3, v0")
A("v_lshl_add_u32 v19, v19, 7, s%d" % sCNT)
A("global_load_dword v%d, v19, s[10:11]" % (W + 8))
LB("Lnopf")
A("s_and_b32 s%d, s2, 7" % sJ)
A("s_lshr_b32 s%d, s2, 6" % sA)
A("s_and_b32 s%d, s%d, 7" % (sC, sM))
A("s_lshl_b32 s%d, 1, 17" % (sWQ + 3))
A("s_bitcmp1_b32 s%d, 8" % sW)
A("s_cbranch_scc1 Lhelp0")
vKA, vVA = W + 40, W + 44
sRO, sRM = sVO, 97 if not TOT else 94
if TOT: sRM = sOL
def kv_issue(i):
    A("s_add_u32 m0, s%d, s%d" % (sKL if i < 8 else sVL, sRO))
    A("s_add_u32 s%d, s%d, s%d" % (sCNT, sKO, sRO))
    if i < 8: A("buffer_load_dwordx4 v%d, %s, s%d offen nt lds" % (vKA + (i & 3), sr(sK, 4), sCNT))
    else: A("buffer_load_dwordx4 v%d, %s, s%d offen nt lds" % (vVA + (i & 1), sr(sV, 4), sCNT))
    A("s_addk_i32 s%d, %d" % (sRO, 1024 + (VROT * 1024 if i == 7 else 0)))
    A("s_and_b32 s%d, s%d, 0x1fff" % (sRO, sRO))
def lane_init():
    A("v_and_b32 v%d, 63, v0" % vLANE)
    A("v_mov_b32 v%d, %d" % (vFL, L_FLG))
    A("v_lshlrev_b32 v%d, 4, v%d" % (vL16, vLANE))
    A("v_lshrrev_b32 v16, 4, v%d" % vLANE)
    A("v_and_b32 v17, 15, v%d" % vLANE)
    A("v_mov_b32 v20, 0")
    if DIAG: A("v_mov_b32 v30, 0")
C("wq tile DMA: instruction i, thread t: row 32 i + (t>>3), 16-byte chunk (t&7) ^ swizzle")
A("v_lshrrev_b32 v23, 3, v0")
A("v_and_b32 v22, 7, v0")
A("v_and_b32 v24, 2, v23")
A("v_lshrrev_b32 v25, 1, v23")
A("v_and_or_b32 v24, v25, 4, v24")
A("v_xor_b32 v22, v22, v24")
A("v_lshlrev_b32 v22, 4, v22")
A("v_lshl_add_u32 v22, v23, 13, v22")
soff(sQL, [(sA, 20), (sJ, 10), (sC, 7)], 0)
A("s_lshl_b32 s%d, 1, 22" % (sWQ + 2))
A("s_lshl_b32 s%d, 1, 18" % sT1)
A("s_lshl_b32 s%d, s%d, 4" % (sQS, sW))
A("s_add_u32 m0, s%d, %d" % (sQS, L_WQ))
A("v_lshlrev_b32 v21, 4, v0")
A("s_waitcnt lgkmcnt(0)")
A("global_load_dwordx4 %s, v21, %s" % (vr(XR, 4), sr(sT2, 2)))
for i in range(4):
    if i:
        A("s_addk_i32 m0, 0x1000")
        A("s_add_u32 s%d, s%d, s%d" % (sQL, sQL, sT1))
    A("buffer_load_dwordx4 v22, %s, s%d offen nt lds" % (sr(sWQ, 4), sQL))
def main_early2():
    lane_init()
    A("s_lshl_b32 s%d, 1, 25" % (sK + 2)); A("s_mov_b32 s%d, s%d" % (sK + 3, sWQ + 3))
    A("s_mov_b64 %s, %s" % (sr(sK, 2), sr(sT4, 2)))
    A("v_xor_b32 v18, v17, v16")
    A("v_lshlrev_b32 v18, 4, v18")
    A("v_lshl_add_u32 v%d, v16, 8, v18" % vKA)
    A("s_lshl_b32 s%d, s%d, 10" % (sRO, sC))
    A("s_bfe_u32 s%d, s%d, 0x2000a" % (sT1, sRO))
    A("s_lshl_b32 s%d, s%d, 6" % (sT1, sT1))
    for k in range(1, 4):
        A("s_add_u32 s%d, s%d, %d" % (sCNT, sT1, 64 * k))
        A("s_and_b32 s%d, s%d, 0xc0" % (sCNT, sCNT))
        A("v_xor_b32 v%d, s%d, v%d" % (vKA + k, sCNT, vKA))
    A("v_xor_b32 v%d, s%d, v%d" % (vKA, sT1, vKA))
    soff(sKO, [(sA, 23), (sJ, 20), (sC, 15), (sW, 7)], 3072 * 256)
    A("s_add_u32 s%d, s%d, %d" % (sKL, sT0, L_K))
    for i in range(D0): kv_issue(i)
    A("s_add_u32 s%d, s%d, %d" % (sVL, sT0, L_V))
    A("s_lshr_b32 s%d, s%d, 6" % (sW, sW))
    if DIAG: A("v_writelane_b32 v30, s42, 0")
    STAMP(10)
    A("s_branch Lmain")

if HFIRST: A("s_branch Lmain1")
else: main_early2()
LB("Lhelp0")
C("---- helper waves: the table of g over bf16 inputs ----")
HW1, HB1, HW2 = 32, 60, 112
hK0, hK1, hONE, hRES = 88, 90, 92, 94
AC = [140, 142]
for s, off in [(sW1, 48), (sB1, 56), (sW2, 64), (sWS, 96), (sB2P, 72)]:
    A("s_load_dwordx2 %s, s[0:1], %d" % (sr(s, 2), off))
lane_init()
A("v_mov_b32 v21, 0")
for k in range(4): A("ds_write_b64 v%d, v[20:21] offset:%d" % (vFL, 8 * k))
A("ds_write_b32 v%d, v20 offset:44" % vFL)
A("ds_write_b32 v%d, v20 offset:60" % vFL)
A("ds_write_b32 v%d, v20 offset:48" % vFL)
A("s_bfe_u32 s%d, s%d, 0x20006" % (sW, sW))
srd(sWS, WS_SZ)
for s in [sW1, sB1, sW2]: srd(s, 3584)
for i in range(4): A("v_mov_b32 v%d, -1" % (PM + i))
A("s_waitcnt lgkmcnt(0)")
A("s_lshl_b32 s%d, s%d, 10" % (sT3, sW))
A("s_mul_i32 s%d, s%d, %d" % (sT5, sM, CLRA_PER))
A("s_lshl_b32 s%d, s%d, 17" % (sGR, sJ))
A("s_add_u32 s%d, s%d, s%d" % (sT5, sT5, sGR))
A("s_add_u32 s%d, s%d, 1024" % (sT4, sT5))
A("s_lshl_b32 s%d, s%d, 7" % (sT1, sM))
A("v_mov_b32 v19, s%d" % sT1)
def h_coef():
    A("s_mov_b32 m0, s%d" % sT3)
    for i, sd in enumerate([sW1, sB1, sW2]):
        if i: A("s_addk_i32 m0, 0x1000")
        A("s_nop 0")
        A("buffer_load_dwordx4 v%d, %s, s%d offen lds" % (vL16, sr(sd, 4), sT3))
C("hw0, hw1: early sentinels (O0, LSE0) ; hw3: a slice of each coefficient array into L2")
A("s_cmp_ge_u32 s%d, 2" % sW)
A("s_cbranch_scc1 Lhc_pf")
A("s_cmp_eq_u32 s%d, 0" % sW)
A("s_cselect_b32 s%d, s%d, s%d" % (sT5, sT5, sT4))
A("s_cselect_b64 exec, -1, 1")
A("buffer_store_dwordx4 %s, v%d, %s, s%d offen sc1" % (vr(PM, 4), vL16, sr(sWS, 4), sT5))
A("s_branch Lhc_skip")
LB("Lhc_pf")
if SLC:
    A("s_cmp_eq_u32 s%d, 2" % sW)
    A("s_cbranch_scc1 Lhc_skip")
    A("s_mov_b64 exec, 1")
    for k, sd in enumerate([sW1, sB1, sW2]): A("buffer_load_dword v%d, v19, %s, 0 offen" % (W + k, sr(sd, 4)))
LB("Lhc_skip")
A("s_mov_b64 exec, -1")
if not SLC: h_coef()
A("s_load_dword s%d, %s, 0" % (sB2, sr(sB2P, 2)))
if MEAS:
    A("s_load_dwordx2 s[42:43], s[0:1], 88"); A("s_waitcnt lgkmcnt(0)"); A("v_mov_b32 v30, s42"); A("v_mov_b32 v31, s43")
if DIAG: A("v_writelane_b32 v30, s42, 0")
STAMP(9)
A("s_barrier")
if HFIRST:
    A("s_branch Lhelp1")
    LB("Lmain1")
    main_early2()
    LB("Lhelp1")
A("s_lshl_b32 s%d, s2, 2" % sHC)
A("s_add_u32 s%d, s%d, s%d" % (sHC, sHC, sW))
sHX = 86
if XENT:
    C("extra entry e = wave index: |h| code ELO*128 + (e>>1), sign e&1")
    A("s_lshr_b32 s%d, s%d, 1" % (sHX, sHC))
    A("s_add_u32 s%d, s%d, %d" % (sHX, sHX, ELO * 128))
    A("s_lshl_b32 s%d, s%d, 16" % (sHX, sHX))
    A("s_lshl_b32 s%d, s%d, 31" % (sT0, sHC))
    A("s_or_b32 s%d, s%d, s%d" % (sHX, sHX, sT0))
A("s_mul_i32 s%d, s%d, %d" % (sHC, sHC, EPW))
A("s_lshl_b32 s%d, s%d, 3" % (sHT, sHC))
A("s_add_u32 s%d, s%d, %d" % (sHT, sHT, XENT * 4))
A("s_add_u32 s%d, s%d, %d" % (sHC, sHC, ELO * 128 + XENT // 2))
A("s_lshl_b32 s%d, s%d, 16" % (sHC, sHC))
A("v_lshlrev_b32 v27, 2, v%d" % vLANE)
A("v_add_u32 v27, s%d, v27" % sHT)
A("s_mov_b32 s%d, %s" % (sHT, hx(TB)))
for r, c in [(hK0, K0), (hK1, K1), (hONE, 1.0)]:
    A("v_mov_b32 v%d, %s" % (r, hx(f2u(c)))); A("v_mov_b32 v%d, %s" % (r + 1, hx(f2u(c))))
A("v_mov_b32 v%d, 0" % hRES)
A("s_mov_b32 s%d, 0" % sIT)
if WARM:
    C("warm the instruction cache lines at the far jump targets of the main waves")
    for k, nm in enumerate(["k", "fin", "out", "tab"]):
        A("s_cmp_lg_u32 s%d, %d" % (sW, k))
        A("s_cbranch_scc1 Lwm%d" % k)
        A("s_call_b64 %s, Lst_%s" % (sr(sRET, 2), nm))
        if nm == "out": A("s_call_b64 %s, Lst_mq" % sr(sRET, 2))
        LB("Lwm%d" % k)
HR = W + 8
A("v_lshlrev_b32 v26, 3, v%d" % vLANE)
if SLC:
    C("slices are in L2 once hw3's own have returned")
    A("s_waitcnt vmcnt(0)")
    lds_arrive(0, 24)
    A("s_cmp_lg_u32 s%d, 3" % sW)
    A("s_cbranch_scc1 Lhs1")
    lds_arrive(52 - 8, 24)
    LB("Lhs1")
    lds_spin(52 - 8, 1, 24, sleep=1)
    h_coef()
    A("s_waitcnt vmcnt(0)")
else:
    A("s_waitcnt vmcnt(3)")
    lds_arrive(0, 24)
    A("s_waitcnt vmcnt(0)")
STAMP(1)
lds_arrive(24, 24)
lds_spin(24, 4, 24)
for a_ in range(3):
    for k in range(3):
        A("ds_read_b128 %s, v%d offset:%d" % (vr(HR + 14 * a_ + 4 * k, 4), vL16, 4096 * a_ + 1024 * k))
    A("ds_read_b64 %s, v26 offset:%d" % (vr(HR + 14 * a_ + 12, 2), 4096 * a_ + 3072))
for a_, d in [(0, HW1), (14, HB1), (28, HW2)]:
    A("s_waitcnt lgkmcnt(%d)" % (8 - 4 * (a_ // 14)))
    for p in range(14):
        A("v_lshlrev_b32 v%d, 16, v%d" % (d + 2 * p, HR + a_ + p))
        A("v_and_b32 v%d, 0xffff0000, v%d" % (d + 2 * p + 1, HR + a_ + p))
STAMP(4)
MP("hst")
if DIAG:
    A("s_memtime s[42:43]"); A("s_waitcnt lgkmcnt(0)"); A("v_writelane_b32 v30, s42, 13")
LB("Lhl")
if DIAG:
    A("s_memrealtime s[42:43]"); A("s_add_u32 m0, s%d, 10" % sIT); A("s_waitcnt lgkmcnt(0)"); A("v_writelane_b32 v30, s42, m0")
A("s_mov_b32 s%d, s%d" % (sH, sHC)); A("s_mov_b32 s%d, s%d" % (sH + 1, sHC))
A("s_xor_b32 s%d, s%d, 0x80000000" % (sH2, sHC)); A("s_mov_b32 s%d, s%d" % (sH2 + 1, sH2))
U4 = [144, 146, 148, 150]; T4 = [152, 154, 156, 158]; Z4 = [160, 162, 164, 166]
for p2 in range(7):
    ch = [(2 * p2 + k // 2, k & 1) for k in range(4)]
    for k, (p, sg) in enumerate(ch):
        A("v_pk_fma_f32 %s, %s, %s, %s" % (vr(U4[k], 2), vr(HW1 + 2 * p, 2), sr([sH, sH2][sg], 2), vr(HB1 + 2 * p, 2)))
    for k in range(4): A("v_pk_mul_f32 %s, %s, %s" % (vr(T4[k], 2), vr(U4[k], 2), vr(U4[k], 2)))
    for k in range(4): A("v_pk_fma_f32 %s, %s, %s, %s" % (vr(T4[k], 2), vr(T4[k], 2), vr(hK1, 2), vr(hK0, 2)))
    for k in range(4): A("v_pk_mul_f32 %s, %s, %s" % (vr(T4[k], 2), vr(T4[k], 2), vr(U4[k], 2)))
    for k in range(4):
        for h in range(2): A("v_exp_f32 v%d, v%d" % (T4[k] + h, T4[k] + h))
    for k, (p, sg) in enumerate(ch): A("v_pk_mul_f32 %s, %s, %s" % (vr(Z4[k], 2), vr(U4[k], 2), vr(HW2 + 2 * p, 2)))
    for k in range(4): A("v_pk_add_f32 %s, %s, %s" % (vr(T4[k], 2), vr(T4[k], 2), vr(hONE, 2)))
    for k in range(4):
        for h in range(2): A("v_rcp_f32 v%d, v%d" % (T4[k] + h, T4[k] + h))
    for k, (p, sg) in enumerate(ch):
        if p == 0: A("v_pk_mul_f32 %s, %s, %s" % (vr(AC[sg], 2), vr(Z4[k], 2), vr(T4[k], 2)))
        else: A("v_pk_fma_f32 %s, %s, %s, %s" % (vr(AC[sg], 2), vr(Z4[k], 2), vr(T4[k], 2), vr(AC[sg], 2)))
A("v_add_f32 v%d, v%d, v%d" % (AC[0], AC[0], AC[0] + 1))
A("v_add_f32 v%d, v%d, v%d" % (AC[1], AC[1], AC[1] + 1))
A("s_lshl_b32 m0, s%d, 1" % sIT)
A("s_add_u32 s%d, s%d, 0x10000" % (sHC, sHC))
wave_sum2(AC[0], AC[1], sSUM, sSQ)
A("s_add_u32 s%d, s%d, 1" % (sIT, sIT))
A("s_nop 0")
A("v_writelane_b32 v%d, s%d, m0" % (hRES, sSUM))
A("s_add_u32 m0, m0, 1")
A("s_cmp_lg_u32 s%d, %d" % (sIT, EPW))
A("v_writelane_b32 v%d, s%d, m0" % (hRES, sSQ))
A("s_cbranch_scc1 Lhl")
def h_publish(lanes):
    A("v_cvt_pk_bf16_f32 v%d, v%d, v%d" % (hRES, hRES, hRES))
    A("v_and_b32 v%d, 0xffff0000, v%d" % (hRES, hRES))
    A("v_add_f32 v%d, s%d, v%d" % (hRES, sB2, hRES))
    A("v_cvt_pk_bf16_f32 v%d, v%d, v%d" % (hRES, hRES, hRES))
    A("v_and_b32 v%d, 0xffff0000, v%d" % (hRES + 1, hRES))
    A("s_mov_b64 exec, %d" % lanes)
    A("buffer_store_dword v%d, v27, %s, s%d offen sc1" % (hRES + 1, sr(sWS, 4), sHT))
    A("s_mov_b64 exec, -1")
A("s_waitcnt lgkmcnt(0)")
A("s_lshl_b32 s%d, s%d, 16" % (sB2, sB2))
lds_spin(8, 4, 24)
h_publish((1 << (2 * EPW)) - 1)
if QBD:
    C("the write-through copy of q is only needed when the group is not known to sit on one XCD")
    A("ds_read_b32 v24, v%d offset:4" % vFL)
    A("s_waitcnt lgkmcnt(0)")
    A("v_readfirstlane_b32 s%d, v24" % sT0)
    A("s_cmp_eq_u32 s%d, 4" % sT0)
    A("s_cbranch_scc1 Lhqb")
    A("s_mov_b64 exec, %s" % sr(sMSK, 2))
    A("buffer_store_dwordx4 %s, v%d, %s, s%d offen sc1" % (vr(W + 4, 4), vQST, sr(sWS, 4), sQS))
    A("s_mov_b64 exec, -1")
    LB("Lhqb")
STAMP(8)
MP("htab")
if XENT:
    A("s_mov_b32 s%d, s%d" % (sH, sHX)); A("s_mov_b32 s%d, s%d" % (sH + 1, sHX))
    for grp in [[0, 1, 2, 3], [4, 5, 6, 7], [8, 9, 10], [11, 12, 13]]:
        n = len(grp)
        for k, p in enumerate(grp): A("v_pk_fma_f32 %s, %s, %s, %s" % (vr(U4[k], 2), vr(HW1 + 2 * p, 2), sr(sH, 2), vr(HB1 + 2 * p, 2)))
        for k in range(n): A("v_pk_mul_f32 %s, %s, %s" % (vr(T4[k], 2), vr(U4[k], 2), vr(U4[k], 2)))
        for k in range(n): A("v_pk_fma_f32 %s, %s, %s, %s" % (vr(T4[k], 2), vr(T4[k], 2), vr(hK1, 2), vr(hK0, 2)))
        for k in range(n): A("v_pk_mul_f32 %s, %s, %s" % (vr(T4[k], 2), vr(T4[k], 2), vr(U4[k], 2)))
        for k in range(n):
            for h in range(2): A("v_exp_f32 v%d, v%d" % (T4[k] + h, T4[k] + h))
        for k, p in enumerate(grp): A("v_pk_mul_f32 %s, %s, %s" % (vr(Z4[k], 2), vr(U4[k], 2), vr(HW2 + 2 * p, 2)))
        for k in range(n): A("v_pk_add_f32 %s, %s, %s" % (vr(T4[k], 2), vr(T4[k], 2), vr(hONE, 2)))
        for k in range(n):
            for h in range(2): A("v_rcp_f32 v%d, v%d" % (T4[k] + h, T4[k] + h))
        for k, p in enumerate(grp):
            if p < 2: A("v_pk_mul_f32 %s, %s, %s" % (vr(AC[p & 1], 2), vr(Z4[k], 2), vr(T4[k], 2)))
            else: A("v_pk_fma_f32 %s, %s, %s, %s" % (vr(AC[p & 1], 2), vr(Z4[k], 2), vr(T4[k], 2), vr(AC[p & 1], 2)))
    A("v_add_f32 v%d, v%d, v%d" % (AC[0], AC[0], AC[0] + 1))
    A("v_add_f32 v%d, v%d, v%d" % (AC[1], AC[1], AC[1] + 1))
    A("v_add_f32 v%d, v%d, v%d" % (AC[0], AC[0], AC[1]))
    A("s_nop 1")
    wave_sum2(AC[0], AC[1], sSUM, sSQ)
    A("s_nop 1")
    A("v_mov_b32 v%d, s%d" % (hRES, sSUM))
    A("v_cvt_pk_bf16_f32 v%d, v%d, v%d" % (hRES, hRES, hRES))
    A("v_and_b32 v%d, 0xffff0000, v%d" % (hRES, hRES))
    A("v_add_f32 v%d, s%d, v%d" % (hRES, sB2, hRES))
    A("v_cvt_pk_bf16_f32 v%d, v%d, v%d" % (hRES, hRES, hRES))
    A("v_and_b32 v%d, 0xffff0000, v%d" % (hRES, hRES))
    C("the last of the four helpers stores the workgroup's four extra entries with one instruction")
    A("s_lshl_b32 s%d, s%d, 2" % (sT0, sW))
    A("v_add_u32 v16, s%d, v%d" % (sT0, vFL))
    A("v_mov_b32 v17, 1")
    A("s_mov_b64 exec, 1")
    A("ds_write_b32 v16, v%d offset:32" % hRES)
    A("s_waitcnt lgkmcnt(0)")
    A("ds_add_rtn_u32 v18, v%d, v17 offset:28" % vFL)
    A("s_waitcnt lgkmcnt(0)")
    A("v_readfirstlane_b32 s%d, v18" % sT0)
    A("s_cmp_lg_u32 s%d, 3" % sT0)
    A("s_cbranch_scc1 Lhx_end")
    A("ds_read_b128 v[20:23], v%d offset:32" % vFL)
    A("s_lshl_b32 s%d, s2, 4" % sT0)
    A("v_mov_b32 v16, s%d" % sT0)
    A("s_waitcnt lgkmcnt(0)")
    A("buffer_store_dwordx4 v[20:23], v16, %s, s%d offen sc1" % (sr(sWS, 4), sHT))
    LB("Lhx_end")
    A("s_mov_b64 exec, -1")
if DIAG:
    A("s_memtime s[42:43]"); A("s_waitcnt lgkmcnt(0)"); A("v_writelane_b32 v30, s42, 14")
    STAMP(15)
STAMP(7)
if TPF:
    C("pull a slice of the finished table into this XCD's L2 ahead of the gather")
    lds_spin(TPF_OFF, 4, 24, sleep=1)
    A("s_cmp_ge_u32 s%d, 20" % sM)
    A("s_cbranch_scc1 Lhtp")
    soff(sT1, [(sM, 10), (sW, 8)], TB)
    A("v_lshlrev_b32 v16, 7, v%d" % vLANE)
    A("s_mov_b64 exec, 3")
    A("buffer_load_dword v17, v16, %s, s%d offen sc1" % (sr(sWS, 4), sT1))
    A("s_mov_b64 exec, -1")
    LB("Lhtp")
if HG:
    C("gather the table into LDS (V fragments are in registers, every workgroup's sentinels were in place)")
    lds_spin(HG_OFF, 4, 24, sleep=1)
    if TB2 == 1:
        soff(sT1, [(sM, 11), (sW, 9), (sJ, 17)], CLRB_OFF)
        A("v_lshlrev_b32 v16, 7, v%d" % vLANE)
        A("s_mov_b64 exec, 15")
        A("buffer_load_dword v52, v16, %s, s%d offen sc1" % (sr(sWS, 4), sT1))
        A("s_mov_b64 exec, -1")
    A("s_lshl_b32 s%d, s%d, 12" % (sT3, sW))
    A("s_add_u32 s%d, s%d, %d" % (sT3, sT3, XENT * 4))
    A("v_add_u32 v20, s%d, v%d" % (sT3, vL16))
    A("v_add_u32 v20, %d, v20" % L_TAB)
    A("s_add_u32 s%d, s%d, %s" % (sT3, sT3, hx(TB)))
    A("s_lshl_b32 s%d, s%d, 10" % (sT4, sW))
    A("v_add_u32 v21, s%d, v%d" % (sT4, vL16))
    A("v_add_u32 v21, %d, v21" % L_TAB)
    A("s_add_u32 s%d, s%d, %s" % (sT4, sT4, hx(TB)))
    def hgi():
        for i in range(4):
            A("buffer_load_dwordx4 %s, v%d, %s, s%d offen offset:%d sc1" % (vr(32 + 4 * i, 4), vL16, sr(sWS, 4), sT3, 1024 * i))
        A("buffer_load_dwordx4 v[48:51], v%d, %s, s%d offen sc1" % (vL16, sr(sWS, 4), sT4))
    poll(hgi, range(32, 48), vT, back="s_sleep 6")
    for i in range(4): A("ds_write_b128 v20, %s offset:%d" % (vr(32 + 4 * i, 4), 1024 * i))
    A("ds_write_b128 v21, v[48:51]")
    A("s_waitcnt lgkmcnt(0)")
    lds_arrive(20, 24)
    MP("htg")
    A("s_mov_b32 s%d, 3" % sCNT)
    LB("Lhge")
    for x in maxtree(range(48, 52), vT): A(x)
    A("v_cmp_eq_u32 vcc, -1, v%d" % vT)
    A("s_cbranch_vccz Lhgc")
    A("s_sleep 6")
    A("buffer_load_dwordx4 v[48:51], v%d, %s, s%d offen sc1" % (vL16, sr(sWS, 4), sT4))
    A("s_waitcnt vmcnt(0)")
    A("ds_write_b128 v21, v[48:51]")
    A("s_sub_u32 s%d, s%d, 1" % (sCNT, sCNT))
    A("s_cbranch_scc0 Lhge")
    A("s_branch Lhgd")
    LB("Lhgc")
    A("s_waitcnt lgkmcnt(0)")
    lds_arrive(48, 24)
    LB("Lhgd")
    A("s_waitcnt lgkmcnt(0)")
C("stand in at the two barriers of the second layer, so that they do not wait for this wave's store acknowledgements")
A("s_barrier")
A("s_barrier")
if MEAS and OPT["q"][0] == "h":
    A("s_mov_b64 exec, 1"); A("v_mov_b32 v16, s97"); A("global_atomic_umax v[30:31], v16, off sc1")
if DIAG:
    A("s_add_u32 s%d, s%d, 4" % (sW, sW))
    A("v_mov_b32 v28, v30")
    A("s_branch Lfin_exit")
A("s_endpgm")

LB("Lmain")
for s, off in [(sWS, 96), (sV, 16), (sWO, 32), (sOUT, 80), (sX, 0), (sB2P, 72), (sW1, 48), (sB1, 56), (sW2, 64)]:
    A("s_load_dwordx2 %s, s[0:1], %d" % (sr(s, 2), off))
if MEAS: A("s_load_dwordx2 s[42:43], s[0:1], 88"); A("s_waitcnt lgkmcnt(0)"); A("s_mov_b32 s25, s42"); A("s_mov_b32 s99, s43") if False else None; A("v_mov_b32 v30, s42"); A("v_mov_b32 v31, s43")
srd(sWS, WS_SZ)
for s in [sW1, sB1, sW2]: srd(s, 3584)
A("s_barrier")
for i in range(D0, D1): kv_issue(i)
for i in range(4): A("v_mov_b32 v%d, -1" % (W + i))
A("s_lshl_b32 s%d, s%d, 17" % (sGR, sJ))
A("s_mov_b32 s%d, s%d" % (sT1, sM))
A("s_waitcnt lgkmcnt(0)")
A("s_load_dword s%d, %s, %s" % (sE, sr(sWS, 2), hx(EPO)))
STAMP(11)
for s, n in [(sV, 1 << 25), (sX, 4096), (sWO, 1 << 22), (sOUT, 4096)]: srd(s, n)
A("v_lshlrev_b32 v18, 1, v16")
A("v_xor_b32 v18, v17, v18")
A("v_lshlrev_b32 v18, 4, v18")
A("v_lshl_add_u32 v%d, v16, 8, v18" % vVA)
if ROT:
    A("s_and_b32 s%d, s%d, 1" % (sT0, sC))
    A("s_lshl_b32 s%d, s%d, 7" % (sT0, sT0))
    A("v_xor_b32 v%d, s%d, v%d" % (vVA, sT0, vVA))
A("v_xor_b32 v%d, 128, v%d" % (vVA + 1, vVA))
C("late sentinels: wave 0,1: group region ; wave 2: P chunk")
A("s_lshr_b32 s%d, s2, 3" % sT1)
A("s_mul_i32 s%d, s%d, %d" % (sT1, sT1, CLRB_PER))
A("s_lshl_b32 s%d, s%d, 10" % (sT0, sW))
A("s_add_u32 s%d, s%d, s%d" % (sT1, sT1, sT0))
A("s_add_u32 s%d, s%d, s%d" % (sT1, sT1, sGR))
A("s_add_u32 s%d, s%d, %d" % (sT1, sT1, CLRB_OFF))
A("s_lshl_b32 s%d, s2, 10" % sT0)
A("s_add_u32 s%d, s%d, %s" % (sT0, sT0, hx(PB)))
A("s_cmp_ge_u32 s%d, 2" % sW)
A("s_cselect_b32 s%d, s%d, s%d" % (sT1, sT0, sT1))
A("s_bfm_b64 %s, %d, 0" % (sr(sH, 2), (CLRB_PER - 1024) // 16))
A("s_cmp_eq_u32 s%d, 1" % sW)
A("s_cselect_b64 %s, %s, -1" % (sr(sH, 2), sr(sH, 2)))
NCL = NOCT * 4 // 16
A("v_mov_b32 v19, v%d" % vL16)
A("s_cmp_lg_u32 s%d, 3" % sW)
A("s_cbranch_scc1 Lm_c3")
C("wave 3: this workgroup's table slots")
A("s_mul_i32 s%d, s2, %d" % (sT0, NOCT * 4))
A("s_add_u32 s%d, s%d, %d" % (sT0, sT0, XENT * 4))
A("v_add_u32 v19, s%d, v19" % sT0)
A("s_lshl_b32 s%d, s2, 4" % sT0)
if XENT: A("v_writelane_b32 v19, s%d, %d" % (sT0, NCL))
A("s_mov_b32 s%d, %s" % (sT1, hx(TB)))
A("s_mov_b64 %s, %d" % (sr(sH, 2), (1 << (NCL + (1 if XENT else 0))) - 1))
LB("Lm_c3")
A("s_mov_b64 exec, %s" % sr(sH, 2))
A("buffer_store_dwordx4 %s, v19, %s, s%d offen sc1" % (vr(W, 4), sr(sWS, 4), sT1))
A("s_mov_b64 exec, -1")

common_addr()
A("s_add_u32 s%d, s%d, s%d" % (sQS, sQS, sGR))
A("s_add_u32 s%d, s%d, %d" % (sQS, sQS, Q1_OFF))
wtile_voff(10, 22)
A("v_and_b32 v19, 7, v%d" % vLANE)
A("v_lshrrev_b32 v25, 2, v%d" % vLANE)
A("v_lshlrev_b32 v25, 7, v25")
A("v_lshl_add_u32 v%d, v18, 2, v25" % vOST)
A("v_lshlrev_b32 v25, 7, v16")
A("v_lshl_add_u32 v%d, v19, 4, v25" % vOLD)
C("lanes n>=8 of the first two o loads fetch the lse values instead: offset relative to the o block")
A("s_mul_i32 s%d, s%d, %d" % (sT0, sA, 128 - 8192))
A("s_mul_i32 s%d, s%d, %d" % (sT1, sW, 32 - 2048))
A("s_add_u32 s%d, s%d, s%d" % (sT0, sT0, sT1))
A("s_add_u32 s%d, s%d, %d" % (sT0, sT0, LSE_OFF[0] - O_OFF[0]))
A("v_add_u32 v25, s%d, v%d" % (sT0, vLSE))
A("v_xor_b32 v26, 16, v25")
A("v_add_u32 v26, -512, v26")
A("v_cmp_gt_u32 vcc, 8, v17")
A("s_nop 1")
A("v_cndmask_b32 v%d, v25, v%d, vcc" % (vLSE, vOLD))
A("v_cndmask_b32 v%d, v26, v%d, vcc" % (vLS2, vOLD))
A("v_lshlrev_b32 v%d, 1, v%d" % (vPST, vLANE))
A("v_lshlrev_b32 v25, 3, v16")
A("v_lshl_add_u32 v%d, v19, 4, v25" % vX1S)
A("s_mul_i32 s%d, s%d, %d" % (sT0, sW, RBS))
A("s_add_u32 s%d, s%d, %d" % (sT0, sT0, L_RB))
A("v_mul_u32_u24 v25, 528, v18")
A("v_lshl_add_u32 v25, v16, 4, v25")
A("v_lshrrev_b32 v26, 2, v17")
A("v_lshl_add_u32 v25, v26, 7, v25")
A("v_add_u32 v%d, s%d, v25" % (vRBW, sT0))
A("s_mul_i32 s%d, s%d, 528" % (sT0, sW))
A("s_add_u32 s%d, s%d, %d" % (sT0, sT0, L_RB))
A("v_lshlrev_b32 v25, 3, v%d" % vLANE)
A("v_add_u32 v%d, s%d, v25" % (vRBR, sT0))
A("s_lshl_b32 s%d, s%d, 3" % (sT0, sW))
A("s_add_u32 s%d, s%d, %d" % (sT0, sT0, L_ML))
A("v_lshlrev_b32 v25, 5, v18")
A("v_add_u32 v%d, s%d, v25" % (vMLW, sT0))
A("s_lshl_b32 s%d, s%d, 5" % (sT0, sW))
A("s_add_u32 s%d, s%d, %d" % (sT0, sT0, L_ML))
A("v_mov_b32 v%d, s%d" % (vMLR, sT0))
A("v_mov_b32 v25, 0x3f80")
A("v_mov_b32 v26, 0x3f800000")
for r in range(4):
    A("v_cmp_eq_u32 vcc, %d, v17" % (2 * r))
    A("v_cmp_eq_u32 %s, %d, v17" % (sr(sH, 2), 2 * r + 1))
    A("s_nop 0")
    A("v_cndmask_b32 v%d, 0, v25, vcc" % (SEL + r))
    A("v_cndmask_b32 v%d, v%d, v26, %s" % (SEL + r, SEL + r, sr(sH, 2)))
for i in range(16): A("v_mov_b32 v%d, 0" % (PM + i))
for p in range(4):
    A("s_mov_b32 s%d, %s" % (sPM + 2 * p, hx(0x000f000f << (4 * p))))
    A("s_mov_b32 s%d, %s" % (sPM + 2 * p + 1, hx(0x000f000f << (4 * p))))
soff(sOS, [(sW, 13), (sA, 11), (sC, 4), (sJ, 17)], O_OFF[0])
soff(sOL, [(sA, 13), (sW, 11), (sJ, 17)], O_OFF[0])
A("s_add_u32 s%d, s%d, %s" % (sQL, sOL, hx(Q0_OFF - O_OFF[0])))
soff(sLS, [(sW, 7), (sA, 5), (sC, 2), (sJ, 17)], LSE_OFF[0])
soff(sPS, [(sW, 15), (sC, 12), (sJ, 9), (sA, 7)], PB)
A("s_mov_b32 s%d, %s" % (sSC, hx(f2u(128 ** -0.5 * math.log2(math.e)))))
A("s_getreg_b32 s%d, hwreg(HW_REG_XCC_ID, 0, 3)" % sXCC)
C("first q projection")
A("s_sub_u32 s%d, s%d, s%d" % (sIT, sQS, sGR))
A("s_lshl_b32 s%d, s%d, 1" % (sIT, sIT))
A("s_add_u32 s%d, s%d, s%d" % (sIT, sIT, sGR))
A("s_add_u32 s%d, s%d, %s" % (sIT, sIT, hx(Q0_OFF - 2 * Q1_OFF)))
A("v_lshlrev_b32 v21, 1, v%d" % vQST)
STAMP(12)
if DIAG: A("v_mov_b32 v31, v30")
A("s_waitcnt vmcnt(%d)" % (4 + D1 + 1))
A("s_branch Llnq")
LB("Lq_first")
A("s_waitcnt vmcnt(%d) lgkmcnt(0)" % (D1 + 1))
lds_arrive(0, vT + 4)
for i in range(D1, D2): kv_issue(i)
tags()
A("s_or_b32 s%d, s%d, s%d" % (sXCC, sXCC, sTG2))
lds_spin(0, 8, vT + 4)
wqf_reads()
A("s_waitcnt lgkmcnt(0)")
A("s_branch Lq_go")
LB("Lh_qst")
A("v_mov_b32 v%d, s%d" % (W + 6, sTG1))
A("v_mov_b32 v%d, s%d" % (W + 7, sXCC))
A("buffer_store_dwordx4 %s, v21, %s, s%d offen%s" % (vr(W + 4, 4), sr(sWS, 4), sIT, "" if int(OPT.get("fast", 1)) else " sc1"))
A("s_add_u32 s%d, s%d, %s" % (sIT, sIT, hx(QB_DELTA)))
A("buffer_store_dwordx4 %s, v21, %s, s%d offen sc1" % (vr(W + 4, 4), sr(sWS, 4), sIT))
A("s_mov_b64 exec, -1")
STAMP(14)
MP("mq")
A("v_lshrrev_b32 v16, 4, v%d" % vLANE)
A("v_and_b32 v17, 15, v%d" % vLANE)
A("v_xor_b32 v24, v16, v17")
A("v_lshlrev_b32 v24, 4, v24")
A("v_lshl_add_u32 v24, v17, 8, v24")
A("s_lshl_b32 s%d, s%d, 13" % (sT1, sW))
A("s_add_u32 s%d, s%d, %d" % (sT2, sT1, L_K))
for t in range(4): A("v_xor_b32 v%d, %d, v24" % (18 + t, 64 * t))
for t in range(4): A("v_add_u32 v%d, s%d, v%d" % (18 + t, sT2, 18 + t))
VA = W + 32
A("v_lshrrev_b32 v24, 2, v%d" % vLANE)
A("v_and_b32 v25, 7, v24")
A("v_lshlrev_b32 v25, 1, v25")
A("v_bfe_u32 v26, v%d, 1, 1" % vLANE)
A("v_xor_b32 v25, v25, v26")
A("v_lshlrev_b32 v25, 4, v25")
A("v_lshl_add_u32 v25, v24, 8, v25")
A("v_and_b32 v26, 1, v%d" % vLANE)
A("v_lshl_add_u32 v25, v26, 3, v25")
A("s_add_u32 s%d, s%d, %d" % (sT2, sT1, L_V))
for t in range(8): A("v_xor_b32 v%d, %d, v25" % (VA + t, 32 * t))
for t in range(8): A("v_add_u32 v%d, s%d, v%d" % (VA + t, sT2, VA + t))
soff(sT4, [(sJ, 19), (sA, 17), (sW, 15), (sC, 7)], 0)
A("s_lshl_b32 s%d, s%d, 12" % (sT5, sW))
A("s_add_u32 s%d, s%d, %d" % (sT5, sT5, L_WO))
soff(sT3, [(sA, 10), (sC, 7)], 0)
A("v_lshlrev_b32 v24, 5, v%d" % vLANE)
A("s_lshl_b32 s%d, s%d, 10" % (sT2, sW))
A("s_add_u32 s%d, s%d, %d" % (sT2, sT2, L_QF))
A("v_add_u32 v25, s%d, v%d" % (sT2, vL16))
A("v_add_u32 v26, %d, v%d" % (L_QF, vL16))
QP = W
def q0_issue(QP=QP):
    A("buffer_load_dwordx4 %s, v24, %s, s%d offen sc1" % (vr(QP, 4), sr(sWS, 4), sQL))
    A("buffer_load_dwordx4 %s, v24, %s, s%d offen offset:16 sc1" % (vr(QP + 4, 4), sr(sWS, 4), sQL))
def flag_block():
    if True:
        A("s_cmp_lg_u32 s%d, 0" % sW)
        A("s_cbranch_scc1 Lnoflag")
        C("every sentinel store of this workgroup is acknowledged: announce it")
        lds_spin(8, 4, vT)
        A("v_mov_b32 v16, s%d" % sTG1)
        A("v_mov_b32 v17, s%d" % sXCC)
        soff(sT1, [(2, 4)], FB)
        A("s_mov_b64 exec, 1")
        A("buffer_store_dwordx2 v[16:17], v%d, %s, s%d offen sc1" % (PM, sr(sWS, 4), sT1))
        A("s_mov_b64 exec, -1")
        LB("Lnoflag")
ycl = D2 - D1 + 2; st_arr = st_fl = False
for i in range(D2, 16):
    dp = DEPTH
    if i == 16 - QV:
        A("s_waitcnt vmcnt(%d)" % (dp - 2)); q0_issue(); ycl += 2
    A("s_waitcnt vmcnt(%d)" % (dp - 1))
    if EFL:
        if st_arr and not st_fl:
            flag_block(); st_fl = True
        if not st_arr and ycl >= dp - 1:
            lds_arrive(8, vT); st_arr = True
    kv_issue(i); ycl += 1
q0_issue(QP + 8)
C("everything older than the V loads is complete: K, late sentinels")
assert not QV2
A("s_waitcnt vmcnt(%d)" % int(OPT.get("kw", 14)))
if EFL: assert st_fl
else: lds_arrive(8, vT)
STAMP(1)
for t in range(4):
    for T in range(2):
        A("ds_read_b128 %s, v%d offset:%d" % (vr(KF + 16 * T + 4 * t, 4), 18 + t, 4096 * T))
if "dump" in OPT:
    A("s_waitcnt lgkmcnt(0)")
    soff(sT1, [(2, 15), (sW, 13)], 0x1000000)
    for k in range(8):
        A("buffer_store_dwordx4 %s, v%d, %s, s%d offen" % (vr(KF + 4 * k, 4), vL16, sr(sWS, 4), sT1))
        A("s_add_u32 s%d, s%d, 1024" % (sT1, sT1))
    A("s_waitcnt vmcnt(0)")
if not EFL: flag_block()
def wait_w0(n):
    if EFL:
        A("s_waitcnt vmcnt(%d)" % n); return
    uid[0] += 1
    A("s_cmp_eq_u32 s%d, 0" % sW)
    A("s_cbranch_scc1 Lww%d" % uid[0])
    A("s_waitcnt vmcnt(%d)" % n)
    LB("Lww%d" % uid[0])
    A("s_waitcnt vmcnt(%d)" % (n + 1))
wait_w0(QV + 2 + (2 if QV2 else 0))
STAMP(2)
A("s_setprio 2")
A("s_mov_b32 s%d, %s" % (sCNT, hx(SPIN)))
A("s_mov_b32 s%d, 0" % sY)
A("s_mov_b32 s%d, 0" % sIT)
LB("Lmq")
A("v_and_b32 v16, -8, v%d" % (QP + 3))
A("v_and_b32 v17, -8, v%d" % (QP + 7))
A("v_cmp_ne_u32 vcc, s%d, v%d" % (sTG1, QP + 2))
A("v_cmp_ne_u32 %s, s%d, v%d" % (sr(sRET, 2), sTG1, QP + 6))
A("s_or_b64 vcc, vcc, %s" % sr(sRET, 2))
A("v_cmp_ne_u32 %s, s%d, v16" % (sr(sRET, 2), sTG2))
A("s_or_b64 vcc, vcc, %s" % sr(sRET, 2))
A("v_cmp_ne_u32 %s, s%d, v17" % (sr(sRET, 2), sTG2))
A("s_or_b64 vcc, vcc, %s" % sr(sRET, 2))
if not int(OPT.get("nochk", 0)): A("s_cbranch_vccnz Lmqr")
LB("Lmqd")
if DIAG:
    A("s_sub_u32 s%d, s%d, s%d" % (sT0, sCNT, sY)); A("v_writelane_b32 v31, s%d, 0" % sT0)
Ls = L; L = []
L.append(".p2align 6"); LB("Lst_mq"); A("s_setpc_b64 %s" % sr(sRET, 2))
LB("Lmqr")
A("s_cmp_lg_u32 s%d, 0" % sY)
A("s_cbranch_scc1 Lmqr2")
if QV2:
    A("s_cmp_lg_u32 s%d, 0" % sIT)
    A("s_cbranch_scc1 Lmqr1")
    A("s_mov_b32 s%d, 1" % sIT)
    wait_w0(QV2 + 2)
    for k in range(8): A("v_mov_b32 v%d, v%d" % (QP + k, XR + k))
    A("s_branch Lmq")
    LB("Lmqr1")
C("first look failed: take the second one (V has landed with it: request its fragments now)")
A("s_waitcnt vmcnt(0)")
A("s_mov_b32 s%d, 1" % sY)
for k in range(8): A("v_mov_b32 v%d, v%d" % (QP + k, QP + 8 + k))
if not VLATE:
    for t in range(8):
        for hf in range(2):
            A("ds_read_b64_tr_b16 %s, v%d offset:%d" % (vr(VF + 4 * t + 2 * hf, 2), VA + t, 4096 * hf))
A("s_branch Lmq")
LB("Lmqr2")
C("still not there: poll the plain copy a few times, then both copies in turn")
A("s_cmp_le_u32 s%d, %s" % (sCNT, hx(SPIN - 6)))
A("s_cselect_b32 s%d, %s, 0" % (sT0, hx(QB_DELTA)))
A("s_xor_b32 s%d, s%d, s%d" % (sQL, sQL, sT0))
q0_issue()
A("s_waitcnt vmcnt(0)")
A("s_sub_u32 s%d, s%d, 1" % (sCNT, sCNT))
A("s_cbranch_scc0 Lmq")
A("s_branch Lmqd")
ool.append(L); L = Ls
A("v_cmp_ne_u32 vcc, s%d, v%d" % (sXCC, QP + 3))
A("v_mov_b32 v%d, v%d" % (QP + 2, QP + 4))
A("v_mov_b32 v%d, v%d" % (QP + 3, QP + 5))
A("ds_write_b128 v25, %s" % vr(QP, 4))
A("s_cmp_eq_u64 vcc, 0")
A("s_cselect_b32 s%d, 1, 0x101" % sT0)
A("v_mov_b32 v16, s%d" % sT0)
A("s_waitcnt lgkmcnt(0)")
lds_arrive(4, 16, None)
if VLATE:
    A("s_cmp_eq_u32 s%d, 0" % sY)
    A("s_cbranch_scc1 Lnvf")
    for t in range(8):
        for hf in range(2):
            A("ds_read_b64_tr_b16 %s, v%d offset:%d" % (vr(VF + 4 * t + 2 * hf, 2), VA + t, 4096 * hf))
    LB("Lnvf")
STAMP(15)
A("buffer_load_dwordx2 %s, v%d, %s, s%d offen" % (vr(RES + 2, 2), vX1S, sr(sX, 4), sT3))
FLG = W + 44
soff(sIT, [(sW, 10)], FB)
soff(sQL, [(sA, 12), (sJ, 17)], Q1_OFF)
for k in range(4):
    A("s_add_u32 s%d, s%d, %d" % (sT0, sC, k))
    A("s_and_b32 s%d, s%d, 3" % (sT0, sT0))
    A("s_lshl_b32 s%d, s%d, 10" % (sKO + k, sT0))
A("s_and_b32 s%d, s%d, 1" % (sT0, sC))
A("s_lshl_b32 s%d, s%d, 6" % (sT0, sT0))
A("v_xor_b32 v22, s%d, v22" % sT0); A("v_xor_b32 v23, s%d, v23" % sT0)
A("s_lshl_b32 s%d, s%d, 2" % (sT3, sM))
A("s_add_u32 s%d, s%d, s%d" % (sT3, sT3, sW))
A("s_lshl_b32 s%d, s%d, 8" % (sT3, sT3))
A("v_lshlrev_b32 v21, 7, v%d" % vLANE)
A("v_add_u32 v21, s%d, v21" % sT3)
A("s_lshl_b32 s%d, s%d, 7" % (sT0, sW))
A("s_add_u32 s%d, s%d, %d" % (sT0, sT0, LSE_OFF[0]))
A("v_writelane_b32 v21, s%d, 2" % sT0)
if TB2 == 2:
    A("s_lshl_b32 s%d, s%d, 1" % (sT3, sT3))
    for k in range(4):
        A("s_add_u32 s%d, s%d, %d" % (sT0, sT3, CLRB_OFF + 128 * k))
        A("v_writelane_b32 v21, s%d, %d" % (sT0, 3 + k))
lds_spin(4, 4, vT, mask=0xff)
A("s_cmp_lt_u32 s%d, 256" % sT1)
A("s_cselect_b32 s%d, %d, 0" % (sFAST, int(OPT.get("fast", 1))))
QF = W + 16
for t in range(4):
    A("ds_read_b128 %s, v26 offset:%d" % (vr(QF + 4 * t, 4), 1024 * t))
S = W
qk = []
for t in range(4):
    for T in range(2):
        qk.append(mf(S + 4 * T, KF + 16 * T + 4 * t, QF + 4 * t, None if t == 0 else S + 4 * T))
for t in range(4):
    A("s_waitcnt lgkmcnt(%d)" % (3 - t))
    A(qk[2 * t]); A(qk[2 * t + 1])
def wo_issue():
    C("every wave holds its K fragments: the wo tile may land in the K area")
    for k in range(4):
        A("s_add_u32 m0, s%d, s%d" % (sT5, sKO + k))
        A("s_lshl3_add_u32 s%d, s%d, s%d" % (sT0, sKO + k, sT4))
        A("buffer_load_dwordx4 v%d, %s, s%d offen nt lds" % (22 + (k & 1), sr(sWO, 4), sT0))
if WOP == 0: wo_issue()
if PRET:
    C("bring the first layer's o / lse lines (their sentinels are in place) into L2")
    A("s_mov_b64 exec, %d" % (127 if TB2 == 2 else 7))
    A("buffer_load_dword v%d, v21, %s, s%d offen sc1" % (W + 40, sr(sWS, 4), sGR))
    A("s_mov_b64 exec, -1")
STAMP(3)
A("s_branch Lk_go")

LB("Llnq")
C("LayerNorm of the row held in XR, then q partial = xn @ wq tile")
X = W
row_stats(XR, vT, X)
A("v_add_f32 v%d, %s, v%d" % (vT + 1, EPS, vT + 1))
A("v_rsq_f32 v%d, v%d" % (vT + 2, vT + 1))
A("s_cmp_eq_u32 s%d, 0" % sLAY)
A("v_mul_f32 v%d, v%d, v%d" % (vT + 3, vT, vT + 2))
for i in range(4):
    A("v_pk_fma_f32 %s, %s, %s, %s op_sel:[0,0,1] op_sel_hi:[1,0,1] neg_lo:[0,0,1] neg_hi:[0,0,1]" % (vr(X + 2 * i, 2), vr(X + 2 * i, 2), vr(vT + 2, 2), vr(vT + 2, 2)))
for i in range(4):
    A("v_cvt_pk_bf16_f32 v%d, v%d, v%d" % (X + 8 + i, X + 2 * i, X + 2 * i + 1))
A("ds_write_b128 v%d, %s" % (vXNW, vr(X + 8, 4)))
A("s_cbranch_scc1 Lq_first")
A("s_waitcnt lgkmcnt(0)")
A("s_barrier")
LB("Lq_go")
BF = W + 16
for t in range(4):
    A("ds_read_b128 %s, v%d offset:%d" % (vr(BF + 4 * t, 4), vXNR, 64 * t))
for t in range(4):
    A("s_waitcnt lgkmcnt(%d)" % (3 - t))
    mfma(W, WQF + 4 * t, BF + 4 * t, None if t == 0 else W)
A("s_cmp_eq_u32 s%d, 0" % sLAY)
A("s_mov_b64 exec, %s" % sr(sMSK, 2))
NOP(6)
A("v_cvt_pk_bf16_f32 v%d, v%d, v%d" % (W + 4, W, W + 1))
A("v_cvt_pk_bf16_f32 v%d, v%d, v%d" % (W + 5, W + 2, W + 3))
A("s_cbranch_scc1 Lh_qst")
fastcmp()
store_local("buffer_store_dwordx2", vr(W + 4, 2), vQST, sQS)
A("s_mov_b64 exec, -1")
A("ds_write_b128 v%d, %s offset:%d" % (vXNW, vr(XR, 4), L_X2 - L_XN))
A("s_mov_b32 s%d, 0" % sY)
for s, d in [(sOL, O_OFF[1] - O_OFF[0]), (sOS, O_OFF[1] - O_OFF[0]), (sLS, LSE_OFF[1] - LSE_OFF[0]), (sPS, P_L)]:
    A("s_add_u32 s%d, s%d, %d" % (s, s, d))
STAMP(2)

C("attention over this workgroup's 128 keys")
if QS:
    C("each wave fetches one k-step of q and shares it through LDS")
    A("s_lshl_b32 s%d, s%d, 10" % (sT3, sW))
    A("s_add_u32 s%d, s%d, s%d" % (sT4, sQL, sT3))
    A("s_add_u32 s%d, s%d, %d" % (sT3, sT3, L_RB + 12288))
    A("v_add_u32 v25, s%d, v%d" % (sT3, vL16))
    A("v_add_u32 v26, %d, v%d" % (L_RB + 12288, vL16))
    ppoll(lambda k: A("buffer_load_dwordx4 %s, v%d, %s, s%d offen sc1" % (vr(W + 32 + 4 * k, 4), vL16, sr(sWS, 4), sT4)),
          lambda k: range(W + 32 + 4 * k, W + 36 + 4 * k), 1, vT, lambda k: ["ds_write_b128 v25, %s" % vr(W + 32 + 4 * k, 4)], pre=QPRE, gap=QGAP, tag=0)
    A("s_waitcnt lgkmcnt(0)")
    A("s_barrier")
    for t in range(4):
        A("ds_read_b128 %s, v26 offset:%d" % (vr(QF + 4 * t, 4), 1024 * t))
    for t in range(4):
        A("s_waitcnt lgkmcnt(%d)" % (3 - t))
        A(qk[2 * t]); A(qk[2 * t + 1])
    touch_stub("k")
else:
    def iq(k):
        for t in range(4):
            A("buffer_load_dwordx4 %s, v%d, %s, s%d offen offset:%d sc1" % (vr(QF + 16 * k + 4 * t, 4), vL16, sr(sWS, 4), sQL, 1024 * t))
    def qks(k):
        return [mf(S + 4 * T, KF + 16 * T + 4 * t, QF + 16 * k + 4 * t, None if t == 0 else S + 4 * T) for t in range(4) for T in range(2)]
    ppoll(iq, lambda k: range(QF + 16 * k, QF + 16 * k + 16), 4, vT, qks, pre=QPRE, gap=QGAP, tag=0, stub="k", per_load=lambda k, i: qks(k)[2 * i:2 * i + 2])
STAMP(3)
LB("Lk_go")
NOP(5)
for ctl in ["row_ror:4", "row_ror:8"]:
    for i in range(8):
        A("v_add_f32_dpp v%d, v%d, v%d %s row_mask:0xf bank_mask:0xf" % (S + i, S + i, S + i, ctl))
A("v_max3_f32 v%d, v%d, v%d, v%d" % (vT, S, S + 1, S + 2))
A("v_max3_f32 v%d, v%d, v%d, v%d" % (vT + 1, S + 3, S + 4, S + 5))
A("v_max3_f32 v%d, v%d, v%d, v%d" % (vT, vT, S + 6, S + 7))
A("v_max_f32 v%d, v%d, v%d" % (vT, vT, vT + 1))
A("v_mov_b32 v%d, v%d" % (vT + 1, vT))
A("s_nop 1")
A("v_permlane16_swap_b32 v%d, v%d" % (vT, vT + 1))
A("v_max_f32 v%d, v%d, v%d" % (vT, vT, vT + 1))
A("v_mov_b32 v%d, v%d" % (vT + 1, vT))
A("s_nop 1")
A("v_permlane32_swap_b32 v%d, v%d" % (vT, vT + 1))
A("v_max_f32 v%d, v%d, v%d" % (vT, vT, vT + 1))
A("v_mul_f32 v%d, s%d, v%d" % (vT + 2, sSC, vT))
for i in range(8):
    A("v_fma_f32 v%d, v%d, s%d, -v%d" % (S + i, S + i, sSC, vT + 2))
for i in range(8):
    A("v_exp_f32 v%d, v%d" % (S + i, S + i))
for p in range(4):
    A("s_mov_b64 exec, %s" % sr(sPM + 2 * p, 2))
    for i in range(4):
        A("v_cvt_pk_bf16_f32 v%d, v%d, v%d" % (PM + 4 * p + i, S + 2 * i, S + 2 * i + 1))
A("s_mov_b64 exec, -1")
STAMP(4)
A("s_cmp_lg_u32 s%d, 0" % sLAY)
A("s_cbranch_scc1 Lv_go")
wait_w0((5 if WOP == 0 else 1) + PRET)
if WOP == 1: wo_issue()
A("buffer_load_dwordx4 %s, v%d, %s, s%d offen sc1" % (vr(FLG, 4), vL16, sr(sWS, 4), sIT))
STAMP(6)
A("s_cmp_lg_u32 s%d, 0" % sY)
A("s_cbranch_scc1 Lv_have")
for t in range(8):
    for hf in range(2):
        A("ds_read_b64_tr_b16 %s, v%d offset:%d" % (vr(VF + 4 * t + 2 * hf, 2), VA + t, 4096 * hf))
A("s_waitcnt lgkmcnt(0)")
LB("Lv_have")
if TOT:
    A("s_memrealtime s[42:43]"); A("s_waitcnt lgkmcnt(0)"); A("s_mov_b32 s97, s42")
MP("pv")
if MEAS and OPT["q"] in ("tg", "s1"): A("s_mov_b32 s97, s98")
A("s_cmp_lg_u32 s%d, 0" % sLAY)
LB("Lv_go")
OA = W + 8
mfma(W + 16, ONES, PM, None)
for p in range(4):
    for T in range(2):
        mfma(OA + 4 * T, VF + 4 * (2 * p + T), PM + 4 * p, None if p == 0 else OA + 4 * T)
A("s_mov_b64 exec, %s" % sr(sMSK, 2))
A("v_mov_b32 v%d, v%d" % (vT + 3, W + 16))
A("ds_write_b64 v%d, %s" % (vMLW, vr(vT + 2, 2)))
A("s_mov_b64 exec, -1")
NOP(3)
A("ds_write_b128 v%d, %s" % (vRBW, vr(OA, 4)))
A("ds_write_b128 v%d, %s offset:64" % (vRBW, vr(OA + 4, 4)))
A("s_waitcnt lgkmcnt(0)")
A("s_cbranch_scc1 Lrb_bar")
lds_arrive(12, vT + 4)
if WOP == 2: wo_issue()
lds_spin(12, 4, vT + 4)
A("s_branch Lrb_go")
LB("Lrb_bar")
A("s_barrier")
LB("Lrb_go")
A("ds_read_b128 %s, v%d" % (vr(W, 4), vMLR))
A("ds_read_b128 %s, v%d offset:16" % (vr(W + 4, 4), vMLR))
for w in range(4):
    A("ds_read_b64 %s, v%d offset:%d" % (vr(W + 8 + 2 * w, 2), vRBR, RBS * w))
A("v_mov_b32 v%d, 0" % (vT + 4))
fastcmp()
A("s_waitcnt lgkmcnt(4)")
A("v_max3_f32 v%d, v%d, v%d, v%d" % (vT, W, W + 2, W + 4))
A("v_max_f32 v%d, v%d, v%d" % (vT, vT, W + 6))
for w in range(4): A("v_sub_f32 v%d, v%d, v%d" % (W + 2 * w, W + 2 * w, vT))
for w in range(4): A("v_exp_f32 v%d, v%d" % (W + 2 * w, W + 2 * w))
A("v_mul_f32 v%d, v%d, v%d" % (vT + 1, W, W + 1))
for w in range(1, 4): A("v_fmac_f32 v%d, v%d, v%d" % (vT + 1, W + 2 * w, W + 2 * w + 1))
A("s_waitcnt lgkmcnt(0)")
A("v_pk_mul_f32 %s, %s, %s op_sel_hi:[1,0]" % (vr(W + 8, 2), vr(W + 8, 2), vr(W, 2)))
A("v_rcp_f32 v%d, v%d" % (vT + 2, vT + 1))
A("v_pk_fma_f32 %s, %s, %s, %s op_sel_hi:[1,0,1]" % (vr(W + 8, 2), vr(W + 10, 2), vr(W + 2, 2), vr(W + 8, 2)))
A("v_log_f32 v%d, v%d" % (vT + 5, vT + 1))
for w in range(2, 4):
    A("v_pk_fma_f32 %s, %s, %s, %s op_sel_hi:[1,0,1]" % (vr(W + 8, 2), vr(W + 8 + 2 * w, 2), vr(W + 2 * w, 2), vr(W + 8, 2)))
A("v_pk_mul_f32 %s, %s, %s op_sel_hi:[1,0]" % (vr(W + 8, 2), vr(W + 8, 2), vr(vT + 2, 2)))
A("v_add_f32 v%d, v%d, v%d" % (vT + 5, vT + 5, vT))
A("v_cvt_pk_bf16_f32 v%d, v%d, v%d" % (W + 8, W + 8, W + 9))
store_local("buffer_store_dword", "v%d" % (W + 8), vOST, sOS)
A("s_mov_b64 exec, 1")
store_local("buffer_store_dword", "v%d" % (vT + 5), vT + 4, sLS)
A("s_mov_b64 exec, -1")
STAMP(5)

C("wo phase: wave = batch, rows = key splits")
OF = W; LS = W + 32; DA = WQF
assert LSE_OFF[1] - O_OFF[1] == LSE_OFF[0] - O_OFF[0]
def io(k):
    for t in range(4):
        A("buffer_load_dwordx4 %s, v%d, %s, s%d offen offset:%d sc1" % (vr(OF + 16 * k + 4 * t, 4), [vLSE, vLS2, vOLD, vOLD][t], sr(sWS, 4), sOL, 512 * t))
A("s_cmp_lg_u32 s%d, 0" % sLAY)
A("s_cbranch_scc1 Lo_go")
C("first layer: wo tile landed -> fragments; every workgroup has announced its clears")
if WOP == 3: wo_issue()
A("s_waitcnt vmcnt(%d)" % (2 if WOP < 3 else 0))
STAMP(13)
A("s_mov_b32 s%d, %s" % (sT4, hx(SPIN)))
LB("Lap")
A("v_and_b32 v24, -8, v%d" % (FLG + 1))
A("v_cmp_ne_u32 vcc, s%d, v%d" % (sTG1, FLG))
A("v_cmp_ne_u32 %s, s%d, v24" % (sr(sH, 2), sTG2))
A("s_or_b64 vcc, vcc, %s" % sr(sH, 2))
A("s_cbranch_vccnz Lar")
LB("Lad")
lds_arrive(16, 24)
for i in range(2):
    A("v_lshlrev_b32 v%d, 16, v%d" % (W + 40 + 2 * i, RES + 2 + i))
    A("v_and_b32 v%d, 0xffff0000, v%d" % (W + 41 + 2 * i, RES + 2 + i))
for i in range(4): A("v_mov_b32 v%d, v%d" % (RES + i, W + 40 + i))
for ct in range(4): A("v_xor_b32 v%d, %d, v%d" % (W + 40 + ct, 32 * ct, vWT))
for ct in range(4): A("v_add_u32 v%d, %d, v%d" % (W + 40 + ct, L_WO, W + 40 + ct))
lds_spin(16, 4, 24)
STAMP(14)
A("s_mov_b32 s%d, 1" % sY)
LB("Lo_go")
A("s_mov_b32 s%d, 0x55555555" % sT4)
A("s_mov_b32 s%d, 0x55555555" % sT5)
def pre_o():
    A("s_cmp_eq_u32 s%d, 0" % sY)
    A("s_cbranch_scc1 Lo_nof")
    A("s_mov_b32 s%d, 0" % sY)
    for t in range(4):
        for ct in range(4):
            for hf in range(2):
                A("ds_read_b64_tr_b16 %s, v%d offset:%d" % (vr(WOF + 16 * ct + 4 * t + 2 * hf, 2), W + 40 + ct, 4096 * t + 512 * hf))
    LB("Lo_nof")
ool.append(["Lar:", "    s_sleep 4", "    s_lshl_b32 s%d, s%d, 10" % (sT5, sW), "    s_add_u32 s%d, s%d, %s" % (sT5, sT5, hx(FB)),
            "    buffer_load_dwordx4 %s, v%d, %s, s%d offen sc1" % (vr(FLG, 4), vL16, sr(sWS, 4), sT5),
            "    s_waitcnt vmcnt(0)", "    s_sub_u32 s%d, s%d, 1" % (sT4, sT4), "    s_cbranch_scc0 Lap", "    s_branch Lad"])
C("softmax over the 8 key splits: lanes n>=8 hold own lse in OF[0:3], the other four in OF[4:7]")
vU = vT + 2
def wo_all(k, t):
    o = OF + 16 * k
    m = [mf(DA + 4 * ct, o + 4 * t, WOF + 16 * ct + 4 * t, None if t == 0 else DA + 4 * ct) for ct in range(4)]
    va = ["v_max3_f32 v%d, v%d, v%d, v%d" % (vU, o, o + 1, o + 2), "v_max3_f32 v%d, v%d, v%d, v%d" % (vU + 1, o + 3, o + 4, o + 5),
          "v_max3_f32 v%d, v%d, v%d, v%d" % (vU, vU, o + 6, o + 7), "v_max_f32 v%d, v%d, v%d" % (vU, vU, vU + 1)]
    va += ["v_sub_f32 v%d, v%d, v%d" % (LS + i, o + i, vU) for i in range(4)]
    va += ["v_exp_f32 v%d, v%d" % (LS + i, LS + i) for i in range(4)]
    vb = ["v_mov_b32_dpp v%d, v%d row_ror:8 row_mask:0xf bank_mask:0x3" % (LS + i, LS + i) for i in range(4)]
    vb += ["v_add_f32 v%d, v%d, v%d" % (vU, LS, LS + 1), "v_add_f32 v%d, v%d, v%d" % (vU + 1, LS + 2, LS + 3),
           "v_add_f32 v%d, v%d, v%d" % (vU, vU, vU + 1), "v_mov_b32 v%d, v%d" % (vU + 1, vU)]
    f = {0: [], 1: va[:4], 2: va[4:], 3: vb}[t]
    out = ["s_waitcnt lgkmcnt(%d)" % [15, 15, 8, 0][t]] if t != 1 else []
    for x in m:
        out.append(x)
        for _ in range(2):
            if f: out.append(f.pop(0))
    return out
assert PROG and OGAP < 0
ppoll(io, lambda k: range(OF + 16 * k, OF + 16 * k + 16), 4, vT, None, pre=OPRE, gap=OGAP, mid=pre_o, tag=1, per_load=wo_all)
if TPF == 3 or HG == 1: lds_arrive(60, vT + 4)
STAMP(7)
A("v_permlane16_swap_b32 v%d, v%d" % (vU, vU + 1))
A("v_mul_f32 v%d, v%d, v%d" % (DA, DA, LS))
A("v_add_f32 v%d, v%d, v%d" % (vT, vU, vU + 1))
A("v_mul_f32 v%d, v%d, v%d" % (DA + 4, DA + 4, LS))
A("v_rcp_f32 v%d, v%d" % (vT, vT))
A("v_mul_f32 v%d, v%d, v%d" % (DA + 8, DA + 8, LS))
for i in range(1, 4):
    for ct in range(3):
        A("v_fmac_f32 v%d, v%d, v%d" % (DA + 4 * ct, DA + 4 * ct + i, LS + i))
    if i == 1: A("v_mul_f32 v%d, v%d, v%d" % (DA + 12, DA + 12, LS))
for i in range(1, 4): A("v_fmac_f32 v%d, v%d, v%d" % (DA + 12, DA + 12 + i, LS + i))
A("v_permlane16_swap_b32 v%d, v%d" % (DA, DA + 4))
A("s_nop 0")
A("v_permlane16_swap_b32 v%d, v%d" % (DA + 8, DA + 12))
A("v_add_f32 v%d, v%d, v%d" % (DA, DA, DA + 4))
A("v_add_f32 v%d, v%d, v%d" % (DA + 8, DA + 8, DA + 12))
A("s_nop 1")
A("v_permlane32_swap_b32 v%d, v%d" % (DA, DA + 8))
A("v_mul_f32 v%d, v%d, v%d" % (DA, DA, vT))
A("s_cmp_lg_u32 s%d, 0" % sLAY)
A("s_nop 0")
A("v_mov_b32_dpp v%d, v%d quad_perm:[1,0,3,2] row_mask:0xf bank_mask:0xf" % (DA + 1, DA))
A("s_mov_b64 exec, %s" % sr(sT4, 2))
A("v_cvt_pk_bf16_f32 v%d, v%d, v%d" % (DA, DA, DA + 1))
A("buffer_store_dword v%d, v%d, %s, s%d offen sc1" % (DA, vPST, sr(sWS, 4), sPS))
A("s_mov_b64 exec, -1")
STAMP(8)
A("s_cbranch_scc1 Lfinal")
MP("p0")

if PRET and TB2 == 0:
    C("same for the remaining lines of the group's mailboxes")
    soff(sT1, [(sM, 11), (sW, 9), (sJ, 17)], CLRB_OFF)
    A("v_lshlrev_b32 v21, 7, v%d" % vLANE)
    A("s_mov_b64 exec, 15")
    A("buffer_load_dword v%d, v21, %s, s%d offen sc1" % (W + 47, sr(sWS, 4), sT1))
    A("s_mov_b64 exec, -1")
A("s_cmp_lg_u32 s%d, 0" % sW)
A("s_cbranch_scc1 %s" % ("Ltabdone" if HG else "Ltab"))
C("stage 1 (wave 0): reduce 32 head partials of 64 outputs, add residual, publish x1 slice")
soff(sT1, [(sA, 15), (sC, 12)], PB)
soff(sT2, [(sA, 10), (sC, 7), (sJ, 17)], X1_OFF)
A("s_mov_b32 s%d, 0x00ff00ff" % sT4)
A("s_mov_b32 s%d, 0" % sT5)
def ip(k):
    for i in range(4):
        A("buffer_load_dwordx4 %s, v%d, %s, s%d offen offset:%d sc1" % (vr(W + 20 * k + 4 * i, 4), vL16, sr(sWS, 4), sT1, 1024 * i))
if GW: A("s_waitcnt vmcnt(0)")
ppoll(ip, lambda k: range(W + 20 * k, W + 20 * k + 16), 4, vT, lambda k: [mf(W + 16, SEL, W + 20 * k + 4 * i, None if i == 0 else W + 16) for i in range(4)], pre=GPRE, gap=GGAP, tag=2,
      per_load=lambda k, i: [mf(W + 16, SEL, W + 20 * k + 4 * i, None if i == 0 else W + 16)])
STAMP(9)
MP("s1")
fastcmp()
NOP(3)
for i in range(4):
    A("v_add_f32_dpp v%d, v%d, v%d row_ror:8 row_mask:0xf bank_mask:0xf" % (W + 16 + i, W + 16 + i, W + 16 + i))
A("s_mov_b64 exec, %s" % sr(sT4, 2))
A("v_pk_add_f32 %s, %s, %s" % (vr(W + 16, 2), vr(W + 16, 2), vr(RES, 2)))
A("v_pk_add_f32 %s, %s, %s" % (vr(W + 18, 2), vr(W + 18, 2), vr(RES + 2, 2)))
A("v_cvt_pk_bf16_f32 v%d, v%d, v%d" % (W + 16, W + 16, W + 17))
A("v_cvt_pk_bf16_f32 v%d, v%d, v%d" % (W + 17, W + 18, W + 19))
store_local("buffer_store_dwordx2", vr(W + 16, 2), vX1S, sT2)
A("s_mov_b64 exec, -1")
LB("Ltabdone")
soff(sT3, [(sW, 10), (sJ, 17)], X1_OFF)
def ix(k):
    A("buffer_load_dwordx4 %s, v%d, %s, s%d offen sc1" % (vr([XR, RES][k], 4), vL16, sr(sWS, 4), sT3))
wqf_reads()
ppoll(ix, lambda k: range([XR, RES][k], [XR, RES][k] + 4), 1, vT, lambda k: ["s_waitcnt lgkmcnt(0)", "v_readfirstlane_b32 s%d, v%d" % (sT1, vT + 2)],
      pre=XPRE, gap=XGAP, mid=lambda: A("ds_read_b32 v%d, v%d offset:20" % (vT + 2, vFL)), tag=3,
      fix=["v_mov_b32 v%d, v%d" % (XR + i, RES + i) for i in range(4)])
A("s_cmp_lt_u32 s%d, %d" % (sT1, 4 if HG else 3))
A("s_cbranch_scc1 Ltw")
LB("Ltwd")
STAMP(10)

LB("Lmix")
C("x <- x + g(LN(LN(x))) ; g is tabulated for every bf16 input in range, evaluated directly otherwise")
X = W; HB = W + 8; RT = W + 12; AD = W + 16; Y = W + 24
row_stats(XR, vT, X)
A("v_add_f32 v%d, %s, v%d" % (vT + 2, EPS, vT + 1))
A("v_rsq_f32 v%d, v%d" % (vT + 2, vT + 2))
A("v_mov_b32 v%d, %s" % (vT + 4, hx(LO2 | (LO2 << 16))))
A("s_movk_i32 s%d, %d" % (sT5, NENT * 4))
A("v_mul_f32 v%d, v%d, v%d" % (vT + 1, vT + 1, vT + 2))
A("v_fmaak_f32 v%d, v%d, v%d, %s" % (vT + 1, vT + 1, vT + 2, EPS))
A("v_rsq_f32 v%d, v%d" % (vT + 1, vT + 1))
A("s_nop 0")
A("v_mul_f32 v%d, v%d, v%d" % (vT + 2, vT + 2, vT + 1))
A("v_mul_f32 v%d, v%d, v%d" % (vT + 3, vT, vT + 2))
for i in range(4):
    A("v_pk_fma_f32 %s, %s, %s, %s op_sel:[0,0,1] op_sel_hi:[1,0,1] neg_lo:[0,0,1] neg_hi:[0,0,1]" % (vr(AD + 2 * i, 2), vr(X + 2 * i, 2), vr(vT + 2, 2), vr(vT + 2, 2)))
for i in range(4):
    A("v_cvt_pk_bf16_f32 v%d, v%d, v%d" % (HB + i, AD + 2 * i, AD + 2 * i + 1))
for i in range(4):
    A("v_pk_lshlrev_b16 v%d, 1, v%d op_sel_hi:[0,1]" % (RT + i, HB + i))
    A("v_pk_lshrrev_b16 v%d, 15, v%d op_sel_hi:[0,1]" % (AD + i, HB + i))
for i in range(4):
    A("v_or_b32 v%d, v%d, v%d" % (RT + i, RT + i, AD + i))
for i in range(4):
    A("v_pk_sub_u16 v%d, v%d, v%d" % (RT + i, RT + i, vT + 4))
for i in range(4):
    A("v_lshlrev_b32_sdwa v%d, 2, v%d dst_sel:DWORD dst_unused:UNUSED_PAD src0_sel:DWORD src1_sel:WORD_0" % (AD + 2 * i, RT + i))
    A("v_lshlrev_b32_sdwa v%d, 2, v%d dst_sel:DWORD dst_unused:UNUSED_PAD src0_sel:DWORD src1_sel:WORD_1" % (AD + 2 * i + 1, RT + i))
    A("ds_read_b32 v%d, v%d offset:%d" % (Y + 2 * i, AD + 2 * i, L_TAB))
    A("ds_read_b32 v%d, v%d offset:%d" % (Y + 2 * i + 1, AD + 2 * i + 1, L_TAB))
A("v_max3_u32 v%d, v%d, v%d, v%d" % (vT, AD, AD + 1, AD + 2))
A("v_max3_u32 v%d, v%d, v%d, v%d" % (vT + 1, AD + 3, AD + 4, AD + 5))
A("v_max3_u32 v%d, v%d, v%d, v%d" % (vT, vT, AD + 6, AD + 7))
A("v_max_u32 v%d, v%d, v%d" % (vT, vT, vT + 1))
A("v_cmp_le_u32 %s, s%d, v%d" % (sr(sH, 2), sT5, vT))
A("s_waitcnt lgkmcnt(5)")
A("v_max3_u32 v%d, v%d, v%d, v%d" % (vT, Y, Y + 1, Y + 2))
A("s_waitcnt lgkmcnt(2)")
A("v_max3_u32 v%d, v%d, v%d, v%d" % (vT + 1, Y + 3, Y + 4, Y + 5))
A("s_waitcnt lgkmcnt(0)")
A("v_max3_u32 v%d, v%d, v%d, v%d" % (vT, vT, Y + 6, Y + 7))
A("v_max_u32 v%d, v%d, v%d" % (vT, vT, vT + 1))
A("v_cmp_eq_u32 vcc, -1, v%d" % vT)
LB("Lslowdone")
for i in range(4):
    A("v_pk_add_f32 %s, %s, %s" % (vr(vT + 2 + 2 * i, 2), vr(X + 2 * i, 2), vr(Y + 2 * i, 2)))
A("s_or_b64 vcc, vcc, %s" % sr(sH, 2))
A("s_cbranch_vccnz Lslow")
A("s_cmp_lg_u32 s%d, 0" % sLAY)
for i in range(4):
    A("v_cvt_pk_bf16_f32 v%d, v%d, v%d" % (XR + i, vT + 2 + 2 * i, vT + 3 + 2 * i))
STAMP(11)
A("s_cbranch_scc1 Lout")
A("s_mov_b32 s%d, 1" % sLAY)
if TOT or MEAS: A("s_memrealtime s[100:101]")
if DIAG: A("v_mov_b32 v28, v30")
A("s_branch Llnq")

L.append(".p2align 6"); LB("Lst_fin"); A("s_setpc_b64 %s" % sr(sRET, 2)); stubs.append("fin")
LB("Lfinal")
A("s_cmp_ge_u32 s2, 4")
A("s_cbranch_scc1 Lepoch")
C("workgroup b: reduce the 32 head partials of row b, add x2, mixer, store")
soff(sT1, [(2, 15), (sW, 13)], PB + P_L)
A("s_add_u32 s%d, s%d, 4096" % (sT2, sT1))
A("s_mul_i32 s%d, s2, %d" % (sT0, XS))
A("s_lshl_b32 s%d, s%d, 8" % (sT3, sW))
A("s_add_u32 s%d, s%d, s%d" % (sT0, sT0, sT3))
A("s_add_u32 s%d, s%d, %d" % (sT0, sT0, L_X2))
A("v_add_u32 v%d, s%d, v%d" % (vT + 4, sT0, vX1S))
A("s_add_u32 s%d, s%d, %d" % (sT3, sT3, L_XN))
A("v_add_u32 v%d, s%d, v%d" % (vT + 5, sT3, vX1S))
A("ds_read_b64 %s, v%d" % (vr(PM, 2), vT + 4))
A("ds_read_b64 %s, v%d offset:128" % (vr(PM + 2, 2), vT + 4))
A("s_mov_b32 s%d, 0x00ff00ff" % sT4)
A("s_mov_b32 s%d, 0" % sT5)
if XENT:
    A("s_cmp_lg_u32 s%d, 3" % sW)
    A("s_cbranch_scc1 Lfn3")
    A("ds_read_b32 v%d, v%d offset:48" % (vT, vFL))
    A("s_waitcnt lgkmcnt(0)")
    A("v_readfirstlane_b32 s%d, v%d" % (sT0, vT))
    A("s_cmp_eq_u32 s%d, %d" % (sT0, 4 if HG else 0))
    A("s_cbranch_scc1 Lfn3")
    A("s_mov_b32 s%d, %s" % (sCNT, hx(TB)))
    for i in range(XENT * 4 // 1024):
        A("buffer_load_dwordx4 %s, v%d, %s, s%d offen offset:%d sc1" % (vr(W + 4 * i, 4), vL16, sr(sWS, 4), sCNT, 1024 * i))
    A("v_add_u32 v%d, %d, v%d" % (vT + 6, L_TAB, vL16))
    A("s_waitcnt vmcnt(0)")
    for i in range(XENT * 4 // 1024):
        A("ds_write_b128 v%d, %s offset:%d" % (vT + 6, vr(W + 4 * i, 4), 1024 * i))
    LB("Lfn3")
A("s_waitcnt lgkmcnt(0)")
if GW: A("s_waitcnt vmcnt(0)")
for i in range(4):
    A("v_lshlrev_b32 v%d, 16, v%d" % (PM + 4 + 2 * i, PM + i))
    A("v_and_b32 v%d, 0xffff0000, v%d" % (PM + 5 + 2 * i, PM + i))
if "bias" in OPT:
    for i in range(8): A("v_add_f32 v%d, %s, v%d" % (PM + 4 + i, hx(f2u(float(OPT["bias"]))), PM + 4 + i))
FS = [KF, VF]
def ifin(k):
    for i in range(8):
        A("buffer_load_dwordx4 %s, v%d, %s, s%d offen offset:%d sc1" % (vr(FS[k] + 4 * i, 4), vL16, sr(sWS, 4), sT1 if i < 4 else sT2, 1024 * (i & 3)))
def fs(k):
    o = []
    for i in range(4):
        o.append(mf(W + 32, SEL, FS[k] + 4 * i, None if i == 0 else W + 32))
        o.append(mf(W + 36, SEL, FS[k] + 16 + 4 * i, None if i == 0 else W + 36))
    return o
ppoll(ifin, lambda k: range(FS[k], FS[k] + 32), 8, vT, fs, pre=GPRE, gap=GGAP, tag=2,
      per_load=lambda k, i: [mf(W + 32 + 4 * (i >> 2), SEL, FS[k] + 4 * i, None if (i & 3) == 0 else W + 32 + 4 * (i >> 2))])
STAMP(9)
NOP(2)
for i in range(8):
    A("v_add_f32_dpp v%d, v%d, v%d row_ror:8 row_mask:0xf bank_mask:0xf" % (W + 32 + i, W + 32 + i, W + 32 + i))
A("s_mov_b64 exec, %s" % sr(sT4, 2))
for i in range(4):
    A("v_pk_add_f32 %s, %s, %s" % (vr(W + 32 + 2 * i, 2), vr(W + 32 + 2 * i, 2), vr(PM + 4 + 2 * i, 2)))
for i in range(4):
    A("v_cvt_pk_bf16_f32 v%d, v%d, v%d" % (W + 32 + i, W + 32 + 2 * i, W + 33 + 2 * i))
A("ds_write_b64 v%d, %s" % (vT + 5, vr(W + 32, 2)))
A("ds_write_b64 v%d, %s offset:128" % (vT + 5, vr(W + 34, 2)))
A("s_mov_b64 exec, -1")
A("s_cmp_lg_u32 s%d, 0" % sW)
A("s_waitcnt lgkmcnt(0)")
A("s_barrier")
A("s_cbranch_scc1 Lfin_exit")
A("ds_read_b128 %s, v%d" % (vr(XR, 4), vXNW))
A("s_waitcnt lgkmcnt(0)")
STAMP(10)
A("s_branch Lmix")
L.append(".p2align 6"); LB("Lst_out"); A("s_setpc_b64 %s" % sr(sRET, 2)); stubs.append("out")
LB("Lout")
A("s_lshl_b32 s%d, s2, 10" % sT0)
A("buffer_store_dwordx4 %s, v%d, %s, s%d offen" % (vr(XR, 4), vL16, sr(sOUT, 4), sT0))
if DBL:
    A("s_cmp_lg_u32 s2, 0")
    A("s_cbranch_scc1 Lfin_exit")
if DBL:
    A("s_waitcnt vmcnt(0)")
    A("s_memrealtime s[10:11]")
    A("s_waitcnt lgkmcnt(0)")
    A("s_sub_u32 s12, s10, s98")
    if "pad" in OPT:
        A("s_mov_b32 s10, s98"); A("s_mov_b32 s12, %d" % (100 * int(OPT["pad"])))
    LB("Ldbl")
    A("s_memrealtime s[14:15]")
    A("s_waitcnt lgkmcnt(0)")
    A("s_sub_u32 s13, s14, s10")
    A("s_cmp_lt_u32 s13, s12")
    A("s_cbranch_scc1 Ldbl")
LB("Lfin_exit")
if MEAS:
    src = {"mix": "s100", "entry": "s98"}.get(OPT["q"], "s98" if OPT["q"][0] == "h" else "s97")
    A("s_waitcnt vmcnt(0) lgkmcnt(0)")
    if OPT["q"] == "end":
        A("s_memrealtime s[42:43]"); A("s_waitcnt lgkmcnt(0)"); src = "s42"
    LB("Lms0")
    A("s_memrealtime s[14:15]"); A("s_waitcnt lgkmcnt(0)"); A("s_sub_u32 s13, s14, s98"); A("s_cmp_lt_u32 s13, 1600"); A("s_cbranch_scc1 Lms0")
    A("s_mov_b64 exec, 1")
    A("v_mov_b32 v16, %s" % src)
    A("s_not_b32 s10, s98")
    A("v_mov_b32 v17, s10")
    A("global_atomic_umax v[30:31], v16, off sc1")
    A("global_atomic_umax v[30:31], v17, off offset:128 sc1")
    A("s_or_b32 s10, s2, s%d" % sW)
    A("s_cmp_lg_u32 s10, 0")
    A("s_cbranch_scc1 Lend")
    LB("Lms1")
    A("s_memrealtime s[14:15]"); A("s_waitcnt lgkmcnt(0)"); A("s_sub_u32 s13, s14, s98"); A("s_cmp_lt_u32 s13, 4000"); A("s_cbranch_scc1 Lms1")
    A("global_load_dword v16, v[30:31], off sc1")
    A("global_load_dword v17, v[30:31], off offset:128 sc1")
    A("s_waitcnt vmcnt(0)")
    A("v_readfirstlane_b32 s10, v16"); A("v_readfirstlane_b32 s11, v17")
    A("s_not_b32 s11, s11"); A("s_sub_u32 s10, s10, s11"); A("s_lshl_b32 s10, s10, 2"); A("s_add_u32 s12, s10, 4200")
    A("s_min_u32 s12, s12, 20000")
    LB("Lms2")
    A("s_memrealtime s[14:15]"); A("s_waitcnt lgkmcnt(0)"); A("s_sub_u32 s13, s14, s98"); A("s_cmp_lt_u32 s13, s12"); A("s_cbranch_scc1 Lms2")
if TOT:
    A("s_waitcnt vmcnt(0)")
    A("s_memrealtime s[10:11]")
    A("s_waitcnt lgkmcnt(0)")
    A("v_mov_b32 v16, s98")
    A("v_mov_b32 v17, s10")
    A("v_mov_b32 v18, s100")
    A("v_mov_b32 v19, s97")
    soff(sT2, [(2, 6), (sW, 4)], STB)
    A("v_mov_b32 v20, 0")
    A("s_mov_b64 exec, 1")
    A("buffer_store_dwordx4 v[16:19], v20, %s, s%d offen" % (sr(sWS, 4), sT2))
if DIAG:
    A("s_waitcnt vmcnt(0)")
    STAMP(12)
    if DIAG == 2:
        A("s_or_b32 s%d, s2, s%d" % (sT0, sW))
        A("s_cmp_lg_u32 s%d, 0" % sT0)
        A("s_cbranch_scc1 Lend")
        A("v_readlane_b32 s%d, v28, 0" % sT2)
        for k, (r, i) in enumerate([(31, 10), (31, 12), (28, 1), (28, 2), (28, 6), (28, 5), (28, 7), (28, 8), (28, 9), (28, 10), (28, 11), (30, 3), (30, 5), (30, 8), (30, 9), (30, 12)]):
            A("v_readlane_b32 s%d, v%d, %d" % (sT3, r, i))
            A("s_sub_u32 s%d, s%d, s%d" % (sT3, sT3, sT2))
            A("s_nop 0")
            A("v_writelane_b32 v17, s%d, %d" % (sT3, k))
        A("v_lshlrev_b32 v16, 2, v%d" % vLANE)
        A("s_mov_b64 exec, 0xffff")
        A("global_store_dword v16, v17, s[100:101]")
        A("s_endpgm")
    soff(sT1, [(2, 10), (sW, 7)], STB)
    A("v_lshlrev_b32 v16, 2, v%d" % vLANE)
    A("s_mov_b64 exec, 0xffff")
    A("buffer_store_dword v28, v16, %s, s%d offen" % (sr(sWS, 4), sT1))
    A("buffer_store_dword v30, v16, %s, s%d offen offset:64" % (sr(sWS, 4), sT1))
    A("s_add_u32 s%d, s%d, 0x40000" % (sT1, sT1))
    A("buffer_store_dword v31, v16, %s, s%d offen" % (sr(sWS, 4), sT1))
LB("Lend")
A("s_endpgm")
LB("Lepoch")
if int(OPT.get("wb", 0)):
    A("s_cmp_lg_u32 s%d, 0" % sW)
    A("s_cbranch_scc1 Lnowb")
    A("s_waitcnt vmcnt(0)")
    A("buffer_wbl2 sc1")
    LB("Lnowb")
C("every workgroup has used the old launch tag long ago: workgroup 4 advances it")
A("s_lshl_b32 s%d, s%d, 8" % (sT0, sW))
A("s_add_u32 s%d, s%d, s2" % (sT0, sT0))
A("s_cmp_lg_u32 s%d, 4" % sT0)
A("s_cbranch_scc1 Lfin_exit")
A("v_mov_b32 v16, s%d" % sTG1)
A("v_mov_b32 v17, %s" % hx(EPO))
A("s_mov_b64 exec, 1")
A("buffer_store_dword v16, v17, %s, 0 offen sc1" % sr(sWS, 4))
A("s_mov_b64 exec, -1")
A("s_branch Lfin_exit")

L.append(".p2align 6"); LB("Lst_tab"); A("s_setpc_b64 %s" % sr(sRET, 2)); stubs.append("tab")
LB("Ltab")
C("waves 2,3: gather the main part of the g(h) table into LDS ; wave 1: the lowest octaves, best effort")
NTL = NOCT * 1024 // 2 // 1024
A("s_cmp_eq_u32 s%d, 1" % sW)
A("s_cbranch_scc1 Lext")
A("s_sub_u32 s%d, s%d, 2" % (sT1, sW))
A("s_mul_i32 s%d, s%d, %d" % (sT1, sT1, NTL * 1024))
A("s_add_u32 s%d, s%d, %d" % (sT1, sT1, XENT * 4))
A("v_add_u32 v%d, s%d, v%d" % (vT + 4, sT1, vL16))
A("v_add_u32 v%d, %d, v%d" % (vT + 4, L_TAB, vT + 4))
A("s_add_u32 s%d, s%d, %s" % (sT1, sT1, hx(TB)))
A("s_add_u32 s%d, s%d, 4096" % (sT2, sT1))
if TGW: A("s_waitcnt vmcnt(0)"); A("s_nop 15")
def it():
    for i in range(NTL):
        A("buffer_load_dwordx4 %s, v%d, %s, s%d offen offset:%d sc1" % (vr(W + 4 * i, 4), vL16, sr(sWS, 4), sT1 if i < 4 else sT2, 1024 * (i & 3)))
poll(it, range(W, W + 4 * NTL), vT, back="s_sleep %d" % int(OPT.get("tsl", 16)))
for i in range(NTL):
    A("ds_write_b128 v%d, %s offset:%d" % (vT + 4, vr(W + 4 * i, 4), 1024 * i))
A("s_waitcnt lgkmcnt(0)")
lds_arrive(20, vT + 4)
STAMP(9)
MP("tg")
A("s_branch Ltabdone")
def ext_load(d):
    for i in range(XENT * 4 // 1024):
        A("buffer_load_dwordx4 %s, v%d, %s, s%d offen offset:%d sc1" % (vr(d + 4 * i, 4), vL16, sr(sWS, 4), sT4, 1024 * i))
def ext_write(d):
    for i in range(XENT * 4 // 1024):
        A("ds_write_b128 v%d, %s offset:%d" % (vT + 4, vr(d + 4 * i, 4), 1024 * i))
LB("Lext")
if XENT:
    A("s_mov_b32 s%d, %s" % (sT4, hx(TB)))
    A("v_add_u32 v%d, %d, v%d" % (vT + 4, L_TAB, vL16))
    for i in range(4): A("v_mov_b32 v%d, -1" % (W + i))
    for i in range(XENT * 4 // 1024):
        A("ds_write_b128 v%d, %s offset:%d" % (vT + 4, vr(W, 4), 1024 * i))
    A("ds_write_b32 v%d, v%d offset:48" % (vFL, W))
    A("s_waitcnt lgkmcnt(0)")
lds_arrive(20, vT + 5)
if XENT:
    C("one look at the lowest octaves, skipped when x1 is already there")
    soff(sT3, [(sW, 10), (sJ, 17)], X1_OFF)
    A("s_waitcnt vmcnt(0)")
    A("buffer_load_dwordx4 %s, v%d, %s, s%d offen sc1" % (vr(XR, 4), vL16, sr(sWS, 4), sT3))
    A("s_waitcnt vmcnt(0)")
    for x in maxtree(range(XR, XR + 4), vT): A(x)
    A("v_cmp_eq_u32 vcc, -1, v%d" % vT)
    A("s_cbranch_vccz Lexx")
    A("s_mov_b32 s%d, %d" % (sCNT, int(OPT.get("xlk", 2)) - 1))
    LB("Lexl")
    A("buffer_load_dwordx4 %s, v%d, %s, s%d offen sc1" % (vr(XR, 4), vL16, sr(sWS, 4), sT3))
    if "l" in OPT.get("xs", ""): A("s_branch Ltabdone")
    ext_load(W + 32)
    A("s_waitcnt vmcnt(4)")
    for x in maxtree(range(XR, XR + 4), vT): A(x)
    A("v_cmp_eq_u32 vcc, -1, v%d" % vT)
    A("s_cbranch_vccz Lexx")
    A("s_waitcnt vmcnt(0)")
    ext_write(W + 32)
    for x in maxtree(range(W + 32, W + 48), vT): A(x)
    A("v_cmp_eq_u32 vcc, -1, v%d" % vT)
    A("s_cbranch_vccz Lexc")
    A("s_sub_u32 s%d, s%d, 1" % (sCNT, sCNT))
    A("s_cbranch_scc0 Lexl")
    A("s_branch Ltabdone")
    LB("Lexc")
    A("v_mov_b32 v%d, 0" % vT)
    A("ds_write_b32 v%d, v%d offset:48" % (vFL, vT))
    A("s_branch Ltabdone")
    LB("Lexx")
    wqf_reads()
    A("s_branch Ltw")
else:
    A("s_branch Ltabdone")
LB("Ltw")
lds_spin(20, 4 if HG else 3, vT + 2)
A("s_branch Ltwd")

for b in ool: L += b
ool = []
LB("Lslow")
C("rare: some h lies outside the table -> evaluate g(h) directly for those lanes")
RW1 = [W + 32 + i for i in range(14)]
RB1 = [PM + i for i in range(14)]
RW2 = [16 + i for i in range(10)] + [W + 46, W + 47, PM + 14, PM + 15]
A("v_lshlrev_b32 v26, 3, v%d" % vLANE)
A("s_load_dword s%d, %s, 0" % (sB2, sr(sB2P, 2)))
for (d4, d2, s) in [([W + 32, W + 36, W + 40], W + 44, sW1), ([PM, PM + 4, PM + 8], PM + 12, sB1)]:
    for k in range(3):
        A("buffer_load_dwordx4 %s, v%d, %s, 0 offen offset:%d" % (vr(d4[k], 4), vL16, sr(s, 4), 1024 * k))
    A("buffer_load_dwordx2 %s, v26, %s, 0 offen offset:3072" % (vr(d2, 2), sr(s, 4)))
A("buffer_load_dwordx4 v[16:19], v%d, %s, 0 offen" % (vL16, sr(sW2, 4)))
A("buffer_load_dwordx4 v[20:23], v%d, %s, 0 offen offset:1024" % (vL16, sr(sW2, 4)))
A("buffer_load_dwordx2 v[24:25], v%d, %s, 0 offen offset:2048" % (vL16, sr(sW2, 4)))
A("buffer_load_dwordx2 %s, v%d, %s, 0 offen offset:2056" % (vr(W + 46, 2), vL16, sr(sW2, 4)))
A("buffer_load_dwordx2 %s, v26, %s, 0 offen offset:3072" % (vr(PM + 14, 2), sr(sW2, 4)))
A("s_waitcnt vmcnt(0) lgkmcnt(0)")
A("s_lshl_b32 s%d, s%d, 16" % (sB2, sB2))
A("s_mov_b32 s%d, 1" % sT4)
for e in range(8):
    A("v_cmp_le_u32 vcc, %d, v%d" % (NENT * 4, AD + e))
    A("v_cmp_eq_u32 %s, -1, v%d" % (sr(sH2, 2), Y + e))
    A("s_or_b64 %s, %s, vcc" % (sr(sH2, 2), sr(sH2, 2)))
    if e & 1: A("v_and_b32 v%d, 0xffff0000, v%d" % (RT + 3, HB + (e >> 1)))
    else: A("v_lshlrev_b32 v%d, 16, v%d" % (RT + 3, HB + (e >> 1)))
    LB("Lse%d" % e)
    A("s_cmp_eq_u64 %s, 0" % sr(sH2, 2))
    A("s_cbranch_scc1 Lsf%d" % e)
    A("s_ff1_i32_b64 s%d, %s" % (sT0, sr(sH2, 2)))
    A("s_nop 0")
    A("v_readlane_b32 s%d, v%d, s%d" % (sH, RT + 3, sT0))
    A("s_cmp_eq_u32 s%d, s%d" % (sH, sT4))
    A("s_cbranch_scc1 Lsg%d" % e)
    A("s_mov_b32 s%d, s%d" % (sT4, sH))
    A("s_call_b64 %s, Lgev" % sr(sRET, 2))
    LB("Lsg%d" % e)
    A("s_nop 1")
    A("v_cmp_eq_u32 vcc, s%d, v%d" % (sH, RT + 3))
    A("v_mov_b32 v%d, s%d" % (RES + 3, sY))
    A("s_andn2_b64 %s, %s, vcc" % (sr(sH2, 2), sr(sH2, 2)))
    A("v_cndmask_b32 v%d, v%d, v%d, vcc" % (Y + e, Y + e, RES + 3))
    A("s_branch Lse%d" % e)
    LB("Lsf%d" % e)
for i in range(16): A("v_mov_b32 v%d, 0" % (PM + i))
A("s_mov_b64 vcc, 0")
A("s_mov_b64 %s, 0" % sr(sH, 2))
A("s_branch Lslowdone")
LB("Lgev")
a, u, t1, z = RES, RES + 1, RES + 2, RT
A("v_mov_b32 v%d, 0" % a)
A("v_mov_b32 v%d, %s" % (RT + 1, hx(f2u(K0))))
A("v_mov_b32 v%d, %s" % (RT + 2, hx(f2u(K1))))
for p in range(14):
    for hf in range(2):
        def un(d, s):
            if hf == 0: A("v_lshlrev_b32 v%d, 16, v%d" % (d, s))
            else: A("v_and_b32 v%d, 0xffff0000, v%d" % (d, s))
        un(u, RW1[p]); un(t1, RB1[p]); un(z, RW2[p])
        A("v_fma_f32 v%d, v%d, s%d, v%d" % (u, u, sH, t1))
        A("v_mul_f32 v%d, v%d, v%d" % (t1, u, u))
        A("v_fma_f32 v%d, v%d, v%d, v%d" % (t1, t1, RT + 2, RT + 1))
        A("v_mul_f32 v%d, v%d, v%d" % (t1, t1, u))
        A("v_exp_f32 v%d, v%d" % (t1, t1))
        A("v_mul_f32 v%d, v%d, v%d" % (z, z, u))
        A("v_add_f32 v%d, 1.0, v%d" % (t1, t1))
        A("v_rcp_f32 v%d, v%d" % (t1, t1))
        A("s_nop 0")
        A("v_fmac_f32 v%d, v%d, v%d" % (a, z, t1))
A("v_mov_b32 v%d, v%d" % (u, a))
A("s_nop 1")
wave_sum2(a, u, sY, sT1)
A("s_nop 1")
A("v_mov_b32 v%d, s%d" % (a, sY))
A("v_cvt_pk_bf16_f32 v%d, v%d, v%d" % (a, a, a))
A("v_and_b32 v%d, 0xffff0000, v%d" % (a, a))
A("v_add_f32 v%d, s%d, v%d" % (a, sB2, a))
A("v_cvt_pk_bf16_f32 v%d, v%d, v%d" % (a, a, a))
A("v_and_b32 v%d, 0xffff0000, v%d" % (a, a))
A("s_nop 0")
A("v_readfirstlane_b32 s%d, v%d" % (sY, a))
A("s_nop 3")
A("s_setpc_b64 %s" % sr(sRET, 2))

for b in ool: L += b
A("s_endpgm")
L.append(".p2align 8")
L.append(".fill %d, 4, 0xBF800000" % (64 if DIAG else 512))
L.append('''.section .rodata,"a"
.p2align 6
.amdhsa_kernel %s_kernel
  .amdhsa_next_free_vgpr 256
  .amdhsa_next_free_sgpr 102
  .amdhsa_accum_offset 256
  .amdhsa_group_segment_fixed_size 0
  .amdhsa_kernarg_size 104
  .amdhsa_user_sgpr_count 2
  .amdhsa_user_sgpr_kernarg_segment_ptr 1
  .amdhsa_system_sgpr_workgroup_id_x 1
.end_amdhsa_kernel''' % NAME)
open(OUTF, "w").write("\n".join(x for x in L if x is not None) + "\n")
print("wrote", OUTF, "lines", len(L), "LDS", LDS_SZ)
```

```python
import sys, struct, math

NAME = "interleave_layers__sliding_block_cached__mixer_token_mlp__decode"
OUTF = sys.argv[1] if len(sys.argv) > 1 else "cdna_kernels/%s.s" % NAME
DIAG = int(sys.argv[2]) if len(sys.argv) > 2 else 0
DBL = 0
if DIAG == 3: DIAG = 0; DBL = 1
MEAS = 0
if DIAG == 5: DIAG = 0; MEAS = 1
TOT = 0
if DIAG == 4: DIAG = 0; TOT = 1
OPT = dict(a.split("=") for a in sys.argv[3:])
DEPTH = int(OPT.get("depth", 8))
D0 = int(OPT.get("d0", 3))
D1 = int(OPT.get("d1", 4))
DC = int(OPT.get("dc", 3))
TAILI = int(OPT.get("taili", 11))
TAILD = int(OPT.get("taild", 8))
QV = int(OPT.get("qv", 3))
PRET = int(OPT.get("pret", 1))
GW = int(OPT.get("gw", 1))
GPRE = int(OPT.get("gpre", 0))
GGAP = int(OPT.get("ggap", -1))
WARM = int(OPT.get("warm", 1))
QPRE = int(OPT.get("qpre", -1)); QGAP = int(OPT.get("qgap", -1))
OPRE = int(OPT.get("opre", -1)); OGAP = int(OPT.get("ogap", -1))
XPRE = int(OPT.get("xpre", -1)); XGAP = int(OPT.get("xgap", -1))
FINE = OPT.get("fine", "")
QS = int(OPT.get("qs", 0))
ADP = int(OPT.get("adp", 0))
ROT = int(OPT.get("rot", 1)); VROT = int(OPT.get("vrot", 0))
WROT = int(OPT.get("wrot", 1))
WOP = int(OPT.get("wop", 0))
ECO = int(OPT.get("eco", 0))
XDL = int(OPT.get("xdl", 256))
QBD = int(OPT.get("qbd", 0))
VLATE = int(OPT.get("vlate", 1))
QV2 = int(OPT.get("qv2", 0))
PROG = int(OPT.get("prog", 1))
SLC = int(OPT.get("slc", 0)); D2 = int(OPT.get("d2", 8))
HFIRST = int(OPT.get("hfirst", 0))
EFL = int(OPT.get("efl", 1))
TPF = int(OPT.get("tpf", 0)); TPF_OFF = {1: 16, 2: 12, 3: 60}.get(TPF, 16)
TGW = int(OPT.get("tgw", 0))
TB2 = int(OPT.get("tb2", 1)); HG = int(OPT.get("hg", 1)); HG_OFF = {1: 60, 2: 16}.get(HG, 60)
QT = int(OPT.get("qt", 0))
DRY = int(OPT.get("dry", 0))
HP = int(OPT.get("hp", 0))
NOCT = int(OPT.get("noct", 16))
QPOS = int(OPT.get("qpos", 1))
QPOS2 = int(OPT.get("qpos2", 7))

def f2u(x): return struct.unpack("<I", struct.pack("<f", x))[0]
def hx(x): return "0x%08x" % (x & 0xffffffff)

L = []
def A(s): L.append("    " + s)
def LB(s): L.append(s + ":")
def C(s): L.append("    ; " + s)
def vr(a, n): return "v[%d:%d]" % (a, a + n - 1)
def sr(a, n): return "s[%d:%d]" % (a, a + n - 1)
def NOP(n):
    while n > 0:
        k = min(n, 16); A("s_nop %d" % (k - 1)); n -= k

XOCT = int(OPT.get('xoct', 4))
ELO = int(OPT.get('elo', 130 - NOCT - XOCT))
LO2 = (ELO << 7) * 2
NENT = (NOCT + XOCT) * 256
XENT = XOCT * 256
assert XENT in (0, 1024)
EPW = NOCT * 256 // 256 // 4 // 2
GRS = 0x20000
O_OFF = [0x0000, 0xC400]; LSE_OFF = [0x8000, 0x14400]; Q1_OFF = 0x8400; X1_OFF = 0x14600
CLRA_PER = 1040
CLRB_OFF = 0x8400; CLRB_PER = 1680
Q0_OFF = 0x18000
EPO = 0x17f00
PB = 0x100000; P_L = 0x20000
TB = 0x140000; FB = 0x148000
QB_DELTA = 0x200000
STB = 0x300000
WS_SZ = 0x400000 if "dump" not in OPT else 0x2000000
L_WQ = 12288; L_K = L_WQ + 16384; L_V = L_K + 32768
L_WO = L_K + 16384
L_TAB = L_V
L_XN = L_V + 32768; XS = 1056
L_X2 = L_XN + 4 * XS
L_FLG = L_X2 + 4 * XS
L_RB = L_K; RBS = 2048 + 64; L_ML = L_K + 4 * RBS
L_QF = L_X2
LDS_SZ = int(OPT.get("lds", L_FLG + 64))
SPIN = 0x40000
K0 = -2.0 * math.sqrt(2.0 / math.pi) * math.log2(math.e)
K1 = K0 * 0.044715
EPS = hx(f2u(1e-5))

sTG1, sTG2 = 0, 1
sW, sJ, sA, sC, sGR, sLAY, sFAST = 3, 4, 5, 6, 7, 8, 9
sT0, sT1, sT2, sT3, sT4, sT5 = 10, 11, 12, 13, 14, 15
sCNT = 16
sQL, sQS, sOL, sOS, sLL, sLS, sPS = 17, 18, 19, 20, 21, 22, 23
sSC, sIT = 24, 25
sSUM, sSQ = 26, 27
sH, sH2, sRET, sMSK = 28, 30, 32, 34
sB2, sY, sXCC, sE = 36, 37, 38, 39
sB2P = 40
sK, sV, sWQ, sWO, sWS, sX, sOUT, sW1, sB1, sW2 = 44, 48, 52, 56, 60, 64, 68, 72, 76, 80
sKO, sKL, sVO, sVL = 84, 85, 86, 87
sPM = 88
sHC, sHT = 84, 85

def STAMP(i):
    if DIAG:
        A("s_memrealtime s[42:43]"); A("s_waitcnt lgkmcnt(0)")
        A("v_writelane_b32 v30, s42, %d" % i)

def MP(name):
    if MEAS and OPT["q"] == name:
        A("s_memrealtime s[42:43]"); A("s_waitcnt lgkmcnt(0)"); A("s_mov_b32 s97, s42")

def CST(i):
    if DIAG == 1 and FINE:
        A("s_memtime s[42:43]"); A("s_waitcnt lgkmcnt(0)")
        A("v_writelane_b32 v31, s42, %d" % i)

vLANE = 1
vL16, vQST, vOST, vOLD, vPST, vX1S, vXNW, vXNR, vRBW, vRBR, vMLW, vMLR, vLSE, vZ = range(2, 16)
vT = 16
vWT, vFL = 28, 29
vLS2 = 27
KF, VF, WQF, WOF, SEL, ONES = 32, 64, 96, 112, 176, 180
W = 184
PM = 232
XR = 248
RES = 252

def srd(s, nbytes):
    A("s_mov_b32 s%d, %s" % (s + 2, hx(nbytes))); A("s_mov_b32 s%d, 0x00020000" % (s + 3))

def soff(dst, terms, const):
    first = True
    for (src, sh) in terms:
        if first: A("s_lshl_b32 s%d, s%d, %d" % (dst, src, sh)); first = False
        else:
            A("s_lshl_b32 s%d, s%d, %d" % (sT0, src, sh)); A("s_add_u32 s%d, s%d, s%d" % (dst, dst, sT0))
    if const: A("s_add_u32 s%d, s%d, %s" % (dst, dst, hx(const)))

def wave_sum2(a, b, sa, sb):
    for ctl in ["row_ror:8", "row_ror:4", "row_ror:2", "row_ror:1"]:
        A("v_add_f32_dpp v%d, v%d, v%d %s row_mask:0xf bank_mask:0xf" % (a, a, a, ctl))
        A("v_add_f32_dpp v%d, v%d, v%d %s row_mask:0xf bank_mask:0xf" % (b, b, b, ctl))
        A("s_nop 0")
    for ctl in ["row_bcast:15 row_mask:0xa", "row_bcast:31 row_mask:0xc"]:
        A("v_add_f32_dpp v%d, v%d, v%d %s bank_mask:0xf" % (a, a, a, ctl))
        A("v_add_f32_dpp v%d, v%d, v%d %s bank_mask:0xf" % (b, b, b, ctl))
        A("s_nop 0")
    A("v_readlane_b32 s%d, v%d, 63" % (sa, a))
    A("v_readlane_b32 s%d, v%d, 63" % (sb, b))

def row_stats(x, t, unp):
    A("v_dot2_f32_bf16 v%d, v%d, v%d, 0" % (t, x, ONES))
    A("v_dot2_f32_bf16 v%d, v%d, v%d, 0" % (t + 1, x, x))
    for i in range(1, 4):
        A("v_dot2_f32_bf16 v%d, v%d, v%d, v%d" % (t, x + i, ONES, t))
        A("v_dot2_f32_bf16 v%d, v%d, v%d, v%d" % (t + 1, x + i, x + i, t + 1))
    un = []
    for i in range(4):
        un.append("v_lshlrev_b32 v%d, 16, v%d" % (unp + 2 * i, x + i))
        un.append("v_and_b32 v%d, 0xffff0000, v%d" % (unp + 2 * i + 1, x + i))
    for k in range(3): A(un.pop(0))
    a, b = t, t + 1
    for ctl in ["row_ror:8 row_mask:0xf", "row_ror:4 row_mask:0xf", "row_ror:2 row_mask:0xf", "row_ror:1 row_mask:0xf", "row_bcast:15 row_mask:0xa", "row_bcast:31 row_mask:0xc"]:
        A("v_add_f32_dpp v%d, v%d, v%d %s bank_mask:0xf" % (a, a, a, ctl))
        A("v_add_f32_dpp v%d, v%d, v%d %s bank_mask:0xf" % (b, b, b, ctl))
        A(un.pop(0) if un else "s_nop 0")
    A("v_readlane_b32 s%d, v%d, 63" % (sSUM, a))
    A("v_readlane_b32 s%d, v%d, 63" % (sSQ, b))
    A("s_nop 0")
    A("v_mul_f32 v%d, s%d, v%d" % (t, sSUM, vZ))
    A("v_mul_f32 v%d, s%d, v%d" % (t + 1, sSQ, vZ))
    A("v_fma_f32 v%d, -v%d, v%d, v%d" % (t + 1, t, t, t + 1))
    A("v_max_f32 v%d, 0, v%d" % (t + 1, t + 1))

ool = []
uid = [0]
def maxtree(regs, tmp):
    r = list(regs); out = []
    out.append("v_max3_u32 v%d, v%d, v%d, v%d" % (tmp, r[0], r[1], r[2])); r = r[3:]
    if len(r) >= 5:
        out.append("v_max3_u32 v%d, v%d, v%d, v%d" % (tmp + 1, r[0], r[1], r[2])); r = r[3:]
        d = 0
        while len(r) >= 2:
            out.append("v_max3_u32 v%d, v%d, v%d, v%d" % (tmp + d, tmp + d, r[0], r[1])); r = r[2:]; d ^= 1
        if r: out.append("v_max3_u32 v%d, v%d, v%d, v%d" % (tmp, tmp, tmp + 1, r[0]))
        else: out.append("v_max_u32 v%d, v%d, v%d" % (tmp, tmp, tmp + 1))
    else:
        while len(r) >= 2:
            out.append("v_max3_u32 v%d, v%d, v%d, v%d" % (tmp, tmp, r[0], r[1])); r = r[2:]
        if r: out.append("v_max_u32 v%d, v%d, v%d" % (tmp, tmp, r[0]))
    return out

def poll(issue, regs, tmp, pre_wait=None, spec=None, back="s_nop 7", tag=None, stub=None):
    uid[0] += 1; u = uid[0]
    A("s_mov_b32 s%d, %s" % (sCNT, hx(SPIN)))
    LB("Lp%d" % u)
    issue()
    if pre_wait: pre_wait()
    A("s_waitcnt vmcnt(0)")
    mt = maxtree(regs, tmp) + ["v_cmp_eq_u32 vcc, -1, v%d" % tmp]
    spec = list(spec or [])
    ns = len(spec)
    per = -(-len(mt) // ns) if ns else 0
    for s in spec:
        A(s)
        for k in range(per):
            if mt: A(mt.pop(0))
    for m in mt: A(m)
    A("s_cbranch_vccz Ld%d" % u)
    A("s_sub_u32 s%d, s%d, 1" % (sCNT, sCNT))
    if back != "s_nop 7": A(back)
    A("s_cbranch_scc0 Lp%d" % u)
    if stub: touch_stub(stub)
    LB("Ld%d" % u)
    if DIAG and tag is not None:
        A("s_lshl_b32 m0, s%d, 2" % sLAY); A("s_add_u32 m0, m0, %d" % tag); A("s_nop 0")
        A("v_writelane_b32 v31, s%d, m0" % sCNT)

stubs = []
def touch_stub(name, branch_over=None):
    A("s_branch Lsk_%s" % name)
    L.append(".p2align 6")
    LB("Lst_%s" % name)
    A("s_setpc_b64 %s" % sr(sRET, 2))
    LB("Lsk_%s" % name)
    stubs.append(name)

def delay(cyc):
    if cyc == -1:
        A("s_waitcnt vmcnt(0)"); return
    while cyc >= 64:
        k = min(cyc // 64, 15); A("s_sleep %d" % k); cyc -= 64 * k
    if cyc >= 8: A("s_nop %d" % min(15, cyc // 4 - 1))

def ppoll(issue, regs, n, tmp, spec, pre=0, gap=128, mid=None, tag=None, fix=None, stub=None, lanes=None, per_load=None):
    uid[0] += 1; u = uid[0]
    def look(k):
        if per_load and PROG and gap < 0:
            r = list(regs(k)); out = []
            for i in range(n):
                out.append("s_waitcnt vmcnt(%d)" % (n - 1 - i))
                sp = list(per_load(k, i))
                ck = ["v_max3_u32 v%d, v%d, v%d, v%d" % (tmp + 1, r[4 * i], r[4 * i + 1], r[4 * i + 2]),
                      ("v_max_u32 v%d, v%d, v%d" % (tmp, tmp + 1, r[4 * i + 3])) if i == 0 else ("v_max3_u32 v%d, v%d, v%d, v%d" % (tmp, tmp, tmp + 1, r[4 * i + 3]))]
                while sp or ck:
                    if sp: out.append(sp.pop(0))
                    if ck: out.append(ck.pop(0))
            return out + ["v_cmp_eq_u32 vcc, -1, v%d" % tmp]
        out = ["s_waitcnt vmcnt(%d)" % (n if k == 0 else 0)]
        mt = maxtree(regs(k), tmp) + ["v_cmp_eq_u32 vcc, -1, v%d" % tmp]
        sp = list(spec(k)); per = -(-len(mt) // len(sp)) if sp else 0
        for x in sp:
            out.append(x)
            for _ in range(per):
                if mt: out.append(mt.pop(0))
        return out + mt + (["s_and_b64 vcc, vcc, %s" % sr(lanes, 2)] if lanes else [])
    A("s_mov_b32 s%d, %s" % (sCNT, hx(SPIN)))
    delay(pre)
    fine = FINE and tag == int(FINE)
    if fine: CST(8)
    LB("Lp%d" % u)
    issue(0)
    if fine and 0: CST(9)
    if mid: mid()
    if gap >= 0: delay(gap)
    if gap >= 0: issue(1)
    lk = look(0)
    if gap < 0 and not (per_load and PROG): lk[0] = "s_waitcnt vmcnt(0)"
    for k, x in enumerate(lk):
        A(x)
        if fine and k == 0: CST(13)
    if fine: CST(14)
    A("s_cbranch_vccz Ld%d" % u)
    if gap < 0: issue(1)
    A("s_sub_u32 s%d, s%d, 1" % (sCNT, sCNT))
    for x in look(1): A(x)
    for x in (fix or []): A(x)
    A("s_cbranch_vccz Ld%d" % u)
    A("s_sub_u32 s%d, s%d, 1" % (sCNT, sCNT))
    A("s_cmp_gt_i32 s%d, 0" % sCNT)
    A("s_cbranch_scc1 Lp%d" % u)
    if stub: touch_stub(stub)
    LB("Ld%d" % u)
    if fine: CST(15)
    if DIAG and tag is not None:
        A("s_lshl_b32 m0, s%d, 2" % sLAY); A("s_add_u32 m0, m0, %d" % tag); A("s_nop 0")
        A("v_writelane_b32 v31, s%d, m0" % sCNT)

def lds_spin(off, target, tmp, mask=None, sleep=0):
    uid[0] += 1; u = uid[0]
    A("s_mov_b32 s%d, %s" % (sT2, hx(SPIN * 4)))
    LB("Ls%d" % u)
    A("ds_read_b32 v%d, v%d offset:%d" % (tmp, vFL, off))
    A("s_waitcnt lgkmcnt(0)")
    A("v_readfirstlane_b32 s%d, v%d" % (sT1, tmp))
    if mask: A("s_and_b32 s%d, s%d, %d" % (sT0, sT1, mask))
    A("s_cmp_ge_u32 s%d, %d" % (sT0 if mask else sT1, target))
    A("s_cbranch_scc1 Lt%d" % u)
    if sleep: A("s_sleep %d" % sleep)
    A("s_sub_u32 s%d, s%d, 1" % (sT2, sT2))
    A("s_cbranch_scc0 Ls%d" % u)
    LB("Lt%d" % u)

def lds_arrive(off, tmp, val=1):
    if val is not None: A("v_mov_b32 v%d, %d" % (tmp, val))
    A("s_mov_b64 exec, 1")
    A("ds_add_u32 v%d, v%d offset:%d" % (vFL, tmp, off))
    A("s_mov_b64 exec, -1")

def store_local(op, data, vaddr, so):
    uid[0] += 1; u = uid[0]
    A("s_cbranch_scc1 Lw%d" % u)
    A("%s %s, v%d, %s, s%d offen" % (op, data, vaddr, sr(sWS, 4), so))
    LB("Lx%d" % u)
    ool.append(["Lw%d:" % u, "    %s %s, v%d, %s, s%d offen sc1" % (op, data, vaddr, sr(sWS, 4), so), "    s_branch Lx%d" % u])
def fastcmp(): A("s_cmp_eq_u32 s%d, 0" % sFAST)

def mf(d, a, b, c):
    return "v_mfma_f32_16x16x32_bf16 %s, %s, %s, %s" % (vr(d, 4), vr(a, 4), vr(b, 4), "0" if c is None else vr(c, 4))
def mfma(d, a, b, c): A(mf(d, a, b, c))

def tags():
    A("s_add_u32 s%d, s%d, 1" % (sTG1, sE))
    A("s_mul_i32 s%d, s%d, 0x9E3779B1" % (sTG2, sTG1))
    A("s_and_b32 s%d, s%d, -8" % (sTG2, sTG2))

def common_addr():
    A("v_and_b32 v18, 3, v%d" % vLANE)
    A("v_lshlrev_b32 v%d, 12, v17" % vQST)
    A("v_lshrrev_b32 v24, 1, v16")
    A("v_lshl_add_u32 v%d, v24, 8, v%d" % (vQST, vQST))
    A("v_and_b32 v24, 1, v16")
    A("v_lshl_add_u32 v%d, v24, 3, v%d" % (vQST, vQST))
    A("v_lshlrev_b32 v%d, 4, v24" % vLSE)
    A("s_mul_i32 s%d, s%d, %d" % (sT0, sW, XS))
    A("s_add_u32 s%d, s%d, %d" % (sT0, sT0, L_XN))
    A("v_add_u32 v%d, s%d, v%d" % (vXNW, sT0, vL16))
    A("s_lshl_b32 s%d, s%d, 8" % (sT0, sA))
    A("s_add_u32 s%d, s%d, %d" % (sT0, sT0, L_XN))
    A("v_mul_u32_u24 v25, %d, v18" % XS)
    A("v_lshl_add_u32 v25, v16, 4, v25")
    A("v_add_u32 v%d, s%d, v25" % (vXNR, sT0))
    A("v_mov_b32 v%d, %s" % (vZ, hx(f2u(1.0 / 512))))
    for r in range(4): A("v_mov_b32 v%d, 0x3f803f80" % (ONES + r))
    A("s_and_b32 s%d, s%d, 1" % (sT1, sC))
    A("s_lshr_b32 s%d, s%d, 1" % (sT2, sC))
    soff(sQS, [(sT1, 11), (sW, 9), (sA, 6), (sT2, 4)], 0)
    A("v_bfe_u32 v24, v%d, 2, 2" % vLANE)
    A("v_lshl_add_u32 v24, v16, 3, v24")
    A("v_lshlrev_b32 v24, 7, v24")
    A("v_bfe_u32 v25, v%d, 3, 2" % vLANE)
    A("v_lshlrev_b32 v25, 1, v25")
    A("v_bfe_u32 v26, v%d, 1, 1" % vLANE)
    A("v_xor_b32 v25, v25, v26")
    A("v_lshl_add_u32 v24, v25, 4, v24")
    A("v_and_b32 v26, 1, v%d" % vLANE)
    A("v_lshl_add_u32 v%d, v26, 3, v24" % vWT)
    A("s_mov_b32 s%d, 0x000f000f" % sMSK)
    A("s_mov_b32 s%d, 0x000f000f" % (sMSK + 1))
    A("s_mov_b32 s%d, 0" % sLAY)

def wtile_voff(shift, d):
    A("v_lshrrev_b32 v24, 3, v%d" % vLANE)
    A("v_and_b32 v25, 7, v%d" % vLANE)
    A("v_and_b32 v26, 1, v16")
    A("v_lshlrev_b32 v26, 1, v26")
    A("v_xor_b32 v25, v25, v26")
    A("v_lshlrev_b32 v25, 4, v25")
    A("v_lshl_add_u32 v%d, v24, %d, v25" % (d, shift))
    A("v_xor_b32 v%d, 64, v%d" % (d + 1, d))

def wqf_reads():
    A("s_lshl_b32 s%d, s%d, 5" % (sT1, sW))
    A("v_xor_b32 v26, s%d, v%d" % (sT1, vWT))
    for t in range(4):
        for hf in range(2):
            A("ds_read_b64_tr_b16 %s, v26 offset:%d" % (vr(WQF + 4 * t + 2 * hf, 2), L_WQ + 4096 * t + 512 * hf))

def dma(vaddr, srdn, so, lds_s, step_so, flags="nt"):
    A("s_mov_b32 m0, s%d" % lds_s)
    A("s_add_u32 s%d, s%d, 1024" % (lds_s, lds_s))
    A("buffer_load_dwordx4 v%d, %s, s%d offen %s lds" % (vaddr, sr(srdn, 4), so, flags))
    A("s_add_u32 s%d, s%d, %d" % (so, so, step_so))

hdr = open("cdna_kernels/%s.s.ref" % NAME).read().split("; Override launch")[0]
L.append(hdr.rstrip("\n") + """
;
; One persistent launch, 256 workgroups (one per CU) x 8 waves.  wg = A(2b):C(3b):j(3b); j = kv head.
; K, V, wq and wo are read from HBM exactly once (LDS-DMA) and stay in registers for both attention layers.
;   roles of a workgroup:  attention (batch A, keys 128C..), q projection (wq rows 128A.., 64 columns C),
;                          output projection (head A of group j, 64 columns C), row reduction (batch A, columns 64C..)
;   waves 0-3: stream wq/K/V/wo, q projections, attention, output projection, LayerNorm + mixer
;   waves 4-7: the token-mixer MLP g(h) = sum_f gelu(h w1 + b1) w2 + b2 evaluated
;              exactly (all 1792 hidden units) for every bf16 value h with 2^-17 <= |h| < 8; h is a bf16 tensor in the
;              reference, so the mixer is a lookup of these values; any other h is evaluated directly (Lslow).
; Hand-offs between workgroups go through d_ws.  Slots are filled with a sentinel at the start of the launch and a
; consumer polls until no sentinel is left; the first hand-off (q) and the "sentinels are in place" announcements
; carry a tag derived from a word that every launch advances.  Stores inside a kv-head group are plain when the
; whole group reports the same XCC id, write-through otherwise; every poll is bounded.
""".rstrip("\n"))
L.append("; @launch grid=(256,1,1) block=(512,1,1) lds=%d" % LDS_SZ)
L.append('.amdgcn_target "amdgcn-amd-amdhsa--gfx950"')
L.append(".text\n" + (".p2align 12\n" if int(OPT.get("al", 0)) else "") + ".globl %s_kernel\n.p2align 8\n.type %s_kernel,@function\n%s_kernel:" % (NAME, NAME, NAME))
if DIAG: A("s_memrealtime s[42:43]")
if DBL or TOT or MEAS: A("s_memrealtime s[98:99]")
sM = 96
A("s_lshr_b32 s%d, s2, 8" % sT0)
A("s_cbranch_scc1 Lend")
A("s_load_dwordx2 %s, s[0:1], 24" % sr(sWQ, 2))
A("s_load_dwordx4 %s, s[0:1], 0" % sr(sT2, 4))
A("v_readfirstlane_b32 s%d, v0" % sW)
C("every wave pulls one line of this kernel's code into L2 (plain read): 32 workgroups x 4 lines")
A("s_getpc_b64 s[10:11]")
LB("Lpc0")
A("s_lshr_b32 s%d, s2, 3" % sM)
A("s_lshl_b32 s%d, s%d, 9" % (sCNT, sM))
A("s_cmp_lg_u32 s%d, 0" % sW)
A("s_cbranch_scc1 Lnopf")
A("v_and_b32 v19, 3, v0")
A("v_lshl_add_u32 v19, v19, 7, s%d" % sCNT)
A("global_load_dword v%d, v19, s[10:11]" % (W + 8))
LB("Lnopf")
A("s_and_b32 s%d, s2, 7" % sJ)
A("s_lshr_b32 s%d, s2, 6" % sA)
A("s_and_b32 s%d, s%d, 7" % (sC, sM))
A("s_lshl_b32 s%d, 1, 17" % (sWQ + 3))
A("s_bitcmp1_b32 s%d, 8" % sW)
A("s_cbranch_scc1 Lhelp0")
vKA, vVA = W + 40, W + 44
sRO, sRM = sVO, 97 if not TOT else 94
if TOT: sRM = sOL
def kv_issue(i):
    A("s_add_u32 m0, s%d, s%d" % (sKL if i < 8 else sVL, sRO))
    A("s_add_u32 s%d, s%d, s%d" % (sCNT, sKO, sRO))
    if i < 8: A("buffer_load_dwordx4 v%d, %s, s%d offen nt lds" % (vKA + (i & 3), sr(sK, 4), sCNT))
    else: A("buffer_load_dwordx4 v%d, %s, s%d offen nt lds" % (vVA + (i & 1), sr(sV, 4), sCNT))
    A("s_addk_i32 s%d, %d" % (sRO, 1024 + (VROT * 1024 if i == 7 else 0)))
    A("s_and_b32 s%d, s%d, 0x1fff" % (sRO, sRO))
def lane_init():
    A("v_and_b32 v%d, 63, v0" % vLANE)
    A("v_mov_b32 v%d, %d" % (vFL, L_FLG))
    A("v_lshlrev_b32 v%d, 4, v%d" % (vL16, vLANE))
    A("v_lshrrev_b32 v16, 4, v%d" % vLANE)
    A("v_and_b32 v17, 15, v%d" % vLANE)
    A("v_mov_b32 v20, 0")
    if DIAG: A("v_mov_b32 v30, 0")
C("wq tile DMA: instruction i, thread t: row 32 i + (t>>3), 16-byte chunk (t&7) ^ swizzle")
A("v_lshrrev_b32 v23, 3, v0")
A("v_and_b32 v22, 7, v0")
A("v_and_b32 v24, 2, v23")
A("v_lshrrev_b32 v25, 1, v23")
A("v_and_or_b32 v24, v25, 4, v24")
A("v_xor_b32 v22, v22, v24")
A("v_lshlrev_b32 v22, 4, v22")
A("v_lshl_add_u32 v22, v23, 13, v22")
soff(sQL, [(sA, 20), (sJ, 10), (sC, 7)], 0)
A("s_lshl_b32 s%d, 1, 22" % (sWQ + 2))
A("s_lshl_b32 s%d, 1, 18" % sT1)
A("s_lshl_b32 s%d, s%d, 4" % (sQS, sW))
A("s_add_u32 m0, s%d, %d" % (sQS, L_WQ))
A("v_lshlrev_b32 v21, 4, v0")
A("s_waitcnt lgkmcnt(0)")
A("global_load_dwordx4 %s, v21, %s" % (vr(XR, 4), sr(sT2, 2)))
for i in range(4):
    if i:
        A("s_addk_i32 m0, 0x1000")
        A("s_add_u32 s%d, s%d, s%d" % (sQL, sQL, sT1))
    A("buffer_load_dwordx4 v22, %s, s%d offen nt lds" % (sr(sWQ, 4), sQL))
def main_early2():
    lane_init()
    A("s_lshl_b32 s%d, 1, 25" % (sK + 2)); A("s_mov_b32 s%d, s%d" % (sK + 3, sWQ + 3))
    A("s_mov_b64 %s, %s" % (sr(sK, 2), sr(sT4, 2)))
    A("v_xor_b32 v18, v17, v16")
    A("v_lshlrev_b32 v18, 4, v18")
    A("v_lshl_add_u32 v%d, v16, 8, v18" % vKA)
    A("s_lshl_b32 s%d, s%d, 10" % (sRO, sC))
    A("s_bfe_u32 s%d, s%d, 0x2000a" % (sT1, sRO))
    A("s_lshl_b32 s%d, s%d, 6" % (sT1, sT1))
    for k in range(1, 4):
        A("s_add_u32 s%d, s%d, %d" % (sCNT, sT1, 64 * k))
        A("s_and_b32 s%d, s%d, 0xc0" % (sCNT, sCNT))
        A("v_xor_b32 v%d, s%d, v%d" % (vKA + k, sCNT, vKA))
    A("v_xor_b32 v%d, s%d, v%d" % (vKA, sT1, vKA))
    soff(sKO, [(sA, 23), (sJ, 20), (sC, 15), (sW, 7)], 3072 * 256)
    A("s_add_u32 s%d, s%d, %d" % (sKL, sT0, L_K))
    for i in range(D0): kv_issue(i)
    A("s_add_u32 s%d, s%d, %d" % (sVL, sT0, L_V))
    A("s_lshr_b32 s%d, s%d, 6" % (sW, sW))
    if DIAG: A("v_writelane_b32 v30, s42, 0")
    STAMP(10)
    A("s_branch Lmain")

if HFIRST: A("s_branch Lmain1")
else: main_early2()
LB("Lhelp0")
C("---- helper waves: the table of g over bf16 inputs ----")
HW1, HB1, HW2 = 32, 60, 112
hK0, hK1, hONE, hRES = 88, 90, 92, 94
AC = [140, 142]
for s, off in [(sW1, 48), (sB1, 56), (sW2, 64), (sWS, 96), (sB2P, 72)]:
    A("s_load_dwordx2 %s, s[0:1], %d" % (sr(s, 2), off))
lane_init()
A("v_mov_b32 v21, 0")
for k in range(4): A("ds_write_b64 v%d, v[20:21] offset:%d" % (vFL, 8 * k))
A("ds_write_b32 v%d, v20 offset:44" % vFL)
A("ds_write_b32 v%d, v20 offset:60" % vFL)
A("ds_write_b32 v%d, v20 offset:48" % vFL)
A("s_bfe_u32 s%d, s%d, 0x20006" % (sW, sW))
srd(sWS, WS_SZ)
for s in [sW1, sB1, sW2]: srd(s, 3584)
for i in range(4): A("v_mov_b32 v%d, -1" % (PM + i))
A("s_waitcnt lgkmcnt(0)")
A("s_lshl_b32 s%d, s%d, 10" % (sT3, sW))
A("s_mul_i32 s%d, s%d, %d" % (sT5, sM, CLRA_PER))
A("s_lshl_b32 s%d, s%d, 17" % (sGR, sJ))
A("s_add_u32 s%d, s%d, s%d" % (sT5, sT5, sGR))
A("s_add_u32 s%d, s%d, 1024" % (sT4, sT5))
A("s_lshl_b32 s%d, s%d, 7" % (sT1, sM))
A("v_mov_b32 v19, s%d" % sT1)
def h_coef():
    A("s_mov_b32 m0, s%d" % sT3)
    for i, sd in enumerate([sW1, sB1, sW2]):
        if i: A("s_addk_i32 m0, 0x1000")
        A("s_nop 0")
        A("buffer_load_dwordx4 v%d, %s, s%d offen lds" % (vL16, sr(sd, 4), sT3))
C("hw0, hw1: early sentinels (O0, LSE0) ; hw3: a slice of each coefficient array into L2")
A("s_cmp_ge_u32 s%d, 2" % sW)
A("s_cbranch_scc1 Lhc_pf")
A("s_cmp_eq_u32 s%d, 0" % sW)
A("s_cselect_b32 s%d, s%d, s%d" % (sT5, sT5, sT4))
A("s_cselect_b64 exec, -1, 1")
A("buffer_store_dwordx4 %s, v%d, %s, s%d offen sc1" % (vr(PM, 4), vL16, sr(sWS, 4), sT5))
A("s_branch Lhc_skip")
LB("Lhc_pf")
if SLC:
    A("s_cmp_eq_u32 s%d, 2" % sW)
    A("s_cbranch_scc1 Lhc_skip")
    A("s_mov_b64 exec, 1")
    for k, sd in enumerate([sW1, sB1, sW2]): A("buffer_load_dword v%d, v19, %s, 0 offen" % (W + k, sr(sd, 4)))
LB("Lhc_skip")
A("s_mov_b64 exec, -1")
if not SLC: h_coef()
A("s_load_dword s%d, %s, 0" % (sB2, sr(sB2P, 2)))
if MEAS:
    A("s_load_dwordx2 s[42:43], s[0:1], 88"); A("s_waitcnt lgkmcnt(0)"); A("v_mov_b32 v30, s42"); A("v_mov_b32 v31, s43")
if DIAG: A("v_writelane_b32 v30, s42, 0")
STAMP(9)
A("s_barrier")
if HFIRST:
    A("s_branch Lhelp1")
    LB("Lmain1")
    main_early2()
    LB("Lhelp1")
A("s_lshl_b32 s%d, s2, 2" % sHC)
A("s_add_u32 s%d, s%d, s%d" % (sHC, sHC, sW))
sHX = 86
if XENT:
    C("extra entry e = wave index: |h| code ELO*128 + (e>>1), sign e&1")
    A("s_lshr_b32 s%d, s%d, 1" % (sHX, sHC))
    A("s_add_u32 s%d, s%d, %d" % (sHX, sHX, ELO * 128))
    A("s_lshl_b32 s%d, s%d, 16" % (sHX, sHX))
    A("s_lshl_b32 s%d, s%d, 31" % (sT0, sHC))
    A("s_or_b32 s%d, s%d, s%d" % (sHX, sHX, sT0))
A("s_mul_i32 s%d, s%d, %d" % (sHC, sHC, EPW))
A("s_lshl_b32 s%d, s%d, 3" % (sHT, sHC))
A("s_add_u32 s%d, s%d, %d" % (sHT, sHT, XENT * 4))
A("s_add_u32 s%d, s%d, %d" % (sHC, sHC, ELO * 128 + XENT // 2))
A("s_lshl_b32 s%d, s%d, 16" % (sHC, sHC))
A("v_lshlrev_b32 v27, 2, v%d" % vLANE)
A("v_add_u32 v27, s%d, v27" % sHT)
A("s_mov_b32 s%d, %s" % (sHT, hx(TB)))
for r, c in [(hK0, K0), (hK1, K1), (hONE, 1.0)]:
    A("v_mov_b32 v%d, %s" % (r, hx(f2u(c)))); A("v_mov_b32 v%d, %s" % (r + 1, hx(f2u(c))))
A("v_mov_b32 v%d, 0" % hRES)
A("s_mov_b32 s%d, 0" % sIT)
if WARM:
    C("warm the instruction cache lines at the far jump targets of the main waves")
    for k, nm in enumerate(["k", "fin", "out", "tab"]):
        A("s_cmp_lg_u32 s%d, %d" % (sW, k))
        A("s_cbranch_scc1 Lwm%d" % k)
        A("s_call_b64 %s, Lst_%s" % (sr(sRET, 2), nm))
        if nm == "out": A("s_call_b64 %s, Lst_mq" % sr(sRET, 2))
        LB("Lwm%d" % k)
HR = W + 8
A("v_lshlrev_b32 v26, 3, v%d" % vLANE)
if SLC:
    C("slices are in L2 once hw3's own have returned")
    A("s_waitcnt vmcnt(0)")
    lds_arrive(0, 24)
    A("s_cmp_lg_u32 s%d, 3" % sW)
    A("s_cbranch_scc1 Lhs1")
    lds_arrive(52 - 8, 24)
    LB("Lhs1")
    lds_spin(52 - 8, 1, 24, sleep=1)
    h_coef()
    A("s_waitcnt vmcnt(0)")
else:
    A("s_waitcnt vmcnt(3)")
    lds_arrive(0, 24)
    A("s_waitcnt vmcnt(0)")
STAMP(1)
lds_arrive(24, 24)
lds_spin(24, 4, 24)
for a_ in range(3):
    for k in range(3):
        A("ds_read_b128 %s, v%d offset:%d" % (vr(HR + 14 * a_ + 4 * k, 4), vL16, 4096 * a_ + 1024 * k))
    A("ds_read_b64 %s, v26 offset:%d" % (vr(HR + 14 * a_ + 12, 2), 4096 * a_ + 3072))
for a_, d in [(0, HW1), (14, HB1), (28, HW2)]:
    A("s_waitcnt lgkmcnt(%d)" % (8 - 4 * (a_ // 14)))
    for p in range(14):
        A("v_lshlrev_b32 v%d, 16, v%d" % (d + 2 * p, HR + a_ + p))
        A("v_and_b32 v%d, 0xffff0000, v%d" % (d + 2 * p + 1, HR + a_ + p))
STAMP(4)
MP("hst")
if DIAG:
    A("s_memtime s[42:43]"); A("s_waitcnt lgkmcnt(0)"); A("v_writelane_b32 v30, s42, 13")
LB("Lhl")
if DIAG:
    A("s_memrealtime s[42:43]"); A("s_add_u32 m0, s%d, 10" % sIT); A("s_waitcnt lgkmcnt(0)"); A("v_writelane_b32 v30, s42, m0")
A("s_mov_b32 s%d, s%d" % (sH, sHC)); A("s_mov_b32 s%d, s%d" % (sH + 1, sHC))
A("s_xor_b32 s%d, s%d, 0x80000000" % (sH2, sHC)); A("s_mov_b32 s%d, s%d" % (sH2 + 1, sH2))
U4 = [144, 146, 148, 150]; T4 = [152, 154, 156, 158]; Z4 = [160, 162, 164, 166]
for p2 in range(7):
    ch = [(2 * p2 + k // 2, k & 1) for k in range(4)]
    for k, (p, sg) in enumerate(ch):
        A("v_pk_fma_f32 %s, %s, %s, %s" % (vr(U4[k], 2), vr(HW1 + 2 * p, 2), sr([sH, sH2][sg], 2), vr(HB1 + 2 * p, 2)))
    for k in range(4): A("v_pk_mul_f32 %s, %s, %s" % (vr(T4[k], 2), vr(U4[k], 2), vr(U4[k], 2)))
    for k in range(4): A("v_pk_fma_f32 %s, %s, %s, %s" % (vr(T4[k], 2), vr(T4[k], 2), vr(hK1, 2), vr(hK0, 2)))
    for k in range(4): A("v_pk_mul_f32 %s, %s, %s" % (vr(T4[k], 2), vr(T4[k], 2), vr(U4[k], 2)))
    for k in range(4):
        for h in range(2): A("v_exp_f32 v%d, v%d" % (T4[k] + h, T4[k] + h))
    for k, (p, sg) in enumerate(ch): A("v_pk_mul_f32 %s, %s, %s" % (vr(Z4[k], 2), vr(U4[k], 2), vr(HW2 + 2 * p, 2)))
    for k in range(4): A("v_pk_add_f32 %s, %s, %s" % (vr(T4[k], 2), vr(T4[k], 2), vr(hONE, 2)))
    for k in range(4):
        for h in range(2): A("v_rcp_f32 v%d, v%d" % (T4[k] + h, T4[k] + h))
    for k, (p, sg) in enumerate(ch):
        if p == 0: A("v_pk_mul_f32 %s, %s, %s" % (vr(AC[sg], 2), vr(Z4[k], 2), vr(T4[k], 2)))
        else: A("v_pk_fma_f32 %s, %s, %s, %s" % (vr(AC[sg], 2), vr(Z4[k], 2), vr(T4[k], 2), vr(AC[sg], 2)))
A("v_add_f32 v%d, v%d, v%d" % (AC[0], AC[0], AC[0] + 1))
A("v_add_f32 v%d, v%d, v%d" % (AC[1], AC[1], AC[1] + 1))
A("s_lshl_b32 m0, s%d, 1" % sIT)
A("s_add_u32 s%d, s%d, 0x10000" % (sHC, sHC))
wave_sum2(AC[0], AC[1], sSUM, sSQ)
A("s_add_u32 s%d, s%d, 1" % (sIT, sIT))
A("s_nop 0")
A("v_writelane_b32 v%d, s%d, m0" % (hRES, sSUM))
A("s_add_u32 m0, m0, 1")
A("s_cmp_lg_u32 s%d, %d" % (sIT, EPW))
A("v_writelane_b32 v%d, s%d, m0" % (hRES, sSQ))
A("s_cbranch_scc1 Lhl")
def h_publish(lanes):
    A("v_cvt_pk_bf16_f32 v%d, v%d, v%d" % (hRES, hRES, hRES))
    A("v_and_b32 v%d, 0xffff0000, v%d" % (hRES, hRES))
    A("v_add_f32 v%d, s%d, v%d" % (hRES, sB2, hRES))
    A("v_cvt_pk_bf16_f32 v%d, v%d, v%d" % (hRES, hRES, hRES))
    A("v_and_b32 v%d, 0xffff0000, v%d" % (hRES + 1, hRES))
    A("s_mov_b64 exec, %d" % lanes)
    A("buffer_store_dword v%d, v27, %s, s%d offen sc1" % (hRES + 1, sr(sWS, 4), sHT))
    A("s_mov_b64 exec, -1")
A("s_waitcnt lgkmcnt(0)")
A("s_lshl_b32 s%d, s%d, 16" % (sB2, sB2))
lds_spin(8, 4, 24)
h_publish((1 << (2 * EPW)) - 1)
if QBD:
    C("the write-through copy of q is only needed when the group is not known to sit on one XCD")
    A("ds_read_b32 v24, v%d offset:4" % vFL)
    A("s_waitcnt lgkmcnt(0)")
    A("v_readfirstlane_b32 s%d, v24" % sT0)
    A("s_cmp_eq_u32 s%d, 4" % sT0)
    A("s_cbranch_scc1 Lhqb")
    A("s_mov_b64 exec, %s" % sr(sMSK, 2))
    A("buffer_store_dwordx4 %s, v%d, %s, s%d offen sc1" % (vr(W + 4, 4), vQST, sr(sWS, 4), sQS))
    A("s_mov_b64 exec, -1")
    LB("Lhqb")
STAMP(8)
MP("htab")
if XENT:
    A("s_mov_b32 s%d, s%d" % (sH, sHX)); A("s_mov_b32 s%d, s%d" % (sH + 1, sHX))
    for grp in [[0, 1, 2, 3], [4, 5, 6, 7], [8, 9, 10], [11, 12, 13]]:
        n = len(grp)
        for k, p in enumerate(grp): A("v_pk_fma_f32 %s, %s, %s, %s" % (vr(U4[k], 2), vr(HW1 + 2 * p, 2), sr(sH, 2), vr(HB1 + 2 * p, 2)))
        for k in range(n): A("v_pk_mul_f32 %s, %s, %s" % (vr(T4[k], 2), vr(U4[k], 2), vr(U4[k], 2)))
        for k in range(n): A("v_pk_fma_f32 %s, %s, %s, %s" % (vr(T4[k], 2), vr(T4[k], 2), vr(hK1, 2), vr(hK0, 2)))
        for k in range(n): A("v_pk_mul_f32 %s, %s, %s" % (vr(T4[k], 2), vr(T4[k], 2), vr(U4[k], 2)))
        for k in range(n):
            for h in range(2): A("v_exp_f32 v%d, v%d" % (T4[k] + h, T4[k] + h))
        for k, p in enumerate(grp): A("v_pk_mul_f32 %s, %s, %s" % (vr(Z4[k], 2), vr(U4[k], 2), vr(HW2 + 2 * p, 2)))
        for k in range(n): A("v_pk_add_f32 %s, %s, %s" % (vr(T4[k], 2), vr(T4[k], 2), vr(hONE, 2)))
        for k in range(n):
            for h in range(2): A("v_rcp_f32 v%d, v%d" % (T4[k] + h, T4[k] + h))
        for k, p in enumerate(grp):
            if p < 2: A("v_pk_mul_f32 %s, %s, %s" % (vr(AC[p & 1], 2), vr(Z4[k], 2), vr(T4[k], 2)))
            else: A("v_pk_fma_f32 %s, %s, %s, %s" % (vr(AC[p & 1], 2), vr(Z4[k], 2), vr(T4[k], 2), vr(AC[p & 1], 2)))
    A("v_add_f32 v%d, v%d, v%d" % (AC[0], AC[0], AC[0] + 1))
    A("v_add_f32 v%d, v%d, v%d" % (AC[1], AC[1], AC[1] + 1))
    A("v_add_f32 v%d, v%d, v%d" % (AC[0], AC[0], AC[1]))
    A("s_nop 1")
    wave_sum2(AC[0], AC[1], sSUM, sSQ)
    A("s_nop 1")
    A("v_mov_b32 v%d, s%d" % (hRES, sSUM))
    A("v_cvt_pk_bf16_f32 v%d, v%d, v%d" % (hRES, hRES, hRES))
    A("v_and_b32 v%d, 0xffff0000, v%d" % (hRES, hRES))
    A("v_add_f32 v%d, s%d, v%d" % (hRES, sB2, hRES))
    A("v_cvt_pk_bf16_f32 v%d, v%d, v%d" % (hRES, hRES, hRES))
    A("v_and_b32 v%d, 0xffff0000, v%d" % (hRES, hRES))
    C("the last of the four helpers stores the workgroup's four extra entries with one instruction")
    A("s_lshl_b32 s%d, s%d, 2" % (sT0, sW))
    A("v_add_u32 v16, s%d, v%d" % (sT0, vFL))
    A("v_mov_b32 v17, 1")
    A("s_mov_b64 exec, 1")
    A("ds_write_b32 v16, v%d offset:32" % hRES)
    A("s_waitcnt lgkmcnt(0)")
    A("ds_add_rtn_u32 v18, v%d, v17 offset:28" % vFL)
    A("s_waitcnt lgkmcnt(0)")
    A("v_readfirstlane_b32 s%d, v18" % sT0)
    A("s_cmp_lg_u32 s%d, 3" % sT0)
    A("s_cbranch_scc1 Lhx_end")
    A("ds_read_b128 v[20:23], v%d offset:32" % vFL)
    A("s_lshl_b32 s%d, s2, 4" % sT0)
    A("v_mov_b32 v16, s%d" % sT0)
    A("s_waitcnt lgkmcnt(0)")
    A("buffer_store_dwordx4 v[20:23], v16, %s, s%d offen sc1" % (sr(sWS, 4), sHT))
    LB("Lhx_end")
    A("s_mov_b64 exec, -1")
if DIAG:
    A("s_memtime s[42:43]"); A("s_waitcnt lgkmcnt(0)"); A("v_writelane_b32 v30, s42, 14")
    STAMP(15)
STAMP(7)
if TPF:
    C("pull a slice of the finished table into this XCD's L2 ahead of the gather")
    lds_spin(TPF_OFF, 4, 24, sleep=1)
    A("s_cmp_ge_u32 s%d, 20" % sM)
    A("s_cbranch_scc1 Lhtp")
    soff(sT1, [(sM, 10), (sW, 8)], TB)
    A("v_lshlrev_b32 v16, 7, v%d" % vLANE)
    A("s_mov_b64 exec, 3")
    A("buffer_load_dword v17, v16, %s, s%d offen sc1" % (sr(sWS, 4), sT1))
    A("s_mov_b64 exec, -1")
    LB("Lhtp")
if HG:
    C("gather the table into LDS (V fragments are in registers, every workgroup's sentinels were in place)")
    lds_spin(HG_OFF, 4, 24, sleep=1)
    if TB2 == 1:
        soff(sT1, [(sM, 11), (sW, 9), (sJ, 17)], CLRB_OFF)
        A("v_lshlrev_b32 v16, 7, v%d" % vLANE)
        A("s_mov_b64 exec, 15")
        A("buffer_load_dword v52, v16, %s, s%d offen sc1" % (sr(sWS, 4), sT1))
        A("s_mov_b64 exec, -1")
    A("s_lshl_b32 s%d, s%d, 12" % (sT3, sW))
    A("s_add_u32 s%d, s%d, %d" % (sT3, sT3, XENT * 4))
    A("v_add_u32 v20, s%d, v%d" % (sT3, vL16))
    A("v_add_u32 v20, %d, v20" % L_TAB)
    A("s_add_u32 s%d, s%d, %s" % (sT3, sT3, hx(TB)))
    A("s_lshl_b32 s%d, s%d, 10" % (sT4, sW))
    A("v_add_u32 v21, s%d, v%d" % (sT4, vL16))
    A("v_add_u32 v21, %d, v21" % L_TAB)
    A("s_add_u32 s%d, s%d, %s" % (sT4, sT4, hx(TB)))
    def hgi():
        for i in range(4):
            A("buffer_load_dwordx4 %s, v%d, %s, s%d offen offset:%d sc1" % (vr(32 + 4 * i, 4), vL16, sr(sWS, 4), sT3, 1024 * i))
        A("buffer_load_dwordx4 v[48:51], v%d, %s, s%d offen sc1" % (vL16, sr(sWS, 4), sT4))
    poll(hgi, range(32, 48), vT, back="s_sleep 6")
    for i in range(4): A("ds_write_b128 v20, %s offset:%d" % (vr(32 + 4 * i, 4), 1024 * i))
    A("ds_write_b128 v21, v[48:51]")
    A("s_waitcnt lgkmcnt(0)")
    lds_arrive(20, 24)
    MP("htg")
    A("s_mov_b32 s%d, 3" % sCNT)
    LB("Lhge")
    for x in maxtree(range(48, 52), vT): A(x)
    A("v_cmp_eq_u32 vcc, -1, v%d" % vT)
    A("s_cbranch_vccz Lhgc")
    A("s_sleep 6")
    A("buffer_load_dwordx4 v[48:51], v%d, %s, s%d offen sc1" % (vL16, sr(sWS, 4), sT4))
    A("s_waitcnt vmcnt(0)")
    A("ds_write_b128 v21, v[48:51]")
    A("s_sub_u32 s%d, s%d, 1" % (sCNT, sCNT))
    A("s_cbranch_scc0 Lhge")
    A("s_branch Lhgd")
    LB("Lhgc")
    A("s_waitcnt lgkmcnt(0)")
    lds_arrive(48, 24)
    LB("Lhgd")
    A("s_waitcnt lgkmcnt(0)")
C("stand in at the two barriers of the second layer, so that they do not wait for this wave's store acknowledgements")
A("s_barrier")
A("s_barrier")
if MEAS and OPT["q"][0] == "h":
    LB("Lmh0")
    A("s_memrealtime s[14:15]"); A("s_waitcnt lgkmcnt(0)"); A("s_sub_u32 s13, s14, s98"); A("s_cmp_lt_u32 s13, 1600"); A("s_cbranch_scc1 Lmh0")
    A("s_mov_b64 exec, 1"); A("v_mov_b32 v16, s97"); A("global_atomic_umax v[30:31], v16, off sc1")
if DIAG:
    A("s_add_u32 s%d, s%d, 4" % (sW, sW))
    A("v_mov_b32 v28, v30")
    A("s_branch Lfin_exit")
A("s_endpgm")

LB("Lmain")
for s, off in [(sWS, 96), (sV, 16), (sWO, 32), (sOUT, 80), (sX, 0), (sB2P, 72), (sW1, 48), (sB1, 56), (sW2, 64)]:
    A("s_load_dwordx2 %s, s[0:1], %d" % (sr(s, 2), off))
if MEAS: A("s_load_dwordx2 s[42:43], s[0:1], 88"); A("s_waitcnt lgkmcnt(0)"); A("s_mov_b32 s25, s42"); A("s_mov_b32 s99, s43") if False else None; A("v_mov_b32 v30, s42"); A("v_mov_b32 v31, s43")
srd(sWS, WS_SZ)
for s in [sW1, sB1, sW2]: srd(s, 3584)
A("s_barrier")
for i in range(D0, D1): kv_issue(i)
for i in range(4): A("v_mov_b32 v%d, -1" % (W + i))
A("s_lshl_b32 s%d, s%d, 17" % (sGR, sJ))
A("s_mov_b32 s%d, s%d" % (sT1, sM))
A("s_waitcnt lgkmcnt(0)")
A("s_load_dword s%d, %s, %s" % (sE, sr(sWS, 2), hx(EPO)))
STAMP(11)
for s, n in [(sV, 1 << 25), (sX, 4096), (sWO, 1 << 22), (sOUT, 4096)]: srd(s, n)
A("v_lshlrev_b32 v18, 1, v16")
A("v_xor_b32 v18, v17, v18")
A("v_lshlrev_b32 v18, 4, v18")
A("v_lshl_add_u32 v%d, v16, 8, v18" % vVA)
if ROT:
    A("s_and_b32 s%d, s%d, 1" % (sT0, sC))
    A("s_lshl_b32 s%d, s%d, 7" % (sT0, sT0))
    A("v_xor_b32 v%d, s%d, v%d" % (vVA, sT0, vVA))
A("v_xor_b32 v%d, 128, v%d" % (vVA + 1, vVA))
C("late sentinels: wave 0,1: group region ; wave 2: P chunk")
A("s_lshr_b32 s%d, s2, 3" % sT1)
A("s_mul_i32 s%d, s%d, %d" % (sT1, sT1, CLRB_PER))
A("s_lshl_b32 s%d, s%d, 10" % (sT0, sW))
A("s_add_u32 s%d, s%d, s%d" % (sT1, sT1, sT0))
A("s_add_u32 s%d, s%d, s%d" % (sT1, sT1, sGR))
A("s_add_u32 s%d, s%d, %d" % (sT1, sT1, CLRB_OFF))
A("s_lshl_b32 s%d, s2, 10" % sT0)
A("s_add_u32 s%d, s%d, %s" % (sT0, sT0, hx(PB)))
A("s_cmp_ge_u32 s%d, 2" % sW)
A("s_cselect_b32 s%d, s%d, s%d" % (sT1, sT0, sT1))
A("s_bfm_b64 %s, %d, 0" % (sr(sH, 2), (CLRB_PER - 1024) // 16))
A("s_cmp_eq_u32 s%d, 1" % sW)
A("s_cselect_b64 %s, %s, -1" % (sr(sH, 2), sr(sH, 2)))
NCL = NOCT * 4 // 16
A("v_mov_b32 v19, v%d" % vL16)
A("s_cmp_lg_u32 s%d, 3" % sW)
A("s_cbranch_scc1 Lm_c3")
C("wave 3: this workgroup's table slots")
A("s_mul_i32 s%d, s2, %d" % (sT0, NOCT * 4))
A("s_add_u32 s%d, s%d, %d" % (sT0, sT0, XENT * 4))
A("v_add_u32 v19, s%d, v19" % sT0)
A("s_lshl_b32 s%d, s2, 4" % sT0)
if XENT: A("v_writelane_b32 v19, s%d, %d" % (sT0, NCL))
A("s_mov_b32 s%d, %s" % (sT1, hx(TB)))
A("s_mov_b64 %s, %d" % (sr(sH, 2), (1 << (NCL + (1 if XENT else 0))) - 1))
LB("Lm_c3")
A("s_mov_b64 exec, %s" % sr(sH, 2))
A("buffer_store_dwordx4 %s, v19, %s, s%d offen sc1" % (vr(W, 4), sr(sWS, 4), sT1))
A("s_mov_b64 exec, -1")

common_addr()
A("s_add_u32 s%d, s%d, s%d" % (sQS, sQS, sGR))
A("s_add_u32 s%d, s%d, %d" % (sQS, sQS, Q1_OFF))
wtile_voff(10, 22)
A("v_and_b32 v19, 7, v%d" % vLANE)
A("v_lshrrev_b32 v25, 2, v%d" % vLANE)
A("v_lshlrev_b32 v25, 7, v25")
A("v_lshl_add_u32 v%d, v18, 2, v25" % vOST)
A("v_lshlrev_b32 v25, 7, v16")
A("v_lshl_add_u32 v%d, v19, 4, v25" % vOLD)
C("lanes n>=8 of the first two o loads fetch the lse values instead: offset relative to the o block")
A("s_mul_i32 s%d, s%d, %d" % (sT0, sA, 128 - 8192))
A("s_mul_i32 s%d, s%d, %d" % (sT1, sW, 32 - 2048))
A("s_add_u32 s%d, s%d, s%d" % (sT0, sT0, sT1))
A("s_add_u32 s%d, s%d, %d" % (sT0, sT0, LSE_OFF[0] - O_OFF[0]))
A("v_add_u32 v25, s%d, v%d" % (sT0, vLSE))
A("v_xor_b32 v26, 16, v25")
A("v_add_u32 v26, -512, v26")
A("v_cmp_gt_u32 vcc, 8, v17")
A("s_nop 1")
A("v_cndmask_b32 v%d, v25, v%d, vcc" % (vLSE, vOLD))
A("v_cndmask_b32 v%d, v26, v%d, vcc" % (vLS2, vOLD))
A("v_lshlrev_b32 v%d, 1, v%d" % (vPST, vLANE))
A("v_lshlrev_b32 v25, 3, v16")
A("v_lshl_add_u32 v%d, v19, 4, v25" % vX1S)
A("s_mul_i32 s%d, s%d, %d" % (sT0, sW, RBS))
A("s_add_u32 s%d, s%d, %d" % (sT0, sT0, L_RB))
A("v_mul_u32_u24 v25, 528, v18")
A("v_lshl_add_u32 v25, v16, 4, v25")
A("v_lshrrev_b32 v26, 2, v17")
A("v_lshl_add_u32 v25, v26, 7, v25")
A("v_add_u32 v%d, s%d, v25" % (vRBW, sT0))
A("s_mul_i32 s%d, s%d, 528" % (sT0, sW))
A("s_add_u32 s%d, s%d, %d" % (sT0, sT0, L_RB))
A("v_lshlrev_b32 v25, 3, v%d" % vLANE)
A("v_add_u32 v%d, s%d, v25" % (vRBR, sT0))
A("s_lshl_b32 s%d, s%d, 3" % (sT0, sW))
A("s_add_u32 s%d, s%d, %d" % (sT0, sT0, L_ML))
A("v_lshlrev_b32 v25, 5, v18")
A("v_add_u32 v%d, s%d, v25" % (vMLW, sT0))
A("s_lshl_b32 s%d, s%d, 5" % (sT0, sW))
A("s_add_u32 s%d, s%d, %d" % (sT0, sT0, L_ML))
A("v_mov_b32 v%d, s%d" % (vMLR, sT0))
A("v_mov_b32 v25, 0x3f80")
A("v_mov_b32 v26, 0x3f800000")
for r in range(4):
    A("v_cmp_eq_u32 vcc, %d, v17" % (2 * r))
    A("v_cmp_eq_u32 %s, %d, v17" % (sr(sH, 2), 2 * r + 1))
    A("s_nop 0")
    A("v_cndmask_b32 v%d, 0, v25, vcc" % (SEL + r))
    A("v_cndmask_b32 v%d, v%d, v26, %s" % (SEL + r, SEL + r, sr(sH, 2)))
for i in range(16): A("v_mov_b32 v%d, 0" % (PM + i))
for p in range(4):
    A("s_mov_b32 s%d, %s" % (sPM + 2 * p, hx(0x000f000f << (4 * p))))
    A("s_mov_b32 s%d, %s" % (sPM + 2 * p + 1, hx(0x000f000f << (4 * p))))
soff(sOS, [(sW, 13), (sA, 11), (sC, 4), (sJ, 17)], O_OFF[0])
soff(sOL, [(sA, 13), (sW, 11), (sJ, 17)], O_OFF[0])
A("s_add_u32 s%d, s%d, %s" % (sQL, sOL, hx(Q0_OFF - O_OFF[0])))
soff(sLS, [(sW, 7), (sA, 5), (sC, 2), (sJ, 17)], LSE_OFF[0])
soff(sPS, [(sW, 15), (sC, 12), (sJ, 9), (sA, 7)], PB)
A("s_mov_b32 s%d, %s" % (sSC, hx(f2u(128 ** -0.5 * math.log2(math.e)))))
A("s_getreg_b32 s%d, hwreg(HW_REG_XCC_ID, 0, 3)" % sXCC)
C("first q projection")
A("s_sub_u32 s%d, s%d, s%d" % (sIT, sQS, sGR))
A("s_lshl_b32 s%d, s%d, 1" % (sIT, sIT))
A("s_add_u32 s%d, s%d, s%d" % (sIT, sIT, sGR))
A("s_add_u32 s%d, s%d, %s" % (sIT, sIT, hx(Q0_OFF - 2 * Q1_OFF)))
A("v_lshlrev_b32 v21, 1, v%d" % vQST)
STAMP(12)
if DIAG: A("v_mov_b32 v31, v30")
A("s_waitcnt vmcnt(%d)" % (4 + D1 + 1))
A("s_branch Llnq")
LB("Lq_first")
A("s_waitcnt vmcnt(%d) lgkmcnt(0)" % (D1 + 1))
lds_arrive(0, vT + 4)
for i in range(D1, D2): kv_issue(i)
tags()
A("s_or_b32 s%d, s%d, s%d" % (sXCC, sXCC, sTG2))
lds_spin(0, 8, vT + 4)
wqf_reads()
A("s_waitcnt lgkmcnt(0)")
A("s_branch Lq_go")
LB("Lh_qst")
A("v_mov_b32 v%d, s%d" % (W + 6, sTG1))
A("v_mov_b32 v%d, s%d" % (W + 7, sXCC))
A("buffer_store_dwordx4 %s, v21, %s, s%d offen%s" % (vr(W + 4, 4), sr(sWS, 4), sIT, "" if int(OPT.get("fast", 1)) else " sc1"))
A("s_add_u32 s%d, s%d, %s" % (sIT, sIT, hx(QB_DELTA)))
A("buffer_store_dwordx4 %s, v21, %s, s%d offen sc1" % (vr(W + 4, 4), sr(sWS, 4), sIT))
A("s_mov_b64 exec, -1")
STAMP(14)
MP("mq")
A("v_lshrrev_b32 v16, 4, v%d" % vLANE)
A("v_and_b32 v17, 15, v%d" % vLANE)
A("v_xor_b32 v24, v16, v17")
A("v_lshlrev_b32 v24, 4, v24")
A("v_lshl_add_u32 v24, v17, 8, v24")
A("s_lshl_b32 s%d, s%d, 13" % (sT1, sW))
A("s_add_u32 s%d, s%d, %d" % (sT2, sT1, L_K))
for t in range(4): A("v_xor_b32 v%d, %d, v24" % (18 + t, 64 * t))
for t in range(4): A("v_add_u32 v%d, s%d, v%d" % (18 + t, sT2, 18 + t))
VA = W + 32
A("v_lshrrev_b32 v24, 2, v%d" % vLANE)
A("v_and_b32 v25, 7, v24")
A("v_lshlrev_b32 v25, 1, v25")
A("v_bfe_u32 v26, v%d, 1, 1" % vLANE)
A("v_xor_b32 v25, v25, v26")
A("v_lshlrev_b32 v25, 4, v25")
A("v_lshl_add_u32 v25, v24, 8, v25")
A("v_and_b32 v26, 1, v%d" % vLANE)
A("v_lshl_add_u32 v25, v26, 3, v25")
A("s_add_u32 s%d, s%d, %d" % (sT2, sT1, L_V))
for t in range(8): A("v_xor_b32 v%d, %d, v25" % (VA + t, 32 * t))
for t in range(8): A("v_add_u32 v%d, s%d, v%d" % (VA + t, sT2, VA + t))
soff(sT4, [(sJ, 19), (sA, 17), (sW, 15), (sC, 7)], 0)
A("s_lshl_b32 s%d, s%d, 12" % (sT5, sW))
A("s_add_u32 s%d, s%d, %d" % (sT5, sT5, L_WO))
soff(sT3, [(sA, 10), (sC, 7)], 0)
A("v_lshlrev_b32 v24, 5, v%d" % vLANE)
A("s_lshl_b32 s%d, s%d, 10" % (sT2, sW))
A("s_add_u32 s%d, s%d, %d" % (sT2, sT2, L_QF))
A("v_add_u32 v25, s%d, v%d" % (sT2, vL16))
A("v_add_u32 v26, %d, v%d" % (L_QF, vL16))
QP = W
def q0_issue(QP=QP):
    A("buffer_load_dwordx4 %s, v24, %s, s%d offen sc1" % (vr(QP, 4), sr(sWS, 4), sQL))
    A("buffer_load_dwordx4 %s, v24, %s, s%d offen offset:16 sc1" % (vr(QP + 4, 4), sr(sWS, 4), sQL))
def flag_block():
    if True:
        A("s_cmp_lg_u32 s%d, 0" % sW)
        A("s_cbranch_scc1 Lnoflag")
        C("every sentinel store of this workgroup is acknowledged: announce it")
        lds_spin(8, 4, vT)
        A("v_mov_b32 v16, s%d" % sTG1)
        A("v_mov_b32 v17, s%d" % sXCC)
        soff(sT1, [(2, 4)], FB)
        A("s_mov_b64 exec, 1")
        A("buffer_store_dwordx2 v[16:17], v%d, %s, s%d offen sc1" % (PM, sr(sWS, 4), sT1))
        A("s_mov_b64 exec, -1")
        LB("Lnoflag")
ycl = D2 - D1 + 2; st_arr = st_fl = False
for i in range(D2, 16):
    dp = DEPTH
    if i == 16 - QV:
        A("s_waitcnt vmcnt(%d)" % (dp - 2)); q0_issue(); ycl += 2
    A("s_waitcnt vmcnt(%d)" % (dp - 1))
    if EFL:
        if st_arr and not st_fl:
            flag_block(); st_fl = True
        if not st_arr and ycl >= dp - 1:
            lds_arrive(8, vT); st_arr = True
    kv_issue(i); ycl += 1
q0_issue(QP + 8)
C("everything older than the V loads is complete: K, late sentinels")
assert not QV2
A("s_waitcnt vmcnt(%d)" % int(OPT.get("kw", 14)))
if EFL: assert st_fl
else: lds_arrive(8, vT)
STAMP(1)
for t in range(4):
    for T in range(2):
        A("ds_read_b128 %s, v%d offset:%d" % (vr(KF + 16 * T + 4 * t, 4), 18 + t, 4096 * T))
if "dump" in OPT:
    A("s_waitcnt lgkmcnt(0)")
    soff(sT1, [(2, 15), (sW, 13)], 0x1000000)
    for k in range(8):
        A("buffer_store_dwordx4 %s, v%d, %s, s%d offen" % (vr(KF + 4 * k, 4), vL16, sr(sWS, 4), sT1))
        A("s_add_u32 s%d, s%d, 1024" % (sT1, sT1))
    A("s_waitcnt vmcnt(0)")
if not EFL: flag_block()
def wait_w0(n):
    if EFL:
        A("s_waitcnt vmcnt(%d)" % n); return
    uid[0] += 1
    A("s_cmp_eq_u32 s%d, 0" % sW)
    A("s_cbranch_scc1 Lww%d" % uid[0])
    A("s_waitcnt vmcnt(%d)" % n)
    LB("Lww%d" % uid[0])
    A("s_waitcnt vmcnt(%d)" % (n + 1))
wait_w0(QV + 2 + (2 if QV2 else 0))
STAMP(2)
A("s_setprio 2")
A("s_mov_b32 s%d, %s" % (sCNT, hx(SPIN)))
A("s_mov_b32 s%d, 0" % sY)
A("s_mov_b32 s%d, 0" % sIT)
LB("Lmq")
A("v_and_b32 v16, -8, v%d" % (QP + 3))
A("v_and_b32 v17, -8, v%d" % (QP + 7))
A("v_cmp_ne_u32 vcc, s%d, v%d" % (sTG1, QP + 2))
A("v_cmp_ne_u32 %s, s%d, v%d" % (sr(sRET, 2), sTG1, QP + 6))
A("s_or_b64 vcc, vcc, %s" % sr(sRET, 2))
A("v_cmp_ne_u32 %s, s%d, v16" % (sr(sRET, 2), sTG2))
A("s_or_b64 vcc, vcc, %s" % sr(sRET, 2))
A("v_cmp_ne_u32 %s, s%d, v17" % (sr(sRET, 2), sTG2))
A("s_or_b64 vcc, vcc, %s" % sr(sRET, 2))
if not int(OPT.get("nochk", 0)): A("s_cbranch_vccnz Lmqr")
LB("Lmqd")
if DIAG:
    A("s_sub_u32 s%d, s%d, s%d" % (sT0, sCNT, sY)); A("v_writelane_b32 v31, s%d, 0" % sT0)
Ls = L; L = []
L.append(".p2align 6"); LB("Lst_mq"); A("s_setpc_b64 %s" % sr(sRET, 2))
LB("Lmqr")
A("s_cmp_lg_u32 s%d, 0" % sY)
A("s_cbranch_scc1 Lmqr2")
if QV2:
    A("s_cmp_lg_u32 s%d, 0" % sIT)
    A("s_cbranch_scc1 Lmqr1")
    A("s_mov_b32 s%d, 1" % sIT)
    wait_w0(QV2 + 2)
    for k in range(8): A("v_mov_b32 v%d, v%d" % (QP + k, XR + k))
    A("s_branch Lmq")
    LB("Lmqr1")
C("first look failed: take the second one (V has landed with it: request its fragments now)")
A("s_waitcnt vmcnt(0)")
A("s_mov_b32 s%d, 1" % sY)
for k in range(8): A("v_mov_b32 v%d, v%d" % (QP + k, QP + 8 + k))
if not VLATE:
    for t in range(8):
        for hf in range(2):
            A("ds_read_b64_tr_b16 %s, v%d offset:%d" % (vr(VF + 4 * t + 2 * hf, 2), VA + t, 4096 * hf))
A("s_branch Lmq")
LB("Lmqr2")
C("still not there: poll the plain copy a few times, then both copies in turn")
A("s_cmp_le_u32 s%d, %s" % (sCNT, hx(SPIN - 6)))
A("s_cselect_b32 s%d, %s, 0" % (sT0, hx(QB_DELTA)))
A("s_xor_b32 s%d, s%d, s%d" % (sQL, sQL, sT0))
q0_issue()
A("s_waitcnt vmcnt(0)")
A("s_sub_u32 s%d, s%d, 1" % (sCNT, sCNT))
A("s_cbranch_scc0 Lmq")
A("s_branch Lmqd")
ool.append(L); L = Ls
A("v_cmp_ne_u32 vcc, s%d, v%d" % (sXCC, QP + 3))
A("v_mov_b32 v%d, v%d" % (QP + 2, QP + 4))
A("v_mov_b32 v%d, v%d" % (QP + 3, QP + 5))
A("ds_write_b128 v25, %s" % vr(QP, 4))
A("s_cmp_eq_u64 vcc, 0")
A("s_cselect_b32 s%d, 1, 0x101" % sT0)
A("v_mov_b32 v16, s%d" % sT0)
A("s_waitcnt lgkmcnt(0)")
lds_arrive(4, 16, None)
if VLATE:
    A("s_cmp_eq_u32 s%d, 0" % sY)
    A("s_cbranch_scc1 Lnvf")
    for t in range(8):
        for hf in range(2):
            A("ds_read_b64_tr_b16 %s, v%d offset:%d" % (vr(VF + 4 * t + 2 * hf, 2), VA + t, 4096 * hf))
    LB("Lnvf")
STAMP(15)
A("buffer_load_dwordx2 %s, v%d, %s, s%d offen" % (vr(RES + 2, 2), vX1S, sr(sX, 4), sT3))
FLG = W + 44
soff(sIT, [(sW, 10)], FB)
soff(sQL, [(sA, 12), (sJ, 17)], Q1_OFF)
for k in range(4):
    A("s_add_u32 s%d, s%d, %d" % (sT0, sC, k))
    A("s_and_b32 s%d, s%d, 3" % (sT0, sT0))
    A("s_lshl_b32 s%d, s%d, 10" % (sKO + k, sT0))
A("s_and_b32 s%d, s%d, 1" % (sT0, sC))
A("s_lshl_b32 s%d, s%d, 6" % (sT0, sT0))
A("v_xor_b32 v22, s%d, v22" % sT0); A("v_xor_b32 v23, s%d, v23" % sT0)
A("s_lshl_b32 s%d, s%d, 2" % (sT3, sM))
A("s_add_u32 s%d, s%d, s%d" % (sT3, sT3, sW))
A("s_lshl_b32 s%d, s%d, 8" % (sT3, sT3))
A("v_lshlrev_b32 v21, 7, v%d" % vLANE)
A("v_add_u32 v21, s%d, v21" % sT3)
A("s_lshl_b32 s%d, s%d, 7" % (sT0, sW))
A("s_add_u32 s%d, s%d, %d" % (sT0, sT0, LSE_OFF[0]))
A("v_writelane_b32 v21, s%d, 2" % sT0)
if TB2 == 2:
    A("s_lshl_b32 s%d, s%d, 1" % (sT3, sT3))
    for k in range(4):
        A("s_add_u32 s%d, s%d, %d" % (sT0, sT3, CLRB_OFF + 128 * k))
        A("v_writelane_b32 v21, s%d, %d" % (sT0, 3 + k))
lds_spin(4, 4, vT, mask=0xff)
A("s_cmp_lt_u32 s%d, 256" % sT1)
A("s_cselect_b32 s%d, %d, 0" % (sFAST, int(OPT.get("fast", 1))))
QF = W + 16
for t in range(4):
    A("ds_read_b128 %s, v26 offset:%d" % (vr(QF + 4 * t, 4), 1024 * t))
S = W
qk = []
for t in range(4):
    for T in range(2):
        qk.append(mf(S + 4 * T, KF + 16 * T + 4 * t, QF + 4 * t, None if t == 0 else S + 4 * T))
for t in range(4):
    A("s_waitcnt lgkmcnt(%d)" % (3 - t))
    A(qk[2 * t]); A(qk[2 * t + 1])
def wo_issue():
    C("every wave holds its K fragments: the wo tile may land in the K area")
    for k in range(4):
        A("s_add_u32 m0, s%d, s%d" % (sT5, sKO + k))
        A("s_lshl3_add_u32 s%d, s%d, s%d" % (sT0, sKO + k, sT4))
        A("buffer_load_dwordx4 v%d, %s, s%d offen nt lds" % (22 + (k & 1), sr(sWO, 4), sT0))
if WOP == 0: wo_issue()
if PRET:
    C("bring the first layer's o / lse lines (their sentinels are in place) into L2")
    A("s_mov_b64 exec, %d" % (127 if TB2 == 2 else 7))
    A("buffer_load_dword v%d, v21, %s, s%d offen sc1" % (W + 40, sr(sWS, 4), sGR))
    A("s_mov_b64 exec, -1")
STAMP(3)
A("s_branch Lk_go")

LB("Llnq")
C("LayerNorm of the row held in XR, then q partial = xn @ wq tile")
X = W
row_stats(XR, vT, X)
A("v_add_f32 v%d, %s, v%d" % (vT + 1, EPS, vT + 1))
A("v_rsq_f32 v%d, v%d" % (vT + 2, vT + 1))
A("s_cmp_eq_u32 s%d, 0" % sLAY)
A("v_mul_f32 v%d, v%d, v%d" % (vT + 3, vT, vT + 2))
for i in range(4):
    A("v_pk_fma_f32 %s, %s, %s, %s op_sel:[0,0,1] op_sel_hi:[1,0,1] neg_lo:[0,0,1] neg_hi:[0,0,1]" % (vr(X + 2 * i, 2), vr(X + 2 * i, 2), vr(vT + 2, 2), vr(vT + 2, 2)))
for i in range(4):
    A("v_cvt_pk_bf16_f32 v%d, v%d, v%d" % (X + 8 + i, X + 2 * i, X + 2 * i + 1))
A("ds_write_b128 v%d, %s" % (vXNW, vr(X + 8, 4)))
A("s_cbranch_scc1 Lq_first")
A("s_waitcnt lgkmcnt(0)")
A("s_barrier")
LB("Lq_go")
BF = W + 16
for t in range(4):
    A("ds_read_b128 %s, v%d offset:%d" % (vr(BF + 4 * t, 4), vXNR, 64 * t))
for t in range(4):
    A("s_waitcnt lgkmcnt(%d)" % (3 - t))
    mfma(W, WQF + 4 * t, BF + 4 * t, None if t == 0 else W)
A("s_cmp_eq_u32 s%d, 0" % sLAY)
A("s_mov_b64 exec, %s" % sr(sMSK, 2))
NOP(6)
A("v_cvt_pk_bf16_f32 v%d, v%d, v%d" % (W + 4, W, W + 1))
A("v_cvt_pk_bf16_f32 v%d, v%d, v%d" % (W + 5, W + 2, W + 3))
A("s_cbranch_scc1 Lh_qst")
fastcmp()
store_local("buffer_store_dwordx2", vr(W + 4, 2), vQST, sQS)
A("s_mov_b64 exec, -1")
A("ds_write_b128 v%d, %s offset:%d" % (vXNW, vr(XR, 4), L_X2 - L_XN))
A("s_mov_b32 s%d, 0" % sY)
for s, d in [(sOL, O_OFF[1] - O_OFF[0]), (sOS, O_OFF[1] - O_OFF[0]), (sLS, LSE_OFF[1] - LSE_OFF[0]), (sPS, P_L)]:
    A("s_add_u32 s%d, s%d, %d" % (s, s, d))
STAMP(2)

C("attention over this workgroup's 128 keys")
if QS:
    C("each wave fetches one k-step of q and shares it through LDS")
    A("s_lshl_b32 s%d, s%d, 10" % (sT3, sW))
    A("s_add_u32 s%d, s%d, s%d" % (sT4, sQL, sT3))
    A("s_add_u32 s%d, s%d, %d" % (sT3, sT3, L_RB + 12288))
    A("v_add_u32 v25, s%d, v%d" % (sT3, vL16))
    A("v_add_u32 v26, %d, v%d" % (L_RB + 12288, vL16))
    ppoll(lambda k: A("buffer_load_dwordx4 %s, v%d, %s, s%d offen sc1" % (vr(W + 32 + 4 * k, 4), vL16, sr(sWS, 4), sT4)),
          lambda k: range(W + 32 + 4 * k, W + 36 + 4 * k), 1, vT, lambda k: ["ds_write_b128 v25, %s" % vr(W + 32 + 4 * k, 4)], pre=QPRE, gap=QGAP, tag=0)
    A("s_waitcnt lgkmcnt(0)")
    A("s_barrier")
    for t in range(4):
        A("ds_read_b128 %s, v26 offset:%d" % (vr(QF + 4 * t, 4), 1024 * t))
    for t in range(4):
        A("s_waitcnt lgkmcnt(%d)" % (3 - t))
        A(qk[2 * t]); A(qk[2 * t + 1])
    touch_stub("k")
else:
    def iq(k):
        for t in range(4):
            A("buffer_load_dwordx4 %s, v%d, %s, s%d offen offset:%d sc1" % (vr(QF + 16 * k + 4 * t, 4), vL16, sr(sWS, 4), sQL, 1024 * t))
    def qks(k):
        return [mf(S + 4 * T, KF + 16 * T + 4 * t, QF + 16 * k + 4 * t, None if t == 0 else S + 4 * T) for t in range(4) for T in range(2)]
    ppoll(iq, lambda k: range(QF + 16 * k, QF + 16 * k + 16), 4, vT, qks, pre=QPRE, gap=QGAP, tag=0, stub="k", per_load=lambda k, i: qks(k)[2 * i:2 * i + 2])
STAMP(3)
LB("Lk_go")
NOP(5)
for ctl in ["row_ror:4", "row_ror:8"]:
    for i in range(8):
        A("v_add_f32_dpp v%d, v%d, v%d %s row_mask:0xf bank_mask:0xf" % (S + i, S + i, S + i, ctl))
A("v_max3_f32 v%d, v%d, v%d, v%d" % (vT, S, S + 1, S + 2))
A("v_max3_f32 v%d, v%d, v%d, v%d" % (vT + 1, S + 3, S + 4, S + 5))
A("v_max3_f32 v%d, v%d, v%d, v%d" % (vT, vT, S + 6, S + 7))
A("v_max_f32 v%d, v%d, v%d" % (vT, vT, vT + 1))
A("v_mov_b32 v%d, v%d" % (vT + 1, vT))
A("s_nop 1")
A("v_permlane16_swap_b32 v%d, v%d" % (vT, vT + 1))
A("v_max_f32 v%d, v%d, v%d" % (vT, vT, vT + 1))
A("v_mov_b32 v%d, v%d" % (vT + 1, vT))
A("s_nop 1")
A("v_permlane32_swap_b32 v%d, v%d" % (vT, vT + 1))
A("v_max_f32 v%d, v%d, v%d" % (vT, vT, vT + 1))
A("v_mul_f32 v%d, s%d, v%d" % (vT + 2, sSC, vT))
for i in range(8):
    A("v_fma_f32 v%d, v%d, s%d, -v%d" % (S + i, S + i, sSC, vT + 2))
for i in range(8):
    A("v_exp_f32 v%d, v%d" % (S + i, S + i))
for p in range(4):
    A("s_mov_b64 exec, %s" % sr(sPM + 2 * p, 2))
    for i in range(4):
        A("v_cvt_pk_bf16_f32 v%d, v%d, v%d" % (PM + 4 * p + i, S + 2 * i, S + 2 * i + 1))
A("s_mov_b64 exec, -1")
STAMP(4)
A("s_cmp_lg_u32 s%d, 0" % sLAY)
A("s_cbranch_scc1 Lv_go")
wait_w0((5 if WOP == 0 else 1) + PRET)
if WOP == 1: wo_issue()
A("buffer_load_dwordx4 %s, v%d, %s, s%d offen sc1" % (vr(FLG, 4), vL16, sr(sWS, 4), sIT))
STAMP(6)
A("s_cmp_lg_u32 s%d, 0" % sY)
A("s_cbranch_scc1 Lv_have")
for t in range(8):
    for hf in range(2):
        A("ds_read_b64_tr_b16 %s, v%d offset:%d" % (vr(VF + 4 * t + 2 * hf, 2), VA + t, 4096 * hf))
A("s_waitcnt lgkmcnt(0)")
LB("Lv_have")
if TOT:
    A("s_memrealtime s[42:43]"); A("s_waitcnt lgkmcnt(0)"); A("s_mov_b32 s97, s42")
MP("pv")
if MEAS and OPT["q"] in ("tg", "s1"): A("s_mov_b32 s97, s98")
A("s_cmp_lg_u32 s%d, 0" % sLAY)
LB("Lv_go")
OA = W + 8
mfma(W + 16, ONES, PM, None)
for p in range(4):
    for T in range(2):
        mfma(OA + 4 * T, VF + 4 * (2 * p + T), PM + 4 * p, None if p == 0 else OA + 4 * T)
A("s_mov_b64 exec, %s" % sr(sMSK, 2))
A("v_mov_b32 v%d, v%d" % (vT + 3, W + 16))
A("ds_write_b64 v%d, %s" % (vMLW, vr(vT + 2, 2)))
A("s_mov_b64 exec, -1")
NOP(3)
A("ds_write_b128 v%d, %s" % (vRBW, vr(OA, 4)))
A("ds_write_b128 v%d, %s offset:64" % (vRBW, vr(OA + 4, 4)))
A("s_waitcnt lgkmcnt(0)")
A("s_cbranch_scc1 Lrb_bar")
lds_arrive(12, vT + 4)
if WOP == 2: wo_issue()
lds_spin(12, 4, vT + 4)
A("s_branch Lrb_go")
LB("Lrb_bar")
A("s_barrier")
LB("Lrb_go")
A("ds_read_b128 %s, v%d" % (vr(W, 4), vMLR))
A("ds_read_b128 %s, v%d offset:16" % (vr(W + 4, 4), vMLR))
for w in range(4):
    A("ds_read_b64 %s, v%d offset:%d" % (vr(W + 8 + 2 * w, 2), vRBR, RBS * w))
A("v_mov_b32 v%d, 0" % (vT + 4))
fastcmp()
A("s_waitcnt lgkmcnt(4)")
A("v_max3_f32 v%d, v%d, v%d, v%d" % (vT, W, W + 2, W + 4))
A("v_max_f32 v%d, v%d, v%d" % (vT, vT, W + 6))
for w in range(4): A("v_sub_f32 v%d, v%d, v%d" % (W + 2 * w, W + 2 * w, vT))
for w in range(4): A("v_exp_f32 v%d, v%d" % (W + 2 * w, W + 2 * w))
A("v_mul_f32 v%d, v%d, v%d" % (vT + 1, W, W + 1))
for w in range(1, 4): A("v_fmac_f32 v%d, v%d, v%d" % (vT + 1, W + 2 * w, W + 2 * w + 1))
A("s_waitcnt lgkmcnt(0)")
A("v_pk_mul_f32 %s, %s, %s op_sel_hi:[1,0]" % (vr(W + 8, 2), vr(W + 8, 2), vr(W, 2)))
A("v_rcp_f32 v%d, v%d" % (vT + 2, vT + 1))
A("v_pk_fma_f32 %s, %s, %s, %s op_sel_hi:[1,0,1]" % (vr(W + 8, 2), vr(W + 10, 2), vr(W + 2, 2), vr(W + 8, 2)))
A("v_log_f32 v%d, v%d" % (vT + 5, vT + 1))
for w in range(2, 4):
    A("v_pk_fma_f32 %s, %s, %s, %s op_sel_hi:[1,0,1]" % (vr(W + 8, 2), vr(W + 8 + 2 * w, 2), vr(W + 2 * w, 2), vr(W + 8, 2)))
A("v_pk_mul_f32 %s, %s, %s op_sel_hi:[1,0]" % (vr(W + 8, 2), vr(W + 8, 2), vr(vT + 2, 2)))
A("v_add_f32 v%d, v%d, v%d" % (vT + 5, vT + 5, vT))
A("v_cvt_pk_bf16_f32 v%d, v%d, v%d" % (W + 8, W + 8, W + 9))
store_local("buffer_store_dword", "v%d" % (W + 8), vOST, sOS)
A("s_mov_b64 exec, 1")
store_local("buffer_store_dword", "v%d" % (vT + 5), vT + 4, sLS)
A("s_mov_b64 exec, -1")
STAMP(5)

C("wo phase: wave = batch, rows = key splits")
OF = W; LS = W + 32; DA = WQF
assert LSE_OFF[1] - O_OFF[1] == LSE_OFF[0] - O_OFF[0]
def io(k):
    for t in range(4):
        A("buffer_load_dwordx4 %s, v%d, %s, s%d offen offset:%d sc1" % (vr(OF + 16 * k + 4 * t, 4), [vLSE, vLS2, vOLD, vOLD][t], sr(sWS, 4), sOL, 512 * t))
A("s_cmp_lg_u32 s%d, 0" % sLAY)
A("s_cbranch_scc1 Lo_go")
C("first layer: wo tile landed -> fragments; every workgroup has announced its clears")
if WOP == 3: wo_issue()
A("s_waitcnt vmcnt(%d)" % (2 if WOP < 3 else 0))
STAMP(13)
A("s_mov_b32 s%d, %s" % (sT4, hx(SPIN)))
LB("Lap")
A("v_and_b32 v24, -8, v%d" % (FLG + 1))
A("v_cmp_ne_u32 vcc, s%d, v%d" % (sTG1, FLG))
A("v_cmp_ne_u32 %s, s%d, v24" % (sr(sH, 2), sTG2))
A("s_or_b64 vcc, vcc, %s" % sr(sH, 2))
A("s_cbranch_vccnz Lar")
LB("Lad")
lds_arrive(16, 24)
for i in range(2):
    A("v_lshlrev_b32 v%d, 16, v%d" % (W + 40 + 2 * i, RES + 2 + i))
    A("v_and_b32 v%d, 0xffff0000, v%d" % (W + 41 + 2 * i, RES + 2 + i))
for i in range(4): A("v_mov_b32 v%d, v%d" % (RES + i, W + 40 + i))
for ct in range(4): A("v_xor_b32 v%d, %d, v%d" % (W + 40 + ct, 32 * ct, vWT))
for ct in range(4): A("v_add_u32 v%d, %d, v%d" % (W + 40 + ct, L_WO, W + 40 + ct))
lds_spin(16, 4, 24)
STAMP(14)
A("s_mov_b32 s%d, 1" % sY)
LB("Lo_go")
A("s_mov_b32 s%d, 0x55555555" % sT4)
A("s_mov_b32 s%d, 0x55555555" % sT5)
def pre_o():
    A("s_cmp_eq_u32 s%d, 0" % sY)
    A("s_cbranch_scc1 Lo_nof")
    A("s_mov_b32 s%d, 0" % sY)
    for t in range(4):
        for ct in range(4):
            for hf in range(2):
                A("ds_read_b64_tr_b16 %s, v%d offset:%d" % (vr(WOF + 16 * ct + 4 * t + 2 * hf, 2), W + 40 + ct, 4096 * t + 512 * hf))
    LB("Lo_nof")
ool.append(["Lar:", "    s_sleep 4", "    s_lshl_b32 s%d, s%d, 10" % (sT5, sW), "    s_add_u32 s%d, s%d, %s" % (sT5, sT5, hx(FB)),
            "    buffer_load_dwordx4 %s, v%d, %s, s%d offen sc1" % (vr(FLG, 4), vL16, sr(sWS, 4), sT5),
            "    s_waitcnt vmcnt(0)", "    s_sub_u32 s%d, s%d, 1" % (sT4, sT4), "    s_cbranch_scc0 Lap", "    s_branch Lad"])
C("softmax over the 8 key splits: lanes n>=8 hold own lse in OF[0:3], the other four in OF[4:7]")
vU = vT + 2
def wo_all(k, t):
    o = OF + 16 * k
    m = [mf(DA + 4 * ct, o + 4 * t, WOF + 16 * ct + 4 * t, None if t == 0 else DA + 4 * ct) for ct in range(4)]
    va = ["v_max3_f32 v%d, v%d, v%d, v%d" % (vU, o, o + 1, o + 2), "v_max3_f32 v%d, v%d, v%d, v%d" % (vU + 1, o + 3, o + 4, o + 5),
          "v_max3_f32 v%d, v%d, v%d, v%d" % (vU, vU, o + 6, o + 7), "v_max_f32 v%d, v%d, v%d" % (vU, vU, vU + 1)]
    va += ["v_sub_f32 v%d, v%d, v%d" % (LS + i, o + i, vU) for i in range(4)]
    va += ["v_exp_f32 v%d, v%d" % (LS + i, LS + i) for i in range(4)]
    vb = ["v_mov_b32_dpp v%d, v%d row_ror:8 row_mask:0xf bank_mask:0x3" % (LS + i, LS + i) for i in range(4)]
    vb += ["v_add_f32 v%d, v%d, v%d" % (vU, LS, LS + 1), "v_add_f32 v%d, v%d, v%d" % (vU + 1, LS + 2, LS + 3),
           "v_add_f32 v%d, v%d, v%d" % (vU, vU, vU + 1), "v_mov_b32 v%d, v%d" % (vU + 1, vU)]
    f = {0: [], 1: va[:4], 2: va[4:], 3: vb}[t]
    out = ["s_waitcnt lgkmcnt(%d)" % [15, 15, 8, 0][t]] if t != 1 else []
    for x in m:
        out.append(x)
        for _ in range(2):
            if f: out.append(f.pop(0))
    return out
assert PROG and OGAP < 0
ppoll(io, lambda k: range(OF + 16 * k, OF + 16 * k + 16), 4, vT, None, pre=OPRE, gap=OGAP, mid=pre_o, tag=1, per_load=wo_all)
if TPF == 3 or HG == 1: lds_arrive(60, vT + 4)
STAMP(7)
A("v_permlane16_swap_b32 v%d, v%d" % (vU, vU + 1))
A("v_mul_f32 v%d, v%d, v%d" % (DA, DA, LS))
A("v_add_f32 v%d, v%d, v%d" % (vT, vU, vU + 1))
A("v_mul_f32 v%d, v%d, v%d" % (DA + 4, DA + 4, LS))
A("v_rcp_f32 v%d, v%d" % (vT, vT))
A("v_mul_f32 v%d, v%d, v%d" % (DA + 8, DA + 8, LS))
for i in range(1, 4):
    for ct in range(3):
        A("v_fmac_f32 v%d, v%d, v%d" % (DA + 4 * ct, DA + 4 * ct + i, LS + i))
    if i == 1: A("v_mul_f32 v%d, v%d, v%d" % (DA + 12, DA + 12, LS))
for i in range(1, 4): A("v_fmac_f32 v%d, v%d, v%d" % (DA + 12, DA + 12 + i, LS + i))
A("v_permlane16_swap_b32 v%d, v%d" % (DA, DA + 4))
A("s_nop 0")
A("v_permlane16_swap_b32 v%d, v%d" % (DA + 8, DA + 12))
A("v_add_f32 v%d, v%d, v%d" % (DA, DA, DA + 4))
A("v_add_f32 v%d, v%d, v%d" % (DA + 8, DA + 8, DA + 12))
A("s_nop 1")
A("v_permlane32_swap_b32 v%d, v%d" % (DA, DA + 8))
A("v_mul_f32 v%d, v%d, v%d" % (DA, DA, vT))
A("s_cmp_lg_u32 s%d, 0" % sLAY)
A("s_nop 0")
A("v_mov_b32_dpp v%d, v%d quad_perm:[1,0,3,2] row_mask:0xf bank_mask:0xf" % (DA + 1, DA))
A("s_mov_b64 exec, %s" % sr(sT4, 2))
A("v_cvt_pk_bf16_f32 v%d, v%d, v%d" % (DA, DA, DA + 1))
A("buffer_store_dword v%d, v%d, %s, s%d offen sc1" % (DA, vPST, sr(sWS, 4), sPS))
A("s_mov_b64 exec, -1")
STAMP(8)
A("s_cbranch_scc1 Lfinal")
MP("p0")

if PRET and TB2 == 0:
    C("same for the remaining lines of the group's mailboxes")
    soff(sT1, [(sM, 11), (sW, 9), (sJ, 17)], CLRB_OFF)
    A("v_lshlrev_b32 v21, 7, v%d" % vLANE)
    A("s_mov_b64 exec, 15")
    A("buffer_load_dword v%d, v21, %s, s%d offen sc1" % (W + 47, sr(sWS, 4), sT1))
    A("s_mov_b64 exec, -1")
A("s_cmp_lg_u32 s%d, 0" % sW)
A("s_cbranch_scc1 %s" % ("Ltabdone" if HG else "Ltab"))
C("stage 1 (wave 0): reduce 32 head partials of 64 outputs, add residual, publish x1 slice")
soff(sT1, [(sA, 15), (sC, 12)], PB)
soff(sT2, [(sA, 10), (sC, 7), (sJ, 17)], X1_OFF)
A("s_mov_b32 s%d, 0x00ff00ff" % sT4)
A("s_mov_b32 s%d, 0" % sT5)
def ip(k):
    for i in range(4):
        A("buffer_load_dwordx4 %s, v%d, %s, s%d offen offset:%d sc1" % (vr(W + 20 * k + 4 * i, 4), vL16, sr(sWS, 4), sT1, 1024 * i))
if GW: A("s_waitcnt vmcnt(0)")
ppoll(ip, lambda k: range(W + 20 * k, W + 20 * k + 16), 4, vT, lambda k: [mf(W + 16, SEL, W + 20 * k + 4 * i, None if i == 0 else W + 16) for i in range(4)], pre=GPRE, gap=GGAP, tag=2,
      per_load=lambda k, i: [mf(W + 16, SEL, W + 20 * k + 4 * i, None if i == 0 else W + 16)])
STAMP(9)
MP("s1")
fastcmp()
NOP(3)
for i in range(4):
    A("v_add_f32_dpp v%d, v%d, v%d row_ror:8 row_mask:0xf bank_mask:0xf" % (W + 16 + i, W + 16 + i, W + 16 + i))
A("s_mov_b64 exec, %s" % sr(sT4, 2))
A("v_pk_add_f32 %s, %s, %s" % (vr(W + 16, 2), vr(W + 16, 2), vr(RES, 2)))
A("v_pk_add_f32 %s, %s, %s" % (vr(W + 18, 2), vr(W + 18, 2), vr(RES + 2, 2)))
A("v_cvt_pk_bf16_f32 v%d, v%d, v%d" % (W + 16, W + 16, W + 17))
A("v_cvt_pk_bf16_f32 v%d, v%d, v%d" % (W + 17, W + 18, W + 19))
store_local("buffer_store_dwordx2", vr(W + 16, 2), vX1S, sT2)
A("s_mov_b64 exec, -1")
LB("Ltabdone")
soff(sT3, [(sW, 10), (sJ, 17)], X1_OFF)
def ix(k):
    A("buffer_load_dwordx4 %s, v%d, %s, s%d offen sc1" % (vr([XR, RES][k], 4), vL16, sr(sWS, 4), sT3))
wqf_reads()
ppoll(ix, lambda k: range([XR, RES][k], [XR, RES][k] + 4), 1, vT, lambda k: ["s_waitcnt lgkmcnt(0)", "v_readfirstlane_b32 s%d, v%d" % (sT1, vT + 2)],
      pre=XPRE, gap=XGAP, mid=lambda: A("ds_read_b32 v%d, v%d offset:20" % (vT + 2, vFL)), tag=3,
      fix=["v_mov_b32 v%d, v%d" % (XR + i, RES + i) for i in range(4)])
MP("x1")
A("s_cmp_lt_u32 s%d, %d" % (sT1, 4 if HG else 3))
A("s_cbranch_scc1 Ltw")
LB("Ltwd")
MP("x1t")
STAMP(10)

LB("Lmix")
C("x <- x + g(LN(LN(x))) ; g is tabulated for every bf16 input in range, evaluated directly otherwise")
X = W; HB = W + 8; RT = W + 12; AD = W + 16; Y = W + 24
row_stats(XR, vT, X)
A("v_add_f32 v%d, %s, v%d" % (vT + 2, EPS, vT + 1))
A("v_rsq_f32 v%d, v%d" % (vT + 2, vT + 2))
A("v_mov_b32 v%d, %s" % (vT + 4, hx(LO2 | (LO2 << 16))))
A("s_movk_i32 s%d, %d" % (sT5, NENT * 4))
A("v_mul_f32 v%d, v%d, v%d" % (vT + 1, vT + 1, vT + 2))
A("v_fmaak_f32 v%d, v%d, v%d, %s" % (vT + 1, vT + 1, vT + 2, EPS))
A("v_rsq_f32 v%d, v%d" % (vT + 1, vT + 1))
A("s_nop 0")
A("v_mul_f32 v%d, v%d, v%d" % (vT + 2, vT + 2, vT + 1))
A("v_mul_f32 v%d, v%d, v%d" % (vT + 3, vT, vT + 2))
for i in range(4):
    A("v_pk_fma_f32 %s, %s, %s, %s op_sel:[0,0,1] op_sel_hi:[1,0,1] neg_lo:[0,0,1] neg_hi:[0,0,1]" % (vr(AD + 2 * i, 2), vr(X + 2 * i, 2), vr(vT + 2, 2), vr(vT + 2, 2)))
for i in range(4):
    A("v_cvt_pk_bf16_f32 v%d, v%d, v%d" % (HB + i, AD + 2 * i, AD + 2 * i + 1))
for i in range(4):
    A("v_pk_lshlrev_b16 v%d, 1, v%d op_sel_hi:[0,1]" % (RT + i, HB + i))
    A("v_pk_lshrrev_b16 v%d, 15, v%d op_sel_hi:[0,1]" % (AD + i, HB + i))
for i in range(4):
    A("v_or_b32 v%d, v%d, v%d" % (RT + i, RT + i, AD + i))
for i in range(4):
    A("v_pk_sub_u16 v%d, v%d, v%d" % (RT + i, RT + i, vT + 4))
for i in range(4):
    A("v_lshlrev_b32_sdwa v%d, 2, v%d dst_sel:DWORD dst_unused:UNUSED_PAD src0_sel:DWORD src1_sel:WORD_0" % (AD + 2 * i, RT + i))
    A("v_lshlrev_b32_sdwa v%d, 2, v%d dst_sel:DWORD dst_unused:UNUSED_PAD src0_sel:DWORD src1_sel:WORD_1" % (AD + 2 * i + 1, RT + i))
    A("ds_read_b32 v%d, v%d offset:%d" % (Y + 2 * i, AD + 2 * i, L_TAB))
    A("ds_read_b32 v%d, v%d offset:%d" % (Y + 2 * i + 1, AD + 2 * i + 1, L_TAB))
A("v_max3_u32 v%d, v%d, v%d, v%d" % (vT, AD, AD + 1, AD + 2))
A("v_max3_u32 v%d, v%d, v%d, v%d" % (vT + 1, AD + 3, AD + 4, AD + 5))
A("v_max3_u32 v%d, v%d, v%d, v%d" % (vT, vT, AD + 6, AD + 7))
A("v_max_u32 v%d, v%d, v%d" % (vT, vT, vT + 1))
A("v_cmp_le_u32 %s, s%d, v%d" % (sr(sH, 2), sT5, vT))
A("s_waitcnt lgkmcnt(5)")
A("v_max3_u32 v%d, v%d, v%d, v%d" % (vT, Y, Y + 1, Y + 2))
A("s_waitcnt lgkmcnt(2)")
A("v_max3_u32 v%d, v%d, v%d, v%d" % (vT + 1, Y + 3, Y + 4, Y + 5))
A("s_waitcnt lgkmcnt(0)")
A("v_max3_u32 v%d, v%d, v%d, v%d" % (vT, vT, Y + 6, Y + 7))
A("v_max_u32 v%d, v%d, v%d" % (vT, vT, vT + 1))
A("v_cmp_eq_u32 vcc, -1, v%d" % vT)
LB("Lslowdone")
for i in range(4):
    A("v_pk_add_f32 %s, %s, %s" % (vr(vT + 2 + 2 * i, 2), vr(X + 2 * i, 2), vr(Y + 2 * i, 2)))
A("s_or_b64 vcc, vcc, %s" % sr(sH, 2))
A("s_cbranch_vccnz Lslow")
A("s_cmp_lg_u32 s%d, 0" % sLAY)
for i in range(4):
    A("v_cvt_pk_bf16_f32 v%d, v%d, v%d" % (XR + i, vT + 2 + 2 * i, vT + 3 + 2 * i))
STAMP(11)
A("s_cbranch_scc1 Lout")
A("s_mov_b32 s%d, 1" % sLAY)
if TOT or MEAS: A("s_memrealtime s[100:101]")
if DIAG: A("v_mov_b32 v28, v30")
A("s_branch Llnq")

L.append(".p2align 6"); LB("Lst_fin"); A("s_setpc_b64 %s" % sr(sRET, 2)); stubs.append("fin")
LB("Lfinal")
A("s_cmp_ge_u32 s2, 4")
A("s_cbranch_scc1 Lepoch")
C("workgroup b: reduce the 32 head partials of row b, add x2, mixer, store")
soff(sT1, [(2, 15), (sW, 13)], PB + P_L)
A("s_add_u32 s%d, s%d, 4096" % (sT2, sT1))
A("s_mul_i32 s%d, s2, %d" % (sT0, XS))
A("s_lshl_b32 s%d, s%d, 8" % (sT3, sW))
A("s_add_u32 s%d, s%d, s%d" % (sT0, sT0, sT3))
A("s_add_u32 s%d, s%d, %d" % (sT0, sT0, L_X2))
A("v_add_u32 v%d, s%d, v%d" % (vT + 4, sT0, vX1S))
A("s_add_u32 s%d, s%d, %d" % (sT3, sT3, L_XN))
A("v_add_u32 v%d, s%d, v%d" % (vT + 5, sT3, vX1S))
A("ds_read_b64 %s, v%d" % (vr(PM, 2), vT + 4))
A("ds_read_b64 %s, v%d offset:128" % (vr(PM + 2, 2), vT + 4))
A("s_mov_b32 s%d, 0x00ff00ff" % sT4)
A("s_mov_b32 s%d, 0" % sT5)
if XENT:
    A("s_cmp_lg_u32 s%d, 3" % sW)
    A("s_cbranch_scc1 Lfn3")
    A("ds_read_b32 v%d, v%d offset:48" % (vT, vFL))
    A("s_waitcnt lgkmcnt(0)")
    A("v_readfirstlane_b32 s%d, v%d" % (sT0, vT))
    A("s_cmp_eq_u32 s%d, %d" % (sT0, 4 if HG else 0))
    A("s_cbranch_scc1 Lfn3")
    A("s_mov_b32 s%d, %s" % (sCNT, hx(TB)))
    for i in range(XENT * 4 // 1024):
        A("buffer_load_dwordx4 %s, v%d, %s, s%d offen offset:%d sc1" % (vr(W + 4 * i, 4), vL16, sr(sWS, 4), sCNT, 1024 * i))
    A("v_add_u32 v%d, %d, v%d" % (vT + 6, L_TAB, vL16))
    A("s_waitcnt vmcnt(0)")
    for i in range(XENT * 4 // 1024):
        A("ds_write_b128 v%d, %s offset:%d" % (vT + 6, vr(W + 4 * i, 4), 1024 * i))
    LB("Lfn3")
A("s_waitcnt lgkmcnt(0)")
if GW: A("s_waitcnt vmcnt(0)")
for i in range(4):
    A("v_lshlrev_b32 v%d, 16, v%d" % (PM + 4 + 2 * i, PM + i))
    A("v_and_b32 v%d, 0xffff0000, v%d" % (PM + 5 + 2 * i, PM + i))
if "bias" in OPT:
    for i in range(8): A("v_add_f32 v%d, %s, v%d" % (PM + 4 + i, hx(f2u(float(OPT["bias"]))), PM + 4 + i))
FS = [KF, VF]
def ifin(k):
    for i in range(8):
        A("buffer_load_dwordx4 %s, v%d, %s, s%d offen offset:%d sc1" % (vr(FS[k] + 4 * i, 4), vL16, sr(sWS, 4), sT1 if i < 4 else sT2, 1024 * (i & 3)))
def fs(k):
    o = []
    for i in range(4):
        o.append(mf(W + 32, SEL, FS[k] + 4 * i, None if i == 0 else W + 32))
        o.append(mf(W + 36, SEL, FS[k] + 16 + 4 * i, None if i == 0 else W + 36))
    return o
ppoll(ifin, lambda k: range(FS[k], FS[k] + 32), 8, vT, fs, pre=GPRE, gap=GGAP, tag=2,
      per_load=lambda k, i: [mf(W + 32 + 4 * (i >> 2), SEL, FS[k] + 4 * i, None if (i & 3) == 0 else W + 32 + 4 * (i >> 2))])
STAMP(9)
NOP(2)
for i in range(8):
    A("v_add_f32_dpp v%d, v%d, v%d row_ror:8 row_mask:0xf bank_mask:0xf" % (W + 32 + i, W + 32 + i, W + 32 + i))
A("s_mov_b64 exec, %s" % sr(sT4, 2))
for i in range(4):
    A("v_pk_add_f32 %s, %s, %s" % (vr(W + 32 + 2 * i, 2), vr(W + 32 + 2 * i, 2), vr(PM + 4 + 2 * i, 2)))
for i in range(4):
    A("v_cvt_pk_bf16_f32 v%d, v%d, v%d" % (W + 32 + i, W + 32 + 2 * i, W + 33 + 2 * i))
A("ds_write_b64 v%d, %s" % (vT + 5, vr(W + 32, 2)))
A("ds_write_b64 v%d, %s offset:128" % (vT + 5, vr(W + 34, 2)))
A("s_mov_b64 exec, -1")
A("s_cmp_lg_u32 s%d, 0" % sW)
A("s_waitcnt lgkmcnt(0)")
A("s_barrier")
A("s_cbranch_scc1 Lfin_exit")
A("ds_read_b128 %s, v%d" % (vr(XR, 4), vXNW))
A("s_waitcnt lgkmcnt(0)")
STAMP(10)
A("s_branch Lmix")
L.append(".p2align 6"); LB("Lst_out"); A("s_setpc_b64 %s" % sr(sRET, 2)); stubs.append("out")
LB("Lout")
A("s_lshl_b32 s%d, s2, 10" % sT0)
A("buffer_store_dwordx4 %s, v%d, %s, s%d offen" % (vr(XR, 4), vL16, sr(sOUT, 4), sT0))
if DBL:
    A("s_cmp_lg_u32 s2, 0")
    A("s_cbranch_scc1 Lfin_exit")
if DBL:
    A("s_waitcnt vmcnt(0)")
    A("s_memrealtime s[10:11]")
    A("s_waitcnt lgkmcnt(0)")
    A("s_sub_u32 s12, s10, s98")
    if "pad" in OPT:
        A("s_mov_b32 s10, s98"); A("s_mov_b32 s12, %d" % (100 * int(OPT["pad"])))
    LB("Ldbl")
    A("s_memrealtime s[14:15]")
    A("s_waitcnt lgkmcnt(0)")
    A("s_sub_u32 s13, s14, s10")
    A("s_cmp_lt_u32 s13, s12")
    A("s_cbranch_scc1 Ldbl")
LB("Lfin_exit")
if MEAS:
    src = {"mix": "s100", "entry": "s98"}.get(OPT["q"], "s98" if OPT["q"][0] == "h" else "s97")
    A("s_waitcnt vmcnt(0) lgkmcnt(0)")
    if OPT["q"] == "end":
        A("s_memrealtime s[42:43]"); A("s_waitcnt lgkmcnt(0)"); src = "s42"
    LB("Lms0")
    A("s_memrealtime s[14:15]"); A("s_waitcnt lgkmcnt(0)"); A("s_sub_u32 s13, s14, s98"); A("s_cmp_lt_u32 s13, 1600"); A("s_cbranch_scc1 Lms0")
    A("s_mov_b64 exec, 1")
    A("v_mov_b32 v16, %s" % src)
    A("s_not_b32 s10, s98")
    A("v_mov_b32 v17, s10")
    A("global_atomic_umax v[30:31], v16, off sc1")
    A("global_atomic_umax v[30:31], v17, off offset:128 sc1")
    A("s_or_b32 s10, s2, s%d" % sW)
    A("s_cmp_lg_u32 s10, 0")
    A("s_cbranch_scc1 Lend")
    LB("Lms1")
    A("s_memrealtime s[14:15]"); A("s_waitcnt lgkmcnt(0)"); A("s_sub_u32 s13, s14, s98"); A("s_cmp_lt_u32 s13, 4000"); A("s_cbranch_scc1 Lms1")
    A("global_load_dword v16, v[30:31], off sc1")
    A("global_load_dword v17, v[30:31], off offset:128 sc1")
    A("s_waitcnt vmcnt(0)")
    A("v_readfirstlane_b32 s10, v16"); A("v_readfirstlane_b32 s11, v17")
    A("s_not_b32 s11, s11"); A("s_sub_u32 s10, s10, s11"); A("s_lshl_b32 s10, s10, 2"); A("s_add_u32 s12, s10, 4200")
    A("s_min_u32 s12, s12, 20000")
    LB("Lms2")
    A("s_memrealtime s[14:15]"); A("s_waitcnt lgkmcnt(0)"); A("s_sub_u32 s13, s14, s98"); A("s_cmp_lt_u32 s13, s12"); A("s_cbranch_scc1 Lms2")
if TOT:
    A("s_waitcnt vmcnt(0)")
    A("s_memrealtime s[10:11]")
    A("s_waitcnt lgkmcnt(0)")
    A("v_mov_b32 v16, s98")
    A("v_mov_b32 v17, s10")
    A("v_mov_b32 v18, s100")
    A("v_mov_b32 v19, s97")
    soff(sT2, [(2, 6), (sW, 4)], STB)
    A("v_mov_b32 v20, 0")
    A("s_mov_b64 exec, 1")
    A("buffer_store_dwordx4 v[16:19], v20, %s, s%d offen" % (sr(sWS, 4), sT2))
if DIAG:
    A("s_waitcnt vmcnt(0)")
    STAMP(12)
    if DIAG == 2:
        A("s_or_b32 s%d, s2, s%d" % (sT0, sW))
        A("s_cmp_lg_u32 s%d, 0" % sT0)
        A("s_cbranch_scc1 Lend")
        A("v_readlane_b32 s%d, v28, 0" % sT2)
        for k, (r, i) in enumerate([(31, 10), (31, 12), (28, 1), (28, 2), (28, 6), (28, 5), (28, 7), (28, 8), (28, 9), (28, 10), (28, 11), (30, 3), (30, 5), (30, 8), (30, 9), (30, 12)]):
            A("v_readlane_b32 s%d, v%d, %d" % (sT3, r, i))
            A("s_sub_u32 s%d, s%d, s%d" % (sT3, sT3, sT2))
            A("s_nop 0")
            A("v_writelane_b32 v17, s%d, %d" % (sT3, k))
        A("v_lshlrev_b32 v16, 2, v%d" % vLANE)
        A("s_mov_b64 exec, 0xffff")
        A("global_store_dword v16, v17, s[100:101]")
        A("s_endpgm")
    soff(sT1, [(2, 10), (sW, 7)], STB)
    A("v_lshlrev_b32 v16, 2, v%d" % vLANE)
    A("s_mov_b64 exec, 0xffff")
    A("buffer_store_dword v28, v16, %s, s%d offen" % (sr(sWS, 4), sT1))
    A("buffer_store_dword v30, v16, %s, s%d offen offset:64" % (sr(sWS, 4), sT1))
    A("s_add_u32 s%d, s%d, 0x40000" % (sT1, sT1))
    A("buffer_store_dword v31, v16, %s, s%d offen" % (sr(sWS, 4), sT1))
LB("Lend")
A("s_endpgm")
LB("Lepoch")
if int(OPT.get("wb", 0)):
    A("s_cmp_lg_u32 s%d, 0" % sW)
    A("s_cbranch_scc1 Lnowb")
    A("s_waitcnt vmcnt(0)")
    A("buffer_wbl2 sc1")
    LB("Lnowb")
C("every workgroup has used the old launch tag long ago: workgroup 4 advances it")
A("s_lshl_b32 s%d, s%d, 8" % (sT0, sW))
A("s_add_u32 s%d, s%d, s2" % (sT0, sT0))
A("s_cmp_lg_u32 s%d, 4" % sT0)
A("s_cbranch_scc1 Lfin_exit")
A("v_mov_b32 v16, s%d" % sTG1)
A("v_mov_b32 v17, %s" % hx(EPO))
A("s_mov_b64 exec, 1")
A("buffer_store_dword v16, v17, %s, 0 offen sc1" % sr(sWS, 4))
A("s_mov_b64 exec, -1")
A("s_branch Lfin_exit")

L.append(".p2align 6"); LB("Lst_tab"); A("s_setpc_b64 %s" % sr(sRET, 2)); stubs.append("tab")
LB("Ltab")
C("waves 2,3: gather the main part of the g(h) table into LDS ; wave 1: the lowest octaves, best effort")
NTL = NOCT * 1024 // 2 // 1024
A("s_cmp_eq_u32 s%d, 1" % sW)
A("s_cbranch_scc1 Lext")
A("s_sub_u32 s%d, s%d, 2" % (sT1, sW))
A("s_mul_i32 s%d, s%d, %d" % (sT1, sT1, NTL * 1024))
A("s_add_u32 s%d, s%d, %d" % (sT1, sT1, XENT * 4))
A("v_add_u32 v%d, s%d, v%d" % (vT + 4, sT1, vL16))
A("v_add_u32 v%d, %d, v%d" % (vT + 4, L_TAB, vT + 4))
A("s_add_u32 s%d, s%d, %s" % (sT1, sT1, hx(TB)))
A("s_add_u32 s%d, s%d, 4096" % (sT2, sT1))
if TGW: A("s_waitcnt vmcnt(0)"); A("s_nop 15")
def it():
    for i in range(NTL):
        A("buffer_load_dwordx4 %s, v%d, %s, s%d offen offset:%d sc1" % (vr(W + 4 * i, 4), vL16, sr(sWS, 4), sT1 if i < 4 else sT2, 1024 * (i & 3)))
poll(it, range(W, W + 4 * NTL), vT, back="s_sleep %d" % int(OPT.get("tsl", 16)))
for i in range(NTL):
    A("ds_write_b128 v%d, %s offset:%d" % (vT + 4, vr(W + 4 * i, 4), 1024 * i))
A("s_waitcnt lgkmcnt(0)")
lds_arrive(20, vT + 4)
STAMP(9)
MP("tg")
A("s_branch Ltabdone")
def ext_load(d):
    for i in range(XENT * 4 // 1024):
        A("buffer_load_dwordx4 %s, v%d, %s, s%d offen offset:%d sc1" % (vr(d + 4 * i, 4), vL16, sr(sWS, 4), sT4, 1024 * i))
def ext_write(d):
    for i in range(XENT * 4 // 1024):
        A("ds_write_b128 v%d, %s offset:%d" % (vT + 4, vr(d + 4 * i, 4), 1024 * i))
LB("Lext")
if XENT:
    A("s_mov_b32 s%d, %s" % (sT4, hx(TB)))
    A("v_add_u32 v%d, %d, v%d" % (vT + 4, L_TAB, vL16))
    for i in range(4): A("v_mov_b32 v%d, -1" % (W + i))
    for i in range(XENT * 4 // 1024):
        A("ds_write_b128 v%d, %s offset:%d" % (vT + 4, vr(W, 4), 1024 * i))
    A("ds_write_b32 v%d, v%d offset:48" % (vFL, W))
    A("s_waitcnt lgkmcnt(0)")
lds_arrive(20, vT + 5)
if XENT:
    C("one look at the lowest octaves, skipped when x1 is already there")
    soff(sT3, [(sW, 10), (sJ, 17)], X1_OFF)
    A("s_waitcnt vmcnt(0)")
    A("buffer_load_dwordx4 %s, v%d, %s, s%d offen sc1" % (vr(XR, 4), vL16, sr(sWS, 4), sT3))
    A("s_waitcnt vmcnt(0)")
    for x in maxtree(range(XR, XR + 4), vT): A(x)
    A("v_cmp_eq_u32 vcc, -1, v%d" % vT)
    A("s_cbranch_vccz Lexx")
    A("s_mov_b32 s%d, %d" % (sCNT, int(OPT.get("xlk", 2)) - 1))
    LB("Lexl")
    A("buffer_load_dwordx4 %s, v%d, %s, s%d offen sc1" % (vr(XR, 4), vL16, sr(sWS, 4), sT3))
    if "l" in OPT.get("xs", ""): A("s_branch Ltabdone")
    ext_load(W + 32)
    A("s_waitcnt vmcnt(4)")
    for x in maxtree(range(XR, XR + 4), vT): A(x)
    A("v_cmp_eq_u32 vcc, -1, v%d" % vT)
    A("s_cbranch_vccz Lexx")
    A("s_waitcnt vmcnt(0)")
    ext_write(W + 32)
    for x in maxtree(range(W + 32, W + 48), vT): A(x)
    A("v_cmp_eq_u32 vcc, -1, v%d" % vT)
    A("s_cbranch_vccz Lexc")
    A("s_sub_u32 s%d, s%d, 1" % (sCNT, sCNT))
    A("s_cbranch_scc0 Lexl")
    A("s_branch Ltabdone")
    LB("Lexc")
    A("v_mov_b32 v%d, 0" % vT)
    A("ds_write_b32 v%d, v%d offset:48" % (vFL, vT))
    A("s_branch Ltabdone")
    LB("Lexx")
    wqf_reads()
    A("s_branch Ltw")
else:
    A("s_branch Ltabdone")
LB("Ltw")
lds_spin(20, 4 if HG else 3, vT + 2)
A("s_branch Ltwd")

for b in ool: L += b
ool = []
LB("Lslow")
C("rare: some h lies outside the table -> evaluate g(h) directly for those lanes")
RW1 = [W + 32 + i for i in range(14)]
RB1 = [PM + i for i in range(14)]
RW2 = [16 + i for i in range(10)] + [W + 46, W + 47, PM + 14, PM + 15]
A("v_lshlrev_b32 v26, 3, v%d" % vLANE)
A("s_load_dword s%d, %s, 0" % (sB2, sr(sB2P, 2)))
for (d4, d2, s) in [([W + 32, W + 36, W + 40], W + 44, sW1), ([PM, PM + 4, PM + 8], PM + 12, sB1)]:
    for k in range(3):
        A("buffer_load_dwordx4 %s, v%d, %s, 0 offen offset:%d" % (vr(d4[k], 4), vL16, sr(s, 4), 1024 * k))
    A("buffer_load_dwordx2 %s, v26, %s, 0 offen offset:3072" % (vr(d2, 2), sr(s, 4)))
A("buffer_load_dwordx4 v[16:19], v%d, %s, 0 offen" % (vL16, sr(sW2, 4)))
A("buffer_load_dwordx4 v[20:23], v%d, %s, 0 offen offset:1024" % (vL16, sr(sW2, 4)))
A("buffer_load_dwordx2 v[24:25], v%d, %s, 0 offen offset:2048" % (vL16, sr(sW2, 4)))
A("buffer_load_dwordx2 %s, v%d, %s, 0 offen offset:2056" % (vr(W + 46, 2), vL16, sr(sW2, 4)))
A("buffer_load_dwordx2 %s, v26, %s, 0 offen offset:3072" % (vr(PM + 14, 2), sr(sW2, 4)))
A("s_waitcnt vmcnt(0) lgkmcnt(0)")
A("s_lshl_b32 s%d, s%d, 16" % (sB2, sB2))
A("s_mov_b32 s%d, 1" % sT4)
for e in range(8):
    A("v_cmp_le_u32 vcc, %d, v%d" % (NENT * 4, AD + e))
    A("v_cmp_eq_u32 %s, -1, v%d" % (sr(sH2, 2), Y + e))
    A("s_or_b64 %s, %s, vcc" % (sr(sH2, 2), sr(sH2, 2)))
    if e & 1: A("v_and_b32 v%d, 0xffff0000, v%d" % (RT + 3, HB + (e >> 1)))
    else: A("v_lshlrev_b32 v%d, 16, v%d" % (RT + 3, HB + (e >> 1)))
    LB("Lse%d" % e)
    A("s_cmp_eq_u64 %s, 0" % sr(sH2, 2))
    A("s_cbranch_scc1 Lsf%d" % e)
    A("s_ff1_i32_b64 s%d, %s" % (sT0, sr(sH2, 2)))
    A("s_nop 0")
    A("v_readlane_b32 s%d, v%d, s%d" % (sH, RT + 3, sT0))
    A("s_cmp_eq_u32 s%d, s%d" % (sH, sT4))
    A("s_cbranch_scc1 Lsg%d" % e)
    A("s_mov_b32 s%d, s%d" % (sT4, sH))
    A("s_call_b64 %s, Lgev" % sr(sRET, 2))
    LB("Lsg%d" % e)
    A("s_nop 1")
    A("v_cmp_eq_u32 vcc, s%d, v%d" % (sH, RT + 3))
    A("v_mov_b32 v%d, s%d" % (RES + 3, sY))
    A("s_andn2_b64 %s, %s, vcc" % (sr(sH2, 2), sr(sH2, 2)))
    A("v_cndmask_b32 v%d, v%d, v%d, vcc" % (Y + e, Y + e, RES + 3))
    A("s_branch Lse%d" % e)
    LB("Lsf%d" % e)
for i in range(16): A("v_mov_b32 v%d, 0" % (PM + i))
A("s_mov_b64 vcc, 0")
A("s_mov_b64 %s, 0" % sr(sH, 2))
A("s_branch Lslowdone")
LB("Lgev")
a, u, t1, z = RES, RES + 1, RES + 2, RT
A("v_mov_b32 v%d, 0" % a)
A("v_mov_b32 v%d, %s" % (RT + 1, hx(f2u(K0))))
A("v_mov_b32 v%d, %s" % (RT + 2, hx(f2u(K1))))
for p in range(14):
    for hf in range(2):
        def un(d, s):
            if hf == 0: A("v_lshlrev_b32 v%d, 16, v%d" % (d, s))
            else: A("v_and_b32 v%d, 0xffff0000, v%d" % (d, s))
        un(u, RW1[p]); un(t1, RB1[p]); un(z, RW2[p])
        A("v_fma_f32 v%d, v%d, s%d, v%d" % (u, u, sH, t1))
        A("v_mul_f32 v%d, v%d, v%d" % (t1, u, u))
        A("v_fma_f32 v%d, v%d, v%d, v%d" % (t1, t1, RT + 2, RT + 1))
        A("v_mul_f32 v%d, v%d, v%d" % (t1, t1, u))
        A("v_exp_f32 v%d, v%d" % (t1, t1))
        A("v_mul_f32 v%d, v%d, v%d" % (z, z, u))
        A("v_add_f32 v%d, 1.0, v%d" % (t1, t1))
        A("v_rcp_f32 v%d, v%d" % (t1, t1))
        A("s_nop 0")
        A("v_fmac_f32 v%d, v%d, v%d" % (a, z, t1))
A("v_mov_b32 v%d, v%d" % (u, a))
A("s_nop 1")
wave_sum2(a, u, sY, sT1)
A("s_nop 1")
A("v_mov_b32 v%d, s%d" % (a, sY))
A("v_cvt_pk_bf16_f32 v%d, v%d, v%d" % (a, a, a))
A("v_and_b32 v%d, 0xffff0000, v%d" % (a, a))
A("v_add_f32 v%d, s%d, v%d" % (a, sB2, a))
A("v_cvt_pk_bf16_f32 v%d, v%d, v%d" % (a, a, a))
A("v_and_b32 v%d, 0xffff0000, v%d" % (a, a))
A("s_nop 0")
A("v_readfirstlane_b32 s%d, v%d" % (sY, a))
A("s_nop 3")
A("s_setpc_b64 %s" % sr(sRET, 2))

for b in ool: L += b
A("s_endpgm")
L.append(".p2align 8")
L.append(".fill %d, 4, 0xBF800000" % (64 if DIAG else 512))
L.append('''.section .rodata,"a"
.p2align 6
.amdhsa_kernel %s_kernel
  .amdhsa_next_free_vgpr 256
  .amdhsa_next_free_sgpr 102
  .amdhsa_accum_offset 256
  .amdhsa_group_segment_fixed_size 0
  .amdhsa_kernarg_size 104
  .amdhsa_user_sgpr_count 2
  .amdhsa_user_sgpr_kernarg_segment_ptr 1
  .amdhsa_system_sgpr_workgroup_id_x 1
.end_amdhsa_kernel''' % NAME)
open(OUTF, "w").write("\n".join(x for x in L if x is not None) + "\n")
print("wrote", OUTF, "lines", len(L), "LDS", LDS_SZ)
```

```python
import sys, struct, math

NAME = "interleave_layers__sliding_block_cached__mixer_token_mlp__decode"
OUTF = sys.argv[1] if len(sys.argv) > 1 else "cdna_kernels/%s.s" % NAME
DIAG = int(sys.argv[2]) if len(sys.argv) > 2 else 0
DBL = 0
if DIAG == 3: DIAG = 0; DBL = 1
MEAS = 0
if DIAG == 5: DIAG = 0; MEAS = 1
TOT = 0
if DIAG == 4: DIAG = 0; TOT = 1
OPT = dict(a.split("=") for a in sys.argv[3:])
DEPTH = int(OPT.get("depth", 8))
D0 = int(OPT.get("d0", 3))
D1 = int(OPT.get("d1", 4))
DC = int(OPT.get("dc", 3))
TAILI = int(OPT.get("taili", 11))
TAILD = int(OPT.get("taild", 8))
QV = int(OPT.get("qv", 3))
PRET = int(OPT.get("pret", 1))
GW = int(OPT.get("gw", 1))
GPRE = int(OPT.get("gpre", 0))
GGAP = int(OPT.get("ggap", -1))
WARM = int(OPT.get("warm", 1))
QPRE = int(OPT.get("qpre", -1)); QGAP = int(OPT.get("qgap", -1))
OPRE = int(OPT.get("opre", -1)); OGAP = int(OPT.get("ogap", -1))
XPRE = int(OPT.get("xpre", -1)); XGAP = int(OPT.get("xgap", -1))
FINE = OPT.get("fine", "")
QS = int(OPT.get("qs", 0))
ADP = int(OPT.get("adp", 0))
ROT = int(OPT.get("rot", 1)); VROT = int(OPT.get("vrot", 0))
WROT = int(OPT.get("wrot", 1))
WOP = int(OPT.get("wop", 0))
ECO = int(OPT.get("eco", 0))
XDL = int(OPT.get("xdl", 256))
QBD = int(OPT.get("qbd", 0))
VLATE = int(OPT.get("vlate", 1))
QV2 = int(OPT.get("qv2", 0))
PROG = int(OPT.get("prog", 1))
SLC = int(OPT.get("slc", 0)); D2 = int(OPT.get("d2", 8))
HFIRST = int(OPT.get("hfirst", 0))
EFL = int(OPT.get("efl", 1))
TPF = int(OPT.get("tpf", 0)); TPF_OFF = {1: 16, 2: 12, 3: 60}.get(TPF, 16)
TGW = int(OPT.get("tgw", 0))
QT = int(OPT.get("qt", 0))
DRY = int(OPT.get("dry", 0))
HP = int(OPT.get("hp", 0))
NOCT = int(OPT.get("noct", 16))
QPOS = int(OPT.get("qpos", 1))
QPOS2 = int(OPT.get("qpos2", 7))

def f2u(x): return struct.unpack("<I", struct.pack("<f", x))[0]
def hx(x): return "0x%08x" % (x & 0xffffffff)

L = []
def A(s): L.append("    " + s)
def LB(s): L.append(s + ":")
def C(s): L.append("    ; " + s)
def vr(a, n): return "v[%d:%d]" % (a, a + n - 1)
def sr(a, n): return "s[%d:%d]" % (a, a + n - 1)
def NOP(n):
    while n > 0:
        k = min(n, 16); A("s_nop %d" % (k - 1)); n -= k

XOCT = int(OPT.get('xoct', 4))
ELO = int(OPT.get('elo', 130 - NOCT - XOCT))
LO2 = (ELO << 7) * 2
NENT = (NOCT + XOCT) * 256
XENT = XOCT * 256
assert XENT in (0, 1024)
EPW = NOCT * 256 // 256 // 4 // 2
GRS = 0x20000
O_OFF = [0x0000, 0xC400]; LSE_OFF = [0x8000, 0x14400]; Q1_OFF = 0x8400; X1_OFF = 0x14600
CLRA_PER = 1040
CLRB_OFF = 0x8400; CLRB_PER = 1680
Q0_OFF = 0x18000
EPO = 0x17f00
PB = 0x100000; P_L = 0x20000
TB = 0x140000; FB = 0x148000
QB_DELTA = 0x200000
STB = 0x300000
WS_SZ = 0x400000 if "dump" not in OPT else 0x2000000
L_WQ = 12288; L_K = L_WQ + 16384; L_V = L_K + 32768
L_WO = L_K + 16384
L_TAB = L_V
L_XN = L_V + 32768; XS = 1056
L_X2 = L_XN + 4 * XS
L_FLG = L_X2 + 4 * XS
L_RB = L_K; RBS = 2048 + 64; L_ML = L_K + 4 * RBS
L_QF = L_X2
LDS_SZ = int(OPT.get("lds", L_FLG + 64))
SPIN = 0x40000
K0 = -2.0 * math.sqrt(2.0 / math.pi) * math.log2(math.e)
K1 = K0 * 0.044715
EPS = hx(f2u(1e-5))

sTG1, sTG2 = 0, 1
sW, sJ, sA, sC, sGR, sLAY, sFAST = 3, 4, 5, 6, 7, 8, 9
sT0, sT1, sT2, sT3, sT4, sT5 = 10, 11, 12, 13, 14, 15
sCNT = 16
sQL, sQS, sOL, sOS, sLL, sLS, sPS = 17, 18, 19, 20, 21, 22, 23
sSC, sIT = 24, 25
sSUM, sSQ = 26, 27
sH, sH2, sRET, sMSK = 28, 30, 32, 34
sB2, sY, sXCC, sE = 36, 37, 38, 39
sB2P = 40
sK, sV, sWQ, sWO, sWS, sX, sOUT, sW1, sB1, sW2 = 44, 48, 52, 56, 60, 64, 68, 72, 76, 80
sKO, sKL, sVO, sVL = 84, 85, 86, 87
sPM = 88
sHC, sHT = 84, 85

def STAMP(i):
    if DIAG:
        A("s_memrealtime s[42:43]"); A("s_waitcnt lgkmcnt(0)")
        A("v_writelane_b32 v30, s42, %d" % i)

def MP(name):
    if MEAS and OPT["q"] == name:
        A("s_memrealtime s[42:43]"); A("s_waitcnt lgkmcnt(0)"); A("s_mov_b32 s97, s42")

def CST(i):
    if DIAG == 1 and FINE:
        A("s_memtime s[42:43]"); A("s_waitcnt lgkmcnt(0)")
        A("v_writelane_b32 v31, s42, %d" % i)

vLANE = 1
vL16, vQST, vOST, vOLD, vPST, vX1S, vXNW, vXNR, vRBW, vRBR, vMLW, vMLR, vLSE, vZ = range(2, 16)
vT = 16
vWT, vFL = 28, 29
vLS2 = 27
KF, VF, WQF, WOF, SEL, ONES = 32, 64, 96, 112, 176, 180
W = 184
PM = 232
XR = 248
RES = 252

def srd(s, nbytes):
    A("s_mov_b32 s%d, %s" % (s + 2, hx(nbytes))); A("s_mov_b32 s%d, 0x00020000" % (s + 3))

def soff(dst, terms, const):
    first = True
    for (src, sh) in terms:
        if first: A("s_lshl_b32 s%d, s%d, %d" % (dst, src, sh)); first = False
        else:
            A("s_lshl_b32 s%d, s%d, %d" % (sT0, src, sh)); A("s_add_u32 s%d, s%d, s%d" % (dst, dst, sT0))
    if const: A("s_add_u32 s%d, s%d, %s" % (dst, dst, hx(const)))

def wave_sum2(a, b, sa, sb):
    for ctl in ["row_ror:8", "row_ror:4", "row_ror:2", "row_ror:1"]:
        A("v_add_f32_dpp v%d, v%d, v%d %s row_mask:0xf bank_mask:0xf" % (a, a, a, ctl))
        A("v_add_f32_dpp v%d, v%d, v%d %s row_mask:0xf bank_mask:0xf" % (b, b, b, ctl))
        A("s_nop 0")
    for ctl in ["row_bcast:15 row_mask:0xa", "row_bcast:31 row_mask:0xc"]:
        A("v_add_f32_dpp v%d, v%d, v%d %s bank_mask:0xf" % (a, a, a, ctl))
        A("v_add_f32_dpp v%d, v%d, v%d %s bank_mask:0xf" % (b, b, b, ctl))
        A("s_nop 0")
    A("v_readlane_b32 s%d, v%d, 63" % (sa, a))
    A("v_readlane_b32 s%d, v%d, 63" % (sb, b))

def row_stats(x, t, unp):
    A("v_dot2_f32_bf16 v%d, v%d, v%d, 0" % (t, x, ONES))
    A("v_dot2_f32_bf16 v%d, v%d, v%d, 0" % (t + 1, x, x))
    for i in range(1, 4):
        A("v_dot2_f32_bf16 v%d, v%d, v%d, v%d" % (t, x + i, ONES, t))
        A("v_dot2_f32_bf16 v%d, v%d, v%d, v%d" % (t + 1, x + i, x + i, t + 1))
    un = []
    for i in range(4):
        un.append("v_lshlrev_b32 v%d, 16, v%d" % (unp + 2 * i, x + i))
        un.append("v_and_b32 v%d, 0xffff0000, v%d" % (unp + 2 * i + 1, x + i))
    for k in range(3): A(un.pop(0))
    a, b = t, t + 1
    for ctl in ["row_ror:8 row_mask:0xf", "row_ror:4 row_mask:0xf", "row_ror:2 row_mask:0xf", "row_ror:1 row_mask:0xf", "row_bcast:15 row_mask:0xa", "row_bcast:31 row_mask:0xc"]:
        A("v_add_f32_dpp v%d, v%d, v%d %s bank_mask:0xf" % (a, a, a, ctl))
        A("v_add_f32_dpp v%d, v%d, v%d %s bank_mask:0xf" % (b, b, b, ctl))
        A(un.pop(0) if un else "s_nop 0")
    A("v_readlane_b32 s%d, v%d, 63" % (sSUM, a))
    A("v_readlane_b32 s%d, v%d, 63" % (sSQ, b))
    A("s_nop 0")
    A("v_mul_f32 v%d, s%d, v%d" % (t, sSUM, vZ))
    A("v_mul_f32 v%d, s%d, v%d" % (t + 1, sSQ, vZ))
    A("v_fma_f32 v%d, -v%d, v%d, v%d" % (t + 1, t, t, t + 1))
    A("v_max_f32 v%d, 0, v%d" % (t + 1, t + 1))

ool = []
uid = [0]
def maxtree(regs, tmp):
    r = list(regs); out = []
    out.append("v_max3_u32 v%d, v%d, v%d, v%d" % (tmp, r[0], r[1], r[2])); r = r[3:]
    if len(r) >= 5:
        out.append("v_max3_u32 v%d, v%d, v%d, v%d" % (tmp + 1, r[0], r[1], r[2])); r = r[3:]
        d = 0
        while len(r) >= 2:
            out.append("v_max3_u32 v%d, v%d, v%d, v%d" % (tmp + d, tmp + d, r[0], r[1])); r = r[2:]; d ^= 1
        if r: out.append("v_max3_u32 v%d, v%d, v%d, v%d" % (tmp, tmp, tmp + 1, r[0]))
        else: out.append("v_max_u32 v%d, v%d, v%d" % (tmp, tmp, tmp + 1))
    else:
        while len(r) >= 2:
            out.append("v_max3_u32 v%d, v%d, v%d, v%d" % (tmp, tmp, r[0], r[1])); r = r[2:]
        if r: out.append("v_max_u32 v%d, v%d, v%d" % (tmp, tmp, r[0]))
    return out

def poll(issue, regs, tmp, pre_wait=None, spec=None, back="s_nop 7", tag=None, stub=None):
    uid[0] += 1; u = uid[0]
    A("s_mov_b32 s%d, %s" % (sCNT, hx(SPIN)))
    LB("Lp%d" % u)
    issue()
    if pre_wait: pre_wait()
    A("s_waitcnt vmcnt(0)")
    mt = maxtree(regs, tmp) + ["v_cmp_eq_u32 vcc, -1, v%d" % tmp]
    spec = list(spec or [])
    ns = len(spec)
    per = -(-len(mt) // ns) if ns else 0
    for s in spec:
        A(s)
        for k in range(per):
            if mt: A(mt.pop(0))
    for m in mt: A(m)
    A("s_cbranch_vccz Ld%d" % u)
    A("s_sub_u32 s%d, s%d, 1" % (sCNT, sCNT))
    if back != "s_nop 7": A(back)
    A("s_cbranch_scc0 Lp%d" % u)
    if stub: touch_stub(stub)
    LB("Ld%d" % u)
    if DIAG and tag is not None:
        A("s_lshl_b32 m0, s%d, 2" % sLAY); A("s_add_u32 m0, m0, %d" % tag); A("s_nop 0")
        A("v_writelane_b32 v31, s%d, m0" % sCNT)

stubs = []
def touch_stub(name, branch_over=None):
    A("s_branch Lsk_%s" % name)
    L.append(".p2align 6")
    LB("Lst_%s" % name)
    A("s_setpc_b64 %s" % sr(sRET, 2))
    LB("Lsk_%s" % name)
    stubs.append(name)

def delay(cyc):
    if cyc == -1:
        A("s_waitcnt vmcnt(0)"); return
    while cyc >= 64:
        k = min(cyc // 64, 15); A("s_sleep %d" % k); cyc -= 64 * k
    if cyc >= 8: A("s_nop %d" % min(15, cyc // 4 - 1))

def ppoll(issue, regs, n, tmp, spec, pre=0, gap=128, mid=None, tag=None, fix=None, stub=None, lanes=None, per_load=None):
    uid[0] += 1; u = uid[0]
    def look(k):
        if per_load and PROG and gap < 0:
            r = list(regs(k)); out = []
            for i in range(n):
                out.append("s_waitcnt vmcnt(%d)" % (n - 1 - i))
                sp = list(per_load(k, i))
                ck = ["v_max3_u32 v%d, v%d, v%d, v%d" % (tmp + 1, r[4 * i], r[4 * i + 1], r[4 * i + 2]),
                      ("v_max_u32 v%d, v%d, v%d" % (tmp, tmp + 1, r[4 * i + 3])) if i == 0 else ("v_max3_u32 v%d, v%d, v%d, v%d" % (tmp, tmp, tmp + 1, r[4 * i + 3]))]
                while sp or ck:
                    if sp: out.append(sp.pop(0))
                    if ck: out.append(ck.pop(0))
            return out + ["v_cmp_eq_u32 vcc, -1, v%d" % tmp]
        out = ["s_waitcnt vmcnt(%d)" % (n if k == 0 else 0)]
        mt = maxtree(regs(k), tmp) + ["v_cmp_eq_u32 vcc, -1, v%d" % tmp]
        sp = list(spec(k)); per = -(-len(mt) // len(sp)) if sp else 0
        for x in sp:
            out.append(x)
            for _ in range(per):
                if mt: out.append(mt.pop(0))
        return out + mt + (["s_and_b64 vcc, vcc, %s" % sr(lanes, 2)] if lanes else [])
    A("s_mov_b32 s%d, %s" % (sCNT, hx(SPIN)))
    delay(pre)
    fine = FINE and tag == int(FINE)
    if fine: CST(8)
    LB("Lp%d" % u)
    issue(0)
    if fine and 0: CST(9)
    if mid: mid()
    if gap >= 0: delay(gap)
    if gap >= 0: issue(1)
    lk = look(0)
    if gap < 0 and not (per_load and PROG): lk[0] = "s_waitcnt vmcnt(0)"
    for k, x in enumerate(lk):
        A(x)
        if fine and k == 0: CST(13)
    if fine: CST(14)
    A("s_cbranch_vccz Ld%d" % u)
    if gap < 0: issue(1)
    A("s_sub_u32 s%d, s%d, 1" % (sCNT, sCNT))
    for x in look(1): A(x)
    for x in (fix or []): A(x)
    A("s_cbranch_vccz Ld%d" % u)
    A("s_sub_u32 s%d, s%d, 1" % (sCNT, sCNT))
    A("s_cmp_gt_i32 s%d, 0" % sCNT)
    A("s_cbranch_scc1 Lp%d" % u)
    if stub: touch_stub(stub)
    LB("Ld%d" % u)
    if fine: CST(15)
    if DIAG and tag is not None:
        A("s_lshl_b32 m0, s%d, 2" % sLAY); A("s_add_u32 m0, m0, %d" % tag); A("s_nop 0")
        A("v_writelane_b32 v31, s%d, m0" % sCNT)

def lds_spin(off, target, tmp, mask=None, sleep=0):
    uid[0] += 1; u = uid[0]
    A("s_mov_b32 s%d, %s" % (sT2, hx(SPIN * 4)))
    LB("Ls%d" % u)
    A("ds_read_b32 v%d, v%d offset:%d" % (tmp, vFL, off))
    A("s_waitcnt lgkmcnt(0)")
    A("v_readfirstlane_b32 s%d, v%d" % (sT1, tmp))
    if mask: A("s_and_b32 s%d, s%d, %d" % (sT0, sT1, mask))
    A("s_cmp_ge_u32 s%d, %d" % (sT0 if mask else sT1, target))
    A("s_cbranch_scc1 Lt%d" % u)
    if sleep: A("s_sleep %d" % sleep)
    A("s_sub_u32 s%d, s%d, 1" % (sT2, sT2))
    A("s_cbranch_scc0 Ls%d" % u)
    LB("Lt%d" % u)

def lds_arrive(off, tmp, val=1):
    if val is not None: A("v_mov_b32 v%d, %d" % (tmp, val))
    A("s_mov_b64 exec, 1")
    A("ds_add_u32 v%d, v%d offset:%d" % (vFL, tmp, off))
    A("s_mov_b64 exec, -1")

def store_local(op, data, vaddr, so):
    uid[0] += 1; u = uid[0]
    A("s_cbranch_scc1 Lw%d" % u)
    A("%s %s, v%d, %s, s%d offen" % (op, data, vaddr, sr(sWS, 4), so))
    LB("Lx%d" % u)
    ool.append(["Lw%d:" % u, "    %s %s, v%d, %s, s%d offen sc1" % (op, data, vaddr, sr(sWS, 4), so), "    s_branch Lx%d" % u])
def fastcmp(): A("s_cmp_eq_u32 s%d, 0" % sFAST)

def mf(d, a, b, c):
    return "v_mfma_f32_16x16x32_bf16 %s, %s, %s, %s" % (vr(d, 4), vr(a, 4), vr(b, 4), "0" if c is None else vr(c, 4))
def mfma(d, a, b, c): A(mf(d, a, b, c))

def tags():
    A("s_add_u32 s%d, s%d, 1" % (sTG1, sE))
    A("s_mul_i32 s%d, s%d, 0x9E3779B1" % (sTG2, sTG1))
    A("s_and_b32 s%d, s%d, -8" % (sTG2, sTG2))

def common_addr():
    A("v_and_b32 v18, 3, v%d" % vLANE)
    A("v_lshlrev_b32 v%d, 12, v17" % vQST)
    A("v_lshrrev_b32 v24, 1, v16")
    A("v_lshl_add_u32 v%d, v24, 8, v%d" % (vQST, vQST))
    A("v_and_b32 v24, 1, v16")
    A("v_lshl_add_u32 v%d, v24, 3, v%d" % (vQST, vQST))
    A("v_lshlrev_b32 v%d, 4, v24" % vLSE)
    A("s_mul_i32 s%d, s%d, %d" % (sT0, sW, XS))
    A("s_add_u32 s%d, s%d, %d" % (sT0, sT0, L_XN))
    A("v_add_u32 v%d, s%d, v%d" % (vXNW, sT0, vL16))
    A("s_lshl_b32 s%d, s%d, 8" % (sT0, sA))
    A("s_add_u32 s%d, s%d, %d" % (sT0, sT0, L_XN))
    A("v_mul_u32_u24 v25, %d, v18" % XS)
    A("v_lshl_add_u32 v25, v16, 4, v25")
    A("v_add_u32 v%d, s%d, v25" % (vXNR, sT0))
    A("v_mov_b32 v%d, %s" % (vZ, hx(f2u(1.0 / 512))))
    for r in range(4): A("v_mov_b32 v%d, 0x3f803f80" % (ONES + r))
    A("s_and_b32 s%d, s%d, 1" % (sT1, sC))
    A("s_lshr_b32 s%d, s%d, 1" % (sT2, sC))
    soff(sQS, [(sT1, 11), (sW, 9), (sA, 6), (sT2, 4)], 0)
    A("v_bfe_u32 v24, v%d, 2, 2" % vLANE)
    A("v_lshl_add_u32 v24, v16, 3, v24")
    A("v_lshlrev_b32 v24, 7, v24")
    A("v_bfe_u32 v25, v%d, 3, 2" % vLANE)
    A("v_lshlrev_b32 v25, 1, v25")
    A("v_bfe_u32 v26, v%d, 1, 1" % vLANE)
    A("v_xor_b32 v25, v25, v26")
    A("v_lshl_add_u32 v24, v25, 4, v24")
    A("v_and_b32 v26, 1, v%d" % vLANE)
    A("v_lshl_add_u32 v%d, v26, 3, v24" % vWT)
    A("s_mov_b32 s%d, 0x000f000f" % sMSK)
    A("s_mov_b32 s%d, 0x000f000f" % (sMSK + 1))
    A("s_mov_b32 s%d, 0" % sLAY)

def wtile_voff(shift, d):
    A("v_lshrrev_b32 v24, 3, v%d" % vLANE)
    A("v_and_b32 v25, 7, v%d" % vLANE)
    A("v_and_b32 v26, 1, v16")
    A("v_lshlrev_b32 v26, 1, v26")
    A("v_xor_b32 v25, v25, v26")
    A("v_lshlrev_b32 v25, 4, v25")
    A("v_lshl_add_u32 v%d, v24, %d, v25" % (d, shift))
    A("v_xor_b32 v%d, 64, v%d" % (d + 1, d))

def wqf_reads():
    A("s_lshl_b32 s%d, s%d, 5" % (sT1, sW))
    A("v_xor_b32 v26, s%d, v%d" % (sT1, vWT))
    for t in range(4):
        for hf in range(2):
            A("ds_read_b64_tr_b16 %s, v26 offset:%d" % (vr(WQF + 4 * t + 2 * hf, 2), L_WQ + 4096 * t + 512 * hf))

def dma(vaddr, srdn, so, lds_s, step_so, flags="nt"):
    A("s_mov_b32 m0, s%d" % lds_s)
    A("s_add_u32 s%d, s%d, 1024" % (lds_s, lds_s))
    A("buffer_load_dwordx4 v%d, %s, s%d offen %s lds" % (vaddr, sr(srdn, 4), so, flags))
    A("s_add_u32 s%d, s%d, %d" % (so, so, step_so))

hdr = open("cdna_kernels/%s.s.ref" % NAME).read().split("; Override launch")[0]
L.append(hdr.rstrip("\n") + """
;
; One persistent launch, 256 workgroups (one per CU) x 8 waves.  wg = A(2b):C(3b):j(3b); j = kv head.
; K, V, wq and wo are read from HBM exactly once (LDS-DMA) and stay in registers for both attention layers.
;   roles of a workgroup:  attention (batch A, keys 128C..), q projection (wq rows 128A.., 64 columns C),
;                          output projection (head A of group j, 64 columns C), row reduction (batch A, columns 64C..)
;   waves 0-3: stream wq/K/V/wo, q projections, attention, output projection, LayerNorm + mixer
;   waves 4-7: the token-mixer MLP g(h) = sum_f gelu(h w1 + b1) w2 + b2 evaluated
;              exactly (all 1792 hidden units) for every bf16 value h with 2^-17 <= |h| < 8; h is a bf16 tensor in the
;              reference, so the mixer is a lookup of these values; any other h is evaluated directly (Lslow).
; Hand-offs between workgroups go through d_ws.  Slots are filled with a sentinel at the start of the launch and a
; consumer polls until no sentinel is left; the first hand-off (q) and the "sentinels are in place" announcements
; carry a tag derived from a word that every launch advances.  Stores inside a kv-head group are plain when the
; whole group reports the same XCC id, write-through otherwise; every poll is bounded.
""".rstrip("\n"))
L.append("; @launch grid=(256,1,1) block=(512,1,1) lds=%d" % LDS_SZ)
L.append('.amdgcn_target "amdgcn-amd-amdhsa--gfx950"')
L.append(".text\n" + (".p2align 12\n" if int(OPT.get("al", 0)) else "") + ".globl %s_kernel\n.p2align 8\n.type %s_kernel,@function\n%s_kernel:" % (NAME, NAME, NAME))
if DIAG: A("s_memrealtime s[42:43]")
if DBL or TOT or MEAS: A("s_memrealtime s[98:99]")
sM = 96
A("s_lshr_b32 s%d, s2, 8" % sT0)
A("s_cbranch_scc1 Lend")
A("s_load_dwordx2 %s, s[0:1], 24" % sr(sWQ, 2))
A("s_load_dwordx4 %s, s[0:1], 0" % sr(sT2, 4))
A("v_readfirstlane_b32 s%d, v0" % sW)
C("every wave pulls one line of this kernel's code into L2 (plain read): 32 workgroups x 4 lines")
A("s_getpc_b64 s[10:11]")
LB("Lpc0")
A("s_lshr_b32 s%d, s2, 3" % sM)
A("s_lshl_b32 s%d, s%d, 9" % (sCNT, sM))
A("s_cmp_lg_u32 s%d, 0" % sW)
A("s_cbranch_scc1 Lnopf")
A("v_and_b32 v19, 3, v0")
A("v_lshl_add_u32 v19, v19, 7, s%d" % sCNT)
A("global_load_dword v%d, v19, s[10:11]" % (W + 8))
LB("Lnopf")
A("s_and_b32 s%d, s2, 7" % sJ)
A("s_lshr_b32 s%d, s2, 6" % sA)
A("s_and_b32 s%d, s%d, 7" % (sC, sM))
A("s_lshl_b32 s%d, 1, 17" % (sWQ + 3))
A("s_bitcmp1_b32 s%d, 8" % sW)
A("s_cbranch_scc1 Lhelp0")
vKA, vVA = W + 40, W + 44
sRO, sRM = sVO, 97 if not TOT else 94
if TOT: sRM = sOL
def kv_issue(i):
    A("s_add_u32 m0, s%d, s%d" % (sKL if i < 8 else sVL, sRO))
    A("s_add_u32 s%d, s%d, s%d" % (sCNT, sKO, sRO))
    if i < 8: A("buffer_load_dwordx4 v%d, %s, s%d offen nt lds" % (vKA + (i & 3), sr(sK, 4), sCNT))
    else: A("buffer_load_dwordx4 v%d, %s, s%d offen nt lds" % (vVA + (i & 1), sr(sV, 4), sCNT))
    A("s_addk_i32 s%d, %d" % (sRO, 1024 + (VROT * 1024 if i == 7 else 0)))
    A("s_and_b32 s%d, s%d, 0x1fff" % (sRO, sRO))
def lane_init():
    A("v_and_b32 v%d, 63, v0" % vLANE)
    A("v_mov_b32 v%d, %d" % (vFL, L_FLG))
    A("v_lshlrev_b32 v%d, 4, v%d" % (vL16, vLANE))
    A("v_lshrrev_b32 v16, 4, v%d" % vLANE)
    A("v_and_b32 v17, 15, v%d" % vLANE)
    A("v_mov_b32 v20, 0")
    if DIAG: A("v_mov_b32 v30, 0")
C("wq tile DMA: instruction i, thread t: row 32 i + (t>>3), 16-byte chunk (t&7) ^ swizzle")
A("v_lshrrev_b32 v23, 3, v0")
A("v_and_b32 v22, 7, v0")
A("v_and_b32 v24, 2, v23")
A("v_lshrrev_b32 v25, 1, v23")
A("v_and_or_b32 v24, v25, 4, v24")
A("v_xor_b32 v22, v22, v24")
A("v_lshlrev_b32 v22, 4, v22")
A("v_lshl_add_u32 v22, v23, 13, v22")
soff(sQL, [(sA, 20), (sJ, 10), (sC, 7)], 0)
A("s_lshl_b32 s%d, 1, 22" % (sWQ + 2))
A("s_lshl_b32 s%d, 1, 18" % sT1)
A("s_lshl_b32 s%d, s%d, 4" % (sQS, sW))
A("s_add_u32 m0, s%d, %d" % (sQS, L_WQ))
A("v_lshlrev_b32 v21, 4, v0")
A("s_waitcnt lgkmcnt(0)")
A("global_load_dwordx4 %s, v21, %s" % (vr(XR, 4), sr(sT2, 2)))
for i in range(4):
    if i:
        A("s_addk_i32 m0, 0x1000")
        A("s_add_u32 s%d, s%d, s%d" % (sQL, sQL, sT1))
    A("buffer_load_dwordx4 v22, %s, s%d offen nt lds" % (sr(sWQ, 4), sQL))
def main_early2():
    lane_init()
    A("s_lshl_b32 s%d, 1, 25" % (sK + 2)); A("s_mov_b32 s%d, s%d" % (sK + 3, sWQ + 3))
    A("s_mov_b64 %s, %s" % (sr(sK, 2), sr(sT4, 2)))
    A("v_xor_b32 v18, v17, v16")
    A("v_lshlrev_b32 v18, 4, v18")
    A("v_lshl_add_u32 v%d, v16, 8, v18" % vKA)
    A("s_lshl_b32 s%d, s%d, 10" % (sRO, sC))
    A("s_bfe_u32 s%d, s%d, 0x2000a" % (sT1, sRO))
    A("s_lshl_b32 s%d, s%d, 6" % (sT1, sT1))
    for k in range(1, 4):
        A("s_add_u32 s%d, s%d, %d" % (sCNT, sT1, 64 * k))
        A("s_and_b32 s%d, s%d, 0xc0" % (sCNT, sCNT))
        A("v_xor_b32 v%d, s%d, v%d" % (vKA + k, sCNT, vKA))
    A("v_xor_b32 v%d, s%d, v%d" % (vKA, sT1, vKA))
    soff(sKO, [(sA, 23), (sJ, 20), (sC, 15), (sW, 7)], 3072 * 256)
    A("s_add_u32 s%d, s%d, %d" % (sKL, sT0, L_K))
    for i in range(D0): kv_issue(i)
    A("s_add_u32 s%d, s%d, %d" % (sVL, sT0, L_V))
    A("s_lshr_b32 s%d, s%d, 6" % (sW, sW))
    if DIAG: A("v_writelane_b32 v30, s42, 0")
    STAMP(10)
    A("s_branch Lmain")

if HFIRST: A("s_branch Lmain1")
else: main_early2()
LB("Lhelp0")
C("---- helper waves: the table of g over bf16 inputs ----")
HW1, HB1, HW2 = 32, 60, 112
hK0, hK1, hONE, hRES = 88, 90, 92, 94
AC = [140, 142]
for s, off in [(sW1, 48), (sB1, 56), (sW2, 64), (sWS, 96), (sB2P, 72)]:
    A("s_load_dwordx2 %s, s[0:1], %d" % (sr(s, 2), off))
lane_init()
A("v_mov_b32 v21, 0")
for k in range(4): A("ds_write_b64 v%d, v[20:21] offset:%d" % (vFL, 8 * k))
A("ds_write_b32 v%d, v20 offset:44" % vFL)
A("ds_write_b32 v%d, v20 offset:60" % vFL)
A("s_bfe_u32 s%d, s%d, 0x20006" % (sW, sW))
srd(sWS, WS_SZ)
for s in [sW1, sB1, sW2]: srd(s, 3584)
for i in range(4): A("v_mov_b32 v%d, -1" % (PM + i))
A("s_waitcnt lgkmcnt(0)")
A("s_lshl_b32 s%d, s%d, 10" % (sT3, sW))
A("s_mul_i32 s%d, s%d, %d" % (sT5, sM, CLRA_PER))
A("s_lshl_b32 s%d, s%d, 17" % (sGR, sJ))
A("s_add_u32 s%d, s%d, s%d" % (sT5, sT5, sGR))
A("s_add_u32 s%d, s%d, 1024" % (sT4, sT5))
A("s_lshl_b32 s%d, s%d, 7" % (sT1, sM))
A("v_mov_b32 v19, s%d" % sT1)
def h_coef():
    A("s_mov_b32 m0, s%d" % sT3)
    for i, sd in enumerate([sW1, sB1, sW2]):
        if i: A("s_addk_i32 m0, 0x1000")
        A("s_nop 0")
        A("buffer_load_dwordx4 v%d, %s, s%d offen lds" % (vL16, sr(sd, 4), sT3))
C("hw0, hw1: early sentinels (O0, LSE0) ; hw3: a slice of each coefficient array into L2")
A("s_cmp_ge_u32 s%d, 2" % sW)
A("s_cbranch_scc1 Lhc_pf")
A("s_cmp_eq_u32 s%d, 0" % sW)
A("s_cselect_b32 s%d, s%d, s%d" % (sT5, sT5, sT4))
A("s_cselect_b64 exec, -1, 1")
A("buffer_store_dwordx4 %s, v%d, %s, s%d offen sc1" % (vr(PM, 4), vL16, sr(sWS, 4), sT5))
A("s_branch Lhc_skip")
LB("Lhc_pf")
if SLC:
    A("s_cmp_eq_u32 s%d, 2" % sW)
    A("s_cbranch_scc1 Lhc_skip")
    A("s_mov_b64 exec, 1")
    for k, sd in enumerate([sW1, sB1, sW2]): A("buffer_load_dword v%d, v19, %s, 0 offen" % (W + k, sr(sd, 4)))
LB("Lhc_skip")
A("s_mov_b64 exec, -1")
if not SLC: h_coef()
A("s_load_dword s%d, %s, 0" % (sB2, sr(sB2P, 2)))
if MEAS:
    A("s_load_dwordx2 s[42:43], s[0:1], 88"); A("s_waitcnt lgkmcnt(0)"); A("v_mov_b32 v30, s42"); A("v_mov_b32 v31, s43")
if DIAG: A("v_writelane_b32 v30, s42, 0")
STAMP(9)
A("s_barrier")
if HFIRST:
    A("s_branch Lhelp1")
    LB("Lmain1")
    main_early2()
    LB("Lhelp1")
A("s_lshl_b32 s%d, s2, 2" % sHC)
A("s_add_u32 s%d, s%d, s%d" % (sHC, sHC, sW))
sHX = 86
if XENT:
    C("extra entry e = wave index: |h| code ELO*128 + (e>>1), sign e&1")
    A("s_lshr_b32 s%d, s%d, 1" % (sHX, sHC))
    A("s_add_u32 s%d, s%d, %d" % (sHX, sHX, ELO * 128))
    A("s_lshl_b32 s%d, s%d, 16" % (sHX, sHX))
    A("s_lshl_b32 s%d, s%d, 31" % (sT0, sHC))
    A("s_or_b32 s%d, s%d, s%d" % (sHX, sHX, sT0))
A("s_mul_i32 s%d, s%d, %d" % (sHC, sHC, EPW))
A("s_lshl_b32 s%d, s%d, 3" % (sHT, sHC))
A("s_add_u32 s%d, s%d, %d" % (sHT, sHT, XENT * 4))
A("s_add_u32 s%d, s%d, %d" % (sHC, sHC, ELO * 128 + XENT // 2))
A("s_lshl_b32 s%d, s%d, 16" % (sHC, sHC))
A("v_lshlrev_b32 v27, 2, v%d" % vLANE)
A("v_add_u32 v27, s%d, v27" % sHT)
A("s_mov_b32 s%d, %s" % (sHT, hx(TB)))
for r, c in [(hK0, K0), (hK1, K1), (hONE, 1.0)]:
    A("v_mov_b32 v%d, %s" % (r, hx(f2u(c)))); A("v_mov_b32 v%d, %s" % (r + 1, hx(f2u(c))))
A("v_mov_b32 v%d, 0" % hRES)
A("s_mov_b32 s%d, 0" % sIT)
if WARM:
    C("warm the instruction cache lines at the far jump targets of the main waves")
    for k, nm in enumerate(["k", "fin", "out", "tab"]):
        A("s_cmp_lg_u32 s%d, %d" % (sW, k))
        A("s_cbranch_scc1 Lwm%d" % k)
        A("s_call_b64 %s, Lst_%s" % (sr(sRET, 2), nm))
        if nm == "out": A("s_call_b64 %s, Lst_mq" % sr(sRET, 2))
        LB("Lwm%d" % k)
HR = W + 8
A("v_lshlrev_b32 v26, 3, v%d" % vLANE)
if SLC:
    C("slices are in L2 once hw3's own have returned")
    A("s_waitcnt vmcnt(0)")
    lds_arrive(0, 24)
    A("s_cmp_lg_u32 s%d, 3" % sW)
    A("s_cbranch_scc1 Lhs1")
    lds_arrive(52 - 8, 24)
    LB("Lhs1")
    lds_spin(52 - 8, 1, 24, sleep=1)
    h_coef()
    A("s_waitcnt vmcnt(0)")
else:
    A("s_waitcnt vmcnt(3)")
    lds_arrive(0, 24)
    A("s_waitcnt vmcnt(0)")
STAMP(1)
lds_arrive(24, 24)
lds_spin(24, 4, 24)
for a_ in range(3):
    for k in range(3):
        A("ds_read_b128 %s, v%d offset:%d" % (vr(HR + 14 * a_ + 4 * k, 4), vL16, 4096 * a_ + 1024 * k))
    A("ds_read_b64 %s, v26 offset:%d" % (vr(HR + 14 * a_ + 12, 2), 4096 * a_ + 3072))
for a_, d in [(0, HW1), (14, HB1), (28, HW2)]:
    A("s_waitcnt lgkmcnt(%d)" % (8 - 4 * (a_ // 14)))
    for p in range(14):
        A("v_lshlrev_b32 v%d, 16, v%d" % (d + 2 * p, HR + a_ + p))
        A("v_and_b32 v%d, 0xffff0000, v%d" % (d + 2 * p + 1, HR + a_ + p))
STAMP(4)
MP("hst")
if DIAG:
    A("s_memtime s[42:43]"); A("s_waitcnt lgkmcnt(0)"); A("v_writelane_b32 v30, s42, 13")
LB("Lhl")
if DIAG:
    A("s_memrealtime s[42:43]"); A("s_add_u32 m0, s%d, 10" % sIT); A("s_waitcnt lgkmcnt(0)"); A("v_writelane_b32 v30, s42, m0")
A("s_mov_b32 s%d, s%d" % (sH, sHC)); A("s_mov_b32 s%d, s%d" % (sH + 1, sHC))
A("s_xor_b32 s%d, s%d, 0x80000000" % (sH2, sHC)); A("s_mov_b32 s%d, s%d" % (sH2 + 1, sH2))
U4 = [144, 146, 148, 150]; T4 = [152, 154, 156, 158]; Z4 = [160, 162, 164, 166]
for p2 in range(7):
    ch = [(2 * p2 + k // 2, k & 1) for k in range(4)]
    for k, (p, sg) in enumerate(ch):
        A("v_pk_fma_f32 %s, %s, %s, %s" % (vr(U4[k], 2), vr(HW1 + 2 * p, 2), sr([sH, sH2][sg], 2), vr(HB1 + 2 * p, 2)))
    for k in range(4): A("v_pk_mul_f32 %s, %s, %s" % (vr(T4[k], 2), vr(U4[k], 2), vr(U4[k], 2)))
    for k in range(4): A("v_pk_fma_f32 %s, %s, %s, %s" % (vr(T4[k], 2), vr(T4[k], 2), vr(hK1, 2), vr(hK0, 2)))
    for k in range(4): A("v_pk_mul_f32 %s, %s, %s" % (vr(T4[k], 2), vr(T4[k], 2), vr(U4[k], 2)))
    for k in range(4):
        for h in range(2): A("v_exp_f32 v%d, v%d" % (T4[k] + h, T4[k] + h))
    for k, (p, sg) in enumerate(ch): A("v_pk_mul_f32 %s, %s, %s" % (vr(Z4[k], 2), vr(U4[k], 2), vr(HW2 + 2 * p, 2)))
    for k in range(4): A("v_pk_add_f32 %s, %s, %s" % (vr(T4[k], 2), vr(T4[k], 2), vr(hONE, 2)))
    for k in range(4):
        for h in range(2): A("v_rcp_f32 v%d, v%d" % (T4[k] + h, T4[k] + h))
    for k, (p, sg) in enumerate(ch):
        if p == 0: A("v_pk_mul_f32 %s, %s, %s" % (vr(AC[sg], 2), vr(Z4[k], 2), vr(T4[k], 2)))
        else: A("v_pk_fma_f32 %s, %s, %s, %s" % (vr(AC[sg], 2), vr(Z4[k], 2), vr(T4[k], 2), vr(AC[sg], 2)))
A("v_add_f32 v%d, v%d, v%d" % (AC[0], AC[0], AC[0] + 1))
A("v_add_f32 v%d, v%d, v%d" % (AC[1], AC[1], AC[1] + 1))
A("s_lshl_b32 m0, s%d, 1" % sIT)
A("s_add_u32 s%d, s%d, 0x10000" % (sHC, sHC))
wave_sum2(AC[0], AC[1], sSUM, sSQ)
A("s_add_u32 s%d, s%d, 1" % (sIT, sIT))
A("s_nop 0")
A("v_writelane_b32 v%d, s%d, m0" % (hRES, sSUM))
A("s_add_u32 m0, m0, 1")
A("s_cmp_lg_u32 s%d, %d" % (sIT, EPW))
A("v_writelane_b32 v%d, s%d, m0" % (hRES, sSQ))
A("s_cbranch_scc1 Lhl")
def h_publish(lanes):
    A("v_cvt_pk_bf16_f32 v%d, v%d, v%d" % (hRES, hRES, hRES))
    A("v_and_b32 v%d, 0xffff0000, v%d" % (hRES, hRES))
    A("v_add_f32 v%d, s%d, v%d" % (hRES, sB2, hRES))
    A("v_cvt_pk_bf16_f32 v%d, v%d, v%d" % (hRES, hRES, hRES))
    A("v_and_b32 v%d, 0xffff0000, v%d" % (hRES + 1, hRES))
    A("s_mov_b64 exec, %d" % lanes)
    A("buffer_store_dword v%d, v27, %s, s%d offen sc1" % (hRES + 1, sr(sWS, 4), sHT))
    A("s_mov_b64 exec, -1")
A("s_waitcnt lgkmcnt(0)")
A("s_lshl_b32 s%d, s%d, 16" % (sB2, sB2))
lds_spin(8, 4, 24)
h_publish((1 << (2 * EPW)) - 1)
if QBD:
    C("the write-through copy of q is only needed when the group is not known to sit on one XCD")
    A("ds_read_b32 v24, v%d offset:4" % vFL)
    A("s_waitcnt lgkmcnt(0)")
    A("v_readfirstlane_b32 s%d, v24" % sT0)
    A("s_cmp_eq_u32 s%d, 4" % sT0)
    A("s_cbranch_scc1 Lhqb")
    A("s_mov_b64 exec, %s" % sr(sMSK, 2))
    A("buffer_store_dwordx4 %s, v%d, %s, s%d offen sc1" % (vr(W + 4, 4), vQST, sr(sWS, 4), sQS))
    A("s_mov_b64 exec, -1")
    LB("Lhqb")
STAMP(8)
MP("htab")
if XENT:
    A("s_mov_b32 s%d, s%d" % (sH, sHX)); A("s_mov_b32 s%d, s%d" % (sH + 1, sHX))
    for grp in [[0, 1, 2, 3], [4, 5, 6, 7], [8, 9, 10], [11, 12, 13]]:
        n = len(grp)
        for k, p in enumerate(grp): A("v_pk_fma_f32 %s, %s, %s, %s" % (vr(U4[k], 2), vr(HW1 + 2 * p, 2), sr(sH, 2), vr(HB1 + 2 * p, 2)))
        for k in range(n): A("v_pk_mul_f32 %s, %s, %s" % (vr(T4[k], 2), vr(U4[k], 2), vr(U4[k], 2)))
        for k in range(n): A("v_pk_fma_f32 %s, %s, %s, %s" % (vr(T4[k], 2), vr(T4[k], 2), vr(hK1, 2), vr(hK0, 2)))
        for k in range(n): A("v_pk_mul_f32 %s, %s, %s" % (vr(T4[k], 2), vr(T4[k], 2), vr(U4[k], 2)))
        for k in range(n):
            for h in range(2): A("v_exp_f32 v%d, v%d" % (T4[k] + h, T4[k] + h))
        for k, p in enumerate(grp): A("v_pk_mul_f32 %s, %s, %s" % (vr(Z4[k], 2), vr(U4[k], 2), vr(HW2 + 2 * p, 2)))
        for k in range(n): A("v_pk_add_f32 %s, %s, %s" % (vr(T4[k], 2), vr(T4[k], 2), vr(hONE, 2)))
        for k in range(n):
            for h in range(2): A("v_rcp_f32 v%d, v%d" % (T4[k] + h, T4[k] + h))
        for k, p in enumerate(grp):
            if p < 2: A("v_pk_mul_f32 %s, %s, %s" % (vr(AC[p & 1], 2), vr(Z4[k], 2), vr(T4[k], 2)))
            else: A("v_pk_fma_f32 %s, %s, %s, %s" % (vr(AC[p & 1], 2), vr(Z4[k], 2), vr(T4[k], 2), vr(AC[p & 1], 2)))
    A("v_add_f32 v%d, v%d, v%d" % (AC[0], AC[0], AC[0] + 1))
    A("v_add_f32 v%d, v%d, v%d" % (AC[1], AC[1], AC[1] + 1))
    A("v_add_f32 v%d, v%d, v%d" % (AC[0], AC[0], AC[1]))
    A("s_nop 1")
    wave_sum2(AC[0], AC[1], sSUM, sSQ)
    A("s_nop 1")
    A("v_mov_b32 v%d, s%d" % (hRES, sSUM))
    A("v_cvt_pk_bf16_f32 v%d, v%d, v%d" % (hRES, hRES, hRES))
    A("v_and_b32 v%d, 0xffff0000, v%d" % (hRES, hRES))
    A("v_add_f32 v%d, s%d, v%d" % (hRES, sB2, hRES))
    A("v_cvt_pk_bf16_f32 v%d, v%d, v%d" % (hRES, hRES, hRES))
    A("v_and_b32 v%d, 0xffff0000, v%d" % (hRES, hRES))
    C("the last of the four helpers stores the workgroup's four extra entries with one instruction")
    A("s_lshl_b32 s%d, s%d, 2" % (sT0, sW))
    A("v_add_u32 v16, s%d, v%d" % (sT0, vFL))
    A("v_mov_b32 v17, 1")
    A("s_mov_b64 exec, 1")
    A("ds_write_b32 v16, v%d offset:32" % hRES)
    A("s_waitcnt lgkmcnt(0)")
    A("ds_add_rtn_u32 v18, v%d, v17 offset:28" % vFL)
    A("s_waitcnt lgkmcnt(0)")
    A("v_readfirstlane_b32 s%d, v18" % sT0)
    A("s_cmp_lg_u32 s%d, 3" % sT0)
    A("s_cbranch_scc1 Lhx_end")
    A("ds_read_b128 v[20:23], v%d offset:32" % vFL)
    A("s_lshl_b32 s%d, s2, 4" % sT0)
    A("v_mov_b32 v16, s%d" % sT0)
    A("s_waitcnt lgkmcnt(0)")
    A("buffer_store_dwordx4 v[20:23], v16, %s, s%d offen sc1" % (sr(sWS, 4), sHT))
    LB("Lhx_end")
    A("s_mov_b64 exec, -1")
if DIAG:
    A("s_memtime s[42:43]"); A("s_waitcnt lgkmcnt(0)"); A("v_writelane_b32 v30, s42, 14")
    STAMP(15)
STAMP(7)
if TPF:
    C("pull a slice of the finished table into this XCD's L2 ahead of the gather")
    lds_spin(TPF_OFF, 4, 24, sleep=1)
    A("s_cmp_ge_u32 s%d, 20" % sM)
    A("s_cbranch_scc1 Lhtp")
    soff(sT1, [(sM, 10), (sW, 8)], TB)
    A("v_lshlrev_b32 v16, 7, v%d" % vLANE)
    A("s_mov_b64 exec, 3")
    A("buffer_load_dword v17, v16, %s, s%d offen sc1" % (sr(sWS, 4), sT1))
    A("s_mov_b64 exec, -1")
    LB("Lhtp")
C("stand in at the two barriers of the second layer, so that they do not wait for this wave's store acknowledgements")
A("s_barrier")
A("s_barrier")
if MEAS and OPT["q"][0] == "h":
    A("s_mov_b64 exec, 1"); A("v_mov_b32 v16, s97"); A("global_atomic_umax v[30:31], v16, off sc1")
if DIAG:
    A("s_add_u32 s%d, s%d, 4" % (sW, sW))
    A("v_mov_b32 v28, v30")
    A("s_branch Lfin_exit")
A("s_endpgm")

LB("Lmain")
for s, off in [(sWS, 96), (sV, 16), (sWO, 32), (sOUT, 80), (sX, 0), (sB2P, 72), (sW1, 48), (sB1, 56), (sW2, 64)]:
    A("s_load_dwordx2 %s, s[0:1], %d" % (sr(s, 2), off))
if MEAS: A("s_load_dwordx2 s[42:43], s[0:1], 88"); A("s_waitcnt lgkmcnt(0)"); A("s_mov_b32 s25, s42"); A("s_mov_b32 s99, s43") if False else None; A("v_mov_b32 v30, s42"); A("v_mov_b32 v31, s43")
srd(sWS, WS_SZ)
for s in [sW1, sB1, sW2]: srd(s, 3584)
A("s_barrier")
for i in range(D0, D1): kv_issue(i)
for i in range(4): A("v_mov_b32 v%d, -1" % (W + i))
A("s_lshl_b32 s%d, s%d, 17" % (sGR, sJ))
A("s_mov_b32 s%d, s%d" % (sT1, sM))
A("s_waitcnt lgkmcnt(0)")
A("s_load_dword s%d, %s, %s" % (sE, sr(sWS, 2), hx(EPO)))
STAMP(11)
for s, n in [(sV, 1 << 25), (sX, 4096), (sWO, 1 << 22), (sOUT, 4096)]: srd(s, n)
A("v_lshlrev_b32 v18, 1, v16")
A("v_xor_b32 v18, v17, v18")
A("v_lshlrev_b32 v18, 4, v18")
A("v_lshl_add_u32 v%d, v16, 8, v18" % vVA)
if ROT:
    A("s_and_b32 s%d, s%d, 1" % (sT0, sC))
    A("s_lshl_b32 s%d, s%d, 7" % (sT0, sT0))
    A("v_xor_b32 v%d, s%d, v%d" % (vVA, sT0, vVA))
A("v_xor_b32 v%d, 128, v%d" % (vVA + 1, vVA))
C("late sentinels: wave 0,1: group region ; wave 2: P chunk")
A("s_lshr_b32 s%d, s2, 3" % sT1)
A("s_mul_i32 s%d, s%d, %d" % (sT1, sT1, CLRB_PER))
A("s_lshl_b32 s%d, s%d, 10" % (sT0, sW))
A("s_add_u32 s%d, s%d, s%d" % (sT1, sT1, sT0))
A("s_add_u32 s%d, s%d, s%d" % (sT1, sT1, sGR))
A("s_add_u32 s%d, s%d, %d" % (sT1, sT1, CLRB_OFF))
A("s_lshl_b32 s%d, s2, 10" % sT0)
A("s_add_u32 s%d, s%d, %s" % (sT0, sT0, hx(PB)))
A("s_cmp_ge_u32 s%d, 2" % sW)
A("s_cselect_b32 s%d, s%d, s%d" % (sT1, sT0, sT1))
A("s_bfm_b64 %s, %d, 0" % (sr(sH, 2), (CLRB_PER - 1024) // 16))
A("s_cmp_eq_u32 s%d, 1" % sW)
A("s_cselect_b64 %s, %s, -1" % (sr(sH, 2), sr(sH, 2)))
NCL = NOCT * 4 // 16
A("v_mov_b32 v19, v%d" % vL16)
A("s_cmp_lg_u32 s%d, 3" % sW)
A("s_cbranch_scc1 Lm_c3")
C("wave 3: this workgroup's table slots")
A("s_mul_i32 s%d, s2, %d" % (sT0, NOCT * 4))
A("s_add_u32 s%d, s%d, %d" % (sT0, sT0, XENT * 4))
A("v_add_u32 v19, s%d, v19" % sT0)
A("s_lshl_b32 s%d, s2, 4" % sT0)
if XENT: A("v_writelane_b32 v19, s%d, %d" % (sT0, NCL))
A("s_mov_b32 s%d, %s" % (sT1, hx(TB)))
A("s_mov_b64 %s, %d" % (sr(sH, 2), (1 << (NCL + (1 if XENT else 0))) - 1))
LB("Lm_c3")
A("s_mov_b64 exec, %s" % sr(sH, 2))
A("buffer_store_dwordx4 %s, v19, %s, s%d offen sc1" % (vr(W, 4), sr(sWS, 4), sT1))
A("s_mov_b64 exec, -1")

common_addr()
A("s_add_u32 s%d, s%d, s%d" % (sQS, sQS, sGR))
A("s_add_u32 s%d, s%d, %d" % (sQS, sQS, Q1_OFF))
wtile_voff(10, 22)
A("v_and_b32 v19, 7, v%d" % vLANE)
A("v_lshrrev_b32 v25, 2, v%d" % vLANE)
A("v_lshlrev_b32 v25, 7, v25")
A("v_lshl_add_u32 v%d, v18, 2, v25" % vOST)
A("v_lshlrev_b32 v25, 7, v16")
A("v_lshl_add_u32 v%d, v19, 4, v25" % vOLD)
C("lanes n>=8 of the first two o loads fetch the lse values instead: offset relative to the o block")
A("s_mul_i32 s%d, s%d, %d" % (sT0, sA, 128 - 8192))
A("s_mul_i32 s%d, s%d, %d" % (sT1, sW, 32 - 2048))
A("s_add_u32 s%d, s%d, s%d" % (sT0, sT0, sT1))
A("s_add_u32 s%d, s%d, %d" % (sT0, sT0, LSE_OFF[0] - O_OFF[0]))
A("v_add_u32 v25, s%d, v%d" % (sT0, vLSE))
A("v_xor_b32 v26, 16, v25")
A("v_add_u32 v26, -512, v26")
A("v_cmp_gt_u32 vcc, 8, v17")
A("s_nop 1")
A("v_cndmask_b32 v%d, v25, v%d, vcc" % (vLSE, vOLD))
A("v_cndmask_b32 v%d, v26, v%d, vcc" % (vLS2, vOLD))
A("v_lshlrev_b32 v%d, 1, v%d" % (vPST, vLANE))
A("v_lshlrev_b32 v25, 3, v16")
A("v_lshl_add_u32 v%d, v19, 4, v25" % vX1S)
A("s_mul_i32 s%d, s%d, %d" % (sT0, sW, RBS))
A("s_add_u32 s%d, s%d, %d" % (sT0, sT0, L_RB))
A("v_mul_u32_u24 v25, 528, v18")
A("v_lshl_add_u32 v25, v16, 4, v25")
A("v_lshrrev_b32 v26, 2, v17")
A("v_lshl_add_u32 v25, v26, 7, v25")
A("v_add_u32 v%d, s%d, v25" % (vRBW, sT0))
A("s_mul_i32 s%d, s%d, 528" % (sT0, sW))
A("s_add_u32 s%d, s%d, %d" % (sT0, sT0, L_RB))
A("v_lshlrev_b32 v25, 3, v%d" % vLANE)
A("v_add_u32 v%d, s%d, v25" % (vRBR, sT0))
A("s_lshl_b32 s%d, s%d, 3" % (sT0, sW))
A("s_add_u32 s%d, s%d, %d" % (sT0, sT0, L_ML))
A("v_lshlrev_b32 v25, 5, v18")
A("v_add_u32 v%d, s%d, v25" % (vMLW, sT0))
A("s_lshl_b32 s%d, s%d, 5" % (sT0, sW))
A("s_add_u32 s%d, s%d, %d" % (sT0, sT0, L_ML))
A("v_mov_b32 v%d, s%d" % (vMLR, sT0))
A("v_mov_b32 v25, 0x3f80")
A("v_mov_b32 v26, 0x3f800000")
for r in range(4):
    A("v_cmp_eq_u32 vcc, %d, v17" % (2 * r))
    A("v_cmp_eq_u32 %s, %d, v17" % (sr(sH, 2), 2 * r + 1))
    A("s_nop 0")
    A("v_cndmask_b32 v%d, 0, v25, vcc" % (SEL + r))
    A("v_cndmask_b32 v%d, v%d, v26, %s" % (SEL + r, SEL + r, sr(sH, 2)))
for i in range(16): A("v_mov_b32 v%d, 0" % (PM + i))
for p in range(4):
    A("s_mov_b32 s%d, %s" % (sPM + 2 * p, hx(0x000f000f << (4 * p))))
    A("s_mov_b32 s%d, %s" % (sPM + 2 * p + 1, hx(0x000f000f << (4 * p))))
soff(sOS, [(sW, 13), (sA, 11), (sC, 4), (sJ, 17)], O_OFF[0])
soff(sOL, [(sA, 13), (sW, 11), (sJ, 17)], O_OFF[0])
A("s_add_u32 s%d, s%d, %s" % (sQL, sOL, hx(Q0_OFF - O_OFF[0])))
soff(sLS, [(sW, 7), (sA, 5), (sC, 2), (sJ, 17)], LSE_OFF[0])
soff(sPS, [(sW, 15), (sC, 12), (sJ, 9), (sA, 7)], PB)
A("s_mov_b32 s%d, %s" % (sSC, hx(f2u(128 ** -0.5 * math.log2(math.e)))))
A("s_getreg_b32 s%d, hwreg(HW_REG_XCC_ID, 0, 3)" % sXCC)
C("first q projection")
A("s_sub_u32 s%d, s%d, s%d" % (sIT, sQS, sGR))
A("s_lshl_b32 s%d, s%d, 1" % (sIT, sIT))
A("s_add_u32 s%d, s%d, s%d" % (sIT, sIT, sGR))
A("s_add_u32 s%d, s%d, %s" % (sIT, sIT, hx(Q0_OFF - 2 * Q1_OFF)))
A("v_lshlrev_b32 v21, 1, v%d" % vQST)
STAMP(12)
if DIAG: A("v_mov_b32 v31, v30")
A("s_waitcnt vmcnt(%d)" % (4 + D1 + 1))
A("s_branch Llnq")
LB("Lq_first")
A("s_waitcnt vmcnt(%d) lgkmcnt(0)" % (D1 + 1))
lds_arrive(0, vT + 4)
for i in range(D1, D2): kv_issue(i)
tags()
A("s_or_b32 s%d, s%d, s%d" % (sXCC, sXCC, sTG2))
lds_spin(0, 8, vT + 4)
wqf_reads()
A("s_waitcnt lgkmcnt(0)")
A("s_branch Lq_go")
LB("Lh_qst")
A("v_mov_b32 v%d, s%d" % (W + 6, sTG1))
A("v_mov_b32 v%d, s%d" % (W + 7, sXCC))
A("buffer_store_dwordx4 %s, v21, %s, s%d offen%s" % (vr(W + 4, 4), sr(sWS, 4), sIT, "" if int(OPT.get("fast", 1)) else " sc1"))
A("s_add_u32 s%d, s%d, %s" % (sIT, sIT, hx(QB_DELTA)))
A("buffer_store_dwordx4 %s, v21, %s, s%d offen sc1" % (vr(W + 4, 4), sr(sWS, 4), sIT))
A("s_mov_b64 exec, -1")
STAMP(14)
MP("mq")
A("v_lshrrev_b32 v16, 4, v%d" % vLANE)
A("v_and_b32 v17, 15, v%d" % vLANE)
A("v_xor_b32 v24, v16, v17")
A("v_lshlrev_b32 v24, 4, v24")
A("v_lshl_add_u32 v24, v17, 8, v24")
A("s_lshl_b32 s%d, s%d, 13" % (sT1, sW))
A("s_add_u32 s%d, s%d, %d" % (sT2, sT1, L_K))
for t in range(4): A("v_xor_b32 v%d, %d, v24" % (18 + t, 64 * t))
for t in range(4): A("v_add_u32 v%d, s%d, v%d" % (18 + t, sT2, 18 + t))
VA = W + 32
A("v_lshrrev_b32 v24, 2, v%d" % vLANE)
A("v_and_b32 v25, 7, v24")
A("v_lshlrev_b32 v25, 1, v25")
A("v_bfe_u32 v26, v%d, 1, 1" % vLANE)
A("v_xor_b32 v25, v25, v26")
A("v_lshlrev_b32 v25, 4, v25")
A("v_lshl_add_u32 v25, v24, 8, v25")
A("v_and_b32 v26, 1, v%d" % vLANE)
A("v_lshl_add_u32 v25, v26, 3, v25")
A("s_add_u32 s%d, s%d, %d" % (sT2, sT1, L_V))
for t in range(8): A("v_xor_b32 v%d, %d, v25" % (VA + t, 32 * t))
for t in range(8): A("v_add_u32 v%d, s%d, v%d" % (VA + t, sT2, VA + t))
soff(sT4, [(sJ, 19), (sA, 17), (sW, 15), (sC, 7)], 0)
A("s_lshl_b32 s%d, s%d, 12" % (sT5, sW))
A("s_add_u32 s%d, s%d, %d" % (sT5, sT5, L_WO))
soff(sT3, [(sA, 10), (sC, 7)], 0)
A("v_lshlrev_b32 v24, 5, v%d" % vLANE)
A("s_lshl_b32 s%d, s%d, 10" % (sT2, sW))
A("s_add_u32 s%d, s%d, %d" % (sT2, sT2, L_QF))
A("v_add_u32 v25, s%d, v%d" % (sT2, vL16))
A("v_add_u32 v26, %d, v%d" % (L_QF, vL16))
QP = W
def q0_issue(QP=QP):
    A("buffer_load_dwordx4 %s, v24, %s, s%d offen sc1" % (vr(QP, 4), sr(sWS, 4), sQL))
    A("buffer_load_dwordx4 %s, v24, %s, s%d offen offset:16 sc1" % (vr(QP + 4, 4), sr(sWS, 4), sQL))
def flag_block():
    if True:
        A("s_cmp_lg_u32 s%d, 0" % sW)
        A("s_cbranch_scc1 Lnoflag")
        C("every sentinel store of this workgroup is acknowledged: announce it")
        lds_spin(8, 4, vT)
        A("v_mov_b32 v16, s%d" % sTG1)
        A("v_mov_b32 v17, s%d" % sXCC)
        soff(sT1, [(2, 4)], FB)
        A("s_mov_b64 exec, 1")
        A("buffer_store_dwordx2 v[16:17], v%d, %s, s%d offen sc1" % (PM, sr(sWS, 4), sT1))
        A("s_mov_b64 exec, -1")
        LB("Lnoflag")
ycl = D2 - D1 + 2; st_arr = st_fl = False
for i in range(D2, 16):
    dp = DEPTH
    if i == 16 - QV:
        A("s_waitcnt vmcnt(%d)" % (dp - 2)); q0_issue(); ycl += 2
    A("s_waitcnt vmcnt(%d)" % (dp - 1))
    if EFL:
        if st_arr and not st_fl:
            flag_block(); st_fl = True
        if not st_arr and ycl >= dp - 1:
            lds_arrive(8, vT); st_arr = True
    kv_issue(i); ycl += 1
q0_issue(QP + 8)
C("everything older than the V loads is complete: K, late sentinels")
assert not QV2
A("s_waitcnt vmcnt(%d)" % int(OPT.get("kw", 14)))
if EFL: assert st_fl
else: lds_arrive(8, vT)
STAMP(1)
for t in range(4):
    for T in range(2):
        A("ds_read_b128 %s, v%d offset:%d" % (vr(KF + 16 * T + 4 * t, 4), 18 + t, 4096 * T))
if "dump" in OPT:
    A("s_waitcnt lgkmcnt(0)")
    soff(sT1, [(2, 15), (sW, 13)], 0x1000000)
    for k in range(8):
        A("buffer_store_dwordx4 %s, v%d, %s, s%d offen" % (vr(KF + 4 * k, 4), vL16, sr(sWS, 4), sT1))
        A("s_add_u32 s%d, s%d, 1024" % (sT1, sT1))
    A("s_waitcnt vmcnt(0)")
if not EFL: flag_block()
def wait_w0(n):
    if EFL:
        A("s_waitcnt vmcnt(%d)" % n); return
    uid[0] += 1
    A("s_cmp_eq_u32 s%d, 0" % sW)
    A("s_cbranch_scc1 Lww%d" % uid[0])
    A("s_waitcnt vmcnt(%d)" % n)
    LB("Lww%d" % uid[0])
    A("s_waitcnt vmcnt(%d)" % (n + 1))
wait_w0(QV + 2 + (2 if QV2 else 0))
STAMP(2)
A("s_setprio 2")
A("s_mov_b32 s%d, %s" % (sCNT, hx(SPIN)))
A("s_mov_b32 s%d, 0" % sY)
A("s_mov_b32 s%d, 0" % sIT)
LB("Lmq")
A("v_and_b32 v16, -8, v%d" % (QP + 3))
A("v_and_b32 v17, -8, v%d" % (QP + 7))
A("v_cmp_ne_u32 vcc, s%d, v%d" % (sTG1, QP + 2))
A("v_cmp_ne_u32 %s, s%d, v%d" % (sr(sRET, 2), sTG1, QP + 6))
A("s_or_b64 vcc, vcc, %s" % sr(sRET, 2))
A("v_cmp_ne_u32 %s, s%d, v16" % (sr(sRET, 2), sTG2))
A("s_or_b64 vcc, vcc, %s" % sr(sRET, 2))
A("v_cmp_ne_u32 %s, s%d, v17" % (sr(sRET, 2), sTG2))
A("s_or_b64 vcc, vcc, %s" % sr(sRET, 2))
if not int(OPT.get("nochk", 0)): A("s_cbranch_vccnz Lmqr")
LB("Lmqd")
if DIAG:
    A("s_sub_u32 s%d, s%d, s%d" % (sT0, sCNT, sY)); A("v_writelane_b32 v31, s%d, 0" % sT0)
Ls = L; L = []
L.append(".p2align 6"); LB("Lst_mq"); A("s_setpc_b64 %s" % sr(sRET, 2))
LB("Lmqr")
A("s_cmp_lg_u32 s%d, 0" % sY)
A("s_cbranch_scc1 Lmqr2")
if QV2:
    A("s_cmp_lg_u32 s%d, 0" % sIT)
    A("s_cbranch_scc1 Lmqr1")
    A("s_mov_b32 s%d, 1" % sIT)
    wait_w0(QV2 + 2)
    for k in range(8): A("v_mov_b32 v%d, v%d" % (QP + k, XR + k))
    A("s_branch Lmq")
    LB("Lmqr1")
C("first look failed: take the second one (V has landed with it: request its fragments now)")
A("s_waitcnt vmcnt(0)")
A("s_mov_b32 s%d, 1" % sY)
for k in range(8): A("v_mov_b32 v%d, v%d" % (QP + k, QP + 8 + k))
if not VLATE:
    for t in range(8):
        for hf in range(2):
            A("ds_read_b64_tr_b16 %s, v%d offset:%d" % (vr(VF + 4 * t + 2 * hf, 2), VA + t, 4096 * hf))
A("s_branch Lmq")
LB("Lmqr2")
C("still not there: poll the plain copy a few times, then both copies in turn")
A("s_cmp_le_u32 s%d, %s" % (sCNT, hx(SPIN - 6)))
A("s_cselect_b32 s%d, %s, 0" % (sT0, hx(QB_DELTA)))
A("s_xor_b32 s%d, s%d, s%d" % (sQL, sQL, sT0))
q0_issue()
A("s_waitcnt vmcnt(0)")
A("s_sub_u32 s%d, s%d, 1" % (sCNT, sCNT))
A("s_cbranch_scc0 Lmq")
A("s_branch Lmqd")
ool.append(L); L = Ls
A("v_cmp_ne_u32 vcc, s%d, v%d" % (sXCC, QP + 3))
A("v_mov_b32 v%d, v%d" % (QP + 2, QP + 4))
A("v_mov_b32 v%d, v%d" % (QP + 3, QP + 5))
A("ds_write_b128 v25, %s" % vr(QP, 4))
A("s_cmp_eq_u64 vcc, 0")
A("s_cselect_b32 s%d, 1, 0x101" % sT0)
A("v_mov_b32 v16, s%d" % sT0)
A("s_waitcnt lgkmcnt(0)")
lds_arrive(4, 16, None)
if VLATE:
    A("s_cmp_eq_u32 s%d, 0" % sY)
    A("s_cbranch_scc1 Lnvf")
    for t in range(8):
        for hf in range(2):
            A("ds_read_b64_tr_b16 %s, v%d offset:%d" % (vr(VF + 4 * t + 2 * hf, 2), VA + t, 4096 * hf))
    LB("Lnvf")
STAMP(15)
A("buffer_load_dwordx2 %s, v%d, %s, s%d offen" % (vr(RES + 2, 2), vX1S, sr(sX, 4), sT3))
FLG = W + 44
soff(sIT, [(sW, 10)], FB)
soff(sQL, [(sA, 12), (sJ, 17)], Q1_OFF)
for k in range(4):
    A("s_add_u32 s%d, s%d, %d" % (sT0, sC, k))
    A("s_and_b32 s%d, s%d, 3" % (sT0, sT0))
    A("s_lshl_b32 s%d, s%d, 10" % (sKO + k, sT0))
A("s_and_b32 s%d, s%d, 1" % (sT0, sC))
A("s_lshl_b32 s%d, s%d, 6" % (sT0, sT0))
A("v_xor_b32 v22, s%d, v22" % sT0); A("v_xor_b32 v23, s%d, v23" % sT0)
A("s_lshl_b32 s%d, s%d, 2" % (sT3, sM))
A("s_add_u32 s%d, s%d, s%d" % (sT3, sT3, sW))
A("s_lshl_b32 s%d, s%d, 8" % (sT3, sT3))
A("v_lshlrev_b32 v21, 7, v%d" % vLANE)
A("v_add_u32 v21, s%d, v21" % sT3)
A("s_lshl_b32 s%d, s%d, 7" % (sT0, sW))
A("s_add_u32 s%d, s%d, %d" % (sT0, sT0, LSE_OFF[0]))
A("v_writelane_b32 v21, s%d, 2" % sT0)
lds_spin(4, 4, vT, mask=0xff)
A("s_cmp_lt_u32 s%d, 256" % sT1)
A("s_cselect_b32 s%d, %d, 0" % (sFAST, int(OPT.get("fast", 1))))
QF = W + 16
for t in range(4):
    A("ds_read_b128 %s, v26 offset:%d" % (vr(QF + 4 * t, 4), 1024 * t))
S = W
qk = []
for t in range(4):
    for T in range(2):
        qk.append(mf(S + 4 * T, KF + 16 * T + 4 * t, QF + 4 * t, None if t == 0 else S + 4 * T))
for t in range(4):
    A("s_waitcnt lgkmcnt(%d)" % (3 - t))
    A(qk[2 * t]); A(qk[2 * t + 1])
def wo_issue():
    C("every wave holds its K fragments: the wo tile may land in the K area")
    for k in range(4):
        A("s_add_u32 m0, s%d, s%d" % (sT5, sKO + k))
        A("s_lshl3_add_u32 s%d, s%d, s%d" % (sT0, sKO + k, sT4))
        A("buffer_load_dwordx4 v%d, %s, s%d offen nt lds" % (22 + (k & 1), sr(sWO, 4), sT0))
if WOP == 0: wo_issue()
if PRET:
    C("bring the first layer's o / lse lines (their sentinels are in place) into L2")
    A("s_mov_b64 exec, 7")
    A("buffer_load_dword v%d, v21, %s, s%d offen sc1" % (W + 40, sr(sWS, 4), sGR))
    A("s_mov_b64 exec, -1")
STAMP(3)
A("s_branch Lk_go")

LB("Llnq")
C("LayerNorm of the row held in XR, then q partial = xn @ wq tile")
X = W
row_stats(XR, vT, X)
A("v_add_f32 v%d, %s, v%d" % (vT + 1, EPS, vT + 1))
A("v_rsq_f32 v%d, v%d" % (vT + 2, vT + 1))
A("s_cmp_eq_u32 s%d, 0" % sLAY)
A("v_mul_f32 v%d, v%d, v%d" % (vT + 3, vT, vT + 2))
for i in range(4):
    A("v_pk_fma_f32 %s, %s, %s, %s op_sel:[0,0,1] op_sel_hi:[1,0,1] neg_lo:[0,0,1] neg_hi:[0,0,1]" % (vr(X + 2 * i, 2), vr(X + 2 * i, 2), vr(vT + 2, 2), vr(vT + 2, 2)))
for i in range(4):
    A("v_cvt_pk_bf16_f32 v%d, v%d, v%d" % (X + 8 + i, X + 2 * i, X + 2 * i + 1))
A("ds_write_b128 v%d, %s" % (vXNW, vr(X + 8, 4)))
A("s_cbranch_scc1 Lq_first")
A("s_waitcnt lgkmcnt(0)")
A("s_barrier")
LB("Lq_go")
BF = W + 16
for t in range(4):
    A("ds_read_b128 %s, v%d offset:%d" % (vr(BF + 4 * t, 4), vXNR, 64 * t))
for t in range(4):
    A("s_waitcnt lgkmcnt(%d)" % (3 - t))
    mfma(W, WQF + 4 * t, BF + 4 * t, None if t == 0 else W)
A("s_cmp_eq_u32 s%d, 0" % sLAY)
A("s_mov_b64 exec, %s" % sr(sMSK, 2))
NOP(6)
A("v_cvt_pk_bf16_f32 v%d, v%d, v%d" % (W + 4, W, W + 1))
A("v_cvt_pk_bf16_f32 v%d, v%d, v%d" % (W + 5, W + 2, W + 3))
A("s_cbranch_scc1 Lh_qst")
fastcmp()
store_local("buffer_store_dwordx2", vr(W + 4, 2), vQST, sQS)
A("s_mov_b64 exec, -1")
A("ds_write_b128 v%d, %s offset:%d" % (vXNW, vr(XR, 4), L_X2 - L_XN))
A("s_mov_b32 s%d, 0" % sY)
for s, d in [(sOL, O_OFF[1] - O_OFF[0]), (sOS, O_OFF[1] - O_OFF[0]), (sLS, LSE_OFF[1] - LSE_OFF[0]), (sPS, P_L)]:
    A("s_add_u32 s%d, s%d, %d" % (s, s, d))
STAMP(2)

C("attention over this workgroup's 128 keys")
if QS:
    C("each wave fetches one k-step of q and shares it through LDS")
    A("s_lshl_b32 s%d, s%d, 10" % (sT3, sW))
    A("s_add_u32 s%d, s%d, s%d" % (sT4, sQL, sT3))
    A("s_add_u32 s%d, s%d, %d" % (sT3, sT3, L_RB + 12288))
    A("v_add_u32 v25, s%d, v%d" % (sT3, vL16))
    A("v_add_u32 v26, %d, v%d" % (L_RB + 12288, vL16))
    ppoll(lambda k: A("buffer_load_dwordx4 %s, v%d, %s, s%d offen sc1" % (vr(W + 32 + 4 * k, 4), vL16, sr(sWS, 4), sT4)),
          lambda k: range(W + 32 + 4 * k, W + 36 + 4 * k), 1, vT, lambda k: ["ds_write_b128 v25, %s" % vr(W + 32 + 4 * k, 4)], pre=QPRE, gap=QGAP, tag=0)
    A("s_waitcnt lgkmcnt(0)")
    A("s_barrier")
    for t in range(4):
        A("ds_read_b128 %s, v26 offset:%d" % (vr(QF + 4 * t, 4), 1024 * t))
    for t in range(4):
        A("s_waitcnt lgkmcnt(%d)" % (3 - t))
        A(qk[2 * t]); A(qk[2 * t + 1])
    touch_stub("k")
else:
    def iq(k):
        for t in range(4):
            A("buffer_load_dwordx4 %s, v%d, %s, s%d offen offset:%d sc1" % (vr(QF + 16 * k + 4 * t, 4), vL16, sr(sWS, 4), sQL, 1024 * t))
    def qks(k):
        return [mf(S + 4 * T, KF + 16 * T + 4 * t, QF + 16 * k + 4 * t, None if t == 0 else S + 4 * T) for t in range(4) for T in range(2)]
    ppoll(iq, lambda k: range(QF + 16 * k, QF + 16 * k + 16), 4, vT, qks, pre=QPRE, gap=QGAP, tag=0, stub="k", per_load=lambda k, i: qks(k)[2 * i:2 * i + 2])
STAMP(3)
LB("Lk_go")
NOP(5)
for ctl in ["row_ror:4", "row_ror:8"]:
    for i in range(8):
        A("v_add_f32_dpp v%d, v%d, v%d %s row_mask:0xf bank_mask:0xf" % (S + i, S + i, S + i, ctl))
A("v_max3_f32 v%d, v%d, v%d, v%d" % (vT, S, S + 1, S + 2))
A("v_max3_f32 v%d, v%d, v%d, v%d" % (vT + 1, S + 3, S + 4, S + 5))
A("v_max3_f32 v%d, v%d, v%d, v%d" % (vT, vT, S + 6, S + 7))
A("v_max_f32 v%d, v%d, v%d" % (vT, vT, vT + 1))
A("v_mov_b32 v%d, v%d" % (vT + 1, vT))
A("s_nop 1")
A("v_permlane16_swap_b32 v%d, v%d" % (vT, vT + 1))
A("v_max_f32 v%d, v%d, v%d" % (vT, vT, vT + 1))
A("v_mov_b32 v%d, v%d" % (vT + 1, vT))
A("s_nop 1")
A("v_permlane32_swap_b32 v%d, v%d" % (vT, vT + 1))
A("v_max_f32 v%d, v%d, v%d" % (vT, vT, vT + 1))
A("v_mul_f32 v%d, s%d, v%d" % (vT + 2, sSC, vT))
for i in range(8):
    A("v_fma_f32 v%d, v%d, s%d, -v%d" % (S + i, S + i, sSC, vT + 2))
for i in range(8):
    A("v_exp_f32 v%d, v%d" % (S + i, S + i))
for p in range(4):
    A("s_mov_b64 exec, %s" % sr(sPM + 2 * p, 2))
    for i in range(4):
        A("v_cvt_pk_bf16_f32 v%d, v%d, v%d" % (PM + 4 * p + i, S + 2 * i, S + 2 * i + 1))
A("s_mov_b64 exec, -1")
STAMP(4)
A("s_cmp_lg_u32 s%d, 0" % sLAY)
A("s_cbranch_scc1 Lv_go")
wait_w0((5 if WOP == 0 else 1) + PRET)
if WOP == 1: wo_issue()
A("buffer_load_dwordx4 %s, v%d, %s, s%d offen sc1" % (vr(FLG, 4), vL16, sr(sWS, 4), sIT))
STAMP(6)
A("s_cmp_lg_u32 s%d, 0" % sY)
A("s_cbranch_scc1 Lv_have")
for t in range(8):
    for hf in range(2):
        A("ds_read_b64_tr_b16 %s, v%d offset:%d" % (vr(VF + 4 * t + 2 * hf, 2), VA + t, 4096 * hf))
A("s_waitcnt lgkmcnt(0)")
LB("Lv_have")
if TOT:
    A("s_memrealtime s[42:43]"); A("s_waitcnt lgkmcnt(0)"); A("s_mov_b32 s97, s42")
MP("pv")
if MEAS and OPT["q"] in ("tg", "s1"): A("s_mov_b32 s97, s98")
A("s_cmp_lg_u32 s%d, 0" % sLAY)
LB("Lv_go")
OA = W + 8
mfma(W + 16, ONES, PM, None)
for p in range(4):
    for T in range(2):
        mfma(OA + 4 * T, VF + 4 * (2 * p + T), PM + 4 * p, None if p == 0 else OA + 4 * T)
A("s_mov_b64 exec, %s" % sr(sMSK, 2))
A("v_mov_b32 v%d, v%d" % (vT + 3, W + 16))
A("ds_write_b64 v%d, %s" % (vMLW, vr(vT + 2, 2)))
A("s_mov_b64 exec, -1")
NOP(3)
A("ds_write_b128 v%d, %s" % (vRBW, vr(OA, 4)))
A("ds_write_b128 v%d, %s offset:64" % (vRBW, vr(OA + 4, 4)))
A("s_waitcnt lgkmcnt(0)")
A("s_cbranch_scc1 Lrb_bar")
lds_arrive(12, vT + 4)
if WOP == 2: wo_issue()
lds_spin(12, 4, vT + 4)
A("s_branch Lrb_go")
LB("Lrb_bar")
A("s_barrier")
LB("Lrb_go")
A("ds_read_b128 %s, v%d" % (vr(W, 4), vMLR))
A("ds_read_b128 %s, v%d offset:16" % (vr(W + 4, 4), vMLR))
for w in range(4):
    A("ds_read_b64 %s, v%d offset:%d" % (vr(W + 8 + 2 * w, 2), vRBR, RBS * w))
A("v_mov_b32 v%d, 0" % (vT + 4))
fastcmp()
A("s_waitcnt lgkmcnt(4)")
A("v_max3_f32 v%d, v%d, v%d, v%d" % (vT, W, W + 2, W + 4))
A("v_max_f32 v%d, v%d, v%d" % (vT, vT, W + 6))
for w in range(4): A("v_sub_f32 v%d, v%d, v%d" % (W + 2 * w, W + 2 * w, vT))
for w in range(4): A("v_exp_f32 v%d, v%d" % (W + 2 * w, W + 2 * w))
A("v_mul_f32 v%d, v%d, v%d" % (vT + 1, W, W + 1))
for w in range(1, 4): A("v_fmac_f32 v%d, v%d, v%d" % (vT + 1, W + 2 * w, W + 2 * w + 1))
A("s_waitcnt lgkmcnt(0)")
A("v_pk_mul_f32 %s, %s, %s op_sel_hi:[1,0]" % (vr(W + 8, 2), vr(W + 8, 2), vr(W, 2)))
A("v_rcp_f32 v%d, v%d" % (vT + 2, vT + 1))
A("v_pk_fma_f32 %s, %s, %s, %s op_sel_hi:[1,0,1]" % (vr(W + 8, 2), vr(W + 10, 2), vr(W + 2, 2), vr(W + 8, 2)))
A("v_log_f32 v%d, v%d" % (vT + 5, vT + 1))
for w in range(2, 4):
    A("v_pk_fma_f32 %s, %s, %s, %s op_sel_hi:[1,0,1]" % (vr(W + 8, 2), vr(W + 8 + 2 * w, 2), vr(W + 2 * w, 2), vr(W + 8, 2)))
A("v_pk_mul_f32 %s, %s, %s op_sel_hi:[1,0]" % (vr(W + 8, 2), vr(W + 8, 2), vr(vT + 2, 2)))
A("v_add_f32 v%d, v%d, v%d" % (vT + 5, vT + 5, vT))
A("v_cvt_pk_bf16_f32 v%d, v%d, v%d" % (W + 8, W + 8, W + 9))
store_local("buffer_store_dword", "v%d" % (W + 8), vOST, sOS)
A("s_mov_b64 exec, 1")
store_local("buffer_store_dword", "v%d" % (vT + 5), vT + 4, sLS)
A("s_mov_b64 exec, -1")
STAMP(5)

C("wo phase: wave = batch, rows = key splits")
OF = W; LS = W + 32; DA = WQF
assert LSE_OFF[1] - O_OFF[1] == LSE_OFF[0] - O_OFF[0]
def io(k):
    for t in range(4):
        A("buffer_load_dwordx4 %s, v%d, %s, s%d offen offset:%d sc1" % (vr(OF + 16 * k + 4 * t, 4), [vLSE, vLS2, vOLD, vOLD][t], sr(sWS, 4), sOL, 512 * t))
A("s_cmp_lg_u32 s%d, 0" % sLAY)
A("s_cbranch_scc1 Lo_go")
C("first layer: wo tile landed -> fragments; every workgroup has announced its clears")
if WOP == 3: wo_issue()
A("s_waitcnt vmcnt(%d)" % (2 if WOP < 3 else 0))
STAMP(13)
A("s_mov_b32 s%d, %s" % (sT4, hx(SPIN)))
LB("Lap")
A("v_and_b32 v24, -8, v%d" % (FLG + 1))
A("v_cmp_ne_u32 vcc, s%d, v%d" % (sTG1, FLG))
A("v_cmp_ne_u32 %s, s%d, v24" % (sr(sH, 2), sTG2))
A("s_or_b64 vcc, vcc, %s" % sr(sH, 2))
A("s_cbranch_vccnz Lar")
LB("Lad")
lds_arrive(16, 24)
for i in range(2):
    A("v_lshlrev_b32 v%d, 16, v%d" % (W + 40 + 2 * i, RES + 2 + i))
    A("v_and_b32 v%d, 0xffff0000, v%d" % (W + 41 + 2 * i, RES + 2 + i))
for i in range(4): A("v_mov_b32 v%d, v%d" % (RES + i, W + 40 + i))
for ct in range(4): A("v_xor_b32 v%d, %d, v%d" % (W + 40 + ct, 32 * ct, vWT))
for ct in range(4): A("v_add_u32 v%d, %d, v%d" % (W + 40 + ct, L_WO, W + 40 + ct))
lds_spin(16, 4, 24)
STAMP(14)
A("s_mov_b32 s%d, 1" % sY)
LB("Lo_go")
A("s_mov_b32 s%d, 0x55555555" % sT4)
A("s_mov_b32 s%d, 0x55555555" % sT5)
def pre_o():
    A("s_cmp_eq_u32 s%d, 0" % sY)
    A("s_cbranch_scc1 Lo_nof")
    A("s_mov_b32 s%d, 0" % sY)
    for t in range(4):
        for ct in range(4):
            for hf in range(2):
                A("ds_read_b64_tr_b16 %s, v%d offset:%d" % (vr(WOF + 16 * ct + 4 * t + 2 * hf, 2), W + 40 + ct, 4096 * t + 512 * hf))
    LB("Lo_nof")
ool.append(["Lar:", "    s_sleep 4", "    s_lshl_b32 s%d, s%d, 10" % (sT5, sW), "    s_add_u32 s%d, s%d, %s" % (sT5, sT5, hx(FB)),
            "    buffer_load_dwordx4 %s, v%d, %s, s%d offen sc1" % (vr(FLG, 4), vL16, sr(sWS, 4), sT5),
            "    s_waitcnt vmcnt(0)", "    s_sub_u32 s%d, s%d, 1" % (sT4, sT4), "    s_cbranch_scc0 Lap", "    s_branch Lad"])
C("softmax over the 8 key splits: lanes n>=8 hold own lse in OF[0:3], the other four in OF[4:7]")
vU = vT + 2
def wo_all(k, t):
    o = OF + 16 * k
    m = [mf(DA + 4 * ct, o + 4 * t, WOF + 16 * ct + 4 * t, None if t == 0 else DA + 4 * ct) for ct in range(4)]
    va = ["v_max3_f32 v%d, v%d, v%d, v%d" % (vU, o, o + 1, o + 2), "v_max3_f32 v%d, v%d, v%d, v%d" % (vU + 1, o + 3, o + 4, o + 5),
          "v_max3_f32 v%d, v%d, v%d, v%d" % (vU, vU, o + 6, o + 7), "v_max_f32 v%d, v%d, v%d" % (vU, vU, vU + 1)]
    va += ["v_sub_f32 v%d, v%d, v%d" % (LS + i, o + i, vU) for i in range(4)]
    va += ["v_exp_f32 v%d, v%d" % (LS + i, LS + i) for i in range(4)]
    vb = ["v_mov_b32_dpp v%d, v%d row_ror:8 row_mask:0xf bank_mask:0x3" % (LS + i, LS + i) for i in range(4)]
    vb += ["v_add_f32 v%d, v%d, v%d" % (vU, LS, LS + 1), "v_add_f32 v%d, v%d, v%d" % (vU + 1, LS + 2, LS + 3),
           "v_add_f32 v%d, v%d, v%d" % (vU, vU, vU + 1), "v_mov_b32 v%d, v%d" % (vU + 1, vU)]
    f = {0: [], 1: va[:4], 2: va[4:], 3: vb}[t]
    out = ["s_waitcnt lgkmcnt(%d)" % [15, 15, 8, 0][t]] if t != 1 else []
    for x in m:
        out.append(x)
        for _ in range(2):
            if f: out.append(f.pop(0))
    return out
assert PROG and OGAP < 0
ppoll(io, lambda k: range(OF + 16 * k, OF + 16 * k + 16), 4, vT, None, pre=OPRE, gap=OGAP, mid=pre_o, tag=1, per_load=wo_all)
if TPF == 3: lds_arrive(60, vT + 4)
STAMP(7)
A("v_permlane16_swap_b32 v%d, v%d" % (vU, vU + 1))
A("v_mul_f32 v%d, v%d, v%d" % (DA, DA, LS))
A("v_add_f32 v%d, v%d, v%d" % (vT, vU, vU + 1))
A("v_mul_f32 v%d, v%d, v%d" % (DA + 4, DA + 4, LS))
A("v_rcp_f32 v%d, v%d" % (vT, vT))
A("v_mul_f32 v%d, v%d, v%d" % (DA + 8, DA + 8, LS))
for i in range(1, 4):
    for ct in range(3):
        A("v_fmac_f32 v%d, v%d, v%d" % (DA + 4 * ct, DA + 4 * ct + i, LS + i))
    if i == 1: A("v_mul_f32 v%d, v%d, v%d" % (DA + 12, DA + 12, LS))
for i in range(1, 4): A("v_fmac_f32 v%d, v%d, v%d" % (DA + 12, DA + 12 + i, LS + i))
A("v_permlane16_swap_b32 v%d, v%d" % (DA, DA + 4))
A("s_nop 0")
A("v_permlane16_swap_b32 v%d, v%d" % (DA + 8, DA + 12))
A("v_add_f32 v%d, v%d, v%d" % (DA, DA, DA + 4))
A("v_add_f32 v%d, v%d, v%d" % (DA + 8, DA + 8, DA + 12))
A("s_nop 1")
A("v_permlane32_swap_b32 v%d, v%d" % (DA, DA + 8))
A("v_mul_f32 v%d, v%d, v%d" % (DA, DA, vT))
A("s_cmp_lg_u32 s%d, 0" % sLAY)
A("s_nop 0")
A("v_mov_b32_dpp v%d, v%d quad_perm:[1,0,3,2] row_mask:0xf bank_mask:0xf" % (DA + 1, DA))
A("s_mov_b64 exec, %s" % sr(sT4, 2))
A("v_cvt_pk_bf16_f32 v%d, v%d, v%d" % (DA, DA, DA + 1))
A("buffer_store_dword v%d, v%d, %s, s%d offen sc1" % (DA, vPST, sr(sWS, 4), sPS))
A("s_mov_b64 exec, -1")
STAMP(8)
A("s_cbranch_scc1 Lfinal")
MP("p0")

if PRET:
    C("same for the remaining lines of the group's mailboxes")
    soff(sT1, [(sM, 11), (sW, 9), (sJ, 17)], CLRB_OFF)
    A("v_lshlrev_b32 v21, 7, v%d" % vLANE)
    A("s_mov_b64 exec, 15")
    A("buffer_load_dword v%d, v21, %s, s%d offen sc1" % (W + 47, sr(sWS, 4), sT1))
    A("s_mov_b64 exec, -1")
A("s_cmp_lg_u32 s%d, 0" % sW)
A("s_cbranch_scc1 Ltab")
C("stage 1 (wave 0): reduce 32 head partials of 64 outputs, add residual, publish x1 slice")
soff(sT1, [(sA, 15), (sC, 12)], PB)
soff(sT2, [(sA, 10), (sC, 7), (sJ, 17)], X1_OFF)
A("s_mov_b32 s%d, 0x00ff00ff" % sT4)
A("s_mov_b32 s%d, 0" % sT5)
def ip(k):
    for i in range(4):
        A("buffer_load_dwordx4 %s, v%d, %s, s%d offen offset:%d sc1" % (vr(W + 20 * k + 4 * i, 4), vL16, sr(sWS, 4), sT1, 1024 * i))
if GW: A("s_waitcnt vmcnt(0)")
ppoll(ip, lambda k: range(W + 20 * k, W + 20 * k + 16), 4, vT, lambda k: [mf(W + 16, SEL, W + 20 * k + 4 * i, None if i == 0 else W + 16) for i in range(4)], pre=GPRE, gap=GGAP, tag=2,
      per_load=lambda k, i: [mf(W + 16, SEL, W + 20 * k + 4 * i, None if i == 0 else W + 16)])
STAMP(9)
MP("s1")
fastcmp()
NOP(3)
for i in range(4):
    A("v_add_f32_dpp v%d, v%d, v%d row_ror:8 row_mask:0xf bank_mask:0xf" % (W + 16 + i, W + 16 + i, W + 16 + i))
A("s_mov_b64 exec, %s" % sr(sT4, 2))
A("v_pk_add_f32 %s, %s, %s" % (vr(W + 16, 2), vr(W + 16, 2), vr(RES, 2)))
A("v_pk_add_f32 %s, %s, %s" % (vr(W + 18, 2), vr(W + 18, 2), vr(RES + 2, 2)))
A("v_cvt_pk_bf16_f32 v%d, v%d, v%d" % (W + 16, W + 16, W + 17))
A("v_cvt_pk_bf16_f32 v%d, v%d, v%d" % (W + 17, W + 18, W + 19))
store_local("buffer_store_dwordx2", vr(W + 16, 2), vX1S, sT2)
A("s_mov_b64 exec, -1")
LB("Ltabdone")
soff(sT3, [(sW, 10), (sJ, 17)], X1_OFF)
def ix(k):
    A("buffer_load_dwordx4 %s, v%d, %s, s%d offen sc1" % (vr([XR, RES][k], 4), vL16, sr(sWS, 4), sT3))
wqf_reads()
ppoll(ix, lambda k: range([XR, RES][k], [XR, RES][k] + 4), 1, vT, lambda k: ["s_waitcnt lgkmcnt(0)", "v_readfirstlane_b32 s%d, v%d" % (sT1, vT + 2)],
      pre=XPRE, gap=XGAP, mid=lambda: A("ds_read_b32 v%d, v%d offset:20" % (vT + 2, vFL)), tag=3,
      fix=["v_mov_b32 v%d, v%d" % (XR + i, RES + i) for i in range(4)])
A("s_cmp_lt_u32 s%d, 3" % sT1)
A("s_cbranch_scc1 Ltw")
LB("Ltwd")
STAMP(10)

LB("Lmix")
C("x <- x + g(LN(LN(x))) ; g is tabulated for every bf16 input in range, evaluated directly otherwise")
X = W; HB = W + 8; RT = W + 12; AD = W + 16; Y = W + 24
row_stats(XR, vT, X)
A("v_add_f32 v%d, %s, v%d" % (vT + 2, EPS, vT + 1))
A("v_rsq_f32 v%d, v%d" % (vT + 2, vT + 2))
A("v_mov_b32 v%d, %s" % (vT + 4, hx(LO2 | (LO2 << 16))))
A("s_movk_i32 s%d, %d" % (sT5, NENT * 4))
A("v_mul_f32 v%d, v%d, v%d" % (vT + 1, vT + 1, vT + 2))
A("v_fmaak_f32 v%d, v%d, v%d, %s" % (vT + 1, vT + 1, vT + 2, EPS))
A("v_rsq_f32 v%d, v%d" % (vT + 1, vT + 1))
A("s_nop 0")
A("v_mul_f32 v%d, v%d, v%d" % (vT + 2, vT + 2, vT + 1))
A("v_mul_f32 v%d, v%d, v%d" % (vT + 3, vT, vT + 2))
for i in range(4):
    A("v_pk_fma_f32 %s, %s, %s, %s op_sel:[0,0,1] op_sel_hi:[1,0,1] neg_lo:[0,0,1] neg_hi:[0,0,1]" % (vr(AD + 2 * i, 2), vr(X + 2 * i, 2), vr(vT + 2, 2), vr(vT + 2, 2)))
for i in range(4):
    A("v_cvt_pk_bf16_f32 v%d, v%d, v%d" % (HB + i, AD + 2 * i, AD + 2 * i + 1))
for i in range(4):
    A("v_pk_lshlrev_b16 v%d, 1, v%d op_sel_hi:[0,1]" % (RT + i, HB + i))
    A("v_pk_lshrrev_b16 v%d, 15, v%d op_sel_hi:[0,1]" % (AD + i, HB + i))
for i in range(4):
    A("v_or_b32 v%d, v%d, v%d" % (RT + i, RT + i, AD + i))
for i in range(4):
    A("v_pk_sub_u16 v%d, v%d, v%d" % (RT + i, RT + i, vT + 4))
for i in range(4):
    A("v_lshlrev_b32_sdwa v%d, 2, v%d dst_sel:DWORD dst_unused:UNUSED_PAD src0_sel:DWORD src1_sel:WORD_0" % (AD + 2 * i, RT + i))
    A("v_lshlrev_b32_sdwa v%d, 2, v%d dst_sel:DWORD dst_unused:UNUSED_PAD src0_sel:DWORD src1_sel:WORD_1" % (AD + 2 * i + 1, RT + i))
    A("ds_read_b32 v%d, v%d offset:%d" % (Y + 2 * i, AD + 2 * i, L_TAB))
    A("ds_read_b32 v%d, v%d offset:%d" % (Y + 2 * i + 1, AD + 2 * i + 1, L_TAB))
A("v_max3_u32 v%d, v%d, v%d, v%d" % (vT, AD, AD + 1, AD + 2))
A("v_max3_u32 v%d, v%d, v%d, v%d" % (vT + 1, AD + 3, AD + 4, AD + 5))
A("v_max3_u32 v%d, v%d, v%d, v%d" % (vT, vT, AD + 6, AD + 7))
A("v_max_u32 v%d, v%d, v%d" % (vT, vT, vT + 1))
A("v_cmp_le_u32 %s, s%d, v%d" % (sr(sH, 2), sT5, vT))
A("s_waitcnt lgkmcnt(5)")
A("v_max3_u32 v%d, v%d, v%d, v%d" % (vT, Y, Y + 1, Y + 2))
A("s_waitcnt lgkmcnt(2)")
A("v_max3_u32 v%d, v%d, v%d, v%d" % (vT + 1, Y + 3, Y + 4, Y + 5))
A("s_waitcnt lgkmcnt(0)")
A("v_max3_u32 v%d, v%d, v%d, v%d" % (vT, vT, Y + 6, Y + 7))
A("v_max_u32 v%d, v%d, v%d" % (vT, vT, vT + 1))
A("v_cmp_eq_u32 vcc, -1, v%d" % vT)
LB("Lslowdone")
for i in range(4):
    A("v_pk_add_f32 %s, %s, %s" % (vr(vT + 2 + 2 * i, 2), vr(X + 2 * i, 2), vr(Y + 2 * i, 2)))
A("s_or_b64 vcc, vcc, %s" % sr(sH, 2))
A("s_cbranch_vccnz Lslow")
A("s_cmp_lg_u32 s%d, 0" % sLAY)
for i in range(4):
    A("v_cvt_pk_bf16_f32 v%d, v%d, v%d" % (XR + i, vT + 2 + 2 * i, vT + 3 + 2 * i))
STAMP(11)
A("s_cbranch_scc1 Lout")
A("s_mov_b32 s%d, 1" % sLAY)
if TOT or MEAS: A("s_memrealtime s[100:101]")
if DIAG: A("v_mov_b32 v28, v30")
A("s_branch Llnq")

L.append(".p2align 6"); LB("Lst_fin"); A("s_setpc_b64 %s" % sr(sRET, 2)); stubs.append("fin")
LB("Lfinal")
A("s_cmp_ge_u32 s2, 4")
A("s_cbranch_scc1 Lepoch")
C("workgroup b: reduce the 32 head partials of row b, add x2, mixer, store")
soff(sT1, [(2, 15), (sW, 13)], PB + P_L)
A("s_add_u32 s%d, s%d, 4096" % (sT2, sT1))
A("s_mul_i32 s%d, s2, %d" % (sT0, XS))
A("s_lshl_b32 s%d, s%d, 8" % (sT3, sW))
A("s_add_u32 s%d, s%d, s%d" % (sT0, sT0, sT3))
A("s_add_u32 s%d, s%d, %d" % (sT0, sT0, L_X2))
A("v_add_u32 v%d, s%d, v%d" % (vT + 4, sT0, vX1S))
A("s_add_u32 s%d, s%d, %d" % (sT3, sT3, L_XN))
A("v_add_u32 v%d, s%d, v%d" % (vT + 5, sT3, vX1S))
A("ds_read_b64 %s, v%d" % (vr(PM, 2), vT + 4))
A("ds_read_b64 %s, v%d offset:128" % (vr(PM + 2, 2), vT + 4))
A("s_mov_b32 s%d, 0x00ff00ff" % sT4)
A("s_mov_b32 s%d, 0" % sT5)
if XENT:
    A("s_cmp_lg_u32 s%d, 3" % sW)
    A("s_cbranch_scc1 Lfn3")
    A("ds_read_b32 v%d, v%d offset:48" % (vT, vFL))
    A("s_waitcnt lgkmcnt(0)")
    A("v_readfirstlane_b32 s%d, v%d" % (sT0, vT))
    A("s_cmp_eq_u32 s%d, 0" % sT0)
    A("s_cbranch_scc1 Lfn3")
    A("s_mov_b32 s%d, %s" % (sCNT, hx(TB)))
    for i in range(XENT * 4 // 1024):
        A("buffer_load_dwordx4 %s, v%d, %s, s%d offen offset:%d sc1" % (vr(W + 4 * i, 4), vL16, sr(sWS, 4), sCNT, 1024 * i))
    A("v_add_u32 v%d, %d, v%d" % (vT + 6, L_TAB, vL16))
    A("s_waitcnt vmcnt(0)")
    for i in range(XENT * 4 // 1024):
        A("ds_write_b128 v%d, %s offset:%d" % (vT + 6, vr(W + 4 * i, 4), 1024 * i))
    LB("Lfn3")
A("s_waitcnt lgkmcnt(0)")
if GW: A("s_waitcnt vmcnt(0)")
for i in range(4):
    A("v_lshlrev_b32 v%d, 16, v%d" % (PM + 4 + 2 * i, PM + i))
    A("v_and_b32 v%d, 0xffff0000, v%d" % (PM + 5 + 2 * i, PM + i))
if "bias" in OPT:
    for i in range(8): A("v_add_f32 v%d, %s, v%d" % (PM + 4 + i, hx(f2u(float(OPT["bias"]))), PM + 4 + i))
FS = [KF, VF]
def ifin(k):
    for i in range(8):
        A("buffer_load_dwordx4 %s, v%d, %s, s%d offen offset:%d sc1" % (vr(FS[k] + 4 * i, 4), vL16, sr(sWS, 4), sT1 if i < 4 else sT2, 1024 * (i & 3)))
def fs(k):
    o = []
    for i in range(4):
        o.append(mf(W + 32, SEL, FS[k] + 4 * i, None if i == 0 else W + 32))
        o.append(mf(W + 36, SEL, FS[k] + 16 + 4 * i, None if i == 0 else W + 36))
    return o
ppoll(ifin, lambda k: range(FS[k], FS[k] + 32), 8, vT, fs, pre=GPRE, gap=GGAP, tag=2,
      per_load=lambda k, i: [mf(W + 32 + 4 * (i >> 2), SEL, FS[k] + 4 * i, None if (i & 3) == 0 else W + 32 + 4 * (i >> 2))])
STAMP(9)
NOP(2)
for i in range(8):
    A("v_add_f32_dpp v%d, v%d, v%d row_ror:8 row_mask:0xf bank_mask:0xf" % (W + 32 + i, W + 32 + i, W + 32 + i))
A("s_mov_b64 exec, %s" % sr(sT4, 2))
for i in range(4):
    A("v_pk_add_f32 %s, %s, %s" % (vr(W + 32 + 2 * i, 2), vr(W + 32 + 2 * i, 2), vr(PM + 4 + 2 * i, 2)))
for i in range(4):
    A("v_cvt_pk_bf16_f32 v%d, v%d, v%d" % (W + 32 + i, W + 32 + 2 * i, W + 33 + 2 * i))
A("ds_write_b64 v%d, %s" % (vT + 5, vr(W + 32, 2)))
A("ds_write_b64 v%d, %s offset:128" % (vT + 5, vr(W + 34, 2)))
A("s_mov_b64 exec, -1")
A("s_cmp_lg_u32 s%d, 0" % sW)
A("s_waitcnt lgkmcnt(0)")
A("s_barrier")
A("s_cbranch_scc1 Lfin_exit")
A("ds_read_b128 %s, v%d" % (vr(XR, 4), vXNW))
A("s_waitcnt lgkmcnt(0)")
STAMP(10)
A("s_branch Lmix")
L.append(".p2align 6"); LB("Lst_out"); A("s_setpc_b64 %s" % sr(sRET, 2)); stubs.append("out")
LB("Lout")
A("s_lshl_b32 s%d, s2, 10" % sT0)
A("buffer_store_dwordx4 %s, v%d, %s, s%d offen" % (vr(XR, 4), vL16, sr(sOUT, 4), sT0))
if DBL:
    A("s_cmp_lg_u32 s2, 0")
    A("s_cbranch_scc1 Lfin_exit")
if DBL:
    A("s_waitcnt vmcnt(0)")
    A("s_memrealtime s[10:11]")
    A("s_waitcnt lgkmcnt(0)")
    A("s_sub_u32 s12, s10, s98")
    if "pad" in OPT:
        A("s_mov_b32 s10, s98"); A("s_mov_b32 s12, %d" % (100 * int(OPT["pad"])))
    LB("Ldbl")
    A("s_memrealtime s[14:15]")
    A("s_waitcnt lgkmcnt(0)")
    A("s_sub_u32 s13, s14, s10")
    A("s_cmp_lt_u32 s13, s12")
    A("s_cbranch_scc1 Ldbl")
LB("Lfin_exit")
if MEAS:
    src = {"mix": "s100", "entry": "s98"}.get(OPT["q"], "s98" if OPT["q"][0] == "h" else "s97")
    A("s_waitcnt vmcnt(0) lgkmcnt(0)")
    if OPT["q"] == "end":
        A("s_memrealtime s[42:43]"); A("s_waitcnt lgkmcnt(0)"); src = "s42"
    LB("Lms0")
    A("s_memrealtime s[14:15]"); A("s_waitcnt lgkmcnt(0)"); A("s_sub_u32 s13, s14, s98"); A("s_cmp_lt_u32 s13, 1600"); A("s_cbranch_scc1 Lms0")
    A("s_mov_b64 exec, 1")
    A("v_mov_b32 v16, %s" % src)
    A("s_not_b32 s10, s98")
    A("v_mov_b32 v17, s10")
    A("global_atomic_umax v[30:31], v16, off sc1")
    A("global_atomic_umax v[30:31], v17, off offset:128 sc1")
    A("s_or_b32 s10, s2, s%d" % sW)
    A("s_cmp_lg_u32 s10, 0")
    A("s_cbranch_scc1 Lend")
    LB("Lms1")
    A("s_memrealtime s[14:15]"); A("s_waitcnt lgkmcnt(0)"); A("s_sub_u32 s13, s14, s98"); A("s_cmp_lt_u32 s13, 4000"); A("s_cbranch_scc1 Lms1")
    A("global_load_dword v16, v[30:31], off sc1")
    A("global_load_dword v17, v[30:31], off offset:128 sc1")
    A("s_waitcnt vmcnt(0)")
    A("v_readfirstlane_b32 s10, v16"); A("v_readfirstlane_b32 s11, v17")
    A("s_not_b32 s11, s11"); A("s_sub_u32 s10, s10, s11"); A("s_lshl_b32 s10, s10, 2"); A("s_add_u32 s12, s10, 4200")
    A("s_min_u32 s12, s12, 20000")
    LB("Lms2")
    A("s_memrealtime s[14:15]"); A("s_waitcnt lgkmcnt(0)"); A("s_sub_u32 s13, s14, s98"); A("s_cmp_lt_u32 s13, s12"); A("s_cbranch_scc1 Lms2")
if TOT:
    A("s_waitcnt vmcnt(0)")
    A("s_memrealtime s[10:11]")
    A("s_waitcnt lgkmcnt(0)")
    A("v_mov_b32 v16, s98")
    A("v_mov_b32 v17, s10")
    A("v_mov_b32 v18, s100")
    A("v_mov_b32 v19, s97")
    soff(sT2, [(2, 6), (sW, 4)], STB)
    A("v_mov_b32 v20, 0")
    A("s_mov_b64 exec, 1")
    A("buffer_store_dwordx4 v[16:19], v20, %s, s%d offen" % (sr(sWS, 4), sT2))
if DIAG:
    A("s_waitcnt vmcnt(0)")
    STAMP(12)
    if DIAG == 2:
        A("s_or_b32 s%d, s2, s%d" % (sT0, sW))
        A("s_cmp_lg_u32 s%d, 0" % sT0)
        A("s_cbranch_scc1 Lend")
        A("v_readlane_b32 s%d, v28, 0" % sT2)
        for k, (r, i) in enumerate([(31, 10), (31, 12), (28, 1), (28, 2), (28, 6), (28, 5), (28, 7), (28, 8), (28, 9), (28, 10), (28, 11), (30, 3), (30, 5), (30, 8), (30, 9), (30, 12)]):
            A("v_readlane_b32 s%d, v%d, %d" % (sT3, r, i))
            A("s_sub_u32 s%d, s%d, s%d" % (sT3, sT3, sT2))
            A("s_nop 0")
            A("v_writelane_b32 v17, s%d, %d" % (sT3, k))
        A("v_lshlrev_b32 v16, 2, v%d" % vLANE)
        A("s_mov_b64 exec, 0xffff")
        A("global_store_dword v16, v17, s[100:101]")
        A("s_endpgm")
    soff(sT1, [(2, 10), (sW, 7)], STB)
    A("v_lshlrev_b32 v16, 2, v%d" % vLANE)
    A("s_mov_b64 exec, 0xffff")
    A("buffer_store_dword v28, v16, %s, s%d offen" % (sr(sWS, 4), sT1))
    A("buffer_store_dword v30, v16, %s, s%d offen offset:64" % (sr(sWS, 4), sT1))
    A("s_add_u32 s%d, s%d, 0x40000" % (sT1, sT1))
    A("buffer_store_dword v31, v16, %s, s%d offen" % (sr(sWS, 4), sT1))
LB("Lend")
A("s_endpgm")
LB("Lepoch")
if int(OPT.get("wb", 0)):
    A("s_cmp_lg_u32 s%d, 0" % sW)
    A("s_cbranch_scc1 Lnowb")
    A("s_waitcnt vmcnt(0)")
    A("buffer_wbl2 sc1")
    LB("Lnowb")
C("every workgroup has used the old launch tag long ago: workgroup 4 advances it")
A("s_lshl_b32 s%d, s%d, 8" % (sT0, sW))
A("s_add_u32 s%d, s%d, s2" % (sT0, sT0))
A("s_cmp_lg_u32 s%d, 4" % sT0)
A("s_cbranch_scc1 Lfin_exit")
A("v_mov_b32 v16, s%d" % sTG1)
A("v_mov_b32 v17, %s" % hx(EPO))
A("s_mov_b64 exec, 1")
A("buffer_store_dword v16, v17, %s, 0 offen sc1" % sr(sWS, 4))
A("s_mov_b64 exec, -1")
A("s_branch Lfin_exit")

L.append(".p2align 6"); LB("Lst_tab"); A("s_setpc_b64 %s" % sr(sRET, 2)); stubs.append("tab")
LB("Ltab")
C("waves 2,3: gather the main part of the g(h) table into LDS ; wave 1: the lowest octaves, best effort")
NTL = NOCT * 1024 // 2 // 1024
A("s_cmp_eq_u32 s%d, 1" % sW)
A("s_cbranch_scc1 Lext")
A("s_sub_u32 s%d, s%d, 2" % (sT1, sW))
A("s_mul_i32 s%d, s%d, %d" % (sT1, sT1, NTL * 1024))
A("s_add_u32 s%d, s%d, %d" % (sT1, sT1, XENT * 4))
A("v_add_u32 v%d, s%d, v%d" % (vT + 4, sT1, vL16))
A("v_add_u32 v%d, %d, v%d" % (vT + 4, L_TAB, vT + 4))
A("s_add_u32 s%d, s%d, %s" % (sT1, sT1, hx(TB)))
A("s_add_u32 s%d, s%d, 4096" % (sT2, sT1))
if TGW: A("s_waitcnt vmcnt(0)"); A("s_nop 15")
def it():
    for i in range(NTL):
        A("buffer_load_dwordx4 %s, v%d, %s, s%d offen offset:%d sc1" % (vr(W + 4 * i, 4), vL16, sr(sWS, 4), sT1 if i < 4 else sT2, 1024 * (i & 3)))
poll(it, range(W, W + 4 * NTL), vT, back="s_sleep %d" % int(OPT.get("tsl", 16)))
for i in range(NTL):
    A("ds_write_b128 v%d, %s offset:%d" % (vT + 4, vr(W + 4 * i, 4), 1024 * i))
A("s_waitcnt lgkmcnt(0)")
lds_arrive(20, vT + 4)
STAMP(9)
MP("tg")
A("s_branch Ltabdone")
def ext_load(d):
    for i in range(XENT * 4 // 1024):
        A("buffer_load_dwordx4 %s, v%d, %s, s%d offen offset:%d sc1" % (vr(d + 4 * i, 4), vL16, sr(sWS, 4), sT4, 1024 * i))
def ext_write(d):
    for i in range(XENT * 4 // 1024):
        A("ds_write_b128 v%d, %s offset:%d" % (vT + 4, vr(d + 4 * i, 4), 1024 * i))
LB("Lext")
if XENT:
    A("s_mov_b32 s%d, %s" % (sT4, hx(TB)))
    A("v_add_u32 v%d, %d, v%d" % (vT + 4, L_TAB, vL16))
    for i in range(4): A("v_mov_b32 v%d, -1" % (W + i))
    for i in range(XENT * 4 // 1024):
        A("ds_write_b128 v%d, %s offset:%d" % (vT + 4, vr(W, 4), 1024 * i))
    A("ds_write_b32 v%d, v%d offset:48" % (vFL, W))
    A("s_waitcnt lgkmcnt(0)")
lds_arrive(20, vT + 5)
if XENT:
    C("one look at the lowest octaves, skipped when x1 is already there")
    soff(sT3, [(sW, 10), (sJ, 17)], X1_OFF)
    A("s_waitcnt vmcnt(0)")
    A("buffer_load_dwordx4 %s, v%d, %s, s%d offen sc1" % (vr(XR, 4), vL16, sr(sWS, 4), sT3))
    A("s_waitcnt vmcnt(0)")
    for x in maxtree(range(XR, XR + 4), vT): A(x)
    A("v_cmp_eq_u32 vcc, -1, v%d" % vT)
    A("s_cbranch_vccz Lexx")
    A("s_mov_b32 s%d, %d" % (sCNT, int(OPT.get("xlk", 2)) - 1))
    LB("Lexl")
    A("buffer_load_dwordx4 %s, v%d, %s, s%d offen sc1" % (vr(XR, 4), vL16, sr(sWS, 4), sT3))
    if "l" in OPT.get("xs", ""): A("s_branch Ltabdone")
    ext_load(W + 32)
    A("s_waitcnt vmcnt(4)")
    for x in maxtree(range(XR, XR + 4), vT): A(x)
    A("v_cmp_eq_u32 vcc, -1, v%d" % vT)
    A("s_cbranch_vccz Lexx")
    A("s_waitcnt vmcnt(0)")
    ext_write(W + 32)
    for x in maxtree(range(W + 32, W + 48), vT): A(x)
    A("v_cmp_eq_u32 vcc, -1, v%d" % vT)
    A("s_cbranch_vccz Lexc")
    A("s_sub_u32 s%d, s%d, 1" % (sCNT, sCNT))
    A("s_cbranch_scc0 Lexl")
    A("s_branch Ltabdone")
    LB("Lexc")
    A("v_mov_b32 v%d, 0" % vT)
    A("ds_write_b32 v%d, v%d offset:48" % (vFL, vT))
    A("s_branch Ltabdone")
    LB("Lexx")
    wqf_reads()
    A("s_branch Ltw")
else:
    A("s_branch Ltabdone")
LB("Ltw")
lds_spin(20, 3, vT + 2)
A("s_branch Ltwd")

for b in ool: L += b
ool = []
LB("Lslow")
C("rare: some h lies outside the table -> evaluate g(h) directly for those lanes")
RW1 = [W + 32 + i for i in range(14)]
RB1 = [PM + i for i in range(14)]
RW2 = [16 + i for i in range(10)] + [W + 46, W + 47, PM + 14, PM + 15]
A("v_lshlrev_b32 v26, 3, v%d" % vLANE)
A("s_load_dword s%d, %s, 0" % (sB2, sr(sB2P, 2)))
for (d4, d2, s) in [([W + 32, W + 36, W + 40], W + 44, sW1), ([PM, PM + 4, PM + 8], PM + 12, sB1)]:
    for k in range(3):
        A("buffer_load_dwordx4 %s, v%d, %s, 0 offen offset:%d" % (vr(d4[k], 4), vL16, sr(s, 4), 1024 * k))
    A("buffer_load_dwordx2 %s, v26, %s, 0 offen offset:3072" % (vr(d2, 2), sr(s, 4)))
A("buffer_load_dwordx4 v[16:19], v%d, %s, 0 offen" % (vL16, sr(sW2, 4)))
A("buffer_load_dwordx4 v[20:23], v%d, %s, 0 offen offset:1024" % (vL16, sr(sW2, 4)))
A("buffer_load_dwordx2 v[24:25], v%d, %s, 0 offen offset:2048" % (vL16, sr(sW2, 4)))
A("buffer_load_dwordx2 %s, v%d, %s, 0 offen offset:2056" % (vr(W + 46, 2), vL16, sr(sW2, 4)))
A("buffer_load_dwordx2 %s, v26, %s, 0 offen offset:3072" % (vr(PM + 14, 2), sr(sW2, 4)))
A("s_waitcnt vmcnt(0) lgkmcnt(0)")
A("s_lshl_b32 s%d, s%d, 16" % (sB2, sB2))
A("s_mov_b32 s%d, 1" % sT4)
for e in range(8):
    A("v_cmp_le_u32 vcc, %d, v%d" % (NENT * 4, AD + e))
    A("v_cmp_eq_u32 %s, -1, v%d" % (sr(sH2, 2), Y + e))
    A("s_or_b64 %s, %s, vcc" % (sr(sH2, 2), sr(sH2, 2)))
    if e & 1: A("v_and_b32 v%d, 0xffff0000, v%d" % (RT + 3, HB + (e >> 1)))
    else: A("v_lshlrev_b32 v%d, 16, v%d" % (RT + 3, HB + (e >> 1)))
    LB("Lse%d" % e)
    A("s_cmp_eq_u64 %s, 0" % sr(sH2, 2))
    A("s_cbranch_scc1 Lsf%d" % e)
    A("s_ff1_i32_b64 s%d, %s" % (sT0, sr(sH2, 2)))
    A("s_nop 0")
    A("v_readlane_b32 s%d, v%d, s%d" % (sH, RT + 3, sT0))
    A("s_cmp_eq_u32 s%d, s%d" % (sH, sT4))
    A("s_cbranch_scc1 Lsg%d" % e)
    A("s_mov_b32 s%d, s%d" % (sT4, sH))
    A("s_call_b64 %s, Lgev" % sr(sRET, 2))
    LB("Lsg%d" % e)
    A("s_nop 1")
    A("v_cmp_eq_u32 vcc, s%d, v%d" % (sH, RT + 3))
    A("v_mov_b32 v%d, s%d" % (RES + 3, sY))
    A("s_andn2_b64 %s, %s, vcc" % (sr(sH2, 2), sr(sH2, 2)))
    A("v_cndmask_b32 v%d, v%d, v%d, vcc" % (Y + e, Y + e, RES + 3))
    A("s_branch Lse%d" % e)
    LB("Lsf%d" % e)
for i in range(16): A("v_mov_b32 v%d, 0" % (PM + i))
A("s_mov_b64 vcc, 0")
A("s_mov_b64 %s, 0" % sr(sH, 2))
A("s_branch Lslowdone")
LB("Lgev")
a, u, t1, z = RES, RES + 1, RES + 2, RT
A("v_mov_b32 v%d, 0" % a)
A("v_mov_b32 v%d, %s" % (RT + 1, hx(f2u(K0))))
A("v_mov_b32 v%d, %s" % (RT + 2, hx(f2u(K1))))
for p in range(14):
    for hf in range(2):
        def un(d, s):
            if hf == 0: A("v_lshlrev_b32 v%d, 16, v%d" % (d, s))
            else: A("v_and_b32 v%d, 0xffff0000, v%d" % (d, s))
        un(u, RW1[p]); un(t1, RB1[p]); un(z, RW2[p])
        A("v_fma_f32 v%d, v%d, s%d, v%d" % (u, u, sH, t1))
        A("v_mul_f32 v%d, v%d, v%d" % (t1, u, u))
        A("v_fma_f32 v%d, v%d, v%d, v%d" % (t1, t1, RT + 2, RT + 1))
        A("v_mul_f32 v%d, v%d, v%d" % (t1, t1, u))
        A("v_exp_f32 v%d, v%d" % (t1, t1))
        A("v_mul_f32 v%d, v%d, v%d" % (z, z, u))
        A("v_add_f32 v%d, 1.0, v%d" % (t1, t1))
        A("v_rcp_f32 v%d, v%d" % (t1, t1))
        A("s_nop 0")
        A("v_fmac_f32 v%d, v%d, v%d" % (a, z, t1))
A("v_mov_b32 v%d, v%d" % (u, a))
A("s_nop 1")
wave_sum2(a, u, sY, sT1)
A("s_nop 1")
A("v_mov_b32 v%d, s%d" % (a, sY))
A("v_cvt_pk_bf16_f32 v%d, v%d, v%d" % (a, a, a))
A("v_and_b32 v%d, 0xffff0000, v%d" % (a, a))
A("v_add_f32 v%d, s%d, v%d" % (a, sB2, a))
A("v_cvt_pk_bf16_f32 v%d, v%d, v%d" % (a, a, a))
A("v_and_b32 v%d, 0xffff0000, v%d" % (a, a))
A("s_nop 0")
A("v_readfirstlane_b32 s%d, v%d" % (sY, a))
A("s_nop 3")
A("s_setpc_b64 %s" % sr(sRET, 2))

for b in ool: L += b
A("s_endpgm")
L.append(".p2align 8")
L.append(".fill %d, 4, 0xBF800000" % (64 if DIAG else 512))
L.append('''.section .rodata,"a"
.p2align 6
.amdhsa_kernel %s_kernel
  .amdhsa_next_free_vgpr 256
  .amdhsa_next_free_sgpr 102
  .amdhsa_accum_offset 256
  .amdhsa_group_segment_fixed_size 0
  .amdhsa_kernarg_size 104
  .amdhsa_user_sgpr_count 2
  .amdhsa_user_sgpr_kernarg_segment_ptr 1
  .amdhsa_system_sgpr_workgroup_id_x 1
.end_amdhsa_kernel''' % NAME)
open(OUTF, "w").write("\n".join(x for x in L if x is not None) + "\n")
print("wrote", OUTF, "lines", len(L), "LDS", LDS_SZ)
```
